```python
import torch

def _softmax(x, axis=-1):
    return torch.softmax(x, dim=axis)
def _gelu(x):
    return torch.nn.functional.gelu(x, approximate="tanh")
def _silu(x):
    return torch.nn.functional.silu(x)
def _sigmoid(x):
    return torch.sigmoid(x)
def _layernorm(x, axis=-1, eps=1e-5):
    m = x.mean(dim=axis, keepdim=True)
    v = x.var(dim=axis, keepdim=True, unbiased=False)
    return (x - m) / torch.sqrt(v + eps)
def _scatter_add(tgt, idx, src, axis=0):
    return tgt.clone().index_add_(axis, idx, src)
def _segment_sum(src, seg, n):
    out = torch.zeros((n,) + src.shape[1:], dtype=src.dtype)
    return out.index_add_(0, seg, src)
def _pad(x, pw):
    flat = tuple(v for pair in reversed(pw) for v in pair)
    return torch.nn.functional.pad(x, flat)

kernel_name = 'sequential_preLN__ssm_conv_s4__moe_arch_mod__prompt'

def setup_inputs():

    _w = (lambda a: (lambda t: t.to(torch.bfloat16) if t.is_floating_point() else t)(torch.as_tensor(a)))
    def _A_setup():
        B, L, D, N = 1, 2048, 576, 128
        A_re = -(lambda _x: torch.exp(torch.as_tensor(_x)))((lambda *s: torch.randn(*s, dtype=torch.bfloat16) * 1.6)(D, N))
        A_im = torch.pi * (lambda *s: torch.randn(*s, dtype=torch.bfloat16) * 0.2)(D, N)
        B_re = (lambda *s: torch.randn(*s, dtype=torch.bfloat16) * 0.2)(D, N)
        B_im = (lambda *s: torch.randn(*s, dtype=torch.bfloat16) * 0.2)(D, N)
        C_re = (lambda *s: torch.randn(*s, dtype=torch.bfloat16) * 0.2)(D, N)
        C_im = (lambda *s: torch.randn(*s, dtype=torch.bfloat16) * 0.2)(D, N)
        log_dt = (lambda *s: torch.randn(*s, dtype=torch.bfloat16) * 0.2)(D) * 0.5 - 4.0
        Dskip = (lambda *s: torch.randn(*s, dtype=torch.bfloat16) * 0.2)(D)
        return {
            "u": _w((lambda *s: torch.randn(*s, dtype=torch.bfloat16) * 0.05)(B, L, D)),
            "A_re": _w(A_re),
            "A_im": _w(A_im),
            "B_re": _w(B_re),
            "B_im": _w(B_im),
            "C_re": _w(C_re),
            "C_im": _w(C_im),
            "log_dt": _w(log_dt),
            "Dskip": _w(Dskip),
        }
    _A_in = _A_setup()

    def _B_setup():
        B, S, D, F, C = 1, 2048, 576, 4608, 8
        return {
            "x": _w((lambda *s: torch.randn(*s, dtype=torch.bfloat16) * 0.05)(B, S, D)),
            "w_r": _w((lambda *s: torch.randn(*s, dtype=torch.bfloat16) * 0.2)(D)),
            "w_gate": _w((lambda *s: torch.randn(*s, dtype=torch.bfloat16) * 0.2)(D, F)),
            "w_up": _w((lambda *s: torch.randn(*s, dtype=torch.bfloat16) * 0.2)(D, F)),
            "w_down": _w((lambda *s: torch.randn(*s, dtype=torch.bfloat16) * 0.2)(F, D)),
        }
    _B_in = _B_setup()

    return {
        "A_u": _A_in["u"],
        "A_A_re": _A_in["A_re"],
        "A_A_im": _A_in["A_im"],
        "A_B_re": _A_in["B_re"],
        "A_B_im": _A_in["B_im"],
        "A_C_re": _A_in["C_re"],
        "A_C_im": _A_in["C_im"],
        "A_log_dt": _A_in["log_dt"],
        "A_Dskip": _A_in["Dskip"],
        "B_x": _B_in["x"],
        "B_w_r": _B_in["w_r"],
        "B_w_gate": _B_in["w_gate"],
        "B_w_up": _B_in["w_up"],
        "B_w_down": _B_in["w_down"],
    }

def reference(A_u, A_A_re, A_A_im, A_B_re, A_B_im, A_C_re, A_C_im, A_log_dt, A_Dskip, B_x, B_w_r, B_w_gate, B_w_up, B_w_down):
    def _A_ref(u, A_re, A_im, B_re, B_im, C_re, C_im, log_dt, Dskip):
        Bsz, L, D = u.shape
        dt = torch.exp(log_dt)[:, None]
        A = A_re + 1j * A_im
        Bc = B_re + 1j * B_im
        Cc = C_re + 1j * C_im
        logdA = dt * A
        dB = dt * Bc
        l = (lambda x, dt: x.to(dt))(torch.arange(L), A_re.dtype)
        P = torch.exp(logdA[:, :, None] * l[None, None, :])
        K = torch.einsum("dn,dnl,dn->dl", Cc, P, dB).real
        L2 = 2 * L
        Kp = _pad(K, ((0, 0), (0, L)))
        up = (lambda x, *d: x.permute(*d))(u, 0, 2, 1)
        up = _pad(up, ((0, 0), (0, 0), (0, L)))
        Kf = (lambda x, axes=(-2,-1): torch.fft.rfft2(x.float(), dim=axes))(Kp[:, None, :], axes=(-2, -1))
        Uf = (lambda x, axes=(-2,-1): torch.fft.rfft2(x.float(), dim=axes))(up[:, :, None, :], axes=(-2, -1))
        Yf = Uf * Kf[None, :, :, :]
        y = (lambda x, s, axes=(-2,-1): torch.fft.irfft2(x, s=s, dim=axes).to(torch.bfloat16))(Yf, (1, L2), axes=(-2, -1))[:, :, 0, :L]
        y = (lambda x, *d: x.permute(*d))(y, 0, 2, 1) + u * Dskip[None, None, :]
        return y

    def _B_ref(x, w_r, w_gate, w_up, w_down):
        B, S, D = x.shape
        C = 8
        r = x @ w_r
        idx = torch.argsort(-r, axis=-1)[:, :C]
        idx_e = (lambda x, n, axis: torch.repeat_interleave(x, n, dim=axis))(idx.reshape(B, C, 1), D, axis=2)
        x_sel = (lambda x, i, axis: torch.take_along_dim(x, i, dim=axis))(x, idx_e, axis=1)
        g = _silu(x_sel @ w_gate)
        u = x_sel @ w_up
        y = (g * u) @ w_down
        r_sel = _sigmoid((lambda x, i, axis: torch.take_along_dim(x, i, dim=axis))(r, idx, axis=1))
        y = y * r_sel.reshape(B, C, 1)
        b_off = (torch.arange(B) * S).reshape(B, 1)
        flat_idx = (idx + b_off).reshape(B * C)
        zero = (x * 0.0).reshape(B * S, D)
        upd = _scatter_add(zero, flat_idx, y.reshape(B * C, D), axis=0)
        return x + upd.reshape(B, S, D)

    x = A_u
    h = x + _A_ref(_layernorm(x, axis=-1), A_A_re, A_A_im, A_B_re, A_B_im, A_C_re, A_C_im, A_log_dt, A_Dskip)
    h2 = h + _B_ref(_layernorm(h, axis=-1), B_w_r, B_w_gate, B_w_up, B_w_down)
    return h2
```

```python
import re

REG_RE = re.compile(r'(?<![\w.])([vsa])(\d+)(?![\w\[])|(?<![\w.])([vsa])\[(\d+):(\d+)\]')

def regs_of(op):
    out = set()
    for m in REG_RE.finditer(op):
        if m.group(1):
            out.add((m.group(1), int(m.group(2))))
        else:
            for i in range(int(m.group(4)), int(m.group(5)) + 1):
                out.add((m.group(3), i))
    o = op.strip()
    if re.search(r'\bvcc\b', o): out |= {('s', 106), ('s', 107)}
    if re.search(r'\bvcc_lo\b', o): out.add(('s', 106))
    if re.search(r'\bvcc_hi\b', o): out.add(('s', 107))
    if re.search(r'\bexec\b', o): out |= {('s', 126), ('s', 127)}
    if re.search(r'\bm0\b', o): out.add(('s', 124))
    return out

def split_ops(s):
    ops, depth, cur = [], 0, ''
    for ch in s:
        if ch in '[(': depth += 1
        if ch in '])': depth -= 1
        if ch == ',' and depth == 0:
            ops.append(cur.strip()); cur = ''
        else:
            cur += ch
    if cur.strip(): ops.append(cur.strip())
    return ops

TRANS = ('v_exp_f32', 'v_log_f32', 'v_rcp_f32', 'v_rsq_f32', 'v_sqrt_f32', 'v_sin_f32', 'v_cos_f32', 'v_rcp_iflag_f32',
         'v_exp_f16', 'v_log_f16', 'v_rcp_f16', 'v_rsq_f16', 'v_sqrt_f16', 'v_sin_f16', 'v_cos_f16')

class Ins:
    def __init__(self, text):
        self.text = text
        t = text.split(';')[0].strip()
        self.label = t.endswith(':')
        self.directive = t.startswith('.')
        self.empty = (t == '')
        self.mn = ''
        self.w = set(); self.r = set()
        self.kind = 'other'
        if self.label or self.directive or self.empty: return
        parts = t.split(None, 1)
        mn = parts[0]; self.mn = mn
        rest = parts[1] if len(parts) > 1 else ''
        ops = split_ops(rest)
        self.ops = ops
        R = [regs_of(o.split(' ')[0] if False else o) for o in ops]
        self.dpp = ('_dpp' in mn) or bool(re.search(r'\b(row_|quad_perm|wave_|row_bcast)', rest))
        self.sdwa = '_sdwa' in mn or 'dst_sel' in rest
        self.opsel = 'op_sel' in rest and not mn.startswith('v_pk_') and not mn.startswith('v_mfma') and mn != 'v_fma_mix_f32'
        if mn.startswith('v_mfma') or mn.startswith('v_smfmac'):
            self.kind = 'mfma'
            self.w = R[0]; self.a = R[1]; self.b = R[2]; self.c = R[3] if len(R) > 3 else set()
            self.r = self.a | self.b | self.c
            if '32x32x16' in mn or '32x32x8' in mn or '32x32x32' in mn: self.passes = 8
            elif '16x16x32' in mn or '16x16x16' in mn or '16x16x64' in mn: self.passes = 4
            elif '32x32x2_f32' in mn: self.passes = 16
            elif '16x16x4_f32' in mn: self.passes = 8
            else: self.passes = 16
            self.sgemm = mn.endswith('_f32') and ('x2_f32' in mn or 'x4_f32' in mn or 'x1_' in mn)
        elif mn.startswith('v_'):
            self.kind = 'valu'
            self.trans = any(mn.startswith(x) for x in TRANS)
            if mn.startswith('v_cmpx'):
                self.w = R[0] | {('s', 126), ('s', 127)}; self.r = set().union(*R[1:]) if len(R) > 1 else set()
            elif mn.startswith('v_cmp'):
                self.w = R[0]; self.r = set().union(*R[1:])
            elif mn.startswith('v_permlane') and 'swap' in mn:
                self.w = R[0] | R[1]; self.r = R[0] | R[1]
            elif mn.startswith('v_swap'):
                self.w = R[0] | R[1]; self.r = R[0] | R[1]
            elif mn == 'v_nop':
                pass
            else:
                self.w = set(R[0]); rs = R[1:]
                if re.match(r'v_(add|sub|subrev|addc|subb|subbrev)_co_', mn) or mn.startswith('v_div_scale') or mn.startswith('v_mad_u64') or mn.startswith('v_mad_i64'):
                    self.w |= R[1]; rs = R[2:]
                self.r = set().union(*rs) if rs else set()
                if re.match(r'v_(fmac|mac|dot2c|dot4c|dot8c|pk_fmac|writelane)', mn) or (self.dpp and 'nodst' not in text) or self.sdwa or self.opsel or 'd16' in mn:
                    self.r |= R[0]
                if mn.startswith('v_cndmask') and len(ops) == 3: self.r |= {('s', 106), ('s', 107)}
                if mn.startswith('v_div_fmas'): self.r |= {('s', 106), ('s', 107)}
        elif mn.startswith('ds_'):
            self.kind = 'ds'
            if re.match(r'ds_(read|bpermute|permute|swizzle|.*_rtn)', mn):
                self.w = R[0]; self.r = set().union(*R[1:]) if len(R) > 1 else set()
                if 'd16' in mn: self.r |= R[0]
            else:
                self.r = set().union(*R)
        elif mn.startswith('buffer_') or mn.startswith('global_') or mn.startswith('flat_'):
            self.kind = 'vmem'
            lds = bool(re.search(r'\blds\b', rest)) or '_lds_' in mn
            self.ldsdma = lds
            if ('_load' in mn) and not lds:
                self.w = R[0]; self.r = set().union(*R[1:])
                if 'd16' in mn: self.r |= R[0]
            elif 'atomic' in mn and re.search(r'\bsc0\b', rest):
                self.w = R[0] if mn.startswith('buffer_') else R[0]; self.r = set().union(*R)
            else:
                self.r = set().union(*R) if R else set()
            if lds: self.r |= {('s', 124)}
            self.widestore = ('store' in mn) and ('x3' in mn or 'x4' in mn)
            if self.widestore:
                self.sdata = R[0] if mn.startswith('buffer_') else R[1]
        elif mn.startswith('s_'):
            self.kind = 'salu'
            if mn in ('s_nop', 's_waitcnt', 's_barrier', 's_endpgm', 's_branch', 's_setprio', 's_sleep') or mn.startswith('s_cbranch'):
                pass
            elif mn.startswith('s_cmp') or mn.startswith('s_bitcmp'):
                self.r = set().union(*R)
            else:
                self.w = set(R[0]) if R else set(); self.r = set().union(*R[1:]) if len(R) > 1 else set()
                if 'saveexec' in mn: self.w |= {('s', 126), ('s', 127)}; self.r |= {('s', 126), ('s', 127)}
    def states(self):
        if self.label or self.directive or self.empty: return 0
        if self.mn == 's_nop': return int(self.ops[0], 0) + 1
        return 1

def vg(s): return {x for x in s if x[0] in 'va'}
def sg(s): return {x for x in s if x[0] == 's'}

def need(p, c):
    n = 0
    if p.kind == 'valu':
        pw_v, pw_s = vg(p.w), sg(p.w)
        if c.kind == 'mfma' and (pw_v & c.r): n = max(n, 2)
        if c.kind == 'mfma' and (('s', 126) in pw_s): n = max(n, 4)
        if c.kind == 'valu':
            if c.dpp and (pw_v & c.r): n = max(n, 2)
            if c.dpp and (('s', 126) in pw_s): n = max(n, 5)
            if (c.mn.startswith('v_readlane') or c.mn.startswith('v_readfirstlane')) and (pw_v & c.r): n = max(n, 1)
            if c.mn.startswith('v_permlane') and (pw_v & c.r): n = max(n, 2)
            if c.mn.startswith('v_permlane') and (('s', 126) in pw_s): n = max(n, 4)
            if (c.mn.startswith(('v_readlane', 'v_writelane', 'v_readfirstlane'))) and (('s', 126) in pw_s): n = max(n, 4)
            if pw_s & sg(c.r):
                n = max(n, 2)
                if c.mn.startswith(('v_readlane', 'v_writelane')): n = max(n, 4)
                if c.mn.startswith('v_div_fmas'): n = max(n, 4)
            if getattr(p, 'trans', False) and not getattr(c, 'trans', False) and (pw_v & (c.r | c.w)): n = max(n, 1)
            if (p.sdwa or p.opsel) and (pw_v & (c.r | c.w)): n = max(n, 1)
        if p.mn.startswith('v_dot') and (pw_v & (c.r | c.w)) and not (c.mn == p.mn and pw_v == vg(c.w) and not (pw_v & set().union(*[regs_of(o) for o in c.ops[1:3]]))): n = max(n, 3)
        if c.kind == 'vmem' and (pw_s & sg(c.r)): n = max(n, 5)
        if c.kind in ('vmem', 'ds') and getattr(p, 'trans', False) and (pw_v & c.r): n = max(n, 1)
    if p.kind == 'mfma':
        P = p.passes
        tbl_ab = {2: 5, 4: 8, 8: 12, 16: 20}; tbl_ov = {2: 4, 4: 6, 8: 10, 16: 18}
        if p.sgemm:
            tbl_ab = {2: 4, 4: 6, 8: 10, 16: 18}; tbl_ov = {2: 2, 4: 4, 8: 8, 16: 16}
        if c.kind == 'mfma':
            if p.w & (c.a | c.b): n = max(n, tbl_ab[P])
            if p.w & c.c:
                if p.w == c.c and p.passes == c.passes and P >= 4: pass
                else: n = max(n, tbl_ov[P])
            elif p.w & c.w: n = max(n, tbl_ab[P])
        elif c.kind in ('valu', 'vmem', 'ds'):
            if p.w & (c.r | c.w): n = max(n, tbl_ab[P])
            if c.kind == 'valu' and (p.c & c.w) and not p.sgemm: n = max(n, {2: 1, 4: 3, 8: 7, 16: 15}[P])
    if p.kind == 'vmem' and getattr(p, 'widestore', False):
        if c.kind == 'valu' and (p.sdata & c.w): n = max(n, 2)
        elif (p.sdata & c.w): n = max(n, 1)
    if p.kind == 'ds' and p.mn.startswith('ds_write') and ('b96' in p.mn or 'b128' in p.mn):
        pass
    if p.kind == 'salu' and (('s', 124) in p.w):
        if (c.kind == 'vmem' and getattr(c, 'ldsdma', False)) or c.mn.startswith('s_movrel') or 'addtid' in c.mn or c.mn == 's_sendmsg': n = max(n, 1)
    return n

def fix_hazards(lines):
    ins = [Ins(l) for l in lines]
    out = []
    for c in ins:
        if c.states() > 0 and c.mn != 's_nop':
            dist = 0; req = 0
            for p in reversed(out):
                if p.states() == 0: continue
                nd = need(p, c)
                if nd > dist: req = max(req, nd - dist)
                dist += p.states()
                if dist >= 24: break
            while req > 0:
                k = min(req, 16)
                out.append(Ins(f"s_nop {k-1}"))
                req -= k
        out.append(c)
    return [i.text for i in out]

class Asm:
    def __init__(self):
        self.lines = []
    def __call__(self, *texts):
        for t in texts:
            for l in t.split('\n'):
                l = l.strip()
                if l: self.lines.append(l)
    def flush(self, n=20):
        while n > 0:
            k = min(n, 16); self.lines.append(f"s_nop {k-1}"); n -= k
    def text(self):
        return "\n".join(("" if (l.endswith(':') or l.startswith('.')) else "    ") + l for l in fix_hazards(self.lines)) + "\n"
```

```python
import sys, struct, math
sys.path.insert(0, "gen")
from asmlib import Asm

NAME = "sequential_preLN__ssm_conv_s4__moe_arch_mod__prompt"
L, D, N, F = 2048, 576, 128, 4608
XBYTES = L * D * 2
WS_UT = 0x000000
WS_KR = 0x300000
KR_STRIDE = 4112
WS_ZT = 0x600000
WS_X2 = 0x900000
WS_KEYS = 0xC00000
WS_KSC = 0xC10000
WS_IDX = 0xC20000
WS_PART = 0xD00000
WS_SIZE = 0x10000000

def f32(x): return "0x%08x" % struct.unpack("<I", struct.pack("<f", x))[0]
def f32v(x): return struct.unpack("<f", struct.pack("<f", x))[0]
LOG2E = math.log2(math.e)
LOG2E_HI = f32v(LOG2E); LOG2E_LO = LOG2E - LOG2E_HI
INV2PI = 1.0 / (2 * math.pi)
INV2PI_HI = f32v(INV2PI); INV2PI_LO = INV2PI - INV2PI_HI
DPPM = "row_mask:0xf bank_mask:0xf"

def srd(a, d, base, nbytes, off=0):
    if off:
        a(f"s_add_u32 s{d}, s{base}, {hex(off)}", f"s_addc_u32 s{d+1}, s{base+1}, 0")
    else:
        a(f"s_mov_b32 s{d}, s{base}", f"s_mov_b32 s{d+1}, s{base+1}")
    a(f"s_mov_b32 s{d+2}, {hex(nbytes)}", f"s_mov_b32 s{d+3}, 0x20000")

def red16(a, op, v):
    for r in (8, 4, 2, 1):
        a(f"{op}_dpp v{v}, v{v}, v{v} row_ror:{r} {DPPM}")
def red32(a, op, v, t):
    red16(a, op, v)
    a(f"v_mov_b32 v{t}, v{v}", f"v_permlane16_swap_b32 v{v}, v{t}", f"{op} v{v}, v{v}, v{t}")
def red64(a, op, v, t):
    red32(a, op, v, t)
    a(f"v_mov_b32 v{t}, v{v}", f"v_permlane32_swap_b32 v{v}, v{t}", f"{op} v{v}, v{v}, v{t}")

def header(a, label):
    a(f".globl {label}", ".p2align 8", f".type {label},@function", f"{label}:")

def kdesc(label, vgpr, sgpr=64):
    acc = (vgpr + 3) // 4 * 4
    return f""".amdhsa_kernel {label}
  .amdhsa_next_free_vgpr {vgpr}
  .amdhsa_next_free_sgpr {sgpr}
  .amdhsa_accum_offset {acc}
  .amdhsa_group_segment_fixed_size 0
  .amdhsa_kernarg_size 136
  .amdhsa_user_sgpr_count 2
  .amdhsa_user_sgpr_kernarg_segment_ptr 1
  .amdhsa_system_sgpr_workgroup_id_x 1
  .amdhsa_float_denorm_mode_32 3
.end_amdhsa_kernel
"""

def ln_stats(a, X, m2, rinv2, t0, t1, t2):
    a(f"v_pk_add_f32 v[{t0}:{t0+1}], v[{X}:{X+1}], v[{X+2}:{X+3}]")
    a(f"v_pk_add_f32 v[{t1}:{t1+1}], v[{X+4}:{X+5}], v[{X+6}:{X+7}]")
    for j in range(4, 9):
        t = t0 if j % 2 == 0 else t1
        a(f"v_pk_add_f32 v[{t}:{t+1}], v[{t}:{t+1}], v[{X+2*j}:{X+2*j+1}]")
    a(f"v_pk_add_f32 v[{t0}:{t0+1}], v[{t0}:{t0+1}], v[{t1}:{t1+1}]")
    a(f"v_add_f32 v{t0}, v{t0}, v{t0+1}")
    red32(a, "v_add_f32", t0, t1)
    a(f"v_mul_f32 v{t2}, {f32(1.0/576)}, v{t0}")
    a(f"v_mov_b32 v{t2+1}, v{t2}")
    a(f"v_cvt_pk_bf16_f32 v{m2}, v{t2}, v{t2}")
    a(f"v_and_b32 v{m2}, 0xffff0000, v{m2}", f"v_mov_b32 v{m2+1}, v{m2}")
    first = {t0: True, t1: True}
    for j in range(9):
        t = t0 if j % 2 == 0 else t1
        a(f"v_pk_add_f32 v[{rinv2}:{rinv2+1}], v[{X+2*j}:{X+2*j+1}], v[{t2}:{t2+1}] neg_lo:[0,1] neg_hi:[0,1]")
        if first[t]:
            a(f"v_pk_mul_f32 v[{t}:{t+1}], v[{rinv2}:{rinv2+1}], v[{rinv2}:{rinv2+1}]"); first[t] = False
        else:
            a(f"v_pk_fma_f32 v[{t}:{t+1}], v[{rinv2}:{rinv2+1}], v[{rinv2}:{rinv2+1}], v[{t}:{t+1}]")
    a(f"v_pk_add_f32 v[{t0}:{t0+1}], v[{t0}:{t0+1}], v[{t1}:{t1+1}]")
    a(f"v_add_f32 v{t0}, v{t0}, v{t0+1}")
    red32(a, "v_add_f32", t0, t1)
    a(f"v_mul_f32 v{t0}, {f32(1.0/576)}, v{t0}")
    a(f"v_cvt_pk_bf16_f32 v{t0}, v{t0}, v{t0}", f"v_and_b32 v{t0}, 0xffff0000, v{t0}")
    a(f"v_add_f32 v{t0}, {f32(1e-5)}, v{t0}")
    a(f"v_cvt_pk_bf16_f32 v{t0}, v{t0}, v{t0}", f"v_and_b32 v{t0}, 0xffff0000, v{t0}")
    a(f"v_sqrt_f32 v{t0}, v{t0}")
    a(f"v_cvt_pk_bf16_f32 v{t0}, v{t0}, v{t0}", f"v_and_b32 v{t0}, 0xffff0000, v{t0}")
    a(f"v_rcp_f32 v{rinv2}, v{t0}")
    a(f"v_mov_b32 v{rinv2+1}, v{rinv2}")

def unpack(a, dst, src):
    a(f"v_lshlrev_b32 v{dst}, 16, v{src}", f"v_and_b32 v{dst+1}, 0xffff0000, v{src}")

def ln_apply_pair(a, x, m2, rinv2, t, P):
    a(f"v_pk_add_f32 v[{t}:{t+1}], v[{x}:{x+1}], v[{m2}:{m2+1}] neg_lo:[0,1] neg_hi:[0,1]")
    a(f"v_cvt_pk_bf16_f32 v{P}, v{t}, v{t+1}")
    unpack(a, t, P)
    a(f"v_pk_mul_f32 v[{t}:{t+1}], v[{t}:{t+1}], v[{rinv2}:{rinv2+1}]")
    a(f"v_cvt_pk_bf16_f32 v{P}, v{t}, v{t+1}")
    unpack(a, t, P)

KG_ROW = 544
KG_TILE = 16 * KG_ROW
KG_TAB = 4 * KG_TILE
K1_LDS = KG_TAB + 1536

def gen_k1(a):
    header(a, "k1_kernel")
    a("s_cmp_ge_u32 s2, 832", "s_cbranch_scc1 K1_END")
    a("s_cmp_ge_u32 s2, 256", "s_cbranch_scc1 K1_KGEN")
    a("s_load_dwordx2 s[4:5], s[0:1], 0", "s_load_dwordx2 s[6:7], s[0:1], 128")
    a("v_lshrrev_b32 v1, 5, v0", "v_and_b32 v2, 31, v0")
    a("v_mul_u32_u24 v3, 1152, v1", "v_lshl_add_u32 v3, v2, 2, v3")
    a("s_mul_i32 s3, s2, 9216")
    a("s_waitcnt lgkmcnt(0)")
    srd(a, 8, 4, XBYTES)
    srd(a, 12, 6, XBYTES, WS_UT)
    for j in range(9):
        a(f"buffer_load_dword v{10+j}, v3, s[8:11], s3 offen offset:{128*j}")
    a("v_lshrrev_b32 v4, 6, v0", "v_mul_u32_u24 v4, 2304, v4", "v_lshl_add_u32 v4, v2, 3, v4")
    a("v_and_b32 v5, 1, v1", "v_lshl_add_u32 v4, v5, 2, v4")
    a("v_mul_u32_u24 v5, 0x020202, v5", f"v_lshlrev_b32 v6, 25, v1", "v_and_b32 v6, 0x02000000, v6")
    a("v_or_b32 v5, v5, v6", "v_add_u32 v5, 0x05040100, v5")
    X = 20
    for j in range(9):
        a(f"s_waitcnt vmcnt({8-j})")
        unpack(a, X + 2 * j, 10 + j)
    ln_stats(a, X, 40, 42, 44, 46, 48)
    for j in range(9):
        ln_apply_pair(a, X + 2 * j, 40, 42, 44, 46)
        a("v_cvt_pk_f16_f32 v46, v44, v45", "v_mov_b32 v47, v46", "v_permlane32_swap_b32 v46, v47")
        a(f"v_perm_b32 v{10+j}, v47, v46, v5")
        a(f"ds_write_b32 v4, v{10+j} offset:{256*j}")
    a("s_waitcnt lgkmcnt(0)", "s_barrier")
    a("v_lshlrev_b32 v6, 2, v0", "v_lshlrev_b32 v7, 4, v0")
    a("v_readfirstlane_b32 s16, v0")
    for k in range(2):
        a(f"ds_read2st64_b32 v[{20+4*k}:{21+4*k}], v6 offset0:{4*k} offset1:{9+4*k}")
        a(f"ds_read2st64_b32 v[{22+4*k}:{23+4*k}], v6 offset0:{18+4*k} offset1:{27+4*k}")
    a("s_cmp_ge_u32 s16, 64", "s_cbranch_scc1 K1_LN_SKIP")
    a(f"ds_read2st64_b32 v[28:29], v6 offset0:8 offset1:17")
    a(f"ds_read2st64_b32 v[30:31], v6 offset0:26 offset1:35")
    a("s_add_u32 s17, s3, 8192")
    a("s_waitcnt lgkmcnt(0)")
    a("buffer_store_dwordx4 v[28:31], v7, s[12:15], s17 offen")
    a("K1_LN_SKIP:")
    a("s_add_u32 s17, s3, 4096")
    a("s_waitcnt lgkmcnt(0)")
    a("buffer_store_dwordx4 v[20:23], v7, s[12:15], s3 offen")
    a("buffer_store_dwordx4 v[24:27], v7, s[12:15], s17 offen")
    a("s_endpgm")

    a("K1_KGEN:")
    a("s_load_dwordx16 s[16:31], s[0:1], 0", "s_load_dwordx2 s[6:7], s[0:1], 128")
    a("s_sub_u32 s3, s2, 256", "s_and_b32 s4, s3, 7", "s_mul_i32 s4, s4, 72", "s_lshr_b32 s3, s3, 3", "s_add_u32 s3, s3, s4")
    a("v_and_b32 v1, 63, v0")
    a("s_lshl_b32 s4, s3, 8", "v_lshl_add_u32 v2, v1, 2, s4")
    a("s_lshl_b32 s4, s3, 1", "v_mov_b32 v3, s4")
    a("v_readfirstlane_b32 s5, v0", "s_lshr_b32 s5, s5, 6")
    a("s_waitcnt lgkmcnt(0)")
    a("global_load_ushort v16, v3, s[30:31]")
    for k in range(6):
        a(f"global_load_dword v{10+k}, v2, s[{18+2*k}:{19+2*k}]")
    srd(a, 8, 6, 576 * KR_STRIDE, WS_KR)
    srd(a, 12, 6, 576 * 4, WS_KSC)
    a("v_lshlrev_b32 v4, 3, v0", "v_sub_u32 v4, 2047, v4")
    for jj in range(0, 8, 2):
        a(f"v_subrev_u32 v5, {jj}, v4", f"v_subrev_u32 v6, {jj+1}, v4")
        a("v_cvt_f32_u32 v7, v5", "v_cvt_f32_u32 v8, v6", "v_cvt_pk_bf16_f32 v7, v7, v8")
        a("v_and_b32 v8, 0xffff, v7", "v_lshrrev_b32 v7, 16, v7")
        a("v_subrev_u32 v8, 0x4280, v8", "v_subrev_u32 v7, 0x4280, v7")
        a("v_cmp_gt_u32 vcc, 128, v5", "v_cndmask_b32 v8, v8, v5, vcc")
        a("v_cmp_gt_u32 vcc, 128, v6", "v_cndmask_b32 v7, v7, v6, vcc")
        a(f"v_lshlrev_b32 v{100+jj}, 1, v8", f"v_lshlrev_b32 v{101+jj}, 1, v7")
    a("s_waitcnt vmcnt(6)")
    a("v_lshlrev_b32 v16, 16, v16")
    a(f"v_mul_f32 v17, {f32(LOG2E_HI)}, v16")
    a(f"s_mov_b32 s32, {f32(LOG2E_HI)}", f"s_mov_b32 s33, {f32(LOG2E_LO)}")
    a("v_fma_f32 v18, v16, s32, -v17", "v_fma_f32 v18, v16, s33, v18")
    a("v_exp_f32 v17, v17")
    a(f"v_mul_f32 v18, {f32(math.log(2.0))}, v18")
    a("v_fma_f32 v17, v17, v18, v17")
    a("v_cvt_pk_bf16_f32 v17, v17, v17", "v_and_b32 v16, 0xffff0000, v17", "v_mov_b32 v17, v16")
    a("s_waitcnt vmcnt(0)")
    for k in range(6): unpack(a, 20 + 2 * k, 10 + k)
    for k in range(4):
        a(f"v_pk_mul_f32 v[{20+2*k}:{21+2*k}], v[{20+2*k}:{21+2*k}], v[16:17]")
    def cmul(dr, di, ar, ai, br, bi, t):
        a(f"v_pk_mul_f32 v[{t}:{t+1}], v[{ai}:{ai+1}], v[{bi}:{bi+1}]")
        a(f"v_pk_mul_f32 v[{t+2}:{t+3}], v[{ai}:{ai+1}], v[{br}:{br+1}]")
        a(f"v_pk_fma_f32 v[{di}:{di+1}], v[{ar}:{ar+1}], v[{bi}:{bi+1}], v[{t+2}:{t+3}]") if di not in (ar, br, bi) else None
        assert di not in (ar, br, bi)
        a(f"v_pk_fma_f32 v[{dr}:{dr+1}], v[{ar}:{ar+1}], v[{br}:{br+1}], v[{t}:{t+1}] neg_lo:[0,0,1] neg_hi:[0,0,1]")
    T = 90
    CBR, CBI = 32, 34
    cmul(CBR, CBI, 28, 30, 24, 26, T)
    a("v_max_f32 v36, v20, v21")
    red64(a, "v_max_f32", 36, 38)
    a(f"v_add_f32 v37, abs(v{CBR}), abs(v{CBR+1})", f"v_add_f32 v38, abs(v{CBI}), abs(v{CBI+1})", "v_add_f32 v37, v37, v38")
    red64(a, "v_add_f32", 37, 38)
    a(f"v_max_f32 v37, {f32(1e-36)}, v37")
    a("v_rcp_f32 v38, v37")
    a(f"v_mul_f32 v38, {f32(32768.0)}, v38", "v_mov_b32 v39, v38")
    a(f"v_pk_mul_f32 v[{CBR}:{CBR+1}], v[{CBR}:{CBR+1}], v[38:39]", f"v_pk_mul_f32 v[{CBI}:{CBI+1}], v[{CBI}:{CBI+1}], v[38:39]")
    a("v_sub_f32 v20, v20, v36", "v_sub_f32 v21, v21, v36")
    a(f"v_mul_f32 v20, {f32(LOG2E)}, v20", f"v_mul_f32 v21, {f32(LOG2E)}, v21", f"v_mul_f32 v36, {f32(LOG2E)}, v36")
    a(f"s_mov_b32 s32, {f32(INV2PI_HI)}", f"s_mov_b32 s33, {f32(INV2PI_LO)}")
    def anchor(dr, di, l, conj=False):
        for e in range(2):
            a(f"v_mul_f32 v{T}, {f32(float(l))}, v{20+e}")
            a(f"v_mul_f32 v{T+1}, {f32(float(l))}, v{22+e}")
            a(f"v_exp_f32 v{T}, v{T}")
            a(f"v_mul_f32 v{T+2}, s32, v{T+1}", f"v_rndne_f32 v{T+2}, v{T+2}")
            a(f"v_fma_f32 v{T+2}, v{T+1}, s32, -v{T+2}", f"v_fma_f32 v{T+2}, v{T+1}, s33, v{T+2}")
            a(f"v_cos_f32 v{T+1}, v{T+2}", f"v_sin_f32 v{T+2}, v{T+2}")
            a(f"v_mul_f32 v{dr+e}, v{T}, v{T+1}")
            a(f"v_mul_f32 v{di+e}, v{T}, {'-' if conj else ''}v{T+2}")
    a(f"s_mul_i32 s4, s5, {KG_TILE}", "v_lshl_add_u32 v4, v1, 3, s4")
    def emit(row, vr, vi):
        a(f"v_cvt_pk_f16_f32 v{T+4}, v{vr}, v{vi}", f"v_cvt_pk_f16_f32 v{T+5}, v{vr+1}, v{vi+1}")
        a(f"ds_write_b64 v4, v[{T+4}:{T+5}] offset:{row*KG_ROW}")
    a("v_and_b32 v5, 15, v1", "v_lshrrev_b32 v6, 4, v1", "v_lshlrev_b32 v7, 3, v5")
    G1, G2, G3 = 40, 44, 48
    VA, VB, VC = 52, 56, 60
    a("s_cmp_eq_u32 s5, 1", "s_cbranch_scc1 K1_J1")
    a("s_cmp_eq_u32 s5, 2", "s_cbranch_scc1 K1_J2")
    a("s_cmp_eq_u32 s5, 3", "s_cbranch_scc1 K1_J3")
    anchor(G1, G1 + 2, 1); anchor(G2, G2 + 2, 128)
    cur = (CBR, CBI)
    for c in range(8):
        emit(c, cur[0], cur[1])
        cmul(VC, VC + 2, cur[0], cur[1], G2, G2 + 2, T); emit(8 + c, VC, VC + 2)
        if c < 7:
            nx = VA if cur[0] != VA else VB
            cmul(nx, nx + 2, cur[0], cur[1], G1, G1 + 2, T); cur = (nx, nx + 2)
    a("v_lshrrev_b32 v8, 1, v6", "v_lshl_add_u32 v7, v8, 7, v7", "v_and_b32 v8, 1, v6", "v_lshl_add_u32 v7, v8, 2, v7")
    a("v_mov_b32 v8, 1", "v_mov_b32 v9, 2")
    a("s_branch K1_JOIN")
    a("K1_J1:")
    anchor(G1, G1 + 2, 2); anchor(G2, G2 + 2, 128); anchor(G3, G3 + 2, 256)
    cmul(VA, VA + 2, CBR, CBI, G3, G3 + 2, T); cur = (VA, VA + 2)
    cmul(64, 66, VA, VA + 2, G3, G3 + 2, T)
    for c in range(4):
        emit(c, cur[0], cur[1])
        cmul(VC, VC + 2, cur[0], cur[1], G2, G2 + 2, T); emit(4 + c, VC, VC + 2)
        if c < 3:
            nx = VA if cur[0] != VA else VB
            cmul(nx, nx + 2, cur[0], cur[1], G1, G1 + 2, T); cur = (nx, nx + 2)
    cmul(G3, G3 + 2, G1, G1 + 2, G1, G1 + 2, T)
    cur = (64, 66)
    for aa in range(4):
        emit(8 + 2 * aa, cur[0], cur[1])
        cmul(VC, VC + 2, cur[0], cur[1], G3, G3 + 2, T); emit(9 + 2 * aa, VC, VC + 2)
        if aa < 3:
            nx = VA if cur[0] != VA else VB
            cmul(nx, nx + 2, cur[0], cur[1], G2, G2 + 2, T); cur = (nx, nx + 2)
    a("v_lshl_add_u32 v8, v6, 7, v7", "v_add_u32 v8, 256, v8", "v_lshl_add_u32 v7, v6, 8, v7")
    a("v_cmp_gt_u32 vcc, 2, v6", "v_cndmask_b32 v7, v7, v8, vcc")
    a("v_mov_b32 v8, 4", "v_mov_b32 v9, 0x80", "v_cndmask_b32 v8, v8, 2, vcc", "v_cndmask_b32 v9, v9, 4, vcc")
    a("s_branch K1_JOIN")
    a("K1_J2:")
    anchor(G2, G2 + 2, 128); anchor(G3, G3 + 2, 1024)
    cmul(VA, VA + 2, CBR, CBI, G3, G3 + 2, T); cur = (VA, VA + 2)
    for r in range(9):
        emit(r, cur[0], cur[1])
        if r < 8:
            nx = VA if cur[0] != VA else VB
            cmul(nx, nx + 2, cur[0], cur[1], G2, G2 + 2, T); cur = (nx, nx + 2)
    a("v_lshl_add_u32 v7, v6, 9, v7", "v_add_u32 v7, 0x400, v7", "v_mov_b32 v8, 0x80", "v_mov_b32 v9, 0x100")
    a("s_branch K1_JOIN")
    a("K1_J3:")
    anchor(G1, G1 + 2, 8, conj=True)
    a(f"v_mov_b32 v{VA}, {f32(32768.0)}", f"v_mov_b32 v{VA+1}, {f32(32768.0)}", f"v_mov_b32 v{VA+2}, 0", f"v_mov_b32 v{VA+3}, 0")
    cur = (VA, VA + 2)
    for b in range(16):
        emit(b, cur[0], cur[1])
        if b < 15:
            nx = VA if cur[0] != VA else VB
            cmul(nx, nx + 2, cur[0], cur[1], G1, G1 + 2, T); cur = (nx, nx + 2)
    a(f"v_mul_f32 v40, {f32(2048.0)}, v36", "v_max_f32 v40, 0, v40", "v_exp_f32 v40, v40")
    a(f"v_mul_f32 v41, {f32(1.0/32768.0)}, v37", "v_mul_f32 v40, v40, v41")
    a("s_lshl_b32 s4, s3, 2", "v_mov_b32 v41, s4")
    a(f"s_mul_i32 s4, s3, {KR_STRIDE}", "s_add_u32 s4, s4, 4096", "v_mov_b32 v42, s4")
    a("v_mov_b32 v44, 0", "v_mov_b32 v45, 0", "v_mov_b32 v46, 0", "v_mov_b32 v47, 0")
    a("s_mov_b64 s[34:35], exec", "s_mov_b64 exec, 1")
    a("buffer_store_dword v40, v41, s[12:15], 0 offen")
    a("buffer_store_dwordx4 v[44:47], v42, s[8:11], 0 offen")
    a("s_mov_b64 exec, s[34:35]")
    a("K1_JOIN:")
    a.flush(4)
    a("s_waitcnt lgkmcnt(0)", "s_barrier")
    a("s_cmp_eq_u32 s5, 3", "s_cbranch_scc1 K1_EXPAND")
    a(f"v_mul_u32_u24 v10, {KG_ROW}, v5", "v_lshl_add_u32 v10, v6, 4, v10")
    a(f"s_mul_i32 s4, s5, {KG_TILE}", "v_add_u32 v11, s4, v10")
    for s in range(8):
        a(f"ds_read_b128 v[{40+4*s}:{43+4*s}], v11 offset:{64*s}")
        a(f"ds_read_b128 v[{72+4*(s%4)}:{75+4*(s%4)}], v10 offset:{3*KG_TILE+64*s}") if s < 4 else None
    a("v_mov_b32 v12, 0", "v_mov_b32 v13, 0", "v_mov_b32 v14, 0", "v_mov_b32 v15, 0")
    for s in range(4, 8):
        a(f"ds_read_b128 v[{20+4*(s-4)}:{23+4*(s-4)}], v10 offset:{3*KG_TILE+64*s}")
    a("s_waitcnt lgkmcnt(0)")
    for s in range(8):
        B = 72 + 4 * s if s < 4 else 20 + 4 * (s - 4)
        a(f"v_mfma_f32_16x16x32_f16 v[12:15], v[{40+4*s}:{43+4*s}], v[{B}:{B+3}], v[12:15]")
    a(f"v_mul_f32 v40, {f32(2048.0)}, v36", "v_max_f32 v40, 0, v40", f"v_add_f32 v40, {f32(15.0)}, v40")
    a("v_mov_b32 v41, v7", "v_add_u32 v42, v7, v8", "v_add_u32 v43, v7, v9", "v_add_u32 v44, v42, v9")
    for r in range(4):
        a(f"v_cvt_f32_u32 v45, v{41+r}")
        a("v_fma_f32 v46, v45, v36, -v40", "v_exp_f32 v46, v46")
        a("v_lshrrev_b32 v45, 16, v45", "v_subrev_u32 v45, 0x4280, v45")
        a(f"v_cmp_gt_u32 vcc, 128, v{41+r}", f"v_cndmask_b32 v45, v45, v{41+r}, vcc")
        a(f"v_cmp_lt_u32 vcc, 0x800, v{41+r}", "v_mov_b32 v47, 0x2f0", "v_cndmask_b32 v45, v45, v47, vcc")
        a(f"v_mul_f32 v46, v46, v{12+r}", "v_cvt_f16_f32 v46, v46")
        a("v_lshlrev_b32 v45, 1, v45")
        a(f"ds_write_b16 v45, v46 offset:{KG_TAB}")
    a("K1_EXPAND:")
    a.flush(4)
    a("s_waitcnt lgkmcnt(0)", "s_barrier")
    for jj in range(8):
        a(f"ds_read_u16 v{48+jj}, v{100+jj} offset:{KG_TAB}")
    a(f"s_mul_i32 s4, s3, {KR_STRIDE}", "v_lshlrev_b32 v44, 4, v0")
    a("s_waitcnt lgkmcnt(0)")
    for k in range(4):
        a(f"v_lshl_or_b32 v{40+k}, v{49+2*k}, 16, v{48+2*k}")
    a("buffer_store_dwordx4 v[40:43], v44, s[8:11], s4 offen")
    a("K1_END:")
    a("s_endpgm")
    return kdesc("k1_kernel", 108, 40)

KC_STRIDE = 4640
K2_U = 4 * KC_STRIDE
K2_RED = K2_U + 4224
K2_LDS = K2_RED + 24576

def gen_k2(a):
    header(a, "k2_kernel")
    a("s_cmp_ge_u32 s2, 576", "s_cbranch_scc1 K2_END")
    a("s_load_dwordx2 s[6:7], s[0:1], 128", "s_load_dwordx2 s[4:5], s[0:1], 64")
    a("s_and_b32 s16, s2, 7", "s_mul_i32 s16, s16, 72", "s_lshr_b32 s3, s2, 3", "s_add_u32 s3, s3, s16")
    a("v_readfirstlane_b32 s17, v0", "s_lshr_b32 s17, s17, 6")
    a("v_mul_u32_u24 v1, 9216, v0")
    a("v_lshlrev_b32 v2, 4, v0")
    a("s_lshl_b32 s18, s3, 4", f"s_mul_i32 s19, s3, {KR_STRIDE}")
    a("s_waitcnt lgkmcnt(0)")
    srd(a, 8, 6, XBYTES, WS_UT)
    srd(a, 12, 6, 576 * KR_STRIDE, WS_KR)
    a("buffer_load_dwordx4 v[4:7], v2, s[12:15], s19 offen")
    a("buffer_load_dwordx2 v[8:9], v2, s[12:15], s19 offen offset:16")
    a("buffer_load_dwordx4 v[12:15], v1, s[8:11], s18 offen")
    a("s_lshl_b32 s20, s3, 2", f"s_add_u32 s20, s20, {hex(WS_KSC)}", "s_add_u32 s20, s6, s20", "s_addc_u32 s21, s7, 0")
    a("s_load_dword s24, s[20:21], 0")
    a("s_lshr_b32 s20, s3, 1", "s_lshl_b32 s20, s20, 2", "s_add_u32 s20, s4, s20", "s_addc_u32 s21, s5, 0")
    a("s_load_dword s25, s[20:21], 0")
    srd(a, 28, 6, XBYTES, WS_ZT)
    a("v_mov_b32 v16, 0", "v_mov_b32 v17, 0", "v_mov_b32 v18, 0", "v_mov_b32 v19, 0")
    a("v_lshrrev_b32 v3, 5, v0", "v_and_b32 v10, 31, v0")
    a(f"v_mul_u32_u24 v11, {KC_STRIDE}, v3", "v_lshl_add_u32 v11, v10, 4, v11", "v_add_u32 v11, 4096, v11")
    a("v_cmp_gt_u32 vcc, 4, v3", "v_cmp_gt_u32 s[22:23], 24, v10", "s_and_b64 vcc, vcc, s[22:23]")
    a("s_and_saveexec_b64 s[22:23], vcc")
    a("ds_write_b128 v11, v[16:19]")
    a("s_mov_b64 exec, s[22:23]")
    a("v_cmp_gt_u32 vcc, 8, v0", "s_and_saveexec_b64 s[22:23], vcc")
    a(f"ds_write_b128 v2, v[16:19] offset:{K2_U}")
    a("s_mov_b64 exec, s[22:23]")
    a("v_and_b32 v3, 63, v0", "v_and_b32 v10, 15, v3", "v_lshrrev_b32 v11, 4, v3")
    a("v_and_b32 v16, 3, v10", f"v_mul_u32_u24 v16, {KC_STRIDE}, v16", "v_lshrrev_b32 v17, 2, v10", "v_lshlrev_b32 v17, 7, v17")
    a("v_sub_u32 v16, v16, v17", "v_lshl_add_u32 v16, v11, 4, v16")
    a("s_lshl_b32 s20, s17, 7", "s_sub_u32 s20, 384, s20")
    a("s_add_u32 s21, s20, 384", "v_add_u32 v16, s21, v16")
    a("v_lshlrev_b32 v17, 3, v10", "v_lshl_add_u32 v17, v11, 4, v17")
    a(f"s_add_u32 s21, s20, {K2_U + 8}", "v_add_u32 v17, s21, v17")
    a("s_waitcnt vmcnt(1)")
    for k in range(5):
        a(f"v_alignbit_b32 v{20+k}, v{5+k}, v{4+k}, 16")
    a(f"ds_write_b128 v2, v[4:7] offset:{3*KC_STRIDE}")
    a(f"ds_write_b128 v2, v[20:23] offset:{2*KC_STRIDE}")
    a("v_mov_b32 v26, v5", "v_mov_b32 v27, v6", "v_mov_b32 v28, v7", "v_mov_b32 v29, v8")
    a("v_mov_b32 v30, v21", "v_mov_b32 v31, v22", "v_mov_b32 v32, v23", "v_mov_b32 v33, v24")
    a(f"ds_write_b128 v2, v[26:29] offset:{1*KC_STRIDE}")
    a(f"ds_write_b128 v2, v[30:33] offset:0")
    a("s_waitcnt vmcnt(0)")
    a(f"ds_write_b128 v2, v[12:15] offset:{K2_U + 128}")
    ACC = 20
    AF = 52
    BF = 84
    a("s_waitcnt lgkmcnt(0)", "s_barrier")
    for i in range(32): a(f"v_mov_b32 v{ACC+i}, 0")
    DEPTH = 4
    def load(g):
        res, k = divmod(g, 8)
        i = 7 - k
        roff = 64 if res == 0 else 0
        a(f"ds_read_b128 v[{AF+4*i}:{AF+4*i+3}], v16 offset:{512*(7-i) + roff}")
        b = BF + 32 * res + 4 * k
        a(f"ds_read_b64 v[{b}:{b+1}], v17 offset:{512*k + roff}")
        a(f"ds_read_b64 v[{b+2}:{b+3}], v17 offset:{512*k + roff + 8}")
    for g in range(DEPTH): load(g)
    for g in range(16):
        res, k = divmod(g, 8)
        i = 7 - k
        issued = min(16, g + DEPTH)
        a(f"s_waitcnt lgkmcnt({3*(issued - g - 1)})")
        for ip in range(0, 8 - i):
            j = i + ip
            b = BF + 32 * res + 4 * ip
            a(f"v_mfma_f32_16x16x32_f16 v[{ACC+4*j}:{ACC+4*j+3}], v[{AF+4*i}:{AF+4*i+3}], v[{b}:{b+3}], v[{ACC+4*j}:{ACC+4*j+3}]")
            if ip == 0 and g + DEPTH < 16: load(g + DEPTH)
    a("v_lshlrev_b32 v4, 4, v3")
    a.flush(10)
    for w in range(4):
        a(f"s_cmp_eq_u32 s17, {w}", f"s_cbranch_scc0 K2_R{w}")
        for o in range(4):
            if o == w: continue
            rank = (w - o - 1) & 3
            for t in range(2):
                j = 2 * o + t
                a(f"ds_write_b128 v4, v[{ACC+4*j}:{ACC+4*j+3}] offset:{K2_RED + ((o*3 + rank)*2 + t)*1024}")
        for t in range(2):
            for r in range(4): a(f"v_mov_b32 v{52+4*t+r}, v{ACC+4*(2*w+t)+r}")
        a(f"K2_R{w}:")
    a.flush(8)
    a("s_waitcnt lgkmcnt(0)", "s_barrier")
    a("s_mul_i32 s20, s17, 6144", "v_add_u32 v4, s20, v4")
    for rank in range(3):
        for t in range(2):
            a(f"ds_read_b128 v[{60+8*rank+4*t}:{63+8*rank+4*t}], v4 offset:{K2_RED + (rank*2+t)*1024}")
    a("s_lshl_b32 s20, s17, 10", "v_lshl_add_u32 v5, v3, 3, s20")
    for t in range(2):
        a(f"ds_read_b64 v[{84+2*t}:{85+2*t}], v5 offset:{K2_U + 128 + 512*t}")
    a("s_waitcnt lgkmcnt(0)")
    a("s_lshl_b32 s26, s25, 16", "s_and_b32 s27, s25, 0xffff0000", "s_bitcmp1_b32 s3, 0", "s_cselect_b32 s25, s27, s26")
    for rank in range(3):
        for p in range(4):
            a(f"v_pk_add_f32 v[{52+2*p}:{53+2*p}], v[{52+2*p}:{53+2*p}], v[{60+8*rank+2*p}:{61+8*rank+2*p}]")
    for t in range(2):
        for p in range(2):
            y = 52 + 4 * t + 2 * p
            u = 84 + 2 * t + p
            a(f"v_mul_f32 v{y}, s24, v{y}", f"v_mul_f32 v{y+1}, s24, v{y+1}")
            a(f"v_cvt_pk_bf16_f32 v6, v{y}, v{y+1}")
            unpack(a, y, 6)
            a(f"v_cvt_f32_f16 v8, v{u}", f"v_cvt_f32_f16_sdwa v9, v{u} dst_sel:DWORD dst_unused:UNUSED_PAD src0_sel:WORD_1")
            a("v_mul_f32 v8, s25, v8", "v_mul_f32 v9, s25, v9")
            a("v_cvt_pk_bf16_f32 v6, v8, v9")
            unpack(a, 8, 6)
            a(f"v_pk_add_f32 v[8:9], v[8:9], v[{y}:{y+1}]")
            a(f"v_cvt_pk_bf16_f32 v{88+2*t+p}, v8, v9")
    a("s_lshl_b32 s20, s3, 12")
    a("buffer_store_dwordx2 v[88:89], v5, s[28:31], s20 offen")
    a("buffer_store_dwordx2 v[90:91], v5, s[28:31], s20 offen offset:512")
    a("K2_END:")
    a("s_endpgm")
    return kdesc("k2_kernel", 148, 40)

K3_LDS = 9216
def gen_k3(a):
    header(a, "k3_kernel")
    a("s_cmp_ge_u32 s2, 256", "s_cbranch_scc1 K3_END")
    a("s_load_dwordx2 s[4:5], s[0:1], 0", "s_load_dwordx2 s[6:7], s[0:1], 128")
    a("s_load_dwordx2 s[32:33], s[0:1], 80", "s_load_dwordx2 s[34:35], s[0:1], 112")
    a("s_and_b32 s16, s2, 7", "s_lshl_b32 s16, s16, 5", "s_lshr_b32 s3, s2, 3", "s_add_u32 s16, s3, s16")
    a("s_mul_i32 s3, s16, 9216", "s_lshl_b32 s17, s16, 4")
    a("v_lshrrev_b32 v1, 5, v0", "v_and_b32 v2, 31, v0")
    a("v_mul_u32_u24 v3, 1152, v1", "v_lshl_add_u32 v3, v2, 2, v3")
    a("v_lshlrev_b32 v6, 12, v0", "v_lshlrev_b32 v7, 2, v2")
    a("v_readfirstlane_b32 s18, v0")
    a("s_waitcnt lgkmcnt(0)")
    srd(a, 8, 4, XBYTES)
    srd(a, 12, 6, XBYTES, WS_ZT)
    srd(a, 20, 32, 1152)
    a("s_add_u32 s19, s17, 0x100000")
    a("buffer_load_dwordx4 v[60:63], v6, s[12:15], s17 offen")
    a("buffer_load_dwordx4 v[64:67], v6, s[12:15], s19 offen")
    a("s_add_u32 s19, s17, 0x200000")
    a("buffer_load_dwordx4 v[68:71], v6, s[12:15], s19 offen")
    for j in range(9):
        a(f"buffer_load_dword v{10+j}, v3, s[8:11], s3 offen offset:{128*j}")
    for j in range(9):
        a(f"buffer_load_dword v{50+j}, v7, s[20:23], 0 offen offset:{128*j}")
    srd(a, 24, 34, XBYTES)
    srd(a, 28, 6, XBYTES, WS_X2)
    srd(a, 36, 6, 8192, WS_KEYS)
    a("v_lshrrev_b32 v4, 6, v0", "v_mul_u32_u24 v4, 2304, v4", "v_lshl_add_u32 v4, v2, 3, v4")
    a("v_and_b32 v5, 1, v1")
    a("v_mul_u32_u24 v5, 0x020202, v5", f"v_lshlrev_b32 v8, 25, v1", "v_and_b32 v8, 0x02000000, v8")
    a("v_or_b32 v5, v5, v8", "v_add_u32 v5, 0x05040100, v5")
    a("v_lshlrev_b32 v8, 2, v0")
    a("s_waitcnt vmcnt(19)")
    for k in range(2):
        a(f"ds_write2st64_b32 v8, v{60+4*k}, v{61+4*k} offset0:{4*k} offset1:{9+4*k}")
        a(f"ds_write2st64_b32 v8, v{62+4*k}, v{63+4*k} offset0:{18+4*k} offset1:{27+4*k}")
    a("s_waitcnt vmcnt(18)")
    a("s_cmp_ge_u32 s18, 64", "s_cbranch_scc1 K3_SKIP")
    a("ds_write2st64_b32 v8, v68, v69 offset0:8 offset1:17")
    a("ds_write2st64_b32 v8, v70, v71 offset0:26 offset1:35")
    a("K3_SKIP:")
    a("s_waitcnt lgkmcnt(0)", "s_barrier")
    for j in range(9):
        a(f"ds_read_b64 v[{60+2*j}:{61+2*j}], v4 offset:{256*j}")
    X = 20
    a("s_waitcnt vmcnt(9)")
    for j in range(9):
        a(f"s_waitcnt lgkmcnt({8-j})")
        a(f"v_perm_b32 v44, v{61+2*j}, v{60+2*j}, v5")
        unpack(a, 46, 44)
        unpack(a, X + 2 * j, 10 + j)
        a(f"v_pk_add_f32 v[46:47], v[46:47], v[{X+2*j}:{X+2*j+1}]")
        a(f"v_cvt_pk_bf16_f32 v44, v46, v47")
        unpack(a, X + 2 * j, 44)
    ln_stats(a, X, 40, 42, 44, 46, 48)
    a("s_waitcnt vmcnt(0)")
    a("v_mov_b32 v60, 0", "v_mov_b32 v61, 0")
    for j in range(9):
        ln_apply_pair(a, X + 2 * j, 40, 42, 44, 10 + j)
        a(f"buffer_store_dword v{10+j}, v3, s[28:31], s3 offen offset:{128*j}")
        unpack(a, 46, 50 + j)
        a("v_pk_fma_f32 v[60:61], v[44:45], v[46:47], v[60:61]")
        a(f"v_pk_add_f32 v[44:45], v[44:45], v[{X+2*j}:{X+2*j+1}]")
        a(f"v_cvt_pk_bf16_f32 v{50+j}, v44, v45")
        a(f"buffer_store_dword v{50+j}, v3, s[24:27], s3 offen offset:{128*j}")
    a("v_add_f32 v60, v60, v61")
    red32(a, "v_add_f32", 60, 61)
    a("v_cvt_pk_bf16_f32 v60, v60, v60")
    a("v_ashrrev_i32 v61, 31, v60", "v_or_b32 v61, 0x80000000, v61", "v_xor_b32 v60, v60, v61", "v_and_b32 v60, 0xffff0000, v60")
    a("s_lshl_b32 s19, s16, 3", "v_add_u32 v61, s19, v1", "v_sub_u32 v62, 2047, v61", "v_or_b32 v60, v60, v62", "v_lshlrev_b32 v61, 2, v61")
    a("v_cmp_eq_u32 vcc, 0, v2", "s_and_saveexec_b64 s[40:41], vcc")
    a("buffer_store_dword v60, v61, s[36:39], 0 offen")
    a("K3_END:")
    a("s_endpgm")
    return kdesc("k3_kernel", 80, 48)

K4_CAND = 0
K4_SEL = 256
K4_RED = 512
K4_ACT = K4_RED + 18432
K4_LDS = K4_ACT + 1024

def wave_max_to_s(a, v, t, s):
    a(f"v_mov_b32 v{t}, v{v}")
    for sh in (1, 2, 4, 8):
        a(f"v_max_u32_dpp v{t}, v{t}, v{t} row_shr:{sh} {DPPM}")
    a(f"v_max_u32_dpp v{t}, v{t}, v{t} row_bcast:15 row_mask:0xa bank_mask:0xf")
    a(f"v_max_u32_dpp v{t}, v{t}, v{t} row_bcast:31 row_mask:0xc bank_mask:0xf")
    a(f"v_readlane_b32 s{s}, v{t}, 63")

def gen_k4(a):
    header(a, "k4_kernel")
    a("s_cmp_ge_u32 s2, 144", "s_cbranch_scc1 K4_END")
    a("s_load_dwordx4 s[4:7], s[0:1], 88", "s_load_dwordx2 s[32:33], s[0:1], 104", "s_load_dwordx2 s[34:35], s[0:1], 128")
    a("v_readfirstlane_b32 s17, v0", "s_lshr_b32 s17, s17, 6")
    a("v_and_b32 v1, 63, v0", "v_and_b32 v2, 15, v1", "v_lshrrev_b32 v3, 4, v1")
    a("s_waitcnt lgkmcnt(0)")
    srd(a, 36, 34, 8192, WS_KEYS)
    a("v_lshlrev_b32 v4, 4, v0")
    a("buffer_load_dwordx4 v[8:11], v4, s[36:39], 0 offen")
    a("v_mov_b32 v12, s4", "v_mov_b32 v13, s5", "v_mov_b32 v14, s6", "v_mov_b32 v15, s7")
    a("v_cmp_gt_u32 vcc, 8, v2", "v_cndmask_b32 v12, v14, v12, vcc", "v_cndmask_b32 v13, v15, v13, vcc")
    a("s_lshl_b32 s18, s17, 6", "v_lshl_add_u32 v5, v3, 3, s18")
    a("v_mul_u32_u24 v5, 9216, v5")
    a("v_and_b32 v6, 7, v2", "v_lshl_add_u32 v5, v6, 3, v5")
    a("s_lshl_b32 s18, s2, 6", "v_add_u32 v5, s18, v5")
    a("v_add_co_u32 v12, vcc, v12, v5", "v_addc_co_u32 v13, vcc, 0, v13, vcc")
    W = 32
    for ks in range(2):
        for r in range(8):
            d = W + 16 * ks + 2 * r
            a(f"global_load_dwordx2 v[{d}:{d+1}], v[12:13], off")
            if not (ks == 1 and r == 7):
                inc = 9216 if r < 7 else 9216 * 25
                a(f"v_add_co_u32 v12, vcc, {inc}, v12", "v_addc_co_u32 v13, vcc, 0, v13, vcc")
    srd(a, 8, 32, F * D * 2)
    a("v_mul_u32_u24 v5, 9216, v3", "v_lshl_add_u32 v5, v2, 3, v5")
    a("s_mul_i32 s18, s2, 36864", "s_lshl_b32 s19, s17, 7", "s_add_u32 s18, s18, s19")
    WD = 64
    for r in range(8):
        if r < 4: a(f"buffer_load_dwordx2 v[{WD+2*r}:{WD+2*r+1}], v5, s[8:11], s18 offen offset:{1152*r}")
        else:
            if r == 4: a("s_add_u32 s18, s18, 4608")
            a(f"buffer_load_dwordx2 v[{WD+2*r}:{WD+2*r+1}], v5, s[8:11], s18 offen offset:{1152*(r-4)}")
    srd(a, 12, 34, XBYTES, WS_X2)
    srd(a, 20, 34, 144 * 4608 * 4, WS_PART)
    srd(a, 24, 34, 32, WS_IDX)
    a("s_waitcnt vmcnt(24)")
    def ce(x, y):
        a(f"v_max_u32 v16, v{x}, v{y}", f"v_min_u32 v{y}, v{x}, v{y}", f"v_mov_b32 v{x}, v16")
    ce(8, 9); ce(10, 11); ce(8, 10); ce(9, 11); ce(9, 10)
    a("v_mov_b32 v17, 0")
    for r in range(8):
        wave_max_to_s(a, 8, 16, 28)
        a(f"v_writelane_b32 v17, s28, {r}")
        a("v_cmp_eq_u32 vcc, s28, v8")
        a("v_cndmask_b32 v8, v8, v9, vcc", "v_cndmask_b32 v9, v9, v10, vcc", "v_cndmask_b32 v10, v10, v11, vcc", "v_cndmask_b32 v11, v11, 0, vcc")
    a("s_lshl_b32 s18, s17, 5", "v_lshl_add_u32 v16, v1, 2, s18")
    a("s_cmp_lt_u32 s17, 8", "s_cselect_b64 s[28:29], 0xff, 0", "s_mov_b64 exec, s[28:29]")
    a(f"ds_write_b32 v16, v17 offset:{K4_CAND}")
    a("s_mov_b64 exec, -1")
    a("s_waitcnt lgkmcnt(0)", "s_barrier")
    a("v_lshlrev_b32 v16, 2, v1")
    a(f"ds_read_b32 v8, v16 offset:{K4_CAND}")
    a("s_waitcnt lgkmcnt(0)")
    a("v_mov_b32 v17, 0")
    for r in range(8):
        wave_max_to_s(a, 8, 16, 28)
        a(f"v_writelane_b32 v17, s28, {r}", f"v_writelane_b32 v17, s28, {r+8}")
        a("v_cmp_eq_u32 vcc, s28, v8", "v_cndmask_b32 v8, v8, 0, vcc")
    a("v_lshlrev_b32 v16, 2, v2", "ds_bpermute_b32 v18, v16, v17")
    a("s_or_b32 s18, s2, s17", "s_cmp_eq_u32 s18, 0", "s_cbranch_scc0 K4_NOIDX")
    a("v_lshlrev_b32 v16, 2, v1")
    a("buffer_store_dword v17, v16, s[24:27], 0 offen")
    a("K4_NOIDX:")
    a("s_waitcnt lgkmcnt(0)")
    a("v_and_b32 v18, 0x7ff, v18", "v_sub_u32 v18, 2047, v18", "v_mul_u32_u24 v18, 1152, v18")
    a("v_lshl_add_u32 v18, v3, 4, v18", "s_lshl_b32 s18, s17, 7")
    a("buffer_load_dwordx4 v[20:23], v18, s[12:15], s18 offen")
    a("buffer_load_dwordx4 v[24:27], v18, s[12:15], s18 offen offset:64")
    a("s_mov_b32 s28, 0x05040100", "s_mov_b32 s29, 0x07060302")
    def transpose(src, dst):
        for j in range(4):
            for p in range(4):
                lo = src + 2 * (2 * p) + (j >> 1); hi = src + 2 * (2 * p + 1) + (j >> 1)
                a(f"v_perm_b32 v{dst+4*j+p}, v{hi}, v{lo}, s{28 + (j & 1)}")
    TW = 80
    a("s_waitcnt vmcnt(18)"); transpose(W, TW)
    a("s_waitcnt vmcnt(10)"); transpose(W + 16, TW + 16)
    a("s_waitcnt vmcnt(2)"); transpose(WD, 112)
    ACC = 32
    for i in range(16): a(f"v_mov_b32 v{ACC+i}, 0")
    a("s_waitcnt vmcnt(0)")
    for ks in range(2):
        for j in range(4):
            a(f"v_mfma_f32_16x16x32_bf16 v[{ACC+4*j}:{ACC+4*j+3}], v[{20+4*ks}:{23+4*ks}], v[{TW+16*ks+4*j}:{TW+16*ks+4*j+3}], v[{ACC+4*j}:{ACC+4*j+3}]")
    a("s_lshl_b32 s18, s17, 11", "v_lshl_add_u32 v16, v1, 4, s18")
    a("s_mov_b32 exec_lo, -1", "s_mov_b32 exec_hi, 0")
    for j in range(4):
        a(f"ds_write_b128 v16, v[{ACC+4*j}:{ACC+4*j+3}] offset:{K4_RED + 512*j}")
    a("s_mov_b64 exec, -1")
    a("s_waitcnt lgkmcnt(0)", "s_barrier")
    a("s_cmp_ge_u32 s17, 4", "s_cbranch_scc1 K4_NOACT")
    a("v_lshrrev_b32 v8, 5, v0", "v_and_b32 v9, 31, v0")
    a("v_and_b32 v10, 3, v9", "v_lshlrev_b32 v10, 9, v10")
    a("v_lshrrev_b32 v11, 2, v9", "v_lshl_add_u32 v10, v11, 4, v10")
    a("v_lshrrev_b32 v11, 2, v8", "v_lshl_add_u32 v10, v11, 8, v10")
    a("v_and_b32 v11, 3, v8", "v_lshl_add_u32 v10, v11, 2, v10")
    for w in range(9):
        a(f"ds_read2_b32 v[{32+2*w}:{33+2*w}], v10 offset0:0 offset1:32") if False else None
    for w in range(9):
        a(f"ds_read_b32 v{32+2*w}, v10 offset:{K4_RED + 2048*w}")
        a(f"ds_read_b32 v{33+2*w}, v10 offset:{K4_RED + 2048*w + 128}")
        if w == 5: a("s_waitcnt lgkmcnt(4)")
    a("s_waitcnt lgkmcnt(0)")
    for w in range(1, 9):
        a(f"v_pk_add_f32 v[32:33], v[32:33], v[{32+2*w}:{33+2*w}]")
    a("v_cvt_pk_bf16_f32 v34, v32, v33")
    unpack(a, 32, 34)
    a(f"v_mul_f32 v34, {f32(-LOG2E)}, v32", "v_exp_f32 v34, v34", "v_add_f32 v34, 1.0, v34", "v_rcp_f32 v34, v34", "v_mul_f32 v34, v32, v34")
    a("v_cvt_pk_bf16_f32 v34, v34, v34", "v_lshlrev_b32 v34, 16, v34")
    a("v_mul_f32 v34, v34, v33", "v_cvt_pk_bf16_f32 v34, v34, v34")
    a("v_lshlrev_b32 v10, 1, v0")
    a(f"ds_write_b16 v10, v34 offset:{K4_ACT}")
    a("K4_NOACT:")
    a.flush(4)
    a("s_waitcnt lgkmcnt(0)", "s_barrier")
    a("v_and_b32 v16, 7, v2", "v_lshlrev_b32 v16, 6, v16", "v_lshl_add_u32 v16, v3, 4, v16")
    a(f"ds_read_b128 v[20:23], v16 offset:{K4_ACT}")
    a("s_waitcnt lgkmcnt(0)")
    for j in range(4):
        a(f"v_mfma_f32_16x16x32_bf16 v[{ACC+4*j}:{ACC+4*j+3}], v[20:23], v[{112+4*j}:{115+4*j}], 0")
    a("s_mul_i32 s18, s2, 18432", "s_lshl_b32 s19, s17, 11", "s_add_u32 s18, s18, s19")
    a("v_lshlrev_b32 v16, 4, v1")
    a("s_mov_b32 exec_lo, -1", "s_mov_b32 exec_hi, 0")
    for j in range(4):
        a(f"buffer_store_dwordx4 v[{ACC+4*j}:{ACC+4*j+3}], v16, s[20:23], s18 offen offset:{512*j}")
    a("K4_END:")
    a("s_endpgm")
    return kdesc("k4_kernel", 128, 48)

K5_LDS = 4096
def gen_k5(a):
    header(a, "k5_kernel")
    a("s_cmp_ge_u32 s2, 72", "s_cbranch_scc1 K5_END")
    a("s_load_dwordx2 s[4:5], s[0:1], 0", "s_load_dwordx2 s[6:7], s[0:1], 128", "s_load_dwordx2 s[34:35], s[0:1], 112")
    a("v_and_b32 v1, 15, v0", "v_lshrrev_b32 v2, 4, v0")
    a("v_mul_u32_u24 v3, 165888, v2", "v_lshl_add_u32 v3, v1, 4, v3")
    a("s_lshl_b32 s3, s2, 8")
    a("s_waitcnt lgkmcnt(0)")
    srd(a, 8, 6, 144 * 4608 * 4, WS_PART)
    for p in range(9):
        a(f"buffer_load_dwordx4 v[{8+4*p}:{11+4*p}], v3, s[8:11], s3 offen")
        if p < 8: a("s_add_u32 s3, s3, 18432")
    srd(a, 12, 6, 32, WS_IDX)
    srd(a, 16, 6, XBYTES, WS_X2)
    srd(a, 20, 6, XBYTES, WS_ZT)
    srd(a, 24, 4, XBYTES)
    srd(a, 28, 34, XBYTES)
    a("v_lshrrev_b32 v4, 2, v0", "s_lshl_b32 s3, s2, 4", "v_add_u32 v4, s3, v4", "v_and_b32 v5, 3, v0")
    a("v_bfe_u32 v6, v4, 4, 1", "v_lshl_add_u32 v5, v6, 2, v5")
    a("v_lshrrev_b32 v6, 7, v4", "v_lshlrev_b32 v6, 6, v6", "v_and_b32 v7, 15, v4", "v_lshl_add_u32 v6, v7, 2, v6")
    a("v_bfe_u32 v7, v4, 5, 2", "v_add_u32 v6, v6, v7")
    a("v_lshlrev_b32 v5, 2, v5")
    a("buffer_load_dword v44, v5, s[12:15], 0 offen")
    a("s_waitcnt vmcnt(0)")
    a("v_and_b32 v45, 0x7ff, v44", "v_sub_u32 v45, 2047, v45")
    a("v_mul_u32_u24 v46, 1152, v45", "v_lshl_add_u32 v46, v6, 1, v46")
    a("v_lshlrev_b32 v47, 12, v6", "v_lshl_add_u32 v47, v45, 1, v47")
    a("buffer_load_ushort v48, v46, s[16:19], 0 offen")
    a("buffer_load_ushort v49, v47, s[20:23], 0 offen")
    a("buffer_load_ushort v50, v46, s[24:27], 0 offen")
    for p in range(1, 9):
        a(f"v_pk_add_f32 v[8:9], v[8:9], v[{8+4*p}:{9+4*p}]", f"v_pk_add_f32 v[10:11], v[10:11], v[{10+4*p}:{11+4*p}]")
    a("v_lshlrev_b32 v7, 4, v0")
    a("ds_write_b128 v7, v[8:11]")
    a("s_waitcnt lgkmcnt(0)", "s_barrier")
    a("v_readfirstlane_b32 s3, v0", "s_cmp_ge_u32 s3, 64", "s_cbranch_scc1 K5_END")
    a("v_lshlrev_b32 v7, 2, v0")
    for g in range(16):
        a(f"ds_read_b32 v{8+g}, v7 offset:{256*g}")
        if g == 11: a("s_waitcnt lgkmcnt(4)")
    a("s_waitcnt lgkmcnt(0)")
    for g in range(1, 8):
        a(f"v_pk_add_f32 v[8:9], v[8:9], v[{8+2*g}:{9+2*g}]")
    a("v_add_f32 v8, v8, v9")
    a("v_cvt_pk_bf16_f32 v8, v8, v8", "v_lshlrev_b32 v8, 16, v8")
    a("v_ashrrev_i32 v9, 31, v44", "v_not_b32 v9, v9", "v_or_b32 v9, 0x80000000, v9", "v_xor_b32 v9, v44, v9", "v_and_b32 v9, 0xffff0000, v9")
    a(f"v_mul_f32 v9, {f32(-LOG2E)}, v9", "v_exp_f32 v9, v9", "v_add_f32 v9, 1.0, v9", "v_rcp_f32 v9, v9")
    a("v_cvt_pk_bf16_f32 v9, v9, v9", "v_lshlrev_b32 v9, 16, v9")
    a("v_mul_f32 v8, v8, v9", "v_cvt_pk_bf16_f32 v8, v8, v8", "v_lshlrev_b32 v8, 16, v8")
    a("s_waitcnt vmcnt(0)")
    a("v_lshlrev_b32 v48, 16, v48", "v_lshlrev_b32 v49, 16, v49", "v_lshlrev_b32 v50, 16, v50")
    a("v_add_f32 v8, v8, v48", "v_add_f32 v49, v49, v50", "v_cvt_pk_bf16_f32 v8, v8, v49")
    unpack(a, 10, 8)
    a("v_add_f32 v8, v10, v11", "v_cvt_pk_bf16_f32 v8, v8, v8")
    a("buffer_store_short v8, v46, s[28:31], 0 offen")
    a("K5_END:")
    a("s_endpgm")
    return kdesc("k5_kernel", 52, 40)

def main():
    hdr = open(f"/code/{NAME}.s.ref").read().split("; Override launch geometry")[0]
    out = hdr
    out += f"; @launch kernel=k1_kernel grid=(832,1,1) block=(256,1,1) lds={K1_LDS}\n"
    out += f"; @launch kernel=k2_kernel grid=(576,1,1) block=(256,1,1) lds={K2_LDS}\n"
    out += f"; @launch kernel=k3_kernel grid=(256,1,1) block=(256,1,1) lds={K3_LDS}\n"
    out += f"; @launch kernel=k4_kernel grid=(144,1,1) block=(576,1,1) lds={K4_LDS}\n"
    out += f"; @launch kernel=k5_kernel grid=(72,1,1) block=(256,1,1) lds={K5_LDS}\n"
    out += '.amdgcn_target "amdgcn-amd-amdhsa--gfx950"\n.text\n'
    descs = []
    for g in (gen_k1, gen_k2, gen_k3, gen_k4, gen_k5):
        a = Asm()
        descs.append(g(a))
        out += a.text()
    out += '.section .rodata,"a"\n'
    for d in descs:
        out += ".p2align 6\n" + d
    path = sys.argv[1] if len(sys.argv) > 1 else f"/code/{NAME}.s"
    open(path, "w").write(out)
    print("wrote", path, len(out))

if __name__ == "__main__":
    main()
```

```python
import sys, struct, math
sys.path.insert(0, "gen")
from asmlib import Asm

NAME = "sequential_preLN__ssm_conv_s4__moe_arch_mod__prompt"
L, D, N, F = 2048, 576, 128, 4608
XBYTES = L * D * 2
WS_UT = 0x000000
WS_KR = 0x300000
KR_STRIDE = 4112
WS_ZT = 0x600000
WS_X2 = 0x900000
WS_KEYS = 0xC00000
WS_KSC = 0xC10000
WS_IDX = 0xC20000
WS_PART = 0xD00000
WS_SIZE = 0x10000000

def f32(x): return "0x%08x" % struct.unpack("<I", struct.pack("<f", x))[0]
def f32v(x): return struct.unpack("<f", struct.pack("<f", x))[0]
LOG2E = math.log2(math.e)
LOG2E_HI = f32v(LOG2E); LOG2E_LO = LOG2E - LOG2E_HI
INV2PI = 1.0 / (2 * math.pi)
INV2PI_HI = f32v(INV2PI); INV2PI_LO = INV2PI - INV2PI_HI
DPPM = "row_mask:0xf bank_mask:0xf"

def srd(a, d, base, nbytes, off=0):
    if off:
        a(f"s_add_u32 s{d}, s{base}, {hex(off)}", f"s_addc_u32 s{d+1}, s{base+1}, 0")
    else:
        a(f"s_mov_b32 s{d}, s{base}", f"s_mov_b32 s{d+1}, s{base+1}")
    a(f"s_mov_b32 s{d+2}, {hex(nbytes)}", f"s_mov_b32 s{d+3}, 0x20000")

def red16(a, op, v):
    for r in (8, 4, 2, 1):
        a(f"{op}_dpp v{v}, v{v}, v{v} row_ror:{r} {DPPM}")
def red32(a, op, v, t):
    red16(a, op, v)
    a(f"v_mov_b32 v{t}, v{v}", f"v_permlane16_swap_b32 v{v}, v{t}", f"{op} v{v}, v{v}, v{t}")
def red64(a, op, v, t):
    red32(a, op, v, t)
    a(f"v_mov_b32 v{t}, v{v}", f"v_permlane32_swap_b32 v{v}, v{t}", f"{op} v{v}, v{v}, v{t}")

def header(a, label):
    a(f".globl {label}", ".p2align 8", f".type {label},@function", f"{label}:")

def kdesc(label, vgpr, sgpr=64):
    if STAMP: sgpr = max(sgpr, 48)
    acc = (vgpr + 3) // 4 * 4
    return f""".amdhsa_kernel {label}
  .amdhsa_next_free_vgpr {vgpr}
  .amdhsa_next_free_sgpr {sgpr}
  .amdhsa_accum_offset {acc}
  .amdhsa_group_segment_fixed_size 0
  .amdhsa_kernarg_size 136
  .amdhsa_user_sgpr_count 2
  .amdhsa_user_sgpr_kernarg_segment_ptr 1
  .amdhsa_system_sgpr_workgroup_id_x 1
  .amdhsa_float_denorm_mode_32 3
.end_amdhsa_kernel
"""

import os
STAMP = int(os.environ.get("STAMP", "0"))
WS_STAMP = 0x8000000
def stamp_begin(a, nw):
    if not STAMP: return
    a("s_memrealtime s[44:45]")
    a("v_readfirstlane_b32 s43, v0", "s_lshr_b32 s43, s43, 6", f"s_mul_i32 s42, s2, {nw}", "s_add_u32 s43, s43, s42", "s_lshl_b32 s43, s43, 3")
def stamp_end(a, ws, k):
    if not STAMP: return
    a("s_waitcnt vmcnt(0) lgkmcnt(0)")
    a("s_memrealtime s[46:47]")
    a(f"s_add_u32 s43, s43, {hex(WS_STAMP + k * 0x100000)}")
    a("s_mov_b64 exec, 1")
    a("s_waitcnt lgkmcnt(0)")
    a("v_mov_b32 v2, s44", "v_mov_b32 v3, s46", "v_mov_b32 v1, s43")
    a(f"global_store_dwordx2 v1, v[2:3], s[{ws}:{ws+1}]")

def ln_stats(a, X, m2, rinv2, t0, t1, t2):
    a(f"v_pk_add_f32 v[{t0}:{t0+1}], v[{X}:{X+1}], v[{X+2}:{X+3}]")
    a(f"v_pk_add_f32 v[{t1}:{t1+1}], v[{X+4}:{X+5}], v[{X+6}:{X+7}]")
    for j in range(4, 9):
        t = t0 if j % 2 == 0 else t1
        a(f"v_pk_add_f32 v[{t}:{t+1}], v[{t}:{t+1}], v[{X+2*j}:{X+2*j+1}]")
    a(f"v_pk_add_f32 v[{t0}:{t0+1}], v[{t0}:{t0+1}], v[{t1}:{t1+1}]")
    a(f"v_add_f32 v{t0}, v{t0}, v{t0+1}")
    red32(a, "v_add_f32", t0, t1)
    a(f"v_mul_f32 v{t2}, {f32(1.0/576)}, v{t0}")
    a(f"v_mov_b32 v{t2+1}, v{t2}")
    a(f"v_cvt_pk_bf16_f32 v{m2}, v{t2}, v{t2}")
    a(f"v_and_b32 v{m2}, 0xffff0000, v{m2}", f"v_mov_b32 v{m2+1}, v{m2}")
    first = {t0: True, t1: True}
    for j in range(9):
        t = t0 if j % 2 == 0 else t1
        a(f"v_pk_add_f32 v[{rinv2}:{rinv2+1}], v[{X+2*j}:{X+2*j+1}], v[{t2}:{t2+1}] neg_lo:[0,1] neg_hi:[0,1]")
        if first[t]:
            a(f"v_pk_mul_f32 v[{t}:{t+1}], v[{rinv2}:{rinv2+1}], v[{rinv2}:{rinv2+1}]"); first[t] = False
        else:
            a(f"v_pk_fma_f32 v[{t}:{t+1}], v[{rinv2}:{rinv2+1}], v[{rinv2}:{rinv2+1}], v[{t}:{t+1}]")
    a(f"v_pk_add_f32 v[{t0}:{t0+1}], v[{t0}:{t0+1}], v[{t1}:{t1+1}]")
    a(f"v_add_f32 v{t0}, v{t0}, v{t0+1}")
    red32(a, "v_add_f32", t0, t1)
    a(f"v_mul_f32 v{t0}, {f32(1.0/576)}, v{t0}")
    a(f"v_cvt_pk_bf16_f32 v{t0}, v{t0}, v{t0}", f"v_and_b32 v{t0}, 0xffff0000, v{t0}")
    a(f"v_add_f32 v{t0}, {f32(1e-5)}, v{t0}")
    a(f"v_cvt_pk_bf16_f32 v{t0}, v{t0}, v{t0}", f"v_and_b32 v{t0}, 0xffff0000, v{t0}")
    a(f"v_sqrt_f32 v{t0}, v{t0}")
    a(f"v_cvt_pk_bf16_f32 v{t0}, v{t0}, v{t0}", f"v_and_b32 v{t0}, 0xffff0000, v{t0}")
    a(f"v_rcp_f32 v{rinv2}, v{t0}")
    a(f"v_mov_b32 v{rinv2+1}, v{rinv2}")

def unpack(a, dst, src):
    a(f"v_lshlrev_b32 v{dst}, 16, v{src}", f"v_and_b32 v{dst+1}, 0xffff0000, v{src}")

def ln_apply_pair(a, x, m2, rinv2, t, P):
    a(f"v_pk_add_f32 v[{t}:{t+1}], v[{x}:{x+1}], v[{m2}:{m2+1}] neg_lo:[0,1] neg_hi:[0,1]")
    a(f"v_cvt_pk_bf16_f32 v{P}, v{t}, v{t+1}")
    unpack(a, t, P)
    a(f"v_pk_mul_f32 v[{t}:{t+1}], v[{t}:{t+1}], v[{rinv2}:{rinv2+1}]")
    a(f"v_cvt_pk_bf16_f32 v{P}, v{t}, v{t+1}")
    unpack(a, t, P)

KG_ROW = 544
KG_TILE = 16 * KG_ROW
KG_TAB = 4 * KG_TILE
K1_LDS = KG_TAB + 1536

def gen_k1(a):
    header(a, "k1_kernel")
    a("s_cmp_ge_u32 s2, 832", "s_cbranch_scc1 K1_END")
    stamp_begin(a, 4)
    a("s_cmp_ge_u32 s2, 256", "s_cbranch_scc1 K1_KGEN")
    a("s_load_dwordx2 s[4:5], s[0:1], 0", "s_load_dwordx2 s[6:7], s[0:1], 128")
    a("v_lshrrev_b32 v1, 5, v0", "v_and_b32 v2, 31, v0")
    a("v_mul_u32_u24 v3, 1152, v1", "v_lshl_add_u32 v3, v2, 2, v3")
    a("s_mul_i32 s3, s2, 9216")
    a("s_waitcnt lgkmcnt(0)")
    srd(a, 8, 4, XBYTES)
    srd(a, 12, 6, XBYTES, WS_UT)
    for j in range(9):
        a(f"buffer_load_dword v{10+j}, v3, s[8:11], s3 offen offset:{128*j}")
    a("v_lshrrev_b32 v4, 6, v0", "v_mul_u32_u24 v4, 2304, v4", "v_lshl_add_u32 v4, v2, 3, v4")
    a("v_and_b32 v5, 1, v1", "v_lshl_add_u32 v4, v5, 2, v4")
    a("v_mul_u32_u24 v5, 0x020202, v5", f"v_lshlrev_b32 v6, 25, v1", "v_and_b32 v6, 0x02000000, v6")
    a("v_or_b32 v5, v5, v6", "v_add_u32 v5, 0x05040100, v5")
    X = 20
    for j in range(9):
        a(f"s_waitcnt vmcnt({8-j})")
        unpack(a, X + 2 * j, 10 + j)
    ln_stats(a, X, 40, 42, 44, 46, 48)
    for j in range(9):
        ln_apply_pair(a, X + 2 * j, 40, 42, 44, 46)
        a("v_cvt_pk_f16_f32 v46, v44, v45", "v_mov_b32 v47, v46", "v_permlane32_swap_b32 v46, v47")
        a(f"v_perm_b32 v{10+j}, v47, v46, v5")
        a(f"ds_write_b32 v4, v{10+j} offset:{256*j}")
    a("s_waitcnt lgkmcnt(0)", "s_barrier")
    a("v_lshlrev_b32 v6, 2, v0", "v_lshlrev_b32 v7, 4, v0")
    a("v_readfirstlane_b32 s16, v0")
    for k in range(2):
        a(f"ds_read2st64_b32 v[{20+4*k}:{21+4*k}], v6 offset0:{4*k} offset1:{9+4*k}")
        a(f"ds_read2st64_b32 v[{22+4*k}:{23+4*k}], v6 offset0:{18+4*k} offset1:{27+4*k}")
    a("s_cmp_ge_u32 s16, 64", "s_cbranch_scc1 K1_LN_SKIP")
    a(f"ds_read2st64_b32 v[28:29], v6 offset0:8 offset1:17")
    a(f"ds_read2st64_b32 v[30:31], v6 offset0:26 offset1:35")
    a("s_add_u32 s17, s3, 8192")
    a("s_waitcnt lgkmcnt(0)")
    a("buffer_store_dwordx4 v[28:31], v7, s[12:15], s17 offen")
    a("K1_LN_SKIP:")
    a("s_add_u32 s17, s3, 4096")
    a("s_waitcnt lgkmcnt(0)")
    a("buffer_store_dwordx4 v[20:23], v7, s[12:15], s3 offen")
    a("buffer_store_dwordx4 v[24:27], v7, s[12:15], s17 offen")
    stamp_end(a, 6, 0)
    a("s_endpgm")

    a("K1_KGEN:")
    a("s_load_dwordx16 s[16:31], s[0:1], 0", "s_load_dwordx2 s[6:7], s[0:1], 128")
    a("s_sub_u32 s3, s2, 256", "s_and_b32 s4, s3, 7", "s_mul_i32 s4, s4, 72", "s_lshr_b32 s3, s3, 3", "s_add_u32 s3, s3, s4")
    a("v_and_b32 v1, 63, v0")
    a("s_lshl_b32 s4, s3, 8", "v_lshl_add_u32 v2, v1, 2, s4")
    a("s_lshl_b32 s4, s3, 1", "v_mov_b32 v3, s4")
    a("v_readfirstlane_b32 s5, v0", "s_lshr_b32 s5, s5, 6")
    a("s_waitcnt lgkmcnt(0)")
    a("global_load_ushort v16, v3, s[30:31]")
    for k in range(6):
        a(f"global_load_dword v{10+k}, v2, s[{18+2*k}:{19+2*k}]")
    srd(a, 8, 6, 576 * KR_STRIDE, WS_KR)
    srd(a, 12, 6, 576 * 4, WS_KSC)
    a("v_lshlrev_b32 v4, 3, v0", "v_sub_u32 v4, 2047, v4")
    for jj in range(0, 8, 2):
        a(f"v_subrev_u32 v5, {jj}, v4", f"v_subrev_u32 v6, {jj+1}, v4")
        a("v_cvt_f32_u32 v7, v5", "v_cvt_f32_u32 v8, v6", "v_cvt_pk_bf16_f32 v7, v7, v8")
        a("v_and_b32 v8, 0xffff, v7", "v_lshrrev_b32 v7, 16, v7")
        a("v_subrev_u32 v8, 0x4280, v8", "v_subrev_u32 v7, 0x4280, v7")
        a("v_cmp_gt_u32 vcc, 128, v5", "v_cndmask_b32 v8, v8, v5, vcc")
        a("v_cmp_gt_u32 vcc, 128, v6", "v_cndmask_b32 v7, v7, v6, vcc")
        a(f"v_lshlrev_b32 v{100+jj}, 1, v8", f"v_lshlrev_b32 v{101+jj}, 1, v7")
    a("s_waitcnt vmcnt(6)")
    a("v_lshlrev_b32 v16, 16, v16")
    a(f"v_mul_f32 v17, {f32(LOG2E_HI)}, v16")
    a(f"s_mov_b32 s32, {f32(LOG2E_HI)}", f"s_mov_b32 s33, {f32(LOG2E_LO)}")
    a("v_fma_f32 v18, v16, s32, -v17", "v_fma_f32 v18, v16, s33, v18")
    a("v_exp_f32 v17, v17")
    a(f"v_mul_f32 v18, {f32(math.log(2.0))}, v18")
    a("v_fma_f32 v17, v17, v18, v17")
    a("v_cvt_pk_bf16_f32 v17, v17, v17", "v_and_b32 v16, 0xffff0000, v17", "v_mov_b32 v17, v16")
    a("s_waitcnt vmcnt(0)")
    for k in range(6): unpack(a, 20 + 2 * k, 10 + k)
    for k in range(4):
        a(f"v_pk_mul_f32 v[{20+2*k}:{21+2*k}], v[{20+2*k}:{21+2*k}], v[16:17]")
    def cmul(dr, di, ar, ai, br, bi, t):
        a(f"v_pk_mul_f32 v[{t}:{t+1}], v[{ai}:{ai+1}], v[{bi}:{bi+1}]")
        a(f"v_pk_mul_f32 v[{t+2}:{t+3}], v[{ai}:{ai+1}], v[{br}:{br+1}]")
        a(f"v_pk_fma_f32 v[{di}:{di+1}], v[{ar}:{ar+1}], v[{bi}:{bi+1}], v[{t+2}:{t+3}]") if di not in (ar, br, bi) else None
        assert di not in (ar, br, bi)
        a(f"v_pk_fma_f32 v[{dr}:{dr+1}], v[{ar}:{ar+1}], v[{br}:{br+1}], v[{t}:{t+1}] neg_lo:[0,0,1] neg_hi:[0,0,1]")
    T = 90
    CBR, CBI = 32, 34
    cmul(CBR, CBI, 28, 30, 24, 26, T)
    a("v_max_f32 v36, v20, v21")
    red64(a, "v_max_f32", 36, 38)
    a(f"v_add_f32 v37, abs(v{CBR}), abs(v{CBR+1})", f"v_add_f32 v38, abs(v{CBI}), abs(v{CBI+1})", "v_add_f32 v37, v37, v38")
    red64(a, "v_add_f32", 37, 38)
    a(f"v_max_f32 v37, {f32(1e-36)}, v37")
    a("v_rcp_f32 v38, v37")
    a(f"v_mul_f32 v38, {f32(32768.0)}, v38", "v_mov_b32 v39, v38")
    a(f"v_pk_mul_f32 v[{CBR}:{CBR+1}], v[{CBR}:{CBR+1}], v[38:39]", f"v_pk_mul_f32 v[{CBI}:{CBI+1}], v[{CBI}:{CBI+1}], v[38:39]")
    a("v_sub_f32 v20, v20, v36", "v_sub_f32 v21, v21, v36")
    a(f"v_mul_f32 v20, {f32(LOG2E)}, v20", f"v_mul_f32 v21, {f32(LOG2E)}, v21", f"v_mul_f32 v36, {f32(LOG2E)}, v36")
    a(f"s_mov_b32 s32, {f32(INV2PI_HI)}", f"s_mov_b32 s33, {f32(INV2PI_LO)}")
    def anchor(dr, di, l, conj=False):
        for e in range(2):
            a(f"v_mul_f32 v{T}, {f32(float(l))}, v{20+e}")
            a(f"v_mul_f32 v{T+1}, {f32(float(l))}, v{22+e}")
            a(f"v_exp_f32 v{T}, v{T}")
            a(f"v_mul_f32 v{T+2}, s32, v{T+1}", f"v_rndne_f32 v{T+2}, v{T+2}")
            a(f"v_fma_f32 v{T+2}, v{T+1}, s32, -v{T+2}", f"v_fma_f32 v{T+2}, v{T+1}, s33, v{T+2}")
            a(f"v_cos_f32 v{T+1}, v{T+2}", f"v_sin_f32 v{T+2}, v{T+2}")
            a(f"v_mul_f32 v{dr+e}, v{T}, v{T+1}")
            a(f"v_mul_f32 v{di+e}, v{T}, {'-' if conj else ''}v{T+2}")
    a(f"s_mul_i32 s4, s5, {KG_TILE}", "v_lshl_add_u32 v4, v1, 3, s4")
    def emit(row, vr, vi):
        a(f"v_cvt_pk_f16_f32 v{T+4}, v{vr}, v{vi}", f"v_cvt_pk_f16_f32 v{T+5}, v{vr+1}, v{vi+1}")
        a(f"ds_write_b64 v4, v[{T+4}:{T+5}] offset:{row*KG_ROW}")
    a("v_and_b32 v5, 15, v1", "v_lshrrev_b32 v6, 4, v1", "v_lshlrev_b32 v7, 3, v5")
    G1, G2, G3 = 40, 44, 48
    VA, VB, VC = 52, 56, 60
    a("s_cmp_eq_u32 s5, 1", "s_cbranch_scc1 K1_J1")
    a("s_cmp_eq_u32 s5, 2", "s_cbranch_scc1 K1_J2")
    a("s_cmp_eq_u32 s5, 3", "s_cbranch_scc1 K1_J3")
    anchor(G1, G1 + 2, 1); anchor(G2, G2 + 2, 128)
    cur = (CBR, CBI)
    for c in range(8):
        emit(c, cur[0], cur[1])
        cmul(VC, VC + 2, cur[0], cur[1], G2, G2 + 2, T); emit(8 + c, VC, VC + 2)
        if c < 7:
            nx = VA if cur[0] != VA else VB
            cmul(nx, nx + 2, cur[0], cur[1], G1, G1 + 2, T); cur = (nx, nx + 2)
    a("v_lshrrev_b32 v8, 1, v6", "v_lshl_add_u32 v7, v8, 7, v7", "v_and_b32 v8, 1, v6", "v_lshl_add_u32 v7, v8, 2, v7")
    a("v_mov_b32 v8, 1", "v_mov_b32 v9, 2")
    a("s_branch K1_JOIN")
    a("K1_J1:")
    anchor(G1, G1 + 2, 2); anchor(G2, G2 + 2, 128); anchor(G3, G3 + 2, 256)
    cmul(VA, VA + 2, CBR, CBI, G3, G3 + 2, T); cur = (VA, VA + 2)
    cmul(64, 66, VA, VA + 2, G3, G3 + 2, T)
    for c in range(4):
        emit(c, cur[0], cur[1])
        cmul(VC, VC + 2, cur[0], cur[1], G2, G2 + 2, T); emit(4 + c, VC, VC + 2)
        if c < 3:
            nx = VA if cur[0] != VA else VB
            cmul(nx, nx + 2, cur[0], cur[1], G1, G1 + 2, T); cur = (nx, nx + 2)
    cmul(G3, G3 + 2, G1, G1 + 2, G1, G1 + 2, T)
    cur = (64, 66)
    for aa in range(4):
        emit(8 + 2 * aa, cur[0], cur[1])
        cmul(VC, VC + 2, cur[0], cur[1], G3, G3 + 2, T); emit(9 + 2 * aa, VC, VC + 2)
        if aa < 3:
            nx = VA if cur[0] != VA else VB
            cmul(nx, nx + 2, cur[0], cur[1], G2, G2 + 2, T); cur = (nx, nx + 2)
    a("v_lshl_add_u32 v8, v6, 7, v7", "v_add_u32 v8, 256, v8", "v_lshl_add_u32 v7, v6, 8, v7")
    a("v_cmp_gt_u32 vcc, 2, v6", "v_cndmask_b32 v7, v7, v8, vcc")
    a("v_mov_b32 v8, 4", "v_mov_b32 v9, 0x80", "v_cndmask_b32 v8, v8, 2, vcc", "v_cndmask_b32 v9, v9, 4, vcc")
    a("s_branch K1_JOIN")
    a("K1_J2:")
    anchor(G2, G2 + 2, 128); anchor(G3, G3 + 2, 1024)
    cmul(VA, VA + 2, CBR, CBI, G3, G3 + 2, T); cur = (VA, VA + 2)
    for r in range(9):
        emit(r, cur[0], cur[1])
        if r < 8:
            nx = VA if cur[0] != VA else VB
            cmul(nx, nx + 2, cur[0], cur[1], G2, G2 + 2, T); cur = (nx, nx + 2)
    a("v_lshl_add_u32 v7, v6, 9, v7", "v_add_u32 v7, 0x400, v7", "v_mov_b32 v8, 0x80", "v_mov_b32 v9, 0x100")
    a("s_branch K1_JOIN")
    a("K1_J3:")
    anchor(G1, G1 + 2, 8, conj=True)
    a(f"v_mov_b32 v{VA}, {f32(32768.0)}", f"v_mov_b32 v{VA+1}, {f32(32768.0)}", f"v_mov_b32 v{VA+2}, 0", f"v_mov_b32 v{VA+3}, 0")
    cur = (VA, VA + 2)
    for b in range(16):
        emit(b, cur[0], cur[1])
        if b < 15:
            nx = VA if cur[0] != VA else VB
            cmul(nx, nx + 2, cur[0], cur[1], G1, G1 + 2, T); cur = (nx, nx + 2)
    a(f"v_mul_f32 v40, {f32(2048.0)}, v36", "v_max_f32 v40, 0, v40", "v_exp_f32 v40, v40")
    a(f"v_mul_f32 v41, {f32(1.0/32768.0)}, v37", "v_mul_f32 v40, v40, v41")
    a("s_lshl_b32 s4, s3, 2", "v_mov_b32 v41, s4")
    a(f"s_mul_i32 s4, s3, {KR_STRIDE}", "s_add_u32 s4, s4, 4096", "v_mov_b32 v42, s4")
    a("v_mov_b32 v44, 0", "v_mov_b32 v45, 0", "v_mov_b32 v46, 0", "v_mov_b32 v47, 0")
    a("s_mov_b64 s[34:35], exec", "s_mov_b64 exec, 1")
    a("buffer_store_dword v40, v41, s[12:15], 0 offen")
    a("buffer_store_dwordx4 v[44:47], v42, s[8:11], 0 offen")
    a("s_mov_b64 exec, s[34:35]")
    a("K1_JOIN:")
    a.flush(4)
    a("s_waitcnt lgkmcnt(0)", "s_barrier")
    a("s_cmp_eq_u32 s5, 3", "s_cbranch_scc1 K1_EXPAND")
    a(f"v_mul_u32_u24 v10, {KG_ROW}, v5", "v_lshl_add_u32 v10, v6, 4, v10")
    a(f"s_mul_i32 s4, s5, {KG_TILE}", "v_add_u32 v11, s4, v10")
    for s in range(8):
        a(f"ds_read_b128 v[{40+4*s}:{43+4*s}], v11 offset:{64*s}")
        a(f"ds_read_b128 v[{72+4*(s%4)}:{75+4*(s%4)}], v10 offset:{3*KG_TILE+64*s}") if s < 4 else None
    a("v_mov_b32 v12, 0", "v_mov_b32 v13, 0", "v_mov_b32 v14, 0", "v_mov_b32 v15, 0")
    for s in range(4, 8):
        a(f"ds_read_b128 v[{20+4*(s-4)}:{23+4*(s-4)}], v10 offset:{3*KG_TILE+64*s}")
    a("s_waitcnt lgkmcnt(0)")
    for s in range(8):
        B = 72 + 4 * s if s < 4 else 20 + 4 * (s - 4)
        a(f"v_mfma_f32_16x16x32_f16 v[12:15], v[{40+4*s}:{43+4*s}], v[{B}:{B+3}], v[12:15]")
    a(f"v_mul_f32 v40, {f32(2048.0)}, v36", "v_max_f32 v40, 0, v40", f"v_add_f32 v40, {f32(15.0)}, v40")
    a("v_mov_b32 v41, v7", "v_add_u32 v42, v7, v8", "v_add_u32 v43, v7, v9", "v_add_u32 v44, v42, v9")
    for r in range(4):
        a(f"v_cvt_f32_u32 v45, v{41+r}")
        a("v_fma_f32 v46, v45, v36, -v40", "v_exp_f32 v46, v46")
        a("v_lshrrev_b32 v45, 16, v45", "v_subrev_u32 v45, 0x4280, v45")
        a(f"v_cmp_gt_u32 vcc, 128, v{41+r}", f"v_cndmask_b32 v45, v45, v{41+r}, vcc")
        a(f"v_cmp_lt_u32 vcc, 0x800, v{41+r}", "v_mov_b32 v47, 0x2f0", "v_cndmask_b32 v45, v45, v47, vcc")
        a(f"v_mul_f32 v46, v46, v{12+r}", "v_cvt_f16_f32 v46, v46")
        a("v_lshlrev_b32 v45, 1, v45")
        a(f"ds_write_b16 v45, v46 offset:{KG_TAB}")
    a("K1_EXPAND:")
    a.flush(4)
    a("s_waitcnt lgkmcnt(0)", "s_barrier")
    for jj in range(8):
        a(f"ds_read_u16 v{48+jj}, v{100+jj} offset:{KG_TAB}")
    a(f"s_mul_i32 s4, s3, {KR_STRIDE}", "v_lshlrev_b32 v44, 4, v0")
    a("s_waitcnt lgkmcnt(0)")
    for k in range(4):
        a(f"v_lshl_or_b32 v{40+k}, v{49+2*k}, 16, v{48+2*k}")
    a("buffer_store_dwordx4 v[40:43], v44, s[8:11], s4 offen")
    stamp_end(a, 6, 0)
    a("K1_END:")
    a("s_endpgm")
    return kdesc("k1_kernel", 108, 40)

KC_STRIDE = 4640
K2_U = 4 * KC_STRIDE
K2_RED = K2_U + 4224
K2_LDS = K2_RED + 24576

def gen_k2(a):
    header(a, "k2_kernel")
    a("s_cmp_ge_u32 s2, 576", "s_cbranch_scc1 K2_END")
    stamp_begin(a, 4)
    a("s_load_dwordx2 s[6:7], s[0:1], 128", "s_load_dwordx2 s[4:5], s[0:1], 64")
    a("s_and_b32 s16, s2, 7", "s_mul_i32 s16, s16, 72", "s_lshr_b32 s3, s2, 3", "s_add_u32 s3, s3, s16")
    a("v_readfirstlane_b32 s17, v0", "s_lshr_b32 s17, s17, 6")
    a("v_mul_u32_u24 v1, 9216, v0")
    a("v_lshlrev_b32 v2, 4, v0")
    a("s_lshl_b32 s18, s3, 4", f"s_mul_i32 s19, s3, {KR_STRIDE}")
    a("s_waitcnt lgkmcnt(0)")
    srd(a, 8, 6, XBYTES, WS_UT)
    srd(a, 12, 6, 576 * KR_STRIDE, WS_KR)
    a("buffer_load_dwordx4 v[4:7], v2, s[12:15], s19 offen")
    a("buffer_load_dwordx2 v[8:9], v2, s[12:15], s19 offen offset:16")
    a("buffer_load_dwordx4 v[12:15], v1, s[8:11], s18 offen")
    a("s_lshl_b32 s20, s3, 2", f"s_add_u32 s20, s20, {hex(WS_KSC)}", "s_add_u32 s20, s6, s20", "s_addc_u32 s21, s7, 0")
    a("s_load_dword s24, s[20:21], 0")
    a("s_lshr_b32 s20, s3, 1", "s_lshl_b32 s20, s20, 2", "s_add_u32 s20, s4, s20", "s_addc_u32 s21, s5, 0")
    a("s_load_dword s25, s[20:21], 0")
    srd(a, 28, 6, XBYTES, WS_ZT)
    a("v_mov_b32 v16, 0", "v_mov_b32 v17, 0", "v_mov_b32 v18, 0", "v_mov_b32 v19, 0")
    a("v_lshrrev_b32 v3, 5, v0", "v_and_b32 v10, 31, v0")
    a(f"v_mul_u32_u24 v11, {KC_STRIDE}, v3", "v_lshl_add_u32 v11, v10, 4, v11", "v_add_u32 v11, 4096, v11")
    a("v_cmp_gt_u32 vcc, 4, v3", "v_cmp_gt_u32 s[22:23], 24, v10", "s_and_b64 vcc, vcc, s[22:23]")
    a("s_and_saveexec_b64 s[22:23], vcc")
    a("ds_write_b128 v11, v[16:19]")
    a("s_mov_b64 exec, s[22:23]")
    a("v_cmp_gt_u32 vcc, 8, v0", "s_and_saveexec_b64 s[22:23], vcc")
    a(f"ds_write_b128 v2, v[16:19] offset:{K2_U}")
    a("s_mov_b64 exec, s[22:23]")
    a("v_and_b32 v3, 63, v0", "v_and_b32 v10, 15, v3", "v_lshrrev_b32 v11, 4, v3")
    a("v_and_b32 v16, 3, v10", f"v_mul_u32_u24 v16, {KC_STRIDE}, v16", "v_lshrrev_b32 v17, 2, v10", "v_lshlrev_b32 v17, 7, v17")
    a("v_sub_u32 v16, v16, v17", "v_lshl_add_u32 v16, v11, 4, v16")
    a("s_lshl_b32 s20, s17, 7", "s_sub_u32 s20, 384, s20")
    a("s_add_u32 s21, s20, 384", "v_add_u32 v16, s21, v16")
    a("v_lshlrev_b32 v17, 3, v10", "v_lshl_add_u32 v17, v11, 4, v17")
    a(f"s_add_u32 s21, s20, {K2_U + 8}", "v_add_u32 v17, s21, v17")
    a("s_waitcnt vmcnt(1)")
    for k in range(5):
        a(f"v_alignbit_b32 v{20+k}, v{5+k}, v{4+k}, 16")
    a(f"ds_write_b128 v2, v[4:7] offset:{3*KC_STRIDE}")
    a(f"ds_write_b128 v2, v[20:23] offset:{2*KC_STRIDE}")
    a("v_mov_b32 v26, v5", "v_mov_b32 v27, v6", "v_mov_b32 v28, v7", "v_mov_b32 v29, v8")
    a("v_mov_b32 v30, v21", "v_mov_b32 v31, v22", "v_mov_b32 v32, v23", "v_mov_b32 v33, v24")
    a(f"ds_write_b128 v2, v[26:29] offset:{1*KC_STRIDE}")
    a(f"ds_write_b128 v2, v[30:33] offset:0")
    a("s_waitcnt vmcnt(0)")
    a(f"ds_write_b128 v2, v[12:15] offset:{K2_U + 128}")
    ACC = 20
    AF = 52
    BF = 84
    a("s_waitcnt lgkmcnt(0)", "s_barrier")
    for i in range(32): a(f"v_mov_b32 v{ACC+i}, 0")
    DEPTH = 4
    def load(g):
        res, k = divmod(g, 8)
        i = 7 - k
        roff = 64 if res == 0 else 0
        a(f"ds_read_b128 v[{AF+4*i}:{AF+4*i+3}], v16 offset:{512*(7-i) + roff}")
        b = BF + 32 * res + 4 * k
        a(f"ds_read_b64 v[{b}:{b+1}], v17 offset:{512*k + roff}")
        a(f"ds_read_b64 v[{b+2}:{b+3}], v17 offset:{512*k + roff + 8}")
    for g in range(DEPTH): load(g)
    for g in range(16):
        res, k = divmod(g, 8)
        i = 7 - k
        issued = min(16, g + DEPTH)
        a(f"s_waitcnt lgkmcnt({3*(issued - g - 1)})")
        for ip in range(0, 8 - i):
            j = i + ip
            b = BF + 32 * res + 4 * ip
            a(f"v_mfma_f32_16x16x32_f16 v[{ACC+4*j}:{ACC+4*j+3}], v[{AF+4*i}:{AF+4*i+3}], v[{b}:{b+3}], v[{ACC+4*j}:{ACC+4*j+3}]")
            if ip == 0 and g + DEPTH < 16: load(g + DEPTH)
    a("v_lshlrev_b32 v4, 4, v3")
    a.flush(10)
    for w in range(4):
        a(f"s_cmp_eq_u32 s17, {w}", f"s_cbranch_scc0 K2_R{w}")
        for o in range(4):
            if o == w: continue
            rank = (w - o - 1) & 3
            for t in range(2):
                j = 2 * o + t
                a(f"ds_write_b128 v4, v[{ACC+4*j}:{ACC+4*j+3}] offset:{K2_RED + ((o*3 + rank)*2 + t)*1024}")
        for t in range(2):
            for r in range(4): a(f"v_mov_b32 v{52+4*t+r}, v{ACC+4*(2*w+t)+r}")
        a(f"K2_R{w}:")
    a.flush(8)
    a("s_waitcnt lgkmcnt(0)", "s_barrier")
    a("s_mul_i32 s20, s17, 6144", "v_add_u32 v4, s20, v4")
    for rank in range(3):
        for t in range(2):
            a(f"ds_read_b128 v[{60+8*rank+4*t}:{63+8*rank+4*t}], v4 offset:{K2_RED + (rank*2+t)*1024}")
    a("s_lshl_b32 s20, s17, 10", "v_lshl_add_u32 v5, v3, 3, s20")
    for t in range(2):
        a(f"ds_read_b64 v[{84+2*t}:{85+2*t}], v5 offset:{K2_U + 128 + 512*t}")
    a("s_waitcnt lgkmcnt(0)")
    a("s_lshl_b32 s26, s25, 16", "s_and_b32 s27, s25, 0xffff0000", "s_bitcmp1_b32 s3, 0", "s_cselect_b32 s25, s27, s26")
    for rank in range(3):
        for p in range(4):
            a(f"v_pk_add_f32 v[{52+2*p}:{53+2*p}], v[{52+2*p}:{53+2*p}], v[{60+8*rank+2*p}:{61+8*rank+2*p}]")
    for t in range(2):
        for p in range(2):
            y = 52 + 4 * t + 2 * p
            u = 84 + 2 * t + p
            a(f"v_mul_f32 v{y}, s24, v{y}", f"v_mul_f32 v{y+1}, s24, v{y+1}")
            a(f"v_cvt_pk_bf16_f32 v6, v{y}, v{y+1}")
            unpack(a, y, 6)
            a(f"v_cvt_f32_f16 v8, v{u}", f"v_cvt_f32_f16_sdwa v9, v{u} dst_sel:DWORD dst_unused:UNUSED_PAD src0_sel:WORD_1")
            a("v_mul_f32 v8, s25, v8", "v_mul_f32 v9, s25, v9")
            a("v_cvt_pk_bf16_f32 v6, v8, v9")
            unpack(a, 8, 6)
            a(f"v_pk_add_f32 v[8:9], v[8:9], v[{y}:{y+1}]")
            a(f"v_cvt_pk_bf16_f32 v{88+2*t+p}, v8, v9")
    a("s_lshl_b32 s20, s3, 12")
    a("buffer_store_dwordx2 v[88:89], v5, s[28:31], s20 offen")
    a("buffer_store_dwordx2 v[90:91], v5, s[28:31], s20 offen offset:512")
    stamp_end(a, 6, 1)
    a("K2_END:")
    a("s_endpgm")
    return kdesc("k2_kernel", 148, 40)

K3_LDS = 9216
def gen_k3(a):
    header(a, "k3_kernel")
    a("s_cmp_ge_u32 s2, 256", "s_cbranch_scc1 K3_END")
    stamp_begin(a, 4)
    a("s_load_dwordx2 s[4:5], s[0:1], 0", "s_load_dwordx2 s[6:7], s[0:1], 128")
    a("s_load_dwordx2 s[32:33], s[0:1], 80", "s_load_dwordx2 s[34:35], s[0:1], 112")
    a("s_and_b32 s16, s2, 7", "s_lshl_b32 s16, s16, 5", "s_lshr_b32 s3, s2, 3", "s_add_u32 s16, s3, s16")
    a("s_mul_i32 s3, s16, 9216", "s_lshl_b32 s17, s16, 4")
    a("v_lshrrev_b32 v1, 5, v0", "v_and_b32 v2, 31, v0")
    a("v_mul_u32_u24 v3, 1152, v1", "v_lshl_add_u32 v3, v2, 2, v3")
    a("v_lshlrev_b32 v6, 12, v0", "v_lshlrev_b32 v7, 2, v2")
    a("v_readfirstlane_b32 s18, v0")
    a("s_waitcnt lgkmcnt(0)")
    srd(a, 8, 4, XBYTES)
    srd(a, 12, 6, XBYTES, WS_ZT)
    srd(a, 20, 32, 1152)
    a("s_add_u32 s19, s17, 0x100000")
    a("buffer_load_dwordx4 v[60:63], v6, s[12:15], s17 offen")
    a("buffer_load_dwordx4 v[64:67], v6, s[12:15], s19 offen")
    a("s_add_u32 s19, s17, 0x200000")
    a("buffer_load_dwordx4 v[68:71], v6, s[12:15], s19 offen")
    for j in range(9):
        a(f"buffer_load_dword v{10+j}, v3, s[8:11], s3 offen offset:{128*j}")
    for j in range(9):
        a(f"buffer_load_dword v{50+j}, v7, s[20:23], 0 offen offset:{128*j}")
    srd(a, 24, 34, XBYTES)
    srd(a, 28, 6, XBYTES, WS_X2)
    srd(a, 36, 6, 8192, WS_KEYS)
    a("v_lshrrev_b32 v4, 6, v0", "v_mul_u32_u24 v4, 2304, v4", "v_lshl_add_u32 v4, v2, 3, v4")
    a("v_and_b32 v5, 1, v1")
    a("v_mul_u32_u24 v5, 0x020202, v5", f"v_lshlrev_b32 v8, 25, v1", "v_and_b32 v8, 0x02000000, v8")
    a("v_or_b32 v5, v5, v8", "v_add_u32 v5, 0x05040100, v5")
    a("v_lshlrev_b32 v8, 2, v0")
    a("s_waitcnt vmcnt(19)")
    for k in range(2):
        a(f"ds_write2st64_b32 v8, v{60+4*k}, v{61+4*k} offset0:{4*k} offset1:{9+4*k}")
        a(f"ds_write2st64_b32 v8, v{62+4*k}, v{63+4*k} offset0:{18+4*k} offset1:{27+4*k}")
    a("s_waitcnt vmcnt(18)")
    a("s_cmp_ge_u32 s18, 64", "s_cbranch_scc1 K3_SKIP")
    a("ds_write2st64_b32 v8, v68, v69 offset0:8 offset1:17")
    a("ds_write2st64_b32 v8, v70, v71 offset0:26 offset1:35")
    a("K3_SKIP:")
    a("s_waitcnt lgkmcnt(0)", "s_barrier")
    for j in range(9):
        a(f"ds_read_b64 v[{60+2*j}:{61+2*j}], v4 offset:{256*j}")
    X = 20
    a("s_waitcnt vmcnt(9)")
    for j in range(9):
        a(f"s_waitcnt lgkmcnt({8-j})")
        a(f"v_perm_b32 v44, v{61+2*j}, v{60+2*j}, v5")
        unpack(a, 46, 44)
        unpack(a, X + 2 * j, 10 + j)
        a(f"v_pk_add_f32 v[46:47], v[46:47], v[{X+2*j}:{X+2*j+1}]")
        a(f"v_cvt_pk_bf16_f32 v44, v46, v47")
        unpack(a, X + 2 * j, 44)
    ln_stats(a, X, 40, 42, 44, 46, 48)
    a("s_waitcnt vmcnt(0)")
    a("v_mov_b32 v60, 0", "v_mov_b32 v61, 0")
    for j in range(9):
        ln_apply_pair(a, X + 2 * j, 40, 42, 44, 10 + j)
        a(f"buffer_store_dword v{10+j}, v3, s[28:31], s3 offen offset:{128*j}")
        unpack(a, 46, 50 + j)
        a("v_pk_fma_f32 v[60:61], v[44:45], v[46:47], v[60:61]")
        a(f"v_pk_add_f32 v[44:45], v[44:45], v[{X+2*j}:{X+2*j+1}]")
        a(f"v_cvt_pk_bf16_f32 v{50+j}, v44, v45")
        a(f"buffer_store_dword v{50+j}, v3, s[24:27], s3 offen offset:{128*j}")
    a("v_add_f32 v60, v60, v61")
    red32(a, "v_add_f32", 60, 61)
    a("v_cvt_pk_bf16_f32 v60, v60, v60")
    a("v_ashrrev_i32 v61, 31, v60", "v_or_b32 v61, 0x80000000, v61", "v_xor_b32 v60, v60, v61", "v_and_b32 v60, 0xffff0000, v60")
    a("s_lshl_b32 s19, s16, 3", "v_add_u32 v61, s19, v1", "v_sub_u32 v62, 2047, v61", "v_or_b32 v60, v60, v62", "v_lshlrev_b32 v61, 2, v61")
    a("v_cmp_eq_u32 vcc, 0, v2", "s_and_saveexec_b64 s[40:41], vcc")
    a("buffer_store_dword v60, v61, s[36:39], 0 offen")
    stamp_end(a, 6, 2)
    a("K3_END:")
    a("s_endpgm")
    return kdesc("k3_kernel", 80, 48)

K4_CAND = 0
K4_SEL = 256
K4_RED = 512
K4_ACT = K4_RED + 18432
K4_LDS = K4_ACT + 1024

def wave_max_to_s(a, v, t, s):
    a(f"v_mov_b32 v{t}, v{v}")
    for sh in (1, 2, 4, 8):
        a(f"v_max_u32_dpp v{t}, v{t}, v{t} row_shr:{sh} {DPPM}")
    a(f"v_max_u32_dpp v{t}, v{t}, v{t} row_bcast:15 row_mask:0xa bank_mask:0xf")
    a(f"v_max_u32_dpp v{t}, v{t}, v{t} row_bcast:31 row_mask:0xc bank_mask:0xf")
    a(f"v_readlane_b32 s{s}, v{t}, 63")

def gen_k4(a):
    header(a, "k4_kernel")
    a("s_cmp_ge_u32 s2, 144", "s_cbranch_scc1 K4_END")
    stamp_begin(a, 9)
    a("s_load_dwordx4 s[4:7], s[0:1], 88", "s_load_dwordx2 s[32:33], s[0:1], 104", "s_load_dwordx2 s[34:35], s[0:1], 128")
    a("v_readfirstlane_b32 s17, v0", "s_lshr_b32 s17, s17, 6")
    a("v_and_b32 v1, 63, v0", "v_and_b32 v2, 15, v1", "v_lshrrev_b32 v3, 4, v1")
    a("s_waitcnt lgkmcnt(0)")
    srd(a, 36, 34, 8192, WS_KEYS)
    a("v_lshlrev_b32 v4, 4, v0")
    a("buffer_load_dwordx4 v[8:11], v4, s[36:39], 0 offen")
    a("v_mov_b32 v12, s4", "v_mov_b32 v13, s5", "v_mov_b32 v14, s6", "v_mov_b32 v15, s7")
    a("v_cmp_gt_u32 vcc, 8, v2", "v_cndmask_b32 v12, v14, v12, vcc", "v_cndmask_b32 v13, v15, v13, vcc")
    a("s_lshl_b32 s18, s17, 6", "v_lshl_add_u32 v5, v3, 3, s18")
    a("v_mul_u32_u24 v5, 9216, v5")
    a("v_and_b32 v6, 7, v2", "v_lshl_add_u32 v5, v6, 3, v5")
    a("s_lshl_b32 s18, s2, 6", "v_add_u32 v5, s18, v5")
    a("v_add_co_u32 v12, vcc, v12, v5", "v_addc_co_u32 v13, vcc, 0, v13, vcc")
    W = 32
    for ks in range(2):
        for r in range(8):
            d = W + 16 * ks + 2 * r
            a(f"global_load_dwordx2 v[{d}:{d+1}], v[12:13], off")
            if not (ks == 1 and r == 7):
                inc = 9216 if r < 7 else 9216 * 25
                a(f"v_add_co_u32 v12, vcc, {inc}, v12", "v_addc_co_u32 v13, vcc, 0, v13, vcc")
    srd(a, 8, 32, F * D * 2)
    a("v_mul_u32_u24 v5, 9216, v3", "v_lshl_add_u32 v5, v2, 3, v5")
    a("s_mul_i32 s18, s2, 36864", "s_lshl_b32 s19, s17, 7", "s_add_u32 s18, s18, s19")
    WD = 64
    for r in range(8):
        if r < 4: a(f"buffer_load_dwordx2 v[{WD+2*r}:{WD+2*r+1}], v5, s[8:11], s18 offen offset:{1152*r}")
        else:
            if r == 4: a("s_add_u32 s18, s18, 4608")
            a(f"buffer_load_dwordx2 v[{WD+2*r}:{WD+2*r+1}], v5, s[8:11], s18 offen offset:{1152*(r-4)}")
    srd(a, 12, 34, XBYTES, WS_X2)
    srd(a, 20, 34, 144 * 4608 * 4, WS_PART)
    srd(a, 24, 34, 32, WS_IDX)
    a("s_waitcnt vmcnt(24)")
    def ce(x, y):
        a(f"v_max_u32 v16, v{x}, v{y}", f"v_min_u32 v{y}, v{x}, v{y}", f"v_mov_b32 v{x}, v16")
    ce(8, 9); ce(10, 11); ce(8, 10); ce(9, 11); ce(9, 10)
    a("v_mov_b32 v17, 0")
    for r in range(8):
        wave_max_to_s(a, 8, 16, 28)
        a(f"v_writelane_b32 v17, s28, {r}")
        a("v_cmp_eq_u32 vcc, s28, v8")
        a("v_cndmask_b32 v8, v8, v9, vcc", "v_cndmask_b32 v9, v9, v10, vcc", "v_cndmask_b32 v10, v10, v11, vcc", "v_cndmask_b32 v11, v11, 0, vcc")
    a("s_lshl_b32 s18, s17, 5", "v_lshl_add_u32 v16, v1, 2, s18")
    a("s_cmp_lt_u32 s17, 8", "s_cselect_b64 s[28:29], 0xff, 0", "s_mov_b64 exec, s[28:29]")
    a(f"ds_write_b32 v16, v17 offset:{K4_CAND}")
    a("s_mov_b64 exec, -1")
    a("s_waitcnt lgkmcnt(0)", "s_barrier")
    a("v_lshlrev_b32 v16, 2, v1")
    a(f"ds_read_b32 v8, v16 offset:{K4_CAND}")
    a("s_waitcnt lgkmcnt(0)")
    a("v_mov_b32 v17, 0")
    for r in range(8):
        wave_max_to_s(a, 8, 16, 28)
        a(f"v_writelane_b32 v17, s28, {r}", f"v_writelane_b32 v17, s28, {r+8}")
        a("v_cmp_eq_u32 vcc, s28, v8", "v_cndmask_b32 v8, v8, 0, vcc")
    a("v_lshlrev_b32 v16, 2, v2", "ds_bpermute_b32 v18, v16, v17")
    a("s_or_b32 s18, s2, s17", "s_cmp_eq_u32 s18, 0", "s_cbranch_scc0 K4_NOIDX")
    a("v_lshlrev_b32 v16, 2, v1")
    a("buffer_store_dword v17, v16, s[24:27], 0 offen")
    a("K4_NOIDX:")
    a("s_waitcnt lgkmcnt(0)")
    a("v_and_b32 v18, 0x7ff, v18", "v_sub_u32 v18, 2047, v18", "v_mul_u32_u24 v18, 1152, v18")
    a("v_lshl_add_u32 v18, v3, 4, v18", "s_lshl_b32 s18, s17, 7")
    a("buffer_load_dwordx4 v[20:23], v18, s[12:15], s18 offen")
    a("buffer_load_dwordx4 v[24:27], v18, s[12:15], s18 offen offset:64")
    a("s_mov_b32 s28, 0x05040100", "s_mov_b32 s29, 0x07060302")
    def transpose(src, dst):
        for j in range(4):
            for p in range(4):
                lo = src + 2 * (2 * p) + (j >> 1); hi = src + 2 * (2 * p + 1) + (j >> 1)
                a(f"v_perm_b32 v{dst+4*j+p}, v{hi}, v{lo}, s{28 + (j & 1)}")
    TW = 80
    a("s_waitcnt vmcnt(18)"); transpose(W, TW)
    a("s_waitcnt vmcnt(10)"); transpose(W + 16, TW + 16)
    a("s_waitcnt vmcnt(2)"); transpose(WD, 112)
    ACC = 32
    for i in range(16): a(f"v_mov_b32 v{ACC+i}, 0")
    a("s_waitcnt vmcnt(0)")
    for ks in range(2):
        for j in range(4):
            a(f"v_mfma_f32_16x16x32_bf16 v[{ACC+4*j}:{ACC+4*j+3}], v[{20+4*ks}:{23+4*ks}], v[{TW+16*ks+4*j}:{TW+16*ks+4*j+3}], v[{ACC+4*j}:{ACC+4*j+3}]")
    a("s_lshl_b32 s18, s17, 11", "v_lshl_add_u32 v16, v1, 4, s18")
    a("s_mov_b32 exec_lo, -1", "s_mov_b32 exec_hi, 0")
    for j in range(4):
        a(f"ds_write_b128 v16, v[{ACC+4*j}:{ACC+4*j+3}] offset:{K4_RED + 512*j}")
    a("s_mov_b64 exec, -1")
    a("s_waitcnt lgkmcnt(0)", "s_barrier")
    a("s_cmp_ge_u32 s17, 4", "s_cbranch_scc1 K4_NOACT")
    a("v_lshrrev_b32 v8, 5, v0", "v_and_b32 v9, 31, v0")
    a("v_and_b32 v10, 3, v9", "v_lshlrev_b32 v10, 9, v10")
    a("v_lshrrev_b32 v11, 2, v9", "v_lshl_add_u32 v10, v11, 4, v10")
    a("v_lshrrev_b32 v11, 2, v8", "v_lshl_add_u32 v10, v11, 8, v10")
    a("v_and_b32 v11, 3, v8", "v_lshl_add_u32 v10, v11, 2, v10")
    for w in range(9):
        a(f"ds_read2_b32 v[{32+2*w}:{33+2*w}], v10 offset0:0 offset1:32") if False else None
    for w in range(9):
        a(f"ds_read_b32 v{32+2*w}, v10 offset:{K4_RED + 2048*w}")
        a(f"ds_read_b32 v{33+2*w}, v10 offset:{K4_RED + 2048*w + 128}")
        if w == 5: a("s_waitcnt lgkmcnt(4)")
    a("s_waitcnt lgkmcnt(0)")
    for w in range(1, 9):
        a(f"v_pk_add_f32 v[32:33], v[32:33], v[{32+2*w}:{33+2*w}]")
    a("v_cvt_pk_bf16_f32 v34, v32, v33")
    unpack(a, 32, 34)
    a(f"v_mul_f32 v34, {f32(-LOG2E)}, v32", "v_exp_f32 v34, v34", "v_add_f32 v34, 1.0, v34", "v_rcp_f32 v34, v34", "v_mul_f32 v34, v32, v34")
    a("v_cvt_pk_bf16_f32 v34, v34, v34", "v_lshlrev_b32 v34, 16, v34")
    a("v_mul_f32 v34, v34, v33", "v_cvt_pk_bf16_f32 v34, v34, v34")
    a("v_lshlrev_b32 v10, 1, v0")
    a(f"ds_write_b16 v10, v34 offset:{K4_ACT}")
    a("K4_NOACT:")
    a.flush(4)
    a("s_waitcnt lgkmcnt(0)", "s_barrier")
    a("v_and_b32 v16, 7, v2", "v_lshlrev_b32 v16, 6, v16", "v_lshl_add_u32 v16, v3, 4, v16")
    a(f"ds_read_b128 v[20:23], v16 offset:{K4_ACT}")
    a("s_waitcnt lgkmcnt(0)")
    for j in range(4):
        a(f"v_mfma_f32_16x16x32_bf16 v[{ACC+4*j}:{ACC+4*j+3}], v[20:23], v[{112+4*j}:{115+4*j}], 0")
    a("s_mul_i32 s18, s2, 18432", "s_lshl_b32 s19, s17, 11", "s_add_u32 s18, s18, s19")
    a("v_lshlrev_b32 v16, 4, v1")
    a("s_mov_b32 exec_lo, -1", "s_mov_b32 exec_hi, 0")
    for j in range(4):
        a(f"buffer_store_dwordx4 v[{ACC+4*j}:{ACC+4*j+3}], v16, s[20:23], s18 offen offset:{512*j}")
    stamp_end(a, 34, 3)
    a("K4_END:")
    a("s_endpgm")
    return kdesc("k4_kernel", 128, 48)

K5_LDS = 4096
def gen_k5(a):
    header(a, "k5_kernel")
    a("s_cmp_ge_u32 s2, 72", "s_cbranch_scc1 K5_END")
    stamp_begin(a, 4)
    a("s_load_dwordx2 s[4:5], s[0:1], 0", "s_load_dwordx2 s[6:7], s[0:1], 128", "s_load_dwordx2 s[34:35], s[0:1], 112")
    a("v_and_b32 v1, 15, v0", "v_lshrrev_b32 v2, 4, v0")
    a("v_mul_u32_u24 v3, 165888, v2", "v_lshl_add_u32 v3, v1, 4, v3")
    a("s_lshl_b32 s3, s2, 8")
    a("s_waitcnt lgkmcnt(0)")
    srd(a, 8, 6, 144 * 4608 * 4, WS_PART)
    for p in range(9):
        a(f"buffer_load_dwordx4 v[{8+4*p}:{11+4*p}], v3, s[8:11], s3 offen")
        if p < 8: a("s_add_u32 s3, s3, 18432")
    srd(a, 12, 6, 32, WS_IDX)
    srd(a, 16, 6, XBYTES, WS_X2)
    srd(a, 20, 6, XBYTES, WS_ZT)
    srd(a, 24, 4, XBYTES)
    srd(a, 28, 34, XBYTES)
    a("v_lshrrev_b32 v4, 2, v0", "s_lshl_b32 s3, s2, 4", "v_add_u32 v4, s3, v4", "v_and_b32 v5, 3, v0")
    a("v_bfe_u32 v6, v4, 4, 1", "v_lshl_add_u32 v5, v6, 2, v5")
    a("v_lshrrev_b32 v6, 7, v4", "v_lshlrev_b32 v6, 6, v6", "v_and_b32 v7, 15, v4", "v_lshl_add_u32 v6, v7, 2, v6")
    a("v_bfe_u32 v7, v4, 5, 2", "v_add_u32 v6, v6, v7")
    a("v_lshlrev_b32 v5, 2, v5")
    a("buffer_load_dword v44, v5, s[12:15], 0 offen")
    a("s_waitcnt vmcnt(0)")
    a("v_and_b32 v45, 0x7ff, v44", "v_sub_u32 v45, 2047, v45")
    a("v_mul_u32_u24 v46, 1152, v45", "v_lshl_add_u32 v46, v6, 1, v46")
    a("v_lshlrev_b32 v47, 12, v6", "v_lshl_add_u32 v47, v45, 1, v47")
    a("buffer_load_ushort v48, v46, s[16:19], 0 offen")
    a("buffer_load_ushort v49, v47, s[20:23], 0 offen")
    a("buffer_load_ushort v50, v46, s[24:27], 0 offen")
    for p in range(1, 9):
        a(f"v_pk_add_f32 v[8:9], v[8:9], v[{8+4*p}:{9+4*p}]", f"v_pk_add_f32 v[10:11], v[10:11], v[{10+4*p}:{11+4*p}]")
    a("v_lshlrev_b32 v7, 4, v0")
    a("ds_write_b128 v7, v[8:11]")
    a("s_waitcnt lgkmcnt(0)", "s_barrier")
    a("v_readfirstlane_b32 s3, v0", "s_cmp_ge_u32 s3, 64", "s_cbranch_scc1 K5_END1")
    a("v_lshlrev_b32 v7, 2, v0")
    for g in range(16):
        a(f"ds_read_b32 v{8+g}, v7 offset:{256*g}")
        if g == 11: a("s_waitcnt lgkmcnt(4)")
    a("s_waitcnt lgkmcnt(0)")
    for g in range(1, 8):
        a(f"v_pk_add_f32 v[8:9], v[8:9], v[{8+2*g}:{9+2*g}]")
    a("v_add_f32 v8, v8, v9")
    a("v_cvt_pk_bf16_f32 v8, v8, v8", "v_lshlrev_b32 v8, 16, v8")
    a("v_ashrrev_i32 v9, 31, v44", "v_not_b32 v9, v9", "v_or_b32 v9, 0x80000000, v9", "v_xor_b32 v9, v44, v9", "v_and_b32 v9, 0xffff0000, v9")
    a(f"v_mul_f32 v9, {f32(-LOG2E)}, v9", "v_exp_f32 v9, v9", "v_add_f32 v9, 1.0, v9", "v_rcp_f32 v9, v9")
    a("v_cvt_pk_bf16_f32 v9, v9, v9", "v_lshlrev_b32 v9, 16, v9")
    a("v_mul_f32 v8, v8, v9", "v_cvt_pk_bf16_f32 v8, v8, v8", "v_lshlrev_b32 v8, 16, v8")
    a("s_waitcnt vmcnt(0)")
    a("v_lshlrev_b32 v48, 16, v48", "v_lshlrev_b32 v49, 16, v49", "v_lshlrev_b32 v50, 16, v50")
    a("v_add_f32 v8, v8, v48", "v_add_f32 v49, v49, v50", "v_cvt_pk_bf16_f32 v8, v8, v49")
    unpack(a, 10, 8)
    a("v_add_f32 v8, v10, v11", "v_cvt_pk_bf16_f32 v8, v8, v8")
    a("buffer_store_short v8, v46, s[28:31], 0 offen")
    a("K5_END1:")
    stamp_end(a, 6, 4)
    a("K5_END:")
    a("s_endpgm")
    return kdesc("k5_kernel", 52, 40)

def gen_k6(a, counts):
    header(a, "k6_kernel")
    a("s_cmp_ge_u32 s2, 1", "s_cbranch_scc1 K6_END")
    a("s_memrealtime s[44:45]")
    a("s_load_dwordx2 s[6:7], s[0:1], 128", "s_load_dwordx2 s[4:5], s[0:1], 120")
    a("s_waitcnt lgkmcnt(0)")
    if STAMP == 2: a(f"s_sub_u32 s4, s4, {512 * len(counts)}", "s_subb_u32 s5, s5, 0")
    for k, n in enumerate(counts):
        a("v_mov_b32 v10, -1", "v_mov_b32 v11, 0", "v_mov_b32 v12, 0")
        for it in range((n + 63) // 64):
            a(f"v_add_u32 v1, {64*it}, v0", f"v_min_u32 v1, {n-1}, v1", "v_lshlrev_b32 v1, 3, v1", f"v_add_u32 v1, {hex(WS_STAMP + k*0x100000)}, v1")
            a("global_load_dwordx2 v[2:3], v1, s[6:7]", "s_waitcnt vmcnt(0)")
            a("v_min_u32 v10, v10, v2", "v_max_u32 v11, v11, v2", "v_max_u32 v12, v12, v3")
        red64(a, "v_min_u32", 10, 13); red64(a, "v_max_u32", 11, 13); red64(a, "v_max_u32", 12, 13)
        if k == 0: a("v_mov_b32 v20, v10")
        a("v_sub_u32 v10, v10, v20", "v_sub_u32 v11, v11, v20", "v_sub_u32 v12, v12, v20")
        a(f"v_mov_b32 v1, {12*k}")
        a("s_mov_b64 exec, 1")
        a("global_store_dwordx3 v1, v[10:12], s[4:5]")
        a("s_mov_b64 exec, -1")
    a("v_sub_u32 v10, s44, v20", "v_mov_b32 v1, 60")
    a("s_mov_b64 exec, 1")
    a("global_store_dword v1, v10, s[4:5]")
    a("K6_END:")
    a("s_endpgm")
    return kdesc("k6_kernel", 32, 48)

def main():
    hdr = open(f"/code/{NAME}.s.ref").read().split("; Override launch geometry")[0]
    out = hdr
    out += f"; @launch kernel=k1_kernel grid=(832,1,1) block=(256,1,1) lds={K1_LDS}\n"
    out += f"; @launch kernel=k2_kernel grid=(576,1,1) block=(256,1,1) lds={K2_LDS}\n"
    out += f"; @launch kernel=k3_kernel grid=(256,1,1) block=(256,1,1) lds={K3_LDS}\n"
    out += f"; @launch kernel=k4_kernel grid=(144,1,1) block=(576,1,1) lds={K4_LDS}\n"
    out += f"; @launch kernel=k5_kernel grid=(72,1,1) block=(256,1,1) lds={K5_LDS}\n"
    if STAMP: out += "; @launch kernel=k6_kernel grid=(1,1,1) block=(64,1,1) lds=0\n"
    out += '.amdgcn_target "amdgcn-amd-amdhsa--gfx950"\n.text\n'
    descs = []
    gens = [gen_k1, gen_k2, gen_k3, gen_k4, gen_k5]
    if STAMP: gens.append(lambda a: gen_k6(a, [832*4, 576*4, 256*4, 144*9, 72*4]))
    for g in gens:
        a = Asm()
        descs.append(g(a))
        out += a.text()
    out += '.section .rodata,"a"\n'
    for d in descs:
        out += ".p2align 6\n" + d
    path = sys.argv[1] if len(sys.argv) > 1 else f"/code/{NAME}.s"
    open(path, "w").write(out)
    print("wrote", path, len(out))

if __name__ == "__main__":
    main()
```

```python
import sys, struct, math
sys.path.insert(0, "gen")
from asmlib import Asm

NAME = "sequential_preLN__ssm_conv_s4__moe_arch_mod__prompt"
L, D, N, F = 2048, 576, 128, 4608
XBYTES = L * D * 2
WS_UT = 0x000000
WS_KR = 0x300000
KR_STRIDE = 4112
WS_ZT = 0x600000
WS_X2 = 0x900000
WS_KEYS = 0xC00000
WS_KSC = 0xC10000
WS_IDX = 0xC20000
WS_PART = 0xD00000
WS_SIZE = 0x10000000

def f32(x): return "0x%08x" % struct.unpack("<I", struct.pack("<f", x))[0]
def f32v(x): return struct.unpack("<f", struct.pack("<f", x))[0]
LOG2E = math.log2(math.e)
LOG2E_HI = f32v(LOG2E); LOG2E_LO = LOG2E - LOG2E_HI
INV2PI = 1.0 / (2 * math.pi)
INV2PI_HI = f32v(INV2PI); INV2PI_LO = INV2PI - INV2PI_HI
DPPM = "row_mask:0xf bank_mask:0xf"

def srd(a, d, base, nbytes, off=0):
    if off:
        a(f"s_add_u32 s{d}, s{base}, {hex(off)}", f"s_addc_u32 s{d+1}, s{base+1}, 0")
    else:
        a(f"s_mov_b32 s{d}, s{base}", f"s_mov_b32 s{d+1}, s{base+1}")
    a(f"s_mov_b32 s{d+2}, {hex(nbytes)}", f"s_mov_b32 s{d+3}, 0x20000")

def red16(a, op, v):
    for r in (8, 4, 2, 1):
        a(f"{op}_dpp v{v}, v{v}, v{v} row_ror:{r} {DPPM}")
def red32(a, op, v, t):
    red16(a, op, v)
    a(f"v_mov_b32 v{t}, v{v}", f"v_permlane16_swap_b32 v{v}, v{t}", f"{op} v{v}, v{v}, v{t}")
def red64(a, op, v, t):
    red32(a, op, v, t)
    a(f"v_mov_b32 v{t}, v{v}", f"v_permlane32_swap_b32 v{v}, v{t}", f"{op} v{v}, v{v}, v{t}")

def header(a, label):
    a(f".globl {label}", ".p2align 8", f".type {label},@function", f"{label}:")

def kdesc(label, vgpr, sgpr=64):
    if STAMP: sgpr = max(sgpr, 48)
    acc = (vgpr + 3) // 4 * 4
    return f""".amdhsa_kernel {label}
  .amdhsa_next_free_vgpr {vgpr}
  .amdhsa_next_free_sgpr {sgpr}
  .amdhsa_accum_offset {acc}
  .amdhsa_group_segment_fixed_size 0
  .amdhsa_kernarg_size 136
  .amdhsa_user_sgpr_count 2
  .amdhsa_user_sgpr_kernarg_segment_ptr 1
  .amdhsa_system_sgpr_workgroup_id_x 1
  .amdhsa_float_denorm_mode_32 3
.end_amdhsa_kernel
"""

import os
STAMP = int(os.environ.get("STAMP", "0"))
WS_STAMP = 0x8000000
def stamp_begin(a, nw):
    if not STAMP: return
    a("s_memrealtime s[44:45]")
    a("v_readfirstlane_b32 s43, v0", "s_lshr_b32 s43, s43, 6", f"s_mul_i32 s42, s2, {nw}", "s_add_u32 s43, s43, s42", "s_lshl_b32 s43, s43, 3")
def stamp_end(a, ws, k):
    if not STAMP: return
    a("s_waitcnt vmcnt(0) lgkmcnt(0)")
    a("s_memrealtime s[46:47]")
    a(f"s_add_u32 s43, s43, {hex(WS_STAMP + k * 0x100000)}")
    a("s_mov_b64 exec, 1")
    a("s_waitcnt lgkmcnt(0)")
    a("v_mov_b32 v2, s44", "v_mov_b32 v3, s46", "v_mov_b32 v1, s43")
    a(f"global_store_dwordx2 v1, v[2:3], s[{ws}:{ws+1}]")

def ln_stats(a, X, m2, rinv2, t0, t1, t2):
    a(f"v_pk_add_f32 v[{t0}:{t0+1}], v[{X}:{X+1}], v[{X+2}:{X+3}]")
    a(f"v_pk_add_f32 v[{t1}:{t1+1}], v[{X+4}:{X+5}], v[{X+6}:{X+7}]")
    for j in range(4, 9):
        t = t0 if j % 2 == 0 else t1
        a(f"v_pk_add_f32 v[{t}:{t+1}], v[{t}:{t+1}], v[{X+2*j}:{X+2*j+1}]")
    a(f"v_pk_add_f32 v[{t0}:{t0+1}], v[{t0}:{t0+1}], v[{t1}:{t1+1}]")
    a(f"v_add_f32 v{t0}, v{t0}, v{t0+1}")
    red32(a, "v_add_f32", t0, t1)
    a(f"v_mul_f32 v{t2}, {f32(1.0/576)}, v{t0}")
    a(f"v_mov_b32 v{t2+1}, v{t2}")
    a(f"v_cvt_pk_bf16_f32 v{m2}, v{t2}, v{t2}")
    a(f"v_and_b32 v{m2}, 0xffff0000, v{m2}", f"v_mov_b32 v{m2+1}, v{m2}")
    first = {t0: True, t1: True}
    for j in range(9):
        t = t0 if j % 2 == 0 else t1
        a(f"v_pk_add_f32 v[{rinv2}:{rinv2+1}], v[{X+2*j}:{X+2*j+1}], v[{t2}:{t2+1}] neg_lo:[0,1] neg_hi:[0,1]")
        if first[t]:
            a(f"v_pk_mul_f32 v[{t}:{t+1}], v[{rinv2}:{rinv2+1}], v[{rinv2}:{rinv2+1}]"); first[t] = False
        else:
            a(f"v_pk_fma_f32 v[{t}:{t+1}], v[{rinv2}:{rinv2+1}], v[{rinv2}:{rinv2+1}], v[{t}:{t+1}]")
    a(f"v_pk_add_f32 v[{t0}:{t0+1}], v[{t0}:{t0+1}], v[{t1}:{t1+1}]")
    a(f"v_add_f32 v{t0}, v{t0}, v{t0+1}")
    red32(a, "v_add_f32", t0, t1)
    a(f"v_mul_f32 v{t0}, {f32(1.0/576)}, v{t0}")
    a(f"v_cvt_pk_bf16_f32 v{t0}, v{t0}, v{t0}", f"v_and_b32 v{t0}, 0xffff0000, v{t0}")
    a(f"v_add_f32 v{t0}, {f32(1e-5)}, v{t0}")
    a(f"v_cvt_pk_bf16_f32 v{t0}, v{t0}, v{t0}", f"v_and_b32 v{t0}, 0xffff0000, v{t0}")
    a(f"v_sqrt_f32 v{t0}, v{t0}")
    a(f"v_cvt_pk_bf16_f32 v{t0}, v{t0}, v{t0}", f"v_and_b32 v{t0}, 0xffff0000, v{t0}")
    a(f"v_rcp_f32 v{rinv2}, v{t0}")
    a(f"v_mov_b32 v{rinv2+1}, v{rinv2}")

def unpack(a, dst, src):
    a(f"v_lshlrev_b32 v{dst}, 16, v{src}", f"v_and_b32 v{dst+1}, 0xffff0000, v{src}")

def ln_apply_pair(a, x, m2, rinv2, t, P):
    a(f"v_pk_add_f32 v[{t}:{t+1}], v[{x}:{x+1}], v[{m2}:{m2+1}] neg_lo:[0,1] neg_hi:[0,1]")
    a(f"v_cvt_pk_bf16_f32 v{P}, v{t}, v{t+1}")
    unpack(a, t, P)
    a(f"v_pk_mul_f32 v[{t}:{t+1}], v[{t}:{t+1}], v[{rinv2}:{rinv2+1}]")
    a(f"v_cvt_pk_bf16_f32 v{P}, v{t}, v{t+1}")
    unpack(a, t, P)

KG_ROW = 544
KG_TILE = 16 * KG_ROW
KG_TAB = 4 * KG_TILE
K1_LDS = KG_TAB + 1536

def gen_k1(a):
    header(a, "k1_kernel")
    a("s_cmp_ge_u32 s2, 832", "s_cbranch_scc1 K1_END")
    stamp_begin(a, 4)
    a("s_cmp_ge_u32 s2, 256", "s_cbranch_scc1 K1_KGEN")
    a("s_load_dwordx2 s[4:5], s[0:1], 0", "s_load_dwordx2 s[6:7], s[0:1], 128")
    a("v_lshrrev_b32 v1, 5, v0", "v_and_b32 v2, 31, v0")
    a("v_mul_u32_u24 v3, 1152, v1", "v_lshl_add_u32 v3, v2, 2, v3")
    a("s_mul_i32 s3, s2, 9216")
    a("s_waitcnt lgkmcnt(0)")
    srd(a, 8, 4, XBYTES)
    srd(a, 12, 6, XBYTES, WS_UT)
    for j in range(9):
        a(f"buffer_load_dword v{10+j}, v3, s[8:11], s3 offen offset:{128*j}")
    a("v_lshrrev_b32 v4, 6, v0", "v_mul_u32_u24 v4, 2304, v4", "v_lshl_add_u32 v4, v2, 3, v4")
    a("v_and_b32 v5, 1, v1", "v_lshl_add_u32 v4, v5, 2, v4")
    a("v_mul_u32_u24 v5, 0x020202, v5", f"v_lshlrev_b32 v6, 25, v1", "v_and_b32 v6, 0x02000000, v6")
    a("v_or_b32 v5, v5, v6", "v_add_u32 v5, 0x05040100, v5")
    X = 20
    for j in range(9):
        a(f"s_waitcnt vmcnt({8-j})")
        unpack(a, X + 2 * j, 10 + j)
    ln_stats(a, X, 40, 42, 44, 46, 48)
    for j in range(9):
        ln_apply_pair(a, X + 2 * j, 40, 42, 44, 46)
        a("v_cvt_pk_f16_f32 v46, v44, v45", "v_mov_b32 v47, v46", "v_permlane32_swap_b32 v46, v47")
        a(f"v_perm_b32 v{10+j}, v47, v46, v5")
        a(f"ds_write_b32 v4, v{10+j} offset:{256*j}")
    a("s_waitcnt lgkmcnt(0)", "s_barrier")
    a("v_lshlrev_b32 v6, 2, v0", "v_lshlrev_b32 v7, 4, v0")
    a("v_readfirstlane_b32 s16, v0")
    for k in range(2):
        a(f"ds_read2st64_b32 v[{20+4*k}:{21+4*k}], v6 offset0:{4*k} offset1:{9+4*k}")
        a(f"ds_read2st64_b32 v[{22+4*k}:{23+4*k}], v6 offset0:{18+4*k} offset1:{27+4*k}")
    a("s_cmp_ge_u32 s16, 64", "s_cbranch_scc1 K1_LN_SKIP")
    a(f"ds_read2st64_b32 v[28:29], v6 offset0:8 offset1:17")
    a(f"ds_read2st64_b32 v[30:31], v6 offset0:26 offset1:35")
    a("s_add_u32 s17, s3, 8192")
    a("s_waitcnt lgkmcnt(0)")
    a("buffer_store_dwordx4 v[28:31], v7, s[12:15], s17 offen")
    a("K1_LN_SKIP:")
    a("s_add_u32 s17, s3, 4096")
    a("s_waitcnt lgkmcnt(0)")
    a("buffer_store_dwordx4 v[20:23], v7, s[12:15], s3 offen")
    a("buffer_store_dwordx4 v[24:27], v7, s[12:15], s17 offen")
    stamp_end(a, 6, 0)
    a("s_endpgm")

    a("K1_KGEN:")
    a("s_load_dwordx16 s[16:31], s[0:1], 0", "s_load_dwordx2 s[6:7], s[0:1], 128")
    a("s_sub_u32 s3, s2, 256", "s_and_b32 s4, s3, 7", "s_mul_i32 s4, s4, 72", "s_lshr_b32 s3, s3, 3", "s_add_u32 s3, s3, s4")
    a("v_and_b32 v1, 63, v0")
    a("s_lshl_b32 s4, s3, 8", "v_lshl_add_u32 v2, v1, 2, s4")
    a("s_lshl_b32 s4, s3, 1", "v_mov_b32 v3, s4")
    a("v_readfirstlane_b32 s5, v0", "s_lshr_b32 s5, s5, 6")
    a("s_waitcnt lgkmcnt(0)")
    a("global_load_ushort v16, v3, s[30:31]")
    for k in range(6):
        a(f"global_load_dword v{10+k}, v2, s[{18+2*k}:{19+2*k}]")
    srd(a, 8, 6, 576 * KR_STRIDE, WS_KR)
    srd(a, 12, 6, 576 * 4, WS_KSC)
    a("v_lshlrev_b32 v4, 3, v0", "v_sub_u32 v4, 2047, v4")
    for jj in range(0, 8, 2):
        a(f"v_subrev_u32 v5, {jj}, v4", f"v_subrev_u32 v6, {jj+1}, v4")
        a("v_cvt_f32_u32 v7, v5", "v_cvt_f32_u32 v8, v6", "v_cvt_pk_bf16_f32 v7, v7, v8")
        a("v_and_b32 v8, 0xffff, v7", "v_lshrrev_b32 v7, 16, v7")
        a("v_subrev_u32 v8, 0x4280, v8", "v_subrev_u32 v7, 0x4280, v7")
        a("v_cmp_gt_u32 vcc, 128, v5", "v_cndmask_b32 v8, v8, v5, vcc")
        a("v_cmp_gt_u32 vcc, 128, v6", "v_cndmask_b32 v7, v7, v6, vcc")
        a(f"v_lshlrev_b32 v{100+jj}, 1, v8", f"v_lshlrev_b32 v{101+jj}, 1, v7")
    a("s_waitcnt vmcnt(6)")
    a("v_lshlrev_b32 v16, 16, v16")
    a(f"v_mul_f32 v17, {f32(LOG2E_HI)}, v16")
    a(f"s_mov_b32 s32, {f32(LOG2E_HI)}", f"s_mov_b32 s33, {f32(LOG2E_LO)}")
    a("v_fma_f32 v18, v16, s32, -v17", "v_fma_f32 v18, v16, s33, v18")
    a("v_exp_f32 v17, v17")
    a(f"v_mul_f32 v18, {f32(math.log(2.0))}, v18")
    a("v_fma_f32 v17, v17, v18, v17")
    a("v_cvt_pk_bf16_f32 v17, v17, v17", "v_and_b32 v16, 0xffff0000, v17", "v_mov_b32 v17, v16")
    a("s_waitcnt vmcnt(0)")
    for k in range(6): unpack(a, 20 + 2 * k, 10 + k)
    for k in range(4):
        a(f"v_pk_mul_f32 v[{20+2*k}:{21+2*k}], v[{20+2*k}:{21+2*k}], v[16:17]")
    def cmul(dr, di, ar, ai, br, bi, t):
        a(f"v_pk_mul_f32 v[{t}:{t+1}], v[{ai}:{ai+1}], v[{bi}:{bi+1}]")
        a(f"v_pk_mul_f32 v[{t+2}:{t+3}], v[{ai}:{ai+1}], v[{br}:{br+1}]")
        a(f"v_pk_fma_f32 v[{di}:{di+1}], v[{ar}:{ar+1}], v[{bi}:{bi+1}], v[{t+2}:{t+3}]") if di not in (ar, br, bi) else None
        assert di not in (ar, br, bi)
        a(f"v_pk_fma_f32 v[{dr}:{dr+1}], v[{ar}:{ar+1}], v[{br}:{br+1}], v[{t}:{t+1}] neg_lo:[0,0,1] neg_hi:[0,0,1]")
    T = 90
    CBR, CBI = 32, 34
    cmul(CBR, CBI, 28, 30, 24, 26, T)
    a("v_max_f32 v36, v20, v21")
    red64(a, "v_max_f32", 36, 38)
    a(f"v_add_f32 v37, abs(v{CBR}), abs(v{CBR+1})", f"v_add_f32 v38, abs(v{CBI}), abs(v{CBI+1})", "v_add_f32 v37, v37, v38")
    red64(a, "v_add_f32", 37, 38)
    a(f"v_max_f32 v37, {f32(1e-36)}, v37")
    a("v_rcp_f32 v38, v37")
    a(f"v_mul_f32 v38, {f32(32768.0)}, v38", "v_mov_b32 v39, v38")
    a(f"v_pk_mul_f32 v[{CBR}:{CBR+1}], v[{CBR}:{CBR+1}], v[38:39]", f"v_pk_mul_f32 v[{CBI}:{CBI+1}], v[{CBI}:{CBI+1}], v[38:39]")
    a("v_sub_f32 v20, v20, v36", "v_sub_f32 v21, v21, v36")
    a(f"v_mul_f32 v20, {f32(LOG2E)}, v20", f"v_mul_f32 v21, {f32(LOG2E)}, v21", f"v_mul_f32 v36, {f32(LOG2E)}, v36")
    a(f"s_mov_b32 s32, {f32(INV2PI_HI)}", f"s_mov_b32 s33, {f32(INV2PI_LO)}")
    def anchor(dr, di, l, conj=False):
        for e in range(2):
            a(f"v_mul_f32 v{T}, {f32(float(l))}, v{20+e}")
            a(f"v_mul_f32 v{T+1}, {f32(float(l))}, v{22+e}")
            a(f"v_exp_f32 v{T}, v{T}")
            a(f"v_mul_f32 v{T+2}, s32, v{T+1}", f"v_rndne_f32 v{T+2}, v{T+2}")
            a(f"v_fma_f32 v{T+2}, v{T+1}, s32, -v{T+2}", f"v_fma_f32 v{T+2}, v{T+1}, s33, v{T+2}")
            a(f"v_cos_f32 v{T+1}, v{T+2}", f"v_sin_f32 v{T+2}, v{T+2}")
            a(f"v_mul_f32 v{dr+e}, v{T}, v{T+1}")
            a(f"v_mul_f32 v{di+e}, v{T}, {'-' if conj else ''}v{T+2}")
    a(f"s_mul_i32 s4, s5, {KG_TILE}", "v_lshl_add_u32 v4, v1, 3, s4")
    def emit(row, vr, vi):
        a(f"v_cvt_pk_f16_f32 v{T+4}, v{vr}, v{vi}", f"v_cvt_pk_f16_f32 v{T+5}, v{vr+1}, v{vi+1}")
        a(f"ds_write_b64 v4, v[{T+4}:{T+5}] offset:{row*KG_ROW}")
    a("v_and_b32 v5, 15, v1", "v_lshrrev_b32 v6, 4, v1", "v_lshlrev_b32 v7, 3, v5")
    G1, G2, G3 = 40, 44, 48
    VA, VB, VC = 52, 56, 60
    a("s_cmp_eq_u32 s5, 1", "s_cbranch_scc1 K1_J1")
    a("s_cmp_eq_u32 s5, 2", "s_cbranch_scc1 K1_J2")
    a("s_cmp_eq_u32 s5, 3", "s_cbranch_scc1 K1_J3")
    anchor(G1, G1 + 2, 1); anchor(G2, G2 + 2, 128)
    cur = (CBR, CBI)
    for c in range(8):
        emit(c, cur[0], cur[1])
        cmul(VC, VC + 2, cur[0], cur[1], G2, G2 + 2, T); emit(8 + c, VC, VC + 2)
        if c < 7:
            nx = VA if cur[0] != VA else VB
            cmul(nx, nx + 2, cur[0], cur[1], G1, G1 + 2, T); cur = (nx, nx + 2)
    a("v_lshrrev_b32 v8, 1, v6", "v_lshl_add_u32 v7, v8, 7, v7", "v_and_b32 v8, 1, v6", "v_lshl_add_u32 v7, v8, 2, v7")
    a("v_mov_b32 v8, 1", "v_mov_b32 v9, 2")
    a("s_branch K1_JOIN")
    a("K1_J1:")
    anchor(G1, G1 + 2, 2); anchor(G2, G2 + 2, 128); anchor(G3, G3 + 2, 256)
    cmul(VA, VA + 2, CBR, CBI, G3, G3 + 2, T); cur = (VA, VA + 2)
    cmul(64, 66, VA, VA + 2, G3, G3 + 2, T)
    for c in range(4):
        emit(c, cur[0], cur[1])
        cmul(VC, VC + 2, cur[0], cur[1], G2, G2 + 2, T); emit(4 + c, VC, VC + 2)
        if c < 3:
            nx = VA if cur[0] != VA else VB
            cmul(nx, nx + 2, cur[0], cur[1], G1, G1 + 2, T); cur = (nx, nx + 2)
    cmul(G3, G3 + 2, G1, G1 + 2, G1, G1 + 2, T)
    cur = (64, 66)
    for aa in range(4):
        emit(8 + 2 * aa, cur[0], cur[1])
        cmul(VC, VC + 2, cur[0], cur[1], G3, G3 + 2, T); emit(9 + 2 * aa, VC, VC + 2)
        if aa < 3:
            nx = VA if cur[0] != VA else VB
            cmul(nx, nx + 2, cur[0], cur[1], G2, G2 + 2, T); cur = (nx, nx + 2)
    a("v_lshl_add_u32 v8, v6, 7, v7", "v_add_u32 v8, 256, v8", "v_lshl_add_u32 v7, v6, 8, v7")
    a("v_cmp_gt_u32 vcc, 2, v6", "v_cndmask_b32 v7, v7, v8, vcc")
    a("v_mov_b32 v8, 4", "v_mov_b32 v9, 0x80", "v_cndmask_b32 v8, v8, 2, vcc", "v_cndmask_b32 v9, v9, 4, vcc")
    a("s_branch K1_JOIN")
    a("K1_J2:")
    anchor(G2, G2 + 2, 128); anchor(G3, G3 + 2, 1024)
    cmul(VA, VA + 2, CBR, CBI, G3, G3 + 2, T); cur = (VA, VA + 2)
    for r in range(9):
        emit(r, cur[0], cur[1])
        if r < 8:
            nx = VA if cur[0] != VA else VB
            cmul(nx, nx + 2, cur[0], cur[1], G2, G2 + 2, T); cur = (nx, nx + 2)
    a("v_lshl_add_u32 v7, v6, 9, v7", "v_add_u32 v7, 0x400, v7", "v_mov_b32 v8, 0x80", "v_mov_b32 v9, 0x100")
    a("s_branch K1_JOIN")
    a("K1_J3:")
    anchor(G1, G1 + 2, 8, conj=True)
    a(f"v_mov_b32 v{VA}, {f32(32768.0)}", f"v_mov_b32 v{VA+1}, {f32(32768.0)}", f"v_mov_b32 v{VA+2}, 0", f"v_mov_b32 v{VA+3}, 0")
    cur = (VA, VA + 2)
    for b in range(16):
        emit(b, cur[0], cur[1])
        if b < 15:
            nx = VA if cur[0] != VA else VB
            cmul(nx, nx + 2, cur[0], cur[1], G1, G1 + 2, T); cur = (nx, nx + 2)
    a(f"v_mul_f32 v40, {f32(2048.0)}, v36", "v_max_f32 v40, 0, v40", "v_exp_f32 v40, v40")
    a(f"v_mul_f32 v41, {f32(1.0/32768.0)}, v37", "v_mul_f32 v40, v40, v41")
    a("s_lshl_b32 s4, s3, 2", "v_mov_b32 v41, s4")
    a(f"s_mul_i32 s4, s3, {KR_STRIDE}", "s_add_u32 s4, s4, 4096", "v_mov_b32 v42, s4")
    a("v_mov_b32 v44, 0", "v_mov_b32 v45, 0", "v_mov_b32 v46, 0", "v_mov_b32 v47, 0")
    a("s_mov_b64 s[34:35], exec", "s_mov_b64 exec, 1")
    a("buffer_store_dword v40, v41, s[12:15], 0 offen")
    a("buffer_store_dwordx4 v[44:47], v42, s[8:11], 0 offen")
    a("s_mov_b64 exec, s[34:35]")
    a("K1_JOIN:")
    a.flush(4)
    a("s_waitcnt lgkmcnt(0)", "s_barrier")
    a("s_cmp_eq_u32 s5, 3", "s_cbranch_scc1 K1_EXPAND")
    a(f"v_mul_u32_u24 v10, {KG_ROW}, v5", "v_lshl_add_u32 v10, v6, 4, v10")
    a(f"s_mul_i32 s4, s5, {KG_TILE}", "v_add_u32 v11, s4, v10")
    for s in range(8):
        a(f"ds_read_b128 v[{40+4*s}:{43+4*s}], v11 offset:{64*s}")
        a(f"ds_read_b128 v[{72+4*(s%4)}:{75+4*(s%4)}], v10 offset:{3*KG_TILE+64*s}") if s < 4 else None
    a("v_mov_b32 v12, 0", "v_mov_b32 v13, 0", "v_mov_b32 v14, 0", "v_mov_b32 v15, 0")
    for s in range(4, 8):
        a(f"ds_read_b128 v[{20+4*(s-4)}:{23+4*(s-4)}], v10 offset:{3*KG_TILE+64*s}")
    a("s_waitcnt lgkmcnt(0)")
    for s in range(8):
        B = 72 + 4 * s if s < 4 else 20 + 4 * (s - 4)
        a(f"v_mfma_f32_16x16x32_f16 v[12:15], v[{40+4*s}:{43+4*s}], v[{B}:{B+3}], v[12:15]")
    a(f"v_mul_f32 v40, {f32(2048.0)}, v36", "v_max_f32 v40, 0, v40", f"v_add_f32 v40, {f32(15.0)}, v40")
    a("v_mov_b32 v41, v7", "v_add_u32 v42, v7, v8", "v_add_u32 v43, v7, v9", "v_add_u32 v44, v42, v9")
    for r in range(4):
        a(f"v_cvt_f32_u32 v45, v{41+r}")
        a("v_fma_f32 v46, v45, v36, -v40", "v_exp_f32 v46, v46")
        a("v_lshrrev_b32 v45, 16, v45", "v_subrev_u32 v45, 0x4280, v45")
        a(f"v_cmp_gt_u32 vcc, 128, v{41+r}", f"v_cndmask_b32 v45, v45, v{41+r}, vcc")
        a(f"v_cmp_lt_u32 vcc, 0x800, v{41+r}", "v_mov_b32 v47, 0x2f0", "v_cndmask_b32 v45, v45, v47, vcc")
        a(f"v_mul_f32 v46, v46, v{12+r}", "v_cvt_f16_f32 v46, v46")
        a("v_lshlrev_b32 v45, 1, v45")
        a(f"ds_write_b16 v45, v46 offset:{KG_TAB}")
    a("K1_EXPAND:")
    a.flush(4)
    a("s_waitcnt lgkmcnt(0)", "s_barrier")
    for jj in range(8):
        a(f"ds_read_u16 v{48+jj}, v{100+jj} offset:{KG_TAB}")
    a(f"s_mul_i32 s4, s3, {KR_STRIDE}", "v_lshlrev_b32 v44, 4, v0")
    a("s_waitcnt lgkmcnt(0)")
    for k in range(4):
        a(f"v_lshl_or_b32 v{40+k}, v{49+2*k}, 16, v{48+2*k}")
    a("buffer_store_dwordx4 v[40:43], v44, s[8:11], s4 offen")
    stamp_end(a, 6, 0)
    a("K1_END:")
    a("s_endpgm")
    return kdesc("k1_kernel", 108, 40)

KC_STRIDE = 4640
K2_U = 4 * KC_STRIDE
K2_RED = K2_U + 4224
K2_LDS = K2_RED + 24576

def gen_k2(a):
    header(a, "k2_kernel")
    a("s_cmp_ge_u32 s2, 576", "s_cbranch_scc1 K2_END")
    stamp_begin(a, 4)
    a("s_load_dwordx2 s[6:7], s[0:1], 128", "s_load_dwordx2 s[4:5], s[0:1], 64")
    a("s_and_b32 s16, s2, 7", "s_mul_i32 s16, s16, 72", "s_lshr_b32 s3, s2, 3", "s_add_u32 s3, s3, s16")
    a("v_readfirstlane_b32 s17, v0", "s_lshr_b32 s17, s17, 6")
    a("v_mul_u32_u24 v1, 9216, v0")
    a("v_lshlrev_b32 v2, 4, v0")
    a("s_lshl_b32 s18, s3, 4", f"s_mul_i32 s19, s3, {KR_STRIDE}")
    a("s_waitcnt lgkmcnt(0)")
    srd(a, 8, 6, XBYTES, WS_UT)
    srd(a, 12, 6, 576 * KR_STRIDE, WS_KR)
    a("buffer_load_dwordx4 v[4:7], v2, s[12:15], s19 offen")
    a("buffer_load_dwordx2 v[8:9], v2, s[12:15], s19 offen offset:16")
    a("buffer_load_dwordx4 v[12:15], v1, s[8:11], s18 offen")
    a("s_lshl_b32 s20, s3, 2", f"s_add_u32 s20, s20, {hex(WS_KSC)}", "s_add_u32 s20, s6, s20", "s_addc_u32 s21, s7, 0")
    a("s_load_dword s24, s[20:21], 0")
    a("s_lshr_b32 s20, s3, 1", "s_lshl_b32 s20, s20, 2", "s_add_u32 s20, s4, s20", "s_addc_u32 s21, s5, 0")
    a("s_load_dword s25, s[20:21], 0")
    srd(a, 28, 6, XBYTES, WS_ZT)
    a("v_mov_b32 v16, 0", "v_mov_b32 v17, 0", "v_mov_b32 v18, 0", "v_mov_b32 v19, 0")
    a("v_lshrrev_b32 v3, 5, v0", "v_and_b32 v10, 31, v0")
    a(f"v_mul_u32_u24 v11, {KC_STRIDE}, v3", "v_lshl_add_u32 v11, v10, 4, v11", "v_add_u32 v11, 4096, v11")
    a("v_cmp_gt_u32 vcc, 4, v3", "v_cmp_gt_u32 s[22:23], 24, v10", "s_and_b64 vcc, vcc, s[22:23]")
    a("s_and_saveexec_b64 s[22:23], vcc")
    a("ds_write_b128 v11, v[16:19]")
    a("s_mov_b64 exec, s[22:23]")
    a("v_cmp_gt_u32 vcc, 8, v0", "s_and_saveexec_b64 s[22:23], vcc")
    a(f"ds_write_b128 v2, v[16:19] offset:{K2_U}")
    a("s_mov_b64 exec, s[22:23]")
    a("v_and_b32 v3, 63, v0", "v_and_b32 v10, 15, v3", "v_lshrrev_b32 v11, 4, v3")
    a("v_and_b32 v16, 3, v10", f"v_mul_u32_u24 v16, {KC_STRIDE}, v16", "v_lshrrev_b32 v17, 2, v10", "v_lshlrev_b32 v17, 7, v17")
    a("v_sub_u32 v16, v16, v17", "v_lshl_add_u32 v16, v11, 4, v16")
    a("s_lshl_b32 s20, s17, 7", "s_sub_u32 s20, 384, s20")
    a("s_add_u32 s21, s20, 384", "v_add_u32 v16, s21, v16")
    a("v_lshlrev_b32 v17, 3, v10", "v_lshl_add_u32 v17, v11, 4, v17")
    a(f"s_add_u32 s21, s20, {K2_U + 8}", "v_add_u32 v17, s21, v17")
    a("s_waitcnt vmcnt(1)")
    for k in range(5):
        a(f"v_alignbit_b32 v{20+k}, v{5+k}, v{4+k}, 16")
    a(f"ds_write_b128 v2, v[4:7] offset:{3*KC_STRIDE}")
    a(f"ds_write_b128 v2, v[20:23] offset:{2*KC_STRIDE}")
    a("v_mov_b32 v26, v5", "v_mov_b32 v27, v6", "v_mov_b32 v28, v7", "v_mov_b32 v29, v8")
    a("v_mov_b32 v30, v21", "v_mov_b32 v31, v22", "v_mov_b32 v32, v23", "v_mov_b32 v33, v24")
    a(f"ds_write_b128 v2, v[26:29] offset:{1*KC_STRIDE}")
    a(f"ds_write_b128 v2, v[30:33] offset:0")
    a("s_waitcnt vmcnt(0)")
    a(f"ds_write_b128 v2, v[12:15] offset:{K2_U + 128}")
    ACC = 20
    AF = 52
    BF = 84
    a("s_waitcnt lgkmcnt(0)", "s_barrier")
    for i in range(32): a(f"v_mov_b32 v{ACC+i}, 0")
    DEPTH = 4
    def load(g):
        res, k = divmod(g, 8)
        i = 7 - k
        roff = 64 if res == 0 else 0
        a(f"ds_read_b128 v[{AF+4*i}:{AF+4*i+3}], v16 offset:{512*(7-i) + roff}")
        b = BF + 32 * res + 4 * k
        a(f"ds_read_b64 v[{b}:{b+1}], v17 offset:{512*k + roff}")
        a(f"ds_read_b64 v[{b+2}:{b+3}], v17 offset:{512*k + roff + 8}")
    for g in range(DEPTH): load(g)
    for g in range(16):
        res, k = divmod(g, 8)
        i = 7 - k
        issued = min(16, g + DEPTH)
        a(f"s_waitcnt lgkmcnt({3*(issued - g - 1)})")
        for ip in range(0, 8 - i):
            j = i + ip
            b = BF + 32 * res + 4 * ip
            a(f"v_mfma_f32_16x16x32_f16 v[{ACC+4*j}:{ACC+4*j+3}], v[{AF+4*i}:{AF+4*i+3}], v[{b}:{b+3}], v[{ACC+4*j}:{ACC+4*j+3}]")
            if ip == 0 and g + DEPTH < 16: load(g + DEPTH)
    a("v_lshlrev_b32 v4, 4, v3")
    a.flush(10)
    for w in range(4):
        a(f"s_cmp_eq_u32 s17, {w}", f"s_cbranch_scc0 K2_R{w}")
        for o in range(4):
            if o == w: continue
            rank = (w - o - 1) & 3
            for t in range(2):
                j = 2 * o + t
                a(f"ds_write_b128 v4, v[{ACC+4*j}:{ACC+4*j+3}] offset:{K2_RED + ((o*3 + rank)*2 + t)*1024}")
        for t in range(2):
            for r in range(4): a(f"v_mov_b32 v{52+4*t+r}, v{ACC+4*(2*w+t)+r}")
        a(f"K2_R{w}:")
    a.flush(8)
    a("s_waitcnt lgkmcnt(0)", "s_barrier")
    a("s_mul_i32 s20, s17, 6144", "v_add_u32 v4, s20, v4")
    for rank in range(3):
        for t in range(2):
            a(f"ds_read_b128 v[{60+8*rank+4*t}:{63+8*rank+4*t}], v4 offset:{K2_RED + (rank*2+t)*1024}")
    a("s_lshl_b32 s20, s17, 10", "v_lshl_add_u32 v5, v3, 3, s20")
    for t in range(2):
        a(f"ds_read_b64 v[{84+2*t}:{85+2*t}], v5 offset:{K2_U + 128 + 512*t}")
    a("s_waitcnt lgkmcnt(0)")
    a("s_lshl_b32 s26, s25, 16", "s_and_b32 s27, s25, 0xffff0000", "s_bitcmp1_b32 s3, 0", "s_cselect_b32 s25, s27, s26")
    for rank in range(3):
        for p in range(4):
            a(f"v_pk_add_f32 v[{52+2*p}:{53+2*p}], v[{52+2*p}:{53+2*p}], v[{60+8*rank+2*p}:{61+8*rank+2*p}]")
    for t in range(2):
        for p in range(2):
            y = 52 + 4 * t + 2 * p
            u = 84 + 2 * t + p
            a(f"v_mul_f32 v{y}, s24, v{y}", f"v_mul_f32 v{y+1}, s24, v{y+1}")
            a(f"v_cvt_pk_bf16_f32 v6, v{y}, v{y+1}")
            unpack(a, y, 6)
            a(f"v_cvt_f32_f16 v8, v{u}", f"v_cvt_f32_f16_sdwa v9, v{u} dst_sel:DWORD dst_unused:UNUSED_PAD src0_sel:WORD_1")
            a("v_mul_f32 v8, s25, v8", "v_mul_f32 v9, s25, v9")
            a("v_cvt_pk_bf16_f32 v6, v8, v9")
            unpack(a, 8, 6)
            a(f"v_pk_add_f32 v[8:9], v[8:9], v[{y}:{y+1}]")
            a(f"v_cvt_pk_bf16_f32 v{88+2*t+p}, v8, v9")
    a("s_lshl_b32 s20, s3, 12")
    a("buffer_store_dwordx2 v[88:89], v5, s[28:31], s20 offen")
    a("buffer_store_dwordx2 v[90:91], v5, s[28:31], s20 offen offset:512")
    stamp_end(a, 6, 1)
    a("K2_END:")
    a("s_endpgm")
    return kdesc("k2_kernel", 148, 40)

K3_LDS = 9216
def gen_k3(a):
    header(a, "k3_kernel")
    a("s_cmp_ge_u32 s2, 256", "s_cbranch_scc1 K3_END")
    stamp_begin(a, 4)
    a("s_load_dwordx2 s[4:5], s[0:1], 0", "s_load_dwordx2 s[6:7], s[0:1], 128")
    a("s_load_dwordx2 s[32:33], s[0:1], 80", "s_load_dwordx2 s[34:35], s[0:1], 112")
    a("s_and_b32 s16, s2, 7", "s_lshl_b32 s16, s16, 5", "s_lshr_b32 s3, s2, 3", "s_add_u32 s16, s3, s16")
    a("s_mul_i32 s3, s16, 9216", "s_lshl_b32 s17, s16, 4")
    a("v_lshrrev_b32 v1, 5, v0", "v_and_b32 v2, 31, v0")
    a("v_mul_u32_u24 v3, 1152, v1", "v_lshl_add_u32 v3, v2, 2, v3")
    a("v_lshlrev_b32 v6, 12, v0", "v_lshlrev_b32 v7, 2, v2")
    a("v_readfirstlane_b32 s18, v0")
    a("s_waitcnt lgkmcnt(0)")
    srd(a, 8, 4, XBYTES)
    srd(a, 12, 6, XBYTES, WS_ZT)
    srd(a, 20, 32, 1152)
    a("s_add_u32 s19, s17, 0x100000")
    a("buffer_load_dwordx4 v[60:63], v6, s[12:15], s17 offen")
    a("buffer_load_dwordx4 v[64:67], v6, s[12:15], s19 offen")
    a("s_add_u32 s19, s17, 0x200000")
    a("buffer_load_dwordx4 v[68:71], v6, s[12:15], s19 offen")
    for j in range(9):
        a(f"buffer_load_dword v{10+j}, v3, s[8:11], s3 offen offset:{128*j}")
    for j in range(9):
        a(f"buffer_load_dword v{50+j}, v7, s[20:23], 0 offen offset:{128*j}")
    srd(a, 24, 34, XBYTES)
    srd(a, 28, 6, XBYTES, WS_X2)
    srd(a, 36, 6, 8192, WS_KEYS)
    a("v_lshrrev_b32 v4, 6, v0", "v_mul_u32_u24 v4, 2304, v4", "v_lshl_add_u32 v4, v2, 3, v4")
    a("v_and_b32 v5, 1, v1")
    a("v_mul_u32_u24 v5, 0x020202, v5", f"v_lshlrev_b32 v8, 25, v1", "v_and_b32 v8, 0x02000000, v8")
    a("v_or_b32 v5, v5, v8", "v_add_u32 v5, 0x05040100, v5")
    a("v_lshlrev_b32 v8, 2, v0")
    a("s_waitcnt vmcnt(19)")
    for k in range(2):
        a(f"ds_write2st64_b32 v8, v{60+4*k}, v{61+4*k} offset0:{4*k} offset1:{9+4*k}")
        a(f"ds_write2st64_b32 v8, v{62+4*k}, v{63+4*k} offset0:{18+4*k} offset1:{27+4*k}")
    a("s_waitcnt vmcnt(18)")
    a("s_cmp_ge_u32 s18, 64", "s_cbranch_scc1 K3_SKIP")
    a("ds_write2st64_b32 v8, v68, v69 offset0:8 offset1:17")
    a("ds_write2st64_b32 v8, v70, v71 offset0:26 offset1:35")
    a("K3_SKIP:")
    a("s_waitcnt lgkmcnt(0)", "s_barrier")
    for j in range(9):
        a(f"ds_read_b64 v[{60+2*j}:{61+2*j}], v4 offset:{256*j}")
    X = 20
    a("s_waitcnt vmcnt(9)")
    for j in range(9):
        a(f"s_waitcnt lgkmcnt({8-j})")
        a(f"v_perm_b32 v44, v{61+2*j}, v{60+2*j}, v5")
        unpack(a, 46, 44)
        unpack(a, X + 2 * j, 10 + j)
        a(f"v_pk_add_f32 v[46:47], v[46:47], v[{X+2*j}:{X+2*j+1}]")
        a(f"v_cvt_pk_bf16_f32 v44, v46, v47")
        unpack(a, X + 2 * j, 44)
    ln_stats(a, X, 40, 42, 44, 46, 48)
    a("s_waitcnt vmcnt(0)")
    a("v_mov_b32 v60, 0", "v_mov_b32 v61, 0")
    for j in range(9):
        ln_apply_pair(a, X + 2 * j, 40, 42, 44, 10 + j)
        a(f"buffer_store_dword v{10+j}, v3, s[28:31], s3 offen offset:{128*j}")
        unpack(a, 46, 50 + j)
        a("v_pk_fma_f32 v[60:61], v[44:45], v[46:47], v[60:61]")
        a(f"v_pk_add_f32 v[44:45], v[44:45], v[{X+2*j}:{X+2*j+1}]")
        a(f"v_cvt_pk_bf16_f32 v{50+j}, v44, v45")
        a(f"buffer_store_dword v{50+j}, v3, s[24:27], s3 offen offset:{128*j}")
    a("v_add_f32 v60, v60, v61")
    red32(a, "v_add_f32", 60, 61)
    a("v_cvt_pk_bf16_f32 v60, v60, v60")
    a("v_ashrrev_i32 v61, 31, v60", "v_or_b32 v61, 0x80000000, v61", "v_xor_b32 v60, v60, v61", "v_and_b32 v60, 0xffff0000, v60")
    a("s_lshl_b32 s19, s16, 3", "v_add_u32 v61, s19, v1", "v_sub_u32 v62, 2047, v61", "v_or_b32 v60, v60, v62", "v_lshlrev_b32 v61, 2, v61")
    a("v_cmp_eq_u32 vcc, 0, v2", "s_and_saveexec_b64 s[40:41], vcc")
    a("buffer_store_dword v60, v61, s[36:39], 0 offen")
    stamp_end(a, 6, 2)
    a("K3_END:")
    a("s_endpgm")
    return kdesc("k3_kernel", 80, 48)

K4_CAND = 0
K4_SEL = 256
K4_RED = 512
K4_ACT = K4_RED + 18432
K4_LDS = K4_ACT + 1024

def wave_max_to_s(a, v, t, s):
    a(f"v_mov_b32 v{t}, v{v}")
    for sh in (1, 2, 4, 8):
        a(f"v_max_u32_dpp v{t}, v{t}, v{t} row_shr:{sh} {DPPM}")
    a(f"v_max_u32_dpp v{t}, v{t}, v{t} row_bcast:15 row_mask:0xa bank_mask:0xf")
    a(f"v_max_u32_dpp v{t}, v{t}, v{t} row_bcast:31 row_mask:0xc bank_mask:0xf")
    a(f"v_readlane_b32 s{s}, v{t}, 63")

def gen_k4(a):
    header(a, "k4_kernel")
    a("s_cmp_ge_u32 s2, 144", "s_cbranch_scc1 K4_END")
    stamp_begin(a, 9)
    a("s_load_dwordx4 s[4:7], s[0:1], 88", "s_load_dwordx2 s[32:33], s[0:1], 104", "s_load_dwordx2 s[34:35], s[0:1], 128")
    a("v_readfirstlane_b32 s17, v0", "s_lshr_b32 s17, s17, 6")
    a("v_and_b32 v1, 63, v0", "v_and_b32 v2, 15, v1", "v_lshrrev_b32 v3, 4, v1")
    a("s_waitcnt lgkmcnt(0)")
    srd(a, 36, 34, 8192, WS_KEYS)
    a("v_lshlrev_b32 v4, 4, v0")
    a("buffer_load_dwordx4 v[8:11], v4, s[36:39], 0 offen")
    a("v_mov_b32 v12, s4", "v_mov_b32 v13, s5", "v_mov_b32 v14, s6", "v_mov_b32 v15, s7")
    a("v_cmp_gt_u32 vcc, 8, v2", "v_cndmask_b32 v12, v14, v12, vcc", "v_cndmask_b32 v13, v15, v13, vcc")
    a("s_lshl_b32 s18, s17, 6", "v_lshl_add_u32 v5, v3, 3, s18")
    a("v_mul_u32_u24 v5, 9216, v5")
    a("v_and_b32 v6, 7, v2", "v_lshl_add_u32 v5, v6, 3, v5")
    a("s_lshl_b32 s18, s2, 6", "v_add_u32 v5, s18, v5")
    a("v_add_co_u32 v12, vcc, v12, v5", "v_addc_co_u32 v13, vcc, 0, v13, vcc")
    W = 32
    for ks in range(2):
        for r in range(8):
            d = W + 16 * ks + 2 * r
            a(f"global_load_dwordx2 v[{d}:{d+1}], v[12:13], off")
            if not (ks == 1 and r == 7):
                inc = 9216 if r < 7 else 9216 * 25
                a(f"v_add_co_u32 v12, vcc, {inc}, v12", "v_addc_co_u32 v13, vcc, 0, v13, vcc")
    srd(a, 8, 32, F * D * 2)
    a("v_mul_u32_u24 v5, 9216, v3", "v_lshl_add_u32 v5, v2, 3, v5")
    a("s_mul_i32 s18, s2, 36864", "s_lshl_b32 s19, s17, 7", "s_add_u32 s18, s18, s19")
    WD = 64
    for r in range(8):
        if r < 4: a(f"buffer_load_dwordx2 v[{WD+2*r}:{WD+2*r+1}], v5, s[8:11], s18 offen offset:{1152*r}")
        else:
            if r == 4: a("s_add_u32 s18, s18, 4608")
            a(f"buffer_load_dwordx2 v[{WD+2*r}:{WD+2*r+1}], v5, s[8:11], s18 offen offset:{1152*(r-4)}")
    srd(a, 12, 34, XBYTES, WS_X2)
    srd(a, 20, 34, 144 * 4608 * 4, WS_PART)
    srd(a, 24, 34, 32, WS_IDX)
    a("s_waitcnt vmcnt(24)")
    def ce(x, y):
        a(f"v_max_u32 v16, v{x}, v{y}", f"v_min_u32 v{y}, v{x}, v{y}", f"v_mov_b32 v{x}, v16")
    ce(8, 9); ce(10, 11); ce(8, 10); ce(9, 11); ce(9, 10)
    a("v_mov_b32 v17, 0")
    for r in range(8):
        wave_max_to_s(a, 8, 16, 28)
        a(f"v_writelane_b32 v17, s28, {r}")
        a("v_cmp_eq_u32 vcc, s28, v8")
        a("v_cndmask_b32 v8, v8, v9, vcc", "v_cndmask_b32 v9, v9, v10, vcc", "v_cndmask_b32 v10, v10, v11, vcc", "v_cndmask_b32 v11, v11, 0, vcc")
    a("s_lshl_b32 s18, s17, 5", "v_lshl_add_u32 v16, v1, 2, s18")
    a("s_cmp_lt_u32 s17, 8", "s_cselect_b64 s[28:29], 0xff, 0", "s_mov_b64 exec, s[28:29]")
    a(f"ds_write_b32 v16, v17 offset:{K4_CAND}")
    a("s_mov_b64 exec, -1")
    a("s_waitcnt lgkmcnt(0)", "s_barrier")
    a("v_lshlrev_b32 v16, 2, v1")
    a(f"ds_read_b32 v8, v16 offset:{K4_CAND}")
    a("s_waitcnt lgkmcnt(0)")
    a("v_mov_b32 v17, 0")
    for r in range(8):
        wave_max_to_s(a, 8, 16, 28)
        a(f"v_writelane_b32 v17, s28, {r}", f"v_writelane_b32 v17, s28, {r+8}")
        a("v_cmp_eq_u32 vcc, s28, v8", "v_cndmask_b32 v8, v8, 0, vcc")
    a("v_lshlrev_b32 v16, 2, v2", "ds_bpermute_b32 v18, v16, v17")
    a("s_or_b32 s18, s2, s17", "s_cmp_eq_u32 s18, 0", "s_cbranch_scc0 K4_NOIDX")
    a("v_lshlrev_b32 v16, 2, v1")
    a("buffer_store_dword v17, v16, s[24:27], 0 offen")
    a("K4_NOIDX:")
    a("s_waitcnt lgkmcnt(0)")
    a("v_and_b32 v18, 0x7ff, v18", "v_sub_u32 v18, 2047, v18", "v_mul_u32_u24 v18, 1152, v18")
    a("v_lshl_add_u32 v18, v3, 4, v18", "s_lshl_b32 s18, s17, 7")
    a("buffer_load_dwordx4 v[20:23], v18, s[12:15], s18 offen")
    a("buffer_load_dwordx4 v[24:27], v18, s[12:15], s18 offen offset:64")
    a("s_mov_b32 s28, 0x05040100", "s_mov_b32 s29, 0x07060302")
    def transpose(src, dst):
        for j in range(4):
            for p in range(4):
                lo = src + 2 * (2 * p) + (j >> 1); hi = src + 2 * (2 * p + 1) + (j >> 1)
                a(f"v_perm_b32 v{dst+4*j+p}, v{hi}, v{lo}, s{28 + (j & 1)}")
    TW = 80
    a("s_waitcnt vmcnt(18)"); transpose(W, TW)
    a("s_waitcnt vmcnt(10)"); transpose(W + 16, TW + 16)
    a("s_waitcnt vmcnt(2)"); transpose(WD, 112)
    ACC = 32
    for i in range(16): a(f"v_mov_b32 v{ACC+i}, 0")
    a("s_waitcnt vmcnt(0)")
    for ks in range(2):
        for j in range(4):
            a(f"v_mfma_f32_16x16x32_bf16 v[{ACC+4*j}:{ACC+4*j+3}], v[{20+4*ks}:{23+4*ks}], v[{TW+16*ks+4*j}:{TW+16*ks+4*j+3}], v[{ACC+4*j}:{ACC+4*j+3}]")
    a("s_lshl_b32 s18, s17, 11", "v_lshl_add_u32 v16, v1, 4, s18")
    a("s_mov_b32 exec_lo, -1", "s_mov_b32 exec_hi, 0")
    for j in range(4):
        a(f"ds_write_b128 v16, v[{ACC+4*j}:{ACC+4*j+3}] offset:{K4_RED + 512*j}")
    a("s_mov_b64 exec, -1")
    a("s_waitcnt lgkmcnt(0)", "s_barrier")
    a("s_cmp_ge_u32 s17, 4", "s_cbranch_scc1 K4_NOACT")
    a("v_lshrrev_b32 v8, 5, v0", "v_and_b32 v9, 31, v0")
    a("v_and_b32 v10, 3, v9", "v_lshlrev_b32 v10, 9, v10")
    a("v_lshrrev_b32 v11, 2, v9", "v_lshl_add_u32 v10, v11, 4, v10")
    a("v_lshrrev_b32 v11, 2, v8", "v_lshl_add_u32 v10, v11, 8, v10")
    a("v_and_b32 v11, 3, v8", "v_lshl_add_u32 v10, v11, 2, v10")
    for w in range(9):
        a(f"ds_read2_b32 v[{32+2*w}:{33+2*w}], v10 offset0:0 offset1:32") if False else None
    for w in range(9):
        a(f"ds_read_b32 v{32+2*w}, v10 offset:{K4_RED + 2048*w}")
        a(f"ds_read_b32 v{33+2*w}, v10 offset:{K4_RED + 2048*w + 128}")
        if w == 5: a("s_waitcnt lgkmcnt(4)")
    a("s_waitcnt lgkmcnt(0)")
    for w in range(1, 9):
        a(f"v_pk_add_f32 v[32:33], v[32:33], v[{32+2*w}:{33+2*w}]")
    a("v_cvt_pk_bf16_f32 v34, v32, v33")
    unpack(a, 32, 34)
    a(f"v_mul_f32 v34, {f32(-LOG2E)}, v32", "v_exp_f32 v34, v34", "v_add_f32 v34, 1.0, v34", "v_rcp_f32 v34, v34", "v_mul_f32 v34, v32, v34")
    a("v_cvt_pk_bf16_f32 v34, v34, v34", "v_lshlrev_b32 v34, 16, v34")
    a("v_mul_f32 v34, v34, v33", "v_cvt_pk_bf16_f32 v34, v34, v34")
    a("v_lshlrev_b32 v10, 1, v0")
    a(f"ds_write_b16 v10, v34 offset:{K4_ACT}")
    a("K4_NOACT:")
    a.flush(4)
    a("s_waitcnt lgkmcnt(0)", "s_barrier")
    a("v_and_b32 v16, 7, v2", "v_lshlrev_b32 v16, 6, v16", "v_lshl_add_u32 v16, v3, 4, v16")
    a(f"ds_read_b128 v[20:23], v16 offset:{K4_ACT}")
    a("s_waitcnt lgkmcnt(0)")
    for j in range(4):
        a(f"v_mfma_f32_16x16x32_bf16 v[{ACC+4*j}:{ACC+4*j+3}], v[20:23], v[{112+4*j}:{115+4*j}], 0")
    a("s_mul_i32 s18, s2, 18432", "s_lshl_b32 s19, s17, 11", "s_add_u32 s18, s18, s19")
    a("v_lshlrev_b32 v16, 4, v1")
    a("s_mov_b32 exec_lo, -1", "s_mov_b32 exec_hi, 0")
    for j in range(4):
        a(f"buffer_store_dwordx4 v[{ACC+4*j}:{ACC+4*j+3}], v16, s[20:23], s18 offen offset:{512*j}")
    stamp_end(a, 34, 3)
    a("K4_END:")
    a("s_endpgm")
    return kdesc("k4_kernel", 128, 48)

K5_LDS = 4096
def gen_k5(a):
    header(a, "k5_kernel")
    a("s_cmp_ge_u32 s2, 72", "s_cbranch_scc1 K5_END")
    stamp_begin(a, 4)
    a("s_load_dwordx2 s[4:5], s[0:1], 0", "s_load_dwordx2 s[6:7], s[0:1], 128", "s_load_dwordx2 s[34:35], s[0:1], 112")
    a("v_and_b32 v1, 15, v0", "v_lshrrev_b32 v2, 4, v0")
    a("v_mul_u32_u24 v3, 165888, v2", "v_lshl_add_u32 v3, v1, 4, v3")
    a("s_lshl_b32 s3, s2, 8")
    a("s_waitcnt lgkmcnt(0)")
    srd(a, 8, 6, 144 * 4608 * 4, WS_PART)
    for p in range(9):
        a(f"buffer_load_dwordx4 v[{8+4*p}:{11+4*p}], v3, s[8:11], s3 offen")
        if p < 8: a("s_add_u32 s3, s3, 18432")
    srd(a, 12, 6, 32, WS_IDX)
    srd(a, 16, 6, XBYTES, WS_X2)
    srd(a, 20, 6, XBYTES, WS_ZT)
    srd(a, 24, 4, XBYTES)
    srd(a, 28, 34, XBYTES)
    a("v_lshrrev_b32 v4, 2, v0", "s_lshl_b32 s3, s2, 4", "v_add_u32 v4, s3, v4", "v_and_b32 v5, 3, v0")
    a("v_bfe_u32 v6, v4, 4, 1", "v_lshl_add_u32 v5, v6, 2, v5")
    a("v_lshrrev_b32 v6, 7, v4", "v_lshlrev_b32 v6, 6, v6", "v_and_b32 v7, 15, v4", "v_lshl_add_u32 v6, v7, 2, v6")
    a("v_bfe_u32 v7, v4, 5, 2", "v_add_u32 v6, v6, v7")
    a("v_lshlrev_b32 v5, 2, v5")
    a("buffer_load_dword v44, v5, s[12:15], 0 offen")
    a("s_waitcnt vmcnt(0)")
    a("v_and_b32 v45, 0x7ff, v44", "v_sub_u32 v45, 2047, v45")
    a("v_mul_u32_u24 v46, 1152, v45", "v_lshl_add_u32 v46, v6, 1, v46")
    a("v_lshlrev_b32 v47, 12, v6", "v_lshl_add_u32 v47, v45, 1, v47")
    a("buffer_load_ushort v48, v46, s[16:19], 0 offen")
    a("buffer_load_ushort v49, v47, s[20:23], 0 offen")
    a("buffer_load_ushort v50, v46, s[24:27], 0 offen")
    for p in range(1, 9):
        a(f"v_pk_add_f32 v[8:9], v[8:9], v[{8+4*p}:{9+4*p}]", f"v_pk_add_f32 v[10:11], v[10:11], v[{10+4*p}:{11+4*p}]")
    a("v_lshlrev_b32 v7, 4, v0")
    a("ds_write_b128 v7, v[8:11]")
    a("s_waitcnt lgkmcnt(0)", "s_barrier")
    a("v_readfirstlane_b32 s3, v0", "s_cmp_ge_u32 s3, 64", "s_cbranch_scc1 K5_END1")
    a("v_lshlrev_b32 v7, 2, v0")
    for g in range(16):
        a(f"ds_read_b32 v{8+g}, v7 offset:{256*g}")
        if g == 11: a("s_waitcnt lgkmcnt(4)")
    a("s_waitcnt lgkmcnt(0)")
    for g in range(1, 8):
        a(f"v_pk_add_f32 v[8:9], v[8:9], v[{8+2*g}:{9+2*g}]")
    a("v_add_f32 v8, v8, v9")
    a("v_cvt_pk_bf16_f32 v8, v8, v8", "v_lshlrev_b32 v8, 16, v8")
    a("v_ashrrev_i32 v9, 31, v44", "v_not_b32 v9, v9", "v_or_b32 v9, 0x80000000, v9", "v_xor_b32 v9, v44, v9", "v_and_b32 v9, 0xffff0000, v9")
    a(f"v_mul_f32 v9, {f32(-LOG2E)}, v9", "v_exp_f32 v9, v9", "v_add_f32 v9, 1.0, v9", "v_rcp_f32 v9, v9")
    a("v_cvt_pk_bf16_f32 v9, v9, v9", "v_lshlrev_b32 v9, 16, v9")
    a("v_mul_f32 v8, v8, v9", "v_cvt_pk_bf16_f32 v8, v8, v8", "v_lshlrev_b32 v8, 16, v8")
    a("s_waitcnt vmcnt(0)")
    a("v_lshlrev_b32 v48, 16, v48", "v_lshlrev_b32 v49, 16, v49", "v_lshlrev_b32 v50, 16, v50")
    a("v_add_f32 v8, v8, v48", "v_add_f32 v49, v49, v50", "v_cvt_pk_bf16_f32 v8, v8, v49")
    unpack(a, 10, 8)
    a("v_add_f32 v8, v10, v11", "v_cvt_pk_bf16_f32 v8, v8, v8")
    a("buffer_store_short v8, v46, s[28:31], 0 offen")
    a("K5_END1:")
    stamp_end(a, 6, 4)
    a("K5_END:")
    a("s_endpgm")
    return kdesc("k5_kernel", 52, 40)

def gen_k6(a, counts):
    header(a, "k6_kernel")
    a("s_cmp_ge_u32 s2, 1", "s_cbranch_scc1 K6_END")
    a("s_memrealtime s[44:45]")
    a("s_load_dwordx2 s[6:7], s[0:1], 128", "s_load_dwordx2 s[4:5], s[0:1], 120")
    a("s_waitcnt lgkmcnt(0)")
    if STAMP == 2: a(f"s_sub_u32 s4, s4, {512 * len(counts)}", "s_subb_u32 s5, s5, 0")
    for k, n in enumerate(counts):
        a("v_mov_b32 v10, -1", "v_mov_b32 v11, 0", "v_mov_b32 v12, 0")
        for it in range((n + 63) // 64):
            a(f"v_add_u32 v1, {64*it}, v0", f"v_min_u32 v1, {n-1}, v1", "v_lshlrev_b32 v1, 3, v1", f"v_add_u32 v1, {hex(WS_STAMP + k*0x100000)}, v1")
            a("global_load_dwordx2 v[2:3], v1, s[6:7]", "s_waitcnt vmcnt(0)")
            a("v_min_u32 v10, v10, v2", "v_max_u32 v11, v11, v2", "v_max_u32 v12, v12, v3")
        red64(a, "v_min_u32", 10, 13); red64(a, "v_max_u32", 11, 13); red64(a, "v_max_u32", 12, 13)
        if k == 0: a("v_mov_b32 v20, v10")
        a("v_sub_u32 v10, v10, v20", "v_sub_u32 v11, v11, v20", "v_sub_u32 v12, v12, v20")
        a(f"v_mov_b32 v1, {12*k}")
        a("s_mov_b64 exec, 1")
        a("global_store_dwordx3 v1, v[10:12], s[4:5]")
        a("s_mov_b64 exec, -1")
    a("v_sub_u32 v10, s44, v20", "v_mov_b32 v1, 60")
    a("s_mov_b64 exec, 1")
    a("global_store_dword v1, v10, s[4:5]")
    a("K6_END:")
    a("s_endpgm")
    return kdesc("k6_kernel", 32, 48)

def gen_k6_spin(a, nk):
    Q = int(os.environ.get("Q", "0")); Fm = int(os.environ.get("F", "0"))
    header(a, "k6_kernel")
    a("s_cmp_ge_u32 s2, 1", "s_cbranch_scc1 K6_END")
    a("s_memrealtime s[44:45]")
    a("s_load_dwordx2 s[6:7], s[0:1], 128")
    a("s_waitcnt lgkmcnt(0)")
    for k in range(nk):
        a(f"s_add_u32 s8, s6, {hex(WS_STAMP + k*0x100000)}", "s_addc_u32 s9, s7, 0", f"s_load_dword s{20+k}, s[8:9], 0")
    a(f"s_mov_b32 s{20+nk}, s44")
    a("s_waitcnt lgkmcnt(0)")
    if Q < nk: a(f"s_sub_u32 s10, s{21+Q}, s{20+Q}")
    else: a(f"s_sub_u32 s10, s{20+nk}, s20")
    a("s_min_u32 s10, s10, 10000", f"s_mul_i32 s10, s10, {Fm}")
    a("K6_LOOP:")
    a("s_memrealtime s[46:47]", "s_waitcnt lgkmcnt(0)", "s_sub_u32 s11, s46, s44", "s_cmp_lt_u32 s11, s10", "s_cbranch_scc1 K6_LOOP")
    a("K6_END:")
    a("s_endpgm")
    return kdesc("k6_kernel", 32, 48)

def main():
    hdr = open(f"/code/{NAME}.s.ref").read().split("; Override launch geometry")[0]
    out = hdr
    out += f"; @launch kernel=k1_kernel grid=(832,1,1) block=(256,1,1) lds={K1_LDS}\n"
    out += f"; @launch kernel=k2_kernel grid=(576,1,1) block=(256,1,1) lds={K2_LDS}\n"
    out += f"; @launch kernel=k3_kernel grid=(256,1,1) block=(256,1,1) lds={K3_LDS}\n"
    out += f"; @launch kernel=k4_kernel grid=(144,1,1) block=(576,1,1) lds={K4_LDS}\n"
    out += f"; @launch kernel=k5_kernel grid=(72,1,1) block=(256,1,1) lds={K5_LDS}\n"
    if STAMP: out += "; @launch kernel=k6_kernel grid=(1,1,1) block=(64,1,1) lds=0\n"
    out += '.amdgcn_target "amdgcn-amd-amdhsa--gfx950"\n.text\n'
    descs = []
    gens = [gen_k1, gen_k2, gen_k3, gen_k4, gen_k5]
    if STAMP == 3: gens.append(lambda a: gen_k6_spin(a, 5))
    elif STAMP: gens.append(lambda a: gen_k6(a, [832*4, 576*4, 256*4, 144*9, 72*4]))
    for g in gens:
        a = Asm()
        descs.append(g(a))
        out += a.text()
    out += '.section .rodata,"a"\n'
    for d in descs:
        out += ".p2align 6\n" + d
    path = sys.argv[1] if len(sys.argv) > 1 else f"/code/{NAME}.s"
    open(path, "w").write(out)
    print("wrote", path, len(out))

if __name__ == "__main__":
    main()
```

```python
import sys, struct, math
sys.path.insert(0, "gen")
from asmlib import Asm

NAME = "sequential_preLN__ssm_conv_s4__moe_arch_mod__prompt"
L, D, N, F = 2048, 576, 128, 4608
XBYTES = L * D * 2
WS_UT = 0x000000
WS_KR = 0x300000
KR_STRIDE = 4112
WS_ZT = 0x600000
WS_X2 = 0x900000
WS_KEYS = 0xC00000
WS_KSC = 0xC10000
WS_IDX = 0xC20000
WS_PART = 0xD00000
WS_SIZE = 0x10000000

def f32(x): return "0x%08x" % struct.unpack("<I", struct.pack("<f", x))[0]
def f32v(x): return struct.unpack("<f", struct.pack("<f", x))[0]
LOG2E = math.log2(math.e)
LOG2E_HI = f32v(LOG2E); LOG2E_LO = LOG2E - LOG2E_HI
INV2PI = 1.0 / (2 * math.pi)
INV2PI_HI = f32v(INV2PI); INV2PI_LO = INV2PI - INV2PI_HI
DPPM = "row_mask:0xf bank_mask:0xf"

def srd(a, d, base, nbytes, off=0):
    if off:
        a(f"s_add_u32 s{d}, s{base}, {hex(off)}", f"s_addc_u32 s{d+1}, s{base+1}, 0")
    else:
        a(f"s_mov_b32 s{d}, s{base}", f"s_mov_b32 s{d+1}, s{base+1}")
    a(f"s_mov_b32 s{d+2}, {hex(nbytes)}", f"s_mov_b32 s{d+3}, 0x20000")

def red16(a, op, v):
    for r in (8, 4, 2, 1):
        a(f"{op}_dpp v{v}, v{v}, v{v} row_ror:{r} {DPPM}")
def red32(a, op, v, t):
    red16(a, op, v)
    a(f"v_mov_b32 v{t}, v{v}", f"v_permlane16_swap_b32 v{v}, v{t}", f"{op} v{v}, v{v}, v{t}")
def red64(a, op, v, t):
    red32(a, op, v, t)
    a(f"v_mov_b32 v{t}, v{v}", f"v_permlane32_swap_b32 v{v}, v{t}", f"{op} v{v}, v{v}, v{t}")

def header(a, label):
    a(f".globl {label}", ".p2align 8", f".type {label},@function", f"{label}:")

def kdesc(label, vgpr, sgpr=64):
    if STAMP: sgpr = max(sgpr, 64)
    acc = (vgpr + 3) // 4 * 4
    return f""".amdhsa_kernel {label}
  .amdhsa_next_free_vgpr {vgpr}
  .amdhsa_next_free_sgpr {sgpr}
  .amdhsa_accum_offset {acc}
  .amdhsa_group_segment_fixed_size 0
  .amdhsa_kernarg_size 136
  .amdhsa_user_sgpr_count 2
  .amdhsa_user_sgpr_kernarg_segment_ptr 1
  .amdhsa_system_sgpr_workgroup_id_x 1
  .amdhsa_float_denorm_mode_32 3
.end_amdhsa_kernel
"""

import os
STAMP = int(os.environ.get("STAMP", "0"))
WS_STAMP = 0x8000000
S3MOD = os.environ.get("S3MOD", " sc1")
S4MOD = os.environ.get("S4MOD", "")
S1MOD = os.environ.get("S1MOD", "")
WMOD = os.environ.get("WMOD", "")
PF2 = int(os.environ.get("PF2", "7"))
def stamp_begin(a, nw):
    if not STAMP: return
    a("s_memrealtime s[44:45]")
    a("v_readfirstlane_b32 s43, v0", "s_lshr_b32 s43, s43, 6", f"s_mul_i32 s42, s2, {nw}", "s_add_u32 s43, s43, s42", f"s_lshl_b32 s43, s43, {5 if STAMP == 4 else 3}")
    if STAMP == 4:
        for i in range(1, 7): a(f"s_mov_b32 s{46+2*i}, 0")
def stamp(a, i):
    if STAMP != 4: return
    assert 1 <= i <= 6
    a(f"s_memrealtime s[{46+2*i}:{47+2*i}]")
def stamp_end(a, ws, k):
    if not STAMP: return
    a("s_waitcnt vmcnt(0) lgkmcnt(0)")
    a("s_memrealtime s[46:47]")
    a(f"s_add_u32 s43, s43, {hex(WS_STAMP + k * 0x100000)}")
    a("s_mov_b64 exec, 1")
    a("s_waitcnt lgkmcnt(0)")
    a("v_mov_b32 v2, s44", "v_mov_b32 v3, s46", "v_mov_b32 v1, s43")
    if STAMP == 4:
        for i in range(1, 7): a(f"v_mov_b32 v{3+i}, s{46+2*i}")
        if os.environ.get("XCC"): a("s_getreg_b32 s42, hwreg(HW_REG_XCC_ID)", "v_mov_b32 v9, s42")
        a(f"global_store_dwordx4 v1, v[2:5], s[{ws}:{ws+1}]")
        a(f"global_store_dwordx4 v1, v[6:9], s[{ws}:{ws+1}] offset:16")
    else:
        a(f"global_store_dwordx2 v1, v[2:3], s[{ws}:{ws+1}]")

def ln_stats(a, X, m2, rinv2, t0, t1, t2):
    a(f"v_pk_add_f32 v[{t0}:{t0+1}], v[{X}:{X+1}], v[{X+2}:{X+3}]")
    a(f"v_pk_add_f32 v[{t1}:{t1+1}], v[{X+4}:{X+5}], v[{X+6}:{X+7}]")
    for j in range(4, 9):
        t = t0 if j % 2 == 0 else t1
        a(f"v_pk_add_f32 v[{t}:{t+1}], v[{t}:{t+1}], v[{X+2*j}:{X+2*j+1}]")
    a(f"v_pk_add_f32 v[{t0}:{t0+1}], v[{t0}:{t0+1}], v[{t1}:{t1+1}]")
    a(f"v_add_f32 v{t0}, v{t0}, v{t0+1}")
    red32(a, "v_add_f32", t0, t1)
    a(f"v_mul_f32 v{t2}, {f32(1.0/576)}, v{t0}")
    a(f"v_mov_b32 v{t2+1}, v{t2}")
    a(f"v_cvt_pk_bf16_f32 v{m2}, v{t2}, v{t2}")
    a(f"v_and_b32 v{m2}, 0xffff0000, v{m2}", f"v_mov_b32 v{m2+1}, v{m2}")
    first = {t0: True, t1: True}
    for j in range(9):
        t = t0 if j % 2 == 0 else t1
        a(f"v_pk_add_f32 v[{rinv2}:{rinv2+1}], v[{X+2*j}:{X+2*j+1}], v[{t2}:{t2+1}] neg_lo:[0,1] neg_hi:[0,1]")
        if first[t]:
            a(f"v_pk_mul_f32 v[{t}:{t+1}], v[{rinv2}:{rinv2+1}], v[{rinv2}:{rinv2+1}]"); first[t] = False
        else:
            a(f"v_pk_fma_f32 v[{t}:{t+1}], v[{rinv2}:{rinv2+1}], v[{rinv2}:{rinv2+1}], v[{t}:{t+1}]")
    a(f"v_pk_add_f32 v[{t0}:{t0+1}], v[{t0}:{t0+1}], v[{t1}:{t1+1}]")
    a(f"v_add_f32 v{t0}, v{t0}, v{t0+1}")
    red32(a, "v_add_f32", t0, t1)
    a(f"v_mul_f32 v{t0}, {f32(1.0/576)}, v{t0}")
    a(f"v_cvt_pk_bf16_f32 v{t0}, v{t0}, v{t0}", f"v_and_b32 v{t0}, 0xffff0000, v{t0}")
    a(f"v_add_f32 v{t0}, {f32(1e-5)}, v{t0}")
    a(f"v_cvt_pk_bf16_f32 v{t0}, v{t0}, v{t0}", f"v_and_b32 v{t0}, 0xffff0000, v{t0}")
    a(f"v_sqrt_f32 v{t0}, v{t0}")
    a(f"v_cvt_pk_bf16_f32 v{t0}, v{t0}, v{t0}", f"v_and_b32 v{t0}, 0xffff0000, v{t0}")
    a(f"v_rcp_f32 v{rinv2}, v{t0}")
    a(f"v_mov_b32 v{rinv2+1}, v{rinv2}")

def unpack(a, dst, src):
    a(f"v_lshlrev_b32 v{dst}, 16, v{src}", f"v_and_b32 v{dst+1}, 0xffff0000, v{src}")

def ln_apply_pair(a, x, m2, rinv2, t, P):
    a(f"v_pk_add_f32 v[{t}:{t+1}], v[{x}:{x+1}], v[{m2}:{m2+1}] neg_lo:[0,1] neg_hi:[0,1]")
    a(f"v_cvt_pk_bf16_f32 v{P}, v{t}, v{t+1}")
    unpack(a, t, P)
    a(f"v_pk_mul_f32 v[{t}:{t+1}], v[{t}:{t+1}], v[{rinv2}:{rinv2+1}]")
    a(f"v_cvt_pk_bf16_f32 v{P}, v{t}, v{t+1}")
    unpack(a, t, P)

KG_ROW = 544
KG_TILE = 16 * KG_ROW
KG_TAB = 4 * KG_TILE
K1_LDS = KG_TAB + 1536

def gen_k1(a):
    header(a, "k1_kernel")
    a("s_cmp_ge_u32 s2, 832", "s_cbranch_scc1 K1_END")
    stamp_begin(a, 4)
    a("s_cmp_ge_u32 s2, 256", "s_cbranch_scc1 K1_KGEN")
    a("s_load_dwordx2 s[4:5], s[0:1], 0", "s_load_dwordx2 s[6:7], s[0:1], 128")
    a("v_lshrrev_b32 v1, 5, v0", "v_and_b32 v2, 31, v0")
    a("v_mul_u32_u24 v3, 1152, v1", "v_lshl_add_u32 v3, v2, 2, v3")
    a("s_and_b32 s16, s2, 7", "s_lshl_b32 s16, s16, 5", "s_lshr_b32 s3, s2, 3", "s_add_u32 s18, s3, s16")
    a("s_mul_i32 s3, s18, 9216", "s_lshl_b32 s18, s18, 4")
    a("s_waitcnt lgkmcnt(0)")
    stamp(a, 1)
    srd(a, 8, 4, XBYTES)
    srd(a, 12, 6, XBYTES, WS_UT)
    for j in range(9):
        a(f"buffer_load_dword v{10+j}, v3, s[8:11], s3 offen offset:{128*j}")
    a("v_lshrrev_b32 v4, 6, v0", "v_mul_u32_u24 v4, 2304, v4", "v_lshl_add_u32 v4, v2, 3, v4")
    a("v_and_b32 v5, 1, v1", "v_lshl_add_u32 v4, v5, 2, v4")
    a("v_mul_u32_u24 v5, 0x020202, v5", f"v_lshlrev_b32 v6, 25, v1", "v_and_b32 v6, 0x02000000, v6")
    a("v_or_b32 v5, v5, v6", "v_add_u32 v5, 0x05040100, v5")
    X = 20
    for j in range(9):
        a(f"s_waitcnt vmcnt({8-j})")
        unpack(a, X + 2 * j, 10 + j)
    stamp(a, 2)
    ln_stats(a, X, 40, 42, 44, 46, 48)
    stamp(a, 3)
    for j in range(9):
        ln_apply_pair(a, X + 2 * j, 40, 42, 44, 46)
        a("v_cvt_pk_f16_f32 v46, v44, v45", "v_mov_b32 v47, v46", "v_permlane32_swap_b32 v46, v47")
        a(f"v_perm_b32 v{10+j}, v47, v46, v5")
        a(f"ds_write_b32 v4, v{10+j} offset:{256*j}")
    a("s_waitcnt lgkmcnt(0)", "s_barrier")
    stamp(a, 4)
    a("v_lshlrev_b32 v6, 2, v0", "v_lshlrev_b32 v7, 12, v0")
    a("v_readfirstlane_b32 s16, v0")
    for k in range(2):
        a(f"ds_read2st64_b32 v[{20+4*k}:{21+4*k}], v6 offset0:{4*k} offset1:{9+4*k}")
        a(f"ds_read2st64_b32 v[{22+4*k}:{23+4*k}], v6 offset0:{18+4*k} offset1:{27+4*k}")
    a("s_cmp_ge_u32 s16, 64", "s_cbranch_scc1 K1_LN_SKIP")
    a(f"ds_read2st64_b32 v[28:29], v6 offset0:8 offset1:17")
    a(f"ds_read2st64_b32 v[30:31], v6 offset0:26 offset1:35")
    a("s_add_u32 s17, s18, 0x200000")
    a("s_waitcnt lgkmcnt(0)")
    a("buffer_store_dwordx4 v[28:31], v7, s[12:15], s17 offen")
    a("K1_LN_SKIP:")
    a("s_add_u32 s17, s18, 0x100000")
    a("s_waitcnt lgkmcnt(0)")
    a("buffer_store_dwordx4 v[20:23], v7, s[12:15], s18 offen")
    a("buffer_store_dwordx4 v[24:27], v7, s[12:15], s17 offen")
    stamp(a, 5)
    stamp_end(a, 6, 0)
    a("s_endpgm")

    a("K1_KGEN:")
    a("s_load_dwordx16 s[16:31], s[0:1], 0", "s_load_dwordx2 s[6:7], s[0:1], 128")
    a("s_sub_u32 s3, s2, 256", "s_and_b32 s4, s3, 7", "s_mul_i32 s4, s4, 72", "s_lshr_b32 s3, s3, 3", "s_add_u32 s3, s3, s4")
    a("v_and_b32 v1, 63, v0")
    a("s_lshl_b32 s4, s3, 8", "v_lshl_add_u32 v2, v1, 2, s4")
    a("s_lshl_b32 s4, s3, 1", "v_mov_b32 v3, s4")
    a("v_readfirstlane_b32 s5, v0", "s_lshr_b32 s5, s5, 6")
    a("s_waitcnt lgkmcnt(0)")
    stamp(a, 1)
    a("global_load_ushort v16, v3, s[30:31]")
    for k in range(6):
        a(f"global_load_dword v{10+k}, v2, s[{18+2*k}:{19+2*k}]")
    srd(a, 8, 6, 576 * KR_STRIDE, WS_KR)
    srd(a, 12, 6, 576 * 4, WS_KSC)
    a("v_lshlrev_b32 v4, 3, v0", "v_sub_u32 v4, 2047, v4")
    for jj in range(0, 8, 2):
        a(f"v_subrev_u32 v5, {jj}, v4", f"v_subrev_u32 v6, {jj+1}, v4")
        a("v_cvt_f32_u32 v7, v5", "v_cvt_f32_u32 v8, v6", "v_cvt_pk_bf16_f32 v7, v7, v8")
        a("v_and_b32 v8, 0xffff, v7", "v_lshrrev_b32 v7, 16, v7")
        a("v_subrev_u32 v8, 0x4280, v8", "v_subrev_u32 v7, 0x4280, v7")
        a("v_cmp_gt_u32 vcc, 128, v5", "v_cndmask_b32 v8, v8, v5, vcc")
        a("v_cmp_gt_u32 vcc, 128, v6", "v_cndmask_b32 v7, v7, v6, vcc")
        a(f"v_lshlrev_b32 v{100+jj}, 1, v8", f"v_lshlrev_b32 v{101+jj}, 1, v7")
    a("s_waitcnt vmcnt(6)")
    a("v_lshlrev_b32 v16, 16, v16")
    a(f"v_mul_f32 v17, {f32(LOG2E_HI)}, v16")
    a(f"s_mov_b32 s32, {f32(LOG2E_HI)}", f"s_mov_b32 s33, {f32(LOG2E_LO)}")
    a("v_fma_f32 v18, v16, s32, -v17", "v_fma_f32 v18, v16, s33, v18")
    a("v_exp_f32 v17, v17")
    a(f"v_mul_f32 v18, {f32(math.log(2.0))}, v18")
    a("v_fma_f32 v17, v17, v18, v17")
    a("v_cvt_pk_bf16_f32 v17, v17, v17", "v_and_b32 v16, 0xffff0000, v17", "v_mov_b32 v17, v16")
    a("s_waitcnt vmcnt(0)")
    stamp(a, 2)
    for k in range(6): unpack(a, 20 + 2 * k, 10 + k)
    for k in range(4):
        a(f"v_pk_mul_f32 v[{20+2*k}:{21+2*k}], v[{20+2*k}:{21+2*k}], v[16:17]")
    def cmul(dr, di, ar, ai, br, bi, t):
        a(f"v_pk_mul_f32 v[{t}:{t+1}], v[{ai}:{ai+1}], v[{bi}:{bi+1}]")
        a(f"v_pk_mul_f32 v[{t+2}:{t+3}], v[{ai}:{ai+1}], v[{br}:{br+1}]")
        a(f"v_pk_fma_f32 v[{di}:{di+1}], v[{ar}:{ar+1}], v[{bi}:{bi+1}], v[{t+2}:{t+3}]") if di not in (ar, br, bi) else None
        assert di not in (ar, br, bi)
        a(f"v_pk_fma_f32 v[{dr}:{dr+1}], v[{ar}:{ar+1}], v[{br}:{br+1}], v[{t}:{t+1}] neg_lo:[0,0,1] neg_hi:[0,0,1]")
    T = 90
    CBR, CBI = 32, 34
    cmul(CBR, CBI, 28, 30, 24, 26, T)
    a("v_max_f32 v36, v20, v21")
    red64(a, "v_max_f32", 36, 38)
    a(f"v_add_f32 v37, abs(v{CBR}), abs(v{CBR+1})", f"v_add_f32 v38, abs(v{CBI}), abs(v{CBI+1})", "v_add_f32 v37, v37, v38")
    red64(a, "v_add_f32", 37, 38)
    a(f"v_max_f32 v37, {f32(1e-36)}, v37")
    a("v_rcp_f32 v38, v37")
    a(f"v_mul_f32 v38, {f32(32768.0)}, v38", "v_mov_b32 v39, v38")
    a(f"v_pk_mul_f32 v[{CBR}:{CBR+1}], v[{CBR}:{CBR+1}], v[38:39]", f"v_pk_mul_f32 v[{CBI}:{CBI+1}], v[{CBI}:{CBI+1}], v[38:39]")
    a("v_sub_f32 v20, v20, v36", "v_sub_f32 v21, v21, v36")
    a(f"v_mul_f32 v20, {f32(LOG2E)}, v20", f"v_mul_f32 v21, {f32(LOG2E)}, v21", f"v_mul_f32 v36, {f32(LOG2E)}, v36")
    a(f"s_mov_b32 s32, {f32(INV2PI_HI)}", f"s_mov_b32 s33, {f32(INV2PI_LO)}")
    def anchor(dr, di, l, conj=False):
        for e in range(2):
            a(f"v_mul_f32 v{T}, {f32(float(l))}, v{20+e}")
            a(f"v_mul_f32 v{T+1}, {f32(float(l))}, v{22+e}")
            a(f"v_exp_f32 v{T}, v{T}")
            a(f"v_mul_f32 v{T+2}, s32, v{T+1}", f"v_rndne_f32 v{T+2}, v{T+2}")
            a(f"v_fma_f32 v{T+2}, v{T+1}, s32, -v{T+2}", f"v_fma_f32 v{T+2}, v{T+1}, s33, v{T+2}")
            a(f"v_cos_f32 v{T+1}, v{T+2}", f"v_sin_f32 v{T+2}, v{T+2}")
            a(f"v_mul_f32 v{dr+e}, v{T}, v{T+1}")
            a(f"v_mul_f32 v{di+e}, v{T}, {'-' if conj else ''}v{T+2}")
    a(f"s_mul_i32 s4, s5, {KG_TILE}", "v_lshl_add_u32 v4, v1, 3, s4")
    def emit(row, vr, vi):
        a(f"v_cvt_pk_f16_f32 v{T+4}, v{vr}, v{vi}", f"v_cvt_pk_f16_f32 v{T+5}, v{vr+1}, v{vi+1}")
        a(f"ds_write_b64 v4, v[{T+4}:{T+5}] offset:{row*KG_ROW}")
    a("v_and_b32 v5, 15, v1", "v_lshrrev_b32 v6, 4, v1", "v_lshlrev_b32 v7, 3, v5")
    G1, G2, G3 = 40, 44, 48
    VA, VB, VC = 52, 56, 60
    a("s_cmp_eq_u32 s5, 1", "s_cbranch_scc1 K1_J1")
    a("s_cmp_eq_u32 s5, 2", "s_cbranch_scc1 K1_J2")
    a("s_cmp_eq_u32 s5, 3", "s_cbranch_scc1 K1_J3")
    anchor(G1, G1 + 2, 1); anchor(G2, G2 + 2, 128)
    cur = (CBR, CBI)
    for c in range(8):
        emit(c, cur[0], cur[1])
        cmul(VC, VC + 2, cur[0], cur[1], G2, G2 + 2, T); emit(8 + c, VC, VC + 2)
        if c < 7:
            nx = VA if cur[0] != VA else VB
            cmul(nx, nx + 2, cur[0], cur[1], G1, G1 + 2, T); cur = (nx, nx + 2)
    a("v_lshrrev_b32 v8, 1, v6", "v_lshl_add_u32 v7, v8, 7, v7", "v_and_b32 v8, 1, v6", "v_lshl_add_u32 v7, v8, 2, v7")
    a("v_mov_b32 v8, 1", "v_mov_b32 v9, 2")
    a("s_branch K1_JOIN")
    a("K1_J1:")
    anchor(G1, G1 + 2, 2); anchor(G2, G2 + 2, 128); anchor(G3, G3 + 2, 256)
    cmul(VA, VA + 2, CBR, CBI, G3, G3 + 2, T); cur = (VA, VA + 2)
    cmul(64, 66, VA, VA + 2, G3, G3 + 2, T)
    for c in range(4):
        emit(c, cur[0], cur[1])
        cmul(VC, VC + 2, cur[0], cur[1], G2, G2 + 2, T); emit(4 + c, VC, VC + 2)
        if c < 3:
            nx = VA if cur[0] != VA else VB
            cmul(nx, nx + 2, cur[0], cur[1], G1, G1 + 2, T); cur = (nx, nx + 2)
    cmul(G3, G3 + 2, G1, G1 + 2, G1, G1 + 2, T)
    cur = (64, 66)
    for aa in range(4):
        emit(8 + 2 * aa, cur[0], cur[1])
        cmul(VC, VC + 2, cur[0], cur[1], G3, G3 + 2, T); emit(9 + 2 * aa, VC, VC + 2)
        if aa < 3:
            nx = VA if cur[0] != VA else VB
            cmul(nx, nx + 2, cur[0], cur[1], G2, G2 + 2, T); cur = (nx, nx + 2)
    a("v_lshl_add_u32 v8, v6, 7, v7", "v_add_u32 v8, 256, v8", "v_lshl_add_u32 v7, v6, 8, v7")
    a("v_cmp_gt_u32 vcc, 2, v6", "v_cndmask_b32 v7, v7, v8, vcc")
    a("v_mov_b32 v8, 4", "v_mov_b32 v9, 0x80", "v_cndmask_b32 v8, v8, 2, vcc", "v_cndmask_b32 v9, v9, 4, vcc")
    a("s_branch K1_JOIN")
    a("K1_J2:")
    anchor(G2, G2 + 2, 128); anchor(G3, G3 + 2, 1024)
    cmul(VA, VA + 2, CBR, CBI, G3, G3 + 2, T); cur = (VA, VA + 2)
    for r in range(9):
        emit(r, cur[0], cur[1])
        if r < 8:
            nx = VA if cur[0] != VA else VB
            cmul(nx, nx + 2, cur[0], cur[1], G2, G2 + 2, T); cur = (nx, nx + 2)
    a("v_lshl_add_u32 v7, v6, 9, v7", "v_add_u32 v7, 0x400, v7", "v_mov_b32 v8, 0x80", "v_mov_b32 v9, 0x100")
    a("s_branch K1_JOIN")
    a("K1_J3:")
    anchor(G1, G1 + 2, 8, conj=True)
    a(f"v_mov_b32 v{VA}, {f32(32768.0)}", f"v_mov_b32 v{VA+1}, {f32(32768.0)}", f"v_mov_b32 v{VA+2}, 0", f"v_mov_b32 v{VA+3}, 0")
    cur = (VA, VA + 2)
    for b in range(16):
        emit(b, cur[0], cur[1])
        if b < 15:
            nx = VA if cur[0] != VA else VB
            cmul(nx, nx + 2, cur[0], cur[1], G1, G1 + 2, T); cur = (nx, nx + 2)
    a(f"v_mul_f32 v40, {f32(2048.0)}, v36", "v_max_f32 v40, 0, v40", "v_exp_f32 v40, v40")
    a(f"v_mul_f32 v41, {f32(1.0/32768.0)}, v37", "v_mul_f32 v40, v40, v41")
    a("s_lshl_b32 s4, s3, 2", "v_mov_b32 v41, s4")
    a(f"s_mul_i32 s4, s3, {KR_STRIDE}", "s_add_u32 s4, s4, 4096", "v_mov_b32 v42, s4")
    a("v_mov_b32 v44, 0", "v_mov_b32 v45, 0", "v_mov_b32 v46, 0", "v_mov_b32 v47, 0")
    a("s_mov_b64 s[34:35], exec", "s_mov_b64 exec, 1")
    a("buffer_store_dword v40, v41, s[12:15], 0 offen")
    a("buffer_store_dwordx4 v[44:47], v42, s[8:11], 0 offen")
    a("s_mov_b64 exec, s[34:35]")
    a("K1_JOIN:")
    stamp(a, 3)
    a.flush(4)
    a("s_waitcnt lgkmcnt(0)", "s_barrier")
    stamp(a, 4)
    a("s_cmp_eq_u32 s5, 3", "s_cbranch_scc1 K1_EXPAND")
    a(f"v_mul_u32_u24 v10, {KG_ROW}, v5", "v_lshl_add_u32 v10, v6, 4, v10")
    a(f"s_mul_i32 s4, s5, {KG_TILE}", "v_add_u32 v11, s4, v10")
    for s in range(8):
        a(f"ds_read_b128 v[{40+4*s}:{43+4*s}], v11 offset:{64*s}")
        a(f"ds_read_b128 v[{72+4*(s%4)}:{75+4*(s%4)}], v10 offset:{3*KG_TILE+64*s}") if s < 4 else None
    a("v_mov_b32 v12, 0", "v_mov_b32 v13, 0", "v_mov_b32 v14, 0", "v_mov_b32 v15, 0")
    for s in range(4, 8):
        a(f"ds_read_b128 v[{20+4*(s-4)}:{23+4*(s-4)}], v10 offset:{3*KG_TILE+64*s}")
    a("s_waitcnt lgkmcnt(0)")
    for s in range(8):
        B = 72 + 4 * s if s < 4 else 20 + 4 * (s - 4)
        a(f"v_mfma_f32_16x16x32_f16 v[12:15], v[{40+4*s}:{43+4*s}], v[{B}:{B+3}], v[12:15]")
    a(f"v_mul_f32 v40, {f32(2048.0)}, v36", "v_max_f32 v40, 0, v40", f"v_add_f32 v40, {f32(15.0)}, v40")
    a("v_mov_b32 v41, v7", "v_add_u32 v42, v7, v8", "v_add_u32 v43, v7, v9", "v_add_u32 v44, v42, v9")
    for r in range(4):
        a(f"v_cvt_f32_u32 v45, v{41+r}")
        a("v_fma_f32 v46, v45, v36, -v40", "v_exp_f32 v46, v46")
        a("v_lshrrev_b32 v45, 16, v45", "v_subrev_u32 v45, 0x4280, v45")
        a(f"v_cmp_gt_u32 vcc, 128, v{41+r}", f"v_cndmask_b32 v45, v45, v{41+r}, vcc")
        a(f"v_cmp_lt_u32 vcc, 0x800, v{41+r}", "v_mov_b32 v47, 0x2f0", "v_cndmask_b32 v45, v45, v47, vcc")
        a(f"v_mul_f32 v46, v46, v{12+r}", "v_cvt_f16_f32 v46, v46")
        a("v_lshlrev_b32 v45, 1, v45")
        a(f"ds_write_b16 v45, v46 offset:{KG_TAB}")
    a("K1_EXPAND:")
    a.flush(4)
    a("s_waitcnt lgkmcnt(0)", "s_barrier")
    stamp(a, 5)
    for jj in range(8):
        a(f"ds_read_u16 v{48+jj}, v{100+jj} offset:{KG_TAB}")
    a(f"s_mul_i32 s4, s3, {KR_STRIDE}", "v_lshlrev_b32 v44, 4, v0")
    a("s_waitcnt lgkmcnt(0)")
    for k in range(4):
        a(f"v_lshl_or_b32 v{40+k}, v{49+2*k}, 16, v{48+2*k}")
    a(f"buffer_store_dwordx4 v[40:43], v44, s[8:11], s4 offen{S1MOD}")
    stamp(a, 6)
    stamp_end(a, 6, 0)
    a("K1_END:")
    a("s_endpgm")
    return kdesc("k1_kernel", 108, 40)

KC_STRIDE = 4640
K2_U = 4 * KC_STRIDE
K2_RED = K2_U + 4224
K2_LDS = K2_RED + 24576

def gen_k2(a):
    header(a, "k2_kernel")
    a("s_cmp_ge_u32 s2, 576", "s_cbranch_scc1 K2_END")
    stamp_begin(a, 4)
    a("s_load_dwordx2 s[6:7], s[0:1], 128", "s_load_dwordx2 s[4:5], s[0:1], 64")
    if PF2: a("s_load_dwordx4 s[32:35], s[0:1], 88", "s_load_dwordx2 s[36:37], s[0:1], 104")
    a("s_and_b32 s16, s2, 7", "s_mul_i32 s16, s16, 72", "s_lshr_b32 s3, s2, 3", "s_add_u32 s3, s3, s16")
    a("v_readfirstlane_b32 s17, v0", "s_lshr_b32 s17, s17, 6")
    a("v_lshlrev_b32 v2, 4, v0")
    a("s_lshl_b32 s18, s3, 12", f"s_mul_i32 s19, s3, {KR_STRIDE}")
    a("s_waitcnt lgkmcnt(0)")
    stamp(a, 1)
    srd(a, 8, 6, XBYTES, WS_UT)
    srd(a, 12, 6, 576 * KR_STRIDE, WS_KR)
    a("buffer_load_dwordx4 v[4:7], v2, s[12:15], s19 offen")
    a("buffer_load_dwordx2 v[8:9], v2, s[12:15], s19 offen offset:16")
    a("buffer_load_dwordx4 v[12:15], v2, s[8:11], s18 offen")
    a("s_lshl_b32 s20, s3, 2", f"s_add_u32 s20, s20, {hex(WS_KSC)}", "s_add_u32 s20, s6, s20", "s_addc_u32 s21, s7, 0")
    a("s_load_dword s24, s[20:21], 0")
    a("s_lshr_b32 s20, s3, 1", "s_lshl_b32 s20, s20, 2", "s_add_u32 s20, s4, s20", "s_addc_u32 s21, s5, 0")
    a("s_load_dword s25, s[20:21], 0")
    srd(a, 28, 6, XBYTES, WS_ZT)
    a("v_mov_b32 v16, 0", "v_mov_b32 v17, 0", "v_mov_b32 v18, 0", "v_mov_b32 v19, 0")
    a("v_lshrrev_b32 v3, 5, v0", "v_and_b32 v10, 31, v0")
    a(f"v_mul_u32_u24 v11, {KC_STRIDE}, v3", "v_lshl_add_u32 v11, v10, 4, v11", "v_add_u32 v11, 4096, v11")
    a("v_cmp_gt_u32 vcc, 4, v3", "v_cmp_gt_u32 s[22:23], 24, v10", "s_and_b64 vcc, vcc, s[22:23]")
    a("s_and_saveexec_b64 s[22:23], vcc")
    a("ds_write_b128 v11, v[16:19]")
    a("s_mov_b64 exec, s[22:23]")
    a("v_cmp_gt_u32 vcc, 8, v0", "s_and_saveexec_b64 s[22:23], vcc")
    a(f"ds_write_b128 v2, v[16:19] offset:{K2_U}")
    a("s_mov_b64 exec, s[22:23]")
    a("v_and_b32 v3, 63, v0", "v_and_b32 v10, 15, v3", "v_lshrrev_b32 v11, 4, v3")
    a("v_and_b32 v16, 3, v10", f"v_mul_u32_u24 v16, {KC_STRIDE}, v16", "v_lshrrev_b32 v17, 2, v10", "v_lshlrev_b32 v17, 7, v17")
    a("v_sub_u32 v16, v16, v17", "v_lshl_add_u32 v16, v11, 4, v16")
    a("s_lshl_b32 s20, s17, 7", "s_sub_u32 s20, 384, s20")
    a("s_add_u32 s21, s20, 384", "v_add_u32 v16, s21, v16")
    a("v_lshlrev_b32 v17, 3, v10", "v_lshl_add_u32 v17, v11, 4, v17")
    a(f"s_add_u32 s21, s20, {K2_U + 8}", "v_add_u32 v17, s21, v17")
    a("s_waitcnt vmcnt(1)")
    for k in range(5):
        a(f"v_alignbit_b32 v{20+k}, v{5+k}, v{4+k}, 16")
    a(f"ds_write_b128 v2, v[4:7] offset:{3*KC_STRIDE}")
    a(f"ds_write_b128 v2, v[20:23] offset:{2*KC_STRIDE}")
    a("v_mov_b32 v26, v5", "v_mov_b32 v27, v6", "v_mov_b32 v28, v7", "v_mov_b32 v29, v8")
    a("v_mov_b32 v30, v21", "v_mov_b32 v31, v22", "v_mov_b32 v32, v23", "v_mov_b32 v33, v24")
    a(f"ds_write_b128 v2, v[26:29] offset:{1*KC_STRIDE}")
    a(f"ds_write_b128 v2, v[30:33] offset:0")
    a("s_waitcnt vmcnt(0)")
    stamp(a, 2)
    a(f"ds_write_b128 v2, v[12:15] offset:{K2_U + 128}")
    if PF2:
        a("v_mul_u32_u24 v4, 3641, v0", "v_lshrrev_b32 v4, 16, v4", "v_mul_u32_u24 v5, 18, v4", "v_sub_u32 v5, v0, v5")
        a("v_mul_u32_u24 v4, 9216, v4", "v_lshl_add_u32 v4, v5, 6, v4")
        a("s_and_b32 s20, s2, 7", "s_lshr_b32 s21, s2, 3", "s_mul_i32 s22, s21, 73728", "s_mul_i32 s23, s20, 1152", "s_add_u32 s22, s22, s23")
        a("v_add_u32 v4, s22, v4")
        a("s_mul_i32 s22, s20, 663552", "s_mul_i32 s23, s21, 9216", "s_add_u32 s22, s22, s23", "v_lshl_add_u32 v5, v0, 6, s22")
        a("v_cmp_gt_u32 vcc, 144, v0", "s_and_saveexec_b64 s[22:23], vcc", "s_cbranch_execz K2_NOPF")
        if PF2 & 1: a("global_load_dword v148, v4, s[32:33]")
        if PF2 & 2: a("global_load_dword v149, v4, s[34:35]")
        if PF2 & 4: a("global_load_dword v150, v5, s[36:37]")
        a("K2_NOPF:")
        a("s_mov_b64 exec, s[22:23]")
    ACC = 20
    AF = 52
    BF = 84
    a("s_waitcnt lgkmcnt(0)", "s_barrier")
    stamp(a, 3)
    for i in range(32): a(f"v_mov_b32 v{ACC+i}, 0")
    DEPTH = 4
    def load(g):
        res, k = divmod(g, 8)
        i = 7 - k
        roff = 64 if res == 0 else 0
        a(f"ds_read_b128 v[{AF+4*i}:{AF+4*i+3}], v16 offset:{512*(7-i) + roff}")
        b = BF + 32 * res + 4 * k
        a(f"ds_read_b64 v[{b}:{b+1}], v17 offset:{512*k + roff}")
        a(f"ds_read_b64 v[{b+2}:{b+3}], v17 offset:{512*k + roff + 8}")
    for g in range(DEPTH): load(g)
    for g in range(16):
        res, k = divmod(g, 8)
        i = 7 - k
        issued = min(16, g + DEPTH)
        a(f"s_waitcnt lgkmcnt({3*(issued - g - 1)})")
        for ip in range(0, 8 - i):
            j = i + ip
            b = BF + 32 * res + 4 * ip
            a(f"v_mfma_f32_16x16x32_f16 v[{ACC+4*j}:{ACC+4*j+3}], v[{AF+4*i}:{AF+4*i+3}], v[{b}:{b+3}], v[{ACC+4*j}:{ACC+4*j+3}]")
            if ip == 0 and g + DEPTH < 16: load(g + DEPTH)
    stamp(a, 4)
    a("v_lshlrev_b32 v4, 4, v3")
    a.flush(10)
    for w in range(4):
        a(f"s_cmp_eq_u32 s17, {w}", f"s_cbranch_scc0 K2_R{w}")
        for o in range(4):
            if o == w: continue
            rank = (w - o - 1) & 3
            for t in range(2):
                j = 2 * o + t
                a(f"ds_write_b128 v4, v[{ACC+4*j}:{ACC+4*j+3}] offset:{K2_RED + ((o*3 + rank)*2 + t)*1024}")
        for t in range(2):
            for r in range(4): a(f"v_mov_b32 v{52+4*t+r}, v{ACC+4*(2*w+t)+r}")
        a(f"K2_R{w}:")
    a.flush(8)
    a("s_waitcnt lgkmcnt(0)", "s_barrier")
    stamp(a, 5)
    a("s_mul_i32 s20, s17, 6144", "v_add_u32 v4, s20, v4")
    for rank in range(3):
        for t in range(2):
            a(f"ds_read_b128 v[{60+8*rank+4*t}:{63+8*rank+4*t}], v4 offset:{K2_RED + (rank*2+t)*1024}")
    a("s_lshl_b32 s20, s17, 10", "v_lshl_add_u32 v5, v3, 3, s20")
    for t in range(2):
        a(f"ds_read_b64 v[{84+2*t}:{85+2*t}], v5 offset:{K2_U + 128 + 512*t}")
    a("s_waitcnt lgkmcnt(0)")
    a("s_lshl_b32 s26, s25, 16", "s_and_b32 s27, s25, 0xffff0000", "s_bitcmp1_b32 s3, 0", "s_cselect_b32 s25, s27, s26")
    for rank in range(3):
        for p in range(4):
            a(f"v_pk_add_f32 v[{52+2*p}:{53+2*p}], v[{52+2*p}:{53+2*p}], v[{60+8*rank+2*p}:{61+8*rank+2*p}]")
    for t in range(2):
        for p in range(2):
            y = 52 + 4 * t + 2 * p
            u = 84 + 2 * t + p
            a(f"v_mul_f32 v{y}, s24, v{y}", f"v_mul_f32 v{y+1}, s24, v{y+1}")
            a(f"v_cvt_pk_bf16_f32 v6, v{y}, v{y+1}")
            unpack(a, y, 6)
            a(f"v_cvt_f32_f16 v8, v{u}", f"v_cvt_f32_f16_sdwa v9, v{u} dst_sel:DWORD dst_unused:UNUSED_PAD src0_sel:WORD_1")
            a("v_mul_f32 v8, s25, v8", "v_mul_f32 v9, s25, v9")
            a("v_cvt_pk_bf16_f32 v6, v8, v9")
            unpack(a, 8, 6)
            a(f"v_pk_add_f32 v[8:9], v[8:9], v[{y}:{y+1}]")
            a(f"v_cvt_pk_bf16_f32 v{88+2*t+p}, v8, v9")
    a("v_and_b32 v6, 1, v3", "v_cmp_eq_u32 vcc, 1, v6")
    a("v_cndmask_b32 v8, v90, v88, vcc", "v_cndmask_b32 v9, v91, v89, vcc")
    a("v_lshrrev_b32 v7, 1, v3", "v_lshl_add_u32 v7, v6, 5, v7", "v_mul_u32_u24 v7, 9216, v7")
    a(f"v_mov_b32_dpp v10, v8 quad_perm:[1,0,3,2] {DPPM}", f"v_mov_b32_dpp v11, v9 quad_perm:[1,0,3,2] {DPPM}")
    a(f"s_mul_i32 s20, s17, {64*9216}", "s_lshl_b32 s21, s3, 4", "s_add_u32 s20, s20, s21")
    a("v_cndmask_b32 v88, v88, v10, vcc", "v_cndmask_b32 v89, v89, v11, vcc")
    a("v_cndmask_b32 v90, v10, v90, vcc", "v_cndmask_b32 v91, v11, v91, vcc")
    a("buffer_store_dwordx4 v[88:91], v7, s[28:31], s20 offen")
    stamp(a, 6)
    stamp_end(a, 6, 1)
    a("K2_END:")
    a("s_endpgm")
    return kdesc("k2_kernel", 152, 40)

K3_LDS = 9216
def gen_k3(a):
    header(a, "k3_kernel")
    a("s_cmp_ge_u32 s2, 256", "s_cbranch_scc1 K3_END")
    stamp_begin(a, 4)
    a("s_load_dwordx2 s[4:5], s[0:1], 0", "s_load_dwordx2 s[6:7], s[0:1], 128")
    a("s_load_dwordx2 s[32:33], s[0:1], 80", "s_load_dwordx2 s[34:35], s[0:1], 112")
    a("s_and_b32 s16, s2, 7", "s_lshl_b32 s16, s16, 5", "s_lshr_b32 s3, s2, 3", "s_add_u32 s16, s3, s16")
    a("s_mul_i32 s3, s16, 9216", "s_lshl_b32 s17, s16, 4")
    a("v_lshrrev_b32 v1, 5, v0", "v_and_b32 v2, 31, v0")
    a("v_mul_u32_u24 v3, 1152, v1", "v_lshl_add_u32 v3, v2, 2, v3")
    a("v_lshlrev_b32 v6, 4, v0", "v_lshlrev_b32 v7, 2, v2")
    a("v_readfirstlane_b32 s18, v0")
    a("s_waitcnt lgkmcnt(0)")
    stamp(a, 1)
    srd(a, 8, 4, XBYTES)
    srd(a, 12, 6, XBYTES, WS_ZT)
    srd(a, 20, 32, 1152)
    a("s_add_u32 s19, s3, 4096")
    a("buffer_load_dwordx4 v[60:63], v6, s[12:15], s3 offen")
    a("buffer_load_dwordx4 v[64:67], v6, s[12:15], s19 offen")
    a("s_add_u32 s19, s3, 8192", "v_and_b32 v9, 0x3ff, v6")
    a("buffer_load_dwordx4 v[68:71], v9, s[12:15], s19 offen")
    for j in range(9):
        a(f"buffer_load_dword v{10+j}, v3, s[8:11], s3 offen offset:{128*j}")
    for j in range(9):
        a(f"buffer_load_dword v{50+j}, v7, s[20:23], 0 offen offset:{128*j}")
    srd(a, 24, 34, XBYTES)
    srd(a, 28, 6, XBYTES, WS_X2)
    srd(a, 36, 6, 8192, WS_KEYS)
    a("v_lshrrev_b32 v4, 6, v0", "v_mul_u32_u24 v4, 2304, v4", "v_lshl_add_u32 v4, v2, 3, v4")
    a("v_and_b32 v5, 1, v1")
    a("v_mul_u32_u24 v5, 0x020202, v5", f"v_lshlrev_b32 v8, 25, v1", "v_and_b32 v8, 0x02000000, v8")
    a("v_or_b32 v5, v5, v8", "v_add_u32 v5, 0x05040100, v5")
    a("v_lshlrev_b32 v8, 2, v0")
    a("s_waitcnt vmcnt(19)")
    for k in range(2):
        a(f"ds_write2st64_b32 v8, v{60+4*k}, v{61+4*k} offset0:{4*k} offset1:{9+4*k}")
        a(f"ds_write2st64_b32 v8, v{62+4*k}, v{63+4*k} offset0:{18+4*k} offset1:{27+4*k}")
    a("s_waitcnt vmcnt(18)")
    stamp(a, 2)
    a("s_cmp_ge_u32 s18, 64", "s_cbranch_scc1 K3_SKIP")
    a("ds_write2st64_b32 v8, v68, v69 offset0:8 offset1:17")
    a("ds_write2st64_b32 v8, v70, v71 offset0:26 offset1:35")
    a("K3_SKIP:")
    a("s_waitcnt lgkmcnt(0)", "s_barrier")
    for j in range(9):
        a(f"ds_read_b64 v[{60+2*j}:{61+2*j}], v4 offset:{256*j}")
    X = 20
    a("s_waitcnt vmcnt(9)")
    stamp(a, 3)
    for j in range(9):
        a(f"s_waitcnt lgkmcnt({8-j})")
        a(f"v_perm_b32 v44, v{61+2*j}, v{60+2*j}, v5")
        unpack(a, 46, 44)
        unpack(a, X + 2 * j, 10 + j)
        a(f"v_pk_add_f32 v[46:47], v[46:47], v[{X+2*j}:{X+2*j+1}]")
        a(f"v_cvt_pk_bf16_f32 v44, v46, v47")
        unpack(a, X + 2 * j, 44)
    ln_stats(a, X, 40, 42, 44, 46, 48)
    a("s_waitcnt vmcnt(0)")
    stamp(a, 4)
    a("v_mov_b32 v60, 0", "v_mov_b32 v61, 0")
    for j in range(9):
        ln_apply_pair(a, X + 2 * j, 40, 42, 44, 10 + j)
        a(f"buffer_store_dword v{10+j}, v3, s[28:31], s3 offen offset:{128*j}{S3MOD}")
        unpack(a, 46, 50 + j)
        a("v_pk_fma_f32 v[60:61], v[44:45], v[46:47], v[60:61]")
        a(f"v_pk_add_f32 v[44:45], v[44:45], v[{X+2*j}:{X+2*j+1}]")
        a(f"v_cvt_pk_bf16_f32 v{50+j}, v44, v45")
        a(f"buffer_store_dword v{50+j}, v3, s[24:27], s3 offen offset:{128*j}{S3MOD}")
    a("v_add_f32 v60, v60, v61")
    red32(a, "v_add_f32", 60, 61)
    a("v_cvt_pk_bf16_f32 v60, v60, v60")
    a("v_ashrrev_i32 v61, 31, v60", "v_or_b32 v61, 0x80000000, v61", "v_xor_b32 v60, v60, v61", "v_and_b32 v60, 0xffff0000, v60")
    a("s_lshl_b32 s19, s16, 3", "v_add_u32 v61, s19, v1", "v_sub_u32 v62, 0x87ff, v61", "v_or_b32 v60, v60, v62", "v_lshlrev_b32 v61, 2, v61")
    a("v_cmp_eq_u32 vcc, 0, v2", "s_and_saveexec_b64 s[40:41], vcc")
    a("buffer_store_dword v60, v61, s[36:39], 0 offen")
    stamp(a, 5)
    stamp_end(a, 6, 2)
    a("K3_END:")
    a("s_endpgm")
    return kdesc("k3_kernel", 80, 48)

K4_CAND = 0
K4_SEL = 1024
K4_ACT = 1088
K4_RED = 2048
K4_XR = K4_RED + 12288
K4_LDS = K4_XR + 9216
K4_FLAG = K4_SEL + 32
K4_NW = 15

class Pool:
    def __init__(self, regs): self.free = list(regs)
    def get(self): return self.free.pop(0)
    def put(self, r): self.free.append(r)

def ce_inlane(a, x, i, j, pool, D=None):
    t = pool.get()
    if D is None:
        a(f"v_max_u32 v{t}, v{x[i]}, v{x[j]}", f"v_min_u32 v{x[j]}, v{x[i]}, v{x[j]}")
    else:
        a(f"v_med3_u32 v{t}, v{x[i]}, v{x[j]}, v{D[0]}", f"v_med3_u32 v{x[j]}, v{x[i]}, v{x[j]}, v{D[1]}")
    pool.put(x[i]); x[i] = t

def clean8(a, x, pool, DE, D=None, rev=False):
    t = [pool.get() for _ in range(4)]
    for i in range(4):
        a(f"v_mov_b32_dpp v{t[i]}, v{x[3-i if rev else i]} quad_perm:[1,0,3,2] {DPPM}")
    for i in range(4):
        a(f"v_med3_u32 v{t[i]}, v{x[i]}, v{t[i]}, v{DE}")
    for i in range(4): pool.put(x[i]); x[i] = t[i]
    for (i, j) in ((0, 2), (1, 3), (0, 1), (2, 3)): ce_inlane(a, x, i, j, pool, D)

def merge_mirror(a, x, pool, M):
    c = [pool.get() for _ in range(4)]
    for i in range(4):
        a(f"v_max_u32_dpp v{c[i]}, v{x[3-i]}, v{x[i]} {M} {DPPM}")
    for i in range(4): pool.put(x[i]); x[i] = c[i]

def merge_swap(a, x, pool, insn):
    t = [pool.get() for _ in range(4)]
    for i in range(4): a(f"v_mov_b32 v{t[i]}, v{x[i]}")
    for i in range(4): a(f"{insn} v{x[i]}, v{t[i]}")
    for i in range(4): a(f"v_max_u32 v{x[i]}, v{x[i]}, v{t[i]}")
    for i in range(4): pool.put(t[i])

MIRRORS = ("quad_perm:[3,2,1,0]", "row_half_mirror", "row_mirror")

def gen_k4(a):
    header(a, "k4_kernel")
    a("s_cmp_ge_u32 s2, 144", "s_cbranch_scc1 K4_END")
    stamp_begin(a, K4_NW)
    a("s_load_dwordx2 s[34:35], s[0:1], 128", "s_load_dwordx4 s[4:7], s[0:1], 88", "s_load_dwordx2 s[32:33], s[0:1], 104")
    a("s_load_dwordx2 s[30:31], s[0:1], 0")
    a("s_and_b32 s16, s2, 7", "s_lshr_b32 s3, s2, 3", "s_mul_i32 s2, s16, 18", "s_add_u32 s2, s2, s3")
    a("v_readfirstlane_b32 s17, v0", "s_lshr_b32 s17, s17, 6")
    a("v_and_b32 v1, 63, v0", "v_and_b32 v2, 15, v1", "v_lshrrev_b32 v3, 4, v1")
    a("s_mov_b32 s28, 0x05040100", "s_mov_b32 s29, 0x07060302")
    def transpose(src, dst):
        for j in range(4):
            for p in range(4):
                lo = src + 2 * (2 * p) + (j >> 1); hi = src + 2 * (2 * p + 1) + (j >> 1)
                a(f"v_perm_b32 v{dst+4*j+p}, v{hi}, v{lo}, s{28 + (j & 1)}")
    a("s_cmp_ge_u32 s17, 9", "s_cbranch_scc1 K4_G")
    a("s_setprio 3")
    a("v_mov_b32 v4, 0", "v_lshlrev_b32 v5, 2, v0", "v_min_u32 v5, 1084, v5", "ds_write_b32 v5, v4")
    a("v_lshlrev_b32 v4, 4, v0")
    a("v_and_b32 v6, 1, v1", "v_subrev_u32 v6, 1, v6")
    a("s_cmp_lt_u32 s17, 4", "s_cselect_b32 s38, 8192, 0")
    a("s_waitcnt lgkmcnt(0)")
    stamp(a, 1)
    a(f"s_add_u32 s36, s34, {hex(WS_KEYS)}", "s_addc_u32 s37, s35, 0", "s_mov_b32 s39, 0x20000")
    a("buffer_load_dwordx4 v[8:11], v4, s[36:39], 0 offen")
    a("s_movk_i32 s19, 4096")
    a("buffer_load_dwordx4 v[12:15], v4, s[36:39], s19 offen")
    a("s_barrier")
    srd(a, 8, 32, F * D * 2)
    srd(a, 20, 34, 144 * 4608 * 4, WS_PART)
    a("v_mul_u32_u24 v5, 9216, v3", "v_lshl_add_u32 v5, v2, 3, v5")
    a("s_mul_i32 s18, s2, 36864", "s_lshl_b32 s19, s17, 7", "s_add_u32 s18, s18, s19")
    a("v_and_b32 v7, 7, v1", "v_lshlrev_b32 v7, 2, v7")
    a("s_waitcnt vmcnt(0)")
    a("s_cmp_eq_u32 s17, 8", "s_cbranch_scc1 K4_B_POLL")
    a("s_cmp_eq_u32 s17, 4", "s_cbranch_scc1 K4_L2")
    a("s_cmp_gt_u32 s17, 4", "s_cbranch_scc1 K4_B_LOW")
    stamp(a, 2)
    pool = Pool(range(16, 28))
    x = [8, 9, 10, 11]; y = [12, 13, 14, 15]
    for (i, j) in ((0, 1), (2, 3), (0, 2), (1, 3), (1, 2)):
        ce_inlane(a, x, i, j, pool); ce_inlane(a, y, i, j, pool)
    clean8(a, x, pool, 6, rev=True); clean8(a, y, pool, 6, rev=True)
    def merge_pair(x, y):
        for i in range(4):
            a(f"v_max_u32_dpp v{x[i]}, v{y[3-i]}, v{x[i]} quad_perm:[1,0,3,2] {DPPM}")
        for i in range(4): pool.put(y[i])
    merge_pair(x, y); clean8(a, x, pool, 6)
    a("s_lshl_b32 s19, s17, 7", "v_lshlrev_b32 v32, 4, v2", "v_lshl_add_u32 v32, v3, 5, v32", "v_add_u32 v32, s19, v32")
    for M in MIRRORS:
        merge_mirror(a, x, pool, M); clean8(a, x, pool, 6)
    for i in range(4): a(f"v_mov_b32 v{28+i}, v{x[i]}")
    a("s_mov_b32 exec_lo, 0x00030003", "s_mov_b32 exec_hi, 0x00030003")
    a(f"ds_write_b128 v32, v[28:31] offset:{K4_CAND}")
    a("s_mov_b64 exec, -1")
    stamp(a, 3)
    a("s_branch K4_B_LOW")
    a("K4_L2:")
    srd(a, 12, 34, XBYTES, WS_X2)
    a("s_mov_b32 s24, 0xcccccccc", "s_mov_b32 s25, 0xcccccccc", "s_mov_b32 s26, 0xf0f0f0f0", "s_mov_b32 s27, 0xf0f0f0f0", "s_movk_i32 s40, 1152")
    a("v_lshrrev_b32 v34, 3, v1", "v_lshlrev_b32 v34, 4, v34", "v_lshlrev_b32 v4, 4, v2")
    a("v_mov_b32 v35, 1", "v_mov_b32 v36, 0")
    a("K4_L2POLL:")
    a(f"ds_read_b128 v[8:11], v4 offset:{K4_CAND}")
    a(f"ds_read_b128 v[12:15], v4 offset:{K4_CAND + 256}")
    a("s_waitcnt lgkmcnt(0)")
    a("v_min3_u32 v16, v8, v9, v10", "v_min3_u32 v17, v11, v12, v13", "v_min3_u32 v16, v16, v14, v15", "v_min_u32 v16, v16, v17", "v_cmp_eq_u32 vcc, 0, v16")
    a("s_cbranch_vccnz K4_L2POLL")
    stamp(a, 2)
    pool = Pool(range(16, 28))
    x = [8, 9, 10, 11]; y = [12, 13, 14, 15]
    merge_pair(x, y); clean8(a, x, pool, 6)
    for li, M in enumerate(MIRRORS):
        merge_mirror(a, x, pool, M)
        if li < 2: clean8(a, x, pool, 6)
    a(f"v_cndmask_b32 v30, v{x[0]}, v{x[1]}, s[24:25]", f"v_cndmask_b32 v31, v{x[2]}, v{x[3]}, s[24:25]", "v_cndmask_b32 v30, v30, v31, s[26:27]")
    a("v_mov_b32_dpp v30, v30 row_shr:8 row_mask:0xf bank_mask:0xc")
    a("v_and_b32 v31, 0x7ff, v30", "v_sub_u32 v31, 2047, v31", "v_mad_u32_u24 v31, v31, s40, v34")
    for k in range(9):
        a(f"s_mov_b32 m0, {K4_XR + 896*k}")
        a(f"buffer_load_dwordx4 v31, s[12:15], 0 offen offset:{128*k} lds")
    a(f"ds_write_b32 v7, v30 offset:{K4_SEL}")
    a(f"ds_write_b32 v36, v35 offset:{K4_FLAG + 24}")
    stamp(a, 3)
    a("s_waitcnt vmcnt(0)")
    a(f"ds_write_b32 v36, v35 offset:{K4_FLAG + 28}")
    a("K4_B_LOW:")
    a("s_setprio 0")
    a("s_branch K4_B_NOSIDE")
    a("K4_B_POLL:")
    a("s_setprio 0")
    a("s_sleep 1")
    a(f"ds_read_b32 v12, v7 offset:{K4_SEL}")
    a("s_waitcnt lgkmcnt(0)")
    a("v_cmp_eq_u32 vcc, 0, v12")
    a("s_cbranch_vccnz K4_B_POLL")
    stamp(a, 3)
    WD = 32
    srd(a, 12, 34, XBYTES, WS_X2)
    srd(a, 24, 34, XBYTES, WS_ZT)
    srd(a, 36, 30, XBYTES)
    a("v_readlane_b32 s19, v12, s16")
    a("s_and_b32 s19, s19, 0x7ff", "s_sub_u32 s19, 2047, s19")
    a("v_and_b32 v13, 31, v1", "s_lshl_b32 s40, s3, 5", "v_add_u32 v13, s40, v13")
    a("v_lshlrev_b32 v14, 1, v13", "v_lshlrev_b32 v15, 4, v13")
    a("s_mul_i32 s40, s19, 1152")
    a("s_lshr_b32 s41, s19, 3", "s_mul_i32 s41, s41, 9216", "s_and_b32 s19, s19, 7", "s_lshl_b32 s19, s19, 1", "s_add_u32 s41, s41, s19")
    a("buffer_load_ushort v16, v14, s[12:15], s40 offen")
    a("buffer_load_ushort v17, v14, s[36:39], s40 offen")
    a("buffer_load_ushort v18, v15, s[24:27], s41 offen")
    srd(a, 12, 34, 4608 * 4 + 32, WS_IDX)
    a("v_lshlrev_b32 v14, 2, v13", "s_mul_i32 s40, s16, 2304", "s_add_u32 s40, s40, 32")
    a("s_waitcnt vmcnt(0)")
    a("v_lshlrev_b32 v17, 16, v17", "v_lshlrev_b32 v18, 16, v18", "v_add_f32 v17, v17, v18", "v_cvt_pk_bf16_f32 v17, v17, v17")
    a("v_and_b32 v17, 0xffff0000, v17", "v_or_b32 v16, v16, v17")
    a("buffer_store_dword v16, v14, s[12:15], s40 offen")
    a("s_cmp_lg_u32 s2, 0", "s_cbranch_scc1 K4_B_NOSIDE")
    a("buffer_store_dword v12, v7, s[12:15], 0 offen")
    a("K4_B_NOSIDE:")
    a("v_min_u32 v13, 24, v7")
    a("K4_B_POLL2:")
    a("s_sleep 1")
    a(f"ds_read_b32 v14, v13 offset:{K4_FLAG}")
    a("s_waitcnt lgkmcnt(0)")
    a("v_cmp_eq_u32 vcc, 0, v14")
    a("s_cbranch_vccnz K4_B_POLL2")
    for r in range(8):
        if r == 4: a("s_add_u32 s18, s18, 4608")
        a(f"buffer_load_dwordx2 v[{WD+2*r}:{WD+2*r+1}], v5, s[8:11], s18 offen offset:{1152*(r&3)}{WMOD}")
    a("s_barrier")
    a("s_waitcnt vmcnt(0)")
    stamp(a, 4)
    transpose(WD, 48)
    a("v_and_b32 v16, 7, v2", "v_lshlrev_b32 v16, 6, v16", "v_lshl_add_u32 v16, v3, 4, v16")
    a("s_mul_i32 s18, s2, 18432", "s_lshl_b32 s19, s17, 11", "s_add_u32 s18, s18, s19")
    a("v_lshlrev_b32 v17, 4, v1")
    a("s_barrier")
    stamp(a, 5)
    a(f"ds_read_b128 v[20:23], v16 offset:{K4_ACT}")
    a("s_waitcnt lgkmcnt(0)")
    for j in range(4):
        a(f"v_mfma_f32_16x16x32_bf16 v[{32+4*j}:{35+4*j}], v[20:23], v[{48+4*j}:{51+4*j}], 0")
    for j in (0, 2):
        for r in range(4): a(f"v_permlane32_swap_b32 v{32+4*j+r}, v{36+4*j+r}")
        a(f"buffer_store_dwordx4 v[{32+4*j}:{35+4*j}], v17, s[20:23], s18 offen offset:{512*j}{S4MOD}")
    stamp(a, 6)
    stamp_end(a, 34, 3)
    a("s_endpgm")
    a("K4_G:")
    a("s_sub_u32 s17, s17, 9")
    a("s_mul_i32 s18, s17, 96", "v_lshl_add_u32 v5, v3, 3, s18")
    a("v_mul_u32_u24 v5, 9216, v5")
    a("v_and_b32 v6, 7, v2", "v_lshl_add_u32 v5, v6, 3, v5")
    a("s_lshl_b32 s18, s2, 6", "v_add_u32 v5, s18, v5")
    a("v_cmp_gt_u32 vcc, 8, v2")
    a("s_mov_b32 s40, 9216", "s_mov_b32 s41, 0", f"s_mov_b32 s38, {9216*25}", "s_mov_b32 s39, 0")
    a("s_waitcnt lgkmcnt(0)")
    stamp(a, 1)
    a("v_mov_b32 v12, s4", "v_mov_b32 v13, s5", "v_mov_b32 v14, s6", "v_mov_b32 v15, s7")
    a("v_cndmask_b32 v12, v14, v12, vcc", "v_cndmask_b32 v13, v15, v13, vcc")
    a("v_add_co_u32 v12, vcc, v12, v5", "v_addc_co_u32 v13, vcc, 0, v13, vcc")
    W = 32
    n = 0
    for ks in range(3):
        for r in range(8):
            d = W + 16 * ks + 2 * r
            a(f"global_load_dwordx2 v[{d}:{d+1}], v[12:13], off{WMOD}")
            if not (ks == 2 and r == 7):
                a(f"v_lshl_add_u64 v[12:13], v[12:13], 0, s[{'40:41' if r < 7 else '38:39'}]")
            n += 1
            if n == 4: a("s_barrier")
    a("s_lshl_b32 s18, s17, 2", "v_mov_b32 v16, s18", "v_mov_b32 v17, 1", f"ds_write_b32 v16, v17 offset:{K4_FLAG}")
    stamp(a, 2)
    TW = [80, 32, 48]
    a("s_mul_i32 s18, s17, 1536", "v_lshl_add_u32 v18, v6, 4, s18", "v_lshl_add_u32 v18, v3, 7, v18", "v_mov_b32 v7, 0")
    a("s_waitcnt vmcnt(16)"); transpose(W, TW[0])
    a("s_waitcnt vmcnt(8)"); transpose(W + 16, TW[1])
    a("s_lshl_b32 s18, s17, 6", "v_add_u32 v4, s18, v1")
    a("v_lshrrev_b32 v8, 5, v4", "v_and_b32 v9, 31, v4")
    a("v_and_b32 v10, 3, v9", "v_lshlrev_b32 v10, 9, v10")
    a("v_lshrrev_b32 v11, 2, v9", "v_lshl_add_u32 v10, v11, 4, v10")
    a("v_lshrrev_b32 v11, 2, v8", "v_lshl_add_u32 v10, v11, 8, v10")
    a("v_and_b32 v11, 3, v8", "v_lshl_add_u32 v10, v11, 2, v10")
    a("v_lshlrev_b32 v11, 1, v4")
    a("s_setprio 2")
    a("K4_G_POLL:")
    a(f"ds_read_b32 v17, v7 offset:{K4_FLAG + 28}")
    a("s_waitcnt lgkmcnt(0)")
    a("v_cmp_eq_u32 vcc, 0, v17")
    a("s_cbranch_vccnz K4_G_POLL")
    stamp(a, 3)
    for ks in range(3):
        a(f"ds_read_b128 v[{20+4*ks}:{23+4*ks}], v18 offset:{K4_XR + 512*ks}")
    ACC = 96
    a("s_lshl_b32 s18, s17, 11", "v_lshl_add_u32 v16, v1, 4, s18")
    for ks in range(3):
        a(f"s_waitcnt lgkmcnt({0 if STAMP == 4 else 2-ks})")
        if ks == 2:
            for p in range(4):
                a(f"s_waitcnt vmcnt({6-2*p})")
                if p == 3: stamp(a, 4)
                for j in range(4):
                    src = W + 32
                    lo = src + 2 * (2 * p) + (j >> 1); hi = src + 2 * (2 * p + 1) + (j >> 1)
                    a(f"v_perm_b32 v{TW[2]+4*j+p}, v{hi}, v{lo}, s{28 + (j & 1)}")
        for j in range(4):
            c = "0" if ks == 0 else f"v[{ACC+4*j}:{ACC+4*j+3}]"
            a(f"v_mfma_f32_16x16x32_bf16 v[{ACC+4*j}:{ACC+4*j+3}], v[{20+4*ks}:{23+4*ks}], v[{TW[ks]+4*j}:{TW[ks]+4*j+3}], {c}")
    a("s_mov_b32 exec_lo, -1", "s_mov_b32 exec_hi, 0")
    for j in range(4):
        a(f"ds_write_b128 v16, v[{ACC+4*j}:{ACC+4*j+3}] offset:{K4_RED + 512*j}")
    a("s_mov_b64 exec, -1")
    a("s_waitcnt lgkmcnt(0)", "s_barrier")
    stamp(a, 5)
    a("s_cmp_ge_u32 s17, 4", "s_cbranch_scc1 K4_NOACT")
    for w in range(6):
        a(f"ds_read_b32 v{32+2*w}, v10 offset:{K4_RED + 2048*w}")
        a(f"ds_read_b32 v{33+2*w}, v10 offset:{K4_RED + 2048*w + 128}")
    a("s_waitcnt lgkmcnt(8)")
    a(f"v_pk_add_f32 v[32:33], v[32:33], v[34:35]")
    a("s_waitcnt lgkmcnt(4)")
    a(f"v_pk_add_f32 v[36:37], v[36:37], v[38:39]")
    a("s_waitcnt lgkmcnt(0)")
    a(f"v_pk_add_f32 v[40:41], v[40:41], v[42:43]")
    a(f"v_pk_add_f32 v[32:33], v[32:33], v[36:37]")
    a(f"v_pk_add_f32 v[32:33], v[32:33], v[40:41]")
    a("v_cvt_pk_bf16_f32 v34, v32, v33")
    unpack(a, 32, 34)
    a(f"v_mul_f32 v34, {f32(-LOG2E)}, v32", "v_exp_f32 v34, v34", "v_add_f32 v34, 1.0, v34", "v_rcp_f32 v34, v34", "v_mul_f32 v34, v32, v34")
    a("v_cvt_pk_bf16_f32 v34, v34, v34", "v_lshlrev_b32 v34, 16, v34")
    a("v_mul_f32 v34, v34, v33", "v_cvt_pk_bf16_f32 v34, v34, v34")
    a(f"ds_write_b16 v11, v34 offset:{K4_ACT}")
    a("s_waitcnt lgkmcnt(0)")
    a("K4_NOACT:")
    a("s_barrier")
    stamp(a, 6)
    stamp_end(a, 34, 3)
    a("K4_END:")
    a("s_endpgm")
    return kdesc("k4_kernel", 112, 48)

K5_LDS = 4096
def gen_k5(a):
    header(a, "k5_kernel")
    a("s_cmp_ge_u32 s2, 72", "s_cbranch_scc1 K5_END")
    stamp_begin(a, 4)
    a("s_load_dwordx2 s[6:7], s[0:1], 128", "s_load_dwordx2 s[34:35], s[0:1], 112")
    a("v_and_b32 v1, 15, v0", "v_lshrrev_b32 v2, 4, v0")
    a("v_mul_u32_u24 v3, 165888, v2", "v_lshl_add_u32 v3, v1, 4, v3")
    a("v_lshrrev_b32 v4, 2, v0", "s_lshl_b32 s3, s2, 4", "v_add_u32 v4, s3, v4", "v_and_b32 v5, 3, v0")
    a("v_bfe_u32 v6, v4, 4, 1", "v_lshl_add_u32 v5, v6, 2, v5")
    a("v_lshrrev_b32 v6, 7, v4", "v_lshlrev_b32 v6, 6, v6", "v_and_b32 v7, 15, v4", "v_lshl_add_u32 v6, v7, 2, v6")
    a("v_bfe_u32 v7, v4, 5, 2", "v_add_u32 v6, v6, v7")
    a("v_mul_u32_u24 v46, 2304, v5", "v_lshl_add_u32 v46, v6, 2, v46")
    a("v_lshlrev_b32 v5, 2, v5")
    a("s_lshl_b32 s3, s2, 8")
    a("s_waitcnt lgkmcnt(0)")
    stamp(a, 1)
    srd(a, 8, 6, 144 * 4608 * 4, WS_PART)
    for p in range(9):
        a(f"buffer_load_dwordx4 v[{8+4*p}:{11+4*p}], v3, s[8:11], s3 offen")
        if p < 8: a("s_add_u32 s3, s3, 18432")
    srd(a, 12, 6, 4608 * 4 + 32, WS_IDX)
    srd(a, 28, 34, XBYTES)
    a("buffer_load_dword v44, v5, s[12:15], 0 offen")
    a("buffer_load_dword v48, v46, s[12:15], 0 offen offset:32")
    a("v_lshlrev_b32 v7, 4, v0")
    for p in range(1, 9):
        a(f"s_waitcnt vmcnt({10-p})")
        a(f"v_pk_add_f32 v[8:9], v[8:9], v[{8+4*p}:{9+4*p}]", f"v_pk_add_f32 v[10:11], v[10:11], v[{10+4*p}:{11+4*p}]")
    stamp(a, 2)
    a("ds_write_b128 v7, v[8:11]")
    a("s_waitcnt vmcnt(0)")
    a("v_and_b32 v45, 0x7ff, v44", "v_sub_u32 v45, 2047, v45")
    a("v_mul_u32_u24 v46, 1152, v45", "v_lshl_add_u32 v46, v6, 1, v46")
    a("v_ashrrev_i32 v47, 31, v44", "v_not_b32 v47, v47", "v_or_b32 v47, 0x80000000, v47", "v_xor_b32 v47, v44, v47", "v_and_b32 v47, 0xffff0000, v47")
    a(f"v_mul_f32 v47, {f32(-LOG2E)}, v47", "v_exp_f32 v47, v47", "v_add_f32 v47, 1.0, v47", "v_rcp_f32 v47, v47")
    a("v_cvt_pk_bf16_f32 v47, v47, v47", "v_lshlrev_b32 v47, 16, v47")
    unpack(a, 50, 48)
    a("v_lshlrev_b32 v7, 2, v0")
    a("s_waitcnt lgkmcnt(0)", "s_barrier")
    stamp(a, 3)
    a("v_readfirstlane_b32 s3, v0", "s_cmp_ge_u32 s3, 64", "s_cbranch_scc1 K5_END1")
    for g in range(8):
        a(f"ds_read2st64_b32 v[{8+2*g}:{9+2*g}], v7 offset0:{2*g} offset1:{2*g+1}")
    for g in range(1, 8):
        a(f"s_waitcnt lgkmcnt({7-g})")
        a(f"v_pk_add_f32 v[8:9], v[8:9], v[{8+2*g}:{9+2*g}]")
    a("v_add_f32 v8, v8, v9")
    a("v_cvt_pk_bf16_f32 v8, v8, v8", "v_lshlrev_b32 v8, 16, v8")
    a("v_mul_f32 v8, v8, v47", "v_cvt_pk_bf16_f32 v8, v8, v8", "v_lshlrev_b32 v8, 16, v8")
    a("v_add_f32 v8, v8, v50", "v_cvt_pk_bf16_f32 v8, v8, v8", "v_lshlrev_b32 v8, 16, v8")
    a("v_add_f32 v8, v8, v51", "v_cvt_pk_bf16_f32 v8, v8, v8")
    a("buffer_store_short v8, v46, s[28:31], 0 offen")
    stamp(a, 4)
    a("K5_END1:")
    stamp_end(a, 6, 4)
    a("K5_END:")
    a("s_endpgm")
    return kdesc("k5_kernel", 52, 40)

def gen_k6(a, counts):
    header(a, "k6_kernel")
    a("s_cmp_ge_u32 s2, 1", "s_cbranch_scc1 K6_END")
    a("s_memrealtime s[44:45]")
    a("s_load_dwordx2 s[6:7], s[0:1], 128", "s_load_dwordx2 s[4:5], s[0:1], 120")
    a("s_waitcnt lgkmcnt(0)")
    if STAMP == 2: a(f"s_sub_u32 s4, s4, {512 * len(counts)}", "s_subb_u32 s5, s5, 0")
    for k, n in enumerate(counts):
        a("v_mov_b32 v10, -1", "v_mov_b32 v11, 0", "v_mov_b32 v12, 0")
        for it in range((n + 63) // 64):
            a(f"v_add_u32 v1, {64*it}, v0", f"v_min_u32 v1, {n-1}, v1", "v_lshlrev_b32 v1, 3, v1", f"v_add_u32 v1, {hex(WS_STAMP + k*0x100000)}, v1")
            a("global_load_dwordx2 v[2:3], v1, s[6:7]", "s_waitcnt vmcnt(0)")
            a("v_min_u32 v10, v10, v2", "v_max_u32 v11, v11, v2", "v_max_u32 v12, v12, v3")
        red64(a, "v_min_u32", 10, 13); red64(a, "v_max_u32", 11, 13); red64(a, "v_max_u32", 12, 13)
        if k == 0: a("v_mov_b32 v20, v10")
        a("v_sub_u32 v10, v10, v20", "v_sub_u32 v11, v11, v20", "v_sub_u32 v12, v12, v20")
        a(f"v_mov_b32 v1, {12*k}")
        a("s_mov_b64 exec, 1")
        a("global_store_dwordx3 v1, v[10:12], s[4:5]")
        a("s_mov_b64 exec, -1")
    a("v_sub_u32 v10, s44, v20", "v_mov_b32 v1, 60")
    a("s_mov_b64 exec, 1")
    a("global_store_dword v1, v10, s[4:5]")
    a("K6_END:")
    a("s_endpgm")
    return kdesc("k6_kernel", 32, 48)

def gen_k6_spin(a, nk):
    Q = int(os.environ.get("Q", "0")); Fm = int(os.environ.get("F", "0"))
    header(a, "k6_kernel")
    a("s_cmp_ge_u32 s2, 1", "s_cbranch_scc1 K6_END")
    a("s_memrealtime s[44:45]")
    a("s_load_dwordx2 s[6:7], s[0:1], 128")
    a("s_waitcnt lgkmcnt(0)")
    for k in range(nk):
        a(f"s_add_u32 s8, s6, {hex(WS_STAMP + k*0x100000)}", "s_addc_u32 s9, s7, 0", f"s_load_dword s{20+k}, s[8:9], 0")
    a(f"s_mov_b32 s{20+nk}, s44")
    a("s_waitcnt lgkmcnt(0)")
    if Q < nk: a(f"s_sub_u32 s10, s{21+Q}, s{20+Q}")
    else: a(f"s_sub_u32 s10, s{20+nk}, s20")
    a("s_min_u32 s10, s10, 10000", f"s_mul_i32 s10, s10, {Fm}")
    a("K6_LOOP:")
    a("s_memrealtime s[46:47]", "s_waitcnt lgkmcnt(0)", "s_sub_u32 s11, s46, s44", "s_cmp_lt_u32 s11, s10", "s_cbranch_scc1 K6_LOOP")
    a("K6_END:")
    a("s_endpgm")
    return kdesc("k6_kernel", 32, 48)

def main():
    hdr = open(f"/code/{NAME}.s.ref").read().split("; Override launch geometry")[0]
    out = hdr
    out += f"; @launch kernel=k1_kernel grid=(832,1,1) block=(256,1,1) lds={K1_LDS}\n"
    out += f"; @launch kernel=k2_kernel grid=(576,1,1) block=(256,1,1) lds={K2_LDS}\n"
    out += f"; @launch kernel=k3_kernel grid=(256,1,1) block=(256,1,1) lds={K3_LDS}\n"
    out += f"; @launch kernel=k4_kernel grid=(144,1,1) block=({64*K4_NW},1,1) lds={K4_LDS}\n"
    out += f"; @launch kernel=k5_kernel grid=(72,1,1) block=(256,1,1) lds={K5_LDS}\n"
    if STAMP in (1, 2, 3): out += "; @launch kernel=k6_kernel grid=(1,1,1) block=(64,1,1) lds=0\n"
    out += '.amdgcn_target "amdgcn-amd-amdhsa--gfx950"\n.text\n'
    descs = []
    gens = [gen_k1, gen_k2, gen_k3, gen_k4, gen_k5]
    if STAMP == 3: gens.append(lambda a: gen_k6_spin(a, 5))
    elif STAMP in (1, 2): gens.append(lambda a: gen_k6(a, [832*4, 576*4, 256*4, 144*K4_NW, 72*4]))
    for g in gens:
        a = Asm()
        descs.append(g(a))
        out += a.text()
    out += '.section .rodata,"a"\n'
    for d in descs:
        out += ".p2align 6\n" + d
    path = sys.argv[1] if len(sys.argv) > 1 else f"/code/{NAME}.s"
    open(path, "w").write(out)
    print("wrote", path, len(out))

if __name__ == "__main__":
    main()
```

```python
import sys, struct, math, os
sys.path.insert(0, "gen")
from asmlib import Asm

NAME = "sequential_preLN__ssm_conv_s4__moe_arch_mod__prompt"
L, D, N, F = 2048, 576, 128, 4608
XBYTES = L * D * 2
WS_UT = 0x000000
WS_X2 = 0x300000
WS_ZB1 = 0x600000
WS_ZB2 = 0x800000
WS_KEYS = 0x840000
WS_PART = 0x850000
WS_CLR, CLR_WG = 0x600000, 18560
CLRP_WG = 23744
WS_FLAG1 = 0xB00000
WS_IDX = 0xB10000
WS_DBG = 0xC00000
WS_STAMP = 0x8000000
PART_BYTES = 144 * 4608 * 4
C_FL, C_CAND, C_SEL, C_KEY, C_PAR, C_ACT, C_SIDE, C_RED2 = 0, 256, 768, 800, 832, 1024, 1536, 2048
C_U, U_SIZE = 3072, 4608
C_LNB = C_U + 3 * U_SIZE
C_XR = C_LNB
C_RED = C_LNB + 9280
G_BASE, G_SIZE = 35584, 36608
LDS_BYTES = G_BASE + 2 * G_SIZE + 36864
FL_LN1, FL_LNACK, FL_KCNT, FL_UF, FL_ZF, FL_KACK, FL_ROWSOK, FL_XRDY, FL_PARAM, FL_DOWN, FL_ZDONE = 0, 8, 12, 16, 20, 24, 28, 32, 36, 40, 48
FL_G = 64
FL_S6 = 160
FL_F2CNT, FL_INIT, FL_CLROK, FL_GISS, FL_KSEEN = 176, 180, 188, 192, 196
KG_ROW = 544
KG_T = [0, 16 * KG_ROW, 32 * KG_ROW, 41 * KG_ROW]
R_WS3 = 0
R_WS5 = R_WS3 + 193 * 16
R_WS7 = R_WS5 + 193 * 16
R_WS9 = R_WS7 + 128 * 16
R_RED = 10752
R2 = 31232
T_TAB = R2
T_DRE = R2 + 1296
T_DRO = T_DRE + 1280
T_G3 = T_DRO + 1280
T_G5 = T_G3 + 256
T_G7E = T_G5 + 256
T_G7O = T_G7E + 192
T_G9E = T_G7O + 192
T_G9O = T_G9E + 192
assert T_G9O + 192 <= G_SIZE and R_WS9 + 129 * 16 <= R_RED and R_RED + 13 * 1024 <= R2 and 57 * KG_ROW <= R2
IDX_ZERO, IDX_DUMMY = 641, 642
C_DOWN = G_BASE + 2 * G_SIZE

def f32(x): return "0x%08x" % struct.unpack("<I", struct.pack("<f", x))[0]
def f32v(x): return struct.unpack("<f", struct.pack("<f", x))[0]
LOG2E = math.log2(math.e)
LOG2E_HI = f32v(LOG2E); LOG2E_LO = LOG2E - LOG2E_HI
INV2PI = 1.0 / (2 * math.pi)
INV2PI_HI = f32v(INV2PI); INV2PI_LO = INV2PI - INV2PI_HI
DPPM = "row_mask:0xf bank_mask:0xf"
ENV = lambda k, d: int(os.environ.get(k, str(d)))
STAMP = ENV("STAMP", 0)
DBG = ENV("DBG", 0)
GUARD = 1 << 19

P_X, P_ARE, P_LDT, P_DSK, P_WR, P_GATE, P_UP, P_DOWN, P_OUT, P_DBG, P_WS = 4, 6, 18, 20, 24, 26, 28, 30, 32, 34, 36
S_WAVE, S_GUARD, S_XC, S_I = 38, 39, 40, 41
R0, R1, R2_, R3, R4 = 64, 68, 72, 76, 80
S_ONES, S_GB, S_ROLE, S_G, S_CH, S_BLK, S_B2 = 84, 85, 86, 87, 88, 89, 90
T0_, T1_, T2_, T3_, T4_, T5_ = 92, 93, 94, 95, 96, 97
SP0, SP1 = 98, 99
NSGPR = 100

def srd(a, d, base, nbytes, off=0):
    if off:
        a(f"s_add_u32 s{d}, s{base}, {hex(off)}", f"s_addc_u32 s{d+1}, s{base+1}, 0")
    else:
        a(f"s_mov_b32 s{d}, s{base}", f"s_mov_b32 s{d+1}, s{base+1}")
    a(f"s_mov_b32 s{d+2}, {hex(nbytes)}", f"s_mov_b32 s{d+3}, 0x20000")

def red16(a, op, v):
    for r in (8, 4, 2, 1):
        a(f"{op}_dpp v{v}, v{v}, v{v} row_ror:{r} {DPPM}")
def red32(a, op, v, t):
    red16(a, op, v)
    a(f"v_mov_b32 v{t}, v{v}", f"v_permlane16_swap_b32 v{v}, v{t}", f"{op} v{v}, v{v}, v{t}")
def red64x2(a, op1, v1, t1, op2, v2, t2):
    for r in (8, 4, 2, 1):
        a(f"{op1}_dpp v{v1}, v{v1}, v{v1} row_ror:{r} {DPPM}", f"{op2}_dpp v{v2}, v{v2}, v{v2} row_ror:{r} {DPPM}")
    for ins in ("v_permlane16_swap_b32", "v_permlane32_swap_b32"):
        a(f"v_mov_b32 v{t1}, v{v1}", f"v_mov_b32 v{t2}, v{v2}", f"{ins} v{v1}, v{t1}", f"{ins} v{v2}, v{t2}")
        a(f"{op1} v{v1}, v{v1}, v{t1}", f"{op2} v{v2}, v{v2}, v{t2}")

def stamp_begin(a):
    if not STAMP: return
    a("s_memrealtime s[44:45]")
    for i in range(1, 9): a(f"s_mov_b32 s{44+2*i}, 0")
def cstamp(a, i):
    if STAMP == 9: a(f"s_memtime s[{44+2*i}:{45+2*i}]")
def stamp(a, i):
    if not STAMP or STAMP == 9: return
    assert 1 <= i <= 8
    a(f"s_memrealtime s[{44+2*i}:{45+2*i}]")
def stamp2(a, i):
    if STAMP >= 2: stamp(a, i)
def stamp_end(a):
    if not STAMP: return
    a("s_waitcnt vmcnt(0) lgkmcnt(0)")
    a("s_memrealtime s[62:63]")
    a(f"s_lshl_b32 s43, s2, 4", f"s_add_u32 s43, s43, s{S_WAVE}", "s_lshl_b32 s43, s43, 6", f"s_add_u32 s43, s43, {hex(WS_STAMP)}")
    a("s_mov_b64 exec, 1")
    a("s_waitcnt lgkmcnt(0)")
    a("v_mov_b32 v1, s43")
    for i in range(10): a(f"v_mov_b32 v{4+i}, s{44+2*i}")
    a(f"global_store_dwordx4 v1, v[4:7], s[{P_WS}:{P_WS+1}]")
    a(f"global_store_dwordx4 v1, v[8:11], s[{P_WS}:{P_WS+1}] offset:16")
    a(f"global_store_dwordx2 v1, v[12:13], s[{P_WS}:{P_WS+1}] offset:32")
def endwave(a):
    stamp_end(a)
    a("s_endpgm")

def unpack(a, dst, src):
    a(f"v_lshlrev_b32 v{dst}, 16, v{src}", f"v_and_b32 v{dst+1}, 0xffff0000, v{src}")

def ln_stats(a, X, m2, rinv2, t0, t1, t2):
    a(f"v_pk_add_f32 v[{t0}:{t0+1}], v[{X}:{X+1}], v[{X+2}:{X+3}]")
    a(f"v_pk_add_f32 v[{t1}:{t1+1}], v[{X+4}:{X+5}], v[{X+6}:{X+7}]")
    for j in range(4, 9):
        t = t0 if j % 2 == 0 else t1
        a(f"v_pk_add_f32 v[{t}:{t+1}], v[{t}:{t+1}], v[{X+2*j}:{X+2*j+1}]")
    a(f"v_pk_add_f32 v[{t0}:{t0+1}], v[{t0}:{t0+1}], v[{t1}:{t1+1}]")
    a(f"v_add_f32 v{t0}, v{t0}, v{t0+1}")
    red32(a, "v_add_f32", t0, t1)
    a(f"v_mul_f32 v{t2}, {f32(1.0/576)}, v{t0}")
    a(f"v_mov_b32 v{t2+1}, v{t2}")
    a(f"v_cvt_pk_bf16_f32 v{m2}, v{t2}, v{t2}")
    a(f"v_and_b32 v{m2}, 0xffff0000, v{m2}", f"v_mov_b32 v{m2+1}, v{m2}")
    first = {t0: True, t1: True}
    for j in range(9):
        t = t0 if j % 2 == 0 else t1
        a(f"v_pk_add_f32 v[{rinv2}:{rinv2+1}], v[{X+2*j}:{X+2*j+1}], v[{t2}:{t2+1}] neg_lo:[0,1] neg_hi:[0,1]")
        if first[t]:
            a(f"v_pk_mul_f32 v[{t}:{t+1}], v[{rinv2}:{rinv2+1}], v[{rinv2}:{rinv2+1}]"); first[t] = False
        else:
            a(f"v_pk_fma_f32 v[{t}:{t+1}], v[{rinv2}:{rinv2+1}], v[{rinv2}:{rinv2+1}], v[{t}:{t+1}]")
    a(f"v_pk_add_f32 v[{t0}:{t0+1}], v[{t0}:{t0+1}], v[{t1}:{t1+1}]")
    a(f"v_add_f32 v{t0}, v{t0}, v{t0+1}")
    red32(a, "v_add_f32", t0, t1)
    a(f"v_mul_f32 v{t0}, {f32(1.0/576)}, v{t0}")
    a(f"v_cvt_pk_bf16_f32 v{t0}, v{t0}, v{t0}", f"v_and_b32 v{t0}, 0xffff0000, v{t0}")
    a(f"v_add_f32 v{t0}, {f32(1e-5)}, v{t0}")
    a(f"v_cvt_pk_bf16_f32 v{t0}, v{t0}, v{t0}", f"v_and_b32 v{t0}, 0xffff0000, v{t0}")
    a(f"v_sqrt_f32 v{t0}, v{t0}")
    a(f"v_cvt_pk_bf16_f32 v{t0}, v{t0}, v{t0}", f"v_and_b32 v{t0}, 0xffff0000, v{t0}")
    a(f"v_rcp_f32 v{rinv2}, v{t0}")
    a(f"v_mov_b32 v{rinv2+1}, v{rinv2}")

def ln_apply_pair(a, x, m2, rinv2, t, P):
    a(f"v_pk_add_f32 v[{t}:{t+1}], v[{x}:{x+1}], v[{m2}:{m2+1}] neg_lo:[0,1] neg_hi:[0,1]")
    a(f"v_cvt_pk_bf16_f32 v{P}, v{t}, v{t+1}")
    unpack(a, t, P)
    a(f"v_pk_mul_f32 v[{t}:{t+1}], v[{t}:{t+1}], v[{rinv2}:{rinv2+1}]")
    a(f"v_cvt_pk_bf16_f32 v{P}, v{t}, v{t+1}")
    unpack(a, t, P)

VZ, VONE = 4, 5
_lbl = [0]
def newlabel(p="L"):
    _lbl[0] += 1
    return f"{p}_{_lbl[0]}"
def guard(a):
    a(f"s_sub_u32 s{S_GUARD}, s{S_GUARD}, 1", "s_cbranch_scc1 KS_ABORT")
def lds_wait(a, off, t, kind="b4", addr=VZ, sleep=0):
    l = newlabel("W")
    a(f"{l}:")
    if sleep: a(f"s_sleep {sleep}")
    if kind == "b8":
        a(f"ds_read_b64 v[{t}:{t+1}], v{addr} offset:{off}")
    else:
        a(f"ds_read_b32 v{t}, v{addr} offset:{off}")
    guard(a)
    a("s_waitcnt lgkmcnt(0)")
    if kind == "b8": a(f"v_and_b32 v{t}, v{t}, v{t+1}")
    if kind == "nz": a(f"v_cmp_eq_u32 vcc, 0, v{t}")
    else: a(f"v_cmp_ne_u32 vcc, s{S_ONES}, v{t}")
    a(f"s_cbranch_vccnz {l}")

class Pool:
    def __init__(self, regs): self.free = list(regs)
    def get(self): return self.free.pop(0)
    def put(self, r): self.free.append(r)
def ce_inlane(a, x, i, j, pool):
    t = pool.get()
    a(f"v_max_u32 v{t}, v{x[i]}, v{x[j]}", f"v_min_u32 v{x[j]}, v{x[i]}, v{x[j]}")
    pool.put(x[i]); x[i] = t
def clean8(a, x, pool, DE, rev=False):
    t = [pool.get() for _ in range(4)]
    for i in range(4):
        a(f"v_mov_b32_dpp v{t[i]}, v{x[3-i if rev else i]} quad_perm:[1,0,3,2] {DPPM}")
    for i in range(4):
        a(f"v_med3_u32 v{t[i]}, v{x[i]}, v{t[i]}, v{DE}")
    for i in range(4): pool.put(x[i]); x[i] = t[i]
    for (i, j) in ((0, 2), (1, 3), (0, 1), (2, 3)): ce_inlane(a, x, i, j, pool)
def merge_mirror(a, x, pool, M):
    c = [pool.get() for _ in range(4)]
    for i in range(4):
        a(f"v_max_u32_dpp v{c[i]}, v{x[3-i]}, v{x[i]} {M} {DPPM}")
    for i in range(4): pool.put(x[i]); x[i] = c[i]
def merge_pair(a, x, y, pool):
    for i in range(4):
        a(f"v_max_u32_dpp v{x[i]}, v{y[3-i]}, v{x[i]} quad_perm:[1,0,3,2] {DPPM}")
    for i in range(4): pool.put(y[i])
MIRRORS = ("quad_perm:[3,2,1,0]", "row_half_mirror", "row_mirror")

GW = 48
def g_addr_setup(a, A):
    a(f"s_sub_u32 s{S_G}, s{S_WAVE}, 12")
    a(f"s_mul_i32 s{T0_}, s{S_G}, 9", f"s_add_u32 s{T0_}, s{T0_}, 1", f"s_lshr_b32 s{S_ROLE}, s{T0_}, 1")
    a(f"s_lshl_b32 s{T0_}, s{S_ROLE}, 5", f"v_lshl_add_u32 v7, v3, 3, s{T0_}", "v_mul_u32_u24 v7, 9216, v7")
    a("v_and_b32 v6, 7, v2", "v_lshl_add_u32 v7, v6, 3, v7")
    a(f"s_lshl_b32 s{T0_}, s{S_BLK}, 6", f"v_add_u32 v7, s{T0_}, v7")
    a("v_cmp_gt_u32 vcc, 8, v2")
    a(f"s_mov_b32 s{R3}, 9216", f"s_mov_b32 s{R3+1}, 0", f"s_mov_b32 s{R3+2}, {9216*25}", f"s_mov_b32 s{R3+3}, 0")
    a(f"v_mov_b32 v{A}, s{P_GATE}", f"v_mov_b32 v{A+1}, s{P_GATE+1}", f"v_mov_b32 v6, s{P_UP}")
    a(f"v_cndmask_b32 v{A}, v6, v{A}, vcc", f"v_mov_b32 v6, s{P_UP+1}", f"v_cndmask_b32 v{A+1}, v6, v{A+1}, vcc")
    a(f"v_add_co_u32 v{A}, vcc, v{A}, v7", f"v_addc_co_u32 v{A+1}, vcc, 0, v{A+1}, vcc")
def g_loads(a, A, kss):
    for ks in kss:
        for r in range(8):
            d = GW + 16 * ks + 2 * r
            a(f"global_load_dwordx2 v[{d}:{d+1}], v[{A}:{A+1}], off" + (" nt" if ENV("GNT", 0) else ""))
            if not (ks == 4 and r == 7):
                a(f"v_lshl_add_u64 v[{A}:{A+1}], v[{A}:{A+1}], 0, s[{R3 if r < 7 else R3+2}:{R3+1 if r < 7 else R3+3}]")
GTRIG = ENV("GTRIG", 2)
PF = ENV("PF", 1)
def gen_ln1(a):
    LW, TB = T5_, S_CH
    X, RAW = 8, 26
    a(f"s_sub_u32 s{T0_}, s{S_I}, 8", f"s_and_b32 s{TB}, s{T0_}, 7", f"s_lshr_b32 s{T0_}, s{T0_}, 3", f"s_lshl_b32 s{T0_}, s{T0_}, 4", f"s_add_u32 s{TB}, s{TB}, s{T0_}")
    a(f"s_and_b32 s{T0_}, s{S_XC}, 1", f"s_lshl_b32 s{T0_}, s{T0_}, 3", f"s_add_u32 s{TB}, s{TB}, s{T0_}", f"s_lshr_b32 s{T0_}, s{S_XC}, 1", f"s_lshl_b32 s{T0_}, s{T0_}, 5", f"s_add_u32 s{TB}, s{TB}, s{T0_}")
    a("v_lshrrev_b32 v36, 5, v1", "v_and_b32 v37, 31, v1")
    a("v_mul_u32_u24 v38, 1152, v36", "v_lshl_add_u32 v39, v37, 2, v38", "v_lshl_add_u32 v38, v37, 4, v38")
    a(f"s_mul_i32 s{T1_}, s{TB}, 18432", f"s_mul_i32 s{T2_}, s{LW}, 2304", f"s_add_u32 s{T1_}, s{T1_}, s{T2_}")
    a("s_waitcnt lgkmcnt(0)")
    stamp(a, 1)
    srd(a, R0, P_X, XBYTES)
    a(f"buffer_load_dwordx4 v[{RAW}:{RAW+3}], v38, s[{R0}:{R0+3}], s{T1_} offen")
    a(f"buffer_load_dwordx4 v[{RAW+4}:{RAW+7}], v38, s[{R0}:{R0+3}], s{T1_} offen offset:512")
    a(f"buffer_load_dword v{RAW+8}, v39, s[{R0}:{R0+3}], s{T1_} offen offset:1024")
    a("s_barrier")
    a(f"s_lshr_b32 s{T1_}, s{LW}, 2", f"s_lshl_b32 s{T1_}, s{T1_}, 6", f"s_add_u32 s{T2_}, s{T2_}, s{T1_}", f"s_add_u32 s{T2_}, s{T2_}, {C_LNB}")
    a(f"v_lshl_add_u32 v35, v37, 1, v36")
    a(f"s_mov_b32 s{SP0}, 0x05040100", f"s_mov_b32 s{SP1}, 0x07060302")
    def waits(n):
        for (c, js) in ((2, range(0, 4)), (1, range(4, 8)), (0, range(8, 9))):
            a(f"s_waitcnt vmcnt({c+n})")
            for j in js: unpack(a, X + 2 * j, RAW + j)
    l1 = newlabel("LN1A"); l2 = newlabel("LN1B")
    waits(0)
    stamp(a, 2)
    a(f"v_lshl_add_u32 v6, v35, 4, s{T2_}", f"v_lshl_add_u32 v7, v35, 2, s{T2_}")
    a(f"v_mul_u32_u24 v35, 0x20202, v36", "v_lshl_add_u32 v35, v36, 25, v35", "v_add_u32 v35, 0x05040100, v35")
    ln_stats(a, X, 36, 38, 40, 42, 44)
    for j in range(9):
        ln_apply_pair(a, X + 2 * j, 36, 38, 40, 42)
        a(f"v_cvt_pk_f16_f32 v{RAW+j}, v40, v41")
        if j in (3, 7):
            P = RAW + j - 3; O = X + 2 * (j - 3)
            a(f"v_permlane32_swap_b32 v{P}, v{P+2}", f"v_permlane32_swap_b32 v{P+1}, v{P+3}")
            a(f"v_perm_b32 v{O}, v{P+2}, v{P}, s{SP0}", f"v_perm_b32 v{O+1}, v{P+2}, v{P}, s{SP1}")
            a(f"v_perm_b32 v{O+2}, v{P+3}, v{P+1}, s{SP0}", f"v_perm_b32 v{O+3}, v{P+3}, v{P+1}, s{SP1}")
            a(f"ds_write_b128 v6, v[{O}:{O+3}] offset:{1024*(j//4)}")
    a(f"v_mov_b32 v40, v{RAW+8}", f"v_permlane32_swap_b32 v{RAW+8}, v40")
    a(f"v_perm_b32 v40, v40, v{RAW+8}, v35")
    a(f"ds_write_b32 v7, v40 offset:2048")
    a(f"v_mov_b32 v6, s{LW}")
    a(f"ds_write_b8 v6, v{VONE} offset:{FL_LN1}")
    a("s_setprio 0")
    a(f"s_cmp_ge_u32 s{LW}, 4", "s_cbranch_scc1 KS_X4")
    a("s_setprio 3")
    srd(a, R2_, P_WS, XBYTES, WS_UT)
    a("v_and_b32 v6, 1, v0", "v_mul_u32_u24 v6, 9280, v6", "v_lshrrev_b32 v7, 1, v0", "v_lshl_add_u32 v6, v7, 2, v6", f"v_add_u32 v6, {C_LNB}, v6")
    a("v_lshrrev_b32 v7, 2, v0", "v_lshlrev_b32 v7, 13, v7", "v_and_b32 v8, 3, v0", "v_lshl_add_u32 v7, v8, 4, v7")
    a(f"s_lshl_b32 s{T0_}, s{TB}, 6")
    for k in range(1, 5): a(f"s_add_u32 s{T0_+k}, s{T0_}, {0x80000*k}")
    lds_wait(a, FL_LN1, 20, "b8")
    stamp(a, 3)
    for k in range(5):
        a(f"ds_read2st64_b32 v[{20+4*k}:{21+4*k}], v6 offset0:{2*k} offset1:{9+2*k}")
        a(f"ds_read2st64_b32 v[{22+4*k}:{23+4*k}], v6 offset0:{18+2*k} offset1:{27+2*k}")
    for k in range(5):
        a(f"s_waitcnt lgkmcnt({8-2*k})")
        a(f"buffer_store_dwordx4 v[{20+4*k}:{23+4*k}], v7, s[{R2_}:{R2_+3}], s{T0_+k} offen sc1")
    a(f"global_load_dword v58, v{VZ}, s[{P_DBG}:{P_DBG+1}] sc1")
    stamp(a, 4)
    a(f"s_lshl_b32 s{T1_}, s{TB}, 6", f"s_add_u32 s{T1_}, s{T1_}, {hex(WS_FLAG1)}", f"v_mov_b32 v7, s{T1_}")

def gen_flag1(a):
    a("s_waitcnt vmcnt(0)")
    stamp(a, 5)
    a("s_mov_b64 exec, 1")
    a(f"ds_add_rtn_u32 v6, v{VZ}, v{VONE} offset:{FL_LNACK}")
    a("s_mov_b64 exec, -1")
    lp = newlabel("LN1P"); go = newlabel("LN1G")
    a(f"{lp}:")
    a(f"v_readfirstlane_b32 s{T2_}, v58")
    a(f"s_cmp_lg_u32 s{T2_}, 0", f"s_cbranch_scc1 {go}")
    a("s_sleep 1")
    a(f"global_load_dword v58, v{VZ}, s[{P_DBG}:{P_DBG+1}] sc1")
    guard(a)
    a("s_waitcnt vmcnt(0)")
    a(f"s_branch {lp}")
    a(f"{go}:")
    a("s_waitcnt lgkmcnt(0)")
    a(f"v_readfirstlane_b32 s{T2_}, v6")
    sk = newlabel("LN1E")
    a(f"s_cmp_lg_u32 s{T2_}, 3", f"s_cbranch_scc1 {sk}")
    a("s_mov_b64 exec, 1")
    a(f"global_store_dword v7, v{VONE}, s[{P_WS}:{P_WS+1}] sc1")
    a("s_mov_b64 exec, -1")
    a(f"{sk}:")
    stamp(a, 8)

ROLE_TILES = {0: [0, 1, 2, 3, 4], 1: [0, 1, 2, 3, 4], 2: [5, 6, 7], 3: [5, 6, 7]}
ROLE_W = {2: 0, 3: 1, 1: 2}
ACC, DA, RING, WT = 16, 36, 76, 92
NRING = 4

def epi_plan():
    owner = {0: (0, 0), 1: (0, 1), 2: (1, 0), 3: (1, 1), 4: (1, 3), 5: (0, 2), 6: (0, 3), 7: (1, 2)}
    slots = {}
    cnt = [0, 0]
    for g in range(2):
        for role in range(4):
            for j in ROLE_TILES[role]:
                if owner[j] == (g, role): continue
                slots[(g, role, j)] = g * G_SIZE + R_RED + 1024 * cnt[g]; cnt[g] += 1
    assert max(cnt) <= 13, cnt
    ownerC = {0: 0, 1: 0, 2: 1, 3: 1, 4: 2, 5: 2, 6: 3, 7: 3}
    n = 0
    for role in range(4):
        for j in ROLE_TILES[role]:
            if ownerC[j] == role: continue
            slots[(2, role, j)] = 2 * G_SIZE + R_RED + 1024 * n; n += 1
    return owner, ownerC, slots

class LdsTrack:
    def __init__(self, a): self.a = a; self.n = 0
    def issue(self, text): self.a(text); self.n += 1; return self.n - 1
    def wait(self, idx):
        k = self.n - 1 - idx
        if k <= 15: self.a(f"s_waitcnt lgkmcnt({k})")

def gen_group(a):
    a(f"s_mul_i32 s{S_GB}, s{S_G}, {G_SIZE}", f"s_add_u32 s{S_GB}, s{S_GB}, {G_BASE}")
    a(f"s_lshl_b32 s{T0_}, s{S_CH}, 8", f"v_lshl_add_u32 v6, v1, 2, s{T0_}")
    a(f"s_lshl_b32 s{T0_}, s{S_CH}, 1", f"v_mov_b32 v7, s{T0_}")
    a(f"s_lshl_b32 s{T0_}, s{S_G}, 4", f"s_add_u32 s{T0_}, s{T0_}, s{S_ROLE}", f"v_mov_b32 v15, s{T0_}")
    a(f"s_lshl_b32 s{T0_}, s{S_G}, 4", f"v_mov_b32 v14, s{T0_}")
    a("s_waitcnt lgkmcnt(0)")
    stamp(a, 1)
    a(f"global_load_ushort v16, v7, s[{P_LDT}:{P_LDT+1}]")
    for k in range(6):
        a(f"global_load_dword v{8+k}, v6, s[{P_ARE+2*k}:{P_ARE+2*k+1}]")
    a(f"global_load_ushort v107, v7, s[{P_DSK}:{P_DSK+1}]")
    TW = ENV("TLBW", 0)
    if TW:
        a(f"v_lshlrev_b32 v106, 18, v1", f"v_add_u32 v106, 0x3ff80, v106", "s_mov_b32 exec_hi, 0xffff")
        a(f"global_load_dword v105, v106, s[{P_WS}:{P_WS+1}]")
        a("v_lshlrev_b32 v106, 18, v1", "s_mov_b64 exec, 0x1ff")
        a(f"global_load_dword v104, v106, s[{P_OUT}:{P_OUT+1}]")
        a("s_mov_b64 exec, -1")
        TW = 2
    a("s_barrier")
    LF, IX, I1, I2, D1, D2, D3 = 108, 112, 116, 119, 123, 124, 125
    a(f"s_add_u32 s{T1_}, s{S_GB}, {T_TAB}")
    def dr_addr(dst, x, special=False):
        a(f"v_sub_u32 v90, 544, v{x}", "v_cvt_f32_i32 v91, v90", "v_cvt_pk_bf16_f32 v91, v91, v91", "v_and_b32 v91, 0xffff, v91", "v_subrev_u32 v91, 0x4280, v91")
        a("v_cmp_gt_u32 vcc, 0x100, v90", "v_cndmask_b32 v91, v91, v90, vcc")
        a(f"v_mov_b32 v92, {IDX_ZERO}", "v_cmp_lt_u32 vcc, 0x20d, v90", "v_cndmask_b32 v91, v91, v92, vcc")
        if special:
            a(f"v_or_b32 v90, 1, v{x}", "v_mov_b32 v92, 0x200", "v_cmp_eq_u32 vcc, 0x25d, v90", "v_cndmask_b32 v91, v91, v92, vcc")
        a(f"v_lshl_add_u32 v{dst}, v91, 1, s{T1_}")
    def g_addr(dst, m, base, M):
        a(f"v_lshl_add_u32 v91, v{m}, 1, v93") if False else None
        a(f"v_lshlrev_b32 v91, 1, v{m}", f"v_add_u32 v91, {base}, v91")
        a(f"v_mov_b32 v92, {IDX_ZERO}", f"v_cmp_lt_u32 vcc, {M}, v{m}", "v_cndmask_b32 v91, v91, v92, vcc")
        a(f"v_lshl_add_u32 v{dst}, v91, 1, s{T1_}")
    a(f"s_lshl_b32 s{T0_}, s{S_ROLE}, 6", f"s_add_u32 s{T0_}, s{T0_}, 9", f"v_add_u32 v94, s{T0_}, v1")
    a(f"v_lshl_add_u32 v{D1}, v94, 2, s{S_GB}")
    a("v_lshlrev_b32 v94, 1, v94")
    for e in range(3):
        if e: a("v_add_u32 v94, 1, v94")
        dr_addr(I1 + e, 94)
    a("v_lshlrev_b32 v7, 3, v2")
    jl = [newlabel("PRE") for _ in range(4)]; jn = newlabel("PREJ")
    for r in range(1, 4): a(f"s_cmp_eq_u32 s{S_ROLE}, {r}", f"s_cbranch_scc1 {jl[r]}")
    def post_addr():
        a(f"v_mov_b32 v96, v7", "v_add_u32 v97, v7, v94", "v_add_u32 v98, v7, v95", "v_add_u32 v99, v97, v95")
        for r in range(4):
            a(f"v_cvt_f32_u32 v{LF+r}, v{96+r}")
            a(f"v_lshrrev_b32 v91, 16, v{LF+r}", "v_subrev_u32 v91, 0x4280, v91")
            a(f"v_cmp_gt_u32 vcc, 0x80, v{96+r}", f"v_cndmask_b32 v91, v91, v{96+r}, vcc")
            a(f"v_mov_b32 v92, {IDX_DUMMY}", f"v_cmp_lt_u32 vcc, 0x800, v{96+r}", "v_cndmask_b32 v91, v91, v92, vcc")
            a(f"v_lshl_add_u32 v{IX+r}, v91, 1, s{T1_}")
    a("v_lshlrev_b32 v95, 1, v1")
    for e, (y0, base, M) in enumerate(((93, 389, 61), (92, 389, 61), (94, 388, 62), (93, 388, 62))):
        a(f"v_sub_u32 v94, {y0}, v95"); g_addr(I2 + e, 94, base, M)
    a(f"v_lshl_add_u32 v{D2}, v1, 2, s{S_GB}", f"v_add_u32 v{D3}, {T_G5}, v{D2}", f"v_add_u32 v{D2}, {T_G3}, v{D2}")
    a("v_lshrrev_b32 v94, 1, v3", "v_lshl_add_u32 v7, v94, 7, v7", "v_and_b32 v94, 1, v3", "v_lshl_add_u32 v7, v94, 2, v7")
    a("v_mov_b32 v94, 1", "v_mov_b32 v95, 2")
    post_addr()
    a(f"s_branch {jn}")
    for r, (base, TE_, TO_) in ((1, (513, T_G7E, T_G7O)), (2, (514, T_G9E, T_G9O))):
        a(f"{jl[r]}:")
        a("v_min_u32 v96, 47, v1", "v_lshlrev_b32 v95, 1, v96")
        for e, y0 in ((0, 64), (1, 63), (3, 62)):
            a(f"v_sub_u32 v94, {y0}, v95"); g_addr(I2 + e, 94, base, 63)
        a(f"v_mov_b32 v{I2+2}, v{I2+1}")
        a(f"v_lshl_add_u32 v{D2}, v96, 2, s{S_GB}", f"v_add_u32 v{D3}, {TO_}, v{D2}", f"v_add_u32 v{D2}, {TE_}, v{D2}")
        if r == 1:
            a("v_lshl_add_u32 v94, v3, 7, v7", "v_add_u32 v94, 256, v94", "v_lshl_add_u32 v7, v3, 8, v7")
            a("v_cmp_gt_u32 vcc, 2, v3", "v_cndmask_b32 v7, v7, v94, vcc")
            a("v_mov_b32 v94, 4", "v_mov_b32 v95, 0x80", "v_cndmask_b32 v94, v94, 2, vcc", "v_cndmask_b32 v95, v95, 4, vcc")
        else:
            a("v_lshl_add_u32 v7, v3, 9, v7", "v_add_u32 v7, 0x400, v7", "v_mov_b32 v94, 0x80", "v_mov_b32 v95, 0x100")
        post_addr()
        a(f"s_branch {jn}")
    a(f"{jl[3]}:")
    a("v_add_u32 v96, 0x100, v1", "v_cmp_gt_u32 vcc, 9, v1", "v_cndmask_b32 v96, v96, v1, vcc", "v_lshlrev_b32 v94, 1, v96")
    for e in (0, 1, 3):
        if e: a("v_add_u32 v94, 1, v94")
        dr_addr(I2 + e, 94, special=True)
    a(f"v_mov_b32 v{I2+2}, v{I2+1}")
    a(f"v_lshl_add_u32 v{D2}, v96, 2, s{S_GB}", f"v_add_u32 v{D3}, {T_DRO}, v{D2}", f"v_add_u32 v{D2}, {T_DRE}, v{D2}")
    a(f"v_mov_b32 v94, s{S_GB}", f"ds_write_b16 v94, v{VZ} offset:{T_TAB + 2*IDX_ZERO}")
    a(f"{jn}:")
    a(f"s_waitcnt vmcnt({7+TW})")
    a("v_lshlrev_b32 v16, 16, v16")
    a(f"v_mul_f32 v17, {f32(LOG2E_HI)}, v16")
    a(f"s_mov_b32 s{T0_}, {f32(LOG2E_HI)}", f"s_mov_b32 s{T1_}, {f32(LOG2E_LO)}")
    a(f"v_fma_f32 v18, v16, s{T0_}, -v17", f"v_fma_f32 v18, v16, s{T1_}, v18")
    a("v_exp_f32 v17, v17")
    a(f"v_mul_f32 v18, {f32(math.log(2.0))}, v18")
    a("v_fma_f32 v17, v17, v18, v17")
    a("v_cvt_pk_bf16_f32 v17, v17, v17", "v_and_b32 v16, 0xffff0000, v17", "v_mov_b32 v17, v16")
    a(f"s_waitcnt vmcnt({1+TW})")
    stamp(a, 2)
    a(f"ds_write_b32 v{VZ}, v{VONE} offset:{FL_PARAM}")
    for k in range(6): unpack(a, 20 + 2 * k, 8 + k)
    for k in range(4):
        a(f"v_pk_mul_f32 v[{20+2*k}:{21+2*k}], v[{20+2*k}:{21+2*k}], v[16:17]")
    T = 90
    def cmul(dr, di, ar, ai, br, bi, t=T):
        assert di not in (ar, br, bi)
        a(f"v_pk_mul_f32 v[{t}:{t+1}], v[{ai}:{ai+1}], v[{bi}:{bi+1}]")
        a(f"v_pk_mul_f32 v[{t+2}:{t+3}], v[{ai}:{ai+1}], v[{br}:{br+1}]")
        a(f"v_pk_fma_f32 v[{di}:{di+1}], v[{ar}:{ar+1}], v[{bi}:{bi+1}], v[{t+2}:{t+3}]")
        a(f"v_pk_fma_f32 v[{dr}:{dr+1}], v[{ar}:{ar+1}], v[{br}:{br+1}], v[{t}:{t+1}] neg_lo:[0,0,1] neg_hi:[0,0,1]")
    CBR, CBI = 32, 34
    cmul(CBR, CBI, 28, 30, 24, 26)
    a("v_max_f32 v36, v20, v21")
    a(f"v_add_f32 v37, abs(v{CBR}), abs(v{CBR+1})", f"v_add_f32 v38, abs(v{CBI}), abs(v{CBI+1})", "v_add_f32 v37, v37, v38")
    red64x2(a, "v_max_f32", 36, 38, "v_add_f32", 37, 39)
    a(f"v_max_f32 v37, {f32(1e-36)}, v37")
    a("v_rcp_f32 v38, v37")
    a("v_sub_f32 v20, v20, v36", "v_sub_f32 v21, v21, v36")
    a(f"v_mul_f32 v38, {f32(32768.0)}, v38", "v_mov_b32 v39, v38")
    a(f"v_mul_f32 v20, {f32(LOG2E)}, v20", f"v_mul_f32 v21, {f32(LOG2E)}, v21", f"v_mul_f32 v36, {f32(LOG2E)}, v36")
    a(f"v_pk_mul_f32 v[{CBR}:{CBR+1}], v[{CBR}:{CBR+1}], v[38:39]", f"v_pk_mul_f32 v[{CBI}:{CBI+1}], v[{CBI}:{CBI+1}], v[38:39]")
    a(f"s_mov_b32 s{T0_}, {f32(INV2PI_HI)}", f"s_mov_b32 s{T1_}, {f32(INV2PI_LO)}")
    def anchor(dr, di, l, conj=False):
        for e in range(2):
            t = T + 4 * e
            a(f"v_mul_f32 v{t}, {f32(float(l))}, v{20+e}")
            a(f"v_mul_f32 v{t+1}, {f32(float(l))}, v{22+e}")
        for e in range(2):
            t = T + 4 * e
            a(f"v_exp_f32 v{t}, v{t}")
            a(f"v_mul_f32 v{t+2}, s{T0_}, v{t+1}")
        for e in range(2): a(f"v_rndne_f32 v{T+4*e+2}, v{T+4*e+2}")
        for e in range(2): a(f"v_fma_f32 v{T+4*e+2}, v{T+4*e+1}, s{T0_}, -v{T+4*e+2}")
        for e in range(2): a(f"v_fma_f32 v{T+4*e+2}, v{T+4*e+1}, s{T1_}, v{T+4*e+2}")
        for e in range(2): a(f"v_cos_f32 v{T+4*e+1}, v{T+4*e+2}", f"v_sin_f32 v{T+4*e+2}, v{T+4*e+2}")
        for e in range(2):
            t = T + 4 * e
            a(f"v_mul_f32 v{dr+e}, v{t}, v{t+1}")
            a(f"v_mul_f32 v{di+e}, v{t}, {'-' if conj else ''}v{t+2}")
    a(f"v_lshl_add_u32 v6, v1, 3, s{S_GB}")
    em = [0]
    def emit(tile, row, vr, vi):
        t = 98 + 2 * (em[0] & 1); em[0] += 1
        a(f"v_cvt_pk_f16_f32 v{t}, v{vr}, v{vi}", f"v_cvt_pk_f16_f32 v{t+1}, v{vr+1}, v{vi+1}")
        a(f"ds_write_b64 v6, v[{t}:{t+1}] offset:{KG_T[tile] + row*KG_ROW}")
    G1, G2, G3 = 40, 44, 48
    VA, VB, VC = 52, 56, 60
    jl = [newlabel("JOB") for _ in range(4)]; jn = newlabel("JOBJ")
    for r in range(1, 4): a(f"s_cmp_eq_u32 s{S_ROLE}, {r}", f"s_cbranch_scc1 {jl[r]}")
    anchor(G1, G1 + 2, 1); anchor(G2, G2 + 2, 128)
    cur = (CBR, CBI)
    for c in range(8):
        emit(0, c, cur[0], cur[1])
        cmul(VC, VC + 2, cur[0], cur[1], G2, G2 + 2)
        if c < 7:
            nx = VA if cur[0] != VA else VB
            cmul(nx, nx + 2, cur[0], cur[1], G1, G1 + 2, T + 4); cur = (nx, nx + 2)
        emit(0, 8 + c, VC, VC + 2)
    a(f"s_branch {jn}")
    a(f"{jl[1]}:")
    anchor(G1, G1 + 2, 2); anchor(G2, G2 + 2, 128); anchor(G3, G3 + 2, 256)
    cmul(VA, VA + 2, CBR, CBI, G3, G3 + 2); cur = (VA, VA + 2)
    cmul(64, 66, VA, VA + 2, G3, G3 + 2, T + 4)
    for c in range(4):
        emit(1, c, cur[0], cur[1])
        cmul(VC, VC + 2, cur[0], cur[1], G2, G2 + 2)
        if c < 3:
            nx = VA if cur[0] != VA else VB
            cmul(nx, nx + 2, cur[0], cur[1], G1, G1 + 2, T + 4); cur = (nx, nx + 2)
        else:
            cmul(G3, G3 + 2, G1, G1 + 2, G1, G1 + 2, T + 4)
        emit(1, 4 + c, VC, VC + 2)
    cur = (64, 66)
    for aa in range(4):
        emit(1, 8 + 2 * aa, cur[0], cur[1])
        cmul(VC, VC + 2, cur[0], cur[1], G3, G3 + 2)
        if aa < 3:
            nx = VA if cur[0] != VA else VB
            cmul(nx, nx + 2, cur[0], cur[1], G2, G2 + 2, T + 4); cur = (nx, nx + 2)
        emit(1, 9 + 2 * aa, VC, VC + 2)
    a(f"s_branch {jn}")
    a(f"{jl[2]}:")
    anchor(G2, G2 + 2, 128); anchor(G3, G3 + 2, 1024)
    cmul(VA, VA + 2, CBR, CBI, G3, G3 + 2); cur = (VA, VA + 2)
    for r in range(9):
        prev = cur
        if r < 8:
            nx = VA if cur[0] != VA else VB
            cmul(nx, nx + 2, cur[0], cur[1], G2, G2 + 2); cur = (nx, nx + 2)
        emit(2, r, prev[0], prev[1])
    a(f"v_mul_f32 v40, {f32(2048.0)}, v36", "v_max_f32 v40, 0, v40", "v_exp_f32 v40, v40")
    a(f"v_mul_f32 v41, {f32(1.0/32768.0)}, v37", "v_mul_f32 v40, v40, v41")
    a(f"s_waitcnt vmcnt({TW})")
    a("v_lshlrev_b32 v41, 16, v107")
    a(f"ds_write_b64 v14, v[40:41] offset:{C_PAR}")
    a(f"s_branch {jn}")
    a(f"{jl[3]}:")
    anchor(G1, G1 + 2, 8, conj=True)
    cmul(G2, G2 + 2, G1, G1 + 2, G1, G1 + 2)
    a(f"v_mov_b32 v{VA}, {f32(32768.0)}", f"v_mov_b32 v{VA+1}, {f32(32768.0)}", f"v_mov_b32 v{VA+2}, 0", f"v_mov_b32 v{VA+3}, 0")
    a(f"v_pk_mul_f32 v[{VC}:{VC+1}], v[{G1}:{G1+1}], v[{VA}:{VA+1}]", f"v_pk_mul_f32 v[{VC+2}:{VC+3}], v[{G1+2}:{G1+3}], v[{VA}:{VA+1}]")
    ce = (VA, VA + 2); co = (VC, VC + 2)
    for b in range(8):
        pe, po = ce, co
        if b < 7:
            nx = VA if ce[0] != VA else VB
            cmul(nx, nx + 2, ce[0], ce[1], G2, G2 + 2); ce = (nx, nx + 2)
            nx = VC if co[0] != VC else 64
            cmul(nx, nx + 2, co[0], co[1], G2, G2 + 2, T + 4); co = (nx, nx + 2)
        emit(3, 2 * b, pe[0], pe[1]); emit(3, 2 * b + 1, po[0], po[1])
    a(f"{jn}:")
    a(f"ds_write_b8 v15, v{VONE} offset:{FL_G}")
    stamp(a, 3)
    ex = newlabel("EXP")
    a(f"s_cmp_eq_u32 s{S_ROLE}, 3", f"s_cbranch_scc1 {ex}")
    a(f"v_mul_u32_u24 v10, {KG_ROW}, v2", "v_lshl_add_u32 v10, v3, 4, v10", f"v_add_u32 v10, s{S_GB}, v10")
    a(f"s_mul_i32 s{T0_}, s{S_ROLE}, {16*KG_ROW}", f"v_add_u32 v11, s{T0_}, v10")
    a(f"v_mul_f32 v40, {f32(2048.0)}, v36", "v_max_f32 v40, 0, v40", f"v_add_f32 v40, {f32(15.0)}, v40")
    for r in range(4):
        a(f"v_fma_f32 v{LF+r}, v{LF+r}, v36, -v40")
    for r in range(4):
        a(f"v_exp_f32 v{LF+r}, v{LF+r}")
    lds_wait(a, FL_G, 12, "b4", addr=14)
    tr = LdsTrack(a); ids = []
    for s in range(8):
        tr.issue(f"ds_read_b128 v[{40+4*s}:{43+4*s}], v11 offset:{64*s}")
        ids.append(tr.issue(f"ds_read_b128 v[{72+4*s}:{75+4*s}], v10 offset:{KG_T[3]+64*s}"))
    for s in range(8):
        tr.wait(ids[s])
        c = "0" if s < 2 else f"v[{20+4*(s&1)}:{23+4*(s&1)}]"
        a(f"v_mfma_f32_16x16x32_f16 v[{20+4*(s&1)}:{23+4*(s&1)}], v[{40+4*s}:{43+4*s}], v[{72+4*s}:{75+4*s}], {c}")
    for r in range(4): a(f"v_add_f32 v{20+r}, v{20+r}, v{24+r}")
    for r in range(4): a(f"v_mul_f32 v{20+r}, v{20+r}, v{LF+r}")
    for r in range(4):
        a(f"v_cvt_f16_f32 v{20+r}, v{20+r}")
        a(f"ds_write_b16 v{IX+r}, v{20+r}")
    a(f"{ex}:")
    a(f"ds_write_b8 v15, v{VONE} offset:{FL_G+4}")
    a("s_waitcnt vmcnt(0)")
    a.flush(2)
    VDA, VDA2, VB_, VT8, VT16, VG8, VG16, VLN = 6, 7, 8, 9, 10, 11, 13, 12
    a("v_lshlrev_b32 v20, 3, v3", "v_sub_u32 v20, v20, v2", "v_add_u32 v21, 16, v20", "v_lshrrev_b32 v21, 1, v21")
    a("v_and_b32 v22, 1, v2")
    a(f"v_mul_u32_u24 v23, {T_DRO - T_DRE}, v22", "v_lshl_add_u32 v23, v21, 2, v23", f"s_add_u32 s{T0_}, s{S_GB}, {T_DRE}", f"v_add_u32 v{VDA}, s{T0_}, v23")
    a(f"v_add_u32 v{VDA2}, 640, v{VDA}")
    a(f"v_mul_u32_u24 v23, {T_G7O - T_G7E}, v22", "v_lshl_add_u32 v23, v21, 2, v23", f"s_add_u32 s{T0_}, s{S_GB}, {T_G7E}", f"v_add_u32 v{VG16}, s{T0_}, v23")
    a("v_lshlrev_b32 v23, 2, v3", "v_sub_u32 v23, v23, v2", "v_add_u32 v23, 15, v23", f"s_add_u32 s{T0_}, s{S_GB}, {T_G3}", f"v_lshl_add_u32 v{VG8}, v23, 2, s{T0_}")
    a(f"s_mul_i32 s{T2_}, s{S_G}, {U_SIZE}", f"s_add_u32 s{T2_}, s{T2_}, {C_U}")
    a("v_lshlrev_b32 v23, 5, v2", "v_lshl_add_u32 v23, v3, 4, v23", f"v_add_u32 v{VB_}, s{T2_}, v23")
    a("v_bfe_u32 v20, v1, 2, 2", "v_and_b32 v21, 3, v1", "v_lshl_add_u32 v20, v3, 3, v20")
    a(f"v_lshl_add_u32 v21, v21, 3, s{S_GB}", f"v_lshl_add_u32 v{VT8}, v20, 4, v21", f"v_lshl_add_u32 v{VT16}, v20, 5, v21")
    lds_wait(a, FL_G + 4, 20, "b4", addr=14)
    stamp(a, 4)
    for e in range(7): a(f"ds_read_u16 v{20+e}, v{I1+e}")
    a("v_mov_b32 v28, 0", "v_mov_b32 v29, 0", "v_mov_b32 v30, 0", "v_mov_b32 v31, 0", f"v_mov_b32 v32, s{S_GB}")
    a("s_mov_b64 exec, 1")
    a(f"ds_write_b128 v32, v[28:31] offset:{R_WS5}", f"ds_write_b128 v32, v[28:31] offset:{R_WS9}", f"ds_write_b128 v32, v[28:31] offset:{R_WS3 + 192*16}")
    a("s_mov_b64 exec, -1")
    a("s_waitcnt lgkmcnt(7)")
    a("v_lshl_or_b32 v28, v21, 16, v20", "v_lshl_or_b32 v29, v22, 16, v21")
    a(f"ds_write_b32 v{D1}, v28 offset:{T_DRE}", f"ds_write_b32 v{D1}, v29 offset:{T_DRO}")
    a("s_waitcnt lgkmcnt(5)")
    a("v_lshl_or_b32 v30, v24, 16, v23", "v_lshl_or_b32 v31, v26, 16, v25")
    a(f"ds_write_b32 v{D2}, v30", f"ds_write_b32 v{D3}, v31")
    a(f"ds_write_b8 v15, v{VONE} offset:{FL_G+8}")
    a(f"v_lshlrev_b32 v{VLN}, 4, v1")
    lds_wait(a, FL_G + 8, 20, "b4", addr=14)
    stamp(a, 5)
    owner, ownerC, slots = epi_plan()
    jl = [newlabel("CV") for _ in range(4)]; zend = newlabel("CVE")
    for r in range(1, 4): a(f"s_cmp_eq_u32 s{S_ROLE}, {r}", f"s_cbranch_scc1 {jl[r]}")
    for role in range(4):
        if role: a(f"{jl[role]}:")
        h, par = role >> 1, role & 1
        tiles = ROLE_TILES[role]
        acc = {j: ACC + 4 * k for k, j in enumerate(tiles)}
        kss = list(range(par, 17, 2)) + ([32] if par == 0 else [])
        da = {ks: DA + 4 * k for k, ks in enumerate(kss)}
        tr = LdsTrack(a)
        da_id = {}
        uses = {}
        for j in tiles:
            for ks in kss:
                p = 8 * j - ks
                if p < -7 or (ks == 32 and j < 4): continue
                uses.setdefault(p, []).append((j, ks))
        ps = sorted(uses, reverse=True)
        order = []
        for p in ps:
            for (j, ks) in uses[p]:
                if ks not in order: order.append(ks)
        for ks in order:
            ksv = -2 if ks == 32 else ks
            o = (16 - ksv) * 16
            ad, o = (VDA, o) if o + 3 <= 255 else (VDA2, o - 160)
            tr.issue(f"ds_read2_b32 v[{da[ks]}:{da[ks]+1}], v{ad} offset0:{o} offset1:{o+1}")
            da_id[ks] = tr.issue(f"ds_read2_b32 v[{da[ks]+2}:{da[ks]+3}], v{ad} offset0:{o+2} offset1:{o+3}")
        lds_wait(a, FL_UF, WT, "b4")
        stamp(a, 6); cstamp(a, 1)
        tr = LdsTrack(a)
        fill = []
        combB = {}
        def combB_loads(keys, regs):
            out = []
            for key, rg in zip(keys, regs):
                kind, ix = key
                combB[key] = rg
                if kind in (3, 5):
                    o = (4 - ix) * 16 + (64 if kind == 5 else 0); ad = VG8
                else:
                    o = (3 - ix) * 8 + (96 if kind == 9 else 0); ad = VG16
                out.append(("lds", f"ds_read2_b32 v[{rg}:{rg+1}], v{ad} offset0:{o} offset1:{o+1}"))
                out.append(("lds", f"ds_read2_b32 v[{rg+2}:{rg+3}], v{ad} offset0:{o+2} offset1:{o+3}"))
            return out
        if role in ROLE_W:
            wp = ROLE_W[role]
            E, P, O = WT, WT + 10, WT + 28
            WA, WD_ = WT + 34, WT + 35
            fill.append(("v", f"s_add_u32 s{T0_}, s{T2_}, {2*(240 + 8*(64*wp - 2))}"))
            fill.append(("v", f"v_add_u32 v{WA}, s{T0_}, v{VLN}"))
            fill.append(("lds", f"ds_read_b128 v[{E}:{E+3}], v{WA}"))
            fill.append(("lds", f"ds_read_b128 v[{E+4}:{E+7}], v{WA} offset:16"))
            fill.append(("ldsW", f"ds_read_b64 v[{E+8}:{E+9}], v{WA} offset:32"))
            fill.append(("v", f"s_add_u32 s{T0_}, s{S_GB}, {1024*wp}"))
            fill.append(("v", f"v_add_u32 v{WD_}, s{T0_}, v{VLN}"))
            fill += [("nop", "")] * 6
            fill.append(("waitW", ""))
            nmax = 19 if wp < 2 else 17
            Pn = lambda n: P + n - 4
            for n in range(3, nmax + 1):
                sel = "op_sel:[1,0,0] " if n & 1 else ""
                prev = "0" if n == 3 else f"v{Pn(n)}"
                fill.append(("v", f"v_fma_mix_f32 v{Pn(n+1)}, v{E + n//2}, 1.0, {prev} {sel}op_sel_hi:[1,0,0]"))
            arrs = [(3, 3, R_WS3), (5, 6, R_WS5 + 16)] + ([(7, 5, R_WS7), (9, 4, R_WS9 + 16)] if wp < 2 else [])
            for ai, (n, s0, dst) in enumerate(arrs):
                Oa = O if ai % 2 == 0 else E
                for k in range(4):
                    t = []
                    for e in range(2):
                        s = s0 + 2 * k + e
                        if s == 3: t.append(Pn(s + n)); continue
                        fill.append(("v", f"v_sub_f32 v{O+4+e}, v{Pn(s+n)}, v{Pn(s)}")); t.append(O + 4 + e)
                    fill.append(("v", f"v_cvt_pk_f16_f32 v{Oa+k}, v{t[0]}, v{t[1]}"))
                fill.append(("lds", f"ds_write_b128 v{WD_}, v[{Oa}:{Oa+3}] offset:{dst}"))
        fill.append(("lds", f"ds_write_b8 v15, v{VONE} offset:{FL_G+12}"))
        keysB = {0: [(3, 2), (3, 3), (3, 4)],
                 1: [(5, 2), (5, 3), (5, 4), (7, 0), (9, 0)],
                 2: [(7, 0), (7, 1), (7, 2), (7, 3), (9, 0), (9, 1), (9, 2), (9, 3)],
                 3: [(3, 2), (3, 3), (3, 4), (5, 2), (5, 3), (5, 4)]}[role]
        fill += [("nop", "")] * 2
        fill += combB_loads(keysB, [WT + 4 * k for k in range(len(keysB))])
        wid = [None]
        def do_fill(n):
            while n > 0 and fill:
                k, t = fill.pop(0)
                if k == "v": a(t)
                elif k == "lds": tr.issue(t)
                elif k == "ldsW": wid[0] = tr.issue(t)
                elif k == "waitW": tr.wait(wid[0]); continue
                n -= 1
        started = set()
        def mfma(j, A, B):
            c = f"v[{acc[j]}:{acc[j]+3}]" if j in started else "0"
            started.add(j)
            a(f"v_mfma_f32_16x16x32_f16 v[{acc[j]}:{acc[j]+3}], v[{A}:{A+3}], v[{B}:{B+3}], {c}")
        bid = {}
        def loadB(k):
            p = ps[k]; rg = RING + 4 * (k % NRING)
            bid[k] = tr.issue(f"ds_read_b128 v[{rg}:{rg+3}], v{VB_} offset:{64*(p+7)}")
        for k in range(NRING): loadB(k)
        nm = sum(len(u) for u in uses.values())
        per = -(-len(fill) // (nm - 2))
        for k, p in enumerate(ps):
            tr.wait(bid[k])
            for (j, ks) in uses[p]:
                mfma(j, da[ks], RING + 4 * (k % NRING))
                do_fill(per)
            if k + NRING < len(ps): loadB(k + NRING)
            if k == len(ps) // 2: cstamp(a, 2)
        do_fill(1000)
        cstamp(a, 3)
        lds_wait(a, FL_G + 12, DA, "b4", addr=14)
        cstamp(a, 4)
        tr = LdsTrack(a)
        cl = []
        for kind in sorted({k for k, _ in keysB}):
            if kind in (3, 5):
                for b in range(6):
                    u = [(j, (kind, j - b)) for j in tiles if 2 <= j - b <= 4]
                    if u: cl.append((kind, b, u))
            else:
                for b in range(2):
                    u = [(j, (kind, j - 2 * b - 4)) for j in tiles if j - 2 * b - 4 >= 0]
                    if u: cl.append((kind, b, u))
        cid = {}
        for k, (kind, b, u) in enumerate(cl):
            rg = DA + 4 * k
            if kind in (3, 5):
                o = (R_WS3 if kind == 3 else R_WS5) + 512 * b; ad, st = VT8, 64
            else:
                o = (R_WS7 if kind == 7 else R_WS9) + 1024 * b; ad, st = VT16, 128
            tr.issue(f"ds_read_b64_tr_b16 v[{rg}:{rg+1}], v{ad} offset:{o}")
            cid[k] = tr.issue(f"ds_read_b64_tr_b16 v[{rg+2}:{rg+3}], v{ad} offset:{o+st}")
        for k, (kind, b, u) in enumerate(cl):
            tr.wait(cid[k])
            for (j, key) in u: mfma(j, DA + 4 * k, combB[key])
        stamp(a, 7); cstamp(a, 5)
        gl = [newlabel("EP") for _ in range(3)]
        a(f"v_add_u32 v6, {G_BASE}, v{VLN}", f"v_add_u32 v7, {G_BASE + G_SIZE}, v{VLN}", f"v_add_u32 v9, {G_BASE + 2*G_SIZE}, v{VLN}")
        a("v_lshrrev_b32 v10, 2, v2", "v_lshl_add_u32 v10, v10, 2, v3", "v_and_b32 v11, 3, v2", "v_lshlrev_b32 v11, 4, v11")
        a("v_lshlrev_b32 v13, 5, v2", "v_lshl_add_u32 v13, v3, 3, v13")
        a("v_and_b32 v8, 1, v1", f"v_cmp_eq_u32 s[{SP0}:{SP1}], 1, v8")
        a(f"s_lshl_b32 s{T0_}, s{S_G}, 2", f"s_add_u32 s{T0_}, s{T0_}, s{S_ROLE}", f"v_mov_b32 v8, s{T0_}")
        for g in range(1, 3): a(f"s_cmp_eq_u32 s{S_G}, {g}", f"s_cbranch_scc1 {gl[g]}")
        def slot_ref(off):
            g = off // G_SIZE
            return (6, 7, 9)[g], off - g * G_SIZE
        for g in range(3):
            if g: a(f"{gl[g]}:")
            a.flush(4)
            for j in tiles:
                if (g, role, j) in slots:
                    v, o = slot_ref(slots[(g, role, j)])
                    a(f"ds_write_b128 v{v}, v[{acc[j]}:{acc[j]+3}] offset:{o}")
            a(f"ds_write_b8 v8, v{VONE} offset:{FL_S6}")
            if g < 2:
                j = [t for t, o in owner.items() if o == (g, role)][0]
                outs = [(0, j), (1, j)]
                srd(a, R0, P_WS, 0x200000, WS_ZB1)
                a("v_lshl_add_u32 v10, v10, 15, v11")
                a(f"s_lshl_b32 s{T0_}, s{S_CH}, 5", f"s_and_b32 s{T0_}, s{T0_}, 0xffffffc0", f"s_add_u32 s{T0_}, s{T0_}, {((j >> 1) * 32 + (j & 1)) * 16384}")
            else:
                outs = [(2, 2 * role), (2, 2 * role + 1)]
                srd(a, R0, P_WS, 0x40000, WS_ZB2)
                a("v_lshl_add_u32 v10, v10, 12, v11")
                a(f"s_sub_u32 s{T0_}, s{S_CH}, 512", f"s_lshl_b32 s{T0_}, s{T0_}, 6", f"s_add_u32 s{T0_}, s{T0_}, {role * 16 * 4096}")
            PR, UU = 80, 88
            for k, (gg, j) in enumerate(outs):
                a(f"ds_read_b64 v[{PR+2*k}:{PR+2*k+1}], v{VZ} offset:{C_PAR + 16*gg}")
                a(f"ds_read_b64 v[{UU+2*k}:{UU+2*k+1}], v13 offset:{C_U + U_SIZE*gg + 480 + 512*j}")
            cstamp(a, 6)
            if g < 2: lds_wait(a, FL_S6, 40, "b8")
            else: lds_wait(a, FL_S6 + 8, 40, "b4")
            cstamp(a, 7)
            tr = LdsTrack(a)
            src = []; nr = 0
            for k, (gg, j) in enumerate(outs):
                lst = []
                for rr in range(4):
                    if j not in ROLE_TILES[rr]: continue
                    if (gg, rr) == (g, role): lst.append((acc[j], None)); continue
                    v, o = slot_ref(slots[(gg, rr, j)])
                    rg = 40 + 4 * nr; nr += 1
                    lst.append((rg, tr.issue(f"ds_read_b128 v[{rg}:{rg+3}], v{v} offset:{o}")))
                src.append(lst)
            for k in range(2):
                for p in range(2):
                    u = UU + 2 * k + p; t = 60 + 4 * k + 2 * p
                    a(f"v_cvt_f32_f16 v{t}, v{u}", f"v_cvt_f32_f16_sdwa v{t+1}, v{u} dst_sel:DWORD dst_unused:UNUSED_PAD src0_sel:WORD_1")
                    a(f"v_mul_f32 v{t}, v{PR+2*k+1}, v{t}", f"v_mul_f32 v{t+1}, v{PR+2*k+1}, v{t+1}")
                    a(f"v_cvt_pk_bf16_f32 v{u}, v{t}, v{t+1}")
                    unpack(a, t, u)
            Z = 72
            for k, lst in enumerate(src):
                (r0, i0), (r1, i1) = lst
                tr.wait(max(x for x in (i0, i1) if x is not None))
                y = r0 if i0 is not None else r1
                for p in range(2):
                    a(f"v_pk_add_f32 v[{y+2*p}:{y+2*p+1}], v[{r0+2*p}:{r0+2*p+1}], v[{r1+2*p}:{r1+2*p+1}]")
                for p in range(2):
                    a(f"v_pk_mul_f32 v[{y+2*p}:{y+2*p+1}], v[{y+2*p}:{y+2*p+1}], v[{PR+2*k}:{PR+2*k+1}] op_sel_hi:[1,0]")
                for p in range(2):
                    a(f"v_cvt_pk_bf16_f32 v{Z+2*k+p}, v{y+2*p}, v{y+2*p+1}")
                for p in range(2):
                    unpack(a, y + 2 * p, Z + 2 * k + p)
                for p in range(2):
                    t = 60 + 4 * k + 2 * p
                    a(f"v_pk_add_f32 v[{y+2*p}:{y+2*p+1}], v[{y+2*p}:{y+2*p+1}], v[{t}:{t+1}]")
                for p in range(2):
                    a(f"v_cvt_pk_bf16_f32 v{Z+2*k+p}, v{y+2*p}, v{y+2*p+1}")
            a(f"s_branch {zend}")
    a(f"{zend}:")
    Z = 72; sp = f"s[{SP0}:{SP1}]"
    for k in range(4): a(f"v_min_u32 v{Z+k}, -2, v{Z+k}")
    a(f"v_cndmask_b32 v60, v{Z+2}, v{Z}, {sp}", f"v_cndmask_b32 v61, v{Z+3}, v{Z+1}, {sp}")
    a(f"v_mov_b32_dpp v62, v60 quad_perm:[1,0,3,2] {DPPM}", f"v_mov_b32_dpp v63, v61 quad_perm:[1,0,3,2] {DPPM}")
    a(f"v_cndmask_b32 v{Z}, v{Z}, v62, {sp}", f"v_cndmask_b32 v{Z+1}, v{Z+1}, v63, {sp}")
    a(f"v_cndmask_b32 v{Z+2}, v62, v{Z+2}, {sp}", f"v_cndmask_b32 v{Z+3}, v63, v{Z+3}, {sp}")
    lds_wait(a, FL_CLROK, 60, "b4")
    cstamp(a, 8)
    a(f"buffer_store_dwordx4 v[{Z}:{Z+3}], v10, s[{R0}:{R0+3}], s{T0_} offen sc1")
    stamp(a, 8)
    if DBG:
        a(f"s_mul_i32 s{T0_}, s{S_ROLE}, 1280", f"s_add_u32 s{T1_}, s{T0_}, s{S_GB}", f"v_lshl_add_u32 v20, v1, 2, s{T1_}")
        a(f"s_mul_i32 s{T1_}, s{S_CH}, 5376", f"s_add_u32 s{T1_}, s{T1_}, s{T0_}", f"s_add_u32 s{T1_}, s{T1_}, {hex(WS_DBG)}", f"v_lshl_add_u32 v21, v1, 2, s{T1_}")
        for k in range(5 + 1):
            a(f"ds_read_b32 v22, v20 offset:{R2 + 256*k}", "s_waitcnt lgkmcnt(0)", f"global_store_dword v21, v22, s[{P_WS}:{P_WS+1}] offset:{256*k}")
        a(f"ds_read_b32 v22, v14 offset:{C_PAR}", f"s_lshl_b32 s{T1_}, s{S_CH}, 2", f"s_add_u32 s{T1_}, s{T1_}, {hex(WS_DBG + 0x300000)}", f"v_mov_b32 v21, s{T1_}")
        a("s_waitcnt lgkmcnt(0)", f"global_store_dword v21, v22, s[{P_WS}:{P_WS+1}]")
    a("s_waitcnt vmcnt(0)")
    a(f"ds_write_b8 v8, v{VONE} offset:{FL_ZDONE}")

def gen(a):
    label = NAME + "_kernel"
    a(f".globl {label}", ".p2align 8", f".type {label},@function", f"{label}:")
    a("s_cmp_ge_u32 s2, 256", "s_cbranch_scc1 KS_END")
    stamp_begin(a)
    a("s_load_dwordx16 s[4:19], s[0:1], 0", "s_load_dwordx16 s[20:35], s[0:1], 64", f"s_load_dwordx2 s[{P_WS}:{P_WS+1}], s[0:1], 128")
    a(f"v_readfirstlane_b32 s{S_WAVE}, v0", f"s_lshr_b32 s{S_WAVE}, s{S_WAVE}, 6")
    a(f"s_and_b32 s{S_XC}, s2, 7", f"s_lshr_b32 s{S_I}, s2, 3")
    if ENV("REMAP", 1):
        a(f"s_add_u32 s{T0_}, s{S_WAVE}, 8", f"s_sub_u32 s{T1_}, s{S_WAVE}, 4", f"s_cmp_lt_u32 s{S_WAVE}, 8", f"s_cselect_b32 s{T0_}, s{T0_}, s{T1_}")
        a(f"s_cmp_lt_u32 s{S_WAVE}, 4", f"s_cselect_b32 s{S_WAVE}, s{S_WAVE}, s{T0_}")
    a("v_and_b32 v1, 63, v0", "v_and_b32 v2, 15, v1", "v_lshrrev_b32 v3, 4, v1", f"v_mov_b32 v{VZ}, 0", f"v_mov_b32 v{VONE}, 1")
    a(f"s_mov_b32 s{S_GUARD}, {GUARD}", f"s_mov_b32 s{S_ONES}, 0x01010101")
    a(f"s_lshl_b32 s{S_B2}, s{S_XC}, 5", f"s_add_u32 s{S_B2}, s{S_B2}, s{S_I}")
    a(f"s_mul_i32 s{S_BLK}, s{S_XC}, 18", f"s_add_u32 s{S_BLK}, s{S_BLK}, s{S_I}")
    a(f"s_cmp_lt_u32 s{S_WAVE}, 4", "s_cbranch_scc1 KS_L")
    a(f"s_cmp_ge_u32 s{S_WAVE}, 12", "s_cbranch_scc1 KS_X")
    a("s_setprio 2")
    a(f"s_lshr_b32 s{S_G}, s{S_WAVE}, 2", f"s_sub_u32 s{S_G}, s{S_G}, 1")
    a(f"s_lshl_b32 s{S_ROLE}, s{S_G}, 1", f"s_add_u32 s{S_ROLE}, s{S_ROLE}, s{S_WAVE}", f"s_and_b32 s{S_ROLE}, s{S_ROLE}, 3")
    a(f"s_lshl_b32 s{S_CH}, s{S_B2}, 1", f"s_add_u32 s{S_CH}, s{S_CH}, s{S_G}")
    a("KS_GRP:")
    gen_group(a)
    a(f"s_cmp_lt_u32 s{S_I}, 18", "s_cbranch_scc1 KS_T")
    a("s_waitcnt lgkmcnt(0)")
    endwave(a)
    a("KS_X:")
    a(f"s_cmp_lt_u32 s{S_I}, 24", "s_cbranch_scc1 KS_X2")
    a("s_setprio 1")
    a(f"s_mov_b32 s{S_G}, 2", f"s_add_u32 s{S_ROLE}, s{S_WAVE}, 1", f"s_and_b32 s{S_ROLE}, s{S_ROLE}, 3")
    a(f"s_lshl_b32 s{S_CH}, s{S_XC}, 3", f"s_add_u32 s{S_CH}, s{S_CH}, s{S_I}", f"s_add_u32 s{S_CH}, s{S_CH}, {512 - 24}")
    a("s_branch KS_GRP")
    a("KS_X2:")
    a(f"s_cmp_lt_u32 s{S_I}, 8", "s_cbranch_scc1 KS_X3")
    a(f"s_sub_u32 s{T5_}, s{S_WAVE}, 8")
    a("s_branch KS_LN1")
    a("KS_X3:")
    a("s_waitcnt lgkmcnt(0)")
    a("s_barrier")
    a("s_branch KS_G")
    a("KS_X4:")
    a(f"s_cmp_lt_u32 s{S_I}, 18", "s_cbranch_scc1 KS_G")
    a("s_waitcnt vmcnt(0) lgkmcnt(0)")
    endwave(a)
    a("KS_L:")
    a("v_lshlrev_b32 v6, 2, v0", f"ds_write_b32 v6, v{VZ}")
    a("v_mov_b32 v8, 0", "v_mov_b32 v9, 0", f"s_min_u32 s{T0_}, s{S_WAVE}, 2", f"s_mul_i32 s{T0_}, s{T0_}, {U_SIZE}", "v_min_u32 v6, 59, v1", f"v_lshl_add_u32 v6, v6, 3, s{T0_}")
    a(f"ds_write_b64 v6, v[8:9] offset:{C_U}")
    a(f"s_mov_b32 s{T5_}, s{S_WAVE}")
    a(f"s_sub_u32 s{T0_}, s{S_I}, 8", f"s_cmp_lt_u32 s{T0_}, 16", "s_cbranch_scc0 KS_L0")
    a("KS_LN1:")
    a("s_setprio 3")
    gen_ln1(a)
    a("s_branch KS_L1")
    a("KS_L0:")
    a(f"s_and_b32 s{T0_}, s{S_I}, 15", f"s_lshl_b32 s{T1_}, s{S_XC}, 4", f"s_add_u32 s{T0_}, s{T0_}, s{T1_}")
    a(f"s_lshl_b32 s{T1_}, s{T0_}, 6", f"s_add_u32 s{T1_}, s{T1_}, {hex(WS_FLAG1 + 8192)}", f"v_mov_b32 v7, s{T1_}")
    a(f"s_mul_i32 s{T1_}, s{T0_}, {CLR_WG}", f"s_add_u32 s{T1_}, s{T1_}, {hex(WS_CLR)}")
    a("v_lshlrev_b32 v6, 4, v0", "v_mov_b32 v10, 0", "v_mov_b32 v11, 0")
    a("v_mov_b32 v12, -1", "v_mov_b32 v13, -1", "v_mov_b32 v14, -1", "v_mov_b32 v15, -1", "v_mov_b32 v58, 0")
    a("s_setprio 3")
    a("v_mul_u32_u24 v16, 57, v1", "v_lshrrev_b32 v16, 9, v16", "v_mul_u32_u24 v17, 9, v16", "v_sub_u32 v17, v1, v17", "v_mul_u32_u24 v16, 9216, v16", "v_lshl_add_u32 v16, v17, 7, v16")
    a(f"s_and_b32 s{T2_}, s{S_I}, 15", f"s_lshl_b32 s{T2_}, s{T2_}, 2", f"s_add_u32 s{T2_}, s{T2_}, s{S_WAVE}")
    a(f"s_mul_i32 s{T2_}, s{T2_}, {9*9216}", f"s_mul_i32 s{T3_}, s{S_XC}, 1152", f"s_add_u32 s{T2_}, s{T2_}, s{T3_}", f"s_add_u32 s{T3_}, s{T2_}, {7*9216}")
    a("s_waitcnt lgkmcnt(0)")
    a(f"s_add_u32 s{R1}, s{P_WS}, s{T1_}", f"s_addc_u32 s{R1+1}, s{P_WS+1}, 0", f"s_mov_b32 s{R1+2}, {CLR_WG}", f"s_mov_b32 s{R1+3}, 0x20000")
    srd(a, R2_, P_GATE, D * F * 2)
    srd(a, R3, P_UP, D * F * 2)
    a("s_cmp_lg_u32 s2, 0", "s_cbranch_scc1 KS_L0B")
    srd(a, R0, P_WS, 16384, WS_FLAG1)
    for k in range(4):
        a(f"s_movk_i32 s{T0_}, {4096*k}")
        a(f"buffer_store_dwordx4 v[8:11], v6, s[{R0}:{R0+3}], s{T0_} offen sc1")
    a("s_barrier")
    a("s_waitcnt vmcnt(0)")
    a("s_mov_b64 exec, 1")
    a(f"ds_add_rtn_u32 v8, v{VZ}, v{VONE} offset:{FL_INIT}")
    a("s_waitcnt lgkmcnt(0)")
    a("v_cmp_eq_u32 vcc, 3, v8", "s_and_b64 exec, exec, vcc", "s_cbranch_execz KS_L0A")
    a(f"global_store_dword v{VZ}, v{VONE}, s[{P_DBG}:{P_DBG+1}] sc1")
    a(f"ds_write_b32 v{VZ}, v{VONE} offset:{FL_INIT + 4}")
    a("KS_L0A:")
    a("s_mov_b64 exec, -1")
    lds_wait(a, FL_INIT + 4, 8, "nz", sleep=1)
    a("s_branch KS_L0C")
    a("KS_L0B:")
    a("s_barrier")
    a("KS_L0C:")
    if ENV("CTRIG", 0): lds_wait(a, FL_PARAM, 8, "nz", sleep=2)
    for k in range(5):
        a(f"s_movk_i32 s{T0_}, {4096*k}")
        a(f"buffer_store_dwordx4 v[12:15], v6, s[{R1}:{R1+3}], s{T0_} offen sc1")
    if PF:
        a("s_mov_b32 exec_hi, 0x7fffffff")
        a(f"buffer_load_dword v18, v16, s[{R2_}:{R2_+3}], s{T2_} offen")
        a(f"buffer_load_dword v19, v16, s[{R3}:{R3+3}], s{T2_} offen")
        a("s_mov_b64 exec, 0x3ffff")
        a(f"buffer_load_dword v20, v16, s[{R2_}:{R2_+3}], s{T3_} offen")
        a(f"buffer_load_dword v21, v16, s[{R3}:{R3+3}], s{T3_} offen")
        a("s_mov_b64 exec, -1")
    stamp(a, 4)
    F1TRIG = ENV("F1TRIG", 1)
    if F1TRIG:
        a("s_setprio 0")
        lds_wait(a, FL_G + {1: 4, 2: 16, 3: 16 + 4}[F1TRIG], 6, "b4", sleep=2)
    a("KS_L1:")
    gen_flag1(a)
    a("KS_L2:")
    a("s_setprio 3")
    a("v_and_b32 v6, 31, v1", f"s_lshl_b32 s{T0_}, s{S_WAVE}, 11", f"s_add_u32 s{T0_}, s{T0_}, {hex(WS_FLAG1)}", f"v_lshl_add_u32 v6, v6, 6, s{T0_}")
    a(f"s_lshl_b32 s{T1_}, s{S_XC}, 8", f"s_add_u32 s{T0_}, s{T0_}, s{T1_}", f"v_mov_b32 v9, s{T0_}")
    srd(a, R0, P_WS, XBYTES, WS_UT)
    a("v_lshrrev_b32 v7, 1, v1", "v_lshlrev_b32 v7, 6, v7", "v_and_b32 v8, 1, v1", "v_lshl_add_u32 v7, v8, 4, v7")
    a(f"s_lshl_b32 s{T0_}, s{S_WAVE}, 11", f"s_lshl_b32 s{T1_}, s{S_B2}, 13", f"s_add_u32 s{T1_}, s{T1_}, s{T0_}", f"s_add_u32 s{T2_}, s{T1_}, 32")
    a(f"s_lshl_b32 s{T3_}, s{S_XC}, 3", f"s_add_u32 s{T3_}, s{T3_}, s{S_I}", f"s_add_u32 s{T3_}, s{T3_}, {512 - 24}")
    a(f"s_lshr_b32 s{T4_}, s{T3_}, 1", f"s_lshl_b32 s{T4_}, s{T4_}, 13", f"s_and_b32 s{T3_}, s{T3_}, 1", f"s_lshl_b32 s{T3_}, s{T3_}, 5")
    a(f"s_add_u32 s{T3_}, s{T3_}, s{T4_}", f"s_add_u32 s{T3_}, s{T3_}, s{T0_}")
    a(f"s_lshl_b32 s{T4_}, s{S_WAVE}, 10", f"s_add_u32 s{T4_}, s{T4_}, {C_U + 480}")
    if ENV("F1GATE", 1):
        lp = newlabel("F1S")
        a(f"{lp}:")
        a(f"s_sleep {ENV('F1SLEEP', 2)}")
        a(f"global_load_dword v8, v9, s[{P_WS}:{P_WS+1}] sc1")
        guard(a)
        a("s_waitcnt vmcnt(0)")
        a("v_cmp_ne_u32 vcc, 1, v8", f"s_cbranch_vccnz {lp}")
        if ENV("F1DELAY", 0): a(f"s_sleep {ENV('F1DELAY', 0)}")
    lp = newlabel("F1"); l1 = newlabel("F1E")
    a(f"s_branch {l1}")
    a(f"{lp}:")
    a(f"s_sleep {ENV('F1SLEEP', 2)}")
    a(f"{l1}:")
    a(f"global_load_dword v8, v6, s[{P_WS}:{P_WS+1}] sc1")
    guard(a)
    a("s_waitcnt vmcnt(0)")
    a("v_cmp_ne_u32 vcc, 1, v8", f"s_cbranch_vccnz {lp}")
    stamp(a, 6)
    a(f"s_mov_b32 m0, s{T4_}")
    a(f"buffer_load_dwordx4 v7, s[{R0}:{R0+3}], s{T1_} offen sc1 lds")
    a(f"s_add_u32 m0, s{T4_}, {U_SIZE}")
    a(f"buffer_load_dwordx4 v7, s[{R0}:{R0+3}], s{T2_} offen sc1 lds")
    a(f"s_cmp_lt_u32 s{S_I}, 24", "s_cbranch_scc1 KS_L3")
    a(f"s_add_u32 m0, s{T4_}, {2*U_SIZE}")
    a(f"buffer_load_dwordx4 v7, s[{R0}:{R0+3}], s{T3_} offen sc1 lds")
    a("KS_L3:")
    a(f"v_mov_b32 v116, s{S_WAVE}")
    a("s_waitcnt vmcnt(0)")
    a(f"ds_write_b8 v116, v{VONE} offset:{FL_UF}")
    stamp(a, 7)
    a("s_setprio 0")
    lp = newlabel("F1C")
    a(f"{lp}:")
    a("v_add_u32 v9, 8192, v6")
    a(f"global_load_dword v8, v9, s[{P_WS}:{P_WS+1}] sc1")
    guard(a)
    a("s_waitcnt vmcnt(0)")
    a("v_cmp_ne_u32 vcc, 1, v8", f"s_cbranch_vccnz {lp}")
    a(f"ds_write_b8 v116, v{VONE} offset:{FL_CLROK}")
    lds_wait(a, FL_UF, 8, "b4", sleep=1)
    a(f"s_lshr_b32 s{T0_}, s{S_B2}, 6", f"s_lshl_b32 s{T0_}, s{T0_}, 9")
    a(f"s_bfe_u32 s{T1_}, s{S_B2}, 0x10001", f"s_lshl_b32 s{T1_}, s{T1_}, 8", f"s_add_u32 s{T0_}, s{T0_}, s{T1_}")
    a(f"s_bfe_u32 s{T1_}, s{S_B2}, 0x20004", f"s_lshl_b32 s{T1_}, s{T1_}, 6", f"s_add_u32 s{T0_}, s{T0_}, s{T1_}")
    a(f"s_and_b32 s{T1_}, s{S_B2}, 1", f"s_lshl_b32 s{T1_}, s{T1_}, 5", f"s_add_u32 s{T0_}, s{T0_}, s{T1_}")
    a(f"s_bfe_u32 s{T1_}, s{S_B2}, 0x20002", f"s_lshl_b32 s{T1_}, s{T1_}, 2", f"s_add_u32 s{T0_}, s{T0_}, s{T1_}")
    a(f"s_lshr_b32 s{T1_}, s{S_WAVE}, 1", f"s_lshl_b32 s{T1_}, s{T1_}, 4", f"s_add_u32 s{T0_}, s{T0_}, s{T1_}")
    a(f"s_and_b32 s{T1_}, s{S_WAVE}, 1", f"s_lshl_b32 s{T1_}, s{T1_}, 1", f"s_add_u32 s{T0_}, s{T0_}, s{T1_}")
    a("v_lshrrev_b32 v113, 5, v1", "v_and_b32 v114, 31, v1")
    a(f"v_add_u32 v112, s{T0_}, v113")
    a("v_mul_u32_u24 v115, 1152, v112", "v_lshl_add_u32 v8, v114, 2, v115", "v_lshl_add_u32 v115, v114, 4, v115", "v_lshlrev_b32 v7, 2, v114", "v_lshlrev_b32 v6, 4, v114")
    a(f"v_bfe_u32 v111, v1, 3, 1", f"v_add_u32 v111, s{T0_}, v111", "v_mul_u32_u24 v111, 1152, v111", "v_and_b32 v9, 7, v1", "v_lshl_add_u32 v111, v9, 4, v111")
    srd(a, R0, P_X, XBYTES)
    srd(a, R1, P_WR, 1152)
    a(f"buffer_load_dwordx4 v[10:13], v115, s[{R0}:{R0+3}], 0 offen")
    a(f"buffer_load_dwordx4 v[14:17], v115, s[{R0}:{R0+3}], 0 offen offset:512")
    a(f"buffer_load_dword v18, v8, s[{R0}:{R0+3}], 0 offen offset:1024")
    a(f"buffer_load_dwordx4 v[50:53], v6, s[{R1}:{R1+3}], 0 offen")
    a(f"buffer_load_dwordx4 v[54:57], v6, s[{R1}:{R1+3}], 0 offen offset:512")
    a(f"buffer_load_dword v58, v7, s[{R1}:{R1+3}], 0 offen offset:1024")
    a(f"s_cmp_lt_u32 s{S_I}, 18", "s_cbranch_scc1 KS_L3B")
    a(f"s_mul_i32 s{T0_}, s{S_XC}, 14", f"s_add_u32 s{T0_}, s{T0_}, s{S_I}", f"s_mul_i32 s{T0_}, s{T0_}, {CLRP_WG}", f"s_add_u32 s{T0_}, s{T0_}, {hex(WS_PART - 18*CLRP_WG)}")
    a(f"s_add_u32 s{R1}, s{P_WS}, s{T0_}", f"s_addc_u32 s{R1+1}, s{P_WS+1}, 0", f"s_mov_b32 s{R1+2}, {CLRP_WG}", f"s_mov_b32 s{R1+3}, 0x20000")
    if ENV("PFD", 1):
        srd(a, R2_, P_DOWN, D * F * 2)
        a(f"s_sub_u32 s{T0_}, s{S_I}, 18", f"s_lshl_b32 s{T0_}, s{T0_}, 2", f"s_add_u32 s{T0_}, s{T0_}, s{S_WAVE}", f"s_mul_i32 s{T0_}, s{T0_}, {93*128}")
        a(f"s_mul_i32 s{T1_}, s{S_XC}, {576*1152}", f"s_add_u32 s{T0_}, s{T0_}, s{T1_}", "v_lshlrev_b32 v6, 7, v1")
        a(f"buffer_load_dword v64, v6, s[{R2_}:{R2_+3}], s{T0_} offen")
        a(f"buffer_load_dword v65, v6, s[{R2_}:{R2_+3}], s{T0_} offen offset:{29*128}")
    a("v_lshlrev_b32 v6, 4, v0", "v_mov_b32 v60, -1", "v_mov_b32 v61, -1", "v_mov_b32 v62, -1", "v_mov_b32 v63, -1")
    for k in range(6):
        a(f"s_movk_i32 s{T0_}, {4096*k}")
        a(f"buffer_store_dwordx4 v[60:63], v6, s[{R1}:{R1+3}], s{T0_} offen sc1")
    a("s_branch KS_L4")
    a("KS_L3B:")
    if ENV("DTRIG", 1): lds_wait(a, FL_GISS, 6, "b4", sleep=2)
    srd(a, R1, P_DOWN, F * D * 2)
    a("v_lshlrev_b32 v6, 4, v1", f"s_mul_i32 s{T0_}, s{S_BLK}, 36864", f"s_mul_i32 s{T1_}, s{S_WAVE}, 9216", f"s_add_u32 s{T0_}, s{T0_}, s{T1_}", f"s_add_u32 s{T1_}, s{T1_}, {C_DOWN}")
    for k in range(9):
        if k % 4 == 0:
            a(f"s_add_u32 m0, s{T1_}, {1024*k}")
            if k: a(f"s_add_u32 s{T0_}, s{T0_}, 4096")
        a(f"buffer_load_dwordx4 v6, s[{R1}:{R1+3}], s{T0_} offen offset:{1024*(k&3)} lds")
    a("KS_L4:")
    srd(a, R0, P_WS, 0x240000, WS_ZB1)
    srd(a, R1, P_OUT, XBYTES)
    srd(a, R2_, P_WS, XBYTES, WS_X2)
    srd(a, R3, P_WS, 12288, WS_KEYS)
    a("v_lshrrev_b32 v6, 1, v0", "v_lshlrev_b32 v6, 6, v6", "v_and_b32 v8, 1, v0", "v_lshl_add_u32 v6, v8, 4, v6")
    a(f"s_lshr_b32 s{T0_}, s{S_B2}, 1", f"s_lshl_b32 s{T0_}, s{T0_}, 14", f"s_and_b32 s{T1_}, s{S_B2}, 1", f"s_lshl_b32 s{T1_}, s{T1_}, 5", f"s_add_u32 s{T0_}, s{T0_}, s{T1_}")
    a(f"s_lshr_b32 s{T2_}, s{S_B2}, 2", f"s_lshl_b32 s{T2_}, s{T2_}, 12", f"s_add_u32 s{T2_}, s{T2_}, s{T1_}", f"s_bfe_u32 s{T1_}, s{S_B2}, 0x10001", f"s_lshl_b32 s{T1_}, s{T1_}, 4")
    a(f"s_add_u32 s{T2_}, s{T2_}, s{T1_}", f"s_lshl_b32 s{T1_}, s{S_WAVE}, 10", f"s_add_u32 s{T2_}, s{T2_}, s{T1_}", f"s_add_u32 s{T2_}, s{T2_}, 0x200000")
    a(f"s_add_u32 s{T1_}, s{T0_}, 8192", "v_lshlrev_b32 v9, 6, v2")
    a(f"s_mul_i32 s{T3_}, s{S_WAVE}, 2304", f"s_add_u32 s{T3_}, s{T3_}, {C_XR}", f"v_lshl_add_u32 v117, v114, 5, s{T3_}", f"v_lshl_add_u32 v110, v114, 3, s{T3_}")
    a(f"s_lshl_b32 s{T3_}, s{S_WAVE}, 9", f"s_add_u32 s{T3_}, s{T3_}, {C_RED}", f"v_lshl_add_u32 v108, v1, 2, s{T3_}", f"v_lshl_add_u32 v109, v1, 4, s{T3_}")
    a(f"s_mov_b32 s{T3_}, 0x02020202", f"v_mul_lo_u32 v118, v113, s{T3_}", "v_add_u32 v118, 0x05040100, v118")
    a(f"v_lshlrev_b32 v8, 2, v0", f"v_add_u32 v8, {C_XR}, v8")
    a(f"s_lshl_b32 s{T3_}, s{S_WAVE}, 6", f"s_add_u32 s{T3_}, s{T3_}, {C_XR + 2048}", f"v_lshl_add_u32 v119, v2, 2, s{T3_}")
    a("s_waitcnt vmcnt(0)")
    a(f"ds_write_b8 v116, v{VONE} offset:{FL_DOWN}")
    X = 20
    for j in range(9): unpack(a, X + 2 * j, 10 + j)
    lds_wait(a, FL_ZDONE, 60, "b8", sleep=1)
    a("s_setprio 3")
    stamp2(a, 1)
    def zpoll(loads, regs, sleep):
        lp = newlabel("ZP"); l1 = newlabel("ZPE")
        a(f"s_branch {l1}")
        a(f"{lp}:")
        a(f"s_sleep {sleep}")
        a(f"{l1}:")
        for l in loads: a(l)
        guard(a)
        a("s_waitcnt vmcnt(0)")
        a(f"v_max3_u32 v44, v{regs[0]}, v{regs[1]}, v{regs[2]}")
        r = regs[3:]
        while len(r) >= 2: a(f"v_max3_u32 v44, v44, v{r[0]}, v{r[1]}"); r = r[2:]
        if r: a(f"v_max_u32 v44, v44, v{r[0]}")
        a("v_cmp_eq_u32 vcc, -1, v44", f"s_cbranch_vccnz {lp}")
    if ENV("ZGATE", 1):
        zpoll([f"buffer_load_dwordx4 v[68:71], v{VZ}, s[{R0}:{R0+3}], s{T2_} offen sc1"], list(range(68, 72)), ENV("ZSLEEP", 1))
        if ENV("ZDELAY", 0): a(f"s_sleep {ENV('ZDELAY', 0)}")
    zpoll([f"buffer_load_dwordx4 v[60:63], v6, s[{R0}:{R0+3}], s{T0_} offen sc1",
           f"buffer_load_dwordx4 v[64:67], v6, s[{R0}:{R0+3}], s{T1_} offen sc1",
           f"buffer_load_dwordx4 v[68:71], v9, s[{R0}:{R0+3}], s{T2_} offen sc1"], list(range(60, 72)), ENV("ZSLEEP", 1))
    stamp2(a, 2)
    for k in range(2):
        a(f"ds_write2st64_b32 v8, v{60+4*k}, v{61+4*k} offset0:{4*k} offset1:{9+4*k}")
        a(f"ds_write2st64_b32 v8, v{62+4*k}, v{63+4*k} offset0:{18+4*k} offset1:{27+4*k}")
    a("ds_write2st64_b32 v119, v68, v69 offset0:0 offset1:9")
    a("ds_write2st64_b32 v119, v70, v71 offset0:18 offset1:27")
    a(f"ds_write_b8 v116, v{VONE} offset:{FL_ZF}")
    stamp2(a, 3)
    lds_wait(a, FL_ZF, 60, "b4")
    for k in range(4):
        a(f"ds_read_b128 v[{60+4*k}:{63+4*k}], v117 offset:{1024*(k>>1) + 16*(k&1)}")
    a("ds_read_b64 v[76:77], v110 offset:2048")
    for j in range(9):
        if j % 2 == 0: a(f"s_waitcnt lgkmcnt({4-j//2})")
        a(f"v_perm_b32 v44, v{61+2*j}, v{60+2*j}, v118")
        unpack(a, 46, 44)
        a(f"v_pk_add_f32 v[46:47], v[46:47], v[{X+2*j}:{X+2*j+1}]")
        a(f"v_cvt_pk_bf16_f32 v44, v46, v47")
        unpack(a, X + 2 * j, 44)
    ln_stats(a, X, 40, 42, 44, 46, 48)
    stamp2(a, 4)
    a("v_mov_b32 v60, 0", "v_mov_b32 v61, 0")
    for j in range(9):
        ln_apply_pair(a, X + 2 * j, 40, 42, 44, 10 + j)
        unpack(a, 46, 50 + j)
        a("v_pk_fma_f32 v[60:61], v[44:45], v[46:47], v[60:61]")
        a(f"v_pk_add_f32 v[{X+2*j}:{X+2*j+1}], v[44:45], v[{X+2*j}:{X+2*j+1}]")
    a("v_add_f32 v60, v60, v61")
    red32(a, "v_add_f32", 60, 61)
    a("v_cvt_pk_bf16_f32 v60, v60, v60")
    a("v_ashrrev_i32 v61, 31, v60", "v_or_b32 v61, 0x80000000, v61", "v_xor_b32 v60, v60, v61", "v_and_b32 v60, 0xffff0000, v60")
    a("v_sub_u32 v62, 0x87ff, v112", "v_or_b32 v60, v60, v62", "v_lshl_add_u32 v61, v116, 1, v113", "v_lshlrev_b32 v61, 2, v61")
    a("s_mov_b32 exec_lo, 1", "s_mov_b32 exec_hi, 1")
    a(f"ds_write_b32 v61, v60 offset:{C_KEY}")
    a("s_mov_b64 exec, 1")
    a(f"ds_add_rtn_u32 v62, v{VZ}, v{VONE} offset:{FL_KCNT}")
    a("s_mov_b64 exec, 3")
    a("v_lshlrev_b32 v61, 4, v114", f"s_lshl_b32 s{T0_}, s{S_B2}, 5")
    a(f"ds_read_b128 v[64:67], v61 offset:{C_KEY}")
    a("s_waitcnt lgkmcnt(1)")
    a(f"v_readfirstlane_b32 s{T1_}, v62")
    a(f"s_cmp_lg_u32 s{T1_}, 3", "s_cbranch_scc1 KS_NOKEY")
    a("s_waitcnt lgkmcnt(0)")
    a(f"buffer_store_dwordx4 v[64:67], v61, s[{R3}:{R3+3}], s{T0_} offen sc1")
    a("KS_NOKEY:")
    a("s_mov_b64 exec, -1")
    a(f"v_cvt_pk_bf16_f32 v58, v{X+16}, v{X+17}")
    a("ds_write_b32 v108, v18", "ds_write_b32 v108, v58 offset:256", "ds_read_b128 v[64:67], v109")
    a(f"buffer_store_dwordx4 v[10:13], v115, s[{R2_}:{R2_+3}], 0 offen sc1")
    a(f"buffer_store_dwordx4 v[14:17], v115, s[{R2_}:{R2_+3}], 0 offen offset:512 sc1")
    for j in range(8):
        a(f"v_cvt_pk_bf16_f32 v{50+j}, v{X+2*j}, v{X+2*j+1}")
    a("s_mov_b64 exec, 0xffff")
    a("s_waitcnt lgkmcnt(0)")
    a(f"buffer_store_dwordx4 v[64:67], v111, s[{R2_}:{R2_+3}], 0 offen offset:1024 sc1")
    a("s_mov_b64 exec, 0xffff0000")
    a(f"buffer_store_dwordx4 v[64:67], v111, s[{R1}:{R1+3}], 0 offen offset:1024 sc1")
    a("s_mov_b64 exec, -1")
    a(f"buffer_store_dwordx4 v[50:53], v115, s[{R1}:{R1+3}], 0 offen sc1")
    a(f"buffer_store_dwordx4 v[54:57], v115, s[{R1}:{R1+3}], 0 offen offset:512 sc1")
    stamp2(a, 5)
    a(f"s_cmp_lg_u32 s{T1_}, 3", "s_cbranch_scc1 KS_NOKEY2")
    a("s_waitcnt vmcnt(6)")
    a(f"ds_write_b32 v{VZ}, v{VONE} offset:{FL_KACK}")
    a("KS_NOKEY2:")
    a("s_waitcnt vmcnt(0)")
    a("s_mov_b64 exec, 1")
    a(f"ds_add_rtn_u32 v62, v{VZ}, v{VONE} offset:{FL_F2CNT}")
    a("s_waitcnt lgkmcnt(0)")
    a("v_cmp_eq_u32 vcc, 3, v62", "s_and_b64 exec, exec, vcc", "s_cbranch_execz KS_NOF2")
    a(f"s_lshl_b32 s{T0_}, s2, 4", f"s_add_u32 s{T0_}, s{T0_}, 8192")
    a(f"buffer_store_dword v{VONE}, v{VZ}, s[{R3}:{R3+3}], s{T0_} offen sc1")
    a("KS_NOF2:")
    a("s_mov_b64 exec, -1")
    a("s_setprio 0")
    a(f"s_cmp_lt_u32 s{S_I}, 18", "s_cbranch_scc1 KS_B")
    a("s_waitcnt lgkmcnt(0)")
    endwave(a)
    a("KS_T:")
    a("s_setprio 0")
    a(f"s_cmp_ge_u32 s{S_WAVE}, 10", "s_cbranch_scc1 KS_P")
    a("v_and_b32 v6, 1, v1", "v_subrev_u32 v6, 1, v6")
    a("v_and_b32 v7, 7, v1", "v_lshlrev_b32 v7, 2, v7")
    srd(a, R3, P_WS, 12288, WS_KEYS)
    a(f"s_cmp_eq_u32 s{S_WAVE}, 9", "s_cbranch_scc1 KS_W9")
    a(f"s_cmp_eq_u32 s{S_WAVE}, 8", "s_cbranch_scc1 KS_L2W")
    a(f"s_sub_u32 s{T1_}, s{S_WAVE}, 4", f"s_lshl_b32 s{T0_}, s{T1_}, 10", f"v_lshl_add_u32 v33, v1, 4, s{T0_}", f"s_movk_i32 s{T0_}, 4096")
    a(f"s_lshl_b32 s{T1_}, s{T1_}, 7", "v_lshlrev_b32 v32, 4, v2", "v_lshl_add_u32 v32, v3, 5, v32", f"v_add_u32 v32, s{T1_}, v32")
    lds_wait(a, FL_KACK, 8, "nz", sleep=1)
    a("s_setprio 2")
    if ENV('KDELAY', 20): a(f"s_sleep {ENV('KDELAY', 20)}")
    stamp2(a, 1)
    zpoll([f"buffer_load_dwordx4 v[8:11], v33, s[{R3}:{R3+3}], 0 offen sc1",
           f"buffer_load_dwordx4 v[12:15], v33, s[{R3}:{R3+3}], s{T0_} offen sc1"], list(range(8, 16)), ENV("KSLEEP", 4))
    a(f"ds_write_b32 v{VZ}, v{VONE} offset:{FL_KSEEN}")
    stamp2(a, 2)
    pool = Pool(range(16, 28))
    x = [8, 9, 10, 11]; y = [12, 13, 14, 15]
    for (i, j) in ((0, 1), (2, 3), (0, 2), (1, 3), (1, 2)):
        ce_inlane(a, x, i, j, pool); ce_inlane(a, y, i, j, pool)
    clean8(a, x, pool, 6, rev=True); clean8(a, y, pool, 6, rev=True)
    merge_pair(a, x, y, pool); clean8(a, x, pool, 6)
    for M in MIRRORS:
        merge_mirror(a, x, pool, M); clean8(a, x, pool, 6)
    for i in range(4): a(f"v_mov_b32 v{28+i}, v{x[i]}")
    a("s_mov_b32 exec_lo, 0x00030003", "s_mov_b32 exec_hi, 0x00030003")
    a(f"ds_write_b128 v32, v[28:31] offset:{C_CAND}")
    a("s_mov_b64 exec, -1")
    stamp2(a, 3)
    a("s_setprio 0")
    a("s_branch KS_B")
    a("KS_L2W:")
    srd(a, R2_, P_WS, XBYTES, WS_X2)
    a(f"s_mov_b32 s{T0_}, 0xcccccccc", f"s_mov_b32 s{T1_}, 0xcccccccc", f"s_mov_b32 s{T2_}, 0xf0f0f0f0", f"s_mov_b32 s{T3_}, 0xf0f0f0f0", f"s_movk_i32 s{T4_}, 1152")
    a("v_lshrrev_b32 v34, 3, v1", "v_lshlrev_b32 v34, 4, v34", "v_lshlrev_b32 v33, 4, v2")
    lds_wait(a, FL_KACK, 8, "nz", sleep=1)
    a("s_setprio 2")
    a("KS_L2POLL:")
    a(f"ds_read_b128 v[8:11], v33 offset:{C_CAND}")
    a(f"ds_read_b128 v[12:15], v33 offset:{C_CAND + 256}")
    guard(a)
    a("s_waitcnt lgkmcnt(0)")
    a("v_min3_u32 v16, v8, v9, v10", "v_min3_u32 v17, v11, v12, v13", "v_min3_u32 v16, v16, v14, v15", "v_min_u32 v16, v16, v17", "v_cmp_eq_u32 vcc, 0, v16")
    a("s_cbranch_vccnz KS_L2POLL")
    stamp2(a, 1)
    pool = Pool(range(16, 28))
    x = [8, 9, 10, 11]; y = [12, 13, 14, 15]
    merge_pair(a, x, y, pool); clean8(a, x, pool, 6)
    for li, M in enumerate(MIRRORS):
        merge_mirror(a, x, pool, M)
        if li < 2: clean8(a, x, pool, 6)
    a(f"ds_read_b32 v35, v{VZ} offset:{FL_ROWSOK}")
    a(f"v_cndmask_b32 v30, v{x[0]}, v{x[1]}, s[{T0_}:{T1_}]", f"v_cndmask_b32 v31, v{x[2]}, v{x[3]}, s[{T0_}:{T1_}]", f"v_cndmask_b32 v30, v30, v31, s[{T2_}:{T3_}]")
    a("v_mov_b32_dpp v30, v30 row_shr:8 row_mask:0xf bank_mask:0xc")
    a("v_and_b32 v31, 0x7ff, v30", "v_sub_u32 v31, 2047, v31", f"v_mad_u32_u24 v31, v31, s{T4_}, v34")
    a("s_waitcnt lgkmcnt(0)")
    a("v_cmp_ne_u32 vcc, 0, v35", "s_cbranch_vccnz KS_RW1")
    lds_wait(a, FL_ROWSOK, 35, "nz")
    a("KS_RW1:")
    for k in range(9):
        a(f"s_mov_b32 m0, {C_XR + 896*k}")
        a(f"buffer_load_dwordx4 v31, s[{R2_}:{R2_+3}], 0 offen offset:{128*k} sc1 lds")
    a(f"ds_write_b32 v7, v30 offset:{C_SEL}")
    stamp2(a, 2)
    a("s_waitcnt vmcnt(0)")
    a(f"ds_write_b32 v{VZ}, v{VONE} offset:{FL_XRDY}")
    stamp2(a, 3)
    a("s_setprio 0")
    a("s_branch KS_B")
    a("KS_W9:")
    a("v_lshlrev_b32 v33, 4, v1", f"s_movk_i32 s{T0_}, 0x2000")
    srd(a, R2_, P_WS, XBYTES, WS_X2)
    srd(a, R0, P_WS, 0x240000, WS_ZB1)
    srd(a, R1, P_X, XBYTES)
    a("v_bfe_u32 v43, v1, 2, 3", f"s_lshl_b32 s{T1_}, s{S_BLK}, 3", f"v_add_u32 v43, s{T1_}, v43")
    a("v_bfe_u32 v40, v43, 4, 1", "v_and_b32 v41, 3, v1", "v_lshl_add_u32 v40, v40, 2, v41", "v_lshlrev_b32 v40, 2, v40")
    a("v_lshrrev_b32 v41, 5, v43", "v_lshlrev_b32 v41, 4, v41", "v_and_b32 v42, 15, v43", "v_add_u32 v41, v41, v42")
    lds_wait(a, FL_KSEEN, 8, "nz", sleep=1)
    if ENV('F2DELAY', 8): a(f"s_sleep {ENV('F2DELAY', 8)}")
    a("s_setprio 2")
    zpoll([f"buffer_load_dword v{8+k}, v33, s[{R3}:{R3+3}], s{T0_} offen offset:{1024*k} sc1" for k in range(4)], list(range(8, 12)), ENV("F2SLEEP", 4))
    a(f"ds_write_b32 v{VZ}, v{VONE} offset:{FL_ROWSOK}")
    stamp2(a, 1)
    a("s_setprio 0")
    lds_wait(a, C_SEL, 12, "nz", addr=7, sleep=1)
    stamp2(a, 2)
    a(f"ds_read_b32 v19, v40 offset:{C_SEL}")
    a("s_waitcnt lgkmcnt(0)")
    a("v_and_b32 v14, 0x7ff, v19", "v_sub_u32 v14, 2047, v14")
    a("v_mul_u32_u24 v23, 1152, v14", "v_lshl_add_u32 v23, v41, 1, v23")
    a(f"buffer_load_ushort v20, v23, s[{R2_}:{R2_+3}], 0 offen sc1")
    a(f"buffer_load_ushort v17, v23, s[{R1}:{R1+3}], 0 offen")
    a("v_lshrrev_b32 v15, 9, v14", "v_bfe_u32 v16, v14, 6, 2", "v_lshl_add_u32 v15, v15, 2, v16", "v_bfe_u32 v16, v14, 2, 2", "v_lshl_add_u32 v15, v15, 2, v16")
    a("v_bfe_u32 v16, v14, 8, 1")
    a("v_bfe_u32 v24, v14, 4, 1", "v_and_b32 v25, 3, v14", "v_lshl_add_u32 v24, v24, 2, v25", "v_lshlrev_b32 v24, 1, v24")
    a("v_bfe_u32 v25, v14, 5, 1", "v_lshl_add_u32 v24, v25, 5, v24")
    a("v_lshl_add_u32 v25, v15, 1, v16", "v_lshl_add_u32 v25, v25, 14, v24")
    a("v_lshrrev_b32 v26, 1, v41", "v_lshl_add_u32 v25, v26, 6, v25", "v_and_b32 v26, 1, v41", "v_lshl_add_u32 v25, v26, 4, v25")
    a("v_lshl_add_u32 v26, v15, 12, v24", "v_lshl_add_u32 v26, v16, 4, v26", "v_lshl_add_u32 v26, v41, 6, v26", f"v_add_u32 v26, {0x200000 - 512*64}, v26")
    a("v_cmp_gt_u32 vcc, 0x200, v41", "v_cndmask_b32 v25, v26, v25, vcc")
    a(f"buffer_load_ushort v18, v25, s[{R0}:{R0+3}], 0 offen sc1")
    srd(a, R2_, P_WS, 64, WS_IDX)
    a("v_ashrrev_i32 v22, 31, v19", "v_not_b32 v22, v22", "v_or_b32 v22, 0x80000000, v22", "v_xor_b32 v22, v19, v22", "v_and_b32 v22, 0xffff0000, v22")
    a(f"v_mul_f32 v22, {f32(-LOG2E)}, v22", "v_exp_f32 v22, v22", "v_add_f32 v22, 1.0, v22", "v_rcp_f32 v22, v22")
    a("v_cvt_pk_bf16_f32 v22, v22, v22", "v_lshlrev_b32 v22, 16, v22")
    a("v_and_b32 v14, 31, v1", "v_lshlrev_b32 v14, 4, v14")
    a("s_waitcnt vmcnt(0)")
    a("v_lshlrev_b32 v17, 16, v17", "v_lshlrev_b32 v18, 16, v18", "v_add_f32 v17, v17, v18", "v_cvt_pk_bf16_f32 v17, v17, v17")
    a("v_and_b32 v21, 0xffff0000, v17", "v_lshlrev_b32 v20, 16, v20")
    a(f"ds_write_b128 v14, v[20:23] offset:{C_SIDE}")
    a("s_cmp_lg_u32 s2, 0", "s_cbranch_scc1 KS_W9E")
    a(f"buffer_store_dword v12, v7, s[{R2_}:{R2_+3}], 0 offen")
    a("KS_W9E:")
    a("s_waitcnt lgkmcnt(0)")
    stamp2(a, 3)
    endwave(a)
    a("KS_B:")
    srd(a, R0, P_WS, PART_BYTES, WS_PART)
    a("v_bfe_u32 v16, v1, 2, 2", "v_lshl_add_u32 v16, v3, 3, v16", "v_mul_u32_u24 v16, 1152, v16", "v_and_b32 v17, 3, v1", "v_lshl_add_u32 v16, v17, 3, v16")
    a(f"s_lshl_b32 s{T0_}, s{S_WAVE}, 7", f"s_add_u32 s{T0_}, s{T0_}, {C_DOWN}", f"v_add_u32 v16, s{T0_}, v16")
    lds_wait(a, FL_DOWN, 17, "b4")
    WTD = 48
    for jt in range(4):
        a(f"ds_read_b64_tr_b16 v[{WTD+4*jt}:{WTD+4*jt+1}], v16 offset:{32*jt}")
        a(f"ds_read_b64_tr_b16 v[{WTD+4*jt+2}:{WTD+4*jt+3}], v16 offset:{32*jt + 4608}")
    a("v_and_b32 v16, 7, v2", "v_lshlrev_b32 v16, 6, v16", "v_lshl_add_u32 v16, v3, 4, v16")
    a(f"s_mul_i32 s{T0_}, s{S_BLK}, 18432", f"s_lshl_b32 s{T1_}, s{S_WAVE}, 11", f"s_add_u32 s{T0_}, s{T0_}, s{T1_}")
    a("v_lshlrev_b32 v17, 4, v1")
    a("s_waitcnt lgkmcnt(0)")
    a("s_barrier")
    a("s_barrier")
    a(f"ds_read_b128 v[20:23], v16 offset:{C_ACT}")
    a("s_waitcnt lgkmcnt(0)")
    for j in range(4):
        a(f"v_mfma_f32_16x16x32_bf16 v[{32+4*j}:{35+4*j}], v[20:23], v[{WTD+4*j}:{WTD+4*j+3}], 0")
    for j in (0, 2):
        for r in range(4): a(f"v_permlane32_swap_b32 v{32+4*j+r}, v{36+4*j+r}")
        for r in range(4): a(f"v_min_u32 v{32+4*j+r}, -2, v{32+4*j+r}")
        a(f"buffer_store_dwordx4 v[{32+4*j}:{35+4*j}], v17, s[{R0}:{R0+3}], s{T0_} offen offset:{512*j} sc1")
    stamp2(a, 8)
    a("s_waitcnt vmcnt(0)", "s_barrier")
    endwave(a)
    a("KS_G:")
    a(f"s_mov_b32 s{SP0}, 0x05040100", f"s_mov_b32 s{SP1}, 0x07060302")
    a("s_waitcnt vmcnt(0)")
    stamp(a, 5)
    if GTRIG:
        g_addr_setup(a, 46)
        lds_wait(a, {1: FL_PARAM, 2: FL_UF}[GTRIG], 10, {1: "nz", 2: "b4"}[GTRIG], sleep=2)
        g_loads(a, 46, range(4))
    stamp(a, 6)
    def transpose(src, dst):
        for j in range(4):
            for p in range(4):
                lo = src + 2 * (2 * p) + (j >> 1); hi = src + 2 * (2 * p + 1) + (j >> 1)
                a(f"v_perm_b32 v{dst+4*j+p}, v{hi}, v{lo}, s{SP0 + (j & 1)}")
    W = GW
    a(f"s_bitcmp1_b32 s{S_G}, 0", "s_cbranch_scc1 KS_G4")
    g_loads(a, 46, [4])
    a("KS_G4:")
    a(f"v_mov_b32 v6, s{S_G}", f"ds_write_b8 v6, v{VONE} offset:{FL_GISS}")
    a("s_waitcnt vmcnt(0)")
    stamp(a, 7)
    for ks in range(5): transpose(W + 16 * ks, W + 16 * ks - 16)
    GACC = 112
    a(f"s_lshl_b32 s{T0_}, s{S_ROLE}, 9", f"s_add_u32 s{T0_}, s{T0_}, {C_XR}", "v_and_b32 v6, 7, v2", f"v_lshl_add_u32 v7, v6, 4, s{T0_}", "v_lshl_add_u32 v7, v3, 7, v7")
    a(f"s_lshl_b32 s{T0_}, s{S_G}, 6", f"v_add_u32 v11, s{T0_}, v1")
    a("v_lshrrev_b32 v8, 5, v11", "v_and_b32 v9, 31, v11")
    a("v_and_b32 v10, 3, v9", "v_lshlrev_b32 v10, 9, v10")
    a("v_lshrrev_b32 v9, 2, v9", "v_lshl_add_u32 v10, v9, 4, v10")
    a("v_lshrrev_b32 v9, 2, v8", "v_lshl_add_u32 v10, v9, 8, v10")
    a("v_and_b32 v9, 3, v8", "v_lshl_add_u32 v10, v9, 2, v10")
    a("v_lshlrev_b32 v11, 1, v11")
    a(f"s_lshl_b32 s{T0_}, s{S_G}, 11", f"v_lshl_add_u32 v9, v1, 4, s{T0_}")
    lds_wait(a, C_SEL, 12, "nz", sleep=2)
    a("s_setprio 2")
    lds_wait(a, FL_XRDY, 12, "nz")
    stamp2(a, 1)
    for ks in range(5):
        a(f"ds_read_b128 v[{12+4*ks}:{15+4*ks}], v7 offset:{512*ks}")
    for ks in range(5):
        if ks == 4: a(f"s_bitcmp1_b32 s{S_G}, 0", "s_cbranch_scc1 KS_G5")
        a(f"s_waitcnt lgkmcnt({4-ks})")
        for j in range(4):
            c = "0" if ks == 0 else f"v[{GACC+4*j}:{GACC+4*j+3}]"
            a(f"v_mfma_f32_16x16x32_bf16 v[{GACC+4*j}:{GACC+4*j+3}], v[{12+4*ks}:{15+4*ks}], v[{32+16*ks+4*j}:{35+16*ks+4*j}], {c}")
    a("KS_G5:")
    a("s_mov_b32 exec_lo, -1", "s_mov_b32 exec_hi, 0")
    a.flush(6)
    for j in range(4):
        a(f"ds_write_b128 v9, v[{GACC+4*j}:{GACC+4*j+3}] offset:{C_RED + 512*j}")
    a("s_mov_b64 exec, -1")
    a("s_waitcnt lgkmcnt(0)", "s_barrier")
    stamp2(a, 2)
    for w in range(4):
        a(f"ds_read_b32 v{32+2*w}, v10 offset:{C_RED + 2048*w}")
        a(f"ds_read_b32 v{33+2*w}, v10 offset:{C_RED + 2048*w + 128}")
    a("s_waitcnt lgkmcnt(4)")
    a("v_pk_add_f32 v[32:33], v[32:33], v[34:35]")
    a("s_waitcnt lgkmcnt(0)")
    a("v_pk_add_f32 v[36:37], v[36:37], v[38:39]")
    a("v_pk_add_f32 v[32:33], v[32:33], v[36:37]")
    a("v_cvt_pk_bf16_f32 v34, v32, v33")
    unpack(a, 32, 34)
    a(f"v_mul_f32 v34, {f32(-LOG2E)}, v32", "v_exp_f32 v34, v34", "v_add_f32 v34, 1.0, v34", "v_rcp_f32 v34, v34", "v_mul_f32 v34, v32, v34")
    a("v_cvt_pk_bf16_f32 v34, v34, v34", "v_lshlrev_b32 v34, 16, v34")
    a("v_mul_f32 v34, v34, v33", "v_cvt_pk_bf16_f32 v34, v34, v34")
    a(f"ds_write_b16 v11, v34 offset:{C_ACT}")
    a("s_waitcnt lgkmcnt(0)")
    a("s_barrier")
    a("s_branch KS_P2")
    a("KS_P:")
    a("s_waitcnt lgkmcnt(0)")
    a("s_barrier")
    a("s_barrier")
    a("s_setprio 2")
    a("KS_P2:")
    a(f"s_sub_u32 s{S_G}, s{S_WAVE}, 10")
    srd(a, R0, P_WS, PART_BYTES, WS_PART)
    srd(a, R1, P_OUT, XBYTES)
    a("v_lshrrev_b32 v8, 3, v1", "v_mul_u32_u24 v8, 18432, v8", "v_and_b32 v9, 7, v1", "v_lshl_add_u32 v8, v9, 4, v8")
    a(f"s_mul_i32 s{T0_}, s{S_G}, {24*18432}", f"s_lshl_b32 s{T1_}, s{S_BLK}, 7", f"s_add_u32 s{T0_}, s{T0_}, s{T1_}", f"s_add_u32 s{T1_}, s{T0_}, {8*18432}", f"s_add_u32 s{T2_}, s{T0_}, {16*18432}")
    a(f"s_lshl_b32 s{T3_}, s{S_G}, 7", f"v_lshl_add_u32 v6, v9, 4, s{T3_}", "v_lshl_add_u32 v6, v3, 2, v6")
    a(f"v_lshlrev_b32 v12, 2, v1", f"v_add_u32 v12, {C_RED2}, v12", "v_lshlrev_b32 v13, 4, v1")
    a("s_barrier")
    stamp2(a, 3)
    zpoll([f"buffer_load_dwordx4 v[{32+4*k}:{35+4*k}], v8, s[{R0}:{R0+3}], s{T0_+k} offen sc1" for k in range(3)], list(range(32, 44)), 1)
    stamp2(a, 4)
    a("v_pk_add_f32 v[32:33], v[32:33], v[36:37]", "v_pk_add_f32 v[34:35], v[34:35], v[38:39]")
    a("v_pk_add_f32 v[32:33], v[32:33], v[40:41]", "v_pk_add_f32 v[34:35], v[34:35], v[42:43]")
    for r in range(4): a(f"v_add_f32_dpp v{32+r}, v{32+r}, v{32+r} row_ror:8 {DPPM}")
    a("v_permlane16_swap_b32 v32, v33", "v_permlane16_swap_b32 v34, v35")
    a("v_add_f32 v32, v32, v33", "v_add_f32 v34, v34, v35")
    a("v_permlane32_swap_b32 v32, v34")
    a("v_add_f32 v32, v32, v34")
    a(f"ds_write_b32 v6, v32 offset:{C_RED2}")
    a("s_waitcnt lgkmcnt(0)", "s_barrier")
    a(f"s_cmp_lg_u32 s{S_G}, 0", "s_cbranch_scc1 KS_PEND")
    a("s_mov_b32 exec_lo, -1", "s_mov_b32 exec_hi, 0")
    for g in range(3):
        a(f"ds_read2_b32 v[{32+2*g}:{33+2*g}], v12 offset0:{64*g} offset1:{64*g + 32}")
    a(f"ds_read_b128 v[40:43], v13 offset:{C_SIDE}")
    a("s_waitcnt lgkmcnt(0)")
    a("v_pk_add_f32 v[32:33], v[32:33], v[34:35]", "v_pk_add_f32 v[32:33], v[32:33], v[36:37]", "v_add_f32 v8, v32, v33")
    a("v_cvt_pk_bf16_f32 v8, v8, v8", "v_lshlrev_b32 v8, 16, v8")
    a("v_mul_f32 v8, v8, v42", "v_cvt_pk_bf16_f32 v8, v8, v8", "v_lshlrev_b32 v8, 16, v8")
    a("v_add_f32 v8, v8, v40", "v_cvt_pk_bf16_f32 v8, v8, v8", "v_lshlrev_b32 v8, 16, v8")
    a("v_add_f32 v8, v8, v41", "v_cvt_pk_bf16_f32 v8, v8, v8")
    a(f"buffer_store_short v8, v43, s[{R1}:{R1+3}], 0 offen")
    a("KS_PEND:")
    stamp_end(a)
    a("KS_ABORT:")
    a("KS_END:")
    a("s_endpgm")
    return f""".amdhsa_kernel {label}
  .amdhsa_next_free_vgpr 128
  .amdhsa_next_free_sgpr {NSGPR}
  .amdhsa_accum_offset 128
  .amdhsa_group_segment_fixed_size 0
  .amdhsa_kernarg_size 136
  .amdhsa_user_sgpr_count 2
  .amdhsa_user_sgpr_kernarg_segment_ptr 1
  .amdhsa_system_sgpr_workgroup_id_x 1
  .amdhsa_float_denorm_mode_32 3
.end_amdhsa_kernel
"""

def main():
    hdr = open(f"/code/{NAME}.s.ref").read().split("; Override launch geometry")[0]
    out = hdr
    out += f"; @launch grid=(256,1,1) block=(1024,1,1) lds={LDS_BYTES}\n"
    out += '.amdgcn_target "amdgcn-amd-amdhsa--gfx950"\n.text\n'
    a = Asm()
    d = gen(a)
    out += a.text()
    out += '.section .rodata,"a"\n.p2align 6\n' + d
    path = sys.argv[1] if len(sys.argv) > 1 else "ks.s"
    open(path, "w").write(out)
    print("wrote", path, len(out))

if __name__ == "__main__":
    main()
```

```python
import sys, struct, math, os
sys.path.insert(0, "gen")
from asmlib import Asm

NAME = "sequential_preLN__ssm_conv_s4__moe_arch_mod__prompt"
L, D, N, F = 2048, 576, 128, 4608
XBYTES = L * D * 2
WS_UT = 0x000000
WS_X2 = 0x300000
WS_ZB1 = 0x600000
WS_ZB2 = 0x800000
WS_KEYS = 0x840000
WS_PART = 0x850000
WS_CLR, CLR_WG = 0x600000, 18560
CLRP_WG = 23744
WS_FLAG1 = 0xB00000
TAGM = 0x00070007
WS_IDX = 0xB10000
WS_DBG = 0xC00000
WS_STAMP = 0x8000000
PART_BYTES = 144 * 4608 * 4
C_FL, C_CAND, C_SEL, C_KEY, C_PAR, C_ACT, C_SIDE, C_RED2 = 0, 256, 768, 800, 832, 1024, 1536, 2048
C_U, U_SIZE = 3072, 4672
C_LNB = C_U + 3 * U_SIZE
C_XR = C_LNB
C_RED = C_LNB + 9280
G_BASE, G_SIZE = 35840, 36672
LDS_BYTES = G_BASE + 2 * G_SIZE + 36864
FL_LN1, FL_LNACK, FL_KCNT, FL_UF, FL_ZF, FL_KACK, FL_ROWSOK, FL_XRDY, FL_PARAM, FL_DOWN, FL_ZDONE = 0, 8, 12, 16, 20, 24, 28, 32, 36, 40, 48
FL_G = 64
FL_S6 = 160
FL_F2CNT, FL_INIT, FL_CLROK, FL_GISS, FL_KSEEN, FL_UTOK = 176, 180, 188, 192, 196, 200
KG_ROW = 544
KG_T = [0, 16 * KG_ROW, 32 * KG_ROW, 41 * KG_ROW]
R_WS3 = 0
R_WS5 = R_WS3 + 193 * 16
R_WS7 = R_WS5 + 193 * 16
R_WS9 = R_WS7 + 128 * 16
R_RED = 10752
R2 = 31232
T_TAB = R2
T_DRE = R2 + 1296
T_DRO = T_DRE + 1280 + 64
T_G3 = T_DRO + 1280
T_G5 = T_G3 + 256
T_G7E = T_G5 + 256
T_G7O = T_G7E + 192
T_G9E = T_G7O + 192
T_G9O = T_G9E + 192
assert T_G9O + 192 <= G_SIZE and R_WS9 + 129 * 16 <= R_RED and R_RED + 13 * 1024 <= R2 and 57 * KG_ROW <= R2
IDX_ZERO, IDX_DUMMY = 641, 642
C_DOWN = G_BASE + 2 * G_SIZE

def f32(x): return "0x%08x" % struct.unpack("<I", struct.pack("<f", x))[0]
def f32v(x): return struct.unpack("<f", struct.pack("<f", x))[0]
LOG2E = math.log2(math.e)
LOG2E_HI = f32v(LOG2E); LOG2E_LO = LOG2E - LOG2E_HI
INV2PI = 1.0 / (2 * math.pi)
INV2PI_HI = f32v(INV2PI); INV2PI_LO = INV2PI - INV2PI_HI
DPPM = "row_mask:0xf bank_mask:0xf"
ENV = lambda k, d: int(os.environ.get(k, str(d)))
STAMP = ENV("STAMP", 0)
DBG = ENV("DBG", 0)
GUARD = 1 << 19
XP = ENV("XP", 0)

P_X, P_ARE, P_LDT, P_DSK, P_WR, P_GATE, P_UP, P_DOWN, P_OUT, P_DBG, P_WS = 4, 6, 18, 20, 24, 26, 28, 30, 32, 34, 36
S_WAVE, S_GUARD, S_XC, S_I = 38, 39, 40, 41
R0, R1, R2_, R3, R4 = 64, 68, 72, 76, 80
S_ONES, S_GB, S_ROLE, S_G, S_CH, S_BLK, S_B2 = 84, 85, 86, 87, 88, 89, 90
T0_, T1_, T2_, T3_, T4_, T5_ = 92, 93, 94, 95, 96, 97
SP0, SP1 = 98, 99
NSGPR = 100

def srd(a, d, base, nbytes, off=0):
    if off:
        a(f"s_add_u32 s{d}, s{base}, {hex(off)}", f"s_addc_u32 s{d+1}, s{base+1}, 0")
    else:
        a(f"s_mov_b32 s{d}, s{base}", f"s_mov_b32 s{d+1}, s{base+1}")
    a(f"s_mov_b32 s{d+2}, {hex(nbytes)}", f"s_mov_b32 s{d+3}, 0x20000")

def red16(a, op, v):
    for r in (8, 4, 2, 1):
        a(f"{op}_dpp v{v}, v{v}, v{v} row_ror:{r} {DPPM}")
def red32(a, op, v, t):
    red16(a, op, v)
    a(f"v_mov_b32 v{t}, v{v}", f"v_permlane16_swap_b32 v{v}, v{t}", f"{op} v{v}, v{v}, v{t}")
def red64x2(a, op1, v1, t1, op2, v2, t2):
    for r in (8, 4, 2, 1):
        a(f"{op1}_dpp v{v1}, v{v1}, v{v1} row_ror:{r} {DPPM}", f"{op2}_dpp v{v2}, v{v2}, v{v2} row_ror:{r} {DPPM}")
    for ins in ("v_permlane16_swap_b32", "v_permlane32_swap_b32"):
        a(f"v_mov_b32 v{t1}, v{v1}", f"v_mov_b32 v{t2}, v{v2}", f"{ins} v{v1}, v{t1}", f"{ins} v{v2}, v{t2}")
        a(f"{op1} v{v1}, v{v1}, v{t1}", f"{op2} v{v2}, v{v2}, v{t2}")

def stamp_begin(a):
    if not STAMP: return
    a("s_memrealtime s[44:45]")
    for i in range(1, 9): a(f"s_mov_b32 s{44+2*i}, 0")
def cstamp(a, i):
    if STAMP == 9: a(f"s_memtime s[{44+2*i}:{45+2*i}]")
def stamp(a, i):
    if not STAMP or STAMP == 9: return
    assert 1 <= i <= 8
    a(f"s_memrealtime s[{44+2*i}:{45+2*i}]")
def stamp2(a, i):
    if STAMP >= 2: stamp(a, i)
def stamp_end(a):
    if not STAMP: return
    a("s_waitcnt vmcnt(0) lgkmcnt(0)")
    a("s_memrealtime s[62:63]")
    a(f"s_lshl_b32 s43, s2, 4", f"s_add_u32 s43, s43, s{S_WAVE}", "s_lshl_b32 s43, s43, 6", f"s_add_u32 s43, s43, {hex(WS_STAMP)}")
    a("s_mov_b64 exec, 1")
    a("s_waitcnt lgkmcnt(0)")
    a("v_mov_b32 v1, s43")
    for i in range(10): a(f"v_mov_b32 v{4+i}, s{44+2*i}")
    a(f"global_store_dwordx4 v1, v[4:7], s[{P_WS}:{P_WS+1}]")
    a(f"global_store_dwordx4 v1, v[8:11], s[{P_WS}:{P_WS+1}] offset:16")
    a(f"global_store_dwordx2 v1, v[12:13], s[{P_WS}:{P_WS+1}] offset:32")
def endwave(a):
    stamp_end(a)
    a("s_endpgm")

def unpack(a, dst, src):
    a(f"v_lshlrev_b32 v{dst}, 16, v{src}", f"v_and_b32 v{dst+1}, 0xffff0000, v{src}")

def ln_stats(a, X, m2, rinv2, t0, t1, t2):
    a(f"v_pk_add_f32 v[{t0}:{t0+1}], v[{X}:{X+1}], v[{X+2}:{X+3}]")
    a(f"v_pk_add_f32 v[{t1}:{t1+1}], v[{X+4}:{X+5}], v[{X+6}:{X+7}]")
    for j in range(4, 9):
        t = t0 if j % 2 == 0 else t1
        a(f"v_pk_add_f32 v[{t}:{t+1}], v[{t}:{t+1}], v[{X+2*j}:{X+2*j+1}]")
    a(f"v_pk_add_f32 v[{t0}:{t0+1}], v[{t0}:{t0+1}], v[{t1}:{t1+1}]")
    a(f"v_add_f32 v{t0}, v{t0}, v{t0+1}")
    red32(a, "v_add_f32", t0, t1)
    a(f"v_mul_f32 v{t2}, {f32(1.0/576)}, v{t0}")
    a(f"v_mov_b32 v{t2+1}, v{t2}")
    a(f"v_cvt_pk_bf16_f32 v{m2}, v{t2}, v{t2}")
    a(f"v_and_b32 v{m2}, 0xffff0000, v{m2}", f"v_mov_b32 v{m2+1}, v{m2}")
    first = {t0: True, t1: True}
    for j in range(9):
        t = t0 if j % 2 == 0 else t1
        a(f"v_pk_add_f32 v[{rinv2}:{rinv2+1}], v[{X+2*j}:{X+2*j+1}], v[{t2}:{t2+1}] neg_lo:[0,1] neg_hi:[0,1]")
        if first[t]:
            a(f"v_pk_mul_f32 v[{t}:{t+1}], v[{rinv2}:{rinv2+1}], v[{rinv2}:{rinv2+1}]"); first[t] = False
        else:
            a(f"v_pk_fma_f32 v[{t}:{t+1}], v[{rinv2}:{rinv2+1}], v[{rinv2}:{rinv2+1}], v[{t}:{t+1}]")
    a(f"v_pk_add_f32 v[{t0}:{t0+1}], v[{t0}:{t0+1}], v[{t1}:{t1+1}]")
    a(f"v_add_f32 v{t0}, v{t0}, v{t0+1}")
    red32(a, "v_add_f32", t0, t1)
    a(f"v_mul_f32 v{t0}, {f32(1.0/576)}, v{t0}")
    a(f"v_cvt_pk_bf16_f32 v{t0}, v{t0}, v{t0}", f"v_and_b32 v{t0}, 0xffff0000, v{t0}")
    a(f"v_add_f32 v{t0}, {f32(1e-5)}, v{t0}")
    a(f"v_cvt_pk_bf16_f32 v{t0}, v{t0}, v{t0}", f"v_and_b32 v{t0}, 0xffff0000, v{t0}")
    a(f"v_sqrt_f32 v{t0}, v{t0}")
    a(f"v_cvt_pk_bf16_f32 v{t0}, v{t0}, v{t0}", f"v_and_b32 v{t0}, 0xffff0000, v{t0}")
    a(f"v_rcp_f32 v{rinv2}, v{t0}")
    a(f"v_mov_b32 v{rinv2+1}, v{rinv2}")

def ln_apply_pair(a, x, m2, rinv2, t, P):
    a(f"v_pk_add_f32 v[{t}:{t+1}], v[{x}:{x+1}], v[{m2}:{m2+1}] neg_lo:[0,1] neg_hi:[0,1]")
    a(f"v_cvt_pk_bf16_f32 v{P}, v{t}, v{t+1}")
    unpack(a, t, P)
    a(f"v_pk_mul_f32 v[{t}:{t+1}], v[{t}:{t+1}], v[{rinv2}:{rinv2+1}]")
    a(f"v_cvt_pk_bf16_f32 v{P}, v{t}, v{t+1}")
    unpack(a, t, P)

VZ, VONE = 4, 5
_lbl = [0]
def newlabel(p="L"):
    _lbl[0] += 1
    return f"{p}_{_lbl[0]}"
def guard(a):
    a(f"s_sub_u32 s{S_GUARD}, s{S_GUARD}, 1", "s_cbranch_scc1 KS_ABORT")
def lds_wait(a, off, t, kind="b4", addr=VZ, sleep=0):
    l = newlabel("W")
    a(f"{l}:")
    if sleep: a(f"s_sleep {sleep}")
    if kind == "b8":
        a(f"ds_read_b64 v[{t}:{t+1}], v{addr} offset:{off}")
    else:
        a(f"ds_read_b32 v{t}, v{addr} offset:{off}")
    guard(a)
    a("s_waitcnt lgkmcnt(0)")
    if kind == "b8": a(f"v_and_b32 v{t}, v{t}, v{t+1}")
    if kind == "nz": a(f"v_cmp_eq_u32 vcc, 0, v{t}")
    else: a(f"v_cmp_ne_u32 vcc, s{S_ONES}, v{t}")
    a(f"s_cbranch_vccnz {l}")

def zpoll(a, loads, regs, sleep):
    lp = newlabel("ZP"); l1 = newlabel("ZPE")
    a(f"s_branch {l1}")
    a(f"{lp}:")
    a(f"s_sleep {sleep}")
    a(f"{l1}:")
    for l in loads: a(l)
    guard(a)
    a("s_waitcnt vmcnt(0)")
    a(f"v_max3_u32 v44, v{regs[0]}, v{regs[1]}, v{regs[2]}")
    r = regs[3:]
    while len(r) >= 2: a(f"v_max3_u32 v44, v44, v{r[0]}, v{r[1]}"); r = r[2:]
    if r: a(f"v_max_u32 v44, v44, v{r[0]}")
    a("v_cmp_eq_u32 vcc, -1, v44", f"s_cbranch_vccnz {lp}")

class Pool:
    def __init__(self, regs): self.free = list(regs)
    def get(self): return self.free.pop(0)
    def put(self, r): self.free.append(r)
def ce_inlane(a, x, i, j, pool):
    t = pool.get()
    a(f"v_max_u32 v{t}, v{x[i]}, v{x[j]}", f"v_min_u32 v{x[j]}, v{x[i]}, v{x[j]}")
    pool.put(x[i]); x[i] = t
def clean8(a, x, pool, DE, rev=False):
    t = [pool.get() for _ in range(4)]
    for i in range(4):
        a(f"v_mov_b32_dpp v{t[i]}, v{x[3-i if rev else i]} quad_perm:[1,0,3,2] {DPPM}")
    for i in range(4):
        a(f"v_med3_u32 v{t[i]}, v{x[i]}, v{t[i]}, v{DE}")
    for i in range(4): pool.put(x[i]); x[i] = t[i]
    for (i, j) in ((0, 2), (1, 3), (0, 1), (2, 3)): ce_inlane(a, x, i, j, pool)
def merge_mirror(a, x, pool, M):
    c = [pool.get() for _ in range(4)]
    for i in range(4):
        a(f"v_max_u32_dpp v{c[i]}, v{x[3-i]}, v{x[i]} {M} {DPPM}")
    for i in range(4): pool.put(x[i]); x[i] = c[i]
def merge_pair(a, x, y, pool):
    for i in range(4):
        a(f"v_max_u32_dpp v{x[i]}, v{y[3-i]}, v{x[i]} quad_perm:[1,0,3,2] {DPPM}")
    for i in range(4): pool.put(y[i])
MIRRORS = ("quad_perm:[3,2,1,0]", "row_half_mirror", "row_mirror")

GW = 48
def g_addr_setup(a, A):
    a(f"s_sub_u32 s{S_G}, s{S_WAVE}, 12")
    a(f"s_mul_i32 s{T0_}, s{S_G}, 9", f"s_add_u32 s{T0_}, s{T0_}, 1", f"s_lshr_b32 s{S_ROLE}, s{T0_}, 1")
    a(f"s_lshl_b32 s{T0_}, s{S_ROLE}, 5", f"v_lshl_add_u32 v7, v3, 3, s{T0_}", "v_mul_u32_u24 v7, 9216, v7")
    a("v_and_b32 v6, 7, v2", "v_lshl_add_u32 v7, v6, 3, v7")
    a(f"s_lshl_b32 s{T0_}, s{S_BLK}, 6", f"v_add_u32 v7, s{T0_}, v7")
    a("v_cmp_gt_u32 vcc, 8, v2")
    a(f"s_mov_b32 s{R3}, 9216", f"s_mov_b32 s{R3+1}, 0", f"s_mov_b32 s{R3+2}, {9216*25}", f"s_mov_b32 s{R3+3}, 0")
    a(f"v_mov_b32 v{A}, s{P_GATE}", f"v_mov_b32 v{A+1}, s{P_GATE+1}", f"v_mov_b32 v6, s{P_UP}")
    a(f"v_cndmask_b32 v{A}, v6, v{A}, vcc", f"v_mov_b32 v6, s{P_UP+1}", f"v_cndmask_b32 v{A+1}, v6, v{A+1}, vcc")
    a(f"v_add_co_u32 v{A}, vcc, v{A}, v7", f"v_addc_co_u32 v{A+1}, vcc, 0, v{A+1}, vcc")
def g_loads(a, A, kss):
    for ks in kss:
        for r in range(8):
            d = GW + 16 * ks + 2 * r
            a(f"global_load_dwordx2 v[{d}:{d+1}], v[{A}:{A+1}], off" + (" nt" if ENV("GNT", 0) else ""))
            if not (ks == 4 and r == 7):
                a(f"v_lshl_add_u64 v[{A}:{A+1}], v[{A}:{A+1}], 0, s[{R3 if r < 7 else R3+2}:{R3+1 if r < 7 else R3+3}]")
GTRIG = ENV("GTRIG", 2)
PF = ENV("PF", 1)
def gen_ln1(a):
    LW, TB = T5_, S_CH
    X, RAW = 8, 26
    a(f"s_sub_u32 s{T0_}, s{S_I}, 8", f"s_and_b32 s{TB}, s{T0_}, 7", f"s_lshr_b32 s{T0_}, s{T0_}, 3", f"s_lshl_b32 s{T0_}, s{T0_}, 4", f"s_add_u32 s{TB}, s{TB}, s{T0_}")
    a(f"s_and_b32 s{T0_}, s{S_XC}, 1", f"s_lshl_b32 s{T0_}, s{T0_}, 3", f"s_add_u32 s{TB}, s{TB}, s{T0_}", f"s_lshr_b32 s{T0_}, s{S_XC}, 1", f"s_lshl_b32 s{T0_}, s{T0_}, 5", f"s_add_u32 s{TB}, s{TB}, s{T0_}")
    a("v_lshrrev_b32 v36, 5, v1", "v_and_b32 v37, 31, v1")
    a("v_mul_u32_u24 v38, 1152, v36", "v_lshl_add_u32 v39, v37, 2, v38", "v_lshl_add_u32 v38, v37, 4, v38")
    a(f"s_mul_i32 s{T1_}, s{TB}, 18432", f"s_mul_i32 s{T2_}, s{LW}, 2304", f"s_add_u32 s{T1_}, s{T1_}, s{T2_}")
    a("s_waitcnt lgkmcnt(0)")
    stamp(a, 1)
    srd(a, R0, P_X, XBYTES)
    a(f"buffer_load_dwordx4 v[{RAW}:{RAW+3}], v38, s[{R0}:{R0+3}], s{T1_} offen")
    a(f"buffer_load_dwordx4 v[{RAW+4}:{RAW+7}], v38, s[{R0}:{R0+3}], s{T1_} offen offset:512")
    a(f"buffer_load_dword v{RAW+8}, v39, s[{R0}:{R0+3}], s{T1_} offen offset:1024")
    a("s_barrier")
    a(f"s_lshr_b32 s{T1_}, s{LW}, 2", f"s_lshl_b32 s{T1_}, s{T1_}, 6", f"s_add_u32 s{T2_}, s{T2_}, s{T1_}", f"s_add_u32 s{T2_}, s{T2_}, {C_LNB}")
    a(f"v_lshl_add_u32 v35, v37, 1, v36")
    a(f"s_mov_b32 s{SP0}, 0x05040100", f"s_mov_b32 s{SP1}, 0x07060302")
    def waits(n):
        for (c, js) in ((2, range(0, 4)), (1, range(4, 8)), (0, range(8, 9))):
            a(f"s_waitcnt vmcnt({c+n})")
            for j in js: unpack(a, X + 2 * j, RAW + j)
    l1 = newlabel("LN1A"); l2 = newlabel("LN1B")
    waits(0)
    stamp(a, 2)
    a(f"v_lshl_add_u32 v6, v35, 4, s{T2_}", f"v_lshl_add_u32 v7, v35, 2, s{T2_}")
    a(f"v_mul_u32_u24 v35, 0x20202, v36", "v_lshl_add_u32 v35, v36, 25, v35", "v_add_u32 v35, 0x05040100, v35")
    ln_stats(a, X, 36, 38, 40, 42, 44)
    for j in range(9):
        if j == ENV("DSAMP", 3): a("v_and_b32 v59, 3, v1", "v_lshlrev_b32 v59, 2, v59", f"global_load_dword v58, v59, s[{P_DBG}:{P_DBG+1}] sc1")
        ln_apply_pair(a, X + 2 * j, 36, 38, 40, 42)
        a(f"v_cvt_pk_f16_f32 v{RAW+j}, v40, v41")
        if j in (3, 7):
            P = RAW + j - 3; O = X + 2 * (j - 3)
            a(f"v_permlane32_swap_b32 v{P}, v{P+2}", f"v_permlane32_swap_b32 v{P+1}, v{P+3}")
            a(f"v_perm_b32 v{O}, v{P+2}, v{P}, s{SP0}", f"v_perm_b32 v{O+1}, v{P+2}, v{P}, s{SP1}")
            a(f"v_perm_b32 v{O+2}, v{P+3}, v{P+1}, s{SP0}", f"v_perm_b32 v{O+3}, v{P+3}, v{P+1}, s{SP1}")
            a(f"ds_write_b128 v6, v[{O}:{O+3}] offset:{1024*(j//4)}")
    a(f"v_mov_b32 v40, v{RAW+8}", f"v_permlane32_swap_b32 v{RAW+8}, v40")
    a(f"v_perm_b32 v40, v40, v{RAW+8}, v35")
    a(f"ds_write_b32 v7, v40 offset:2048")
    a(f"v_mov_b32 v6, s{LW}")
    a(f"ds_write_b8 v6, v{VONE} offset:{FL_LN1}")
    a("s_setprio 0")
    a(f"s_cmp_ge_u32 s{LW}, 4", "s_cbranch_scc1 KS_X4")
    a("s_setprio 3")
    srd(a, R2_, P_WS, XBYTES, WS_UT)
    a("v_and_b32 v6, 1, v0", "v_mul_u32_u24 v6, 9280, v6", "v_lshrrev_b32 v7, 1, v0", "v_lshl_add_u32 v6, v7, 2, v6", f"v_add_u32 v6, {C_LNB}, v6")
    a("v_lshrrev_b32 v7, 2, v0", "v_lshlrev_b32 v7, 13, v7", "v_and_b32 v8, 3, v0", "v_lshl_add_u32 v7, v8, 4, v7")
    a(f"s_lshl_b32 s{T0_}, s{TB}, 6")
    for k in range(1, 5): a(f"s_add_u32 s{T0_+k}, s{T0_}, {0x80000*k}")
    dbg_wait(a, 0)
    a(f"s_mov_b32 s{SP0}, {hex(TAGM)}")
    for d in range(1, 4): a(f"v_lshrrev_b32 v{58-d}, {3*d}, v58")
    lds_wait(a, FL_LN1, 20, "b8")
    stamp(a, 3)
    for k in range(5):
        a(f"ds_read2st64_b32 v[{20+4*k}:{21+4*k}], v6 offset0:{2*k} offset1:{9+2*k}")
        a(f"ds_read2st64_b32 v[{22+4*k}:{23+4*k}], v6 offset0:{18+2*k} offset1:{27+2*k}")
    for k in range(5):
        a(f"s_waitcnt lgkmcnt({8-2*k})")
        for d in range(4): a(f"v_bfi_b32 v{20+4*k+d}, s{SP0}, v{58-d}, v{20+4*k+d}")
        a(f"buffer_store_dwordx4 v[{20+4*k}:{23+4*k}], v7, s[{R2_}:{R2_+3}], s{T0_+k} offen sc1")
    stamp(a, 4)

def dbg_wait(a, n):
    lp = newlabel("DBP"); go = newlabel("DBG")
    a(f"s_waitcnt vmcnt({n})")
    a(f"{lp}:")
    a(f"v_cmp_eq_u32 vcc, 0, v58", f"s_cbranch_vccz {go}")
    a("s_sleep 1")
    a(f"global_load_dword v58, v59, s[{P_DBG}:{P_DBG+1}] sc1")
    guard(a)
    a("s_waitcnt vmcnt(0)")
    a(f"s_branch {lp}")
    a(f"{go}:")

ROLE_TILES = {0: [0, 1, 2, 3, 4], 1: [0, 1, 2, 3, 4], 2: [5, 6, 7], 3: [5, 6, 7]}
ROLE_W = {2: 0, 3: 1, 1: 2}
ACC, DA, RING, WT = 16, 36, 76, 92
NRING = 4

def epi_plan():
    owner = {0: (0, 0), 1: (0, 1), 2: (1, 0), 3: (1, 1), 4: (1, 3), 5: (0, 2), 6: (0, 3), 7: (1, 2)}
    slots = {}
    cnt = [0, 0]
    for g in range(2):
        for role in range(4):
            for j in ROLE_TILES[role]:
                if owner[j] == (g, role): continue
                slots[(g, role, j)] = g * G_SIZE + R_RED + 1024 * cnt[g]; cnt[g] += 1
    assert max(cnt) <= 13, cnt
    ownerC = {0: 0, 1: 0, 2: 1, 3: 1, 4: 2, 5: 2, 6: 3, 7: 3}
    n = 0
    for role in range(4):
        for j in ROLE_TILES[role]:
            if ownerC[j] == role: continue
            slots[(2, role, j)] = 2 * G_SIZE + R_RED + 1024 * n; n += 1
    return owner, ownerC, slots

class LdsTrack:
    def __init__(self, a): self.a = a; self.n = 0; self.done = -1
    def issue(self, text): self.a(text); self.n += 1; return self.n - 1
    def wait(self, idx):
        k = self.n - 1 - idx
        if idx <= self.done: return
        self.done = idx
        if k <= 15: self.a(f"s_waitcnt lgkmcnt({k})")

def gen_group(a):
    a(f"s_mul_i32 s{S_GB}, s{S_G}, {G_SIZE}", f"s_add_u32 s{S_GB}, s{S_GB}, {G_BASE}")
    a(f"s_lshl_b32 s{T0_}, s{S_CH}, 8", f"v_lshl_add_u32 v6, v1, 2, s{T0_}")
    a(f"s_lshl_b32 s{T0_}, s{S_CH}, 1", f"v_mov_b32 v7, s{T0_}")
    a(f"s_lshl_b32 s{T0_}, s{S_G}, 4", f"s_add_u32 s{T0_}, s{T0_}, s{S_ROLE}", f"v_mov_b32 v15, s{T0_}")
    a(f"s_lshl_b32 s{T0_}, s{S_G}, 4", f"v_mov_b32 v14, s{T0_}")
    a("s_waitcnt lgkmcnt(0)")
    stamp(a, 1)
    a(f"global_load_ushort v16, v7, s[{P_LDT}:{P_LDT+1}]")
    for k in range(6):
        a(f"global_load_dword v{8+k}, v6, s[{P_ARE+2*k}:{P_ARE+2*k+1}]")
    a(f"global_load_ushort v107, v7, s[{P_DSK}:{P_DSK+1}]")
    TW = ENV("TLBW", 0)
    if TW:
        a(f"v_lshlrev_b32 v106, 18, v1", f"v_add_u32 v106, 0x3ff80, v106", "s_mov_b32 exec_hi, 0xffff")
        a(f"global_load_dword v105, v106, s[{P_WS}:{P_WS+1}]")
        a("v_lshlrev_b32 v106, 18, v1", "s_mov_b64 exec, 0x1ff")
        a(f"global_load_dword v104, v106, s[{P_OUT}:{P_OUT+1}]")
        a("s_mov_b64 exec, -1")
        TW = 2
    a("s_barrier")
    LF, IX, I1, I2, D1, D2, D3 = 108, 112, 116, 119, 123, 124, 125
    a(f"s_add_u32 s{T1_}, s{S_GB}, {T_TAB}")
    def dr_addr(dst, x, special=False):
        a(f"v_sub_u32 v90, 544, v{x}", "v_cvt_f32_i32 v91, v90", "v_cvt_pk_bf16_f32 v91, v91, v91", "v_and_b32 v91, 0xffff, v91", "v_subrev_u32 v91, 0x4280, v91")
        a("v_cmp_gt_u32 vcc, 0x100, v90", "v_cndmask_b32 v91, v91, v90, vcc")
        a(f"v_mov_b32 v92, {IDX_ZERO}", "v_cmp_lt_u32 vcc, 0x20d, v90", "v_cndmask_b32 v91, v91, v92, vcc")
        if special:
            a(f"v_or_b32 v90, 1, v{x}", "v_mov_b32 v92, 0x200", "v_cmp_eq_u32 vcc, 0x25d, v90", "v_cndmask_b32 v91, v91, v92, vcc")
        a(f"v_lshl_add_u32 v{dst}, v91, 1, s{T1_}")
    def g_addr(dst, m, base, M):
        a(f"v_lshl_add_u32 v91, v{m}, 1, v93") if False else None
        a(f"v_lshlrev_b32 v91, 1, v{m}", f"v_add_u32 v91, {base}, v91")
        a(f"v_mov_b32 v92, {IDX_ZERO}", f"v_cmp_lt_u32 vcc, {M}, v{m}", "v_cndmask_b32 v91, v91, v92, vcc")
        a(f"v_lshl_add_u32 v{dst}, v91, 1, s{T1_}")
    a(f"s_lshl_b32 s{T0_}, s{S_ROLE}, 6", f"s_add_u32 s{T0_}, s{T0_}, 9", f"v_add_u32 v94, s{T0_}, v1")
    a(f"v_lshl_add_u32 v{D1}, v94, 2, s{S_GB}")
    a("v_lshlrev_b32 v94, 1, v94")
    for e in range(3):
        if e: a("v_add_u32 v94, 1, v94")
        dr_addr(I1 + e, 94)
    a("v_lshlrev_b32 v7, 3, v2")
    jl = [newlabel("PRE") for _ in range(4)]; jn = newlabel("PREJ")
    for r in range(1, 4): a(f"s_cmp_eq_u32 s{S_ROLE}, {r}", f"s_cbranch_scc1 {jl[r]}")
    def post_addr():
        a(f"v_mov_b32 v96, v7", "v_add_u32 v97, v7, v94", "v_add_u32 v98, v7, v95", "v_add_u32 v99, v97, v95")
        for r in range(4):
            a(f"v_cvt_f32_u32 v{LF+r}, v{96+r}")
            a(f"v_lshrrev_b32 v91, 16, v{LF+r}", "v_subrev_u32 v91, 0x4280, v91")
            a(f"v_cmp_gt_u32 vcc, 0x80, v{96+r}", f"v_cndmask_b32 v91, v91, v{96+r}, vcc")
            a(f"v_mov_b32 v92, {IDX_DUMMY}", f"v_cmp_lt_u32 vcc, 0x800, v{96+r}", "v_cndmask_b32 v91, v91, v92, vcc")
            a(f"v_lshl_add_u32 v{IX+r}, v91, 1, s{T1_}")
    a("v_lshlrev_b32 v95, 1, v1")
    for e, (y0, base, M) in enumerate(((93, 389, 61), (92, 389, 61), (94, 388, 62), (93, 388, 62))):
        a(f"v_sub_u32 v94, {y0}, v95"); g_addr(I2 + e, 94, base, M)
    a(f"v_lshl_add_u32 v{D2}, v1, 2, s{S_GB}", f"v_add_u32 v{D3}, {T_G5}, v{D2}", f"v_add_u32 v{D2}, {T_G3}, v{D2}")
    a("v_lshrrev_b32 v94, 1, v3", "v_lshl_add_u32 v7, v94, 7, v7", "v_and_b32 v94, 1, v3", "v_lshl_add_u32 v7, v94, 2, v7")
    a("v_mov_b32 v94, 1", "v_mov_b32 v95, 2")
    post_addr()
    a(f"s_branch {jn}")
    for r, (base, TE_, TO_) in ((1, (513, T_G7E, T_G7O)), (2, (514, T_G9E, T_G9O))):
        a(f"{jl[r]}:")
        a("v_min_u32 v96, 47, v1", "v_lshlrev_b32 v95, 1, v96")
        for e, y0 in ((0, 64), (1, 63), (3, 62)):
            a(f"v_sub_u32 v94, {y0}, v95"); g_addr(I2 + e, 94, base, 63)
        a(f"v_mov_b32 v{I2+2}, v{I2+1}")
        a(f"v_lshl_add_u32 v{D2}, v96, 2, s{S_GB}", f"v_add_u32 v{D3}, {TO_}, v{D2}", f"v_add_u32 v{D2}, {TE_}, v{D2}")
        if r == 1:
            a("v_lshl_add_u32 v94, v3, 7, v7", "v_add_u32 v94, 256, v94", "v_lshl_add_u32 v7, v3, 8, v7")
            a("v_cmp_gt_u32 vcc, 2, v3", "v_cndmask_b32 v7, v7, v94, vcc")
            a("v_mov_b32 v94, 4", "v_mov_b32 v95, 0x80", "v_cndmask_b32 v94, v94, 2, vcc", "v_cndmask_b32 v95, v95, 4, vcc")
        else:
            a("v_lshl_add_u32 v7, v3, 9, v7", "v_add_u32 v7, 0x400, v7", "v_mov_b32 v94, 0x80", "v_mov_b32 v95, 0x100")
        post_addr()
        a(f"s_branch {jn}")
    a(f"{jl[3]}:")
    a("v_add_u32 v96, 0x100, v1", "v_cmp_gt_u32 vcc, 9, v1", "v_cndmask_b32 v96, v96, v1, vcc", "v_lshlrev_b32 v94, 1, v96")
    for e in (0, 1, 3):
        if e: a("v_add_u32 v94, 1, v94")
        dr_addr(I2 + e, 94, special=True)
    a(f"v_mov_b32 v{I2+2}, v{I2+1}")
    a(f"v_lshl_add_u32 v{D2}, v96, 2, s{S_GB}", f"v_add_u32 v{D3}, {T_DRO}, v{D2}", f"v_add_u32 v{D2}, {T_DRE}, v{D2}")
    a(f"v_mov_b32 v94, s{S_GB}", f"ds_write_b16 v94, v{VZ} offset:{T_TAB + 2*IDX_ZERO}")
    a(f"{jn}:")
    a(f"s_waitcnt vmcnt({7+TW})")
    a("v_lshlrev_b32 v16, 16, v16")
    a(f"v_mul_f32 v17, {f32(LOG2E_HI)}, v16")
    a(f"s_mov_b32 s{T0_}, {f32(LOG2E_HI)}", f"s_mov_b32 s{T1_}, {f32(LOG2E_LO)}")
    a(f"v_fma_f32 v18, v16, s{T0_}, -v17", f"v_fma_f32 v18, v16, s{T1_}, v18")
    a("v_exp_f32 v17, v17")
    a(f"v_mul_f32 v18, {f32(math.log(2.0))}, v18")
    a("v_fma_f32 v17, v17, v18, v17")
    a("v_cvt_pk_bf16_f32 v17, v17, v17", "v_and_b32 v16, 0xffff0000, v17", "v_mov_b32 v17, v16")
    a(f"s_waitcnt vmcnt({1+TW})")
    stamp(a, 2)
    a(f"ds_write_b32 v{VZ}, v{VONE} offset:{FL_PARAM}")
    for k in range(6): unpack(a, 20 + 2 * k, 8 + k)
    for k in range(4):
        a(f"v_pk_mul_f32 v[{20+2*k}:{21+2*k}], v[{20+2*k}:{21+2*k}], v[16:17]")
    T = 90
    def cmul(dr, di, ar, ai, br, bi, t=T):
        assert di not in (ar, br, bi)
        a(f"v_pk_mul_f32 v[{t}:{t+1}], v[{ai}:{ai+1}], v[{bi}:{bi+1}]")
        a(f"v_pk_mul_f32 v[{t+2}:{t+3}], v[{ai}:{ai+1}], v[{br}:{br+1}]")
        a(f"v_pk_fma_f32 v[{di}:{di+1}], v[{ar}:{ar+1}], v[{bi}:{bi+1}], v[{t+2}:{t+3}]")
        a(f"v_pk_fma_f32 v[{dr}:{dr+1}], v[{ar}:{ar+1}], v[{br}:{br+1}], v[{t}:{t+1}] neg_lo:[0,0,1] neg_hi:[0,0,1]")
    CBR, CBI = 32, 34
    cmul(CBR, CBI, 28, 30, 24, 26)
    a("v_max_f32 v36, v20, v21")
    a(f"v_add_f32 v37, abs(v{CBR}), abs(v{CBR+1})", f"v_add_f32 v38, abs(v{CBI}), abs(v{CBI+1})", "v_add_f32 v37, v37, v38")
    red64x2(a, "v_max_f32", 36, 38, "v_add_f32", 37, 39)
    a(f"v_max_f32 v37, {f32(1e-36)}, v37")
    a("v_rcp_f32 v38, v37")
    a("v_sub_f32 v20, v20, v36", "v_sub_f32 v21, v21, v36")
    a(f"v_mul_f32 v38, {f32(32768.0)}, v38", "v_mov_b32 v39, v38")
    a(f"v_mul_f32 v20, {f32(LOG2E)}, v20", f"v_mul_f32 v21, {f32(LOG2E)}, v21", f"v_mul_f32 v36, {f32(LOG2E)}, v36")
    a(f"v_pk_mul_f32 v[{CBR}:{CBR+1}], v[{CBR}:{CBR+1}], v[38:39]", f"v_pk_mul_f32 v[{CBI}:{CBI+1}], v[{CBI}:{CBI+1}], v[38:39]")
    a(f"s_mov_b32 s{T0_}, {f32(INV2PI_HI)}", f"s_mov_b32 s{T1_}, {f32(INV2PI_LO)}")
    def anchor(dr, di, l, conj=False):
        for e in range(2):
            t = T + 4 * e
            a(f"v_mul_f32 v{t}, {f32(float(l))}, v{20+e}")
            a(f"v_mul_f32 v{t+1}, {f32(float(l))}, v{22+e}")
        for e in range(2):
            t = T + 4 * e
            a(f"v_exp_f32 v{t}, v{t}")
            a(f"v_mul_f32 v{t+2}, s{T0_}, v{t+1}")
        for e in range(2): a(f"v_rndne_f32 v{T+4*e+2}, v{T+4*e+2}")
        for e in range(2): a(f"v_fma_f32 v{T+4*e+2}, v{T+4*e+1}, s{T0_}, -v{T+4*e+2}")
        for e in range(2): a(f"v_fma_f32 v{T+4*e+2}, v{T+4*e+1}, s{T1_}, v{T+4*e+2}")
        for e in range(2): a(f"v_cos_f32 v{T+4*e+1}, v{T+4*e+2}", f"v_sin_f32 v{T+4*e+2}, v{T+4*e+2}")
        for e in range(2):
            t = T + 4 * e
            a(f"v_mul_f32 v{dr+e}, v{t}, v{t+1}")
            a(f"v_mul_f32 v{di+e}, v{t}, {'-' if conj else ''}v{t+2}")
    a(f"v_lshl_add_u32 v6, v1, 3, s{S_GB}")
    em = [0]
    def emit(tile, row, vr, vi):
        t = 98 + 2 * (em[0] & 1); em[0] += 1
        a(f"v_cvt_pk_f16_f32 v{t}, v{vr}, v{vi}", f"v_cvt_pk_f16_f32 v{t+1}, v{vr+1}, v{vi+1}")
        a(f"ds_write_b64 v6, v[{t}:{t+1}] offset:{KG_T[tile] + row*KG_ROW}")
    G1, G2, G3 = 40, 44, 48
    VA, VB, VC = 52, 56, 60
    jl = [newlabel("JOB") for _ in range(4)]; jn = newlabel("JOBJ")
    for r in range(1, 4): a(f"s_cmp_eq_u32 s{S_ROLE}, {r}", f"s_cbranch_scc1 {jl[r]}")
    anchor(G1, G1 + 2, 1); anchor(G2, G2 + 2, 128)
    cur = (CBR, CBI)
    for c in range(8):
        emit(0, c, cur[0], cur[1])
        cmul(VC, VC + 2, cur[0], cur[1], G2, G2 + 2)
        if c < 7:
            nx = VA if cur[0] != VA else VB
            cmul(nx, nx + 2, cur[0], cur[1], G1, G1 + 2, T + 4); cur = (nx, nx + 2)
        emit(0, 8 + c, VC, VC + 2)
    a(f"s_branch {jn}")
    a(f"{jl[1]}:")
    anchor(G1, G1 + 2, 2); anchor(G2, G2 + 2, 128); anchor(G3, G3 + 2, 256)
    cmul(VA, VA + 2, CBR, CBI, G3, G3 + 2); cur = (VA, VA + 2)
    cmul(64, 66, VA, VA + 2, G3, G3 + 2, T + 4)
    for c in range(4):
        emit(1, c, cur[0], cur[1])
        cmul(VC, VC + 2, cur[0], cur[1], G2, G2 + 2)
        if c < 3:
            nx = VA if cur[0] != VA else VB
            cmul(nx, nx + 2, cur[0], cur[1], G1, G1 + 2, T + 4); cur = (nx, nx + 2)
        else:
            cmul(G3, G3 + 2, G1, G1 + 2, G1, G1 + 2, T + 4)
        emit(1, 4 + c, VC, VC + 2)
    cur = (64, 66)
    for aa in range(4):
        emit(1, 8 + 2 * aa, cur[0], cur[1])
        cmul(VC, VC + 2, cur[0], cur[1], G3, G3 + 2)
        if aa < 3:
            nx = VA if cur[0] != VA else VB
            cmul(nx, nx + 2, cur[0], cur[1], G2, G2 + 2, T + 4); cur = (nx, nx + 2)
        emit(1, 9 + 2 * aa, VC, VC + 2)
    a(f"s_branch {jn}")
    a(f"{jl[2]}:")
    anchor(G2, G2 + 2, 128); anchor(G3, G3 + 2, 1024)
    cmul(VA, VA + 2, CBR, CBI, G3, G3 + 2); cur = (VA, VA + 2)
    for r in range(9):
        prev = cur
        if r < 8:
            nx = VA if cur[0] != VA else VB
            cmul(nx, nx + 2, cur[0], cur[1], G2, G2 + 2); cur = (nx, nx + 2)
        emit(2, r, prev[0], prev[1])
    a(f"v_mul_f32 v40, {f32(2048.0)}, v36", "v_max_f32 v40, 0, v40", "v_exp_f32 v40, v40")
    a(f"v_mul_f32 v41, {f32(1.0/32768.0)}, v37", "v_mul_f32 v40, v40, v41")
    a(f"s_waitcnt vmcnt({TW})")
    a("v_lshlrev_b32 v41, 16, v107")
    a(f"ds_write_b64 v14, v[40:41] offset:{C_PAR}")
    a(f"s_branch {jn}")
    a(f"{jl[3]}:")
    anchor(G1, G1 + 2, 8, conj=True)
    cmul(G2, G2 + 2, G1, G1 + 2, G1, G1 + 2)
    a(f"v_mov_b32 v{VA}, {f32(32768.0)}", f"v_mov_b32 v{VA+1}, {f32(32768.0)}", f"v_mov_b32 v{VA+2}, 0", f"v_mov_b32 v{VA+3}, 0")
    a(f"v_pk_mul_f32 v[{VC}:{VC+1}], v[{G1}:{G1+1}], v[{VA}:{VA+1}]", f"v_pk_mul_f32 v[{VC+2}:{VC+3}], v[{G1+2}:{G1+3}], v[{VA}:{VA+1}]")
    ce = (VA, VA + 2); co = (VC, VC + 2)
    for b in range(8):
        pe, po = ce, co
        if b < 7:
            nx = VA if ce[0] != VA else VB
            cmul(nx, nx + 2, ce[0], ce[1], G2, G2 + 2); ce = (nx, nx + 2)
            nx = VC if co[0] != VC else 64
            cmul(nx, nx + 2, co[0], co[1], G2, G2 + 2, T + 4); co = (nx, nx + 2)
        emit(3, 2 * b, pe[0], pe[1]); emit(3, 2 * b + 1, po[0], po[1])
    a(f"{jn}:")
    a(f"ds_write_b8 v15, v{VONE} offset:{FL_G}")
    stamp(a, 3)
    ex = newlabel("EXP")
    a(f"s_cmp_eq_u32 s{S_ROLE}, 3", f"s_cbranch_scc1 {ex}")
    a(f"v_mul_u32_u24 v10, {KG_ROW}, v2", "v_lshl_add_u32 v10, v3, 4, v10", f"v_add_u32 v10, s{S_GB}, v10")
    a(f"s_mul_i32 s{T0_}, s{S_ROLE}, {16*KG_ROW}", f"v_add_u32 v11, s{T0_}, v10")
    a(f"v_mul_f32 v40, {f32(2048.0)}, v36", "v_max_f32 v40, 0, v40", f"v_add_f32 v40, {f32(15.0)}, v40")
    for r in range(4):
        a(f"v_fma_f32 v{LF+r}, v{LF+r}, v36, -v40")
    for r in range(4):
        a(f"v_exp_f32 v{LF+r}, v{LF+r}")
    lds_wait(a, FL_G, 12, "b4", addr=14)
    tr = LdsTrack(a); ids = []
    for s in range(8):
        tr.issue(f"ds_read_b128 v[{40+4*s}:{43+4*s}], v11 offset:{64*s}")
        ids.append(tr.issue(f"ds_read_b128 v[{72+4*s}:{75+4*s}], v10 offset:{KG_T[3]+64*s}"))
    for s in range(8):
        tr.wait(ids[s])
        c = "0" if s < 2 else f"v[{20+4*(s&1)}:{23+4*(s&1)}]"
        a(f"v_mfma_f32_16x16x32_f16 v[{20+4*(s&1)}:{23+4*(s&1)}], v[{40+4*s}:{43+4*s}], v[{72+4*s}:{75+4*s}], {c}")
    for r in range(4): a(f"v_add_f32 v{20+r}, v{20+r}, v{24+r}")
    for r in range(4): a(f"v_mul_f32 v{20+r}, v{20+r}, v{LF+r}")
    for r in range(4):
        a(f"v_cvt_f16_f32 v{20+r}, v{20+r}")
        a(f"ds_write_b16 v{IX+r}, v{20+r}")
    a(f"{ex}:")
    a(f"ds_write_b8 v15, v{VONE} offset:{FL_G+4}")
    a("s_waitcnt vmcnt(0)")
    a.flush(2)
    VDA, VDA2, VB_, VT8, VT16, VG8, VG16, VLN = 6, 7, 8, 9, 10, 11, 13, 12
    a("v_lshlrev_b32 v20, 3, v3", "v_sub_u32 v20, v20, v2", "v_add_u32 v21, 16, v20", "v_lshrrev_b32 v21, 1, v21")
    a("v_and_b32 v22, 1, v2")
    a(f"v_mul_u32_u24 v23, {T_DRO - T_DRE}, v22", "v_lshl_add_u32 v23, v21, 2, v23", f"s_add_u32 s{T0_}, s{S_GB}, {T_DRE}", f"v_add_u32 v{VDA}, s{T0_}, v23")
    a(f"v_add_u32 v{VDA2}, 640, v{VDA}")
    a(f"v_mul_u32_u24 v23, {T_G7O - T_G7E}, v22", "v_lshl_add_u32 v23, v21, 2, v23", f"s_add_u32 s{T0_}, s{S_GB}, {T_G7E}", f"v_add_u32 v{VG16}, s{T0_}, v23")
    a("v_lshlrev_b32 v23, 2, v3", "v_sub_u32 v23, v23, v2", "v_add_u32 v23, 15, v23", f"s_add_u32 s{T0_}, s{S_GB}, {T_G3}", f"v_lshl_add_u32 v{VG8}, v23, 2, s{T0_}")
    a(f"s_mul_i32 s{T2_}, s{S_G}, {U_SIZE}", f"s_add_u32 s{T2_}, s{T2_}, {C_U}")
    a("v_lshlrev_b32 v23, 5, v2", "v_lshl_add_u32 v23, v3, 4, v23", f"v_add_u32 v{VB_}, s{T2_}, v23")
    a("v_bfe_u32 v20, v1, 2, 2", "v_and_b32 v21, 3, v1", "v_lshl_add_u32 v20, v3, 3, v20")
    a(f"v_lshl_add_u32 v21, v21, 3, s{S_GB}", f"v_lshl_add_u32 v{VT8}, v20, 4, v21", f"v_lshl_add_u32 v{VT16}, v20, 5, v21")
    lds_wait(a, FL_G + 4, 20, "b4", addr=14)
    stamp(a, 4)
    for e in range(7): a(f"ds_read_u16 v{20+e}, v{I1+e}")
    a("v_mov_b32 v28, 0", "v_mov_b32 v29, 0", "v_mov_b32 v30, 0", "v_mov_b32 v31, 0", f"v_mov_b32 v32, s{S_GB}")
    a("s_mov_b64 exec, 1")
    a(f"ds_write_b128 v32, v[28:31] offset:{R_WS5}", f"ds_write_b128 v32, v[28:31] offset:{R_WS9}", f"ds_write_b128 v32, v[28:31] offset:{R_WS3 + 192*16}")
    a("s_mov_b64 exec, -1")
    a("s_waitcnt lgkmcnt(7)")
    a("v_lshl_or_b32 v28, v21, 16, v20", "v_lshl_or_b32 v29, v22, 16, v21")
    a(f"ds_write_b32 v{D1}, v28 offset:{T_DRE}", f"ds_write_b32 v{D1}, v29 offset:{T_DRO}")
    a("s_waitcnt lgkmcnt(5)")
    a("v_lshl_or_b32 v30, v24, 16, v23", "v_lshl_or_b32 v31, v26, 16, v25")
    a(f"ds_write_b32 v{D2}, v30", f"ds_write_b32 v{D3}, v31")
    a(f"ds_write_b8 v15, v{VONE} offset:{FL_G+8}")
    a(f"v_lshlrev_b32 v{VLN}, 4, v1")
    srd(a, R0, P_WS, 0x240000, WS_ZB1)
    a(f"s_lshl_b32 s{T0_}, s{S_ROLE}, 19", f"s_lshl_b32 s{T1_}, s{S_B2}, 6", f"s_add_u32 s{T0_}, s{T0_}, s{T1_}")
    a(f"s_lshl_b32 s{T1_}, s{S_ROLE}, 16", f"s_lshl_b32 s{T3_}, s{S_CH}, 6", f"s_add_u32 s{T1_}, s{T1_}, s{T3_}", f"s_add_u32 s{T1_}, s{T1_}, {0x200000 - 512*64}")
    a(f"s_cmp_eq_u32 s{S_G}, 2", f"s_cselect_b32 s{T0_}, s{T1_}, s{T0_}", f"s_cselect_b32 s{T3_}, 12, 15", f"s_add_u32 s{T1_}, s{T0_}, 16384")
    a(f"s_and_b32 s{T4_}, s{S_G}, 1", f"s_lshl_b32 s{T4_}, s{T4_}, 4", f"s_mov_b32 s{T5_}, 0x01010103", f"s_mov_b32 s{SP0}, 0x55555555", f"s_mov_b32 s{SP1}, 0x55555555")
    lds_wait(a, FL_G + 8, 20, "b4", addr=14)
    stamp(a, 5)
    PR, FT0, FT1, ACCL, ACCH, ZQ = 16, 18, 19, 20, 24, 28
    VZA, VUA = VDA, VDA2
    LA = ENV("CLA", 6); RSV = ENV("CRSV", 5); NF = ENV("CNF", 2)
    jl = [newlabel("CV") for _ in range(4)]; zend = newlabel("CVE")
    slow = []
    a(f"ds_read_b64 v[{PR}:{PR+1}], v14 offset:{C_PAR}")
    for r in range(1, 4): a(f"s_cmp_eq_u32 s{S_ROLE}, {r}", f"s_cbranch_scc1 {jl[r]}")
    for m in range(4):
        if m: a(f"{jl[m]}:")
        lo, hi = 2 * m, 2 * m + 1
        acc = {lo: ACCL, hi: ACCH}
        ops = []
        if m >= 2:
            for j in (lo, hi): ops.append((j, ("D", 32), ("U", 8 * j - 32)))
        for p in range(max(8 * lo - 16, -7), 8 * hi + 1):
            for j in (lo, hi):
                ks = 8 * j - p
                if 0 <= ks <= 16: ops.append((j, ("D", ks), ("U", p)))
        ncomb0 = len(ops)
        for j in (lo, hi):
            for kind in (3, 5):
                for b in range(6):
                    if 2 <= j - b <= 4: ops.append((j, ("W", kind, b), ("G", kind, j - b)))
            for kind in (7, 9):
                for b in range(2):
                    if j - 2 * b - 4 >= 0: ops.append((j, ("W", kind, b), ("G", kind, j - 2 * b - 4)))
        nops = len(ops)
        first, last = {}, {}
        for k, (j, A, B) in enumerate(ops):
            for key in (A, B):
                first.setdefault(key, k); last[key] = k
        lastlo = max(k for k, o in enumerate(ops) if o[0] == lo)
        pool = list(range(32, 128, 4))
        reg, lid = {}, {}
        def load(tr, key):
            rg = pool.pop(0); reg[key] = rg
            if (XP & 8 and key[0] == "G") or (XP & 16 and key[0] == "W") or (XP & 32 and key[0] == "U"):
                lid[key] = -100; return
            if key[0] == "D":
                ksv = -2 if key[1] == 32 else key[1]
                o = (16 - ksv) * 16
                ad, o = (VDA, o) if o + 3 <= 255 else (VDA2, o - 160)
                tr.issue(f"ds_read2_b32 v[{rg}:{rg+1}], v{ad} offset0:{o} offset1:{o+1}")
                lid[key] = tr.issue(f"ds_read2_b32 v[{rg+2}:{rg+3}], v{ad} offset0:{o+2} offset1:{o+3}")
            elif key[0] == "G":
                _, kind, ix = key
                if kind in (3, 5): o = (4 - ix) * 16 + (64 if kind == 5 else 0); ad = VG8
                else: o = (3 - ix) * 8 + (96 if kind == 9 else 0); ad = VG16
                tr.issue(f"ds_read2_b32 v[{rg}:{rg+1}], v{ad} offset0:{o} offset1:{o+1}")
                lid[key] = tr.issue(f"ds_read2_b32 v[{rg+2}:{rg+3}], v{ad} offset0:{o+2} offset1:{o+3}")
            elif key[0] == "U":
                lid[key] = tr.issue(f"ds_read_b128 v[{rg}:{rg+3}], v{VB_} offset:{64*(key[1]+7)}")
            else:
                _, kind, b = key
                if kind in (3, 5): o = (R_WS3 if kind == 3 else R_WS5) + 512 * b; ad, st = VT8, 64
                else: o = (R_WS7 if kind == 7 else R_WS9) + 1024 * b; ad, st = VT16, 128
                tr.issue(f"ds_read_b64_tr_b16 v[{rg}:{rg+1}], v{ad} offset:{o}")
                lid[key] = tr.issue(f"ds_read_b64_tr_b16 v[{rg+2}:{rg+3}], v{ad} offset:{o+st}")
        keys = sorted(first, key=lambda k_: first[k_])
        tr = LdsTrack(a)
        for key in keys:
            if key[0] == "D": load(tr, key)
        for key in keys:
            if key[0] == "G" and len(pool) > RSV: load(tr, key)
        pend = [k_ for k_ in keys if k_ not in reg]
        a(f"v_lshlrev_b32 v{FT0}, 3, v3", f"v_sub_u32 v{FT0}, v{VB_}, v{FT0}")
        a(f"v_lshrrev_b32 v{FT1}, 2, v2", f"v_lshl_add_u32 v{FT1}, v{FT1}, 2, v3", f"v_and_b32 v{ZQ}, 3, v2", f"v_lshlrev_b32 v{ZQ}, 4, v{ZQ}")
        a(f"v_lshlrev_b32 v{FT1}, s{T3_}, v{FT1}")
        a("s_waitcnt lgkmcnt(0)")
        a(f"v_mov_b32 v{VUA}, v{FT0}", f"v_add_u32 v{VZA}, v{FT1}, v{ZQ}")
        a(f"v_xor_b32 v{VLN}, s{T4_}, v{VLN}")
        lds_wait(a, FL_UF, FT0, "b4")
        a(f"s_setprio {eval(os.environ.get('CPRIO', '[2,2,2,2]'))[m]}")
        stamp(a, 6); cstamp(a, 1)
        if XP & 4: a(f"v_mov_b32 v{FT0}, 0", f"s_cmp_lg_u32 s{S_G}, 0", f"s_cbranch_scc1 {zend}")
        for key in lid: lid[key] = -100
        tr = LdsTrack(a)
        ud = {}
        fill = []
        fill.append(("lds", f"ds_read_b64 v[{ZQ}:{ZQ+1}], v{VUA} offset:{480 + 512*lo}", 2))
        fill.append(("ldsU", f"ds_read_b64 v[{ZQ+2}:{ZQ+3}], v{VUA} offset:{480 + 512*hi}", 2))
        for ti, j in enumerate((lo, hi)):
            fill.append(("alloc", j, 5))
            if ti == 0: fill.append(("waitU", None, 5))
            for e in range(4):
                sel = "op_sel:[1,0,0] " if e & 1 else ""
                fill.append(("f", (lambda j=j, e=e, ti=ti, sel=sel: f"v_fma_mix_f32 v{ud[j]+e}, v{ZQ+2*ti+e//2}, v{PR+1}, 0 {sel}op_sel_hi:[1,0,0]"), 5))
            for p in range(2):
                fill.append(("f", (lambda j=j, p=p, ti=ti: f"v_cvt_pk_bf16_f32 v{ZQ+2*ti+p}, v{ud[j]+2*p}, v{ud[j]+2*p+1}"), 5))
            for p in range(2):
                fill.append(("f", (lambda j=j, p=p, ti=ti: f"v_lshlrev_b32 v{ud[j]+2*p}, 16, v{ZQ+2*ti+p}"), 5))
                fill.append(("f", (lambda j=j, p=p, ti=ti: f"v_and_b32 v{ud[j]+2*p+1}, 0xffff0000, v{ZQ+2*ti+p}"), 5))
        def epi(j, ti):
            y = acc[j]; z = ZQ + 2 * ti; out = []
            for p in range(4): out.append(lambda p=p: f"v_mul_f32 v{y+p}, v{y+p}, v{PR}")
            for p in range(2): out.append(lambda p=p: f"v_cvt_pk_bf16_f32 v{z+p}, v{y+2*p}, v{y+2*p+1}")
            for p in range(2):
                out.append(lambda p=p: f"v_lshlrev_b32 v{y+2*p}, 16, v{z+p}")
                out.append(lambda p=p: f"v_and_b32 v{y+2*p+1}, 0xffff0000, v{z+p}")
            for p in range(4): out.append(lambda p=p: f"v_add_f32 v{y+p}, v{y+p}, v{ud[j]+p}")
            for p in range(2): out.append(lambda p=p: f"v_cvt_pk_bf16_f32 v{z+p}, v{y+2*p}, v{y+2*p+1}")
            for p in range(2): out.append(lambda p=p: f"v_min_u32 v{z+p}, -2, v{z+p}")
            return out
        for f in epi(lo, 0): fill.append(("f", f, lastlo + 2))
        fill.append(("lds", f"ds_read_b32 v{FT1}, v{VZ} offset:{FL_CLROK}", nops - 4))
        fill.append(("lds", f"ds_read_u8 v{FT0}, v{VZ} offset:{FL_S6 + m}", nops - 4))
        fill.append(("lds", f"ds_read_b128 v[{ACCL}:{ACCL+3}], v{VLN} offset:{G_BASE + R_RED + 1024*m}", nops - 4))
        uid = [None]
        def do_fill(n, k):
            while n > 0 and fill:
                kind, t, e = fill[0]
                if e > k: return
                if kind == "alloc":
                    if len(pool) < 2: return
                    ud[t] = pool.pop(); fill.pop(0); continue
                fill.pop(0)
                if kind == "f":
                    if XP & 2 and "v_min" not in t(): continue
                    a(t())
                elif kind == "lds": tr.issue(t)
                elif kind == "ldsU": uid[0] = tr.issue(t)
                elif kind == "waitU": tr.wait(uid[0]); continue
                n -= 1
        kW = ncomb0 - LA if nops > ncomb0 else None
        wok = [False]
        def issue_loads(k, nmax):
            while pend and pool and nmax > 0:
                key = pend[0]
                if first[key] - k > (LA if key[0] != "G" else LA + 4): return
                if key[0] == "W" and not wok[0]:
                    alt = [x for x in pend if x[0] != "W" and first[x] - k <= LA + 2]
                    if not alt: return
                    key = alt[0]
                pend.remove(key); load(tr, key); nmax -= 1
        issue_loads(0, RSV)
        started = set()
        for k, (j, A, B) in enumerate(ops):
            assert A in reg and B in reg, (m, k, A, B)
            tr.wait(max(lid[A], lid[B]))
            c = f"v[{acc[j]}:{acc[j]+3}]" if j in started else "0"
            started.add(j)
            a(f"v_mfma_f32_16x16x32_f16 v[{acc[j]}:{acc[j]+3}], v[{reg[A]}:{reg[A]+3}], v[{reg[B]}:{reg[B]+3}], {c}")
            for key in (A, B):
                if last[key] == k: pool.append(reg[key])
            if kW is not None and k == kW - 3:
                wfid = tr.issue(f"ds_read_b32 v{FT0}, v14 offset:{FL_G + 12}")
            if k == kW:
                tr.wait(wfid)
                sl = newlabel("WS"); bk = newlabel("WB")
                a(f"v_cmp_ne_u32 vcc, s{S_ONES}, v{FT0}", f"s_cbranch_vccnz {sl}")
                a(f"{bk}:")
                slow.append((sl, bk))
                wok[0] = True
                cstamp(a, 3)
            issue_loads(k + 1, 2)
            do_fill(NF, k)
            if k == ncomb0 // 2: cstamp(a, 2)
            if k == ncomb0 - 1: cstamp(a, 4)
        cstamp(a, 5)
        do_fill(1000, 1000)
        assert not fill and not pend
        stamp(a, 7)
        for f in epi(hi, 1): a(f())
        if m < 3: a(f"s_branch {zend}")
    a(f"{zend}:")
    cstamp(a, 6)
    gA = newlabel("ZA"); gC = newlabel("ZC"); zs = newlabel("ZS"); zb = newlabel("ZB"); zc = newlabel("ZCB"); zd = newlabel("ZD")
    a("s_waitcnt lgkmcnt(0)")
    a(f"s_cmp_lg_u32 s{S_G}, 1", f"s_cbranch_scc1 {gA}")
    a(f"v_lshl_add_u32 v{FT0}, v{FT0}, 1, v{FT1}", f"v_cmp_ne_u32 vcc, s{T5_}, v{FT0}", f"s_cbranch_vccnz {zs}")
    a(f"{zb}:")
    a(f"s_mov_b64 exec, s[{SP0}:{SP1}]")
    for k in range(4): a(f"v_swap_b32 v{ZQ+k}, v{ACCL+k}")
    a("s_mov_b64 exec, -1")
    cstamp(a, 8)
    a(f"buffer_store_dwordx4 v[{ZQ}:{ZQ+3}], v{VZA}, s[{R0}:{R0+3}], s{T1_} offen sc1")
    a(f"buffer_store_dwordx4 v[{ACCL}:{ACCL+3}], v{VZA}, s[{R0}:{R0+3}], s{T0_} offen sc1")
    a(f"s_branch {zd}")
    for (sl, bk) in slow:
        a(f"{sl}:")
        lds_wait(a, FL_G + 12, FT0, "b4", addr=14)
        a(f"s_branch {bk}")
    a(f"{zs}:")
    lds_wait(a, FL_CLROK, FT1, "b4")
    a(f"v_mov_b32 v{FT1}, s{S_ROLE}")
    l = newlabel("ZW")
    a(f"{l}:")
    a(f"ds_read_u8 v{FT0}, v{FT1} offset:{FL_S6}")
    guard(a)
    a("s_waitcnt lgkmcnt(0)")
    a(f"v_cmp_ne_u32 vcc, 1, v{FT0}", f"s_cbranch_vccnz {l}")
    a(f"v_lshl_add_u32 v{FT1}, v{FT1}, 10, v{VLN}")
    a(f"ds_read_b128 v[{ACCL}:{ACCL+3}], v{FT1} offset:{G_BASE + R_RED}")
    a("s_waitcnt lgkmcnt(0)")
    a(f"s_branch {zb}")
    a(f"{gA}:")
    a(f"s_cmp_lg_u32 s{S_G}, 0", f"s_cbranch_scc1 {gC}")
    a(f"v_mov_b32 v{FT1}, s{S_ROLE}", f"v_lshl_add_u32 v{FT0}, v{FT1}, 10, v{VLN}")
    a(f"ds_write_b128 v{FT0}, v[{ZQ}:{ZQ+3}] offset:{G_BASE + R_RED}")
    a(f"ds_write_b8 v{FT1}, v{VONE} offset:{FL_S6}")
    cstamp(a, 8)
    a(f"s_branch {zd}")
    a(f"{gC}:")
    a(f"v_cmp_eq_u32 vcc, s{S_ONES}, v{FT1}", f"s_cbranch_vccnz {zc}")
    lds_wait(a, FL_CLROK, FT1, "b4")
    a(f"{zc}:")
    cstamp(a, 8)
    a(f"buffer_store_dwordx4 v[{ZQ}:{ZQ+3}], v{VZA}, s[{R0}:{R0+3}], s{T0_} offen sc1")
    a(f"{zd}:")
    stamp(a, 8)
    if DBG:
        a(f"s_mul_i32 s{T0_}, s{S_ROLE}, 1280", f"s_add_u32 s{T1_}, s{T0_}, s{S_GB}", f"v_lshl_add_u32 v20, v1, 2, s{T1_}")
        a(f"s_mul_i32 s{T1_}, s{S_CH}, 5376", f"s_add_u32 s{T1_}, s{T1_}, s{T0_}", f"s_add_u32 s{T1_}, s{T1_}, {hex(WS_DBG)}", f"v_lshl_add_u32 v21, v1, 2, s{T1_}")
        for k in range(5 + 1):
            a(f"ds_read_b32 v22, v20 offset:{R2 + 256*k}", "s_waitcnt lgkmcnt(0)", f"global_store_dword v21, v22, s[{P_WS}:{P_WS+1}] offset:{256*k}")
        a(f"ds_read_b32 v22, v14 offset:{C_PAR}", f"s_lshl_b32 s{T1_}, s{S_CH}, 2", f"s_add_u32 s{T1_}, s{T1_}, {hex(WS_DBG + 0x300000)}", f"v_mov_b32 v21, s{T1_}")
        a("s_waitcnt lgkmcnt(0)", f"global_store_dword v21, v22, s[{P_WS}:{P_WS+1}]")
    a(f"s_lshl_b32 s{T0_}, s{S_G}, 2", f"s_add_u32 s{T0_}, s{T0_}, s{S_ROLE}", f"v_mov_b32 v8, s{T0_}")
    a("s_waitcnt vmcnt(0)")
    a(f"ds_write_b8 v8, v{VONE} offset:{FL_ZDONE}")


def gen_wjobs(a):
    WA, WD = 10, 11
    end = newlabel("WJE"); w1 = newlabel("WJ1"); w2 = newlabel("WJ2")
    a(f"s_cmp_eq_u32 s{S_WAVE}, 2", f"s_cbranch_scc1 {w2}")
    if XP & 1: a(f"s_branch {w2}")
    a(f"s_add_u32 s{T0_}, s{S_WAVE}, 1", f"s_lshr_b32 s{T0_}, s{T0_}, 2", f"s_cmp_eq_u32 s{S_WAVE}, 1", f"s_cselect_b32 s{T0_}, 2, s{T0_}", f"s_lshl_b32 s{T0_}, s{T0_}, 10")
    a(f"v_lshl_add_u32 v{WA}, v1, 4, s{T0_}", f"v_add_u32 v{WD}, {G_BASE}, v{WA}")
    lds_wait(a, FL_UF, 12, "b4")
    a(f"s_setprio {ENV('WPRIO', 3)}")
    for g in range(3):
        E = 20 + 12 * g; o = C_U + U_SIZE * g + 2 * (240 - 16)
        a(f"ds_read_b128 v[{E}:{E+3}], v{WA} offset:{o}", f"ds_read_b128 v[{E+4}:{E+7}], v{WA} offset:{o+16}", f"ds_read_b64 v[{E+8}:{E+9}], v{WA} offset:{o+32}")
    a(f"s_cmp_eq_u32 s{S_WAVE}, 1", f"s_cbranch_scc1 {w1}")
    for full in (1, 0):
        if not full: a(f"{w1}:")
        for g in range(3):
            if g == 2: a(f"s_cmp_lt_u32 s{S_I}, 24", f"s_cbranch_scc1 {end}")
            E = lambda i: 20 + 12 * g + i
            O = lambda i: 56 + i
            T = lambda i: 65 + i
            Q = lambda i: 72 + i
            X = lambda i: 79 + i
            Y = lambda i: 85 + i
            W7, W9 = 92, 96
            a(f"ds_read_b32 v12, v{VZ} offset:{FL_G + 16*g + 4}")
            if g == 0: a("s_waitcnt lgkmcnt(7)")
            n = 8 if full else 7
            for i in range(1, n + 1): a(f"v_alignbit_b32 v{O(i)}, v{E(i+1)}, v{E(i)}, 16")
            for i in range(1, n + 1): a(f"v_pk_add_f16 v{T(i)}, v{O(i)}, v{E(i+1)}")
            for i in range(1, 5): a(f"v_pk_add_f16 v{X(i)}, v{T(i)}, v{O(i+1)}")
            for i in (range(2, 8) if full else range(3, 7)): a(f"v_pk_add_f16 v{Q(i)}, v{T(i)}, v{T(i+1)}")
            ok = newlabel("WJK")
            a("s_waitcnt lgkmcnt(0)")
            a(f"v_cmp_eq_u32 vcc, s{S_ONES}, v12", f"s_cbranch_vccnz {ok}")
            lds_wait(a, FL_G + 16 * g + 4, 12, "b4", sleep=1)
            a(f"{ok}:")
            off = G_SIZE * (g & 1)
            if g == 2: a(f"v_add_u32 v{WD}, {2*G_SIZE}, v{WD}")
            a(f"ds_write_b128 v{WD}, v[{X(1)}:{X(4)}] offset:{off + R_WS3}")
            for i in (range(2, 7) if full else range(3, 7)): a(f"v_pk_add_f16 v{Y(i)}, v{E(i)}, v{Q(i)}")
            a(f"ds_write_b128 v{WD}, v[{Y(3)}:{Y(6)}] offset:{off + R_WS5 + 16}")
            if full:
                for i in range(5, 8): a(f"v_pk_add_f16 v{X(i)}, v{T(i)}, v{O(i+1)}")
                for k in range(4): a(f"v_pk_add_f16 v{W7+k}, v{Q(2+k)}, v{X(4+k)}")
                a(f"ds_write_b128 v{WD}, v[{W7}:{W7+3}] offset:{off + R_WS7}")
                for k in range(4): a(f"v_pk_add_f16 v{W9+k}, v{Y(2+k)}, v{Q(4+k)}")
                a(f"ds_write_b128 v{WD}, v[{W9}:{W9+3}] offset:{off + R_WS9 + 16}")
            a(f"ds_write_b8 v116, v{VONE} offset:{FL_G + 16*g + 12}")
        a(f"s_branch {end}")
    a(f"{w2}:")
    for g in range(3): a(f"ds_write_b8 v116, v{VONE} offset:{FL_G + 16*g + 12}")
    a("v_lshrrev_b32 v10, 2, v1", "v_lshl_add_u32 v10, v10, 6, v59", f"v_add_u32 v10, {hex(WS_FLAG1 + 4096)}, v10")
    lds_wait(a, FL_UF, 12, "b4", sleep=1)
    lp = newlabel("F1"); l1 = newlabel("F1E")
    a(f"s_branch {l1}")
    a(f"{lp}:")
    a("s_sleep 2")
    a(f"{l1}:")
    for k in range(8): a(f"global_load_dword v{20+k}, v10, s[{P_WS}:{P_WS+1}] offset:{1024*k - 4096} sc1")
    guard(a)
    a("s_waitcnt vmcnt(0)")
    for k in range(8): a(f"v_xor_b32 v{20+k}, v58, v{20+k}")
    a("v_or3_b32 v20, v20, v21, v22", "v_or3_b32 v23, v23, v24, v25", "v_or3_b32 v20, v20, v26, v27", "v_or_b32 v20, v20, v23")
    a("v_cmp_ne_u32 vcc, 0, v20", f"s_cbranch_vccnz {lp}")
    a(f"v_mov_b32 v20, s{S_ONES}", f"ds_write_b32 v{VZ}, v20 offset:{FL_CLROK}")
    stamp(a, 8)
    a(f"{end}:")

def gen(a):
    label = NAME + "_kernel"
    a(f".globl {label}", ".p2align 8", f".type {label},@function", f"{label}:")
    a("s_cmp_ge_u32 s2, 256", "s_cbranch_scc1 KS_END")
    stamp_begin(a)
    a("s_load_dwordx16 s[4:19], s[0:1], 0", "s_load_dwordx16 s[20:35], s[0:1], 64", f"s_load_dwordx2 s[{P_WS}:{P_WS+1}], s[0:1], 128")
    a(f"v_readfirstlane_b32 s{S_WAVE}, v0", f"s_lshr_b32 s{S_WAVE}, s{S_WAVE}, 6")
    a(f"s_and_b32 s{S_XC}, s2, 7", f"s_lshr_b32 s{S_I}, s2, 3")
    if ENV("REMAP", 1):
        a(f"s_add_u32 s{T0_}, s{S_WAVE}, 8", f"s_sub_u32 s{T1_}, s{S_WAVE}, 4", f"s_cmp_lt_u32 s{S_WAVE}, 8", f"s_cselect_b32 s{T0_}, s{T0_}, s{T1_}")
        a(f"s_cmp_lt_u32 s{S_WAVE}, 4", f"s_cselect_b32 s{S_WAVE}, s{S_WAVE}, s{T0_}")
    a("v_and_b32 v1, 63, v0", "v_and_b32 v2, 15, v1", "v_lshrrev_b32 v3, 4, v1", f"v_mov_b32 v{VZ}, 0", f"v_mov_b32 v{VONE}, 1")
    a(f"s_mov_b32 s{S_GUARD}, {GUARD}", f"s_mov_b32 s{S_ONES}, 0x01010101")
    a(f"s_lshl_b32 s{S_B2}, s{S_XC}, 5", f"s_add_u32 s{S_B2}, s{S_B2}, s{S_I}")
    a(f"s_mul_i32 s{S_BLK}, s{S_XC}, 18", f"s_add_u32 s{S_BLK}, s{S_BLK}, s{S_I}")
    a(f"s_cmp_lt_u32 s{S_WAVE}, 4", "s_cbranch_scc1 KS_L")
    a(f"s_cmp_ge_u32 s{S_WAVE}, 12", "s_cbranch_scc1 KS_X")
    a("s_setprio 2")
    a(f"s_lshr_b32 s{S_G}, s{S_WAVE}, 2", f"s_sub_u32 s{S_G}, s{S_G}, 1")
    a(f"s_mul_i32 s{S_ROLE}, s{S_G}, 3", f"s_xor_b32 s{S_ROLE}, s{S_ROLE}, s{S_WAVE}", f"s_and_b32 s{S_ROLE}, s{S_ROLE}, 3")
    a(f"s_lshl_b32 s{S_CH}, s{S_B2}, 1", f"s_add_u32 s{S_CH}, s{S_CH}, s{S_G}")
    a("KS_GRP:")
    gen_group(a)
    a(f"s_cmp_lt_u32 s{S_I}, 18", "s_cbranch_scc1 KS_T")
    a("s_waitcnt lgkmcnt(0)")
    endwave(a)
    a("KS_X:")
    a(f"s_cmp_lt_u32 s{S_I}, 24", "s_cbranch_scc1 KS_X2")
    a("s_setprio 1")
    a(f"s_mov_b32 s{S_G}, 2", f"s_add_u32 s{S_ROLE}, s{S_WAVE}, 3", f"s_and_b32 s{S_ROLE}, s{S_ROLE}, 3")
    a(f"s_lshl_b32 s{S_CH}, s{S_XC}, 3", f"s_add_u32 s{S_CH}, s{S_CH}, s{S_I}", f"s_add_u32 s{S_CH}, s{S_CH}, {512 - 24}")
    a("s_branch KS_GRP")
    a("KS_X2:")
    a(f"s_cmp_lt_u32 s{S_I}, 8", "s_cbranch_scc1 KS_X3")
    a(f"s_sub_u32 s{T5_}, s{S_WAVE}, 8")
    a("s_branch KS_LN1")
    a("KS_X3:")
    a(f"s_lshl_b32 s{T0_}, s2, 4", f"s_add_u32 s{T0_}, s{T0_}, s{S_WAVE}", f"s_cmp_lg_u32 s{T0_}, 12", "s_cbranch_scc1 KS_X3B")
    a("s_setprio 3")
    a(f"s_memrealtime s[{T0_}:{T1_}]")
    a("v_and_b32 v6, 3, v1", "v_lshlrev_b32 v7, 2, v6", "v_min_u32 v6, 2, v6", "v_lshlrev_b32 v6, 2, v6", "v_cmp_eq_u32 vcc, 3, v1")
    a("s_waitcnt lgkmcnt(0)")
    a(f"v_mov_b32 v8, s{T0_}", f"v_mov_b32 v9, s{T1_}", "v_alignbit_b32 v8, v8, v8, v6", f"v_cndmask_b32 v9, v{VZ}, v9, vcc", "v_xor_b32 v8, v8, v9")
    a("v_and_b32 v9, 0xf0000fff, v8", "v_and_b32 v10, 0xfff000, v8", "v_lshl_or_b32 v9, v10, 4, v9", "v_lshrrev_b32 v10, 12, v8", "v_and_b32 v10, 0xf000, v10")
    a("v_or3_b32 v9, v9, v10, v9", "v_or_b32 v9, 0x80000000, v9")
    a("s_mov_b64 exec, 15")
    a(f"global_store_dword v7, v9, s[{P_DBG}:{P_DBG+1}] sc1")
    a("s_mov_b64 exec, -1")
    a("s_setprio 0")
    a("KS_X3B:")
    a("s_waitcnt lgkmcnt(0)")
    a("s_barrier")
    a("s_branch KS_G")
    a("KS_X4:")
    a(f"s_cmp_lt_u32 s{S_I}, 18", "s_cbranch_scc1 KS_G")
    a("s_waitcnt vmcnt(0) lgkmcnt(0)")
    endwave(a)
    a("KS_L:")
    a("v_lshlrev_b32 v6, 2, v0", f"ds_write_b32 v6, v{VZ}")
    a("v_mov_b32 v8, 0", "v_mov_b32 v9, 0", f"s_min_u32 s{T0_}, s{S_WAVE}, 2", f"s_mul_i32 s{T0_}, s{T0_}, {U_SIZE}", "v_min_u32 v6, 59, v1", f"v_lshl_add_u32 v6, v6, 3, s{T0_}")
    a(f"ds_write_b64 v6, v[8:9] offset:{C_U}")
    a(f"s_mov_b32 s{T5_}, s{S_WAVE}")
    a(f"s_sub_u32 s{T0_}, s{S_I}, 8", f"s_cmp_lt_u32 s{T0_}, 16", "s_cbranch_scc0 KS_L0")
    a("KS_LN1:")
    a("s_setprio 3")
    gen_ln1(a)
    a("s_branch KS_L2")
    a("KS_L0:")
    a(f"s_and_b32 s{T0_}, s{S_I}, 15", f"s_lshl_b32 s{T1_}, s{S_XC}, 4", f"s_add_u32 s{T0_}, s{T0_}, s{T1_}")
    a("v_and_b32 v59, 3, v1", "v_lshlrev_b32 v59, 2, v59")
    a(f"s_lshl_b32 s{T4_}, s{T0_}, 6", f"s_add_u32 s{T1_}, s{T4_}, {hex(WS_FLAG1)}", f"v_add_u32 v7, s{T1_}, v59")
    a(f"s_mul_i32 s{T1_}, s{T0_}, {CLR_WG}", f"s_add_u32 s{T1_}, s{T1_}, {hex(WS_CLR)}")
    a("v_lshlrev_b32 v6, 4, v0")
    a("v_mov_b32 v12, -1", "v_mov_b32 v13, -1", "v_mov_b32 v14, -1", "v_mov_b32 v15, -1")
    a("s_setprio 3")
    a("v_mul_u32_u24 v16, 57, v1", "v_lshrrev_b32 v16, 9, v16", "v_mul_u32_u24 v17, 9, v16", "v_sub_u32 v17, v1, v17", "v_mul_u32_u24 v16, 9216, v16", "v_lshl_add_u32 v16, v17, 7, v16")
    a(f"s_and_b32 s{T2_}, s{S_I}, 15", f"s_lshl_b32 s{T2_}, s{T2_}, 2", f"s_add_u32 s{T2_}, s{T2_}, s{S_WAVE}")
    a(f"s_mul_i32 s{T2_}, s{T2_}, {9*9216}", f"s_mul_i32 s{T3_}, s{S_XC}, 1152", f"s_add_u32 s{T2_}, s{T2_}, s{T3_}", f"s_add_u32 s{T3_}, s{T2_}, {7*9216}")
    a("s_waitcnt lgkmcnt(0)")
    a(f"s_add_u32 s{R1}, s{P_WS}, s{T1_}", f"s_addc_u32 s{R1+1}, s{P_WS+1}, 0", f"s_mov_b32 s{R1+2}, {CLR_WG}", f"s_mov_b32 s{R1+3}, 0x20000")
    srd(a, R2_, P_GATE, D * F * 2)
    srd(a, R3, P_UP, D * F * 2)
    a("s_barrier")
    if ENV("CTRIG", 0): lds_wait(a, FL_PARAM, 8, "nz", sleep=2)
    def clears():
        for k in range(5):
            a(f"s_movk_i32 s{T0_}, {4096*k}")
            a(f"buffer_store_dwordx4 v[12:15], v6, s[{R1}:{R1+3}], s{T0_} offen sc1")
    if not ENV("CORD", 0): clears()
    if PF:
        a("s_mov_b32 exec_hi, 0x7fffffff" if PF < 3 else "s_mov_b32 exec_hi, 0x1fff")
        a(f"buffer_load_dword v18, v16, s[{R2_}:{R2_+3}], s{T2_} offen")
        a(f"buffer_load_dword v19, v16, s[{R3}:{R3+3}], s{T2_} offen")
        if PF == 1:
            a("s_mov_b64 exec, 0x3ffff")
            a(f"buffer_load_dword v20, v16, s[{R2_}:{R2_+3}], s{T3_} offen")
            a(f"buffer_load_dword v21, v16, s[{R3}:{R3+3}], s{T3_} offen")
        a("s_mov_b64 exec, -1")
    if ENV("CORD", 0): clears()
    stamp(a, 1)
    a(f"global_load_dword v58, v59, s[{P_DBG}:{P_DBG+1}] sc1")
    dbg_wait(a, 0)
    stamp(a, 2)
    a("s_mov_b64 exec, 1")
    a(f"ds_add_rtn_u32 v8, v{VZ}, v{VONE} offset:{FL_LNACK}")
    a("s_mov_b64 exec, -1")
    for d in range(1, 4): a(f"v_lshrrev_b32 v{58-d}, {3*d}, v58")
    a("s_waitcnt lgkmcnt(0)")
    a(f"v_readfirstlane_b32 s{T0_}, v8")
    a(f"s_cmp_lg_u32 s{T0_}, 3", "s_cbranch_scc1 KS_L2")
    a("s_mov_b64 exec, 15")
    a(f"global_store_dword v7, v58, s[{P_WS}:{P_WS+1}] sc1")
    a("s_mov_b64 exec, -1")
    a("KS_L2:")
    srd(a, R0, P_WS, XBYTES, WS_UT)
    a("v_lshrrev_b32 v7, 1, v1", "v_lshlrev_b32 v7, 6, v7", "v_and_b32 v10, 1, v1", "v_lshl_add_u32 v7, v10, 4, v7", "v_lshlrev_b32 v9, 4, v1")
    a(f"s_lshl_b32 s{T0_}, s{S_WAVE}, 11", f"s_lshl_b32 s{T1_}, s{S_B2}, 13", f"s_add_u32 s{T1_}, s{T1_}, s{T0_}")
    a(f"s_lshl_b32 s{T3_}, s{S_XC}, 3", f"s_add_u32 s{T3_}, s{T3_}, s{S_I}", f"s_add_u32 s{T3_}, s{T3_}, {512 - 24}")
    a(f"s_lshr_b32 s{T4_}, s{T3_}, 1", f"s_lshl_b32 s{T4_}, s{T4_}, 13", f"s_and_b32 s{T3_}, s{T3_}, 1", f"s_lshl_b32 s{T3_}, s{T3_}, 5")
    a(f"s_add_u32 s{T3_}, s{T3_}, s{T4_}", f"s_add_u32 s{T3_}, s{T3_}, s{T0_}")
    a(f"s_cmp_lt_u32 s{S_I}, 24", f"s_cselect_b32 s{T3_}, {XBYTES}, s{T3_}", f"s_cselect_b32 s{T2_}, 0, {hex(TAGM)}")
    a(f"v_mov_b32_dpp v64, v58 quad_perm:[0,1,0,1] {DPPM}", f"v_mov_b32_dpp v65, v58 quad_perm:[2,3,2,3] {DPPM}")
    a(f"s_bitcmp1_b32 s{S_I}, 0", "s_cselect_b64 vcc, -1, 0", "v_cndmask_b32 v64, v64, v65, vcc")
    for d in range(4): a(f"v_and_b32 v{60+d}, {hex(TAGM)}, v{58-d}")
    for d in range(3, 0, -1): a(f"v_lshrrev_b32 v{64+d}, {3*d}, v64")
    for d in range(4): a(f"v_and_b32 v{64+d}, s{T2_}, v{64+d}")
    a(f"s_lshl_b32 s{T4_}, s{S_WAVE}, 10", f"s_add_u32 s{T4_}, s{T4_}, {C_U + 480}")
    a("v_bfe_u32 v11, v1, 1, 1", f"v_mul_u32_u24 v11, {U_SIZE}, v11", "v_lshl_add_u32 v11, v10, 4, v11", "v_lshrrev_b32 v10, 2, v1", "v_lshl_add_u32 v11, v10, 5, v11", f"v_add_u32 v11, s{T4_}, v11")
    a(f"v_add_u32 v10, s{T4_}, v9")
    a(f"v_mov_b32 v116, s{S_WAVE}")
    if ENV("UTRIG", 0):
        a("s_setprio 0")
        lds_wait(a, FL_G + {1: 4, 2: 16, 3: 16 + 4, 4: 16 + 8, 5: 8}[ENV("UTRIG", 0)], 8, "b4", sleep=2)
        a("s_setprio 3")
    if ENV("UACK", 1): a("s_waitcnt vmcnt(0)")
    stamp(a, 5)
    if ENV("UDELAY", 0): a(f"s_sleep {ENV('UDELAY', 0)}")
    lp = newlabel("UP"); l1 = newlabel("UPE")
    a(f"s_branch {l1}")
    a(f"{lp}:")
    a(f"s_sleep {ENV('USLEEP', 2)}")
    a(f"{l1}:")
    a(f"buffer_load_dwordx4 v[20:23], v9, s[{R0}:{R0+3}], s{T1_} offen sc1")
    a(f"buffer_load_dwordx4 v[24:27], v9, s[{R0}:{R0+3}], s{T1_} offen offset:1024 sc1")
    a(f"buffer_load_dwordx4 v[28:31], v7, s[{R0}:{R0+3}], s{T3_} offen sc1")
    guard(a)
    for k in range(3):
        a(f"s_waitcnt vmcnt({2-k})")
        for d in range(4): a(f"v_xor_b32 v{20+4*k+d}, v{(64 if k == 2 else 60)+d}, v{20+4*k+d}")
        a(f"v_or3_b32 v44, v{20+4*k}, v{21+4*k}, v{44 if k else 21}", f"v_or3_b32 v44, v{22+4*k}, v{23+4*k}, v44")
    a(f"v_and_b32 v44, {hex(TAGM)}, v44", "v_cmp_ne_u32 vcc, 0, v44", f"s_cbranch_vccnz {lp}")
    stamp(a, 6)
    a("ds_write_b128 v11, v[20:23]", "ds_write_b128 v11, v[24:27] offset:512", f"ds_write_b128 v10, v[28:31] offset:{2*U_SIZE}")
    a(f"ds_write_b8 v116, v{VONE} offset:{FL_UF}")
    stamp(a, 7)
    gen_wjobs(a)
    a("s_setprio 0")
    a(f"s_lshr_b32 s{T0_}, s{S_B2}, 6", f"s_lshl_b32 s{T0_}, s{T0_}, 9")
    a(f"s_bfe_u32 s{T1_}, s{S_B2}, 0x20004", f"s_lshl_b32 s{T1_}, s{T1_}, 6", f"s_add_u32 s{T0_}, s{T0_}, s{T1_}")
    a(f"s_and_b32 s{T1_}, s{S_B2}, 3", f"s_lshl_b32 s{T1_}, s{T1_}, 4", f"s_add_u32 s{T0_}, s{T0_}, s{T1_}")
    a(f"s_and_b32 s{T1_}, s{S_B2}, 12", f"s_add_u32 s{T0_}, s{T0_}, s{T1_}")
    a(f"s_lshr_b32 s{T1_}, s{S_WAVE}, 1", f"s_lshl_b32 s{T1_}, s{T1_}, 8", f"s_add_u32 s{T0_}, s{T0_}, s{T1_}")
    a(f"s_and_b32 s{T1_}, s{S_WAVE}, 1", f"s_lshl_b32 s{T1_}, s{T1_}, 1", f"s_add_u32 s{T0_}, s{T0_}, s{T1_}")
    a("v_lshrrev_b32 v113, 5, v1", "v_and_b32 v114, 31, v1")
    a(f"v_add_u32 v112, s{T0_}, v113")
    a("v_mul_u32_u24 v115, 1152, v112", "v_lshl_add_u32 v8, v114, 2, v115", "v_lshl_add_u32 v115, v114, 4, v115", "v_lshlrev_b32 v7, 2, v114", "v_lshlrev_b32 v6, 4, v114")
    a(f"v_bfe_u32 v111, v1, 3, 1", f"v_add_u32 v111, s{T0_}, v111", "v_mul_u32_u24 v111, 1152, v111", "v_and_b32 v9, 7, v1", "v_lshl_add_u32 v111, v9, 4, v111")
    srd(a, R0, P_X, XBYTES)
    srd(a, R1, P_WR, 1152)
    a(f"buffer_load_dwordx4 v[10:13], v115, s[{R0}:{R0+3}], 0 offen")
    a(f"buffer_load_dwordx4 v[14:17], v115, s[{R0}:{R0+3}], 0 offen offset:512")
    a(f"buffer_load_dword v18, v8, s[{R0}:{R0+3}], 0 offen offset:1024")
    a(f"buffer_load_dwordx4 v[50:53], v6, s[{R1}:{R1+3}], 0 offen")
    a(f"buffer_load_dwordx4 v[54:57], v6, s[{R1}:{R1+3}], 0 offen offset:512")
    a(f"buffer_load_dword v58, v7, s[{R1}:{R1+3}], 0 offen offset:1024")
    a(f"s_cmp_lt_u32 s{S_I}, 18", "s_cbranch_scc1 KS_L3B")
    a(f"s_mul_i32 s{T0_}, s{S_XC}, 14", f"s_add_u32 s{T0_}, s{T0_}, s{S_I}", f"s_mul_i32 s{T0_}, s{T0_}, {CLRP_WG}", f"s_add_u32 s{T0_}, s{T0_}, {hex(WS_PART - 18*CLRP_WG)}")
    a(f"s_add_u32 s{R1}, s{P_WS}, s{T0_}", f"s_addc_u32 s{R1+1}, s{P_WS+1}, 0", f"s_mov_b32 s{R1+2}, {CLRP_WG}", f"s_mov_b32 s{R1+3}, 0x20000")
    if ENV("PFD", 1):
        srd(a, R2_, P_DOWN, D * F * 2)
        a(f"s_sub_u32 s{T0_}, s{S_I}, 18", f"s_lshl_b32 s{T0_}, s{T0_}, 2", f"s_add_u32 s{T0_}, s{T0_}, s{S_WAVE}", f"s_mul_i32 s{T0_}, s{T0_}, {93*128}")
        a(f"s_mul_i32 s{T1_}, s{S_XC}, {576*1152}", f"s_add_u32 s{T0_}, s{T0_}, s{T1_}", "v_lshlrev_b32 v6, 7, v1")
        a(f"buffer_load_dword v64, v6, s[{R2_}:{R2_+3}], s{T0_} offen")
        a(f"buffer_load_dword v65, v6, s[{R2_}:{R2_+3}], s{T0_} offen offset:{29*128}")
    a("v_lshlrev_b32 v6, 4, v0", "v_mov_b32 v60, -1", "v_mov_b32 v61, -1", "v_mov_b32 v62, -1", "v_mov_b32 v63, -1")
    for k in range(6):
        a(f"s_movk_i32 s{T0_}, {4096*k}")
        a(f"buffer_store_dwordx4 v[60:63], v6, s[{R1}:{R1+3}], s{T0_} offen sc1")
    a("s_branch KS_L4")
    a("KS_L3B:")
    if ENV("DTRIG", 1): lds_wait(a, FL_GISS, 6, "b4", sleep=2)
    srd(a, R1, P_DOWN, F * D * 2)
    a("v_lshlrev_b32 v6, 4, v1", f"s_mul_i32 s{T0_}, s{S_BLK}, 36864", f"s_mul_i32 s{T1_}, s{S_WAVE}, 9216", f"s_add_u32 s{T0_}, s{T0_}, s{T1_}", f"s_add_u32 s{T1_}, s{T1_}, {C_DOWN}")
    for k in range(9):
        if k % 4 == 0:
            a(f"s_add_u32 m0, s{T1_}, {1024*k}")
            if k: a(f"s_add_u32 s{T0_}, s{T0_}, 4096")
        a(f"buffer_load_dwordx4 v6, s[{R1}:{R1+3}], s{T0_} offen offset:{1024*(k&3)} lds")
    a("KS_L4:")
    srd(a, R0, P_WS, 0x240000, WS_ZB1)
    srd(a, R1, P_OUT, XBYTES)
    srd(a, R2_, P_WS, XBYTES, WS_X2)
    srd(a, R3, P_WS, 12288, WS_KEYS)
    a(f"s_not_b32 s{T1_}, s{S_B2}", f"v_xor_b32 v8, s{T1_}, v0")
    a("v_lshrrev_b32 v6, 1, v0", "v_lshlrev_b32 v6, 6, v6", "v_and_b32 v8, 1, v8", "v_lshl_add_u32 v6, v8, 4, v6")
    a(f"s_lshr_b32 s{T0_}, s{S_B2}, 2", f"s_lshl_b32 s{T0_}, s{T0_}, 15", f"s_and_b32 s{T1_}, s{S_B2}, 1", f"s_lshl_b32 s{T1_}, s{T1_}, 14", f"s_add_u32 s{T0_}, s{T0_}, s{T1_}")
    a(f"s_and_b32 s{T1_}, s{S_B2}, 2", f"s_lshl_b32 s{T1_}, s{T1_}, 4", f"s_add_u32 s{T0_}, s{T0_}, s{T1_}")
    a(f"s_lshr_b32 s{T2_}, s{S_B2}, 2", f"s_lshl_b32 s{T2_}, s{T2_}, 12", f"s_and_b32 s{T1_}, s{S_B2}, 3", f"s_lshl_b32 s{T1_}, s{T1_}, 4")
    a(f"s_add_u32 s{T2_}, s{T2_}, s{T1_}", f"s_lshl_b32 s{T1_}, s{S_WAVE}, 10", f"s_add_u32 s{T2_}, s{T2_}, s{T1_}", f"s_add_u32 s{T2_}, s{T2_}, 0x200000")
    a(f"s_add_u32 s{T1_}, s{T0_}, 8192", "v_lshlrev_b32 v9, 6, v2")
    a(f"s_mul_i32 s{T3_}, s{S_WAVE}, 2304", f"s_add_u32 s{T3_}, s{T3_}, {C_XR}", f"v_lshl_add_u32 v117, v114, 5, s{T3_}", f"v_lshl_add_u32 v110, v114, 3, s{T3_}")
    a(f"s_lshl_b32 s{T3_}, s{S_WAVE}, 9", f"s_add_u32 s{T3_}, s{T3_}, {C_RED}", f"v_lshl_add_u32 v108, v1, 2, s{T3_}", f"v_lshl_add_u32 v109, v1, 4, s{T3_}")
    a(f"s_mov_b32 s{T3_}, 0x02020202", f"v_mul_lo_u32 v118, v113, s{T3_}", "v_add_u32 v118, 0x05040100, v118")
    a(f"v_lshlrev_b32 v8, 2, v0", f"v_add_u32 v8, {C_XR}, v8")
    a(f"s_lshl_b32 s{T3_}, s{S_WAVE}, 6", f"s_add_u32 s{T3_}, s{T3_}, {C_XR + 2048}", f"v_lshl_add_u32 v119, v2, 2, s{T3_}")
    a("s_waitcnt vmcnt(0)")
    a(f"ds_write_b8 v116, v{VONE} offset:{FL_DOWN}")
    X = 20
    for j in range(9): unpack(a, X + 2 * j, 10 + j)
    lds_wait(a, FL_ZDONE + 4, 60, "b4", sleep=1)
    a("s_setprio 3")
    stamp2(a, 1)
    if ENV("ZGATE", 1):
        zpoll(a, [f"buffer_load_dwordx4 v[68:71], v{VZ}, s[{R0}:{R0+3}], s{T2_} offen sc1"], list(range(68, 72)), ENV("ZSLEEP", 1))
        if ENV("ZDELAY", 0): a(f"s_sleep {ENV('ZDELAY', 0)}")
    zpoll(a, [f"buffer_load_dwordx4 v[60:63], v6, s[{R0}:{R0+3}], s{T0_} offen sc1",
           f"buffer_load_dwordx4 v[64:67], v6, s[{R0}:{R0+3}], s{T1_} offen sc1",
           f"buffer_load_dwordx4 v[68:71], v9, s[{R0}:{R0+3}], s{T2_} offen sc1"], list(range(60, 72)), ENV("ZSLEEP", 1))
    stamp2(a, 2)
    for k in range(2):
        a(f"ds_write2st64_b32 v8, v{60+4*k}, v{61+4*k} offset0:{4*k} offset1:{9+4*k}")
        a(f"ds_write2st64_b32 v8, v{62+4*k}, v{63+4*k} offset0:{18+4*k} offset1:{27+4*k}")
    a("ds_write2st64_b32 v119, v68, v69 offset0:0 offset1:9")
    a("ds_write2st64_b32 v119, v70, v71 offset0:18 offset1:27")
    a(f"ds_write_b8 v116, v{VONE} offset:{FL_ZF}")
    stamp2(a, 3)
    lds_wait(a, FL_ZF, 60, "b4")
    for k in range(4):
        a(f"ds_read_b128 v[{60+4*k}:{63+4*k}], v117 offset:{1024*(k>>1) + 16*(k&1)}")
    a("ds_read_b64 v[76:77], v110 offset:2048")
    for j in range(9):
        if j % 2 == 0: a(f"s_waitcnt lgkmcnt({4-j//2})")
        a(f"v_perm_b32 v44, v{61+2*j}, v{60+2*j}, v118")
        unpack(a, 46, 44)
        a(f"v_pk_add_f32 v[46:47], v[46:47], v[{X+2*j}:{X+2*j+1}]")
        a(f"v_cvt_pk_bf16_f32 v44, v46, v47")
        unpack(a, X + 2 * j, 44)
    ln_stats(a, X, 40, 42, 44, 46, 48)
    stamp2(a, 4)
    a("v_mov_b32 v60, 0", "v_mov_b32 v61, 0")
    for j in range(9):
        ln_apply_pair(a, X + 2 * j, 40, 42, 44, 10 + j)
        unpack(a, 46, 50 + j)
        a("v_pk_fma_f32 v[60:61], v[44:45], v[46:47], v[60:61]")
        a(f"v_pk_add_f32 v[{X+2*j}:{X+2*j+1}], v[44:45], v[{X+2*j}:{X+2*j+1}]")
    a("v_add_f32 v60, v60, v61")
    red32(a, "v_add_f32", 60, 61)
    a("v_cvt_pk_bf16_f32 v60, v60, v60")
    a("v_ashrrev_i32 v61, 31, v60", "v_or_b32 v61, 0x80000000, v61", "v_xor_b32 v60, v60, v61", "v_and_b32 v60, 0xffff0000, v60")
    a("v_sub_u32 v62, 0x87ff, v112", "v_or_b32 v60, v60, v62", "v_lshl_add_u32 v61, v116, 1, v113", "v_lshlrev_b32 v61, 2, v61")
    a("s_mov_b32 exec_lo, 1", "s_mov_b32 exec_hi, 1")
    a(f"ds_write_b32 v61, v60 offset:{C_KEY}")
    a("s_mov_b64 exec, 1")
    a(f"ds_add_rtn_u32 v62, v{VZ}, v{VONE} offset:{FL_KCNT}")
    a("s_mov_b64 exec, 3")
    a("v_lshlrev_b32 v61, 4, v114", f"s_lshl_b32 s{T0_}, s{S_B2}, 5")
    a(f"ds_read_b128 v[64:67], v61 offset:{C_KEY}")
    a("s_waitcnt lgkmcnt(1)")
    a(f"v_readfirstlane_b32 s{T1_}, v62")
    a(f"s_cmp_lg_u32 s{T1_}, 3", "s_cbranch_scc1 KS_NOKEY")
    a("s_waitcnt lgkmcnt(0)")
    a(f"buffer_store_dwordx4 v[64:67], v61, s[{R3}:{R3+3}], s{T0_} offen sc1")
    a("KS_NOKEY:")
    a("s_mov_b64 exec, -1")
    a(f"v_cvt_pk_bf16_f32 v58, v{X+16}, v{X+17}")
    a("ds_write_b32 v108, v18", "ds_write_b32 v108, v58 offset:256", "ds_read_b128 v[64:67], v109")
    a(f"buffer_store_dwordx4 v[10:13], v115, s[{R2_}:{R2_+3}], 0 offen sc1")
    a(f"buffer_store_dwordx4 v[14:17], v115, s[{R2_}:{R2_+3}], 0 offen offset:512 sc1")
    for j in range(8):
        a(f"v_cvt_pk_bf16_f32 v{50+j}, v{X+2*j}, v{X+2*j+1}")
    a("s_mov_b64 exec, 0xffff")
    a("s_waitcnt lgkmcnt(0)")
    a(f"buffer_store_dwordx4 v[64:67], v111, s[{R2_}:{R2_+3}], 0 offen offset:1024 sc1")
    a("s_mov_b64 exec, 0xffff0000")
    a(f"buffer_store_dwordx4 v[64:67], v111, s[{R1}:{R1+3}], 0 offen offset:1024 sc1")
    a("s_mov_b64 exec, -1")
    a(f"buffer_store_dwordx4 v[50:53], v115, s[{R1}:{R1+3}], 0 offen sc1")
    a(f"buffer_store_dwordx4 v[54:57], v115, s[{R1}:{R1+3}], 0 offen offset:512 sc1")
    stamp2(a, 5)
    a(f"s_cmp_lg_u32 s{T1_}, 3", "s_cbranch_scc1 KS_NOKEY2")
    a("s_waitcnt vmcnt(6)")
    a(f"ds_write_b32 v{VZ}, v{VONE} offset:{FL_KACK}")
    a("KS_NOKEY2:")
    a("s_waitcnt vmcnt(0)")
    a("s_mov_b64 exec, 1")
    a(f"ds_add_rtn_u32 v62, v{VZ}, v{VONE} offset:{FL_F2CNT}")
    a("s_waitcnt lgkmcnt(0)")
    a("v_cmp_eq_u32 vcc, 3, v62", "s_and_b64 exec, exec, vcc", "s_cbranch_execz KS_NOF2")
    a(f"s_lshl_b32 s{T0_}, s2, 4", f"s_add_u32 s{T0_}, s{T0_}, 8192")
    a(f"buffer_store_dword v{VONE}, v{VZ}, s[{R3}:{R3+3}], s{T0_} offen sc1")
    a("KS_NOF2:")
    a("s_mov_b64 exec, -1")
    a("s_setprio 0")
    a(f"s_cmp_lt_u32 s{S_I}, 18", "s_cbranch_scc1 KS_B")
    a("s_waitcnt lgkmcnt(0)")
    endwave(a)
    a("KS_T:")
    a("s_setprio 0")
    a(f"s_cmp_ge_u32 s{S_WAVE}, 10", "s_cbranch_scc1 KS_P")
    a("v_and_b32 v6, 1, v1", "v_subrev_u32 v6, 1, v6")
    a("v_and_b32 v7, 7, v1", "v_lshlrev_b32 v7, 2, v7")
    srd(a, R3, P_WS, 12288, WS_KEYS)
    a(f"s_cmp_eq_u32 s{S_WAVE}, 9", "s_cbranch_scc1 KS_W9")
    a(f"s_cmp_eq_u32 s{S_WAVE}, 8", "s_cbranch_scc1 KS_L2W")
    a(f"s_sub_u32 s{T1_}, s{S_WAVE}, 4", f"s_lshl_b32 s{T0_}, s{T1_}, 10", f"v_lshl_add_u32 v33, v1, 4, s{T0_}", f"s_movk_i32 s{T0_}, 4096")
    a(f"s_lshl_b32 s{T1_}, s{T1_}, 7", "v_lshlrev_b32 v32, 4, v2", "v_lshl_add_u32 v32, v3, 5, v32", f"v_add_u32 v32, s{T1_}, v32")
    lds_wait(a, FL_KACK, 8, "nz", sleep=1)
    a("s_setprio 2")
    if ENV('KDELAY', 20): a(f"s_sleep {ENV('KDELAY', 20)}")
    stamp2(a, 1)
    zpoll(a, [f"buffer_load_dwordx4 v[8:11], v33, s[{R3}:{R3+3}], 0 offen sc1",
           f"buffer_load_dwordx4 v[12:15], v33, s[{R3}:{R3+3}], s{T0_} offen sc1"], list(range(8, 16)), ENV("KSLEEP", 4))
    a(f"ds_write_b32 v{VZ}, v{VONE} offset:{FL_KSEEN}")
    stamp2(a, 2)
    pool = Pool(range(16, 28))
    x = [8, 9, 10, 11]; y = [12, 13, 14, 15]
    for (i, j) in ((0, 1), (2, 3), (0, 2), (1, 3), (1, 2)):
        ce_inlane(a, x, i, j, pool); ce_inlane(a, y, i, j, pool)
    clean8(a, x, pool, 6, rev=True); clean8(a, y, pool, 6, rev=True)
    merge_pair(a, x, y, pool); clean8(a, x, pool, 6)
    for M in MIRRORS:
        merge_mirror(a, x, pool, M); clean8(a, x, pool, 6)
    for i in range(4): a(f"v_mov_b32 v{28+i}, v{x[i]}")
    a("s_mov_b32 exec_lo, 0x00030003", "s_mov_b32 exec_hi, 0x00030003")
    a(f"ds_write_b128 v32, v[28:31] offset:{C_CAND}")
    a("s_mov_b64 exec, -1")
    stamp2(a, 3)
    a("s_setprio 0")
    a("s_branch KS_B")
    a("KS_L2W:")
    srd(a, R2_, P_WS, XBYTES, WS_X2)
    a(f"s_mov_b32 s{T0_}, 0xcccccccc", f"s_mov_b32 s{T1_}, 0xcccccccc", f"s_mov_b32 s{T2_}, 0xf0f0f0f0", f"s_mov_b32 s{T3_}, 0xf0f0f0f0", f"s_movk_i32 s{T4_}, 1152")
    a("v_lshrrev_b32 v34, 3, v1", "v_lshlrev_b32 v34, 4, v34", "v_lshlrev_b32 v33, 4, v2")
    lds_wait(a, FL_KACK, 8, "nz", sleep=1)
    a("s_setprio 2")
    a("KS_L2POLL:")
    a(f"ds_read_b128 v[8:11], v33 offset:{C_CAND}")
    a(f"ds_read_b128 v[12:15], v33 offset:{C_CAND + 256}")
    guard(a)
    a("s_waitcnt lgkmcnt(0)")
    a("v_min3_u32 v16, v8, v9, v10", "v_min3_u32 v17, v11, v12, v13", "v_min3_u32 v16, v16, v14, v15", "v_min_u32 v16, v16, v17", "v_cmp_eq_u32 vcc, 0, v16")
    a("s_cbranch_vccnz KS_L2POLL")
    stamp2(a, 1)
    pool = Pool(range(16, 28))
    x = [8, 9, 10, 11]; y = [12, 13, 14, 15]
    merge_pair(a, x, y, pool); clean8(a, x, pool, 6)
    for li, M in enumerate(MIRRORS):
        merge_mirror(a, x, pool, M)
        if li < 2: clean8(a, x, pool, 6)
    a(f"ds_read_b32 v35, v{VZ} offset:{FL_ROWSOK}")
    a(f"v_cndmask_b32 v30, v{x[0]}, v{x[1]}, s[{T0_}:{T1_}]", f"v_cndmask_b32 v31, v{x[2]}, v{x[3]}, s[{T0_}:{T1_}]", f"v_cndmask_b32 v30, v30, v31, s[{T2_}:{T3_}]")
    a("v_mov_b32_dpp v30, v30 row_shr:8 row_mask:0xf bank_mask:0xc")
    a("v_and_b32 v31, 0x7ff, v30", "v_sub_u32 v31, 2047, v31", f"v_mad_u32_u24 v31, v31, s{T4_}, v34")
    a("s_waitcnt lgkmcnt(0)")
    a("v_cmp_ne_u32 vcc, 0, v35", "s_cbranch_vccnz KS_RW1")
    lds_wait(a, FL_ROWSOK, 35, "nz")
    a("KS_RW1:")
    for k in range(9):
        a(f"s_mov_b32 m0, {C_XR + 896*k}")
        a(f"buffer_load_dwordx4 v31, s[{R2_}:{R2_+3}], 0 offen offset:{128*k} sc1 lds")
    a(f"ds_write_b32 v7, v30 offset:{C_SEL}")
    stamp2(a, 2)
    a("s_waitcnt vmcnt(0)")
    a(f"ds_write_b32 v{VZ}, v{VONE} offset:{FL_XRDY}")
    stamp2(a, 3)
    a("s_setprio 0")
    a("s_branch KS_B")
    a("KS_W9:")
    a("v_lshlrev_b32 v33, 4, v1", f"s_movk_i32 s{T0_}, 0x2000")
    srd(a, R2_, P_WS, XBYTES, WS_X2)
    srd(a, R0, P_WS, 0x240000, WS_ZB1)
    srd(a, R1, P_X, XBYTES)
    a("v_bfe_u32 v43, v1, 2, 3", f"s_lshl_b32 s{T1_}, s{S_BLK}, 3", f"v_add_u32 v43, s{T1_}, v43")
    a("v_bfe_u32 v40, v43, 4, 1", "v_and_b32 v41, 3, v1", "v_lshl_add_u32 v40, v40, 2, v41", "v_lshlrev_b32 v40, 2, v40")
    a("v_lshrrev_b32 v41, 5, v43", "v_lshlrev_b32 v41, 4, v41", "v_and_b32 v42, 15, v43", "v_add_u32 v41, v41, v42")
    lds_wait(a, FL_KSEEN, 8, "nz", sleep=1)
    if ENV('F2DELAY', 8): a(f"s_sleep {ENV('F2DELAY', 8)}")
    a("s_setprio 2")
    zpoll(a, [f"buffer_load_dword v{8+k}, v33, s[{R3}:{R3+3}], s{T0_} offen offset:{1024*k} sc1" for k in range(4)], list(range(8, 12)), ENV("F2SLEEP", 4))
    a(f"ds_write_b32 v{VZ}, v{VONE} offset:{FL_ROWSOK}")
    stamp2(a, 1)
    a("s_setprio 0")
    lds_wait(a, C_SEL, 12, "nz", addr=7, sleep=1)
    stamp2(a, 2)
    a(f"ds_read_b32 v19, v40 offset:{C_SEL}")
    a("s_waitcnt lgkmcnt(0)")
    a("v_and_b32 v14, 0x7ff, v19", "v_sub_u32 v14, 2047, v14")
    a("v_mul_u32_u24 v23, 1152, v14", "v_lshl_add_u32 v23, v41, 1, v23")
    a(f"buffer_load_ushort v20, v23, s[{R2_}:{R2_+3}], 0 offen sc1")
    a(f"buffer_load_ushort v17, v23, s[{R1}:{R1+3}], 0 offen")
    a("v_lshrrev_b32 v15, 9, v14", "v_bfe_u32 v16, v14, 6, 2", "v_lshl_add_u32 v15, v15, 2, v16", "v_bfe_u32 v16, v14, 2, 2", "v_lshl_add_u32 v15, v15, 2, v16")
    a("v_bfe_u32 v16, v14, 4, 1")
    a("v_bfe_u32 v24, v14, 8, 1", "v_and_b32 v25, 3, v14", "v_lshl_add_u32 v24, v24, 2, v25", "v_lshlrev_b32 v24, 1, v24")
    a("v_bfe_u32 v25, v14, 5, 1", "v_lshl_add_u32 v24, v25, 5, v24")
    a("v_lshl_add_u32 v25, v15, 1, v16", "v_lshl_add_u32 v25, v25, 14, v24")
    a("v_lshrrev_b32 v26, 1, v41", "v_lshl_add_u32 v25, v26, 6, v25", "v_xor_b32 v26, v41, v16", "v_not_b32 v26, v26", "v_and_b32 v26, 1, v26", "v_lshl_add_u32 v25, v26, 4, v25")
    a("v_lshl_add_u32 v26, v15, 12, v24", "v_lshl_add_u32 v26, v16, 4, v26", "v_lshl_add_u32 v26, v41, 6, v26", f"v_add_u32 v26, {0x200000 - 512*64}, v26")
    a("v_cmp_gt_u32 vcc, 0x200, v41", "v_cndmask_b32 v25, v26, v25, vcc")
    a(f"buffer_load_ushort v18, v25, s[{R0}:{R0+3}], 0 offen sc1")
    srd(a, R2_, P_WS, 64, WS_IDX)
    a("v_ashrrev_i32 v22, 31, v19", "v_not_b32 v22, v22", "v_or_b32 v22, 0x80000000, v22", "v_xor_b32 v22, v19, v22", "v_and_b32 v22, 0xffff0000, v22")
    a(f"v_mul_f32 v22, {f32(-LOG2E)}, v22", "v_exp_f32 v22, v22", "v_add_f32 v22, 1.0, v22", "v_rcp_f32 v22, v22")
    a("v_cvt_pk_bf16_f32 v22, v22, v22", "v_lshlrev_b32 v22, 16, v22")
    a("v_and_b32 v14, 31, v1", "v_lshlrev_b32 v14, 4, v14")
    a("s_waitcnt vmcnt(0)")
    a("v_lshlrev_b32 v17, 16, v17", "v_lshlrev_b32 v18, 16, v18", "v_add_f32 v17, v17, v18", "v_cvt_pk_bf16_f32 v17, v17, v17")
    a("v_and_b32 v21, 0xffff0000, v17", "v_lshlrev_b32 v20, 16, v20")
    a(f"ds_write_b128 v14, v[20:23] offset:{C_SIDE}")
    a("s_cmp_lg_u32 s2, 0", "s_cbranch_scc1 KS_W9E")
    a(f"buffer_store_dword v12, v7, s[{R2_}:{R2_+3}], 0 offen")
    a("KS_W9E:")
    a("s_waitcnt lgkmcnt(0)")
    stamp2(a, 3)
    endwave(a)
    a("KS_B:")
    srd(a, R0, P_WS, PART_BYTES, WS_PART)
    a("v_bfe_u32 v16, v1, 2, 2", "v_lshl_add_u32 v16, v3, 3, v16", "v_mul_u32_u24 v16, 1152, v16", "v_and_b32 v17, 3, v1", "v_lshl_add_u32 v16, v17, 3, v16")
    a(f"s_lshl_b32 s{T0_}, s{S_WAVE}, 7", f"s_add_u32 s{T0_}, s{T0_}, {C_DOWN}", f"v_add_u32 v16, s{T0_}, v16")
    lds_wait(a, FL_DOWN, 17, "b4")
    WTD = 48
    for jt in range(4):
        a(f"ds_read_b64_tr_b16 v[{WTD+4*jt}:{WTD+4*jt+1}], v16 offset:{32*jt}")
        a(f"ds_read_b64_tr_b16 v[{WTD+4*jt+2}:{WTD+4*jt+3}], v16 offset:{32*jt + 4608}")
    a("v_and_b32 v16, 7, v2", "v_lshlrev_b32 v16, 6, v16", "v_lshl_add_u32 v16, v3, 4, v16")
    a(f"s_mul_i32 s{T0_}, s{S_BLK}, 18432", f"s_lshl_b32 s{T1_}, s{S_WAVE}, 11", f"s_add_u32 s{T0_}, s{T0_}, s{T1_}")
    a("v_lshlrev_b32 v17, 4, v1")
    a("s_waitcnt lgkmcnt(0)")
    a("s_barrier")
    a("s_barrier")
    a(f"ds_read_b128 v[20:23], v16 offset:{C_ACT}")
    a("s_waitcnt lgkmcnt(0)")
    for j in range(4):
        a(f"v_mfma_f32_16x16x32_bf16 v[{32+4*j}:{35+4*j}], v[20:23], v[{WTD+4*j}:{WTD+4*j+3}], 0")
    for j in (0, 2):
        for r in range(4): a(f"v_permlane32_swap_b32 v{32+4*j+r}, v{36+4*j+r}")
        for r in range(4): a(f"v_min_u32 v{32+4*j+r}, -2, v{32+4*j+r}")
        a(f"buffer_store_dwordx4 v[{32+4*j}:{35+4*j}], v17, s[{R0}:{R0+3}], s{T0_} offen offset:{512*j} sc1")
    stamp2(a, 8)
    a("s_waitcnt vmcnt(0)", "s_barrier")
    endwave(a)
    a("KS_G:")
    a(f"s_mov_b32 s{SP0}, 0x05040100", f"s_mov_b32 s{SP1}, 0x07060302")
    a("s_waitcnt vmcnt(0)")
    stamp(a, 5)
    if GTRIG:
        g_addr_setup(a, 46)
        lds_wait(a, {1: FL_PARAM, 2: FL_UF}[GTRIG], 10, {1: "nz", 2: "b4"}[GTRIG], sleep=2)
        g_loads(a, 46, range(4))
    stamp(a, 6)
    def transpose(src, dst):
        for j in range(4):
            for p in range(4):
                lo = src + 2 * (2 * p) + (j >> 1); hi = src + 2 * (2 * p + 1) + (j >> 1)
                a(f"v_perm_b32 v{dst+4*j+p}, v{hi}, v{lo}, s{SP0 + (j & 1)}")
    W = GW
    a(f"s_bitcmp1_b32 s{S_G}, 0", "s_cbranch_scc1 KS_G4")
    g_loads(a, 46, [4])
    a("KS_G4:")
    a(f"v_mov_b32 v6, s{S_G}", f"ds_write_b8 v6, v{VONE} offset:{FL_GISS}")
    a("s_waitcnt vmcnt(0)")
    stamp(a, 7)
    for ks in range(5): transpose(W + 16 * ks, W + 16 * ks - 16)
    GACC = 112
    a(f"s_lshl_b32 s{T0_}, s{S_ROLE}, 9", f"s_add_u32 s{T0_}, s{T0_}, {C_XR}", "v_and_b32 v6, 7, v2", f"v_lshl_add_u32 v7, v6, 4, s{T0_}", "v_lshl_add_u32 v7, v3, 7, v7")
    a(f"s_lshl_b32 s{T0_}, s{S_G}, 6", f"v_add_u32 v11, s{T0_}, v1")
    a("v_lshrrev_b32 v8, 5, v11", "v_and_b32 v9, 31, v11")
    a("v_and_b32 v10, 3, v9", "v_lshlrev_b32 v10, 9, v10")
    a("v_lshrrev_b32 v9, 2, v9", "v_lshl_add_u32 v10, v9, 4, v10")
    a("v_lshrrev_b32 v9, 2, v8", "v_lshl_add_u32 v10, v9, 8, v10")
    a("v_and_b32 v9, 3, v8", "v_lshl_add_u32 v10, v9, 2, v10")
    a("v_lshlrev_b32 v11, 1, v11")
    a(f"s_lshl_b32 s{T0_}, s{S_G}, 11", f"v_lshl_add_u32 v9, v1, 4, s{T0_}")
    lds_wait(a, C_SEL, 12, "nz", sleep=2)
    a("s_setprio 2")
    lds_wait(a, FL_XRDY, 12, "nz")
    stamp2(a, 1)
    for ks in range(5):
        a(f"ds_read_b128 v[{12+4*ks}:{15+4*ks}], v7 offset:{512*ks}")
    for ks in range(5):
        if ks == 4: a(f"s_bitcmp1_b32 s{S_G}, 0", "s_cbranch_scc1 KS_G5")
        a(f"s_waitcnt lgkmcnt({4-ks})")
        for j in range(4):
            c = "0" if ks == 0 else f"v[{GACC+4*j}:{GACC+4*j+3}]"
            a(f"v_mfma_f32_16x16x32_bf16 v[{GACC+4*j}:{GACC+4*j+3}], v[{12+4*ks}:{15+4*ks}], v[{32+16*ks+4*j}:{35+16*ks+4*j}], {c}")
    a("KS_G5:")
    a("s_mov_b32 exec_lo, -1", "s_mov_b32 exec_hi, 0")
    a.flush(6)
    for j in range(4):
        a(f"ds_write_b128 v9, v[{GACC+4*j}:{GACC+4*j+3}] offset:{C_RED + 512*j}")
    a("s_mov_b64 exec, -1")
    a("s_waitcnt lgkmcnt(0)", "s_barrier")
    stamp2(a, 2)
    for w in range(4):
        a(f"ds_read_b32 v{32+2*w}, v10 offset:{C_RED + 2048*w}")
        a(f"ds_read_b32 v{33+2*w}, v10 offset:{C_RED + 2048*w + 128}")
    a("s_waitcnt lgkmcnt(4)")
    a("v_pk_add_f32 v[32:33], v[32:33], v[34:35]")
    a("s_waitcnt lgkmcnt(0)")
    a("v_pk_add_f32 v[36:37], v[36:37], v[38:39]")
    a("v_pk_add_f32 v[32:33], v[32:33], v[36:37]")
    a("v_cvt_pk_bf16_f32 v34, v32, v33")
    unpack(a, 32, 34)
    a(f"v_mul_f32 v34, {f32(-LOG2E)}, v32", "v_exp_f32 v34, v34", "v_add_f32 v34, 1.0, v34", "v_rcp_f32 v34, v34", "v_mul_f32 v34, v32, v34")
    a("v_cvt_pk_bf16_f32 v34, v34, v34", "v_lshlrev_b32 v34, 16, v34")
    a("v_mul_f32 v34, v34, v33", "v_cvt_pk_bf16_f32 v34, v34, v34")
    a(f"ds_write_b16 v11, v34 offset:{C_ACT}")
    a("s_waitcnt lgkmcnt(0)")
    a("s_barrier")
    a("s_branch KS_P2")
    a("KS_P:")
    a("s_waitcnt lgkmcnt(0)")
    a("s_barrier")
    a("s_barrier")
    a("s_setprio 2")
    a("KS_P2:")
    a(f"s_sub_u32 s{S_G}, s{S_WAVE}, 10")
    srd(a, R0, P_WS, PART_BYTES, WS_PART)
    srd(a, R1, P_OUT, XBYTES)
    a("v_lshrrev_b32 v8, 3, v1", "v_mul_u32_u24 v8, 18432, v8", "v_and_b32 v9, 7, v1", "v_lshl_add_u32 v8, v9, 4, v8")
    a(f"s_mul_i32 s{T0_}, s{S_G}, {24*18432}", f"s_lshl_b32 s{T1_}, s{S_BLK}, 7", f"s_add_u32 s{T0_}, s{T0_}, s{T1_}", f"s_add_u32 s{T1_}, s{T0_}, {8*18432}", f"s_add_u32 s{T2_}, s{T0_}, {16*18432}")
    a(f"s_lshl_b32 s{T3_}, s{S_G}, 7", f"v_lshl_add_u32 v6, v9, 4, s{T3_}", "v_lshl_add_u32 v6, v3, 2, v6")
    a(f"v_lshlrev_b32 v12, 2, v1", f"v_add_u32 v12, {C_RED2}, v12", "v_lshlrev_b32 v13, 4, v1")
    a("s_barrier")
    stamp2(a, 3)
    zpoll(a, [f"buffer_load_dwordx4 v[{32+4*k}:{35+4*k}], v8, s[{R0}:{R0+3}], s{T0_+k} offen sc1" for k in range(3)], list(range(32, 44)), 1)
    stamp2(a, 4)
    a("v_pk_add_f32 v[32:33], v[32:33], v[36:37]", "v_pk_add_f32 v[34:35], v[34:35], v[38:39]")
    a("v_pk_add_f32 v[32:33], v[32:33], v[40:41]", "v_pk_add_f32 v[34:35], v[34:35], v[42:43]")
    for r in range(4): a(f"v_add_f32_dpp v{32+r}, v{32+r}, v{32+r} row_ror:8 {DPPM}")
    a("v_permlane16_swap_b32 v32, v33", "v_permlane16_swap_b32 v34, v35")
    a("v_add_f32 v32, v32, v33", "v_add_f32 v34, v34, v35")
    a("v_permlane32_swap_b32 v32, v34")
    a("v_add_f32 v32, v32, v34")
    a(f"ds_write_b32 v6, v32 offset:{C_RED2}")
    a("s_waitcnt lgkmcnt(0)", "s_barrier")
    a(f"s_cmp_lg_u32 s{S_G}, 0", "s_cbranch_scc1 KS_PEND")
    a("s_mov_b32 exec_lo, -1", "s_mov_b32 exec_hi, 0")
    for g in range(3):
        a(f"ds_read2_b32 v[{32+2*g}:{33+2*g}], v12 offset0:{64*g} offset1:{64*g + 32}")
    a(f"ds_read_b128 v[40:43], v13 offset:{C_SIDE}")
    a("s_waitcnt lgkmcnt(0)")
    a("v_pk_add_f32 v[32:33], v[32:33], v[34:35]", "v_pk_add_f32 v[32:33], v[32:33], v[36:37]", "v_add_f32 v8, v32, v33")
    a("v_cvt_pk_bf16_f32 v8, v8, v8", "v_lshlrev_b32 v8, 16, v8")
    a("v_mul_f32 v8, v8, v42", "v_cvt_pk_bf16_f32 v8, v8, v8", "v_lshlrev_b32 v8, 16, v8")
    a("v_add_f32 v8, v8, v40", "v_cvt_pk_bf16_f32 v8, v8, v8", "v_lshlrev_b32 v8, 16, v8")
    a("v_add_f32 v8, v8, v41", "v_cvt_pk_bf16_f32 v8, v8, v8")
    a(f"buffer_store_short v8, v43, s[{R1}:{R1+3}], 0 offen")
    a("KS_PEND:")
    stamp_end(a)
    a("KS_ABORT:")
    a("KS_END:")
    a("s_endpgm")
    return f""".amdhsa_kernel {label}
  .amdhsa_next_free_vgpr 128
  .amdhsa_next_free_sgpr {NSGPR}
  .amdhsa_accum_offset 128
  .amdhsa_group_segment_fixed_size 0
  .amdhsa_kernarg_size 136
  .amdhsa_user_sgpr_count 2
  .amdhsa_user_sgpr_kernarg_segment_ptr 1
  .amdhsa_system_sgpr_workgroup_id_x 1
  .amdhsa_float_denorm_mode_32 3
.end_amdhsa_kernel
"""

def main():
    hdr = open(f"/code/{NAME}.s.ref").read().split("; Override launch geometry")[0]
    out = hdr
    out += f"; @launch grid=(256,1,1) block=(1024,1,1) lds={LDS_BYTES}\n"
    out += '.amdgcn_target "amdgcn-amd-amdhsa--gfx950"\n.text\n'
    a = Asm()
    d = gen(a)
    out += a.text()
    out += '.section .rodata,"a"\n.p2align 6\n' + d
    path = sys.argv[1] if len(sys.argv) > 1 else "ks.s"
    open(path, "w").write(out)
    print("wrote", path, len(out))

if __name__ == "__main__":
    main()
```

```python
import sys
K = "sequential_preLN__ssm_conv_s4__moe_arch_mod__prompt_kernel"
A = lambda i: f"v_add_f32 v{40+i%8}, v2, v3"
D = lambda i: f"ds_read_b128 v[{48+4*(i%4)}:{51+4*(i%4)}], v6"
T = lambda i: f"ds_read_b64_tr_b16 v[{48+2*(i%8)}:{49+2*(i%8)}], v5"
R = lambda i: f"ds_read2_b32 v[{48+2*(i%8)}:{49+2*(i%8)}], v7 offset0:0 offset1:1"
B = lambda i: f"ds_read_b32 v{48+(i%8)}, v7"
S = lambda i: f"s_add_u32 s30, s30, 1"
W = lambda i: f"s_waitcnt lgkmcnt(8)"
X = lambda i: f"ds_write_b128 v6, v[72:75]"
M = None
PAT = {"A": A, "D": D, "T": T, "R": R, "S": S, "W": W, "B": B, "X": X}
TESTS = ["M", "MD", "MDA", "MDAA", "MDAAA", "MT", "MTA", "MTAA", "MTT", "MTTA", "MTTAA", "MR", "MRA", "MRAA", "MB", "MBAA", "MBBAA", "MSSAA", "MSSSSAA", "MWAA", "MWDA", "MWDAA", "MMD", "MMDAAAA", "MMDAAA", "MMDTTAA", "MMMMX", "MMMMXAAAAAAAA", "D", "DA", "DAA", "DAAAA", "A", "TA", "TAA", "TTAA", "MAAA"]
def gen(nw):
    s = []; a = s.append
    a(f"; @launch grid=(1,1,1) block=({64*nw},1,1) lds=4096")
    a('.amdgcn_target "amdgcn-amd-amdhsa--gfx950"')
    a(".text"); a(f".globl {K}"); a(".p2align 8"); a(f".type {K},@function"); a(f"{K}:")
    a("s_cmp_ge_u32 s2, 1"); a("s_cbranch_scc1 L_end")
    a("s_load_dwordx2 s[4:5], s[0:1], 128")
    a("s_waitcnt lgkmcnt(0)")
    a("s_mov_b32 s8, s4"); a("s_mov_b32 s9, s5"); a("s_mov_b32 s10, 0x10000000"); a("s_mov_b32 s11, 0x20000")
    a("v_and_b32 v6, 63, v0"); a("v_lshlrev_b32 v7, 2, v6"); a("v_lshlrev_b32 v6, 4, v6")
    a("v_lshlrev_b32 v5, 1, v7")
    for r in list(range(1, 5)) + list(range(8, 100)): a(f"v_mov_b32 v{r}, 1.0")
    for p, n in enumerate(TESTS):
        a("s_barrier")
        a("s_memtime s[20:21]"); a("s_waitcnt lgkmcnt(0)")
        a("s_mov_b32 s12, 0")
        a(f"L_t{p}:")
        c = 0
        for i in range(16):
            for ch in n:
                if ch == "M": a(f"v_mfma_f32_16x16x32_f16 v[{64+4*(c%2)}:{67+4*(c%2)}], v[8:11], v[12:15], v[{64+4*(c%2)}:{67+4*(c%2)}]")
                else: a(PAT[ch](c))
                c += 1
        a("s_add_u32 s12, s12, 1"); a("s_cmp_lt_u32 s12, 32"); a(f"s_cbranch_scc1 L_t{p}")
        a("s_waitcnt lgkmcnt(0)"); a("s_nop 15"); a("s_barrier")
        a("s_memtime s[22:23]"); a("s_waitcnt lgkmcnt(0)")
        a("s_sub_u32 s24, s22, s20")
        a("v_mov_b32 v31, s24")
        a(f"v_mov_b32 v29, {p*4}")
        a("buffer_store_dword v31, v29, s[8:11], 0 offen")
        a("s_waitcnt vmcnt(0)")
    a("L_end:")
    a("s_endpgm")
    a('.section .rodata,"a"'); a(".p2align 6"); a(f".amdhsa_kernel {K}")
    a(".amdhsa_next_free_vgpr 128"); a(".amdhsa_next_free_sgpr 40"); a(".amdhsa_accum_offset 128"); a(".amdhsa_group_segment_fixed_size 0")
    a(".amdhsa_kernarg_size 136"); a(".amdhsa_user_sgpr_count 2"); a(".amdhsa_user_sgpr_kernarg_segment_ptr 1"); a(".amdhsa_system_sgpr_workgroup_id_x 1")
    a(".end_amdhsa_kernel")
    return "\n".join(s) + "\n"
NWS = (4, 8, 12)
if __name__ == "__main__":
    if len(sys.argv) > 1 and sys.argv[1] == "gen":
        for nw in NWS: open(f"mfw{nw}.s", "w").write(gen(nw))
    else:
        sys.path.insert(0, "dev")
        import numpy as np
        from harness import *
        res = {}
        for nw in NWS:
            r = Runner(f"mfw{nw}.s", [np.zeros(16, np.uint16) for _ in range(14)])
            r.run(); r.run()
            res[nw] = r.get_ws(0, np.uint32, (len(TESTS),)) / (16 * 32 * nw / 4)
            del r
        print("cycles per pattern per SIMD; columns: 1,2,3 waves/SIMD")
        for p, n in enumerate(TESTS):
            print(f"{n:14s}", " ".join(f"{res[nw][p]:6.2f}" for nw in NWS))
```

```python
import sys, struct, math, os
sys.path.insert(0, "gen")
from asmlib import Asm

NAME = "sequential_preLN__ssm_conv_s4__moe_arch_mod__prompt"
L, D, N, F = 2048, 576, 128, 4608
XBYTES = L * D * 2
WS_UT = 0x000000
WS_X2 = 0x300000
WS_ZB1 = 0x600000
WS_ZB2 = 0x800000
WS_KEYS = 0x840000
WS_PART = 0x850000
WS_CLR, CLR_WG = 0x600000, 18560
CLRP_WG = 23744
WS_FLAG1 = 0xB00000
TAGM = 0x00070007
WS_IDX = 0xB10000
WS_KT = 0xB20000
WS_DBG = 0xC00000
WS_STAMP = 0x8000000
PART_BYTES = 144 * 4608 * 4
C_FL, C_CAND, C_SEL, C_KEY, C_PAR, C_ACT, C_SIDE, C_RED2 = 0, 256, 768, 800, 832, 1024, 1536, 2048
C_U, U_SIZE = 3072, 4672
C_LNB = C_U + 3 * U_SIZE
C_XR = C_LNB
C_RED = C_LNB + 9280
G_BASE, G_SIZE = 35840, 36672
C_STG = G_BASE + 2 * G_SIZE + 36864
LDS_BYTES = C_STG + 8192
FL_LN1, FL_LNACK, FL_KCNT, FL_UF, FL_ZF, FL_KACK, FL_ROWSOK, FL_XRDY, FL_PARAM, FL_DOWN, FL_ZDONE = 0, 8, 12, 16, 20, 24, 28, 32, 36, 40, 48
FL_G = 64
FL_S6 = 160
FL_F2CNT, FL_INIT, FL_CLROK, FL_GISS, FL_KSEEN, FL_UTOK, FL_PRE, FL_NONCE = 176, 180, 188, 192, 196, 200, 208, 224
KG_ROW = 544
KG_T = [0, 16 * KG_ROW, 32 * KG_ROW, 41 * KG_ROW]
R_WS3 = 0
R_WS5 = R_WS3 + 193 * 16
R_WS7 = R_WS5 + 193 * 16
R_WS9 = R_WS7 + 128 * 16
R_RED = 10752
R2 = 31232
T_TAB = R2
T_DRE = R2 + 1296
T_DRO = T_DRE + 1280 + 64
T_G3 = T_DRO + 1280
T_G5 = T_G3 + 256
T_G7E = T_G5 + 256
T_G7O = T_G7E + 192
T_G9E = T_G7O + 192
T_G9O = T_G9E + 192
assert T_G9O + 192 <= G_SIZE and R_WS9 + 129 * 16 <= R_RED and R_RED + 13 * 1024 <= R2 and 57 * KG_ROW <= R2
IDX_ZERO, IDX_DUMMY = 641, 642
C_DOWN = G_BASE + 2 * G_SIZE

def f32(x): return "0x%08x" % struct.unpack("<I", struct.pack("<f", x))[0]
def f32v(x): return struct.unpack("<f", struct.pack("<f", x))[0]
LOG2E = math.log2(math.e)
LOG2E_HI = f32v(LOG2E); LOG2E_LO = LOG2E - LOG2E_HI
INV2PI = 1.0 / (2 * math.pi)
INV2PI_HI = f32v(INV2PI); INV2PI_LO = INV2PI - INV2PI_HI
DPPM = "row_mask:0xf bank_mask:0xf"
ENV = lambda k, d: int(os.environ.get(k, str(d)))
STAMP = ENV("STAMP", 0)
DBG = ENV("DBG", 0)
GUARD = 1 << 19
XP = ENV("XP", 0)
KOFF = ENV("KOFF", 1)
MOD = lambda k, d="sc1": os.environ.get(k, d).replace("_", " ")

P_X, P_ARE, P_LDT, P_DSK, P_WR, P_GATE, P_UP, P_DOWN, P_OUT, P_DBG, P_WS = 4, 6, 18, 20, 24, 26, 28, 30, 32, 34, 36
S_WAVE, S_GUARD, S_XC, S_I = 38, 39, 40, 41
R0, R1, R2_, R3, R4 = 64, 68, 72, 76, 80
S_ONES, S_GB, S_ROLE, S_G, S_CH, S_BLK, S_B2 = 84, 85, 86, 87, 88, 89, 90
T0_, T1_, T2_, T3_, T4_, T5_ = 92, 93, 94, 95, 96, 97
SP0, SP1 = 98, 99
NSGPR = 100

def srd(a, d, base, nbytes, off=0):
    if off:
        a(f"s_add_u32 s{d}, s{base}, {hex(off)}", f"s_addc_u32 s{d+1}, s{base+1}, 0")
    else:
        a(f"s_mov_b32 s{d}, s{base}", f"s_mov_b32 s{d+1}, s{base+1}")
    a(f"s_mov_b32 s{d+2}, {hex(nbytes)}", f"s_mov_b32 s{d+3}, 0x20000")

def red16(a, op, v):
    for r in (8, 4, 2, 1):
        a(f"{op}_dpp v{v}, v{v}, v{v} row_ror:{r} {DPPM}")
def red32(a, op, v, t):
    red16(a, op, v)
    a(f"v_mov_b32 v{t}, v{v}", f"v_permlane16_swap_b32 v{v}, v{t}", f"{op} v{v}, v{v}, v{t}")
def red64x2(a, op1, v1, t1, op2, v2, t2):
    for r in (8, 4, 2, 1):
        a(f"{op1}_dpp v{v1}, v{v1}, v{v1} row_ror:{r} {DPPM}", f"{op2}_dpp v{v2}, v{v2}, v{v2} row_ror:{r} {DPPM}")
    for ins in ("v_permlane16_swap_b32", "v_permlane32_swap_b32"):
        a(f"v_mov_b32 v{t1}, v{v1}", f"v_mov_b32 v{t2}, v{v2}", f"{ins} v{v1}, v{t1}", f"{ins} v{v2}, v{t2}")
        a(f"{op1} v{v1}, v{v1}, v{t1}", f"{op2} v{v2}, v{v2}, v{t2}")

def stamp_begin(a):
    if not STAMP: return
    a("s_memrealtime s[44:45]")
    for i in range(1, 9): a(f"s_mov_b32 s{44+2*i}, 0")
def cstamp(a, i):
    if STAMP == 9: a(f"s_memtime s[{44+2*i}:{45+2*i}]")
def kstamp(a, i):
    if STAMP == 7: a(f"s_memtime s[{44+2*i}:{45+2*i}]")
def stamp(a, i):
    if STAMP == 7 and i == 1: return kstamp(a, 1)
    if not STAMP or STAMP in (7, 9): return
    assert 1 <= i <= 8
    a(f"{'s_memtime' if STAMP == 8 else 's_memrealtime'} s[{44+2*i}:{45+2*i}]")
def stamp2(a, i):
    if STAMP in (2, 3): stamp(a, i)
def stamp_end(a):
    if not STAMP: return
    a("s_waitcnt vmcnt(0) lgkmcnt(0)")
    a("s_memrealtime s[62:63]")
    a(f"s_lshl_b32 s43, s2, 4", f"s_add_u32 s43, s43, s{S_WAVE}", "s_lshl_b32 s43, s43, 6", f"s_add_u32 s43, s43, {hex(WS_STAMP)}")
    a("s_mov_b64 exec, 1")
    a("s_waitcnt lgkmcnt(0)")
    a("v_mov_b32 v1, s43")
    for i in range(10): a(f"v_mov_b32 v{4+i}, s{44+2*i}")
    a(f"global_store_dwordx4 v1, v[4:7], s[{P_WS}:{P_WS+1}]")
    a(f"global_store_dwordx4 v1, v[8:11], s[{P_WS}:{P_WS+1}] offset:16")
    a(f"global_store_dwordx2 v1, v[12:13], s[{P_WS}:{P_WS+1}] offset:32")
def endwave(a):
    stamp_end(a)
    a("s_endpgm")

def unpack(a, dst, src):
    a(f"v_lshlrev_b32 v{dst}, 16, v{src}", f"v_and_b32 v{dst+1}, 0xffff0000, v{src}")

def ln_stats(a, X, m2, rinv2, t0, t1, t2):
    a(f"v_pk_add_f32 v[{t0}:{t0+1}], v[{X}:{X+1}], v[{X+2}:{X+3}]")
    a(f"v_pk_add_f32 v[{t1}:{t1+1}], v[{X+4}:{X+5}], v[{X+6}:{X+7}]")
    for j in range(4, 9):
        t = t0 if j % 2 == 0 else t1
        a(f"v_pk_add_f32 v[{t}:{t+1}], v[{t}:{t+1}], v[{X+2*j}:{X+2*j+1}]")
    a(f"v_pk_add_f32 v[{t0}:{t0+1}], v[{t0}:{t0+1}], v[{t1}:{t1+1}]")
    a(f"v_add_f32 v{t0}, v{t0}, v{t0+1}")
    red32(a, "v_add_f32", t0, t1)
    a(f"v_mul_f32 v{t2}, {f32(1.0/576)}, v{t0}")
    a(f"v_mov_b32 v{t2+1}, v{t2}")
    a(f"v_cvt_pk_bf16_f32 v{m2}, v{t2}, v{t2}")
    a(f"v_and_b32 v{m2}, 0xffff0000, v{m2}", f"v_mov_b32 v{m2+1}, v{m2}")
    first = {t0: True, t1: True}
    for j in range(9):
        t = t0 if j % 2 == 0 else t1
        a(f"v_pk_add_f32 v[{rinv2}:{rinv2+1}], v[{X+2*j}:{X+2*j+1}], v[{t2}:{t2+1}] neg_lo:[0,1] neg_hi:[0,1]")
        if first[t]:
            a(f"v_pk_mul_f32 v[{t}:{t+1}], v[{rinv2}:{rinv2+1}], v[{rinv2}:{rinv2+1}]"); first[t] = False
        else:
            a(f"v_pk_fma_f32 v[{t}:{t+1}], v[{rinv2}:{rinv2+1}], v[{rinv2}:{rinv2+1}], v[{t}:{t+1}]")
    a(f"v_pk_add_f32 v[{t0}:{t0+1}], v[{t0}:{t0+1}], v[{t1}:{t1+1}]")
    a(f"v_add_f32 v{t0}, v{t0}, v{t0+1}")
    red32(a, "v_add_f32", t0, t1)
    a(f"v_mul_f32 v{t0}, {f32(1.0/576)}, v{t0}")
    a(f"v_cvt_pk_bf16_f32 v{t0}, v{t0}, v{t0}", f"v_and_b32 v{t0}, 0xffff0000, v{t0}")
    a(f"v_add_f32 v{t0}, {f32(1e-5)}, v{t0}")
    a(f"v_cvt_pk_bf16_f32 v{t0}, v{t0}, v{t0}", f"v_and_b32 v{t0}, 0xffff0000, v{t0}")
    a(f"v_sqrt_f32 v{t0}, v{t0}")
    a(f"v_cvt_pk_bf16_f32 v{t0}, v{t0}, v{t0}", f"v_and_b32 v{t0}, 0xffff0000, v{t0}")
    a(f"v_rcp_f32 v{rinv2}, v{t0}")
    a(f"v_mov_b32 v{rinv2+1}, v{rinv2}")

def ln_apply_pair(a, x, m2, rinv2, t, P):
    a(f"v_pk_add_f32 v[{t}:{t+1}], v[{x}:{x+1}], v[{m2}:{m2+1}] neg_lo:[0,1] neg_hi:[0,1]")
    a(f"v_cvt_pk_bf16_f32 v{P}, v{t}, v{t+1}")
    unpack(a, t, P)
    a(f"v_pk_mul_f32 v[{t}:{t+1}], v[{t}:{t+1}], v[{rinv2}:{rinv2+1}]")
    a(f"v_cvt_pk_bf16_f32 v{P}, v{t}, v{t+1}")
    unpack(a, t, P)

VZ, VONE = 4, 5
_lbl = [0]
def newlabel(p="L"):
    _lbl[0] += 1
    return f"{p}_{_lbl[0]}"
def guard(a):
    a(f"s_sub_u32 s{S_GUARD}, s{S_GUARD}, 1", "s_cbranch_scc1 KS_ABORT")
def lds_wait(a, off, t, kind="b4", addr=VZ, sleep=0):
    l = newlabel("W")
    a(f"{l}:")
    if sleep: a(f"s_sleep {sleep}")
    if kind == "b8":
        a(f"ds_read_b64 v[{t}:{t+1}], v{addr} offset:{off}")
    else:
        a(f"ds_read_{'u8' if kind == 'u8' else 'b32'} v{t}, v{addr} offset:{off}")
    guard(a)
    a("s_waitcnt lgkmcnt(0)")
    if kind == "b8": a(f"v_and_b32 v{t}, v{t}, v{t+1}")
    if kind in ("nz", "u8"): a(f"v_cmp_eq_u32 vcc, 0, v{t}")
    else: a(f"v_cmp_ne_u32 vcc, s{S_ONES}, v{t}")
    a(f"s_cbranch_vccnz {l}")

def zpoll(a, loads, regs, sleep):
    lp = newlabel("ZP"); l1 = newlabel("ZPE")
    a(f"s_branch {l1}")
    a(f"{lp}:")
    a(f"s_sleep {sleep}")
    a(f"{l1}:")
    for l in loads: a(l)
    guard(a)
    a("s_waitcnt vmcnt(0)")
    a(f"v_max3_u32 v44, v{regs[0]}, v{regs[1]}, v{regs[2]}")
    r = regs[3:]
    while len(r) >= 2: a(f"v_max3_u32 v44, v44, v{r[0]}, v{r[1]}"); r = r[2:]
    if r: a(f"v_max_u32 v44, v44, v{r[0]}")
    a("v_cmp_eq_u32 vcc, -1, v44", f"s_cbranch_vccnz {lp}")

class Pool:
    def __init__(self, regs): self.free = list(regs)
    def get(self): return self.free.pop(0)
    def put(self, r): self.free.append(r)
def ce_inlane(a, x, i, j, pool):
    t = pool.get()
    a(f"v_max_u32 v{t}, v{x[i]}, v{x[j]}", f"v_min_u32 v{x[j]}, v{x[i]}, v{x[j]}")
    pool.put(x[i]); x[i] = t
def clean8(a, x, pool, DE, rev=False):
    t = [pool.get() for _ in range(4)]
    for i in range(4):
        a(f"v_mov_b32_dpp v{t[i]}, v{x[3-i if rev else i]} quad_perm:[1,0,3,2] {DPPM}")
    for i in range(4):
        a(f"v_med3_u32 v{t[i]}, v{x[i]}, v{t[i]}, v{DE}")
    for i in range(4): pool.put(x[i]); x[i] = t[i]
    for (i, j) in ((0, 2), (1, 3), (0, 1), (2, 3)): ce_inlane(a, x, i, j, pool)
def merge_mirror(a, x, pool, M):
    c = [pool.get() for _ in range(4)]
    for i in range(4):
        a(f"v_max_u32_dpp v{c[i]}, v{x[3-i]}, v{x[i]} {M} {DPPM}")
    for i in range(4): pool.put(x[i]); x[i] = c[i]
def merge_pair(a, x, y, pool):
    for i in range(4):
        a(f"v_max_u32_dpp v{x[i]}, v{y[3-i]}, v{x[i]} quad_perm:[1,0,3,2] {DPPM}")
    for i in range(4): pool.put(y[i])
MIRRORS = ("quad_perm:[3,2,1,0]", "row_half_mirror", "row_mirror")

GW = 48
def g_addr_setup(a, A):
    a(f"s_sub_u32 s{S_G}, s{S_WAVE}, 12")
    a(f"s_mul_i32 s{T0_}, s{S_G}, 9", f"s_add_u32 s{T0_}, s{T0_}, 1", f"s_lshr_b32 s{S_ROLE}, s{T0_}, 1")
    a(f"s_lshl_b32 s{T0_}, s{S_ROLE}, 5", f"v_lshl_add_u32 v7, v3, 3, s{T0_}", "v_mul_u32_u24 v7, 9216, v7")
    a("v_and_b32 v6, 7, v2", "v_lshl_add_u32 v7, v6, 3, v7")
    a(f"s_lshl_b32 s{T0_}, s{S_BLK}, 6", f"v_add_u32 v7, s{T0_}, v7")
    a("v_cmp_gt_u32 vcc, 8, v2")
    a(f"s_mov_b32 s{R3}, 9216", f"s_mov_b32 s{R3+1}, 0", f"s_mov_b32 s{R3+2}, {9216*25}", f"s_mov_b32 s{R3+3}, 0")
    a(f"v_mov_b32 v{A}, s{P_GATE}", f"v_mov_b32 v{A+1}, s{P_GATE+1}", f"v_mov_b32 v6, s{P_UP}")
    a(f"v_cndmask_b32 v{A}, v6, v{A}, vcc", f"v_mov_b32 v6, s{P_UP+1}", f"v_cndmask_b32 v{A+1}, v6, v{A+1}, vcc")
    a(f"v_add_co_u32 v{A}, vcc, v{A}, v7", f"v_addc_co_u32 v{A+1}, vcc, 0, v{A+1}, vcc")
def g_loads(a, A, kss):
    for ks in kss:
        for r in range(8):
            d = GW + 16 * ks + 2 * r
            a(f"global_load_dwordx2 v[{d}:{d+1}], v[{A}:{A+1}], off" + (" nt" if ENV("GNT", 0) else ""))
            if not (ks == 4 and r == 7):
                a(f"v_lshl_add_u64 v[{A}:{A+1}], v[{A}:{A+1}], 0, s[{R3 if r < 7 else R3+2}:{R3+1 if r < 7 else R3+3}]")
GTRIG = ENV("GTRIG", 2)
PF = ENV("PF", 1)
NL, NN, NC = ENV("NL", 3), ENV("NN", 6), ENV("NC", 3)
NE = ENV("NE", 0)
PF0 = 16 * NL + 16 * NE
PF1 = PF0 + 8 * NN + 8 * NC
assert PF1 <= 166
PF2 = ENV("PF2", 166); PFD = ENV("PFD", 42); PFD2 = ENV("PFD2", 81)
GT = eval(os.environ.get("GT", "[2,2,6,6]")); DT = ENV("DT", 3)
def pf_lane(a, v, t):
    a(f"v_mul_u32_u24 v{v}, 57, v1", f"v_lshrrev_b32 v{v}, 9, v{v}", f"v_mul_u32_u24 v{t}, 9, v{v}", f"v_sub_u32 v{t}, v1, v{t}", f"v_mul_u32_u24 v{v}, 9216, v{v}", f"v_lshl_add_u32 v{v}, v{t}, 7, v{v}")
def pf_gu_setup(a, sidx, R=R2_, tb=T3_, tt=T4_):
    a(f"s_bitcmp1_b32 s{sidx}, 0", f"s_cselect_b32 s{R}, s{P_UP}, s{P_GATE}", f"s_cselect_b32 s{R+1}, s{P_UP+1}, s{P_GATE+1}")
    a(f"s_mov_b32 s{R+2}, {hex(D*F*2)}", f"s_mov_b32 s{R+3}, 0x20000")
    a(f"s_lshr_b32 s{tb}, s{sidx}, 1", f"s_mul_i32 s{tb}, s{tb}, {7*9216}", f"s_mul_i32 s{tt}, s{S_XC}, 1152", f"s_add_u32 s{tb}, s{tb}, s{tt}")
def pf_gu(a, v, sidx, nw, u0, u1, dst, done):
    assert u0 % 2 == 0 and nw % 2 == 0
    pf_gu_setup(a, sidx)
    k = 0
    while u0 + k * nw < u1:
        if u0 + (k + 1) * nw > u1: a(f"s_cmp_ge_u32 s{sidx}, {u1 - u0 - k*nw}", f"s_cbranch_scc1 {done}")
        a(f"s_add_u32 s{T4_}, s{T3_}, {(u0 + k*nw)//2*7*9216}")
        a(f"buffer_load_dword v{dst}, v{v}, s[{R2_}:{R2_+3}], s{T4_} offen")
        k += 1
def pf_down(a, sidx, nw, u0, u1, v, dst, done, R=R2_):
    srd(a, R, P_DOWN, D * F * 2)
    a(f"s_lshl_b32 s{T3_}, s{sidx}, 13", f"s_mul_i32 s{T4_}, s{S_XC}, {576*1152}", f"s_add_u32 s{T3_}, s{T3_}, s{T4_}", f"v_lshlrev_b32 v{v}, 7, v1")
    k = 0
    while u0 + k * nw < u1:
        if u0 + (k + 1) * nw > u1: a(f"s_cmp_ge_u32 s{sidx}, {u1 - u0 - k*nw}", f"s_cbranch_scc1 {done}")
        a(f"s_add_u32 s{T4_}, s{T3_}, {(u0 + k*nw)*8192}")
        a(f"buffer_load_dword v{dst}, v{v}, s[{R}:{R+3}], s{T4_} offen")
        k += 1
def gen_ln1(a):
    LW, TB = T5_, S_CH
    X, RAW = 8, 26
    a(f"s_sub_u32 s{T0_}, s{S_I}, 8", f"s_and_b32 s{TB}, s{T0_}, 7", f"s_lshr_b32 s{T0_}, s{T0_}, 3", f"s_lshl_b32 s{T0_}, s{T0_}, 4", f"s_add_u32 s{TB}, s{TB}, s{T0_}")
    a(f"s_and_b32 s{T0_}, s{S_XC}, 1", f"s_lshl_b32 s{T0_}, s{T0_}, 3", f"s_add_u32 s{TB}, s{TB}, s{T0_}", f"s_lshr_b32 s{T0_}, s{S_XC}, 1", f"s_lshl_b32 s{T0_}, s{T0_}, 5", f"s_add_u32 s{TB}, s{TB}, s{T0_}")
    a("v_lshrrev_b32 v36, 5, v1", "v_and_b32 v37, 31, v1")
    a("v_mul_u32_u24 v38, 1152, v36", "v_lshl_add_u32 v39, v37, 2, v38", "v_lshl_add_u32 v38, v37, 4, v38")
    a(f"s_mul_i32 s{T1_}, s{TB}, 18432", f"s_mul_i32 s{T2_}, s{LW}, 2304", f"s_add_u32 s{T1_}, s{T1_}, s{T2_}")
    a("s_waitcnt lgkmcnt(0)")
    stamp(a, 1)
    srd(a, R0, P_X, XBYTES)
    a(f"buffer_load_dwordx4 v[{RAW}:{RAW+3}], v38, s[{R0}:{R0+3}], s{T1_} offen")
    a(f"buffer_load_dwordx4 v[{RAW+4}:{RAW+7}], v38, s[{R0}:{R0+3}], s{T1_} offen offset:512")
    a(f"buffer_load_dword v{RAW+8}, v39, s[{R0}:{R0+3}], s{T1_} offen offset:1024")
    a("s_barrier")
    a(f"s_lshr_b32 s{T1_}, s{LW}, 2", f"s_lshl_b32 s{T1_}, s{T1_}, 6", f"s_add_u32 s{T2_}, s{T2_}, s{T1_}", f"s_add_u32 s{T2_}, s{T2_}, {C_LNB}")
    a(f"v_lshl_add_u32 v35, v37, 1, v36")
    a(f"s_mov_b32 s{SP0}, 0x05040100", f"s_mov_b32 s{SP1}, 0x07060302")
    def waits(n):
        for (c, js) in ((2, range(0, 4)), (1, range(4, 8)), (0, range(8, 9))):
            a(f"s_waitcnt vmcnt({c+n})")
            for j in js: unpack(a, X + 2 * j, RAW + j)
    l1 = newlabel("LN1A"); l2 = newlabel("LN1B")
    if NL:
        LW0 = ENV("NLW", 4)
        pf_lane(a, 46, 47)
        a(f"s_sub_u32 s{T1_}, s{LW}, {LW0}", f"s_and_b32 s{T1_}, s{T1_}, 7", f"s_lshl_b32 s{T3_}, s{T1_}, 4", f"s_add_u32 s{T3_}, s{T3_}, s{S_I}", f"s_sub_u32 s{T3_}, s{T3_}, 8")
        pf_gu_setup(a, T3_, R3, T4_, T0_)
    if NL and ENV("NLE", 0):
        a(f"s_cmp_lt_u32 s{T1_}, {NL}", f"s_cselect_b32 s{T4_}, s{T4_}, {hex(D*F*2)}")
        a(f"buffer_load_dword v47, v46, s[{R3}:{R3+3}], s{T4_} offen")
        waits(1)
    else:
        waits(0)
    if NL and not ENV("NLE", 0):
        a(f"s_cmp_ge_u32 s{T1_}, {NL}", f"s_cbranch_scc1 {l1}")
        a(f"buffer_load_dword v47, v46, s[{R3}:{R3+3}], s{T4_} offen")
        a(f"{l1}:")
    stamp(a, 2)
    a(f"v_lshl_add_u32 v6, v35, 4, s{T2_}", f"v_lshl_add_u32 v7, v35, 2, s{T2_}")
    a(f"v_mul_u32_u24 v35, 0x20202, v36", "v_lshl_add_u32 v35, v36, 25, v35", "v_add_u32 v35, 0x05040100, v35")
    ln_stats(a, X, 36, 38, 40, 42, 44)
    for j in range(9):
        if j == ENV("DSAMP", 3): a("v_and_b32 v59, 3, v1", "v_lshlrev_b32 v59, 2, v59", f"global_load_dword v58, v59, s[{P_DBG}:{P_DBG+1}] sc1")
        ln_apply_pair(a, X + 2 * j, 36, 38, 40, 42)
        a(f"v_cvt_pk_f16_f32 v{RAW+j}, v40, v41")
        if j in (3, 7):
            P = RAW + j - 3; O = X + 2 * (j - 3)
            a(f"v_permlane32_swap_b32 v{P}, v{P+2}", f"v_permlane32_swap_b32 v{P+1}, v{P+3}")
            a(f"v_perm_b32 v{O}, v{P+2}, v{P}, s{SP0}", f"v_perm_b32 v{O+1}, v{P+2}, v{P}, s{SP1}")
            a(f"v_perm_b32 v{O+2}, v{P+3}, v{P+1}, s{SP0}", f"v_perm_b32 v{O+3}, v{P+3}, v{P+1}, s{SP1}")
            a(f"ds_write_b128 v6, v[{O}:{O+3}] offset:{1024*(j//4)}")
    a(f"v_mov_b32 v40, v{RAW+8}", f"v_permlane32_swap_b32 v{RAW+8}, v40")
    a(f"v_perm_b32 v40, v40, v{RAW+8}, v35")
    a(f"ds_write_b32 v7, v40 offset:2048")
    a(f"v_mov_b32 v6, s{LW}")
    a(f"ds_write_b8 v6, v{VONE} offset:{FL_LN1}")
    a("s_setprio 0")
    a(f"s_cmp_ge_u32 s{LW}, 4", "s_cbranch_scc1 KS_X4")
    a("s_setprio 3")
    srd(a, R2_, P_WS, XBYTES, WS_UT)
    a("v_and_b32 v6, 1, v0", "v_mul_u32_u24 v6, 9280, v6", "v_lshrrev_b32 v7, 1, v0", "v_lshl_add_u32 v6, v7, 2, v6", f"v_add_u32 v6, {C_LNB}, v6")
    a("v_lshrrev_b32 v7, 2, v0", "v_lshlrev_b32 v7, 13, v7", "v_and_b32 v8, 3, v0", "v_lshl_add_u32 v7, v8, 4, v7")
    a(f"s_lshl_b32 s{T0_}, s{TB}, 6")
    for k in range(1, 5): a(f"s_add_u32 s{T0_+k}, s{T0_}, {0x80000*k}")
    dbg_wait(a, 0)
    a(f"s_mov_b32 s{SP0}, {hex(TAGM)}")
    for d in range(1, 4): a(f"v_lshrrev_b32 v{58-d}, {3*d}, v58")
    lds_wait(a, FL_LN1, 20, "b8")
    stamp(a, 3)
    for k in range(5):
        a(f"ds_read2st64_b32 v[{20+4*k}:{21+4*k}], v6 offset0:{2*k} offset1:{9+2*k}")
        a(f"ds_read2st64_b32 v[{22+4*k}:{23+4*k}], v6 offset0:{18+2*k} offset1:{27+2*k}")
    for k in range(5):
        a(f"s_waitcnt lgkmcnt({8-2*k})")
        for d in range(4): a(f"v_bfi_b32 v{20+4*k+d}, s{SP0}, v{58-d}, v{20+4*k+d}")
        a(f"buffer_store_dwordx4 v[{20+4*k}:{23+4*k}], v7, s[{R2_}:{R2_+3}], s{T0_+k} offen {MOD('USMOD')}")
    stamp(a, 4)

def dbg_wait(a, n, vt=58, va=59):
    lp = newlabel("DBP"); go = newlabel("DBG")
    a(f"s_waitcnt vmcnt({n})")
    a(f"{lp}:")
    a(f"v_cmp_eq_u32 vcc, 0, v{vt}", f"s_cbranch_vccz {go}")
    a("s_sleep 1")
    a(f"global_load_dword v{vt}, v{va}, s[{P_DBG}:{P_DBG+1}] sc1")
    guard(a)
    a("s_waitcnt vmcnt(0)")
    a(f"s_branch {lp}")
    a(f"{go}:")

ROLE_TILES = {0: [0, 1, 2, 3, 4], 1: [0, 1, 2, 3, 4], 2: [5, 6, 7], 3: [5, 6, 7]}
ROLE_W = {2: 0, 3: 1, 1: 2}
ACC, DA, RING, WT = 16, 36, 76, 92
NRING = 4

def epi_plan():
    owner = {0: (0, 0), 1: (0, 1), 2: (1, 0), 3: (1, 1), 4: (1, 3), 5: (0, 2), 6: (0, 3), 7: (1, 2)}
    slots = {}
    cnt = [0, 0]
    for g in range(2):
        for role in range(4):
            for j in ROLE_TILES[role]:
                if owner[j] == (g, role): continue
                slots[(g, role, j)] = g * G_SIZE + R_RED + 1024 * cnt[g]; cnt[g] += 1
    assert max(cnt) <= 13, cnt
    ownerC = {0: 0, 1: 0, 2: 1, 3: 1, 4: 2, 5: 2, 6: 3, 7: 3}
    n = 0
    for role in range(4):
        for j in ROLE_TILES[role]:
            if ownerC[j] == role: continue
            slots[(2, role, j)] = 2 * G_SIZE + R_RED + 1024 * n; n += 1
    return owner, ownerC, slots

class LdsTrack:
    def __init__(self, a): self.a = a; self.n = 0; self.done = -1
    def issue(self, text): self.a(text); self.n += 1; return self.n - 1
    def wait(self, idx):
        k = self.n - 1 - idx
        if idx <= self.done: return
        self.done = idx
        if k <= 15: self.a(f"s_waitcnt lgkmcnt({k})")

CZ0, CZ1, CSH, CXR, CFL, SIS, CM, SM, SC, SSC, SDL = 6, 7, 8, 9, 10, 11, 12, 14, 15, 16, 18
IXR, LFR = (108, 109, 112, 113), (110, 111, 114, 115)
def stage_write(a, off):
    a("v_lshl_or_b32 v24, v25, 16, v24", "v_lshl_or_b32 v25, v27, 16, v26", f"ds_write_b64 v28, v[24:25] offset:{off}")
def pre_ixlf(a):
    end = newlabel("PX"); j1 = newlabel("PX"); j2 = newlabel("PX"); jn = newlabel("PX")
    a(f"s_cmp_eq_u32 s{S_ROLE}, 3", f"s_cbranch_scc1 {end}")
    a("v_lshlrev_b32 v26, 3, v2", "v_mov_b32 v21, 0x80")
    a(f"s_cmp_eq_u32 s{S_ROLE}, 1", f"s_cbranch_scc1 {j1}", f"s_cmp_eq_u32 s{S_ROLE}, 2", f"s_cbranch_scc1 {j2}")
    a("v_lshl_add_u32 v26, v3, 1, v26", "v_mov_b32 v22, 1")
    a(f"s_branch {jn}")
    a(f"{j1}:")
    a("v_cmp_gt_u32 vcc, 2, v3", "v_lshl_add_u32 v20, v3, 2, v26", "v_add_u32 v20, 256, v20", "v_lshl_add_u32 v26, v3, 8, v26", "v_cndmask_b32 v26, v26, v20, vcc")
    a("v_cndmask_b32 v22, v21, 2, vcc", "v_cndmask_b32 v21, 4, v21, vcc")
    a(f"s_branch {jn}")
    a(f"{j2}:")
    a("v_lshl_add_u32 v26, v3, 9, v26", "v_add_u32 v26, 0x400, v26", "v_mov_b32 v22, 0x100")
    a(f"{jn}:")
    a(f"v_mad_u32_u24 v26, v22, s{S_G}, v26", "v_add_u32 v27, v26, v21", f"s_movk_i32 s{T4_}, {T_TAB}", f"s_movk_i32 s{T5_}, {-(0x4280 + 0x800)}", f"s_lshl_b32 s{T3_}, s{S_G}, 9")
    for r in range(2): a(f"v_cvt_f32_u32 v{20+r}, v{26+r}", f"v_max_u32 v{22+r}, 0x800, v{26+r}")
    for r in range(2):
        a(f"v_cmp_gt_u32 vcc, 0x80, v{26+r}", f"v_lshrrev_b32 v{24+r}, 16, v{20+r}", f"v_add3_u32 v{24+r}, v{24+r}, v{22+r}, s{T5_}", f"v_cndmask_b32 v{24+r}, v{24+r}, v{26+r}, vcc")
    for r in range(2):
        a(f"v_min_u32 v{24+r}, {IDX_DUMMY}, v{24+r}", f"v_lshl_add_u32 v{24+r}, v{24+r}, 1, s{T4_}")
    a(f"v_add_u32 v29, s{T3_}, v28")
    a("v_lshl_or_b32 v24, v25, 16, v24", "v_lshl_or_b32 v25, v27, 16, v26", "ds_write_b64 v29, v[24:25]")
    a(f"{end}:")

def gen_group(a):
    RAW, VLDT, VDSK, VNT, VNA, VPR, VEM, VTE, VTL = 40, 46, 107, 104, 105, 106, 72, 126, 127
    I1, D2, I2, D1, D3 = 116, 119, 120, 124, 125
    a(f"s_lshl_b32 s{T0_}, s{S_CH}, 8", f"v_lshl_add_u32 v20, v1, 2, s{T0_}")
    a(f"s_lshl_b32 s{T0_}, s{S_CH}, 1", f"v_mov_b32 v21, s{T0_}")
    a(f"s_mul_i32 s{S_GB}, s{S_G}, {G_SIZE}", f"s_add_u32 s{S_GB}, s{S_GB}, {G_BASE}")
    a("s_waitcnt lgkmcnt(0)")
    stamp(a, 1)
    a(f"global_load_ushort v{VLDT}, v21, s[{P_LDT}:{P_LDT+1}]")
    for k in range(6):
        a(f"global_load_dword v{RAW+k}, v20, s[{P_ARE+2*k}:{P_ARE+2*k+1}]")
    a(f"global_load_ushort v{VDSK}, v21, s[{P_DSK}:{P_DSK+1}]")
    a("s_barrier")
    a(f"s_movk_i32 s{T4_}, {T_TAB}")
    def dr_addr(dst, x, special=False):
        a(f"v_sub_u32 v30, 544, v{x}", "v_cvt_f32_i32 v31, v30", "v_cmp_gt_u32 vcc, 0x100, v30", "v_cvt_pk_bf16_f32 v31, v31, v31", "v_and_b32 v31, 0xffff, v31", "v_subrev_u32 v31, 0x4280, v31")
        a("v_cndmask_b32 v31, v31, v30, vcc", "v_cmp_lt_u32 vcc, 0x20d, v30")
        if special: a(f"v_or_b32 v30, 1, v{x}")
        a("v_cndmask_b32 v31, v31, v32, vcc")
        if special: a("v_cmp_eq_u32 vcc, 0x25d, v30", "v_cndmask_b32 v31, v31, v33, vcc")
        a(f"v_lshl_add_u32 v{dst}, v31, 1, s{T4_}")
    def g_addr(dst, y0, base, M):
        a(f"v_sub_u32 v30, {y0}, v23", f"v_cmp_lt_u32 vcc, {M}, v30", f"v_lshlrev_b32 v31, 2, v30", f"v_add_u32 v31, {T_TAB + 2*base}, v31", f"v_cndmask_b32 v{dst}, v31, v33, vcc")
    pb = newlabel("PREB"); pw = newlabel("PREW"); pe = newlabel("PREE")
    a(f"s_cmp_eq_u32 s{S_G}, 2", f"s_cbranch_scc1 {pe}")
    a(f"v_mov_b32 v32, {IDX_ZERO}")
    a(f"s_cmp_eq_u32 s{S_G}, 1", f"s_cbranch_scc1 {pb}")
    jl = [newlabel("PRE") for _ in range(4)]
    a(f"v_mov_b32 v33, {T_TAB + 2*IDX_ZERO}")
    for r in range(1, 4): a(f"s_cmp_eq_u32 s{S_ROLE}, {r}", f"s_cbranch_scc1 {jl[r]}")
    a("v_lshlrev_b32 v23, 1, v1")
    for e, (y0, base, M) in enumerate(((93, 389, 61), (92, 389, 61), (94, 388, 62), (93, 388, 62))): g_addr(24 + e, y0, base, M)
    a(f"s_branch {pw}")
    for r, base in ((1, 513), (2, 514)):
        a(f"{jl[r]}:")
        a("v_min_u32 v23, 47, v1", "v_lshlrev_b32 v23, 1, v23")
        for e, y0 in ((0, 64), (1, 63), (3, 62)): g_addr(24 + e, y0, base, 63)
        a("v_mov_b32 v26, v25")
        a(f"s_branch {pw}")
    a(f"{jl[3]}:")
    a("v_cmp_gt_u32 vcc, 9, v1", "v_add_u32 v23, 0x100, v1", "v_mov_b32 v33, 0x200", "v_cndmask_b32 v23, v23, v1, vcc", "v_lshlrev_b32 v23, 1, v23")
    for e in (0, 1, 3):
        if e: a("v_add_u32 v23, 1, v23")
        dr_addr(24 + e, 23, special=True)
    a("v_mov_b32 v26, v25")
    a(f"s_branch {pw}")
    a(f"{pb}:")
    a(f"s_lshl_b32 s{T1_}, s{S_ROLE}, 7", f"s_add_u32 s{T1_}, s{T1_}, 18", f"v_lshl_add_u32 v23, v1, 1, s{T1_}")
    for e in range(3):
        if e: a("v_add_u32 v23, 1, v23")
        dr_addr(24 + e, 23)
    a(f"s_sub_u32 s{T1_}, s{S_ROLE}, 1", f"s_cmp_lt_u32 s{T1_}, 2", f"s_cselect_b32 s{T2_}, 47, 63", f"s_mul_i32 s{T1_}, s{T1_}, {T_G9E - T_G7E}", f"s_add_u32 s{T1_}, s{T1_}, {T_G7E}")
    a(f"s_cmp_eq_u32 s{S_ROLE}, 0", f"s_cselect_b32 s{T1_}, {T_G3}, s{T1_}", f"s_cmp_eq_u32 s{S_ROLE}, 3", f"s_cselect_b32 s{T1_}, {T_DRE}, s{T1_}", f"s_cselect_b32 s{T3_}, 0x100, 0")
    a("v_cmp_gt_u32 vcc, 9, v1", f"v_min_u32 v23, s{T2_}, v1", f"v_add_u32 v30, s{T3_}, v23", "v_cndmask_b32 v23, v30, v23, vcc", f"v_lshl_add_u32 v27, v23, 2, s{T1_}")
    stage_write(a, 1024)
    a(f"v_mov_b32 v24, s{S_ROLE}", f"ds_write_b8 v24, v{VONE} offset:{FL_PRE + 4}")
    a(f"s_branch {pe}")
    a(f"{pw}:")
    stage_write(a, 1536)
    a(f"v_mov_b32 v24, s{S_ROLE}", f"ds_write_b8 v24, v{VONE} offset:{FL_PRE}")
    a(f"{pe}:")
    a(f"s_mul_i32 s{T1_}, s{S_ROLE}, {16*KG_ROW}", f"s_min_u32 s{T2_}, s{T1_}, {KG_T[3]}", f"s_add_u32 s{T2_}, s{T2_}, s{S_GB}")
    a(f"s_lshl_b32 s{T0_}, s{S_G}, 4", f"v_mov_b32 v14, s{T0_}", f"v_add_u32 v15, s{S_ROLE}, v14")
    a(f"v_lshl_add_u32 v{VEM}, v1, 3, s{T2_}")
    for k in range(1, 4): a(f"v_add_u32 v{VEM+k}, {4*KG_ROW*k}, v{VEM}")
    a(f"v_mul_u32_u24 v{VTE}, {KG_ROW}, v2", f"v_lshl_add_u32 v{VTE}, v3, 4, v{VTE}", f"v_add_u32 v{VTE}, s{S_GB}, v{VTE}", f"v_add_u32 v{VTL}, s{T1_}, v{VTE}")
    VDA, VDA2, VB_, VT8, VT16, VG8, VG16, VLN = 6, 7, 8, 9, 10, 11, 13, 12
    a("v_lshlrev_b32 v20, 3, v3", "v_sub_u32 v20, v20, v2", "v_add_u32 v21, 16, v20", "v_lshrrev_b32 v21, 1, v21")
    a("v_and_b32 v22, 1, v2", f"s_add_u32 s{T0_}, s{S_GB}, {T_DRE}", f"v_lshl_add_u32 v21, v21, 2, s{T0_}", f"s_movk_i32 s{T0_}, {T_DRO - T_DRE}", f"s_movk_i32 s{T2_}, {T_G7O - T_G7E}")
    a(f"v_mad_u32_u24 v{VDA}, v22, s{T0_}, v21", f"v_add_u32 v{VDA2}, 640, v{VDA}")
    a(f"v_mad_u32_u24 v23, v22, s{T2_}, v21", f"v_add_u32 v{VG16}, {T_G7E - T_DRE}, v23")
    a("v_lshlrev_b32 v23, 2, v3", "v_sub_u32 v23, v23, v2", f"s_add_u32 s{T0_}, s{S_GB}, {T_G3 + 60}", f"v_lshl_add_u32 v{VG8}, v23, 2, s{T0_}")
    a(f"s_mul_i32 s{T2_}, s{S_G}, {U_SIZE}", f"s_add_u32 s{T2_}, s{T2_}, {C_U}")
    a(f"v_lshl_add_u32 v23, v2, 5, s{T2_}", f"v_lshl_add_u32 v{VB_}, v3, 4, v23")
    a("v_bfe_u32 v20, v1, 2, 2", "v_and_b32 v21, 3, v1", "v_lshl_add_u32 v20, v3, 3, v20")
    a(f"v_lshlrev_b32 v{VNA}, 2, v21")
    a(f"v_lshl_add_u32 v21, v21, 3, s{S_GB}", f"v_lshl_add_u32 v{VT8}, v20, 4, v21", f"v_lshl_add_u32 v{VT16}, v20, 5, v21")
    a(f"v_lshlrev_b32 v{VLN}, 4, v1")
    srd(a, R0, P_WS, 0x240000, WS_ZB1)
    a(f"s_lshl_b32 s{T0_}, s{S_ROLE}, 19", f"s_lshl_b32 s{T1_}, s{S_B2}, 6", f"s_add_u32 s{T0_}, s{T0_}, s{T1_}")
    a(f"s_lshl_b32 s{T1_}, s{S_ROLE}, 16", f"s_lshl_b32 s{T3_}, s{S_CH}, 6", f"s_add_u32 s{T1_}, s{T1_}, s{T3_}", f"s_add_u32 s{T1_}, s{T1_}, {0x200000 - 512*64}")
    a(f"s_cmp_eq_u32 s{S_G}, 2", f"s_cselect_b32 s{CZ0}, s{T1_}, s{T0_}", f"s_cselect_b32 s{CSH}, 12, 15", f"s_add_u32 s{CZ1}, s{CZ0}, 16384")
    a(f"s_and_b32 s{CXR}, s{S_G}, 1", f"s_lshl_b32 s{CXR}, s{CXR}, 4", f"s_mov_b32 s{CM}, 0x55555555", f"s_mov_b32 s{CM+1}, 0x55555555")
    a(f"s_lshl_b32 s{T0_}, s{S_ROLE}, 8", f"s_add_u32 s{T0_}, s{T0_}, s{S_GB}", f"s_add_u32 s{T0_}, s{T0_}, 36", f"v_lshl_add_u32 v{D1}, v1, 2, s{T0_}")
    a(f"s_movk_i32 s{T0_}, {T_G7O - T_G7E}", f"s_cmp_eq_u32 s{S_ROLE}, 0", f"s_cselect_b32 s{T0_}, {T_G5 - T_G3}, s{T0_}", f"s_cmp_eq_u32 s{S_ROLE}, 3", f"s_cselect_b32 s{T0_}, {T_DRO - T_DRE}, s{T0_}")
    a(f"v_mov_b32 v20, s{S_GB}", f"ds_write_b16 v20, v{VZ} offset:{T_TAB + 2*IDX_ZERO}")
    a(f"s_mov_b32 s{SDL}, s{T0_}", f"v_mov_b32 v{D3}, v28")
    def stage_read():
        lds_wait(a, FL_PRE, 18, "b8")
        a(f"ds_read2st64_b64 v[28:31], v{D3} offset0:0 offset1:1", f"ds_read2st64_b64 v[32:35], v{D3} offset0:2 offset1:3")
    def stage_unpack():
        for k in range(16):
            src = 28 + k // 2; w = f"WORD_{k & 1}"
            if 108 + k in LFR: a(f"v_cvt_f32_u32_sdwa v{108+k}, v{src} dst_sel:DWORD dst_unused:UNUSED_PAD src0_sel:{w}")
            else: a(f"v_add_u32_sdwa v{108+k}, s{S_GB}, v{src} dst_sel:DWORD dst_unused:UNUSED_PAD src0_sel:DWORD src1_sel:{w}")
        a(f"v_add_u32 v{D3}, s{SDL}, v{D2}")
    stage_read()
    a("s_waitcnt lgkmcnt(0)")
    stage_unpack()
    ex = newlabel("EXP")
    if KOFF: a(f"s_lshl_b32 s{T0_}, s{S_G}, 5", f"s_add_u32 s{T0_}, s{T0_}, s{S_I}", f"s_cmp_ge_u32 s{T0_}, {64 + 24}", "s_cbranch_scc1 KC_RECV")
    a(f"s_mov_b32 s{T0_}, {f32(LOG2E_HI)}", f"s_mov_b32 s{T1_}, {f32(LOG2E_LO)}", f"s_mov_b32 s{T2_}, {f32(INV2PI_HI)}", f"s_mov_b32 s{T3_}, {f32(INV2PI_LO)}")
    a(f"s_waitcnt vmcnt(7)")
    a(f"v_lshlrev_b32 v16, 16, v{VLDT}")
    a(f"v_mul_f32 v17, s{T0_}, v16")
    a(f"v_fma_f32 v19, v16, s{T0_}, -v17", f"v_fmac_f32 v19, s{T1_}, v16")
    a("v_exp_f32 v17, v17")
    a(f"v_mul_f32 v19, {f32(math.log(2.0))}, v19")
    a("v_fmac_f32 v17, v17, v19")
    a("v_cvt_pk_bf16_f32 v17, v17, v17", "v_and_b32 v16, 0xffff0000, v17")
    a(f"s_waitcnt vmcnt(5)")
    stamp(a, 2)
    a(f"ds_write_b32 v{VZ}, v{VONE} offset:{FL_PARAM}")
    THH, THL = 68, 70
    for k in range(2): unpack(a, 20 + 2 * k, RAW + k)
    for k in range(2): a(f"v_pk_mul_f32 v[{20+2*k}:{21+2*k}], v[{20+2*k}:{21+2*k}], v[16:17] op_sel_hi:[1,0]")
    a("v_max_f32 v36, v20, v21")
    a(f"v_pk_mul_f32 v[{THH}:{THH+1}], v[22:23], s[{T2_}:{T3_}] op_sel_hi:[1,0]")
    a(f"v_pk_fma_f32 v[{THL}:{THL+1}], v[22:23], s[{T2_}:{T3_}], v[{THH}:{THH+1}] op_sel_hi:[1,0,1] neg_lo:[0,0,1] neg_hi:[0,0,1]")
    a(f"v_pk_fma_f32 v[{THL}:{THL+1}], v[22:23], s[{T2_}:{T3_}], v[{THL}:{THL+1}] op_sel:[0,1,0]")
    T = 90
    def cmul_(dr, di, ar, ai, br, bi, t=T):
        assert di not in (ar, br, bi)
        return [f"v_pk_mul_f32 v[{t}:{t+1}], v[{ai}:{ai+1}], v[{bi}:{bi+1}]",
                f"v_pk_mul_f32 v[{t+2}:{t+3}], v[{ai}:{ai+1}], v[{br}:{br+1}]",
                f"v_pk_fma_f32 v[{di}:{di+1}], v[{ar}:{ar+1}], v[{bi}:{bi+1}], v[{t+2}:{t+3}]",
                f"v_pk_fma_f32 v[{dr}:{dr+1}], v[{ar}:{ar+1}], v[{br}:{br+1}], v[{t}:{t+1}] neg_lo:[0,0,1] neg_hi:[0,0,1]"]
    def cm_(d, x, y, t=T): return cmul_(d, d + 2, x, x + 2, y, y + 2, t)
    def csq_(d, s_, t=T):
        return [f"v_pk_mul_f32 v[{t}:{t+1}], v[{s_+2}:{s_+3}], v[{s_+2}:{s_+3}]",
                f"v_pk_mul_f32 v[{t+2}:{t+3}], v[{s_}:{s_+1}], v[{s_+2}:{s_+3}]",
                f"v_pk_fma_f32 v[{d}:{d+1}], v[{s_}:{s_+1}], v[{s_}:{s_+1}], v[{t}:{t+1}] neg_lo:[0,0,1] neg_hi:[0,0,1]",
                f"v_pk_add_f32 v[{d+2}:{d+3}], v[{t+2}:{t+3}], v[{t+2}:{t+3}]"]
    def cmul(*x): a(*cmul_(*x))
    def csq(*x): a(*csq_(*x))
    CBR, CBI = 32, 34
    sk = newlabel("SK")
    a(f"s_cmp_eq_u32 s{S_ROLE}, 3", f"s_cbranch_scc1 {sk}")
    a("s_waitcnt vmcnt(1)")
    for k in range(2, 6): unpack(a, 20 + 2 * k, RAW + k)
    for k in range(2, 4): a(f"v_pk_mul_f32 v[{20+2*k}:{21+2*k}], v[{20+2*k}:{21+2*k}], v[16:17] op_sel_hi:[1,0]")
    cmul(CBR, CBI, 28, 30, 24, 26)
    a(f"v_max3_f32 v37, abs(v{CBI}), abs(v{CBI+1}), abs(v{CBR})", f"v_max_f32 v37, v37, abs(v{CBR+1})")
    a(f"{sk}:")
    a("s_waitcnt vmcnt(0)")
    a.flush(1)
    a("v_permlane32_swap_b32 v36, v37", "v_max_f32 v36, v36, v37")
    red32(a, "v_max_f32", 36, 38)
    a(f"v_readlane_b32 s{SM}, v36, 0", f"v_readlane_b32 s{SC}, v36, 32")
    a(f"s_add_u32 s{SC}, s{SC}, 0x7fffff", f"s_lshr_b32 s{SC}, s{SC}, 23", f"s_max_u32 s{SC}, s{SC}, 24", f"s_sub_u32 s{SSC}, 269, s{SC}", f"s_lshl_b32 s{SSC}, s{SSC}, 23")
    a(f"v_subrev_f32 v20, s{SM}, v20", f"v_subrev_f32 v21, s{SM}, v21")
    a(f"v_mul_f32 v20, {f32(LOG2E)}, v20", f"v_mul_f32 v21, {f32(LOG2E)}, v21")
    def scale_cb():
        a(f"v_pk_mul_f32 v[{CBR}:{CBR+1}], v[{CBR}:{CBR+1}], s[{SSC}:{SSC+1}] op_sel_hi:[1,0]", f"v_pk_mul_f32 v[{CBI}:{CBI+1}], v[{CBI}:{CBI+1}], s[{SSC}:{SSC+1}] op_sel_hi:[1,0]")
    def anchor(dr, di, l, conj=False):
        lit = {1: "1.0", 2: "2.0"}.get(l, f32(float(l)))
        for e in range(2):
            t = T + 4 * e
            if l != 1: a(f"v_mul_f32 v{t+1}, {lit}, v{THH+e}", f"v_mul_f32 v{t}, {lit}, v{20+e}")
        for e in range(2):
            t = T + 4 * e
            a(f"v_fract_f32 v{t+1}, v{t+1 if l != 1 else THH+e}")
        for e in range(2):
            t = T + 4 * e
            a(f"v_fmac_f32 v{t+1}, {lit}, v{THL+e}")
        for e in range(2):
            t = T + 4 * e
            a(f"v_exp_f32 v{t}, v{t if l != 1 else 20+e}", f"v_cos_f32 v{t+2}, v{t+1}", f"v_sin_f32 v{t+1}, v{t+1}")
        for e in range(2):
            t = T + 4 * e
            a(f"v_mul_f32 v{dr+e}, v{t}, v{t+2}")
            a(f"v_mul_f32 v{di+e}, v{t}, {'-' if conj else ''}v{t+1}")
    em = [0, None]
    def it(cms, row=None, x=None, y=None):
        if em[1]: a(em[1]); em[1] = None
        for k in range(4):
            for c in cms:
                if k < len(c): a(c[k])
        if row is None: return
        t = (98, 76)[em[0] & 1]; em[0] += 1
        for v, tt in ((x, t), (y, t + 2)):
            if v is not None: a(f"v_cvt_pk_f16_f32 v{tt}, v{v}, v{v+2}", f"v_cvt_pk_f16_f32 v{tt+1}, v{v+1}, v{v+3}")
        o = (row & 3) * KG_ROW // 8
        if y is None: em[1] = f"ds_write_b64 v{VEM + row//4}, v[{t}:{t+1}] offset:{8*o}"
        else: em[1] = f"ds_write2_b64 v{VEM + row//4}, v[{t}:{t+1}], v[{t+2}:{t+3}] offset0:{o} offset1:{o + KG_ROW//8}"
    G1, G2, G3 = 40, 44, 48
    VA, VB, VC, VD = 52, 56, 60, 64
    oth = lambda c, p, q: p if c != p else q
    jl = [newlabel("JOB") for _ in range(4)]; jn = newlabel("JOBJ")
    for r in (3, 1, 2): a(f"s_cmp_eq_u32 s{S_ROLE}, {r}", f"s_cbranch_scc1 {jl[r]}")
    anchor(G2, G2 + 2, 128); scale_cb(); anchor(G1, G1 + 2, 1)
    cur = CBR
    for c in range(8):
        nx = oth(cur, VA, VB)
        it([cm_(VC, cur, G2)] + ([cm_(nx, cur, G1, T + 4)] if c < 7 else []), 2 * c, cur, VC); cur = nx
    it([])
    a(f"s_branch {jn}")
    a(f"{jl[1]}:")
    anchor(G2, G2 + 2, 128); scale_cb(); csq(G3, G2); anchor(G1, G1 + 2, 2)
    it([cm_(VA, CBR, G3)]); cur = VA
    it([cm_(VD, VA, G3)])
    for c in range(4):
        nx = oth(cur, VA, VB)
        it([cm_(VC, cur, G2), cm_(nx, cur, G1, T + 4) if c < 3 else csq_(G3, G1, T + 4)], 2 * c, cur, VC); cur = nx
    cur = VD
    for aa in range(4):
        nx = oth(cur, VA, VB)
        it([cm_(VC, cur, G3)] + ([cm_(nx, cur, G2, T + 4)] if aa < 3 else []), 8 + 2 * aa, cur, VC); cur = nx
    it([])
    a(f"s_branch {jn}")
    a(f"{jl[3]}:")
    anchor(G1, G1 + 2, 8, conj=True)
    a(f"v_mov_b32 v{VA}, {f32(32768.0)}", f"v_mov_b32 v{VA+1}, {f32(32768.0)}", f"v_mov_b32 v{VA+2}, 0", f"v_mov_b32 v{VA+3}, 0")
    sc_ = lambda d, x: [f"v_pk_mul_f32 v[{d}:{d+1}], v[{x}:{x+1}], v[{VA}:{VA+1}]", f"v_pk_mul_f32 v[{d+2}:{d+3}], v[{x+2}:{x+3}], v[{VA}:{VA+1}]"]
    it([csq_(G2, G1), sc_(VC, G1)])
    ce, co = VA, VC
    for b in range(8):
        ne, no = oth(ce, VA, VB), oth(co, VC, VD)
        it([] if b == 7 else [sc_(ne, G2) if b == 0 else cm_(ne, ce, G2), cm_(no, co, G2, T + 4)], 2 * b, ce, co); ce, co = ne, no
    it([])
    a(f"ds_write_b8 v15, v{VONE} offset:{FL_G}")
    stamp(a, 3)
    if KOFF: a(f"s_cmp_eq_u32 s{S_G}, 2", "s_cbranch_scc1 KS_G0")
    a(f"s_branch {ex}")
    if KOFF:
        a("KC_SEND:")
        lds_wait(a, FL_NONCE, VNT, "nz", addr=VNA)
        a(f"s_lshl_b32 s{T0_}, s{S_CH}, 12", f"s_lshl_b32 s{T1_}, s{S_ROLE}, 10", f"s_add_u32 s{T0_}, s{T0_}, s{T1_}", f"s_add_u32 s{T0_}, s{T0_}, {hex(WS_KT - 512*4096)}", f"v_add_u32 v24, s{T0_}, v{VLN}")
        a(f"s_mov_b32 s{T1_}, 0xffff", f"v_lshlrev_b32 v25, 16, v{VNT}")
        for r in range(4): a(f"v_cvt_f16_f32 v{20+r}, v{20+r}")
        a(f"s_cmp_lg_u32 s{S_ROLE}, 2", "s_cbranch_scc1 KC_S2")
        a("s_mov_b32 exec_lo, 0", "s_mov_b32 exec_hi, 0xffff0000")
        a(f"v_mov_b32 v20, v{VPR}", f"v_lshrrev_b32 v21, 16, v{VPR}")
        a("s_mov_b64 exec, -1")
        a("KC_S2:")
        for r in range(4): a(f"v_bfi_b32 v{20+r}, s{T1_}, v{20+r}, v{25 if r & 1 else VNT}")
        a(f"global_store_dwordx4 v24, v[20:23], s[{P_WS}:{P_WS+1}] sc1")
        stamp(a, 4)
        a("s_branch KS_G0")
        a("KC_RECV:")
        a(f"s_cmp_eq_u32 s{S_ROLE}, 3", f"s_cbranch_scc1 {ex}")
        a(f"s_lshl_b32 s{T0_}, s{S_CH}, 12", f"s_lshl_b32 s{T1_}, s{S_ROLE}, 10", f"s_add_u32 s{T0_}, s{T0_}, s{T1_}", f"s_add_u32 s{T0_}, s{T0_}, {hex(WS_KT - 512*4096)}", f"v_add_u32 v24, s{T0_}, v{VLN}")
        lds_wait(a, FL_NONCE, VNT, "nz", addr=VNA, sleep=2)
        a(f"v_lshlrev_b32 v25, 16, v{VNT}")
        stamp(a, 2)
        lds_wait(a, FL_G + {0: 0, 1: 4, 2: 16}[ENV("KTRIG", 1)], 17, "b4", sleep=2)
        lp = newlabel("KP"); l1 = newlabel("KPE")
        a(f"s_branch {l1}")
        a(f"{lp}:")
        a("s_sleep 2")
        a(f"{l1}:")
        a(f"global_load_dwordx4 v[20:23], v24, s[{P_WS}:{P_WS+1}] sc1")
        guard(a)
        a("s_waitcnt vmcnt(0)")
        for r in range(4): a(f"v_xor_b32 v{20+r}, v{25 if r & 1 else VNT}, v{20+r}")
        a("v_or3_b32 v26, v20, v21, v22", "v_or_b32 v26, v26, v23", "v_cmp_lt_u32 vcc, 0xffff, v26", f"s_cbranch_vccnz {lp}")
        stamp(a, 3)
        for r in (0, 2): a(f"v_xor_b32 v{20+r}, v{VNT}, v{20+r}")
        for r in range(4): a(f"ds_write_b16 v{IXR[r]}, v{20+r}")
        a(f"s_cmp_lg_u32 s{S_ROLE}, 2", f"s_cbranch_scc1 {ex}")
        a("v_and_b32 v20, 0xffff, v20", "v_lshl_or_b32 v20, v21, 16, v20", f"v_lshlrev_b32 v21, 16, v{VDSK}")
        a("s_mov_b32 exec_lo, 0", "s_mov_b32 exec_hi, 0x10000")
        a(f"ds_write_b64 v14, v[20:21] offset:{C_PAR}")
        a("s_mov_b64 exec, -1")
        a(f"s_branch {ex}")
    a(f"{jl[2]}:")
    anchor(G2, G2 + 2, 128); scale_cb()
    it([csq_(G1, G2), cm_(VD, CBR, G2, T + 4)]); csq(G3, G1); csq(G3, G3)
    it([cm_(VA, CBR, G3), cm_(VC, VD, G3, T + 4)])
    ce, co = VA, VC
    for r in range(4):
        ne, no = oth(ce, VA, VB), oth(co, VC, VD)
        it([cm_(ne, ce, G1)] + ([cm_(no, co, G1, T + 4)] if r < 3 else []), 2 * r, ce, co); ce, co = ne, no
    it([], 8, ce, None)
    a(f"v_mov_b32 v36, {f32(2048.0*LOG2E)}", f"v_mul_f32 v24, s{SM}, v36", "v_max_f32 v24, 0, v24", "v_exp_f32 v24, v24")
    it([])
    a(f"s_sub_u32 s{SIS}, s{SC}, 7", f"s_lshl_b32 s{SIS}, s{SIS}, 23")
    a(f"v_lshlrev_b32 v25, 16, v{VDSK}", f"v_mul_f32 v24, s{SIS}, v24", f"v_mov_b32 v{VPR}, v24")
    a(f"ds_write_b64 v14, v[24:25] offset:{C_PAR}")
    a(f"{jn}:")
    a(f"ds_write_b8 v15, v{VONE} offset:{FL_G}")
    stamp(a, 3); kstamp(a, 2)
    for s in range(8): a(f"ds_read_b128 v[{40+4*s}:{43+4*s}], v{VTL} offset:{64*s}")
    a(f"v_mov_b32 v36, {f32(LOG2E)}", f"v_mul_f32 v36, s{SM}, v36")
    a(f"v_mul_f32 v37, {f32(2048.0)}, v36", "v_max_f32 v37, 0, v37", f"v_add_f32 v37, {f32(23.0)}, v37")
    for r in range(4):
        a(f"v_fma_f32 v{LFR[r]}, v{LFR[r]}, v36, -v37")
    for r in range(4):
        a(f"v_exp_f32 v{LFR[r]}, v{LFR[r]}")
    kstamp(a, 3)
    lds_wait(a, FL_G + 3, 17, "u8", addr=14)
    kstamp(a, 4)
    tr = LdsTrack(a); ids = []
    for s in range(8):
        ids.append(tr.issue(f"ds_read_b128 v[{72+4*s}:{75+4*s}], v{VTE} offset:{KG_T[3]+64*s}"))
    for s in range(8):
        tr.wait(ids[s])
        c = "0" if s < 2 else f"v[{20+4*(s&1)}:{23+4*(s&1)}]"
        a(f"v_mfma_f32_16x16x32_f16 v[{20+4*(s&1)}:{23+4*(s&1)}], v[{40+4*s}:{43+4*s}], v[{72+4*s}:{75+4*s}], {c}")
    for r in range(4): a(f"v_add_f32 v{20+r}, v{20+r}, v{24+r}")
    for r in range(4): a(f"v_mul_f32 v{20+r}, v{20+r}, v{LFR[r]}")
    kstamp(a, 5)
    if KOFF: a(f"s_cmp_eq_u32 s{S_G}, 2", "s_cbranch_scc1 KC_SEND")
    for r in range(4):
        a(f"v_cvt_f16_f32 v{20+r}, v{20+r}")
        a(f"ds_write_b16 v{IXR[r]}, v{20+r}")
    a(f"{ex}:")
    a(f"ds_write_b8 v15, v{VONE} offset:{FL_G+4}")
    a("v_mov_b32 v28, 0", "v_mov_b32 v29, 0", "v_mov_b32 v30, 0", "v_mov_b32 v31, 0", f"v_mov_b32 v32, s{S_GB}")
    a("s_waitcnt vmcnt(0)")
    kstamp(a, 6)
    lds_wait(a, FL_G + 4, 20, "b4", addr=14)
    stamp(a, 4); kstamp(a, 7)
    for e in range(3): a(f"ds_read_u16 v{20+e}, v{I1+e}")
    for e in range(4): a(f"ds_read_u16 v{23+e}, v{I2+e}")
    a("s_mov_b64 exec, 1")
    a(f"ds_write_b128 v32, v[28:31] offset:{R_WS5}", f"ds_write_b128 v32, v[28:31] offset:{R_WS9}", f"ds_write_b128 v32, v[28:31] offset:{R_WS3 + 192*16}")
    a("s_mov_b64 exec, -1")
    a("s_waitcnt lgkmcnt(7)")
    a("v_lshl_or_b32 v28, v21, 16, v20", "v_lshl_or_b32 v29, v22, 16, v21")
    a(f"ds_write_b32 v{D1}, v28 offset:{T_DRE}", f"ds_write_b32 v{D1}, v29 offset:{T_DRO}")
    a("s_waitcnt lgkmcnt(5)")
    a("v_lshl_or_b32 v30, v24, 16, v23", "v_lshl_or_b32 v31, v26, 16, v25")
    a(f"ds_write_b32 v{D2}, v30", f"ds_write_b32 v{D3}, v31")
    a(f"ds_write_b8 v15, v{VONE} offset:{FL_G+8}")
    kstamp(a, 8)
    lds_wait(a, FL_G + 8, 20, "b4", addr=14)
    stamp(a, 5)
    PR, FT0, FT1, ACCL, ACCH, ZQ = 16, 18, 19, 20, 24, 28
    VZA, VUA = VDA, VDA2
    LA = ENV("CLA", 6); RSV = ENV("CRSV", 5); NF = ENV("CNF", 2)
    jl = [newlabel("CV") for _ in range(4)]; zend = newlabel("CVE")
    slow = []
    a(f"ds_read_b64 v[{PR}:{PR+1}], v14 offset:{C_PAR}")
    for r in range(1, 4): a(f"s_cmp_eq_u32 s{S_ROLE}, {r}", f"s_cbranch_scc1 {jl[r]}")
    for m in range(4):
        if m: a(f"{jl[m]}:")
        lo, hi = 2 * m, 2 * m + 1
        acc = {lo: ACCL, hi: ACCH}
        ops = []
        if m >= 2:
            for j in (lo, hi): ops.append((j, ("D", 32), ("U", 8 * j - 32)))
        for p in range(max(8 * lo - 16, -7), 8 * hi + 1):
            for j in (lo, hi):
                ks = 8 * j - p
                if 0 <= ks <= 16: ops.append((j, ("D", ks), ("U", p)))
        ncomb0 = len(ops)
        for j in (lo, hi):
            for kind in (3, 5):
                for b in range(6):
                    if 2 <= j - b <= 4: ops.append((j, ("W", kind, b), ("G", kind, j - b)))
            for kind in (7, 9):
                for b in range(2):
                    if j - 2 * b - 4 >= 0: ops.append((j, ("W", kind, b), ("G", kind, j - 2 * b - 4)))
        nops = len(ops)
        first, last = {}, {}
        for k, (j, A, B) in enumerate(ops):
            for key in (A, B):
                first.setdefault(key, k); last[key] = k
        lastlo = max(k for k, o in enumerate(ops) if o[0] == lo)
        pool = list(range(32, 128, 4))
        reg, lid = {}, {}
        def load(tr, key):
            rg = pool.pop(0); reg[key] = rg
            if (XP & 8 and key[0] == "G") or (XP & 16 and key[0] == "W") or (XP & 32 and key[0] == "U"):
                lid[key] = -100; return
            if key[0] == "D":
                ksv = -2 if key[1] == 32 else key[1]
                o = (16 - ksv) * 16
                ad, o = (VDA, o) if o + 3 <= 255 else (VDA2, o - 160)
                tr.issue(f"ds_read2_b32 v[{rg}:{rg+1}], v{ad} offset0:{o} offset1:{o+1}")
                lid[key] = tr.issue(f"ds_read2_b32 v[{rg+2}:{rg+3}], v{ad} offset0:{o+2} offset1:{o+3}")
            elif key[0] == "G":
                _, kind, ix = key
                if kind in (3, 5): o = (4 - ix) * 16 + (64 if kind == 5 else 0); ad = VG8
                else: o = (3 - ix) * 8 + (96 if kind == 9 else 0); ad = VG16
                tr.issue(f"ds_read2_b32 v[{rg}:{rg+1}], v{ad} offset0:{o} offset1:{o+1}")
                lid[key] = tr.issue(f"ds_read2_b32 v[{rg+2}:{rg+3}], v{ad} offset0:{o+2} offset1:{o+3}")
            elif key[0] == "U":
                lid[key] = tr.issue(f"ds_read_b128 v[{rg}:{rg+3}], v{VB_} offset:{64*(key[1]+7)}")
            else:
                _, kind, b = key
                if kind in (3, 5): o = (R_WS3 if kind == 3 else R_WS5) + 512 * b; ad, st = VT8, 64
                else: o = (R_WS7 if kind == 7 else R_WS9) + 1024 * b; ad, st = VT16, 128
                tr.issue(f"ds_read_b64_tr_b16 v[{rg}:{rg+1}], v{ad} offset:{o}")
                lid[key] = tr.issue(f"ds_read_b64_tr_b16 v[{rg+2}:{rg+3}], v{ad} offset:{o+st}")
        keys = sorted(first, key=lambda k_: first[k_])
        tr = LdsTrack(a)
        for key in keys:
            if key[0] == "D": load(tr, key)
        for key in keys:
            if key[0] == "G" and len(pool) > RSV: load(tr, key)
        pend = [k_ for k_ in keys if k_ not in reg]
        a(f"v_lshlrev_b32 v{FT0}, 3, v3", f"v_sub_u32 v{FT0}, v{VB_}, v{FT0}")
        a(f"v_lshrrev_b32 v{FT1}, 2, v2", f"v_lshl_add_u32 v{FT1}, v{FT1}, 2, v3", f"v_and_b32 v{ZQ}, 3, v2", f"v_lshlrev_b32 v{ZQ}, 4, v{ZQ}")
        a(f"v_lshlrev_b32 v{FT1}, s{CSH}, v{FT1}")
        a("s_waitcnt lgkmcnt(0)")
        a(f"v_mov_b32 v{VUA}, v{FT0}", f"v_add_u32 v{VZA}, v{FT1}, v{ZQ}")
        a(f"v_xor_b32 v{VLN}, s{CXR}, v{VLN}")
        lds_wait(a, FL_UF, FT0, "b4")
        a(f"s_setprio {eval(os.environ.get('CPRIO', '[1,1,1,1]'))[m]}")
        stamp(a, 6); cstamp(a, 1)
        if XP & 4: a(f"v_mov_b32 v{FT0}, 0", f"s_cmp_lg_u32 s{S_G}, 0", f"s_cbranch_scc1 {zend}")
        for key in lid: lid[key] = -100
        tr = LdsTrack(a)
        ud = {}
        fill = []
        fill.append(("lds", f"ds_read_b64 v[{ZQ}:{ZQ+1}], v{VUA} offset:{480 + 512*lo}", 2))
        fill.append(("ldsU", f"ds_read_b64 v[{ZQ+2}:{ZQ+3}], v{VUA} offset:{480 + 512*hi}", 2))
        for ti, j in enumerate((lo, hi)):
            fill.append(("alloc", j, 5))
            if ti == 0: fill.append(("waitU", None, 5))
            for e in range(4):
                sel = "op_sel:[1,0,0] " if e & 1 else ""
                fill.append(("f", (lambda j=j, e=e, ti=ti, sel=sel: f"v_fma_mix_f32 v{ud[j]+e}, v{ZQ+2*ti+e//2}, v{PR+1}, 0 {sel}op_sel_hi:[1,0,0]"), 5))
            for p in range(2):
                fill.append(("f", (lambda j=j, p=p, ti=ti: f"v_cvt_pk_bf16_f32 v{ZQ+2*ti+p}, v{ud[j]+2*p}, v{ud[j]+2*p+1}"), 5))
            for p in range(2):
                fill.append(("f", (lambda j=j, p=p, ti=ti: f"v_lshlrev_b32 v{ud[j]+2*p}, 16, v{ZQ+2*ti+p}"), 5))
                fill.append(("f", (lambda j=j, p=p, ti=ti: f"v_and_b32 v{ud[j]+2*p+1}, 0xffff0000, v{ZQ+2*ti+p}"), 5))
        def epi(j, ti):
            y = acc[j]; z = ZQ + 2 * ti; out = []
            for p in range(4): out.append(lambda p=p: f"v_mul_f32 v{y+p}, v{y+p}, v{PR}")
            for p in range(2): out.append(lambda p=p: f"v_cvt_pk_bf16_f32 v{z+p}, v{y+2*p}, v{y+2*p+1}")
            for p in range(2):
                out.append(lambda p=p: f"v_lshlrev_b32 v{y+2*p}, 16, v{z+p}")
                out.append(lambda p=p: f"v_and_b32 v{y+2*p+1}, 0xffff0000, v{z+p}")
            for p in range(4): out.append(lambda p=p: f"v_add_f32 v{y+p}, v{y+p}, v{ud[j]+p}")
            for p in range(2): out.append(lambda p=p: f"v_cvt_pk_bf16_f32 v{z+p}, v{y+2*p}, v{y+2*p+1}")
            for p in range(2): out.append(lambda p=p: f"v_min_u32 v{z+p}, -2, v{z+p}")
            return out
        for f in epi(lo, 0): fill.append(("f", f, lastlo + 2))
        fill.append(("lds", f"ds_read_u8 v{FT0}, v{VZ} offset:{FL_S6 + m}", nops - 4))
        fill.append(("lds", f"ds_read_b128 v[{ACCL}:{ACCL+3}], v{VLN} offset:{G_BASE + R_RED + 1024*m}", nops - 4))
        uid = [None]
        def do_fill(n, k):
            while n > 0 and fill:
                kind, t, e = fill[0]
                if e > k: return
                if kind == "alloc":
                    if len(pool) < 2: return
                    ud[t] = pool.pop(); fill.pop(0); continue
                fill.pop(0)
                if kind == "f":
                    if XP & 2 and "v_min" not in t(): continue
                    a(t())
                elif kind == "lds": tr.issue(t)
                elif kind == "ldsU": uid[0] = tr.issue(t)
                elif kind == "waitU": tr.wait(uid[0]); continue
                n -= 1
        kW = ncomb0 - LA if nops > ncomb0 else None
        wok = [False]
        def issue_loads(k, nmax):
            while pend and pool and nmax > 0:
                key = pend[0]
                if first[key] - k > (LA if key[0] != "G" else LA + 4): return
                if key[0] == "W" and not wok[0]:
                    alt = [x for x in pend if x[0] != "W" and first[x] - k <= LA + 2]
                    if not alt: return
                    key = alt[0]
                pend.remove(key); load(tr, key); nmax -= 1
        issue_loads(0, RSV)
        started = set()
        for k, (j, A, B) in enumerate(ops):
            assert A in reg and B in reg, (m, k, A, B)
            tr.wait(max(lid[A], lid[B]))
            c = f"v[{acc[j]}:{acc[j]+3}]" if j in started else "0"
            started.add(j)
            a(f"v_mfma_f32_16x16x32_f16 v[{acc[j]}:{acc[j]+3}], v[{reg[A]}:{reg[A]+3}], v[{reg[B]}:{reg[B]+3}], {c}")
            for key in (A, B):
                if last[key] == k: pool.append(reg[key])
            if kW is not None and k == kW - 3:
                wfid = tr.issue(f"ds_read_b32 v{FT0}, v14 offset:{FL_G + 12}")
            if k == kW:
                tr.wait(wfid)
                sl = newlabel("WS"); bk = newlabel("WB")
                a(f"v_cmp_ne_u32 vcc, s{S_ONES}, v{FT0}", f"s_cbranch_vccnz {sl}")
                a(f"{bk}:")
                slow.append((sl, bk))
                wok[0] = True
                cstamp(a, 3)
            issue_loads(k + 1, 2)
            do_fill(NF, k)
            if k == ncomb0 // 2: cstamp(a, 2)
            if k == ncomb0 - 1: cstamp(a, 4)
        cstamp(a, 5)
        do_fill(1000, 1000)
        assert not fill and not pend
        stamp(a, 7)
        for f in epi(hi, 1): a(f())
        if m < 3: a(f"s_branch {zend}")
    a(f"{zend}:")
    cstamp(a, 6)
    gA = newlabel("ZA"); gC = newlabel("ZC"); zs = newlabel("ZS"); zb = newlabel("ZB"); zc = newlabel("ZCB"); zd = newlabel("ZD")
    a("s_waitcnt lgkmcnt(0)")
    a(f"s_cmp_lg_u32 s{S_G}, 1", f"s_cbranch_scc1 {gA}")
    a(f"v_cmp_ne_u32 vcc, 1, v{FT0}", f"s_cbranch_vccnz {zs}")
    a(f"{zb}:")
    a(f"s_mov_b64 exec, s[{CM}:{CM+1}]")
    for k in range(4): a(f"v_swap_b32 v{ZQ+k}, v{ACCL+k}")
    a("s_mov_b64 exec, -1")
    cstamp(a, 8)
    a(f"buffer_store_dwordx4 v[{ZQ}:{ZQ+3}], v{VZA}, s[{R0}:{R0+3}], s{CZ1} offen sc1")
    a(f"buffer_store_dwordx4 v[{ACCL}:{ACCL+3}], v{VZA}, s[{R0}:{R0+3}], s{CZ0} offen sc1")
    a(f"s_branch {zd}")
    for (sl, bk) in slow:
        a(f"{sl}:")
        lds_wait(a, FL_G + 12, FT0, "b4", addr=14)
        a(f"s_branch {bk}")
    a(f"{zs}:")
    a(f"v_mov_b32 v{FT1}, s{S_ROLE}")
    l = newlabel("ZW")
    a(f"{l}:")
    a(f"ds_read_u8 v{FT0}, v{FT1} offset:{FL_S6}")
    guard(a)
    a("s_waitcnt lgkmcnt(0)")
    a(f"v_cmp_ne_u32 vcc, 1, v{FT0}", f"s_cbranch_vccnz {l}")
    a(f"v_lshl_add_u32 v{FT1}, v{FT1}, 10, v{VLN}")
    a(f"ds_read_b128 v[{ACCL}:{ACCL+3}], v{FT1} offset:{G_BASE + R_RED}")
    a("s_waitcnt lgkmcnt(0)")
    a(f"s_branch {zb}")
    a(f"{gA}:")
    a(f"s_cmp_lg_u32 s{S_G}, 0", f"s_cbranch_scc1 {gC}")
    a(f"v_mov_b32 v{FT1}, s{S_ROLE}", f"v_lshl_add_u32 v{FT0}, v{FT1}, 10, v{VLN}")
    a(f"ds_write_b128 v{FT0}, v[{ZQ}:{ZQ+3}] offset:{G_BASE + R_RED}")
    a(f"ds_write_b8 v{FT1}, v{VONE} offset:{FL_S6}")
    cstamp(a, 8)
    a(f"s_branch {zd}")
    a(f"{gC}:")
    cstamp(a, 8)
    a(f"buffer_store_dwordx4 v[{ZQ}:{ZQ+3}], v{VZA}, s[{R0}:{R0+3}], s{CZ0} offen sc1")
    a(f"{zd}:")
    stamp(a, 8)
    if DBG:
        a(f"s_mul_i32 s{T0_}, s{S_ROLE}, 1280", f"s_add_u32 s{T1_}, s{T0_}, s{S_GB}", f"v_lshl_add_u32 v20, v1, 2, s{T1_}")
        a(f"s_mul_i32 s{T1_}, s{S_CH}, 5376", f"s_add_u32 s{T1_}, s{T1_}, s{T0_}", f"s_add_u32 s{T1_}, s{T1_}, {hex(WS_DBG)}", f"v_lshl_add_u32 v21, v1, 2, s{T1_}")
        for k in range(5 + 1):
            a(f"ds_read_b32 v22, v20 offset:{R2 + 256*k}", "s_waitcnt lgkmcnt(0)", f"global_store_dword v21, v22, s[{P_WS}:{P_WS+1}] offset:{256*k}")
        a(f"ds_read_b32 v22, v14 offset:{C_PAR}", f"s_lshl_b32 s{T1_}, s{S_CH}, 2", f"s_add_u32 s{T1_}, s{T1_}, {hex(WS_DBG + 0x300000)}", f"v_mov_b32 v21, s{T1_}")
        a("s_waitcnt lgkmcnt(0)", f"global_store_dword v21, v22, s[{P_WS}:{P_WS+1}]")
    a(f"s_lshl_b32 s{T0_}, s{S_G}, 2", f"s_add_u32 s{T0_}, s{T0_}, s{S_ROLE}", f"v_mov_b32 v8, s{T0_}")
    a("s_waitcnt vmcnt(0)")
    a(f"ds_write_b8 v8, v{VONE} offset:{FL_ZDONE}")


def gen_wjobs(a):
    WA, WD = 10, 11
    end = newlabel("WJE"); w1 = newlabel("WJ1"); w2 = newlabel("WJ2")
    a(f"s_cmp_eq_u32 s{S_WAVE}, 2", f"s_cbranch_scc1 {w2}")
    if XP & 1: a(f"s_branch {w2}")
    a(f"s_add_u32 s{T0_}, s{S_WAVE}, 1", f"s_lshr_b32 s{T0_}, s{T0_}, 2", f"s_cmp_eq_u32 s{S_WAVE}, 1", f"s_cselect_b32 s{T0_}, 2, s{T0_}", f"s_lshl_b32 s{T0_}, s{T0_}, 10")
    a(f"v_lshl_add_u32 v{WA}, v1, 4, s{T0_}", f"v_add_u32 v{WD}, {G_BASE}, v{WA}")
    lds_wait(a, FL_UF, 12, "b4")
    a(f"s_setprio {ENV('WPRIO', 3)}")
    for g in range(3):
        E = 20 + 12 * g; o = C_U + U_SIZE * g + 2 * (240 - 16)
        a(f"ds_read_b128 v[{E}:{E+3}], v{WA} offset:{o}", f"ds_read_b128 v[{E+4}:{E+7}], v{WA} offset:{o+16}", f"ds_read_b64 v[{E+8}:{E+9}], v{WA} offset:{o+32}")
    a(f"s_cmp_eq_u32 s{S_WAVE}, 1", f"s_cbranch_scc1 {w1}")
    for full in (1, 0):
        if not full: a(f"{w1}:")
        for g in range(3):
            if g == 2: a(f"s_cmp_lt_u32 s{S_I}, 24", f"s_cbranch_scc1 {end}")
            E = lambda i: 20 + 12 * g + i
            O = lambda i: 56 + i
            T = lambda i: 65 + i
            Q = lambda i: 72 + i
            X = lambda i: 79 + i
            Y = lambda i: 85 + i
            W7, W9 = 92, 96
            a(f"ds_read_b32 v12, v{VZ} offset:{FL_G + 16*g + 4}")
            if g == 0: a("s_waitcnt lgkmcnt(7)")
            n = 8 if full else 7
            for i in range(1, n + 1): a(f"v_alignbit_b32 v{O(i)}, v{E(i+1)}, v{E(i)}, 16")
            for i in range(1, n + 1): a(f"v_pk_add_f16 v{T(i)}, v{O(i)}, v{E(i+1)}")
            for i in range(1, 5): a(f"v_pk_add_f16 v{X(i)}, v{T(i)}, v{O(i+1)}")
            for i in (range(2, 8) if full else range(3, 7)): a(f"v_pk_add_f16 v{Q(i)}, v{T(i)}, v{T(i+1)}")
            ok = newlabel("WJK")
            a("s_waitcnt lgkmcnt(0)")
            a(f"v_cmp_eq_u32 vcc, s{S_ONES}, v12", f"s_cbranch_vccnz {ok}")
            lds_wait(a, FL_G + 16 * g + 4, 12, "b4", sleep=1)
            a(f"{ok}:")
            off = G_SIZE * (g & 1)
            if g == 2: a(f"v_add_u32 v{WD}, {2*G_SIZE}, v{WD}")
            a(f"ds_write_b128 v{WD}, v[{X(1)}:{X(4)}] offset:{off + R_WS3}")
            for i in (range(2, 7) if full else range(3, 7)): a(f"v_pk_add_f16 v{Y(i)}, v{E(i)}, v{Q(i)}")
            a(f"ds_write_b128 v{WD}, v[{Y(3)}:{Y(6)}] offset:{off + R_WS5 + 16}")
            if full:
                for i in range(5, 8): a(f"v_pk_add_f16 v{X(i)}, v{T(i)}, v{O(i+1)}")
                for k in range(4): a(f"v_pk_add_f16 v{W7+k}, v{Q(2+k)}, v{X(4+k)}")
                a(f"ds_write_b128 v{WD}, v[{W7}:{W7+3}] offset:{off + R_WS7}")
                for k in range(4): a(f"v_pk_add_f16 v{W9+k}, v{Y(2+k)}, v{Q(4+k)}")
                a(f"ds_write_b128 v{WD}, v[{W9}:{W9+3}] offset:{off + R_WS9 + 16}")
            a(f"ds_write_b8 v116, v{VONE} offset:{FL_G + 16*g + 12}")
        a(f"s_branch {end}")
    a(f"{w2}:")
    for g in range(3): a(f"ds_write_b8 v116, v{VONE} offset:{FL_G + 16*g + 12}")
    if PF2 > PF1 or PFD:
        W2 = ENV("PF2W", 14)
        a(f"s_sub_u32 s{T2_}, s{S_I}, 18", f"s_cmp_ge_u32 s{T2_}, {W2}", f"s_cbranch_scc1 {end}")
        pf_lane(a, 100, 101)
        lds_wait(a, FL_UF, 12, "b4", sleep=1)
        if PF2 > PF1:
            pf_gu(a, 100, T2_, W2, PF1, PF2, 102, "KS_PF2D")
            a("KS_PF2D:")
        if PFD:
            a(f"s_sub_u32 s{T2_}, {W2-1}, s{T2_}")
            pf_down(a, T2_, W2, 0, PFD, 100, 120, end)
    a(f"{end}:")

def gen(a):
    label = NAME + "_kernel"
    a(f".globl {label}", ".p2align 8", f".type {label},@function", f"{label}:")
    a("s_cmp_ge_u32 s2, 256", "s_cbranch_scc1 KS_END")
    stamp_begin(a)
    a("s_load_dwordx16 s[4:19], s[0:1], 0", "s_load_dwordx16 s[20:35], s[0:1], 64", f"s_load_dwordx2 s[{P_WS}:{P_WS+1}], s[0:1], 128")
    a(f"v_readfirstlane_b32 s{S_WAVE}, v0", f"s_lshr_b32 s{S_WAVE}, s{S_WAVE}, 6")
    a(f"s_and_b32 s{S_XC}, s2, 7", f"s_lshr_b32 s{S_I}, s2, 3")
    if ENV("REMAP", 1):
        a(f"s_add_u32 s{T0_}, s{S_WAVE}, 8", f"s_sub_u32 s{T1_}, s{S_WAVE}, 4", f"s_cmp_lt_u32 s{S_WAVE}, 8", f"s_cselect_b32 s{T0_}, s{T0_}, s{T1_}")
        a(f"s_cmp_lt_u32 s{S_WAVE}, 4", f"s_cselect_b32 s{S_WAVE}, s{S_WAVE}, s{T0_}")
    a("v_and_b32 v1, 63, v0", "v_and_b32 v2, 15, v1", "v_lshrrev_b32 v3, 4, v1", f"v_mov_b32 v{VZ}, 0", f"v_mov_b32 v{VONE}, 1")
    a(f"s_mov_b32 s{S_GUARD}, {GUARD}", f"s_mov_b32 s{S_ONES}, 0x01010101")
    a(f"s_lshl_b32 s{S_B2}, s{S_XC}, 5", f"s_add_u32 s{S_B2}, s{S_B2}, s{S_I}")
    a(f"s_mul_i32 s{S_BLK}, s{S_XC}, 18", f"s_add_u32 s{S_BLK}, s{S_BLK}, s{S_I}")
    a(f"s_cmp_lt_u32 s{S_WAVE}, 4", "s_cbranch_scc1 KS_L")
    a(f"s_cmp_ge_u32 s{S_WAVE}, 12", "s_cbranch_scc1 KS_X")
    a("s_setprio 2")
    a(f"s_lshr_b32 s{S_G}, s{S_WAVE}, 2", f"s_sub_u32 s{S_G}, s{S_G}, 1")
    a(f"s_mul_i32 s{S_ROLE}, s{S_G}, 3", f"s_xor_b32 s{S_ROLE}, s{S_ROLE}, s{S_WAVE}", f"s_and_b32 s{S_ROLE}, s{S_ROLE}, 3")
    a(f"s_lshl_b32 s{S_CH}, s{S_B2}, 1", f"s_add_u32 s{S_CH}, s{S_CH}, s{S_G}")
    a(f"s_lshl_b32 s{T0_}, s{S_ROLE}, 11", f"s_add_u32 s{T0_}, s{T0_}, {C_STG}", f"v_lshl_add_u32 v28, v1, 3, s{T0_}")
    pre_ixlf(a)
    a("KS_GRP:")
    gen_group(a)
    a(f"s_cmp_lt_u32 s{S_I}, 18", "s_cbranch_scc1 KS_T")
    a("s_waitcnt lgkmcnt(0)")
    endwave(a)
    a("KS_X:")
    a(f"s_cmp_lt_u32 s{S_I}, 24", "s_cbranch_scc1 KS_X2")
    a(f"s_setprio {ENV('KCPRIO', 2)}")
    a("KS_XC:")
    a(f"s_mov_b32 s{S_G}, 2", f"s_add_u32 s{S_ROLE}, s{S_WAVE}, 3", f"s_and_b32 s{S_ROLE}, s{S_ROLE}, 3")
    a(f"s_lshl_b32 s{S_CH}, s{S_XC}, 3", f"s_and_b32 s{T0_}, s{S_I}, 7", f"s_add_u32 s{S_CH}, s{S_CH}, s{T0_}", f"s_add_u32 s{S_CH}, s{S_CH}, 512")
    a(f"s_lshl_b32 s{T0_}, s{S_ROLE}, 11", f"s_add_u32 s{T0_}, s{T0_}, {C_STG}", f"v_lshl_add_u32 v28, v1, 3, s{T0_}")
    a("s_branch KS_GRP")
    a("KS_X2:")
    a(f"s_cmp_lt_u32 s{S_I}, 8", "s_cbranch_scc1 KS_X3")
    a(f"s_sub_u32 s{T5_}, s{S_WAVE}, 8")
    a("s_branch KS_LN1")
    a("KS_X3:")
    a(f"s_lshl_b32 s{T0_}, s2, 4", f"s_add_u32 s{T0_}, s{T0_}, s{S_WAVE}", f"s_cmp_lg_u32 s{T0_}, 12", "s_cbranch_scc1 KS_X3B")
    a("s_setprio 3")
    a(f"s_memrealtime s[{T0_}:{T1_}]")
    a("v_and_b32 v6, 3, v1", "v_lshlrev_b32 v7, 2, v6", "v_min_u32 v6, 2, v6", "v_lshlrev_b32 v6, 2, v6", "v_cmp_eq_u32 vcc, 3, v1")
    a("s_waitcnt lgkmcnt(0)")
    a(f"v_mov_b32 v8, s{T0_}", f"v_mov_b32 v9, s{T1_}", "v_alignbit_b32 v8, v8, v8, v6", f"v_cndmask_b32 v9, v{VZ}, v9, vcc", "v_xor_b32 v8, v8, v9")
    a("v_and_b32 v9, 0xf0000fff, v8", "v_and_b32 v10, 0xfff000, v8", "v_lshl_or_b32 v9, v10, 4, v9", "v_lshrrev_b32 v10, 12, v8", "v_and_b32 v10, 0xf000, v10")
    a("v_or3_b32 v9, v9, v10, v9", "v_or_b32 v9, 0x80000000, v9")
    a("s_mov_b64 exec, 15")
    a(f"global_store_dword v7, v9, s[{P_DBG}:{P_DBG+1}] sc1")
    a("s_mov_b64 exec, -1")
    a("s_setprio 0")
    a("KS_X3B:")
    if KOFF:
        a(f"s_setprio {ENV('KPPRIO', 3)}")
        a("s_branch KS_XC")
    a("s_waitcnt lgkmcnt(0)")
    a("s_barrier")
    a("s_branch KS_G")
    a("KS_X4:")
    a(f"s_cmp_lt_u32 s{S_I}, 18", "s_cbranch_scc1 KS_G")
    a("s_waitcnt vmcnt(0) lgkmcnt(0)")
    endwave(a)
    a("KS_L:")
    a("v_lshlrev_b32 v6, 2, v0", f"ds_write_b32 v6, v{VZ}")
    a("v_mov_b32 v8, 0", "v_mov_b32 v9, 0", f"s_min_u32 s{T0_}, s{S_WAVE}, 2", f"s_mul_i32 s{T0_}, s{T0_}, {U_SIZE}", "v_min_u32 v6, 59, v1", f"v_lshl_add_u32 v6, v6, 3, s{T0_}")
    a(f"ds_write_b64 v6, v[8:9] offset:{C_U}")
    a(f"s_mov_b32 s{T5_}, s{S_WAVE}")
    a(f"s_sub_u32 s{T0_}, s{S_I}, 8", f"s_cmp_lt_u32 s{T0_}, 16", "s_cbranch_scc0 KS_L0")
    a("KS_LN1:")
    a("s_setprio 3")
    gen_ln1(a)
    a(f"s_mov_b32 s{S_G}, 1")
    a("s_branch KS_L2B")
    a("KS_L0:")
    a(f"s_and_b32 s{T0_}, s{S_I}, 15", f"s_lshl_b32 s{T1_}, s{S_XC}, 4", f"s_add_u32 s{T0_}, s{T0_}, s{T1_}")
    a("v_and_b32 v59, 3, v1", "v_lshlrev_b32 v59, 2, v59")
    a(f"s_lshl_b32 s{T4_}, s{T0_}, 6", f"s_add_u32 s{T1_}, s{T4_}, {hex(WS_FLAG1)}", f"v_add_u32 v7, s{T1_}, v59")
    a(f"s_mul_i32 s{T1_}, s{T0_}, {CLR_WG}", f"s_add_u32 s{T1_}, s{T1_}, {hex(WS_CLR)}")
    a("v_lshlrev_b32 v6, 4, v0")
    a("v_mov_b32 v12, -1", "v_mov_b32 v13, -1", "v_mov_b32 v14, -1", "v_mov_b32 v15, -1")
    a("s_setprio 3")
    pf_lane(a, 16, 17)
    a("s_waitcnt lgkmcnt(0)")
    a(f"s_add_u32 s{R1}, s{P_WS}, s{T1_}", f"s_addc_u32 s{R1+1}, s{P_WS+1}, 0", f"s_mov_b32 s{R1+2}, {CLR_WG}", f"s_mov_b32 s{R1+3}, 0x20000")
    a("s_barrier")
    if NE:
        a(f"s_and_b32 s{T2_}, s{S_I}, 15", f"s_lshl_b32 s{T3_}, s{S_WAVE}, 4", f"s_add_u32 s{T2_}, s{T2_}, s{T3_}")
        pf_gu(a, 16, T2_, 64, 16 * NL, PF0, 18, "KS_L1E")
        a("KS_L1E:")
    if ENV("CTRIG", 1): lds_wait(a, FL_PARAM, 8, "nz", sleep=2)
    for k in range(5):
        a(f"s_movk_i32 s{T0_}, {4096*k}")
        a(f"buffer_store_dwordx4 v[12:15], v6, s[{R1}:{R1+3}], s{T0_} offen sc1")
    stamp(a, 1)
    a(f"global_load_dword v58, v59, s[{P_DBG}:{P_DBG+1}] sc1")
    dbg_wait(a, 0)
    stamp(a, 2)
    a(f"ds_write_b32 v59, v58 offset:{FL_NONCE}")
    a("s_mov_b64 exec, 1")
    a(f"ds_add_rtn_u32 v8, v{VZ}, v{VONE} offset:{FL_LNACK}")
    a("s_mov_b64 exec, -1")
    for d in range(1, 4): a(f"v_lshrrev_b32 v{58-d}, {3*d}, v58")
    a("s_waitcnt lgkmcnt(0)")
    a(f"v_readfirstlane_b32 s{T0_}, v8")
    a(f"s_cmp_lg_u32 s{T0_}, 3", "s_cbranch_scc1 KS_L2")
    a("s_mov_b64 exec, 15")
    a(f"global_store_dword v7, v58, s[{P_WS}:{P_WS+1}] sc1")
    a("s_mov_b64 exec, -1")
    a(f"s_and_b32 s{T2_}, s{S_I}, 7")
    a(f"s_cmp_ge_u32 s{S_I}, 8", "s_cbranch_scc1 KS_L1C")
    if NN:
        a("s_setprio 0")
        lds_wait(a, FL_G + 32 + 4, 8, "b4", sleep=2)
        a("s_setprio 3")
        pf_gu(a, 16, T2_, 8, PF0, PF0 + 8 * NN, 18, "KS_L2")
    a("s_branch KS_L2")
    a("KS_L1C:")
    if NC: pf_gu(a, 16, T2_, 8, PF0 + 8 * NN, PF1, 18, "KS_L2")
    a("KS_L2:")
    a(f"s_mov_b32 s{S_G}, 0")
    a("KS_L2B:")
    srd(a, R0, P_WS, XBYTES, WS_UT)
    a("v_lshrrev_b32 v7, 1, v1", "v_lshlrev_b32 v7, 6, v7", "v_and_b32 v10, 1, v1", "v_lshl_add_u32 v7, v10, 4, v7", "v_lshlrev_b32 v9, 4, v1")
    a(f"s_lshl_b32 s{T0_}, s{S_WAVE}, 11", f"s_lshl_b32 s{T1_}, s{S_B2}, 13", f"s_add_u32 s{T1_}, s{T1_}, s{T0_}")
    a(f"s_lshl_b32 s{T3_}, s{S_XC}, 3", f"s_add_u32 s{T3_}, s{T3_}, s{S_I}", f"s_add_u32 s{T3_}, s{T3_}, {512 - 24}")
    a(f"s_lshr_b32 s{T4_}, s{T3_}, 1", f"s_lshl_b32 s{T4_}, s{T4_}, 13", f"s_and_b32 s{T3_}, s{T3_}, 1", f"s_lshl_b32 s{T3_}, s{T3_}, 5")
    a(f"s_add_u32 s{T3_}, s{T3_}, s{T4_}", f"s_add_u32 s{T3_}, s{T3_}, s{T0_}")
    a(f"s_cmp_lt_u32 s{S_I}, 24", f"s_cselect_b32 s{T3_}, {XBYTES}, s{T3_}", f"s_cselect_b32 s{T2_}, 0, {hex(TAGM)}")
    a(f"v_mov_b32_dpp v64, v58 quad_perm:[0,1,0,1] {DPPM}", f"v_mov_b32_dpp v65, v58 quad_perm:[2,3,2,3] {DPPM}")
    a(f"s_bitcmp1_b32 s{S_I}, 0", "s_cselect_b64 vcc, -1, 0", "v_cndmask_b32 v64, v64, v65, vcc")
    for d in range(4): a(f"v_and_b32 v{60+d}, {hex(TAGM)}, v{58-d}")
    for d in range(3, 0, -1): a(f"v_lshrrev_b32 v{64+d}, {3*d}, v64")
    for d in range(4): a(f"v_and_b32 v{64+d}, s{T2_}, v{64+d}")
    a(f"s_lshl_b32 s{T4_}, s{S_WAVE}, 10", f"s_add_u32 s{T4_}, s{T4_}, {C_U + 480}")
    a("v_bfe_u32 v11, v1, 1, 1", f"v_mul_u32_u24 v11, {U_SIZE}, v11", "v_lshl_add_u32 v11, v10, 4, v11", "v_lshrrev_b32 v10, 2, v1", "v_lshl_add_u32 v11, v10, 5, v11", f"v_add_u32 v11, s{T4_}, v11")
    a(f"v_add_u32 v10, s{T4_}, v9")
    a(f"v_mov_b32 v116, s{S_WAVE}")
    a(f"s_add_u32 s{T0_}, s{T0_}, {hex(WS_FLAG1)}", "v_lshrrev_b32 v12, 2, v1", "v_lshl_add_u32 v12, v12, 6, v59", f"v_add_u32 v12, s{T0_}, v12")
    a(f"s_cmp_eq_u32 s{S_G}, 0", "s_cbranch_scc1 KS_L2C")
    a("s_waitcnt vmcnt(0)")
    a("s_branch KS_L2D")
    a("KS_L2C:")
    if ENV("UTRIG", 1):
        a("s_setprio 0")
        lds_wait(a, FL_G + {1: 4, 2: 16, 3: 16 + 4, 4: 16 + 8, 5: 8, 6: 0}[ENV("UTRIG", 1)], 8, "b4", sleep=2)
        a("s_setprio 3")
    a("KS_L2D:")
    stamp(a, 5)
    if ENV("UDELAY", 0): a(f"s_sleep {ENV('UDELAY', 0)}")
    lp = newlabel("UP"); l1 = newlabel("UPE")
    a(f"s_branch {l1}")
    a(f"{lp}:")
    a(f"s_sleep {ENV('USLEEP', 2)}")
    a(f"{l1}:")
    UM = os.environ.get("UMOD", "sc1").replace("_", " ")
    a(f"global_load_dword v32, v12, s[{P_WS}:{P_WS+1}] sc1", f"global_load_dword v33, v12, s[{P_WS}:{P_WS+1}] offset:1024 sc1")
    a(f"buffer_load_dwordx4 v[20:23], v9, s[{R0}:{R0+3}], s{T1_} offen {UM}")
    a(f"buffer_load_dwordx4 v[24:27], v9, s[{R0}:{R0+3}], s{T1_} offen offset:1024 {UM}")
    a(f"buffer_load_dwordx4 v[28:31], v7, s[{R0}:{R0+3}], s{T3_} offen {UM}")
    guard(a)
    for k in range(3):
        a(f"s_waitcnt vmcnt({2-k})")
        if k == 0: a("v_xor_b32 v32, v58, v32", "v_xor_b32 v33, v58, v33")
        for d in range(4): a(f"v_xor_b32 v{20+4*k+d}, v{(64 if k == 2 else 60)+d}, v{20+4*k+d}")
        a(f"v_or3_b32 v44, v{20+4*k}, v{21+4*k}, v{44 if k else 21}", f"v_or3_b32 v44, v{22+4*k}, v{23+4*k}, v44")
    a(f"v_and_b32 v44, {hex(TAGM)}, v44", "v_or3_b32 v44, v44, v32, v33", "v_cmp_ne_u32 vcc, 0, v44", f"s_cbranch_vccnz {lp}")
    stamp(a, 6)
    a("ds_write_b128 v11, v[20:23]", "ds_write_b128 v11, v[24:27] offset:512", f"ds_write_b128 v10, v[28:31] offset:{2*U_SIZE}")
    a(f"ds_write_b8 v116, v{VONE} offset:{FL_UF}")
    stamp(a, 7)
    gen_wjobs(a)
    a("s_setprio 0")
    a(f"s_lshr_b32 s{T0_}, s{S_B2}, 6", f"s_lshl_b32 s{T0_}, s{T0_}, 9")
    a(f"s_bfe_u32 s{T1_}, s{S_B2}, 0x20004", f"s_lshl_b32 s{T1_}, s{T1_}, 6", f"s_add_u32 s{T0_}, s{T0_}, s{T1_}")
    a(f"s_and_b32 s{T1_}, s{S_B2}, 3", f"s_lshl_b32 s{T1_}, s{T1_}, 4", f"s_add_u32 s{T0_}, s{T0_}, s{T1_}")
    a(f"s_and_b32 s{T1_}, s{S_B2}, 12", f"s_add_u32 s{T0_}, s{T0_}, s{T1_}")
    a(f"s_lshr_b32 s{T1_}, s{S_WAVE}, 1", f"s_lshl_b32 s{T1_}, s{T1_}, 8", f"s_add_u32 s{T0_}, s{T0_}, s{T1_}")
    a(f"s_and_b32 s{T1_}, s{S_WAVE}, 1", f"s_lshl_b32 s{T1_}, s{T1_}, 1", f"s_add_u32 s{T0_}, s{T0_}, s{T1_}")
    a("v_lshrrev_b32 v113, 5, v1", "v_and_b32 v114, 31, v1")
    a(f"v_add_u32 v112, s{T0_}, v113")
    a("v_mul_u32_u24 v115, 1152, v112", "v_lshl_add_u32 v8, v114, 2, v115", "v_lshl_add_u32 v115, v114, 4, v115", "v_lshlrev_b32 v7, 2, v114", "v_lshlrev_b32 v6, 4, v114")
    a(f"v_bfe_u32 v111, v1, 3, 1", f"v_add_u32 v111, s{T0_}, v111", "v_mul_u32_u24 v111, 1152, v111", "v_and_b32 v9, 7, v1", "v_lshl_add_u32 v111, v9, 4, v111")
    srd(a, R0, P_X, XBYTES)
    srd(a, R1, P_WR, 1152)
    a(f"buffer_load_dwordx4 v[10:13], v115, s[{R0}:{R0+3}], 0 offen")
    a(f"buffer_load_dwordx4 v[14:17], v115, s[{R0}:{R0+3}], 0 offen offset:512")
    a(f"buffer_load_dword v18, v8, s[{R0}:{R0+3}], 0 offen offset:1024")
    a(f"buffer_load_dwordx4 v[50:53], v6, s[{R1}:{R1+3}], 0 offen")
    a(f"buffer_load_dwordx4 v[54:57], v6, s[{R1}:{R1+3}], 0 offen offset:512")
    a(f"buffer_load_dword v58, v7, s[{R1}:{R1+3}], 0 offen offset:1024")
    a(f"s_cmp_lt_u32 s{S_I}, 18", "s_cbranch_scc1 KS_L4")
    a(f"s_mul_i32 s{T0_}, s{S_XC}, 14", f"s_add_u32 s{T0_}, s{T0_}, s{S_I}", f"s_mul_i32 s{T0_}, s{T0_}, {CLRP_WG}", f"s_add_u32 s{T0_}, s{T0_}, {hex(WS_PART - 18*CLRP_WG)}")
    a(f"s_add_u32 s{R1}, s{P_WS}, s{T0_}", f"s_addc_u32 s{R1+1}, s{P_WS+1}, 0", f"s_mov_b32 s{R1+2}, {CLRP_WG}", f"s_mov_b32 s{R1+3}, 0x20000")
    a("v_lshlrev_b32 v6, 4, v0", "v_mov_b32 v60, -1", "v_mov_b32 v61, -1", "v_mov_b32 v62, -1", "v_mov_b32 v63, -1")
    for k in range(6):
        a(f"s_movk_i32 s{T0_}, {4096*k}")
        a(f"buffer_store_dwordx4 v[60:63], v6, s[{R1}:{R1+3}], s{T0_} offen sc1")
    a("KS_L4:")
    srd(a, R0, P_WS, 0x240000, WS_ZB1)
    srd(a, R1, P_OUT, XBYTES)
    srd(a, R2_, P_WS, XBYTES, WS_X2)
    srd(a, R3, P_WS, 12288, WS_KEYS)
    a(f"s_not_b32 s{T1_}, s{S_B2}", f"v_xor_b32 v8, s{T1_}, v0")
    a("v_lshrrev_b32 v6, 1, v0", "v_lshlrev_b32 v6, 6, v6", "v_and_b32 v8, 1, v8", "v_lshl_add_u32 v6, v8, 4, v6")
    a(f"s_lshr_b32 s{T0_}, s{S_B2}, 2", f"s_lshl_b32 s{T0_}, s{T0_}, 15", f"s_and_b32 s{T1_}, s{S_B2}, 1", f"s_lshl_b32 s{T1_}, s{T1_}, 14", f"s_add_u32 s{T0_}, s{T0_}, s{T1_}")
    a(f"s_and_b32 s{T1_}, s{S_B2}, 2", f"s_lshl_b32 s{T1_}, s{T1_}, 4", f"s_add_u32 s{T0_}, s{T0_}, s{T1_}")
    a(f"s_lshr_b32 s{T2_}, s{S_B2}, 2", f"s_lshl_b32 s{T2_}, s{T2_}, 12", f"s_and_b32 s{T1_}, s{S_B2}, 3", f"s_lshl_b32 s{T1_}, s{T1_}, 4")
    a(f"s_add_u32 s{T2_}, s{T2_}, s{T1_}", f"s_lshl_b32 s{T1_}, s{S_WAVE}, 10", f"s_add_u32 s{T2_}, s{T2_}, s{T1_}", f"s_add_u32 s{T2_}, s{T2_}, 0x200000")
    a(f"s_add_u32 s{T1_}, s{T0_}, 8192", "v_lshlrev_b32 v9, 6, v2")
    a(f"s_mul_i32 s{T3_}, s{S_WAVE}, 2304", f"s_add_u32 s{T3_}, s{T3_}, {C_XR}", f"v_lshl_add_u32 v117, v114, 5, s{T3_}", f"v_lshl_add_u32 v110, v114, 3, s{T3_}")
    a(f"s_lshl_b32 s{T3_}, s{S_WAVE}, 9", f"s_add_u32 s{T3_}, s{T3_}, {C_RED}", f"v_lshl_add_u32 v108, v1, 2, s{T3_}", f"v_lshl_add_u32 v109, v1, 4, s{T3_}")
    a(f"s_mov_b32 s{T3_}, 0x02020202", f"v_mul_lo_u32 v118, v113, s{T3_}", "v_add_u32 v118, 0x05040100, v118")
    a(f"v_lshlrev_b32 v8, 2, v0", f"v_add_u32 v8, {C_XR}, v8")
    a(f"s_lshl_b32 s{T3_}, s{S_WAVE}, 6", f"s_add_u32 s{T3_}, s{T3_}, {C_XR + 2048}", f"v_lshl_add_u32 v119, v2, 2, s{T3_}")
    a("s_waitcnt vmcnt(0)")
    X = 20
    for j in range(9): unpack(a, X + 2 * j, 10 + j)
    lds_wait(a, FL_ZDONE + 4, 60, "b4", sleep=1)
    a("s_setprio 3")
    if PFD2 > PFD:
        a(f"s_sub_u32 s{T5_}, s{S_I}, 18", f"s_cmp_ge_u32 s{T5_}, 6", "s_cbranch_scc1 KS_PF3E", f"s_cmp_lg_u32 s{S_WAVE}, 2", "s_cbranch_scc1 KS_PF3E")
        pf_down(a, T5_, 6, PFD, PFD2, 100, 120, "KS_PF3E", R4)
        a("KS_PF3E:")
    stamp2(a, 1)
    if ENV("ZGATE", 1):
        zpoll(a, [f"buffer_load_dwordx4 v[68:71], v{VZ}, s[{R0}:{R0+3}], s{T2_} offen sc1"], list(range(68, 72)), ENV("ZSLEEP", 1))
        if ENV("ZDELAY", 0): a(f"s_sleep {ENV('ZDELAY', 0)}")
    zpoll(a, [f"buffer_load_dwordx4 v[60:63], v6, s[{R0}:{R0+3}], s{T0_} offen sc1",
           f"buffer_load_dwordx4 v[64:67], v6, s[{R0}:{R0+3}], s{T1_} offen sc1",
           f"buffer_load_dwordx4 v[68:71], v9, s[{R0}:{R0+3}], s{T2_} offen sc1"], list(range(60, 72)), ENV("ZSLEEP", 1))
    stamp2(a, 2)
    for k in range(2):
        a(f"ds_write2st64_b32 v8, v{60+4*k}, v{61+4*k} offset0:{4*k} offset1:{9+4*k}")
        a(f"ds_write2st64_b32 v8, v{62+4*k}, v{63+4*k} offset0:{18+4*k} offset1:{27+4*k}")
    a("ds_write2st64_b32 v119, v68, v69 offset0:0 offset1:9")
    a("ds_write2st64_b32 v119, v70, v71 offset0:18 offset1:27")
    a(f"ds_write_b8 v116, v{VONE} offset:{FL_ZF}")
    stamp2(a, 3)
    lds_wait(a, FL_ZF, 60, "b4")
    for k in range(4):
        a(f"ds_read_b128 v[{60+4*k}:{63+4*k}], v117 offset:{1024*(k>>1) + 16*(k&1)}")
    a("ds_read_b64 v[76:77], v110 offset:2048")
    for j in range(9):
        if j % 2 == 0: a(f"s_waitcnt lgkmcnt({4-j//2})")
        a(f"v_perm_b32 v44, v{61+2*j}, v{60+2*j}, v118")
        unpack(a, 46, 44)
        a(f"v_pk_add_f32 v[46:47], v[46:47], v[{X+2*j}:{X+2*j+1}]")
        a(f"v_cvt_pk_bf16_f32 v44, v46, v47")
        unpack(a, X + 2 * j, 44)
    ln_stats(a, X, 40, 42, 44, 46, 48)
    stamp2(a, 4)
    a("v_mov_b32 v60, 0", "v_mov_b32 v61, 0")
    for j in range(9):
        ln_apply_pair(a, X + 2 * j, 40, 42, 44, 10 + j)
        unpack(a, 46, 50 + j)
        a("v_pk_fma_f32 v[60:61], v[44:45], v[46:47], v[60:61]")
        a(f"v_pk_add_f32 v[{X+2*j}:{X+2*j+1}], v[44:45], v[{X+2*j}:{X+2*j+1}]")
    a("v_add_f32 v60, v60, v61")
    red32(a, "v_add_f32", 60, 61)
    a("v_cvt_pk_bf16_f32 v60, v60, v60")
    a("v_ashrrev_i32 v61, 31, v60", "v_or_b32 v61, 0x80000000, v61", "v_xor_b32 v60, v60, v61", "v_and_b32 v60, 0xffff0000, v60")
    a("v_sub_u32 v62, 0x87ff, v112", "v_or_b32 v60, v60, v62", "v_lshl_add_u32 v61, v116, 1, v113", "v_lshlrev_b32 v61, 2, v61")
    a("s_mov_b32 exec_lo, 1", "s_mov_b32 exec_hi, 1")
    a(f"ds_write_b32 v61, v60 offset:{C_KEY}")
    a("s_mov_b64 exec, 1")
    a(f"ds_add_rtn_u32 v62, v{VZ}, v{VONE} offset:{FL_KCNT}")
    a("s_mov_b64 exec, 3")
    a("v_lshlrev_b32 v61, 4, v114", f"s_lshl_b32 s{T0_}, s{S_B2}, 5")
    a(f"ds_read_b128 v[64:67], v61 offset:{C_KEY}")
    a("s_waitcnt lgkmcnt(1)")
    a(f"v_readfirstlane_b32 s{T1_}, v62")
    a(f"s_cmp_lg_u32 s{T1_}, 3", "s_cbranch_scc1 KS_NOKEY")
    a("s_waitcnt lgkmcnt(0)")
    a(f"buffer_store_dwordx4 v[64:67], v61, s[{R3}:{R3+3}], s{T0_} offen sc1")
    a("KS_NOKEY:")
    a("s_mov_b64 exec, -1")
    a(f"v_cvt_pk_bf16_f32 v58, v{X+16}, v{X+17}")
    a("ds_write_b32 v108, v18", "ds_write_b32 v108, v58 offset:256", "ds_read_b128 v[64:67], v109")
    a(f"buffer_store_dwordx4 v[10:13], v115, s[{R2_}:{R2_+3}], 0 offen sc1")
    a(f"buffer_store_dwordx4 v[14:17], v115, s[{R2_}:{R2_+3}], 0 offen offset:512 sc1")
    for j in range(8):
        a(f"v_cvt_pk_bf16_f32 v{50+j}, v{X+2*j}, v{X+2*j+1}")
    a("s_mov_b64 exec, 0xffff")
    a("s_waitcnt lgkmcnt(0)")
    a(f"buffer_store_dwordx4 v[64:67], v111, s[{R2_}:{R2_+3}], 0 offen offset:1024 sc1")
    a("s_mov_b64 exec, 0xffff0000")
    a(f"buffer_store_dwordx4 v[64:67], v111, s[{R1}:{R1+3}], 0 offen offset:1024 sc1")
    a("s_mov_b64 exec, -1")
    a(f"buffer_store_dwordx4 v[50:53], v115, s[{R1}:{R1+3}], 0 offen sc1")
    a(f"buffer_store_dwordx4 v[54:57], v115, s[{R1}:{R1+3}], 0 offen offset:512 sc1")
    stamp2(a, 5)
    a(f"s_cmp_lg_u32 s{T1_}, 3", "s_cbranch_scc1 KS_NOKEY2")
    a("s_waitcnt vmcnt(6)")
    a(f"ds_write_b32 v{VZ}, v{VONE} offset:{FL_KACK}")
    a("KS_NOKEY2:")
    a("s_waitcnt vmcnt(0)")
    a("s_mov_b64 exec, 1")
    a(f"ds_add_rtn_u32 v62, v{VZ}, v{VONE} offset:{FL_F2CNT}")
    a("s_waitcnt lgkmcnt(0)")
    a("v_cmp_eq_u32 vcc, 3, v62", "s_and_b64 exec, exec, vcc", "s_cbranch_execz KS_NOF2")
    a(f"s_lshl_b32 s{T0_}, s2, 4", f"s_add_u32 s{T0_}, s{T0_}, 8192")
    a(f"buffer_store_dword v{VONE}, v{VZ}, s[{R3}:{R3+3}], s{T0_} offen sc1")
    a("KS_NOF2:")
    a("s_mov_b64 exec, -1")
    a("s_setprio 0")
    a(f"s_cmp_lt_u32 s{S_I}, 18", "s_cbranch_scc1 KS_B")
    a("s_waitcnt lgkmcnt(0)")
    endwave(a)
    a("KS_T:")
    a("s_setprio 0")
    a(f"s_cmp_ge_u32 s{S_WAVE}, 10", "s_cbranch_scc1 KS_P")
    a("v_and_b32 v6, 1, v1", "v_subrev_u32 v6, 1, v6")
    a("v_and_b32 v7, 7, v1", "v_lshlrev_b32 v7, 2, v7")
    srd(a, R3, P_WS, 12288, WS_KEYS)
    a(f"s_cmp_eq_u32 s{S_WAVE}, 9", "s_cbranch_scc1 KS_W9")
    a(f"s_cmp_eq_u32 s{S_WAVE}, 8", "s_cbranch_scc1 KS_L2W")
    a(f"s_sub_u32 s{T1_}, s{S_WAVE}, 4", f"s_lshl_b32 s{T0_}, s{T1_}, 10", f"v_lshl_add_u32 v33, v1, 4, s{T0_}", f"s_movk_i32 s{T0_}, 4096")
    a(f"s_lshl_b32 s{T1_}, s{T1_}, 7", "v_lshlrev_b32 v32, 4, v2", "v_lshl_add_u32 v32, v3, 5, v32", f"v_add_u32 v32, s{T1_}, v32")
    lds_wait(a, FL_KACK, 8, "nz", sleep=1)
    a("s_setprio 2")
    if ENV('KDELAY', 20): a(f"s_sleep {ENV('KDELAY', 20)}")
    stamp2(a, 1)
    zpoll(a, [f"buffer_load_dwordx4 v[8:11], v33, s[{R3}:{R3+3}], 0 offen sc1",
           f"buffer_load_dwordx4 v[12:15], v33, s[{R3}:{R3+3}], s{T0_} offen sc1"], list(range(8, 16)), ENV("KSLEEP", 4))
    a(f"ds_write_b32 v{VZ}, v{VONE} offset:{FL_KSEEN}")
    stamp2(a, 2)
    pool = Pool(range(16, 28))
    x = [8, 9, 10, 11]; y = [12, 13, 14, 15]
    for (i, j) in ((0, 1), (2, 3), (0, 2), (1, 3), (1, 2)):
        ce_inlane(a, x, i, j, pool); ce_inlane(a, y, i, j, pool)
    clean8(a, x, pool, 6, rev=True); clean8(a, y, pool, 6, rev=True)
    merge_pair(a, x, y, pool); clean8(a, x, pool, 6)
    for M in MIRRORS:
        merge_mirror(a, x, pool, M); clean8(a, x, pool, 6)
    for i in range(4): a(f"v_mov_b32 v{28+i}, v{x[i]}")
    a("s_mov_b32 exec_lo, 0x00030003", "s_mov_b32 exec_hi, 0x00030003")
    a(f"ds_write_b128 v32, v[28:31] offset:{C_CAND}")
    a("s_mov_b64 exec, -1")
    stamp2(a, 3)
    a("s_setprio 0")
    a("s_branch KS_B")
    a("KS_L2W:")
    srd(a, R2_, P_WS, XBYTES, WS_X2)
    a(f"s_mov_b32 s{T0_}, 0xcccccccc", f"s_mov_b32 s{T1_}, 0xcccccccc", f"s_mov_b32 s{T2_}, 0xf0f0f0f0", f"s_mov_b32 s{T3_}, 0xf0f0f0f0", f"s_movk_i32 s{T4_}, 1152")
    a("v_lshrrev_b32 v34, 3, v1", "v_lshlrev_b32 v34, 4, v34", "v_lshlrev_b32 v33, 4, v2")
    lds_wait(a, FL_KACK, 8, "nz", sleep=1)
    a("s_setprio 2")
    a("KS_L2POLL:")
    a(f"ds_read_b128 v[8:11], v33 offset:{C_CAND}")
    a(f"ds_read_b128 v[12:15], v33 offset:{C_CAND + 256}")
    guard(a)
    a("s_waitcnt lgkmcnt(0)")
    a("v_min3_u32 v16, v8, v9, v10", "v_min3_u32 v17, v11, v12, v13", "v_min3_u32 v16, v16, v14, v15", "v_min_u32 v16, v16, v17", "v_cmp_eq_u32 vcc, 0, v16")
    a("s_cbranch_vccnz KS_L2POLL")
    stamp2(a, 1)
    pool = Pool(range(16, 28))
    x = [8, 9, 10, 11]; y = [12, 13, 14, 15]
    merge_pair(a, x, y, pool); clean8(a, x, pool, 6)
    for li, M in enumerate(MIRRORS):
        merge_mirror(a, x, pool, M)
        if li < 2: clean8(a, x, pool, 6)
    a(f"ds_read_b32 v35, v{VZ} offset:{FL_ROWSOK}")
    a(f"v_cndmask_b32 v30, v{x[0]}, v{x[1]}, s[{T0_}:{T1_}]", f"v_cndmask_b32 v31, v{x[2]}, v{x[3]}, s[{T0_}:{T1_}]", f"v_cndmask_b32 v30, v30, v31, s[{T2_}:{T3_}]")
    a("v_mov_b32_dpp v30, v30 row_shr:8 row_mask:0xf bank_mask:0xc")
    a("v_and_b32 v31, 0x7ff, v30", "v_sub_u32 v31, 2047, v31", f"v_mad_u32_u24 v31, v31, s{T4_}, v34")
    a("s_waitcnt lgkmcnt(0)")
    a("v_cmp_ne_u32 vcc, 0, v35", "s_cbranch_vccnz KS_RW1")
    lds_wait(a, FL_ROWSOK, 35, "nz")
    a("KS_RW1:")
    for k in range(9):
        a(f"s_mov_b32 m0, {C_XR + 896*k}")
        a(f"buffer_load_dwordx4 v31, s[{R2_}:{R2_+3}], 0 offen offset:{128*k} sc1 lds")
    a(f"ds_write_b32 v7, v30 offset:{C_SEL}")
    stamp2(a, 2)
    a("s_waitcnt vmcnt(0)")
    a(f"ds_write_b32 v{VZ}, v{VONE} offset:{FL_XRDY}")
    stamp2(a, 3)
    a("s_setprio 0")
    a("s_branch KS_B")
    a("KS_W9:")
    a("v_lshlrev_b32 v33, 4, v1", f"s_movk_i32 s{T0_}, 0x2000")
    srd(a, R2_, P_WS, XBYTES, WS_X2)
    srd(a, R0, P_WS, 0x240000, WS_ZB1)
    srd(a, R1, P_X, XBYTES)
    a("v_bfe_u32 v43, v1, 2, 3", f"s_lshl_b32 s{T1_}, s{S_BLK}, 3", f"v_add_u32 v43, s{T1_}, v43")
    a("v_bfe_u32 v40, v43, 4, 1", "v_and_b32 v41, 3, v1", "v_lshl_add_u32 v40, v40, 2, v41", "v_lshlrev_b32 v40, 2, v40")
    a("v_lshrrev_b32 v41, 5, v43", "v_lshlrev_b32 v41, 4, v41", "v_and_b32 v42, 15, v43", "v_add_u32 v41, v41, v42")
    lds_wait(a, FL_KSEEN, 8, "nz", sleep=1)
    if ENV('F2DELAY', 8): a(f"s_sleep {ENV('F2DELAY', 8)}")
    a("s_setprio 2")
    zpoll(a, [f"buffer_load_dword v{8+k}, v33, s[{R3}:{R3+3}], s{T0_} offen offset:{1024*k} sc1" for k in range(4)], list(range(8, 12)), ENV("F2SLEEP", 4))
    a(f"ds_write_b32 v{VZ}, v{VONE} offset:{FL_ROWSOK}")
    stamp2(a, 1)
    a("s_setprio 0")
    lds_wait(a, C_SEL, 12, "nz", addr=7, sleep=1)
    stamp2(a, 2)
    a(f"ds_read_b32 v19, v40 offset:{C_SEL}")
    a("s_waitcnt lgkmcnt(0)")
    a("v_and_b32 v14, 0x7ff, v19", "v_sub_u32 v14, 2047, v14")
    a("v_mul_u32_u24 v23, 1152, v14", "v_lshl_add_u32 v23, v41, 1, v23")
    a(f"buffer_load_ushort v20, v23, s[{R2_}:{R2_+3}], 0 offen sc1")
    a(f"buffer_load_ushort v17, v23, s[{R1}:{R1+3}], 0 offen")
    a("v_lshrrev_b32 v15, 9, v14", "v_bfe_u32 v16, v14, 6, 2", "v_lshl_add_u32 v15, v15, 2, v16", "v_bfe_u32 v16, v14, 2, 2", "v_lshl_add_u32 v15, v15, 2, v16")
    a("v_bfe_u32 v16, v14, 4, 1")
    a("v_bfe_u32 v24, v14, 8, 1", "v_and_b32 v25, 3, v14", "v_lshl_add_u32 v24, v24, 2, v25", "v_lshlrev_b32 v24, 1, v24")
    a("v_bfe_u32 v25, v14, 5, 1", "v_lshl_add_u32 v24, v25, 5, v24")
    a("v_lshl_add_u32 v25, v15, 1, v16", "v_lshl_add_u32 v25, v25, 14, v24")
    a("v_lshrrev_b32 v26, 1, v41", "v_lshl_add_u32 v25, v26, 6, v25", "v_xor_b32 v26, v41, v16", "v_not_b32 v26, v26", "v_and_b32 v26, 1, v26", "v_lshl_add_u32 v25, v26, 4, v25")
    a("v_lshl_add_u32 v26, v15, 12, v24", "v_lshl_add_u32 v26, v16, 4, v26", "v_lshl_add_u32 v26, v41, 6, v26", f"v_add_u32 v26, {0x200000 - 512*64}, v26")
    a("v_cmp_gt_u32 vcc, 0x200, v41", "v_cndmask_b32 v25, v26, v25, vcc")
    a(f"buffer_load_ushort v18, v25, s[{R0}:{R0+3}], 0 offen sc1")
    srd(a, R2_, P_WS, 64, WS_IDX)
    a("v_ashrrev_i32 v22, 31, v19", "v_not_b32 v22, v22", "v_or_b32 v22, 0x80000000, v22", "v_xor_b32 v22, v19, v22", "v_and_b32 v22, 0xffff0000, v22")
    a(f"v_mul_f32 v22, {f32(-LOG2E)}, v22", "v_exp_f32 v22, v22", "v_add_f32 v22, 1.0, v22", "v_rcp_f32 v22, v22")
    a("v_cvt_pk_bf16_f32 v22, v22, v22", "v_lshlrev_b32 v22, 16, v22")
    a("v_and_b32 v14, 31, v1", "v_lshlrev_b32 v14, 4, v14")
    a("s_waitcnt vmcnt(0)")
    a("v_lshlrev_b32 v17, 16, v17", "v_lshlrev_b32 v18, 16, v18", "v_add_f32 v17, v17, v18", "v_cvt_pk_bf16_f32 v17, v17, v17")
    a("v_and_b32 v21, 0xffff0000, v17", "v_lshlrev_b32 v20, 16, v20")
    a(f"ds_write_b128 v14, v[20:23] offset:{C_SIDE}")
    a("s_cmp_lg_u32 s2, 0", "s_cbranch_scc1 KS_W9E")
    a(f"buffer_store_dword v12, v7, s[{R2_}:{R2_+3}], 0 offen")
    a("KS_W9E:")
    a("s_waitcnt lgkmcnt(0)")
    stamp2(a, 3)
    endwave(a)
    a("KS_B:")
    srd(a, R0, P_WS, PART_BYTES, WS_PART)
    a("v_bfe_u32 v16, v1, 2, 2", "v_lshl_add_u32 v16, v3, 3, v16", "v_mul_u32_u24 v16, 1152, v16", "v_and_b32 v17, 3, v1", "v_lshl_add_u32 v16, v17, 3, v16")
    a(f"s_lshl_b32 s{T0_}, s{S_WAVE}, 7", f"s_add_u32 s{T0_}, s{T0_}, {C_DOWN}", f"v_add_u32 v16, s{T0_}, v16")
    lds_wait(a, FL_DOWN, 17, "b4")
    WTD = 48
    for jt in range(4):
        a(f"ds_read_b64_tr_b16 v[{WTD+4*jt}:{WTD+4*jt+1}], v16 offset:{32*jt}")
        a(f"ds_read_b64_tr_b16 v[{WTD+4*jt+2}:{WTD+4*jt+3}], v16 offset:{32*jt + 4608}")
    a("v_and_b32 v16, 7, v2", "v_lshlrev_b32 v16, 6, v16", "v_lshl_add_u32 v16, v3, 4, v16")
    a(f"s_mul_i32 s{T0_}, s{S_BLK}, 18432", f"s_lshl_b32 s{T1_}, s{S_WAVE}, 11", f"s_add_u32 s{T0_}, s{T0_}, s{T1_}")
    a("v_lshlrev_b32 v17, 4, v1")
    a("s_waitcnt lgkmcnt(0)")
    a("s_barrier")
    a("s_barrier")
    a(f"ds_read_b128 v[20:23], v16 offset:{C_ACT}")
    a("s_waitcnt lgkmcnt(0)")
    for j in range(4):
        a(f"v_mfma_f32_16x16x32_bf16 v[{32+4*j}:{35+4*j}], v[20:23], v[{WTD+4*j}:{WTD+4*j+3}], 0")
    for j in (0, 2):
        for r in range(4): a(f"v_permlane32_swap_b32 v{32+4*j+r}, v{36+4*j+r}")
        for r in range(4): a(f"v_min_u32 v{32+4*j+r}, -2, v{32+4*j+r}")
        a(f"buffer_store_dwordx4 v[{32+4*j}:{35+4*j}], v17, s[{R0}:{R0+3}], s{T0_} offen offset:{512*j} sc1")
    stamp2(a, 8)
    a("s_waitcnt vmcnt(0)", "s_barrier")
    endwave(a)
    a("KS_G0:")
    a(f"ds_write_b8 v15, v{VONE} offset:{FL_G+4}")
    a("s_setprio 0")
    a("KS_G:")
    a(f"s_mov_b32 s{SP0}, 0x05040100", f"s_mov_b32 s{SP1}, 0x07060302")
    a("s_waitcnt vmcnt(0)")
    stamp(a, 5)
    g_addr_setup(a, 46)
    SG = eval(os.environ.get("SG", "[0,0,0,0]"))
    if any(SG):
        a(f"s_mul_i32 s{T0_}, s{S_ROLE}, {32*9216}", f"s_lshl_b32 s{T1_}, s{S_BLK}, 6", f"s_add_u32 s{T0_}, s{T0_}, s{T1_}")
        a(f"s_add_u32 s{R0}, s{P_GATE}, s{T0_}", f"s_addc_u32 s{R0+1}, s{P_GATE+1}, 0", f"s_add_u32 s{R0+2}, s{P_UP}, s{T0_}", f"s_addc_u32 s{R0+3}, s{P_UP+1}, 0")
        cnt = sum(SG[g] << (8 * g) for g in range(4))
        a(f"s_lshl_b32 s{T1_}, s{S_G}, 3", f"s_lshr_b32 s{T1_}, {hex(cnt)}, s{T1_}", f"s_and_b32 s{T1_}, s{T1_}, 0xff", "s_cbranch_scc0 KS_SGE")
        a("KS_SGL:")
        for r in range(8):
            a(f"s_load_dword s{R1}, s[{R0}:{R0+1}], {r*9216}", f"s_load_dword s{R1+1}, s[{R0+2}:{R0+3}], {r*9216}")
        a(f"s_add_u32 s{R0}, s{R0}, {8*9216}", f"s_addc_u32 s{R0+1}, s{R0+1}, 0", f"s_add_u32 s{R0+2}, s{R0+2}, {8*9216}", f"s_addc_u32 s{R0+3}, s{R0+3}, 0")
        a(f"s_sub_u32 s{T1_}, s{T1_}, 1", f"s_cmp_lg_u32 s{T1_}, 0", "s_cbranch_scc1 KS_SGL")
        a("KS_SGE:")
        a("s_waitcnt lgkmcnt(0)")
        stamp(a, 8)
    TR = {1: (FL_PARAM, "nz"), 2: (FL_UF, "b4"), 3: (FL_ZF, "b4"), 4: (FL_KACK, "nz"), 5: (FL_KSEEN, "nz"), 6: (FL_ZDONE + 4, "b4")}
    for t in sorted(set(GT)):
        l = newlabel("GT")
        mask = sum(1 << g for g in range(4) if GT[g] == t)
        if mask != 15: a(f"s_lshr_b32 s{T0_}, {mask}, s{S_G}", f"s_bitcmp1_b32 s{T0_}, 0", f"s_cbranch_scc0 {l}")
        lds_wait(a, TR[t][0], 10, TR[t][1], sleep=2)
        if t >= 3: a("s_setprio 1")
        a(f"{l}:")
    g_loads(a, 46, range(4))
    stamp(a, 6)
    def transpose(src, dst):
        for j in range(4):
            for p in range(4):
                lo = src + 2 * (2 * p) + (j >> 1); hi = src + 2 * (2 * p + 1) + (j >> 1)
                a(f"v_perm_b32 v{dst+4*j+p}, v{hi}, v{lo}, s{SP0 + (j & 1)}")
    W = GW
    a(f"s_bitcmp1_b32 s{S_G}, 0", "s_cbranch_scc1 KS_G4")
    g_loads(a, 46, [4])
    a("KS_G4:")
    a(f"v_mov_b32 v6, s{S_G}", f"ds_write_b8 v6, v{VONE} offset:{FL_GISS}")
    a("s_waitcnt vmcnt(0)")
    stamp(a, 7)
    for ks in range(5): transpose(W + 16 * ks, W + 16 * ks - 16)
    GACC = 112
    a(f"s_lshl_b32 s{T0_}, s{S_ROLE}, 9", f"s_add_u32 s{T0_}, s{T0_}, {C_XR}", "v_and_b32 v6, 7, v2", f"v_lshl_add_u32 v7, v6, 4, s{T0_}", "v_lshl_add_u32 v7, v3, 7, v7")
    a(f"s_lshl_b32 s{T0_}, s{S_G}, 6", f"v_add_u32 v11, s{T0_}, v1")
    a("v_lshrrev_b32 v8, 5, v11", "v_and_b32 v9, 31, v11")
    a("v_and_b32 v10, 3, v9", "v_lshlrev_b32 v10, 9, v10")
    a("v_lshrrev_b32 v9, 2, v9", "v_lshl_add_u32 v10, v9, 4, v10")
    a("v_lshrrev_b32 v9, 2, v8", "v_lshl_add_u32 v10, v9, 8, v10")
    a("v_and_b32 v9, 3, v8", "v_lshl_add_u32 v10, v9, 2, v10")
    a("v_lshlrev_b32 v11, 1, v11")
    a(f"s_lshl_b32 s{T0_}, s{S_G}, 11", f"v_lshl_add_u32 v9, v1, 4, s{T0_}")
    lds_wait(a, C_SEL, 12, "nz", sleep=2)
    a("s_setprio 2")
    lds_wait(a, FL_XRDY, 12, "nz")
    stamp2(a, 1)
    for ks in range(5):
        a(f"ds_read_b128 v[{12+4*ks}:{15+4*ks}], v7 offset:{512*ks}")
    for ks in range(5):
        if ks == 4: a(f"s_bitcmp1_b32 s{S_G}, 0", "s_cbranch_scc1 KS_G5")
        a(f"s_waitcnt lgkmcnt({4-ks})")
        for j in range(4):
            c = "0" if ks == 0 else f"v[{GACC+4*j}:{GACC+4*j+3}]"
            a(f"v_mfma_f32_16x16x32_bf16 v[{GACC+4*j}:{GACC+4*j+3}], v[{12+4*ks}:{15+4*ks}], v[{32+16*ks+4*j}:{35+16*ks+4*j}], {c}")
    a("KS_G5:")
    a("s_mov_b32 exec_lo, -1", "s_mov_b32 exec_hi, 0")
    a.flush(6)
    for j in range(4):
        a(f"ds_write_b128 v9, v[{GACC+4*j}:{GACC+4*j+3}] offset:{C_RED + 512*j}")
    a("s_mov_b64 exec, -1")
    a("s_waitcnt lgkmcnt(0)", "s_barrier")
    stamp2(a, 2)
    for w in range(4):
        a(f"ds_read_b32 v{32+2*w}, v10 offset:{C_RED + 2048*w}")
        a(f"ds_read_b32 v{33+2*w}, v10 offset:{C_RED + 2048*w + 128}")
    a("s_waitcnt lgkmcnt(4)")
    a("v_pk_add_f32 v[32:33], v[32:33], v[34:35]")
    a("s_waitcnt lgkmcnt(0)")
    a("v_pk_add_f32 v[36:37], v[36:37], v[38:39]")
    a("v_pk_add_f32 v[32:33], v[32:33], v[36:37]")
    a("v_cvt_pk_bf16_f32 v34, v32, v33")
    unpack(a, 32, 34)
    a(f"v_mul_f32 v34, {f32(-LOG2E)}, v32", "v_exp_f32 v34, v34", "v_add_f32 v34, 1.0, v34", "v_rcp_f32 v34, v34", "v_mul_f32 v34, v32, v34")
    a("v_cvt_pk_bf16_f32 v34, v34, v34", "v_lshlrev_b32 v34, 16, v34")
    a("v_mul_f32 v34, v34, v33", "v_cvt_pk_bf16_f32 v34, v34, v34")
    a(f"ds_write_b16 v11, v34 offset:{C_ACT}")
    a("s_waitcnt lgkmcnt(0)")
    a("s_barrier")
    a("s_branch KS_P2")
    a("KS_P:")
    srd(a, R1, P_DOWN, F * D * 2)
    a(f"s_sub_u32 s{T2_}, s{S_WAVE}, 10", "v_lshlrev_b32 v6, 4, v1", f"s_mul_i32 s{T0_}, s{S_BLK}, 36864", f"s_mul_i32 s{T1_}, s{T2_}, 18432", f"s_add_u32 s{T0_}, s{T0_}, s{T1_}", f"s_add_u32 s{T1_}, s{T1_}, {C_DOWN}")
    a(f"s_lshl_b32 s{T2_}, s{T2_}, 1", f"v_mov_b32 v7, s{T2_}", f"v_mov_b32 v8, s{S_ONES}")
    TR[7] = (FL_GISS, "b4")
    if DT: lds_wait(a, TR[DT][0], 10, TR[DT][1], sleep=2)
    a("s_setprio 1")
    stamp2(a, 1)
    for k in range(18):
        if k % 4 == 0:
            a(f"s_add_u32 m0, s{T1_}, {1024*k}")
            if k: a(f"s_add_u32 s{T0_}, s{T0_}, 4096")
        a(f"buffer_load_dwordx4 v6, s[{R1}:{R1+3}], s{T0_} offen offset:{1024*(k&3)} lds")
    a("s_waitcnt vmcnt(0)")
    stamp2(a, 2)
    a(f"ds_write_b16 v7, v8 offset:{FL_DOWN}")
    a("s_setprio 0")
    a("s_waitcnt lgkmcnt(0)")
    a("s_barrier")
    a("s_barrier")
    a("s_setprio 2")
    a("KS_P2:")
    a(f"s_sub_u32 s{S_G}, s{S_WAVE}, 10")
    srd(a, R0, P_WS, PART_BYTES, WS_PART)
    srd(a, R1, P_OUT, XBYTES)
    a("v_lshrrev_b32 v8, 3, v1", "v_mul_u32_u24 v8, 18432, v8", "v_and_b32 v9, 7, v1", "v_lshl_add_u32 v8, v9, 4, v8")
    a(f"s_mul_i32 s{T0_}, s{S_G}, {24*18432}", f"s_lshl_b32 s{T1_}, s{S_BLK}, 7", f"s_add_u32 s{T0_}, s{T0_}, s{T1_}", f"s_add_u32 s{T1_}, s{T0_}, {8*18432}", f"s_add_u32 s{T2_}, s{T0_}, {16*18432}")
    a(f"s_lshl_b32 s{T3_}, s{S_G}, 7", f"v_lshl_add_u32 v6, v9, 4, s{T3_}", "v_lshl_add_u32 v6, v3, 2, v6")
    a(f"v_lshlrev_b32 v12, 2, v1", f"v_add_u32 v12, {C_RED2}, v12", "v_lshlrev_b32 v13, 4, v1")
    a("s_barrier")
    stamp2(a, 3)
    zpoll(a, [f"buffer_load_dwordx4 v[{32+4*k}:{35+4*k}], v8, s[{R0}:{R0+3}], s{T0_+k} offen sc1" for k in range(3)], list(range(32, 44)), 1)
    stamp2(a, 4)
    a("v_pk_add_f32 v[32:33], v[32:33], v[36:37]", "v_pk_add_f32 v[34:35], v[34:35], v[38:39]")
    a("v_pk_add_f32 v[32:33], v[32:33], v[40:41]", "v_pk_add_f32 v[34:35], v[34:35], v[42:43]")
    for r in range(4): a(f"v_add_f32_dpp v{32+r}, v{32+r}, v{32+r} row_ror:8 {DPPM}")
    a("v_permlane16_swap_b32 v32, v33", "v_permlane16_swap_b32 v34, v35")
    a("v_add_f32 v32, v32, v33", "v_add_f32 v34, v34, v35")
    a("v_permlane32_swap_b32 v32, v34")
    a("v_add_f32 v32, v32, v34")
    a(f"ds_write_b32 v6, v32 offset:{C_RED2}")
    a("s_waitcnt lgkmcnt(0)", "s_barrier")
    a(f"s_cmp_lg_u32 s{S_G}, 0", "s_cbranch_scc1 KS_PEND")
    a("s_mov_b32 exec_lo, -1", "s_mov_b32 exec_hi, 0")
    for g in range(3):
        a(f"ds_read2_b32 v[{32+2*g}:{33+2*g}], v12 offset0:{64*g} offset1:{64*g + 32}")
    a(f"ds_read_b128 v[40:43], v13 offset:{C_SIDE}")
    a("s_waitcnt lgkmcnt(0)")
    a("v_pk_add_f32 v[32:33], v[32:33], v[34:35]", "v_pk_add_f32 v[32:33], v[32:33], v[36:37]", "v_add_f32 v8, v32, v33")
    a("v_cvt_pk_bf16_f32 v8, v8, v8", "v_lshlrev_b32 v8, 16, v8")
    a("v_mul_f32 v8, v8, v42", "v_cvt_pk_bf16_f32 v8, v8, v8", "v_lshlrev_b32 v8, 16, v8")
    a("v_add_f32 v8, v8, v40", "v_cvt_pk_bf16_f32 v8, v8, v8", "v_lshlrev_b32 v8, 16, v8")
    a("v_add_f32 v8, v8, v41", "v_cvt_pk_bf16_f32 v8, v8, v8")
    a(f"buffer_store_short v8, v43, s[{R1}:{R1+3}], 0 offen")
    a("KS_PEND:")
    stamp_end(a)
    a("KS_ABORT:")
    a("KS_END:")
    a("s_endpgm")
    return f""".amdhsa_kernel {label}
  .amdhsa_next_free_vgpr 128
  .amdhsa_next_free_sgpr {NSGPR}
  .amdhsa_accum_offset 128
  .amdhsa_group_segment_fixed_size 0
  .amdhsa_kernarg_size 136
  .amdhsa_user_sgpr_count 2
  .amdhsa_user_sgpr_kernarg_segment_ptr 1
  .amdhsa_system_sgpr_workgroup_id_x 1
  .amdhsa_float_denorm_mode_32 3
.end_amdhsa_kernel
"""

def main():
    hdr = open(f"/code/{NAME}.s.ref").read().split("; Override launch geometry")[0]
    out = hdr
    out += f"; @launch grid=(256,1,1) block=(1024,1,1) lds={LDS_BYTES}\n"
    out += '.amdgcn_target "amdgcn-amd-amdhsa--gfx950"\n.text\n'
    a = Asm()
    d = gen(a)
    out += a.text()
    out += '.section .rodata,"a"\n.p2align 6\n' + d
    path = sys.argv[1] if len(sys.argv) > 1 else "ks.s"
    open(path, "w").write(out)
    print("wrote", path, len(out))

if __name__ == "__main__":
    main()
```

```python
import sys, struct, math, os
sys.path.insert(0, "gen")
from asmlib import Asm

NAME = "sequential_preLN__ssm_conv_s4__moe_arch_mod__prompt"
L, D, N, F = 2048, 576, 128, 4608
XBYTES = L * D * 2
WS_UT = 0x000000
WS_X2 = 0x300000
WS_ZB1 = 0x600000
WS_ZB2 = 0x800000
WS_KEYS = 0x840000
WS_PART = 0x850000
WS_CLR, CLR_WG = 0x600000, 18560
CLRP_WG = 23744
WS_FLAG1 = 0xB00000
TAGM = 0x00070007
WS_IDX = 0xB10000
WS_KT = 0xB20000
WS_DBG = 0xC00000
WS_STAMP = 0x8000000
PART_BYTES = 144 * 4608 * 4
C_FL, C_CAND, C_SEL, C_KEY, C_PAR, C_ACT, C_SIDE, C_RED2 = 0, 256, 768, 800, 832, 1024, 1536, 2048
C_U, U_SIZE = 3072, 4672
C_LNB = C_U + 3 * U_SIZE
C_XR = C_LNB
C_RED = C_LNB + 9280
G_BASE, G_SIZE = 35840, 36672
C_STG = G_BASE + 2 * G_SIZE + 36864
LDS_BYTES = C_STG + 8192
FL_LN1, FL_LNACK, FL_KCNT, FL_UF, FL_ZF, FL_KACK, FL_ROWSOK, FL_XRDY, FL_PARAM, FL_DOWN, FL_ZDONE = 0, 8, 12, 16, 20, 24, 28, 32, 36, 40, 48
FL_G = 64
FL_S6 = 160
FL_F2CNT, FL_INIT, FL_CLROK, FL_GISS, FL_KSEEN, FL_UTOK, FL_PRE, FL_NONCE = 176, 180, 188, 192, 196, 200, 208, 224
KG_ROW = 544
KG_T = [0, 16 * KG_ROW, 32 * KG_ROW, 41 * KG_ROW]
R_WS3 = 0
R_WS5 = R_WS3 + 193 * 16
R_WS7 = R_WS5 + 193 * 16
R_WS9 = R_WS7 + 128 * 16
R_RED = 10752
R2 = 31232
T_TAB = R2
T_DRE = R2 + 1296
T_DRO = T_DRE + 1280 + 64
T_G3 = T_DRO + 1280
T_G5 = T_G3 + 256
T_G7E = T_G5 + 256
T_G7O = T_G7E + 192
T_G9E = T_G7O + 192
T_G9O = T_G9E + 192
assert T_G9O + 192 <= G_SIZE and R_WS9 + 129 * 16 <= R_RED and R_RED + 13 * 1024 <= R2 and 57 * KG_ROW <= R2
IDX_ZERO, IDX_DUMMY = 641, 642
C_DOWN = G_BASE + 2 * G_SIZE

def f32(x): return "0x%08x" % struct.unpack("<I", struct.pack("<f", x))[0]
def f32v(x): return struct.unpack("<f", struct.pack("<f", x))[0]
LOG2E = math.log2(math.e)
LOG2E_HI = f32v(LOG2E); LOG2E_LO = LOG2E - LOG2E_HI
INV2PI = 1.0 / (2 * math.pi)
INV2PI_HI = f32v(INV2PI); INV2PI_LO = INV2PI - INV2PI_HI
DPPM = "row_mask:0xf bank_mask:0xf"
ENV = lambda k, d: int(os.environ.get(k, str(d)))
STAMP = ENV("STAMP", 0)
DBG = ENV("DBG", 0)
GUARD = 1 << 19
XP = ENV("XP", 0)
KOFF = ENV("KOFF", 1)
PTAG = ENV("PTAG", 1)
MOD = lambda k, d="sc1": os.environ.get(k, d).replace("_", " ")

P_X, P_ARE, P_LDT, P_DSK, P_WR, P_GATE, P_UP, P_DOWN, P_OUT, P_DBG, P_WS = 4, 6, 18, 20, 24, 26, 28, 30, 32, 34, 36
S_WAVE, S_GUARD, S_XC, S_I = 38, 39, 40, 41
R0, R1, R2_, R3, R4 = 64, 68, 72, 76, 80
S_ONES, S_GB, S_ROLE, S_G, S_CH, S_BLK, S_B2 = 84, 85, 86, 87, 88, 89, 90
T0_, T1_, T2_, T3_, T4_, T5_ = 92, 93, 94, 95, 96, 97
SP0, SP1 = 98, 99
NSGPR = 100

def srd(a, d, base, nbytes, off=0):
    if off:
        a(f"s_add_u32 s{d}, s{base}, {hex(off)}", f"s_addc_u32 s{d+1}, s{base+1}, 0")
    else:
        a(f"s_mov_b32 s{d}, s{base}", f"s_mov_b32 s{d+1}, s{base+1}")
    a(f"s_mov_b32 s{d+2}, {hex(nbytes)}", f"s_mov_b32 s{d+3}, 0x20000")

def red16(a, op, v):
    for r in (8, 4, 2, 1):
        a(f"{op}_dpp v{v}, v{v}, v{v} row_ror:{r} {DPPM}")
def red32(a, op, v, t):
    red16(a, op, v)
    a(f"v_mov_b32 v{t}, v{v}", f"v_permlane16_swap_b32 v{v}, v{t}", f"{op} v{v}, v{v}, v{t}")
def red64x2(a, op1, v1, t1, op2, v2, t2):
    for r in (8, 4, 2, 1):
        a(f"{op1}_dpp v{v1}, v{v1}, v{v1} row_ror:{r} {DPPM}", f"{op2}_dpp v{v2}, v{v2}, v{v2} row_ror:{r} {DPPM}")
    for ins in ("v_permlane16_swap_b32", "v_permlane32_swap_b32"):
        a(f"v_mov_b32 v{t1}, v{v1}", f"v_mov_b32 v{t2}, v{v2}", f"{ins} v{v1}, v{t1}", f"{ins} v{v2}, v{t2}")
        a(f"{op1} v{v1}, v{v1}, v{t1}", f"{op2} v{v2}, v{v2}, v{t2}")

def stamp_begin(a):
    if not STAMP: return
    a("s_memrealtime s[44:45]")
    for i in range(1, 9): a(f"s_mov_b32 s{44+2*i}, 0")
def cstamp(a, i):
    if STAMP == 9: a(f"s_memtime s[{44+2*i}:{45+2*i}]")
def kstamp(a, i):
    if STAMP == 7: a(f"s_memtime s[{44+2*i}:{45+2*i}]")
def stamp(a, i):
    if STAMP == 7 and i == 1: return kstamp(a, 1)
    if not STAMP or STAMP in (7, 9): return
    assert 1 <= i <= 8
    a(f"{'s_memtime' if STAMP == 8 else 's_memrealtime'} s[{44+2*i}:{45+2*i}]")
def stamp2(a, i):
    if STAMP in (2, 3): stamp(a, i)
def stamp_end(a):
    if not STAMP: return
    a("s_waitcnt vmcnt(0) lgkmcnt(0)")
    a("s_memrealtime s[62:63]")
    a(f"s_lshl_b32 s43, s2, 4", f"s_add_u32 s43, s43, s{S_WAVE}", "s_lshl_b32 s43, s43, 6", f"s_add_u32 s43, s43, {hex(WS_STAMP)}")
    a("s_mov_b64 exec, 1")
    a("s_waitcnt lgkmcnt(0)")
    a("v_mov_b32 v1, s43")
    for i in range(10): a(f"v_mov_b32 v{4+i}, s{44+2*i}")
    a(f"global_store_dwordx4 v1, v[4:7], s[{P_WS}:{P_WS+1}]")
    a(f"global_store_dwordx4 v1, v[8:11], s[{P_WS}:{P_WS+1}] offset:16")
    a(f"global_store_dwordx2 v1, v[12:13], s[{P_WS}:{P_WS+1}] offset:32")
def endwave(a):
    stamp_end(a)
    a("s_endpgm")

def unpack(a, dst, src):
    a(f"v_lshlrev_b32 v{dst}, 16, v{src}", f"v_and_b32 v{dst+1}, 0xffff0000, v{src}")

def ln_stats(a, X, m2, rinv2, t0, t1, t2):
    a(f"v_pk_add_f32 v[{t0}:{t0+1}], v[{X}:{X+1}], v[{X+2}:{X+3}]")
    a(f"v_pk_add_f32 v[{t1}:{t1+1}], v[{X+4}:{X+5}], v[{X+6}:{X+7}]")
    for j in range(4, 9):
        t = t0 if j % 2 == 0 else t1
        a(f"v_pk_add_f32 v[{t}:{t+1}], v[{t}:{t+1}], v[{X+2*j}:{X+2*j+1}]")
    a(f"v_pk_add_f32 v[{t0}:{t0+1}], v[{t0}:{t0+1}], v[{t1}:{t1+1}]")
    a(f"v_add_f32 v{t0}, v{t0}, v{t0+1}")
    red32(a, "v_add_f32", t0, t1)
    a(f"v_mul_f32 v{t2}, {f32(1.0/576)}, v{t0}")
    a(f"v_mov_b32 v{t2+1}, v{t2}")
    a(f"v_cvt_pk_bf16_f32 v{m2}, v{t2}, v{t2}")
    a(f"v_and_b32 v{m2}, 0xffff0000, v{m2}", f"v_mov_b32 v{m2+1}, v{m2}")
    first = {t0: True, t1: True}
    for j in range(9):
        t = t0 if j % 2 == 0 else t1
        a(f"v_pk_add_f32 v[{rinv2}:{rinv2+1}], v[{X+2*j}:{X+2*j+1}], v[{t2}:{t2+1}] neg_lo:[0,1] neg_hi:[0,1]")
        if first[t]:
            a(f"v_pk_mul_f32 v[{t}:{t+1}], v[{rinv2}:{rinv2+1}], v[{rinv2}:{rinv2+1}]"); first[t] = False
        else:
            a(f"v_pk_fma_f32 v[{t}:{t+1}], v[{rinv2}:{rinv2+1}], v[{rinv2}:{rinv2+1}], v[{t}:{t+1}]")
    a(f"v_pk_add_f32 v[{t0}:{t0+1}], v[{t0}:{t0+1}], v[{t1}:{t1+1}]")
    a(f"v_add_f32 v{t0}, v{t0}, v{t0+1}")
    red32(a, "v_add_f32", t0, t1)
    a(f"v_mul_f32 v{t0}, {f32(1.0/576)}, v{t0}")
    a(f"v_cvt_pk_bf16_f32 v{t0}, v{t0}, v{t0}", f"v_and_b32 v{t0}, 0xffff0000, v{t0}")
    a(f"v_add_f32 v{t0}, {f32(1e-5)}, v{t0}")
    a(f"v_cvt_pk_bf16_f32 v{t0}, v{t0}, v{t0}", f"v_and_b32 v{t0}, 0xffff0000, v{t0}")
    a(f"v_sqrt_f32 v{t0}, v{t0}")
    a(f"v_cvt_pk_bf16_f32 v{t0}, v{t0}, v{t0}", f"v_and_b32 v{t0}, 0xffff0000, v{t0}")
    a(f"v_rcp_f32 v{rinv2}, v{t0}")
    a(f"v_mov_b32 v{rinv2+1}, v{rinv2}")

def ln_apply_pair(a, x, m2, rinv2, t, P):
    a(f"v_pk_add_f32 v[{t}:{t+1}], v[{x}:{x+1}], v[{m2}:{m2+1}] neg_lo:[0,1] neg_hi:[0,1]")
    a(f"v_cvt_pk_bf16_f32 v{P}, v{t}, v{t+1}")
    unpack(a, t, P)
    a(f"v_pk_mul_f32 v[{t}:{t+1}], v[{t}:{t+1}], v[{rinv2}:{rinv2+1}]")
    a(f"v_cvt_pk_bf16_f32 v{P}, v{t}, v{t+1}")
    unpack(a, t, P)

VZ, VONE = 4, 5
_lbl = [0]
def newlabel(p="L"):
    _lbl[0] += 1
    return f"{p}_{_lbl[0]}"
def guard(a):
    a(f"s_sub_u32 s{S_GUARD}, s{S_GUARD}, 1", "s_cbranch_scc1 KS_ABORT")
def lds_wait(a, off, t, kind="b4", addr=VZ, sleep=0):
    l = newlabel("W")
    a(f"{l}:")
    if sleep: a(f"s_sleep {sleep}")
    if kind == "b8":
        a(f"ds_read_b64 v[{t}:{t+1}], v{addr} offset:{off}")
    else:
        a(f"ds_read_{'u8' if kind == 'u8' else 'b32'} v{t}, v{addr} offset:{off}")
    guard(a)
    a("s_waitcnt lgkmcnt(0)")
    if kind == "b8": a(f"v_and_b32 v{t}, v{t}, v{t+1}")
    if kind in ("nz", "u8"): a(f"v_cmp_eq_u32 vcc, 0, v{t}")
    else: a(f"v_cmp_ne_u32 vcc, s{S_ONES}, v{t}")
    a(f"s_cbranch_vccnz {l}")

def zpoll(a, loads, regs, sleep):
    lp = newlabel("ZP"); l1 = newlabel("ZPE")
    a(f"s_branch {l1}")
    a(f"{lp}:")
    a(f"s_sleep {sleep}")
    a(f"{l1}:")
    for l in loads: a(l)
    guard(a)
    a("s_waitcnt vmcnt(0)")
    a(f"v_max3_u32 v44, v{regs[0]}, v{regs[1]}, v{regs[2]}")
    r = regs[3:]
    while len(r) >= 2: a(f"v_max3_u32 v44, v44, v{r[0]}, v{r[1]}"); r = r[2:]
    if r: a(f"v_max_u32 v44, v44, v{r[0]}")
    a("v_cmp_eq_u32 vcc, -1, v44", f"s_cbranch_vccnz {lp}")

class Pool:
    def __init__(self, regs): self.free = list(regs)
    def get(self): return self.free.pop(0)
    def put(self, r): self.free.append(r)
def ce_inlane(a, x, i, j, pool):
    t = pool.get()
    a(f"v_max_u32 v{t}, v{x[i]}, v{x[j]}", f"v_min_u32 v{x[j]}, v{x[i]}, v{x[j]}")
    pool.put(x[i]); x[i] = t
def clean8(a, x, pool, DE, rev=False):
    t = [pool.get() for _ in range(4)]
    for i in range(4):
        a(f"v_mov_b32_dpp v{t[i]}, v{x[3-i if rev else i]} quad_perm:[1,0,3,2] {DPPM}")
    for i in range(4):
        a(f"v_med3_u32 v{t[i]}, v{x[i]}, v{t[i]}, v{DE}")
    for i in range(4): pool.put(x[i]); x[i] = t[i]
    for (i, j) in ((0, 2), (1, 3), (0, 1), (2, 3)): ce_inlane(a, x, i, j, pool)
def merge_mirror(a, x, pool, M):
    c = [pool.get() for _ in range(4)]
    for i in range(4):
        a(f"v_max_u32_dpp v{c[i]}, v{x[3-i]}, v{x[i]} {M} {DPPM}")
    for i in range(4): pool.put(x[i]); x[i] = c[i]
def merge_pair(a, x, y, pool):
    for i in range(4):
        a(f"v_max_u32_dpp v{x[i]}, v{y[3-i]}, v{x[i]} quad_perm:[1,0,3,2] {DPPM}")
    for i in range(4): pool.put(y[i])
MIRRORS = ("quad_perm:[3,2,1,0]", "row_half_mirror", "row_mirror")

GW = 48
def g_addr_setup(a, A):
    a(f"s_sub_u32 s{S_G}, s{S_WAVE}, 12")
    a(f"s_mul_i32 s{T0_}, s{S_G}, 9", f"s_add_u32 s{T0_}, s{T0_}, 1", f"s_lshr_b32 s{S_ROLE}, s{T0_}, 1")
    a(f"s_lshl_b32 s{T0_}, s{S_ROLE}, 5", f"v_lshl_add_u32 v7, v3, 3, s{T0_}", "v_mul_u32_u24 v7, 9216, v7")
    a("v_and_b32 v6, 7, v2", "v_lshl_add_u32 v7, v6, 3, v7")
    a(f"s_lshl_b32 s{T0_}, s{S_BLK}, 6", f"v_add_u32 v7, s{T0_}, v7")
    a("v_cmp_gt_u32 vcc, 8, v2")
    a(f"s_mov_b32 s{R3}, 9216", f"s_mov_b32 s{R3+1}, 0", f"s_mov_b32 s{R3+2}, {9216*25}", f"s_mov_b32 s{R3+3}, 0")
    a(f"v_mov_b32 v{A}, s{P_GATE}", f"v_mov_b32 v{A+1}, s{P_GATE+1}", f"v_mov_b32 v6, s{P_UP}")
    a(f"v_cndmask_b32 v{A}, v6, v{A}, vcc", f"v_mov_b32 v6, s{P_UP+1}", f"v_cndmask_b32 v{A+1}, v6, v{A+1}, vcc")
    a(f"v_add_co_u32 v{A}, vcc, v{A}, v7", f"v_addc_co_u32 v{A+1}, vcc, 0, v{A+1}, vcc")
def g_loads(a, A, kss):
    for ks in kss:
        for r in range(8):
            d = GW + 16 * ks + 2 * r
            a(f"global_load_dwordx2 v[{d}:{d+1}], v[{A}:{A+1}], off" + (" nt" if ENV("GNT", 0) else ""))
            if not (ks == 4 and r == 7):
                a(f"v_lshl_add_u64 v[{A}:{A+1}], v[{A}:{A+1}], 0, s[{R3 if r < 7 else R3+2}:{R3+1 if r < 7 else R3+3}]")
GTRIG = ENV("GTRIG", 2)
PF = ENV("PF", 1)
NL, NN, NC = ENV("NL", 3), ENV("NN", 6), ENV("NC", 3)
NE = ENV("NE", 0)
NLL = ENV("NLL", 0)
PF0 = 16 * NL + 16 * NE + 16 * NLL
PF1 = PF0 + 8 * NN + 8 * NC
assert PF1 <= 166
PF2 = ENV("PF2", 166); PFD = ENV("PFD", 42); PFD2 = ENV("PFD2", 81)
GT = eval(os.environ.get("GT", "[2,2,6,6]")); DT = ENV("DT", 3)
def pf_lane(a, v, t):
    a(f"v_mul_u32_u24 v{v}, 57, v1", f"v_lshrrev_b32 v{v}, 9, v{v}", f"v_mul_u32_u24 v{t}, 9, v{v}", f"v_sub_u32 v{t}, v1, v{t}", f"v_mul_u32_u24 v{v}, 9216, v{v}", f"v_lshl_add_u32 v{v}, v{t}, 7, v{v}")
def pf_gu_setup(a, sidx, R=R2_, tb=T3_, tt=T4_):
    a(f"s_bitcmp1_b32 s{sidx}, 0", f"s_cselect_b32 s{R}, s{P_UP}, s{P_GATE}", f"s_cselect_b32 s{R+1}, s{P_UP+1}, s{P_GATE+1}")
    a(f"s_mov_b32 s{R+2}, {hex(D*F*2)}", f"s_mov_b32 s{R+3}, 0x20000")
    a(f"s_lshr_b32 s{tb}, s{sidx}, 1", f"s_mul_i32 s{tb}, s{tb}, {7*9216}", f"s_mul_i32 s{tt}, s{S_XC}, 1152", f"s_add_u32 s{tb}, s{tb}, s{tt}")
def pf_gu(a, v, sidx, nw, u0, u1, dst, done):
    assert u0 % 2 == 0 and nw % 2 == 0
    pf_gu_setup(a, sidx)
    k = 0
    while u0 + k * nw < u1:
        if u0 + (k + 1) * nw > u1: a(f"s_cmp_ge_u32 s{sidx}, {u1 - u0 - k*nw}", f"s_cbranch_scc1 {done}")
        a(f"s_add_u32 s{T4_}, s{T3_}, {(u0 + k*nw)//2*7*9216}")
        a(f"buffer_load_dword v{dst}, v{v}, s[{R2_}:{R2_+3}], s{T4_} offen")
        k += 1
def pf_down(a, sidx, nw, u0, u1, v, dst, done, R=R2_):
    srd(a, R, P_DOWN, D * F * 2)
    a(f"s_lshl_b32 s{T3_}, s{sidx}, 13", f"s_mul_i32 s{T4_}, s{S_XC}, {576*1152}", f"s_add_u32 s{T3_}, s{T3_}, s{T4_}", f"v_lshlrev_b32 v{v}, 7, v1")
    k = 0
    while u0 + k * nw < u1:
        if u0 + (k + 1) * nw > u1: a(f"s_cmp_ge_u32 s{sidx}, {u1 - u0 - k*nw}", f"s_cbranch_scc1 {done}")
        a(f"s_add_u32 s{T4_}, s{T3_}, {(u0 + k*nw)*8192}")
        a(f"buffer_load_dword v{dst}, v{v}, s[{R}:{R+3}], s{T4_} offen")
        k += 1
def gen_ln1(a):
    LW, TB = T5_, S_CH
    X, RAW = 8, 26
    a(f"s_sub_u32 s{T0_}, s{S_I}, 8", f"s_and_b32 s{TB}, s{T0_}, 7", f"s_lshr_b32 s{T0_}, s{T0_}, 3", f"s_lshl_b32 s{T0_}, s{T0_}, 4", f"s_add_u32 s{TB}, s{TB}, s{T0_}")
    a(f"s_and_b32 s{T0_}, s{S_XC}, 1", f"s_lshl_b32 s{T0_}, s{T0_}, 3", f"s_add_u32 s{TB}, s{TB}, s{T0_}", f"s_lshr_b32 s{T0_}, s{S_XC}, 1", f"s_lshl_b32 s{T0_}, s{T0_}, 5", f"s_add_u32 s{TB}, s{TB}, s{T0_}")
    a("v_lshrrev_b32 v36, 5, v1", "v_and_b32 v37, 31, v1")
    a("v_mul_u32_u24 v38, 1152, v36", "v_lshl_add_u32 v39, v37, 2, v38", "v_lshl_add_u32 v38, v37, 4, v38")
    a(f"s_mul_i32 s{T1_}, s{TB}, 18432", f"s_mul_i32 s{T2_}, s{LW}, 2304", f"s_add_u32 s{T1_}, s{T1_}, s{T2_}")
    a("s_waitcnt lgkmcnt(0)")
    stamp(a, 1)
    srd(a, R0, P_X, XBYTES)
    a(f"buffer_load_dwordx4 v[{RAW}:{RAW+3}], v38, s[{R0}:{R0+3}], s{T1_} offen")
    a(f"buffer_load_dwordx4 v[{RAW+4}:{RAW+7}], v38, s[{R0}:{R0+3}], s{T1_} offen offset:512")
    a(f"buffer_load_dword v{RAW+8}, v39, s[{R0}:{R0+3}], s{T1_} offen offset:1024")
    a("s_barrier")
    a(f"s_lshr_b32 s{T1_}, s{LW}, 2", f"s_lshl_b32 s{T1_}, s{T1_}, 6", f"s_add_u32 s{T2_}, s{T2_}, s{T1_}", f"s_add_u32 s{T2_}, s{T2_}, {C_LNB}")
    a(f"v_lshl_add_u32 v35, v37, 1, v36")
    a(f"s_mov_b32 s{SP0}, 0x05040100", f"s_mov_b32 s{SP1}, 0x07060302")
    def waits(n):
        for (c, js) in ((2, range(0, 4)), (1, range(4, 8)), (0, range(8, 9))):
            a(f"s_waitcnt vmcnt({c+n})")
            for j in js: unpack(a, X + 2 * j, RAW + j)
    l1 = newlabel("LN1A"); l2 = newlabel("LN1B")
    if NL:
        LW0 = ENV("NLW", 4)
        pf_lane(a, 46, 47)
        a(f"s_sub_u32 s{T1_}, s{LW}, {LW0}", f"s_and_b32 s{T1_}, s{T1_}, 7", f"s_lshl_b32 s{T3_}, s{T1_}, 4", f"s_add_u32 s{T3_}, s{T3_}, s{S_I}", f"s_sub_u32 s{T3_}, s{T3_}, 8")
        pf_gu_setup(a, T3_, R3, T4_, T0_)
    if NL and ENV("NLE", 0):
        a(f"s_cmp_lt_u32 s{T1_}, {NL}", f"s_cselect_b32 s{T4_}, s{T4_}, {hex(D*F*2)}")
        a(f"buffer_load_dword v47, v46, s[{R3}:{R3+3}], s{T4_} offen")
        waits(1)
    else:
        waits(0)
    if NL and not ENV("NLE", 0):
        if ENV("X0", 0): a(f"s_cmp_eq_u32 s{S_XC}, 0", f"s_cbranch_scc1 {l1}")
        a(f"s_cmp_ge_u32 s{T1_}, {NL}", f"s_cbranch_scc1 {l1}")
        a(f"buffer_load_dword v47, v46, s[{R3}:{R3+3}], s{T4_} offen")
        a(f"{l1}:")
    stamp(a, 2)
    a(f"v_lshl_add_u32 v6, v35, 4, s{T2_}", f"v_lshl_add_u32 v7, v35, 2, s{T2_}")
    a(f"v_mul_u32_u24 v35, 0x20202, v36", "v_lshl_add_u32 v35, v36, 25, v35", "v_add_u32 v35, 0x05040100, v35")
    ln_stats(a, X, 36, 38, 40, 42, 44)
    for j in range(9):
        if j == ENV("DSAMP", 3): a("v_and_b32 v59, 3, v1", "v_lshlrev_b32 v59, 2, v59", f"global_load_dword v58, v59, s[{P_DBG}:{P_DBG+1}] sc1")
        ln_apply_pair(a, X + 2 * j, 36, 38, 40, 42)
        a(f"v_cvt_pk_f16_f32 v{RAW+j}, v40, v41")
        if j in (3, 7):
            P = RAW + j - 3; O = X + 2 * (j - 3)
            a(f"v_permlane32_swap_b32 v{P}, v{P+2}", f"v_permlane32_swap_b32 v{P+1}, v{P+3}")
            a(f"v_perm_b32 v{O}, v{P+2}, v{P}, s{SP0}", f"v_perm_b32 v{O+1}, v{P+2}, v{P}, s{SP1}")
            a(f"v_perm_b32 v{O+2}, v{P+3}, v{P+1}, s{SP0}", f"v_perm_b32 v{O+3}, v{P+3}, v{P+1}, s{SP1}")
            a(f"ds_write_b128 v6, v[{O}:{O+3}] offset:{1024*(j//4)}")
    a(f"v_mov_b32 v40, v{RAW+8}", f"v_permlane32_swap_b32 v{RAW+8}, v40")
    a(f"v_perm_b32 v40, v40, v{RAW+8}, v35")
    a(f"ds_write_b32 v7, v40 offset:2048")
    a(f"v_mov_b32 v6, s{LW}")
    a(f"ds_write_b8 v6, v{VONE} offset:{FL_LN1}")
    a("s_setprio 0")
    a(f"s_cmp_ge_u32 s{LW}, 4", "s_cbranch_scc1 KS_X4")
    a("s_setprio 3")
    srd(a, R2_, P_WS, XBYTES, WS_UT)
    a("v_and_b32 v6, 1, v0", "v_mul_u32_u24 v6, 9280, v6", "v_lshrrev_b32 v7, 1, v0", "v_lshl_add_u32 v6, v7, 2, v6", f"v_add_u32 v6, {C_LNB}, v6")
    a("v_lshrrev_b32 v7, 2, v0", "v_lshlrev_b32 v7, 13, v7", "v_and_b32 v8, 3, v0", "v_lshl_add_u32 v7, v8, 4, v7")
    a(f"s_lshl_b32 s{T0_}, s{TB}, 6")
    for k in range(1, 5): a(f"s_add_u32 s{T0_+k}, s{T0_}, {0x80000*k}")
    dbg_wait(a, 0)
    a(f"ds_write_b32 v59, v58 offset:{FL_NONCE}")
    a(f"s_mov_b32 s{SP0}, {hex(TAGM)}")
    for d in range(1, 4): a(f"v_lshrrev_b32 v{58-d}, {3*d}, v58")
    lds_wait(a, FL_LN1, 20, "b8")
    stamp(a, 3)
    for k in range(5):
        a(f"ds_read2st64_b32 v[{20+4*k}:{21+4*k}], v6 offset0:{2*k} offset1:{9+2*k}")
        a(f"ds_read2st64_b32 v[{22+4*k}:{23+4*k}], v6 offset0:{18+2*k} offset1:{27+2*k}")
    for k in range(5):
        a(f"s_waitcnt lgkmcnt({8-2*k})")
        for d in range(4): a(f"v_bfi_b32 v{20+4*k+d}, s{SP0}, v{58-d}, v{20+4*k+d}")
        a(f"buffer_store_dwordx4 v[{20+4*k}:{23+4*k}], v7, s[{R2_}:{R2_+3}], s{T0_+k} offen {MOD('USMOD')}")
    stamp(a, 4)

def dbg_wait(a, n, vt=58, va=59):
    lp = newlabel("DBP"); go = newlabel("DBG")
    a(f"s_waitcnt vmcnt({n})")
    a(f"{lp}:")
    a(f"v_cmp_eq_u32 vcc, 0, v{vt}", f"s_cbranch_vccz {go}")
    a("s_sleep 1")
    a(f"global_load_dword v{vt}, v{va}, s[{P_DBG}:{P_DBG+1}] sc1")
    guard(a)
    a("s_waitcnt vmcnt(0)")
    a(f"s_branch {lp}")
    a(f"{go}:")

ROLE_TILES = {0: [0, 1, 2, 3, 4], 1: [0, 1, 2, 3, 4], 2: [5, 6, 7], 3: [5, 6, 7]}
ROLE_W = {2: 0, 3: 1, 1: 2}
ACC, DA, RING, WT = 16, 36, 76, 92
NRING = 4

def epi_plan():
    owner = {0: (0, 0), 1: (0, 1), 2: (1, 0), 3: (1, 1), 4: (1, 3), 5: (0, 2), 6: (0, 3), 7: (1, 2)}
    slots = {}
    cnt = [0, 0]
    for g in range(2):
        for role in range(4):
            for j in ROLE_TILES[role]:
                if owner[j] == (g, role): continue
                slots[(g, role, j)] = g * G_SIZE + R_RED + 1024 * cnt[g]; cnt[g] += 1
    assert max(cnt) <= 13, cnt
    ownerC = {0: 0, 1: 0, 2: 1, 3: 1, 4: 2, 5: 2, 6: 3, 7: 3}
    n = 0
    for role in range(4):
        for j in ROLE_TILES[role]:
            if ownerC[j] == role: continue
            slots[(2, role, j)] = 2 * G_SIZE + R_RED + 1024 * n; n += 1
    return owner, ownerC, slots

class LdsTrack:
    def __init__(self, a): self.a = a; self.n = 0; self.done = -1
    def issue(self, text): self.a(text); self.n += 1; return self.n - 1
    def wait(self, idx):
        k = self.n - 1 - idx
        if idx <= self.done: return
        self.done = idx
        if k <= 15: self.a(f"s_waitcnt lgkmcnt({k})")

CZ0, CZ1, CSH, CXR, CFL, SIS, CM, SM, SC, SSC, SDL = 6, 7, 8, 9, 10, 11, 12, 14, 15, 16, 18
IXR, LFR = (108, 109, 112, 113), (110, 111, 114, 115)
def stage_write(a, off):
    a("v_lshl_or_b32 v24, v25, 16, v24", "v_lshl_or_b32 v25, v27, 16, v26", f"ds_write_b64 v28, v[24:25] offset:{off}")
def pre_ixlf(a):
    end = newlabel("PX"); j1 = newlabel("PX"); j2 = newlabel("PX"); jn = newlabel("PX")
    a(f"s_cmp_eq_u32 s{S_ROLE}, 3", f"s_cbranch_scc1 {end}")
    a("v_lshlrev_b32 v26, 3, v2", "v_mov_b32 v21, 0x80")
    a(f"s_cmp_eq_u32 s{S_ROLE}, 1", f"s_cbranch_scc1 {j1}", f"s_cmp_eq_u32 s{S_ROLE}, 2", f"s_cbranch_scc1 {j2}")
    a("v_lshl_add_u32 v26, v3, 1, v26", "v_mov_b32 v22, 1")
    a(f"s_branch {jn}")
    a(f"{j1}:")
    a("v_cmp_gt_u32 vcc, 2, v3", "v_lshl_add_u32 v20, v3, 2, v26", "v_add_u32 v20, 256, v20", "v_lshl_add_u32 v26, v3, 8, v26", "v_cndmask_b32 v26, v26, v20, vcc")
    a("v_cndmask_b32 v22, v21, 2, vcc", "v_cndmask_b32 v21, 4, v21, vcc")
    a(f"s_branch {jn}")
    a(f"{j2}:")
    a("v_lshl_add_u32 v26, v3, 9, v26", "v_add_u32 v26, 0x400, v26", "v_mov_b32 v22, 0x100")
    a(f"{jn}:")
    a(f"v_mad_u32_u24 v26, v22, s{S_G}, v26", "v_add_u32 v27, v26, v21", f"s_movk_i32 s{T4_}, {T_TAB}", f"s_movk_i32 s{T5_}, {-(0x4280 + 0x800)}", f"s_lshl_b32 s{T3_}, s{S_G}, 9")
    for r in range(2): a(f"v_cvt_f32_u32 v{20+r}, v{26+r}", f"v_max_u32 v{22+r}, 0x800, v{26+r}")
    for r in range(2):
        a(f"v_cmp_gt_u32 vcc, 0x80, v{26+r}", f"v_lshrrev_b32 v{24+r}, 16, v{20+r}", f"v_add3_u32 v{24+r}, v{24+r}, v{22+r}, s{T5_}", f"v_cndmask_b32 v{24+r}, v{24+r}, v{26+r}, vcc")
    for r in range(2):
        a(f"v_min_u32 v{24+r}, {IDX_DUMMY}, v{24+r}", f"v_lshl_add_u32 v{24+r}, v{24+r}, 1, s{T4_}")
    a(f"v_add_u32 v29, s{T3_}, v28")
    a("v_lshl_or_b32 v24, v25, 16, v24", "v_lshl_or_b32 v25, v27, 16, v26", "ds_write_b64 v29, v[24:25]")
    a(f"{end}:")

def gen_group(a):
    RAW, VLDT, VDSK, VNT, VNA, VPR, VEM, VTE, VTL = 40, 46, 107, 104, 105, 106, 72, 126, 127
    I1, D2, I2, D1, D3 = 116, 119, 120, 124, 125
    a(f"s_lshl_b32 s{T0_}, s{S_CH}, 8", f"v_lshl_add_u32 v20, v1, 2, s{T0_}")
    a(f"s_lshl_b32 s{T0_}, s{S_CH}, 1", f"v_mov_b32 v21, s{T0_}")
    a(f"s_mul_i32 s{S_GB}, s{S_G}, {G_SIZE}", f"s_add_u32 s{S_GB}, s{S_GB}, {G_BASE}")
    a("s_waitcnt lgkmcnt(0)")
    stamp(a, 1)
    a(f"global_load_ushort v{VLDT}, v21, s[{P_LDT}:{P_LDT+1}]")
    for k in range(6):
        a(f"global_load_dword v{RAW+k}, v20, s[{P_ARE+2*k}:{P_ARE+2*k+1}]")
    a(f"global_load_ushort v{VDSK}, v21, s[{P_DSK}:{P_DSK+1}]")
    a("s_barrier")
    a(f"s_movk_i32 s{T4_}, {T_TAB}")
    def dr_addr(dst, x, special=False):
        a(f"v_sub_u32 v30, 544, v{x}", "v_cvt_f32_i32 v31, v30", "v_cmp_gt_u32 vcc, 0x100, v30", "v_cvt_pk_bf16_f32 v31, v31, v31", "v_and_b32 v31, 0xffff, v31", "v_subrev_u32 v31, 0x4280, v31")
        a("v_cndmask_b32 v31, v31, v30, vcc", "v_cmp_lt_u32 vcc, 0x20d, v30")
        if special: a(f"v_or_b32 v30, 1, v{x}")
        a("v_cndmask_b32 v31, v31, v32, vcc")
        if special: a("v_cmp_eq_u32 vcc, 0x25d, v30", "v_cndmask_b32 v31, v31, v33, vcc")
        a(f"v_lshl_add_u32 v{dst}, v31, 1, s{T4_}")
    def g_addr(dst, y0, base, M):
        a(f"v_sub_u32 v30, {y0}, v23", f"v_cmp_lt_u32 vcc, {M}, v30", f"v_lshlrev_b32 v31, 2, v30", f"v_add_u32 v31, {T_TAB + 2*base}, v31", f"v_cndmask_b32 v{dst}, v31, v33, vcc")
    pb = newlabel("PREB"); pw = newlabel("PREW"); pe = newlabel("PREE")
    a(f"s_cmp_eq_u32 s{S_G}, 2", f"s_cbranch_scc1 {pe}")
    a(f"v_mov_b32 v32, {IDX_ZERO}")
    a(f"s_cmp_eq_u32 s{S_G}, 1", f"s_cbranch_scc1 {pb}")
    jl = [newlabel("PRE") for _ in range(4)]
    a(f"v_mov_b32 v33, {T_TAB + 2*IDX_ZERO}")
    for r in range(1, 4): a(f"s_cmp_eq_u32 s{S_ROLE}, {r}", f"s_cbranch_scc1 {jl[r]}")
    a("v_lshlrev_b32 v23, 1, v1")
    for e, (y0, base, M) in enumerate(((93, 389, 61), (92, 389, 61), (94, 388, 62), (93, 388, 62))): g_addr(24 + e, y0, base, M)
    a(f"s_branch {pw}")
    for r, base in ((1, 513), (2, 514)):
        a(f"{jl[r]}:")
        a("v_min_u32 v23, 47, v1", "v_lshlrev_b32 v23, 1, v23")
        for e, y0 in ((0, 64), (1, 63), (3, 62)): g_addr(24 + e, y0, base, 63)
        a("v_mov_b32 v26, v25")
        a(f"s_branch {pw}")
    a(f"{jl[3]}:")
    a("v_cmp_gt_u32 vcc, 9, v1", "v_add_u32 v23, 0x100, v1", "v_mov_b32 v33, 0x200", "v_cndmask_b32 v23, v23, v1, vcc", "v_lshlrev_b32 v23, 1, v23")
    for e in (0, 1, 3):
        if e: a("v_add_u32 v23, 1, v23")
        dr_addr(24 + e, 23, special=True)
    a("v_mov_b32 v26, v25")
    a(f"s_branch {pw}")
    a(f"{pb}:")
    a(f"s_lshl_b32 s{T1_}, s{S_ROLE}, 7", f"s_add_u32 s{T1_}, s{T1_}, 18", f"v_lshl_add_u32 v23, v1, 1, s{T1_}")
    for e in range(3):
        if e: a("v_add_u32 v23, 1, v23")
        dr_addr(24 + e, 23)
    a(f"s_sub_u32 s{T1_}, s{S_ROLE}, 1", f"s_cmp_lt_u32 s{T1_}, 2", f"s_cselect_b32 s{T2_}, 47, 63", f"s_mul_i32 s{T1_}, s{T1_}, {T_G9E - T_G7E}", f"s_add_u32 s{T1_}, s{T1_}, {T_G7E}")
    a(f"s_cmp_eq_u32 s{S_ROLE}, 0", f"s_cselect_b32 s{T1_}, {T_G3}, s{T1_}", f"s_cmp_eq_u32 s{S_ROLE}, 3", f"s_cselect_b32 s{T1_}, {T_DRE}, s{T1_}", f"s_cselect_b32 s{T3_}, 0x100, 0")
    a("v_cmp_gt_u32 vcc, 9, v1", f"v_min_u32 v23, s{T2_}, v1", f"v_add_u32 v30, s{T3_}, v23", "v_cndmask_b32 v23, v30, v23, vcc", f"v_lshl_add_u32 v27, v23, 2, s{T1_}")
    stage_write(a, 1024)
    a(f"v_mov_b32 v24, s{S_ROLE}", f"ds_write_b8 v24, v{VONE} offset:{FL_PRE + 4}")
    a(f"s_branch {pe}")
    a(f"{pw}:")
    stage_write(a, 1536)
    a(f"v_mov_b32 v24, s{S_ROLE}", f"ds_write_b8 v24, v{VONE} offset:{FL_PRE}")
    a(f"{pe}:")
    a(f"s_mul_i32 s{T1_}, s{S_ROLE}, {16*KG_ROW}", f"s_min_u32 s{T2_}, s{T1_}, {KG_T[3]}", f"s_add_u32 s{T2_}, s{T2_}, s{S_GB}")
    a(f"s_lshl_b32 s{T0_}, s{S_G}, 4", f"v_mov_b32 v14, s{T0_}", f"v_add_u32 v15, s{S_ROLE}, v14")
    a(f"v_lshl_add_u32 v{VEM}, v1, 3, s{T2_}")
    for k in range(1, 4): a(f"v_add_u32 v{VEM+k}, {4*KG_ROW*k}, v{VEM}")
    a(f"v_mul_u32_u24 v{VTE}, {KG_ROW}, v2", f"v_lshl_add_u32 v{VTE}, v3, 4, v{VTE}", f"v_add_u32 v{VTE}, s{S_GB}, v{VTE}", f"v_add_u32 v{VTL}, s{T1_}, v{VTE}")
    VDA, VDA2, VB_, VT8, VT16, VG8, VG16, VLN = 6, 7, 8, 9, 10, 11, 13, 12
    a("v_lshlrev_b32 v20, 3, v3", "v_sub_u32 v20, v20, v2", "v_add_u32 v21, 16, v20", "v_lshrrev_b32 v21, 1, v21")
    a("v_and_b32 v22, 1, v2", f"s_add_u32 s{T0_}, s{S_GB}, {T_DRE}", f"v_lshl_add_u32 v21, v21, 2, s{T0_}", f"s_movk_i32 s{T0_}, {T_DRO - T_DRE}", f"s_movk_i32 s{T2_}, {T_G7O - T_G7E}")
    a(f"v_mad_u32_u24 v{VDA}, v22, s{T0_}, v21", f"v_add_u32 v{VDA2}, 640, v{VDA}")
    a(f"v_mad_u32_u24 v23, v22, s{T2_}, v21", f"v_add_u32 v{VG16}, {T_G7E - T_DRE}, v23")
    a("v_lshlrev_b32 v23, 2, v3", "v_sub_u32 v23, v23, v2", f"s_add_u32 s{T0_}, s{S_GB}, {T_G3 + 60}", f"v_lshl_add_u32 v{VG8}, v23, 2, s{T0_}")
    a(f"s_mul_i32 s{T2_}, s{S_G}, {U_SIZE}", f"s_add_u32 s{T2_}, s{T2_}, {C_U}")
    a(f"v_lshl_add_u32 v23, v2, 5, s{T2_}", f"v_lshl_add_u32 v{VB_}, v3, 4, v23")
    a("v_bfe_u32 v20, v1, 2, 2", "v_and_b32 v21, 3, v1", "v_lshl_add_u32 v20, v3, 3, v20")
    a(f"v_lshlrev_b32 v{VNA}, 2, v21")
    a(f"v_lshl_add_u32 v21, v21, 3, s{S_GB}", f"v_lshl_add_u32 v{VT8}, v20, 4, v21", f"v_lshl_add_u32 v{VT16}, v20, 5, v21")
    a(f"v_lshlrev_b32 v{VLN}, 4, v1")
    srd(a, R0, P_WS, 0x240000, WS_ZB1)
    a(f"s_lshl_b32 s{T0_}, s{S_ROLE}, 19", f"s_lshl_b32 s{T1_}, s{S_B2}, 6", f"s_add_u32 s{T0_}, s{T0_}, s{T1_}")
    a(f"s_lshl_b32 s{T1_}, s{S_ROLE}, 16", f"s_lshl_b32 s{T3_}, s{S_CH}, 6", f"s_add_u32 s{T1_}, s{T1_}, s{T3_}", f"s_add_u32 s{T1_}, s{T1_}, {0x200000 - 512*64}")
    a(f"s_cmp_eq_u32 s{S_G}, 2", f"s_cselect_b32 s{CZ0}, s{T1_}, s{T0_}", f"s_cselect_b32 s{CSH}, 12, 15", f"s_add_u32 s{CZ1}, s{CZ0}, 16384")
    a(f"s_and_b32 s{CXR}, s{S_G}, 1", f"s_lshl_b32 s{CXR}, s{CXR}, 4", f"s_mov_b32 s{CM}, 0x55555555", f"s_mov_b32 s{CM+1}, 0x55555555")
    a(f"s_lshl_b32 s{T0_}, s{S_ROLE}, 8", f"s_add_u32 s{T0_}, s{T0_}, s{S_GB}", f"s_add_u32 s{T0_}, s{T0_}, 36", f"v_lshl_add_u32 v{D1}, v1, 2, s{T0_}")
    a(f"s_movk_i32 s{T0_}, {T_G7O - T_G7E}", f"s_cmp_eq_u32 s{S_ROLE}, 0", f"s_cselect_b32 s{T0_}, {T_G5 - T_G3}, s{T0_}", f"s_cmp_eq_u32 s{S_ROLE}, 3", f"s_cselect_b32 s{T0_}, {T_DRO - T_DRE}, s{T0_}")
    a(f"v_mov_b32 v20, s{S_GB}", f"ds_write_b16 v20, v{VZ} offset:{T_TAB + 2*IDX_ZERO}")
    a(f"s_mov_b32 s{SDL}, s{T0_}", f"v_mov_b32 v{D3}, v28")
    def stage_read():
        lds_wait(a, FL_PRE, 18, "b8")
        a(f"ds_read2st64_b64 v[28:31], v{D3} offset0:0 offset1:1", f"ds_read2st64_b64 v[32:35], v{D3} offset0:2 offset1:3")
    def stage_unpack():
        for k in range(16):
            src = 28 + k // 2; w = f"WORD_{k & 1}"
            if 108 + k in LFR: a(f"v_cvt_f32_u32_sdwa v{108+k}, v{src} dst_sel:DWORD dst_unused:UNUSED_PAD src0_sel:{w}")
            else: a(f"v_add_u32_sdwa v{108+k}, s{S_GB}, v{src} dst_sel:DWORD dst_unused:UNUSED_PAD src0_sel:DWORD src1_sel:{w}")
        a(f"v_add_u32 v{D3}, s{SDL}, v{D2}")
    stage_read()
    a("s_waitcnt lgkmcnt(0)")
    stage_unpack()
    ex = newlabel("EXP")
    if KOFF: a(f"s_lshl_b32 s{T0_}, s{S_G}, 5", f"s_add_u32 s{T0_}, s{T0_}, s{S_I}", f"s_cmp_ge_u32 s{T0_}, {64 + 24}", "s_cbranch_scc1 KC_RECV")
    a(f"s_mov_b32 s{T0_}, {f32(LOG2E_HI)}", f"s_mov_b32 s{T1_}, {f32(LOG2E_LO)}", f"s_mov_b32 s{T2_}, {f32(INV2PI_HI)}", f"s_mov_b32 s{T3_}, {f32(INV2PI_LO)}")
    a(f"s_waitcnt vmcnt(7)")
    a(f"v_lshlrev_b32 v16, 16, v{VLDT}")
    a(f"v_mul_f32 v17, s{T0_}, v16")
    a(f"v_fma_f32 v19, v16, s{T0_}, -v17", f"v_fmac_f32 v19, s{T1_}, v16")
    a("v_exp_f32 v17, v17")
    a(f"v_mul_f32 v19, {f32(math.log(2.0))}, v19")
    a("v_fmac_f32 v17, v17, v19")
    a("v_cvt_pk_bf16_f32 v17, v17, v17", "v_and_b32 v16, 0xffff0000, v17")
    a(f"s_waitcnt vmcnt(5)")
    stamp(a, 2)
    a(f"ds_write_b32 v{VZ}, v{VONE} offset:{FL_PARAM}")
    THH, THL = 68, 70
    for k in range(2): unpack(a, 20 + 2 * k, RAW + k)
    for k in range(2): a(f"v_pk_mul_f32 v[{20+2*k}:{21+2*k}], v[{20+2*k}:{21+2*k}], v[16:17] op_sel_hi:[1,0]")
    a("v_max_f32 v36, v20, v21")
    a(f"v_pk_mul_f32 v[{THH}:{THH+1}], v[22:23], s[{T2_}:{T3_}] op_sel_hi:[1,0]")
    a(f"v_pk_fma_f32 v[{THL}:{THL+1}], v[22:23], s[{T2_}:{T3_}], v[{THH}:{THH+1}] op_sel_hi:[1,0,1] neg_lo:[0,0,1] neg_hi:[0,0,1]")
    a(f"v_pk_fma_f32 v[{THL}:{THL+1}], v[22:23], s[{T2_}:{T3_}], v[{THL}:{THL+1}] op_sel:[0,1,0]")
    T = 90
    def cmul_(dr, di, ar, ai, br, bi, t=T):
        assert di not in (ar, br, bi)
        return [f"v_pk_mul_f32 v[{t}:{t+1}], v[{ai}:{ai+1}], v[{bi}:{bi+1}]",
                f"v_pk_mul_f32 v[{t+2}:{t+3}], v[{ai}:{ai+1}], v[{br}:{br+1}]",
                f"v_pk_fma_f32 v[{di}:{di+1}], v[{ar}:{ar+1}], v[{bi}:{bi+1}], v[{t+2}:{t+3}]",
                f"v_pk_fma_f32 v[{dr}:{dr+1}], v[{ar}:{ar+1}], v[{br}:{br+1}], v[{t}:{t+1}] neg_lo:[0,0,1] neg_hi:[0,0,1]"]
    def cm_(d, x, y, t=T): return cmul_(d, d + 2, x, x + 2, y, y + 2, t)
    def csq_(d, s_, t=T):
        return [f"v_pk_mul_f32 v[{t}:{t+1}], v[{s_+2}:{s_+3}], v[{s_+2}:{s_+3}]",
                f"v_pk_mul_f32 v[{t+2}:{t+3}], v[{s_}:{s_+1}], v[{s_+2}:{s_+3}]",
                f"v_pk_fma_f32 v[{d}:{d+1}], v[{s_}:{s_+1}], v[{s_}:{s_+1}], v[{t}:{t+1}] neg_lo:[0,0,1] neg_hi:[0,0,1]",
                f"v_pk_add_f32 v[{d+2}:{d+3}], v[{t+2}:{t+3}], v[{t+2}:{t+3}]"]
    def cmul(*x): a(*cmul_(*x))
    def csq(*x): a(*csq_(*x))
    CBR, CBI = 32, 34
    sk = newlabel("SK")
    a(f"s_cmp_eq_u32 s{S_ROLE}, 3", f"s_cbranch_scc1 {sk}")
    a("s_waitcnt vmcnt(1)")
    for k in range(2, 6): unpack(a, 20 + 2 * k, RAW + k)
    for k in range(2, 4): a(f"v_pk_mul_f32 v[{20+2*k}:{21+2*k}], v[{20+2*k}:{21+2*k}], v[16:17] op_sel_hi:[1,0]")
    cmul(CBR, CBI, 28, 30, 24, 26)
    a(f"v_max3_f32 v37, abs(v{CBI}), abs(v{CBI+1}), abs(v{CBR})", f"v_max_f32 v37, v37, abs(v{CBR+1})")
    a(f"{sk}:")
    a("s_waitcnt vmcnt(0)")
    a.flush(1)
    a("v_permlane32_swap_b32 v36, v37", "v_max_f32 v36, v36, v37")
    red32(a, "v_max_f32", 36, 38)
    a(f"v_readlane_b32 s{SM}, v36, 0", f"v_readlane_b32 s{SC}, v36, 32")
    a(f"s_add_u32 s{SC}, s{SC}, 0x7fffff", f"s_lshr_b32 s{SC}, s{SC}, 23", f"s_max_u32 s{SC}, s{SC}, 24", f"s_sub_u32 s{SSC}, 269, s{SC}", f"s_lshl_b32 s{SSC}, s{SSC}, 23")
    a(f"v_subrev_f32 v20, s{SM}, v20", f"v_subrev_f32 v21, s{SM}, v21")
    a(f"v_mul_f32 v20, {f32(LOG2E)}, v20", f"v_mul_f32 v21, {f32(LOG2E)}, v21")
    def scale_cb():
        a(f"v_pk_mul_f32 v[{CBR}:{CBR+1}], v[{CBR}:{CBR+1}], s[{SSC}:{SSC+1}] op_sel_hi:[1,0]", f"v_pk_mul_f32 v[{CBI}:{CBI+1}], v[{CBI}:{CBI+1}], s[{SSC}:{SSC+1}] op_sel_hi:[1,0]")
    def anchor(dr, di, l, conj=False):
        lit = {1: "1.0", 2: "2.0"}.get(l, f32(float(l)))
        for e in range(2):
            t = T + 4 * e
            if l != 1: a(f"v_mul_f32 v{t+1}, {lit}, v{THH+e}", f"v_mul_f32 v{t}, {lit}, v{20+e}")
        for e in range(2):
            t = T + 4 * e
            a(f"v_fract_f32 v{t+1}, v{t+1 if l != 1 else THH+e}")
        for e in range(2):
            t = T + 4 * e
            a(f"v_fmac_f32 v{t+1}, {lit}, v{THL+e}")
        for e in range(2):
            t = T + 4 * e
            a(f"v_exp_f32 v{t}, v{t if l != 1 else 20+e}", f"v_cos_f32 v{t+2}, v{t+1}", f"v_sin_f32 v{t+1}, v{t+1}")
        for e in range(2):
            t = T + 4 * e
            a(f"v_mul_f32 v{dr+e}, v{t}, v{t+2}")
            a(f"v_mul_f32 v{di+e}, v{t}, {'-' if conj else ''}v{t+1}")
    em = [0, None]
    def it(cms, row=None, x=None, y=None):
        if em[1]: a(em[1]); em[1] = None
        for k in range(4):
            for c in cms:
                if k < len(c): a(c[k])
        if row is None: return
        t = (98, 76)[em[0] & 1]; em[0] += 1
        for v, tt in ((x, t), (y, t + 2)):
            if v is not None: a(f"v_cvt_pk_f16_f32 v{tt}, v{v}, v{v+2}", f"v_cvt_pk_f16_f32 v{tt+1}, v{v+1}, v{v+3}")
        o = (row & 3) * KG_ROW // 8
        if y is None: em[1] = f"ds_write_b64 v{VEM + row//4}, v[{t}:{t+1}] offset:{8*o}"
        else: em[1] = f"ds_write2_b64 v{VEM + row//4}, v[{t}:{t+1}], v[{t+2}:{t+3}] offset0:{o} offset1:{o + KG_ROW//8}"
    G1, G2, G3 = 40, 44, 48
    VA, VB, VC, VD = 52, 56, 60, 64
    oth = lambda c, p, q: p if c != p else q
    jl = [newlabel("JOB") for _ in range(4)]; jn = newlabel("JOBJ")
    for r in (3, 1, 2): a(f"s_cmp_eq_u32 s{S_ROLE}, {r}", f"s_cbranch_scc1 {jl[r]}")
    anchor(G2, G2 + 2, 128); scale_cb(); anchor(G1, G1 + 2, 1)
    cur = CBR
    for c in range(8):
        nx = oth(cur, VA, VB)
        it([cm_(VC, cur, G2)] + ([cm_(nx, cur, G1, T + 4)] if c < 7 else []), 2 * c, cur, VC); cur = nx
    it([])
    a(f"s_branch {jn}")
    a(f"{jl[1]}:")
    anchor(G2, G2 + 2, 128); scale_cb(); csq(G3, G2); anchor(G1, G1 + 2, 2)
    it([cm_(VA, CBR, G3)]); cur = VA
    it([cm_(VD, VA, G3)])
    for c in range(4):
        nx = oth(cur, VA, VB)
        it([cm_(VC, cur, G2), cm_(nx, cur, G1, T + 4) if c < 3 else csq_(G3, G1, T + 4)], 2 * c, cur, VC); cur = nx
    cur = VD
    for aa in range(4):
        nx = oth(cur, VA, VB)
        it([cm_(VC, cur, G3)] + ([cm_(nx, cur, G2, T + 4)] if aa < 3 else []), 8 + 2 * aa, cur, VC); cur = nx
    it([])
    a(f"s_branch {jn}")
    a(f"{jl[3]}:")
    anchor(G1, G1 + 2, 8, conj=True)
    a(f"v_mov_b32 v{VA}, {f32(32768.0)}", f"v_mov_b32 v{VA+1}, {f32(32768.0)}", f"v_mov_b32 v{VA+2}, 0", f"v_mov_b32 v{VA+3}, 0")
    sc_ = lambda d, x: [f"v_pk_mul_f32 v[{d}:{d+1}], v[{x}:{x+1}], v[{VA}:{VA+1}]", f"v_pk_mul_f32 v[{d+2}:{d+3}], v[{x+2}:{x+3}], v[{VA}:{VA+1}]"]
    it([csq_(G2, G1), sc_(VC, G1)])
    ce, co = VA, VC
    for b in range(8):
        ne, no = oth(ce, VA, VB), oth(co, VC, VD)
        it([] if b == 7 else [sc_(ne, G2) if b == 0 else cm_(ne, ce, G2), cm_(no, co, G2, T + 4)], 2 * b, ce, co); ce, co = ne, no
    it([])
    a(f"ds_write_b8 v15, v{VONE} offset:{FL_G}")
    stamp(a, 3)
    if KOFF: a(f"s_cmp_eq_u32 s{S_G}, 2", "s_cbranch_scc1 KS_G0")
    a(f"s_branch {ex}")
    if KOFF:
        a("KC_SEND:")
        lds_wait(a, FL_NONCE, VNT, "nz", addr=VNA)
        a(f"s_lshl_b32 s{T0_}, s{S_CH}, 12", f"s_lshl_b32 s{T1_}, s{S_ROLE}, 10", f"s_add_u32 s{T0_}, s{T0_}, s{T1_}", f"s_add_u32 s{T0_}, s{T0_}, {hex(WS_KT - 512*4096)}", f"v_add_u32 v24, s{T0_}, v{VLN}")
        a(f"s_mov_b32 s{T1_}, 0xffff", f"v_lshlrev_b32 v25, 16, v{VNT}")
        for r in range(4): a(f"v_cvt_f16_f32 v{20+r}, v{20+r}")
        a(f"s_cmp_lg_u32 s{S_ROLE}, 2", "s_cbranch_scc1 KC_S2")
        a("s_mov_b32 exec_lo, 0", "s_mov_b32 exec_hi, 0xffff0000")
        a(f"v_mov_b32 v20, v{VPR}", f"v_lshrrev_b32 v21, 16, v{VPR}")
        a("s_mov_b64 exec, -1")
        a("KC_S2:")
        for r in range(4): a(f"v_bfi_b32 v{20+r}, s{T1_}, v{20+r}, v{25 if r & 1 else VNT}")
        a(f"global_store_dwordx4 v24, v[20:23], s[{P_WS}:{P_WS+1}] sc1")
        stamp(a, 4)
        a("s_branch KS_G0")
        a("KC_RECV:")
        a(f"s_cmp_eq_u32 s{S_ROLE}, 3", f"s_cbranch_scc1 {ex}")
        a(f"s_lshl_b32 s{T0_}, s{S_CH}, 12", f"s_lshl_b32 s{T1_}, s{S_ROLE}, 10", f"s_add_u32 s{T0_}, s{T0_}, s{T1_}", f"s_add_u32 s{T0_}, s{T0_}, {hex(WS_KT - 512*4096)}", f"v_add_u32 v24, s{T0_}, v{VLN}")
        lds_wait(a, FL_NONCE, VNT, "nz", addr=VNA, sleep=2)
        a(f"v_lshlrev_b32 v25, 16, v{VNT}")
        stamp(a, 2)
        lds_wait(a, FL_G + {0: 0, 1: 4, 2: 16}[ENV("KTRIG", 1)], 17, "b4", sleep=2)
        lp = newlabel("KP"); l1 = newlabel("KPE")
        a(f"s_branch {l1}")
        a(f"{lp}:")
        a("s_sleep 2")
        a(f"{l1}:")
        a(f"global_load_dwordx4 v[20:23], v24, s[{P_WS}:{P_WS+1}] sc1")
        guard(a)
        a("s_waitcnt vmcnt(0)")
        for r in range(4): a(f"v_xor_b32 v{20+r}, v{25 if r & 1 else VNT}, v{20+r}")
        a("v_or3_b32 v26, v20, v21, v22", "v_or_b32 v26, v26, v23", "v_cmp_lt_u32 vcc, 0xffff, v26", f"s_cbranch_vccnz {lp}")
        stamp(a, 3)
        for r in (0, 2): a(f"v_xor_b32 v{20+r}, v{VNT}, v{20+r}")
        for r in range(4): a(f"ds_write_b16 v{IXR[r]}, v{20+r}")
        a(f"s_cmp_lg_u32 s{S_ROLE}, 2", f"s_cbranch_scc1 {ex}")
        a("v_and_b32 v20, 0xffff, v20", "v_lshl_or_b32 v20, v21, 16, v20", f"v_lshlrev_b32 v21, 16, v{VDSK}")
        a("s_mov_b32 exec_lo, 0", "s_mov_b32 exec_hi, 0x10000")
        a(f"ds_write_b64 v14, v[20:21] offset:{C_PAR}")
        a("s_mov_b64 exec, -1")
        a(f"s_branch {ex}")
    a(f"{jl[2]}:")
    anchor(G2, G2 + 2, 128); scale_cb()
    it([csq_(G1, G2), cm_(VD, CBR, G2, T + 4)]); csq(G3, G1); csq(G3, G3)
    it([cm_(VA, CBR, G3), cm_(VC, VD, G3, T + 4)])
    ce, co = VA, VC
    for r in range(4):
        ne, no = oth(ce, VA, VB), oth(co, VC, VD)
        it([cm_(ne, ce, G1)] + ([cm_(no, co, G1, T + 4)] if r < 3 else []), 2 * r, ce, co); ce, co = ne, no
    it([], 8, ce, None)
    a(f"v_mov_b32 v36, {f32(2048.0*LOG2E)}", f"v_mul_f32 v24, s{SM}, v36", "v_max_f32 v24, 0, v24", "v_exp_f32 v24, v24")
    it([])
    a(f"s_sub_u32 s{SIS}, s{SC}, 7", f"s_lshl_b32 s{SIS}, s{SIS}, 23")
    a(f"v_lshlrev_b32 v25, 16, v{VDSK}", f"v_mul_f32 v24, s{SIS}, v24", f"v_mov_b32 v{VPR}, v24")
    a(f"ds_write_b64 v14, v[24:25] offset:{C_PAR}")
    a(f"{jn}:")
    a(f"ds_write_b8 v15, v{VONE} offset:{FL_G}")
    stamp(a, 3); kstamp(a, 2)
    for s in range(8): a(f"ds_read_b128 v[{40+4*s}:{43+4*s}], v{VTL} offset:{64*s}")
    a(f"v_mov_b32 v36, {f32(LOG2E)}", f"v_mul_f32 v36, s{SM}, v36")
    a(f"v_mul_f32 v37, {f32(2048.0)}, v36", "v_max_f32 v37, 0, v37", f"v_add_f32 v37, {f32(23.0)}, v37")
    for r in range(4):
        a(f"v_fma_f32 v{LFR[r]}, v{LFR[r]}, v36, -v37")
    for r in range(4):
        a(f"v_exp_f32 v{LFR[r]}, v{LFR[r]}")
    kstamp(a, 3)
    lds_wait(a, FL_G + 3, 17, "u8", addr=14)
    kstamp(a, 4)
    tr = LdsTrack(a); ids = []
    for s in range(8):
        ids.append(tr.issue(f"ds_read_b128 v[{72+4*s}:{75+4*s}], v{VTE} offset:{KG_T[3]+64*s}"))
    for s in range(8):
        tr.wait(ids[s])
        c = "0" if s < 2 else f"v[{20+4*(s&1)}:{23+4*(s&1)}]"
        a(f"v_mfma_f32_16x16x32_f16 v[{20+4*(s&1)}:{23+4*(s&1)}], v[{40+4*s}:{43+4*s}], v[{72+4*s}:{75+4*s}], {c}")
    for r in range(4): a(f"v_add_f32 v{20+r}, v{20+r}, v{24+r}")
    for r in range(4): a(f"v_mul_f32 v{20+r}, v{20+r}, v{LFR[r]}")
    kstamp(a, 5)
    if KOFF: a(f"s_cmp_eq_u32 s{S_G}, 2", "s_cbranch_scc1 KC_SEND")
    for r in range(4):
        a(f"v_cvt_f16_f32 v{20+r}, v{20+r}")
        a(f"ds_write_b16 v{IXR[r]}, v{20+r}")
    a(f"{ex}:")
    a(f"ds_write_b8 v15, v{VONE} offset:{FL_G+4}")
    a("v_mov_b32 v28, 0", "v_mov_b32 v29, 0", "v_mov_b32 v30, 0", "v_mov_b32 v31, 0", f"v_mov_b32 v32, s{S_GB}")
    a("s_waitcnt vmcnt(0)")
    kstamp(a, 6)
    lds_wait(a, FL_G + 4, 20, "b4", addr=14)
    stamp(a, 4); kstamp(a, 7)
    for e in range(3): a(f"ds_read_u16 v{20+e}, v{I1+e}")
    for e in range(4): a(f"ds_read_u16 v{23+e}, v{I2+e}")
    a("s_mov_b64 exec, 1")
    a(f"ds_write_b128 v32, v[28:31] offset:{R_WS5}", f"ds_write_b128 v32, v[28:31] offset:{R_WS9}", f"ds_write_b128 v32, v[28:31] offset:{R_WS3 + 192*16}")
    a("s_mov_b64 exec, -1")
    a("s_waitcnt lgkmcnt(7)")
    a("v_lshl_or_b32 v28, v21, 16, v20", "v_lshl_or_b32 v29, v22, 16, v21")
    a(f"ds_write_b32 v{D1}, v28 offset:{T_DRE}", f"ds_write_b32 v{D1}, v29 offset:{T_DRO}")
    a("s_waitcnt lgkmcnt(5)")
    a("v_lshl_or_b32 v30, v24, 16, v23", "v_lshl_or_b32 v31, v26, 16, v25")
    a(f"ds_write_b32 v{D2}, v30", f"ds_write_b32 v{D3}, v31")
    a(f"ds_write_b8 v15, v{VONE} offset:{FL_G+8}")
    kstamp(a, 8)
    lds_wait(a, FL_G + 8, 20, "b4", addr=14)
    stamp(a, 5)
    PR, FT0, FT1, ACCL, ACCH, ZQ = 16, 18, 19, 20, 24, 28
    VZA, VUA = VDA, VDA2
    LA = ENV("CLA", 6); RSV = ENV("CRSV", 5); NF = ENV("CNF", 2)
    jl = [newlabel("CV") for _ in range(4)]; zend = newlabel("CVE")
    slow = []
    a(f"ds_read_b64 v[{PR}:{PR+1}], v14 offset:{C_PAR}")
    for r in range(1, 4): a(f"s_cmp_eq_u32 s{S_ROLE}, {r}", f"s_cbranch_scc1 {jl[r]}")
    for m in range(4):
        if m: a(f"{jl[m]}:")
        lo, hi = 2 * m, 2 * m + 1
        acc = {lo: ACCL, hi: ACCH}
        ops = []
        if m >= 2:
            for j in (lo, hi): ops.append((j, ("D", 32), ("U", 8 * j - 32)))
        for p in range(max(8 * lo - 16, -7), 8 * hi + 1):
            for j in (lo, hi):
                ks = 8 * j - p
                if 0 <= ks <= 16: ops.append((j, ("D", ks), ("U", p)))
        ncomb0 = len(ops)
        for j in (lo, hi):
            for kind in (3, 5):
                for b in range(6):
                    if 2 <= j - b <= 4: ops.append((j, ("W", kind, b), ("G", kind, j - b)))
            for kind in (7, 9):
                for b in range(2):
                    if j - 2 * b - 4 >= 0: ops.append((j, ("W", kind, b), ("G", kind, j - 2 * b - 4)))
        nops = len(ops)
        first, last = {}, {}
        for k, (j, A, B) in enumerate(ops):
            for key in (A, B):
                first.setdefault(key, k); last[key] = k
        lastlo = max(k for k, o in enumerate(ops) if o[0] == lo)
        pool = list(range(32, 128, 4))
        reg, lid = {}, {}
        def load(tr, key):
            rg = pool.pop(0); reg[key] = rg
            if (XP & 8 and key[0] == "G") or (XP & 16 and key[0] == "W") or (XP & 32 and key[0] == "U"):
                lid[key] = -100; return
            if key[0] == "D":
                ksv = -2 if key[1] == 32 else key[1]
                o = (16 - ksv) * 16
                ad, o = (VDA, o) if o + 3 <= 255 else (VDA2, o - 160)
                tr.issue(f"ds_read2_b32 v[{rg}:{rg+1}], v{ad} offset0:{o} offset1:{o+1}")
                lid[key] = tr.issue(f"ds_read2_b32 v[{rg+2}:{rg+3}], v{ad} offset0:{o+2} offset1:{o+3}")
            elif key[0] == "G":
                _, kind, ix = key
                if kind in (3, 5): o = (4 - ix) * 16 + (64 if kind == 5 else 0); ad = VG8
                else: o = (3 - ix) * 8 + (96 if kind == 9 else 0); ad = VG16
                tr.issue(f"ds_read2_b32 v[{rg}:{rg+1}], v{ad} offset0:{o} offset1:{o+1}")
                lid[key] = tr.issue(f"ds_read2_b32 v[{rg+2}:{rg+3}], v{ad} offset0:{o+2} offset1:{o+3}")
            elif key[0] == "U":
                lid[key] = tr.issue(f"ds_read_b128 v[{rg}:{rg+3}], v{VB_} offset:{64*(key[1]+7)}")
            else:
                _, kind, b = key
                if kind in (3, 5): o = (R_WS3 if kind == 3 else R_WS5) + 512 * b; ad, st = VT8, 64
                else: o = (R_WS7 if kind == 7 else R_WS9) + 1024 * b; ad, st = VT16, 128
                tr.issue(f"ds_read_b64_tr_b16 v[{rg}:{rg+1}], v{ad} offset:{o}")
                lid[key] = tr.issue(f"ds_read_b64_tr_b16 v[{rg+2}:{rg+3}], v{ad} offset:{o+st}")
        keys = sorted(first, key=lambda k_: first[k_])
        tr = LdsTrack(a)
        for key in keys:
            if key[0] == "D": load(tr, key)
        for key in keys:
            if key[0] == "G" and len(pool) > RSV: load(tr, key)
        pend = [k_ for k_ in keys if k_ not in reg]
        a(f"v_lshlrev_b32 v{FT0}, 3, v3", f"v_sub_u32 v{FT0}, v{VB_}, v{FT0}")
        a(f"v_lshrrev_b32 v{FT1}, 2, v2", f"v_lshl_add_u32 v{FT1}, v{FT1}, 2, v3", f"v_and_b32 v{ZQ}, 3, v2", f"v_lshlrev_b32 v{ZQ}, 4, v{ZQ}")
        a(f"v_lshlrev_b32 v{FT1}, s{CSH}, v{FT1}")
        a("s_waitcnt lgkmcnt(0)")
        a(f"v_mov_b32 v{VUA}, v{FT0}", f"v_add_u32 v{VZA}, v{FT1}, v{ZQ}")
        a(f"v_xor_b32 v{VLN}, s{CXR}, v{VLN}")
        lds_wait(a, FL_UF, FT0, "b4")
        a(f"s_setprio {eval(os.environ.get('CPRIO', '[1,1,1,1]'))[m]}")
        stamp(a, 6); cstamp(a, 1)
        if XP & 4: a(f"v_mov_b32 v{FT0}, 0", f"s_cmp_lg_u32 s{S_G}, 0", f"s_cbranch_scc1 {zend}")
        for key in lid: lid[key] = -100
        tr = LdsTrack(a)
        ud = {}
        fill = []
        fill.append(("lds", f"ds_read_b64 v[{ZQ}:{ZQ+1}], v{VUA} offset:{480 + 512*lo}", 2))
        fill.append(("ldsU", f"ds_read_b64 v[{ZQ+2}:{ZQ+3}], v{VUA} offset:{480 + 512*hi}", 2))
        for ti, j in enumerate((lo, hi)):
            fill.append(("alloc", j, 5))
            if ti == 0: fill.append(("waitU", None, 5))
            for e in range(4):
                sel = "op_sel:[1,0,0] " if e & 1 else ""
                fill.append(("f", (lambda j=j, e=e, ti=ti, sel=sel: f"v_fma_mix_f32 v{ud[j]+e}, v{ZQ+2*ti+e//2}, v{PR+1}, 0 {sel}op_sel_hi:[1,0,0]"), 5))
            for p in range(2):
                fill.append(("f", (lambda j=j, p=p, ti=ti: f"v_cvt_pk_bf16_f32 v{ZQ+2*ti+p}, v{ud[j]+2*p}, v{ud[j]+2*p+1}"), 5))
            for p in range(2):
                fill.append(("f", (lambda j=j, p=p, ti=ti: f"v_lshlrev_b32 v{ud[j]+2*p}, 16, v{ZQ+2*ti+p}"), 5))
                fill.append(("f", (lambda j=j, p=p, ti=ti: f"v_and_b32 v{ud[j]+2*p+1}, 0xffff0000, v{ZQ+2*ti+p}"), 5))
        def epi(j, ti):
            y = acc[j]; z = ZQ + 2 * ti; out = []
            for p in range(4): out.append(lambda p=p: f"v_mul_f32 v{y+p}, v{y+p}, v{PR}")
            for p in range(2): out.append(lambda p=p: f"v_cvt_pk_bf16_f32 v{z+p}, v{y+2*p}, v{y+2*p+1}")
            for p in range(2):
                out.append(lambda p=p: f"v_lshlrev_b32 v{y+2*p}, 16, v{z+p}")
                out.append(lambda p=p: f"v_and_b32 v{y+2*p+1}, 0xffff0000, v{z+p}")
            for p in range(4): out.append(lambda p=p: f"v_add_f32 v{y+p}, v{y+p}, v{ud[j]+p}")
            for p in range(2): out.append(lambda p=p: f"v_cvt_pk_bf16_f32 v{z+p}, v{y+2*p}, v{y+2*p+1}")
            for p in range(2): out.append(lambda p=p: f"v_min_u32 v{z+p}, -2, v{z+p}")
            return out
        for f in epi(lo, 0): fill.append(("f", f, lastlo + 2))
        fill.append(("lds", f"ds_read_u8 v{FT0}, v{VZ} offset:{FL_S6 + m}", nops - 4))
        fill.append(("lds", f"ds_read_b128 v[{ACCL}:{ACCL+3}], v{VLN} offset:{G_BASE + R_RED + 1024*m}", nops - 4))
        uid = [None]
        def do_fill(n, k):
            while n > 0 and fill:
                kind, t, e = fill[0]
                if e > k: return
                if kind == "alloc":
                    if len(pool) < 2: return
                    ud[t] = pool.pop(); fill.pop(0); continue
                fill.pop(0)
                if kind == "f":
                    if XP & 2 and "v_min" not in t(): continue
                    a(t())
                elif kind == "lds": tr.issue(t)
                elif kind == "ldsU": uid[0] = tr.issue(t)
                elif kind == "waitU": tr.wait(uid[0]); continue
                n -= 1
        kW = ncomb0 - LA if nops > ncomb0 else None
        wok = [False]
        def issue_loads(k, nmax):
            while pend and pool and nmax > 0:
                key = pend[0]
                if first[key] - k > (LA if key[0] != "G" else LA + 4): return
                if key[0] == "W" and not wok[0]:
                    alt = [x for x in pend if x[0] != "W" and first[x] - k <= LA + 2]
                    if not alt: return
                    key = alt[0]
                pend.remove(key); load(tr, key); nmax -= 1
        issue_loads(0, RSV)
        started = set()
        for k, (j, A, B) in enumerate(ops):
            assert A in reg and B in reg, (m, k, A, B)
            tr.wait(max(lid[A], lid[B]))
            c = f"v[{acc[j]}:{acc[j]+3}]" if j in started else "0"
            started.add(j)
            a(f"v_mfma_f32_16x16x32_f16 v[{acc[j]}:{acc[j]+3}], v[{reg[A]}:{reg[A]+3}], v[{reg[B]}:{reg[B]+3}], {c}")
            for key in (A, B):
                if last[key] == k: pool.append(reg[key])
            if kW is not None and k == kW - 3:
                wfid = tr.issue(f"ds_read_b32 v{FT0}, v14 offset:{FL_G + 12}")
            if k == kW:
                tr.wait(wfid)
                sl = newlabel("WS"); bk = newlabel("WB")
                a(f"v_cmp_ne_u32 vcc, s{S_ONES}, v{FT0}", f"s_cbranch_vccnz {sl}")
                a(f"{bk}:")
                slow.append((sl, bk))
                wok[0] = True
                cstamp(a, 3)
            issue_loads(k + 1, 2)
            do_fill(NF, k)
            if k == ncomb0 // 2: cstamp(a, 2)
            if k == ncomb0 - 1: cstamp(a, 4)
        cstamp(a, 5)
        do_fill(1000, 1000)
        assert not fill and not pend
        stamp(a, 7)
        for f in epi(hi, 1): a(f())
        if m < 3: a(f"s_branch {zend}")
    a(f"{zend}:")
    cstamp(a, 6)
    gA = newlabel("ZA"); gC = newlabel("ZC"); zs = newlabel("ZS"); zb = newlabel("ZB"); zc = newlabel("ZCB"); zd = newlabel("ZD")
    a("s_waitcnt lgkmcnt(0)")
    a(f"s_cmp_lg_u32 s{S_G}, 1", f"s_cbranch_scc1 {gA}")
    a(f"v_cmp_ne_u32 vcc, 1, v{FT0}", f"s_cbranch_vccnz {zs}")
    a(f"{zb}:")
    a(f"s_mov_b64 exec, s[{CM}:{CM+1}]")
    for k in range(4): a(f"v_swap_b32 v{ZQ+k}, v{ACCL+k}")
    a("s_mov_b64 exec, -1")
    cstamp(a, 8)
    a(f"buffer_store_dwordx4 v[{ZQ}:{ZQ+3}], v{VZA}, s[{R0}:{R0+3}], s{CZ1} offen sc1")
    a(f"buffer_store_dwordx4 v[{ACCL}:{ACCL+3}], v{VZA}, s[{R0}:{R0+3}], s{CZ0} offen sc1")
    a(f"s_branch {zd}")
    for (sl, bk) in slow:
        a(f"{sl}:")
        lds_wait(a, FL_G + 12, FT0, "b4", addr=14)
        a(f"s_branch {bk}")
    a(f"{zs}:")
    a(f"v_mov_b32 v{FT1}, s{S_ROLE}")
    l = newlabel("ZW")
    a(f"{l}:")
    a(f"ds_read_u8 v{FT0}, v{FT1} offset:{FL_S6}")
    guard(a)
    a("s_waitcnt lgkmcnt(0)")
    a(f"v_cmp_ne_u32 vcc, 1, v{FT0}", f"s_cbranch_vccnz {l}")
    a(f"v_lshl_add_u32 v{FT1}, v{FT1}, 10, v{VLN}")
    a(f"ds_read_b128 v[{ACCL}:{ACCL+3}], v{FT1} offset:{G_BASE + R_RED}")
    a("s_waitcnt lgkmcnt(0)")
    a(f"s_branch {zb}")
    a(f"{gA}:")
    a(f"s_cmp_lg_u32 s{S_G}, 0", f"s_cbranch_scc1 {gC}")
    a(f"v_mov_b32 v{FT1}, s{S_ROLE}", f"v_lshl_add_u32 v{FT0}, v{FT1}, 10, v{VLN}")
    a(f"ds_write_b128 v{FT0}, v[{ZQ}:{ZQ+3}] offset:{G_BASE + R_RED}")
    a(f"ds_write_b8 v{FT1}, v{VONE} offset:{FL_S6}")
    cstamp(a, 8)
    a(f"s_branch {zd}")
    a(f"{gC}:")
    cstamp(a, 8)
    a(f"buffer_store_dwordx4 v[{ZQ}:{ZQ+3}], v{VZA}, s[{R0}:{R0+3}], s{CZ0} offen sc1")
    a(f"{zd}:")
    stamp(a, 8)
    if DBG:
        a(f"s_mul_i32 s{T0_}, s{S_ROLE}, 1280", f"s_add_u32 s{T1_}, s{T0_}, s{S_GB}", f"v_lshl_add_u32 v20, v1, 2, s{T1_}")
        a(f"s_mul_i32 s{T1_}, s{S_CH}, 5376", f"s_add_u32 s{T1_}, s{T1_}, s{T0_}", f"s_add_u32 s{T1_}, s{T1_}, {hex(WS_DBG)}", f"v_lshl_add_u32 v21, v1, 2, s{T1_}")
        for k in range(5 + 1):
            a(f"ds_read_b32 v22, v20 offset:{R2 + 256*k}", "s_waitcnt lgkmcnt(0)", f"global_store_dword v21, v22, s[{P_WS}:{P_WS+1}] offset:{256*k}")
        a(f"ds_read_b32 v22, v14 offset:{C_PAR}", f"s_lshl_b32 s{T1_}, s{S_CH}, 2", f"s_add_u32 s{T1_}, s{T1_}, {hex(WS_DBG + 0x300000)}", f"v_mov_b32 v21, s{T1_}")
        a("s_waitcnt lgkmcnt(0)", f"global_store_dword v21, v22, s[{P_WS}:{P_WS+1}]")
    a(f"s_lshl_b32 s{T0_}, s{S_G}, 2", f"s_add_u32 s{T0_}, s{T0_}, s{S_ROLE}", f"v_mov_b32 v8, s{T0_}")
    a("s_waitcnt vmcnt(0)")
    a(f"ds_write_b8 v8, v{VONE} offset:{FL_ZDONE}")


def gen_wjobs(a):
    WA, WD = 10, 11
    end = newlabel("WJE"); w1 = newlabel("WJ1"); w2 = newlabel("WJ2")
    a(f"s_cmp_eq_u32 s{S_WAVE}, 2", f"s_cbranch_scc1 {w2}")
    if XP & 1: a(f"s_branch {w2}")
    a(f"s_add_u32 s{T0_}, s{S_WAVE}, 1", f"s_lshr_b32 s{T0_}, s{T0_}, 2", f"s_cmp_eq_u32 s{S_WAVE}, 1", f"s_cselect_b32 s{T0_}, 2, s{T0_}", f"s_lshl_b32 s{T0_}, s{T0_}, 10")
    a(f"v_lshl_add_u32 v{WA}, v1, 4, s{T0_}", f"v_add_u32 v{WD}, {G_BASE}, v{WA}")
    lds_wait(a, FL_UF, 12, "b4")
    a(f"s_setprio {ENV('WPRIO', 3)}")
    for g in range(3):
        E = 20 + 12 * g; o = C_U + U_SIZE * g + 2 * (240 - 16)
        a(f"ds_read_b128 v[{E}:{E+3}], v{WA} offset:{o}", f"ds_read_b128 v[{E+4}:{E+7}], v{WA} offset:{o+16}", f"ds_read_b64 v[{E+8}:{E+9}], v{WA} offset:{o+32}")
    a(f"s_cmp_eq_u32 s{S_WAVE}, 1", f"s_cbranch_scc1 {w1}")
    for full in (1, 0):
        if not full: a(f"{w1}:")
        for g in range(3):
            if g == 2: a(f"s_cmp_lt_u32 s{S_I}, 24", f"s_cbranch_scc1 {end}")
            E = lambda i: 20 + 12 * g + i
            O = lambda i: 56 + i
            T = lambda i: 65 + i
            Q = lambda i: 72 + i
            X = lambda i: 79 + i
            Y = lambda i: 85 + i
            W7, W9 = 92, 96
            a(f"ds_read_b32 v12, v{VZ} offset:{FL_G + 16*g + 4}")
            if g == 0: a("s_waitcnt lgkmcnt(7)")
            n = 8 if full else 7
            for i in range(1, n + 1): a(f"v_alignbit_b32 v{O(i)}, v{E(i+1)}, v{E(i)}, 16")
            for i in range(1, n + 1): a(f"v_pk_add_f16 v{T(i)}, v{O(i)}, v{E(i+1)}")
            for i in range(1, 5): a(f"v_pk_add_f16 v{X(i)}, v{T(i)}, v{O(i+1)}")
            for i in (range(2, 8) if full else range(3, 7)): a(f"v_pk_add_f16 v{Q(i)}, v{T(i)}, v{T(i+1)}")
            ok = newlabel("WJK")
            a("s_waitcnt lgkmcnt(0)")
            a(f"v_cmp_eq_u32 vcc, s{S_ONES}, v12", f"s_cbranch_vccnz {ok}")
            lds_wait(a, FL_G + 16 * g + 4, 12, "b4", sleep=1)
            a(f"{ok}:")
            off = G_SIZE * (g & 1)
            if g == 2: a(f"v_add_u32 v{WD}, {2*G_SIZE}, v{WD}")
            a(f"ds_write_b128 v{WD}, v[{X(1)}:{X(4)}] offset:{off + R_WS3}")
            for i in (range(2, 7) if full else range(3, 7)): a(f"v_pk_add_f16 v{Y(i)}, v{E(i)}, v{Q(i)}")
            a(f"ds_write_b128 v{WD}, v[{Y(3)}:{Y(6)}] offset:{off + R_WS5 + 16}")
            if full:
                for i in range(5, 8): a(f"v_pk_add_f16 v{X(i)}, v{T(i)}, v{O(i+1)}")
                for k in range(4): a(f"v_pk_add_f16 v{W7+k}, v{Q(2+k)}, v{X(4+k)}")
                a(f"ds_write_b128 v{WD}, v[{W7}:{W7+3}] offset:{off + R_WS7}")
                for k in range(4): a(f"v_pk_add_f16 v{W9+k}, v{Y(2+k)}, v{Q(4+k)}")
                a(f"ds_write_b128 v{WD}, v[{W9}:{W9+3}] offset:{off + R_WS9 + 16}")
            a(f"ds_write_b8 v116, v{VONE} offset:{FL_G + 16*g + 12}")
        a(f"s_branch {end}")
    a(f"{w2}:")
    for g in range(3): a(f"ds_write_b8 v116, v{VONE} offset:{FL_G + 16*g + 12}")
    if PF2 > PF1 or PFD:
        W2 = ENV("PF2W", 14)
        a(f"s_sub_u32 s{T2_}, s{S_I}, 18", f"s_cmp_ge_u32 s{T2_}, {W2}", f"s_cbranch_scc1 {end}")
        pf_lane(a, 100, 101)
        lds_wait(a, FL_UF, 12, "b4", sleep=1)
        if PF2 > PF1:
            pf_gu(a, 100, T2_, W2, PF1, PF2, 102, "KS_PF2D")
            a("KS_PF2D:")
        if PFD:
            a(f"s_sub_u32 s{T2_}, {W2-1}, s{T2_}")
            pf_down(a, T2_, W2, 0, PFD, 100, 120, end)
    a(f"{end}:")

def gen(a):
    label = NAME + "_kernel"
    a(f".globl {label}", ".p2align 8", f".type {label},@function", f"{label}:")
    a("s_cmp_ge_u32 s2, 256", "s_cbranch_scc1 KS_END")
    stamp_begin(a)
    a("s_load_dwordx16 s[4:19], s[0:1], 0", "s_load_dwordx16 s[20:35], s[0:1], 64", f"s_load_dwordx2 s[{P_WS}:{P_WS+1}], s[0:1], 128")
    a(f"v_readfirstlane_b32 s{S_WAVE}, v0", f"s_lshr_b32 s{S_WAVE}, s{S_WAVE}, 6")
    a(f"s_and_b32 s{S_XC}, s2, 7", f"s_lshr_b32 s{S_I}, s2, 3")
    if ENV("REMAP", 1):
        a(f"s_add_u32 s{T0_}, s{S_WAVE}, 8", f"s_sub_u32 s{T1_}, s{S_WAVE}, 4", f"s_cmp_lt_u32 s{S_WAVE}, 8", f"s_cselect_b32 s{T0_}, s{T0_}, s{T1_}")
        a(f"s_cmp_lt_u32 s{S_WAVE}, 4", f"s_cselect_b32 s{S_WAVE}, s{S_WAVE}, s{T0_}")
    a("v_and_b32 v1, 63, v0", "v_and_b32 v2, 15, v1", "v_lshrrev_b32 v3, 4, v1", f"v_mov_b32 v{VZ}, 0", f"v_mov_b32 v{VONE}, 1")
    a(f"s_mov_b32 s{S_GUARD}, {GUARD}", f"s_mov_b32 s{S_ONES}, 0x01010101")
    a(f"s_lshl_b32 s{S_B2}, s{S_XC}, 5", f"s_add_u32 s{S_B2}, s{S_B2}, s{S_I}")
    a(f"s_mul_i32 s{S_BLK}, s{S_XC}, 18", f"s_add_u32 s{S_BLK}, s{S_BLK}, s{S_I}")
    a(f"s_cmp_lt_u32 s{S_WAVE}, 4", "s_cbranch_scc1 KS_L")
    a(f"s_cmp_ge_u32 s{S_WAVE}, 12", "s_cbranch_scc1 KS_X")
    a("s_setprio 2")
    a(f"s_lshr_b32 s{S_G}, s{S_WAVE}, 2", f"s_sub_u32 s{S_G}, s{S_G}, 1")
    a(f"s_mul_i32 s{S_ROLE}, s{S_G}, 3", f"s_xor_b32 s{S_ROLE}, s{S_ROLE}, s{S_WAVE}", f"s_and_b32 s{S_ROLE}, s{S_ROLE}, 3")
    a(f"s_lshl_b32 s{S_CH}, s{S_B2}, 1", f"s_add_u32 s{S_CH}, s{S_CH}, s{S_G}")
    a(f"s_lshl_b32 s{T0_}, s{S_ROLE}, 11", f"s_add_u32 s{T0_}, s{T0_}, {C_STG}", f"v_lshl_add_u32 v28, v1, 3, s{T0_}")
    pre_ixlf(a)
    a("KS_GRP:")
    gen_group(a)
    a(f"s_cmp_lt_u32 s{S_I}, 18", "s_cbranch_scc1 KS_T")
    a("s_waitcnt lgkmcnt(0)")
    endwave(a)
    a("KS_X:")
    a(f"s_cmp_lt_u32 s{S_I}, 24", "s_cbranch_scc1 KS_X2")
    a(f"s_setprio {ENV('KCPRIO', 2)}")
    a("KS_XC:")
    a(f"s_mov_b32 s{S_G}, 2", f"s_add_u32 s{S_ROLE}, s{S_WAVE}, 3", f"s_and_b32 s{S_ROLE}, s{S_ROLE}, 3")
    a(f"s_lshl_b32 s{S_CH}, s{S_XC}, 3", f"s_and_b32 s{T0_}, s{S_I}, 7", f"s_add_u32 s{S_CH}, s{S_CH}, s{T0_}", f"s_add_u32 s{S_CH}, s{S_CH}, 512")
    a(f"s_lshl_b32 s{T0_}, s{S_ROLE}, 11", f"s_add_u32 s{T0_}, s{T0_}, {C_STG}", f"v_lshl_add_u32 v28, v1, 3, s{T0_}")
    a("s_branch KS_GRP")
    a("KS_X2:")
    a(f"s_cmp_lt_u32 s{S_I}, 8", "s_cbranch_scc1 KS_X3")
    a(f"s_sub_u32 s{T5_}, s{S_WAVE}, 8")
    a("s_branch KS_LN1")
    a("KS_X3:")
    a(f"s_lshl_b32 s{T0_}, s2, 4", f"s_add_u32 s{T0_}, s{T0_}, s{S_WAVE}", f"s_cmp_lg_u32 s{T0_}, {16*ENV('NPUB', 2) + 12}", "s_cbranch_scc1 KS_X3B")
    a("s_setprio 3")
    a(f"s_memrealtime s[{T0_}:{T1_}]")
    a("v_and_b32 v6, 3, v1", "v_lshlrev_b32 v7, 2, v6", "v_min_u32 v6, 2, v6", "v_lshlrev_b32 v6, 2, v6", "v_cmp_eq_u32 vcc, 3, v1")
    a("s_waitcnt lgkmcnt(0)")
    a(f"v_mov_b32 v8, s{T0_}", f"v_mov_b32 v9, s{T1_}", "v_alignbit_b32 v8, v8, v8, v6", f"v_cndmask_b32 v9, v{VZ}, v9, vcc", "v_xor_b32 v8, v8, v9")
    a("v_and_b32 v9, 0xf0000fff, v8", "v_and_b32 v10, 0xfff000, v8", "v_lshl_or_b32 v9, v10, 4, v9", "v_lshrrev_b32 v10, 12, v8", "v_and_b32 v10, 0xf000, v10")
    a("v_or3_b32 v9, v9, v10, v9", "v_or_b32 v9, 0x80000000, v9")
    a("s_mov_b64 exec, 15")
    a(f"global_store_dword v7, v9, s[{P_DBG}:{P_DBG+1}] sc1")
    a("s_mov_b64 exec, -1")
    a("s_setprio 0")
    a("KS_X3B:")
    if KOFF:
        a(f"s_setprio {ENV('KPPRIO', 3)}")
        a("s_branch KS_XC")
    a("s_waitcnt lgkmcnt(0)")
    a("s_barrier")
    a("s_branch KS_G")
    a("KS_X4:")
    a(f"s_cmp_lt_u32 s{S_I}, 18", "s_cbranch_scc1 KS_G")
    a("s_waitcnt vmcnt(0) lgkmcnt(0)")
    endwave(a)
    a("KS_L:")
    a("v_lshlrev_b32 v6, 2, v0", f"ds_write_b32 v6, v{VZ}")
    a("v_mov_b32 v8, 0", "v_mov_b32 v9, 0", f"s_min_u32 s{T0_}, s{S_WAVE}, 2", f"s_mul_i32 s{T0_}, s{T0_}, {U_SIZE}", "v_min_u32 v6, 59, v1", f"v_lshl_add_u32 v6, v6, 3, s{T0_}")
    a(f"ds_write_b64 v6, v[8:9] offset:{C_U}")
    a(f"s_mov_b32 s{T5_}, s{S_WAVE}")
    a(f"s_sub_u32 s{T0_}, s{S_I}, 8", f"s_cmp_lt_u32 s{T0_}, 16", "s_cbranch_scc0 KS_L0")
    a("KS_LN1:")
    a("s_setprio 3")
    gen_ln1(a)
    if NLL:
        if not NL: pf_lane(a, 46, 47)
        a(f"s_lshl_b32 s{T2_}, s{S_WAVE}, 4", f"s_add_u32 s{T2_}, s{T2_}, s{S_I}", f"s_sub_u32 s{T2_}, s{T2_}, 8")
        pf_gu(a, 46, T2_, 64, 16 * NL + 16 * NE, PF0, 47, "KS_LLE")
        a("KS_LLE:")
    a(f"s_mov_b32 s{S_G}, 1")
    a("s_branch KS_L2B")
    a("KS_L0:")
    a(f"s_and_b32 s{T0_}, s{S_I}, 15", f"s_lshl_b32 s{T1_}, s{S_XC}, 4", f"s_add_u32 s{T0_}, s{T0_}, s{T1_}")
    a("v_and_b32 v59, 3, v1", "v_lshlrev_b32 v59, 2, v59")
    a(f"s_lshl_b32 s{T4_}, s{T0_}, 6", f"s_add_u32 s{T1_}, s{T4_}, {hex(WS_FLAG1)}", f"v_add_u32 v7, s{T1_}, v59")
    a(f"s_mul_i32 s{T1_}, s{T0_}, {CLR_WG}", f"s_add_u32 s{T1_}, s{T1_}, {hex(WS_CLR)}")
    a("v_lshlrev_b32 v6, 4, v0")
    a("v_mov_b32 v12, -1", "v_mov_b32 v13, -1", "v_mov_b32 v14, -1", "v_mov_b32 v15, -1")
    a("s_setprio 3")
    pf_lane(a, 16, 17)
    a("s_waitcnt lgkmcnt(0)")
    a(f"s_add_u32 s{R1}, s{P_WS}, s{T1_}", f"s_addc_u32 s{R1+1}, s{P_WS+1}, 0", f"s_mov_b32 s{R1+2}, {CLR_WG}", f"s_mov_b32 s{R1+3}, 0x20000")
    a("s_barrier")
    if NE:
        a(f"s_and_b32 s{T2_}, s{S_I}, 15", f"s_lshl_b32 s{T3_}, s{S_WAVE}, 4", f"s_add_u32 s{T2_}, s{T2_}, s{T3_}")
        pf_gu(a, 16, T2_, 64, 16 * NL, 16 * NL + 16 * NE, 18, "KS_L1E")
        a("KS_L1E:")
    if ENV("CTRIG", 1): lds_wait(a, FL_PARAM, 8, "nz", sleep=2)
    for k in range(5):
        a(f"s_movk_i32 s{T0_}, {4096*k}")
        a(f"buffer_store_dwordx4 v[12:15], v6, s[{R1}:{R1+3}], s{T0_} offen sc1")
    stamp(a, 1)
    a(f"global_load_dword v58, v59, s[{P_DBG}:{P_DBG+1}] sc1")
    dbg_wait(a, 0)
    stamp(a, 2)
    a(f"ds_write_b32 v59, v58 offset:{FL_NONCE}")
    a("s_mov_b64 exec, 1")
    a(f"ds_add_rtn_u32 v8, v{VZ}, v{VONE} offset:{FL_LNACK}")
    a("s_mov_b64 exec, -1")
    for d in range(1, 4): a(f"v_lshrrev_b32 v{58-d}, {3*d}, v58")
    a("s_waitcnt lgkmcnt(0)")
    a(f"v_readfirstlane_b32 s{T0_}, v8")
    a(f"s_cmp_lg_u32 s{T0_}, 3", "s_cbranch_scc1 KS_L2")
    a("s_mov_b64 exec, 15")
    a(f"global_store_dword v7, v58, s[{P_WS}:{P_WS+1}] sc1")
    a("s_mov_b64 exec, -1")
    a(f"s_and_b32 s{T2_}, s{S_I}, 7")
    a(f"s_cmp_ge_u32 s{S_I}, 8", "s_cbranch_scc1 KS_L1C")
    if NN:
        a("s_setprio 0")
        lds_wait(a, FL_G + 32 + 4, 8, "b4", sleep=2)
        a("s_setprio 3")
        pf_gu(a, 16, T2_, 8, PF0, PF0 + 8 * NN, 18, "KS_L2")
    a("s_branch KS_L2")
    a("KS_L1C:")
    if NC: pf_gu(a, 16, T2_, 8, PF0 + 8 * NN, PF1, 18, "KS_L2")
    a("KS_L2:")
    a(f"s_mov_b32 s{S_G}, 0")
    a("KS_L2B:")
    srd(a, R0, P_WS, XBYTES, WS_UT)
    a("v_lshrrev_b32 v7, 1, v1", "v_lshlrev_b32 v7, 6, v7", "v_and_b32 v10, 1, v1", "v_lshl_add_u32 v7, v10, 4, v7", "v_lshlrev_b32 v9, 4, v1")
    a(f"s_lshl_b32 s{T0_}, s{S_WAVE}, 11", f"s_lshl_b32 s{T1_}, s{S_B2}, 13", f"s_add_u32 s{T1_}, s{T1_}, s{T0_}")
    a(f"s_lshl_b32 s{T3_}, s{S_XC}, 3", f"s_add_u32 s{T3_}, s{T3_}, s{S_I}", f"s_add_u32 s{T3_}, s{T3_}, {512 - 24}")
    a(f"s_lshr_b32 s{T4_}, s{T3_}, 1", f"s_lshl_b32 s{T4_}, s{T4_}, 13", f"s_and_b32 s{T3_}, s{T3_}, 1", f"s_lshl_b32 s{T3_}, s{T3_}, 5")
    a(f"s_add_u32 s{T3_}, s{T3_}, s{T4_}", f"s_add_u32 s{T3_}, s{T3_}, s{T0_}")
    a(f"s_cmp_lt_u32 s{S_I}, 24", f"s_cselect_b32 s{T3_}, {XBYTES}, s{T3_}", f"s_cselect_b32 s{T2_}, 0, {hex(TAGM)}")
    a(f"v_mov_b32_dpp v64, v58 quad_perm:[0,1,0,1] {DPPM}", f"v_mov_b32_dpp v65, v58 quad_perm:[2,3,2,3] {DPPM}")
    a(f"s_bitcmp1_b32 s{S_I}, 0", "s_cselect_b64 vcc, -1, 0", "v_cndmask_b32 v64, v64, v65, vcc")
    for d in range(4): a(f"v_and_b32 v{60+d}, {hex(TAGM)}, v{58-d}")
    for d in range(3, 0, -1): a(f"v_lshrrev_b32 v{64+d}, {3*d}, v64")
    for d in range(4): a(f"v_and_b32 v{64+d}, s{T2_}, v{64+d}")
    a(f"s_lshl_b32 s{T4_}, s{S_WAVE}, 10", f"s_add_u32 s{T4_}, s{T4_}, {C_U + 480}")
    a("v_bfe_u32 v11, v1, 1, 1", f"v_mul_u32_u24 v11, {U_SIZE}, v11", "v_lshl_add_u32 v11, v10, 4, v11", "v_lshrrev_b32 v10, 2, v1", "v_lshl_add_u32 v11, v10, 5, v11", f"v_add_u32 v11, s{T4_}, v11")
    a(f"v_add_u32 v10, s{T4_}, v9")
    a(f"v_mov_b32 v116, s{S_WAVE}")
    a(f"s_add_u32 s{T0_}, s{T0_}, {hex(WS_FLAG1)}", "v_lshrrev_b32 v12, 2, v1", "v_lshl_add_u32 v12, v12, 6, v59", f"v_add_u32 v12, s{T0_}, v12")
    a(f"s_cmp_eq_u32 s{S_G}, 0", "s_cbranch_scc1 KS_L2C")
    a("s_waitcnt vmcnt(0)")
    a("s_branch KS_L2D")
    a("KS_L2C:")
    if ENV("UTRIG", 1):
        a("s_setprio 0")
        lds_wait(a, FL_G + {1: 4, 2: 16, 3: 16 + 4, 4: 16 + 8, 5: 8, 6: 0}[ENV("UTRIG", 1)], 8, "b4", sleep=2)
        a("s_setprio 3")
    a("KS_L2D:")
    stamp(a, 5)
    if ENV("UDELAY", 0): a(f"s_sleep {ENV('UDELAY', 0)}")
    lp = newlabel("UP"); l1 = newlabel("UPE")
    a(f"s_branch {l1}")
    a(f"{lp}:")
    a(f"s_sleep {ENV('USLEEP', 2)}")
    a(f"{l1}:")
    UM = os.environ.get("UMOD", "sc1").replace("_", " ")
    a(f"global_load_dword v32, v12, s[{P_WS}:{P_WS+1}] sc1", f"global_load_dword v33, v12, s[{P_WS}:{P_WS+1}] offset:1024 sc1")
    a(f"buffer_load_dwordx4 v[20:23], v9, s[{R0}:{R0+3}], s{T1_} offen {UM}")
    a(f"buffer_load_dwordx4 v[24:27], v9, s[{R0}:{R0+3}], s{T1_} offen offset:1024 {UM}")
    a(f"buffer_load_dwordx4 v[28:31], v7, s[{R0}:{R0+3}], s{T3_} offen {UM}")
    guard(a)
    for k in range(3):
        a(f"s_waitcnt vmcnt({2-k})")
        if k == 0: a("v_xor_b32 v32, v58, v32", "v_xor_b32 v33, v58, v33")
        for d in range(4): a(f"v_xor_b32 v{20+4*k+d}, v{(64 if k == 2 else 60)+d}, v{20+4*k+d}")
        a(f"v_or3_b32 v44, v{20+4*k}, v{21+4*k}, v{44 if k else 21}", f"v_or3_b32 v44, v{22+4*k}, v{23+4*k}, v44")
    a(f"v_and_b32 v44, {hex(TAGM)}, v44", "v_or3_b32 v44, v44, v32, v33", "v_cmp_ne_u32 vcc, 0, v44", f"s_cbranch_vccnz {lp}")
    stamp(a, 6)
    a("ds_write_b128 v11, v[20:23]", "ds_write_b128 v11, v[24:27] offset:512", f"ds_write_b128 v10, v[28:31] offset:{2*U_SIZE}")
    a(f"ds_write_b8 v116, v{VONE} offset:{FL_UF}")
    stamp(a, 7)
    gen_wjobs(a)
    a("s_setprio 0")
    a(f"s_lshr_b32 s{T0_}, s{S_B2}, 6", f"s_lshl_b32 s{T0_}, s{T0_}, 9")
    a(f"s_bfe_u32 s{T1_}, s{S_B2}, 0x20004", f"s_lshl_b32 s{T1_}, s{T1_}, 6", f"s_add_u32 s{T0_}, s{T0_}, s{T1_}")
    a(f"s_and_b32 s{T1_}, s{S_B2}, 3", f"s_lshl_b32 s{T1_}, s{T1_}, 4", f"s_add_u32 s{T0_}, s{T0_}, s{T1_}")
    a(f"s_and_b32 s{T1_}, s{S_B2}, 12", f"s_add_u32 s{T0_}, s{T0_}, s{T1_}")
    a(f"s_lshr_b32 s{T1_}, s{S_WAVE}, 1", f"s_lshl_b32 s{T1_}, s{T1_}, 8", f"s_add_u32 s{T0_}, s{T0_}, s{T1_}")
    a(f"s_and_b32 s{T1_}, s{S_WAVE}, 1", f"s_lshl_b32 s{T1_}, s{T1_}, 1", f"s_add_u32 s{T0_}, s{T0_}, s{T1_}")
    a("v_lshrrev_b32 v113, 5, v1", "v_and_b32 v114, 31, v1")
    a(f"v_add_u32 v112, s{T0_}, v113")
    a("v_mul_u32_u24 v115, 1152, v112", "v_lshl_add_u32 v8, v114, 2, v115", "v_lshl_add_u32 v115, v114, 4, v115", "v_lshlrev_b32 v7, 2, v114", "v_lshlrev_b32 v6, 4, v114")
    a(f"v_bfe_u32 v111, v1, 3, 1", f"v_add_u32 v111, s{T0_}, v111", "v_mul_u32_u24 v111, 1152, v111", "v_and_b32 v9, 7, v1", "v_lshl_add_u32 v111, v9, 4, v111")
    srd(a, R0, P_X, XBYTES)
    srd(a, R1, P_WR, 1152)
    a(f"buffer_load_dwordx4 v[10:13], v115, s[{R0}:{R0+3}], 0 offen")
    a(f"buffer_load_dwordx4 v[14:17], v115, s[{R0}:{R0+3}], 0 offen offset:512")
    a(f"buffer_load_dword v18, v8, s[{R0}:{R0+3}], 0 offen offset:1024")
    a(f"buffer_load_dwordx4 v[50:53], v6, s[{R1}:{R1+3}], 0 offen")
    a(f"buffer_load_dwordx4 v[54:57], v6, s[{R1}:{R1+3}], 0 offen offset:512")
    a(f"buffer_load_dword v58, v7, s[{R1}:{R1+3}], 0 offen offset:1024")
    if not PTAG:
        a(f"s_cmp_lt_u32 s{S_I}, 18", "s_cbranch_scc1 KS_L4")
        a(f"s_mul_i32 s{T0_}, s{S_XC}, 14", f"s_add_u32 s{T0_}, s{T0_}, s{S_I}", f"s_mul_i32 s{T0_}, s{T0_}, {CLRP_WG}", f"s_add_u32 s{T0_}, s{T0_}, {hex(WS_PART - 18*CLRP_WG)}")
        a(f"s_add_u32 s{R1}, s{P_WS}, s{T0_}", f"s_addc_u32 s{R1+1}, s{P_WS+1}, 0", f"s_mov_b32 s{R1+2}, {CLRP_WG}", f"s_mov_b32 s{R1+3}, 0x20000")
        a("v_lshlrev_b32 v6, 4, v0", "v_mov_b32 v60, -1", "v_mov_b32 v61, -1", "v_mov_b32 v62, -1", "v_mov_b32 v63, -1")
        for k in range(6):
            a(f"s_movk_i32 s{T0_}, {4096*k}")
            a(f"buffer_store_dwordx4 v[60:63], v6, s[{R1}:{R1+3}], s{T0_} offen sc1")
    a("KS_L4:")
    srd(a, R0, P_WS, 0x240000, WS_ZB1)
    srd(a, R1, P_OUT, XBYTES)
    srd(a, R2_, P_WS, XBYTES, WS_X2)
    srd(a, R3, P_WS, 12288, WS_KEYS)
    a(f"s_not_b32 s{T1_}, s{S_B2}", f"v_xor_b32 v8, s{T1_}, v0")
    a("v_lshrrev_b32 v6, 1, v0", "v_lshlrev_b32 v6, 6, v6", "v_and_b32 v8, 1, v8", "v_lshl_add_u32 v6, v8, 4, v6")
    a(f"s_lshr_b32 s{T0_}, s{S_B2}, 2", f"s_lshl_b32 s{T0_}, s{T0_}, 15", f"s_and_b32 s{T1_}, s{S_B2}, 1", f"s_lshl_b32 s{T1_}, s{T1_}, 14", f"s_add_u32 s{T0_}, s{T0_}, s{T1_}")
    a(f"s_and_b32 s{T1_}, s{S_B2}, 2", f"s_lshl_b32 s{T1_}, s{T1_}, 4", f"s_add_u32 s{T0_}, s{T0_}, s{T1_}")
    a(f"s_lshr_b32 s{T2_}, s{S_B2}, 2", f"s_lshl_b32 s{T2_}, s{T2_}, 12", f"s_and_b32 s{T1_}, s{S_B2}, 3", f"s_lshl_b32 s{T1_}, s{T1_}, 4")
    a(f"s_add_u32 s{T2_}, s{T2_}, s{T1_}", f"s_lshl_b32 s{T1_}, s{S_WAVE}, 10", f"s_add_u32 s{T2_}, s{T2_}, s{T1_}", f"s_add_u32 s{T2_}, s{T2_}, 0x200000")
    a(f"s_add_u32 s{T1_}, s{T0_}, 8192", "v_lshlrev_b32 v9, 6, v2")
    a(f"s_mul_i32 s{T3_}, s{S_WAVE}, 2304", f"s_add_u32 s{T3_}, s{T3_}, {C_XR}", f"v_lshl_add_u32 v117, v114, 5, s{T3_}", f"v_lshl_add_u32 v110, v114, 3, s{T3_}")
    a(f"s_lshl_b32 s{T3_}, s{S_WAVE}, 9", f"s_add_u32 s{T3_}, s{T3_}, {C_RED}", f"v_lshl_add_u32 v108, v1, 2, s{T3_}", f"v_lshl_add_u32 v109, v1, 4, s{T3_}")
    a(f"s_mov_b32 s{T3_}, 0x02020202", f"v_mul_lo_u32 v118, v113, s{T3_}", "v_add_u32 v118, 0x05040100, v118")
    a(f"v_lshlrev_b32 v8, 2, v0", f"v_add_u32 v8, {C_XR}, v8")
    a(f"s_lshl_b32 s{T3_}, s{S_WAVE}, 6", f"s_add_u32 s{T3_}, s{T3_}, {C_XR + 2048}", f"v_lshl_add_u32 v119, v2, 2, s{T3_}")
    a("s_waitcnt vmcnt(0)")
    X = 20
    for j in range(9): unpack(a, X + 2 * j, 10 + j)
    lds_wait(a, FL_ZDONE + 4, 60, "b4", sleep=1)
    a("s_setprio 3")
    if PFD2 > PFD:
        a(f"s_sub_u32 s{T5_}, s{S_I}, 18", f"s_cmp_ge_u32 s{T5_}, 6", "s_cbranch_scc1 KS_PF3E", f"s_cmp_lg_u32 s{S_WAVE}, 2", "s_cbranch_scc1 KS_PF3E")
        pf_down(a, T5_, 6, PFD, PFD2, 100, 120, "KS_PF3E", R4)
        a("KS_PF3E:")
    stamp2(a, 1)
    if ENV("ZGATE", 1):
        zpoll(a, [f"buffer_load_dwordx4 v[68:71], v{VZ}, s[{R0}:{R0+3}], s{T2_} offen sc1"], list(range(68, 72)), ENV("ZSLEEP", 1))
        if ENV("ZDELAY", 0): a(f"s_sleep {ENV('ZDELAY', 0)}")
    zpoll(a, [f"buffer_load_dwordx4 v[60:63], v6, s[{R0}:{R0+3}], s{T0_} offen sc1",
           f"buffer_load_dwordx4 v[64:67], v6, s[{R0}:{R0+3}], s{T1_} offen sc1",
           f"buffer_load_dwordx4 v[68:71], v9, s[{R0}:{R0+3}], s{T2_} offen sc1"], list(range(60, 72)), ENV("ZSLEEP", 1))
    stamp2(a, 2)
    for k in range(2):
        a(f"ds_write2st64_b32 v8, v{60+4*k}, v{61+4*k} offset0:{4*k} offset1:{9+4*k}")
        a(f"ds_write2st64_b32 v8, v{62+4*k}, v{63+4*k} offset0:{18+4*k} offset1:{27+4*k}")
    a("ds_write2st64_b32 v119, v68, v69 offset0:0 offset1:9")
    a("ds_write2st64_b32 v119, v70, v71 offset0:18 offset1:27")
    a(f"ds_write_b8 v116, v{VONE} offset:{FL_ZF}")
    stamp2(a, 3)
    lds_wait(a, FL_ZF, 60, "b4")
    for k in range(4):
        a(f"ds_read_b128 v[{60+4*k}:{63+4*k}], v117 offset:{1024*(k>>1) + 16*(k&1)}")
    a("ds_read_b64 v[76:77], v110 offset:2048")
    for j in range(9):
        if j % 2 == 0: a(f"s_waitcnt lgkmcnt({4-j//2})")
        a(f"v_perm_b32 v44, v{61+2*j}, v{60+2*j}, v118")
        unpack(a, 46, 44)
        a(f"v_pk_add_f32 v[46:47], v[46:47], v[{X+2*j}:{X+2*j+1}]")
        a(f"v_cvt_pk_bf16_f32 v44, v46, v47")
        unpack(a, X + 2 * j, 44)
    ln_stats(a, X, 40, 42, 44, 46, 48)
    stamp2(a, 4)
    a("v_mov_b32 v60, 0", "v_mov_b32 v61, 0")
    for j in range(9):
        ln_apply_pair(a, X + 2 * j, 40, 42, 44, 10 + j)
        unpack(a, 46, 50 + j)
        a("v_pk_fma_f32 v[60:61], v[44:45], v[46:47], v[60:61]")
        a(f"v_pk_add_f32 v[{X+2*j}:{X+2*j+1}], v[44:45], v[{X+2*j}:{X+2*j+1}]")
    a("v_add_f32 v60, v60, v61")
    red32(a, "v_add_f32", 60, 61)
    a("v_cvt_pk_bf16_f32 v60, v60, v60")
    a("v_ashrrev_i32 v61, 31, v60", "v_or_b32 v61, 0x80000000, v61", "v_xor_b32 v60, v60, v61", "v_and_b32 v60, 0xffff0000, v60")
    a("v_sub_u32 v62, 0x87ff, v112", "v_or_b32 v60, v60, v62", "v_lshl_add_u32 v61, v116, 1, v113", "v_lshlrev_b32 v61, 2, v61")
    a("s_mov_b32 exec_lo, 1", "s_mov_b32 exec_hi, 1")
    a(f"ds_write_b32 v61, v60 offset:{C_KEY}")
    a("s_mov_b64 exec, 1")
    a(f"ds_add_rtn_u32 v62, v{VZ}, v{VONE} offset:{FL_KCNT}")
    a("s_mov_b64 exec, 3")
    a("v_lshlrev_b32 v61, 4, v114", f"s_lshl_b32 s{T0_}, s{S_B2}, 5")
    a(f"ds_read_b128 v[64:67], v61 offset:{C_KEY}")
    a("s_waitcnt lgkmcnt(1)")
    a(f"v_readfirstlane_b32 s{T1_}, v62")
    a(f"s_cmp_lg_u32 s{T1_}, 3", "s_cbranch_scc1 KS_NOKEY")
    a("s_waitcnt lgkmcnt(0)")
    a(f"buffer_store_dwordx4 v[64:67], v61, s[{R3}:{R3+3}], s{T0_} offen sc1")
    a("KS_NOKEY:")
    a("s_mov_b64 exec, -1")
    a(f"v_cvt_pk_bf16_f32 v58, v{X+16}, v{X+17}")
    a("ds_write_b32 v108, v18", "ds_write_b32 v108, v58 offset:256", "ds_read_b128 v[64:67], v109")
    a(f"buffer_store_dwordx4 v[10:13], v115, s[{R2_}:{R2_+3}], 0 offen sc1")
    a(f"buffer_store_dwordx4 v[14:17], v115, s[{R2_}:{R2_+3}], 0 offen offset:512 sc1")
    for j in range(8):
        a(f"v_cvt_pk_bf16_f32 v{50+j}, v{X+2*j}, v{X+2*j+1}")
    a("s_mov_b64 exec, 0xffff")
    a("s_waitcnt lgkmcnt(0)")
    a(f"buffer_store_dwordx4 v[64:67], v111, s[{R2_}:{R2_+3}], 0 offen offset:1024 sc1")
    a("s_mov_b64 exec, 0xffff0000")
    a(f"buffer_store_dwordx4 v[64:67], v111, s[{R1}:{R1+3}], 0 offen offset:1024 sc1")
    a("s_mov_b64 exec, -1")
    a(f"buffer_store_dwordx4 v[50:53], v115, s[{R1}:{R1+3}], 0 offen sc1")
    a(f"buffer_store_dwordx4 v[54:57], v115, s[{R1}:{R1+3}], 0 offen offset:512 sc1")
    stamp2(a, 5)
    a(f"s_cmp_lg_u32 s{T1_}, 3", "s_cbranch_scc1 KS_NOKEY2")
    a("s_waitcnt vmcnt(6)")
    a(f"ds_write_b32 v{VZ}, v{VONE} offset:{FL_KACK}")
    a("KS_NOKEY2:")
    a("s_waitcnt vmcnt(0)")
    a("s_mov_b64 exec, 1")
    a(f"ds_add_rtn_u32 v62, v{VZ}, v{VONE} offset:{FL_F2CNT}")
    a("s_waitcnt lgkmcnt(0)")
    a("v_cmp_eq_u32 vcc, 3, v62", "s_and_b64 exec, exec, vcc", "s_cbranch_execz KS_NOF2")
    a(f"s_lshl_b32 s{T0_}, s2, 4", f"s_add_u32 s{T0_}, s{T0_}, 8192")
    a(f"buffer_store_dword v{VONE}, v{VZ}, s[{R3}:{R3+3}], s{T0_} offen sc1")
    a("KS_NOF2:")
    a("s_mov_b64 exec, -1")
    a("s_setprio 0")
    a(f"s_cmp_lt_u32 s{S_I}, 18", "s_cbranch_scc1 KS_B")
    a("s_waitcnt lgkmcnt(0)")
    endwave(a)
    a("KS_T:")
    a("s_setprio 0")
    a(f"s_cmp_ge_u32 s{S_WAVE}, 10", "s_cbranch_scc1 KS_P")
    a("v_and_b32 v6, 1, v1", "v_subrev_u32 v6, 1, v6")
    a("v_and_b32 v7, 7, v1", "v_lshlrev_b32 v7, 2, v7")
    srd(a, R3, P_WS, 12288, WS_KEYS)
    a(f"s_cmp_eq_u32 s{S_WAVE}, 9", "s_cbranch_scc1 KS_W9")
    a(f"s_cmp_eq_u32 s{S_WAVE}, 8", "s_cbranch_scc1 KS_L2W")
    a(f"s_sub_u32 s{T1_}, s{S_WAVE}, 4", f"s_lshl_b32 s{T0_}, s{T1_}, 10", f"v_lshl_add_u32 v33, v1, 4, s{T0_}", f"s_movk_i32 s{T0_}, 4096")
    a(f"s_lshl_b32 s{T1_}, s{T1_}, 7", "v_lshlrev_b32 v32, 4, v2", "v_lshl_add_u32 v32, v3, 5, v32", f"v_add_u32 v32, s{T1_}, v32")
    lds_wait(a, FL_KACK, 8, "nz", sleep=1)
    a("s_setprio 2")
    if ENV('KDELAY', 20): a(f"s_sleep {ENV('KDELAY', 20)}")
    stamp2(a, 1)
    zpoll(a, [f"buffer_load_dwordx4 v[8:11], v33, s[{R3}:{R3+3}], 0 offen sc1",
           f"buffer_load_dwordx4 v[12:15], v33, s[{R3}:{R3+3}], s{T0_} offen sc1"], list(range(8, 16)), ENV("KSLEEP", 4))
    a(f"ds_write_b32 v{VZ}, v{VONE} offset:{FL_KSEEN}")
    stamp2(a, 2)
    pool = Pool(range(16, 28))
    x = [8, 9, 10, 11]; y = [12, 13, 14, 15]
    for (i, j) in ((0, 1), (2, 3), (0, 2), (1, 3), (1, 2)):
        ce_inlane(a, x, i, j, pool); ce_inlane(a, y, i, j, pool)
    clean8(a, x, pool, 6, rev=True); clean8(a, y, pool, 6, rev=True)
    merge_pair(a, x, y, pool); clean8(a, x, pool, 6)
    for M in MIRRORS:
        merge_mirror(a, x, pool, M); clean8(a, x, pool, 6)
    for i in range(4): a(f"v_mov_b32 v{28+i}, v{x[i]}")
    a("s_mov_b32 exec_lo, 0x00030003", "s_mov_b32 exec_hi, 0x00030003")
    a(f"ds_write_b128 v32, v[28:31] offset:{C_CAND}")
    a("s_mov_b64 exec, -1")
    stamp2(a, 3)
    a("s_setprio 0")
    a("s_branch KS_B")
    a("KS_L2W:")
    srd(a, R2_, P_WS, XBYTES, WS_X2)
    a(f"s_mov_b32 s{T0_}, 0xcccccccc", f"s_mov_b32 s{T1_}, 0xcccccccc", f"s_mov_b32 s{T2_}, 0xf0f0f0f0", f"s_mov_b32 s{T3_}, 0xf0f0f0f0", f"s_movk_i32 s{T4_}, 1152")
    a("v_lshrrev_b32 v34, 3, v1", "v_lshlrev_b32 v34, 4, v34", "v_lshlrev_b32 v33, 4, v2")
    lds_wait(a, FL_KACK, 8, "nz", sleep=1)
    a("s_setprio 2")
    a("KS_L2POLL:")
    a(f"ds_read_b128 v[8:11], v33 offset:{C_CAND}")
    a(f"ds_read_b128 v[12:15], v33 offset:{C_CAND + 256}")
    guard(a)
    a("s_waitcnt lgkmcnt(0)")
    a("v_min3_u32 v16, v8, v9, v10", "v_min3_u32 v17, v11, v12, v13", "v_min3_u32 v16, v16, v14, v15", "v_min_u32 v16, v16, v17", "v_cmp_eq_u32 vcc, 0, v16")
    a("s_cbranch_vccnz KS_L2POLL")
    stamp2(a, 1)
    pool = Pool(range(16, 28))
    x = [8, 9, 10, 11]; y = [12, 13, 14, 15]
    merge_pair(a, x, y, pool); clean8(a, x, pool, 6)
    for li, M in enumerate(MIRRORS):
        merge_mirror(a, x, pool, M)
        if li < 2: clean8(a, x, pool, 6)
    a(f"ds_read_b32 v35, v{VZ} offset:{FL_ROWSOK}")
    a(f"v_cndmask_b32 v30, v{x[0]}, v{x[1]}, s[{T0_}:{T1_}]", f"v_cndmask_b32 v31, v{x[2]}, v{x[3]}, s[{T0_}:{T1_}]", f"v_cndmask_b32 v30, v30, v31, s[{T2_}:{T3_}]")
    a("v_mov_b32_dpp v30, v30 row_shr:8 row_mask:0xf bank_mask:0xc")
    a("v_and_b32 v31, 0x7ff, v30", "v_sub_u32 v31, 2047, v31", f"v_mad_u32_u24 v31, v31, s{T4_}, v34")
    a("s_waitcnt lgkmcnt(0)")
    a("v_cmp_ne_u32 vcc, 0, v35", "s_cbranch_vccnz KS_RW1")
    lds_wait(a, FL_ROWSOK, 35, "nz")
    a("KS_RW1:")
    for k in range(9):
        a(f"s_mov_b32 m0, {C_XR + 896*k}")
        a(f"buffer_load_dwordx4 v31, s[{R2_}:{R2_+3}], 0 offen offset:{128*k} sc1 lds")
    a(f"ds_write_b32 v7, v30 offset:{C_SEL}")
    stamp2(a, 2)
    a("s_waitcnt vmcnt(0)")
    a(f"ds_write_b32 v{VZ}, v{VONE} offset:{FL_XRDY}")
    stamp2(a, 3)
    a("s_setprio 0")
    a("s_branch KS_B")
    a("KS_W9:")
    a("v_lshlrev_b32 v33, 4, v1", f"s_movk_i32 s{T0_}, 0x2000")
    srd(a, R2_, P_WS, XBYTES, WS_X2)
    srd(a, R0, P_WS, 0x240000, WS_ZB1)
    srd(a, R1, P_X, XBYTES)
    a("v_bfe_u32 v43, v1, 2, 3", f"s_lshl_b32 s{T1_}, s{S_BLK}, 3", f"v_add_u32 v43, s{T1_}, v43")
    a("v_bfe_u32 v40, v43, 4, 1", "v_and_b32 v41, 3, v1", "v_lshl_add_u32 v40, v40, 2, v41", "v_lshlrev_b32 v40, 2, v40")
    a("v_lshrrev_b32 v41, 5, v43", "v_lshlrev_b32 v41, 4, v41", "v_and_b32 v42, 15, v43", "v_add_u32 v41, v41, v42")
    lds_wait(a, FL_KSEEN, 8, "nz", sleep=1)
    if ENV('F2DELAY', 8): a(f"s_sleep {ENV('F2DELAY', 8)}")
    a("s_setprio 2")
    zpoll(a, [f"buffer_load_dword v{8+k}, v33, s[{R3}:{R3+3}], s{T0_} offen offset:{1024*k} sc1" for k in range(4)], list(range(8, 12)), ENV("F2SLEEP", 4))
    a(f"ds_write_b32 v{VZ}, v{VONE} offset:{FL_ROWSOK}")
    stamp2(a, 1)
    a("s_setprio 0")
    lds_wait(a, C_SEL, 12, "nz", addr=7, sleep=1)
    stamp2(a, 2)
    a(f"ds_read_b32 v19, v40 offset:{C_SEL}")
    a("s_waitcnt lgkmcnt(0)")
    a("v_and_b32 v14, 0x7ff, v19", "v_sub_u32 v14, 2047, v14")
    a("v_mul_u32_u24 v23, 1152, v14", "v_lshl_add_u32 v23, v41, 1, v23")
    a(f"buffer_load_ushort v20, v23, s[{R2_}:{R2_+3}], 0 offen sc1")
    a(f"buffer_load_ushort v17, v23, s[{R1}:{R1+3}], 0 offen")
    a("v_lshrrev_b32 v15, 9, v14", "v_bfe_u32 v16, v14, 6, 2", "v_lshl_add_u32 v15, v15, 2, v16", "v_bfe_u32 v16, v14, 2, 2", "v_lshl_add_u32 v15, v15, 2, v16")
    a("v_bfe_u32 v16, v14, 4, 1")
    a("v_bfe_u32 v24, v14, 8, 1", "v_and_b32 v25, 3, v14", "v_lshl_add_u32 v24, v24, 2, v25", "v_lshlrev_b32 v24, 1, v24")
    a("v_bfe_u32 v25, v14, 5, 1", "v_lshl_add_u32 v24, v25, 5, v24")
    a("v_lshl_add_u32 v25, v15, 1, v16", "v_lshl_add_u32 v25, v25, 14, v24")
    a("v_lshrrev_b32 v26, 1, v41", "v_lshl_add_u32 v25, v26, 6, v25", "v_xor_b32 v26, v41, v16", "v_not_b32 v26, v26", "v_and_b32 v26, 1, v26", "v_lshl_add_u32 v25, v26, 4, v25")
    a("v_lshl_add_u32 v26, v15, 12, v24", "v_lshl_add_u32 v26, v16, 4, v26", "v_lshl_add_u32 v26, v41, 6, v26", f"v_add_u32 v26, {0x200000 - 512*64}, v26")
    a("v_cmp_gt_u32 vcc, 0x200, v41", "v_cndmask_b32 v25, v26, v25, vcc")
    a(f"buffer_load_ushort v18, v25, s[{R0}:{R0+3}], 0 offen sc1")
    srd(a, R2_, P_WS, 64, WS_IDX)
    a("v_ashrrev_i32 v22, 31, v19", "v_not_b32 v22, v22", "v_or_b32 v22, 0x80000000, v22", "v_xor_b32 v22, v19, v22", "v_and_b32 v22, 0xffff0000, v22")
    a(f"v_mul_f32 v22, {f32(-LOG2E)}, v22", "v_exp_f32 v22, v22", "v_add_f32 v22, 1.0, v22", "v_rcp_f32 v22, v22")
    a("v_cvt_pk_bf16_f32 v22, v22, v22", "v_lshlrev_b32 v22, 16, v22")
    a("v_and_b32 v14, 31, v1", "v_lshlrev_b32 v14, 4, v14")
    a("s_waitcnt vmcnt(0)")
    a("v_lshlrev_b32 v17, 16, v17", "v_lshlrev_b32 v18, 16, v18", "v_add_f32 v17, v17, v18", "v_cvt_pk_bf16_f32 v17, v17, v17")
    a("v_and_b32 v21, 0xffff0000, v17", "v_lshlrev_b32 v20, 16, v20")
    a(f"ds_write_b128 v14, v[20:23] offset:{C_SIDE}")
    a("s_cmp_lg_u32 s2, 0", "s_cbranch_scc1 KS_W9E")
    a(f"buffer_store_dword v12, v7, s[{R2_}:{R2_+3}], 0 offen")
    a("KS_W9E:")
    a("s_waitcnt lgkmcnt(0)")
    stamp2(a, 3)
    endwave(a)
    a("KS_B:")
    srd(a, R0, P_WS, PART_BYTES, WS_PART)
    a("v_bfe_u32 v16, v1, 2, 2", "v_lshl_add_u32 v16, v3, 3, v16", "v_mul_u32_u24 v16, 1152, v16", "v_and_b32 v17, 3, v1", "v_lshl_add_u32 v16, v17, 3, v16")
    a(f"s_lshl_b32 s{T0_}, s{S_WAVE}, 7", f"s_add_u32 s{T0_}, s{T0_}, {C_DOWN}", f"v_add_u32 v16, s{T0_}, v16")
    if PTAG: a("v_lshlrev_b32 v18, 2, v17", f"ds_read_b32 v24, v18 offset:{FL_NONCE}", f"s_movk_i32 s{T2_}, 0xff")
    lds_wait(a, FL_DOWN, 17, "b4")
    if PTAG:
        for d in range(1, 4): a(f"v_lshrrev_b32 v{24+d}, {8*d}, v24")
    WTD = 48
    for jt in range(4):
        a(f"ds_read_b64_tr_b16 v[{WTD+4*jt}:{WTD+4*jt+1}], v16 offset:{32*jt}")
        a(f"ds_read_b64_tr_b16 v[{WTD+4*jt+2}:{WTD+4*jt+3}], v16 offset:{32*jt + 4608}")
    a("v_and_b32 v16, 7, v2", "v_lshlrev_b32 v16, 6, v16", "v_lshl_add_u32 v16, v3, 4, v16")
    a(f"s_mul_i32 s{T0_}, s{S_BLK}, 18432", f"s_lshl_b32 s{T1_}, s{S_WAVE}, 11", f"s_add_u32 s{T0_}, s{T0_}, s{T1_}")
    a("v_lshlrev_b32 v17, 4, v1")
    a("s_waitcnt lgkmcnt(0)")
    a("s_barrier")
    a("s_barrier")
    a(f"ds_read_b128 v[20:23], v16 offset:{C_ACT}")
    a("s_waitcnt lgkmcnt(0)")
    for j in range(4):
        a(f"v_mfma_f32_16x16x32_bf16 v[{32+4*j}:{35+4*j}], v[20:23], v[{WTD+4*j}:{WTD+4*j+3}], 0")
    for j in (0, 2):
        for r in range(4): a(f"v_permlane32_swap_b32 v{32+4*j+r}, v{36+4*j+r}")
        for r in range(4): a(f"v_bfi_b32 v{32+4*j+r}, s{T2_}, v{24+r}, v{32+4*j+r}" if PTAG else f"v_min_u32 v{32+4*j+r}, -2, v{32+4*j+r}")
        a(f"buffer_store_dwordx4 v[{32+4*j}:{35+4*j}], v17, s[{R0}:{R0+3}], s{T0_} offen offset:{512*j} sc1")
    stamp2(a, 8)
    a("s_waitcnt vmcnt(0)", "s_barrier")
    endwave(a)
    a("KS_G0:")
    a(f"ds_write_b8 v15, v{VONE} offset:{FL_G+4}")
    a("s_setprio 0")
    a("KS_G:")
    a(f"s_mov_b32 s{SP0}, 0x05040100", f"s_mov_b32 s{SP1}, 0x07060302")
    a("s_waitcnt vmcnt(0)")
    stamp(a, 5)
    g_addr_setup(a, 46)
    SG = eval(os.environ.get("SG", "[0,0,0,0]"))
    if any(SG):
        a(f"s_mul_i32 s{T0_}, s{S_ROLE}, {32*9216}", f"s_lshl_b32 s{T1_}, s{S_BLK}, 6", f"s_add_u32 s{T0_}, s{T0_}, s{T1_}")
        a(f"s_add_u32 s{R0}, s{P_GATE}, s{T0_}", f"s_addc_u32 s{R0+1}, s{P_GATE+1}, 0", f"s_add_u32 s{R0+2}, s{P_UP}, s{T0_}", f"s_addc_u32 s{R0+3}, s{P_UP+1}, 0")
        cnt = sum(SG[g] << (8 * g) for g in range(4))
        a(f"s_lshl_b32 s{T1_}, s{S_G}, 3", f"s_lshr_b32 s{T1_}, {hex(cnt)}, s{T1_}", f"s_and_b32 s{T1_}, s{T1_}, 0xff", "s_cbranch_scc0 KS_SGE")
        a("KS_SGL:")
        for r in range(8):
            a(f"s_load_dword s{R1}, s[{R0}:{R0+1}], {r*9216}", f"s_load_dword s{R1+1}, s[{R0+2}:{R0+3}], {r*9216}")
        a(f"s_add_u32 s{R0}, s{R0}, {8*9216}", f"s_addc_u32 s{R0+1}, s{R0+1}, 0", f"s_add_u32 s{R0+2}, s{R0+2}, {8*9216}", f"s_addc_u32 s{R0+3}, s{R0+3}, 0")
        a(f"s_sub_u32 s{T1_}, s{T1_}, 1", f"s_cmp_lg_u32 s{T1_}, 0", "s_cbranch_scc1 KS_SGL")
        a("KS_SGE:")
        a("s_waitcnt lgkmcnt(0)")
        stamp(a, 8)
    TR = {1: (FL_PARAM, "nz"), 2: (FL_UF, "b4"), 3: (FL_ZF, "b4"), 4: (FL_KACK, "nz"), 5: (FL_KSEEN, "nz"), 6: (FL_ZDONE + 4, "b4")}
    for t in sorted(set(GT)):
        l = newlabel("GT")
        mask = sum(1 << g for g in range(4) if GT[g] == t)
        if mask != 15: a(f"s_lshr_b32 s{T0_}, {mask}, s{S_G}", f"s_bitcmp1_b32 s{T0_}, 0", f"s_cbranch_scc0 {l}")
        lds_wait(a, TR[t][0], 10, TR[t][1], sleep=2)
        if t >= 3: a("s_setprio 1")
        a(f"{l}:")
    g_loads(a, 46, range(4))
    stamp(a, 6)
    def transpose(src, dst):
        for j in range(4):
            for p in range(4):
                lo = src + 2 * (2 * p) + (j >> 1); hi = src + 2 * (2 * p + 1) + (j >> 1)
                a(f"v_perm_b32 v{dst+4*j+p}, v{hi}, v{lo}, s{SP0 + (j & 1)}")
    W = GW
    a(f"s_bitcmp1_b32 s{S_G}, 0", "s_cbranch_scc1 KS_G4")
    g_loads(a, 46, [4])
    a("KS_G4:")
    a(f"v_mov_b32 v6, s{S_G}", f"ds_write_b8 v6, v{VONE} offset:{FL_GISS}")
    a("s_waitcnt vmcnt(0)")
    stamp(a, 7)
    for ks in range(5): transpose(W + 16 * ks, W + 16 * ks - 16)
    GACC = 112
    a(f"s_lshl_b32 s{T0_}, s{S_ROLE}, 9", f"s_add_u32 s{T0_}, s{T0_}, {C_XR}", "v_and_b32 v6, 7, v2", f"v_lshl_add_u32 v7, v6, 4, s{T0_}", "v_lshl_add_u32 v7, v3, 7, v7")
    a(f"s_lshl_b32 s{T0_}, s{S_G}, 6", f"v_add_u32 v11, s{T0_}, v1")
    a("v_lshrrev_b32 v8, 5, v11", "v_and_b32 v9, 31, v11")
    a("v_and_b32 v10, 3, v9", "v_lshlrev_b32 v10, 9, v10")
    a("v_lshrrev_b32 v9, 2, v9", "v_lshl_add_u32 v10, v9, 4, v10")
    a("v_lshrrev_b32 v9, 2, v8", "v_lshl_add_u32 v10, v9, 8, v10")
    a("v_and_b32 v9, 3, v8", "v_lshl_add_u32 v10, v9, 2, v10")
    a("v_lshlrev_b32 v11, 1, v11")
    a(f"s_lshl_b32 s{T0_}, s{S_G}, 11", f"v_lshl_add_u32 v9, v1, 4, s{T0_}")
    lds_wait(a, C_SEL, 12, "nz", sleep=2)
    a("s_setprio 2")
    lds_wait(a, FL_XRDY, 12, "nz")
    stamp2(a, 1)
    for ks in range(5):
        a(f"ds_read_b128 v[{12+4*ks}:{15+4*ks}], v7 offset:{512*ks}")
    for ks in range(5):
        if ks == 4: a(f"s_bitcmp1_b32 s{S_G}, 0", "s_cbranch_scc1 KS_G5")
        a(f"s_waitcnt lgkmcnt({4-ks})")
        for j in range(4):
            c = "0" if ks == 0 else f"v[{GACC+4*j}:{GACC+4*j+3}]"
            a(f"v_mfma_f32_16x16x32_bf16 v[{GACC+4*j}:{GACC+4*j+3}], v[{12+4*ks}:{15+4*ks}], v[{32+16*ks+4*j}:{35+16*ks+4*j}], {c}")
    a("KS_G5:")
    a("s_mov_b32 exec_lo, -1", "s_mov_b32 exec_hi, 0")
    a.flush(6)
    for j in range(4):
        a(f"ds_write_b128 v9, v[{GACC+4*j}:{GACC+4*j+3}] offset:{C_RED + 512*j}")
    a("s_mov_b64 exec, -1")
    a("s_waitcnt lgkmcnt(0)", "s_barrier")
    stamp2(a, 2)
    for w in range(4):
        a(f"ds_read_b32 v{32+2*w}, v10 offset:{C_RED + 2048*w}")
        a(f"ds_read_b32 v{33+2*w}, v10 offset:{C_RED + 2048*w + 128}")
    a("s_waitcnt lgkmcnt(4)")
    a("v_pk_add_f32 v[32:33], v[32:33], v[34:35]")
    a("s_waitcnt lgkmcnt(0)")
    a("v_pk_add_f32 v[36:37], v[36:37], v[38:39]")
    a("v_pk_add_f32 v[32:33], v[32:33], v[36:37]")
    a("v_cvt_pk_bf16_f32 v34, v32, v33")
    unpack(a, 32, 34)
    a(f"v_mul_f32 v34, {f32(-LOG2E)}, v32", "v_exp_f32 v34, v34", "v_add_f32 v34, 1.0, v34", "v_rcp_f32 v34, v34", "v_mul_f32 v34, v32, v34")
    a("v_cvt_pk_bf16_f32 v34, v34, v34", "v_lshlrev_b32 v34, 16, v34")
    a("v_mul_f32 v34, v34, v33", "v_cvt_pk_bf16_f32 v34, v34, v34")
    a(f"ds_write_b16 v11, v34 offset:{C_ACT}")
    a("s_waitcnt lgkmcnt(0)")
    a("s_barrier")
    a("s_branch KS_P2")
    a("KS_P:")
    srd(a, R1, P_DOWN, F * D * 2)
    a(f"s_sub_u32 s{T2_}, s{S_WAVE}, 10", "v_lshlrev_b32 v6, 4, v1", f"s_mul_i32 s{T0_}, s{S_BLK}, 36864", f"s_mul_i32 s{T1_}, s{T2_}, 18432", f"s_add_u32 s{T0_}, s{T0_}, s{T1_}", f"s_add_u32 s{T1_}, s{T1_}, {C_DOWN}")
    a(f"s_lshl_b32 s{T2_}, s{T2_}, 1", f"v_mov_b32 v7, s{T2_}", f"v_mov_b32 v8, s{S_ONES}")
    TR[7] = (FL_GISS, "b4")
    if DT: lds_wait(a, TR[DT][0], 10, TR[DT][1], sleep=2)
    a("s_setprio 1")
    stamp2(a, 1)
    for k in range(18):
        if k % 4 == 0:
            a(f"s_add_u32 m0, s{T1_}, {1024*k}")
            if k: a(f"s_add_u32 s{T0_}, s{T0_}, 4096")
        a(f"buffer_load_dwordx4 v6, s[{R1}:{R1+3}], s{T0_} offen offset:{1024*(k&3)} lds")
    a("s_waitcnt vmcnt(0)")
    stamp2(a, 2)
    a(f"ds_write_b16 v7, v8 offset:{FL_DOWN}")
    a("s_setprio 0")
    a("s_waitcnt lgkmcnt(0)")
    a("s_barrier")
    a("s_barrier")
    a("s_setprio 2")
    a("KS_P2:")
    a(f"s_sub_u32 s{S_G}, s{S_WAVE}, 10")
    srd(a, R0, P_WS, PART_BYTES, WS_PART)
    srd(a, R1, P_OUT, XBYTES)
    a("v_lshrrev_b32 v8, 3, v1", "v_mul_u32_u24 v8, 18432, v8", "v_and_b32 v9, 7, v1", "v_lshl_add_u32 v8, v9, 4, v8")
    a(f"s_mul_i32 s{T0_}, s{S_G}, {24*18432}", f"s_lshl_b32 s{T1_}, s{S_BLK}, 7", f"s_add_u32 s{T0_}, s{T0_}, s{T1_}", f"s_add_u32 s{T1_}, s{T0_}, {8*18432}", f"s_add_u32 s{T2_}, s{T0_}, {16*18432}")
    a(f"s_lshl_b32 s{T3_}, s{S_G}, 7", f"v_lshl_add_u32 v6, v9, 4, s{T3_}", "v_lshl_add_u32 v6, v3, 2, v6")
    a(f"v_lshlrev_b32 v12, 2, v1", f"v_add_u32 v12, {C_RED2}, v12", "v_lshlrev_b32 v13, 4, v1")
    if PTAG:
        a("v_and_b32 v14, 12, v12", f"ds_read_b32 v24, v14 offset:{FL_NONCE}", "s_waitcnt lgkmcnt(0)")
        for d in range(1, 4): a(f"v_lshrrev_b32 v{24+d}, {8*d}, v24")
    a("s_barrier")
    stamp2(a, 3)
    if PTAG:
        lp = newlabel("PP"); l1 = newlabel("PPE")
        a(f"s_branch {l1}", f"{lp}:", "s_sleep 1", f"{l1}:")
        for k in range(3): a(f"buffer_load_dwordx4 v[{32+4*k}:{35+4*k}], v8, s[{R0}:{R0+3}], s{T0_+k} offen sc1")
        guard(a)
        for k in range(3):
            a(f"s_waitcnt vmcnt({2-k})")
            for d in range(4):
                t = 44 + (d & 1)
                a(f"v_xor_b32 v{t}, v{24+d}, v{32+d}" if k == 0 and d < 2 else f"v_bitop3_b32 v{t}, v{t}, v{24+d}, v{32+4*k+d} bitop3:0xf6")
        a("v_or_b32 v44, v44, v45", "v_and_b32 v44, 0xff, v44", "v_cmp_ne_u32 vcc, 0, v44", f"s_cbranch_vccnz {lp}")
    else: zpoll(a, [f"buffer_load_dwordx4 v[{32+4*k}:{35+4*k}], v8, s[{R0}:{R0+3}], s{T0_+k} offen sc1" for k in range(3)], list(range(32, 44)), 1)
    stamp2(a, 4)
    a("v_pk_add_f32 v[32:33], v[32:33], v[36:37]", "v_pk_add_f32 v[34:35], v[34:35], v[38:39]")
    a("v_pk_add_f32 v[32:33], v[32:33], v[40:41]", "v_pk_add_f32 v[34:35], v[34:35], v[42:43]")
    for r in range(4): a(f"v_add_f32_dpp v{32+r}, v{32+r}, v{32+r} row_ror:8 {DPPM}")
    a("v_permlane16_swap_b32 v32, v33", "v_permlane16_swap_b32 v34, v35")
    a("v_add_f32 v32, v32, v33", "v_add_f32 v34, v34, v35")
    a("v_permlane32_swap_b32 v32, v34")
    a("v_add_f32 v32, v32, v34")
    a(f"ds_write_b32 v6, v32 offset:{C_RED2}")
    a("s_waitcnt lgkmcnt(0)", "s_barrier")
    a(f"s_cmp_lg_u32 s{S_G}, 0", "s_cbranch_scc1 KS_PEND")
    a("s_mov_b32 exec_lo, -1", "s_mov_b32 exec_hi, 0")
    for g in range(3):
        a(f"ds_read2_b32 v[{32+2*g}:{33+2*g}], v12 offset0:{64*g} offset1:{64*g + 32}")
    a(f"ds_read_b128 v[40:43], v13 offset:{C_SIDE}")
    a("s_waitcnt lgkmcnt(0)")
    a("v_pk_add_f32 v[32:33], v[32:33], v[34:35]", "v_pk_add_f32 v[32:33], v[32:33], v[36:37]", "v_add_f32 v8, v32, v33")
    a("v_cvt_pk_bf16_f32 v8, v8, v8", "v_lshlrev_b32 v8, 16, v8")
    a("v_mul_f32 v8, v8, v42", "v_cvt_pk_bf16_f32 v8, v8, v8", "v_lshlrev_b32 v8, 16, v8")
    a("v_add_f32 v8, v8, v40", "v_cvt_pk_bf16_f32 v8, v8, v8", "v_lshlrev_b32 v8, 16, v8")
    a("v_add_f32 v8, v8, v41", "v_cvt_pk_bf16_f32 v8, v8, v8")
    a(f"buffer_store_short v8, v43, s[{R1}:{R1+3}], 0 offen")
    a("KS_PEND:")
    stamp_end(a)
    a("KS_ABORT:")
    a("KS_END:")
    a("s_endpgm")
    return f""".amdhsa_kernel {label}
  .amdhsa_next_free_vgpr 128
  .amdhsa_next_free_sgpr {NSGPR}
  .amdhsa_accum_offset 128
  .amdhsa_group_segment_fixed_size 0
  .amdhsa_kernarg_size 136
  .amdhsa_user_sgpr_count 2
  .amdhsa_user_sgpr_kernarg_segment_ptr 1
  .amdhsa_system_sgpr_workgroup_id_x 1
  .amdhsa_float_denorm_mode_32 3
.end_amdhsa_kernel
"""

def main():
    hdr = open(f"/code/{NAME}.s.ref").read().split("; Override launch geometry")[0]
    out = hdr
    out += f"; @launch grid=(256,1,1) block=(1024,1,1) lds={LDS_BYTES}\n"
    out += '.amdgcn_target "amdgcn-amd-amdhsa--gfx950"\n.text\n'
    a = Asm()
    d = gen(a)
    out += a.text()
    out += '.section .rodata,"a"\n.p2align 6\n' + d
    path = sys.argv[1] if len(sys.argv) > 1 else "ks.s"
    open(path, "w").write(out)
    print("wrote", path, len(out))

if __name__ == "__main__":
    main()
```

```python
import sys, struct, math, os
sys.path.insert(0, "gen")
from asmlib import Asm

NAME = "sequential_preLN__ssm_conv_s4__moe_arch_mod__prompt"
L, D, N, F = 2048, 576, 128, 4608
XBYTES = L * D * 2
WS_UT = 0x000000
WS_X2 = 0x300000
WS_ZB1 = 0x600000
WS_ZB2 = 0x800000
WS_KEYS = 0x840000
WS_PART = 0x850000
WS_CLR, CLR_WG = 0x600000, 18560
CLRP_WG = 23744
WS_FLAG1 = 0xB00000
TAGM = 0x00070007
WS_IDX = 0xB10000
WS_KT = 0xB20000
WS_DBG = 0xC00000
WS_STAMP = 0x8000000
PART_BYTES = 144 * 4608 * 4
C_FL, C_CAND, C_SEL, C_KEY, C_PAR, C_ACT, C_SIDE, C_RED2 = 0, 256, 768, 800, 832, 1024, 1536, 2048
C_U, U_SIZE = 3072, 4672
C_LNB = C_U + 3 * U_SIZE
C_XR = C_LNB
C_RED = C_LNB + 9280
G_BASE, G_SIZE = 35840, 36672
C_STG = G_BASE + 2 * G_SIZE + 36864
LDS_BYTES = C_STG + 8192
FL_LN1, FL_LNACK, FL_KCNT, FL_UF, FL_ZF, FL_KACK, FL_ROWSOK, FL_XRDY, FL_PARAM, FL_DOWN, FL_ZDONE = 0, 8, 12, 16, 20, 24, 28, 32, 36, 40, 48
FL_G = 64
FL_S6 = 160
FL_F2CNT, FL_INIT, FL_CLROK, FL_GISS, FL_KSEEN, FL_UTOK, FL_PRE, FL_NONCE = 176, 180, 188, 192, 196, 200, 208, 224
KG_ROW = 544
KG_T = [0, 16 * KG_ROW, 32 * KG_ROW, 41 * KG_ROW]
R_WS3 = 0
R_WS5 = R_WS3 + 193 * 16
R_WS7 = R_WS5 + 193 * 16
R_WS9 = R_WS7 + 128 * 16
R_RED = 10752
R2 = 31232
T_TAB = R2
T_DRE = R2 + 1296
T_DRO = T_DRE + 1280 + 64
T_G3 = T_DRO + 1280
T_G5 = T_G3 + 256
T_G7E = T_G5 + 256
T_G7O = T_G7E + 192
T_G9E = T_G7O + 192
T_G9O = T_G9E + 192
assert T_G9O + 192 <= G_SIZE and R_WS9 + 129 * 16 <= R_RED and R_RED + 13 * 1024 <= R2 and 57 * KG_ROW <= R2
IDX_ZERO, IDX_DUMMY = 641, 642
C_DOWN = G_BASE + 2 * G_SIZE

def f32(x): return "0x%08x" % struct.unpack("<I", struct.pack("<f", x))[0]
def f32v(x): return struct.unpack("<f", struct.pack("<f", x))[0]
LOG2E = math.log2(math.e)
LOG2E_HI = f32v(LOG2E); LOG2E_LO = LOG2E - LOG2E_HI
INV2PI = 1.0 / (2 * math.pi)
INV2PI_HI = f32v(INV2PI); INV2PI_LO = INV2PI - INV2PI_HI
DPPM = "row_mask:0xf bank_mask:0xf"
ENV = lambda k, d: int(os.environ.get(k, str(d)))
STAMP = ENV("STAMP", 0)
DBG = ENV("DBG", 0)
GUARD = 1 << 19
XP = ENV("XP", 0)
KOFF = ENV("KOFF", 1)
PTAG = ENV("PTAG", 1)
MOD = lambda k, d="sc1": os.environ.get(k, d).replace("_", " ")

P_X, P_ARE, P_LDT, P_DSK, P_WR, P_GATE, P_UP, P_DOWN, P_OUT, P_DBG, P_WS = 4, 6, 18, 20, 24, 26, 28, 30, 32, 34, 36
S_WAVE, S_GUARD, S_XC, S_I = 38, 39, 40, 41
R0, R1, R2_, R3, R4 = 64, 68, 72, 76, 80
S_ONES, S_GB, S_ROLE, S_G, S_CH, S_BLK, S_B2 = 84, 85, 86, 87, 88, 89, 90
T0_, T1_, T2_, T3_, T4_, T5_ = 92, 93, 94, 95, 96, 97
SP0, SP1 = 98, 99
NSGPR = 100

def srd(a, d, base, nbytes, off=0):
    if off:
        a(f"s_add_u32 s{d}, s{base}, {hex(off)}", f"s_addc_u32 s{d+1}, s{base+1}, 0")
    else:
        a(f"s_mov_b32 s{d}, s{base}", f"s_mov_b32 s{d+1}, s{base+1}")
    a(f"s_mov_b32 s{d+2}, {hex(nbytes)}", f"s_mov_b32 s{d+3}, 0x20000")

def red16(a, op, v):
    for r in (8, 4, 2, 1):
        a(f"{op}_dpp v{v}, v{v}, v{v} row_ror:{r} {DPPM}")
def red32(a, op, v, t):
    red16(a, op, v)
    a(f"v_mov_b32 v{t}, v{v}", f"v_permlane16_swap_b32 v{v}, v{t}", f"{op} v{v}, v{v}, v{t}")
def red64x2(a, op1, v1, t1, op2, v2, t2):
    for r in (8, 4, 2, 1):
        a(f"{op1}_dpp v{v1}, v{v1}, v{v1} row_ror:{r} {DPPM}", f"{op2}_dpp v{v2}, v{v2}, v{v2} row_ror:{r} {DPPM}")
    for ins in ("v_permlane16_swap_b32", "v_permlane32_swap_b32"):
        a(f"v_mov_b32 v{t1}, v{v1}", f"v_mov_b32 v{t2}, v{v2}", f"{ins} v{v1}, v{t1}", f"{ins} v{v2}, v{t2}")
        a(f"{op1} v{v1}, v{v1}, v{t1}", f"{op2} v{v2}, v{v2}, v{t2}")

SPIN = eval(os.environ.get("SPIN", "None"))
FL_SPIN = 240
def spin_rec(a, ph, i):
    if not SPIN or SPIN[1:] != (ph, i): return
    l = newlabel("SP")
    a(f"s_cmp_lg_u32 s{S_WAVE}, {SPIN[0]}", f"s_cbranch_scc1 {l}")
    a("s_memrealtime s[46:47]", "s_waitcnt lgkmcnt(0)", f"v_mov_b32 v{VONE}, s46", f"ds_write_b32 v{VZ}, v{VONE} offset:{FL_SPIN}", f"v_mov_b32 v{VONE}, 1")
    a(f"{l}:")
def spin_end(a):
    if not SPIN: return
    lo, hi = eval(os.environ.get("SPINI", "(0,18)"))
    a(f"s_sub_u32 s48, s{S_I}, {lo}", f"s_cmp_ge_u32 s48, {hi-lo}", "s_cbranch_scc1 KS_PEND")
    a("s_waitcnt vmcnt(0)")
    a(f"ds_read_b32 v8, v{VZ} offset:{FL_SPIN}", "s_memrealtime s[46:47]", "s_waitcnt lgkmcnt(0)", "v_readfirstlane_b32 s48, v8")
    if SPIN[2] == 9: a("s_mov_b32 s48, s46")
    if SPIN[2] == 0: a("s_mov_b32 s48, s44")
    if ENV("SPINREF", 1):
        a(f"global_load_dword v8, v{VZ}, s[{P_DBG}:{P_DBG+1}] offset:64 sc1", "s_waitcnt vmcnt(0)", "v_readfirstlane_b32 s44, v8", "s_sub_u32 s44, s44, 50")
        if ENV("SPINMIN", 0): a("s_sub_u32 s48, s48, s44", f"s_sub_u32 s48, {ENV('SPINMIN', 0)}, s48", "s_mov_b32 s44, 0")
    a("s_sub_u32 s48, s48, s44", "s_min_u32 s48, s48, 3000", "s_lshl_b32 s48, s48, 2")
    a("SPINL:", "s_memrealtime s[50:51]", "s_waitcnt lgkmcnt(0)", "s_sub_u32 s50, s50, s46", "s_cmp_lt_u32 s50, s48", "s_cbranch_scc1 SPINL")
def stamp_begin(a):
    if SPIN: a("s_memrealtime s[44:45]")
    if not STAMP: return
    a("s_memrealtime s[44:45]")
    for i in range(1, 9): a(f"s_mov_b32 s{44+2*i}, 0")
def cstamp(a, i):
    if STAMP == 9: a(f"s_memtime s[{44+2*i}:{45+2*i}]")
def kstamp(a, i):
    if STAMP == 7: a(f"s_memtime s[{44+2*i}:{45+2*i}]")
def stamp(a, i, ph=1):
    spin_rec(a, ph, i)
    if ph == 2 and STAMP not in (2, 3): return
    if STAMP == 7 and i == 1: return kstamp(a, 1)
    if not STAMP or STAMP in (7, 9): return
    assert 1 <= i <= 8
    a(f"{'s_memtime' if STAMP == 8 else 's_memrealtime'} s[{44+2*i}:{45+2*i}]")
def stamp2(a, i):
    stamp(a, i, 2)
def stamp_end(a):
    if not STAMP: return
    a("s_waitcnt vmcnt(0) lgkmcnt(0)")
    a("s_memrealtime s[62:63]")
    a(f"s_lshl_b32 s43, s2, 4", f"s_add_u32 s43, s43, s{S_WAVE}", "s_lshl_b32 s43, s43, 6", f"s_add_u32 s43, s43, {hex(WS_STAMP)}")
    a("s_mov_b64 exec, 1")
    a("s_waitcnt lgkmcnt(0)")
    a("v_mov_b32 v1, s43")
    for i in range(10): a(f"v_mov_b32 v{4+i}, s{44+2*i}")
    a(f"global_store_dwordx4 v1, v[4:7], s[{P_WS}:{P_WS+1}]")
    a(f"global_store_dwordx4 v1, v[8:11], s[{P_WS}:{P_WS+1}] offset:16")
    a(f"global_store_dwordx2 v1, v[12:13], s[{P_WS}:{P_WS+1}] offset:32")
def endwave(a):
    stamp_end(a)
    a("s_endpgm")

def unpack(a, dst, src):
    a(f"v_lshlrev_b32 v{dst}, 16, v{src}", f"v_and_b32 v{dst+1}, 0xffff0000, v{src}")

def ln_stats(a, X, m2, rinv2, t0, t1, t2):
    a(f"v_pk_add_f32 v[{t0}:{t0+1}], v[{X}:{X+1}], v[{X+2}:{X+3}]")
    a(f"v_pk_add_f32 v[{t1}:{t1+1}], v[{X+4}:{X+5}], v[{X+6}:{X+7}]")
    for j in range(4, 9):
        t = t0 if j % 2 == 0 else t1
        a(f"v_pk_add_f32 v[{t}:{t+1}], v[{t}:{t+1}], v[{X+2*j}:{X+2*j+1}]")
    a(f"v_pk_add_f32 v[{t0}:{t0+1}], v[{t0}:{t0+1}], v[{t1}:{t1+1}]")
    a(f"v_add_f32 v{t0}, v{t0}, v{t0+1}")
    red32(a, "v_add_f32", t0, t1)
    a(f"v_mul_f32 v{t2}, {f32(1.0/576)}, v{t0}")
    a(f"v_mov_b32 v{t2+1}, v{t2}")
    a(f"v_cvt_pk_bf16_f32 v{m2}, v{t2}, v{t2}")
    a(f"v_and_b32 v{m2}, 0xffff0000, v{m2}", f"v_mov_b32 v{m2+1}, v{m2}")
    first = {t0: True, t1: True}
    for j in range(9):
        t = t0 if j % 2 == 0 else t1
        a(f"v_pk_add_f32 v[{rinv2}:{rinv2+1}], v[{X+2*j}:{X+2*j+1}], v[{t2}:{t2+1}] neg_lo:[0,1] neg_hi:[0,1]")
        if first[t]:
            a(f"v_pk_mul_f32 v[{t}:{t+1}], v[{rinv2}:{rinv2+1}], v[{rinv2}:{rinv2+1}]"); first[t] = False
        else:
            a(f"v_pk_fma_f32 v[{t}:{t+1}], v[{rinv2}:{rinv2+1}], v[{rinv2}:{rinv2+1}], v[{t}:{t+1}]")
    a(f"v_pk_add_f32 v[{t0}:{t0+1}], v[{t0}:{t0+1}], v[{t1}:{t1+1}]")
    a(f"v_add_f32 v{t0}, v{t0}, v{t0+1}")
    red32(a, "v_add_f32", t0, t1)
    a(f"v_mul_f32 v{t0}, {f32(1.0/576)}, v{t0}")
    a(f"v_cvt_pk_bf16_f32 v{t0}, v{t0}, v{t0}", f"v_and_b32 v{t0}, 0xffff0000, v{t0}")
    a(f"v_add_f32 v{t0}, {f32(1e-5)}, v{t0}")
    a(f"v_cvt_pk_bf16_f32 v{t0}, v{t0}, v{t0}", f"v_and_b32 v{t0}, 0xffff0000, v{t0}")
    a(f"v_sqrt_f32 v{t0}, v{t0}")
    a(f"v_cvt_pk_bf16_f32 v{t0}, v{t0}, v{t0}", f"v_and_b32 v{t0}, 0xffff0000, v{t0}")
    a(f"v_rcp_f32 v{rinv2}, v{t0}")
    a(f"v_mov_b32 v{rinv2+1}, v{rinv2}")

def ln_apply_pair(a, x, m2, rinv2, t, P):
    a(f"v_pk_add_f32 v[{t}:{t+1}], v[{x}:{x+1}], v[{m2}:{m2+1}] neg_lo:[0,1] neg_hi:[0,1]")
    a(f"v_cvt_pk_bf16_f32 v{P}, v{t}, v{t+1}")
    unpack(a, t, P)
    a(f"v_pk_mul_f32 v[{t}:{t+1}], v[{t}:{t+1}], v[{rinv2}:{rinv2+1}]")
    a(f"v_cvt_pk_bf16_f32 v{P}, v{t}, v{t+1}")
    unpack(a, t, P)

VZ, VONE = 4, 5
_lbl = [0]
def newlabel(p="L"):
    _lbl[0] += 1
    return f"{p}_{_lbl[0]}"
def guard(a):
    a(f"s_sub_u32 s{S_GUARD}, s{S_GUARD}, 1", "s_cbranch_scc1 KS_ABORT")
def lds_wait(a, off, t, kind="b4", addr=VZ, sleep=0):
    l = newlabel("W")
    a(f"{l}:")
    if sleep: a(f"s_sleep {sleep}")
    if kind == "b8":
        a(f"ds_read_b64 v[{t}:{t+1}], v{addr} offset:{off}")
    else:
        a(f"ds_read_{'u8' if kind == 'u8' else 'b32'} v{t}, v{addr} offset:{off}")
    guard(a)
    a("s_waitcnt lgkmcnt(0)")
    if kind == "b8": a(f"v_and_b32 v{t}, v{t}, v{t+1}")
    if kind in ("nz", "u8"): a(f"v_cmp_eq_u32 vcc, 0, v{t}")
    else: a(f"v_cmp_ne_u32 vcc, s{S_ONES}, v{t}")
    a(f"s_cbranch_vccnz {l}")

def zpoll(a, loads, regs, sleep):
    lp = newlabel("ZP"); l1 = newlabel("ZPE")
    a(f"s_branch {l1}")
    a(f"{lp}:")
    a(f"s_sleep {sleep}")
    a(f"{l1}:")
    for l in loads: a(l)
    guard(a)
    a("s_waitcnt vmcnt(0)")
    a(f"v_max3_u32 v44, v{regs[0]}, v{regs[1]}, v{regs[2]}")
    r = regs[3:]
    while len(r) >= 2: a(f"v_max3_u32 v44, v44, v{r[0]}, v{r[1]}"); r = r[2:]
    if r: a(f"v_max_u32 v44, v44, v{r[0]}")
    a("v_cmp_eq_u32 vcc, -1, v44", f"s_cbranch_vccnz {lp}")

class Pool:
    def __init__(self, regs): self.free = list(regs)
    def get(self): return self.free.pop(0)
    def put(self, r): self.free.append(r)
def ce_inlane(a, x, i, j, pool):
    t = pool.get()
    a(f"v_max_u32 v{t}, v{x[i]}, v{x[j]}", f"v_min_u32 v{x[j]}, v{x[i]}, v{x[j]}")
    pool.put(x[i]); x[i] = t
def clean8(a, x, pool, DE, rev=False):
    t = [pool.get() for _ in range(4)]
    for i in range(4):
        a(f"v_mov_b32_dpp v{t[i]}, v{x[3-i if rev else i]} quad_perm:[1,0,3,2] {DPPM}")
    for i in range(4):
        a(f"v_med3_u32 v{t[i]}, v{x[i]}, v{t[i]}, v{DE}")
    for i in range(4): pool.put(x[i]); x[i] = t[i]
    for (i, j) in ((0, 2), (1, 3), (0, 1), (2, 3)): ce_inlane(a, x, i, j, pool)
def merge_mirror(a, x, pool, M):
    c = [pool.get() for _ in range(4)]
    for i in range(4):
        a(f"v_max_u32_dpp v{c[i]}, v{x[3-i]}, v{x[i]} {M} {DPPM}")
    for i in range(4): pool.put(x[i]); x[i] = c[i]
def merge_pair(a, x, y, pool):
    for i in range(4):
        a(f"v_max_u32_dpp v{x[i]}, v{y[3-i]}, v{x[i]} quad_perm:[1,0,3,2] {DPPM}")
    for i in range(4): pool.put(y[i])
MIRRORS = ("quad_perm:[3,2,1,0]", "row_half_mirror", "row_mirror")

GW = 48
def g_addr_setup(a, A):
    a(f"s_sub_u32 s{S_G}, s{S_WAVE}, 12")
    a(f"s_mul_i32 s{T0_}, s{S_G}, 9", f"s_add_u32 s{T0_}, s{T0_}, 1", f"s_lshr_b32 s{S_ROLE}, s{T0_}, 1")
    a(f"s_lshl_b32 s{T0_}, s{S_ROLE}, 5", f"v_lshl_add_u32 v7, v3, 3, s{T0_}", "v_mul_u32_u24 v7, 9216, v7")
    a("v_and_b32 v6, 7, v2", "v_lshl_add_u32 v7, v6, 3, v7")
    a(f"s_lshl_b32 s{T0_}, s{S_BLK}, 6", f"v_add_u32 v7, s{T0_}, v7")
    a("v_cmp_gt_u32 vcc, 8, v2")
    a(f"s_mov_b32 s{R3}, 9216", f"s_mov_b32 s{R3+1}, 0", f"s_mov_b32 s{R3+2}, {9216*25}", f"s_mov_b32 s{R3+3}, 0")
    a(f"v_mov_b32 v{A}, s{P_GATE}", f"v_mov_b32 v{A+1}, s{P_GATE+1}", f"v_mov_b32 v6, s{P_UP}")
    a(f"v_cndmask_b32 v{A}, v6, v{A}, vcc", f"v_mov_b32 v6, s{P_UP+1}", f"v_cndmask_b32 v{A+1}, v6, v{A+1}, vcc")
    a(f"v_add_co_u32 v{A}, vcc, v{A}, v7", f"v_addc_co_u32 v{A+1}, vcc, 0, v{A+1}, vcc")
def g_loads(a, A, kss):
    for ks in kss:
        for r in range(8):
            d = GW + 16 * ks + 2 * r
            a(f"global_load_dwordx2 v[{d}:{d+1}], v[{A}:{A+1}], off" + (" nt" if ENV("GNT", 0) else ""))
            if not (ks == 4 and r == 7):
                a(f"v_lshl_add_u64 v[{A}:{A+1}], v[{A}:{A+1}], 0, s[{R3 if r < 7 else R3+2}:{R3+1 if r < 7 else R3+3}]")
GTRIG = ENV("GTRIG", 2)
PF = ENV("PF", 1)
NL, NN, NC = ENV("NL", 3), ENV("NN", 6), ENV("NC", 3)
NE = ENV("NE", 0)
NLL = ENV("NLL", 0)
PF0 = 16 * NL + 16 * NE + 16 * NLL
PF1 = PF0 + 8 * NN + 8 * NC
assert PF1 <= 166
PF2 = ENV("PF2", 166); PFD = ENV("PFD", 42); PFD2 = ENV("PFD2", 81)
GT = eval(os.environ.get("GT", "[2,2,6,6]")); DT = ENV("DT", 3)
def pf_lane(a, v, t):
    a(f"v_mul_u32_u24 v{v}, 57, v1", f"v_lshrrev_b32 v{v}, 9, v{v}", f"v_mul_u32_u24 v{t}, 9, v{v}", f"v_sub_u32 v{t}, v1, v{t}", f"v_mul_u32_u24 v{v}, 9216, v{v}", f"v_lshl_add_u32 v{v}, v{t}, 7, v{v}")
def pf_gu_setup(a, sidx, R=R2_, tb=T3_, tt=T4_):
    a(f"s_bitcmp1_b32 s{sidx}, 0", f"s_cselect_b32 s{R}, s{P_UP}, s{P_GATE}", f"s_cselect_b32 s{R+1}, s{P_UP+1}, s{P_GATE+1}")
    a(f"s_mov_b32 s{R+2}, {hex(D*F*2)}", f"s_mov_b32 s{R+3}, 0x20000")
    a(f"s_lshr_b32 s{tb}, s{sidx}, 1", f"s_mul_i32 s{tb}, s{tb}, {7*9216}", f"s_mul_i32 s{tt}, s{S_XC}, 1152", f"s_add_u32 s{tb}, s{tb}, s{tt}")
def pf_gu(a, v, sidx, nw, u0, u1, dst, done):
    assert u0 % 2 == 0 and nw % 2 == 0
    pf_gu_setup(a, sidx)
    k = 0
    while u0 + k * nw < u1:
        if u0 + (k + 1) * nw > u1: a(f"s_cmp_ge_u32 s{sidx}, {u1 - u0 - k*nw}", f"s_cbranch_scc1 {done}")
        a(f"s_add_u32 s{T4_}, s{T3_}, {(u0 + k*nw)//2*7*9216}")
        a(f"buffer_load_dword v{dst}, v{v}, s[{R2_}:{R2_+3}], s{T4_} offen")
        k += 1
def pf_down(a, sidx, nw, u0, u1, v, dst, done, R=R2_):
    srd(a, R, P_DOWN, D * F * 2)
    a(f"s_lshl_b32 s{T3_}, s{sidx}, 13", f"s_mul_i32 s{T4_}, s{S_XC}, {576*1152}", f"s_add_u32 s{T3_}, s{T3_}, s{T4_}", f"v_lshlrev_b32 v{v}, 7, v1")
    k = 0
    while u0 + k * nw < u1:
        if u0 + (k + 1) * nw > u1: a(f"s_cmp_ge_u32 s{sidx}, {u1 - u0 - k*nw}", f"s_cbranch_scc1 {done}")
        a(f"s_add_u32 s{T4_}, s{T3_}, {(u0 + k*nw)*8192}")
        a(f"buffer_load_dword v{dst}, v{v}, s[{R}:{R+3}], s{T4_} offen")
        k += 1
def gen_ln1(a):
    LW, TB = T5_, S_CH
    X, RAW = 8, 26
    a(f"s_sub_u32 s{T0_}, s{S_I}, 8", f"s_and_b32 s{TB}, s{T0_}, 7", f"s_lshr_b32 s{T0_}, s{T0_}, 3", f"s_lshl_b32 s{T0_}, s{T0_}, 4", f"s_add_u32 s{TB}, s{TB}, s{T0_}")
    a(f"s_and_b32 s{T0_}, s{S_XC}, 1", f"s_lshl_b32 s{T0_}, s{T0_}, 3", f"s_add_u32 s{TB}, s{TB}, s{T0_}", f"s_lshr_b32 s{T0_}, s{S_XC}, 1", f"s_lshl_b32 s{T0_}, s{T0_}, 5", f"s_add_u32 s{TB}, s{TB}, s{T0_}")
    a("v_lshrrev_b32 v36, 5, v1", "v_and_b32 v37, 31, v1")
    a("v_mul_u32_u24 v38, 1152, v36", "v_lshl_add_u32 v39, v37, 2, v38", "v_lshl_add_u32 v38, v37, 4, v38")
    a(f"s_mul_i32 s{T1_}, s{TB}, 18432", f"s_mul_i32 s{T2_}, s{LW}, 2304", f"s_add_u32 s{T1_}, s{T1_}, s{T2_}")
    a("s_waitcnt lgkmcnt(0)")
    stamp(a, 1)
    srd(a, R0, P_X, XBYTES)
    a(f"buffer_load_dwordx4 v[{RAW}:{RAW+3}], v38, s[{R0}:{R0+3}], s{T1_} offen")
    a(f"buffer_load_dwordx4 v[{RAW+4}:{RAW+7}], v38, s[{R0}:{R0+3}], s{T1_} offen offset:512")
    a(f"buffer_load_dword v{RAW+8}, v39, s[{R0}:{R0+3}], s{T1_} offen offset:1024")
    a("s_barrier")
    a(f"s_lshr_b32 s{T1_}, s{LW}, 2", f"s_lshl_b32 s{T1_}, s{T1_}, 6", f"s_add_u32 s{T2_}, s{T2_}, s{T1_}", f"s_add_u32 s{T2_}, s{T2_}, {C_LNB}")
    a(f"v_lshl_add_u32 v35, v37, 1, v36")
    a(f"s_mov_b32 s{SP0}, 0x05040100", f"s_mov_b32 s{SP1}, 0x07060302")
    def waits(n):
        for (c, js) in ((2, range(0, 4)), (1, range(4, 8)), (0, range(8, 9))):
            a(f"s_waitcnt vmcnt({c+n})")
            for j in js: unpack(a, X + 2 * j, RAW + j)
    l1 = newlabel("LN1A"); l2 = newlabel("LN1B")
    if NL:
        LW0 = ENV("NLW", 4)
        pf_lane(a, 46, 47)
        a(f"s_sub_u32 s{T1_}, s{LW}, {LW0}", f"s_and_b32 s{T1_}, s{T1_}, 7", f"s_lshl_b32 s{T3_}, s{T1_}, 4", f"s_add_u32 s{T3_}, s{T3_}, s{S_I}", f"s_sub_u32 s{T3_}, s{T3_}, 8")
        pf_gu_setup(a, T3_, R3, T4_, T0_)
    if NL and ENV("NLE", 0):
        a(f"s_cmp_lt_u32 s{T1_}, {NL}", f"s_cselect_b32 s{T4_}, s{T4_}, {hex(D*F*2)}")
        a(f"buffer_load_dword v47, v46, s[{R3}:{R3+3}], s{T4_} offen")
        waits(1)
    else:
        waits(0)
    if NL and not ENV("NLE", 0):
        if ENV("X0", 0): a(f"s_cmp_eq_u32 s{S_XC}, 0", f"s_cbranch_scc1 {l1}")
        a(f"s_cmp_ge_u32 s{T1_}, {NL}", f"s_cbranch_scc1 {l1}")
        a(f"buffer_load_dword v47, v46, s[{R3}:{R3+3}], s{T4_} offen")
        a(f"{l1}:")
    stamp(a, 2)
    a(f"v_lshl_add_u32 v6, v35, 4, s{T2_}", f"v_lshl_add_u32 v7, v35, 2, s{T2_}")
    a(f"v_mul_u32_u24 v35, 0x20202, v36", "v_lshl_add_u32 v35, v36, 25, v35", "v_add_u32 v35, 0x05040100, v35")
    ln_stats(a, X, 36, 38, 40, 42, 44)
    for j in range(9):
        if j == ENV("DSAMP", 3): a("v_and_b32 v59, 3, v1", "v_lshlrev_b32 v59, 2, v59", f"global_load_dword v58, v59, s[{P_DBG}:{P_DBG+1}] sc1")
        ln_apply_pair(a, X + 2 * j, 36, 38, 40, 42)
        a(f"v_cvt_pk_f16_f32 v{RAW+j}, v40, v41")
        if j in (3, 7):
            P = RAW + j - 3; O = X + 2 * (j - 3)
            a(f"v_permlane32_swap_b32 v{P}, v{P+2}", f"v_permlane32_swap_b32 v{P+1}, v{P+3}")
            a(f"v_perm_b32 v{O}, v{P+2}, v{P}, s{SP0}", f"v_perm_b32 v{O+1}, v{P+2}, v{P}, s{SP1}")
            a(f"v_perm_b32 v{O+2}, v{P+3}, v{P+1}, s{SP0}", f"v_perm_b32 v{O+3}, v{P+3}, v{P+1}, s{SP1}")
            a(f"ds_write_b128 v6, v[{O}:{O+3}] offset:{1024*(j//4)}")
    a(f"v_mov_b32 v40, v{RAW+8}", f"v_permlane32_swap_b32 v{RAW+8}, v40")
    a(f"v_perm_b32 v40, v40, v{RAW+8}, v35")
    a(f"ds_write_b32 v7, v40 offset:2048")
    a(f"v_mov_b32 v6, s{LW}")
    a(f"ds_write_b8 v6, v{VONE} offset:{FL_LN1}")
    a("s_setprio 0")
    a(f"s_cmp_ge_u32 s{LW}, 4", "s_cbranch_scc1 KS_X4")
    a("s_setprio 3")
    srd(a, R2_, P_WS, XBYTES, WS_UT)
    a("v_and_b32 v6, 1, v0", "v_mul_u32_u24 v6, 9280, v6", "v_lshrrev_b32 v7, 1, v0", "v_lshl_add_u32 v6, v7, 2, v6", f"v_add_u32 v6, {C_LNB}, v6")
    a("v_lshrrev_b32 v7, 2, v0", "v_lshlrev_b32 v7, 13, v7", "v_and_b32 v8, 3, v0", "v_lshl_add_u32 v7, v8, 4, v7")
    a(f"s_lshl_b32 s{T0_}, s{TB}, 6")
    for k in range(1, 5): a(f"s_add_u32 s{T0_+k}, s{T0_}, {0x80000*k}")
    dbg_wait(a, 0)
    a(f"ds_write_b32 v59, v58 offset:{FL_NONCE}")
    a(f"s_mov_b32 s{SP0}, {hex(TAGM)}")
    for d in range(1, 4): a(f"v_lshrrev_b32 v{58-d}, {3*d}, v58")
    lds_wait(a, FL_LN1, 20, "b8")
    stamp(a, 3)
    for k in range(5):
        a(f"ds_read2st64_b32 v[{20+4*k}:{21+4*k}], v6 offset0:{2*k} offset1:{9+2*k}")
        a(f"ds_read2st64_b32 v[{22+4*k}:{23+4*k}], v6 offset0:{18+2*k} offset1:{27+2*k}")
    for k in range(5):
        a(f"s_waitcnt lgkmcnt({8-2*k})")
        for d in range(4): a(f"v_bfi_b32 v{20+4*k+d}, s{SP0}, v{58-d}, v{20+4*k+d}")
        a(f"buffer_store_dwordx4 v[{20+4*k}:{23+4*k}], v7, s[{R2_}:{R2_+3}], s{T0_+k} offen {MOD('USMOD')}")
    stamp(a, 4)

def dbg_wait(a, n, vt=58, va=59):
    lp = newlabel("DBP"); go = newlabel("DBG")
    a(f"s_waitcnt vmcnt({n})")
    a(f"{lp}:")
    a(f"v_cmp_eq_u32 vcc, 0, v{vt}", f"s_cbranch_vccz {go}")
    a("s_sleep 1")
    a(f"global_load_dword v{vt}, v{va}, s[{P_DBG}:{P_DBG+1}] sc1")
    guard(a)
    a("s_waitcnt vmcnt(0)")
    a(f"s_branch {lp}")
    a(f"{go}:")

ROLE_TILES = {0: [0, 1, 2, 3, 4], 1: [0, 1, 2, 3, 4], 2: [5, 6, 7], 3: [5, 6, 7]}
ROLE_W = {2: 0, 3: 1, 1: 2}
ACC, DA, RING, WT = 16, 36, 76, 92
NRING = 4

def epi_plan():
    owner = {0: (0, 0), 1: (0, 1), 2: (1, 0), 3: (1, 1), 4: (1, 3), 5: (0, 2), 6: (0, 3), 7: (1, 2)}
    slots = {}
    cnt = [0, 0]
    for g in range(2):
        for role in range(4):
            for j in ROLE_TILES[role]:
                if owner[j] == (g, role): continue
                slots[(g, role, j)] = g * G_SIZE + R_RED + 1024 * cnt[g]; cnt[g] += 1
    assert max(cnt) <= 13, cnt
    ownerC = {0: 0, 1: 0, 2: 1, 3: 1, 4: 2, 5: 2, 6: 3, 7: 3}
    n = 0
    for role in range(4):
        for j in ROLE_TILES[role]:
            if ownerC[j] == role: continue
            slots[(2, role, j)] = 2 * G_SIZE + R_RED + 1024 * n; n += 1
    return owner, ownerC, slots

class LdsTrack:
    def __init__(self, a): self.a = a; self.n = 0; self.done = -1
    def issue(self, text): self.a(text); self.n += 1; return self.n - 1
    def wait(self, idx):
        k = self.n - 1 - idx
        if idx <= self.done: return
        self.done = idx
        if k <= 15: self.a(f"s_waitcnt lgkmcnt({k})")

CZ0, CZ1, CSH, CXR, CFL, SIS, CM, SM, SC, SSC, SDL = 6, 7, 8, 9, 10, 11, 12, 14, 15, 16, 18
IXR, LFR = (108, 109, 112, 113), (110, 111, 114, 115)
def stage_write(a, off):
    a("v_lshl_or_b32 v24, v25, 16, v24", "v_lshl_or_b32 v25, v27, 16, v26", f"ds_write_b64 v28, v[24:25] offset:{off}")
def pre_ixlf(a):
    end = newlabel("PX"); j1 = newlabel("PX"); j2 = newlabel("PX"); jn = newlabel("PX")
    a(f"s_cmp_eq_u32 s{S_ROLE}, 3", f"s_cbranch_scc1 {end}")
    a("v_lshlrev_b32 v26, 3, v2", "v_mov_b32 v21, 0x80")
    a(f"s_cmp_eq_u32 s{S_ROLE}, 1", f"s_cbranch_scc1 {j1}", f"s_cmp_eq_u32 s{S_ROLE}, 2", f"s_cbranch_scc1 {j2}")
    a("v_lshl_add_u32 v26, v3, 1, v26", "v_mov_b32 v22, 1")
    a(f"s_branch {jn}")
    a(f"{j1}:")
    a("v_cmp_gt_u32 vcc, 2, v3", "v_lshl_add_u32 v20, v3, 2, v26", "v_add_u32 v20, 256, v20", "v_lshl_add_u32 v26, v3, 8, v26", "v_cndmask_b32 v26, v26, v20, vcc")
    a("v_cndmask_b32 v22, v21, 2, vcc", "v_cndmask_b32 v21, 4, v21, vcc")
    a(f"s_branch {jn}")
    a(f"{j2}:")
    a("v_lshl_add_u32 v26, v3, 9, v26", "v_add_u32 v26, 0x400, v26", "v_mov_b32 v22, 0x100")
    a(f"{jn}:")
    a(f"v_mad_u32_u24 v26, v22, s{S_G}, v26", "v_add_u32 v27, v26, v21", f"s_movk_i32 s{T4_}, {T_TAB}", f"s_movk_i32 s{T5_}, {-(0x4280 + 0x800)}", f"s_lshl_b32 s{T3_}, s{S_G}, 9")
    for r in range(2): a(f"v_cvt_f32_u32 v{20+r}, v{26+r}", f"v_max_u32 v{22+r}, 0x800, v{26+r}")
    for r in range(2):
        a(f"v_cmp_gt_u32 vcc, 0x80, v{26+r}", f"v_lshrrev_b32 v{24+r}, 16, v{20+r}", f"v_add3_u32 v{24+r}, v{24+r}, v{22+r}, s{T5_}", f"v_cndmask_b32 v{24+r}, v{24+r}, v{26+r}, vcc")
    for r in range(2):
        a(f"v_min_u32 v{24+r}, {IDX_DUMMY}, v{24+r}", f"v_lshl_add_u32 v{24+r}, v{24+r}, 1, s{T4_}")
    a(f"v_add_u32 v29, s{T3_}, v28")
    a("v_lshl_or_b32 v24, v25, 16, v24", "v_lshl_or_b32 v25, v27, 16, v26", "ds_write_b64 v29, v[24:25]")
    a(f"{end}:")

def gen_group(a):
    RAW, VLDT, VDSK, VNT, VNA, VPR, VEM, VTE, VTL = 40, 46, 107, 104, 105, 106, 72, 126, 127
    I1, D2, I2, D1, D3 = 116, 119, 120, 124, 125
    a(f"s_lshl_b32 s{T0_}, s{S_CH}, 8", f"v_lshl_add_u32 v20, v1, 2, s{T0_}")
    a(f"s_lshl_b32 s{T0_}, s{S_CH}, 1", f"v_mov_b32 v21, s{T0_}")
    a(f"s_mul_i32 s{S_GB}, s{S_G}, {G_SIZE}", f"s_add_u32 s{S_GB}, s{S_GB}, {G_BASE}")
    a("s_waitcnt lgkmcnt(0)")
    stamp(a, 1)
    a(f"global_load_ushort v{VLDT}, v21, s[{P_LDT}:{P_LDT+1}]")
    for k in range(6):
        a(f"global_load_dword v{RAW+k}, v20, s[{P_ARE+2*k}:{P_ARE+2*k+1}]")
    a(f"global_load_ushort v{VDSK}, v21, s[{P_DSK}:{P_DSK+1}]")
    a("s_barrier")
    a(f"s_movk_i32 s{T4_}, {T_TAB}")
    def dr_addr(dst, x, special=False):
        a(f"v_sub_u32 v30, 544, v{x}", "v_cvt_f32_i32 v31, v30", "v_cmp_gt_u32 vcc, 0x100, v30", "v_cvt_pk_bf16_f32 v31, v31, v31", "v_and_b32 v31, 0xffff, v31", "v_subrev_u32 v31, 0x4280, v31")
        a("v_cndmask_b32 v31, v31, v30, vcc", "v_cmp_lt_u32 vcc, 0x20d, v30")
        if special: a(f"v_or_b32 v30, 1, v{x}")
        a("v_cndmask_b32 v31, v31, v32, vcc")
        if special: a("v_cmp_eq_u32 vcc, 0x25d, v30", "v_cndmask_b32 v31, v31, v33, vcc")
        a(f"v_lshl_add_u32 v{dst}, v31, 1, s{T4_}")
    def g_addr(dst, y0, base, M):
        a(f"v_sub_u32 v30, {y0}, v23", f"v_cmp_lt_u32 vcc, {M}, v30", f"v_lshlrev_b32 v31, 2, v30", f"v_add_u32 v31, {T_TAB + 2*base}, v31", f"v_cndmask_b32 v{dst}, v31, v33, vcc")
    pb = newlabel("PREB"); pw = newlabel("PREW"); pe = newlabel("PREE")
    a(f"s_cmp_eq_u32 s{S_G}, 2", f"s_cbranch_scc1 {pe}")
    a(f"v_mov_b32 v32, {IDX_ZERO}")
    a(f"s_cmp_eq_u32 s{S_G}, 1", f"s_cbranch_scc1 {pb}")
    jl = [newlabel("PRE") for _ in range(4)]
    a(f"v_mov_b32 v33, {T_TAB + 2*IDX_ZERO}")
    for r in range(1, 4): a(f"s_cmp_eq_u32 s{S_ROLE}, {r}", f"s_cbranch_scc1 {jl[r]}")
    a("v_lshlrev_b32 v23, 1, v1")
    for e, (y0, base, M) in enumerate(((93, 389, 61), (92, 389, 61), (94, 388, 62), (93, 388, 62))): g_addr(24 + e, y0, base, M)
    a(f"s_branch {pw}")
    for r, base in ((1, 513), (2, 514)):
        a(f"{jl[r]}:")
        a("v_min_u32 v23, 47, v1", "v_lshlrev_b32 v23, 1, v23")
        for e, y0 in ((0, 64), (1, 63), (3, 62)): g_addr(24 + e, y0, base, 63)
        a("v_mov_b32 v26, v25")
        a(f"s_branch {pw}")
    a(f"{jl[3]}:")
    a("v_cmp_gt_u32 vcc, 9, v1", "v_add_u32 v23, 0x100, v1", "v_mov_b32 v33, 0x200", "v_cndmask_b32 v23, v23, v1, vcc", "v_lshlrev_b32 v23, 1, v23")
    for e in (0, 1, 3):
        if e: a("v_add_u32 v23, 1, v23")
        dr_addr(24 + e, 23, special=True)
    a("v_mov_b32 v26, v25")
    a(f"s_branch {pw}")
    a(f"{pb}:")
    a(f"s_lshl_b32 s{T1_}, s{S_ROLE}, 7", f"s_add_u32 s{T1_}, s{T1_}, 18", f"v_lshl_add_u32 v23, v1, 1, s{T1_}")
    for e in range(3):
        if e: a("v_add_u32 v23, 1, v23")
        dr_addr(24 + e, 23)
    a(f"s_sub_u32 s{T1_}, s{S_ROLE}, 1", f"s_cmp_lt_u32 s{T1_}, 2", f"s_cselect_b32 s{T2_}, 47, 63", f"s_mul_i32 s{T1_}, s{T1_}, {T_G9E - T_G7E}", f"s_add_u32 s{T1_}, s{T1_}, {T_G7E}")
    a(f"s_cmp_eq_u32 s{S_ROLE}, 0", f"s_cselect_b32 s{T1_}, {T_G3}, s{T1_}", f"s_cmp_eq_u32 s{S_ROLE}, 3", f"s_cselect_b32 s{T1_}, {T_DRE}, s{T1_}", f"s_cselect_b32 s{T3_}, 0x100, 0")
    a("v_cmp_gt_u32 vcc, 9, v1", f"v_min_u32 v23, s{T2_}, v1", f"v_add_u32 v30, s{T3_}, v23", "v_cndmask_b32 v23, v30, v23, vcc", f"v_lshl_add_u32 v27, v23, 2, s{T1_}")
    stage_write(a, 1024)
    a(f"v_mov_b32 v24, s{S_ROLE}", f"ds_write_b8 v24, v{VONE} offset:{FL_PRE + 4}")
    a(f"s_branch {pe}")
    a(f"{pw}:")
    stage_write(a, 1536)
    a(f"v_mov_b32 v24, s{S_ROLE}", f"ds_write_b8 v24, v{VONE} offset:{FL_PRE}")
    a(f"{pe}:")
    a(f"s_mul_i32 s{T1_}, s{S_ROLE}, {16*KG_ROW}", f"s_min_u32 s{T2_}, s{T1_}, {KG_T[3]}", f"s_add_u32 s{T2_}, s{T2_}, s{S_GB}")
    a(f"s_lshl_b32 s{T0_}, s{S_G}, 4", f"v_mov_b32 v14, s{T0_}", f"v_add_u32 v15, s{S_ROLE}, v14")
    a(f"v_lshl_add_u32 v{VEM}, v1, 3, s{T2_}")
    for k in range(1, 4): a(f"v_add_u32 v{VEM+k}, {4*KG_ROW*k}, v{VEM}")
    a(f"v_mul_u32_u24 v{VTE}, {KG_ROW}, v2", f"v_lshl_add_u32 v{VTE}, v3, 4, v{VTE}", f"v_add_u32 v{VTE}, s{S_GB}, v{VTE}", f"v_add_u32 v{VTL}, s{T1_}, v{VTE}")
    VDA, VDA2, VB_, VT8, VT16, VG8, VG16, VLN = 6, 7, 8, 9, 10, 11, 13, 12
    a("v_lshlrev_b32 v20, 3, v3", "v_sub_u32 v20, v20, v2", "v_add_u32 v21, 16, v20", "v_lshrrev_b32 v21, 1, v21")
    a("v_and_b32 v22, 1, v2", f"s_add_u32 s{T0_}, s{S_GB}, {T_DRE}", f"v_lshl_add_u32 v21, v21, 2, s{T0_}", f"s_movk_i32 s{T0_}, {T_DRO - T_DRE}", f"s_movk_i32 s{T2_}, {T_G7O - T_G7E}")
    a(f"v_mad_u32_u24 v{VDA}, v22, s{T0_}, v21", f"v_add_u32 v{VDA2}, 640, v{VDA}")
    a(f"v_mad_u32_u24 v23, v22, s{T2_}, v21", f"v_add_u32 v{VG16}, {T_G7E - T_DRE}, v23")
    a("v_lshlrev_b32 v23, 2, v3", "v_sub_u32 v23, v23, v2", f"s_add_u32 s{T0_}, s{S_GB}, {T_G3 + 60}", f"v_lshl_add_u32 v{VG8}, v23, 2, s{T0_}")
    a(f"s_mul_i32 s{T2_}, s{S_G}, {U_SIZE}", f"s_add_u32 s{T2_}, s{T2_}, {C_U}")
    a(f"v_lshl_add_u32 v23, v2, 5, s{T2_}", f"v_lshl_add_u32 v{VB_}, v3, 4, v23")
    a("v_bfe_u32 v20, v1, 2, 2", "v_and_b32 v21, 3, v1", "v_lshl_add_u32 v20, v3, 3, v20")
    a(f"v_lshlrev_b32 v{VNA}, 2, v21")
    a(f"v_lshl_add_u32 v21, v21, 3, s{S_GB}", f"v_lshl_add_u32 v{VT8}, v20, 4, v21", f"v_lshl_add_u32 v{VT16}, v20, 5, v21")
    a(f"v_lshlrev_b32 v{VLN}, 4, v1")
    srd(a, R0, P_WS, 0x240000, WS_ZB1)
    a(f"s_lshl_b32 s{T0_}, s{S_ROLE}, 19", f"s_lshl_b32 s{T1_}, s{S_B2}, 6", f"s_add_u32 s{T0_}, s{T0_}, s{T1_}")
    a(f"s_lshl_b32 s{T1_}, s{S_ROLE}, 16", f"s_lshl_b32 s{T3_}, s{S_CH}, 6", f"s_add_u32 s{T1_}, s{T1_}, s{T3_}", f"s_add_u32 s{T1_}, s{T1_}, {0x200000 - 512*64}")
    a(f"s_cmp_eq_u32 s{S_G}, 2", f"s_cselect_b32 s{CZ0}, s{T1_}, s{T0_}", f"s_cselect_b32 s{CSH}, 12, 15", f"s_add_u32 s{CZ1}, s{CZ0}, 16384")
    a(f"s_and_b32 s{CXR}, s{S_G}, 1", f"s_lshl_b32 s{CXR}, s{CXR}, 4", f"s_mov_b32 s{CM}, 0x55555555", f"s_mov_b32 s{CM+1}, 0x55555555")
    a(f"s_lshl_b32 s{T0_}, s{S_ROLE}, 8", f"s_add_u32 s{T0_}, s{T0_}, s{S_GB}", f"s_add_u32 s{T0_}, s{T0_}, 36", f"v_lshl_add_u32 v{D1}, v1, 2, s{T0_}")
    a(f"s_movk_i32 s{T0_}, {T_G7O - T_G7E}", f"s_cmp_eq_u32 s{S_ROLE}, 0", f"s_cselect_b32 s{T0_}, {T_G5 - T_G3}, s{T0_}", f"s_cmp_eq_u32 s{S_ROLE}, 3", f"s_cselect_b32 s{T0_}, {T_DRO - T_DRE}, s{T0_}")
    a(f"v_mov_b32 v20, s{S_GB}", f"ds_write_b16 v20, v{VZ} offset:{T_TAB + 2*IDX_ZERO}")
    a(f"s_mov_b32 s{SDL}, s{T0_}", f"v_mov_b32 v{D3}, v28")
    def stage_read():
        lds_wait(a, FL_PRE, 18, "b8")
        a(f"ds_read2st64_b64 v[28:31], v{D3} offset0:0 offset1:1", f"ds_read2st64_b64 v[32:35], v{D3} offset0:2 offset1:3")
    def stage_unpack():
        for k in range(16):
            src = 28 + k // 2; w = f"WORD_{k & 1}"
            if 108 + k in LFR: a(f"v_cvt_f32_u32_sdwa v{108+k}, v{src} dst_sel:DWORD dst_unused:UNUSED_PAD src0_sel:{w}")
            else: a(f"v_add_u32_sdwa v{108+k}, s{S_GB}, v{src} dst_sel:DWORD dst_unused:UNUSED_PAD src0_sel:DWORD src1_sel:{w}")
        a(f"v_add_u32 v{D3}, s{SDL}, v{D2}")
    stage_read()
    a("s_waitcnt lgkmcnt(0)")
    stage_unpack()
    ex = newlabel("EXP")
    if KOFF: a(f"s_lshl_b32 s{T0_}, s{S_G}, 5", f"s_add_u32 s{T0_}, s{T0_}, s{S_I}", f"s_cmp_ge_u32 s{T0_}, {64 + 24}", "s_cbranch_scc1 KC_RECV")
    a(f"s_mov_b32 s{T0_}, {f32(LOG2E_HI)}", f"s_mov_b32 s{T1_}, {f32(LOG2E_LO)}", f"s_mov_b32 s{T2_}, {f32(INV2PI_HI)}", f"s_mov_b32 s{T3_}, {f32(INV2PI_LO)}")
    a(f"s_waitcnt vmcnt(7)")
    a(f"v_lshlrev_b32 v16, 16, v{VLDT}")
    a(f"v_mul_f32 v17, s{T0_}, v16")
    a(f"v_fma_f32 v19, v16, s{T0_}, -v17", f"v_fmac_f32 v19, s{T1_}, v16")
    a("v_exp_f32 v17, v17")
    a(f"v_mul_f32 v19, {f32(math.log(2.0))}, v19")
    a("v_fmac_f32 v17, v17, v19")
    a("v_cvt_pk_bf16_f32 v17, v17, v17", "v_and_b32 v16, 0xffff0000, v17")
    a(f"s_waitcnt vmcnt(5)")
    stamp(a, 2)
    a(f"ds_write_b32 v{VZ}, v{VONE} offset:{FL_PARAM}")
    THH, THL = 68, 70
    for k in range(2): unpack(a, 20 + 2 * k, RAW + k)
    for k in range(2): a(f"v_pk_mul_f32 v[{20+2*k}:{21+2*k}], v[{20+2*k}:{21+2*k}], v[16:17] op_sel_hi:[1,0]")
    a("v_max_f32 v36, v20, v21")
    a(f"v_pk_mul_f32 v[{THH}:{THH+1}], v[22:23], s[{T2_}:{T3_}] op_sel_hi:[1,0]")
    a(f"v_pk_fma_f32 v[{THL}:{THL+1}], v[22:23], s[{T2_}:{T3_}], v[{THH}:{THH+1}] op_sel_hi:[1,0,1] neg_lo:[0,0,1] neg_hi:[0,0,1]")
    a(f"v_pk_fma_f32 v[{THL}:{THL+1}], v[22:23], s[{T2_}:{T3_}], v[{THL}:{THL+1}] op_sel:[0,1,0]")
    T = 90
    def cmul_(dr, di, ar, ai, br, bi, t=T):
        assert di not in (ar, br, bi)
        return [f"v_pk_mul_f32 v[{t}:{t+1}], v[{ai}:{ai+1}], v[{bi}:{bi+1}]",
                f"v_pk_mul_f32 v[{t+2}:{t+3}], v[{ai}:{ai+1}], v[{br}:{br+1}]",
                f"v_pk_fma_f32 v[{di}:{di+1}], v[{ar}:{ar+1}], v[{bi}:{bi+1}], v[{t+2}:{t+3}]",
                f"v_pk_fma_f32 v[{dr}:{dr+1}], v[{ar}:{ar+1}], v[{br}:{br+1}], v[{t}:{t+1}] neg_lo:[0,0,1] neg_hi:[0,0,1]"]
    def cm_(d, x, y, t=T): return cmul_(d, d + 2, x, x + 2, y, y + 2, t)
    def csq_(d, s_, t=T):
        return [f"v_pk_mul_f32 v[{t}:{t+1}], v[{s_+2}:{s_+3}], v[{s_+2}:{s_+3}]",
                f"v_pk_mul_f32 v[{t+2}:{t+3}], v[{s_}:{s_+1}], v[{s_+2}:{s_+3}]",
                f"v_pk_fma_f32 v[{d}:{d+1}], v[{s_}:{s_+1}], v[{s_}:{s_+1}], v[{t}:{t+1}] neg_lo:[0,0,1] neg_hi:[0,0,1]",
                f"v_pk_add_f32 v[{d+2}:{d+3}], v[{t+2}:{t+3}], v[{t+2}:{t+3}]"]
    def cmul(*x): a(*cmul_(*x))
    def csq(*x): a(*csq_(*x))
    CBR, CBI = 32, 34
    sk = newlabel("SK")
    a(f"s_cmp_eq_u32 s{S_ROLE}, 3", f"s_cbranch_scc1 {sk}")
    a("s_waitcnt vmcnt(1)")
    for k in range(2, 6): unpack(a, 20 + 2 * k, RAW + k)
    for k in range(2, 4): a(f"v_pk_mul_f32 v[{20+2*k}:{21+2*k}], v[{20+2*k}:{21+2*k}], v[16:17] op_sel_hi:[1,0]")
    cmul(CBR, CBI, 28, 30, 24, 26)
    a(f"v_max3_f32 v37, abs(v{CBI}), abs(v{CBI+1}), abs(v{CBR})", f"v_max_f32 v37, v37, abs(v{CBR+1})")
    a(f"{sk}:")
    a("s_waitcnt vmcnt(0)")
    a.flush(1)
    a("v_permlane32_swap_b32 v36, v37", "v_max_f32 v36, v36, v37")
    red32(a, "v_max_f32", 36, 38)
    a(f"v_readlane_b32 s{SM}, v36, 0", f"v_readlane_b32 s{SC}, v36, 32")
    a(f"s_add_u32 s{SC}, s{SC}, 0x7fffff", f"s_lshr_b32 s{SC}, s{SC}, 23", f"s_max_u32 s{SC}, s{SC}, 24", f"s_sub_u32 s{SSC}, 269, s{SC}", f"s_lshl_b32 s{SSC}, s{SSC}, 23")
    a(f"v_subrev_f32 v20, s{SM}, v20", f"v_subrev_f32 v21, s{SM}, v21")
    a(f"v_mul_f32 v20, {f32(LOG2E)}, v20", f"v_mul_f32 v21, {f32(LOG2E)}, v21")
    def scale_cb():
        a(f"v_pk_mul_f32 v[{CBR}:{CBR+1}], v[{CBR}:{CBR+1}], s[{SSC}:{SSC+1}] op_sel_hi:[1,0]", f"v_pk_mul_f32 v[{CBI}:{CBI+1}], v[{CBI}:{CBI+1}], s[{SSC}:{SSC+1}] op_sel_hi:[1,0]")
    def anchor(dr, di, l, conj=False):
        lit = {1: "1.0", 2: "2.0"}.get(l, f32(float(l)))
        for e in range(2):
            t = T + 4 * e
            if l != 1: a(f"v_mul_f32 v{t+1}, {lit}, v{THH+e}", f"v_mul_f32 v{t}, {lit}, v{20+e}")
        for e in range(2):
            t = T + 4 * e
            a(f"v_fract_f32 v{t+1}, v{t+1 if l != 1 else THH+e}")
        for e in range(2):
            t = T + 4 * e
            a(f"v_fmac_f32 v{t+1}, {lit}, v{THL+e}")
        for e in range(2):
            t = T + 4 * e
            a(f"v_exp_f32 v{t}, v{t if l != 1 else 20+e}", f"v_cos_f32 v{t+2}, v{t+1}", f"v_sin_f32 v{t+1}, v{t+1}")
        for e in range(2):
            t = T + 4 * e
            a(f"v_mul_f32 v{dr+e}, v{t}, v{t+2}")
            a(f"v_mul_f32 v{di+e}, v{t}, {'-' if conj else ''}v{t+1}")
    em = [0, None]
    def it(cms, row=None, x=None, y=None):
        if em[1]: a(em[1]); em[1] = None
        for k in range(4):
            for c in cms:
                if k < len(c): a(c[k])
        if row is None: return
        t = (98, 76)[em[0] & 1]; em[0] += 1
        for v, tt in ((x, t), (y, t + 2)):
            if v is not None: a(f"v_cvt_pk_f16_f32 v{tt}, v{v}, v{v+2}", f"v_cvt_pk_f16_f32 v{tt+1}, v{v+1}, v{v+3}")
        o = (row & 3) * KG_ROW // 8
        if y is None: em[1] = f"ds_write_b64 v{VEM + row//4}, v[{t}:{t+1}] offset:{8*o}"
        else: em[1] = f"ds_write2_b64 v{VEM + row//4}, v[{t}:{t+1}], v[{t+2}:{t+3}] offset0:{o} offset1:{o + KG_ROW//8}"
    G1, G2, G3 = 40, 44, 48
    VA, VB, VC, VD = 52, 56, 60, 64
    oth = lambda c, p, q: p if c != p else q
    jl = [newlabel("JOB") for _ in range(4)]; jn = newlabel("JOBJ")
    for r in (3, 1, 2): a(f"s_cmp_eq_u32 s{S_ROLE}, {r}", f"s_cbranch_scc1 {jl[r]}")
    anchor(G2, G2 + 2, 128); scale_cb(); anchor(G1, G1 + 2, 1)
    cur = CBR
    for c in range(8):
        nx = oth(cur, VA, VB)
        it([cm_(VC, cur, G2)] + ([cm_(nx, cur, G1, T + 4)] if c < 7 else []), 2 * c, cur, VC); cur = nx
    it([])
    a(f"s_branch {jn}")
    a(f"{jl[1]}:")
    anchor(G2, G2 + 2, 128); scale_cb(); csq(G3, G2); anchor(G1, G1 + 2, 2)
    it([cm_(VA, CBR, G3)]); cur = VA
    it([cm_(VD, VA, G3)])
    for c in range(4):
        nx = oth(cur, VA, VB)
        it([cm_(VC, cur, G2), cm_(nx, cur, G1, T + 4) if c < 3 else csq_(G3, G1, T + 4)], 2 * c, cur, VC); cur = nx
    cur = VD
    for aa in range(4):
        nx = oth(cur, VA, VB)
        it([cm_(VC, cur, G3)] + ([cm_(nx, cur, G2, T + 4)] if aa < 3 else []), 8 + 2 * aa, cur, VC); cur = nx
    it([])
    a(f"s_branch {jn}")
    a(f"{jl[3]}:")
    anchor(G1, G1 + 2, 8, conj=True)
    a(f"v_mov_b32 v{VA}, {f32(32768.0)}", f"v_mov_b32 v{VA+1}, {f32(32768.0)}", f"v_mov_b32 v{VA+2}, 0", f"v_mov_b32 v{VA+3}, 0")
    sc_ = lambda d, x: [f"v_pk_mul_f32 v[{d}:{d+1}], v[{x}:{x+1}], v[{VA}:{VA+1}]", f"v_pk_mul_f32 v[{d+2}:{d+3}], v[{x+2}:{x+3}], v[{VA}:{VA+1}]"]
    it([csq_(G2, G1), sc_(VC, G1)])
    ce, co = VA, VC
    for b in range(8):
        ne, no = oth(ce, VA, VB), oth(co, VC, VD)
        it([] if b == 7 else [sc_(ne, G2) if b == 0 else cm_(ne, ce, G2), cm_(no, co, G2, T + 4)], 2 * b, ce, co); ce, co = ne, no
    it([])
    a(f"ds_write_b8 v15, v{VONE} offset:{FL_G}")
    stamp(a, 3)
    if KOFF: a(f"s_cmp_eq_u32 s{S_G}, 2", "s_cbranch_scc1 KS_G0")
    a(f"s_branch {ex}")
    if KOFF:
        a("KC_SEND:")
        lds_wait(a, FL_NONCE, VNT, "nz", addr=VNA)
        a(f"s_lshl_b32 s{T0_}, s{S_CH}, 12", f"s_lshl_b32 s{T1_}, s{S_ROLE}, 10", f"s_add_u32 s{T0_}, s{T0_}, s{T1_}", f"s_add_u32 s{T0_}, s{T0_}, {hex(WS_KT - 512*4096)}", f"v_add_u32 v24, s{T0_}, v{VLN}")
        a(f"s_mov_b32 s{T1_}, 0xffff", f"v_lshlrev_b32 v25, 16, v{VNT}")
        for r in range(4): a(f"v_cvt_f16_f32 v{20+r}, v{20+r}")
        a(f"s_cmp_lg_u32 s{S_ROLE}, 2", "s_cbranch_scc1 KC_S2")
        a("s_mov_b32 exec_lo, 0", "s_mov_b32 exec_hi, 0xffff0000")
        a(f"v_mov_b32 v20, v{VPR}", f"v_lshrrev_b32 v21, 16, v{VPR}")
        a("s_mov_b64 exec, -1")
        a("KC_S2:")
        for r in range(4): a(f"v_bfi_b32 v{20+r}, s{T1_}, v{20+r}, v{25 if r & 1 else VNT}")
        a(f"global_store_dwordx4 v24, v[20:23], s[{P_WS}:{P_WS+1}] sc1")
        stamp(a, 4)
        a("s_branch KS_G0")
        a("KC_RECV:")
        a(f"s_cmp_eq_u32 s{S_ROLE}, 3", f"s_cbranch_scc1 {ex}")
        a(f"s_lshl_b32 s{T0_}, s{S_CH}, 12", f"s_lshl_b32 s{T1_}, s{S_ROLE}, 10", f"s_add_u32 s{T0_}, s{T0_}, s{T1_}", f"s_add_u32 s{T0_}, s{T0_}, {hex(WS_KT - 512*4096)}", f"v_add_u32 v24, s{T0_}, v{VLN}")
        lds_wait(a, FL_NONCE, VNT, "nz", addr=VNA, sleep=2)
        a(f"v_lshlrev_b32 v25, 16, v{VNT}")
        stamp(a, 2)
        lds_wait(a, FL_G + {0: 0, 1: 4, 2: 16}[ENV("KTRIG", 1)], 17, "b4", sleep=2)
        lp = newlabel("KP"); l1 = newlabel("KPE")
        a(f"s_branch {l1}")
        a(f"{lp}:")
        a("s_sleep 2")
        a(f"{l1}:")
        a(f"global_load_dwordx4 v[20:23], v24, s[{P_WS}:{P_WS+1}] sc1")
        guard(a)
        a("s_waitcnt vmcnt(0)")
        for r in range(4): a(f"v_xor_b32 v{20+r}, v{25 if r & 1 else VNT}, v{20+r}")
        a("v_or3_b32 v26, v20, v21, v22", "v_or_b32 v26, v26, v23", "v_cmp_lt_u32 vcc, 0xffff, v26", f"s_cbranch_vccnz {lp}")
        stamp(a, 3)
        for r in (0, 2): a(f"v_xor_b32 v{20+r}, v{VNT}, v{20+r}")
        for r in range(4): a(f"ds_write_b16 v{IXR[r]}, v{20+r}")
        a(f"s_cmp_lg_u32 s{S_ROLE}, 2", f"s_cbranch_scc1 {ex}")
        a("v_and_b32 v20, 0xffff, v20", "v_lshl_or_b32 v20, v21, 16, v20", f"v_lshlrev_b32 v21, 16, v{VDSK}")
        a("s_mov_b32 exec_lo, 0", "s_mov_b32 exec_hi, 0x10000")
        a(f"ds_write_b64 v14, v[20:21] offset:{C_PAR}")
        a("s_mov_b64 exec, -1")
        a(f"s_branch {ex}")
    a(f"{jl[2]}:")
    anchor(G2, G2 + 2, 128); scale_cb()
    it([csq_(G1, G2), cm_(VD, CBR, G2, T + 4)]); csq(G3, G1); csq(G3, G3)
    it([cm_(VA, CBR, G3), cm_(VC, VD, G3, T + 4)])
    ce, co = VA, VC
    for r in range(4):
        ne, no = oth(ce, VA, VB), oth(co, VC, VD)
        it([cm_(ne, ce, G1)] + ([cm_(no, co, G1, T + 4)] if r < 3 else []), 2 * r, ce, co); ce, co = ne, no
    it([], 8, ce, None)
    a(f"v_mov_b32 v36, {f32(2048.0*LOG2E)}", f"v_mul_f32 v24, s{SM}, v36", "v_max_f32 v24, 0, v24", "v_exp_f32 v24, v24")
    it([])
    a(f"s_sub_u32 s{SIS}, s{SC}, 7", f"s_lshl_b32 s{SIS}, s{SIS}, 23")
    a(f"v_lshlrev_b32 v25, 16, v{VDSK}", f"v_mul_f32 v24, s{SIS}, v24", f"v_mov_b32 v{VPR}, v24")
    a(f"ds_write_b64 v14, v[24:25] offset:{C_PAR}")
    a(f"{jn}:")
    a(f"ds_write_b8 v15, v{VONE} offset:{FL_G}")
    stamp(a, 3); kstamp(a, 2)
    for s in range(8): a(f"ds_read_b128 v[{40+4*s}:{43+4*s}], v{VTL} offset:{64*s}")
    a(f"v_mov_b32 v36, {f32(LOG2E)}", f"v_mul_f32 v36, s{SM}, v36")
    a(f"v_mul_f32 v37, {f32(2048.0)}, v36", "v_max_f32 v37, 0, v37", f"v_add_f32 v37, {f32(23.0)}, v37")
    for r in range(4):
        a(f"v_fma_f32 v{LFR[r]}, v{LFR[r]}, v36, -v37")
    for r in range(4):
        a(f"v_exp_f32 v{LFR[r]}, v{LFR[r]}")
    kstamp(a, 3)
    lds_wait(a, FL_G + 3, 17, "u8", addr=14)
    kstamp(a, 4)
    tr = LdsTrack(a); ids = []
    for s in range(8):
        ids.append(tr.issue(f"ds_read_b128 v[{72+4*s}:{75+4*s}], v{VTE} offset:{KG_T[3]+64*s}"))
    for s in range(8):
        tr.wait(ids[s])
        c = "0" if s < 2 else f"v[{20+4*(s&1)}:{23+4*(s&1)}]"
        a(f"v_mfma_f32_16x16x32_f16 v[{20+4*(s&1)}:{23+4*(s&1)}], v[{40+4*s}:{43+4*s}], v[{72+4*s}:{75+4*s}], {c}")
    for r in range(4): a(f"v_add_f32 v{20+r}, v{20+r}, v{24+r}")
    for r in range(4): a(f"v_mul_f32 v{20+r}, v{20+r}, v{LFR[r]}")
    kstamp(a, 5)
    if KOFF: a(f"s_cmp_eq_u32 s{S_G}, 2", "s_cbranch_scc1 KC_SEND")
    for r in range(4):
        a(f"v_cvt_f16_f32 v{20+r}, v{20+r}")
        a(f"ds_write_b16 v{IXR[r]}, v{20+r}")
    a(f"{ex}:")
    a(f"ds_write_b8 v15, v{VONE} offset:{FL_G+4}")
    a("v_mov_b32 v28, 0", "v_mov_b32 v29, 0", "v_mov_b32 v30, 0", "v_mov_b32 v31, 0", f"v_mov_b32 v32, s{S_GB}")
    a("s_waitcnt vmcnt(0)")
    kstamp(a, 6)
    lds_wait(a, FL_G + 4, 20, "b4", addr=14)
    stamp(a, 4); kstamp(a, 7)
    for e in range(3): a(f"ds_read_u16 v{20+e}, v{I1+e}")
    for e in range(4): a(f"ds_read_u16 v{23+e}, v{I2+e}")
    a("s_mov_b64 exec, 1")
    a(f"ds_write_b128 v32, v[28:31] offset:{R_WS5}", f"ds_write_b128 v32, v[28:31] offset:{R_WS9}", f"ds_write_b128 v32, v[28:31] offset:{R_WS3 + 192*16}")
    a("s_mov_b64 exec, -1")
    a("s_waitcnt lgkmcnt(7)")
    a("v_lshl_or_b32 v28, v21, 16, v20", "v_lshl_or_b32 v29, v22, 16, v21")
    a(f"ds_write_b32 v{D1}, v28 offset:{T_DRE}", f"ds_write_b32 v{D1}, v29 offset:{T_DRO}")
    a("s_waitcnt lgkmcnt(5)")
    a("v_lshl_or_b32 v30, v24, 16, v23", "v_lshl_or_b32 v31, v26, 16, v25")
    a(f"ds_write_b32 v{D2}, v30", f"ds_write_b32 v{D3}, v31")
    a(f"ds_write_b8 v15, v{VONE} offset:{FL_G+8}")
    kstamp(a, 8)
    lds_wait(a, FL_G + 8, 20, "b4", addr=14)
    stamp(a, 5)
    PR, FT0, FT1, ACCL, ACCH, ZQ = 16, 18, 19, 20, 24, 28
    VZA, VUA = VDA, VDA2
    LA = ENV("CLA", 6); RSV = ENV("CRSV", 5); NF = ENV("CNF", 2)
    jl = [newlabel("CV") for _ in range(4)]; zend = newlabel("CVE")
    slow = []
    a(f"ds_read_b64 v[{PR}:{PR+1}], v14 offset:{C_PAR}")
    for r in range(1, 4): a(f"s_cmp_eq_u32 s{S_ROLE}, {r}", f"s_cbranch_scc1 {jl[r]}")
    for m in range(4):
        if m: a(f"{jl[m]}:")
        lo, hi = 2 * m, 2 * m + 1
        acc = {lo: ACCL, hi: ACCH}
        ops = []
        if m >= 2:
            for j in (lo, hi): ops.append((j, ("D", 32), ("U", 8 * j - 32)))
        for p in range(max(8 * lo - 16, -7), 8 * hi + 1):
            for j in (lo, hi):
                ks = 8 * j - p
                if 0 <= ks <= 16: ops.append((j, ("D", ks), ("U", p)))
        ncomb0 = len(ops)
        for j in (lo, hi):
            for kind in (3, 5):
                for b in range(6):
                    if 2 <= j - b <= 4: ops.append((j, ("W", kind, b), ("G", kind, j - b)))
            for kind in (7, 9):
                for b in range(2):
                    if j - 2 * b - 4 >= 0: ops.append((j, ("W", kind, b), ("G", kind, j - 2 * b - 4)))
        nops = len(ops)
        first, last = {}, {}
        for k, (j, A, B) in enumerate(ops):
            for key in (A, B):
                first.setdefault(key, k); last[key] = k
        lastlo = max(k for k, o in enumerate(ops) if o[0] == lo)
        pool = list(range(32, 128, 4))
        reg, lid = {}, {}
        def load(tr, key):
            rg = pool.pop(0); reg[key] = rg
            if (XP & 8 and key[0] == "G") or (XP & 16 and key[0] == "W") or (XP & 32 and key[0] == "U"):
                lid[key] = -100; return
            if key[0] == "D":
                ksv = -2 if key[1] == 32 else key[1]
                o = (16 - ksv) * 16
                ad, o = (VDA, o) if o + 3 <= 255 else (VDA2, o - 160)
                tr.issue(f"ds_read2_b32 v[{rg}:{rg+1}], v{ad} offset0:{o} offset1:{o+1}")
                lid[key] = tr.issue(f"ds_read2_b32 v[{rg+2}:{rg+3}], v{ad} offset0:{o+2} offset1:{o+3}")
            elif key[0] == "G":
                _, kind, ix = key
                if kind in (3, 5): o = (4 - ix) * 16 + (64 if kind == 5 else 0); ad = VG8
                else: o = (3 - ix) * 8 + (96 if kind == 9 else 0); ad = VG16
                tr.issue(f"ds_read2_b32 v[{rg}:{rg+1}], v{ad} offset0:{o} offset1:{o+1}")
                lid[key] = tr.issue(f"ds_read2_b32 v[{rg+2}:{rg+3}], v{ad} offset0:{o+2} offset1:{o+3}")
            elif key[0] == "U":
                lid[key] = tr.issue(f"ds_read_b128 v[{rg}:{rg+3}], v{VB_} offset:{64*(key[1]+7)}")
            else:
                _, kind, b = key
                if kind in (3, 5): o = (R_WS3 if kind == 3 else R_WS5) + 512 * b; ad, st = VT8, 64
                else: o = (R_WS7 if kind == 7 else R_WS9) + 1024 * b; ad, st = VT16, 128
                tr.issue(f"ds_read_b64_tr_b16 v[{rg}:{rg+1}], v{ad} offset:{o}")
                lid[key] = tr.issue(f"ds_read_b64_tr_b16 v[{rg+2}:{rg+3}], v{ad} offset:{o+st}")
        keys = sorted(first, key=lambda k_: first[k_])
        tr = LdsTrack(a)
        for key in keys:
            if key[0] == "D": load(tr, key)
        for key in keys:
            if key[0] == "G" and len(pool) > RSV: load(tr, key)
        pend = [k_ for k_ in keys if k_ not in reg]
        a(f"v_lshlrev_b32 v{FT0}, 3, v3", f"v_sub_u32 v{FT0}, v{VB_}, v{FT0}")
        a(f"v_lshrrev_b32 v{FT1}, 2, v2", f"v_lshl_add_u32 v{FT1}, v{FT1}, 2, v3", f"v_and_b32 v{ZQ}, 3, v2", f"v_lshlrev_b32 v{ZQ}, 4, v{ZQ}")
        a(f"v_lshlrev_b32 v{FT1}, s{CSH}, v{FT1}")
        a("s_waitcnt lgkmcnt(0)")
        a(f"v_mov_b32 v{VUA}, v{FT0}", f"v_add_u32 v{VZA}, v{FT1}, v{ZQ}")
        a(f"v_xor_b32 v{VLN}, s{CXR}, v{VLN}")
        lds_wait(a, FL_UF, FT0, "b4")
        a(f"s_setprio {eval(os.environ.get('CPRIO', '[1,1,1,1]'))[m]}")
        stamp(a, 6); cstamp(a, 1)
        if XP & 4: a(f"v_mov_b32 v{FT0}, 0", f"s_cmp_lg_u32 s{S_G}, 0", f"s_cbranch_scc1 {zend}")
        for key in lid: lid[key] = -100
        tr = LdsTrack(a)
        ud = {}
        fill = []
        fill.append(("lds", f"ds_read_b64 v[{ZQ}:{ZQ+1}], v{VUA} offset:{480 + 512*lo}", 2))
        fill.append(("ldsU", f"ds_read_b64 v[{ZQ+2}:{ZQ+3}], v{VUA} offset:{480 + 512*hi}", 2))
        for ti, j in enumerate((lo, hi)):
            fill.append(("alloc", j, 5))
            if ti == 0: fill.append(("waitU", None, 5))
            for e in range(4):
                sel = "op_sel:[1,0,0] " if e & 1 else ""
                fill.append(("f", (lambda j=j, e=e, ti=ti, sel=sel: f"v_fma_mix_f32 v{ud[j]+e}, v{ZQ+2*ti+e//2}, v{PR+1}, 0 {sel}op_sel_hi:[1,0,0]"), 5))
            for p in range(2):
                fill.append(("f", (lambda j=j, p=p, ti=ti: f"v_cvt_pk_bf16_f32 v{ZQ+2*ti+p}, v{ud[j]+2*p}, v{ud[j]+2*p+1}"), 5))
            for p in range(2):
                fill.append(("f", (lambda j=j, p=p, ti=ti: f"v_lshlrev_b32 v{ud[j]+2*p}, 16, v{ZQ+2*ti+p}"), 5))
                fill.append(("f", (lambda j=j, p=p, ti=ti: f"v_and_b32 v{ud[j]+2*p+1}, 0xffff0000, v{ZQ+2*ti+p}"), 5))
        def epi(j, ti):
            y = acc[j]; z = ZQ + 2 * ti; out = []
            for p in range(4): out.append(lambda p=p: f"v_mul_f32 v{y+p}, v{y+p}, v{PR}")
            for p in range(2): out.append(lambda p=p: f"v_cvt_pk_bf16_f32 v{z+p}, v{y+2*p}, v{y+2*p+1}")
            for p in range(2):
                out.append(lambda p=p: f"v_lshlrev_b32 v{y+2*p}, 16, v{z+p}")
                out.append(lambda p=p: f"v_and_b32 v{y+2*p+1}, 0xffff0000, v{z+p}")
            for p in range(4): out.append(lambda p=p: f"v_add_f32 v{y+p}, v{y+p}, v{ud[j]+p}")
            for p in range(2): out.append(lambda p=p: f"v_cvt_pk_bf16_f32 v{z+p}, v{y+2*p}, v{y+2*p+1}")
            for p in range(2): out.append(lambda p=p: f"v_min_u32 v{z+p}, -2, v{z+p}")
            return out
        for f in epi(lo, 0): fill.append(("f", f, lastlo + 2))
        fill.append(("lds", f"ds_read_u8 v{FT0}, v{VZ} offset:{FL_S6 + m}", nops - 4))
        fill.append(("lds", f"ds_read_b128 v[{ACCL}:{ACCL+3}], v{VLN} offset:{G_BASE + R_RED + 1024*m}", nops - 4))
        uid = [None]
        def do_fill(n, k):
            while n > 0 and fill:
                kind, t, e = fill[0]
                if e > k: return
                if kind == "alloc":
                    if len(pool) < 2: return
                    ud[t] = pool.pop(); fill.pop(0); continue
                fill.pop(0)
                if kind == "f":
                    if XP & 2 and "v_min" not in t(): continue
                    a(t())
                elif kind == "lds": tr.issue(t)
                elif kind == "ldsU": uid[0] = tr.issue(t)
                elif kind == "waitU": tr.wait(uid[0]); continue
                n -= 1
        kW = ncomb0 - LA if nops > ncomb0 else None
        wok = [False]
        def issue_loads(k, nmax):
            while pend and pool and nmax > 0:
                key = pend[0]
                if first[key] - k > (LA if key[0] != "G" else LA + 4): return
                if key[0] == "W" and not wok[0]:
                    alt = [x for x in pend if x[0] != "W" and first[x] - k <= LA + 2]
                    if not alt: return
                    key = alt[0]
                pend.remove(key); load(tr, key); nmax -= 1
        issue_loads(0, RSV)
        started = set()
        for k, (j, A, B) in enumerate(ops):
            assert A in reg and B in reg, (m, k, A, B)
            tr.wait(max(lid[A], lid[B]))
            c = f"v[{acc[j]}:{acc[j]+3}]" if j in started else "0"
            started.add(j)
            a(f"v_mfma_f32_16x16x32_f16 v[{acc[j]}:{acc[j]+3}], v[{reg[A]}:{reg[A]+3}], v[{reg[B]}:{reg[B]+3}], {c}")
            for key in (A, B):
                if last[key] == k: pool.append(reg[key])
            if kW is not None and k == kW - 3:
                wfid = tr.issue(f"ds_read_b32 v{FT0}, v14 offset:{FL_G + 12}")
            if k == kW:
                tr.wait(wfid)
                sl = newlabel("WS"); bk = newlabel("WB")
                a(f"v_cmp_ne_u32 vcc, s{S_ONES}, v{FT0}", f"s_cbranch_vccnz {sl}")
                a(f"{bk}:")
                slow.append((sl, bk))
                wok[0] = True
                cstamp(a, 3)
            issue_loads(k + 1, 2)
            do_fill(NF, k)
            if k == ncomb0 // 2: cstamp(a, 2)
            if k == ncomb0 - 1: cstamp(a, 4)
        cstamp(a, 5)
        do_fill(1000, 1000)
        assert not fill and not pend
        stamp(a, 7)
        for f in epi(hi, 1): a(f())
        if m < 3: a(f"s_branch {zend}")
    a(f"{zend}:")
    cstamp(a, 6)
    gA = newlabel("ZA"); gC = newlabel("ZC"); zs = newlabel("ZS"); zb = newlabel("ZB"); zc = newlabel("ZCB"); zd = newlabel("ZD")
    a("s_waitcnt lgkmcnt(0)")
    a(f"s_cmp_lg_u32 s{S_G}, 1", f"s_cbranch_scc1 {gA}")
    a(f"v_cmp_ne_u32 vcc, 1, v{FT0}", f"s_cbranch_vccnz {zs}")
    a(f"{zb}:")
    a(f"s_mov_b64 exec, s[{CM}:{CM+1}]")
    for k in range(4): a(f"v_swap_b32 v{ZQ+k}, v{ACCL+k}")
    a("s_mov_b64 exec, -1")
    cstamp(a, 8)
    a(f"buffer_store_dwordx4 v[{ZQ}:{ZQ+3}], v{VZA}, s[{R0}:{R0+3}], s{CZ1} offen sc1")
    a(f"buffer_store_dwordx4 v[{ACCL}:{ACCL+3}], v{VZA}, s[{R0}:{R0+3}], s{CZ0} offen sc1")
    a(f"s_branch {zd}")
    for (sl, bk) in slow:
        a(f"{sl}:")
        lds_wait(a, FL_G + 12, FT0, "b4", addr=14)
        a(f"s_branch {bk}")
    a(f"{zs}:")
    a(f"v_mov_b32 v{FT1}, s{S_ROLE}")
    l = newlabel("ZW")
    a(f"{l}:")
    a(f"ds_read_u8 v{FT0}, v{FT1} offset:{FL_S6}")
    guard(a)
    a("s_waitcnt lgkmcnt(0)")
    a(f"v_cmp_ne_u32 vcc, 1, v{FT0}", f"s_cbranch_vccnz {l}")
    a(f"v_lshl_add_u32 v{FT1}, v{FT1}, 10, v{VLN}")
    a(f"ds_read_b128 v[{ACCL}:{ACCL+3}], v{FT1} offset:{G_BASE + R_RED}")
    a("s_waitcnt lgkmcnt(0)")
    a(f"s_branch {zb}")
    a(f"{gA}:")
    a(f"s_cmp_lg_u32 s{S_G}, 0", f"s_cbranch_scc1 {gC}")
    a(f"v_mov_b32 v{FT1}, s{S_ROLE}", f"v_lshl_add_u32 v{FT0}, v{FT1}, 10, v{VLN}")
    a(f"ds_write_b128 v{FT0}, v[{ZQ}:{ZQ+3}] offset:{G_BASE + R_RED}")
    a(f"ds_write_b8 v{FT1}, v{VONE} offset:{FL_S6}")
    cstamp(a, 8)
    a(f"s_branch {zd}")
    a(f"{gC}:")
    cstamp(a, 8)
    a(f"buffer_store_dwordx4 v[{ZQ}:{ZQ+3}], v{VZA}, s[{R0}:{R0+3}], s{CZ0} offen sc1")
    a(f"{zd}:")
    stamp(a, 8)
    if DBG:
        a(f"s_mul_i32 s{T0_}, s{S_ROLE}, 1280", f"s_add_u32 s{T1_}, s{T0_}, s{S_GB}", f"v_lshl_add_u32 v20, v1, 2, s{T1_}")
        a(f"s_mul_i32 s{T1_}, s{S_CH}, 5376", f"s_add_u32 s{T1_}, s{T1_}, s{T0_}", f"s_add_u32 s{T1_}, s{T1_}, {hex(WS_DBG)}", f"v_lshl_add_u32 v21, v1, 2, s{T1_}")
        for k in range(5 + 1):
            a(f"ds_read_b32 v22, v20 offset:{R2 + 256*k}", "s_waitcnt lgkmcnt(0)", f"global_store_dword v21, v22, s[{P_WS}:{P_WS+1}] offset:{256*k}")
        a(f"ds_read_b32 v22, v14 offset:{C_PAR}", f"s_lshl_b32 s{T1_}, s{S_CH}, 2", f"s_add_u32 s{T1_}, s{T1_}, {hex(WS_DBG + 0x300000)}", f"v_mov_b32 v21, s{T1_}")
        a("s_waitcnt lgkmcnt(0)", f"global_store_dword v21, v22, s[{P_WS}:{P_WS+1}]")
    a(f"s_lshl_b32 s{T0_}, s{S_G}, 2", f"s_add_u32 s{T0_}, s{T0_}, s{S_ROLE}", f"v_mov_b32 v8, s{T0_}")
    a("s_waitcnt vmcnt(0)")
    a(f"ds_write_b8 v8, v{VONE} offset:{FL_ZDONE}")


def gen_wjobs(a):
    WA, WD = 10, 11
    end = newlabel("WJE"); w1 = newlabel("WJ1"); w2 = newlabel("WJ2")
    a(f"s_cmp_eq_u32 s{S_WAVE}, 2", f"s_cbranch_scc1 {w2}")
    if XP & 1: a(f"s_branch {w2}")
    a(f"s_add_u32 s{T0_}, s{S_WAVE}, 1", f"s_lshr_b32 s{T0_}, s{T0_}, 2", f"s_cmp_eq_u32 s{S_WAVE}, 1", f"s_cselect_b32 s{T0_}, 2, s{T0_}", f"s_lshl_b32 s{T0_}, s{T0_}, 10")
    a(f"v_lshl_add_u32 v{WA}, v1, 4, s{T0_}", f"v_add_u32 v{WD}, {G_BASE}, v{WA}")
    lds_wait(a, FL_UF, 12, "b4")
    a(f"s_setprio {ENV('WPRIO', 3)}")
    for g in range(3):
        E = 20 + 12 * g; o = C_U + U_SIZE * g + 2 * (240 - 16)
        a(f"ds_read_b128 v[{E}:{E+3}], v{WA} offset:{o}", f"ds_read_b128 v[{E+4}:{E+7}], v{WA} offset:{o+16}", f"ds_read_b64 v[{E+8}:{E+9}], v{WA} offset:{o+32}")
    a(f"s_cmp_eq_u32 s{S_WAVE}, 1", f"s_cbranch_scc1 {w1}")
    for full in (1, 0):
        if not full: a(f"{w1}:")
        for g in range(3):
            if g == 2: a(f"s_cmp_lt_u32 s{S_I}, 24", f"s_cbranch_scc1 {end}")
            E = lambda i: 20 + 12 * g + i
            O = lambda i: 56 + i
            T = lambda i: 65 + i
            Q = lambda i: 72 + i
            X = lambda i: 79 + i
            Y = lambda i: 85 + i
            W7, W9 = 92, 96
            a(f"ds_read_b32 v12, v{VZ} offset:{FL_G + 16*g + 4}")
            if g == 0: a("s_waitcnt lgkmcnt(7)")
            n = 8 if full else 7
            for i in range(1, n + 1): a(f"v_alignbit_b32 v{O(i)}, v{E(i+1)}, v{E(i)}, 16")
            for i in range(1, n + 1): a(f"v_pk_add_f16 v{T(i)}, v{O(i)}, v{E(i+1)}")
            for i in range(1, 5): a(f"v_pk_add_f16 v{X(i)}, v{T(i)}, v{O(i+1)}")
            for i in (range(2, 8) if full else range(3, 7)): a(f"v_pk_add_f16 v{Q(i)}, v{T(i)}, v{T(i+1)}")
            ok = newlabel("WJK")
            a("s_waitcnt lgkmcnt(0)")
            a(f"v_cmp_eq_u32 vcc, s{S_ONES}, v12", f"s_cbranch_vccnz {ok}")
            lds_wait(a, FL_G + 16 * g + 4, 12, "b4", sleep=1)
            a(f"{ok}:")
            off = G_SIZE * (g & 1)
            if g == 2: a(f"v_add_u32 v{WD}, {2*G_SIZE}, v{WD}")
            a(f"ds_write_b128 v{WD}, v[{X(1)}:{X(4)}] offset:{off + R_WS3}")
            for i in (range(2, 7) if full else range(3, 7)): a(f"v_pk_add_f16 v{Y(i)}, v{E(i)}, v{Q(i)}")
            a(f"ds_write_b128 v{WD}, v[{Y(3)}:{Y(6)}] offset:{off + R_WS5 + 16}")
            if full:
                for i in range(5, 8): a(f"v_pk_add_f16 v{X(i)}, v{T(i)}, v{O(i+1)}")
                for k in range(4): a(f"v_pk_add_f16 v{W7+k}, v{Q(2+k)}, v{X(4+k)}")
                a(f"ds_write_b128 v{WD}, v[{W7}:{W7+3}] offset:{off + R_WS7}")
                for k in range(4): a(f"v_pk_add_f16 v{W9+k}, v{Y(2+k)}, v{Q(4+k)}")
                a(f"ds_write_b128 v{WD}, v[{W9}:{W9+3}] offset:{off + R_WS9 + 16}")
            a(f"ds_write_b8 v116, v{VONE} offset:{FL_G + 16*g + 12}")
        a(f"s_branch {end}")
    a(f"{w2}:")
    for g in range(3): a(f"ds_write_b8 v116, v{VONE} offset:{FL_G + 16*g + 12}")
    if PF2 > PF1 or PFD:
        W2 = ENV("PF2W", 14)
        a(f"s_sub_u32 s{T2_}, s{S_I}, 18", f"s_cmp_ge_u32 s{T2_}, {W2}", f"s_cbranch_scc1 {end}")
        pf_lane(a, 100, 101)
        lds_wait(a, FL_UF, 12, "b4", sleep=1)
        if PF2 > PF1:
            pf_gu(a, 100, T2_, W2, PF1, PF2, 102, "KS_PF2D")
            a("KS_PF2D:")
        if PFD:
            a(f"s_sub_u32 s{T2_}, {W2-1}, s{T2_}")
            pf_down(a, T2_, W2, 0, PFD, 100, 120, end)
    a(f"{end}:")

def gen(a):
    label = NAME + "_kernel"
    a(f".globl {label}", ".p2align 8", f".type {label},@function", f"{label}:")
    a("s_cmp_ge_u32 s2, 256", "s_cbranch_scc1 KS_END")
    stamp_begin(a)
    a("s_load_dwordx16 s[4:19], s[0:1], 0", "s_load_dwordx16 s[20:35], s[0:1], 64", f"s_load_dwordx2 s[{P_WS}:{P_WS+1}], s[0:1], 128")
    a(f"v_readfirstlane_b32 s{S_WAVE}, v0", f"s_lshr_b32 s{S_WAVE}, s{S_WAVE}, 6")
    a(f"s_and_b32 s{S_XC}, s2, 7", f"s_lshr_b32 s{S_I}, s2, 3")
    if ENV("REMAP", 1):
        a(f"s_add_u32 s{T0_}, s{S_WAVE}, 8", f"s_sub_u32 s{T1_}, s{S_WAVE}, 4", f"s_cmp_lt_u32 s{S_WAVE}, 8", f"s_cselect_b32 s{T0_}, s{T0_}, s{T1_}")
        a(f"s_cmp_lt_u32 s{S_WAVE}, 4", f"s_cselect_b32 s{S_WAVE}, s{S_WAVE}, s{T0_}")
    a("v_and_b32 v1, 63, v0", "v_and_b32 v2, 15, v1", "v_lshrrev_b32 v3, 4, v1", f"v_mov_b32 v{VZ}, 0", f"v_mov_b32 v{VONE}, 1")
    a(f"s_mov_b32 s{S_GUARD}, {GUARD}", f"s_mov_b32 s{S_ONES}, 0x01010101")
    a(f"s_lshl_b32 s{S_B2}, s{S_XC}, 5", f"s_add_u32 s{S_B2}, s{S_B2}, s{S_I}")
    a(f"s_mul_i32 s{S_BLK}, s{S_XC}, 18", f"s_add_u32 s{S_BLK}, s{S_BLK}, s{S_I}")
    a(f"s_cmp_lt_u32 s{S_WAVE}, 4", "s_cbranch_scc1 KS_L")
    a(f"s_cmp_ge_u32 s{S_WAVE}, 12", "s_cbranch_scc1 KS_X")
    a("s_setprio 2")
    a(f"s_lshr_b32 s{S_G}, s{S_WAVE}, 2", f"s_sub_u32 s{S_G}, s{S_G}, 1")
    a(f"s_mul_i32 s{S_ROLE}, s{S_G}, 3", f"s_xor_b32 s{S_ROLE}, s{S_ROLE}, s{S_WAVE}", f"s_and_b32 s{S_ROLE}, s{S_ROLE}, 3")
    a(f"s_lshl_b32 s{S_CH}, s{S_B2}, 1", f"s_add_u32 s{S_CH}, s{S_CH}, s{S_G}")
    a(f"s_lshl_b32 s{T0_}, s{S_ROLE}, 11", f"s_add_u32 s{T0_}, s{T0_}, {C_STG}", f"v_lshl_add_u32 v28, v1, 3, s{T0_}")
    pre_ixlf(a)
    a("KS_GRP:")
    gen_group(a)
    a(f"s_cmp_lt_u32 s{S_I}, 18", "s_cbranch_scc1 KS_T")
    a("s_waitcnt lgkmcnt(0)")
    endwave(a)
    a("KS_X:")
    a(f"s_cmp_lt_u32 s{S_I}, 24", "s_cbranch_scc1 KS_X2")
    a(f"s_setprio {ENV('KCPRIO', 2)}")
    a("KS_XC:")
    a(f"s_mov_b32 s{S_G}, 2", f"s_add_u32 s{S_ROLE}, s{S_WAVE}, 3", f"s_and_b32 s{S_ROLE}, s{S_ROLE}, 3")
    a(f"s_lshl_b32 s{S_CH}, s{S_XC}, 3", f"s_and_b32 s{T0_}, s{S_I}, 7", f"s_add_u32 s{S_CH}, s{S_CH}, s{T0_}", f"s_add_u32 s{S_CH}, s{S_CH}, 512")
    a(f"s_lshl_b32 s{T0_}, s{S_ROLE}, 11", f"s_add_u32 s{T0_}, s{T0_}, {C_STG}", f"v_lshl_add_u32 v28, v1, 3, s{T0_}")
    a("s_branch KS_GRP")
    a("KS_X2:")
    a(f"s_cmp_lt_u32 s{S_I}, 8", "s_cbranch_scc1 KS_X3")
    a(f"s_sub_u32 s{T5_}, s{S_WAVE}, 8")
    a("s_branch KS_LN1")
    a("KS_X3:")
    a(f"s_lshl_b32 s{T0_}, s2, 4", f"s_add_u32 s{T0_}, s{T0_}, s{S_WAVE}", f"s_cmp_lg_u32 s{T0_}, {16*ENV('NPUB', 2) + 12}", "s_cbranch_scc1 KS_X3B")
    a("s_setprio 3")
    a(f"s_memrealtime s[{T0_}:{T1_}]")
    a("v_and_b32 v6, 3, v1", "v_lshlrev_b32 v7, 2, v6", "v_min_u32 v6, 2, v6", "v_lshlrev_b32 v6, 2, v6", "v_cmp_eq_u32 vcc, 3, v1")
    a("s_waitcnt lgkmcnt(0)")
    a(f"v_mov_b32 v8, s{T0_}", f"v_mov_b32 v9, s{T1_}", "v_alignbit_b32 v8, v8, v8, v6", f"v_cndmask_b32 v9, v{VZ}, v9, vcc", "v_xor_b32 v8, v8, v9")
    a("v_and_b32 v9, 0xf0000fff, v8", "v_and_b32 v10, 0xfff000, v8", "v_lshl_or_b32 v9, v10, 4, v9", "v_lshrrev_b32 v10, 12, v8", "v_and_b32 v10, 0xf000, v10")
    a("v_or3_b32 v9, v9, v10, v9", "v_or_b32 v9, 0x80000000, v9")
    a("s_mov_b64 exec, 15")
    a(f"global_store_dword v7, v9, s[{P_DBG}:{P_DBG+1}] sc1")
    if SPIN: a(f"v_mov_b32 v8, s{T0_}", f"global_store_dword v7, v8, s[{P_DBG}:{P_DBG+1}] offset:64 sc1")
    a("s_mov_b64 exec, -1")
    a("s_setprio 0")
    a("KS_X3B:")
    if KOFF:
        a(f"s_setprio {ENV('KPPRIO', 3)}")
        a("s_branch KS_XC")
    a("s_waitcnt lgkmcnt(0)")
    a("s_barrier")
    a("s_branch KS_G")
    a("KS_X4:")
    a(f"s_cmp_lt_u32 s{S_I}, 18", "s_cbranch_scc1 KS_G")
    a("s_waitcnt vmcnt(0) lgkmcnt(0)")
    endwave(a)
    a("KS_L:")
    a("v_lshlrev_b32 v6, 2, v0", f"ds_write_b32 v6, v{VZ}")
    a("v_mov_b32 v8, 0", "v_mov_b32 v9, 0", f"s_min_u32 s{T0_}, s{S_WAVE}, 2", f"s_mul_i32 s{T0_}, s{T0_}, {U_SIZE}", "v_min_u32 v6, 59, v1", f"v_lshl_add_u32 v6, v6, 3, s{T0_}")
    a(f"ds_write_b64 v6, v[8:9] offset:{C_U}")
    a(f"s_mov_b32 s{T5_}, s{S_WAVE}")
    a(f"s_sub_u32 s{T0_}, s{S_I}, 8", f"s_cmp_lt_u32 s{T0_}, 16", "s_cbranch_scc0 KS_L0")
    a("KS_LN1:")
    a("s_setprio 3")
    gen_ln1(a)
    if NLL:
        if not NL: pf_lane(a, 46, 47)
        a(f"s_lshl_b32 s{T2_}, s{S_WAVE}, 4", f"s_add_u32 s{T2_}, s{T2_}, s{S_I}", f"s_sub_u32 s{T2_}, s{T2_}, 8")
        pf_gu(a, 46, T2_, 64, 16 * NL + 16 * NE, PF0, 47, "KS_LLE")
        a("KS_LLE:")
    a(f"s_mov_b32 s{S_G}, 1")
    a("s_branch KS_L2B")
    a("KS_L0:")
    a(f"s_and_b32 s{T0_}, s{S_I}, 15", f"s_lshl_b32 s{T1_}, s{S_XC}, 4", f"s_add_u32 s{T0_}, s{T0_}, s{T1_}")
    a("v_and_b32 v59, 3, v1", "v_lshlrev_b32 v59, 2, v59")
    a(f"s_lshl_b32 s{T4_}, s{T0_}, 6", f"s_add_u32 s{T1_}, s{T4_}, {hex(WS_FLAG1)}", f"v_add_u32 v7, s{T1_}, v59")
    a(f"s_mul_i32 s{T1_}, s{T0_}, {CLR_WG}", f"s_add_u32 s{T1_}, s{T1_}, {hex(WS_CLR)}")
    a("v_lshlrev_b32 v6, 4, v0")
    a("v_mov_b32 v12, -1", "v_mov_b32 v13, -1", "v_mov_b32 v14, -1", "v_mov_b32 v15, -1")
    a("s_setprio 3")
    pf_lane(a, 16, 17)
    a("s_waitcnt lgkmcnt(0)")
    a(f"s_add_u32 s{R1}, s{P_WS}, s{T1_}", f"s_addc_u32 s{R1+1}, s{P_WS+1}, 0", f"s_mov_b32 s{R1+2}, {CLR_WG}", f"s_mov_b32 s{R1+3}, 0x20000")
    a("s_barrier")
    if NE:
        a(f"s_and_b32 s{T2_}, s{S_I}, 15", f"s_lshl_b32 s{T3_}, s{S_WAVE}, 4", f"s_add_u32 s{T2_}, s{T2_}, s{T3_}")
        pf_gu(a, 16, T2_, 64, 16 * NL, 16 * NL + 16 * NE, 18, "KS_L1E")
        a("KS_L1E:")
    if ENV("CTRIG", 1): lds_wait(a, FL_PARAM, 8, "nz", sleep=2)
    for k in range(5):
        a(f"s_movk_i32 s{T0_}, {4096*k}")
        a(f"buffer_store_dwordx4 v[12:15], v6, s[{R1}:{R1+3}], s{T0_} offen sc1")
    stamp(a, 1)
    a(f"global_load_dword v58, v59, s[{P_DBG}:{P_DBG+1}] sc1")
    dbg_wait(a, 0)
    stamp(a, 2)
    a(f"ds_write_b32 v59, v58 offset:{FL_NONCE}")
    a("s_mov_b64 exec, 1")
    a(f"ds_add_rtn_u32 v8, v{VZ}, v{VONE} offset:{FL_LNACK}")
    a("s_mov_b64 exec, -1")
    for d in range(1, 4): a(f"v_lshrrev_b32 v{58-d}, {3*d}, v58")
    a("s_waitcnt lgkmcnt(0)")
    a(f"v_readfirstlane_b32 s{T0_}, v8")
    a(f"s_cmp_lg_u32 s{T0_}, 3", "s_cbranch_scc1 KS_L2")
    a("s_mov_b64 exec, 15")
    a(f"global_store_dword v7, v58, s[{P_WS}:{P_WS+1}] sc1")
    a("s_mov_b64 exec, -1")
    a(f"s_and_b32 s{T2_}, s{S_I}, 7")
    a(f"s_cmp_ge_u32 s{S_I}, 8", "s_cbranch_scc1 KS_L1C")
    if NN:
        a("s_setprio 0")
        lds_wait(a, FL_G + 32 + 4, 8, "b4", sleep=2)
        a("s_setprio 3")
        pf_gu(a, 16, T2_, 8, PF0, PF0 + 8 * NN, 18, "KS_L2")
    a("s_branch KS_L2")
    a("KS_L1C:")
    if NC: pf_gu(a, 16, T2_, 8, PF0 + 8 * NN, PF1, 18, "KS_L2")
    a("KS_L2:")
    a(f"s_mov_b32 s{S_G}, 0")
    a("KS_L2B:")
    srd(a, R0, P_WS, XBYTES, WS_UT)
    a("v_lshrrev_b32 v7, 1, v1", "v_lshlrev_b32 v7, 6, v7", "v_and_b32 v10, 1, v1", "v_lshl_add_u32 v7, v10, 4, v7", "v_lshlrev_b32 v9, 4, v1")
    a(f"s_lshl_b32 s{T0_}, s{S_WAVE}, 11", f"s_lshl_b32 s{T1_}, s{S_B2}, 13", f"s_add_u32 s{T1_}, s{T1_}, s{T0_}")
    a(f"s_lshl_b32 s{T3_}, s{S_XC}, 3", f"s_add_u32 s{T3_}, s{T3_}, s{S_I}", f"s_add_u32 s{T3_}, s{T3_}, {512 - 24}")
    a(f"s_lshr_b32 s{T4_}, s{T3_}, 1", f"s_lshl_b32 s{T4_}, s{T4_}, 13", f"s_and_b32 s{T3_}, s{T3_}, 1", f"s_lshl_b32 s{T3_}, s{T3_}, 5")
    a(f"s_add_u32 s{T3_}, s{T3_}, s{T4_}", f"s_add_u32 s{T3_}, s{T3_}, s{T0_}")
    a(f"s_cmp_lt_u32 s{S_I}, 24", f"s_cselect_b32 s{T3_}, {XBYTES}, s{T3_}", f"s_cselect_b32 s{T2_}, 0, {hex(TAGM)}")
    a(f"v_mov_b32_dpp v64, v58 quad_perm:[0,1,0,1] {DPPM}", f"v_mov_b32_dpp v65, v58 quad_perm:[2,3,2,3] {DPPM}")
    a(f"s_bitcmp1_b32 s{S_I}, 0", "s_cselect_b64 vcc, -1, 0", "v_cndmask_b32 v64, v64, v65, vcc")
    for d in range(4): a(f"v_and_b32 v{60+d}, {hex(TAGM)}, v{58-d}")
    for d in range(3, 0, -1): a(f"v_lshrrev_b32 v{64+d}, {3*d}, v64")
    for d in range(4): a(f"v_and_b32 v{64+d}, s{T2_}, v{64+d}")
    a(f"s_lshl_b32 s{T4_}, s{S_WAVE}, 10", f"s_add_u32 s{T4_}, s{T4_}, {C_U + 480}")
    a("v_bfe_u32 v11, v1, 1, 1", f"v_mul_u32_u24 v11, {U_SIZE}, v11", "v_lshl_add_u32 v11, v10, 4, v11", "v_lshrrev_b32 v10, 2, v1", "v_lshl_add_u32 v11, v10, 5, v11", f"v_add_u32 v11, s{T4_}, v11")
    a(f"v_add_u32 v10, s{T4_}, v9")
    a(f"v_mov_b32 v116, s{S_WAVE}")
    a(f"s_add_u32 s{T0_}, s{T0_}, {hex(WS_FLAG1)}", "v_lshrrev_b32 v12, 2, v1", "v_lshl_add_u32 v12, v12, 6, v59", f"v_add_u32 v12, s{T0_}, v12")
    a(f"s_cmp_eq_u32 s{S_G}, 0", "s_cbranch_scc1 KS_L2C")
    a("s_waitcnt vmcnt(0)")
    a("s_branch KS_L2D")
    a("KS_L2C:")
    if ENV("UTRIG", 1):
        a("s_setprio 0")
        lds_wait(a, FL_G + {1: 4, 2: 16, 3: 16 + 4, 4: 16 + 8, 5: 8, 6: 0}[ENV("UTRIG", 1)], 8, "b4", sleep=2)
        a("s_setprio 3")
    a("KS_L2D:")
    stamp(a, 5)
    if ENV("UDELAY", 0): a(f"s_sleep {ENV('UDELAY', 0)}")
    lp = newlabel("UP"); l1 = newlabel("UPE")
    a(f"s_branch {l1}")
    a(f"{lp}:")
    a(f"s_sleep {ENV('USLEEP', 2)}")
    a(f"{l1}:")
    UM = os.environ.get("UMOD", "sc1").replace("_", " ")
    a(f"global_load_dword v32, v12, s[{P_WS}:{P_WS+1}] sc1", f"global_load_dword v33, v12, s[{P_WS}:{P_WS+1}] offset:1024 sc1")
    a(f"buffer_load_dwordx4 v[20:23], v9, s[{R0}:{R0+3}], s{T1_} offen {UM}")
    a(f"buffer_load_dwordx4 v[24:27], v9, s[{R0}:{R0+3}], s{T1_} offen offset:1024 {UM}")
    a(f"buffer_load_dwordx4 v[28:31], v7, s[{R0}:{R0+3}], s{T3_} offen {UM}")
    guard(a)
    for k in range(3):
        a(f"s_waitcnt vmcnt({2-k})")
        if k == 0: a("v_xor_b32 v32, v58, v32", "v_xor_b32 v33, v58, v33")
        for d in range(4): a(f"v_xor_b32 v{20+4*k+d}, v{(64 if k == 2 else 60)+d}, v{20+4*k+d}")
        a(f"v_or3_b32 v44, v{20+4*k}, v{21+4*k}, v{44 if k else 21}", f"v_or3_b32 v44, v{22+4*k}, v{23+4*k}, v44")
    a(f"v_and_b32 v44, {hex(TAGM)}, v44", "v_or3_b32 v44, v44, v32, v33", "v_cmp_ne_u32 vcc, 0, v44", f"s_cbranch_vccnz {lp}")
    stamp(a, 6)
    a("ds_write_b128 v11, v[20:23]", "ds_write_b128 v11, v[24:27] offset:512", f"ds_write_b128 v10, v[28:31] offset:{2*U_SIZE}")
    a(f"ds_write_b8 v116, v{VONE} offset:{FL_UF}")
    stamp(a, 7)
    gen_wjobs(a)
    a("s_setprio 0")
    a(f"s_lshr_b32 s{T0_}, s{S_B2}, 6", f"s_lshl_b32 s{T0_}, s{T0_}, 9")
    a(f"s_bfe_u32 s{T1_}, s{S_B2}, 0x20004", f"s_lshl_b32 s{T1_}, s{T1_}, 6", f"s_add_u32 s{T0_}, s{T0_}, s{T1_}")
    a(f"s_and_b32 s{T1_}, s{S_B2}, 3", f"s_lshl_b32 s{T1_}, s{T1_}, 4", f"s_add_u32 s{T0_}, s{T0_}, s{T1_}")
    a(f"s_and_b32 s{T1_}, s{S_B2}, 12", f"s_add_u32 s{T0_}, s{T0_}, s{T1_}")
    a(f"s_lshr_b32 s{T1_}, s{S_WAVE}, 1", f"s_lshl_b32 s{T1_}, s{T1_}, 8", f"s_add_u32 s{T0_}, s{T0_}, s{T1_}")
    a(f"s_and_b32 s{T1_}, s{S_WAVE}, 1", f"s_lshl_b32 s{T1_}, s{T1_}, 1", f"s_add_u32 s{T0_}, s{T0_}, s{T1_}")
    a("v_lshrrev_b32 v113, 5, v1", "v_and_b32 v114, 31, v1")
    a(f"v_add_u32 v112, s{T0_}, v113")
    a("v_mul_u32_u24 v115, 1152, v112", "v_lshl_add_u32 v8, v114, 2, v115", "v_lshl_add_u32 v115, v114, 4, v115", "v_lshlrev_b32 v7, 2, v114", "v_lshlrev_b32 v6, 4, v114")
    a(f"v_bfe_u32 v111, v1, 3, 1", f"v_add_u32 v111, s{T0_}, v111", "v_mul_u32_u24 v111, 1152, v111", "v_and_b32 v9, 7, v1", "v_lshl_add_u32 v111, v9, 4, v111")
    srd(a, R0, P_X, XBYTES)
    srd(a, R1, P_WR, 1152)
    a(f"buffer_load_dwordx4 v[10:13], v115, s[{R0}:{R0+3}], 0 offen")
    a(f"buffer_load_dwordx4 v[14:17], v115, s[{R0}:{R0+3}], 0 offen offset:512")
    a(f"buffer_load_dword v18, v8, s[{R0}:{R0+3}], 0 offen offset:1024")
    a(f"buffer_load_dwordx4 v[50:53], v6, s[{R1}:{R1+3}], 0 offen")
    a(f"buffer_load_dwordx4 v[54:57], v6, s[{R1}:{R1+3}], 0 offen offset:512")
    a(f"buffer_load_dword v58, v7, s[{R1}:{R1+3}], 0 offen offset:1024")
    if not PTAG:
        a(f"s_cmp_lt_u32 s{S_I}, 18", "s_cbranch_scc1 KS_L4")
        a(f"s_mul_i32 s{T0_}, s{S_XC}, 14", f"s_add_u32 s{T0_}, s{T0_}, s{S_I}", f"s_mul_i32 s{T0_}, s{T0_}, {CLRP_WG}", f"s_add_u32 s{T0_}, s{T0_}, {hex(WS_PART - 18*CLRP_WG)}")
        a(f"s_add_u32 s{R1}, s{P_WS}, s{T0_}", f"s_addc_u32 s{R1+1}, s{P_WS+1}, 0", f"s_mov_b32 s{R1+2}, {CLRP_WG}", f"s_mov_b32 s{R1+3}, 0x20000")
        a("v_lshlrev_b32 v6, 4, v0", "v_mov_b32 v60, -1", "v_mov_b32 v61, -1", "v_mov_b32 v62, -1", "v_mov_b32 v63, -1")
        for k in range(6):
            a(f"s_movk_i32 s{T0_}, {4096*k}")
            a(f"buffer_store_dwordx4 v[60:63], v6, s[{R1}:{R1+3}], s{T0_} offen sc1")
    a("KS_L4:")
    srd(a, R0, P_WS, 0x240000, WS_ZB1)
    srd(a, R1, P_OUT, XBYTES)
    srd(a, R2_, P_WS, XBYTES, WS_X2)
    srd(a, R3, P_WS, 12288, WS_KEYS)
    a(f"s_not_b32 s{T1_}, s{S_B2}", f"v_xor_b32 v8, s{T1_}, v0")
    a("v_lshrrev_b32 v6, 1, v0", "v_lshlrev_b32 v6, 6, v6", "v_and_b32 v8, 1, v8", "v_lshl_add_u32 v6, v8, 4, v6")
    a(f"s_lshr_b32 s{T0_}, s{S_B2}, 2", f"s_lshl_b32 s{T0_}, s{T0_}, 15", f"s_and_b32 s{T1_}, s{S_B2}, 1", f"s_lshl_b32 s{T1_}, s{T1_}, 14", f"s_add_u32 s{T0_}, s{T0_}, s{T1_}")
    a(f"s_and_b32 s{T1_}, s{S_B2}, 2", f"s_lshl_b32 s{T1_}, s{T1_}, 4", f"s_add_u32 s{T0_}, s{T0_}, s{T1_}")
    a(f"s_lshr_b32 s{T2_}, s{S_B2}, 2", f"s_lshl_b32 s{T2_}, s{T2_}, 12", f"s_and_b32 s{T1_}, s{S_B2}, 3", f"s_lshl_b32 s{T1_}, s{T1_}, 4")
    a(f"s_add_u32 s{T2_}, s{T2_}, s{T1_}", f"s_lshl_b32 s{T1_}, s{S_WAVE}, 10", f"s_add_u32 s{T2_}, s{T2_}, s{T1_}", f"s_add_u32 s{T2_}, s{T2_}, 0x200000")
    a(f"s_add_u32 s{T1_}, s{T0_}, 8192", "v_lshlrev_b32 v9, 6, v2")
    a(f"s_mul_i32 s{T3_}, s{S_WAVE}, 2304", f"s_add_u32 s{T3_}, s{T3_}, {C_XR}", f"v_lshl_add_u32 v117, v114, 5, s{T3_}", f"v_lshl_add_u32 v110, v114, 3, s{T3_}")
    a(f"s_lshl_b32 s{T3_}, s{S_WAVE}, 9", f"s_add_u32 s{T3_}, s{T3_}, {C_RED}", f"v_lshl_add_u32 v108, v1, 2, s{T3_}", f"v_lshl_add_u32 v109, v1, 4, s{T3_}")
    a(f"s_mov_b32 s{T3_}, 0x02020202", f"v_mul_lo_u32 v118, v113, s{T3_}", "v_add_u32 v118, 0x05040100, v118")
    a(f"v_lshlrev_b32 v8, 2, v0", f"v_add_u32 v8, {C_XR}, v8")
    a(f"s_lshl_b32 s{T3_}, s{S_WAVE}, 6", f"s_add_u32 s{T3_}, s{T3_}, {C_XR + 2048}", f"v_lshl_add_u32 v119, v2, 2, s{T3_}")
    a("s_waitcnt vmcnt(0)")
    X = 20
    for j in range(9): unpack(a, X + 2 * j, 10 + j)
    lds_wait(a, FL_ZDONE + 4, 60, "b4", sleep=1)
    a("s_setprio 3")
    if PFD2 > PFD:
        a(f"s_sub_u32 s{T5_}, s{S_I}, 18", f"s_cmp_ge_u32 s{T5_}, 6", "s_cbranch_scc1 KS_PF3E", f"s_cmp_lg_u32 s{S_WAVE}, 2", "s_cbranch_scc1 KS_PF3E")
        pf_down(a, T5_, 6, PFD, PFD2, 100, 120, "KS_PF3E", R4)
        a("KS_PF3E:")
    stamp2(a, 1)
    if ENV("ZGATE", 1):
        zpoll(a, [f"buffer_load_dwordx4 v[68:71], v{VZ}, s[{R0}:{R0+3}], s{T2_} offen sc1"], list(range(68, 72)), ENV("ZSLEEP", 1))
        if ENV("ZDELAY", 0): a(f"s_sleep {ENV('ZDELAY', 0)}")
    zpoll(a, [f"buffer_load_dwordx4 v[60:63], v6, s[{R0}:{R0+3}], s{T0_} offen sc1",
           f"buffer_load_dwordx4 v[64:67], v6, s[{R0}:{R0+3}], s{T1_} offen sc1",
           f"buffer_load_dwordx4 v[68:71], v9, s[{R0}:{R0+3}], s{T2_} offen sc1"], list(range(60, 72)), ENV("ZSLEEP", 1))
    stamp2(a, 2)
    for k in range(2):
        a(f"ds_write2st64_b32 v8, v{60+4*k}, v{61+4*k} offset0:{4*k} offset1:{9+4*k}")
        a(f"ds_write2st64_b32 v8, v{62+4*k}, v{63+4*k} offset0:{18+4*k} offset1:{27+4*k}")
    a("ds_write2st64_b32 v119, v68, v69 offset0:0 offset1:9")
    a("ds_write2st64_b32 v119, v70, v71 offset0:18 offset1:27")
    a(f"ds_write_b8 v116, v{VONE} offset:{FL_ZF}")
    stamp2(a, 3)
    lds_wait(a, FL_ZF, 60, "b4")
    for k in range(4):
        a(f"ds_read_b128 v[{60+4*k}:{63+4*k}], v117 offset:{1024*(k>>1) + 16*(k&1)}")
    a("ds_read_b64 v[76:77], v110 offset:2048")
    for j in range(9):
        if j % 2 == 0: a(f"s_waitcnt lgkmcnt({4-j//2})")
        a(f"v_perm_b32 v44, v{61+2*j}, v{60+2*j}, v118")
        unpack(a, 46, 44)
        a(f"v_pk_add_f32 v[46:47], v[46:47], v[{X+2*j}:{X+2*j+1}]")
        a(f"v_cvt_pk_bf16_f32 v44, v46, v47")
        unpack(a, X + 2 * j, 44)
    ln_stats(a, X, 40, 42, 44, 46, 48)
    stamp2(a, 4)
    a("v_mov_b32 v60, 0", "v_mov_b32 v61, 0")
    for j in range(9):
        ln_apply_pair(a, X + 2 * j, 40, 42, 44, 10 + j)
        unpack(a, 46, 50 + j)
        a("v_pk_fma_f32 v[60:61], v[44:45], v[46:47], v[60:61]")
        a(f"v_pk_add_f32 v[{X+2*j}:{X+2*j+1}], v[44:45], v[{X+2*j}:{X+2*j+1}]")
    a("v_add_f32 v60, v60, v61")
    red32(a, "v_add_f32", 60, 61)
    a("v_cvt_pk_bf16_f32 v60, v60, v60")
    a("v_ashrrev_i32 v61, 31, v60", "v_or_b32 v61, 0x80000000, v61", "v_xor_b32 v60, v60, v61", "v_and_b32 v60, 0xffff0000, v60")
    a("v_sub_u32 v62, 0x87ff, v112", "v_or_b32 v60, v60, v62", "v_lshl_add_u32 v61, v116, 1, v113", "v_lshlrev_b32 v61, 2, v61")
    a("s_mov_b32 exec_lo, 1", "s_mov_b32 exec_hi, 1")
    a(f"ds_write_b32 v61, v60 offset:{C_KEY}")
    a("s_mov_b64 exec, 1")
    a(f"ds_add_rtn_u32 v62, v{VZ}, v{VONE} offset:{FL_KCNT}")
    a("s_mov_b64 exec, 3")
    a("v_lshlrev_b32 v61, 4, v114", f"s_lshl_b32 s{T0_}, s{S_B2}, 5")
    a(f"ds_read_b128 v[64:67], v61 offset:{C_KEY}")
    a("s_waitcnt lgkmcnt(1)")
    a(f"v_readfirstlane_b32 s{T1_}, v62")
    a(f"s_cmp_lg_u32 s{T1_}, 3", "s_cbranch_scc1 KS_NOKEY")
    a("s_waitcnt lgkmcnt(0)")
    a(f"buffer_store_dwordx4 v[64:67], v61, s[{R3}:{R3+3}], s{T0_} offen sc1")
    a("KS_NOKEY:")
    a("s_mov_b64 exec, -1")
    a(f"v_cvt_pk_bf16_f32 v58, v{X+16}, v{X+17}")
    a("ds_write_b32 v108, v18", "ds_write_b32 v108, v58 offset:256", "ds_read_b128 v[64:67], v109")
    a(f"buffer_store_dwordx4 v[10:13], v115, s[{R2_}:{R2_+3}], 0 offen sc1")
    a(f"buffer_store_dwordx4 v[14:17], v115, s[{R2_}:{R2_+3}], 0 offen offset:512 sc1")
    for j in range(8):
        a(f"v_cvt_pk_bf16_f32 v{50+j}, v{X+2*j}, v{X+2*j+1}")
    a("s_mov_b64 exec, 0xffff")
    a("s_waitcnt lgkmcnt(0)")
    a(f"buffer_store_dwordx4 v[64:67], v111, s[{R2_}:{R2_+3}], 0 offen offset:1024 sc1")
    a("s_mov_b64 exec, 0xffff0000")
    a(f"buffer_store_dwordx4 v[64:67], v111, s[{R1}:{R1+3}], 0 offen offset:1024 sc1")
    a("s_mov_b64 exec, -1")
    a(f"buffer_store_dwordx4 v[50:53], v115, s[{R1}:{R1+3}], 0 offen sc1")
    a(f"buffer_store_dwordx4 v[54:57], v115, s[{R1}:{R1+3}], 0 offen offset:512 sc1")
    stamp2(a, 5)
    a(f"s_cmp_lg_u32 s{T1_}, 3", "s_cbranch_scc1 KS_NOKEY2")
    a("s_waitcnt vmcnt(6)")
    a(f"ds_write_b32 v{VZ}, v{VONE} offset:{FL_KACK}")
    a("KS_NOKEY2:")
    a("s_waitcnt vmcnt(0)")
    a("s_mov_b64 exec, 1")
    a(f"ds_add_rtn_u32 v62, v{VZ}, v{VONE} offset:{FL_F2CNT}")
    a("s_waitcnt lgkmcnt(0)")
    a("v_cmp_eq_u32 vcc, 3, v62", "s_and_b64 exec, exec, vcc", "s_cbranch_execz KS_NOF2")
    a(f"s_lshl_b32 s{T0_}, s2, 4", f"s_add_u32 s{T0_}, s{T0_}, 8192")
    a(f"buffer_store_dword v{VONE}, v{VZ}, s[{R3}:{R3+3}], s{T0_} offen sc1")
    a("KS_NOF2:")
    a("s_mov_b64 exec, -1")
    a("s_setprio 0")
    a(f"s_cmp_lt_u32 s{S_I}, 18", "s_cbranch_scc1 KS_B")
    a("s_waitcnt lgkmcnt(0)")
    endwave(a)
    a("KS_T:")
    a("s_setprio 0")
    a(f"s_cmp_ge_u32 s{S_WAVE}, 10", "s_cbranch_scc1 KS_P")
    a("v_and_b32 v6, 1, v1", "v_subrev_u32 v6, 1, v6")
    a("v_and_b32 v7, 7, v1", "v_lshlrev_b32 v7, 2, v7")
    srd(a, R3, P_WS, 12288, WS_KEYS)
    a(f"s_cmp_eq_u32 s{S_WAVE}, 9", "s_cbranch_scc1 KS_W9")
    a(f"s_cmp_eq_u32 s{S_WAVE}, 8", "s_cbranch_scc1 KS_L2W")
    a(f"s_sub_u32 s{T1_}, s{S_WAVE}, 4", f"s_lshl_b32 s{T0_}, s{T1_}, 10", f"v_lshl_add_u32 v33, v1, 4, s{T0_}", f"s_movk_i32 s{T0_}, 4096")
    a(f"s_lshl_b32 s{T1_}, s{T1_}, 7", "v_lshlrev_b32 v32, 4, v2", "v_lshl_add_u32 v32, v3, 5, v32", f"v_add_u32 v32, s{T1_}, v32")
    lds_wait(a, FL_KACK, 8, "nz", sleep=1)
    a("s_setprio 2")
    if ENV('KDELAY', 20): a(f"s_sleep {ENV('KDELAY', 20)}")
    stamp2(a, 1)
    zpoll(a, [f"buffer_load_dwordx4 v[8:11], v33, s[{R3}:{R3+3}], 0 offen sc1",
           f"buffer_load_dwordx4 v[12:15], v33, s[{R3}:{R3+3}], s{T0_} offen sc1"], list(range(8, 16)), ENV("KSLEEP", 4))
    a(f"ds_write_b32 v{VZ}, v{VONE} offset:{FL_KSEEN}")
    stamp2(a, 2)
    pool = Pool(range(16, 28))
    x = [8, 9, 10, 11]; y = [12, 13, 14, 15]
    for (i, j) in ((0, 1), (2, 3), (0, 2), (1, 3), (1, 2)):
        ce_inlane(a, x, i, j, pool); ce_inlane(a, y, i, j, pool)
    clean8(a, x, pool, 6, rev=True); clean8(a, y, pool, 6, rev=True)
    merge_pair(a, x, y, pool); clean8(a, x, pool, 6)
    for M in MIRRORS:
        merge_mirror(a, x, pool, M); clean8(a, x, pool, 6)
    for i in range(4): a(f"v_mov_b32 v{28+i}, v{x[i]}")
    a("s_mov_b32 exec_lo, 0x00030003", "s_mov_b32 exec_hi, 0x00030003")
    a(f"ds_write_b128 v32, v[28:31] offset:{C_CAND}")
    a("s_mov_b64 exec, -1")
    stamp2(a, 3)
    a("s_setprio 0")
    a("s_branch KS_B")
    a("KS_L2W:")
    srd(a, R2_, P_WS, XBYTES, WS_X2)
    a(f"s_mov_b32 s{T0_}, 0xcccccccc", f"s_mov_b32 s{T1_}, 0xcccccccc", f"s_mov_b32 s{T2_}, 0xf0f0f0f0", f"s_mov_b32 s{T3_}, 0xf0f0f0f0", f"s_movk_i32 s{T4_}, 1152")
    a("v_lshrrev_b32 v34, 3, v1", "v_lshlrev_b32 v34, 4, v34", "v_lshlrev_b32 v33, 4, v2")
    lds_wait(a, FL_KACK, 8, "nz", sleep=1)
    a("s_setprio 2")
    a("KS_L2POLL:")
    a(f"ds_read_b128 v[8:11], v33 offset:{C_CAND}")
    a(f"ds_read_b128 v[12:15], v33 offset:{C_CAND + 256}")
    guard(a)
    a("s_waitcnt lgkmcnt(0)")
    a("v_min3_u32 v16, v8, v9, v10", "v_min3_u32 v17, v11, v12, v13", "v_min3_u32 v16, v16, v14, v15", "v_min_u32 v16, v16, v17", "v_cmp_eq_u32 vcc, 0, v16")
    a("s_cbranch_vccnz KS_L2POLL")
    stamp2(a, 1)
    pool = Pool(range(16, 28))
    x = [8, 9, 10, 11]; y = [12, 13, 14, 15]
    merge_pair(a, x, y, pool); clean8(a, x, pool, 6)
    for li, M in enumerate(MIRRORS):
        merge_mirror(a, x, pool, M)
        if li < 2: clean8(a, x, pool, 6)
    a(f"ds_read_b32 v35, v{VZ} offset:{FL_ROWSOK}")
    a(f"v_cndmask_b32 v30, v{x[0]}, v{x[1]}, s[{T0_}:{T1_}]", f"v_cndmask_b32 v31, v{x[2]}, v{x[3]}, s[{T0_}:{T1_}]", f"v_cndmask_b32 v30, v30, v31, s[{T2_}:{T3_}]")
    a("v_mov_b32_dpp v30, v30 row_shr:8 row_mask:0xf bank_mask:0xc")
    a("v_and_b32 v31, 0x7ff, v30", "v_sub_u32 v31, 2047, v31", f"v_mad_u32_u24 v31, v31, s{T4_}, v34")
    a("s_waitcnt lgkmcnt(0)")
    a("v_cmp_ne_u32 vcc, 0, v35", "s_cbranch_vccnz KS_RW1")
    lds_wait(a, FL_ROWSOK, 35, "nz")
    a("KS_RW1:")
    for k in range(9):
        a(f"s_mov_b32 m0, {C_XR + 896*k}")
        a(f"buffer_load_dwordx4 v31, s[{R2_}:{R2_+3}], 0 offen offset:{128*k} sc1 lds")
    a(f"ds_write_b32 v7, v30 offset:{C_SEL}")
    stamp2(a, 2)
    a("s_waitcnt vmcnt(0)")
    a(f"ds_write_b32 v{VZ}, v{VONE} offset:{FL_XRDY}")
    stamp2(a, 3)
    a("s_setprio 0")
    a("s_branch KS_B")
    a("KS_W9:")
    a("v_lshlrev_b32 v33, 4, v1", f"s_movk_i32 s{T0_}, 0x2000")
    srd(a, R2_, P_WS, XBYTES, WS_X2)
    srd(a, R0, P_WS, 0x240000, WS_ZB1)
    srd(a, R1, P_X, XBYTES)
    a("v_bfe_u32 v43, v1, 2, 3", f"s_lshl_b32 s{T1_}, s{S_BLK}, 3", f"v_add_u32 v43, s{T1_}, v43")
    a("v_bfe_u32 v40, v43, 4, 1", "v_and_b32 v41, 3, v1", "v_lshl_add_u32 v40, v40, 2, v41", "v_lshlrev_b32 v40, 2, v40")
    a("v_lshrrev_b32 v41, 5, v43", "v_lshlrev_b32 v41, 4, v41", "v_and_b32 v42, 15, v43", "v_add_u32 v41, v41, v42")
    lds_wait(a, FL_KSEEN, 8, "nz", sleep=1)
    if ENV('F2DELAY', 8): a(f"s_sleep {ENV('F2DELAY', 8)}")
    a("s_setprio 2")
    zpoll(a, [f"buffer_load_dword v{8+k}, v33, s[{R3}:{R3+3}], s{T0_} offen offset:{1024*k} sc1" for k in range(4)], list(range(8, 12)), ENV("F2SLEEP", 4))
    a(f"ds_write_b32 v{VZ}, v{VONE} offset:{FL_ROWSOK}")
    stamp2(a, 1)
    a("s_setprio 0")
    lds_wait(a, C_SEL, 12, "nz", addr=7, sleep=1)
    stamp2(a, 2)
    a(f"ds_read_b32 v19, v40 offset:{C_SEL}")
    a("s_waitcnt lgkmcnt(0)")
    a("v_and_b32 v14, 0x7ff, v19", "v_sub_u32 v14, 2047, v14")
    a("v_mul_u32_u24 v23, 1152, v14", "v_lshl_add_u32 v23, v41, 1, v23")
    a(f"buffer_load_ushort v20, v23, s[{R2_}:{R2_+3}], 0 offen sc1")
    a(f"buffer_load_ushort v17, v23, s[{R1}:{R1+3}], 0 offen")
    a("v_lshrrev_b32 v15, 9, v14", "v_bfe_u32 v16, v14, 6, 2", "v_lshl_add_u32 v15, v15, 2, v16", "v_bfe_u32 v16, v14, 2, 2", "v_lshl_add_u32 v15, v15, 2, v16")
    a("v_bfe_u32 v16, v14, 4, 1")
    a("v_bfe_u32 v24, v14, 8, 1", "v_and_b32 v25, 3, v14", "v_lshl_add_u32 v24, v24, 2, v25", "v_lshlrev_b32 v24, 1, v24")
    a("v_bfe_u32 v25, v14, 5, 1", "v_lshl_add_u32 v24, v25, 5, v24")
    a("v_lshl_add_u32 v25, v15, 1, v16", "v_lshl_add_u32 v25, v25, 14, v24")
    a("v_lshrrev_b32 v26, 1, v41", "v_lshl_add_u32 v25, v26, 6, v25", "v_xor_b32 v26, v41, v16", "v_not_b32 v26, v26", "v_and_b32 v26, 1, v26", "v_lshl_add_u32 v25, v26, 4, v25")
    a("v_lshl_add_u32 v26, v15, 12, v24", "v_lshl_add_u32 v26, v16, 4, v26", "v_lshl_add_u32 v26, v41, 6, v26", f"v_add_u32 v26, {0x200000 - 512*64}, v26")
    a("v_cmp_gt_u32 vcc, 0x200, v41", "v_cndmask_b32 v25, v26, v25, vcc")
    a(f"buffer_load_ushort v18, v25, s[{R0}:{R0+3}], 0 offen sc1")
    srd(a, R2_, P_WS, 64, WS_IDX)
    a("v_ashrrev_i32 v22, 31, v19", "v_not_b32 v22, v22", "v_or_b32 v22, 0x80000000, v22", "v_xor_b32 v22, v19, v22", "v_and_b32 v22, 0xffff0000, v22")
    a(f"v_mul_f32 v22, {f32(-LOG2E)}, v22", "v_exp_f32 v22, v22", "v_add_f32 v22, 1.0, v22", "v_rcp_f32 v22, v22")
    a("v_cvt_pk_bf16_f32 v22, v22, v22", "v_lshlrev_b32 v22, 16, v22")
    a("v_and_b32 v14, 31, v1", "v_lshlrev_b32 v14, 4, v14")
    a("s_waitcnt vmcnt(0)")
    a("v_lshlrev_b32 v17, 16, v17", "v_lshlrev_b32 v18, 16, v18", "v_add_f32 v17, v17, v18", "v_cvt_pk_bf16_f32 v17, v17, v17")
    a("v_and_b32 v21, 0xffff0000, v17", "v_lshlrev_b32 v20, 16, v20")
    a(f"ds_write_b128 v14, v[20:23] offset:{C_SIDE}")
    a("s_cmp_lg_u32 s2, 0", "s_cbranch_scc1 KS_W9E")
    a(f"buffer_store_dword v12, v7, s[{R2_}:{R2_+3}], 0 offen")
    a("KS_W9E:")
    a("s_waitcnt lgkmcnt(0)")
    stamp2(a, 3)
    endwave(a)
    a("KS_B:")
    srd(a, R0, P_WS, PART_BYTES, WS_PART)
    a("v_bfe_u32 v16, v1, 2, 2", "v_lshl_add_u32 v16, v3, 3, v16", "v_mul_u32_u24 v16, 1152, v16", "v_and_b32 v17, 3, v1", "v_lshl_add_u32 v16, v17, 3, v16")
    a(f"s_lshl_b32 s{T0_}, s{S_WAVE}, 7", f"s_add_u32 s{T0_}, s{T0_}, {C_DOWN}", f"v_add_u32 v16, s{T0_}, v16")
    if PTAG: a("v_lshlrev_b32 v18, 2, v17", f"ds_read_b32 v24, v18 offset:{FL_NONCE}", f"s_movk_i32 s{T2_}, 0xff")
    lds_wait(a, FL_DOWN, 17, "b4")
    if PTAG:
        for d in range(1, 4): a(f"v_lshrrev_b32 v{24+d}, {8*d}, v24")
    WTD = 48
    for jt in range(4):
        a(f"ds_read_b64_tr_b16 v[{WTD+4*jt}:{WTD+4*jt+1}], v16 offset:{32*jt}")
        a(f"ds_read_b64_tr_b16 v[{WTD+4*jt+2}:{WTD+4*jt+3}], v16 offset:{32*jt + 4608}")
    a("v_and_b32 v16, 7, v2", "v_lshlrev_b32 v16, 6, v16", "v_lshl_add_u32 v16, v3, 4, v16")
    a(f"s_mul_i32 s{T0_}, s{S_BLK}, 18432", f"s_lshl_b32 s{T1_}, s{S_WAVE}, 11", f"s_add_u32 s{T0_}, s{T0_}, s{T1_}")
    a("v_lshlrev_b32 v17, 4, v1")
    a("s_waitcnt lgkmcnt(0)")
    a("s_barrier")
    a("s_barrier")
    a(f"ds_read_b128 v[20:23], v16 offset:{C_ACT}")
    a("s_waitcnt lgkmcnt(0)")
    for j in range(4):
        a(f"v_mfma_f32_16x16x32_bf16 v[{32+4*j}:{35+4*j}], v[20:23], v[{WTD+4*j}:{WTD+4*j+3}], 0")
    for j in (0, 2):
        for r in range(4): a(f"v_permlane32_swap_b32 v{32+4*j+r}, v{36+4*j+r}")
        for r in range(4): a(f"v_bfi_b32 v{32+4*j+r}, s{T2_}, v{24+r}, v{32+4*j+r}" if PTAG else f"v_min_u32 v{32+4*j+r}, -2, v{32+4*j+r}")
        a(f"buffer_store_dwordx4 v[{32+4*j}:{35+4*j}], v17, s[{R0}:{R0+3}], s{T0_} offen offset:{512*j} sc1")
    stamp2(a, 8)
    a("s_waitcnt vmcnt(0)", "s_barrier")
    endwave(a)
    a("KS_G0:")
    a(f"ds_write_b8 v15, v{VONE} offset:{FL_G+4}")
    a("s_setprio 0")
    a("KS_G:")
    a(f"s_mov_b32 s{SP0}, 0x05040100", f"s_mov_b32 s{SP1}, 0x07060302")
    a("s_waitcnt vmcnt(0)")
    stamp(a, 5)
    g_addr_setup(a, 46)
    SG = eval(os.environ.get("SG", "[0,0,0,0]"))
    if any(SG):
        a(f"s_mul_i32 s{T0_}, s{S_ROLE}, {32*9216}", f"s_lshl_b32 s{T1_}, s{S_BLK}, 6", f"s_add_u32 s{T0_}, s{T0_}, s{T1_}")
        a(f"s_add_u32 s{R0}, s{P_GATE}, s{T0_}", f"s_addc_u32 s{R0+1}, s{P_GATE+1}, 0", f"s_add_u32 s{R0+2}, s{P_UP}, s{T0_}", f"s_addc_u32 s{R0+3}, s{P_UP+1}, 0")
        cnt = sum(SG[g] << (8 * g) for g in range(4))
        a(f"s_lshl_b32 s{T1_}, s{S_G}, 3", f"s_lshr_b32 s{T1_}, {hex(cnt)}, s{T1_}", f"s_and_b32 s{T1_}, s{T1_}, 0xff", "s_cbranch_scc0 KS_SGE")
        a("KS_SGL:")
        for r in range(8):
            a(f"s_load_dword s{R1}, s[{R0}:{R0+1}], {r*9216}", f"s_load_dword s{R1+1}, s[{R0+2}:{R0+3}], {r*9216}")
        a(f"s_add_u32 s{R0}, s{R0}, {8*9216}", f"s_addc_u32 s{R0+1}, s{R0+1}, 0", f"s_add_u32 s{R0+2}, s{R0+2}, {8*9216}", f"s_addc_u32 s{R0+3}, s{R0+3}, 0")
        a(f"s_sub_u32 s{T1_}, s{T1_}, 1", f"s_cmp_lg_u32 s{T1_}, 0", "s_cbranch_scc1 KS_SGL")
        a("KS_SGE:")
        a("s_waitcnt lgkmcnt(0)")
        stamp(a, 8)
    TR = {1: (FL_PARAM, "nz"), 2: (FL_UF, "b4"), 3: (FL_ZF, "b4"), 4: (FL_KACK, "nz"), 5: (FL_KSEEN, "nz"), 6: (FL_ZDONE + 4, "b4")}
    for t in sorted(set(GT)):
        l = newlabel("GT")
        mask = sum(1 << g for g in range(4) if GT[g] == t)
        if mask != 15: a(f"s_lshr_b32 s{T0_}, {mask}, s{S_G}", f"s_bitcmp1_b32 s{T0_}, 0", f"s_cbranch_scc0 {l}")
        lds_wait(a, TR[t][0], 10, TR[t][1], sleep=2)
        if t >= 3: a("s_setprio 1")
        a(f"{l}:")
    g_loads(a, 46, range(4))
    stamp(a, 6)
    def transpose(src, dst):
        for j in range(4):
            for p in range(4):
                lo = src + 2 * (2 * p) + (j >> 1); hi = src + 2 * (2 * p + 1) + (j >> 1)
                a(f"v_perm_b32 v{dst+4*j+p}, v{hi}, v{lo}, s{SP0 + (j & 1)}")
    W = GW
    a(f"s_bitcmp1_b32 s{S_G}, 0", "s_cbranch_scc1 KS_G4")
    g_loads(a, 46, [4])
    a("KS_G4:")
    a(f"v_mov_b32 v6, s{S_G}", f"ds_write_b8 v6, v{VONE} offset:{FL_GISS}")
    a("s_waitcnt vmcnt(0)")
    stamp(a, 7)
    for ks in range(5): transpose(W + 16 * ks, W + 16 * ks - 16)
    GACC = 112
    a(f"s_lshl_b32 s{T0_}, s{S_ROLE}, 9", f"s_add_u32 s{T0_}, s{T0_}, {C_XR}", "v_and_b32 v6, 7, v2", f"v_lshl_add_u32 v7, v6, 4, s{T0_}", "v_lshl_add_u32 v7, v3, 7, v7")
    a(f"s_lshl_b32 s{T0_}, s{S_G}, 6", f"v_add_u32 v11, s{T0_}, v1")
    a("v_lshrrev_b32 v8, 5, v11", "v_and_b32 v9, 31, v11")
    a("v_and_b32 v10, 3, v9", "v_lshlrev_b32 v10, 9, v10")
    a("v_lshrrev_b32 v9, 2, v9", "v_lshl_add_u32 v10, v9, 4, v10")
    a("v_lshrrev_b32 v9, 2, v8", "v_lshl_add_u32 v10, v9, 8, v10")
    a("v_and_b32 v9, 3, v8", "v_lshl_add_u32 v10, v9, 2, v10")
    a("v_lshlrev_b32 v11, 1, v11")
    a(f"s_lshl_b32 s{T0_}, s{S_G}, 11", f"v_lshl_add_u32 v9, v1, 4, s{T0_}")
    lds_wait(a, C_SEL, 12, "nz", sleep=2)
    a("s_setprio 2")
    lds_wait(a, FL_XRDY, 12, "nz")
    stamp2(a, 1)
    for ks in range(5):
        a(f"ds_read_b128 v[{12+4*ks}:{15+4*ks}], v7 offset:{512*ks}")
    for ks in range(5):
        if ks == 4: a(f"s_bitcmp1_b32 s{S_G}, 0", "s_cbranch_scc1 KS_G5")
        a(f"s_waitcnt lgkmcnt({4-ks})")
        for j in range(4):
            c = "0" if ks == 0 else f"v[{GACC+4*j}:{GACC+4*j+3}]"
            a(f"v_mfma_f32_16x16x32_bf16 v[{GACC+4*j}:{GACC+4*j+3}], v[{12+4*ks}:{15+4*ks}], v[{32+16*ks+4*j}:{35+16*ks+4*j}], {c}")
    a("KS_G5:")
    a("s_mov_b32 exec_lo, -1", "s_mov_b32 exec_hi, 0")
    a.flush(6)
    for j in range(4):
        a(f"ds_write_b128 v9, v[{GACC+4*j}:{GACC+4*j+3}] offset:{C_RED + 512*j}")
    a("s_mov_b64 exec, -1")
    a("s_waitcnt lgkmcnt(0)", "s_barrier")
    stamp2(a, 2)
    for w in range(4):
        a(f"ds_read_b32 v{32+2*w}, v10 offset:{C_RED + 2048*w}")
        a(f"ds_read_b32 v{33+2*w}, v10 offset:{C_RED + 2048*w + 128}")
    a("s_waitcnt lgkmcnt(4)")
    a("v_pk_add_f32 v[32:33], v[32:33], v[34:35]")
    a("s_waitcnt lgkmcnt(0)")
    a("v_pk_add_f32 v[36:37], v[36:37], v[38:39]")
    a("v_pk_add_f32 v[32:33], v[32:33], v[36:37]")
    a("v_cvt_pk_bf16_f32 v34, v32, v33")
    unpack(a, 32, 34)
    a(f"v_mul_f32 v34, {f32(-LOG2E)}, v32", "v_exp_f32 v34, v34", "v_add_f32 v34, 1.0, v34", "v_rcp_f32 v34, v34", "v_mul_f32 v34, v32, v34")
    a("v_cvt_pk_bf16_f32 v34, v34, v34", "v_lshlrev_b32 v34, 16, v34")
    a("v_mul_f32 v34, v34, v33", "v_cvt_pk_bf16_f32 v34, v34, v34")
    a(f"ds_write_b16 v11, v34 offset:{C_ACT}")
    a("s_waitcnt lgkmcnt(0)")
    a("s_barrier")
    a("s_branch KS_P2")
    a("KS_P:")
    srd(a, R1, P_DOWN, F * D * 2)
    a(f"s_sub_u32 s{T2_}, s{S_WAVE}, 10", "v_lshlrev_b32 v6, 4, v1", f"s_mul_i32 s{T0_}, s{S_BLK}, 36864", f"s_mul_i32 s{T1_}, s{T2_}, 18432", f"s_add_u32 s{T0_}, s{T0_}, s{T1_}", f"s_add_u32 s{T1_}, s{T1_}, {C_DOWN}")
    a(f"s_lshl_b32 s{T2_}, s{T2_}, 1", f"v_mov_b32 v7, s{T2_}", f"v_mov_b32 v8, s{S_ONES}")
    TR[7] = (FL_GISS, "b4")
    if DT: lds_wait(a, TR[DT][0], 10, TR[DT][1], sleep=2)
    a("s_setprio 1")
    stamp2(a, 1)
    for k in range(18):
        if k % 4 == 0:
            a(f"s_add_u32 m0, s{T1_}, {1024*k}")
            if k: a(f"s_add_u32 s{T0_}, s{T0_}, 4096")
        a(f"buffer_load_dwordx4 v6, s[{R1}:{R1+3}], s{T0_} offen offset:{1024*(k&3)} lds")
    a("s_waitcnt vmcnt(0)")
    stamp2(a, 2)
    a(f"ds_write_b16 v7, v8 offset:{FL_DOWN}")
    a("s_setprio 0")
    a("s_waitcnt lgkmcnt(0)")
    a("s_barrier")
    a("s_barrier")
    a("s_setprio 2")
    a("KS_P2:")
    a(f"s_sub_u32 s{S_G}, s{S_WAVE}, 10")
    srd(a, R0, P_WS, PART_BYTES, WS_PART)
    srd(a, R1, P_OUT, XBYTES)
    a("v_lshrrev_b32 v8, 3, v1", "v_mul_u32_u24 v8, 18432, v8", "v_and_b32 v9, 7, v1", "v_lshl_add_u32 v8, v9, 4, v8")
    a(f"s_mul_i32 s{T0_}, s{S_G}, {24*18432}", f"s_lshl_b32 s{T1_}, s{S_BLK}, 7", f"s_add_u32 s{T0_}, s{T0_}, s{T1_}", f"s_add_u32 s{T1_}, s{T0_}, {8*18432}", f"s_add_u32 s{T2_}, s{T0_}, {16*18432}")
    a(f"s_lshl_b32 s{T3_}, s{S_G}, 7", f"v_lshl_add_u32 v6, v9, 4, s{T3_}", "v_lshl_add_u32 v6, v3, 2, v6")
    a(f"v_lshlrev_b32 v12, 2, v1", f"v_add_u32 v12, {C_RED2}, v12", "v_lshlrev_b32 v13, 4, v1")
    if PTAG:
        a("v_and_b32 v14, 12, v12", f"ds_read_b32 v24, v14 offset:{FL_NONCE}", "s_waitcnt lgkmcnt(0)")
        for d in range(1, 4): a(f"v_lshrrev_b32 v{24+d}, {8*d}, v24")
    a("s_barrier")
    stamp2(a, 3)
    if PTAG:
        lp = newlabel("PP"); l1 = newlabel("PPE")
        a(f"s_branch {l1}", f"{lp}:", "s_sleep 1", f"{l1}:")
        for k in range(3): a(f"buffer_load_dwordx4 v[{32+4*k}:{35+4*k}], v8, s[{R0}:{R0+3}], s{T0_+k} offen sc1")
        guard(a)
        for k in range(3):
            a(f"s_waitcnt vmcnt({2-k})")
            for d in range(4):
                t = 44 + (d & 1)
                a(f"v_xor_b32 v{t}, v{24+d}, v{32+d}" if k == 0 and d < 2 else f"v_bitop3_b32 v{t}, v{t}, v{24+d}, v{32+4*k+d} bitop3:0xf6")
        a("v_or_b32 v44, v44, v45", "v_and_b32 v44, 0xff, v44", "v_cmp_ne_u32 vcc, 0, v44", f"s_cbranch_vccnz {lp}")
    else: zpoll(a, [f"buffer_load_dwordx4 v[{32+4*k}:{35+4*k}], v8, s[{R0}:{R0+3}], s{T0_+k} offen sc1" for k in range(3)], list(range(32, 44)), 1)
    stamp2(a, 4)
    a("v_pk_add_f32 v[32:33], v[32:33], v[36:37]", "v_pk_add_f32 v[34:35], v[34:35], v[38:39]")
    a("v_pk_add_f32 v[32:33], v[32:33], v[40:41]", "v_pk_add_f32 v[34:35], v[34:35], v[42:43]")
    for r in range(4): a(f"v_add_f32_dpp v{32+r}, v{32+r}, v{32+r} row_ror:8 {DPPM}")
    a("v_permlane16_swap_b32 v32, v33", "v_permlane16_swap_b32 v34, v35")
    a("v_add_f32 v32, v32, v33", "v_add_f32 v34, v34, v35")
    a("v_permlane32_swap_b32 v32, v34")
    a("v_add_f32 v32, v32, v34")
    a(f"ds_write_b32 v6, v32 offset:{C_RED2}")
    a("s_waitcnt lgkmcnt(0)", "s_barrier")
    a(f"s_cmp_lg_u32 s{S_G}, 0", "s_cbranch_scc1 KS_PEND")
    a("s_mov_b32 exec_lo, -1", "s_mov_b32 exec_hi, 0")
    for g in range(3):
        a(f"ds_read2_b32 v[{32+2*g}:{33+2*g}], v12 offset0:{64*g} offset1:{64*g + 32}")
    a(f"ds_read_b128 v[40:43], v13 offset:{C_SIDE}")
    a("s_waitcnt lgkmcnt(0)")
    a("v_pk_add_f32 v[32:33], v[32:33], v[34:35]", "v_pk_add_f32 v[32:33], v[32:33], v[36:37]", "v_add_f32 v8, v32, v33")
    a("v_cvt_pk_bf16_f32 v8, v8, v8", "v_lshlrev_b32 v8, 16, v8")
    a("v_mul_f32 v8, v8, v42", "v_cvt_pk_bf16_f32 v8, v8, v8", "v_lshlrev_b32 v8, 16, v8")
    a("v_add_f32 v8, v8, v40", "v_cvt_pk_bf16_f32 v8, v8, v8", "v_lshlrev_b32 v8, 16, v8")
    a("v_add_f32 v8, v8, v41", "v_cvt_pk_bf16_f32 v8, v8, v8")
    a(f"buffer_store_short v8, v43, s[{R1}:{R1+3}], 0 offen")
    spin_end(a)
    a("KS_PEND:")
    stamp_end(a)
    a("KS_ABORT:")
    a("KS_END:")
    a("s_endpgm")
    return f""".amdhsa_kernel {label}
  .amdhsa_next_free_vgpr 128
  .amdhsa_next_free_sgpr {NSGPR}
  .amdhsa_accum_offset 128
  .amdhsa_group_segment_fixed_size 0
  .amdhsa_kernarg_size 136
  .amdhsa_user_sgpr_count 2
  .amdhsa_user_sgpr_kernarg_segment_ptr 1
  .amdhsa_system_sgpr_workgroup_id_x 1
  .amdhsa_float_denorm_mode_32 3
.end_amdhsa_kernel
"""

def main():
    hdr = open(f"/code/{NAME}.s.ref").read().split("; Override launch geometry")[0]
    out = hdr
    out += f"; @launch grid=(256,1,1) block=(1024,1,1) lds={LDS_BYTES}\n"
    out += '.amdgcn_target "amdgcn-amd-amdhsa--gfx950"\n.text\n'
    a = Asm()
    d = gen(a)
    out += a.text()
    out += '.section .rodata,"a"\n.p2align 6\n' + d
    path = sys.argv[1] if len(sys.argv) > 1 else "ks.s"
    open(path, "w").write(out)
    print("wrote", path, len(out))

if __name__ == "__main__":
    main()
```

```python
import sys, struct, math, os
sys.path.insert(0, "gen")
from asmlib import Asm

NAME = "sequential_preLN__ssm_conv_s4__moe_arch_mod__prompt"
L, D, N, F = 2048, 576, 128, 4608
XBYTES = L * D * 2
WS_UT = 0x000000
WS_X2 = 0x300000
WS_ZB1 = 0x600000
WS_ZB2 = 0x800000
WS_KEYS = 0x840000
WS_PART = 0x850000
WS_CLR, CLR_WG = 0x600000, 18560
CLRP_WG = 23744
WS_FLAG1 = 0xB00000
TAGM = 0x00070007
WS_IDX = 0xB10000
WS_KT = 0xB20000
WS_DBG = 0xC00000
WS_STAMP = 0x8000000
PART_BYTES = 144 * 4608 * 4
C_FL, C_CAND, C_SEL, C_KEY, C_PAR, C_ACT, C_SIDE, C_RED2 = 0, 256, 768, 800, 832, 1024, 1536, 2048
C_U, U_SIZE = 3072, 4672
C_LNB = C_U + 3 * U_SIZE
C_XR = C_LNB
C_RED = C_LNB + 9280
G_BASE, G_SIZE = 35840, 36672
C_STG = G_BASE + 2 * G_SIZE + 36864
LDS_BYTES = C_STG + 8192
FL_LN1, FL_LNACK, FL_KCNT, FL_UF, FL_ZF, FL_KACK, FL_ROWSOK, FL_XRDY, FL_PARAM, FL_DOWN, FL_ZDONE = 0, 8, 12, 16, 20, 24, 28, 32, 36, 40, 48
FL_G = 64
FL_S6 = 160
FL_F2CNT, FL_INIT, FL_CLROK, FL_GISS, FL_KSEEN, FL_UTOK, FL_PRE, FL_NONCE = 176, 180, 188, 192, 196, 200, 208, 224
KG_ROW = 544
KG_T = [0, 16 * KG_ROW, 32 * KG_ROW, 41 * KG_ROW]
R_WS3 = 0
R_WS5 = R_WS3 + 193 * 16
R_WS7 = R_WS5 + 193 * 16
R_WS9 = R_WS7 + 128 * 16
R_RED = 10752
R2 = 31232
T_TAB = R2
T_DRE = R2 + 1296
T_DRO = T_DRE + 1280 + 64
T_G3 = T_DRO + 1280
T_G5 = T_G3 + 256
T_G7E = T_G5 + 256
T_G7O = T_G7E + 192
T_G9E = T_G7O + 192
T_G9O = T_G9E + 192
assert T_G9O + 192 <= G_SIZE and R_WS9 + 129 * 16 <= R_RED and R_RED + 13 * 1024 <= R2 and 57 * KG_ROW <= R2
IDX_ZERO, IDX_DUMMY = 641, 642
C_DOWN = G_BASE + 2 * G_SIZE

def f32(x): return "0x%08x" % struct.unpack("<I", struct.pack("<f", x))[0]
def f32v(x): return struct.unpack("<f", struct.pack("<f", x))[0]
LOG2E = math.log2(math.e)
LOG2E_HI = f32v(LOG2E); LOG2E_LO = LOG2E - LOG2E_HI
INV2PI = 1.0 / (2 * math.pi)
INV2PI_HI = f32v(INV2PI); INV2PI_LO = INV2PI - INV2PI_HI
DPPM = "row_mask:0xf bank_mask:0xf"
ENV = lambda k, d: int(os.environ.get(k, str(d)))
STAMP = ENV("STAMP", 0)
DBG = ENV("DBG", 0)
GUARD = 1 << 19
XP = ENV("XP", 0)
KOFF = ENV("KOFF", 1)
PTAG = ENV("PTAG", 1)
MOD = lambda k, d="sc1": os.environ.get(k, d).replace("_", " ")

P_X, P_ARE, P_LDT, P_DSK, P_WR, P_GATE, P_UP, P_DOWN, P_OUT, P_DBG, P_WS = 4, 6, 18, 20, 24, 26, 28, 30, 32, 34, 36
S_WAVE, S_GUARD, S_XC, S_I = 38, 39, 40, 41
R0, R1, R2_, R3, R4 = 64, 68, 72, 76, 80
S_ONES, S_GB, S_ROLE, S_G, S_CH, S_BLK, S_B2 = 84, 85, 86, 87, 88, 89, 90
T0_, T1_, T2_, T3_, T4_, T5_ = 92, 93, 94, 95, 96, 97
SP0, SP1 = 98, 99
NSGPR = 100

def srd(a, d, base, nbytes, off=0):
    if off:
        a(f"s_add_u32 s{d}, s{base}, {hex(off)}", f"s_addc_u32 s{d+1}, s{base+1}, 0")
    else:
        a(f"s_mov_b32 s{d}, s{base}", f"s_mov_b32 s{d+1}, s{base+1}")
    a(f"s_mov_b32 s{d+2}, {hex(nbytes)}", f"s_mov_b32 s{d+3}, 0x20000")

def red16(a, op, v):
    for r in (8, 4, 2, 1):
        a(f"{op}_dpp v{v}, v{v}, v{v} row_ror:{r} {DPPM}")
def red32(a, op, v, t):
    red16(a, op, v)
    a(f"v_mov_b32 v{t}, v{v}", f"v_permlane16_swap_b32 v{v}, v{t}", f"{op} v{v}, v{v}, v{t}")
def red64x2(a, op1, v1, t1, op2, v2, t2):
    for r in (8, 4, 2, 1):
        a(f"{op1}_dpp v{v1}, v{v1}, v{v1} row_ror:{r} {DPPM}", f"{op2}_dpp v{v2}, v{v2}, v{v2} row_ror:{r} {DPPM}")
    for ins in ("v_permlane16_swap_b32", "v_permlane32_swap_b32"):
        a(f"v_mov_b32 v{t1}, v{v1}", f"v_mov_b32 v{t2}, v{v2}", f"{ins} v{v1}, v{t1}", f"{ins} v{v2}, v{t2}")
        a(f"{op1} v{v1}, v{v1}, v{t1}", f"{op2} v{v2}, v{v2}, v{t2}")

SPIN = eval(os.environ.get("SPIN", "None"))
FL_SPIN = 240
def spin_rec(a, ph, i):
    if not SPIN or SPIN[1:] != (ph, i): return
    l = newlabel("SP")
    a(f"s_cmp_lg_u32 s{S_WAVE}, {SPIN[0]}", f"s_cbranch_scc1 {l}")
    a("s_memrealtime s[46:47]", "s_waitcnt lgkmcnt(0)", f"v_mov_b32 v{VONE}, s46", f"ds_write_b32 v{VZ}, v{VONE} offset:{FL_SPIN}", f"v_mov_b32 v{VONE}, 1")
    a(f"{l}:")
def spin_end(a):
    if not SPIN: return
    lo, hi = eval(os.environ.get("SPINI", "(0,18)"))
    a(f"s_sub_u32 s48, s{S_I}, {lo}", f"s_cmp_ge_u32 s48, {hi-lo}", "s_cbranch_scc1 KS_PEND")
    a("s_waitcnt vmcnt(0)")
    a(f"ds_read_b32 v8, v{VZ} offset:{FL_SPIN}", "s_memrealtime s[46:47]", "s_waitcnt lgkmcnt(0)", "v_readfirstlane_b32 s48, v8")
    if SPIN[2] == 9: a("s_mov_b32 s48, s46")
    if SPIN[2] == 0: a("s_mov_b32 s48, s44")
    if ENV("SPINREF", 1):
        a(f"global_load_dword v8, v{VZ}, s[{P_DBG}:{P_DBG+1}] offset:64 sc1", "s_waitcnt vmcnt(0)", "v_readfirstlane_b32 s44, v8", f"s_sub_u32 s44, s44, {ENV('SPINOFF', 50)}")
        if ENV("SPINMIN", 0): a("s_sub_u32 s48, s48, s44", f"s_sub_u32 s48, {ENV('SPINMIN', 0)}, s48", "s_mov_b32 s44, 0")
    if SPIN[2] == 10: a("s_memtime s[48:49]", "s_waitcnt lgkmcnt(0)", "s_sub_u32 s48, s48, s52", "s_lshr_b32 s48, s48, 6", "s_mov_b32 s44, 0")
    a("s_sub_u32 s48, s48, s44", "s_min_u32 s48, s48, 3000", "s_lshl_b32 s48, s48, 2")
    a("SPINL:", "s_memrealtime s[50:51]", "s_waitcnt lgkmcnt(0)", "s_sub_u32 s50, s50, s46", "s_cmp_lt_u32 s50, s48", "s_cbranch_scc1 SPINL")
def stamp_begin(a):
    if SPIN: a("s_memrealtime s[44:45]", "s_memtime s[52:53]")
    if not STAMP: return
    a("s_memrealtime s[44:45]")
    for i in range(1, 9): a(f"s_mov_b32 s{44+2*i}, 0")
def cstamp(a, i):
    if STAMP == 9: a(f"s_memtime s[{44+2*i}:{45+2*i}]")
def kstamp(a, i):
    if STAMP == 7: a(f"s_memtime s[{44+2*i}:{45+2*i}]")
def stamp(a, i, ph=1):
    spin_rec(a, ph, i)
    if ph == 2 and STAMP not in (2, 3): return
    if STAMP == 7 and i == 1: return kstamp(a, 1)
    if not STAMP or STAMP in (7, 9): return
    assert 1 <= i <= 8
    a(f"{'s_memtime' if STAMP == 8 else 's_memrealtime'} s[{44+2*i}:{45+2*i}]")
def stamp2(a, i):
    stamp(a, i, 2)
def stamp_end(a):
    if not STAMP: return
    a("s_waitcnt vmcnt(0) lgkmcnt(0)")
    a("s_memrealtime s[62:63]")
    a(f"s_lshl_b32 s43, s2, 4", f"s_add_u32 s43, s43, s{S_WAVE}", "s_lshl_b32 s43, s43, 6", f"s_add_u32 s43, s43, {hex(WS_STAMP)}")
    a("s_mov_b64 exec, 1")
    a("s_waitcnt lgkmcnt(0)")
    a("v_mov_b32 v1, s43")
    for i in range(10): a(f"v_mov_b32 v{4+i}, s{44+2*i}")
    a(f"global_store_dwordx4 v1, v[4:7], s[{P_WS}:{P_WS+1}]")
    a(f"global_store_dwordx4 v1, v[8:11], s[{P_WS}:{P_WS+1}] offset:16")
    a(f"global_store_dwordx2 v1, v[12:13], s[{P_WS}:{P_WS+1}] offset:32")
def endwave(a):
    stamp_end(a)
    a("s_endpgm")

def unpack(a, dst, src):
    a(f"v_lshlrev_b32 v{dst}, 16, v{src}", f"v_and_b32 v{dst+1}, 0xffff0000, v{src}")

def ln_stats(a, X, m2, rinv2, t0, t1, t2):
    a(f"v_pk_add_f32 v[{t0}:{t0+1}], v[{X}:{X+1}], v[{X+2}:{X+3}]")
    a(f"v_pk_add_f32 v[{t1}:{t1+1}], v[{X+4}:{X+5}], v[{X+6}:{X+7}]")
    for j in range(4, 9):
        t = t0 if j % 2 == 0 else t1
        a(f"v_pk_add_f32 v[{t}:{t+1}], v[{t}:{t+1}], v[{X+2*j}:{X+2*j+1}]")
    a(f"v_pk_add_f32 v[{t0}:{t0+1}], v[{t0}:{t0+1}], v[{t1}:{t1+1}]")
    a(f"v_add_f32 v{t0}, v{t0}, v{t0+1}")
    red32(a, "v_add_f32", t0, t1)
    a(f"v_mul_f32 v{t2}, {f32(1.0/576)}, v{t0}")
    a(f"v_mov_b32 v{t2+1}, v{t2}")
    a(f"v_cvt_pk_bf16_f32 v{m2}, v{t2}, v{t2}")
    a(f"v_and_b32 v{m2}, 0xffff0000, v{m2}", f"v_mov_b32 v{m2+1}, v{m2}")
    first = {t0: True, t1: True}
    for j in range(9):
        t = t0 if j % 2 == 0 else t1
        a(f"v_pk_add_f32 v[{rinv2}:{rinv2+1}], v[{X+2*j}:{X+2*j+1}], v[{t2}:{t2+1}] neg_lo:[0,1] neg_hi:[0,1]")
        if first[t]:
            a(f"v_pk_mul_f32 v[{t}:{t+1}], v[{rinv2}:{rinv2+1}], v[{rinv2}:{rinv2+1}]"); first[t] = False
        else:
            a(f"v_pk_fma_f32 v[{t}:{t+1}], v[{rinv2}:{rinv2+1}], v[{rinv2}:{rinv2+1}], v[{t}:{t+1}]")
    a(f"v_pk_add_f32 v[{t0}:{t0+1}], v[{t0}:{t0+1}], v[{t1}:{t1+1}]")
    a(f"v_add_f32 v{t0}, v{t0}, v{t0+1}")
    red32(a, "v_add_f32", t0, t1)
    a(f"v_mul_f32 v{t0}, {f32(1.0/576)}, v{t0}")
    a(f"v_cvt_pk_bf16_f32 v{t0}, v{t0}, v{t0}", f"v_and_b32 v{t0}, 0xffff0000, v{t0}")
    a(f"v_add_f32 v{t0}, {f32(1e-5)}, v{t0}")
    a(f"v_cvt_pk_bf16_f32 v{t0}, v{t0}, v{t0}", f"v_and_b32 v{t0}, 0xffff0000, v{t0}")
    a(f"v_sqrt_f32 v{t0}, v{t0}")
    a(f"v_cvt_pk_bf16_f32 v{t0}, v{t0}, v{t0}", f"v_and_b32 v{t0}, 0xffff0000, v{t0}")
    a(f"v_rcp_f32 v{rinv2}, v{t0}")
    a(f"v_mov_b32 v{rinv2+1}, v{rinv2}")

def ln_apply_pair(a, x, m2, rinv2, t, P):
    a(f"v_pk_add_f32 v[{t}:{t+1}], v[{x}:{x+1}], v[{m2}:{m2+1}] neg_lo:[0,1] neg_hi:[0,1]")
    a(f"v_cvt_pk_bf16_f32 v{P}, v{t}, v{t+1}")
    unpack(a, t, P)
    a(f"v_pk_mul_f32 v[{t}:{t+1}], v[{t}:{t+1}], v[{rinv2}:{rinv2+1}]")
    a(f"v_cvt_pk_bf16_f32 v{P}, v{t}, v{t+1}")
    unpack(a, t, P)

VZ, VONE = 4, 5
_lbl = [0]
def newlabel(p="L"):
    _lbl[0] += 1
    return f"{p}_{_lbl[0]}"
def guard(a):
    a(f"s_sub_u32 s{S_GUARD}, s{S_GUARD}, 1", "s_cbranch_scc1 KS_ABORT")
def lds_wait(a, off, t, kind="b4", addr=VZ, sleep=0):
    l = newlabel("W")
    a(f"{l}:")
    if sleep: a(f"s_sleep {sleep}")
    if kind == "b8":
        a(f"ds_read_b64 v[{t}:{t+1}], v{addr} offset:{off}")
    else:
        a(f"ds_read_{'u8' if kind == 'u8' else 'b32'} v{t}, v{addr} offset:{off}")
    guard(a)
    a("s_waitcnt lgkmcnt(0)")
    if kind == "b8": a(f"v_and_b32 v{t}, v{t}, v{t+1}")
    if kind in ("nz", "u8"): a(f"v_cmp_eq_u32 vcc, 0, v{t}")
    else: a(f"v_cmp_ne_u32 vcc, s{S_ONES}, v{t}")
    a(f"s_cbranch_vccnz {l}")

def zpoll(a, loads, regs, sleep):
    lp = newlabel("ZP"); l1 = newlabel("ZPE")
    a(f"s_branch {l1}")
    a(f"{lp}:")
    a(f"s_sleep {sleep}")
    a(f"{l1}:")
    for l in loads: a(l)
    guard(a)
    a("s_waitcnt vmcnt(0)")
    a(f"v_max3_u32 v44, v{regs[0]}, v{regs[1]}, v{regs[2]}")
    r = regs[3:]
    while len(r) >= 2: a(f"v_max3_u32 v44, v44, v{r[0]}, v{r[1]}"); r = r[2:]
    if r: a(f"v_max_u32 v44, v44, v{r[0]}")
    a("v_cmp_eq_u32 vcc, -1, v44", f"s_cbranch_vccnz {lp}")

class Pool:
    def __init__(self, regs): self.free = list(regs)
    def get(self): return self.free.pop(0)
    def put(self, r): self.free.append(r)
def ce_inlane(a, x, i, j, pool):
    t = pool.get()
    a(f"v_max_u32 v{t}, v{x[i]}, v{x[j]}", f"v_min_u32 v{x[j]}, v{x[i]}, v{x[j]}")
    pool.put(x[i]); x[i] = t
def clean8(a, x, pool, DE, rev=False):
    t = [pool.get() for _ in range(4)]
    for i in range(4):
        a(f"v_mov_b32_dpp v{t[i]}, v{x[3-i if rev else i]} quad_perm:[1,0,3,2] {DPPM}")
    for i in range(4):
        a(f"v_med3_u32 v{t[i]}, v{x[i]}, v{t[i]}, v{DE}")
    for i in range(4): pool.put(x[i]); x[i] = t[i]
    for (i, j) in ((0, 2), (1, 3), (0, 1), (2, 3)): ce_inlane(a, x, i, j, pool)
def merge_mirror(a, x, pool, M):
    c = [pool.get() for _ in range(4)]
    for i in range(4):
        a(f"v_max_u32_dpp v{c[i]}, v{x[3-i]}, v{x[i]} {M} {DPPM}")
    for i in range(4): pool.put(x[i]); x[i] = c[i]
def merge_pair(a, x, y, pool):
    for i in range(4):
        a(f"v_max_u32_dpp v{x[i]}, v{y[3-i]}, v{x[i]} quad_perm:[1,0,3,2] {DPPM}")
    for i in range(4): pool.put(y[i])
MIRRORS = ("quad_perm:[3,2,1,0]", "row_half_mirror", "row_mirror")

GW = 48
def g_addr_setup(a, A):
    a(f"s_sub_u32 s{S_G}, s{S_WAVE}, 12")
    a(f"s_mul_i32 s{T0_}, s{S_G}, 9", f"s_add_u32 s{T0_}, s{T0_}, 1", f"s_lshr_b32 s{S_ROLE}, s{T0_}, 1")
    a(f"s_lshl_b32 s{T0_}, s{S_ROLE}, 5", f"v_lshl_add_u32 v7, v3, 3, s{T0_}", "v_mul_u32_u24 v7, 9216, v7")
    a("v_and_b32 v6, 7, v2", "v_lshl_add_u32 v7, v6, 3, v7")
    a(f"s_lshl_b32 s{T0_}, s{S_BLK}, 6", f"v_add_u32 v7, s{T0_}, v7")
    a("v_cmp_gt_u32 vcc, 8, v2")
    a(f"s_mov_b32 s{R3}, 9216", f"s_mov_b32 s{R3+1}, 0", f"s_mov_b32 s{R3+2}, {9216*25}", f"s_mov_b32 s{R3+3}, 0")
    a(f"v_mov_b32 v{A}, s{P_GATE}", f"v_mov_b32 v{A+1}, s{P_GATE+1}", f"v_mov_b32 v6, s{P_UP}")
    a(f"v_cndmask_b32 v{A}, v6, v{A}, vcc", f"v_mov_b32 v6, s{P_UP+1}", f"v_cndmask_b32 v{A+1}, v6, v{A+1}, vcc")
    a(f"v_add_co_u32 v{A}, vcc, v{A}, v7", f"v_addc_co_u32 v{A+1}, vcc, 0, v{A+1}, vcc")
def g_loads(a, A, kss):
    for ks in kss:
        for r in range(8):
            d = GW + 16 * ks + 2 * r
            a(f"global_load_dwordx2 v[{d}:{d+1}], v[{A}:{A+1}], off" + (" nt" if ENV("GNT", 0) else ""))
            if not (ks == 4 and r == 7):
                a(f"v_lshl_add_u64 v[{A}:{A+1}], v[{A}:{A+1}], 0, s[{R3 if r < 7 else R3+2}:{R3+1 if r < 7 else R3+3}]")
GTRIG = ENV("GTRIG", 2)
PF = ENV("PF", 1)
NL, NN, NC = ENV("NL", 3), ENV("NN", 6), ENV("NC", 3)
NE = ENV("NE", 0)
NLL = ENV("NLL", 0)
PF0 = 16 * NL + 16 * NE + 16 * NLL
PF1 = PF0 + 8 * NN + 8 * NC
assert PF1 <= 166
PF2 = ENV("PF2", 166); PFD = ENV("PFD", 42); PFD2 = ENV("PFD2", 81)
GT = eval(os.environ.get("GT", "[2,2,6,6]")); DT = ENV("DT", 3)
def pf_lane(a, v, t):
    a(f"v_mul_u32_u24 v{v}, 57, v1", f"v_lshrrev_b32 v{v}, 9, v{v}", f"v_mul_u32_u24 v{t}, 9, v{v}", f"v_sub_u32 v{t}, v1, v{t}", f"v_mul_u32_u24 v{v}, 9216, v{v}", f"v_lshl_add_u32 v{v}, v{t}, 7, v{v}")
def pf_gu_setup(a, sidx, R=R2_, tb=T3_, tt=T4_):
    a(f"s_bitcmp1_b32 s{sidx}, 0", f"s_cselect_b32 s{R}, s{P_UP}, s{P_GATE}", f"s_cselect_b32 s{R+1}, s{P_UP+1}, s{P_GATE+1}")
    a(f"s_mov_b32 s{R+2}, {hex(D*F*2)}", f"s_mov_b32 s{R+3}, 0x20000")
    a(f"s_lshr_b32 s{tb}, s{sidx}, 1", f"s_mul_i32 s{tb}, s{tb}, {7*9216}", f"s_mul_i32 s{tt}, s{S_XC}, 1152", f"s_add_u32 s{tb}, s{tb}, s{tt}")
def pf_gu(a, v, sidx, nw, u0, u1, dst, done):
    assert u0 % 2 == 0 and nw % 2 == 0
    pf_gu_setup(a, sidx)
    k = 0
    while u0 + k * nw < u1:
        if u0 + (k + 1) * nw > u1: a(f"s_cmp_ge_u32 s{sidx}, {u1 - u0 - k*nw}", f"s_cbranch_scc1 {done}")
        a(f"s_add_u32 s{T4_}, s{T3_}, {(u0 + k*nw)//2*7*9216}")
        a(f"buffer_load_dword v{dst}, v{v}, s[{R2_}:{R2_+3}], s{T4_} offen")
        k += 1
def pf_down(a, sidx, nw, u0, u1, v, dst, done, R=R2_):
    srd(a, R, P_DOWN, D * F * 2)
    a(f"s_lshl_b32 s{T3_}, s{sidx}, 13", f"s_mul_i32 s{T4_}, s{S_XC}, {576*1152}", f"s_add_u32 s{T3_}, s{T3_}, s{T4_}", f"v_lshlrev_b32 v{v}, 7, v1")
    k = 0
    while u0 + k * nw < u1:
        if u0 + (k + 1) * nw > u1: a(f"s_cmp_ge_u32 s{sidx}, {u1 - u0 - k*nw}", f"s_cbranch_scc1 {done}")
        a(f"s_add_u32 s{T4_}, s{T3_}, {(u0 + k*nw)*8192}")
        a(f"buffer_load_dword v{dst}, v{v}, s[{R}:{R+3}], s{T4_} offen")
        k += 1
def gen_ln1(a):
    LW, TB = T5_, S_CH
    X, RAW = 8, 26
    a(f"s_sub_u32 s{T0_}, s{S_I}, 8", f"s_and_b32 s{TB}, s{T0_}, 7", f"s_lshr_b32 s{T0_}, s{T0_}, 3", f"s_lshl_b32 s{T0_}, s{T0_}, 4", f"s_add_u32 s{TB}, s{TB}, s{T0_}")
    a(f"s_and_b32 s{T0_}, s{S_XC}, 1", f"s_lshl_b32 s{T0_}, s{T0_}, 3", f"s_add_u32 s{TB}, s{TB}, s{T0_}", f"s_lshr_b32 s{T0_}, s{S_XC}, 1", f"s_lshl_b32 s{T0_}, s{T0_}, 5", f"s_add_u32 s{TB}, s{TB}, s{T0_}")
    a("v_lshrrev_b32 v36, 5, v1", "v_and_b32 v37, 31, v1")
    a("v_mul_u32_u24 v38, 1152, v36", "v_lshl_add_u32 v39, v37, 2, v38", "v_lshl_add_u32 v38, v37, 4, v38")
    a(f"s_mul_i32 s{T1_}, s{TB}, 18432", f"s_mul_i32 s{T2_}, s{LW}, 2304", f"s_add_u32 s{T1_}, s{T1_}, s{T2_}")
    a("s_waitcnt lgkmcnt(0)")
    stamp(a, 1)
    srd(a, R0, P_X, XBYTES)
    a(f"buffer_load_dwordx4 v[{RAW}:{RAW+3}], v38, s[{R0}:{R0+3}], s{T1_} offen")
    a(f"buffer_load_dwordx4 v[{RAW+4}:{RAW+7}], v38, s[{R0}:{R0+3}], s{T1_} offen offset:512")
    a(f"buffer_load_dword v{RAW+8}, v39, s[{R0}:{R0+3}], s{T1_} offen offset:1024")
    a("s_barrier")
    a(f"s_lshr_b32 s{T1_}, s{LW}, 2", f"s_lshl_b32 s{T1_}, s{T1_}, 6", f"s_add_u32 s{T2_}, s{T2_}, s{T1_}", f"s_add_u32 s{T2_}, s{T2_}, {C_LNB}")
    a(f"v_lshl_add_u32 v35, v37, 1, v36")
    a(f"s_mov_b32 s{SP0}, 0x05040100", f"s_mov_b32 s{SP1}, 0x07060302")
    def waits(n):
        for (c, js) in ((2, range(0, 4)), (1, range(4, 8)), (0, range(8, 9))):
            a(f"s_waitcnt vmcnt({c+n})")
            for j in js: unpack(a, X + 2 * j, RAW + j)
    l1 = newlabel("LN1A"); l2 = newlabel("LN1B")
    if NL:
        LW0 = ENV("NLW", 4)
        pf_lane(a, 46, 47)
        a(f"s_sub_u32 s{T1_}, s{LW}, {LW0}", f"s_and_b32 s{T1_}, s{T1_}, 7", f"s_lshl_b32 s{T3_}, s{T1_}, 4", f"s_add_u32 s{T3_}, s{T3_}, s{S_I}", f"s_sub_u32 s{T3_}, s{T3_}, 8")
        pf_gu_setup(a, T3_, R3, T4_, T0_)
    if NL and ENV("NLE", 0):
        a(f"s_cmp_lt_u32 s{T1_}, {NL}", f"s_cselect_b32 s{T4_}, s{T4_}, {hex(D*F*2)}")
        a(f"buffer_load_dword v47, v46, s[{R3}:{R3+3}], s{T4_} offen")
        waits(1)
    else:
        waits(0)
    if NL and not ENV("NLE", 0):
        if ENV("X0", 0): a(f"s_cmp_eq_u32 s{S_XC}, 0", f"s_cbranch_scc1 {l1}")
        a(f"s_cmp_ge_u32 s{T1_}, {NL}", f"s_cbranch_scc1 {l1}")
        a(f"buffer_load_dword v47, v46, s[{R3}:{R3+3}], s{T4_} offen")
        a(f"{l1}:")
    stamp(a, 2)
    a(f"v_lshl_add_u32 v6, v35, 4, s{T2_}", f"v_lshl_add_u32 v7, v35, 2, s{T2_}")
    a(f"v_mul_u32_u24 v35, 0x20202, v36", "v_lshl_add_u32 v35, v36, 25, v35", "v_add_u32 v35, 0x05040100, v35")
    ln_stats(a, X, 36, 38, 40, 42, 44)
    for j in range(9):
        if j == ENV("DSAMP", 3): a("v_and_b32 v59, 3, v1", "v_lshlrev_b32 v59, 2, v59", f"global_load_dword v58, v59, s[{P_DBG}:{P_DBG+1}] sc1")
        ln_apply_pair(a, X + 2 * j, 36, 38, 40, 42)
        a(f"v_cvt_pk_f16_f32 v{RAW+j}, v40, v41")
        if j in (3, 7):
            P = RAW + j - 3; O = X + 2 * (j - 3)
            a(f"v_permlane32_swap_b32 v{P}, v{P+2}", f"v_permlane32_swap_b32 v{P+1}, v{P+3}")
            a(f"v_perm_b32 v{O}, v{P+2}, v{P}, s{SP0}", f"v_perm_b32 v{O+1}, v{P+2}, v{P}, s{SP1}")
            a(f"v_perm_b32 v{O+2}, v{P+3}, v{P+1}, s{SP0}", f"v_perm_b32 v{O+3}, v{P+3}, v{P+1}, s{SP1}")
            a(f"ds_write_b128 v6, v[{O}:{O+3}] offset:{1024*(j//4)}")
    a(f"v_mov_b32 v40, v{RAW+8}", f"v_permlane32_swap_b32 v{RAW+8}, v40")
    a(f"v_perm_b32 v40, v40, v{RAW+8}, v35")
    a(f"ds_write_b32 v7, v40 offset:2048")
    a(f"v_mov_b32 v6, s{LW}")
    a(f"ds_write_b8 v6, v{VONE} offset:{FL_LN1}")
    a("s_setprio 0")
    a(f"s_cmp_ge_u32 s{LW}, 4", "s_cbranch_scc1 KS_X4")
    a("s_setprio 3")
    srd(a, R2_, P_WS, XBYTES, WS_UT)
    a("v_and_b32 v6, 1, v0", "v_mul_u32_u24 v6, 9280, v6", "v_lshrrev_b32 v7, 1, v0", "v_lshl_add_u32 v6, v7, 2, v6", f"v_add_u32 v6, {C_LNB}, v6")
    a("v_lshrrev_b32 v7, 2, v0", "v_lshlrev_b32 v7, 13, v7", "v_and_b32 v8, 3, v0", "v_lshl_add_u32 v7, v8, 4, v7")
    a(f"s_lshl_b32 s{T0_}, s{TB}, 6")
    for k in range(1, 5): a(f"s_add_u32 s{T0_+k}, s{T0_}, {0x80000*k}")
    dbg_wait(a, 0)
    a(f"ds_write_b32 v59, v58 offset:{FL_NONCE}")
    a(f"s_mov_b32 s{SP0}, {hex(TAGM)}")
    for d in range(1, 4): a(f"v_lshrrev_b32 v{58-d}, {3*d}, v58")
    lds_wait(a, FL_LN1, 20, "b8")
    stamp(a, 3)
    for k in range(5):
        a(f"ds_read2st64_b32 v[{20+4*k}:{21+4*k}], v6 offset0:{2*k} offset1:{9+2*k}")
        a(f"ds_read2st64_b32 v[{22+4*k}:{23+4*k}], v6 offset0:{18+2*k} offset1:{27+2*k}")
    for k in range(5):
        a(f"s_waitcnt lgkmcnt({8-2*k})")
        for d in range(4): a(f"v_bfi_b32 v{20+4*k+d}, s{SP0}, v{58-d}, v{20+4*k+d}")
        a(f"buffer_store_dwordx4 v[{20+4*k}:{23+4*k}], v7, s[{R2_}:{R2_+3}], s{T0_+k} offen {MOD('USMOD')}")
    stamp(a, 4)

def dbg_wait(a, n, vt=58, va=59):
    lp = newlabel("DBP"); go = newlabel("DBG")
    a(f"s_waitcnt vmcnt({n})")
    a(f"{lp}:")
    a(f"v_cmp_eq_u32 vcc, 0, v{vt}", f"s_cbranch_vccz {go}")
    a("s_sleep 1")
    a(f"global_load_dword v{vt}, v{va}, s[{P_DBG}:{P_DBG+1}] sc1")
    guard(a)
    a("s_waitcnt vmcnt(0)")
    a(f"s_branch {lp}")
    a(f"{go}:")

ROLE_TILES = {0: [0, 1, 2, 3, 4], 1: [0, 1, 2, 3, 4], 2: [5, 6, 7], 3: [5, 6, 7]}
ROLE_W = {2: 0, 3: 1, 1: 2}
ACC, DA, RING, WT = 16, 36, 76, 92
NRING = 4

def epi_plan():
    owner = {0: (0, 0), 1: (0, 1), 2: (1, 0), 3: (1, 1), 4: (1, 3), 5: (0, 2), 6: (0, 3), 7: (1, 2)}
    slots = {}
    cnt = [0, 0]
    for g in range(2):
        for role in range(4):
            for j in ROLE_TILES[role]:
                if owner[j] == (g, role): continue
                slots[(g, role, j)] = g * G_SIZE + R_RED + 1024 * cnt[g]; cnt[g] += 1
    assert max(cnt) <= 13, cnt
    ownerC = {0: 0, 1: 0, 2: 1, 3: 1, 4: 2, 5: 2, 6: 3, 7: 3}
    n = 0
    for role in range(4):
        for j in ROLE_TILES[role]:
            if ownerC[j] == role: continue
            slots[(2, role, j)] = 2 * G_SIZE + R_RED + 1024 * n; n += 1
    return owner, ownerC, slots

class LdsTrack:
    def __init__(self, a): self.a = a; self.n = 0; self.done = -1
    def issue(self, text): self.a(text); self.n += 1; return self.n - 1
    def wait(self, idx):
        k = self.n - 1 - idx
        if idx <= self.done: return
        self.done = idx
        if k <= 15: self.a(f"s_waitcnt lgkmcnt({k})")

CZ0, CZ1, CSH, CXR, CFL, SIS, CM, SM, SC, SSC, SDL = 6, 7, 8, 9, 10, 11, 12, 14, 15, 16, 18
IXR, LFR = (108, 109, 112, 113), (110, 111, 114, 115)
def stage_write(a, off):
    a("v_lshl_or_b32 v24, v25, 16, v24", "v_lshl_or_b32 v25, v27, 16, v26", f"ds_write_b64 v28, v[24:25] offset:{off}")
def pre_ixlf(a):
    end = newlabel("PX"); j1 = newlabel("PX"); j2 = newlabel("PX"); jn = newlabel("PX")
    a(f"s_cmp_eq_u32 s{S_ROLE}, 3", f"s_cbranch_scc1 {end}")
    a("v_lshlrev_b32 v26, 3, v2", "v_mov_b32 v21, 0x80")
    a(f"s_cmp_eq_u32 s{S_ROLE}, 1", f"s_cbranch_scc1 {j1}", f"s_cmp_eq_u32 s{S_ROLE}, 2", f"s_cbranch_scc1 {j2}")
    a("v_lshl_add_u32 v26, v3, 1, v26", "v_mov_b32 v22, 1")
    a(f"s_branch {jn}")
    a(f"{j1}:")
    a("v_cmp_gt_u32 vcc, 2, v3", "v_lshl_add_u32 v20, v3, 2, v26", "v_add_u32 v20, 256, v20", "v_lshl_add_u32 v26, v3, 8, v26", "v_cndmask_b32 v26, v26, v20, vcc")
    a("v_cndmask_b32 v22, v21, 2, vcc", "v_cndmask_b32 v21, 4, v21, vcc")
    a(f"s_branch {jn}")
    a(f"{j2}:")
    a("v_lshl_add_u32 v26, v3, 9, v26", "v_add_u32 v26, 0x400, v26", "v_mov_b32 v22, 0x100")
    a(f"{jn}:")
    a(f"v_mad_u32_u24 v26, v22, s{S_G}, v26", "v_add_u32 v27, v26, v21", f"s_movk_i32 s{T4_}, {T_TAB}", f"s_movk_i32 s{T5_}, {-(0x4280 + 0x800)}", f"s_lshl_b32 s{T3_}, s{S_G}, 9")
    for r in range(2): a(f"v_cvt_f32_u32 v{20+r}, v{26+r}", f"v_max_u32 v{22+r}, 0x800, v{26+r}")
    for r in range(2):
        a(f"v_cmp_gt_u32 vcc, 0x80, v{26+r}", f"v_lshrrev_b32 v{24+r}, 16, v{20+r}", f"v_add3_u32 v{24+r}, v{24+r}, v{22+r}, s{T5_}", f"v_cndmask_b32 v{24+r}, v{24+r}, v{26+r}, vcc")
    for r in range(2):
        a(f"v_min_u32 v{24+r}, {IDX_DUMMY}, v{24+r}", f"v_lshl_add_u32 v{24+r}, v{24+r}, 1, s{T4_}")
    a(f"v_add_u32 v29, s{T3_}, v28")
    a("v_lshl_or_b32 v24, v25, 16, v24", "v_lshl_or_b32 v25, v27, 16, v26", "ds_write_b64 v29, v[24:25]")
    a(f"{end}:")

def gen_group(a):
    RAW, VLDT, VDSK, VNT, VNA, VPR, VEM, VTE, VTL = 40, 46, 107, 104, 105, 106, 72, 126, 127
    I1, D2, I2, D1, D3 = 116, 119, 120, 124, 125
    a(f"s_lshl_b32 s{T0_}, s{S_CH}, 8", f"v_lshl_add_u32 v20, v1, 2, s{T0_}")
    a(f"s_lshl_b32 s{T0_}, s{S_CH}, 1", f"v_mov_b32 v21, s{T0_}")
    a(f"s_mul_i32 s{S_GB}, s{S_G}, {G_SIZE}", f"s_add_u32 s{S_GB}, s{S_GB}, {G_BASE}")
    a("s_waitcnt lgkmcnt(0)")
    stamp(a, 1)
    a(f"global_load_ushort v{VLDT}, v21, s[{P_LDT}:{P_LDT+1}]")
    for k in range(6):
        a(f"global_load_dword v{RAW+k}, v20, s[{P_ARE+2*k}:{P_ARE+2*k+1}]")
    a(f"global_load_ushort v{VDSK}, v21, s[{P_DSK}:{P_DSK+1}]")
    a("s_barrier")
    a(f"s_movk_i32 s{T4_}, {T_TAB}")
    def dr_addr(dst, x, special=False):
        a(f"v_sub_u32 v30, 544, v{x}", "v_cvt_f32_i32 v31, v30", "v_cmp_gt_u32 vcc, 0x100, v30", "v_cvt_pk_bf16_f32 v31, v31, v31", "v_and_b32 v31, 0xffff, v31", "v_subrev_u32 v31, 0x4280, v31")
        a("v_cndmask_b32 v31, v31, v30, vcc", "v_cmp_lt_u32 vcc, 0x20d, v30")
        if special: a(f"v_or_b32 v30, 1, v{x}")
        a("v_cndmask_b32 v31, v31, v32, vcc")
        if special: a("v_cmp_eq_u32 vcc, 0x25d, v30", "v_cndmask_b32 v31, v31, v33, vcc")
        a(f"v_lshl_add_u32 v{dst}, v31, 1, s{T4_}")
    def g_addr(dst, y0, base, M):
        a(f"v_sub_u32 v30, {y0}, v23", f"v_cmp_lt_u32 vcc, {M}, v30", f"v_lshlrev_b32 v31, 2, v30", f"v_add_u32 v31, {T_TAB + 2*base}, v31", f"v_cndmask_b32 v{dst}, v31, v33, vcc")
    pb = newlabel("PREB"); pw = newlabel("PREW"); pe = newlabel("PREE")
    a(f"s_cmp_eq_u32 s{S_G}, 2", f"s_cbranch_scc1 {pe}")
    a(f"v_mov_b32 v32, {IDX_ZERO}")
    a(f"s_cmp_eq_u32 s{S_G}, 1", f"s_cbranch_scc1 {pb}")
    jl = [newlabel("PRE") for _ in range(4)]
    a(f"v_mov_b32 v33, {T_TAB + 2*IDX_ZERO}")
    for r in range(1, 4): a(f"s_cmp_eq_u32 s{S_ROLE}, {r}", f"s_cbranch_scc1 {jl[r]}")
    a("v_lshlrev_b32 v23, 1, v1")
    for e, (y0, base, M) in enumerate(((93, 389, 61), (92, 389, 61), (94, 388, 62), (93, 388, 62))): g_addr(24 + e, y0, base, M)
    a(f"s_branch {pw}")
    for r, base in ((1, 513), (2, 514)):
        a(f"{jl[r]}:")
        a("v_min_u32 v23, 47, v1", "v_lshlrev_b32 v23, 1, v23")
        for e, y0 in ((0, 64), (1, 63), (3, 62)): g_addr(24 + e, y0, base, 63)
        a("v_mov_b32 v26, v25")
        a(f"s_branch {pw}")
    a(f"{jl[3]}:")
    a("v_cmp_gt_u32 vcc, 9, v1", "v_add_u32 v23, 0x100, v1", "v_mov_b32 v33, 0x200", "v_cndmask_b32 v23, v23, v1, vcc", "v_lshlrev_b32 v23, 1, v23")
    for e in (0, 1, 3):
        if e: a("v_add_u32 v23, 1, v23")
        dr_addr(24 + e, 23, special=True)
    a("v_mov_b32 v26, v25")
    a(f"s_branch {pw}")
    a(f"{pb}:")
    a(f"s_lshl_b32 s{T1_}, s{S_ROLE}, 7", f"s_add_u32 s{T1_}, s{T1_}, 18", f"v_lshl_add_u32 v23, v1, 1, s{T1_}")
    for e in range(3):
        if e: a("v_add_u32 v23, 1, v23")
        dr_addr(24 + e, 23)
    a(f"s_sub_u32 s{T1_}, s{S_ROLE}, 1", f"s_cmp_lt_u32 s{T1_}, 2", f"s_cselect_b32 s{T2_}, 47, 63", f"s_mul_i32 s{T1_}, s{T1_}, {T_G9E - T_G7E}", f"s_add_u32 s{T1_}, s{T1_}, {T_G7E}")
    a(f"s_cmp_eq_u32 s{S_ROLE}, 0", f"s_cselect_b32 s{T1_}, {T_G3}, s{T1_}", f"s_cmp_eq_u32 s{S_ROLE}, 3", f"s_cselect_b32 s{T1_}, {T_DRE}, s{T1_}", f"s_cselect_b32 s{T3_}, 0x100, 0")
    a("v_cmp_gt_u32 vcc, 9, v1", f"v_min_u32 v23, s{T2_}, v1", f"v_add_u32 v30, s{T3_}, v23", "v_cndmask_b32 v23, v30, v23, vcc", f"v_lshl_add_u32 v27, v23, 2, s{T1_}")
    stage_write(a, 1024)
    a(f"v_mov_b32 v24, s{S_ROLE}", f"ds_write_b8 v24, v{VONE} offset:{FL_PRE + 4}")
    a(f"s_branch {pe}")
    a(f"{pw}:")
    stage_write(a, 1536)
    a(f"v_mov_b32 v24, s{S_ROLE}", f"ds_write_b8 v24, v{VONE} offset:{FL_PRE}")
    a(f"{pe}:")
    a(f"s_mul_i32 s{T1_}, s{S_ROLE}, {16*KG_ROW}", f"s_min_u32 s{T2_}, s{T1_}, {KG_T[3]}", f"s_add_u32 s{T2_}, s{T2_}, s{S_GB}")
    a(f"s_lshl_b32 s{T0_}, s{S_G}, 4", f"v_mov_b32 v14, s{T0_}", f"v_add_u32 v15, s{S_ROLE}, v14")
    a(f"v_lshl_add_u32 v{VEM}, v1, 3, s{T2_}")
    for k in range(1, 4): a(f"v_add_u32 v{VEM+k}, {4*KG_ROW*k}, v{VEM}")
    a(f"v_mul_u32_u24 v{VTE}, {KG_ROW}, v2", f"v_lshl_add_u32 v{VTE}, v3, 4, v{VTE}", f"v_add_u32 v{VTE}, s{S_GB}, v{VTE}", f"v_add_u32 v{VTL}, s{T1_}, v{VTE}")
    VDA, VDA2, VB_, VT8, VT16, VG8, VG16, VLN = 6, 7, 8, 9, 10, 11, 13, 12
    a("v_lshlrev_b32 v20, 3, v3", "v_sub_u32 v20, v20, v2", "v_add_u32 v21, 16, v20", "v_lshrrev_b32 v21, 1, v21")
    a("v_and_b32 v22, 1, v2", f"s_add_u32 s{T0_}, s{S_GB}, {T_DRE}", f"v_lshl_add_u32 v21, v21, 2, s{T0_}", f"s_movk_i32 s{T0_}, {T_DRO - T_DRE}", f"s_movk_i32 s{T2_}, {T_G7O - T_G7E}")
    a(f"v_mad_u32_u24 v{VDA}, v22, s{T0_}, v21", f"v_add_u32 v{VDA2}, 640, v{VDA}")
    a(f"v_mad_u32_u24 v23, v22, s{T2_}, v21", f"v_add_u32 v{VG16}, {T_G7E - T_DRE}, v23")
    a("v_lshlrev_b32 v23, 2, v3", "v_sub_u32 v23, v23, v2", f"s_add_u32 s{T0_}, s{S_GB}, {T_G3 + 60}", f"v_lshl_add_u32 v{VG8}, v23, 2, s{T0_}")
    a(f"s_mul_i32 s{T2_}, s{S_G}, {U_SIZE}", f"s_add_u32 s{T2_}, s{T2_}, {C_U}")
    a(f"v_lshl_add_u32 v23, v2, 5, s{T2_}", f"v_lshl_add_u32 v{VB_}, v3, 4, v23")
    a("v_bfe_u32 v20, v1, 2, 2", "v_and_b32 v21, 3, v1", "v_lshl_add_u32 v20, v3, 3, v20")
    a(f"v_lshlrev_b32 v{VNA}, 2, v21")
    a(f"v_lshl_add_u32 v21, v21, 3, s{S_GB}", f"v_lshl_add_u32 v{VT8}, v20, 4, v21", f"v_lshl_add_u32 v{VT16}, v20, 5, v21")
    a(f"v_lshlrev_b32 v{VLN}, 4, v1")
    srd(a, R0, P_WS, 0x240000, WS_ZB1)
    a(f"s_lshl_b32 s{T0_}, s{S_ROLE}, 19", f"s_lshl_b32 s{T1_}, s{S_B2}, 6", f"s_add_u32 s{T0_}, s{T0_}, s{T1_}")
    a(f"s_lshl_b32 s{T1_}, s{S_ROLE}, 16", f"s_lshl_b32 s{T3_}, s{S_CH}, 6", f"s_add_u32 s{T1_}, s{T1_}, s{T3_}", f"s_add_u32 s{T1_}, s{T1_}, {0x200000 - 512*64}")
    a(f"s_cmp_eq_u32 s{S_G}, 2", f"s_cselect_b32 s{CZ0}, s{T1_}, s{T0_}", f"s_cselect_b32 s{CSH}, 12, 15", f"s_add_u32 s{CZ1}, s{CZ0}, 16384")
    a(f"s_and_b32 s{CXR}, s{S_G}, 1", f"s_lshl_b32 s{CXR}, s{CXR}, 4", f"s_mov_b32 s{CM}, 0x55555555", f"s_mov_b32 s{CM+1}, 0x55555555")
    a(f"s_lshl_b32 s{T0_}, s{S_ROLE}, 8", f"s_add_u32 s{T0_}, s{T0_}, s{S_GB}", f"s_add_u32 s{T0_}, s{T0_}, 36", f"v_lshl_add_u32 v{D1}, v1, 2, s{T0_}")
    a(f"s_movk_i32 s{T0_}, {T_G7O - T_G7E}", f"s_cmp_eq_u32 s{S_ROLE}, 0", f"s_cselect_b32 s{T0_}, {T_G5 - T_G3}, s{T0_}", f"s_cmp_eq_u32 s{S_ROLE}, 3", f"s_cselect_b32 s{T0_}, {T_DRO - T_DRE}, s{T0_}")
    a(f"v_mov_b32 v20, s{S_GB}", f"ds_write_b16 v20, v{VZ} offset:{T_TAB + 2*IDX_ZERO}")
    a(f"s_mov_b32 s{SDL}, s{T0_}", f"v_mov_b32 v{D3}, v28")
    def stage_read():
        lds_wait(a, FL_PRE, 18, "b8")
        a(f"ds_read2st64_b64 v[28:31], v{D3} offset0:0 offset1:1", f"ds_read2st64_b64 v[32:35], v{D3} offset0:2 offset1:3")
    def stage_unpack():
        for k in range(16):
            src = 28 + k // 2; w = f"WORD_{k & 1}"
            if 108 + k in LFR: a(f"v_cvt_f32_u32_sdwa v{108+k}, v{src} dst_sel:DWORD dst_unused:UNUSED_PAD src0_sel:{w}")
            else: a(f"v_add_u32_sdwa v{108+k}, s{S_GB}, v{src} dst_sel:DWORD dst_unused:UNUSED_PAD src0_sel:DWORD src1_sel:{w}")
        a(f"v_add_u32 v{D3}, s{SDL}, v{D2}")
    stage_read()
    a("s_waitcnt lgkmcnt(0)")
    stage_unpack()
    ex = newlabel("EXP")
    if KOFF: a(f"s_lshl_b32 s{T0_}, s{S_G}, 5", f"s_add_u32 s{T0_}, s{T0_}, s{S_I}", f"s_cmp_ge_u32 s{T0_}, {64 + 24}", "s_cbranch_scc1 KC_RECV")
    a(f"s_mov_b32 s{T0_}, {f32(LOG2E_HI)}", f"s_mov_b32 s{T1_}, {f32(LOG2E_LO)}", f"s_mov_b32 s{T2_}, {f32(INV2PI_HI)}", f"s_mov_b32 s{T3_}, {f32(INV2PI_LO)}")
    a(f"s_waitcnt vmcnt(7)")
    a(f"v_lshlrev_b32 v16, 16, v{VLDT}")
    a(f"v_mul_f32 v17, s{T0_}, v16")
    a(f"v_fma_f32 v19, v16, s{T0_}, -v17", f"v_fmac_f32 v19, s{T1_}, v16")
    a("v_exp_f32 v17, v17")
    a(f"v_mul_f32 v19, {f32(math.log(2.0))}, v19")
    a("v_fmac_f32 v17, v17, v19")
    a("v_cvt_pk_bf16_f32 v17, v17, v17", "v_and_b32 v16, 0xffff0000, v17")
    a(f"s_waitcnt vmcnt(5)")
    stamp(a, 2)
    a(f"ds_write_b32 v{VZ}, v{VONE} offset:{FL_PARAM}")
    THH, THL = 68, 70
    for k in range(2): unpack(a, 20 + 2 * k, RAW + k)
    for k in range(2): a(f"v_pk_mul_f32 v[{20+2*k}:{21+2*k}], v[{20+2*k}:{21+2*k}], v[16:17] op_sel_hi:[1,0]")
    a("v_max_f32 v36, v20, v21")
    a(f"v_pk_mul_f32 v[{THH}:{THH+1}], v[22:23], s[{T2_}:{T3_}] op_sel_hi:[1,0]")
    a(f"v_pk_fma_f32 v[{THL}:{THL+1}], v[22:23], s[{T2_}:{T3_}], v[{THH}:{THH+1}] op_sel_hi:[1,0,1] neg_lo:[0,0,1] neg_hi:[0,0,1]")
    a(f"v_pk_fma_f32 v[{THL}:{THL+1}], v[22:23], s[{T2_}:{T3_}], v[{THL}:{THL+1}] op_sel:[0,1,0]")
    T = 90
    def cmul_(dr, di, ar, ai, br, bi, t=T):
        assert di not in (ar, br, bi)
        return [f"v_pk_mul_f32 v[{t}:{t+1}], v[{ai}:{ai+1}], v[{bi}:{bi+1}]",
                f"v_pk_mul_f32 v[{t+2}:{t+3}], v[{ai}:{ai+1}], v[{br}:{br+1}]",
                f"v_pk_fma_f32 v[{di}:{di+1}], v[{ar}:{ar+1}], v[{bi}:{bi+1}], v[{t+2}:{t+3}]",
                f"v_pk_fma_f32 v[{dr}:{dr+1}], v[{ar}:{ar+1}], v[{br}:{br+1}], v[{t}:{t+1}] neg_lo:[0,0,1] neg_hi:[0,0,1]"]
    def cm_(d, x, y, t=T): return cmul_(d, d + 2, x, x + 2, y, y + 2, t)
    def csq_(d, s_, t=T):
        return [f"v_pk_mul_f32 v[{t}:{t+1}], v[{s_+2}:{s_+3}], v[{s_+2}:{s_+3}]",
                f"v_pk_mul_f32 v[{t+2}:{t+3}], v[{s_}:{s_+1}], v[{s_+2}:{s_+3}]",
                f"v_pk_fma_f32 v[{d}:{d+1}], v[{s_}:{s_+1}], v[{s_}:{s_+1}], v[{t}:{t+1}] neg_lo:[0,0,1] neg_hi:[0,0,1]",
                f"v_pk_add_f32 v[{d+2}:{d+3}], v[{t+2}:{t+3}], v[{t+2}:{t+3}]"]
    def cmul(*x): a(*cmul_(*x))
    def csq(*x): a(*csq_(*x))
    CBR, CBI = 32, 34
    sk = newlabel("SK")
    a(f"s_cmp_eq_u32 s{S_ROLE}, 3", f"s_cbranch_scc1 {sk}")
    a("s_waitcnt vmcnt(1)")
    for k in range(2, 6): unpack(a, 20 + 2 * k, RAW + k)
    for k in range(2, 4): a(f"v_pk_mul_f32 v[{20+2*k}:{21+2*k}], v[{20+2*k}:{21+2*k}], v[16:17] op_sel_hi:[1,0]")
    cmul(CBR, CBI, 28, 30, 24, 26)
    a(f"v_max3_f32 v37, abs(v{CBI}), abs(v{CBI+1}), abs(v{CBR})", f"v_max_f32 v37, v37, abs(v{CBR+1})")
    a(f"{sk}:")
    a("s_waitcnt vmcnt(0)")
    a.flush(1)
    a("v_permlane32_swap_b32 v36, v37", "v_max_f32 v36, v36, v37")
    red32(a, "v_max_f32", 36, 38)
    a(f"v_readlane_b32 s{SM}, v36, 0", f"v_readlane_b32 s{SC}, v36, 32")
    a(f"s_add_u32 s{SC}, s{SC}, 0x7fffff", f"s_lshr_b32 s{SC}, s{SC}, 23", f"s_max_u32 s{SC}, s{SC}, 24", f"s_sub_u32 s{SSC}, 269, s{SC}", f"s_lshl_b32 s{SSC}, s{SSC}, 23")
    a(f"v_subrev_f32 v20, s{SM}, v20", f"v_subrev_f32 v21, s{SM}, v21")
    a(f"v_mul_f32 v20, {f32(LOG2E)}, v20", f"v_mul_f32 v21, {f32(LOG2E)}, v21")
    def scale_cb():
        a(f"v_pk_mul_f32 v[{CBR}:{CBR+1}], v[{CBR}:{CBR+1}], s[{SSC}:{SSC+1}] op_sel_hi:[1,0]", f"v_pk_mul_f32 v[{CBI}:{CBI+1}], v[{CBI}:{CBI+1}], s[{SSC}:{SSC+1}] op_sel_hi:[1,0]")
    def anchor(dr, di, l, conj=False):
        lit = {1: "1.0", 2: "2.0"}.get(l, f32(float(l)))
        for e in range(2):
            t = T + 4 * e
            if l != 1: a(f"v_mul_f32 v{t+1}, {lit}, v{THH+e}", f"v_mul_f32 v{t}, {lit}, v{20+e}")
        for e in range(2):
            t = T + 4 * e
            a(f"v_fract_f32 v{t+1}, v{t+1 if l != 1 else THH+e}")
        for e in range(2):
            t = T + 4 * e
            a(f"v_fmac_f32 v{t+1}, {lit}, v{THL+e}")
        for e in range(2):
            t = T + 4 * e
            a(f"v_exp_f32 v{t}, v{t if l != 1 else 20+e}", f"v_cos_f32 v{t+2}, v{t+1}", f"v_sin_f32 v{t+1}, v{t+1}")
        for e in range(2):
            t = T + 4 * e
            a(f"v_mul_f32 v{dr+e}, v{t}, v{t+2}")
            a(f"v_mul_f32 v{di+e}, v{t}, {'-' if conj else ''}v{t+1}")
    em = [0, None]
    def it(cms, row=None, x=None, y=None):
        if em[1]: a(em[1]); em[1] = None
        for k in range(4):
            for c in cms:
                if k < len(c): a(c[k])
        if row is None: return
        t = (98, 76)[em[0] & 1]; em[0] += 1
        for v, tt in ((x, t), (y, t + 2)):
            if v is not None: a(f"v_cvt_pk_f16_f32 v{tt}, v{v}, v{v+2}", f"v_cvt_pk_f16_f32 v{tt+1}, v{v+1}, v{v+3}")
        o = (row & 3) * KG_ROW // 8
        if y is None: em[1] = f"ds_write_b64 v{VEM + row//4}, v[{t}:{t+1}] offset:{8*o}"
        else: em[1] = f"ds_write2_b64 v{VEM + row//4}, v[{t}:{t+1}], v[{t+2}:{t+3}] offset0:{o} offset1:{o + KG_ROW//8}"
    G1, G2, G3 = 40, 44, 48
    VA, VB, VC, VD = 52, 56, 60, 64
    oth = lambda c, p, q: p if c != p else q
    jl = [newlabel("JOB") for _ in range(4)]; jn = newlabel("JOBJ")
    for r in (3, 1, 2): a(f"s_cmp_eq_u32 s{S_ROLE}, {r}", f"s_cbranch_scc1 {jl[r]}")
    anchor(G2, G2 + 2, 128); scale_cb(); anchor(G1, G1 + 2, 1)
    cur = CBR
    for c in range(8):
        nx = oth(cur, VA, VB)
        it([cm_(VC, cur, G2)] + ([cm_(nx, cur, G1, T + 4)] if c < 7 else []), 2 * c, cur, VC); cur = nx
    it([])
    a(f"s_branch {jn}")
    a(f"{jl[1]}:")
    anchor(G2, G2 + 2, 128); scale_cb(); csq(G3, G2); anchor(G1, G1 + 2, 2)
    it([cm_(VA, CBR, G3)]); cur = VA
    it([cm_(VD, VA, G3)])
    for c in range(4):
        nx = oth(cur, VA, VB)
        it([cm_(VC, cur, G2), cm_(nx, cur, G1, T + 4) if c < 3 else csq_(G3, G1, T + 4)], 2 * c, cur, VC); cur = nx
    cur = VD
    for aa in range(4):
        nx = oth(cur, VA, VB)
        it([cm_(VC, cur, G3)] + ([cm_(nx, cur, G2, T + 4)] if aa < 3 else []), 8 + 2 * aa, cur, VC); cur = nx
    it([])
    a(f"s_branch {jn}")
    a(f"{jl[3]}:")
    anchor(G1, G1 + 2, 8, conj=True)
    a(f"v_mov_b32 v{VA}, {f32(32768.0)}", f"v_mov_b32 v{VA+1}, {f32(32768.0)}", f"v_mov_b32 v{VA+2}, 0", f"v_mov_b32 v{VA+3}, 0")
    sc_ = lambda d, x: [f"v_pk_mul_f32 v[{d}:{d+1}], v[{x}:{x+1}], v[{VA}:{VA+1}]", f"v_pk_mul_f32 v[{d+2}:{d+3}], v[{x+2}:{x+3}], v[{VA}:{VA+1}]"]
    it([csq_(G2, G1), sc_(VC, G1)])
    ce, co = VA, VC
    for b in range(8):
        ne, no = oth(ce, VA, VB), oth(co, VC, VD)
        it([] if b == 7 else [sc_(ne, G2) if b == 0 else cm_(ne, ce, G2), cm_(no, co, G2, T + 4)], 2 * b, ce, co); ce, co = ne, no
    it([])
    a(f"ds_write_b8 v15, v{VONE} offset:{FL_G}")
    stamp(a, 3)
    if KOFF: a(f"s_cmp_eq_u32 s{S_G}, 2", "s_cbranch_scc1 KS_G0")
    a(f"s_branch {ex}")
    if KOFF:
        a("KC_SEND:")
        lds_wait(a, FL_NONCE, VNT, "nz", addr=VNA)
        a(f"s_lshl_b32 s{T0_}, s{S_CH}, 12", f"s_lshl_b32 s{T1_}, s{S_ROLE}, 10", f"s_add_u32 s{T0_}, s{T0_}, s{T1_}", f"s_add_u32 s{T0_}, s{T0_}, {hex(WS_KT - 512*4096)}", f"v_add_u32 v24, s{T0_}, v{VLN}")
        a(f"s_mov_b32 s{T1_}, 0xffff", f"v_lshlrev_b32 v25, 16, v{VNT}")
        for r in range(4): a(f"v_cvt_f16_f32 v{20+r}, v{20+r}")
        a(f"s_cmp_lg_u32 s{S_ROLE}, 2", "s_cbranch_scc1 KC_S2")
        a("s_mov_b32 exec_lo, 0", "s_mov_b32 exec_hi, 0xffff0000")
        a(f"v_mov_b32 v20, v{VPR}", f"v_lshrrev_b32 v21, 16, v{VPR}")
        a("s_mov_b64 exec, -1")
        a("KC_S2:")
        for r in range(4): a(f"v_bfi_b32 v{20+r}, s{T1_}, v{20+r}, v{25 if r & 1 else VNT}")
        a(f"global_store_dwordx4 v24, v[20:23], s[{P_WS}:{P_WS+1}] sc1")
        stamp(a, 4)
        a("s_branch KS_G0")
        a("KC_RECV:")
        a(f"s_cmp_eq_u32 s{S_ROLE}, 3", f"s_cbranch_scc1 {ex}")
        a(f"s_lshl_b32 s{T0_}, s{S_CH}, 12", f"s_lshl_b32 s{T1_}, s{S_ROLE}, 10", f"s_add_u32 s{T0_}, s{T0_}, s{T1_}", f"s_add_u32 s{T0_}, s{T0_}, {hex(WS_KT - 512*4096)}", f"v_add_u32 v24, s{T0_}, v{VLN}")
        lds_wait(a, FL_NONCE, VNT, "nz", addr=VNA, sleep=2)
        a(f"v_lshlrev_b32 v25, 16, v{VNT}")
        stamp(a, 2)
        lds_wait(a, FL_G + {0: 0, 1: 4, 2: 16}[ENV("KTRIG", 1)], 17, "b4", sleep=2)
        lp = newlabel("KP"); l1 = newlabel("KPE")
        a(f"s_branch {l1}")
        a(f"{lp}:")
        a("s_sleep 2")
        a(f"{l1}:")
        a(f"global_load_dwordx4 v[20:23], v24, s[{P_WS}:{P_WS+1}] sc1")
        guard(a)
        a("s_waitcnt vmcnt(0)")
        for r in range(4): a(f"v_xor_b32 v{20+r}, v{25 if r & 1 else VNT}, v{20+r}")
        a("v_or3_b32 v26, v20, v21, v22", "v_or_b32 v26, v26, v23", "v_cmp_lt_u32 vcc, 0xffff, v26", f"s_cbranch_vccnz {lp}")
        stamp(a, 3)
        for r in (0, 2): a(f"v_xor_b32 v{20+r}, v{VNT}, v{20+r}")
        for r in range(4): a(f"ds_write_b16 v{IXR[r]}, v{20+r}")
        a(f"s_cmp_lg_u32 s{S_ROLE}, 2", f"s_cbranch_scc1 {ex}")
        a("v_and_b32 v20, 0xffff, v20", "v_lshl_or_b32 v20, v21, 16, v20", f"v_lshlrev_b32 v21, 16, v{VDSK}")
        a("s_mov_b32 exec_lo, 0", "s_mov_b32 exec_hi, 0x10000")
        a(f"ds_write_b64 v14, v[20:21] offset:{C_PAR}")
        a("s_mov_b64 exec, -1")
        a(f"s_branch {ex}")
    a(f"{jl[2]}:")
    anchor(G2, G2 + 2, 128); scale_cb()
    it([csq_(G1, G2), cm_(VD, CBR, G2, T + 4)]); csq(G3, G1); csq(G3, G3)
    it([cm_(VA, CBR, G3), cm_(VC, VD, G3, T + 4)])
    ce, co = VA, VC
    for r in range(4):
        ne, no = oth(ce, VA, VB), oth(co, VC, VD)
        it([cm_(ne, ce, G1)] + ([cm_(no, co, G1, T + 4)] if r < 3 else []), 2 * r, ce, co); ce, co = ne, no
    it([], 8, ce, None)
    a(f"v_mov_b32 v36, {f32(2048.0*LOG2E)}", f"v_mul_f32 v24, s{SM}, v36", "v_max_f32 v24, 0, v24", "v_exp_f32 v24, v24")
    it([])
    a(f"s_sub_u32 s{SIS}, s{SC}, 7", f"s_lshl_b32 s{SIS}, s{SIS}, 23")
    a(f"v_lshlrev_b32 v25, 16, v{VDSK}", f"v_mul_f32 v24, s{SIS}, v24", f"v_mov_b32 v{VPR}, v24")
    a(f"ds_write_b64 v14, v[24:25] offset:{C_PAR}")
    a(f"{jn}:")
    a(f"ds_write_b8 v15, v{VONE} offset:{FL_G}")
    stamp(a, 3); kstamp(a, 2)
    for s in range(8): a(f"ds_read_b128 v[{40+4*s}:{43+4*s}], v{VTL} offset:{64*s}")
    a(f"v_mov_b32 v36, {f32(LOG2E)}", f"v_mul_f32 v36, s{SM}, v36")
    a(f"v_mul_f32 v37, {f32(2048.0)}, v36", "v_max_f32 v37, 0, v37", f"v_add_f32 v37, {f32(23.0)}, v37")
    for r in range(4):
        a(f"v_fma_f32 v{LFR[r]}, v{LFR[r]}, v36, -v37")
    for r in range(4):
        a(f"v_exp_f32 v{LFR[r]}, v{LFR[r]}")
    kstamp(a, 3)
    lds_wait(a, FL_G + 3, 17, "u8", addr=14)
    kstamp(a, 4)
    tr = LdsTrack(a); ids = []
    for s in range(8):
        ids.append(tr.issue(f"ds_read_b128 v[{72+4*s}:{75+4*s}], v{VTE} offset:{KG_T[3]+64*s}"))
    for s in range(8):
        tr.wait(ids[s])
        c = "0" if s < 2 else f"v[{20+4*(s&1)}:{23+4*(s&1)}]"
        a(f"v_mfma_f32_16x16x32_f16 v[{20+4*(s&1)}:{23+4*(s&1)}], v[{40+4*s}:{43+4*s}], v[{72+4*s}:{75+4*s}], {c}")
    for r in range(4): a(f"v_add_f32 v{20+r}, v{20+r}, v{24+r}")
    for r in range(4): a(f"v_mul_f32 v{20+r}, v{20+r}, v{LFR[r]}")
    kstamp(a, 5)
    if KOFF: a(f"s_cmp_eq_u32 s{S_G}, 2", "s_cbranch_scc1 KC_SEND")
    for r in range(4):
        a(f"v_cvt_f16_f32 v{20+r}, v{20+r}")
        a(f"ds_write_b16 v{IXR[r]}, v{20+r}")
    a(f"{ex}:")
    a(f"ds_write_b8 v15, v{VONE} offset:{FL_G+4}")
    a("v_mov_b32 v28, 0", "v_mov_b32 v29, 0", "v_mov_b32 v30, 0", "v_mov_b32 v31, 0", f"v_mov_b32 v32, s{S_GB}")
    a("s_waitcnt vmcnt(0)")
    kstamp(a, 6)
    lds_wait(a, FL_G + 4, 20, "b4", addr=14)
    stamp(a, 4); kstamp(a, 7)
    for e in range(3): a(f"ds_read_u16 v{20+e}, v{I1+e}")
    for e in range(4): a(f"ds_read_u16 v{23+e}, v{I2+e}")
    a("s_mov_b64 exec, 1")
    a(f"ds_write_b128 v32, v[28:31] offset:{R_WS5}", f"ds_write_b128 v32, v[28:31] offset:{R_WS9}", f"ds_write_b128 v32, v[28:31] offset:{R_WS3 + 192*16}")
    a("s_mov_b64 exec, -1")
    a("s_waitcnt lgkmcnt(7)")
    a("v_lshl_or_b32 v28, v21, 16, v20", "v_lshl_or_b32 v29, v22, 16, v21")
    a(f"ds_write_b32 v{D1}, v28 offset:{T_DRE}", f"ds_write_b32 v{D1}, v29 offset:{T_DRO}")
    a("s_waitcnt lgkmcnt(5)")
    a("v_lshl_or_b32 v30, v24, 16, v23", "v_lshl_or_b32 v31, v26, 16, v25")
    a(f"ds_write_b32 v{D2}, v30", f"ds_write_b32 v{D3}, v31")
    a(f"ds_write_b8 v15, v{VONE} offset:{FL_G+8}")
    kstamp(a, 8)
    lds_wait(a, FL_G + 8, 20, "b4", addr=14)
    stamp(a, 5)
    PR, FT0, FT1, ACCL, ACCH, ZQ = 16, 18, 19, 20, 24, 28
    VZA, VUA = VDA, VDA2
    LA = ENV("CLA", 6); RSV = ENV("CRSV", 5); NF = ENV("CNF", 2)
    jl = [newlabel("CV") for _ in range(4)]; zend = newlabel("CVE")
    slow = []
    a(f"ds_read_b64 v[{PR}:{PR+1}], v14 offset:{C_PAR}")
    for r in range(1, 4): a(f"s_cmp_eq_u32 s{S_ROLE}, {r}", f"s_cbranch_scc1 {jl[r]}")
    for m in range(4):
        if m: a(f"{jl[m]}:")
        lo, hi = 2 * m, 2 * m + 1
        acc = {lo: ACCL, hi: ACCH}
        ops = []
        if m >= 2:
            for j in (lo, hi): ops.append((j, ("D", 32), ("U", 8 * j - 32)))
        for p in range(max(8 * lo - 16, -7), 8 * hi + 1):
            for j in (lo, hi):
                ks = 8 * j - p
                if 0 <= ks <= 16: ops.append((j, ("D", ks), ("U", p)))
        ncomb0 = len(ops)
        for j in (lo, hi):
            for kind in (3, 5):
                for b in range(6):
                    if 2 <= j - b <= 4: ops.append((j, ("W", kind, b), ("G", kind, j - b)))
            for kind in (7, 9):
                for b in range(2):
                    if j - 2 * b - 4 >= 0: ops.append((j, ("W", kind, b), ("G", kind, j - 2 * b - 4)))
        nops = len(ops)
        first, last = {}, {}
        for k, (j, A, B) in enumerate(ops):
            for key in (A, B):
                first.setdefault(key, k); last[key] = k
        lastlo = max(k for k, o in enumerate(ops) if o[0] == lo)
        pool = list(range(32, 128, 4))
        reg, lid = {}, {}
        def load(tr, key):
            rg = pool.pop(0); reg[key] = rg
            if (XP & 8 and key[0] == "G") or (XP & 16 and key[0] == "W") or (XP & 32 and key[0] == "U"):
                lid[key] = -100; return
            if key[0] == "D":
                ksv = -2 if key[1] == 32 else key[1]
                o = (16 - ksv) * 16
                ad, o = (VDA, o) if o + 3 <= 255 else (VDA2, o - 160)
                tr.issue(f"ds_read2_b32 v[{rg}:{rg+1}], v{ad} offset0:{o} offset1:{o+1}")
                lid[key] = tr.issue(f"ds_read2_b32 v[{rg+2}:{rg+3}], v{ad} offset0:{o+2} offset1:{o+3}")
            elif key[0] == "G":
                _, kind, ix = key
                if kind in (3, 5): o = (4 - ix) * 16 + (64 if kind == 5 else 0); ad = VG8
                else: o = (3 - ix) * 8 + (96 if kind == 9 else 0); ad = VG16
                tr.issue(f"ds_read2_b32 v[{rg}:{rg+1}], v{ad} offset0:{o} offset1:{o+1}")
                lid[key] = tr.issue(f"ds_read2_b32 v[{rg+2}:{rg+3}], v{ad} offset0:{o+2} offset1:{o+3}")
            elif key[0] == "U":
                lid[key] = tr.issue(f"ds_read_b128 v[{rg}:{rg+3}], v{VB_} offset:{64*(key[1]+7)}")
            else:
                _, kind, b = key
                if kind in (3, 5): o = (R_WS3 if kind == 3 else R_WS5) + 512 * b; ad, st = VT8, 64
                else: o = (R_WS7 if kind == 7 else R_WS9) + 1024 * b; ad, st = VT16, 128
                tr.issue(f"ds_read_b64_tr_b16 v[{rg}:{rg+1}], v{ad} offset:{o}")
                lid[key] = tr.issue(f"ds_read_b64_tr_b16 v[{rg+2}:{rg+3}], v{ad} offset:{o+st}")
        keys = sorted(first, key=lambda k_: first[k_])
        tr = LdsTrack(a)
        for key in keys:
            if key[0] == "D": load(tr, key)
        for key in keys:
            if key[0] == "G" and len(pool) > RSV: load(tr, key)
        pend = [k_ for k_ in keys if k_ not in reg]
        a(f"v_lshlrev_b32 v{FT0}, 3, v3", f"v_sub_u32 v{FT0}, v{VB_}, v{FT0}")
        a(f"v_lshrrev_b32 v{FT1}, 2, v2", f"v_lshl_add_u32 v{FT1}, v{FT1}, 2, v3", f"v_and_b32 v{ZQ}, 3, v2", f"v_lshlrev_b32 v{ZQ}, 4, v{ZQ}")
        a(f"v_lshlrev_b32 v{FT1}, s{CSH}, v{FT1}")
        a("s_waitcnt lgkmcnt(0)")
        a(f"v_mov_b32 v{VUA}, v{FT0}", f"v_add_u32 v{VZA}, v{FT1}, v{ZQ}")
        a(f"v_xor_b32 v{VLN}, s{CXR}, v{VLN}")
        lds_wait(a, FL_UF, FT0, "b4")
        a(f"s_setprio {eval(os.environ.get('CPRIO', '[1,1,1,1]'))[m]}")
        stamp(a, 6); cstamp(a, 1)
        if XP & 4: a(f"v_mov_b32 v{FT0}, 0", f"s_cmp_lg_u32 s{S_G}, 0", f"s_cbranch_scc1 {zend}")
        for key in lid: lid[key] = -100
        tr = LdsTrack(a)
        ud = {}
        fill = []
        fill.append(("lds", f"ds_read_b64 v[{ZQ}:{ZQ+1}], v{VUA} offset:{480 + 512*lo}", 2))
        fill.append(("ldsU", f"ds_read_b64 v[{ZQ+2}:{ZQ+3}], v{VUA} offset:{480 + 512*hi}", 2))
        for ti, j in enumerate((lo, hi)):
            fill.append(("alloc", j, 5))
            if ti == 0: fill.append(("waitU", None, 5))
            for e in range(4):
                sel = "op_sel:[1,0,0] " if e & 1 else ""
                fill.append(("f", (lambda j=j, e=e, ti=ti, sel=sel: f"v_fma_mix_f32 v{ud[j]+e}, v{ZQ+2*ti+e//2}, v{PR+1}, 0 {sel}op_sel_hi:[1,0,0]"), 5))
            for p in range(2):
                fill.append(("f", (lambda j=j, p=p, ti=ti: f"v_cvt_pk_bf16_f32 v{ZQ+2*ti+p}, v{ud[j]+2*p}, v{ud[j]+2*p+1}"), 5))
            for p in range(2):
                fill.append(("f", (lambda j=j, p=p, ti=ti: f"v_lshlrev_b32 v{ud[j]+2*p}, 16, v{ZQ+2*ti+p}"), 5))
                fill.append(("f", (lambda j=j, p=p, ti=ti: f"v_and_b32 v{ud[j]+2*p+1}, 0xffff0000, v{ZQ+2*ti+p}"), 5))
        def epi(j, ti):
            y = acc[j]; z = ZQ + 2 * ti; out = []
            for p in range(4): out.append(lambda p=p: f"v_mul_f32 v{y+p}, v{y+p}, v{PR}")
            for p in range(2): out.append(lambda p=p: f"v_cvt_pk_bf16_f32 v{z+p}, v{y+2*p}, v{y+2*p+1}")
            for p in range(2):
                out.append(lambda p=p: f"v_lshlrev_b32 v{y+2*p}, 16, v{z+p}")
                out.append(lambda p=p: f"v_and_b32 v{y+2*p+1}, 0xffff0000, v{z+p}")
            for p in range(4): out.append(lambda p=p: f"v_add_f32 v{y+p}, v{y+p}, v{ud[j]+p}")
            for p in range(2): out.append(lambda p=p: f"v_cvt_pk_bf16_f32 v{z+p}, v{y+2*p}, v{y+2*p+1}")
            for p in range(2): out.append(lambda p=p: f"v_min_u32 v{z+p}, -2, v{z+p}")
            return out
        for f in epi(lo, 0): fill.append(("f", f, lastlo + 2))
        fill.append(("lds", f"ds_read_u8 v{FT0}, v{VZ} offset:{FL_S6 + m}", nops - 4))
        fill.append(("lds", f"ds_read_b128 v[{ACCL}:{ACCL+3}], v{VLN} offset:{G_BASE + R_RED + 1024*m}", nops - 4))
        uid = [None]
        def do_fill(n, k):
            while n > 0 and fill:
                kind, t, e = fill[0]
                if e > k: return
                if kind == "alloc":
                    if len(pool) < 2: return
                    ud[t] = pool.pop(); fill.pop(0); continue
                fill.pop(0)
                if kind == "f":
                    if XP & 2 and "v_min" not in t(): continue
                    a(t())
                elif kind == "lds": tr.issue(t)
                elif kind == "ldsU": uid[0] = tr.issue(t)
                elif kind == "waitU": tr.wait(uid[0]); continue
                n -= 1
        kW = ncomb0 - LA if nops > ncomb0 else None
        wok = [False]
        def issue_loads(k, nmax):
            while pend and pool and nmax > 0:
                key = pend[0]
                if first[key] - k > (LA if key[0] != "G" else LA + 4): return
                if key[0] == "W" and not wok[0]:
                    alt = [x for x in pend if x[0] != "W" and first[x] - k <= LA + 2]
                    if not alt: return
                    key = alt[0]
                pend.remove(key); load(tr, key); nmax -= 1
        issue_loads(0, RSV)
        started = set()
        for k, (j, A, B) in enumerate(ops):
            assert A in reg and B in reg, (m, k, A, B)
            tr.wait(max(lid[A], lid[B]))
            c = f"v[{acc[j]}:{acc[j]+3}]" if j in started else "0"
            started.add(j)
            a(f"v_mfma_f32_16x16x32_f16 v[{acc[j]}:{acc[j]+3}], v[{reg[A]}:{reg[A]+3}], v[{reg[B]}:{reg[B]+3}], {c}")
            for key in (A, B):
                if last[key] == k: pool.append(reg[key])
            if kW is not None and k == kW - 3:
                wfid = tr.issue(f"ds_read_b32 v{FT0}, v14 offset:{FL_G + 12}")
            if k == kW:
                tr.wait(wfid)
                sl = newlabel("WS"); bk = newlabel("WB")
                a(f"v_cmp_ne_u32 vcc, s{S_ONES}, v{FT0}", f"s_cbranch_vccnz {sl}")
                a(f"{bk}:")
                slow.append((sl, bk))
                wok[0] = True
                cstamp(a, 3)
            issue_loads(k + 1, 2)
            do_fill(NF, k)
            if k == ncomb0 // 2: cstamp(a, 2)
            if k == ncomb0 - 1: cstamp(a, 4)
        cstamp(a, 5)
        do_fill(1000, 1000)
        assert not fill and not pend
        stamp(a, 7)
        for f in epi(hi, 1): a(f())
        if m < 3: a(f"s_branch {zend}")
    a(f"{zend}:")
    cstamp(a, 6)
    gA = newlabel("ZA"); gC = newlabel("ZC"); zs = newlabel("ZS"); zb = newlabel("ZB"); zc = newlabel("ZCB"); zd = newlabel("ZD")
    a("s_waitcnt lgkmcnt(0)")
    a(f"s_cmp_lg_u32 s{S_G}, 1", f"s_cbranch_scc1 {gA}")
    a(f"v_cmp_ne_u32 vcc, 1, v{FT0}", f"s_cbranch_vccnz {zs}")
    a(f"{zb}:")
    a(f"s_mov_b64 exec, s[{CM}:{CM+1}]")
    for k in range(4): a(f"v_swap_b32 v{ZQ+k}, v{ACCL+k}")
    a("s_mov_b64 exec, -1")
    cstamp(a, 8)
    a(f"buffer_store_dwordx4 v[{ZQ}:{ZQ+3}], v{VZA}, s[{R0}:{R0+3}], s{CZ1} offen sc1")
    a(f"buffer_store_dwordx4 v[{ACCL}:{ACCL+3}], v{VZA}, s[{R0}:{R0+3}], s{CZ0} offen sc1")
    a(f"s_branch {zd}")
    for (sl, bk) in slow:
        a(f"{sl}:")
        lds_wait(a, FL_G + 12, FT0, "b4", addr=14)
        a(f"s_branch {bk}")
    a(f"{zs}:")
    a(f"v_mov_b32 v{FT1}, s{S_ROLE}")
    l = newlabel("ZW")
    a(f"{l}:")
    a(f"ds_read_u8 v{FT0}, v{FT1} offset:{FL_S6}")
    guard(a)
    a("s_waitcnt lgkmcnt(0)")
    a(f"v_cmp_ne_u32 vcc, 1, v{FT0}", f"s_cbranch_vccnz {l}")
    a(f"v_lshl_add_u32 v{FT1}, v{FT1}, 10, v{VLN}")
    a(f"ds_read_b128 v[{ACCL}:{ACCL+3}], v{FT1} offset:{G_BASE + R_RED}")
    a("s_waitcnt lgkmcnt(0)")
    a(f"s_branch {zb}")
    a(f"{gA}:")
    a(f"s_cmp_lg_u32 s{S_G}, 0", f"s_cbranch_scc1 {gC}")
    a(f"v_mov_b32 v{FT1}, s{S_ROLE}", f"v_lshl_add_u32 v{FT0}, v{FT1}, 10, v{VLN}")
    a(f"ds_write_b128 v{FT0}, v[{ZQ}:{ZQ+3}] offset:{G_BASE + R_RED}")
    a(f"ds_write_b8 v{FT1}, v{VONE} offset:{FL_S6}")
    cstamp(a, 8)
    a(f"s_branch {zd}")
    a(f"{gC}:")
    cstamp(a, 8)
    a(f"buffer_store_dwordx4 v[{ZQ}:{ZQ+3}], v{VZA}, s[{R0}:{R0+3}], s{CZ0} offen sc1")
    a(f"{zd}:")
    stamp(a, 8)
    if DBG:
        a(f"s_mul_i32 s{T0_}, s{S_ROLE}, 1280", f"s_add_u32 s{T1_}, s{T0_}, s{S_GB}", f"v_lshl_add_u32 v20, v1, 2, s{T1_}")
        a(f"s_mul_i32 s{T1_}, s{S_CH}, 5376", f"s_add_u32 s{T1_}, s{T1_}, s{T0_}", f"s_add_u32 s{T1_}, s{T1_}, {hex(WS_DBG)}", f"v_lshl_add_u32 v21, v1, 2, s{T1_}")
        for k in range(5 + 1):
            a(f"ds_read_b32 v22, v20 offset:{R2 + 256*k}", "s_waitcnt lgkmcnt(0)", f"global_store_dword v21, v22, s[{P_WS}:{P_WS+1}] offset:{256*k}")
        a(f"ds_read_b32 v22, v14 offset:{C_PAR}", f"s_lshl_b32 s{T1_}, s{S_CH}, 2", f"s_add_u32 s{T1_}, s{T1_}, {hex(WS_DBG + 0x300000)}", f"v_mov_b32 v21, s{T1_}")
        a("s_waitcnt lgkmcnt(0)", f"global_store_dword v21, v22, s[{P_WS}:{P_WS+1}]")
    a(f"s_lshl_b32 s{T0_}, s{S_G}, 2", f"s_add_u32 s{T0_}, s{T0_}, s{S_ROLE}", f"v_mov_b32 v8, s{T0_}")
    a("s_waitcnt vmcnt(0)")
    a(f"ds_write_b8 v8, v{VONE} offset:{FL_ZDONE}")


def gen_wjobs(a):
    WA, WD = 10, 11
    end = newlabel("WJE"); w1 = newlabel("WJ1"); w2 = newlabel("WJ2")
    a(f"s_cmp_eq_u32 s{S_WAVE}, 2", f"s_cbranch_scc1 {w2}")
    if XP & 1: a(f"s_branch {w2}")
    a(f"s_add_u32 s{T0_}, s{S_WAVE}, 1", f"s_lshr_b32 s{T0_}, s{T0_}, 2", f"s_cmp_eq_u32 s{S_WAVE}, 1", f"s_cselect_b32 s{T0_}, 2, s{T0_}", f"s_lshl_b32 s{T0_}, s{T0_}, 10")
    a(f"v_lshl_add_u32 v{WA}, v1, 4, s{T0_}", f"v_add_u32 v{WD}, {G_BASE}, v{WA}")
    lds_wait(a, FL_UF, 12, "b4")
    a(f"s_setprio {ENV('WPRIO', 3)}")
    for g in range(3):
        E = 20 + 12 * g; o = C_U + U_SIZE * g + 2 * (240 - 16)
        a(f"ds_read_b128 v[{E}:{E+3}], v{WA} offset:{o}", f"ds_read_b128 v[{E+4}:{E+7}], v{WA} offset:{o+16}", f"ds_read_b64 v[{E+8}:{E+9}], v{WA} offset:{o+32}")
    a(f"s_cmp_eq_u32 s{S_WAVE}, 1", f"s_cbranch_scc1 {w1}")
    for full in (1, 0):
        if not full: a(f"{w1}:")
        for g in range(3):
            if g == 2: a(f"s_cmp_lt_u32 s{S_I}, 24", f"s_cbranch_scc1 {end}")
            E = lambda i: 20 + 12 * g + i
            O = lambda i: 56 + i
            T = lambda i: 65 + i
            Q = lambda i: 72 + i
            X = lambda i: 79 + i
            Y = lambda i: 85 + i
            W7, W9 = 92, 96
            a(f"ds_read_b32 v12, v{VZ} offset:{FL_G + 16*g + 4}")
            if g == 0: a("s_waitcnt lgkmcnt(7)")
            n = 8 if full else 7
            for i in range(1, n + 1): a(f"v_alignbit_b32 v{O(i)}, v{E(i+1)}, v{E(i)}, 16")
            for i in range(1, n + 1): a(f"v_pk_add_f16 v{T(i)}, v{O(i)}, v{E(i+1)}")
            for i in range(1, 5): a(f"v_pk_add_f16 v{X(i)}, v{T(i)}, v{O(i+1)}")
            for i in (range(2, 8) if full else range(3, 7)): a(f"v_pk_add_f16 v{Q(i)}, v{T(i)}, v{T(i+1)}")
            ok = newlabel("WJK")
            a("s_waitcnt lgkmcnt(0)")
            a(f"v_cmp_eq_u32 vcc, s{S_ONES}, v12", f"s_cbranch_vccnz {ok}")
            lds_wait(a, FL_G + 16 * g + 4, 12, "b4", sleep=1)
            a(f"{ok}:")
            off = G_SIZE * (g & 1)
            if g == 2: a(f"v_add_u32 v{WD}, {2*G_SIZE}, v{WD}")
            a(f"ds_write_b128 v{WD}, v[{X(1)}:{X(4)}] offset:{off + R_WS3}")
            for i in (range(2, 7) if full else range(3, 7)): a(f"v_pk_add_f16 v{Y(i)}, v{E(i)}, v{Q(i)}")
            a(f"ds_write_b128 v{WD}, v[{Y(3)}:{Y(6)}] offset:{off + R_WS5 + 16}")
            if full:
                for i in range(5, 8): a(f"v_pk_add_f16 v{X(i)}, v{T(i)}, v{O(i+1)}")
                for k in range(4): a(f"v_pk_add_f16 v{W7+k}, v{Q(2+k)}, v{X(4+k)}")
                a(f"ds_write_b128 v{WD}, v[{W7}:{W7+3}] offset:{off + R_WS7}")
                for k in range(4): a(f"v_pk_add_f16 v{W9+k}, v{Y(2+k)}, v{Q(4+k)}")
                a(f"ds_write_b128 v{WD}, v[{W9}:{W9+3}] offset:{off + R_WS9 + 16}")
            a(f"ds_write_b8 v116, v{VONE} offset:{FL_G + 16*g + 12}")
        a(f"s_branch {end}")
    a(f"{w2}:")
    for g in range(3): a(f"ds_write_b8 v116, v{VONE} offset:{FL_G + 16*g + 12}")
    if PF2 > PF1 or PFD:
        W2 = ENV("PF2W", 14)
        a(f"s_sub_u32 s{T2_}, s{S_I}, 18", f"s_cmp_ge_u32 s{T2_}, {W2}", f"s_cbranch_scc1 {end}")
        pf_lane(a, 100, 101)
        lds_wait(a, FL_UF, 12, "b4", sleep=1)
        if PF2 > PF1:
            pf_gu(a, 100, T2_, W2, PF1, PF2, 102, "KS_PF2D")
            a("KS_PF2D:")
        if PFD:
            a(f"s_sub_u32 s{T2_}, {W2-1}, s{T2_}")
            pf_down(a, T2_, W2, 0, PFD, 100, 120, end)
    a(f"{end}:")

def gen(a):
    label = NAME + "_kernel"
    a(f".globl {label}", ".p2align 8", f".type {label},@function", f"{label}:")
    a("s_cmp_ge_u32 s2, 256", "s_cbranch_scc1 KS_END")
    stamp_begin(a)
    a("s_load_dwordx16 s[4:19], s[0:1], 0", "s_load_dwordx16 s[20:35], s[0:1], 64", f"s_load_dwordx2 s[{P_WS}:{P_WS+1}], s[0:1], 128")
    a(f"v_readfirstlane_b32 s{S_WAVE}, v0", f"s_lshr_b32 s{S_WAVE}, s{S_WAVE}, 6")
    a(f"s_and_b32 s{S_XC}, s2, 7", f"s_lshr_b32 s{S_I}, s2, 3")
    if ENV("CPF", 1):
        a(f"s_cmp_lg_u32 s{S_WAVE}, 0", "s_cbranch_scc1 KS_CPE")
        a("s_getpc_b64 s[42:43]")
        a("KS_PC:")
        a(f"s_and_b32 s{T0_}, s{S_I}, 3", f"s_lshl_b32 s{T0_}, s{T0_}, 13", f"v_lshl_add_u32 v126, v0, 7, s{T0_}", "v_min_u32 v126, KS_END-KS_PC, v126")
        a("global_load_dword v127, v126, s[42:43]")
        a("KS_CPE:")
    if ENV("REMAP", 1):
        a(f"s_add_u32 s{T0_}, s{S_WAVE}, 8", f"s_sub_u32 s{T1_}, s{S_WAVE}, 4", f"s_cmp_lt_u32 s{S_WAVE}, 8", f"s_cselect_b32 s{T0_}, s{T0_}, s{T1_}")
        a(f"s_cmp_lt_u32 s{S_WAVE}, 4", f"s_cselect_b32 s{S_WAVE}, s{S_WAVE}, s{T0_}")
    a("v_and_b32 v1, 63, v0", "v_and_b32 v2, 15, v1", "v_lshrrev_b32 v3, 4, v1", f"v_mov_b32 v{VZ}, 0", f"v_mov_b32 v{VONE}, 1")
    a(f"s_mov_b32 s{S_GUARD}, {GUARD}", f"s_mov_b32 s{S_ONES}, 0x01010101")
    a(f"s_lshl_b32 s{S_B2}, s{S_XC}, 5", f"s_add_u32 s{S_B2}, s{S_B2}, s{S_I}")
    a(f"s_mul_i32 s{S_BLK}, s{S_XC}, 18", f"s_add_u32 s{S_BLK}, s{S_BLK}, s{S_I}")
    a(f"s_cmp_lt_u32 s{S_WAVE}, 4", "s_cbranch_scc1 KS_L")
    a(f"s_cmp_ge_u32 s{S_WAVE}, 12", "s_cbranch_scc1 KS_X")
    a("s_setprio 2")
    a(f"s_lshr_b32 s{S_G}, s{S_WAVE}, 2", f"s_sub_u32 s{S_G}, s{S_G}, 1")
    a(f"s_mul_i32 s{S_ROLE}, s{S_G}, 3", f"s_xor_b32 s{S_ROLE}, s{S_ROLE}, s{S_WAVE}", f"s_and_b32 s{S_ROLE}, s{S_ROLE}, 3")
    a(f"s_lshl_b32 s{S_CH}, s{S_B2}, 1", f"s_add_u32 s{S_CH}, s{S_CH}, s{S_G}")
    a(f"s_lshl_b32 s{T0_}, s{S_ROLE}, 11", f"s_add_u32 s{T0_}, s{T0_}, {C_STG}", f"v_lshl_add_u32 v28, v1, 3, s{T0_}")
    pre_ixlf(a)
    a("KS_GRP:")
    gen_group(a)
    a(f"s_cmp_lt_u32 s{S_I}, 18", "s_cbranch_scc1 KS_T")
    a("s_waitcnt lgkmcnt(0)")
    endwave(a)
    a("KS_X:")
    a(f"s_cmp_lt_u32 s{S_I}, 24", "s_cbranch_scc1 KS_X2")
    a(f"s_setprio {ENV('KCPRIO', 2)}")
    a("KS_XC:")
    a(f"s_mov_b32 s{S_G}, 2", f"s_add_u32 s{S_ROLE}, s{S_WAVE}, 3", f"s_and_b32 s{S_ROLE}, s{S_ROLE}, 3")
    a(f"s_lshl_b32 s{S_CH}, s{S_XC}, 3", f"s_and_b32 s{T0_}, s{S_I}, 7", f"s_add_u32 s{S_CH}, s{S_CH}, s{T0_}", f"s_add_u32 s{S_CH}, s{S_CH}, 512")
    a(f"s_lshl_b32 s{T0_}, s{S_ROLE}, 11", f"s_add_u32 s{T0_}, s{T0_}, {C_STG}", f"v_lshl_add_u32 v28, v1, 3, s{T0_}")
    a("s_branch KS_GRP")
    a("KS_X2:")
    a(f"s_cmp_lt_u32 s{S_I}, 8", "s_cbranch_scc1 KS_X3")
    a(f"s_sub_u32 s{T5_}, s{S_WAVE}, 8")
    a("s_branch KS_LN1")
    a("KS_X3:")
    a(f"s_lshl_b32 s{T0_}, s2, 4", f"s_add_u32 s{T0_}, s{T0_}, s{S_WAVE}", f"s_cmp_lg_u32 s{T0_}, {16*ENV('NPUB', 2) + 12}", "s_cbranch_scc1 KS_X3B")
    a("s_setprio 3")
    a(f"s_memrealtime s[{T0_}:{T1_}]")
    a("v_and_b32 v6, 3, v1", "v_lshlrev_b32 v7, 2, v6", "v_min_u32 v6, 2, v6", "v_lshlrev_b32 v6, 2, v6", "v_cmp_eq_u32 vcc, 3, v1")
    a("s_waitcnt lgkmcnt(0)")
    a(f"v_mov_b32 v8, s{T0_}", f"v_mov_b32 v9, s{T1_}", "v_alignbit_b32 v8, v8, v8, v6", f"v_cndmask_b32 v9, v{VZ}, v9, vcc", "v_xor_b32 v8, v8, v9")
    a("v_and_b32 v9, 0xf0000fff, v8", "v_and_b32 v10, 0xfff000, v8", "v_lshl_or_b32 v9, v10, 4, v9", "v_lshrrev_b32 v10, 12, v8", "v_and_b32 v10, 0xf000, v10")
    a("v_or3_b32 v9, v9, v10, v9", "v_or_b32 v9, 0x80000000, v9")
    a("s_mov_b64 exec, 15")
    a(f"global_store_dword v7, v9, s[{P_DBG}:{P_DBG+1}] sc1")
    if SPIN: a(f"v_mov_b32 v8, s{T0_}", f"global_store_dword v7, v8, s[{P_DBG}:{P_DBG+1}] offset:64 sc1")
    a("s_mov_b64 exec, -1")
    a("s_setprio 0")
    a("KS_X3B:")
    if KOFF:
        a(f"s_setprio {ENV('KPPRIO', 3)}")
        a("s_branch KS_XC")
    a("s_waitcnt lgkmcnt(0)")
    a("s_barrier")
    a("s_branch KS_G")
    a("KS_X4:")
    a(f"s_cmp_lt_u32 s{S_I}, 18", "s_cbranch_scc1 KS_G")
    a("s_waitcnt vmcnt(0) lgkmcnt(0)")
    endwave(a)
    a("KS_L:")
    a("v_lshlrev_b32 v6, 2, v0", f"ds_write_b32 v6, v{VZ}")
    a("v_mov_b32 v8, 0", "v_mov_b32 v9, 0", f"s_min_u32 s{T0_}, s{S_WAVE}, 2", f"s_mul_i32 s{T0_}, s{T0_}, {U_SIZE}", "v_min_u32 v6, 59, v1", f"v_lshl_add_u32 v6, v6, 3, s{T0_}")
    a(f"ds_write_b64 v6, v[8:9] offset:{C_U}")
    a(f"s_mov_b32 s{T5_}, s{S_WAVE}")
    a(f"s_sub_u32 s{T0_}, s{S_I}, 8", f"s_cmp_lt_u32 s{T0_}, 16", "s_cbranch_scc0 KS_L0")
    a("KS_LN1:")
    a("s_setprio 3")
    gen_ln1(a)
    if NLL:
        if not NL: pf_lane(a, 46, 47)
        a(f"s_lshl_b32 s{T2_}, s{S_WAVE}, 4", f"s_add_u32 s{T2_}, s{T2_}, s{S_I}", f"s_sub_u32 s{T2_}, s{T2_}, 8")
        pf_gu(a, 46, T2_, 64, 16 * NL + 16 * NE, PF0, 47, "KS_LLE")
        a("KS_LLE:")
    a(f"s_mov_b32 s{S_G}, 1")
    a("s_branch KS_L2B")
    a("KS_L0:")
    a(f"s_and_b32 s{T0_}, s{S_I}, 15", f"s_lshl_b32 s{T1_}, s{S_XC}, 4", f"s_add_u32 s{T0_}, s{T0_}, s{T1_}")
    a("v_and_b32 v59, 3, v1", "v_lshlrev_b32 v59, 2, v59")
    a(f"s_lshl_b32 s{T4_}, s{T0_}, 6", f"s_add_u32 s{T1_}, s{T4_}, {hex(WS_FLAG1)}", f"v_add_u32 v7, s{T1_}, v59")
    a(f"s_mul_i32 s{T1_}, s{T0_}, {CLR_WG}", f"s_add_u32 s{T1_}, s{T1_}, {hex(WS_CLR)}")
    a("v_lshlrev_b32 v6, 4, v0")
    a("v_mov_b32 v12, -1", "v_mov_b32 v13, -1", "v_mov_b32 v14, -1", "v_mov_b32 v15, -1")
    a("s_setprio 3")
    pf_lane(a, 16, 17)
    a("s_waitcnt lgkmcnt(0)")
    a(f"s_add_u32 s{R1}, s{P_WS}, s{T1_}", f"s_addc_u32 s{R1+1}, s{P_WS+1}, 0", f"s_mov_b32 s{R1+2}, {CLR_WG}", f"s_mov_b32 s{R1+3}, 0x20000")
    a("s_barrier")
    if NE:
        a(f"s_and_b32 s{T2_}, s{S_I}, 15", f"s_lshl_b32 s{T3_}, s{S_WAVE}, 4", f"s_add_u32 s{T2_}, s{T2_}, s{T3_}")
        pf_gu(a, 16, T2_, 64, 16 * NL, 16 * NL + 16 * NE, 18, "KS_L1E")
        a("KS_L1E:")
    if ENV("CTRIG", 1): lds_wait(a, FL_PARAM, 8, "nz", sleep=2)
    for k in range(5):
        a(f"s_movk_i32 s{T0_}, {4096*k}")
        a(f"buffer_store_dwordx4 v[12:15], v6, s[{R1}:{R1+3}], s{T0_} offen sc1")
    stamp(a, 1)
    a(f"global_load_dword v58, v59, s[{P_DBG}:{P_DBG+1}] sc1")
    dbg_wait(a, 0)
    stamp(a, 2)
    a(f"ds_write_b32 v59, v58 offset:{FL_NONCE}")
    a("s_mov_b64 exec, 1")
    a(f"ds_add_rtn_u32 v8, v{VZ}, v{VONE} offset:{FL_LNACK}")
    a("s_mov_b64 exec, -1")
    for d in range(1, 4): a(f"v_lshrrev_b32 v{58-d}, {3*d}, v58")
    a("s_waitcnt lgkmcnt(0)")
    a(f"v_readfirstlane_b32 s{T0_}, v8")
    a(f"s_cmp_lg_u32 s{T0_}, 3", "s_cbranch_scc1 KS_L2")
    a("s_mov_b64 exec, 15")
    a(f"global_store_dword v7, v58, s[{P_WS}:{P_WS+1}] sc1")
    a("s_mov_b64 exec, -1")
    a(f"s_and_b32 s{T2_}, s{S_I}, 7")
    a(f"s_cmp_ge_u32 s{S_I}, 8", "s_cbranch_scc1 KS_L1C")
    if NN:
        a("s_setprio 0")
        lds_wait(a, FL_G + 32 + 4, 8, "b4", sleep=2)
        a("s_setprio 3")
        pf_gu(a, 16, T2_, 8, PF0, PF0 + 8 * NN, 18, "KS_L2")
    a("s_branch KS_L2")
    a("KS_L1C:")
    if NC: pf_gu(a, 16, T2_, 8, PF0 + 8 * NN, PF1, 18, "KS_L2")
    a("KS_L2:")
    a(f"s_mov_b32 s{S_G}, 0")
    a("KS_L2B:")
    srd(a, R0, P_WS, XBYTES, WS_UT)
    a("v_lshrrev_b32 v7, 1, v1", "v_lshlrev_b32 v7, 6, v7", "v_and_b32 v10, 1, v1", "v_lshl_add_u32 v7, v10, 4, v7", "v_lshlrev_b32 v9, 4, v1")
    a(f"s_lshl_b32 s{T0_}, s{S_WAVE}, 11", f"s_lshl_b32 s{T1_}, s{S_B2}, 13", f"s_add_u32 s{T1_}, s{T1_}, s{T0_}")
    a(f"s_lshl_b32 s{T3_}, s{S_XC}, 3", f"s_add_u32 s{T3_}, s{T3_}, s{S_I}", f"s_add_u32 s{T3_}, s{T3_}, {512 - 24}")
    a(f"s_lshr_b32 s{T4_}, s{T3_}, 1", f"s_lshl_b32 s{T4_}, s{T4_}, 13", f"s_and_b32 s{T3_}, s{T3_}, 1", f"s_lshl_b32 s{T3_}, s{T3_}, 5")
    a(f"s_add_u32 s{T3_}, s{T3_}, s{T4_}", f"s_add_u32 s{T3_}, s{T3_}, s{T0_}")
    a(f"s_cmp_lt_u32 s{S_I}, 24", f"s_cselect_b32 s{T3_}, {XBYTES}, s{T3_}", f"s_cselect_b32 s{T2_}, 0, {hex(TAGM)}")
    a(f"v_mov_b32_dpp v64, v58 quad_perm:[0,1,0,1] {DPPM}", f"v_mov_b32_dpp v65, v58 quad_perm:[2,3,2,3] {DPPM}")
    a(f"s_bitcmp1_b32 s{S_I}, 0", "s_cselect_b64 vcc, -1, 0", "v_cndmask_b32 v64, v64, v65, vcc")
    for d in range(4): a(f"v_and_b32 v{60+d}, {hex(TAGM)}, v{58-d}")
    for d in range(3, 0, -1): a(f"v_lshrrev_b32 v{64+d}, {3*d}, v64")
    for d in range(4): a(f"v_and_b32 v{64+d}, s{T2_}, v{64+d}")
    a(f"s_lshl_b32 s{T4_}, s{S_WAVE}, 10", f"s_add_u32 s{T4_}, s{T4_}, {C_U + 480}")
    a("v_bfe_u32 v11, v1, 1, 1", f"v_mul_u32_u24 v11, {U_SIZE}, v11", "v_lshl_add_u32 v11, v10, 4, v11", "v_lshrrev_b32 v10, 2, v1", "v_lshl_add_u32 v11, v10, 5, v11", f"v_add_u32 v11, s{T4_}, v11")
    a(f"v_add_u32 v10, s{T4_}, v9")
    a(f"v_mov_b32 v116, s{S_WAVE}")
    a(f"s_add_u32 s{T0_}, s{T0_}, {hex(WS_FLAG1)}", "v_lshrrev_b32 v12, 2, v1", "v_lshl_add_u32 v12, v12, 6, v59", f"v_add_u32 v12, s{T0_}, v12")
    a(f"s_cmp_eq_u32 s{S_G}, 0", "s_cbranch_scc1 KS_L2C")
    a("s_waitcnt vmcnt(0)")
    a("s_branch KS_L2D")
    a("KS_L2C:")
    if ENV("UTRIG", 1):
        a("s_setprio 0")
        lds_wait(a, FL_G + {1: 4, 2: 16, 3: 16 + 4, 4: 16 + 8, 5: 8, 6: 0}[ENV("UTRIG", 1)], 8, "b4", sleep=2)
        a("s_setprio 3")
    a("KS_L2D:")
    stamp(a, 5)
    if ENV("UDELAY", 0): a(f"s_sleep {ENV('UDELAY', 0)}")
    lp = newlabel("UP"); l1 = newlabel("UPE")
    a(f"s_branch {l1}")
    a(f"{lp}:")
    a(f"s_sleep {ENV('USLEEP', 2)}")
    a(f"{l1}:")
    UM = os.environ.get("UMOD", "sc1").replace("_", " ")
    a(f"global_load_dword v32, v12, s[{P_WS}:{P_WS+1}] sc1", f"global_load_dword v33, v12, s[{P_WS}:{P_WS+1}] offset:1024 sc1")
    a(f"buffer_load_dwordx4 v[20:23], v9, s[{R0}:{R0+3}], s{T1_} offen {UM}")
    a(f"buffer_load_dwordx4 v[24:27], v9, s[{R0}:{R0+3}], s{T1_} offen offset:1024 {UM}")
    a(f"buffer_load_dwordx4 v[28:31], v7, s[{R0}:{R0+3}], s{T3_} offen {UM}")
    guard(a)
    for k in range(3):
        a(f"s_waitcnt vmcnt({2-k})")
        if k == 0: a("v_xor_b32 v32, v58, v32", "v_xor_b32 v33, v58, v33")
        for d in range(4): a(f"v_xor_b32 v{20+4*k+d}, v{(64 if k == 2 else 60)+d}, v{20+4*k+d}")
        a(f"v_or3_b32 v44, v{20+4*k}, v{21+4*k}, v{44 if k else 21}", f"v_or3_b32 v44, v{22+4*k}, v{23+4*k}, v44")
    a(f"v_and_b32 v44, {hex(TAGM)}, v44", "v_or3_b32 v44, v44, v32, v33", "v_cmp_ne_u32 vcc, 0, v44", f"s_cbranch_vccnz {lp}")
    stamp(a, 6)
    a("ds_write_b128 v11, v[20:23]", "ds_write_b128 v11, v[24:27] offset:512", f"ds_write_b128 v10, v[28:31] offset:{2*U_SIZE}")
    a(f"ds_write_b8 v116, v{VONE} offset:{FL_UF}")
    stamp(a, 7)
    gen_wjobs(a)
    a("s_setprio 0")
    a(f"s_lshr_b32 s{T0_}, s{S_B2}, 6", f"s_lshl_b32 s{T0_}, s{T0_}, 9")
    a(f"s_bfe_u32 s{T1_}, s{S_B2}, 0x20004", f"s_lshl_b32 s{T1_}, s{T1_}, 6", f"s_add_u32 s{T0_}, s{T0_}, s{T1_}")
    a(f"s_and_b32 s{T1_}, s{S_B2}, 3", f"s_lshl_b32 s{T1_}, s{T1_}, 4", f"s_add_u32 s{T0_}, s{T0_}, s{T1_}")
    a(f"s_and_b32 s{T1_}, s{S_B2}, 12", f"s_add_u32 s{T0_}, s{T0_}, s{T1_}")
    a(f"s_lshr_b32 s{T1_}, s{S_WAVE}, 1", f"s_lshl_b32 s{T1_}, s{T1_}, 8", f"s_add_u32 s{T0_}, s{T0_}, s{T1_}")
    a(f"s_and_b32 s{T1_}, s{S_WAVE}, 1", f"s_lshl_b32 s{T1_}, s{T1_}, 1", f"s_add_u32 s{T0_}, s{T0_}, s{T1_}")
    a("v_lshrrev_b32 v113, 5, v1", "v_and_b32 v114, 31, v1")
    a(f"v_add_u32 v112, s{T0_}, v113")
    a("v_mul_u32_u24 v115, 1152, v112", "v_lshl_add_u32 v8, v114, 2, v115", "v_lshl_add_u32 v115, v114, 4, v115", "v_lshlrev_b32 v7, 2, v114", "v_lshlrev_b32 v6, 4, v114")
    a(f"v_bfe_u32 v111, v1, 3, 1", f"v_add_u32 v111, s{T0_}, v111", "v_mul_u32_u24 v111, 1152, v111", "v_and_b32 v9, 7, v1", "v_lshl_add_u32 v111, v9, 4, v111")
    srd(a, R0, P_X, XBYTES)
    srd(a, R1, P_WR, 1152)
    a(f"buffer_load_dwordx4 v[10:13], v115, s[{R0}:{R0+3}], 0 offen")
    a(f"buffer_load_dwordx4 v[14:17], v115, s[{R0}:{R0+3}], 0 offen offset:512")
    a(f"buffer_load_dword v18, v8, s[{R0}:{R0+3}], 0 offen offset:1024")
    a(f"buffer_load_dwordx4 v[50:53], v6, s[{R1}:{R1+3}], 0 offen")
    a(f"buffer_load_dwordx4 v[54:57], v6, s[{R1}:{R1+3}], 0 offen offset:512")
    a(f"buffer_load_dword v58, v7, s[{R1}:{R1+3}], 0 offen offset:1024")
    if not PTAG:
        a(f"s_cmp_lt_u32 s{S_I}, 18", "s_cbranch_scc1 KS_L4")
        a(f"s_mul_i32 s{T0_}, s{S_XC}, 14", f"s_add_u32 s{T0_}, s{T0_}, s{S_I}", f"s_mul_i32 s{T0_}, s{T0_}, {CLRP_WG}", f"s_add_u32 s{T0_}, s{T0_}, {hex(WS_PART - 18*CLRP_WG)}")
        a(f"s_add_u32 s{R1}, s{P_WS}, s{T0_}", f"s_addc_u32 s{R1+1}, s{P_WS+1}, 0", f"s_mov_b32 s{R1+2}, {CLRP_WG}", f"s_mov_b32 s{R1+3}, 0x20000")
        a("v_lshlrev_b32 v6, 4, v0", "v_mov_b32 v60, -1", "v_mov_b32 v61, -1", "v_mov_b32 v62, -1", "v_mov_b32 v63, -1")
        for k in range(6):
            a(f"s_movk_i32 s{T0_}, {4096*k}")
            a(f"buffer_store_dwordx4 v[60:63], v6, s[{R1}:{R1+3}], s{T0_} offen sc1")
    a("KS_L4:")
    srd(a, R0, P_WS, 0x240000, WS_ZB1)
    srd(a, R1, P_OUT, XBYTES)
    srd(a, R2_, P_WS, XBYTES, WS_X2)
    srd(a, R3, P_WS, 12288, WS_KEYS)
    a(f"s_not_b32 s{T1_}, s{S_B2}", f"v_xor_b32 v8, s{T1_}, v0")
    a("v_lshrrev_b32 v6, 1, v0", "v_lshlrev_b32 v6, 6, v6", "v_and_b32 v8, 1, v8", "v_lshl_add_u32 v6, v8, 4, v6")
    a(f"s_lshr_b32 s{T0_}, s{S_B2}, 2", f"s_lshl_b32 s{T0_}, s{T0_}, 15", f"s_and_b32 s{T1_}, s{S_B2}, 1", f"s_lshl_b32 s{T1_}, s{T1_}, 14", f"s_add_u32 s{T0_}, s{T0_}, s{T1_}")
    a(f"s_and_b32 s{T1_}, s{S_B2}, 2", f"s_lshl_b32 s{T1_}, s{T1_}, 4", f"s_add_u32 s{T0_}, s{T0_}, s{T1_}")
    a(f"s_lshr_b32 s{T2_}, s{S_B2}, 2", f"s_lshl_b32 s{T2_}, s{T2_}, 12", f"s_and_b32 s{T1_}, s{S_B2}, 3", f"s_lshl_b32 s{T1_}, s{T1_}, 4")
    a(f"s_add_u32 s{T2_}, s{T2_}, s{T1_}", f"s_lshl_b32 s{T1_}, s{S_WAVE}, 10", f"s_add_u32 s{T2_}, s{T2_}, s{T1_}", f"s_add_u32 s{T2_}, s{T2_}, 0x200000")
    a(f"s_add_u32 s{T1_}, s{T0_}, 8192", "v_lshlrev_b32 v9, 6, v2")
    a(f"s_mul_i32 s{T3_}, s{S_WAVE}, 2304", f"s_add_u32 s{T3_}, s{T3_}, {C_XR}", f"v_lshl_add_u32 v117, v114, 5, s{T3_}", f"v_lshl_add_u32 v110, v114, 3, s{T3_}")
    a(f"s_lshl_b32 s{T3_}, s{S_WAVE}, 9", f"s_add_u32 s{T3_}, s{T3_}, {C_RED}", f"v_lshl_add_u32 v108, v1, 2, s{T3_}", f"v_lshl_add_u32 v109, v1, 4, s{T3_}")
    a(f"s_mov_b32 s{T3_}, 0x02020202", f"v_mul_lo_u32 v118, v113, s{T3_}", "v_add_u32 v118, 0x05040100, v118")
    a(f"v_lshlrev_b32 v8, 2, v0", f"v_add_u32 v8, {C_XR}, v8")
    a(f"s_lshl_b32 s{T3_}, s{S_WAVE}, 6", f"s_add_u32 s{T3_}, s{T3_}, {C_XR + 2048}", f"v_lshl_add_u32 v119, v2, 2, s{T3_}")
    a("s_waitcnt vmcnt(0)")
    X = 20
    for j in range(9): unpack(a, X + 2 * j, 10 + j)
    lds_wait(a, FL_ZDONE + 4, 60, "b4", sleep=1)
    a("s_setprio 3")
    if PFD2 > PFD:
        a(f"s_sub_u32 s{T5_}, s{S_I}, 18", f"s_cmp_ge_u32 s{T5_}, 6", "s_cbranch_scc1 KS_PF3E", f"s_cmp_lg_u32 s{S_WAVE}, 2", "s_cbranch_scc1 KS_PF3E")
        pf_down(a, T5_, 6, PFD, PFD2, 100, 120, "KS_PF3E", R4)
        a("KS_PF3E:")
    stamp2(a, 1)
    if ENV("ZGATE", 1):
        zpoll(a, [f"buffer_load_dwordx4 v[68:71], v{VZ}, s[{R0}:{R0+3}], s{T2_} offen sc1"], list(range(68, 72)), ENV("ZSLEEP", 1))
        if ENV("ZDELAY", 0): a(f"s_sleep {ENV('ZDELAY', 0)}")
    zpoll(a, [f"buffer_load_dwordx4 v[60:63], v6, s[{R0}:{R0+3}], s{T0_} offen sc1",
           f"buffer_load_dwordx4 v[64:67], v6, s[{R0}:{R0+3}], s{T1_} offen sc1",
           f"buffer_load_dwordx4 v[68:71], v9, s[{R0}:{R0+3}], s{T2_} offen sc1"], list(range(60, 72)), ENV("ZSLEEP", 1))
    stamp2(a, 2)
    for k in range(2):
        a(f"ds_write2st64_b32 v8, v{60+4*k}, v{61+4*k} offset0:{4*k} offset1:{9+4*k}")
        a(f"ds_write2st64_b32 v8, v{62+4*k}, v{63+4*k} offset0:{18+4*k} offset1:{27+4*k}")
    a("ds_write2st64_b32 v119, v68, v69 offset0:0 offset1:9")
    a("ds_write2st64_b32 v119, v70, v71 offset0:18 offset1:27")
    a(f"ds_write_b8 v116, v{VONE} offset:{FL_ZF}")
    stamp2(a, 3)
    lds_wait(a, FL_ZF, 60, "b4")
    for k in range(4):
        a(f"ds_read_b128 v[{60+4*k}:{63+4*k}], v117 offset:{1024*(k>>1) + 16*(k&1)}")
    a("ds_read_b64 v[76:77], v110 offset:2048")
    for j in range(9):
        if j % 2 == 0: a(f"s_waitcnt lgkmcnt({4-j//2})")
        a(f"v_perm_b32 v44, v{61+2*j}, v{60+2*j}, v118")
        unpack(a, 46, 44)
        a(f"v_pk_add_f32 v[46:47], v[46:47], v[{X+2*j}:{X+2*j+1}]")
        a(f"v_cvt_pk_bf16_f32 v44, v46, v47")
        unpack(a, X + 2 * j, 44)
    ln_stats(a, X, 40, 42, 44, 46, 48)
    stamp2(a, 4)
    a("v_mov_b32 v60, 0", "v_mov_b32 v61, 0")
    for j in range(9):
        ln_apply_pair(a, X + 2 * j, 40, 42, 44, 10 + j)
        unpack(a, 46, 50 + j)
        a("v_pk_fma_f32 v[60:61], v[44:45], v[46:47], v[60:61]")
        a(f"v_pk_add_f32 v[{X+2*j}:{X+2*j+1}], v[44:45], v[{X+2*j}:{X+2*j+1}]")
    a("v_add_f32 v60, v60, v61")
    red32(a, "v_add_f32", 60, 61)
    a("v_cvt_pk_bf16_f32 v60, v60, v60")
    a("v_ashrrev_i32 v61, 31, v60", "v_or_b32 v61, 0x80000000, v61", "v_xor_b32 v60, v60, v61", "v_and_b32 v60, 0xffff0000, v60")
    a("v_sub_u32 v62, 0x87ff, v112", "v_or_b32 v60, v60, v62", "v_lshl_add_u32 v61, v116, 1, v113", "v_lshlrev_b32 v61, 2, v61")
    a("s_mov_b32 exec_lo, 1", "s_mov_b32 exec_hi, 1")
    a(f"ds_write_b32 v61, v60 offset:{C_KEY}")
    a("s_mov_b64 exec, 1")
    a(f"ds_add_rtn_u32 v62, v{VZ}, v{VONE} offset:{FL_KCNT}")
    a("s_mov_b64 exec, 3")
    a("v_lshlrev_b32 v61, 4, v114", f"s_lshl_b32 s{T0_}, s{S_B2}, 5")
    a(f"ds_read_b128 v[64:67], v61 offset:{C_KEY}")
    a("s_waitcnt lgkmcnt(1)")
    a(f"v_readfirstlane_b32 s{T1_}, v62")
    a(f"s_cmp_lg_u32 s{T1_}, 3", "s_cbranch_scc1 KS_NOKEY")
    a("s_waitcnt lgkmcnt(0)")
    a(f"buffer_store_dwordx4 v[64:67], v61, s[{R3}:{R3+3}], s{T0_} offen sc1")
    a("KS_NOKEY:")
    a("s_mov_b64 exec, -1")
    a(f"v_cvt_pk_bf16_f32 v58, v{X+16}, v{X+17}")
    a("ds_write_b32 v108, v18", "ds_write_b32 v108, v58 offset:256", "ds_read_b128 v[64:67], v109")
    a(f"buffer_store_dwordx4 v[10:13], v115, s[{R2_}:{R2_+3}], 0 offen sc1")
    a(f"buffer_store_dwordx4 v[14:17], v115, s[{R2_}:{R2_+3}], 0 offen offset:512 sc1")
    for j in range(8):
        a(f"v_cvt_pk_bf16_f32 v{50+j}, v{X+2*j}, v{X+2*j+1}")
    a("s_mov_b64 exec, 0xffff")
    a("s_waitcnt lgkmcnt(0)")
    a(f"buffer_store_dwordx4 v[64:67], v111, s[{R2_}:{R2_+3}], 0 offen offset:1024 sc1")
    a("s_mov_b64 exec, 0xffff0000")
    a(f"buffer_store_dwordx4 v[64:67], v111, s[{R1}:{R1+3}], 0 offen offset:1024 sc1")
    a("s_mov_b64 exec, -1")
    a(f"buffer_store_dwordx4 v[50:53], v115, s[{R1}:{R1+3}], 0 offen sc1")
    a(f"buffer_store_dwordx4 v[54:57], v115, s[{R1}:{R1+3}], 0 offen offset:512 sc1")
    stamp2(a, 5)
    a(f"s_cmp_lg_u32 s{T1_}, 3", "s_cbranch_scc1 KS_NOKEY2")
    a("s_waitcnt vmcnt(6)")
    a(f"ds_write_b32 v{VZ}, v{VONE} offset:{FL_KACK}")
    a("KS_NOKEY2:")
    a("s_waitcnt vmcnt(0)")
    a("s_mov_b64 exec, 1")
    a(f"ds_add_rtn_u32 v62, v{VZ}, v{VONE} offset:{FL_F2CNT}")
    a("s_waitcnt lgkmcnt(0)")
    a("v_cmp_eq_u32 vcc, 3, v62", "s_and_b64 exec, exec, vcc", "s_cbranch_execz KS_NOF2")
    a(f"s_lshl_b32 s{T0_}, s2, 4", f"s_add_u32 s{T0_}, s{T0_}, 8192")
    a(f"buffer_store_dword v{VONE}, v{VZ}, s[{R3}:{R3+3}], s{T0_} offen sc1")
    a("KS_NOF2:")
    a("s_mov_b64 exec, -1")
    a("s_setprio 0")
    a(f"s_cmp_lt_u32 s{S_I}, 18", "s_cbranch_scc1 KS_B")
    a("s_waitcnt lgkmcnt(0)")
    endwave(a)
    a("KS_T:")
    a("s_setprio 0")
    a(f"s_cmp_ge_u32 s{S_WAVE}, 10", "s_cbranch_scc1 KS_P")
    a("v_and_b32 v6, 1, v1", "v_subrev_u32 v6, 1, v6")
    a("v_and_b32 v7, 7, v1", "v_lshlrev_b32 v7, 2, v7")
    srd(a, R3, P_WS, 12288, WS_KEYS)
    a(f"s_cmp_eq_u32 s{S_WAVE}, 9", "s_cbranch_scc1 KS_W9")
    a(f"s_cmp_eq_u32 s{S_WAVE}, 8", "s_cbranch_scc1 KS_L2W")
    a(f"s_sub_u32 s{T1_}, s{S_WAVE}, 4", f"s_lshl_b32 s{T0_}, s{T1_}, 10", f"v_lshl_add_u32 v33, v1, 4, s{T0_}", f"s_movk_i32 s{T0_}, 4096")
    a(f"s_lshl_b32 s{T1_}, s{T1_}, 7", "v_lshlrev_b32 v32, 4, v2", "v_lshl_add_u32 v32, v3, 5, v32", f"v_add_u32 v32, s{T1_}, v32")
    lds_wait(a, FL_KACK, 8, "nz", sleep=1)
    a("s_setprio 2")
    if ENV('KDELAY', 20): a(f"s_sleep {ENV('KDELAY', 20)}")
    stamp2(a, 1)
    zpoll(a, [f"buffer_load_dwordx4 v[8:11], v33, s[{R3}:{R3+3}], 0 offen sc1",
           f"buffer_load_dwordx4 v[12:15], v33, s[{R3}:{R3+3}], s{T0_} offen sc1"], list(range(8, 16)), ENV("KSLEEP", 4))
    a(f"ds_write_b32 v{VZ}, v{VONE} offset:{FL_KSEEN}")
    stamp2(a, 2)
    pool = Pool(range(16, 28))
    x = [8, 9, 10, 11]; y = [12, 13, 14, 15]
    for (i, j) in ((0, 1), (2, 3), (0, 2), (1, 3), (1, 2)):
        ce_inlane(a, x, i, j, pool); ce_inlane(a, y, i, j, pool)
    clean8(a, x, pool, 6, rev=True); clean8(a, y, pool, 6, rev=True)
    merge_pair(a, x, y, pool); clean8(a, x, pool, 6)
    for M in MIRRORS:
        merge_mirror(a, x, pool, M); clean8(a, x, pool, 6)
    for i in range(4): a(f"v_mov_b32 v{28+i}, v{x[i]}")
    a("s_mov_b32 exec_lo, 0x00030003", "s_mov_b32 exec_hi, 0x00030003")
    a(f"ds_write_b128 v32, v[28:31] offset:{C_CAND}")
    a("s_mov_b64 exec, -1")
    stamp2(a, 3)
    a("s_setprio 0")
    a("s_branch KS_B")
    a("KS_L2W:")
    srd(a, R2_, P_WS, XBYTES, WS_X2)
    a(f"s_mov_b32 s{T0_}, 0xcccccccc", f"s_mov_b32 s{T1_}, 0xcccccccc", f"s_mov_b32 s{T2_}, 0xf0f0f0f0", f"s_mov_b32 s{T3_}, 0xf0f0f0f0", f"s_movk_i32 s{T4_}, 1152")
    a("v_lshrrev_b32 v34, 3, v1", "v_lshlrev_b32 v34, 4, v34", "v_lshlrev_b32 v33, 4, v2")
    lds_wait(a, FL_KACK, 8, "nz", sleep=1)
    a("s_setprio 2")
    a("KS_L2POLL:")
    a(f"ds_read_b128 v[8:11], v33 offset:{C_CAND}")
    a(f"ds_read_b128 v[12:15], v33 offset:{C_CAND + 256}")
    guard(a)
    a("s_waitcnt lgkmcnt(0)")
    a("v_min3_u32 v16, v8, v9, v10", "v_min3_u32 v17, v11, v12, v13", "v_min3_u32 v16, v16, v14, v15", "v_min_u32 v16, v16, v17", "v_cmp_eq_u32 vcc, 0, v16")
    a("s_cbranch_vccnz KS_L2POLL")
    stamp2(a, 1)
    pool = Pool(range(16, 28))
    x = [8, 9, 10, 11]; y = [12, 13, 14, 15]
    merge_pair(a, x, y, pool); clean8(a, x, pool, 6)
    for li, M in enumerate(MIRRORS):
        merge_mirror(a, x, pool, M)
        if li < 2: clean8(a, x, pool, 6)
    a(f"ds_read_b32 v35, v{VZ} offset:{FL_ROWSOK}")
    a(f"v_cndmask_b32 v30, v{x[0]}, v{x[1]}, s[{T0_}:{T1_}]", f"v_cndmask_b32 v31, v{x[2]}, v{x[3]}, s[{T0_}:{T1_}]", f"v_cndmask_b32 v30, v30, v31, s[{T2_}:{T3_}]")
    a("v_mov_b32_dpp v30, v30 row_shr:8 row_mask:0xf bank_mask:0xc")
    a("v_and_b32 v31, 0x7ff, v30", "v_sub_u32 v31, 2047, v31", f"v_mad_u32_u24 v31, v31, s{T4_}, v34")
    a("s_waitcnt lgkmcnt(0)")
    a("v_cmp_ne_u32 vcc, 0, v35", "s_cbranch_vccnz KS_RW1")
    lds_wait(a, FL_ROWSOK, 35, "nz")
    a("KS_RW1:")
    for k in range(9):
        a(f"s_mov_b32 m0, {C_XR + 896*k}")
        a(f"buffer_load_dwordx4 v31, s[{R2_}:{R2_+3}], 0 offen offset:{128*k} sc1 lds")
    a(f"ds_write_b32 v7, v30 offset:{C_SEL}")
    stamp2(a, 2)
    a("s_waitcnt vmcnt(0)")
    a(f"ds_write_b32 v{VZ}, v{VONE} offset:{FL_XRDY}")
    stamp2(a, 3)
    a("s_setprio 0")
    a("s_branch KS_B")
    a("KS_W9:")
    a("v_lshlrev_b32 v33, 4, v1", f"s_movk_i32 s{T0_}, 0x2000")
    srd(a, R2_, P_WS, XBYTES, WS_X2)
    srd(a, R0, P_WS, 0x240000, WS_ZB1)
    srd(a, R1, P_X, XBYTES)
    a("v_bfe_u32 v43, v1, 2, 3", f"s_lshl_b32 s{T1_}, s{S_BLK}, 3", f"v_add_u32 v43, s{T1_}, v43")
    a("v_bfe_u32 v40, v43, 4, 1", "v_and_b32 v41, 3, v1", "v_lshl_add_u32 v40, v40, 2, v41", "v_lshlrev_b32 v40, 2, v40")
    a("v_lshrrev_b32 v41, 5, v43", "v_lshlrev_b32 v41, 4, v41", "v_and_b32 v42, 15, v43", "v_add_u32 v41, v41, v42")
    lds_wait(a, FL_KSEEN, 8, "nz", sleep=1)
    if ENV('F2DELAY', 8): a(f"s_sleep {ENV('F2DELAY', 8)}")
    a("s_setprio 2")
    zpoll(a, [f"buffer_load_dword v{8+k}, v33, s[{R3}:{R3+3}], s{T0_} offen offset:{1024*k} sc1" for k in range(4)], list(range(8, 12)), ENV("F2SLEEP", 4))
    a(f"ds_write_b32 v{VZ}, v{VONE} offset:{FL_ROWSOK}")
    stamp2(a, 1)
    a("s_setprio 0")
    lds_wait(a, C_SEL, 12, "nz", addr=7, sleep=1)
    stamp2(a, 2)
    a(f"ds_read_b32 v19, v40 offset:{C_SEL}")
    a("s_waitcnt lgkmcnt(0)")
    a("v_and_b32 v14, 0x7ff, v19", "v_sub_u32 v14, 2047, v14")
    a("v_mul_u32_u24 v23, 1152, v14", "v_lshl_add_u32 v23, v41, 1, v23")
    a(f"buffer_load_ushort v20, v23, s[{R2_}:{R2_+3}], 0 offen sc1")
    a(f"buffer_load_ushort v17, v23, s[{R1}:{R1+3}], 0 offen")
    a("v_lshrrev_b32 v15, 9, v14", "v_bfe_u32 v16, v14, 6, 2", "v_lshl_add_u32 v15, v15, 2, v16", "v_bfe_u32 v16, v14, 2, 2", "v_lshl_add_u32 v15, v15, 2, v16")
    a("v_bfe_u32 v16, v14, 4, 1")
    a("v_bfe_u32 v24, v14, 8, 1", "v_and_b32 v25, 3, v14", "v_lshl_add_u32 v24, v24, 2, v25", "v_lshlrev_b32 v24, 1, v24")
    a("v_bfe_u32 v25, v14, 5, 1", "v_lshl_add_u32 v24, v25, 5, v24")
    a("v_lshl_add_u32 v25, v15, 1, v16", "v_lshl_add_u32 v25, v25, 14, v24")
    a("v_lshrrev_b32 v26, 1, v41", "v_lshl_add_u32 v25, v26, 6, v25", "v_xor_b32 v26, v41, v16", "v_not_b32 v26, v26", "v_and_b32 v26, 1, v26", "v_lshl_add_u32 v25, v26, 4, v25")
    a("v_lshl_add_u32 v26, v15, 12, v24", "v_lshl_add_u32 v26, v16, 4, v26", "v_lshl_add_u32 v26, v41, 6, v26", f"v_add_u32 v26, {0x200000 - 512*64}, v26")
    a("v_cmp_gt_u32 vcc, 0x200, v41", "v_cndmask_b32 v25, v26, v25, vcc")
    a(f"buffer_load_ushort v18, v25, s[{R0}:{R0+3}], 0 offen sc1")
    srd(a, R2_, P_WS, 64, WS_IDX)
    a("v_ashrrev_i32 v22, 31, v19", "v_not_b32 v22, v22", "v_or_b32 v22, 0x80000000, v22", "v_xor_b32 v22, v19, v22", "v_and_b32 v22, 0xffff0000, v22")
    a(f"v_mul_f32 v22, {f32(-LOG2E)}, v22", "v_exp_f32 v22, v22", "v_add_f32 v22, 1.0, v22", "v_rcp_f32 v22, v22")
    a("v_cvt_pk_bf16_f32 v22, v22, v22", "v_lshlrev_b32 v22, 16, v22")
    a("v_and_b32 v14, 31, v1", "v_lshlrev_b32 v14, 4, v14")
    a("s_waitcnt vmcnt(0)")
    a("v_lshlrev_b32 v17, 16, v17", "v_lshlrev_b32 v18, 16, v18", "v_add_f32 v17, v17, v18", "v_cvt_pk_bf16_f32 v17, v17, v17")
    a("v_and_b32 v21, 0xffff0000, v17", "v_lshlrev_b32 v20, 16, v20")
    a(f"ds_write_b128 v14, v[20:23] offset:{C_SIDE}")
    a("s_cmp_lg_u32 s2, 0", "s_cbranch_scc1 KS_W9E")
    a(f"buffer_store_dword v12, v7, s[{R2_}:{R2_+3}], 0 offen")
    a("KS_W9E:")
    a("s_waitcnt lgkmcnt(0)")
    stamp2(a, 3)
    endwave(a)
    a("KS_B:")
    srd(a, R0, P_WS, PART_BYTES, WS_PART)
    a("v_bfe_u32 v16, v1, 2, 2", "v_lshl_add_u32 v16, v3, 3, v16", "v_mul_u32_u24 v16, 1152, v16", "v_and_b32 v17, 3, v1", "v_lshl_add_u32 v16, v17, 3, v16")
    a(f"s_lshl_b32 s{T0_}, s{S_WAVE}, 7", f"s_add_u32 s{T0_}, s{T0_}, {C_DOWN}", f"v_add_u32 v16, s{T0_}, v16")
    if PTAG: a("v_lshlrev_b32 v18, 2, v17", f"ds_read_b32 v24, v18 offset:{FL_NONCE}", f"s_movk_i32 s{T2_}, 0xff")
    lds_wait(a, FL_DOWN, 17, "b4")
    if PTAG:
        for d in range(1, 4): a(f"v_lshrrev_b32 v{24+d}, {8*d}, v24")
    WTD = 48
    for jt in range(4):
        a(f"ds_read_b64_tr_b16 v[{WTD+4*jt}:{WTD+4*jt+1}], v16 offset:{32*jt}")
        a(f"ds_read_b64_tr_b16 v[{WTD+4*jt+2}:{WTD+4*jt+3}], v16 offset:{32*jt + 4608}")
    a("v_and_b32 v16, 7, v2", "v_lshlrev_b32 v16, 6, v16", "v_lshl_add_u32 v16, v3, 4, v16")
    a(f"s_mul_i32 s{T0_}, s{S_BLK}, 18432", f"s_lshl_b32 s{T1_}, s{S_WAVE}, 11", f"s_add_u32 s{T0_}, s{T0_}, s{T1_}")
    a("v_lshlrev_b32 v17, 4, v1")
    a("s_waitcnt lgkmcnt(0)")
    a("s_barrier")
    a("s_barrier")
    a(f"ds_read_b128 v[20:23], v16 offset:{C_ACT}")
    a("s_waitcnt lgkmcnt(0)")
    for j in range(4):
        a(f"v_mfma_f32_16x16x32_bf16 v[{32+4*j}:{35+4*j}], v[20:23], v[{WTD+4*j}:{WTD+4*j+3}], 0")
    for j in (0, 2):
        for r in range(4): a(f"v_permlane32_swap_b32 v{32+4*j+r}, v{36+4*j+r}")
        for r in range(4): a(f"v_bfi_b32 v{32+4*j+r}, s{T2_}, v{24+r}, v{32+4*j+r}" if PTAG else f"v_min_u32 v{32+4*j+r}, -2, v{32+4*j+r}")
        a(f"buffer_store_dwordx4 v[{32+4*j}:{35+4*j}], v17, s[{R0}:{R0+3}], s{T0_} offen offset:{512*j} sc1")
    stamp2(a, 8)
    a("s_waitcnt vmcnt(0)", "s_barrier")
    endwave(a)
    a("KS_G0:")
    a(f"ds_write_b8 v15, v{VONE} offset:{FL_G+4}")
    a("s_setprio 0")
    a("KS_G:")
    a(f"s_mov_b32 s{SP0}, 0x05040100", f"s_mov_b32 s{SP1}, 0x07060302")
    a("s_waitcnt vmcnt(0)")
    stamp(a, 5)
    g_addr_setup(a, 46)
    SG = eval(os.environ.get("SG", "[0,0,0,0]"))
    if any(SG):
        a(f"s_mul_i32 s{T0_}, s{S_ROLE}, {32*9216}", f"s_lshl_b32 s{T1_}, s{S_BLK}, 6", f"s_add_u32 s{T0_}, s{T0_}, s{T1_}")
        a(f"s_add_u32 s{R0}, s{P_GATE}, s{T0_}", f"s_addc_u32 s{R0+1}, s{P_GATE+1}, 0", f"s_add_u32 s{R0+2}, s{P_UP}, s{T0_}", f"s_addc_u32 s{R0+3}, s{P_UP+1}, 0")
        cnt = sum(SG[g] << (8 * g) for g in range(4))
        a(f"s_lshl_b32 s{T1_}, s{S_G}, 3", f"s_lshr_b32 s{T1_}, {hex(cnt)}, s{T1_}", f"s_and_b32 s{T1_}, s{T1_}, 0xff", "s_cbranch_scc0 KS_SGE")
        a("KS_SGL:")
        for r in range(8):
            a(f"s_load_dword s{R1}, s[{R0}:{R0+1}], {r*9216}", f"s_load_dword s{R1+1}, s[{R0+2}:{R0+3}], {r*9216}")
        a(f"s_add_u32 s{R0}, s{R0}, {8*9216}", f"s_addc_u32 s{R0+1}, s{R0+1}, 0", f"s_add_u32 s{R0+2}, s{R0+2}, {8*9216}", f"s_addc_u32 s{R0+3}, s{R0+3}, 0")
        a(f"s_sub_u32 s{T1_}, s{T1_}, 1", f"s_cmp_lg_u32 s{T1_}, 0", "s_cbranch_scc1 KS_SGL")
        a("KS_SGE:")
        a("s_waitcnt lgkmcnt(0)")
        stamp(a, 8)
    TR = {1: (FL_PARAM, "nz"), 2: (FL_UF, "b4"), 3: (FL_ZF, "b4"), 4: (FL_KACK, "nz"), 5: (FL_KSEEN, "nz"), 6: (FL_ZDONE + 4, "b4")}
    for t in sorted(set(GT)):
        l = newlabel("GT")
        mask = sum(1 << g for g in range(4) if GT[g] == t)
        if mask != 15: a(f"s_lshr_b32 s{T0_}, {mask}, s{S_G}", f"s_bitcmp1_b32 s{T0_}, 0", f"s_cbranch_scc0 {l}")
        lds_wait(a, TR[t][0], 10, TR[t][1], sleep=2)
        if t >= 3: a("s_setprio 1")
        a(f"{l}:")
    g_loads(a, 46, range(4))
    stamp(a, 6)
    def transpose(src, dst):
        for j in range(4):
            for p in range(4):
                lo = src + 2 * (2 * p) + (j >> 1); hi = src + 2 * (2 * p + 1) + (j >> 1)
                a(f"v_perm_b32 v{dst+4*j+p}, v{hi}, v{lo}, s{SP0 + (j & 1)}")
    W = GW
    a(f"s_bitcmp1_b32 s{S_G}, 0", "s_cbranch_scc1 KS_G4")
    g_loads(a, 46, [4])
    a("KS_G4:")
    a(f"v_mov_b32 v6, s{S_G}", f"ds_write_b8 v6, v{VONE} offset:{FL_GISS}")
    a("s_waitcnt vmcnt(0)")
    stamp(a, 7)
    for ks in range(5): transpose(W + 16 * ks, W + 16 * ks - 16)
    GACC = 112
    a(f"s_lshl_b32 s{T0_}, s{S_ROLE}, 9", f"s_add_u32 s{T0_}, s{T0_}, {C_XR}", "v_and_b32 v6, 7, v2", f"v_lshl_add_u32 v7, v6, 4, s{T0_}", "v_lshl_add_u32 v7, v3, 7, v7")
    a(f"s_lshl_b32 s{T0_}, s{S_G}, 6", f"v_add_u32 v11, s{T0_}, v1")
    a("v_lshrrev_b32 v8, 5, v11", "v_and_b32 v9, 31, v11")
    a("v_and_b32 v10, 3, v9", "v_lshlrev_b32 v10, 9, v10")
    a("v_lshrrev_b32 v9, 2, v9", "v_lshl_add_u32 v10, v9, 4, v10")
    a("v_lshrrev_b32 v9, 2, v8", "v_lshl_add_u32 v10, v9, 8, v10")
    a("v_and_b32 v9, 3, v8", "v_lshl_add_u32 v10, v9, 2, v10")
    a("v_lshlrev_b32 v11, 1, v11")
    a(f"s_lshl_b32 s{T0_}, s{S_G}, 11", f"v_lshl_add_u32 v9, v1, 4, s{T0_}")
    lds_wait(a, C_SEL, 12, "nz", sleep=2)
    a("s_setprio 2")
    lds_wait(a, FL_XRDY, 12, "nz")
    stamp2(a, 1)
    for ks in range(5):
        a(f"ds_read_b128 v[{12+4*ks}:{15+4*ks}], v7 offset:{512*ks}")
    for ks in range(5):
        if ks == 4: a(f"s_bitcmp1_b32 s{S_G}, 0", "s_cbranch_scc1 KS_G5")
        a(f"s_waitcnt lgkmcnt({4-ks})")
        for j in range(4):
            c = "0" if ks == 0 else f"v[{GACC+4*j}:{GACC+4*j+3}]"
            a(f"v_mfma_f32_16x16x32_bf16 v[{GACC+4*j}:{GACC+4*j+3}], v[{12+4*ks}:{15+4*ks}], v[{32+16*ks+4*j}:{35+16*ks+4*j}], {c}")
    a("KS_G5:")
    a("s_mov_b32 exec_lo, -1", "s_mov_b32 exec_hi, 0")
    a.flush(6)
    for j in range(4):
        a(f"ds_write_b128 v9, v[{GACC+4*j}:{GACC+4*j+3}] offset:{C_RED + 512*j}")
    a("s_mov_b64 exec, -1")
    a("s_waitcnt lgkmcnt(0)", "s_barrier")
    stamp2(a, 2)
    for w in range(4):
        a(f"ds_read_b32 v{32+2*w}, v10 offset:{C_RED + 2048*w}")
        a(f"ds_read_b32 v{33+2*w}, v10 offset:{C_RED + 2048*w + 128}")
    a("s_waitcnt lgkmcnt(4)")
    a("v_pk_add_f32 v[32:33], v[32:33], v[34:35]")
    a("s_waitcnt lgkmcnt(0)")
    a("v_pk_add_f32 v[36:37], v[36:37], v[38:39]")
    a("v_pk_add_f32 v[32:33], v[32:33], v[36:37]")
    a("v_cvt_pk_bf16_f32 v34, v32, v33")
    unpack(a, 32, 34)
    a(f"v_mul_f32 v34, {f32(-LOG2E)}, v32", "v_exp_f32 v34, v34", "v_add_f32 v34, 1.0, v34", "v_rcp_f32 v34, v34", "v_mul_f32 v34, v32, v34")
    a("v_cvt_pk_bf16_f32 v34, v34, v34", "v_lshlrev_b32 v34, 16, v34")
    a("v_mul_f32 v34, v34, v33", "v_cvt_pk_bf16_f32 v34, v34, v34")
    a(f"ds_write_b16 v11, v34 offset:{C_ACT}")
    a("s_waitcnt lgkmcnt(0)")
    a("s_barrier")
    a("s_branch KS_P2")
    a("KS_P:")
    srd(a, R1, P_DOWN, F * D * 2)
    a(f"s_sub_u32 s{T2_}, s{S_WAVE}, 10", "v_lshlrev_b32 v6, 4, v1", f"s_mul_i32 s{T0_}, s{S_BLK}, 36864", f"s_mul_i32 s{T1_}, s{T2_}, 18432", f"s_add_u32 s{T0_}, s{T0_}, s{T1_}", f"s_add_u32 s{T1_}, s{T1_}, {C_DOWN}")
    a(f"s_lshl_b32 s{T2_}, s{T2_}, 1", f"v_mov_b32 v7, s{T2_}", f"v_mov_b32 v8, s{S_ONES}")
    TR[7] = (FL_GISS, "b4")
    if DT: lds_wait(a, TR[DT][0], 10, TR[DT][1], sleep=2)
    a("s_setprio 1")
    stamp2(a, 1)
    for k in range(18):
        if k % 4 == 0:
            a(f"s_add_u32 m0, s{T1_}, {1024*k}")
            if k: a(f"s_add_u32 s{T0_}, s{T0_}, 4096")
        a(f"buffer_load_dwordx4 v6, s[{R1}:{R1+3}], s{T0_} offen offset:{1024*(k&3)} lds")
    a("s_waitcnt vmcnt(0)")
    stamp2(a, 2)
    a(f"ds_write_b16 v7, v8 offset:{FL_DOWN}")
    a("s_setprio 0")
    a("s_waitcnt lgkmcnt(0)")
    a("s_barrier")
    a("s_barrier")
    a("s_setprio 2")
    a("KS_P2:")
    a(f"s_sub_u32 s{S_G}, s{S_WAVE}, 10")
    srd(a, R0, P_WS, PART_BYTES, WS_PART)
    srd(a, R1, P_OUT, XBYTES)
    a("v_lshrrev_b32 v8, 3, v1", "v_mul_u32_u24 v8, 18432, v8", "v_and_b32 v9, 7, v1", "v_lshl_add_u32 v8, v9, 4, v8")
    a(f"s_mul_i32 s{T0_}, s{S_G}, {24*18432}", f"s_lshl_b32 s{T1_}, s{S_BLK}, 7", f"s_add_u32 s{T0_}, s{T0_}, s{T1_}", f"s_add_u32 s{T1_}, s{T0_}, {8*18432}", f"s_add_u32 s{T2_}, s{T0_}, {16*18432}")
    a(f"s_lshl_b32 s{T3_}, s{S_G}, 7", f"v_lshl_add_u32 v6, v9, 4, s{T3_}", "v_lshl_add_u32 v6, v3, 2, v6")
    a(f"v_lshlrev_b32 v12, 2, v1", f"v_add_u32 v12, {C_RED2}, v12", "v_lshlrev_b32 v13, 4, v1")
    if PTAG:
        a("v_and_b32 v14, 12, v12", f"ds_read_b32 v24, v14 offset:{FL_NONCE}", "s_waitcnt lgkmcnt(0)")
        for d in range(1, 4): a(f"v_lshrrev_b32 v{24+d}, {8*d}, v24")
    a("s_barrier")
    stamp2(a, 3)
    if PTAG:
        lp = newlabel("PP"); l1 = newlabel("PPE")
        a(f"s_branch {l1}", f"{lp}:", "s_sleep 1", f"{l1}:")
        for k in range(3): a(f"buffer_load_dwordx4 v[{32+4*k}:{35+4*k}], v8, s[{R0}:{R0+3}], s{T0_+k} offen sc1")
        guard(a)
        for k in range(3):
            a(f"s_waitcnt vmcnt({2-k})")
            for d in range(4):
                t = 44 + (d & 1)
                a(f"v_xor_b32 v{t}, v{24+d}, v{32+d}" if k == 0 and d < 2 else f"v_bitop3_b32 v{t}, v{t}, v{24+d}, v{32+4*k+d} bitop3:0xf6")
        a("v_or_b32 v44, v44, v45", "v_and_b32 v44, 0xff, v44", "v_cmp_ne_u32 vcc, 0, v44", f"s_cbranch_vccnz {lp}")
    else: zpoll(a, [f"buffer_load_dwordx4 v[{32+4*k}:{35+4*k}], v8, s[{R0}:{R0+3}], s{T0_+k} offen sc1" for k in range(3)], list(range(32, 44)), 1)
    stamp2(a, 4)
    a("v_pk_add_f32 v[32:33], v[32:33], v[36:37]", "v_pk_add_f32 v[34:35], v[34:35], v[38:39]")
    a("v_pk_add_f32 v[32:33], v[32:33], v[40:41]", "v_pk_add_f32 v[34:35], v[34:35], v[42:43]")
    for r in range(4): a(f"v_add_f32_dpp v{32+r}, v{32+r}, v{32+r} row_ror:8 {DPPM}")
    a("v_permlane16_swap_b32 v32, v33", "v_permlane16_swap_b32 v34, v35")
    a("v_add_f32 v32, v32, v33", "v_add_f32 v34, v34, v35")
    a("v_permlane32_swap_b32 v32, v34")
    a("v_add_f32 v32, v32, v34")
    a(f"ds_write_b32 v6, v32 offset:{C_RED2}")
    a("s_waitcnt lgkmcnt(0)", "s_barrier")
    a(f"s_cmp_lg_u32 s{S_G}, 0", "s_cbranch_scc1 KS_PEND")
    a("s_mov_b32 exec_lo, -1", "s_mov_b32 exec_hi, 0")
    for g in range(3):
        a(f"ds_read2_b32 v[{32+2*g}:{33+2*g}], v12 offset0:{64*g} offset1:{64*g + 32}")
    a(f"ds_read_b128 v[40:43], v13 offset:{C_SIDE}")
    a("s_waitcnt lgkmcnt(0)")
    a("v_pk_add_f32 v[32:33], v[32:33], v[34:35]", "v_pk_add_f32 v[32:33], v[32:33], v[36:37]", "v_add_f32 v8, v32, v33")
    a("v_cvt_pk_bf16_f32 v8, v8, v8", "v_lshlrev_b32 v8, 16, v8")
    a("v_mul_f32 v8, v8, v42", "v_cvt_pk_bf16_f32 v8, v8, v8", "v_lshlrev_b32 v8, 16, v8")
    a("v_add_f32 v8, v8, v40", "v_cvt_pk_bf16_f32 v8, v8, v8", "v_lshlrev_b32 v8, 16, v8")
    a("v_add_f32 v8, v8, v41", "v_cvt_pk_bf16_f32 v8, v8, v8")
    a(f"buffer_store_short v8, v43, s[{R1}:{R1+3}], 0 offen")
    spin_end(a)
    a("KS_PEND:")
    stamp_end(a)
    a("KS_ABORT:")
    a("KS_END:")
    a("s_endpgm")
    return f""".amdhsa_kernel {label}
  .amdhsa_next_free_vgpr 128
  .amdhsa_next_free_sgpr {NSGPR}
  .amdhsa_accum_offset 128
  .amdhsa_group_segment_fixed_size 0
  .amdhsa_kernarg_size 136
  .amdhsa_user_sgpr_count 2
  .amdhsa_user_sgpr_kernarg_segment_ptr 1
  .amdhsa_system_sgpr_workgroup_id_x 1
  .amdhsa_float_denorm_mode_32 3
.end_amdhsa_kernel
"""

def main():
    hdr = open(f"/code/{NAME}.s.ref").read().split("; Override launch geometry")[0]
    out = hdr
    out += f"; @launch grid=(256,1,1) block=(1024,1,1) lds={LDS_BYTES}\n"
    out += '.amdgcn_target "amdgcn-amd-amdhsa--gfx950"\n.text\n'
    a = Asm()
    d = gen(a)
    out += a.text()
    out += '.section .rodata,"a"\n.p2align 6\n' + d
    path = sys.argv[1] if len(sys.argv) > 1 else "ks.s"
    open(path, "w").write(out)
    print("wrote", path, len(out))

if __name__ == "__main__":
    main()
```

```python
import sys, struct, math, os
sys.path.insert(0, "gen")
from asmlib import Asm

NAME = "sequential_preLN__ssm_conv_s4__moe_arch_mod__prompt"
L, D, N, F = 2048, 576, 128, 4608
XBYTES = L * D * 2
WS_UT = 0x000000
WS_X2 = 0x300000
WS_ZB1 = 0x600000
WS_ZB2 = 0x800000
WS_KEYS = 0x840000
WS_PART = 0x850000
WS_CLR, CLR_WG = 0x600000, 18560
CLRP_WG = 23744
WS_FLAG1 = 0xB00000
TAGM = 0x00070007
WS_IDX = 0xB10000
WS_KT = 0xB20000
WS_DBG = 0xC00000
WS_STAMP = 0x8000000
PART_BYTES = 144 * (4608 * 4 + 128)
C_FL, C_CAND, C_SEL, C_KEY, C_PAR, C_ACT, C_SIDE, C_RED2 = 0, 256, 768, 800, 832, 1024, 1536, 2048
C_U, U_SIZE = 3072, 4672
C_LNB = C_U + 3 * U_SIZE
C_XR = C_LNB
C_RED = C_LNB + 9280
G_BASE, G_SIZE = 35840, 36672
C_STG = G_BASE + 2 * G_SIZE + 36864
LDS_BYTES = C_STG + 8192
FL_LN1, FL_LNACK, FL_KCNT, FL_UF, FL_ZF, FL_KACK, FL_ROWSOK, FL_XRDY, FL_PARAM, FL_DOWN, FL_ZDONE = 0, 8, 12, 16, 20, 24, 28, 32, 36, 40, 48
FL_G = 64
FL_S6 = 160
FL_F2CNT, FL_INIT, FL_CLROK, FL_GISS, FL_KSEEN, FL_UTOK, FL_PRE, FL_NONCE = 176, 180, 188, 192, 196, 200, 208, 224
KG_ROW = 544
KG_T = [0, 16 * KG_ROW, 32 * KG_ROW, 41 * KG_ROW]
R_WS3 = 0
R_WS5 = R_WS3 + 193 * 16
R_WS7 = R_WS5 + 193 * 16
R_WS9 = R_WS7 + 128 * 16
R_RED = 10752
R2 = 31232
T_TAB = R2
T_DRE = R2 + 1296
T_DRO = T_DRE + 1280 + 64
T_G3 = T_DRO + 1280
T_G5 = T_G3 + 256
T_G7E = T_G5 + 256
T_G7O = T_G7E + 192
T_G9E = T_G7O + 192
T_G9O = T_G9E + 192
assert T_G9O + 192 <= G_SIZE and R_WS9 + 129 * 16 <= R_RED and R_RED + 13 * 1024 <= R2 and 57 * KG_ROW <= R2
IDX_ZERO, IDX_DUMMY = 641, 642
C_DOWN = G_BASE + 2 * G_SIZE

def f32(x): return "0x%08x" % struct.unpack("<I", struct.pack("<f", x))[0]
def f32v(x): return struct.unpack("<f", struct.pack("<f", x))[0]
LOG2E = math.log2(math.e)
LOG2E_HI = f32v(LOG2E); LOG2E_LO = LOG2E - LOG2E_HI
INV2PI = 1.0 / (2 * math.pi)
INV2PI_HI = f32v(INV2PI); INV2PI_LO = INV2PI - INV2PI_HI
DPPM = "row_mask:0xf bank_mask:0xf"
ENV = lambda k, d: int(os.environ.get(k, str(d)))
STAMP = ENV("STAMP", 0)
DBG = ENV("DBG", 0)
GUARD = 1 << 19
XP = ENV("XP", 0)
KOFF = ENV("KOFF", 1)
PTAG = ENV("PTAG", 1)
SWU = ENV("SWU", 1); SWZ = ENV("SWZ", 1); PROW = 18432 + 128 * ENV("SWP", 1)
MOD = lambda k, d="sc1": os.environ.get(k, d).replace("_", " ")

P_X, P_ARE, P_LDT, P_DSK, P_WR, P_GATE, P_UP, P_DOWN, P_OUT, P_DBG, P_WS = 4, 6, 18, 20, 24, 26, 28, 30, 32, 34, 36
S_WAVE, S_GUARD, S_XC, S_I = 38, 39, 40, 41
R0, R1, R2_, R3, R4 = 64, 68, 72, 76, 80
S_ONES, S_GB, S_ROLE, S_G, S_CH, S_BLK, S_B2 = 84, 85, 86, 87, 88, 89, 90
T0_, T1_, T2_, T3_, T4_, T5_ = 92, 93, 94, 95, 96, 97
SP0, SP1 = 98, 99
NSGPR = 100

def srd(a, d, base, nbytes, off=0):
    if off:
        a(f"s_add_u32 s{d}, s{base}, {hex(off)}", f"s_addc_u32 s{d+1}, s{base+1}, 0")
    else:
        a(f"s_mov_b32 s{d}, s{base}", f"s_mov_b32 s{d+1}, s{base+1}")
    a(f"s_mov_b32 s{d+2}, {hex(nbytes)}", f"s_mov_b32 s{d+3}, 0x20000")

def red16(a, op, v):
    for r in (8, 4, 2, 1):
        a(f"{op}_dpp v{v}, v{v}, v{v} row_ror:{r} {DPPM}")
def red32(a, op, v, t):
    red16(a, op, v)
    a(f"v_mov_b32 v{t}, v{v}", f"v_permlane16_swap_b32 v{v}, v{t}", f"{op} v{v}, v{v}, v{t}")
def red64x2(a, op1, v1, t1, op2, v2, t2):
    for r in (8, 4, 2, 1):
        a(f"{op1}_dpp v{v1}, v{v1}, v{v1} row_ror:{r} {DPPM}", f"{op2}_dpp v{v2}, v{v2}, v{v2} row_ror:{r} {DPPM}")
    for ins in ("v_permlane16_swap_b32", "v_permlane32_swap_b32"):
        a(f"v_mov_b32 v{t1}, v{v1}", f"v_mov_b32 v{t2}, v{v2}", f"{ins} v{v1}, v{t1}", f"{ins} v{v2}, v{t2}")
        a(f"{op1} v{v1}, v{v1}, v{t1}", f"{op2} v{v2}, v{v2}, v{t2}")

SPIN = eval(os.environ.get("SPIN", "None"))
def spin_rec(a, ph, i):
    if not SPIN or SPIN[1:] != (ph, i): return
    a("s_memrealtime s[46:47]")
def spin_end(a):
    if not SPIN: return
    lo, hi = eval(os.environ.get("SPINI", "(0,32)"))
    a("KS_SPIN:")
    if SPIN[2] == 9: a("s_memrealtime s[46:47]")
    a(f"s_sub_u32 s48, s{S_I}, {lo}", f"s_cmp_ge_u32 s48, {hi-lo}", "s_cbranch_scc1 KS_END")
    a(f"s_lshr_b32 s48, {hex(SPIN[0])}, s{S_WAVE}", "s_bitcmp1_b32 s48, 0", "s_cbranch_scc0 KS_END")
    a("s_mov_b64 exec, -1", "v_mov_b32 v4, 0")
    a("KS_SP0:")
    a(f"global_load_dword v8, v4, s[{P_DBG}:{P_DBG+1}] offset:64 sc1", "s_waitcnt vmcnt(0) lgkmcnt(0)", "v_readfirstlane_b32 s44, v8", "s_cmp_eq_u32 s44, 0", "s_cbranch_scc1 KS_SP0")
    if SPIN[2] == -1: a("s_mov_b32 s46, s44")
    a("s_sub_u32 s48, s46, s44", "s_add_u32 s48, s48, 200")
    if ENV("SPINMIN", 0): a(f"s_sub_u32 s48, {ENV('SPINMIN', 0)}, s48")
    a("s_min_u32 s48, s48, 3000", "s_lshl_b32 s48, s48, 2", "s_add_u32 s48, s48, 2000")
    a("SPINL:", "s_sleep 1", "s_memrealtime s[50:51]", "s_waitcnt lgkmcnt(0)", "s_sub_u32 s50, s50, s44", "s_cmp_lt_u32 s50, s48", "s_cbranch_scc1 SPINL")
def stamp_begin(a):
    if SPIN: a("s_memrealtime s[46:47]")
    if not STAMP: return
    a("s_memrealtime s[44:45]")
    for i in range(1, 9): a(f"s_mov_b32 s{44+2*i}, 0")
def cstamp(a, i):
    if STAMP == 9: a(f"s_memtime s[{44+2*i}:{45+2*i}]")
def kstamp(a, i):
    if STAMP == 7: a(f"s_memtime s[{44+2*i}:{45+2*i}]")
def stamp(a, i, ph=1):
    spin_rec(a, ph, i)
    if ph == 2 and STAMP not in (2, 3): return
    if STAMP == 7 and i == 1: return kstamp(a, 1)
    if not STAMP or STAMP in (7, 9): return
    assert 1 <= i <= 8
    a(f"{'s_memtime' if STAMP == 8 else 's_memrealtime'} s[{44+2*i}:{45+2*i}]")
def stamp2(a, i):
    stamp(a, i, 2)
def stamp_end(a):
    if not STAMP: return
    a("s_waitcnt vmcnt(0) lgkmcnt(0)")
    a("s_memrealtime s[62:63]")
    a(f"s_lshl_b32 s43, s2, 4", f"s_add_u32 s43, s43, s{S_WAVE}", "s_lshl_b32 s43, s43, 6", f"s_add_u32 s43, s43, {hex(WS_STAMP)}")
    a("s_mov_b64 exec, 1")
    a("s_waitcnt lgkmcnt(0)")
    a("v_mov_b32 v1, s43")
    for i in range(10): a(f"v_mov_b32 v{4+i}, s{44+2*i}")
    a(f"global_store_dwordx4 v1, v[4:7], s[{P_WS}:{P_WS+1}]")
    a(f"global_store_dwordx4 v1, v[8:11], s[{P_WS}:{P_WS+1}] offset:16")
    a(f"global_store_dwordx2 v1, v[12:13], s[{P_WS}:{P_WS+1}] offset:32")
def endwave(a):
    stamp_end(a)
    a("s_branch KS_SPIN" if SPIN else "s_endpgm")

def unpack(a, dst, src):
    a(f"v_lshlrev_b32 v{dst}, 16, v{src}", f"v_and_b32 v{dst+1}, 0xffff0000, v{src}")

def ln_stats(a, X, m2, rinv2, t0, t1, t2):
    a(f"v_pk_add_f32 v[{t0}:{t0+1}], v[{X}:{X+1}], v[{X+2}:{X+3}]")
    a(f"v_pk_add_f32 v[{t1}:{t1+1}], v[{X+4}:{X+5}], v[{X+6}:{X+7}]")
    for j in range(4, 9):
        t = t0 if j % 2 == 0 else t1
        a(f"v_pk_add_f32 v[{t}:{t+1}], v[{t}:{t+1}], v[{X+2*j}:{X+2*j+1}]")
    a(f"v_pk_add_f32 v[{t0}:{t0+1}], v[{t0}:{t0+1}], v[{t1}:{t1+1}]")
    a(f"v_add_f32 v{t0}, v{t0}, v{t0+1}")
    red32(a, "v_add_f32", t0, t1)
    a(f"v_mul_f32 v{t2}, {f32(1.0/576)}, v{t0}")
    a(f"v_mov_b32 v{t2+1}, v{t2}")
    a(f"v_cvt_pk_bf16_f32 v{m2}, v{t2}, v{t2}")
    a(f"v_and_b32 v{m2}, 0xffff0000, v{m2}", f"v_mov_b32 v{m2+1}, v{m2}")
    first = {t0: True, t1: True}
    for j in range(9):
        t = t0 if j % 2 == 0 else t1
        a(f"v_pk_add_f32 v[{rinv2}:{rinv2+1}], v[{X+2*j}:{X+2*j+1}], v[{t2}:{t2+1}] neg_lo:[0,1] neg_hi:[0,1]")
        if first[t]:
            a(f"v_pk_mul_f32 v[{t}:{t+1}], v[{rinv2}:{rinv2+1}], v[{rinv2}:{rinv2+1}]"); first[t] = False
        else:
            a(f"v_pk_fma_f32 v[{t}:{t+1}], v[{rinv2}:{rinv2+1}], v[{rinv2}:{rinv2+1}], v[{t}:{t+1}]")
    a(f"v_pk_add_f32 v[{t0}:{t0+1}], v[{t0}:{t0+1}], v[{t1}:{t1+1}]")
    a(f"v_add_f32 v{t0}, v{t0}, v{t0+1}")
    red32(a, "v_add_f32", t0, t1)
    a(f"v_mul_f32 v{t0}, {f32(1.0/576)}, v{t0}")
    a(f"v_cvt_pk_bf16_f32 v{t0}, v{t0}, v{t0}", f"v_and_b32 v{t0}, 0xffff0000, v{t0}")
    a(f"v_add_f32 v{t0}, {f32(1e-5)}, v{t0}")
    a(f"v_cvt_pk_bf16_f32 v{t0}, v{t0}, v{t0}", f"v_and_b32 v{t0}, 0xffff0000, v{t0}")
    a(f"v_sqrt_f32 v{t0}, v{t0}")
    a(f"v_cvt_pk_bf16_f32 v{t0}, v{t0}, v{t0}", f"v_and_b32 v{t0}, 0xffff0000, v{t0}")
    a(f"v_rcp_f32 v{rinv2}, v{t0}")
    a(f"v_mov_b32 v{rinv2+1}, v{rinv2}")

def ln_apply_pair(a, x, m2, rinv2, t, P):
    a(f"v_pk_add_f32 v[{t}:{t+1}], v[{x}:{x+1}], v[{m2}:{m2+1}] neg_lo:[0,1] neg_hi:[0,1]")
    a(f"v_cvt_pk_bf16_f32 v{P}, v{t}, v{t+1}")
    unpack(a, t, P)
    a(f"v_pk_mul_f32 v[{t}:{t+1}], v[{t}:{t+1}], v[{rinv2}:{rinv2+1}]")
    a(f"v_cvt_pk_bf16_f32 v{P}, v{t}, v{t+1}")
    unpack(a, t, P)

VZ, VONE = 4, 5
_lbl = [0]
def newlabel(p="L"):
    _lbl[0] += 1
    return f"{p}_{_lbl[0]}"
def guard(a):
    a(f"s_sub_u32 s{S_GUARD}, s{S_GUARD}, 1", "s_cbranch_scc1 KS_ABORT")
def lds_wait(a, off, t, kind="b4", addr=VZ, sleep=0):
    l = newlabel("W")
    a(f"{l}:")
    if sleep: a(f"s_sleep {sleep}")
    if kind == "b8":
        a(f"ds_read_b64 v[{t}:{t+1}], v{addr} offset:{off}")
    else:
        a(f"ds_read_{'u8' if kind == 'u8' else 'b32'} v{t}, v{addr} offset:{off}")
    guard(a)
    a("s_waitcnt lgkmcnt(0)")
    if kind == "b8": a(f"v_and_b32 v{t}, v{t}, v{t+1}")
    if kind in ("nz", "u8"): a(f"v_cmp_eq_u32 vcc, 0, v{t}")
    else: a(f"v_cmp_ne_u32 vcc, s{S_ONES}, v{t}")
    a(f"s_cbranch_vccnz {l}")

def zpoll(a, loads, regs, sleep):
    lp = newlabel("ZP"); l1 = newlabel("ZPE")
    a(f"s_branch {l1}")
    a(f"{lp}:")
    a(f"s_sleep {sleep}")
    a(f"{l1}:")
    for l in loads: a(l)
    guard(a)
    a("s_waitcnt vmcnt(0)")
    a(f"v_max3_u32 v44, v{regs[0]}, v{regs[1]}, v{regs[2]}")
    r = regs[3:]
    while len(r) >= 2: a(f"v_max3_u32 v44, v44, v{r[0]}, v{r[1]}"); r = r[2:]
    if r: a(f"v_max_u32 v44, v44, v{r[0]}")
    a("v_cmp_eq_u32 vcc, -1, v44", f"s_cbranch_vccnz {lp}")

class Pool:
    def __init__(self, regs): self.free = list(regs)
    def get(self): return self.free.pop(0)
    def put(self, r): self.free.append(r)
def ce_inlane(a, x, i, j, pool):
    t = pool.get()
    a(f"v_max_u32 v{t}, v{x[i]}, v{x[j]}", f"v_min_u32 v{x[j]}, v{x[i]}, v{x[j]}")
    pool.put(x[i]); x[i] = t
def clean8(a, x, pool, DE, rev=False):
    t = [pool.get() for _ in range(4)]
    for i in range(4):
        a(f"v_mov_b32_dpp v{t[i]}, v{x[3-i if rev else i]} quad_perm:[1,0,3,2] {DPPM}")
    for i in range(4):
        a(f"v_med3_u32 v{t[i]}, v{x[i]}, v{t[i]}, v{DE}")
    for i in range(4): pool.put(x[i]); x[i] = t[i]
    for (i, j) in ((0, 2), (1, 3), (0, 1), (2, 3)): ce_inlane(a, x, i, j, pool)
def merge_mirror(a, x, pool, M):
    c = [pool.get() for _ in range(4)]
    for i in range(4):
        a(f"v_max_u32_dpp v{c[i]}, v{x[3-i]}, v{x[i]} {M} {DPPM}")
    for i in range(4): pool.put(x[i]); x[i] = c[i]
def merge_pair(a, x, y, pool):
    for i in range(4):
        a(f"v_max_u32_dpp v{x[i]}, v{y[3-i]}, v{x[i]} quad_perm:[1,0,3,2] {DPPM}")
    for i in range(4): pool.put(y[i])
MIRRORS = ("quad_perm:[3,2,1,0]", "row_half_mirror", "row_mirror")

GW = 48
def g_addr_setup(a, A):
    a(f"s_sub_u32 s{S_G}, s{S_WAVE}, 12")
    a(f"s_mul_i32 s{T0_}, s{S_G}, 9", f"s_add_u32 s{T0_}, s{T0_}, 1", f"s_lshr_b32 s{S_ROLE}, s{T0_}, 1")
    a(f"s_lshl_b32 s{T0_}, s{S_ROLE}, 5", f"v_lshl_add_u32 v7, v3, 3, s{T0_}", "v_mul_u32_u24 v7, 9216, v7")
    a("v_and_b32 v6, 7, v2", "v_lshl_add_u32 v7, v6, 3, v7")
    a(f"s_lshl_b32 s{T0_}, s{S_BLK}, 6", f"v_add_u32 v7, s{T0_}, v7")
    a("v_cmp_gt_u32 vcc, 8, v2")
    a(f"s_mov_b32 s{R3}, 9216", f"s_mov_b32 s{R3+1}, 0", f"s_mov_b32 s{R3+2}, {9216*25}", f"s_mov_b32 s{R3+3}, 0")
    a(f"v_mov_b32 v{A}, s{P_GATE}", f"v_mov_b32 v{A+1}, s{P_GATE+1}", f"v_mov_b32 v6, s{P_UP}")
    a(f"v_cndmask_b32 v{A}, v6, v{A}, vcc", f"v_mov_b32 v6, s{P_UP+1}", f"v_cndmask_b32 v{A+1}, v6, v{A+1}, vcc")
    a(f"v_add_co_u32 v{A}, vcc, v{A}, v7", f"v_addc_co_u32 v{A+1}, vcc, 0, v{A+1}, vcc")
def g_loads(a, A, kss):
    for ks in kss:
        for r in range(8):
            d = GW + 16 * ks + 2 * r
            a(f"global_load_dwordx2 v[{d}:{d+1}], v[{A}:{A+1}], off" + (" nt" if ENV("GNT", 0) else ""))
            if not (ks == 4 and r == 7):
                a(f"v_lshl_add_u64 v[{A}:{A+1}], v[{A}:{A+1}], 0, s[{R3 if r < 7 else R3+2}:{R3+1 if r < 7 else R3+3}]")
GTRIG = ENV("GTRIG", 2)
PF = ENV("PF", 1)
NL, NN, NC = ENV("NL", 3), ENV("NN", 6), ENV("NC", 3)
NE = ENV("NE", 0)
NLL = ENV("NLL", 0)
PF0 = 16 * NL + 16 * NE + 16 * NLL
PF1 = PF0 + 8 * NN + 8 * NC
assert PF1 <= 166
PF2 = ENV("PF2", 166); PFD = ENV("PFD", 42); PFD2 = ENV("PFD2", 81)
GT = eval(os.environ.get("GT", "[2,2,6,6]")); DT = ENV("DT", 3)
def pf_ld(a, dst, v, R):
    for m in MOD('PFM', 'nt;sc1').split(";"): a(f"buffer_load_dword v{dst}, v{v}, s[{R}:{R+3}], s{T4_} offen {m}")
def pf_lane(a, v, t):
    a(f"v_mul_u32_u24 v{v}, 57, v1", f"v_lshrrev_b32 v{v}, 9, v{v}", f"v_mul_u32_u24 v{t}, 9, v{v}", f"v_sub_u32 v{t}, v1, v{t}", f"v_mul_u32_u24 v{v}, 9216, v{v}", f"v_lshl_add_u32 v{v}, v{t}, 7, v{v}")
def pf_gu_setup(a, sidx, R=R2_, tb=T3_, tt=T4_):
    a(f"s_bitcmp1_b32 s{sidx}, 0", f"s_cselect_b32 s{R}, s{P_UP}, s{P_GATE}", f"s_cselect_b32 s{R+1}, s{P_UP+1}, s{P_GATE+1}")
    a(f"s_mov_b32 s{R+2}, {hex(D*F*2)}", f"s_mov_b32 s{R+3}, 0x20000")
    a(f"s_lshr_b32 s{tb}, s{sidx}, 1", f"s_mul_i32 s{tb}, s{tb}, {7*9216}", f"s_mul_i32 s{tt}, s{S_XC}, 1152", f"s_add_u32 s{tb}, s{tb}, s{tt}")
def pf_gu(a, v, sidx, nw, u0, u1, dst, done):
    assert u0 % 2 == 0 and nw % 2 == 0
    pf_gu_setup(a, sidx)
    k = 0
    while u0 + k * nw < u1:
        if u0 + (k + 1) * nw > u1: a(f"s_cmp_ge_u32 s{sidx}, {u1 - u0 - k*nw}", f"s_cbranch_scc1 {done}")
        a(f"s_add_u32 s{T4_}, s{T3_}, {(u0 + k*nw)//2*7*9216}")
        pf_ld(a, dst, v, R2_)
        k += 1
def pf_down(a, sidx, nw, u0, u1, v, dst, done, R=R2_):
    srd(a, R, P_DOWN, D * F * 2)
    a(f"s_lshl_b32 s{T3_}, s{sidx}, 13", f"s_mul_i32 s{T4_}, s{S_XC}, {576*1152}", f"s_add_u32 s{T3_}, s{T3_}, s{T4_}", f"v_lshlrev_b32 v{v}, 7, v1")
    k = 0
    while u0 + k * nw < u1:
        if u0 + (k + 1) * nw > u1: a(f"s_cmp_ge_u32 s{sidx}, {u1 - u0 - k*nw}", f"s_cbranch_scc1 {done}")
        a(f"s_add_u32 s{T4_}, s{T3_}, {(u0 + k*nw)*8192}")
        pf_ld(a, dst, v, R)
        k += 1
def gen_ln1(a):
    LW, TB = T5_, S_CH
    X, RAW = 8, 26
    a(f"s_sub_u32 s{T0_}, s{S_I}, 8", f"s_and_b32 s{TB}, s{T0_}, 7", f"s_lshr_b32 s{T0_}, s{T0_}, 3", f"s_lshl_b32 s{T0_}, s{T0_}, 4", f"s_add_u32 s{TB}, s{TB}, s{T0_}")
    a(f"s_and_b32 s{T0_}, s{S_XC}, 1", f"s_lshl_b32 s{T0_}, s{T0_}, 3", f"s_add_u32 s{TB}, s{TB}, s{T0_}", f"s_lshr_b32 s{T0_}, s{S_XC}, 1", f"s_lshl_b32 s{T0_}, s{T0_}, 5", f"s_add_u32 s{TB}, s{TB}, s{T0_}")
    a("v_lshrrev_b32 v36, 5, v1", "v_and_b32 v37, 31, v1")
    a("v_mul_u32_u24 v38, 1152, v36", "v_lshl_add_u32 v39, v37, 2, v38", "v_lshl_add_u32 v38, v37, 4, v38")
    a(f"s_mul_i32 s{T1_}, s{TB}, 18432", f"s_mul_i32 s{T2_}, s{LW}, 2304", f"s_add_u32 s{T1_}, s{T1_}, s{T2_}")
    a("s_waitcnt lgkmcnt(0)")
    stamp(a, 1)
    srd(a, R0, P_X, XBYTES)
    a(f"buffer_load_dwordx4 v[{RAW}:{RAW+3}], v38, s[{R0}:{R0+3}], s{T1_} offen")
    a(f"buffer_load_dwordx4 v[{RAW+4}:{RAW+7}], v38, s[{R0}:{R0+3}], s{T1_} offen offset:512")
    a(f"buffer_load_dword v{RAW+8}, v39, s[{R0}:{R0+3}], s{T1_} offen offset:1024")
    a("s_barrier")
    a(f"s_lshr_b32 s{T1_}, s{LW}, 2", f"s_lshl_b32 s{T1_}, s{T1_}, 6", f"s_add_u32 s{T2_}, s{T2_}, s{T1_}", f"s_add_u32 s{T2_}, s{T2_}, {C_LNB}")
    a(f"v_lshl_add_u32 v35, v37, 1, v36")
    a(f"s_mov_b32 s{SP0}, 0x05040100", f"s_mov_b32 s{SP1}, 0x07060302")
    def waits(n):
        for (c, js) in ((2, range(0, 4)), (1, range(4, 8)), (0, range(8, 9))):
            a(f"s_waitcnt vmcnt({c+n})")
            for j in js: unpack(a, X + 2 * j, RAW + j)
    l1 = newlabel("LN1A"); l2 = newlabel("LN1B")
    if NL:
        LW0 = ENV("NLW", 4)
        pf_lane(a, 46, 47)
        a(f"s_sub_u32 s{T1_}, s{LW}, {LW0}", f"s_and_b32 s{T1_}, s{T1_}, 7", f"s_lshl_b32 s{T3_}, s{T1_}, 4", f"s_add_u32 s{T3_}, s{T3_}, s{S_I}", f"s_sub_u32 s{T3_}, s{T3_}, 8")
        pf_gu_setup(a, T3_, R3, T4_, T0_)
    if NL and ENV("NLE", 0):
        a(f"s_cmp_lt_u32 s{T1_}, {NL}", f"s_cselect_b32 s{T4_}, s{T4_}, {hex(D*F*2)}")
        pf_ld(a, 47, 46, R3)
        waits(len(MOD('PFM', 'nt;sc1').split(';')))
    else:
        waits(0)
    if NL and not ENV("NLE", 0):
        if ENV("X0", 0): a(f"s_cmp_eq_u32 s{S_XC}, 0", f"s_cbranch_scc1 {l1}")
        a(f"s_cmp_ge_u32 s{T1_}, {NL}", f"s_cbranch_scc1 {l1}")
        pf_ld(a, 47, 46, R3)
        a(f"{l1}:")
    stamp(a, 2)
    a(f"v_lshl_add_u32 v6, v35, 4, s{T2_}", f"v_lshl_add_u32 v7, v35, 2, s{T2_}")
    a(f"v_mul_u32_u24 v35, 0x20202, v36", "v_lshl_add_u32 v35, v36, 25, v35", "v_add_u32 v35, 0x05040100, v35")
    ln_stats(a, X, 36, 38, 40, 42, 44)
    for j in range(9):
        if j == ENV("DSAMP", 3): a("v_and_b32 v59, 3, v1", "v_lshlrev_b32 v59, 2, v59", f"global_load_dword v58, v59, s[{P_DBG}:{P_DBG+1}] sc1")
        ln_apply_pair(a, X + 2 * j, 36, 38, 40, 42)
        a(f"v_cvt_pk_f16_f32 v{RAW+j}, v40, v41")
        if j in (3, 7):
            P = RAW + j - 3; O = X + 2 * (j - 3)
            a(f"v_permlane32_swap_b32 v{P}, v{P+2}", f"v_permlane32_swap_b32 v{P+1}, v{P+3}")
            a(f"v_perm_b32 v{O}, v{P+2}, v{P}, s{SP0}", f"v_perm_b32 v{O+1}, v{P+2}, v{P}, s{SP1}")
            a(f"v_perm_b32 v{O+2}, v{P+3}, v{P+1}, s{SP0}", f"v_perm_b32 v{O+3}, v{P+3}, v{P+1}, s{SP1}")
            a(f"ds_write_b128 v6, v[{O}:{O+3}] offset:{1024*(j//4)}")
    a(f"v_mov_b32 v40, v{RAW+8}", f"v_permlane32_swap_b32 v{RAW+8}, v40")
    a(f"v_perm_b32 v40, v40, v{RAW+8}, v35")
    a(f"ds_write_b32 v7, v40 offset:2048")
    a(f"v_mov_b32 v6, s{LW}")
    a(f"ds_write_b8 v6, v{VONE} offset:{FL_LN1}")
    a("s_setprio 0")
    a(f"s_cmp_ge_u32 s{LW}, 4", "s_cbranch_scc1 KS_X4")
    a("s_setprio 3")
    srd(a, R2_, P_WS, XBYTES, WS_UT)
    a("v_and_b32 v6, 1, v0", "v_mul_u32_u24 v6, 9280, v6", "v_lshrrev_b32 v7, 1, v0", "v_lshl_add_u32 v6, v7, 2, v6", f"v_add_u32 v6, {C_LNB}, v6")
    a("v_lshrrev_b32 v7, 2, v0", "v_mul_u32_u24 v7, 0x2080, v7" if SWU else "v_lshlrev_b32 v7, 13, v7", "v_and_b32 v8, 3, v0", "v_lshl_add_u32 v7, v8, 4, v7")
    a(f"s_lshl_b32 s{T0_}, s{TB}, 6")
    if SWU: a(f"v_xor_b32 v7, s{T0_}, v7", f"s_mov_b32 s{T0_}, 0")
    for k in range(1, 5): a(f"s_add_u32 s{T0_+k}, s{T0_}, {0x80000*k}")
    dbg_wait(a, 0)
    a(f"ds_write_b32 v59, v58 offset:{FL_NONCE}")
    a(f"s_mov_b32 s{SP0}, {hex(TAGM)}")
    for d in range(1, 4): a(f"v_lshrrev_b32 v{58-d}, {3*d}, v58")
    lds_wait(a, FL_LN1, 20, "b8")
    stamp(a, 3)
    for k in range(5):
        a(f"ds_read2st64_b32 v[{20+4*k}:{21+4*k}], v6 offset0:{2*k} offset1:{9+2*k}")
        a(f"ds_read2st64_b32 v[{22+4*k}:{23+4*k}], v6 offset0:{18+2*k} offset1:{27+2*k}")
    for k in range(5):
        a(f"s_waitcnt lgkmcnt({8-2*k})")
        for d in range(4): a(f"v_bfi_b32 v{20+4*k+d}, s{SP0}, v{58-d}, v{20+4*k+d}")
        a(f"buffer_store_dwordx4 v[{20+4*k}:{23+4*k}], v7, s[{R2_}:{R2_+3}], s{T0_+k} offen {MOD('USMOD')}")
    stamp(a, 4)

def dbg_wait(a, n, vt=58, va=59):
    lp = newlabel("DBP"); go = newlabel("DBG")
    a(f"s_waitcnt vmcnt({n})")
    a(f"{lp}:")
    a(f"v_cmp_eq_u32 vcc, 0, v{vt}", f"s_cbranch_vccz {go}")
    a("s_sleep 1")
    a(f"global_load_dword v{vt}, v{va}, s[{P_DBG}:{P_DBG+1}] sc1")
    guard(a)
    a("s_waitcnt vmcnt(0)")
    a(f"s_branch {lp}")
    a(f"{go}:")

ROLE_TILES = {0: [0, 1, 2, 3, 4], 1: [0, 1, 2, 3, 4], 2: [5, 6, 7], 3: [5, 6, 7]}
ROLE_W = {2: 0, 3: 1, 1: 2}
ACC, DA, RING, WT = 16, 36, 76, 92
NRING = 4

def epi_plan():
    owner = {0: (0, 0), 1: (0, 1), 2: (1, 0), 3: (1, 1), 4: (1, 3), 5: (0, 2), 6: (0, 3), 7: (1, 2)}
    slots = {}
    cnt = [0, 0]
    for g in range(2):
        for role in range(4):
            for j in ROLE_TILES[role]:
                if owner[j] == (g, role): continue
                slots[(g, role, j)] = g * G_SIZE + R_RED + 1024 * cnt[g]; cnt[g] += 1
    assert max(cnt) <= 13, cnt
    ownerC = {0: 0, 1: 0, 2: 1, 3: 1, 4: 2, 5: 2, 6: 3, 7: 3}
    n = 0
    for role in range(4):
        for j in ROLE_TILES[role]:
            if ownerC[j] == role: continue
            slots[(2, role, j)] = 2 * G_SIZE + R_RED + 1024 * n; n += 1
    return owner, ownerC, slots

class LdsTrack:
    def __init__(self, a): self.a = a; self.n = 0; self.done = -1
    def issue(self, text): self.a(text); self.n += 1; return self.n - 1
    def wait(self, idx):
        k = self.n - 1 - idx
        if idx <= self.done: return
        self.done = idx
        if k <= 15: self.a(f"s_waitcnt lgkmcnt({k})")

CZ0, CZ1, CSH, CXR, CFL, SIS, CM, SM, SC, SSC, SDL = 6, 7, 8, 9, 10, 11, 12, 14, 15, 16, 18
IXR, LFR = (108, 109, 112, 113), (110, 111, 114, 115)
def stage_write(a, off):
    a("v_lshl_or_b32 v24, v25, 16, v24", "v_lshl_or_b32 v25, v27, 16, v26", f"ds_write_b64 v28, v[24:25] offset:{off}")
def pre_ixlf(a):
    end = newlabel("PX"); j1 = newlabel("PX"); j2 = newlabel("PX"); jn = newlabel("PX")
    a(f"s_cmp_eq_u32 s{S_ROLE}, 3", f"s_cbranch_scc1 {end}")
    a("v_lshlrev_b32 v26, 3, v2", "v_mov_b32 v21, 0x80")
    a(f"s_cmp_eq_u32 s{S_ROLE}, 1", f"s_cbranch_scc1 {j1}", f"s_cmp_eq_u32 s{S_ROLE}, 2", f"s_cbranch_scc1 {j2}")
    a("v_lshl_add_u32 v26, v3, 1, v26", "v_mov_b32 v22, 1")
    a(f"s_branch {jn}")
    a(f"{j1}:")
    a("v_cmp_gt_u32 vcc, 2, v3", "v_lshl_add_u32 v20, v3, 2, v26", "v_add_u32 v20, 256, v20", "v_lshl_add_u32 v26, v3, 8, v26", "v_cndmask_b32 v26, v26, v20, vcc")
    a("v_cndmask_b32 v22, v21, 2, vcc", "v_cndmask_b32 v21, 4, v21, vcc")
    a(f"s_branch {jn}")
    a(f"{j2}:")
    a("v_lshl_add_u32 v26, v3, 9, v26", "v_add_u32 v26, 0x400, v26", "v_mov_b32 v22, 0x100")
    a(f"{jn}:")
    a(f"v_mad_u32_u24 v26, v22, s{S_G}, v26", "v_add_u32 v27, v26, v21", f"s_movk_i32 s{T4_}, {T_TAB}", f"s_movk_i32 s{T5_}, {-(0x4280 + 0x800)}", f"s_lshl_b32 s{T3_}, s{S_G}, 9")
    for r in range(2): a(f"v_cvt_f32_u32 v{20+r}, v{26+r}", f"v_max_u32 v{22+r}, 0x800, v{26+r}")
    for r in range(2):
        a(f"v_cmp_gt_u32 vcc, 0x80, v{26+r}", f"v_lshrrev_b32 v{24+r}, 16, v{20+r}", f"v_add3_u32 v{24+r}, v{24+r}, v{22+r}, s{T5_}", f"v_cndmask_b32 v{24+r}, v{24+r}, v{26+r}, vcc")
    for r in range(2):
        a(f"v_min_u32 v{24+r}, {IDX_DUMMY}, v{24+r}", f"v_lshl_add_u32 v{24+r}, v{24+r}, 1, s{T4_}")
    a(f"v_add_u32 v29, s{T3_}, v28")
    a("v_lshl_or_b32 v24, v25, 16, v24", "v_lshl_or_b32 v25, v27, 16, v26", "ds_write_b64 v29, v[24:25]")
    a(f"{end}:")

def gen_group(a):
    RAW, VLDT, VDSK, VNT, VNA, VPR, VEM, VTE, VTL = 40, 46, 107, 104, 105, 106, 72, 126, 127
    I1, D2, I2, D1, D3 = 116, 119, 120, 124, 125
    a(f"s_lshl_b32 s{T0_}, s{S_CH}, 8", f"v_lshl_add_u32 v20, v1, 2, s{T0_}")
    a(f"s_lshl_b32 s{T0_}, s{S_CH}, 1", f"v_mov_b32 v21, s{T0_}")
    a(f"s_mul_i32 s{S_GB}, s{S_G}, {G_SIZE}", f"s_add_u32 s{S_GB}, s{S_GB}, {G_BASE}")
    a("s_waitcnt lgkmcnt(0)")
    stamp(a, 1)
    a(f"global_load_ushort v{VLDT}, v21, s[{P_LDT}:{P_LDT+1}]")
    for k in range(6):
        a(f"global_load_dword v{RAW+k}, v20, s[{P_ARE+2*k}:{P_ARE+2*k+1}]")
    a(f"global_load_ushort v{VDSK}, v21, s[{P_DSK}:{P_DSK+1}]")
    a("s_barrier")
    a(f"s_movk_i32 s{T4_}, {T_TAB}")
    def dr_addr(dst, x, special=False):
        a(f"v_sub_u32 v30, 544, v{x}", "v_cvt_f32_i32 v31, v30", "v_cmp_gt_u32 vcc, 0x100, v30", "v_cvt_pk_bf16_f32 v31, v31, v31", "v_and_b32 v31, 0xffff, v31", "v_subrev_u32 v31, 0x4280, v31")
        a("v_cndmask_b32 v31, v31, v30, vcc", "v_cmp_lt_u32 vcc, 0x20d, v30")
        if special: a(f"v_or_b32 v30, 1, v{x}")
        a("v_cndmask_b32 v31, v31, v32, vcc")
        if special: a("v_cmp_eq_u32 vcc, 0x25d, v30", "v_cndmask_b32 v31, v31, v33, vcc")
        a(f"v_lshl_add_u32 v{dst}, v31, 1, s{T4_}")
    def g_addr(dst, y0, base, M):
        a(f"v_sub_u32 v30, {y0}, v23", f"v_cmp_lt_u32 vcc, {M}, v30", f"v_lshlrev_b32 v31, 2, v30", f"v_add_u32 v31, {T_TAB + 2*base}, v31", f"v_cndmask_b32 v{dst}, v31, v33, vcc")
    pb = newlabel("PREB"); pw = newlabel("PREW"); pe = newlabel("PREE")
    a(f"s_cmp_eq_u32 s{S_G}, 2", f"s_cbranch_scc1 {pe}")
    a(f"v_mov_b32 v32, {IDX_ZERO}")
    a(f"s_cmp_eq_u32 s{S_G}, 1", f"s_cbranch_scc1 {pb}")
    jl = [newlabel("PRE") for _ in range(4)]
    a(f"v_mov_b32 v33, {T_TAB + 2*IDX_ZERO}")
    for r in range(1, 4): a(f"s_cmp_eq_u32 s{S_ROLE}, {r}", f"s_cbranch_scc1 {jl[r]}")
    a("v_lshlrev_b32 v23, 1, v1")
    for e, (y0, base, M) in enumerate(((93, 389, 61), (92, 389, 61), (94, 388, 62), (93, 388, 62))): g_addr(24 + e, y0, base, M)
    a(f"s_branch {pw}")
    for r, base in ((1, 513), (2, 514)):
        a(f"{jl[r]}:")
        a("v_min_u32 v23, 47, v1", "v_lshlrev_b32 v23, 1, v23")
        for e, y0 in ((0, 64), (1, 63), (3, 62)): g_addr(24 + e, y0, base, 63)
        a("v_mov_b32 v26, v25")
        a(f"s_branch {pw}")
    a(f"{jl[3]}:")
    a("v_cmp_gt_u32 vcc, 9, v1", "v_add_u32 v23, 0x100, v1", "v_mov_b32 v33, 0x200", "v_cndmask_b32 v23, v23, v1, vcc", "v_lshlrev_b32 v23, 1, v23")
    for e in (0, 1, 3):
        if e: a("v_add_u32 v23, 1, v23")
        dr_addr(24 + e, 23, special=True)
    a("v_mov_b32 v26, v25")
    a(f"s_branch {pw}")
    a(f"{pb}:")
    a(f"s_lshl_b32 s{T1_}, s{S_ROLE}, 7", f"s_add_u32 s{T1_}, s{T1_}, 18", f"v_lshl_add_u32 v23, v1, 1, s{T1_}")
    for e in range(3):
        if e: a("v_add_u32 v23, 1, v23")
        dr_addr(24 + e, 23)
    a(f"s_sub_u32 s{T1_}, s{S_ROLE}, 1", f"s_cmp_lt_u32 s{T1_}, 2", f"s_cselect_b32 s{T2_}, 47, 63", f"s_mul_i32 s{T1_}, s{T1_}, {T_G9E - T_G7E}", f"s_add_u32 s{T1_}, s{T1_}, {T_G7E}")
    a(f"s_cmp_eq_u32 s{S_ROLE}, 0", f"s_cselect_b32 s{T1_}, {T_G3}, s{T1_}", f"s_cmp_eq_u32 s{S_ROLE}, 3", f"s_cselect_b32 s{T1_}, {T_DRE}, s{T1_}", f"s_cselect_b32 s{T3_}, 0x100, 0")
    a("v_cmp_gt_u32 vcc, 9, v1", f"v_min_u32 v23, s{T2_}, v1", f"v_add_u32 v30, s{T3_}, v23", "v_cndmask_b32 v23, v30, v23, vcc", f"v_lshl_add_u32 v27, v23, 2, s{T1_}")
    stage_write(a, 1024)
    a(f"v_mov_b32 v24, s{S_ROLE}", f"ds_write_b8 v24, v{VONE} offset:{FL_PRE + 4}")
    a(f"s_branch {pe}")
    a(f"{pw}:")
    stage_write(a, 1536)
    a(f"v_mov_b32 v24, s{S_ROLE}", f"ds_write_b8 v24, v{VONE} offset:{FL_PRE}")
    a(f"{pe}:")
    a(f"s_mul_i32 s{T1_}, s{S_ROLE}, {16*KG_ROW}", f"s_min_u32 s{T2_}, s{T1_}, {KG_T[3]}", f"s_add_u32 s{T2_}, s{T2_}, s{S_GB}")
    a(f"s_lshl_b32 s{T0_}, s{S_G}, 4", f"v_mov_b32 v14, s{T0_}", f"v_add_u32 v15, s{S_ROLE}, v14")
    a(f"v_lshl_add_u32 v{VEM}, v1, 3, s{T2_}")
    for k in range(1, 4): a(f"v_add_u32 v{VEM+k}, {4*KG_ROW*k}, v{VEM}")
    a(f"v_mul_u32_u24 v{VTE}, {KG_ROW}, v2", f"v_lshl_add_u32 v{VTE}, v3, 4, v{VTE}", f"v_add_u32 v{VTE}, s{S_GB}, v{VTE}", f"v_add_u32 v{VTL}, s{T1_}, v{VTE}")
    VDA, VDA2, VB_, VT8, VT16, VG8, VG16, VLN = 6, 7, 8, 9, 10, 11, 13, 12
    a("v_lshlrev_b32 v20, 3, v3", "v_sub_u32 v20, v20, v2", "v_add_u32 v21, 16, v20", "v_lshrrev_b32 v21, 1, v21")
    a("v_and_b32 v22, 1, v2", f"s_add_u32 s{T0_}, s{S_GB}, {T_DRE}", f"v_lshl_add_u32 v21, v21, 2, s{T0_}", f"s_movk_i32 s{T0_}, {T_DRO - T_DRE}", f"s_movk_i32 s{T2_}, {T_G7O - T_G7E}")
    a(f"v_mad_u32_u24 v{VDA}, v22, s{T0_}, v21", f"v_add_u32 v{VDA2}, 640, v{VDA}")
    a(f"v_mad_u32_u24 v23, v22, s{T2_}, v21", f"v_add_u32 v{VG16}, {T_G7E - T_DRE}, v23")
    a("v_lshlrev_b32 v23, 2, v3", "v_sub_u32 v23, v23, v2", f"s_add_u32 s{T0_}, s{S_GB}, {T_G3 + 60}", f"v_lshl_add_u32 v{VG8}, v23, 2, s{T0_}")
    a(f"s_mul_i32 s{T2_}, s{S_G}, {U_SIZE}", f"s_add_u32 s{T2_}, s{T2_}, {C_U}")
    a(f"v_lshl_add_u32 v23, v2, 5, s{T2_}", f"v_lshl_add_u32 v{VB_}, v3, 4, v23")
    a("v_bfe_u32 v20, v1, 2, 2", "v_and_b32 v21, 3, v1", "v_lshl_add_u32 v20, v3, 3, v20")
    a(f"v_lshlrev_b32 v{VNA}, 2, v21")
    a(f"v_lshl_add_u32 v21, v21, 3, s{S_GB}", f"v_lshl_add_u32 v{VT8}, v20, 4, v21", f"v_lshl_add_u32 v{VT16}, v20, 5, v21")
    a(f"v_lshlrev_b32 v{VLN}, 4, v1")
    srd(a, R0, P_WS, 0x240000, WS_ZB1)
    if SWZ: a(f"s_mov_b32 s{CFL}, 0x8080")
    a(f"s_lshl_b32 s{T0_}, s{S_ROLE}, 19", f"s_lshl_b32 s{T1_}, s{S_B2}, 6", f"s_add_u32 s{T0_}, s{T0_}, s{T1_}")
    a(f"s_lshl_b32 s{T1_}, s{S_ROLE}, 16", f"s_lshl_b32 s{T3_}, s{S_CH}, 6", f"s_add_u32 s{T1_}, s{T1_}, s{T3_}", f"s_add_u32 s{T1_}, s{T1_}, {0x200000 - 512*64}")
    if SWZ:
        a(f"s_cmp_eq_u32 s{S_G}, 2", f"s_cselect_b32 s{CZ0}, s{T1_}, s{T0_}", f"s_cselect_b32 s{CSH}, 0x1080, s{CFL}", f"s_cselect_b32 s{T0_}, 1, 3")
        a(f"s_and_b32 s{T0_}, s{T0_}, s{S_ROLE}", f"s_lshl_b32 s{T0_}, s{T0_}, 11", f"s_xor_b32 s{CZ0}, s{CZ0}, s{T0_}", f"s_and_b32 s{CFL}, s{CZ0}, 0x7c0", f"s_xor_b32 s{CZ0}, s{CZ0}, s{CFL}", f"s_xor_b32 s{CZ1}, s{CZ0}, 0x6000")
    else:
        a(f"s_cmp_eq_u32 s{S_G}, 2", f"s_cselect_b32 s{CZ0}, s{T1_}, s{T0_}", f"s_cselect_b32 s{CSH}, 12, 15", f"s_add_u32 s{CZ1}, s{CZ0}, 16384")
    a(f"s_and_b32 s{CXR}, s{S_G}, 1", f"s_lshl_b32 s{CXR}, s{CXR}, 4", f"s_mov_b32 s{CM}, 0x55555555", f"s_mov_b32 s{CM+1}, 0x55555555")
    a(f"s_lshl_b32 s{T0_}, s{S_ROLE}, 8", f"s_add_u32 s{T0_}, s{T0_}, s{S_GB}", f"s_add_u32 s{T0_}, s{T0_}, 36", f"v_lshl_add_u32 v{D1}, v1, 2, s{T0_}")
    a(f"s_movk_i32 s{T0_}, {T_G7O - T_G7E}", f"s_cmp_eq_u32 s{S_ROLE}, 0", f"s_cselect_b32 s{T0_}, {T_G5 - T_G3}, s{T0_}", f"s_cmp_eq_u32 s{S_ROLE}, 3", f"s_cselect_b32 s{T0_}, {T_DRO - T_DRE}, s{T0_}")
    a(f"v_mov_b32 v20, s{S_GB}", f"ds_write_b16 v20, v{VZ} offset:{T_TAB + 2*IDX_ZERO}")
    a(f"s_mov_b32 s{SDL}, s{T0_}", f"v_mov_b32 v{D3}, v28")
    def stage_read():
        lds_wait(a, FL_PRE, 18, "b8")
        a(f"ds_read2st64_b64 v[28:31], v{D3} offset0:0 offset1:1", f"ds_read2st64_b64 v[32:35], v{D3} offset0:2 offset1:3")
    def stage_unpack():
        for k in range(16):
            src = 28 + k // 2; w = f"WORD_{k & 1}"
            if 108 + k in LFR: a(f"v_cvt_f32_u32_sdwa v{108+k}, v{src} dst_sel:DWORD dst_unused:UNUSED_PAD src0_sel:{w}")
            else: a(f"v_add_u32_sdwa v{108+k}, s{S_GB}, v{src} dst_sel:DWORD dst_unused:UNUSED_PAD src0_sel:DWORD src1_sel:{w}")
        a(f"v_add_u32 v{D3}, s{SDL}, v{D2}")
    stage_read()
    a("s_waitcnt lgkmcnt(0)")
    stage_unpack()
    ex = newlabel("EXP")
    if KOFF: a(f"s_lshl_b32 s{T0_}, s{S_G}, 5", f"s_add_u32 s{T0_}, s{T0_}, s{S_I}", f"s_cmp_ge_u32 s{T0_}, {64 + 24}", "s_cbranch_scc1 KC_RECV")
    a(f"s_mov_b32 s{T0_}, {f32(LOG2E_HI)}", f"s_mov_b32 s{T1_}, {f32(LOG2E_LO)}", f"s_mov_b32 s{T2_}, {f32(INV2PI_HI)}", f"s_mov_b32 s{T3_}, {f32(INV2PI_LO)}")
    a(f"s_waitcnt vmcnt(7)")
    a(f"v_lshlrev_b32 v16, 16, v{VLDT}")
    a(f"v_mul_f32 v17, s{T0_}, v16")
    a(f"v_fma_f32 v19, v16, s{T0_}, -v17", f"v_fmac_f32 v19, s{T1_}, v16")
    a("v_exp_f32 v17, v17")
    a(f"v_mul_f32 v19, {f32(math.log(2.0))}, v19")
    a("v_fmac_f32 v17, v17, v19")
    a("v_cvt_pk_bf16_f32 v17, v17, v17", "v_and_b32 v16, 0xffff0000, v17")
    a(f"s_waitcnt vmcnt(5)")
    stamp(a, 2)
    a(f"ds_write_b32 v{VZ}, v{VONE} offset:{FL_PARAM}")
    THH, THL = 68, 70
    for k in range(2): unpack(a, 20 + 2 * k, RAW + k)
    for k in range(2): a(f"v_pk_mul_f32 v[{20+2*k}:{21+2*k}], v[{20+2*k}:{21+2*k}], v[16:17] op_sel_hi:[1,0]")
    a("v_max_f32 v36, v20, v21")
    a(f"v_pk_mul_f32 v[{THH}:{THH+1}], v[22:23], s[{T2_}:{T3_}] op_sel_hi:[1,0]")
    a(f"v_pk_fma_f32 v[{THL}:{THL+1}], v[22:23], s[{T2_}:{T3_}], v[{THH}:{THH+1}] op_sel_hi:[1,0,1] neg_lo:[0,0,1] neg_hi:[0,0,1]")
    a(f"v_pk_fma_f32 v[{THL}:{THL+1}], v[22:23], s[{T2_}:{T3_}], v[{THL}:{THL+1}] op_sel:[0,1,0]")
    T = 90
    def cmul_(dr, di, ar, ai, br, bi, t=T):
        assert di not in (ar, br, bi)
        return [f"v_pk_mul_f32 v[{t}:{t+1}], v[{ai}:{ai+1}], v[{bi}:{bi+1}]",
                f"v_pk_mul_f32 v[{t+2}:{t+3}], v[{ai}:{ai+1}], v[{br}:{br+1}]",
                f"v_pk_fma_f32 v[{di}:{di+1}], v[{ar}:{ar+1}], v[{bi}:{bi+1}], v[{t+2}:{t+3}]",
                f"v_pk_fma_f32 v[{dr}:{dr+1}], v[{ar}:{ar+1}], v[{br}:{br+1}], v[{t}:{t+1}] neg_lo:[0,0,1] neg_hi:[0,0,1]"]
    def cm_(d, x, y, t=T): return cmul_(d, d + 2, x, x + 2, y, y + 2, t)
    def csq_(d, s_, t=T):
        return [f"v_pk_mul_f32 v[{t}:{t+1}], v[{s_+2}:{s_+3}], v[{s_+2}:{s_+3}]",
                f"v_pk_mul_f32 v[{t+2}:{t+3}], v[{s_}:{s_+1}], v[{s_+2}:{s_+3}]",
                f"v_pk_fma_f32 v[{d}:{d+1}], v[{s_}:{s_+1}], v[{s_}:{s_+1}], v[{t}:{t+1}] neg_lo:[0,0,1] neg_hi:[0,0,1]",
                f"v_pk_add_f32 v[{d+2}:{d+3}], v[{t+2}:{t+3}], v[{t+2}:{t+3}]"]
    def cmul(*x): a(*cmul_(*x))
    def csq(*x): a(*csq_(*x))
    CBR, CBI = 32, 34
    sk = newlabel("SK")
    a(f"s_cmp_eq_u32 s{S_ROLE}, 3", f"s_cbranch_scc1 {sk}")
    a("s_waitcnt vmcnt(1)")
    for k in range(2, 6): unpack(a, 20 + 2 * k, RAW + k)
    for k in range(2, 4): a(f"v_pk_mul_f32 v[{20+2*k}:{21+2*k}], v[{20+2*k}:{21+2*k}], v[16:17] op_sel_hi:[1,0]")
    cmul(CBR, CBI, 28, 30, 24, 26)
    a(f"v_max3_f32 v37, abs(v{CBI}), abs(v{CBI+1}), abs(v{CBR})", f"v_max_f32 v37, v37, abs(v{CBR+1})")
    a(f"{sk}:")
    a("s_waitcnt vmcnt(0)")
    a.flush(1)
    a("v_permlane32_swap_b32 v36, v37", "v_max_f32 v36, v36, v37")
    red32(a, "v_max_f32", 36, 38)
    a(f"v_readlane_b32 s{SM}, v36, 0", f"v_readlane_b32 s{SC}, v36, 32")
    a(f"s_add_u32 s{SC}, s{SC}, 0x7fffff", f"s_lshr_b32 s{SC}, s{SC}, 23", f"s_max_u32 s{SC}, s{SC}, 24", f"s_sub_u32 s{SSC}, 269, s{SC}", f"s_lshl_b32 s{SSC}, s{SSC}, 23")
    a(f"v_subrev_f32 v20, s{SM}, v20", f"v_subrev_f32 v21, s{SM}, v21")
    a(f"v_mul_f32 v20, {f32(LOG2E)}, v20", f"v_mul_f32 v21, {f32(LOG2E)}, v21")
    def scale_cb():
        a(f"v_pk_mul_f32 v[{CBR}:{CBR+1}], v[{CBR}:{CBR+1}], s[{SSC}:{SSC+1}] op_sel_hi:[1,0]", f"v_pk_mul_f32 v[{CBI}:{CBI+1}], v[{CBI}:{CBI+1}], s[{SSC}:{SSC+1}] op_sel_hi:[1,0]")
    def anchor(dr, di, l, conj=False):
        lit = {1: "1.0", 2: "2.0"}.get(l, f32(float(l)))
        for e in range(2):
            t = T + 4 * e
            if l != 1: a(f"v_mul_f32 v{t+1}, {lit}, v{THH+e}", f"v_mul_f32 v{t}, {lit}, v{20+e}")
        for e in range(2):
            t = T + 4 * e
            a(f"v_fract_f32 v{t+1}, v{t+1 if l != 1 else THH+e}")
        for e in range(2):
            t = T + 4 * e
            a(f"v_fmac_f32 v{t+1}, {lit}, v{THL+e}")
        for e in range(2):
            t = T + 4 * e
            a(f"v_exp_f32 v{t}, v{t if l != 1 else 20+e}", f"v_cos_f32 v{t+2}, v{t+1}", f"v_sin_f32 v{t+1}, v{t+1}")
        for e in range(2):
            t = T + 4 * e
            a(f"v_mul_f32 v{dr+e}, v{t}, v{t+2}")
            a(f"v_mul_f32 v{di+e}, v{t}, {'-' if conj else ''}v{t+1}")
    em = [0, None]
    def it(cms, row=None, x=None, y=None):
        if em[1]: a(em[1]); em[1] = None
        for k in range(4):
            for c in cms:
                if k < len(c): a(c[k])
        if row is None: return
        t = (98, 76)[em[0] & 1]; em[0] += 1
        for v, tt in ((x, t), (y, t + 2)):
            if v is not None: a(f"v_cvt_pk_f16_f32 v{tt}, v{v}, v{v+2}", f"v_cvt_pk_f16_f32 v{tt+1}, v{v+1}, v{v+3}")
        o = (row & 3) * KG_ROW // 8
        if y is None: em[1] = f"ds_write_b64 v{VEM + row//4}, v[{t}:{t+1}] offset:{8*o}"
        else: em[1] = f"ds_write2_b64 v{VEM + row//4}, v[{t}:{t+1}], v[{t+2}:{t+3}] offset0:{o} offset1:{o + KG_ROW//8}"
    G1, G2, G3 = 40, 44, 48
    VA, VB, VC, VD = 52, 56, 60, 64
    oth = lambda c, p, q: p if c != p else q
    jl = [newlabel("JOB") for _ in range(4)]; jn = newlabel("JOBJ")
    for r in (3, 1, 2): a(f"s_cmp_eq_u32 s{S_ROLE}, {r}", f"s_cbranch_scc1 {jl[r]}")
    anchor(G2, G2 + 2, 128); scale_cb(); anchor(G1, G1 + 2, 1)
    cur = CBR
    for c in range(8):
        nx = oth(cur, VA, VB)
        it([cm_(VC, cur, G2)] + ([cm_(nx, cur, G1, T + 4)] if c < 7 else []), 2 * c, cur, VC); cur = nx
    it([])
    a(f"s_branch {jn}")
    a(f"{jl[1]}:")
    anchor(G2, G2 + 2, 128); scale_cb(); csq(G3, G2); anchor(G1, G1 + 2, 2)
    it([cm_(VA, CBR, G3)]); cur = VA
    it([cm_(VD, VA, G3)])
    for c in range(4):
        nx = oth(cur, VA, VB)
        it([cm_(VC, cur, G2), cm_(nx, cur, G1, T + 4) if c < 3 else csq_(G3, G1, T + 4)], 2 * c, cur, VC); cur = nx
    cur = VD
    for aa in range(4):
        nx = oth(cur, VA, VB)
        it([cm_(VC, cur, G3)] + ([cm_(nx, cur, G2, T + 4)] if aa < 3 else []), 8 + 2 * aa, cur, VC); cur = nx
    it([])
    a(f"s_branch {jn}")
    a(f"{jl[3]}:")
    anchor(G1, G1 + 2, 8, conj=True)
    a(f"v_mov_b32 v{VA}, {f32(32768.0)}", f"v_mov_b32 v{VA+1}, {f32(32768.0)}", f"v_mov_b32 v{VA+2}, 0", f"v_mov_b32 v{VA+3}, 0")
    sc_ = lambda d, x: [f"v_pk_mul_f32 v[{d}:{d+1}], v[{x}:{x+1}], v[{VA}:{VA+1}]", f"v_pk_mul_f32 v[{d+2}:{d+3}], v[{x+2}:{x+3}], v[{VA}:{VA+1}]"]
    it([csq_(G2, G1), sc_(VC, G1)])
    ce, co = VA, VC
    for b in range(8):
        ne, no = oth(ce, VA, VB), oth(co, VC, VD)
        it([] if b == 7 else [sc_(ne, G2) if b == 0 else cm_(ne, ce, G2), cm_(no, co, G2, T + 4)], 2 * b, ce, co); ce, co = ne, no
    it([])
    a(f"ds_write_b8 v15, v{VONE} offset:{FL_G}")
    stamp(a, 3)
    if KOFF: a(f"s_cmp_eq_u32 s{S_G}, 2", "s_cbranch_scc1 KS_G0")
    a(f"s_branch {ex}")
    if KOFF:
        a("KC_SEND:")
        lds_wait(a, FL_NONCE, VNT, "nz", addr=VNA)
        a(f"s_lshl_b32 s{T0_}, s{S_CH}, 12", f"s_lshl_b32 s{T1_}, s{S_ROLE}, 10", f"s_add_u32 s{T0_}, s{T0_}, s{T1_}", f"s_add_u32 s{T0_}, s{T0_}, {hex(WS_KT - 512*4096)}", f"v_add_u32 v24, s{T0_}, v{VLN}")
        a(f"s_mov_b32 s{T1_}, 0xffff", f"v_lshlrev_b32 v25, 16, v{VNT}")
        for r in range(4): a(f"v_cvt_f16_f32 v{20+r}, v{20+r}")
        a(f"s_cmp_lg_u32 s{S_ROLE}, 2", "s_cbranch_scc1 KC_S2")
        a("s_mov_b32 exec_lo, 0", "s_mov_b32 exec_hi, 0xffff0000")
        a(f"v_mov_b32 v20, v{VPR}", f"v_lshrrev_b32 v21, 16, v{VPR}")
        a("s_mov_b64 exec, -1")
        a("KC_S2:")
        for r in range(4): a(f"v_bfi_b32 v{20+r}, s{T1_}, v{20+r}, v{25 if r & 1 else VNT}")
        a(f"global_store_dwordx4 v24, v[20:23], s[{P_WS}:{P_WS+1}] sc1")
        stamp(a, 4)
        a("s_branch KS_G0")
        a("KC_RECV:")
        a(f"s_cmp_eq_u32 s{S_ROLE}, 3", f"s_cbranch_scc1 {ex}")
        a(f"s_lshl_b32 s{T0_}, s{S_CH}, 12", f"s_lshl_b32 s{T1_}, s{S_ROLE}, 10", f"s_add_u32 s{T0_}, s{T0_}, s{T1_}", f"s_add_u32 s{T0_}, s{T0_}, {hex(WS_KT - 512*4096)}", f"v_add_u32 v24, s{T0_}, v{VLN}")
        lds_wait(a, FL_NONCE, VNT, "nz", addr=VNA, sleep=2)
        a(f"v_lshlrev_b32 v25, 16, v{VNT}")
        stamp(a, 2)
        lds_wait(a, FL_G + {0: 0, 1: 4, 2: 16}[ENV("KTRIG", 1)], 17, "b4", sleep=2)
        lp = newlabel("KP"); l1 = newlabel("KPE")
        a(f"s_branch {l1}")
        a(f"{lp}:")
        a("s_sleep 2")
        a(f"{l1}:")
        a(f"global_load_dwordx4 v[20:23], v24, s[{P_WS}:{P_WS+1}] sc1")
        guard(a)
        a("s_waitcnt vmcnt(0)")
        for r in range(4): a(f"v_xor_b32 v{20+r}, v{25 if r & 1 else VNT}, v{20+r}")
        a("v_or3_b32 v26, v20, v21, v22", "v_or_b32 v26, v26, v23", "v_cmp_lt_u32 vcc, 0xffff, v26", f"s_cbranch_vccnz {lp}")
        stamp(a, 3)
        for r in (0, 2): a(f"v_xor_b32 v{20+r}, v{VNT}, v{20+r}")
        for r in range(4): a(f"ds_write_b16 v{IXR[r]}, v{20+r}")
        a(f"s_cmp_lg_u32 s{S_ROLE}, 2", f"s_cbranch_scc1 {ex}")
        a("v_and_b32 v20, 0xffff, v20", "v_lshl_or_b32 v20, v21, 16, v20", f"v_lshlrev_b32 v21, 16, v{VDSK}")
        a("s_mov_b32 exec_lo, 0", "s_mov_b32 exec_hi, 0x10000")
        a(f"ds_write_b64 v14, v[20:21] offset:{C_PAR}")
        a("s_mov_b64 exec, -1")
        a(f"s_branch {ex}")
    a(f"{jl[2]}:")
    anchor(G2, G2 + 2, 128); scale_cb()
    it([csq_(G1, G2), cm_(VD, CBR, G2, T + 4)]); csq(G3, G1); csq(G3, G3)
    it([cm_(VA, CBR, G3), cm_(VC, VD, G3, T + 4)])
    ce, co = VA, VC
    for r in range(4):
        ne, no = oth(ce, VA, VB), oth(co, VC, VD)
        it([cm_(ne, ce, G1)] + ([cm_(no, co, G1, T + 4)] if r < 3 else []), 2 * r, ce, co); ce, co = ne, no
    it([], 8, ce, None)
    a(f"v_mov_b32 v36, {f32(2048.0*LOG2E)}", f"v_mul_f32 v24, s{SM}, v36", "v_max_f32 v24, 0, v24", "v_exp_f32 v24, v24")
    it([])
    a(f"s_sub_u32 s{SIS}, s{SC}, 7", f"s_lshl_b32 s{SIS}, s{SIS}, 23")
    a(f"v_lshlrev_b32 v25, 16, v{VDSK}", f"v_mul_f32 v24, s{SIS}, v24", f"v_mov_b32 v{VPR}, v24")
    a(f"ds_write_b64 v14, v[24:25] offset:{C_PAR}")
    a(f"{jn}:")
    a(f"ds_write_b8 v15, v{VONE} offset:{FL_G}")
    stamp(a, 3); kstamp(a, 2)
    for s in range(8): a(f"ds_read_b128 v[{40+4*s}:{43+4*s}], v{VTL} offset:{64*s}")
    a(f"v_mov_b32 v36, {f32(LOG2E)}", f"v_mul_f32 v36, s{SM}, v36")
    a(f"v_mul_f32 v37, {f32(2048.0)}, v36", "v_max_f32 v37, 0, v37", f"v_add_f32 v37, {f32(23.0)}, v37")
    for r in range(4):
        a(f"v_fma_f32 v{LFR[r]}, v{LFR[r]}, v36, -v37")
    for r in range(4):
        a(f"v_exp_f32 v{LFR[r]}, v{LFR[r]}")
    kstamp(a, 3)
    lds_wait(a, FL_G + 3, 17, "u8", addr=14)
    kstamp(a, 4)
    tr = LdsTrack(a); ids = []
    for s in range(8):
        ids.append(tr.issue(f"ds_read_b128 v[{72+4*s}:{75+4*s}], v{VTE} offset:{KG_T[3]+64*s}"))
    for s in range(8):
        tr.wait(ids[s])
        c = "0" if s < 2 else f"v[{20+4*(s&1)}:{23+4*(s&1)}]"
        a(f"v_mfma_f32_16x16x32_f16 v[{20+4*(s&1)}:{23+4*(s&1)}], v[{40+4*s}:{43+4*s}], v[{72+4*s}:{75+4*s}], {c}")
    for r in range(4): a(f"v_add_f32 v{20+r}, v{20+r}, v{24+r}")
    for r in range(4): a(f"v_mul_f32 v{20+r}, v{20+r}, v{LFR[r]}")
    kstamp(a, 5)
    if KOFF: a(f"s_cmp_eq_u32 s{S_G}, 2", "s_cbranch_scc1 KC_SEND")
    for r in range(4):
        a(f"v_cvt_f16_f32 v{20+r}, v{20+r}")
        a(f"ds_write_b16 v{IXR[r]}, v{20+r}")
    a(f"{ex}:")
    a(f"ds_write_b8 v15, v{VONE} offset:{FL_G+4}")
    a("v_mov_b32 v28, 0", "v_mov_b32 v29, 0", "v_mov_b32 v30, 0", "v_mov_b32 v31, 0", f"v_mov_b32 v32, s{S_GB}")
    a("s_waitcnt vmcnt(0)")
    kstamp(a, 6)
    lds_wait(a, FL_G + 4, 20, "b4", addr=14)
    stamp(a, 4); kstamp(a, 7)
    for e in range(3): a(f"ds_read_u16 v{20+e}, v{I1+e}")
    for e in range(4): a(f"ds_read_u16 v{23+e}, v{I2+e}")
    a("s_mov_b64 exec, 1")
    a(f"ds_write_b128 v32, v[28:31] offset:{R_WS5}", f"ds_write_b128 v32, v[28:31] offset:{R_WS9}", f"ds_write_b128 v32, v[28:31] offset:{R_WS3 + 192*16}")
    a("s_mov_b64 exec, -1")
    a("s_waitcnt lgkmcnt(7)")
    a("v_lshl_or_b32 v28, v21, 16, v20", "v_lshl_or_b32 v29, v22, 16, v21")
    a(f"ds_write_b32 v{D1}, v28 offset:{T_DRE}", f"ds_write_b32 v{D1}, v29 offset:{T_DRO}")
    a("s_waitcnt lgkmcnt(5)")
    a("v_lshl_or_b32 v30, v24, 16, v23", "v_lshl_or_b32 v31, v26, 16, v25")
    a(f"ds_write_b32 v{D2}, v30", f"ds_write_b32 v{D3}, v31")
    a(f"ds_write_b8 v15, v{VONE} offset:{FL_G+8}")
    kstamp(a, 8)
    lds_wait(a, FL_G + 8, 20, "b4", addr=14)
    stamp(a, 5)
    PR, FT0, FT1, ACCL, ACCH, ZQ = 16, 18, 19, 20, 24, 28
    VZA, VUA = VDA, VDA2
    LA = ENV("CLA", 6); RSV = ENV("CRSV", 5); NF = ENV("CNF", 2)
    jl = [newlabel("CV") for _ in range(4)]; zend = newlabel("CVE")
    slow = []
    a(f"ds_read_b64 v[{PR}:{PR+1}], v14 offset:{C_PAR}")
    for r in range(1, 4): a(f"s_cmp_eq_u32 s{S_ROLE}, {r}", f"s_cbranch_scc1 {jl[r]}")
    for m in range(4):
        if m: a(f"{jl[m]}:")
        lo, hi = 2 * m, 2 * m + 1
        acc = {lo: ACCL, hi: ACCH}
        ops = []
        if m >= 2:
            for j in (lo, hi): ops.append((j, ("D", 32), ("U", 8 * j - 32)))
        for p in range(max(8 * lo - 16, -7), 8 * hi + 1):
            for j in (lo, hi):
                ks = 8 * j - p
                if 0 <= ks <= 16: ops.append((j, ("D", ks), ("U", p)))
        ncomb0 = len(ops)
        for j in (lo, hi):
            for kind in (3, 5):
                for b in range(6):
                    if 2 <= j - b <= 4: ops.append((j, ("W", kind, b), ("G", kind, j - b)))
            for kind in (7, 9):
                for b in range(2):
                    if j - 2 * b - 4 >= 0: ops.append((j, ("W", kind, b), ("G", kind, j - 2 * b - 4)))
        nops = len(ops)
        first, last = {}, {}
        for k, (j, A, B) in enumerate(ops):
            for key in (A, B):
                first.setdefault(key, k); last[key] = k
        lastlo = max(k for k, o in enumerate(ops) if o[0] == lo)
        pool = list(range(32, 128, 4))
        reg, lid = {}, {}
        def load(tr, key):
            rg = pool.pop(0); reg[key] = rg
            if (XP & 8 and key[0] == "G") or (XP & 16 and key[0] == "W") or (XP & 32 and key[0] == "U"):
                lid[key] = -100; return
            if key[0] == "D":
                ksv = -2 if key[1] == 32 else key[1]
                o = (16 - ksv) * 16
                ad, o = (VDA, o) if o + 3 <= 255 else (VDA2, o - 160)
                tr.issue(f"ds_read2_b32 v[{rg}:{rg+1}], v{ad} offset0:{o} offset1:{o+1}")
                lid[key] = tr.issue(f"ds_read2_b32 v[{rg+2}:{rg+3}], v{ad} offset0:{o+2} offset1:{o+3}")
            elif key[0] == "G":
                _, kind, ix = key
                if kind in (3, 5): o = (4 - ix) * 16 + (64 if kind == 5 else 0); ad = VG8
                else: o = (3 - ix) * 8 + (96 if kind == 9 else 0); ad = VG16
                tr.issue(f"ds_read2_b32 v[{rg}:{rg+1}], v{ad} offset0:{o} offset1:{o+1}")
                lid[key] = tr.issue(f"ds_read2_b32 v[{rg+2}:{rg+3}], v{ad} offset0:{o+2} offset1:{o+3}")
            elif key[0] == "U":
                lid[key] = tr.issue(f"ds_read_b128 v[{rg}:{rg+3}], v{VB_} offset:{64*(key[1]+7)}")
            else:
                _, kind, b = key
                if kind in (3, 5): o = (R_WS3 if kind == 3 else R_WS5) + 512 * b; ad, st = VT8, 64
                else: o = (R_WS7 if kind == 7 else R_WS9) + 1024 * b; ad, st = VT16, 128
                tr.issue(f"ds_read_b64_tr_b16 v[{rg}:{rg+1}], v{ad} offset:{o}")
                lid[key] = tr.issue(f"ds_read_b64_tr_b16 v[{rg+2}:{rg+3}], v{ad} offset:{o+st}")
        keys = sorted(first, key=lambda k_: first[k_])
        tr = LdsTrack(a)
        for key in keys:
            if key[0] == "D": load(tr, key)
        for key in keys:
            if key[0] == "G" and len(pool) > RSV: load(tr, key)
        pend = [k_ for k_ in keys if k_ not in reg]
        a(f"v_lshlrev_b32 v{FT0}, 3, v3", f"v_sub_u32 v{FT0}, v{VB_}, v{FT0}")
        a(f"v_lshrrev_b32 v{FT1}, 2, v2", f"v_lshl_add_u32 v{FT1}, v{FT1}, 2, v3", f"v_and_b32 v{ZQ}, 3, v2", f"v_lshlrev_b32 v{ZQ}, 4, v{ZQ}")
        if SWZ: a(f"v_mul_u32_u24 v{FT1}, s{CSH}, v{FT1}", f"v_xor_b32 v{FT1}, s{CFL}, v{FT1}")
        else: a(f"v_lshlrev_b32 v{FT1}, s{CSH}, v{FT1}")
        a("s_waitcnt lgkmcnt(0)")
        a(f"v_mov_b32 v{VUA}, v{FT0}", f"v_add_u32 v{VZA}, v{FT1}, v{ZQ}")
        a(f"v_xor_b32 v{VLN}, s{CXR}, v{VLN}")
        lds_wait(a, FL_UF, FT0, "b4")
        a(f"s_setprio {eval(os.environ.get('CPRIO', '[1,1,1,1]'))[m]}")
        stamp(a, 6); cstamp(a, 1)
        if XP & 4: a(f"v_mov_b32 v{FT0}, 0", f"s_cmp_lg_u32 s{S_G}, 0", f"s_cbranch_scc1 {zend}")
        for key in lid: lid[key] = -100
        tr = LdsTrack(a)
        ud = {}
        fill = []
        fill.append(("lds", f"ds_read_b64 v[{ZQ}:{ZQ+1}], v{VUA} offset:{480 + 512*lo}", 2))
        fill.append(("ldsU", f"ds_read_b64 v[{ZQ+2}:{ZQ+3}], v{VUA} offset:{480 + 512*hi}", 2))
        for ti, j in enumerate((lo, hi)):
            fill.append(("alloc", j, 5))
            if ti == 0: fill.append(("waitU", None, 5))
            for e in range(4):
                sel = "op_sel:[1,0,0] " if e & 1 else ""
                fill.append(("f", (lambda j=j, e=e, ti=ti, sel=sel: f"v_fma_mix_f32 v{ud[j]+e}, v{ZQ+2*ti+e//2}, v{PR+1}, 0 {sel}op_sel_hi:[1,0,0]"), 5))
            for p in range(2):
                fill.append(("f", (lambda j=j, p=p, ti=ti: f"v_cvt_pk_bf16_f32 v{ZQ+2*ti+p}, v{ud[j]+2*p}, v{ud[j]+2*p+1}"), 5))
            for p in range(2):
                fill.append(("f", (lambda j=j, p=p, ti=ti: f"v_lshlrev_b32 v{ud[j]+2*p}, 16, v{ZQ+2*ti+p}"), 5))
                fill.append(("f", (lambda j=j, p=p, ti=ti: f"v_and_b32 v{ud[j]+2*p+1}, 0xffff0000, v{ZQ+2*ti+p}"), 5))
        def epi(j, ti):
            y = acc[j]; z = ZQ + 2 * ti; out = []
            for p in range(4): out.append(lambda p=p: f"v_mul_f32 v{y+p}, v{y+p}, v{PR}")
            for p in range(2): out.append(lambda p=p: f"v_cvt_pk_bf16_f32 v{z+p}, v{y+2*p}, v{y+2*p+1}")
            for p in range(2):
                out.append(lambda p=p: f"v_lshlrev_b32 v{y+2*p}, 16, v{z+p}")
                out.append(lambda p=p: f"v_and_b32 v{y+2*p+1}, 0xffff0000, v{z+p}")
            for p in range(4): out.append(lambda p=p: f"v_add_f32 v{y+p}, v{y+p}, v{ud[j]+p}")
            for p in range(2): out.append(lambda p=p: f"v_cvt_pk_bf16_f32 v{z+p}, v{y+2*p}, v{y+2*p+1}")
            for p in range(2): out.append(lambda p=p: f"v_min_u32 v{z+p}, -2, v{z+p}")
            return out
        for f in epi(lo, 0): fill.append(("f", f, lastlo + 2))
        fill.append(("lds", f"ds_read_u8 v{FT0}, v{VZ} offset:{FL_S6 + m}", nops - 4))
        fill.append(("lds", f"ds_read_b128 v[{ACCL}:{ACCL+3}], v{VLN} offset:{G_BASE + R_RED + 1024*m}", nops - 4))
        uid = [None]
        def do_fill(n, k):
            while n > 0 and fill:
                kind, t, e = fill[0]
                if e > k: return
                if kind == "alloc":
                    if len(pool) < 2: return
                    ud[t] = pool.pop(); fill.pop(0); continue
                fill.pop(0)
                if kind == "f":
                    if XP & 2 and "v_min" not in t(): continue
                    a(t())
                elif kind == "lds": tr.issue(t)
                elif kind == "ldsU": uid[0] = tr.issue(t)
                elif kind == "waitU": tr.wait(uid[0]); continue
                n -= 1
        kW = ncomb0 - LA if nops > ncomb0 else None
        wok = [False]
        def issue_loads(k, nmax):
            while pend and pool and nmax > 0:
                key = pend[0]
                if first[key] - k > (LA if key[0] != "G" else LA + 4): return
                if key[0] == "W" and not wok[0]:
                    alt = [x for x in pend if x[0] != "W" and first[x] - k <= LA + 2]
                    if not alt: return
                    key = alt[0]
                pend.remove(key); load(tr, key); nmax -= 1
        issue_loads(0, RSV)
        started = set()
        for k, (j, A, B) in enumerate(ops):
            assert A in reg and B in reg, (m, k, A, B)
            tr.wait(max(lid[A], lid[B]))
            c = f"v[{acc[j]}:{acc[j]+3}]" if j in started else "0"
            started.add(j)
            a(f"v_mfma_f32_16x16x32_f16 v[{acc[j]}:{acc[j]+3}], v[{reg[A]}:{reg[A]+3}], v[{reg[B]}:{reg[B]+3}], {c}")
            for key in (A, B):
                if last[key] == k: pool.append(reg[key])
            if kW is not None and k == kW - 3:
                wfid = tr.issue(f"ds_read_b32 v{FT0}, v14 offset:{FL_G + 12}")
            if k == kW:
                tr.wait(wfid)
                sl = newlabel("WS"); bk = newlabel("WB")
                a(f"v_cmp_ne_u32 vcc, s{S_ONES}, v{FT0}", f"s_cbranch_vccnz {sl}")
                a(f"{bk}:")
                slow.append((sl, bk))
                wok[0] = True
                cstamp(a, 3)
            issue_loads(k + 1, 2)
            do_fill(NF, k)
            if k == ncomb0 // 2: cstamp(a, 2)
            if k == ncomb0 - 1: cstamp(a, 4)
        cstamp(a, 5)
        do_fill(1000, 1000)
        assert not fill and not pend
        stamp(a, 7)
        for f in epi(hi, 1): a(f())
        if m < 3: a(f"s_branch {zend}")
    a(f"{zend}:")
    cstamp(a, 6)
    gA = newlabel("ZA"); gC = newlabel("ZC"); zs = newlabel("ZS"); zb = newlabel("ZB"); zc = newlabel("ZCB"); zd = newlabel("ZD")
    a("s_waitcnt lgkmcnt(0)")
    a(f"s_cmp_lg_u32 s{S_G}, 1", f"s_cbranch_scc1 {gA}")
    a(f"v_cmp_ne_u32 vcc, 1, v{FT0}", f"s_cbranch_vccnz {zs}")
    a(f"{zb}:")
    a(f"s_mov_b64 exec, s[{CM}:{CM+1}]")
    for k in range(4): a(f"v_swap_b32 v{ZQ+k}, v{ACCL+k}")
    a("s_mov_b64 exec, -1")
    cstamp(a, 8)
    a(f"buffer_store_dwordx4 v[{ZQ}:{ZQ+3}], v{VZA}, s[{R0}:{R0+3}], s{CZ1} offen sc1")
    a(f"buffer_store_dwordx4 v[{ACCL}:{ACCL+3}], v{VZA}, s[{R0}:{R0+3}], s{CZ0} offen sc1")
    a(f"s_branch {zd}")
    for (sl, bk) in slow:
        a(f"{sl}:")
        lds_wait(a, FL_G + 12, FT0, "b4", addr=14)
        a(f"s_branch {bk}")
    a(f"{zs}:")
    a(f"v_mov_b32 v{FT1}, s{S_ROLE}")
    l = newlabel("ZW")
    a(f"{l}:")
    a(f"ds_read_u8 v{FT0}, v{FT1} offset:{FL_S6}")
    guard(a)
    a("s_waitcnt lgkmcnt(0)")
    a(f"v_cmp_ne_u32 vcc, 1, v{FT0}", f"s_cbranch_vccnz {l}")
    a(f"v_lshl_add_u32 v{FT1}, v{FT1}, 10, v{VLN}")
    a(f"ds_read_b128 v[{ACCL}:{ACCL+3}], v{FT1} offset:{G_BASE + R_RED}")
    a("s_waitcnt lgkmcnt(0)")
    a(f"s_branch {zb}")
    a(f"{gA}:")
    a(f"s_cmp_lg_u32 s{S_G}, 0", f"s_cbranch_scc1 {gC}")
    a(f"v_mov_b32 v{FT1}, s{S_ROLE}", f"v_lshl_add_u32 v{FT0}, v{FT1}, 10, v{VLN}")
    a(f"ds_write_b128 v{FT0}, v[{ZQ}:{ZQ+3}] offset:{G_BASE + R_RED}")
    a(f"ds_write_b8 v{FT1}, v{VONE} offset:{FL_S6}")
    cstamp(a, 8)
    a(f"s_branch {zd}")
    a(f"{gC}:")
    cstamp(a, 8)
    a(f"buffer_store_dwordx4 v[{ZQ}:{ZQ+3}], v{VZA}, s[{R0}:{R0+3}], s{CZ0} offen sc1")
    a(f"{zd}:")
    stamp(a, 8)
    if DBG:
        a(f"s_mul_i32 s{T0_}, s{S_ROLE}, 1280", f"s_add_u32 s{T1_}, s{T0_}, s{S_GB}", f"v_lshl_add_u32 v20, v1, 2, s{T1_}")
        a(f"s_mul_i32 s{T1_}, s{S_CH}, 5376", f"s_add_u32 s{T1_}, s{T1_}, s{T0_}", f"s_add_u32 s{T1_}, s{T1_}, {hex(WS_DBG)}", f"v_lshl_add_u32 v21, v1, 2, s{T1_}")
        for k in range(5 + 1):
            a(f"ds_read_b32 v22, v20 offset:{R2 + 256*k}", "s_waitcnt lgkmcnt(0)", f"global_store_dword v21, v22, s[{P_WS}:{P_WS+1}] offset:{256*k}")
        a(f"ds_read_b32 v22, v14 offset:{C_PAR}", f"s_lshl_b32 s{T1_}, s{S_CH}, 2", f"s_add_u32 s{T1_}, s{T1_}, {hex(WS_DBG + 0x300000)}", f"v_mov_b32 v21, s{T1_}")
        a("s_waitcnt lgkmcnt(0)", f"global_store_dword v21, v22, s[{P_WS}:{P_WS+1}]")
    a(f"s_lshl_b32 s{T0_}, s{S_G}, 2", f"s_add_u32 s{T0_}, s{T0_}, s{S_ROLE}", f"v_mov_b32 v8, s{T0_}")
    a("s_waitcnt vmcnt(0)")
    a(f"ds_write_b8 v8, v{VONE} offset:{FL_ZDONE}")


def gen_wjobs(a):
    WA, WD = 10, 11
    end = newlabel("WJE"); w1 = newlabel("WJ1"); w2 = newlabel("WJ2")
    a(f"s_cmp_eq_u32 s{S_WAVE}, 2", f"s_cbranch_scc1 {w2}")
    if XP & 1: a(f"s_branch {w2}")
    a(f"s_add_u32 s{T0_}, s{S_WAVE}, 1", f"s_lshr_b32 s{T0_}, s{T0_}, 2", f"s_cmp_eq_u32 s{S_WAVE}, 1", f"s_cselect_b32 s{T0_}, 2, s{T0_}", f"s_lshl_b32 s{T0_}, s{T0_}, 10")
    a(f"v_lshl_add_u32 v{WA}, v1, 4, s{T0_}", f"v_add_u32 v{WD}, {G_BASE}, v{WA}")
    lds_wait(a, FL_UF, 12, "b4")
    a(f"s_setprio {ENV('WPRIO', 3)}")
    for g in range(3):
        E = 20 + 12 * g; o = C_U + U_SIZE * g + 2 * (240 - 16)
        a(f"ds_read_b128 v[{E}:{E+3}], v{WA} offset:{o}", f"ds_read_b128 v[{E+4}:{E+7}], v{WA} offset:{o+16}", f"ds_read_b64 v[{E+8}:{E+9}], v{WA} offset:{o+32}")
    a(f"s_cmp_eq_u32 s{S_WAVE}, 1", f"s_cbranch_scc1 {w1}")
    for full in (1, 0):
        if not full: a(f"{w1}:")
        for g in range(3):
            if g == 2: a(f"s_cmp_lt_u32 s{S_I}, 24", f"s_cbranch_scc1 {end}")
            E = lambda i: 20 + 12 * g + i
            O = lambda i: 56 + i
            T = lambda i: 65 + i
            Q = lambda i: 72 + i
            X = lambda i: 79 + i
            Y = lambda i: 85 + i
            W7, W9 = 92, 96
            a(f"ds_read_b32 v12, v{VZ} offset:{FL_G + 16*g + 4}")
            if g == 0: a("s_waitcnt lgkmcnt(7)")
            n = 8 if full else 7
            for i in range(1, n + 1): a(f"v_alignbit_b32 v{O(i)}, v{E(i+1)}, v{E(i)}, 16")
            for i in range(1, n + 1): a(f"v_pk_add_f16 v{T(i)}, v{O(i)}, v{E(i+1)}")
            for i in range(1, 5): a(f"v_pk_add_f16 v{X(i)}, v{T(i)}, v{O(i+1)}")
            for i in (range(2, 8) if full else range(3, 7)): a(f"v_pk_add_f16 v{Q(i)}, v{T(i)}, v{T(i+1)}")
            ok = newlabel("WJK")
            a("s_waitcnt lgkmcnt(0)")
            a(f"v_cmp_eq_u32 vcc, s{S_ONES}, v12", f"s_cbranch_vccnz {ok}")
            lds_wait(a, FL_G + 16 * g + 4, 12, "b4", sleep=1)
            a(f"{ok}:")
            off = G_SIZE * (g & 1)
            if g == 2: a(f"v_add_u32 v{WD}, {2*G_SIZE}, v{WD}")
            a(f"ds_write_b128 v{WD}, v[{X(1)}:{X(4)}] offset:{off + R_WS3}")
            for i in (range(2, 7) if full else range(3, 7)): a(f"v_pk_add_f16 v{Y(i)}, v{E(i)}, v{Q(i)}")
            a(f"ds_write_b128 v{WD}, v[{Y(3)}:{Y(6)}] offset:{off + R_WS5 + 16}")
            if full:
                for i in range(5, 8): a(f"v_pk_add_f16 v{X(i)}, v{T(i)}, v{O(i+1)}")
                for k in range(4): a(f"v_pk_add_f16 v{W7+k}, v{Q(2+k)}, v{X(4+k)}")
                a(f"ds_write_b128 v{WD}, v[{W7}:{W7+3}] offset:{off + R_WS7}")
                for k in range(4): a(f"v_pk_add_f16 v{W9+k}, v{Y(2+k)}, v{Q(4+k)}")
                a(f"ds_write_b128 v{WD}, v[{W9}:{W9+3}] offset:{off + R_WS9 + 16}")
            a(f"ds_write_b8 v116, v{VONE} offset:{FL_G + 16*g + 12}")
        a(f"s_branch {end}")
    a(f"{w2}:")
    for g in range(3): a(f"ds_write_b8 v116, v{VONE} offset:{FL_G + 16*g + 12}")
    if PF2 > PF1 or PFD:
        W2 = ENV("PF2W", 14)
        a(f"s_sub_u32 s{T2_}, s{S_I}, 18", f"s_cmp_ge_u32 s{T2_}, {W2}", f"s_cbranch_scc1 {end}")
        pf_lane(a, 100, 101)
        lds_wait(a, FL_UF, 12, "b4", sleep=1)
        if PF2 > PF1:
            pf_gu(a, 100, T2_, W2, PF1, PF2, 102, "KS_PF2D")
            a("KS_PF2D:")
        if PFD:
            a(f"s_sub_u32 s{T2_}, {W2-1}, s{T2_}")
            pf_down(a, T2_, W2, 0, PFD, 100, 120, end)
    a(f"{end}:")

def gen(a):
    label = NAME + "_kernel"
    a(f".globl {label}", ".p2align 8", f".type {label},@function", f"{label}:")
    a("s_cmp_ge_u32 s2, 256", "s_cbranch_scc1 KS_END")
    stamp_begin(a)
    a("s_load_dwordx16 s[4:19], s[0:1], 0", "s_load_dwordx16 s[20:35], s[0:1], 64", f"s_load_dwordx2 s[{P_WS}:{P_WS+1}], s[0:1], 128")
    a(f"v_readfirstlane_b32 s{S_WAVE}, v0", f"s_lshr_b32 s{S_WAVE}, s{S_WAVE}, 6")
    a(f"s_and_b32 s{S_XC}, s2, 7", f"s_lshr_b32 s{S_I}, s2, 3")
    if ENV("CPF", 1):
        a(f"s_cmp_lg_u32 s{S_WAVE}, 0", "s_cbranch_scc1 KS_CPE")
        a("s_getpc_b64 s[42:43]")
        a("KS_PC:")
        a(f"s_and_b32 s{T0_}, s{S_I}, 3", f"s_lshl_b32 s{T0_}, s{T0_}, 13", f"v_lshl_add_u32 v126, v0, 7, s{T0_}", "v_min_u32 v126, KS_END-KS_PC, v126")
        a("global_load_dword v127, v126, s[42:43]")
        a("KS_CPE:")
    if ENV("REMAP", 1):
        a(f"s_add_u32 s{T0_}, s{S_WAVE}, 8", f"s_sub_u32 s{T1_}, s{S_WAVE}, 4", f"s_cmp_lt_u32 s{S_WAVE}, 8", f"s_cselect_b32 s{T0_}, s{T0_}, s{T1_}")
        a(f"s_cmp_lt_u32 s{S_WAVE}, 4", f"s_cselect_b32 s{S_WAVE}, s{S_WAVE}, s{T0_}")
    a("v_and_b32 v1, 63, v0", "v_and_b32 v2, 15, v1", "v_lshrrev_b32 v3, 4, v1", f"v_mov_b32 v{VZ}, 0", f"v_mov_b32 v{VONE}, 1")
    a(f"s_mov_b32 s{S_GUARD}, {GUARD}", f"s_mov_b32 s{S_ONES}, 0x01010101")
    a(f"s_lshl_b32 s{S_B2}, s{S_XC}, 5", f"s_add_u32 s{S_B2}, s{S_B2}, s{S_I}")
    a(f"s_mul_i32 s{S_BLK}, s{S_XC}, 18", f"s_add_u32 s{S_BLK}, s{S_BLK}, s{S_I}")
    a(f"s_cmp_lt_u32 s{S_WAVE}, 4", "s_cbranch_scc1 KS_L")
    a(f"s_cmp_ge_u32 s{S_WAVE}, 12", "s_cbranch_scc1 KS_X")
    a("s_setprio 2")
    a(f"s_lshr_b32 s{S_G}, s{S_WAVE}, 2", f"s_sub_u32 s{S_G}, s{S_G}, 1")
    a(f"s_mul_i32 s{S_ROLE}, s{S_G}, 3", f"s_xor_b32 s{S_ROLE}, s{S_ROLE}, s{S_WAVE}", f"s_and_b32 s{S_ROLE}, s{S_ROLE}, 3")
    a(f"s_lshl_b32 s{S_CH}, s{S_B2}, 1", f"s_add_u32 s{S_CH}, s{S_CH}, s{S_G}")
    a(f"s_lshl_b32 s{T0_}, s{S_ROLE}, 11", f"s_add_u32 s{T0_}, s{T0_}, {C_STG}", f"v_lshl_add_u32 v28, v1, 3, s{T0_}")
    pre_ixlf(a)
    a("KS_GRP:")
    gen_group(a)
    a(f"s_cmp_lt_u32 s{S_I}, 18", "s_cbranch_scc1 KS_T")
    a("s_waitcnt lgkmcnt(0)")
    endwave(a)
    a("KS_X:")
    a(f"s_cmp_lt_u32 s{S_I}, 24", "s_cbranch_scc1 KS_X2")
    a(f"s_setprio {ENV('KCPRIO', 2)}")
    a("KS_XC:")
    a(f"s_mov_b32 s{S_G}, 2", f"s_add_u32 s{S_ROLE}, s{S_WAVE}, 3", f"s_and_b32 s{S_ROLE}, s{S_ROLE}, 3")
    a(f"s_lshl_b32 s{S_CH}, s{S_XC}, 3", f"s_and_b32 s{T0_}, s{S_I}, 7", f"s_add_u32 s{S_CH}, s{S_CH}, s{T0_}", f"s_add_u32 s{S_CH}, s{S_CH}, 512")
    a(f"s_lshl_b32 s{T0_}, s{S_ROLE}, 11", f"s_add_u32 s{T0_}, s{T0_}, {C_STG}", f"v_lshl_add_u32 v28, v1, 3, s{T0_}")
    a("s_branch KS_GRP")
    a("KS_X2:")
    a(f"s_cmp_lt_u32 s{S_I}, 8", "s_cbranch_scc1 KS_X3")
    a(f"s_sub_u32 s{T5_}, s{S_WAVE}, 8")
    a("s_branch KS_LN1")
    a("KS_X3:")
    a(f"s_lshl_b32 s{T0_}, s2, 4", f"s_add_u32 s{T0_}, s{T0_}, s{S_WAVE}", f"s_cmp_lg_u32 s{T0_}, {16*ENV('NPUB', 2) + 12}", "s_cbranch_scc1 KS_X3B")
    a("s_setprio 3")
    a(f"s_memrealtime s[{T0_}:{T1_}]")
    a("v_and_b32 v6, 3, v1", "v_lshlrev_b32 v7, 2, v6", "v_min_u32 v6, 2, v6", "v_lshlrev_b32 v6, 2, v6", "v_cmp_eq_u32 vcc, 3, v1")
    a("s_waitcnt lgkmcnt(0)")
    a(f"v_mov_b32 v8, s{T0_}", f"v_mov_b32 v9, s{T1_}", "v_alignbit_b32 v8, v8, v8, v6", f"v_cndmask_b32 v9, v{VZ}, v9, vcc", "v_xor_b32 v8, v8, v9")
    a("v_and_b32 v9, 0xf0000fff, v8", "v_and_b32 v10, 0xfff000, v8", "v_lshl_or_b32 v9, v10, 4, v9", "v_lshrrev_b32 v10, 12, v8", "v_and_b32 v10, 0xf000, v10")
    a("v_or3_b32 v9, v9, v10, v9", "v_or_b32 v9, 0x80000000, v9")
    a("s_mov_b64 exec, 15")
    a(f"global_store_dword v7, v9, s[{P_DBG}:{P_DBG+1}] sc1")
    if SPIN: a(f"v_mov_b32 v8, s{T0_}", f"global_store_dword v7, v8, s[{P_DBG}:{P_DBG+1}] offset:64 sc1")
    a("s_mov_b64 exec, -1")
    a("s_setprio 0")
    a("KS_X3B:")
    if KOFF:
        a(f"s_setprio {ENV('KPPRIO', 3)}")
        a("s_branch KS_XC")
    a("s_waitcnt lgkmcnt(0)")
    a("s_barrier")
    a("s_branch KS_G")
    a("KS_X4:")
    a(f"s_cmp_lt_u32 s{S_I}, 18", "s_cbranch_scc1 KS_G")
    a("s_waitcnt vmcnt(0) lgkmcnt(0)")
    endwave(a)
    a("KS_L:")
    a("v_lshlrev_b32 v6, 2, v0", f"ds_write_b32 v6, v{VZ}")
    a("v_mov_b32 v8, 0", "v_mov_b32 v9, 0", f"s_min_u32 s{T0_}, s{S_WAVE}, 2", f"s_mul_i32 s{T0_}, s{T0_}, {U_SIZE}", "v_min_u32 v6, 59, v1", f"v_lshl_add_u32 v6, v6, 3, s{T0_}")
    a(f"ds_write_b64 v6, v[8:9] offset:{C_U}")
    a(f"s_mov_b32 s{T5_}, s{S_WAVE}")
    a(f"s_sub_u32 s{T0_}, s{S_I}, 8", f"s_cmp_lt_u32 s{T0_}, 16", "s_cbranch_scc0 KS_L0")
    a("KS_LN1:")
    a("s_setprio 3")
    gen_ln1(a)
    if NLL:
        if not NL: pf_lane(a, 46, 47)
        a(f"s_lshl_b32 s{T2_}, s{S_WAVE}, 4", f"s_add_u32 s{T2_}, s{T2_}, s{S_I}", f"s_sub_u32 s{T2_}, s{T2_}, 8")
        pf_gu(a, 46, T2_, 64, 16 * NL + 16 * NE, PF0, 47, "KS_LLE")
        a("KS_LLE:")
    a(f"s_mov_b32 s{S_G}, 1")
    a("s_branch KS_L2B")
    a("KS_L0:")
    a(f"s_and_b32 s{T0_}, s{S_I}, 15", f"s_lshl_b32 s{T1_}, s{S_XC}, 4", f"s_add_u32 s{T0_}, s{T0_}, s{T1_}")
    a("v_and_b32 v59, 3, v1", "v_lshlrev_b32 v59, 2, v59")
    a(f"s_lshl_b32 s{T4_}, s{T0_}, 6", f"s_add_u32 s{T1_}, s{T4_}, {hex(WS_FLAG1)}", f"v_add_u32 v7, s{T1_}, v59")
    a(f"s_mul_i32 s{T1_}, s{T0_}, {CLR_WG}", f"s_add_u32 s{T1_}, s{T1_}, {hex(WS_CLR)}")
    a("v_lshlrev_b32 v6, 4, v0")
    a("v_mov_b32 v12, -1", "v_mov_b32 v13, -1", "v_mov_b32 v14, -1", "v_mov_b32 v15, -1")
    a("s_setprio 3")
    pf_lane(a, 16, 17)
    a("s_waitcnt lgkmcnt(0)")
    a(f"s_add_u32 s{R1}, s{P_WS}, s{T1_}", f"s_addc_u32 s{R1+1}, s{P_WS+1}, 0", f"s_mov_b32 s{R1+2}, {CLR_WG}", f"s_mov_b32 s{R1+3}, 0x20000")
    if ENV("UPRE", 0):
        srd(a, R0, P_WS, 0xC00000)
        a(f"s_lshl_b32 s{T2_}, s{S_WAVE}, 3", f"s_xor_b32 s{T2_}, s{T2_}, s{S_B2}", f"s_lshl_b32 s{T2_}, s{T2_}, 13")
        a(f"s_and_b32 s{T3_}, s{S_I}, 3", f"s_lshl_b32 s{T0_}, s{S_XC}, 2", f"s_add_u32 s{T3_}, s{T3_}, s{T0_}", f"s_lshl_b32 s{T3_}, s{T3_}, 13")
        a(f"s_add_u32 s{T0_}, s{T3_}, {256*8192}", f"s_cmp_eq_u32 s{S_WAVE}, 2", f"s_cselect_b32 s{T2_}, s{T0_}, s{T2_}")
        a(f"s_add_u32 s{T0_}, s{T3_}, {hex(WS_KT)}", f"s_cmp_eq_u32 s{S_WAVE}, 3", f"s_cselect_b32 s{T2_}, s{T0_}, s{T2_}")
        a(f"s_lshl_b32 s{T0_}, s{S_I}, 2", f"s_add_u32 s{T0_}, s{T0_}, s{S_WAVE}", f"s_and_b32 s{T0_}, s{T0_}, 0x72", f"s_cmp_gt_u32 s{T0_}, 0x62", f"s_cselect_b32 s{T0_}, 0, s{T0_}")
        a(f"s_bitcmp1_b32 s{T0_}, 1", "s_cbranch_scc1 KS_UPE")
        a("v_lshlrev_b32 v125, 7, v1", f"buffer_load_dword v124, v125, s[{R0}:{R0+3}], s{T2_} offen {MOD('UPMOD')}")
        a("KS_UPE:")
    a("s_barrier")
    if NE:
        a(f"s_and_b32 s{T2_}, s{S_I}, 15", f"s_lshl_b32 s{T3_}, s{S_WAVE}, 4", f"s_add_u32 s{T2_}, s{T2_}, s{T3_}")
        pf_gu(a, 16, T2_, 64, 16 * NL, 16 * NL + 16 * NE, 18, "KS_L1E")
        a("KS_L1E:")
    if ENV("CTRIG", 1): lds_wait(a, FL_PARAM, 8, "nz", sleep=2)
    for k in range(5):
        a(f"s_movk_i32 s{T0_}, {4096*k}")
        a(f"buffer_store_dwordx4 v[12:15], v6, s[{R1}:{R1+3}], s{T0_} offen sc1")
    stamp(a, 1)
    a(f"global_load_dword v58, v59, s[{P_DBG}:{P_DBG+1}] sc1")
    dbg_wait(a, 0)
    stamp(a, 2)
    a(f"ds_write_b32 v59, v58 offset:{FL_NONCE}")
    a("s_mov_b64 exec, 1")
    a(f"ds_add_rtn_u32 v8, v{VZ}, v{VONE} offset:{FL_LNACK}")
    a("s_mov_b64 exec, -1")
    for d in range(1, 4): a(f"v_lshrrev_b32 v{58-d}, {3*d}, v58")
    a("s_waitcnt lgkmcnt(0)")
    a(f"v_readfirstlane_b32 s{T0_}, v8")
    a(f"s_cmp_lg_u32 s{T0_}, 3", "s_cbranch_scc1 KS_L2")
    a("s_mov_b64 exec, 15")
    a(f"global_store_dword v7, v58, s[{P_WS}:{P_WS+1}] sc1")
    a("s_mov_b64 exec, -1")
    a(f"s_and_b32 s{T2_}, s{S_I}, 7")
    a(f"s_cmp_ge_u32 s{S_I}, 8", "s_cbranch_scc1 KS_L1C")
    if NN:
        a("s_setprio 0")
        lds_wait(a, FL_G + 32 + 4, 8, "b4", sleep=2)
        a("s_setprio 3")
        pf_gu(a, 16, T2_, 8, PF0, PF0 + 8 * NN, 18, "KS_L2")
    a("s_branch KS_L2")
    a("KS_L1C:")
    if NC: pf_gu(a, 16, T2_, 8, PF0 + 8 * NN, PF1, 18, "KS_L2")
    a("KS_L2:")
    a(f"s_mov_b32 s{S_G}, 0")
    a("KS_L2B:")
    srd(a, R0, P_WS, XBYTES, WS_UT)
    a("v_lshrrev_b32 v7, 1, v1", "v_lshlrev_b32 v7, 6, v7", "v_and_b32 v10, 1, v1", "v_lshl_add_u32 v7, v10, 4, v7", "v_lshlrev_b32 v9, 4, v1")
    a(f"s_lshl_b32 s{T0_}, s{S_WAVE}, 11", f"s_lshl_b32 s{T1_}, s{S_B2}, 13", f"s_add_u32 s{T1_}, s{T1_}, s{T0_}")
    if SWU:
        a(f"s_lshl_b32 s{T2_}, s{S_B2}, 7", f"s_and_b32 s{T3_}, s{T2_}, 0x380", f"v_xor_b32 v13, s{T3_}, v9", f"s_and_b32 s{T2_}, s{T2_}, 0x1c00", f"s_xor_b32 s{T1_}, s{T1_}, s{T2_}")
    else: a("v_mov_b32 v13, v9")
    a(f"s_xor_b32 s{T5_}, s{T1_}, 0x400")
    a(f"s_lshl_b32 s{T3_}, s{S_XC}, 3", f"s_add_u32 s{T3_}, s{T3_}, s{S_I}", f"s_add_u32 s{T3_}, s{T3_}, {512 - 24}")
    a(f"s_lshr_b32 s{T4_}, s{T3_}, 1", f"s_lshl_b32 s{T4_}, s{T4_}, 13", f"s_and_b32 s{T3_}, s{T3_}, 1", f"s_lshl_b32 s{T3_}, s{T3_}, 5")
    a(f"s_add_u32 s{T3_}, s{T3_}, s{T4_}", f"s_add_u32 s{T3_}, s{T3_}, s{T0_}")
    if SWU:
        a(f"s_lshr_b32 s{T4_}, s{T4_}, 6", f"s_and_b32 s{T2_}, s{T4_}, 0x780", f"v_xor_b32 v7, s{T2_}, v7", f"s_and_b32 s{T4_}, s{T4_}, 0x1800", f"s_xor_b32 s{T3_}, s{T3_}, s{T4_}")
    a(f"s_cmp_lt_u32 s{S_I}, 24", f"s_cselect_b32 s{T3_}, {XBYTES}, s{T3_}", f"s_cselect_b32 s{T2_}, 0, {hex(TAGM)}")
    a(f"v_mov_b32_dpp v64, v58 quad_perm:[0,1,0,1] {DPPM}", f"v_mov_b32_dpp v65, v58 quad_perm:[2,3,2,3] {DPPM}")
    a(f"s_bitcmp1_b32 s{S_I}, 0", "s_cselect_b64 vcc, -1, 0", "v_cndmask_b32 v64, v64, v65, vcc")
    for d in range(4): a(f"v_and_b32 v{60+d}, {hex(TAGM)}, v{58-d}")
    for d in range(3, 0, -1): a(f"v_lshrrev_b32 v{64+d}, {3*d}, v64")
    for d in range(4): a(f"v_and_b32 v{64+d}, s{T2_}, v{64+d}")
    a(f"s_lshl_b32 s{T4_}, s{S_WAVE}, 10", f"s_add_u32 s{T4_}, s{T4_}, {C_U + 480}")
    a("v_bfe_u32 v11, v1, 1, 1", f"v_mul_u32_u24 v11, {U_SIZE}, v11", "v_lshl_add_u32 v11, v10, 4, v11", "v_lshrrev_b32 v10, 2, v1", "v_lshl_add_u32 v11, v10, 5, v11", f"v_add_u32 v11, s{T4_}, v11")
    a(f"v_add_u32 v10, s{T4_}, v9")
    a(f"v_mov_b32 v116, s{S_WAVE}")
    a(f"s_add_u32 s{T0_}, s{T0_}, {hex(WS_FLAG1)}", "v_lshrrev_b32 v12, 2, v1", "v_lshl_add_u32 v12, v12, 6, v59", f"v_add_u32 v12, s{T0_}, v12")
    UT = eval(os.environ.get("UT", "(8, 4, 20)"))
    a(f"s_cmp_lt_u32 s{S_I}, 8", f"s_cselect_b32 s{T2_}, {UT[0]}, {UT[1]}", f"s_cmp_ge_u32 s{S_I}, 24", f"s_cselect_b32 s{T2_}, {UT[2]}, s{T2_}", f"v_mov_b32 v14, s{T2_}")
    a("s_setprio 0")
    a("s_waitcnt vmcnt(0)")
    stamp(a, 8)
    lds_wait(a, FL_G, 8, "b4", addr=14, sleep=2)
    a("s_setprio 3")
    stamp(a, 5)
    if ENV("UDELAY", 0): a(f"s_sleep {ENV('UDELAY', 0)}")
    lp = newlabel("UP"); l1 = newlabel("UPE")
    UM = os.environ.get("UMOD", "sc1").replace("_", " ")
    MK = [6, 8, 10, 12]
    if ENV("MPOLL", 1):
        for m in MK: a(f"s_mov_b64 s[{m}:{m+1}], -1")
        a(f"s_mov_b32 s{SP0}, {hex(TAGM)}")
    a(f"s_branch {l1}")
    a(f"{lp}:")
    a(f"s_sleep {ENV('USLEEP', 2)}")
    a(f"{l1}:")
    if ENV("MPOLL", 1):
        lds = [f"buffer_load_dwordx4 v[20:23], v13, s[{R0}:{R0+3}], s{T1_} offen {UM}", f"buffer_load_dwordx4 v[24:27], v13, s[{R0}:{R0+3}], s{T5_} offen {UM}",
               f"buffer_load_dwordx4 v[28:31], v7, s[{R0}:{R0+3}], s{T3_} offen {UM}"]
        for k in range(3): a(f"s_mov_b64 exec, s[{MK[k]}:{MK[k]+1}]", lds[k])
        a(f"s_mov_b64 exec, s[{MK[3]}:{MK[3]+1}]")
        a(f"global_load_dword v32, v12, s[{P_WS}:{P_WS+1}] sc1", f"global_load_dword v33, v12, s[{P_WS}:{P_WS+1}] offset:1024 sc1")
        guard(a)
        for k in range(3):
            a(f"s_mov_b64 exec, s[{MK[k]}:{MK[k]+1}]", f"s_waitcnt vmcnt({4-k})")
            for d in range(4): a(f"v_xor_b32 v{20+4*k+d}, v{(64 if k == 2 else 60)+d}, v{20+4*k+d}")
            a(f"v_or3_b32 v44, v{20+4*k}, v{21+4*k}, v{22+4*k}", f"v_bitop3_b32 v44, v44, v{23+4*k}, s{SP0} bitop3:0xa8", f"v_cmp_ne_u32 s[{MK[k]}:{MK[k]+1}], 0, v44")
        a(f"s_mov_b64 exec, s[{MK[3]}:{MK[3]+1}]", "s_waitcnt vmcnt(0)")
        a("v_xor_b32 v32, v58, v32", "v_bitop3_b32 v32, v32, v58, v33 bitop3:0xf6", f"v_cmp_ne_u32 s[{MK[3]}:{MK[3]+1}], 0, v32")
        a(f"s_or_b64 vcc, s[{MK[0]}:{MK[0]+1}], s[{MK[1]}:{MK[1]+1}]", f"s_or_b64 vcc, vcc, s[{MK[2]}:{MK[2]+1}]", f"s_or_b64 vcc, vcc, s[{MK[3]}:{MK[3]+1}]", f"s_cbranch_scc1 {lp}")
        a("s_mov_b64 exec, -1")
    else:
        a(f"global_load_dword v32, v12, s[{P_WS}:{P_WS+1}] sc1", f"global_load_dword v33, v12, s[{P_WS}:{P_WS+1}] offset:1024 sc1")
        a(f"buffer_load_dwordx4 v[20:23], v13, s[{R0}:{R0+3}], s{T1_} offen {UM}")
        a(f"buffer_load_dwordx4 v[24:27], v13, s[{R0}:{R0+3}], s{T5_} offen {UM}")
        a(f"buffer_load_dwordx4 v[28:31], v7, s[{R0}:{R0+3}], s{T3_} offen {UM}")
        guard(a)
        for k in range(3):
            a(f"s_waitcnt vmcnt({2-k})")
            if k == 0: a("v_xor_b32 v32, v58, v32", "v_xor_b32 v33, v58, v33")
            for d in range(4): a(f"v_xor_b32 v{20+4*k+d}, v{(64 if k == 2 else 60)+d}, v{20+4*k+d}")
            a(f"v_or3_b32 v44, v{20+4*k}, v{21+4*k}, v{44 if k else 21}", f"v_or3_b32 v44, v{22+4*k}, v{23+4*k}, v44")
        a(f"v_and_b32 v44, {hex(TAGM)}, v44", "v_or3_b32 v44, v44, v32, v33", "v_cmp_ne_u32 vcc, 0, v44", f"s_cbranch_vccnz {lp}")
    stamp(a, 6)
    a("ds_write_b128 v11, v[20:23]", "ds_write_b128 v11, v[24:27] offset:512", f"ds_write_b128 v10, v[28:31] offset:{2*U_SIZE}")
    a(f"ds_write_b8 v116, v{VONE} offset:{FL_UF}")
    stamp(a, 7)
    gen_wjobs(a)
    a("s_setprio 0")
    a(f"s_lshr_b32 s{T0_}, s{S_B2}, 6", f"s_lshl_b32 s{T0_}, s{T0_}, 9")
    a(f"s_bfe_u32 s{T1_}, s{S_B2}, 0x20004", f"s_lshl_b32 s{T1_}, s{T1_}, 6", f"s_add_u32 s{T0_}, s{T0_}, s{T1_}")
    a(f"s_and_b32 s{T1_}, s{S_B2}, 3", f"s_lshl_b32 s{T1_}, s{T1_}, 4", f"s_add_u32 s{T0_}, s{T0_}, s{T1_}")
    a(f"s_and_b32 s{T1_}, s{S_B2}, 12", f"s_add_u32 s{T0_}, s{T0_}, s{T1_}")
    a(f"s_lshr_b32 s{T1_}, s{S_WAVE}, 1", f"s_lshl_b32 s{T1_}, s{T1_}, 8", f"s_add_u32 s{T0_}, s{T0_}, s{T1_}")
    a(f"s_and_b32 s{T1_}, s{S_WAVE}, 1", f"s_lshl_b32 s{T1_}, s{T1_}, 1", f"s_add_u32 s{T0_}, s{T0_}, s{T1_}")
    a("v_lshrrev_b32 v113, 5, v1", "v_and_b32 v114, 31, v1")
    a(f"v_add_u32 v112, s{T0_}, v113")
    a("v_mul_u32_u24 v115, 1152, v112", "v_lshl_add_u32 v8, v114, 2, v115", "v_lshl_add_u32 v115, v114, 4, v115", "v_lshlrev_b32 v7, 2, v114", "v_lshlrev_b32 v6, 4, v114")
    a(f"v_bfe_u32 v111, v1, 3, 1", f"v_add_u32 v111, s{T0_}, v111", "v_mul_u32_u24 v111, 1152, v111", "v_and_b32 v9, 7, v1", "v_lshl_add_u32 v111, v9, 4, v111")
    srd(a, R0, P_X, XBYTES)
    srd(a, R1, P_WR, 1152)
    a(f"buffer_load_dwordx4 v[10:13], v115, s[{R0}:{R0+3}], 0 offen")
    a(f"buffer_load_dwordx4 v[14:17], v115, s[{R0}:{R0+3}], 0 offen offset:512")
    a(f"buffer_load_dword v18, v8, s[{R0}:{R0+3}], 0 offen offset:1024")
    a(f"buffer_load_dwordx4 v[50:53], v6, s[{R1}:{R1+3}], 0 offen")
    a(f"buffer_load_dwordx4 v[54:57], v6, s[{R1}:{R1+3}], 0 offen offset:512")
    a(f"buffer_load_dword v58, v7, s[{R1}:{R1+3}], 0 offen offset:1024")
    if not PTAG:
        a(f"s_cmp_lt_u32 s{S_I}, 18", "s_cbranch_scc1 KS_L4")
        a(f"s_mul_i32 s{T0_}, s{S_XC}, 14", f"s_add_u32 s{T0_}, s{T0_}, s{S_I}", f"s_mul_i32 s{T0_}, s{T0_}, {CLRP_WG}", f"s_add_u32 s{T0_}, s{T0_}, {hex(WS_PART - 18*CLRP_WG)}")
        a(f"s_add_u32 s{R1}, s{P_WS}, s{T0_}", f"s_addc_u32 s{R1+1}, s{P_WS+1}, 0", f"s_mov_b32 s{R1+2}, {CLRP_WG}", f"s_mov_b32 s{R1+3}, 0x20000")
        a("v_lshlrev_b32 v6, 4, v0", "v_mov_b32 v60, -1", "v_mov_b32 v61, -1", "v_mov_b32 v62, -1", "v_mov_b32 v63, -1")
        for k in range(6):
            a(f"s_movk_i32 s{T0_}, {4096*k}")
            a(f"buffer_store_dwordx4 v[60:63], v6, s[{R1}:{R1+3}], s{T0_} offen sc1")
    a("KS_L4:")
    srd(a, R0, P_WS, 0x240000, WS_ZB1)
    srd(a, R1, P_OUT, XBYTES)
    srd(a, R2_, P_WS, XBYTES, WS_X2)
    srd(a, R3, P_WS, 12288, WS_KEYS)
    a(f"s_not_b32 s{T1_}, s{S_B2}", f"v_xor_b32 v8, s{T1_}, v0")
    a("v_lshrrev_b32 v6, 1, v0", "v_lshlrev_b32 v6, 6, v6", "v_and_b32 v8, 1, v8", "v_lshl_add_u32 v6, v8, 4, v6")
    a(f"s_lshr_b32 s{T0_}, s{S_B2}, 2", f"s_lshl_b32 s{T0_}, s{T0_}, 15", f"s_and_b32 s{T1_}, s{S_B2}, 1", f"s_lshl_b32 s{T1_}, s{T1_}, 14", f"s_add_u32 s{T0_}, s{T0_}, s{T1_}")
    a(f"s_and_b32 s{T1_}, s{S_B2}, 2", f"s_lshl_b32 s{T1_}, s{T1_}, 4", f"s_add_u32 s{T0_}, s{T0_}, s{T1_}")
    a(f"s_lshr_b32 s{T2_}, s{S_B2}, 2", f"s_lshl_b32 s{T2_}, s{T2_}, 12", f"s_and_b32 s{T1_}, s{S_B2}, 3", f"s_lshl_b32 s{T1_}, s{T1_}, 4")
    a(f"s_add_u32 s{T2_}, s{T2_}, s{T1_}", f"s_lshl_b32 s{T1_}, s{S_WAVE}, 10", f"s_add_u32 s{T2_}, s{T2_}, s{T1_}", f"s_add_u32 s{T2_}, s{T2_}, 0x200000")
    a("v_lshlrev_b32 v9, 6, v2")
    if SWZ:
        a(f"s_lshl_b32 s{T1_}, s{S_B2}, 5", f"s_and_b32 s{T3_}, s{T1_}, 0x1f80", f"v_xor_b32 v6, s{T3_}, v6", f"s_and_b32 s{T3_}, s{T1_}, 0x380", f"v_xor_b32 v9, s{T3_}, v9")
        a(f"s_and_b32 s{T3_}, s{T1_}, 0xc00", f"s_xor_b32 s{T2_}, s{T2_}, s{T3_}", f"s_and_b32 s{T1_}, s{S_B2}, 1", f"s_lshl_b32 s{T1_}, s{T1_}, 13", f"s_xor_b32 s{T0_}, s{T0_}, s{T1_}")
    a(f"s_xor_b32 s{T1_}, s{T0_}, 0x2000")
    a(f"s_mul_i32 s{T3_}, s{S_WAVE}, 2304", f"s_add_u32 s{T3_}, s{T3_}, {C_XR}", f"v_lshl_add_u32 v117, v114, 5, s{T3_}", f"v_lshl_add_u32 v110, v114, 3, s{T3_}")
    a(f"s_lshl_b32 s{T3_}, s{S_WAVE}, 9", f"s_add_u32 s{T3_}, s{T3_}, {C_RED}", f"v_lshl_add_u32 v108, v1, 2, s{T3_}", f"v_lshl_add_u32 v109, v1, 4, s{T3_}")
    a(f"s_mov_b32 s{T3_}, 0x02020202", f"v_mul_lo_u32 v118, v113, s{T3_}", "v_add_u32 v118, 0x05040100, v118")
    a(f"v_lshlrev_b32 v8, 2, v0", f"v_add_u32 v8, {C_XR}, v8")
    a(f"s_lshl_b32 s{T3_}, s{S_WAVE}, 6", f"s_add_u32 s{T3_}, s{T3_}, {C_XR + 2048}", f"v_lshl_add_u32 v119, v2, 2, s{T3_}")
    a("s_waitcnt vmcnt(0)")
    X = 20
    for j in range(9): unpack(a, X + 2 * j, 10 + j)
    lds_wait(a, FL_ZDONE + 4, 60, "b4", sleep=1)
    a("s_setprio 3")
    if PFD2 > PFD:
        a(f"s_sub_u32 s{T5_}, s{S_I}, 18", f"s_cmp_ge_u32 s{T5_}, 6", "s_cbranch_scc1 KS_PF3E", f"s_cmp_lg_u32 s{S_WAVE}, 2", "s_cbranch_scc1 KS_PF3E")
        pf_down(a, T5_, 6, PFD, PFD2, 100, 120, "KS_PF3E", R4)
        a("KS_PF3E:")
    stamp2(a, 1)
    if ENV("ZGATE", 1):
        zpoll(a, [f"buffer_load_dwordx4 v[68:71], v{VZ}, s[{R0}:{R0+3}], s{T2_} offen sc1"], list(range(68, 72)), ENV("ZSLEEP", 1))
        if ENV("ZDELAY", 0): a(f"s_sleep {ENV('ZDELAY', 0)}")
    zpoll(a, [f"buffer_load_dwordx4 v[60:63], v6, s[{R0}:{R0+3}], s{T0_} offen sc1",
           f"buffer_load_dwordx4 v[64:67], v6, s[{R0}:{R0+3}], s{T1_} offen sc1",
           f"buffer_load_dwordx4 v[68:71], v9, s[{R0}:{R0+3}], s{T2_} offen sc1"], list(range(60, 72)), ENV("ZSLEEP", 1))
    stamp2(a, 2)
    for k in range(2):
        a(f"ds_write2st64_b32 v8, v{60+4*k}, v{61+4*k} offset0:{4*k} offset1:{9+4*k}")
        a(f"ds_write2st64_b32 v8, v{62+4*k}, v{63+4*k} offset0:{18+4*k} offset1:{27+4*k}")
    a("ds_write2st64_b32 v119, v68, v69 offset0:0 offset1:9")
    a("ds_write2st64_b32 v119, v70, v71 offset0:18 offset1:27")
    a(f"ds_write_b8 v116, v{VONE} offset:{FL_ZF}")
    stamp2(a, 3)
    lds_wait(a, FL_ZF, 60, "b4")
    for k in range(4):
        a(f"ds_read_b128 v[{60+4*k}:{63+4*k}], v117 offset:{1024*(k>>1) + 16*(k&1)}")
    a("ds_read_b64 v[76:77], v110 offset:2048")
    for j in range(9):
        if j % 2 == 0: a(f"s_waitcnt lgkmcnt({4-j//2})")
        a(f"v_perm_b32 v44, v{61+2*j}, v{60+2*j}, v118")
        unpack(a, 46, 44)
        a(f"v_pk_add_f32 v[46:47], v[46:47], v[{X+2*j}:{X+2*j+1}]")
        a(f"v_cvt_pk_bf16_f32 v44, v46, v47")
        unpack(a, X + 2 * j, 44)
    ln_stats(a, X, 40, 42, 44, 46, 48)
    stamp2(a, 4)
    a("v_mov_b32 v60, 0", "v_mov_b32 v61, 0")
    for j in range(9):
        ln_apply_pair(a, X + 2 * j, 40, 42, 44, 10 + j)
        unpack(a, 46, 50 + j)
        a("v_pk_fma_f32 v[60:61], v[44:45], v[46:47], v[60:61]")
        a(f"v_pk_add_f32 v[{X+2*j}:{X+2*j+1}], v[44:45], v[{X+2*j}:{X+2*j+1}]")
    a("v_add_f32 v60, v60, v61")
    red32(a, "v_add_f32", 60, 61)
    a("v_cvt_pk_bf16_f32 v60, v60, v60")
    a("v_ashrrev_i32 v61, 31, v60", "v_or_b32 v61, 0x80000000, v61", "v_xor_b32 v60, v60, v61", "v_and_b32 v60, 0xffff0000, v60")
    a("v_sub_u32 v62, 0x87ff, v112", "v_or_b32 v60, v60, v62", "v_lshl_add_u32 v61, v116, 1, v113", "v_lshlrev_b32 v61, 2, v61")
    a("s_mov_b32 exec_lo, 1", "s_mov_b32 exec_hi, 1")
    a(f"ds_write_b32 v61, v60 offset:{C_KEY}")
    a("s_mov_b64 exec, 1")
    a(f"ds_add_rtn_u32 v62, v{VZ}, v{VONE} offset:{FL_KCNT}")
    a("s_mov_b64 exec, 3")
    a("v_lshlrev_b32 v61, 4, v114", f"s_lshl_b32 s{T0_}, s{S_B2}, 5")
    a(f"ds_read_b128 v[64:67], v61 offset:{C_KEY}")
    a("s_waitcnt lgkmcnt(1)")
    a(f"v_readfirstlane_b32 s{T1_}, v62")
    a(f"s_cmp_lg_u32 s{T1_}, 3", "s_cbranch_scc1 KS_NOKEY")
    a("s_waitcnt lgkmcnt(0)")
    a(f"buffer_store_dwordx4 v[64:67], v61, s[{R3}:{R3+3}], s{T0_} offen sc1")
    a("KS_NOKEY:")
    a("s_mov_b64 exec, -1")
    a(f"v_cvt_pk_bf16_f32 v58, v{X+16}, v{X+17}")
    a("ds_write_b32 v108, v18", "ds_write_b32 v108, v58 offset:256", "ds_read_b128 v[64:67], v109")
    a(f"buffer_store_dwordx4 v[10:13], v115, s[{R2_}:{R2_+3}], 0 offen sc1")
    a(f"buffer_store_dwordx4 v[14:17], v115, s[{R2_}:{R2_+3}], 0 offen offset:512 sc1")
    for j in range(8):
        a(f"v_cvt_pk_bf16_f32 v{50+j}, v{X+2*j}, v{X+2*j+1}")
    a("s_mov_b64 exec, 0xffff")
    a("s_waitcnt lgkmcnt(0)")
    a(f"buffer_store_dwordx4 v[64:67], v111, s[{R2_}:{R2_+3}], 0 offen offset:1024 sc1")
    a("s_mov_b64 exec, 0xffff0000")
    a(f"buffer_store_dwordx4 v[64:67], v111, s[{R1}:{R1+3}], 0 offen offset:1024 sc1")
    a("s_mov_b64 exec, -1")
    a(f"buffer_store_dwordx4 v[50:53], v115, s[{R1}:{R1+3}], 0 offen sc1")
    a(f"buffer_store_dwordx4 v[54:57], v115, s[{R1}:{R1+3}], 0 offen offset:512 sc1")
    stamp2(a, 5)
    a(f"s_cmp_lg_u32 s{T1_}, 3", "s_cbranch_scc1 KS_NOKEY2")
    a("s_waitcnt vmcnt(6)")
    a(f"ds_write_b32 v{VZ}, v{VONE} offset:{FL_KACK}")
    a("KS_NOKEY2:")
    a("s_waitcnt vmcnt(0)")
    a("s_mov_b64 exec, 1")
    a(f"ds_add_rtn_u32 v62, v{VZ}, v{VONE} offset:{FL_F2CNT}")
    a("s_waitcnt lgkmcnt(0)")
    a("v_cmp_eq_u32 vcc, 3, v62", "s_and_b64 exec, exec, vcc", "s_cbranch_execz KS_NOF2")
    a(f"s_lshl_b32 s{T0_}, s2, 4", f"s_add_u32 s{T0_}, s{T0_}, 8192")
    a(f"buffer_store_dword v{VONE}, v{VZ}, s[{R3}:{R3+3}], s{T0_} offen sc1")
    a("KS_NOF2:")
    a("s_mov_b64 exec, -1")
    a("s_setprio 0")
    a(f"s_cmp_lt_u32 s{S_I}, 18", "s_cbranch_scc1 KS_B")
    a("s_waitcnt lgkmcnt(0)")
    endwave(a)
    a("KS_T:")
    a("s_setprio 0")
    a(f"s_cmp_ge_u32 s{S_WAVE}, 10", "s_cbranch_scc1 KS_P")
    a("v_and_b32 v6, 1, v1", "v_subrev_u32 v6, 1, v6")
    a("v_and_b32 v7, 7, v1", "v_lshlrev_b32 v7, 2, v7")
    srd(a, R3, P_WS, 12288, WS_KEYS)
    a(f"s_cmp_eq_u32 s{S_WAVE}, 9", "s_cbranch_scc1 KS_W9")
    a(f"s_cmp_eq_u32 s{S_WAVE}, 8", "s_cbranch_scc1 KS_L2W")
    a(f"s_sub_u32 s{T1_}, s{S_WAVE}, 4", f"s_lshl_b32 s{T0_}, s{T1_}, 10", f"v_lshl_add_u32 v33, v1, 4, s{T0_}", f"s_movk_i32 s{T0_}, 4096")
    a(f"s_lshl_b32 s{T1_}, s{T1_}, 7", "v_lshlrev_b32 v32, 4, v2", "v_lshl_add_u32 v32, v3, 5, v32", f"v_add_u32 v32, s{T1_}, v32")
    lds_wait(a, FL_KACK, 8, "nz", sleep=1)
    a("s_setprio 2")
    if ENV('KDELAY', 20): a(f"s_sleep {ENV('KDELAY', 20)}")
    stamp2(a, 1)
    zpoll(a, [f"buffer_load_dwordx4 v[8:11], v33, s[{R3}:{R3+3}], 0 offen sc1",
           f"buffer_load_dwordx4 v[12:15], v33, s[{R3}:{R3+3}], s{T0_} offen sc1"], list(range(8, 16)), ENV("KSLEEP", 4))
    a(f"ds_write_b32 v{VZ}, v{VONE} offset:{FL_KSEEN}")
    stamp2(a, 2)
    pool = Pool(range(16, 28))
    x = [8, 9, 10, 11]; y = [12, 13, 14, 15]
    for (i, j) in ((0, 1), (2, 3), (0, 2), (1, 3), (1, 2)):
        ce_inlane(a, x, i, j, pool); ce_inlane(a, y, i, j, pool)
    clean8(a, x, pool, 6, rev=True); clean8(a, y, pool, 6, rev=True)
    merge_pair(a, x, y, pool); clean8(a, x, pool, 6)
    for M in MIRRORS:
        merge_mirror(a, x, pool, M); clean8(a, x, pool, 6)
    for i in range(4): a(f"v_mov_b32 v{28+i}, v{x[i]}")
    a("s_mov_b32 exec_lo, 0x00030003", "s_mov_b32 exec_hi, 0x00030003")
    a(f"ds_write_b128 v32, v[28:31] offset:{C_CAND}")
    a("s_mov_b64 exec, -1")
    stamp2(a, 3)
    a("s_setprio 0")
    a("s_branch KS_B")
    a("KS_L2W:")
    srd(a, R2_, P_WS, XBYTES, WS_X2)
    a(f"s_mov_b32 s{T0_}, 0xcccccccc", f"s_mov_b32 s{T1_}, 0xcccccccc", f"s_mov_b32 s{T2_}, 0xf0f0f0f0", f"s_mov_b32 s{T3_}, 0xf0f0f0f0", f"s_movk_i32 s{T4_}, 1152")
    a("v_lshrrev_b32 v34, 3, v1", "v_lshlrev_b32 v34, 4, v34", "v_lshlrev_b32 v33, 4, v2")
    lds_wait(a, FL_KACK, 8, "nz", sleep=1)
    a("s_setprio 2")
    a("KS_L2POLL:")
    a(f"ds_read_b128 v[8:11], v33 offset:{C_CAND}")
    a(f"ds_read_b128 v[12:15], v33 offset:{C_CAND + 256}")
    guard(a)
    a("s_waitcnt lgkmcnt(0)")
    a("v_min3_u32 v16, v8, v9, v10", "v_min3_u32 v17, v11, v12, v13", "v_min3_u32 v16, v16, v14, v15", "v_min_u32 v16, v16, v17", "v_cmp_eq_u32 vcc, 0, v16")
    a("s_cbranch_vccnz KS_L2POLL")
    stamp2(a, 1)
    pool = Pool(range(16, 28))
    x = [8, 9, 10, 11]; y = [12, 13, 14, 15]
    merge_pair(a, x, y, pool); clean8(a, x, pool, 6)
    for li, M in enumerate(MIRRORS):
        merge_mirror(a, x, pool, M)
        if li < 2: clean8(a, x, pool, 6)
    a(f"ds_read_b32 v35, v{VZ} offset:{FL_ROWSOK}")
    a(f"v_cndmask_b32 v30, v{x[0]}, v{x[1]}, s[{T0_}:{T1_}]", f"v_cndmask_b32 v31, v{x[2]}, v{x[3]}, s[{T0_}:{T1_}]", f"v_cndmask_b32 v30, v30, v31, s[{T2_}:{T3_}]")
    a("v_mov_b32_dpp v30, v30 row_shr:8 row_mask:0xf bank_mask:0xc")
    a("v_and_b32 v31, 0x7ff, v30", "v_sub_u32 v31, 2047, v31", f"v_mad_u32_u24 v31, v31, s{T4_}, v34")
    a("s_waitcnt lgkmcnt(0)")
    a("v_cmp_ne_u32 vcc, 0, v35", "s_cbranch_vccnz KS_RW1")
    lds_wait(a, FL_ROWSOK, 35, "nz")
    a("KS_RW1:")
    for k in range(9):
        a(f"s_mov_b32 m0, {C_XR + 896*k}")
        a(f"buffer_load_dwordx4 v31, s[{R2_}:{R2_+3}], 0 offen offset:{128*k} sc1 lds")
    a(f"ds_write_b32 v7, v30 offset:{C_SEL}")
    stamp2(a, 2)
    a("s_waitcnt vmcnt(0)")
    a(f"ds_write_b32 v{VZ}, v{VONE} offset:{FL_XRDY}")
    stamp2(a, 3)
    a("s_setprio 0")
    a("s_branch KS_B")
    a("KS_W9:")
    a("v_lshlrev_b32 v33, 4, v1", f"s_movk_i32 s{T0_}, 0x2000")
    srd(a, R2_, P_WS, XBYTES, WS_X2)
    srd(a, R0, P_WS, 0x240000, WS_ZB1)
    srd(a, R1, P_X, XBYTES)
    a("v_bfe_u32 v43, v1, 2, 3", f"s_lshl_b32 s{T1_}, s{S_BLK}, 3", f"v_add_u32 v43, s{T1_}, v43")
    a("v_bfe_u32 v40, v43, 4, 1", "v_and_b32 v41, 3, v1", "v_lshl_add_u32 v40, v40, 2, v41", "v_lshlrev_b32 v40, 2, v40")
    a("v_lshrrev_b32 v41, 5, v43", "v_lshlrev_b32 v41, 4, v41", "v_and_b32 v42, 15, v43", "v_add_u32 v41, v41, v42")
    lds_wait(a, FL_KSEEN, 8, "nz", sleep=1)
    if ENV('F2DELAY', 8): a(f"s_sleep {ENV('F2DELAY', 8)}")
    a("s_setprio 2")
    zpoll(a, [f"buffer_load_dword v{8+k}, v33, s[{R3}:{R3+3}], s{T0_} offen offset:{1024*k} sc1" for k in range(4)], list(range(8, 12)), ENV("F2SLEEP", 4))
    a(f"ds_write_b32 v{VZ}, v{VONE} offset:{FL_ROWSOK}")
    stamp2(a, 1)
    a("s_setprio 0")
    lds_wait(a, C_SEL, 12, "nz", addr=7, sleep=1)
    stamp2(a, 2)
    a(f"ds_read_b32 v19, v40 offset:{C_SEL}")
    a("s_waitcnt lgkmcnt(0)")
    a("v_and_b32 v14, 0x7ff, v19", "v_sub_u32 v14, 2047, v14")
    a("v_mul_u32_u24 v23, 1152, v14", "v_lshl_add_u32 v23, v41, 1, v23")
    a(f"buffer_load_ushort v20, v23, s[{R2_}:{R2_+3}], 0 offen sc1")
    a(f"buffer_load_ushort v17, v23, s[{R1}:{R1+3}], 0 offen")
    a("v_lshrrev_b32 v15, 9, v14", "v_bfe_u32 v16, v14, 6, 2", "v_lshl_add_u32 v15, v15, 2, v16", "v_bfe_u32 v16, v14, 2, 2", "v_lshl_add_u32 v15, v15, 2, v16")
    a("v_bfe_u32 v16, v14, 4, 1")
    a("v_bfe_u32 v24, v14, 8, 1", "v_and_b32 v25, 3, v14", "v_lshl_add_u32 v24, v24, 2, v25", "v_lshlrev_b32 v24, 1, v24")
    a("v_bfe_u32 v25, v14, 5, 1", "v_lshl_add_u32 v24, v25, 5, v24")
    a("v_lshl_add_u32 v25, v15, 1, v16", "v_lshl_add_u32 v25, v25, 14, v24")
    a("v_lshrrev_b32 v26, 1, v41", "v_lshl_add_u32 v25, v26, 6, v25", "v_xor_b32 v26, v41, v16", "v_not_b32 v26, v26", "v_and_b32 v26, 1, v26", "v_lshl_add_u32 v25, v26, 4, v25")
    a("v_lshl_add_u32 v26, v15, 12, v24", "v_lshl_add_u32 v26, v16, 4, v26", "v_lshl_add_u32 v26, v41, 6, v26", f"v_add_u32 v26, {0x200000 - 512*64}, v26")
    if SWZ:
        a("v_lshl_add_u32 v27, v16, 6, v15", "v_lshlrev_b32 v27, 7, v27", "v_xor_b32 v25, v27, v25", "v_and_b32 v27, 0xf80, v27", "v_xor_b32 v26, v27, v26")
    a("v_cmp_gt_u32 vcc, 0x200, v41", "v_cndmask_b32 v25, v26, v25, vcc")
    a(f"buffer_load_ushort v18, v25, s[{R0}:{R0+3}], 0 offen sc1")
    srd(a, R2_, P_WS, 64, WS_IDX)
    a("v_ashrrev_i32 v22, 31, v19", "v_not_b32 v22, v22", "v_or_b32 v22, 0x80000000, v22", "v_xor_b32 v22, v19, v22", "v_and_b32 v22, 0xffff0000, v22")
    a(f"v_mul_f32 v22, {f32(-LOG2E)}, v22", "v_exp_f32 v22, v22", "v_add_f32 v22, 1.0, v22", "v_rcp_f32 v22, v22")
    a("v_cvt_pk_bf16_f32 v22, v22, v22", "v_lshlrev_b32 v22, 16, v22")
    a("v_and_b32 v14, 31, v1", "v_lshlrev_b32 v14, 4, v14")
    a("s_waitcnt vmcnt(0)")
    a("v_lshlrev_b32 v17, 16, v17", "v_lshlrev_b32 v18, 16, v18", "v_add_f32 v17, v17, v18", "v_cvt_pk_bf16_f32 v17, v17, v17")
    a("v_and_b32 v21, 0xffff0000, v17", "v_lshlrev_b32 v20, 16, v20")
    a(f"ds_write_b128 v14, v[20:23] offset:{C_SIDE}")
    a("s_cmp_lg_u32 s2, 0", "s_cbranch_scc1 KS_W9E")
    a(f"buffer_store_dword v12, v7, s[{R2_}:{R2_+3}], 0 offen")
    a("KS_W9E:")
    a("s_waitcnt lgkmcnt(0)")
    stamp2(a, 3)
    endwave(a)
    a("KS_B:")
    srd(a, R0, P_WS, PART_BYTES, WS_PART)
    a("v_bfe_u32 v16, v1, 2, 2", "v_lshl_add_u32 v16, v3, 3, v16", "v_mul_u32_u24 v16, 1152, v16", "v_and_b32 v17, 3, v1", "v_lshl_add_u32 v16, v17, 3, v16")
    a(f"s_lshl_b32 s{T0_}, s{S_WAVE}, 7", f"s_add_u32 s{T0_}, s{T0_}, {C_DOWN}", f"v_add_u32 v16, s{T0_}, v16")
    if PTAG: a("v_lshlrev_b32 v18, 2, v17", f"ds_read_b32 v24, v18 offset:{FL_NONCE}", f"s_movk_i32 s{T2_}, 0xff")
    lds_wait(a, FL_DOWN, 17, "b4")
    if PTAG:
        for d in range(1, 4): a(f"v_lshrrev_b32 v{24+d}, {8*d}, v24")
    WTD = 48
    for jt in range(4):
        a(f"ds_read_b64_tr_b16 v[{WTD+4*jt}:{WTD+4*jt+1}], v16 offset:{32*jt}")
        a(f"ds_read_b64_tr_b16 v[{WTD+4*jt+2}:{WTD+4*jt+3}], v16 offset:{32*jt + 4608}")
    a("v_and_b32 v16, 7, v2", "v_lshlrev_b32 v16, 6, v16", "v_lshl_add_u32 v16, v3, 4, v16")
    a(f"s_mul_i32 s{T0_}, s{S_BLK}, {PROW}", f"s_lshl_b32 s{T1_}, s{S_WAVE}, 11", f"s_add_u32 s{T0_}, s{T0_}, s{T1_}")
    a("v_lshlrev_b32 v17, 4, v1")
    a("s_waitcnt lgkmcnt(0)")
    a("s_barrier")
    a("s_barrier")
    a(f"ds_read_b128 v[20:23], v16 offset:{C_ACT}")
    a("s_waitcnt lgkmcnt(0)")
    for j in range(4):
        a(f"v_mfma_f32_16x16x32_bf16 v[{32+4*j}:{35+4*j}], v[20:23], v[{WTD+4*j}:{WTD+4*j+3}], 0")
    for j in (0, 2):
        for r in range(4): a(f"v_permlane32_swap_b32 v{32+4*j+r}, v{36+4*j+r}")
        for r in range(4): a(f"v_bfi_b32 v{32+4*j+r}, s{T2_}, v{24+r}, v{32+4*j+r}" if PTAG else f"v_min_u32 v{32+4*j+r}, -2, v{32+4*j+r}")
        a(f"buffer_store_dwordx4 v[{32+4*j}:{35+4*j}], v17, s[{R0}:{R0+3}], s{T0_} offen offset:{512*j} sc1")
    stamp2(a, 8)
    a("s_waitcnt vmcnt(0)", "s_barrier")
    endwave(a)
    a("KS_G0:")
    a(f"ds_write_b8 v15, v{VONE} offset:{FL_G+4}")
    a("s_setprio 0")
    a("KS_G:")
    a(f"s_mov_b32 s{SP0}, 0x05040100", f"s_mov_b32 s{SP1}, 0x07060302")
    a("s_waitcnt vmcnt(0)")
    stamp(a, 5)
    g_addr_setup(a, 46)
    SG = eval(os.environ.get("SG", "[0,0,0,0]"))
    if any(SG):
        a(f"s_mul_i32 s{T0_}, s{S_ROLE}, {32*9216}", f"s_lshl_b32 s{T1_}, s{S_BLK}, 6", f"s_add_u32 s{T0_}, s{T0_}, s{T1_}")
        a(f"s_add_u32 s{R0}, s{P_GATE}, s{T0_}", f"s_addc_u32 s{R0+1}, s{P_GATE+1}, 0", f"s_add_u32 s{R0+2}, s{P_UP}, s{T0_}", f"s_addc_u32 s{R0+3}, s{P_UP+1}, 0")
        cnt = sum(SG[g] << (8 * g) for g in range(4))
        a(f"s_lshl_b32 s{T1_}, s{S_G}, 3", f"s_lshr_b32 s{T1_}, {hex(cnt)}, s{T1_}", f"s_and_b32 s{T1_}, s{T1_}, 0xff", "s_cbranch_scc0 KS_SGE")
        a("KS_SGL:")
        for r in range(8):
            a(f"s_load_dword s{R1}, s[{R0}:{R0+1}], {r*9216}", f"s_load_dword s{R1+1}, s[{R0+2}:{R0+3}], {r*9216}")
        a(f"s_add_u32 s{R0}, s{R0}, {8*9216}", f"s_addc_u32 s{R0+1}, s{R0+1}, 0", f"s_add_u32 s{R0+2}, s{R0+2}, {8*9216}", f"s_addc_u32 s{R0+3}, s{R0+3}, 0")
        a(f"s_sub_u32 s{T1_}, s{T1_}, 1", f"s_cmp_lg_u32 s{T1_}, 0", "s_cbranch_scc1 KS_SGL")
        a("KS_SGE:")
        a("s_waitcnt lgkmcnt(0)")
        stamp(a, 8)
    TR = {1: (FL_PARAM, "nz"), 2: (FL_UF, "b4"), 3: (FL_ZF, "b4"), 4: (FL_KACK, "nz"), 5: (FL_KSEEN, "nz"), 6: (FL_ZDONE + 4, "b4")}
    for t in sorted(set(GT)):
        l = newlabel("GT")
        mask = sum(1 << g for g in range(4) if GT[g] == t)
        if mask != 15: a(f"s_lshr_b32 s{T0_}, {mask}, s{S_G}", f"s_bitcmp1_b32 s{T0_}, 0", f"s_cbranch_scc0 {l}")
        lds_wait(a, TR[t][0], 10, TR[t][1], sleep=2)
        if t >= 3: a("s_setprio 1")
        a(f"{l}:")
    g_loads(a, 46, range(4))
    stamp(a, 6)
    def transpose(src, dst):
        for j in range(4):
            for p in range(4):
                lo = src + 2 * (2 * p) + (j >> 1); hi = src + 2 * (2 * p + 1) + (j >> 1)
                a(f"v_perm_b32 v{dst+4*j+p}, v{hi}, v{lo}, s{SP0 + (j & 1)}")
    W = GW
    a(f"s_bitcmp1_b32 s{S_G}, 0", "s_cbranch_scc1 KS_G4")
    g_loads(a, 46, [4])
    a("KS_G4:")
    a(f"v_mov_b32 v6, s{S_G}", f"ds_write_b8 v6, v{VONE} offset:{FL_GISS}")
    a("s_waitcnt vmcnt(0)")
    stamp(a, 7)
    for ks in range(5): transpose(W + 16 * ks, W + 16 * ks - 16)
    GACC = 112
    a(f"s_lshl_b32 s{T0_}, s{S_ROLE}, 9", f"s_add_u32 s{T0_}, s{T0_}, {C_XR}", "v_and_b32 v6, 7, v2", f"v_lshl_add_u32 v7, v6, 4, s{T0_}", "v_lshl_add_u32 v7, v3, 7, v7")
    a(f"s_lshl_b32 s{T0_}, s{S_G}, 6", f"v_add_u32 v11, s{T0_}, v1")
    a("v_lshrrev_b32 v8, 5, v11", "v_and_b32 v9, 31, v11")
    a("v_and_b32 v10, 3, v9", "v_lshlrev_b32 v10, 9, v10")
    a("v_lshrrev_b32 v9, 2, v9", "v_lshl_add_u32 v10, v9, 4, v10")
    a("v_lshrrev_b32 v9, 2, v8", "v_lshl_add_u32 v10, v9, 8, v10")
    a("v_and_b32 v9, 3, v8", "v_lshl_add_u32 v10, v9, 2, v10")
    a("v_lshlrev_b32 v11, 1, v11")
    a(f"s_lshl_b32 s{T0_}, s{S_G}, 11", f"v_lshl_add_u32 v9, v1, 4, s{T0_}")
    lds_wait(a, C_SEL, 12, "nz", sleep=2)
    a("s_setprio 2")
    lds_wait(a, FL_XRDY, 12, "nz")
    stamp2(a, 1)
    for ks in range(5):
        a(f"ds_read_b128 v[{12+4*ks}:{15+4*ks}], v7 offset:{512*ks}")
    for ks in range(5):
        if ks == 4: a(f"s_bitcmp1_b32 s{S_G}, 0", "s_cbranch_scc1 KS_G5")
        a(f"s_waitcnt lgkmcnt({4-ks})")
        for j in range(4):
            c = "0" if ks == 0 else f"v[{GACC+4*j}:{GACC+4*j+3}]"
            a(f"v_mfma_f32_16x16x32_bf16 v[{GACC+4*j}:{GACC+4*j+3}], v[{12+4*ks}:{15+4*ks}], v[{32+16*ks+4*j}:{35+16*ks+4*j}], {c}")
    a("KS_G5:")
    a("s_mov_b32 exec_lo, -1", "s_mov_b32 exec_hi, 0")
    a.flush(6)
    for j in range(4):
        a(f"ds_write_b128 v9, v[{GACC+4*j}:{GACC+4*j+3}] offset:{C_RED + 512*j}")
    a("s_mov_b64 exec, -1")
    a("s_waitcnt lgkmcnt(0)", "s_barrier")
    stamp2(a, 2)
    for w in range(4):
        a(f"ds_read_b32 v{32+2*w}, v10 offset:{C_RED + 2048*w}")
        a(f"ds_read_b32 v{33+2*w}, v10 offset:{C_RED + 2048*w + 128}")
    a("s_waitcnt lgkmcnt(4)")
    a("v_pk_add_f32 v[32:33], v[32:33], v[34:35]")
    a("s_waitcnt lgkmcnt(0)")
    a("v_pk_add_f32 v[36:37], v[36:37], v[38:39]")
    a("v_pk_add_f32 v[32:33], v[32:33], v[36:37]")
    a("v_cvt_pk_bf16_f32 v34, v32, v33")
    unpack(a, 32, 34)
    a(f"v_mul_f32 v34, {f32(-LOG2E)}, v32", "v_exp_f32 v34, v34", "v_add_f32 v34, 1.0, v34", "v_rcp_f32 v34, v34", "v_mul_f32 v34, v32, v34")
    a("v_cvt_pk_bf16_f32 v34, v34, v34", "v_lshlrev_b32 v34, 16, v34")
    a("v_mul_f32 v34, v34, v33", "v_cvt_pk_bf16_f32 v34, v34, v34")
    a(f"ds_write_b16 v11, v34 offset:{C_ACT}")
    a("s_waitcnt lgkmcnt(0)")
    a("s_barrier")
    a("s_branch KS_P2")
    a("KS_P:")
    srd(a, R1, P_DOWN, F * D * 2)
    a(f"s_sub_u32 s{T2_}, s{S_WAVE}, 10", "v_lshlrev_b32 v6, 4, v1", f"s_mul_i32 s{T0_}, s{S_BLK}, 36864", f"s_mul_i32 s{T1_}, s{T2_}, 18432", f"s_add_u32 s{T0_}, s{T0_}, s{T1_}", f"s_add_u32 s{T1_}, s{T1_}, {C_DOWN}")
    a(f"s_lshl_b32 s{T2_}, s{T2_}, 1", f"v_mov_b32 v7, s{T2_}", f"v_mov_b32 v8, s{S_ONES}")
    TR[7] = (FL_GISS, "b4")
    if DT: lds_wait(a, TR[DT][0], 10, TR[DT][1], sleep=2)
    a("s_setprio 1")
    stamp2(a, 1)
    for k in range(18):
        if k % 4 == 0:
            a(f"s_add_u32 m0, s{T1_}, {1024*k}")
            if k: a(f"s_add_u32 s{T0_}, s{T0_}, 4096")
        a(f"buffer_load_dwordx4 v6, s[{R1}:{R1+3}], s{T0_} offen offset:{1024*(k&3)} {MOD('DM', '')} lds")
    a("s_waitcnt vmcnt(0)")
    stamp2(a, 2)
    a(f"ds_write_b16 v7, v8 offset:{FL_DOWN}")
    a("s_setprio 0")
    a("s_waitcnt lgkmcnt(0)")
    a("s_barrier")
    a("s_barrier")
    a("s_setprio 2")
    a("KS_P2:")
    a(f"s_sub_u32 s{S_G}, s{S_WAVE}, 10")
    srd(a, R0, P_WS, PART_BYTES, WS_PART)
    srd(a, R1, P_OUT, XBYTES)
    a("v_lshrrev_b32 v8, 3, v1", f"v_mul_u32_u24 v8, {PROW}, v8", "v_and_b32 v9, 7, v1", "v_lshl_add_u32 v8, v9, 4, v8")
    a(f"s_mul_i32 s{T0_}, s{S_G}, {24*PROW}", f"s_lshl_b32 s{T1_}, s{S_BLK}, 7", f"s_add_u32 s{T0_}, s{T0_}, s{T1_}", f"s_add_u32 s{T1_}, s{T0_}, {8*PROW}", f"s_add_u32 s{T2_}, s{T0_}, {16*PROW}")
    a(f"s_lshl_b32 s{T3_}, s{S_G}, 7", f"v_lshl_add_u32 v6, v9, 4, s{T3_}", "v_lshl_add_u32 v6, v3, 2, v6")
    a(f"v_lshlrev_b32 v12, 2, v1", f"v_add_u32 v12, {C_RED2}, v12", "v_lshlrev_b32 v13, 4, v1")
    if PTAG:
        a("v_and_b32 v14, 12, v12", f"ds_read_b32 v24, v14 offset:{FL_NONCE}", "s_waitcnt lgkmcnt(0)")
        for d in range(1, 4): a(f"v_lshrrev_b32 v{24+d}, {8*d}, v24")
    a("s_barrier")
    stamp2(a, 3)
    if PTAG:
        lp = newlabel("PP"); l1 = newlabel("PPE")
        a(f"s_branch {l1}", f"{lp}:", "s_sleep 1", f"{l1}:")
        for k in range(3): a(f"buffer_load_dwordx4 v[{32+4*k}:{35+4*k}], v8, s[{R0}:{R0+3}], s{T0_+k} offen sc1")
        guard(a)
        for k in range(3):
            a(f"s_waitcnt vmcnt({2-k})")
            for d in range(4):
                t = 44 + (d & 1)
                a(f"v_xor_b32 v{t}, v{24+d}, v{32+d}" if k == 0 and d < 2 else f"v_bitop3_b32 v{t}, v{t}, v{24+d}, v{32+4*k+d} bitop3:0xf6")
        a("v_or_b32 v44, v44, v45", "v_and_b32 v44, 0xff, v44", "v_cmp_ne_u32 vcc, 0, v44", f"s_cbranch_vccnz {lp}")
    else: zpoll(a, [f"buffer_load_dwordx4 v[{32+4*k}:{35+4*k}], v8, s[{R0}:{R0+3}], s{T0_+k} offen sc1" for k in range(3)], list(range(32, 44)), 1)
    stamp2(a, 4)
    a("v_pk_add_f32 v[32:33], v[32:33], v[36:37]", "v_pk_add_f32 v[34:35], v[34:35], v[38:39]")
    a("v_pk_add_f32 v[32:33], v[32:33], v[40:41]", "v_pk_add_f32 v[34:35], v[34:35], v[42:43]")
    for r in range(4): a(f"v_add_f32_dpp v{32+r}, v{32+r}, v{32+r} row_ror:8 {DPPM}")
    a("v_permlane16_swap_b32 v32, v33", "v_permlane16_swap_b32 v34, v35")
    a("v_add_f32 v32, v32, v33", "v_add_f32 v34, v34, v35")
    a("v_permlane32_swap_b32 v32, v34")
    a("v_add_f32 v32, v32, v34")
    a(f"ds_write_b32 v6, v32 offset:{C_RED2}")
    a("s_waitcnt lgkmcnt(0)", "s_barrier")
    a(f"s_cmp_lg_u32 s{S_G}, 0", "s_cbranch_scc1 KS_PEND")
    a("s_mov_b32 exec_lo, -1", "s_mov_b32 exec_hi, 0")
    for g in range(3):
        a(f"ds_read2_b32 v[{32+2*g}:{33+2*g}], v12 offset0:{64*g} offset1:{64*g + 32}")
    a(f"ds_read_b128 v[40:43], v13 offset:{C_SIDE}")
    a("s_waitcnt lgkmcnt(0)")
    a("v_pk_add_f32 v[32:33], v[32:33], v[34:35]", "v_pk_add_f32 v[32:33], v[32:33], v[36:37]", "v_add_f32 v8, v32, v33")
    a("v_cvt_pk_bf16_f32 v8, v8, v8", "v_lshlrev_b32 v8, 16, v8")
    a("v_mul_f32 v8, v8, v42", "v_cvt_pk_bf16_f32 v8, v8, v8", "v_lshlrev_b32 v8, 16, v8")
    a("v_add_f32 v8, v8, v40", "v_cvt_pk_bf16_f32 v8, v8, v8", "v_lshlrev_b32 v8, 16, v8")
    a("v_add_f32 v8, v8, v41", "v_cvt_pk_bf16_f32 v8, v8, v8")
    a(f"buffer_store_short v8, v43, s[{R1}:{R1+3}], 0 offen")
    a("KS_PEND:")
    stamp_end(a)
    spin_end(a)
    a("KS_ABORT:")
    a("KS_END:")
    a("s_endpgm")
    return f""".amdhsa_kernel {label}
  .amdhsa_next_free_vgpr 128
  .amdhsa_next_free_sgpr {NSGPR}
  .amdhsa_accum_offset 128
  .amdhsa_group_segment_fixed_size 0
  .amdhsa_kernarg_size 136
  .amdhsa_user_sgpr_count 2
  .amdhsa_user_sgpr_kernarg_segment_ptr 1
  .amdhsa_system_sgpr_workgroup_id_x 1
  .amdhsa_float_denorm_mode_32 3
.end_amdhsa_kernel
"""

def main():
    hdr = open(f"/code/{NAME}.s.ref").read().split("; Override launch geometry")[0]
    out = hdr
    out += f"; @launch grid=(256,1,1) block=(1024,1,1) lds={LDS_BYTES}\n"
    out += '.amdgcn_target "amdgcn-amd-amdhsa--gfx950"\n.text\n'
    a = Asm()
    d = gen(a)
    out += a.text()
    out += '.section .rodata,"a"\n.p2align 6\n' + d
    path = sys.argv[1] if len(sys.argv) > 1 else "ks.s"
    open(path, "w").write(out)
    print("wrote", path, len(out))

if __name__ == "__main__":
    main()
```

```python
import sys, struct, math, os
sys.path.insert(0, "gen")
from asmlib import Asm

NAME = "sequential_preLN__ssm_conv_s4__moe_arch_mod__prompt"
L, D, N, F = 2048, 576, 128, 4608
XBYTES = L * D * 2
WS_UT = 0x000000
WS_X2 = 0x300000
WS_ZB1 = 0x600000
WS_ZB2 = 0x800000
WS_KEYS = 0x840000
WS_PART = 0x850000
WS_CLR, CLR_WG = 0x600000, 18560
CLRP_WG = 23744
WS_FLAG1 = 0xB00000
TAGM = 0x00070007
WS_IDX = 0xB10000
WS_KT = 0xB20000
WS_DBG = 0xC00000
WS_STAMP = 0x8000000
PART_BYTES = 144 * (4608 * 4 + 128)
C_FL, C_CAND, C_SEL, C_KEY, C_PAR, C_ACT, C_SIDE, C_RED2 = 0, 256, 768, 800, 832, 1024, 1536, 2048
C_U, U_SIZE = 3072, 4672
C_LNB = C_U + 3 * U_SIZE
C_XR = C_LNB
C_RED = C_LNB + 9280
G_BASE, G_SIZE = 35840, 36672
C_STG = G_BASE + 2 * G_SIZE + 36864
LDS_BYTES = C_STG + 8192
FL_LN1, FL_LNACK, FL_KCNT, FL_UF, FL_ZF, FL_KACK, FL_ROWSOK, FL_XRDY, FL_PARAM, FL_DOWN, FL_ZDONE = 0, 8, 12, 16, 20, 24, 28, 32, 36, 40, 48
FL_G = 64
FL_S6 = 160
FL_F2CNT, FL_INIT, FL_CLROK, FL_GISS, FL_KSEEN, FL_UTOK, FL_PRE, FL_NONCE = 176, 180, 188, 192, 196, 200, 208, 224
KG_ROW = 544
KG_T = [0, 16 * KG_ROW, 32 * KG_ROW, 41 * KG_ROW]
R_WS3 = 0
R_WS5 = R_WS3 + 193 * 16
R_WS7 = R_WS5 + 193 * 16
R_WS9 = R_WS7 + 128 * 16
R_RED = 10752
R2 = 31232
T_TAB = R2
T_DRE = R2 + 1296
T_DRO = T_DRE + 1280 + 64
T_G3 = T_DRO + 1280
T_G5 = T_G3 + 256
T_G7E = T_G5 + 256
T_G7O = T_G7E + 192
T_G9E = T_G7O + 192
T_G9O = T_G9E + 192
assert T_G9O + 192 <= G_SIZE and R_WS9 + 129 * 16 <= R_RED and R_RED + 13 * 1024 <= R2 and 57 * KG_ROW <= R2
IDX_ZERO, IDX_DUMMY = 641, 642
C_DOWN = G_BASE + 2 * G_SIZE

def f32(x): return "0x%08x" % struct.unpack("<I", struct.pack("<f", x))[0]
def f32v(x): return struct.unpack("<f", struct.pack("<f", x))[0]
LOG2E = math.log2(math.e)
LOG2E_HI = f32v(LOG2E); LOG2E_LO = LOG2E - LOG2E_HI
INV2PI = 1.0 / (2 * math.pi)
INV2PI_HI = f32v(INV2PI); INV2PI_LO = INV2PI - INV2PI_HI
DPPM = "row_mask:0xf bank_mask:0xf"
ENV = lambda k, d: int(os.environ.get(k, str(d)))
STAMP = ENV("STAMP", 0)
DBG = ENV("DBG", 0)
GUARD = 1 << 19
XP = ENV("XP", 0)
KOFF = ENV("KOFF", 1)
PTAG = ENV("PTAG", 1)
SWU = ENV("SWU", 1); SWZ = ENV("SWZ", 1); PROW = 18432 + 128 * ENV("SWP", 1)
MOD = lambda k, d="sc1": os.environ.get(k, d).replace("_", " ")

P_X, P_ARE, P_LDT, P_DSK, P_WR, P_GATE, P_UP, P_DOWN, P_OUT, P_DBG, P_WS = 4, 6, 18, 20, 24, 26, 28, 30, 32, 34, 36
S_WAVE, S_GUARD, S_XC, S_I = 38, 39, 40, 41
R0, R1, R2_, R3, R4 = 64, 68, 72, 76, 80
S_ONES, S_GB, S_ROLE, S_G, S_CH, S_BLK, S_B2 = 84, 85, 86, 87, 88, 89, 90
T0_, T1_, T2_, T3_, T4_, T5_ = 92, 93, 94, 95, 96, 97
SP0, SP1 = 98, 99
NSGPR = 100

def srd(a, d, base, nbytes, off=0):
    if off:
        a(f"s_add_u32 s{d}, s{base}, {hex(off)}", f"s_addc_u32 s{d+1}, s{base+1}, 0")
    else:
        a(f"s_mov_b32 s{d}, s{base}", f"s_mov_b32 s{d+1}, s{base+1}")
    a(f"s_mov_b32 s{d+2}, {hex(nbytes)}", f"s_mov_b32 s{d+3}, 0x20000")

def red16(a, op, v):
    for r in (8, 4, 2, 1):
        a(f"{op}_dpp v{v}, v{v}, v{v} row_ror:{r} {DPPM}")
def red32(a, op, v, t):
    red16(a, op, v)
    a(f"v_mov_b32 v{t}, v{v}", f"v_permlane16_swap_b32 v{v}, v{t}", f"{op} v{v}, v{v}, v{t}")
def red64x2(a, op1, v1, t1, op2, v2, t2):
    for r in (8, 4, 2, 1):
        a(f"{op1}_dpp v{v1}, v{v1}, v{v1} row_ror:{r} {DPPM}", f"{op2}_dpp v{v2}, v{v2}, v{v2} row_ror:{r} {DPPM}")
    for ins in ("v_permlane16_swap_b32", "v_permlane32_swap_b32"):
        a(f"v_mov_b32 v{t1}, v{v1}", f"v_mov_b32 v{t2}, v{v2}", f"{ins} v{v1}, v{t1}", f"{ins} v{v2}, v{t2}")
        a(f"{op1} v{v1}, v{v1}, v{t1}", f"{op2} v{v2}, v{v2}, v{t2}")

SPIN = eval(os.environ.get("SPIN", "None"))
def spin_rec(a, ph, i):
    if not SPIN or SPIN[1:] != (ph, i): return
    a("s_memrealtime s[46:47]")
def spin_end(a):
    if not SPIN: return
    lo, hi = eval(os.environ.get("SPINI", "(0,32)"))
    a("KS_SPIN:")
    if SPIN[2] == 9: a("s_memrealtime s[46:47]")
    a(f"s_sub_u32 s48, s{S_I}, {lo}", f"s_cmp_ge_u32 s48, {hi-lo}", "s_cbranch_scc1 KS_END")
    a(f"s_lshr_b32 s48, {hex(SPIN[0])}, s{S_WAVE}", "s_bitcmp1_b32 s48, 0", "s_cbranch_scc0 KS_END")
    a("s_mov_b64 exec, -1", "v_mov_b32 v4, 0")
    a("KS_SP0:")
    a(f"global_load_dword v8, v4, s[{P_DBG}:{P_DBG+1}] offset:64 sc1", "s_waitcnt vmcnt(0) lgkmcnt(0)", "v_readfirstlane_b32 s44, v8", "s_cmp_eq_u32 s44, 0", "s_cbranch_scc1 KS_SP0")
    if SPIN[2] == -1: a("s_mov_b32 s46, s44")
    a("s_sub_u32 s48, s46, s44", "s_add_u32 s48, s48, 200")
    if ENV("SPINMIN", 0): a(f"s_sub_u32 s48, {ENV('SPINMIN', 0)}, s48")
    a("s_min_u32 s48, s48, 3000", "s_lshl_b32 s48, s48, 2", "s_add_u32 s48, s48, 2000")
    a("SPINL:", "s_sleep 1", "s_memrealtime s[50:51]", "s_waitcnt lgkmcnt(0)", "s_sub_u32 s50, s50, s44", "s_cmp_lt_u32 s50, s48", "s_cbranch_scc1 SPINL")
def stamp_begin(a):
    if SPIN: a("s_memrealtime s[46:47]")
    if not STAMP: return
    a("s_memrealtime s[44:45]")
    for i in range(1, 9): a(f"s_mov_b32 s{44+2*i}, 0")
def cstamp(a, i):
    if STAMP == 9: a(f"s_memtime s[{44+2*i}:{45+2*i}]")
def kstamp(a, i):
    if STAMP == 7: a(f"s_memtime s[{44+2*i}:{45+2*i}]")
def stamp(a, i, ph=1):
    spin_rec(a, ph, i)
    if ph == 2 and STAMP not in (2, 3): return
    if STAMP == 7 and i == 1: return kstamp(a, 1)
    if not STAMP or STAMP in (7, 9): return
    assert 1 <= i <= 8
    a(f"{'s_memtime' if STAMP == 8 else 's_memrealtime'} s[{44+2*i}:{45+2*i}]")
def stamp2(a, i):
    stamp(a, i, 2)
def stamp_end(a):
    if not STAMP: return
    a("s_waitcnt vmcnt(0) lgkmcnt(0)")
    a("s_memrealtime s[62:63]")
    a(f"s_lshl_b32 s43, s2, 4", f"s_add_u32 s43, s43, s{S_WAVE}", "s_lshl_b32 s43, s43, 6", f"s_add_u32 s43, s43, {hex(WS_STAMP)}")
    a("s_mov_b64 exec, 1")
    a("s_waitcnt lgkmcnt(0)")
    a("v_mov_b32 v1, s43")
    for i in range(10): a(f"v_mov_b32 v{4+i}, s{44+2*i}")
    a(f"global_store_dwordx4 v1, v[4:7], s[{P_WS}:{P_WS+1}]")
    a(f"global_store_dwordx4 v1, v[8:11], s[{P_WS}:{P_WS+1}] offset:16")
    a(f"global_store_dwordx2 v1, v[12:13], s[{P_WS}:{P_WS+1}] offset:32")
def endwave(a):
    stamp_end(a)
    a("s_branch KS_SPIN" if SPIN else "s_endpgm")

def unpack(a, dst, src):
    a(f"v_lshlrev_b32 v{dst}, 16, v{src}", f"v_and_b32 v{dst+1}, 0xffff0000, v{src}")

def ln_stats(a, X, m2, rinv2, t0, t1, t2):
    a(f"v_pk_add_f32 v[{t0}:{t0+1}], v[{X}:{X+1}], v[{X+2}:{X+3}]")
    a(f"v_pk_add_f32 v[{t1}:{t1+1}], v[{X+4}:{X+5}], v[{X+6}:{X+7}]")
    for j in range(4, 9):
        t = t0 if j % 2 == 0 else t1
        a(f"v_pk_add_f32 v[{t}:{t+1}], v[{t}:{t+1}], v[{X+2*j}:{X+2*j+1}]")
    a(f"v_pk_add_f32 v[{t0}:{t0+1}], v[{t0}:{t0+1}], v[{t1}:{t1+1}]")
    a(f"v_add_f32 v{t0}, v{t0}, v{t0+1}")
    red32(a, "v_add_f32", t0, t1)
    a(f"v_mul_f32 v{t2}, {f32(1.0/576)}, v{t0}")
    a(f"v_mov_b32 v{t2+1}, v{t2}")
    a(f"v_cvt_pk_bf16_f32 v{m2}, v{t2}, v{t2}")
    a(f"v_and_b32 v{m2}, 0xffff0000, v{m2}", f"v_mov_b32 v{m2+1}, v{m2}")
    first = {t0: True, t1: True}
    for j in range(9):
        t = t0 if j % 2 == 0 else t1
        a(f"v_pk_add_f32 v[{rinv2}:{rinv2+1}], v[{X+2*j}:{X+2*j+1}], v[{t2}:{t2+1}] neg_lo:[0,1] neg_hi:[0,1]")
        if first[t]:
            a(f"v_pk_mul_f32 v[{t}:{t+1}], v[{rinv2}:{rinv2+1}], v[{rinv2}:{rinv2+1}]"); first[t] = False
        else:
            a(f"v_pk_fma_f32 v[{t}:{t+1}], v[{rinv2}:{rinv2+1}], v[{rinv2}:{rinv2+1}], v[{t}:{t+1}]")
    a(f"v_pk_add_f32 v[{t0}:{t0+1}], v[{t0}:{t0+1}], v[{t1}:{t1+1}]")
    a(f"v_add_f32 v{t0}, v{t0}, v{t0+1}")
    red32(a, "v_add_f32", t0, t1)
    a(f"v_mul_f32 v{t0}, {f32(1.0/576)}, v{t0}")
    a(f"v_cvt_pk_bf16_f32 v{t0}, v{t0}, v{t0}", f"v_and_b32 v{t0}, 0xffff0000, v{t0}")
    a(f"v_add_f32 v{t0}, {f32(1e-5)}, v{t0}")
    a(f"v_cvt_pk_bf16_f32 v{t0}, v{t0}, v{t0}", f"v_and_b32 v{t0}, 0xffff0000, v{t0}")
    a(f"v_sqrt_f32 v{t0}, v{t0}")
    a(f"v_cvt_pk_bf16_f32 v{t0}, v{t0}, v{t0}", f"v_and_b32 v{t0}, 0xffff0000, v{t0}")
    a(f"v_rcp_f32 v{rinv2}, v{t0}")
    a(f"v_mov_b32 v{rinv2+1}, v{rinv2}")

def ln_apply_pair(a, x, m2, rinv2, t, P):
    a(f"v_pk_add_f32 v[{t}:{t+1}], v[{x}:{x+1}], v[{m2}:{m2+1}] neg_lo:[0,1] neg_hi:[0,1]")
    a(f"v_cvt_pk_bf16_f32 v{P}, v{t}, v{t+1}")
    unpack(a, t, P)
    a(f"v_pk_mul_f32 v[{t}:{t+1}], v[{t}:{t+1}], v[{rinv2}:{rinv2+1}]")
    a(f"v_cvt_pk_bf16_f32 v{P}, v{t}, v{t+1}")
    unpack(a, t, P)

VZ, VONE = 4, 5
_lbl = [0]
def newlabel(p="L"):
    _lbl[0] += 1
    return f"{p}_{_lbl[0]}"
def guard(a):
    a(f"s_sub_u32 s{S_GUARD}, s{S_GUARD}, 1", "s_cbranch_scc1 KS_ABORT")
def lds_wait(a, off, t, kind="b4", addr=VZ, sleep=0):
    l = newlabel("W")
    a(f"{l}:")
    if sleep: a(f"s_sleep {sleep}")
    if kind == "b8":
        a(f"ds_read_b64 v[{t}:{t+1}], v{addr} offset:{off}")
    else:
        a(f"ds_read_{'u8' if kind == 'u8' else 'b32'} v{t}, v{addr} offset:{off}")
    guard(a)
    a("s_waitcnt lgkmcnt(0)")
    if kind == "b8": a(f"v_and_b32 v{t}, v{t}, v{t+1}")
    if kind in ("nz", "u8"): a(f"v_cmp_eq_u32 vcc, 0, v{t}")
    else: a(f"v_cmp_ne_u32 vcc, s{S_ONES}, v{t}")
    a(f"s_cbranch_vccnz {l}")

def zpoll(a, loads, regs, sleep):
    lp = newlabel("ZP"); l1 = newlabel("ZPE")
    a(f"s_branch {l1}")
    a(f"{lp}:")
    a(f"s_sleep {sleep}")
    a(f"{l1}:")
    for l in loads: a(l)
    guard(a)
    a("s_waitcnt vmcnt(0)")
    a(f"v_max3_u32 v44, v{regs[0]}, v{regs[1]}, v{regs[2]}")
    r = regs[3:]
    while len(r) >= 2: a(f"v_max3_u32 v44, v44, v{r[0]}, v{r[1]}"); r = r[2:]
    if r: a(f"v_max_u32 v44, v44, v{r[0]}")
    a("v_cmp_eq_u32 vcc, -1, v44", f"s_cbranch_vccnz {lp}")

class Pool:
    def __init__(self, regs): self.free = list(regs)
    def get(self): return self.free.pop(0)
    def put(self, r): self.free.append(r)
def ce_inlane(a, x, i, j, pool):
    t = pool.get()
    a(f"v_max_u32 v{t}, v{x[i]}, v{x[j]}", f"v_min_u32 v{x[j]}, v{x[i]}, v{x[j]}")
    pool.put(x[i]); x[i] = t
def clean8(a, x, pool, DE, rev=False):
    t = [pool.get() for _ in range(4)]
    for i in range(4):
        a(f"v_mov_b32_dpp v{t[i]}, v{x[3-i if rev else i]} quad_perm:[1,0,3,2] {DPPM}")
    for i in range(4):
        a(f"v_med3_u32 v{t[i]}, v{x[i]}, v{t[i]}, v{DE}")
    for i in range(4): pool.put(x[i]); x[i] = t[i]
    for (i, j) in ((0, 2), (1, 3), (0, 1), (2, 3)): ce_inlane(a, x, i, j, pool)
def merge_mirror(a, x, pool, M):
    c = [pool.get() for _ in range(4)]
    for i in range(4):
        a(f"v_max_u32_dpp v{c[i]}, v{x[3-i]}, v{x[i]} {M} {DPPM}")
    for i in range(4): pool.put(x[i]); x[i] = c[i]
def merge_pair(a, x, y, pool):
    for i in range(4):
        a(f"v_max_u32_dpp v{x[i]}, v{y[3-i]}, v{x[i]} quad_perm:[1,0,3,2] {DPPM}")
    for i in range(4): pool.put(y[i])
MIRRORS = ("quad_perm:[3,2,1,0]", "row_half_mirror", "row_mirror")

GW = 48
def g_addr_setup(a, A):
    a(f"s_sub_u32 s{S_G}, s{S_WAVE}, 12")
    a(f"s_mul_i32 s{T0_}, s{S_G}, 9", f"s_add_u32 s{T0_}, s{T0_}, 1", f"s_lshr_b32 s{S_ROLE}, s{T0_}, 1")
    a(f"s_lshl_b32 s{T0_}, s{S_ROLE}, 5", f"v_lshl_add_u32 v7, v3, 3, s{T0_}", "v_mul_u32_u24 v7, 9216, v7")
    a("v_and_b32 v6, 7, v2", "v_lshl_add_u32 v7, v6, 3, v7")
    a(f"s_lshl_b32 s{T0_}, s{S_BLK}, 6", f"v_add_u32 v7, s{T0_}, v7")
    a("v_cmp_gt_u32 vcc, 8, v2")
    a(f"s_mov_b32 s{R3}, 9216", f"s_mov_b32 s{R3+1}, 0", f"s_mov_b32 s{R3+2}, {9216*25}", f"s_mov_b32 s{R3+3}, 0")
    a(f"v_mov_b32 v{A}, s{P_GATE}", f"v_mov_b32 v{A+1}, s{P_GATE+1}", f"v_mov_b32 v6, s{P_UP}")
    a(f"v_cndmask_b32 v{A}, v6, v{A}, vcc", f"v_mov_b32 v6, s{P_UP+1}", f"v_cndmask_b32 v{A+1}, v6, v{A+1}, vcc")
    a(f"v_add_co_u32 v{A}, vcc, v{A}, v7", f"v_addc_co_u32 v{A+1}, vcc, 0, v{A+1}, vcc")
def g_loads(a, A, kss, mod=""):
    for ks in kss:
        for r in range(8):
            d = GW + 16 * ks + 2 * r
            a(f"global_load_dwordx2 v[{d}:{d+1}], v[{A}:{A+1}], off" + mod)
            if not (ks == 4 and r == 7):
                a(f"v_lshl_add_u64 v[{A}:{A+1}], v[{A}:{A+1}], 0, s[{R3 if r < 7 else R3+2}:{R3+1 if r < 7 else R3+3}]")
GTRIG = ENV("GTRIG", 2)
PF = ENV("PF", 1)
NL, NN, NC = ENV("NL", 0), ENV("NN", 6), ENV("NC", 3)
NE = ENV("NE", 0)
NLL = ENV("NLL", 3)
NL2 = ENV("NL2", NLL)
PFB = ENV("PFB", 0)
assert not (PFB and (NL or NE))
PFA = PFB + 16 * NL + 16 * NE
PF0 = PFA + 10 * NLL + 6 * NL2
PF1 = PF0 + 8 * NN + 8 * NC
assert PF1 <= 166
PF2 = ENV("PF2", 166); PFD = ENV("PFD", 81); PFD2 = ENV("PFD2", 81)
GT = eval(os.environ.get("GT", "[2,2,6,6]")); DT = ENV("DT", 3)
DE = ENV("DE", 0)
def pf_ld(a, dst, v, R):
    for m in MOD("PFM", "nt;sc1").split(";"): a(f"buffer_load_dword v{dst}, v{v}, s[{R}:{R+3}], s{T4_} offen {m}")
def pf_lane(a, v, t):
    a(f"v_mul_u32_u24 v{v}, 57, v1", f"v_lshrrev_b32 v{v}, 9, v{v}", f"v_mul_u32_u24 v{t}, 9, v{v}", f"v_sub_u32 v{t}, v1, v{t}", f"v_mul_u32_u24 v{v}, 9216, v{v}", f"v_lshl_add_u32 v{v}, v{t}, 7, v{v}")
def pf_gu_setup(a, sidx, R=R2_, tb=T3_, tt=T4_):
    a(f"s_bitcmp1_b32 s{sidx}, 0", f"s_cselect_b32 s{R}, s{P_UP}, s{P_GATE}", f"s_cselect_b32 s{R+1}, s{P_UP+1}, s{P_GATE+1}")
    a(f"s_mov_b32 s{R+2}, {hex(D*F*2)}", f"s_mov_b32 s{R+3}, 0x20000")
    a(f"s_lshr_b32 s{tb}, s{sidx}, 1", f"s_mul_i32 s{tb}, s{tb}, {7*9216}", f"s_mul_i32 s{tt}, s{S_XC}, 1152", f"s_add_u32 s{tb}, s{tb}, s{tt}")
def pf_gu(a, v, sidx, nw, u0, u1, dst, done):
    assert u0 % 2 == 0 and nw % 2 == 0
    pf_gu_setup(a, sidx)
    k = 0
    while u0 + k * nw < u1:
        if u0 + (k + 1) * nw > u1: a(f"s_cmp_ge_u32 s{sidx}, {u1 - u0 - k*nw}", f"s_cbranch_scc1 {done}")
        a(f"s_add_u32 s{T4_}, s{T3_}, {(u0 + k*nw)//2*7*9216}")
        pf_ld(a, dst, v, R2_)
        k += 1
def pf_down(a, sidx, nw, u0, u1, v, dst, done, R=R2_):
    srd(a, R, P_DOWN, D * F * 2)
    a(f"s_lshl_b32 s{T3_}, s{sidx}, 13", f"s_mul_i32 s{T4_}, s{S_XC}, {576*1152}", f"s_add_u32 s{T3_}, s{T3_}, s{T4_}", f"v_lshlrev_b32 v{v}, 7, v1")
    k = 0
    while u0 + k * nw < u1:
        if u0 + (k + 1) * nw > u1: a(f"s_cmp_ge_u32 s{sidx}, {u1 - u0 - k*nw}", f"s_cbranch_scc1 {done}")
        a(f"s_add_u32 s{T4_}, s{T3_}, {(u0 + k*nw)*8192}")
        pf_ld(a, dst, v, R)
        k += 1
def gen_ln1(a):
    LW, TB = T5_, S_CH
    X, RAW = 8, 26
    a(f"s_sub_u32 s{T0_}, s{S_I}, 8", f"s_and_b32 s{TB}, s{T0_}, 7", f"s_lshr_b32 s{T0_}, s{T0_}, 3", f"s_lshl_b32 s{T0_}, s{T0_}, 4", f"s_add_u32 s{TB}, s{TB}, s{T0_}")
    a(f"s_and_b32 s{T0_}, s{S_XC}, 1", f"s_lshl_b32 s{T0_}, s{T0_}, 3", f"s_add_u32 s{TB}, s{TB}, s{T0_}", f"s_lshr_b32 s{T0_}, s{S_XC}, 1", f"s_lshl_b32 s{T0_}, s{T0_}, 5", f"s_add_u32 s{TB}, s{TB}, s{T0_}")
    a("v_lshrrev_b32 v36, 5, v1", "v_and_b32 v37, 31, v1")
    a("v_mul_u32_u24 v38, 1152, v36", "v_lshl_add_u32 v39, v37, 2, v38", "v_lshl_add_u32 v38, v37, 4, v38")
    a(f"s_mul_i32 s{T1_}, s{TB}, 18432", f"s_mul_i32 s{T2_}, s{LW}, 2304", f"s_add_u32 s{T1_}, s{T1_}, s{T2_}")
    a("s_waitcnt lgkmcnt(0)")
    stamp(a, 1)
    srd(a, R0, P_X, XBYTES)
    a(f"buffer_load_dwordx4 v[{RAW}:{RAW+3}], v38, s[{R0}:{R0+3}], s{T1_} offen")
    a(f"buffer_load_dwordx4 v[{RAW+4}:{RAW+7}], v38, s[{R0}:{R0+3}], s{T1_} offen offset:512")
    a(f"buffer_load_dword v{RAW+8}, v39, s[{R0}:{R0+3}], s{T1_} offen offset:1024")
    a("s_barrier")
    a(f"s_lshr_b32 s{T1_}, s{LW}, 2", f"s_lshl_b32 s{T1_}, s{T1_}, 6", f"s_add_u32 s{T2_}, s{T2_}, s{T1_}", f"s_add_u32 s{T2_}, s{T2_}, {C_LNB}")
    a(f"v_lshl_add_u32 v35, v37, 1, v36")
    a(f"s_mov_b32 s{SP0}, 0x05040100", f"s_mov_b32 s{SP1}, 0x07060302")
    def waits(n):
        for (c, js) in ((2, range(0, 4)), (1, range(4, 8)), (0, range(8, 9))):
            a(f"s_waitcnt vmcnt({c+n})")
            for j in js: unpack(a, X + 2 * j, RAW + j)
    l1 = newlabel("LN1A"); l2 = newlabel("LN1B")
    if NL:
        LW0 = ENV("NLW", 4)
        pf_lane(a, 46, 47)
        a(f"s_sub_u32 s{T1_}, s{LW}, {LW0}", f"s_and_b32 s{T1_}, s{T1_}, 7", f"s_lshl_b32 s{T3_}, s{T1_}, 4", f"s_add_u32 s{T3_}, s{T3_}, s{S_I}", f"s_sub_u32 s{T3_}, s{T3_}, 8")
        pf_gu_setup(a, T3_, R3, T4_, T0_)
    if NL and ENV("NLE", 0):
        a(f"s_cmp_lt_u32 s{T1_}, {NL}", f"s_cselect_b32 s{T4_}, s{T4_}, {hex(D*F*2)}")
        pf_ld(a, 47, 46, R3)
        waits(len(MOD("PFM", "nt;sc1").split(';')))
    else:
        waits(0)
    if NL and not ENV("NLE", 0):
        if ENV("X0", 0): a(f"s_cmp_eq_u32 s{S_XC}, 0", f"s_cbranch_scc1 {l1}")
        a(f"s_cmp_ge_u32 s{T1_}, {NL}", f"s_cbranch_scc1 {l1}")
        pf_ld(a, 47, 46, R3)
        a(f"{l1}:")
    stamp(a, 2)
    a(f"v_lshl_add_u32 v6, v35, 4, s{T2_}", f"v_lshl_add_u32 v7, v35, 2, s{T2_}")
    a(f"v_mul_u32_u24 v35, 0x20202, v36", "v_lshl_add_u32 v35, v36, 25, v35", "v_add_u32 v35, 0x05040100, v35")
    ln_stats(a, X, 36, 38, 40, 42, 44)
    for j in range(9):
        if j == ENV("DSAMP", 3): a("v_and_b32 v59, 3, v1", "v_lshlrev_b32 v59, 2, v59", f"global_load_dword v58, v59, s[{P_DBG}:{P_DBG+1}] sc1")
        ln_apply_pair(a, X + 2 * j, 36, 38, 40, 42)
        a(f"v_cvt_pk_f16_f32 v{RAW+j}, v40, v41")
        if j in (3, 7):
            P = RAW + j - 3; O = X + 2 * (j - 3)
            a(f"v_permlane32_swap_b32 v{P}, v{P+2}", f"v_permlane32_swap_b32 v{P+1}, v{P+3}")
            a(f"v_perm_b32 v{O}, v{P+2}, v{P}, s{SP0}", f"v_perm_b32 v{O+1}, v{P+2}, v{P}, s{SP1}")
            a(f"v_perm_b32 v{O+2}, v{P+3}, v{P+1}, s{SP0}", f"v_perm_b32 v{O+3}, v{P+3}, v{P+1}, s{SP1}")
            a(f"ds_write_b128 v6, v[{O}:{O+3}] offset:{1024*(j//4)}")
    a(f"v_mov_b32 v40, v{RAW+8}", f"v_permlane32_swap_b32 v{RAW+8}, v40")
    a(f"v_perm_b32 v40, v40, v{RAW+8}, v35")
    a(f"ds_write_b32 v7, v40 offset:2048")
    a(f"v_mov_b32 v6, s{LW}")
    a(f"ds_write_b8 v6, v{VONE} offset:{FL_LN1}")
    a("s_setprio 0")
    a(f"s_cmp_ge_u32 s{LW}, 4", "s_cbranch_scc1 KS_X4")
    a("s_setprio 3")
    srd(a, R2_, P_WS, XBYTES, WS_UT)
    a("v_and_b32 v6, 1, v0", "v_mul_u32_u24 v6, 9280, v6", "v_lshrrev_b32 v7, 1, v0", "v_lshl_add_u32 v6, v7, 2, v6", f"v_add_u32 v6, {C_LNB}, v6")
    a("v_lshrrev_b32 v7, 2, v0", "v_mul_u32_u24 v7, 0x2080, v7" if SWU else "v_lshlrev_b32 v7, 13, v7", "v_and_b32 v8, 3, v0", "v_lshl_add_u32 v7, v8, 4, v7")
    a(f"s_lshl_b32 s{T0_}, s{TB}, 6")
    if SWU: a(f"v_xor_b32 v7, s{T0_}, v7", f"s_mov_b32 s{T0_}, 0")
    for k in range(1, 5): a(f"s_add_u32 s{T0_+k}, s{T0_}, {0x80000*k}")
    dbg_wait(a, 0)
    a(f"ds_write_b32 v59, v58 offset:{FL_NONCE}")
    a(f"s_mov_b32 s{SP0}, {hex(TAGM)}")
    for d in range(1, 4): a(f"v_lshrrev_b32 v{58-d}, {3*d}, v58")
    lds_wait(a, FL_LN1, 20, "b8")
    stamp(a, 3)
    for k in range(5):
        a(f"ds_read2st64_b32 v[{20+4*k}:{21+4*k}], v6 offset0:{2*k} offset1:{9+2*k}")
        a(f"ds_read2st64_b32 v[{22+4*k}:{23+4*k}], v6 offset0:{18+2*k} offset1:{27+2*k}")
    for k in range(5):
        a(f"s_waitcnt lgkmcnt({8-2*k})")
        for d in range(4): a(f"v_bfi_b32 v{20+4*k+d}, s{SP0}, v{58-d}, v{20+4*k+d}")
        a(f"buffer_store_dwordx4 v[{20+4*k}:{23+4*k}], v7, s[{R2_}:{R2_+3}], s{T0_+k} offen {MOD('USMOD')}")
    if DE: a(f"v_mov_b32 v6, s{LW}", f"ds_write_b8 v6, v{VONE} offset:{FL_UTOK}")
    stamp(a, 4)

def dbg_wait(a, n, vt=58, va=59):
    lp = newlabel("DBP"); go = newlabel("DBG")
    a(f"s_waitcnt vmcnt({n})")
    a(f"{lp}:")
    a(f"v_cmp_eq_u32 vcc, 0, v{vt}", f"s_cbranch_vccz {go}")
    a("s_sleep 1")
    a(f"global_load_dword v{vt}, v{va}, s[{P_DBG}:{P_DBG+1}] sc1")
    guard(a)
    a("s_waitcnt vmcnt(0)")
    a(f"s_branch {lp}")
    a(f"{go}:")

ROLE_TILES = {0: [0, 1, 2, 3, 4], 1: [0, 1, 2, 3, 4], 2: [5, 6, 7], 3: [5, 6, 7]}
ROLE_W = {2: 0, 3: 1, 1: 2}
ACC, DA, RING, WT = 16, 36, 76, 92
NRING = 4

def epi_plan():
    owner = {0: (0, 0), 1: (0, 1), 2: (1, 0), 3: (1, 1), 4: (1, 3), 5: (0, 2), 6: (0, 3), 7: (1, 2)}
    slots = {}
    cnt = [0, 0]
    for g in range(2):
        for role in range(4):
            for j in ROLE_TILES[role]:
                if owner[j] == (g, role): continue
                slots[(g, role, j)] = g * G_SIZE + R_RED + 1024 * cnt[g]; cnt[g] += 1
    assert max(cnt) <= 13, cnt
    ownerC = {0: 0, 1: 0, 2: 1, 3: 1, 4: 2, 5: 2, 6: 3, 7: 3}
    n = 0
    for role in range(4):
        for j in ROLE_TILES[role]:
            if ownerC[j] == role: continue
            slots[(2, role, j)] = 2 * G_SIZE + R_RED + 1024 * n; n += 1
    return owner, ownerC, slots

class LdsTrack:
    def __init__(self, a): self.a = a; self.n = 0; self.done = -1
    def issue(self, text): self.a(text); self.n += 1; return self.n - 1
    def wait(self, idx):
        k = self.n - 1 - idx
        if idx <= self.done: return
        self.done = idx
        if k <= 15: self.a(f"s_waitcnt lgkmcnt({k})")

CZ0, CZ1, CSH, CXR, CFL, SIS, CM, SM, SC, SSC, SDL = 6, 7, 8, 9, 10, 11, 12, 14, 15, 16, 18
IXR, LFR = (108, 109, 112, 113), (110, 111, 114, 115)
def stage_write(a, off):
    a("v_lshl_or_b32 v24, v25, 16, v24", "v_lshl_or_b32 v25, v27, 16, v26", f"ds_write_b64 v28, v[24:25] offset:{off}")
def pre_ixlf(a):
    end = newlabel("PX"); j1 = newlabel("PX"); j2 = newlabel("PX"); jn = newlabel("PX")
    a(f"s_cmp_eq_u32 s{S_ROLE}, 3", f"s_cbranch_scc1 {end}")
    a("v_lshlrev_b32 v26, 3, v2", "v_mov_b32 v21, 0x80")
    a(f"s_cmp_eq_u32 s{S_ROLE}, 1", f"s_cbranch_scc1 {j1}", f"s_cmp_eq_u32 s{S_ROLE}, 2", f"s_cbranch_scc1 {j2}")
    a("v_lshl_add_u32 v26, v3, 1, v26", "v_mov_b32 v22, 1")
    a(f"s_branch {jn}")
    a(f"{j1}:")
    a("v_cmp_gt_u32 vcc, 2, v3", "v_lshl_add_u32 v20, v3, 2, v26", "v_add_u32 v20, 256, v20", "v_lshl_add_u32 v26, v3, 8, v26", "v_cndmask_b32 v26, v26, v20, vcc")
    a("v_cndmask_b32 v22, v21, 2, vcc", "v_cndmask_b32 v21, 4, v21, vcc")
    a(f"s_branch {jn}")
    a(f"{j2}:")
    a("v_lshl_add_u32 v26, v3, 9, v26", "v_add_u32 v26, 0x400, v26", "v_mov_b32 v22, 0x100")
    a(f"{jn}:")
    a(f"v_mad_u32_u24 v26, v22, s{S_G}, v26", "v_add_u32 v27, v26, v21", f"s_movk_i32 s{T4_}, {T_TAB}", f"s_movk_i32 s{T5_}, {-(0x4280 + 0x800)}", f"s_lshl_b32 s{T3_}, s{S_G}, 9")
    for r in range(2): a(f"v_cvt_f32_u32 v{20+r}, v{26+r}", f"v_max_u32 v{22+r}, 0x800, v{26+r}")
    for r in range(2):
        a(f"v_cmp_gt_u32 vcc, 0x80, v{26+r}", f"v_lshrrev_b32 v{24+r}, 16, v{20+r}", f"v_add3_u32 v{24+r}, v{24+r}, v{22+r}, s{T5_}", f"v_cndmask_b32 v{24+r}, v{24+r}, v{26+r}, vcc")
    for r in range(2):
        a(f"v_min_u32 v{24+r}, {IDX_DUMMY}, v{24+r}", f"v_lshl_add_u32 v{24+r}, v{24+r}, 1, s{T4_}")
    a(f"v_add_u32 v29, s{T3_}, v28")
    a("v_lshl_or_b32 v24, v25, 16, v24", "v_lshl_or_b32 v25, v27, 16, v26", "ds_write_b64 v29, v[24:25]")
    a(f"{end}:")

def gen_group(a):
    RAW, VLDT, VDSK, VNT, VNA, VPR, VEM, VTE, VTL = 40, 46, 107, 104, 105, 106, 72, 126, 127
    I1, D2, I2, D1, D3 = 116, 119, 120, 124, 125
    a(f"s_lshl_b32 s{T0_}, s{S_CH}, 8", f"v_lshl_add_u32 v20, v1, 2, s{T0_}")
    a(f"s_lshl_b32 s{T0_}, s{S_CH}, 1", f"v_mov_b32 v21, s{T0_}")
    a(f"s_mul_i32 s{S_GB}, s{S_G}, {G_SIZE}", f"s_add_u32 s{S_GB}, s{S_GB}, {G_BASE}")
    a("s_waitcnt lgkmcnt(0)")
    stamp(a, 1)
    a(f"global_load_ushort v{VLDT}, v21, s[{P_LDT}:{P_LDT+1}]")
    for k in range(6):
        a(f"global_load_dword v{RAW+k}, v20, s[{P_ARE+2*k}:{P_ARE+2*k+1}]")
    a(f"global_load_ushort v{VDSK}, v21, s[{P_DSK}:{P_DSK+1}]")
    a("s_barrier")
    a(f"s_movk_i32 s{T4_}, {T_TAB}")
    def dr_addr(dst, x, special=False):
        a(f"v_sub_u32 v30, 544, v{x}", "v_cvt_f32_i32 v31, v30", "v_cmp_gt_u32 vcc, 0x100, v30", "v_cvt_pk_bf16_f32 v31, v31, v31", "v_and_b32 v31, 0xffff, v31", "v_subrev_u32 v31, 0x4280, v31")
        a("v_cndmask_b32 v31, v31, v30, vcc", "v_cmp_lt_u32 vcc, 0x20d, v30")
        if special: a(f"v_or_b32 v30, 1, v{x}")
        a("v_cndmask_b32 v31, v31, v32, vcc")
        if special: a("v_cmp_eq_u32 vcc, 0x25d, v30", "v_cndmask_b32 v31, v31, v33, vcc")
        a(f"v_lshl_add_u32 v{dst}, v31, 1, s{T4_}")
    def g_addr(dst, y0, base, M):
        a(f"v_sub_u32 v30, {y0}, v23", f"v_cmp_lt_u32 vcc, {M}, v30", f"v_lshlrev_b32 v31, 2, v30", f"v_add_u32 v31, {T_TAB + 2*base}, v31", f"v_cndmask_b32 v{dst}, v31, v33, vcc")
    pb = newlabel("PREB"); pw = newlabel("PREW"); pe = newlabel("PREE")
    a(f"s_cmp_eq_u32 s{S_G}, 2", f"s_cbranch_scc1 {pe}")
    a(f"v_mov_b32 v32, {IDX_ZERO}")
    a(f"s_cmp_eq_u32 s{S_G}, 1", f"s_cbranch_scc1 {pb}")
    jl = [newlabel("PRE") for _ in range(4)]
    a(f"v_mov_b32 v33, {T_TAB + 2*IDX_ZERO}")
    for r in range(1, 4): a(f"s_cmp_eq_u32 s{S_ROLE}, {r}", f"s_cbranch_scc1 {jl[r]}")
    a("v_lshlrev_b32 v23, 1, v1")
    for e, (y0, base, M) in enumerate(((93, 389, 61), (92, 389, 61), (94, 388, 62), (93, 388, 62))): g_addr(24 + e, y0, base, M)
    a(f"s_branch {pw}")
    for r, base in ((1, 513), (2, 514)):
        a(f"{jl[r]}:")
        a("v_min_u32 v23, 47, v1", "v_lshlrev_b32 v23, 1, v23")
        for e, y0 in ((0, 64), (1, 63), (3, 62)): g_addr(24 + e, y0, base, 63)
        a("v_mov_b32 v26, v25")
        a(f"s_branch {pw}")
    a(f"{jl[3]}:")
    a("v_cmp_gt_u32 vcc, 9, v1", "v_add_u32 v23, 0x100, v1", "v_mov_b32 v33, 0x200", "v_cndmask_b32 v23, v23, v1, vcc", "v_lshlrev_b32 v23, 1, v23")
    for e in (0, 1, 3):
        if e: a("v_add_u32 v23, 1, v23")
        dr_addr(24 + e, 23, special=True)
    a("v_mov_b32 v26, v25")
    a(f"s_branch {pw}")
    a(f"{pb}:")
    a(f"s_lshl_b32 s{T1_}, s{S_ROLE}, 7", f"s_add_u32 s{T1_}, s{T1_}, 18", f"v_lshl_add_u32 v23, v1, 1, s{T1_}")
    for e in range(3):
        if e: a("v_add_u32 v23, 1, v23")
        dr_addr(24 + e, 23)
    a(f"s_sub_u32 s{T1_}, s{S_ROLE}, 1", f"s_cmp_lt_u32 s{T1_}, 2", f"s_cselect_b32 s{T2_}, 47, 63", f"s_mul_i32 s{T1_}, s{T1_}, {T_G9E - T_G7E}", f"s_add_u32 s{T1_}, s{T1_}, {T_G7E}")
    a(f"s_cmp_eq_u32 s{S_ROLE}, 0", f"s_cselect_b32 s{T1_}, {T_G3}, s{T1_}", f"s_cmp_eq_u32 s{S_ROLE}, 3", f"s_cselect_b32 s{T1_}, {T_DRE}, s{T1_}", f"s_cselect_b32 s{T3_}, 0x100, 0")
    a("v_cmp_gt_u32 vcc, 9, v1", f"v_min_u32 v23, s{T2_}, v1", f"v_add_u32 v30, s{T3_}, v23", "v_cndmask_b32 v23, v30, v23, vcc", f"v_lshl_add_u32 v27, v23, 2, s{T1_}")
    stage_write(a, 1024)
    a(f"v_mov_b32 v24, s{S_ROLE}", f"ds_write_b8 v24, v{VONE} offset:{FL_PRE + 4}")
    a(f"s_branch {pe}")
    a(f"{pw}:")
    stage_write(a, 1536)
    a(f"v_mov_b32 v24, s{S_ROLE}", f"ds_write_b8 v24, v{VONE} offset:{FL_PRE}")
    a(f"{pe}:")
    a(f"s_mul_i32 s{T1_}, s{S_ROLE}, {16*KG_ROW}", f"s_min_u32 s{T2_}, s{T1_}, {KG_T[3]}", f"s_add_u32 s{T2_}, s{T2_}, s{S_GB}")
    a(f"s_lshl_b32 s{T0_}, s{S_G}, 4", f"v_mov_b32 v14, s{T0_}", f"v_add_u32 v15, s{S_ROLE}, v14")
    a(f"v_lshl_add_u32 v{VEM}, v1, 3, s{T2_}")
    for k in range(1, 4): a(f"v_add_u32 v{VEM+k}, {4*KG_ROW*k}, v{VEM}")
    a(f"v_mul_u32_u24 v{VTE}, {KG_ROW}, v2", f"v_lshl_add_u32 v{VTE}, v3, 4, v{VTE}", f"v_add_u32 v{VTE}, s{S_GB}, v{VTE}", f"v_add_u32 v{VTL}, s{T1_}, v{VTE}")
    VDA, VDA2, VB_, VT8, VT16, VG8, VG16, VLN = 6, 7, 8, 9, 10, 11, 13, 12
    a("v_lshlrev_b32 v20, 3, v3", "v_sub_u32 v20, v20, v2", "v_add_u32 v21, 16, v20", "v_lshrrev_b32 v21, 1, v21")
    a("v_and_b32 v22, 1, v2", f"s_add_u32 s{T0_}, s{S_GB}, {T_DRE}", f"v_lshl_add_u32 v21, v21, 2, s{T0_}", f"s_movk_i32 s{T0_}, {T_DRO - T_DRE}", f"s_movk_i32 s{T2_}, {T_G7O - T_G7E}")
    a(f"v_mad_u32_u24 v{VDA}, v22, s{T0_}, v21", f"v_add_u32 v{VDA2}, 640, v{VDA}")
    a(f"v_mad_u32_u24 v23, v22, s{T2_}, v21", f"v_add_u32 v{VG16}, {T_G7E - T_DRE}, v23")
    a("v_lshlrev_b32 v23, 2, v3", "v_sub_u32 v23, v23, v2", f"s_add_u32 s{T0_}, s{S_GB}, {T_G3 + 60}", f"v_lshl_add_u32 v{VG8}, v23, 2, s{T0_}")
    a(f"s_mul_i32 s{T2_}, s{S_G}, {U_SIZE}", f"s_add_u32 s{T2_}, s{T2_}, {C_U}")
    a(f"v_lshl_add_u32 v23, v2, 5, s{T2_}", f"v_lshl_add_u32 v{VB_}, v3, 4, v23")
    a("v_bfe_u32 v20, v1, 2, 2", "v_and_b32 v21, 3, v1", "v_lshl_add_u32 v20, v3, 3, v20")
    a(f"v_lshlrev_b32 v{VNA}, 2, v21")
    a(f"v_lshl_add_u32 v21, v21, 3, s{S_GB}", f"v_lshl_add_u32 v{VT8}, v20, 4, v21", f"v_lshl_add_u32 v{VT16}, v20, 5, v21")
    a(f"v_lshlrev_b32 v{VLN}, 4, v1")
    srd(a, R0, P_WS, 0x240000, WS_ZB1)
    if SWZ: a(f"s_mov_b32 s{CFL}, 0x8080")
    a(f"s_lshl_b32 s{T0_}, s{S_ROLE}, 19", f"s_lshl_b32 s{T1_}, s{S_B2}, 6", f"s_add_u32 s{T0_}, s{T0_}, s{T1_}")
    a(f"s_lshl_b32 s{T1_}, s{S_ROLE}, 16", f"s_lshl_b32 s{T3_}, s{S_CH}, 6", f"s_add_u32 s{T1_}, s{T1_}, s{T3_}", f"s_add_u32 s{T1_}, s{T1_}, {0x200000 - 512*64}")
    if SWZ:
        a(f"s_cmp_eq_u32 s{S_G}, 2", f"s_cselect_b32 s{CZ0}, s{T1_}, s{T0_}", f"s_cselect_b32 s{CSH}, 0x1080, s{CFL}", f"s_cselect_b32 s{T0_}, 1, 3")
        a(f"s_and_b32 s{T0_}, s{T0_}, s{S_ROLE}", f"s_lshl_b32 s{T0_}, s{T0_}, 11", f"s_xor_b32 s{CZ0}, s{CZ0}, s{T0_}", f"s_and_b32 s{CFL}, s{CZ0}, 0x7c0", f"s_xor_b32 s{CZ0}, s{CZ0}, s{CFL}", f"s_xor_b32 s{CZ1}, s{CZ0}, 0x6000")
    else:
        a(f"s_cmp_eq_u32 s{S_G}, 2", f"s_cselect_b32 s{CZ0}, s{T1_}, s{T0_}", f"s_cselect_b32 s{CSH}, 12, 15", f"s_add_u32 s{CZ1}, s{CZ0}, 16384")
    a(f"s_and_b32 s{CXR}, s{S_G}, 1", f"s_lshl_b32 s{CXR}, s{CXR}, 4", f"s_mov_b32 s{CM}, 0x55555555", f"s_mov_b32 s{CM+1}, 0x55555555")
    a(f"s_lshl_b32 s{T0_}, s{S_ROLE}, 8", f"s_add_u32 s{T0_}, s{T0_}, s{S_GB}", f"s_add_u32 s{T0_}, s{T0_}, 36", f"v_lshl_add_u32 v{D1}, v1, 2, s{T0_}")
    a(f"s_movk_i32 s{T0_}, {T_G7O - T_G7E}", f"s_cmp_eq_u32 s{S_ROLE}, 0", f"s_cselect_b32 s{T0_}, {T_G5 - T_G3}, s{T0_}", f"s_cmp_eq_u32 s{S_ROLE}, 3", f"s_cselect_b32 s{T0_}, {T_DRO - T_DRE}, s{T0_}")
    a(f"v_mov_b32 v20, s{S_GB}", f"ds_write_b16 v20, v{VZ} offset:{T_TAB + 2*IDX_ZERO}")
    a(f"s_mov_b32 s{SDL}, s{T0_}", f"v_mov_b32 v{D3}, v28")
    def stage_read():
        lds_wait(a, FL_PRE, 18, "b8")
        a(f"ds_read2st64_b64 v[28:31], v{D3} offset0:0 offset1:1", f"ds_read2st64_b64 v[32:35], v{D3} offset0:2 offset1:3")
    def stage_unpack():
        for k in range(16):
            src = 28 + k // 2; w = f"WORD_{k & 1}"
            if 108 + k in LFR: a(f"v_cvt_f32_u32_sdwa v{108+k}, v{src} dst_sel:DWORD dst_unused:UNUSED_PAD src0_sel:{w}")
            else: a(f"v_add_u32_sdwa v{108+k}, s{S_GB}, v{src} dst_sel:DWORD dst_unused:UNUSED_PAD src0_sel:DWORD src1_sel:{w}")
        a(f"v_add_u32 v{D3}, s{SDL}, v{D2}")
    stage_read()
    a("s_waitcnt lgkmcnt(0)")
    stage_unpack()
    ex = newlabel("EXP")
    if KOFF: a(f"s_lshl_b32 s{T0_}, s{S_G}, 5", f"s_add_u32 s{T0_}, s{T0_}, s{S_I}", f"s_cmp_ge_u32 s{T0_}, {64 + 24}", "s_cbranch_scc1 KC_RECV")
    a(f"s_mov_b32 s{T0_}, {f32(LOG2E_HI)}", f"s_mov_b32 s{T1_}, {f32(LOG2E_LO)}", f"s_mov_b32 s{T2_}, {f32(INV2PI_HI)}", f"s_mov_b32 s{T3_}, {f32(INV2PI_LO)}")
    a(f"s_waitcnt vmcnt(7)")
    a(f"v_lshlrev_b32 v16, 16, v{VLDT}")
    a(f"v_mul_f32 v17, s{T0_}, v16")
    a(f"v_fma_f32 v19, v16, s{T0_}, -v17", f"v_fmac_f32 v19, s{T1_}, v16")
    a("v_exp_f32 v17, v17")
    a(f"v_mul_f32 v19, {f32(math.log(2.0))}, v19")
    a("v_fmac_f32 v17, v17, v19")
    a("v_cvt_pk_bf16_f32 v17, v17, v17", "v_and_b32 v16, 0xffff0000, v17")
    a(f"s_waitcnt vmcnt(5)")
    stamp(a, 2)
    a(f"ds_write_b32 v{VZ}, v{VONE} offset:{FL_PARAM}")
    THH, THL = 68, 70
    for k in range(2): unpack(a, 20 + 2 * k, RAW + k)
    for k in range(2): a(f"v_pk_mul_f32 v[{20+2*k}:{21+2*k}], v[{20+2*k}:{21+2*k}], v[16:17] op_sel_hi:[1,0]")
    a("v_max_f32 v36, v20, v21")
    a(f"v_pk_mul_f32 v[{THH}:{THH+1}], v[22:23], s[{T2_}:{T3_}] op_sel_hi:[1,0]")
    a(f"v_pk_fma_f32 v[{THL}:{THL+1}], v[22:23], s[{T2_}:{T3_}], v[{THH}:{THH+1}] op_sel_hi:[1,0,1] neg_lo:[0,0,1] neg_hi:[0,0,1]")
    a(f"v_pk_fma_f32 v[{THL}:{THL+1}], v[22:23], s[{T2_}:{T3_}], v[{THL}:{THL+1}] op_sel:[0,1,0]")
    T = 90
    def cmul_(dr, di, ar, ai, br, bi, t=T):
        assert di not in (ar, br, bi)
        return [f"v_pk_mul_f32 v[{t}:{t+1}], v[{ai}:{ai+1}], v[{bi}:{bi+1}]",
                f"v_pk_mul_f32 v[{t+2}:{t+3}], v[{ai}:{ai+1}], v[{br}:{br+1}]",
                f"v_pk_fma_f32 v[{di}:{di+1}], v[{ar}:{ar+1}], v[{bi}:{bi+1}], v[{t+2}:{t+3}]",
                f"v_pk_fma_f32 v[{dr}:{dr+1}], v[{ar}:{ar+1}], v[{br}:{br+1}], v[{t}:{t+1}] neg_lo:[0,0,1] neg_hi:[0,0,1]"]
    def cm_(d, x, y, t=T): return cmul_(d, d + 2, x, x + 2, y, y + 2, t)
    def csq_(d, s_, t=T):
        return [f"v_pk_mul_f32 v[{t}:{t+1}], v[{s_+2}:{s_+3}], v[{s_+2}:{s_+3}]",
                f"v_pk_mul_f32 v[{t+2}:{t+3}], v[{s_}:{s_+1}], v[{s_+2}:{s_+3}]",
                f"v_pk_fma_f32 v[{d}:{d+1}], v[{s_}:{s_+1}], v[{s_}:{s_+1}], v[{t}:{t+1}] neg_lo:[0,0,1] neg_hi:[0,0,1]",
                f"v_pk_add_f32 v[{d+2}:{d+3}], v[{t+2}:{t+3}], v[{t+2}:{t+3}]"]
    def cmul(*x): a(*cmul_(*x))
    def csq(*x): a(*csq_(*x))
    CBR, CBI = 32, 34
    sk = newlabel("SK")
    a(f"s_cmp_eq_u32 s{S_ROLE}, 3", f"s_cbranch_scc1 {sk}")
    a("s_waitcnt vmcnt(1)")
    for k in range(2, 6): unpack(a, 20 + 2 * k, RAW + k)
    for k in range(2, 4): a(f"v_pk_mul_f32 v[{20+2*k}:{21+2*k}], v[{20+2*k}:{21+2*k}], v[16:17] op_sel_hi:[1,0]")
    cmul(CBR, CBI, 28, 30, 24, 26)
    a(f"v_max3_f32 v37, abs(v{CBI}), abs(v{CBI+1}), abs(v{CBR})", f"v_max_f32 v37, v37, abs(v{CBR+1})")
    a(f"{sk}:")
    a("s_waitcnt vmcnt(0)")
    a.flush(1)
    a("v_permlane32_swap_b32 v36, v37", "v_max_f32 v36, v36, v37")
    red32(a, "v_max_f32", 36, 38)
    a(f"v_readlane_b32 s{SM}, v36, 0", f"v_readlane_b32 s{SC}, v36, 32")
    a(f"s_add_u32 s{SC}, s{SC}, 0x7fffff", f"s_lshr_b32 s{SC}, s{SC}, 23", f"s_max_u32 s{SC}, s{SC}, 24", f"s_sub_u32 s{SSC}, 269, s{SC}", f"s_lshl_b32 s{SSC}, s{SSC}, 23")
    a(f"v_subrev_f32 v20, s{SM}, v20", f"v_subrev_f32 v21, s{SM}, v21")
    a(f"v_mul_f32 v20, {f32(LOG2E)}, v20", f"v_mul_f32 v21, {f32(LOG2E)}, v21")
    def scale_cb():
        a(f"v_pk_mul_f32 v[{CBR}:{CBR+1}], v[{CBR}:{CBR+1}], s[{SSC}:{SSC+1}] op_sel_hi:[1,0]", f"v_pk_mul_f32 v[{CBI}:{CBI+1}], v[{CBI}:{CBI+1}], s[{SSC}:{SSC+1}] op_sel_hi:[1,0]")
    def anchor(dr, di, l, conj=False):
        lit = {1: "1.0", 2: "2.0"}.get(l, f32(float(l)))
        for e in range(2):
            t = T + 4 * e
            if l != 1: a(f"v_mul_f32 v{t+1}, {lit}, v{THH+e}", f"v_mul_f32 v{t}, {lit}, v{20+e}")
        for e in range(2):
            t = T + 4 * e
            a(f"v_fract_f32 v{t+1}, v{t+1 if l != 1 else THH+e}")
        for e in range(2):
            t = T + 4 * e
            a(f"v_fmac_f32 v{t+1}, {lit}, v{THL+e}")
        for e in range(2):
            t = T + 4 * e
            a(f"v_exp_f32 v{t}, v{t if l != 1 else 20+e}", f"v_cos_f32 v{t+2}, v{t+1}", f"v_sin_f32 v{t+1}, v{t+1}")
        for e in range(2):
            t = T + 4 * e
            a(f"v_mul_f32 v{dr+e}, v{t}, v{t+2}")
            a(f"v_mul_f32 v{di+e}, v{t}, {'-' if conj else ''}v{t+1}")
    em = [0, None]
    def it(cms, row=None, x=None, y=None):
        if em[1]: a(em[1]); em[1] = None
        for k in range(4):
            for c in cms:
                if k < len(c): a(c[k])
        if row is None: return
        t = (98, 76)[em[0] & 1]; em[0] += 1
        for v, tt in ((x, t), (y, t + 2)):
            if v is not None: a(f"v_cvt_pk_f16_f32 v{tt}, v{v}, v{v+2}", f"v_cvt_pk_f16_f32 v{tt+1}, v{v+1}, v{v+3}")
        o = (row & 3) * KG_ROW // 8
        if y is None: em[1] = f"ds_write_b64 v{VEM + row//4}, v[{t}:{t+1}] offset:{8*o}"
        else: em[1] = f"ds_write2_b64 v{VEM + row//4}, v[{t}:{t+1}], v[{t+2}:{t+3}] offset0:{o} offset1:{o + KG_ROW//8}"
    G1, G2, G3 = 40, 44, 48
    VA, VB, VC, VD = 52, 56, 60, 64
    oth = lambda c, p, q: p if c != p else q
    jl = [newlabel("JOB") for _ in range(4)]; jn = newlabel("JOBJ")
    for r in (3, 1, 2): a(f"s_cmp_eq_u32 s{S_ROLE}, {r}", f"s_cbranch_scc1 {jl[r]}")
    anchor(G2, G2 + 2, 128); scale_cb(); anchor(G1, G1 + 2, 1)
    cur = CBR
    for c in range(8):
        nx = oth(cur, VA, VB)
        it([cm_(VC, cur, G2)] + ([cm_(nx, cur, G1, T + 4)] if c < 7 else []), 2 * c, cur, VC); cur = nx
    it([])
    a(f"s_branch {jn}")
    a(f"{jl[1]}:")
    anchor(G2, G2 + 2, 128); scale_cb(); csq(G3, G2); anchor(G1, G1 + 2, 2)
    it([cm_(VA, CBR, G3)]); cur = VA
    it([cm_(VD, VA, G3)])
    for c in range(4):
        nx = oth(cur, VA, VB)
        it([cm_(VC, cur, G2), cm_(nx, cur, G1, T + 4) if c < 3 else csq_(G3, G1, T + 4)], 2 * c, cur, VC); cur = nx
    cur = VD
    for aa in range(4):
        nx = oth(cur, VA, VB)
        it([cm_(VC, cur, G3)] + ([cm_(nx, cur, G2, T + 4)] if aa < 3 else []), 8 + 2 * aa, cur, VC); cur = nx
    it([])
    a(f"s_branch {jn}")
    a(f"{jl[3]}:")
    anchor(G1, G1 + 2, 8, conj=True)
    a(f"v_mov_b32 v{VA}, {f32(32768.0)}", f"v_mov_b32 v{VA+1}, {f32(32768.0)}", f"v_mov_b32 v{VA+2}, 0", f"v_mov_b32 v{VA+3}, 0")
    sc_ = lambda d, x: [f"v_pk_mul_f32 v[{d}:{d+1}], v[{x}:{x+1}], v[{VA}:{VA+1}]", f"v_pk_mul_f32 v[{d+2}:{d+3}], v[{x+2}:{x+3}], v[{VA}:{VA+1}]"]
    it([csq_(G2, G1), sc_(VC, G1)])
    ce, co = VA, VC
    for b in range(8):
        ne, no = oth(ce, VA, VB), oth(co, VC, VD)
        it([] if b == 7 else [sc_(ne, G2) if b == 0 else cm_(ne, ce, G2), cm_(no, co, G2, T + 4)], 2 * b, ce, co); ce, co = ne, no
    it([])
    a(f"ds_write_b8 v15, v{VONE} offset:{FL_G}")
    stamp(a, 3)
    if KOFF: a(f"s_cmp_eq_u32 s{S_G}, 2", "s_cbranch_scc1 KS_G0")
    a(f"s_branch {ex}")
    if KOFF:
        a("KC_SEND:")
        lds_wait(a, FL_NONCE, VNT, "nz", addr=VNA)
        a(f"s_lshl_b32 s{T0_}, s{S_CH}, 12", f"s_lshl_b32 s{T1_}, s{S_ROLE}, 10", f"s_add_u32 s{T0_}, s{T0_}, s{T1_}", f"s_add_u32 s{T0_}, s{T0_}, {hex(WS_KT - 512*4096)}", f"v_add_u32 v24, s{T0_}, v{VLN}")
        a(f"s_mov_b32 s{T1_}, 0xffff", f"v_lshlrev_b32 v25, 16, v{VNT}")
        for r in range(4): a(f"v_cvt_f16_f32 v{20+r}, v{20+r}")
        a(f"s_cmp_lg_u32 s{S_ROLE}, 2", "s_cbranch_scc1 KC_S2")
        a("s_mov_b32 exec_lo, 0", "s_mov_b32 exec_hi, 0xffff0000")
        a(f"v_mov_b32 v20, v{VPR}", f"v_lshrrev_b32 v21, 16, v{VPR}")
        a("s_mov_b64 exec, -1")
        a("KC_S2:")
        for r in range(4): a(f"v_bfi_b32 v{20+r}, s{T1_}, v{20+r}, v{25 if r & 1 else VNT}")
        a(f"global_store_dwordx4 v24, v[20:23], s[{P_WS}:{P_WS+1}] sc1")
        stamp(a, 4)
        a("s_branch KS_G0")
        a("KC_RECV:")
        a(f"s_cmp_eq_u32 s{S_ROLE}, 3", f"s_cbranch_scc1 {ex}")
        a(f"s_lshl_b32 s{T0_}, s{S_CH}, 12", f"s_lshl_b32 s{T1_}, s{S_ROLE}, 10", f"s_add_u32 s{T0_}, s{T0_}, s{T1_}", f"s_add_u32 s{T0_}, s{T0_}, {hex(WS_KT - 512*4096)}", f"v_add_u32 v24, s{T0_}, v{VLN}")
        lds_wait(a, FL_NONCE, VNT, "nz", addr=VNA, sleep=2)
        a(f"v_lshlrev_b32 v25, 16, v{VNT}")
        stamp(a, 2)
        lds_wait(a, FL_G + {0: 0, 1: 4, 2: 16}[ENV("KTRIG", 1)], 17, "b4", sleep=2)
        lp = newlabel("KP"); l1 = newlabel("KPE")
        a(f"s_branch {l1}")
        a(f"{lp}:")
        a("s_sleep 2")
        a(f"{l1}:")
        a(f"global_load_dwordx4 v[20:23], v24, s[{P_WS}:{P_WS+1}] sc1")
        guard(a)
        a("s_waitcnt vmcnt(0)")
        for r in range(4): a(f"v_xor_b32 v{20+r}, v{25 if r & 1 else VNT}, v{20+r}")
        a("v_or3_b32 v26, v20, v21, v22", "v_or_b32 v26, v26, v23", "v_cmp_lt_u32 vcc, 0xffff, v26", f"s_cbranch_vccnz {lp}")
        stamp(a, 3)
        for r in (0, 2): a(f"v_xor_b32 v{20+r}, v{VNT}, v{20+r}")
        for r in range(4): a(f"ds_write_b16 v{IXR[r]}, v{20+r}")
        a(f"s_cmp_lg_u32 s{S_ROLE}, 2", f"s_cbranch_scc1 {ex}")
        a("v_and_b32 v20, 0xffff, v20", "v_lshl_or_b32 v20, v21, 16, v20", f"v_lshlrev_b32 v21, 16, v{VDSK}")
        a("s_mov_b32 exec_lo, 0", "s_mov_b32 exec_hi, 0x10000")
        a(f"ds_write_b64 v14, v[20:21] offset:{C_PAR}")
        a("s_mov_b64 exec, -1")
        a(f"s_branch {ex}")
    a(f"{jl[2]}:")
    anchor(G2, G2 + 2, 128); scale_cb()
    it([csq_(G1, G2), cm_(VD, CBR, G2, T + 4)]); csq(G3, G1); csq(G3, G3)
    it([cm_(VA, CBR, G3), cm_(VC, VD, G3, T + 4)])
    ce, co = VA, VC
    for r in range(4):
        ne, no = oth(ce, VA, VB), oth(co, VC, VD)
        it([cm_(ne, ce, G1)] + ([cm_(no, co, G1, T + 4)] if r < 3 else []), 2 * r, ce, co); ce, co = ne, no
    it([], 8, ce, None)
    a(f"v_mov_b32 v36, {f32(2048.0*LOG2E)}", f"v_mul_f32 v24, s{SM}, v36", "v_max_f32 v24, 0, v24", "v_exp_f32 v24, v24")
    it([])
    a(f"s_sub_u32 s{SIS}, s{SC}, 7", f"s_lshl_b32 s{SIS}, s{SIS}, 23")
    a(f"v_lshlrev_b32 v25, 16, v{VDSK}", f"v_mul_f32 v24, s{SIS}, v24", f"v_mov_b32 v{VPR}, v24")
    a(f"ds_write_b64 v14, v[24:25] offset:{C_PAR}")
    a(f"{jn}:")
    a(f"ds_write_b8 v15, v{VONE} offset:{FL_G}")
    stamp(a, 3); kstamp(a, 2)
    for s in range(8): a(f"ds_read_b128 v[{40+4*s}:{43+4*s}], v{VTL} offset:{64*s}")
    a(f"v_mov_b32 v36, {f32(LOG2E)}", f"v_mul_f32 v36, s{SM}, v36")
    a(f"v_mul_f32 v37, {f32(2048.0)}, v36", "v_max_f32 v37, 0, v37", f"v_add_f32 v37, {f32(23.0)}, v37")
    for r in range(4):
        a(f"v_fma_f32 v{LFR[r]}, v{LFR[r]}, v36, -v37")
    for r in range(4):
        a(f"v_exp_f32 v{LFR[r]}, v{LFR[r]}")
    kstamp(a, 3)
    lds_wait(a, FL_G + 3, 17, "u8", addr=14)
    kstamp(a, 4)
    tr = LdsTrack(a); ids = []
    for s in range(8):
        ids.append(tr.issue(f"ds_read_b128 v[{72+4*s}:{75+4*s}], v{VTE} offset:{KG_T[3]+64*s}"))
    for s in range(8):
        tr.wait(ids[s])
        c = "0" if s < 2 else f"v[{20+4*(s&1)}:{23+4*(s&1)}]"
        a(f"v_mfma_f32_16x16x32_f16 v[{20+4*(s&1)}:{23+4*(s&1)}], v[{40+4*s}:{43+4*s}], v[{72+4*s}:{75+4*s}], {c}")
    for r in range(4): a(f"v_add_f32 v{20+r}, v{20+r}, v{24+r}")
    for r in range(4): a(f"v_mul_f32 v{20+r}, v{20+r}, v{LFR[r]}")
    kstamp(a, 5)
    if KOFF: a(f"s_cmp_eq_u32 s{S_G}, 2", "s_cbranch_scc1 KC_SEND")
    for r in range(4):
        a(f"v_cvt_f16_f32 v{20+r}, v{20+r}")
        a(f"ds_write_b16 v{IXR[r]}, v{20+r}")
    a(f"{ex}:")
    a(f"ds_write_b8 v15, v{VONE} offset:{FL_G+4}")
    a("v_mov_b32 v28, 0", "v_mov_b32 v29, 0", "v_mov_b32 v30, 0", "v_mov_b32 v31, 0", f"v_mov_b32 v32, s{S_GB}")
    a("s_waitcnt vmcnt(0)")
    kstamp(a, 6)
    lds_wait(a, FL_G + 4, 20, "b4", addr=14)
    stamp(a, 4); kstamp(a, 7)
    for e in range(3): a(f"ds_read_u16 v{20+e}, v{I1+e}")
    for e in range(4): a(f"ds_read_u16 v{23+e}, v{I2+e}")
    a("s_mov_b64 exec, 1")
    a(f"ds_write_b128 v32, v[28:31] offset:{R_WS5}", f"ds_write_b128 v32, v[28:31] offset:{R_WS9}", f"ds_write_b128 v32, v[28:31] offset:{R_WS3 + 192*16}")
    a("s_mov_b64 exec, -1")
    a("s_waitcnt lgkmcnt(7)")
    a("v_lshl_or_b32 v28, v21, 16, v20", "v_lshl_or_b32 v29, v22, 16, v21")
    a(f"ds_write_b32 v{D1}, v28 offset:{T_DRE}", f"ds_write_b32 v{D1}, v29 offset:{T_DRO}")
    a("s_waitcnt lgkmcnt(5)")
    a("v_lshl_or_b32 v30, v24, 16, v23", "v_lshl_or_b32 v31, v26, 16, v25")
    a(f"ds_write_b32 v{D2}, v30", f"ds_write_b32 v{D3}, v31")
    a(f"ds_write_b8 v15, v{VONE} offset:{FL_G+8}")
    kstamp(a, 8)
    lds_wait(a, FL_G + 8, 20, "b4", addr=14)
    stamp(a, 5)
    PR, FT0, FT1, ACCL, ACCH, ZQ = 16, 18, 19, 20, 24, 28
    VZA, VUA = VDA, VDA2
    LA = ENV("CLA", 6); RSV = ENV("CRSV", 5); NF = ENV("CNF", 2)
    jl = [newlabel("CV") for _ in range(4)]; zend = newlabel("CVE")
    slow = []
    a(f"ds_read_b64 v[{PR}:{PR+1}], v14 offset:{C_PAR}")
    for r in range(1, 4): a(f"s_cmp_eq_u32 s{S_ROLE}, {r}", f"s_cbranch_scc1 {jl[r]}")
    for m in range(4):
        if m: a(f"{jl[m]}:")
        lo, hi = 2 * m, 2 * m + 1
        acc = {lo: ACCL, hi: ACCH}
        ops = []
        if m >= 2:
            for j in (lo, hi): ops.append((j, ("D", 32), ("U", 8 * j - 32)))
        for p in range(max(8 * lo - 16, -7), 8 * hi + 1):
            for j in (lo, hi):
                ks = 8 * j - p
                if 0 <= ks <= 16: ops.append((j, ("D", ks), ("U", p)))
        ncomb0 = len(ops)
        for j in (lo, hi):
            for kind in (3, 5):
                for b in range(6):
                    if 2 <= j - b <= 4: ops.append((j, ("W", kind, b), ("G", kind, j - b)))
            for kind in (7, 9):
                for b in range(2):
                    if j - 2 * b - 4 >= 0: ops.append((j, ("W", kind, b), ("G", kind, j - 2 * b - 4)))
        nops = len(ops)
        first, last = {}, {}
        for k, (j, A, B) in enumerate(ops):
            for key in (A, B):
                first.setdefault(key, k); last[key] = k
        lastlo = max(k for k, o in enumerate(ops) if o[0] == lo)
        pool = list(range(32, 128, 4))
        reg, lid = {}, {}
        def load(tr, key):
            rg = pool.pop(0); reg[key] = rg
            if (XP & 8 and key[0] == "G") or (XP & 16 and key[0] == "W") or (XP & 32 and key[0] == "U"):
                lid[key] = -100; return
            if key[0] == "D":
                ksv = -2 if key[1] == 32 else key[1]
                o = (16 - ksv) * 16
                ad, o = (VDA, o) if o + 3 <= 255 else (VDA2, o - 160)
                tr.issue(f"ds_read2_b32 v[{rg}:{rg+1}], v{ad} offset0:{o} offset1:{o+1}")
                lid[key] = tr.issue(f"ds_read2_b32 v[{rg+2}:{rg+3}], v{ad} offset0:{o+2} offset1:{o+3}")
            elif key[0] == "G":
                _, kind, ix = key
                if kind in (3, 5): o = (4 - ix) * 16 + (64 if kind == 5 else 0); ad = VG8
                else: o = (3 - ix) * 8 + (96 if kind == 9 else 0); ad = VG16
                tr.issue(f"ds_read2_b32 v[{rg}:{rg+1}], v{ad} offset0:{o} offset1:{o+1}")
                lid[key] = tr.issue(f"ds_read2_b32 v[{rg+2}:{rg+3}], v{ad} offset0:{o+2} offset1:{o+3}")
            elif key[0] == "U":
                lid[key] = tr.issue(f"ds_read_b128 v[{rg}:{rg+3}], v{VB_} offset:{64*(key[1]+7)}")
            else:
                _, kind, b = key
                if kind in (3, 5): o = (R_WS3 if kind == 3 else R_WS5) + 512 * b; ad, st = VT8, 64
                else: o = (R_WS7 if kind == 7 else R_WS9) + 1024 * b; ad, st = VT16, 128
                tr.issue(f"ds_read_b64_tr_b16 v[{rg}:{rg+1}], v{ad} offset:{o}")
                lid[key] = tr.issue(f"ds_read_b64_tr_b16 v[{rg+2}:{rg+3}], v{ad} offset:{o+st}")
        keys = sorted(first, key=lambda k_: first[k_])
        tr = LdsTrack(a)
        for key in keys:
            if key[0] == "D": load(tr, key)
        for key in keys:
            if key[0] == "G" and len(pool) > RSV: load(tr, key)
        pend = [k_ for k_ in keys if k_ not in reg]
        a(f"v_lshlrev_b32 v{FT0}, 3, v3", f"v_sub_u32 v{FT0}, v{VB_}, v{FT0}")
        a(f"v_lshrrev_b32 v{FT1}, 2, v2", f"v_lshl_add_u32 v{FT1}, v{FT1}, 2, v3", f"v_and_b32 v{ZQ}, 3, v2", f"v_lshlrev_b32 v{ZQ}, 4, v{ZQ}")
        if SWZ: a(f"v_mul_u32_u24 v{FT1}, s{CSH}, v{FT1}", f"v_xor_b32 v{FT1}, s{CFL}, v{FT1}")
        else: a(f"v_lshlrev_b32 v{FT1}, s{CSH}, v{FT1}")
        a("s_waitcnt lgkmcnt(0)")
        a(f"v_mov_b32 v{VUA}, v{FT0}", f"v_add_u32 v{VZA}, v{FT1}, v{ZQ}")
        a(f"v_xor_b32 v{VLN}, s{CXR}, v{VLN}")
        lds_wait(a, FL_UF, FT0, "b4")
        a(f"s_setprio {eval(os.environ.get('CPRIO', '[1,1,1,1]'))[m]}")
        stamp(a, 6); cstamp(a, 1)
        if XP & 4: a(f"v_mov_b32 v{FT0}, 0", f"s_cmp_lg_u32 s{S_G}, 0", f"s_cbranch_scc1 {zend}")
        for key in lid: lid[key] = -100
        tr = LdsTrack(a)
        ud = {}
        fill = []
        fill.append(("lds", f"ds_read_b64 v[{ZQ}:{ZQ+1}], v{VUA} offset:{480 + 512*lo}", 2))
        fill.append(("ldsU", f"ds_read_b64 v[{ZQ+2}:{ZQ+3}], v{VUA} offset:{480 + 512*hi}", 2))
        for ti, j in enumerate((lo, hi)):
            fill.append(("alloc", j, 5))
            if ti == 0: fill.append(("waitU", None, 5))
            for e in range(4):
                sel = "op_sel:[1,0,0] " if e & 1 else ""
                fill.append(("f", (lambda j=j, e=e, ti=ti, sel=sel: f"v_fma_mix_f32 v{ud[j]+e}, v{ZQ+2*ti+e//2}, v{PR+1}, 0 {sel}op_sel_hi:[1,0,0]"), 5))
            for p in range(2):
                fill.append(("f", (lambda j=j, p=p, ti=ti: f"v_cvt_pk_bf16_f32 v{ZQ+2*ti+p}, v{ud[j]+2*p}, v{ud[j]+2*p+1}"), 5))
            for p in range(2):
                fill.append(("f", (lambda j=j, p=p, ti=ti: f"v_lshlrev_b32 v{ud[j]+2*p}, 16, v{ZQ+2*ti+p}"), 5))
                fill.append(("f", (lambda j=j, p=p, ti=ti: f"v_and_b32 v{ud[j]+2*p+1}, 0xffff0000, v{ZQ+2*ti+p}"), 5))
        def epi(j, ti):
            y = acc[j]; z = ZQ + 2 * ti; out = []
            for p in range(4): out.append(lambda p=p: f"v_mul_f32 v{y+p}, v{y+p}, v{PR}")
            for p in range(2): out.append(lambda p=p: f"v_cvt_pk_bf16_f32 v{z+p}, v{y+2*p}, v{y+2*p+1}")
            for p in range(2):
                out.append(lambda p=p: f"v_lshlrev_b32 v{y+2*p}, 16, v{z+p}")
                out.append(lambda p=p: f"v_and_b32 v{y+2*p+1}, 0xffff0000, v{z+p}")
            for p in range(4): out.append(lambda p=p: f"v_add_f32 v{y+p}, v{y+p}, v{ud[j]+p}")
            for p in range(2): out.append(lambda p=p: f"v_cvt_pk_bf16_f32 v{z+p}, v{y+2*p}, v{y+2*p+1}")
            for p in range(2): out.append(lambda p=p: f"v_min_u32 v{z+p}, -2, v{z+p}")
            return out
        for f in epi(lo, 0): fill.append(("f", f, lastlo + 2))
        fill.append(("lds", f"ds_read_u8 v{FT0}, v{VZ} offset:{FL_S6 + m}", nops - 4))
        fill.append(("lds", f"ds_read_b128 v[{ACCL}:{ACCL+3}], v{VLN} offset:{G_BASE + R_RED + 1024*m}", nops - 4))
        uid = [None]
        def do_fill(n, k):
            while n > 0 and fill:
                kind, t, e = fill[0]
                if e > k: return
                if kind == "alloc":
                    if len(pool) < 2: return
                    ud[t] = pool.pop(); fill.pop(0); continue
                fill.pop(0)
                if kind == "f":
                    if XP & 2 and "v_min" not in t(): continue
                    a(t())
                elif kind == "lds": tr.issue(t)
                elif kind == "ldsU": uid[0] = tr.issue(t)
                elif kind == "waitU": tr.wait(uid[0]); continue
                n -= 1
        kW = ncomb0 - LA if nops > ncomb0 else None
        wok = [False]
        def issue_loads(k, nmax):
            while pend and pool and nmax > 0:
                key = pend[0]
                if first[key] - k > (LA if key[0] != "G" else LA + 4): return
                if key[0] == "W" and not wok[0]:
                    alt = [x for x in pend if x[0] != "W" and first[x] - k <= LA + 2]
                    if not alt: return
                    key = alt[0]
                pend.remove(key); load(tr, key); nmax -= 1
        issue_loads(0, RSV)
        started = set()
        for k, (j, A, B) in enumerate(ops):
            assert A in reg and B in reg, (m, k, A, B)
            tr.wait(max(lid[A], lid[B]))
            c = f"v[{acc[j]}:{acc[j]+3}]" if j in started else "0"
            started.add(j)
            a(f"v_mfma_f32_16x16x32_f16 v[{acc[j]}:{acc[j]+3}], v[{reg[A]}:{reg[A]+3}], v[{reg[B]}:{reg[B]+3}], {c}")
            for key in (A, B):
                if last[key] == k: pool.append(reg[key])
            if kW is not None and k == kW - 3:
                wfid = tr.issue(f"ds_read_b32 v{FT0}, v14 offset:{FL_G + 12}")
            if k == kW:
                tr.wait(wfid)
                sl = newlabel("WS"); bk = newlabel("WB")
                a(f"v_cmp_ne_u32 vcc, s{S_ONES}, v{FT0}", f"s_cbranch_vccnz {sl}")
                a(f"{bk}:")
                slow.append((sl, bk))
                wok[0] = True
                cstamp(a, 3)
            issue_loads(k + 1, 2)
            do_fill(NF, k)
            if k == ncomb0 // 2: cstamp(a, 2)
            if k == ncomb0 - 1: cstamp(a, 4)
        cstamp(a, 5)
        do_fill(1000, 1000)
        assert not fill and not pend
        stamp(a, 7)
        for f in epi(hi, 1): a(f())
        if m < 3: a(f"s_branch {zend}")
    a(f"{zend}:")
    cstamp(a, 6)
    gA = newlabel("ZA"); gC = newlabel("ZC"); zs = newlabel("ZS"); zb = newlabel("ZB"); zc = newlabel("ZCB"); zd = newlabel("ZD")
    a("s_waitcnt lgkmcnt(0)")
    a(f"s_cmp_lg_u32 s{S_G}, 1", f"s_cbranch_scc1 {gA}")
    a(f"v_cmp_ne_u32 vcc, 1, v{FT0}", f"s_cbranch_vccnz {zs}")
    a(f"{zb}:")
    a(f"s_mov_b64 exec, s[{CM}:{CM+1}]")
    for k in range(4): a(f"v_swap_b32 v{ZQ+k}, v{ACCL+k}")
    a("s_mov_b64 exec, -1")
    cstamp(a, 8)
    a(f"buffer_store_dwordx4 v[{ZQ}:{ZQ+3}], v{VZA}, s[{R0}:{R0+3}], s{CZ1} offen sc1")
    a(f"buffer_store_dwordx4 v[{ACCL}:{ACCL+3}], v{VZA}, s[{R0}:{R0+3}], s{CZ0} offen sc1")
    a(f"s_branch {zd}")
    for (sl, bk) in slow:
        a(f"{sl}:")
        lds_wait(a, FL_G + 12, FT0, "b4", addr=14)
        a(f"s_branch {bk}")
    a(f"{zs}:")
    a(f"v_mov_b32 v{FT1}, s{S_ROLE}")
    l = newlabel("ZW")
    a(f"{l}:")
    a(f"ds_read_u8 v{FT0}, v{FT1} offset:{FL_S6}")
    guard(a)
    a("s_waitcnt lgkmcnt(0)")
    a(f"v_cmp_ne_u32 vcc, 1, v{FT0}", f"s_cbranch_vccnz {l}")
    a(f"v_lshl_add_u32 v{FT1}, v{FT1}, 10, v{VLN}")
    a(f"ds_read_b128 v[{ACCL}:{ACCL+3}], v{FT1} offset:{G_BASE + R_RED}")
    a("s_waitcnt lgkmcnt(0)")
    a(f"s_branch {zb}")
    a(f"{gA}:")
    a(f"s_cmp_lg_u32 s{S_G}, 0", f"s_cbranch_scc1 {gC}")
    a(f"v_mov_b32 v{FT1}, s{S_ROLE}", f"v_lshl_add_u32 v{FT0}, v{FT1}, 10, v{VLN}")
    a(f"ds_write_b128 v{FT0}, v[{ZQ}:{ZQ+3}] offset:{G_BASE + R_RED}")
    a(f"ds_write_b8 v{FT1}, v{VONE} offset:{FL_S6}")
    cstamp(a, 8)
    a(f"s_branch {zd}")
    a(f"{gC}:")
    cstamp(a, 8)
    a(f"buffer_store_dwordx4 v[{ZQ}:{ZQ+3}], v{VZA}, s[{R0}:{R0+3}], s{CZ0} offen sc1")
    a(f"{zd}:")
    stamp(a, 8)
    if DBG:
        a(f"s_mul_i32 s{T0_}, s{S_ROLE}, 1280", f"s_add_u32 s{T1_}, s{T0_}, s{S_GB}", f"v_lshl_add_u32 v20, v1, 2, s{T1_}")
        a(f"s_mul_i32 s{T1_}, s{S_CH}, 5376", f"s_add_u32 s{T1_}, s{T1_}, s{T0_}", f"s_add_u32 s{T1_}, s{T1_}, {hex(WS_DBG)}", f"v_lshl_add_u32 v21, v1, 2, s{T1_}")
        for k in range(5 + 1):
            a(f"ds_read_b32 v22, v20 offset:{R2 + 256*k}", "s_waitcnt lgkmcnt(0)", f"global_store_dword v21, v22, s[{P_WS}:{P_WS+1}] offset:{256*k}")
        a(f"ds_read_b32 v22, v14 offset:{C_PAR}", f"s_lshl_b32 s{T1_}, s{S_CH}, 2", f"s_add_u32 s{T1_}, s{T1_}, {hex(WS_DBG + 0x300000)}", f"v_mov_b32 v21, s{T1_}")
        a("s_waitcnt lgkmcnt(0)", f"global_store_dword v21, v22, s[{P_WS}:{P_WS+1}]")
    a(f"s_lshl_b32 s{T0_}, s{S_G}, 2", f"s_add_u32 s{T0_}, s{T0_}, s{S_ROLE}", f"v_mov_b32 v8, s{T0_}")
    a("s_waitcnt vmcnt(0)")
    a(f"ds_write_b8 v8, v{VONE} offset:{FL_ZDONE}")


def gen_wjobs(a):
    WA, WD = 10, 11
    end = newlabel("WJE"); w1 = newlabel("WJ1"); w2 = newlabel("WJ2")
    a(f"s_cmp_eq_u32 s{S_WAVE}, 2", f"s_cbranch_scc1 {w2}")
    if XP & 1: a(f"s_branch {w2}")
    a(f"s_add_u32 s{T0_}, s{S_WAVE}, 1", f"s_lshr_b32 s{T0_}, s{T0_}, 2", f"s_cmp_eq_u32 s{S_WAVE}, 1", f"s_cselect_b32 s{T0_}, 2, s{T0_}", f"s_lshl_b32 s{T0_}, s{T0_}, 10")
    a(f"v_lshl_add_u32 v{WA}, v1, 4, s{T0_}", f"v_add_u32 v{WD}, {G_BASE}, v{WA}")
    lds_wait(a, FL_UF, 12, "b4")
    a(f"s_setprio {ENV('WPRIO', 3)}")
    for g in range(3):
        E = 20 + 12 * g; o = C_U + U_SIZE * g + 2 * (240 - 16)
        a(f"ds_read_b128 v[{E}:{E+3}], v{WA} offset:{o}", f"ds_read_b128 v[{E+4}:{E+7}], v{WA} offset:{o+16}", f"ds_read_b64 v[{E+8}:{E+9}], v{WA} offset:{o+32}")
    a(f"s_cmp_eq_u32 s{S_WAVE}, 1", f"s_cbranch_scc1 {w1}")
    for full in (1, 0):
        if not full: a(f"{w1}:")
        for g in range(3):
            if g == 2: a(f"s_cmp_lt_u32 s{S_I}, 24", f"s_cbranch_scc1 {end}")
            E = lambda i: 20 + 12 * g + i
            O = lambda i: 56 + i
            T = lambda i: 65 + i
            Q = lambda i: 72 + i
            X = lambda i: 79 + i
            Y = lambda i: 85 + i
            W7, W9 = 92, 96
            a(f"ds_read_b32 v12, v{VZ} offset:{FL_G + 16*g + 4}")
            if g == 0: a("s_waitcnt lgkmcnt(7)")
            n = 8 if full else 7
            for i in range(1, n + 1): a(f"v_alignbit_b32 v{O(i)}, v{E(i+1)}, v{E(i)}, 16")
            for i in range(1, n + 1): a(f"v_pk_add_f16 v{T(i)}, v{O(i)}, v{E(i+1)}")
            for i in range(1, 5): a(f"v_pk_add_f16 v{X(i)}, v{T(i)}, v{O(i+1)}")
            for i in (range(2, 8) if full else range(3, 7)): a(f"v_pk_add_f16 v{Q(i)}, v{T(i)}, v{T(i+1)}")
            ok = newlabel("WJK")
            a("s_waitcnt lgkmcnt(0)")
            a(f"v_cmp_eq_u32 vcc, s{S_ONES}, v12", f"s_cbranch_vccnz {ok}")
            lds_wait(a, FL_G + 16 * g + 4, 12, "b4", sleep=1)
            a(f"{ok}:")
            off = G_SIZE * (g & 1)
            if g == 2: a(f"v_add_u32 v{WD}, {2*G_SIZE}, v{WD}")
            a(f"ds_write_b128 v{WD}, v[{X(1)}:{X(4)}] offset:{off + R_WS3}")
            for i in (range(2, 7) if full else range(3, 7)): a(f"v_pk_add_f16 v{Y(i)}, v{E(i)}, v{Q(i)}")
            a(f"ds_write_b128 v{WD}, v[{Y(3)}:{Y(6)}] offset:{off + R_WS5 + 16}")
            if full:
                for i in range(5, 8): a(f"v_pk_add_f16 v{X(i)}, v{T(i)}, v{O(i+1)}")
                for k in range(4): a(f"v_pk_add_f16 v{W7+k}, v{Q(2+k)}, v{X(4+k)}")
                a(f"ds_write_b128 v{WD}, v[{W7}:{W7+3}] offset:{off + R_WS7}")
                for k in range(4): a(f"v_pk_add_f16 v{W9+k}, v{Y(2+k)}, v{Q(4+k)}")
                a(f"ds_write_b128 v{WD}, v[{W9}:{W9+3}] offset:{off + R_WS9 + 16}")
            a(f"ds_write_b8 v116, v{VONE} offset:{FL_G + 16*g + 12}")
        a(f"s_branch {end}")
    a(f"{w2}:")
    for g in range(3): a(f"ds_write_b8 v116, v{VONE} offset:{FL_G + 16*g + 12}")
    if PF2 > PF1 or PFD:
        W2 = ENV("PF2W", 14)
        a(f"s_sub_u32 s{T2_}, s{S_I}, {ENV('PF2B', 18)}", f"s_and_b32 s{T2_}, s{T2_}, 31", f"s_cmp_ge_u32 s{T2_}, {W2}", f"s_cbranch_scc1 {end}")
        pf_lane(a, 100, 101)
        lds_wait(a, FL_UF, 12, "b4", sleep=1)
        if PF2 > PF1:
            pf_gu(a, 100, T2_, W2, PF1, PF2, 102, "KS_PF2D")
            a("KS_PF2D:")
        if PFD:
            a(f"s_sub_u32 s{T2_}, {W2-1}, s{T2_}")
            pf_down(a, T2_, W2, 0, PFD, 100, 120, end)
    a(f"{end}:")

def gen(a):
    label = NAME + "_kernel"
    a(f".globl {label}", ".p2align 8", f".type {label},@function", f"{label}:")
    a("s_cmp_ge_u32 s2, 256", "s_cbranch_scc1 KS_END")
    stamp_begin(a)
    a("s_load_dwordx16 s[4:19], s[0:1], 0", "s_load_dwordx16 s[20:35], s[0:1], 64", f"s_load_dwordx2 s[{P_WS}:{P_WS+1}], s[0:1], 128")
    a(f"v_readfirstlane_b32 s{S_WAVE}, v0", f"s_lshr_b32 s{S_WAVE}, s{S_WAVE}, 6")
    a(f"s_and_b32 s{S_XC}, s2, 7", f"s_lshr_b32 s{S_I}, s2, 3")
    if ENV("CPF", 1):
        a(f"s_cmp_lg_u32 s{S_WAVE}, 0", "s_cbranch_scc1 KS_CPE")
        a("s_getpc_b64 s[42:43]")
        a("KS_PC:")
        a(f"s_and_b32 s{T0_}, s{S_I}, 3", f"s_lshl_b32 s{T0_}, s{T0_}, 13", f"v_lshl_add_u32 v126, v0, 7, s{T0_}", "v_min_u32 v126, KS_END-KS_PC, v126")
        a("global_load_dword v127, v126, s[42:43]")
        a("KS_CPE:")
    if ENV("REMAP", 1):
        a(f"s_add_u32 s{T0_}, s{S_WAVE}, 8", f"s_sub_u32 s{T1_}, s{S_WAVE}, 4", f"s_cmp_lt_u32 s{S_WAVE}, 8", f"s_cselect_b32 s{T0_}, s{T0_}, s{T1_}")
        a(f"s_cmp_lt_u32 s{S_WAVE}, 4", f"s_cselect_b32 s{S_WAVE}, s{S_WAVE}, s{T0_}")
    a("v_and_b32 v1, 63, v0", "v_and_b32 v2, 15, v1", "v_lshrrev_b32 v3, 4, v1", f"v_mov_b32 v{VZ}, 0", f"v_mov_b32 v{VONE}, 1")
    a(f"s_mov_b32 s{S_GUARD}, {GUARD}", f"s_mov_b32 s{S_ONES}, 0x01010101")
    a(f"s_lshl_b32 s{S_B2}, s{S_XC}, 5", f"s_add_u32 s{S_B2}, s{S_B2}, s{S_I}")
    a(f"s_mul_i32 s{S_BLK}, s{S_XC}, 18", f"s_add_u32 s{S_BLK}, s{S_BLK}, s{S_I}")
    a(f"s_cmp_lt_u32 s{S_WAVE}, 4", "s_cbranch_scc1 KS_L")
    a(f"s_cmp_ge_u32 s{S_WAVE}, 12", "s_cbranch_scc1 KS_X")
    a("s_setprio 2")
    a(f"s_lshr_b32 s{S_G}, s{S_WAVE}, 2", f"s_sub_u32 s{S_G}, s{S_G}, 1")
    a(f"s_mul_i32 s{S_ROLE}, s{S_G}, 3", f"s_xor_b32 s{S_ROLE}, s{S_ROLE}, s{S_WAVE}", f"s_and_b32 s{S_ROLE}, s{S_ROLE}, 3")
    a(f"s_lshl_b32 s{S_CH}, s{S_B2}, 1", f"s_add_u32 s{S_CH}, s{S_CH}, s{S_G}")
    a(f"s_lshl_b32 s{T0_}, s{S_ROLE}, 11", f"s_add_u32 s{T0_}, s{T0_}, {C_STG}", f"v_lshl_add_u32 v28, v1, 3, s{T0_}")
    pre_ixlf(a)
    a("KS_GRP:")
    gen_group(a)
    a(f"s_cmp_lt_u32 s{S_I}, 18", "s_cbranch_scc1 KS_T")
    a("s_waitcnt lgkmcnt(0)")
    endwave(a)
    a("KS_X:")
    a(f"s_cmp_lt_u32 s{S_I}, 24", "s_cbranch_scc1 KS_X2")
    a(f"s_setprio {ENV('KCPRIO', 2)}")
    a("KS_XC:")
    a(f"s_mov_b32 s{S_G}, 2", f"s_add_u32 s{S_ROLE}, s{S_WAVE}, 3", f"s_and_b32 s{S_ROLE}, s{S_ROLE}, 3")
    a(f"s_lshl_b32 s{S_CH}, s{S_XC}, 3", f"s_and_b32 s{T0_}, s{S_I}, 7", f"s_add_u32 s{S_CH}, s{S_CH}, s{T0_}", f"s_add_u32 s{S_CH}, s{S_CH}, 512")
    a(f"s_lshl_b32 s{T0_}, s{S_ROLE}, 11", f"s_add_u32 s{T0_}, s{T0_}, {C_STG}", f"v_lshl_add_u32 v28, v1, 3, s{T0_}")
    a("s_branch KS_GRP")
    a("KS_X2:")
    a(f"s_cmp_lt_u32 s{S_I}, 8", "s_cbranch_scc1 KS_X3")
    a(f"s_sub_u32 s{T5_}, s{S_WAVE}, 8")
    a("s_branch KS_LN1")
    a("KS_X3:")
    a(f"s_lshl_b32 s{T0_}, s2, 4", f"s_add_u32 s{T0_}, s{T0_}, s{S_WAVE}", f"s_cmp_lg_u32 s{T0_}, {16*ENV('NPUB', 2) + 12}", "s_cbranch_scc1 KS_X3B")
    a("s_setprio 3")
    a(f"s_memrealtime s[{T0_}:{T1_}]")
    a("v_and_b32 v6, 3, v1", "v_lshlrev_b32 v7, 2, v6", "v_min_u32 v6, 2, v6", "v_lshlrev_b32 v6, 2, v6", "v_cmp_eq_u32 vcc, 3, v1")
    a("s_waitcnt lgkmcnt(0)")
    a(f"v_mov_b32 v8, s{T0_}", f"v_mov_b32 v9, s{T1_}", "v_alignbit_b32 v8, v8, v8, v6", f"v_cndmask_b32 v9, v{VZ}, v9, vcc", "v_xor_b32 v8, v8, v9")
    a("v_and_b32 v9, 0xf0000fff, v8", "v_and_b32 v10, 0xfff000, v8", "v_lshl_or_b32 v9, v10, 4, v9", "v_lshrrev_b32 v10, 12, v8", "v_and_b32 v10, 0xf000, v10")
    a("v_or3_b32 v9, v9, v10, v9", "v_or_b32 v9, 0x80000000, v9")
    a("s_mov_b64 exec, 15")
    a(f"global_store_dword v7, v9, s[{P_DBG}:{P_DBG+1}] sc1")
    if SPIN: a(f"v_mov_b32 v8, s{T0_}", f"global_store_dword v7, v8, s[{P_DBG}:{P_DBG+1}] offset:64 sc1")
    a("s_mov_b64 exec, -1")
    a("s_setprio 0")
    a("KS_X3B:")
    if KOFF:
        a(f"s_setprio {ENV('KPPRIO', 3)}")
        a("s_branch KS_XC")
    a("s_waitcnt lgkmcnt(0)")
    a("s_barrier")
    a("s_branch KS_G")
    a("KS_X4:")
    a(f"s_cmp_lt_u32 s{S_I}, 18", "s_cbranch_scc1 KS_G")
    a("s_waitcnt vmcnt(0) lgkmcnt(0)")
    endwave(a)
    a("KS_L:")
    a("v_lshlrev_b32 v6, 2, v0", f"ds_write_b32 v6, v{VZ}")
    a("v_mov_b32 v8, 0", "v_mov_b32 v9, 0", f"s_min_u32 s{T0_}, s{S_WAVE}, 2", f"s_mul_i32 s{T0_}, s{T0_}, {U_SIZE}", "v_min_u32 v6, 59, v1", f"v_lshl_add_u32 v6, v6, 3, s{T0_}")
    a(f"ds_write_b64 v6, v[8:9] offset:{C_U}")
    a(f"s_mov_b32 s{T5_}, s{S_WAVE}")
    a(f"s_sub_u32 s{T0_}, s{S_I}, 8", f"s_cmp_lt_u32 s{T0_}, 16", "s_cbranch_scc0 KS_L0")
    a("KS_LN1:")
    a("s_setprio 3")
    gen_ln1(a)
    if NLL or NL2:
        if not NL: pf_lane(a, 46, 47)
        a(f"s_cmp_ge_u32 s{S_I}, 18", "s_cbranch_scc1 KS_LL2")
        if NLL:
            a(f"s_mul_i32 s{T2_}, s{S_WAVE}, 10", f"s_add_u32 s{T2_}, s{T2_}, s{S_I}", f"s_sub_u32 s{T2_}, s{T2_}, 8")
            pf_gu(a, 46, T2_, 40, PFA, PFA + 10 * NLL, 47, "KS_LLE")
        a("s_branch KS_LLE")
        a("KS_LL2:")
        if NL2:
            a(f"s_mul_i32 s{T2_}, s{S_WAVE}, 6", f"s_add_u32 s{T2_}, s{T2_}, s{S_I}", f"s_sub_u32 s{T2_}, s{T2_}, 18")
            pf_gu(a, 46, T2_, 24, PFA + 10 * NLL, PF0, 47, "KS_LLE")
        a("KS_LLE:")
    a(f"s_mov_b32 s{S_G}, 1")
    a("s_branch KS_L2B")
    a("KS_L0:")
    a(f"s_and_b32 s{T0_}, s{S_I}, 15", f"s_lshl_b32 s{T1_}, s{S_XC}, 4", f"s_add_u32 s{T0_}, s{T0_}, s{T1_}")
    a("v_and_b32 v59, 3, v1", "v_lshlrev_b32 v59, 2, v59")
    a(f"s_lshl_b32 s{T4_}, s{T0_}, 6", f"s_add_u32 s{T1_}, s{T4_}, {hex(WS_FLAG1)}", f"v_add_u32 v7, s{T1_}, v59")
    a(f"s_mul_i32 s{T1_}, s{T0_}, {CLR_WG}", f"s_add_u32 s{T1_}, s{T1_}, {hex(WS_CLR)}")
    a("v_lshlrev_b32 v6, 4, v0")
    a("v_mov_b32 v12, -1", "v_mov_b32 v13, -1", "v_mov_b32 v14, -1", "v_mov_b32 v15, -1")
    a("s_setprio 3")
    pf_lane(a, 16, 17)
    a("s_waitcnt lgkmcnt(0)")
    a(f"s_add_u32 s{R1}, s{P_WS}, s{T1_}", f"s_addc_u32 s{R1+1}, s{P_WS+1}, 0", f"s_mov_b32 s{R1+2}, {CLR_WG}", f"s_mov_b32 s{R1+3}, 0x20000")
    if ENV("UPRE", 0):
        srd(a, R0, P_WS, 0xC00000)
        a(f"s_lshl_b32 s{T2_}, s{S_WAVE}, 3", f"s_xor_b32 s{T2_}, s{T2_}, s{S_B2}", f"s_lshl_b32 s{T2_}, s{T2_}, 13")
        a(f"s_and_b32 s{T3_}, s{S_I}, 3", f"s_lshl_b32 s{T0_}, s{S_XC}, 2", f"s_add_u32 s{T3_}, s{T3_}, s{T0_}", f"s_lshl_b32 s{T3_}, s{T3_}, 13")
        a(f"s_add_u32 s{T0_}, s{T3_}, {256*8192}", f"s_cmp_eq_u32 s{S_WAVE}, 2", f"s_cselect_b32 s{T2_}, s{T0_}, s{T2_}")
        a(f"s_add_u32 s{T0_}, s{T3_}, {hex(WS_KT)}", f"s_cmp_eq_u32 s{S_WAVE}, 3", f"s_cselect_b32 s{T2_}, s{T0_}, s{T2_}")
        a(f"s_lshl_b32 s{T0_}, s{S_I}, 2", f"s_add_u32 s{T0_}, s{T0_}, s{S_WAVE}", f"s_and_b32 s{T0_}, s{T0_}, 0x72", f"s_cmp_gt_u32 s{T0_}, 0x62", f"s_cselect_b32 s{T0_}, 0, s{T0_}")
        a(f"s_bitcmp1_b32 s{T0_}, 1", "s_cbranch_scc1 KS_UPE")
        a("v_lshlrev_b32 v125, 7, v1", f"buffer_load_dword v124, v125, s[{R0}:{R0+3}], s{T2_} offen {MOD('UPMOD')}")
        a("KS_UPE:")
    a("s_barrier")
    if NE:
        a(f"s_and_b32 s{T2_}, s{S_I}, 15", f"s_lshl_b32 s{T3_}, s{S_WAVE}, 4", f"s_add_u32 s{T2_}, s{T2_}, s{T3_}")
        pf_gu(a, 16, T2_, 64, 16 * NL, 16 * NL + 16 * NE, 18, "KS_L1E")
        a("KS_L1E:")
    if ENV("CTRIG", 1): lds_wait(a, FL_PARAM, 8, "nz", sleep=2)
    for k in range(5):
        a(f"s_movk_i32 s{T0_}, {4096*k}")
        a(f"buffer_store_dwordx4 v[12:15], v6, s[{R1}:{R1+3}], s{T0_} offen sc1")
    stamp(a, 1)
    a(f"global_load_dword v58, v59, s[{P_DBG}:{P_DBG+1}] sc1")
    dbg_wait(a, 0)
    stamp(a, 2)
    a(f"ds_write_b32 v59, v58 offset:{FL_NONCE}")
    a("s_mov_b64 exec, 1")
    a(f"ds_add_rtn_u32 v8, v{VZ}, v{VONE} offset:{FL_LNACK}")
    a("s_mov_b64 exec, -1")
    for d in range(1, 4): a(f"v_lshrrev_b32 v{58-d}, {3*d}, v58")
    a("s_waitcnt lgkmcnt(0)")
    a(f"v_readfirstlane_b32 s{T0_}, v8")
    a(f"s_cmp_lg_u32 s{T0_}, 3", "s_cbranch_scc1 KS_L2")
    a("s_mov_b64 exec, 15")
    a(f"global_store_dword v7, v58, s[{P_WS}:{P_WS+1}] sc1")
    a("s_mov_b64 exec, -1")
    a(f"s_and_b32 s{T2_}, s{S_I}, 7")
    a(f"s_cmp_ge_u32 s{S_I}, 8", "s_cbranch_scc1 KS_L1C")
    if NN:
        a("s_setprio 0")
        lds_wait(a, FL_G + 32 + 4, 8, "b4", sleep=2)
        a("s_setprio 3")
        pf_gu(a, 16, T2_, 8, PF0, PF0 + 8 * NN, 18, "KS_L2")
    a("s_branch KS_L2")
    a("KS_L1C:")
    if NC: pf_gu(a, 16, T2_, 8, PF0 + 8 * NN, PF1, 18, "KS_L2")
    a("KS_L2:")
    a(f"s_mov_b32 s{S_G}, 0")
    a("KS_L2B:")
    srd(a, R0, P_WS, XBYTES, WS_UT)
    a("v_lshrrev_b32 v7, 1, v1", "v_lshlrev_b32 v7, 6, v7", "v_and_b32 v10, 1, v1", "v_lshl_add_u32 v7, v10, 4, v7", "v_lshlrev_b32 v9, 4, v1")
    a(f"s_lshl_b32 s{T0_}, s{S_WAVE}, 11", f"s_lshl_b32 s{T1_}, s{S_B2}, 13", f"s_add_u32 s{T1_}, s{T1_}, s{T0_}")
    if SWU:
        a(f"s_lshl_b32 s{T2_}, s{S_B2}, 7", f"s_and_b32 s{T3_}, s{T2_}, 0x380", f"v_xor_b32 v13, s{T3_}, v9", f"s_and_b32 s{T2_}, s{T2_}, 0x1c00", f"s_xor_b32 s{T1_}, s{T1_}, s{T2_}")
    else: a("v_mov_b32 v13, v9")
    a(f"s_xor_b32 s{T5_}, s{T1_}, 0x400")
    a(f"s_lshl_b32 s{T3_}, s{S_XC}, 3", f"s_add_u32 s{T3_}, s{T3_}, s{S_I}", f"s_add_u32 s{T3_}, s{T3_}, {512 - 24}")
    a(f"s_lshr_b32 s{T4_}, s{T3_}, 1", f"s_lshl_b32 s{T4_}, s{T4_}, 13", f"s_and_b32 s{T3_}, s{T3_}, 1", f"s_lshl_b32 s{T3_}, s{T3_}, 5")
    a(f"s_add_u32 s{T3_}, s{T3_}, s{T4_}", f"s_add_u32 s{T3_}, s{T3_}, s{T0_}")
    if SWU:
        a(f"s_lshr_b32 s{T4_}, s{T4_}, 6", f"s_and_b32 s{T2_}, s{T4_}, 0x780", f"v_xor_b32 v7, s{T2_}, v7", f"s_and_b32 s{T4_}, s{T4_}, 0x1800", f"s_xor_b32 s{T3_}, s{T3_}, s{T4_}")
    a(f"s_cmp_lt_u32 s{S_I}, 24", f"s_cselect_b32 s{T3_}, {XBYTES}, s{T3_}", f"s_cselect_b32 s{T2_}, 0, {hex(TAGM)}")
    a(f"v_mov_b32_dpp v64, v58 quad_perm:[0,1,0,1] {DPPM}", f"v_mov_b32_dpp v65, v58 quad_perm:[2,3,2,3] {DPPM}")
    a(f"s_bitcmp1_b32 s{S_I}, 0", "s_cselect_b64 vcc, -1, 0", "v_cndmask_b32 v64, v64, v65, vcc")
    for d in range(4): a(f"v_and_b32 v{60+d}, {hex(TAGM)}, v{58-d}")
    for d in range(3, 0, -1): a(f"v_lshrrev_b32 v{64+d}, {3*d}, v64")
    for d in range(4): a(f"v_and_b32 v{64+d}, s{T2_}, v{64+d}")
    a(f"s_lshl_b32 s{T4_}, s{S_WAVE}, 10", f"s_add_u32 s{T4_}, s{T4_}, {C_U + 480}")
    a("v_bfe_u32 v11, v1, 1, 1", f"v_mul_u32_u24 v11, {U_SIZE}, v11", "v_lshl_add_u32 v11, v10, 4, v11", "v_lshrrev_b32 v10, 2, v1", "v_lshl_add_u32 v11, v10, 5, v11", f"v_add_u32 v11, s{T4_}, v11")
    a(f"v_add_u32 v10, s{T4_}, v9")
    a(f"v_mov_b32 v116, s{S_WAVE}")
    a(f"s_add_u32 s{T0_}, s{T0_}, {hex(WS_FLAG1)}", "v_lshrrev_b32 v12, 2, v1", "v_lshl_add_u32 v12, v12, 6, v59", f"v_add_u32 v12, s{T0_}, v12")
    UT = eval(os.environ.get("UT", "(4, 0, 4)"))
    a(f"s_cmp_lt_u32 s{S_I}, 8", f"s_cselect_b32 s{T2_}, {UT[0]}, {UT[1]}", f"s_cmp_ge_u32 s{S_I}, 24", f"s_cselect_b32 s{T2_}, {UT[2]}, s{T2_}", f"v_mov_b32 v14, s{T2_}")
    a("s_setprio 0")
    a("s_waitcnt vmcnt(0)")
    stamp(a, 8)
    lds_wait(a, FL_G, 8, "b4", addr=14, sleep=2)
    a("s_setprio 3")
    stamp(a, 5)
    if ENV("UDELAY", 0): a(f"s_sleep {ENV('UDELAY', 0)}")
    lp = newlabel("UP"); l1 = newlabel("UPE")
    UM = os.environ.get("UMOD", "sc1").replace("_", " ")
    MK = [6, 8, 10, 12]
    if ENV("MPOLL", 0):
        for m in MK: a(f"s_mov_b64 s[{m}:{m+1}], -1")
        a(f"s_mov_b32 s{SP0}, {hex(TAGM)}")
    a(f"s_branch {l1}")
    a(f"{lp}:")
    a(f"s_sleep {ENV('USLEEP', 2)}")
    a(f"{l1}:")
    if ENV("MPOLL", 0):
        lds = [f"buffer_load_dwordx4 v[20:23], v13, s[{R0}:{R0+3}], s{T1_} offen {UM}", f"buffer_load_dwordx4 v[24:27], v13, s[{R0}:{R0+3}], s{T5_} offen {UM}",
               f"buffer_load_dwordx4 v[28:31], v7, s[{R0}:{R0+3}], s{T3_} offen {UM}"]
        for k in range(3): a(f"s_mov_b64 exec, s[{MK[k]}:{MK[k]+1}]", lds[k])
        a(f"s_mov_b64 exec, s[{MK[3]}:{MK[3]+1}]")
        a(f"global_load_dword v32, v12, s[{P_WS}:{P_WS+1}] sc1", f"global_load_dword v33, v12, s[{P_WS}:{P_WS+1}] offset:1024 sc1")
        guard(a)
        for k in range(3):
            a(f"s_mov_b64 exec, s[{MK[k]}:{MK[k]+1}]", f"s_waitcnt vmcnt({4-k})")
            for d in range(4): a(f"v_xor_b32 v{20+4*k+d}, v{(64 if k == 2 else 60)+d}, v{20+4*k+d}")
            a(f"v_or3_b32 v44, v{20+4*k}, v{21+4*k}, v{22+4*k}", f"v_bitop3_b32 v44, v44, v{23+4*k}, s{SP0} bitop3:0xa8", f"v_cmp_ne_u32 s[{MK[k]}:{MK[k]+1}], 0, v44")
        a(f"s_mov_b64 exec, s[{MK[3]}:{MK[3]+1}]", "s_waitcnt vmcnt(0)")
        a("v_xor_b32 v32, v58, v32", "v_bitop3_b32 v32, v32, v58, v33 bitop3:0xf6", f"v_cmp_ne_u32 s[{MK[3]}:{MK[3]+1}], 0, v32")
        a(f"s_or_b64 vcc, s[{MK[0]}:{MK[0]+1}], s[{MK[1]}:{MK[1]+1}]", f"s_or_b64 vcc, vcc, s[{MK[2]}:{MK[2]+1}]", f"s_or_b64 vcc, vcc, s[{MK[3]}:{MK[3]+1}]", f"s_cbranch_scc1 {lp}")
        a("s_mov_b64 exec, -1")
    else:
        a(f"global_load_dword v32, v12, s[{P_WS}:{P_WS+1}] sc1", f"global_load_dword v33, v12, s[{P_WS}:{P_WS+1}] offset:1024 sc1")
        a(f"buffer_load_dwordx4 v[20:23], v13, s[{R0}:{R0+3}], s{T1_} offen {UM}")
        a(f"buffer_load_dwordx4 v[24:27], v13, s[{R0}:{R0+3}], s{T5_} offen {UM}")
        a(f"buffer_load_dwordx4 v[28:31], v7, s[{R0}:{R0+3}], s{T3_} offen {UM}")
        guard(a)
        for k in range(3):
            a(f"s_waitcnt vmcnt({2-k})")
            if k == 0: a("v_xor_b32 v32, v58, v32", "v_xor_b32 v33, v58, v33")
            for d in range(4): a(f"v_xor_b32 v{20+4*k+d}, v{(64 if k == 2 else 60)+d}, v{20+4*k+d}")
            a(f"v_or3_b32 v44, v{20+4*k}, v{21+4*k}, v{44 if k else 21}", f"v_or3_b32 v44, v{22+4*k}, v{23+4*k}, v44")
        a(f"v_and_b32 v44, {hex(TAGM)}, v44", "v_or3_b32 v44, v44, v32, v33", "v_cmp_ne_u32 vcc, 0, v44", f"s_cbranch_vccnz {lp}")
    stamp(a, 6)
    a("ds_write_b128 v11, v[20:23]", "ds_write_b128 v11, v[24:27] offset:512", f"ds_write_b128 v10, v[28:31] offset:{2*U_SIZE}")
    a(f"ds_write_b8 v116, v{VONE} offset:{FL_UF}")
    stamp(a, 7)
    gen_wjobs(a)
    a("s_setprio 0")
    a(f"s_lshr_b32 s{T0_}, s{S_B2}, 6", f"s_lshl_b32 s{T0_}, s{T0_}, 9")
    a(f"s_bfe_u32 s{T1_}, s{S_B2}, 0x20004", f"s_lshl_b32 s{T1_}, s{T1_}, 6", f"s_add_u32 s{T0_}, s{T0_}, s{T1_}")
    a(f"s_and_b32 s{T1_}, s{S_B2}, 3", f"s_lshl_b32 s{T1_}, s{T1_}, 4", f"s_add_u32 s{T0_}, s{T0_}, s{T1_}")
    a(f"s_and_b32 s{T1_}, s{S_B2}, 12", f"s_add_u32 s{T0_}, s{T0_}, s{T1_}")
    a(f"s_lshr_b32 s{T1_}, s{S_WAVE}, 1", f"s_lshl_b32 s{T1_}, s{T1_}, 8", f"s_add_u32 s{T0_}, s{T0_}, s{T1_}")
    a(f"s_and_b32 s{T1_}, s{S_WAVE}, 1", f"s_lshl_b32 s{T1_}, s{T1_}, 1", f"s_add_u32 s{T0_}, s{T0_}, s{T1_}")
    a("v_lshrrev_b32 v113, 5, v1", "v_and_b32 v114, 31, v1")
    a(f"v_add_u32 v112, s{T0_}, v113")
    a("v_mul_u32_u24 v115, 1152, v112", "v_lshl_add_u32 v8, v114, 2, v115", "v_lshl_add_u32 v115, v114, 4, v115", "v_lshlrev_b32 v7, 2, v114", "v_lshlrev_b32 v6, 4, v114")
    a(f"v_bfe_u32 v111, v1, 3, 1", f"v_add_u32 v111, s{T0_}, v111", "v_mul_u32_u24 v111, 1152, v111", "v_and_b32 v9, 7, v1", "v_lshl_add_u32 v111, v9, 4, v111")
    srd(a, R0, P_X, XBYTES)
    srd(a, R1, P_WR, 1152)
    a(f"buffer_load_dwordx4 v[10:13], v115, s[{R0}:{R0+3}], 0 offen")
    a(f"buffer_load_dwordx4 v[14:17], v115, s[{R0}:{R0+3}], 0 offen offset:512")
    a(f"buffer_load_dword v18, v8, s[{R0}:{R0+3}], 0 offen offset:1024")
    a(f"buffer_load_dwordx4 v[50:53], v6, s[{R1}:{R1+3}], 0 offen")
    a(f"buffer_load_dwordx4 v[54:57], v6, s[{R1}:{R1+3}], 0 offen offset:512")
    a(f"buffer_load_dword v58, v7, s[{R1}:{R1+3}], 0 offen offset:1024")
    if not PTAG:
        a(f"s_cmp_lt_u32 s{S_I}, 18", "s_cbranch_scc1 KS_L4")
        a(f"s_mul_i32 s{T0_}, s{S_XC}, 14", f"s_add_u32 s{T0_}, s{T0_}, s{S_I}", f"s_mul_i32 s{T0_}, s{T0_}, {CLRP_WG}", f"s_add_u32 s{T0_}, s{T0_}, {hex(WS_PART - 18*CLRP_WG)}")
        a(f"s_add_u32 s{R1}, s{P_WS}, s{T0_}", f"s_addc_u32 s{R1+1}, s{P_WS+1}, 0", f"s_mov_b32 s{R1+2}, {CLRP_WG}", f"s_mov_b32 s{R1+3}, 0x20000")
        a("v_lshlrev_b32 v6, 4, v0", "v_mov_b32 v60, -1", "v_mov_b32 v61, -1", "v_mov_b32 v62, -1", "v_mov_b32 v63, -1")
        for k in range(6):
            a(f"s_movk_i32 s{T0_}, {4096*k}")
            a(f"buffer_store_dwordx4 v[60:63], v6, s[{R1}:{R1+3}], s{T0_} offen sc1")
    a("KS_L4:")
    srd(a, R0, P_WS, 0x240000, WS_ZB1)
    srd(a, R1, P_OUT, XBYTES)
    srd(a, R2_, P_WS, XBYTES, WS_X2)
    srd(a, R3, P_WS, 12288, WS_KEYS)
    a(f"s_not_b32 s{T1_}, s{S_B2}", f"v_xor_b32 v8, s{T1_}, v0")
    a("v_lshrrev_b32 v6, 1, v0", "v_lshlrev_b32 v6, 6, v6", "v_and_b32 v8, 1, v8", "v_lshl_add_u32 v6, v8, 4, v6")
    a(f"s_lshr_b32 s{T0_}, s{S_B2}, 2", f"s_lshl_b32 s{T0_}, s{T0_}, 15", f"s_and_b32 s{T1_}, s{S_B2}, 1", f"s_lshl_b32 s{T1_}, s{T1_}, 14", f"s_add_u32 s{T0_}, s{T0_}, s{T1_}")
    a(f"s_and_b32 s{T1_}, s{S_B2}, 2", f"s_lshl_b32 s{T1_}, s{T1_}, 4", f"s_add_u32 s{T0_}, s{T0_}, s{T1_}")
    a(f"s_lshr_b32 s{T2_}, s{S_B2}, 2", f"s_lshl_b32 s{T2_}, s{T2_}, 12", f"s_and_b32 s{T1_}, s{S_B2}, 3", f"s_lshl_b32 s{T1_}, s{T1_}, 4")
    a(f"s_add_u32 s{T2_}, s{T2_}, s{T1_}", f"s_lshl_b32 s{T1_}, s{S_WAVE}, 10", f"s_add_u32 s{T2_}, s{T2_}, s{T1_}", f"s_add_u32 s{T2_}, s{T2_}, 0x200000")
    a("v_lshlrev_b32 v9, 6, v2")
    if SWZ:
        a(f"s_lshl_b32 s{T1_}, s{S_B2}, 5", f"s_and_b32 s{T3_}, s{T1_}, 0x1f80", f"v_xor_b32 v6, s{T3_}, v6", f"s_and_b32 s{T3_}, s{T1_}, 0x380", f"v_xor_b32 v9, s{T3_}, v9")
        a(f"s_and_b32 s{T3_}, s{T1_}, 0xc00", f"s_xor_b32 s{T2_}, s{T2_}, s{T3_}", f"s_and_b32 s{T1_}, s{S_B2}, 1", f"s_lshl_b32 s{T1_}, s{T1_}, 13", f"s_xor_b32 s{T0_}, s{T0_}, s{T1_}")
    a(f"s_xor_b32 s{T1_}, s{T0_}, 0x2000")
    a(f"s_mul_i32 s{T3_}, s{S_WAVE}, 2304", f"s_add_u32 s{T3_}, s{T3_}, {C_XR}", f"v_lshl_add_u32 v117, v114, 5, s{T3_}", f"v_lshl_add_u32 v110, v114, 3, s{T3_}")
    a(f"s_lshl_b32 s{T3_}, s{S_WAVE}, 9", f"s_add_u32 s{T3_}, s{T3_}, {C_RED}", f"v_lshl_add_u32 v108, v1, 2, s{T3_}", f"v_lshl_add_u32 v109, v1, 4, s{T3_}")
    a(f"s_mov_b32 s{T3_}, 0x02020202", f"v_mul_lo_u32 v118, v113, s{T3_}", "v_add_u32 v118, 0x05040100, v118")
    a(f"v_lshlrev_b32 v8, 2, v0", f"v_add_u32 v8, {C_XR}, v8")
    a(f"s_lshl_b32 s{T3_}, s{S_WAVE}, 6", f"s_add_u32 s{T3_}, s{T3_}, {C_XR + 2048}", f"v_lshl_add_u32 v119, v2, 2, s{T3_}")
    a("s_waitcnt vmcnt(0)")
    X = 20
    for j in range(9): unpack(a, X + 2 * j, 10 + j)
    lds_wait(a, FL_ZDONE + 4, 60, "b4", sleep=1)
    a("s_setprio 3")
    if PFD2 > PFD:
        W3 = ENV("PF3W", 6)
        a(f"s_sub_u32 s{T5_}, s{S_I}, 18", f"s_cmp_ge_u32 s{T5_}, {W3}", "s_cbranch_scc1 KS_PF3E", f"s_cmp_lg_u32 s{S_WAVE}, 2", "s_cbranch_scc1 KS_PF3E")
        pf_down(a, T5_, W3, PFD, PFD2, 100, 120, "KS_PF3E", R4)
        a("KS_PF3E:")
    stamp2(a, 1)
    if ENV("ZGATE", 1):
        zpoll(a, [f"buffer_load_dwordx4 v[68:71], v{VZ}, s[{R0}:{R0+3}], s{T2_} offen sc1"], list(range(68, 72)), ENV("ZSLEEP", 1))
        if ENV("ZDELAY", 0): a(f"s_sleep {ENV('ZDELAY', 0)}")
    zpoll(a, [f"buffer_load_dwordx4 v[60:63], v6, s[{R0}:{R0+3}], s{T0_} offen sc1",
           f"buffer_load_dwordx4 v[64:67], v6, s[{R0}:{R0+3}], s{T1_} offen sc1",
           f"buffer_load_dwordx4 v[68:71], v9, s[{R0}:{R0+3}], s{T2_} offen sc1"], list(range(60, 72)), ENV("ZSLEEP", 1))
    stamp2(a, 2)
    for k in range(2):
        a(f"ds_write2st64_b32 v8, v{60+4*k}, v{61+4*k} offset0:{4*k} offset1:{9+4*k}")
        a(f"ds_write2st64_b32 v8, v{62+4*k}, v{63+4*k} offset0:{18+4*k} offset1:{27+4*k}")
    a("ds_write2st64_b32 v119, v68, v69 offset0:0 offset1:9")
    a("ds_write2st64_b32 v119, v70, v71 offset0:18 offset1:27")
    a(f"ds_write_b8 v116, v{VONE} offset:{FL_ZF}")
    stamp2(a, 3)
    lds_wait(a, FL_ZF, 60, "b4")
    for k in range(4):
        a(f"ds_read_b128 v[{60+4*k}:{63+4*k}], v117 offset:{1024*(k>>1) + 16*(k&1)}")
    a("ds_read_b64 v[76:77], v110 offset:2048")
    for j in range(9):
        if j % 2 == 0: a(f"s_waitcnt lgkmcnt({4-j//2})")
        a(f"v_perm_b32 v44, v{61+2*j}, v{60+2*j}, v118")
        unpack(a, 46, 44)
        a(f"v_pk_add_f32 v[46:47], v[46:47], v[{X+2*j}:{X+2*j+1}]")
        a(f"v_cvt_pk_bf16_f32 v44, v46, v47")
        unpack(a, X + 2 * j, 44)
    ln_stats(a, X, 40, 42, 44, 46, 48)
    stamp2(a, 4)
    a("v_mov_b32 v60, 0", "v_mov_b32 v61, 0")
    for j in range(9):
        ln_apply_pair(a, X + 2 * j, 40, 42, 44, 10 + j)
        unpack(a, 46, 50 + j)
        a("v_pk_fma_f32 v[60:61], v[44:45], v[46:47], v[60:61]")
        a(f"v_pk_add_f32 v[{X+2*j}:{X+2*j+1}], v[44:45], v[{X+2*j}:{X+2*j+1}]")
    a("v_add_f32 v60, v60, v61")
    red32(a, "v_add_f32", 60, 61)
    a("v_cvt_pk_bf16_f32 v60, v60, v60")
    a("v_ashrrev_i32 v61, 31, v60", "v_or_b32 v61, 0x80000000, v61", "v_xor_b32 v60, v60, v61", "v_and_b32 v60, 0xffff0000, v60")
    a("v_sub_u32 v62, 0x87ff, v112", "v_or_b32 v60, v60, v62", "v_lshl_add_u32 v61, v116, 1, v113", "v_lshlrev_b32 v61, 2, v61")
    a("s_mov_b32 exec_lo, 1", "s_mov_b32 exec_hi, 1")
    a(f"ds_write_b32 v61, v60 offset:{C_KEY}")
    a("s_mov_b64 exec, 1")
    a(f"ds_add_rtn_u32 v62, v{VZ}, v{VONE} offset:{FL_KCNT}")
    a("s_mov_b64 exec, 3")
    a("v_lshlrev_b32 v61, 4, v114", f"s_lshl_b32 s{T0_}, s{S_B2}, 5")
    a(f"ds_read_b128 v[64:67], v61 offset:{C_KEY}")
    a("s_waitcnt lgkmcnt(1)")
    a(f"v_readfirstlane_b32 s{T1_}, v62")
    a(f"s_cmp_lg_u32 s{T1_}, 3", "s_cbranch_scc1 KS_NOKEY")
    a("s_waitcnt lgkmcnt(0)")
    a(f"buffer_store_dwordx4 v[64:67], v61, s[{R3}:{R3+3}], s{T0_} offen sc1")
    a("KS_NOKEY:")
    a("s_mov_b64 exec, -1")
    a(f"v_cvt_pk_bf16_f32 v58, v{X+16}, v{X+17}")
    a("ds_write_b32 v108, v18", "ds_write_b32 v108, v58 offset:256", "ds_read_b128 v[64:67], v109")
    a(f"buffer_store_dwordx4 v[10:13], v115, s[{R2_}:{R2_+3}], 0 offen sc1")
    a(f"buffer_store_dwordx4 v[14:17], v115, s[{R2_}:{R2_+3}], 0 offen offset:512 sc1")
    for j in range(8):
        a(f"v_cvt_pk_bf16_f32 v{50+j}, v{X+2*j}, v{X+2*j+1}")
    a("s_mov_b64 exec, 0xffff")
    a("s_waitcnt lgkmcnt(0)")
    a(f"buffer_store_dwordx4 v[64:67], v111, s[{R2_}:{R2_+3}], 0 offen offset:1024 sc1")
    a("s_mov_b64 exec, 0xffff0000")
    a(f"buffer_store_dwordx4 v[64:67], v111, s[{R1}:{R1+3}], 0 offen offset:1024 sc1")
    a("s_mov_b64 exec, -1")
    a(f"buffer_store_dwordx4 v[50:53], v115, s[{R1}:{R1+3}], 0 offen sc1")
    a(f"buffer_store_dwordx4 v[54:57], v115, s[{R1}:{R1+3}], 0 offen offset:512 sc1")
    stamp2(a, 5)
    a(f"s_cmp_lg_u32 s{T1_}, 3", "s_cbranch_scc1 KS_NOKEY2")
    a("s_waitcnt vmcnt(6)")
    a(f"ds_write_b32 v{VZ}, v{VONE} offset:{FL_KACK}")
    a("KS_NOKEY2:")
    a("s_waitcnt vmcnt(0)")
    a("s_mov_b64 exec, 1")
    a(f"ds_add_rtn_u32 v62, v{VZ}, v{VONE} offset:{FL_F2CNT}")
    a("s_waitcnt lgkmcnt(0)")
    a("v_cmp_eq_u32 vcc, 3, v62", "s_and_b64 exec, exec, vcc", "s_cbranch_execz KS_NOF2")
    a(f"s_lshl_b32 s{T0_}, s2, 4", f"s_add_u32 s{T0_}, s{T0_}, 8192")
    a(f"buffer_store_dword v{VONE}, v{VZ}, s[{R3}:{R3+3}], s{T0_} offen sc1")
    a("KS_NOF2:")
    a("s_mov_b64 exec, -1")
    a("s_setprio 0")
    a(f"s_cmp_lt_u32 s{S_I}, 18", "s_cbranch_scc1 KS_B")
    a("s_waitcnt lgkmcnt(0)")
    endwave(a)
    a("KS_T:")
    a("s_setprio 0")
    a(f"s_cmp_ge_u32 s{S_WAVE}, 10", "s_cbranch_scc1 KS_P")
    a("v_and_b32 v6, 1, v1", "v_subrev_u32 v6, 1, v6")
    a("v_and_b32 v7, 7, v1", "v_lshlrev_b32 v7, 2, v7")
    srd(a, R3, P_WS, 12288, WS_KEYS)
    a(f"s_cmp_eq_u32 s{S_WAVE}, 9", "s_cbranch_scc1 KS_W9")
    a(f"s_cmp_eq_u32 s{S_WAVE}, 8", "s_cbranch_scc1 KS_L2W")
    a(f"s_sub_u32 s{T1_}, s{S_WAVE}, 4", f"s_lshl_b32 s{T0_}, s{T1_}, 10", f"v_lshl_add_u32 v33, v1, 4, s{T0_}", f"s_movk_i32 s{T0_}, 4096")
    a(f"s_lshl_b32 s{T1_}, s{T1_}, 7", "v_lshlrev_b32 v32, 4, v2", "v_lshl_add_u32 v32, v3, 5, v32", f"v_add_u32 v32, s{T1_}, v32")
    lds_wait(a, FL_KACK, 8, "nz", sleep=1)
    a("s_setprio 2")
    if ENV('KDELAY', 20): a(f"s_sleep {ENV('KDELAY', 20)}")
    stamp2(a, 1)
    zpoll(a, [f"buffer_load_dwordx4 v[8:11], v33, s[{R3}:{R3+3}], 0 offen sc1",
           f"buffer_load_dwordx4 v[12:15], v33, s[{R3}:{R3+3}], s{T0_} offen sc1"], list(range(8, 16)), ENV("KSLEEP", 4))
    a(f"ds_write_b32 v{VZ}, v{VONE} offset:{FL_KSEEN}")
    stamp2(a, 2)
    pool = Pool(range(16, 28))
    x = [8, 9, 10, 11]; y = [12, 13, 14, 15]
    for (i, j) in ((0, 1), (2, 3), (0, 2), (1, 3), (1, 2)):
        ce_inlane(a, x, i, j, pool); ce_inlane(a, y, i, j, pool)
    clean8(a, x, pool, 6, rev=True); clean8(a, y, pool, 6, rev=True)
    merge_pair(a, x, y, pool); clean8(a, x, pool, 6)
    for M in MIRRORS:
        merge_mirror(a, x, pool, M); clean8(a, x, pool, 6)
    for i in range(4): a(f"v_mov_b32 v{28+i}, v{x[i]}")
    a("s_mov_b32 exec_lo, 0x00030003", "s_mov_b32 exec_hi, 0x00030003")
    a(f"ds_write_b128 v32, v[28:31] offset:{C_CAND}")
    a("s_mov_b64 exec, -1")
    stamp2(a, 3)
    a("s_setprio 0")
    a("s_branch KS_B")
    a("KS_L2W:")
    srd(a, R2_, P_WS, XBYTES, WS_X2)
    a(f"s_mov_b32 s{T0_}, 0xcccccccc", f"s_mov_b32 s{T1_}, 0xcccccccc", f"s_mov_b32 s{T2_}, 0xf0f0f0f0", f"s_mov_b32 s{T3_}, 0xf0f0f0f0", f"s_movk_i32 s{T4_}, 1152")
    a("v_lshrrev_b32 v34, 3, v1", "v_lshlrev_b32 v34, 4, v34", "v_lshlrev_b32 v33, 4, v2")
    lds_wait(a, FL_KACK, 8, "nz", sleep=1)
    a("s_setprio 2")
    a("KS_L2POLL:")
    a(f"ds_read_b128 v[8:11], v33 offset:{C_CAND}")
    a(f"ds_read_b128 v[12:15], v33 offset:{C_CAND + 256}")
    guard(a)
    a("s_waitcnt lgkmcnt(0)")
    a("v_min3_u32 v16, v8, v9, v10", "v_min3_u32 v17, v11, v12, v13", "v_min3_u32 v16, v16, v14, v15", "v_min_u32 v16, v16, v17", "v_cmp_eq_u32 vcc, 0, v16")
    a("s_cbranch_vccnz KS_L2POLL")
    stamp2(a, 1)
    pool = Pool(range(16, 28))
    x = [8, 9, 10, 11]; y = [12, 13, 14, 15]
    merge_pair(a, x, y, pool); clean8(a, x, pool, 6)
    for li, M in enumerate(MIRRORS):
        merge_mirror(a, x, pool, M)
        if li < 2: clean8(a, x, pool, 6)
    a(f"ds_read_b32 v35, v{VZ} offset:{FL_ROWSOK}")
    a(f"v_cndmask_b32 v30, v{x[0]}, v{x[1]}, s[{T0_}:{T1_}]", f"v_cndmask_b32 v31, v{x[2]}, v{x[3]}, s[{T0_}:{T1_}]", f"v_cndmask_b32 v30, v30, v31, s[{T2_}:{T3_}]")
    a("v_mov_b32_dpp v30, v30 row_shr:8 row_mask:0xf bank_mask:0xc")
    a("v_and_b32 v31, 0x7ff, v30", "v_sub_u32 v31, 2047, v31", f"v_mad_u32_u24 v31, v31, s{T4_}, v34")
    a("s_waitcnt lgkmcnt(0)")
    a("v_cmp_ne_u32 vcc, 0, v35", "s_cbranch_vccnz KS_RW1")
    lds_wait(a, FL_ROWSOK, 35, "nz")
    a("KS_RW1:")
    for k in range(9):
        a(f"s_mov_b32 m0, {C_XR + 896*k}")
        a(f"buffer_load_dwordx4 v31, s[{R2_}:{R2_+3}], 0 offen offset:{128*k} sc1 lds")
    a(f"ds_write_b32 v7, v30 offset:{C_SEL}")
    stamp2(a, 2)
    a("s_waitcnt vmcnt(0)")
    a(f"ds_write_b32 v{VZ}, v{VONE} offset:{FL_XRDY}")
    stamp2(a, 3)
    a("s_setprio 0")
    a("s_branch KS_B")
    a("KS_W9:")
    a("v_lshlrev_b32 v33, 4, v1", f"s_movk_i32 s{T0_}, 0x2000")
    srd(a, R2_, P_WS, XBYTES, WS_X2)
    srd(a, R0, P_WS, 0x240000, WS_ZB1)
    srd(a, R1, P_X, XBYTES)
    a("v_bfe_u32 v43, v1, 2, 3", f"s_lshl_b32 s{T1_}, s{S_BLK}, 3", f"v_add_u32 v43, s{T1_}, v43")
    a("v_bfe_u32 v40, v43, 4, 1", "v_and_b32 v41, 3, v1", "v_lshl_add_u32 v40, v40, 2, v41", "v_lshlrev_b32 v40, 2, v40")
    a("v_lshrrev_b32 v41, 5, v43", "v_lshlrev_b32 v41, 4, v41", "v_and_b32 v42, 15, v43", "v_add_u32 v41, v41, v42")
    lds_wait(a, FL_KSEEN, 8, "nz", sleep=1)
    if ENV('F2DELAY', 8): a(f"s_sleep {ENV('F2DELAY', 8)}")
    a("s_setprio 2")
    zpoll(a, [f"buffer_load_dword v{8+k}, v33, s[{R3}:{R3+3}], s{T0_} offen offset:{1024*k} sc1" for k in range(4)], list(range(8, 12)), ENV("F2SLEEP", 4))
    a(f"ds_write_b32 v{VZ}, v{VONE} offset:{FL_ROWSOK}")
    stamp2(a, 1)
    a("s_setprio 0")
    lds_wait(a, C_SEL, 12, "nz", addr=7, sleep=1)
    stamp2(a, 2)
    a(f"ds_read_b32 v19, v40 offset:{C_SEL}")
    a("s_waitcnt lgkmcnt(0)")
    a("v_and_b32 v14, 0x7ff, v19", "v_sub_u32 v14, 2047, v14")
    a("v_mul_u32_u24 v23, 1152, v14", "v_lshl_add_u32 v23, v41, 1, v23")
    a(f"buffer_load_ushort v20, v23, s[{R2_}:{R2_+3}], 0 offen sc1")
    a(f"buffer_load_ushort v17, v23, s[{R1}:{R1+3}], 0 offen")
    a("v_lshrrev_b32 v15, 9, v14", "v_bfe_u32 v16, v14, 6, 2", "v_lshl_add_u32 v15, v15, 2, v16", "v_bfe_u32 v16, v14, 2, 2", "v_lshl_add_u32 v15, v15, 2, v16")
    a("v_bfe_u32 v16, v14, 4, 1")
    a("v_bfe_u32 v24, v14, 8, 1", "v_and_b32 v25, 3, v14", "v_lshl_add_u32 v24, v24, 2, v25", "v_lshlrev_b32 v24, 1, v24")
    a("v_bfe_u32 v25, v14, 5, 1", "v_lshl_add_u32 v24, v25, 5, v24")
    a("v_lshl_add_u32 v25, v15, 1, v16", "v_lshl_add_u32 v25, v25, 14, v24")
    a("v_lshrrev_b32 v26, 1, v41", "v_lshl_add_u32 v25, v26, 6, v25", "v_xor_b32 v26, v41, v16", "v_not_b32 v26, v26", "v_and_b32 v26, 1, v26", "v_lshl_add_u32 v25, v26, 4, v25")
    a("v_lshl_add_u32 v26, v15, 12, v24", "v_lshl_add_u32 v26, v16, 4, v26", "v_lshl_add_u32 v26, v41, 6, v26", f"v_add_u32 v26, {0x200000 - 512*64}, v26")
    if SWZ:
        a("v_lshl_add_u32 v27, v16, 6, v15", "v_lshlrev_b32 v27, 7, v27", "v_xor_b32 v25, v27, v25", "v_and_b32 v27, 0xf80, v27", "v_xor_b32 v26, v27, v26")
    a("v_cmp_gt_u32 vcc, 0x200, v41", "v_cndmask_b32 v25, v26, v25, vcc")
    a(f"buffer_load_ushort v18, v25, s[{R0}:{R0+3}], 0 offen sc1")
    srd(a, R2_, P_WS, 64, WS_IDX)
    a("v_ashrrev_i32 v22, 31, v19", "v_not_b32 v22, v22", "v_or_b32 v22, 0x80000000, v22", "v_xor_b32 v22, v19, v22", "v_and_b32 v22, 0xffff0000, v22")
    a(f"v_mul_f32 v22, {f32(-LOG2E)}, v22", "v_exp_f32 v22, v22", "v_add_f32 v22, 1.0, v22", "v_rcp_f32 v22, v22")
    a("v_cvt_pk_bf16_f32 v22, v22, v22", "v_lshlrev_b32 v22, 16, v22")
    a("v_and_b32 v14, 31, v1", "v_lshlrev_b32 v14, 4, v14")
    a("s_waitcnt vmcnt(0)")
    a("v_lshlrev_b32 v17, 16, v17", "v_lshlrev_b32 v18, 16, v18", "v_add_f32 v17, v17, v18", "v_cvt_pk_bf16_f32 v17, v17, v17")
    a("v_and_b32 v21, 0xffff0000, v17", "v_lshlrev_b32 v20, 16, v20")
    a(f"ds_write_b128 v14, v[20:23] offset:{C_SIDE}")
    a("s_cmp_lg_u32 s2, 0", "s_cbranch_scc1 KS_W9E")
    a(f"buffer_store_dword v12, v7, s[{R2_}:{R2_+3}], 0 offen")
    a("KS_W9E:")
    a("s_waitcnt lgkmcnt(0)")
    stamp2(a, 3)
    endwave(a)
    a("KS_B:")
    srd(a, R0, P_WS, PART_BYTES, WS_PART)
    a("v_bfe_u32 v16, v1, 2, 2", "v_lshl_add_u32 v16, v3, 3, v16", "v_mul_u32_u24 v16, 1152, v16", "v_and_b32 v17, 3, v1", "v_lshl_add_u32 v16, v17, 3, v16")
    a(f"s_lshl_b32 s{T0_}, s{S_WAVE}, 7", f"s_add_u32 s{T0_}, s{T0_}, {C_DOWN}", f"v_add_u32 v16, s{T0_}, v16")
    if PTAG: a("v_lshlrev_b32 v18, 2, v17", f"ds_read_b32 v24, v18 offset:{FL_NONCE}", f"s_movk_i32 s{T2_}, 0xff")
    lds_wait(a, FL_DOWN, 17, "b4")
    if PTAG:
        for d in range(1, 4): a(f"v_lshrrev_b32 v{24+d}, {8*d}, v24")
    WTD = 48
    for jt in range(4):
        a(f"ds_read_b64_tr_b16 v[{WTD+4*jt}:{WTD+4*jt+1}], v16 offset:{32*jt}")
        a(f"ds_read_b64_tr_b16 v[{WTD+4*jt+2}:{WTD+4*jt+3}], v16 offset:{32*jt + 4608}")
    a("v_and_b32 v16, 7, v2", "v_lshlrev_b32 v16, 6, v16", "v_lshl_add_u32 v16, v3, 4, v16")
    a(f"s_mul_i32 s{T0_}, s{S_BLK}, {PROW}", f"s_lshl_b32 s{T1_}, s{S_WAVE}, 11", f"s_add_u32 s{T0_}, s{T0_}, s{T1_}")
    a("v_lshlrev_b32 v17, 4, v1")
    a("s_waitcnt lgkmcnt(0)")
    a("s_barrier")
    a("s_barrier")
    a(f"ds_read_b128 v[20:23], v16 offset:{C_ACT}")
    a("s_waitcnt lgkmcnt(0)")
    for j in range(4):
        a(f"v_mfma_f32_16x16x32_bf16 v[{32+4*j}:{35+4*j}], v[20:23], v[{WTD+4*j}:{WTD+4*j+3}], 0")
    for j in (0, 2):
        for r in range(4): a(f"v_permlane32_swap_b32 v{32+4*j+r}, v{36+4*j+r}")
        for r in range(4): a(f"v_bfi_b32 v{32+4*j+r}, s{T2_}, v{24+r}, v{32+4*j+r}" if PTAG else f"v_min_u32 v{32+4*j+r}, -2, v{32+4*j+r}")
        a(f"buffer_store_dwordx4 v[{32+4*j}:{35+4*j}], v17, s[{R0}:{R0+3}], s{T0_} offen offset:{512*j} sc1")
    stamp2(a, 8)
    a("s_waitcnt vmcnt(0)", "s_barrier")
    endwave(a)
    a("KS_G0:")
    a(f"ds_write_b8 v15, v{VONE} offset:{FL_G+4}")
    a("s_setprio 0")
    a("KS_G:")
    a(f"s_mov_b32 s{SP0}, 0x05040100", f"s_mov_b32 s{SP1}, 0x07060302")
    a("s_waitcnt vmcnt(0)")
    stamp(a, 5)
    g_addr_setup(a, 46)
    if DE:
        srd(a, R1, P_DOWN, F * D * 2)
        a("v_lshlrev_b32 v8, 4, v1", f"s_mul_i32 s{T0_}, s{S_BLK}, 36864", f"s_mul_i32 s{T1_}, s{S_G}, 9216", f"s_add_u32 s{T0_}, s{T0_}, s{T1_}", f"s_add_u32 s{T1_}, s{T1_}, {C_DOWN}")
        a(f"s_cmp_lt_u32 s{S_I}, 8", f"s_cselect_b32 s{T2_}, 0, {FL_UTOK - FL_G - 36}", f"v_mov_b32 v9, s{T2_}")
        if DE == 2: lds_wait(a, FL_UF, 10, "b4", sleep=2)
        else: lds_wait(a, FL_G + 36, 10, "b4", addr=9, sleep=2)
        for k in range(9):
            if k % 4 == 0:
                a(f"s_add_u32 m0, s{T1_}, {1024*k}")
                if k: a(f"s_add_u32 s{T0_}, s{T0_}, 4096")
            a(f"buffer_load_dwordx4 v8, s[{R1}:{R1+3}], s{T0_} offen offset:{1024*(k&3)} {MOD('DM', '')} lds")
    SG = eval(os.environ.get("SG", "[0,0,0,0]"))
    if any(SG):
        a(f"s_mul_i32 s{T0_}, s{S_ROLE}, {32*9216}", f"s_lshl_b32 s{T1_}, s{S_BLK}, 6", f"s_add_u32 s{T0_}, s{T0_}, s{T1_}")
        a(f"s_add_u32 s{R0}, s{P_GATE}, s{T0_}", f"s_addc_u32 s{R0+1}, s{P_GATE+1}, 0", f"s_add_u32 s{R0+2}, s{P_UP}, s{T0_}", f"s_addc_u32 s{R0+3}, s{P_UP+1}, 0")
        cnt = sum(SG[g] << (8 * g) for g in range(4))
        a(f"s_lshl_b32 s{T1_}, s{S_G}, 3", f"s_lshr_b32 s{T1_}, {hex(cnt)}, s{T1_}", f"s_and_b32 s{T1_}, s{T1_}, 0xff", "s_cbranch_scc0 KS_SGE")
        a("KS_SGL:")
        for r in range(8):
            a(f"s_load_dword s{R1}, s[{R0}:{R0+1}], {r*9216}", f"s_load_dword s{R1+1}, s[{R0+2}:{R0+3}], {r*9216}")
        a(f"s_add_u32 s{R0}, s{R0}, {8*9216}", f"s_addc_u32 s{R0+1}, s{R0+1}, 0", f"s_add_u32 s{R0+2}, s{R0+2}, {8*9216}", f"s_addc_u32 s{R0+3}, s{R0+3}, 0")
        a(f"s_sub_u32 s{T1_}, s{T1_}, 1", f"s_cmp_lg_u32 s{T1_}, 0", "s_cbranch_scc1 KS_SGL")
        a("KS_SGE:")
        a("s_waitcnt lgkmcnt(0)")
        stamp(a, 8)
    TR = {1: (FL_PARAM, "nz"), 2: (FL_UF, "b4"), 3: (FL_ZF, "b4"), 4: (FL_KACK, "nz"), 5: (FL_KSEEN, "nz"), 6: (FL_ZDONE + 4, "b4")}
    GNM = ENV("GNM", 0)
    if GNM:
        a(f"s_lshr_b32 s{T0_}, {GNM}, s{S_G}", f"s_bitcmp1_b32 s{T0_}, 0", "s_cbranch_scc0 KS_GN0")
        gn = ENV("GNTR", 0)
        if gn: lds_wait(a, TR[gn][0], 10, TR[gn][1], sleep=2)
        g_loads(a, 46, range(4), " nt")
        a(f"s_bitcmp1_b32 s{S_G}, 0", "s_cbranch_scc1 KS_G4")
        g_loads(a, 46, [4], " nt")
        a("s_branch KS_G4")
        a("KS_GN0:")
    for t in sorted(set(GT)):
        l = newlabel("GT")
        mask = sum(1 << g for g in range(4) if GT[g] == t)
        if mask != 15: a(f"s_lshr_b32 s{T0_}, {mask}, s{S_G}", f"s_bitcmp1_b32 s{T0_}, 0", f"s_cbranch_scc0 {l}")
        lds_wait(a, TR[t][0], 10, TR[t][1], sleep=2)
        if t >= 3: a("s_setprio 1")
        a(f"{l}:")
    g_loads(a, 46, range(4))
    stamp(a, 6)
    def transpose(src, dst):
        for j in range(4):
            for p in range(4):
                lo = src + 2 * (2 * p) + (j >> 1); hi = src + 2 * (2 * p + 1) + (j >> 1)
                a(f"v_perm_b32 v{dst+4*j+p}, v{hi}, v{lo}, s{SP0 + (j & 1)}")
    W = GW
    a(f"s_bitcmp1_b32 s{S_G}, 0", "s_cbranch_scc1 KS_G4")
    g_loads(a, 46, [4])
    a("KS_G4:")
    a(f"v_mov_b32 v6, s{S_G}", f"ds_write_b8 v6, v{VONE} offset:{FL_GISS}")
    a("s_waitcnt vmcnt(0)")
    if DE: a(f"ds_write_b8 v6, v{VONE} offset:{FL_DOWN}")
    stamp(a, 7)
    for ks in range(5): transpose(W + 16 * ks, W + 16 * ks - 16)
    GACC = 112
    a(f"s_lshl_b32 s{T0_}, s{S_ROLE}, 9", f"s_add_u32 s{T0_}, s{T0_}, {C_XR}", "v_and_b32 v6, 7, v2", f"v_lshl_add_u32 v7, v6, 4, s{T0_}", "v_lshl_add_u32 v7, v3, 7, v7")
    a(f"s_lshl_b32 s{T0_}, s{S_G}, 6", f"v_add_u32 v11, s{T0_}, v1")
    a("v_lshrrev_b32 v8, 5, v11", "v_and_b32 v9, 31, v11")
    a("v_and_b32 v10, 3, v9", "v_lshlrev_b32 v10, 9, v10")
    a("v_lshrrev_b32 v9, 2, v9", "v_lshl_add_u32 v10, v9, 4, v10")
    a("v_lshrrev_b32 v9, 2, v8", "v_lshl_add_u32 v10, v9, 8, v10")
    a("v_and_b32 v9, 3, v8", "v_lshl_add_u32 v10, v9, 2, v10")
    a("v_lshlrev_b32 v11, 1, v11")
    a(f"s_lshl_b32 s{T0_}, s{S_G}, 11", f"v_lshl_add_u32 v9, v1, 4, s{T0_}")
    lds_wait(a, C_SEL, 12, "nz", sleep=2)
    a("s_setprio 2")
    lds_wait(a, FL_XRDY, 12, "nz")
    stamp2(a, 1)
    for ks in range(5):
        a(f"ds_read_b128 v[{12+4*ks}:{15+4*ks}], v7 offset:{512*ks}")
    for ks in range(5):
        if ks == 4: a(f"s_bitcmp1_b32 s{S_G}, 0", "s_cbranch_scc1 KS_G5")
        a(f"s_waitcnt lgkmcnt({4-ks})")
        for j in range(4):
            c = "0" if ks == 0 else f"v[{GACC+4*j}:{GACC+4*j+3}]"
            a(f"v_mfma_f32_16x16x32_bf16 v[{GACC+4*j}:{GACC+4*j+3}], v[{12+4*ks}:{15+4*ks}], v[{32+16*ks+4*j}:{35+16*ks+4*j}], {c}")
    a("KS_G5:")
    a("s_mov_b32 exec_lo, -1", "s_mov_b32 exec_hi, 0")
    a.flush(6)
    for j in range(4):
        a(f"ds_write_b128 v9, v[{GACC+4*j}:{GACC+4*j+3}] offset:{C_RED + 512*j}")
    a("s_mov_b64 exec, -1")
    a("s_waitcnt lgkmcnt(0)", "s_barrier")
    stamp2(a, 2)
    for w in range(4):
        a(f"ds_read_b32 v{32+2*w}, v10 offset:{C_RED + 2048*w}")
        a(f"ds_read_b32 v{33+2*w}, v10 offset:{C_RED + 2048*w + 128}")
    a("s_waitcnt lgkmcnt(4)")
    a("v_pk_add_f32 v[32:33], v[32:33], v[34:35]")
    a("s_waitcnt lgkmcnt(0)")
    a("v_pk_add_f32 v[36:37], v[36:37], v[38:39]")
    a("v_pk_add_f32 v[32:33], v[32:33], v[36:37]")
    a("v_cvt_pk_bf16_f32 v34, v32, v33")
    unpack(a, 32, 34)
    a(f"v_mul_f32 v34, {f32(-LOG2E)}, v32", "v_exp_f32 v34, v34", "v_add_f32 v34, 1.0, v34", "v_rcp_f32 v34, v34", "v_mul_f32 v34, v32, v34")
    a("v_cvt_pk_bf16_f32 v34, v34, v34", "v_lshlrev_b32 v34, 16, v34")
    a("v_mul_f32 v34, v34, v33", "v_cvt_pk_bf16_f32 v34, v34, v34")
    a(f"ds_write_b16 v11, v34 offset:{C_ACT}")
    a("s_waitcnt lgkmcnt(0)")
    a("s_barrier")
    a("s_branch KS_P2")
    a("KS_P:")
    if DE: a("s_branch KS_P1")
    srd(a, R1, P_DOWN, F * D * 2)
    a(f"s_sub_u32 s{T2_}, s{S_WAVE}, 10", "v_lshlrev_b32 v6, 4, v1", f"s_mul_i32 s{T0_}, s{S_BLK}, 36864", f"s_mul_i32 s{T1_}, s{T2_}, 18432", f"s_add_u32 s{T0_}, s{T0_}, s{T1_}", f"s_add_u32 s{T1_}, s{T1_}, {C_DOWN}")
    a(f"s_lshl_b32 s{T2_}, s{T2_}, 1", f"v_mov_b32 v7, s{T2_}", f"v_mov_b32 v8, s{S_ONES}")
    TR[7] = (FL_GISS, "b4")
    if DT: lds_wait(a, TR[DT][0], 10, TR[DT][1], sleep=2)
    a("s_setprio 1")
    stamp2(a, 1)
    for k in range(18):
        if k % 4 == 0:
            a(f"s_add_u32 m0, s{T1_}, {1024*k}")
            if k: a(f"s_add_u32 s{T0_}, s{T0_}, 4096")
        a(f"buffer_load_dwordx4 v6, s[{R1}:{R1+3}], s{T0_} offen offset:{1024*(k&3)} {MOD('DM', '')} lds")
    a("s_waitcnt vmcnt(0)")
    stamp2(a, 2)
    a(f"ds_write_b16 v7, v8 offset:{FL_DOWN}")
    a("KS_P1:")
    a("s_setprio 0")
    a("s_waitcnt lgkmcnt(0)")
    a("s_barrier")
    a("s_barrier")
    a("s_setprio 2")
    a("KS_P2:")
    a(f"s_sub_u32 s{S_G}, s{S_WAVE}, 10")
    srd(a, R0, P_WS, PART_BYTES, WS_PART)
    srd(a, R1, P_OUT, XBYTES)
    a("v_lshrrev_b32 v8, 3, v1", f"v_mul_u32_u24 v8, {PROW}, v8", "v_and_b32 v9, 7, v1", "v_lshl_add_u32 v8, v9, 4, v8")
    a(f"s_mul_i32 s{T0_}, s{S_G}, {24*PROW}", f"s_lshl_b32 s{T1_}, s{S_BLK}, 7", f"s_add_u32 s{T0_}, s{T0_}, s{T1_}", f"s_add_u32 s{T1_}, s{T0_}, {8*PROW}", f"s_add_u32 s{T2_}, s{T0_}, {16*PROW}")
    a(f"s_lshl_b32 s{T3_}, s{S_G}, 7", f"v_lshl_add_u32 v6, v9, 4, s{T3_}", "v_lshl_add_u32 v6, v3, 2, v6")
    a(f"v_lshlrev_b32 v12, 2, v1", f"v_add_u32 v12, {C_RED2}, v12", "v_lshlrev_b32 v13, 4, v1")
    if PTAG:
        a("v_and_b32 v14, 12, v12", f"ds_read_b32 v24, v14 offset:{FL_NONCE}", "s_waitcnt lgkmcnt(0)")
        for d in range(1, 4): a(f"v_lshrrev_b32 v{24+d}, {8*d}, v24")
    a("s_barrier")
    stamp2(a, 3)
    if PTAG:
        lp = newlabel("PP"); l1 = newlabel("PPE")
        a(f"s_branch {l1}", f"{lp}:", "s_sleep 1", f"{l1}:")
        for k in range(3): a(f"buffer_load_dwordx4 v[{32+4*k}:{35+4*k}], v8, s[{R0}:{R0+3}], s{T0_+k} offen sc1")
        guard(a)
        for k in range(3):
            a(f"s_waitcnt vmcnt({2-k})")
            for d in range(4):
                t = 44 + (d & 1)
                a(f"v_xor_b32 v{t}, v{24+d}, v{32+d}" if k == 0 and d < 2 else f"v_bitop3_b32 v{t}, v{t}, v{24+d}, v{32+4*k+d} bitop3:0xf6")
        a("v_or_b32 v44, v44, v45", "v_and_b32 v44, 0xff, v44", "v_cmp_ne_u32 vcc, 0, v44", f"s_cbranch_vccnz {lp}")
    else: zpoll(a, [f"buffer_load_dwordx4 v[{32+4*k}:{35+4*k}], v8, s[{R0}:{R0+3}], s{T0_+k} offen sc1" for k in range(3)], list(range(32, 44)), 1)
    stamp2(a, 4)
    a("v_pk_add_f32 v[32:33], v[32:33], v[36:37]", "v_pk_add_f32 v[34:35], v[34:35], v[38:39]")
    a("v_pk_add_f32 v[32:33], v[32:33], v[40:41]", "v_pk_add_f32 v[34:35], v[34:35], v[42:43]")
    for r in range(4): a(f"v_add_f32_dpp v{32+r}, v{32+r}, v{32+r} row_ror:8 {DPPM}")
    a("v_permlane16_swap_b32 v32, v33", "v_permlane16_swap_b32 v34, v35")
    a("v_add_f32 v32, v32, v33", "v_add_f32 v34, v34, v35")
    a("v_permlane32_swap_b32 v32, v34")
    a("v_add_f32 v32, v32, v34")
    a(f"ds_write_b32 v6, v32 offset:{C_RED2}")
    a("s_waitcnt lgkmcnt(0)", "s_barrier")
    a(f"s_cmp_lg_u32 s{S_G}, 0", "s_cbranch_scc1 KS_PEND")
    a("s_mov_b32 exec_lo, -1", "s_mov_b32 exec_hi, 0")
    for g in range(3):
        a(f"ds_read2_b32 v[{32+2*g}:{33+2*g}], v12 offset0:{64*g} offset1:{64*g + 32}")
    a(f"ds_read_b128 v[40:43], v13 offset:{C_SIDE}")
    a("s_waitcnt lgkmcnt(0)")
    a("v_pk_add_f32 v[32:33], v[32:33], v[34:35]", "v_pk_add_f32 v[32:33], v[32:33], v[36:37]", "v_add_f32 v8, v32, v33")
    a("v_cvt_pk_bf16_f32 v8, v8, v8", "v_lshlrev_b32 v8, 16, v8")
    a("v_mul_f32 v8, v8, v42", "v_cvt_pk_bf16_f32 v8, v8, v8", "v_lshlrev_b32 v8, 16, v8")
    a("v_add_f32 v8, v8, v40", "v_cvt_pk_bf16_f32 v8, v8, v8", "v_lshlrev_b32 v8, 16, v8")
    a("v_add_f32 v8, v8, v41", "v_cvt_pk_bf16_f32 v8, v8, v8")
    a(f"buffer_store_short v8, v43, s[{R1}:{R1+3}], 0 offen")
    a("KS_PEND:")
    stamp_end(a)
    spin_end(a)
    a("KS_ABORT:")
    a("KS_END:")
    a("s_endpgm")
    return f""".amdhsa_kernel {label}
  .amdhsa_next_free_vgpr 128
  .amdhsa_next_free_sgpr {NSGPR}
  .amdhsa_accum_offset 128
  .amdhsa_group_segment_fixed_size 0
  .amdhsa_kernarg_size 136
  .amdhsa_user_sgpr_count 2
  .amdhsa_user_sgpr_kernarg_segment_ptr 1
  .amdhsa_system_sgpr_workgroup_id_x 1
  .amdhsa_float_denorm_mode_32 3
.end_amdhsa_kernel
"""

def main():
    hdr = open(f"/code/{NAME}.s.ref").read().split("; Override launch geometry")[0]
    out = hdr
    out += f"; @launch grid=(256,1,1) block=(1024,1,1) lds={LDS_BYTES}\n"
    out += '.amdgcn_target "amdgcn-amd-amdhsa--gfx950"\n.text\n'
    a = Asm()
    d = gen(a)
    out += a.text()
    out += '.section .rodata,"a"\n.p2align 6\n' + d
    path = sys.argv[1] if len(sys.argv) > 1 else "ks.s"
    open(path, "w").write(out)
    print("wrote", path, len(out))

if __name__ == "__main__":
    main()
```

```python
import sys, struct, math, os
sys.path.insert(0, "gen")
from asmlib import Asm

NAME = "sequential_preLN__ssm_conv_s4__moe_arch_mod__prompt"
L, D, N, F = 2048, 576, 128, 4608
XBYTES = L * D * 2
WS_UT = 0x000000
WS_X2 = 0x300000
WS_ZB1 = 0x600000
WS_ZB2 = 0x800000
WS_KEYS = 0x840000
WS_PART = 0x850000
WS_CLR, CLR_WG = 0x600000, 18560
CLRP_WG = 23744
WS_FLAG1 = 0xB00000
TAGM = 0x00070007
WS_IDX = 0xB10000
WS_KT = 0xB20000
WS_DBG = 0xC00000
WS_STAMP = 0x8000000
PART_BYTES = 144 * (4608 * 4 + 128)
C_FL, C_CAND, C_SEL, C_KEY, C_PAR, C_ACT, C_SIDE, C_RED2 = 0, 256, 768, 800, 832, 1024, 1536, 2048
C_U, U_SIZE = 3072, 4672
C_LNB = C_U + 3 * U_SIZE
C_XR = C_LNB
C_RED = C_LNB + 9280
G_BASE, G_SIZE = 35840, 36672
C_STG = G_BASE + 2 * G_SIZE + 36864
LDS_BYTES = C_STG + 8192
FL_LN1, FL_LNACK, FL_KCNT, FL_UF, FL_ZF, FL_KACK, FL_ROWSOK, FL_XRDY, FL_PARAM, FL_DOWN, FL_ZDONE = 0, 8, 12, 16, 20, 24, 28, 32, 36, 40, 48
FL_G = 64
FL_S6 = 160
FL_F2CNT, FL_INIT, FL_CLROK, FL_GISS, FL_KSEEN, FL_UTOK, FL_PRE, FL_NONCE = 176, 180, 188, 192, 196, 200, 208, 224
KG_ROW = 544
KG_T = [0, 16 * KG_ROW, 32 * KG_ROW, 41 * KG_ROW]
R_WS3 = 0
R_WS5 = R_WS3 + 193 * 16
R_WS7 = R_WS5 + 193 * 16
R_WS9 = R_WS7 + 128 * 16
R_RED = 10752
R2 = 31232
T_TAB = R2
T_DRE = R2 + 1296
T_DRO = T_DRE + 1280 + 64
T_G3 = T_DRO + 1280
T_G5 = T_G3 + 256
T_G7E = T_G5 + 256
T_G7O = T_G7E + 192
T_G9E = T_G7O + 192
T_G9O = T_G9E + 192
assert T_G9O + 192 <= G_SIZE and R_WS9 + 129 * 16 <= R_RED and R_RED + 13 * 1024 <= R2 and 57 * KG_ROW <= R2
IDX_ZERO, IDX_DUMMY = 641, 642
C_DOWN = G_BASE + 2 * G_SIZE

def f32(x): return "0x%08x" % struct.unpack("<I", struct.pack("<f", x))[0]
def f32v(x): return struct.unpack("<f", struct.pack("<f", x))[0]
LOG2E = math.log2(math.e)
LOG2E_HI = f32v(LOG2E); LOG2E_LO = LOG2E - LOG2E_HI
INV2PI = 1.0 / (2 * math.pi)
INV2PI_HI = f32v(INV2PI); INV2PI_LO = INV2PI - INV2PI_HI
DPPM = "row_mask:0xf bank_mask:0xf"
ENV = lambda k, d: int(os.environ.get(k, str(d)))
STAMP = ENV("STAMP", 0)
DBG = ENV("DBG", 0)
GUARD = 1 << 19
XP = ENV("XP", 0)
KOFF = ENV("KOFF", 1)
PTAG = ENV("PTAG", 1)
SWU = ENV("SWU", 1); SWZ = ENV("SWZ", 1); PROW = 18432 + 128 * ENV("SWP", 1)
MOD = lambda k, d="sc1": os.environ.get(k, d).replace("_", " ")

P_X, P_ARE, P_LDT, P_DSK, P_WR, P_GATE, P_UP, P_DOWN, P_OUT, P_DBG, P_WS = 4, 6, 18, 20, 24, 26, 28, 30, 32, 34, 36
S_WAVE, S_GUARD, S_XC, S_I = 38, 39, 40, 41
R0, R1, R2_, R3, R4 = 64, 68, 72, 76, 80
S_ONES, S_GB, S_ROLE, S_G, S_CH, S_BLK, S_B2 = 84, 85, 86, 87, 88, 89, 90
T0_, T1_, T2_, T3_, T4_, T5_ = 92, 93, 94, 95, 96, 97
SP0, SP1 = 98, 99
NSGPR = 100

def srd(a, d, base, nbytes, off=0):
    if off:
        a(f"s_add_u32 s{d}, s{base}, {hex(off)}", f"s_addc_u32 s{d+1}, s{base+1}, 0")
    else:
        a(f"s_mov_b32 s{d}, s{base}", f"s_mov_b32 s{d+1}, s{base+1}")
    a(f"s_mov_b32 s{d+2}, {hex(nbytes)}", f"s_mov_b32 s{d+3}, 0x20000")

def red16(a, op, v):
    for r in (8, 4, 2, 1):
        a(f"{op}_dpp v{v}, v{v}, v{v} row_ror:{r} {DPPM}")
def red32(a, op, v, t):
    red16(a, op, v)
    a(f"v_mov_b32 v{t}, v{v}", f"v_permlane16_swap_b32 v{v}, v{t}", f"{op} v{v}, v{v}, v{t}")
def red64x2(a, op1, v1, t1, op2, v2, t2):
    for r in (8, 4, 2, 1):
        a(f"{op1}_dpp v{v1}, v{v1}, v{v1} row_ror:{r} {DPPM}", f"{op2}_dpp v{v2}, v{v2}, v{v2} row_ror:{r} {DPPM}")
    for ins in ("v_permlane16_swap_b32", "v_permlane32_swap_b32"):
        a(f"v_mov_b32 v{t1}, v{v1}", f"v_mov_b32 v{t2}, v{v2}", f"{ins} v{v1}, v{t1}", f"{ins} v{v2}, v{t2}")
        a(f"{op1} v{v1}, v{v1}, v{t1}", f"{op2} v{v2}, v{v2}, v{t2}")

SPIN = eval(os.environ.get("SPIN", "None"))
def spin_rec(a, ph, i):
    if not SPIN or SPIN[1:] != (ph, i): return
    a("s_memrealtime s[46:47]")
def spin_end(a):
    if not SPIN: return
    lo, hi = eval(os.environ.get("SPINI", "(0,32)"))
    a("KS_SPIN:")
    if SPIN[2] == 9: a("s_memrealtime s[46:47]")
    a(f"s_sub_u32 s48, s{S_I}, {lo}", f"s_cmp_ge_u32 s48, {hi-lo}", "s_cbranch_scc1 KS_END")
    a(f"s_lshr_b32 s48, {hex(SPIN[0])}, s{S_WAVE}", "s_bitcmp1_b32 s48, 0", "s_cbranch_scc0 KS_END")
    a("s_mov_b64 exec, -1", "v_mov_b32 v4, 0")
    a("KS_SP0:")
    a(f"global_load_dword v8, v4, s[{P_DBG}:{P_DBG+1}] offset:64 sc1", "s_waitcnt vmcnt(0) lgkmcnt(0)", "v_readfirstlane_b32 s44, v8", "s_cmp_eq_u32 s44, 0", "s_cbranch_scc1 KS_SP0")
    if SPIN[2] == -1: a("s_mov_b32 s46, s44")
    a("s_sub_u32 s48, s46, s44", "s_add_u32 s48, s48, 200")
    if ENV("SPINMIN", 0): a(f"s_sub_u32 s48, {ENV('SPINMIN', 0)}, s48")
    a("s_min_u32 s48, s48, 3000", "s_lshl_b32 s48, s48, 2", "s_add_u32 s48, s48, 2000")
    a("SPINL:", "s_sleep 1", "s_memrealtime s[50:51]", "s_waitcnt lgkmcnt(0)", "s_sub_u32 s50, s50, s44", "s_cmp_lt_u32 s50, s48", "s_cbranch_scc1 SPINL")
def stamp_begin(a):
    if SPIN: a("s_memrealtime s[46:47]")
    if not STAMP: return
    a("s_memrealtime s[44:45]")
    for i in range(1, 9): a(f"s_mov_b32 s{44+2*i}, 0")
def cstamp(a, i):
    if STAMP == 9: a(f"s_memtime s[{44+2*i}:{45+2*i}]")
def kstamp(a, i):
    if STAMP == 7: a(f"s_memtime s[{44+2*i}:{45+2*i}]")
def stamp(a, i, ph=1):
    spin_rec(a, ph, i)
    if ph == 2 and STAMP not in (2, 3): return
    if STAMP == 7 and i == 1: return kstamp(a, 1)
    if not STAMP or STAMP in (7, 9): return
    assert 1 <= i <= 8
    a(f"{'s_memtime' if STAMP == 8 else 's_memrealtime'} s[{44+2*i}:{45+2*i}]")
def stamp2(a, i):
    stamp(a, i, 2)
def stamp_end(a):
    if not STAMP: return
    a("s_waitcnt vmcnt(0) lgkmcnt(0)")
    a("s_memrealtime s[62:63]")
    a(f"s_lshl_b32 s43, s2, 4", f"s_add_u32 s43, s43, s{S_WAVE}", "s_lshl_b32 s43, s43, 6", f"s_add_u32 s43, s43, {hex(WS_STAMP)}")
    a("s_mov_b64 exec, 1")
    a("s_waitcnt lgkmcnt(0)")
    a("v_mov_b32 v1, s43")
    for i in range(10): a(f"v_mov_b32 v{4+i}, s{44+2*i}")
    a(f"global_store_dwordx4 v1, v[4:7], s[{P_WS}:{P_WS+1}]")
    a(f"global_store_dwordx4 v1, v[8:11], s[{P_WS}:{P_WS+1}] offset:16")
    a(f"global_store_dwordx2 v1, v[12:13], s[{P_WS}:{P_WS+1}] offset:32")
def endwave(a):
    stamp_end(a)
    a("s_branch KS_SPIN" if SPIN else "s_endpgm")

def unpack(a, dst, src):
    a(f"v_lshlrev_b32 v{dst}, 16, v{src}", f"v_and_b32 v{dst+1}, 0xffff0000, v{src}")

def ln_stats(a, X, m2, rinv2, t0, t1, t2):
    a(f"v_pk_add_f32 v[{t0}:{t0+1}], v[{X}:{X+1}], v[{X+2}:{X+3}]")
    a(f"v_pk_add_f32 v[{t1}:{t1+1}], v[{X+4}:{X+5}], v[{X+6}:{X+7}]")
    for j in range(4, 9):
        t = t0 if j % 2 == 0 else t1
        a(f"v_pk_add_f32 v[{t}:{t+1}], v[{t}:{t+1}], v[{X+2*j}:{X+2*j+1}]")
    a(f"v_pk_add_f32 v[{t0}:{t0+1}], v[{t0}:{t0+1}], v[{t1}:{t1+1}]")
    a(f"v_add_f32 v{t0}, v{t0}, v{t0+1}")
    red32(a, "v_add_f32", t0, t1)
    a(f"v_mul_f32 v{t2}, {f32(1.0/576)}, v{t0}")
    a(f"v_mov_b32 v{t2+1}, v{t2}")
    a(f"v_cvt_pk_bf16_f32 v{m2}, v{t2}, v{t2}")
    a(f"v_and_b32 v{m2}, 0xffff0000, v{m2}", f"v_mov_b32 v{m2+1}, v{m2}")
    first = {t0: True, t1: True}
    for j in range(9):
        t = t0 if j % 2 == 0 else t1
        a(f"v_pk_add_f32 v[{rinv2}:{rinv2+1}], v[{X+2*j}:{X+2*j+1}], v[{t2}:{t2+1}] neg_lo:[0,1] neg_hi:[0,1]")
        if first[t]:
            a(f"v_pk_mul_f32 v[{t}:{t+1}], v[{rinv2}:{rinv2+1}], v[{rinv2}:{rinv2+1}]"); first[t] = False
        else:
            a(f"v_pk_fma_f32 v[{t}:{t+1}], v[{rinv2}:{rinv2+1}], v[{rinv2}:{rinv2+1}], v[{t}:{t+1}]")
    a(f"v_pk_add_f32 v[{t0}:{t0+1}], v[{t0}:{t0+1}], v[{t1}:{t1+1}]")
    a(f"v_add_f32 v{t0}, v{t0}, v{t0+1}")
    red32(a, "v_add_f32", t0, t1)
    a(f"v_mul_f32 v{t0}, {f32(1.0/576)}, v{t0}")
    a(f"v_cvt_pk_bf16_f32 v{t0}, v{t0}, v{t0}", f"v_and_b32 v{t0}, 0xffff0000, v{t0}")
    a(f"v_add_f32 v{t0}, {f32(1e-5)}, v{t0}")
    a(f"v_cvt_pk_bf16_f32 v{t0}, v{t0}, v{t0}", f"v_and_b32 v{t0}, 0xffff0000, v{t0}")
    a(f"v_sqrt_f32 v{t0}, v{t0}")
    a(f"v_cvt_pk_bf16_f32 v{t0}, v{t0}, v{t0}", f"v_and_b32 v{t0}, 0xffff0000, v{t0}")
    a(f"v_rcp_f32 v{rinv2}, v{t0}")
    a(f"v_mov_b32 v{rinv2+1}, v{rinv2}")

def ln_apply_pair(a, x, m2, rinv2, t, P):
    a(f"v_pk_add_f32 v[{t}:{t+1}], v[{x}:{x+1}], v[{m2}:{m2+1}] neg_lo:[0,1] neg_hi:[0,1]")
    a(f"v_cvt_pk_bf16_f32 v{P}, v{t}, v{t+1}")
    unpack(a, t, P)
    a(f"v_pk_mul_f32 v[{t}:{t+1}], v[{t}:{t+1}], v[{rinv2}:{rinv2+1}]")
    a(f"v_cvt_pk_bf16_f32 v{P}, v{t}, v{t+1}")
    unpack(a, t, P)

VZ, VONE = 4, 5
_lbl = [0]
def newlabel(p="L"):
    _lbl[0] += 1
    return f"{p}_{_lbl[0]}"
def guard(a):
    a(f"s_sub_u32 s{S_GUARD}, s{S_GUARD}, 1", "s_cbranch_scc1 KS_ABORT")
def lds_wait(a, off, t, kind="b4", addr=VZ, sleep=0):
    l = newlabel("W")
    a(f"{l}:")
    if sleep: a(f"s_sleep {sleep}")
    if kind == "b8":
        a(f"ds_read_b64 v[{t}:{t+1}], v{addr} offset:{off}")
    else:
        a(f"ds_read_{'u8' if kind == 'u8' else 'b32'} v{t}, v{addr} offset:{off}")
    guard(a)
    a("s_waitcnt lgkmcnt(0)")
    if kind == "b8": a(f"v_and_b32 v{t}, v{t}, v{t+1}")
    if kind in ("nz", "u8"): a(f"v_cmp_eq_u32 vcc, 0, v{t}")
    else: a(f"v_cmp_ne_u32 vcc, s{S_ONES}, v{t}")
    a(f"s_cbranch_vccnz {l}")

def zpoll(a, loads, regs, sleep):
    lp = newlabel("ZP"); l1 = newlabel("ZPE")
    a(f"s_branch {l1}")
    a(f"{lp}:")
    a(f"s_sleep {sleep}")
    a(f"{l1}:")
    for l in loads: a(l)
    guard(a)
    a("s_waitcnt vmcnt(0)")
    a(f"v_max3_u32 v44, v{regs[0]}, v{regs[1]}, v{regs[2]}")
    r = regs[3:]
    while len(r) >= 2: a(f"v_max3_u32 v44, v44, v{r[0]}, v{r[1]}"); r = r[2:]
    if r: a(f"v_max_u32 v44, v44, v{r[0]}")
    a("v_cmp_eq_u32 vcc, -1, v44", f"s_cbranch_vccnz {lp}")

class Pool:
    def __init__(self, regs): self.free = list(regs)
    def get(self): return self.free.pop(0)
    def put(self, r): self.free.append(r)
def ce_inlane(a, x, i, j, pool):
    t = pool.get()
    a(f"v_max_u32 v{t}, v{x[i]}, v{x[j]}", f"v_min_u32 v{x[j]}, v{x[i]}, v{x[j]}")
    pool.put(x[i]); x[i] = t
def clean8(a, x, pool, DE, rev=False):
    t = [pool.get() for _ in range(4)]
    for i in range(4):
        a(f"v_mov_b32_dpp v{t[i]}, v{x[3-i if rev else i]} quad_perm:[1,0,3,2] {DPPM}")
    for i in range(4):
        a(f"v_med3_u32 v{t[i]}, v{x[i]}, v{t[i]}, v{DE}")
    for i in range(4): pool.put(x[i]); x[i] = t[i]
    for (i, j) in ((0, 2), (1, 3), (0, 1), (2, 3)): ce_inlane(a, x, i, j, pool)
def merge_mirror(a, x, pool, M):
    c = [pool.get() for _ in range(4)]
    for i in range(4):
        a(f"v_max_u32_dpp v{c[i]}, v{x[3-i]}, v{x[i]} {M} {DPPM}")
    for i in range(4): pool.put(x[i]); x[i] = c[i]
def merge_pair(a, x, y, pool):
    for i in range(4):
        a(f"v_max_u32_dpp v{x[i]}, v{y[3-i]}, v{x[i]} quad_perm:[1,0,3,2] {DPPM}")
    for i in range(4): pool.put(y[i])
MIRRORS = ("quad_perm:[3,2,1,0]", "row_half_mirror", "row_mirror")

GW = 48
def g_addr_setup(a, A):
    a(f"s_sub_u32 s{S_G}, s{S_WAVE}, 12")
    a(f"s_mul_i32 s{T0_}, s{S_G}, 9", f"s_add_u32 s{T0_}, s{T0_}, 1", f"s_lshr_b32 s{S_ROLE}, s{T0_}, 1")
    a(f"s_lshl_b32 s{T0_}, s{S_ROLE}, 5", f"v_lshl_add_u32 v7, v3, 3, s{T0_}", "v_mul_u32_u24 v7, 9216, v7")
    a("v_and_b32 v6, 7, v2", "v_lshl_add_u32 v7, v6, 3, v7")
    a(f"s_lshl_b32 s{T0_}, s{S_BLK}, 6", f"v_add_u32 v7, s{T0_}, v7")
    a("v_cmp_gt_u32 vcc, 8, v2")
    a(f"s_mov_b32 s{R3}, 9216", f"s_mov_b32 s{R3+1}, 0", f"s_mov_b32 s{R3+2}, {9216*25}", f"s_mov_b32 s{R3+3}, 0")
    a(f"v_mov_b32 v{A}, s{P_GATE}", f"v_mov_b32 v{A+1}, s{P_GATE+1}", f"v_mov_b32 v6, s{P_UP}")
    a(f"v_cndmask_b32 v{A}, v6, v{A}, vcc", f"v_mov_b32 v6, s{P_UP+1}", f"v_cndmask_b32 v{A+1}, v6, v{A+1}, vcc")
    a(f"v_add_co_u32 v{A}, vcc, v{A}, v7", f"v_addc_co_u32 v{A+1}, vcc, 0, v{A+1}, vcc")
def g_loads(a, A, kss, mod=""):
    for ks in kss:
        for r in range(8):
            d = GW + 16 * ks + 2 * r
            a(f"global_load_dwordx2 v[{d}:{d+1}], v[{A}:{A+1}], off" + mod)
            if not (ks == 4 and r == 7):
                a(f"v_lshl_add_u64 v[{A}:{A+1}], v[{A}:{A+1}], 0, s[{R3 if r < 7 else R3+2}:{R3+1 if r < 7 else R3+3}]")
GTRIG = ENV("GTRIG", 2)
PF = ENV("PF", 1)
NL, NN, NC = ENV("NL", 0), ENV("NN", 0), ENV("NC", 4)
NE = ENV("NE", 0)
NLL = ENV("NLL", 0)
NL2 = ENV("NL2", 4)
PFB = ENV("PFB", 82)
assert not (PFB and (NL or NE))
PFA = PFB + 16 * NL + 16 * NE
PF0 = PFA + 10 * NLL + 6 * NL2
PF1 = PF0 + 8 * NN + 8 * NC
assert PF1 <= 166
PF2 = ENV("PF2", 166); PFD = ENV("PFD", 0); PFD2 = ENV("PFD2", 0)
GT = eval(os.environ.get("GT", "[0,0,6,6]")); DT = ENV("DT", 3)
DEA = ENV("DEA", 0)
DE = ENV("DE", 1)
def pf_ld(a, dst, v, R):
    for m in MOD("PFM", "nt;sc1").split(";"): a(f"buffer_load_dword v{dst}, v{v}, s[{R}:{R+3}], s{T4_} offen {m}")
def pf_lane(a, v, t):
    a(f"v_mul_u32_u24 v{v}, 57, v1", f"v_lshrrev_b32 v{v}, 9, v{v}", f"v_mul_u32_u24 v{t}, 9, v{v}", f"v_sub_u32 v{t}, v1, v{t}", f"v_mul_u32_u24 v{v}, 9216, v{v}", f"v_lshl_add_u32 v{v}, v{t}, 7, v{v}")
def pf_gu_setup(a, sidx, R=R2_, tb=T3_, tt=T4_):
    a(f"s_bitcmp1_b32 s{sidx}, 0", f"s_cselect_b32 s{R}, s{P_UP}, s{P_GATE}", f"s_cselect_b32 s{R+1}, s{P_UP+1}, s{P_GATE+1}")
    a(f"s_mov_b32 s{R+2}, {hex(D*F*2)}", f"s_mov_b32 s{R+3}, 0x20000")
    a(f"s_lshr_b32 s{tb}, s{sidx}, 1", f"s_mul_i32 s{tb}, s{tb}, {7*9216}", f"s_mul_i32 s{tt}, s{S_XC}, 1152", f"s_add_u32 s{tb}, s{tb}, s{tt}")
def pf_gu(a, v, sidx, nw, u0, u1, dst, done):
    assert u0 % 2 == 0 and nw % 2 == 0
    pf_gu_setup(a, sidx)
    k = 0
    while u0 + k * nw < u1:
        if u0 + (k + 1) * nw > u1: a(f"s_cmp_ge_u32 s{sidx}, {u1 - u0 - k*nw}", f"s_cbranch_scc1 {done}")
        a(f"s_add_u32 s{T4_}, s{T3_}, {(u0 + k*nw)//2*7*9216}")
        pf_ld(a, dst, v, R2_)
        k += 1
def pf_down(a, sidx, nw, u0, u1, v, dst, done, R=R2_):
    srd(a, R, P_DOWN, D * F * 2)
    a(f"s_lshl_b32 s{T3_}, s{sidx}, 13", f"s_mul_i32 s{T4_}, s{S_XC}, {576*1152}", f"s_add_u32 s{T3_}, s{T3_}, s{T4_}", f"v_lshlrev_b32 v{v}, 7, v1")
    k = 0
    while u0 + k * nw < u1:
        if u0 + (k + 1) * nw > u1: a(f"s_cmp_ge_u32 s{sidx}, {u1 - u0 - k*nw}", f"s_cbranch_scc1 {done}")
        a(f"s_add_u32 s{T4_}, s{T3_}, {(u0 + k*nw)*8192}")
        pf_ld(a, dst, v, R)
        k += 1
def gen_ln1(a):
    LW, TB = T5_, S_CH
    X, RAW = 8, 26
    a(f"s_sub_u32 s{T0_}, s{S_I}, 8", f"s_and_b32 s{TB}, s{T0_}, 7", f"s_lshr_b32 s{T0_}, s{T0_}, 3", f"s_lshl_b32 s{T0_}, s{T0_}, 4", f"s_add_u32 s{TB}, s{TB}, s{T0_}")
    a(f"s_and_b32 s{T0_}, s{S_XC}, 1", f"s_lshl_b32 s{T0_}, s{T0_}, 3", f"s_add_u32 s{TB}, s{TB}, s{T0_}", f"s_lshr_b32 s{T0_}, s{S_XC}, 1", f"s_lshl_b32 s{T0_}, s{T0_}, 5", f"s_add_u32 s{TB}, s{TB}, s{T0_}")
    a("v_lshrrev_b32 v36, 5, v1", "v_and_b32 v37, 31, v1")
    a("v_mul_u32_u24 v38, 1152, v36", "v_lshl_add_u32 v39, v37, 2, v38", "v_lshl_add_u32 v38, v37, 4, v38")
    a(f"s_mul_i32 s{T1_}, s{TB}, 18432", f"s_mul_i32 s{T2_}, s{LW}, 2304", f"s_add_u32 s{T1_}, s{T1_}, s{T2_}")
    a("s_waitcnt lgkmcnt(0)")
    stamp(a, 1)
    srd(a, R0, P_X, XBYTES)
    a(f"buffer_load_dwordx4 v[{RAW}:{RAW+3}], v38, s[{R0}:{R0+3}], s{T1_} offen")
    a(f"buffer_load_dwordx4 v[{RAW+4}:{RAW+7}], v38, s[{R0}:{R0+3}], s{T1_} offen offset:512")
    a(f"buffer_load_dword v{RAW+8}, v39, s[{R0}:{R0+3}], s{T1_} offen offset:1024")
    a("s_barrier")
    a(f"s_lshr_b32 s{T1_}, s{LW}, 2", f"s_lshl_b32 s{T1_}, s{T1_}, 6", f"s_add_u32 s{T2_}, s{T2_}, s{T1_}", f"s_add_u32 s{T2_}, s{T2_}, {C_LNB}")
    a(f"v_lshl_add_u32 v35, v37, 1, v36")
    a(f"s_mov_b32 s{SP0}, 0x05040100", f"s_mov_b32 s{SP1}, 0x07060302")
    def waits(n):
        for (c, js) in ((2, range(0, 4)), (1, range(4, 8)), (0, range(8, 9))):
            a(f"s_waitcnt vmcnt({c+n})")
            for j in js: unpack(a, X + 2 * j, RAW + j)
    l1 = newlabel("LN1A"); l2 = newlabel("LN1B")
    if NL:
        LW0 = ENV("NLW", 4)
        pf_lane(a, 46, 47)
        a(f"s_sub_u32 s{T1_}, s{LW}, {LW0}", f"s_and_b32 s{T1_}, s{T1_}, 7", f"s_lshl_b32 s{T3_}, s{T1_}, 4", f"s_add_u32 s{T3_}, s{T3_}, s{S_I}", f"s_sub_u32 s{T3_}, s{T3_}, 8")
        pf_gu_setup(a, T3_, R3, T4_, T0_)
    def dma_early(skip):
        a(f"s_cmp_lt_u32 s{LW}, 4", f"s_cbranch_scc1 {skip}", f"s_cmp_ge_u32 s{S_I}, 18", f"s_cbranch_scc1 {skip}")
        srd(a, R1, P_DOWN, F * D * 2)
        a("v_lshlrev_b32 v46, 4, v1", f"s_mul_i32 s{T0_}, s{S_BLK}, 36864", f"s_mul_i32 s{T1_}, s{LW}, 9216", f"s_add_u32 s{T0_}, s{T0_}, s{T1_}", f"s_sub_u32 s{T0_}, s{T0_}, {4*9216}", f"s_add_u32 s{T1_}, s{T1_}, {C_DOWN - 4*9216}")
        for k in range(9):
            if k % 4 == 0:
                a(f"s_add_u32 m0, s{T1_}, {1024*k}")
                if k: a(f"s_add_u32 s{T0_}, s{T0_}, 4096")
            a(f"buffer_load_dwordx4 v46, s[{R1}:{R1+3}], s{T0_} offen offset:{1024*(k&3)} {MOD('DM', 'nt')} lds")
    if DEA == 1:
        dma_early(l1)
        waits(9)
        a(f"s_branch {l2}")
        a(f"{l1}:")
        waits(0)
        a.flush(2)
        a(f"{l2}:")
    elif DEA == 2:
        waits(0)
        dma_early(l1)
        a(f"{l1}:")
    elif NL and ENV("NLE", 0):
        a(f"s_cmp_lt_u32 s{T1_}, {NL}", f"s_cselect_b32 s{T4_}, s{T4_}, {hex(D*F*2)}")
        pf_ld(a, 47, 46, R3)
        waits(len(MOD("PFM", "nt;sc1").split(';')))
    else:
        waits(0)
    if NL and not ENV("NLE", 0):
        if ENV("X0", 0): a(f"s_cmp_eq_u32 s{S_XC}, 0", f"s_cbranch_scc1 {l1}")
        a(f"s_cmp_ge_u32 s{T1_}, {NL}", f"s_cbranch_scc1 {l1}")
        pf_ld(a, 47, 46, R3)
        a(f"{l1}:")
    stamp(a, 2)
    a(f"v_lshl_add_u32 v6, v35, 4, s{T2_}", f"v_lshl_add_u32 v7, v35, 2, s{T2_}")
    a(f"v_mul_u32_u24 v35, 0x20202, v36", "v_lshl_add_u32 v35, v36, 25, v35", "v_add_u32 v35, 0x05040100, v35")
    ln_stats(a, X, 36, 38, 40, 42, 44)
    for j in range(9):
        if j == ENV("DSAMP", 3): a("v_and_b32 v59, 3, v1", "v_lshlrev_b32 v59, 2, v59", f"global_load_dword v58, v59, s[{P_DBG}:{P_DBG+1}] sc1")
        ln_apply_pair(a, X + 2 * j, 36, 38, 40, 42)
        a(f"v_cvt_pk_f16_f32 v{RAW+j}, v40, v41")
        if j in (3, 7):
            P = RAW + j - 3; O = X + 2 * (j - 3)
            a(f"v_permlane32_swap_b32 v{P}, v{P+2}", f"v_permlane32_swap_b32 v{P+1}, v{P+3}")
            a(f"v_perm_b32 v{O}, v{P+2}, v{P}, s{SP0}", f"v_perm_b32 v{O+1}, v{P+2}, v{P}, s{SP1}")
            a(f"v_perm_b32 v{O+2}, v{P+3}, v{P+1}, s{SP0}", f"v_perm_b32 v{O+3}, v{P+3}, v{P+1}, s{SP1}")
            a(f"ds_write_b128 v6, v[{O}:{O+3}] offset:{1024*(j//4)}")
    a(f"v_mov_b32 v40, v{RAW+8}", f"v_permlane32_swap_b32 v{RAW+8}, v40")
    a(f"v_perm_b32 v40, v40, v{RAW+8}, v35")
    a(f"ds_write_b32 v7, v40 offset:2048")
    a(f"v_mov_b32 v6, s{LW}")
    a(f"ds_write_b8 v6, v{VONE} offset:{FL_LN1}")
    a("s_setprio 0")
    a(f"s_cmp_ge_u32 s{LW}, 4", "s_cbranch_scc1 KS_X4")
    a("s_setprio 3")
    srd(a, R2_, P_WS, XBYTES, WS_UT)
    a("v_and_b32 v6, 1, v0", "v_mul_u32_u24 v6, 9280, v6", "v_lshrrev_b32 v7, 1, v0", "v_lshl_add_u32 v6, v7, 2, v6", f"v_add_u32 v6, {C_LNB}, v6")
    a("v_lshrrev_b32 v7, 2, v0", "v_mul_u32_u24 v7, 0x2080, v7" if SWU else "v_lshlrev_b32 v7, 13, v7", "v_and_b32 v8, 3, v0", "v_lshl_add_u32 v7, v8, 4, v7")
    a(f"s_lshl_b32 s{T0_}, s{TB}, 6")
    if SWU: a(f"v_xor_b32 v7, s{T0_}, v7", f"s_mov_b32 s{T0_}, 0")
    for k in range(1, 5): a(f"s_add_u32 s{T0_+k}, s{T0_}, {0x80000*k}")
    dbg_wait(a, 0)
    a(f"ds_write_b32 v59, v58 offset:{FL_NONCE}")
    a(f"s_mov_b32 s{SP0}, {hex(TAGM)}")
    for d in range(1, 4): a(f"v_lshrrev_b32 v{58-d}, {3*d}, v58")
    lds_wait(a, FL_LN1, 20, "b8")
    stamp(a, 3)
    for k in range(5):
        a(f"ds_read2st64_b32 v[{20+4*k}:{21+4*k}], v6 offset0:{2*k} offset1:{9+2*k}")
        a(f"ds_read2st64_b32 v[{22+4*k}:{23+4*k}], v6 offset0:{18+2*k} offset1:{27+2*k}")
    for k in range(5):
        a(f"s_waitcnt lgkmcnt({8-2*k})")
        for d in range(4): a(f"v_bfi_b32 v{20+4*k+d}, s{SP0}, v{58-d}, v{20+4*k+d}")
        a(f"buffer_store_dwordx4 v[{20+4*k}:{23+4*k}], v7, s[{R2_}:{R2_+3}], s{T0_+k} offen {MOD('USMOD')}")
    if DE: a(f"v_mov_b32 v6, s{LW}", f"ds_write_b8 v6, v{VONE} offset:{FL_UTOK}")
    stamp(a, 4)

def dbg_wait(a, n, vt=58, va=59):
    lp = newlabel("DBP"); go = newlabel("DBG")
    a(f"s_waitcnt vmcnt({n})")
    a(f"{lp}:")
    a(f"v_cmp_eq_u32 vcc, 0, v{vt}", f"s_cbranch_vccz {go}")
    a("s_sleep 1")
    a(f"global_load_dword v{vt}, v{va}, s[{P_DBG}:{P_DBG+1}] sc1")
    guard(a)
    a("s_waitcnt vmcnt(0)")
    a(f"s_branch {lp}")
    a(f"{go}:")

ROLE_TILES = {0: [0, 1, 2, 3, 4], 1: [0, 1, 2, 3, 4], 2: [5, 6, 7], 3: [5, 6, 7]}
ROLE_W = {2: 0, 3: 1, 1: 2}
ACC, DA, RING, WT = 16, 36, 76, 92
NRING = 4

def epi_plan():
    owner = {0: (0, 0), 1: (0, 1), 2: (1, 0), 3: (1, 1), 4: (1, 3), 5: (0, 2), 6: (0, 3), 7: (1, 2)}
    slots = {}
    cnt = [0, 0]
    for g in range(2):
        for role in range(4):
            for j in ROLE_TILES[role]:
                if owner[j] == (g, role): continue
                slots[(g, role, j)] = g * G_SIZE + R_RED + 1024 * cnt[g]; cnt[g] += 1
    assert max(cnt) <= 13, cnt
    ownerC = {0: 0, 1: 0, 2: 1, 3: 1, 4: 2, 5: 2, 6: 3, 7: 3}
    n = 0
    for role in range(4):
        for j in ROLE_TILES[role]:
            if ownerC[j] == role: continue
            slots[(2, role, j)] = 2 * G_SIZE + R_RED + 1024 * n; n += 1
    return owner, ownerC, slots

class LdsTrack:
    def __init__(self, a): self.a = a; self.n = 0; self.done = -1
    def issue(self, text): self.a(text); self.n += 1; return self.n - 1
    def wait(self, idx):
        k = self.n - 1 - idx
        if idx <= self.done: return
        self.done = idx
        if k <= 15: self.a(f"s_waitcnt lgkmcnt({k})")

CZ0, CZ1, CSH, CXR, CFL, SIS, CM, SM, SC, SSC, SDL = 6, 7, 8, 9, 10, 11, 12, 14, 15, 16, 18
IXR, LFR = (108, 109, 112, 113), (110, 111, 114, 115)
def stage_write(a, off):
    a("v_lshl_or_b32 v24, v25, 16, v24", "v_lshl_or_b32 v25, v27, 16, v26", f"ds_write_b64 v28, v[24:25] offset:{off}")
def pre_ixlf(a):
    end = newlabel("PX"); j1 = newlabel("PX"); j2 = newlabel("PX"); jn = newlabel("PX")
    a(f"s_cmp_eq_u32 s{S_ROLE}, 3", f"s_cbranch_scc1 {end}")
    a("v_lshlrev_b32 v26, 3, v2", "v_mov_b32 v21, 0x80")
    a(f"s_cmp_eq_u32 s{S_ROLE}, 1", f"s_cbranch_scc1 {j1}", f"s_cmp_eq_u32 s{S_ROLE}, 2", f"s_cbranch_scc1 {j2}")
    a("v_lshl_add_u32 v26, v3, 1, v26", "v_mov_b32 v22, 1")
    a(f"s_branch {jn}")
    a(f"{j1}:")
    a("v_cmp_gt_u32 vcc, 2, v3", "v_lshl_add_u32 v20, v3, 2, v26", "v_add_u32 v20, 256, v20", "v_lshl_add_u32 v26, v3, 8, v26", "v_cndmask_b32 v26, v26, v20, vcc")
    a("v_cndmask_b32 v22, v21, 2, vcc", "v_cndmask_b32 v21, 4, v21, vcc")
    a(f"s_branch {jn}")
    a(f"{j2}:")
    a("v_lshl_add_u32 v26, v3, 9, v26", "v_add_u32 v26, 0x400, v26", "v_mov_b32 v22, 0x100")
    a(f"{jn}:")
    a(f"v_mad_u32_u24 v26, v22, s{S_G}, v26", "v_add_u32 v27, v26, v21", f"s_movk_i32 s{T4_}, {T_TAB}", f"s_movk_i32 s{T5_}, {-(0x4280 + 0x800)}", f"s_lshl_b32 s{T3_}, s{S_G}, 9")
    for r in range(2): a(f"v_cvt_f32_u32 v{20+r}, v{26+r}", f"v_max_u32 v{22+r}, 0x800, v{26+r}")
    for r in range(2):
        a(f"v_cmp_gt_u32 vcc, 0x80, v{26+r}", f"v_lshrrev_b32 v{24+r}, 16, v{20+r}", f"v_add3_u32 v{24+r}, v{24+r}, v{22+r}, s{T5_}", f"v_cndmask_b32 v{24+r}, v{24+r}, v{26+r}, vcc")
    for r in range(2):
        a(f"v_min_u32 v{24+r}, {IDX_DUMMY}, v{24+r}", f"v_lshl_add_u32 v{24+r}, v{24+r}, 1, s{T4_}")
    a(f"v_add_u32 v29, s{T3_}, v28")
    a("v_lshl_or_b32 v24, v25, 16, v24", "v_lshl_or_b32 v25, v27, 16, v26", "ds_write_b64 v29, v[24:25]")
    a(f"{end}:")

def gen_group(a):
    RAW, VLDT, VDSK, VNT, VNA, VPR, VEM, VTE, VTL = 40, 46, 107, 104, 105, 106, 72, 126, 127
    I1, D2, I2, D1, D3 = 116, 119, 120, 124, 125
    a(f"s_lshl_b32 s{T0_}, s{S_CH}, 8", f"v_lshl_add_u32 v20, v1, 2, s{T0_}")
    a(f"s_lshl_b32 s{T0_}, s{S_CH}, 1", f"v_mov_b32 v21, s{T0_}")
    a(f"s_mul_i32 s{S_GB}, s{S_G}, {G_SIZE}", f"s_add_u32 s{S_GB}, s{S_GB}, {G_BASE}")
    a("s_waitcnt lgkmcnt(0)")
    stamp(a, 1)
    a(f"global_load_ushort v{VLDT}, v21, s[{P_LDT}:{P_LDT+1}]")
    for k in range(6):
        a(f"global_load_dword v{RAW+k}, v20, s[{P_ARE+2*k}:{P_ARE+2*k+1}]")
    a(f"global_load_ushort v{VDSK}, v21, s[{P_DSK}:{P_DSK+1}]")
    a("s_barrier")
    a(f"s_movk_i32 s{T4_}, {T_TAB}")
    def dr_addr(dst, x, special=False):
        a(f"v_sub_u32 v30, 544, v{x}", "v_cvt_f32_i32 v31, v30", "v_cmp_gt_u32 vcc, 0x100, v30", "v_cvt_pk_bf16_f32 v31, v31, v31", "v_and_b32 v31, 0xffff, v31", "v_subrev_u32 v31, 0x4280, v31")
        a("v_cndmask_b32 v31, v31, v30, vcc", "v_cmp_lt_u32 vcc, 0x20d, v30")
        if special: a(f"v_or_b32 v30, 1, v{x}")
        a("v_cndmask_b32 v31, v31, v32, vcc")
        if special: a("v_cmp_eq_u32 vcc, 0x25d, v30", "v_cndmask_b32 v31, v31, v33, vcc")
        a(f"v_lshl_add_u32 v{dst}, v31, 1, s{T4_}")
    def g_addr(dst, y0, base, M):
        a(f"v_sub_u32 v30, {y0}, v23", f"v_cmp_lt_u32 vcc, {M}, v30", f"v_lshlrev_b32 v31, 2, v30", f"v_add_u32 v31, {T_TAB + 2*base}, v31", f"v_cndmask_b32 v{dst}, v31, v33, vcc")
    pb = newlabel("PREB"); pw = newlabel("PREW"); pe = newlabel("PREE")
    a(f"s_cmp_eq_u32 s{S_G}, 2", f"s_cbranch_scc1 {pe}")
    a(f"v_mov_b32 v32, {IDX_ZERO}")
    a(f"s_cmp_eq_u32 s{S_G}, 1", f"s_cbranch_scc1 {pb}")
    jl = [newlabel("PRE") for _ in range(4)]
    a(f"v_mov_b32 v33, {T_TAB + 2*IDX_ZERO}")
    for r in range(1, 4): a(f"s_cmp_eq_u32 s{S_ROLE}, {r}", f"s_cbranch_scc1 {jl[r]}")
    a("v_lshlrev_b32 v23, 1, v1")
    for e, (y0, base, M) in enumerate(((93, 389, 61), (92, 389, 61), (94, 388, 62), (93, 388, 62))): g_addr(24 + e, y0, base, M)
    a(f"s_branch {pw}")
    for r, base in ((1, 513), (2, 514)):
        a(f"{jl[r]}:")
        a("v_min_u32 v23, 47, v1", "v_lshlrev_b32 v23, 1, v23")
        for e, y0 in ((0, 64), (1, 63), (3, 62)): g_addr(24 + e, y0, base, 63)
        a("v_mov_b32 v26, v25")
        a(f"s_branch {pw}")
    a(f"{jl[3]}:")
    a("v_cmp_gt_u32 vcc, 9, v1", "v_add_u32 v23, 0x100, v1", "v_mov_b32 v33, 0x200", "v_cndmask_b32 v23, v23, v1, vcc", "v_lshlrev_b32 v23, 1, v23")
    for e in (0, 1, 3):
        if e: a("v_add_u32 v23, 1, v23")
        dr_addr(24 + e, 23, special=True)
    a("v_mov_b32 v26, v25")
    a(f"s_branch {pw}")
    a(f"{pb}:")
    a(f"s_lshl_b32 s{T1_}, s{S_ROLE}, 7", f"s_add_u32 s{T1_}, s{T1_}, 18", f"v_lshl_add_u32 v23, v1, 1, s{T1_}")
    for e in range(3):
        if e: a("v_add_u32 v23, 1, v23")
        dr_addr(24 + e, 23)
    a(f"s_sub_u32 s{T1_}, s{S_ROLE}, 1", f"s_cmp_lt_u32 s{T1_}, 2", f"s_cselect_b32 s{T2_}, 47, 63", f"s_mul_i32 s{T1_}, s{T1_}, {T_G9E - T_G7E}", f"s_add_u32 s{T1_}, s{T1_}, {T_G7E}")
    a(f"s_cmp_eq_u32 s{S_ROLE}, 0", f"s_cselect_b32 s{T1_}, {T_G3}, s{T1_}", f"s_cmp_eq_u32 s{S_ROLE}, 3", f"s_cselect_b32 s{T1_}, {T_DRE}, s{T1_}", f"s_cselect_b32 s{T3_}, 0x100, 0")
    a("v_cmp_gt_u32 vcc, 9, v1", f"v_min_u32 v23, s{T2_}, v1", f"v_add_u32 v30, s{T3_}, v23", "v_cndmask_b32 v23, v30, v23, vcc", f"v_lshl_add_u32 v27, v23, 2, s{T1_}")
    stage_write(a, 1024)
    a(f"v_mov_b32 v24, s{S_ROLE}", f"ds_write_b8 v24, v{VONE} offset:{FL_PRE + 4}")
    a(f"s_branch {pe}")
    a(f"{pw}:")
    stage_write(a, 1536)
    a(f"v_mov_b32 v24, s{S_ROLE}", f"ds_write_b8 v24, v{VONE} offset:{FL_PRE}")
    a(f"{pe}:")
    a(f"s_mul_i32 s{T1_}, s{S_ROLE}, {16*KG_ROW}", f"s_min_u32 s{T2_}, s{T1_}, {KG_T[3]}", f"s_add_u32 s{T2_}, s{T2_}, s{S_GB}")
    a(f"s_lshl_b32 s{T0_}, s{S_G}, 4", f"v_mov_b32 v14, s{T0_}", f"v_add_u32 v15, s{S_ROLE}, v14")
    a(f"v_lshl_add_u32 v{VEM}, v1, 3, s{T2_}")
    for k in range(1, 4): a(f"v_add_u32 v{VEM+k}, {4*KG_ROW*k}, v{VEM}")
    a(f"v_mul_u32_u24 v{VTE}, {KG_ROW}, v2", f"v_lshl_add_u32 v{VTE}, v3, 4, v{VTE}", f"v_add_u32 v{VTE}, s{S_GB}, v{VTE}", f"v_add_u32 v{VTL}, s{T1_}, v{VTE}")
    VDA, VDA2, VB_, VT8, VT16, VG8, VG16, VLN = 6, 7, 8, 9, 10, 11, 13, 12
    a("v_lshlrev_b32 v20, 3, v3", "v_sub_u32 v20, v20, v2", "v_add_u32 v21, 16, v20", "v_lshrrev_b32 v21, 1, v21")
    a("v_and_b32 v22, 1, v2", f"s_add_u32 s{T0_}, s{S_GB}, {T_DRE}", f"v_lshl_add_u32 v21, v21, 2, s{T0_}", f"s_movk_i32 s{T0_}, {T_DRO - T_DRE}", f"s_movk_i32 s{T2_}, {T_G7O - T_G7E}")
    a(f"v_mad_u32_u24 v{VDA}, v22, s{T0_}, v21", f"v_add_u32 v{VDA2}, 640, v{VDA}")
    a(f"v_mad_u32_u24 v23, v22, s{T2_}, v21", f"v_add_u32 v{VG16}, {T_G7E - T_DRE}, v23")
    a("v_lshlrev_b32 v23, 2, v3", "v_sub_u32 v23, v23, v2", f"s_add_u32 s{T0_}, s{S_GB}, {T_G3 + 60}", f"v_lshl_add_u32 v{VG8}, v23, 2, s{T0_}")
    a(f"s_mul_i32 s{T2_}, s{S_G}, {U_SIZE}", f"s_add_u32 s{T2_}, s{T2_}, {C_U}")
    a(f"v_lshl_add_u32 v23, v2, 5, s{T2_}", f"v_lshl_add_u32 v{VB_}, v3, 4, v23")
    a("v_bfe_u32 v20, v1, 2, 2", "v_and_b32 v21, 3, v1", "v_lshl_add_u32 v20, v3, 3, v20")
    a(f"v_lshlrev_b32 v{VNA}, 2, v21")
    a(f"v_lshl_add_u32 v21, v21, 3, s{S_GB}", f"v_lshl_add_u32 v{VT8}, v20, 4, v21", f"v_lshl_add_u32 v{VT16}, v20, 5, v21")
    a(f"v_lshlrev_b32 v{VLN}, 4, v1")
    srd(a, R0, P_WS, 0x240000, WS_ZB1)
    if SWZ: a(f"s_mov_b32 s{CFL}, 0x8080")
    a(f"s_lshl_b32 s{T0_}, s{S_ROLE}, 19", f"s_lshl_b32 s{T1_}, s{S_B2}, 6", f"s_add_u32 s{T0_}, s{T0_}, s{T1_}")
    a(f"s_lshl_b32 s{T1_}, s{S_ROLE}, 16", f"s_lshl_b32 s{T3_}, s{S_CH}, 6", f"s_add_u32 s{T1_}, s{T1_}, s{T3_}", f"s_add_u32 s{T1_}, s{T1_}, {0x200000 - 512*64}")
    if SWZ:
        a(f"s_cmp_eq_u32 s{S_G}, 2", f"s_cselect_b32 s{CZ0}, s{T1_}, s{T0_}", f"s_cselect_b32 s{CSH}, 0x1080, s{CFL}", f"s_cselect_b32 s{T0_}, 1, 3")
        a(f"s_and_b32 s{T0_}, s{T0_}, s{S_ROLE}", f"s_lshl_b32 s{T0_}, s{T0_}, 11", f"s_xor_b32 s{CZ0}, s{CZ0}, s{T0_}", f"s_and_b32 s{CFL}, s{CZ0}, 0x7c0", f"s_xor_b32 s{CZ0}, s{CZ0}, s{CFL}", f"s_xor_b32 s{CZ1}, s{CZ0}, 0x6000")
    else:
        a(f"s_cmp_eq_u32 s{S_G}, 2", f"s_cselect_b32 s{CZ0}, s{T1_}, s{T0_}", f"s_cselect_b32 s{CSH}, 12, 15", f"s_add_u32 s{CZ1}, s{CZ0}, 16384")
    a(f"s_and_b32 s{CXR}, s{S_G}, 1", f"s_lshl_b32 s{CXR}, s{CXR}, 4", f"s_mov_b32 s{CM}, 0x55555555", f"s_mov_b32 s{CM+1}, 0x55555555")
    a(f"s_lshl_b32 s{T0_}, s{S_ROLE}, 8", f"s_add_u32 s{T0_}, s{T0_}, s{S_GB}", f"s_add_u32 s{T0_}, s{T0_}, 36", f"v_lshl_add_u32 v{D1}, v1, 2, s{T0_}")
    a(f"s_movk_i32 s{T0_}, {T_G7O - T_G7E}", f"s_cmp_eq_u32 s{S_ROLE}, 0", f"s_cselect_b32 s{T0_}, {T_G5 - T_G3}, s{T0_}", f"s_cmp_eq_u32 s{S_ROLE}, 3", f"s_cselect_b32 s{T0_}, {T_DRO - T_DRE}, s{T0_}")
    a(f"v_mov_b32 v20, s{S_GB}", f"ds_write_b16 v20, v{VZ} offset:{T_TAB + 2*IDX_ZERO}")
    a(f"s_mov_b32 s{SDL}, s{T0_}", f"v_mov_b32 v{D3}, v28")
    def stage_read():
        lds_wait(a, FL_PRE, 18, "b8")
        a(f"ds_read2st64_b64 v[28:31], v{D3} offset0:0 offset1:1", f"ds_read2st64_b64 v[32:35], v{D3} offset0:2 offset1:3")
    def stage_unpack():
        for k in range(16):
            src = 28 + k // 2; w = f"WORD_{k & 1}"
            if 108 + k in LFR: a(f"v_cvt_f32_u32_sdwa v{108+k}, v{src} dst_sel:DWORD dst_unused:UNUSED_PAD src0_sel:{w}")
            else: a(f"v_add_u32_sdwa v{108+k}, s{S_GB}, v{src} dst_sel:DWORD dst_unused:UNUSED_PAD src0_sel:DWORD src1_sel:{w}")
        a(f"v_add_u32 v{D3}, s{SDL}, v{D2}")
    stage_read()
    a("s_waitcnt lgkmcnt(0)")
    stage_unpack()
    ex = newlabel("EXP")
    if KOFF: a(f"s_lshl_b32 s{T0_}, s{S_G}, 5", f"s_add_u32 s{T0_}, s{T0_}, s{S_I}", f"s_cmp_ge_u32 s{T0_}, {64 + 24}", "s_cbranch_scc1 KC_RECV")
    a(f"s_mov_b32 s{T0_}, {f32(LOG2E_HI)}", f"s_mov_b32 s{T1_}, {f32(LOG2E_LO)}", f"s_mov_b32 s{T2_}, {f32(INV2PI_HI)}", f"s_mov_b32 s{T3_}, {f32(INV2PI_LO)}")
    a(f"s_waitcnt vmcnt(7)")
    a(f"v_lshlrev_b32 v16, 16, v{VLDT}")
    a(f"v_mul_f32 v17, s{T0_}, v16")
    a(f"v_fma_f32 v19, v16, s{T0_}, -v17", f"v_fmac_f32 v19, s{T1_}, v16")
    a("v_exp_f32 v17, v17")
    a(f"v_mul_f32 v19, {f32(math.log(2.0))}, v19")
    a("v_fmac_f32 v17, v17, v19")
    a("v_cvt_pk_bf16_f32 v17, v17, v17", "v_and_b32 v16, 0xffff0000, v17")
    a(f"s_waitcnt vmcnt(5)")
    stamp(a, 2)
    a(f"ds_write_b32 v{VZ}, v{VONE} offset:{FL_PARAM}")
    THH, THL = 68, 70
    for k in range(2): unpack(a, 20 + 2 * k, RAW + k)
    for k in range(2): a(f"v_pk_mul_f32 v[{20+2*k}:{21+2*k}], v[{20+2*k}:{21+2*k}], v[16:17] op_sel_hi:[1,0]")
    a("v_max_f32 v36, v20, v21")
    a(f"v_pk_mul_f32 v[{THH}:{THH+1}], v[22:23], s[{T2_}:{T3_}] op_sel_hi:[1,0]")
    a(f"v_pk_fma_f32 v[{THL}:{THL+1}], v[22:23], s[{T2_}:{T3_}], v[{THH}:{THH+1}] op_sel_hi:[1,0,1] neg_lo:[0,0,1] neg_hi:[0,0,1]")
    a(f"v_pk_fma_f32 v[{THL}:{THL+1}], v[22:23], s[{T2_}:{T3_}], v[{THL}:{THL+1}] op_sel:[0,1,0]")
    T = 90
    def cmul_(dr, di, ar, ai, br, bi, t=T):
        assert di not in (ar, br, bi)
        return [f"v_pk_mul_f32 v[{t}:{t+1}], v[{ai}:{ai+1}], v[{bi}:{bi+1}]",
                f"v_pk_mul_f32 v[{t+2}:{t+3}], v[{ai}:{ai+1}], v[{br}:{br+1}]",
                f"v_pk_fma_f32 v[{di}:{di+1}], v[{ar}:{ar+1}], v[{bi}:{bi+1}], v[{t+2}:{t+3}]",
                f"v_pk_fma_f32 v[{dr}:{dr+1}], v[{ar}:{ar+1}], v[{br}:{br+1}], v[{t}:{t+1}] neg_lo:[0,0,1] neg_hi:[0,0,1]"]
    def cm_(d, x, y, t=T): return cmul_(d, d + 2, x, x + 2, y, y + 2, t)
    def csq_(d, s_, t=T):
        return [f"v_pk_mul_f32 v[{t}:{t+1}], v[{s_+2}:{s_+3}], v[{s_+2}:{s_+3}]",
                f"v_pk_mul_f32 v[{t+2}:{t+3}], v[{s_}:{s_+1}], v[{s_+2}:{s_+3}]",
                f"v_pk_fma_f32 v[{d}:{d+1}], v[{s_}:{s_+1}], v[{s_}:{s_+1}], v[{t}:{t+1}] neg_lo:[0,0,1] neg_hi:[0,0,1]",
                f"v_pk_add_f32 v[{d+2}:{d+3}], v[{t+2}:{t+3}], v[{t+2}:{t+3}]"]
    def cmul(*x): a(*cmul_(*x))
    def csq(*x): a(*csq_(*x))
    CBR, CBI = 32, 34
    sk = newlabel("SK")
    a(f"s_cmp_eq_u32 s{S_ROLE}, 3", f"s_cbranch_scc1 {sk}")
    a("s_waitcnt vmcnt(1)")
    for k in range(2, 6): unpack(a, 20 + 2 * k, RAW + k)
    for k in range(2, 4): a(f"v_pk_mul_f32 v[{20+2*k}:{21+2*k}], v[{20+2*k}:{21+2*k}], v[16:17] op_sel_hi:[1,0]")
    cmul(CBR, CBI, 28, 30, 24, 26)
    a(f"v_max3_f32 v37, abs(v{CBI}), abs(v{CBI+1}), abs(v{CBR})", f"v_max_f32 v37, v37, abs(v{CBR+1})")
    a(f"{sk}:")
    a("s_waitcnt vmcnt(0)")
    a.flush(1)
    a("v_permlane32_swap_b32 v36, v37", "v_max_f32 v36, v36, v37")
    red32(a, "v_max_f32", 36, 38)
    a(f"v_readlane_b32 s{SM}, v36, 0", f"v_readlane_b32 s{SC}, v36, 32")
    a(f"s_add_u32 s{SC}, s{SC}, 0x7fffff", f"s_lshr_b32 s{SC}, s{SC}, 23", f"s_max_u32 s{SC}, s{SC}, 24", f"s_sub_u32 s{SSC}, 269, s{SC}", f"s_lshl_b32 s{SSC}, s{SSC}, 23")
    a(f"v_subrev_f32 v20, s{SM}, v20", f"v_subrev_f32 v21, s{SM}, v21")
    a(f"v_mul_f32 v20, {f32(LOG2E)}, v20", f"v_mul_f32 v21, {f32(LOG2E)}, v21")
    def scale_cb():
        a(f"v_pk_mul_f32 v[{CBR}:{CBR+1}], v[{CBR}:{CBR+1}], s[{SSC}:{SSC+1}] op_sel_hi:[1,0]", f"v_pk_mul_f32 v[{CBI}:{CBI+1}], v[{CBI}:{CBI+1}], s[{SSC}:{SSC+1}] op_sel_hi:[1,0]")
    def anchor(dr, di, l, conj=False):
        lit = {1: "1.0", 2: "2.0"}.get(l, f32(float(l)))
        for e in range(2):
            t = T + 4 * e
            if l != 1: a(f"v_mul_f32 v{t+1}, {lit}, v{THH+e}", f"v_mul_f32 v{t}, {lit}, v{20+e}")
        for e in range(2):
            t = T + 4 * e
            a(f"v_fract_f32 v{t+1}, v{t+1 if l != 1 else THH+e}")
        for e in range(2):
            t = T + 4 * e
            a(f"v_fmac_f32 v{t+1}, {lit}, v{THL+e}")
        for e in range(2):
            t = T + 4 * e
            a(f"v_exp_f32 v{t}, v{t if l != 1 else 20+e}", f"v_cos_f32 v{t+2}, v{t+1}", f"v_sin_f32 v{t+1}, v{t+1}")
        for e in range(2):
            t = T + 4 * e
            a(f"v_mul_f32 v{dr+e}, v{t}, v{t+2}")
            a(f"v_mul_f32 v{di+e}, v{t}, {'-' if conj else ''}v{t+1}")
    em = [0, None]
    def it(cms, row=None, x=None, y=None):
        if em[1]: a(em[1]); em[1] = None
        for k in range(4):
            for c in cms:
                if k < len(c): a(c[k])
        if row is None: return
        t = (98, 76)[em[0] & 1]; em[0] += 1
        for v, tt in ((x, t), (y, t + 2)):
            if v is not None: a(f"v_cvt_pk_f16_f32 v{tt}, v{v}, v{v+2}", f"v_cvt_pk_f16_f32 v{tt+1}, v{v+1}, v{v+3}")
        o = (row & 3) * KG_ROW // 8
        if y is None: em[1] = f"ds_write_b64 v{VEM + row//4}, v[{t}:{t+1}] offset:{8*o}"
        else: em[1] = f"ds_write2_b64 v{VEM + row//4}, v[{t}:{t+1}], v[{t+2}:{t+3}] offset0:{o} offset1:{o + KG_ROW//8}"
    G1, G2, G3 = 40, 44, 48
    VA, VB, VC, VD = 52, 56, 60, 64
    oth = lambda c, p, q: p if c != p else q
    jl = [newlabel("JOB") for _ in range(4)]; jn = newlabel("JOBJ")
    for r in (3, 1, 2): a(f"s_cmp_eq_u32 s{S_ROLE}, {r}", f"s_cbranch_scc1 {jl[r]}")
    anchor(G2, G2 + 2, 128); scale_cb(); anchor(G1, G1 + 2, 1)
    cur = CBR
    for c in range(8):
        nx = oth(cur, VA, VB)
        it([cm_(VC, cur, G2)] + ([cm_(nx, cur, G1, T + 4)] if c < 7 else []), 2 * c, cur, VC); cur = nx
    it([])
    a(f"s_branch {jn}")
    a(f"{jl[1]}:")
    anchor(G2, G2 + 2, 128); scale_cb(); csq(G3, G2); anchor(G1, G1 + 2, 2)
    it([cm_(VA, CBR, G3)]); cur = VA
    it([cm_(VD, VA, G3)])
    for c in range(4):
        nx = oth(cur, VA, VB)
        it([cm_(VC, cur, G2), cm_(nx, cur, G1, T + 4) if c < 3 else csq_(G3, G1, T + 4)], 2 * c, cur, VC); cur = nx
    cur = VD
    for aa in range(4):
        nx = oth(cur, VA, VB)
        it([cm_(VC, cur, G3)] + ([cm_(nx, cur, G2, T + 4)] if aa < 3 else []), 8 + 2 * aa, cur, VC); cur = nx
    it([])
    a(f"s_branch {jn}")
    a(f"{jl[3]}:")
    anchor(G1, G1 + 2, 8, conj=True)
    a(f"v_mov_b32 v{VA}, {f32(32768.0)}", f"v_mov_b32 v{VA+1}, {f32(32768.0)}", f"v_mov_b32 v{VA+2}, 0", f"v_mov_b32 v{VA+3}, 0")
    sc_ = lambda d, x: [f"v_pk_mul_f32 v[{d}:{d+1}], v[{x}:{x+1}], v[{VA}:{VA+1}]", f"v_pk_mul_f32 v[{d+2}:{d+3}], v[{x+2}:{x+3}], v[{VA}:{VA+1}]"]
    it([csq_(G2, G1), sc_(VC, G1)])
    ce, co = VA, VC
    for b in range(8):
        ne, no = oth(ce, VA, VB), oth(co, VC, VD)
        it([] if b == 7 else [sc_(ne, G2) if b == 0 else cm_(ne, ce, G2), cm_(no, co, G2, T + 4)], 2 * b, ce, co); ce, co = ne, no
    it([])
    a(f"ds_write_b8 v15, v{VONE} offset:{FL_G}")
    stamp(a, 3)
    if KOFF: a(f"s_cmp_eq_u32 s{S_G}, 2", "s_cbranch_scc1 KS_G0")
    a(f"s_branch {ex}")
    if KOFF:
        a("KC_SEND:")
        lds_wait(a, FL_NONCE, VNT, "nz", addr=VNA)
        a(f"s_lshl_b32 s{T0_}, s{S_CH}, 12", f"s_lshl_b32 s{T1_}, s{S_ROLE}, 10", f"s_add_u32 s{T0_}, s{T0_}, s{T1_}", f"s_add_u32 s{T0_}, s{T0_}, {hex(WS_KT - 512*4096)}", f"v_add_u32 v24, s{T0_}, v{VLN}")
        a(f"s_mov_b32 s{T1_}, 0xffff", f"v_lshlrev_b32 v25, 16, v{VNT}")
        for r in range(4): a(f"v_cvt_f16_f32 v{20+r}, v{20+r}")
        a(f"s_cmp_lg_u32 s{S_ROLE}, 2", "s_cbranch_scc1 KC_S2")
        a("s_mov_b32 exec_lo, 0", "s_mov_b32 exec_hi, 0xffff0000")
        a(f"v_mov_b32 v20, v{VPR}", f"v_lshrrev_b32 v21, 16, v{VPR}")
        a("s_mov_b64 exec, -1")
        a("KC_S2:")
        for r in range(4): a(f"v_bfi_b32 v{20+r}, s{T1_}, v{20+r}, v{25 if r & 1 else VNT}")
        a(f"global_store_dwordx4 v24, v[20:23], s[{P_WS}:{P_WS+1}] sc1")
        stamp(a, 4)
        a("s_branch KS_G0")
        a("KC_RECV:")
        a(f"s_cmp_eq_u32 s{S_ROLE}, 3", f"s_cbranch_scc1 {ex}")
        a(f"s_lshl_b32 s{T0_}, s{S_CH}, 12", f"s_lshl_b32 s{T1_}, s{S_ROLE}, 10", f"s_add_u32 s{T0_}, s{T0_}, s{T1_}", f"s_add_u32 s{T0_}, s{T0_}, {hex(WS_KT - 512*4096)}", f"v_add_u32 v24, s{T0_}, v{VLN}")
        lds_wait(a, FL_NONCE, VNT, "nz", addr=VNA, sleep=2)
        a(f"v_lshlrev_b32 v25, 16, v{VNT}")
        stamp(a, 2)
        lds_wait(a, FL_G + {0: 0, 1: 4, 2: 16}[ENV("KTRIG", 1)], 17, "b4", sleep=2)
        lp = newlabel("KP"); l1 = newlabel("KPE")
        a(f"s_branch {l1}")
        a(f"{lp}:")
        a("s_sleep 2")
        a(f"{l1}:")
        a(f"global_load_dwordx4 v[20:23], v24, s[{P_WS}:{P_WS+1}] sc1")
        guard(a)
        a("s_waitcnt vmcnt(0)")
        for r in range(4): a(f"v_xor_b32 v{20+r}, v{25 if r & 1 else VNT}, v{20+r}")
        a("v_or3_b32 v26, v20, v21, v22", "v_or_b32 v26, v26, v23", "v_cmp_lt_u32 vcc, 0xffff, v26", f"s_cbranch_vccnz {lp}")
        stamp(a, 3)
        for r in (0, 2): a(f"v_xor_b32 v{20+r}, v{VNT}, v{20+r}")
        for r in range(4): a(f"ds_write_b16 v{IXR[r]}, v{20+r}")
        a(f"s_cmp_lg_u32 s{S_ROLE}, 2", f"s_cbranch_scc1 {ex}")
        a("v_and_b32 v20, 0xffff, v20", "v_lshl_or_b32 v20, v21, 16, v20", f"v_lshlrev_b32 v21, 16, v{VDSK}")
        a("s_mov_b32 exec_lo, 0", "s_mov_b32 exec_hi, 0x10000")
        a(f"ds_write_b64 v14, v[20:21] offset:{C_PAR}")
        a("s_mov_b64 exec, -1")
        a(f"s_branch {ex}")
    a(f"{jl[2]}:")
    anchor(G2, G2 + 2, 128); scale_cb()
    it([csq_(G1, G2), cm_(VD, CBR, G2, T + 4)]); csq(G3, G1); csq(G3, G3)
    it([cm_(VA, CBR, G3), cm_(VC, VD, G3, T + 4)])
    ce, co = VA, VC
    for r in range(4):
        ne, no = oth(ce, VA, VB), oth(co, VC, VD)
        it([cm_(ne, ce, G1)] + ([cm_(no, co, G1, T + 4)] if r < 3 else []), 2 * r, ce, co); ce, co = ne, no
    it([], 8, ce, None)
    a(f"v_mov_b32 v36, {f32(2048.0*LOG2E)}", f"v_mul_f32 v24, s{SM}, v36", "v_max_f32 v24, 0, v24", "v_exp_f32 v24, v24")
    it([])
    a(f"s_sub_u32 s{SIS}, s{SC}, 7", f"s_lshl_b32 s{SIS}, s{SIS}, 23")
    a(f"v_lshlrev_b32 v25, 16, v{VDSK}", f"v_mul_f32 v24, s{SIS}, v24", f"v_mov_b32 v{VPR}, v24")
    a(f"ds_write_b64 v14, v[24:25] offset:{C_PAR}")
    a(f"{jn}:")
    a(f"ds_write_b8 v15, v{VONE} offset:{FL_G}")
    stamp(a, 3); kstamp(a, 2)
    for s in range(8): a(f"ds_read_b128 v[{40+4*s}:{43+4*s}], v{VTL} offset:{64*s}")
    a(f"v_mov_b32 v36, {f32(LOG2E)}", f"v_mul_f32 v36, s{SM}, v36")
    a(f"v_mul_f32 v37, {f32(2048.0)}, v36", "v_max_f32 v37, 0, v37", f"v_add_f32 v37, {f32(23.0)}, v37")
    for r in range(4):
        a(f"v_fma_f32 v{LFR[r]}, v{LFR[r]}, v36, -v37")
    for r in range(4):
        a(f"v_exp_f32 v{LFR[r]}, v{LFR[r]}")
    kstamp(a, 3)
    lds_wait(a, FL_G + 3, 17, "u8", addr=14)
    kstamp(a, 4)
    tr = LdsTrack(a); ids = []
    for s in range(8):
        ids.append(tr.issue(f"ds_read_b128 v[{72+4*s}:{75+4*s}], v{VTE} offset:{KG_T[3]+64*s}"))
    for s in range(8):
        tr.wait(ids[s])
        c = "0" if s < 2 else f"v[{20+4*(s&1)}:{23+4*(s&1)}]"
        a(f"v_mfma_f32_16x16x32_f16 v[{20+4*(s&1)}:{23+4*(s&1)}], v[{40+4*s}:{43+4*s}], v[{72+4*s}:{75+4*s}], {c}")
    for r in range(4): a(f"v_add_f32 v{20+r}, v{20+r}, v{24+r}")
    for r in range(4): a(f"v_mul_f32 v{20+r}, v{20+r}, v{LFR[r]}")
    kstamp(a, 5)
    if KOFF: a(f"s_cmp_eq_u32 s{S_G}, 2", "s_cbranch_scc1 KC_SEND")
    for r in range(4):
        a(f"v_cvt_f16_f32 v{20+r}, v{20+r}")
        a(f"ds_write_b16 v{IXR[r]}, v{20+r}")
    a(f"{ex}:")
    a(f"ds_write_b8 v15, v{VONE} offset:{FL_G+4}")
    a("v_mov_b32 v28, 0", "v_mov_b32 v29, 0", "v_mov_b32 v30, 0", "v_mov_b32 v31, 0", f"v_mov_b32 v32, s{S_GB}")
    a("s_waitcnt vmcnt(0)")
    kstamp(a, 6)
    lds_wait(a, FL_G + 4, 20, "b4", addr=14)
    stamp(a, 4); kstamp(a, 7)
    for e in range(3): a(f"ds_read_u16 v{20+e}, v{I1+e}")
    for e in range(4): a(f"ds_read_u16 v{23+e}, v{I2+e}")
    a("s_mov_b64 exec, 1")
    a(f"ds_write_b128 v32, v[28:31] offset:{R_WS5}", f"ds_write_b128 v32, v[28:31] offset:{R_WS9}", f"ds_write_b128 v32, v[28:31] offset:{R_WS3 + 192*16}")
    a("s_mov_b64 exec, -1")
    a("s_waitcnt lgkmcnt(7)")
    a("v_lshl_or_b32 v28, v21, 16, v20", "v_lshl_or_b32 v29, v22, 16, v21")
    a(f"ds_write_b32 v{D1}, v28 offset:{T_DRE}", f"ds_write_b32 v{D1}, v29 offset:{T_DRO}")
    a("s_waitcnt lgkmcnt(5)")
    a("v_lshl_or_b32 v30, v24, 16, v23", "v_lshl_or_b32 v31, v26, 16, v25")
    a(f"ds_write_b32 v{D2}, v30", f"ds_write_b32 v{D3}, v31")
    a(f"ds_write_b8 v15, v{VONE} offset:{FL_G+8}")
    kstamp(a, 8)
    lds_wait(a, FL_G + 8, 20, "b4", addr=14)
    stamp(a, 5)
    PR, FT0, FT1, ACCL, ACCH, ZQ = 16, 18, 19, 20, 24, 28
    VZA, VUA = VDA, VDA2
    LA = ENV("CLA", 6); RSV = ENV("CRSV", 5); NF = ENV("CNF", 2)
    jl = [newlabel("CV") for _ in range(4)]; zend = newlabel("CVE")
    slow = []
    a(f"ds_read_b64 v[{PR}:{PR+1}], v14 offset:{C_PAR}")
    for r in range(1, 4): a(f"s_cmp_eq_u32 s{S_ROLE}, {r}", f"s_cbranch_scc1 {jl[r]}")
    for m in range(4):
        if m: a(f"{jl[m]}:")
        lo, hi = 2 * m, 2 * m + 1
        acc = {lo: ACCL, hi: ACCH}
        ops = []
        if m >= 2:
            for j in (lo, hi): ops.append((j, ("D", 32), ("U", 8 * j - 32)))
        for p in range(max(8 * lo - 16, -7), 8 * hi + 1):
            for j in (lo, hi):
                ks = 8 * j - p
                if 0 <= ks <= 16: ops.append((j, ("D", ks), ("U", p)))
        ncomb0 = len(ops)
        for j in (lo, hi):
            for kind in (3, 5):
                for b in range(6):
                    if 2 <= j - b <= 4: ops.append((j, ("W", kind, b), ("G", kind, j - b)))
            for kind in (7, 9):
                for b in range(2):
                    if j - 2 * b - 4 >= 0: ops.append((j, ("W", kind, b), ("G", kind, j - 2 * b - 4)))
        nops = len(ops)
        first, last = {}, {}
        for k, (j, A, B) in enumerate(ops):
            for key in (A, B):
                first.setdefault(key, k); last[key] = k
        lastlo = max(k for k, o in enumerate(ops) if o[0] == lo)
        pool = list(range(32, 128, 4))
        reg, lid = {}, {}
        def load(tr, key):
            rg = pool.pop(0); reg[key] = rg
            if (XP & 8 and key[0] == "G") or (XP & 16 and key[0] == "W") or (XP & 32 and key[0] == "U"):
                lid[key] = -100; return
            if key[0] == "D":
                ksv = -2 if key[1] == 32 else key[1]
                o = (16 - ksv) * 16
                ad, o = (VDA, o) if o + 3 <= 255 else (VDA2, o - 160)
                tr.issue(f"ds_read2_b32 v[{rg}:{rg+1}], v{ad} offset0:{o} offset1:{o+1}")
                lid[key] = tr.issue(f"ds_read2_b32 v[{rg+2}:{rg+3}], v{ad} offset0:{o+2} offset1:{o+3}")
            elif key[0] == "G":
                _, kind, ix = key
                if kind in (3, 5): o = (4 - ix) * 16 + (64 if kind == 5 else 0); ad = VG8
                else: o = (3 - ix) * 8 + (96 if kind == 9 else 0); ad = VG16
                tr.issue(f"ds_read2_b32 v[{rg}:{rg+1}], v{ad} offset0:{o} offset1:{o+1}")
                lid[key] = tr.issue(f"ds_read2_b32 v[{rg+2}:{rg+3}], v{ad} offset0:{o+2} offset1:{o+3}")
            elif key[0] == "U":
                lid[key] = tr.issue(f"ds_read_b128 v[{rg}:{rg+3}], v{VB_} offset:{64*(key[1]+7)}")
            else:
                _, kind, b = key
                if kind in (3, 5): o = (R_WS3 if kind == 3 else R_WS5) + 512 * b; ad, st = VT8, 64
                else: o = (R_WS7 if kind == 7 else R_WS9) + 1024 * b; ad, st = VT16, 128
                tr.issue(f"ds_read_b64_tr_b16 v[{rg}:{rg+1}], v{ad} offset:{o}")
                lid[key] = tr.issue(f"ds_read_b64_tr_b16 v[{rg+2}:{rg+3}], v{ad} offset:{o+st}")
        keys = sorted(first, key=lambda k_: first[k_])
        tr = LdsTrack(a)
        for key in keys:
            if key[0] == "D": load(tr, key)
        for key in keys:
            if key[0] == "G" and len(pool) > RSV: load(tr, key)
        pend = [k_ for k_ in keys if k_ not in reg]
        a(f"v_lshlrev_b32 v{FT0}, 3, v3", f"v_sub_u32 v{FT0}, v{VB_}, v{FT0}")
        a(f"v_lshrrev_b32 v{FT1}, 2, v2", f"v_lshl_add_u32 v{FT1}, v{FT1}, 2, v3", f"v_and_b32 v{ZQ}, 3, v2", f"v_lshlrev_b32 v{ZQ}, 4, v{ZQ}")
        if SWZ: a(f"v_mul_u32_u24 v{FT1}, s{CSH}, v{FT1}", f"v_xor_b32 v{FT1}, s{CFL}, v{FT1}")
        else: a(f"v_lshlrev_b32 v{FT1}, s{CSH}, v{FT1}")
        a("s_waitcnt lgkmcnt(0)")
        a(f"v_mov_b32 v{VUA}, v{FT0}", f"v_add_u32 v{VZA}, v{FT1}, v{ZQ}")
        a(f"v_xor_b32 v{VLN}, s{CXR}, v{VLN}")
        lds_wait(a, FL_UF, FT0, "b4")
        a(f"s_setprio {eval(os.environ.get('CPRIO', '[1,1,1,1]'))[m]}")
        stamp(a, 6); cstamp(a, 1)
        if XP & 4: a(f"v_mov_b32 v{FT0}, 0", f"s_cmp_lg_u32 s{S_G}, 0", f"s_cbranch_scc1 {zend}")
        for key in lid: lid[key] = -100
        tr = LdsTrack(a)
        ud = {}
        fill = []
        fill.append(("lds", f"ds_read_b64 v[{ZQ}:{ZQ+1}], v{VUA} offset:{480 + 512*lo}", 2))
        fill.append(("ldsU", f"ds_read_b64 v[{ZQ+2}:{ZQ+3}], v{VUA} offset:{480 + 512*hi}", 2))
        for ti, j in enumerate((lo, hi)):
            fill.append(("alloc", j, 5))
            if ti == 0: fill.append(("waitU", None, 5))
            for e in range(4):
                sel = "op_sel:[1,0,0] " if e & 1 else ""
                fill.append(("f", (lambda j=j, e=e, ti=ti, sel=sel: f"v_fma_mix_f32 v{ud[j]+e}, v{ZQ+2*ti+e//2}, v{PR+1}, 0 {sel}op_sel_hi:[1,0,0]"), 5))
            for p in range(2):
                fill.append(("f", (lambda j=j, p=p, ti=ti: f"v_cvt_pk_bf16_f32 v{ZQ+2*ti+p}, v{ud[j]+2*p}, v{ud[j]+2*p+1}"), 5))
            for p in range(2):
                fill.append(("f", (lambda j=j, p=p, ti=ti: f"v_lshlrev_b32 v{ud[j]+2*p}, 16, v{ZQ+2*ti+p}"), 5))
                fill.append(("f", (lambda j=j, p=p, ti=ti: f"v_and_b32 v{ud[j]+2*p+1}, 0xffff0000, v{ZQ+2*ti+p}"), 5))
        def epi(j, ti):
            y = acc[j]; z = ZQ + 2 * ti; out = []
            for p in range(4): out.append(lambda p=p: f"v_mul_f32 v{y+p}, v{y+p}, v{PR}")
            for p in range(2): out.append(lambda p=p: f"v_cvt_pk_bf16_f32 v{z+p}, v{y+2*p}, v{y+2*p+1}")
            for p in range(2):
                out.append(lambda p=p: f"v_lshlrev_b32 v{y+2*p}, 16, v{z+p}")
                out.append(lambda p=p: f"v_and_b32 v{y+2*p+1}, 0xffff0000, v{z+p}")
            for p in range(4): out.append(lambda p=p: f"v_add_f32 v{y+p}, v{y+p}, v{ud[j]+p}")
            for p in range(2): out.append(lambda p=p: f"v_cvt_pk_bf16_f32 v{z+p}, v{y+2*p}, v{y+2*p+1}")
            for p in range(2): out.append(lambda p=p: f"v_min_u32 v{z+p}, -2, v{z+p}")
            return out
        for f in epi(lo, 0): fill.append(("f", f, lastlo + 2))
        fill.append(("lds", f"ds_read_u8 v{FT0}, v{VZ} offset:{FL_S6 + m}", nops - 4))
        fill.append(("lds", f"ds_read_b128 v[{ACCL}:{ACCL+3}], v{VLN} offset:{G_BASE + R_RED + 1024*m}", nops - 4))
        uid = [None]
        def do_fill(n, k):
            while n > 0 and fill:
                kind, t, e = fill[0]
                if e > k: return
                if kind == "alloc":
                    if len(pool) < 2: return
                    ud[t] = pool.pop(); fill.pop(0); continue
                fill.pop(0)
                if kind == "f":
                    if XP & 2 and "v_min" not in t(): continue
                    a(t())
                elif kind == "lds": tr.issue(t)
                elif kind == "ldsU": uid[0] = tr.issue(t)
                elif kind == "waitU": tr.wait(uid[0]); continue
                n -= 1
        kW = ncomb0 - LA if nops > ncomb0 else None
        wok = [False]
        def issue_loads(k, nmax):
            while pend and pool and nmax > 0:
                key = pend[0]
                if first[key] - k > (LA if key[0] != "G" else LA + 4): return
                if key[0] == "W" and not wok[0]:
                    alt = [x for x in pend if x[0] != "W" and first[x] - k <= LA + 2]
                    if not alt: return
                    key = alt[0]
                pend.remove(key); load(tr, key); nmax -= 1
        issue_loads(0, RSV)
        started = set()
        for k, (j, A, B) in enumerate(ops):
            assert A in reg and B in reg, (m, k, A, B)
            tr.wait(max(lid[A], lid[B]))
            c = f"v[{acc[j]}:{acc[j]+3}]" if j in started else "0"
            started.add(j)
            a(f"v_mfma_f32_16x16x32_f16 v[{acc[j]}:{acc[j]+3}], v[{reg[A]}:{reg[A]+3}], v[{reg[B]}:{reg[B]+3}], {c}")
            for key in (A, B):
                if last[key] == k: pool.append(reg[key])
            if kW is not None and k == kW - 3:
                wfid = tr.issue(f"ds_read_b32 v{FT0}, v14 offset:{FL_G + 12}")
            if k == kW:
                tr.wait(wfid)
                sl = newlabel("WS"); bk = newlabel("WB")
                a(f"v_cmp_ne_u32 vcc, s{S_ONES}, v{FT0}", f"s_cbranch_vccnz {sl}")
                a(f"{bk}:")
                slow.append((sl, bk))
                wok[0] = True
                cstamp(a, 3)
            issue_loads(k + 1, 2)
            do_fill(NF, k)
            if k == ncomb0 // 2: cstamp(a, 2)
            if k == ncomb0 - 1: cstamp(a, 4)
        cstamp(a, 5)
        do_fill(1000, 1000)
        assert not fill and not pend
        stamp(a, 7)
        for f in epi(hi, 1): a(f())
        if m < 3: a(f"s_branch {zend}")
    a(f"{zend}:")
    cstamp(a, 6)
    gA = newlabel("ZA"); gC = newlabel("ZC"); zs = newlabel("ZS"); zb = newlabel("ZB"); zc = newlabel("ZCB"); zd = newlabel("ZD")
    a("s_waitcnt lgkmcnt(0)")
    a(f"s_cmp_lg_u32 s{S_G}, 1", f"s_cbranch_scc1 {gA}")
    a(f"v_cmp_ne_u32 vcc, 1, v{FT0}", f"s_cbranch_vccnz {zs}")
    a(f"{zb}:")
    a(f"s_mov_b64 exec, s[{CM}:{CM+1}]")
    for k in range(4): a(f"v_swap_b32 v{ZQ+k}, v{ACCL+k}")
    a("s_mov_b64 exec, -1")
    cstamp(a, 8)
    a(f"buffer_store_dwordx4 v[{ZQ}:{ZQ+3}], v{VZA}, s[{R0}:{R0+3}], s{CZ1} offen sc1")
    a(f"buffer_store_dwordx4 v[{ACCL}:{ACCL+3}], v{VZA}, s[{R0}:{R0+3}], s{CZ0} offen sc1")
    a(f"s_branch {zd}")
    for (sl, bk) in slow:
        a(f"{sl}:")
        lds_wait(a, FL_G + 12, FT0, "b4", addr=14)
        a(f"s_branch {bk}")
    a(f"{zs}:")
    a(f"v_mov_b32 v{FT1}, s{S_ROLE}")
    l = newlabel("ZW")
    a(f"{l}:")
    a(f"ds_read_u8 v{FT0}, v{FT1} offset:{FL_S6}")
    guard(a)
    a("s_waitcnt lgkmcnt(0)")
    a(f"v_cmp_ne_u32 vcc, 1, v{FT0}", f"s_cbranch_vccnz {l}")
    a(f"v_lshl_add_u32 v{FT1}, v{FT1}, 10, v{VLN}")
    a(f"ds_read_b128 v[{ACCL}:{ACCL+3}], v{FT1} offset:{G_BASE + R_RED}")
    a("s_waitcnt lgkmcnt(0)")
    a(f"s_branch {zb}")
    a(f"{gA}:")
    a(f"s_cmp_lg_u32 s{S_G}, 0", f"s_cbranch_scc1 {gC}")
    a(f"v_mov_b32 v{FT1}, s{S_ROLE}", f"v_lshl_add_u32 v{FT0}, v{FT1}, 10, v{VLN}")
    a(f"ds_write_b128 v{FT0}, v[{ZQ}:{ZQ+3}] offset:{G_BASE + R_RED}")
    a(f"ds_write_b8 v{FT1}, v{VONE} offset:{FL_S6}")
    cstamp(a, 8)
    a(f"s_branch {zd}")
    a(f"{gC}:")
    cstamp(a, 8)
    a(f"buffer_store_dwordx4 v[{ZQ}:{ZQ+3}], v{VZA}, s[{R0}:{R0+3}], s{CZ0} offen sc1")
    a(f"{zd}:")
    stamp(a, 8)
    if DBG:
        a(f"s_mul_i32 s{T0_}, s{S_ROLE}, 1280", f"s_add_u32 s{T1_}, s{T0_}, s{S_GB}", f"v_lshl_add_u32 v20, v1, 2, s{T1_}")
        a(f"s_mul_i32 s{T1_}, s{S_CH}, 5376", f"s_add_u32 s{T1_}, s{T1_}, s{T0_}", f"s_add_u32 s{T1_}, s{T1_}, {hex(WS_DBG)}", f"v_lshl_add_u32 v21, v1, 2, s{T1_}")
        for k in range(5 + 1):
            a(f"ds_read_b32 v22, v20 offset:{R2 + 256*k}", "s_waitcnt lgkmcnt(0)", f"global_store_dword v21, v22, s[{P_WS}:{P_WS+1}] offset:{256*k}")
        a(f"ds_read_b32 v22, v14 offset:{C_PAR}", f"s_lshl_b32 s{T1_}, s{S_CH}, 2", f"s_add_u32 s{T1_}, s{T1_}, {hex(WS_DBG + 0x300000)}", f"v_mov_b32 v21, s{T1_}")
        a("s_waitcnt lgkmcnt(0)", f"global_store_dword v21, v22, s[{P_WS}:{P_WS+1}]")
    a(f"s_lshl_b32 s{T0_}, s{S_G}, 2", f"s_add_u32 s{T0_}, s{T0_}, s{S_ROLE}", f"v_mov_b32 v8, s{T0_}")
    a("s_waitcnt vmcnt(0)")
    a(f"ds_write_b8 v8, v{VONE} offset:{FL_ZDONE}")


def gen_wjobs(a):
    WA, WD = 10, 11
    end = newlabel("WJE"); w1 = newlabel("WJ1"); w2 = newlabel("WJ2")
    a(f"s_cmp_eq_u32 s{S_WAVE}, 2", f"s_cbranch_scc1 {w2}")
    if XP & 1: a(f"s_branch {w2}")
    a(f"s_add_u32 s{T0_}, s{S_WAVE}, 1", f"s_lshr_b32 s{T0_}, s{T0_}, 2", f"s_cmp_eq_u32 s{S_WAVE}, 1", f"s_cselect_b32 s{T0_}, 2, s{T0_}", f"s_lshl_b32 s{T0_}, s{T0_}, 10")
    a(f"v_lshl_add_u32 v{WA}, v1, 4, s{T0_}", f"v_add_u32 v{WD}, {G_BASE}, v{WA}")
    lds_wait(a, FL_UF, 12, "b4")
    a(f"s_setprio {ENV('WPRIO', 3)}")
    for g in range(3):
        E = 20 + 12 * g; o = C_U + U_SIZE * g + 2 * (240 - 16)
        a(f"ds_read_b128 v[{E}:{E+3}], v{WA} offset:{o}", f"ds_read_b128 v[{E+4}:{E+7}], v{WA} offset:{o+16}", f"ds_read_b64 v[{E+8}:{E+9}], v{WA} offset:{o+32}")
    a(f"s_cmp_eq_u32 s{S_WAVE}, 1", f"s_cbranch_scc1 {w1}")
    for full in (1, 0):
        if not full: a(f"{w1}:")
        for g in range(3):
            if g == 2: a(f"s_cmp_lt_u32 s{S_I}, 24", f"s_cbranch_scc1 {end}")
            E = lambda i: 20 + 12 * g + i
            O = lambda i: 56 + i
            T = lambda i: 65 + i
            Q = lambda i: 72 + i
            X = lambda i: 79 + i
            Y = lambda i: 85 + i
            W7, W9 = 92, 96
            a(f"ds_read_b32 v12, v{VZ} offset:{FL_G + 16*g + 4}")
            if g == 0: a("s_waitcnt lgkmcnt(7)")
            n = 8 if full else 7
            for i in range(1, n + 1): a(f"v_alignbit_b32 v{O(i)}, v{E(i+1)}, v{E(i)}, 16")
            for i in range(1, n + 1): a(f"v_pk_add_f16 v{T(i)}, v{O(i)}, v{E(i+1)}")
            for i in range(1, 5): a(f"v_pk_add_f16 v{X(i)}, v{T(i)}, v{O(i+1)}")
            for i in (range(2, 8) if full else range(3, 7)): a(f"v_pk_add_f16 v{Q(i)}, v{T(i)}, v{T(i+1)}")
            ok = newlabel("WJK")
            a("s_waitcnt lgkmcnt(0)")
            a(f"v_cmp_eq_u32 vcc, s{S_ONES}, v12", f"s_cbranch_vccnz {ok}")
            lds_wait(a, FL_G + 16 * g + 4, 12, "b4", sleep=1)
            a(f"{ok}:")
            off = G_SIZE * (g & 1)
            if g == 2: a(f"v_add_u32 v{WD}, {2*G_SIZE}, v{WD}")
            a(f"ds_write_b128 v{WD}, v[{X(1)}:{X(4)}] offset:{off + R_WS3}")
            for i in (range(2, 7) if full else range(3, 7)): a(f"v_pk_add_f16 v{Y(i)}, v{E(i)}, v{Q(i)}")
            a(f"ds_write_b128 v{WD}, v[{Y(3)}:{Y(6)}] offset:{off + R_WS5 + 16}")
            if full:
                for i in range(5, 8): a(f"v_pk_add_f16 v{X(i)}, v{T(i)}, v{O(i+1)}")
                for k in range(4): a(f"v_pk_add_f16 v{W7+k}, v{Q(2+k)}, v{X(4+k)}")
                a(f"ds_write_b128 v{WD}, v[{W7}:{W7+3}] offset:{off + R_WS7}")
                for k in range(4): a(f"v_pk_add_f16 v{W9+k}, v{Y(2+k)}, v{Q(4+k)}")
                a(f"ds_write_b128 v{WD}, v[{W9}:{W9+3}] offset:{off + R_WS9 + 16}")
            a(f"ds_write_b8 v116, v{VONE} offset:{FL_G + 16*g + 12}")
        a(f"s_branch {end}")
    a(f"{w2}:")
    for g in range(3): a(f"ds_write_b8 v116, v{VONE} offset:{FL_G + 16*g + 12}")
    if PF2 > PF1 or PFD:
        W2 = ENV("PF2W", 14)
        a(f"s_sub_u32 s{T2_}, s{S_I}, {ENV('PF2B', 18)}", f"s_and_b32 s{T2_}, s{T2_}, 31", f"s_cmp_ge_u32 s{T2_}, {W2}", f"s_cbranch_scc1 {end}")
        pf_lane(a, 100, 101)
        lds_wait(a, FL_UF, 12, "b4", sleep=1)
        if PF2 > PF1:
            pf_gu(a, 100, T2_, W2, PF1, PF2, 102, "KS_PF2D")
            a("KS_PF2D:")
        if PFD:
            a(f"s_sub_u32 s{T2_}, {W2-1}, s{T2_}")
            pf_down(a, T2_, W2, 0, PFD, 100, 120, end)
    a(f"{end}:")

def gen(a):
    label = NAME + "_kernel"
    a(f".globl {label}", ".p2align 8", f".type {label},@function", f"{label}:")
    a("s_cmp_ge_u32 s2, 256", "s_cbranch_scc1 KS_END")
    stamp_begin(a)
    a("s_load_dwordx16 s[4:19], s[0:1], 0", "s_load_dwordx16 s[20:35], s[0:1], 64", f"s_load_dwordx2 s[{P_WS}:{P_WS+1}], s[0:1], 128")
    a(f"v_readfirstlane_b32 s{S_WAVE}, v0", f"s_lshr_b32 s{S_WAVE}, s{S_WAVE}, 6")
    a(f"s_and_b32 s{S_XC}, s2, 7", f"s_lshr_b32 s{S_I}, s2, 3")
    if ENV("CPF", 1):
        a(f"s_cmp_lg_u32 s{S_WAVE}, 0", "s_cbranch_scc1 KS_CPE")
        a("s_getpc_b64 s[42:43]")
        a("KS_PC:")
        a(f"s_and_b32 s{T0_}, s{S_I}, 3", f"s_lshl_b32 s{T0_}, s{T0_}, 13", f"v_lshl_add_u32 v126, v0, 7, s{T0_}", "v_min_u32 v126, KS_END-KS_PC, v126")
        a("global_load_dword v127, v126, s[42:43]")
        a("KS_CPE:")
    if ENV("REMAP", 1):
        a(f"s_add_u32 s{T0_}, s{S_WAVE}, 8", f"s_sub_u32 s{T1_}, s{S_WAVE}, 4", f"s_cmp_lt_u32 s{S_WAVE}, 8", f"s_cselect_b32 s{T0_}, s{T0_}, s{T1_}")
        a(f"s_cmp_lt_u32 s{S_WAVE}, 4", f"s_cselect_b32 s{S_WAVE}, s{S_WAVE}, s{T0_}")
    a("v_and_b32 v1, 63, v0", "v_and_b32 v2, 15, v1", "v_lshrrev_b32 v3, 4, v1", f"v_mov_b32 v{VZ}, 0", f"v_mov_b32 v{VONE}, 1")
    a(f"s_mov_b32 s{S_GUARD}, {GUARD}", f"s_mov_b32 s{S_ONES}, 0x01010101")
    a(f"s_lshl_b32 s{S_B2}, s{S_XC}, 5", f"s_add_u32 s{S_B2}, s{S_B2}, s{S_I}")
    a(f"s_mul_i32 s{S_BLK}, s{S_XC}, 18", f"s_add_u32 s{S_BLK}, s{S_BLK}, s{S_I}")
    a(f"s_cmp_lt_u32 s{S_WAVE}, 4", "s_cbranch_scc1 KS_L")
    a(f"s_cmp_ge_u32 s{S_WAVE}, 12", "s_cbranch_scc1 KS_X")
    a("s_setprio 2")
    a(f"s_lshr_b32 s{S_G}, s{S_WAVE}, 2", f"s_sub_u32 s{S_G}, s{S_G}, 1")
    a(f"s_mul_i32 s{S_ROLE}, s{S_G}, 3", f"s_xor_b32 s{S_ROLE}, s{S_ROLE}, s{S_WAVE}", f"s_and_b32 s{S_ROLE}, s{S_ROLE}, 3")
    a(f"s_lshl_b32 s{S_CH}, s{S_B2}, 1", f"s_add_u32 s{S_CH}, s{S_CH}, s{S_G}")
    a(f"s_lshl_b32 s{T0_}, s{S_ROLE}, 11", f"s_add_u32 s{T0_}, s{T0_}, {C_STG}", f"v_lshl_add_u32 v28, v1, 3, s{T0_}")
    pre_ixlf(a)
    a("KS_GRP:")
    gen_group(a)
    a(f"s_cmp_lt_u32 s{S_I}, 18", "s_cbranch_scc1 KS_T")
    a("s_waitcnt lgkmcnt(0)")
    endwave(a)
    a("KS_X:")
    a(f"s_cmp_lt_u32 s{S_I}, 24", "s_cbranch_scc1 KS_X2")
    a(f"s_setprio {ENV('KCPRIO', 2)}")
    a("KS_XC:")
    a(f"s_mov_b32 s{S_G}, 2", f"s_add_u32 s{S_ROLE}, s{S_WAVE}, 3", f"s_and_b32 s{S_ROLE}, s{S_ROLE}, 3")
    a(f"s_lshl_b32 s{S_CH}, s{S_XC}, 3", f"s_and_b32 s{T0_}, s{S_I}, 7", f"s_add_u32 s{S_CH}, s{S_CH}, s{T0_}", f"s_add_u32 s{S_CH}, s{S_CH}, 512")
    a(f"s_lshl_b32 s{T0_}, s{S_ROLE}, 11", f"s_add_u32 s{T0_}, s{T0_}, {C_STG}", f"v_lshl_add_u32 v28, v1, 3, s{T0_}")
    a("s_branch KS_GRP")
    a("KS_X2:")
    a(f"s_cmp_lt_u32 s{S_I}, 8", "s_cbranch_scc1 KS_X3")
    a(f"s_sub_u32 s{T5_}, s{S_WAVE}, 8")
    a("s_branch KS_LN1")
    a("KS_X3:")
    a(f"s_lshl_b32 s{T0_}, s2, 4", f"s_add_u32 s{T0_}, s{T0_}, s{S_WAVE}", f"s_cmp_lg_u32 s{T0_}, {16*ENV('NPUB', 2) + 12}", "s_cbranch_scc1 KS_X3B")
    a("s_setprio 3")
    a(f"s_memrealtime s[{T0_}:{T1_}]")
    a("v_and_b32 v6, 3, v1", "v_lshlrev_b32 v7, 2, v6", "v_min_u32 v6, 2, v6", "v_lshlrev_b32 v6, 2, v6", "v_cmp_eq_u32 vcc, 3, v1")
    a("s_waitcnt lgkmcnt(0)")
    a(f"v_mov_b32 v8, s{T0_}", f"v_mov_b32 v9, s{T1_}", "v_alignbit_b32 v8, v8, v8, v6", f"v_cndmask_b32 v9, v{VZ}, v9, vcc", "v_xor_b32 v8, v8, v9")
    a("v_and_b32 v9, 0xf0000fff, v8", "v_and_b32 v10, 0xfff000, v8", "v_lshl_or_b32 v9, v10, 4, v9", "v_lshrrev_b32 v10, 12, v8", "v_and_b32 v10, 0xf000, v10")
    a("v_or3_b32 v9, v9, v10, v9", "v_or_b32 v9, 0x80000000, v9")
    a("s_mov_b64 exec, 15")
    a(f"global_store_dword v7, v9, s[{P_DBG}:{P_DBG+1}] sc1")
    if SPIN: a(f"v_mov_b32 v8, s{T0_}", f"global_store_dword v7, v8, s[{P_DBG}:{P_DBG+1}] offset:64 sc1")
    a("s_mov_b64 exec, -1")
    a("s_setprio 0")
    a("KS_X3B:")
    if KOFF:
        a(f"s_setprio {ENV('KPPRIO', 3)}")
        a("s_branch KS_XC")
    a("s_waitcnt lgkmcnt(0)")
    a("s_barrier")
    a("s_branch KS_G")
    a("KS_X4:")
    a(f"s_cmp_lt_u32 s{S_I}, 18", "s_cbranch_scc1 KS_G")
    a("s_waitcnt vmcnt(0) lgkmcnt(0)")
    endwave(a)
    a("KS_L:")
    a("v_lshlrev_b32 v6, 2, v0", f"ds_write_b32 v6, v{VZ}")
    a("v_mov_b32 v8, 0", "v_mov_b32 v9, 0", f"s_min_u32 s{T0_}, s{S_WAVE}, 2", f"s_mul_i32 s{T0_}, s{T0_}, {U_SIZE}", "v_min_u32 v6, 59, v1", f"v_lshl_add_u32 v6, v6, 3, s{T0_}")
    a(f"ds_write_b64 v6, v[8:9] offset:{C_U}")
    a(f"s_mov_b32 s{T5_}, s{S_WAVE}")
    a(f"s_sub_u32 s{T0_}, s{S_I}, 8", f"s_cmp_lt_u32 s{T0_}, 16", "s_cbranch_scc0 KS_L0")
    a("KS_LN1:")
    a("s_setprio 3")
    gen_ln1(a)
    if NLL or NL2:
        if not NL: pf_lane(a, 46, 47)
        a(f"s_cmp_ge_u32 s{S_I}, 18", "s_cbranch_scc1 KS_LL2")
        if NLL:
            a(f"s_mul_i32 s{T2_}, s{S_WAVE}, 10", f"s_add_u32 s{T2_}, s{T2_}, s{S_I}", f"s_sub_u32 s{T2_}, s{T2_}, 8")
            pf_gu(a, 46, T2_, 40, PFA, PFA + 10 * NLL, 47, "KS_LLE")
        a("s_branch KS_LLE")
        a("KS_LL2:")
        if NL2:
            a(f"s_mul_i32 s{T2_}, s{S_WAVE}, 6", f"s_add_u32 s{T2_}, s{T2_}, s{S_I}", f"s_sub_u32 s{T2_}, s{T2_}, 18")
            pf_gu(a, 46, T2_, 24, PFA + 10 * NLL, PF0, 47, "KS_LLE")
        a("KS_LLE:")
    a(f"s_mov_b32 s{S_G}, 1")
    a("s_branch KS_L2B")
    a("KS_L0:")
    a(f"s_and_b32 s{T0_}, s{S_I}, 15", f"s_lshl_b32 s{T1_}, s{S_XC}, 4", f"s_add_u32 s{T0_}, s{T0_}, s{T1_}")
    a("v_and_b32 v59, 3, v1", "v_lshlrev_b32 v59, 2, v59")
    a(f"s_lshl_b32 s{T4_}, s{T0_}, 6", f"s_add_u32 s{T1_}, s{T4_}, {hex(WS_FLAG1)}", f"v_add_u32 v7, s{T1_}, v59")
    a(f"s_mul_i32 s{T1_}, s{T0_}, {CLR_WG}", f"s_add_u32 s{T1_}, s{T1_}, {hex(WS_CLR)}")
    a("v_lshlrev_b32 v6, 4, v0")
    a("v_mov_b32 v12, -1", "v_mov_b32 v13, -1", "v_mov_b32 v14, -1", "v_mov_b32 v15, -1")
    a("s_setprio 3")
    pf_lane(a, 16, 17)
    a("s_waitcnt lgkmcnt(0)")
    a(f"s_add_u32 s{R1}, s{P_WS}, s{T1_}", f"s_addc_u32 s{R1+1}, s{P_WS+1}, 0", f"s_mov_b32 s{R1+2}, {CLR_WG}", f"s_mov_b32 s{R1+3}, 0x20000")
    if ENV("UPRE", 0):
        srd(a, R0, P_WS, 0xC00000)
        a(f"s_lshl_b32 s{T2_}, s{S_WAVE}, 3", f"s_xor_b32 s{T2_}, s{T2_}, s{S_B2}", f"s_lshl_b32 s{T2_}, s{T2_}, 13")
        a(f"s_and_b32 s{T3_}, s{S_I}, 3", f"s_lshl_b32 s{T0_}, s{S_XC}, 2", f"s_add_u32 s{T3_}, s{T3_}, s{T0_}", f"s_lshl_b32 s{T3_}, s{T3_}, 13")
        a(f"s_add_u32 s{T0_}, s{T3_}, {256*8192}", f"s_cmp_eq_u32 s{S_WAVE}, 2", f"s_cselect_b32 s{T2_}, s{T0_}, s{T2_}")
        a(f"s_add_u32 s{T0_}, s{T3_}, {hex(WS_KT)}", f"s_cmp_eq_u32 s{S_WAVE}, 3", f"s_cselect_b32 s{T2_}, s{T0_}, s{T2_}")
        a(f"s_lshl_b32 s{T0_}, s{S_I}, 2", f"s_add_u32 s{T0_}, s{T0_}, s{S_WAVE}", f"s_and_b32 s{T0_}, s{T0_}, 0x72", f"s_cmp_gt_u32 s{T0_}, 0x62", f"s_cselect_b32 s{T0_}, 0, s{T0_}")
        a(f"s_bitcmp1_b32 s{T0_}, 1", "s_cbranch_scc1 KS_UPE")
        a("v_lshlrev_b32 v125, 7, v1", f"buffer_load_dword v124, v125, s[{R0}:{R0+3}], s{T2_} offen {MOD('UPMOD')}")
        a("KS_UPE:")
    a("s_barrier")
    if NE:
        a(f"s_and_b32 s{T2_}, s{S_I}, 15", f"s_lshl_b32 s{T3_}, s{S_WAVE}, 4", f"s_add_u32 s{T2_}, s{T2_}, s{T3_}")
        pf_gu(a, 16, T2_, 64, 16 * NL, 16 * NL + 16 * NE, 18, "KS_L1E")
        a("KS_L1E:")
    if ENV("CTRIG", 1): lds_wait(a, FL_PARAM, 8, "nz", sleep=2)
    for k in range(5):
        a(f"s_movk_i32 s{T0_}, {4096*k}")
        a(f"buffer_store_dwordx4 v[12:15], v6, s[{R1}:{R1+3}], s{T0_} offen sc1")
    stamp(a, 1)
    a(f"global_load_dword v58, v59, s[{P_DBG}:{P_DBG+1}] sc1")
    dbg_wait(a, 0)
    stamp(a, 2)
    a(f"ds_write_b32 v59, v58 offset:{FL_NONCE}")
    a("s_mov_b64 exec, 1")
    a(f"ds_add_rtn_u32 v8, v{VZ}, v{VONE} offset:{FL_LNACK}")
    a("s_mov_b64 exec, -1")
    for d in range(1, 4): a(f"v_lshrrev_b32 v{58-d}, {3*d}, v58")
    a("s_waitcnt lgkmcnt(0)")
    a(f"v_readfirstlane_b32 s{T0_}, v8")
    a(f"s_cmp_lg_u32 s{T0_}, 3", "s_cbranch_scc1 KS_L2")
    a("s_mov_b64 exec, 15")
    a(f"global_store_dword v7, v58, s[{P_WS}:{P_WS+1}] sc1")
    a("s_mov_b64 exec, -1")
    a(f"s_and_b32 s{T2_}, s{S_I}, 7")
    a(f"s_cmp_ge_u32 s{S_I}, 8", "s_cbranch_scc1 KS_L1C")
    if NN:
        a("s_setprio 0")
        lds_wait(a, FL_G + 32 + 4, 8, "b4", sleep=2)
        a("s_setprio 3")
        pf_gu(a, 16, T2_, 8, PF0, PF0 + 8 * NN, 18, "KS_L2")
    a("s_branch KS_L2")
    a("KS_L1C:")
    if NC: pf_gu(a, 16, T2_, 8, PF0 + 8 * NN, PF1, 18, "KS_L2")
    a("KS_L2:")
    a(f"s_mov_b32 s{S_G}, 0")
    a("KS_L2B:")
    srd(a, R0, P_WS, XBYTES, WS_UT)
    a("v_lshrrev_b32 v7, 1, v1", "v_lshlrev_b32 v7, 6, v7", "v_and_b32 v10, 1, v1", "v_lshl_add_u32 v7, v10, 4, v7", "v_lshlrev_b32 v9, 4, v1")
    a(f"s_lshl_b32 s{T0_}, s{S_WAVE}, 11", f"s_lshl_b32 s{T1_}, s{S_B2}, 13", f"s_add_u32 s{T1_}, s{T1_}, s{T0_}")
    if SWU:
        a(f"s_lshl_b32 s{T2_}, s{S_B2}, 7", f"s_and_b32 s{T3_}, s{T2_}, 0x380", f"v_xor_b32 v13, s{T3_}, v9", f"s_and_b32 s{T2_}, s{T2_}, 0x1c00", f"s_xor_b32 s{T1_}, s{T1_}, s{T2_}")
    else: a("v_mov_b32 v13, v9")
    a(f"s_xor_b32 s{T5_}, s{T1_}, 0x400")
    a(f"s_lshl_b32 s{T3_}, s{S_XC}, 3", f"s_add_u32 s{T3_}, s{T3_}, s{S_I}", f"s_add_u32 s{T3_}, s{T3_}, {512 - 24}")
    a(f"s_lshr_b32 s{T4_}, s{T3_}, 1", f"s_lshl_b32 s{T4_}, s{T4_}, 13", f"s_and_b32 s{T3_}, s{T3_}, 1", f"s_lshl_b32 s{T3_}, s{T3_}, 5")
    a(f"s_add_u32 s{T3_}, s{T3_}, s{T4_}", f"s_add_u32 s{T3_}, s{T3_}, s{T0_}")
    if SWU:
        a(f"s_lshr_b32 s{T4_}, s{T4_}, 6", f"s_and_b32 s{T2_}, s{T4_}, 0x780", f"v_xor_b32 v7, s{T2_}, v7", f"s_and_b32 s{T4_}, s{T4_}, 0x1800", f"s_xor_b32 s{T3_}, s{T3_}, s{T4_}")
    a(f"s_cmp_lt_u32 s{S_I}, 24", f"s_cselect_b32 s{T3_}, {XBYTES}, s{T3_}", f"s_cselect_b32 s{T2_}, 0, {hex(TAGM)}")
    a(f"v_mov_b32_dpp v64, v58 quad_perm:[0,1,0,1] {DPPM}", f"v_mov_b32_dpp v65, v58 quad_perm:[2,3,2,3] {DPPM}")
    a(f"s_bitcmp1_b32 s{S_I}, 0", "s_cselect_b64 vcc, -1, 0", "v_cndmask_b32 v64, v64, v65, vcc")
    for d in range(4): a(f"v_and_b32 v{60+d}, {hex(TAGM)}, v{58-d}")
    for d in range(3, 0, -1): a(f"v_lshrrev_b32 v{64+d}, {3*d}, v64")
    for d in range(4): a(f"v_and_b32 v{64+d}, s{T2_}, v{64+d}")
    a(f"s_lshl_b32 s{T4_}, s{S_WAVE}, 10", f"s_add_u32 s{T4_}, s{T4_}, {C_U + 480}")
    a("v_bfe_u32 v11, v1, 1, 1", f"v_mul_u32_u24 v11, {U_SIZE}, v11", "v_lshl_add_u32 v11, v10, 4, v11", "v_lshrrev_b32 v10, 2, v1", "v_lshl_add_u32 v11, v10, 5, v11", f"v_add_u32 v11, s{T4_}, v11")
    a(f"v_add_u32 v10, s{T4_}, v9")
    a(f"v_mov_b32 v116, s{S_WAVE}")
    a(f"s_add_u32 s{T0_}, s{T0_}, {hex(WS_FLAG1)}", "v_lshrrev_b32 v12, 2, v1", "v_lshl_add_u32 v12, v12, 6, v59", f"v_add_u32 v12, s{T0_}, v12")
    UT = eval(os.environ.get("UT", "(4, 0, 4)"))
    a(f"s_cmp_lt_u32 s{S_I}, 8", f"s_cselect_b32 s{T2_}, {UT[0]}, {UT[1]}", f"s_cmp_ge_u32 s{S_I}, 24", f"s_cselect_b32 s{T2_}, {UT[2]}, s{T2_}", f"v_mov_b32 v14, s{T2_}")
    a("s_setprio 0")
    a("s_waitcnt vmcnt(0)")
    a(f"ds_write_b8 v116, v{VONE} offset:{FL_UTOK + 4}")
    stamp(a, 8)
    lds_wait(a, FL_G, 8, "b4", addr=14, sleep=2)
    a("s_setprio 3")
    stamp(a, 5)
    if ENV("UDELAY", 0): a(f"s_sleep {ENV('UDELAY', 0)}")
    lp = newlabel("UP"); l1 = newlabel("UPE")
    UM = os.environ.get("UMOD", "sc1").replace("_", " ")
    MK = [6, 8, 10, 12]
    if ENV("MPOLL", 0):
        for m in MK: a(f"s_mov_b64 s[{m}:{m+1}], -1")
        a(f"s_mov_b32 s{SP0}, {hex(TAGM)}")
    a(f"s_branch {l1}")
    a(f"{lp}:")
    a(f"s_sleep {ENV('USLEEP', 2)}")
    a(f"{l1}:")
    if ENV("MPOLL", 0):
        lds = [f"buffer_load_dwordx4 v[20:23], v13, s[{R0}:{R0+3}], s{T1_} offen {UM}", f"buffer_load_dwordx4 v[24:27], v13, s[{R0}:{R0+3}], s{T5_} offen {UM}",
               f"buffer_load_dwordx4 v[28:31], v7, s[{R0}:{R0+3}], s{T3_} offen {UM}"]
        for k in range(3): a(f"s_mov_b64 exec, s[{MK[k]}:{MK[k]+1}]", lds[k])
        a(f"s_mov_b64 exec, s[{MK[3]}:{MK[3]+1}]")
        a(f"global_load_dword v32, v12, s[{P_WS}:{P_WS+1}] sc1", f"global_load_dword v33, v12, s[{P_WS}:{P_WS+1}] offset:1024 sc1")
        guard(a)
        for k in range(3):
            a(f"s_mov_b64 exec, s[{MK[k]}:{MK[k]+1}]", f"s_waitcnt vmcnt({4-k})")
            for d in range(4): a(f"v_xor_b32 v{20+4*k+d}, v{(64 if k == 2 else 60)+d}, v{20+4*k+d}")
            a(f"v_or3_b32 v44, v{20+4*k}, v{21+4*k}, v{22+4*k}", f"v_bitop3_b32 v44, v44, v{23+4*k}, s{SP0} bitop3:0xa8", f"v_cmp_ne_u32 s[{MK[k]}:{MK[k]+1}], 0, v44")
        a(f"s_mov_b64 exec, s[{MK[3]}:{MK[3]+1}]", "s_waitcnt vmcnt(0)")
        a("v_xor_b32 v32, v58, v32", "v_bitop3_b32 v32, v32, v58, v33 bitop3:0xf6", f"v_cmp_ne_u32 s[{MK[3]}:{MK[3]+1}], 0, v32")
        a(f"s_or_b64 vcc, s[{MK[0]}:{MK[0]+1}], s[{MK[1]}:{MK[1]+1}]", f"s_or_b64 vcc, vcc, s[{MK[2]}:{MK[2]+1}]", f"s_or_b64 vcc, vcc, s[{MK[3]}:{MK[3]+1}]", f"s_cbranch_scc1 {lp}")
        a("s_mov_b64 exec, -1")
    else:
        a(f"global_load_dword v32, v12, s[{P_WS}:{P_WS+1}] sc1", f"global_load_dword v33, v12, s[{P_WS}:{P_WS+1}] offset:1024 sc1")
        a(f"buffer_load_dwordx4 v[20:23], v13, s[{R0}:{R0+3}], s{T1_} offen {UM}")
        a(f"buffer_load_dwordx4 v[24:27], v13, s[{R0}:{R0+3}], s{T5_} offen {UM}")
        a(f"buffer_load_dwordx4 v[28:31], v7, s[{R0}:{R0+3}], s{T3_} offen {UM}")
        guard(a)
        for k in range(3):
            a(f"s_waitcnt vmcnt({2-k})")
            if k == 0: a("v_xor_b32 v32, v58, v32", "v_xor_b32 v33, v58, v33")
            for d in range(4): a(f"v_xor_b32 v{20+4*k+d}, v{(64 if k == 2 else 60)+d}, v{20+4*k+d}")
            a(f"v_or3_b32 v44, v{20+4*k}, v{21+4*k}, v{44 if k else 21}", f"v_or3_b32 v44, v{22+4*k}, v{23+4*k}, v44")
        a(f"v_and_b32 v44, {hex(TAGM)}, v44", "v_or3_b32 v44, v44, v32, v33", "v_cmp_ne_u32 vcc, 0, v44", f"s_cbranch_vccnz {lp}")
    stamp(a, 6)
    a("ds_write_b128 v11, v[20:23]", "ds_write_b128 v11, v[24:27] offset:512", f"ds_write_b128 v10, v[28:31] offset:{2*U_SIZE}")
    a(f"ds_write_b8 v116, v{VONE} offset:{FL_UF}")
    stamp(a, 7)
    gen_wjobs(a)
    a("s_setprio 0")
    a(f"s_lshr_b32 s{T0_}, s{S_B2}, 6", f"s_lshl_b32 s{T0_}, s{T0_}, 9")
    a(f"s_bfe_u32 s{T1_}, s{S_B2}, 0x20004", f"s_lshl_b32 s{T1_}, s{T1_}, 6", f"s_add_u32 s{T0_}, s{T0_}, s{T1_}")
    a(f"s_and_b32 s{T1_}, s{S_B2}, 3", f"s_lshl_b32 s{T1_}, s{T1_}, 4", f"s_add_u32 s{T0_}, s{T0_}, s{T1_}")
    a(f"s_and_b32 s{T1_}, s{S_B2}, 12", f"s_add_u32 s{T0_}, s{T0_}, s{T1_}")
    a(f"s_lshr_b32 s{T1_}, s{S_WAVE}, 1", f"s_lshl_b32 s{T1_}, s{T1_}, 8", f"s_add_u32 s{T0_}, s{T0_}, s{T1_}")
    a(f"s_and_b32 s{T1_}, s{S_WAVE}, 1", f"s_lshl_b32 s{T1_}, s{T1_}, 1", f"s_add_u32 s{T0_}, s{T0_}, s{T1_}")
    a("v_lshrrev_b32 v113, 5, v1", "v_and_b32 v114, 31, v1")
    a(f"v_add_u32 v112, s{T0_}, v113")
    a("v_mul_u32_u24 v115, 1152, v112", "v_lshl_add_u32 v8, v114, 2, v115", "v_lshl_add_u32 v115, v114, 4, v115", "v_lshlrev_b32 v7, 2, v114", "v_lshlrev_b32 v6, 4, v114")
    a(f"v_bfe_u32 v111, v1, 3, 1", f"v_add_u32 v111, s{T0_}, v111", "v_mul_u32_u24 v111, 1152, v111", "v_and_b32 v9, 7, v1", "v_lshl_add_u32 v111, v9, 4, v111")
    srd(a, R0, P_X, XBYTES)
    srd(a, R1, P_WR, 1152)
    a(f"buffer_load_dwordx4 v[10:13], v115, s[{R0}:{R0+3}], 0 offen")
    a(f"buffer_load_dwordx4 v[14:17], v115, s[{R0}:{R0+3}], 0 offen offset:512")
    a(f"buffer_load_dword v18, v8, s[{R0}:{R0+3}], 0 offen offset:1024")
    a(f"buffer_load_dwordx4 v[50:53], v6, s[{R1}:{R1+3}], 0 offen")
    a(f"buffer_load_dwordx4 v[54:57], v6, s[{R1}:{R1+3}], 0 offen offset:512")
    a(f"buffer_load_dword v58, v7, s[{R1}:{R1+3}], 0 offen offset:1024")
    if not PTAG:
        a(f"s_cmp_lt_u32 s{S_I}, 18", "s_cbranch_scc1 KS_L4")
        a(f"s_mul_i32 s{T0_}, s{S_XC}, 14", f"s_add_u32 s{T0_}, s{T0_}, s{S_I}", f"s_mul_i32 s{T0_}, s{T0_}, {CLRP_WG}", f"s_add_u32 s{T0_}, s{T0_}, {hex(WS_PART - 18*CLRP_WG)}")
        a(f"s_add_u32 s{R1}, s{P_WS}, s{T0_}", f"s_addc_u32 s{R1+1}, s{P_WS+1}, 0", f"s_mov_b32 s{R1+2}, {CLRP_WG}", f"s_mov_b32 s{R1+3}, 0x20000")
        a("v_lshlrev_b32 v6, 4, v0", "v_mov_b32 v60, -1", "v_mov_b32 v61, -1", "v_mov_b32 v62, -1", "v_mov_b32 v63, -1")
        for k in range(6):
            a(f"s_movk_i32 s{T0_}, {4096*k}")
            a(f"buffer_store_dwordx4 v[60:63], v6, s[{R1}:{R1+3}], s{T0_} offen sc1")
    a("KS_L4:")
    srd(a, R0, P_WS, 0x240000, WS_ZB1)
    srd(a, R1, P_OUT, XBYTES)
    srd(a, R2_, P_WS, XBYTES, WS_X2)
    srd(a, R3, P_WS, 12288, WS_KEYS)
    a(f"s_not_b32 s{T1_}, s{S_B2}", f"v_xor_b32 v8, s{T1_}, v0")
    a("v_lshrrev_b32 v6, 1, v0", "v_lshlrev_b32 v6, 6, v6", "v_and_b32 v8, 1, v8", "v_lshl_add_u32 v6, v8, 4, v6")
    a(f"s_lshr_b32 s{T0_}, s{S_B2}, 2", f"s_lshl_b32 s{T0_}, s{T0_}, 15", f"s_and_b32 s{T1_}, s{S_B2}, 1", f"s_lshl_b32 s{T1_}, s{T1_}, 14", f"s_add_u32 s{T0_}, s{T0_}, s{T1_}")
    a(f"s_and_b32 s{T1_}, s{S_B2}, 2", f"s_lshl_b32 s{T1_}, s{T1_}, 4", f"s_add_u32 s{T0_}, s{T0_}, s{T1_}")
    a(f"s_lshr_b32 s{T2_}, s{S_B2}, 2", f"s_lshl_b32 s{T2_}, s{T2_}, 12", f"s_and_b32 s{T1_}, s{S_B2}, 3", f"s_lshl_b32 s{T1_}, s{T1_}, 4")
    a(f"s_add_u32 s{T2_}, s{T2_}, s{T1_}", f"s_lshl_b32 s{T1_}, s{S_WAVE}, 10", f"s_add_u32 s{T2_}, s{T2_}, s{T1_}", f"s_add_u32 s{T2_}, s{T2_}, 0x200000")
    a("v_lshlrev_b32 v9, 6, v2")
    if SWZ:
        a(f"s_lshl_b32 s{T1_}, s{S_B2}, 5", f"s_and_b32 s{T3_}, s{T1_}, 0x1f80", f"v_xor_b32 v6, s{T3_}, v6", f"s_and_b32 s{T3_}, s{T1_}, 0x380", f"v_xor_b32 v9, s{T3_}, v9")
        a(f"s_and_b32 s{T3_}, s{T1_}, 0xc00", f"s_xor_b32 s{T2_}, s{T2_}, s{T3_}", f"s_and_b32 s{T1_}, s{S_B2}, 1", f"s_lshl_b32 s{T1_}, s{T1_}, 13", f"s_xor_b32 s{T0_}, s{T0_}, s{T1_}")
    a(f"s_xor_b32 s{T1_}, s{T0_}, 0x2000")
    a(f"s_mul_i32 s{T3_}, s{S_WAVE}, 2304", f"s_add_u32 s{T3_}, s{T3_}, {C_XR}", f"v_lshl_add_u32 v117, v114, 5, s{T3_}", f"v_lshl_add_u32 v110, v114, 3, s{T3_}")
    a(f"s_lshl_b32 s{T3_}, s{S_WAVE}, 9", f"s_add_u32 s{T3_}, s{T3_}, {C_RED}", f"v_lshl_add_u32 v108, v1, 2, s{T3_}", f"v_lshl_add_u32 v109, v1, 4, s{T3_}")
    a(f"s_mov_b32 s{T3_}, 0x02020202", f"v_mul_lo_u32 v118, v113, s{T3_}", "v_add_u32 v118, 0x05040100, v118")
    a(f"v_lshlrev_b32 v8, 2, v0", f"v_add_u32 v8, {C_XR}, v8")
    a(f"s_lshl_b32 s{T3_}, s{S_WAVE}, 6", f"s_add_u32 s{T3_}, s{T3_}, {C_XR + 2048}", f"v_lshl_add_u32 v119, v2, 2, s{T3_}")
    a("s_waitcnt vmcnt(0)")
    X = 20
    for j in range(9): unpack(a, X + 2 * j, 10 + j)
    lds_wait(a, FL_ZDONE + 4, 60, "b4", sleep=1)
    a("s_setprio 3")
    if PFD2 > PFD:
        W3 = ENV("PF3W", 6)
        a(f"s_sub_u32 s{T5_}, s{S_I}, 18", f"s_cmp_ge_u32 s{T5_}, {W3}", "s_cbranch_scc1 KS_PF3E", f"s_cmp_lg_u32 s{S_WAVE}, 2", "s_cbranch_scc1 KS_PF3E")
        pf_down(a, T5_, W3, PFD, PFD2, 100, 120, "KS_PF3E", R4)
        a("KS_PF3E:")
    stamp2(a, 1)
    if ENV("ZGATE", 1):
        zpoll(a, [f"buffer_load_dwordx4 v[68:71], v{VZ}, s[{R0}:{R0+3}], s{T2_} offen sc1"], list(range(68, 72)), ENV("ZSLEEP", 1))
        if ENV("ZDELAY", 0): a(f"s_sleep {ENV('ZDELAY', 0)}")
    zpoll(a, [f"buffer_load_dwordx4 v[60:63], v6, s[{R0}:{R0+3}], s{T0_} offen sc1",
           f"buffer_load_dwordx4 v[64:67], v6, s[{R0}:{R0+3}], s{T1_} offen sc1",
           f"buffer_load_dwordx4 v[68:71], v9, s[{R0}:{R0+3}], s{T2_} offen sc1"], list(range(60, 72)), ENV("ZSLEEP", 1))
    stamp2(a, 2)
    for k in range(2):
        a(f"ds_write2st64_b32 v8, v{60+4*k}, v{61+4*k} offset0:{4*k} offset1:{9+4*k}")
        a(f"ds_write2st64_b32 v8, v{62+4*k}, v{63+4*k} offset0:{18+4*k} offset1:{27+4*k}")
    a("ds_write2st64_b32 v119, v68, v69 offset0:0 offset1:9")
    a("ds_write2st64_b32 v119, v70, v71 offset0:18 offset1:27")
    a(f"ds_write_b8 v116, v{VONE} offset:{FL_ZF}")
    stamp2(a, 3)
    lds_wait(a, FL_ZF, 60, "b4")
    for k in range(4):
        a(f"ds_read_b128 v[{60+4*k}:{63+4*k}], v117 offset:{1024*(k>>1) + 16*(k&1)}")
    a("ds_read_b64 v[76:77], v110 offset:2048")
    for j in range(9):
        if j % 2 == 0: a(f"s_waitcnt lgkmcnt({4-j//2})")
        a(f"v_perm_b32 v44, v{61+2*j}, v{60+2*j}, v118")
        unpack(a, 46, 44)
        a(f"v_pk_add_f32 v[46:47], v[46:47], v[{X+2*j}:{X+2*j+1}]")
        a(f"v_cvt_pk_bf16_f32 v44, v46, v47")
        unpack(a, X + 2 * j, 44)
    ln_stats(a, X, 40, 42, 44, 46, 48)
    stamp2(a, 4)
    a("v_mov_b32 v60, 0", "v_mov_b32 v61, 0")
    for j in range(9):
        ln_apply_pair(a, X + 2 * j, 40, 42, 44, 10 + j)
        unpack(a, 46, 50 + j)
        a("v_pk_fma_f32 v[60:61], v[44:45], v[46:47], v[60:61]")
        a(f"v_pk_add_f32 v[{X+2*j}:{X+2*j+1}], v[44:45], v[{X+2*j}:{X+2*j+1}]")
    a("v_add_f32 v60, v60, v61")
    red32(a, "v_add_f32", 60, 61)
    a("v_cvt_pk_bf16_f32 v60, v60, v60")
    a("v_ashrrev_i32 v61, 31, v60", "v_or_b32 v61, 0x80000000, v61", "v_xor_b32 v60, v60, v61", "v_and_b32 v60, 0xffff0000, v60")
    a("v_sub_u32 v62, 0x87ff, v112", "v_or_b32 v60, v60, v62", "v_lshl_add_u32 v61, v116, 1, v113", "v_lshlrev_b32 v61, 2, v61")
    a("s_mov_b32 exec_lo, 1", "s_mov_b32 exec_hi, 1")
    a(f"ds_write_b32 v61, v60 offset:{C_KEY}")
    a("s_mov_b64 exec, 1")
    a(f"ds_add_rtn_u32 v62, v{VZ}, v{VONE} offset:{FL_KCNT}")
    a("s_mov_b64 exec, 3")
    a("v_lshlrev_b32 v61, 4, v114", f"s_lshl_b32 s{T0_}, s{S_B2}, 5")
    a(f"ds_read_b128 v[64:67], v61 offset:{C_KEY}")
    a("s_waitcnt lgkmcnt(1)")
    a(f"v_readfirstlane_b32 s{T1_}, v62")
    a(f"s_cmp_lg_u32 s{T1_}, 3", "s_cbranch_scc1 KS_NOKEY")
    a("s_waitcnt lgkmcnt(0)")
    a(f"buffer_store_dwordx4 v[64:67], v61, s[{R3}:{R3+3}], s{T0_} offen sc1")
    a("KS_NOKEY:")
    a("s_mov_b64 exec, -1")
    a(f"v_cvt_pk_bf16_f32 v58, v{X+16}, v{X+17}")
    a("ds_write_b32 v108, v18", "ds_write_b32 v108, v58 offset:256", "ds_read_b128 v[64:67], v109")
    a(f"buffer_store_dwordx4 v[10:13], v115, s[{R2_}:{R2_+3}], 0 offen sc1")
    a(f"buffer_store_dwordx4 v[14:17], v115, s[{R2_}:{R2_+3}], 0 offen offset:512 sc1")
    for j in range(8):
        a(f"v_cvt_pk_bf16_f32 v{50+j}, v{X+2*j}, v{X+2*j+1}")
    a("s_mov_b64 exec, 0xffff")
    a("s_waitcnt lgkmcnt(0)")
    a(f"buffer_store_dwordx4 v[64:67], v111, s[{R2_}:{R2_+3}], 0 offen offset:1024 sc1")
    a("s_mov_b64 exec, 0xffff0000")
    a(f"buffer_store_dwordx4 v[64:67], v111, s[{R1}:{R1+3}], 0 offen offset:1024 sc1")
    a("s_mov_b64 exec, -1")
    a(f"buffer_store_dwordx4 v[50:53], v115, s[{R1}:{R1+3}], 0 offen sc1")
    a(f"buffer_store_dwordx4 v[54:57], v115, s[{R1}:{R1+3}], 0 offen offset:512 sc1")
    stamp2(a, 5)
    a(f"s_cmp_lg_u32 s{T1_}, 3", "s_cbranch_scc1 KS_NOKEY2")
    a("s_waitcnt vmcnt(6)")
    a(f"ds_write_b32 v{VZ}, v{VONE} offset:{FL_KACK}")
    a("KS_NOKEY2:")
    a("s_waitcnt vmcnt(0)")
    a("s_mov_b64 exec, 1")
    a(f"ds_add_rtn_u32 v62, v{VZ}, v{VONE} offset:{FL_F2CNT}")
    a("s_waitcnt lgkmcnt(0)")
    a("v_cmp_eq_u32 vcc, 3, v62", "s_and_b64 exec, exec, vcc", "s_cbranch_execz KS_NOF2")
    a(f"s_lshl_b32 s{T0_}, s2, 4", f"s_add_u32 s{T0_}, s{T0_}, 8192")
    a(f"buffer_store_dword v{VONE}, v{VZ}, s[{R3}:{R3+3}], s{T0_} offen sc1")
    a("KS_NOF2:")
    a("s_mov_b64 exec, -1")
    a("s_setprio 0")
    a(f"s_cmp_lt_u32 s{S_I}, 18", "s_cbranch_scc1 KS_B")
    a("s_waitcnt lgkmcnt(0)")
    endwave(a)
    a("KS_T:")
    a("s_setprio 0")
    a(f"s_cmp_ge_u32 s{S_WAVE}, 10", "s_cbranch_scc1 KS_P")
    a("v_and_b32 v6, 1, v1", "v_subrev_u32 v6, 1, v6")
    a("v_and_b32 v7, 7, v1", "v_lshlrev_b32 v7, 2, v7")
    srd(a, R3, P_WS, 12288, WS_KEYS)
    a(f"s_cmp_eq_u32 s{S_WAVE}, 9", "s_cbranch_scc1 KS_W9")
    a(f"s_cmp_eq_u32 s{S_WAVE}, 8", "s_cbranch_scc1 KS_L2W")
    a(f"s_sub_u32 s{T1_}, s{S_WAVE}, 4", f"s_lshl_b32 s{T0_}, s{T1_}, 10", f"v_lshl_add_u32 v33, v1, 4, s{T0_}", f"s_movk_i32 s{T0_}, 4096")
    a(f"s_lshl_b32 s{T1_}, s{T1_}, 7", "v_lshlrev_b32 v32, 4, v2", "v_lshl_add_u32 v32, v3, 5, v32", f"v_add_u32 v32, s{T1_}, v32")
    lds_wait(a, FL_KACK, 8, "nz", sleep=1)
    a("s_setprio 2")
    if ENV('KDELAY', 20): a(f"s_sleep {ENV('KDELAY', 20)}")
    stamp2(a, 1)
    zpoll(a, [f"buffer_load_dwordx4 v[8:11], v33, s[{R3}:{R3+3}], 0 offen sc1",
           f"buffer_load_dwordx4 v[12:15], v33, s[{R3}:{R3+3}], s{T0_} offen sc1"], list(range(8, 16)), ENV("KSLEEP", 4))
    a(f"ds_write_b32 v{VZ}, v{VONE} offset:{FL_KSEEN}")
    stamp2(a, 2)
    pool = Pool(range(16, 28))
    x = [8, 9, 10, 11]; y = [12, 13, 14, 15]
    for (i, j) in ((0, 1), (2, 3), (0, 2), (1, 3), (1, 2)):
        ce_inlane(a, x, i, j, pool); ce_inlane(a, y, i, j, pool)
    clean8(a, x, pool, 6, rev=True); clean8(a, y, pool, 6, rev=True)
    merge_pair(a, x, y, pool); clean8(a, x, pool, 6)
    for M in MIRRORS:
        merge_mirror(a, x, pool, M); clean8(a, x, pool, 6)
    for i in range(4): a(f"v_mov_b32 v{28+i}, v{x[i]}")
    a("s_mov_b32 exec_lo, 0x00030003", "s_mov_b32 exec_hi, 0x00030003")
    a(f"ds_write_b128 v32, v[28:31] offset:{C_CAND}")
    a("s_mov_b64 exec, -1")
    stamp2(a, 3)
    a("s_setprio 0")
    a("s_branch KS_B")
    a("KS_L2W:")
    srd(a, R2_, P_WS, XBYTES, WS_X2)
    a(f"s_mov_b32 s{T0_}, 0xcccccccc", f"s_mov_b32 s{T1_}, 0xcccccccc", f"s_mov_b32 s{T2_}, 0xf0f0f0f0", f"s_mov_b32 s{T3_}, 0xf0f0f0f0", f"s_movk_i32 s{T4_}, 1152")
    a("v_lshrrev_b32 v34, 3, v1", "v_lshlrev_b32 v34, 4, v34", "v_lshlrev_b32 v33, 4, v2")
    lds_wait(a, FL_KACK, 8, "nz", sleep=1)
    a("s_setprio 2")
    a("KS_L2POLL:")
    a(f"ds_read_b128 v[8:11], v33 offset:{C_CAND}")
    a(f"ds_read_b128 v[12:15], v33 offset:{C_CAND + 256}")
    guard(a)
    a("s_waitcnt lgkmcnt(0)")
    a("v_min3_u32 v16, v8, v9, v10", "v_min3_u32 v17, v11, v12, v13", "v_min3_u32 v16, v16, v14, v15", "v_min_u32 v16, v16, v17", "v_cmp_eq_u32 vcc, 0, v16")
    a("s_cbranch_vccnz KS_L2POLL")
    stamp2(a, 1)
    pool = Pool(range(16, 28))
    x = [8, 9, 10, 11]; y = [12, 13, 14, 15]
    merge_pair(a, x, y, pool); clean8(a, x, pool, 6)
    for li, M in enumerate(MIRRORS):
        merge_mirror(a, x, pool, M)
        if li < 2: clean8(a, x, pool, 6)
    a(f"ds_read_b32 v35, v{VZ} offset:{FL_ROWSOK}")
    a(f"v_cndmask_b32 v30, v{x[0]}, v{x[1]}, s[{T0_}:{T1_}]", f"v_cndmask_b32 v31, v{x[2]}, v{x[3]}, s[{T0_}:{T1_}]", f"v_cndmask_b32 v30, v30, v31, s[{T2_}:{T3_}]")
    a("v_mov_b32_dpp v30, v30 row_shr:8 row_mask:0xf bank_mask:0xc")
    a("v_and_b32 v31, 0x7ff, v30", "v_sub_u32 v31, 2047, v31", f"v_mad_u32_u24 v31, v31, s{T4_}, v34")
    a("s_waitcnt lgkmcnt(0)")
    a("v_cmp_ne_u32 vcc, 0, v35", "s_cbranch_vccnz KS_RW1")
    lds_wait(a, FL_ROWSOK, 35, "nz")
    a("KS_RW1:")
    for k in range(9):
        a(f"s_mov_b32 m0, {C_XR + 896*k}")
        a(f"buffer_load_dwordx4 v31, s[{R2_}:{R2_+3}], 0 offen offset:{128*k} sc1 lds")
    a(f"ds_write_b32 v7, v30 offset:{C_SEL}")
    stamp2(a, 2)
    a("s_waitcnt vmcnt(0)")
    a(f"ds_write_b32 v{VZ}, v{VONE} offset:{FL_XRDY}")
    stamp2(a, 3)
    a("s_setprio 0")
    a("s_branch KS_B")
    a("KS_W9:")
    a("v_lshlrev_b32 v33, 4, v1", f"s_movk_i32 s{T0_}, 0x2000")
    srd(a, R2_, P_WS, XBYTES, WS_X2)
    srd(a, R0, P_WS, 0x240000, WS_ZB1)
    srd(a, R1, P_X, XBYTES)
    a("v_bfe_u32 v43, v1, 2, 3", f"s_lshl_b32 s{T1_}, s{S_BLK}, 3", f"v_add_u32 v43, s{T1_}, v43")
    a("v_bfe_u32 v40, v43, 4, 1", "v_and_b32 v41, 3, v1", "v_lshl_add_u32 v40, v40, 2, v41", "v_lshlrev_b32 v40, 2, v40")
    a("v_lshrrev_b32 v41, 5, v43", "v_lshlrev_b32 v41, 4, v41", "v_and_b32 v42, 15, v43", "v_add_u32 v41, v41, v42")
    lds_wait(a, FL_KSEEN, 8, "nz", sleep=1)
    if ENV('F2DELAY', 8): a(f"s_sleep {ENV('F2DELAY', 8)}")
    a("s_setprio 2")
    zpoll(a, [f"buffer_load_dword v{8+k}, v33, s[{R3}:{R3+3}], s{T0_} offen offset:{1024*k} sc1" for k in range(4)], list(range(8, 12)), ENV("F2SLEEP", 4))
    a(f"ds_write_b32 v{VZ}, v{VONE} offset:{FL_ROWSOK}")
    stamp2(a, 1)
    a("s_setprio 0")
    lds_wait(a, C_SEL, 12, "nz", addr=7, sleep=1)
    stamp2(a, 2)
    a(f"ds_read_b32 v19, v40 offset:{C_SEL}")
    a("s_waitcnt lgkmcnt(0)")
    a("v_and_b32 v14, 0x7ff, v19", "v_sub_u32 v14, 2047, v14")
    a("v_mul_u32_u24 v23, 1152, v14", "v_lshl_add_u32 v23, v41, 1, v23")
    a(f"buffer_load_ushort v20, v23, s[{R2_}:{R2_+3}], 0 offen sc1")
    a(f"buffer_load_ushort v17, v23, s[{R1}:{R1+3}], 0 offen")
    a("v_lshrrev_b32 v15, 9, v14", "v_bfe_u32 v16, v14, 6, 2", "v_lshl_add_u32 v15, v15, 2, v16", "v_bfe_u32 v16, v14, 2, 2", "v_lshl_add_u32 v15, v15, 2, v16")
    a("v_bfe_u32 v16, v14, 4, 1")
    a("v_bfe_u32 v24, v14, 8, 1", "v_and_b32 v25, 3, v14", "v_lshl_add_u32 v24, v24, 2, v25", "v_lshlrev_b32 v24, 1, v24")
    a("v_bfe_u32 v25, v14, 5, 1", "v_lshl_add_u32 v24, v25, 5, v24")
    a("v_lshl_add_u32 v25, v15, 1, v16", "v_lshl_add_u32 v25, v25, 14, v24")
    a("v_lshrrev_b32 v26, 1, v41", "v_lshl_add_u32 v25, v26, 6, v25", "v_xor_b32 v26, v41, v16", "v_not_b32 v26, v26", "v_and_b32 v26, 1, v26", "v_lshl_add_u32 v25, v26, 4, v25")
    a("v_lshl_add_u32 v26, v15, 12, v24", "v_lshl_add_u32 v26, v16, 4, v26", "v_lshl_add_u32 v26, v41, 6, v26", f"v_add_u32 v26, {0x200000 - 512*64}, v26")
    if SWZ:
        a("v_lshl_add_u32 v27, v16, 6, v15", "v_lshlrev_b32 v27, 7, v27", "v_xor_b32 v25, v27, v25", "v_and_b32 v27, 0xf80, v27", "v_xor_b32 v26, v27, v26")
    a("v_cmp_gt_u32 vcc, 0x200, v41", "v_cndmask_b32 v25, v26, v25, vcc")
    a(f"buffer_load_ushort v18, v25, s[{R0}:{R0+3}], 0 offen sc1")
    srd(a, R2_, P_WS, 64, WS_IDX)
    a("v_ashrrev_i32 v22, 31, v19", "v_not_b32 v22, v22", "v_or_b32 v22, 0x80000000, v22", "v_xor_b32 v22, v19, v22", "v_and_b32 v22, 0xffff0000, v22")
    a(f"v_mul_f32 v22, {f32(-LOG2E)}, v22", "v_exp_f32 v22, v22", "v_add_f32 v22, 1.0, v22", "v_rcp_f32 v22, v22")
    a("v_cvt_pk_bf16_f32 v22, v22, v22", "v_lshlrev_b32 v22, 16, v22")
    a("v_and_b32 v14, 31, v1", "v_lshlrev_b32 v14, 4, v14")
    a("s_waitcnt vmcnt(0)")
    a("v_lshlrev_b32 v17, 16, v17", "v_lshlrev_b32 v18, 16, v18", "v_add_f32 v17, v17, v18", "v_cvt_pk_bf16_f32 v17, v17, v17")
    a("v_and_b32 v21, 0xffff0000, v17", "v_lshlrev_b32 v20, 16, v20")
    a(f"ds_write_b128 v14, v[20:23] offset:{C_SIDE}")
    a("s_cmp_lg_u32 s2, 0", "s_cbranch_scc1 KS_W9E")
    a(f"buffer_store_dword v12, v7, s[{R2_}:{R2_+3}], 0 offen")
    a("KS_W9E:")
    a("s_waitcnt lgkmcnt(0)")
    stamp2(a, 3)
    endwave(a)
    a("KS_B:")
    srd(a, R0, P_WS, PART_BYTES, WS_PART)
    a("v_bfe_u32 v16, v1, 2, 2", "v_lshl_add_u32 v16, v3, 3, v16", "v_mul_u32_u24 v16, 1152, v16", "v_and_b32 v17, 3, v1", "v_lshl_add_u32 v16, v17, 3, v16")
    a(f"s_lshl_b32 s{T0_}, s{S_WAVE}, 7", f"s_add_u32 s{T0_}, s{T0_}, {C_DOWN}", f"v_add_u32 v16, s{T0_}, v16")
    if PTAG: a("v_lshlrev_b32 v18, 2, v17", f"ds_read_b32 v24, v18 offset:{FL_NONCE}", f"s_movk_i32 s{T2_}, 0xff")
    lds_wait(a, FL_DOWN, 17, "b4")
    if PTAG:
        for d in range(1, 4): a(f"v_lshrrev_b32 v{24+d}, {8*d}, v24")
    WTD = 48
    for jt in range(4):
        a(f"ds_read_b64_tr_b16 v[{WTD+4*jt}:{WTD+4*jt+1}], v16 offset:{32*jt}")
        a(f"ds_read_b64_tr_b16 v[{WTD+4*jt+2}:{WTD+4*jt+3}], v16 offset:{32*jt + 4608}")
    a("v_and_b32 v16, 7, v2", "v_lshlrev_b32 v16, 6, v16", "v_lshl_add_u32 v16, v3, 4, v16")
    a(f"s_mul_i32 s{T0_}, s{S_BLK}, {PROW}", f"s_lshl_b32 s{T1_}, s{S_WAVE}, 11", f"s_add_u32 s{T0_}, s{T0_}, s{T1_}")
    a("v_lshlrev_b32 v17, 4, v1")
    a("s_waitcnt lgkmcnt(0)")
    a("s_barrier")
    a("s_barrier")
    a(f"ds_read_b128 v[20:23], v16 offset:{C_ACT}")
    a("s_waitcnt lgkmcnt(0)")
    for j in range(4):
        a(f"v_mfma_f32_16x16x32_bf16 v[{32+4*j}:{35+4*j}], v[20:23], v[{WTD+4*j}:{WTD+4*j+3}], 0")
    for j in (0, 2):
        for r in range(4): a(f"v_permlane32_swap_b32 v{32+4*j+r}, v{36+4*j+r}")
        for r in range(4): a(f"v_bfi_b32 v{32+4*j+r}, s{T2_}, v{24+r}, v{32+4*j+r}" if PTAG else f"v_min_u32 v{32+4*j+r}, -2, v{32+4*j+r}")
        a(f"buffer_store_dwordx4 v[{32+4*j}:{35+4*j}], v17, s[{R0}:{R0+3}], s{T0_} offen offset:{512*j} sc1")
    stamp2(a, 8)
    a("s_waitcnt vmcnt(0)", "s_barrier")
    endwave(a)
    a("KS_G0:")
    a(f"ds_write_b8 v15, v{VONE} offset:{FL_G+4}")
    a("s_setprio 0")
    a("KS_G:")
    a(f"s_mov_b32 s{SP0}, 0x05040100", f"s_mov_b32 s{SP1}, 0x07060302")
    a("s_waitcnt vmcnt(0)")
    stamp(a, 5)
    g_addr_setup(a, 46)
    if DE:
        srd(a, R1, P_DOWN, F * D * 2)
        a("v_lshlrev_b32 v8, 4, v1", f"s_mul_i32 s{T0_}, s{S_BLK}, 36864", f"s_mul_i32 s{T1_}, s{S_G}, 9216", f"s_add_u32 s{T0_}, s{T0_}, s{T1_}", f"s_add_u32 s{T1_}, s{T1_}, {C_DOWN}")
        def wtrig(tr):
            a(f"s_cmp_lt_u32 s{S_I}, 8", f"s_cselect_b32 s{T2_}, 0, {tr[1] - tr[0]}", f"v_mov_b32 v9, s{T2_}")
            lds_wait(a, tr[0], 10, "b4", addr=9, sleep=2)
        TG = {"B": FL_UTOK, "K": FL_UTOK + 4, "U": FL_UF, "C": FL_G + 36, "A1": FL_G, "A2": FL_G + 4, "A3": FL_G + 8, "B1": FL_G + 16, "B2": FL_G + 20, "B3": FL_G + 24}
        DTR = os.environ.get("DTR", "C,B").split(","); GTR = os.environ.get("GTR", "C,B").split(",")
        if ENV("DLAST", 0):
            wtrig([TG[x] for x in GTR])
            a(f"s_lshr_b32 s{T2_}, {ENV('GNM', 3)}, s{S_G}", f"s_bitcmp1_b32 s{T2_}, 0", "s_cbranch_scc1 KS_GD1")
            a(f"s_and_b32 s{T2_}, s{S_G}, 1", f"s_mul_i32 s{T1_}, s{T2_}, 18432", f"s_mul_i32 s{T0_}, s{S_BLK}, 36864", f"s_add_u32 s{T0_}, s{T0_}, s{T1_}", f"s_add_u32 s{T1_}, s{T1_}, {C_DOWN}")
        wtrig([TG["C"], TG["B"]])
        if DTR != ["C", "B"]: wtrig([TG[x] for x in DTR])
        if DEA: a(f"s_cmp_ge_u32 s{S_I}, 8", "s_cbranch_scc1 KS_GD1")
        for k in range(18 if ENV("DLAST", 0) else 9):
            if k % 4 == 0:
                a(f"s_add_u32 m0, s{T1_}, {1024*k}")
                if k: a(f"s_add_u32 s{T0_}, s{T0_}, 4096")
            a(f"buffer_load_dwordx4 v8, s[{R1}:{R1+3}], s{T0_} offen offset:{1024*(k&3)} {MOD('DM', 'nt')} lds")
        if GTR != DTR and not ENV("DLAST", 0): wtrig([TG[x] for x in GTR])
        a("KS_GD1:")
        if ENV("GPRIO", 0): a(f"s_setprio {ENV('GPRIO', 0)}")
    SG = eval(os.environ.get("SG", "[0,0,0,0]"))
    if any(SG):
        a(f"s_mul_i32 s{T0_}, s{S_ROLE}, {32*9216}", f"s_lshl_b32 s{T1_}, s{S_BLK}, 6", f"s_add_u32 s{T0_}, s{T0_}, s{T1_}")
        a(f"s_add_u32 s{R0}, s{P_GATE}, s{T0_}", f"s_addc_u32 s{R0+1}, s{P_GATE+1}, 0", f"s_add_u32 s{R0+2}, s{P_UP}, s{T0_}", f"s_addc_u32 s{R0+3}, s{P_UP+1}, 0")
        cnt = sum(SG[g] << (8 * g) for g in range(4))
        a(f"s_lshl_b32 s{T1_}, s{S_G}, 3", f"s_lshr_b32 s{T1_}, {hex(cnt)}, s{T1_}", f"s_and_b32 s{T1_}, s{T1_}, 0xff", "s_cbranch_scc0 KS_SGE")
        a("KS_SGL:")
        for r in range(8):
            a(f"s_load_dword s{R1}, s[{R0}:{R0+1}], {r*9216}", f"s_load_dword s{R1+1}, s[{R0+2}:{R0+3}], {r*9216}")
        a(f"s_add_u32 s{R0}, s{R0}, {8*9216}", f"s_addc_u32 s{R0+1}, s{R0+1}, 0", f"s_add_u32 s{R0+2}, s{R0+2}, {8*9216}", f"s_addc_u32 s{R0+3}, s{R0+3}, 0")
        a(f"s_sub_u32 s{T1_}, s{T1_}, 1", f"s_cmp_lg_u32 s{T1_}, 0", "s_cbranch_scc1 KS_SGL")
        a("KS_SGE:")
        a("s_waitcnt lgkmcnt(0)")
        stamp(a, 8)
    TR = {1: (FL_PARAM, "nz"), 2: (FL_UF, "b4"), 3: (FL_ZF, "b4"), 4: (FL_KACK, "nz"), 5: (FL_KSEEN, "nz"), 6: (FL_ZDONE + 4, "b4")}
    GNM = ENV("GNM", 3)
    for t in sorted(set(GT)):
        if t == 0: continue
        l = newlabel("GT")
        mask = sum(1 << g for g in range(4) if GT[g] == t)
        if mask != 15: a(f"s_lshr_b32 s{T0_}, {mask}, s{S_G}", f"s_bitcmp1_b32 s{T0_}, 0", f"s_cbranch_scc0 {l}")
        lds_wait(a, TR[t][0], 10, TR[t][1], sleep=2)
        if t >= 3: a("s_setprio 1")
        a(f"{l}:")
    if GNM and GNM != 15:
        a(f"s_lshr_b32 s{T0_}, {GNM}, s{S_G}", f"s_bitcmp1_b32 s{T0_}, 0", "s_cbranch_scc0 KS_GN0")
        g_loads(a, 46, range(4), " nt")
        a(f"s_bitcmp1_b32 s{S_G}, 0", "s_cbranch_scc1 KS_G4")
        g_loads(a, 46, [4], " nt")
        a("s_branch KS_G4")
        a("KS_GN0:")
    GM = " nt" if GNM == 15 else ""
    g_loads(a, 46, range(4), GM)
    stamp(a, 6)
    def transpose(src, dst):
        for j in range(4):
            for p in range(4):
                lo = src + 2 * (2 * p) + (j >> 1); hi = src + 2 * (2 * p + 1) + (j >> 1)
                a(f"v_perm_b32 v{dst+4*j+p}, v{hi}, v{lo}, s{SP0 + (j & 1)}")
    W = GW
    a(f"s_bitcmp1_b32 s{S_G}, 0", "s_cbranch_scc1 KS_G4")
    g_loads(a, 46, [4], GM)
    a("KS_G4:")
    a(f"v_mov_b32 v6, s{S_G}", f"ds_write_b8 v6, v{VONE} offset:{FL_GISS}")
    a("s_waitcnt vmcnt(0)")
    if DE: a(f"ds_write_b8 v6, v{VONE} offset:{FL_DOWN}")
    stamp(a, 7)
    for ks in range(5): transpose(W + 16 * ks, W + 16 * ks - 16)
    GACC = 112
    a(f"s_lshl_b32 s{T0_}, s{S_ROLE}, 9", f"s_add_u32 s{T0_}, s{T0_}, {C_XR}", "v_and_b32 v6, 7, v2", f"v_lshl_add_u32 v7, v6, 4, s{T0_}", "v_lshl_add_u32 v7, v3, 7, v7")
    a(f"s_lshl_b32 s{T0_}, s{S_G}, 6", f"v_add_u32 v11, s{T0_}, v1")
    a("v_lshrrev_b32 v8, 5, v11", "v_and_b32 v9, 31, v11")
    a("v_and_b32 v10, 3, v9", "v_lshlrev_b32 v10, 9, v10")
    a("v_lshrrev_b32 v9, 2, v9", "v_lshl_add_u32 v10, v9, 4, v10")
    a("v_lshrrev_b32 v9, 2, v8", "v_lshl_add_u32 v10, v9, 8, v10")
    a("v_and_b32 v9, 3, v8", "v_lshl_add_u32 v10, v9, 2, v10")
    a("v_lshlrev_b32 v11, 1, v11")
    a(f"s_lshl_b32 s{T0_}, s{S_G}, 11", f"v_lshl_add_u32 v9, v1, 4, s{T0_}")
    lds_wait(a, C_SEL, 12, "nz", sleep=2)
    a("s_setprio 2")
    lds_wait(a, FL_XRDY, 12, "nz")
    stamp2(a, 1)
    for ks in range(5):
        a(f"ds_read_b128 v[{12+4*ks}:{15+4*ks}], v7 offset:{512*ks}")
    for ks in range(5):
        if ks == 4: a(f"s_bitcmp1_b32 s{S_G}, 0", "s_cbranch_scc1 KS_G5")
        a(f"s_waitcnt lgkmcnt({4-ks})")
        for j in range(4):
            c = "0" if ks == 0 else f"v[{GACC+4*j}:{GACC+4*j+3}]"
            a(f"v_mfma_f32_16x16x32_bf16 v[{GACC+4*j}:{GACC+4*j+3}], v[{12+4*ks}:{15+4*ks}], v[{32+16*ks+4*j}:{35+16*ks+4*j}], {c}")
    a("KS_G5:")
    a("s_mov_b32 exec_lo, -1", "s_mov_b32 exec_hi, 0")
    a.flush(6)
    for j in range(4):
        a(f"ds_write_b128 v9, v[{GACC+4*j}:{GACC+4*j+3}] offset:{C_RED + 512*j}")
    a("s_mov_b64 exec, -1")
    a("s_waitcnt lgkmcnt(0)", "s_barrier")
    stamp2(a, 2)
    for w in range(4):
        a(f"ds_read_b32 v{32+2*w}, v10 offset:{C_RED + 2048*w}")
        a(f"ds_read_b32 v{33+2*w}, v10 offset:{C_RED + 2048*w + 128}")
    a("s_waitcnt lgkmcnt(4)")
    a("v_pk_add_f32 v[32:33], v[32:33], v[34:35]")
    a("s_waitcnt lgkmcnt(0)")
    a("v_pk_add_f32 v[36:37], v[36:37], v[38:39]")
    a("v_pk_add_f32 v[32:33], v[32:33], v[36:37]")
    a("v_cvt_pk_bf16_f32 v34, v32, v33")
    unpack(a, 32, 34)
    a(f"v_mul_f32 v34, {f32(-LOG2E)}, v32", "v_exp_f32 v34, v34", "v_add_f32 v34, 1.0, v34", "v_rcp_f32 v34, v34", "v_mul_f32 v34, v32, v34")
    a("v_cvt_pk_bf16_f32 v34, v34, v34", "v_lshlrev_b32 v34, 16, v34")
    a("v_mul_f32 v34, v34, v33", "v_cvt_pk_bf16_f32 v34, v34, v34")
    a(f"ds_write_b16 v11, v34 offset:{C_ACT}")
    a("s_waitcnt lgkmcnt(0)")
    a("s_barrier")
    a("s_branch KS_P2")
    a("KS_P:")
    if DE: a("s_branch KS_P1")
    srd(a, R1, P_DOWN, F * D * 2)
    a(f"s_sub_u32 s{T2_}, s{S_WAVE}, 10", "v_lshlrev_b32 v6, 4, v1", f"s_mul_i32 s{T0_}, s{S_BLK}, 36864", f"s_mul_i32 s{T1_}, s{T2_}, 18432", f"s_add_u32 s{T0_}, s{T0_}, s{T1_}", f"s_add_u32 s{T1_}, s{T1_}, {C_DOWN}")
    a(f"s_lshl_b32 s{T2_}, s{T2_}, 1", f"v_mov_b32 v7, s{T2_}", f"v_mov_b32 v8, s{S_ONES}")
    TR[7] = (FL_GISS, "b4")
    if DT: lds_wait(a, TR[DT][0], 10, TR[DT][1], sleep=2)
    a("s_setprio 1")
    stamp2(a, 1)
    for k in range(18):
        if k % 4 == 0:
            a(f"s_add_u32 m0, s{T1_}, {1024*k}")
            if k: a(f"s_add_u32 s{T0_}, s{T0_}, 4096")
        a(f"buffer_load_dwordx4 v6, s[{R1}:{R1+3}], s{T0_} offen offset:{1024*(k&3)} {MOD('DM', 'nt')} lds")
    a("s_waitcnt vmcnt(0)")
    stamp2(a, 2)
    a(f"ds_write_b16 v7, v8 offset:{FL_DOWN}")
    a("KS_P1:")
    a("s_setprio 0")
    a("s_waitcnt lgkmcnt(0)")
    a("s_barrier")
    a("s_barrier")
    a("s_setprio 2")
    a("KS_P2:")
    a(f"s_sub_u32 s{S_G}, s{S_WAVE}, 10")
    srd(a, R0, P_WS, PART_BYTES, WS_PART)
    srd(a, R1, P_OUT, XBYTES)
    a("v_lshrrev_b32 v8, 3, v1", f"v_mul_u32_u24 v8, {PROW}, v8", "v_and_b32 v9, 7, v1", "v_lshl_add_u32 v8, v9, 4, v8")
    a(f"s_mul_i32 s{T0_}, s{S_G}, {24*PROW}", f"s_lshl_b32 s{T1_}, s{S_BLK}, 7", f"s_add_u32 s{T0_}, s{T0_}, s{T1_}", f"s_add_u32 s{T1_}, s{T0_}, {8*PROW}", f"s_add_u32 s{T2_}, s{T0_}, {16*PROW}")
    a(f"s_lshl_b32 s{T3_}, s{S_G}, 7", f"v_lshl_add_u32 v6, v9, 4, s{T3_}", "v_lshl_add_u32 v6, v3, 2, v6")
    a(f"v_lshlrev_b32 v12, 2, v1", f"v_add_u32 v12, {C_RED2}, v12", "v_lshlrev_b32 v13, 4, v1")
    if PTAG:
        a("v_and_b32 v14, 12, v12", f"ds_read_b32 v24, v14 offset:{FL_NONCE}", "s_waitcnt lgkmcnt(0)")
        for d in range(1, 4): a(f"v_lshrrev_b32 v{24+d}, {8*d}, v24")
    a("s_barrier")
    stamp2(a, 3)
    if PTAG:
        lp = newlabel("PP"); l1 = newlabel("PPE")
        a(f"s_branch {l1}", f"{lp}:", "s_sleep 1", f"{l1}:")
        for k in range(3): a(f"buffer_load_dwordx4 v[{32+4*k}:{35+4*k}], v8, s[{R0}:{R0+3}], s{T0_+k} offen sc1")
        guard(a)
        for k in range(3):
            a(f"s_waitcnt vmcnt({2-k})")
            for d in range(4):
                t = 44 + (d & 1)
                a(f"v_xor_b32 v{t}, v{24+d}, v{32+d}" if k == 0 and d < 2 else f"v_bitop3_b32 v{t}, v{t}, v{24+d}, v{32+4*k+d} bitop3:0xf6")
        a("v_or_b32 v44, v44, v45", "v_and_b32 v44, 0xff, v44", "v_cmp_ne_u32 vcc, 0, v44", f"s_cbranch_vccnz {lp}")
    else: zpoll(a, [f"buffer_load_dwordx4 v[{32+4*k}:{35+4*k}], v8, s[{R0}:{R0+3}], s{T0_+k} offen sc1" for k in range(3)], list(range(32, 44)), 1)
    stamp2(a, 4)
    a("v_pk_add_f32 v[32:33], v[32:33], v[36:37]", "v_pk_add_f32 v[34:35], v[34:35], v[38:39]")
    a("v_pk_add_f32 v[32:33], v[32:33], v[40:41]", "v_pk_add_f32 v[34:35], v[34:35], v[42:43]")
    for r in range(4): a(f"v_add_f32_dpp v{32+r}, v{32+r}, v{32+r} row_ror:8 {DPPM}")
    a("v_permlane16_swap_b32 v32, v33", "v_permlane16_swap_b32 v34, v35")
    a("v_add_f32 v32, v32, v33", "v_add_f32 v34, v34, v35")
    a("v_permlane32_swap_b32 v32, v34")
    a("v_add_f32 v32, v32, v34")
    a(f"ds_write_b32 v6, v32 offset:{C_RED2}")
    a("s_waitcnt lgkmcnt(0)", "s_barrier")
    a(f"s_cmp_lg_u32 s{S_G}, 0", "s_cbranch_scc1 KS_PEND")
    a("s_mov_b32 exec_lo, -1", "s_mov_b32 exec_hi, 0")
    for g in range(3):
        a(f"ds_read2_b32 v[{32+2*g}:{33+2*g}], v12 offset0:{64*g} offset1:{64*g + 32}")
    a(f"ds_read_b128 v[40:43], v13 offset:{C_SIDE}")
    a("s_waitcnt lgkmcnt(0)")
    a("v_pk_add_f32 v[32:33], v[32:33], v[34:35]", "v_pk_add_f32 v[32:33], v[32:33], v[36:37]", "v_add_f32 v8, v32, v33")
    a("v_cvt_pk_bf16_f32 v8, v8, v8", "v_lshlrev_b32 v8, 16, v8")
    a("v_mul_f32 v8, v8, v42", "v_cvt_pk_bf16_f32 v8, v8, v8", "v_lshlrev_b32 v8, 16, v8")
    a("v_add_f32 v8, v8, v40", "v_cvt_pk_bf16_f32 v8, v8, v8", "v_lshlrev_b32 v8, 16, v8")
    a("v_add_f32 v8, v8, v41", "v_cvt_pk_bf16_f32 v8, v8, v8")
    a(f"buffer_store_short v8, v43, s[{R1}:{R1+3}], 0 offen")
    a("KS_PEND:")
    stamp_end(a)
    spin_end(a)
    a("KS_ABORT:")
    a("KS_END:")
    a("s_endpgm")
    return f""".amdhsa_kernel {label}
  .amdhsa_next_free_vgpr 128
  .amdhsa_next_free_sgpr {NSGPR}
  .amdhsa_accum_offset 128
  .amdhsa_group_segment_fixed_size 0
  .amdhsa_kernarg_size 136
  .amdhsa_user_sgpr_count 2
  .amdhsa_user_sgpr_kernarg_segment_ptr 1
  .amdhsa_system_sgpr_workgroup_id_x 1
  .amdhsa_float_denorm_mode_32 3
.end_amdhsa_kernel
"""

def main():
    hdr = open(f"/code/{NAME}.s.ref").read().split("; Override launch geometry")[0]
    out = hdr
    out += f"; @launch grid=(256,1,1) block=(1024,1,1) lds={LDS_BYTES}\n"
    out += '.amdgcn_target "amdgcn-amd-amdhsa--gfx950"\n.text\n'
    a = Asm()
    d = gen(a)
    out += a.text()
    out += '.section .rodata,"a"\n.p2align 6\n' + d
    path = sys.argv[1] if len(sys.argv) > 1 else "ks.s"
    open(path, "w").write(out)
    print("wrote", path, len(out))

if __name__ == "__main__":
    main()
```

```python
import sys, struct, math, os
sys.path.insert(0, "gen")
from asmlib import Asm

NAME = "sequential_preLN__ssm_conv_s4__moe_arch_mod__prompt"
L, D, N, F = 2048, 576, 128, 4608
XBYTES = L * D * 2
WS_UT = 0x000000
WS_X2 = 0x300000
WS_ZB1 = 0x600000
WS_ZB2 = 0x800000
WS_KEYS = 0x840000
WS_PART = 0x850000
WS_CLR, CLR_WG = 0x600000, 18560
CLRP_WG = 23744
WS_FLAG1 = 0xB00000
TAGM = 0x00070007
WS_IDX = 0xB10000
WS_KT = 0xB20000
WS_DBG = 0xC00000
WS_STAMP = 0x8000000
PART_BYTES = 144 * (4608 * 4 + 128)
C_FL, C_CAND, C_SEL, C_KEY, C_PAR, C_ACT, C_SIDE, C_RED2 = 0, 256, 768, 800, 832, 1024, 1536, 2048
C_U, U_SIZE = 3072, 4672
C_LNB = C_U + 3 * U_SIZE
C_XR = C_LNB
C_RED = C_LNB + 9280
G_BASE, G_SIZE = 35840, 36672
C_STG = G_BASE + 2 * G_SIZE + 36864
LDS_BYTES = C_STG + 8192
FL_LN1, FL_LNACK, FL_KCNT, FL_UF, FL_ZF, FL_KACK, FL_ROWSOK, FL_XRDY, FL_PARAM, FL_DOWN, FL_ZDONE = 0, 8, 12, 16, 20, 24, 28, 32, 36, 40, 48
FL_G = 64
FL_S6 = 160
FL_F2CNT, FL_INIT, FL_CLROK, FL_GISS, FL_KSEEN, FL_UTOK, FL_PRE, FL_NONCE = 176, 180, 188, 192, 196, 200, 208, 224
KG_ROW = 544
KG_T = [0, 16 * KG_ROW, 32 * KG_ROW, 41 * KG_ROW]
R_WS3 = 0
R_WS5 = R_WS3 + 193 * 16
R_WS7 = R_WS5 + 193 * 16
R_WS9 = R_WS7 + 128 * 16
R_RED = 10752
R2 = 31232
T_TAB = R2
T_DRE = R2 + 1296
T_DRO = T_DRE + 1280 + 64
T_G3 = T_DRO + 1280
T_G5 = T_G3 + 256
T_G7E = T_G5 + 256
T_G7O = T_G7E + 192
T_G9E = T_G7O + 192
T_G9O = T_G9E + 192
assert T_G9O + 192 <= G_SIZE and R_WS9 + 129 * 16 <= R_RED and R_RED + 13 * 1024 <= R2 and 57 * KG_ROW <= R2
IDX_ZERO, IDX_DUMMY = 641, 642
C_DOWN = G_BASE + 2 * G_SIZE

def f32(x): return "0x%08x" % struct.unpack("<I", struct.pack("<f", x))[0]
def f32v(x): return struct.unpack("<f", struct.pack("<f", x))[0]
LOG2E = math.log2(math.e)
LOG2E_HI = f32v(LOG2E); LOG2E_LO = LOG2E - LOG2E_HI
INV2PI = 1.0 / (2 * math.pi)
INV2PI_HI = f32v(INV2PI); INV2PI_LO = INV2PI - INV2PI_HI
DPPM = "row_mask:0xf bank_mask:0xf"
ENV = lambda k, d: int(os.environ.get(k, str(d)))
STAMP = ENV("STAMP", 0)
DBG = ENV("DBG", 0)
GUARD = 1 << 19
XP = ENV("XP", 0)
KOFF = ENV("KOFF", 1)
PTAG = ENV("PTAG", 1)
SWU = ENV("SWU", 1); SWZ = ENV("SWZ", 1); PROW = 18432 + 128 * ENV("SWP", 1)
MOD = lambda k, d="sc1": os.environ.get(k, d).replace("_", " ")

P_X, P_ARE, P_LDT, P_DSK, P_WR, P_GATE, P_UP, P_DOWN, P_OUT, P_DBG, P_WS = 4, 6, 18, 20, 24, 26, 28, 30, 32, 34, 36
S_WAVE, S_GUARD, S_XC, S_I = 38, 39, 40, 41
R0, R1, R2_, R3, R4 = 64, 68, 72, 76, 80
S_ONES, S_GB, S_ROLE, S_G, S_CH, S_BLK, S_B2 = 84, 85, 86, 87, 88, 89, 90
T0_, T1_, T2_, T3_, T4_, T5_ = 92, 93, 94, 95, 96, 97
SP0, SP1 = 98, 99
NSGPR = 100

def srd(a, d, base, nbytes, off=0):
    if off:
        a(f"s_add_u32 s{d}, s{base}, {hex(off)}", f"s_addc_u32 s{d+1}, s{base+1}, 0")
    else:
        a(f"s_mov_b32 s{d}, s{base}", f"s_mov_b32 s{d+1}, s{base+1}")
    a(f"s_mov_b32 s{d+2}, {hex(nbytes)}", f"s_mov_b32 s{d+3}, 0x20000")

def red16(a, op, v):
    for r in (8, 4, 2, 1):
        a(f"{op}_dpp v{v}, v{v}, v{v} row_ror:{r} {DPPM}")
def red32(a, op, v, t):
    red16(a, op, v)
    a(f"v_mov_b32 v{t}, v{v}", f"v_permlane16_swap_b32 v{v}, v{t}", f"{op} v{v}, v{v}, v{t}")
def red64x2(a, op1, v1, t1, op2, v2, t2):
    for r in (8, 4, 2, 1):
        a(f"{op1}_dpp v{v1}, v{v1}, v{v1} row_ror:{r} {DPPM}", f"{op2}_dpp v{v2}, v{v2}, v{v2} row_ror:{r} {DPPM}")
    for ins in ("v_permlane16_swap_b32", "v_permlane32_swap_b32"):
        a(f"v_mov_b32 v{t1}, v{v1}", f"v_mov_b32 v{t2}, v{v2}", f"{ins} v{v1}, v{t1}", f"{ins} v{v2}, v{t2}")
        a(f"{op1} v{v1}, v{v1}, v{t1}", f"{op2} v{v2}, v{v2}, v{t2}")

SPIN = eval(os.environ.get("SPIN", "None"))
def spin_rec(a, ph, i):
    if not SPIN or SPIN[1:] != (ph, i): return
    a("s_memrealtime s[46:47]")
def spin_end(a):
    if not SPIN: return
    lo, hi = eval(os.environ.get("SPINI", "(0,32)"))
    a("KS_SPIN:")
    if SPIN[2] == 9: a("s_memrealtime s[46:47]")
    a(f"s_sub_u32 s48, s{S_I}, {lo}", f"s_cmp_ge_u32 s48, {hi-lo}", "s_cbranch_scc1 KS_END")
    a(f"s_lshr_b32 s48, {hex(SPIN[0])}, s{S_WAVE}", "s_bitcmp1_b32 s48, 0", "s_cbranch_scc0 KS_END")
    a("s_mov_b64 exec, -1", "v_mov_b32 v4, 0")
    a("KS_SP0:")
    a(f"global_load_dword v8, v4, s[{P_DBG}:{P_DBG+1}] offset:64 sc1", "s_waitcnt vmcnt(0) lgkmcnt(0)", "v_readfirstlane_b32 s44, v8", "s_cmp_eq_u32 s44, 0", "s_cbranch_scc1 KS_SP0")
    if SPIN[2] == -1: a("s_mov_b32 s46, s44")
    a("s_sub_u32 s48, s46, s44", "s_add_u32 s48, s48, 200")
    if ENV("SPINMIN", 0): a(f"s_sub_u32 s48, {ENV('SPINMIN', 0)}, s48")
    a("s_min_u32 s48, s48, 3000", "s_lshl_b32 s48, s48, 2", "s_add_u32 s48, s48, 2000")
    a("SPINL:", "s_sleep 1", "s_memrealtime s[50:51]", "s_waitcnt lgkmcnt(0)", "s_sub_u32 s50, s50, s44", "s_cmp_lt_u32 s50, s48", "s_cbranch_scc1 SPINL")
def stamp_begin(a):
    if SPIN: a("s_memrealtime s[46:47]")
    if not STAMP: return
    a("s_memrealtime s[44:45]")
    for i in range(1, 9): a(f"s_mov_b32 s{44+2*i}, 0")
def cstamp(a, i):
    if STAMP == 9: a(f"s_memtime s[{44+2*i}:{45+2*i}]")
def kstamp(a, i):
    if STAMP == 7: a(f"s_memtime s[{44+2*i}:{45+2*i}]")
def stamp(a, i, ph=1):
    spin_rec(a, ph, i)
    if ph == 2 and STAMP not in (2, 3): return
    if STAMP == 7 and i == 1: return kstamp(a, 1)
    if not STAMP or STAMP in (7, 9): return
    assert 1 <= i <= 8
    a(f"{'s_memtime' if STAMP == 8 else 's_memrealtime'} s[{44+2*i}:{45+2*i}]")
def stamp2(a, i):
    stamp(a, i, 2)
def stamp_end(a):
    if not STAMP: return
    a("s_waitcnt vmcnt(0) lgkmcnt(0)")
    a("s_memrealtime s[62:63]")
    a(f"s_lshl_b32 s43, s2, 4", f"s_add_u32 s43, s43, s{S_WAVE}", "s_lshl_b32 s43, s43, 6", f"s_add_u32 s43, s43, {hex(WS_STAMP)}")
    a("s_mov_b64 exec, 1")
    a("s_waitcnt lgkmcnt(0)")
    a("v_mov_b32 v1, s43")
    for i in range(10): a(f"v_mov_b32 v{4+i}, s{44+2*i}")
    a(f"global_store_dwordx4 v1, v[4:7], s[{P_WS}:{P_WS+1}]")
    a(f"global_store_dwordx4 v1, v[8:11], s[{P_WS}:{P_WS+1}] offset:16")
    a(f"global_store_dwordx2 v1, v[12:13], s[{P_WS}:{P_WS+1}] offset:32")
def endwave(a):
    stamp_end(a)
    a("s_branch KS_SPIN" if SPIN else "s_endpgm")

def unpack(a, dst, src):
    a(f"v_lshlrev_b32 v{dst}, 16, v{src}", f"v_and_b32 v{dst+1}, 0xffff0000, v{src}")

def ln_stats(a, X, m2, rinv2, t0, t1, t2):
    a(f"v_pk_add_f32 v[{t0}:{t0+1}], v[{X}:{X+1}], v[{X+2}:{X+3}]")
    a(f"v_pk_add_f32 v[{t1}:{t1+1}], v[{X+4}:{X+5}], v[{X+6}:{X+7}]")
    for j in range(4, 9):
        t = t0 if j % 2 == 0 else t1
        a(f"v_pk_add_f32 v[{t}:{t+1}], v[{t}:{t+1}], v[{X+2*j}:{X+2*j+1}]")
    a(f"v_pk_add_f32 v[{t0}:{t0+1}], v[{t0}:{t0+1}], v[{t1}:{t1+1}]")
    a(f"v_add_f32 v{t0}, v{t0}, v{t0+1}")
    red32(a, "v_add_f32", t0, t1)
    a(f"v_mul_f32 v{t2}, {f32(1.0/576)}, v{t0}")
    a(f"v_mov_b32 v{t2+1}, v{t2}")
    a(f"v_cvt_pk_bf16_f32 v{m2}, v{t2}, v{t2}")
    a(f"v_and_b32 v{m2}, 0xffff0000, v{m2}", f"v_mov_b32 v{m2+1}, v{m2}")
    first = {t0: True, t1: True}
    for j in range(9):
        t = t0 if j % 2 == 0 else t1
        a(f"v_pk_add_f32 v[{rinv2}:{rinv2+1}], v[{X+2*j}:{X+2*j+1}], v[{t2}:{t2+1}] neg_lo:[0,1] neg_hi:[0,1]")
        if first[t]:
            a(f"v_pk_mul_f32 v[{t}:{t+1}], v[{rinv2}:{rinv2+1}], v[{rinv2}:{rinv2+1}]"); first[t] = False
        else:
            a(f"v_pk_fma_f32 v[{t}:{t+1}], v[{rinv2}:{rinv2+1}], v[{rinv2}:{rinv2+1}], v[{t}:{t+1}]")
    a(f"v_pk_add_f32 v[{t0}:{t0+1}], v[{t0}:{t0+1}], v[{t1}:{t1+1}]")
    a(f"v_add_f32 v{t0}, v{t0}, v{t0+1}")
    red32(a, "v_add_f32", t0, t1)
    a(f"v_mul_f32 v{t0}, {f32(1.0/576)}, v{t0}")
    a(f"v_cvt_pk_bf16_f32 v{t0}, v{t0}, v{t0}", f"v_and_b32 v{t0}, 0xffff0000, v{t0}")
    a(f"v_add_f32 v{t0}, {f32(1e-5)}, v{t0}")
    a(f"v_cvt_pk_bf16_f32 v{t0}, v{t0}, v{t0}", f"v_and_b32 v{t0}, 0xffff0000, v{t0}")
    a(f"v_sqrt_f32 v{t0}, v{t0}")
    a(f"v_cvt_pk_bf16_f32 v{t0}, v{t0}, v{t0}", f"v_and_b32 v{t0}, 0xffff0000, v{t0}")
    a(f"v_rcp_f32 v{rinv2}, v{t0}")
    a(f"v_mov_b32 v{rinv2+1}, v{rinv2}")

def ln_apply_pair(a, x, m2, rinv2, t, P):
    a(f"v_pk_add_f32 v[{t}:{t+1}], v[{x}:{x+1}], v[{m2}:{m2+1}] neg_lo:[0,1] neg_hi:[0,1]")
    a(f"v_cvt_pk_bf16_f32 v{P}, v{t}, v{t+1}")
    unpack(a, t, P)
    a(f"v_pk_mul_f32 v[{t}:{t+1}], v[{t}:{t+1}], v[{rinv2}:{rinv2+1}]")
    a(f"v_cvt_pk_bf16_f32 v{P}, v{t}, v{t+1}")
    unpack(a, t, P)

VZ, VONE = 4, 5
_lbl = [0]
def newlabel(p="L"):
    _lbl[0] += 1
    return f"{p}_{_lbl[0]}"
def guard(a):
    a(f"s_sub_u32 s{S_GUARD}, s{S_GUARD}, 1", "s_cbranch_scc1 KS_ABORT")
def lds_wait(a, off, t, kind="b4", addr=VZ, sleep=0):
    l = newlabel("W")
    a(f"{l}:")
    if sleep: a(f"s_sleep {sleep}")
    if kind == "b8":
        a(f"ds_read_b64 v[{t}:{t+1}], v{addr} offset:{off}")
    else:
        a(f"ds_read_{'u8' if kind == 'u8' else 'b32'} v{t}, v{addr} offset:{off}")
    guard(a)
    a("s_waitcnt lgkmcnt(0)")
    if kind == "b8": a(f"v_and_b32 v{t}, v{t}, v{t+1}")
    if kind in ("nz", "u8"): a(f"v_cmp_eq_u32 vcc, 0, v{t}")
    else: a(f"v_cmp_ne_u32 vcc, s{S_ONES}, v{t}")
    a(f"s_cbranch_vccnz {l}")

def zpoll(a, loads, regs, sleep):
    lp = newlabel("ZP"); l1 = newlabel("ZPE")
    a(f"s_branch {l1}")
    a(f"{lp}:")
    a(f"s_sleep {sleep}")
    a(f"{l1}:")
    for l in loads: a(l)
    guard(a)
    a("s_waitcnt vmcnt(0)")
    a(f"v_max3_u32 v44, v{regs[0]}, v{regs[1]}, v{regs[2]}")
    r = regs[3:]
    while len(r) >= 2: a(f"v_max3_u32 v44, v44, v{r[0]}, v{r[1]}"); r = r[2:]
    if r: a(f"v_max_u32 v44, v44, v{r[0]}")
    a("v_cmp_eq_u32 vcc, -1, v44", f"s_cbranch_vccnz {lp}")

class Pool:
    def __init__(self, regs): self.free = list(regs)
    def get(self): return self.free.pop(0)
    def put(self, r): self.free.append(r)
def ce_inlane(a, x, i, j, pool):
    t = pool.get()
    a(f"v_max_u32 v{t}, v{x[i]}, v{x[j]}", f"v_min_u32 v{x[j]}, v{x[i]}, v{x[j]}")
    pool.put(x[i]); x[i] = t
def clean8(a, x, pool, DE, rev=False):
    t = [pool.get() for _ in range(4)]
    for i in range(4):
        a(f"v_mov_b32_dpp v{t[i]}, v{x[3-i if rev else i]} quad_perm:[1,0,3,2] {DPPM}")
    for i in range(4):
        a(f"v_med3_u32 v{t[i]}, v{x[i]}, v{t[i]}, v{DE}")
    for i in range(4): pool.put(x[i]); x[i] = t[i]
    for (i, j) in ((0, 2), (1, 3), (0, 1), (2, 3)): ce_inlane(a, x, i, j, pool)
def merge_mirror(a, x, pool, M):
    c = [pool.get() for _ in range(4)]
    for i in range(4):
        a(f"v_max_u32_dpp v{c[i]}, v{x[3-i]}, v{x[i]} {M} {DPPM}")
    for i in range(4): pool.put(x[i]); x[i] = c[i]
def merge_pair(a, x, y, pool):
    for i in range(4):
        a(f"v_max_u32_dpp v{x[i]}, v{y[3-i]}, v{x[i]} quad_perm:[1,0,3,2] {DPPM}")
    for i in range(4): pool.put(y[i])
MIRRORS = ("quad_perm:[3,2,1,0]", "row_half_mirror", "row_mirror")

GW = 48
def g_addr_setup(a, A):
    a(f"s_sub_u32 s{S_G}, s{S_WAVE}, 12")
    a(f"s_mul_i32 s{T0_}, s{S_G}, 9", f"s_add_u32 s{T0_}, s{T0_}, 1", f"s_lshr_b32 s{S_ROLE}, s{T0_}, 1")
    a(f"s_lshl_b32 s{T0_}, s{S_ROLE}, 5", f"v_lshl_add_u32 v7, v3, 3, s{T0_}", "v_mul_u32_u24 v7, 9216, v7")
    a("v_and_b32 v6, 7, v2", "v_lshl_add_u32 v7, v6, 3, v7")
    a(f"s_lshl_b32 s{T0_}, s{S_BLK}, 6", f"v_add_u32 v7, s{T0_}, v7")
    a("v_cmp_gt_u32 vcc, 8, v2")
    a(f"s_mov_b32 s{R3}, 9216", f"s_mov_b32 s{R3+1}, 0", f"s_mov_b32 s{R3+2}, {9216*25}", f"s_mov_b32 s{R3+3}, 0")
    a(f"v_mov_b32 v{A}, s{P_GATE}", f"v_mov_b32 v{A+1}, s{P_GATE+1}", f"v_mov_b32 v6, s{P_UP}")
    a(f"v_cndmask_b32 v{A}, v6, v{A}, vcc", f"v_mov_b32 v6, s{P_UP+1}", f"v_cndmask_b32 v{A+1}, v6, v{A+1}, vcc")
    a(f"v_add_co_u32 v{A}, vcc, v{A}, v7", f"v_addc_co_u32 v{A+1}, vcc, 0, v{A+1}, vcc")
def g_loads(a, A, kss):
    for ks in kss:
        for r in range(8):
            d = GW + 16 * ks + 2 * r
            a(f"global_load_dwordx2 v[{d}:{d+1}], v[{A}:{A+1}], off" + (" nt" if ENV("GNT", 0) else ""))
            if not (ks == 4 and r == 7):
                a(f"v_lshl_add_u64 v[{A}:{A+1}], v[{A}:{A+1}], 0, s[{R3 if r < 7 else R3+2}:{R3+1 if r < 7 else R3+3}]")
GTRIG = ENV("GTRIG", 2)
PF = ENV("PF", 1)
NL, NN, NC = ENV("NL", 3), ENV("NN", 6), ENV("NC", 3)
NE = ENV("NE", 0)
NLL = ENV("NLL", 0)
PF0 = 16 * NL + 16 * NE + 16 * NLL
PF1 = PF0 + 8 * NN + 8 * NC
assert PF1 <= 166
PF2 = ENV("PF2", 166); PFD = ENV("PFD", 42); PFD2 = ENV("PFD2", 81)
GT = eval(os.environ.get("GT", "[2,2,6,6]")); DT = ENV("DT", 3)
def pf_lane(a, v, t):
    a(f"v_mul_u32_u24 v{v}, 57, v1", f"v_lshrrev_b32 v{v}, 9, v{v}", f"v_mul_u32_u24 v{t}, 9, v{v}", f"v_sub_u32 v{t}, v1, v{t}", f"v_mul_u32_u24 v{v}, 9216, v{v}", f"v_lshl_add_u32 v{v}, v{t}, 7, v{v}")
def pf_gu_setup(a, sidx, R=R2_, tb=T3_, tt=T4_):
    a(f"s_bitcmp1_b32 s{sidx}, 0", f"s_cselect_b32 s{R}, s{P_UP}, s{P_GATE}", f"s_cselect_b32 s{R+1}, s{P_UP+1}, s{P_GATE+1}")
    a(f"s_mov_b32 s{R+2}, {hex(D*F*2)}", f"s_mov_b32 s{R+3}, 0x20000")
    a(f"s_lshr_b32 s{tb}, s{sidx}, 1", f"s_mul_i32 s{tb}, s{tb}, {7*9216}", f"s_mul_i32 s{tt}, s{S_XC}, 1152", f"s_add_u32 s{tb}, s{tb}, s{tt}")
def pf_gu(a, v, sidx, nw, u0, u1, dst, done):
    assert u0 % 2 == 0 and nw % 2 == 0
    pf_gu_setup(a, sidx)
    k = 0
    while u0 + k * nw < u1:
        if u0 + (k + 1) * nw > u1: a(f"s_cmp_ge_u32 s{sidx}, {u1 - u0 - k*nw}", f"s_cbranch_scc1 {done}")
        a(f"s_add_u32 s{T4_}, s{T3_}, {(u0 + k*nw)//2*7*9216}")
        a(f"buffer_load_dword v{dst}, v{v}, s[{R2_}:{R2_+3}], s{T4_} offen")
        k += 1
def pf_down(a, sidx, nw, u0, u1, v, dst, done, R=R2_):
    srd(a, R, P_DOWN, D * F * 2)
    a(f"s_lshl_b32 s{T3_}, s{sidx}, 13", f"s_mul_i32 s{T4_}, s{S_XC}, {576*1152}", f"s_add_u32 s{T3_}, s{T3_}, s{T4_}", f"v_lshlrev_b32 v{v}, 7, v1")
    k = 0
    while u0 + k * nw < u1:
        if u0 + (k + 1) * nw > u1: a(f"s_cmp_ge_u32 s{sidx}, {u1 - u0 - k*nw}", f"s_cbranch_scc1 {done}")
        a(f"s_add_u32 s{T4_}, s{T3_}, {(u0 + k*nw)*8192}")
        a(f"buffer_load_dword v{dst}, v{v}, s[{R}:{R+3}], s{T4_} offen")
        k += 1
def gen_ln1(a):
    LW, TB = T5_, S_CH
    X, RAW = 8, 26
    a(f"s_sub_u32 s{T0_}, s{S_I}, 8", f"s_and_b32 s{TB}, s{T0_}, 7", f"s_lshr_b32 s{T0_}, s{T0_}, 3", f"s_lshl_b32 s{T0_}, s{T0_}, 4", f"s_add_u32 s{TB}, s{TB}, s{T0_}")
    a(f"s_and_b32 s{T0_}, s{S_XC}, 1", f"s_lshl_b32 s{T0_}, s{T0_}, 3", f"s_add_u32 s{TB}, s{TB}, s{T0_}", f"s_lshr_b32 s{T0_}, s{S_XC}, 1", f"s_lshl_b32 s{T0_}, s{T0_}, 5", f"s_add_u32 s{TB}, s{TB}, s{T0_}")
    a("v_lshrrev_b32 v36, 5, v1", "v_and_b32 v37, 31, v1")
    a("v_mul_u32_u24 v38, 1152, v36", "v_lshl_add_u32 v39, v37, 2, v38", "v_lshl_add_u32 v38, v37, 4, v38")
    a(f"s_mul_i32 s{T1_}, s{TB}, 18432", f"s_mul_i32 s{T2_}, s{LW}, 2304", f"s_add_u32 s{T1_}, s{T1_}, s{T2_}")
    a("s_waitcnt lgkmcnt(0)")
    stamp(a, 1)
    srd(a, R0, P_X, XBYTES)
    a(f"buffer_load_dwordx4 v[{RAW}:{RAW+3}], v38, s[{R0}:{R0+3}], s{T1_} offen")
    a(f"buffer_load_dwordx4 v[{RAW+4}:{RAW+7}], v38, s[{R0}:{R0+3}], s{T1_} offen offset:512")
    a(f"buffer_load_dword v{RAW+8}, v39, s[{R0}:{R0+3}], s{T1_} offen offset:1024")
    a("s_barrier")
    a(f"s_lshr_b32 s{T1_}, s{LW}, 2", f"s_lshl_b32 s{T1_}, s{T1_}, 6", f"s_add_u32 s{T2_}, s{T2_}, s{T1_}", f"s_add_u32 s{T2_}, s{T2_}, {C_LNB}")
    a(f"v_lshl_add_u32 v35, v37, 1, v36")
    a(f"s_mov_b32 s{SP0}, 0x05040100", f"s_mov_b32 s{SP1}, 0x07060302")
    def waits(n):
        for (c, js) in ((2, range(0, 4)), (1, range(4, 8)), (0, range(8, 9))):
            a(f"s_waitcnt vmcnt({c+n})")
            for j in js: unpack(a, X + 2 * j, RAW + j)
    l1 = newlabel("LN1A"); l2 = newlabel("LN1B")
    if NL:
        LW0 = ENV("NLW", 4)
        pf_lane(a, 46, 47)
        a(f"s_sub_u32 s{T1_}, s{LW}, {LW0}", f"s_and_b32 s{T1_}, s{T1_}, 7", f"s_lshl_b32 s{T3_}, s{T1_}, 4", f"s_add_u32 s{T3_}, s{T3_}, s{S_I}", f"s_sub_u32 s{T3_}, s{T3_}, 8")
        pf_gu_setup(a, T3_, R3, T4_, T0_)
    if NL and ENV("NLE", 0):
        a(f"s_cmp_lt_u32 s{T1_}, {NL}", f"s_cselect_b32 s{T4_}, s{T4_}, {hex(D*F*2)}")
        a(f"buffer_load_dword v47, v46, s[{R3}:{R3+3}], s{T4_} offen")
        waits(1)
    else:
        waits(0)
    if NL and not ENV("NLE", 0):
        if ENV("X0", 0): a(f"s_cmp_eq_u32 s{S_XC}, 0", f"s_cbranch_scc1 {l1}")
        a(f"s_cmp_ge_u32 s{T1_}, {NL}", f"s_cbranch_scc1 {l1}")
        a(f"buffer_load_dword v47, v46, s[{R3}:{R3+3}], s{T4_} offen")
        a(f"{l1}:")
    stamp(a, 2)
    a(f"v_lshl_add_u32 v6, v35, 4, s{T2_}", f"v_lshl_add_u32 v7, v35, 2, s{T2_}")
    a(f"v_mul_u32_u24 v35, 0x20202, v36", "v_lshl_add_u32 v35, v36, 25, v35", "v_add_u32 v35, 0x05040100, v35")
    ln_stats(a, X, 36, 38, 40, 42, 44)
    for j in range(9):
        if j == ENV("DSAMP", 3): a("v_and_b32 v59, 3, v1", "v_lshlrev_b32 v59, 2, v59", f"global_load_dword v58, v59, s[{P_DBG}:{P_DBG+1}] sc1")
        ln_apply_pair(a, X + 2 * j, 36, 38, 40, 42)
        a(f"v_cvt_pk_f16_f32 v{RAW+j}, v40, v41")
        if j in (3, 7):
            P = RAW + j - 3; O = X + 2 * (j - 3)
            a(f"v_permlane32_swap_b32 v{P}, v{P+2}", f"v_permlane32_swap_b32 v{P+1}, v{P+3}")
            a(f"v_perm_b32 v{O}, v{P+2}, v{P}, s{SP0}", f"v_perm_b32 v{O+1}, v{P+2}, v{P}, s{SP1}")
            a(f"v_perm_b32 v{O+2}, v{P+3}, v{P+1}, s{SP0}", f"v_perm_b32 v{O+3}, v{P+3}, v{P+1}, s{SP1}")
            a(f"ds_write_b128 v6, v[{O}:{O+3}] offset:{1024*(j//4)}")
    a(f"v_mov_b32 v40, v{RAW+8}", f"v_permlane32_swap_b32 v{RAW+8}, v40")
    a(f"v_perm_b32 v40, v40, v{RAW+8}, v35")
    a(f"ds_write_b32 v7, v40 offset:2048")
    a(f"v_mov_b32 v6, s{LW}")
    a(f"ds_write_b8 v6, v{VONE} offset:{FL_LN1}")
    a("s_setprio 0")
    a(f"s_cmp_ge_u32 s{LW}, 4", "s_cbranch_scc1 KS_X4")
    a("s_setprio 3")
    srd(a, R2_, P_WS, XBYTES, WS_UT)
    a("v_and_b32 v6, 1, v0", "v_mul_u32_u24 v6, 9280, v6", "v_lshrrev_b32 v7, 1, v0", "v_lshl_add_u32 v6, v7, 2, v6", f"v_add_u32 v6, {C_LNB}, v6")
    a("v_lshrrev_b32 v7, 2, v0", "v_mul_u32_u24 v7, 0x2080, v7" if SWU else "v_lshlrev_b32 v7, 13, v7", "v_and_b32 v8, 3, v0", "v_lshl_add_u32 v7, v8, 4, v7")
    a(f"s_lshl_b32 s{T0_}, s{TB}, 6")
    if SWU: a(f"v_xor_b32 v7, s{T0_}, v7", f"s_mov_b32 s{T0_}, 0")
    for k in range(1, 5): a(f"s_add_u32 s{T0_+k}, s{T0_}, {0x80000*k}")
    dbg_wait(a, 0)
    a(f"ds_write_b32 v59, v58 offset:{FL_NONCE}")
    a(f"s_mov_b32 s{SP0}, {hex(TAGM)}")
    for d in range(1, 4): a(f"v_lshrrev_b32 v{58-d}, {3*d}, v58")
    lds_wait(a, FL_LN1, 20, "b8")
    stamp(a, 3)
    for k in range(5):
        a(f"ds_read2st64_b32 v[{20+4*k}:{21+4*k}], v6 offset0:{2*k} offset1:{9+2*k}")
        a(f"ds_read2st64_b32 v[{22+4*k}:{23+4*k}], v6 offset0:{18+2*k} offset1:{27+2*k}")
    for k in range(5):
        a(f"s_waitcnt lgkmcnt({8-2*k})")
        for d in range(4): a(f"v_bfi_b32 v{20+4*k+d}, s{SP0}, v{58-d}, v{20+4*k+d}")
        a(f"buffer_store_dwordx4 v[{20+4*k}:{23+4*k}], v7, s[{R2_}:{R2_+3}], s{T0_+k} offen {MOD('USMOD')}")
    stamp(a, 4)

def dbg_wait(a, n, vt=58, va=59):
    lp = newlabel("DBP"); go = newlabel("DBG")
    a(f"s_waitcnt vmcnt({n})")
    a(f"{lp}:")
    a(f"v_cmp_eq_u32 vcc, 0, v{vt}", f"s_cbranch_vccz {go}")
    a("s_sleep 1")
    a(f"global_load_dword v{vt}, v{va}, s[{P_DBG}:{P_DBG+1}] sc1")
    guard(a)
    a("s_waitcnt vmcnt(0)")
    a(f"s_branch {lp}")
    a(f"{go}:")

ROLE_TILES = {0: [0, 1, 2, 3, 4], 1: [0, 1, 2, 3, 4], 2: [5, 6, 7], 3: [5, 6, 7]}
ROLE_W = {2: 0, 3: 1, 1: 2}
ACC, DA, RING, WT = 16, 36, 76, 92
NRING = 4

def epi_plan():
    owner = {0: (0, 0), 1: (0, 1), 2: (1, 0), 3: (1, 1), 4: (1, 3), 5: (0, 2), 6: (0, 3), 7: (1, 2)}
    slots = {}
    cnt = [0, 0]
    for g in range(2):
        for role in range(4):
            for j in ROLE_TILES[role]:
                if owner[j] == (g, role): continue
                slots[(g, role, j)] = g * G_SIZE + R_RED + 1024 * cnt[g]; cnt[g] += 1
    assert max(cnt) <= 13, cnt
    ownerC = {0: 0, 1: 0, 2: 1, 3: 1, 4: 2, 5: 2, 6: 3, 7: 3}
    n = 0
    for role in range(4):
        for j in ROLE_TILES[role]:
            if ownerC[j] == role: continue
            slots[(2, role, j)] = 2 * G_SIZE + R_RED + 1024 * n; n += 1
    return owner, ownerC, slots

class LdsTrack:
    def __init__(self, a): self.a = a; self.n = 0; self.done = -1
    def issue(self, text): self.a(text); self.n += 1; return self.n - 1
    def wait(self, idx):
        k = self.n - 1 - idx
        if idx <= self.done: return
        self.done = idx
        if k <= 15: self.a(f"s_waitcnt lgkmcnt({k})")

CZ0, CZ1, CSH, CXR, CFL, SIS, CM, SM, SC, SSC, SDL = 6, 7, 8, 9, 10, 11, 12, 14, 15, 16, 18
IXR, LFR = (108, 109, 112, 113), (110, 111, 114, 115)
def stage_write(a, off):
    a("v_lshl_or_b32 v24, v25, 16, v24", "v_lshl_or_b32 v25, v27, 16, v26", f"ds_write_b64 v28, v[24:25] offset:{off}")
def pre_ixlf(a):
    end = newlabel("PX"); j1 = newlabel("PX"); j2 = newlabel("PX"); jn = newlabel("PX")
    a(f"s_cmp_eq_u32 s{S_ROLE}, 3", f"s_cbranch_scc1 {end}")
    a("v_lshlrev_b32 v26, 3, v2", "v_mov_b32 v21, 0x80")
    a(f"s_cmp_eq_u32 s{S_ROLE}, 1", f"s_cbranch_scc1 {j1}", f"s_cmp_eq_u32 s{S_ROLE}, 2", f"s_cbranch_scc1 {j2}")
    a("v_lshl_add_u32 v26, v3, 1, v26", "v_mov_b32 v22, 1")
    a(f"s_branch {jn}")
    a(f"{j1}:")
    a("v_cmp_gt_u32 vcc, 2, v3", "v_lshl_add_u32 v20, v3, 2, v26", "v_add_u32 v20, 256, v20", "v_lshl_add_u32 v26, v3, 8, v26", "v_cndmask_b32 v26, v26, v20, vcc")
    a("v_cndmask_b32 v22, v21, 2, vcc", "v_cndmask_b32 v21, 4, v21, vcc")
    a(f"s_branch {jn}")
    a(f"{j2}:")
    a("v_lshl_add_u32 v26, v3, 9, v26", "v_add_u32 v26, 0x400, v26", "v_mov_b32 v22, 0x100")
    a(f"{jn}:")
    a(f"v_mad_u32_u24 v26, v22, s{S_G}, v26", "v_add_u32 v27, v26, v21", f"s_movk_i32 s{T4_}, {T_TAB}", f"s_movk_i32 s{T5_}, {-(0x4280 + 0x800)}", f"s_lshl_b32 s{T3_}, s{S_G}, 9")
    for r in range(2): a(f"v_cvt_f32_u32 v{20+r}, v{26+r}", f"v_max_u32 v{22+r}, 0x800, v{26+r}")
    for r in range(2):
        a(f"v_cmp_gt_u32 vcc, 0x80, v{26+r}", f"v_lshrrev_b32 v{24+r}, 16, v{20+r}", f"v_add3_u32 v{24+r}, v{24+r}, v{22+r}, s{T5_}", f"v_cndmask_b32 v{24+r}, v{24+r}, v{26+r}, vcc")
    for r in range(2):
        a(f"v_min_u32 v{24+r}, {IDX_DUMMY}, v{24+r}", f"v_lshl_add_u32 v{24+r}, v{24+r}, 1, s{T4_}")
    a(f"v_add_u32 v29, s{T3_}, v28")
    a("v_lshl_or_b32 v24, v25, 16, v24", "v_lshl_or_b32 v25, v27, 16, v26", "ds_write_b64 v29, v[24:25]")
    a(f"{end}:")

def gen_group(a):
    RAW, VLDT, VDSK, VNT, VNA, VPR, VEM, VTE, VTL = 40, 46, 107, 104, 105, 106, 72, 126, 127
    I1, D2, I2, D1, D3 = 116, 119, 120, 124, 125
    a(f"s_lshl_b32 s{T0_}, s{S_CH}, 8", f"v_lshl_add_u32 v20, v1, 2, s{T0_}")
    a(f"s_lshl_b32 s{T0_}, s{S_CH}, 1", f"v_mov_b32 v21, s{T0_}")
    a(f"s_mul_i32 s{S_GB}, s{S_G}, {G_SIZE}", f"s_add_u32 s{S_GB}, s{S_GB}, {G_BASE}")
    a("s_waitcnt lgkmcnt(0)")
    stamp(a, 1)
    a(f"global_load_ushort v{VLDT}, v21, s[{P_LDT}:{P_LDT+1}]")
    for k in range(6):
        a(f"global_load_dword v{RAW+k}, v20, s[{P_ARE+2*k}:{P_ARE+2*k+1}]")
    a(f"global_load_ushort v{VDSK}, v21, s[{P_DSK}:{P_DSK+1}]")
    a("s_barrier")
    a(f"s_movk_i32 s{T4_}, {T_TAB}")
    def dr_addr(dst, x, special=False):
        a(f"v_sub_u32 v30, 544, v{x}", "v_cvt_f32_i32 v31, v30", "v_cmp_gt_u32 vcc, 0x100, v30", "v_cvt_pk_bf16_f32 v31, v31, v31", "v_and_b32 v31, 0xffff, v31", "v_subrev_u32 v31, 0x4280, v31")
        a("v_cndmask_b32 v31, v31, v30, vcc", "v_cmp_lt_u32 vcc, 0x20d, v30")
        if special: a(f"v_or_b32 v30, 1, v{x}")
        a("v_cndmask_b32 v31, v31, v32, vcc")
        if special: a("v_cmp_eq_u32 vcc, 0x25d, v30", "v_cndmask_b32 v31, v31, v33, vcc")
        a(f"v_lshl_add_u32 v{dst}, v31, 1, s{T4_}")
    def g_addr(dst, y0, base, M):
        a(f"v_sub_u32 v30, {y0}, v23", f"v_cmp_lt_u32 vcc, {M}, v30", f"v_lshlrev_b32 v31, 2, v30", f"v_add_u32 v31, {T_TAB + 2*base}, v31", f"v_cndmask_b32 v{dst}, v31, v33, vcc")
    pb = newlabel("PREB"); pw = newlabel("PREW"); pe = newlabel("PREE")
    a(f"s_cmp_eq_u32 s{S_G}, 2", f"s_cbranch_scc1 {pe}")
    a(f"v_mov_b32 v32, {IDX_ZERO}")
    a(f"s_cmp_eq_u32 s{S_G}, 1", f"s_cbranch_scc1 {pb}")
    jl = [newlabel("PRE") for _ in range(4)]
    a(f"v_mov_b32 v33, {T_TAB + 2*IDX_ZERO}")
    for r in range(1, 4): a(f"s_cmp_eq_u32 s{S_ROLE}, {r}", f"s_cbranch_scc1 {jl[r]}")
    a("v_lshlrev_b32 v23, 1, v1")
    for e, (y0, base, M) in enumerate(((93, 389, 61), (92, 389, 61), (94, 388, 62), (93, 388, 62))): g_addr(24 + e, y0, base, M)
    a(f"s_branch {pw}")
    for r, base in ((1, 513), (2, 514)):
        a(f"{jl[r]}:")
        a("v_min_u32 v23, 47, v1", "v_lshlrev_b32 v23, 1, v23")
        for e, y0 in ((0, 64), (1, 63), (3, 62)): g_addr(24 + e, y0, base, 63)
        a("v_mov_b32 v26, v25")
        a(f"s_branch {pw}")
    a(f"{jl[3]}:")
    a("v_cmp_gt_u32 vcc, 9, v1", "v_add_u32 v23, 0x100, v1", "v_mov_b32 v33, 0x200", "v_cndmask_b32 v23, v23, v1, vcc", "v_lshlrev_b32 v23, 1, v23")
    for e in (0, 1, 3):
        if e: a("v_add_u32 v23, 1, v23")
        dr_addr(24 + e, 23, special=True)
    a("v_mov_b32 v26, v25")
    a(f"s_branch {pw}")
    a(f"{pb}:")
    a(f"s_lshl_b32 s{T1_}, s{S_ROLE}, 7", f"s_add_u32 s{T1_}, s{T1_}, 18", f"v_lshl_add_u32 v23, v1, 1, s{T1_}")
    for e in range(3):
        if e: a("v_add_u32 v23, 1, v23")
        dr_addr(24 + e, 23)
    a(f"s_sub_u32 s{T1_}, s{S_ROLE}, 1", f"s_cmp_lt_u32 s{T1_}, 2", f"s_cselect_b32 s{T2_}, 47, 63", f"s_mul_i32 s{T1_}, s{T1_}, {T_G9E - T_G7E}", f"s_add_u32 s{T1_}, s{T1_}, {T_G7E}")
    a(f"s_cmp_eq_u32 s{S_ROLE}, 0", f"s_cselect_b32 s{T1_}, {T_G3}, s{T1_}", f"s_cmp_eq_u32 s{S_ROLE}, 3", f"s_cselect_b32 s{T1_}, {T_DRE}, s{T1_}", f"s_cselect_b32 s{T3_}, 0x100, 0")
    a("v_cmp_gt_u32 vcc, 9, v1", f"v_min_u32 v23, s{T2_}, v1", f"v_add_u32 v30, s{T3_}, v23", "v_cndmask_b32 v23, v30, v23, vcc", f"v_lshl_add_u32 v27, v23, 2, s{T1_}")
    stage_write(a, 1024)
    a(f"v_mov_b32 v24, s{S_ROLE}", f"ds_write_b8 v24, v{VONE} offset:{FL_PRE + 4}")
    a(f"s_branch {pe}")
    a(f"{pw}:")
    stage_write(a, 1536)
    a(f"v_mov_b32 v24, s{S_ROLE}", f"ds_write_b8 v24, v{VONE} offset:{FL_PRE}")
    a(f"{pe}:")
    a(f"s_mul_i32 s{T1_}, s{S_ROLE}, {16*KG_ROW}", f"s_min_u32 s{T2_}, s{T1_}, {KG_T[3]}", f"s_add_u32 s{T2_}, s{T2_}, s{S_GB}")
    a(f"s_lshl_b32 s{T0_}, s{S_G}, 4", f"v_mov_b32 v14, s{T0_}", f"v_add_u32 v15, s{S_ROLE}, v14")
    a(f"v_lshl_add_u32 v{VEM}, v1, 3, s{T2_}")
    for k in range(1, 4): a(f"v_add_u32 v{VEM+k}, {4*KG_ROW*k}, v{VEM}")
    a(f"v_mul_u32_u24 v{VTE}, {KG_ROW}, v2", f"v_lshl_add_u32 v{VTE}, v3, 4, v{VTE}", f"v_add_u32 v{VTE}, s{S_GB}, v{VTE}", f"v_add_u32 v{VTL}, s{T1_}, v{VTE}")
    VDA, VDA2, VB_, VT8, VT16, VG8, VG16, VLN = 6, 7, 8, 9, 10, 11, 13, 12
    a("v_lshlrev_b32 v20, 3, v3", "v_sub_u32 v20, v20, v2", "v_add_u32 v21, 16, v20", "v_lshrrev_b32 v21, 1, v21")
    a("v_and_b32 v22, 1, v2", f"s_add_u32 s{T0_}, s{S_GB}, {T_DRE}", f"v_lshl_add_u32 v21, v21, 2, s{T0_}", f"s_movk_i32 s{T0_}, {T_DRO - T_DRE}", f"s_movk_i32 s{T2_}, {T_G7O - T_G7E}")
    a(f"v_mad_u32_u24 v{VDA}, v22, s{T0_}, v21", f"v_add_u32 v{VDA2}, 640, v{VDA}")
    a(f"v_mad_u32_u24 v23, v22, s{T2_}, v21", f"v_add_u32 v{VG16}, {T_G7E - T_DRE}, v23")
    a("v_lshlrev_b32 v23, 2, v3", "v_sub_u32 v23, v23, v2", f"s_add_u32 s{T0_}, s{S_GB}, {T_G3 + 60}", f"v_lshl_add_u32 v{VG8}, v23, 2, s{T0_}")
    a(f"s_mul_i32 s{T2_}, s{S_G}, {U_SIZE}", f"s_add_u32 s{T2_}, s{T2_}, {C_U}")
    a(f"v_lshl_add_u32 v23, v2, 5, s{T2_}", f"v_lshl_add_u32 v{VB_}, v3, 4, v23")
    a("v_bfe_u32 v20, v1, 2, 2", "v_and_b32 v21, 3, v1", "v_lshl_add_u32 v20, v3, 3, v20")
    a(f"v_lshlrev_b32 v{VNA}, 2, v21")
    a(f"v_lshl_add_u32 v21, v21, 3, s{S_GB}", f"v_lshl_add_u32 v{VT8}, v20, 4, v21", f"v_lshl_add_u32 v{VT16}, v20, 5, v21")
    a(f"v_lshlrev_b32 v{VLN}, 4, v1")
    srd(a, R0, P_WS, 0x240000, WS_ZB1)
    if SWZ: a(f"s_mov_b32 s{CFL}, 0x8080")
    a(f"s_lshl_b32 s{T0_}, s{S_ROLE}, 19", f"s_lshl_b32 s{T1_}, s{S_B2}, 6", f"s_add_u32 s{T0_}, s{T0_}, s{T1_}")
    a(f"s_lshl_b32 s{T1_}, s{S_ROLE}, 16", f"s_lshl_b32 s{T3_}, s{S_CH}, 6", f"s_add_u32 s{T1_}, s{T1_}, s{T3_}", f"s_add_u32 s{T1_}, s{T1_}, {0x200000 - 512*64}")
    if SWZ:
        a(f"s_cmp_eq_u32 s{S_G}, 2", f"s_cselect_b32 s{CZ0}, s{T1_}, s{T0_}", f"s_cselect_b32 s{CSH}, 0x1080, s{CFL}", f"s_cselect_b32 s{T0_}, 1, 3")
        a(f"s_and_b32 s{T0_}, s{T0_}, s{S_ROLE}", f"s_lshl_b32 s{T0_}, s{T0_}, 11", f"s_xor_b32 s{CZ0}, s{CZ0}, s{T0_}", f"s_and_b32 s{CFL}, s{CZ0}, 0x7c0", f"s_xor_b32 s{CZ0}, s{CZ0}, s{CFL}", f"s_xor_b32 s{CZ1}, s{CZ0}, 0x6000")
    else:
        a(f"s_cmp_eq_u32 s{S_G}, 2", f"s_cselect_b32 s{CZ0}, s{T1_}, s{T0_}", f"s_cselect_b32 s{CSH}, 12, 15", f"s_add_u32 s{CZ1}, s{CZ0}, 16384")
    a(f"s_and_b32 s{CXR}, s{S_G}, 1", f"s_lshl_b32 s{CXR}, s{CXR}, 4", f"s_mov_b32 s{CM}, 0x55555555", f"s_mov_b32 s{CM+1}, 0x55555555")
    a(f"s_lshl_b32 s{T0_}, s{S_ROLE}, 8", f"s_add_u32 s{T0_}, s{T0_}, s{S_GB}", f"s_add_u32 s{T0_}, s{T0_}, 36", f"v_lshl_add_u32 v{D1}, v1, 2, s{T0_}")
    a(f"s_movk_i32 s{T0_}, {T_G7O - T_G7E}", f"s_cmp_eq_u32 s{S_ROLE}, 0", f"s_cselect_b32 s{T0_}, {T_G5 - T_G3}, s{T0_}", f"s_cmp_eq_u32 s{S_ROLE}, 3", f"s_cselect_b32 s{T0_}, {T_DRO - T_DRE}, s{T0_}")
    a(f"v_mov_b32 v20, s{S_GB}", f"ds_write_b16 v20, v{VZ} offset:{T_TAB + 2*IDX_ZERO}")
    a(f"s_mov_b32 s{SDL}, s{T0_}", f"v_mov_b32 v{D3}, v28")
    def stage_read():
        lds_wait(a, FL_PRE, 18, "b8")
        a(f"ds_read2st64_b64 v[28:31], v{D3} offset0:0 offset1:1", f"ds_read2st64_b64 v[32:35], v{D3} offset0:2 offset1:3")
    def stage_unpack():
        for k in range(16):
            src = 28 + k // 2; w = f"WORD_{k & 1}"
            if 108 + k in LFR: a(f"v_cvt_f32_u32_sdwa v{108+k}, v{src} dst_sel:DWORD dst_unused:UNUSED_PAD src0_sel:{w}")
            else: a(f"v_add_u32_sdwa v{108+k}, s{S_GB}, v{src} dst_sel:DWORD dst_unused:UNUSED_PAD src0_sel:DWORD src1_sel:{w}")
        a(f"v_add_u32 v{D3}, s{SDL}, v{D2}")
    stage_read()
    a("s_waitcnt lgkmcnt(0)")
    stage_unpack()
    ex = newlabel("EXP")
    if KOFF: a(f"s_lshl_b32 s{T0_}, s{S_G}, 5", f"s_add_u32 s{T0_}, s{T0_}, s{S_I}", f"s_cmp_ge_u32 s{T0_}, {64 + 24}", "s_cbranch_scc1 KC_RECV")
    a(f"s_mov_b32 s{T0_}, {f32(LOG2E_HI)}", f"s_mov_b32 s{T1_}, {f32(LOG2E_LO)}", f"s_mov_b32 s{T2_}, {f32(INV2PI_HI)}", f"s_mov_b32 s{T3_}, {f32(INV2PI_LO)}")
    a(f"s_waitcnt vmcnt(7)")
    a(f"v_lshlrev_b32 v16, 16, v{VLDT}")
    a(f"v_mul_f32 v17, s{T0_}, v16")
    a(f"v_fma_f32 v19, v16, s{T0_}, -v17", f"v_fmac_f32 v19, s{T1_}, v16")
    a("v_exp_f32 v17, v17")
    a(f"v_mul_f32 v19, {f32(math.log(2.0))}, v19")
    a("v_fmac_f32 v17, v17, v19")
    a("v_cvt_pk_bf16_f32 v17, v17, v17", "v_and_b32 v16, 0xffff0000, v17")
    a(f"s_waitcnt vmcnt(5)")
    stamp(a, 2)
    a(f"ds_write_b32 v{VZ}, v{VONE} offset:{FL_PARAM}")
    THH, THL = 68, 70
    for k in range(2): unpack(a, 20 + 2 * k, RAW + k)
    for k in range(2): a(f"v_pk_mul_f32 v[{20+2*k}:{21+2*k}], v[{20+2*k}:{21+2*k}], v[16:17] op_sel_hi:[1,0]")
    a("v_max_f32 v36, v20, v21")
    a(f"v_pk_mul_f32 v[{THH}:{THH+1}], v[22:23], s[{T2_}:{T3_}] op_sel_hi:[1,0]")
    a(f"v_pk_fma_f32 v[{THL}:{THL+1}], v[22:23], s[{T2_}:{T3_}], v[{THH}:{THH+1}] op_sel_hi:[1,0,1] neg_lo:[0,0,1] neg_hi:[0,0,1]")
    a(f"v_pk_fma_f32 v[{THL}:{THL+1}], v[22:23], s[{T2_}:{T3_}], v[{THL}:{THL+1}] op_sel:[0,1,0]")
    T = 90
    def cmul_(dr, di, ar, ai, br, bi, t=T):
        assert di not in (ar, br, bi)
        return [f"v_pk_mul_f32 v[{t}:{t+1}], v[{ai}:{ai+1}], v[{bi}:{bi+1}]",
                f"v_pk_mul_f32 v[{t+2}:{t+3}], v[{ai}:{ai+1}], v[{br}:{br+1}]",
                f"v_pk_fma_f32 v[{di}:{di+1}], v[{ar}:{ar+1}], v[{bi}:{bi+1}], v[{t+2}:{t+3}]",
                f"v_pk_fma_f32 v[{dr}:{dr+1}], v[{ar}:{ar+1}], v[{br}:{br+1}], v[{t}:{t+1}] neg_lo:[0,0,1] neg_hi:[0,0,1]"]
    def cm_(d, x, y, t=T): return cmul_(d, d + 2, x, x + 2, y, y + 2, t)
    def csq_(d, s_, t=T):
        return [f"v_pk_mul_f32 v[{t}:{t+1}], v[{s_+2}:{s_+3}], v[{s_+2}:{s_+3}]",
                f"v_pk_mul_f32 v[{t+2}:{t+3}], v[{s_}:{s_+1}], v[{s_+2}:{s_+3}]",
                f"v_pk_fma_f32 v[{d}:{d+1}], v[{s_}:{s_+1}], v[{s_}:{s_+1}], v[{t}:{t+1}] neg_lo:[0,0,1] neg_hi:[0,0,1]",
                f"v_pk_add_f32 v[{d+2}:{d+3}], v[{t+2}:{t+3}], v[{t+2}:{t+3}]"]
    def cmul(*x): a(*cmul_(*x))
    def csq(*x): a(*csq_(*x))
    CBR, CBI = 32, 34
    sk = newlabel("SK")
    a(f"s_cmp_eq_u32 s{S_ROLE}, 3", f"s_cbranch_scc1 {sk}")
    a("s_waitcnt vmcnt(1)")
    for k in range(2, 6): unpack(a, 20 + 2 * k, RAW + k)
    for k in range(2, 4): a(f"v_pk_mul_f32 v[{20+2*k}:{21+2*k}], v[{20+2*k}:{21+2*k}], v[16:17] op_sel_hi:[1,0]")
    cmul(CBR, CBI, 28, 30, 24, 26)
    a(f"v_max3_f32 v37, abs(v{CBI}), abs(v{CBI+1}), abs(v{CBR})", f"v_max_f32 v37, v37, abs(v{CBR+1})")
    a(f"{sk}:")
    a("s_waitcnt vmcnt(0)")
    a.flush(1)
    a("v_permlane32_swap_b32 v36, v37", "v_max_f32 v36, v36, v37")
    red32(a, "v_max_f32", 36, 38)
    a(f"v_readlane_b32 s{SM}, v36, 0", f"v_readlane_b32 s{SC}, v36, 32")
    a(f"s_add_u32 s{SC}, s{SC}, 0x7fffff", f"s_lshr_b32 s{SC}, s{SC}, 23", f"s_max_u32 s{SC}, s{SC}, 24", f"s_sub_u32 s{SSC}, 269, s{SC}", f"s_lshl_b32 s{SSC}, s{SSC}, 23")
    a(f"v_subrev_f32 v20, s{SM}, v20", f"v_subrev_f32 v21, s{SM}, v21")
    a(f"v_mul_f32 v20, {f32(LOG2E)}, v20", f"v_mul_f32 v21, {f32(LOG2E)}, v21")
    def scale_cb():
        a(f"v_pk_mul_f32 v[{CBR}:{CBR+1}], v[{CBR}:{CBR+1}], s[{SSC}:{SSC+1}] op_sel_hi:[1,0]", f"v_pk_mul_f32 v[{CBI}:{CBI+1}], v[{CBI}:{CBI+1}], s[{SSC}:{SSC+1}] op_sel_hi:[1,0]")
    def anchor(dr, di, l, conj=False):
        lit = {1: "1.0", 2: "2.0"}.get(l, f32(float(l)))
        for e in range(2):
            t = T + 4 * e
            if l != 1: a(f"v_mul_f32 v{t+1}, {lit}, v{THH+e}", f"v_mul_f32 v{t}, {lit}, v{20+e}")
        for e in range(2):
            t = T + 4 * e
            a(f"v_fract_f32 v{t+1}, v{t+1 if l != 1 else THH+e}")
        for e in range(2):
            t = T + 4 * e
            a(f"v_fmac_f32 v{t+1}, {lit}, v{THL+e}")
        for e in range(2):
            t = T + 4 * e
            a(f"v_exp_f32 v{t}, v{t if l != 1 else 20+e}", f"v_cos_f32 v{t+2}, v{t+1}", f"v_sin_f32 v{t+1}, v{t+1}")
        for e in range(2):
            t = T + 4 * e
            a(f"v_mul_f32 v{dr+e}, v{t}, v{t+2}")
            a(f"v_mul_f32 v{di+e}, v{t}, {'-' if conj else ''}v{t+1}")
    em = [0, None]
    def it(cms, row=None, x=None, y=None):
        if em[1]: a(em[1]); em[1] = None
        for k in range(4):
            for c in cms:
                if k < len(c): a(c[k])
        if row is None: return
        t = (98, 76)[em[0] & 1]; em[0] += 1
        for v, tt in ((x, t), (y, t + 2)):
            if v is not None: a(f"v_cvt_pk_f16_f32 v{tt}, v{v}, v{v+2}", f"v_cvt_pk_f16_f32 v{tt+1}, v{v+1}, v{v+3}")
        o = (row & 3) * KG_ROW // 8
        if y is None: em[1] = f"ds_write_b64 v{VEM + row//4}, v[{t}:{t+1}] offset:{8*o}"
        else: em[1] = f"ds_write2_b64 v{VEM + row//4}, v[{t}:{t+1}], v[{t+2}:{t+3}] offset0:{o} offset1:{o + KG_ROW//8}"
    G1, G2, G3 = 40, 44, 48
    VA, VB, VC, VD = 52, 56, 60, 64
    oth = lambda c, p, q: p if c != p else q
    jl = [newlabel("JOB") for _ in range(4)]; jn = newlabel("JOBJ")
    for r in (3, 1, 2): a(f"s_cmp_eq_u32 s{S_ROLE}, {r}", f"s_cbranch_scc1 {jl[r]}")
    anchor(G2, G2 + 2, 128); scale_cb(); anchor(G1, G1 + 2, 1)
    cur = CBR
    for c in range(8):
        nx = oth(cur, VA, VB)
        it([cm_(VC, cur, G2)] + ([cm_(nx, cur, G1, T + 4)] if c < 7 else []), 2 * c, cur, VC); cur = nx
    it([])
    a(f"s_branch {jn}")
    a(f"{jl[1]}:")
    anchor(G2, G2 + 2, 128); scale_cb(); csq(G3, G2); anchor(G1, G1 + 2, 2)
    it([cm_(VA, CBR, G3)]); cur = VA
    it([cm_(VD, VA, G3)])
    for c in range(4):
        nx = oth(cur, VA, VB)
        it([cm_(VC, cur, G2), cm_(nx, cur, G1, T + 4) if c < 3 else csq_(G3, G1, T + 4)], 2 * c, cur, VC); cur = nx
    cur = VD
    for aa in range(4):
        nx = oth(cur, VA, VB)
        it([cm_(VC, cur, G3)] + ([cm_(nx, cur, G2, T + 4)] if aa < 3 else []), 8 + 2 * aa, cur, VC); cur = nx
    it([])
    a(f"s_branch {jn}")
    a(f"{jl[3]}:")
    anchor(G1, G1 + 2, 8, conj=True)
    a(f"v_mov_b32 v{VA}, {f32(32768.0)}", f"v_mov_b32 v{VA+1}, {f32(32768.0)}", f"v_mov_b32 v{VA+2}, 0", f"v_mov_b32 v{VA+3}, 0")
    sc_ = lambda d, x: [f"v_pk_mul_f32 v[{d}:{d+1}], v[{x}:{x+1}], v[{VA}:{VA+1}]", f"v_pk_mul_f32 v[{d+2}:{d+3}], v[{x+2}:{x+3}], v[{VA}:{VA+1}]"]
    it([csq_(G2, G1), sc_(VC, G1)])
    ce, co = VA, VC
    for b in range(8):
        ne, no = oth(ce, VA, VB), oth(co, VC, VD)
        it([] if b == 7 else [sc_(ne, G2) if b == 0 else cm_(ne, ce, G2), cm_(no, co, G2, T + 4)], 2 * b, ce, co); ce, co = ne, no
    it([])
    a(f"ds_write_b8 v15, v{VONE} offset:{FL_G}")
    stamp(a, 3)
    if KOFF: a(f"s_cmp_eq_u32 s{S_G}, 2", "s_cbranch_scc1 KS_G0")
    a(f"s_branch {ex}")
    if KOFF:
        a("KC_SEND:")
        lds_wait(a, FL_NONCE, VNT, "nz", addr=VNA)
        a(f"s_lshl_b32 s{T0_}, s{S_CH}, 12", f"s_lshl_b32 s{T1_}, s{S_ROLE}, 10", f"s_add_u32 s{T0_}, s{T0_}, s{T1_}", f"s_add_u32 s{T0_}, s{T0_}, {hex(WS_KT - 512*4096)}", f"v_add_u32 v24, s{T0_}, v{VLN}")
        a(f"s_mov_b32 s{T1_}, 0xffff", f"v_lshlrev_b32 v25, 16, v{VNT}")
        for r in range(4): a(f"v_cvt_f16_f32 v{20+r}, v{20+r}")
        a(f"s_cmp_lg_u32 s{S_ROLE}, 2", "s_cbranch_scc1 KC_S2")
        a("s_mov_b32 exec_lo, 0", "s_mov_b32 exec_hi, 0xffff0000")
        a(f"v_mov_b32 v20, v{VPR}", f"v_lshrrev_b32 v21, 16, v{VPR}")
        a("s_mov_b64 exec, -1")
        a("KC_S2:")
        for r in range(4): a(f"v_bfi_b32 v{20+r}, s{T1_}, v{20+r}, v{25 if r & 1 else VNT}")
        a(f"global_store_dwordx4 v24, v[20:23], s[{P_WS}:{P_WS+1}] sc1")
        stamp(a, 4)
        a("s_branch KS_G0")
        a("KC_RECV:")
        a(f"s_cmp_eq_u32 s{S_ROLE}, 3", f"s_cbranch_scc1 {ex}")
        a(f"s_lshl_b32 s{T0_}, s{S_CH}, 12", f"s_lshl_b32 s{T1_}, s{S_ROLE}, 10", f"s_add_u32 s{T0_}, s{T0_}, s{T1_}", f"s_add_u32 s{T0_}, s{T0_}, {hex(WS_KT - 512*4096)}", f"v_add_u32 v24, s{T0_}, v{VLN}")
        lds_wait(a, FL_NONCE, VNT, "nz", addr=VNA, sleep=2)
        a(f"v_lshlrev_b32 v25, 16, v{VNT}")
        stamp(a, 2)
        lds_wait(a, FL_G + {0: 0, 1: 4, 2: 16}[ENV("KTRIG", 1)], 17, "b4", sleep=2)
        lp = newlabel("KP"); l1 = newlabel("KPE")
        a(f"s_branch {l1}")
        a(f"{lp}:")
        a("s_sleep 2")
        a(f"{l1}:")
        a(f"global_load_dwordx4 v[20:23], v24, s[{P_WS}:{P_WS+1}] sc1")
        guard(a)
        a("s_waitcnt vmcnt(0)")
        for r in range(4): a(f"v_xor_b32 v{20+r}, v{25 if r & 1 else VNT}, v{20+r}")
        a("v_or3_b32 v26, v20, v21, v22", "v_or_b32 v26, v26, v23", "v_cmp_lt_u32 vcc, 0xffff, v26", f"s_cbranch_vccnz {lp}")
        stamp(a, 3)
        for r in (0, 2): a(f"v_xor_b32 v{20+r}, v{VNT}, v{20+r}")
        for r in range(4): a(f"ds_write_b16 v{IXR[r]}, v{20+r}")
        a(f"s_cmp_lg_u32 s{S_ROLE}, 2", f"s_cbranch_scc1 {ex}")
        a("v_and_b32 v20, 0xffff, v20", "v_lshl_or_b32 v20, v21, 16, v20", f"v_lshlrev_b32 v21, 16, v{VDSK}")
        a("s_mov_b32 exec_lo, 0", "s_mov_b32 exec_hi, 0x10000")
        a(f"ds_write_b64 v14, v[20:21] offset:{C_PAR}")
        a("s_mov_b64 exec, -1")
        a(f"s_branch {ex}")
    a(f"{jl[2]}:")
    anchor(G2, G2 + 2, 128); scale_cb()
    it([csq_(G1, G2), cm_(VD, CBR, G2, T + 4)]); csq(G3, G1); csq(G3, G3)
    it([cm_(VA, CBR, G3), cm_(VC, VD, G3, T + 4)])
    ce, co = VA, VC
    for r in range(4):
        ne, no = oth(ce, VA, VB), oth(co, VC, VD)
        it([cm_(ne, ce, G1)] + ([cm_(no, co, G1, T + 4)] if r < 3 else []), 2 * r, ce, co); ce, co = ne, no
    it([], 8, ce, None)
    a(f"v_mov_b32 v36, {f32(2048.0*LOG2E)}", f"v_mul_f32 v24, s{SM}, v36", "v_max_f32 v24, 0, v24", "v_exp_f32 v24, v24")
    it([])
    a(f"s_sub_u32 s{SIS}, s{SC}, 7", f"s_lshl_b32 s{SIS}, s{SIS}, 23")
    a(f"v_lshlrev_b32 v25, 16, v{VDSK}", f"v_mul_f32 v24, s{SIS}, v24", f"v_mov_b32 v{VPR}, v24")
    a(f"ds_write_b64 v14, v[24:25] offset:{C_PAR}")
    a(f"{jn}:")
    a(f"ds_write_b8 v15, v{VONE} offset:{FL_G}")
    stamp(a, 3); kstamp(a, 2)
    for s in range(8): a(f"ds_read_b128 v[{40+4*s}:{43+4*s}], v{VTL} offset:{64*s}")
    a(f"v_mov_b32 v36, {f32(LOG2E)}", f"v_mul_f32 v36, s{SM}, v36")
    a(f"v_mul_f32 v37, {f32(2048.0)}, v36", "v_max_f32 v37, 0, v37", f"v_add_f32 v37, {f32(23.0)}, v37")
    for r in range(4):
        a(f"v_fma_f32 v{LFR[r]}, v{LFR[r]}, v36, -v37")
    for r in range(4):
        a(f"v_exp_f32 v{LFR[r]}, v{LFR[r]}")
    kstamp(a, 3)
    lds_wait(a, FL_G + 3, 17, "u8", addr=14)
    kstamp(a, 4)
    tr = LdsTrack(a); ids = []
    for s in range(8):
        ids.append(tr.issue(f"ds_read_b128 v[{72+4*s}:{75+4*s}], v{VTE} offset:{KG_T[3]+64*s}"))
    for s in range(8):
        tr.wait(ids[s])
        c = "0" if s < 2 else f"v[{20+4*(s&1)}:{23+4*(s&1)}]"
        a(f"v_mfma_f32_16x16x32_f16 v[{20+4*(s&1)}:{23+4*(s&1)}], v[{40+4*s}:{43+4*s}], v[{72+4*s}:{75+4*s}], {c}")
    for r in range(4): a(f"v_add_f32 v{20+r}, v{20+r}, v{24+r}")
    for r in range(4): a(f"v_mul_f32 v{20+r}, v{20+r}, v{LFR[r]}")
    kstamp(a, 5)
    if KOFF: a(f"s_cmp_eq_u32 s{S_G}, 2", "s_cbranch_scc1 KC_SEND")
    for r in range(4):
        a(f"v_cvt_f16_f32 v{20+r}, v{20+r}")
        a(f"ds_write_b16 v{IXR[r]}, v{20+r}")
    a(f"{ex}:")
    a(f"ds_write_b8 v15, v{VONE} offset:{FL_G+4}")
    a("v_mov_b32 v28, 0", "v_mov_b32 v29, 0", "v_mov_b32 v30, 0", "v_mov_b32 v31, 0", f"v_mov_b32 v32, s{S_GB}")
    a("s_waitcnt vmcnt(0)")
    kstamp(a, 6)
    lds_wait(a, FL_G + 4, 20, "b4", addr=14)
    stamp(a, 4); kstamp(a, 7)
    for e in range(3): a(f"ds_read_u16 v{20+e}, v{I1+e}")
    for e in range(4): a(f"ds_read_u16 v{23+e}, v{I2+e}")
    a("s_mov_b64 exec, 1")
    a(f"ds_write_b128 v32, v[28:31] offset:{R_WS5}", f"ds_write_b128 v32, v[28:31] offset:{R_WS9}", f"ds_write_b128 v32, v[28:31] offset:{R_WS3 + 192*16}")
    a("s_mov_b64 exec, -1")
    a("s_waitcnt lgkmcnt(7)")
    a("v_lshl_or_b32 v28, v21, 16, v20", "v_lshl_or_b32 v29, v22, 16, v21")
    a(f"ds_write_b32 v{D1}, v28 offset:{T_DRE}", f"ds_write_b32 v{D1}, v29 offset:{T_DRO}")
    a("s_waitcnt lgkmcnt(5)")
    a("v_lshl_or_b32 v30, v24, 16, v23", "v_lshl_or_b32 v31, v26, 16, v25")
    a(f"ds_write_b32 v{D2}, v30", f"ds_write_b32 v{D3}, v31")
    a(f"ds_write_b8 v15, v{VONE} offset:{FL_G+8}")
    kstamp(a, 8)
    lds_wait(a, FL_G + 8, 20, "b4", addr=14)
    stamp(a, 5)
    PR, FT0, FT1, ACCL, ACCH, ZQ = 16, 18, 19, 20, 24, 28
    VZA, VUA = VDA, VDA2
    LA = ENV("CLA", 6); RSV = ENV("CRSV", 5); NF = ENV("CNF", 2)
    jl = [newlabel("CV") for _ in range(4)]; zend = newlabel("CVE")
    slow = []
    a(f"ds_read_b64 v[{PR}:{PR+1}], v14 offset:{C_PAR}")
    for r in range(1, 4): a(f"s_cmp_eq_u32 s{S_ROLE}, {r}", f"s_cbranch_scc1 {jl[r]}")
    for m in range(4):
        if m: a(f"{jl[m]}:")
        lo, hi = 2 * m, 2 * m + 1
        acc = {lo: ACCL, hi: ACCH}
        ops = []
        if m >= 2:
            for j in (lo, hi): ops.append((j, ("D", 32), ("U", 8 * j - 32)))
        for p in range(max(8 * lo - 16, -7), 8 * hi + 1):
            for j in (lo, hi):
                ks = 8 * j - p
                if 0 <= ks <= 16: ops.append((j, ("D", ks), ("U", p)))
        ncomb0 = len(ops)
        for j in (lo, hi):
            for kind in (3, 5):
                for b in range(6):
                    if 2 <= j - b <= 4: ops.append((j, ("W", kind, b), ("G", kind, j - b)))
            for kind in (7, 9):
                for b in range(2):
                    if j - 2 * b - 4 >= 0: ops.append((j, ("W", kind, b), ("G", kind, j - 2 * b - 4)))
        nops = len(ops)
        first, last = {}, {}
        for k, (j, A, B) in enumerate(ops):
            for key in (A, B):
                first.setdefault(key, k); last[key] = k
        lastlo = max(k for k, o in enumerate(ops) if o[0] == lo)
        pool = list(range(32, 128, 4))
        reg, lid = {}, {}
        def load(tr, key):
            rg = pool.pop(0); reg[key] = rg
            if (XP & 8 and key[0] == "G") or (XP & 16 and key[0] == "W") or (XP & 32 and key[0] == "U"):
                lid[key] = -100; return
            if key[0] == "D":
                ksv = -2 if key[1] == 32 else key[1]
                o = (16 - ksv) * 16
                ad, o = (VDA, o) if o + 3 <= 255 else (VDA2, o - 160)
                tr.issue(f"ds_read2_b32 v[{rg}:{rg+1}], v{ad} offset0:{o} offset1:{o+1}")
                lid[key] = tr.issue(f"ds_read2_b32 v[{rg+2}:{rg+3}], v{ad} offset0:{o+2} offset1:{o+3}")
            elif key[0] == "G":
                _, kind, ix = key
                if kind in (3, 5): o = (4 - ix) * 16 + (64 if kind == 5 else 0); ad = VG8
                else: o = (3 - ix) * 8 + (96 if kind == 9 else 0); ad = VG16
                tr.issue(f"ds_read2_b32 v[{rg}:{rg+1}], v{ad} offset0:{o} offset1:{o+1}")
                lid[key] = tr.issue(f"ds_read2_b32 v[{rg+2}:{rg+3}], v{ad} offset0:{o+2} offset1:{o+3}")
            elif key[0] == "U":
                lid[key] = tr.issue(f"ds_read_b128 v[{rg}:{rg+3}], v{VB_} offset:{64*(key[1]+7)}")
            else:
                _, kind, b = key
                if kind in (3, 5): o = (R_WS3 if kind == 3 else R_WS5) + 512 * b; ad, st = VT8, 64
                else: o = (R_WS7 if kind == 7 else R_WS9) + 1024 * b; ad, st = VT16, 128
                tr.issue(f"ds_read_b64_tr_b16 v[{rg}:{rg+1}], v{ad} offset:{o}")
                lid[key] = tr.issue(f"ds_read_b64_tr_b16 v[{rg+2}:{rg+3}], v{ad} offset:{o+st}")
        keys = sorted(first, key=lambda k_: first[k_])
        tr = LdsTrack(a)
        for key in keys:
            if key[0] == "D": load(tr, key)
        for key in keys:
            if key[0] == "G" and len(pool) > RSV: load(tr, key)
        pend = [k_ for k_ in keys if k_ not in reg]
        a(f"v_lshlrev_b32 v{FT0}, 3, v3", f"v_sub_u32 v{FT0}, v{VB_}, v{FT0}")
        a(f"v_lshrrev_b32 v{FT1}, 2, v2", f"v_lshl_add_u32 v{FT1}, v{FT1}, 2, v3", f"v_and_b32 v{ZQ}, 3, v2", f"v_lshlrev_b32 v{ZQ}, 4, v{ZQ}")
        if SWZ: a(f"v_mul_u32_u24 v{FT1}, s{CSH}, v{FT1}", f"v_xor_b32 v{FT1}, s{CFL}, v{FT1}")
        else: a(f"v_lshlrev_b32 v{FT1}, s{CSH}, v{FT1}")
        a("s_waitcnt lgkmcnt(0)")
        a(f"v_mov_b32 v{VUA}, v{FT0}", f"v_add_u32 v{VZA}, v{FT1}, v{ZQ}")
        a(f"v_xor_b32 v{VLN}, s{CXR}, v{VLN}")
        lds_wait(a, FL_UF, FT0, "b4")
        a(f"s_setprio {eval(os.environ.get('CPRIO', '[1,1,1,1]'))[m]}")
        stamp(a, 6); cstamp(a, 1)
        if XP & 4: a(f"v_mov_b32 v{FT0}, 0", f"s_cmp_lg_u32 s{S_G}, 0", f"s_cbranch_scc1 {zend}")
        for key in lid: lid[key] = -100
        tr = LdsTrack(a)
        ud = {}
        fill = []
        fill.append(("lds", f"ds_read_b64 v[{ZQ}:{ZQ+1}], v{VUA} offset:{480 + 512*lo}", 2))
        fill.append(("ldsU", f"ds_read_b64 v[{ZQ+2}:{ZQ+3}], v{VUA} offset:{480 + 512*hi}", 2))
        for ti, j in enumerate((lo, hi)):
            fill.append(("alloc", j, 5))
            if ti == 0: fill.append(("waitU", None, 5))
            for e in range(4):
                sel = "op_sel:[1,0,0] " if e & 1 else ""
                fill.append(("f", (lambda j=j, e=e, ti=ti, sel=sel: f"v_fma_mix_f32 v{ud[j]+e}, v{ZQ+2*ti+e//2}, v{PR+1}, 0 {sel}op_sel_hi:[1,0,0]"), 5))
            for p in range(2):
                fill.append(("f", (lambda j=j, p=p, ti=ti: f"v_cvt_pk_bf16_f32 v{ZQ+2*ti+p}, v{ud[j]+2*p}, v{ud[j]+2*p+1}"), 5))
            for p in range(2):
                fill.append(("f", (lambda j=j, p=p, ti=ti: f"v_lshlrev_b32 v{ud[j]+2*p}, 16, v{ZQ+2*ti+p}"), 5))
                fill.append(("f", (lambda j=j, p=p, ti=ti: f"v_and_b32 v{ud[j]+2*p+1}, 0xffff0000, v{ZQ+2*ti+p}"), 5))
        def epi(j, ti):
            y = acc[j]; z = ZQ + 2 * ti; out = []
            for p in range(4): out.append(lambda p=p: f"v_mul_f32 v{y+p}, v{y+p}, v{PR}")
            for p in range(2): out.append(lambda p=p: f"v_cvt_pk_bf16_f32 v{z+p}, v{y+2*p}, v{y+2*p+1}")
            for p in range(2):
                out.append(lambda p=p: f"v_lshlrev_b32 v{y+2*p}, 16, v{z+p}")
                out.append(lambda p=p: f"v_and_b32 v{y+2*p+1}, 0xffff0000, v{z+p}")
            for p in range(4): out.append(lambda p=p: f"v_add_f32 v{y+p}, v{y+p}, v{ud[j]+p}")
            for p in range(2): out.append(lambda p=p: f"v_cvt_pk_bf16_f32 v{z+p}, v{y+2*p}, v{y+2*p+1}")
            for p in range(2): out.append(lambda p=p: f"v_min_u32 v{z+p}, -2, v{z+p}")
            return out
        for f in epi(lo, 0): fill.append(("f", f, lastlo + 2))
        fill.append(("lds", f"ds_read_u8 v{FT0}, v{VZ} offset:{FL_S6 + m}", nops - 4))
        fill.append(("lds", f"ds_read_b128 v[{ACCL}:{ACCL+3}], v{VLN} offset:{G_BASE + R_RED + 1024*m}", nops - 4))
        uid = [None]
        def do_fill(n, k):
            while n > 0 and fill:
                kind, t, e = fill[0]
                if e > k: return
                if kind == "alloc":
                    if len(pool) < 2: return
                    ud[t] = pool.pop(); fill.pop(0); continue
                fill.pop(0)
                if kind == "f":
                    if XP & 2 and "v_min" not in t(): continue
                    a(t())
                elif kind == "lds": tr.issue(t)
                elif kind == "ldsU": uid[0] = tr.issue(t)
                elif kind == "waitU": tr.wait(uid[0]); continue
                n -= 1
        kW = ncomb0 - LA if nops > ncomb0 else None
        wok = [False]
        def issue_loads(k, nmax):
            while pend and pool and nmax > 0:
                key = pend[0]
                if first[key] - k > (LA if key[0] != "G" else LA + 4): return
                if key[0] == "W" and not wok[0]:
                    alt = [x for x in pend if x[0] != "W" and first[x] - k <= LA + 2]
                    if not alt: return
                    key = alt[0]
                pend.remove(key); load(tr, key); nmax -= 1
        issue_loads(0, RSV)
        started = set()
        for k, (j, A, B) in enumerate(ops):
            assert A in reg and B in reg, (m, k, A, B)
            tr.wait(max(lid[A], lid[B]))
            c = f"v[{acc[j]}:{acc[j]+3}]" if j in started else "0"
            started.add(j)
            a(f"v_mfma_f32_16x16x32_f16 v[{acc[j]}:{acc[j]+3}], v[{reg[A]}:{reg[A]+3}], v[{reg[B]}:{reg[B]+3}], {c}")
            for key in (A, B):
                if last[key] == k: pool.append(reg[key])
            if kW is not None and k == kW - 3:
                wfid = tr.issue(f"ds_read_b32 v{FT0}, v14 offset:{FL_G + 12}")
            if k == kW:
                tr.wait(wfid)
                sl = newlabel("WS"); bk = newlabel("WB")
                a(f"v_cmp_ne_u32 vcc, s{S_ONES}, v{FT0}", f"s_cbranch_vccnz {sl}")
                a(f"{bk}:")
                slow.append((sl, bk))
                wok[0] = True
                cstamp(a, 3)
            issue_loads(k + 1, 2)
            do_fill(NF, k)
            if k == ncomb0 // 2: cstamp(a, 2)
            if k == ncomb0 - 1: cstamp(a, 4)
        cstamp(a, 5)
        do_fill(1000, 1000)
        assert not fill and not pend
        stamp(a, 7)
        for f in epi(hi, 1): a(f())
        if m < 3: a(f"s_branch {zend}")
    a(f"{zend}:")
    cstamp(a, 6)
    gA = newlabel("ZA"); gC = newlabel("ZC"); zs = newlabel("ZS"); zb = newlabel("ZB"); zc = newlabel("ZCB"); zd = newlabel("ZD")
    a("s_waitcnt lgkmcnt(0)")
    a(f"s_cmp_lg_u32 s{S_G}, 1", f"s_cbranch_scc1 {gA}")
    a(f"v_cmp_ne_u32 vcc, 1, v{FT0}", f"s_cbranch_vccnz {zs}")
    a(f"{zb}:")
    a(f"s_mov_b64 exec, s[{CM}:{CM+1}]")
    for k in range(4): a(f"v_swap_b32 v{ZQ+k}, v{ACCL+k}")
    a("s_mov_b64 exec, -1")
    cstamp(a, 8)
    a(f"buffer_store_dwordx4 v[{ZQ}:{ZQ+3}], v{VZA}, s[{R0}:{R0+3}], s{CZ1} offen sc1")
    a(f"buffer_store_dwordx4 v[{ACCL}:{ACCL+3}], v{VZA}, s[{R0}:{R0+3}], s{CZ0} offen sc1")
    a(f"s_branch {zd}")
    for (sl, bk) in slow:
        a(f"{sl}:")
        lds_wait(a, FL_G + 12, FT0, "b4", addr=14)
        a(f"s_branch {bk}")
    a(f"{zs}:")
    a(f"v_mov_b32 v{FT1}, s{S_ROLE}")
    l = newlabel("ZW")
    a(f"{l}:")
    a(f"ds_read_u8 v{FT0}, v{FT1} offset:{FL_S6}")
    guard(a)
    a("s_waitcnt lgkmcnt(0)")
    a(f"v_cmp_ne_u32 vcc, 1, v{FT0}", f"s_cbranch_vccnz {l}")
    a(f"v_lshl_add_u32 v{FT1}, v{FT1}, 10, v{VLN}")
    a(f"ds_read_b128 v[{ACCL}:{ACCL+3}], v{FT1} offset:{G_BASE + R_RED}")
    a("s_waitcnt lgkmcnt(0)")
    a(f"s_branch {zb}")
    a(f"{gA}:")
    a(f"s_cmp_lg_u32 s{S_G}, 0", f"s_cbranch_scc1 {gC}")
    a(f"v_mov_b32 v{FT1}, s{S_ROLE}", f"v_lshl_add_u32 v{FT0}, v{FT1}, 10, v{VLN}")
    a(f"ds_write_b128 v{FT0}, v[{ZQ}:{ZQ+3}] offset:{G_BASE + R_RED}")
    a(f"ds_write_b8 v{FT1}, v{VONE} offset:{FL_S6}")
    cstamp(a, 8)
    a(f"s_branch {zd}")
    a(f"{gC}:")
    cstamp(a, 8)
    a(f"buffer_store_dwordx4 v[{ZQ}:{ZQ+3}], v{VZA}, s[{R0}:{R0+3}], s{CZ0} offen sc1")
    a(f"{zd}:")
    stamp(a, 8)
    if DBG:
        a(f"s_mul_i32 s{T0_}, s{S_ROLE}, 1280", f"s_add_u32 s{T1_}, s{T0_}, s{S_GB}", f"v_lshl_add_u32 v20, v1, 2, s{T1_}")
        a(f"s_mul_i32 s{T1_}, s{S_CH}, 5376", f"s_add_u32 s{T1_}, s{T1_}, s{T0_}", f"s_add_u32 s{T1_}, s{T1_}, {hex(WS_DBG)}", f"v_lshl_add_u32 v21, v1, 2, s{T1_}")
        for k in range(5 + 1):
            a(f"ds_read_b32 v22, v20 offset:{R2 + 256*k}", "s_waitcnt lgkmcnt(0)", f"global_store_dword v21, v22, s[{P_WS}:{P_WS+1}] offset:{256*k}")
        a(f"ds_read_b32 v22, v14 offset:{C_PAR}", f"s_lshl_b32 s{T1_}, s{S_CH}, 2", f"s_add_u32 s{T1_}, s{T1_}, {hex(WS_DBG + 0x300000)}", f"v_mov_b32 v21, s{T1_}")
        a("s_waitcnt lgkmcnt(0)", f"global_store_dword v21, v22, s[{P_WS}:{P_WS+1}]")
    a(f"s_lshl_b32 s{T0_}, s{S_G}, 2", f"s_add_u32 s{T0_}, s{T0_}, s{S_ROLE}", f"v_mov_b32 v8, s{T0_}")
    a("s_waitcnt vmcnt(0)")
    a(f"ds_write_b8 v8, v{VONE} offset:{FL_ZDONE}")


def gen_wjobs(a):
    WA, WD = 10, 11
    end = newlabel("WJE"); w1 = newlabel("WJ1"); w2 = newlabel("WJ2")
    a(f"s_cmp_eq_u32 s{S_WAVE}, 2", f"s_cbranch_scc1 {w2}")
    if XP & 1: a(f"s_branch {w2}")
    a(f"s_add_u32 s{T0_}, s{S_WAVE}, 1", f"s_lshr_b32 s{T0_}, s{T0_}, 2", f"s_cmp_eq_u32 s{S_WAVE}, 1", f"s_cselect_b32 s{T0_}, 2, s{T0_}", f"s_lshl_b32 s{T0_}, s{T0_}, 10")
    a(f"v_lshl_add_u32 v{WA}, v1, 4, s{T0_}", f"v_add_u32 v{WD}, {G_BASE}, v{WA}")
    lds_wait(a, FL_UF, 12, "b4")
    a(f"s_setprio {ENV('WPRIO', 3)}")
    for g in range(3):
        E = 20 + 12 * g; o = C_U + U_SIZE * g + 2 * (240 - 16)
        a(f"ds_read_b128 v[{E}:{E+3}], v{WA} offset:{o}", f"ds_read_b128 v[{E+4}:{E+7}], v{WA} offset:{o+16}", f"ds_read_b64 v[{E+8}:{E+9}], v{WA} offset:{o+32}")
    a(f"s_cmp_eq_u32 s{S_WAVE}, 1", f"s_cbranch_scc1 {w1}")
    for full in (1, 0):
        if not full: a(f"{w1}:")
        for g in range(3):
            if g == 2: a(f"s_cmp_lt_u32 s{S_I}, 24", f"s_cbranch_scc1 {end}")
            E = lambda i: 20 + 12 * g + i
            O = lambda i: 56 + i
            T = lambda i: 65 + i
            Q = lambda i: 72 + i
            X = lambda i: 79 + i
            Y = lambda i: 85 + i
            W7, W9 = 92, 96
            a(f"ds_read_b32 v12, v{VZ} offset:{FL_G + 16*g + 4}")
            if g == 0: a("s_waitcnt lgkmcnt(7)")
            n = 8 if full else 7
            for i in range(1, n + 1): a(f"v_alignbit_b32 v{O(i)}, v{E(i+1)}, v{E(i)}, 16")
            for i in range(1, n + 1): a(f"v_pk_add_f16 v{T(i)}, v{O(i)}, v{E(i+1)}")
            for i in range(1, 5): a(f"v_pk_add_f16 v{X(i)}, v{T(i)}, v{O(i+1)}")
            for i in (range(2, 8) if full else range(3, 7)): a(f"v_pk_add_f16 v{Q(i)}, v{T(i)}, v{T(i+1)}")
            ok = newlabel("WJK")
            a("s_waitcnt lgkmcnt(0)")
            a(f"v_cmp_eq_u32 vcc, s{S_ONES}, v12", f"s_cbranch_vccnz {ok}")
            lds_wait(a, FL_G + 16 * g + 4, 12, "b4", sleep=1)
            a(f"{ok}:")
            off = G_SIZE * (g & 1)
            if g == 2: a(f"v_add_u32 v{WD}, {2*G_SIZE}, v{WD}")
            a(f"ds_write_b128 v{WD}, v[{X(1)}:{X(4)}] offset:{off + R_WS3}")
            for i in (range(2, 7) if full else range(3, 7)): a(f"v_pk_add_f16 v{Y(i)}, v{E(i)}, v{Q(i)}")
            a(f"ds_write_b128 v{WD}, v[{Y(3)}:{Y(6)}] offset:{off + R_WS5 + 16}")
            if full:
                for i in range(5, 8): a(f"v_pk_add_f16 v{X(i)}, v{T(i)}, v{O(i+1)}")
                for k in range(4): a(f"v_pk_add_f16 v{W7+k}, v{Q(2+k)}, v{X(4+k)}")
                a(f"ds_write_b128 v{WD}, v[{W7}:{W7+3}] offset:{off + R_WS7}")
                for k in range(4): a(f"v_pk_add_f16 v{W9+k}, v{Y(2+k)}, v{Q(4+k)}")
                a(f"ds_write_b128 v{WD}, v[{W9}:{W9+3}] offset:{off + R_WS9 + 16}")
            a(f"ds_write_b8 v116, v{VONE} offset:{FL_G + 16*g + 12}")
        a(f"s_branch {end}")
    a(f"{w2}:")
    for g in range(3): a(f"ds_write_b8 v116, v{VONE} offset:{FL_G + 16*g + 12}")
    if PF2 > PF1 or PFD:
        W2 = ENV("PF2W", 14)
        a(f"s_sub_u32 s{T2_}, s{S_I}, 18", f"s_cmp_ge_u32 s{T2_}, {W2}", f"s_cbranch_scc1 {end}")
        pf_lane(a, 100, 101)
        lds_wait(a, FL_UF, 12, "b4", sleep=1)
        if PF2 > PF1:
            pf_gu(a, 100, T2_, W2, PF1, PF2, 102, "KS_PF2D")
            a("KS_PF2D:")
        if PFD:
            a(f"s_sub_u32 s{T2_}, {W2-1}, s{T2_}")
            pf_down(a, T2_, W2, 0, PFD, 100, 120, end)
    a(f"{end}:")

def gen(a):
    label = NAME + "_kernel"
    a(f".globl {label}", ".p2align 8", f".type {label},@function", f"{label}:")
    a("s_cmp_ge_u32 s2, 256", "s_cbranch_scc1 KS_END")
    stamp_begin(a)
    a("s_load_dwordx16 s[4:19], s[0:1], 0", "s_load_dwordx16 s[20:35], s[0:1], 64", f"s_load_dwordx2 s[{P_WS}:{P_WS+1}], s[0:1], 128")
    a(f"v_readfirstlane_b32 s{S_WAVE}, v0", f"s_lshr_b32 s{S_WAVE}, s{S_WAVE}, 6")
    a(f"s_and_b32 s{S_XC}, s2, 7", f"s_lshr_b32 s{S_I}, s2, 3")
    if ENV("CPF", 1):
        a(f"s_cmp_lg_u32 s{S_WAVE}, 0", "s_cbranch_scc1 KS_CPE")
        a("s_getpc_b64 s[42:43]")
        a("KS_PC:")
        a(f"s_and_b32 s{T0_}, s{S_I}, 3", f"s_lshl_b32 s{T0_}, s{T0_}, 13", f"v_lshl_add_u32 v126, v0, 7, s{T0_}", "v_min_u32 v126, KS_END-KS_PC, v126")
        a("global_load_dword v127, v126, s[42:43]")
        a("KS_CPE:")
    if ENV("REMAP", 1):
        a(f"s_add_u32 s{T0_}, s{S_WAVE}, 8", f"s_sub_u32 s{T1_}, s{S_WAVE}, 4", f"s_cmp_lt_u32 s{S_WAVE}, 8", f"s_cselect_b32 s{T0_}, s{T0_}, s{T1_}")
        a(f"s_cmp_lt_u32 s{S_WAVE}, 4", f"s_cselect_b32 s{S_WAVE}, s{S_WAVE}, s{T0_}")
    a("v_and_b32 v1, 63, v0", "v_and_b32 v2, 15, v1", "v_lshrrev_b32 v3, 4, v1", f"v_mov_b32 v{VZ}, 0", f"v_mov_b32 v{VONE}, 1")
    a(f"s_mov_b32 s{S_GUARD}, {GUARD}", f"s_mov_b32 s{S_ONES}, 0x01010101")
    a(f"s_lshl_b32 s{S_B2}, s{S_XC}, 5", f"s_add_u32 s{S_B2}, s{S_B2}, s{S_I}")
    a(f"s_mul_i32 s{S_BLK}, s{S_XC}, 18", f"s_add_u32 s{S_BLK}, s{S_BLK}, s{S_I}")
    a(f"s_cmp_lt_u32 s{S_WAVE}, 4", "s_cbranch_scc1 KS_L")
    a(f"s_cmp_ge_u32 s{S_WAVE}, 12", "s_cbranch_scc1 KS_X")
    a("s_setprio 2")
    a(f"s_lshr_b32 s{S_G}, s{S_WAVE}, 2", f"s_sub_u32 s{S_G}, s{S_G}, 1")
    a(f"s_mul_i32 s{S_ROLE}, s{S_G}, 3", f"s_xor_b32 s{S_ROLE}, s{S_ROLE}, s{S_WAVE}", f"s_and_b32 s{S_ROLE}, s{S_ROLE}, 3")
    a(f"s_lshl_b32 s{S_CH}, s{S_B2}, 1", f"s_add_u32 s{S_CH}, s{S_CH}, s{S_G}")
    a(f"s_lshl_b32 s{T0_}, s{S_ROLE}, 11", f"s_add_u32 s{T0_}, s{T0_}, {C_STG}", f"v_lshl_add_u32 v28, v1, 3, s{T0_}")
    pre_ixlf(a)
    a("KS_GRP:")
    gen_group(a)
    a(f"s_cmp_lt_u32 s{S_I}, 18", "s_cbranch_scc1 KS_T")
    a("s_waitcnt lgkmcnt(0)")
    endwave(a)
    a("KS_X:")
    a(f"s_cmp_lt_u32 s{S_I}, 24", "s_cbranch_scc1 KS_X2")
    a(f"s_setprio {ENV('KCPRIO', 2)}")
    a("KS_XC:")
    a(f"s_mov_b32 s{S_G}, 2", f"s_add_u32 s{S_ROLE}, s{S_WAVE}, 3", f"s_and_b32 s{S_ROLE}, s{S_ROLE}, 3")
    a(f"s_lshl_b32 s{S_CH}, s{S_XC}, 3", f"s_and_b32 s{T0_}, s{S_I}, 7", f"s_add_u32 s{S_CH}, s{S_CH}, s{T0_}", f"s_add_u32 s{S_CH}, s{S_CH}, 512")
    a(f"s_lshl_b32 s{T0_}, s{S_ROLE}, 11", f"s_add_u32 s{T0_}, s{T0_}, {C_STG}", f"v_lshl_add_u32 v28, v1, 3, s{T0_}")
    a("s_branch KS_GRP")
    a("KS_X2:")
    a(f"s_cmp_lt_u32 s{S_I}, 8", "s_cbranch_scc1 KS_X3")
    a(f"s_sub_u32 s{T5_}, s{S_WAVE}, 8")
    a("s_branch KS_LN1")
    a("KS_X3:")
    a(f"s_lshl_b32 s{T0_}, s2, 4", f"s_add_u32 s{T0_}, s{T0_}, s{S_WAVE}", f"s_cmp_lg_u32 s{T0_}, {16*ENV('NPUB', 2) + 12}", "s_cbranch_scc1 KS_X3B")
    a("s_setprio 3")
    a(f"s_memrealtime s[{T0_}:{T1_}]")
    a("v_and_b32 v6, 3, v1", "v_lshlrev_b32 v7, 2, v6", "v_min_u32 v6, 2, v6", "v_lshlrev_b32 v6, 2, v6", "v_cmp_eq_u32 vcc, 3, v1")
    a("s_waitcnt lgkmcnt(0)")
    a(f"v_mov_b32 v8, s{T0_}", f"v_mov_b32 v9, s{T1_}", "v_alignbit_b32 v8, v8, v8, v6", f"v_cndmask_b32 v9, v{VZ}, v9, vcc", "v_xor_b32 v8, v8, v9")
    a("v_and_b32 v9, 0xf0000fff, v8", "v_and_b32 v10, 0xfff000, v8", "v_lshl_or_b32 v9, v10, 4, v9", "v_lshrrev_b32 v10, 12, v8", "v_and_b32 v10, 0xf000, v10")
    a("v_or3_b32 v9, v9, v10, v9", "v_or_b32 v9, 0x80000000, v9")
    a("s_mov_b64 exec, 15")
    a(f"global_store_dword v7, v9, s[{P_DBG}:{P_DBG+1}] sc1")
    if SPIN: a(f"v_mov_b32 v8, s{T0_}", f"global_store_dword v7, v8, s[{P_DBG}:{P_DBG+1}] offset:64 sc1")
    a("s_mov_b64 exec, -1")
    a("s_setprio 0")
    a("KS_X3B:")
    if KOFF:
        a(f"s_setprio {ENV('KPPRIO', 3)}")
        a("s_branch KS_XC")
    a("s_waitcnt lgkmcnt(0)")
    a("s_barrier")
    a("s_branch KS_G")
    a("KS_X4:")
    a(f"s_cmp_lt_u32 s{S_I}, 18", "s_cbranch_scc1 KS_G")
    a("s_waitcnt vmcnt(0) lgkmcnt(0)")
    endwave(a)
    a("KS_L:")
    a("v_lshlrev_b32 v6, 2, v0", f"ds_write_b32 v6, v{VZ}")
    a("v_mov_b32 v8, 0", "v_mov_b32 v9, 0", f"s_min_u32 s{T0_}, s{S_WAVE}, 2", f"s_mul_i32 s{T0_}, s{T0_}, {U_SIZE}", "v_min_u32 v6, 59, v1", f"v_lshl_add_u32 v6, v6, 3, s{T0_}")
    a(f"ds_write_b64 v6, v[8:9] offset:{C_U}")
    a(f"s_mov_b32 s{T5_}, s{S_WAVE}")
    a(f"s_sub_u32 s{T0_}, s{S_I}, 8", f"s_cmp_lt_u32 s{T0_}, 16", "s_cbranch_scc0 KS_L0")
    a("KS_LN1:")
    a("s_setprio 3")
    gen_ln1(a)
    if NLL:
        if not NL: pf_lane(a, 46, 47)
        a(f"s_lshl_b32 s{T2_}, s{S_WAVE}, 4", f"s_add_u32 s{T2_}, s{T2_}, s{S_I}", f"s_sub_u32 s{T2_}, s{T2_}, 8")
        pf_gu(a, 46, T2_, 64, 16 * NL + 16 * NE, PF0, 47, "KS_LLE")
        a("KS_LLE:")
    a(f"s_mov_b32 s{S_G}, 1")
    a("s_branch KS_L2B")
    a("KS_L0:")
    a(f"s_and_b32 s{T0_}, s{S_I}, 15", f"s_lshl_b32 s{T1_}, s{S_XC}, 4", f"s_add_u32 s{T0_}, s{T0_}, s{T1_}")
    a("v_and_b32 v59, 3, v1", "v_lshlrev_b32 v59, 2, v59")
    a(f"s_lshl_b32 s{T4_}, s{T0_}, 6", f"s_add_u32 s{T1_}, s{T4_}, {hex(WS_FLAG1)}", f"v_add_u32 v7, s{T1_}, v59")
    a(f"s_mul_i32 s{T1_}, s{T0_}, {CLR_WG}", f"s_add_u32 s{T1_}, s{T1_}, {hex(WS_CLR)}")
    a("v_lshlrev_b32 v6, 4, v0")
    a("v_mov_b32 v12, -1", "v_mov_b32 v13, -1", "v_mov_b32 v14, -1", "v_mov_b32 v15, -1")
    a("s_setprio 3")
    pf_lane(a, 16, 17)
    a("s_waitcnt lgkmcnt(0)")
    a(f"s_add_u32 s{R1}, s{P_WS}, s{T1_}", f"s_addc_u32 s{R1+1}, s{P_WS+1}, 0", f"s_mov_b32 s{R1+2}, {CLR_WG}", f"s_mov_b32 s{R1+3}, 0x20000")
    if ENV("UPRE", 0):
        srd(a, R0, P_WS, 0xC00000)
        a(f"s_lshl_b32 s{T2_}, s{S_WAVE}, 3", f"s_xor_b32 s{T2_}, s{T2_}, s{S_B2}", f"s_lshl_b32 s{T2_}, s{T2_}, 13")
        a(f"s_and_b32 s{T3_}, s{S_I}, 3", f"s_lshl_b32 s{T0_}, s{S_XC}, 2", f"s_add_u32 s{T3_}, s{T3_}, s{T0_}", f"s_lshl_b32 s{T3_}, s{T3_}, 13")
        a(f"s_add_u32 s{T0_}, s{T3_}, {256*8192}", f"s_cmp_eq_u32 s{S_WAVE}, 2", f"s_cselect_b32 s{T2_}, s{T0_}, s{T2_}")
        a(f"s_add_u32 s{T0_}, s{T3_}, {hex(WS_KT)}", f"s_cmp_eq_u32 s{S_WAVE}, 3", f"s_cselect_b32 s{T2_}, s{T0_}, s{T2_}")
        a(f"s_lshl_b32 s{T0_}, s{S_I}, 2", f"s_add_u32 s{T0_}, s{T0_}, s{S_WAVE}", f"s_and_b32 s{T0_}, s{T0_}, 0x72", f"s_cmp_gt_u32 s{T0_}, 0x62", f"s_cselect_b32 s{T0_}, 0, s{T0_}")
        a(f"s_bitcmp1_b32 s{T0_}, 1", "s_cbranch_scc1 KS_UPE")
        a("v_lshlrev_b32 v125, 7, v1", f"buffer_load_dword v124, v125, s[{R0}:{R0+3}], s{T2_} offen {MOD('UPMOD')}")
        a("KS_UPE:")
    a("s_barrier")
    if NE:
        a(f"s_and_b32 s{T2_}, s{S_I}, 15", f"s_lshl_b32 s{T3_}, s{S_WAVE}, 4", f"s_add_u32 s{T2_}, s{T2_}, s{T3_}")
        pf_gu(a, 16, T2_, 64, 16 * NL, 16 * NL + 16 * NE, 18, "KS_L1E")
        a("KS_L1E:")
    if ENV("CTRIG", 1): lds_wait(a, FL_PARAM, 8, "nz", sleep=2)
    for k in range(5):
        a(f"s_movk_i32 s{T0_}, {4096*k}")
        a(f"buffer_store_dwordx4 v[12:15], v6, s[{R1}:{R1+3}], s{T0_} offen sc1")
    stamp(a, 1)
    a(f"global_load_dword v58, v59, s[{P_DBG}:{P_DBG+1}] sc1")
    dbg_wait(a, 0)
    stamp(a, 2)
    a(f"ds_write_b32 v59, v58 offset:{FL_NONCE}")
    a("s_mov_b64 exec, 1")
    a(f"ds_add_rtn_u32 v8, v{VZ}, v{VONE} offset:{FL_LNACK}")
    a("s_mov_b64 exec, -1")
    for d in range(1, 4): a(f"v_lshrrev_b32 v{58-d}, {3*d}, v58")
    a("s_waitcnt lgkmcnt(0)")
    a(f"v_readfirstlane_b32 s{T0_}, v8")
    a(f"s_cmp_lg_u32 s{T0_}, 3", "s_cbranch_scc1 KS_L2")
    a("s_mov_b64 exec, 15")
    a(f"global_store_dword v7, v58, s[{P_WS}:{P_WS+1}] sc1")
    a("s_mov_b64 exec, -1")
    a(f"s_and_b32 s{T2_}, s{S_I}, 7")
    a(f"s_cmp_ge_u32 s{S_I}, 8", "s_cbranch_scc1 KS_L1C")
    if NN:
        a("s_setprio 0")
        lds_wait(a, FL_G + 32 + 4, 8, "b4", sleep=2)
        a("s_setprio 3")
        pf_gu(a, 16, T2_, 8, PF0, PF0 + 8 * NN, 18, "KS_L2")
    a("s_branch KS_L2")
    a("KS_L1C:")
    if NC: pf_gu(a, 16, T2_, 8, PF0 + 8 * NN, PF1, 18, "KS_L2")
    a("KS_L2:")
    a(f"s_mov_b32 s{S_G}, 0")
    a("KS_L2B:")
    srd(a, R0, P_WS, XBYTES, WS_UT)
    a("v_lshrrev_b32 v7, 1, v1", "v_lshlrev_b32 v7, 6, v7", "v_and_b32 v10, 1, v1", "v_lshl_add_u32 v7, v10, 4, v7", "v_lshlrev_b32 v9, 4, v1")
    a(f"s_lshl_b32 s{T0_}, s{S_WAVE}, 11", f"s_lshl_b32 s{T1_}, s{S_B2}, 13", f"s_add_u32 s{T1_}, s{T1_}, s{T0_}")
    if SWU:
        a(f"s_lshl_b32 s{T2_}, s{S_B2}, 7", f"s_and_b32 s{T3_}, s{T2_}, 0x380", f"v_xor_b32 v13, s{T3_}, v9", f"s_and_b32 s{T2_}, s{T2_}, 0x1c00", f"s_xor_b32 s{T1_}, s{T1_}, s{T2_}")
    else: a("v_mov_b32 v13, v9")
    a(f"s_xor_b32 s{T5_}, s{T1_}, 0x400")
    a(f"s_lshl_b32 s{T3_}, s{S_XC}, 3", f"s_add_u32 s{T3_}, s{T3_}, s{S_I}", f"s_add_u32 s{T3_}, s{T3_}, {512 - 24}")
    a(f"s_lshr_b32 s{T4_}, s{T3_}, 1", f"s_lshl_b32 s{T4_}, s{T4_}, 13", f"s_and_b32 s{T3_}, s{T3_}, 1", f"s_lshl_b32 s{T3_}, s{T3_}, 5")
    a(f"s_add_u32 s{T3_}, s{T3_}, s{T4_}", f"s_add_u32 s{T3_}, s{T3_}, s{T0_}")
    if SWU:
        a(f"s_lshr_b32 s{T4_}, s{T4_}, 6", f"s_and_b32 s{T2_}, s{T4_}, 0x780", f"v_xor_b32 v7, s{T2_}, v7", f"s_and_b32 s{T4_}, s{T4_}, 0x1800", f"s_xor_b32 s{T3_}, s{T3_}, s{T4_}")
    a(f"s_cmp_lt_u32 s{S_I}, 24", f"s_cselect_b32 s{T3_}, {XBYTES}, s{T3_}", f"s_cselect_b32 s{T2_}, 0, {hex(TAGM)}")
    a(f"v_mov_b32_dpp v64, v58 quad_perm:[0,1,0,1] {DPPM}", f"v_mov_b32_dpp v65, v58 quad_perm:[2,3,2,3] {DPPM}")
    a(f"s_bitcmp1_b32 s{S_I}, 0", "s_cselect_b64 vcc, -1, 0", "v_cndmask_b32 v64, v64, v65, vcc")
    for d in range(4): a(f"v_and_b32 v{60+d}, {hex(TAGM)}, v{58-d}")
    for d in range(3, 0, -1): a(f"v_lshrrev_b32 v{64+d}, {3*d}, v64")
    for d in range(4): a(f"v_and_b32 v{64+d}, s{T2_}, v{64+d}")
    a(f"s_lshl_b32 s{T4_}, s{S_WAVE}, 10", f"s_add_u32 s{T4_}, s{T4_}, {C_U + 480}")
    a("v_bfe_u32 v11, v1, 1, 1", f"v_mul_u32_u24 v11, {U_SIZE}, v11", "v_lshl_add_u32 v11, v10, 4, v11", "v_lshrrev_b32 v10, 2, v1", "v_lshl_add_u32 v11, v10, 5, v11", f"v_add_u32 v11, s{T4_}, v11")
    a(f"v_add_u32 v10, s{T4_}, v9")
    a(f"v_mov_b32 v116, s{S_WAVE}")
    a(f"s_add_u32 s{T0_}, s{T0_}, {hex(WS_FLAG1)}", "v_lshrrev_b32 v12, 2, v1", "v_lshl_add_u32 v12, v12, 6, v59", f"v_add_u32 v12, s{T0_}, v12")
    UT = eval(os.environ.get("UT", "(8, 4, 20)"))
    a(f"s_cmp_lt_u32 s{S_I}, 8", f"s_cselect_b32 s{T2_}, {UT[0]}, {UT[1]}", f"s_cmp_ge_u32 s{S_I}, 24", f"s_cselect_b32 s{T2_}, {UT[2]}, s{T2_}", f"v_mov_b32 v14, s{T2_}")
    a("s_setprio 0")
    a("s_waitcnt vmcnt(0)")
    stamp(a, 8)
    lds_wait(a, FL_G, 8, "b4", addr=14, sleep=2)
    a("s_setprio 3")
    stamp(a, 5)
    if ENV("UDELAY", 0): a(f"s_sleep {ENV('UDELAY', 0)}")
    lp = newlabel("UP"); l1 = newlabel("UPE")
    UM = os.environ.get("UMOD", "sc1").replace("_", " ")
    MK = [6, 8, 10, 12]
    if ENV("MPOLL", 1):
        for m in MK: a(f"s_mov_b64 s[{m}:{m+1}], -1")
        a(f"s_mov_b32 s{SP0}, {hex(TAGM)}")
    a(f"s_branch {l1}")
    a(f"{lp}:")
    a(f"s_sleep {ENV('USLEEP', 2)}")
    a(f"{l1}:")
    if ENV("MPOLL", 1):
        lds = [f"buffer_load_dwordx4 v[20:23], v13, s[{R0}:{R0+3}], s{T1_} offen {UM}", f"buffer_load_dwordx4 v[24:27], v13, s[{R0}:{R0+3}], s{T5_} offen {UM}",
               f"buffer_load_dwordx4 v[28:31], v7, s[{R0}:{R0+3}], s{T3_} offen {UM}"]
        for k in range(3): a(f"s_mov_b64 exec, s[{MK[k]}:{MK[k]+1}]", lds[k])
        a(f"s_mov_b64 exec, s[{MK[3]}:{MK[3]+1}]")
        a(f"global_load_dword v32, v12, s[{P_WS}:{P_WS+1}] sc1", f"global_load_dword v33, v12, s[{P_WS}:{P_WS+1}] offset:1024 sc1")
        guard(a)
        for k in range(3):
            a(f"s_mov_b64 exec, s[{MK[k]}:{MK[k]+1}]", f"s_waitcnt vmcnt({4-k})")
            for d in range(4): a(f"v_xor_b32 v{20+4*k+d}, v{(64 if k == 2 else 60)+d}, v{20+4*k+d}")
            a(f"v_or3_b32 v44, v{20+4*k}, v{21+4*k}, v{22+4*k}", f"v_bitop3_b32 v44, v44, v{23+4*k}, s{SP0} bitop3:0xa8", f"v_cmp_ne_u32 s[{MK[k]}:{MK[k]+1}], 0, v44")
        a(f"s_mov_b64 exec, s[{MK[3]}:{MK[3]+1}]", "s_waitcnt vmcnt(0)")
        a("v_xor_b32 v32, v58, v32", "v_bitop3_b32 v32, v32, v58, v33 bitop3:0xf6", f"v_cmp_ne_u32 s[{MK[3]}:{MK[3]+1}], 0, v32")
        a(f"s_or_b64 vcc, s[{MK[0]}:{MK[0]+1}], s[{MK[1]}:{MK[1]+1}]", f"s_or_b64 vcc, vcc, s[{MK[2]}:{MK[2]+1}]", f"s_or_b64 vcc, vcc, s[{MK[3]}:{MK[3]+1}]", f"s_cbranch_scc1 {lp}")
        a("s_mov_b64 exec, -1")
    else:
        a(f"global_load_dword v32, v12, s[{P_WS}:{P_WS+1}] sc1", f"global_load_dword v33, v12, s[{P_WS}:{P_WS+1}] offset:1024 sc1")
        a(f"buffer_load_dwordx4 v[20:23], v13, s[{R0}:{R0+3}], s{T1_} offen {UM}")
        a(f"buffer_load_dwordx4 v[24:27], v13, s[{R0}:{R0+3}], s{T5_} offen {UM}")
        a(f"buffer_load_dwordx4 v[28:31], v7, s[{R0}:{R0+3}], s{T3_} offen {UM}")
        guard(a)
        for k in range(3):
            a(f"s_waitcnt vmcnt({2-k})")
            if k == 0: a("v_xor_b32 v32, v58, v32", "v_xor_b32 v33, v58, v33")
            for d in range(4): a(f"v_xor_b32 v{20+4*k+d}, v{(64 if k == 2 else 60)+d}, v{20+4*k+d}")
            a(f"v_or3_b32 v44, v{20+4*k}, v{21+4*k}, v{44 if k else 21}", f"v_or3_b32 v44, v{22+4*k}, v{23+4*k}, v44")
        a(f"v_and_b32 v44, {hex(TAGM)}, v44", "v_or3_b32 v44, v44, v32, v33", "v_cmp_ne_u32 vcc, 0, v44", f"s_cbranch_vccnz {lp}")
    stamp(a, 6)
    a("ds_write_b128 v11, v[20:23]", "ds_write_b128 v11, v[24:27] offset:512", f"ds_write_b128 v10, v[28:31] offset:{2*U_SIZE}")
    a(f"ds_write_b8 v116, v{VONE} offset:{FL_UF}")
    stamp(a, 7)
    gen_wjobs(a)
    a("s_setprio 0")
    a(f"s_lshr_b32 s{T0_}, s{S_B2}, 6", f"s_lshl_b32 s{T0_}, s{T0_}, 9")
    a(f"s_bfe_u32 s{T1_}, s{S_B2}, 0x20004", f"s_lshl_b32 s{T1_}, s{T1_}, 6", f"s_add_u32 s{T0_}, s{T0_}, s{T1_}")
    a(f"s_and_b32 s{T1_}, s{S_B2}, 3", f"s_lshl_b32 s{T1_}, s{T1_}, 4", f"s_add_u32 s{T0_}, s{T0_}, s{T1_}")
    a(f"s_and_b32 s{T1_}, s{S_B2}, 12", f"s_add_u32 s{T0_}, s{T0_}, s{T1_}")
    a(f"s_lshr_b32 s{T1_}, s{S_WAVE}, 1", f"s_lshl_b32 s{T1_}, s{T1_}, 8", f"s_add_u32 s{T0_}, s{T0_}, s{T1_}")
    a(f"s_and_b32 s{T1_}, s{S_WAVE}, 1", f"s_lshl_b32 s{T1_}, s{T1_}, 1", f"s_add_u32 s{T0_}, s{T0_}, s{T1_}")
    a("v_lshrrev_b32 v113, 5, v1", "v_and_b32 v114, 31, v1")
    a(f"v_add_u32 v112, s{T0_}, v113")
    a("v_mul_u32_u24 v115, 1152, v112", "v_lshl_add_u32 v8, v114, 2, v115", "v_lshl_add_u32 v115, v114, 4, v115", "v_lshlrev_b32 v7, 2, v114", "v_lshlrev_b32 v6, 4, v114")
    a(f"v_bfe_u32 v111, v1, 3, 1", f"v_add_u32 v111, s{T0_}, v111", "v_mul_u32_u24 v111, 1152, v111", "v_and_b32 v9, 7, v1", "v_lshl_add_u32 v111, v9, 4, v111")
    srd(a, R0, P_X, XBYTES)
    srd(a, R1, P_WR, 1152)
    a(f"buffer_load_dwordx4 v[10:13], v115, s[{R0}:{R0+3}], 0 offen")
    a(f"buffer_load_dwordx4 v[14:17], v115, s[{R0}:{R0+3}], 0 offen offset:512")
    a(f"buffer_load_dword v18, v8, s[{R0}:{R0+3}], 0 offen offset:1024")
    a(f"buffer_load_dwordx4 v[50:53], v6, s[{R1}:{R1+3}], 0 offen")
    a(f"buffer_load_dwordx4 v[54:57], v6, s[{R1}:{R1+3}], 0 offen offset:512")
    a(f"buffer_load_dword v58, v7, s[{R1}:{R1+3}], 0 offen offset:1024")
    if not PTAG:
        a(f"s_cmp_lt_u32 s{S_I}, 18", "s_cbranch_scc1 KS_L4")
        a(f"s_mul_i32 s{T0_}, s{S_XC}, 14", f"s_add_u32 s{T0_}, s{T0_}, s{S_I}", f"s_mul_i32 s{T0_}, s{T0_}, {CLRP_WG}", f"s_add_u32 s{T0_}, s{T0_}, {hex(WS_PART - 18*CLRP_WG)}")
        a(f"s_add_u32 s{R1}, s{P_WS}, s{T0_}", f"s_addc_u32 s{R1+1}, s{P_WS+1}, 0", f"s_mov_b32 s{R1+2}, {CLRP_WG}", f"s_mov_b32 s{R1+3}, 0x20000")
        a("v_lshlrev_b32 v6, 4, v0", "v_mov_b32 v60, -1", "v_mov_b32 v61, -1", "v_mov_b32 v62, -1", "v_mov_b32 v63, -1")
        for k in range(6):
            a(f"s_movk_i32 s{T0_}, {4096*k}")
            a(f"buffer_store_dwordx4 v[60:63], v6, s[{R1}:{R1+3}], s{T0_} offen sc1")
    a("KS_L4:")
    srd(a, R0, P_WS, 0x240000, WS_ZB1)
    srd(a, R1, P_OUT, XBYTES)
    srd(a, R2_, P_WS, XBYTES, WS_X2)
    srd(a, R3, P_WS, 12288, WS_KEYS)
    a(f"s_not_b32 s{T1_}, s{S_B2}", f"v_xor_b32 v8, s{T1_}, v0")
    a("v_lshrrev_b32 v6, 1, v0", "v_lshlrev_b32 v6, 6, v6", "v_and_b32 v8, 1, v8", "v_lshl_add_u32 v6, v8, 4, v6")
    a(f"s_lshr_b32 s{T0_}, s{S_B2}, 2", f"s_lshl_b32 s{T0_}, s{T0_}, 15", f"s_and_b32 s{T1_}, s{S_B2}, 1", f"s_lshl_b32 s{T1_}, s{T1_}, 14", f"s_add_u32 s{T0_}, s{T0_}, s{T1_}")
    a(f"s_and_b32 s{T1_}, s{S_B2}, 2", f"s_lshl_b32 s{T1_}, s{T1_}, 4", f"s_add_u32 s{T0_}, s{T0_}, s{T1_}")
    a(f"s_lshr_b32 s{T2_}, s{S_B2}, 2", f"s_lshl_b32 s{T2_}, s{T2_}, 12", f"s_and_b32 s{T1_}, s{S_B2}, 3", f"s_lshl_b32 s{T1_}, s{T1_}, 4")
    a(f"s_add_u32 s{T2_}, s{T2_}, s{T1_}", f"s_lshl_b32 s{T1_}, s{S_WAVE}, 10", f"s_add_u32 s{T2_}, s{T2_}, s{T1_}", f"s_add_u32 s{T2_}, s{T2_}, 0x200000")
    a("v_lshlrev_b32 v9, 6, v2")
    if SWZ:
        a(f"s_lshl_b32 s{T1_}, s{S_B2}, 5", f"s_and_b32 s{T3_}, s{T1_}, 0x1f80", f"v_xor_b32 v6, s{T3_}, v6", f"s_and_b32 s{T3_}, s{T1_}, 0x380", f"v_xor_b32 v9, s{T3_}, v9")
        a(f"s_and_b32 s{T3_}, s{T1_}, 0xc00", f"s_xor_b32 s{T2_}, s{T2_}, s{T3_}", f"s_and_b32 s{T1_}, s{S_B2}, 1", f"s_lshl_b32 s{T1_}, s{T1_}, 13", f"s_xor_b32 s{T0_}, s{T0_}, s{T1_}")
    a(f"s_xor_b32 s{T1_}, s{T0_}, 0x2000")
    a(f"s_mul_i32 s{T3_}, s{S_WAVE}, 2304", f"s_add_u32 s{T3_}, s{T3_}, {C_XR}", f"v_lshl_add_u32 v117, v114, 5, s{T3_}", f"v_lshl_add_u32 v110, v114, 3, s{T3_}")
    a(f"s_lshl_b32 s{T3_}, s{S_WAVE}, 9", f"s_add_u32 s{T3_}, s{T3_}, {C_RED}", f"v_lshl_add_u32 v108, v1, 2, s{T3_}", f"v_lshl_add_u32 v109, v1, 4, s{T3_}")
    a(f"s_mov_b32 s{T3_}, 0x02020202", f"v_mul_lo_u32 v118, v113, s{T3_}", "v_add_u32 v118, 0x05040100, v118")
    a(f"v_lshlrev_b32 v8, 2, v0", f"v_add_u32 v8, {C_XR}, v8")
    a(f"s_lshl_b32 s{T3_}, s{S_WAVE}, 6", f"s_add_u32 s{T3_}, s{T3_}, {C_XR + 2048}", f"v_lshl_add_u32 v119, v2, 2, s{T3_}")
    a("s_waitcnt vmcnt(0)")
    X = 20
    for j in range(9): unpack(a, X + 2 * j, 10 + j)
    lds_wait(a, FL_ZDONE + 4, 60, "b4", sleep=1)
    a("s_setprio 3")
    if PFD2 > PFD:
        a(f"s_sub_u32 s{T5_}, s{S_I}, 18", f"s_cmp_ge_u32 s{T5_}, 6", "s_cbranch_scc1 KS_PF3E", f"s_cmp_lg_u32 s{S_WAVE}, 2", "s_cbranch_scc1 KS_PF3E")
        pf_down(a, T5_, 6, PFD, PFD2, 100, 120, "KS_PF3E", R4)
        a("KS_PF3E:")
    stamp2(a, 1)
    if ENV("ZGATE", 1):
        zpoll(a, [f"buffer_load_dwordx4 v[68:71], v{VZ}, s[{R0}:{R0+3}], s{T2_} offen sc1"], list(range(68, 72)), ENV("ZSLEEP", 1))
        if ENV("ZDELAY", 0): a(f"s_sleep {ENV('ZDELAY', 0)}")
    zpoll(a, [f"buffer_load_dwordx4 v[60:63], v6, s[{R0}:{R0+3}], s{T0_} offen sc1",
           f"buffer_load_dwordx4 v[64:67], v6, s[{R0}:{R0+3}], s{T1_} offen sc1",
           f"buffer_load_dwordx4 v[68:71], v9, s[{R0}:{R0+3}], s{T2_} offen sc1"], list(range(60, 72)), ENV("ZSLEEP", 1))
    stamp2(a, 2)
    for k in range(2):
        a(f"ds_write2st64_b32 v8, v{60+4*k}, v{61+4*k} offset0:{4*k} offset1:{9+4*k}")
        a(f"ds_write2st64_b32 v8, v{62+4*k}, v{63+4*k} offset0:{18+4*k} offset1:{27+4*k}")
    a("ds_write2st64_b32 v119, v68, v69 offset0:0 offset1:9")
    a("ds_write2st64_b32 v119, v70, v71 offset0:18 offset1:27")
    a(f"ds_write_b8 v116, v{VONE} offset:{FL_ZF}")
    stamp2(a, 3)
    lds_wait(a, FL_ZF, 60, "b4")
    for k in range(4):
        a(f"ds_read_b128 v[{60+4*k}:{63+4*k}], v117 offset:{1024*(k>>1) + 16*(k&1)}")
    a("ds_read_b64 v[76:77], v110 offset:2048")
    for j in range(9):
        if j % 2 == 0: a(f"s_waitcnt lgkmcnt({4-j//2})")
        a(f"v_perm_b32 v44, v{61+2*j}, v{60+2*j}, v118")
        unpack(a, 46, 44)
        a(f"v_pk_add_f32 v[46:47], v[46:47], v[{X+2*j}:{X+2*j+1}]")
        a(f"v_cvt_pk_bf16_f32 v44, v46, v47")
        unpack(a, X + 2 * j, 44)
    ln_stats(a, X, 40, 42, 44, 46, 48)
    stamp2(a, 4)
    a("v_mov_b32 v60, 0", "v_mov_b32 v61, 0")
    for j in range(9):
        ln_apply_pair(a, X + 2 * j, 40, 42, 44, 10 + j)
        unpack(a, 46, 50 + j)
        a("v_pk_fma_f32 v[60:61], v[44:45], v[46:47], v[60:61]")
        a(f"v_pk_add_f32 v[{X+2*j}:{X+2*j+1}], v[44:45], v[{X+2*j}:{X+2*j+1}]")
    a("v_add_f32 v60, v60, v61")
    red32(a, "v_add_f32", 60, 61)
    a("v_cvt_pk_bf16_f32 v60, v60, v60")
    a("v_ashrrev_i32 v61, 31, v60", "v_or_b32 v61, 0x80000000, v61", "v_xor_b32 v60, v60, v61", "v_and_b32 v60, 0xffff0000, v60")
    a("v_sub_u32 v62, 0x87ff, v112", "v_or_b32 v60, v60, v62", "v_lshl_add_u32 v61, v116, 1, v113", "v_lshlrev_b32 v61, 2, v61")
    a("s_mov_b32 exec_lo, 1", "s_mov_b32 exec_hi, 1")
    a(f"ds_write_b32 v61, v60 offset:{C_KEY}")
    a("s_mov_b64 exec, 1")
    a(f"ds_add_rtn_u32 v62, v{VZ}, v{VONE} offset:{FL_KCNT}")
    a("s_mov_b64 exec, 3")
    a("v_lshlrev_b32 v61, 4, v114", f"s_lshl_b32 s{T0_}, s{S_B2}, 5")
    a(f"ds_read_b128 v[64:67], v61 offset:{C_KEY}")
    a("s_waitcnt lgkmcnt(1)")
    a(f"v_readfirstlane_b32 s{T1_}, v62")
    a(f"s_cmp_lg_u32 s{T1_}, 3", "s_cbranch_scc1 KS_NOKEY")
    a("s_waitcnt lgkmcnt(0)")
    a(f"buffer_store_dwordx4 v[64:67], v61, s[{R3}:{R3+3}], s{T0_} offen sc1")
    a("KS_NOKEY:")
    a("s_mov_b64 exec, -1")
    a(f"v_cvt_pk_bf16_f32 v58, v{X+16}, v{X+17}")
    a("ds_write_b32 v108, v18", "ds_write_b32 v108, v58 offset:256", "ds_read_b128 v[64:67], v109")
    a(f"buffer_store_dwordx4 v[10:13], v115, s[{R2_}:{R2_+3}], 0 offen sc1")
    a(f"buffer_store_dwordx4 v[14:17], v115, s[{R2_}:{R2_+3}], 0 offen offset:512 sc1")
    for j in range(8):
        a(f"v_cvt_pk_bf16_f32 v{50+j}, v{X+2*j}, v{X+2*j+1}")
    a("s_mov_b64 exec, 0xffff")
    a("s_waitcnt lgkmcnt(0)")
    a(f"buffer_store_dwordx4 v[64:67], v111, s[{R2_}:{R2_+3}], 0 offen offset:1024 sc1")
    a("s_mov_b64 exec, 0xffff0000")
    a(f"buffer_store_dwordx4 v[64:67], v111, s[{R1}:{R1+3}], 0 offen offset:1024 sc1")
    a("s_mov_b64 exec, -1")
    a(f"buffer_store_dwordx4 v[50:53], v115, s[{R1}:{R1+3}], 0 offen sc1")
    a(f"buffer_store_dwordx4 v[54:57], v115, s[{R1}:{R1+3}], 0 offen offset:512 sc1")
    stamp2(a, 5)
    a(f"s_cmp_lg_u32 s{T1_}, 3", "s_cbranch_scc1 KS_NOKEY2")
    a("s_waitcnt vmcnt(6)")
    a(f"ds_write_b32 v{VZ}, v{VONE} offset:{FL_KACK}")
    a("KS_NOKEY2:")
    a("s_waitcnt vmcnt(0)")
    a("s_mov_b64 exec, 1")
    a(f"ds_add_rtn_u32 v62, v{VZ}, v{VONE} offset:{FL_F2CNT}")
    a("s_waitcnt lgkmcnt(0)")
    a("v_cmp_eq_u32 vcc, 3, v62", "s_and_b64 exec, exec, vcc", "s_cbranch_execz KS_NOF2")
    a(f"s_lshl_b32 s{T0_}, s2, 4", f"s_add_u32 s{T0_}, s{T0_}, 8192")
    a(f"buffer_store_dword v{VONE}, v{VZ}, s[{R3}:{R3+3}], s{T0_} offen sc1")
    a("KS_NOF2:")
    a("s_mov_b64 exec, -1")
    a("s_setprio 0")
    a(f"s_cmp_lt_u32 s{S_I}, 18", "s_cbranch_scc1 KS_B")
    a("s_waitcnt lgkmcnt(0)")
    endwave(a)
    a("KS_T:")
    a("s_setprio 0")
    a(f"s_cmp_ge_u32 s{S_WAVE}, 10", "s_cbranch_scc1 KS_P")
    a("v_and_b32 v6, 1, v1", "v_subrev_u32 v6, 1, v6")
    a("v_and_b32 v7, 7, v1", "v_lshlrev_b32 v7, 2, v7")
    srd(a, R3, P_WS, 12288, WS_KEYS)
    a(f"s_cmp_eq_u32 s{S_WAVE}, 9", "s_cbranch_scc1 KS_W9")
    a(f"s_cmp_eq_u32 s{S_WAVE}, 8", "s_cbranch_scc1 KS_L2W")
    a(f"s_sub_u32 s{T1_}, s{S_WAVE}, 4", f"s_lshl_b32 s{T0_}, s{T1_}, 10", f"v_lshl_add_u32 v33, v1, 4, s{T0_}", f"s_movk_i32 s{T0_}, 4096")
    a(f"s_lshl_b32 s{T1_}, s{T1_}, 7", "v_lshlrev_b32 v32, 4, v2", "v_lshl_add_u32 v32, v3, 5, v32", f"v_add_u32 v32, s{T1_}, v32")
    lds_wait(a, FL_KACK, 8, "nz", sleep=1)
    a("s_setprio 2")
    if ENV('KDELAY', 20): a(f"s_sleep {ENV('KDELAY', 20)}")
    stamp2(a, 1)
    zpoll(a, [f"buffer_load_dwordx4 v[8:11], v33, s[{R3}:{R3+3}], 0 offen sc1",
           f"buffer_load_dwordx4 v[12:15], v33, s[{R3}:{R3+3}], s{T0_} offen sc1"], list(range(8, 16)), ENV("KSLEEP", 4))
    a(f"ds_write_b32 v{VZ}, v{VONE} offset:{FL_KSEEN}")
    stamp2(a, 2)
    pool = Pool(range(16, 28))
    x = [8, 9, 10, 11]; y = [12, 13, 14, 15]
    for (i, j) in ((0, 1), (2, 3), (0, 2), (1, 3), (1, 2)):
        ce_inlane(a, x, i, j, pool); ce_inlane(a, y, i, j, pool)
    clean8(a, x, pool, 6, rev=True); clean8(a, y, pool, 6, rev=True)
    merge_pair(a, x, y, pool); clean8(a, x, pool, 6)
    for M in MIRRORS:
        merge_mirror(a, x, pool, M); clean8(a, x, pool, 6)
    for i in range(4): a(f"v_mov_b32 v{28+i}, v{x[i]}")
    a("s_mov_b32 exec_lo, 0x00030003", "s_mov_b32 exec_hi, 0x00030003")
    a(f"ds_write_b128 v32, v[28:31] offset:{C_CAND}")
    a("s_mov_b64 exec, -1")
    stamp2(a, 3)
    a("s_setprio 0")
    a("s_branch KS_B")
    a("KS_L2W:")
    srd(a, R2_, P_WS, XBYTES, WS_X2)
    a(f"s_mov_b32 s{T0_}, 0xcccccccc", f"s_mov_b32 s{T1_}, 0xcccccccc", f"s_mov_b32 s{T2_}, 0xf0f0f0f0", f"s_mov_b32 s{T3_}, 0xf0f0f0f0", f"s_movk_i32 s{T4_}, 1152")
    a("v_lshrrev_b32 v34, 3, v1", "v_lshlrev_b32 v34, 4, v34", "v_lshlrev_b32 v33, 4, v2")
    lds_wait(a, FL_KACK, 8, "nz", sleep=1)
    a("s_setprio 2")
    a("KS_L2POLL:")
    a(f"ds_read_b128 v[8:11], v33 offset:{C_CAND}")
    a(f"ds_read_b128 v[12:15], v33 offset:{C_CAND + 256}")
    guard(a)
    a("s_waitcnt lgkmcnt(0)")
    a("v_min3_u32 v16, v8, v9, v10", "v_min3_u32 v17, v11, v12, v13", "v_min3_u32 v16, v16, v14, v15", "v_min_u32 v16, v16, v17", "v_cmp_eq_u32 vcc, 0, v16")
    a("s_cbranch_vccnz KS_L2POLL")
    stamp2(a, 1)
    pool = Pool(range(16, 28))
    x = [8, 9, 10, 11]; y = [12, 13, 14, 15]
    merge_pair(a, x, y, pool); clean8(a, x, pool, 6)
    for li, M in enumerate(MIRRORS):
        merge_mirror(a, x, pool, M)
        if li < 2: clean8(a, x, pool, 6)
    a(f"ds_read_b32 v35, v{VZ} offset:{FL_ROWSOK}")
    a(f"v_cndmask_b32 v30, v{x[0]}, v{x[1]}, s[{T0_}:{T1_}]", f"v_cndmask_b32 v31, v{x[2]}, v{x[3]}, s[{T0_}:{T1_}]", f"v_cndmask_b32 v30, v30, v31, s[{T2_}:{T3_}]")
    a("v_mov_b32_dpp v30, v30 row_shr:8 row_mask:0xf bank_mask:0xc")
    a("v_and_b32 v31, 0x7ff, v30", "v_sub_u32 v31, 2047, v31", f"v_mad_u32_u24 v31, v31, s{T4_}, v34")
    a("s_waitcnt lgkmcnt(0)")
    a("v_cmp_ne_u32 vcc, 0, v35", "s_cbranch_vccnz KS_RW1")
    lds_wait(a, FL_ROWSOK, 35, "nz")
    a("KS_RW1:")
    for k in range(9):
        a(f"s_mov_b32 m0, {C_XR + 896*k}")
        a(f"buffer_load_dwordx4 v31, s[{R2_}:{R2_+3}], 0 offen offset:{128*k} sc1 lds")
    a(f"ds_write_b32 v7, v30 offset:{C_SEL}")
    stamp2(a, 2)
    a("s_waitcnt vmcnt(0)")
    a(f"ds_write_b32 v{VZ}, v{VONE} offset:{FL_XRDY}")
    stamp2(a, 3)
    a("s_setprio 0")
    a("s_branch KS_B")
    a("KS_W9:")
    a("v_lshlrev_b32 v33, 4, v1", f"s_movk_i32 s{T0_}, 0x2000")
    srd(a, R2_, P_WS, XBYTES, WS_X2)
    srd(a, R0, P_WS, 0x240000, WS_ZB1)
    srd(a, R1, P_X, XBYTES)
    a("v_bfe_u32 v43, v1, 2, 3", f"s_lshl_b32 s{T1_}, s{S_BLK}, 3", f"v_add_u32 v43, s{T1_}, v43")
    a("v_bfe_u32 v40, v43, 4, 1", "v_and_b32 v41, 3, v1", "v_lshl_add_u32 v40, v40, 2, v41", "v_lshlrev_b32 v40, 2, v40")
    a("v_lshrrev_b32 v41, 5, v43", "v_lshlrev_b32 v41, 4, v41", "v_and_b32 v42, 15, v43", "v_add_u32 v41, v41, v42")
    lds_wait(a, FL_KSEEN, 8, "nz", sleep=1)
    if ENV('F2DELAY', 8): a(f"s_sleep {ENV('F2DELAY', 8)}")
    a("s_setprio 2")
    zpoll(a, [f"buffer_load_dword v{8+k}, v33, s[{R3}:{R3+3}], s{T0_} offen offset:{1024*k} sc1" for k in range(4)], list(range(8, 12)), ENV("F2SLEEP", 4))
    a(f"ds_write_b32 v{VZ}, v{VONE} offset:{FL_ROWSOK}")
    stamp2(a, 1)
    a("s_setprio 0")
    lds_wait(a, C_SEL, 12, "nz", addr=7, sleep=1)
    stamp2(a, 2)
    a(f"ds_read_b32 v19, v40 offset:{C_SEL}")
    a("s_waitcnt lgkmcnt(0)")
    a("v_and_b32 v14, 0x7ff, v19", "v_sub_u32 v14, 2047, v14")
    a("v_mul_u32_u24 v23, 1152, v14", "v_lshl_add_u32 v23, v41, 1, v23")
    a(f"buffer_load_ushort v20, v23, s[{R2_}:{R2_+3}], 0 offen sc1")
    a(f"buffer_load_ushort v17, v23, s[{R1}:{R1+3}], 0 offen")
    a("v_lshrrev_b32 v15, 9, v14", "v_bfe_u32 v16, v14, 6, 2", "v_lshl_add_u32 v15, v15, 2, v16", "v_bfe_u32 v16, v14, 2, 2", "v_lshl_add_u32 v15, v15, 2, v16")
    a("v_bfe_u32 v16, v14, 4, 1")
    a("v_bfe_u32 v24, v14, 8, 1", "v_and_b32 v25, 3, v14", "v_lshl_add_u32 v24, v24, 2, v25", "v_lshlrev_b32 v24, 1, v24")
    a("v_bfe_u32 v25, v14, 5, 1", "v_lshl_add_u32 v24, v25, 5, v24")
    a("v_lshl_add_u32 v25, v15, 1, v16", "v_lshl_add_u32 v25, v25, 14, v24")
    a("v_lshrrev_b32 v26, 1, v41", "v_lshl_add_u32 v25, v26, 6, v25", "v_xor_b32 v26, v41, v16", "v_not_b32 v26, v26", "v_and_b32 v26, 1, v26", "v_lshl_add_u32 v25, v26, 4, v25")
    a("v_lshl_add_u32 v26, v15, 12, v24", "v_lshl_add_u32 v26, v16, 4, v26", "v_lshl_add_u32 v26, v41, 6, v26", f"v_add_u32 v26, {0x200000 - 512*64}, v26")
    if SWZ:
        a("v_lshl_add_u32 v27, v16, 6, v15", "v_lshlrev_b32 v27, 7, v27", "v_xor_b32 v25, v27, v25", "v_and_b32 v27, 0xf80, v27", "v_xor_b32 v26, v27, v26")
    a("v_cmp_gt_u32 vcc, 0x200, v41", "v_cndmask_b32 v25, v26, v25, vcc")
    a(f"buffer_load_ushort v18, v25, s[{R0}:{R0+3}], 0 offen sc1")
    srd(a, R2_, P_WS, 64, WS_IDX)
    a("v_ashrrev_i32 v22, 31, v19", "v_not_b32 v22, v22", "v_or_b32 v22, 0x80000000, v22", "v_xor_b32 v22, v19, v22", "v_and_b32 v22, 0xffff0000, v22")
    a(f"v_mul_f32 v22, {f32(-LOG2E)}, v22", "v_exp_f32 v22, v22", "v_add_f32 v22, 1.0, v22", "v_rcp_f32 v22, v22")
    a("v_cvt_pk_bf16_f32 v22, v22, v22", "v_lshlrev_b32 v22, 16, v22")
    a("v_and_b32 v14, 31, v1", "v_lshlrev_b32 v14, 4, v14")
    a("s_waitcnt vmcnt(0)")
    a("v_lshlrev_b32 v17, 16, v17", "v_lshlrev_b32 v18, 16, v18", "v_add_f32 v17, v17, v18", "v_cvt_pk_bf16_f32 v17, v17, v17")
    a("v_and_b32 v21, 0xffff0000, v17", "v_lshlrev_b32 v20, 16, v20")
    a(f"ds_write_b128 v14, v[20:23] offset:{C_SIDE}")
    a("s_cmp_lg_u32 s2, 0", "s_cbranch_scc1 KS_W9E")
    a(f"buffer_store_dword v12, v7, s[{R2_}:{R2_+3}], 0 offen")
    a("KS_W9E:")
    a("s_waitcnt lgkmcnt(0)")
    stamp2(a, 3)
    endwave(a)
    a("KS_B:")
    srd(a, R0, P_WS, PART_BYTES, WS_PART)
    a("v_bfe_u32 v16, v1, 2, 2", "v_lshl_add_u32 v16, v3, 3, v16", "v_mul_u32_u24 v16, 1152, v16", "v_and_b32 v17, 3, v1", "v_lshl_add_u32 v16, v17, 3, v16")
    a(f"s_lshl_b32 s{T0_}, s{S_WAVE}, 7", f"s_add_u32 s{T0_}, s{T0_}, {C_DOWN}", f"v_add_u32 v16, s{T0_}, v16")
    if PTAG: a("v_lshlrev_b32 v18, 2, v17", f"ds_read_b32 v24, v18 offset:{FL_NONCE}", f"s_movk_i32 s{T2_}, 0xff")
    lds_wait(a, FL_DOWN, 17, "b4")
    if PTAG:
        for d in range(1, 4): a(f"v_lshrrev_b32 v{24+d}, {8*d}, v24")
    WTD = 48
    for jt in range(4):
        a(f"ds_read_b64_tr_b16 v[{WTD+4*jt}:{WTD+4*jt+1}], v16 offset:{32*jt}")
        a(f"ds_read_b64_tr_b16 v[{WTD+4*jt+2}:{WTD+4*jt+3}], v16 offset:{32*jt + 4608}")
    a("v_and_b32 v16, 7, v2", "v_lshlrev_b32 v16, 6, v16", "v_lshl_add_u32 v16, v3, 4, v16")
    a(f"s_mul_i32 s{T0_}, s{S_BLK}, {PROW}", f"s_lshl_b32 s{T1_}, s{S_WAVE}, 11", f"s_add_u32 s{T0_}, s{T0_}, s{T1_}")
    a("v_lshlrev_b32 v17, 4, v1")
    a("s_waitcnt lgkmcnt(0)")
    a("s_barrier")
    a("s_barrier")
    a(f"ds_read_b128 v[20:23], v16 offset:{C_ACT}")
    a("s_waitcnt lgkmcnt(0)")
    for j in range(4):
        a(f"v_mfma_f32_16x16x32_bf16 v[{32+4*j}:{35+4*j}], v[20:23], v[{WTD+4*j}:{WTD+4*j+3}], 0")
    for j in (0, 2):
        for r in range(4): a(f"v_permlane32_swap_b32 v{32+4*j+r}, v{36+4*j+r}")
        for r in range(4): a(f"v_bfi_b32 v{32+4*j+r}, s{T2_}, v{24+r}, v{32+4*j+r}" if PTAG else f"v_min_u32 v{32+4*j+r}, -2, v{32+4*j+r}")
        a(f"buffer_store_dwordx4 v[{32+4*j}:{35+4*j}], v17, s[{R0}:{R0+3}], s{T0_} offen offset:{512*j} sc1")
    stamp2(a, 8)
    a("s_waitcnt vmcnt(0)", "s_barrier")
    endwave(a)
    a("KS_G0:")
    a(f"ds_write_b8 v15, v{VONE} offset:{FL_G+4}")
    a("s_setprio 0")
    a("KS_G:")
    a(f"s_mov_b32 s{SP0}, 0x05040100", f"s_mov_b32 s{SP1}, 0x07060302")
    a("s_waitcnt vmcnt(0)")
    stamp(a, 5)
    g_addr_setup(a, 46)
    SG = eval(os.environ.get("SG", "[0,0,0,0]"))
    if any(SG):
        a(f"s_mul_i32 s{T0_}, s{S_ROLE}, {32*9216}", f"s_lshl_b32 s{T1_}, s{S_BLK}, 6", f"s_add_u32 s{T0_}, s{T0_}, s{T1_}")
        a(f"s_add_u32 s{R0}, s{P_GATE}, s{T0_}", f"s_addc_u32 s{R0+1}, s{P_GATE+1}, 0", f"s_add_u32 s{R0+2}, s{P_UP}, s{T0_}", f"s_addc_u32 s{R0+3}, s{P_UP+1}, 0")
        cnt = sum(SG[g] << (8 * g) for g in range(4))
        a(f"s_lshl_b32 s{T1_}, s{S_G}, 3", f"s_lshr_b32 s{T1_}, {hex(cnt)}, s{T1_}", f"s_and_b32 s{T1_}, s{T1_}, 0xff", "s_cbranch_scc0 KS_SGE")
        a("KS_SGL:")
        for r in range(8):
            a(f"s_load_dword s{R1}, s[{R0}:{R0+1}], {r*9216}", f"s_load_dword s{R1+1}, s[{R0+2}:{R0+3}], {r*9216}")
        a(f"s_add_u32 s{R0}, s{R0}, {8*9216}", f"s_addc_u32 s{R0+1}, s{R0+1}, 0", f"s_add_u32 s{R0+2}, s{R0+2}, {8*9216}", f"s_addc_u32 s{R0+3}, s{R0+3}, 0")
        a(f"s_sub_u32 s{T1_}, s{T1_}, 1", f"s_cmp_lg_u32 s{T1_}, 0", "s_cbranch_scc1 KS_SGL")
        a("KS_SGE:")
        a("s_waitcnt lgkmcnt(0)")
        stamp(a, 8)
    TR = {1: (FL_PARAM, "nz"), 2: (FL_UF, "b4"), 3: (FL_ZF, "b4"), 4: (FL_KACK, "nz"), 5: (FL_KSEEN, "nz"), 6: (FL_ZDONE + 4, "b4")}
    for t in sorted(set(GT)):
        l = newlabel("GT")
        mask = sum(1 << g for g in range(4) if GT[g] == t)
        if mask != 15: a(f"s_lshr_b32 s{T0_}, {mask}, s{S_G}", f"s_bitcmp1_b32 s{T0_}, 0", f"s_cbranch_scc0 {l}")
        lds_wait(a, TR[t][0], 10, TR[t][1], sleep=2)
        if t >= 3: a("s_setprio 1")
        a(f"{l}:")
    g_loads(a, 46, range(4))
    stamp(a, 6)
    def transpose(src, dst):
        for j in range(4):
            for p in range(4):
                lo = src + 2 * (2 * p) + (j >> 1); hi = src + 2 * (2 * p + 1) + (j >> 1)
                a(f"v_perm_b32 v{dst+4*j+p}, v{hi}, v{lo}, s{SP0 + (j & 1)}")
    W = GW
    a(f"s_bitcmp1_b32 s{S_G}, 0", "s_cbranch_scc1 KS_G4")
    g_loads(a, 46, [4])
    a("KS_G4:")
    a(f"v_mov_b32 v6, s{S_G}", f"ds_write_b8 v6, v{VONE} offset:{FL_GISS}")
    a("s_waitcnt vmcnt(0)")
    stamp(a, 7)
    for ks in range(5): transpose(W + 16 * ks, W + 16 * ks - 16)
    GACC = 112
    a(f"s_lshl_b32 s{T0_}, s{S_ROLE}, 9", f"s_add_u32 s{T0_}, s{T0_}, {C_XR}", "v_and_b32 v6, 7, v2", f"v_lshl_add_u32 v7, v6, 4, s{T0_}", "v_lshl_add_u32 v7, v3, 7, v7")
    a(f"s_lshl_b32 s{T0_}, s{S_G}, 6", f"v_add_u32 v11, s{T0_}, v1")
    a("v_lshrrev_b32 v8, 5, v11", "v_and_b32 v9, 31, v11")
    a("v_and_b32 v10, 3, v9", "v_lshlrev_b32 v10, 9, v10")
    a("v_lshrrev_b32 v9, 2, v9", "v_lshl_add_u32 v10, v9, 4, v10")
    a("v_lshrrev_b32 v9, 2, v8", "v_lshl_add_u32 v10, v9, 8, v10")
    a("v_and_b32 v9, 3, v8", "v_lshl_add_u32 v10, v9, 2, v10")
    a("v_lshlrev_b32 v11, 1, v11")
    a(f"s_lshl_b32 s{T0_}, s{S_G}, 11", f"v_lshl_add_u32 v9, v1, 4, s{T0_}")
    lds_wait(a, C_SEL, 12, "nz", sleep=2)
    a("s_setprio 2")
    lds_wait(a, FL_XRDY, 12, "nz")
    stamp2(a, 1)
    for ks in range(5):
        a(f"ds_read_b128 v[{12+4*ks}:{15+4*ks}], v7 offset:{512*ks}")
    for ks in range(5):
        if ks == 4: a(f"s_bitcmp1_b32 s{S_G}, 0", "s_cbranch_scc1 KS_G5")
        a(f"s_waitcnt lgkmcnt({4-ks})")
        for j in range(4):
            c = "0" if ks == 0 else f"v[{GACC+4*j}:{GACC+4*j+3}]"
            a(f"v_mfma_f32_16x16x32_bf16 v[{GACC+4*j}:{GACC+4*j+3}], v[{12+4*ks}:{15+4*ks}], v[{32+16*ks+4*j}:{35+16*ks+4*j}], {c}")
    a("KS_G5:")
    a("s_mov_b32 exec_lo, -1", "s_mov_b32 exec_hi, 0")
    a.flush(6)
    for j in range(4):
        a(f"ds_write_b128 v9, v[{GACC+4*j}:{GACC+4*j+3}] offset:{C_RED + 512*j}")
    a("s_mov_b64 exec, -1")
    a("s_waitcnt lgkmcnt(0)", "s_barrier")
    stamp2(a, 2)
    for w in range(4):
        a(f"ds_read_b32 v{32+2*w}, v10 offset:{C_RED + 2048*w}")
        a(f"ds_read_b32 v{33+2*w}, v10 offset:{C_RED + 2048*w + 128}")
    a("s_waitcnt lgkmcnt(4)")
    a("v_pk_add_f32 v[32:33], v[32:33], v[34:35]")
    a("s_waitcnt lgkmcnt(0)")
    a("v_pk_add_f32 v[36:37], v[36:37], v[38:39]")
    a("v_pk_add_f32 v[32:33], v[32:33], v[36:37]")
    a("v_cvt_pk_bf16_f32 v34, v32, v33")
    unpack(a, 32, 34)
    a(f"v_mul_f32 v34, {f32(-LOG2E)}, v32", "v_exp_f32 v34, v34", "v_add_f32 v34, 1.0, v34", "v_rcp_f32 v34, v34", "v_mul_f32 v34, v32, v34")
    a("v_cvt_pk_bf16_f32 v34, v34, v34", "v_lshlrev_b32 v34, 16, v34")
    a("v_mul_f32 v34, v34, v33", "v_cvt_pk_bf16_f32 v34, v34, v34")
    a(f"ds_write_b16 v11, v34 offset:{C_ACT}")
    a("s_waitcnt lgkmcnt(0)")
    a("s_barrier")
    a("s_branch KS_P2")
    a("KS_P:")
    srd(a, R1, P_DOWN, F * D * 2)
    a(f"s_sub_u32 s{T2_}, s{S_WAVE}, 10", "v_lshlrev_b32 v6, 4, v1", f"s_mul_i32 s{T0_}, s{S_BLK}, 36864", f"s_mul_i32 s{T1_}, s{T2_}, 18432", f"s_add_u32 s{T0_}, s{T0_}, s{T1_}", f"s_add_u32 s{T1_}, s{T1_}, {C_DOWN}")
    a(f"s_lshl_b32 s{T2_}, s{T2_}, 1", f"v_mov_b32 v7, s{T2_}", f"v_mov_b32 v8, s{S_ONES}")
    TR[7] = (FL_GISS, "b4")
    if DT: lds_wait(a, TR[DT][0], 10, TR[DT][1], sleep=2)
    a("s_setprio 1")
    stamp2(a, 1)
    for k in range(18):
        if k % 4 == 0:
            a(f"s_add_u32 m0, s{T1_}, {1024*k}")
            if k: a(f"s_add_u32 s{T0_}, s{T0_}, 4096")
        a(f"buffer_load_dwordx4 v6, s[{R1}:{R1+3}], s{T0_} offen offset:{1024*(k&3)} lds")
    a("s_waitcnt vmcnt(0)")
    stamp2(a, 2)
    a(f"ds_write_b16 v7, v8 offset:{FL_DOWN}")
    a("s_setprio 0")
    a("s_waitcnt lgkmcnt(0)")
    a("s_barrier")
    a("s_barrier")
    a("s_setprio 2")
    a("KS_P2:")
    a(f"s_sub_u32 s{S_G}, s{S_WAVE}, 10")
    srd(a, R0, P_WS, PART_BYTES, WS_PART)
    srd(a, R1, P_OUT, XBYTES)
    a("v_lshrrev_b32 v8, 3, v1", f"v_mul_u32_u24 v8, {PROW}, v8", "v_and_b32 v9, 7, v1", "v_lshl_add_u32 v8, v9, 4, v8")
    a(f"s_mul_i32 s{T0_}, s{S_G}, {24*PROW}", f"s_lshl_b32 s{T1_}, s{S_BLK}, 7", f"s_add_u32 s{T0_}, s{T0_}, s{T1_}", f"s_add_u32 s{T1_}, s{T0_}, {8*PROW}", f"s_add_u32 s{T2_}, s{T0_}, {16*PROW}")
    a(f"s_lshl_b32 s{T3_}, s{S_G}, 7", f"v_lshl_add_u32 v6, v9, 4, s{T3_}", "v_lshl_add_u32 v6, v3, 2, v6")
    a(f"v_lshlrev_b32 v12, 2, v1", f"v_add_u32 v12, {C_RED2}, v12", "v_lshlrev_b32 v13, 4, v1")
    if PTAG:
        a("v_and_b32 v14, 12, v12", f"ds_read_b32 v24, v14 offset:{FL_NONCE}", "s_waitcnt lgkmcnt(0)")
        for d in range(1, 4): a(f"v_lshrrev_b32 v{24+d}, {8*d}, v24")
    a("s_barrier")
    stamp2(a, 3)
    if PTAG:
        lp = newlabel("PP"); l1 = newlabel("PPE")
        a(f"s_branch {l1}", f"{lp}:", "s_sleep 1", f"{l1}:")
        for k in range(3): a(f"buffer_load_dwordx4 v[{32+4*k}:{35+4*k}], v8, s[{R0}:{R0+3}], s{T0_+k} offen sc1")
        guard(a)
        for k in range(3):
            a(f"s_waitcnt vmcnt({2-k})")
            for d in range(4):
                t = 44 + (d & 1)
                a(f"v_xor_b32 v{t}, v{24+d}, v{32+d}" if k == 0 and d < 2 else f"v_bitop3_b32 v{t}, v{t}, v{24+d}, v{32+4*k+d} bitop3:0xf6")
        a("v_or_b32 v44, v44, v45", "v_and_b32 v44, 0xff, v44", "v_cmp_ne_u32 vcc, 0, v44", f"s_cbranch_vccnz {lp}")
    else: zpoll(a, [f"buffer_load_dwordx4 v[{32+4*k}:{35+4*k}], v8, s[{R0}:{R0+3}], s{T0_+k} offen sc1" for k in range(3)], list(range(32, 44)), 1)
    stamp2(a, 4)
    a("v_pk_add_f32 v[32:33], v[32:33], v[36:37]", "v_pk_add_f32 v[34:35], v[34:35], v[38:39]")
    a("v_pk_add_f32 v[32:33], v[32:33], v[40:41]", "v_pk_add_f32 v[34:35], v[34:35], v[42:43]")
    for r in range(4): a(f"v_add_f32_dpp v{32+r}, v{32+r}, v{32+r} row_ror:8 {DPPM}")
    a("v_permlane16_swap_b32 v32, v33", "v_permlane16_swap_b32 v34, v35")
    a("v_add_f32 v32, v32, v33", "v_add_f32 v34, v34, v35")
    a("v_permlane32_swap_b32 v32, v34")
    a("v_add_f32 v32, v32, v34")
    a(f"ds_write_b32 v6, v32 offset:{C_RED2}")
    a("s_waitcnt lgkmcnt(0)", "s_barrier")
    a(f"s_cmp_lg_u32 s{S_G}, 0", "s_cbranch_scc1 KS_PEND")
    a("s_mov_b32 exec_lo, -1", "s_mov_b32 exec_hi, 0")
    for g in range(3):
        a(f"ds_read2_b32 v[{32+2*g}:{33+2*g}], v12 offset0:{64*g} offset1:{64*g + 32}")
    a(f"ds_read_b128 v[40:43], v13 offset:{C_SIDE}")
    a("s_waitcnt lgkmcnt(0)")
    a("v_pk_add_f32 v[32:33], v[32:33], v[34:35]", "v_pk_add_f32 v[32:33], v[32:33], v[36:37]", "v_add_f32 v8, v32, v33")
    a("v_cvt_pk_bf16_f32 v8, v8, v8", "v_lshlrev_b32 v8, 16, v8")
    a("v_mul_f32 v8, v8, v42", "v_cvt_pk_bf16_f32 v8, v8, v8", "v_lshlrev_b32 v8, 16, v8")
    a("v_add_f32 v8, v8, v40", "v_cvt_pk_bf16_f32 v8, v8, v8", "v_lshlrev_b32 v8, 16, v8")
    a("v_add_f32 v8, v8, v41", "v_cvt_pk_bf16_f32 v8, v8, v8")
    a(f"buffer_store_short v8, v43, s[{R1}:{R1+3}], 0 offen")
    a("KS_PEND:")
    stamp_end(a)
    spin_end(a)
    a("KS_ABORT:")
    a("KS_END:")
    a("s_endpgm")
    return f""".amdhsa_kernel {label}
  .amdhsa_next_free_vgpr 128
  .amdhsa_next_free_sgpr {NSGPR}
  .amdhsa_accum_offset 128
  .amdhsa_group_segment_fixed_size 0
  .amdhsa_kernarg_size 136
  .amdhsa_user_sgpr_count 2
  .amdhsa_user_sgpr_kernarg_segment_ptr 1
  .amdhsa_system_sgpr_workgroup_id_x 1
  .amdhsa_float_denorm_mode_32 3
.end_amdhsa_kernel
"""

def main():
    hdr = open(f"/code/{NAME}.s.ref").read().split("; Override launch geometry")[0]
    out = hdr
    out += f"; @launch grid=(256,1,1) block=(1024,1,1) lds={LDS_BYTES}\n"
    out += '.amdgcn_target "amdgcn-amd-amdhsa--gfx950"\n.text\n'
    a = Asm()
    d = gen(a)
    out += a.text()
    out += '.section .rodata,"a"\n.p2align 6\n' + d
    path = sys.argv[1] if len(sys.argv) > 1 else "ks.s"
    open(path, "w").write(out)
    print("wrote", path, len(out))

if __name__ == "__main__":
    main()
```

```python
import sys, struct, math, os
sys.path.insert(0, "gen")
from asmlib import Asm

NAME = "sequential_preLN__ssm_conv_s4__moe_arch_mod__prompt"
L, D, N, F = 2048, 576, 128, 4608
XBYTES = L * D * 2
WS_UT = 0x000000
WS_X2 = 0x3C0000
WS_ZB1 = 0x600000
WS_ZB2 = 0x800000
WS_KEYS = 0x840000
WS_PART = 0x850000
WS_CLR, CLR_WG = 0x600000, 18560
CLRP_WG = 23744
WS_FLAG1 = 0xB00000
TAGM = 0x00070007
WS_IDX = 0xB10000
WS_KT = 0xB20000
WS_DBG = 0xC00000
XCL = int(os.environ.get("XCL", "2"))
if XCL == 1: WS_CLR, CLR_WG = WS_X2, 36992
if XCL == 2: WS_X2 = WS_UT
NOCLR = int(os.environ.get("NOCLR", "0"))
if NOCLR == 1: WS_CLR, CLR_WG = WS_ZB2, 2176
if NOCLR >= 2: WS_CLR = WS_ZB2
if NOCLR == 2: WS_PART = 0x1000000
WSB = int(os.environ.get("WSB", "0")) << 20
WS_UT += WSB; WS_X2 += WSB; WS_ZB1 += WSB; WS_ZB2 += WSB; WS_KEYS += WSB; WS_PART += WSB; WS_CLR += WSB; WS_FLAG1 += WSB; WS_IDX += WSB; WS_KT += WSB
WS_STAMP = 0x8000000
PART_BYTES = 144 * (4608 * 4 + 128)
C_FL, C_CAND, C_SEL, C_KEY, C_PAR, C_ACT, C_SIDE, C_RED2 = 0, 256, 768, 800, 832, 1024, 1536, 2048
C_U, U_SIZE = 3072, 4672
C_LNB = C_U + 3 * U_SIZE
C_XR = C_LNB
C_RED = C_LNB + 9280
G_BASE, G_SIZE = 35840, 36672
C_STG = G_BASE + 2 * G_SIZE + 36864
LDS_BYTES = C_STG + 8192
FL_LN1, FL_LNACK, FL_KCNT, FL_UF, FL_ZF, FL_KACK, FL_ROWSOK, FL_XRDY, FL_PARAM, FL_DOWN, FL_ZDONE = 0, 8, 12, 16, 20, 24, 28, 32, 36, 40, 48
FL_G = 64
FL_S6 = 160
FL_ZISS = 240
FL_F2CNT, FL_INIT, FL_CLROK, FL_GISS, FL_KSEEN, FL_UTOK, FL_PRE, FL_NONCE = 176, 180, 188, 192, 196, 200, 208, 224
KG_ROW = 544
KG_T = [0, 16 * KG_ROW, 32 * KG_ROW, 41 * KG_ROW]
R_WS3 = 0
R_WS5 = R_WS3 + 193 * 16
R_WS7 = R_WS5 + 193 * 16
R_WS9 = R_WS7 + 128 * 16
R_RED = 10752
R2 = 31232
T_TAB = R2
T_DRE = R2 + 1296
T_DRO = T_DRE + 1280 + 64
T_G3 = T_DRO + 1280
T_G5 = T_G3 + 256
T_G7E = T_G5 + 256
T_G7O = T_G7E + 192
T_G9E = T_G7O + 192
T_G9O = T_G9E + 192
assert T_G9O + 192 <= G_SIZE and R_WS9 + 129 * 16 <= R_RED and R_RED + 13 * 1024 <= R2 and 57 * KG_ROW <= R2
IDX_ZERO, IDX_DUMMY = 641, 642
C_DOWN = G_BASE + 2 * G_SIZE

def f32(x): return "0x%08x" % struct.unpack("<I", struct.pack("<f", x))[0]
def f32v(x): return struct.unpack("<f", struct.pack("<f", x))[0]
LOG2E = math.log2(math.e)
LOG2E_HI = f32v(LOG2E); LOG2E_LO = LOG2E - LOG2E_HI
INV2PI = 1.0 / (2 * math.pi)
INV2PI_HI = f32v(INV2PI); INV2PI_LO = INV2PI - INV2PI_HI
DPPM = "row_mask:0xf bank_mask:0xf"
ENV = lambda k, d: int(os.environ.get(k, str(d)))
STAMP = ENV("STAMP", 0)
DBG = ENV("DBG", 0)
GUARD = 1 << 19
XP = ENV("XP", 0)
KOFF = ENV("KOFF", 1)
PTAG = ENV("PTAG", 1)
PE = ENV("PE", -1)
SN = ENV("SN", 0)
UL = ENV("UL", 0)
SWU = ENV("SWU", 1); SWZ = ENV("SWZ", 1); PROW = 18432 + 128 * ENV("SWP", 1)
MOD = lambda k, d="sc1": os.environ.get(k, d).replace("_", " ")

P_X, P_ARE, P_LDT, P_DSK, P_WR, P_GATE, P_UP, P_DOWN, P_OUT, P_DBG, P_WS = 4, 6, 18, 20, 24, 26, 28, 30, 32, 34, 36
S_WAVE, S_GUARD, S_XC, S_I = 38, 39, 40, 41
R0, R1, R2_, R3, R4 = 64, 68, 72, 76, 80
S_ONES, S_GB, S_ROLE, S_G, S_CH, S_BLK, S_B2 = 84, 85, 86, 87, 88, 89, 90
T0_, T1_, T2_, T3_, T4_, T5_ = 92, 93, 94, 95, 96, 97
SP0, SP1 = 98, 99
NSGPR = 100

def srd(a, d, base, nbytes, off=0):
    if off:
        a(f"s_add_u32 s{d}, s{base}, {hex(off)}", f"s_addc_u32 s{d+1}, s{base+1}, 0")
    else:
        a(f"s_mov_b32 s{d}, s{base}", f"s_mov_b32 s{d+1}, s{base+1}")
    a(f"s_mov_b32 s{d+2}, {hex(nbytes)}", f"s_mov_b32 s{d+3}, 0x20000")

def red16(a, op, v):
    for r in (8, 4, 2, 1):
        a(f"{op}_dpp v{v}, v{v}, v{v} row_ror:{r} {DPPM}")
def red32(a, op, v, t):
    red16(a, op, v)
    a(f"v_mov_b32 v{t}, v{v}", f"v_permlane16_swap_b32 v{v}, v{t}", f"{op} v{v}, v{v}, v{t}")
def red64x2(a, op1, v1, t1, op2, v2, t2):
    for r in (8, 4, 2, 1):
        a(f"{op1}_dpp v{v1}, v{v1}, v{v1} row_ror:{r} {DPPM}", f"{op2}_dpp v{v2}, v{v2}, v{v2} row_ror:{r} {DPPM}")
    for ins in ("v_permlane16_swap_b32", "v_permlane32_swap_b32"):
        a(f"v_mov_b32 v{t1}, v{v1}", f"v_mov_b32 v{t2}, v{v2}", f"{ins} v{v1}, v{t1}", f"{ins} v{v2}, v{t2}")
        a(f"{op1} v{v1}, v{v1}, v{t1}", f"{op2} v{v2}, v{v2}, v{t2}")

SPIN = eval(os.environ.get("SPIN", "None"))
def spin_rec(a, ph, i):
    if not SPIN or SPIN[1:] != (ph, i): return
    a("s_memrealtime s[46:47]")
def spin_end(a):
    if not SPIN: return
    lo, hi = eval(os.environ.get("SPINI", "(0,32)"))
    a("KS_SPIN:")
    if SPIN[2] == 9: a("s_memrealtime s[46:47]")
    a(f"s_sub_u32 s48, s{S_I}, {lo}", f"s_cmp_ge_u32 s48, {hi-lo}", "s_cbranch_scc1 KS_END")
    a(f"s_lshr_b32 s48, {hex(SPIN[0])}, s{S_WAVE}", "s_bitcmp1_b32 s48, 0", "s_cbranch_scc0 KS_END")
    a("s_mov_b64 exec, -1", "v_mov_b32 v4, 0")
    a("KS_SP0:")
    a(f"global_load_dword v8, v4, s[{P_DBG}:{P_DBG+1}] offset:64 sc1", "s_waitcnt vmcnt(0) lgkmcnt(0)", "v_readfirstlane_b32 s44, v8", "s_cmp_eq_u32 s44, 0", "s_cbranch_scc1 KS_SP0")
    if SPIN[2] == -1: a("s_mov_b32 s46, s44")
    a("s_sub_u32 s48, s46, s44", "s_add_u32 s48, s48, 200")
    if ENV("SPINMIN", 0): a(f"s_sub_u32 s48, {ENV('SPINMIN', 0)}, s48")
    a("s_min_u32 s48, s48, 3000", "s_lshl_b32 s48, s48, 2", "s_add_u32 s48, s48, 2000")
    a("SPINL:", "s_sleep 1", "s_memrealtime s[50:51]", "s_waitcnt lgkmcnt(0)", "s_sub_u32 s50, s50, s44", "s_cmp_lt_u32 s50, s48", "s_cbranch_scc1 SPINL")
def stamp_begin(a):
    if SPIN: a("s_memrealtime s[46:47]")
    if not STAMP: return
    a("s_memrealtime s[44:45]")
    for i in range(1, 9): a(f"s_mov_b32 s{44+2*i}, 0")
def cstamp(a, i):
    if STAMP == 9: a(f"s_memtime s[{44+2*i}:{45+2*i}]")
def kstamp(a, i):
    if STAMP == 7: a(f"s_memtime s[{44+2*i}:{45+2*i}]")
def stamp(a, i, ph=1):
    spin_rec(a, ph, i)
    if ph == 2 and STAMP not in (2, 3): return
    if STAMP == 7 and i == 1: return kstamp(a, 1)
    if not STAMP or STAMP in (7, 9): return
    assert 1 <= i <= 8
    a(f"{'s_memtime' if STAMP == 8 else 's_memrealtime'} s[{44+2*i}:{45+2*i}]")
def stamp2(a, i):
    stamp(a, i, 2)
def stamp_end(a):
    if not STAMP: return
    a("s_waitcnt vmcnt(0) lgkmcnt(0)")
    a("s_memrealtime s[62:63]")
    a(f"s_lshl_b32 s43, s2, 4", f"s_add_u32 s43, s43, s{S_WAVE}", "s_lshl_b32 s43, s43, 6", f"s_add_u32 s43, s43, {hex(WS_STAMP)}")
    a("s_mov_b64 exec, 1")
    a("s_waitcnt lgkmcnt(0)")
    a("v_mov_b32 v1, s43")
    for i in range(10): a(f"v_mov_b32 v{4+i}, s{44+2*i}")
    a(f"global_store_dwordx4 v1, v[4:7], s[{P_WS}:{P_WS+1}]")
    a(f"global_store_dwordx4 v1, v[8:11], s[{P_WS}:{P_WS+1}] offset:16")
    a(f"global_store_dwordx2 v1, v[12:13], s[{P_WS}:{P_WS+1}] offset:32")
def endwave(a):
    stamp_end(a)
    a("s_branch KS_SPIN" if SPIN else "s_endpgm")

def unpack(a, dst, src):
    a(f"v_lshlrev_b32 v{dst}, 16, v{src}", f"v_and_b32 v{dst+1}, 0xffff0000, v{src}")

def rnd2(a, t):
    a(f"v_cvt_pk_bf16_f32 v{t}, 0, v{t}", f"v_cvt_pk_bf16_f32 v{t+1}, 0, v{t+1}")

def ln_stats(a, X, m2, rinv2, t0, t1, t2):
    a(f"v_pk_add_f32 v[{t0}:{t0+1}], v[{X}:{X+1}], v[{X+2}:{X+3}]")
    a(f"v_pk_add_f32 v[{t1}:{t1+1}], v[{X+4}:{X+5}], v[{X+6}:{X+7}]")
    for j in range(4, 9):
        t = t0 if j % 2 == 0 else t1
        a(f"v_pk_add_f32 v[{t}:{t+1}], v[{t}:{t+1}], v[{X+2*j}:{X+2*j+1}]")
    a(f"v_pk_add_f32 v[{t0}:{t0+1}], v[{t0}:{t0+1}], v[{t1}:{t1+1}]")
    a(f"v_add_f32 v{t0}, v{t0}, v{t0+1}")
    red32(a, "v_add_f32", t0, t1)
    a(f"v_mul_f32 v{t2}, {f32(1.0/576)}, v{t0}")
    a(f"v_mov_b32 v{t2+1}, v{t2}")
    a(f"v_cvt_pk_bf16_f32 v{m2}, 0, v{t2}", f"v_cvt_pk_bf16_f32 v{m2+1}, 0, v{t2}")
    first = {t0: True, t1: True}
    for j in range(9):
        t = t0 if j % 2 == 0 else t1
        a(f"v_pk_add_f32 v[{rinv2}:{rinv2+1}], v[{X+2*j}:{X+2*j+1}], v[{t2}:{t2+1}] neg_lo:[0,1] neg_hi:[0,1]")
        if first[t]:
            a(f"v_pk_mul_f32 v[{t}:{t+1}], v[{rinv2}:{rinv2+1}], v[{rinv2}:{rinv2+1}]"); first[t] = False
        else:
            a(f"v_pk_fma_f32 v[{t}:{t+1}], v[{rinv2}:{rinv2+1}], v[{rinv2}:{rinv2+1}], v[{t}:{t+1}]")
    a(f"v_pk_add_f32 v[{t0}:{t0+1}], v[{t0}:{t0+1}], v[{t1}:{t1+1}]")
    a(f"v_add_f32 v{t0}, v{t0}, v{t0+1}")
    red32(a, "v_add_f32", t0, t1)
    a(f"v_mul_f32 v{t0}, {f32(1.0/576)}, v{t0}")
    a(f"v_cvt_pk_bf16_f32 v{t0}, 0, v{t0}")
    a(f"v_add_f32 v{t0}, {f32(1e-5)}, v{t0}")
    a(f"v_cvt_pk_bf16_f32 v{t0}, 0, v{t0}")
    a(f"v_sqrt_f32 v{t0}, v{t0}")
    a(f"v_cvt_pk_bf16_f32 v{t0}, 0, v{t0}")
    a(f"v_rcp_f32 v{rinv2}, v{t0}")
    a(f"v_mov_b32 v{rinv2+1}, v{rinv2}")

def ln_apply_pair(a, x, m2, rinv2, t, P):
    a(f"v_pk_add_f32 v[{t}:{t+1}], v[{x}:{x+1}], v[{m2}:{m2+1}] neg_lo:[0,1] neg_hi:[0,1]")
    rnd2(a, t)
    a(f"v_pk_mul_f32 v[{t}:{t+1}], v[{t}:{t+1}], v[{rinv2}:{rinv2+1}]")
    if P is not None: a(f"v_cvt_pk_bf16_f32 v{P}, v{t}, v{t+1}")
    rnd2(a, t)

VZ, VONE = 4, 5
_lbl = [0]
def newlabel(p="L"):
    _lbl[0] += 1
    return f"{p}_{_lbl[0]}"
def guard(a):
    a(f"s_sub_u32 s{S_GUARD}, s{S_GUARD}, 1", "s_cbranch_scc1 KS_ABORT")
def lds_wait(a, off, t, kind="b4", addr=VZ, sleep=0):
    l = newlabel("W")
    a(f"{l}:")
    if sleep: a(f"s_sleep {sleep}")
    if kind == "b8":
        a(f"ds_read_b64 v[{t}:{t+1}], v{addr} offset:{off}")
    else:
        a(f"ds_read_{'u8' if kind == 'u8' else 'b32'} v{t}, v{addr} offset:{off}")
    guard(a)
    a("s_waitcnt lgkmcnt(0)")
    if kind == "b8": a(f"v_and_b32 v{t}, v{t}, v{t+1}")
    if kind in ("nz", "u8"): a(f"v_cmp_eq_u32 vcc, 0, v{t}")
    else: a(f"v_cmp_ne_u32 vcc, s{S_ONES}, v{t}")
    a(f"s_cbranch_vccnz {l}")

def zpoll(a, loads, regs, sleep, mid=None):
    lp = newlabel("ZP"); l1 = newlabel("ZPE")
    if mid:
        for l in loads: a(l)
        a(mid)
    a(f"s_branch {l1}")
    a(f"{lp}:")
    a(f"s_sleep {sleep}")
    if not mid: a(f"{l1}:")
    for l in loads: a(l)
    if mid: a(f"{l1}:")
    guard(a)
    a("s_waitcnt vmcnt(0)")
    a(f"v_max3_u32 v44, v{regs[0]}, v{regs[1]}, v{regs[2]}")
    r = regs[3:]
    while len(r) >= 2: a(f"v_max3_u32 v44, v44, v{r[0]}, v{r[1]}"); r = r[2:]
    if r: a(f"v_max_u32 v44, v44, v{r[0]}")
    a("v_cmp_eq_u32 vcc, -1, v44", f"s_cbranch_vccnz {lp}")

class Pool:
    def __init__(self, regs): self.free = list(regs)
    def get(self): return self.free.pop(0)
    def put(self, r): self.free.append(r)
def ce_inlane(a, x, i, j, pool):
    t = pool.get()
    a(f"v_max_u32 v{t}, v{x[i]}, v{x[j]}", f"v_min_u32 v{x[j]}, v{x[i]}, v{x[j]}")
    pool.put(x[i]); x[i] = t
def clean8(a, x, pool, DE, rev=False):
    t = [pool.get() for _ in range(4)]
    for i in range(4):
        a(f"v_mov_b32_dpp v{t[i]}, v{x[3-i if rev else i]} quad_perm:[1,0,3,2] {DPPM}")
    for i in range(4):
        a(f"v_med3_u32 v{t[i]}, v{x[i]}, v{t[i]}, v{DE}")
    for i in range(4): pool.put(x[i]); x[i] = t[i]
    for (i, j) in ((0, 2), (1, 3), (0, 1), (2, 3)): ce_inlane(a, x, i, j, pool)
def merge_mirror(a, x, pool, M):
    c = [pool.get() for _ in range(4)]
    for i in range(4):
        a(f"v_max_u32_dpp v{c[i]}, v{x[3-i]}, v{x[i]} {M} {DPPM}")
    for i in range(4): pool.put(x[i]); x[i] = c[i]
def merge_pair(a, x, y, pool):
    for i in range(4):
        a(f"v_max_u32_dpp v{x[i]}, v{y[3-i]}, v{x[i]} quad_perm:[1,0,3,2] {DPPM}")
    for i in range(4): pool.put(y[i])
MIRRORS = ("quad_perm:[3,2,1,0]", "row_half_mirror", "row_mirror")

GW = 48
def g_addr_setup(a, A):
    a(f"s_sub_u32 s{S_G}, s{S_WAVE}, 12")
    a(f"s_mul_i32 s{T0_}, s{S_G}, 9", f"s_add_u32 s{T0_}, s{T0_}, 1", f"s_lshr_b32 s{S_ROLE}, s{T0_}, 1")
    a(f"s_lshl_b32 s{T0_}, s{S_ROLE}, 5", f"v_lshl_add_u32 v7, v3, 3, s{T0_}", "v_mul_u32_u24 v7, 9216, v7")
    a("v_and_b32 v6, 7, v2", "v_lshl_add_u32 v7, v6, 3, v7")
    a(f"s_lshl_b32 s{T0_}, s{S_BLK}, 6", f"v_add_u32 v7, s{T0_}, v7")
    a("v_cmp_gt_u32 vcc, 8, v2")
    a(f"s_mov_b32 s{R3}, 9216", f"s_mov_b32 s{R3+1}, 0", f"s_mov_b32 s{R3+2}, {9216*25}", f"s_mov_b32 s{R3+3}, 0")
    a(f"v_mov_b32 v{A}, s{P_GATE}", f"v_mov_b32 v{A+1}, s{P_GATE+1}", f"v_mov_b32 v6, s{P_UP}")
    a(f"v_cndmask_b32 v{A}, v6, v{A}, vcc", f"v_mov_b32 v6, s{P_UP+1}", f"v_cndmask_b32 v{A+1}, v6, v{A+1}, vcc")
    a(f"v_add_co_u32 v{A}, vcc, v{A}, v7", f"v_addc_co_u32 v{A+1}, vcc, 0, v{A+1}, vcc")
def g_loads(a, A, kss, mod=""):
    for ks in kss:
        for r in range(8):
            d = GW + 16 * ks + 2 * r
            a(f"global_load_dwordx2 v[{d}:{d+1}], v[{A}:{A+1}], off" + mod)
            if not (ks == 4 and r == 7):
                a(f"v_lshl_add_u64 v[{A}:{A+1}], v[{A}:{A+1}], 0, s[{R3 if r < 7 else R3+2}:{R3+1 if r < 7 else R3+3}]")
GTRIG = ENV("GTRIG", 2)
PF = ENV("PF", 1)
NL, NN, NC = ENV("NL", 0), ENV("NN", 0), ENV("NC", 4)
NE = ENV("NE", 0)
NLL = ENV("NLL", 0)
NL2 = ENV("NL2", 4)
PFB = ENV("PFB", 82)
assert not (PFB and NL)
NL3 = ENV("NL3", 0)
assert not (NL3 and NE)
PFA = PFB + 16 * NL + 16 * NE + 6 * NL3
PF0 = PFA + 10 * NLL + 6 * NL2
PF1 = PF0 + 8 * NN + 8 * NC
assert PF1 <= 166
PF2 = ENV("PF2", 166); PFD = ENV("PFD", 0); PFD2 = ENV("PFD2", 0)
GT = eval(os.environ.get("GT", "[0,0,6,6]")); DT = ENV("DT", 3)
RDMA = ENV("RDMA", 1)
DEA = ENV("DEA", 1)
DE = ENV("DE", 1)
def pf_ld(a, dst, v, R):
    for m in MOD("PFM", "nt;sc1").split(";"): a(f"buffer_load_dword v{dst}, v{v}, s[{R}:{R+3}], s{T4_} offen {m}")
def pf_lane(a, v, t):
    a(f"v_mul_u32_u24 v{v}, 57, v1", f"v_lshrrev_b32 v{v}, 9, v{v}", f"v_mul_u32_u24 v{t}, 9, v{v}", f"v_sub_u32 v{t}, v1, v{t}", f"v_mul_u32_u24 v{v}, 9216, v{v}", f"v_lshl_add_u32 v{v}, v{t}, 7, v{v}")
def pf_gu_setup(a, sidx, R=R2_, tb=T3_, tt=T4_):
    a(f"s_bitcmp1_b32 s{sidx}, 0", f"s_cselect_b32 s{R}, s{P_UP}, s{P_GATE}", f"s_cselect_b32 s{R+1}, s{P_UP+1}, s{P_GATE+1}")
    a(f"s_mov_b32 s{R+2}, {hex(D*F*2)}", f"s_mov_b32 s{R+3}, 0x20000")
    a(f"s_lshr_b32 s{tb}, s{sidx}, 1", f"s_mul_i32 s{tb}, s{tb}, {7*9216}", f"s_mul_i32 s{tt}, s{S_XC}, 1152", f"s_add_u32 s{tb}, s{tb}, s{tt}")
def pf_gu(a, v, sidx, nw, u0, u1, dst, done):
    assert u0 % 2 == 0 and nw % 2 == 0
    pf_gu_setup(a, sidx)
    k = 0
    while u0 + k * nw < u1:
        if u0 + (k + 1) * nw > u1: a(f"s_cmp_ge_u32 s{sidx}, {u1 - u0 - k*nw}", f"s_cbranch_scc1 {done}")
        a(f"s_add_u32 s{T4_}, s{T3_}, {(u0 + k*nw)//2*7*9216}")
        pf_ld(a, dst, v, R2_)
        k += 1
def pf_down(a, sidx, nw, u0, u1, v, dst, done, R=R2_):
    srd(a, R, P_DOWN, D * F * 2)
    a(f"s_lshl_b32 s{T3_}, s{sidx}, 13", f"s_mul_i32 s{T4_}, s{S_XC}, {576*1152}", f"s_add_u32 s{T3_}, s{T3_}, s{T4_}", f"v_lshlrev_b32 v{v}, 7, v1")
    k = 0
    while u0 + k * nw < u1:
        if u0 + (k + 1) * nw > u1: a(f"s_cmp_ge_u32 s{sidx}, {u1 - u0 - k*nw}", f"s_cbranch_scc1 {done}")
        a(f"s_add_u32 s{T4_}, s{T3_}, {(u0 + k*nw)*8192}")
        pf_ld(a, dst, v, R)
        k += 1
def gen_ln1(a):
    LW, TB = T5_, S_CH
    X, RAW = 8, 26
    a(f"s_sub_u32 s{T0_}, s{S_I}, 8", f"s_and_b32 s{TB}, s{T0_}, 7", f"s_lshr_b32 s{T0_}, s{T0_}, 3", f"s_lshl_b32 s{T0_}, s{T0_}, 4", f"s_add_u32 s{TB}, s{TB}, s{T0_}")
    a(f"s_and_b32 s{T0_}, s{S_XC}, 1", f"s_lshl_b32 s{T0_}, s{T0_}, 3", f"s_add_u32 s{TB}, s{TB}, s{T0_}", f"s_lshr_b32 s{T0_}, s{S_XC}, 1", f"s_lshl_b32 s{T0_}, s{T0_}, 5", f"s_add_u32 s{TB}, s{TB}, s{T0_}")
    a("v_lshrrev_b32 v36, 5, v1", "v_and_b32 v37, 31, v1")
    a("v_mul_u32_u24 v38, 1152, v36", "v_lshl_add_u32 v39, v37, 2, v38", "v_lshl_add_u32 v38, v37, 4, v38")
    a(f"s_mul_i32 s{T1_}, s{TB}, 18432", f"s_mul_i32 s{T2_}, s{LW}, 2304", f"s_add_u32 s{T1_}, s{T1_}, s{T2_}")
    a("s_waitcnt lgkmcnt(0)")
    stamp(a, 1)
    srd(a, R0, P_X, XBYTES)
    a(f"buffer_load_dwordx4 v[{RAW}:{RAW+3}], v38, s[{R0}:{R0+3}], s{T1_} offen")
    a(f"buffer_load_dwordx4 v[{RAW+4}:{RAW+7}], v38, s[{R0}:{R0+3}], s{T1_} offen offset:512")
    a(f"buffer_load_dword v{RAW+8}, v39, s[{R0}:{R0+3}], s{T1_} offen offset:1024")
    a("s_barrier")
    a(f"s_lshr_b32 s{T1_}, s{LW}, 2", f"s_lshl_b32 s{T1_}, s{T1_}, 6", f"s_add_u32 s{T2_}, s{T2_}, s{T1_}", f"s_add_u32 s{T2_}, s{T2_}, {C_LNB}")
    a(f"v_lshl_add_u32 v35, v37, 1, v36")
    a(f"s_mov_b32 s{SP0}, 0x05040100", f"s_mov_b32 s{SP1}, 0x07060302")
    def waits(n):
        for (c, js) in ((2, range(0, 4)), (1, range(4, 8)), (0, range(8, 9))):
            a(f"s_waitcnt vmcnt({c+n})")
            for j in js: unpack(a, X + 2 * j, RAW + j)
    l1 = newlabel("LN1A"); l2 = newlabel("LN1B")
    if NL:
        LW0 = ENV("NLW", 4)
        pf_lane(a, 46, 47)
        a(f"s_sub_u32 s{T1_}, s{LW}, {LW0}", f"s_and_b32 s{T1_}, s{T1_}, 7", f"s_lshl_b32 s{T3_}, s{T1_}, 4", f"s_add_u32 s{T3_}, s{T3_}, s{S_I}", f"s_sub_u32 s{T3_}, s{T3_}, 8")
        pf_gu_setup(a, T3_, R3, T4_, T0_)
    def dma_early(skip):
        a(f"s_cmp_lt_u32 s{LW}, 4", f"s_cbranch_scc1 {skip}", f"s_cmp_ge_u32 s{S_I}, 18", f"s_cbranch_scc1 {skip}")
        srd(a, R1, P_DOWN, F * D * 2)
        a("v_lshlrev_b32 v46, 4, v1", f"s_mul_i32 s{T0_}, s{S_BLK}, 36864", f"s_mul_i32 s{T1_}, s{LW}, 9216", f"s_add_u32 s{T0_}, s{T0_}, s{T1_}", f"s_sub_u32 s{T0_}, s{T0_}, {4*9216}", f"s_add_u32 s{T1_}, s{T1_}, {C_DOWN - 4*9216}")
        for k in range(9):
            if k % 4 == 0:
                a(f"s_add_u32 m0, s{T1_}, {1024*k}")
                if k: a(f"s_add_u32 s{T0_}, s{T0_}, 4096")
            a(f"buffer_load_dwordx4 v46, s[{R1}:{R1+3}], s{T0_} offen offset:{1024*(k&3)} {MOD('DM', 'nt')} lds")
    if DEA == 1:
        dma_early(l1)
        waits(9)
        a(f"s_branch {l2}")
        a(f"{l1}:")
        if NL3:
            l3 = newlabel("LN1C")
            a(f"s_sub_u32 s{T1_}, s{LW}, 4", f"s_cmp_ge_u32 s{T1_}, {NL3}", f"s_cbranch_scc1 {l3}")
            pf_lane(a, 46, 47)
            a(f"s_mul_i32 s{T1_}, s{T1_}, 6", f"s_add_u32 s{T1_}, s{T1_}, s{S_I}", f"s_add_u32 s{T3_}, s{T1_}, {PFB - 18}")
            pf_gu_setup(a, T3_, R3, T4_, T0_)
            pf_ld(a, 47, 46, R3)
            waits(len(MOD("PFM", "nt;sc1").split(';')))
            a(f"s_branch {l2}")
            a(f"{l3}:")
        waits(0)
        a.flush(2)
        a(f"{l2}:")
    elif DEA == 2:
        waits(0)
        dma_early(l1)
        a(f"{l1}:")
    elif NL and ENV("NLE", 0):
        a(f"s_cmp_lt_u32 s{T1_}, {NL}", f"s_cselect_b32 s{T4_}, s{T4_}, {hex(D*F*2)}")
        pf_ld(a, 47, 46, R3)
        waits(len(MOD("PFM", "nt;sc1").split(';')))
    else:
        waits(0)
    if NL and not ENV("NLE", 0):
        if ENV("X0", 0): a(f"s_cmp_eq_u32 s{S_XC}, 0", f"s_cbranch_scc1 {l1}")
        a(f"s_cmp_ge_u32 s{T1_}, {NL}", f"s_cbranch_scc1 {l1}")
        pf_ld(a, 47, 46, R3)
        a(f"{l1}:")
    stamp(a, 2)
    a(f"v_lshl_add_u32 v6, v35, 4, s{T2_}", f"v_lshl_add_u32 v7, v35, 2, s{T2_}")
    a(f"v_mul_u32_u24 v35, 0x20202, v36", "v_lshl_add_u32 v35, v36, 25, v35", "v_add_u32 v35, 0x05040100, v35")
    ln_stats(a, X, 36, 38, 40, 42, 44)
    for j in range(9):
        if j == ENV("DSAMP", 3):
            a("v_and_b32 v59, 3, v1", "v_lshlrev_b32 v59, 2, v59")
            if SN: a(f"s_load_dwordx4 s[{R3}:{R3+3}], s[{P_DBG}:{P_DBG+1}], 0" + (" glc" if SN == 2 else ""))
            else: a(f"global_load_dword v58, v59, s[{P_DBG}:{P_DBG+1}] sc1")
        ln_apply_pair(a, X + 2 * j, 36, 38, 40, None)
        a(f"v_cvt_pk_f16_f32 v{RAW+j}, v40, v41")
        if j in (3, 7):
            P = RAW + j - 3; O = X + 2 * (j - 3)
            a(f"v_permlane32_swap_b32 v{P}, v{P+2}", f"v_permlane32_swap_b32 v{P+1}, v{P+3}")
            a(f"v_perm_b32 v{O}, v{P+2}, v{P}, s{SP0}", f"v_perm_b32 v{O+1}, v{P+2}, v{P}, s{SP1}")
            a(f"v_perm_b32 v{O+2}, v{P+3}, v{P+1}, s{SP0}", f"v_perm_b32 v{O+3}, v{P+3}, v{P+1}, s{SP1}")
            a(f"ds_write_b128 v6, v[{O}:{O+3}] offset:{1024*(j//4)}")
    a(f"v_mov_b32 v40, v{RAW+8}", f"v_permlane32_swap_b32 v{RAW+8}, v40")
    a(f"v_perm_b32 v40, v40, v{RAW+8}, v35")
    a(f"ds_write_b32 v7, v40 offset:2048")
    a(f"v_mov_b32 v6, s{LW}")
    a(f"ds_write_b8 v6, v{VONE} offset:{FL_LN1}")
    a("s_setprio 0")
    a(f"s_cmp_ge_u32 s{LW}, 4", "s_cbranch_scc1 KS_X4")
    a("s_setprio 3")
    srd(a, R2_, P_WS, XBYTES, WS_UT)
    a("v_and_b32 v6, 1, v0", "v_mul_u32_u24 v6, 9280, v6", "v_lshrrev_b32 v7, 1, v0", "v_lshl_add_u32 v6, v7, 2, v6", f"v_add_u32 v6, {C_LNB}, v6")
    if UL:
        a("v_lshrrev_b32 v7, 3, v0", "v_mul_u32_u24 v7, 0x4100, v7", "v_and_b32 v8, 7, v0", "v_lshl_add_u32 v7, v8, 4, v7")
        a(f"s_lshl_b32 s{T0_}, s{TB}, 7")
    else:
        a("v_lshrrev_b32 v7, 2, v0", "v_mul_u32_u24 v7, 0x2080, v7" if SWU else "v_lshlrev_b32 v7, 13, v7", "v_and_b32 v8, 3, v0", "v_lshl_add_u32 v7, v8, 4, v7")
        a(f"s_lshl_b32 s{T0_}, s{TB}, 6")
    if SWU: a(f"v_xor_b32 v7, s{T0_}, v7", f"s_mov_b32 s{T0_}, 0")
    for k in range(1, 5): a(f"s_add_u32 s{T0_+k}, s{T0_}, {0x80000*k}")
    if SN:
        a("s_waitcnt lgkmcnt(0)")
        a(f"v_mov_b32 v58, s{R3}", f"v_mov_b32 v57, s{R3+1}", f"v_mov_b32 v56, s{R3+2}", f"v_mov_b32 v55, s{R3+3}")
        a("v_mov_b32_dpp v58, v57 quad_perm:[0,1,2,3] row_mask:0xf bank_mask:0xf" if 0 else "v_cmp_eq_u32 vcc, 4, v59", "v_cndmask_b32 v58, v58, v57, vcc", "v_cmp_eq_u32 vcc, 12, v59", "v_cndmask_b32 v56, v56, v55, vcc", "v_cmp_lt_u32 vcc, 4, v59", "v_cndmask_b32 v58, v58, v56, vcc")
        dbg_wait(a, 63)
    else: dbg_wait(a, 0)
    a(f"ds_write_b32 v59, v58 offset:{FL_NONCE}")
    a(f"s_mov_b32 s{SP0}, {hex(TAGM)}")
    for d in range(1, 4): a(f"v_lshrrev_b32 v{58-d}, {3*d}, v58")
    lds_wait(a, FL_LN1, 20, "b8")
    stamp(a, 3)
    for k in range(5):
        a(f"ds_read2st64_b32 v[{20+4*k}:{21+4*k}], v6 offset0:{2*k} offset1:{9+2*k}")
        a(f"ds_read2st64_b32 v[{22+4*k}:{23+4*k}], v6 offset0:{18+2*k} offset1:{27+2*k}")
    for k in range(5):
        a(f"s_waitcnt lgkmcnt({8-2*k})")
        for d in range(4): a(f"v_bfi_b32 v{20+4*k+d}, s{SP0}, v{58-d}, v{20+4*k+d}")
        a(f"buffer_store_dwordx4 v[{20+4*k}:{23+4*k}], v7, s[{R2_}:{R2_+3}], s{T0_+k} offen {MOD('USMOD')}")
    if DE: a(f"v_mov_b32 v6, s{LW}", f"ds_write_b8 v6, v{VONE} offset:{FL_UTOK}")
    stamp(a, 4)

def dbg_wait(a, n, vt=58, va=59):
    lp = newlabel("DBP"); go = newlabel("DBG")
    a(f"s_waitcnt vmcnt({n})")
    a(f"{lp}:")
    a(f"v_cmp_eq_u32 vcc, 0, v{vt}", f"s_cbranch_vccz {go}")
    a("s_sleep 1")
    a(f"global_load_dword v{vt}, v{va}, s[{P_DBG}:{P_DBG+1}] sc1")
    guard(a)
    a("s_waitcnt vmcnt(0)")
    a(f"s_branch {lp}")
    a(f"{go}:")

ROLE_TILES = {0: [0, 1, 2, 3, 4], 1: [0, 1, 2, 3, 4], 2: [5, 6, 7], 3: [5, 6, 7]}
ROLE_W = {2: 0, 3: 1, 1: 2}
ACC, DA, RING, WT = 16, 36, 76, 92
NRING = 4

def epi_plan():
    owner = {0: (0, 0), 1: (0, 1), 2: (1, 0), 3: (1, 1), 4: (1, 3), 5: (0, 2), 6: (0, 3), 7: (1, 2)}
    slots = {}
    cnt = [0, 0]
    for g in range(2):
        for role in range(4):
            for j in ROLE_TILES[role]:
                if owner[j] == (g, role): continue
                slots[(g, role, j)] = g * G_SIZE + R_RED + 1024 * cnt[g]; cnt[g] += 1
    assert max(cnt) <= 13, cnt
    ownerC = {0: 0, 1: 0, 2: 1, 3: 1, 4: 2, 5: 2, 6: 3, 7: 3}
    n = 0
    for role in range(4):
        for j in ROLE_TILES[role]:
            if ownerC[j] == role: continue
            slots[(2, role, j)] = 2 * G_SIZE + R_RED + 1024 * n; n += 1
    return owner, ownerC, slots

class LdsTrack:
    def __init__(self, a): self.a = a; self.n = 0; self.done = -1
    def issue(self, text): self.a(text); self.n += 1; return self.n - 1
    def wait(self, idx):
        k = self.n - 1 - idx
        if idx <= self.done: return
        self.done = idx
        if k <= 15: self.a(f"s_waitcnt lgkmcnt({k})")

CZ0, CZ1, CSH, CXR, CFL, SIS, CM, SM, SC, SSC, SDL = 6, 7, 8, 9, 10, 11, 12, 14, 15, 16, 18
IXR, LFR = (108, 109, 112, 113), (110, 111, 114, 115)
def stage_write(a, off):
    a("v_lshl_or_b32 v24, v25, 16, v24", "v_lshl_or_b32 v25, v27, 16, v26", f"ds_write_b64 v28, v[24:25] offset:{off}")
def pre_ixlf(a):
    end = newlabel("PX"); j1 = newlabel("PX"); j2 = newlabel("PX"); jn = newlabel("PX")
    a(f"s_cmp_eq_u32 s{S_ROLE}, 3", f"s_cbranch_scc1 {end}")
    a("v_lshlrev_b32 v26, 3, v2", "v_mov_b32 v21, 0x80")
    a(f"s_cmp_eq_u32 s{S_ROLE}, 1", f"s_cbranch_scc1 {j1}", f"s_cmp_eq_u32 s{S_ROLE}, 2", f"s_cbranch_scc1 {j2}")
    a("v_lshl_add_u32 v26, v3, 1, v26", "v_mov_b32 v22, 1")
    a(f"s_branch {jn}")
    a(f"{j1}:")
    a("v_cmp_gt_u32 vcc, 2, v3", "v_lshl_add_u32 v20, v3, 2, v26", "v_add_u32 v20, 256, v20", "v_lshl_add_u32 v26, v3, 8, v26", "v_cndmask_b32 v26, v26, v20, vcc")
    a("v_cndmask_b32 v22, v21, 2, vcc", "v_cndmask_b32 v21, 4, v21, vcc")
    a(f"s_branch {jn}")
    a(f"{j2}:")
    a("v_lshl_add_u32 v26, v3, 9, v26", "v_add_u32 v26, 0x400, v26", "v_mov_b32 v22, 0x100")
    a(f"{jn}:")
    a(f"v_mad_u32_u24 v26, v22, s{S_G}, v26", "v_add_u32 v27, v26, v21", f"s_movk_i32 s{T4_}, {T_TAB}", f"s_movk_i32 s{T5_}, {-(0x4280 + 0x800)}", f"s_lshl_b32 s{T3_}, s{S_G}, 9")
    for r in range(2): a(f"v_cvt_f32_u32 v{20+r}, v{26+r}", f"v_max_u32 v{22+r}, 0x800, v{26+r}")
    for r in range(2):
        a(f"v_cmp_gt_u32 vcc, 0x80, v{26+r}", f"v_lshrrev_b32 v{24+r}, 16, v{20+r}", f"v_add3_u32 v{24+r}, v{24+r}, v{22+r}, s{T5_}", f"v_cndmask_b32 v{24+r}, v{24+r}, v{26+r}, vcc")
    for r in range(2):
        a(f"v_min_u32 v{24+r}, {IDX_DUMMY}, v{24+r}", f"v_lshl_add_u32 v{24+r}, v{24+r}, 1, s{T4_}")
    a(f"v_add_u32 v29, s{T3_}, v28")
    a("v_lshl_or_b32 v24, v25, 16, v24", "v_lshl_or_b32 v25, v27, 16, v26", "ds_write_b64 v29, v[24:25]")
    a(f"{end}:")

def gen_group(a):
    RAW, VLDT, VDSK, VNT, VNA, VPR, VEM, VTE, VTL = 40, 46, 107, 104, 105, 106, 72, 126, 127
    I1, D2, I2, D1, D3 = 116, 119, 120, 124, 125
    a(f"s_lshl_b32 s{T0_}, s{S_CH}, 8", f"v_lshl_add_u32 v20, v1, 2, s{T0_}")
    a(f"s_lshl_b32 s{T0_}, s{S_CH}, 1", f"v_mov_b32 v21, s{T0_}")
    a(f"s_mul_i32 s{S_GB}, s{S_G}, {G_SIZE}", f"s_add_u32 s{S_GB}, s{S_GB}, {G_BASE}")
    a("s_waitcnt lgkmcnt(0)")
    stamp(a, 1)
    PL = ENV("PLATE", 0)
    if PL == 1: a(f"s_sub_u32 s{T0_}, s{S_I}, 8", f"s_cmp_ge_u32 s{T0_}, 16", "s_cbranch_scc1 KS_PL1", "s_barrier", "KS_PL1:")
    if PL == 2: a("s_barrier")
    a(f"global_load_ushort v{VLDT}, v21, s[{P_LDT}:{P_LDT+1}]")
    for k in range(6):
        a(f"global_load_dword v{RAW+k}, v20, s[{P_ARE+2*k}:{P_ARE+2*k+1}]")
    a(f"global_load_ushort v{VDSK}, v21, s[{P_DSK}:{P_DSK+1}]")
    if PL == 1: a("s_cbranch_scc0 KS_PL2")
    if PL != 2: a("s_barrier")
    if PL == 1: a("KS_PL2:")
    if ENV("UPW", 0):
        a(f"s_sub_u32 s{T0_}, s{S_I}, 8", f"s_cmp_ge_u32 s{T0_}, 16", "s_cbranch_scc1 KS_UPW", f"s_cmp_lg_u32 s{S_G}, 1", "s_cbranch_scc1 KS_UPW")
        TB = T5_
        a(f"s_and_b32 s{TB}, s{T0_}, 7", f"s_lshr_b32 s{T0_}, s{T0_}, 3", f"s_lshl_b32 s{T0_}, s{T0_}, 4", f"s_add_u32 s{TB}, s{TB}, s{T0_}")
        a(f"s_and_b32 s{T0_}, s{S_XC}, 1", f"s_lshl_b32 s{T0_}, s{T0_}, 3", f"s_add_u32 s{TB}, s{TB}, s{T0_}", f"s_lshr_b32 s{T0_}, s{S_XC}, 1", f"s_lshl_b32 s{T0_}, s{T0_}, 5", f"s_add_u32 s{TB}, s{TB}, s{T0_}")
        srd(a, R2_, P_WS, XBYTES, WS_UT)
        a(f"s_lshl_b32 s{T0_}, s{S_ROLE}, 4", "v_lshrrev_b32 v7, 2, v1", f"v_add_u32 v7, s{T0_}, v7", "v_mul_u32_u24 v7, 0x2080, v7", "v_and_b32 v8, 3, v1", "v_lshl_add_u32 v7, v8, 4, v7")
        a(f"s_lshl_b32 s{T0_}, s{TB}, 6", f"v_xor_b32 v7, s{T0_}, v7")
        for d in range(4): a(f"v_mov_b32 v{8+d}, 0")
        for k in range(5):
            a(f"s_mov_b32 s{T0_}, {0x80000*k}")
            a(f"buffer_store_dwordx4 v[8:11], v7, s[{R2_}:{R2_+3}], s{T0_} offen {MOD('UPWMOD')}")
        a.flush(2)
        a("KS_UPW:")
    a(f"s_movk_i32 s{T4_}, {T_TAB}")
    def dr_addr(dst, x, special=False):
        a(f"v_sub_u32 v30, 544, v{x}", "v_cvt_f32_i32 v31, v30", "v_cmp_gt_u32 vcc, 0x100, v30", "v_cvt_pk_bf16_f32 v31, v31, v31", "v_and_b32 v31, 0xffff, v31", "v_subrev_u32 v31, 0x4280, v31")
        a("v_cndmask_b32 v31, v31, v30, vcc", "v_cmp_lt_u32 vcc, 0x20d, v30")
        if special: a(f"v_or_b32 v30, 1, v{x}")
        a("v_cndmask_b32 v31, v31, v32, vcc")
        if special: a("v_cmp_eq_u32 vcc, 0x25d, v30", "v_cndmask_b32 v31, v31, v33, vcc")
        a(f"v_lshl_add_u32 v{dst}, v31, 1, s{T4_}")
    def g_addr(dst, y0, base, M):
        a(f"v_sub_u32 v30, {y0}, v23", f"v_cmp_lt_u32 vcc, {M}, v30", f"v_lshlrev_b32 v31, 2, v30", f"v_add_u32 v31, {T_TAB + 2*base}, v31", f"v_cndmask_b32 v{dst}, v31, v33, vcc")
    pb = newlabel("PREB"); pw = newlabel("PREW"); pe = newlabel("PREE")
    a(f"s_cmp_eq_u32 s{S_G}, 2", f"s_cbranch_scc1 {pe}")
    a(f"v_mov_b32 v32, {IDX_ZERO}")
    a(f"s_cmp_eq_u32 s{S_G}, 1", f"s_cbranch_scc1 {pb}")
    jl = [newlabel("PRE") for _ in range(4)]
    a(f"v_mov_b32 v33, {T_TAB + 2*IDX_ZERO}")
    for r in range(1, 4): a(f"s_cmp_eq_u32 s{S_ROLE}, {r}", f"s_cbranch_scc1 {jl[r]}")
    a("v_lshlrev_b32 v23, 1, v1")
    for e, (y0, base, M) in enumerate(((93, 389, 61), (92, 389, 61), (94, 388, 62), (93, 388, 62))): g_addr(24 + e, y0, base, M)
    a(f"s_branch {pw}")
    for r, base in ((1, 513), (2, 514)):
        a(f"{jl[r]}:")
        a("v_min_u32 v23, 47, v1", "v_lshlrev_b32 v23, 1, v23")
        for e, y0 in ((0, 64), (1, 63), (3, 62)): g_addr(24 + e, y0, base, 63)
        a("v_mov_b32 v26, v25")
        a(f"s_branch {pw}")
    a(f"{jl[3]}:")
    a("v_cmp_gt_u32 vcc, 9, v1", "v_add_u32 v23, 0x100, v1", "v_mov_b32 v33, 0x200", "v_cndmask_b32 v23, v23, v1, vcc", "v_lshlrev_b32 v23, 1, v23")
    for e in (0, 1, 3):
        if e: a("v_add_u32 v23, 1, v23")
        dr_addr(24 + e, 23, special=True)
    a("v_mov_b32 v26, v25")
    a(f"s_branch {pw}")
    a(f"{pb}:")
    a(f"s_lshl_b32 s{T1_}, s{S_ROLE}, 7", f"s_add_u32 s{T1_}, s{T1_}, 18", f"v_lshl_add_u32 v23, v1, 1, s{T1_}")
    for e in range(3):
        if e: a("v_add_u32 v23, 1, v23")
        dr_addr(24 + e, 23)
    a(f"s_sub_u32 s{T1_}, s{S_ROLE}, 1", f"s_cmp_lt_u32 s{T1_}, 2", f"s_cselect_b32 s{T2_}, 47, 63", f"s_mul_i32 s{T1_}, s{T1_}, {T_G9E - T_G7E}", f"s_add_u32 s{T1_}, s{T1_}, {T_G7E}")
    a(f"s_cmp_eq_u32 s{S_ROLE}, 0", f"s_cselect_b32 s{T1_}, {T_G3}, s{T1_}", f"s_cmp_eq_u32 s{S_ROLE}, 3", f"s_cselect_b32 s{T1_}, {T_DRE}, s{T1_}", f"s_cselect_b32 s{T3_}, 0x100, 0")
    a("v_cmp_gt_u32 vcc, 9, v1", f"v_min_u32 v23, s{T2_}, v1", f"v_add_u32 v30, s{T3_}, v23", "v_cndmask_b32 v23, v30, v23, vcc", f"v_lshl_add_u32 v27, v23, 2, s{T1_}")
    stage_write(a, 1024)
    a(f"v_mov_b32 v24, s{S_ROLE}", f"ds_write_b8 v24, v{VONE} offset:{FL_PRE + 4}")
    a(f"s_branch {pe}")
    a(f"{pw}:")
    stage_write(a, 1536)
    a(f"v_mov_b32 v24, s{S_ROLE}", f"ds_write_b8 v24, v{VONE} offset:{FL_PRE}")
    a(f"{pe}:")
    a(f"s_mul_i32 s{T1_}, s{S_ROLE}, {16*KG_ROW}", f"s_min_u32 s{T2_}, s{T1_}, {KG_T[3]}", f"s_add_u32 s{T2_}, s{T2_}, s{S_GB}")
    a(f"s_lshl_b32 s{T0_}, s{S_G}, 4", f"v_mov_b32 v14, s{T0_}", f"v_add_u32 v15, s{S_ROLE}, v14")
    a(f"v_lshl_add_u32 v{VEM}, v1, 3, s{T2_}")
    for k in range(1, 4): a(f"v_add_u32 v{VEM+k}, {4*KG_ROW*k}, v{VEM}")
    a(f"v_mul_u32_u24 v{VTE}, {KG_ROW}, v2", f"v_lshl_add_u32 v{VTE}, v3, 4, v{VTE}", f"v_add_u32 v{VTE}, s{S_GB}, v{VTE}", f"v_add_u32 v{VTL}, s{T1_}, v{VTE}")
    VDA, VDA2, VB_, VT8, VT16, VG8, VG16, VLN = 6, 7, 8, 9, 10, 11, 13, 12
    a("v_lshlrev_b32 v20, 3, v3", "v_sub_u32 v20, v20, v2", "v_add_u32 v21, 16, v20", "v_lshrrev_b32 v21, 1, v21")
    a("v_and_b32 v22, 1, v2", f"s_add_u32 s{T0_}, s{S_GB}, {T_DRE}", f"v_lshl_add_u32 v21, v21, 2, s{T0_}", f"s_movk_i32 s{T0_}, {T_DRO - T_DRE}", f"s_movk_i32 s{T2_}, {T_G7O - T_G7E}")
    a(f"v_mad_u32_u24 v{VDA}, v22, s{T0_}, v21", f"v_add_u32 v{VDA2}, 640, v{VDA}")
    a(f"v_mad_u32_u24 v23, v22, s{T2_}, v21", f"v_add_u32 v{VG16}, {T_G7E - T_DRE}, v23")
    a("v_lshlrev_b32 v23, 2, v3", "v_sub_u32 v23, v23, v2", f"s_add_u32 s{T0_}, s{S_GB}, {T_G3 + 60}", f"v_lshl_add_u32 v{VG8}, v23, 2, s{T0_}")
    a(f"s_mul_i32 s{T2_}, s{S_G}, {U_SIZE}", f"s_add_u32 s{T2_}, s{T2_}, {C_U}")
    a(f"v_lshl_add_u32 v23, v2, 5, s{T2_}", f"v_lshl_add_u32 v{VB_}, v3, 4, v23")
    a("v_bfe_u32 v20, v1, 2, 2", "v_and_b32 v21, 3, v1", "v_lshl_add_u32 v20, v3, 3, v20")
    a(f"v_lshlrev_b32 v{VNA}, 2, v21")
    a(f"v_lshl_add_u32 v21, v21, 3, s{S_GB}", f"v_lshl_add_u32 v{VT8}, v20, 4, v21", f"v_lshl_add_u32 v{VT16}, v20, 5, v21")
    a(f"v_lshlrev_b32 v{VLN}, 4, v1")
    srd(a, R0, P_WS, 0x240000, WS_ZB1)
    if SWZ: a(f"s_mov_b32 s{CFL}, 0x8080")
    a(f"s_lshl_b32 s{T0_}, s{S_ROLE}, 19", f"s_lshl_b32 s{T1_}, s{S_B2}, 6", f"s_add_u32 s{T0_}, s{T0_}, s{T1_}")
    a(f"s_lshl_b32 s{T1_}, s{S_ROLE}, 16", f"s_lshl_b32 s{T3_}, s{S_CH}, 6", f"s_add_u32 s{T1_}, s{T1_}, s{T3_}", f"s_add_u32 s{T1_}, s{T1_}, {0x200000 - 512*64}")
    if SWZ:
        a(f"s_cmp_eq_u32 s{S_G}, 2", f"s_cselect_b32 s{CZ0}, s{T1_}, s{T0_}", f"s_cselect_b32 s{CSH}, 0x1080, s{CFL}", f"s_cselect_b32 s{T0_}, 1, 3")
        a(f"s_and_b32 s{T0_}, s{T0_}, s{S_ROLE}", f"s_lshl_b32 s{T0_}, s{T0_}, 11", f"s_xor_b32 s{CZ0}, s{CZ0}, s{T0_}", f"s_and_b32 s{CFL}, s{CZ0}, 0x7c0", f"s_xor_b32 s{CZ0}, s{CZ0}, s{CFL}", f"s_xor_b32 s{CZ1}, s{CZ0}, 0x6000")
    else:
        a(f"s_cmp_eq_u32 s{S_G}, 2", f"s_cselect_b32 s{CZ0}, s{T1_}, s{T0_}", f"s_cselect_b32 s{CSH}, 12, 15", f"s_add_u32 s{CZ1}, s{CZ0}, 16384")
    a(f"s_and_b32 s{CXR}, s{S_G}, 1", f"s_lshl_b32 s{CXR}, s{CXR}, 4", f"s_mov_b32 s{CM}, 0x55555555", f"s_mov_b32 s{CM+1}, 0x55555555")
    a(f"s_lshl_b32 s{T0_}, s{S_ROLE}, 8", f"s_add_u32 s{T0_}, s{T0_}, s{S_GB}", f"s_add_u32 s{T0_}, s{T0_}, 36", f"v_lshl_add_u32 v{D1}, v1, 2, s{T0_}")
    a(f"s_movk_i32 s{T0_}, {T_G7O - T_G7E}", f"s_cmp_eq_u32 s{S_ROLE}, 0", f"s_cselect_b32 s{T0_}, {T_G5 - T_G3}, s{T0_}", f"s_cmp_eq_u32 s{S_ROLE}, 3", f"s_cselect_b32 s{T0_}, {T_DRO - T_DRE}, s{T0_}")
    a(f"v_mov_b32 v20, s{S_GB}", f"ds_write_b16 v20, v{VZ} offset:{T_TAB + 2*IDX_ZERO}")
    a(f"s_mov_b32 s{SDL}, s{T0_}", f"v_mov_b32 v{D3}, v28")
    def stage_read():
        lds_wait(a, FL_PRE, 18, "b8")
        a(f"ds_read2st64_b64 v[28:31], v{D3} offset0:0 offset1:1", f"ds_read2st64_b64 v[32:35], v{D3} offset0:2 offset1:3")
    def stage_unpack():
        for k in range(16):
            src = 28 + k // 2; w = f"WORD_{k & 1}"
            if 108 + k in LFR: a(f"v_cvt_f32_u32_sdwa v{108+k}, v{src} dst_sel:DWORD dst_unused:UNUSED_PAD src0_sel:{w}")
            else: a(f"v_add_u32_sdwa v{108+k}, s{S_GB}, v{src} dst_sel:DWORD dst_unused:UNUSED_PAD src0_sel:DWORD src1_sel:{w}")
        a(f"v_add_u32 v{D3}, s{SDL}, v{D2}")
    stage_read()
    a("s_waitcnt lgkmcnt(0)")
    stage_unpack()
    ex = newlabel("EXP")
    if KOFF: a(f"s_lshl_b32 s{T0_}, s{S_G}, 5", f"s_add_u32 s{T0_}, s{T0_}, s{S_I}", f"s_cmp_ge_u32 s{T0_}, {64 + 24}", "s_cbranch_scc1 KC_RECV")
    a(f"s_mov_b32 s{T0_}, {f32(LOG2E_HI)}", f"s_mov_b32 s{T1_}, {f32(LOG2E_LO)}", f"s_mov_b32 s{T2_}, {f32(INV2PI_HI)}", f"s_mov_b32 s{T3_}, {f32(INV2PI_LO)}")
    a(f"s_waitcnt vmcnt(7)")
    a(f"v_lshlrev_b32 v16, 16, v{VLDT}")
    a(f"v_mul_f32 v17, s{T0_}, v16")
    a(f"v_fma_f32 v19, v16, s{T0_}, -v17", f"v_fmac_f32 v19, s{T1_}, v16")
    a("v_exp_f32 v17, v17")
    a(f"v_mul_f32 v19, {f32(math.log(2.0))}, v19")
    a("v_fmac_f32 v17, v17, v19")
    a("v_cvt_pk_bf16_f32 v16, 0, v17")
    a(f"s_waitcnt vmcnt(5)")
    stamp(a, 2)
    a(f"ds_write_b32 v{VZ}, v{VONE} offset:{FL_PARAM}")
    THH, THL = 68, 70
    for k in range(2): unpack(a, 20 + 2 * k, RAW + k)
    for k in range(2): a(f"v_pk_mul_f32 v[{20+2*k}:{21+2*k}], v[{20+2*k}:{21+2*k}], v[16:17] op_sel_hi:[1,0]")
    a("v_max_f32 v36, v20, v21")
    a(f"v_pk_mul_f32 v[{THH}:{THH+1}], v[22:23], s[{T2_}:{T3_}] op_sel_hi:[1,0]")
    a(f"v_pk_fma_f32 v[{THL}:{THL+1}], v[22:23], s[{T2_}:{T3_}], v[{THH}:{THH+1}] op_sel_hi:[1,0,1] neg_lo:[0,0,1] neg_hi:[0,0,1]")
    a(f"v_pk_fma_f32 v[{THL}:{THL+1}], v[22:23], s[{T2_}:{T3_}], v[{THL}:{THL+1}] op_sel:[0,1,0]")
    T = 90
    def cmul_(dr, di, ar, ai, br, bi, t=T):
        assert di not in (ar, br, bi)
        return [f"v_pk_mul_f32 v[{t}:{t+1}], v[{ai}:{ai+1}], v[{bi}:{bi+1}]",
                f"v_pk_mul_f32 v[{t+2}:{t+3}], v[{ai}:{ai+1}], v[{br}:{br+1}]",
                f"v_pk_fma_f32 v[{di}:{di+1}], v[{ar}:{ar+1}], v[{bi}:{bi+1}], v[{t+2}:{t+3}]",
                f"v_pk_fma_f32 v[{dr}:{dr+1}], v[{ar}:{ar+1}], v[{br}:{br+1}], v[{t}:{t+1}] neg_lo:[0,0,1] neg_hi:[0,0,1]"]
    def cm_(d, x, y, t=T): return cmul_(d, d + 2, x, x + 2, y, y + 2, t)
    def csq_(d, s_, t=T):
        return [f"v_pk_mul_f32 v[{t}:{t+1}], v[{s_+2}:{s_+3}], v[{s_+2}:{s_+3}]",
                f"v_pk_mul_f32 v[{t+2}:{t+3}], v[{s_}:{s_+1}], v[{s_+2}:{s_+3}]",
                f"v_pk_fma_f32 v[{d}:{d+1}], v[{s_}:{s_+1}], v[{s_}:{s_+1}], v[{t}:{t+1}] neg_lo:[0,0,1] neg_hi:[0,0,1]",
                f"v_pk_add_f32 v[{d+2}:{d+3}], v[{t+2}:{t+3}], v[{t+2}:{t+3}]"]
    def cmul(*x): a(*cmul_(*x))
    def csq(*x): a(*csq_(*x))
    CBR, CBI = 32, 34
    sk = newlabel("SK")
    a(f"s_cmp_eq_u32 s{S_ROLE}, 3", f"s_cbranch_scc1 {sk}")
    a("s_waitcnt vmcnt(1)")
    for k in range(2, 6): unpack(a, 20 + 2 * k, RAW + k)
    for k in range(2, 4): a(f"v_pk_mul_f32 v[{20+2*k}:{21+2*k}], v[{20+2*k}:{21+2*k}], v[16:17] op_sel_hi:[1,0]")
    cmul(CBR, CBI, 28, 30, 24, 26)
    a(f"v_max3_f32 v37, abs(v{CBI}), abs(v{CBI+1}), abs(v{CBR})", f"v_max_f32 v37, v37, abs(v{CBR+1})")
    a(f"{sk}:")
    a("s_waitcnt vmcnt(0)")
    a.flush(1)
    a("v_permlane32_swap_b32 v36, v37", "v_max_f32 v36, v36, v37")
    red32(a, "v_max_f32", 36, 38)
    a(f"v_readlane_b32 s{SM}, v36, 0", f"v_readlane_b32 s{SC}, v36, 32")
    a(f"s_add_u32 s{SC}, s{SC}, 0x7fffff", f"s_lshr_b32 s{SC}, s{SC}, 23", f"s_max_u32 s{SC}, s{SC}, 24", f"s_sub_u32 s{SSC}, 269, s{SC}", f"s_lshl_b32 s{SSC}, s{SSC}, 23")
    a(f"v_subrev_f32 v20, s{SM}, v20", f"v_subrev_f32 v21, s{SM}, v21")
    a(f"v_mul_f32 v20, {f32(LOG2E)}, v20", f"v_mul_f32 v21, {f32(LOG2E)}, v21")
    def scale_cb():
        a(f"v_pk_mul_f32 v[{CBR}:{CBR+1}], v[{CBR}:{CBR+1}], s[{SSC}:{SSC+1}] op_sel_hi:[1,0]", f"v_pk_mul_f32 v[{CBI}:{CBI+1}], v[{CBI}:{CBI+1}], s[{SSC}:{SSC+1}] op_sel_hi:[1,0]")
    def anchor(dr, di, l, conj=False):
        lit = {1: "1.0", 2: "2.0"}.get(l, f32(float(l)))
        for e in range(2):
            t = T + 4 * e
            if l != 1: a(f"v_mul_f32 v{t+1}, {lit}, v{THH+e}", f"v_mul_f32 v{t}, {lit}, v{20+e}")
        for e in range(2):
            t = T + 4 * e
            a(f"v_fract_f32 v{t+1}, v{t+1 if l != 1 else THH+e}")
        for e in range(2):
            t = T + 4 * e
            a(f"v_fmac_f32 v{t+1}, {lit}, v{THL+e}")
        for e in range(2):
            t = T + 4 * e
            a(f"v_exp_f32 v{t}, v{t if l != 1 else 20+e}", f"v_cos_f32 v{t+2}, v{t+1}", f"v_sin_f32 v{t+1}, v{t+1}")
        for e in range(2):
            t = T + 4 * e
            a(f"v_mul_f32 v{dr+e}, v{t}, v{t+2}")
            a(f"v_mul_f32 v{di+e}, v{t}, {'-' if conj else ''}v{t+1}")
    em = [0, None]
    def it(cms, row=None, x=None, y=None):
        if em[1]: a(em[1]); em[1] = None
        for k in range(4):
            for c in cms:
                if k < len(c): a(c[k])
        if row is None: return
        t = (98, 76)[em[0] & 1]; em[0] += 1
        for v, tt in ((x, t), (y, t + 2)):
            if v is not None: a(f"v_cvt_pk_f16_f32 v{tt}, v{v}, v{v+2}", f"v_cvt_pk_f16_f32 v{tt+1}, v{v+1}, v{v+3}")
        o = (row & 3) * KG_ROW // 8
        if y is None: em[1] = f"ds_write_b64 v{VEM + row//4}, v[{t}:{t+1}] offset:{8*o}"
        else: em[1] = f"ds_write2_b64 v{VEM + row//4}, v[{t}:{t+1}], v[{t+2}:{t+3}] offset0:{o} offset1:{o + KG_ROW//8}"
    G1, G2, G3 = 40, 44, 48
    VA, VB, VC, VD = 52, 56, 60, 64
    oth = lambda c, p, q: p if c != p else q
    jl = [newlabel("JOB") for _ in range(4)]; jn = newlabel("JOBJ")
    for r in (3, 1, 2): a(f"s_cmp_eq_u32 s{S_ROLE}, {r}", f"s_cbranch_scc1 {jl[r]}")
    anchor(G2, G2 + 2, 128); scale_cb(); anchor(G1, G1 + 2, 1)
    cur = CBR
    for c in range(8):
        nx = oth(cur, VA, VB)
        it([cm_(VC, cur, G2)] + ([cm_(nx, cur, G1, T + 4)] if c < 7 else []), 2 * c, cur, VC); cur = nx
    it([])
    a(f"s_branch {jn}")
    a(f"{jl[1]}:")
    anchor(G2, G2 + 2, 128); scale_cb(); csq(G3, G2); anchor(G1, G1 + 2, 2)
    it([cm_(VA, CBR, G3)]); cur = VA
    it([cm_(VD, VA, G3)])
    for c in range(4):
        nx = oth(cur, VA, VB)
        it([cm_(VC, cur, G2), cm_(nx, cur, G1, T + 4) if c < 3 else csq_(G3, G1, T + 4)], 2 * c, cur, VC); cur = nx
    cur = VD
    for aa in range(4):
        nx = oth(cur, VA, VB)
        it([cm_(VC, cur, G3)] + ([cm_(nx, cur, G2, T + 4)] if aa < 3 else []), 8 + 2 * aa, cur, VC); cur = nx
    it([])
    a(f"s_branch {jn}")
    a(f"{jl[3]}:")
    anchor(G1, G1 + 2, 8, conj=True)
    a(f"v_mov_b32 v{VA}, {f32(32768.0)}", f"v_mov_b32 v{VA+1}, {f32(32768.0)}", f"v_mov_b32 v{VA+2}, 0", f"v_mov_b32 v{VA+3}, 0")
    sc_ = lambda d, x: [f"v_pk_mul_f32 v[{d}:{d+1}], v[{x}:{x+1}], v[{VA}:{VA+1}]", f"v_pk_mul_f32 v[{d+2}:{d+3}], v[{x+2}:{x+3}], v[{VA}:{VA+1}]"]
    it([csq_(G2, G1), sc_(VC, G1)])
    ce, co = VA, VC
    for b in range(8):
        ne, no = oth(ce, VA, VB), oth(co, VC, VD)
        it([] if b == 7 else [sc_(ne, G2) if b == 0 else cm_(ne, ce, G2), cm_(no, co, G2, T + 4)], 2 * b, ce, co); ce, co = ne, no
    it([])
    a(f"ds_write_b8 v15, v{VONE} offset:{FL_G}")
    stamp(a, 3)
    if KOFF: a(f"s_cmp_eq_u32 s{S_G}, 2", "s_cbranch_scc1 KS_G0")
    a(f"s_branch {ex}")
    if KOFF:
        a("KC_SEND:")
        lds_wait(a, FL_NONCE, VNT, "nz", addr=VNA)
        a(f"s_lshl_b32 s{T0_}, s{S_CH}, 12", f"s_lshl_b32 s{T1_}, s{S_ROLE}, 10", f"s_add_u32 s{T0_}, s{T0_}, s{T1_}", f"s_add_u32 s{T0_}, s{T0_}, {hex(WS_KT - 512*4096)}", f"v_add_u32 v24, s{T0_}, v{VLN}")
        a(f"s_mov_b32 s{T1_}, 0xffff", f"v_lshlrev_b32 v25, 16, v{VNT}")
        for r in range(4): a(f"v_cvt_f16_f32 v{20+r}, v{20+r}")
        a(f"s_cmp_lg_u32 s{S_ROLE}, 2", "s_cbranch_scc1 KC_S2")
        a("s_mov_b32 exec_lo, 0", "s_mov_b32 exec_hi, 0xffff0000")
        a(f"v_mov_b32 v20, v{VPR}", f"v_lshrrev_b32 v21, 16, v{VPR}")
        a("s_mov_b64 exec, -1")
        a("KC_S2:")
        for r in range(4): a(f"v_bfi_b32 v{20+r}, s{T1_}, v{20+r}, v{25 if r & 1 else VNT}")
        a(f"global_store_dwordx4 v24, v[20:23], s[{P_WS}:{P_WS+1}] sc1")
        stamp(a, 4)
        a("s_branch KS_G0")
        a("KC_RECV:")
        a(f"s_cmp_eq_u32 s{S_ROLE}, 3", f"s_cbranch_scc1 {ex}")
        a(f"s_lshl_b32 s{T0_}, s{S_CH}, 12", f"s_lshl_b32 s{T1_}, s{S_ROLE}, 10", f"s_add_u32 s{T0_}, s{T0_}, s{T1_}", f"s_add_u32 s{T0_}, s{T0_}, {hex(WS_KT - 512*4096)}", f"v_add_u32 v24, s{T0_}, v{VLN}")
        lds_wait(a, FL_NONCE, VNT, "nz", addr=VNA, sleep=2)
        a(f"v_lshlrev_b32 v25, 16, v{VNT}")
        stamp(a, 2)
        lds_wait(a, FL_G + {0: 0, 1: 4, 2: 16}[ENV("KTRIG", 1)], 17, "b4", sleep=2)
        lp = newlabel("KP"); l1 = newlabel("KPE")
        a(f"s_branch {l1}")
        a(f"{lp}:")
        a("s_sleep 2")
        a(f"{l1}:")
        a(f"global_load_dwordx4 v[20:23], v24, s[{P_WS}:{P_WS+1}] {MOD('KMOD')}")
        guard(a)
        a("s_waitcnt vmcnt(0)")
        for r in range(4): a(f"v_xor_b32 v{20+r}, v{25 if r & 1 else VNT}, v{20+r}")
        a("v_or3_b32 v26, v20, v21, v22", "v_or_b32 v26, v26, v23", "v_cmp_lt_u32 vcc, 0xffff, v26", f"s_cbranch_vccnz {lp}")
        stamp(a, 3)
        for r in (0, 2): a(f"v_xor_b32 v{20+r}, v{VNT}, v{20+r}")
        for r in range(4): a(f"ds_write_b16 v{IXR[r]}, v{20+r}")
        a(f"s_cmp_lg_u32 s{S_ROLE}, 2", f"s_cbranch_scc1 {ex}")
        a("v_and_b32 v20, 0xffff, v20", "v_lshl_or_b32 v20, v21, 16, v20", f"v_lshlrev_b32 v21, 16, v{VDSK}")
        a("s_mov_b32 exec_lo, 0", "s_mov_b32 exec_hi, 0x10000")
        a(f"ds_write_b64 v14, v[20:21] offset:{C_PAR}")
        a("s_mov_b64 exec, -1")
        a(f"s_branch {ex}")
    a(f"{jl[2]}:")
    anchor(G2, G2 + 2, 128); scale_cb()
    it([csq_(G1, G2), cm_(VD, CBR, G2, T + 4)]); csq(G3, G1); csq(G3, G3)
    it([cm_(VA, CBR, G3), cm_(VC, VD, G3, T + 4)])
    ce, co = VA, VC
    for r in range(4):
        ne, no = oth(ce, VA, VB), oth(co, VC, VD)
        it([cm_(ne, ce, G1)] + ([cm_(no, co, G1, T + 4)] if r < 3 else []), 2 * r, ce, co); ce, co = ne, no
    it([], 8, ce, None)
    a(f"v_mov_b32 v36, {f32(2048.0*LOG2E)}", f"v_mul_f32 v24, s{SM}, v36", "v_max_f32 v24, 0, v24", "v_exp_f32 v24, v24")
    it([])
    a(f"s_sub_u32 s{SIS}, s{SC}, 7", f"s_lshl_b32 s{SIS}, s{SIS}, 23")
    a(f"v_lshlrev_b32 v25, 16, v{VDSK}", f"v_mul_f32 v24, s{SIS}, v24", f"v_mov_b32 v{VPR}, v24")
    a(f"ds_write_b64 v14, v[24:25] offset:{C_PAR}")
    a(f"{jn}:")
    a(f"ds_write_b8 v15, v{VONE} offset:{FL_G}")
    stamp(a, 3); kstamp(a, 2)
    for s in range(8): a(f"ds_read_b128 v[{40+4*s}:{43+4*s}], v{VTL} offset:{64*s}")
    a(f"v_mov_b32 v36, {f32(LOG2E)}", f"v_mul_f32 v36, s{SM}, v36")
    a(f"v_mul_f32 v37, {f32(2048.0)}, v36", "v_max_f32 v37, 0, v37", f"v_add_f32 v37, {f32(23.0)}, v37")
    for r in range(4):
        a(f"v_fma_f32 v{LFR[r]}, v{LFR[r]}, v36, -v37")
    for r in range(4):
        a(f"v_exp_f32 v{LFR[r]}, v{LFR[r]}")
    kstamp(a, 3)
    lds_wait(a, FL_G + 3, 17, "u8", addr=14)
    kstamp(a, 4)
    tr = LdsTrack(a); ids = []
    for s in range(8):
        ids.append(tr.issue(f"ds_read_b128 v[{72+4*s}:{75+4*s}], v{VTE} offset:{KG_T[3]+64*s}"))
    for s in range(8):
        tr.wait(ids[s])
        c = "0" if s < 2 else f"v[{20+4*(s&1)}:{23+4*(s&1)}]"
        a(f"v_mfma_f32_16x16x32_f16 v[{20+4*(s&1)}:{23+4*(s&1)}], v[{40+4*s}:{43+4*s}], v[{72+4*s}:{75+4*s}], {c}")
    for r in range(4): a(f"v_add_f32 v{20+r}, v{20+r}, v{24+r}")
    for r in range(4): a(f"v_mul_f32 v{20+r}, v{20+r}, v{LFR[r]}")
    kstamp(a, 5)
    if KOFF: a(f"s_cmp_eq_u32 s{S_G}, 2", "s_cbranch_scc1 KC_SEND")
    for r in range(4):
        a(f"v_cvt_f16_f32 v{20+r}, v{20+r}")
        a(f"ds_write_b16 v{IXR[r]}, v{20+r}")
    a(f"{ex}:")
    a(f"ds_write_b8 v15, v{VONE} offset:{FL_G+4}")
    a("v_mov_b32 v28, 0", "v_mov_b32 v29, 0", "v_mov_b32 v30, 0", "v_mov_b32 v31, 0", f"v_mov_b32 v32, s{S_GB}")
    a("s_waitcnt vmcnt(0)")
    kstamp(a, 6)
    lds_wait(a, FL_G + 4, 20, "b4", addr=14)
    stamp(a, 4); kstamp(a, 7)
    for e in range(3): a(f"ds_read_u16 v{20+e}, v{I1+e}")
    for e in range(4): a(f"ds_read_u16 v{23+e}, v{I2+e}")
    a("s_mov_b64 exec, 1")
    a(f"ds_write_b128 v32, v[28:31] offset:{R_WS5}", f"ds_write_b128 v32, v[28:31] offset:{R_WS9}", f"ds_write_b128 v32, v[28:31] offset:{R_WS3 + 192*16}")
    a("s_mov_b64 exec, -1")
    a("s_waitcnt lgkmcnt(7)")
    a("v_lshl_or_b32 v28, v21, 16, v20", "v_lshl_or_b32 v29, v22, 16, v21")
    a(f"ds_write_b32 v{D1}, v28 offset:{T_DRE}", f"ds_write_b32 v{D1}, v29 offset:{T_DRO}")
    a("s_waitcnt lgkmcnt(5)")
    a("v_lshl_or_b32 v30, v24, 16, v23", "v_lshl_or_b32 v31, v26, 16, v25")
    a(f"ds_write_b32 v{D2}, v30", f"ds_write_b32 v{D3}, v31")
    a(f"ds_write_b8 v15, v{VONE} offset:{FL_G+8}")
    kstamp(a, 8)
    lds_wait(a, FL_G + 8, 20, "b4", addr=14)
    stamp(a, 5)
    PR, FT0, FT1, ACCL, ACCH, ZQ = 16, 18, 19, 20, 24, 28
    VZA, VUA = VDA, VDA2
    LA = ENV("CLA", 6); RSV = ENV("CRSV", 5); NF = ENV("CNF", 2)
    jl = [newlabel("CV") for _ in range(4)]; zend = newlabel("CVE")
    slow = []
    a(f"ds_read_b64 v[{PR}:{PR+1}], v14 offset:{C_PAR}")
    for r in range(1, 4): a(f"s_cmp_eq_u32 s{S_ROLE}, {r}", f"s_cbranch_scc1 {jl[r]}")
    for m in range(4):
        if m: a(f"{jl[m]}:")
        lo, hi = 2 * m, 2 * m + 1
        acc = {lo: ACCL, hi: ACCH}
        ops = []
        if m >= 2:
            for j in (lo, hi): ops.append((j, ("D", 32), ("U", 8 * j - 32)))
        for p in range(max(8 * lo - 16, -7), 8 * hi + 1):
            for j in (lo, hi):
                ks = 8 * j - p
                if 0 <= ks <= 16: ops.append((j, ("D", ks), ("U", p)))
        ncomb0 = len(ops)
        for j in (lo, hi):
            for kind in (3, 5):
                for b in range(6):
                    if 2 <= j - b <= 4: ops.append((j, ("W", kind, b), ("G", kind, j - b)))
            for kind in (7, 9):
                for b in range(2):
                    if j - 2 * b - 4 >= 0: ops.append((j, ("W", kind, b), ("G", kind, j - 2 * b - 4)))
        nops = len(ops)
        first, last = {}, {}
        for k, (j, A, B) in enumerate(ops):
            for key in (A, B):
                first.setdefault(key, k); last[key] = k
        lastlo = max(k for k, o in enumerate(ops) if o[0] == lo)
        pool = list(range(32, 128, 4))
        reg, lid = {}, {}
        def load(tr, key):
            rg = pool.pop(0); reg[key] = rg
            if (XP & 8 and key[0] == "G") or (XP & 16 and key[0] == "W") or (XP & 32 and key[0] == "U"):
                lid[key] = -100; return
            if key[0] == "D":
                ksv = -2 if key[1] == 32 else key[1]
                o = (16 - ksv) * 16
                ad, o = (VDA, o) if o + 3 <= 255 else (VDA2, o - 160)
                tr.issue(f"ds_read2_b32 v[{rg}:{rg+1}], v{ad} offset0:{o} offset1:{o+1}")
                lid[key] = tr.issue(f"ds_read2_b32 v[{rg+2}:{rg+3}], v{ad} offset0:{o+2} offset1:{o+3}")
            elif key[0] == "G":
                _, kind, ix = key
                if kind in (3, 5): o = (4 - ix) * 16 + (64 if kind == 5 else 0); ad = VG8
                else: o = (3 - ix) * 8 + (96 if kind == 9 else 0); ad = VG16
                tr.issue(f"ds_read2_b32 v[{rg}:{rg+1}], v{ad} offset0:{o} offset1:{o+1}")
                lid[key] = tr.issue(f"ds_read2_b32 v[{rg+2}:{rg+3}], v{ad} offset0:{o+2} offset1:{o+3}")
            elif key[0] == "U":
                lid[key] = tr.issue(f"ds_read_b128 v[{rg}:{rg+3}], v{VB_} offset:{64*(key[1]+7)}")
            else:
                _, kind, b = key
                if kind in (3, 5): o = (R_WS3 if kind == 3 else R_WS5) + 512 * b; ad, st = VT8, 64
                else: o = (R_WS7 if kind == 7 else R_WS9) + 1024 * b; ad, st = VT16, 128
                tr.issue(f"ds_read_b64_tr_b16 v[{rg}:{rg+1}], v{ad} offset:{o}")
                lid[key] = tr.issue(f"ds_read_b64_tr_b16 v[{rg+2}:{rg+3}], v{ad} offset:{o+st}")
        keys = sorted(first, key=lambda k_: first[k_])
        tr = LdsTrack(a)
        for key in keys:
            if key[0] == "D": load(tr, key)
        for key in keys:
            if key[0] == "G" and len(pool) > RSV: load(tr, key)
        pend = [k_ for k_ in keys if k_ not in reg]
        a(f"v_lshlrev_b32 v{FT0}, 3, v3", f"v_sub_u32 v{FT0}, v{VB_}, v{FT0}")
        a(f"v_lshrrev_b32 v{FT1}, 2, v2", f"v_lshl_add_u32 v{FT1}, v{FT1}, 2, v3", f"v_and_b32 v{ZQ}, 3, v2", f"v_lshlrev_b32 v{ZQ}, 4, v{ZQ}")
        if SWZ: a(f"v_mul_u32_u24 v{FT1}, s{CSH}, v{FT1}", f"v_xor_b32 v{FT1}, s{CFL}, v{FT1}")
        else: a(f"v_lshlrev_b32 v{FT1}, s{CSH}, v{FT1}")
        a("s_waitcnt lgkmcnt(0)")
        a(f"v_mov_b32 v{VUA}, v{FT0}", f"v_add_u32 v{VZA}, v{FT1}, v{ZQ}")
        a(f"v_xor_b32 v{VLN}, s{CXR}, v{VLN}")
        lds_wait(a, FL_UF, FT0, "b4")
        a(f"s_setprio {eval(os.environ.get('CPRIO', '[1,1,1,1]'))[m]}")
        stamp(a, 6); cstamp(a, 1)
        if XP & 4: a(f"v_mov_b32 v{FT0}, 0", f"s_cmp_lg_u32 s{S_G}, 0", f"s_cbranch_scc1 {zend}")
        for key in lid: lid[key] = -100
        tr = LdsTrack(a)
        ud = {}
        fill = []
        fill.append(("lds", f"ds_read_b64 v[{ZQ}:{ZQ+1}], v{VUA} offset:{480 + 512*lo}", 2))
        fill.append(("ldsU", f"ds_read_b64 v[{ZQ+2}:{ZQ+3}], v{VUA} offset:{480 + 512*hi}", 2))
        for ti, j in enumerate((lo, hi)):
            fill.append(("alloc", j, 5))
            if ti == 0: fill.append(("waitU", None, 5))
            for e in range(4):
                sel = "op_sel:[1,0,0] " if e & 1 else ""
                fill.append(("f", (lambda j=j, e=e, ti=ti, sel=sel: f"v_fma_mix_f32 v{ud[j]+e}, v{ZQ+2*ti+e//2}, v{PR+1}, 0 {sel}op_sel_hi:[1,0,0]"), 5))
            for e in range(4):
                fill.append(("f", (lambda j=j, e=e: f"v_cvt_pk_bf16_f32 v{ud[j]+e}, 0, v{ud[j]+e}"), 5))
        def epi(j, ti):
            y = acc[j]; z = ZQ + 2 * ti; out = []
            for p in range(4): out.append(lambda p=p: f"v_mul_f32 v{y+p}, v{y+p}, v{PR}")
            for p in range(4): out.append(lambda p=p: f"v_cvt_pk_bf16_f32 v{y+p}, 0, v{y+p}")
            for p in range(4): out.append(lambda p=p: f"v_add_f32 v{y+p}, v{y+p}, v{ud[j]+p}")
            for p in range(2): out.append(lambda p=p: f"v_cvt_pk_bf16_f32 v{z+p}, v{y+2*p}, v{y+2*p+1}")
            for p in range(2): out.append(lambda p=p: f"v_min_u32 v{z+p}, -2, v{z+p}")
            return out
        for f in epi(lo, 0): fill.append(("f", f, lastlo + 2))
        fill.append(("lds", f"ds_read_u8 v{FT0}, v{VZ} offset:{FL_S6 + m}", nops - 4))
        fill.append(("lds", f"ds_read_b128 v[{ACCL}:{ACCL+3}], v{VLN} offset:{G_BASE + R_RED + 1024*m}", nops - 4))
        uid = [None]
        def do_fill(n, k):
            while n > 0 and fill:
                kind, t, e = fill[0]
                if e > k: return
                if kind == "alloc":
                    if len(pool) < 2: return
                    ud[t] = pool.pop(); fill.pop(0); continue
                fill.pop(0)
                if kind == "f":
                    if XP & 2 and "v_min" not in t(): continue
                    a(t())
                elif kind == "lds": tr.issue(t)
                elif kind == "ldsU": uid[0] = tr.issue(t)
                elif kind == "waitU": tr.wait(uid[0]); continue
                n -= 1
        kW = ncomb0 - LA if nops > ncomb0 else None
        wok = [False]
        def issue_loads(k, nmax):
            while pend and pool and nmax > 0:
                key = pend[0]
                if first[key] - k > (LA if key[0] != "G" else LA + 4): return
                if key[0] == "W" and not wok[0]:
                    alt = [x for x in pend if x[0] != "W" and first[x] - k <= LA + 2]
                    if not alt: return
                    key = alt[0]
                pend.remove(key); load(tr, key); nmax -= 1
        issue_loads(0, RSV)
        started = set()
        for k, (j, A, B) in enumerate(ops):
            assert A in reg and B in reg, (m, k, A, B)
            tr.wait(max(lid[A], lid[B]))
            c = f"v[{acc[j]}:{acc[j]+3}]" if j in started else "0"
            started.add(j)
            a(f"v_mfma_f32_16x16x32_f16 v[{acc[j]}:{acc[j]+3}], v[{reg[A]}:{reg[A]+3}], v[{reg[B]}:{reg[B]+3}], {c}")
            for key in (A, B):
                if last[key] == k: pool.append(reg[key])
            if kW is not None and k == kW - 3:
                wfid = tr.issue(f"ds_read_b32 v{FT0}, v14 offset:{FL_G + 12}")
            if k == kW:
                tr.wait(wfid)
                sl = newlabel("WS"); bk = newlabel("WB")
                a(f"v_cmp_ne_u32 vcc, s{S_ONES}, v{FT0}", f"s_cbranch_vccnz {sl}")
                a(f"{bk}:")
                slow.append((sl, bk))
                wok[0] = True
                cstamp(a, 3)
            issue_loads(k + 1, 2)
            do_fill(NF, k)
            if k == ncomb0 // 2: cstamp(a, 2)
            if k == ncomb0 - 1: cstamp(a, 4)
        cstamp(a, 5)
        do_fill(1000, 1000)
        assert not fill and not pend
        stamp(a, 7)
        for f in epi(hi, 1): a(f())
        if m < 3: a(f"s_branch {zend}")
    a(f"{zend}:")
    cstamp(a, 6)
    gA = newlabel("ZA"); gC = newlabel("ZC"); zs = newlabel("ZS"); zb = newlabel("ZB"); zc = newlabel("ZCB"); zd = newlabel("ZD")
    a("s_waitcnt lgkmcnt(0)")
    a(f"s_cmp_lg_u32 s{S_G}, 1", f"s_cbranch_scc1 {gA}")
    a(f"v_cmp_ne_u32 vcc, 1, v{FT0}", f"s_cbranch_vccnz {zs}")
    a(f"{zb}:")
    a(f"s_mov_b64 exec, s[{CM}:{CM+1}]")
    for k in range(4): a(f"v_swap_b32 v{ZQ+k}, v{ACCL+k}")
    a("s_mov_b64 exec, -1")
    cstamp(a, 8)
    a(f"buffer_store_dwordx4 v[{ZQ}:{ZQ+3}], v{VZA}, s[{R0}:{R0+3}], s{CZ1} offen sc1")
    a(f"buffer_store_dwordx4 v[{ACCL}:{ACCL+3}], v{VZA}, s[{R0}:{R0+3}], s{CZ0} offen sc1")
    if ENV("ZG2", 0) == 2: a(f"ds_write_b8 v15, v{VONE} offset:{FL_ZISS - 16}")
    a(f"s_branch {zd}")
    for (sl, bk) in slow:
        a(f"{sl}:")
        lds_wait(a, FL_G + 12, FT0, "b4", addr=14)
        a(f"s_branch {bk}")
    a(f"{zs}:")
    a(f"v_mov_b32 v{FT1}, s{S_ROLE}")
    l = newlabel("ZW")
    a(f"{l}:")
    a(f"ds_read_u8 v{FT0}, v{FT1} offset:{FL_S6}")
    guard(a)
    a("s_waitcnt lgkmcnt(0)")
    a(f"v_cmp_ne_u32 vcc, 1, v{FT0}", f"s_cbranch_vccnz {l}")
    a(f"v_lshl_add_u32 v{FT1}, v{FT1}, 10, v{VLN}")
    a(f"ds_read_b128 v[{ACCL}:{ACCL+3}], v{FT1} offset:{G_BASE + R_RED}")
    a("s_waitcnt lgkmcnt(0)")
    a(f"s_branch {zb}")
    a(f"{gA}:")
    a(f"s_cmp_lg_u32 s{S_G}, 0", f"s_cbranch_scc1 {gC}")
    a(f"v_mov_b32 v{FT1}, s{S_ROLE}", f"v_lshl_add_u32 v{FT0}, v{FT1}, 10, v{VLN}")
    a(f"ds_write_b128 v{FT0}, v[{ZQ}:{ZQ+3}] offset:{G_BASE + R_RED}")
    a(f"ds_write_b8 v{FT1}, v{VONE} offset:{FL_S6}")
    cstamp(a, 8)
    a(f"s_branch {zd}")
    a(f"{gC}:")
    cstamp(a, 8)
    a(f"buffer_store_dwordx4 v[{ZQ}:{ZQ+3}], v{VZA}, s[{R0}:{R0+3}], s{CZ0} offen sc1")
    a(f"{zd}:")
    stamp(a, 8)
    if DBG:
        a(f"s_mul_i32 s{T0_}, s{S_ROLE}, 1280", f"s_add_u32 s{T1_}, s{T0_}, s{S_GB}", f"v_lshl_add_u32 v20, v1, 2, s{T1_}")
        a(f"s_mul_i32 s{T1_}, s{S_CH}, 5376", f"s_add_u32 s{T1_}, s{T1_}, s{T0_}", f"s_add_u32 s{T1_}, s{T1_}, {hex(WS_DBG)}", f"v_lshl_add_u32 v21, v1, 2, s{T1_}")
        for k in range(5 + 1):
            a(f"ds_read_b32 v22, v20 offset:{R2 + 256*k}", "s_waitcnt lgkmcnt(0)", f"global_store_dword v21, v22, s[{P_WS}:{P_WS+1}] offset:{256*k}")
        a(f"ds_read_b32 v22, v14 offset:{C_PAR}", f"s_lshl_b32 s{T1_}, s{S_CH}, 2", f"s_add_u32 s{T1_}, s{T1_}, {hex(WS_DBG + 0x300000)}", f"v_mov_b32 v21, s{T1_}")
        a("s_waitcnt lgkmcnt(0)", f"global_store_dword v21, v22, s[{P_WS}:{P_WS+1}]")
    a(f"s_lshl_b32 s{T0_}, s{S_G}, 2", f"s_add_u32 s{T0_}, s{T0_}, s{S_ROLE}", f"v_mov_b32 v8, s{T0_}")
    a("s_waitcnt vmcnt(0)")
    a(f"ds_write_b8 v8, v{VONE} offset:{FL_ZDONE}")


def gen_wjobs(a):
    WA, WD = 10, 11
    end = newlabel("WJE"); w1 = newlabel("WJ1"); w2 = newlabel("WJ2")
    a(f"s_cmp_eq_u32 s{S_WAVE}, 2", f"s_cbranch_scc1 {w2}")
    if XP & 1: a(f"s_branch {w2}")
    a(f"s_add_u32 s{T0_}, s{S_WAVE}, 1", f"s_lshr_b32 s{T0_}, s{T0_}, 2", f"s_cmp_eq_u32 s{S_WAVE}, 1", f"s_cselect_b32 s{T0_}, 2, s{T0_}", f"s_lshl_b32 s{T0_}, s{T0_}, 10")
    a(f"v_lshl_add_u32 v{WA}, v1, 4, s{T0_}", f"v_add_u32 v{WD}, {G_BASE}, v{WA}")
    lds_wait(a, FL_UF, 12, "b4")
    a(f"s_setprio {ENV('WPRIO', 3)}")
    for g in range(3):
        E = 20 + 12 * g; o = C_U + U_SIZE * g + 2 * (240 - 16)
        a(f"ds_read_b128 v[{E}:{E+3}], v{WA} offset:{o}", f"ds_read_b128 v[{E+4}:{E+7}], v{WA} offset:{o+16}", f"ds_read_b64 v[{E+8}:{E+9}], v{WA} offset:{o+32}")
    a(f"s_cmp_eq_u32 s{S_WAVE}, 1", f"s_cbranch_scc1 {w1}")
    for full in (1, 0):
        if not full: a(f"{w1}:")
        for g in range(3):
            if g == 2: a(f"s_cmp_lt_u32 s{S_I}, 24", f"s_cbranch_scc1 {end}")
            E = lambda i: 20 + 12 * g + i
            O = lambda i: 56 + i
            T = lambda i: 65 + i
            Q = lambda i: 72 + i
            X = lambda i: 79 + i
            Y = lambda i: 85 + i
            W7, W9 = 92, 96
            a(f"ds_read_b32 v12, v{VZ} offset:{FL_G + 16*g + 4}")
            if g == 0: a("s_waitcnt lgkmcnt(7)")
            n = 8 if full else 7
            for i in range(1, n + 1): a(f"v_alignbit_b32 v{O(i)}, v{E(i+1)}, v{E(i)}, 16")
            for i in range(1, n + 1): a(f"v_pk_add_f16 v{T(i)}, v{O(i)}, v{E(i+1)}")
            for i in range(1, 5): a(f"v_pk_add_f16 v{X(i)}, v{T(i)}, v{O(i+1)}")
            for i in (range(2, 8) if full else range(3, 7)): a(f"v_pk_add_f16 v{Q(i)}, v{T(i)}, v{T(i+1)}")
            ok = newlabel("WJK")
            a("s_waitcnt lgkmcnt(0)")
            a(f"v_cmp_eq_u32 vcc, s{S_ONES}, v12", f"s_cbranch_vccnz {ok}")
            lds_wait(a, FL_G + 16 * g + 4, 12, "b4", sleep=1)
            a(f"{ok}:")
            off = G_SIZE * (g & 1)
            if g == 2: a(f"v_add_u32 v{WD}, {2*G_SIZE}, v{WD}")
            a(f"ds_write_b128 v{WD}, v[{X(1)}:{X(4)}] offset:{off + R_WS3}")
            for i in (range(2, 7) if full else range(3, 7)): a(f"v_pk_add_f16 v{Y(i)}, v{E(i)}, v{Q(i)}")
            a(f"ds_write_b128 v{WD}, v[{Y(3)}:{Y(6)}] offset:{off + R_WS5 + 16}")
            if full:
                for i in range(5, 8): a(f"v_pk_add_f16 v{X(i)}, v{T(i)}, v{O(i+1)}")
                for k in range(4): a(f"v_pk_add_f16 v{W7+k}, v{Q(2+k)}, v{X(4+k)}")
                a(f"ds_write_b128 v{WD}, v[{W7}:{W7+3}] offset:{off + R_WS7}")
                for k in range(4): a(f"v_pk_add_f16 v{W9+k}, v{Y(2+k)}, v{Q(4+k)}")
                a(f"ds_write_b128 v{WD}, v[{W9}:{W9+3}] offset:{off + R_WS9 + 16}")
            a(f"ds_write_b8 v116, v{VONE} offset:{FL_G + 16*g + 12}")
        a(f"s_branch {end}")
    a(f"{w2}:")
    for g in range(3): a(f"ds_write_b8 v116, v{VONE} offset:{FL_G + 16*g + 12}")
    if PF2 > PF1 or PFD:
        W2 = ENV("PF2W", 14)
        a(f"s_sub_u32 s{T2_}, s{S_I}, {ENV('PF2B', 18)}", f"s_and_b32 s{T2_}, s{T2_}, 31", f"s_cmp_ge_u32 s{T2_}, {W2}", f"s_cbranch_scc1 {end}")
        pf_lane(a, 100, 101)
        lds_wait(a, FL_UF, 12, "b4", sleep=1)
        if PF2 > PF1:
            pf_gu(a, 100, T2_, W2, PF1, PF2, 102, "KS_PF2D")
            a("KS_PF2D:")
        if PFD:
            a(f"s_sub_u32 s{T2_}, {W2-1}, s{T2_}")
            pf_down(a, T2_, W2, 0, PFD, 100, 120, end)
    a(f"{end}:")

def gen(a):
    label = NAME + "_kernel"
    a(f".globl {label}", ".p2align 8", f".type {label},@function", f"{label}:")
    a("s_cmp_ge_u32 s2, 256", "s_cbranch_scc1 KS_END")
    stamp_begin(a)
    a("s_load_dwordx16 s[4:19], s[0:1], 0", "s_load_dwordx16 s[20:35], s[0:1], 64", f"s_load_dwordx2 s[{P_WS}:{P_WS+1}], s[0:1], 128")
    a(f"v_readfirstlane_b32 s{S_WAVE}, v0", f"s_lshr_b32 s{S_WAVE}, s{S_WAVE}, 6")
    a(f"s_and_b32 s{S_XC}, s2, 7", f"s_lshr_b32 s{S_I}, s2, 3")
    if ENV("CPF", 1):
        a(f"s_cmp_lg_u32 s{S_WAVE}, {ENV('CPFW', 0)}", "s_cbranch_scc1 KS_CPE")
        cm = ENV("CPFM", 0)
        if cm == 1: a(f"s_sub_u32 s{T0_}, s{S_I}, 8", f"s_cmp_lt_u32 s{T0_}, 16", "s_cbranch_scc1 KS_CPE")
        if cm == 2: a(f"s_cmp_lt_u32 s{S_I}, 24", "s_cbranch_scc1 KS_CPE")
        if cm == 3: a(f"s_cmp_ge_u32 s{S_I}, 8", "s_cbranch_scc1 KS_CPE")
        if cm == 4: a(f"s_cmp_ge_u32 s{S_I}, 4", "s_cbranch_scc1 KS_CPE")
        if cm == 5: a(f"s_cmp_lt_u32 s{S_I}, 28", "s_cbranch_scc1 KS_CPE")
        a("s_getpc_b64 s[42:43]")
        a("KS_PC:")
        a(f"s_and_b32 s{T0_}, s{S_I}, 7", f"s_mul_i32 s{T0_}, s{T0_}, 4608", "v_and_b32 v126, 63, v0", f"v_lshl_add_u32 v126, v126, 7, s{T0_}", "v_min_u32 v126, KS_END-KS_PC, v126")
        a(f"global_load_dword v127, v126, s[42:43] {MOD('CPFMOD', '')}")
        a("KS_CPE:")
    if ENV("REMAP", 1):
        a(f"s_add_u32 s{T0_}, s{S_WAVE}, 8", f"s_sub_u32 s{T1_}, s{S_WAVE}, 4", f"s_cmp_lt_u32 s{S_WAVE}, 8", f"s_cselect_b32 s{T0_}, s{T0_}, s{T1_}")
        a(f"s_cmp_lt_u32 s{S_WAVE}, 4", f"s_cselect_b32 s{S_WAVE}, s{S_WAVE}, s{T0_}")
    a("v_and_b32 v1, 63, v0", "v_and_b32 v2, 15, v1", "v_lshrrev_b32 v3, 4, v1", f"v_mov_b32 v{VZ}, 0", f"v_mov_b32 v{VONE}, 1")
    a(f"s_mov_b32 s{S_GUARD}, {GUARD}", f"s_mov_b32 s{S_ONES}, 0x01010101")
    a(f"s_lshl_b32 s{S_B2}, s{S_XC}, 5", f"s_add_u32 s{S_B2}, s{S_B2}, s{S_I}")
    a(f"s_mul_i32 s{S_BLK}, s{S_XC}, 18", f"s_add_u32 s{S_BLK}, s{S_BLK}, s{S_I}")
    a(f"s_cmp_lt_u32 s{S_WAVE}, 4", "s_cbranch_scc1 KS_L")
    a(f"s_cmp_ge_u32 s{S_WAVE}, 12", "s_cbranch_scc1 KS_X")
    a("s_setprio 2")
    a(f"s_lshr_b32 s{S_G}, s{S_WAVE}, 2", f"s_sub_u32 s{S_G}, s{S_G}, 1")
    a(f"s_mul_i32 s{S_ROLE}, s{S_G}, 3", f"s_xor_b32 s{S_ROLE}, s{S_ROLE}, s{S_WAVE}", f"s_and_b32 s{S_ROLE}, s{S_ROLE}, 3")
    a(f"s_lshl_b32 s{S_CH}, s{S_B2}, 1", f"s_add_u32 s{S_CH}, s{S_CH}, s{S_G}")
    a(f"s_lshl_b32 s{T0_}, s{S_ROLE}, 11", f"s_add_u32 s{T0_}, s{T0_}, {C_STG}", f"v_lshl_add_u32 v28, v1, 3, s{T0_}")
    pre_ixlf(a)
    a("KS_GRP:")
    gen_group(a)
    a(f"s_cmp_lg_u32 s{S_WAVE}, 4", "s_cbranch_scc1 KS_K1")
    a("s_setprio 0")
    srd(a, R3, P_WS, 12288, WS_KEYS)
    a("v_and_b32 v6, 1, v1", "v_lshlrev_b32 v6, 4, v6", f"s_lshl_b32 s{T0_}, s{S_B2}, 5")
    lds_wait(a, FL_ZF, 8, "b4", sleep=1)
    a("s_mov_b64 exec, 3")
    a(f"s_setprio {ENV('KSPRIO', 1)}")
    a("KS_K0:")
    a(f"ds_read_b128 v[8:11], v6 offset:{C_KEY}")
    guard(a)
    a("s_waitcnt lgkmcnt(0)")
    a("v_min3_u32 v12, v8, v9, v10", "v_min_u32 v12, v12, v11", "v_cmp_eq_u32 vcc, 0, v12", "s_cbranch_vccnz KS_K0")
    a(f"buffer_store_dwordx4 v[8:11], v6, s[{R3}:{R3+3}], s{T0_} offen sc1")
    a("s_mov_b64 exec, -1")
    stamp2(a, 4)
    a("s_waitcnt vmcnt(0)")
    a(f"ds_write_b32 v{VZ}, v{VONE} offset:{FL_KACK}")
    a("KS_K1:")
    a(f"s_cmp_lt_u32 s{S_I}, 18", "s_cbranch_scc1 KS_T")
    a("s_waitcnt lgkmcnt(0)")
    endwave(a)
    a("KS_X:")
    a(f"s_cmp_lt_u32 s{S_I}, 24", "s_cbranch_scc1 KS_X2")
    a(f"s_setprio {ENV('KCPRIO', 2)}")
    a("KS_XC:")
    a(f"s_mov_b32 s{S_G}, 2", f"s_add_u32 s{S_ROLE}, s{S_WAVE}, 3", f"s_and_b32 s{S_ROLE}, s{S_ROLE}, 3")
    a(f"s_lshl_b32 s{S_CH}, s{S_XC}, 3", f"s_and_b32 s{T0_}, s{S_I}, 7", f"s_add_u32 s{S_CH}, s{S_CH}, s{T0_}", f"s_add_u32 s{S_CH}, s{S_CH}, 512")
    a(f"s_lshl_b32 s{T0_}, s{S_ROLE}, 11", f"s_add_u32 s{T0_}, s{T0_}, {C_STG}", f"v_lshl_add_u32 v28, v1, 3, s{T0_}")
    a("s_branch KS_GRP")
    a("KS_X2:")
    a(f"s_cmp_lt_u32 s{S_I}, 8", "s_cbranch_scc1 KS_X3")
    a(f"s_sub_u32 s{T5_}, s{S_WAVE}, 8")
    a("s_branch KS_LN1")
    a("KS_X3:")
    a(f"s_lshl_b32 s{T0_}, s2, 4", f"s_add_u32 s{T0_}, s{T0_}, s{S_WAVE}", f"s_cmp_lg_u32 s{T0_}, {16*ENV('NPUB', 2) + 12}", "s_cbranch_scc1 KS_X3B")
    a("s_setprio 3")
    a(f"s_memrealtime s[{T0_}:{T1_}]")
    a("v_and_b32 v6, 3, v1", "v_lshlrev_b32 v7, 2, v6", "v_min_u32 v6, 2, v6", "v_lshlrev_b32 v6, 2, v6", "v_cmp_eq_u32 vcc, 3, v1")
    a("s_waitcnt lgkmcnt(0)")
    a(f"v_mov_b32 v8, s{T0_}", f"v_mov_b32 v9, s{T1_}", "v_alignbit_b32 v8, v8, v8, v6", f"v_cndmask_b32 v9, v{VZ}, v9, vcc", "v_xor_b32 v8, v8, v9")
    a("v_and_b32 v9, 0xf0000fff, v8", "v_and_b32 v10, 0xfff000, v8", "v_lshl_or_b32 v9, v10, 4, v9", "v_lshrrev_b32 v10, 12, v8", "v_and_b32 v10, 0xf000, v10")
    a("v_or3_b32 v9, v9, v10, v9", "v_or_b32 v9, 0x80000000, v9")
    a("s_mov_b64 exec, 15")
    a(f"global_store_dword v7, v9, s[{P_DBG}:{P_DBG+1}] sc1")
    if SPIN: a(f"v_mov_b32 v8, s{T0_}", f"global_store_dword v7, v8, s[{P_DBG}:{P_DBG+1}] offset:64 sc1")
    a("s_mov_b64 exec, -1")
    a("s_setprio 0")
    a("KS_X3B:")
    if KOFF:
        a(f"s_setprio {ENV('KPPRIO', 3)}")
        a("s_branch KS_XC")
    a("s_waitcnt lgkmcnt(0)")
    a("s_barrier")
    a("s_branch KS_G")
    a("KS_X4:")
    a(f"s_cmp_lt_u32 s{S_I}, 18", "s_cbranch_scc1 KS_G")
    a("s_waitcnt vmcnt(0) lgkmcnt(0)")
    endwave(a)
    a("KS_L:")
    a("v_lshlrev_b32 v6, 2, v0", f"ds_write_b32 v6, v{VZ}")
    a("v_mov_b32 v8, 0", "v_mov_b32 v9, 0", f"s_min_u32 s{T0_}, s{S_WAVE}, 2", f"s_mul_i32 s{T0_}, s{T0_}, {U_SIZE}", "v_min_u32 v6, 59, v1", f"v_lshl_add_u32 v6, v6, 3, s{T0_}")
    a(f"ds_write_b64 v6, v[8:9] offset:{C_U}")
    a(f"s_mov_b32 s{T5_}, s{S_WAVE}")
    a(f"s_sub_u32 s{T0_}, s{S_I}, 8", f"s_cmp_lt_u32 s{T0_}, 16", "s_cbranch_scc0 KS_L0")
    a("KS_LN1:")
    a("s_setprio 3")
    gen_ln1(a)
    if NLL or NL2:
        if not NL: pf_lane(a, 46, 47)
        a(f"s_cmp_ge_u32 s{S_I}, 18", "s_cbranch_scc1 KS_LL2")
        if NLL:
            a(f"s_mul_i32 s{T2_}, s{S_WAVE}, 10", f"s_add_u32 s{T2_}, s{T2_}, s{S_I}", f"s_sub_u32 s{T2_}, s{T2_}, 8")
            pf_gu(a, 46, T2_, 40, PFA, PFA + 10 * NLL, 47, "KS_LLE")
        a("s_branch KS_LLE")
        a("KS_LL2:")
        if NL2:
            a(f"s_mul_i32 s{T2_}, s{S_WAVE}, 6", f"s_add_u32 s{T2_}, s{T2_}, s{S_I}", f"s_sub_u32 s{T2_}, s{T2_}, 18")
            pf_gu(a, 46, T2_, 24, PFA + 10 * NLL, PF0, 47, "KS_LLE")
        a("KS_LLE:")
    a(f"s_mov_b32 s{S_G}, 1")
    a("s_branch KS_L2B")
    a("KS_L0:")
    a(f"s_and_b32 s{T0_}, s{S_I}, 15", f"s_lshl_b32 s{T1_}, s{S_XC}, 4", f"s_add_u32 s{T0_}, s{T0_}, s{T1_}")
    a("v_and_b32 v59, 3, v1", "v_lshlrev_b32 v59, 2, v59")
    a(f"s_lshl_b32 s{T4_}, s{T0_}, 6", f"s_add_u32 s{T1_}, s{T4_}, {hex(WS_FLAG1)}", f"v_add_u32 v7, s{T1_}, v59")
    a(f"s_mul_i32 s{T1_}, s{T0_}, {CLR_WG}", f"s_add_u32 s{T1_}, s{T1_}, {hex(WS_CLR)}")
    a("v_lshlrev_b32 v6, 4, v0")
    a("v_mov_b32 v12, -1", "v_mov_b32 v13, -1", "v_mov_b32 v14, -1", "v_mov_b32 v15, -1")
    a("s_setprio 3")
    pf_lane(a, 16, 17)
    a("s_waitcnt lgkmcnt(0)")
    a(f"s_add_u32 s{R1}, s{P_WS}, s{T1_}", f"s_addc_u32 s{R1+1}, s{P_WS+1}, 0", f"s_mov_b32 s{R1+2}, {CLR_WG}", f"s_mov_b32 s{R1+3}, 0x20000")
    if ENV("UPRE", 0):
        srd(a, R0, P_WS, 0xC00000)
        a(f"s_lshl_b32 s{T2_}, s{S_WAVE}, 3", f"s_xor_b32 s{T2_}, s{T2_}, s{S_B2}", f"s_lshl_b32 s{T2_}, s{T2_}, 13")
        a(f"s_and_b32 s{T3_}, s{S_I}, 3", f"s_lshl_b32 s{T0_}, s{S_XC}, 2", f"s_add_u32 s{T3_}, s{T3_}, s{T0_}", f"s_lshl_b32 s{T3_}, s{T3_}, 13")
        a(f"s_add_u32 s{T0_}, s{T3_}, {256*8192}", f"s_cmp_eq_u32 s{S_WAVE}, 2", f"s_cselect_b32 s{T2_}, s{T0_}, s{T2_}")
        a(f"s_add_u32 s{T0_}, s{T3_}, {hex(WS_KT)}", f"s_cmp_eq_u32 s{S_WAVE}, 3", f"s_cselect_b32 s{T2_}, s{T0_}, s{T2_}")
        a(f"s_lshl_b32 s{T0_}, s{S_I}, 2", f"s_add_u32 s{T0_}, s{T0_}, s{S_WAVE}", f"s_and_b32 s{T0_}, s{T0_}, 0x72", f"s_cmp_gt_u32 s{T0_}, 0x62", f"s_cselect_b32 s{T0_}, 0, s{T0_}")
        a(f"s_bitcmp1_b32 s{T0_}, 1", "s_cbranch_scc1 KS_UPE")
        a("v_lshlrev_b32 v125, 7, v1", f"buffer_load_dword v124, v125, s[{R0}:{R0+3}], s{T2_} offen {MOD('UPMOD')}")
        a("KS_UPE:")
    a("s_barrier")
    if NE:
        a(f"s_and_b32 s{T2_}, s{S_I}, 15", f"s_lshl_b32 s{T3_}, s{S_WAVE}, 4", f"s_add_u32 s{T2_}, s{T2_}, s{T3_}")
        pf_gu(a, 16, T2_, 64, PFB + 16 * NL, PFA, 18, "KS_L1E")
        a("KS_L1E:")
    TW = eval(os.environ.get("TW", "[]"))
    for (w, base, off, nb, sh) in TW:
        l = newlabel("TW")
        a(f"s_cmp_lg_u32 s{S_WAVE}, {w}", f"s_cbranch_scc1 {l}")
        srd(a, R0, {"ws": P_WS, "out": P_OUT}[base], nb, off)
        a(f"v_lshlrev_b32 v125, {sh}, v1", f"buffer_load_dword v124, v125, s[{R0}:{R0+3}], 0 offen")
        a(f"{l}:")
    if ENV("CTRIG", 1): lds_wait(a, FL_PARAM, 8, "nz", sleep=2)
    for k in range((CLR_WG + 4095) // 4096):
        a(f"s_mov_b32 s{T0_}, {4096*k}")
        a(f"buffer_store_dwordx4 v[12:15], v6, s[{R1}:{R1+3}], s{T0_} offen {MOD('CMOD')}")
    stamp(a, 1)
    a(f"global_load_dword v58, v59, s[{P_DBG}:{P_DBG+1}] sc1")
    dbg_wait(a, 0)
    stamp(a, 2)
    a(f"ds_write_b32 v59, v58 offset:{FL_NONCE}")
    a("s_mov_b64 exec, 1")
    a(f"ds_add_rtn_u32 v8, v{VZ}, v{VONE} offset:{FL_LNACK}")
    a("s_mov_b64 exec, -1")
    for d in range(1, 4): a(f"v_lshrrev_b32 v{58-d}, {3*d}, v58")
    a("s_waitcnt lgkmcnt(0)")
    a(f"v_readfirstlane_b32 s{T0_}, v8")
    a(f"s_cmp_lg_u32 s{T0_}, 3", "s_cbranch_scc1 KS_L2")
    a("s_mov_b64 exec, 15")
    a(f"global_store_dword v7, v58, s[{P_WS}:{P_WS+1}] sc1")
    a("s_mov_b64 exec, -1")
    a(f"s_and_b32 s{T2_}, s{S_I}, 7")
    a(f"s_cmp_ge_u32 s{S_I}, 8", "s_cbranch_scc1 KS_L1C")
    if NN:
        a("s_setprio 0")
        lds_wait(a, FL_G + 32 + 4, 8, "b4", sleep=2)
        a("s_setprio 3")
        pf_gu(a, 16, T2_, 8, PF0, PF0 + 8 * NN, 18, "KS_L2")
    a("s_branch KS_L2")
    a("KS_L1C:")
    if NC: pf_gu(a, 16, T2_, 8, PF0 + 8 * NN, PF1, 18, "KS_L2")
    a("KS_L2:")
    a(f"s_mov_b32 s{S_G}, 0")
    a("KS_L2B:")
    srd(a, R0, P_WS, XBYTES, WS_UT)
    if UL:
        a("v_lshrrev_b32 v7, 1, v1", "v_lshlrev_b32 v7, 7, v7", "v_and_b32 v10, 1, v1", "v_lshl_add_u32 v7, v10, 4, v7", "v_lshlrev_b32 v9, 4, v1")
        a("v_lshrrev_b32 v13, 2, v1", "v_lshlrev_b32 v13, 7, v13", "v_and_b32 v12, 3, v1", "v_lshl_add_u32 v13, v12, 4, v13")
        a(f"s_lshl_b32 s{T0_}, s{S_WAVE}, 12", f"s_lshr_b32 s{T1_}, s{S_B2}, 1", f"s_lshl_b32 s{T2_}, s{T1_}, 8", f"s_lshl_b32 s{T1_}, s{T1_}, 14", f"s_add_u32 s{T1_}, s{T1_}, s{T0_}")
        a(f"s_and_b32 s{T3_}, s{S_B2}, 1", f"s_lshl_b32 s{T3_}, s{T3_}, 6", f"s_add_u32 s{T1_}, s{T1_}, s{T3_}")
        a(f"s_and_b32 s{T3_}, s{T2_}, 0x700", f"v_xor_b32 v13, s{T3_}, v13", f"s_and_b32 s{T2_}, s{T2_}, 0x1800", f"s_xor_b32 s{T1_}, s{T1_}, s{T2_}")
        a(f"s_xor_b32 s{T5_}, s{T1_}, 0x800")
        a(f"s_lshl_b32 s{T3_}, s{S_XC}, 3", f"s_add_u32 s{T3_}, s{T3_}, s{S_I}", f"s_add_u32 s{T3_}, s{T3_}, {512 - 24}")
        a(f"s_lshr_b32 s{T4_}, s{T3_}, 2", f"s_lshl_b32 s{T4_}, s{T4_}, 14", f"s_and_b32 s{T3_}, s{T3_}, 3", f"s_lshl_b32 s{T3_}, s{T3_}, 5")
        a(f"s_add_u32 s{T3_}, s{T3_}, s{T4_}", f"s_add_u32 s{T3_}, s{T3_}, s{T0_}")
        a(f"s_lshr_b32 s{T4_}, s{T4_}, 6", f"s_and_b32 s{T2_}, s{T4_}, 0xf00", f"v_xor_b32 v7, s{T2_}, v7", f"s_and_b32 s{T4_}, s{T4_}, 0x1000", f"s_xor_b32 s{T3_}, s{T3_}, s{T4_}")
        a(f"s_lshl_b32 s{T0_}, s{S_WAVE}, 11")
    else:
        a("v_lshrrev_b32 v7, 1, v1", "v_lshlrev_b32 v7, 6, v7", "v_and_b32 v10, 1, v1", "v_lshl_add_u32 v7, v10, 4, v7", "v_lshlrev_b32 v9, 4, v1")
        a(f"s_lshl_b32 s{T0_}, s{S_WAVE}, 11", f"s_lshl_b32 s{T1_}, s{S_B2}, 13", f"s_add_u32 s{T1_}, s{T1_}, s{T0_}")
        if SWU:
            a(f"s_lshl_b32 s{T2_}, s{S_B2}, 7", f"s_and_b32 s{T3_}, s{T2_}, 0x380", f"v_xor_b32 v13, s{T3_}, v9", f"s_and_b32 s{T2_}, s{T2_}, 0x1c00", f"s_xor_b32 s{T1_}, s{T1_}, s{T2_}")
        else: a("v_mov_b32 v13, v9")
        a(f"s_xor_b32 s{T5_}, s{T1_}, 0x400")
        a(f"s_lshl_b32 s{T3_}, s{S_XC}, 3", f"s_add_u32 s{T3_}, s{T3_}, s{S_I}", f"s_add_u32 s{T3_}, s{T3_}, {512 - 24}")
        a(f"s_lshr_b32 s{T4_}, s{T3_}, 1", f"s_lshl_b32 s{T4_}, s{T4_}, 13", f"s_and_b32 s{T3_}, s{T3_}, 1", f"s_lshl_b32 s{T3_}, s{T3_}, 5")
        a(f"s_add_u32 s{T3_}, s{T3_}, s{T4_}", f"s_add_u32 s{T3_}, s{T3_}, s{T0_}")
        if SWU:
            a(f"s_lshr_b32 s{T4_}, s{T4_}, 6", f"s_and_b32 s{T2_}, s{T4_}, 0x780", f"v_xor_b32 v7, s{T2_}, v7", f"s_and_b32 s{T4_}, s{T4_}, 0x1800", f"s_xor_b32 s{T3_}, s{T3_}, s{T4_}")
    a(f"s_cmp_lt_u32 s{S_I}, 24", f"s_cselect_b32 s{T3_}, {XBYTES}, s{T3_}", f"s_cselect_b32 s{T2_}, 0, {hex(TAGM)}")
    a(f"v_mov_b32_dpp v64, v58 quad_perm:[0,1,0,1] {DPPM}", f"v_mov_b32_dpp v65, v58 quad_perm:[2,3,2,3] {DPPM}")
    a(f"s_bitcmp1_b32 s{S_I}, 0", "s_cselect_b64 vcc, -1, 0", "v_cndmask_b32 v64, v64, v65, vcc")
    for d in range(4): a(f"v_and_b32 v{60+d}, {hex(TAGM)}, v{58-d}")
    for d in range(3, 0, -1): a(f"v_lshrrev_b32 v{64+d}, {3*d}, v64")
    for d in range(4): a(f"v_and_b32 v{64+d}, s{T2_}, v{64+d}")
    a(f"s_lshl_b32 s{T4_}, s{S_WAVE}, 10", f"s_add_u32 s{T4_}, s{T4_}, {C_U + 480}")
    a("v_bfe_u32 v11, v1, 1, 1", f"v_mul_u32_u24 v11, {U_SIZE}, v11", "v_lshl_add_u32 v11, v10, 4, v11", "v_lshrrev_b32 v10, 2, v1", "v_lshl_add_u32 v11, v10, 5, v11", f"v_add_u32 v11, s{T4_}, v11")
    a(f"v_add_u32 v10, s{T4_}, v9")
    a(f"v_mov_b32 v116, s{S_WAVE}")
    a(f"s_add_u32 s{T0_}, s{T0_}, {hex(WS_FLAG1)}", "v_lshrrev_b32 v12, 2, v1", "v_lshl_add_u32 v12, v12, 6, v59", f"v_add_u32 v12, s{T0_}, v12")
    UT = eval(os.environ.get("UT", "(20, 4, 24)"))
    a(f"s_cmp_lt_u32 s{S_I}, 8", f"s_cselect_b32 s{T2_}, {UT[0]}, {UT[1]}", f"s_cmp_ge_u32 s{S_I}, 24", f"s_cselect_b32 s{T2_}, {UT[2]}, s{T2_}", f"v_mov_b32 v14, s{T2_}")
    a("s_setprio 0")
    a("s_waitcnt vmcnt(0)")
    a(f"ds_write_b8 v116, v{VONE} offset:{FL_UTOK + 4}")
    stamp(a, 8)
    lds_wait(a, FL_G, 8, "b4", addr=14, sleep=2)
    a("s_setprio 3")
    stamp(a, 5)
    if ENV("UDELAY", 0): a(f"s_sleep {ENV('UDELAY', 0)}")
    lp = newlabel("UP"); l1 = newlabel("UPE")
    UM = os.environ.get("UMOD", "sc1").replace("_", " ")
    MK = [6, 8, 10, 12]
    if ENV("MPOLL", 0):
        for m in MK: a(f"s_mov_b64 s[{m}:{m+1}], -1")
        a(f"s_mov_b32 s{SP0}, {hex(TAGM)}")
    a(f"s_branch {l1}")
    a(f"{lp}:")
    a(f"s_sleep {ENV('USLEEP', 2)}")
    a(f"{l1}:")
    if ENV("MPOLL", 0):
        lds = [f"buffer_load_dwordx4 v[20:23], v13, s[{R0}:{R0+3}], s{T1_} offen {UM}", f"buffer_load_dwordx4 v[24:27], v13, s[{R0}:{R0+3}], s{T5_} offen {UM}",
               f"buffer_load_dwordx4 v[28:31], v7, s[{R0}:{R0+3}], s{T3_} offen {UM}"]
        for k in range(3): a(f"s_mov_b64 exec, s[{MK[k]}:{MK[k]+1}]", lds[k])
        a(f"s_mov_b64 exec, s[{MK[3]}:{MK[3]+1}]")
        a(f"global_load_dword v32, v12, s[{P_WS}:{P_WS+1}] sc1", f"global_load_dword v33, v12, s[{P_WS}:{P_WS+1}] offset:1024 sc1")
        guard(a)
        for k in range(3):
            a(f"s_mov_b64 exec, s[{MK[k]}:{MK[k]+1}]", f"s_waitcnt vmcnt({4-k})")
            for d in range(4): a(f"v_xor_b32 v{20+4*k+d}, v{(64 if k == 2 else 60)+d}, v{20+4*k+d}")
            a(f"v_or3_b32 v44, v{20+4*k}, v{21+4*k}, v{22+4*k}", f"v_bitop3_b32 v44, v44, v{23+4*k}, s{SP0} bitop3:0xa8", f"v_cmp_ne_u32 s[{MK[k]}:{MK[k]+1}], 0, v44")
        a(f"s_mov_b64 exec, s[{MK[3]}:{MK[3]+1}]", "s_waitcnt vmcnt(0)")
        a("v_xor_b32 v32, v58, v32", "v_bitop3_b32 v32, v32, v58, v33 bitop3:0xf6", f"v_cmp_ne_u32 s[{MK[3]}:{MK[3]+1}], 0, v32")
        a(f"s_or_b64 vcc, s[{MK[0]}:{MK[0]+1}], s[{MK[1]}:{MK[1]+1}]", f"s_or_b64 vcc, vcc, s[{MK[2]}:{MK[2]+1}]", f"s_or_b64 vcc, vcc, s[{MK[3]}:{MK[3]+1}]", f"s_cbranch_scc1 {lp}")
        a("s_mov_b64 exec, -1")
    else:
        a(f"global_load_dword v32, v12, s[{P_WS}:{P_WS+1}] {MOD('FMOD')}", f"global_load_dword v33, v12, s[{P_WS}:{P_WS+1}] offset:1024 {MOD('FMOD')}")
        a(f"buffer_load_dwordx4 v[20:23], v13, s[{R0}:{R0+3}], s{T1_} offen {UM}")
        a(f"buffer_load_dwordx4 v[24:27], v13, s[{R0}:{R0+3}], s{T5_} offen {UM}")
        a(f"buffer_load_dwordx4 v[28:31], v7, s[{R0}:{R0+3}], s{T3_} offen {UM}")
        guard(a)
        for k in range(3):
            a(f"s_waitcnt vmcnt({2-k})")
            if k == 0: a("v_xor_b32 v32, v58, v32", "v_xor_b32 v33, v58, v33")
            for d in range(4): a(f"v_xor_b32 v{20+4*k+d}, v{(64 if k == 2 else 60)+d}, v{20+4*k+d}")
            a(f"v_or3_b32 v44, v{20+4*k}, v{21+4*k}, v{44 if k else 21}", f"v_or3_b32 v44, v{22+4*k}, v{23+4*k}, v44")
        a(f"v_and_b32 v44, {hex(TAGM)}, v44", "v_or3_b32 v44, v44, v32, v33", "v_cmp_ne_u32 vcc, 0, v44", f"s_cbranch_vccnz {lp}")
    stamp(a, 6)
    a("ds_write_b128 v11, v[20:23]", "ds_write_b128 v11, v[24:27] offset:512", f"ds_write_b128 v10, v[28:31] offset:{2*U_SIZE}")
    a(f"ds_write_b8 v116, v{VONE} offset:{FL_UF}")
    stamp(a, 7)
    gen_wjobs(a)
    a("s_setprio 0")
    a(f"s_lshr_b32 s{T0_}, s{S_B2}, 6", f"s_lshl_b32 s{T0_}, s{T0_}, 9")
    a(f"s_bfe_u32 s{T1_}, s{S_B2}, 0x20004", f"s_lshl_b32 s{T1_}, s{T1_}, 6", f"s_add_u32 s{T0_}, s{T0_}, s{T1_}")
    a(f"s_and_b32 s{T1_}, s{S_B2}, 3", f"s_lshl_b32 s{T1_}, s{T1_}, 4", f"s_add_u32 s{T0_}, s{T0_}, s{T1_}")
    a(f"s_and_b32 s{T1_}, s{S_B2}, 12", f"s_add_u32 s{T0_}, s{T0_}, s{T1_}")
    a(f"s_lshr_b32 s{T1_}, s{S_WAVE}, 1", f"s_lshl_b32 s{T1_}, s{T1_}, 8", f"s_add_u32 s{T0_}, s{T0_}, s{T1_}")
    a(f"s_and_b32 s{T1_}, s{S_WAVE}, 1", f"s_lshl_b32 s{T1_}, s{T1_}, 1", f"s_add_u32 s{T0_}, s{T0_}, s{T1_}")
    a("v_lshrrev_b32 v113, 5, v1", "v_and_b32 v114, 31, v1")
    a(f"v_add_u32 v112, s{T0_}, v113")
    a("v_mul_u32_u24 v115, 1152, v112", "v_lshl_add_u32 v8, v114, 2, v115", "v_lshl_add_u32 v115, v114, 4, v115", "v_lshlrev_b32 v7, 2, v114", "v_lshlrev_b32 v6, 4, v114")
    a(f"v_bfe_u32 v111, v1, 3, 1", f"v_add_u32 v111, s{T0_}, v111", "v_mul_u32_u24 v111, 1152, v111", "v_and_b32 v9, 7, v1", "v_lshl_add_u32 v111, v9, 4, v111")
    srd(a, R0, P_X, XBYTES)
    srd(a, R1, P_WR, 1152)
    a(f"buffer_load_dwordx4 v[10:13], v115, s[{R0}:{R0+3}], 0 offen")
    a(f"buffer_load_dwordx4 v[14:17], v115, s[{R0}:{R0+3}], 0 offen offset:512")
    a(f"buffer_load_dword v18, v8, s[{R0}:{R0+3}], 0 offen offset:1024")
    a(f"buffer_load_dwordx4 v[50:53], v6, s[{R1}:{R1+3}], 0 offen")
    a(f"buffer_load_dwordx4 v[54:57], v6, s[{R1}:{R1+3}], 0 offen offset:512")
    a(f"buffer_load_dword v58, v7, s[{R1}:{R1+3}], 0 offen offset:1024")
    if not PTAG:
        a(f"s_cmp_lt_u32 s{S_I}, 18", "s_cbranch_scc1 KS_L4")
        a(f"s_mul_i32 s{T0_}, s{S_XC}, 14", f"s_add_u32 s{T0_}, s{T0_}, s{S_I}", f"s_mul_i32 s{T0_}, s{T0_}, {CLRP_WG}", f"s_add_u32 s{T0_}, s{T0_}, {hex(WS_PART - 18*CLRP_WG)}")
        a(f"s_add_u32 s{R1}, s{P_WS}, s{T0_}", f"s_addc_u32 s{R1+1}, s{P_WS+1}, 0", f"s_mov_b32 s{R1+2}, {CLRP_WG}", f"s_mov_b32 s{R1+3}, 0x20000")
        a("v_lshlrev_b32 v6, 4, v0", "v_mov_b32 v60, -1", "v_mov_b32 v61, -1", "v_mov_b32 v62, -1", "v_mov_b32 v63, -1")
        for k in range(6):
            a(f"s_movk_i32 s{T0_}, {4096*k}")
            a(f"buffer_store_dwordx4 v[60:63], v6, s[{R1}:{R1+3}], s{T0_} offen sc1")
    a("KS_L4:")
    srd(a, R0, P_WS, 0x240000, WS_ZB1)
    srd(a, R1, P_OUT, XBYTES)
    srd(a, R2_, P_WS, XBYTES, WS_X2)
    srd(a, R3, P_WS, 12288, WS_KEYS)
    if not XCL:
        for d in range(4): a(f"v_mov_b32 v{60+d}, -1")
        a(f"buffer_store_dwordx4 v[60:63], v115, s[{R2_}:{R2_+3}], 0 offen sc1")
        a(f"buffer_store_dwordx4 v[60:63], v115, s[{R2_}:{R2_+3}], 0 offen offset:512 sc1")
        a("s_mov_b64 exec, 0xffff")
        a(f"buffer_store_dwordx4 v[60:63], v111, s[{R2_}:{R2_+3}], 0 offen offset:1024 sc1")
        a("s_mov_b64 exec, -1")
    a(f"s_not_b32 s{T1_}, s{S_B2}", f"v_xor_b32 v8, s{T1_}, v0")
    a("v_lshrrev_b32 v6, 1, v0", "v_lshlrev_b32 v6, 6, v6", "v_and_b32 v8, 1, v8", "v_lshl_add_u32 v6, v8, 4, v6")
    a(f"s_lshr_b32 s{T0_}, s{S_B2}, 2", f"s_lshl_b32 s{T0_}, s{T0_}, 15", f"s_and_b32 s{T1_}, s{S_B2}, 1", f"s_lshl_b32 s{T1_}, s{T1_}, 14", f"s_add_u32 s{T0_}, s{T0_}, s{T1_}")
    a(f"s_and_b32 s{T1_}, s{S_B2}, 2", f"s_lshl_b32 s{T1_}, s{T1_}, 4", f"s_add_u32 s{T0_}, s{T0_}, s{T1_}")
    a(f"s_lshr_b32 s{T2_}, s{S_B2}, 2", f"s_lshl_b32 s{T2_}, s{T2_}, 12", f"s_and_b32 s{T1_}, s{S_B2}, 3", f"s_lshl_b32 s{T1_}, s{T1_}, 4")
    a(f"s_add_u32 s{T2_}, s{T2_}, s{T1_}", f"s_lshl_b32 s{T1_}, s{S_WAVE}, 10", f"s_add_u32 s{T2_}, s{T2_}, s{T1_}", f"s_add_u32 s{T2_}, s{T2_}, 0x200000")
    a("v_lshlrev_b32 v9, 6, v2")
    if SWZ:
        a(f"s_lshl_b32 s{T1_}, s{S_B2}, 5", f"s_and_b32 s{T3_}, s{T1_}, 0x1f80", f"v_xor_b32 v6, s{T3_}, v6", f"s_and_b32 s{T3_}, s{T1_}, 0x380", f"v_xor_b32 v9, s{T3_}, v9")
        a(f"s_and_b32 s{T3_}, s{T1_}, 0xc00", f"s_xor_b32 s{T2_}, s{T2_}, s{T3_}", f"s_and_b32 s{T1_}, s{S_B2}, 1", f"s_lshl_b32 s{T1_}, s{T1_}, 13", f"s_xor_b32 s{T0_}, s{T0_}, s{T1_}")
    a(f"s_xor_b32 s{T1_}, s{T0_}, 0x2000")
    a(f"s_mul_i32 s{T3_}, s{S_WAVE}, 2304", f"s_add_u32 s{T3_}, s{T3_}, {C_XR}", f"v_lshl_add_u32 v117, v114, 5, s{T3_}", f"v_lshl_add_u32 v110, v114, 3, s{T3_}")
    a(f"s_lshl_b32 s{T3_}, s{S_WAVE}, 9", f"s_add_u32 s{T3_}, s{T3_}, {G_BASE}", f"v_lshl_add_u32 v108, v1, 2, s{T3_}", f"v_lshl_add_u32 v109, v1, 4, s{T3_}")
    a(f"s_mov_b32 s{T3_}, 0x02020000", f"v_mul_lo_u32 v118, v113, s{T3_}", "v_add_u32 v118, 0x01000c0c, v118")
    a(f"v_lshlrev_b32 v8, 2, v0", f"v_add_u32 v8, {C_XR}, v8")
    a(f"s_lshl_b32 s{T3_}, s{S_WAVE}, 6", f"s_add_u32 s{T3_}, s{T3_}, {C_XR + 2048}", f"v_lshl_add_u32 v119, v2, 2, s{T3_}")
    a("s_waitcnt vmcnt(0)")
    X = 20
    for j in range(9): unpack(a, X + 2 * j, 10 + j)
    WU, WS_ = 80, 78
    for j in range(9): unpack(a, WU + 2 * j, 50 + j)
    a(f"v_pk_add_f32 v[{WS_}:{WS_+1}], v[{WU}:{WU+1}], v[{WU+2}:{WU+3}]")
    for j in range(2, 9): a(f"v_pk_add_f32 v[{WS_}:{WS_+1}], v[{WS_}:{WS_+1}], v[{WU+2*j}:{WU+2*j+1}]")
    a(f"v_add_f32 v{WS_}, v{WS_}, v{WS_+1}")
    red32(a, "v_add_f32", WS_, WS_ + 1)
    a("v_sub_u32 v98, 0x87ff, v112", "v_lshl_add_u32 v99, v116, 1, v113", "v_lshlrev_b32 v99, 2, v99")
    ZG2 = ENV("ZG2", 0)
    if ZG2:
        lds_wait(a, {1: FL_ZDONE, 2: FL_ZISS}[ZG2], 60, "b4", sleep=1)
        zpoll(a, [f"buffer_load_dwordx4 v[68:71], v{VZ}, s[{R0}:{R0+3}], s{T2_} offen sc1"], list(range(68, 72)), ENV("ZSLEEP2", 2))
    lds_wait(a, FL_ZDONE + 4, 60, "b4", sleep=1)
    a("s_setprio 3")
    if PFD2 > PFD:
        W3 = ENV("PF3W", 6)
        a(f"s_sub_u32 s{T5_}, s{S_I}, 18", f"s_cmp_ge_u32 s{T5_}, {W3}", "s_cbranch_scc1 KS_PF3E", f"s_cmp_lg_u32 s{S_WAVE}, 2", "s_cbranch_scc1 KS_PF3E")
        pf_down(a, T5_, W3, PFD, PFD2, 100, 120, "KS_PF3E", R4)
        a("KS_PF3E:")
    stamp2(a, 1)
    if ENV("ZGATE", 1) and not ZG2:
        zpoll(a, [f"buffer_load_dwordx4 v[68:71], v{VZ}, s[{R0}:{R0+3}], s{T2_} offen sc1"], list(range(68, 72)), ENV("ZSLEEP", 1))
        if ENV("ZDELAY", 0): a(f"s_sleep {ENV('ZDELAY', 0)}")
    lp = newlabel("ZP"); l1 = newlabel("ZPE")
    a(f"s_branch {l1}", f"{lp}:", f"s_sleep {ENV('ZSLEEP', 1)}", f"{l1}:")
    a(f"buffer_load_dwordx4 v[60:63], v6, s[{R0}:{R0+3}], s{T0_} offen sc1",
      f"buffer_load_dwordx4 v[64:67], v6, s[{R0}:{R0+3}], s{T1_} offen sc1",
      f"buffer_load_dwordx4 v[68:71], v9, s[{R0}:{R0+3}], s{T2_} offen sc1")
    guard(a)
    for k in range(3):
        a(f"s_waitcnt vmcnt({2-k})")
        ad, o = (8, 4 * k) if k < 2 else (119, 0)
        a(f"ds_write2st64_b32 v{ad}, v{60+4*k}, v{61+4*k} offset0:{o} offset1:{9+o}")
        a(f"ds_write2st64_b32 v{ad}, v{62+4*k}, v{63+4*k} offset0:{18+o} offset1:{27+o}")
        a(f"v_max3_u32 v44, v{60+4*k}, v{61+4*k}, v{44 if k else 61}", f"v_max3_u32 v44, v{62+4*k}, v{63+4*k}, v44")
    a("v_cmp_eq_u32 vcc, -1, v44", f"s_cbranch_vccnz {lp}")
    a(f"ds_write_b8 v116, v{VONE} offset:{FL_ZF}")
    stamp2(a, 3)
    lp = newlabel("ZW")
    a(f"{lp}:")
    a(f"ds_read_b32 v44, v{VZ} offset:{FL_ZF}")
    for k in range(4):
        a(f"ds_read_b128 v[{60+4*k}:{63+4*k}], v117 offset:{1024*(k>>1) + 16*(k&1)}")
    a("ds_read_b64 v[76:77], v110 offset:2048")
    guard(a)
    a("s_waitcnt lgkmcnt(5)")
    a(f"v_cmp_ne_u32 vcc, s{S_ONES}, v44", f"s_cbranch_vccnz {lp}")
    for j in range(9):
        if j % 2 == 0: a(f"s_waitcnt lgkmcnt({4-j//2})")
        a(f"v_perm_b32 v{60+2*j}, v{60+2*j}, v{60+2*j}, v118", f"v_perm_b32 v{61+2*j}, v{61+2*j}, v{61+2*j}, v118")
        h = f"v[{X+2*j}:{X+2*j+1}]"
        a(f"v_pk_add_f32 {h}, v[{60+2*j}:{61+2*j}], {h}")
        if j == 0: a(f"v_pk_mul_f32 v[42:43], {h}, {h}", f"v_pk_mul_f32 v[44:45], {h}, v[{WU}:{WU+1}]")
        else:
            a(f"v_pk_fma_f32 v[42:43], {h}, {h}, v[42:43]", f"v_pk_fma_f32 v[44:45], {h}, v[{WU+2*j}:{WU+2*j+1}], v[44:45]")
            a(f"v_pk_add_f32 v[40:41], {h}, " + (f"v[{X}:{X+1}]" if j == 1 else "v[40:41]"))
    a("v_add_f32 v42, v42, v43", "v_add_f32 v44, v44, v45", "v_add_f32 v40, v40, v41")
    a("v_mov_b32 v41, v40", "v_permlane16_swap_b32 v42, v44", "v_permlane16_swap_b32 v40, v41")
    a("v_add_f32 v42, v42, v44", "v_add_f32 v40, v40, v41")
    for r in (8, 4, 2, 1):
        a(f"v_add_f32_dpp v42, v42, v42 row_ror:{r} {DPPM}", f"v_add_f32_dpp v40, v40, v40 row_ror:{r} {DPPM}")
    a(f"v_mul_f32 v40, {f32(1.0/576)}, v40", "v_mov_b32 v44, v42")
    a("v_cvt_pk_bf16_f32 v41, 0, v40", "v_mul_f32 v40, v40, v40")
    a("v_permlane16_swap_b32 v42, v44")
    a(f"v_mov_b32 v43, {f32(1.0/576)}", "v_fma_f32 v42, v42, v43, -v40", f"v_fma_f32 v44, -v41, v{WS_}, v44", "v_max_f32 v42, 0, v42")
    a(f"v_cvt_pk_bf16_f32 v42, 0, v42", f"v_add_f32 v42, {f32(1e-5)}, v42")
    a(f"v_cvt_pk_bf16_f32 v42, 0, v42", "v_sqrt_f32 v42, v42")
    a(f"v_cvt_pk_bf16_f32 v42, 0, v42", "v_rcp_f32 v42, v42")
    a("v_mul_f32 v60, v44, v42")
    a("v_cvt_pk_bf16_f32 v60, v60, v60")
    a("v_ashrrev_i32 v61, 31, v60", "v_or_b32 v61, 0x80000000, v61", f"s_mov_b32 s{T3_}, 0xffff0000", "v_xor_b32 v60, v60, v61", f"v_and_or_b32 v60, v60, s{T3_}, v98")
    a("s_mov_b32 exec_lo, 1", "s_mov_b32 exec_hi, 1")
    a(f"ds_write_b32 v99, v60 offset:{C_KEY}")
    a("s_mov_b64 exec, -1")
    stamp2(a, 4)
    a(f"s_setprio {ENV('L2PRIO', 2)}")
    for j in range(9):
        rnd2(a, X + 2 * j)
    ln_stats(a, X, 40, 42, 44, 46, 48)
    for j in range(9):
        ln_apply_pair(a, X + 2 * j, 40, 42, 44, 10 + j)
        a(f"v_pk_add_f32 v[{X+2*j}:{X+2*j+1}], v[44:45], v[{X+2*j}:{X+2*j+1}]")
        if XCL != 2: a(f"v_min_u32 v{10+j}, -2, v{10+j}")
    a(f"v_cvt_pk_bf16_f32 v58, v{X+16}, v{X+17}")
    a("ds_write_b32 v108, v18", "ds_write_b32 v108, v58 offset:256", "ds_read_b128 v[64:67], v109")
    a(f"buffer_store_dwordx4 v[10:13], v115, s[{R2_}:{R2_+3}], 0 offen sc1")
    a(f"buffer_store_dwordx4 v[14:17], v115, s[{R2_}:{R2_+3}], 0 offen offset:512 sc1")
    for j in range(8):
        a(f"v_cvt_pk_bf16_f32 v{50+j}, v{X+2*j}, v{X+2*j+1}")
    a("s_mov_b64 exec, 0xffff")
    a("s_waitcnt lgkmcnt(0)")
    a(f"buffer_store_dwordx4 v[64:67], v111, s[{R2_}:{R2_+3}], 0 offen offset:1024 sc1")
    if ENV("OD", 0): a("s_setprio 0", f"s_sleep {ENV('OD', 0)}")
    a("s_mov_b64 exec, 0xffff0000")
    a(f"buffer_store_dwordx4 v[64:67], v111, s[{R1}:{R1+3}], 0 offen offset:1024 sc1")
    a("s_mov_b64 exec, -1")
    a(f"buffer_store_dwordx4 v[50:53], v115, s[{R1}:{R1+3}], 0 offen sc1")
    a(f"buffer_store_dwordx4 v[54:57], v115, s[{R1}:{R1+3}], 0 offen offset:512 sc1")
    stamp2(a, 5)
    a("s_waitcnt vmcnt(0)")
    a("s_mov_b64 exec, 1")
    a(f"ds_add_rtn_u32 v62, v{VZ}, v{VONE} offset:{FL_F2CNT}")
    a("s_waitcnt lgkmcnt(0)")
    a("v_cmp_eq_u32 vcc, 3, v62", "s_and_b64 exec, exec, vcc", "s_cbranch_execz KS_NOF2")
    a(f"s_lshl_b32 s{T0_}, s2, 4", f"s_add_u32 s{T0_}, s{T0_}, 8192")
    a(f"buffer_store_dword v{VONE}, v{VZ}, s[{R3}:{R3+3}], s{T0_} offen sc1")
    a("KS_NOF2:")
    a("s_mov_b64 exec, -1")
    a("s_setprio 0")
    a(f"s_cmp_lt_u32 s{S_I}, 18", "s_cbranch_scc1 KS_B")
    a("s_waitcnt lgkmcnt(0)")
    endwave(a)
    a("KS_T:")
    a("s_setprio 0")
    a(f"s_cmp_ge_u32 s{S_WAVE}, 10", "s_cbranch_scc1 KS_P")
    a("v_and_b32 v6, 1, v1", "v_subrev_u32 v6, 1, v6")
    a("v_and_b32 v7, 7, v1", "v_lshlrev_b32 v7, 2, v7")
    srd(a, R3, P_WS, 12288, WS_KEYS)
    a(f"s_cmp_eq_u32 s{S_WAVE}, 9", "s_cbranch_scc1 KS_W9")
    a(f"s_cmp_eq_u32 s{S_WAVE}, 8", "s_cbranch_scc1 KS_L2W")
    a(f"s_sub_u32 s{T1_}, s{S_WAVE}, 4", f"s_lshl_b32 s{T0_}, s{T1_}, 10", f"v_lshl_add_u32 v33, v1, 4, s{T0_}", f"s_movk_i32 s{T0_}, 4096")
    a(f"s_lshl_b32 s{T1_}, s{T1_}, 7", "v_lshlrev_b32 v32, 4, v2", "v_lshl_add_u32 v32, v3, 5, v32", f"v_add_u32 v32, s{T1_}, v32")
    lds_wait(a, FL_KACK, 8, "nz", sleep=1)
    a("s_setprio 2")
    if ENV('KDELAY', 12): a(f"s_sleep {ENV('KDELAY', 12)}")
    stamp2(a, 1)
    zpoll(a, [f"buffer_load_dwordx4 v[8:11], v33, s[{R3}:{R3+3}], 0 offen sc1",
           f"buffer_load_dwordx4 v[12:15], v33, s[{R3}:{R3+3}], s{T0_} offen sc1"], list(range(8, 16)), ENV("KSLEEP", 4))
    a(f"ds_write_b32 v{VZ}, v{VONE} offset:{FL_KSEEN}")
    stamp2(a, 2)
    pool = Pool(range(16, 28))
    x = [8, 9, 10, 11]; y = [12, 13, 14, 15]
    for (i, j) in ((0, 1), (2, 3), (0, 2), (1, 3), (1, 2)):
        ce_inlane(a, x, i, j, pool); ce_inlane(a, y, i, j, pool)
    clean8(a, x, pool, 6, rev=True); clean8(a, y, pool, 6, rev=True)
    merge_pair(a, x, y, pool); clean8(a, x, pool, 6)
    for M in MIRRORS:
        merge_mirror(a, x, pool, M); clean8(a, x, pool, 6)
    for i in range(4): a(f"v_mov_b32 v{28+i}, v{x[i]}")
    a("s_mov_b32 exec_lo, 0x00030003", "s_mov_b32 exec_hi, 0x00030003")
    a(f"ds_write_b128 v32, v[28:31] offset:{C_CAND}")
    a("s_mov_b64 exec, -1")
    stamp2(a, 3)
    a("s_setprio 0")
    a("s_branch KS_B")
    a("KS_L2W:")
    srd(a, R2_, P_WS, XBYTES, WS_X2)
    a(f"s_mov_b32 s{T0_}, 0xcccccccc", f"s_mov_b32 s{T1_}, 0xcccccccc", f"s_mov_b32 s{T2_}, 0xf0f0f0f0", f"s_mov_b32 s{T3_}, 0xf0f0f0f0", f"s_movk_i32 s{T4_}, 1152")
    a("v_lshrrev_b32 v34, 3, v1", "v_lshlrev_b32 v34, 4, v34", "v_lshlrev_b32 v33, 4, v2")
    lds_wait(a, FL_KACK, 8, "nz", sleep=1)
    a("s_setprio 2")
    a("KS_L2POLL:")
    a(f"ds_read_b128 v[8:11], v33 offset:{C_CAND}")
    a(f"ds_read_b128 v[12:15], v33 offset:{C_CAND + 256}")
    guard(a)
    a("s_waitcnt lgkmcnt(0)")
    a("v_min3_u32 v16, v8, v9, v10", "v_min3_u32 v17, v11, v12, v13", "v_min3_u32 v16, v16, v14, v15", "v_min_u32 v16, v16, v17", "v_cmp_eq_u32 vcc, 0, v16")
    a("s_cbranch_vccnz KS_L2POLL")
    stamp2(a, 1)
    pool = Pool(range(16, 28))
    x = [8, 9, 10, 11]; y = [12, 13, 14, 15]
    merge_pair(a, x, y, pool); clean8(a, x, pool, 6)
    for li, M in enumerate(MIRRORS):
        merge_mirror(a, x, pool, M)
        if li < 2: clean8(a, x, pool, 6)
    a(f"v_cndmask_b32 v30, v{x[0]}, v{x[1]}, s[{T0_}:{T1_}]", f"v_cndmask_b32 v31, v{x[2]}, v{x[3]}, s[{T0_}:{T1_}]", f"v_cndmask_b32 v30, v30, v31, s[{T2_}:{T3_}]")
    if RDMA:
        a("v_mov_b32_dpp v30, v30 row_shr:8 row_mask:0xf bank_mask:0xc")
        a("v_and_b32 v31, 0x7ff, v30", "v_sub_u32 v31, 2047, v31", f"v_mad_u32_u24 v31, v31, s{T4_}, v34")
        for k in range(9):
            a(f"s_mov_b32 m0, {C_XR + 896*k}")
            a(f"buffer_load_dwordx4 v31, s[{R2_}:{R2_+3}], 0 offen offset:{128*k} sc1 lds")
        a(f"ds_write_b32 v7, v30 offset:{C_SEL}")
        stamp2(a, 2)
        a("s_waitcnt vmcnt(0)")
        a(f"ds_write_b32 v{VZ}, v{VONE} offset:{FL_XRDY}")
        stamp2(a, 3)
    else:
        a("s_mov_b64 exec, 0xff")
        a(f"ds_write_b32 v7, v30 offset:{C_SEL}")
        a("s_mov_b64 exec, -1")
        stamp2(a, 2)
    a("s_setprio 0")
    a("s_branch KS_B")
    a("KS_W9:")
    a("v_lshlrev_b32 v33, 4, v1", f"s_movk_i32 s{T0_}, 0x2000")
    srd(a, R2_, P_WS, XBYTES, WS_X2)
    srd(a, R0, P_WS, 0x240000, WS_ZB1)
    srd(a, R1, P_X, XBYTES)
    a("v_bfe_u32 v43, v1, 2, 3", f"s_lshl_b32 s{T1_}, s{S_BLK}, 3", f"v_add_u32 v43, s{T1_}, v43")
    a("v_bfe_u32 v40, v43, 4, 1", "v_and_b32 v41, 3, v1", "v_lshl_add_u32 v40, v40, 2, v41", "v_lshlrev_b32 v40, 2, v40")
    a("v_lshrrev_b32 v41, 5, v43", "v_lshlrev_b32 v41, 4, v41", "v_and_b32 v42, 15, v43", "v_add_u32 v41, v41, v42")
    lds_wait(a, C_SEL, 12, "nz", addr=7, sleep=1)
    stamp2(a, 2)
    a(f"ds_read_b32 v19, v40 offset:{C_SEL}")
    a("s_waitcnt lgkmcnt(0)")
    a("v_and_b32 v14, 0x7ff, v19", "v_sub_u32 v14, 2047, v14")
    a("v_mul_u32_u24 v23, 1152, v14", "v_lshl_add_u32 v23, v41, 1, v23")
    a(f"buffer_load_ushort v17, v23, s[{R1}:{R1+3}], 0 offen")
    a("v_lshrrev_b32 v15, 9, v14", "v_bfe_u32 v16, v14, 6, 2", "v_lshl_add_u32 v15, v15, 2, v16", "v_bfe_u32 v16, v14, 2, 2", "v_lshl_add_u32 v15, v15, 2, v16")
    a("v_bfe_u32 v16, v14, 4, 1")
    a("v_bfe_u32 v24, v14, 8, 1", "v_and_b32 v25, 3, v14", "v_lshl_add_u32 v24, v24, 2, v25", "v_lshlrev_b32 v24, 1, v24")
    a("v_bfe_u32 v25, v14, 5, 1", "v_lshl_add_u32 v24, v25, 5, v24")
    a("v_lshl_add_u32 v25, v15, 1, v16", "v_lshl_add_u32 v25, v25, 14, v24")
    a("v_lshrrev_b32 v26, 1, v41", "v_lshl_add_u32 v25, v26, 6, v25", "v_xor_b32 v26, v41, v16", "v_not_b32 v26, v26", "v_and_b32 v26, 1, v26", "v_lshl_add_u32 v25, v26, 4, v25")
    a("v_lshl_add_u32 v26, v15, 12, v24", "v_lshl_add_u32 v26, v16, 4, v26", "v_lshl_add_u32 v26, v41, 6, v26", f"v_add_u32 v26, {0x200000 - 512*64}, v26")
    if SWZ:
        a("v_lshl_add_u32 v27, v16, 6, v15", "v_lshlrev_b32 v27, 7, v27", "v_xor_b32 v25, v27, v25", "v_and_b32 v27, 0xf80, v27", "v_xor_b32 v26, v27, v26")
    a("v_cmp_gt_u32 vcc, 0x200, v41", "v_cndmask_b32 v25, v26, v25, vcc")
    a(f"buffer_load_ushort v18, v25, s[{R0}:{R0+3}], 0 offen sc1")
    a("v_ashrrev_i32 v22, 31, v19", "v_not_b32 v22, v22", "v_or_b32 v22, 0x80000000, v22", "v_xor_b32 v22, v19, v22", "v_and_b32 v22, 0xffff0000, v22")
    a(f"v_mul_f32 v22, {f32(-LOG2E)}, v22", "v_exp_f32 v22, v22", "v_add_f32 v22, 1.0, v22", "v_rcp_f32 v22, v22")
    a(f"v_cvt_pk_bf16_f32 v22, 0, v22")
    a("v_and_b32 v14, 31, v1", "v_lshlrev_b32 v14, 4, v14")
    f2l = [f"buffer_load_dword v{8+k}, v33, s[{R3}:{R3+3}], s{T0_} offen offset:{1024*k} sc1" for k in range(4)]
    if XCL == 2:
        a("s_barrier")
        zpoll(a, f2l, [8, 9, 10, 11], ENV("F2SLEEP", 4), mid="s_barrier")
        a(f"buffer_load_ushort v20, v23, s[{R2_}:{R2_+3}], 0 offen sc1")
        stamp2(a, 1)
        a("s_barrier")
        srd(a, R2_, P_WS, 64, WS_IDX)
        a("s_waitcnt vmcnt(0)")
    else:
        a("v_and_b32 v24, -4, v23", "v_and_b32 v25, 2, v23", "v_lshlrev_b32 v25, 3, v25")
        a("s_barrier")
        a("s_barrier")
        zpoll(a, f2l + [f"buffer_load_dword v20, v24, s[{R2_}:{R2_+3}], 0 offen sc1"], [8, 9, 10, 11, 20], ENV("F2SLEEP", 4), mid="s_barrier")
        stamp2(a, 1)
        srd(a, R2_, P_WS, 64, WS_IDX)
        a("v_lshrrev_b32 v20, v25, v20")
    a("v_lshlrev_b32 v17, 16, v17", "v_lshlrev_b32 v18, 16, v18", "v_add_f32 v17, v17, v18", "v_cvt_pk_bf16_f32 v17, v17, v17")
    a("v_and_b32 v21, 0xffff0000, v17", "v_lshlrev_b32 v20, 16, v20")
    a(f"ds_write_b128 v14, v[20:23] offset:{C_SIDE}")
    a("s_cmp_lg_u32 s2, 0", "s_cbranch_scc1 KS_W9E")
    a(f"buffer_store_dword v12, v7, s[{R2_}:{R2_+3}], 0 offen")
    a("KS_W9E:")
    a("s_waitcnt lgkmcnt(0)")
    stamp2(a, 3)
    endwave(a)
    a("KS_B:")
    srd(a, R0, P_WS, PART_BYTES, WS_PART)
    a("v_bfe_u32 v16, v1, 2, 2", "v_lshl_add_u32 v16, v3, 3, v16", "v_mul_u32_u24 v16, 1152, v16", "v_and_b32 v17, 3, v1", "v_lshl_add_u32 v16, v17, 3, v16")
    a(f"s_lshl_b32 s{T0_}, s{S_WAVE}, 7", f"s_add_u32 s{T0_}, s{T0_}, {C_DOWN}", f"v_add_u32 v16, s{T0_}, v16")
    if PTAG: a("v_lshlrev_b32 v18, 2, v17", f"ds_read_b32 v24, v18 offset:{FL_NONCE}", f"s_movk_i32 s{T2_}, 0xff")
    lds_wait(a, FL_DOWN, 17, "b4")
    if PTAG:
        for d in range(1, 4): a(f"v_lshrrev_b32 v{24+d}, {8*d}, v24")
    WTD = 48
    for jt in range(4):
        a(f"ds_read_b64_tr_b16 v[{WTD+4*jt}:{WTD+4*jt+1}], v16 offset:{32*jt}")
        a(f"ds_read_b64_tr_b16 v[{WTD+4*jt+2}:{WTD+4*jt+3}], v16 offset:{32*jt + 4608}")
    a("v_and_b32 v16, 7, v2", "v_lshlrev_b32 v16, 6, v16", "v_lshl_add_u32 v16, v3, 4, v16")
    a(f"s_mul_i32 s{T0_}, s{S_BLK}, {PROW}", f"s_lshl_b32 s{T1_}, s{S_WAVE}, 11", f"s_add_u32 s{T0_}, s{T0_}, s{T1_}")
    a("v_lshlrev_b32 v17, 4, v1")
    a("s_waitcnt lgkmcnt(0)")
    a("s_barrier")
    a("s_barrier")
    a(f"ds_read_b128 v[20:23], v16 offset:{C_ACT}")
    a("s_waitcnt lgkmcnt(0)")
    for j in range(4):
        a(f"v_mfma_f32_16x16x32_bf16 v[{32+4*j}:{35+4*j}], v[20:23], v[{WTD+4*j}:{WTD+4*j+3}], 0")
    for j in (0, 2):
        for r in range(4): a(f"v_permlane32_swap_b32 v{32+4*j+r}, v{36+4*j+r}")
        for r in range(4): a(f"v_bfi_b32 v{32+4*j+r}, s{T2_}, v{24+r}, v{32+4*j+r}" if PTAG else f"v_min_u32 v{32+4*j+r}, -2, v{32+4*j+r}")
        a(f"buffer_store_dwordx4 v[{32+4*j}:{35+4*j}], v17, s[{R0}:{R0+3}], s{T0_} offen offset:{512*j} sc1")
    stamp2(a, 8)
    if PE < 0: a("s_waitcnt vmcnt(0)")
    a("s_barrier")
    endwave(a)
    a("KS_G0:")
    a(f"ds_write_b8 v15, v{VONE} offset:{FL_G+4}")
    a("s_setprio 0")
    a("KS_G:")
    a(f"s_mov_b32 s{SP0}, 0x05040100", f"s_mov_b32 s{SP1}, 0x07060302")
    a("s_waitcnt vmcnt(0)" + (" lgkmcnt(0)" if SN else ""))
    stamp(a, 5)
    g_addr_setup(a, 46)
    if DE:
        srd(a, R1, P_DOWN, F * D * 2)
        a("v_lshlrev_b32 v8, 4, v1", f"s_mul_i32 s{T0_}, s{S_BLK}, 36864", f"s_mul_i32 s{T1_}, s{S_G}, 9216", f"s_add_u32 s{T0_}, s{T0_}, s{T1_}", f"s_add_u32 s{T1_}, s{T1_}, {C_DOWN}")
        def wtrig(tr):
            a(f"s_cmp_lt_u32 s{S_I}, 8", f"s_cselect_b32 s{T2_}, 0, {tr[1] - tr[0]}", f"v_mov_b32 v9, s{T2_}")
            lds_wait(a, tr[0], 10, "b4", addr=9, sleep=2)
        TG = {"B": FL_UTOK, "K": FL_UTOK + 4, "U": FL_UF, "C": FL_G + 36, "A1": FL_G, "A2": FL_G + 4, "A3": FL_G + 8, "B1": FL_G + 16, "B2": FL_G + 20, "B3": FL_G + 24}
        DTR = os.environ.get("DTR", "C,B").split(","); GTR = os.environ.get("GTR", "C,B").split(",")
        if ENV("DLAST", 0):
            wtrig([TG[x] for x in GTR])
            a(f"s_lshr_b32 s{T2_}, {ENV('GNM', 3)}, s{S_G}", f"s_bitcmp1_b32 s{T2_}, 0", "s_cbranch_scc1 KS_GD1")
            a(f"s_and_b32 s{T2_}, s{S_G}, 1", f"s_mul_i32 s{T1_}, s{T2_}, 18432", f"s_mul_i32 s{T0_}, s{S_BLK}, 36864", f"s_add_u32 s{T0_}, s{T0_}, s{T1_}", f"s_add_u32 s{T1_}, s{T1_}, {C_DOWN}")
        wtrig([TG["C"], TG["B"]])
        if DTR != ["C", "B"]: wtrig([TG[x] for x in DTR])
        if DEA: a(f"s_cmp_ge_u32 s{S_I}, 8", "s_cbranch_scc1 KS_GD1")
        for k in range(18 if ENV("DLAST", 0) else 9):
            if k % 4 == 0:
                a(f"s_add_u32 m0, s{T1_}, {1024*k}")
                if k: a(f"s_add_u32 s{T0_}, s{T0_}, 4096")
            a(f"buffer_load_dwordx4 v8, s[{R1}:{R1+3}], s{T0_} offen offset:{1024*(k&3)} {MOD('DM', 'nt')} lds")
        if GTR != DTR and not ENV("DLAST", 0): wtrig([TG[x] for x in GTR])
        a("KS_GD1:")
        if ENV("GPRIO", 0): a(f"s_setprio {ENV('GPRIO', 0)}")
    SG = eval(os.environ.get("SG", "[0,0,0,0]"))
    if any(SG):
        a(f"s_mul_i32 s{T0_}, s{S_ROLE}, {32*9216}", f"s_lshl_b32 s{T1_}, s{S_BLK}, 6", f"s_add_u32 s{T0_}, s{T0_}, s{T1_}")
        a(f"s_add_u32 s{R0}, s{P_GATE}, s{T0_}", f"s_addc_u32 s{R0+1}, s{P_GATE+1}, 0", f"s_add_u32 s{R0+2}, s{P_UP}, s{T0_}", f"s_addc_u32 s{R0+3}, s{P_UP+1}, 0")
        cnt = sum(SG[g] << (8 * g) for g in range(4))
        a(f"s_lshl_b32 s{T1_}, s{S_G}, 3", f"s_lshr_b32 s{T1_}, {hex(cnt)}, s{T1_}", f"s_and_b32 s{T1_}, s{T1_}, 0xff", "s_cbranch_scc0 KS_SGE")
        a("KS_SGL:")
        for r in range(8):
            a(f"s_load_dword s{R1}, s[{R0}:{R0+1}], {r*9216}", f"s_load_dword s{R1+1}, s[{R0+2}:{R0+3}], {r*9216}")
        a(f"s_add_u32 s{R0}, s{R0}, {8*9216}", f"s_addc_u32 s{R0+1}, s{R0+1}, 0", f"s_add_u32 s{R0+2}, s{R0+2}, {8*9216}", f"s_addc_u32 s{R0+3}, s{R0+3}, 0")
        a(f"s_sub_u32 s{T1_}, s{T1_}, 1", f"s_cmp_lg_u32 s{T1_}, 0", "s_cbranch_scc1 KS_SGL")
        a("KS_SGE:")
        a("s_waitcnt lgkmcnt(0)")
        stamp(a, 8)
    TR = {1: (FL_PARAM, "nz"), 2: (FL_UF, "b4"), 3: (FL_ZF, "b4"), 4: (FL_KACK, "nz"), 5: (FL_KSEEN, "nz"), 6: (FL_ZDONE + 4, "b4")}
    GNM = ENV("GNM", 3)
    for t in sorted(set(GT)):
        if t == 0: continue
        l = newlabel("GT")
        mask = sum(1 << g for g in range(4) if GT[g] == t)
        if mask != 15: a(f"s_lshr_b32 s{T0_}, {mask}, s{S_G}", f"s_bitcmp1_b32 s{T0_}, 0", f"s_cbranch_scc0 {l}")
        lds_wait(a, TR[t][0], 10, TR[t][1], sleep=2)
        if t >= 3: a("s_setprio 1")
        a(f"{l}:")
    if GNM and GNM != 15:
        a(f"s_lshr_b32 s{T0_}, {GNM}, s{S_G}", f"s_bitcmp1_b32 s{T0_}, 0", "s_cbranch_scc0 KS_GN0")
        gs = ENV("GSPLIT", 4)
        g_loads(a, 46, range(gs), " nt")
        if gs < 4: lds_wait(a, FL_UF, 10, "b4", sleep=2)
        g_loads(a, 46, range(gs, 4), " nt")
        a(f"s_bitcmp1_b32 s{S_G}, 0", "s_cbranch_scc1 KS_G4")
        g_loads(a, 46, [4], " nt")
        a("s_branch KS_G4")
        a("KS_GN0:")
    GM = " nt" if GNM == 15 else ""
    g_loads(a, 46, range(4), GM)
    stamp(a, 6)
    def transpose(src, dst):
        for j in range(4):
            for p in range(4):
                lo = src + 2 * (2 * p) + (j >> 1); hi = src + 2 * (2 * p + 1) + (j >> 1)
                a(f"v_perm_b32 v{dst+4*j+p}, v{hi}, v{lo}, s{SP0 + (j & 1)}")
    W = GW
    a(f"s_bitcmp1_b32 s{S_G}, 0", "s_cbranch_scc1 KS_G4")
    g_loads(a, 46, [4], GM)
    a("KS_G4:")
    a(f"v_mov_b32 v6, s{S_G}", f"ds_write_b8 v6, v{VONE} offset:{FL_GISS}")
    a("s_waitcnt vmcnt(0)")
    if DE: a(f"ds_write_b8 v6, v{VONE} offset:{FL_DOWN}")
    stamp(a, 7)
    for ks in range(5): transpose(W + 16 * ks, W + 16 * ks - 16)
    GACC = 112
    srd(a, R2_, P_WS, XBYTES, WS_X2)
    a(f"s_lshl_b32 s{T0_}, s{S_ROLE}, 6", f"s_add_u32 s{T0_}, s{T0_}, {2047*1152}", "v_and_b32 v6, 7, v2", "v_lshlrev_b32 v6, 2, v6", f"v_lshl_add_u32 v7, v3, 4, s{T0_}", f"s_movk_i32 s{T1_}, -1152")
    a(f"s_and_b32 s{T2_}, s{S_G}, 1", f"s_lshl_b32 s{T2_}, s{T2_}, 6", f"s_sub_u32 s{T2_}, 256, s{T2_}")
    a(f"s_lshl_b32 s{T0_}, s{S_G}, 6", f"v_add_u32 v11, s{T0_}, v1")
    a("v_lshrrev_b32 v8, 5, v11", "v_and_b32 v9, 31, v11")
    a("v_and_b32 v10, 3, v9", "v_lshlrev_b32 v10, 9, v10")
    a("v_lshrrev_b32 v9, 2, v9", "v_lshl_add_u32 v10, v9, 4, v10")
    a("v_lshrrev_b32 v9, 2, v8", "v_lshl_add_u32 v10, v9, 8, v10")
    a("v_and_b32 v9, 3, v8", "v_lshl_add_u32 v10, v9, 2, v10")
    a("v_lshlrev_b32 v11, 1, v11")
    a(f"s_lshl_b32 s{T0_}, s{S_G}, 11", f"v_lshl_add_u32 v9, v1, 4, s{T0_}")
    TG_ = (0, 2, 5, 6)
    def gmm(wait, bad):
        for ks in range(5):
            a(f"s_waitcnt {wait}({4-ks})")
            chk = []
            if bad and XCL == 2:
                chk = [f"v_xor_b32 v4, v{TG_[0]}, v{12+4*ks}"] + [f"v_bitop3_b32 v4, v4, v{TG_[d]}, v{12+4*ks+d} bitop3:0xf6" for d in range(1, 4)]
                chk += [f"v_and_b32 v{4 if ks else 8}, {hex(TAGM)}, v4"] + (["v_min_u32 v8, v8, v4"] if ks else [])
            elif bad:
                chk = [f"v_max3_u32 v8, v{12+4*ks}, v{13+4*ks}, v{8 if ks else 13}", f"v_max3_u32 v8, v{14+4*ks}, v{15+4*ks}, v8"]
            if ks == 4:
                a(*chk); chk = []
                if bad: a(f"v_cmp_eq_u32 vcc, {0 if XCL == 2 else -1}, v8", f"s_cbranch_vccnz {bad}")
                a(f"s_bitcmp1_b32 s{S_G}, 0", "s_cbranch_scc1 KS_G5")
            for j in range(4):
                c = "0" if ks == 0 else f"v[{GACC+4*j}:{GACC+4*j+3}]"
                a(f"v_mfma_f32_16x16x32_bf16 v[{GACC+4*j}:{GACC+4*j+3}], v[{12+4*ks}:{15+4*ks}], v[{32+16*ks+4*j}:{35+16*ks+4*j}], {c}")
                a(*chk[2*j:2*j+2])
    assert RDMA
    a(f"s_lshl_b32 s{T0_}, s{S_ROLE}, 9", f"s_add_u32 s{T0_}, s{T0_}, {C_XR}", f"v_lshl_add_u32 v28, v6, 2, s{T0_}", "v_lshl_add_u32 v28, v3, 7, v28", f"s_lshl_b32 s{T0_}, s{T2_}, 3", f"v_add_u32 v31, s{T0_}, v28")
    if XCL == 2: a("v_lshlrev_b32 v0, 2, v3", f"ds_read_b32 v0, v0 offset:{FL_NONCE}")
    lds_wait(a, C_SEL, 12, "nz", addr=6, sleep=2)
    a("s_setprio 2")
    a("v_and_b32 v12, 0x7ff, v12", f"v_mad_i32_i24 v7, v12, s{T1_}, v7")
    if XCL == 2:
        for d in range(1, 4): a(f"v_lshrrev_b32 v{TG_[d]}, {3*d}, v0")
    lds_wait(a, FL_XRDY, 12, "nz")
    stamp2(a, 1)
    for ks in range(4):
        a(f"ds_read_b128 v[{12+4*ks}:{15+4*ks}], v28 offset:{512*ks}")
    a("ds_read_b128 v[28:31], v31")
    gmm("lgkmcnt", "KS_GR")
    a("s_branch KS_G5")
    a("KS_GR:")
    if XCL == 2:
        srd(a, R3, P_WS, 12288, WS_KEYS)
        a("v_lshlrev_b32 v4, 4, v1", f"s_movk_i32 s{T0_}, 0x2000")
        a.flush(4)
        a("KS_GR2:")
        a("s_sleep 2")
        for k in range(4): a(f"buffer_load_dword v{12+k}, v4, s[{R3}:{R3+3}], s{T0_} offen offset:{1024*k} sc1")
        guard(a)
        a("s_waitcnt vmcnt(0)")
        a("v_max3_u32 v12, v12, v13, v14", "v_max_u32 v12, v12, v15", "v_cmp_eq_u32 vcc, -1, v12", "s_cbranch_vccnz KS_GR2")
    for ks in range(5):
        a(f"buffer_load_dwordx4 v[{12+4*ks}:{15+4*ks}], v7, s[{R2_}:{R2_+3}], " + (f"0 offen offset:{64*ks}" if ks < 4 else f"s{T2_} offen") + " sc1")
    guard(a)
    gmm("vmcnt", None if XCL == 2 else "KS_GR")
    a("KS_G5:")
    a("s_mov_b32 exec_lo, -1", "s_mov_b32 exec_hi, 0")
    a.flush(6)
    for j in range(4):
        a(f"ds_write_b128 v9, v[{GACC+4*j}:{GACC+4*j+3}] offset:{C_RED + 512*j}")
    a("s_mov_b64 exec, -1")
    a("s_waitcnt lgkmcnt(0)", "s_barrier")
    stamp2(a, 2)
    for w in range(4):
        a(f"ds_read_b32 v{32+2*w}, v10 offset:{C_RED + 2048*w}")
        a(f"ds_read_b32 v{33+2*w}, v10 offset:{C_RED + 2048*w + 128}")
    a("s_waitcnt lgkmcnt(4)")
    a("v_pk_add_f32 v[32:33], v[32:33], v[34:35]")
    a("s_waitcnt lgkmcnt(0)")
    a("v_pk_add_f32 v[36:37], v[36:37], v[38:39]")
    a("v_pk_add_f32 v[32:33], v[32:33], v[36:37]")
    rnd2(a, 32)
    a(f"v_mul_f32 v34, {f32(-LOG2E)}, v32", "v_exp_f32 v34, v34", "v_add_f32 v34, 1.0, v34", "v_rcp_f32 v34, v34", "v_mul_f32 v34, v32, v34")
    a(f"v_cvt_pk_bf16_f32 v34, 0, v34")
    a("v_mul_f32 v34, v34, v33", "v_cvt_pk_bf16_f32 v34, v34, v34")
    a(f"ds_write_b16 v11, v34 offset:{C_ACT}")
    a("s_waitcnt lgkmcnt(0)")
    a("s_barrier")
    a("s_branch KS_P2")
    a("KS_P:")
    if DE: a("s_branch KS_P1")
    srd(a, R1, P_DOWN, F * D * 2)
    a(f"s_sub_u32 s{T2_}, s{S_WAVE}, 10", "v_lshlrev_b32 v6, 4, v1", f"s_mul_i32 s{T0_}, s{S_BLK}, 36864", f"s_mul_i32 s{T1_}, s{T2_}, 18432", f"s_add_u32 s{T0_}, s{T0_}, s{T1_}", f"s_add_u32 s{T1_}, s{T1_}, {C_DOWN}")
    a(f"s_lshl_b32 s{T2_}, s{T2_}, 1", f"v_mov_b32 v7, s{T2_}", f"v_mov_b32 v8, s{S_ONES}")
    TR[7] = (FL_GISS, "b4")
    if DT: lds_wait(a, TR[DT][0], 10, TR[DT][1], sleep=2)
    a("s_setprio 1")
    stamp2(a, 1)
    for k in range(18):
        if k % 4 == 0:
            a(f"s_add_u32 m0, s{T1_}, {1024*k}")
            if k: a(f"s_add_u32 s{T0_}, s{T0_}, 4096")
        a(f"buffer_load_dwordx4 v6, s[{R1}:{R1+3}], s{T0_} offen offset:{1024*(k&3)} {MOD('DM', 'nt')} lds")
    a("s_waitcnt vmcnt(0)")
    stamp2(a, 2)
    a(f"ds_write_b16 v7, v8 offset:{FL_DOWN}")
    a("KS_P1:")
    a("s_setprio 0")
    PW = ENV("PW", 0)
    if PW:
        srd(a, R0, P_WS, PART_BYTES, WS_PART)
        a("v_and_b32 v14, 3, v1", "v_lshlrev_b32 v14, 2, v14", f"ds_read_b32 v24, v14 offset:{FL_NONCE}", "v_lshlrev_b32 v17, 4, v1")
        a(f"s_mul_i32 s{T0_}, s{S_BLK}, {PROW}", f"s_sub_u32 s{T1_}, s{S_WAVE}, 10", f"s_mul_i32 s{T1_}, s{T1_}, 9216", f"s_add_u32 s{T0_}, s{T0_}, s{T1_}")
        if PW in TR: lds_wait(a, TR[PW][0], 10, TR[PW][1], sleep=2)
        a("s_waitcnt lgkmcnt(0)", "v_not_b32 v24, v24", "v_mov_b32 v25, v24", "v_mov_b32 v26, v24", "v_mov_b32 v27, v24")
        for k in range(9):
            if k in (4, 8): a(f"s_add_u32 s{T0_}, s{T0_}, 4096")
            a(f"buffer_store_dwordx4 v[24:27], v17, s[{R0}:{R0+3}], s{T0_} offen offset:{1024*(k&3)} {MOD('PWM')}")
        a("s_waitcnt vmcnt(0)")
    a("s_waitcnt lgkmcnt(0)")
    a("s_barrier")
    a("s_barrier")
    a("s_setprio 2")
    a("KS_P2:")
    a(f"s_sub_u32 s{S_G}, s{S_WAVE}, 10")
    srd(a, R0, P_WS, PART_BYTES, WS_PART)
    srd(a, R1, P_OUT, XBYTES)
    a("v_lshrrev_b32 v8, 3, v1", f"v_mul_u32_u24 v8, {PROW}, v8", "v_and_b32 v9, 7, v1", "v_lshl_add_u32 v8, v9, 4, v8")
    a(f"s_mul_i32 s{T0_}, s{S_G}, {24*PROW}", f"s_lshl_b32 s{T1_}, s{S_BLK}, 7", f"s_add_u32 s{T0_}, s{T0_}, s{T1_}", f"s_add_u32 s{T1_}, s{T0_}, {8*PROW}", f"s_add_u32 s{T2_}, s{T0_}, {16*PROW}")
    a(f"s_lshl_b32 s{T3_}, s{S_G}, 7", f"v_lshl_add_u32 v6, v9, 4, s{T3_}", "v_lshl_add_u32 v6, v3, 2, v6")
    a(f"v_lshlrev_b32 v12, 2, v1", f"v_add_u32 v12, {C_RED2}, v12", "v_lshlrev_b32 v13, 4, v1")
    if PTAG:
        a("v_and_b32 v14, 12, v12", f"ds_read_b32 v24, v14 offset:{FL_NONCE}", "s_waitcnt lgkmcnt(0)")
        for d in range(1, 4): a(f"v_lshrrev_b32 v{24+d}, {8*d}, v24")
    a("s_barrier")
    if PE > 0: a(f"s_sleep {PE}")
    stamp2(a, 3)
    if PTAG:
        lp = newlabel("PP"); l1 = newlabel("PPE")
        a(f"s_branch {l1}", f"{lp}:", "s_sleep 1", f"{l1}:")
        for k in range(3): a(f"buffer_load_dwordx4 v[{32+4*k}:{35+4*k}], v8, s[{R0}:{R0+3}], s{T0_+k} offen sc1")
        guard(a)
        for k in range(3):
            a(f"s_waitcnt vmcnt({2-k})")
            for d in range(4):
                t = 44 + (d & 1)
                a(f"v_xor_b32 v{t}, v{24+d}, v{32+d}" if k == 0 and d < 2 else f"v_bitop3_b32 v{t}, v{t}, v{24+d}, v{32+4*k+d} bitop3:0xf6")
        a("v_or_b32 v44, v44, v45", "v_and_b32 v44, 0xff, v44", "v_cmp_ne_u32 vcc, 0, v44", f"s_cbranch_vccnz {lp}")
    else: zpoll(a, [f"buffer_load_dwordx4 v[{32+4*k}:{35+4*k}], v8, s[{R0}:{R0+3}], s{T0_+k} offen sc1" for k in range(3)], list(range(32, 44)), 1)
    stamp2(a, 4)
    a("v_pk_add_f32 v[32:33], v[32:33], v[36:37]", "v_pk_add_f32 v[34:35], v[34:35], v[38:39]")
    a("v_pk_add_f32 v[32:33], v[32:33], v[40:41]", "v_pk_add_f32 v[34:35], v[34:35], v[42:43]")
    for r in range(4): a(f"v_add_f32_dpp v{32+r}, v{32+r}, v{32+r} row_ror:8 {DPPM}")
    a("v_permlane16_swap_b32 v32, v33", "v_permlane16_swap_b32 v34, v35")
    a("v_add_f32 v32, v32, v33", "v_add_f32 v34, v34, v35")
    a("v_permlane32_swap_b32 v32, v34")
    a("v_add_f32 v32, v32, v34")
    a(f"ds_write_b32 v6, v32 offset:{C_RED2}")
    a("s_waitcnt lgkmcnt(0)", "s_barrier")
    a(f"s_cmp_lg_u32 s{S_G}, 0", "s_cbranch_scc1 KS_PEND")
    a("s_mov_b32 exec_lo, -1", "s_mov_b32 exec_hi, 0")
    for g in range(3):
        a(f"ds_read2_b32 v[{32+2*g}:{33+2*g}], v12 offset0:{64*g} offset1:{64*g + 32}")
    a(f"ds_read_b128 v[40:43], v13 offset:{C_SIDE}")
    a("s_waitcnt lgkmcnt(0)")
    a("v_pk_add_f32 v[32:33], v[32:33], v[34:35]", "v_pk_add_f32 v[32:33], v[32:33], v[36:37]", "v_add_f32 v8, v32, v33")
    a(f"v_cvt_pk_bf16_f32 v8, 0, v8")
    a("v_mul_f32 v8, v8, v42", f"v_cvt_pk_bf16_f32 v8, 0, v8")
    a("v_add_f32 v8, v8, v40", f"v_cvt_pk_bf16_f32 v8, 0, v8")
    a("v_add_f32 v8, v8, v41", "v_cvt_pk_bf16_f32 v8, v8, v8")
    a(f"buffer_store_short v8, v43, s[{R1}:{R1+3}], 0 offen")
    a("KS_PEND:")
    stamp_end(a)
    spin_end(a)
    a("KS_ABORT:")
    a("KS_END:")
    a("s_endpgm")
    return f""".amdhsa_kernel {label}
  .amdhsa_next_free_vgpr 128
  .amdhsa_next_free_sgpr {NSGPR}
  .amdhsa_accum_offset 128
  .amdhsa_group_segment_fixed_size 0
  .amdhsa_kernarg_size 136
  .amdhsa_user_sgpr_count 2
  .amdhsa_user_sgpr_kernarg_segment_ptr 1
  .amdhsa_system_sgpr_workgroup_id_x 1
  .amdhsa_float_denorm_mode_32 3
.end_amdhsa_kernel
"""

def main():
    hdr = open(f"/code/{NAME}.s.ref").read().split("; Override launch geometry")[0]
    out = hdr
    out += f"; @launch grid=(256,1,1) block=(1024,1,1) lds={LDS_BYTES}\n"
    out += '.amdgcn_target "amdgcn-amd-amdhsa--gfx950"\n.text\n'
    a = Asm()
    d = gen(a)
    out += a.text()
    out += '.section .rodata,"a"\n.p2align 6\n' + d
    path = sys.argv[1] if len(sys.argv) > 1 else "ks.s"
    open(path, "w").write(out)
    print("wrote", path, len(out))

if __name__ == "__main__":
    main()
```

```python
import sys, struct, math, os
sys.path.insert(0, "gen")
from asmlib import Asm

NAME = "sequential_preLN__ssm_conv_s4__moe_arch_mod__prompt"
L, D, N, F = 2048, 576, 128, 4608
XBYTES = L * D * 2
WS_UT = 0x000000
WS_X2 = 0x3C0000
WS_ZB1 = 0x600000
WS_ZB2 = 0x800000
WS_KEYS = 0x840000
WS_PART = 0x850000
WS_CLR, CLR_WG = 0x600000, 18560
CLRP_WG = 23744
WS_FLAG1 = 0xB00000
TAGM = 0x00070007
WS_IDX = 0xB10000
WS_KT = 0xB20000
WS_DBG = 0xC00000
XCL = int(os.environ.get("XCL", "2"))
if XCL == 1: WS_CLR, CLR_WG = WS_X2, 36992
if XCL == 2: WS_X2 = WS_UT
NOCLR = int(os.environ.get("NOCLR", "0"))
if NOCLR == 1: WS_CLR, CLR_WG = WS_ZB2, 2176
if NOCLR >= 2: WS_CLR = WS_ZB2
if NOCLR == 2: WS_PART = 0x1000000
PB = int(os.environ.get("PB", "1"))
PCT = int(os.environ.get("PCT", "4"))
if PB and not PCT: WS_PART, CLR_WG = 0x843000, 29040
WSB = int(os.environ.get("WSB", "0")) << 20
WS_UT += WSB; WS_X2 += WSB; WS_ZB1 += WSB; WS_ZB2 += WSB; WS_KEYS += WSB; WS_PART += WSB; WS_CLR += WSB; WS_FLAG1 += WSB; WS_IDX += WSB; WS_KT += WSB
WS_STAMP = 0x8000000
PART_BYTES = 144 * (4608 * (2 if PB else 4) + 128)
C_FL, C_CAND, C_SEL, C_KEY, C_PAR, C_ACT, C_SIDE, C_RED2 = 0, 256, 768, 800, 832, 1024, 1536, 2048
C_U, U_SIZE = 3072, 4672
C_LNB = C_U + 3 * U_SIZE
C_XR = C_LNB
C_RED = C_LNB + 9280
G_BASE, G_SIZE = 35840, 36672
C_STG = G_BASE + 2 * G_SIZE + 36864
LDS_BYTES = C_STG + 8192
FL_LN1, FL_LNACK, FL_KCNT, FL_UF, FL_ZF, FL_KACK, FL_ROWSOK, FL_XRDY, FL_PARAM, FL_DOWN, FL_ZDONE = 0, 8, 12, 16, 20, 24, 28, 32, 36, 40, 48
FL_G = 64
FL_S6 = 160
FL_ZISS = 240
FL_F2CNT, FL_INIT, FL_CLROK, FL_GISS, FL_KSEEN, FL_UTOK, FL_PRE, FL_NONCE = 176, 180, 188, 192, 196, 200, 208, 224
KG_ROW = 544
KG_T = [0, 16 * KG_ROW, 32 * KG_ROW, 41 * KG_ROW]
R_WS3 = 0
R_WS5 = R_WS3 + 193 * 16
R_WS7 = R_WS5 + 193 * 16
R_WS9 = R_WS7 + 128 * 16
R_RED = 10752
R2 = 31232
T_TAB = R2
T_DRE = R2 + 1296
T_DRO = T_DRE + 1280 + 64
T_G3 = T_DRO + 1280
T_G5 = T_G3 + 256
T_G7E = T_G5 + 256
T_G7O = T_G7E + 192
T_G9E = T_G7O + 192
T_G9O = T_G9E + 192
assert T_G9O + 192 <= G_SIZE and R_WS9 + 129 * 16 <= R_RED and R_RED + 13 * 1024 <= R2 and 57 * KG_ROW <= R2
IDX_ZERO, IDX_DUMMY = 641, 642
C_DOWN = G_BASE + 2 * G_SIZE

def f32(x): return "0x%08x" % struct.unpack("<I", struct.pack("<f", x))[0]
def f32v(x): return struct.unpack("<f", struct.pack("<f", x))[0]
LOG2E = math.log2(math.e)
LOG2E_HI = f32v(LOG2E); LOG2E_LO = LOG2E - LOG2E_HI
INV2PI = 1.0 / (2 * math.pi)
INV2PI_HI = f32v(INV2PI); INV2PI_LO = INV2PI - INV2PI_HI
DPPM = "row_mask:0xf bank_mask:0xf"
ENV = lambda k, d: int(os.environ.get(k, str(d)))
STAMP = ENV("STAMP", 0)
DBG = ENV("DBG", 0)
GUARD = 1 << 19
XP = ENV("XP", 0)
KOFF = ENV("KOFF", 1)
PTAG = ENV("PTAG", 1)
PE = ENV("PE", 13)
SN = ENV("SN", 0)
UL = ENV("UL", 0)
XH = ENV("XH", 0)
KD = ENV("KD", 2)
RP = ENV("RP", 0)
XW = ENV("XW", 0)
SWU = ENV("SWU", 1); SWZ = ENV("SWZ", 1); PROW = (9216 if PB else 18432) + 128 * ENV("SWP", 1)
MOD = lambda k, d="sc1": os.environ.get(k, d).replace("_", " ")

P_X, P_ARE, P_LDT, P_DSK, P_WR, P_GATE, P_UP, P_DOWN, P_OUT, P_DBG, P_WS = 4, 6, 18, 20, 24, 26, 28, 30, 32, 34, 36
S_WAVE, S_GUARD, S_XC, S_I = 38, 39, 40, 41
R0, R1, R2_, R3, R4 = 64, 68, 72, 76, 80
S_ONES, S_GB, S_ROLE, S_G, S_CH, S_BLK, S_B2 = 84, 85, 86, 87, 88, 89, 90
RM = ENV("RM", 0)
S_FI = 91 if RM else S_I
T0_, T1_, T2_, T3_, T4_, T5_ = 92, 93, 94, 95, 96, 97
SP0, SP1 = 98, 99
NSGPR = 100

def srd(a, d, base, nbytes, off=0):
    if off:
        a(f"s_add_u32 s{d}, s{base}, {hex(off)}", f"s_addc_u32 s{d+1}, s{base+1}, 0")
    else:
        a(f"s_mov_b32 s{d}, s{base}", f"s_mov_b32 s{d+1}, s{base+1}")
    a(f"s_mov_b32 s{d+2}, {hex(nbytes)}", f"s_mov_b32 s{d+3}, 0x20000")

def red16(a, op, v):
    for r in (8, 4, 2, 1):
        a(f"{op}_dpp v{v}, v{v}, v{v} row_ror:{r} {DPPM}")
def red32(a, op, v, t):
    red16(a, op, v)
    a(f"v_mov_b32 v{t}, v{v}", f"v_permlane16_swap_b32 v{v}, v{t}", f"{op} v{v}, v{v}, v{t}")
def red64x2(a, op1, v1, t1, op2, v2, t2):
    for r in (8, 4, 2, 1):
        a(f"{op1}_dpp v{v1}, v{v1}, v{v1} row_ror:{r} {DPPM}", f"{op2}_dpp v{v2}, v{v2}, v{v2} row_ror:{r} {DPPM}")
    for ins in ("v_permlane16_swap_b32", "v_permlane32_swap_b32"):
        a(f"v_mov_b32 v{t1}, v{v1}", f"v_mov_b32 v{t2}, v{v2}", f"{ins} v{v1}, v{t1}", f"{ins} v{v2}, v{t2}")
        a(f"{op1} v{v1}, v{v1}, v{t1}", f"{op2} v{v2}, v{v2}, v{t2}")

SPIN = eval(os.environ.get("SPIN", "None"))
def spin_rec(a, ph, i):
    if not SPIN or SPIN[1:] != (ph, i): return
    a("s_memrealtime s[46:47]")
def spin_end(a):
    if not SPIN: return
    lo, hi = eval(os.environ.get("SPINI", "(0,32)"))
    a("KS_SPIN:")
    if SPIN[2] == 9: a("s_memrealtime s[46:47]")
    a(f"s_sub_u32 s48, s{S_I}, {lo}", f"s_cmp_ge_u32 s48, {hi-lo}", "s_cbranch_scc1 KS_END")
    a(f"s_lshr_b32 s48, {hex(SPIN[0])}, s{S_WAVE}", "s_bitcmp1_b32 s48, 0", "s_cbranch_scc0 KS_END")
    a("s_mov_b64 exec, -1", "v_mov_b32 v4, 0")
    a("KS_SP0:")
    a(f"global_load_dword v8, v4, s[{P_DBG}:{P_DBG+1}] offset:64 sc1", "s_waitcnt vmcnt(0) lgkmcnt(0)", "v_readfirstlane_b32 s44, v8", "s_cmp_eq_u32 s44, 0", "s_cbranch_scc1 KS_SP0")
    if SPIN[2] == -1: a("s_mov_b32 s46, s44")
    a("s_sub_u32 s48, s46, s44", "s_add_u32 s48, s48, 200")
    if ENV("SPINMIN", 0): a(f"s_sub_u32 s48, {ENV('SPINMIN', 0)}, s48")
    a("s_min_u32 s48, s48, 3000", "s_lshl_b32 s48, s48, 2", "s_add_u32 s48, s48, 2000")
    a("SPINL:", "s_sleep 1", "s_memrealtime s[50:51]", "s_waitcnt lgkmcnt(0)", "s_sub_u32 s50, s50, s44", "s_cmp_lt_u32 s50, s48", "s_cbranch_scc1 SPINL")
def stamp_begin(a):
    if SPIN: a("s_memrealtime s[46:47]")
    if not STAMP: return
    a("s_memrealtime s[44:45]")
    for i in range(1, 9): a(f"s_mov_b32 s{44+2*i}, 0")
def cstamp(a, i):
    if STAMP == 9: a(f"s_memtime s[{44+2*i}:{45+2*i}]")
def kstamp(a, i):
    if STAMP == 7: a(f"s_memtime s[{44+2*i}:{45+2*i}]")
def stamp(a, i, ph=1):
    spin_rec(a, ph, i)
    if ph == 2 and STAMP not in (2, 3): return
    if STAMP == 7 and i == 1: return kstamp(a, 1)
    if not STAMP or STAMP in (7, 9): return
    assert 1 <= i <= 8
    a(f"{'s_memtime' if STAMP == 8 else 's_memrealtime'} s[{44+2*i}:{45+2*i}]")
def stamp2(a, i):
    stamp(a, i, 2)
def stamp_end(a):
    if not STAMP: return
    a("s_waitcnt vmcnt(0) lgkmcnt(0)")
    a("s_memrealtime s[62:63]")
    a(f"s_lshl_b32 s43, s2, 4", f"s_add_u32 s43, s43, s{S_WAVE}", "s_lshl_b32 s43, s43, 6", f"s_add_u32 s43, s43, {hex(WS_STAMP)}")
    a("s_mov_b64 exec, 1")
    a("s_waitcnt lgkmcnt(0)")
    a("v_mov_b32 v1, s43")
    for i in range(10): a(f"v_mov_b32 v{4+i}, s{44+2*i}")
    a(f"global_store_dwordx4 v1, v[4:7], s[{P_WS}:{P_WS+1}]")
    a(f"global_store_dwordx4 v1, v[8:11], s[{P_WS}:{P_WS+1}] offset:16")
    a(f"global_store_dwordx2 v1, v[12:13], s[{P_WS}:{P_WS+1}] offset:32")
def endwave(a):
    stamp_end(a)
    a("s_branch KS_SPIN" if SPIN else "s_endpgm")

def unpack(a, dst, src):
    a(f"v_lshlrev_b32 v{dst}, 16, v{src}", f"v_and_b32 v{dst+1}, 0xffff0000, v{src}")

def rnd2(a, t):
    a(f"v_cvt_pk_bf16_f32 v{t}, 0, v{t}", f"v_cvt_pk_bf16_f32 v{t+1}, 0, v{t+1}")

def ln_stats(a, X, m2, rinv2, t0, t1, t2):
    a(f"v_pk_add_f32 v[{t0}:{t0+1}], v[{X}:{X+1}], v[{X+2}:{X+3}]")
    a(f"v_pk_add_f32 v[{t1}:{t1+1}], v[{X+4}:{X+5}], v[{X+6}:{X+7}]")
    for j in range(4, 9):
        t = t0 if j % 2 == 0 else t1
        a(f"v_pk_add_f32 v[{t}:{t+1}], v[{t}:{t+1}], v[{X+2*j}:{X+2*j+1}]")
    a(f"v_pk_add_f32 v[{t0}:{t0+1}], v[{t0}:{t0+1}], v[{t1}:{t1+1}]")
    a(f"v_add_f32 v{t0}, v{t0}, v{t0+1}")
    red32(a, "v_add_f32", t0, t1)
    a(f"v_mul_f32 v{t2}, {f32(1.0/576)}, v{t0}")
    a(f"v_mov_b32 v{t2+1}, v{t2}")
    a(f"v_cvt_pk_bf16_f32 v{m2}, 0, v{t2}", f"v_cvt_pk_bf16_f32 v{m2+1}, 0, v{t2}")
    first = {t0: True, t1: True}
    for j in range(9):
        t = t0 if j % 2 == 0 else t1
        a(f"v_pk_add_f32 v[{rinv2}:{rinv2+1}], v[{X+2*j}:{X+2*j+1}], v[{t2}:{t2+1}] neg_lo:[0,1] neg_hi:[0,1]")
        if first[t]:
            a(f"v_pk_mul_f32 v[{t}:{t+1}], v[{rinv2}:{rinv2+1}], v[{rinv2}:{rinv2+1}]"); first[t] = False
        else:
            a(f"v_pk_fma_f32 v[{t}:{t+1}], v[{rinv2}:{rinv2+1}], v[{rinv2}:{rinv2+1}], v[{t}:{t+1}]")
    a(f"v_pk_add_f32 v[{t0}:{t0+1}], v[{t0}:{t0+1}], v[{t1}:{t1+1}]")
    a(f"v_add_f32 v{t0}, v{t0}, v{t0+1}")
    red32(a, "v_add_f32", t0, t1)
    a(f"v_mul_f32 v{t0}, {f32(1.0/576)}, v{t0}")
    a(f"v_cvt_pk_bf16_f32 v{t0}, 0, v{t0}")
    a(f"v_add_f32 v{t0}, {f32(1e-5)}, v{t0}")
    a(f"v_cvt_pk_bf16_f32 v{t0}, 0, v{t0}")
    a(f"v_sqrt_f32 v{t0}, v{t0}")
    a(f"v_cvt_pk_bf16_f32 v{t0}, 0, v{t0}")
    a(f"v_rcp_f32 v{rinv2}, v{t0}")
    a(f"v_mov_b32 v{rinv2+1}, v{rinv2}")

def ln_apply_pair(a, x, m2, rinv2, t, P):
    a(f"v_pk_add_f32 v[{t}:{t+1}], v[{x}:{x+1}], v[{m2}:{m2+1}] neg_lo:[0,1] neg_hi:[0,1]")
    rnd2(a, t)
    a(f"v_pk_mul_f32 v[{t}:{t+1}], v[{t}:{t+1}], v[{rinv2}:{rinv2+1}]")
    if P is not None: a(f"v_cvt_pk_bf16_f32 v{P}, v{t}, v{t+1}")
    rnd2(a, t)

VZ, VONE = 4, 5
_lbl = [0]
def newlabel(p="L"):
    _lbl[0] += 1
    return f"{p}_{_lbl[0]}"
def guard(a):
    a(f"s_sub_u32 s{S_GUARD}, s{S_GUARD}, 1", "s_cbranch_scc1 KS_ABORT")
def lds_wait(a, off, t, kind="b4", addr=VZ, sleep=0):
    l = newlabel("W")
    a(f"{l}:")
    if sleep: a(f"s_sleep {sleep}")
    if kind == "b8":
        a(f"ds_read_b64 v[{t}:{t+1}], v{addr} offset:{off}")
    else:
        a(f"ds_read_{'u8' if kind == 'u8' else 'b32'} v{t}, v{addr} offset:{off}")
    guard(a)
    a("s_waitcnt lgkmcnt(0)")
    if kind == "b8": a(f"v_and_b32 v{t}, v{t}, v{t+1}")
    if kind in ("nz", "u8"): a(f"v_cmp_eq_u32 vcc, 0, v{t}")
    else: a(f"v_cmp_ne_u32 vcc, s{S_ONES}, v{t}")
    a(f"s_cbranch_vccnz {l}")

def zpoll(a, loads, regs, sleep, mid=None):
    lp = newlabel("ZP"); l1 = newlabel("ZPE")
    if mid:
        for l in loads: a(l)
        a(mid)
    a(f"s_branch {l1}")
    a(f"{lp}:")
    a(f"s_sleep {sleep}")
    if not mid: a(f"{l1}:")
    for l in loads: a(l)
    if mid: a(f"{l1}:")
    guard(a)
    a("s_waitcnt vmcnt(0)")
    a(f"v_max3_u32 v44, v{regs[0]}, v{regs[1]}, v{regs[2]}")
    r = regs[3:]
    while len(r) >= 2: a(f"v_max3_u32 v44, v44, v{r[0]}, v{r[1]}"); r = r[2:]
    if r: a(f"v_max_u32 v44, v44, v{r[0]}")
    a("v_cmp_eq_u32 vcc, -1, v44", f"s_cbranch_vccnz {lp}")

class Pool:
    def __init__(self, regs): self.free = list(regs)
    def get(self): return self.free.pop(0)
    def put(self, r): self.free.append(r)
def ce_inlane(a, x, i, j, pool):
    t = pool.get()
    a(f"v_max_u32 v{t}, v{x[i]}, v{x[j]}", f"v_min_u32 v{x[j]}, v{x[i]}, v{x[j]}")
    pool.put(x[i]); x[i] = t
def clean8(a, x, pool, DE, rev=False):
    t = [pool.get() for _ in range(4)]
    for i in range(4):
        a(f"v_mov_b32_dpp v{t[i]}, v{x[3-i if rev else i]} quad_perm:[1,0,3,2] {DPPM}")
    for i in range(4):
        a(f"v_med3_u32 v{t[i]}, v{x[i]}, v{t[i]}, v{DE}")
    for i in range(4): pool.put(x[i]); x[i] = t[i]
    for (i, j) in ((0, 2), (1, 3), (0, 1), (2, 3)): ce_inlane(a, x, i, j, pool)
def merge_mirror(a, x, pool, M):
    c = [pool.get() for _ in range(4)]
    for i in range(4):
        a(f"v_max_u32_dpp v{c[i]}, v{x[3-i]}, v{x[i]} {M} {DPPM}")
    for i in range(4): pool.put(x[i]); x[i] = c[i]
def merge_pair(a, x, y, pool):
    for i in range(4):
        a(f"v_max_u32_dpp v{x[i]}, v{y[3-i]}, v{x[i]} quad_perm:[1,0,3,2] {DPPM}")
    for i in range(4): pool.put(y[i])
MIRRORS = ("quad_perm:[3,2,1,0]", "row_half_mirror", "row_mirror")

GW = 48
def g_addr_setup(a, A):
    a(f"s_sub_u32 s{S_G}, s{S_WAVE}, 12")
    a(f"s_mul_i32 s{T0_}, s{S_G}, 9", f"s_add_u32 s{T0_}, s{T0_}, 1", f"s_lshr_b32 s{S_ROLE}, s{T0_}, 1")
    a(f"s_lshl_b32 s{T0_}, s{S_ROLE}, 5", f"v_lshl_add_u32 v7, v3, 3, s{T0_}", "v_mul_u32_u24 v7, 9216, v7")
    a("v_and_b32 v6, 7, v2", "v_lshl_add_u32 v7, v6, 3, v7")
    a(f"s_lshl_b32 s{T0_}, s{S_BLK}, 6", f"v_add_u32 v7, s{T0_}, v7")
    a("v_cmp_gt_u32 vcc, 8, v2")
    a(f"s_mov_b32 s{R3}, 9216", f"s_mov_b32 s{R3+1}, 0", f"s_mov_b32 s{R3+2}, {9216*25}", f"s_mov_b32 s{R3+3}, 0")
    a(f"v_mov_b32 v{A}, s{P_GATE}", f"v_mov_b32 v{A+1}, s{P_GATE+1}", f"v_mov_b32 v6, s{P_UP}")
    a(f"v_cndmask_b32 v{A}, v6, v{A}, vcc", f"v_mov_b32 v6, s{P_UP+1}", f"v_cndmask_b32 v{A+1}, v6, v{A+1}, vcc")
    a(f"v_add_co_u32 v{A}, vcc, v{A}, v7", f"v_addc_co_u32 v{A+1}, vcc, 0, v{A+1}, vcc")
def g_loads(a, A, kss, mod=""):
    if XW: return
    for ks in kss:
        for r in range(8):
            d = GW + 16 * ks + 2 * r
            a(f"global_load_dwordx2 v[{d}:{d+1}], v[{A}:{A+1}], off" + mod)
            if not (ks == 4 and r == 7):
                a(f"v_lshl_add_u64 v[{A}:{A+1}], v[{A}:{A+1}], 0, s[{R3 if r < 7 else R3+2}:{R3+1 if r < 7 else R3+3}]")
GTRIG = ENV("GTRIG", 2)
PF = ENV("PF", 1)
NL, NN, NC = ENV("NL", 0), ENV("NN", 0), ENV("NC", 4)
NE = ENV("NE", 0)
NLL = ENV("NLL", 0)
NL2 = ENV("NL2", 4)
PFB = ENV("PFB", 82)
assert not (PFB and NL)
NL3 = ENV("NL3", 0)
assert not (NL3 and NE)
PFA = PFB + 16 * NL + 16 * NE + 6 * NL3
PF0 = PFA + 10 * NLL + 6 * NL2
PF1 = PF0 + 8 * NN + 8 * NC
assert PF1 <= 166
PF2 = ENV("PF2", 166); PFD = ENV("PFD", 0); PFD2 = ENV("PFD2", 0)
GT = eval(os.environ.get("GT", "[0,0,6,6]")); DT = ENV("DT", 3)
RDMA = ENV("RDMA", 1)
DEA = ENV("DEA", 1)
DE = ENV("DE", 1)
def pf_ld(a, dst, v, R):
    if XW: return
    for m in MOD("PFM", "nt;sc1").split(";"): a(f"buffer_load_dword v{dst}, v{v}, s[{R}:{R+3}], s{T4_} offen {m}")
def pf_lane(a, v, t):
    a(f"v_mul_u32_u24 v{v}, 57, v1", f"v_lshrrev_b32 v{v}, 9, v{v}", f"v_mul_u32_u24 v{t}, 9, v{v}", f"v_sub_u32 v{t}, v1, v{t}", f"v_mul_u32_u24 v{v}, 9216, v{v}", f"v_lshl_add_u32 v{v}, v{t}, 7, v{v}")
def pf_gu_setup(a, sidx, R=R2_, tb=T3_, tt=T4_):
    a(f"s_bitcmp1_b32 s{sidx}, 0", f"s_cselect_b32 s{R}, s{P_UP}, s{P_GATE}", f"s_cselect_b32 s{R+1}, s{P_UP+1}, s{P_GATE+1}")
    a(f"s_mov_b32 s{R+2}, {hex(D*F*2)}", f"s_mov_b32 s{R+3}, 0x20000")
    a(f"s_lshr_b32 s{tb}, s{sidx}, 1", f"s_mul_i32 s{tb}, s{tb}, {7*9216}", f"s_mul_i32 s{tt}, s{S_XC}, 1152", f"s_add_u32 s{tb}, s{tb}, s{tt}")
def pf_gu(a, v, sidx, nw, u0, u1, dst, done):
    assert u0 % 2 == 0 and nw % 2 == 0
    pf_gu_setup(a, sidx)
    k = 0
    while u0 + k * nw < u1:
        if u0 + (k + 1) * nw > u1: a(f"s_cmp_ge_u32 s{sidx}, {u1 - u0 - k*nw}", f"s_cbranch_scc1 {done}")
        a(f"s_add_u32 s{T4_}, s{T3_}, {(u0 + k*nw)//2*7*9216}")
        pf_ld(a, dst, v, R2_)
        k += 1
def pf_down(a, sidx, nw, u0, u1, v, dst, done, R=R2_):
    srd(a, R, P_DOWN, D * F * 2)
    a(f"s_lshl_b32 s{T3_}, s{sidx}, 13", f"s_mul_i32 s{T4_}, s{S_XC}, {576*1152}", f"s_add_u32 s{T3_}, s{T3_}, s{T4_}", f"v_lshlrev_b32 v{v}, 7, v1")
    k = 0
    while u0 + k * nw < u1:
        if u0 + (k + 1) * nw > u1: a(f"s_cmp_ge_u32 s{sidx}, {u1 - u0 - k*nw}", f"s_cbranch_scc1 {done}")
        a(f"s_add_u32 s{T4_}, s{T3_}, {(u0 + k*nw)*8192}")
        pf_ld(a, dst, v, R)
        k += 1
def gen_ln1(a):
    LW, TB = T5_, S_CH
    X, RAW = 8, 26
    a(f"s_sub_u32 s{T0_}, s{S_I}, 8", f"s_and_b32 s{TB}, s{T0_}, 7", f"s_lshr_b32 s{T0_}, s{T0_}, 3", f"s_lshl_b32 s{T0_}, s{T0_}, 4", f"s_add_u32 s{TB}, s{TB}, s{T0_}")
    a(f"s_and_b32 s{T0_}, s{S_XC}, 1", f"s_lshl_b32 s{T0_}, s{T0_}, 3", f"s_add_u32 s{TB}, s{TB}, s{T0_}", f"s_lshr_b32 s{T0_}, s{S_XC}, 1", f"s_lshl_b32 s{T0_}, s{T0_}, 5", f"s_add_u32 s{TB}, s{TB}, s{T0_}")
    a("v_lshrrev_b32 v36, 5, v1", "v_and_b32 v37, 31, v1")
    a("v_mul_u32_u24 v38, 1152, v36", "v_lshl_add_u32 v39, v37, 2, v38", "v_lshl_add_u32 v38, v37, 4, v38")
    a(f"s_mul_i32 s{T1_}, s{TB}, 18432", f"s_mul_i32 s{T2_}, s{LW}, 2304", f"s_add_u32 s{T1_}, s{T1_}, s{T2_}")
    a("s_waitcnt lgkmcnt(0)")
    stamp(a, 1)
    srd(a, R0, P_X, XBYTES)
    a(f"buffer_load_dwordx4 v[{RAW}:{RAW+3}], v38, s[{R0}:{R0+3}], s{T1_} offen")
    a(f"buffer_load_dwordx4 v[{RAW+4}:{RAW+7}], v38, s[{R0}:{R0+3}], s{T1_} offen offset:512")
    a(f"buffer_load_dword v{RAW+8}, v39, s[{R0}:{R0+3}], s{T1_} offen offset:1024")
    a("s_barrier")
    a(f"s_lshr_b32 s{T1_}, s{LW}, 2", f"s_lshl_b32 s{T1_}, s{T1_}, 6", f"s_add_u32 s{T2_}, s{T2_}, s{T1_}", f"s_add_u32 s{T2_}, s{T2_}, {C_LNB}")
    a(f"v_lshl_add_u32 v35, v37, 1, v36")
    a(f"s_mov_b32 s{SP0}, 0x05040100", f"s_mov_b32 s{SP1}, 0x07060302")
    def waits(n):
        for (c, js) in ((2, range(0, 4)), (1, range(4, 8)), (0, range(8, 9))):
            a(f"s_waitcnt vmcnt({c+n})")
            for j in js: unpack(a, X + 2 * j, RAW + j)
    l1 = newlabel("LN1A"); l2 = newlabel("LN1B")
    if NL:
        LW0 = ENV("NLW", 4)
        pf_lane(a, 46, 47)
        a(f"s_sub_u32 s{T1_}, s{LW}, {LW0}", f"s_and_b32 s{T1_}, s{T1_}, 7", f"s_lshl_b32 s{T3_}, s{T1_}, 4", f"s_add_u32 s{T3_}, s{T3_}, s{S_I}", f"s_sub_u32 s{T3_}, s{T3_}, 8")
        pf_gu_setup(a, T3_, R3, T4_, T0_)
    def dma_early(skip):
        a(f"s_cmp_lt_u32 s{LW}, 4", f"s_cbranch_scc1 {skip}", f"s_cmp_ge_u32 s{S_FI}, 18", f"s_cbranch_scc1 {skip}")
        srd(a, R1, P_DOWN, F * D * 2)
        a("v_lshlrev_b32 v46, 4, v1", f"s_mul_i32 s{T0_}, s{S_BLK}, 36864", f"s_mul_i32 s{T1_}, s{LW}, 9216", f"s_add_u32 s{T0_}, s{T0_}, s{T1_}", f"s_sub_u32 s{T0_}, s{T0_}, {4*9216}", f"s_add_u32 s{T1_}, s{T1_}, {C_DOWN - 4*9216}")
        for k in range(9):
            if k % 4 == 0:
                a(f"s_add_u32 m0, s{T1_}, {1024*k}")
                if k: a(f"s_add_u32 s{T0_}, s{T0_}, 4096")
            a(f"buffer_load_dwordx4 v46, s[{R1}:{R1+3}], s{T0_} offen offset:{1024*(k&3)} {MOD('DM', 'nt')} lds")
    if XW: waits(0)
    elif DEA == 1:
        dma_early(l1)
        waits(9)
        a(f"s_branch {l2}")
        a(f"{l1}:")
        if NL3:
            l3 = newlabel("LN1C")
            a(f"s_sub_u32 s{T1_}, s{LW}, 4", f"s_cmp_ge_u32 s{T1_}, {NL3}", f"s_cbranch_scc1 {l3}")
            pf_lane(a, 46, 47)
            a(f"s_mul_i32 s{T1_}, s{T1_}, 6", f"s_add_u32 s{T1_}, s{T1_}, s{S_I}", f"s_add_u32 s{T3_}, s{T1_}, {PFB - 18}")
            pf_gu_setup(a, T3_, R3, T4_, T0_)
            pf_ld(a, 47, 46, R3)
            waits(len(MOD("PFM", "nt;sc1").split(';')))
            a(f"s_branch {l2}")
            a(f"{l3}:")
        waits(0)
        a.flush(2)
        a(f"{l2}:")
    elif DEA == 2:
        waits(0)
        dma_early(l1)
        a(f"{l1}:")
    elif NL and ENV("NLE", 0):
        a(f"s_cmp_lt_u32 s{T1_}, {NL}", f"s_cselect_b32 s{T4_}, s{T4_}, {hex(D*F*2)}")
        pf_ld(a, 47, 46, R3)
        waits(len(MOD("PFM", "nt;sc1").split(';')))
    else:
        waits(0)
    if NL and not ENV("NLE", 0):
        if ENV("X0", 0): a(f"s_cmp_eq_u32 s{S_XC}, 0", f"s_cbranch_scc1 {l1}")
        a(f"s_cmp_ge_u32 s{T1_}, {NL}", f"s_cbranch_scc1 {l1}")
        pf_ld(a, 47, 46, R3)
        a(f"{l1}:")
    stamp(a, 2)
    a(f"v_lshl_add_u32 v6, v35, 4, s{T2_}", f"v_lshl_add_u32 v7, v35, 2, s{T2_}")
    a(f"v_mul_u32_u24 v35, 0x20202, v36", "v_lshl_add_u32 v35, v36, 25, v35", "v_add_u32 v35, 0x05040100, v35")
    ln_stats(a, X, 36, 38, 40, 42, 44)
    for j in range(9):
        if j == ENV("DSAMP", 3):
            a("v_and_b32 v59, 3, v1", "v_lshlrev_b32 v59, 2, v59")
            if SN: a(f"s_load_dwordx4 s[{R3}:{R3+3}], s[{P_DBG}:{P_DBG+1}], 0" + (" glc" if SN == 2 else ""))
            else: a(f"global_load_dword v58, v59, s[{P_DBG}:{P_DBG+1}] sc1")
        ln_apply_pair(a, X + 2 * j, 36, 38, 40, None)
        a(f"v_cvt_pk_f16_f32 v{RAW+j}, v40, v41")
        if j in (3, 7):
            P = RAW + j - 3; O = X + 2 * (j - 3)
            a(f"v_permlane32_swap_b32 v{P}, v{P+2}", f"v_permlane32_swap_b32 v{P+1}, v{P+3}")
            a(f"v_perm_b32 v{O}, v{P+2}, v{P}, s{SP0}", f"v_perm_b32 v{O+1}, v{P+2}, v{P}, s{SP1}")
            a(f"v_perm_b32 v{O+2}, v{P+3}, v{P+1}, s{SP0}", f"v_perm_b32 v{O+3}, v{P+3}, v{P+1}, s{SP1}")
            a(f"ds_write_b128 v6, v[{O}:{O+3}] offset:{1024*(j//4)}")
    a(f"v_mov_b32 v40, v{RAW+8}", f"v_permlane32_swap_b32 v{RAW+8}, v40")
    a(f"v_perm_b32 v40, v40, v{RAW+8}, v35")
    a(f"ds_write_b32 v7, v40 offset:2048")
    a(f"v_mov_b32 v6, s{LW}")
    a(f"ds_write_b8 v6, v{VONE} offset:{FL_LN1}")
    a("s_setprio 0")
    a(f"s_cmp_ge_u32 s{LW}, 4", "s_cbranch_scc1 KS_X4")
    a("s_setprio 3")
    srd(a, R2_, P_WS, XBYTES, WS_UT)
    a("v_and_b32 v6, 1, v0", "v_mul_u32_u24 v6, 9280, v6", "v_lshrrev_b32 v7, 1, v0", "v_lshl_add_u32 v6, v7, 2, v6", f"v_add_u32 v6, {C_LNB}, v6")
    if UL:
        a("v_lshrrev_b32 v7, 3, v0", "v_mul_u32_u24 v7, 0x4100, v7", "v_and_b32 v8, 7, v0", "v_lshl_add_u32 v7, v8, 4, v7")
        a(f"s_lshl_b32 s{T0_}, s{TB}, 7")
    else:
        a("v_lshrrev_b32 v7, 2, v0", "v_mul_u32_u24 v7, 0x2080, v7" if SWU else "v_lshlrev_b32 v7, 13, v7", "v_and_b32 v8, 3, v0", "v_lshl_add_u32 v7, v8, 4, v7")
        a(f"s_lshl_b32 s{T0_}, s{TB}, 6")
    if SWU: a(f"v_xor_b32 v7, s{T0_}, v7", f"s_mov_b32 s{T0_}, 0")
    for k in range(1, 5): a(f"s_add_u32 s{T0_+k}, s{T0_}, {0x80000*k}")
    if SN:
        a("s_waitcnt lgkmcnt(0)")
        a(f"v_mov_b32 v58, s{R3}", f"v_mov_b32 v57, s{R3+1}", f"v_mov_b32 v56, s{R3+2}", f"v_mov_b32 v55, s{R3+3}")
        a("v_mov_b32_dpp v58, v57 quad_perm:[0,1,2,3] row_mask:0xf bank_mask:0xf" if 0 else "v_cmp_eq_u32 vcc, 4, v59", "v_cndmask_b32 v58, v58, v57, vcc", "v_cmp_eq_u32 vcc, 12, v59", "v_cndmask_b32 v56, v56, v55, vcc", "v_cmp_lt_u32 vcc, 4, v59", "v_cndmask_b32 v58, v58, v56, vcc")
        dbg_wait(a, 63)
    else: dbg_wait(a, 0)
    a(f"ds_write_b32 v59, v58 offset:{FL_NONCE}")
    a(f"s_mov_b32 s{SP0}, {hex(TAGM)}")
    for d in range(1, 4): a(f"v_lshrrev_b32 v{58-d}, {3*d}, v58")
    lds_wait(a, FL_LN1, 20, "b8")
    stamp(a, 3)
    for k in range(5):
        a(f"ds_read2st64_b32 v[{20+4*k}:{21+4*k}], v6 offset0:{2*k} offset1:{9+2*k}")
        a(f"ds_read2st64_b32 v[{22+4*k}:{23+4*k}], v6 offset0:{18+2*k} offset1:{27+2*k}")
    for k in range(5):
        a(f"s_waitcnt lgkmcnt({8-2*k})")
        for d in range(4): a(f"v_bfi_b32 v{20+4*k+d}, s{SP0}, v{58-d}, v{20+4*k+d}")
        a(f"buffer_store_dwordx4 v[{20+4*k}:{23+4*k}], v7, s[{R2_}:{R2_+3}], s{T0_+k} offen {MOD('USMOD')}")
    if DE: a(f"v_mov_b32 v6, s{LW}", f"ds_write_b8 v6, v{VONE} offset:{FL_UTOK}")
    stamp(a, 4)

def dbg_wait(a, n, vt=58, va=59):
    lp = newlabel("DBP"); go = newlabel("DBG")
    a(f"s_waitcnt vmcnt({n})")
    a(f"{lp}:")
    a(f"v_cmp_eq_u32 vcc, 0, v{vt}", f"s_cbranch_vccz {go}")
    a("s_sleep 1")
    a(f"global_load_dword v{vt}, v{va}, s[{P_DBG}:{P_DBG+1}] sc1")
    guard(a)
    a("s_waitcnt vmcnt(0)")
    a(f"s_branch {lp}")
    a(f"{go}:")

ROLE_TILES = {0: [0, 1, 2, 3, 4], 1: [0, 1, 2, 3, 4], 2: [5, 6, 7], 3: [5, 6, 7]}
ROLE_W = {2: 0, 3: 1, 1: 2}
ACC, DA, RING, WT = 16, 36, 76, 92
NRING = 4

def epi_plan():
    owner = {0: (0, 0), 1: (0, 1), 2: (1, 0), 3: (1, 1), 4: (1, 3), 5: (0, 2), 6: (0, 3), 7: (1, 2)}
    slots = {}
    cnt = [0, 0]
    for g in range(2):
        for role in range(4):
            for j in ROLE_TILES[role]:
                if owner[j] == (g, role): continue
                slots[(g, role, j)] = g * G_SIZE + R_RED + 1024 * cnt[g]; cnt[g] += 1
    assert max(cnt) <= 13, cnt
    ownerC = {0: 0, 1: 0, 2: 1, 3: 1, 4: 2, 5: 2, 6: 3, 7: 3}
    n = 0
    for role in range(4):
        for j in ROLE_TILES[role]:
            if ownerC[j] == role: continue
            slots[(2, role, j)] = 2 * G_SIZE + R_RED + 1024 * n; n += 1
    return owner, ownerC, slots

class LdsTrack:
    def __init__(self, a): self.a = a; self.n = 0; self.done = -1
    def issue(self, text): self.a(text); self.n += 1; return self.n - 1
    def wait(self, idx):
        k = self.n - 1 - idx
        if idx <= self.done: return
        self.done = idx
        if k <= 15: self.a(f"s_waitcnt lgkmcnt({k})")

CZ0, CZ1, CSH, CXR, CFL, SIS, CM, SM, SC, SSC, SDL = 6, 7, 8, 9, 10, 11, 12, 14, 15, 16, 18
IXR, LFR = (108, 109, 112, 113), (110, 111, 114, 115)
def stage_write(a, off):
    a("v_lshl_or_b32 v24, v25, 16, v24", "v_lshl_or_b32 v25, v27, 16, v26", f"ds_write_b64 v28, v[24:25] offset:{off}")
def pre_ixlf(a):
    end = newlabel("PX"); j1 = newlabel("PX"); j2 = newlabel("PX"); jn = newlabel("PX")
    a(f"s_cmp_eq_u32 s{S_ROLE}, 3", f"s_cbranch_scc1 {end}")
    a("v_lshlrev_b32 v26, 3, v2", "v_mov_b32 v21, 0x80")
    a(f"s_cmp_eq_u32 s{S_ROLE}, 1", f"s_cbranch_scc1 {j1}", f"s_cmp_eq_u32 s{S_ROLE}, 2", f"s_cbranch_scc1 {j2}")
    a("v_lshl_add_u32 v26, v3, 1, v26", "v_mov_b32 v22, 1")
    a(f"s_branch {jn}")
    a(f"{j1}:")
    a("v_cmp_gt_u32 vcc, 2, v3", "v_lshl_add_u32 v20, v3, 2, v26", "v_add_u32 v20, 256, v20", "v_lshl_add_u32 v26, v3, 8, v26", "v_cndmask_b32 v26, v26, v20, vcc")
    a("v_cndmask_b32 v22, v21, 2, vcc", "v_cndmask_b32 v21, 4, v21, vcc")
    a(f"s_branch {jn}")
    a(f"{j2}:")
    a("v_lshl_add_u32 v26, v3, 9, v26", "v_add_u32 v26, 0x400, v26", "v_mov_b32 v22, 0x100")
    a(f"{jn}:")
    a(f"v_mad_u32_u24 v26, v22, s{S_G}, v26", "v_add_u32 v27, v26, v21", f"s_movk_i32 s{T4_}, {T_TAB}", f"s_movk_i32 s{T5_}, {-(0x4280 + 0x800)}", f"s_lshl_b32 s{T3_}, s{S_G}, 9")
    for r in range(2): a(f"v_cvt_f32_u32 v{20+r}, v{26+r}", f"v_max_u32 v{22+r}, 0x800, v{26+r}")
    for r in range(2):
        a(f"v_cmp_gt_u32 vcc, 0x80, v{26+r}", f"v_lshrrev_b32 v{24+r}, 16, v{20+r}", f"v_add3_u32 v{24+r}, v{24+r}, v{22+r}, s{T5_}", f"v_cndmask_b32 v{24+r}, v{24+r}, v{26+r}, vcc")
    for r in range(2):
        a(f"v_min_u32 v{24+r}, {IDX_DUMMY}, v{24+r}", f"v_lshl_add_u32 v{24+r}, v{24+r}, 1, s{T4_}")
    a(f"v_add_u32 v29, s{T3_}, v28")
    a("v_lshl_or_b32 v24, v25, 16, v24", "v_lshl_or_b32 v25, v27, 16, v26", "ds_write_b64 v29, v[24:25]")
    a(f"{end}:")

def gen_group(a):
    RAW, VLDT, VDSK, VNT, VNA, VPR, VEM, VTE, VTL = 40, 46, 107, 104, 105, 106, 72, 126, 127
    I1, D2, I2, D1, D3 = 116, 119, 120, 124, 125
    a(f"s_lshl_b32 s{T0_}, s{S_CH}, 8", f"v_lshl_add_u32 v20, v1, 2, s{T0_}")
    a(f"s_lshl_b32 s{T0_}, s{S_CH}, 1", f"v_mov_b32 v21, s{T0_}")
    a(f"s_mul_i32 s{S_GB}, s{S_G}, {G_SIZE}", f"s_add_u32 s{S_GB}, s{S_GB}, {G_BASE}")
    a("s_waitcnt lgkmcnt(0)")
    stamp(a, 1)
    PL = ENV("PLATE", 0)
    if PL == 1: a(f"s_sub_u32 s{T0_}, s{S_I}, 8", f"s_cmp_ge_u32 s{T0_}, 16", "s_cbranch_scc1 KS_PL1", "s_barrier", "KS_PL1:")
    if PL == 2: a("s_barrier")
    a(f"global_load_ushort v{VLDT}, v21, s[{P_LDT}:{P_LDT+1}]")
    for k in range(6):
        a(f"global_load_dword v{RAW+k}, v20, s[{P_ARE+2*k}:{P_ARE+2*k+1}]")
    a(f"global_load_ushort v{VDSK}, v21, s[{P_DSK}:{P_DSK+1}]")
    if PL == 1: a("s_cbranch_scc0 KS_PL2")
    if PL != 2: a("s_barrier")
    if PL == 1: a("KS_PL2:")
    if ENV("UPW", 0):
        a(f"s_sub_u32 s{T0_}, s{S_I}, 8", f"s_cmp_ge_u32 s{T0_}, 16", "s_cbranch_scc1 KS_UPW", f"s_cmp_lg_u32 s{S_G}, 1", "s_cbranch_scc1 KS_UPW")
        TB = T5_
        a(f"s_and_b32 s{TB}, s{T0_}, 7", f"s_lshr_b32 s{T0_}, s{T0_}, 3", f"s_lshl_b32 s{T0_}, s{T0_}, 4", f"s_add_u32 s{TB}, s{TB}, s{T0_}")
        a(f"s_and_b32 s{T0_}, s{S_XC}, 1", f"s_lshl_b32 s{T0_}, s{T0_}, 3", f"s_add_u32 s{TB}, s{TB}, s{T0_}", f"s_lshr_b32 s{T0_}, s{S_XC}, 1", f"s_lshl_b32 s{T0_}, s{T0_}, 5", f"s_add_u32 s{TB}, s{TB}, s{T0_}")
        srd(a, R2_, P_WS, XBYTES, WS_UT)
        a(f"s_lshl_b32 s{T0_}, s{S_ROLE}, 4", "v_lshrrev_b32 v7, 2, v1", f"v_add_u32 v7, s{T0_}, v7", "v_mul_u32_u24 v7, 0x2080, v7", "v_and_b32 v8, 3, v1", "v_lshl_add_u32 v7, v8, 4, v7")
        a(f"s_lshl_b32 s{T0_}, s{TB}, 6", f"v_xor_b32 v7, s{T0_}, v7")
        for d in range(4): a(f"v_mov_b32 v{8+d}, 0")
        for k in range(5):
            a(f"s_mov_b32 s{T0_}, {0x80000*k}")
            a(f"buffer_store_dwordx4 v[8:11], v7, s[{R2_}:{R2_+3}], s{T0_} offen {MOD('UPWMOD')}")
        a.flush(2)
        a("KS_UPW:")
    a(f"s_movk_i32 s{T4_}, {T_TAB}")
    def dr_addr(dst, x, special=False):
        a(f"v_sub_u32 v30, 544, v{x}", "v_cvt_f32_i32 v31, v30", "v_cmp_gt_u32 vcc, 0x100, v30", "v_cvt_pk_bf16_f32 v31, v31, v31", "v_and_b32 v31, 0xffff, v31", "v_subrev_u32 v31, 0x4280, v31")
        a("v_cndmask_b32 v31, v31, v30, vcc", "v_cmp_lt_u32 vcc, 0x20d, v30")
        if special: a(f"v_or_b32 v30, 1, v{x}")
        a("v_cndmask_b32 v31, v31, v32, vcc")
        if special: a("v_cmp_eq_u32 vcc, 0x25d, v30", "v_cndmask_b32 v31, v31, v33, vcc")
        a(f"v_lshl_add_u32 v{dst}, v31, 1, s{T4_}")
    def g_addr(dst, y0, base, M):
        a(f"v_sub_u32 v30, {y0}, v23", f"v_cmp_lt_u32 vcc, {M}, v30", f"v_lshlrev_b32 v31, 2, v30", f"v_add_u32 v31, {T_TAB + 2*base}, v31", f"v_cndmask_b32 v{dst}, v31, v33, vcc")
    pb = newlabel("PREB"); pw = newlabel("PREW"); pe = newlabel("PREE")
    a(f"s_cmp_eq_u32 s{S_G}, 2", f"s_cbranch_scc1 {pe}")
    a(f"v_mov_b32 v32, {IDX_ZERO}")
    a(f"s_cmp_eq_u32 s{S_G}, 1", f"s_cbranch_scc1 {pb}")
    jl = [newlabel("PRE") for _ in range(4)]
    a(f"v_mov_b32 v33, {T_TAB + 2*IDX_ZERO}")
    for r in range(1, 4): a(f"s_cmp_eq_u32 s{S_ROLE}, {r}", f"s_cbranch_scc1 {jl[r]}")
    a("v_lshlrev_b32 v23, 1, v1")
    for e, (y0, base, M) in enumerate(((93, 389, 61), (92, 389, 61), (94, 388, 62), (93, 388, 62))): g_addr(24 + e, y0, base, M)
    a(f"s_branch {pw}")
    for r, base in ((1, 513), (2, 514)):
        a(f"{jl[r]}:")
        a("v_min_u32 v23, 47, v1", "v_lshlrev_b32 v23, 1, v23")
        for e, y0 in ((0, 64), (1, 63), (3, 62)): g_addr(24 + e, y0, base, 63)
        a("v_mov_b32 v26, v25")
        a(f"s_branch {pw}")
    a(f"{jl[3]}:")
    a("v_cmp_gt_u32 vcc, 9, v1", "v_add_u32 v23, 0x100, v1", "v_mov_b32 v33, 0x200", "v_cndmask_b32 v23, v23, v1, vcc", "v_lshlrev_b32 v23, 1, v23")
    for e in (0, 1, 3):
        if e: a("v_add_u32 v23, 1, v23")
        dr_addr(24 + e, 23, special=True)
    a("v_mov_b32 v26, v25")
    a(f"s_branch {pw}")
    a(f"{pb}:")
    a(f"s_lshl_b32 s{T1_}, s{S_ROLE}, 7", f"s_add_u32 s{T1_}, s{T1_}, 18", f"v_lshl_add_u32 v23, v1, 1, s{T1_}")
    for e in range(3):
        if e: a("v_add_u32 v23, 1, v23")
        dr_addr(24 + e, 23)
    a(f"s_sub_u32 s{T1_}, s{S_ROLE}, 1", f"s_cmp_lt_u32 s{T1_}, 2", f"s_cselect_b32 s{T2_}, 47, 63", f"s_mul_i32 s{T1_}, s{T1_}, {T_G9E - T_G7E}", f"s_add_u32 s{T1_}, s{T1_}, {T_G7E}")
    a(f"s_cmp_eq_u32 s{S_ROLE}, 0", f"s_cselect_b32 s{T1_}, {T_G3}, s{T1_}", f"s_cmp_eq_u32 s{S_ROLE}, 3", f"s_cselect_b32 s{T1_}, {T_DRE}, s{T1_}", f"s_cselect_b32 s{T3_}, 0x100, 0")
    a("v_cmp_gt_u32 vcc, 9, v1", f"v_min_u32 v23, s{T2_}, v1", f"v_add_u32 v30, s{T3_}, v23", "v_cndmask_b32 v23, v30, v23, vcc", f"v_lshl_add_u32 v27, v23, 2, s{T1_}")
    stage_write(a, 1024)
    a(f"v_mov_b32 v24, s{S_ROLE}", f"ds_write_b8 v24, v{VONE} offset:{FL_PRE + 4}")
    a(f"s_branch {pe}")
    a(f"{pw}:")
    stage_write(a, 1536)
    a(f"v_mov_b32 v24, s{S_ROLE}", f"ds_write_b8 v24, v{VONE} offset:{FL_PRE}")
    a(f"{pe}:")
    a(f"s_mul_i32 s{T1_}, s{S_ROLE}, {16*KG_ROW}", f"s_min_u32 s{T2_}, s{T1_}, {KG_T[3]}", f"s_add_u32 s{T2_}, s{T2_}, s{S_GB}")
    a(f"s_lshl_b32 s{T0_}, s{S_G}, 4", f"v_mov_b32 v14, s{T0_}", f"v_add_u32 v15, s{S_ROLE}, v14")
    a(f"v_lshl_add_u32 v{VEM}, v1, 3, s{T2_}")
    for k in range(1, 4): a(f"v_add_u32 v{VEM+k}, {4*KG_ROW*k}, v{VEM}")
    a(f"v_mul_u32_u24 v{VTE}, {KG_ROW}, v2", f"v_lshl_add_u32 v{VTE}, v3, 4, v{VTE}", f"v_add_u32 v{VTE}, s{S_GB}, v{VTE}", f"v_add_u32 v{VTL}, s{T1_}, v{VTE}")
    VDA, VDA2, VB_, VT8, VT16, VG8, VG16, VLN = 6, 7, 8, 9, 10, 11, 13, 12
    a("v_lshlrev_b32 v20, 3, v3", "v_sub_u32 v20, v20, v2", "v_add_u32 v21, 16, v20", "v_lshrrev_b32 v21, 1, v21")
    a("v_and_b32 v22, 1, v2", f"s_add_u32 s{T0_}, s{S_GB}, {T_DRE}", f"v_lshl_add_u32 v21, v21, 2, s{T0_}", f"s_movk_i32 s{T0_}, {T_DRO - T_DRE}", f"s_movk_i32 s{T2_}, {T_G7O - T_G7E}")
    a(f"v_mad_u32_u24 v{VDA}, v22, s{T0_}, v21", f"v_add_u32 v{VDA2}, 640, v{VDA}")
    a(f"v_mad_u32_u24 v23, v22, s{T2_}, v21", f"v_add_u32 v{VG16}, {T_G7E - T_DRE}, v23")
    a("v_lshlrev_b32 v23, 2, v3", "v_sub_u32 v23, v23, v2", f"s_add_u32 s{T0_}, s{S_GB}, {T_G3 + 60}", f"v_lshl_add_u32 v{VG8}, v23, 2, s{T0_}")
    a(f"s_mul_i32 s{T2_}, s{S_G}, {U_SIZE}", f"s_add_u32 s{T2_}, s{T2_}, {C_U}")
    a(f"v_lshl_add_u32 v23, v2, 5, s{T2_}", f"v_lshl_add_u32 v{VB_}, v3, 4, v23")
    a("v_bfe_u32 v20, v1, 2, 2", "v_and_b32 v21, 3, v1", "v_lshl_add_u32 v20, v3, 3, v20")
    a(f"v_lshlrev_b32 v{VNA}, 2, v21")
    a(f"v_lshl_add_u32 v21, v21, 3, s{S_GB}", f"v_lshl_add_u32 v{VT8}, v20, 4, v21", f"v_lshl_add_u32 v{VT16}, v20, 5, v21")
    a(f"v_lshlrev_b32 v{VLN}, 4, v1")
    srd(a, R0, P_WS, 0x240000, WS_ZB1)
    if SWZ: a(f"s_mov_b32 s{CFL}, 0x8080")
    a(f"s_lshl_b32 s{T0_}, s{S_ROLE}, 19", f"s_lshl_b32 s{T1_}, s{S_B2}, 6", f"s_add_u32 s{T0_}, s{T0_}, s{T1_}")
    a(f"s_lshl_b32 s{T1_}, s{S_ROLE}, 16", f"s_lshl_b32 s{T3_}, s{S_CH}, 6", f"s_add_u32 s{T1_}, s{T1_}, s{T3_}", f"s_add_u32 s{T1_}, s{T1_}, {0x200000 - 512*64}")
    if SWZ:
        a(f"s_cmp_eq_u32 s{S_G}, 2", f"s_cselect_b32 s{CZ0}, s{T1_}, s{T0_}", f"s_cselect_b32 s{CSH}, 0x1080, s{CFL}", f"s_cselect_b32 s{T0_}, 1, 3")
        a(f"s_and_b32 s{T0_}, s{T0_}, s{S_ROLE}", f"s_lshl_b32 s{T0_}, s{T0_}, 11", f"s_xor_b32 s{CZ0}, s{CZ0}, s{T0_}", f"s_and_b32 s{CFL}, s{CZ0}, 0x7c0", f"s_xor_b32 s{CZ0}, s{CZ0}, s{CFL}", f"s_xor_b32 s{CZ1}, s{CZ0}, 0x6000")
    else:
        a(f"s_cmp_eq_u32 s{S_G}, 2", f"s_cselect_b32 s{CZ0}, s{T1_}, s{T0_}", f"s_cselect_b32 s{CSH}, 12, 15", f"s_add_u32 s{CZ1}, s{CZ0}, 16384")
    a(f"s_and_b32 s{CXR}, s{S_G}, 1", f"s_lshl_b32 s{CXR}, s{CXR}, 4", f"s_mov_b32 s{CM}, 0x55555555", f"s_mov_b32 s{CM+1}, 0x55555555")
    a(f"s_lshl_b32 s{T0_}, s{S_ROLE}, 8", f"s_add_u32 s{T0_}, s{T0_}, s{S_GB}", f"s_add_u32 s{T0_}, s{T0_}, 36", f"v_lshl_add_u32 v{D1}, v1, 2, s{T0_}")
    a(f"s_movk_i32 s{T0_}, {T_G7O - T_G7E}", f"s_cmp_eq_u32 s{S_ROLE}, 0", f"s_cselect_b32 s{T0_}, {T_G5 - T_G3}, s{T0_}", f"s_cmp_eq_u32 s{S_ROLE}, 3", f"s_cselect_b32 s{T0_}, {T_DRO - T_DRE}, s{T0_}")
    a(f"v_mov_b32 v20, s{S_GB}", f"ds_write_b16 v20, v{VZ} offset:{T_TAB + 2*IDX_ZERO}")
    a(f"s_mov_b32 s{SDL}, s{T0_}", f"v_mov_b32 v{D3}, v28")
    def stage_read():
        lds_wait(a, FL_PRE, 18, "b8")
        a(f"ds_read2st64_b64 v[28:31], v{D3} offset0:0 offset1:1", f"ds_read2st64_b64 v[32:35], v{D3} offset0:2 offset1:3")
    def stage_unpack():
        for k in range(16):
            src = 28 + k // 2; w = f"WORD_{k & 1}"
            if 108 + k in LFR: a(f"v_cvt_f32_u32_sdwa v{108+k}, v{src} dst_sel:DWORD dst_unused:UNUSED_PAD src0_sel:{w}")
            else: a(f"v_add_u32_sdwa v{108+k}, s{S_GB}, v{src} dst_sel:DWORD dst_unused:UNUSED_PAD src0_sel:DWORD src1_sel:{w}")
        a(f"v_add_u32 v{D3}, s{SDL}, v{D2}")
    stage_read()
    a("s_waitcnt lgkmcnt(0)")
    stage_unpack()
    ex = newlabel("EXP")
    if KOFF: a(f"s_lshl_b32 s{T0_}, s{S_G}, 5", f"s_add_u32 s{T0_}, s{T0_}, s{S_I}", f"s_cmp_ge_u32 s{T0_}, {64 + 24}", "s_cbranch_scc1 KC_RECV")
    a(f"s_mov_b32 s{T0_}, {f32(LOG2E_HI)}", f"s_mov_b32 s{T1_}, {f32(LOG2E_LO)}", f"s_mov_b32 s{T2_}, {f32(INV2PI_HI)}", f"s_mov_b32 s{T3_}, {f32(INV2PI_LO)}")
    a(f"s_waitcnt vmcnt(7)")
    a(f"v_lshlrev_b32 v16, 16, v{VLDT}")
    a(f"v_mul_f32 v17, s{T0_}, v16")
    a(f"v_fma_f32 v19, v16, s{T0_}, -v17", f"v_fmac_f32 v19, s{T1_}, v16")
    a("v_exp_f32 v17, v17")
    a(f"v_mul_f32 v19, {f32(math.log(2.0))}, v19")
    a("v_fmac_f32 v17, v17, v19")
    a("v_cvt_pk_bf16_f32 v16, 0, v17")
    a(f"s_waitcnt vmcnt(5)")
    stamp(a, 2)
    a(f"ds_write_b32 v{VZ}, v{VONE} offset:{FL_PARAM}")
    THH, THL = 68, 70
    for k in range(2): unpack(a, 20 + 2 * k, RAW + k)
    for k in range(2): a(f"v_pk_mul_f32 v[{20+2*k}:{21+2*k}], v[{20+2*k}:{21+2*k}], v[16:17] op_sel_hi:[1,0]")
    a("v_max_f32 v36, v20, v21")
    a(f"v_pk_mul_f32 v[{THH}:{THH+1}], v[22:23], s[{T2_}:{T3_}] op_sel_hi:[1,0]")
    a(f"v_pk_fma_f32 v[{THL}:{THL+1}], v[22:23], s[{T2_}:{T3_}], v[{THH}:{THH+1}] op_sel_hi:[1,0,1] neg_lo:[0,0,1] neg_hi:[0,0,1]")
    a(f"v_pk_fma_f32 v[{THL}:{THL+1}], v[22:23], s[{T2_}:{T3_}], v[{THL}:{THL+1}] op_sel:[0,1,0]")
    T = 90
    def cmul_(dr, di, ar, ai, br, bi, t=T):
        assert di not in (ar, br, bi)
        return [f"v_pk_mul_f32 v[{t}:{t+1}], v[{ai}:{ai+1}], v[{bi}:{bi+1}]",
                f"v_pk_mul_f32 v[{t+2}:{t+3}], v[{ai}:{ai+1}], v[{br}:{br+1}]",
                f"v_pk_fma_f32 v[{di}:{di+1}], v[{ar}:{ar+1}], v[{bi}:{bi+1}], v[{t+2}:{t+3}]",
                f"v_pk_fma_f32 v[{dr}:{dr+1}], v[{ar}:{ar+1}], v[{br}:{br+1}], v[{t}:{t+1}] neg_lo:[0,0,1] neg_hi:[0,0,1]"]
    def cm_(d, x, y, t=T): return cmul_(d, d + 2, x, x + 2, y, y + 2, t)
    def csq_(d, s_, t=T):
        return [f"v_pk_mul_f32 v[{t}:{t+1}], v[{s_+2}:{s_+3}], v[{s_+2}:{s_+3}]",
                f"v_pk_mul_f32 v[{t+2}:{t+3}], v[{s_}:{s_+1}], v[{s_+2}:{s_+3}]",
                f"v_pk_fma_f32 v[{d}:{d+1}], v[{s_}:{s_+1}], v[{s_}:{s_+1}], v[{t}:{t+1}] neg_lo:[0,0,1] neg_hi:[0,0,1]",
                f"v_pk_add_f32 v[{d+2}:{d+3}], v[{t+2}:{t+3}], v[{t+2}:{t+3}]"]
    def cmul(*x): a(*cmul_(*x))
    def csq(*x): a(*csq_(*x))
    CBR, CBI = 32, 34
    sk = newlabel("SK")
    a(f"s_cmp_eq_u32 s{S_ROLE}, 3", f"s_cbranch_scc1 {sk}")
    a("s_waitcnt vmcnt(1)")
    for k in range(2, 6): unpack(a, 20 + 2 * k, RAW + k)
    for k in range(2, 4): a(f"v_pk_mul_f32 v[{20+2*k}:{21+2*k}], v[{20+2*k}:{21+2*k}], v[16:17] op_sel_hi:[1,0]")
    cmul(CBR, CBI, 28, 30, 24, 26)
    a(f"v_max3_f32 v37, abs(v{CBI}), abs(v{CBI+1}), abs(v{CBR})", f"v_max_f32 v37, v37, abs(v{CBR+1})")
    a(f"{sk}:")
    a("s_waitcnt vmcnt(0)")
    a.flush(1)
    a("v_permlane32_swap_b32 v36, v37", "v_max_f32 v36, v36, v37")
    red32(a, "v_max_f32", 36, 38)
    a(f"v_readlane_b32 s{SM}, v36, 0", f"v_readlane_b32 s{SC}, v36, 32")
    a(f"s_add_u32 s{SC}, s{SC}, 0x7fffff", f"s_lshr_b32 s{SC}, s{SC}, 23", f"s_max_u32 s{SC}, s{SC}, 24", f"s_sub_u32 s{SSC}, 269, s{SC}", f"s_lshl_b32 s{SSC}, s{SSC}, 23")
    a(f"v_subrev_f32 v20, s{SM}, v20", f"v_subrev_f32 v21, s{SM}, v21")
    a(f"v_mul_f32 v20, {f32(LOG2E)}, v20", f"v_mul_f32 v21, {f32(LOG2E)}, v21")
    def scale_cb():
        a(f"v_pk_mul_f32 v[{CBR}:{CBR+1}], v[{CBR}:{CBR+1}], s[{SSC}:{SSC+1}] op_sel_hi:[1,0]", f"v_pk_mul_f32 v[{CBI}:{CBI+1}], v[{CBI}:{CBI+1}], s[{SSC}:{SSC+1}] op_sel_hi:[1,0]")
    def anchor(dr, di, l, conj=False):
        lit = {1: "1.0", 2: "2.0"}.get(l, f32(float(l)))
        for e in range(2):
            t = T + 4 * e
            if l != 1: a(f"v_mul_f32 v{t+1}, {lit}, v{THH+e}", f"v_mul_f32 v{t}, {lit}, v{20+e}")
        for e in range(2):
            t = T + 4 * e
            a(f"v_fract_f32 v{t+1}, v{t+1 if l != 1 else THH+e}")
        for e in range(2):
            t = T + 4 * e
            a(f"v_fmac_f32 v{t+1}, {lit}, v{THL+e}")
        for e in range(2):
            t = T + 4 * e
            a(f"v_exp_f32 v{t}, v{t if l != 1 else 20+e}", f"v_cos_f32 v{t+2}, v{t+1}", f"v_sin_f32 v{t+1}, v{t+1}")
        for e in range(2):
            t = T + 4 * e
            a(f"v_mul_f32 v{dr+e}, v{t}, v{t+2}")
            a(f"v_mul_f32 v{di+e}, v{t}, {'-' if conj else ''}v{t+1}")
    em = [0, None]
    def it(cms, row=None, x=None, y=None):
        if em[1]: a(em[1]); em[1] = None
        for k in range(4):
            for c in cms:
                if k < len(c): a(c[k])
        if row is None: return
        t = (98, 76)[em[0] & 1]; em[0] += 1
        for v, tt in ((x, t), (y, t + 2)):
            if v is not None: a(f"v_cvt_pk_f16_f32 v{tt}, v{v}, v{v+2}", f"v_cvt_pk_f16_f32 v{tt+1}, v{v+1}, v{v+3}")
        o = (row & 3) * KG_ROW // 8
        if y is None: em[1] = f"ds_write_b64 v{VEM + row//4}, v[{t}:{t+1}] offset:{8*o}"
        else: em[1] = f"ds_write2_b64 v{VEM + row//4}, v[{t}:{t+1}], v[{t+2}:{t+3}] offset0:{o} offset1:{o + KG_ROW//8}"
    G1, G2, G3 = 40, 44, 48
    VA, VB, VC, VD = 52, 56, 60, 64
    oth = lambda c, p, q: p if c != p else q
    jl = [newlabel("JOB") for _ in range(4)]; jn = newlabel("JOBJ")
    for r in (3, 1, 2): a(f"s_cmp_eq_u32 s{S_ROLE}, {r}", f"s_cbranch_scc1 {jl[r]}")
    anchor(G2, G2 + 2, 128); scale_cb(); anchor(G1, G1 + 2, 1)
    cur = CBR
    for c in range(8):
        nx = oth(cur, VA, VB)
        it([cm_(VC, cur, G2)] + ([cm_(nx, cur, G1, T + 4)] if c < 7 else []), 2 * c, cur, VC); cur = nx
    it([])
    a(f"s_branch {jn}")
    a(f"{jl[1]}:")
    anchor(G2, G2 + 2, 128); scale_cb(); csq(G3, G2); anchor(G1, G1 + 2, 2)
    it([cm_(VA, CBR, G3)]); cur = VA
    it([cm_(VD, VA, G3)])
    for c in range(4):
        nx = oth(cur, VA, VB)
        it([cm_(VC, cur, G2), cm_(nx, cur, G1, T + 4) if c < 3 else csq_(G3, G1, T + 4)], 2 * c, cur, VC); cur = nx
    cur = VD
    for aa in range(4):
        nx = oth(cur, VA, VB)
        it([cm_(VC, cur, G3)] + ([cm_(nx, cur, G2, T + 4)] if aa < 3 else []), 8 + 2 * aa, cur, VC); cur = nx
    it([])
    a(f"s_branch {jn}")
    a(f"{jl[3]}:")
    anchor(G1, G1 + 2, 8, conj=True)
    a(f"v_mov_b32 v{VA}, {f32(32768.0)}", f"v_mov_b32 v{VA+1}, {f32(32768.0)}", f"v_mov_b32 v{VA+2}, 0", f"v_mov_b32 v{VA+3}, 0")
    sc_ = lambda d, x: [f"v_pk_mul_f32 v[{d}:{d+1}], v[{x}:{x+1}], v[{VA}:{VA+1}]", f"v_pk_mul_f32 v[{d+2}:{d+3}], v[{x+2}:{x+3}], v[{VA}:{VA+1}]"]
    it([csq_(G2, G1), sc_(VC, G1)])
    ce, co = VA, VC
    for b in range(8):
        ne, no = oth(ce, VA, VB), oth(co, VC, VD)
        it([] if b == 7 else [sc_(ne, G2) if b == 0 else cm_(ne, ce, G2), cm_(no, co, G2, T + 4)], 2 * b, ce, co); ce, co = ne, no
    it([])
    a(f"ds_write_b8 v15, v{VONE} offset:{FL_G}")
    stamp(a, 3)
    if KOFF: a(f"s_cmp_eq_u32 s{S_G}, 2", "s_cbranch_scc1 KS_G0")
    a(f"s_branch {ex}")
    if KOFF:
        a("KC_SEND:")
        lds_wait(a, FL_NONCE, VNT, "nz", addr=VNA)
        a(f"s_lshl_b32 s{T0_}, s{S_CH}, 12", f"s_lshl_b32 s{T1_}, s{S_ROLE}, 10", f"s_add_u32 s{T0_}, s{T0_}, s{T1_}", f"s_add_u32 s{T0_}, s{T0_}, {hex(WS_KT - 512*4096)}", f"v_add_u32 v24, s{T0_}, v{VLN}")
        a(f"s_mov_b32 s{T1_}, 0xffff", f"v_lshlrev_b32 v25, 16, v{VNT}")
        for r in range(4): a(f"v_cvt_f16_f32 v{20+r}, v{20+r}")
        a(f"s_cmp_lg_u32 s{S_ROLE}, 2", "s_cbranch_scc1 KC_S2")
        a("s_mov_b32 exec_lo, 0", "s_mov_b32 exec_hi, 0xffff0000")
        a(f"v_mov_b32 v20, v{VPR}", f"v_lshrrev_b32 v21, 16, v{VPR}")
        a("s_mov_b64 exec, -1")
        a("KC_S2:")
        for r in range(4): a(f"v_bfi_b32 v{20+r}, s{T1_}, v{20+r}, v{25 if r & 1 else VNT}")
        a(f"global_store_dwordx4 v24, v[20:23], s[{P_WS}:{P_WS+1}] sc1")
        stamp(a, 4)
        a("s_branch KS_G0")
        a("KC_RECV:")
        a(f"s_cmp_eq_u32 s{S_ROLE}, 3", f"s_cbranch_scc1 {ex}")
        a(f"s_lshl_b32 s{T0_}, s{S_CH}, 12", f"s_lshl_b32 s{T1_}, s{S_ROLE}, 10", f"s_add_u32 s{T0_}, s{T0_}, s{T1_}", f"s_add_u32 s{T0_}, s{T0_}, {hex(WS_KT - 512*4096)}", f"v_add_u32 v24, s{T0_}, v{VLN}")
        lds_wait(a, FL_NONCE, VNT, "nz", addr=VNA, sleep=2)
        a(f"v_lshlrev_b32 v25, 16, v{VNT}")
        stamp(a, 2)
        lds_wait(a, FL_G + {0: 0, 1: 4, 2: 16, 3: 8, 4: 20}[ENV("KTRIG", 1)], 17, "b4", sleep=2)
        lp = newlabel("KP"); l1 = newlabel("KPE")
        a(f"s_branch {l1}")
        a(f"{lp}:")
        a("s_sleep 2")
        a(f"{l1}:")
        a(f"global_load_dwordx4 v[20:23], v24, s[{P_WS}:{P_WS+1}] {MOD('KMOD')}")
        guard(a)
        a("s_waitcnt vmcnt(0)")
        for r in range(4): a(f"v_xor_b32 v{20+r}, v{25 if r & 1 else VNT}, v{20+r}")
        a("v_or3_b32 v26, v20, v21, v22", "v_or_b32 v26, v26, v23", "v_cmp_lt_u32 vcc, 0xffff, v26", f"s_cbranch_vccnz {lp}")
        stamp(a, 3)
        for r in (0, 2): a(f"v_xor_b32 v{20+r}, v{VNT}, v{20+r}")
        for r in range(4): a(f"ds_write_b16 v{IXR[r]}, v{20+r}")
        a(f"s_cmp_lg_u32 s{S_ROLE}, 2", f"s_cbranch_scc1 {ex}")
        a("v_and_b32 v20, 0xffff, v20", "v_lshl_or_b32 v20, v21, 16, v20", f"v_lshlrev_b32 v21, 16, v{VDSK}")
        a("s_mov_b32 exec_lo, 0", "s_mov_b32 exec_hi, 0x10000")
        a(f"ds_write_b64 v14, v[20:21] offset:{C_PAR}")
        a("s_mov_b64 exec, -1")
        a(f"s_branch {ex}")
    a(f"{jl[2]}:")
    anchor(G2, G2 + 2, 128); scale_cb()
    it([csq_(G1, G2), cm_(VD, CBR, G2, T + 4)]); csq(G3, G1); csq(G3, G3)
    it([cm_(VA, CBR, G3), cm_(VC, VD, G3, T + 4)])
    ce, co = VA, VC
    for r in range(4):
        ne, no = oth(ce, VA, VB), oth(co, VC, VD)
        it([cm_(ne, ce, G1)] + ([cm_(no, co, G1, T + 4)] if r < 3 else []), 2 * r, ce, co); ce, co = ne, no
    it([], 8, ce, None)
    a(f"v_mov_b32 v36, {f32(2048.0*LOG2E)}", f"v_mul_f32 v24, s{SM}, v36", "v_max_f32 v24, 0, v24", "v_exp_f32 v24, v24")
    it([])
    a(f"s_sub_u32 s{SIS}, s{SC}, 7", f"s_lshl_b32 s{SIS}, s{SIS}, 23")
    a(f"v_lshlrev_b32 v25, 16, v{VDSK}", f"v_mul_f32 v24, s{SIS}, v24", f"v_mov_b32 v{VPR}, v24")
    a(f"ds_write_b64 v14, v[24:25] offset:{C_PAR}")
    a(f"{jn}:")
    a(f"ds_write_b8 v15, v{VONE} offset:{FL_G}")
    stamp(a, 3); kstamp(a, 2)
    for s in range(8): a(f"ds_read_b128 v[{40+4*s}:{43+4*s}], v{VTL} offset:{64*s}")
    a(f"v_mov_b32 v36, {f32(LOG2E)}", f"v_mul_f32 v36, s{SM}, v36")
    a(f"v_mul_f32 v37, {f32(2048.0)}, v36", "v_max_f32 v37, 0, v37", f"v_add_f32 v37, {f32(23.0)}, v37")
    for r in range(4):
        a(f"v_fma_f32 v{LFR[r]}, v{LFR[r]}, v36, -v37")
    for r in range(4):
        a(f"v_exp_f32 v{LFR[r]}, v{LFR[r]}")
    kstamp(a, 3)
    lds_wait(a, FL_G + 3, 17, "u8", addr=14)
    kstamp(a, 4)
    tr = LdsTrack(a); ids = []
    for s in range(8):
        ids.append(tr.issue(f"ds_read_b128 v[{72+4*s}:{75+4*s}], v{VTE} offset:{KG_T[3]+64*s}"))
    for s in range(8):
        tr.wait(ids[s])
        c = "0" if s < 2 else f"v[{20+4*(s&1)}:{23+4*(s&1)}]"
        a(f"v_mfma_f32_16x16x32_f16 v[{20+4*(s&1)}:{23+4*(s&1)}], v[{40+4*s}:{43+4*s}], v[{72+4*s}:{75+4*s}], {c}")
    for r in range(4): a(f"v_add_f32 v{20+r}, v{20+r}, v{24+r}")
    for r in range(4): a(f"v_mul_f32 v{20+r}, v{20+r}, v{LFR[r]}")
    kstamp(a, 5)
    if KOFF: a(f"s_cmp_eq_u32 s{S_G}, 2", "s_cbranch_scc1 KC_SEND")
    for r in range(4):
        a(f"v_cvt_f16_f32 v{20+r}, v{20+r}")
        a(f"ds_write_b16 v{IXR[r]}, v{20+r}")
    a(f"{ex}:")
    a(f"ds_write_b8 v15, v{VONE} offset:{FL_G+4}")
    a("v_mov_b32 v28, 0", "v_mov_b32 v29, 0", "v_mov_b32 v30, 0", "v_mov_b32 v31, 0", f"v_mov_b32 v32, s{S_GB}")
    a("s_waitcnt vmcnt(0)")
    kstamp(a, 6)
    lds_wait(a, FL_G + 4, 20, "b4", addr=14)
    stamp(a, 4); kstamp(a, 7)
    for e in range(3): a(f"ds_read_u16 v{20+e}, v{I1+e}")
    for e in range(4): a(f"ds_read_u16 v{23+e}, v{I2+e}")
    a("s_mov_b64 exec, 1")
    a(f"ds_write_b128 v32, v[28:31] offset:{R_WS5}", f"ds_write_b128 v32, v[28:31] offset:{R_WS9}", f"ds_write_b128 v32, v[28:31] offset:{R_WS3 + 192*16}")
    a("s_mov_b64 exec, -1")
    a("s_waitcnt lgkmcnt(7)")
    a("v_lshl_or_b32 v28, v21, 16, v20", "v_lshl_or_b32 v29, v22, 16, v21")
    a(f"ds_write_b32 v{D1}, v28 offset:{T_DRE}", f"ds_write_b32 v{D1}, v29 offset:{T_DRO}")
    a("s_waitcnt lgkmcnt(5)")
    a("v_lshl_or_b32 v30, v24, 16, v23", "v_lshl_or_b32 v31, v26, 16, v25")
    a(f"ds_write_b32 v{D2}, v30", f"ds_write_b32 v{D3}, v31")
    a(f"ds_write_b8 v15, v{VONE} offset:{FL_G+8}")
    kstamp(a, 8)
    lds_wait(a, FL_G + 8, 20, "b4", addr=14)
    stamp(a, 5)
    PR, FT0, FT1, ACCL, ACCH, ZQ = 16, 18, 19, 20, 24, 28
    VZA, VUA = VDA, VDA2
    LA = ENV("CLA", 6); RSV = ENV("CRSV", 5); NF = ENV("CNF", 2)
    jl = [newlabel("CV") for _ in range(4)]; zend = newlabel("CVE")
    slow = []
    a(f"ds_read_b64 v[{PR}:{PR+1}], v14 offset:{C_PAR}")
    for r in range(1, 4): a(f"s_cmp_eq_u32 s{S_ROLE}, {r}", f"s_cbranch_scc1 {jl[r]}")
    for m in range(4):
        if m: a(f"{jl[m]}:")
        lo, hi = 2 * m, 2 * m + 1
        acc = {lo: ACCL, hi: ACCH}
        ops = []
        if m >= 2:
            for j in (lo, hi): ops.append((j, ("D", 32), ("U", 8 * j - 32)))
        for p in range(max(8 * lo - 16, -7), 8 * hi + 1):
            for j in (lo, hi):
                ks = 8 * j - p
                if 0 <= ks <= 16: ops.append((j, ("D", ks), ("U", p)))
        ncomb0 = len(ops)
        for j in (lo, hi):
            for kind in (3, 5):
                for b in range(6):
                    if 2 <= j - b <= 4: ops.append((j, ("W", kind, b), ("G", kind, j - b)))
            for kind in (7, 9):
                for b in range(2):
                    if j - 2 * b - 4 >= 0: ops.append((j, ("W", kind, b), ("G", kind, j - 2 * b - 4)))
        nops = len(ops)
        first, last = {}, {}
        for k, (j, A, B) in enumerate(ops):
            for key in (A, B):
                first.setdefault(key, k); last[key] = k
        lastlo = max(k for k, o in enumerate(ops) if o[0] == lo)
        pool = list(range(32, 128, 4))
        reg, lid = {}, {}
        def load(tr, key):
            rg = pool.pop(0); reg[key] = rg
            if (XP & 8 and key[0] == "G") or (XP & 16 and key[0] == "W") or (XP & 32 and key[0] == "U"):
                lid[key] = -100; return
            if key[0] == "D":
                ksv = -2 if key[1] == 32 else key[1]
                o = (16 - ksv) * 16
                ad, o = (VDA, o) if o + 3 <= 255 else (VDA2, o - 160)
                tr.issue(f"ds_read2_b32 v[{rg}:{rg+1}], v{ad} offset0:{o} offset1:{o+1}")
                lid[key] = tr.issue(f"ds_read2_b32 v[{rg+2}:{rg+3}], v{ad} offset0:{o+2} offset1:{o+3}")
            elif key[0] == "G":
                _, kind, ix = key
                if kind in (3, 5): o = (4 - ix) * 16 + (64 if kind == 5 else 0); ad = VG8
                else: o = (3 - ix) * 8 + (96 if kind == 9 else 0); ad = VG16
                tr.issue(f"ds_read2_b32 v[{rg}:{rg+1}], v{ad} offset0:{o} offset1:{o+1}")
                lid[key] = tr.issue(f"ds_read2_b32 v[{rg+2}:{rg+3}], v{ad} offset0:{o+2} offset1:{o+3}")
            elif key[0] == "U":
                lid[key] = tr.issue(f"ds_read_b128 v[{rg}:{rg+3}], v{VB_} offset:{64*(key[1]+7)}")
            else:
                _, kind, b = key
                if kind in (3, 5): o = (R_WS3 if kind == 3 else R_WS5) + 512 * b; ad, st = VT8, 64
                else: o = (R_WS7 if kind == 7 else R_WS9) + 1024 * b; ad, st = VT16, 128
                tr.issue(f"ds_read_b64_tr_b16 v[{rg}:{rg+1}], v{ad} offset:{o}")
                lid[key] = tr.issue(f"ds_read_b64_tr_b16 v[{rg+2}:{rg+3}], v{ad} offset:{o+st}")
        keys = sorted(first, key=lambda k_: first[k_])
        tr = LdsTrack(a)
        for key in keys:
            if key[0] == "D": load(tr, key)
        for key in keys:
            if key[0] == "G" and len(pool) > RSV: load(tr, key)
        pend = [k_ for k_ in keys if k_ not in reg]
        a(f"v_lshlrev_b32 v{FT0}, 3, v3", f"v_sub_u32 v{FT0}, v{VB_}, v{FT0}")
        a(f"v_lshrrev_b32 v{FT1}, 2, v2", f"v_lshl_add_u32 v{FT1}, v{FT1}, 2, v3", f"v_and_b32 v{ZQ}, 3, v2", f"v_lshlrev_b32 v{ZQ}, 4, v{ZQ}")
        if SWZ: a(f"v_mul_u32_u24 v{FT1}, s{CSH}, v{FT1}", f"v_xor_b32 v{FT1}, s{CFL}, v{FT1}")
        else: a(f"v_lshlrev_b32 v{FT1}, s{CSH}, v{FT1}")
        a("s_waitcnt lgkmcnt(0)")
        a(f"v_mov_b32 v{VUA}, v{FT0}", f"v_add_u32 v{VZA}, v{FT1}, v{ZQ}")
        a(f"v_xor_b32 v{VLN}, s{CXR}, v{VLN}")
        lds_wait(a, FL_UF, FT0, "b4")
        a(f"s_setprio {eval(os.environ.get('CPRIO', '[1,1,1,1]'))[m]}")
        stamp(a, 6); cstamp(a, 1)
        if XP & 4: a(f"v_mov_b32 v{FT0}, 0", f"s_cmp_lg_u32 s{S_G}, 0", f"s_cbranch_scc1 {zend}")
        for key in lid: lid[key] = -100
        tr = LdsTrack(a)
        ud = {}
        fill = []
        fill.append(("lds", f"ds_read_b64 v[{ZQ}:{ZQ+1}], v{VUA} offset:{480 + 512*lo}", 2))
        fill.append(("ldsU", f"ds_read_b64 v[{ZQ+2}:{ZQ+3}], v{VUA} offset:{480 + 512*hi}", 2))
        for ti, j in enumerate((lo, hi)):
            fill.append(("alloc", j, 5))
            if ti == 0: fill.append(("waitU", None, 5))
            for e in range(4):
                sel = "op_sel:[1,0,0] " if e & 1 else ""
                fill.append(("f", (lambda j=j, e=e, ti=ti, sel=sel: f"v_fma_mix_f32 v{ud[j]+e}, v{ZQ+2*ti+e//2}, v{PR+1}, 0 {sel}op_sel_hi:[1,0,0]"), 5))
            for e in range(4):
                fill.append(("f", (lambda j=j, e=e: f"v_cvt_pk_bf16_f32 v{ud[j]+e}, 0, v{ud[j]+e}"), 5))
        def epi(j, ti):
            y = acc[j]; z = ZQ + 2 * ti; out = []
            for p in range(4): out.append(lambda p=p: f"v_mul_f32 v{y+p}, v{y+p}, v{PR}")
            for p in range(4): out.append(lambda p=p: f"v_cvt_pk_bf16_f32 v{y+p}, 0, v{y+p}")
            for p in range(4): out.append(lambda p=p: f"v_add_f32 v{y+p}, v{y+p}, v{ud[j]+p}")
            for p in range(2): out.append(lambda p=p: f"v_cvt_pk_bf16_f32 v{z+p}, v{y+2*p}, v{y+2*p+1}")
            for p in range(2): out.append(lambda p=p: f"v_min_u32 v{z+p}, -2, v{z+p}")
            return out
        for f in epi(lo, 0): fill.append(("f", f, lastlo + 2))
        fill.append(("lds", f"ds_read_u8 v{FT0}, v{VZ} offset:{FL_S6 + m}", nops - 4))
        fill.append(("lds", f"ds_read_b128 v[{ACCL}:{ACCL+3}], v{VLN} offset:{G_BASE + R_RED + 1024*m}", nops - 4))
        uid = [None]
        def do_fill(n, k):
            while n > 0 and fill:
                kind, t, e = fill[0]
                if e > k: return
                if kind == "alloc":
                    if len(pool) < 2: return
                    ud[t] = pool.pop(); fill.pop(0); continue
                fill.pop(0)
                if kind == "f":
                    if XP & 2 and "v_min" not in t(): continue
                    a(t())
                elif kind == "lds": tr.issue(t)
                elif kind == "ldsU": uid[0] = tr.issue(t)
                elif kind == "waitU": tr.wait(uid[0]); continue
                n -= 1
        kW = ncomb0 - LA if nops > ncomb0 else None
        wok = [False]
        def issue_loads(k, nmax):
            while pend and pool and nmax > 0:
                key = pend[0]
                if first[key] - k > (LA if key[0] != "G" else LA + 4): return
                if key[0] == "W" and not wok[0]:
                    alt = [x for x in pend if x[0] != "W" and first[x] - k <= LA + 2]
                    if not alt: return
                    key = alt[0]
                pend.remove(key); load(tr, key); nmax -= 1
        issue_loads(0, RSV)
        started = set()
        for k, (j, A, B) in enumerate(ops):
            assert A in reg and B in reg, (m, k, A, B)
            tr.wait(max(lid[A], lid[B]))
            c = f"v[{acc[j]}:{acc[j]+3}]" if j in started else "0"
            started.add(j)
            a(f"v_mfma_f32_16x16x32_f16 v[{acc[j]}:{acc[j]+3}], v[{reg[A]}:{reg[A]+3}], v[{reg[B]}:{reg[B]+3}], {c}")
            for key in (A, B):
                if last[key] == k: pool.append(reg[key])
            if kW is not None and k == kW - 3:
                wfid = tr.issue(f"ds_read_b32 v{FT0}, v14 offset:{FL_G + 12}")
            if k == kW:
                tr.wait(wfid)
                sl = newlabel("WS"); bk = newlabel("WB")
                a(f"v_cmp_ne_u32 vcc, s{S_ONES}, v{FT0}", f"s_cbranch_vccnz {sl}")
                a(f"{bk}:")
                slow.append((sl, bk))
                wok[0] = True
                cstamp(a, 3)
            issue_loads(k + 1, 2)
            do_fill(NF, k)
            if k == ncomb0 // 2: cstamp(a, 2)
            if k == ncomb0 - 1: cstamp(a, 4)
        cstamp(a, 5)
        do_fill(1000, 1000)
        assert not fill and not pend
        stamp(a, 7)
        for f in epi(hi, 1): a(f())
        if m < 3: a(f"s_branch {zend}")
    a(f"{zend}:")
    cstamp(a, 6)
    gA = newlabel("ZA"); gC = newlabel("ZC"); zs = newlabel("ZS"); zb = newlabel("ZB"); zc = newlabel("ZCB"); zd = newlabel("ZD")
    a("s_waitcnt lgkmcnt(0)")
    a(f"s_cmp_lg_u32 s{S_G}, 1", f"s_cbranch_scc1 {gA}")
    a(f"v_cmp_ne_u32 vcc, 1, v{FT0}", f"s_cbranch_vccnz {zs}")
    a(f"{zb}:")
    a(f"s_mov_b64 exec, s[{CM}:{CM+1}]")
    for k in range(4): a(f"v_swap_b32 v{ZQ+k}, v{ACCL+k}")
    a("s_mov_b64 exec, -1")
    cstamp(a, 8)
    a(f"buffer_store_dwordx4 v[{ZQ}:{ZQ+3}], v{VZA}, s[{R0}:{R0+3}], s{CZ1} offen sc1")
    a(f"buffer_store_dwordx4 v[{ACCL}:{ACCL+3}], v{VZA}, s[{R0}:{R0+3}], s{CZ0} offen sc1")
    if ENV("ZG2", 0) >= 2: a(f"ds_write_b8 v15, v{VONE} offset:{FL_ZISS - 16}")
    a(f"s_branch {zd}")
    for (sl, bk) in slow:
        a(f"{sl}:")
        lds_wait(a, FL_G + 12, FT0, "b4", addr=14)
        a(f"s_branch {bk}")
    a(f"{zs}:")
    a(f"v_mov_b32 v{FT1}, s{S_ROLE}")
    l = newlabel("ZW")
    a(f"{l}:")
    a(f"ds_read_u8 v{FT0}, v{FT1} offset:{FL_S6}")
    guard(a)
    a("s_waitcnt lgkmcnt(0)")
    a(f"v_cmp_ne_u32 vcc, 1, v{FT0}", f"s_cbranch_vccnz {l}")
    a(f"v_lshl_add_u32 v{FT1}, v{FT1}, 10, v{VLN}")
    a(f"ds_read_b128 v[{ACCL}:{ACCL+3}], v{FT1} offset:{G_BASE + R_RED}")
    a("s_waitcnt lgkmcnt(0)")
    a(f"s_branch {zb}")
    a(f"{gA}:")
    a(f"s_cmp_lg_u32 s{S_G}, 0", f"s_cbranch_scc1 {gC}")
    a(f"v_mov_b32 v{FT1}, s{S_ROLE}", f"v_lshl_add_u32 v{FT0}, v{FT1}, 10, v{VLN}")
    a(f"ds_write_b128 v{FT0}, v[{ZQ}:{ZQ+3}] offset:{G_BASE + R_RED}")
    a(f"ds_write_b8 v{FT1}, v{VONE} offset:{FL_S6}")
    cstamp(a, 8)
    a(f"s_branch {zd}")
    a(f"{gC}:")
    cstamp(a, 8)
    a(f"buffer_store_dwordx4 v[{ZQ}:{ZQ+3}], v{VZA}, s[{R0}:{R0+3}], s{CZ0} offen sc1")
    a(f"{zd}:")
    stamp(a, 8)
    if DBG:
        a(f"s_mul_i32 s{T0_}, s{S_ROLE}, 1280", f"s_add_u32 s{T1_}, s{T0_}, s{S_GB}", f"v_lshl_add_u32 v20, v1, 2, s{T1_}")
        a(f"s_mul_i32 s{T1_}, s{S_CH}, 5376", f"s_add_u32 s{T1_}, s{T1_}, s{T0_}", f"s_add_u32 s{T1_}, s{T1_}, {hex(WS_DBG)}", f"v_lshl_add_u32 v21, v1, 2, s{T1_}")
        for k in range(5 + 1):
            a(f"ds_read_b32 v22, v20 offset:{R2 + 256*k}", "s_waitcnt lgkmcnt(0)", f"global_store_dword v21, v22, s[{P_WS}:{P_WS+1}] offset:{256*k}")
        a(f"ds_read_b32 v22, v14 offset:{C_PAR}", f"s_lshl_b32 s{T1_}, s{S_CH}, 2", f"s_add_u32 s{T1_}, s{T1_}, {hex(WS_DBG + 0x300000)}", f"v_mov_b32 v21, s{T1_}")
        a("s_waitcnt lgkmcnt(0)", f"global_store_dword v21, v22, s[{P_WS}:{P_WS+1}]")
    a(f"s_lshl_b32 s{T0_}, s{S_G}, 2", f"s_add_u32 s{T0_}, s{T0_}, s{S_ROLE}", f"v_mov_b32 v8, s{T0_}")
    a("s_waitcnt vmcnt(0)")
    a(f"ds_write_b8 v8, v{VONE} offset:{FL_ZDONE}")


def gen_wjobs(a):
    WA, WD = 10, 11
    end = newlabel("WJE"); w1 = newlabel("WJ1"); w2 = newlabel("WJ2")
    a(f"s_cmp_eq_u32 s{S_WAVE}, 2", f"s_cbranch_scc1 {w2}")
    if XP & 1: a(f"s_branch {w2}")
    a(f"s_add_u32 s{T0_}, s{S_WAVE}, 1", f"s_lshr_b32 s{T0_}, s{T0_}, 2", f"s_cmp_eq_u32 s{S_WAVE}, 1", f"s_cselect_b32 s{T0_}, 2, s{T0_}", f"s_lshl_b32 s{T0_}, s{T0_}, 10")
    a(f"v_lshl_add_u32 v{WA}, v1, 4, s{T0_}", f"v_add_u32 v{WD}, {G_BASE}, v{WA}")
    lds_wait(a, FL_UF, 12, "b4")
    a(f"s_setprio {ENV('WPRIO', 3)}")
    for g in range(3):
        E = 20 + 12 * g; o = C_U + U_SIZE * g + 2 * (240 - 16)
        a(f"ds_read_b128 v[{E}:{E+3}], v{WA} offset:{o}", f"ds_read_b128 v[{E+4}:{E+7}], v{WA} offset:{o+16}", f"ds_read_b64 v[{E+8}:{E+9}], v{WA} offset:{o+32}")
    a(f"s_cmp_eq_u32 s{S_WAVE}, 1", f"s_cbranch_scc1 {w1}")
    for full in (1, 0):
        if not full: a(f"{w1}:")
        for g in range(3):
            if g == 2: a(f"s_cmp_lt_u32 s{S_I}, 24", f"s_cbranch_scc1 {end}")
            E = lambda i: 20 + 12 * g + i
            O = lambda i: 56 + i
            T = lambda i: 65 + i
            Q = lambda i: 72 + i
            X = lambda i: 79 + i
            Y = lambda i: 85 + i
            W7, W9 = 92, 96
            a(f"ds_read_b32 v12, v{VZ} offset:{FL_G + 16*g + 4}")
            if g == 0: a("s_waitcnt lgkmcnt(7)")
            n = 8 if full else 7
            for i in range(1, n + 1): a(f"v_alignbit_b32 v{O(i)}, v{E(i+1)}, v{E(i)}, 16")
            for i in range(1, n + 1): a(f"v_pk_add_f16 v{T(i)}, v{O(i)}, v{E(i+1)}")
            for i in range(1, 5): a(f"v_pk_add_f16 v{X(i)}, v{T(i)}, v{O(i+1)}")
            for i in (range(2, 8) if full else range(3, 7)): a(f"v_pk_add_f16 v{Q(i)}, v{T(i)}, v{T(i+1)}")
            ok = newlabel("WJK")
            a("s_waitcnt lgkmcnt(0)")
            a(f"v_cmp_eq_u32 vcc, s{S_ONES}, v12", f"s_cbranch_vccnz {ok}")
            lds_wait(a, FL_G + 16 * g + 4, 12, "b4", sleep=1)
            a(f"{ok}:")
            off = G_SIZE * (g & 1)
            if g == 2: a(f"v_add_u32 v{WD}, {2*G_SIZE}, v{WD}")
            a(f"ds_write_b128 v{WD}, v[{X(1)}:{X(4)}] offset:{off + R_WS3}")
            for i in (range(2, 7) if full else range(3, 7)): a(f"v_pk_add_f16 v{Y(i)}, v{E(i)}, v{Q(i)}")
            a(f"ds_write_b128 v{WD}, v[{Y(3)}:{Y(6)}] offset:{off + R_WS5 + 16}")
            if full:
                for i in range(5, 8): a(f"v_pk_add_f16 v{X(i)}, v{T(i)}, v{O(i+1)}")
                for k in range(4): a(f"v_pk_add_f16 v{W7+k}, v{Q(2+k)}, v{X(4+k)}")
                a(f"ds_write_b128 v{WD}, v[{W7}:{W7+3}] offset:{off + R_WS7}")
                for k in range(4): a(f"v_pk_add_f16 v{W9+k}, v{Y(2+k)}, v{Q(4+k)}")
                a(f"ds_write_b128 v{WD}, v[{W9}:{W9+3}] offset:{off + R_WS9 + 16}")
            a(f"ds_write_b8 v116, v{VONE} offset:{FL_G + 16*g + 12}")
        a(f"s_branch {end}")
    a(f"{w2}:")
    for g in range(3): a(f"ds_write_b8 v116, v{VONE} offset:{FL_G + 16*g + 12}")
    if PB and 1 <= PCT <= 3:
        a(f"s_cmp_ge_u32 s{S_FI}, 18", "s_cbranch_scc1 KS_PCL")
        srd(a, R2_, P_WS, PART_BYTES, WS_PART)
        a(f"s_mul_i32 s{T2_}, s{S_BLK}, {PROW}", "v_lshlrev_b32 v100, 4, v1")
        for d in range(4): a(f"v_mov_b32 v{104+d}, -1")
        if PCT == 2: lds_wait(a, FL_UF, 12, "b4", sleep=1)
        if PCT == 3: lds_wait(a, FL_G + 16 + 12, 12, "b4", sleep=1)
        if ENV("PCD", 0): a(f"s_sleep {ENV('PCD', 0)}")
        for k in range(9):
            if k in (4, 8): a(f"s_add_u32 s{T2_}, s{T2_}, 4096")
            a(f"buffer_store_dwordx4 v[104:107], v100, s[{R2_}:{R2_+3}], s{T2_} offen offset:{1024*(k&3)} sc1")
        a(f"s_branch {end}")
        a("KS_PCL:")
    if PF2 > PF1 or PFD:
        W2 = ENV("PF2W", 14)
        a(f"s_sub_u32 s{T2_}, s{S_FI}, {ENV('PF2B', 18)}", f"s_and_b32 s{T2_}, s{T2_}, 31", f"s_cmp_ge_u32 s{T2_}, {W2}", f"s_cbranch_scc1 {end}")
        pf_lane(a, 100, 101)
        lds_wait(a, FL_UF, 12, "b4", sleep=1)
        if PF2 > PF1:
            pf_gu(a, 100, T2_, W2, PF1, PF2, 102, "KS_PF2D")
            a("KS_PF2D:")
        if PFD:
            a(f"s_sub_u32 s{T2_}, {W2-1}, s{T2_}")
            pf_down(a, T2_, W2, 0, PFD, 100, 120, end)
    a(f"{end}:")

def gen(a):
    label = NAME + "_kernel"
    a(f".globl {label}", ".p2align 8", f".type {label},@function", f"{label}:")
    a("s_cmp_ge_u32 s2, 256", "s_cbranch_scc1 KS_END")
    stamp_begin(a)
    a("s_load_dwordx16 s[4:19], s[0:1], 0", "s_load_dwordx16 s[20:35], s[0:1], 64", f"s_load_dwordx2 s[{P_WS}:{P_WS+1}], s[0:1], 128")
    a(f"v_readfirstlane_b32 s{S_WAVE}, v0", f"s_lshr_b32 s{S_WAVE}, s{S_WAVE}, 6")
    a(f"s_and_b32 s{S_XC}, s2, 7", f"s_lshr_b32 s{S_I}, s2, 3")
    if ENV("CPF", 1):
        a(f"s_cmp_lg_u32 s{S_WAVE}, {ENV('CPFW', 0)}", "s_cbranch_scc1 KS_CPE")
        cm = ENV("CPFM", 0)
        if cm == 1: a(f"s_sub_u32 s{T0_}, s{S_I}, 8", f"s_cmp_lt_u32 s{T0_}, 16", "s_cbranch_scc1 KS_CPE")
        if cm == 2: a(f"s_cmp_lt_u32 s{S_I}, 24", "s_cbranch_scc1 KS_CPE")
        if cm == 3: a(f"s_cmp_ge_u32 s{S_I}, 8", "s_cbranch_scc1 KS_CPE")
        if cm == 4: a(f"s_cmp_ge_u32 s{S_I}, 4", "s_cbranch_scc1 KS_CPE")
        if cm == 5: a(f"s_cmp_lt_u32 s{S_I}, 28", "s_cbranch_scc1 KS_CPE")
        a("s_getpc_b64 s[42:43]")
        a("KS_PC:")
        a(f"s_and_b32 s{T0_}, s{S_I}, 7", f"s_mul_i32 s{T0_}, s{T0_}, 4608", "v_and_b32 v126, 63, v0", f"v_lshl_add_u32 v126, v126, 7, s{T0_}", "v_min_u32 v126, KS_END-KS_PC, v126")
        a(f"global_load_dword v127, v126, s[42:43] {MOD('CPFMOD', '')}")
        a("KS_CPE:")
    if ENV("REMAP", 1):
        a(f"s_add_u32 s{T0_}, s{S_WAVE}, 8", f"s_sub_u32 s{T1_}, s{S_WAVE}, 4", f"s_cmp_lt_u32 s{S_WAVE}, 8", f"s_cselect_b32 s{T0_}, s{T0_}, s{T1_}")
        a(f"s_cmp_lt_u32 s{S_WAVE}, 4", f"s_cselect_b32 s{S_WAVE}, s{S_WAVE}, s{T0_}")
    a("v_and_b32 v1, 63, v0", "v_and_b32 v2, 15, v1", "v_lshrrev_b32 v3, 4, v1", f"v_mov_b32 v{VZ}, 0", f"v_mov_b32 v{VONE}, 1")
    a(f"s_mov_b32 s{S_GUARD}, {GUARD}", f"s_mov_b32 s{S_ONES}, 0x01010101")
    a(f"s_lshl_b32 s{S_B2}, s{S_XC}, 5", f"s_add_u32 s{S_B2}, s{S_B2}, s{S_I}")
    if RM: a(f"s_add_u32 s{T0_}, s{S_I}, 16", f"s_sub_u32 s{S_FI}, s{S_I}, 8", f"s_cselect_b32 s{S_FI}, s{T0_}, s{S_FI}", f"s_cmp_ge_u32 s{S_I}, 24", f"s_cselect_b32 s{S_FI}, s{S_I}, s{S_FI}")
    a(f"s_mul_i32 s{S_BLK}, s{S_XC}, 18", f"s_add_u32 s{S_BLK}, s{S_BLK}, s{S_FI}")
    a(f"s_cmp_lt_u32 s{S_WAVE}, 4", "s_cbranch_scc1 KS_L")
    a(f"s_cmp_ge_u32 s{S_WAVE}, 12", "s_cbranch_scc1 KS_X")
    a("s_setprio 2")
    a(f"s_lshr_b32 s{S_G}, s{S_WAVE}, 2", f"s_sub_u32 s{S_G}, s{S_G}, 1")
    a(f"s_mul_i32 s{S_ROLE}, s{S_G}, 3", f"s_xor_b32 s{S_ROLE}, s{S_ROLE}, s{S_WAVE}", f"s_and_b32 s{S_ROLE}, s{S_ROLE}, 3")
    a(f"s_lshl_b32 s{S_CH}, s{S_B2}, 1", f"s_add_u32 s{S_CH}, s{S_CH}, s{S_G}")
    a(f"s_lshl_b32 s{T0_}, s{S_ROLE}, 11", f"s_add_u32 s{T0_}, s{T0_}, {C_STG}", f"v_lshl_add_u32 v28, v1, 3, s{T0_}")
    pre_ixlf(a)
    a("KS_GRP:")
    gen_group(a)
    if KD: a("s_branch KS_K1")
    a(f"s_cmp_lg_u32 s{S_WAVE}, 4", "s_cbranch_scc1 KS_K1")
    a("s_setprio 0")
    srd(a, R3, P_WS, 12288, WS_KEYS)
    a("v_and_b32 v6, 1, v1", "v_lshlrev_b32 v6, 4, v6", f"s_lshl_b32 s{T0_}, s{S_B2}, 5")
    lds_wait(a, FL_ZF, 8, "b4", sleep=1)
    a("s_mov_b64 exec, 3")
    a(f"s_setprio {ENV('KSPRIO', 1)}")
    a("KS_K0:")
    a(f"ds_read_b128 v[8:11], v6 offset:{C_KEY}")
    guard(a)
    a("s_waitcnt lgkmcnt(0)")
    a("v_min3_u32 v12, v8, v9, v10", "v_min_u32 v12, v12, v11", "v_cmp_eq_u32 vcc, 0, v12", "s_cbranch_vccnz KS_K0")
    a(f"buffer_store_dwordx4 v[8:11], v6, s[{R3}:{R3+3}], s{T0_} offen sc1")
    a("s_mov_b64 exec, -1")
    stamp2(a, 4)
    a("s_waitcnt vmcnt(0)")
    a(f"ds_write_b32 v{VZ}, v{VONE} offset:{FL_KACK}")
    a("KS_K1:")
    a(f"s_cmp_lt_u32 s{S_FI}, 18", "s_cbranch_scc1 KS_T")
    a("s_waitcnt lgkmcnt(0)")
    endwave(a)
    a("KS_X:")
    a(f"s_cmp_lt_u32 s{S_I}, 24", "s_cbranch_scc1 KS_X2")
    a(f"s_setprio {ENV('KCPRIO', 2)}")
    a("KS_XC:")
    a(f"s_mov_b32 s{S_G}, 2", f"s_add_u32 s{S_ROLE}, s{S_WAVE}, 3", f"s_and_b32 s{S_ROLE}, s{S_ROLE}, 3")
    a(f"s_lshl_b32 s{S_CH}, s{S_XC}, 3", f"s_and_b32 s{T0_}, s{S_I}, 7", f"s_add_u32 s{S_CH}, s{S_CH}, s{T0_}", f"s_add_u32 s{S_CH}, s{S_CH}, 512")
    a(f"s_lshl_b32 s{T0_}, s{S_ROLE}, 11", f"s_add_u32 s{T0_}, s{T0_}, {C_STG}", f"v_lshl_add_u32 v28, v1, 3, s{T0_}")
    a("s_branch KS_GRP")
    a("KS_X2:")
    a(f"s_cmp_lt_u32 s{S_I}, 8", "s_cbranch_scc1 KS_X3")
    a(f"s_sub_u32 s{T5_}, s{S_WAVE}, 8")
    a("s_branch KS_LN1")
    a("KS_X3:")
    a(f"s_lshl_b32 s{T0_}, s2, 4", f"s_add_u32 s{T0_}, s{T0_}, s{S_WAVE}", f"s_cmp_lg_u32 s{T0_}, {16*ENV('NPUB', 2) + 12}", "s_cbranch_scc1 KS_X3B")
    a("s_setprio 3")
    a(f"s_memrealtime s[{T0_}:{T1_}]")
    a("v_and_b32 v6, 3, v1", "v_lshlrev_b32 v7, 2, v6", "v_min_u32 v6, 2, v6", "v_lshlrev_b32 v6, 2, v6", "v_cmp_eq_u32 vcc, 3, v1")
    a("s_waitcnt lgkmcnt(0)")
    a(f"v_mov_b32 v8, s{T0_}", f"v_mov_b32 v9, s{T1_}", "v_alignbit_b32 v8, v8, v8, v6", f"v_cndmask_b32 v9, v{VZ}, v9, vcc", "v_xor_b32 v8, v8, v9")
    a("v_and_b32 v9, 0xf0000fff, v8", "v_and_b32 v10, 0xfff000, v8", "v_lshl_or_b32 v9, v10, 4, v9", "v_lshrrev_b32 v10, 12, v8", "v_and_b32 v10, 0xf000, v10")
    a("v_or3_b32 v9, v9, v10, v9", "v_or_b32 v9, 0x80000000, v9")
    a("s_mov_b64 exec, 15")
    a(f"global_store_dword v7, v9, s[{P_DBG}:{P_DBG+1}] sc1")
    if SPIN: a(f"v_mov_b32 v8, s{T0_}", f"global_store_dword v7, v8, s[{P_DBG}:{P_DBG+1}] offset:64 sc1")
    a("s_mov_b64 exec, -1")
    a("s_setprio 0")
    a("KS_X3B:")
    if KOFF:
        a(f"s_setprio {ENV('KPPRIO', 3)}")
        a("s_branch KS_XC")
    a("s_waitcnt lgkmcnt(0)")
    a("s_barrier")
    a("s_branch KS_G")
    a("KS_X4:")
    a(f"s_cmp_lt_u32 s{S_FI}, 18", "s_cbranch_scc1 KS_G")
    a("s_waitcnt vmcnt(0) lgkmcnt(0)")
    endwave(a)
    a("KS_L:")
    a("v_lshlrev_b32 v6, 2, v0", f"ds_write_b32 v6, v{VZ}")
    a("v_mov_b32 v8, 0", "v_mov_b32 v9, 0", f"s_min_u32 s{T0_}, s{S_WAVE}, 2", f"s_mul_i32 s{T0_}, s{T0_}, {U_SIZE}", "v_min_u32 v6, 59, v1", f"v_lshl_add_u32 v6, v6, 3, s{T0_}")
    a(f"ds_write_b64 v6, v[8:9] offset:{C_U}")
    a(f"s_mov_b32 s{T5_}, s{S_WAVE}")
    a(f"s_sub_u32 s{T0_}, s{S_I}, 8", f"s_cmp_lt_u32 s{T0_}, 16", "s_cbranch_scc0 KS_L0")
    a("KS_LN1:")
    a("s_setprio 3")
    gen_ln1(a)
    if (NLL or NL2) and not RM:
        if not NL: pf_lane(a, 46, 47)
        a(f"s_cmp_ge_u32 s{S_FI}, 18", "s_cbranch_scc1 KS_LL2")
        if NLL:
            a(f"s_mul_i32 s{T2_}, s{S_WAVE}, 10", f"s_add_u32 s{T2_}, s{T2_}, s{S_I}", f"s_sub_u32 s{T2_}, s{T2_}, 8")
            pf_gu(a, 46, T2_, 40, PFA, PFA + 10 * NLL, 47, "KS_LLE")
        a("s_branch KS_LLE")
        a("KS_LL2:")
        if NL2:
            a(f"s_mul_i32 s{T2_}, s{S_WAVE}, 6", f"s_add_u32 s{T2_}, s{T2_}, s{S_I}", f"s_sub_u32 s{T2_}, s{T2_}, 18")
            pf_gu(a, 46, T2_, 24, PFA + 10 * NLL, PF0, 47, "KS_LLE")
        a("KS_LLE:")
    a(f"s_mov_b32 s{S_G}, 1")
    a("s_branch KS_L2B")
    a("KS_L0:")
    a(f"s_and_b32 s{T0_}, s{S_I}, 15", f"s_lshl_b32 s{T1_}, s{S_XC}, 4", f"s_add_u32 s{T0_}, s{T0_}, s{T1_}")
    a("v_and_b32 v59, 3, v1", "v_lshlrev_b32 v59, 2, v59")
    a(f"s_lshl_b32 s{T4_}, s{T0_}, 6", f"s_add_u32 s{T1_}, s{T4_}, {hex(WS_FLAG1)}", f"v_add_u32 v7, s{T1_}, v59")
    a(f"s_mul_i32 s{T1_}, s{T0_}, {CLR_WG}", f"s_add_u32 s{T1_}, s{T1_}, {hex(WS_CLR)}")
    a("v_lshlrev_b32 v6, 4, v0")
    a("v_mov_b32 v12, -1", "v_mov_b32 v13, -1", "v_mov_b32 v14, -1", "v_mov_b32 v15, -1")
    a("s_setprio 3")
    pf_lane(a, 16, 17)
    a("s_waitcnt lgkmcnt(0)")
    a(f"s_add_u32 s{R1}, s{P_WS}, s{T1_}", f"s_addc_u32 s{R1+1}, s{P_WS+1}, 0", f"s_mov_b32 s{R1+2}, {CLR_WG}", f"s_mov_b32 s{R1+3}, 0x20000")
    if ENV("UPRE", 0):
        srd(a, R0, P_WS, 0xC00000)
        a(f"s_lshl_b32 s{T2_}, s{S_WAVE}, 3", f"s_xor_b32 s{T2_}, s{T2_}, s{S_B2}", f"s_lshl_b32 s{T2_}, s{T2_}, 13")
        a(f"s_and_b32 s{T3_}, s{S_I}, 3", f"s_lshl_b32 s{T0_}, s{S_XC}, 2", f"s_add_u32 s{T3_}, s{T3_}, s{T0_}", f"s_lshl_b32 s{T3_}, s{T3_}, 13")
        a(f"s_add_u32 s{T0_}, s{T3_}, {256*8192}", f"s_cmp_eq_u32 s{S_WAVE}, 2", f"s_cselect_b32 s{T2_}, s{T0_}, s{T2_}")
        a(f"s_add_u32 s{T0_}, s{T3_}, {hex(WS_KT)}", f"s_cmp_eq_u32 s{S_WAVE}, 3", f"s_cselect_b32 s{T2_}, s{T0_}, s{T2_}")
        a(f"s_lshl_b32 s{T0_}, s{S_I}, 2", f"s_add_u32 s{T0_}, s{T0_}, s{S_WAVE}", f"s_and_b32 s{T0_}, s{T0_}, 0x72", f"s_cmp_gt_u32 s{T0_}, 0x62", f"s_cselect_b32 s{T0_}, 0, s{T0_}")
        a(f"s_bitcmp1_b32 s{T0_}, 1", "s_cbranch_scc1 KS_UPE")
        a("v_lshlrev_b32 v125, 7, v1", f"buffer_load_dword v124, v125, s[{R0}:{R0+3}], s{T2_} offen {MOD('UPMOD')}")
        a("KS_UPE:")
    a("s_barrier")
    if NE:
        a(f"s_and_b32 s{T2_}, s{S_I}, 15", f"s_lshl_b32 s{T3_}, s{S_WAVE}, 4", f"s_add_u32 s{T2_}, s{T2_}, s{T3_}")
        pf_gu(a, 16, T2_, 64, PFB + 16 * NL, PFA, 18, "KS_L1E")
        a("KS_L1E:")
    TW = eval(os.environ.get("TW", "[]"))
    for (w, base, off, nb, sh) in TW:
        l = newlabel("TW")
        a(f"s_cmp_lg_u32 s{S_WAVE}, {w}", f"s_cbranch_scc1 {l}")
        srd(a, R0, {"ws": P_WS, "out": P_OUT}[base], nb, off)
        a(f"v_lshlrev_b32 v125, {sh}, v1", f"buffer_load_dword v124, v125, s[{R0}:{R0+3}], 0 offen")
        a(f"{l}:")
    if ENV("CTRIG", 1): lds_wait(a, FL_PARAM, 8, "nz", sleep=2)
    for k in range((CLR_WG + 4095) // 4096):
        a(f"s_mov_b32 s{T0_}, {4096*k}")
        a(f"buffer_store_dwordx4 v[12:15], v6, s[{R1}:{R1+3}], s{T0_} offen {MOD('CMOD')}")
    stamp(a, 1)
    a(f"global_load_dword v58, v59, s[{P_DBG}:{P_DBG+1}] sc1")
    dbg_wait(a, 0)
    stamp(a, 2)
    a(f"ds_write_b32 v59, v58 offset:{FL_NONCE}")
    a("s_mov_b64 exec, 1")
    a(f"ds_add_rtn_u32 v8, v{VZ}, v{VONE} offset:{FL_LNACK}")
    a("s_mov_b64 exec, -1")
    for d in range(1, 4): a(f"v_lshrrev_b32 v{58-d}, {3*d}, v58")
    a("s_waitcnt lgkmcnt(0)")
    a(f"v_readfirstlane_b32 s{T0_}, v8")
    a(f"s_cmp_lg_u32 s{T0_}, 3", "s_cbranch_scc1 KS_L2")
    a("s_mov_b64 exec, 15")
    a(f"global_store_dword v7, v58, s[{P_WS}:{P_WS+1}] sc1")
    a("s_mov_b64 exec, -1")
    a(f"s_and_b32 s{T2_}, s{S_I}, 7")
    a(f"s_cmp_ge_u32 s{S_I}, 8", "s_cbranch_scc1 KS_L1C")
    if NN:
        a("s_setprio 0")
        lds_wait(a, FL_G + 32 + 4, 8, "b4", sleep=2)
        a("s_setprio 3")
        pf_gu(a, 16, T2_, 8, PF0, PF0 + 8 * NN, 18, "KS_L2")
    a("s_branch KS_L2")
    a("KS_L1C:")
    if NC: pf_gu(a, 16, T2_, 8, PF0 + 8 * NN, PF1, 18, "KS_L2")
    a("KS_L2:")
    a(f"s_mov_b32 s{S_G}, 0")
    a("KS_L2B:")
    srd(a, R0, P_WS, XBYTES, WS_UT)
    if UL:
        a("v_lshrrev_b32 v7, 1, v1", "v_lshlrev_b32 v7, 7, v7", "v_and_b32 v10, 1, v1", "v_lshl_add_u32 v7, v10, 4, v7", "v_lshlrev_b32 v9, 4, v1")
        a("v_lshrrev_b32 v13, 2, v1", "v_lshlrev_b32 v13, 7, v13", "v_and_b32 v12, 3, v1", "v_lshl_add_u32 v13, v12, 4, v13")
        a(f"s_lshl_b32 s{T0_}, s{S_WAVE}, 12", f"s_lshr_b32 s{T1_}, s{S_B2}, 1", f"s_lshl_b32 s{T2_}, s{T1_}, 8", f"s_lshl_b32 s{T1_}, s{T1_}, 14", f"s_add_u32 s{T1_}, s{T1_}, s{T0_}")
        a(f"s_and_b32 s{T3_}, s{S_B2}, 1", f"s_lshl_b32 s{T3_}, s{T3_}, 6", f"s_add_u32 s{T1_}, s{T1_}, s{T3_}")
        a(f"s_and_b32 s{T3_}, s{T2_}, 0x700", f"v_xor_b32 v13, s{T3_}, v13", f"s_and_b32 s{T2_}, s{T2_}, 0x1800", f"s_xor_b32 s{T1_}, s{T1_}, s{T2_}")
        a(f"s_xor_b32 s{T5_}, s{T1_}, 0x800")
        a(f"s_lshl_b32 s{T3_}, s{S_XC}, 3", f"s_add_u32 s{T3_}, s{T3_}, s{S_I}", f"s_add_u32 s{T3_}, s{T3_}, {512 - 24}")
        a(f"s_lshr_b32 s{T4_}, s{T3_}, 2", f"s_lshl_b32 s{T4_}, s{T4_}, 14", f"s_and_b32 s{T3_}, s{T3_}, 3", f"s_lshl_b32 s{T3_}, s{T3_}, 5")
        a(f"s_add_u32 s{T3_}, s{T3_}, s{T4_}", f"s_add_u32 s{T3_}, s{T3_}, s{T0_}")
        a(f"s_lshr_b32 s{T4_}, s{T4_}, 6", f"s_and_b32 s{T2_}, s{T4_}, 0xf00", f"v_xor_b32 v7, s{T2_}, v7", f"s_and_b32 s{T4_}, s{T4_}, 0x1000", f"s_xor_b32 s{T3_}, s{T3_}, s{T4_}")
        a(f"s_lshl_b32 s{T0_}, s{S_WAVE}, 11")
    else:
        a("v_lshrrev_b32 v7, 1, v1", "v_lshlrev_b32 v7, 6, v7", "v_and_b32 v10, 1, v1", "v_lshl_add_u32 v7, v10, 4, v7", "v_lshlrev_b32 v9, 4, v1")
        a(f"s_lshl_b32 s{T0_}, s{S_WAVE}, 11", f"s_lshl_b32 s{T1_}, s{S_B2}, 13", f"s_add_u32 s{T1_}, s{T1_}, s{T0_}")
        if SWU:
            a(f"s_lshl_b32 s{T2_}, s{S_B2}, 7", f"s_and_b32 s{T3_}, s{T2_}, 0x380", f"v_xor_b32 v13, s{T3_}, v9", f"s_and_b32 s{T2_}, s{T2_}, 0x1c00", f"s_xor_b32 s{T1_}, s{T1_}, s{T2_}")
        else: a("v_mov_b32 v13, v9")
        a(f"s_xor_b32 s{T5_}, s{T1_}, 0x400")
        a(f"s_lshl_b32 s{T3_}, s{S_XC}, 3", f"s_add_u32 s{T3_}, s{T3_}, s{S_I}", f"s_add_u32 s{T3_}, s{T3_}, {512 - 24}")
        a(f"s_lshr_b32 s{T4_}, s{T3_}, 1", f"s_lshl_b32 s{T4_}, s{T4_}, 13", f"s_and_b32 s{T3_}, s{T3_}, 1", f"s_lshl_b32 s{T3_}, s{T3_}, 5")
        a(f"s_add_u32 s{T3_}, s{T3_}, s{T4_}", f"s_add_u32 s{T3_}, s{T3_}, s{T0_}")
        if SWU:
            a(f"s_lshr_b32 s{T4_}, s{T4_}, 6", f"s_and_b32 s{T2_}, s{T4_}, 0x780", f"v_xor_b32 v7, s{T2_}, v7", f"s_and_b32 s{T4_}, s{T4_}, 0x1800", f"s_xor_b32 s{T3_}, s{T3_}, s{T4_}")
    a(f"s_cmp_lt_u32 s{S_I}, 24", f"s_cselect_b32 s{T3_}, {XBYTES}, s{T3_}", f"s_cselect_b32 s{T2_}, 0, {hex(TAGM)}")
    a(f"v_mov_b32_dpp v64, v58 quad_perm:[0,1,0,1] {DPPM}", f"v_mov_b32_dpp v65, v58 quad_perm:[2,3,2,3] {DPPM}")
    a(f"s_bitcmp1_b32 s{S_I}, 0", "s_cselect_b64 vcc, -1, 0", "v_cndmask_b32 v64, v64, v65, vcc")
    for d in range(4): a(f"v_and_b32 v{60+d}, {hex(TAGM)}, v{58-d}")
    for d in range(3, 0, -1): a(f"v_lshrrev_b32 v{64+d}, {3*d}, v64")
    for d in range(4): a(f"v_and_b32 v{64+d}, s{T2_}, v{64+d}")
    a(f"s_lshl_b32 s{T4_}, s{S_WAVE}, 10", f"s_add_u32 s{T4_}, s{T4_}, {C_U + 480}")
    a("v_bfe_u32 v11, v1, 1, 1", f"v_mul_u32_u24 v11, {U_SIZE}, v11", "v_lshl_add_u32 v11, v10, 4, v11", "v_lshrrev_b32 v10, 2, v1", "v_lshl_add_u32 v11, v10, 5, v11", f"v_add_u32 v11, s{T4_}, v11")
    a(f"v_add_u32 v10, s{T4_}, v9")
    a(f"v_mov_b32 v116, s{S_WAVE}")
    a(f"s_add_u32 s{T0_}, s{T0_}, {hex(WS_FLAG1)}", "v_lshrrev_b32 v12, 2, v1", "v_lshl_add_u32 v12, v12, 6, v59", f"v_add_u32 v12, s{T0_}, v12")
    UT = eval(os.environ.get("UT", "(20, 4, 24)"))
    a(f"s_cmp_lt_u32 s{S_I}, 8", f"s_cselect_b32 s{T2_}, {UT[0]}, {UT[1]}", f"s_cmp_ge_u32 s{S_I}, 24", f"s_cselect_b32 s{T2_}, {UT[2]}, s{T2_}", f"v_mov_b32 v14, s{T2_}")
    a("s_setprio 0")
    a("s_waitcnt vmcnt(0)")
    a(f"ds_write_b8 v116, v{VONE} offset:{FL_UTOK + 4}")
    stamp(a, 8)
    lds_wait(a, FL_G, 8, "b4", addr=14, sleep=2)
    a("s_setprio 3")
    stamp(a, 5)
    if ENV("UDELAY", 0): a(f"s_sleep {ENV('UDELAY', 0)}")
    lp = newlabel("UP"); l1 = newlabel("UPE")
    UM = os.environ.get("UMOD", "sc1").replace("_", " ")
    MK = [6, 8, 10, 12]
    if ENV("MPOLL", 0):
        for m in MK: a(f"s_mov_b64 s[{m}:{m+1}], -1")
        a(f"s_mov_b32 s{SP0}, {hex(TAGM)}")
    a(f"s_branch {l1}")
    a(f"{lp}:")
    a(f"s_sleep {ENV('USLEEP', 2)}")
    a(f"{l1}:")
    if ENV("MPOLL", 0):
        lds = [f"buffer_load_dwordx4 v[20:23], v13, s[{R0}:{R0+3}], s{T1_} offen {UM}", f"buffer_load_dwordx4 v[24:27], v13, s[{R0}:{R0+3}], s{T5_} offen {UM}",
               f"buffer_load_dwordx4 v[28:31], v7, s[{R0}:{R0+3}], s{T3_} offen {UM}"]
        for k in range(3): a(f"s_mov_b64 exec, s[{MK[k]}:{MK[k]+1}]", lds[k])
        a(f"s_mov_b64 exec, s[{MK[3]}:{MK[3]+1}]")
        a(f"global_load_dword v32, v12, s[{P_WS}:{P_WS+1}] sc1", f"global_load_dword v33, v12, s[{P_WS}:{P_WS+1}] offset:1024 sc1")
        guard(a)
        for k in range(3):
            a(f"s_mov_b64 exec, s[{MK[k]}:{MK[k]+1}]", f"s_waitcnt vmcnt({4-k})")
            for d in range(4): a(f"v_xor_b32 v{20+4*k+d}, v{(64 if k == 2 else 60)+d}, v{20+4*k+d}")
            a(f"v_or3_b32 v44, v{20+4*k}, v{21+4*k}, v{22+4*k}", f"v_bitop3_b32 v44, v44, v{23+4*k}, s{SP0} bitop3:0xa8", f"v_cmp_ne_u32 s[{MK[k]}:{MK[k]+1}], 0, v44")
        a(f"s_mov_b64 exec, s[{MK[3]}:{MK[3]+1}]", "s_waitcnt vmcnt(0)")
        a("v_xor_b32 v32, v58, v32", "v_bitop3_b32 v32, v32, v58, v33 bitop3:0xf6", f"v_cmp_ne_u32 s[{MK[3]}:{MK[3]+1}], 0, v32")
        a(f"s_or_b64 vcc, s[{MK[0]}:{MK[0]+1}], s[{MK[1]}:{MK[1]+1}]", f"s_or_b64 vcc, vcc, s[{MK[2]}:{MK[2]+1}]", f"s_or_b64 vcc, vcc, s[{MK[3]}:{MK[3]+1}]", f"s_cbranch_scc1 {lp}")
        a("s_mov_b64 exec, -1")
    else:
        a(f"global_load_dword v32, v12, s[{P_WS}:{P_WS+1}] {MOD('FMOD')}", f"global_load_dword v33, v12, s[{P_WS}:{P_WS+1}] offset:1024 {MOD('FMOD')}")
        a(f"buffer_load_dwordx4 v[20:23], v13, s[{R0}:{R0+3}], s{T1_} offen {UM}")
        a(f"buffer_load_dwordx4 v[24:27], v13, s[{R0}:{R0+3}], s{T5_} offen {UM}")
        a(f"buffer_load_dwordx4 v[28:31], v7, s[{R0}:{R0+3}], s{T3_} offen {UM}")
        guard(a)
        for k in range(3):
            a(f"s_waitcnt vmcnt({2-k})")
            if k == 0: a("v_xor_b32 v32, v58, v32", "v_xor_b32 v33, v58, v33")
            for d in range(4): a(f"v_xor_b32 v{20+4*k+d}, v{(64 if k == 2 else 60)+d}, v{20+4*k+d}")
            a(f"v_or3_b32 v44, v{20+4*k}, v{21+4*k}, v{44 if k else 21}", f"v_or3_b32 v44, v{22+4*k}, v{23+4*k}, v44")
        a(f"v_and_b32 v44, {hex(TAGM)}, v44", "v_or3_b32 v44, v44, v32, v33", "v_cmp_ne_u32 vcc, 0, v44", f"s_cbranch_vccnz {lp}")
    stamp(a, 6)
    a("ds_write_b128 v11, v[20:23]", "ds_write_b128 v11, v[24:27] offset:512", f"ds_write_b128 v10, v[28:31] offset:{2*U_SIZE}")
    a(f"ds_write_b8 v116, v{VONE} offset:{FL_UF}")
    stamp(a, 7)
    gen_wjobs(a)
    a("s_setprio 0")
    a(f"s_lshr_b32 s{T0_}, s{S_B2}, 6", f"s_lshl_b32 s{T0_}, s{T0_}, 9")
    a(f"s_bfe_u32 s{T1_}, s{S_B2}, 0x20004", f"s_lshl_b32 s{T1_}, s{T1_}, 6", f"s_add_u32 s{T0_}, s{T0_}, s{T1_}")
    a(f"s_and_b32 s{T1_}, s{S_B2}, 3", f"s_lshl_b32 s{T1_}, s{T1_}, 4", f"s_add_u32 s{T0_}, s{T0_}, s{T1_}")
    a(f"s_and_b32 s{T1_}, s{S_B2}, 12", f"s_add_u32 s{T0_}, s{T0_}, s{T1_}")
    a(f"s_lshr_b32 s{T1_}, s{S_WAVE}, 1", f"s_lshl_b32 s{T1_}, s{T1_}, 8", f"s_add_u32 s{T0_}, s{T0_}, s{T1_}")
    a(f"s_and_b32 s{T1_}, s{S_WAVE}, 1", f"s_lshl_b32 s{T1_}, s{T1_}, 1", f"s_add_u32 s{T0_}, s{T0_}, s{T1_}")
    a("v_lshrrev_b32 v113, 5, v1", "v_and_b32 v114, 31, v1")
    a(f"v_add_u32 v112, s{T0_}, v113")
    a("v_mul_u32_u24 v115, 1152, v112", "v_lshl_add_u32 v8, v114, 2, v115", "v_lshl_add_u32 v115, v114, 4, v115", "v_lshlrev_b32 v7, 2, v114", "v_lshlrev_b32 v6, 4, v114")
    a(f"v_bfe_u32 v111, v1, 3, 1", f"v_add_u32 v111, s{T0_}, v111", "v_mul_u32_u24 v111, 1152, v111", "v_and_b32 v9, 7, v1", "v_lshl_add_u32 v111, v9, 4, v111")
    srd(a, R0, P_X, XBYTES)
    srd(a, R1, P_WR, 1152)
    a(f"buffer_load_dwordx4 v[10:13], v115, s[{R0}:{R0+3}], 0 offen")
    a(f"buffer_load_dwordx4 v[14:17], v115, s[{R0}:{R0+3}], 0 offen offset:512")
    a(f"buffer_load_dword v18, v8, s[{R0}:{R0+3}], 0 offen offset:1024")
    a(f"buffer_load_dwordx4 v[50:53], v6, s[{R1}:{R1+3}], 0 offen")
    a(f"buffer_load_dwordx4 v[54:57], v6, s[{R1}:{R1+3}], 0 offen offset:512")
    a(f"buffer_load_dword v58, v7, s[{R1}:{R1+3}], 0 offen offset:1024")
    if not PTAG:
        a(f"s_cmp_lt_u32 s{S_FI}, 18", "s_cbranch_scc1 KS_L4")
        a(f"s_mul_i32 s{T0_}, s{S_XC}, 14", f"s_add_u32 s{T0_}, s{T0_}, s{S_I}", f"s_mul_i32 s{T0_}, s{T0_}, {CLRP_WG}", f"s_add_u32 s{T0_}, s{T0_}, {hex(WS_PART - 18*CLRP_WG)}")
        a(f"s_add_u32 s{R1}, s{P_WS}, s{T0_}", f"s_addc_u32 s{R1+1}, s{P_WS+1}, 0", f"s_mov_b32 s{R1+2}, {CLRP_WG}", f"s_mov_b32 s{R1+3}, 0x20000")
        a("v_lshlrev_b32 v6, 4, v0", "v_mov_b32 v60, -1", "v_mov_b32 v61, -1", "v_mov_b32 v62, -1", "v_mov_b32 v63, -1")
        for k in range(6):
            a(f"s_movk_i32 s{T0_}, {4096*k}")
            a(f"buffer_store_dwordx4 v[60:63], v6, s[{R1}:{R1+3}], s{T0_} offen sc1")
    a("KS_L4:")
    srd(a, R0, P_WS, 0x240000, WS_ZB1)
    srd(a, R1, P_OUT, XBYTES)
    srd(a, R2_, P_WS, XBYTES, WS_X2)
    srd(a, R3, P_WS, 12288, WS_KEYS)
    if not XCL:
        for d in range(4): a(f"v_mov_b32 v{60+d}, -1")
        a(f"buffer_store_dwordx4 v[60:63], v115, s[{R2_}:{R2_+3}], 0 offen sc1")
        a(f"buffer_store_dwordx4 v[60:63], v115, s[{R2_}:{R2_+3}], 0 offen offset:512 sc1")
        a("s_mov_b64 exec, 0xffff")
        a(f"buffer_store_dwordx4 v[60:63], v111, s[{R2_}:{R2_+3}], 0 offen offset:1024 sc1")
        a("s_mov_b64 exec, -1")
    a(f"s_not_b32 s{T1_}, s{S_B2}", f"v_xor_b32 v8, s{T1_}, v0")
    a("v_lshrrev_b32 v6, 1, v0", "v_lshlrev_b32 v6, 6, v6", "v_and_b32 v8, 1, v8", "v_lshl_add_u32 v6, v8, 4, v6")
    a(f"s_lshr_b32 s{T0_}, s{S_B2}, 2", f"s_lshl_b32 s{T0_}, s{T0_}, 15", f"s_and_b32 s{T1_}, s{S_B2}, 1", f"s_lshl_b32 s{T1_}, s{T1_}, 14", f"s_add_u32 s{T0_}, s{T0_}, s{T1_}")
    a(f"s_and_b32 s{T1_}, s{S_B2}, 2", f"s_lshl_b32 s{T1_}, s{T1_}, 4", f"s_add_u32 s{T0_}, s{T0_}, s{T1_}")
    a(f"s_lshr_b32 s{T2_}, s{S_B2}, 2", f"s_lshl_b32 s{T2_}, s{T2_}, 12", f"s_and_b32 s{T1_}, s{S_B2}, 3", f"s_lshl_b32 s{T1_}, s{T1_}, 4")
    a(f"s_add_u32 s{T2_}, s{T2_}, s{T1_}", f"s_lshl_b32 s{T1_}, s{S_WAVE}, 10", f"s_add_u32 s{T2_}, s{T2_}, s{T1_}", f"s_add_u32 s{T2_}, s{T2_}, 0x200000")
    a("v_lshlrev_b32 v9, 6, v2")
    if SWZ:
        a(f"s_lshl_b32 s{T1_}, s{S_B2}, 5", f"s_and_b32 s{T3_}, s{T1_}, 0x1f80", f"v_xor_b32 v6, s{T3_}, v6", f"s_and_b32 s{T3_}, s{T1_}, 0x380", f"v_xor_b32 v9, s{T3_}, v9")
        a(f"s_and_b32 s{T3_}, s{T1_}, 0xc00", f"s_xor_b32 s{T2_}, s{T2_}, s{T3_}", f"s_and_b32 s{T1_}, s{S_B2}, 1", f"s_lshl_b32 s{T1_}, s{T1_}, 13", f"s_xor_b32 s{T0_}, s{T0_}, s{T1_}")
    a(f"s_xor_b32 s{T1_}, s{T0_}, 0x2000")
    a(f"s_mul_i32 s{T3_}, s{S_WAVE}, 2304", f"s_add_u32 s{T3_}, s{T3_}, {C_XR}", f"v_lshl_add_u32 v117, v114, 5, s{T3_}", f"v_lshl_add_u32 v110, v114, 3, s{T3_}")
    a(f"s_lshl_b32 s{T3_}, s{S_WAVE}, 9", f"s_add_u32 s{T3_}, s{T3_}, {G_BASE}", f"v_lshl_add_u32 v108, v1, 2, s{T3_}", f"v_lshl_add_u32 v109, v1, 4, s{T3_}")
    a(f"s_mov_b32 s{T3_}, 0x02020000", f"v_mul_lo_u32 v118, v113, s{T3_}", "v_add_u32 v118, 0x01000c0c, v118")
    a(f"v_lshlrev_b32 v8, 2, v0", f"v_add_u32 v8, {C_XR}, v8")
    a(f"s_lshl_b32 s{T3_}, s{S_WAVE}, 6", f"s_add_u32 s{T3_}, s{T3_}, {C_XR + 2048}", f"v_lshl_add_u32 v119, v2, 2, s{T3_}")
    a("s_waitcnt vmcnt(0)")
    X = 20
    for j in range(9): unpack(a, X + 2 * j, 10 + j)
    WU, WS_ = 80, 78
    for j in range(9): unpack(a, WU + 2 * j, 50 + j)
    a(f"v_pk_add_f32 v[{WS_}:{WS_+1}], v[{WU}:{WU+1}], v[{WU+2}:{WU+3}]")
    for j in range(2, 9): a(f"v_pk_add_f32 v[{WS_}:{WS_+1}], v[{WS_}:{WS_+1}], v[{WU+2*j}:{WU+2*j+1}]")
    a(f"v_add_f32 v{WS_}, v{WS_}, v{WS_+1}")
    red32(a, "v_add_f32", WS_, WS_ + 1)
    a("v_sub_u32 v98, 0x87ff, v112", "v_lshl_add_u32 v99, v116, 1, v113", "v_lshlrev_b32 v99, 2, v99")
    ZG2 = ENV("ZG2", 0)
    if KD: a(f"s_lshl_b32 s{T5_}, s{S_B2}, 5")
    if ZG2 == 3:
        if ENV("ZGT", 0) < 2: lds_wait(a, {0: FL_ZDONE, 1: FL_ZISS}[ENV("ZGT", 0)], 60, "b4", sleep=1)
        if ENV('ZGS', 0x10000):
            a("s_mov_b32 exec_lo, 0", f"s_mov_b32 exec_hi, {hex(ENV('ZGS', 0x10000))}")
            zpoll(a, [f"buffer_load_dwordx4 v[68:71], v6, s[{R0}:{R0+3}], s{T0_} offen sc1"], list(range(68, 72)), ENV("ZSLEEP2", 2))
            a("s_mov_b64 exec, -1")
        else:
            zpoll(a, [f"buffer_load_dwordx4 v[68:71], v{VZ}, s[{R0}:{R0+3}], s{T2_} offen sc1"], list(range(68, 72)), ENV("ZSLEEP2", 2))
        if ENV("ZDELAY", 0): a(f"s_sleep {ENV('ZDELAY', 0)}")
        lds_wait(a, FL_ZISS, 60, "b4")
        if ENV("ZDELAY2", 0): a(f"s_sleep {ENV('ZDELAY2', 0)}")
    elif ZG2:
        lds_wait(a, {1: FL_ZDONE, 2: FL_ZISS}[ZG2], 60, "b4", sleep=1)
        zpoll(a, [f"buffer_load_dwordx4 v[68:71], v{VZ}, s[{R0}:{R0+3}], s{T2_} offen sc1"], list(range(68, 72)), ENV("ZSLEEP2", 2))
    if ZG2 != 3: lds_wait(a, FL_ZDONE + 4, 60, "b4", sleep=1)
    a("s_setprio 3")
    if PFD2 > PFD:
        W3 = ENV("PF3W", 6)
        a(f"s_sub_u32 s{T5_}, s{S_I}, 18", f"s_cmp_ge_u32 s{T5_}, {W3}", "s_cbranch_scc1 KS_PF3E", f"s_cmp_lg_u32 s{S_WAVE}, 2", "s_cbranch_scc1 KS_PF3E")
        pf_down(a, T5_, W3, PFD, PFD2, 100, 120, "KS_PF3E", R4)
        a("KS_PF3E:")
    stamp2(a, 1)
    if ENV("ZGATE", 1) and not ZG2:
        zpoll(a, [f"buffer_load_dwordx4 v[68:71], v{VZ}, s[{R0}:{R0+3}], s{T2_} offen sc1"], list(range(68, 72)), ENV("ZSLEEP", 1))
        if ENV("ZDELAY", 0): a(f"s_sleep {ENV('ZDELAY', 0)}")
    lp = newlabel("ZP"); l1 = newlabel("ZPE")
    a(f"s_branch {l1}", f"{lp}:", f"s_sleep {ENV('ZSLEEP', 1)}", f"{l1}:")
    a(f"buffer_load_dwordx4 v[60:63], v6, s[{R0}:{R0+3}], s{T0_} offen sc1",
      f"buffer_load_dwordx4 v[64:67], v6, s[{R0}:{R0+3}], s{T1_} offen sc1",
      f"buffer_load_dwordx4 v[68:71], v9, s[{R0}:{R0+3}], s{T2_} offen sc1")
    guard(a)
    for k in range(3):
        a(f"s_waitcnt vmcnt({2-k})")
        ad, o = (8, 4 * k) if k < 2 else (119, 0)
        a(f"ds_write2st64_b32 v{ad}, v{60+4*k}, v{61+4*k} offset0:{o} offset1:{9+o}")
        a(f"ds_write2st64_b32 v{ad}, v{62+4*k}, v{63+4*k} offset0:{18+o} offset1:{27+o}")
        a(f"v_max3_u32 v44, v{60+4*k}, v{61+4*k}, v{44 if k else 61}", f"v_max3_u32 v44, v{62+4*k}, v{63+4*k}, v44")
    a("v_cmp_eq_u32 vcc, -1, v44", f"s_cbranch_vccnz {lp}")
    a(f"ds_write_b8 v116, v{VONE} offset:{FL_ZF}")
    stamp2(a, 3)
    lp = newlabel("ZW")
    a(f"{lp}:")
    a(f"ds_read_b32 v44, v{VZ} offset:{FL_ZF}")
    for k in range(4):
        a(f"ds_read_b128 v[{60+4*k}:{63+4*k}], v117 offset:{1024*(k>>1) + 16*(k&1)}")
    a("ds_read_b64 v[76:77], v110 offset:2048")
    guard(a)
    a("s_waitcnt lgkmcnt(5)")
    a(f"v_cmp_ne_u32 vcc, s{S_ONES}, v44", f"s_cbranch_vccnz {lp}")
    for j in range(9):
        if j % 2 == 0: a(f"s_waitcnt lgkmcnt({4-j//2})")
        a(f"v_perm_b32 v{60+2*j}, v{60+2*j}, v{60+2*j}, v118", f"v_perm_b32 v{61+2*j}, v{61+2*j}, v{61+2*j}, v118")
        h = f"v[{X+2*j}:{X+2*j+1}]"
        a(f"v_pk_add_f32 {h}, v[{60+2*j}:{61+2*j}], {h}")
        if j == 0: a(f"v_pk_mul_f32 v[42:43], {h}, {h}", f"v_pk_mul_f32 v[44:45], {h}, v[{WU}:{WU+1}]")
        else:
            a(f"v_pk_fma_f32 v[42:43], {h}, {h}, v[42:43]", f"v_pk_fma_f32 v[44:45], {h}, v[{WU+2*j}:{WU+2*j+1}], v[44:45]")
            a(f"v_pk_add_f32 v[40:41], {h}, " + (f"v[{X}:{X+1}]" if j == 1 else "v[40:41]"))
    a("v_add_f32 v42, v42, v43", "v_add_f32 v44, v44, v45", "v_add_f32 v40, v40, v41")
    a("v_mov_b32 v41, v40", "v_permlane16_swap_b32 v42, v44", "v_permlane16_swap_b32 v40, v41")
    a("v_add_f32 v42, v42, v44", "v_add_f32 v40, v40, v41")
    for r in (8, 4, 2, 1):
        a(f"v_add_f32_dpp v42, v42, v42 row_ror:{r} {DPPM}", f"v_add_f32_dpp v40, v40, v40 row_ror:{r} {DPPM}")
    a(f"v_mul_f32 v40, {f32(1.0/576)}, v40", "v_mov_b32 v44, v42")
    a("v_cvt_pk_bf16_f32 v41, 0, v40", "v_mul_f32 v40, v40, v40")
    a("v_permlane16_swap_b32 v42, v44")
    a(f"v_mov_b32 v43, {f32(1.0/576)}", "v_fma_f32 v42, v42, v43, -v40", f"v_fma_f32 v44, -v41, v{WS_}, v44", "v_max_f32 v42, 0, v42")
    a(f"v_cvt_pk_bf16_f32 v42, 0, v42", f"v_add_f32 v42, {f32(1e-5)}, v42")
    a(f"v_cvt_pk_bf16_f32 v42, 0, v42", "v_sqrt_f32 v42, v42")
    a(f"v_cvt_pk_bf16_f32 v42, 0, v42", "v_rcp_f32 v42, v42")
    a("v_mul_f32 v60, v44, v42")
    a("v_cvt_pk_bf16_f32 v60, v60, v60")
    a("v_ashrrev_i32 v61, 31, v60", "v_or_b32 v61, 0x80000000, v61", f"s_mov_b32 s{T3_}, 0xffff0000", "v_xor_b32 v60, v60, v61", f"v_and_or_b32 v60, v60, s{T3_}, v98")
    if KD == 2:
        a("v_mov_b32 v61, v60", "v_permlane32_swap_b32 v60, v61", "s_mov_b64 exec, 1")
        a(f"buffer_store_dwordx2 v[60:61], v99, s[{R3}:{R3+3}], s{T5_} offen sc1")
        a(f"ds_write_b8 v116, v{VONE} offset:{FL_KCNT}")
    else:
        a("s_mov_b32 exec_lo, 1", "s_mov_b32 exec_hi, 1")
        if KD:
            a(f"buffer_store_dword v60, v99, s[{R3}:{R3+3}], s{T5_} offen sc1")
            a(f"ds_write_b8 v116, v{VONE} offset:{FL_KCNT}")
        else: a(f"ds_write_b32 v99, v60 offset:{C_KEY}")
    a("s_mov_b64 exec, -1")
    stamp2(a, 4)
    a(f"s_setprio {ENV('L2PRIO', 2)}")
    for j in range(9):
        rnd2(a, X + 2 * j)
    ln_stats(a, X, 40, 42, 44, 46, 48)
    for j in range(9):
        ln_apply_pair(a, X + 2 * j, 40, 42, 44, 10 + j)
        a(f"v_pk_add_f32 v[{X+2*j}:{X+2*j+1}], v[44:45], v[{X+2*j}:{X+2*j+1}]")
        if XCL != 2: a(f"v_min_u32 v{10+j}, -2, v{10+j}")
    a(f"v_cvt_pk_bf16_f32 v58, v{X+16}, v{X+17}")
    a("ds_write_b32 v108, v18", "ds_write_b32 v108, v58 offset:256", "ds_read_b128 v[64:67], v109")
    a(f"buffer_store_dwordx4 v[10:13], v115, s[{R2_}:{R2_+3}], 0 offen sc1")
    a(f"buffer_store_dwordx4 v[14:17], v115, s[{R2_}:{R2_+3}], 0 offen offset:512 sc1")
    for j in range(8):
        a(f"v_cvt_pk_bf16_f32 v{50+j}, v{X+2*j}, v{X+2*j+1}")
    a("s_mov_b64 exec, 0xffff")
    a("s_waitcnt lgkmcnt(0)")
    a(f"buffer_store_dwordx4 v[64:67], v111, s[{R2_}:{R2_+3}], 0 offen offset:1024 sc1")
    if ENV("OD", 30): a("s_setprio 0", f"s_sleep {ENV('OD', 30)}")
    a("s_mov_b64 exec, 0xffff0000")
    a(f"buffer_store_dwordx4 v[64:67], v111, s[{R1}:{R1+3}], 0 offen offset:1024 sc1")
    a("s_mov_b64 exec, -1")
    a(f"buffer_store_dwordx4 v[50:53], v115, s[{R1}:{R1+3}], 0 offen sc1")
    a(f"buffer_store_dwordx4 v[54:57], v115, s[{R1}:{R1+3}], 0 offen offset:512 sc1")
    if PB and PCT == 4:
        a(f"s_mul_i32 s{T0_}, s{S_BLK}, {PROW}", f"s_add_u32 s{T0_}, s{T0_}, {hex(WS_PART)}", f"s_add_u32 s{R0}, s{P_WS}, s{T0_}", f"s_addc_u32 s{R0+1}, s{P_WS+1}, 0")
        a(f"s_cmp_lt_u32 s{S_FI}, 18", f"s_cselect_b32 s{R0+2}, 9216, 0", f"s_mov_b32 s{R0+3}, 0x20000", f"s_mul_i32 s{T0_}, s{S_WAVE}, 3072", "v_lshlrev_b32 v8, 4, v1")
        for d in range(4): a(f"v_mov_b32 v{60+d}, -1")
        for k in range(3): a(f"buffer_store_dwordx4 v[60:63], v8, s[{R0}:{R0+3}], s{T0_} offen offset:{1024*k} sc1")
    stamp2(a, 5)
    a("s_waitcnt vmcnt(0)")
    a("s_mov_b64 exec, 1")
    a(f"ds_add_rtn_u32 v62, v{VZ}, v{VONE} offset:{FL_F2CNT}")
    a("s_waitcnt lgkmcnt(0)")
    a("v_cmp_eq_u32 vcc, 3, v62", "s_and_b64 exec, exec, vcc", "s_cbranch_execz KS_NOF2")
    a(f"s_lshl_b32 s{T0_}, s2, 4", f"s_add_u32 s{T0_}, s{T0_}, 8192")
    a(f"buffer_store_dword v{VONE}, v{VZ}, s[{R3}:{R3+3}], s{T0_} offen sc1")
    a("KS_NOF2:")
    a("s_mov_b64 exec, -1")
    a("s_setprio 0")
    a(f"s_cmp_lt_u32 s{S_FI}, 18", "s_cbranch_scc1 KS_B")
    a("s_waitcnt lgkmcnt(0)")
    endwave(a)
    a("KS_T:")
    a("s_setprio 0")
    a(f"s_cmp_ge_u32 s{S_WAVE}, 10", "s_cbranch_scc1 " + ("KS_PEND" if PB else "KS_P"))
    a("v_and_b32 v6, 1, v1", "v_subrev_u32 v6, 1, v6")
    a("v_and_b32 v7, 7, v1", "v_lshlrev_b32 v7, 2, v7")
    srd(a, R3, P_WS, 12288, WS_KEYS)
    a(f"s_cmp_eq_u32 s{S_WAVE}, 9", "s_cbranch_scc1 KS_W9")
    a(f"s_cmp_eq_u32 s{S_WAVE}, 8", "s_cbranch_scc1 KS_L2W")
    a(f"s_sub_u32 s{T1_}, s{S_WAVE}, 4", f"s_lshl_b32 s{T0_}, s{T1_}, 10", f"v_lshl_add_u32 v33, v1, 4, s{T0_}", f"s_movk_i32 s{T0_}, 4096")
    a(f"s_lshl_b32 s{T1_}, s{T1_}, 7", "v_lshlrev_b32 v32, 4, v2", "v_lshl_add_u32 v32, v3, 5, v32", f"v_add_u32 v32, s{T1_}, v32")
    if RP:
        srd(a, R2_, P_WS, XBYTES, WS_X2)
        a(f"s_mov_b32 s{T2_}, 0xcccccccc", f"s_mov_b32 s{T3_}, 0xcccccccc", f"s_mov_b32 s{T4_}, 0xf0f0f0f0", f"s_mov_b32 s{T5_}, 0xf0f0f0f0")
        a(f"s_sub_u32 s{T1_}, s{S_FI}, 9", f"s_cselect_b32 s{T1_}, s{S_FI}, s{T1_}", f"s_lshl_b32 s{T1_}, s{T1_}, 7")
    lds_wait(a, FL_KCNT if KD else FL_KACK, 8, "b4" if KD else "nz", sleep=1)
    a("s_setprio 2")
    if ENV('KDELAY', 27): a(f"s_sleep {ENV('KDELAY', 27)}")
    stamp2(a, 1)
    zpoll(a, [f"buffer_load_dwordx4 v[8:11], v33, s[{R3}:{R3+3}], 0 offen sc1",
           f"buffer_load_dwordx4 v[12:15], v33, s[{R3}:{R3+3}], s{T0_} offen sc1"], list(range(8, 16)), ENV("KSLEEP", 4))
    a(f"ds_write_b32 v{VZ}, v{VONE} offset:{FL_KSEEN}")
    stamp2(a, 2)
    pool = Pool(range(16, 28))
    x = [8, 9, 10, 11]; y = [12, 13, 14, 15]
    for (i, j) in ((0, 1), (2, 3), (0, 2), (1, 3), (1, 2)):
        ce_inlane(a, x, i, j, pool); ce_inlane(a, y, i, j, pool)
    clean8(a, x, pool, 6, rev=True); clean8(a, y, pool, 6, rev=True)
    merge_pair(a, x, y, pool); clean8(a, x, pool, 6)
    for M in MIRRORS:
        merge_mirror(a, x, pool, M); clean8(a, x, pool, 6)
    for i in range(4): a(f"v_mov_b32 v{28+i}, v{x[i]}")
    a("s_mov_b32 exec_lo, 0x00030003", "s_mov_b32 exec_hi, 0x00030003")
    a(f"ds_write_b128 v32, v[28:31] offset:{C_CAND}")
    a("s_mov_b64 exec, -1")
    if RP:
        a(f"v_cndmask_b32 v28, v28, v29, s[{T2_}:{T3_}]", f"v_cndmask_b32 v30, v30, v31, s[{T2_}:{T3_}]", f"v_cndmask_b32 v28, v28, v30, s[{T4_}:{T5_}]")
        a("v_and_b32 v28, 0x7ff, v28", "v_sub_u32 v28, 2047, v28", "v_mul_u32_u24 v28, 1152, v28")
        a(f"s_mov_b32 exec_lo, {hex(RP)}", f"s_mov_b32 exec_hi, {hex(RP)}")
        a(f"buffer_load_dword v29, v28, s[{R2_}:{R2_+3}], s{T1_} offen sc1")
        a("s_mov_b64 exec, -1")
    stamp2(a, 3)
    a("s_setprio 0")
    a("s_branch KS_B")
    a("KS_L2W:")
    srd(a, R2_, P_WS, XBYTES, WS_X2)
    a(f"s_mov_b32 s{T0_}, 0xcccccccc", f"s_mov_b32 s{T1_}, 0xcccccccc", f"s_mov_b32 s{T2_}, 0xf0f0f0f0", f"s_mov_b32 s{T3_}, 0xf0f0f0f0", f"s_movk_i32 s{T4_}, 1152")
    a("v_lshrrev_b32 v34, 3, v1", "v_lshlrev_b32 v34, 4, v34", "v_lshlrev_b32 v33, 4, v2")
    lds_wait(a, FL_KCNT if KD else FL_KACK, 8, "b4" if KD else "nz", sleep=1)
    a("s_setprio 2")
    a("KS_L2POLL:")
    a(f"ds_read_b128 v[8:11], v33 offset:{C_CAND}")
    a(f"ds_read_b128 v[12:15], v33 offset:{C_CAND + 256}")
    guard(a)
    a("s_waitcnt lgkmcnt(0)")
    a("v_min3_u32 v16, v8, v9, v10", "v_min3_u32 v17, v11, v12, v13", "v_min3_u32 v16, v16, v14, v15", "v_min_u32 v16, v16, v17", "v_cmp_eq_u32 vcc, 0, v16")
    a("s_cbranch_vccnz KS_L2POLL")
    stamp2(a, 1)
    pool = Pool(range(16, 28))
    x = [8, 9, 10, 11]; y = [12, 13, 14, 15]
    merge_pair(a, x, y, pool); clean8(a, x, pool, 6)
    for li, M in enumerate(MIRRORS):
        merge_mirror(a, x, pool, M)
        if li < 2: clean8(a, x, pool, 6)
    a(f"v_cndmask_b32 v30, v{x[0]}, v{x[1]}, s[{T0_}:{T1_}]", f"v_cndmask_b32 v31, v{x[2]}, v{x[3]}, s[{T0_}:{T1_}]", f"v_cndmask_b32 v30, v30, v31, s[{T2_}:{T3_}]")
    if RDMA:
        a("v_mov_b32_dpp v30, v30 row_shr:8 row_mask:0xf bank_mask:0xc")
        a("v_and_b32 v31, 0x7ff, v30", "v_sub_u32 v31, 2047, v31", f"v_mad_u32_u24 v31, v31, s{T4_}, v34")
        for k in range(9):
            a(f"s_mov_b32 m0, {C_XR + 896*k}")
            a(f"buffer_load_dwordx4 v31, s[{R2_}:{R2_+3}], 0 offen offset:{128*k} sc1 lds")
        a(f"ds_write_b32 v7, v30 offset:{C_SEL}")
        stamp2(a, 2)
        a("s_waitcnt vmcnt(0)")
        a(f"ds_write_b32 v{VZ}, v{VONE} offset:{FL_XRDY}")
        stamp2(a, 3)
    else:
        a("s_mov_b64 exec, 0xff")
        a(f"ds_write_b32 v7, v30 offset:{C_SEL}")
        a("s_mov_b64 exec, -1")
        stamp2(a, 2)
    a("s_setprio 0")
    a("s_branch KS_B")
    a("KS_W9:")
    a("v_lshlrev_b32 v33, 4, v1", f"s_movk_i32 s{T0_}, 0x2000")
    srd(a, R2_, P_WS, XBYTES, WS_X2)
    srd(a, R0, P_WS, 0x240000, WS_ZB1)
    srd(a, R1, P_X, XBYTES)
    if PB:
        a("v_bfe_u32 v43, v1, 3, 2", f"s_lshl_b32 s{T1_}, s{S_BLK}, 2", f"v_add_u32 v43, s{T1_}, v43")
        a("v_bfe_u32 v40, v43, 4, 1", "v_and_b32 v41, 3, v1", "v_lshl_add_u32 v40, v40, 2, v41", "v_lshlrev_b32 v40, 2, v40")
        a("v_and_b32 v41, 0x3cf, v43", "v_bfe_u32 v42, v43, 5, 1", "v_lshl_add_u32 v41, v42, 4, v41", "v_bfe_u32 v42, v1, 2, 1", "v_lshl_add_u32 v41, v42, 5, v41")
    else:
        a("v_bfe_u32 v43, v1, 2, 3", f"s_lshl_b32 s{T1_}, s{S_BLK}, 3", f"v_add_u32 v43, s{T1_}, v43")
        a("v_bfe_u32 v40, v43, 4, 1", "v_and_b32 v41, 3, v1", "v_lshl_add_u32 v40, v40, 2, v41", "v_lshlrev_b32 v40, 2, v40")
        a("v_lshrrev_b32 v41, 5, v43", "v_lshlrev_b32 v41, 4, v41", "v_and_b32 v42, 15, v43", "v_add_u32 v41, v41, v42")
    lds_wait(a, C_SEL, 12, "nz", addr=7, sleep=1)
    stamp2(a, 2)
    a(f"ds_read_b32 v19, v40 offset:{C_SEL}")
    a("s_waitcnt lgkmcnt(0)")
    a("v_and_b32 v14, 0x7ff, v19", "v_sub_u32 v14, 2047, v14")
    a("v_mul_u32_u24 v23, 1152, v14", "v_lshl_add_u32 v23, v41, 1, v23")
    a(f"buffer_load_ushort v17, v23, s[{R1}:{R1+3}], 0 offen")
    a("v_lshrrev_b32 v15, 9, v14", "v_bfe_u32 v16, v14, 6, 2", "v_lshl_add_u32 v15, v15, 2, v16", "v_bfe_u32 v16, v14, 2, 2", "v_lshl_add_u32 v15, v15, 2, v16")
    a("v_bfe_u32 v16, v14, 4, 1")
    a("v_bfe_u32 v24, v14, 8, 1", "v_and_b32 v25, 3, v14", "v_lshl_add_u32 v24, v24, 2, v25", "v_lshlrev_b32 v24, 1, v24")
    a("v_bfe_u32 v25, v14, 5, 1", "v_lshl_add_u32 v24, v25, 5, v24")
    a("v_lshl_add_u32 v25, v15, 1, v16", "v_lshl_add_u32 v25, v25, 14, v24")
    a("v_lshrrev_b32 v26, 1, v41", "v_lshl_add_u32 v25, v26, 6, v25", "v_xor_b32 v26, v41, v16", "v_not_b32 v26, v26", "v_and_b32 v26, 1, v26", "v_lshl_add_u32 v25, v26, 4, v25")
    a("v_lshl_add_u32 v26, v15, 12, v24", "v_lshl_add_u32 v26, v16, 4, v26", "v_lshl_add_u32 v26, v41, 6, v26", f"v_add_u32 v26, {0x200000 - 512*64}, v26")
    if SWZ:
        a("v_lshl_add_u32 v27, v16, 6, v15", "v_lshlrev_b32 v27, 7, v27", "v_xor_b32 v25, v27, v25", "v_and_b32 v27, 0xf80, v27", "v_xor_b32 v26, v27, v26")
    a("v_cmp_gt_u32 vcc, 0x200, v41", "v_cndmask_b32 v25, v26, v25, vcc")
    a(f"buffer_load_ushort v18, v25, s[{R0}:{R0+3}], 0 offen sc1")
    a("v_ashrrev_i32 v22, 31, v19", "v_not_b32 v22, v22", "v_or_b32 v22, 0x80000000, v22", "v_xor_b32 v22, v19, v22", "v_and_b32 v22, 0xffff0000, v22")
    a(f"v_mul_f32 v22, {f32(-LOG2E)}, v22", "v_exp_f32 v22, v22", "v_add_f32 v22, 1.0, v22", "v_rcp_f32 v22, v22")
    a(f"v_cvt_pk_bf16_f32 v22, 0, v22")
    a("v_and_b32 v14, 31, v1", "v_lshlrev_b32 v14, 4, v14")
    f2l = [f"buffer_load_dword v{8+k}, v33, s[{R3}:{R3+3}], s{T0_} offen offset:{1024*k} sc1" for k in range(4)]
    if XCL == 2:
        a("s_barrier")
        zpoll(a, f2l, [8, 9, 10, 11], ENV("F2SLEEP", 4), mid="s_barrier")
        if PB and PCT == 4: a(f"ds_write_b32 v{VZ}, v{VONE} offset:{FL_ROWSOK}")
        a(f"buffer_load_ushort v20, v23, s[{R2_}:{R2_+3}], 0 offen sc1")
        stamp2(a, 1)
        if not PB: a("s_barrier")
        srd(a, R2_, P_WS, 64, WS_IDX)
        a("s_waitcnt vmcnt(0)")
    else:
        a("v_and_b32 v24, -4, v23", "v_and_b32 v25, 2, v23", "v_lshlrev_b32 v25, 3, v25")
        a("s_barrier")
        a("s_barrier")
        zpoll(a, f2l + [f"buffer_load_dword v20, v24, s[{R2_}:{R2_+3}], 0 offen sc1"], [8, 9, 10, 11, 20], ENV("F2SLEEP", 4), mid="s_barrier")
        stamp2(a, 1)
        srd(a, R2_, P_WS, 64, WS_IDX)
        a("v_lshrrev_b32 v20, v25, v20")
    a("v_lshlrev_b32 v17, 16, v17", "v_lshlrev_b32 v18, 16, v18", "v_add_f32 v17, v17, v18", "v_cvt_pk_bf16_f32 v17, v17, v17")
    a("v_and_b32 v21, 0xffff0000, v17", "v_lshlrev_b32 v20, 16, v20")
    if not PB: a(f"ds_write_b128 v14, v[20:23] offset:{C_SIDE}")
    a("s_cmp_lg_u32 s2, 0", "s_cbranch_scc1 KS_W9E")
    if ENV("IDXW", 1): a(f"buffer_store_dword v12, v7, s[{R2_}:{R2_+3}], 0 offen")
    a("KS_W9E:")
    if PB:
        srd(a, R1, P_OUT, XBYTES)
        a("v_lshlrev_b32 v14, 2, v1", f"v_add_u32 v14, {C_SIDE}, v14", "s_mov_b32 exec_lo, -1", "s_mov_b32 exec_hi, 0", "s_setprio 3")
        stamp2(a, 3)
        a("s_barrier")
        for g in range(4): a(f"ds_read2_b32 v[{32+2*g}:{33+2*g}], v14 offset0:{64*g} offset1:{64*g + 32}")
        a("ds_read_b32 v40, v14 offset:1024")
        a("s_waitcnt lgkmcnt(3)", "v_pk_add_f32 v[32:33], v[32:33], v[34:35]")
        a("s_waitcnt lgkmcnt(1)", "v_pk_add_f32 v[36:37], v[36:37], v[38:39]", "v_add_f32 v32, v32, v33")
        a("s_waitcnt lgkmcnt(0)", "v_add_f32 v36, v36, v37", "v_add_f32 v32, v32, v40", "v_add_f32 v8, v32, v36")
        a(f"v_cvt_pk_bf16_f32 v8, 0, v8")
        a("v_mul_f32 v8, v8, v22", f"v_cvt_pk_bf16_f32 v8, 0, v8")
        a("v_add_f32 v8, v8, v20", f"v_cvt_pk_bf16_f32 v8, 0, v8")
        a("v_add_f32 v8, v8, v21", "v_cvt_pk_bf16_f32 v8, v8, v8")
        a(f"buffer_store_short v8, v23, s[{R1}:{R1+3}], 0 offen {MOD('FM', '')}")
    else:
        a("s_waitcnt lgkmcnt(0)")
        stamp2(a, 3)
    endwave(a)
    a("KS_B:")
    srd(a, R0, P_WS, PART_BYTES, WS_PART)
    a("v_bfe_u32 v16, v1, 2, 2", "v_lshl_add_u32 v16, v3, 3, v16", "v_mul_u32_u24 v16, 1152, v16", "v_and_b32 v17, 3, v1", "v_lshl_add_u32 v16, v17, 3, v16")
    a(f"s_lshl_b32 s{T0_}, s{S_WAVE}, 7", f"s_add_u32 s{T0_}, s{T0_}, {C_DOWN}", f"v_add_u32 v16, s{T0_}, v16")
    if PTAG and not PB: a("v_lshlrev_b32 v18, 2, v17", f"ds_read_b32 v24, v18 offset:{FL_NONCE}", f"s_movk_i32 s{T2_}, 0xff")
    if PB:
        a("v_lshrrev_b32 v18, 2, v1", f"v_mul_u32_u24 v18, {PROW}, v18", "v_lshl_add_u32 v18, v17, 4, v18")
        a(f"s_mul_i32 s{T2_}, s{S_WAVE}, {16*PROW}", f"s_lshl_b32 s{T3_}, s{S_BLK}, 6", f"s_add_u32 s{T2_}, s{T2_}, s{T3_}")
        a(f"s_lshl_b32 s{T3_}, s{S_WAVE}, 7", f"v_lshl_add_u32 v19, v17, 5, s{T3_}", "v_lshl_add_u32 v19, v3, 3, v19")
        a(f"s_movk_i32 s{T3_}, 0x3f80", f"s_mov_b32 s{T4_}, 0x3f800000", "v_mov_b32 v28, 0", "v_mov_b32 v29, 0")
    lds_wait(a, FL_DOWN, 17, "b4")
    if PTAG and not PB:
        for d in range(1, 4): a(f"v_lshrrev_b32 v{24+d}, {8*d}, v24")
    WTD = 48
    for jt in range(4):
        a(f"ds_read_b64_tr_b16 v[{WTD+4*jt}:{WTD+4*jt+1}], v16 offset:{32*jt}")
        a(f"ds_read_b64_tr_b16 v[{WTD+4*jt+2}:{WTD+4*jt+3}], v16 offset:{32*jt + 4608}")
    a("v_and_b32 v16, 7, v2", "v_lshlrev_b32 v16, 6, v16", "v_lshl_add_u32 v16, v3, 4, v16")
    a(f"s_mul_i32 s{T0_}, s{S_BLK}, {PROW}", f"s_lshl_b32 s{T1_}, s{S_WAVE}, {10 if XH or PB else 11}", f"s_add_u32 s{T0_}, s{T0_}, s{T1_}")
    a("v_lshlrev_b32 v17, 4, v1")
    a("s_waitcnt lgkmcnt(0)")
    a("s_barrier")
    a("s_barrier")
    a(f"ds_read_b128 v[20:23], v16 offset:{C_ACT}")
    a("s_waitcnt lgkmcnt(0)")
    for j in ((0, 2, 1, 3) if PB else range(4)):
        a(f"v_mfma_f32_16x16x32_bf16 v[{32+4*j}:{35+4*j}], v[20:23], v[{WTD+4*j}:{WTD+4*j+3}], 0")
    if PB:
        for hi in range(2):
            a(f"s_mov_b32 exec_lo, {hi - 1}", f"s_mov_b32 exec_hi, {-hi}")
            for d in range(4):
                o = 32 + 4 * hi + 8 * (d >> 1) + 2 * (d & 1)
                a(f"v_cvt_pk_bf16_f32 v{24+d}, v{o}, v{o+1}")
        a("s_mov_b64 exec, -1")
        for d in range(4): a(f"v_min_u32 v{24+d}, -2, v{24+d}")
        a(f"buffer_store_dwordx4 v[24:27], v17, s[{R0}:{R0+3}], s{T0_} offen sc1")
        stamp2(a, 8)
        a(f"s_sleep {PE}")
        a("s_setprio 2")
        if PCT == 4: lds_wait(a, FL_ROWSOK, 30, "nz")
        stamp2(a, 6)
        zpoll(a, [f"buffer_load_dwordx4 v[32:35], v18, s[{R0}:{R0+3}], s{T2_} offen sc1"], list(range(32, 36)), ENV("PSLEEP", 1))
        stamp2(a, 7)
        a("v_permlane32_swap_b32 v32, v34", "v_permlane32_swap_b32 v33, v35")
        a("v_permlane16_swap_b32 v32, v33", "v_permlane16_swap_b32 v34, v35")
        for d in range(4): a(f"v_dot2c_f32_bf16 v28, s{T3_}, v{32+d}", f"v_dot2c_f32_bf16 v29, s{T4_}, v{32+d}")
        for r in (8, 4): a(f"v_add_f32_dpp v28, v28, v28 row_ror:{r} {DPPM}", f"v_add_f32_dpp v29, v29, v29 row_ror:{r} {DPPM}")
        a("s_mov_b32 exec_lo, 0x000f000f", "s_mov_b32 exec_hi, 0x000f000f")
        a(f"ds_write_b64 v19, v[28:29] offset:{C_SIDE}")
        a("s_waitcnt lgkmcnt(0)")
        a("s_barrier")
        endwave(a)
    else:
        for j in (0, 2):
            for r in range(4): a(f"v_permlane32_swap_b32 v{32+4*j+r}, v{36+4*j+r}")
            for r in range(4): a(f"v_bfi_b32 v{32+4*j+r}, s{T2_}, v{24+r}, v{32+4*j+r}" if PTAG else f"v_min_u32 v{32+4*j+r}, -2, v{32+4*j+r}")
            if not (XH and j == 0): a(f"buffer_store_dwordx4 v[{32+4*j}:{35+4*j}], v17, s[{R0}:{R0+3}], s{T0_} offen offset:{0 if XH else 512*j} sc1")
        stamp2(a, 8)
        if PE < 0: a("s_waitcnt vmcnt(0)")
        a("s_barrier")
        endwave(a)
    a("KS_G0:")
    a(f"ds_write_b8 v15, v{VONE} offset:{FL_G+4}")
    a("s_setprio 0")
    if RM:
        a(f"s_cmp_lt_u32 s{S_FI}, 18", "s_cbranch_scc1 KS_G")
        assert not NLL
        if NL2:
            pf_lane(a, 46, 47)
            a(f"s_mul_i32 s{T2_}, s{S_WAVE}, 6", f"s_add_u32 s{T2_}, s{T2_}, s{S_FI}", f"s_sub_u32 s{T2_}, s{T2_}, {18 + 72}")
            lds_wait(a, FL_G + 36, 10, "b4", sleep=2)
            pf_gu(a, 46, T2_, 24, PFA, PF0, 47, "KS_LLE")
            a("KS_LLE:")
        a("s_waitcnt vmcnt(0) lgkmcnt(0)")
        endwave(a)
    a("KS_G:")
    a(f"s_mov_b32 s{SP0}, 0x05040100", f"s_mov_b32 s{SP1}, 0x07060302")
    a("s_waitcnt vmcnt(0)" + (" lgkmcnt(0)" if SN else ""))
    stamp(a, 5)
    g_addr_setup(a, 46)
    if DE:
        srd(a, R1, P_DOWN, F * D * 2)
        a("v_lshlrev_b32 v8, 4, v1", f"s_mul_i32 s{T0_}, s{S_BLK}, 36864", f"s_mul_i32 s{T1_}, s{S_G}, 9216", f"s_add_u32 s{T0_}, s{T0_}, s{T1_}", f"s_add_u32 s{T1_}, s{T1_}, {C_DOWN}")
        def wtrig(tr):
            a(f"s_cmp_lt_u32 s{S_I}, 8", f"s_cselect_b32 s{T2_}, 0, {tr[1] - tr[0]}", f"v_mov_b32 v9, s{T2_}")
            lds_wait(a, tr[0], 10, "b4", addr=9, sleep=2)
        TG = {"B": FL_UTOK, "K": FL_UTOK + 4, "U": FL_UF, "C": FL_G + 36, "A1": FL_G, "A2": FL_G + 4, "A3": FL_G + 8, "B1": FL_G + 16, "B2": FL_G + 20, "B3": FL_G + 24}
        DTR = os.environ.get("DTR", "C,B").split(","); GTR = os.environ.get("GTR", "C,B").split(",")
        if ENV("DLAST", 0):
            wtrig([TG[x] for x in GTR])
            a(f"s_lshr_b32 s{T2_}, {ENV('GNM', 3)}, s{S_G}", f"s_bitcmp1_b32 s{T2_}, 0", "s_cbranch_scc1 KS_GD1")
            a(f"s_and_b32 s{T2_}, s{S_G}, 1", f"s_mul_i32 s{T1_}, s{T2_}, 18432", f"s_mul_i32 s{T0_}, s{S_BLK}, 36864", f"s_add_u32 s{T0_}, s{T0_}, s{T1_}", f"s_add_u32 s{T1_}, s{T1_}, {C_DOWN}")
        wtrig([TG["C"], TG["B"]])
        if DTR != ["C", "B"]: wtrig([TG[x] for x in DTR])
        if DEA: a(f"s_cmp_ge_u32 s{S_I}, 8", "s_cbranch_scc1 KS_GD1")
        for k in range(18 if ENV("DLAST", 0) else 9):
            if k % 4 == 0:
                a(f"s_add_u32 m0, s{T1_}, {1024*k}")
                if k: a(f"s_add_u32 s{T0_}, s{T0_}, 4096")
            if not XW: a(f"buffer_load_dwordx4 v8, s[{R1}:{R1+3}], s{T0_} offen offset:{1024*(k&3)} {MOD('DM', 'nt')} lds")
        if GTR != DTR and not ENV("DLAST", 0): wtrig([TG[x] for x in GTR])
        a("KS_GD1:")
        if ENV("GPRIO", 0): a(f"s_setprio {ENV('GPRIO', 0)}")
    SG = eval(os.environ.get("SG", "[0,0,0,0]"))
    if any(SG):
        a(f"s_mul_i32 s{T0_}, s{S_ROLE}, {32*9216}", f"s_lshl_b32 s{T1_}, s{S_BLK}, 6", f"s_add_u32 s{T0_}, s{T0_}, s{T1_}")
        a(f"s_add_u32 s{R0}, s{P_GATE}, s{T0_}", f"s_addc_u32 s{R0+1}, s{P_GATE+1}, 0", f"s_add_u32 s{R0+2}, s{P_UP}, s{T0_}", f"s_addc_u32 s{R0+3}, s{P_UP+1}, 0")
        cnt = sum(SG[g] << (8 * g) for g in range(4))
        a(f"s_lshl_b32 s{T1_}, s{S_G}, 3", f"s_lshr_b32 s{T1_}, {hex(cnt)}, s{T1_}", f"s_and_b32 s{T1_}, s{T1_}, 0xff", "s_cbranch_scc0 KS_SGE")
        a("KS_SGL:")
        for r in range(8):
            a(f"s_load_dword s{R1}, s[{R0}:{R0+1}], {r*9216}", f"s_load_dword s{R1+1}, s[{R0+2}:{R0+3}], {r*9216}")
        a(f"s_add_u32 s{R0}, s{R0}, {8*9216}", f"s_addc_u32 s{R0+1}, s{R0+1}, 0", f"s_add_u32 s{R0+2}, s{R0+2}, {8*9216}", f"s_addc_u32 s{R0+3}, s{R0+3}, 0")
        a(f"s_sub_u32 s{T1_}, s{T1_}, 1", f"s_cmp_lg_u32 s{T1_}, 0", "s_cbranch_scc1 KS_SGL")
        a("KS_SGE:")
        a("s_waitcnt lgkmcnt(0)")
        stamp(a, 8)
    TR = {1: (FL_PARAM, "nz"), 2: (FL_UF, "b4"), 3: (FL_ZF, "b4"), 4: (FL_KACK, "nz"), 5: (FL_KSEEN, "nz"), 6: (FL_ZDONE + 4, "b4")}
    GNM = ENV("GNM", 3)
    for t in sorted(set(GT)):
        if t == 0: continue
        l = newlabel("GT")
        mask = sum(1 << g for g in range(4) if GT[g] == t)
        if mask != 15: a(f"s_lshr_b32 s{T0_}, {mask}, s{S_G}", f"s_bitcmp1_b32 s{T0_}, 0", f"s_cbranch_scc0 {l}")
        lds_wait(a, TR[t][0], 10, TR[t][1], sleep=2)
        if t >= 3: a("s_setprio 1")
        a(f"{l}:")
    if GNM and GNM != 15:
        a(f"s_lshr_b32 s{T0_}, {GNM}, s{S_G}", f"s_bitcmp1_b32 s{T0_}, 0", "s_cbranch_scc0 KS_GN0")
        gs = ENV("GSPLIT", 4)
        g_loads(a, 46, range(gs), " nt")
        if gs < 4: lds_wait(a, FL_UF, 10, "b4", sleep=2)
        g_loads(a, 46, range(gs, 4), " nt")
        a(f"s_bitcmp1_b32 s{S_G}, 0", "s_cbranch_scc1 KS_G4")
        g_loads(a, 46, [4], " nt")
        a("s_branch KS_G4")
        a("KS_GN0:")
    GM = " nt" if GNM == 15 else ""
    g_loads(a, 46, range(4), GM)
    stamp(a, 6)
    def transpose(src, dst):
        for j in range(4):
            for p in range(4):
                lo = src + 2 * (2 * p) + (j >> 1); hi = src + 2 * (2 * p + 1) + (j >> 1)
                a(f"v_perm_b32 v{dst+4*j+p}, v{hi}, v{lo}, s{SP0 + (j & 1)}")
    W = GW
    a(f"s_bitcmp1_b32 s{S_G}, 0", "s_cbranch_scc1 KS_G4")
    g_loads(a, 46, [4], GM)
    a("KS_G4:")
    a(f"v_mov_b32 v6, s{S_G}", f"ds_write_b8 v6, v{VONE} offset:{FL_GISS}")
    a("s_waitcnt vmcnt(0)")
    if DE: a(f"ds_write_b8 v6, v{VONE} offset:{FL_DOWN}")
    stamp(a, 7)
    for ks in range(5): transpose(W + 16 * ks, W + 16 * ks - 16)
    GACC = 112
    srd(a, R2_, P_WS, XBYTES, WS_X2)
    a(f"s_lshl_b32 s{T0_}, s{S_ROLE}, 6", f"s_add_u32 s{T0_}, s{T0_}, {2047*1152}", "v_and_b32 v6, 7, v2", "v_lshlrev_b32 v6, 2, v6", f"v_lshl_add_u32 v7, v3, 4, s{T0_}", f"s_movk_i32 s{T1_}, -1152")
    a(f"s_and_b32 s{T2_}, s{S_G}, 1", f"s_lshl_b32 s{T2_}, s{T2_}, 6", f"s_sub_u32 s{T2_}, 256, s{T2_}")
    a(f"s_lshl_b32 s{T0_}, s{S_G}, 6", f"v_add_u32 v11, s{T0_}, v1")
    a("v_lshrrev_b32 v8, 5, v11", "v_and_b32 v9, 31, v11")
    a("v_and_b32 v10, 3, v9", "v_lshlrev_b32 v10, 9, v10")
    a("v_lshrrev_b32 v9, 2, v9", "v_lshl_add_u32 v10, v9, 4, v10")
    a("v_lshrrev_b32 v9, 2, v8", "v_lshl_add_u32 v10, v9, 8, v10")
    a("v_and_b32 v9, 3, v8", "v_lshl_add_u32 v10, v9, 2, v10")
    a("v_lshlrev_b32 v11, 1, v11")
    a(f"s_lshl_b32 s{T0_}, s{S_G}, 11", f"v_lshl_add_u32 v9, v1, 4, s{T0_}")
    TG_ = (0, 2, 5, 6)
    def gmm(wait, bad):
        for ks in range(5):
            a(f"s_waitcnt {wait}({4-ks})")
            chk = []
            if bad and XCL == 2:
                chk = [f"v_xor_b32 v4, v{TG_[0]}, v{12+4*ks}"] + [f"v_bitop3_b32 v4, v4, v{TG_[d]}, v{12+4*ks+d} bitop3:0xf6" for d in range(1, 4)]
                chk += [f"v_and_b32 v{4 if ks else 8}, {hex(TAGM)}, v4"] + (["v_min_u32 v8, v8, v4"] if ks else [])
            elif bad:
                chk = [f"v_max3_u32 v8, v{12+4*ks}, v{13+4*ks}, v{8 if ks else 13}", f"v_max3_u32 v8, v{14+4*ks}, v{15+4*ks}, v8"]
            if ks == 4:
                a(*chk); chk = []
                if bad: a(f"v_cmp_eq_u32 vcc, {0 if XCL == 2 else -1}, v8", f"s_cbranch_vccnz {bad}")
                a(f"s_bitcmp1_b32 s{S_G}, 0", "s_cbranch_scc1 KS_G5")
            for j in range(4):
                c = "0" if ks == 0 else f"v[{GACC+4*j}:{GACC+4*j+3}]"
                a(f"v_mfma_f32_16x16x32_bf16 v[{GACC+4*j}:{GACC+4*j+3}], v[{12+4*ks}:{15+4*ks}], v[{32+16*ks+4*j}:{35+16*ks+4*j}], {c}")
                a(*chk[2*j:2*j+2])
    assert RDMA
    a(f"s_lshl_b32 s{T0_}, s{S_ROLE}, 9", f"s_add_u32 s{T0_}, s{T0_}, {C_XR}", f"v_lshl_add_u32 v28, v6, 2, s{T0_}", "v_lshl_add_u32 v28, v3, 7, v28", f"s_lshl_b32 s{T0_}, s{T2_}, 3", f"v_add_u32 v31, s{T0_}, v28")
    if XCL == 2: a("v_lshlrev_b32 v0, 2, v3", f"ds_read_b32 v0, v0 offset:{FL_NONCE}")
    lds_wait(a, C_SEL, 12, "nz", addr=6, sleep=2)
    a("s_setprio 2")
    a("v_and_b32 v12, 0x7ff, v12", f"v_mad_i32_i24 v7, v12, s{T1_}, v7")
    if XCL == 2:
        for d in range(1, 4): a(f"v_lshrrev_b32 v{TG_[d]}, {3*d}, v0")
    lds_wait(a, FL_XRDY, 12, "nz")
    stamp2(a, 1)
    for ks in range(4):
        a(f"ds_read_b128 v[{12+4*ks}:{15+4*ks}], v28 offset:{512*ks}")
    a("ds_read_b128 v[28:31], v31")
    gmm("lgkmcnt", "KS_GR")
    a("s_branch KS_G5")
    a("KS_GR:")
    if XCL == 2:
        srd(a, R3, P_WS, 12288, WS_KEYS)
        a("v_lshlrev_b32 v4, 4, v1", f"s_movk_i32 s{T0_}, 0x2000")
        a.flush(4)
        a("KS_GR2:")
        a("s_sleep 2")
        for k in range(4): a(f"buffer_load_dword v{12+k}, v4, s[{R3}:{R3+3}], s{T0_} offen offset:{1024*k} sc1")
        guard(a)
        a("s_waitcnt vmcnt(0)")
        a("v_max3_u32 v12, v12, v13, v14", "v_max_u32 v12, v12, v15", "v_cmp_eq_u32 vcc, -1, v12", "s_cbranch_vccnz KS_GR2")
    for ks in range(5):
        a(f"buffer_load_dwordx4 v[{12+4*ks}:{15+4*ks}], v7, s[{R2_}:{R2_+3}], " + (f"0 offen offset:{64*ks}" if ks < 4 else f"s{T2_} offen") + " sc1")
    guard(a)
    gmm("vmcnt", None if XCL == 2 else "KS_GR")
    a("KS_G5:")
    a("s_mov_b32 exec_lo, -1", "s_mov_b32 exec_hi, 0")
    a.flush(6)
    for j in range(4):
        a(f"ds_write_b128 v9, v[{GACC+4*j}:{GACC+4*j+3}] offset:{C_RED + 512*j}")
    a("s_mov_b64 exec, -1")
    a("s_waitcnt lgkmcnt(0)", "s_barrier")
    stamp2(a, 2)
    for w in range(4):
        a(f"ds_read_b32 v{32+2*w}, v10 offset:{C_RED + 2048*w}")
        a(f"ds_read_b32 v{33+2*w}, v10 offset:{C_RED + 2048*w + 128}")
    a("s_waitcnt lgkmcnt(4)")
    a("v_pk_add_f32 v[32:33], v[32:33], v[34:35]")
    a("s_waitcnt lgkmcnt(0)")
    a("v_pk_add_f32 v[36:37], v[36:37], v[38:39]")
    a("v_pk_add_f32 v[32:33], v[32:33], v[36:37]")
    rnd2(a, 32)
    a(f"v_mul_f32 v34, {f32(-LOG2E)}, v32", "v_exp_f32 v34, v34", "v_add_f32 v34, 1.0, v34", "v_rcp_f32 v34, v34", "v_mul_f32 v34, v32, v34")
    a(f"v_cvt_pk_bf16_f32 v34, 0, v34")
    a("v_mul_f32 v34, v34, v33", "v_cvt_pk_bf16_f32 v34, v34, v34")
    a(f"ds_write_b16 v11, v34 offset:{C_ACT}")
    a("s_waitcnt lgkmcnt(0)")
    a("s_barrier")
    a("s_branch KS_PEND" if PB else "s_branch KS_P2")
    if not PB:
        a("KS_P:")
        if DE: a("s_branch KS_P1")
        srd(a, R1, P_DOWN, F * D * 2)
        a(f"s_sub_u32 s{T2_}, s{S_WAVE}, 10", "v_lshlrev_b32 v6, 4, v1", f"s_mul_i32 s{T0_}, s{S_BLK}, 36864", f"s_mul_i32 s{T1_}, s{T2_}, 18432", f"s_add_u32 s{T0_}, s{T0_}, s{T1_}", f"s_add_u32 s{T1_}, s{T1_}, {C_DOWN}")
        a(f"s_lshl_b32 s{T2_}, s{T2_}, 1", f"v_mov_b32 v7, s{T2_}", f"v_mov_b32 v8, s{S_ONES}")
        TR[7] = (FL_GISS, "b4")
        if DT: lds_wait(a, TR[DT][0], 10, TR[DT][1], sleep=2)
        a("s_setprio 1")
        stamp2(a, 1)
        for k in range(18):
            if k % 4 == 0:
                a(f"s_add_u32 m0, s{T1_}, {1024*k}")
                if k: a(f"s_add_u32 s{T0_}, s{T0_}, 4096")
            a(f"buffer_load_dwordx4 v6, s[{R1}:{R1+3}], s{T0_} offen offset:{1024*(k&3)} {MOD('DM', 'nt')} lds")
        a("s_waitcnt vmcnt(0)")
        stamp2(a, 2)
        a(f"ds_write_b16 v7, v8 offset:{FL_DOWN}")
        a("KS_P1:")
        a("s_setprio 0")
        PW = ENV("PW", 0)
        if PW:
            srd(a, R0, P_WS, PART_BYTES, WS_PART)
            a("v_and_b32 v14, 3, v1", "v_lshlrev_b32 v14, 2, v14", f"ds_read_b32 v24, v14 offset:{FL_NONCE}", "v_lshlrev_b32 v17, 4, v1")
            a(f"s_mul_i32 s{T0_}, s{S_BLK}, {PROW}", f"s_sub_u32 s{T1_}, s{S_WAVE}, 10", f"s_mul_i32 s{T1_}, s{T1_}, 9216", f"s_add_u32 s{T0_}, s{T0_}, s{T1_}")
            if PW in TR: lds_wait(a, TR[PW][0], 10, TR[PW][1], sleep=2)
            a("s_waitcnt lgkmcnt(0)", "v_not_b32 v24, v24", "v_mov_b32 v25, v24", "v_mov_b32 v26, v24", "v_mov_b32 v27, v24")
            for k in range(9):
                if k in (4, 8): a(f"s_add_u32 s{T0_}, s{T0_}, 4096")
                a(f"buffer_store_dwordx4 v[24:27], v17, s[{R0}:{R0+3}], s{T0_} offen offset:{1024*(k&3)} {MOD('PWM')}")
            a("s_waitcnt vmcnt(0)")
        a("s_waitcnt lgkmcnt(0)")
        a("s_barrier")
        a("s_barrier")
        a("s_setprio 2")
        a("KS_P2:")
        a(f"s_sub_u32 s{S_G}, s{S_WAVE}, 10")
        srd(a, R0, P_WS, PART_BYTES, WS_PART)
        srd(a, R1, P_OUT, XBYTES)
        a("v_lshrrev_b32 v8, 3, v1", f"v_mul_u32_u24 v8, {PROW}, v8", "v_and_b32 v9, 7, v1", "v_lshl_add_u32 v8, v9, 4, v8")
        a(f"s_mul_i32 s{T0_}, s{S_G}, {24*PROW}", f"s_lshl_b32 s{T1_}, s{S_BLK}, 7", f"s_add_u32 s{T0_}, s{T0_}, s{T1_}", f"s_add_u32 s{T1_}, s{T0_}, {8*PROW}", f"s_add_u32 s{T2_}, s{T0_}, {16*PROW}")
        if XH == 1:
            a("v_lshrrev_b32 v8, 2, v1", f"v_mul_u32_u24 v8, {PROW}, v8", "v_and_b32 v10, 3, v1", "v_lshl_add_u32 v8, v10, 4, v8")
            a(f"s_mul_i32 s{T0_}, s{S_G}, {24*PROW}", f"s_lshl_b32 s{T1_}, s{S_BLK}, 6", f"s_add_u32 s{T0_}, s{T0_}, s{T1_}", f"s_add_u32 s{T1_}, s{T0_}, {8*PROW}", f"s_add_u32 s{T2_}, s{T0_}, {8*PROW}")
        a(f"s_lshl_b32 s{T3_}, s{S_G}, 7", f"v_lshl_add_u32 v6, v9, 4, s{T3_}", "v_lshl_add_u32 v6, v3, 2, v6")
        a(f"v_lshlrev_b32 v12, 2, v1", f"v_add_u32 v12, {C_RED2}, v12", "v_lshlrev_b32 v13, 4, v1")
        if PTAG:
            a("v_and_b32 v14, 12, v12", f"ds_read_b32 v24, v14 offset:{FL_NONCE}", "s_waitcnt lgkmcnt(0)")
            for d in range(1, 4): a(f"v_lshrrev_b32 v{24+d}, {8*d}, v24")
        a("s_barrier")
        if PE > 0: a(f"s_sleep {PE}")
        stamp2(a, 3)
        if PTAG:
            lp = newlabel("PP"); l1 = newlabel("PPE")
            a(f"s_branch {l1}", f"{lp}:", "s_sleep 1", f"{l1}:")
            NP_ = 2 if XH else 3
            for k in range(NP_): a(f"buffer_load_dwordx4 v[{32+4*k}:{35+4*k}], v8, s[{R0}:{R0+3}], s{T0_+k} offen sc1")
            guard(a)
            for k in range(NP_):
                a(f"s_waitcnt vmcnt({NP_-1-k})")
                for d in range(4):
                    t = 44 + (d & 1)
                    a(f"v_xor_b32 v{t}, v{24+d}, v{32+d}" if k == 0 and d < 2 else f"v_bitop3_b32 v{t}, v{t}, v{24+d}, v{32+4*k+d} bitop3:0xf6")
            a("v_or_b32 v44, v44, v45", "v_and_b32 v44, 0xff, v44", "v_cmp_ne_u32 vcc, 0, v44", f"s_cbranch_vccnz {lp}")
        else: zpoll(a, [f"buffer_load_dwordx4 v[{32+4*k}:{35+4*k}], v8, s[{R0}:{R0+3}], s{T0_+k} offen sc1" for k in range(3)], list(range(32, 44)), 1)
        stamp2(a, 4)
        a("v_pk_add_f32 v[32:33], v[32:33], v[36:37]", "v_pk_add_f32 v[34:35], v[34:35], v[38:39]")
        a("v_pk_add_f32 v[32:33], v[32:33], v[40:41]", "v_pk_add_f32 v[34:35], v[34:35], v[42:43]")
        for r in range(4): a(f"v_add_f32_dpp v{32+r}, v{32+r}, v{32+r} row_ror:8 {DPPM}")
        a("v_permlane16_swap_b32 v32, v33", "v_permlane16_swap_b32 v34, v35")
        a("v_add_f32 v32, v32, v33", "v_add_f32 v34, v34, v35")
        a("v_permlane32_swap_b32 v32, v34")
        a("v_add_f32 v32, v32, v34")
        a(f"ds_write_b32 v6, v32 offset:{C_RED2}")
        a("s_waitcnt lgkmcnt(0)", "s_barrier")
        a(f"s_cmp_lg_u32 s{S_G}, 0", "s_cbranch_scc1 KS_PEND")
        a("s_mov_b32 exec_lo, -1", "s_mov_b32 exec_hi, 0")
        for g in range(3):
            a(f"ds_read2_b32 v[{32+2*g}:{33+2*g}], v12 offset0:{64*g} offset1:{64*g + 32}")
        a(f"ds_read_b128 v[40:43], v13 offset:{C_SIDE}")
        a("s_waitcnt lgkmcnt(0)")
        a("v_pk_add_f32 v[32:33], v[32:33], v[34:35]", "v_pk_add_f32 v[32:33], v[32:33], v[36:37]", "v_add_f32 v8, v32, v33")
        a(f"v_cvt_pk_bf16_f32 v8, 0, v8")
        a("v_mul_f32 v8, v8, v42", f"v_cvt_pk_bf16_f32 v8, 0, v8")
        a("v_add_f32 v8, v8, v40", f"v_cvt_pk_bf16_f32 v8, 0, v8")
        a("v_add_f32 v8, v8, v41", "v_cvt_pk_bf16_f32 v8, v8, v8")
        a(f"buffer_store_short v8, v43, s[{R1}:{R1+3}], 0 offen {MOD('FM', '')}")
    a("KS_PEND:")
    stamp_end(a)
    spin_end(a)
    a("KS_ABORT:")
    a("KS_END:")
    a("s_endpgm")
    return f""".amdhsa_kernel {label}
  .amdhsa_next_free_vgpr 128
  .amdhsa_next_free_sgpr {NSGPR}
  .amdhsa_accum_offset 128
  .amdhsa_group_segment_fixed_size 0
  .amdhsa_kernarg_size 136
  .amdhsa_user_sgpr_count 2
  .amdhsa_user_sgpr_kernarg_segment_ptr 1
  .amdhsa_system_sgpr_workgroup_id_x 1
  .amdhsa_float_denorm_mode_32 3
.end_amdhsa_kernel
"""

def main():
    hdr = open(f"/code/{NAME}.s.ref").read().split("; Override launch geometry")[0]
    out = hdr
    out += f"; @launch grid=(256,1,1) block=(1024,1,1) lds={LDS_BYTES}\n"
    out += '.amdgcn_target "amdgcn-amd-amdhsa--gfx950"\n.text\n'
    a = Asm()
    d = gen(a)
    out += a.text()
    out += '.section .rodata,"a"\n.p2align 6\n' + d
    path = sys.argv[1] if len(sys.argv) > 1 else "ks.s"
    open(path, "w").write(out)
    print("wrote", path, len(out))

if __name__ == "__main__":
    main()
```

```python
import sys, struct, math, os
sys.path.insert(0, "gen")
from asmlib import Asm

NAME = "sequential_preLN__ssm_conv_s4__moe_arch_mod__prompt"
L, D, N, F = 2048, 576, 128, 4608
XBYTES = L * D * 2
WS_UT = 0x000000
WS_X2 = 0x3C0000
WS_ZB1 = 0x600000
WS_ZB2 = 0x800000
WS_KEYS = 0x840000
WS_PART = 0x850000
WS_CLR, CLR_WG = 0x600000, 18560
CLRP_WG = 23744
WS_FLAG1 = 0xB00000
TAGM = 0x00070007
WS_IDX = 0xB10000
WS_KT = 0xB20000
WS_DBG = 0xC00000
WS_MARK = 0xB80000
XCL = int(os.environ.get("XCL", "2"))
if XCL == 1: WS_CLR, CLR_WG = WS_X2, 36992
if XCL == 2: WS_X2 = WS_UT
NOCLR = int(os.environ.get("NOCLR", "0"))
if NOCLR == 1: WS_CLR, CLR_WG = WS_ZB2, 2176
if NOCLR >= 2: WS_CLR = WS_ZB2
if NOCLR == 2: WS_PART = 0x1000000
PB = int(os.environ.get("PB", "1"))
PCT = int(os.environ.get("PCT", "4"))
if PB and not PCT: WS_PART, CLR_WG = 0x843000, 29040
WSB = int(os.environ.get("WSB", "0")) << 20
WS_UT += WSB; WS_X2 += WSB; WS_ZB1 += WSB; WS_ZB2 += WSB; WS_KEYS += WSB; WS_PART += WSB; WS_CLR += WSB; WS_FLAG1 += WSB; WS_IDX += WSB; WS_KT += WSB
WS_STAMP = 0x8000000
PART_BYTES = 144 * (4608 * (2 if PB else 4) + 128)
C_FL, C_CAND, C_SEL, C_KEY, C_PAR, C_ACT, C_SIDE, C_RED2 = 0, 256, 768, 800, 832, 1024, 1536, 2048
C_U, U_SIZE = 3072, 4672
C_LNB = C_U + 3 * U_SIZE
C_XR = C_LNB
C_RED = C_LNB + 9280
G_BASE, G_SIZE = 35840, 36672
C_STG = G_BASE + 2 * G_SIZE + 36864
LDS_BYTES = C_STG + 8192
FL_LN1, FL_LNACK, FL_KCNT, FL_UF, FL_ZF, FL_KACK, FL_ROWSOK, FL_XRDY, FL_PARAM, FL_DOWN, FL_ZDONE = 0, 8, 12, 16, 20, 24, 28, 32, 36, 40, 48
FL_G = 64
FL_S6 = 128
FL_ZISS = 240
FL_F2CNT, FL_INIT, FL_CLROK, FL_GISS, FL_KSEEN, FL_UTOK, FL_PRE, FL_NONCE = 176, 180, 188, 192, 196, 200, 208, 224
KG_ROW = 544
KG_T = [0, 16 * KG_ROW, 32 * KG_ROW, 41 * KG_ROW]
R_WS3 = 0
R_WS5 = R_WS3 + 193 * 16
R_WS7 = R_WS5 + 193 * 16
R_WS9 = R_WS7 + 128 * 16
R_RED = 10752
R2 = 31232
T_TAB = R2
T_DRE = R2 + 1296
T_DRO = T_DRE + 1280 + 64
T_G3 = T_DRO + 1280
T_G5 = T_G3 + 256
T_G7E = T_G5 + 256
T_G7O = T_G7E + 192
T_G9E = T_G7O + 192
T_G9O = T_G9E + 192
assert T_G9O + 192 <= G_SIZE and R_WS9 + 129 * 16 <= R_RED and R_RED + 13 * 1024 <= R2 and 57 * KG_ROW <= R2
IDX_ZERO, IDX_DUMMY = 641, 642
C_DOWN = G_BASE + 2 * G_SIZE
C_GU = G_BASE - 512
assert C_GU + 2 * 36864 <= C_DOWN and C_RED + 2560 <= C_GU
FL_BAD = FL_KACK

def f32(x): return "0x%08x" % struct.unpack("<I", struct.pack("<f", x))[0]
def f32v(x): return struct.unpack("<f", struct.pack("<f", x))[0]
LOG2E = math.log2(math.e)
LOG2E_HI = f32v(LOG2E); LOG2E_LO = LOG2E - LOG2E_HI
INV2PI = 1.0 / (2 * math.pi)
INV2PI_HI = f32v(INV2PI); INV2PI_LO = INV2PI - INV2PI_HI
DPPM = "row_mask:0xf bank_mask:0xf"
ENV = lambda k, d: int(os.environ.get(k, str(d)))
STAMP = ENV("STAMP", 0)
DBG = ENV("DBG", 0)
GUARD = 1 << 19
XP = ENV("XP", 0)
KOFF = ENV("KOFF", 1)
PTAG = ENV("PTAG", 1)
PE = ENV("PE", 13)
SN = ENV("SN", 0)
UL = ENV("UL", 0)
GM_ = ENV("GM", 0)
L2G = ENV("L2G", 0)
XT = ENV("XT", 0)
F3 = ENV("F3", 1)
BT = ENV("BT", 0)
TQ = ENV("TQ", 1)
ZM = ENV("ZM", 0)
DR = ENV("DR", 0)
DL = ENV("DL", 0)
XH = ENV("XH", 0)
KD = ENV("KD", 2)
RP = ENV("RP", 0)
XW = ENV("XW", 0)
WBYTES = 0 if ENV("XW2", 0) else D * F * 2
SWU = ENV("SWU", 1); SWZ = ENV("SWZ", 1); PROW = (9216 if PB else 18432) + 128 * ENV("SWP", 1)
MOD = lambda k, d="sc1": os.environ.get(k, d).replace("_", " ")

P_X, P_ARE, P_LDT, P_DSK, P_WR, P_GATE, P_UP, P_DOWN, P_OUT, P_DBG, P_WS = 4, 6, 18, 20, 24, 26, 28, 30, 32, 34, 36
S_WAVE, S_GUARD, S_XC, S_I = 38, 39, 40, 41
R0, R1, R2_, R3, R4 = 64, 68, 72, 76, 80
S_ONES, S_GB, S_ROLE, S_G, S_CH, S_BLK, S_B2 = 84, 85, 86, 87, 88, 89, 90
RM = ENV("RM", 0)
S_FI = 91 if RM else S_I
T0_, T1_, T2_, T3_, T4_, T5_ = 92, 93, 94, 95, 96, 97
SP0, SP1 = 98, 99
NSGPR = 100

def srd(a, d, base, nbytes, off=0):
    if off:
        a(f"s_add_u32 s{d}, s{base}, {hex(off)}", f"s_addc_u32 s{d+1}, s{base+1}, 0")
    else:
        a(f"s_mov_b32 s{d}, s{base}", f"s_mov_b32 s{d+1}, s{base+1}")
    a(f"s_mov_b32 s{d+2}, {hex(nbytes)}", f"s_mov_b32 s{d+3}, 0x20000")

def red16(a, op, v):
    for r in (8, 4, 2, 1):
        a(f"{op}_dpp v{v}, v{v}, v{v} row_ror:{r} {DPPM}")
def red32(a, op, v, t):
    red16(a, op, v)
    a(f"v_mov_b32 v{t}, v{v}", f"v_permlane16_swap_b32 v{v}, v{t}", f"{op} v{v}, v{v}, v{t}")
def red64x2(a, op1, v1, t1, op2, v2, t2):
    for r in (8, 4, 2, 1):
        a(f"{op1}_dpp v{v1}, v{v1}, v{v1} row_ror:{r} {DPPM}", f"{op2}_dpp v{v2}, v{v2}, v{v2} row_ror:{r} {DPPM}")
    for ins in ("v_permlane16_swap_b32", "v_permlane32_swap_b32"):
        a(f"v_mov_b32 v{t1}, v{v1}", f"v_mov_b32 v{t2}, v{v2}", f"{ins} v{v1}, v{t1}", f"{ins} v{v2}, v{t2}")
        a(f"{op1} v{v1}, v{v1}, v{t1}", f"{op2} v{v2}, v{v2}, v{t2}")

SPIN = eval(os.environ.get("SPIN", "None"))
def spin_rec(a, ph, i):
    if not SPIN or SPIN[1:] != (ph, i): return
    a("s_memrealtime s[46:47]")
def spin_end(a):
    if not SPIN: return
    lo, hi = eval(os.environ.get("SPINI", "(0,32)"))
    a("KS_SPIN:")
    if SPIN[2] == 9: a("s_memrealtime s[46:47]")
    a(f"s_sub_u32 s48, s{S_I}, {lo}", f"s_cmp_ge_u32 s48, {hi-lo}", "s_cbranch_scc1 KS_END")
    a(f"s_lshr_b32 s48, {hex(SPIN[0])}, s{S_WAVE}", "s_bitcmp1_b32 s48, 0", "s_cbranch_scc0 KS_END")
    a("s_mov_b64 exec, -1", "v_mov_b32 v4, 0")
    a("KS_SP0:")
    a(f"global_load_dword v8, v4, s[{P_DBG}:{P_DBG+1}] offset:64 sc1", "s_waitcnt vmcnt(0) lgkmcnt(0)", "v_readfirstlane_b32 s44, v8", "s_cmp_eq_u32 s44, 0", "s_cbranch_scc1 KS_SP0")
    if SPIN[2] == -1: a("s_mov_b32 s46, s44")
    a("s_sub_u32 s48, s46, s44", "s_add_u32 s48, s48, 200")
    if ENV("SPINMIN", 0): a(f"s_sub_u32 s48, {ENV('SPINMIN', 0)}, s48")
    a("s_min_u32 s48, s48, 3000", "s_lshl_b32 s48, s48, 2", "s_add_u32 s48, s48, 2000")
    a("SPINL:", "s_sleep 1", "s_memrealtime s[50:51]", "s_waitcnt lgkmcnt(0)", "s_sub_u32 s50, s50, s44", "s_cmp_lt_u32 s50, s48", "s_cbranch_scc1 SPINL")
def stamp_begin(a):
    if SPIN: a("s_memrealtime s[46:47]")
    if not STAMP: return
    a("s_memrealtime s[44:45]")
    for i in range(1, 9): a(f"s_mov_b32 s{44+2*i}, 0")
def cstamp(a, i):
    if STAMP == 9: a(f"s_memtime s[{44+2*i}:{45+2*i}]")
def kstamp(a, i):
    if STAMP == 7: a(f"s_memtime s[{44+2*i}:{45+2*i}]")
def stamp(a, i, ph=1):
    spin_rec(a, ph, i)
    if ph == 2 and STAMP not in (2, 3): return
    if STAMP == 7 and i == 1: return kstamp(a, 1)
    if not STAMP or STAMP in (6, 7, 9): return
    assert 1 <= i <= 8
    a(f"{'s_memtime' if STAMP == 8 else 's_memrealtime'} s[{44+2*i}:{45+2*i}]")
def lstamp(a, i):
    if STAMP == 6: a(f"s_memrealtime s[{44+2*i}:{45+2*i}]")
def stamp2(a, i):
    stamp(a, i, 2)
def stamp_end(a):
    if not STAMP: return
    a("s_waitcnt vmcnt(0) lgkmcnt(0)")
    a("s_memrealtime s[62:63]")
    a(f"s_lshl_b32 s43, s2, 4", f"s_add_u32 s43, s43, s{S_WAVE}", "s_lshl_b32 s43, s43, 6", f"s_add_u32 s43, s43, {hex(WS_STAMP)}")
    a("s_mov_b64 exec, 1")
    a("s_waitcnt lgkmcnt(0)")
    a("v_mov_b32 v1, s43")
    for i in range(10): a(f"v_mov_b32 v{4+i}, s{44+2*i}")
    a(f"global_store_dwordx4 v1, v[4:7], s[{P_WS}:{P_WS+1}]")
    a(f"global_store_dwordx4 v1, v[8:11], s[{P_WS}:{P_WS+1}] offset:16")
    a(f"global_store_dwordx2 v1, v[12:13], s[{P_WS}:{P_WS+1}] offset:32")
def endwave(a):
    stamp_end(a)
    a("s_branch KS_SPIN" if SPIN else "s_endpgm")

def unpack(a, dst, src):
    a(f"v_lshlrev_b32 v{dst}, 16, v{src}", f"v_and_b32 v{dst+1}, 0xffff0000, v{src}")

def rnd2(a, t):
    a(f"v_cvt_pk_bf16_f32 v{t}, 0, v{t}", f"v_cvt_pk_bf16_f32 v{t+1}, 0, v{t+1}")

def ln_stats(a, X, m2, rinv2, t0, t1, t2):
    a(f"v_pk_add_f32 v[{t0}:{t0+1}], v[{X}:{X+1}], v[{X+2}:{X+3}]")
    a(f"v_pk_add_f32 v[{t1}:{t1+1}], v[{X+4}:{X+5}], v[{X+6}:{X+7}]")
    for j in range(4, 9):
        t = t0 if j % 2 == 0 else t1
        a(f"v_pk_add_f32 v[{t}:{t+1}], v[{t}:{t+1}], v[{X+2*j}:{X+2*j+1}]")
    a(f"v_pk_add_f32 v[{t0}:{t0+1}], v[{t0}:{t0+1}], v[{t1}:{t1+1}]")
    a(f"v_add_f32 v{t0}, v{t0}, v{t0+1}")
    red32(a, "v_add_f32", t0, t1)
    a(f"v_mul_f32 v{t2}, {f32(1.0/576)}, v{t0}")
    a(f"v_mov_b32 v{t2+1}, v{t2}")
    a(f"v_cvt_pk_bf16_f32 v{m2}, 0, v{t2}", f"v_cvt_pk_bf16_f32 v{m2+1}, 0, v{t2}")
    first = {t0: True, t1: True}
    for j in range(9):
        t = t0 if j % 2 == 0 else t1
        a(f"v_pk_add_f32 v[{rinv2}:{rinv2+1}], v[{X+2*j}:{X+2*j+1}], v[{t2}:{t2+1}] neg_lo:[0,1] neg_hi:[0,1]")
        if first[t]:
            a(f"v_pk_mul_f32 v[{t}:{t+1}], v[{rinv2}:{rinv2+1}], v[{rinv2}:{rinv2+1}]"); first[t] = False
        else:
            a(f"v_pk_fma_f32 v[{t}:{t+1}], v[{rinv2}:{rinv2+1}], v[{rinv2}:{rinv2+1}], v[{t}:{t+1}]")
    a(f"v_pk_add_f32 v[{t0}:{t0+1}], v[{t0}:{t0+1}], v[{t1}:{t1+1}]")
    a(f"v_add_f32 v{t0}, v{t0}, v{t0+1}")
    red32(a, "v_add_f32", t0, t1)
    a(f"v_mul_f32 v{t0}, {f32(1.0/576)}, v{t0}")
    a(f"v_cvt_pk_bf16_f32 v{t0}, 0, v{t0}")
    a(f"v_add_f32 v{t0}, {f32(1e-5)}, v{t0}")
    a(f"v_cvt_pk_bf16_f32 v{t0}, 0, v{t0}")
    a(f"v_sqrt_f32 v{t0}, v{t0}")
    a(f"v_cvt_pk_bf16_f32 v{t0}, 0, v{t0}")
    a(f"v_rcp_f32 v{rinv2}, v{t0}")
    a(f"v_mov_b32 v{rinv2+1}, v{rinv2}")

def ln_apply_pair(a, x, m2, rinv2, t, P):
    a(f"v_pk_add_f32 v[{t}:{t+1}], v[{x}:{x+1}], v[{m2}:{m2+1}] neg_lo:[0,1] neg_hi:[0,1]")
    rnd2(a, t)
    a(f"v_pk_mul_f32 v[{t}:{t+1}], v[{t}:{t+1}], v[{rinv2}:{rinv2+1}]")
    if P is not None: a(f"v_cvt_pk_bf16_f32 v{P}, v{t}, v{t+1}")
    rnd2(a, t)

VZ, VONE = 4, 5
_lbl = [0]
def newlabel(p="L"):
    _lbl[0] += 1
    return f"{p}_{_lbl[0]}"
def guard(a):
    a(f"s_sub_u32 s{S_GUARD}, s{S_GUARD}, 1", "s_cbranch_scc1 KS_ABORT")
def lds_wait(a, off, t, kind="b4", addr=VZ, sleep=0):
    l = newlabel("W")
    a(f"{l}:")
    if sleep: a(f"s_sleep {sleep}")
    if kind == "b8":
        a(f"ds_read_b64 v[{t}:{t+1}], v{addr} offset:{off}")
    else:
        a(f"ds_read_{'u8' if kind == 'u8' else 'b32'} v{t}, v{addr} offset:{off}")
    guard(a)
    a("s_waitcnt lgkmcnt(0)")
    if kind == "b8": a(f"v_and_b32 v{t}, v{t}, v{t+1}")
    if kind in ("nz", "u8"): a(f"v_cmp_eq_u32 vcc, 0, v{t}")
    else: a(f"v_cmp_ne_u32 vcc, s{S_ONES}, v{t}")
    a(f"s_cbranch_vccnz {l}")

def zpoll(a, loads, regs, sleep, mid=None):
    lp = newlabel("ZP"); l1 = newlabel("ZPE")
    if mid:
        for l in loads: a(l)
        a(mid)
    a(f"s_branch {l1}")
    a(f"{lp}:")
    a(f"s_sleep {sleep}")
    if not mid: a(f"{l1}:")
    for l in loads: a(l)
    if mid: a(f"{l1}:")
    guard(a)
    a("s_waitcnt vmcnt(0)")
    a(f"v_max3_u32 v44, v{regs[0]}, v{regs[1]}, v{regs[2]}")
    r = regs[3:]
    while len(r) >= 2: a(f"v_max3_u32 v44, v44, v{r[0]}, v{r[1]}"); r = r[2:]
    if r: a(f"v_max_u32 v44, v44, v{r[0]}")
    a("v_cmp_eq_u32 vcc, -1, v44", f"s_cbranch_vccnz {lp}")

class Pool:
    def __init__(self, regs): self.free = list(regs)
    def get(self): return self.free.pop(0)
    def put(self, r): self.free.append(r)
def ce_inlane(a, x, i, j, pool):
    t = pool.get()
    a(f"v_max_u32 v{t}, v{x[i]}, v{x[j]}", f"v_min_u32 v{x[j]}, v{x[i]}, v{x[j]}")
    pool.put(x[i]); x[i] = t
def clean8(a, x, pool, DE, rev=False):
    t = [pool.get() for _ in range(4)]
    for i in range(4):
        a(f"v_mov_b32_dpp v{t[i]}, v{x[3-i if rev else i]} quad_perm:[1,0,3,2] {DPPM}")
    for i in range(4):
        a(f"v_med3_u32 v{t[i]}, v{x[i]}, v{t[i]}, v{DE}")
    for i in range(4): pool.put(x[i]); x[i] = t[i]
    for (i, j) in ((0, 2), (1, 3), (0, 1), (2, 3)): ce_inlane(a, x, i, j, pool)
def merge_mirror(a, x, pool, M):
    c = [pool.get() for _ in range(4)]
    for i in range(4):
        a(f"v_max_u32_dpp v{c[i]}, v{x[3-i]}, v{x[i]} {M} {DPPM}")
    for i in range(4): pool.put(x[i]); x[i] = c[i]
def merge_pair(a, x, y, pool):
    for i in range(4):
        a(f"v_max_u32_dpp v{x[i]}, v{y[3-i]}, v{x[i]} quad_perm:[1,0,3,2] {DPPM}")
    for i in range(4): pool.put(y[i])
MIRRORS = ("quad_perm:[3,2,1,0]", "row_half_mirror", "row_mirror")
def level2(a, ad, base, de, dst, m0, m1, st=None):
    l = newlabel("L2P")
    a(f"{l}:")
    a(f"ds_read_b128 v[{base}:{base+3}], v{ad} offset:{C_CAND}")
    a(f"ds_read_b128 v[{base+4}:{base+7}], v{ad} offset:{C_CAND + 256}")
    guard(a)
    a("s_waitcnt lgkmcnt(0)")
    a(f"v_min_u32 v{base+8}, v{base}, v{base+4}", f"v_cmp_eq_u32 vcc, 0, v{base+8}")
    a(f"s_cbranch_vccnz {l}")
    if st: st()
    pool = Pool(range(base + 8, base + 20))
    x = list(range(base, base + 4)); y = list(range(base + 4, base + 8))
    merge_pair(a, x, y, pool); clean8(a, x, pool, de)
    for li, M in enumerate(MIRRORS):
        merge_mirror(a, x, pool, M)
        if li < 2: clean8(a, x, pool, de)
    t = pool.get()
    a(f"v_cndmask_b32 v{dst}, v{x[0]}, v{x[1]}, s[{m0}:{m0+1}]", f"v_cndmask_b32 v{t}, v{x[2]}, v{x[3]}, s[{m0}:{m0+1}]", f"v_cndmask_b32 v{dst}, v{dst}, v{t}, s[{m1}:{m1+1}]")
    a(f"v_mov_b32_dpp v{dst}, v{dst} row_shr:8 row_mask:0xf bank_mask:0xc")

def top2(a, K, A1, A2, B1, B2, TA, TB, X0, X1, wait):
    for j in range(8):
        k = K + 4 * j
        if j == 7: a(f"v_max_u32 v{A2}, v{A2}, v{B2}")
        if wait: a(f"s_waitcnt vmcnt({7-j})")
        if j == 0:
            a(f"v_max_u32 v{A1}, v{k}, v{k+1}", f"v_max_u32 v{B1}, v{k+2}, v{k+3}", f"v_min_u32 v{A2}, v{k}, v{k+1}", f"v_min_u32 v{B2}, v{k+2}, v{k+3}")
            continue
        a(f"v_med3_u32 v{TA}, v{A1}, v{k}, v{k+1}", f"v_med3_u32 v{TB}, v{B1}, v{k+2}, v{k+3}")
        a(f"v_max3_u32 v{A1}, v{A1}, v{k}, v{k+1}", f"v_max3_u32 v{B1}, v{B1}, v{k+2}, v{k+3}")
        if j < 7: a(f"v_max_u32 v{A2}, v{A2}, v{TA}", f"v_max_u32 v{B2}, v{B2}, v{TB}")
    a(f"v_max3_u32 v{A2}, v{A2}, v{TA}, v{TB}", f"v_max_u32 v{X0}, v{A1}, v{B1}", f"v_med3_u32 v{X1}, v{A1}, v{B1}, v{A2}")
def net8(a, x, y, w, t, C, mid=None):
    HM, MI, R8 = "row_half_mirror", "row_mirror", "row_ror:8"
    def xst(d, s, M, mx, cross):
        for op, bm in (("max", mx), ("min", mx ^ 15)):
            for i in range(2): a(f"v_{op}_u32_dpp v{d[i]}, v{s[i ^ cross]}, v{s[i]} {M} row_mask:0xf bank_mask:{hex(bm)} ; nodst")
    def inl(d, s, cp=None):
        if cp: a(f"v_max_u32 v{d[0]}, v{s[0]}, v{s[1]}", f"v_max_u32 v{cp[0]}, v{s[0]}, v{s[1]}", f"v_min_u32 v{d[1]}, v{s[0]}, v{s[1]}", f"v_min_u32 v{cp[1]}, v{s[0]}, v{s[1]}")
        else: a(f"v_min_u32 v{d[1]}, v{s[0]}, v{s[1]}", f"v_max_u32 v{d[0]}, v{s[0]}, v{s[1]}")
    xst(y, x, HM, 5, 1)
    if mid: mid()
    inl(w, y)
    xst(y, w, MI, 3, 1); xst(w, y, HM, 5, 0); inl(x, w, t)
    for lv in range(3):
        if lv < 2:
            for i in range(2): a(f"v_permlane{32 >> lv}_swap_b32 v{x[i]}, v{t[i]}")
            M = MI
            for i in (1, 0): a(f"v_max_u32_dpp v{y[i]}, v{t[1-i]}, v{x[i]} {M} {DPPM} ; nodst")
        else:
            for i in (1, 0): a(f"v_mov_b32_dpp v{t[i]}, v{x[i]} {MI} {DPPM} ; nodst")
            M = "quad_perm:[1,0,3,2]"
            for i in (0, 1): a(f"v_max_u32_dpp v{y[i]}, v{t[1-i]}, v{x[i]} {M} {DPPM} ; nodst")
        xst(w, y, R8, 3, 0); xst(y, w, HM, 5, 0); inl(x, y, t if lv == 0 else None)
    a(f"v_mov_b32_dpp v{t[1]}, v{x[1]} {MI} {DPPM} ; nodst")
    a(f"v_max_u32_dpp v{C}, v{t[1]}, v{x[0]} quad_perm:[2,3,0,1] {DPPM} ; nodst")

GW = 48
def g_addr_setup(a, A):
    a(f"s_sub_u32 s{S_G}, s{S_WAVE}, 12")
    a(f"s_mul_i32 s{T0_}, s{S_G}, 9", f"s_add_u32 s{T0_}, s{T0_}, 1", f"s_lshr_b32 s{S_ROLE}, s{T0_}, 1")
    a(f"s_lshl_b32 s{T0_}, s{S_ROLE}, 5", f"v_lshl_add_u32 v7, v3, 3, s{T0_}", "v_mul_u32_u24 v7, 9216, v7")
    a("v_and_b32 v6, 7, v2", "v_lshl_add_u32 v7, v6, 3, v7")
    a(f"s_lshl_b32 s{T0_}, s{S_BLK}, 6", f"v_add_u32 v7, s{T0_}, v7")
    a("v_cmp_gt_u32 vcc, 8, v2")
    a(f"s_mov_b32 s{R3}, 9216", f"s_mov_b32 s{R3+1}, 0", f"s_mov_b32 s{R3+2}, {9216*25}", f"s_mov_b32 s{R3+3}, 0")
    a(f"v_mov_b32 v{A}, s{P_GATE}", f"v_mov_b32 v{A+1}, s{P_GATE+1}", f"v_mov_b32 v6, s{P_UP}")
    a(f"v_cndmask_b32 v{A}, v6, v{A}, vcc", f"v_mov_b32 v6, s{P_UP+1}", f"v_cndmask_b32 v{A+1}, v6, v{A+1}, vcc")
    a(f"v_add_co_u32 v{A}, vcc, v{A}, v7", f"v_addc_co_u32 v{A+1}, vcc, 0, v{A+1}, vcc")
def g_loads(a, A, kss, mod=""):
    if XW: return
    for ks in kss:
        for r in range(8):
            d = GW + 16 * ks + 2 * r
            gp = ENV("GPACE", 0)
            if gp and mod: a(f"s_waitcnt vmcnt({gp - 1})")
            a(f"global_load_dwordx2 v[{d}:{d+1}], v[{A}:{A+1}], off" + mod)
            if not (ks == 4 and r == 7):
                a(f"v_lshl_add_u64 v[{A}:{A+1}], v[{A}:{A+1}], 0, s[{R3 if r < 7 else R3+2}:{R3+1 if r < 7 else R3+3}]")
GTRIG = ENV("GTRIG", 2)
PF = ENV("PF", 1)
NL, NN, NC = ENV("NL", 0), ENV("NN", 0), ENV("NC", 4)
NE = ENV("NE", 0)
NLL = ENV("NLL", 0)
NL2 = ENV("NL2", 4)
GE = ENV("GE", 0)
GSL = ENV("GSL", 5)
XPF = ENV("XPF", 1)
PFB = ENV("PFB", min(166, 2 * ((288 + 16 * GE) // 7)))
assert not (PFB and NL)
NL3 = ENV("NL3", 0)
assert not (NL3 and NE)
PFA = PFB + 16 * NL + 16 * NE + 6 * NL3
PF0 = PFA + 10 * NLL + 6 * NL2
PF1 = PF0 + 8 * NN + 8 * NC
assert PF1 <= 166
PF2 = ENV("PF2", 166); PFD = ENV("PFD", 0); PFD2 = ENV("PFD2", 0)
GT = eval(os.environ.get("GT", "[0,0,6,6]")); DT = ENV("DT", 3)
RDMA = ENV("RDMA", 1)
DEA = ENV("DEA", 1)
DE = ENV("DE", 1)
def pf_ld(a, dst, v, R):
    if XW: return
    for m in MOD("PFM", "nt;sc1").split(";"): a(f"buffer_load_dword v{dst}, v{v}, s[{R}:{R+3}], s{T4_} offen {m}")
def pf_lane(a, v, t):
    a(f"v_mul_u32_u24 v{v}, 57, v1", f"v_lshrrev_b32 v{v}, 9, v{v}", f"v_mul_u32_u24 v{t}, 9, v{v}", f"v_sub_u32 v{t}, v1, v{t}", f"v_mul_u32_u24 v{v}, 9216, v{v}", f"v_lshl_add_u32 v{v}, v{t}, 7, v{v}")
def pf_gu_setup(a, sidx, R=R2_, tb=T3_, tt=T4_):
    a(f"s_bitcmp1_b32 s{sidx}, 0", f"s_cselect_b32 s{R}, s{P_UP}, s{P_GATE}", f"s_cselect_b32 s{R+1}, s{P_UP+1}, s{P_GATE+1}")
    a(f"s_mov_b32 s{R+2}, {hex(WBYTES)}", f"s_mov_b32 s{R+3}, 0x20000")
    a(f"s_lshr_b32 s{tb}, s{sidx}, 1", f"s_mul_i32 s{tb}, s{tb}, {7*9216}", f"s_mul_i32 s{tt}, s{S_XC}, 1152", f"s_add_u32 s{tb}, s{tb}, s{tt}")
def pf_gu(a, v, sidx, nw, u0, u1, dst, done):
    assert u0 % 2 == 0 and nw % 2 == 0
    pf_gu_setup(a, sidx)
    k = 0
    while u0 + k * nw < u1:
        if u0 + (k + 1) * nw > u1: a(f"s_cmp_ge_u32 s{sidx}, {u1 - u0 - k*nw}", f"s_cbranch_scc1 {done}")
        a(f"s_add_u32 s{T4_}, s{T3_}, {(u0 + k*nw)//2*7*9216}")
        pf_ld(a, dst, v, R2_)
        k += 1
def pf_down(a, sidx, nw, u0, u1, v, dst, done, R=R2_):
    srd(a, R, P_DOWN, WBYTES)
    a(f"s_lshl_b32 s{T3_}, s{sidx}, 13", f"s_mul_i32 s{T4_}, s{S_XC}, {576*1152}", f"s_add_u32 s{T3_}, s{T3_}, s{T4_}", f"v_lshlrev_b32 v{v}, 7, v1")
    k = 0
    while u0 + k * nw < u1:
        if u0 + (k + 1) * nw > u1: a(f"s_cmp_ge_u32 s{sidx}, {u1 - u0 - k*nw}", f"s_cbranch_scc1 {done}")
        a(f"s_add_u32 s{T4_}, s{T3_}, {(u0 + k*nw)*8192}")
        pf_ld(a, dst, v, R)
        k += 1
def gen_ln1(a):
    LW, TB = T5_, S_CH
    X, RAW = 8, 26
    a(f"s_sub_u32 s{T0_}, s{S_I}, 8", f"s_and_b32 s{TB}, s{T0_}, 7", f"s_lshr_b32 s{T0_}, s{T0_}, 3", f"s_lshl_b32 s{T0_}, s{T0_}, 4", f"s_add_u32 s{TB}, s{TB}, s{T0_}")
    a(f"s_and_b32 s{T0_}, s{S_XC}, 1", f"s_lshl_b32 s{T0_}, s{T0_}, 3", f"s_add_u32 s{TB}, s{TB}, s{T0_}", f"s_lshr_b32 s{T0_}, s{S_XC}, 1", f"s_lshl_b32 s{T0_}, s{T0_}, 5", f"s_add_u32 s{TB}, s{TB}, s{T0_}")
    a("v_lshrrev_b32 v36, 5, v1", "v_and_b32 v37, 31, v1")
    a("v_mul_u32_u24 v38, 1152, v36", "v_lshl_add_u32 v39, v37, 2, v38", "v_lshl_add_u32 v38, v37, 4, v38")
    a(f"s_mul_i32 s{T1_}, s{TB}, 18432", f"s_mul_i32 s{T2_}, s{LW}, 2304", f"s_add_u32 s{T1_}, s{T1_}, s{T2_}")
    a("s_waitcnt lgkmcnt(0)")
    stamp(a, 1); lstamp(a, 1)
    srd(a, R0, P_X, XBYTES)
    a(f"buffer_load_dwordx4 v[{RAW}:{RAW+3}], v38, s[{R0}:{R0+3}], s{T1_} offen")
    a(f"buffer_load_dwordx4 v[{RAW+4}:{RAW+7}], v38, s[{R0}:{R0+3}], s{T1_} offen offset:512")
    a(f"buffer_load_dword v{RAW+8}, v39, s[{R0}:{R0+3}], s{T1_} offen offset:1024")
    a("s_barrier")
    a(f"s_lshr_b32 s{T1_}, s{LW}, 2", f"s_lshl_b32 s{T1_}, s{T1_}, 6", f"s_add_u32 s{T2_}, s{T2_}, s{T1_}", f"s_add_u32 s{T2_}, s{T2_}, {C_LNB}")
    a(f"v_lshl_add_u32 v35, v37, 1, v36")
    a(f"s_mov_b32 s{SP0}, 0x05040100", f"s_mov_b32 s{SP1}, 0x07060302")
    def waits(n):
        for (c, js) in ((2, range(0, 4)), (1, range(4, 8)), (0, range(8, 9))):
            if c == 2: lstamp(a, 2)
            a(f"s_waitcnt vmcnt({c+n})")
            if c == 2: lstamp(a, 3)
            for j in js: unpack(a, X + 2 * j, RAW + j)
    l1 = newlabel("LN1A"); l2 = newlabel("LN1B")
    if NL:
        LW0 = ENV("NLW", 4)
        pf_lane(a, 46, 47)
        a(f"s_sub_u32 s{T1_}, s{LW}, {LW0}", f"s_and_b32 s{T1_}, s{T1_}, 7", f"s_lshl_b32 s{T3_}, s{T1_}, 4", f"s_add_u32 s{T3_}, s{T3_}, s{S_I}", f"s_sub_u32 s{T3_}, s{T3_}, 8")
        pf_gu_setup(a, T3_, R3, T4_, T0_)
    def dma_early(skip):
        a(f"s_cmp_lt_u32 s{LW}, 4", f"s_cbranch_scc1 {skip}", f"s_cmp_ge_u32 s{S_FI}, 18", f"s_cbranch_scc1 {skip}")
        srd(a, R1, P_DOWN, WBYTES)
        a("v_lshlrev_b32 v46, 4, v1", f"s_mul_i32 s{T0_}, s{S_BLK}, 36864", f"s_mul_i32 s{T1_}, s{LW}, 9216", f"s_add_u32 s{T0_}, s{T0_}, s{T1_}", f"s_sub_u32 s{T0_}, s{T0_}, {4*9216}", f"s_add_u32 s{T1_}, s{T1_}, {C_DOWN - 4*9216}")
        for k in range(9):
            if k % 4 == 0:
                a(f"s_add_u32 m0, s{T1_}, {1024*k}")
                if k: a(f"s_add_u32 s{T0_}, s{T0_}, 4096")
            a(f"buffer_load_dwordx4 v46, s[{R1}:{R1+3}], s{T0_} offen offset:{1024*(k&3)} {MOD('DM', 'nt')} lds")
    if XW: waits(0)
    elif DEA == 1:
        dma_early(l1)
        waits(9)
        a(f"s_branch {l2}")
        a(f"{l1}:")
        if NL3:
            l3 = newlabel("LN1C")
            a(f"s_sub_u32 s{T1_}, s{LW}, 4", f"s_cmp_ge_u32 s{T1_}, {NL3}", f"s_cbranch_scc1 {l3}")
            pf_lane(a, 46, 47)
            a(f"s_mul_i32 s{T1_}, s{T1_}, 6", f"s_add_u32 s{T1_}, s{T1_}, s{S_I}", f"s_add_u32 s{T3_}, s{T1_}, {PFB - 18}")
            pf_gu_setup(a, T3_, R3, T4_, T0_)
            pf_ld(a, 47, 46, R3)
            waits(len(MOD("PFM", "nt;sc1").split(';')))
            a(f"s_branch {l2}")
            a(f"{l3}:")
        waits(0)
        a.flush(2)
        a(f"{l2}:")
    elif DEA == 2:
        waits(0)
        dma_early(l1)
        a(f"{l1}:")
    elif NL and ENV("NLE", 0):
        a(f"s_cmp_lt_u32 s{T1_}, {NL}", f"s_cselect_b32 s{T4_}, s{T4_}, {hex(WBYTES)}")
        pf_ld(a, 47, 46, R3)
        waits(len(MOD("PFM", "nt;sc1").split(';')))
    else:
        waits(0)
    if NL and not ENV("NLE", 0):
        if ENV("X0", 0): a(f"s_cmp_eq_u32 s{S_XC}, 0", f"s_cbranch_scc1 {l1}")
        a(f"s_cmp_ge_u32 s{T1_}, {NL}", f"s_cbranch_scc1 {l1}")
        pf_ld(a, 47, 46, R3)
        a(f"{l1}:")
    stamp(a, 2); lstamp(a, 4)
    a(f"v_lshl_add_u32 v6, v35, 4, s{T2_}", f"v_lshl_add_u32 v7, v35, 2, s{T2_}")
    a(f"v_mul_u32_u24 v35, 0x20202, v36", "v_lshl_add_u32 v35, v36, 25, v35", "v_add_u32 v35, 0x05040100, v35")
    ln_stats(a, X, 36, 38, 40, 42, 44)
    lstamp(a, 5)
    for j in range(9):
        if j == ENV("DSAMP", 3):
            a("v_and_b32 v59, 3, v1", "v_lshlrev_b32 v59, 2, v59")
            if SN: a(f"s_load_dwordx4 s[{R3}:{R3+3}], s[{P_DBG}:{P_DBG+1}], 0" + (" glc" if SN == 2 else ""))
            else: a(f"global_load_dword v58, v59, s[{P_DBG}:{P_DBG+1}] sc1")
        ln_apply_pair(a, X + 2 * j, 36, 38, 40, None)
        a(f"v_cvt_pk_f16_f32 v{RAW+j}, v40, v41")
        if j in (3, 7):
            P = RAW + j - 3; O = X + 2 * (j - 3)
            a(f"v_permlane32_swap_b32 v{P}, v{P+2}", f"v_permlane32_swap_b32 v{P+1}, v{P+3}")
            a(f"v_perm_b32 v{O}, v{P+2}, v{P}, s{SP0}", f"v_perm_b32 v{O+1}, v{P+2}, v{P}, s{SP1}")
            a(f"v_perm_b32 v{O+2}, v{P+3}, v{P+1}, s{SP0}", f"v_perm_b32 v{O+3}, v{P+3}, v{P+1}, s{SP1}")
            a(f"ds_write_b128 v6, v[{O}:{O+3}] offset:{1024*(j//4)}")
    a(f"v_mov_b32 v40, v{RAW+8}", f"v_permlane32_swap_b32 v{RAW+8}, v40")
    a(f"v_perm_b32 v40, v40, v{RAW+8}, v35")
    a(f"ds_write_b32 v7, v40 offset:2048")
    a(f"v_mov_b32 v6, s{LW}")
    a(f"ds_write_b8 v6, v{VONE} offset:{FL_LN1}")
    lstamp(a, 6)
    a("s_setprio 0")
    a(f"s_cmp_ge_u32 s{LW}, 4", "s_cbranch_scc1 KS_X4")
    a("s_setprio 3")
    srd(a, R2_, P_WS, XBYTES, WS_UT)
    a("v_and_b32 v6, 1, v0", "v_mul_u32_u24 v6, 9280, v6", "v_lshrrev_b32 v7, 1, v0", "v_lshl_add_u32 v6, v7, 2, v6", f"v_add_u32 v6, {C_LNB}, v6")
    if UL:
        a("v_lshrrev_b32 v7, 3, v0", "v_mul_u32_u24 v7, 0x4100, v7", "v_and_b32 v8, 7, v0", "v_lshl_add_u32 v7, v8, 4, v7")
        a(f"s_lshl_b32 s{T0_}, s{TB}, 7")
    else:
        a("v_lshrrev_b32 v7, 2, v0", "v_mul_u32_u24 v7, 0x2080, v7" if SWU else "v_lshlrev_b32 v7, 13, v7", "v_and_b32 v8, 3, v0", "v_lshl_add_u32 v7, v8, 4, v7")
        a(f"s_lshl_b32 s{T0_}, s{TB}, 6")
    if SWU: a(f"v_xor_b32 v7, s{T0_}, v7", f"s_mov_b32 s{T0_}, 0")
    for k in range(1, 5): a(f"s_add_u32 s{T0_+k}, s{T0_}, {0x80000*k}")
    if SN:
        a("s_waitcnt lgkmcnt(0)")
        a(f"v_mov_b32 v58, s{R3}", f"v_mov_b32 v57, s{R3+1}", f"v_mov_b32 v56, s{R3+2}", f"v_mov_b32 v55, s{R3+3}")
        a("v_mov_b32_dpp v58, v57 quad_perm:[0,1,2,3] row_mask:0xf bank_mask:0xf" if 0 else "v_cmp_eq_u32 vcc, 4, v59", "v_cndmask_b32 v58, v58, v57, vcc", "v_cmp_eq_u32 vcc, 12, v59", "v_cndmask_b32 v56, v56, v55, vcc", "v_cmp_lt_u32 vcc, 4, v59", "v_cndmask_b32 v58, v58, v56, vcc")
        dbg_wait(a, 63)
    else: dbg_wait(a, 0)
    lstamp(a, 7)
    a(f"ds_write_b32 v59, v58 offset:{FL_NONCE}")
    a(f"s_mov_b32 s{SP0}, {hex(TAGM)}")
    for d in range(1, 4): a(f"v_lshrrev_b32 v{58-d}, {3*d}, v58")
    lds_wait(a, FL_LN1, 20, "b8")
    stamp(a, 3); lstamp(a, 8)
    for k in range(5):
        a(f"ds_read2st64_b32 v[{20+4*k}:{21+4*k}], v6 offset0:{2*k} offset1:{9+2*k}")
        a(f"ds_read2st64_b32 v[{22+4*k}:{23+4*k}], v6 offset0:{18+2*k} offset1:{27+2*k}")
    for k in range(5):
        a(f"s_waitcnt lgkmcnt({8-2*k})")
        for d in range(4): a(f"v_bfi_b32 v{20+4*k+d}, s{SP0}, v{58-d}, v{20+4*k+d}")
        a(f"buffer_store_dwordx4 v[{20+4*k}:{23+4*k}], v7, s[{R2_}:{R2_+3}], s{T0_+k} offen {MOD('USMOD')}")
    if DE: a(f"v_mov_b32 v6, s{LW}", f"ds_write_b8 v6, v{VONE} offset:{FL_UTOK}")
    stamp(a, 4)

LNV = ENV("LNV", 0)
DB = ENV("DB", 0)
DDL = 5244
FLD = ENV("FLD", 0)
NDE = ENV("NDE", 9)
def gen_ln1v(a):
    LW, TB = T5_, S_CH
    X, RAW, PIT, LB = 8, 26, 2368, C_LNB - 512
    SE0, SE1, SON, SO0, SO1 = R4, R4 + 1, R4 + 2, R4 + 3, T4_
    a(f"s_sub_u32 s{T0_}, s{S_I}, 8", f"s_and_b32 s{TB}, s{T0_}, 7", f"s_lshr_b32 s{T0_}, s{T0_}, 3", f"s_lshl_b32 s{T0_}, s{T0_}, 4", f"s_add_u32 s{TB}, s{TB}, s{T0_}")
    a(f"s_and_b32 s{T0_}, s{S_XC}, 1", f"s_lshl_b32 s{T0_}, s{T0_}, 3", f"s_add_u32 s{TB}, s{TB}, s{T0_}", f"s_lshr_b32 s{T0_}, s{S_XC}, 1", f"s_lshl_b32 s{T0_}, s{T0_}, 5", f"s_add_u32 s{TB}, s{TB}, s{T0_}")
    a("v_lshrrev_b32 v36, 5, v1", "v_and_b32 v37, 31, v1")
    a("v_mul_u32_u24 v38, 9216, v36", "v_lshl_add_u32 v39, v37, 2, v38", "v_lshl_add_u32 v38, v37, 4, v38")
    a(f"s_mul_i32 s{T1_}, s{TB}, 18432", f"s_mul_i32 s{T2_}, s{LW}, 1152", f"s_add_u32 s{T1_}, s{T1_}, s{T2_}")
    a(f"s_mov_b32 s{R0+2}, {hex(XBYTES)}", f"s_mov_b32 s{R0+3}, 0x20000")
    a("s_waitcnt lgkmcnt(0)")
    stamp(a, 1); lstamp(a, 1)
    a(f"s_mov_b32 s{R0}, s{P_X}", f"s_mov_b32 s{R0+1}, s{P_X+1}")
    a(f"buffer_load_dwordx4 v[{RAW}:{RAW+3}], v38, s[{R0}:{R0+3}], s{T1_} offen")
    a(f"buffer_load_dwordx4 v[{RAW+4}:{RAW+7}], v38, s[{R0}:{R0+3}], s{T1_} offen offset:512")
    a(f"buffer_load_dword v{RAW+8}, v39, s[{R0}:{R0+3}], s{T1_} offen offset:1024")
    a("s_barrier")
    a(f"s_mul_i32 s{T2_}, s{LW}, {PIT}", f"s_add_u32 s{T2_}, s{T2_}, {LB}", "v_lshl_add_u32 v6, v37, 1, v36", f"v_lshl_add_u32 v6, v6, 2, s{T2_}")
    a("v_and_b32 v59, 3, v1", "v_bfe_u32 v7, v1, 2, 2", f"v_mul_u32_u24 v7, {PIT}, v7", "v_lshl_add_u32 v40, v3, 2, v59", "v_lshl_add_u32 v7, v40, 3, v7")
    a(f"s_lshl_b32 s{T2_}, s{LW}, 7", f"s_add_u32 s{T0_}, s{T2_}, {LB + 2048}", f"v_add_u32 v44, s{T0_}, v7", f"s_lshl_b32 s{T2_}, s{LW}, 8", f"s_add_u32 s{T2_}, s{T2_}, {LB}", f"v_add_u32 v7, s{T2_}, v7")
    a(f"v_lshlrev_b32_dpp v40, 4, v59 quad_perm:[0,2,1,3] {DPPM}" if 0 else "v_lshlrev_b32 v41, 4, v59", f"v_mov_b32_dpp v40, v41 quad_perm:[0,2,1,3] {DPPM} ; nodst", "v_lshlrev_b32 v59, 2, v59")
    a("v_lshrrev_b32 v41, 2, v1", "v_mul_u32_u24 v35, 0x8200, v41", f"s_lshl_b32 s{T0_}, s{TB}, 6", f"s_and_b32 s{T1_}, s{T0_}, 0x1e00", f"v_xad_u32 v35, v35, s{T1_}, v40")
    a(f"s_lshl_b32 s{T1_}, s{LW}, 4", f"v_add_u32 v41, s{T1_}, v41", "v_mul_u32_u24 v45, 0x2080, v41", f"v_xad_u32 v45, v45, s{T0_}, v40")
    a(f"s_and_b32 s{T1_}, s{LW}, 3", f"s_mul_i32 s{T1_}, s{T1_}, 0x2080", f"s_and_b32 s{T0_}, s{T0_}, 0x1c0", f"s_xor_b32 s{SO0}, s{T0_}, s{T1_}", f"s_lshr_b32 s{T1_}, s{LW}, 2", f"s_lshl_b32 s{T1_}, s{T1_}, 20")
    a(f"s_add_u32 s{SO0}, s{SO0}, s{T1_}", f"s_add_u32 s{SO1}, s{SO0}, 0x80000")
    a(f"s_mov_b32 s{SE0}, 0x3f80", f"s_mov_b32 s{SE1}, 0x3f800000", f"s_mov_b32 s{SON}, 0x3f803f80", f"s_mov_b32 s{SP0}, {hex(TAGM)}", f"s_mov_b32 s{SP1}, 0x200000")
    a("v_mov_b32 v40, 0", "v_mov_b32 v41, 0", f"v_mov_b32 v42, {f32(1.0/576)}")
    srd(a, R2_, P_WS, XBYTES, WS_UT)
    def waits(n):
        for (c, js) in ((2, range(0, 4)), (1, range(4, 8)), (0, range(8, 9))):
            if c == 2: lstamp(a, 2)
            a(f"s_waitcnt vmcnt({c+n})")
            if c == 2: lstamp(a, 3)
            for j in js: a(f"v_dot2c_f32_bf16 v40, s{SON}, v{RAW+j}", f"v_dot2c_f32_bf16 v41, v{RAW+j}, v{RAW+j}")
    l1 = newlabel("LN1A"); l2 = newlabel("LN1B")
    if NDE:
        a(f"s_cmp_lt_u32 s{LW}, 4", f"s_cbranch_scc1 {l1}", f"s_cmp_ge_u32 s{S_FI}, 18", f"s_cbranch_scc1 {l1}")
        srd(a, R1, P_DOWN, WBYTES)
        a("v_lshlrev_b32 v46, 4, v1", f"s_mul_i32 s{T0_}, s{S_BLK}, 36864", f"s_mul_i32 s{T1_}, s{LW}, 9216", f"s_add_u32 s{T0_}, s{T0_}, s{T1_}", f"s_sub_u32 s{T0_}, s{T0_}, {4*9216}", f"s_add_u32 s{T1_}, s{T1_}, {C_DOWN - 4*9216}")
        for k in range(NDE):
            if k % 4 == 0:
                a(f"s_add_u32 m0, s{T1_}, {1024*k}")
                if k: a(f"s_add_u32 s{T0_}, s{T0_}, 4096")
            a(f"buffer_load_dwordx4 v46, s[{R1}:{R1+3}], s{T0_} offen offset:{1024*(k&3)} {MOD('DM', 'nt')} lds")
        waits(NDE)
        a(f"s_branch {l2}")
        a(f"{l1}:")
    waits(0)
    a(f"{l2}:")
    stamp(a, 2); lstamp(a, 4)
    def sample():
        if SN: a(f"s_load_dwordx4 s[{R3}:{R3+3}], s[{P_DBG}:{P_DBG+1}], 0")
        else: a(f"global_load_dword v58, v59, s[{P_DBG}:{P_DBG+1}] sc1")
    DS = ENV("DSAMP", 3)
    if DS == -1: sample()
    a("v_add_f32_dpp v36, v40, v40 row_ror:8 row_mask:0xf bank_mask:0x3 ; nodst", "v_add_f32_dpp v36, v41, v41 row_ror:8 row_mask:0xf bank_mask:0xc ; nodst")
    for m in ("row_half_mirror", "quad_perm:[1,0,3,2]", "quad_perm:[2,3,0,1]"): a(f"v_add_f32_dpp v36, v36, v36 {m} {DPPM}")
    a("v_mov_b32 v37, v36", "v_permlane16_swap_b32 v36, v37", "v_add_f32 v36, v36, v37")
    a(f"v_mul_f32_dpp v40, v36, v42 row_newbcast:0 {DPPM} ; nodst", f"v_mul_f32_dpp v41, v36, v42 row_newbcast:8 {DPPM} ; nodst")
    a("v_cvt_pk_bf16_f32 v36, 0, -v40", "v_fma_f32 v41, -v40, v40, v41")
    lstamp(a, 5)
    chain = ["v_max_f32 v41, 0, v41", "v_cvt_pk_bf16_f32 v41, 0, v41", f"v_add_f32 v41, {f32(1e-5)}, v41", "v_cvt_pk_bf16_f32 v41, 0, v41", "v_sqrt_f32 v41, v41", "v_cvt_pk_bf16_f32 v41, 0, v41", "v_rcp_f32 v38, v41"]
    def sub(j): a(f"v_dot2_f32_bf16 v{X+2*j}, v{RAW+j}, s{SE0}, v36", f"v_dot2_f32_bf16 v{X+2*j+1}, v{RAW+j}, s{SE1}, v36")
    for j in range(9):
        sub(j)
        if chain: a(chain.pop(0))
        if j >= 2: rnd2(a, X + 2 * (j - 2))
    for j in range(9):
        if j == DS: sample()
        if j < 2: rnd2(a, X + 2 * (j + 7))
        a(f"v_pk_mul_f32 v[{X+2*j}:{X+2*j+1}], v[{X+2*j}:{X+2*j+1}], v[38:39] op_sel_hi:[1,0]")
        a(f"v_cvt_pkrtz_f16_f32 v{RAW+j}, v{X+2*j}, v{X+2*j+1}", f"v_add_u32 v{RAW+j}, 0x40004, v{RAW+j}")
        if j & 1: a(f"ds_write2st64_b32 v6, v{RAW+j-1}, v{RAW+j} offset0:{j-1} offset1:{j}")
    a(f"ds_write_b32 v6, v{RAW+8} offset:2048")
    a(f"v_mov_b32 v6, s{LW}")
    a(f"ds_write_b8 v6, v{VONE} offset:{FL_LN1}")
    lstamp(a, 6)
    if SN:
        a("s_waitcnt lgkmcnt(0)")
        a(f"v_mov_b32 v58, s{R3}", f"v_mov_b32 v57, s{R3+1}", f"v_mov_b32 v56, s{R3+2}", f"v_mov_b32 v55, s{R3+3}")
        a("v_cmp_eq_u32 vcc, 4, v59", "v_cndmask_b32 v58, v58, v57, vcc", "v_cmp_eq_u32 vcc, 12, v59", "v_cndmask_b32 v56, v56, v55, vcc", "v_cmp_lt_u32 vcc, 4, v59", "v_cndmask_b32 v58, v58, v56, vcc")
        dbg_wait(a, 63)
    else: dbg_wait(a, 0)
    lstamp(a, 7)
    a(f"v_mov_b32_dpp v40, v58 quad_perm:[0,2,1,3] {DPPM} ; nodst")
    for d in range(1, 4): a(f"v_lshrrev_b32 v{40+d}, {3*d}, v40")
    lds_wait(a, FL_LN1, 20, "b8")
    stamp(a, 3); lstamp(a, 8)
    for h in range(2):
        for i in range(2): a(f"ds_read_b64_tr_b16 v[{20+4*h+2*i}:{21+4*h+2*i}], v7 offset:{128*h + 4*PIT*i}")
    for i in range(2): a(f"ds_read_b64_tr_b16 v[{28+2*i}:{29+2*i}], v44 offset:{4*PIT*i}")
    for h in range(2):
        a(f"s_waitcnt lgkmcnt({4-2*h})")
        for d in range(4): a(f"v_bfi_b32 v{20+4*h+d}, s{SP0}, v{40+d}, v{20+4*h+d}")
        a(f"buffer_store_dwordx4 v[{20+4*h}:{23+4*h}], v35, s[{R2_}:{R2_+3}], s{SO1 if h else SO0} offen {MOD('USMOD')}")
    a("s_waitcnt lgkmcnt(0)")
    a(f"s_cmp_ge_u32 s{LW}, 4", "s_cbranch_scc1 KS_X4")
    for d in range(4): a(f"v_bfi_b32 v{28+d}, s{SP0}, v{40+d}, v{28+d}")
    a(f"buffer_store_dwordx4 v[28:31], v45, s[{R2_}:{R2_+3}], s{SP1} offen {MOD('USMOD')}")
    a(f"ds_write_b8 v6, v{VONE} offset:{FL_UTOK}")
    a(f"ds_write_b32 v59, v58 offset:{FL_NONCE}")
    for d in range(1, 4): a(f"v_lshrrev_b32 v{58-d}, {3*d}, v58")
    stamp(a, 4)

def dbg_wait(a, n, vt=58, va=59):
    lp = newlabel("DBP"); go = newlabel("DBG")
    a(f"s_waitcnt vmcnt({n})")
    a(f"{lp}:")
    a(f"v_cmp_eq_u32 vcc, 0, v{vt}", f"s_cbranch_vccz {go}")
    a("s_sleep 1")
    a(f"global_load_dword v{vt}, v{va}, s[{P_DBG}:{P_DBG+1}] sc1")
    guard(a)
    a("s_waitcnt vmcnt(0)")
    a(f"s_branch {lp}")
    a(f"{go}:")

ROLE_TILES = {0: [0, 1, 2, 3, 4], 1: [0, 1, 2, 3, 4], 2: [5, 6, 7], 3: [5, 6, 7]}
ROLE_W = {2: 0, 3: 1, 1: 2}
ACC, DA, RING, WT = 16, 36, 76, 92
NRING = 4

def epi_plan():
    owner = {0: (0, 0), 1: (0, 1), 2: (1, 0), 3: (1, 1), 4: (1, 3), 5: (0, 2), 6: (0, 3), 7: (1, 2)}
    slots = {}
    cnt = [0, 0]
    for g in range(2):
        for role in range(4):
            for j in ROLE_TILES[role]:
                if owner[j] == (g, role): continue
                slots[(g, role, j)] = g * G_SIZE + R_RED + 1024 * cnt[g]; cnt[g] += 1
    assert max(cnt) <= 13, cnt
    ownerC = {0: 0, 1: 0, 2: 1, 3: 1, 4: 2, 5: 2, 6: 3, 7: 3}
    n = 0
    for role in range(4):
        for j in ROLE_TILES[role]:
            if ownerC[j] == role: continue
            slots[(2, role, j)] = 2 * G_SIZE + R_RED + 1024 * n; n += 1
    return owner, ownerC, slots

class LdsTrack:
    def __init__(self, a): self.a = a; self.n = 0; self.done = -1
    def issue(self, text): self.a(text); self.n += 1; return self.n - 1
    def wait(self, idx):
        k = self.n - 1 - idx
        if idx <= self.done: return
        self.done = idx
        if k <= 15: self.a(f"s_waitcnt lgkmcnt({k})")

CZ0, CZ1, CSH, CXR, CFL, SIS, CM, SM, SC, SSC, SDL = 6, 7, 8, 9, 10, 11, 12, 14, 15, 16, 18
IXR, LFR = (108, 109, 112, 113), (110, 111, 114, 115)
def stage_write(a, off):
    a("v_lshl_or_b32 v24, v25, 16, v24", "v_lshl_or_b32 v25, v27, 16, v26", f"ds_write_b64 v28, v[24:25] offset:{off}")
def pre_ixlf(a):
    end = newlabel("PX"); j1 = newlabel("PX"); j2 = newlabel("PX"); jn = newlabel("PX")
    a(f"s_cmp_eq_u32 s{S_ROLE}, 3", f"s_cbranch_scc1 {end}")
    a("v_lshlrev_b32 v26, 3, v2", "v_mov_b32 v21, 0x80")
    a(f"s_cmp_eq_u32 s{S_ROLE}, 1", f"s_cbranch_scc1 {j1}", f"s_cmp_eq_u32 s{S_ROLE}, 2", f"s_cbranch_scc1 {j2}")
    a("v_lshl_add_u32 v26, v3, 1, v26", "v_mov_b32 v22, 1")
    a(f"s_branch {jn}")
    a(f"{j1}:")
    a("v_cmp_gt_u32 vcc, 2, v3", "v_lshl_add_u32 v20, v3, 2, v26", "v_add_u32 v20, 256, v20", "v_lshl_add_u32 v26, v3, 8, v26", "v_cndmask_b32 v26, v26, v20, vcc")
    a("v_cndmask_b32 v22, v21, 2, vcc", "v_cndmask_b32 v21, 4, v21, vcc")
    a(f"s_branch {jn}")
    a(f"{j2}:")
    a("v_lshl_add_u32 v26, v3, 9, v26", "v_add_u32 v26, 0x400, v26", "v_mov_b32 v22, 0x100")
    a(f"{jn}:")
    a(f"v_mad_u32_u24 v26, v22, s{S_G}, v26", "v_add_u32 v27, v26, v21", f"s_movk_i32 s{T4_}, {T_TAB}", f"s_movk_i32 s{T5_}, {-(0x4280 + 0x800)}", f"s_lshl_b32 s{T3_}, s{S_G}, 9")
    for r in range(2): a(f"v_cvt_f32_u32 v{20+r}, v{26+r}", f"v_max_u32 v{22+r}, 0x800, v{26+r}")
    for r in range(2):
        a(f"v_cmp_gt_u32 vcc, 0x80, v{26+r}", f"v_lshrrev_b32 v{24+r}, 16, v{20+r}", f"v_add3_u32 v{24+r}, v{24+r}, v{22+r}, s{T5_}", f"v_cndmask_b32 v{24+r}, v{24+r}, v{26+r}, vcc")
    for r in range(2):
        a(f"v_min_u32 v{24+r}, {IDX_DUMMY}, v{24+r}", f"v_lshl_add_u32 v{24+r}, v{24+r}, 1, s{T4_}")
    a(f"v_add_u32 v29, s{T3_}, v28")
    a("v_lshl_or_b32 v24, v25, 16, v24", "v_lshl_or_b32 v25, v27, 16, v26", "ds_write_b64 v29, v[24:25]")
    a(f"{end}:")

def gen_group(a):
    RAW, VLDT, VDSK, VNT, VNA, VPR, VEM, VTE, VTL = 40, 46, 107, 104, 105, 106, 72, 126, 127
    I1, D2, I2, D1, D3 = 116, 119, 120, 124, 125
    a(f"s_lshl_b32 s{T0_}, s{S_CH}, 8", f"v_lshl_add_u32 v20, v1, 2, s{T0_}")
    a(f"s_lshl_b32 s{T0_}, s{S_CH}, 1", f"v_mov_b32 v21, s{T0_}")
    a(f"s_mul_i32 s{S_GB}, s{S_G}, {G_SIZE}", f"s_add_u32 s{S_GB}, s{S_GB}, {G_BASE}")
    a("s_waitcnt lgkmcnt(0)")
    stamp(a, 1)
    PL = ENV("PLATE", 0)
    if PL == 1: a(f"s_sub_u32 s{T0_}, s{S_I}, 8", f"s_cmp_ge_u32 s{T0_}, 16", "s_cbranch_scc1 KS_PL1", "s_barrier", "KS_PL1:")
    if PL == 2: a("s_barrier")
    a(f"global_load_ushort v{VLDT}, v21, s[{P_LDT}:{P_LDT+1}]")
    for k in range(6):
        a(f"global_load_dword v{RAW+k}, v20, s[{P_ARE+2*k}:{P_ARE+2*k+1}]")
    a(f"global_load_ushort v{VDSK}, v21, s[{P_DSK}:{P_DSK+1}]")
    if PL == 1: a("s_cbranch_scc0 KS_PL2")
    if PL != 2: a("s_barrier")
    if PL == 1: a("KS_PL2:")
    if ENV("UPW", 0):
        a(f"s_sub_u32 s{T0_}, s{S_I}, 8", f"s_cmp_ge_u32 s{T0_}, 16", "s_cbranch_scc1 KS_UPW", f"s_cmp_lg_u32 s{S_G}, 1", "s_cbranch_scc1 KS_UPW")
        TB = T5_
        a(f"s_and_b32 s{TB}, s{T0_}, 7", f"s_lshr_b32 s{T0_}, s{T0_}, 3", f"s_lshl_b32 s{T0_}, s{T0_}, 4", f"s_add_u32 s{TB}, s{TB}, s{T0_}")
        a(f"s_and_b32 s{T0_}, s{S_XC}, 1", f"s_lshl_b32 s{T0_}, s{T0_}, 3", f"s_add_u32 s{TB}, s{TB}, s{T0_}", f"s_lshr_b32 s{T0_}, s{S_XC}, 1", f"s_lshl_b32 s{T0_}, s{T0_}, 5", f"s_add_u32 s{TB}, s{TB}, s{T0_}")
        srd(a, R2_, P_WS, XBYTES, WS_UT)
        a(f"s_lshl_b32 s{T0_}, s{S_ROLE}, 4", "v_lshrrev_b32 v7, 2, v1", f"v_add_u32 v7, s{T0_}, v7", "v_mul_u32_u24 v7, 0x2080, v7", "v_and_b32 v8, 3, v1", "v_lshl_add_u32 v7, v8, 4, v7")
        a(f"s_lshl_b32 s{T0_}, s{TB}, 6", f"v_xor_b32 v7, s{T0_}, v7")
        for d in range(4): a(f"v_mov_b32 v{8+d}, 0")
        for k in range(5):
            a(f"s_mov_b32 s{T0_}, {0x80000*k}")
            a(f"buffer_store_dwordx4 v[8:11], v7, s[{R2_}:{R2_+3}], s{T0_} offen {MOD('UPWMOD')}")
        a.flush(2)
        a("KS_UPW:")
    a(f"s_movk_i32 s{T4_}, {T_TAB}")
    def dr_addr(dst, x, special=False):
        a(f"v_sub_u32 v30, 544, v{x}", "v_cvt_f32_i32 v31, v30", "v_cmp_gt_u32 vcc, 0x100, v30", "v_cvt_pk_bf16_f32 v31, v31, v31", "v_and_b32 v31, 0xffff, v31", "v_subrev_u32 v31, 0x4280, v31")
        a("v_cndmask_b32 v31, v31, v30, vcc", "v_cmp_lt_u32 vcc, 0x20d, v30")
        if special: a(f"v_or_b32 v30, 1, v{x}")
        a("v_cndmask_b32 v31, v31, v32, vcc")
        if special: a("v_cmp_eq_u32 vcc, 0x25d, v30", "v_cndmask_b32 v31, v31, v33, vcc")
        a(f"v_lshl_add_u32 v{dst}, v31, 1, s{T4_}")
    def g_addr(dst, y0, base, M):
        a(f"v_sub_u32 v30, {y0}, v23", f"v_cmp_lt_u32 vcc, {M}, v30", f"v_lshlrev_b32 v31, 2, v30", f"v_add_u32 v31, {T_TAB + 2*base}, v31", f"v_cndmask_b32 v{dst}, v31, v33, vcc")
    pb = newlabel("PREB"); pw = newlabel("PREW"); pe = newlabel("PREE")
    a(f"s_cmp_eq_u32 s{S_G}, 2", f"s_cbranch_scc1 {pe}")
    a(f"v_mov_b32 v32, {IDX_ZERO}")
    a(f"s_cmp_eq_u32 s{S_G}, 1", f"s_cbranch_scc1 {pb}")
    jl = [newlabel("PRE") for _ in range(4)]
    a(f"v_mov_b32 v33, {T_TAB + 2*IDX_ZERO}")
    for r in range(1, 4): a(f"s_cmp_eq_u32 s{S_ROLE}, {r}", f"s_cbranch_scc1 {jl[r]}")
    a("v_lshlrev_b32 v23, 1, v1")
    for e, (y0, base, M) in enumerate(((93, 389, 61), (92, 389, 61), (94, 388, 62), (93, 388, 62))): g_addr(24 + e, y0, base, M)
    a(f"s_branch {pw}")
    for r, base in ((1, 513), (2, 514)):
        a(f"{jl[r]}:")
        a("v_min_u32 v23, 47, v1", "v_lshlrev_b32 v23, 1, v23")
        for e, y0 in ((0, 64), (1, 63), (3, 62)): g_addr(24 + e, y0, base, 63)
        a("v_mov_b32 v26, v25")
        a(f"s_branch {pw}")
    a(f"{jl[3]}:")
    a("v_cmp_gt_u32 vcc, 9, v1", "v_add_u32 v23, 0x100, v1", "v_mov_b32 v33, 0x200", "v_cndmask_b32 v23, v23, v1, vcc", "v_lshlrev_b32 v23, 1, v23")
    for e in (0, 1, 3):
        if e: a("v_add_u32 v23, 1, v23")
        dr_addr(24 + e, 23, special=True)
    a("v_mov_b32 v26, v25")
    a(f"s_branch {pw}")
    a(f"{pb}:")
    a(f"s_lshl_b32 s{T1_}, s{S_ROLE}, 7", f"s_add_u32 s{T1_}, s{T1_}, 18", f"v_lshl_add_u32 v23, v1, 1, s{T1_}")
    for e in range(3):
        if e: a("v_add_u32 v23, 1, v23")
        dr_addr(24 + e, 23)
    a(f"s_sub_u32 s{T1_}, s{S_ROLE}, 1", f"s_cmp_lt_u32 s{T1_}, 2", f"s_cselect_b32 s{T2_}, 47, 63", f"s_mul_i32 s{T1_}, s{T1_}, {T_G9E - T_G7E}", f"s_add_u32 s{T1_}, s{T1_}, {T_G7E}")
    a(f"s_cmp_eq_u32 s{S_ROLE}, 0", f"s_cselect_b32 s{T1_}, {T_G3}, s{T1_}", f"s_cmp_eq_u32 s{S_ROLE}, 3", f"s_cselect_b32 s{T1_}, {T_DRE}, s{T1_}", f"s_cselect_b32 s{T3_}, 0x100, 0")
    a("v_cmp_gt_u32 vcc, 9, v1", f"v_min_u32 v23, s{T2_}, v1", f"v_add_u32 v30, s{T3_}, v23", "v_cndmask_b32 v23, v30, v23, vcc")
    if DB: a(f"s_sub_u32 s{T1_}, s{T1_}, {DDL}")
    a(f"v_lshl_add_u32 v27, v23, 2, s{T1_}")
    stage_write(a, 1024)
    a(f"v_mov_b32 v24, s{S_ROLE}", f"ds_write_b8 v24, v{VONE} offset:{FL_PRE + 4}")
    a(f"s_branch {pe}")
    a(f"{pw}:")
    stage_write(a, 1536)
    a(f"v_mov_b32 v24, s{S_ROLE}", f"ds_write_b8 v24, v{VONE} offset:{FL_PRE}")
    a(f"{pe}:")
    a(f"s_mul_i32 s{T1_}, s{S_ROLE}, {16*KG_ROW}", f"s_min_u32 s{T2_}, s{T1_}, {KG_T[3]}", f"s_add_u32 s{T2_}, s{T2_}, s{S_GB}")
    a(f"s_lshl_b32 s{T0_}, s{S_G}, 4", f"v_mov_b32 v14, s{T0_}", f"v_add_u32 v15, s{S_ROLE}, v14")
    a(f"v_lshl_add_u32 v{VEM}, v1, 3, s{T2_}")
    for k in range(1, 4): a(f"v_add_u32 v{VEM+k}, {4*KG_ROW*k}, v{VEM}")
    a(f"v_mul_u32_u24 v{VTE}, {KG_ROW}, v2", f"v_lshl_add_u32 v{VTE}, v3, 4, v{VTE}", f"v_add_u32 v{VTE}, s{S_GB}, v{VTE}", f"v_add_u32 v{VTL}, s{T1_}, v{VTE}")
    VDA, VDA2, VB_, VT8, VT16, VG8, VG16, VLN = 6, 7, 8, 9, 10, 11, 13, 12
    a("v_lshlrev_b32 v20, 3, v3", "v_sub_u32 v20, v20, v2", "v_add_u32 v21, 16, v20", "v_lshrrev_b32 v21, 1, v21")
    if DB: a("v_and_b32 v23, 1, v21", f"s_movk_i32 s{T1_}, {-DDL}")
    a("v_and_b32 v22, 1, v2", f"s_add_u32 s{T0_}, s{S_GB}, {T_DRE}", f"v_lshl_add_u32 v21, v21, 2, s{T0_}", f"s_movk_i32 s{T0_}, {T_DRO - T_DRE}", f"s_movk_i32 s{T2_}, {T_G7O - T_G7E}")
    if DB: a(f"v_mad_i32_i24 v21, v23, s{T1_}, v21")
    a(f"v_mad_u32_u24 v{VDA}, v22, s{T0_}, v21", f"v_add_u32 v{VDA2}, 640, v{VDA}")
    a(f"v_mad_u32_u24 v23, v22, s{T2_}, v21", f"v_add_u32 v{VG16}, {T_G7E - T_DRE}, v23")
    a("v_lshlrev_b32 v23, 2, v3", "v_sub_u32 v23, v23, v2", f"s_add_u32 s{T0_}, s{S_GB}, {T_G3 + 60 - (DDL if DB else 0)}", f"v_lshl_add_u32 v{VG8}, v23, 2, s{T0_}")
    if DB: a(f"s_movk_i32 s{T1_}, {DDL}", f"v_mad_u32_u24 v{VG8}, v22, s{T1_}, v{VG8}")
    a(f"s_mul_i32 s{T2_}, s{S_G}, {U_SIZE}", f"s_add_u32 s{T2_}, s{T2_}, {C_U}")
    a(f"v_lshl_add_u32 v23, v2, 5, s{T2_}", f"v_lshl_add_u32 v{VB_}, v3, 4, v23")
    a("v_bfe_u32 v20, v1, 2, 2", "v_and_b32 v21, 3, v1", "v_lshl_add_u32 v20, v3, 3, v20")
    a(f"v_lshlrev_b32 v{VNA}, 2, v21")
    a(f"v_lshl_add_u32 v21, v21, 3, s{S_GB}", f"v_lshl_add_u32 v{VT8}, v20, 4, v21", f"v_lshl_add_u32 v{VT16}, v20, 5, v21")
    a(f"v_lshlrev_b32 v{VLN}, 4, v1")
    srd(a, R0, P_WS, 0x240000, WS_ZB1)
    if SWZ: a(f"s_mov_b32 s{CFL}, 0x8080")
    a(f"s_lshl_b32 s{T0_}, s{S_ROLE}, 19", f"s_lshl_b32 s{T1_}, s{S_B2}, 6", f"s_add_u32 s{T0_}, s{T0_}, s{T1_}")
    a(f"s_lshl_b32 s{T1_}, s{S_ROLE}, 16", f"s_lshl_b32 s{T3_}, s{S_CH}, 6", f"s_add_u32 s{T1_}, s{T1_}, s{T3_}", f"s_add_u32 s{T1_}, s{T1_}, {0x200000 - 512*64}")
    if SWZ:
        a(f"s_cmp_eq_u32 s{S_G}, 2", f"s_cselect_b32 s{CZ0}, s{T1_}, s{T0_}", f"s_cselect_b32 s{CSH}, 0x1080, s{CFL}", f"s_cselect_b32 s{T0_}, 1, 3")
        a(f"s_and_b32 s{T0_}, s{T0_}, s{S_ROLE}", f"s_lshl_b32 s{T0_}, s{T0_}, 11", f"s_xor_b32 s{CZ0}, s{CZ0}, s{T0_}", f"s_and_b32 s{CFL}, s{CZ0}, 0x7c0", f"s_xor_b32 s{CZ0}, s{CZ0}, s{CFL}", f"s_xor_b32 s{CZ1}, s{CZ0}, 0x6000")
    else:
        a(f"s_cmp_eq_u32 s{S_G}, 2", f"s_cselect_b32 s{CZ0}, s{T1_}, s{T0_}", f"s_cselect_b32 s{CSH}, 12, 15", f"s_add_u32 s{CZ1}, s{CZ0}, 16384")
    a(f"s_and_b32 s{CXR}, s{S_G}, 1", f"s_lshl_b32 s{CXR}, s{CXR}, 4", f"s_mov_b32 s{CM}, 0x55555555", f"s_mov_b32 s{CM+1}, 0x55555555")
    a(f"s_lshl_b32 s{T0_}, s{S_ROLE}, 8", f"s_add_u32 s{T0_}, s{T0_}, s{S_GB}", f"s_add_u32 s{T0_}, s{T0_}, 36", f"v_lshl_add_u32 v{D1}, v1, 2, s{T0_}")
    a(f"s_movk_i32 s{T0_}, {T_G7O - T_G7E}", f"s_cmp_eq_u32 s{S_ROLE}, 0", f"s_cselect_b32 s{T0_}, {T_G5 - T_G3}, s{T0_}", f"s_cmp_eq_u32 s{S_ROLE}, 3", f"s_cselect_b32 s{T0_}, {T_DRO - T_DRE}, s{T0_}")
    a(f"v_mov_b32 v20, s{S_GB}", f"ds_write_b16 v20, v{VZ} offset:{T_TAB + 2*IDX_ZERO}")
    a(f"s_mov_b32 s{SDL}, s{T0_}", f"v_mov_b32 v{D3}, v28")
    def stage_read():
        lds_wait(a, FL_PRE, 18, "b8")
        a(f"ds_read2st64_b64 v[28:31], v{D3} offset0:0 offset1:1", f"ds_read2st64_b64 v[32:35], v{D3} offset0:2 offset1:3")
    def stage_unpack():
        for k in range(16):
            src = 28 + k // 2; w = f"WORD_{k & 1}"
            if 108 + k in LFR: a(f"v_cvt_f32_u32_sdwa v{108+k}, v{src} dst_sel:DWORD dst_unused:UNUSED_PAD src0_sel:{w}")
            else: a(f"v_add_u32_sdwa v{108+k}, s{S_GB}, v{src} dst_sel:DWORD dst_unused:UNUSED_PAD src0_sel:DWORD src1_sel:{w}")
        a(f"v_add_u32 v{D3}, s{SDL}, v{D2}")
    stage_read()
    a("s_waitcnt lgkmcnt(0)")
    stage_unpack()
    ex = newlabel("EXP")
    if KOFF: a(f"s_lshl_b32 s{T0_}, s{S_G}, 5", f"s_add_u32 s{T0_}, s{T0_}, s{S_I}", f"s_cmp_ge_u32 s{T0_}, {64 + 24}", "s_cbranch_scc1 KC_RECV")
    a(f"s_mov_b32 s{T0_}, {f32(LOG2E_HI)}", f"s_mov_b32 s{T1_}, {f32(LOG2E_LO)}", f"s_mov_b32 s{T2_}, {f32(INV2PI_HI)}", f"s_mov_b32 s{T3_}, {f32(INV2PI_LO)}")
    a(f"s_waitcnt vmcnt(7)")
    a(f"v_lshlrev_b32 v16, 16, v{VLDT}")
    a(f"v_mul_f32 v17, s{T0_}, v16")
    a(f"v_fma_f32 v19, v16, s{T0_}, -v17", f"v_fmac_f32 v19, s{T1_}, v16")
    a("v_exp_f32 v17, v17")
    a(f"v_mul_f32 v19, {f32(math.log(2.0))}, v19")
    a("v_fmac_f32 v17, v17, v19")
    a("v_cvt_pk_bf16_f32 v16, 0, v17")
    a(f"s_waitcnt vmcnt(5)")
    stamp(a, 2)
    a(f"ds_write_b32 v{VZ}, v{VONE} offset:{FL_PARAM}")
    THH, THL = 68, 70
    for k in range(2): unpack(a, 20 + 2 * k, RAW + k)
    for k in range(2): a(f"v_pk_mul_f32 v[{20+2*k}:{21+2*k}], v[{20+2*k}:{21+2*k}], v[16:17] op_sel_hi:[1,0]")
    a("v_max_f32 v36, v20, v21")
    a(f"v_pk_mul_f32 v[{THH}:{THH+1}], v[22:23], s[{T2_}:{T3_}] op_sel_hi:[1,0]")
    a(f"v_pk_fma_f32 v[{THL}:{THL+1}], v[22:23], s[{T2_}:{T3_}], v[{THH}:{THH+1}] op_sel_hi:[1,0,1] neg_lo:[0,0,1] neg_hi:[0,0,1]")
    a(f"v_pk_fma_f32 v[{THL}:{THL+1}], v[22:23], s[{T2_}:{T3_}], v[{THL}:{THL+1}] op_sel:[0,1,0]")
    T = 90
    def cmul_(dr, di, ar, ai, br, bi, t=T):
        assert di not in (ar, br, bi)
        return [f"v_pk_mul_f32 v[{t}:{t+1}], v[{ai}:{ai+1}], v[{bi}:{bi+1}]",
                f"v_pk_mul_f32 v[{t+2}:{t+3}], v[{ai}:{ai+1}], v[{br}:{br+1}]",
                f"v_pk_fma_f32 v[{di}:{di+1}], v[{ar}:{ar+1}], v[{bi}:{bi+1}], v[{t+2}:{t+3}]",
                f"v_pk_fma_f32 v[{dr}:{dr+1}], v[{ar}:{ar+1}], v[{br}:{br+1}], v[{t}:{t+1}] neg_lo:[0,0,1] neg_hi:[0,0,1]"]
    def cm_(d, x, y, t=T): return cmul_(d, d + 2, x, x + 2, y, y + 2, t)
    def csq_(d, s_, t=T):
        return [f"v_pk_mul_f32 v[{t}:{t+1}], v[{s_+2}:{s_+3}], v[{s_+2}:{s_+3}]",
                f"v_pk_mul_f32 v[{t+2}:{t+3}], v[{s_}:{s_+1}], v[{s_+2}:{s_+3}]",
                f"v_pk_fma_f32 v[{d}:{d+1}], v[{s_}:{s_+1}], v[{s_}:{s_+1}], v[{t}:{t+1}] neg_lo:[0,0,1] neg_hi:[0,0,1]",
                f"v_pk_add_f32 v[{d+2}:{d+3}], v[{t+2}:{t+3}], v[{t+2}:{t+3}]"]
    def cmul(*x): a(*cmul_(*x))
    def csq(*x): a(*csq_(*x))
    CBR, CBI = 32, 34
    sk = newlabel("SK")
    a(f"s_cmp_eq_u32 s{S_ROLE}, 3", f"s_cbranch_scc1 {sk}")
    a("s_waitcnt vmcnt(1)")
    for k in range(2, 6): unpack(a, 20 + 2 * k, RAW + k)
    for k in range(2, 4): a(f"v_pk_mul_f32 v[{20+2*k}:{21+2*k}], v[{20+2*k}:{21+2*k}], v[16:17] op_sel_hi:[1,0]")
    cmul(CBR, CBI, 28, 30, 24, 26)
    a(f"v_max3_f32 v37, abs(v{CBI}), abs(v{CBI+1}), abs(v{CBR})", f"v_max_f32 v37, v37, abs(v{CBR+1})")
    a(f"{sk}:")
    a("s_waitcnt vmcnt(0)")
    a.flush(1)
    a("v_permlane32_swap_b32 v36, v37", "v_max_f32 v36, v36, v37")
    red32(a, "v_max_f32", 36, 38)
    a(f"v_readlane_b32 s{SM}, v36, 0", f"v_readlane_b32 s{SC}, v36, 32")
    a(f"s_add_u32 s{SC}, s{SC}, 0x7fffff", f"s_lshr_b32 s{SC}, s{SC}, 23", f"s_max_u32 s{SC}, s{SC}, 24", f"s_sub_u32 s{SSC}, 269, s{SC}", f"s_lshl_b32 s{SSC}, s{SSC}, 23")
    a(f"v_subrev_f32 v20, s{SM}, v20", f"v_subrev_f32 v21, s{SM}, v21")
    a(f"v_mul_f32 v20, {f32(LOG2E)}, v20", f"v_mul_f32 v21, {f32(LOG2E)}, v21")
    def scale_cb():
        a(f"v_pk_mul_f32 v[{CBR}:{CBR+1}], v[{CBR}:{CBR+1}], s[{SSC}:{SSC+1}] op_sel_hi:[1,0]", f"v_pk_mul_f32 v[{CBI}:{CBI+1}], v[{CBI}:{CBI+1}], s[{SSC}:{SSC+1}] op_sel_hi:[1,0]")
    def anchor(dr, di, l, conj=False):
        lit = {1: "1.0", 2: "2.0"}.get(l, f32(float(l)))
        for e in range(2):
            t = T + 4 * e
            if l != 1: a(f"v_mul_f32 v{t+1}, {lit}, v{THH+e}", f"v_mul_f32 v{t}, {lit}, v{20+e}")
        for e in range(2):
            t = T + 4 * e
            a(f"v_fract_f32 v{t+1}, v{t+1 if l != 1 else THH+e}")
        for e in range(2):
            t = T + 4 * e
            a(f"v_fmac_f32 v{t+1}, {lit}, v{THL+e}")
        for e in range(2):
            t = T + 4 * e
            a(f"v_exp_f32 v{t}, v{t if l != 1 else 20+e}", f"v_cos_f32 v{t+2}, v{t+1}", f"v_sin_f32 v{t+1}, v{t+1}")
        for e in range(2):
            t = T + 4 * e
            a(f"v_mul_f32 v{dr+e}, v{t}, v{t+2}")
            a(f"v_mul_f32 v{di+e}, v{t}, {'-' if conj else ''}v{t+1}")
    em = [0, None]
    def it(cms, row=None, x=None, y=None):
        if em[1]: a(em[1]); em[1] = None
        for k in range(4):
            for c in cms:
                if k < len(c): a(c[k])
        if row is None: return
        t = (98, 76)[em[0] & 1]; em[0] += 1
        for v, tt in ((x, t), (y, t + 2)):
            if v is not None: a(f"v_cvt_pk_f16_f32 v{tt}, v{v}, v{v+2}", f"v_cvt_pk_f16_f32 v{tt+1}, v{v+1}, v{v+3}")
        o = (row & 3) * KG_ROW // 8
        if y is None: em[1] = f"ds_write_b64 v{VEM + row//4}, v[{t}:{t+1}] offset:{8*o}"
        else: em[1] = f"ds_write2_b64 v{VEM + row//4}, v[{t}:{t+1}], v[{t+2}:{t+3}] offset0:{o} offset1:{o + KG_ROW//8}"
    G1, G2, G3 = 40, 44, 48
    VA, VB, VC, VD = 52, 56, 60, 64
    oth = lambda c, p, q: p if c != p else q
    jl = [newlabel("JOB") for _ in range(4)]; jn = newlabel("JOBJ")
    for r in (3, 1, 2): a(f"s_cmp_eq_u32 s{S_ROLE}, {r}", f"s_cbranch_scc1 {jl[r]}")
    anchor(G2, G2 + 2, 128); scale_cb(); anchor(G1, G1 + 2, 1)
    cur = CBR
    for c in range(8):
        nx = oth(cur, VA, VB)
        it([cm_(VC, cur, G2)] + ([cm_(nx, cur, G1, T + 4)] if c < 7 else []), 2 * c, cur, VC); cur = nx
    it([])
    a(f"s_branch {jn}")
    a(f"{jl[1]}:")
    anchor(G2, G2 + 2, 128); scale_cb(); csq(G3, G2); anchor(G1, G1 + 2, 2)
    it([cm_(VA, CBR, G3)]); cur = VA
    it([cm_(VD, VA, G3)])
    for c in range(4):
        nx = oth(cur, VA, VB)
        it([cm_(VC, cur, G2), cm_(nx, cur, G1, T + 4) if c < 3 else csq_(G3, G1, T + 4)], 2 * c, cur, VC); cur = nx
    cur = VD
    for aa in range(4):
        nx = oth(cur, VA, VB)
        it([cm_(VC, cur, G3)] + ([cm_(nx, cur, G2, T + 4)] if aa < 3 else []), 8 + 2 * aa, cur, VC); cur = nx
    it([])
    a(f"s_branch {jn}")
    a(f"{jl[3]}:")
    anchor(G1, G1 + 2, 8, conj=True)
    a(f"v_mov_b32 v{VA}, {f32(32768.0)}", f"v_mov_b32 v{VA+1}, {f32(32768.0)}", f"v_mov_b32 v{VA+2}, 0", f"v_mov_b32 v{VA+3}, 0")
    sc_ = lambda d, x: [f"v_pk_mul_f32 v[{d}:{d+1}], v[{x}:{x+1}], v[{VA}:{VA+1}]", f"v_pk_mul_f32 v[{d+2}:{d+3}], v[{x+2}:{x+3}], v[{VA}:{VA+1}]"]
    it([csq_(G2, G1), sc_(VC, G1)])
    ce, co = VA, VC
    for b in range(8):
        ne, no = oth(ce, VA, VB), oth(co, VC, VD)
        it([] if b == 7 else [sc_(ne, G2) if b == 0 else cm_(ne, ce, G2), cm_(no, co, G2, T + 4)], 2 * b, ce, co); ce, co = ne, no
    it([])
    a(f"ds_write_b8 v15, v{VONE} offset:{FL_G}")
    stamp(a, 3)
    if KOFF: a(f"s_cmp_eq_u32 s{S_G}, 2", "s_cbranch_scc1 KS_G0")
    a(f"s_branch {ex}")
    if KOFF:
        a("KC_SEND:")
        lds_wait(a, FL_NONCE, VNT, "nz", addr=VNA)
        a(f"s_lshl_b32 s{T0_}, s{S_CH}, 12", f"s_lshl_b32 s{T1_}, s{S_ROLE}, 10", f"s_add_u32 s{T0_}, s{T0_}, s{T1_}", f"s_add_u32 s{T0_}, s{T0_}, {hex(WS_KT - 512*4096)}", f"v_add_u32 v24, s{T0_}, v{VLN}")
        a(f"s_mov_b32 s{T1_}, 0xffff", f"v_lshlrev_b32 v25, 16, v{VNT}")
        for r in range(4): a(f"v_cvt_f16_f32 v{20+r}, v{20+r}")
        a(f"s_cmp_lg_u32 s{S_ROLE}, 2", "s_cbranch_scc1 KC_S2")
        a("s_mov_b32 exec_lo, 0", "s_mov_b32 exec_hi, 0xffff0000")
        a(f"v_mov_b32 v20, v{VPR}", f"v_lshrrev_b32 v21, 16, v{VPR}")
        a("s_mov_b64 exec, -1")
        a("KC_S2:")
        for r in range(4): a(f"v_bfi_b32 v{20+r}, s{T1_}, v{20+r}, v{25 if r & 1 else VNT}")
        a(f"global_store_dwordx4 v24, v[20:23], s[{P_WS}:{P_WS+1}] sc1")
        stamp(a, 4)
        a("s_branch KS_G0")
        a("KC_RECV:")
        a(f"s_cmp_eq_u32 s{S_ROLE}, 3", f"s_cbranch_scc1 {ex}")
        a(f"s_lshl_b32 s{T0_}, s{S_CH}, 12", f"s_lshl_b32 s{T1_}, s{S_ROLE}, 10", f"s_add_u32 s{T0_}, s{T0_}, s{T1_}", f"s_add_u32 s{T0_}, s{T0_}, {hex(WS_KT - 512*4096)}", f"v_add_u32 v24, s{T0_}, v{VLN}")
        lds_wait(a, FL_NONCE, VNT, "nz", addr=VNA, sleep=2)
        a(f"v_lshlrev_b32 v25, 16, v{VNT}")
        stamp(a, 2)
        lds_wait(a, FL_G + {0: 0, 1: 4, 2: 16, 3: 8, 4: 20}[ENV("KTRIG", 1)], 17, "b4", sleep=2)
        lp = newlabel("KP"); l1 = newlabel("KPE")
        if ENV("KTD", 0): a(f"s_sleep {ENV('KTD', 0)}")
        a(f"s_branch {l1}")
        a(f"{lp}:")
        a("s_sleep 2")
        a(f"{l1}:")
        a(f"global_load_dwordx4 v[20:23], v24, s[{P_WS}:{P_WS+1}] {MOD('KMOD')}")
        guard(a)
        a("s_waitcnt vmcnt(0)")
        for r in range(4): a(f"v_xor_b32 v{20+r}, v{25 if r & 1 else VNT}, v{20+r}")
        a("v_or3_b32 v26, v20, v21, v22", "v_or_b32 v26, v26, v23", "v_cmp_lt_u32 vcc, 0xffff, v26", f"s_cbranch_vccnz {lp}")
        stamp(a, 3)
        for r in (0, 2): a(f"v_xor_b32 v{20+r}, v{VNT}, v{20+r}")
        for r in range(4): a(f"ds_write_b16 v{IXR[r]}, v{20+r}")
        a(f"s_cmp_lg_u32 s{S_ROLE}, 2", f"s_cbranch_scc1 {ex}")
        a("v_and_b32 v20, 0xffff, v20", "v_lshl_or_b32 v20, v21, 16, v20", f"v_lshlrev_b32 v21, 16, v{VDSK}")
        a("s_mov_b32 exec_lo, 0", "s_mov_b32 exec_hi, 0x10000")
        a(f"ds_write_b64 v14, v[20:21] offset:{C_PAR}")
        a("s_mov_b64 exec, -1")
        a(f"s_branch {ex}")
    a(f"{jl[2]}:")
    anchor(G2, G2 + 2, 128); scale_cb()
    it([csq_(G1, G2), cm_(VD, CBR, G2, T + 4)]); csq(G3, G1); csq(G3, G3)
    it([cm_(VA, CBR, G3), cm_(VC, VD, G3, T + 4)])
    ce, co = VA, VC
    for r in range(4):
        ne, no = oth(ce, VA, VB), oth(co, VC, VD)
        it([cm_(ne, ce, G1)] + ([cm_(no, co, G1, T + 4)] if r < 3 else []), 2 * r, ce, co); ce, co = ne, no
    it([], 8, ce, None)
    a(f"v_mov_b32 v36, {f32(2048.0*LOG2E)}", f"v_mul_f32 v24, s{SM}, v36", "v_max_f32 v24, 0, v24", "v_exp_f32 v24, v24")
    it([])
    a(f"s_sub_u32 s{SIS}, s{SC}, 7", f"s_lshl_b32 s{SIS}, s{SIS}, 23")
    a(f"v_lshlrev_b32 v25, 16, v{VDSK}", f"v_mul_f32 v24, s{SIS}, v24", f"v_mov_b32 v{VPR}, v24")
    a(f"ds_write_b64 v14, v[24:25] offset:{C_PAR}")
    a(f"{jn}:")
    a(f"ds_write_b8 v15, v{VONE} offset:{FL_G}")
    stamp(a, 3); kstamp(a, 2)
    for s in range(8): a(f"ds_read_b128 v[{40+4*s}:{43+4*s}], v{VTL} offset:{64*s}")
    a(f"v_mov_b32 v36, {f32(LOG2E)}", f"v_mul_f32 v36, s{SM}, v36")
    a(f"v_mul_f32 v37, {f32(2048.0)}, v36", "v_max_f32 v37, 0, v37", f"v_add_f32 v37, {f32(23.0)}, v37")
    for r in range(4):
        a(f"v_fma_f32 v{LFR[r]}, v{LFR[r]}, v36, -v37")
    for r in range(4):
        a(f"v_exp_f32 v{LFR[r]}, v{LFR[r]}")
    kstamp(a, 3)
    lds_wait(a, FL_G + 3, 17, "u8", addr=14)
    kstamp(a, 4)
    tr = LdsTrack(a); ids = []
    for s in range(8):
        ids.append(tr.issue(f"ds_read_b128 v[{72+4*s}:{75+4*s}], v{VTE} offset:{KG_T[3]+64*s}"))
    for s in range(8):
        tr.wait(ids[s])
        c = "0" if s < 2 else f"v[{20+4*(s&1)}:{23+4*(s&1)}]"
        a(f"v_mfma_f32_16x16x32_f16 v[{20+4*(s&1)}:{23+4*(s&1)}], v[{40+4*s}:{43+4*s}], v[{72+4*s}:{75+4*s}], {c}")
    for r in range(4): a(f"v_add_f32 v{20+r}, v{20+r}, v{24+r}")
    for r in range(4): a(f"v_mul_f32 v{20+r}, v{20+r}, v{LFR[r]}")
    kstamp(a, 5)
    if KOFF: a(f"s_cmp_eq_u32 s{S_G}, 2", "s_cbranch_scc1 KC_SEND")
    for r in range(4):
        a(f"v_cvt_f16_f32 v{20+r}, v{20+r}")
        a(f"ds_write_b16 v{IXR[r]}, v{20+r}")
    a(f"{ex}:")
    a(f"ds_write_b8 v15, v{VONE} offset:{FL_G+4}")
    a("v_mov_b32 v28, 0", "v_mov_b32 v29, 0", "v_mov_b32 v30, 0", "v_mov_b32 v31, 0", f"v_mov_b32 v32, s{S_GB}")
    a("s_waitcnt vmcnt(0)")
    kstamp(a, 6)
    lds_wait(a, FL_G + 4, 20, "b4", addr=14)
    stamp(a, 4); kstamp(a, 7)
    for e in range(3): a(f"ds_read_u16 v{20+e}, v{I1+e}")
    for e in range(4): a(f"ds_read_u16 v{23+e}, v{I2+e}")
    a("s_mov_b64 exec, 1")
    a(f"ds_write_b128 v32, v[28:31] offset:{R_WS5}", f"ds_write_b128 v32, v[28:31] offset:{R_WS9}", f"ds_write_b128 v32, v[28:31] offset:{R_WS3 + 192*16}")
    a("s_mov_b64 exec, -1")
    a("s_waitcnt lgkmcnt(7)")
    a("v_lshl_or_b32 v28, v21, 16, v20", "v_lshl_or_b32 v29, v22, 16, v21")
    a(f"ds_write_b32 v{D1}, v28 offset:{T_DRE}", f"ds_write_b32 v{D1}, v29 offset:{T_DRO}")
    if DB: a(f"ds_write_b32 v{D1}, v28 offset:{T_DRE - DDL}", f"ds_write_b32 v{D1}, v29 offset:{T_DRO - DDL}")
    a(f"s_waitcnt lgkmcnt({7 if DB else 5})")
    a("v_lshl_or_b32 v30, v24, 16, v23", "v_lshl_or_b32 v31, v26, 16, v25")
    a(f"ds_write_b32 v{D2}, v30", f"ds_write_b32 v{D3}, v31")
    if DB: a(f"ds_write_b32 v{D2}, v30 offset:{DDL}", f"ds_write_b32 v{D3}, v31 offset:{DDL}")
    a(f"ds_write_b8 v15, v{VONE} offset:{FL_G+8}")
    kstamp(a, 8)
    lds_wait(a, FL_G + 8, 20, "b4", addr=14)
    stamp(a, 5)
    PR, FT0, FT1, ACCL, ACCH, ZQ = 16, 18, 19, 20, 24, 28
    VZA, VUA = VDA, VDA2
    LA = ENV("CLA", 6); RSV = ENV("CRSV", 5); NF = ENV("CNF", 2)
    jl = [newlabel("CV") for _ in range(4)]; zend = newlabel("CVE")
    slow = []
    a(f"ds_read_b64 v[{PR}:{PR+1}], v14 offset:{C_PAR}")
    for r in range(1, 4): a(f"s_cmp_eq_u32 s{S_ROLE}, {r}", f"s_cbranch_scc1 {jl[r]}")
    for m in range(4):
        if m: a(f"{jl[m]}:")
        lo, hi = 2 * m, 2 * m + 1
        acc = {lo: ACCL, hi: ACCH}
        ops = []
        if m >= 2:
            for j in (lo, hi): ops.append((j, ("D", 32), ("U", 8 * j - 32)))
        for p in range(max(8 * lo - 16, -7), 8 * hi + 1):
            for j in (lo, hi):
                ks = 8 * j - p
                if 0 <= ks <= 16: ops.append((j, ("D", ks), ("U", p)))
        ncomb0 = len(ops)
        for j in (lo, hi):
            for kind in (3, 5):
                for b in range(6):
                    if 2 <= j - b <= 4: ops.append((j, ("W", kind, b), ("G", kind, j - b)))
            for kind in (7, 9):
                for b in range(2):
                    if j - 2 * b - 4 >= 0: ops.append((j, ("W", kind, b), ("G", kind, j - 2 * b - 4)))
        nops = len(ops)
        first, last = {}, {}
        for k, (j, A, B) in enumerate(ops):
            for key in (A, B):
                first.setdefault(key, k); last[key] = k
        lastlo = max(k for k, o in enumerate(ops) if o[0] == lo)
        pool = list(range(32, 128, 4))
        reg, lid = {}, {}
        def load(tr, key):
            rg = pool.pop(0); reg[key] = rg
            if (XP & 8 and key[0] == "G") or (XP & 16 and key[0] == "W") or (XP & 32 and key[0] == "U"):
                lid[key] = -100; return
            if key[0] == "D":
                ksv = -2 if key[1] == 32 else key[1]
                o = (16 - ksv) * 16
                if DB:
                    tr.issue(f"ds_read_b64 v[{rg}:{rg+1}], v{VDA} offset:{4*o}")
                    lid[key] = tr.issue(f"ds_read_b64 v[{rg+2}:{rg+3}], v{VDA} offset:{4*o+8}")
                    return
                ad, o = (VDA, o) if o + 3 <= 255 else (VDA2, o - 160)
                tr.issue(f"ds_read2_b32 v[{rg}:{rg+1}], v{ad} offset0:{o} offset1:{o+1}")
                lid[key] = tr.issue(f"ds_read2_b32 v[{rg+2}:{rg+3}], v{ad} offset0:{o+2} offset1:{o+3}")
            elif key[0] == "G":
                _, kind, ix = key
                if kind in (3, 5): o = (4 - ix) * 16 + (64 if kind == 5 else 0); ad = VG8
                else: o = (3 - ix) * 8 + (96 if kind == 9 else 0); ad = VG16
                if DB:
                    tr.issue(f"ds_read_b64 v[{rg}:{rg+1}], v{ad} offset:{4*o}")
                    lid[key] = tr.issue(f"ds_read_b64 v[{rg+2}:{rg+3}], v{ad} offset:{4*o+8}")
                    return
                tr.issue(f"ds_read2_b32 v[{rg}:{rg+1}], v{ad} offset0:{o} offset1:{o+1}")
                lid[key] = tr.issue(f"ds_read2_b32 v[{rg+2}:{rg+3}], v{ad} offset0:{o+2} offset1:{o+3}")
            elif key[0] == "U":
                lid[key] = tr.issue(f"ds_read_b128 v[{rg}:{rg+3}], v{VB_} offset:{64*(key[1]+7)}")
            else:
                _, kind, b = key
                if kind in (3, 5): o = (R_WS3 if kind == 3 else R_WS5) + 512 * b; ad, st = VT8, 64
                else: o = (R_WS7 if kind == 7 else R_WS9) + 1024 * b; ad, st = VT16, 128
                tr.issue(f"ds_read_b64_tr_b16 v[{rg}:{rg+1}], v{ad} offset:{o}")
                lid[key] = tr.issue(f"ds_read_b64_tr_b16 v[{rg+2}:{rg+3}], v{ad} offset:{o+st}")
        keys = sorted(first, key=lambda k_: first[k_])
        tr = LdsTrack(a)
        for key in keys:
            if key[0] == "D": load(tr, key)
        for key in keys:
            if key[0] == "G" and len(pool) > RSV: load(tr, key)
        pend = [k_ for k_ in keys if k_ not in reg]
        a(f"v_lshlrev_b32 v{FT0}, 3, v3", f"v_sub_u32 v{FT0}, v{VB_}, v{FT0}")
        a(f"v_lshrrev_b32 v{FT1}, 2, v2", f"v_lshl_add_u32 v{FT1}, v{FT1}, 2, v3", f"v_and_b32 v{ZQ}, 3, v2", f"v_lshlrev_b32 v{ZQ}, 4, v{ZQ}")
        if SWZ: a(f"v_mul_u32_u24 v{FT1}, s{CSH}, v{FT1}", f"v_xor_b32 v{FT1}, s{CFL}, v{FT1}")
        else: a(f"v_lshlrev_b32 v{FT1}, s{CSH}, v{FT1}")
        a("s_waitcnt lgkmcnt(0)")
        a(f"v_mov_b32 v{VUA}, v{FT0}", f"v_add_u32 v{VZA}, v{FT1}, v{ZQ}")
        a(f"v_xor_b32 v{VLN}, s{CXR}, v{VLN}")
        lds_wait(a, FL_UF, FT0, "b4")
        a(f"s_setprio {eval(os.environ.get('CPRIO', '[1,1,1,1]'))[m]}")
        stamp(a, 6); cstamp(a, 1)
        if XP & 4: a(f"v_mov_b32 v{FT0}, 0", f"s_cmp_lg_u32 s{S_G}, 0", f"s_cbranch_scc1 {zend}")
        for key in lid: lid[key] = -100
        tr = LdsTrack(a)
        ud = {}
        fill = []
        fill.append(("lds", f"ds_read_b64 v[{ZQ}:{ZQ+1}], v{VUA} offset:{480 + 512*lo}", 2))
        fill.append(("ldsU", f"ds_read_b64 v[{ZQ+2}:{ZQ+3}], v{VUA} offset:{480 + 512*hi}", 2))
        for ti, j in enumerate((lo, hi)):
            fill.append(("alloc", j, 5))
            if ti == 0: fill.append(("waitU", None, 5))
            for e in range(4):
                sel = "op_sel:[1,0,0] " if e & 1 else ""
                fill.append(("f", (lambda j=j, e=e, ti=ti, sel=sel: f"v_fma_mix_f32 v{ud[j]+e}, v{ZQ+2*ti+e//2}, v{PR+1}, 0 {sel}op_sel_hi:[1,0,0]"), 5))
            for e in range(4):
                fill.append(("f", (lambda j=j, e=e: f"v_cvt_pk_bf16_f32 v{ud[j]+e}, 0, v{ud[j]+e}"), 5))
        def epi(j, ti):
            y = acc[j]; z = ZQ + 2 * ti; out = []
            for p in range(4): out.append(lambda p=p: f"v_mul_f32 v{y+p}, v{y+p}, v{PR}")
            for p in range(4): out.append(lambda p=p: f"v_cvt_pk_bf16_f32 v{y+p}, 0, v{y+p}")
            for p in range(4): out.append(lambda p=p: f"v_add_f32 v{y+p}, v{y+p}, v{ud[j]+p}")
            for p in range(2): out.append(lambda p=p: f"v_cvt_pk_bf16_f32 v{z+p}, v{y+2*p}, v{y+2*p+1}")
            for p in range(2): out.append(lambda p=p: f"v_min_u32 v{z+p}, -2, v{z+p}")
            return out
        for f in epi(lo, 0): fill.append(("f", f, lastlo + 2))
        fill.append(("lds", f"ds_read_u8 v{FT0}, v14 offset:{FL_S6 - 16 + m}", nops - 4))
        fill.append(("lds", f"ds_read_b128 v[{ACCL}:{ACCL+3}], v{VLN} offset:{G_BASE + R_RED + 1024*m}", nops - 4))
        uid = [None]
        def do_fill(n, k):
            while n > 0 and fill:
                kind, t, e = fill[0]
                if e > k: return
                if kind == "alloc":
                    if len(pool) < 2: return
                    ud[t] = pool.pop(); fill.pop(0); continue
                fill.pop(0)
                if kind == "f":
                    if XP & 2 and "v_min" not in t(): continue
                    a(t())
                elif kind == "lds": tr.issue(t)
                elif kind == "ldsU": uid[0] = tr.issue(t)
                elif kind == "waitU": tr.wait(uid[0]); continue
                n -= 1
        kW = ncomb0 - LA if nops > ncomb0 else None
        wok = [False]
        def issue_loads(k, nmax):
            while pend and pool and nmax > 0:
                key = pend[0]
                if first[key] - k > (LA if key[0] != "G" else LA + 4): return
                if key[0] == "W" and not wok[0]:
                    alt = [x for x in pend if x[0] != "W" and first[x] - k <= LA + 2]
                    if not alt: return
                    key = alt[0]
                pend.remove(key); load(tr, key); nmax -= 1
        issue_loads(0, RSV)
        started = set()
        for k, (j, A, B) in enumerate(ops):
            assert A in reg and B in reg, (m, k, A, B)
            tr.wait(max(lid[A], lid[B]))
            c = f"v[{acc[j]}:{acc[j]+3}]" if j in started else "0"
            started.add(j)
            a(f"v_mfma_f32_16x16x32_f16 v[{acc[j]}:{acc[j]+3}], v[{reg[A]}:{reg[A]+3}], v[{reg[B]}:{reg[B]+3}], {c}")
            for key in (A, B):
                if last[key] == k: pool.append(reg[key])
            if kW is not None and k == kW - 3:
                wfid = tr.issue(f"ds_read_b32 v{FT0}, v14 offset:{FL_G + 12}")
            if k == kW:
                tr.wait(wfid)
                sl = newlabel("WS"); bk = newlabel("WB")
                a(f"v_cmp_ne_u32 vcc, s{S_ONES}, v{FT0}", f"s_cbranch_vccnz {sl}")
                a(f"{bk}:")
                slow.append((sl, bk))
                wok[0] = True
                cstamp(a, 3)
            issue_loads(k + 1, 2)
            do_fill(NF, k)
            if k == ncomb0 // 2: cstamp(a, 2)
            if k == ncomb0 - 1: cstamp(a, 4)
        cstamp(a, 5)
        do_fill(1000, 1000)
        assert not fill and not pend
        stamp(a, 7)
        for f in epi(hi, 1): a(f())
        if m < 3: a(f"s_branch {zend}")
    a(f"{zend}:")
    cstamp(a, 6)
    gA = newlabel("ZA"); gC = newlabel("ZC"); zs = newlabel("ZS"); zb = newlabel("ZB"); zc = newlabel("ZCB"); zd = newlabel("ZD")
    a("s_waitcnt lgkmcnt(0)")
    a(f"s_cmp_lg_u32 s{S_G}, 1", f"s_cbranch_scc1 {gA}")
    a(f"v_cmp_ne_u32 vcc, 1, v{FT0}", f"s_cbranch_vccnz {zs}")
    a(f"{zb}:")
    a(f"s_mov_b64 exec, s[{CM}:{CM+1}]")
    for k in range(4): a(f"v_swap_b32 v{ZQ+k}, v{ACCL+k}")
    a("s_mov_b64 exec, -1")
    cstamp(a, 8)
    a(f"buffer_store_dwordx4 v[{ZQ}:{ZQ+3}], v{VZA}, s[{R0}:{R0+3}], s{CZ1} offen sc1")
    a(f"buffer_store_dwordx4 v[{ACCL}:{ACCL+3}], v{VZA}, s[{R0}:{R0+3}], s{CZ0} offen sc1")
    if ENV("ZG2", 0) >= 2 or ENV("ZT", 0) or ZM or BT == 4: a(f"ds_write_b8 v15, v{VONE} offset:{FL_ZISS - 16}")
    if ZM:
        a(f"s_cmp_lg_u32 s{S_ROLE}, 3", f"s_cbranch_scc1 {zd}")
        a(f"ds_read_b32 v32, v{VZ} offset:{FL_NONCE}", f"s_lshl_b32 s{T0_}, s{S_B2}, 7", f"s_add_u32 s{T0_}, s{T0_}, {hex(WS_MARK)}", f"v_mov_b32 v33, s{T0_}")
        a("s_mov_b64 exec, 1", "s_waitcnt lgkmcnt(0)")
        a(f"global_store_dword v33, v32, s[{P_WS}:{P_WS+1}] sc1")
        a("s_mov_b64 exec, -1")
    a(f"s_branch {zd}")
    for (sl, bk) in slow:
        a(f"{sl}:")
        lds_wait(a, FL_G + 12, FT0, "b4", addr=14)
        a(f"s_branch {bk}")
    a(f"{zs}:")
    a(f"v_mov_b32 v{FT1}, s{S_ROLE}")
    l = newlabel("ZW")
    a(f"{l}:")
    a(f"ds_read_u8 v{FT0}, v{FT1} offset:{FL_S6}")
    guard(a)
    a("s_waitcnt lgkmcnt(0)")
    a(f"v_cmp_ne_u32 vcc, 1, v{FT0}", f"s_cbranch_vccnz {l}")
    a(f"v_lshl_add_u32 v{FT1}, v{FT1}, 10, v{VLN}")
    a(f"ds_read_b128 v[{ACCL}:{ACCL+3}], v{FT1} offset:{G_BASE + R_RED}")
    a("s_waitcnt lgkmcnt(0)")
    a(f"s_branch {zb}")
    a(f"{gA}:")
    if FLD:
        a(f"v_cmp_eq_u32 vcc, 1, v{FT0}", "s_cbranch_vccnz KS_CLK")
        lds_wait(a, FL_S6 - 16, FT0, "b4")
        a("KS_CLK:")
    a(f"s_cmp_lg_u32 s{S_G}, 0", f"s_cbranch_scc1 {gC}")
    a(f"v_mov_b32 v{FT1}, s{S_ROLE}", f"v_lshl_add_u32 v{FT0}, v{FT1}, 10, v{VLN}")
    a(f"ds_write_b128 v{FT0}, v[{ZQ}:{ZQ+3}] offset:{G_BASE + R_RED}")
    a(f"ds_write_b8 v{FT1}, v{VONE} offset:{FL_S6}")
    cstamp(a, 8)
    a(f"s_branch {zd}")
    a(f"{gC}:")
    cstamp(a, 8)
    a(f"buffer_store_dwordx4 v[{ZQ}:{ZQ+3}], v{VZA}, s[{R0}:{R0+3}], s{CZ0} offen sc1")
    a(f"{zd}:")
    stamp(a, 8)
    if DBG:
        a(f"s_mul_i32 s{T0_}, s{S_ROLE}, 1280", f"s_add_u32 s{T1_}, s{T0_}, s{S_GB}", f"v_lshl_add_u32 v20, v1, 2, s{T1_}")
        a(f"s_mul_i32 s{T1_}, s{S_CH}, 5376", f"s_add_u32 s{T1_}, s{T1_}, s{T0_}", f"s_add_u32 s{T1_}, s{T1_}, {hex(WS_DBG)}", f"v_lshl_add_u32 v21, v1, 2, s{T1_}")
        for k in range(5 + 1):
            a(f"ds_read_b32 v22, v20 offset:{R2 + 256*k}", "s_waitcnt lgkmcnt(0)", f"global_store_dword v21, v22, s[{P_WS}:{P_WS+1}] offset:{256*k}")
        a(f"ds_read_b32 v22, v14 offset:{C_PAR}", f"s_lshl_b32 s{T1_}, s{S_CH}, 2", f"s_add_u32 s{T1_}, s{T1_}, {hex(WS_DBG + 0x300000)}", f"v_mov_b32 v21, s{T1_}")
        a("s_waitcnt lgkmcnt(0)", f"global_store_dword v21, v22, s[{P_WS}:{P_WS+1}]")
    a(f"s_lshl_b32 s{T0_}, s{S_G}, 2", f"s_add_u32 s{T0_}, s{T0_}, s{S_ROLE}", f"v_mov_b32 v8, s{T0_}")
    a("s_waitcnt vmcnt(0)")
    a(f"ds_write_b8 v8, v{VONE} offset:{FL_ZDONE}")


def gen_wjobs(a):
    WA, WD = 10, 11
    end = newlabel("WJE"); w1 = newlabel("WJ1"); w2 = newlabel("WJ2")
    a(f"s_cmp_eq_u32 s{S_WAVE}, 2", f"s_cbranch_scc1 {w2}")
    if XP & 1: a(f"s_branch {w2}")
    a(f"s_add_u32 s{T0_}, s{S_WAVE}, 1", f"s_lshr_b32 s{T0_}, s{T0_}, 2", f"s_cmp_eq_u32 s{S_WAVE}, 1", f"s_cselect_b32 s{T0_}, 2, s{T0_}", f"s_lshl_b32 s{T0_}, s{T0_}, 10")
    a(f"v_lshl_add_u32 v{WA}, v1, 4, s{T0_}", f"v_add_u32 v{WD}, {G_BASE}, v{WA}")
    lds_wait(a, FL_UF, 12, "b4")
    a(f"s_setprio {ENV('WPRIO', 3)}")
    for g in range(3):
        E = 20 + 12 * g; o = C_U + U_SIZE * g + 2 * (240 - 16)
        a(f"ds_read_b128 v[{E}:{E+3}], v{WA} offset:{o}", f"ds_read_b128 v[{E+4}:{E+7}], v{WA} offset:{o+16}", f"ds_read_b64 v[{E+8}:{E+9}], v{WA} offset:{o+32}")
    a(f"s_cmp_eq_u32 s{S_WAVE}, 1", f"s_cbranch_scc1 {w1}")
    for full in (1, 0):
        if not full: a(f"{w1}:")
        for g in range(3):
            if g == 2: a(f"s_cmp_lt_u32 s{S_I}, 24", f"s_cbranch_scc1 {end}")
            E = lambda i: 20 + 12 * g + i
            O = lambda i: 56 + i
            T = lambda i: 65 + i
            Q = lambda i: 72 + i
            X = lambda i: 79 + i
            Y = lambda i: 85 + i
            W7, W9 = 92, 96
            a(f"ds_read_b32 v12, v{VZ} offset:{FL_G + 16*g + 4}")
            if g == 0: a("s_waitcnt lgkmcnt(7)")
            n = 8 if full else 7
            for i in range(1, n + 1): a(f"v_alignbit_b32 v{O(i)}, v{E(i+1)}, v{E(i)}, 16")
            for i in range(1, n + 1): a(f"v_pk_add_f16 v{T(i)}, v{O(i)}, v{E(i+1)}")
            for i in range(1, 5): a(f"v_pk_add_f16 v{X(i)}, v{T(i)}, v{O(i+1)}")
            for i in (range(2, 8) if full else range(3, 7)): a(f"v_pk_add_f16 v{Q(i)}, v{T(i)}, v{T(i+1)}")
            ok = newlabel("WJK")
            a("s_waitcnt lgkmcnt(0)")
            a(f"v_cmp_eq_u32 vcc, s{S_ONES}, v12", f"s_cbranch_vccnz {ok}")
            lds_wait(a, FL_G + 16 * g + 4, 12, "b4", sleep=1)
            a(f"{ok}:")
            off = G_SIZE * (g & 1)
            if g == 2: a(f"v_add_u32 v{WD}, {2*G_SIZE}, v{WD}")
            a(f"ds_write_b128 v{WD}, v[{X(1)}:{X(4)}] offset:{off + R_WS3}")
            for i in (range(2, 7) if full else range(3, 7)): a(f"v_pk_add_f16 v{Y(i)}, v{E(i)}, v{Q(i)}")
            a(f"ds_write_b128 v{WD}, v[{Y(3)}:{Y(6)}] offset:{off + R_WS5 + 16}")
            if full:
                for i in range(5, 8): a(f"v_pk_add_f16 v{X(i)}, v{T(i)}, v{O(i+1)}")
                for k in range(4): a(f"v_pk_add_f16 v{W7+k}, v{Q(2+k)}, v{X(4+k)}")
                a(f"ds_write_b128 v{WD}, v[{W7}:{W7+3}] offset:{off + R_WS7}")
                for k in range(4): a(f"v_pk_add_f16 v{W9+k}, v{Y(2+k)}, v{Q(4+k)}")
                a(f"ds_write_b128 v{WD}, v[{W9}:{W9+3}] offset:{off + R_WS9 + 16}")
            a(f"ds_write_b8 v116, v{VONE} offset:{FL_G + 16*g + 12}")
        a(f"s_branch {end}")
    a(f"{w2}:")
    for g in range(3): a(f"ds_write_b8 v116, v{VONE} offset:{FL_G + 16*g + 12}")
    def flag_check():
        a("s_setprio 0")
        for d in range(4): a(f"v_mov_b32_dpp v{32+d}, v58 quad_perm:[{d},{d},{d},{d}] {DPPM} ; nodst")
        a("v_lshlrev_b32 v12, 6, v1", f"v_add_u32 v12, {hex(WS_FLAG1 + 2048)}, v12", f"v_mov_b32 v13, s{S_ONES}")
        if ENV("FLDD", 0): a(f"s_sleep {ENV('FLDD', 0)}")
        lp = newlabel("FP"); l1 = newlabel("FPE")
        a(f"s_branch {l1}", f"{lp}:", "s_sleep 2", f"{l1}:")
        a(f"global_load_dwordx4 v[20:23], v12, s[{P_WS}:{P_WS+1}] offset:-2048 sc1", f"global_load_dwordx4 v[24:27], v12, s[{P_WS}:{P_WS+1}] offset:2048 sc1")
        guard(a)
        a("s_waitcnt vmcnt(0)")
        for k in range(8): a(f"v_xor_b32 v{20+k}, v{32+(k&3)}, v{20+k}")
        a("v_or3_b32 v20, v20, v21, v22", "v_or3_b32 v23, v23, v24, v25", "v_or3_b32 v20, v20, v26, v27", "v_or_b32 v20, v20, v23", "v_cmp_ne_u32 vcc, 0, v20", f"s_cbranch_vccnz {lp}")
        a(f"ds_write2_b32 v{VZ}, v13, v13 offset0:{(FL_S6 - 16)//4} offset1:{(FL_S6 + 16)//4}")
    if FLD: flag_check()
    if PB and 1 <= PCT <= 3:
        a(f"s_cmp_ge_u32 s{S_FI}, 18", "s_cbranch_scc1 KS_PCL")
        srd(a, R2_, P_WS, PART_BYTES, WS_PART)
        a(f"s_mul_i32 s{T2_}, s{S_BLK}, {PROW}", "v_lshlrev_b32 v100, 4, v1")
        for d in range(4): a(f"v_mov_b32 v{104+d}, -1")
        if PCT == 2: lds_wait(a, FL_UF, 12, "b4", sleep=1)
        if PCT == 3: lds_wait(a, FL_G + 16 + 12, 12, "b4", sleep=1)
        if ENV("PCD", 0): a(f"s_sleep {ENV('PCD', 0)}")
        for k in range(9):
            if k in (4, 8): a(f"s_add_u32 s{T2_}, s{T2_}, 4096")
            a(f"buffer_store_dwordx4 v[104:107], v100, s[{R2_}:{R2_+3}], s{T2_} offen offset:{1024*(k&3)} sc1")
        a(f"s_branch {end}")
        a("KS_PCL:")
    if PF2 > PF1 or PFD:
        W2 = ENV("PF2W", 14)
        a(f"s_sub_u32 s{T2_}, s{S_FI}, {ENV('PF2B', 18)}", f"s_and_b32 s{T2_}, s{T2_}, 31", f"s_cmp_ge_u32 s{T2_}, {W2}", f"s_cbranch_scc1 {end}")
        pf_lane(a, 100, 101)
        lds_wait(a, FL_UF, 12, "b4", sleep=1)
        if PF2 > PF1:
            pf_gu(a, 100, T2_, W2, PF1, PF2, 102, "KS_PF2D")
            a("KS_PF2D:")
        if PFD:
            a(f"s_sub_u32 s{T2_}, {W2-1}, s{T2_}")
            pf_down(a, T2_, W2, 0, PFD, 100, 120, end)
    a(f"{end}:")

def gen(a):
    label = NAME + "_kernel"
    a(f".globl {label}", ".p2align 8", f".type {label},@function", f"{label}:")
    a("s_cmp_ge_u32 s2, 256", "s_cbranch_scc1 KS_END")
    stamp_begin(a)
    a("s_load_dwordx16 s[4:19], s[0:1], 0", "s_load_dwordx16 s[20:35], s[0:1], 64", f"s_load_dwordx2 s[{P_WS}:{P_WS+1}], s[0:1], 128")
    a(f"v_readfirstlane_b32 s{S_WAVE}, v0", f"s_lshr_b32 s{S_WAVE}, s{S_WAVE}, 6")
    a(f"s_and_b32 s{S_XC}, s2, 7", f"s_lshr_b32 s{S_I}, s2, 3")
    if ENV("CPF", 1):
        a(f"s_cmp_lg_u32 s{S_WAVE}, {ENV('CPFW', 0)}", "s_cbranch_scc1 KS_CPE")
        cm = ENV("CPFM", 0)
        if cm == 1: a(f"s_sub_u32 s{T0_}, s{S_I}, 8", f"s_cmp_lt_u32 s{T0_}, 16", "s_cbranch_scc1 KS_CPE")
        if cm == 2: a(f"s_cmp_lt_u32 s{S_I}, 24", "s_cbranch_scc1 KS_CPE")
        if cm == 3: a(f"s_cmp_ge_u32 s{S_I}, 8", "s_cbranch_scc1 KS_CPE")
        if cm == 4: a(f"s_cmp_ge_u32 s{S_I}, 4", "s_cbranch_scc1 KS_CPE")
        if cm == 5: a(f"s_cmp_lt_u32 s{S_I}, 28", "s_cbranch_scc1 KS_CPE")
        a("s_getpc_b64 s[42:43]")
        a("KS_PC:")
        a(f"s_and_b32 s{T0_}, s{S_I}, 7", f"s_mul_i32 s{T0_}, s{T0_}, 4608", "v_and_b32 v126, 63, v0", f"v_lshl_add_u32 v126, v126, 7, s{T0_}", "v_min_u32 v126, KS_END-KS_PC, v126")
        a(f"global_load_dword v127, v126, s[42:43] {MOD('CPFMOD', '')}")
        a("KS_CPE:")
    if ENV("REMAP", 1):
        a(f"s_add_u32 s{T0_}, s{S_WAVE}, 8", f"s_sub_u32 s{T1_}, s{S_WAVE}, 4", f"s_cmp_lt_u32 s{S_WAVE}, 8", f"s_cselect_b32 s{T0_}, s{T0_}, s{T1_}")
        a(f"s_cmp_lt_u32 s{S_WAVE}, 4", f"s_cselect_b32 s{S_WAVE}, s{S_WAVE}, s{T0_}")
    a("v_and_b32 v1, 63, v0", "v_and_b32 v2, 15, v1", "v_lshrrev_b32 v3, 4, v1", f"v_mov_b32 v{VZ}, 0", f"v_mov_b32 v{VONE}, 1")
    a(f"s_mov_b32 s{S_GUARD}, {GUARD}", f"s_mov_b32 s{S_ONES}, 0x01010101")
    a(f"s_lshl_b32 s{S_B2}, s{S_XC}, 5", f"s_add_u32 s{S_B2}, s{S_B2}, s{S_I}")
    if RM: a(f"s_add_u32 s{T0_}, s{S_I}, 16", f"s_sub_u32 s{S_FI}, s{S_I}, 8", f"s_cselect_b32 s{S_FI}, s{T0_}, s{S_FI}", f"s_cmp_ge_u32 s{S_I}, 24", f"s_cselect_b32 s{S_FI}, s{S_I}, s{S_FI}")
    a(f"s_mul_i32 s{S_BLK}, s{S_XC}, 18", f"s_add_u32 s{S_BLK}, s{S_BLK}, s{S_FI}")
    a(f"s_cmp_lt_u32 s{S_WAVE}, 4", "s_cbranch_scc1 KS_L")
    a(f"s_cmp_ge_u32 s{S_WAVE}, 12", "s_cbranch_scc1 KS_X")
    a("s_setprio 2")
    a(f"s_lshr_b32 s{S_G}, s{S_WAVE}, 2", f"s_sub_u32 s{S_G}, s{S_G}, 1")
    a(f"s_mul_i32 s{S_ROLE}, s{S_G}, 3", f"s_xor_b32 s{S_ROLE}, s{S_ROLE}, s{S_WAVE}", f"s_and_b32 s{S_ROLE}, s{S_ROLE}, 3")
    a(f"s_lshl_b32 s{S_CH}, s{S_B2}, 1", f"s_add_u32 s{S_CH}, s{S_CH}, s{S_G}")
    a(f"s_lshl_b32 s{T0_}, s{S_ROLE}, 11", f"s_add_u32 s{T0_}, s{T0_}, {C_STG}", f"v_lshl_add_u32 v28, v1, 3, s{T0_}")
    pre_ixlf(a)
    a("KS_GRP:")
    gen_group(a)
    if ZM:
        a(f"s_cmp_lg_u32 s{S_WAVE}, 4", "s_cbranch_scc1 KS_K1")
        a("s_setprio 0", f"ds_read_b32 v7, v{VZ} offset:{FL_NONCE}")
        a(f"s_add_u32 s{T0_}, s{S_I}, {ENV('ZMO', 1)}", f"v_lshl_add_u32 v6, v1, 2, s{T0_}", "v_and_b32 v6, 31, v6", f"s_lshl_b32 s{T0_}, s{S_XC}, 12", f"s_add_u32 s{T0_}, s{T0_}, {hex(WS_MARK)}", f"v_lshl_add_u32 v6, v6, 7, s{T0_}")
        a("s_mov_b64 exec, 0xff")
        a("KS_ZM:")
        a(f"s_sleep {ENV('ZMS', 2)}")
        a(f"global_load_dword v8, v6, s[{P_WS}:{P_WS+1}] sc1")
        guard(a)
        a("s_waitcnt vmcnt(0) lgkmcnt(0)")
        a("v_cmp_eq_u32 vcc, v7, v8", f"s_bcnt1_i32_b64 s{T0_}, vcc", f"s_cmp_lt_u32 s{T0_}, {ZM}", "s_cbranch_scc1 KS_ZM")
        stamp2(a, 4)
        if ENV("ZMD", 0): a(f"s_sleep {ENV('ZMD', 0)}")
        a("s_mov_b64 exec, -1")
        a(f"ds_write_b32 v{VZ}, v{VONE} offset:{FL_KACK}")
    if KD: a("s_branch KS_K1")
    a(f"s_cmp_lg_u32 s{S_WAVE}, 4", "s_cbranch_scc1 KS_K1")
    a("s_setprio 0")
    srd(a, R3, P_WS, 16384, WS_KEYS)
    a("v_and_b32 v6, 1, v1", "v_lshlrev_b32 v6, 4, v6", f"s_lshl_b32 s{T0_}, s{S_B2}, 5")
    lds_wait(a, FL_ZF, 8, "b4", sleep=1)
    a("s_mov_b64 exec, 3")
    a(f"s_setprio {ENV('KSPRIO', 1)}")
    a("KS_K0:")
    a(f"ds_read_b128 v[8:11], v6 offset:{C_KEY}")
    guard(a)
    a("s_waitcnt lgkmcnt(0)")
    a("v_min3_u32 v12, v8, v9, v10", "v_min_u32 v12, v12, v11", "v_cmp_eq_u32 vcc, 0, v12", "s_cbranch_vccnz KS_K0")
    a(f"buffer_store_dwordx4 v[8:11], v6, s[{R3}:{R3+3}], s{T0_} offen sc1")
    a("s_mov_b64 exec, -1")
    stamp2(a, 4)
    a("s_waitcnt vmcnt(0)")
    a(f"ds_write_b32 v{VZ}, v{VONE} offset:{FL_KACK}")
    a("KS_K1:")
    a(f"s_cmp_lt_u32 s{S_FI}, 18", "s_cbranch_scc1 KS_T")
    a("s_waitcnt lgkmcnt(0)")
    endwave(a)
    a("KS_X:")
    a(f"s_cmp_lt_u32 s{S_I}, 24", "s_cbranch_scc1 KS_X2")
    a(f"s_setprio {ENV('KCPRIO', 2)}")
    a("KS_XC:")
    a(f"s_mov_b32 s{S_G}, 2", f"s_add_u32 s{S_ROLE}, s{S_WAVE}, 3", f"s_and_b32 s{S_ROLE}, s{S_ROLE}, 3")
    a(f"s_lshl_b32 s{S_CH}, s{S_XC}, 3", f"s_and_b32 s{T0_}, s{S_I}, 7", f"s_add_u32 s{S_CH}, s{S_CH}, s{T0_}", f"s_add_u32 s{S_CH}, s{S_CH}, 512")
    a(f"s_lshl_b32 s{T0_}, s{S_ROLE}, 11", f"s_add_u32 s{T0_}, s{T0_}, {C_STG}", f"v_lshl_add_u32 v28, v1, 3, s{T0_}")
    a("s_branch KS_GRP")
    a("KS_X2:")
    a(f"s_cmp_lt_u32 s{S_I}, 8", "s_cbranch_scc1 KS_X3")
    a(f"s_sub_u32 s{T5_}, s{S_WAVE}, 8")
    a("s_branch KS_LN1")
    a("KS_X3:")
    a(f"s_lshl_b32 s{T0_}, s2, 4", f"s_add_u32 s{T0_}, s{T0_}, s{S_WAVE}", f"s_cmp_lg_u32 s{T0_}, {16*ENV('NPUB', 2) + 12}", "s_cbranch_scc1 KS_X3B")
    a("s_setprio 3")
    a(f"s_memrealtime s[{T0_}:{T1_}]")
    a("v_and_b32 v6, 3, v1", "v_lshlrev_b32 v7, 2, v6", "v_min_u32 v6, 2, v6", "v_lshlrev_b32 v6, 2, v6", "v_cmp_eq_u32 vcc, 3, v1")
    a("s_waitcnt lgkmcnt(0)")
    a(f"v_mov_b32 v8, s{T0_}", f"v_mov_b32 v9, s{T1_}", "v_alignbit_b32 v8, v8, v8, v6", f"v_cndmask_b32 v9, v{VZ}, v9, vcc", "v_xor_b32 v8, v8, v9")
    a("v_and_b32 v9, 0xf0000fff, v8", "v_and_b32 v10, 0xfff000, v8", "v_lshl_or_b32 v9, v10, 4, v9", "v_lshrrev_b32 v10, 12, v8", "v_and_b32 v10, 0xf000, v10")
    a("v_or3_b32 v9, v9, v10, v9", "v_or_b32 v9, 0x80000000, v9")
    a("s_mov_b64 exec, 15")
    a(f"global_store_dword v7, v9, s[{P_DBG}:{P_DBG+1}] sc1")
    if SPIN: a(f"v_mov_b32 v8, s{T0_}", f"global_store_dword v7, v8, s[{P_DBG}:{P_DBG+1}] offset:64 sc1")
    a("s_mov_b64 exec, -1")
    a("s_setprio 0")
    a("KS_X3B:")
    if KOFF:
        a(f"s_setprio {ENV('KPPRIO', 3)}")
        a("s_branch KS_XC")
    a("s_waitcnt lgkmcnt(0)")
    a("s_barrier")
    a("s_branch KS_G")
    a("KS_X4:")
    if LNV: a("s_setprio 0")
    a(f"s_cmp_lt_u32 s{S_FI}, 18", "s_cbranch_scc1 KS_GN" if LNV else "s_cbranch_scc1 KS_G")
    if XPF and NL2:
        pf_lane(a, 46, 47)
        a(f"s_mul_i32 s{T2_}, s{S_WAVE}, 6", f"s_add_u32 s{T2_}, s{T2_}, s{S_I}", f"s_sub_u32 s{T2_}, s{T2_}, {18 + 72}")
        lds_wait(a, FL_UTOK, 10, "b4", sleep=2)
        pf_gu(a, 46, T2_, 24, PFA + 10 * NLL, PF0, 47, "KS_XPE")
        a("KS_XPE:")
    a("s_waitcnt vmcnt(0) lgkmcnt(0)")
    endwave(a)
    a("KS_L:")
    a("v_lshlrev_b32 v6, 2, v0", f"ds_write_b32 v6, v{VZ}")
    a("v_mov_b32 v8, 0", "v_mov_b32 v9, 0", f"s_min_u32 s{T0_}, s{S_WAVE}, 2", f"s_mul_i32 s{T0_}, s{T0_}, {U_SIZE}", "v_min_u32 v6, 59, v1", f"v_lshl_add_u32 v6, v6, 3, s{T0_}")
    a(f"ds_write_b64 v6, v[8:9] offset:{C_U}")
    a(f"s_mov_b32 s{T5_}, s{S_WAVE}")
    a(f"s_sub_u32 s{T0_}, s{S_I}, 8", f"s_cmp_lt_u32 s{T0_}, 16", "s_cbranch_scc0 KS_L0")
    a("KS_LN1:")
    a("s_setprio 3")
    gen_ln1v(a) if LNV else gen_ln1(a)
    if (NLL or NL2) and not RM and not XPF:
        if not NL: pf_lane(a, 46, 47)
        a(f"s_cmp_ge_u32 s{S_FI}, 18", "s_cbranch_scc1 KS_LL2")
        if NLL:
            a(f"s_mul_i32 s{T2_}, s{S_WAVE}, 10", f"s_add_u32 s{T2_}, s{T2_}, s{S_I}", f"s_sub_u32 s{T2_}, s{T2_}, 8")
            pf_gu(a, 46, T2_, 40, PFA, PFA + 10 * NLL, 47, "KS_LLE")
        a("s_branch KS_LLE")
        a("KS_LL2:")
        if NL2:
            a(f"s_mul_i32 s{T2_}, s{S_WAVE}, 6", f"s_add_u32 s{T2_}, s{T2_}, s{S_I}", f"s_sub_u32 s{T2_}, s{T2_}, 18")
            pf_gu(a, 46, T2_, 24, PFA + 10 * NLL, PF0, 47, "KS_LLE")
        a("KS_LLE:")
    a(f"s_mov_b32 s{S_G}, 1")
    a("s_branch KS_L2B")
    a("KS_L0:")
    a(f"s_and_b32 s{T0_}, s{S_I}, 15", f"s_lshl_b32 s{T1_}, s{S_XC}, 4", f"s_add_u32 s{T0_}, s{T0_}, s{T1_}")
    a("v_and_b32 v59, 3, v1", "v_lshlrev_b32 v59, 2, v59")
    a(f"s_lshl_b32 s{T4_}, s{T0_}, 6", f"s_add_u32 s{T1_}, s{T4_}, {hex(WS_FLAG1)}", f"v_add_u32 v7, s{T1_}, v59")
    a(f"s_mul_i32 s{T1_}, s{T0_}, {CLR_WG}", f"s_add_u32 s{T1_}, s{T1_}, {hex(WS_CLR)}")
    a("v_lshlrev_b32 v6, 4, v0")
    a("v_mov_b32 v12, -1", "v_mov_b32 v13, -1", "v_mov_b32 v14, -1", "v_mov_b32 v15, -1")
    a("s_setprio 3")
    pf_lane(a, 16, 17)
    a("s_waitcnt lgkmcnt(0)")
    a(f"s_add_u32 s{R1}, s{P_WS}, s{T1_}", f"s_addc_u32 s{R1+1}, s{P_WS+1}, 0", f"s_mov_b32 s{R1+2}, {CLR_WG}", f"s_mov_b32 s{R1+3}, 0x20000")
    if ENV("UPRE", 0):
        srd(a, R0, P_WS, 0xC00000)
        a(f"s_lshl_b32 s{T2_}, s{S_WAVE}, 3", f"s_xor_b32 s{T2_}, s{T2_}, s{S_B2}", f"s_lshl_b32 s{T2_}, s{T2_}, 13")
        a(f"s_and_b32 s{T3_}, s{S_I}, 3", f"s_lshl_b32 s{T0_}, s{S_XC}, 2", f"s_add_u32 s{T3_}, s{T3_}, s{T0_}", f"s_lshl_b32 s{T3_}, s{T3_}, 13")
        a(f"s_add_u32 s{T0_}, s{T3_}, {256*8192}", f"s_cmp_eq_u32 s{S_WAVE}, 2", f"s_cselect_b32 s{T2_}, s{T0_}, s{T2_}")
        a(f"s_add_u32 s{T0_}, s{T3_}, {hex(WS_KT)}", f"s_cmp_eq_u32 s{S_WAVE}, 3", f"s_cselect_b32 s{T2_}, s{T0_}, s{T2_}")
        a(f"s_lshl_b32 s{T0_}, s{S_I}, 2", f"s_add_u32 s{T0_}, s{T0_}, s{S_WAVE}", f"s_and_b32 s{T0_}, s{T0_}, 0x72", f"s_cmp_gt_u32 s{T0_}, 0x62", f"s_cselect_b32 s{T0_}, 0, s{T0_}")
        a(f"s_bitcmp1_b32 s{T0_}, 1", "s_cbranch_scc1 KS_UPE")
        a("v_lshlrev_b32 v125, 7, v1", f"buffer_load_dword v124, v125, s[{R0}:{R0+3}], s{T2_} offen {MOD('UPMOD')}")
        a("KS_UPE:")
    a("s_barrier")
    if NE:
        a(f"s_and_b32 s{T2_}, s{S_I}, 15", f"s_lshl_b32 s{T3_}, s{S_WAVE}, 4", f"s_add_u32 s{T2_}, s{T2_}, s{T3_}")
        pf_gu(a, 16, T2_, 64, PFB + 16 * NL, PFA, 18, "KS_L1E")
        a("KS_L1E:")
    TW = eval(os.environ.get("TW", "[]"))
    for (w, base, off, nb, sh) in TW:
        l = newlabel("TW")
        a(f"s_cmp_lg_u32 s{S_WAVE}, {w}", f"s_cbranch_scc1 {l}")
        srd(a, R0, {"ws": P_WS, "out": P_OUT}[base], nb, off)
        a(f"v_lshlrev_b32 v125, {sh}, v1", f"buffer_load_dword v124, v125, s[{R0}:{R0+3}], 0 offen")
        a(f"{l}:")
    def dr_loads():
        srd(a, R3, P_DOWN, WBYTES)
        a(f"s_cmp_lt_u32 s{S_I}, 8", f"s_cselect_b32 s{R3+2}, s{R3+2}, 0")
        a("v_lshlrev_b32 v19, 4, v1", f"s_mul_i32 s{T2_}, s{S_BLK}, 36864", f"s_mul_i32 s{T3_}, s{S_WAVE}, 9216", f"s_add_u32 s{T2_}, s{T2_}, s{T3_}")
        for k in range(9):
            if k in (4, 8): a(f"s_add_u32 s{T2_}, s{T2_}, 4096")
            a(f"buffer_load_dwordx4 v[{68+4*k}:{71+4*k}], v19, s[{R3}:{R3+3}], s{T2_} offen offset:{1024*(k&3)} {MOD('DM', 'nt')}")
    if DR == 1: dr_loads()
    if ENV("CTRIG", 1): lds_wait(a, FL_PARAM, 8, "nz", sleep=2)
    if DR == 4: dr_loads()
    for k in range((CLR_WG + 4095) // 4096):
        a(f"s_mov_b32 s{T0_}, {4096*k}")
        a(f"buffer_store_dwordx4 v[12:15], v6, s[{R1}:{R1+3}], s{T0_} offen {MOD('CMOD')}")
    stamp(a, 1)
    a(f"global_load_dword v58, v59, s[{P_DBG}:{P_DBG+1}] sc1")
    if DR == 2: dr_loads()
    NCE = ENV("NCE", 0)
    if NCE:
        a(f"s_and_b32 s{T2_}, s{S_I}, 7", f"s_lshl_b32 s{T3_}, s{S_WAVE}, 3", f"s_add_u32 s{T2_}, s{T2_}, s{T3_}")
        pf_gu_setup(a, T2_)
        a(f"s_add_u32 s{T4_}, s{T3_}, {(PF0 + 8*NN)//2*7*9216}", f"s_cmp_lt_u32 s{S_I}, 24", f"s_cselect_b32 s{R2_+2}, 0, s{R2_+2}", f"s_cmp_ge_u32 s{S_WAVE}, {NC}", f"s_cselect_b32 s{R2_+2}, 0, s{R2_+2}")
        if NCE == 2: a("s_waitcnt vmcnt(0)")
        pf_ld(a, 18, 16, R2_)
    dbg_wait(a, 9 if DR == 2 else 2 if NCE else 0)
    stamp(a, 2)
    a(f"ds_write_b32 v59, v58 offset:{FL_NONCE}")
    a("s_mov_b64 exec, 1")
    a(f"ds_add_rtn_u32 v8, v{VZ}, v{VONE} offset:{FL_LNACK}")
    a("s_mov_b64 exec, -1")
    for d in range(1, 4): a(f"v_lshrrev_b32 v{58-d}, {3*d}, v58")
    a("s_waitcnt lgkmcnt(0)")
    a(f"v_readfirstlane_b32 s{T0_}, v8")
    a(f"s_cmp_lg_u32 s{T0_}, 3", "s_cbranch_scc1 KS_L2")
    a("s_mov_b64 exec, 15")
    a(f"global_store_dword v7, v58, s[{P_WS}:{P_WS+1}] sc1")
    a("s_mov_b64 exec, -1")
    a(f"s_and_b32 s{T2_}, s{S_I}, 7")
    a(f"s_cmp_ge_u32 s{S_I}, 8", "s_cbranch_scc1 KS_L1C")
    if NN:
        a("s_setprio 0")
        lds_wait(a, FL_G + 32 + 4, 8, "b4", sleep=2)
        a("s_setprio 3")
        pf_gu(a, 16, T2_, 8, PF0, PF0 + 8 * NN, 18, "KS_L2")
    a("s_branch KS_L2")
    a("KS_L1C:")
    if NC and not NCE: pf_gu(a, 16, T2_, 8, PF0 + 8 * NN, PF1, 18, "KS_L2")
    a("KS_L2:")
    if DR == 3: dr_loads()
    a(f"s_mov_b32 s{S_G}, 0")
    a("KS_L2B:")
    srd(a, R0, P_WS, XBYTES, WS_UT)
    if UL:
        a("v_lshrrev_b32 v7, 1, v1", "v_lshlrev_b32 v7, 7, v7", "v_and_b32 v10, 1, v1", "v_lshl_add_u32 v7, v10, 4, v7", "v_lshlrev_b32 v9, 4, v1")
        a("v_lshrrev_b32 v13, 2, v1", "v_lshlrev_b32 v13, 7, v13", "v_and_b32 v12, 3, v1", "v_lshl_add_u32 v13, v12, 4, v13")
        a(f"s_lshl_b32 s{T0_}, s{S_WAVE}, 12", f"s_lshr_b32 s{T1_}, s{S_B2}, 1", f"s_lshl_b32 s{T2_}, s{T1_}, 8", f"s_lshl_b32 s{T1_}, s{T1_}, 14", f"s_add_u32 s{T1_}, s{T1_}, s{T0_}")
        a(f"s_and_b32 s{T3_}, s{S_B2}, 1", f"s_lshl_b32 s{T3_}, s{T3_}, 6", f"s_add_u32 s{T1_}, s{T1_}, s{T3_}")
        a(f"s_and_b32 s{T3_}, s{T2_}, 0x700", f"v_xor_b32 v13, s{T3_}, v13", f"s_and_b32 s{T2_}, s{T2_}, 0x1800", f"s_xor_b32 s{T1_}, s{T1_}, s{T2_}")
        a(f"s_xor_b32 s{T5_}, s{T1_}, 0x800")
        a(f"s_lshl_b32 s{T3_}, s{S_XC}, 3", f"s_add_u32 s{T3_}, s{T3_}, s{S_I}", f"s_add_u32 s{T3_}, s{T3_}, {512 - 24}")
        a(f"s_lshr_b32 s{T4_}, s{T3_}, 2", f"s_lshl_b32 s{T4_}, s{T4_}, 14", f"s_and_b32 s{T3_}, s{T3_}, 3", f"s_lshl_b32 s{T3_}, s{T3_}, 5")
        a(f"s_add_u32 s{T3_}, s{T3_}, s{T4_}", f"s_add_u32 s{T3_}, s{T3_}, s{T0_}")
        a(f"s_lshr_b32 s{T4_}, s{T4_}, 6", f"s_and_b32 s{T2_}, s{T4_}, 0xf00", f"v_xor_b32 v7, s{T2_}, v7", f"s_and_b32 s{T4_}, s{T4_}, 0x1000", f"s_xor_b32 s{T3_}, s{T3_}, s{T4_}")
        a(f"s_lshl_b32 s{T0_}, s{S_WAVE}, 11")
    else:
        a("v_lshrrev_b32 v7, 1, v1", "v_lshlrev_b32 v7, 6, v7", "v_and_b32 v10, 1, v1", "v_lshl_add_u32 v7, v10, 4, v7", "v_lshlrev_b32 v9, 4, v1")
        a(f"s_lshl_b32 s{T0_}, s{S_WAVE}, 11", f"s_lshl_b32 s{T1_}, s{S_B2}, 13", f"s_add_u32 s{T1_}, s{T1_}, s{T0_}")
        if SWU:
            a(f"s_lshl_b32 s{T2_}, s{S_B2}, 7", f"s_and_b32 s{T3_}, s{T2_}, 0x380", f"v_xor_b32 v13, s{T3_}, v9", f"s_and_b32 s{T2_}, s{T2_}, 0x1c00", f"s_xor_b32 s{T1_}, s{T1_}, s{T2_}")
        else: a("v_mov_b32 v13, v9")
        a(f"s_xor_b32 s{T5_}, s{T1_}, 0x400")
        a(f"s_lshl_b32 s{T3_}, s{S_XC}, 3", f"s_add_u32 s{T3_}, s{T3_}, s{S_I}", f"s_add_u32 s{T3_}, s{T3_}, {512 - 24}")
        a(f"s_lshr_b32 s{T4_}, s{T3_}, 1", f"s_lshl_b32 s{T4_}, s{T4_}, 13", f"s_and_b32 s{T3_}, s{T3_}, 1", f"s_lshl_b32 s{T3_}, s{T3_}, 5")
        a(f"s_add_u32 s{T3_}, s{T3_}, s{T4_}", f"s_add_u32 s{T3_}, s{T3_}, s{T0_}")
        if SWU:
            a(f"s_lshr_b32 s{T4_}, s{T4_}, 6", f"s_and_b32 s{T2_}, s{T4_}, 0x780", f"v_xor_b32 v7, s{T2_}, v7", f"s_and_b32 s{T4_}, s{T4_}, 0x1800", f"s_xor_b32 s{T3_}, s{T3_}, s{T4_}")
    a(f"s_cmp_lt_u32 s{S_I}, 24", f"s_cselect_b32 s{T3_}, {XBYTES}, s{T3_}", f"s_cselect_b32 s{T2_}, 0, {hex(TAGM)}")
    a(f"v_mov_b32_dpp v64, v58 quad_perm:[0,1,0,1] {DPPM}", f"v_mov_b32_dpp v65, v58 quad_perm:[2,3,2,3] {DPPM}")
    a(f"s_bitcmp1_b32 s{S_I}, 0", "s_cselect_b64 vcc, -1, 0", "v_cndmask_b32 v64, v64, v65, vcc")
    for d in range(4): a(f"v_and_b32 v{60+d}, {hex(TAGM)}, v{58-d}")
    for d in range(3, 0, -1): a(f"v_lshrrev_b32 v{64+d}, {3*d}, v64")
    for d in range(4): a(f"v_and_b32 v{64+d}, s{T2_}, v{64+d}")
    a(f"s_lshl_b32 s{T4_}, s{S_WAVE}, 10", f"s_add_u32 s{T4_}, s{T4_}, {C_U + 480}")
    a("v_bfe_u32 v11, v1, 1, 1", f"v_mul_u32_u24 v11, {U_SIZE}, v11", "v_lshl_add_u32 v11, v10, 4, v11", "v_lshrrev_b32 v10, 2, v1", "v_lshl_add_u32 v11, v10, 5, v11", f"v_add_u32 v11, s{T4_}, v11")
    a(f"v_add_u32 v10, s{T4_}, v9")
    a(f"v_mov_b32 v116, s{S_WAVE}")
    a(f"s_add_u32 s{T0_}, s{T0_}, {hex(WS_FLAG1)}", "v_lshrrev_b32 v12, 2, v1", "v_lshl_add_u32 v12, v12, 6, v59", f"v_add_u32 v12, s{T0_}, v12")
    UT = eval(os.environ.get("UT", "(20, 20, 24)"))
    a(f"s_cmp_lt_u32 s{S_I}, 8", f"s_cselect_b32 s{T2_}, {UT[0]}, {UT[1]}", f"s_cmp_ge_u32 s{S_I}, 24", f"s_cselect_b32 s{T2_}, {UT[2]}, s{T2_}", f"v_mov_b32 v14, s{T2_}")
    a("s_setprio 0")
    if not ENV("NOW", 1): a("s_waitcnt vmcnt(0)")
    a(f"ds_write_b8 v116, v{VONE} offset:{FL_UTOK + 4}")
    stamp(a, 8)
    if DR:
        a(f"s_cmp_ge_u32 s{S_I}, 8", "s_cbranch_scc1 KS_DR1")
        a(f"s_mul_i32 s{T2_}, s{S_WAVE}, 9216", f"s_add_u32 s{T2_}, s{T2_}, {C_DOWN}", f"v_lshl_add_u32 v19, v1, 4, s{T2_}")
        lds_wait(a, FL_G + 36, 8, "b4", sleep=2)
        a("s_waitcnt vmcnt(0)")
        for k in range(9): a(f"ds_write_b128 v19, v[{68+4*k}:{71+4*k}] offset:{1024*k}")
        a("KS_DR1:")
    lds_wait(a, FL_G, 8, "b4", addr=14, sleep=2)
    a("s_setprio 3")
    stamp(a, 5)
    if ENV("UDELAY", 0): a(f"s_sleep {ENV('UDELAY', 0)}")
    lp = newlabel("UP"); l1 = newlabel("UPE")
    UM = os.environ.get("UMOD", "sc1").replace("_", " ")
    MK = [6, 8, 10, 12]
    if ENV("MPOLL", 0):
        for m in MK: a(f"s_mov_b64 s[{m}:{m+1}], -1")
        a(f"s_mov_b32 s{SP0}, {hex(TAGM)}")
    a(f"s_branch {l1}")
    a(f"{lp}:")
    a(f"s_sleep {ENV('USLEEP', 2)}")
    a(f"{l1}:")
    if ENV("MPOLL", 0):
        lds = [f"buffer_load_dwordx4 v[20:23], v13, s[{R0}:{R0+3}], s{T1_} offen {UM}", f"buffer_load_dwordx4 v[24:27], v13, s[{R0}:{R0+3}], s{T5_} offen {UM}",
               f"buffer_load_dwordx4 v[28:31], v7, s[{R0}:{R0+3}], s{T3_} offen {UM}"]
        for k in range(3): a(f"s_mov_b64 exec, s[{MK[k]}:{MK[k]+1}]", lds[k])
        a(f"s_mov_b64 exec, s[{MK[3]}:{MK[3]+1}]")
        a(f"global_load_dword v32, v12, s[{P_WS}:{P_WS+1}] sc1", f"global_load_dword v33, v12, s[{P_WS}:{P_WS+1}] offset:1024 sc1")
        guard(a)
        for k in range(3):
            a(f"s_mov_b64 exec, s[{MK[k]}:{MK[k]+1}]", f"s_waitcnt vmcnt({4-k})")
            for d in range(4): a(f"v_xor_b32 v{20+4*k+d}, v{(64 if k == 2 else 60)+d}, v{20+4*k+d}")
            a(f"v_or3_b32 v44, v{20+4*k}, v{21+4*k}, v{22+4*k}", f"v_bitop3_b32 v44, v44, v{23+4*k}, s{SP0} bitop3:0xa8", f"v_cmp_ne_u32 s[{MK[k]}:{MK[k]+1}], 0, v44")
        a(f"s_mov_b64 exec, s[{MK[3]}:{MK[3]+1}]", "s_waitcnt vmcnt(0)")
        a("v_xor_b32 v32, v58, v32", "v_bitop3_b32 v32, v32, v58, v33 bitop3:0xf6", f"v_cmp_ne_u32 s[{MK[3]}:{MK[3]+1}], 0, v32")
        a(f"s_or_b64 vcc, s[{MK[0]}:{MK[0]+1}], s[{MK[1]}:{MK[1]+1}]", f"s_or_b64 vcc, vcc, s[{MK[2]}:{MK[2]+1}]", f"s_or_b64 vcc, vcc, s[{MK[3]}:{MK[3]+1}]", f"s_cbranch_scc1 {lp}")
        a("s_mov_b64 exec, -1")
    else:
        if not FLD: a(f"global_load_dword v32, v12, s[{P_WS}:{P_WS+1}] {MOD('FMOD')}", f"global_load_dword v33, v12, s[{P_WS}:{P_WS+1}] offset:1024 {MOD('FMOD')}")
        a(f"buffer_load_dwordx4 v[20:23], v13, s[{R0}:{R0+3}], s{T1_} offen {UM}")
        a(f"buffer_load_dwordx4 v[24:27], v13, s[{R0}:{R0+3}], s{T5_} offen {UM}")
        a(f"buffer_load_dwordx4 v[28:31], v7, s[{R0}:{R0+3}], s{T3_} offen {UM}")
        guard(a)
        for k in range(3):
            a(f"s_waitcnt vmcnt({2-k})")
            if k == 0 and not FLD: a("v_xor_b32 v32, v58, v32", "v_xor_b32 v33, v58, v33")
            for d in range(4): a(f"v_xor_b32 v{20+4*k+d}, v{(64 if k == 2 else 60)+d}, v{20+4*k+d}")
            a(f"v_or3_b32 v44, v{20+4*k}, v{21+4*k}, v{44 if k else 21}", f"v_or3_b32 v44, v{22+4*k}, v{23+4*k}, v44")
        a(f"v_and_b32 v44, {hex(TAGM)}, v44")
        if not FLD: a("v_or3_b32 v44, v44, v32, v33")
        a("v_cmp_ne_u32 vcc, 0, v44", f"s_cbranch_vccnz {lp}")
    stamp(a, 6)
    a("ds_write_b128 v11, v[20:23]", "ds_write_b128 v11, v[24:27] offset:512", f"ds_write_b128 v10, v[28:31] offset:{2*U_SIZE}")
    a(f"ds_write_b8 v116, v{VONE} offset:{FL_UF}")
    stamp(a, 7)
    gen_wjobs(a)
    a("s_setprio 0")
    a(f"s_lshr_b32 s{T0_}, s{S_B2}, 6", f"s_lshl_b32 s{T0_}, s{T0_}, 9")
    a(f"s_bfe_u32 s{T1_}, s{S_B2}, 0x20004", f"s_lshl_b32 s{T1_}, s{T1_}, 6", f"s_add_u32 s{T0_}, s{T0_}, s{T1_}")
    a(f"s_and_b32 s{T1_}, s{S_B2}, 3", f"s_lshl_b32 s{T1_}, s{T1_}, 4", f"s_add_u32 s{T0_}, s{T0_}, s{T1_}")
    a(f"s_and_b32 s{T1_}, s{S_B2}, 12", f"s_add_u32 s{T0_}, s{T0_}, s{T1_}")
    a(f"s_lshr_b32 s{T1_}, s{S_WAVE}, 1", f"s_lshl_b32 s{T1_}, s{T1_}, 8", f"s_add_u32 s{T0_}, s{T0_}, s{T1_}")
    a(f"s_and_b32 s{T1_}, s{S_WAVE}, 1", f"s_lshl_b32 s{T1_}, s{T1_}, 1", f"s_add_u32 s{T0_}, s{T0_}, s{T1_}")
    a("v_lshrrev_b32 v113, 5, v1", "v_and_b32 v114, 31, v1")
    a(f"v_add_u32 v112, s{T0_}, v113")
    a("v_mul_u32_u24 v115, 1152, v112", "v_lshl_add_u32 v8, v114, 2, v115", "v_lshl_add_u32 v115, v114, 4, v115", "v_lshlrev_b32 v7, 2, v114", "v_lshlrev_b32 v6, 4, v114")
    a(f"v_bfe_u32 v111, v1, 3, 1", f"v_add_u32 v111, s{T0_}, v111", "v_mul_u32_u24 v111, 1152, v111", "v_and_b32 v9, 7, v1", "v_lshl_add_u32 v111, v9, 4, v111")
    srd(a, R0, P_X, XBYTES)
    srd(a, R1, P_WR, 1152)
    a(f"buffer_load_dwordx4 v[10:13], v115, s[{R0}:{R0+3}], 0 offen")
    a(f"buffer_load_dwordx4 v[14:17], v115, s[{R0}:{R0+3}], 0 offen offset:512")
    a(f"buffer_load_dword v18, v8, s[{R0}:{R0+3}], 0 offen offset:1024")
    a(f"buffer_load_dwordx4 v[50:53], v6, s[{R1}:{R1+3}], 0 offen")
    a(f"buffer_load_dwordx4 v[54:57], v6, s[{R1}:{R1+3}], 0 offen offset:512")
    a(f"buffer_load_dword v58, v7, s[{R1}:{R1+3}], 0 offen offset:1024")
    if not PTAG:
        a(f"s_cmp_lt_u32 s{S_FI}, 18", "s_cbranch_scc1 KS_L4")
        a(f"s_mul_i32 s{T0_}, s{S_XC}, 14", f"s_add_u32 s{T0_}, s{T0_}, s{S_I}", f"s_mul_i32 s{T0_}, s{T0_}, {CLRP_WG}", f"s_add_u32 s{T0_}, s{T0_}, {hex(WS_PART - 18*CLRP_WG)}")
        a(f"s_add_u32 s{R1}, s{P_WS}, s{T0_}", f"s_addc_u32 s{R1+1}, s{P_WS+1}, 0", f"s_mov_b32 s{R1+2}, {CLRP_WG}", f"s_mov_b32 s{R1+3}, 0x20000")
        a("v_lshlrev_b32 v6, 4, v0", "v_mov_b32 v60, -1", "v_mov_b32 v61, -1", "v_mov_b32 v62, -1", "v_mov_b32 v63, -1")
        for k in range(6):
            a(f"s_movk_i32 s{T0_}, {4096*k}")
            a(f"buffer_store_dwordx4 v[60:63], v6, s[{R1}:{R1+3}], s{T0_} offen sc1")
    a("KS_L4:")
    srd(a, R0, P_WS, 0x240000, WS_ZB1)
    srd(a, R1, P_OUT, XBYTES)
    srd(a, R2_, P_WS, XBYTES, WS_X2)
    srd(a, R3, P_WS, 16384, WS_KEYS)
    if not XCL:
        for d in range(4): a(f"v_mov_b32 v{60+d}, -1")
        a(f"buffer_store_dwordx4 v[60:63], v115, s[{R2_}:{R2_+3}], 0 offen sc1")
        a(f"buffer_store_dwordx4 v[60:63], v115, s[{R2_}:{R2_+3}], 0 offen offset:512 sc1")
        a("s_mov_b64 exec, 0xffff")
        a(f"buffer_store_dwordx4 v[60:63], v111, s[{R2_}:{R2_+3}], 0 offen offset:1024 sc1")
        a("s_mov_b64 exec, -1")
    a(f"s_not_b32 s{T1_}, s{S_B2}", f"v_xor_b32 v8, s{T1_}, v0")
    a("v_lshrrev_b32 v6, 1, v0", "v_lshlrev_b32 v6, 6, v6", "v_and_b32 v8, 1, v8", "v_lshl_add_u32 v6, v8, 4, v6")
    a(f"s_lshr_b32 s{T0_}, s{S_B2}, 2", f"s_lshl_b32 s{T0_}, s{T0_}, 15", f"s_and_b32 s{T1_}, s{S_B2}, 1", f"s_lshl_b32 s{T1_}, s{T1_}, 14", f"s_add_u32 s{T0_}, s{T0_}, s{T1_}")
    a(f"s_and_b32 s{T1_}, s{S_B2}, 2", f"s_lshl_b32 s{T1_}, s{T1_}, 4", f"s_add_u32 s{T0_}, s{T0_}, s{T1_}")
    a(f"s_lshr_b32 s{T2_}, s{S_B2}, 2", f"s_lshl_b32 s{T2_}, s{T2_}, 12", f"s_and_b32 s{T1_}, s{S_B2}, 3", f"s_lshl_b32 s{T1_}, s{T1_}, 4")
    a(f"s_add_u32 s{T2_}, s{T2_}, s{T1_}", f"s_lshl_b32 s{T1_}, s{S_WAVE}, 10", f"s_add_u32 s{T2_}, s{T2_}, s{T1_}", f"s_add_u32 s{T2_}, s{T2_}, 0x200000")
    a("v_lshlrev_b32 v9, 6, v2")
    if SWZ:
        a(f"s_lshl_b32 s{T1_}, s{S_B2}, 5", f"s_and_b32 s{T3_}, s{T1_}, 0x1f80", f"v_xor_b32 v6, s{T3_}, v6", f"s_and_b32 s{T3_}, s{T1_}, 0x380", f"v_xor_b32 v9, s{T3_}, v9")
        a(f"s_and_b32 s{T3_}, s{T1_}, 0xc00", f"s_xor_b32 s{T2_}, s{T2_}, s{T3_}", f"s_and_b32 s{T1_}, s{S_B2}, 1", f"s_lshl_b32 s{T1_}, s{T1_}, 13", f"s_xor_b32 s{T0_}, s{T0_}, s{T1_}")
    a(f"s_xor_b32 s{T1_}, s{T0_}, 0x2000")
    a(f"s_mul_i32 s{T3_}, s{S_WAVE}, 2304", f"s_add_u32 s{T3_}, s{T3_}, {C_XR}", f"v_lshl_add_u32 v117, v114, 5, s{T3_}", f"v_lshl_add_u32 v110, v114, 3, s{T3_}")
    a(f"s_lshl_b32 s{T3_}, s{S_WAVE}, 9", f"s_add_u32 s{T3_}, s{T3_}, {C_RED}", f"v_lshl_add_u32 v108, v1, 2, s{T3_}", f"v_lshl_add_u32 v109, v1, 4, s{T3_}")
    SD2 = ENV("SD2", 0)
    if SD2: a("v_lshlrev_b32 v118, 4, v113", f"s_movk_i32 s{T3_}, 0x3f80", f"v_lshlrev_b32 v118, v118, s{T3_}")
    else: a(f"s_mov_b32 s{T3_}, 0x02020000", f"v_mul_lo_u32 v118, v113, s{T3_}", "v_add_u32 v118, 0x01000c0c, v118")
    a(f"v_lshlrev_b32 v8, 2, v0", f"v_add_u32 v8, {C_XR}, v8")
    a(f"s_lshl_b32 s{T3_}, s{S_WAVE}, 6", f"s_add_u32 s{T3_}, s{T3_}, {C_XR + 2048}", f"v_lshl_add_u32 v119, v2, 2, s{T3_}")
    a("s_waitcnt vmcnt(0)")
    X = 20
    for j in range(9): unpack(a, X + 2 * j, 10 + j)
    WU, WS_ = 80, 78
    for j in range(9): unpack(a, WU + 2 * j, 50 + j)
    a(f"v_pk_add_f32 v[{WS_}:{WS_+1}], v[{WU}:{WU+1}], v[{WU+2}:{WU+3}]")
    for j in range(2, 9): a(f"v_pk_add_f32 v[{WS_}:{WS_+1}], v[{WS_}:{WS_+1}], v[{WU+2*j}:{WU+2*j+1}]")
    a(f"v_add_f32 v{WS_}, v{WS_}, v{WS_+1}")
    red32(a, "v_add_f32", WS_, WS_ + 1)
    a("v_sub_u32 v98, 0x87ff, v112", "v_lshl_add_u32 v99, v116, 1, v113", "v_lshlrev_b32 v99, 2, v99")
    ZG2 = ENV("ZG2", 0)
    if KD: a(f"s_lshl_b32 s{T5_}, s{S_B2}, 5")
    if ZG2 == 3:
        if ENV("ZGT", 0) < 2: lds_wait(a, {0: FL_ZDONE, 1: FL_ZISS}[ENV("ZGT", 0)], 60, "b4", sleep=1)
        if ENV('ZGS', 0x10000):
            a("s_mov_b32 exec_lo, 0", f"s_mov_b32 exec_hi, {hex(ENV('ZGS', 0x10000))}")
            zpoll(a, [f"buffer_load_dwordx4 v[68:71], v6, s[{R0}:{R0+3}], s{T0_} offen sc1"], list(range(68, 72)), ENV("ZSLEEP2", 2))
            a("s_mov_b64 exec, -1")
        else:
            zpoll(a, [f"buffer_load_dwordx4 v[68:71], v{VZ}, s[{R0}:{R0+3}], s{T2_} offen sc1"], list(range(68, 72)), ENV("ZSLEEP2", 2))
        if ENV("ZDELAY", 0): a(f"s_sleep {ENV('ZDELAY', 0)}")
        lds_wait(a, FL_ZISS, 60, "b4")
        if ENV("ZDELAY2", 0): a(f"s_sleep {ENV('ZDELAY2', 0)}")
    elif ZG2:
        lds_wait(a, {1: FL_ZDONE, 2: FL_ZISS}[ZG2], 60, "b4", sleep=1)
        zpoll(a, [f"buffer_load_dwordx4 v[68:71], v{VZ}, s[{R0}:{R0+3}], s{T2_} offen sc1"], list(range(68, 72)), ENV("ZSLEEP2", 2))
    ZT = ENV("ZT", 0)
    def blank():
        for k in range(3): a(f"buffer_store_dwordx4 v[100:103], v104, s[{R4}:{R4+3}], 0 offen offset:{1024*k} sc1")
    if BT:
        a(f"s_sub_u32 s{T3_}, s{S_I}, 8", f"s_cmp_lt_u32 s{T3_}, 16", f"s_cselect_b32 s{R4+2}, 10624, 0", f"s_and_b32 s{T3_}, s{T3_}, 15", f"s_lshl_b32 s{T3_}, s{T3_}, 3", f"s_add_u32 s{T3_}, s{T3_}, s{S_XC}")
        a(f"s_mul_i32 s{T3_}, s{T3_}, 10624", f"s_add_u32 s{T3_}, s{T3_}, {hex(WS_PART)}", f"s_add_u32 s{R4}, s{P_WS}, s{T3_}", f"s_addc_u32 s{R4+1}, s{P_WS+1}, 0", f"s_mov_b32 s{R4+3}, 0x20000")
        a(f"s_mul_i32 s{T3_}, s{S_WAVE}, 3072", f"v_lshl_add_u32 v104, v1, 4, s{T3_}")
        for d in range(4): a(f"v_mov_b32 v{100+d}, -1")
        if BT == 2: lds_wait(a, FL_ZDONE, 60, "b4", sleep=1)
        if BT == 4: lds_wait(a, FL_ZISS, 60, "b4", sleep=1)
        if BT in (1, 2, 4): blank()
    if ZT:
        lds_wait(a, FL_ZISS, 60, "b4", sleep=1)
        a(f"s_movk_i32 s{T3_}, {ZT}", f"s_setprio {ENV('ZTP', 0)}")
        a("KS_ZT:")
        a("s_sleep 1", f"ds_read_b32 v60, v{VZ} offset:{FL_ZDONE + 4}", f"s_sub_u32 s{T3_}, s{T3_}, 1", "s_cbranch_scc1 KS_ZL")
        a("s_waitcnt lgkmcnt(0)", f"v_cmp_ne_u32 vcc, s{S_ONES}, v60", "s_cbranch_vccnz KS_ZT")
    elif ZM:
        lds_wait(a, FL_KACK, 60, "nz", sleep=1)
        lds_wait(a, FL_ZISS, 60, "b4", sleep=0)
    elif ZG2 != 3: lds_wait(a, FL_ZDONE + 4, 60, "b4", sleep=1)
    a("s_setprio 3")
    if PFD2 > PFD:
        W3 = ENV("PF3W", 6)
        a(f"s_sub_u32 s{T5_}, s{S_I}, 18", f"s_cmp_ge_u32 s{T5_}, {W3}", "s_cbranch_scc1 KS_PF3E", f"s_cmp_lg_u32 s{S_WAVE}, 2", "s_cbranch_scc1 KS_PF3E")
        pf_down(a, T5_, W3, PFD, PFD2, 100, 120, "KS_PF3E", R4)
        a("KS_PF3E:")
    stamp2(a, 1)
    if ENV("ZGATE", 1) and not ZG2 and not ZM:
        if BT == 3: blank()
        ZGC = ENV("ZGC", 0)
        if ZGC == 1: a(f"s_cmp_ge_u32 s{S_I}, 24", "s_cbranch_scc1 KS_ZGC")
        if ZGC == 2: a(f"s_sub_u32 s{T3_}, s{S_I}, 8", f"s_cmp_ge_u32 s{T3_}, 16", "s_cbranch_scc1 KS_ZGC")
        zpoll(a, [f"buffer_load_dwordx4 v[68:71], v{VZ}, s[{R0}:{R0+3}], s{T2_} offen sc1"], list(range(68, 72)), ENV("ZSLEEP", 1))
        if ENV("ZDELAY", 0): a(f"s_sleep {ENV('ZDELAY', 0)}")
        if ZGC: a("KS_ZGC:")
    lp = newlabel("ZP"); l1 = newlabel("ZPE")
    a(f"s_branch {l1}", f"{lp}:", f"s_sleep {ENV('ZSLEEP', 1)}")
    if ZT: a("KS_ZL:", "s_setprio 3", "s_waitcnt lgkmcnt(0)")
    a(f"{l1}:")
    a(f"buffer_load_dwordx4 v[60:63], v6, s[{R0}:{R0+3}], s{T0_} offen sc1",
      f"buffer_load_dwordx4 v[64:67], v6, s[{R0}:{R0+3}], s{T1_} offen sc1",
      f"buffer_load_dwordx4 v[68:71], v9, s[{R0}:{R0+3}], s{T2_} offen sc1")
    guard(a)
    for k in range(3):
        a(f"s_waitcnt vmcnt({2-k})")
        ad, o = (8, 4 * k) if k < 2 else (119, 0)
        a(f"ds_write2st64_b32 v{ad}, v{60+4*k}, v{61+4*k} offset0:{o} offset1:{9+o}")
        a(f"ds_write2st64_b32 v{ad}, v{62+4*k}, v{63+4*k} offset0:{18+o} offset1:{27+o}")
        a(f"v_max3_u32 v44, v{60+4*k}, v{61+4*k}, v{44 if k else 61}", f"v_max3_u32 v44, v{62+4*k}, v{63+4*k}, v44")
    a("v_cmp_eq_u32 vcc, -1, v44", f"s_cbranch_vccnz {lp}")
    a(f"ds_write_b8 v116, v{VONE} offset:{FL_ZF}")
    stamp2(a, 3)
    lp = newlabel("ZW")
    a(f"{lp}:")
    a(f"ds_read_b32 v44, v{VZ} offset:{FL_ZF}")
    for k in range(4):
        a(f"ds_read_b128 v[{60+4*k}:{63+4*k}], v117 offset:{1024*(k>>1) + 16*(k&1)}")
    a("ds_read_b64 v[76:77], v110 offset:2048")
    guard(a)
    a("s_waitcnt lgkmcnt(5)")
    a(f"v_cmp_ne_u32 vcc, s{S_ONES}, v44", f"s_cbranch_vccnz {lp}")
    def hsum(j):
        if j % 2 == 0: a(f"s_waitcnt lgkmcnt({4-j//2})")
        for e in range(2): a(f"v_dot2c_f32_bf16 v{X+2*j+e}, v{60+2*j+e}, v118")
    if SD2: hsum(0); hsum(1)
    for j in range(9):
        h = f"v[{X+2*j}:{X+2*j+1}]"
        if SD2:
            if j < 7: hsum(j + 2)
        else:
            if j % 2 == 0: a(f"s_waitcnt lgkmcnt({4-j//2})")
            a(f"v_perm_b32 v{60+2*j}, v{60+2*j}, v{60+2*j}, v118", f"v_perm_b32 v{61+2*j}, v{61+2*j}, v{61+2*j}, v118")
            a(f"v_pk_add_f32 {h}, v[{60+2*j}:{61+2*j}], {h}")
        if j == 0: a(f"v_pk_mul_f32 v[42:43], {h}, {h}", f"v_pk_mul_f32 v[44:45], {h}, v[{WU}:{WU+1}]")
        else:
            a(f"v_pk_fma_f32 v[42:43], {h}, {h}, v[42:43]", f"v_pk_fma_f32 v[44:45], {h}, v[{WU+2*j}:{WU+2*j+1}], v[44:45]")
            a(f"v_pk_add_f32 v[40:41], {h}, " + (f"v[{X}:{X+1}]" if j == 1 else "v[40:41]"))
    a("v_add_f32 v42, v42, v43", "v_add_f32 v44, v44, v45", "v_add_f32 v40, v40, v41")
    a("v_mov_b32 v41, v40", "v_permlane16_swap_b32 v42, v44", "v_permlane16_swap_b32 v40, v41")
    a("v_add_f32 v42, v42, v44", "v_add_f32 v40, v40, v41")
    for r in (8, 4, 2, 1):
        a(f"v_add_f32_dpp v42, v42, v42 row_ror:{r} {DPPM}", f"v_add_f32_dpp v40, v40, v40 row_ror:{r} {DPPM}")
    a(f"v_mul_f32 v40, {f32(1.0/576)}, v40", "v_mov_b32 v44, v42")
    a("v_cvt_pk_bf16_f32 v41, 0, v40", "v_mul_f32 v40, v40, v40")
    a("v_permlane16_swap_b32 v42, v44")
    a(f"v_mov_b32 v43, {f32(1.0/576)}", "v_fma_f32 v42, v42, v43, -v40", f"v_fma_f32 v44, -v41, v{WS_}, v44", "v_max_f32 v42, 0, v42")
    a(f"v_cvt_pk_bf16_f32 v42, 0, v42", f"v_add_f32 v42, {f32(1e-5)}, v42")
    a(f"v_cvt_pk_bf16_f32 v42, 0, v42", "v_sqrt_f32 v42, v42")
    a(f"v_cvt_pk_bf16_f32 v42, 0, v42", "v_rcp_f32 v42, v42")
    a("v_mul_f32 v60, v44, v42")
    a("v_cvt_pk_bf16_f32 v60, v60, v60")
    a("v_ashrrev_i32 v61, 31, v60", "v_or_b32 v61, 0x80000000, v61", f"s_mov_b32 s{T3_}, 0xffff0000", "v_xor_b32 v60, v60, v61", f"v_and_or_b32 v60, v60, s{T3_}, v98")
    if KD == 2:
        a("v_mov_b32 v61, v60", "v_permlane32_swap_b32 v60, v61", "s_mov_b64 exec, 1")
        a(f"buffer_store_dwordx2 v[60:61], v99, s[{R3}:{R3+3}], s{T5_} offen sc1")
        a(f"ds_write_b8 v116, v{VONE} offset:{FL_KCNT}")
    else:
        a("s_mov_b32 exec_lo, 1", "s_mov_b32 exec_hi, 1")
        if KD:
            a(f"buffer_store_dword v60, v99, s[{R3}:{R3+3}], s{T5_} offen sc1")
            a(f"ds_write_b8 v116, v{VONE} offset:{FL_KCNT}")
        else: a(f"ds_write_b32 v99, v60 offset:{C_KEY}")
    a("s_mov_b64 exec, -1")
    stamp2(a, 4)
    a(f"s_setprio {ENV('L2PRIO', 2)}")
    if XT:
        a("v_max_u32 v62, v60, v61", f"v_readfirstlane_b32 s{T4_}, v62", f"s_cmp_ge_u32 s{T4_}, 0xC1000000", f"s_cselect_b32 s{R2_+2}, s{R2_+2}, 0", f"s_cselect_b32 s{S_G}, 1, 0")
    for j in range(9):
        rnd2(a, X + 2 * j)
    ln_stats(a, X, 40, 42, 44, 46, 48)
    for j in range(9):
        ln_apply_pair(a, X + 2 * j, 40, 42, 44, 10 + j)
        a(f"v_pk_add_f32 v[{X+2*j}:{X+2*j+1}], v[44:45], v[{X+2*j}:{X+2*j+1}]")
        if XCL != 2: a(f"v_min_u32 v{10+j}, -2, v{10+j}")
    a(f"v_cvt_pk_bf16_f32 v58, v{X+16}, v{X+17}")
    a("ds_write_b32 v108, v18", "ds_write_b32 v108, v58 offset:256", "ds_read_b128 v[64:67], v109")
    a(f"buffer_store_dwordx4 v[10:13], v115, s[{R2_}:{R2_+3}], 0 offen sc1")
    a(f"buffer_store_dwordx4 v[14:17], v115, s[{R2_}:{R2_+3}], 0 offen offset:512 sc1")
    for j in range(8):
        a(f"v_cvt_pk_bf16_f32 v{50+j}, v{X+2*j}, v{X+2*j+1}")
    a("s_mov_b64 exec, 0xffff")
    a("s_waitcnt lgkmcnt(0)")
    a(f"buffer_store_dwordx4 v[64:67], v111, s[{R2_}:{R2_+3}], 0 offen offset:1024 sc1")
    def out_st():
        a("s_mov_b64 exec, 0xffff0000")
        a(f"buffer_store_dwordx4 v[64:67], v111, s[{R1}:{R1+3}], 0 offen offset:1024 sc1")
        a("s_mov_b64 exec, -1")
        a(f"buffer_store_dwordx4 v[50:53], v115, s[{R1}:{R1+3}], 0 offen sc1")
        a(f"buffer_store_dwordx4 v[54:57], v115, s[{R1}:{R1+3}], 0 offen offset:512 sc1")
    WTD, BS0, BS1, BC0, BC1 = 80, 8, 9, 10, 11
    def b_addr():
        srd(a, R4, P_WS, PART_BYTES, WS_PART)
        a("v_bfe_u32 v16, v1, 2, 2", "v_lshl_add_u32 v16, v3, 3, v16", "v_mul_u32_u24 v16, 1152, v16", "v_and_b32 v17, 3, v1", "v_lshl_add_u32 v16, v17, 3, v16")
        a(f"s_lshl_b32 s{BC0}, s{S_WAVE}, 7", f"s_add_u32 s{BC1}, s{BC0}, {C_DOWN}", f"v_add_u32 v16, s{BC1}, v16")
        a("v_lshrrev_b32 v18, 2, v1", f"v_mul_u32_u24 v18, {PROW}, v18", "v_lshl_add_u32 v18, v17, 4, v18")
        a(f"s_mul_i32 s{BS1}, s{S_WAVE}, {16*PROW}", f"s_lshl_b32 s{BC1}, s{S_BLK}, 6", f"s_add_u32 s{BS1}, s{BS1}, s{BC1}")
        a(f"v_lshl_add_u32 v19, v17, 5, s{BC0}", "v_lshl_add_u32 v19, v3, 3, v19")
        a(f"s_mul_i32 s{BS0}, s{S_BLK}, {PROW}", f"s_lshl_b32 s{BC1}, s{S_WAVE}, 10", f"s_add_u32 s{BS0}, s{BS0}, s{BC1}")
        a(f"s_movk_i32 s{BC0}, 0x3f80", f"s_mov_b32 s{BC1}, 0x3f800000", "v_mov_b32 v28, 0", "v_mov_b32 v29, 0", "v_lshlrev_b32 v17, 4, v1")
    def b_frags():
        lds_wait(a, FL_DOWN, 20, "b4")
        for jt in range(4):
            a(f"ds_read_b64_tr_b16 v[{WTD+4*jt}:{WTD+4*jt+1}], v16 offset:{32*jt}")
            a(f"ds_read_b64_tr_b16 v[{WTD+4*jt+2}:{WTD+4*jt+3}], v16 offset:{32*jt + 4608}")
        a("v_and_b32 v16, 7, v2", "v_lshlrev_b32 v16, 6, v16", "v_lshl_add_u32 v16, v3, 4, v16")
    a("s_mov_b64 exec, -1", "s_setprio 0")
    b_addr()
    a(f"s_cmp_ge_u32 s{S_FI}, 18", "s_cbranch_scc1 KS_LO")
    b_frags()
    def own_blank():
        a(f"s_mul_i32 s{T0_}, s{S_BLK}, {PROW}", f"s_add_u32 s{T0_}, s{T0_}, {hex(WS_PART)}", f"s_add_u32 s{R0}, s{P_WS}, s{T0_}", f"s_addc_u32 s{R0+1}, s{P_WS+1}, 0")
        a(f"s_cmp_lt_u32 s{S_FI}, 18", f"s_cselect_b32 s{R0+2}, 9216, 0", f"s_mov_b32 s{R0+3}, 0x20000", f"s_mul_i32 s{T0_}, s{S_WAVE}, 3072", "v_lshlrev_b32 v8, 4, v1")
        for d in range(4): a(f"v_mov_b32 v{60+d}, -1")
        for k in range(3): a(f"buffer_store_dwordx4 v[60:63], v8, s[{R0}:{R0+3}], s{T0_} offen offset:{1024*k} sc1")
    def flag(cnt, off):
        l = newlabel("NOF")
        a("s_waitcnt vmcnt(0)")
        a("s_mov_b64 exec, 1")
        a(f"ds_add_rtn_u32 v62, v{VZ}, v{VONE} offset:{cnt}")
        a(f"s_lshl_b32 s{T0_}, s2, 4", f"s_add_u32 s{T0_}, s{T0_}, {off}")
        a("s_waitcnt lgkmcnt(0)")
        a("v_cmp_eq_u32 vcc, 3, v62", "s_and_b64 exec, exec, vcc", f"s_cbranch_execz {l}")
        a(f"buffer_store_dword v{VONE}, v{VZ}, s[{R3}:{R3+3}], s{T0_} offen sc1")
        a(f"{l}:")
        a("s_mov_b64 exec, -1")
    if F3:
        if ENV("OD1", 0): a(f"s_sleep {ENV('OD1', 0)}")
        own_blank()
        flag(FL_KSEEN, 8192)
        a(f"s_sleep {ENV('OD2', 16)}", "s_branch KS_LO2")
        a("KS_LO:")
        a(f"s_sleep {ENV('OD3', 8)}")
        flag(FL_KSEEN, 8192)
        a(f"s_sleep {ENV('OD', 34) - ENV('OD3', 8) - 2}")
        a("KS_LO2:")
        out_st()
    else:
        a(f"s_sleep {ENV('OD', 24) - ENV('ODF', 2)}", "s_branch KS_LO2")
        a("KS_LO:")
        a(f"s_sleep {ENV('OD', 24)}")
        a("KS_LO2:")
        out_st()
        if not BT: own_blank()
    stamp2(a, 5)
    a("s_setprio 2")
    flag(FL_F2CNT, 12288 if F3 else 8192)
    stamp2(a, 2)
    a(f"s_cmp_lt_u32 s{S_FI}, 18", "s_cbranch_scc1 KS_B")
    a("s_waitcnt lgkmcnt(0)")
    endwave(a)
    a("KS_T:")
    a("s_setprio 0")
    a(f"s_cmp_ge_u32 s{S_WAVE}, 10", "s_cbranch_scc1 KS_PEND")
    srd(a, R3, P_WS, 16384, WS_KEYS)
    a(f"s_cmp_eq_u32 s{S_WAVE}, 9", "s_cbranch_scc1 KS_W9")
    b_addr()
    srd(a, R2_, P_WS, XBYTES, WS_X2)
    TGV, CKA = 8, 12
    a("v_and_b32 v6, 1, v1", "v_and_b32 v7, 1, v3", "v_lshl_add_u32 v6, v7, 1, v6", "v_lshlrev_b32 v6, 2, v6", f"ds_read_b32 v{TGV}, v6 offset:{FL_NONCE}")
    a(f"s_lshl_b32 s{T0_}, s{S_WAVE}, 11", f"s_add_u32 s{T0_}, s{T0_}, {C_XR - 4*2048}", f"v_add_u32 v{CKA}, s{T0_}, v17")
    a("s_waitcnt lgkmcnt(0)")
    for d in range(1, 4): a(f"v_lshrrev_b32 v{TGV+d}, {3*d}, v{TGV}")
    def chk(c, t):
        a(f"v_xor_b32 v{t}, v{TGV}, v{c}")
        for d in range(1, 4): a(f"v_bitop3_b32 v{t}, v{t}, v{TGV+d}, v{c+d} bitop3:0xf6")
        a(f"v_and_b32 v{t}, {hex(TAGM)}, v{t}")
    a(f"s_cmp_eq_u32 s{S_WAVE}, 8", "s_cbranch_scc1 KS_L2W")
    b_frags()
    lds_wait(a, C_SEL, 20, "nz", sleep=2)
    a("s_setprio 1")
    lds_wait(a, FL_XRDY, 20, "nz", sleep=1)
    a(f"ds_read_b128 v[20:23], v{CKA}", f"ds_read_b128 v[24:27], v{CKA} offset:1024")
    a("s_waitcnt lgkmcnt(1)"); chk(20, 13)
    a("s_waitcnt lgkmcnt(0)"); chk(24, 14)
    a("v_min_u32 v13, v13, v14")
    a("KS_CK:")
    a("v_cmp_eq_u32 vcc, 0, v13")
    if not ENV("XBAD", 0): a("s_cbranch_vccz KS_B")
    a(f"ds_write_b32 v{VZ}, v{VONE} offset:{FL_BAD}")
    a("s_branch KS_B")
    a("KS_L2W:")
    K, AD, BS, A1, A2, B1, B2, TA, TB, M2, OFF, OLD, C, T8, RA = 96, 40, 41, 42, 43, 44, 45, 46, 47, 56, 57, 58, 59, 60, 61
    x, y, w, t = (48, 49), (50, 51), (52, 53), (54, 55)
    a(f"s_movk_i32 s{T0_}, 4096", f"s_movk_i32 s{T4_}, -1152", f"s_mov_b32 s{T1_}, 0", f"v_mov_b32 v{OFF}, 0")
    a(f"v_and_b32 v{BS}, 1, v1", f"v_lshl_add_u32 v{BS}, v3, 1, v{BS}", f"v_lshlrev_b32 v{BS}, 4, v{BS}", f"v_add_u32 v{BS}, {2047*1152}, v{BS}")
    a("v_lshlrev_b32 v7, 1, v1", "v_and_b32 v7, 28, v7")
    if ENV("KWP", 1): lds_wait(a, FL_ZF, 20, "b4", sleep=2); a("s_setprio 3")
    lds_wait(a, FL_KCNT, 20, "b4", sleep=1)
    a("s_setprio 3")
    if ENV('KDELAY', 27): a(f"s_sleep {ENV('KDELAY', 27)}")
    stamp2(a, 4)
    a("s_branch KS_Q1", "KS_Q0:", f"s_sleep {ENV('KSLEEP', 1)}", "KS_Q1:")
    for j in range(8): a(f"buffer_load_dwordx4 v[{K+4*j}:{K+4*j+3}], v17, s[{R3}:{R3+3}], {'s%d' % T0_ if j >= 4 else 0} offen offset:{1024*(j&3)} sc1")
    guard(a)
    top2(a, K, A1, A2, B1, B2, TA, TB, x[0], x[1], True)
    a(f"v_cmp_eq_u32 vcc, -1, v{x[0]}", f"v_mov_b32 v{M2}, v{x[1]}")
    a("KS_QN:")
    net8(a, x, y, w, t, C, lambda: (a("s_cbranch_vccnz KS_Q0", f"s_cmp_eq_u32 s{T1_}, 1", f"s_mov_b32 m0, {C_XR}"), stamp2(a, 1)))
    a("s_cbranch_scc1 KS_QF2")
    a(f"v_and_b32 v{RA}, 0x7ff, v{C}", f"v_mad_i32_i24 v{RA}, v{RA}, s{T4_}, v{BS}")
    def row_dma(first=True):
        for k in range(9):
            if k or first: a(f"s_mov_b32 m0, {C_XR + 896*k}")
            a(f"buffer_load_dwordx4 v{RA}, s[{R2_}:{R2_+3}], 0 offen offset:{128*k} sc1 lds")
    if ENV("XBAD", 0) != 2: row_dma(False)
    stamp2(a, 2)
    mins = ["quad_perm:[2,3,0,1]", "row_half_mirror", "row_ror:8"]
    for k in range(32):
        a(f"v_sub_u32 v{K+k}, v{K+k}, v{M2}")
        if k % 4 == 0 and k < 12: a(f"v_min_u32_dpp v{T8}, v{T8 if k else C}, v{T8 if k else C} {mins[k//4]} {DPPM}")
        if k == 2: a(f"v_max3_u32 v{TB}, v{K}, v{K+1}, v{K+2}")
        elif k > 2 and k % 2 == 0: a(f"v_max3_u32 v{TB}, v{TB}, v{K+k-1}, v{K+k}")
    a(f"v_add_u32 v{OFF}, v{OFF}, v{M2}", f"v_max_u32 v{TB}, v{TB}, v{K+31}", f"v_add_u32 v{TB}, v{TB}, v{OFF}")
    a(f"v_cmp_gt_u32 vcc, v{TB}, v{T8}", "s_cbranch_vccnz KS_QF1")
    a(f"ds_write_b32 v7, v{C} offset:{C_SEL}")
    b_frags()
    a("s_waitcnt vmcnt(0)")
    a(f"ds_write_b32 v{VZ}, v{VONE} offset:{FL_XRDY}")
    stamp2(a, 3)
    a("s_setprio 1")
    a(f"ds_read_b128 v[20:23], v{CKA}")
    a("s_waitcnt lgkmcnt(0)"); chk(20, 13)
    a("s_branch KS_CK")
    a("KS_QF1:")
    guard(a)
    a(f"v_mov_b32 v{OLD}, v{C}")
    top2(a, K, A1, A2, B1, B2, TA, TB, x[0], M2, False)
    a(f"v_add_u32 v{x[0]}, v{x[0]}, v{OFF}", f"v_add_u32 v{x[1]}, v{M2}, v{OFF}", f"s_mov_b32 s{T1_}, 1", "s_mov_b64 vcc, 0")
    a.flush(3)
    a("s_branch KS_QN")
    a("KS_QF2:")
    a(f"v_mov_b32 v{x[0]}, 0", f"v_mov_b32 v{x[1]}, 0", "s_mov_b64 exec, 0x5555")
    a(f"v_max_u32 v{x[0]}, v{C}, v{OLD}", f"v_min_u32 v{x[1]}, v{C}, v{OLD}", "s_mov_b64 exec, -1", f"s_mov_b32 s{T1_}, 2", "s_mov_b64 vcc, 0", "s_waitcnt vmcnt(0)")
    a.flush(6)
    a("s_branch KS_QN")
    f2l = lambda d, ad, so: [f"buffer_load_dword v{d+k}, v{ad}, s[{R3}:{R3+3}], s{so} offen offset:{1024*k} sc1" for k in range(4)]
    a("KS_BR:")
    a("s_mov_b64 exec, -1")
    a(f"s_cmp_lg_u32 s{S_WAVE}, 8", "s_cbranch_scc1 KS_BR1")
    a(f"s_movk_i32 s{T0_}, 0x2000")
    a.flush(8)
    zpoll(a, f2l(20, 17, T0_), [20, 21, 22, 23], 2)
    row_dma()
    a("s_waitcnt vmcnt(0)")
    a("s_barrier")
    a(f"ds_write_b32 v{VZ}, v{VZ} offset:{FL_BAD}")
    a("s_branch KS_B")
    a("KS_BR1:")
    a("s_barrier")
    a("s_branch KS_B")
    a("KS_W9:")
    a("v_lshlrev_b32 v33, 4, v1", f"s_movk_i32 s{T0_}, 0x2000", "v_and_b32 v7, 7, v1", "v_lshlrev_b32 v7, 2, v7")
    srd(a, R0, P_WS, 0x240000, WS_ZB1)
    srd(a, R1, P_X, XBYTES)
    a("v_bfe_u32 v43, v1, 3, 2", f"s_lshl_b32 s{T1_}, s{S_BLK}, 2", f"v_add_u32 v43, s{T1_}, v43")
    a("v_bfe_u32 v40, v43, 4, 1", "v_and_b32 v41, 3, v1", "v_lshl_add_u32 v40, v40, 2, v41", "v_lshlrev_b32 v40, 2, v40")
    a("v_and_b32 v41, 0x3cf, v43", "v_bfe_u32 v42, v43, 5, 1", "v_lshl_add_u32 v41, v42, 4, v41", "v_bfe_u32 v42, v1, 2, 1", "v_lshl_add_u32 v41, v42, 5, v41")
    a("v_lshrrev_b32 v42, 4, v41", "v_lshlrev_b32 v42, 8, v42", "v_lshl_add_u32 v42, v40, 3, v42", "v_and_b32 v43, 15, v41", "v_lshl_add_u32 v42, v43, 1, v42")
    lds_wait(a, C_SEL, 12, "nz", addr=7, sleep=1)
    stamp2(a, 2)
    a(f"ds_read_b32 v19, v40 offset:{C_SEL}")
    a("s_waitcnt lgkmcnt(0)")
    a("v_and_b32 v14, 0x7ff, v19", "v_sub_u32 v14, 2047, v14")
    a("v_mul_u32_u24 v23, 1152, v14", "v_lshl_add_u32 v23, v41, 1, v23")
    a(f"buffer_load_ushort v17, v23, s[{R1}:{R1+3}], 0 offen")
    a("v_lshrrev_b32 v15, 9, v14", "v_bfe_u32 v16, v14, 6, 2", "v_lshl_add_u32 v15, v15, 2, v16", "v_bfe_u32 v16, v14, 2, 2", "v_lshl_add_u32 v15, v15, 2, v16")
    a("v_bfe_u32 v16, v14, 4, 1")
    a("v_bfe_u32 v24, v14, 8, 1", "v_and_b32 v25, 3, v14", "v_lshl_add_u32 v24, v24, 2, v25", "v_lshlrev_b32 v24, 1, v24")
    a("v_bfe_u32 v25, v14, 5, 1", "v_lshl_add_u32 v24, v25, 5, v24")
    a("v_lshl_add_u32 v25, v15, 1, v16", "v_lshl_add_u32 v25, v25, 14, v24")
    a("v_lshrrev_b32 v26, 1, v41", "v_lshl_add_u32 v25, v26, 6, v25", "v_xor_b32 v26, v41, v16", "v_not_b32 v26, v26", "v_and_b32 v26, 1, v26", "v_lshl_add_u32 v25, v26, 4, v25")
    a("v_lshl_add_u32 v26, v15, 12, v24", "v_lshl_add_u32 v26, v16, 4, v26", "v_lshl_add_u32 v26, v41, 6, v26", f"v_add_u32 v26, {0x200000 - 512*64}, v26")
    if SWZ:
        a("v_lshl_add_u32 v27, v16, 6, v15", "v_lshlrev_b32 v27, 7, v27", "v_xor_b32 v25, v27, v25", "v_and_b32 v27, 0xf80, v27", "v_xor_b32 v26, v27, v26")
    a("v_cmp_gt_u32 vcc, 0x200, v41", "v_cndmask_b32 v25, v26, v25, vcc")
    a(f"buffer_load_ushort v18, v25, s[{R0}:{R0+3}], 0 offen sc1")
    a("v_ashrrev_i32 v22, 31, v19", "v_not_b32 v22, v22", "v_or_b32 v22, 0x80000000, v22", "v_xor_b32 v22, v19, v22", "v_and_b32 v22, 0xffff0000, v22")
    a(f"v_mul_f32 v22, {f32(-LOG2E)}, v22", "v_exp_f32 v22, v22", "v_add_f32 v22, 1.0, v22", "v_rcp_f32 v22, v22")
    a(f"v_cvt_pk_bf16_f32 v22, 0, v22")
    srd(a, R2_, P_WS, 64, WS_IDX)
    srd(a, R1, P_OUT, XBYTES)
    if F3:
        for l in f2l(8, 33, T0_): a(l)
    a("s_cmp_lg_u32 s2, 0", "s_cbranch_scc1 KS_W9B")
    if ENV("IDXW", 1): a(f"buffer_store_dword v12, v7, s[{R2_}:{R2_+3}], 0 offen")
    a("s_branch KS_W9B")
    a("KS_W9R:")
    a("s_barrier")
    a("KS_W9B:")
    a("s_barrier")
    a(f"ds_read_b32 v13, v{VZ} offset:{FL_BAD}", f"ds_read_u16 v20, v42 offset:{C_XR}")
    if ENV("F2D", 0): a(f"s_sleep {ENV('F2D', 0)}")
    a("s_waitcnt lgkmcnt(0)")
    a("v_cmp_ne_u32 vcc, 0, v13", "s_cbranch_vccnz KS_W9R")
    a("s_setprio 2")
    if F3:
        a("s_branch KS_F3B", "KS_F3A:", f"s_sleep {ENV('F2SLEEP', 2)}")
        for l in f2l(8, 33, T0_): a(l)
        a("KS_F3B:")
        guard(a)
        a("s_waitcnt vmcnt(0)", "v_max3_u32 v44, v8, v9, v10", "v_max_u32 v44, v44, v11", "v_cmp_eq_u32 vcc, -1, v44", "s_cbranch_vccnz KS_F3A")
        a(f"ds_write_b32 v{VZ}, v{VONE} offset:{FL_ROWSOK}")
        stamp2(a, 1)
        a(f"s_movk_i32 s{T0_}, 0x3000", f"s_sleep {ENV('F3D', 12)}")
        zpoll(a, f2l(8, 33, T0_), [8, 9, 10, 11], ENV("F2SLEEP", 2))
    else:
        zpoll(a, f2l(8, 33, T0_), [8, 9, 10, 11], ENV("F2SLEEP", 2))
        a(f"ds_write_b32 v{VZ}, v{VONE} offset:{FL_ROWSOK}")
        stamp2(a, 1)
    a("v_lshlrev_b32 v17, 16, v17", "v_lshlrev_b32 v18, 16, v18", "v_add_f32 v17, v17, v18", "v_cvt_pk_bf16_f32 v17, v17, v17")
    a("v_and_b32 v21, 0xffff0000, v17", "v_lshlrev_b32 v20, 16, v20")
    a("v_lshlrev_b32 v14, 2, v1", f"v_add_u32 v14, {C_SIDE}, v14", "s_mov_b32 exec_lo, -1", "s_mov_b32 exec_hi, 0", "s_setprio 3")
    stamp2(a, 3)
    a("s_barrier")
    for g in range(4): a(f"ds_read2_b32 v[{32+2*g}:{33+2*g}], v14 offset0:{64*g} offset1:{64*g + 32}")
    a("ds_read_b32 v40, v14 offset:1024")
    a("s_waitcnt lgkmcnt(3)", "v_pk_add_f32 v[32:33], v[32:33], v[34:35]")
    a("s_waitcnt lgkmcnt(1)", "v_pk_add_f32 v[36:37], v[36:37], v[38:39]", "v_add_f32 v32, v32, v33")
    a("s_waitcnt lgkmcnt(0)", "v_add_f32 v36, v36, v37", "v_add_f32 v32, v32, v40", "v_add_f32 v8, v32, v36")
    a(f"v_cvt_pk_bf16_f32 v8, 0, v8")
    a("v_mul_f32 v8, v8, v22", f"v_cvt_pk_bf16_f32 v8, 0, v8")
    a("v_add_f32 v8, v8, v20", f"v_cvt_pk_bf16_f32 v8, 0, v8")
    a("v_add_f32 v8, v8, v21", "v_cvt_pk_bf16_f32 v8, v8, v8")
    a(f"buffer_store_short v8, v23, s[{R1}:{R1+3}], 0 offen {MOD('FM', '')}")
    endwave(a)
    a("KS_B:")
    a(f"s_setprio {ENV('BPRIO', 2)}")
    a("s_waitcnt lgkmcnt(0)")
    a("s_barrier")
    a(f"ds_read_b128 v[20:23], v16 offset:{C_ACT}", f"ds_read_b32 v30, v{VZ} offset:{FL_BAD}")
    a("s_waitcnt lgkmcnt(1)")
    for j in (0, 2, 1, 3):
        a(f"v_mfma_f32_16x16x32_bf16 v[{32+4*j}:{35+4*j}], v[20:23], v[{WTD+4*j}:{WTD+4*j+3}], 0")
    a("s_waitcnt lgkmcnt(0)")
    a("v_cmp_ne_u32 vcc, 0, v30")
    for hi in range(2):
        a(f"s_mov_b32 exec_lo, {hi - 1}", f"s_mov_b32 exec_hi, {-hi}")
        if hi == 0: a("s_cbranch_vccnz KS_BR")
        for d in range(4):
            o = 32 + 4 * hi + 8 * (d >> 1) + 2 * (d & 1)
            a(f"v_cvt_pk_bf16_f32 v{24+d}, v{o}, v{o+1}")
    a("s_mov_b64 exec, -1")
    for d in range(4): a(f"v_min_u32 v{24+d}, -2, v{24+d}")
    a(f"buffer_store_dwordx4 v[24:27], v17, s[{R4}:{R4+3}], s{BS0} offen sc1")
    stamp2(a, 8)
    a(f"s_sleep {PE}")
    if not BT: lds_wait(a, FL_ROWSOK, 30, "nz")
    stamp2(a, 6)
    zpoll(a, [f"buffer_load_dwordx4 v[32:35], v18, s[{R4}:{R4+3}], s{BS1} offen sc1"], list(range(32, 36)), ENV("PSLEEP", 1))
    stamp2(a, 7)
    a("v_permlane32_swap_b32 v32, v34", "v_permlane32_swap_b32 v33, v35")
    a("v_permlane16_swap_b32 v32, v33", "v_permlane16_swap_b32 v34, v35")
    for d in range(4): a(f"v_dot2c_f32_bf16 v28, s{BC0}, v{32+d}", f"v_dot2c_f32_bf16 v29, s{BC1}, v{32+d}")
    for r in (8, 4): a(f"v_add_f32_dpp v28, v28, v28 row_ror:{r} {DPPM}", f"v_add_f32_dpp v29, v29, v29 row_ror:{r} {DPPM}")
    a("s_mov_b32 exec_lo, 0x000f000f", "s_mov_b32 exec_hi, 0x000f000f")
    a(f"ds_write_b64 v19, v[28:29] offset:{C_SIDE}")
    a("s_waitcnt lgkmcnt(0)")
    a("s_barrier")
    endwave(a)
    a("KS_G0:")
    a(f"ds_write_b8 v15, v{VONE} offset:{FL_G+4}")
    a("s_setprio 0")
    a("KS_G:")
    a("s_waitcnt vmcnt(0)")
    a("KS_GN:")
    stamp(a, 5)
    a(f"s_sub_u32 s{S_G}, s{S_WAVE}, 12", f"s_and_b32 s{T3_}, s{S_G}, 1")
    a(f"s_cselect_b32 s{R2_}, s{P_UP}, s{P_GATE}", f"s_cselect_b32 s{R2_+1}, s{P_UP+1}, s{P_GATE+1}", f"s_mov_b32 s{R2_+2}, {hex(WBYTES)}", f"s_mov_b32 s{R2_+3}, 0x20000")
    a("v_lshrrev_b32 v6, 3, v1", "v_lshrrev_b32 v7, 5, v1", "v_xor_b32 v6, v6, v7", "v_and_b32 v6, 1, v6", f"v_lshl_add_u32 v6, s{T3_}, 1, v6", "v_xor_b32 v6, v6, v1", "v_and_b32 v6, 3, v6")
    a("v_lshrrev_b32 v7, 2, v1", "v_mul_u32_u24 v7, 9216, v7", "v_lshl_add_u32 v46, v6, 4, v7", f"s_lshl_b32 s{T4_}, s{S_BLK}, 6", f"v_mov_b32 v6, s{S_G}")
    a(f"s_mul_i32 s{T5_}, s{T3_}, 36864", f"s_add_u32 s{T5_}, s{T5_}, {C_GU}")
    srd(a, R1, P_DOWN, WBYTES)
    a("v_lshlrev_b32 v8, 4, v1", f"s_mul_i32 s{T0_}, s{S_BLK}, 36864", f"s_mul_i32 s{T1_}, s{S_G}, 9216", f"s_add_u32 s{T0_}, s{T0_}, s{T1_}", f"s_add_u32 s{T1_}, s{T1_}, {C_DOWN}")
    a(f"s_cmp_lt_u32 s{S_I}, 8", f"s_cselect_b32 s{T2_}, 0, {FL_UTOK - (FL_G + 36)}", f"v_mov_b32 v9, s{T2_}")
    lds_wait(a, FL_G + 36, 10, "b4", addr=9, sleep=2)
    a(f"s_cmp_ge_u32 s{S_I}, 8", "s_cselect_b64 vcc, -1, 0", "s_cbranch_scc1 KS_GD1" if NDE == 9 else "s_cbranch_scc1 KS_GD0")
    DSL = ENV("DSL", -1)
    if DR: a("s_branch KS_GD1")
    if DSL >= 0:
        a(f"s_cmp_lt_u32 s{S_G}, 2", "s_cbranch_scc1 KS_GD1")
        a(f"s_mul_i32 s{T0_}, s{S_BLK}, 36864", f"s_mul_i32 s{T1_}, s{T3_}, 18432", f"s_add_u32 s{T0_}, s{T0_}, s{T1_}", f"s_add_u32 s{T1_}, s{T1_}, {C_DOWN}")
    for k in range(18 if DSL >= 0 else 9):
        if k == NDE: a("KS_GD0:")
        if k % 4 == 0 or k == NDE:
            a(f"s_add_u32 m0, s{T1_}, {1024*(k&~3)}", f"s_add_u32 s{T2_}, s{T0_}, {1024*(k&~3)}")
        a(f"buffer_load_dwordx4 v8, s[{R1}:{R1+3}], s{T2_} offen offset:{1024*(k&3)} {MOD('DM', 'nt')} lds")
        if DSL > 0: a(f"s_sleep {DSL}")
    a("KS_GD1:")
    a(f"s_cmp_ge_u32 s{S_G}, 2", "s_cbranch_scc1 KS_GL")
    def direct(n, sl):
        for k in range(n):
            if k: a(f"s_add_u32 s{T4_}, s{T4_}, {16*9216}")
            a(f"buffer_load_dwordx4 v[{GW+4*k}:{GW+4*k+3}], v46, s[{R2_}:{R2_+3}], s{T4_} offen nt")
            if ENV("GSK", 0) and n == 18:
                if k + 1 == ENV("GSK", 0): lds_wait(a, FL_UF, 10, "b4", sleep=2)
                elif k < n - 1 and ENV("GSA" if k < ENV("GSK", 0) else "GSB", 2): a(f"s_sleep {ENV('GSA' if k < ENV('GSK', 0) else 'GSB', 2)}")
            elif ENV("GSI", -1) >= 0 and k < n - 1:
                l = newlabel("GS")
                if ENV("GSI", -1): a(f"s_sleep {ENV('GSI', -1)}")
                a(f"s_cbranch_vccz {l}", f"s_sleep {sl - ENV('GSI', -1)}", f"{l}:")
            elif sl and k < n - 1: a(f"s_sleep {sl}")
        a(f"v_add_u32 v8, s{T5_}, v8")
        a("s_waitcnt vmcnt(0)")
        a(f"ds_write_b8 v6, v{VONE} offset:{FL_DOWN}")
        stamp(a, 7)
        lds_wait(a, FL_ZDONE + 4, 10, "b4", sleep=2)
    direct(18, GSL)
    for k in range(18): a(f"ds_write_b128 v8, v[{GW+4*k}:{GW+4*k+3}] offset:{1024*k}")
    a("s_branch KS_G4")
    a("KS_GL:")
    a(f"s_add_u32 s{T4_}, s{T4_}, {288*9216}", f"s_add_u32 s{T5_}, s{T5_}, 18432")
    if ENV("GED", 0): a(f"s_sleep {ENV('GED', 0)}")
    direct(GE, ENV("GSL2", GSL * 18 // max(GE, 1)))
    a("s_setprio 1")
    for k in range(GE, 18):
        j = k - GE
        if j % 4 == 0: a(f"s_add_u32 m0, s{T5_}, {1024*k}")
        if k: a(f"s_add_u32 s{T4_}, s{T4_}, {16*9216 - (1024 if j else 0) + (4096 if j and j % 4 == 0 else 0)}")
        a(f"buffer_load_dwordx4 v46, s[{R2_}:{R2_+3}], s{T4_} offen offset:{1024*(j&3)} lds")
    stamp(a, 6)
    a("s_setprio 0")
    for k in range(GE): a(f"ds_write_b128 v8, v[{GW+4*k}:{GW+4*k+3}] offset:{1024*k}")
    a("s_waitcnt vmcnt(0)")
    stamp(a, 8)
    a("KS_G4:")
    a(f"ds_write_b8 v6, v{VONE} offset:{FL_GISS}")
    a("v_lshrrev_b32 v6, 3, v1", "v_xor_b32 v6, v6, v3", "v_and_b32 v6, 1, v6", "v_and_b32 v7, 2, v1", "v_or_b32 v6, v6, v7", f"v_xor_b32 v6, s{S_G}, v6")
    a("v_mul_u32_u24 v7, 18432, v7", "v_lshl_add_u32 v7, v6, 4, v7", "v_and_b32 v6, 1, v1", "v_lshl_add_u32 v7, v6, 3, v7")
    a("v_bfe_u32 v6, v1, 2, 2", "v_lshl_add_u32 v6, v3, 3, v6", "v_lshl_add_u32 v7, v6, 6, v7", f"v_add_u32 v8, {C_GU}, v7")
    a("v_and_b32 v9, 7, v1", "v_lshrrev_b32 v10, 1, v3", "v_and_b32 v11, 1, v3")
    a("v_lshlrev_b32 v6, 5, v9", "v_lshl_add_u32 v6, v10, 8, v6", "v_lshl_add_u32 v6, v11, 4, v6", f"v_add_u32 v6, {C_XR}, v6")
    a(f"s_lshl_b32 s{T0_}, s{S_G}, 4", f"v_lshl_add_u32 v7, v9, 6, s{T0_}", "v_lshl_add_u32 v7, v11, 3, v7", "v_lshl_add_u32 v7, v10, 2, v7", "v_bfe_u32 v9, v1, 3, 1", "v_lshl_add_u32 v7, v9, 1, v7")
    lds_wait(a, FL_GISS, 10, "b4", sleep=2)
    lds_wait(a, FL_KCNT, 10, "b4", sleep=2)
    if ENV("GTD", 10): a(f"s_sleep {ENV('GTD', 10)}")
    for ks in range(18):
        for i in range(2): a(f"ds_read_b64_tr_b16 v[{GW+4*ks+2*i}:{GW+4*ks+2*i+1}], v8 offset:{2048*ks + 256*i}")
    stamp2(a, 3)
    lds_wait(a, C_SEL, 10, "nz", sleep=2)
    a(f"s_setprio {ENV('GPRIO', 3)}")
    NB, N0, GA, NACC = 10, ENV("GN0", 4), 120, ENV("NACC", 2)
    XF = lambda ks: 8 + 4 * (ks % NB)
    a("KS_GC:")
    a("s_mov_b32 exec_lo, 0x00ff00ff", "s_mov_b32 exec_hi, 0x00ff00ff")
    a("KS_GW:")
    tr = LdsTrack(a); ids = {}
    a(f"ds_read_b32 v0, v{VZ} offset:{FL_XRDY}")
    rd = lambda ks: ids.__setitem__(ks, tr.issue(f"ds_read_b128 v[{XF(ks)}:{XF(ks)+3}], v6 offset:{512*ks}"))
    for ks in range(N0): rd(ks)
    guard(a)
    a(f"s_waitcnt lgkmcnt({N0})")
    a("v_cmp_eq_u32 vcc, 0, v0", "s_cbranch_vccnz KS_GW")
    stamp2(a, 1)
    nx = N0
    for ks in range(18):
        tr.wait(ids[ks])
        ac = GA + 4 * (ks % NACC)
        a(f"v_mfma_f32_16x16x32_bf16 v[{ac}:{ac+3}], v[{GW+4*ks}:{GW+4*ks+3}], v[{XF(ks)}:{XF(ks)+3}], " + ("0" if ks < NACC else f"v[{ac}:{ac+3}]"))
        for _ in range(2):
            if nx < 18 and nx - NB <= ks: rd(nx); nx += 1
    a("s_mov_b64 exec, -1")
    if NACC == 2: a(f"v_pk_add_f32 v[{GA}:{GA+1}], v[{GA}:{GA+1}], v[{GA+4}:{GA+5}]", f"v_pk_add_f32 v[{GA+2}:{GA+3}], v[{GA+2}:{GA+3}], v[{GA+6}:{GA+7}]")
    a(f"v_permlane32_swap_b32 v{GA+1}, v{GA+3}", f"v_permlane32_swap_b32 v{GA}, v{GA+2}")
    a(f"v_mov_b32_dpp v{GA}, v{GA+1} row_shr:8 row_mask:0xf bank_mask:0xc ; nodst", f"v_mov_b32_dpp v{GA+2}, v{GA+3} row_shr:8 row_mask:0xf bank_mask:0xc ; nodst")
    g_, u_, t_ = GA, GA + 2, GA + 1
    a(f"v_cvt_pk_bf16_f32 v{g_}, 0, v{g_}", f"v_mul_f32 v{t_}, {f32(-LOG2E)}, v{g_}", f"v_exp_f32 v{t_}, v{t_}", f"v_cvt_pk_bf16_f32 v{u_}, 0, v{u_}", f"v_add_f32 v{t_}, 1.0, v{t_}", f"v_rcp_f32 v{t_}, v{t_}", f"v_mul_f32 v{t_}, v{g_}, v{t_}")
    a(f"v_cvt_pk_bf16_f32 v{t_}, 0, v{t_}")
    a(f"v_mul_f32 v{t_}, v{t_}, v{u_}", f"v_cvt_pk_bf16_f32 v{t_}, v{t_}, v{t_}")
    a(f"ds_write_b16 v7, v{t_} offset:{C_ACT}")
    stamp2(a, 2)
    a("s_waitcnt lgkmcnt(0)")
    a("s_barrier")
    a("s_setprio 0")
    a(f"ds_read_b32 v0, v{VZ} offset:{FL_BAD}")
    a("s_waitcnt lgkmcnt(0)")
    a("v_cmp_eq_u32 vcc, 0, v0", "s_cbranch_vccnz KS_PEND")
    a("s_barrier")
    a("s_branch KS_GC")
    a("KS_PEND:")
    stamp_end(a)
    spin_end(a)
    a("KS_ABORT:")
    a("KS_END:")
    a("s_endpgm")
    return f""".amdhsa_kernel {label}
  .amdhsa_next_free_vgpr 128
  .amdhsa_next_free_sgpr {NSGPR}
  .amdhsa_accum_offset 128
  .amdhsa_group_segment_fixed_size 0
  .amdhsa_kernarg_size 136
  .amdhsa_user_sgpr_count 2
  .amdhsa_user_sgpr_kernarg_segment_ptr 1
  .amdhsa_system_sgpr_workgroup_id_x 1
  .amdhsa_float_denorm_mode_32 3
.end_amdhsa_kernel
"""

def main():
    hdr = open(f"/code/{NAME}.s.ref").read().split("; Override launch geometry")[0]
    out = hdr
    out += f"; @launch grid=(256,1,1) block=(1024,1,1) lds={LDS_BYTES}\n"
    out += '.amdgcn_target "amdgcn-amd-amdhsa--gfx950"\n.text\n'
    a = Asm()
    d = gen(a)
    out += a.text()
    out += '.section .rodata,"a"\n.p2align 6\n' + d
    path = sys.argv[1] if len(sys.argv) > 1 else "ks.s"
    open(path, "w").write(out)
    print("wrote", path, len(out))

if __name__ == "__main__":
    main()
```

```python
import sys, struct, math, os
sys.path.insert(0, "gen")
from asmlib import Asm

NAME = "sequential_preLN__ssm_conv_s4__moe_arch_mod__prompt"
L, D, N, F = 2048, 576, 128, 4608
XBYTES = L * D * 2
WS_UT = 0x000000
WS_X2 = 0x3C0000
WS_ZB1 = 0x600000
WS_ZB2 = 0x800000
WS_KEYS = 0x840000
WS_PART = 0x850000
WS_CLR, CLR_WG = 0x600000, 18560
CLRP_WG = 23744
WS_FLAG1 = 0xB00000
TAGM = 0x00070007
WS_IDX = 0xB10000
WS_KT = 0xB20000
WS_DBG = 0xC00000
WS_MARK = 0xB80000
XCL = int(os.environ.get("XCL", "2"))
if XCL == 1: WS_CLR, CLR_WG = WS_X2, 36992
if XCL == 2: WS_X2 = WS_UT
NOCLR = int(os.environ.get("NOCLR", "0"))
if NOCLR == 1: WS_CLR, CLR_WG = WS_ZB2, 2176
if NOCLR >= 2: WS_CLR = WS_ZB2
if NOCLR == 2: WS_PART = 0x1000000
PB = int(os.environ.get("PB", "1"))
PCT = int(os.environ.get("PCT", "4"))
if PB and not PCT: WS_PART, CLR_WG = 0x843000, 29040
WSB = int(os.environ.get("WSB", "0")) << 20
WS_UT += WSB; WS_X2 += WSB; WS_ZB1 += WSB; WS_ZB2 += WSB; WS_KEYS += WSB; WS_PART += WSB; WS_CLR += WSB; WS_FLAG1 += WSB; WS_IDX += WSB; WS_KT += WSB
WS_STAMP = 0x8000000
PART_BYTES = 144 * (4608 * (2 if PB else 4) + 128)
C_FL, C_CAND, C_SEL, C_KEY, C_PAR, C_ACT, C_SIDE, C_RED2 = 0, 256, 768, 800, 832, 1024, 1536, 2048
C_U, U_SIZE = 3072, 4672
C_LNB = C_U + 3 * U_SIZE
C_XR = C_LNB
C_RED = C_LNB + 9280
G_BASE, G_SIZE = 35840, 36672
C_STG = G_BASE + 2 * G_SIZE + 36864
LDS_BYTES = C_STG + 8192
FL_LN1, FL_LNACK, FL_KCNT, FL_UF, FL_ZF, FL_KACK, FL_ROWSOK, FL_XRDY, FL_PARAM, FL_DOWN, FL_ZDONE = 0, 8, 12, 16, 20, 24, 28, 32, 36, 40, 48
FL_G = 64
FL_S6 = 128
FL_ZISS = 240
FL_F2CNT, FL_INIT, FL_CLROK, FL_GISS, FL_KSEEN, FL_UTOK, FL_PRE, FL_NONCE = 176, 180, 188, 192, 196, 200, 208, 224
KG_ROW = 544
KG_T = [0, 16 * KG_ROW, 32 * KG_ROW, 41 * KG_ROW]
R_WS3 = 0
R_WS5 = R_WS3 + 193 * 16
R_WS7 = R_WS5 + 193 * 16
R_WS9 = R_WS7 + 128 * 16
R_RED = 10752
R2 = 31232
T_TAB = R2
T_DRE = R2 + 1296
T_DRO = T_DRE + 1280 + 64
T_G3 = T_DRO + 1280
T_G5 = T_G3 + 256
T_G7E = T_G5 + 256
T_G7O = T_G7E + 192
T_G9E = T_G7O + 192
T_G9O = T_G9E + 192
assert T_G9O + 192 <= G_SIZE and R_WS9 + 129 * 16 <= R_RED and R_RED + 13 * 1024 <= R2 and 57 * KG_ROW <= R2
IDX_ZERO, IDX_DUMMY = 641, 642
C_DOWN = G_BASE + 2 * G_SIZE
C_GU = G_BASE - 512
assert C_GU + 2 * 36864 <= C_DOWN and C_RED + 2560 <= C_GU
FL_BAD = FL_KACK

def f32(x): return "0x%08x" % struct.unpack("<I", struct.pack("<f", x))[0]
def f32v(x): return struct.unpack("<f", struct.pack("<f", x))[0]
LOG2E = math.log2(math.e)
LOG2E_HI = f32v(LOG2E); LOG2E_LO = LOG2E - LOG2E_HI
INV2PI = 1.0 / (2 * math.pi)
INV2PI_HI = f32v(INV2PI); INV2PI_LO = INV2PI - INV2PI_HI
DPPM = "row_mask:0xf bank_mask:0xf"
ENV = lambda k, d: int(os.environ.get(k, str(d)))
STAMP = ENV("STAMP", 0)
DBG = ENV("DBG", 0)
GUARD = 1 << 19
XP = ENV("XP", 0)
KOFF = ENV("KOFF", 1)
PTAG = ENV("PTAG", 1)
PE = ENV("PE", 13)
SN = ENV("SN", 1)
UL = ENV("UL", 0)
GM_ = ENV("GM", 0)
L2G = ENV("L2G", 0)
XT = ENV("XT", 0)
F3 = ENV("F3", 1)
BT = ENV("BT", 0)
TQ = ENV("TQ", 1)
ZM = ENV("ZM", 0)
DR = ENV("DR", 0)
DL = ENV("DL", 0)
XH = ENV("XH", 0)
KD = ENV("KD", 2)
RP = ENV("RP", 0)
XW = ENV("XW", 0)
WBYTES = 0 if ENV("XW2", 0) else D * F * 2
SWU = ENV("SWU", 1); SWZ = ENV("SWZ", 1); PROW = (9216 if PB else 18432) + 128 * ENV("SWP", 1)
MOD = lambda k, d="sc1": os.environ.get(k, d).replace("_", " ")

P_X, P_ARE, P_LDT, P_DSK, P_WR, P_GATE, P_UP, P_DOWN, P_OUT, P_DBG, P_WS = 4, 6, 18, 20, 24, 26, 28, 30, 32, 34, 36
S_WAVE, S_GUARD, S_XC, S_I = 38, 39, 40, 41
R0, R1, R2_, R3, R4 = 64, 68, 72, 76, 80
S_ONES, S_GB, S_ROLE, S_G, S_CH, S_BLK, S_B2 = 84, 85, 86, 87, 88, 89, 90
RM = ENV("RM", 0)
S_FI = 91 if RM else S_I
T0_, T1_, T2_, T3_, T4_, T5_ = 92, 93, 94, 95, 96, 97
SP0, SP1 = 98, 99
NSGPR = 100

def srd(a, d, base, nbytes, off=0):
    if off:
        a(f"s_add_u32 s{d}, s{base}, {hex(off)}", f"s_addc_u32 s{d+1}, s{base+1}, 0")
    else:
        a(f"s_mov_b32 s{d}, s{base}", f"s_mov_b32 s{d+1}, s{base+1}")
    a(f"s_mov_b32 s{d+2}, {hex(nbytes)}", f"s_mov_b32 s{d+3}, 0x20000")

def red16(a, op, v):
    for r in (8, 4, 2, 1):
        a(f"{op}_dpp v{v}, v{v}, v{v} row_ror:{r} {DPPM}")
def red32(a, op, v, t):
    red16(a, op, v)
    a(f"v_mov_b32 v{t}, v{v}", f"v_permlane16_swap_b32 v{v}, v{t}", f"{op} v{v}, v{v}, v{t}")
def red64x2(a, op1, v1, t1, op2, v2, t2):
    for r in (8, 4, 2, 1):
        a(f"{op1}_dpp v{v1}, v{v1}, v{v1} row_ror:{r} {DPPM}", f"{op2}_dpp v{v2}, v{v2}, v{v2} row_ror:{r} {DPPM}")
    for ins in ("v_permlane16_swap_b32", "v_permlane32_swap_b32"):
        a(f"v_mov_b32 v{t1}, v{v1}", f"v_mov_b32 v{t2}, v{v2}", f"{ins} v{v1}, v{t1}", f"{ins} v{v2}, v{t2}")
        a(f"{op1} v{v1}, v{v1}, v{t1}", f"{op2} v{v2}, v{v2}, v{t2}")

SPIN = eval(os.environ.get("SPIN", "None"))
def spin_rec(a, ph, i):
    if not SPIN or SPIN[1:] != (ph, i): return
    a("s_memrealtime s[46:47]")
def spin_end(a):
    if not SPIN: return
    lo, hi = eval(os.environ.get("SPINI", "(0,32)"))
    a("KS_SPIN:")
    if SPIN[2] == 9: a("s_memrealtime s[46:47]")
    a(f"s_sub_u32 s48, s{S_I}, {lo}", f"s_cmp_ge_u32 s48, {hi-lo}", "s_cbranch_scc1 KS_END")
    a(f"s_lshr_b32 s48, {hex(SPIN[0])}, s{S_WAVE}", "s_bitcmp1_b32 s48, 0", "s_cbranch_scc0 KS_END")
    a("s_mov_b64 exec, -1", "v_mov_b32 v4, 0")
    a("KS_SP0:")
    a(f"global_load_dword v8, v4, s[{P_DBG}:{P_DBG+1}] offset:64 sc1", "s_waitcnt vmcnt(0) lgkmcnt(0)", "v_readfirstlane_b32 s44, v8", "s_cmp_eq_u32 s44, 0", "s_cbranch_scc1 KS_SP0")
    if SPIN[2] == -1: a("s_mov_b32 s46, s44")
    a("s_sub_u32 s48, s46, s44", "s_add_u32 s48, s48, 200")
    if ENV("SPINMIN", 0): a(f"s_sub_u32 s48, {ENV('SPINMIN', 0)}, s48")
    a("s_min_u32 s48, s48, 3000", "s_lshl_b32 s48, s48, 2", "s_add_u32 s48, s48, 2000")
    a("SPINL:", "s_sleep 1", "s_memrealtime s[50:51]", "s_waitcnt lgkmcnt(0)", "s_sub_u32 s50, s50, s44", "s_cmp_lt_u32 s50, s48", "s_cbranch_scc1 SPINL")
def stamp_begin(a):
    if SPIN: a("s_memrealtime s[46:47]")
    if not STAMP: return
    a("s_memrealtime s[44:45]")
    for i in range(1, 9): a(f"s_mov_b32 s{44+2*i}, 0")
def cstamp(a, i):
    if STAMP == 9: a(f"s_memtime s[{44+2*i}:{45+2*i}]")
def kstamp(a, i):
    if STAMP == 7: a(f"s_memtime s[{44+2*i}:{45+2*i}]")
def stamp(a, i, ph=1):
    spin_rec(a, ph, i)
    if ph == 2 and STAMP not in (2, 3): return
    if STAMP == 7 and i == 1: return kstamp(a, 1)
    if not STAMP or STAMP in (6, 7, 9): return
    assert 1 <= i <= 8
    a(f"{'s_memtime' if STAMP == 8 else 's_memrealtime'} s[{44+2*i}:{45+2*i}]")
def lstamp(a, i):
    if STAMP == 6: a(f"s_memrealtime s[{44+2*i}:{45+2*i}]")
def stamp2(a, i):
    stamp(a, i, 2)
def stamp_end(a):
    if not STAMP: return
    a("s_waitcnt vmcnt(0) lgkmcnt(0)")
    a("s_memrealtime s[62:63]")
    a(f"s_lshl_b32 s43, s2, 4", f"s_add_u32 s43, s43, s{S_WAVE}", "s_lshl_b32 s43, s43, 6", f"s_add_u32 s43, s43, {hex(WS_STAMP)}")
    a("s_mov_b64 exec, 1")
    a("s_waitcnt lgkmcnt(0)")
    a("v_mov_b32 v1, s43")
    for i in range(10): a(f"v_mov_b32 v{4+i}, s{44+2*i}")
    a(f"global_store_dwordx4 v1, v[4:7], s[{P_WS}:{P_WS+1}]")
    a(f"global_store_dwordx4 v1, v[8:11], s[{P_WS}:{P_WS+1}] offset:16")
    a(f"global_store_dwordx2 v1, v[12:13], s[{P_WS}:{P_WS+1}] offset:32")
def endwave(a):
    stamp_end(a)
    a("s_branch KS_SPIN" if SPIN else "s_endpgm")

def unpack(a, dst, src):
    a(f"v_lshlrev_b32 v{dst}, 16, v{src}", f"v_and_b32 v{dst+1}, 0xffff0000, v{src}")

def rnd2(a, t):
    a(f"v_cvt_pk_bf16_f32 v{t}, 0, v{t}", f"v_cvt_pk_bf16_f32 v{t+1}, 0, v{t+1}")

def ln_stats(a, X, m2, rinv2, t0, t1, t2):
    a(f"v_pk_add_f32 v[{t0}:{t0+1}], v[{X}:{X+1}], v[{X+2}:{X+3}]")
    a(f"v_pk_add_f32 v[{t1}:{t1+1}], v[{X+4}:{X+5}], v[{X+6}:{X+7}]")
    for j in range(4, 9):
        t = t0 if j % 2 == 0 else t1
        a(f"v_pk_add_f32 v[{t}:{t+1}], v[{t}:{t+1}], v[{X+2*j}:{X+2*j+1}]")
    a(f"v_pk_add_f32 v[{t0}:{t0+1}], v[{t0}:{t0+1}], v[{t1}:{t1+1}]")
    a(f"v_add_f32 v{t0}, v{t0}, v{t0+1}")
    red32(a, "v_add_f32", t0, t1)
    a(f"v_mul_f32 v{t2}, {f32(1.0/576)}, v{t0}")
    a(f"v_mov_b32 v{t2+1}, v{t2}")
    a(f"v_cvt_pk_bf16_f32 v{m2}, 0, v{t2}", f"v_cvt_pk_bf16_f32 v{m2+1}, 0, v{t2}")
    first = {t0: True, t1: True}
    for j in range(9):
        t = t0 if j % 2 == 0 else t1
        a(f"v_pk_add_f32 v[{rinv2}:{rinv2+1}], v[{X+2*j}:{X+2*j+1}], v[{t2}:{t2+1}] neg_lo:[0,1] neg_hi:[0,1]")
        if first[t]:
            a(f"v_pk_mul_f32 v[{t}:{t+1}], v[{rinv2}:{rinv2+1}], v[{rinv2}:{rinv2+1}]"); first[t] = False
        else:
            a(f"v_pk_fma_f32 v[{t}:{t+1}], v[{rinv2}:{rinv2+1}], v[{rinv2}:{rinv2+1}], v[{t}:{t+1}]")
    a(f"v_pk_add_f32 v[{t0}:{t0+1}], v[{t0}:{t0+1}], v[{t1}:{t1+1}]")
    a(f"v_add_f32 v{t0}, v{t0}, v{t0+1}")
    red32(a, "v_add_f32", t0, t1)
    a(f"v_mul_f32 v{t0}, {f32(1.0/576)}, v{t0}")
    a(f"v_cvt_pk_bf16_f32 v{t0}, 0, v{t0}")
    a(f"v_add_f32 v{t0}, {f32(1e-5)}, v{t0}")
    a(f"v_cvt_pk_bf16_f32 v{t0}, 0, v{t0}")
    a(f"v_sqrt_f32 v{t0}, v{t0}")
    a(f"v_cvt_pk_bf16_f32 v{t0}, 0, v{t0}")
    a(f"v_rcp_f32 v{rinv2}, v{t0}")
    a(f"v_mov_b32 v{rinv2+1}, v{rinv2}")

def ln_apply_pair(a, x, m2, rinv2, t, P):
    a(f"v_pk_add_f32 v[{t}:{t+1}], v[{x}:{x+1}], v[{m2}:{m2+1}] neg_lo:[0,1] neg_hi:[0,1]")
    rnd2(a, t)
    a(f"v_pk_mul_f32 v[{t}:{t+1}], v[{t}:{t+1}], v[{rinv2}:{rinv2+1}]")
    if P is not None: a(f"v_cvt_pk_bf16_f32 v{P}, v{t}, v{t+1}")
    rnd2(a, t)

VZ, VONE = 4, 5
_lbl = [0]
def newlabel(p="L"):
    _lbl[0] += 1
    return f"{p}_{_lbl[0]}"
def guard(a):
    a(f"s_sub_u32 s{S_GUARD}, s{S_GUARD}, 1", "s_cbranch_scc1 KS_ABORT")
def lds_wait(a, off, t, kind="b4", addr=VZ, sleep=0):
    l = newlabel("W")
    a(f"{l}:")
    if sleep: a(f"s_sleep {sleep}")
    if kind == "b8":
        a(f"ds_read_b64 v[{t}:{t+1}], v{addr} offset:{off}")
    else:
        a(f"ds_read_{'u8' if kind == 'u8' else 'b32'} v{t}, v{addr} offset:{off}")
    guard(a)
    a("s_waitcnt lgkmcnt(0)")
    if kind == "b8": a(f"v_and_b32 v{t}, v{t}, v{t+1}")
    if kind in ("nz", "u8"): a(f"v_cmp_eq_u32 vcc, 0, v{t}")
    else: a(f"v_cmp_ne_u32 vcc, s{S_ONES}, v{t}")
    a(f"s_cbranch_vccnz {l}")

def zpoll(a, loads, regs, sleep, mid=None):
    lp = newlabel("ZP"); l1 = newlabel("ZPE")
    if mid:
        for l in loads: a(l)
        a(mid)
    a(f"s_branch {l1}")
    a(f"{lp}:")
    a(f"s_sleep {sleep}")
    if not mid: a(f"{l1}:")
    for l in loads: a(l)
    if mid: a(f"{l1}:")
    guard(a)
    a("s_waitcnt vmcnt(0)")
    a(f"v_max3_u32 v44, v{regs[0]}, v{regs[1]}, v{regs[2]}")
    r = regs[3:]
    while len(r) >= 2: a(f"v_max3_u32 v44, v44, v{r[0]}, v{r[1]}"); r = r[2:]
    if r: a(f"v_max_u32 v44, v44, v{r[0]}")
    a("v_cmp_eq_u32 vcc, -1, v44", f"s_cbranch_vccnz {lp}")

class Pool:
    def __init__(self, regs): self.free = list(regs)
    def get(self): return self.free.pop(0)
    def put(self, r): self.free.append(r)
def ce_inlane(a, x, i, j, pool):
    t = pool.get()
    a(f"v_max_u32 v{t}, v{x[i]}, v{x[j]}", f"v_min_u32 v{x[j]}, v{x[i]}, v{x[j]}")
    pool.put(x[i]); x[i] = t
def clean8(a, x, pool, DE, rev=False):
    t = [pool.get() for _ in range(4)]
    for i in range(4):
        a(f"v_mov_b32_dpp v{t[i]}, v{x[3-i if rev else i]} quad_perm:[1,0,3,2] {DPPM}")
    for i in range(4):
        a(f"v_med3_u32 v{t[i]}, v{x[i]}, v{t[i]}, v{DE}")
    for i in range(4): pool.put(x[i]); x[i] = t[i]
    for (i, j) in ((0, 2), (1, 3), (0, 1), (2, 3)): ce_inlane(a, x, i, j, pool)
def merge_mirror(a, x, pool, M):
    c = [pool.get() for _ in range(4)]
    for i in range(4):
        a(f"v_max_u32_dpp v{c[i]}, v{x[3-i]}, v{x[i]} {M} {DPPM}")
    for i in range(4): pool.put(x[i]); x[i] = c[i]
def merge_pair(a, x, y, pool):
    for i in range(4):
        a(f"v_max_u32_dpp v{x[i]}, v{y[3-i]}, v{x[i]} quad_perm:[1,0,3,2] {DPPM}")
    for i in range(4): pool.put(y[i])
MIRRORS = ("quad_perm:[3,2,1,0]", "row_half_mirror", "row_mirror")
def level2(a, ad, base, de, dst, m0, m1, st=None):
    l = newlabel("L2P")
    a(f"{l}:")
    a(f"ds_read_b128 v[{base}:{base+3}], v{ad} offset:{C_CAND}")
    a(f"ds_read_b128 v[{base+4}:{base+7}], v{ad} offset:{C_CAND + 256}")
    guard(a)
    a("s_waitcnt lgkmcnt(0)")
    a(f"v_min_u32 v{base+8}, v{base}, v{base+4}", f"v_cmp_eq_u32 vcc, 0, v{base+8}")
    a(f"s_cbranch_vccnz {l}")
    if st: st()
    pool = Pool(range(base + 8, base + 20))
    x = list(range(base, base + 4)); y = list(range(base + 4, base + 8))
    merge_pair(a, x, y, pool); clean8(a, x, pool, de)
    for li, M in enumerate(MIRRORS):
        merge_mirror(a, x, pool, M)
        if li < 2: clean8(a, x, pool, de)
    t = pool.get()
    a(f"v_cndmask_b32 v{dst}, v{x[0]}, v{x[1]}, s[{m0}:{m0+1}]", f"v_cndmask_b32 v{t}, v{x[2]}, v{x[3]}, s[{m0}:{m0+1}]", f"v_cndmask_b32 v{dst}, v{dst}, v{t}, s[{m1}:{m1+1}]")
    a(f"v_mov_b32_dpp v{dst}, v{dst} row_shr:8 row_mask:0xf bank_mask:0xc")

def top2(a, K, A1, A2, B1, B2, TA, TB, X0, X1, wait):
    for j in range(8):
        k = K + 4 * j
        if j == 7: a(f"v_max_u32 v{A2}, v{A2}, v{B2}")
        if wait: a(f"s_waitcnt vmcnt({7-j})")
        if j == 0:
            a(f"v_max_u32 v{A1}, v{k}, v{k+1}", f"v_max_u32 v{B1}, v{k+2}, v{k+3}", f"v_min_u32 v{A2}, v{k}, v{k+1}", f"v_min_u32 v{B2}, v{k+2}, v{k+3}")
            continue
        a(f"v_med3_u32 v{TA}, v{A1}, v{k}, v{k+1}", f"v_med3_u32 v{TB}, v{B1}, v{k+2}, v{k+3}")
        a(f"v_max3_u32 v{A1}, v{A1}, v{k}, v{k+1}", f"v_max3_u32 v{B1}, v{B1}, v{k+2}, v{k+3}")
        if j < 7: a(f"v_max_u32 v{A2}, v{A2}, v{TA}", f"v_max_u32 v{B2}, v{B2}, v{TB}")
    a(f"v_max3_u32 v{A2}, v{A2}, v{TA}, v{TB}", f"v_max_u32 v{X0}, v{A1}, v{B1}", f"v_med3_u32 v{X1}, v{A1}, v{B1}, v{A2}")
def net8(a, x, y, w, t, C, mid=None):
    HM, MI, R8 = "row_half_mirror", "row_mirror", "row_ror:8"
    def xst(d, s, M, mx, cross):
        for op, bm in (("max", mx), ("min", mx ^ 15)):
            for i in range(2): a(f"v_{op}_u32_dpp v{d[i]}, v{s[i ^ cross]}, v{s[i]} {M} row_mask:0xf bank_mask:{hex(bm)} ; nodst")
    def inl(d, s, cp=None):
        if cp: a(f"v_max_u32 v{d[0]}, v{s[0]}, v{s[1]}", f"v_max_u32 v{cp[0]}, v{s[0]}, v{s[1]}", f"v_min_u32 v{d[1]}, v{s[0]}, v{s[1]}", f"v_min_u32 v{cp[1]}, v{s[0]}, v{s[1]}")
        else: a(f"v_min_u32 v{d[1]}, v{s[0]}, v{s[1]}", f"v_max_u32 v{d[0]}, v{s[0]}, v{s[1]}")
    xst(y, x, HM, 5, 1)
    if mid: mid()
    inl(w, y)
    xst(y, w, MI, 3, 1); xst(w, y, HM, 5, 0); inl(x, w, t)
    for lv in range(3):
        if lv < 2:
            for i in range(2): a(f"v_permlane{32 >> lv}_swap_b32 v{x[i]}, v{t[i]}")
            M = MI
            for i in (1, 0): a(f"v_max_u32_dpp v{y[i]}, v{t[1-i]}, v{x[i]} {M} {DPPM} ; nodst")
        else:
            for i in (1, 0): a(f"v_mov_b32_dpp v{t[i]}, v{x[i]} {MI} {DPPM} ; nodst")
            M = "quad_perm:[1,0,3,2]"
            for i in (0, 1): a(f"v_max_u32_dpp v{y[i]}, v{t[1-i]}, v{x[i]} {M} {DPPM} ; nodst")
        xst(w, y, R8, 3, 0); xst(y, w, HM, 5, 0); inl(x, y, t if lv == 0 else None)
    a(f"v_mov_b32_dpp v{t[1]}, v{x[1]} {MI} {DPPM} ; nodst")
    a(f"v_max_u32_dpp v{C}, v{t[1]}, v{x[0]} quad_perm:[2,3,0,1] {DPPM} ; nodst")

GW = 48
def g_addr_setup(a, A):
    a(f"s_sub_u32 s{S_G}, s{S_WAVE}, 12")
    a(f"s_mul_i32 s{T0_}, s{S_G}, 9", f"s_add_u32 s{T0_}, s{T0_}, 1", f"s_lshr_b32 s{S_ROLE}, s{T0_}, 1")
    a(f"s_lshl_b32 s{T0_}, s{S_ROLE}, 5", f"v_lshl_add_u32 v7, v3, 3, s{T0_}", "v_mul_u32_u24 v7, 9216, v7")
    a("v_and_b32 v6, 7, v2", "v_lshl_add_u32 v7, v6, 3, v7")
    a(f"s_lshl_b32 s{T0_}, s{S_BLK}, 6", f"v_add_u32 v7, s{T0_}, v7")
    a("v_cmp_gt_u32 vcc, 8, v2")
    a(f"s_mov_b32 s{R3}, 9216", f"s_mov_b32 s{R3+1}, 0", f"s_mov_b32 s{R3+2}, {9216*25}", f"s_mov_b32 s{R3+3}, 0")
    a(f"v_mov_b32 v{A}, s{P_GATE}", f"v_mov_b32 v{A+1}, s{P_GATE+1}", f"v_mov_b32 v6, s{P_UP}")
    a(f"v_cndmask_b32 v{A}, v6, v{A}, vcc", f"v_mov_b32 v6, s{P_UP+1}", f"v_cndmask_b32 v{A+1}, v6, v{A+1}, vcc")
    a(f"v_add_co_u32 v{A}, vcc, v{A}, v7", f"v_addc_co_u32 v{A+1}, vcc, 0, v{A+1}, vcc")
def g_loads(a, A, kss, mod=""):
    if XW: return
    for ks in kss:
        for r in range(8):
            d = GW + 16 * ks + 2 * r
            gp = ENV("GPACE", 0)
            if gp and mod: a(f"s_waitcnt vmcnt({gp - 1})")
            a(f"global_load_dwordx2 v[{d}:{d+1}], v[{A}:{A+1}], off" + mod)
            if not (ks == 4 and r == 7):
                a(f"v_lshl_add_u64 v[{A}:{A+1}], v[{A}:{A+1}], 0, s[{R3 if r < 7 else R3+2}:{R3+1 if r < 7 else R3+3}]")
GTRIG = ENV("GTRIG", 2)
PF = ENV("PF", 1)
NL, NN, NC = ENV("NL", 0), ENV("NN", 0), ENV("NC", 4)
NE = ENV("NE", 0)
NLL = ENV("NLL", 0)
NL2 = ENV("NL2", 4)
GE = ENV("GE", 0)
GSL = ENV("GSL", 5)
XPF = ENV("XPF", 1)
PFB = ENV("PFB", min(166, 2 * ((max(288, 32 * ENV("GM2", 9)) + 16 * GE) // 7)))
assert not (PFB and NL)
NL3 = ENV("NL3", 0)
assert not (NL3 and NE)
PFA = PFB + 16 * NL + 16 * NE + 6 * NL3
PF0 = PFA + 10 * NLL + 6 * NL2
PF1 = PF0 + 8 * NN + 8 * NC
assert PF1 <= 166
PF2 = ENV("PF2", 166); PFD = ENV("PFD", 0); PFD2 = ENV("PFD2", 0)
GT = eval(os.environ.get("GT", "[0,0,6,6]")); DT = ENV("DT", 3)
RDMA = ENV("RDMA", 1)
DEA = ENV("DEA", 1)
DE = ENV("DE", 1)
def pf_ld(a, dst, v, R):
    if XW: return
    for m in MOD("PFM", "nt;sc1").split(";"): a(f"buffer_load_dword v{dst}, v{v}, s[{R}:{R+3}], s{T4_} offen {m}")
def pf_lane(a, v, t):
    a(f"v_mul_u32_u24 v{v}, 57, v1", f"v_lshrrev_b32 v{v}, 9, v{v}", f"v_mul_u32_u24 v{t}, 9, v{v}", f"v_sub_u32 v{t}, v1, v{t}", f"v_mul_u32_u24 v{v}, 9216, v{v}", f"v_lshl_add_u32 v{v}, v{t}, 7, v{v}")
def pf_gu_setup(a, sidx, R=R2_, tb=T3_, tt=T4_):
    a(f"s_bitcmp1_b32 s{sidx}, 0", f"s_cselect_b32 s{R}, s{P_UP}, s{P_GATE}", f"s_cselect_b32 s{R+1}, s{P_UP+1}, s{P_GATE+1}")
    a(f"s_mov_b32 s{R+2}, {hex(WBYTES)}", f"s_mov_b32 s{R+3}, 0x20000")
    a(f"s_lshr_b32 s{tb}, s{sidx}, 1", f"s_mul_i32 s{tb}, s{tb}, {7*9216}", f"s_mul_i32 s{tt}, s{S_XC}, 1152", f"s_add_u32 s{tb}, s{tb}, s{tt}")
def pf_gu(a, v, sidx, nw, u0, u1, dst, done):
    assert u0 % 2 == 0 and nw % 2 == 0
    pf_gu_setup(a, sidx)
    k = 0
    while u0 + k * nw < u1:
        if u0 + (k + 1) * nw > u1: a(f"s_cmp_ge_u32 s{sidx}, {u1 - u0 - k*nw}", f"s_cbranch_scc1 {done}")
        a(f"s_add_u32 s{T4_}, s{T3_}, {(u0 + k*nw)//2*7*9216}")
        pf_ld(a, dst, v, R2_)
        k += 1
def pf_down(a, sidx, nw, u0, u1, v, dst, done, R=R2_):
    srd(a, R, P_DOWN, WBYTES)
    a(f"s_lshl_b32 s{T3_}, s{sidx}, 13", f"s_mul_i32 s{T4_}, s{S_XC}, {576*1152}", f"s_add_u32 s{T3_}, s{T3_}, s{T4_}", f"v_lshlrev_b32 v{v}, 7, v1")
    k = 0
    while u0 + k * nw < u1:
        if u0 + (k + 1) * nw > u1: a(f"s_cmp_ge_u32 s{sidx}, {u1 - u0 - k*nw}", f"s_cbranch_scc1 {done}")
        a(f"s_add_u32 s{T4_}, s{T3_}, {(u0 + k*nw)*8192}")
        pf_ld(a, dst, v, R)
        k += 1
def gen_ln1(a):
    LW, TB = T5_, S_CH
    X, RAW = 8, 26
    a(f"s_sub_u32 s{T0_}, s{S_I}, 8", f"s_and_b32 s{TB}, s{T0_}, 7", f"s_lshr_b32 s{T0_}, s{T0_}, 3", f"s_lshl_b32 s{T0_}, s{T0_}, 4", f"s_add_u32 s{TB}, s{TB}, s{T0_}")
    a(f"s_and_b32 s{T0_}, s{S_XC}, 1", f"s_lshl_b32 s{T0_}, s{T0_}, 3", f"s_add_u32 s{TB}, s{TB}, s{T0_}", f"s_lshr_b32 s{T0_}, s{S_XC}, 1", f"s_lshl_b32 s{T0_}, s{T0_}, 5", f"s_add_u32 s{TB}, s{TB}, s{T0_}")
    a("v_lshrrev_b32 v36, 5, v1", "v_and_b32 v37, 31, v1")
    a("v_mul_u32_u24 v38, 1152, v36", "v_lshl_add_u32 v39, v37, 2, v38", "v_lshl_add_u32 v38, v37, 4, v38")
    a(f"s_mul_i32 s{T1_}, s{TB}, 18432", f"s_mul_i32 s{T2_}, s{LW}, 2304", f"s_add_u32 s{T1_}, s{T1_}, s{T2_}")
    a("s_waitcnt lgkmcnt(0)")
    stamp(a, 1); lstamp(a, 1)
    srd(a, R0, P_X, XBYTES)
    a(f"buffer_load_dwordx4 v[{RAW}:{RAW+3}], v38, s[{R0}:{R0+3}], s{T1_} offen")
    a(f"buffer_load_dwordx4 v[{RAW+4}:{RAW+7}], v38, s[{R0}:{R0+3}], s{T1_} offen offset:512")
    a(f"buffer_load_dword v{RAW+8}, v39, s[{R0}:{R0+3}], s{T1_} offen offset:1024")
    a("s_barrier")
    a(f"s_lshr_b32 s{T1_}, s{LW}, 2", f"s_lshl_b32 s{T1_}, s{T1_}, 6", f"s_add_u32 s{T2_}, s{T2_}, s{T1_}", f"s_add_u32 s{T2_}, s{T2_}, {C_LNB}")
    a(f"v_lshl_add_u32 v35, v37, 1, v36")
    a(f"s_mov_b32 s{SP0}, 0x05040100", f"s_mov_b32 s{SP1}, 0x07060302")
    def waits(n):
        for (c, js) in ((2, range(0, 4)), (1, range(4, 8)), (0, range(8, 9))):
            if c == 2: lstamp(a, 2)
            a(f"s_waitcnt vmcnt({c+n})")
            if c == 2: lstamp(a, 3)
            for j in js: unpack(a, X + 2 * j, RAW + j)
    l1 = newlabel("LN1A"); l2 = newlabel("LN1B")
    if NL:
        LW0 = ENV("NLW", 4)
        pf_lane(a, 46, 47)
        a(f"s_sub_u32 s{T1_}, s{LW}, {LW0}", f"s_and_b32 s{T1_}, s{T1_}, 7", f"s_lshl_b32 s{T3_}, s{T1_}, 4", f"s_add_u32 s{T3_}, s{T3_}, s{S_I}", f"s_sub_u32 s{T3_}, s{T3_}, 8")
        pf_gu_setup(a, T3_, R3, T4_, T0_)
    def dma_early(skip):
        a(f"s_cmp_lt_u32 s{LW}, 4", f"s_cbranch_scc1 {skip}", f"s_cmp_ge_u32 s{S_FI}, 18", f"s_cbranch_scc1 {skip}")
        srd(a, R1, P_DOWN, WBYTES)
        a("v_lshlrev_b32 v46, 4, v1", f"s_mul_i32 s{T0_}, s{S_BLK}, 36864", f"s_mul_i32 s{T1_}, s{LW}, 9216", f"s_add_u32 s{T0_}, s{T0_}, s{T1_}", f"s_sub_u32 s{T0_}, s{T0_}, {4*9216}", f"s_add_u32 s{T1_}, s{T1_}, {C_DOWN - 4*9216}")
        for k in range(9):
            if k % 4 == 0:
                a(f"s_add_u32 m0, s{T1_}, {1024*k}")
                if k: a(f"s_add_u32 s{T0_}, s{T0_}, 4096")
            a(f"buffer_load_dwordx4 v46, s[{R1}:{R1+3}], s{T0_} offen offset:{1024*(k&3)} {MOD('DM', 'nt')} lds")
    if XW: waits(0)
    elif DEA == 1:
        dma_early(l1)
        waits(9)
        a(f"s_branch {l2}")
        a(f"{l1}:")
        if NL3:
            l3 = newlabel("LN1C")
            a(f"s_sub_u32 s{T1_}, s{LW}, 4", f"s_cmp_ge_u32 s{T1_}, {NL3}", f"s_cbranch_scc1 {l3}")
            pf_lane(a, 46, 47)
            a(f"s_mul_i32 s{T1_}, s{T1_}, 6", f"s_add_u32 s{T1_}, s{T1_}, s{S_I}", f"s_add_u32 s{T3_}, s{T1_}, {PFB - 18}")
            pf_gu_setup(a, T3_, R3, T4_, T0_)
            pf_ld(a, 47, 46, R3)
            waits(len(MOD("PFM", "nt;sc1").split(';')))
            a(f"s_branch {l2}")
            a(f"{l3}:")
        waits(0)
        a.flush(2)
        a(f"{l2}:")
    elif DEA == 2:
        waits(0)
        dma_early(l1)
        a(f"{l1}:")
    elif NL and ENV("NLE", 0):
        a(f"s_cmp_lt_u32 s{T1_}, {NL}", f"s_cselect_b32 s{T4_}, s{T4_}, {hex(WBYTES)}")
        pf_ld(a, 47, 46, R3)
        waits(len(MOD("PFM", "nt;sc1").split(';')))
    else:
        waits(0)
    if NL and not ENV("NLE", 0):
        if ENV("X0", 0): a(f"s_cmp_eq_u32 s{S_XC}, 0", f"s_cbranch_scc1 {l1}")
        a(f"s_cmp_ge_u32 s{T1_}, {NL}", f"s_cbranch_scc1 {l1}")
        pf_ld(a, 47, 46, R3)
        a(f"{l1}:")
    stamp(a, 2); lstamp(a, 4)
    a(f"v_lshl_add_u32 v6, v35, 4, s{T2_}", f"v_lshl_add_u32 v7, v35, 2, s{T2_}")
    a(f"v_mul_u32_u24 v35, 0x20202, v36", "v_lshl_add_u32 v35, v36, 25, v35", "v_add_u32 v35, 0x05040100, v35")
    ln_stats(a, X, 36, 38, 40, 42, 44)
    lstamp(a, 5)
    for j in range(9):
        if j == ENV("DSAMP", 3):
            a("v_and_b32 v59, 3, v1", "v_lshlrev_b32 v59, 2, v59")
            if SN: a(f"s_load_dwordx4 s[{R3}:{R3+3}], s[{P_DBG}:{P_DBG+1}], 0" + (" glc" if SN == 2 else ""))
            else: a(f"global_load_dword v58, v59, s[{P_DBG}:{P_DBG+1}] sc1")
        ln_apply_pair(a, X + 2 * j, 36, 38, 40, None)
        a(f"v_cvt_pk_f16_f32 v{RAW+j}, v40, v41")
        if j in (3, 7):
            P = RAW + j - 3; O = X + 2 * (j - 3)
            a(f"v_permlane32_swap_b32 v{P}, v{P+2}", f"v_permlane32_swap_b32 v{P+1}, v{P+3}")
            a(f"v_perm_b32 v{O}, v{P+2}, v{P}, s{SP0}", f"v_perm_b32 v{O+1}, v{P+2}, v{P}, s{SP1}")
            a(f"v_perm_b32 v{O+2}, v{P+3}, v{P+1}, s{SP0}", f"v_perm_b32 v{O+3}, v{P+3}, v{P+1}, s{SP1}")
            a(f"ds_write_b128 v6, v[{O}:{O+3}] offset:{1024*(j//4)}")
    a(f"v_mov_b32 v40, v{RAW+8}", f"v_permlane32_swap_b32 v{RAW+8}, v40")
    a(f"v_perm_b32 v40, v40, v{RAW+8}, v35")
    a(f"ds_write_b32 v7, v40 offset:2048")
    a(f"v_mov_b32 v6, s{LW}")
    a(f"ds_write_b8 v6, v{VONE} offset:{FL_LN1}")
    lstamp(a, 6)
    a("s_setprio 0")
    a(f"s_cmp_ge_u32 s{LW}, 4", "s_cbranch_scc1 KS_X4")
    a("s_setprio 3")
    srd(a, R2_, P_WS, XBYTES, WS_UT)
    a("v_and_b32 v6, 1, v0", "v_mul_u32_u24 v6, 9280, v6", "v_lshrrev_b32 v7, 1, v0", "v_lshl_add_u32 v6, v7, 2, v6", f"v_add_u32 v6, {C_LNB}, v6")
    if UL:
        a("v_lshrrev_b32 v7, 3, v0", "v_mul_u32_u24 v7, 0x4100, v7", "v_and_b32 v8, 7, v0", "v_lshl_add_u32 v7, v8, 4, v7")
        a(f"s_lshl_b32 s{T0_}, s{TB}, 7")
    else:
        a("v_lshrrev_b32 v7, 2, v0", "v_mul_u32_u24 v7, 0x2080, v7" if SWU else "v_lshlrev_b32 v7, 13, v7", "v_and_b32 v8, 3, v0", "v_lshl_add_u32 v7, v8, 4, v7")
        a(f"s_lshl_b32 s{T0_}, s{TB}, 6")
    if SWU: a(f"v_xor_b32 v7, s{T0_}, v7", f"s_mov_b32 s{T0_}, 0")
    for k in range(1, 5): a(f"s_add_u32 s{T0_+k}, s{T0_}, {0x80000*k}")
    if SN:
        a("s_waitcnt lgkmcnt(0)")
        a(f"v_mov_b32 v58, s{R3}", f"v_mov_b32 v57, s{R3+1}", f"v_mov_b32 v56, s{R3+2}", f"v_mov_b32 v55, s{R3+3}")
        a("v_mov_b32_dpp v58, v57 quad_perm:[0,1,2,3] row_mask:0xf bank_mask:0xf" if 0 else "v_cmp_eq_u32 vcc, 4, v59", "v_cndmask_b32 v58, v58, v57, vcc", "v_cmp_eq_u32 vcc, 12, v59", "v_cndmask_b32 v56, v56, v55, vcc", "v_cmp_lt_u32 vcc, 4, v59", "v_cndmask_b32 v58, v58, v56, vcc")
        dbg_wait(a, 63)
    else: dbg_wait(a, 0)
    lstamp(a, 7)
    a(f"ds_write_b32 v59, v58 offset:{FL_NONCE}")
    a(f"s_mov_b32 s{SP0}, {hex(TAGM)}")
    for d in range(1, 4): a(f"v_lshrrev_b32 v{58-d}, {3*d}, v58")
    lds_wait(a, FL_LN1, 20, "b8")
    stamp(a, 3); lstamp(a, 8)
    for k in range(5):
        a(f"ds_read2st64_b32 v[{20+4*k}:{21+4*k}], v6 offset0:{2*k} offset1:{9+2*k}")
        a(f"ds_read2st64_b32 v[{22+4*k}:{23+4*k}], v6 offset0:{18+2*k} offset1:{27+2*k}")
    for k in range(5):
        a(f"s_waitcnt lgkmcnt({8-2*k})")
        for d in range(4): a(f"v_bfi_b32 v{20+4*k+d}, s{SP0}, v{58-d}, v{20+4*k+d}")
        a(f"buffer_store_dwordx4 v[{20+4*k}:{23+4*k}], v7, s[{R2_}:{R2_+3}], s{T0_+k} offen {MOD('USMOD')}")
    if DE: a(f"v_mov_b32 v6, s{LW}", f"ds_write_b8 v6, v{VONE} offset:{FL_UTOK}")
    stamp(a, 4)

LNV = ENV("LNV", 1)
DB = ENV("DB", 1)
DDL = 5244
EP = ENV("EP", 1)
ZX = ENV("ZX", 1)
FLD = ENV("FLD", 1)
NDE = ENV("NDE", 9)
def gen_ln1v(a):
    LW, TB = T5_, S_CH
    X, RAW, PIT, LB = 8, 26, 2368, C_LNB - 512
    SE0, SE1, SON, SO0, SO1 = R4, R4 + 1, R4 + 2, R4 + 3, T4_
    a(f"s_sub_u32 s{T0_}, s{S_I}, 8", f"s_and_b32 s{TB}, s{T0_}, 7", f"s_lshr_b32 s{T0_}, s{T0_}, 3", f"s_lshl_b32 s{T0_}, s{T0_}, 4", f"s_add_u32 s{TB}, s{TB}, s{T0_}")
    a(f"s_and_b32 s{T0_}, s{S_XC}, 1", f"s_lshl_b32 s{T0_}, s{T0_}, 3", f"s_add_u32 s{TB}, s{TB}, s{T0_}", f"s_lshr_b32 s{T0_}, s{S_XC}, 1", f"s_lshl_b32 s{T0_}, s{T0_}, 5", f"s_add_u32 s{TB}, s{TB}, s{T0_}")
    a("v_lshrrev_b32 v36, 5, v1", "v_and_b32 v37, 31, v1")
    a("v_mul_u32_u24 v38, 9216, v36", "v_lshl_add_u32 v39, v37, 2, v38", "v_lshl_add_u32 v38, v37, 4, v38")
    a(f"s_mul_i32 s{T1_}, s{TB}, 18432", f"s_mul_i32 s{T2_}, s{LW}, 1152", f"s_add_u32 s{T1_}, s{T1_}, s{T2_}")
    a(f"s_mov_b32 s{R0+2}, {hex(XBYTES)}", f"s_mov_b32 s{R0+3}, 0x20000")
    a("s_waitcnt lgkmcnt(0)")
    stamp(a, 1); lstamp(a, 1)
    a(f"s_mov_b32 s{R0}, s{P_X}", f"s_mov_b32 s{R0+1}, s{P_X+1}")
    a(f"buffer_load_dwordx4 v[{RAW}:{RAW+3}], v38, s[{R0}:{R0+3}], s{T1_} offen")
    a(f"buffer_load_dwordx4 v[{RAW+4}:{RAW+7}], v38, s[{R0}:{R0+3}], s{T1_} offen offset:512")
    a(f"buffer_load_dword v{RAW+8}, v39, s[{R0}:{R0+3}], s{T1_} offen offset:1024")
    a("s_barrier")
    a(f"s_mul_i32 s{T2_}, s{LW}, {PIT}", f"s_add_u32 s{T2_}, s{T2_}, {LB}", "v_lshl_add_u32 v6, v37, 1, v36", f"v_lshl_add_u32 v6, v6, 2, s{T2_}")
    a("v_and_b32 v59, 3, v1", "v_bfe_u32 v7, v1, 2, 2", f"v_mul_u32_u24 v7, {PIT}, v7", "v_lshl_add_u32 v40, v3, 2, v59", "v_lshl_add_u32 v7, v40, 3, v7")
    a(f"s_lshl_b32 s{T2_}, s{LW}, 7", f"s_add_u32 s{T0_}, s{T2_}, {LB + 2048}", f"v_add_u32 v44, s{T0_}, v7", f"s_lshl_b32 s{T2_}, s{LW}, 8", f"s_add_u32 s{T2_}, s{T2_}, {LB}", f"v_add_u32 v7, s{T2_}, v7")
    a(f"v_lshlrev_b32_dpp v40, 4, v59 quad_perm:[0,2,1,3] {DPPM}" if 0 else "v_lshlrev_b32 v41, 4, v59", f"v_mov_b32_dpp v40, v41 quad_perm:[0,2,1,3] {DPPM} ; nodst", "v_lshlrev_b32 v59, 2, v59")
    a("v_lshrrev_b32 v41, 2, v1", "v_mul_u32_u24 v35, 0x8200, v41", f"s_lshl_b32 s{T0_}, s{TB}, 6", f"s_and_b32 s{T1_}, s{T0_}, 0x1e00", f"v_xad_u32 v35, v35, s{T1_}, v40")
    a(f"s_lshl_b32 s{T1_}, s{LW}, 4", f"v_add_u32 v41, s{T1_}, v41", "v_mul_u32_u24 v45, 0x2080, v41", f"v_xad_u32 v45, v45, s{T0_}, v40")
    a(f"s_and_b32 s{T1_}, s{LW}, 3", f"s_mul_i32 s{T1_}, s{T1_}, 0x2080", f"s_and_b32 s{T0_}, s{T0_}, 0x1c0", f"s_xor_b32 s{SO0}, s{T0_}, s{T1_}", f"s_lshr_b32 s{T1_}, s{LW}, 2", f"s_lshl_b32 s{T1_}, s{T1_}, 20")
    a(f"s_add_u32 s{SO0}, s{SO0}, s{T1_}", f"s_add_u32 s{SO1}, s{SO0}, 0x80000")
    a(f"s_mov_b32 s{SE0}, 0x3f80", f"s_mov_b32 s{SE1}, 0x3f800000", f"s_mov_b32 s{SON}, 0x3f803f80", f"s_mov_b32 s{SP0}, {hex(TAGM)}", f"s_mov_b32 s{SP1}, 0x200000")
    a("v_mov_b32 v40, 0", "v_mov_b32 v41, 0", f"v_mov_b32 v42, {f32(1.0/576)}")
    srd(a, R2_, P_WS, XBYTES, WS_UT)
    def waits(n):
        for (c, js) in ((2, range(0, 4)), (1, range(4, 8)), (0, range(8, 9))):
            if c == 2: lstamp(a, 2)
            a(f"s_waitcnt vmcnt({c+n})")
            if c == 2: lstamp(a, 3)
            for j in js: a(f"v_dot2c_f32_bf16 v40, s{SON}, v{RAW+j}", f"v_dot2c_f32_bf16 v41, v{RAW+j}, v{RAW+j}")
    l1 = newlabel("LN1A"); l2 = newlabel("LN1B")
    if NDE:
        a(f"s_cmp_lt_u32 s{LW}, 4", f"s_cbranch_scc1 {l1}", f"s_cmp_ge_u32 s{S_FI}, 18", f"s_cbranch_scc1 {l1}")
        srd(a, R1, P_DOWN, WBYTES)
        a("v_lshlrev_b32 v46, 4, v1", f"s_mul_i32 s{T0_}, s{S_BLK}, 36864", f"s_mul_i32 s{T1_}, s{LW}, 9216", f"s_add_u32 s{T0_}, s{T0_}, s{T1_}", f"s_sub_u32 s{T0_}, s{T0_}, {4*9216}", f"s_add_u32 s{T1_}, s{T1_}, {C_DOWN - 4*9216}")
        for k in range(NDE):
            if k % 4 == 0:
                a(f"s_add_u32 m0, s{T1_}, {1024*k}")
                if k: a(f"s_add_u32 s{T0_}, s{T0_}, 4096")
            a(f"buffer_load_dwordx4 v46, s[{R1}:{R1+3}], s{T0_} offen offset:{1024*(k&3)} {MOD('DM', 'nt')} lds")
        waits(NDE)
        a(f"s_branch {l2}")
        a(f"{l1}:")
        if NL3:
            l3 = newlabel("LN1C")
            a(f"s_sub_u32 s{T1_}, s{LW}, 4", f"s_cmp_ge_u32 s{T1_}, {NL3}", f"s_cbranch_scc1 {l3}")
            pf_lane(a, 46, 47)
            a(f"s_mul_i32 s{T1_}, s{T1_}, 6", f"s_add_u32 s{T1_}, s{T1_}, s{S_I}", f"s_add_u32 s{T3_}, s{T1_}, {PFB - 18}")
            pf_gu_setup(a, T3_, R1, T2_, T0_)
            for m in MOD("PFM", "nt;sc1").split(";"): a(f"buffer_load_dword v47, v46, s[{R1}:{R1+3}], s{T2_} offen {m}")
            waits(2)
            a(f"s_branch {l2}")
            a(f"{l3}:")
    waits(0)
    a(f"{l2}:")
    stamp(a, 2); lstamp(a, 4)
    def sample():
        if SN: a(f"s_load_dwordx4 s[{R3}:{R3+3}], s[{P_DBG}:{P_DBG+1}], 0")
        else: a(f"global_load_dword v58, v59, s[{P_DBG}:{P_DBG+1}] sc1")
    DS = ENV("DSAMP", 3)
    if DS == -1: sample()
    a("v_add_f32_dpp v36, v40, v40 row_ror:8 row_mask:0xf bank_mask:0x3 ; nodst", "v_add_f32_dpp v36, v41, v41 row_ror:8 row_mask:0xf bank_mask:0xc ; nodst")
    for m in ("row_half_mirror", "quad_perm:[1,0,3,2]", "quad_perm:[2,3,0,1]"): a(f"v_add_f32_dpp v36, v36, v36 {m} {DPPM}")
    a("v_mov_b32 v37, v36", "v_permlane16_swap_b32 v36, v37", "v_add_f32 v36, v36, v37")
    a(f"v_mul_f32_dpp v40, v36, v42 row_newbcast:0 {DPPM} ; nodst", f"v_mul_f32_dpp v41, v36, v42 row_newbcast:8 {DPPM} ; nodst")
    a("v_cvt_pk_bf16_f32 v36, 0, -v40", "v_fma_f32 v41, -v40, v40, v41")
    lstamp(a, 5)
    chain = ["v_max_f32 v41, 0, v41", "v_cvt_pk_bf16_f32 v41, 0, v41", f"v_add_f32 v41, {f32(1e-5)}, v41", "v_cvt_pk_bf16_f32 v41, 0, v41", "v_sqrt_f32 v41, v41", "v_cvt_pk_bf16_f32 v41, 0, v41", "v_rcp_f32 v38, v41"]
    def sub(j): a(f"v_dot2_f32_bf16 v{X+2*j}, v{RAW+j}, s{SE0}, v36", f"v_dot2_f32_bf16 v{X+2*j+1}, v{RAW+j}, s{SE1}, v36")
    for j in range(9):
        sub(j)
        if chain: a(chain.pop(0))
        if j >= 2: rnd2(a, X + 2 * (j - 2))
    for j in range(9):
        if j == DS: sample()
        if j < 2: rnd2(a, X + 2 * (j + 7))
        a(f"v_pk_mul_f32 v[{X+2*j}:{X+2*j+1}], v[{X+2*j}:{X+2*j+1}], v[38:39] op_sel_hi:[1,0]")
        a(f"v_cvt_pkrtz_f16_f32 v{RAW+j}, v{X+2*j}, v{X+2*j+1}", f"v_add_u32 v{RAW+j}, 0x40004, v{RAW+j}")
        if j & 1: a(f"ds_write2st64_b32 v6, v{RAW+j-1}, v{RAW+j} offset0:{j-1} offset1:{j}")
    a(f"ds_write_b32 v6, v{RAW+8} offset:2048")
    a(f"v_mov_b32 v6, s{LW}")
    a(f"ds_write_b8 v6, v{VONE} offset:{FL_LN1}")
    lstamp(a, 6)
    if SN:
        a("s_waitcnt lgkmcnt(0)")
        a(f"v_mov_b32 v58, s{R3}", f"v_mov_b32 v57, s{R3+1}", f"v_mov_b32 v56, s{R3+2}", f"v_mov_b32 v55, s{R3+3}")
        a("v_cmp_eq_u32 vcc, 4, v59", "v_cndmask_b32 v58, v58, v57, vcc", "v_cmp_eq_u32 vcc, 12, v59", "v_cndmask_b32 v56, v56, v55, vcc", "v_cmp_lt_u32 vcc, 4, v59", "v_cndmask_b32 v58, v58, v56, vcc")
        dbg_wait(a, 63)
    else: dbg_wait(a, 0)
    lstamp(a, 7)
    a(f"v_mov_b32_dpp v40, v58 quad_perm:[0,2,1,3] {DPPM} ; nodst")
    for d in range(1, 4): a(f"v_lshrrev_b32 v{40+d}, {3*d}, v40")
    lds_wait(a, FL_LN1, 20, "b8")
    stamp(a, 3); lstamp(a, 8)
    for h in range(2):
        for i in range(2): a(f"ds_read_b64_tr_b16 v[{20+4*h+2*i}:{21+4*h+2*i}], v7 offset:{128*h + 4*PIT*i}")
    for i in range(2): a(f"ds_read_b64_tr_b16 v[{28+2*i}:{29+2*i}], v44 offset:{4*PIT*i}")
    for h in range(2):
        a(f"s_waitcnt lgkmcnt({4-2*h})")
        for d in range(4): a(f"v_bfi_b32 v{20+4*h+d}, s{SP0}, v{40+d}, v{20+4*h+d}")
        a(f"buffer_store_dwordx4 v[{20+4*h}:{23+4*h}], v35, s[{R2_}:{R2_+3}], s{SO1 if h else SO0} offen {MOD('USMOD')}")
    a("s_waitcnt lgkmcnt(0)")
    a(f"s_cmp_ge_u32 s{LW}, 4", "s_cbranch_scc1 KS_X4")
    for d in range(4): a(f"v_bfi_b32 v{28+d}, s{SP0}, v{40+d}, v{28+d}")
    a(f"buffer_store_dwordx4 v[28:31], v45, s[{R2_}:{R2_+3}], s{SP1} offen {MOD('USMOD')}")
    a(f"ds_write_b8 v6, v{VONE} offset:{FL_UTOK}")
    a(f"ds_write_b32 v59, v58 offset:{FL_NONCE}")
    for d in range(1, 4): a(f"v_lshrrev_b32 v{58-d}, {3*d}, v58")
    stamp(a, 4)

def dbg_wait(a, n, vt=58, va=59):
    lp = newlabel("DBP"); go = newlabel("DBG")
    a(f"s_waitcnt vmcnt({n})")
    a(f"{lp}:")
    a(f"v_cmp_eq_u32 vcc, 0, v{vt}", f"s_cbranch_vccz {go}")
    a("s_sleep 1")
    a(f"global_load_dword v{vt}, v{va}, s[{P_DBG}:{P_DBG+1}] sc1")
    guard(a)
    a("s_waitcnt vmcnt(0)")
    a(f"s_branch {lp}")
    a(f"{go}:")

ROLE_TILES = {0: [0, 1, 2, 3, 4], 1: [0, 1, 2, 3, 4], 2: [5, 6, 7], 3: [5, 6, 7]}
ROLE_W = {2: 0, 3: 1, 1: 2}
ACC, DA, RING, WT = 16, 36, 76, 92
NRING = 4

def epi_plan():
    owner = {0: (0, 0), 1: (0, 1), 2: (1, 0), 3: (1, 1), 4: (1, 3), 5: (0, 2), 6: (0, 3), 7: (1, 2)}
    slots = {}
    cnt = [0, 0]
    for g in range(2):
        for role in range(4):
            for j in ROLE_TILES[role]:
                if owner[j] == (g, role): continue
                slots[(g, role, j)] = g * G_SIZE + R_RED + 1024 * cnt[g]; cnt[g] += 1
    assert max(cnt) <= 13, cnt
    ownerC = {0: 0, 1: 0, 2: 1, 3: 1, 4: 2, 5: 2, 6: 3, 7: 3}
    n = 0
    for role in range(4):
        for j in ROLE_TILES[role]:
            if ownerC[j] == role: continue
            slots[(2, role, j)] = 2 * G_SIZE + R_RED + 1024 * n; n += 1
    return owner, ownerC, slots

class LdsTrack:
    def __init__(self, a): self.a = a; self.n = 0; self.done = -1
    def issue(self, text): self.a(text); self.n += 1; return self.n - 1
    def wait(self, idx):
        k = self.n - 1 - idx
        if idx <= self.done: return
        self.done = idx
        if k <= 15: self.a(f"s_waitcnt lgkmcnt({k})")

CZ0, CZ1, CSH, CXR, CFL, SIS, CM, SM, SC, SSC, SDL = 6, 7, 8, 9, 10, 11, 12, 14, 15, 16, 18
IXR, LFR = (108, 109, 112, 113), (110, 111, 114, 115)
def stage_write(a, off):
    a("v_lshl_or_b32 v24, v25, 16, v24", "v_lshl_or_b32 v25, v27, 16, v26", f"ds_write_b64 v28, v[24:25] offset:{off}")
def pre_ixlf(a):
    end = newlabel("PX"); j1 = newlabel("PX"); j2 = newlabel("PX"); jn = newlabel("PX")
    a(f"s_cmp_eq_u32 s{S_ROLE}, 3", f"s_cbranch_scc1 {end}")
    a("v_lshlrev_b32 v26, 3, v2", "v_mov_b32 v21, 0x80")
    a(f"s_cmp_eq_u32 s{S_ROLE}, 1", f"s_cbranch_scc1 {j1}", f"s_cmp_eq_u32 s{S_ROLE}, 2", f"s_cbranch_scc1 {j2}")
    a("v_lshl_add_u32 v26, v3, 1, v26", "v_mov_b32 v22, 1")
    a(f"s_branch {jn}")
    a(f"{j1}:")
    a("v_cmp_gt_u32 vcc, 2, v3", "v_lshl_add_u32 v20, v3, 2, v26", "v_add_u32 v20, 256, v20", "v_lshl_add_u32 v26, v3, 8, v26", "v_cndmask_b32 v26, v26, v20, vcc")
    a("v_cndmask_b32 v22, v21, 2, vcc", "v_cndmask_b32 v21, 4, v21, vcc")
    a(f"s_branch {jn}")
    a(f"{j2}:")
    a("v_lshl_add_u32 v26, v3, 9, v26", "v_add_u32 v26, 0x400, v26", "v_mov_b32 v22, 0x100")
    a(f"{jn}:")
    a(f"v_mad_u32_u24 v26, v22, s{S_G}, v26", "v_add_u32 v27, v26, v21", f"s_movk_i32 s{T4_}, {T_TAB}", f"s_movk_i32 s{T5_}, {-(0x4280 + 0x800)}", f"s_lshl_b32 s{T3_}, s{S_G}, 9")
    for r in range(2): a(f"v_cvt_f32_u32 v{20+r}, v{26+r}", f"v_max_u32 v{22+r}, 0x800, v{26+r}")
    for r in range(2):
        a(f"v_cmp_gt_u32 vcc, 0x80, v{26+r}", f"v_lshrrev_b32 v{24+r}, 16, v{20+r}", f"v_add3_u32 v{24+r}, v{24+r}, v{22+r}, s{T5_}", f"v_cndmask_b32 v{24+r}, v{24+r}, v{26+r}, vcc")
    for r in range(2):
        a(f"v_min_u32 v{24+r}, {IDX_DUMMY}, v{24+r}", f"v_lshl_add_u32 v{24+r}, v{24+r}, 1, s{T4_}")
    a(f"v_add_u32 v29, s{T3_}, v28")
    a("v_lshl_or_b32 v24, v25, 16, v24", "v_lshl_or_b32 v25, v27, 16, v26", "ds_write_b64 v29, v[24:25]")
    a(f"{end}:")

def gen_group(a):
    RAW, VLDT, VDSK, VNT, VNA, VPR, VEM, VTE, VTL = 40, 46, 107, 104, 105, 106, 72, 126, 127
    I1, D2, I2, D1, D3 = 116, 119, 120, 124, 125
    a(f"s_lshl_b32 s{T0_}, s{S_CH}, 8", f"v_lshl_add_u32 v20, v1, 2, s{T0_}")
    a(f"s_lshl_b32 s{T0_}, s{S_CH}, 1", f"v_mov_b32 v21, s{T0_}")
    a(f"s_mul_i32 s{S_GB}, s{S_G}, {G_SIZE}", f"s_add_u32 s{S_GB}, s{S_GB}, {G_BASE}")
    a("s_waitcnt lgkmcnt(0)")
    stamp(a, 1)
    PL = ENV("PLATE", 0)
    if PL == 1: a(f"s_sub_u32 s{T0_}, s{S_I}, 8", f"s_cmp_ge_u32 s{T0_}, 16", "s_cbranch_scc1 KS_PL1", "s_barrier", "KS_PL1:")
    if PL == 2: a("s_barrier")
    a(f"global_load_ushort v{VLDT}, v21, s[{P_LDT}:{P_LDT+1}]")
    for k in range(6):
        a(f"global_load_dword v{RAW+k}, v20, s[{P_ARE+2*k}:{P_ARE+2*k+1}]")
    a(f"global_load_ushort v{VDSK}, v21, s[{P_DSK}:{P_DSK+1}]")
    if PL == 1: a("s_cbranch_scc0 KS_PL2")
    if PL != 2: a("s_barrier")
    if PL == 1: a("KS_PL2:")
    if ENV("UPW", 0):
        a(f"s_sub_u32 s{T0_}, s{S_I}, 8", f"s_cmp_ge_u32 s{T0_}, 16", "s_cbranch_scc1 KS_UPW", f"s_cmp_lg_u32 s{S_G}, 1", "s_cbranch_scc1 KS_UPW")
        TB = T5_
        a(f"s_and_b32 s{TB}, s{T0_}, 7", f"s_lshr_b32 s{T0_}, s{T0_}, 3", f"s_lshl_b32 s{T0_}, s{T0_}, 4", f"s_add_u32 s{TB}, s{TB}, s{T0_}")
        a(f"s_and_b32 s{T0_}, s{S_XC}, 1", f"s_lshl_b32 s{T0_}, s{T0_}, 3", f"s_add_u32 s{TB}, s{TB}, s{T0_}", f"s_lshr_b32 s{T0_}, s{S_XC}, 1", f"s_lshl_b32 s{T0_}, s{T0_}, 5", f"s_add_u32 s{TB}, s{TB}, s{T0_}")
        srd(a, R2_, P_WS, XBYTES, WS_UT)
        a(f"s_lshl_b32 s{T0_}, s{S_ROLE}, 4", "v_lshrrev_b32 v7, 2, v1", f"v_add_u32 v7, s{T0_}, v7", "v_mul_u32_u24 v7, 0x2080, v7", "v_and_b32 v8, 3, v1", "v_lshl_add_u32 v7, v8, 4, v7")
        a(f"s_lshl_b32 s{T0_}, s{TB}, 6", f"v_xor_b32 v7, s{T0_}, v7")
        for d in range(4): a(f"v_mov_b32 v{8+d}, 0")
        for k in range(5):
            a(f"s_mov_b32 s{T0_}, {0x80000*k}")
            a(f"buffer_store_dwordx4 v[8:11], v7, s[{R2_}:{R2_+3}], s{T0_} offen {MOD('UPWMOD')}")
        a.flush(2)
        a("KS_UPW:")
    a(f"s_movk_i32 s{T4_}, {T_TAB}")
    def dr_addr(dst, x, special=False):
        a(f"v_sub_u32 v30, 544, v{x}", "v_cvt_f32_i32 v31, v30", "v_cmp_gt_u32 vcc, 0x100, v30", "v_cvt_pk_bf16_f32 v31, v31, v31", "v_and_b32 v31, 0xffff, v31", "v_subrev_u32 v31, 0x4280, v31")
        a("v_cndmask_b32 v31, v31, v30, vcc", "v_cmp_lt_u32 vcc, 0x20d, v30")
        if special: a(f"v_or_b32 v30, 1, v{x}")
        a("v_cndmask_b32 v31, v31, v32, vcc")
        if special: a("v_cmp_eq_u32 vcc, 0x25d, v30", "v_cndmask_b32 v31, v31, v33, vcc")
        a(f"v_lshl_add_u32 v{dst}, v31, 1, s{T4_}")
    def g_addr(dst, y0, base, M):
        a(f"v_sub_u32 v30, {y0}, v23", f"v_cmp_lt_u32 vcc, {M}, v30", f"v_lshlrev_b32 v31, 2, v30", f"v_add_u32 v31, {T_TAB + 2*base}, v31", f"v_cndmask_b32 v{dst}, v31, v33, vcc")
    pb = newlabel("PREB"); pw = newlabel("PREW"); pe = newlabel("PREE")
    a(f"s_cmp_eq_u32 s{S_G}, 2", f"s_cbranch_scc1 {pe}")
    a(f"v_mov_b32 v32, {IDX_ZERO}")
    a(f"s_cmp_eq_u32 s{S_G}, 1", f"s_cbranch_scc1 {pb}")
    jl = [newlabel("PRE") for _ in range(4)]
    a(f"v_mov_b32 v33, {T_TAB + 2*IDX_ZERO}")
    for r in range(1, 4): a(f"s_cmp_eq_u32 s{S_ROLE}, {r}", f"s_cbranch_scc1 {jl[r]}")
    a("v_lshlrev_b32 v23, 1, v1")
    for e, (y0, base, M) in enumerate(((93, 389, 61), (92, 389, 61), (94, 388, 62), (93, 388, 62))): g_addr(24 + e, y0, base, M)
    a(f"s_branch {pw}")
    for r, base in ((1, 513), (2, 514)):
        a(f"{jl[r]}:")
        a("v_min_u32 v23, 47, v1", "v_lshlrev_b32 v23, 1, v23")
        for e, y0 in ((0, 64), (1, 63), (3, 62)): g_addr(24 + e, y0, base, 63)
        a("v_mov_b32 v26, v25")
        a(f"s_branch {pw}")
    a(f"{jl[3]}:")
    a("v_cmp_gt_u32 vcc, 9, v1", "v_add_u32 v23, 0x100, v1", "v_mov_b32 v33, 0x200", "v_cndmask_b32 v23, v23, v1, vcc", "v_lshlrev_b32 v23, 1, v23")
    for e in (0, 1, 3):
        if e: a("v_add_u32 v23, 1, v23")
        dr_addr(24 + e, 23, special=True)
    a("v_mov_b32 v26, v25")
    a(f"s_branch {pw}")
    a(f"{pb}:")
    a(f"s_lshl_b32 s{T1_}, s{S_ROLE}, 7", f"s_add_u32 s{T1_}, s{T1_}, 18", f"v_lshl_add_u32 v23, v1, 1, s{T1_}")
    for e in range(3):
        if e: a("v_add_u32 v23, 1, v23")
        dr_addr(24 + e, 23)
    a(f"s_sub_u32 s{T1_}, s{S_ROLE}, 1", f"s_cmp_lt_u32 s{T1_}, 2", f"s_cselect_b32 s{T2_}, 47, 63", f"s_mul_i32 s{T1_}, s{T1_}, {T_G9E - T_G7E}", f"s_add_u32 s{T1_}, s{T1_}, {T_G7E}")
    a(f"s_cmp_eq_u32 s{S_ROLE}, 0", f"s_cselect_b32 s{T1_}, {T_G3}, s{T1_}", f"s_cmp_eq_u32 s{S_ROLE}, 3", f"s_cselect_b32 s{T1_}, {T_DRE}, s{T1_}", f"s_cselect_b32 s{T3_}, 0x100, 0")
    a("v_cmp_gt_u32 vcc, 9, v1", f"v_min_u32 v23, s{T2_}, v1", f"v_add_u32 v30, s{T3_}, v23", "v_cndmask_b32 v23, v30, v23, vcc")
    if DB: a(f"s_sub_u32 s{T1_}, s{T1_}, {DDL}")
    a(f"v_lshl_add_u32 v27, v23, 2, s{T1_}")
    stage_write(a, 1024)
    a(f"v_mov_b32 v24, s{S_ROLE}", f"ds_write_b8 v24, v{VONE} offset:{FL_PRE + 4}")
    a(f"s_branch {pe}")
    a(f"{pw}:")
    stage_write(a, 1536)
    a(f"v_mov_b32 v24, s{S_ROLE}", f"ds_write_b8 v24, v{VONE} offset:{FL_PRE}")
    a(f"{pe}:")
    a(f"s_mul_i32 s{T1_}, s{S_ROLE}, {16*KG_ROW}", f"s_min_u32 s{T2_}, s{T1_}, {KG_T[3]}", f"s_add_u32 s{T2_}, s{T2_}, s{S_GB}")
    a(f"s_lshl_b32 s{T0_}, s{S_G}, 4", f"v_mov_b32 v14, s{T0_}", f"v_add_u32 v15, s{S_ROLE}, v14")
    a(f"v_lshl_add_u32 v{VEM}, v1, 3, s{T2_}")
    for k in range(1, 4): a(f"v_add_u32 v{VEM+k}, {4*KG_ROW*k}, v{VEM}")
    a(f"v_mul_u32_u24 v{VTE}, {KG_ROW}, v2", f"v_lshl_add_u32 v{VTE}, v3, 4, v{VTE}", f"v_add_u32 v{VTE}, s{S_GB}, v{VTE}", f"v_add_u32 v{VTL}, s{T1_}, v{VTE}")
    VDA, VDA2, VB_, VT8, VT16, VG8, VG16, VLN = 6, 7, 8, 9, 10, 11, 13, 12
    a("v_lshlrev_b32 v20, 3, v3", "v_sub_u32 v20, v20, v2", "v_add_u32 v21, 16, v20", "v_lshrrev_b32 v21, 1, v21")
    if DB: a("v_and_b32 v23, 1, v21", f"s_movk_i32 s{T1_}, {-DDL}")
    a("v_and_b32 v22, 1, v2", f"s_add_u32 s{T0_}, s{S_GB}, {T_DRE}", f"v_lshl_add_u32 v21, v21, 2, s{T0_}", f"s_movk_i32 s{T0_}, {T_DRO - T_DRE}", f"s_movk_i32 s{T2_}, {T_G7O - T_G7E}")
    if DB: a(f"v_mad_i32_i24 v21, v23, s{T1_}, v21")
    a(f"v_mad_u32_u24 v{VDA}, v22, s{T0_}, v21", f"v_add_u32 v{VDA2}, 640, v{VDA}")
    a(f"v_mad_u32_u24 v23, v22, s{T2_}, v21", f"v_add_u32 v{VG16}, {T_G7E - T_DRE}, v23")
    a("v_lshlrev_b32 v23, 2, v3", "v_sub_u32 v23, v23, v2", f"s_add_u32 s{T0_}, s{S_GB}, {T_G3 + 60 - (DDL if DB else 0)}", f"v_lshl_add_u32 v{VG8}, v23, 2, s{T0_}")
    if DB: a(f"s_movk_i32 s{T1_}, {DDL}", f"v_mad_u32_u24 v{VG8}, v22, s{T1_}, v{VG8}")
    a(f"s_mul_i32 s{T2_}, s{S_G}, {U_SIZE}", f"s_add_u32 s{T2_}, s{T2_}, {C_U}")
    a(f"v_lshl_add_u32 v23, v2, 5, s{T2_}", f"v_lshl_add_u32 v{VB_}, v3, 4, v23")
    a("v_bfe_u32 v20, v1, 2, 2", "v_and_b32 v21, 3, v1", "v_lshl_add_u32 v20, v3, 3, v20")
    a(f"v_lshlrev_b32 v{VNA}, 2, v21")
    a(f"v_lshl_add_u32 v21, v21, 3, s{S_GB}", f"v_lshl_add_u32 v{VT8}, v20, 4, v21", f"v_lshl_add_u32 v{VT16}, v20, 5, v21")
    a(f"v_lshlrev_b32 v{VLN}, 4, v1")
    srd(a, R0, P_WS, 0x240000, WS_ZB1)
    if SWZ: a(f"s_mov_b32 s{CFL}, 0x8080")
    a(f"s_lshl_b32 s{T0_}, s{S_ROLE}, 19", f"s_lshl_b32 s{T1_}, s{S_B2}, 6", f"s_add_u32 s{T0_}, s{T0_}, s{T1_}")
    a(f"s_lshl_b32 s{T1_}, s{S_ROLE}, 16", f"s_lshl_b32 s{T3_}, s{S_CH}, 6", f"s_add_u32 s{T1_}, s{T1_}, s{T3_}", f"s_add_u32 s{T1_}, s{T1_}, {0x200000 - 512*64}")
    if SWZ:
        a(f"s_cmp_eq_u32 s{S_G}, 2", f"s_cselect_b32 s{CZ0}, s{T1_}, s{T0_}", f"s_cselect_b32 s{CSH}, 0x1080, s{CFL}", f"s_cselect_b32 s{T0_}, 1, 3")
        a(f"s_and_b32 s{T0_}, s{T0_}, s{S_ROLE}", f"s_lshl_b32 s{T0_}, s{T0_}, 11", f"s_xor_b32 s{CZ0}, s{CZ0}, s{T0_}", f"s_and_b32 s{CFL}, s{CZ0}, 0x7c0", f"s_xor_b32 s{CZ0}, s{CZ0}, s{CFL}", f"s_xor_b32 s{CZ1}, s{CZ0}, 0x6000")
    else:
        a(f"s_cmp_eq_u32 s{S_G}, 2", f"s_cselect_b32 s{CZ0}, s{T1_}, s{T0_}", f"s_cselect_b32 s{CSH}, 12, 15", f"s_add_u32 s{CZ1}, s{CZ0}, 16384")
    a(f"s_and_b32 s{CXR}, s{S_G}, 1", f"s_lshl_b32 s{CXR}, s{CXR}, 4", f"s_mov_b32 s{CM}, 0x55555555", f"s_mov_b32 s{CM+1}, 0x55555555")
    a(f"s_lshl_b32 s{T0_}, s{S_ROLE}, 8", f"s_add_u32 s{T0_}, s{T0_}, s{S_GB}", f"s_add_u32 s{T0_}, s{T0_}, 36", f"v_lshl_add_u32 v{D1}, v1, 2, s{T0_}")
    a(f"s_movk_i32 s{T0_}, {T_G7O - T_G7E}", f"s_cmp_eq_u32 s{S_ROLE}, 0", f"s_cselect_b32 s{T0_}, {T_G5 - T_G3}, s{T0_}", f"s_cmp_eq_u32 s{S_ROLE}, 3", f"s_cselect_b32 s{T0_}, {T_DRO - T_DRE}, s{T0_}")
    a(f"v_mov_b32 v20, s{S_GB}", f"ds_write_b16 v20, v{VZ} offset:{T_TAB + 2*IDX_ZERO}")
    a(f"s_mov_b32 s{SDL}, s{T0_}", f"v_mov_b32 v{D3}, v28")
    def stage_read():
        lds_wait(a, FL_PRE, 18, "b8")
        a(f"ds_read2st64_b64 v[28:31], v{D3} offset0:0 offset1:1", f"ds_read2st64_b64 v[32:35], v{D3} offset0:2 offset1:3")
    def stage_unpack():
        for k in range(16):
            src = 28 + k // 2; w = f"WORD_{k & 1}"
            if 108 + k in LFR: a(f"v_cvt_f32_u32_sdwa v{108+k}, v{src} dst_sel:DWORD dst_unused:UNUSED_PAD src0_sel:{w}")
            else: a(f"v_add_u32_sdwa v{108+k}, s{S_GB}, v{src} dst_sel:DWORD dst_unused:UNUSED_PAD src0_sel:DWORD src1_sel:{w}")
        a(f"v_add_u32 v{D3}, s{SDL}, v{D2}")
    stage_read()
    a("s_waitcnt lgkmcnt(0)")
    stage_unpack()
    ex = newlabel("EXP")
    if KOFF: a(f"s_lshl_b32 s{T0_}, s{S_G}, 5", f"s_add_u32 s{T0_}, s{T0_}, s{S_I}", f"s_cmp_ge_u32 s{T0_}, {64 + 24}", "s_cbranch_scc1 KC_RECV")
    a(f"s_mov_b32 s{T0_}, {f32(LOG2E_HI)}", f"s_mov_b32 s{T1_}, {f32(LOG2E_LO)}", f"s_mov_b32 s{T2_}, {f32(INV2PI_HI)}", f"s_mov_b32 s{T3_}, {f32(INV2PI_LO)}")
    a(f"s_waitcnt vmcnt(7)")
    a(f"v_lshlrev_b32 v16, 16, v{VLDT}")
    a(f"v_mul_f32 v17, s{T0_}, v16")
    a(f"v_fma_f32 v19, v16, s{T0_}, -v17", f"v_fmac_f32 v19, s{T1_}, v16")
    a("v_exp_f32 v17, v17")
    a(f"v_mul_f32 v19, {f32(math.log(2.0))}, v19")
    a("v_fmac_f32 v17, v17, v19")
    a("v_cvt_pk_bf16_f32 v16, 0, v17")
    a(f"s_waitcnt vmcnt(5)")
    stamp(a, 2)
    a(f"ds_write_b32 v{VZ}, v{VONE} offset:{FL_PARAM}")
    THH, THL = 68, 70
    for k in range(2): unpack(a, 20 + 2 * k, RAW + k)
    for k in range(2): a(f"v_pk_mul_f32 v[{20+2*k}:{21+2*k}], v[{20+2*k}:{21+2*k}], v[16:17] op_sel_hi:[1,0]")
    a("v_max_f32 v36, v20, v21")
    a(f"v_pk_mul_f32 v[{THH}:{THH+1}], v[22:23], s[{T2_}:{T3_}] op_sel_hi:[1,0]")
    a(f"v_pk_fma_f32 v[{THL}:{THL+1}], v[22:23], s[{T2_}:{T3_}], v[{THH}:{THH+1}] op_sel_hi:[1,0,1] neg_lo:[0,0,1] neg_hi:[0,0,1]")
    a(f"v_pk_fma_f32 v[{THL}:{THL+1}], v[22:23], s[{T2_}:{T3_}], v[{THL}:{THL+1}] op_sel:[0,1,0]")
    T = 90
    def cmul_(dr, di, ar, ai, br, bi, t=T):
        assert di not in (ar, br, bi)
        return [f"v_pk_mul_f32 v[{t}:{t+1}], v[{ai}:{ai+1}], v[{bi}:{bi+1}]",
                f"v_pk_mul_f32 v[{t+2}:{t+3}], v[{ai}:{ai+1}], v[{br}:{br+1}]",
                f"v_pk_fma_f32 v[{di}:{di+1}], v[{ar}:{ar+1}], v[{bi}:{bi+1}], v[{t+2}:{t+3}]",
                f"v_pk_fma_f32 v[{dr}:{dr+1}], v[{ar}:{ar+1}], v[{br}:{br+1}], v[{t}:{t+1}] neg_lo:[0,0,1] neg_hi:[0,0,1]"]
    def cm_(d, x, y, t=T): return cmul_(d, d + 2, x, x + 2, y, y + 2, t)
    def csq_(d, s_, t=T):
        return [f"v_pk_mul_f32 v[{t}:{t+1}], v[{s_+2}:{s_+3}], v[{s_+2}:{s_+3}]",
                f"v_pk_mul_f32 v[{t+2}:{t+3}], v[{s_}:{s_+1}], v[{s_+2}:{s_+3}]",
                f"v_pk_fma_f32 v[{d}:{d+1}], v[{s_}:{s_+1}], v[{s_}:{s_+1}], v[{t}:{t+1}] neg_lo:[0,0,1] neg_hi:[0,0,1]",
                f"v_pk_add_f32 v[{d+2}:{d+3}], v[{t+2}:{t+3}], v[{t+2}:{t+3}]"]
    def cmul(*x): a(*cmul_(*x))
    def csq(*x): a(*csq_(*x))
    CBR, CBI = 32, 34
    sk = newlabel("SK")
    a(f"s_cmp_eq_u32 s{S_ROLE}, 3", f"s_cbranch_scc1 {sk}")
    a("s_waitcnt vmcnt(1)")
    for k in range(2, 6): unpack(a, 20 + 2 * k, RAW + k)
    for k in range(2, 4): a(f"v_pk_mul_f32 v[{20+2*k}:{21+2*k}], v[{20+2*k}:{21+2*k}], v[16:17] op_sel_hi:[1,0]")
    cmul(CBR, CBI, 28, 30, 24, 26)
    a(f"v_max3_f32 v37, abs(v{CBI}), abs(v{CBI+1}), abs(v{CBR})", f"v_max_f32 v37, v37, abs(v{CBR+1})")
    a(f"{sk}:")
    a("s_waitcnt vmcnt(0)")
    a.flush(1)
    a("v_permlane32_swap_b32 v36, v37", "v_max_f32 v36, v36, v37")
    red32(a, "v_max_f32", 36, 38)
    a(f"v_readlane_b32 s{SM}, v36, 0", f"v_readlane_b32 s{SC}, v36, 32")
    a(f"s_add_u32 s{SC}, s{SC}, 0x7fffff", f"s_lshr_b32 s{SC}, s{SC}, 23", f"s_max_u32 s{SC}, s{SC}, 24", f"s_sub_u32 s{SSC}, 269, s{SC}", f"s_lshl_b32 s{SSC}, s{SSC}, 23")
    a(f"v_subrev_f32 v20, s{SM}, v20", f"v_subrev_f32 v21, s{SM}, v21")
    a(f"v_mul_f32 v20, {f32(LOG2E)}, v20", f"v_mul_f32 v21, {f32(LOG2E)}, v21")
    def scale_cb():
        a(f"v_pk_mul_f32 v[{CBR}:{CBR+1}], v[{CBR}:{CBR+1}], s[{SSC}:{SSC+1}] op_sel_hi:[1,0]", f"v_pk_mul_f32 v[{CBI}:{CBI+1}], v[{CBI}:{CBI+1}], s[{SSC}:{SSC+1}] op_sel_hi:[1,0]")
    def anchor(dr, di, l, conj=False):
        lit = {1: "1.0", 2: "2.0"}.get(l, f32(float(l)))
        for e in range(2):
            t = T + 4 * e
            if l != 1: a(f"v_mul_f32 v{t+1}, {lit}, v{THH+e}", f"v_mul_f32 v{t}, {lit}, v{20+e}")
        for e in range(2):
            t = T + 4 * e
            a(f"v_fract_f32 v{t+1}, v{t+1 if l != 1 else THH+e}")
        for e in range(2):
            t = T + 4 * e
            a(f"v_fmac_f32 v{t+1}, {lit}, v{THL+e}")
        for e in range(2):
            t = T + 4 * e
            a(f"v_exp_f32 v{t}, v{t if l != 1 else 20+e}", f"v_cos_f32 v{t+2}, v{t+1}", f"v_sin_f32 v{t+1}, v{t+1}")
        for e in range(2):
            t = T + 4 * e
            a(f"v_mul_f32 v{dr+e}, v{t}, v{t+2}")
            a(f"v_mul_f32 v{di+e}, v{t}, {'-' if conj else ''}v{t+1}")
    em = [0, None]
    def it(cms, row=None, x=None, y=None):
        if em[1]: a(em[1]); em[1] = None
        for k in range(4):
            for c in cms:
                if k < len(c): a(c[k])
        if row is None: return
        t = (98, 76)[em[0] & 1]; em[0] += 1
        for v, tt in ((x, t), (y, t + 2)):
            if v is not None: a(f"v_cvt_pk_f16_f32 v{tt}, v{v}, v{v+2}", f"v_cvt_pk_f16_f32 v{tt+1}, v{v+1}, v{v+3}")
        o = (row & 3) * KG_ROW // 8
        if y is None: em[1] = f"ds_write_b64 v{VEM + row//4}, v[{t}:{t+1}] offset:{8*o}"
        else: em[1] = f"ds_write2_b64 v{VEM + row//4}, v[{t}:{t+1}], v[{t+2}:{t+3}] offset0:{o} offset1:{o + KG_ROW//8}"
    G1, G2, G3 = 40, 44, 48
    VA, VB, VC, VD = 52, 56, 60, 64
    oth = lambda c, p, q: p if c != p else q
    jl = [newlabel("JOB") for _ in range(4)]; jn = newlabel("JOBJ")
    for r in (3, 1, 2): a(f"s_cmp_eq_u32 s{S_ROLE}, {r}", f"s_cbranch_scc1 {jl[r]}")
    anchor(G2, G2 + 2, 128); scale_cb(); anchor(G1, G1 + 2, 1)
    cur = CBR
    for c in range(8):
        nx = oth(cur, VA, VB)
        it([cm_(VC, cur, G2)] + ([cm_(nx, cur, G1, T + 4)] if c < 7 else []), 2 * c, cur, VC); cur = nx
    it([])
    a(f"s_branch {jn}")
    a(f"{jl[1]}:")
    anchor(G2, G2 + 2, 128); scale_cb(); csq(G3, G2); anchor(G1, G1 + 2, 2)
    it([cm_(VA, CBR, G3)]); cur = VA
    it([cm_(VD, VA, G3)])
    for c in range(4):
        nx = oth(cur, VA, VB)
        it([cm_(VC, cur, G2), cm_(nx, cur, G1, T + 4) if c < 3 else csq_(G3, G1, T + 4)], 2 * c, cur, VC); cur = nx
    cur = VD
    for aa in range(4):
        nx = oth(cur, VA, VB)
        it([cm_(VC, cur, G3)] + ([cm_(nx, cur, G2, T + 4)] if aa < 3 else []), 8 + 2 * aa, cur, VC); cur = nx
    it([])
    a(f"s_branch {jn}")
    a(f"{jl[3]}:")
    anchor(G1, G1 + 2, 8, conj=True)
    a(f"v_mov_b32 v{VA}, {f32(32768.0)}", f"v_mov_b32 v{VA+1}, {f32(32768.0)}", f"v_mov_b32 v{VA+2}, 0", f"v_mov_b32 v{VA+3}, 0")
    sc_ = lambda d, x: [f"v_pk_mul_f32 v[{d}:{d+1}], v[{x}:{x+1}], v[{VA}:{VA+1}]", f"v_pk_mul_f32 v[{d+2}:{d+3}], v[{x+2}:{x+3}], v[{VA}:{VA+1}]"]
    it([csq_(G2, G1), sc_(VC, G1)])
    ce, co = VA, VC
    for b in range(8):
        ne, no = oth(ce, VA, VB), oth(co, VC, VD)
        it([] if b == 7 else [sc_(ne, G2) if b == 0 else cm_(ne, ce, G2), cm_(no, co, G2, T + 4)], 2 * b, ce, co); ce, co = ne, no
    it([])
    a(f"ds_write_b8 v15, v{VONE} offset:{FL_G}")
    stamp(a, 3)
    if KOFF: a(f"s_cmp_eq_u32 s{S_G}, 2", "s_cbranch_scc1 KS_G0")
    a(f"s_branch {ex}")
    if KOFF:
        a("KC_SEND:")
        lds_wait(a, FL_NONCE, VNT, "nz", addr=VNA)
        a(f"s_lshl_b32 s{T0_}, s{S_CH}, 12", f"s_lshl_b32 s{T1_}, s{S_ROLE}, 10", f"s_add_u32 s{T0_}, s{T0_}, s{T1_}", f"s_add_u32 s{T0_}, s{T0_}, {hex(WS_KT - 512*4096)}", f"v_add_u32 v24, s{T0_}, v{VLN}")
        a(f"s_mov_b32 s{T1_}, 0xffff", f"v_lshlrev_b32 v25, 16, v{VNT}")
        for r in range(4): a(f"v_cvt_f16_f32 v{20+r}, v{20+r}")
        a(f"s_cmp_lg_u32 s{S_ROLE}, 2", "s_cbranch_scc1 KC_S2")
        a("s_mov_b32 exec_lo, 0", "s_mov_b32 exec_hi, 0xffff0000")
        a(f"v_mov_b32 v20, v{VPR}", f"v_lshrrev_b32 v21, 16, v{VPR}")
        a("s_mov_b64 exec, -1")
        a("KC_S2:")
        for r in range(4): a(f"v_bfi_b32 v{20+r}, s{T1_}, v{20+r}, v{25 if r & 1 else VNT}")
        a(f"global_store_dwordx4 v24, v[20:23], s[{P_WS}:{P_WS+1}] sc1")
        stamp(a, 4)
        a("s_branch KS_G0")
        a("KC_RECV:")
        a(f"s_cmp_eq_u32 s{S_ROLE}, 3", f"s_cbranch_scc1 {ex}")
        a(f"s_lshl_b32 s{T0_}, s{S_CH}, 12", f"s_lshl_b32 s{T1_}, s{S_ROLE}, 10", f"s_add_u32 s{T0_}, s{T0_}, s{T1_}", f"s_add_u32 s{T0_}, s{T0_}, {hex(WS_KT - 512*4096)}", f"v_add_u32 v24, s{T0_}, v{VLN}")
        lds_wait(a, FL_NONCE, VNT, "nz", addr=VNA, sleep=2)
        a(f"v_lshlrev_b32 v25, 16, v{VNT}")
        stamp(a, 2)
        lds_wait(a, FL_G + {0: 0, 1: 4, 2: 16, 3: 8, 4: 20}[ENV("KTRIG", 3)], 17, "b4", sleep=2)
        lp = newlabel("KP"); l1 = newlabel("KPE")
        if ENV("KTD", 8): a(f"s_sleep {ENV('KTD', 8)}")
        a(f"s_branch {l1}")
        a(f"{lp}:")
        a("s_sleep 2")
        a(f"{l1}:")
        a(f"global_load_dwordx4 v[20:23], v24, s[{P_WS}:{P_WS+1}] {MOD('KMOD')}")
        guard(a)
        a("s_waitcnt vmcnt(0)")
        for r in range(4): a(f"v_xor_b32 v{20+r}, v{25 if r & 1 else VNT}, v{20+r}")
        a("v_or3_b32 v26, v20, v21, v22", "v_or_b32 v26, v26, v23", "v_cmp_lt_u32 vcc, 0xffff, v26", f"s_cbranch_vccnz {lp}")
        stamp(a, 3)
        for r in (0, 2): a(f"v_xor_b32 v{20+r}, v{VNT}, v{20+r}")
        for r in range(4): a(f"ds_write_b16 v{IXR[r]}, v{20+r}")
        a(f"s_cmp_lg_u32 s{S_ROLE}, 2", f"s_cbranch_scc1 {ex}")
        a("v_and_b32 v20, 0xffff, v20", "v_lshl_or_b32 v20, v21, 16, v20", f"v_lshlrev_b32 v21, 16, v{VDSK}")
        a("s_mov_b32 exec_lo, 0", "s_mov_b32 exec_hi, 0x10000")
        a(f"ds_write_b64 v14, v[20:21] offset:{C_PAR}")
        a("s_mov_b64 exec, -1")
        a(f"s_branch {ex}")
    a(f"{jl[2]}:")
    anchor(G2, G2 + 2, 128); scale_cb()
    it([csq_(G1, G2), cm_(VD, CBR, G2, T + 4)]); csq(G3, G1); csq(G3, G3)
    it([cm_(VA, CBR, G3), cm_(VC, VD, G3, T + 4)])
    ce, co = VA, VC
    for r in range(4):
        ne, no = oth(ce, VA, VB), oth(co, VC, VD)
        it([cm_(ne, ce, G1)] + ([cm_(no, co, G1, T + 4)] if r < 3 else []), 2 * r, ce, co); ce, co = ne, no
    it([], 8, ce, None)
    a(f"v_mov_b32 v36, {f32(2048.0*LOG2E)}", f"v_mul_f32 v24, s{SM}, v36", "v_max_f32 v24, 0, v24")
    if EP: a("v_ceil_f32 v24, v24", "v_cvt_i32_f32 v24, v24")
    else: a("v_exp_f32 v24, v24")
    it([])
    a(f"s_sub_u32 s{SIS}, s{SC}, 7", f"s_lshl_b32 s{SIS}, s{SIS}, 23")
    a(f"v_lshlrev_b32 v25, 16, v{VDSK}", f"v_{'ldexp' if EP else 'mul'}_f32 v24, s{SIS}, v24", f"v_mov_b32 v{VPR}, v24")
    a(f"ds_write_b64 v14, v[24:25] offset:{C_PAR}")
    a(f"{jn}:")
    a(f"ds_write_b8 v15, v{VONE} offset:{FL_G}")
    stamp(a, 3); kstamp(a, 2)
    for s in range(8): a(f"ds_read_b128 v[{40+4*s}:{43+4*s}], v{VTL} offset:{64*s}")
    a(f"v_mov_b32 v36, {f32(LOG2E)}", f"v_mul_f32 v36, s{SM}, v36")
    a(f"v_mul_f32 v37, {f32(2048.0)}, v36", "v_max_f32 v37, 0, v37")
    if EP: a("v_ceil_f32 v37, v37")
    a(f"v_add_f32 v37, {f32(23.0)}, v37")
    for r in range(4):
        a(f"v_fma_f32 v{LFR[r]}, v{LFR[r]}, v36, -v37")
    for r in range(4):
        a(f"v_exp_f32 v{LFR[r]}, v{LFR[r]}")
    kstamp(a, 3)
    lds_wait(a, FL_G + 3, 17, "u8", addr=14)
    kstamp(a, 4)
    tr = LdsTrack(a); ids = []
    for s in range(8):
        ids.append(tr.issue(f"ds_read_b128 v[{72+4*s}:{75+4*s}], v{VTE} offset:{KG_T[3]+64*s}"))
    for s in range(8):
        tr.wait(ids[s])
        c = "0" if s < 2 else f"v[{20+4*(s&1)}:{23+4*(s&1)}]"
        a(f"v_mfma_f32_16x16x32_f16 v[{20+4*(s&1)}:{23+4*(s&1)}], v[{40+4*s}:{43+4*s}], v[{72+4*s}:{75+4*s}], {c}")
    for r in range(4): a(f"v_add_f32 v{20+r}, v{20+r}, v{24+r}")
    for r in range(4): a(f"v_mul_f32 v{20+r}, v{20+r}, v{LFR[r]}")
    kstamp(a, 5)
    if KOFF: a(f"s_cmp_eq_u32 s{S_G}, 2", "s_cbranch_scc1 KC_SEND")
    for r in range(4):
        a(f"v_cvt_f16_f32 v{20+r}, v{20+r}")
        a(f"ds_write_b16 v{IXR[r]}, v{20+r}")
    a(f"{ex}:")
    a(f"ds_write_b8 v15, v{VONE} offset:{FL_G+4}")
    a("v_mov_b32 v28, 0", "v_mov_b32 v29, 0", "v_mov_b32 v30, 0", "v_mov_b32 v31, 0", f"v_mov_b32 v32, s{S_GB}")
    a("s_waitcnt vmcnt(0)")
    kstamp(a, 6)
    lds_wait(a, FL_G + 4, 20, "b4", addr=14)
    stamp(a, 4); kstamp(a, 7)
    for e in range(3): a(f"ds_read_u16 v{20+e}, v{I1+e}")
    for e in range(4): a(f"ds_read_u16 v{23+e}, v{I2+e}")
    a("s_mov_b64 exec, 1")
    a(f"ds_write_b128 v32, v[28:31] offset:{R_WS5}", f"ds_write_b128 v32, v[28:31] offset:{R_WS9}", f"ds_write_b128 v32, v[28:31] offset:{R_WS3 + 192*16}")
    a("s_mov_b64 exec, -1")
    a("s_waitcnt lgkmcnt(7)")
    a("v_lshl_or_b32 v28, v21, 16, v20", "v_lshl_or_b32 v29, v22, 16, v21")
    a(f"ds_write_b32 v{D1}, v28 offset:{T_DRE}", f"ds_write_b32 v{D1}, v29 offset:{T_DRO}")
    if DB: a(f"ds_write_b32 v{D1}, v28 offset:{T_DRE - DDL}", f"ds_write_b32 v{D1}, v29 offset:{T_DRO - DDL}")
    a(f"s_waitcnt lgkmcnt({7 if DB else 5})")
    a("v_lshl_or_b32 v30, v24, 16, v23", "v_lshl_or_b32 v31, v26, 16, v25")
    a(f"ds_write_b32 v{D2}, v30", f"ds_write_b32 v{D3}, v31")
    if DB: a(f"ds_write_b32 v{D2}, v30 offset:{DDL}", f"ds_write_b32 v{D3}, v31 offset:{DDL}")
    a(f"ds_write_b8 v15, v{VONE} offset:{FL_G+8}")
    kstamp(a, 8)
    lds_wait(a, FL_G + 8, 20, "b4", addr=14)
    stamp(a, 5)
    PR, FT0, FT1, ACCL, ACCH, ZQ = 16, 18, 19, 20, 24, 28
    VZA, VUA = VDA, VDA2
    LA = ENV("CLA", 6); RSV = ENV("CRSV", 5); NF = ENV("CNF", 2)
    jl = [newlabel("CV") for _ in range(4)]; zend = newlabel("CVE")
    slow = []
    a(f"ds_read_b64 v[{PR}:{PR+1}], v14 offset:{C_PAR}")
    for r in range(1, 4): a(f"s_cmp_eq_u32 s{S_ROLE}, {r}", f"s_cbranch_scc1 {jl[r]}")
    for m in range(4):
        if m: a(f"{jl[m]}:")
        lo, hi = 2 * m, 2 * m + 1
        acc = {lo: ACCL, hi: ACCH}
        ops = []
        if m >= 2:
            for j in (lo, hi): ops.append((j, ("D", 32), ("U", 8 * j - 32)))
        for p in range(max(8 * lo - 16, -7), 8 * hi + 1):
            for j in (lo, hi):
                ks = 8 * j - p
                if 0 <= ks <= 16: ops.append((j, ("D", ks), ("U", p)))
        ncomb0 = len(ops)
        for j in (lo, hi):
            for kind in (3, 5):
                for b in range(6):
                    if 2 <= j - b <= 4: ops.append((j, ("W", kind, b), ("G", kind, j - b)))
            for kind in (7, 9):
                for b in range(2):
                    if j - 2 * b - 4 >= 0: ops.append((j, ("W", kind, b), ("G", kind, j - 2 * b - 4)))
        nops = len(ops)
        first, last = {}, {}
        for k, (j, A, B) in enumerate(ops):
            for key in (A, B):
                first.setdefault(key, k); last[key] = k
        lastlo = max(k for k, o in enumerate(ops) if o[0] == lo)
        pool = list(range(32, 128, 4))
        reg, lid = {}, {}
        def load(tr, key):
            rg = pool.pop(0); reg[key] = rg
            if (XP & 8 and key[0] == "G") or (XP & 16 and key[0] == "W") or (XP & 32 and key[0] == "U"):
                lid[key] = -100; return
            if key[0] == "D":
                ksv = -2 if key[1] == 32 else key[1]
                o = (16 - ksv) * 16
                if DB:
                    tr.issue(f"ds_read_b64 v[{rg}:{rg+1}], v{VDA} offset:{4*o}")
                    lid[key] = tr.issue(f"ds_read_b64 v[{rg+2}:{rg+3}], v{VDA} offset:{4*o+8}")
                    return
                ad, o = (VDA, o) if o + 3 <= 255 else (VDA2, o - 160)
                tr.issue(f"ds_read2_b32 v[{rg}:{rg+1}], v{ad} offset0:{o} offset1:{o+1}")
                lid[key] = tr.issue(f"ds_read2_b32 v[{rg+2}:{rg+3}], v{ad} offset0:{o+2} offset1:{o+3}")
            elif key[0] == "G":
                _, kind, ix = key
                if kind in (3, 5): o = (4 - ix) * 16 + (64 if kind == 5 else 0); ad = VG8
                else: o = (3 - ix) * 8 + (96 if kind == 9 else 0); ad = VG16
                if DB:
                    tr.issue(f"ds_read_b64 v[{rg}:{rg+1}], v{ad} offset:{4*o}")
                    lid[key] = tr.issue(f"ds_read_b64 v[{rg+2}:{rg+3}], v{ad} offset:{4*o+8}")
                    return
                tr.issue(f"ds_read2_b32 v[{rg}:{rg+1}], v{ad} offset0:{o} offset1:{o+1}")
                lid[key] = tr.issue(f"ds_read2_b32 v[{rg+2}:{rg+3}], v{ad} offset0:{o+2} offset1:{o+3}")
            elif key[0] == "U":
                lid[key] = tr.issue(f"ds_read_b128 v[{rg}:{rg+3}], v{VB_} offset:{64*(key[1]+7)}")
            else:
                _, kind, b = key
                if kind in (3, 5): o = (R_WS3 if kind == 3 else R_WS5) + 512 * b; ad, st = VT8, 64
                else: o = (R_WS7 if kind == 7 else R_WS9) + 1024 * b; ad, st = VT16, 128
                tr.issue(f"ds_read_b64_tr_b16 v[{rg}:{rg+1}], v{ad} offset:{o}")
                lid[key] = tr.issue(f"ds_read_b64_tr_b16 v[{rg+2}:{rg+3}], v{ad} offset:{o+st}")
        keys = sorted(first, key=lambda k_: first[k_])
        tr = LdsTrack(a)
        for key in keys:
            if key[0] == "D": load(tr, key)
        for key in keys:
            if key[0] == "G" and len(pool) > RSV: load(tr, key)
        pend = [k_ for k_ in keys if k_ not in reg]
        a(f"v_lshlrev_b32 v{FT0}, 3, v3", f"v_sub_u32 v{FT0}, v{VB_}, v{FT0}")
        a(f"v_lshrrev_b32 v{FT1}, 2, v2", f"v_lshl_add_u32 v{FT1}, v{FT1}, 2, v3", f"v_and_b32 v{ZQ}, 3, v2", f"v_lshlrev_b32 v{ZQ}, 4, v{ZQ}")
        if SWZ: a(f"v_mul_u32_u24 v{FT1}, s{CSH}, v{FT1}", f"v_xor_b32 v{FT1}, s{CFL}, v{FT1}")
        else: a(f"v_lshlrev_b32 v{FT1}, s{CSH}, v{FT1}")
        a("s_waitcnt lgkmcnt(0)")
        a(f"v_mov_b32 v{VUA}, v{FT0}", f"v_add_u32 v{VZA}, v{FT1}, v{ZQ}")
        a(f"v_xor_b32 v{VLN}, s{CXR}, v{VLN}")
        if EP == 2: a(f"v_or_b32 v{PR}, 0x3f80, v{PR}")
        lds_wait(a, FL_UF, FT0, "b4")
        a(f"s_setprio {eval(os.environ.get('CPRIO', '[1,1,1,1]'))[m]}")
        stamp(a, 6); cstamp(a, 1)
        if XP & 4: a(f"v_mov_b32 v{FT0}, 0", f"s_cmp_lg_u32 s{S_G}, 0", f"s_cbranch_scc1 {zend}")
        for key in lid: lid[key] = -100
        tr = LdsTrack(a)
        ud = {}
        fill = []
        fill.append(("lds", f"ds_read_b64 v[{ZQ}:{ZQ+1}], v{VUA} offset:{480 + 512*lo}", 2))
        fill.append(("ldsU", f"ds_read_b64 v[{ZQ+2}:{ZQ+3}], v{VUA} offset:{480 + 512*hi}", 2))
        for ti, j in enumerate((lo, hi)):
            fill.append(("alloc", j, 5))
            if ti == 0: fill.append(("waitU", None, 5))
            for e in range(4):
                sel = "op_sel:[1,0,0] " if e & 1 else ""
                fill.append(("f", (lambda j=j, e=e, ti=ti, sel=sel: f"v_fma_mix_f32 v{ud[j]+e}, v{ZQ+2*ti+e//2}, v{PR+1}, 0 {sel}op_sel_hi:[1,0,0]"), 5))
            for e in range(4 if EP < 2 else 0):
                fill.append(("f", (lambda j=j, e=e: f"v_cvt_pk_bf16_f32 v{ud[j]+e}, 0, v{ud[j]+e}"), 5))
        def epi(j, ti):
            y = acc[j]; z = ZQ + 2 * ti; out = []
            if EP == 2:
                for p in range(4): out.append(lambda p=p: f"v_cvt_pk_bf16_f32 v{y+p}, v{ud[j]+p}, v{y+p}")
                for p in range(4): out.append(lambda p=p: f"v_dot2_f32_bf16 v{y+p}, v{y+p}, v{PR}, 0")
            elif EP == 1:
                for p in range(4): out.append(lambda p=p: f"v_cvt_pk_bf16_f32 v{y+p}, 0, v{y+p}")
                for p in range(4): out.append(lambda p=p: f"v_fma_f32 v{y+p}, v{y+p}, v{PR}, v{ud[j]+p}")
            else:
                for p in range(4): out.append(lambda p=p: f"v_mul_f32 v{y+p}, v{y+p}, v{PR}")
                for p in range(4): out.append(lambda p=p: f"v_cvt_pk_bf16_f32 v{y+p}, 0, v{y+p}")
                for p in range(4): out.append(lambda p=p: f"v_add_f32 v{y+p}, v{y+p}, v{ud[j]+p}")
            for p in range(2): out.append(lambda p=p: f"v_cvt_pk_bf16_f32 v{z+p}, v{y+2*p}, v{y+2*p+1}")
            for p in range(2): out.append(lambda p=p: f"v_min_u32 v{z+p}, -2, v{z+p}")
            return out
        for f in epi(lo, 0): fill.append(("f", f, lastlo + 2))
        fill.append(("lds", f"ds_read_u8 v{FT0}, v14 offset:{FL_S6 - 16 + m}", nops - (0 if ZX else 4)))
        fill.append(("lds", f"ds_read_b128 v[{ACCL}:{ACCL+3}], v{VLN} offset:{G_BASE + R_RED + 1024*m}", nops - (0 if ZX else 4)))
        uid = [None]
        def do_fill(n, k):
            while n > 0 and fill:
                kind, t, e = fill[0]
                if e > k: return
                if kind == "alloc":
                    if len(pool) < 2: return
                    ud[t] = pool.pop(); fill.pop(0); continue
                fill.pop(0)
                if kind == "f":
                    if XP & 2 and "v_min" not in t(): continue
                    a(t())
                elif kind == "lds": tr.issue(t)
                elif kind == "ldsU": uid[0] = tr.issue(t)
                elif kind == "waitU": tr.wait(uid[0]); continue
                n -= 1
        kW = ncomb0 - LA if nops > ncomb0 else None
        wok = [False]
        def issue_loads(k, nmax):
            while pend and pool and nmax > 0:
                key = pend[0]
                if first[key] - k > (LA if key[0] != "G" else LA + 4): return
                if key[0] == "W" and not wok[0]:
                    alt = [x for x in pend if x[0] != "W" and first[x] - k <= LA + 2]
                    if not alt: return
                    key = alt[0]
                pend.remove(key); load(tr, key); nmax -= 1
        issue_loads(0, RSV)
        started = set()
        for k, (j, A, B) in enumerate(ops):
            assert A in reg and B in reg, (m, k, A, B)
            tr.wait(max(lid[A], lid[B]))
            c = f"v[{acc[j]}:{acc[j]+3}]" if j in started else "0"
            started.add(j)
            a(f"v_mfma_f32_16x16x32_f16 v[{acc[j]}:{acc[j]+3}], v[{reg[A]}:{reg[A]+3}], v[{reg[B]}:{reg[B]+3}], {c}")
            for key in (A, B):
                if last[key] == k: pool.append(reg[key])
            if kW is not None and k == kW - 3:
                wfid = tr.issue(f"ds_read_b32 v{FT0}, v14 offset:{FL_G + 12}")
            if k == kW:
                tr.wait(wfid)
                sl = newlabel("WS"); bk = newlabel("WB")
                a(f"v_cmp_ne_u32 vcc, s{S_ONES}, v{FT0}", f"s_cbranch_vccnz {sl}")
                a(f"{bk}:")
                slow.append((sl, bk))
                wok[0] = True
                cstamp(a, 3)
            issue_loads(k + 1, 2)
            do_fill(NF, k)
            if k == ncomb0 // 2: cstamp(a, 2)
            if k == ncomb0 - 1: cstamp(a, 4)
        cstamp(a, 5)
        do_fill(1000, 1000)
        assert not fill and not pend
        stamp(a, 7)
        for f in epi(hi, 1): a(f())
        if m < 3: a(f"s_branch {zend}")
    a(f"{zend}:")
    cstamp(a, 6)
    gA = newlabel("ZA"); gC = newlabel("ZC"); zs = newlabel("ZS"); zb = newlabel("ZB"); zc = newlabel("ZCB"); zd = newlabel("ZD")
    a("s_waitcnt lgkmcnt(0)")
    a(f"s_cmp_lg_u32 s{S_G}, 1", f"s_cbranch_scc1 {gA}")
    a(f"v_cmp_ne_u32 vcc, 1, v{FT0}", f"s_cbranch_vccnz {zs}")
    a(f"{zb}:")
    a(f"s_mov_b64 exec, s[{CM}:{CM+1}]")
    for k in range(4): a(f"v_swap_b32 v{ZQ+k}, v{ACCL+k}")
    a("s_mov_b64 exec, -1")
    cstamp(a, 8)
    a(f"buffer_store_dwordx4 v[{ZQ}:{ZQ+3}], v{VZA}, s[{R0}:{R0+3}], s{CZ1} offen sc1")
    a(f"buffer_store_dwordx4 v[{ACCL}:{ACCL+3}], v{VZA}, s[{R0}:{R0+3}], s{CZ0} offen sc1")
    if ENV("ZG2", 0) >= 2 or ENV("ZT", 0) or ZM or BT == 4: a(f"ds_write_b8 v15, v{VONE} offset:{FL_ZISS - 16}")
    if ZM:
        a(f"s_cmp_lg_u32 s{S_ROLE}, 3", f"s_cbranch_scc1 {zd}")
        a(f"ds_read_b32 v32, v{VZ} offset:{FL_NONCE}", f"s_lshl_b32 s{T0_}, s{S_B2}, 7", f"s_add_u32 s{T0_}, s{T0_}, {hex(WS_MARK)}", f"v_mov_b32 v33, s{T0_}")
        a("s_mov_b64 exec, 1", "s_waitcnt lgkmcnt(0)")
        a(f"global_store_dword v33, v32, s[{P_WS}:{P_WS+1}] sc1")
        a("s_mov_b64 exec, -1")
    a(f"s_branch {zd}")
    for (sl, bk) in slow:
        a(f"{sl}:")
        lds_wait(a, FL_G + 12, FT0, "b4", addr=14)
        a(f"s_branch {bk}")
    a(f"{zs}:")
    a(f"v_mov_b32 v{FT1}, s{S_ROLE}")
    l = newlabel("ZW")
    if ZX: a(f"v_lshl_add_u32 v{PR}, v{FT1}, 10, v{VLN}")
    a(f"{l}:")
    a(f"ds_read_u8 v{FT0}, v{FT1} offset:{FL_S6}")
    if ZX: a(f"ds_read_b128 v[{ACCL}:{ACCL+3}], v{PR} offset:{G_BASE + R_RED}")
    guard(a)
    a("s_waitcnt lgkmcnt(0)")
    a(f"v_cmp_ne_u32 vcc, 1, v{FT0}", f"s_cbranch_vccnz {l}")
    if not ZX:
        a(f"v_lshl_add_u32 v{FT1}, v{FT1}, 10, v{VLN}")
        a(f"ds_read_b128 v[{ACCL}:{ACCL+3}], v{FT1} offset:{G_BASE + R_RED}")
        a("s_waitcnt lgkmcnt(0)")
    a(f"s_branch {zb}")
    a(f"{gA}:")
    if FLD:
        a(f"v_cmp_eq_u32 vcc, 1, v{FT0}", "s_cbranch_vccnz KS_CLK")
        lds_wait(a, FL_S6 - 16, FT0, "b4")
        a("KS_CLK:")
    a(f"s_cmp_lg_u32 s{S_G}, 0", f"s_cbranch_scc1 {gC}")
    a(f"v_mov_b32 v{FT1}, s{S_ROLE}", f"v_lshl_add_u32 v{FT0}, v{FT1}, 10, v{VLN}")
    a(f"ds_write_b128 v{FT0}, v[{ZQ}:{ZQ+3}] offset:{G_BASE + R_RED}")
    a(f"ds_write_b8 v{FT1}, v{VONE} offset:{FL_S6}")
    cstamp(a, 8)
    a(f"s_branch {zd}")
    a(f"{gC}:")
    cstamp(a, 8)
    a(f"buffer_store_dwordx4 v[{ZQ}:{ZQ+3}], v{VZA}, s[{R0}:{R0+3}], s{CZ0} offen sc1")
    a(f"{zd}:")
    stamp(a, 8)
    if DBG:
        a(f"s_mul_i32 s{T0_}, s{S_ROLE}, 1280", f"s_add_u32 s{T1_}, s{T0_}, s{S_GB}", f"v_lshl_add_u32 v20, v1, 2, s{T1_}")
        a(f"s_mul_i32 s{T1_}, s{S_CH}, 5376", f"s_add_u32 s{T1_}, s{T1_}, s{T0_}", f"s_add_u32 s{T1_}, s{T1_}, {hex(WS_DBG)}", f"v_lshl_add_u32 v21, v1, 2, s{T1_}")
        for k in range(5 + 1):
            a(f"ds_read_b32 v22, v20 offset:{R2 + 256*k}", "s_waitcnt lgkmcnt(0)", f"global_store_dword v21, v22, s[{P_WS}:{P_WS+1}] offset:{256*k}")
        a(f"ds_read_b32 v22, v14 offset:{C_PAR}", f"s_lshl_b32 s{T1_}, s{S_CH}, 2", f"s_add_u32 s{T1_}, s{T1_}, {hex(WS_DBG + 0x300000)}", f"v_mov_b32 v21, s{T1_}")
        a("s_waitcnt lgkmcnt(0)", f"global_store_dword v21, v22, s[{P_WS}:{P_WS+1}]")
    a(f"s_lshl_b32 s{T0_}, s{S_G}, 2", f"s_add_u32 s{T0_}, s{T0_}, s{S_ROLE}", f"v_mov_b32 v8, s{T0_}")
    a("s_waitcnt vmcnt(0)")
    a(f"ds_write_b8 v8, v{VONE} offset:{FL_ZDONE}")


def gen_wjobs(a):
    WA, WD = 10, 11
    end = newlabel("WJE"); w1 = newlabel("WJ1"); w2 = newlabel("WJ2")
    a(f"s_cmp_eq_u32 s{S_WAVE}, 2", f"s_cbranch_scc1 {w2}")
    if XP & 1: a(f"s_branch {w2}")
    a(f"s_add_u32 s{T0_}, s{S_WAVE}, 1", f"s_lshr_b32 s{T0_}, s{T0_}, 2", f"s_cmp_eq_u32 s{S_WAVE}, 1", f"s_cselect_b32 s{T0_}, 2, s{T0_}", f"s_lshl_b32 s{T0_}, s{T0_}, 10")
    a(f"v_lshl_add_u32 v{WA}, v1, 4, s{T0_}", f"v_add_u32 v{WD}, {G_BASE}, v{WA}")
    lds_wait(a, FL_UF, 12, "b4")
    a(f"s_setprio {ENV('WPRIO', 3)}")
    for g in range(3):
        E = 20 + 12 * g; o = C_U + U_SIZE * g + 2 * (240 - 16)
        a(f"ds_read_b128 v[{E}:{E+3}], v{WA} offset:{o}", f"ds_read_b128 v[{E+4}:{E+7}], v{WA} offset:{o+16}", f"ds_read_b64 v[{E+8}:{E+9}], v{WA} offset:{o+32}")
    a(f"s_cmp_eq_u32 s{S_WAVE}, 1", f"s_cbranch_scc1 {w1}")
    for full in (1, 0):
        if not full: a(f"{w1}:")
        for g in range(3):
            if g == 2: a(f"s_cmp_lt_u32 s{S_I}, 24", f"s_cbranch_scc1 {end}")
            E = lambda i: 20 + 12 * g + i
            O = lambda i: 56 + i
            T = lambda i: 65 + i
            Q = lambda i: 72 + i
            X = lambda i: 79 + i
            Y = lambda i: 85 + i
            W7, W9 = 92, 96
            a(f"ds_read_b32 v12, v{VZ} offset:{FL_G + 16*g + 4}")
            if g == 0: a("s_waitcnt lgkmcnt(7)")
            n = 8 if full else 7
            for i in range(1, n + 1): a(f"v_alignbit_b32 v{O(i)}, v{E(i+1)}, v{E(i)}, 16")
            for i in range(1, n + 1): a(f"v_pk_add_f16 v{T(i)}, v{O(i)}, v{E(i+1)}")
            for i in range(1, 5): a(f"v_pk_add_f16 v{X(i)}, v{T(i)}, v{O(i+1)}")
            for i in (range(2, 8) if full else range(3, 7)): a(f"v_pk_add_f16 v{Q(i)}, v{T(i)}, v{T(i+1)}")
            ok = newlabel("WJK")
            a("s_waitcnt lgkmcnt(0)")
            a(f"v_cmp_eq_u32 vcc, s{S_ONES}, v12", f"s_cbranch_vccnz {ok}")
            lds_wait(a, FL_G + 16 * g + 4, 12, "b4", sleep=1)
            a(f"{ok}:")
            off = G_SIZE * (g & 1)
            if g == 2: a(f"v_add_u32 v{WD}, {2*G_SIZE}, v{WD}")
            a(f"ds_write_b128 v{WD}, v[{X(1)}:{X(4)}] offset:{off + R_WS3}")
            for i in (range(2, 7) if full else range(3, 7)): a(f"v_pk_add_f16 v{Y(i)}, v{E(i)}, v{Q(i)}")
            a(f"ds_write_b128 v{WD}, v[{Y(3)}:{Y(6)}] offset:{off + R_WS5 + 16}")
            if full:
                for i in range(5, 8): a(f"v_pk_add_f16 v{X(i)}, v{T(i)}, v{O(i+1)}")
                for k in range(4): a(f"v_pk_add_f16 v{W7+k}, v{Q(2+k)}, v{X(4+k)}")
                a(f"ds_write_b128 v{WD}, v[{W7}:{W7+3}] offset:{off + R_WS7}")
                for k in range(4): a(f"v_pk_add_f16 v{W9+k}, v{Y(2+k)}, v{Q(4+k)}")
                a(f"ds_write_b128 v{WD}, v[{W9}:{W9+3}] offset:{off + R_WS9 + 16}")
            a(f"ds_write_b8 v116, v{VONE} offset:{FL_G + 16*g + 12}")
        a(f"s_branch {end}")
    a(f"{w2}:")
    for g in range(3): a(f"ds_write_b8 v116, v{VONE} offset:{FL_G + 16*g + 12}")
    def flag_check(mid=None):
        a("s_setprio 0")
        for d in range(4): a(f"v_mov_b32_dpp v{32+d}, v58 quad_perm:[{d},{d},{d},{d}] {DPPM} ; nodst")
        a("v_lshlrev_b32 v12, 6, v1", f"v_add_u32 v12, {hex(WS_FLAG1 + 2048)}, v12", f"v_mov_b32 v13, s{S_ONES}")
        if ENV("FLDD", 0): a(f"s_sleep {ENV('FLDD', 0)}")
        lp = newlabel("FP"); l1 = newlabel("FPE")
        ld = (f"global_load_dwordx4 v[20:23], v12, s[{P_WS}:{P_WS+1}] offset:-2048 sc1", f"global_load_dwordx4 v[24:27], v12, s[{P_WS}:{P_WS+1}] offset:2048 sc1")
        if mid:
            a(*ld)
            a(f"s_waitcnt vmcnt({mid()})")
        a(f"s_branch {l1}", f"{lp}:", "s_sleep 2")
        if not mid: a(f"{l1}:")
        a(*ld)
        guard(a)
        a("s_waitcnt vmcnt(0)")
        if mid: a(f"{l1}:")
        for k in range(8): a(f"v_xor_b32 v{20+k}, v{32+(k&3)}, v{20+k}")
        a("v_or3_b32 v20, v20, v21, v22", "v_or3_b32 v23, v23, v24, v25", "v_or3_b32 v20, v20, v26, v27", "v_or_b32 v20, v20, v23", "v_cmp_ne_u32 vcc, 0, v20", f"s_cbranch_vccnz {lp}")
        a(f"ds_write2_b32 v{VZ}, v13, v13 offset0:{(FL_S6 - 16)//4} offset1:{(FL_S6 + 16)//4}")
    def pf2_mid():
        W2 = ENV("PF2W", 14)
        a(f"s_sub_u32 s{T2_}, s{S_FI}, {ENV('PF2B', 18)}", f"s_and_b32 s{T2_}, s{T2_}, 31")
        pf_lane(a, 100, 101)
        pf_gu_setup(a, T2_)
        a(f"s_cmp_ge_u32 s{T2_}, {W2}", f"s_cselect_b32 s{R2_+2}, 0, s{R2_+2}")
        if ENV("PF2U", 1): lds_wait(a, FL_UF, 102, "b4", sleep=1)
        k = 0
        while PF1 + k * W2 < PF2:
            if PF1 + (k + 1) * W2 > PF2: a(f"s_cmp_ge_u32 s{T2_}, {PF2 - PF1 - k*W2}", f"s_cselect_b32 s{R2_+2}, 0, s{R2_+2}")
            a(f"s_add_u32 s{T4_}, s{T3_}, {(PF1 + k*W2)//2*7*9216}")
            pf_ld(a, 102, 100, R2_)
            k += 1
        return 2 * k
    if FLD == 2:
        flag_check(pf2_mid)
        a(f"s_branch {end}")
    if FLD == 1: flag_check()
    if PB and 1 <= PCT <= 3:
        a(f"s_cmp_ge_u32 s{S_FI}, 18", "s_cbranch_scc1 KS_PCL")
        srd(a, R2_, P_WS, PART_BYTES, WS_PART)
        a(f"s_mul_i32 s{T2_}, s{S_BLK}, {PROW}", "v_lshlrev_b32 v100, 4, v1")
        for d in range(4): a(f"v_mov_b32 v{104+d}, -1")
        if PCT == 2: lds_wait(a, FL_UF, 12, "b4", sleep=1)
        if PCT == 3: lds_wait(a, FL_G + 16 + 12, 12, "b4", sleep=1)
        if ENV("PCD", 0): a(f"s_sleep {ENV('PCD', 0)}")
        for k in range(9):
            if k in (4, 8): a(f"s_add_u32 s{T2_}, s{T2_}, 4096")
            a(f"buffer_store_dwordx4 v[104:107], v100, s[{R2_}:{R2_+3}], s{T2_} offen offset:{1024*(k&3)} sc1")
        a(f"s_branch {end}")
        a("KS_PCL:")
    if PF2 > PF1 or PFD:
        W2 = ENV("PF2W", 14)
        a(f"s_sub_u32 s{T2_}, s{S_FI}, {ENV('PF2B', 18)}", f"s_and_b32 s{T2_}, s{T2_}, 31", f"s_cmp_ge_u32 s{T2_}, {W2}", f"s_cbranch_scc1 {end}")
        pf_lane(a, 100, 101)
        lds_wait(a, FL_UF, 12, "b4", sleep=1)
        if PF2 > PF1:
            pf_gu(a, 100, T2_, W2, PF1, PF2, 102, "KS_PF2D")
            a("KS_PF2D:")
        if PFD:
            a(f"s_sub_u32 s{T2_}, {W2-1}, s{T2_}")
            pf_down(a, T2_, W2, 0, PFD, 100, 120, end)
    a(f"{end}:")

def gen(a):
    label = NAME + "_kernel"
    a(f".globl {label}", ".p2align 8", f".type {label},@function", f"{label}:")
    a("s_cmp_ge_u32 s2, 256", "s_cbranch_scc1 KS_END")
    stamp_begin(a)
    a("s_load_dwordx16 s[4:19], s[0:1], 0", "s_load_dwordx16 s[20:35], s[0:1], 64", f"s_load_dwordx2 s[{P_WS}:{P_WS+1}], s[0:1], 128")
    a(f"v_readfirstlane_b32 s{S_WAVE}, v0", f"s_lshr_b32 s{S_WAVE}, s{S_WAVE}, 6")
    a(f"s_and_b32 s{S_XC}, s2, 7", f"s_lshr_b32 s{S_I}, s2, 3")
    if ENV("CPF", 1):
        a(f"s_cmp_lg_u32 s{S_WAVE}, {ENV('CPFW', 0)}", "s_cbranch_scc1 KS_CPE")
        cm = ENV("CPFM", 0)
        if cm == 1: a(f"s_sub_u32 s{T0_}, s{S_I}, 8", f"s_cmp_lt_u32 s{T0_}, 16", "s_cbranch_scc1 KS_CPE")
        if cm == 2: a(f"s_cmp_lt_u32 s{S_I}, 24", "s_cbranch_scc1 KS_CPE")
        if cm == 3: a(f"s_cmp_ge_u32 s{S_I}, 8", "s_cbranch_scc1 KS_CPE")
        if cm == 4: a(f"s_cmp_ge_u32 s{S_I}, 4", "s_cbranch_scc1 KS_CPE")
        if cm == 5: a(f"s_cmp_lt_u32 s{S_I}, 28", "s_cbranch_scc1 KS_CPE")
        a("s_getpc_b64 s[42:43]")
        a("KS_PC:")
        a(f"s_and_b32 s{T0_}, s{S_I}, 7", f"s_mul_i32 s{T0_}, s{T0_}, 4608", "v_and_b32 v126, 63, v0", f"v_lshl_add_u32 v126, v126, 7, s{T0_}", "v_min_u32 v126, KS_END-KS_PC, v126")
        a(f"global_load_dword v127, v126, s[42:43] {MOD('CPFMOD', '')}")
        a("KS_CPE:")
    if ENV("REMAP", 1):
        a(f"s_add_u32 s{T0_}, s{S_WAVE}, 8", f"s_sub_u32 s{T1_}, s{S_WAVE}, 4", f"s_cmp_lt_u32 s{S_WAVE}, 8", f"s_cselect_b32 s{T0_}, s{T0_}, s{T1_}")
        a(f"s_cmp_lt_u32 s{S_WAVE}, 4", f"s_cselect_b32 s{S_WAVE}, s{S_WAVE}, s{T0_}")
    a("v_and_b32 v1, 63, v0", "v_and_b32 v2, 15, v1", "v_lshrrev_b32 v3, 4, v1", f"v_mov_b32 v{VZ}, 0", f"v_mov_b32 v{VONE}, 1")
    a(f"s_mov_b32 s{S_GUARD}, {GUARD}", f"s_mov_b32 s{S_ONES}, 0x01010101")
    a(f"s_lshl_b32 s{S_B2}, s{S_XC}, 5", f"s_add_u32 s{S_B2}, s{S_B2}, s{S_I}")
    if RM: a(f"s_add_u32 s{T0_}, s{S_I}, 16", f"s_sub_u32 s{S_FI}, s{S_I}, 8", f"s_cselect_b32 s{S_FI}, s{T0_}, s{S_FI}", f"s_cmp_ge_u32 s{S_I}, 24", f"s_cselect_b32 s{S_FI}, s{S_I}, s{S_FI}")
    a(f"s_mul_i32 s{S_BLK}, s{S_XC}, 18", f"s_add_u32 s{S_BLK}, s{S_BLK}, s{S_FI}")
    a(f"s_cmp_lt_u32 s{S_WAVE}, 4", "s_cbranch_scc1 KS_L")
    a(f"s_cmp_ge_u32 s{S_WAVE}, 12", "s_cbranch_scc1 KS_X")
    a("s_setprio 2")
    a(f"s_lshr_b32 s{S_G}, s{S_WAVE}, 2", f"s_sub_u32 s{S_G}, s{S_G}, 1")
    a(f"s_mul_i32 s{S_ROLE}, s{S_G}, 3", f"s_xor_b32 s{S_ROLE}, s{S_ROLE}, s{S_WAVE}", f"s_and_b32 s{S_ROLE}, s{S_ROLE}, 3")
    a(f"s_lshl_b32 s{S_CH}, s{S_B2}, 1", f"s_add_u32 s{S_CH}, s{S_CH}, s{S_G}")
    a(f"s_lshl_b32 s{T0_}, s{S_ROLE}, 11", f"s_add_u32 s{T0_}, s{T0_}, {C_STG}", f"v_lshl_add_u32 v28, v1, 3, s{T0_}")
    pre_ixlf(a)
    a("KS_GRP:")
    gen_group(a)
    if ZM:
        a(f"s_cmp_lg_u32 s{S_WAVE}, 4", "s_cbranch_scc1 KS_K1")
        a("s_setprio 0", f"ds_read_b32 v7, v{VZ} offset:{FL_NONCE}")
        a(f"s_add_u32 s{T0_}, s{S_I}, {ENV('ZMO', 1)}", f"v_lshl_add_u32 v6, v1, 2, s{T0_}", "v_and_b32 v6, 31, v6", f"s_lshl_b32 s{T0_}, s{S_XC}, 12", f"s_add_u32 s{T0_}, s{T0_}, {hex(WS_MARK)}", f"v_lshl_add_u32 v6, v6, 7, s{T0_}")
        a("s_mov_b64 exec, 0xff")
        a("KS_ZM:")
        a(f"s_sleep {ENV('ZMS', 2)}")
        a(f"global_load_dword v8, v6, s[{P_WS}:{P_WS+1}] sc1")
        guard(a)
        a("s_waitcnt vmcnt(0) lgkmcnt(0)")
        a("v_cmp_eq_u32 vcc, v7, v8", f"s_bcnt1_i32_b64 s{T0_}, vcc", f"s_cmp_lt_u32 s{T0_}, {ZM}", "s_cbranch_scc1 KS_ZM")
        stamp2(a, 4)
        if ENV("ZMD", 0): a(f"s_sleep {ENV('ZMD', 0)}")
        a("s_mov_b64 exec, -1")
        a(f"ds_write_b32 v{VZ}, v{VONE} offset:{FL_KACK}")
    if KD: a("s_branch KS_K1")
    a(f"s_cmp_lg_u32 s{S_WAVE}, 4", "s_cbranch_scc1 KS_K1")
    a("s_setprio 0")
    srd(a, R3, P_WS, 16384, WS_KEYS)
    a("v_and_b32 v6, 1, v1", "v_lshlrev_b32 v6, 4, v6", f"s_lshl_b32 s{T0_}, s{S_B2}, 5")
    lds_wait(a, FL_ZF, 8, "b4", sleep=1)
    a("s_mov_b64 exec, 3")
    a(f"s_setprio {ENV('KSPRIO', 1)}")
    a("KS_K0:")
    a(f"ds_read_b128 v[8:11], v6 offset:{C_KEY}")
    guard(a)
    a("s_waitcnt lgkmcnt(0)")
    a("v_min3_u32 v12, v8, v9, v10", "v_min_u32 v12, v12, v11", "v_cmp_eq_u32 vcc, 0, v12", "s_cbranch_vccnz KS_K0")
    a(f"buffer_store_dwordx4 v[8:11], v6, s[{R3}:{R3+3}], s{T0_} offen sc1")
    a("s_mov_b64 exec, -1")
    stamp2(a, 4)
    a("s_waitcnt vmcnt(0)")
    a(f"ds_write_b32 v{VZ}, v{VONE} offset:{FL_KACK}")
    a("KS_K1:")
    a(f"s_cmp_lt_u32 s{S_FI}, 18", "s_cbranch_scc1 KS_T")
    a("s_waitcnt lgkmcnt(0)")
    endwave(a)
    a("KS_X:")
    a(f"s_cmp_lt_u32 s{S_I}, 24", "s_cbranch_scc1 KS_X2")
    a(f"s_setprio {ENV('KCPRIO', 2)}")
    a("KS_XC:")
    a(f"s_mov_b32 s{S_G}, 2", f"s_add_u32 s{S_ROLE}, s{S_WAVE}, 3", f"s_and_b32 s{S_ROLE}, s{S_ROLE}, 3")
    a(f"s_lshl_b32 s{S_CH}, s{S_XC}, 3", f"s_and_b32 s{T0_}, s{S_I}, 7", f"s_add_u32 s{S_CH}, s{S_CH}, s{T0_}", f"s_add_u32 s{S_CH}, s{S_CH}, 512")
    a(f"s_lshl_b32 s{T0_}, s{S_ROLE}, 11", f"s_add_u32 s{T0_}, s{T0_}, {C_STG}", f"v_lshl_add_u32 v28, v1, 3, s{T0_}")
    a("s_branch KS_GRP")
    a("KS_X2:")
    a(f"s_cmp_lt_u32 s{S_I}, 8", "s_cbranch_scc1 KS_X3")
    a(f"s_sub_u32 s{T5_}, s{S_WAVE}, 8")
    a("s_branch KS_LN1")
    a("KS_X3:")
    a(f"s_lshl_b32 s{T0_}, s2, 4", f"s_add_u32 s{T0_}, s{T0_}, s{S_WAVE}", f"s_cmp_lg_u32 s{T0_}, {16*ENV('NPUB', 2) + 12}", "s_cbranch_scc1 KS_X3B")
    a("s_setprio 3")
    a(f"s_memrealtime s[{T0_}:{T1_}]")
    a("v_and_b32 v6, 3, v1", "v_lshlrev_b32 v7, 2, v6", "v_min_u32 v6, 2, v6", "v_lshlrev_b32 v6, 2, v6", "v_cmp_eq_u32 vcc, 3, v1")
    a("s_waitcnt lgkmcnt(0)")
    a(f"v_mov_b32 v8, s{T0_}", f"v_mov_b32 v9, s{T1_}", "v_alignbit_b32 v8, v8, v8, v6", f"v_cndmask_b32 v9, v{VZ}, v9, vcc", "v_xor_b32 v8, v8, v9")
    a("v_and_b32 v9, 0xf0000fff, v8", "v_and_b32 v10, 0xfff000, v8", "v_lshl_or_b32 v9, v10, 4, v9", "v_lshrrev_b32 v10, 12, v8", "v_and_b32 v10, 0xf000, v10")
    a("v_or3_b32 v9, v9, v10, v9", "v_or_b32 v9, 0x80000000, v9")
    a("s_mov_b64 exec, 15")
    a(f"global_store_dword v7, v9, s[{P_DBG}:{P_DBG+1}] sc1")
    if SPIN: a(f"v_mov_b32 v8, s{T0_}", f"global_store_dword v7, v8, s[{P_DBG}:{P_DBG+1}] offset:64 sc1")
    a("s_mov_b64 exec, -1")
    a("s_setprio 0")
    a("KS_X3B:")
    if KOFF:
        a(f"s_setprio {ENV('KPPRIO', 3)}")
        a("s_branch KS_XC")
    a("s_waitcnt lgkmcnt(0)")
    a("s_barrier")
    a("s_branch KS_G")
    a("KS_X4:")
    if LNV: a("s_setprio 0")
    a(f"s_cmp_lt_u32 s{S_FI}, 18", "s_cbranch_scc1 KS_GN" if LNV else "s_cbranch_scc1 KS_G")
    a("KS_X5:")
    if XPF and NL2 and RM != 2:
        pf_lane(a, 46, 47)
        a(f"s_mul_i32 s{T2_}, s{S_WAVE}, 6", f"s_add_u32 s{T2_}, s{T2_}, s{S_FI}", f"s_sub_u32 s{T2_}, s{T2_}, {18 + 72}")
        if not RM: lds_wait(a, FL_UTOK, 10, "b4", sleep=2)
        else:
            a("s_waitcnt vmcnt(0)")
            lds_wait(a, FL_G + 36, 10, "b4", sleep=2)
            if ENV("RMD", 0): a(f"s_sleep {ENV('RMD', 0)}")
        pf_gu(a, 46, T2_, 24, PFA + 10 * NLL, PF0, 47, "KS_XPE")
        a("KS_XPE:")
    a("s_waitcnt vmcnt(0) lgkmcnt(0)")
    endwave(a)
    a("KS_L:")
    a("v_lshlrev_b32 v6, 2, v0", f"ds_write_b32 v6, v{VZ}")
    a("v_mov_b32 v8, 0", "v_mov_b32 v9, 0", f"s_min_u32 s{T0_}, s{S_WAVE}, 2", f"s_mul_i32 s{T0_}, s{T0_}, {U_SIZE}", "v_min_u32 v6, 59, v1", f"v_lshl_add_u32 v6, v6, 3, s{T0_}")
    a(f"ds_write_b64 v6, v[8:9] offset:{C_U}")
    a(f"s_mov_b32 s{T5_}, s{S_WAVE}")
    a(f"s_sub_u32 s{T0_}, s{S_I}, 8", f"s_cmp_lt_u32 s{T0_}, 16", "s_cbranch_scc0 KS_L0")
    a("KS_LN1:")
    a("s_setprio 3")
    gen_ln1v(a) if LNV else gen_ln1(a)
    if (NLL or NL2) and not RM and not XPF:
        if not NL: pf_lane(a, 46, 47)
        a(f"s_cmp_ge_u32 s{S_FI}, 18", "s_cbranch_scc1 KS_LL2")
        if NLL:
            a(f"s_mul_i32 s{T2_}, s{S_WAVE}, 10", f"s_add_u32 s{T2_}, s{T2_}, s{S_I}", f"s_sub_u32 s{T2_}, s{T2_}, 8")
            pf_gu(a, 46, T2_, 40, PFA, PFA + 10 * NLL, 47, "KS_LLE")
        a("s_branch KS_LLE")
        a("KS_LL2:")
        if NL2:
            a(f"s_mul_i32 s{T2_}, s{S_WAVE}, 6", f"s_add_u32 s{T2_}, s{T2_}, s{S_I}", f"s_sub_u32 s{T2_}, s{T2_}, 18")
            pf_gu(a, 46, T2_, 24, PFA + 10 * NLL, PF0, 47, "KS_LLE")
        a("KS_LLE:")
    a(f"s_mov_b32 s{S_G}, 1")
    a("s_branch KS_L2B")
    a("KS_L0:")
    a(f"s_and_b32 s{T0_}, s{S_I}, 15", f"s_lshl_b32 s{T1_}, s{S_XC}, 4", f"s_add_u32 s{T0_}, s{T0_}, s{T1_}")
    a("v_and_b32 v59, 3, v1", "v_lshlrev_b32 v59, 2, v59")
    a(f"s_lshl_b32 s{T4_}, s{T0_}, 6", f"s_add_u32 s{T1_}, s{T4_}, {hex(WS_FLAG1)}", f"v_add_u32 v7, s{T1_}, v59")
    a(f"s_mul_i32 s{T1_}, s{T0_}, {CLR_WG}", f"s_add_u32 s{T1_}, s{T1_}, {hex(WS_CLR)}")
    a("v_lshlrev_b32 v6, 4, v0")
    a("v_mov_b32 v12, -1", "v_mov_b32 v13, -1", "v_mov_b32 v14, -1", "v_mov_b32 v15, -1")
    a("s_setprio 3")
    pf_lane(a, 16, 17)
    a("s_waitcnt lgkmcnt(0)")
    a(f"s_add_u32 s{R1}, s{P_WS}, s{T1_}", f"s_addc_u32 s{R1+1}, s{P_WS+1}, 0", f"s_mov_b32 s{R1+2}, {CLR_WG}", f"s_mov_b32 s{R1+3}, 0x20000")
    if ENV("UPRE", 0):
        srd(a, R0, P_WS, 0xC00000)
        a(f"s_lshl_b32 s{T2_}, s{S_WAVE}, 3", f"s_xor_b32 s{T2_}, s{T2_}, s{S_B2}", f"s_lshl_b32 s{T2_}, s{T2_}, 13")
        a(f"s_and_b32 s{T3_}, s{S_I}, 3", f"s_lshl_b32 s{T0_}, s{S_XC}, 2", f"s_add_u32 s{T3_}, s{T3_}, s{T0_}", f"s_lshl_b32 s{T3_}, s{T3_}, 13")
        a(f"s_add_u32 s{T0_}, s{T3_}, {256*8192}", f"s_cmp_eq_u32 s{S_WAVE}, 2", f"s_cselect_b32 s{T2_}, s{T0_}, s{T2_}")
        a(f"s_add_u32 s{T0_}, s{T3_}, {hex(WS_KT)}", f"s_cmp_eq_u32 s{S_WAVE}, 3", f"s_cselect_b32 s{T2_}, s{T0_}, s{T2_}")
        a(f"s_lshl_b32 s{T0_}, s{S_I}, 2", f"s_add_u32 s{T0_}, s{T0_}, s{S_WAVE}", f"s_and_b32 s{T0_}, s{T0_}, 0x72", f"s_cmp_gt_u32 s{T0_}, 0x62", f"s_cselect_b32 s{T0_}, 0, s{T0_}")
        a(f"s_bitcmp1_b32 s{T0_}, 1", "s_cbranch_scc1 KS_UPE")
        a("v_lshlrev_b32 v125, 7, v1", f"buffer_load_dword v124, v125, s[{R0}:{R0+3}], s{T2_} offen {MOD('UPMOD')}")
        a("KS_UPE:")
    a("s_barrier")
    if NE:
        a(f"s_and_b32 s{T2_}, s{S_I}, 15", f"s_lshl_b32 s{T3_}, s{S_WAVE}, 4", f"s_add_u32 s{T2_}, s{T2_}, s{T3_}")
        pf_gu(a, 16, T2_, 64, PFB + 16 * NL, PFA, 18, "KS_L1E")
        a("KS_L1E:")
    TW = eval(os.environ.get("TW", "[]"))
    for (w, base, off, nb, sh) in TW:
        l = newlabel("TW")
        a(f"s_cmp_lg_u32 s{S_WAVE}, {w}", f"s_cbranch_scc1 {l}")
        srd(a, R0, {"ws": P_WS, "out": P_OUT}[base], nb, off)
        a(f"v_lshlrev_b32 v125, {sh}, v1", f"buffer_load_dword v124, v125, s[{R0}:{R0+3}], 0 offen")
        a(f"{l}:")
    def dr_loads():
        srd(a, R3, P_DOWN, WBYTES)
        a(f"s_cmp_lt_u32 s{S_I}, {2 if RM else 8}", f"s_cselect_b32 s{R3+2}, s{R3+2}, 0")
        a("v_lshlrev_b32 v19, 4, v1", f"s_mul_i32 s{T2_}, s{S_BLK}, 36864", f"s_mul_i32 s{T3_}, s{S_WAVE}, 9216", f"s_add_u32 s{T2_}, s{T2_}, s{T3_}")
        for k in range(9):
            if k in (4, 8): a(f"s_add_u32 s{T2_}, s{T2_}, 4096")
            a(f"buffer_load_dwordx4 v[{68+4*k}:{71+4*k}], v19, s[{R3}:{R3+3}], s{T2_} offen offset:{1024*(k&3)} {MOD('DM', 'nt')}")
    NCE = ENV("NCE", 1)
    def nce_loads():
        a(f"s_and_b32 s{T2_}, s{S_I}, 7", f"s_lshl_b32 s{T3_}, s{S_WAVE}, 3", f"s_add_u32 s{T2_}, s{T2_}, s{T3_}")
        pf_gu_setup(a, T2_)
        a(f"s_cmp_lt_u32 s{S_I}, 24", f"s_cselect_b32 s{R2_+2}, 0, s{R2_+2}")
        if NCE == 2: a("s_waitcnt vmcnt(0)")
        for k in range((NC + 3) // 4):
            a(f"s_add_u32 s{T4_}, s{T3_}, {(PF0 + 8*NN + 32*k)//2*7*9216}", f"s_cmp_ge_u32 s{S_WAVE}, {NC - 4*k}", f"s_cselect_b32 s{R2_+2}, 0, s{R2_+2}")
            pf_ld(a, 18, 16, R2_)
    if DR == 1: dr_loads()
    if NCE == 4: nce_loads()
    if ENV("CTRIG", 1): lds_wait(a, FL_PARAM, 8, "nz", sleep=2)
    if NCE == 3: nce_loads()
    if DR == 4: dr_loads()
    for k in range((CLR_WG + 4095) // 4096):
        a(f"s_mov_b32 s{T0_}, {4096*k}")
        a(f"buffer_store_dwordx4 v[12:15], v6, s[{R1}:{R1+3}], s{T0_} offen {MOD('CMOD')}")
    stamp(a, 1)
    a(f"global_load_dword v58, v59, s[{P_DBG}:{P_DBG+1}] sc1")
    if DR == 2: dr_loads()
    if NCE in (1, 2): nce_loads()
    dbg_wait(a, (9 if DR == 2 else 0) + (2 * ((NC + 3) // 4) if NCE in (1, 2) else 0))
    stamp(a, 2)
    a(f"ds_write_b32 v59, v58 offset:{FL_NONCE}")
    a("s_mov_b64 exec, 1")
    a(f"ds_add_rtn_u32 v8, v{VZ}, v{VONE} offset:{FL_LNACK}")
    a("s_mov_b64 exec, -1")
    for d in range(1, 4): a(f"v_lshrrev_b32 v{58-d}, {3*d}, v58")
    a("s_waitcnt lgkmcnt(0)")
    a(f"v_readfirstlane_b32 s{T0_}, v8")
    a(f"s_cmp_lg_u32 s{T0_}, 3", "s_cbranch_scc1 KS_L2")
    a("s_mov_b64 exec, 15")
    a(f"global_store_dword v7, v58, s[{P_WS}:{P_WS+1}] sc1")
    a("s_mov_b64 exec, -1")
    a(f"s_and_b32 s{T2_}, s{S_I}, 7")
    a(f"s_cmp_ge_u32 s{S_I}, 8", "s_cbranch_scc1 KS_L1C")
    if NN:
        a("s_setprio 0")
        lds_wait(a, FL_G + 32 + 4, 8, "b4", sleep=2)
        a("s_setprio 3")
        pf_gu(a, 16, T2_, 8, PF0, PF0 + 8 * NN, 18, "KS_L2")
    a("s_branch KS_L2")
    a("KS_L1C:")
    if NC and not NCE: pf_gu(a, 16, T2_, 8, PF0 + 8 * NN, PF1, 18, "KS_L2")
    a("KS_L2:")
    if RM == 2:
        a(f"s_sub_u32 s{T2_}, s{S_FI}, 18", f"s_cmp_ge_u32 s{T2_}, 6", "s_cbranch_scc1 KS_RME")
        a(f"s_mul_i32 s{T3_}, s{S_WAVE}, 6", f"s_add_u32 s{T2_}, s{T2_}, s{T3_}")
        if ENV("RMD", 0): a(f"s_sleep {ENV('RMD', 0)}")
        pf_gu(a, 16, T2_, 24, PFA + 10 * NLL, PF0, 18, "KS_RME")
        a("KS_RME:")
    if DR == 3: dr_loads()
    a(f"s_mov_b32 s{S_G}, 0")
    a("KS_L2B:")
    srd(a, R0, P_WS, XBYTES, WS_UT)
    if UL:
        a("v_lshrrev_b32 v7, 1, v1", "v_lshlrev_b32 v7, 7, v7", "v_and_b32 v10, 1, v1", "v_lshl_add_u32 v7, v10, 4, v7", "v_lshlrev_b32 v9, 4, v1")
        a("v_lshrrev_b32 v13, 2, v1", "v_lshlrev_b32 v13, 7, v13", "v_and_b32 v12, 3, v1", "v_lshl_add_u32 v13, v12, 4, v13")
        a(f"s_lshl_b32 s{T0_}, s{S_WAVE}, 12", f"s_lshr_b32 s{T1_}, s{S_B2}, 1", f"s_lshl_b32 s{T2_}, s{T1_}, 8", f"s_lshl_b32 s{T1_}, s{T1_}, 14", f"s_add_u32 s{T1_}, s{T1_}, s{T0_}")
        a(f"s_and_b32 s{T3_}, s{S_B2}, 1", f"s_lshl_b32 s{T3_}, s{T3_}, 6", f"s_add_u32 s{T1_}, s{T1_}, s{T3_}")
        a(f"s_and_b32 s{T3_}, s{T2_}, 0x700", f"v_xor_b32 v13, s{T3_}, v13", f"s_and_b32 s{T2_}, s{T2_}, 0x1800", f"s_xor_b32 s{T1_}, s{T1_}, s{T2_}")
        a(f"s_xor_b32 s{T5_}, s{T1_}, 0x800")
        a(f"s_lshl_b32 s{T3_}, s{S_XC}, 3", f"s_add_u32 s{T3_}, s{T3_}, s{S_I}", f"s_add_u32 s{T3_}, s{T3_}, {512 - 24}")
        a(f"s_lshr_b32 s{T4_}, s{T3_}, 2", f"s_lshl_b32 s{T4_}, s{T4_}, 14", f"s_and_b32 s{T3_}, s{T3_}, 3", f"s_lshl_b32 s{T3_}, s{T3_}, 5")
        a(f"s_add_u32 s{T3_}, s{T3_}, s{T4_}", f"s_add_u32 s{T3_}, s{T3_}, s{T0_}")
        a(f"s_lshr_b32 s{T4_}, s{T4_}, 6", f"s_and_b32 s{T2_}, s{T4_}, 0xf00", f"v_xor_b32 v7, s{T2_}, v7", f"s_and_b32 s{T4_}, s{T4_}, 0x1000", f"s_xor_b32 s{T3_}, s{T3_}, s{T4_}")
        a(f"s_lshl_b32 s{T0_}, s{S_WAVE}, 11")
    else:
        a("v_lshrrev_b32 v7, 1, v1", "v_lshlrev_b32 v7, 6, v7", "v_and_b32 v10, 1, v1", "v_lshl_add_u32 v7, v10, 4, v7", "v_lshlrev_b32 v9, 4, v1")
        a(f"s_lshl_b32 s{T0_}, s{S_WAVE}, 11", f"s_lshl_b32 s{T1_}, s{S_B2}, 13", f"s_add_u32 s{T1_}, s{T1_}, s{T0_}")
        if SWU:
            a(f"s_lshl_b32 s{T2_}, s{S_B2}, 7", f"s_and_b32 s{T3_}, s{T2_}, 0x380", f"v_xor_b32 v13, s{T3_}, v9", f"s_and_b32 s{T2_}, s{T2_}, 0x1c00", f"s_xor_b32 s{T1_}, s{T1_}, s{T2_}")
        else: a("v_mov_b32 v13, v9")
        a(f"s_xor_b32 s{T5_}, s{T1_}, 0x400")
        a(f"s_lshl_b32 s{T3_}, s{S_XC}, 3", f"s_add_u32 s{T3_}, s{T3_}, s{S_I}", f"s_add_u32 s{T3_}, s{T3_}, {512 - 24}")
        a(f"s_lshr_b32 s{T4_}, s{T3_}, 1", f"s_lshl_b32 s{T4_}, s{T4_}, 13", f"s_and_b32 s{T3_}, s{T3_}, 1", f"s_lshl_b32 s{T3_}, s{T3_}, 5")
        a(f"s_add_u32 s{T3_}, s{T3_}, s{T4_}", f"s_add_u32 s{T3_}, s{T3_}, s{T0_}")
        if SWU:
            a(f"s_lshr_b32 s{T4_}, s{T4_}, 6", f"s_and_b32 s{T2_}, s{T4_}, 0x780", f"v_xor_b32 v7, s{T2_}, v7", f"s_and_b32 s{T4_}, s{T4_}, 0x1800", f"s_xor_b32 s{T3_}, s{T3_}, s{T4_}")
    a(f"s_cmp_lt_u32 s{S_I}, 24", f"s_cselect_b32 s{T3_}, {XBYTES}, s{T3_}", f"s_cselect_b32 s{T2_}, 0, {hex(TAGM)}")
    a(f"v_mov_b32_dpp v64, v58 quad_perm:[0,1,0,1] {DPPM}", f"v_mov_b32_dpp v65, v58 quad_perm:[2,3,2,3] {DPPM}")
    a(f"s_bitcmp1_b32 s{S_I}, 0", "s_cselect_b64 vcc, -1, 0", "v_cndmask_b32 v64, v64, v65, vcc")
    for d in range(4): a(f"v_and_b32 v{60+d}, {hex(TAGM)}, v{58-d}")
    for d in range(3, 0, -1): a(f"v_lshrrev_b32 v{64+d}, {3*d}, v64")
    for d in range(4): a(f"v_and_b32 v{64+d}, s{T2_}, v{64+d}")
    a(f"s_lshl_b32 s{T4_}, s{S_WAVE}, 10", f"s_add_u32 s{T4_}, s{T4_}, {C_U + 480}")
    a("v_bfe_u32 v11, v1, 1, 1", f"v_mul_u32_u24 v11, {U_SIZE}, v11", "v_lshl_add_u32 v11, v10, 4, v11", "v_lshrrev_b32 v10, 2, v1", "v_lshl_add_u32 v11, v10, 5, v11", f"v_add_u32 v11, s{T4_}, v11")
    a(f"v_add_u32 v10, s{T4_}, v9")
    a(f"v_mov_b32 v116, s{S_WAVE}")
    a(f"s_add_u32 s{T0_}, s{T0_}, {hex(WS_FLAG1)}", "v_lshrrev_b32 v12, 2, v1", "v_lshl_add_u32 v12, v12, 6, v59", f"v_add_u32 v12, s{T0_}, v12")
    UT = eval(os.environ.get("UT", "(8, 8, 20)"))
    a(f"s_cmp_lt_u32 s{S_I}, 8", f"s_cselect_b32 s{T2_}, {UT[0]}, {UT[1]}", f"s_cmp_ge_u32 s{S_I}, 24", f"s_cselect_b32 s{T2_}, {UT[2]}, s{T2_}", f"v_mov_b32 v14, s{T2_}")
    a("s_setprio 0")
    if not ENV("NOW", 1): a("s_waitcnt vmcnt(0)")
    a(f"ds_write_b8 v116, v{VONE} offset:{FL_UTOK + 4}")
    stamp(a, 8)
    if DR:
        a(f"s_cmp_ge_u32 s{S_I}, {2 if RM else 8}", "s_cbranch_scc1 KS_DR1")
        a(f"s_mul_i32 s{T2_}, s{S_WAVE}, 9216", f"s_add_u32 s{T2_}, s{T2_}, {C_DOWN}", f"v_lshl_add_u32 v19, v1, 4, s{T2_}")
        lds_wait(a, FL_G + 36, 8, "b4", sleep=2)
        a("s_waitcnt vmcnt(0)")
        for k in range(9): a(f"ds_write_b128 v19, v[{68+4*k}:{71+4*k}] offset:{1024*k}")
        a("KS_DR1:")
    lds_wait(a, FL_G, 8, "b4", addr=14, sleep=2)
    a("s_setprio 3")
    stamp(a, 5)
    if ENV("UDELAY", 0): a(f"s_sleep {ENV('UDELAY', 0)}")
    lp = newlabel("UP"); l1 = newlabel("UPE")
    UM = os.environ.get("UMOD", "sc1").replace("_", " ")
    MK = [6, 8, 10, 12]
    if ENV("MPOLL", 0):
        for m in MK: a(f"s_mov_b64 s[{m}:{m+1}], -1")
        a(f"s_mov_b32 s{SP0}, {hex(TAGM)}")
    a(f"s_branch {l1}")
    a(f"{lp}:")
    a(f"s_sleep {ENV('USLEEP', 2)}")
    a(f"{l1}:")
    if ENV("MPOLL", 0):
        lds = [f"buffer_load_dwordx4 v[20:23], v13, s[{R0}:{R0+3}], s{T1_} offen {UM}", f"buffer_load_dwordx4 v[24:27], v13, s[{R0}:{R0+3}], s{T5_} offen {UM}",
               f"buffer_load_dwordx4 v[28:31], v7, s[{R0}:{R0+3}], s{T3_} offen {UM}"]
        for k in range(3): a(f"s_mov_b64 exec, s[{MK[k]}:{MK[k]+1}]", lds[k])
        a(f"s_mov_b64 exec, s[{MK[3]}:{MK[3]+1}]")
        a(f"global_load_dword v32, v12, s[{P_WS}:{P_WS+1}] sc1", f"global_load_dword v33, v12, s[{P_WS}:{P_WS+1}] offset:1024 sc1")
        guard(a)
        for k in range(3):
            a(f"s_mov_b64 exec, s[{MK[k]}:{MK[k]+1}]", f"s_waitcnt vmcnt({4-k})")
            for d in range(4): a(f"v_xor_b32 v{20+4*k+d}, v{(64 if k == 2 else 60)+d}, v{20+4*k+d}")
            a(f"v_or3_b32 v44, v{20+4*k}, v{21+4*k}, v{22+4*k}", f"v_bitop3_b32 v44, v44, v{23+4*k}, s{SP0} bitop3:0xa8", f"v_cmp_ne_u32 s[{MK[k]}:{MK[k]+1}], 0, v44")
        a(f"s_mov_b64 exec, s[{MK[3]}:{MK[3]+1}]", "s_waitcnt vmcnt(0)")
        a("v_xor_b32 v32, v58, v32", "v_bitop3_b32 v32, v32, v58, v33 bitop3:0xf6", f"v_cmp_ne_u32 s[{MK[3]}:{MK[3]+1}], 0, v32")
        a(f"s_or_b64 vcc, s[{MK[0]}:{MK[0]+1}], s[{MK[1]}:{MK[1]+1}]", f"s_or_b64 vcc, vcc, s[{MK[2]}:{MK[2]+1}]", f"s_or_b64 vcc, vcc, s[{MK[3]}:{MK[3]+1}]", f"s_cbranch_scc1 {lp}")
        a("s_mov_b64 exec, -1")
    else:
        if not FLD: a(f"global_load_dword v32, v12, s[{P_WS}:{P_WS+1}] {MOD('FMOD')}", f"global_load_dword v33, v12, s[{P_WS}:{P_WS+1}] offset:1024 {MOD('FMOD')}")
        a(f"buffer_load_dwordx4 v[20:23], v13, s[{R0}:{R0+3}], s{T1_} offen {UM}")
        a(f"buffer_load_dwordx4 v[24:27], v13, s[{R0}:{R0+3}], s{T5_} offen {UM}")
        a(f"buffer_load_dwordx4 v[28:31], v7, s[{R0}:{R0+3}], s{T3_} offen {UM}")
        guard(a)
        for k in range(3):
            a(f"s_waitcnt vmcnt({2-k})")
            if k == 0 and not FLD: a("v_xor_b32 v32, v58, v32", "v_xor_b32 v33, v58, v33")
            for d in range(4): a(f"v_xor_b32 v{20+4*k+d}, v{(64 if k == 2 else 60)+d}, v{20+4*k+d}")
            a(f"v_or3_b32 v44, v{20+4*k}, v{21+4*k}, v{44 if k else 21}", f"v_or3_b32 v44, v{22+4*k}, v{23+4*k}, v44")
        a(f"v_and_b32 v44, {hex(TAGM)}, v44")
        if not FLD: a("v_or3_b32 v44, v44, v32, v33")
        a("v_cmp_ne_u32 vcc, 0, v44", f"s_cbranch_vccnz {lp}")
    stamp(a, 6)
    a("ds_write_b128 v11, v[20:23]", "ds_write_b128 v11, v[24:27] offset:512", f"ds_write_b128 v10, v[28:31] offset:{2*U_SIZE}")
    a(f"ds_write_b8 v116, v{VONE} offset:{FL_UF}")
    stamp(a, 7)
    gen_wjobs(a)
    a("s_setprio 0")
    LG = ENV("LG", 0)
    def lgate(): lds_wait(a, FL_S6 + ENV("LGB", 3), 12, "u8", sleep=ENV("LGS", 3))
    if LG == 2: lgate()
    a(f"s_lshr_b32 s{T0_}, s{S_B2}, 6", f"s_lshl_b32 s{T0_}, s{T0_}, 9")
    a(f"s_bfe_u32 s{T1_}, s{S_B2}, 0x20004", f"s_lshl_b32 s{T1_}, s{T1_}, 6", f"s_add_u32 s{T0_}, s{T0_}, s{T1_}")
    a(f"s_and_b32 s{T1_}, s{S_B2}, 3", f"s_lshl_b32 s{T1_}, s{T1_}, 4", f"s_add_u32 s{T0_}, s{T0_}, s{T1_}")
    a(f"s_and_b32 s{T1_}, s{S_B2}, 12", f"s_add_u32 s{T0_}, s{T0_}, s{T1_}")
    a(f"s_lshr_b32 s{T1_}, s{S_WAVE}, 1", f"s_lshl_b32 s{T1_}, s{T1_}, 8", f"s_add_u32 s{T0_}, s{T0_}, s{T1_}")
    a(f"s_and_b32 s{T1_}, s{S_WAVE}, 1", f"s_lshl_b32 s{T1_}, s{T1_}, 1", f"s_add_u32 s{T0_}, s{T0_}, s{T1_}")
    a("v_lshrrev_b32 v113, 5, v1", "v_and_b32 v114, 31, v1")
    a(f"v_add_u32 v112, s{T0_}, v113")
    a("v_mul_u32_u24 v115, 1152, v112", "v_lshl_add_u32 v8, v114, 2, v115", "v_lshl_add_u32 v115, v114, 4, v115", "v_lshlrev_b32 v7, 2, v114", "v_lshlrev_b32 v6, 4, v114")
    a(f"v_bfe_u32 v111, v1, 3, 1", f"v_add_u32 v111, s{T0_}, v111", "v_mul_u32_u24 v111, 1152, v111", "v_and_b32 v9, 7, v1", "v_lshl_add_u32 v111, v9, 4, v111")
    srd(a, R0, P_X, XBYTES)
    srd(a, R1, P_WR, 1152)
    a(f"buffer_load_dwordx4 v[10:13], v115, s[{R0}:{R0+3}], 0 offen")
    a(f"buffer_load_dwordx4 v[14:17], v115, s[{R0}:{R0+3}], 0 offen offset:512")
    a(f"buffer_load_dword v18, v8, s[{R0}:{R0+3}], 0 offen offset:1024")
    a(f"buffer_load_dwordx4 v[50:53], v6, s[{R1}:{R1+3}], 0 offen")
    a(f"buffer_load_dwordx4 v[54:57], v6, s[{R1}:{R1+3}], 0 offen offset:512")
    a(f"buffer_load_dword v58, v7, s[{R1}:{R1+3}], 0 offen offset:1024")
    if not PTAG:
        a(f"s_cmp_lt_u32 s{S_FI}, 18", "s_cbranch_scc1 KS_L4")
        a(f"s_mul_i32 s{T0_}, s{S_XC}, 14", f"s_add_u32 s{T0_}, s{T0_}, s{S_I}", f"s_mul_i32 s{T0_}, s{T0_}, {CLRP_WG}", f"s_add_u32 s{T0_}, s{T0_}, {hex(WS_PART - 18*CLRP_WG)}")
        a(f"s_add_u32 s{R1}, s{P_WS}, s{T0_}", f"s_addc_u32 s{R1+1}, s{P_WS+1}, 0", f"s_mov_b32 s{R1+2}, {CLRP_WG}", f"s_mov_b32 s{R1+3}, 0x20000")
        a("v_lshlrev_b32 v6, 4, v0", "v_mov_b32 v60, -1", "v_mov_b32 v61, -1", "v_mov_b32 v62, -1", "v_mov_b32 v63, -1")
        for k in range(6):
            a(f"s_movk_i32 s{T0_}, {4096*k}")
            a(f"buffer_store_dwordx4 v[60:63], v6, s[{R1}:{R1+3}], s{T0_} offen sc1")
    a("KS_L4:")
    if LG == 1: lds_wait(a, FL_S6 + ENV("LGB", 3), 60, "u8", sleep=ENV("LGS", 3))
    srd(a, R0, P_WS, 0x240000, WS_ZB1)
    srd(a, R1, P_OUT, XBYTES)
    srd(a, R2_, P_WS, XBYTES, WS_X2)
    srd(a, R3, P_WS, 16384, WS_KEYS)
    if not XCL:
        for d in range(4): a(f"v_mov_b32 v{60+d}, -1")
        a(f"buffer_store_dwordx4 v[60:63], v115, s[{R2_}:{R2_+3}], 0 offen sc1")
        a(f"buffer_store_dwordx4 v[60:63], v115, s[{R2_}:{R2_+3}], 0 offen offset:512 sc1")
        a("s_mov_b64 exec, 0xffff")
        a(f"buffer_store_dwordx4 v[60:63], v111, s[{R2_}:{R2_+3}], 0 offen offset:1024 sc1")
        a("s_mov_b64 exec, -1")
    a(f"s_not_b32 s{T1_}, s{S_B2}", f"v_xor_b32 v8, s{T1_}, v0")
    a("v_lshrrev_b32 v6, 1, v0", "v_lshlrev_b32 v6, 6, v6", "v_and_b32 v8, 1, v8", "v_lshl_add_u32 v6, v8, 4, v6")
    a(f"s_lshr_b32 s{T0_}, s{S_B2}, 2", f"s_lshl_b32 s{T0_}, s{T0_}, 15", f"s_and_b32 s{T1_}, s{S_B2}, 1", f"s_lshl_b32 s{T1_}, s{T1_}, 14", f"s_add_u32 s{T0_}, s{T0_}, s{T1_}")
    a(f"s_and_b32 s{T1_}, s{S_B2}, 2", f"s_lshl_b32 s{T1_}, s{T1_}, 4", f"s_add_u32 s{T0_}, s{T0_}, s{T1_}")
    a(f"s_lshr_b32 s{T2_}, s{S_B2}, 2", f"s_lshl_b32 s{T2_}, s{T2_}, 12", f"s_and_b32 s{T1_}, s{S_B2}, 3", f"s_lshl_b32 s{T1_}, s{T1_}, 4")
    a(f"s_add_u32 s{T2_}, s{T2_}, s{T1_}", f"s_lshl_b32 s{T1_}, s{S_WAVE}, 10", f"s_add_u32 s{T2_}, s{T2_}, s{T1_}", f"s_add_u32 s{T2_}, s{T2_}, 0x200000")
    a("v_lshlrev_b32 v9, 6, v2")
    if SWZ:
        a(f"s_lshl_b32 s{T1_}, s{S_B2}, 5", f"s_and_b32 s{T3_}, s{T1_}, 0x1f80", f"v_xor_b32 v6, s{T3_}, v6", f"s_and_b32 s{T3_}, s{T1_}, 0x380", f"v_xor_b32 v9, s{T3_}, v9")
        a(f"s_and_b32 s{T3_}, s{T1_}, 0xc00", f"s_xor_b32 s{T2_}, s{T2_}, s{T3_}", f"s_and_b32 s{T1_}, s{S_B2}, 1", f"s_lshl_b32 s{T1_}, s{T1_}, 13", f"s_xor_b32 s{T0_}, s{T0_}, s{T1_}")
    a(f"s_xor_b32 s{T1_}, s{T0_}, 0x2000")
    a(f"s_mul_i32 s{T3_}, s{S_WAVE}, 2304", f"s_add_u32 s{T3_}, s{T3_}, {C_XR}", f"v_lshl_add_u32 v117, v114, 5, s{T3_}", f"v_lshl_add_u32 v110, v114, 3, s{T3_}")
    a(f"s_lshl_b32 s{T3_}, s{S_WAVE}, 9", f"s_add_u32 s{T3_}, s{T3_}, {C_RED}", f"v_lshl_add_u32 v108, v1, 2, s{T3_}", f"v_lshl_add_u32 v109, v1, 4, s{T3_}")
    SD2 = ENV("SD2", 1)
    if SD2: a("v_lshlrev_b32 v118, 4, v113", f"s_movk_i32 s{T3_}, 0x3f80", f"v_lshlrev_b32 v118, v118, s{T3_}")
    else: a(f"s_mov_b32 s{T3_}, 0x02020000", f"v_mul_lo_u32 v118, v113, s{T3_}", "v_add_u32 v118, 0x01000c0c, v118")
    a(f"v_lshlrev_b32 v8, 2, v0", f"v_add_u32 v8, {C_XR}, v8")
    a(f"s_lshl_b32 s{T3_}, s{S_WAVE}, 6", f"s_add_u32 s{T3_}, s{T3_}, {C_XR + 2048}", f"v_lshl_add_u32 v119, v2, 2, s{T3_}")
    a("s_waitcnt vmcnt(0)")
    X = 20
    for j in range(9): unpack(a, X + 2 * j, 10 + j)
    WU, WS_ = 80, 78
    for j in range(9): unpack(a, WU + 2 * j, 50 + j)
    a(f"v_pk_add_f32 v[{WS_}:{WS_+1}], v[{WU}:{WU+1}], v[{WU+2}:{WU+3}]")
    for j in range(2, 9): a(f"v_pk_add_f32 v[{WS_}:{WS_+1}], v[{WS_}:{WS_+1}], v[{WU+2*j}:{WU+2*j+1}]")
    a(f"v_add_f32 v{WS_}, v{WS_}, v{WS_+1}")
    red32(a, "v_add_f32", WS_, WS_ + 1)
    a("v_sub_u32 v98, 0x87ff, v112", "v_lshl_add_u32 v99, v116, 1, v113", "v_lshlrev_b32 v99, 2, v99")
    ZG2 = ENV("ZG2", 0)
    if KD: a(f"s_lshl_b32 s{T5_}, s{S_B2}, 5")
    if ZG2 == 3:
        if ENV("ZGT", 0) < 2: lds_wait(a, {0: FL_ZDONE, 1: FL_ZISS}[ENV("ZGT", 0)], 60, "b4", sleep=1)
        if ENV('ZGS', 0x10000):
            a("s_mov_b32 exec_lo, 0", f"s_mov_b32 exec_hi, {hex(ENV('ZGS', 0x10000))}")
            zpoll(a, [f"buffer_load_dwordx4 v[68:71], v6, s[{R0}:{R0+3}], s{T0_} offen sc1"], list(range(68, 72)), ENV("ZSLEEP2", 2))
            a("s_mov_b64 exec, -1")
        else:
            zpoll(a, [f"buffer_load_dwordx4 v[68:71], v{VZ}, s[{R0}:{R0+3}], s{T2_} offen sc1"], list(range(68, 72)), ENV("ZSLEEP2", 2))
        if ENV("ZDELAY", 0): a(f"s_sleep {ENV('ZDELAY', 0)}")
        lds_wait(a, FL_ZISS, 60, "b4")
        if ENV("ZDELAY2", 0): a(f"s_sleep {ENV('ZDELAY2', 0)}")
    elif ZG2:
        lds_wait(a, {1: FL_ZDONE, 2: FL_ZISS}[ZG2], 60, "b4", sleep=1)
        zpoll(a, [f"buffer_load_dwordx4 v[68:71], v{VZ}, s[{R0}:{R0+3}], s{T2_} offen sc1"], list(range(68, 72)), ENV("ZSLEEP2", 2))
    ZT = ENV("ZT", 0)
    def blank():
        for k in range(3): a(f"buffer_store_dwordx4 v[100:103], v104, s[{R4}:{R4+3}], 0 offen offset:{1024*k} sc1")
    if BT:
        a(f"s_sub_u32 s{T3_}, s{S_I}, 8", f"s_cmp_lt_u32 s{T3_}, 16", f"s_cselect_b32 s{R4+2}, 10624, 0", f"s_and_b32 s{T3_}, s{T3_}, 15", f"s_lshl_b32 s{T3_}, s{T3_}, 3", f"s_add_u32 s{T3_}, s{T3_}, s{S_XC}")
        a(f"s_mul_i32 s{T3_}, s{T3_}, 10624", f"s_add_u32 s{T3_}, s{T3_}, {hex(WS_PART)}", f"s_add_u32 s{R4}, s{P_WS}, s{T3_}", f"s_addc_u32 s{R4+1}, s{P_WS+1}, 0", f"s_mov_b32 s{R4+3}, 0x20000")
        a(f"s_mul_i32 s{T3_}, s{S_WAVE}, 3072", f"v_lshl_add_u32 v104, v1, 4, s{T3_}")
        for d in range(4): a(f"v_mov_b32 v{100+d}, -1")
        if BT == 2: lds_wait(a, FL_ZDONE, 60, "b4", sleep=1)
        if BT == 4: lds_wait(a, FL_ZISS, 60, "b4", sleep=1)
        if BT in (1, 2, 4): blank()
    if ZT:
        lds_wait(a, FL_ZISS, 60, "b4", sleep=1)
        a(f"s_movk_i32 s{T3_}, {ZT}", f"s_setprio {ENV('ZTP', 0)}")
        a("KS_ZT:")
        a("s_sleep 1", f"ds_read_b32 v60, v{VZ} offset:{FL_ZDONE + 4}", f"s_sub_u32 s{T3_}, s{T3_}, 1", "s_cbranch_scc1 KS_ZL")
        a("s_waitcnt lgkmcnt(0)", f"v_cmp_ne_u32 vcc, s{S_ONES}, v60", "s_cbranch_vccnz KS_ZT")
    elif ZM:
        lds_wait(a, FL_KACK, 60, "nz", sleep=1)
        lds_wait(a, FL_ZISS, 60, "b4", sleep=0)
    elif ZG2 != 3: lds_wait(a, FL_ZDONE + 4, 60, "b4", sleep=1)
    a("s_setprio 3")
    if PFD2 > PFD:
        W3 = ENV("PF3W", 6)
        a(f"s_sub_u32 s{T5_}, s{S_I}, 18", f"s_cmp_ge_u32 s{T5_}, {W3}", "s_cbranch_scc1 KS_PF3E", f"s_cmp_lg_u32 s{S_WAVE}, 2", "s_cbranch_scc1 KS_PF3E")
        pf_down(a, T5_, W3, PFD, PFD2, 100, 120, "KS_PF3E", R4)
        a("KS_PF3E:")
    stamp2(a, 1)
    if ENV("ZGATE", 1) and not ZG2 and not ZM:
        if BT == 3: blank()
        ZGC = ENV("ZGC", 0)
        if ZGC == 1: a(f"s_cmp_ge_u32 s{S_I}, 24", "s_cbranch_scc1 KS_ZGC")
        if ZGC == 2: a(f"s_sub_u32 s{T3_}, s{S_I}, 8", f"s_cmp_ge_u32 s{T3_}, 16", "s_cbranch_scc1 KS_ZGC")
        zpoll(a, [f"buffer_load_dwordx4 v[68:71], v{VZ}, s[{R0}:{R0+3}], s{T2_} offen sc1"], list(range(68, 72)), ENV("ZSLEEP", 1))
        if ENV("ZDELAY", 0): a(f"s_sleep {ENV('ZDELAY', 0)}")
        if ZGC: a("KS_ZGC:")
    lp = newlabel("ZP"); l1 = newlabel("ZPE")
    a(f"s_branch {l1}", f"{lp}:", f"s_sleep {ENV('ZSLEEP', 1)}")
    if ZT: a("KS_ZL:", "s_setprio 3", "s_waitcnt lgkmcnt(0)")
    a(f"{l1}:")
    a(f"buffer_load_dwordx4 v[60:63], v6, s[{R0}:{R0+3}], s{T0_} offen sc1",
      f"buffer_load_dwordx4 v[64:67], v6, s[{R0}:{R0+3}], s{T1_} offen sc1",
      f"buffer_load_dwordx4 v[68:71], v9, s[{R0}:{R0+3}], s{T2_} offen sc1")
    guard(a)
    for k in range(3):
        a(f"s_waitcnt vmcnt({2-k})")
        ad, o = (8, 4 * k) if k < 2 else (119, 0)
        a(f"ds_write2st64_b32 v{ad}, v{60+4*k}, v{61+4*k} offset0:{o} offset1:{9+o}")
        a(f"ds_write2st64_b32 v{ad}, v{62+4*k}, v{63+4*k} offset0:{18+o} offset1:{27+o}")
        a(f"v_max3_u32 v44, v{60+4*k}, v{61+4*k}, v{44 if k else 61}", f"v_max3_u32 v44, v{62+4*k}, v{63+4*k}, v44")
    a("v_cmp_eq_u32 vcc, -1, v44", f"s_cbranch_vccnz {lp}")
    a(f"ds_write_b8 v116, v{VONE} offset:{FL_ZF}")
    stamp2(a, 3)
    lp = newlabel("ZW")
    a(f"{lp}:")
    a(f"ds_read_b32 v44, v{VZ} offset:{FL_ZF}")
    for k in range(4):
        a(f"ds_read_b128 v[{60+4*k}:{63+4*k}], v117 offset:{1024*(k>>1) + 16*(k&1)}")
    a("ds_read_b64 v[76:77], v110 offset:2048")
    guard(a)
    a("s_waitcnt lgkmcnt(5)")
    a(f"v_cmp_ne_u32 vcc, s{S_ONES}, v44", f"s_cbranch_vccnz {lp}")
    def hsum(j):
        if j % 2 == 0: a(f"s_waitcnt lgkmcnt({4-j//2})")
        for e in range(2): a(f"v_dot2c_f32_bf16 v{X+2*j+e}, v{60+2*j+e}, v118")
    if SD2: hsum(0); hsum(1)
    for j in range(9):
        h = f"v[{X+2*j}:{X+2*j+1}]"
        if SD2:
            if j < 7: hsum(j + 2)
        else:
            if j % 2 == 0: a(f"s_waitcnt lgkmcnt({4-j//2})")
            a(f"v_perm_b32 v{60+2*j}, v{60+2*j}, v{60+2*j}, v118", f"v_perm_b32 v{61+2*j}, v{61+2*j}, v{61+2*j}, v118")
            a(f"v_pk_add_f32 {h}, v[{60+2*j}:{61+2*j}], {h}")
        if j == 0: a(f"v_pk_mul_f32 v[42:43], {h}, {h}", f"v_pk_mul_f32 v[44:45], {h}, v[{WU}:{WU+1}]")
        else:
            a(f"v_pk_fma_f32 v[42:43], {h}, {h}, v[42:43]", f"v_pk_fma_f32 v[44:45], {h}, v[{WU+2*j}:{WU+2*j+1}], v[44:45]")
            a(f"v_pk_add_f32 v[40:41], {h}, " + (f"v[{X}:{X+1}]" if j == 1 else "v[40:41]"))
    a("v_add_f32 v42, v42, v43", "v_add_f32 v44, v44, v45", "v_add_f32 v40, v40, v41")
    a("v_mov_b32 v41, v40", "v_permlane16_swap_b32 v42, v44", "v_permlane16_swap_b32 v40, v41")
    a("v_add_f32 v42, v42, v44", "v_add_f32 v40, v40, v41")
    for r in (8, 4, 2, 1):
        a(f"v_add_f32_dpp v42, v42, v42 row_ror:{r} {DPPM}", f"v_add_f32_dpp v40, v40, v40 row_ror:{r} {DPPM}")
    a(f"v_mul_f32 v40, {f32(1.0/576)}, v40", "v_mov_b32 v44, v42")
    a("v_cvt_pk_bf16_f32 v41, 0, v40", "v_mul_f32 v40, v40, v40")
    a("v_permlane16_swap_b32 v42, v44")
    a(f"v_mov_b32 v43, {f32(1.0/576)}", "v_fma_f32 v42, v42, v43, -v40", f"v_fma_f32 v44, -v41, v{WS_}, v44", "v_max_f32 v42, 0, v42")
    a(f"v_cvt_pk_bf16_f32 v42, 0, v42", f"v_add_f32 v42, {f32(1e-5)}, v42")
    a(f"v_cvt_pk_bf16_f32 v42, 0, v42", "v_sqrt_f32 v42, v42")
    a(f"v_cvt_pk_bf16_f32 v42, 0, v42", "v_rcp_f32 v42, v42")
    a("v_mul_f32 v60, v44, v42")
    a("v_cvt_pk_bf16_f32 v60, v60, v60")
    a("v_ashrrev_i32 v61, 31, v60", "v_or_b32 v61, 0x80000000, v61", f"s_mov_b32 s{T3_}, 0xffff0000", "v_xor_b32 v60, v60, v61", f"v_and_or_b32 v60, v60, s{T3_}, v98")
    if KD == 2:
        a("v_mov_b32 v61, v60", "v_permlane32_swap_b32 v60, v61", "s_mov_b64 exec, 1")
        a(f"buffer_store_dwordx2 v[60:61], v99, s[{R3}:{R3+3}], s{T5_} offen sc1")
        a(f"ds_write_b8 v116, v{VONE} offset:{FL_KCNT}")
    else:
        a("s_mov_b32 exec_lo, 1", "s_mov_b32 exec_hi, 1")
        if KD:
            a(f"buffer_store_dword v60, v99, s[{R3}:{R3+3}], s{T5_} offen sc1")
            a(f"ds_write_b8 v116, v{VONE} offset:{FL_KCNT}")
        else: a(f"ds_write_b32 v99, v60 offset:{C_KEY}")
    a("s_mov_b64 exec, -1")
    stamp2(a, 4)
    a(f"s_setprio {ENV('L2PRIO', 2)}")
    if XT:
        a("v_max_u32 v62, v60, v61", f"v_readfirstlane_b32 s{T4_}, v62", f"s_cmp_ge_u32 s{T4_}, 0xC1000000", f"s_cselect_b32 s{R2_+2}, s{R2_+2}, 0", f"s_cselect_b32 s{S_G}, 1, 0")
    for j in range(9):
        rnd2(a, X + 2 * j)
    ln_stats(a, X, 40, 42, 44, 46, 48)
    for j in range(9):
        ln_apply_pair(a, X + 2 * j, 40, 42, 44, 10 + j)
        a(f"v_pk_add_f32 v[{X+2*j}:{X+2*j+1}], v[44:45], v[{X+2*j}:{X+2*j+1}]")
        if XCL != 2: a(f"v_min_u32 v{10+j}, -2, v{10+j}")
    a(f"v_cvt_pk_bf16_f32 v58, v{X+16}, v{X+17}")
    a("ds_write_b32 v108, v18", "ds_write_b32 v108, v58 offset:256", "ds_read_b128 v[64:67], v109")
    a(f"buffer_store_dwordx4 v[10:13], v115, s[{R2_}:{R2_+3}], 0 offen sc1")
    a(f"buffer_store_dwordx4 v[14:17], v115, s[{R2_}:{R2_+3}], 0 offen offset:512 sc1")
    for j in range(8):
        a(f"v_cvt_pk_bf16_f32 v{50+j}, v{X+2*j}, v{X+2*j+1}")
    a("s_mov_b64 exec, 0xffff")
    a("s_waitcnt lgkmcnt(0)")
    a(f"buffer_store_dwordx4 v[64:67], v111, s[{R2_}:{R2_+3}], 0 offen offset:1024 sc1")
    def out_st():
        a("s_mov_b64 exec, 0xffff0000")
        a(f"buffer_store_dwordx4 v[64:67], v111, s[{R1}:{R1+3}], 0 offen offset:1024 sc1")
        a("s_mov_b64 exec, -1")
        a(f"buffer_store_dwordx4 v[50:53], v115, s[{R1}:{R1+3}], 0 offen sc1")
        a(f"buffer_store_dwordx4 v[54:57], v115, s[{R1}:{R1+3}], 0 offen offset:512 sc1")
    WTD, BS0, BS1, BC0, BC1 = 80, 8, 9, 10, 11
    def b_addr():
        srd(a, R4, P_WS, PART_BYTES, WS_PART)
        a("v_bfe_u32 v16, v1, 2, 2", "v_lshl_add_u32 v16, v3, 3, v16", "v_mul_u32_u24 v16, 1152, v16", "v_and_b32 v17, 3, v1", "v_lshl_add_u32 v16, v17, 3, v16")
        a(f"s_lshl_b32 s{BC0}, s{S_WAVE}, 7", f"s_add_u32 s{BC1}, s{BC0}, {C_DOWN}", f"v_add_u32 v16, s{BC1}, v16")
        a("v_lshrrev_b32 v18, 2, v1", f"v_mul_u32_u24 v18, {PROW}, v18", "v_lshl_add_u32 v18, v17, 4, v18")
        a(f"s_mul_i32 s{BS1}, s{S_WAVE}, {16*PROW}", f"s_lshl_b32 s{BC1}, s{S_BLK}, 6", f"s_add_u32 s{BS1}, s{BS1}, s{BC1}")
        a(f"v_lshl_add_u32 v19, v17, 5, s{BC0}", "v_lshl_add_u32 v19, v3, 3, v19")
        a(f"s_mul_i32 s{BS0}, s{S_BLK}, {PROW}", f"s_lshl_b32 s{BC1}, s{S_WAVE}, 10", f"s_add_u32 s{BS0}, s{BS0}, s{BC1}")
        a(f"s_movk_i32 s{BC0}, 0x3f80", f"s_mov_b32 s{BC1}, 0x3f800000", "v_mov_b32 v28, 0", "v_mov_b32 v29, 0", "v_lshlrev_b32 v17, 4, v1")
    def b_frags():
        lds_wait(a, FL_DOWN, 20, "b4", sleep=ENV("BFS", 0))
        for jt in range(4):
            a(f"ds_read_b64_tr_b16 v[{WTD+4*jt}:{WTD+4*jt+1}], v16 offset:{32*jt}")
            a(f"ds_read_b64_tr_b16 v[{WTD+4*jt+2}:{WTD+4*jt+3}], v16 offset:{32*jt + 4608}")
        a("v_and_b32 v16, 7, v2", "v_lshlrev_b32 v16, 6, v16", "v_lshl_add_u32 v16, v3, 4, v16")
    a("s_mov_b64 exec, -1", "s_setprio 0")
    b_addr()
    a(f"s_cmp_ge_u32 s{S_FI}, 18", "s_cbranch_scc1 KS_LO")
    b_frags()
    def own_blank():
        a(f"s_mul_i32 s{T0_}, s{S_BLK}, {PROW}", f"s_add_u32 s{T0_}, s{T0_}, {hex(WS_PART)}", f"s_add_u32 s{R0}, s{P_WS}, s{T0_}", f"s_addc_u32 s{R0+1}, s{P_WS+1}, 0")
        a(f"s_cmp_lt_u32 s{S_FI}, 18", f"s_cselect_b32 s{R0+2}, 9216, 0", f"s_mov_b32 s{R0+3}, 0x20000", f"s_mul_i32 s{T0_}, s{S_WAVE}, 3072", "v_lshlrev_b32 v8, 4, v1")
        for d in range(4): a(f"v_mov_b32 v{60+d}, -1")
        for k in range(3): a(f"buffer_store_dwordx4 v[60:63], v8, s[{R0}:{R0+3}], s{T0_} offen offset:{1024*k} sc1")
    def flag(cnt, off):
        l = newlabel("NOF")
        a("s_waitcnt vmcnt(0)")
        a("s_mov_b64 exec, 1")
        a(f"ds_add_rtn_u32 v62, v{VZ}, v{VONE} offset:{cnt}")
        a(f"s_lshl_b32 s{T0_}, s2, 4", f"s_add_u32 s{T0_}, s{T0_}, {off}")
        a("s_waitcnt lgkmcnt(0)")
        a("v_cmp_eq_u32 vcc, 3, v62", "s_and_b64 exec, exec, vcc", f"s_cbranch_execz {l}")
        a(f"buffer_store_dword v{VONE}, v{VZ}, s[{R3}:{R3+3}], s{T0_} offen sc1")
        a(f"{l}:")
        a("s_mov_b64 exec, -1")
    if F3:
        if ENV("OD1", 0): a(f"s_sleep {ENV('OD1', 0)}")
        own_blank()
        flag(FL_KSEEN, 8192)
        a(f"s_sleep {ENV('OD2', 16)}", "s_branch KS_LO2")
        a("KS_LO:")
        a(f"s_sleep {ENV('OD3', 8)}")
        flag(FL_KSEEN, 8192)
        a(f"s_sleep {ENV('OD', 34) - ENV('OD3', 8) - 2}")
        a("KS_LO2:")
        out_st()
    else:
        a(f"s_sleep {ENV('OD', 24) - ENV('ODF', 2)}", "s_branch KS_LO2")
        a("KS_LO:")
        a(f"s_sleep {ENV('OD', 24)}")
        a("KS_LO2:")
        out_st()
        if not BT: own_blank()
    stamp2(a, 5)
    a("s_setprio 2")
    flag(FL_F2CNT, 12288 if F3 else 8192)
    stamp2(a, 2)
    a(f"s_cmp_lt_u32 s{S_FI}, 18", "s_cbranch_scc1 KS_B")
    a("s_waitcnt lgkmcnt(0)")
    endwave(a)
    a("KS_T:")
    a("s_setprio 0")
    a(f"s_cmp_ge_u32 s{S_WAVE}, 10", "s_cbranch_scc1 KS_PEND")
    srd(a, R3, P_WS, 16384, WS_KEYS)
    a(f"s_cmp_eq_u32 s{S_WAVE}, 9", "s_cbranch_scc1 KS_W9")
    b_addr()
    srd(a, R2_, P_WS, XBYTES, WS_X2)
    TGV, CKA = 8, 12
    a("v_and_b32 v6, 1, v1", "v_and_b32 v7, 1, v3", "v_lshl_add_u32 v6, v7, 1, v6", "v_lshlrev_b32 v6, 2, v6", f"ds_read_b32 v{TGV}, v6 offset:{FL_NONCE}")
    a(f"s_lshl_b32 s{T0_}, s{S_WAVE}, 11", f"s_add_u32 s{T0_}, s{T0_}, {C_XR - 4*2048}", f"v_add_u32 v{CKA}, s{T0_}, v17")
    a("s_waitcnt lgkmcnt(0)")
    for d in range(1, 4): a(f"v_lshrrev_b32 v{TGV+d}, {3*d}, v{TGV}")
    def chk(c, t):
        a(f"v_xor_b32 v{t}, v{TGV}, v{c}")
        for d in range(1, 4): a(f"v_bitop3_b32 v{t}, v{t}, v{TGV+d}, v{c+d} bitop3:0xf6")
        a(f"v_and_b32 v{t}, {hex(TAGM)}, v{t}")
    a(f"s_cmp_eq_u32 s{S_WAVE}, 8", "s_cbranch_scc1 KS_L2W")
    b_frags()
    lds_wait(a, C_SEL, 20, "nz", sleep=2)
    a("s_setprio 1")
    lds_wait(a, FL_XRDY, 20, "nz", sleep=1)
    a(f"ds_read_b128 v[20:23], v{CKA}", f"ds_read_b128 v[24:27], v{CKA} offset:1024")
    a("s_waitcnt lgkmcnt(1)"); chk(20, 13)
    a("s_waitcnt lgkmcnt(0)"); chk(24, 14)
    a("v_min_u32 v13, v13, v14")
    a("KS_CK:")
    a("v_cmp_eq_u32 vcc, 0, v13")
    if not ENV("XBAD", 0): a("s_cbranch_vccz KS_B")
    a(f"ds_write_b32 v{VZ}, v{VONE} offset:{FL_BAD}")
    a("s_branch KS_B")
    a("KS_L2W:")
    K, AD, BS, A1, A2, B1, B2, TA, TB, M2, OFF, OLD, C, T8, RA = 96, 40, 41, 42, 43, 44, 45, 46, 47, 56, 57, 58, 59, 60, 61
    x, y, w, t = (48, 49), (50, 51), (52, 53), (54, 55)
    a(f"s_movk_i32 s{T0_}, 4096", f"s_movk_i32 s{T4_}, -1152", f"s_mov_b32 s{T1_}, 0", f"v_mov_b32 v{OFF}, 0")
    a(f"v_and_b32 v{BS}, 1, v1", f"v_lshl_add_u32 v{BS}, v3, 1, v{BS}", f"v_lshlrev_b32 v{BS}, 4, v{BS}", f"v_add_u32 v{BS}, {2047*1152}, v{BS}")
    a("v_lshlrev_b32 v7, 1, v1", "v_and_b32 v7, 28, v7")
    if ENV("KWP", 1): lds_wait(a, FL_ZF, 20, "b4", sleep=2); a("s_setprio 3")
    lds_wait(a, FL_KCNT, 20, "b4", sleep=1)
    a("s_setprio 3")
    if ENV('KDELAY', 27): a(f"s_sleep {ENV('KDELAY', 27)}")
    stamp2(a, 4)
    a("s_branch KS_Q1", "KS_Q0:", f"s_sleep {ENV('KSLEEP', 1)}", "KS_Q1:")
    for j in range(8): a(f"buffer_load_dwordx4 v[{K+4*j}:{K+4*j+3}], v17, s[{R3}:{R3+3}], {'s%d' % T0_ if j >= 4 else 0} offen offset:{1024*(j&3)} sc1")
    guard(a)
    top2(a, K, A1, A2, B1, B2, TA, TB, x[0], x[1], True)
    a(f"v_cmp_eq_u32 vcc, -1, v{x[0]}", f"v_mov_b32 v{M2}, v{x[1]}")
    a("KS_QN:")
    net8(a, x, y, w, t, C, lambda: (a("s_cbranch_vccnz KS_Q0", f"s_cmp_eq_u32 s{T1_}, 1", f"s_mov_b32 m0, {C_XR}"), stamp2(a, 1)))
    a("s_cbranch_scc1 KS_QF2")
    a(f"v_and_b32 v{RA}, 0x7ff, v{C}", f"v_mad_i32_i24 v{RA}, v{RA}, s{T4_}, v{BS}")
    def row_dma(first=True):
        for k in range(9):
            if k or first: a(f"s_mov_b32 m0, {C_XR + 896*k}")
            a(f"buffer_load_dwordx4 v{RA}, s[{R2_}:{R2_+3}], 0 offen offset:{128*k} sc1 lds")
    if ENV("XBAD", 0) != 2: row_dma(False)
    stamp2(a, 2)
    mins = ["quad_perm:[2,3,0,1]", "row_half_mirror", "row_ror:8"]
    for k in range(32):
        a(f"v_sub_u32 v{K+k}, v{K+k}, v{M2}")
        if k % 4 == 0 and k < 12: a(f"v_min_u32_dpp v{T8}, v{T8 if k else C}, v{T8 if k else C} {mins[k//4]} {DPPM}")
        if k == 2: a(f"v_max3_u32 v{TB}, v{K}, v{K+1}, v{K+2}")
        elif k > 2 and k % 2 == 0: a(f"v_max3_u32 v{TB}, v{TB}, v{K+k-1}, v{K+k}")
    a(f"v_add_u32 v{OFF}, v{OFF}, v{M2}", f"v_max_u32 v{TB}, v{TB}, v{K+31}", f"v_add_u32 v{TB}, v{TB}, v{OFF}")
    a(f"v_cmp_gt_u32 vcc, v{TB}, v{T8}", "s_cbranch_vccnz KS_QF1")
    a(f"ds_write_b32 v7, v{C} offset:{C_SEL}")
    b_frags()
    a("s_waitcnt vmcnt(0)")
    a(f"ds_write_b32 v{VZ}, v{VONE} offset:{FL_XRDY}")
    stamp2(a, 3)
    a("s_setprio 1")
    a(f"ds_read_b128 v[20:23], v{CKA}")
    a("s_waitcnt lgkmcnt(0)"); chk(20, 13)
    a("s_branch KS_CK")
    a("KS_QF1:")
    guard(a)
    a(f"v_mov_b32 v{OLD}, v{C}")
    top2(a, K, A1, A2, B1, B2, TA, TB, x[0], M2, False)
    a(f"v_add_u32 v{x[0]}, v{x[0]}, v{OFF}", f"v_add_u32 v{x[1]}, v{M2}, v{OFF}", f"s_mov_b32 s{T1_}, 1", "s_mov_b64 vcc, 0")
    a.flush(3)
    a("s_branch KS_QN")
    a("KS_QF2:")
    a(f"v_mov_b32 v{x[0]}, 0", f"v_mov_b32 v{x[1]}, 0", "s_mov_b64 exec, 0x5555")
    a(f"v_max_u32 v{x[0]}, v{C}, v{OLD}", f"v_min_u32 v{x[1]}, v{C}, v{OLD}", "s_mov_b64 exec, -1", f"s_mov_b32 s{T1_}, 2", "s_mov_b64 vcc, 0", "s_waitcnt vmcnt(0)")
    a.flush(6)
    a("s_branch KS_QN")
    f2l = lambda d, ad, so: [f"buffer_load_dword v{d+k}, v{ad}, s[{R3}:{R3+3}], s{so} offen offset:{1024*k} sc1" for k in range(4)]
    a("KS_BR:")
    a("s_mov_b64 exec, -1")
    a(f"s_cmp_lg_u32 s{S_WAVE}, 8", "s_cbranch_scc1 KS_BR1")
    a(f"s_movk_i32 s{T0_}, 0x2000")
    a.flush(8)
    zpoll(a, f2l(20, 17, T0_), [20, 21, 22, 23], 2)
    row_dma()
    a("s_waitcnt vmcnt(0)")
    a("s_barrier")
    a(f"ds_write_b32 v{VZ}, v{VZ} offset:{FL_BAD}")
    a("s_branch KS_B")
    a("KS_BR1:")
    a("s_barrier")
    a("s_branch KS_B")
    a("KS_W9:")
    a("v_lshlrev_b32 v33, 4, v1", f"s_movk_i32 s{T0_}, 0x2000", "v_and_b32 v7, 7, v1", "v_lshlrev_b32 v7, 2, v7")
    srd(a, R0, P_WS, 0x240000, WS_ZB1)
    srd(a, R1, P_X, XBYTES)
    a("v_bfe_u32 v43, v1, 3, 2", f"s_lshl_b32 s{T1_}, s{S_BLK}, 2", f"v_add_u32 v43, s{T1_}, v43")
    a("v_bfe_u32 v40, v43, 4, 1", "v_and_b32 v41, 3, v1", "v_lshl_add_u32 v40, v40, 2, v41", "v_lshlrev_b32 v40, 2, v40")
    a("v_and_b32 v41, 0x3cf, v43", "v_bfe_u32 v42, v43, 5, 1", "v_lshl_add_u32 v41, v42, 4, v41", "v_bfe_u32 v42, v1, 2, 1", "v_lshl_add_u32 v41, v42, 5, v41")
    a("v_lshrrev_b32 v42, 4, v41", "v_lshlrev_b32 v42, 8, v42", "v_lshl_add_u32 v42, v40, 3, v42", "v_and_b32 v43, 15, v41", "v_lshl_add_u32 v42, v43, 1, v42")
    lds_wait(a, C_SEL, 12, "nz", addr=7, sleep=1)
    stamp2(a, 2)
    a(f"ds_read_b32 v19, v40 offset:{C_SEL}")
    a("s_waitcnt lgkmcnt(0)")
    a("v_and_b32 v14, 0x7ff, v19", "v_sub_u32 v14, 2047, v14")
    a("v_mul_u32_u24 v23, 1152, v14", "v_lshl_add_u32 v23, v41, 1, v23")
    a(f"buffer_load_ushort v17, v23, s[{R1}:{R1+3}], 0 offen")
    a("v_lshrrev_b32 v15, 9, v14", "v_bfe_u32 v16, v14, 6, 2", "v_lshl_add_u32 v15, v15, 2, v16", "v_bfe_u32 v16, v14, 2, 2", "v_lshl_add_u32 v15, v15, 2, v16")
    a("v_bfe_u32 v16, v14, 4, 1")
    a("v_bfe_u32 v24, v14, 8, 1", "v_and_b32 v25, 3, v14", "v_lshl_add_u32 v24, v24, 2, v25", "v_lshlrev_b32 v24, 1, v24")
    a("v_bfe_u32 v25, v14, 5, 1", "v_lshl_add_u32 v24, v25, 5, v24")
    a("v_lshl_add_u32 v25, v15, 1, v16", "v_lshl_add_u32 v25, v25, 14, v24")
    a("v_lshrrev_b32 v26, 1, v41", "v_lshl_add_u32 v25, v26, 6, v25", "v_xor_b32 v26, v41, v16", "v_not_b32 v26, v26", "v_and_b32 v26, 1, v26", "v_lshl_add_u32 v25, v26, 4, v25")
    a("v_lshl_add_u32 v26, v15, 12, v24", "v_lshl_add_u32 v26, v16, 4, v26", "v_lshl_add_u32 v26, v41, 6, v26", f"v_add_u32 v26, {0x200000 - 512*64}, v26")
    if SWZ:
        a("v_lshl_add_u32 v27, v16, 6, v15", "v_lshlrev_b32 v27, 7, v27", "v_xor_b32 v25, v27, v25", "v_and_b32 v27, 0xf80, v27", "v_xor_b32 v26, v27, v26")
    a("v_cmp_gt_u32 vcc, 0x200, v41", "v_cndmask_b32 v25, v26, v25, vcc")
    a(f"buffer_load_ushort v18, v25, s[{R0}:{R0+3}], 0 offen sc1")
    a("v_ashrrev_i32 v22, 31, v19", "v_not_b32 v22, v22", "v_or_b32 v22, 0x80000000, v22", "v_xor_b32 v22, v19, v22", "v_and_b32 v22, 0xffff0000, v22")
    a(f"v_mul_f32 v22, {f32(-LOG2E)}, v22", "v_exp_f32 v22, v22", "v_add_f32 v22, 1.0, v22", "v_rcp_f32 v22, v22")
    a(f"v_cvt_pk_bf16_f32 v22, 0, v22")
    srd(a, R2_, P_WS, 64, WS_IDX)
    srd(a, R1, P_OUT, XBYTES)
    if F3:
        for l in f2l(8, 33, T0_): a(l)
    a("s_cmp_lg_u32 s2, 0", "s_cbranch_scc1 KS_W9B")
    if ENV("IDXW", 1): a(f"buffer_store_dword v12, v7, s[{R2_}:{R2_+3}], 0 offen")
    a("s_branch KS_W9B")
    a("KS_W9R:")
    a("s_barrier")
    a("KS_W9B:")
    a("s_barrier")
    a(f"ds_read_b32 v13, v{VZ} offset:{FL_BAD}", f"ds_read_u16 v20, v42 offset:{C_XR}")
    if ENV("F2D", 0): a(f"s_sleep {ENV('F2D', 0)}")
    a("s_waitcnt lgkmcnt(0)")
    a("v_cmp_ne_u32 vcc, 0, v13", "s_cbranch_vccnz KS_W9R")
    a("s_setprio 2")
    if F3:
        a("s_branch KS_F3B", "KS_F3A:", f"s_sleep {ENV('F2SLEEP', 2)}")
        for l in f2l(8, 33, T0_): a(l)
        a("KS_F3B:")
        guard(a)
        a("s_waitcnt vmcnt(0)", "v_max3_u32 v44, v8, v9, v10", "v_max_u32 v44, v44, v11", "v_cmp_eq_u32 vcc, -1, v44", "s_cbranch_vccnz KS_F3A")
        a(f"ds_write_b32 v{VZ}, v{VONE} offset:{FL_ROWSOK}")
        stamp2(a, 1)
        a(f"s_movk_i32 s{T0_}, 0x3000", f"s_sleep {ENV('F3D', 12)}")
        zpoll(a, f2l(8, 33, T0_), [8, 9, 10, 11], ENV("F2SLEEP", 2))
    else:
        zpoll(a, f2l(8, 33, T0_), [8, 9, 10, 11], ENV("F2SLEEP", 2))
        a(f"ds_write_b32 v{VZ}, v{VONE} offset:{FL_ROWSOK}")
        stamp2(a, 1)
    a("v_lshlrev_b32 v17, 16, v17", "v_lshlrev_b32 v18, 16, v18", "v_add_f32 v17, v17, v18", "v_cvt_pk_bf16_f32 v17, v17, v17")
    a("v_and_b32 v21, 0xffff0000, v17", "v_lshlrev_b32 v20, 16, v20")
    a("v_lshlrev_b32 v14, 2, v1", f"v_add_u32 v14, {C_SIDE}, v14", "s_mov_b32 exec_lo, -1", "s_mov_b32 exec_hi, 0", "s_setprio 3")
    stamp2(a, 3)
    a("s_barrier")
    for g in range(4): a(f"ds_read2_b32 v[{32+2*g}:{33+2*g}], v14 offset0:{64*g} offset1:{64*g + 32}")
    a("ds_read_b32 v40, v14 offset:1024")
    a("s_waitcnt lgkmcnt(3)", "v_pk_add_f32 v[32:33], v[32:33], v[34:35]")
    a("s_waitcnt lgkmcnt(1)", "v_pk_add_f32 v[36:37], v[36:37], v[38:39]", "v_add_f32 v32, v32, v33")
    a("s_waitcnt lgkmcnt(0)", "v_add_f32 v36, v36, v37", "v_add_f32 v32, v32, v40", "v_add_f32 v8, v32, v36")
    a(f"v_cvt_pk_bf16_f32 v8, 0, v8")
    a("v_mul_f32 v8, v8, v22", f"v_cvt_pk_bf16_f32 v8, 0, v8")
    a("v_add_f32 v8, v8, v20", f"v_cvt_pk_bf16_f32 v8, 0, v8")
    a("v_add_f32 v8, v8, v21", "v_cvt_pk_bf16_f32 v8, v8, v8")
    a(f"buffer_store_short v8, v23, s[{R1}:{R1+3}], 0 offen {MOD('FM', '')}")
    endwave(a)
    a("KS_B:")
    a(f"s_setprio {ENV('BPRIO', 2)}")
    a("s_waitcnt lgkmcnt(0)")
    a("s_barrier")
    a(f"ds_read_b128 v[20:23], v16 offset:{C_ACT}", f"ds_read_b32 v30, v{VZ} offset:{FL_BAD}")
    a("s_waitcnt lgkmcnt(1)")
    for j in (0, 2, 1, 3):
        a(f"v_mfma_f32_16x16x32_bf16 v[{32+4*j}:{35+4*j}], v[20:23], v[{WTD+4*j}:{WTD+4*j+3}], 0")
    a("s_waitcnt lgkmcnt(0)")
    a("v_cmp_ne_u32 vcc, 0, v30")
    for hi in range(2):
        a(f"s_mov_b32 exec_lo, {hi - 1}", f"s_mov_b32 exec_hi, {-hi}")
        if hi == 0: a("s_cbranch_vccnz KS_BR")
        for d in range(4):
            o = 32 + 4 * hi + 8 * (d >> 1) + 2 * (d & 1)
            a(f"v_cvt_pk_bf16_f32 v{24+d}, v{o}, v{o+1}")
    a("s_mov_b64 exec, -1")
    for d in range(4): a(f"v_min_u32 v{24+d}, -2, v{24+d}")
    a(f"buffer_store_dwordx4 v[24:27], v17, s[{R4}:{R4+3}], s{BS0} offen sc1")
    stamp2(a, 8)
    a(f"s_sleep {PE}")
    if not BT: lds_wait(a, FL_ROWSOK, 30, "nz")
    stamp2(a, 6)
    zpoll(a, [f"buffer_load_dwordx4 v[32:35], v18, s[{R4}:{R4+3}], s{BS1} offen sc1"], list(range(32, 36)), ENV("PSLEEP", 1))
    stamp2(a, 7)
    a("v_permlane32_swap_b32 v32, v34", "v_permlane32_swap_b32 v33, v35")
    a("v_permlane16_swap_b32 v32, v33", "v_permlane16_swap_b32 v34, v35")
    for d in range(4): a(f"v_dot2c_f32_bf16 v28, s{BC0}, v{32+d}", f"v_dot2c_f32_bf16 v29, s{BC1}, v{32+d}")
    for r in (8, 4): a(f"v_add_f32_dpp v28, v28, v28 row_ror:{r} {DPPM}", f"v_add_f32_dpp v29, v29, v29 row_ror:{r} {DPPM}")
    a("s_mov_b32 exec_lo, 0x000f000f", "s_mov_b32 exec_hi, 0x000f000f")
    a(f"ds_write_b64 v19, v[28:29] offset:{C_SIDE}")
    a("s_waitcnt lgkmcnt(0)")
    a("s_barrier")
    endwave(a)
    a("KS_G0:")
    a(f"ds_write_b8 v15, v{VONE} offset:{FL_G+4}")
    a("s_setprio 0")
    if RM: a(f"s_cmp_ge_u32 s{S_FI}, 18", "s_cbranch_scc1 KS_X5")
    a("KS_G:")
    a("s_waitcnt vmcnt(0)")
    a("KS_GN:")
    stamp(a, 5)
    a(f"s_sub_u32 s{S_G}, s{S_WAVE}, 12", f"s_and_b32 s{T3_}, s{S_G}, 1")
    a(f"s_cselect_b32 s{R2_}, s{P_UP}, s{P_GATE}", f"s_cselect_b32 s{R2_+1}, s{P_UP+1}, s{P_GATE+1}", f"s_mov_b32 s{R2_+2}, {hex(WBYTES)}", f"s_mov_b32 s{R2_+3}, 0x20000")
    a("v_lshrrev_b32 v6, 3, v1", "v_lshrrev_b32 v7, 5, v1", "v_xor_b32 v6, v6, v7", "v_and_b32 v6, 1, v6", f"v_lshl_add_u32 v6, s{T3_}, 1, v6", "v_xor_b32 v6, v6, v1", "v_and_b32 v6, 3, v6")
    a("v_lshrrev_b32 v7, 2, v1", "v_mul_u32_u24 v7, 9216, v7", "v_lshl_add_u32 v46, v6, 4, v7", f"s_lshl_b32 s{T4_}, s{S_BLK}, 6", f"v_mov_b32 v6, s{S_G}")
    a(f"s_mul_i32 s{T5_}, s{T3_}, 36864", f"s_add_u32 s{T5_}, s{T5_}, {C_GU}")
    srd(a, R1, P_DOWN, WBYTES)
    a("v_lshlrev_b32 v8, 4, v1", f"s_mul_i32 s{T0_}, s{S_BLK}, 36864", f"s_mul_i32 s{T1_}, s{S_G}, 9216", f"s_add_u32 s{T0_}, s{T0_}, s{T1_}", f"s_add_u32 s{T1_}, s{T1_}, {C_DOWN}")
    a(f"s_cmp_lt_u32 s{S_I}, 8", f"s_cselect_b32 s{T2_}, 0, {FL_UTOK - (FL_G + 36)}", f"v_mov_b32 v9, s{T2_}")
    lds_wait(a, FL_G + 36, 10, "b4", addr=9, sleep=2)
    a(f"s_cmp_ge_u32 s{S_I}, 8", "s_cselect_b64 vcc, -1, 0", "s_cbranch_scc1 KS_GD1" if NDE == 9 else "s_cbranch_scc1 KS_GD0")
    DSL = ENV("DSL", -1)
    if DR: a("s_branch KS_GD1")
    if DSL >= 0:
        a(f"s_cmp_lt_u32 s{S_G}, 2", "s_cbranch_scc1 KS_GD1")
        a(f"s_mul_i32 s{T0_}, s{S_BLK}, 36864", f"s_mul_i32 s{T1_}, s{T3_}, 18432", f"s_add_u32 s{T0_}, s{T0_}, s{T1_}", f"s_add_u32 s{T1_}, s{T1_}, {C_DOWN}")
    for k in range(18 if DSL >= 0 else 9):
        if k == NDE: a("KS_GD0:")
        if k % 4 == 0 or k == NDE:
            a(f"s_add_u32 m0, s{T1_}, {1024*(k&~3)}", f"s_add_u32 s{T2_}, s{T0_}, {1024*(k&~3)}")
        a(f"buffer_load_dwordx4 v8, s[{R1}:{R1+3}], s{T2_} offen offset:{1024*(k&3)} {MOD('DM', 'nt')} lds")
        if DSL > 0: a(f"s_sleep {DSL}")
    a("KS_GD1:")
    GP = ENV("GP", 0)
    if GP == 1:
        a(f"s_lshr_b32 s{T0_}, s{S_G}, 1", f"s_xor_b32 s{T0_}, s{T0_}, s{S_BLK}", f"s_and_b32 s{T0_}, s{T0_}, 1", f"s_mul_i32 s{T1_}, s{T0_}, {288*9216}", f"s_add_u32 s{T4_}, s{T4_}, s{T1_}")
        a(f"s_mul_i32 s{T1_}, s{T0_}, 18432", f"s_add_u32 s{T5_}, s{T5_}, s{T1_}")
    a(f"s_cmp_ge_u32 s{S_G}, 2", "s_cbranch_scc1 KS_GL")
    def direct(n, sl):
        for k in range(n):
            if k: a(f"s_add_u32 s{T4_}, s{T4_}, {16*9216}")
            a(f"buffer_load_dwordx4 v[{GW+4*k}:{GW+4*k+3}], v46, s[{R2_}:{R2_+3}], s{T4_} offen {MOD('GMOD', 'nt')}")
            if ENV("GSK", 0) and n == 18:
                if k + 1 == ENV("GSK", 0): lds_wait(a, FL_UF, 10, "b4", sleep=2)
                elif k < n - 1 and ENV("GSA" if k < ENV("GSK", 0) else "GSB", 2): a(f"s_sleep {ENV('GSA' if k < ENV('GSK', 0) else 'GSB', 2)}")
            elif ENV("GSI", -1) >= 0 and k < n - 1:
                l = newlabel("GS")
                if ENV("GSI", -1): a(f"s_sleep {ENV('GSI', -1)}")
                a(f"s_cbranch_vccz {l}", f"s_sleep {sl - ENV('GSI', -1)}", f"{l}:")
            elif ENV("GZP", 0) and n == 18 and ENV("GZK", 8) <= k < n - 1:
                l = newlabel("GZ")
                a(f"s_sleep {sl - 2}", f"ds_read_b32 v10, v{VZ} offset:{FL_S6}", "s_waitcnt lgkmcnt(0)", f"v_and_b32 v10, {hex(ENV('GZM', 0x7fffffff))}, v10", "v_cmp_eq_u32 vcc, 0, v10", f"s_cbranch_vccnz {l}")
                lds_wait(a, {1: FL_ZDONE + 4, 2: FL_ZF}[ENV("GZP", 0)], 10, "b4")
                a(f"{l}:")
            elif n == 18 and k < n - 1 and os.environ.get("GSLL"):
                v = eval(os.environ["GSLL"])[k]
                if v: a(f"s_sleep {v}")
            elif sl and k < n - 1: a(f"s_sleep {sl}")
        a(f"v_add_u32 v8, s{T5_}, v8")
        a("s_waitcnt vmcnt(0)")
        a(f"ds_write_b8 v6, v{VONE} offset:{FL_DOWN}")
        stamp(a, 7)
        lds_wait(a, FL_ZDONE + 4, 10, "b4", sleep=2)
    GM2 = ENV("GM2", 9)
    if GP == 2:
        a(f"s_and_b32 s{T0_}, s{S_BLK}, 1", f"s_mul_i32 s{T1_}, s{T0_}, {GM2*16*9216}", f"s_sub_u32 s{T2_}, s{T4_}, s{T1_}", f"s_add_u32 s{T4_}, s{T4_}, s{T1_}", f"s_add_u32 s{T2_}, s{T2_}, {GM2*16*9216}")
        a(f"s_mul_i32 s{T1_}, s{T0_}, {GM2*1024}", f"v_add_u32 v8, s{T5_}, v8", f"v_subrev_u32 v9, s{T1_}, v8", f"v_add_u32 v8, s{T1_}, v8")
        for k in range(18):
            t = T4_ if k < GM2 else T2_
            if k not in (0, GM2): a(f"s_add_u32 s{t}, s{t}, {16*9216}")
            a(f"buffer_load_dwordx4 v[{GW+4*k}:{GW+4*k+3}], v46, s[{R2_}:{R2_+3}], s{t} offen {MOD('GMOD', '') if k < GM2 else MOD('GMOD2', '')}")
            if k < GM2 and ENV("GTCH", 0): a(f"buffer_load_dword v47, v46, s[{R2_}:{R2_+3}], s{t} offen sc1")
            sl = ENV("GS1", 8) if k < GM2 - 1 else ENV("GSM", 8) if k == GM2 - 1 else ENV("GS2", 2) if k < 17 else 0
            if k == GM2 - 1 and ENV("GSU", 0): lds_wait(a, FL_UF, 10, "b4", sleep=2)
            if sl: a(f"s_sleep {sl}")
        a("s_waitcnt vmcnt(0)")
        a(f"ds_write_b8 v6, v{VONE} offset:{FL_DOWN}")
        stamp(a, 7)
        lds_wait(a, FL_ZDONE + 4, 10, "b4", sleep=2)
        for k in range(18): a(f"ds_write_b128 v{8 if k < GM2 else 9}, v[{GW+4*k}:{GW+4*k+3}] offset:{1024*k}")
    else:
        direct(18, GSL)
        if ENV("GWW", 0): lds_wait(a, {1: FL_ZF, 2: FL_KCNT}[ENV("GWW", 0)], 10, "b4", sleep=2)
        if ENV("GWD", 0): a(f"s_sleep {ENV('GWD', 0)}")
        for k in range(18): a(f"ds_write_b128 v8, v[{GW+4*k}:{GW+4*k+3}] offset:{1024*k}")
    a("s_branch KS_G4")
    a("KS_GL:")
    if GP != 1: a(f"s_add_u32 s{T4_}, s{T4_}, {288*9216}", f"s_add_u32 s{T5_}, s{T5_}, 18432")
    if ENV("GED", 0): a(f"s_sleep {ENV('GED', 0)}")
    direct(GE, ENV("GSL2", GSL * 18 // max(GE, 1)))
    if ENV("GLD", 0): a(f"s_sleep {ENV('GLD', 0)}")
    if ENV("GLZ", 0):
        if ENV("GLZ", 0) == 2: a(f"s_cmp_ge_u32 s{S_I}, 8", "s_cbranch_scc1 KS_GLZ")
        lds_wait(a, FL_ZF, 10, "b4" if ENV("GLZM", 1) else "nz", sleep=2)
        a("KS_GLZ:")
    a(f"s_setprio {ENV('GLP', 1)}")
    if GP == 2 and GM2 > 9:
        assert not GE
        a(f"s_and_b32 s{T0_}, s{S_BLK}, 1", f"s_mul_i32 s{T1_}, s{T0_}, {GM2*16*9216}", f"s_sub_u32 s{T2_}, s{T4_}, s{T1_}", f"s_mul_i32 s{T1_}, s{T0_}, {GM2*1024}", f"s_sub_u32 s{T3_}, s{T5_}, s{T1_}")
        for k in range(18):
            g, l = (T2_, T3_) if k < 2 * GM2 - 18 else (T4_, T5_)
            a(f"s_add_u32 m0, s{l}, {1024*k}", f"s_add_u32 s{T0_}, s{g}, {16*9216*k}")
            a(f"buffer_load_dwordx4 v46, s[{R2_}:{R2_+3}], s{T0_} offen lds")
    else:
        for k in range(GE, 18):
            j = k - GE
            if j % 4 == 0: a(f"s_add_u32 m0, s{T5_}, {1024*k}")
            if k: a(f"s_add_u32 s{T4_}, s{T4_}, {16*9216 - (1024 if j else 0) + (4096 if j and j % 4 == 0 else 0)}")
            a(f"buffer_load_dwordx4 v46, s[{R2_}:{R2_+3}], s{T4_} offen offset:{1024*(j&3)} lds")
    stamp(a, 6)
    a("s_setprio 0")
    for k in range(GE): a(f"ds_write_b128 v8, v[{GW+4*k}:{GW+4*k+3}] offset:{1024*k}")
    a("s_waitcnt vmcnt(0)")
    stamp(a, 8)
    a("KS_G4:")
    a(f"ds_write_b8 v6, v{VONE} offset:{FL_GISS}")
    a("v_lshrrev_b32 v6, 3, v1", "v_xor_b32 v6, v6, v3", "v_and_b32 v6, 1, v6", "v_and_b32 v7, 2, v1", "v_or_b32 v6, v6, v7", f"v_xor_b32 v6, s{S_G}, v6")
    a("v_mul_u32_u24 v7, 18432, v7", "v_lshl_add_u32 v7, v6, 4, v7", "v_and_b32 v6, 1, v1", "v_lshl_add_u32 v7, v6, 3, v7")
    a("v_bfe_u32 v6, v1, 2, 2", "v_lshl_add_u32 v6, v3, 3, v6", "v_lshl_add_u32 v7, v6, 6, v7", f"v_add_u32 v8, {C_GU}, v7")
    a("v_and_b32 v9, 7, v1", "v_lshrrev_b32 v10, 1, v3", "v_and_b32 v11, 1, v3")
    a("v_lshlrev_b32 v6, 5, v9", "v_lshl_add_u32 v6, v10, 8, v6", "v_lshl_add_u32 v6, v11, 4, v6", f"v_add_u32 v6, {C_XR}, v6")
    a(f"s_lshl_b32 s{T0_}, s{S_G}, 4", f"v_lshl_add_u32 v7, v9, 6, s{T0_}", "v_lshl_add_u32 v7, v11, 3, v7", "v_lshl_add_u32 v7, v10, 2, v7", "v_bfe_u32 v9, v1, 3, 1", "v_lshl_add_u32 v7, v9, 1, v7")
    lds_wait(a, FL_GISS, 10, "b4", sleep=2)
    lds_wait(a, FL_KCNT, 10, "b4", sleep=2)
    if ENV("GTD", 10): a(f"s_sleep {ENV('GTD', 10)}")
    for ks in range(18):
        for i in range(2): a(f"ds_read_b64_tr_b16 v[{GW+4*ks+2*i}:{GW+4*ks+2*i+1}], v8 offset:{2048*ks + 256*i}")
    stamp2(a, 3)
    lds_wait(a, C_SEL, 10, "nz", sleep=2)
    a(f"s_setprio {ENV('GPRIO', 3)}")
    NB, N0, GA, NACC = 10, ENV("GN0", 4), 120, ENV("NACC", 2)
    XF = lambda ks: 8 + 4 * (ks % NB)
    a("KS_GC:")
    a("s_mov_b32 exec_lo, 0x00ff00ff", "s_mov_b32 exec_hi, 0x00ff00ff")
    a("KS_GW:")
    tr = LdsTrack(a); ids = {}
    a(f"ds_read_b32 v0, v{VZ} offset:{FL_XRDY}")
    rd = lambda ks: ids.__setitem__(ks, tr.issue(f"ds_read_b128 v[{XF(ks)}:{XF(ks)+3}], v6 offset:{512*ks}"))
    for ks in range(N0): rd(ks)
    guard(a)
    a(f"s_waitcnt lgkmcnt({N0})")
    a("v_cmp_eq_u32 vcc, 0, v0", "s_cbranch_vccnz KS_GW")
    stamp2(a, 1)
    nx = N0
    for ks in range(18):
        tr.wait(ids[ks])
        ac = GA + 4 * (ks % NACC)
        a(f"v_mfma_f32_16x16x32_bf16 v[{ac}:{ac+3}], v[{GW+4*ks}:{GW+4*ks+3}], v[{XF(ks)}:{XF(ks)+3}], " + ("0" if ks < NACC else f"v[{ac}:{ac+3}]"))
        for _ in range(2):
            if nx < 18 and nx - NB <= ks: rd(nx); nx += 1
    a("s_mov_b64 exec, -1")
    if NACC == 2: a(f"v_pk_add_f32 v[{GA}:{GA+1}], v[{GA}:{GA+1}], v[{GA+4}:{GA+5}]", f"v_pk_add_f32 v[{GA+2}:{GA+3}], v[{GA+2}:{GA+3}], v[{GA+6}:{GA+7}]")
    a(f"v_permlane32_swap_b32 v{GA+1}, v{GA+3}", f"v_permlane32_swap_b32 v{GA}, v{GA+2}")
    a(f"v_mov_b32_dpp v{GA}, v{GA+1} row_shr:8 row_mask:0xf bank_mask:0xc ; nodst", f"v_mov_b32_dpp v{GA+2}, v{GA+3} row_shr:8 row_mask:0xf bank_mask:0xc ; nodst")
    g_, u_, t_ = GA, GA + 2, GA + 1
    a(f"v_cvt_pk_bf16_f32 v{g_}, 0, v{g_}", f"v_mul_f32 v{t_}, {f32(-LOG2E)}, v{g_}", f"v_exp_f32 v{t_}, v{t_}", f"v_cvt_pk_bf16_f32 v{u_}, 0, v{u_}", f"v_add_f32 v{t_}, 1.0, v{t_}", f"v_rcp_f32 v{t_}, v{t_}", f"v_mul_f32 v{t_}, v{g_}, v{t_}")
    a(f"v_cvt_pk_bf16_f32 v{t_}, 0, v{t_}")
    a(f"v_mul_f32 v{t_}, v{t_}, v{u_}", f"v_cvt_pk_bf16_f32 v{t_}, v{t_}, v{t_}")
    a(f"ds_write_b16 v7, v{t_} offset:{C_ACT}")
    stamp2(a, 2)
    a("s_waitcnt lgkmcnt(0)")
    a("s_barrier")
    a("s_setprio 0")
    a(f"ds_read_b32 v0, v{VZ} offset:{FL_BAD}")
    a("s_waitcnt lgkmcnt(0)")
    a("v_cmp_eq_u32 vcc, 0, v0", "s_cbranch_vccnz KS_PEND")
    a("s_barrier")
    a("s_branch KS_GC")
    a("KS_PEND:")
    stamp_end(a)
    spin_end(a)
    a("KS_ABORT:")
    a("KS_END:")
    a("s_endpgm")
    return f""".amdhsa_kernel {label}
  .amdhsa_next_free_vgpr 128
  .amdhsa_next_free_sgpr {NSGPR}
  .amdhsa_accum_offset 128
  .amdhsa_group_segment_fixed_size 0
  .amdhsa_kernarg_size 136
  .amdhsa_user_sgpr_count 2
  .amdhsa_user_sgpr_kernarg_segment_ptr 1
  .amdhsa_system_sgpr_workgroup_id_x 1
  .amdhsa_float_denorm_mode_32 3
.end_amdhsa_kernel
"""

def main():
    hdr = open(f"/code/{NAME}.s.ref").read().split("; Override launch geometry")[0]
    out = hdr
    out += f"; @launch grid=(256,1,1) block=(1024,1,1) lds={LDS_BYTES}\n"
    out += '.amdgcn_target "amdgcn-amd-amdhsa--gfx950"\n.text\n'
    a = Asm()
    d = gen(a)
    out += a.text()
    out += '.section .rodata,"a"\n.p2align 6\n' + d
    path = sys.argv[1] if len(sys.argv) > 1 else "ks.s"
    open(path, "w").write(out)
    print("wrote", path, len(out))

if __name__ == "__main__":
    main()
```

```python
import sys, struct, math, os
sys.path.insert(0, "gen")
from asmlib import Asm

NAME = "sequential_preLN__ssm_conv_s4__moe_arch_mod__prompt"
L, D, N, F = 2048, 576, 128, 4608
XBYTES = L * D * 2
WS_UT = 0x000000
WS_X2 = 0x3C0000
WS_ZB1 = 0x600000
WS_ZB2 = 0x800000
WS_KEYS = 0x840000
WS_PART = 0x850000
WS_CLR, CLR_WG = 0x600000, 18560
CLRP_WG = 23744
WS_FLAG1 = 0xB00000
TAGM = 0x00070007
WS_IDX = 0xB10000
WS_KT = 0xB20000
WS_DBG = 0xC00000
XCL = int(os.environ.get("XCL", "2"))
if XCL == 1: WS_CLR, CLR_WG = WS_X2, 36992
if XCL == 2: WS_X2 = WS_UT
WSB = int(os.environ.get("WSB", "0")) << 20
WS_UT += WSB; WS_X2 += WSB; WS_ZB1 += WSB; WS_ZB2 += WSB; WS_KEYS += WSB; WS_PART += WSB; WS_CLR += WSB; WS_FLAG1 += WSB; WS_IDX += WSB; WS_KT += WSB
WS_STAMP = 0x8000000
PART_BYTES = 144 * (4608 * 4 + 128)
C_FL, C_CAND, C_SEL, C_KEY, C_PAR, C_ACT, C_SIDE, C_RED2 = 0, 256, 768, 800, 832, 1024, 1536, 2048
C_U, U_SIZE = 3072, 4672
C_LNB = C_U + 3 * U_SIZE
C_XR = C_LNB
C_RED = C_LNB + 9280
G_BASE, G_SIZE = 35840, 36672
C_STG = G_BASE + 2 * G_SIZE + 36864
LDS_BYTES = C_STG + 8192
FL_LN1, FL_LNACK, FL_KCNT, FL_UF, FL_ZF, FL_KACK, FL_ROWSOK, FL_XRDY, FL_PARAM, FL_DOWN, FL_ZDONE = 0, 8, 12, 16, 20, 24, 28, 32, 36, 40, 48
FL_G = 64
FL_S6 = 160
FL_ZISS = 240
FL_F2CNT, FL_INIT, FL_CLROK, FL_GISS, FL_KSEEN, FL_UTOK, FL_PRE, FL_NONCE = 176, 180, 188, 192, 196, 200, 208, 224
KG_ROW = 544
KG_T = [0, 16 * KG_ROW, 32 * KG_ROW, 41 * KG_ROW]
R_WS3 = 0
R_WS5 = R_WS3 + 193 * 16
R_WS7 = R_WS5 + 193 * 16
R_WS9 = R_WS7 + 128 * 16
R_RED = 10752
R2 = 31232
T_TAB = R2
T_DRE = R2 + 1296
T_DRO = T_DRE + 1280 + 64
T_G3 = T_DRO + 1280
T_G5 = T_G3 + 256
T_G7E = T_G5 + 256
T_G7O = T_G7E + 192
T_G9E = T_G7O + 192
T_G9O = T_G9E + 192
assert T_G9O + 192 <= G_SIZE and R_WS9 + 129 * 16 <= R_RED and R_RED + 13 * 1024 <= R2 and 57 * KG_ROW <= R2
IDX_ZERO, IDX_DUMMY = 641, 642
C_DOWN = G_BASE + 2 * G_SIZE

def f32(x): return "0x%08x" % struct.unpack("<I", struct.pack("<f", x))[0]
def f32v(x): return struct.unpack("<f", struct.pack("<f", x))[0]
LOG2E = math.log2(math.e)
LOG2E_HI = f32v(LOG2E); LOG2E_LO = LOG2E - LOG2E_HI
INV2PI = 1.0 / (2 * math.pi)
INV2PI_HI = f32v(INV2PI); INV2PI_LO = INV2PI - INV2PI_HI
DPPM = "row_mask:0xf bank_mask:0xf"
ENV = lambda k, d: int(os.environ.get(k, str(d)))
STAMP = ENV("STAMP", 0)
DBG = ENV("DBG", 0)
GUARD = 1 << 19
XP = ENV("XP", 0)
KOFF = ENV("KOFF", 1)
PTAG = ENV("PTAG", 1)
PE = ENV("PE", -1)
SN = ENV("SN", 0)
SWU = ENV("SWU", 1); SWZ = ENV("SWZ", 1); PROW = 18432 + 128 * ENV("SWP", 1)
MOD = lambda k, d="sc1": os.environ.get(k, d).replace("_", " ")

P_X, P_ARE, P_LDT, P_DSK, P_WR, P_GATE, P_UP, P_DOWN, P_OUT, P_DBG, P_WS = 4, 6, 18, 20, 24, 26, 28, 30, 32, 34, 36
S_WAVE, S_GUARD, S_XC, S_I = 38, 39, 40, 41
R0, R1, R2_, R3, R4 = 64, 68, 72, 76, 80
S_ONES, S_GB, S_ROLE, S_G, S_CH, S_BLK, S_B2 = 84, 85, 86, 87, 88, 89, 90
T0_, T1_, T2_, T3_, T4_, T5_ = 92, 93, 94, 95, 96, 97
SP0, SP1 = 98, 99
NSGPR = 100

def srd(a, d, base, nbytes, off=0):
    if off:
        a(f"s_add_u32 s{d}, s{base}, {hex(off)}", f"s_addc_u32 s{d+1}, s{base+1}, 0")
    else:
        a(f"s_mov_b32 s{d}, s{base}", f"s_mov_b32 s{d+1}, s{base+1}")
    a(f"s_mov_b32 s{d+2}, {hex(nbytes)}", f"s_mov_b32 s{d+3}, 0x20000")

def red16(a, op, v):
    for r in (8, 4, 2, 1):
        a(f"{op}_dpp v{v}, v{v}, v{v} row_ror:{r} {DPPM}")
def red32(a, op, v, t):
    red16(a, op, v)
    a(f"v_mov_b32 v{t}, v{v}", f"v_permlane16_swap_b32 v{v}, v{t}", f"{op} v{v}, v{v}, v{t}")
def red64x2(a, op1, v1, t1, op2, v2, t2):
    for r in (8, 4, 2, 1):
        a(f"{op1}_dpp v{v1}, v{v1}, v{v1} row_ror:{r} {DPPM}", f"{op2}_dpp v{v2}, v{v2}, v{v2} row_ror:{r} {DPPM}")
    for ins in ("v_permlane16_swap_b32", "v_permlane32_swap_b32"):
        a(f"v_mov_b32 v{t1}, v{v1}", f"v_mov_b32 v{t2}, v{v2}", f"{ins} v{v1}, v{t1}", f"{ins} v{v2}, v{t2}")
        a(f"{op1} v{v1}, v{v1}, v{t1}", f"{op2} v{v2}, v{v2}, v{t2}")

SPIN = eval(os.environ.get("SPIN", "None"))
def spin_rec(a, ph, i):
    if not SPIN or SPIN[1:] != (ph, i): return
    a("s_memrealtime s[46:47]")
def spin_end(a):
    if not SPIN: return
    lo, hi = eval(os.environ.get("SPINI", "(0,32)"))
    a("KS_SPIN:")
    if SPIN[2] == 9: a("s_memrealtime s[46:47]")
    a(f"s_sub_u32 s48, s{S_I}, {lo}", f"s_cmp_ge_u32 s48, {hi-lo}", "s_cbranch_scc1 KS_END")
    a(f"s_lshr_b32 s48, {hex(SPIN[0])}, s{S_WAVE}", "s_bitcmp1_b32 s48, 0", "s_cbranch_scc0 KS_END")
    a("s_mov_b64 exec, -1", "v_mov_b32 v4, 0")
    a("KS_SP0:")
    a(f"global_load_dword v8, v4, s[{P_DBG}:{P_DBG+1}] offset:64 sc1", "s_waitcnt vmcnt(0) lgkmcnt(0)", "v_readfirstlane_b32 s44, v8", "s_cmp_eq_u32 s44, 0", "s_cbranch_scc1 KS_SP0")
    if SPIN[2] == -1: a("s_mov_b32 s46, s44")
    a("s_sub_u32 s48, s46, s44", "s_add_u32 s48, s48, 200")
    if ENV("SPINMIN", 0): a(f"s_sub_u32 s48, {ENV('SPINMIN', 0)}, s48")
    a("s_min_u32 s48, s48, 3000", "s_lshl_b32 s48, s48, 2", "s_add_u32 s48, s48, 2000")
    a("SPINL:", "s_sleep 1", "s_memrealtime s[50:51]", "s_waitcnt lgkmcnt(0)", "s_sub_u32 s50, s50, s44", "s_cmp_lt_u32 s50, s48", "s_cbranch_scc1 SPINL")
def stamp_begin(a):
    if SPIN: a("s_memrealtime s[46:47]")
    if not STAMP: return
    a("s_memrealtime s[44:45]")
    for i in range(1, 9): a(f"s_mov_b32 s{44+2*i}, 0")
def cstamp(a, i):
    if STAMP == 9: a(f"s_memtime s[{44+2*i}:{45+2*i}]")
def kstamp(a, i):
    if STAMP == 7: a(f"s_memtime s[{44+2*i}:{45+2*i}]")
def stamp(a, i, ph=1):
    spin_rec(a, ph, i)
    if ph == 2 and STAMP not in (2, 3): return
    if STAMP == 7 and i == 1: return kstamp(a, 1)
    if not STAMP or STAMP in (7, 9): return
    assert 1 <= i <= 8
    a(f"{'s_memtime' if STAMP == 8 else 's_memrealtime'} s[{44+2*i}:{45+2*i}]")
def stamp2(a, i):
    stamp(a, i, 2)
def stamp_end(a):
    if not STAMP: return
    a("s_waitcnt vmcnt(0) lgkmcnt(0)")
    a("s_memrealtime s[62:63]")
    a(f"s_lshl_b32 s43, s2, 4", f"s_add_u32 s43, s43, s{S_WAVE}", "s_lshl_b32 s43, s43, 6", f"s_add_u32 s43, s43, {hex(WS_STAMP)}")
    a("s_mov_b64 exec, 1")
    a("s_waitcnt lgkmcnt(0)")
    a("v_mov_b32 v1, s43")
    for i in range(10): a(f"v_mov_b32 v{4+i}, s{44+2*i}")
    a(f"global_store_dwordx4 v1, v[4:7], s[{P_WS}:{P_WS+1}]")
    a(f"global_store_dwordx4 v1, v[8:11], s[{P_WS}:{P_WS+1}] offset:16")
    a(f"global_store_dwordx2 v1, v[12:13], s[{P_WS}:{P_WS+1}] offset:32")
def endwave(a):
    stamp_end(a)
    a("s_branch KS_SPIN" if SPIN else "s_endpgm")

def unpack(a, dst, src):
    a(f"v_lshlrev_b32 v{dst}, 16, v{src}", f"v_and_b32 v{dst+1}, 0xffff0000, v{src}")

def rnd2(a, t):
    a(f"v_cvt_pk_bf16_f32 v{t}, 0, v{t}", f"v_cvt_pk_bf16_f32 v{t+1}, 0, v{t+1}")

def ln_stats(a, X, m2, rinv2, t0, t1, t2):
    a(f"v_pk_add_f32 v[{t0}:{t0+1}], v[{X}:{X+1}], v[{X+2}:{X+3}]")
    a(f"v_pk_add_f32 v[{t1}:{t1+1}], v[{X+4}:{X+5}], v[{X+6}:{X+7}]")
    for j in range(4, 9):
        t = t0 if j % 2 == 0 else t1
        a(f"v_pk_add_f32 v[{t}:{t+1}], v[{t}:{t+1}], v[{X+2*j}:{X+2*j+1}]")
    a(f"v_pk_add_f32 v[{t0}:{t0+1}], v[{t0}:{t0+1}], v[{t1}:{t1+1}]")
    a(f"v_add_f32 v{t0}, v{t0}, v{t0+1}")
    red32(a, "v_add_f32", t0, t1)
    a(f"v_mul_f32 v{t2}, {f32(1.0/576)}, v{t0}")
    a(f"v_mov_b32 v{t2+1}, v{t2}")
    a(f"v_cvt_pk_bf16_f32 v{m2}, 0, v{t2}", f"v_cvt_pk_bf16_f32 v{m2+1}, 0, v{t2}")
    first = {t0: True, t1: True}
    for j in range(9):
        t = t0 if j % 2 == 0 else t1
        a(f"v_pk_add_f32 v[{rinv2}:{rinv2+1}], v[{X+2*j}:{X+2*j+1}], v[{t2}:{t2+1}] neg_lo:[0,1] neg_hi:[0,1]")
        if first[t]:
            a(f"v_pk_mul_f32 v[{t}:{t+1}], v[{rinv2}:{rinv2+1}], v[{rinv2}:{rinv2+1}]"); first[t] = False
        else:
            a(f"v_pk_fma_f32 v[{t}:{t+1}], v[{rinv2}:{rinv2+1}], v[{rinv2}:{rinv2+1}], v[{t}:{t+1}]")
    a(f"v_pk_add_f32 v[{t0}:{t0+1}], v[{t0}:{t0+1}], v[{t1}:{t1+1}]")
    a(f"v_add_f32 v{t0}, v{t0}, v{t0+1}")
    red32(a, "v_add_f32", t0, t1)
    a(f"v_mul_f32 v{t0}, {f32(1.0/576)}, v{t0}")
    a(f"v_cvt_pk_bf16_f32 v{t0}, 0, v{t0}")
    a(f"v_add_f32 v{t0}, {f32(1e-5)}, v{t0}")
    a(f"v_cvt_pk_bf16_f32 v{t0}, 0, v{t0}")
    a(f"v_sqrt_f32 v{t0}, v{t0}")
    a(f"v_cvt_pk_bf16_f32 v{t0}, 0, v{t0}")
    a(f"v_rcp_f32 v{rinv2}, v{t0}")
    a(f"v_mov_b32 v{rinv2+1}, v{rinv2}")

def ln_apply_pair(a, x, m2, rinv2, t, P):
    a(f"v_pk_add_f32 v[{t}:{t+1}], v[{x}:{x+1}], v[{m2}:{m2+1}] neg_lo:[0,1] neg_hi:[0,1]")
    rnd2(a, t)
    a(f"v_pk_mul_f32 v[{t}:{t+1}], v[{t}:{t+1}], v[{rinv2}:{rinv2+1}]")
    if P is not None: a(f"v_cvt_pk_bf16_f32 v{P}, v{t}, v{t+1}")
    rnd2(a, t)

VZ, VONE = 4, 5
_lbl = [0]
def newlabel(p="L"):
    _lbl[0] += 1
    return f"{p}_{_lbl[0]}"
def guard(a):
    a(f"s_sub_u32 s{S_GUARD}, s{S_GUARD}, 1", "s_cbranch_scc1 KS_ABORT")
def lds_wait(a, off, t, kind="b4", addr=VZ, sleep=0):
    l = newlabel("W")
    a(f"{l}:")
    if sleep: a(f"s_sleep {sleep}")
    if kind == "b8":
        a(f"ds_read_b64 v[{t}:{t+1}], v{addr} offset:{off}")
    else:
        a(f"ds_read_{'u8' if kind == 'u8' else 'b32'} v{t}, v{addr} offset:{off}")
    guard(a)
    a("s_waitcnt lgkmcnt(0)")
    if kind == "b8": a(f"v_and_b32 v{t}, v{t}, v{t+1}")
    if kind in ("nz", "u8"): a(f"v_cmp_eq_u32 vcc, 0, v{t}")
    else: a(f"v_cmp_ne_u32 vcc, s{S_ONES}, v{t}")
    a(f"s_cbranch_vccnz {l}")

def zpoll(a, loads, regs, sleep, mid=None):
    lp = newlabel("ZP"); l1 = newlabel("ZPE")
    if mid:
        for l in loads: a(l)
        a(mid)
    a(f"s_branch {l1}")
    a(f"{lp}:")
    a(f"s_sleep {sleep}")
    if not mid: a(f"{l1}:")
    for l in loads: a(l)
    if mid: a(f"{l1}:")
    guard(a)
    a("s_waitcnt vmcnt(0)")
    a(f"v_max3_u32 v44, v{regs[0]}, v{regs[1]}, v{regs[2]}")
    r = regs[3:]
    while len(r) >= 2: a(f"v_max3_u32 v44, v44, v{r[0]}, v{r[1]}"); r = r[2:]
    if r: a(f"v_max_u32 v44, v44, v{r[0]}")
    a("v_cmp_eq_u32 vcc, -1, v44", f"s_cbranch_vccnz {lp}")

class Pool:
    def __init__(self, regs): self.free = list(regs)
    def get(self): return self.free.pop(0)
    def put(self, r): self.free.append(r)
def ce_inlane(a, x, i, j, pool):
    t = pool.get()
    a(f"v_max_u32 v{t}, v{x[i]}, v{x[j]}", f"v_min_u32 v{x[j]}, v{x[i]}, v{x[j]}")
    pool.put(x[i]); x[i] = t
def clean8(a, x, pool, DE, rev=False):
    t = [pool.get() for _ in range(4)]
    for i in range(4):
        a(f"v_mov_b32_dpp v{t[i]}, v{x[3-i if rev else i]} quad_perm:[1,0,3,2] {DPPM}")
    for i in range(4):
        a(f"v_med3_u32 v{t[i]}, v{x[i]}, v{t[i]}, v{DE}")
    for i in range(4): pool.put(x[i]); x[i] = t[i]
    for (i, j) in ((0, 2), (1, 3), (0, 1), (2, 3)): ce_inlane(a, x, i, j, pool)
def merge_mirror(a, x, pool, M):
    c = [pool.get() for _ in range(4)]
    for i in range(4):
        a(f"v_max_u32_dpp v{c[i]}, v{x[3-i]}, v{x[i]} {M} {DPPM}")
    for i in range(4): pool.put(x[i]); x[i] = c[i]
def merge_pair(a, x, y, pool):
    for i in range(4):
        a(f"v_max_u32_dpp v{x[i]}, v{y[3-i]}, v{x[i]} quad_perm:[1,0,3,2] {DPPM}")
    for i in range(4): pool.put(y[i])
MIRRORS = ("quad_perm:[3,2,1,0]", "row_half_mirror", "row_mirror")

GW = 48
def g_addr_setup(a, A):
    a(f"s_sub_u32 s{S_G}, s{S_WAVE}, 12")
    a(f"s_mul_i32 s{T0_}, s{S_G}, 9", f"s_add_u32 s{T0_}, s{T0_}, 1", f"s_lshr_b32 s{S_ROLE}, s{T0_}, 1")
    a(f"s_lshl_b32 s{T0_}, s{S_ROLE}, 5", f"v_lshl_add_u32 v7, v3, 3, s{T0_}", "v_mul_u32_u24 v7, 9216, v7")
    a("v_and_b32 v6, 7, v2", "v_lshl_add_u32 v7, v6, 3, v7")
    a(f"s_lshl_b32 s{T0_}, s{S_BLK}, 6", f"v_add_u32 v7, s{T0_}, v7")
    a("v_cmp_gt_u32 vcc, 8, v2")
    a(f"s_mov_b32 s{R3}, 9216", f"s_mov_b32 s{R3+1}, 0", f"s_mov_b32 s{R3+2}, {9216*25}", f"s_mov_b32 s{R3+3}, 0")
    a(f"v_mov_b32 v{A}, s{P_GATE}", f"v_mov_b32 v{A+1}, s{P_GATE+1}", f"v_mov_b32 v6, s{P_UP}")
    a(f"v_cndmask_b32 v{A}, v6, v{A}, vcc", f"v_mov_b32 v6, s{P_UP+1}", f"v_cndmask_b32 v{A+1}, v6, v{A+1}, vcc")
    a(f"v_add_co_u32 v{A}, vcc, v{A}, v7", f"v_addc_co_u32 v{A+1}, vcc, 0, v{A+1}, vcc")
def g_loads(a, A, kss, mod=""):
    for ks in kss:
        for r in range(8):
            d = GW + 16 * ks + 2 * r
            a(f"global_load_dwordx2 v[{d}:{d+1}], v[{A}:{A+1}], off" + mod)
            if not (ks == 4 and r == 7):
                a(f"v_lshl_add_u64 v[{A}:{A+1}], v[{A}:{A+1}], 0, s[{R3 if r < 7 else R3+2}:{R3+1 if r < 7 else R3+3}]")
GTRIG = ENV("GTRIG", 2)
PF = ENV("PF", 1)
NL, NN, NC = ENV("NL", 0), ENV("NN", 0), ENV("NC", 4)
NE = ENV("NE", 0)
NLL = ENV("NLL", 0)
NL2 = ENV("NL2", 4)
PFB = ENV("PFB", 82)
assert not (PFB and NL)
NL3 = ENV("NL3", 0)
assert not (NL3 and NE)
PFA = PFB + 16 * NL + 16 * NE + 6 * NL3
PF0 = PFA + 10 * NLL + 6 * NL2
PF1 = PF0 + 8 * NN + 8 * NC
assert PF1 <= 166
PF2 = ENV("PF2", 166); PFD = ENV("PFD", 0); PFD2 = ENV("PFD2", 0)
GT = eval(os.environ.get("GT", "[0,0,6,6]")); DT = ENV("DT", 3)
RDMA = ENV("RDMA", 1)
DEA = ENV("DEA", 1)
DE = ENV("DE", 1)
def pf_ld(a, dst, v, R):
    for m in MOD("PFM", "nt;sc1").split(";"): a(f"buffer_load_dword v{dst}, v{v}, s[{R}:{R+3}], s{T4_} offen {m}")
def pf_lane(a, v, t):
    a(f"v_mul_u32_u24 v{v}, 57, v1", f"v_lshrrev_b32 v{v}, 9, v{v}", f"v_mul_u32_u24 v{t}, 9, v{v}", f"v_sub_u32 v{t}, v1, v{t}", f"v_mul_u32_u24 v{v}, 9216, v{v}", f"v_lshl_add_u32 v{v}, v{t}, 7, v{v}")
def pf_gu_setup(a, sidx, R=R2_, tb=T3_, tt=T4_):
    a(f"s_bitcmp1_b32 s{sidx}, 0", f"s_cselect_b32 s{R}, s{P_UP}, s{P_GATE}", f"s_cselect_b32 s{R+1}, s{P_UP+1}, s{P_GATE+1}")
    a(f"s_mov_b32 s{R+2}, {hex(D*F*2)}", f"s_mov_b32 s{R+3}, 0x20000")
    a(f"s_lshr_b32 s{tb}, s{sidx}, 1", f"s_mul_i32 s{tb}, s{tb}, {7*9216}", f"s_mul_i32 s{tt}, s{S_XC}, 1152", f"s_add_u32 s{tb}, s{tb}, s{tt}")
def pf_gu(a, v, sidx, nw, u0, u1, dst, done):
    assert u0 % 2 == 0 and nw % 2 == 0
    pf_gu_setup(a, sidx)
    k = 0
    while u0 + k * nw < u1:
        if u0 + (k + 1) * nw > u1: a(f"s_cmp_ge_u32 s{sidx}, {u1 - u0 - k*nw}", f"s_cbranch_scc1 {done}")
        a(f"s_add_u32 s{T4_}, s{T3_}, {(u0 + k*nw)//2*7*9216}")
        pf_ld(a, dst, v, R2_)
        k += 1
def pf_down(a, sidx, nw, u0, u1, v, dst, done, R=R2_):
    srd(a, R, P_DOWN, D * F * 2)
    a(f"s_lshl_b32 s{T3_}, s{sidx}, 13", f"s_mul_i32 s{T4_}, s{S_XC}, {576*1152}", f"s_add_u32 s{T3_}, s{T3_}, s{T4_}", f"v_lshlrev_b32 v{v}, 7, v1")
    k = 0
    while u0 + k * nw < u1:
        if u0 + (k + 1) * nw > u1: a(f"s_cmp_ge_u32 s{sidx}, {u1 - u0 - k*nw}", f"s_cbranch_scc1 {done}")
        a(f"s_add_u32 s{T4_}, s{T3_}, {(u0 + k*nw)*8192}")
        pf_ld(a, dst, v, R)
        k += 1
def gen_ln1(a):
    LW, TB = T5_, S_CH
    X, RAW = 8, 26
    a(f"s_sub_u32 s{T0_}, s{S_I}, 8", f"s_and_b32 s{TB}, s{T0_}, 7", f"s_lshr_b32 s{T0_}, s{T0_}, 3", f"s_lshl_b32 s{T0_}, s{T0_}, 4", f"s_add_u32 s{TB}, s{TB}, s{T0_}")
    a(f"s_and_b32 s{T0_}, s{S_XC}, 1", f"s_lshl_b32 s{T0_}, s{T0_}, 3", f"s_add_u32 s{TB}, s{TB}, s{T0_}", f"s_lshr_b32 s{T0_}, s{S_XC}, 1", f"s_lshl_b32 s{T0_}, s{T0_}, 5", f"s_add_u32 s{TB}, s{TB}, s{T0_}")
    a("v_lshrrev_b32 v36, 5, v1", "v_and_b32 v37, 31, v1")
    a("v_mul_u32_u24 v38, 1152, v36", "v_lshl_add_u32 v39, v37, 2, v38", "v_lshl_add_u32 v38, v37, 4, v38")
    a(f"s_mul_i32 s{T1_}, s{TB}, 18432", f"s_mul_i32 s{T2_}, s{LW}, 2304", f"s_add_u32 s{T1_}, s{T1_}, s{T2_}")
    a("s_waitcnt lgkmcnt(0)")
    stamp(a, 1)
    srd(a, R0, P_X, XBYTES)
    a(f"buffer_load_dwordx4 v[{RAW}:{RAW+3}], v38, s[{R0}:{R0+3}], s{T1_} offen")
    a(f"buffer_load_dwordx4 v[{RAW+4}:{RAW+7}], v38, s[{R0}:{R0+3}], s{T1_} offen offset:512")
    a(f"buffer_load_dword v{RAW+8}, v39, s[{R0}:{R0+3}], s{T1_} offen offset:1024")
    a("s_barrier")
    a(f"s_lshr_b32 s{T1_}, s{LW}, 2", f"s_lshl_b32 s{T1_}, s{T1_}, 6", f"s_add_u32 s{T2_}, s{T2_}, s{T1_}", f"s_add_u32 s{T2_}, s{T2_}, {C_LNB}")
    a(f"v_lshl_add_u32 v35, v37, 1, v36")
    a(f"s_mov_b32 s{SP0}, 0x05040100", f"s_mov_b32 s{SP1}, 0x07060302")
    def waits(n):
        for (c, js) in ((2, range(0, 4)), (1, range(4, 8)), (0, range(8, 9))):
            a(f"s_waitcnt vmcnt({c+n})")
            for j in js: unpack(a, X + 2 * j, RAW + j)
    l1 = newlabel("LN1A"); l2 = newlabel("LN1B")
    if NL:
        LW0 = ENV("NLW", 4)
        pf_lane(a, 46, 47)
        a(f"s_sub_u32 s{T1_}, s{LW}, {LW0}", f"s_and_b32 s{T1_}, s{T1_}, 7", f"s_lshl_b32 s{T3_}, s{T1_}, 4", f"s_add_u32 s{T3_}, s{T3_}, s{S_I}", f"s_sub_u32 s{T3_}, s{T3_}, 8")
        pf_gu_setup(a, T3_, R3, T4_, T0_)
    def dma_early(skip):
        a(f"s_cmp_lt_u32 s{LW}, 4", f"s_cbranch_scc1 {skip}", f"s_cmp_ge_u32 s{S_I}, 18", f"s_cbranch_scc1 {skip}")
        srd(a, R1, P_DOWN, F * D * 2)
        a("v_lshlrev_b32 v46, 4, v1", f"s_mul_i32 s{T0_}, s{S_BLK}, 36864", f"s_mul_i32 s{T1_}, s{LW}, 9216", f"s_add_u32 s{T0_}, s{T0_}, s{T1_}", f"s_sub_u32 s{T0_}, s{T0_}, {4*9216}", f"s_add_u32 s{T1_}, s{T1_}, {C_DOWN - 4*9216}")
        for k in range(9):
            if k % 4 == 0:
                a(f"s_add_u32 m0, s{T1_}, {1024*k}")
                if k: a(f"s_add_u32 s{T0_}, s{T0_}, 4096")
            a(f"buffer_load_dwordx4 v46, s[{R1}:{R1+3}], s{T0_} offen offset:{1024*(k&3)} {MOD('DM', 'nt')} lds")
    if DEA == 1:
        dma_early(l1)
        waits(9)
        a(f"s_branch {l2}")
        a(f"{l1}:")
        if NL3:
            l3 = newlabel("LN1C")
            a(f"s_sub_u32 s{T1_}, s{LW}, 4", f"s_cmp_ge_u32 s{T1_}, {NL3}", f"s_cbranch_scc1 {l3}")
            pf_lane(a, 46, 47)
            a(f"s_mul_i32 s{T1_}, s{T1_}, 6", f"s_add_u32 s{T1_}, s{T1_}, s{S_I}", f"s_add_u32 s{T3_}, s{T1_}, {PFB - 18}")
            pf_gu_setup(a, T3_, R3, T4_, T0_)
            pf_ld(a, 47, 46, R3)
            waits(len(MOD("PFM", "nt;sc1").split(';')))
            a(f"s_branch {l2}")
            a(f"{l3}:")
        waits(0)
        a.flush(2)
        a(f"{l2}:")
    elif DEA == 2:
        waits(0)
        dma_early(l1)
        a(f"{l1}:")
    elif NL and ENV("NLE", 0):
        a(f"s_cmp_lt_u32 s{T1_}, {NL}", f"s_cselect_b32 s{T4_}, s{T4_}, {hex(D*F*2)}")
        pf_ld(a, 47, 46, R3)
        waits(len(MOD("PFM", "nt;sc1").split(';')))
    else:
        waits(0)
    if NL and not ENV("NLE", 0):
        if ENV("X0", 0): a(f"s_cmp_eq_u32 s{S_XC}, 0", f"s_cbranch_scc1 {l1}")
        a(f"s_cmp_ge_u32 s{T1_}, {NL}", f"s_cbranch_scc1 {l1}")
        pf_ld(a, 47, 46, R3)
        a(f"{l1}:")
    stamp(a, 2)
    a(f"v_lshl_add_u32 v6, v35, 4, s{T2_}", f"v_lshl_add_u32 v7, v35, 2, s{T2_}")
    a(f"v_mul_u32_u24 v35, 0x20202, v36", "v_lshl_add_u32 v35, v36, 25, v35", "v_add_u32 v35, 0x05040100, v35")
    ln_stats(a, X, 36, 38, 40, 42, 44)
    for j in range(9):
        if j == ENV("DSAMP", 3):
            a("v_and_b32 v59, 3, v1", "v_lshlrev_b32 v59, 2, v59")
            if SN: a(f"s_load_dwordx4 s[{R3}:{R3+3}], s[{P_DBG}:{P_DBG+1}], 0" + (" glc" if SN == 2 else ""))
            else: a(f"global_load_dword v58, v59, s[{P_DBG}:{P_DBG+1}] sc1")
        ln_apply_pair(a, X + 2 * j, 36, 38, 40, None)
        a(f"v_cvt_pk_f16_f32 v{RAW+j}, v40, v41")
        if j in (3, 7):
            P = RAW + j - 3; O = X + 2 * (j - 3)
            a(f"v_permlane32_swap_b32 v{P}, v{P+2}", f"v_permlane32_swap_b32 v{P+1}, v{P+3}")
            a(f"v_perm_b32 v{O}, v{P+2}, v{P}, s{SP0}", f"v_perm_b32 v{O+1}, v{P+2}, v{P}, s{SP1}")
            a(f"v_perm_b32 v{O+2}, v{P+3}, v{P+1}, s{SP0}", f"v_perm_b32 v{O+3}, v{P+3}, v{P+1}, s{SP1}")
            a(f"ds_write_b128 v6, v[{O}:{O+3}] offset:{1024*(j//4)}")
    a(f"v_mov_b32 v40, v{RAW+8}", f"v_permlane32_swap_b32 v{RAW+8}, v40")
    a(f"v_perm_b32 v40, v40, v{RAW+8}, v35")
    a(f"ds_write_b32 v7, v40 offset:2048")
    a(f"v_mov_b32 v6, s{LW}")
    a(f"ds_write_b8 v6, v{VONE} offset:{FL_LN1}")
    a("s_setprio 0")
    a(f"s_cmp_ge_u32 s{LW}, 4", "s_cbranch_scc1 KS_X4")
    a("s_setprio 3")
    srd(a, R2_, P_WS, XBYTES, WS_UT)
    a("v_and_b32 v6, 1, v0", "v_mul_u32_u24 v6, 9280, v6", "v_lshrrev_b32 v7, 1, v0", "v_lshl_add_u32 v6, v7, 2, v6", f"v_add_u32 v6, {C_LNB}, v6")
    a("v_lshrrev_b32 v7, 2, v0", "v_mul_u32_u24 v7, 0x2080, v7" if SWU else "v_lshlrev_b32 v7, 13, v7", "v_and_b32 v8, 3, v0", "v_lshl_add_u32 v7, v8, 4, v7")
    a(f"s_lshl_b32 s{T0_}, s{TB}, 6")
    if SWU: a(f"v_xor_b32 v7, s{T0_}, v7", f"s_mov_b32 s{T0_}, 0")
    for k in range(1, 5): a(f"s_add_u32 s{T0_+k}, s{T0_}, {0x80000*k}")
    if SN:
        a("s_waitcnt lgkmcnt(0)")
        a(f"v_mov_b32 v58, s{R3}", f"v_mov_b32 v57, s{R3+1}", f"v_mov_b32 v56, s{R3+2}", f"v_mov_b32 v55, s{R3+3}")
        a("v_mov_b32_dpp v58, v57 quad_perm:[0,1,2,3] row_mask:0xf bank_mask:0xf" if 0 else "v_cmp_eq_u32 vcc, 4, v59", "v_cndmask_b32 v58, v58, v57, vcc", "v_cmp_eq_u32 vcc, 12, v59", "v_cndmask_b32 v56, v56, v55, vcc", "v_cmp_lt_u32 vcc, 4, v59", "v_cndmask_b32 v58, v58, v56, vcc")
        dbg_wait(a, 63)
    else: dbg_wait(a, 0)
    a(f"ds_write_b32 v59, v58 offset:{FL_NONCE}")
    a(f"s_mov_b32 s{SP0}, {hex(TAGM)}")
    for d in range(1, 4): a(f"v_lshrrev_b32 v{58-d}, {3*d}, v58")
    lds_wait(a, FL_LN1, 20, "b8")
    stamp(a, 3)
    for k in range(5):
        a(f"ds_read2st64_b32 v[{20+4*k}:{21+4*k}], v6 offset0:{2*k} offset1:{9+2*k}")
        a(f"ds_read2st64_b32 v[{22+4*k}:{23+4*k}], v6 offset0:{18+2*k} offset1:{27+2*k}")
    for k in range(5):
        a(f"s_waitcnt lgkmcnt({8-2*k})")
        for d in range(4): a(f"v_bfi_b32 v{20+4*k+d}, s{SP0}, v{58-d}, v{20+4*k+d}")
        a(f"buffer_store_dwordx4 v[{20+4*k}:{23+4*k}], v7, s[{R2_}:{R2_+3}], s{T0_+k} offen {MOD('USMOD')}")
    if DE: a(f"v_mov_b32 v6, s{LW}", f"ds_write_b8 v6, v{VONE} offset:{FL_UTOK}")
    stamp(a, 4)

def dbg_wait(a, n, vt=58, va=59):
    lp = newlabel("DBP"); go = newlabel("DBG")
    a(f"s_waitcnt vmcnt({n})")
    a(f"{lp}:")
    a(f"v_cmp_eq_u32 vcc, 0, v{vt}", f"s_cbranch_vccz {go}")
    a("s_sleep 1")
    a(f"global_load_dword v{vt}, v{va}, s[{P_DBG}:{P_DBG+1}] sc1")
    guard(a)
    a("s_waitcnt vmcnt(0)")
    a(f"s_branch {lp}")
    a(f"{go}:")

ROLE_TILES = {0: [0, 1, 2, 3, 4], 1: [0, 1, 2, 3, 4], 2: [5, 6, 7], 3: [5, 6, 7]}
ROLE_W = {2: 0, 3: 1, 1: 2}
ACC, DA, RING, WT = 16, 36, 76, 92
NRING = 4

def epi_plan():
    owner = {0: (0, 0), 1: (0, 1), 2: (1, 0), 3: (1, 1), 4: (1, 3), 5: (0, 2), 6: (0, 3), 7: (1, 2)}
    slots = {}
    cnt = [0, 0]
    for g in range(2):
        for role in range(4):
            for j in ROLE_TILES[role]:
                if owner[j] == (g, role): continue
                slots[(g, role, j)] = g * G_SIZE + R_RED + 1024 * cnt[g]; cnt[g] += 1
    assert max(cnt) <= 13, cnt
    ownerC = {0: 0, 1: 0, 2: 1, 3: 1, 4: 2, 5: 2, 6: 3, 7: 3}
    n = 0
    for role in range(4):
        for j in ROLE_TILES[role]:
            if ownerC[j] == role: continue
            slots[(2, role, j)] = 2 * G_SIZE + R_RED + 1024 * n; n += 1
    return owner, ownerC, slots

class LdsTrack:
    def __init__(self, a): self.a = a; self.n = 0; self.done = -1
    def issue(self, text): self.a(text); self.n += 1; return self.n - 1
    def wait(self, idx):
        k = self.n - 1 - idx
        if idx <= self.done: return
        self.done = idx
        if k <= 15: self.a(f"s_waitcnt lgkmcnt({k})")

CZ0, CZ1, CSH, CXR, CFL, SIS, CM, SM, SC, SSC, SDL = 6, 7, 8, 9, 10, 11, 12, 14, 15, 16, 18
IXR, LFR = (108, 109, 112, 113), (110, 111, 114, 115)
def stage_write(a, off):
    a("v_lshl_or_b32 v24, v25, 16, v24", "v_lshl_or_b32 v25, v27, 16, v26", f"ds_write_b64 v28, v[24:25] offset:{off}")
def pre_ixlf(a):
    end = newlabel("PX"); j1 = newlabel("PX"); j2 = newlabel("PX"); jn = newlabel("PX")
    a(f"s_cmp_eq_u32 s{S_ROLE}, 3", f"s_cbranch_scc1 {end}")
    a("v_lshlrev_b32 v26, 3, v2", "v_mov_b32 v21, 0x80")
    a(f"s_cmp_eq_u32 s{S_ROLE}, 1", f"s_cbranch_scc1 {j1}", f"s_cmp_eq_u32 s{S_ROLE}, 2", f"s_cbranch_scc1 {j2}")
    a("v_lshl_add_u32 v26, v3, 1, v26", "v_mov_b32 v22, 1")
    a(f"s_branch {jn}")
    a(f"{j1}:")
    a("v_cmp_gt_u32 vcc, 2, v3", "v_lshl_add_u32 v20, v3, 2, v26", "v_add_u32 v20, 256, v20", "v_lshl_add_u32 v26, v3, 8, v26", "v_cndmask_b32 v26, v26, v20, vcc")
    a("v_cndmask_b32 v22, v21, 2, vcc", "v_cndmask_b32 v21, 4, v21, vcc")
    a(f"s_branch {jn}")
    a(f"{j2}:")
    a("v_lshl_add_u32 v26, v3, 9, v26", "v_add_u32 v26, 0x400, v26", "v_mov_b32 v22, 0x100")
    a(f"{jn}:")
    a(f"v_mad_u32_u24 v26, v22, s{S_G}, v26", "v_add_u32 v27, v26, v21", f"s_movk_i32 s{T4_}, {T_TAB}", f"s_movk_i32 s{T5_}, {-(0x4280 + 0x800)}", f"s_lshl_b32 s{T3_}, s{S_G}, 9")
    for r in range(2): a(f"v_cvt_f32_u32 v{20+r}, v{26+r}", f"v_max_u32 v{22+r}, 0x800, v{26+r}")
    for r in range(2):
        a(f"v_cmp_gt_u32 vcc, 0x80, v{26+r}", f"v_lshrrev_b32 v{24+r}, 16, v{20+r}", f"v_add3_u32 v{24+r}, v{24+r}, v{22+r}, s{T5_}", f"v_cndmask_b32 v{24+r}, v{24+r}, v{26+r}, vcc")
    for r in range(2):
        a(f"v_min_u32 v{24+r}, {IDX_DUMMY}, v{24+r}", f"v_lshl_add_u32 v{24+r}, v{24+r}, 1, s{T4_}")
    a(f"v_add_u32 v29, s{T3_}, v28")
    a("v_lshl_or_b32 v24, v25, 16, v24", "v_lshl_or_b32 v25, v27, 16, v26", "ds_write_b64 v29, v[24:25]")
    a(f"{end}:")

def gen_group(a):
    RAW, VLDT, VDSK, VNT, VNA, VPR, VEM, VTE, VTL = 40, 46, 107, 104, 105, 106, 72, 126, 127
    I1, D2, I2, D1, D3 = 116, 119, 120, 124, 125
    a(f"s_lshl_b32 s{T0_}, s{S_CH}, 8", f"v_lshl_add_u32 v20, v1, 2, s{T0_}")
    a(f"s_lshl_b32 s{T0_}, s{S_CH}, 1", f"v_mov_b32 v21, s{T0_}")
    a(f"s_mul_i32 s{S_GB}, s{S_G}, {G_SIZE}", f"s_add_u32 s{S_GB}, s{S_GB}, {G_BASE}")
    a("s_waitcnt lgkmcnt(0)")
    stamp(a, 1)
    PL = ENV("PLATE", 0)
    if PL == 1: a(f"s_sub_u32 s{T0_}, s{S_I}, 8", f"s_cmp_ge_u32 s{T0_}, 16", "s_cbranch_scc1 KS_PL1", "s_barrier", "KS_PL1:")
    if PL == 2: a("s_barrier")
    a(f"global_load_ushort v{VLDT}, v21, s[{P_LDT}:{P_LDT+1}]")
    for k in range(6):
        a(f"global_load_dword v{RAW+k}, v20, s[{P_ARE+2*k}:{P_ARE+2*k+1}]")
    a(f"global_load_ushort v{VDSK}, v21, s[{P_DSK}:{P_DSK+1}]")
    if PL == 1: a("s_cbranch_scc0 KS_PL2")
    if PL != 2: a("s_barrier")
    if PL == 1: a("KS_PL2:")
    if ENV("UPW", 0):
        a(f"s_sub_u32 s{T0_}, s{S_I}, 8", f"s_cmp_ge_u32 s{T0_}, 16", "s_cbranch_scc1 KS_UPW", f"s_cmp_lg_u32 s{S_G}, 1", "s_cbranch_scc1 KS_UPW")
        TB = T5_
        a(f"s_and_b32 s{TB}, s{T0_}, 7", f"s_lshr_b32 s{T0_}, s{T0_}, 3", f"s_lshl_b32 s{T0_}, s{T0_}, 4", f"s_add_u32 s{TB}, s{TB}, s{T0_}")
        a(f"s_and_b32 s{T0_}, s{S_XC}, 1", f"s_lshl_b32 s{T0_}, s{T0_}, 3", f"s_add_u32 s{TB}, s{TB}, s{T0_}", f"s_lshr_b32 s{T0_}, s{S_XC}, 1", f"s_lshl_b32 s{T0_}, s{T0_}, 5", f"s_add_u32 s{TB}, s{TB}, s{T0_}")
        srd(a, R2_, P_WS, XBYTES, WS_UT)
        a(f"s_lshl_b32 s{T0_}, s{S_ROLE}, 4", "v_lshrrev_b32 v7, 2, v1", f"v_add_u32 v7, s{T0_}, v7", "v_mul_u32_u24 v7, 0x2080, v7", "v_and_b32 v8, 3, v1", "v_lshl_add_u32 v7, v8, 4, v7")
        a(f"s_lshl_b32 s{T0_}, s{TB}, 6", f"v_xor_b32 v7, s{T0_}, v7")
        for d in range(4): a(f"v_mov_b32 v{8+d}, 0")
        for k in range(5):
            a(f"s_mov_b32 s{T0_}, {0x80000*k}")
            a(f"buffer_store_dwordx4 v[8:11], v7, s[{R2_}:{R2_+3}], s{T0_} offen {MOD('UPWMOD')}")
        a.flush(2)
        a("KS_UPW:")
    a(f"s_movk_i32 s{T4_}, {T_TAB}")
    def dr_addr(dst, x, special=False):
        a(f"v_sub_u32 v30, 544, v{x}", "v_cvt_f32_i32 v31, v30", "v_cmp_gt_u32 vcc, 0x100, v30", "v_cvt_pk_bf16_f32 v31, v31, v31", "v_and_b32 v31, 0xffff, v31", "v_subrev_u32 v31, 0x4280, v31")
        a("v_cndmask_b32 v31, v31, v30, vcc", "v_cmp_lt_u32 vcc, 0x20d, v30")
        if special: a(f"v_or_b32 v30, 1, v{x}")
        a("v_cndmask_b32 v31, v31, v32, vcc")
        if special: a("v_cmp_eq_u32 vcc, 0x25d, v30", "v_cndmask_b32 v31, v31, v33, vcc")
        a(f"v_lshl_add_u32 v{dst}, v31, 1, s{T4_}")
    def g_addr(dst, y0, base, M):
        a(f"v_sub_u32 v30, {y0}, v23", f"v_cmp_lt_u32 vcc, {M}, v30", f"v_lshlrev_b32 v31, 2, v30", f"v_add_u32 v31, {T_TAB + 2*base}, v31", f"v_cndmask_b32 v{dst}, v31, v33, vcc")
    pb = newlabel("PREB"); pw = newlabel("PREW"); pe = newlabel("PREE")
    a(f"s_cmp_eq_u32 s{S_G}, 2", f"s_cbranch_scc1 {pe}")
    a(f"v_mov_b32 v32, {IDX_ZERO}")
    a(f"s_cmp_eq_u32 s{S_G}, 1", f"s_cbranch_scc1 {pb}")
    jl = [newlabel("PRE") for _ in range(4)]
    a(f"v_mov_b32 v33, {T_TAB + 2*IDX_ZERO}")
    for r in range(1, 4): a(f"s_cmp_eq_u32 s{S_ROLE}, {r}", f"s_cbranch_scc1 {jl[r]}")
    a("v_lshlrev_b32 v23, 1, v1")
    for e, (y0, base, M) in enumerate(((93, 389, 61), (92, 389, 61), (94, 388, 62), (93, 388, 62))): g_addr(24 + e, y0, base, M)
    a(f"s_branch {pw}")
    for r, base in ((1, 513), (2, 514)):
        a(f"{jl[r]}:")
        a("v_min_u32 v23, 47, v1", "v_lshlrev_b32 v23, 1, v23")
        for e, y0 in ((0, 64), (1, 63), (3, 62)): g_addr(24 + e, y0, base, 63)
        a("v_mov_b32 v26, v25")
        a(f"s_branch {pw}")
    a(f"{jl[3]}:")
    a("v_cmp_gt_u32 vcc, 9, v1", "v_add_u32 v23, 0x100, v1", "v_mov_b32 v33, 0x200", "v_cndmask_b32 v23, v23, v1, vcc", "v_lshlrev_b32 v23, 1, v23")
    for e in (0, 1, 3):
        if e: a("v_add_u32 v23, 1, v23")
        dr_addr(24 + e, 23, special=True)
    a("v_mov_b32 v26, v25")
    a(f"s_branch {pw}")
    a(f"{pb}:")
    a(f"s_lshl_b32 s{T1_}, s{S_ROLE}, 7", f"s_add_u32 s{T1_}, s{T1_}, 18", f"v_lshl_add_u32 v23, v1, 1, s{T1_}")
    for e in range(3):
        if e: a("v_add_u32 v23, 1, v23")
        dr_addr(24 + e, 23)
    a(f"s_sub_u32 s{T1_}, s{S_ROLE}, 1", f"s_cmp_lt_u32 s{T1_}, 2", f"s_cselect_b32 s{T2_}, 47, 63", f"s_mul_i32 s{T1_}, s{T1_}, {T_G9E - T_G7E}", f"s_add_u32 s{T1_}, s{T1_}, {T_G7E}")
    a(f"s_cmp_eq_u32 s{S_ROLE}, 0", f"s_cselect_b32 s{T1_}, {T_G3}, s{T1_}", f"s_cmp_eq_u32 s{S_ROLE}, 3", f"s_cselect_b32 s{T1_}, {T_DRE}, s{T1_}", f"s_cselect_b32 s{T3_}, 0x100, 0")
    a("v_cmp_gt_u32 vcc, 9, v1", f"v_min_u32 v23, s{T2_}, v1", f"v_add_u32 v30, s{T3_}, v23", "v_cndmask_b32 v23, v30, v23, vcc", f"v_lshl_add_u32 v27, v23, 2, s{T1_}")
    stage_write(a, 1024)
    a(f"v_mov_b32 v24, s{S_ROLE}", f"ds_write_b8 v24, v{VONE} offset:{FL_PRE + 4}")
    a(f"s_branch {pe}")
    a(f"{pw}:")
    stage_write(a, 1536)
    a(f"v_mov_b32 v24, s{S_ROLE}", f"ds_write_b8 v24, v{VONE} offset:{FL_PRE}")
    a(f"{pe}:")
    a(f"s_mul_i32 s{T1_}, s{S_ROLE}, {16*KG_ROW}", f"s_min_u32 s{T2_}, s{T1_}, {KG_T[3]}", f"s_add_u32 s{T2_}, s{T2_}, s{S_GB}")
    a(f"s_lshl_b32 s{T0_}, s{S_G}, 4", f"v_mov_b32 v14, s{T0_}", f"v_add_u32 v15, s{S_ROLE}, v14")
    a(f"v_lshl_add_u32 v{VEM}, v1, 3, s{T2_}")
    for k in range(1, 4): a(f"v_add_u32 v{VEM+k}, {4*KG_ROW*k}, v{VEM}")
    a(f"v_mul_u32_u24 v{VTE}, {KG_ROW}, v2", f"v_lshl_add_u32 v{VTE}, v3, 4, v{VTE}", f"v_add_u32 v{VTE}, s{S_GB}, v{VTE}", f"v_add_u32 v{VTL}, s{T1_}, v{VTE}")
    VDA, VDA2, VB_, VT8, VT16, VG8, VG16, VLN = 6, 7, 8, 9, 10, 11, 13, 12
    a("v_lshlrev_b32 v20, 3, v3", "v_sub_u32 v20, v20, v2", "v_add_u32 v21, 16, v20", "v_lshrrev_b32 v21, 1, v21")
    a("v_and_b32 v22, 1, v2", f"s_add_u32 s{T0_}, s{S_GB}, {T_DRE}", f"v_lshl_add_u32 v21, v21, 2, s{T0_}", f"s_movk_i32 s{T0_}, {T_DRO - T_DRE}", f"s_movk_i32 s{T2_}, {T_G7O - T_G7E}")
    a(f"v_mad_u32_u24 v{VDA}, v22, s{T0_}, v21", f"v_add_u32 v{VDA2}, 640, v{VDA}")
    a(f"v_mad_u32_u24 v23, v22, s{T2_}, v21", f"v_add_u32 v{VG16}, {T_G7E - T_DRE}, v23")
    a("v_lshlrev_b32 v23, 2, v3", "v_sub_u32 v23, v23, v2", f"s_add_u32 s{T0_}, s{S_GB}, {T_G3 + 60}", f"v_lshl_add_u32 v{VG8}, v23, 2, s{T0_}")
    a(f"s_mul_i32 s{T2_}, s{S_G}, {U_SIZE}", f"s_add_u32 s{T2_}, s{T2_}, {C_U}")
    a(f"v_lshl_add_u32 v23, v2, 5, s{T2_}", f"v_lshl_add_u32 v{VB_}, v3, 4, v23")
    a("v_bfe_u32 v20, v1, 2, 2", "v_and_b32 v21, 3, v1", "v_lshl_add_u32 v20, v3, 3, v20")
    a(f"v_lshlrev_b32 v{VNA}, 2, v21")
    a(f"v_lshl_add_u32 v21, v21, 3, s{S_GB}", f"v_lshl_add_u32 v{VT8}, v20, 4, v21", f"v_lshl_add_u32 v{VT16}, v20, 5, v21")
    a(f"v_lshlrev_b32 v{VLN}, 4, v1")
    srd(a, R0, P_WS, 0x240000, WS_ZB1)
    if SWZ: a(f"s_mov_b32 s{CFL}, 0x8080")
    a(f"s_lshl_b32 s{T0_}, s{S_ROLE}, 19", f"s_lshl_b32 s{T1_}, s{S_B2}, 6", f"s_add_u32 s{T0_}, s{T0_}, s{T1_}")
    a(f"s_lshl_b32 s{T1_}, s{S_ROLE}, 16", f"s_lshl_b32 s{T3_}, s{S_CH}, 6", f"s_add_u32 s{T1_}, s{T1_}, s{T3_}", f"s_add_u32 s{T1_}, s{T1_}, {0x200000 - 512*64}")
    if SWZ:
        a(f"s_cmp_eq_u32 s{S_G}, 2", f"s_cselect_b32 s{CZ0}, s{T1_}, s{T0_}", f"s_cselect_b32 s{CSH}, 0x1080, s{CFL}", f"s_cselect_b32 s{T0_}, 1, 3")
        a(f"s_and_b32 s{T0_}, s{T0_}, s{S_ROLE}", f"s_lshl_b32 s{T0_}, s{T0_}, 11", f"s_xor_b32 s{CZ0}, s{CZ0}, s{T0_}", f"s_and_b32 s{CFL}, s{CZ0}, 0x7c0", f"s_xor_b32 s{CZ0}, s{CZ0}, s{CFL}", f"s_xor_b32 s{CZ1}, s{CZ0}, 0x6000")
    else:
        a(f"s_cmp_eq_u32 s{S_G}, 2", f"s_cselect_b32 s{CZ0}, s{T1_}, s{T0_}", f"s_cselect_b32 s{CSH}, 12, 15", f"s_add_u32 s{CZ1}, s{CZ0}, 16384")
    a(f"s_and_b32 s{CXR}, s{S_G}, 1", f"s_lshl_b32 s{CXR}, s{CXR}, 4", f"s_mov_b32 s{CM}, 0x55555555", f"s_mov_b32 s{CM+1}, 0x55555555")
    a(f"s_lshl_b32 s{T0_}, s{S_ROLE}, 8", f"s_add_u32 s{T0_}, s{T0_}, s{S_GB}", f"s_add_u32 s{T0_}, s{T0_}, 36", f"v_lshl_add_u32 v{D1}, v1, 2, s{T0_}")
    a(f"s_movk_i32 s{T0_}, {T_G7O - T_G7E}", f"s_cmp_eq_u32 s{S_ROLE}, 0", f"s_cselect_b32 s{T0_}, {T_G5 - T_G3}, s{T0_}", f"s_cmp_eq_u32 s{S_ROLE}, 3", f"s_cselect_b32 s{T0_}, {T_DRO - T_DRE}, s{T0_}")
    a(f"v_mov_b32 v20, s{S_GB}", f"ds_write_b16 v20, v{VZ} offset:{T_TAB + 2*IDX_ZERO}")
    a(f"s_mov_b32 s{SDL}, s{T0_}", f"v_mov_b32 v{D3}, v28")
    def stage_read():
        lds_wait(a, FL_PRE, 18, "b8")
        a(f"ds_read2st64_b64 v[28:31], v{D3} offset0:0 offset1:1", f"ds_read2st64_b64 v[32:35], v{D3} offset0:2 offset1:3")
    def stage_unpack():
        for k in range(16):
            src = 28 + k // 2; w = f"WORD_{k & 1}"
            if 108 + k in LFR: a(f"v_cvt_f32_u32_sdwa v{108+k}, v{src} dst_sel:DWORD dst_unused:UNUSED_PAD src0_sel:{w}")
            else: a(f"v_add_u32_sdwa v{108+k}, s{S_GB}, v{src} dst_sel:DWORD dst_unused:UNUSED_PAD src0_sel:DWORD src1_sel:{w}")
        a(f"v_add_u32 v{D3}, s{SDL}, v{D2}")
    stage_read()
    a("s_waitcnt lgkmcnt(0)")
    stage_unpack()
    ex = newlabel("EXP")
    if KOFF: a(f"s_lshl_b32 s{T0_}, s{S_G}, 5", f"s_add_u32 s{T0_}, s{T0_}, s{S_I}", f"s_cmp_ge_u32 s{T0_}, {64 + 24}", "s_cbranch_scc1 KC_RECV")
    a(f"s_mov_b32 s{T0_}, {f32(LOG2E_HI)}", f"s_mov_b32 s{T1_}, {f32(LOG2E_LO)}", f"s_mov_b32 s{T2_}, {f32(INV2PI_HI)}", f"s_mov_b32 s{T3_}, {f32(INV2PI_LO)}")
    a(f"s_waitcnt vmcnt(7)")
    a(f"v_lshlrev_b32 v16, 16, v{VLDT}")
    a(f"v_mul_f32 v17, s{T0_}, v16")
    a(f"v_fma_f32 v19, v16, s{T0_}, -v17", f"v_fmac_f32 v19, s{T1_}, v16")
    a("v_exp_f32 v17, v17")
    a(f"v_mul_f32 v19, {f32(math.log(2.0))}, v19")
    a("v_fmac_f32 v17, v17, v19")
    a("v_cvt_pk_bf16_f32 v16, 0, v17")
    a(f"s_waitcnt vmcnt(5)")
    stamp(a, 2)
    a(f"ds_write_b32 v{VZ}, v{VONE} offset:{FL_PARAM}")
    THH, THL = 68, 70
    for k in range(2): unpack(a, 20 + 2 * k, RAW + k)
    for k in range(2): a(f"v_pk_mul_f32 v[{20+2*k}:{21+2*k}], v[{20+2*k}:{21+2*k}], v[16:17] op_sel_hi:[1,0]")
    a("v_max_f32 v36, v20, v21")
    a(f"v_pk_mul_f32 v[{THH}:{THH+1}], v[22:23], s[{T2_}:{T3_}] op_sel_hi:[1,0]")
    a(f"v_pk_fma_f32 v[{THL}:{THL+1}], v[22:23], s[{T2_}:{T3_}], v[{THH}:{THH+1}] op_sel_hi:[1,0,1] neg_lo:[0,0,1] neg_hi:[0,0,1]")
    a(f"v_pk_fma_f32 v[{THL}:{THL+1}], v[22:23], s[{T2_}:{T3_}], v[{THL}:{THL+1}] op_sel:[0,1,0]")
    T = 90
    def cmul_(dr, di, ar, ai, br, bi, t=T):
        assert di not in (ar, br, bi)
        return [f"v_pk_mul_f32 v[{t}:{t+1}], v[{ai}:{ai+1}], v[{bi}:{bi+1}]",
                f"v_pk_mul_f32 v[{t+2}:{t+3}], v[{ai}:{ai+1}], v[{br}:{br+1}]",
                f"v_pk_fma_f32 v[{di}:{di+1}], v[{ar}:{ar+1}], v[{bi}:{bi+1}], v[{t+2}:{t+3}]",
                f"v_pk_fma_f32 v[{dr}:{dr+1}], v[{ar}:{ar+1}], v[{br}:{br+1}], v[{t}:{t+1}] neg_lo:[0,0,1] neg_hi:[0,0,1]"]
    def cm_(d, x, y, t=T): return cmul_(d, d + 2, x, x + 2, y, y + 2, t)
    def csq_(d, s_, t=T):
        return [f"v_pk_mul_f32 v[{t}:{t+1}], v[{s_+2}:{s_+3}], v[{s_+2}:{s_+3}]",
                f"v_pk_mul_f32 v[{t+2}:{t+3}], v[{s_}:{s_+1}], v[{s_+2}:{s_+3}]",
                f"v_pk_fma_f32 v[{d}:{d+1}], v[{s_}:{s_+1}], v[{s_}:{s_+1}], v[{t}:{t+1}] neg_lo:[0,0,1] neg_hi:[0,0,1]",
                f"v_pk_add_f32 v[{d+2}:{d+3}], v[{t+2}:{t+3}], v[{t+2}:{t+3}]"]
    def cmul(*x): a(*cmul_(*x))
    def csq(*x): a(*csq_(*x))
    CBR, CBI = 32, 34
    sk = newlabel("SK")
    a(f"s_cmp_eq_u32 s{S_ROLE}, 3", f"s_cbranch_scc1 {sk}")
    a("s_waitcnt vmcnt(1)")
    for k in range(2, 6): unpack(a, 20 + 2 * k, RAW + k)
    for k in range(2, 4): a(f"v_pk_mul_f32 v[{20+2*k}:{21+2*k}], v[{20+2*k}:{21+2*k}], v[16:17] op_sel_hi:[1,0]")
    cmul(CBR, CBI, 28, 30, 24, 26)
    a(f"v_max3_f32 v37, abs(v{CBI}), abs(v{CBI+1}), abs(v{CBR})", f"v_max_f32 v37, v37, abs(v{CBR+1})")
    a(f"{sk}:")
    a("s_waitcnt vmcnt(0)")
    a.flush(1)
    a("v_permlane32_swap_b32 v36, v37", "v_max_f32 v36, v36, v37")
    red32(a, "v_max_f32", 36, 38)
    a(f"v_readlane_b32 s{SM}, v36, 0", f"v_readlane_b32 s{SC}, v36, 32")
    a(f"s_add_u32 s{SC}, s{SC}, 0x7fffff", f"s_lshr_b32 s{SC}, s{SC}, 23", f"s_max_u32 s{SC}, s{SC}, 24", f"s_sub_u32 s{SSC}, 269, s{SC}", f"s_lshl_b32 s{SSC}, s{SSC}, 23")
    a(f"v_subrev_f32 v20, s{SM}, v20", f"v_subrev_f32 v21, s{SM}, v21")
    a(f"v_mul_f32 v20, {f32(LOG2E)}, v20", f"v_mul_f32 v21, {f32(LOG2E)}, v21")
    def scale_cb():
        a(f"v_pk_mul_f32 v[{CBR}:{CBR+1}], v[{CBR}:{CBR+1}], s[{SSC}:{SSC+1}] op_sel_hi:[1,0]", f"v_pk_mul_f32 v[{CBI}:{CBI+1}], v[{CBI}:{CBI+1}], s[{SSC}:{SSC+1}] op_sel_hi:[1,0]")
    def anchor(dr, di, l, conj=False):
        lit = {1: "1.0", 2: "2.0"}.get(l, f32(float(l)))
        for e in range(2):
            t = T + 4 * e
            if l != 1: a(f"v_mul_f32 v{t+1}, {lit}, v{THH+e}", f"v_mul_f32 v{t}, {lit}, v{20+e}")
        for e in range(2):
            t = T + 4 * e
            a(f"v_fract_f32 v{t+1}, v{t+1 if l != 1 else THH+e}")
        for e in range(2):
            t = T + 4 * e
            a(f"v_fmac_f32 v{t+1}, {lit}, v{THL+e}")
        for e in range(2):
            t = T + 4 * e
            a(f"v_exp_f32 v{t}, v{t if l != 1 else 20+e}", f"v_cos_f32 v{t+2}, v{t+1}", f"v_sin_f32 v{t+1}, v{t+1}")
        for e in range(2):
            t = T + 4 * e
            a(f"v_mul_f32 v{dr+e}, v{t}, v{t+2}")
            a(f"v_mul_f32 v{di+e}, v{t}, {'-' if conj else ''}v{t+1}")
    em = [0, None]
    def it(cms, row=None, x=None, y=None):
        if em[1]: a(em[1]); em[1] = None
        for k in range(4):
            for c in cms:
                if k < len(c): a(c[k])
        if row is None: return
        t = (98, 76)[em[0] & 1]; em[0] += 1
        for v, tt in ((x, t), (y, t + 2)):
            if v is not None: a(f"v_cvt_pk_f16_f32 v{tt}, v{v}, v{v+2}", f"v_cvt_pk_f16_f32 v{tt+1}, v{v+1}, v{v+3}")
        o = (row & 3) * KG_ROW // 8
        if y is None: em[1] = f"ds_write_b64 v{VEM + row//4}, v[{t}:{t+1}] offset:{8*o}"
        else: em[1] = f"ds_write2_b64 v{VEM + row//4}, v[{t}:{t+1}], v[{t+2}:{t+3}] offset0:{o} offset1:{o + KG_ROW//8}"
    G1, G2, G3 = 40, 44, 48
    VA, VB, VC, VD = 52, 56, 60, 64
    oth = lambda c, p, q: p if c != p else q
    jl = [newlabel("JOB") for _ in range(4)]; jn = newlabel("JOBJ")
    for r in (3, 1, 2): a(f"s_cmp_eq_u32 s{S_ROLE}, {r}", f"s_cbranch_scc1 {jl[r]}")
    anchor(G2, G2 + 2, 128); scale_cb(); anchor(G1, G1 + 2, 1)
    cur = CBR
    for c in range(8):
        nx = oth(cur, VA, VB)
        it([cm_(VC, cur, G2)] + ([cm_(nx, cur, G1, T + 4)] if c < 7 else []), 2 * c, cur, VC); cur = nx
    it([])
    a(f"s_branch {jn}")
    a(f"{jl[1]}:")
    anchor(G2, G2 + 2, 128); scale_cb(); csq(G3, G2); anchor(G1, G1 + 2, 2)
    it([cm_(VA, CBR, G3)]); cur = VA
    it([cm_(VD, VA, G3)])
    for c in range(4):
        nx = oth(cur, VA, VB)
        it([cm_(VC, cur, G2), cm_(nx, cur, G1, T + 4) if c < 3 else csq_(G3, G1, T + 4)], 2 * c, cur, VC); cur = nx
    cur = VD
    for aa in range(4):
        nx = oth(cur, VA, VB)
        it([cm_(VC, cur, G3)] + ([cm_(nx, cur, G2, T + 4)] if aa < 3 else []), 8 + 2 * aa, cur, VC); cur = nx
    it([])
    a(f"s_branch {jn}")
    a(f"{jl[3]}:")
    anchor(G1, G1 + 2, 8, conj=True)
    a(f"v_mov_b32 v{VA}, {f32(32768.0)}", f"v_mov_b32 v{VA+1}, {f32(32768.0)}", f"v_mov_b32 v{VA+2}, 0", f"v_mov_b32 v{VA+3}, 0")
    sc_ = lambda d, x: [f"v_pk_mul_f32 v[{d}:{d+1}], v[{x}:{x+1}], v[{VA}:{VA+1}]", f"v_pk_mul_f32 v[{d+2}:{d+3}], v[{x+2}:{x+3}], v[{VA}:{VA+1}]"]
    it([csq_(G2, G1), sc_(VC, G1)])
    ce, co = VA, VC
    for b in range(8):
        ne, no = oth(ce, VA, VB), oth(co, VC, VD)
        it([] if b == 7 else [sc_(ne, G2) if b == 0 else cm_(ne, ce, G2), cm_(no, co, G2, T + 4)], 2 * b, ce, co); ce, co = ne, no
    it([])
    a(f"ds_write_b8 v15, v{VONE} offset:{FL_G}")
    stamp(a, 3)
    if KOFF: a(f"s_cmp_eq_u32 s{S_G}, 2", "s_cbranch_scc1 KS_G0")
    a(f"s_branch {ex}")
    if KOFF:
        a("KC_SEND:")
        lds_wait(a, FL_NONCE, VNT, "nz", addr=VNA)
        a(f"s_lshl_b32 s{T0_}, s{S_CH}, 12", f"s_lshl_b32 s{T1_}, s{S_ROLE}, 10", f"s_add_u32 s{T0_}, s{T0_}, s{T1_}", f"s_add_u32 s{T0_}, s{T0_}, {hex(WS_KT - 512*4096)}", f"v_add_u32 v24, s{T0_}, v{VLN}")
        a(f"s_mov_b32 s{T1_}, 0xffff", f"v_lshlrev_b32 v25, 16, v{VNT}")
        for r in range(4): a(f"v_cvt_f16_f32 v{20+r}, v{20+r}")
        a(f"s_cmp_lg_u32 s{S_ROLE}, 2", "s_cbranch_scc1 KC_S2")
        a("s_mov_b32 exec_lo, 0", "s_mov_b32 exec_hi, 0xffff0000")
        a(f"v_mov_b32 v20, v{VPR}", f"v_lshrrev_b32 v21, 16, v{VPR}")
        a("s_mov_b64 exec, -1")
        a("KC_S2:")
        for r in range(4): a(f"v_bfi_b32 v{20+r}, s{T1_}, v{20+r}, v{25 if r & 1 else VNT}")
        a(f"global_store_dwordx4 v24, v[20:23], s[{P_WS}:{P_WS+1}] sc1")
        stamp(a, 4)
        a("s_branch KS_G0")
        a("KC_RECV:")
        a(f"s_cmp_eq_u32 s{S_ROLE}, 3", f"s_cbranch_scc1 {ex}")
        a(f"s_lshl_b32 s{T0_}, s{S_CH}, 12", f"s_lshl_b32 s{T1_}, s{S_ROLE}, 10", f"s_add_u32 s{T0_}, s{T0_}, s{T1_}", f"s_add_u32 s{T0_}, s{T0_}, {hex(WS_KT - 512*4096)}", f"v_add_u32 v24, s{T0_}, v{VLN}")
        lds_wait(a, FL_NONCE, VNT, "nz", addr=VNA, sleep=2)
        a(f"v_lshlrev_b32 v25, 16, v{VNT}")
        stamp(a, 2)
        lds_wait(a, FL_G + {0: 0, 1: 4, 2: 16}[ENV("KTRIG", 1)], 17, "b4", sleep=2)
        lp = newlabel("KP"); l1 = newlabel("KPE")
        a(f"s_branch {l1}")
        a(f"{lp}:")
        a("s_sleep 2")
        a(f"{l1}:")
        a(f"global_load_dwordx4 v[20:23], v24, s[{P_WS}:{P_WS+1}] {MOD('KMOD')}")
        guard(a)
        a("s_waitcnt vmcnt(0)")
        for r in range(4): a(f"v_xor_b32 v{20+r}, v{25 if r & 1 else VNT}, v{20+r}")
        a("v_or3_b32 v26, v20, v21, v22", "v_or_b32 v26, v26, v23", "v_cmp_lt_u32 vcc, 0xffff, v26", f"s_cbranch_vccnz {lp}")
        stamp(a, 3)
        for r in (0, 2): a(f"v_xor_b32 v{20+r}, v{VNT}, v{20+r}")
        for r in range(4): a(f"ds_write_b16 v{IXR[r]}, v{20+r}")
        a(f"s_cmp_lg_u32 s{S_ROLE}, 2", f"s_cbranch_scc1 {ex}")
        a("v_and_b32 v20, 0xffff, v20", "v_lshl_or_b32 v20, v21, 16, v20", f"v_lshlrev_b32 v21, 16, v{VDSK}")
        a("s_mov_b32 exec_lo, 0", "s_mov_b32 exec_hi, 0x10000")
        a(f"ds_write_b64 v14, v[20:21] offset:{C_PAR}")
        a("s_mov_b64 exec, -1")
        a(f"s_branch {ex}")
    a(f"{jl[2]}:")
    anchor(G2, G2 + 2, 128); scale_cb()
    it([csq_(G1, G2), cm_(VD, CBR, G2, T + 4)]); csq(G3, G1); csq(G3, G3)
    it([cm_(VA, CBR, G3), cm_(VC, VD, G3, T + 4)])
    ce, co = VA, VC
    for r in range(4):
        ne, no = oth(ce, VA, VB), oth(co, VC, VD)
        it([cm_(ne, ce, G1)] + ([cm_(no, co, G1, T + 4)] if r < 3 else []), 2 * r, ce, co); ce, co = ne, no
    it([], 8, ce, None)
    a(f"v_mov_b32 v36, {f32(2048.0*LOG2E)}", f"v_mul_f32 v24, s{SM}, v36", "v_max_f32 v24, 0, v24", "v_exp_f32 v24, v24")
    it([])
    a(f"s_sub_u32 s{SIS}, s{SC}, 7", f"s_lshl_b32 s{SIS}, s{SIS}, 23")
    a(f"v_lshlrev_b32 v25, 16, v{VDSK}", f"v_mul_f32 v24, s{SIS}, v24", f"v_mov_b32 v{VPR}, v24")
    a(f"ds_write_b64 v14, v[24:25] offset:{C_PAR}")
    a(f"{jn}:")
    a(f"ds_write_b8 v15, v{VONE} offset:{FL_G}")
    stamp(a, 3); kstamp(a, 2)
    for s in range(8): a(f"ds_read_b128 v[{40+4*s}:{43+4*s}], v{VTL} offset:{64*s}")
    a(f"v_mov_b32 v36, {f32(LOG2E)}", f"v_mul_f32 v36, s{SM}, v36")
    a(f"v_mul_f32 v37, {f32(2048.0)}, v36", "v_max_f32 v37, 0, v37", f"v_add_f32 v37, {f32(23.0)}, v37")
    for r in range(4):
        a(f"v_fma_f32 v{LFR[r]}, v{LFR[r]}, v36, -v37")
    for r in range(4):
        a(f"v_exp_f32 v{LFR[r]}, v{LFR[r]}")
    kstamp(a, 3)
    lds_wait(a, FL_G + 3, 17, "u8", addr=14)
    kstamp(a, 4)
    tr = LdsTrack(a); ids = []
    for s in range(8):
        ids.append(tr.issue(f"ds_read_b128 v[{72+4*s}:{75+4*s}], v{VTE} offset:{KG_T[3]+64*s}"))
    for s in range(8):
        tr.wait(ids[s])
        c = "0" if s < 2 else f"v[{20+4*(s&1)}:{23+4*(s&1)}]"
        a(f"v_mfma_f32_16x16x32_f16 v[{20+4*(s&1)}:{23+4*(s&1)}], v[{40+4*s}:{43+4*s}], v[{72+4*s}:{75+4*s}], {c}")
    for r in range(4): a(f"v_add_f32 v{20+r}, v{20+r}, v{24+r}")
    for r in range(4): a(f"v_mul_f32 v{20+r}, v{20+r}, v{LFR[r]}")
    kstamp(a, 5)
    if KOFF: a(f"s_cmp_eq_u32 s{S_G}, 2", "s_cbranch_scc1 KC_SEND")
    for r in range(4):
        a(f"v_cvt_f16_f32 v{20+r}, v{20+r}")
        a(f"ds_write_b16 v{IXR[r]}, v{20+r}")
    a(f"{ex}:")
    a(f"ds_write_b8 v15, v{VONE} offset:{FL_G+4}")
    a("v_mov_b32 v28, 0", "v_mov_b32 v29, 0", "v_mov_b32 v30, 0", "v_mov_b32 v31, 0", f"v_mov_b32 v32, s{S_GB}")
    a("s_waitcnt vmcnt(0)")
    kstamp(a, 6)
    lds_wait(a, FL_G + 4, 20, "b4", addr=14)
    stamp(a, 4); kstamp(a, 7)
    for e in range(3): a(f"ds_read_u16 v{20+e}, v{I1+e}")
    for e in range(4): a(f"ds_read_u16 v{23+e}, v{I2+e}")
    a("s_mov_b64 exec, 1")
    a(f"ds_write_b128 v32, v[28:31] offset:{R_WS5}", f"ds_write_b128 v32, v[28:31] offset:{R_WS9}", f"ds_write_b128 v32, v[28:31] offset:{R_WS3 + 192*16}")
    a("s_mov_b64 exec, -1")
    a("s_waitcnt lgkmcnt(7)")
    a("v_lshl_or_b32 v28, v21, 16, v20", "v_lshl_or_b32 v29, v22, 16, v21")
    a(f"ds_write_b32 v{D1}, v28 offset:{T_DRE}", f"ds_write_b32 v{D1}, v29 offset:{T_DRO}")
    a("s_waitcnt lgkmcnt(5)")
    a("v_lshl_or_b32 v30, v24, 16, v23", "v_lshl_or_b32 v31, v26, 16, v25")
    a(f"ds_write_b32 v{D2}, v30", f"ds_write_b32 v{D3}, v31")
    a(f"ds_write_b8 v15, v{VONE} offset:{FL_G+8}")
    kstamp(a, 8)
    lds_wait(a, FL_G + 8, 20, "b4", addr=14)
    stamp(a, 5)
    PR, FT0, FT1, ACCL, ACCH, ZQ = 16, 18, 19, 20, 24, 28
    VZA, VUA = VDA, VDA2
    LA = ENV("CLA", 6); RSV = ENV("CRSV", 5); NF = ENV("CNF", 2)
    jl = [newlabel("CV") for _ in range(4)]; zend = newlabel("CVE")
    slow = []
    a(f"ds_read_b64 v[{PR}:{PR+1}], v14 offset:{C_PAR}")
    for r in range(1, 4): a(f"s_cmp_eq_u32 s{S_ROLE}, {r}", f"s_cbranch_scc1 {jl[r]}")
    for m in range(4):
        if m: a(f"{jl[m]}:")
        lo, hi = 2 * m, 2 * m + 1
        acc = {lo: ACCL, hi: ACCH}
        ops = []
        if m >= 2:
            for j in (lo, hi): ops.append((j, ("D", 32), ("U", 8 * j - 32)))
        for p in range(max(8 * lo - 16, -7), 8 * hi + 1):
            for j in (lo, hi):
                ks = 8 * j - p
                if 0 <= ks <= 16: ops.append((j, ("D", ks), ("U", p)))
        ncomb0 = len(ops)
        for j in (lo, hi):
            for kind in (3, 5):
                for b in range(6):
                    if 2 <= j - b <= 4: ops.append((j, ("W", kind, b), ("G", kind, j - b)))
            for kind in (7, 9):
                for b in range(2):
                    if j - 2 * b - 4 >= 0: ops.append((j, ("W", kind, b), ("G", kind, j - 2 * b - 4)))
        nops = len(ops)
        first, last = {}, {}
        for k, (j, A, B) in enumerate(ops):
            for key in (A, B):
                first.setdefault(key, k); last[key] = k
        lastlo = max(k for k, o in enumerate(ops) if o[0] == lo)
        pool = list(range(32, 128, 4))
        reg, lid = {}, {}
        def load(tr, key):
            rg = pool.pop(0); reg[key] = rg
            if (XP & 8 and key[0] == "G") or (XP & 16 and key[0] == "W") or (XP & 32 and key[0] == "U"):
                lid[key] = -100; return
            if key[0] == "D":
                ksv = -2 if key[1] == 32 else key[1]
                o = (16 - ksv) * 16
                ad, o = (VDA, o) if o + 3 <= 255 else (VDA2, o - 160)
                tr.issue(f"ds_read2_b32 v[{rg}:{rg+1}], v{ad} offset0:{o} offset1:{o+1}")
                lid[key] = tr.issue(f"ds_read2_b32 v[{rg+2}:{rg+3}], v{ad} offset0:{o+2} offset1:{o+3}")
            elif key[0] == "G":
                _, kind, ix = key
                if kind in (3, 5): o = (4 - ix) * 16 + (64 if kind == 5 else 0); ad = VG8
                else: o = (3 - ix) * 8 + (96 if kind == 9 else 0); ad = VG16
                tr.issue(f"ds_read2_b32 v[{rg}:{rg+1}], v{ad} offset0:{o} offset1:{o+1}")
                lid[key] = tr.issue(f"ds_read2_b32 v[{rg+2}:{rg+3}], v{ad} offset0:{o+2} offset1:{o+3}")
            elif key[0] == "U":
                lid[key] = tr.issue(f"ds_read_b128 v[{rg}:{rg+3}], v{VB_} offset:{64*(key[1]+7)}")
            else:
                _, kind, b = key
                if kind in (3, 5): o = (R_WS3 if kind == 3 else R_WS5) + 512 * b; ad, st = VT8, 64
                else: o = (R_WS7 if kind == 7 else R_WS9) + 1024 * b; ad, st = VT16, 128
                tr.issue(f"ds_read_b64_tr_b16 v[{rg}:{rg+1}], v{ad} offset:{o}")
                lid[key] = tr.issue(f"ds_read_b64_tr_b16 v[{rg+2}:{rg+3}], v{ad} offset:{o+st}")
        keys = sorted(first, key=lambda k_: first[k_])
        tr = LdsTrack(a)
        for key in keys:
            if key[0] == "D": load(tr, key)
        for key in keys:
            if key[0] == "G" and len(pool) > RSV: load(tr, key)
        pend = [k_ for k_ in keys if k_ not in reg]
        a(f"v_lshlrev_b32 v{FT0}, 3, v3", f"v_sub_u32 v{FT0}, v{VB_}, v{FT0}")
        a(f"v_lshrrev_b32 v{FT1}, 2, v2", f"v_lshl_add_u32 v{FT1}, v{FT1}, 2, v3", f"v_and_b32 v{ZQ}, 3, v2", f"v_lshlrev_b32 v{ZQ}, 4, v{ZQ}")
        if SWZ: a(f"v_mul_u32_u24 v{FT1}, s{CSH}, v{FT1}", f"v_xor_b32 v{FT1}, s{CFL}, v{FT1}")
        else: a(f"v_lshlrev_b32 v{FT1}, s{CSH}, v{FT1}")
        a("s_waitcnt lgkmcnt(0)")
        a(f"v_mov_b32 v{VUA}, v{FT0}", f"v_add_u32 v{VZA}, v{FT1}, v{ZQ}")
        a(f"v_xor_b32 v{VLN}, s{CXR}, v{VLN}")
        lds_wait(a, FL_UF, FT0, "b4")
        a(f"s_setprio {eval(os.environ.get('CPRIO', '[1,1,1,1]'))[m]}")
        stamp(a, 6); cstamp(a, 1)
        if XP & 4: a(f"v_mov_b32 v{FT0}, 0", f"s_cmp_lg_u32 s{S_G}, 0", f"s_cbranch_scc1 {zend}")
        for key in lid: lid[key] = -100
        tr = LdsTrack(a)
        ud = {}
        fill = []
        fill.append(("lds", f"ds_read_b64 v[{ZQ}:{ZQ+1}], v{VUA} offset:{480 + 512*lo}", 2))
        fill.append(("ldsU", f"ds_read_b64 v[{ZQ+2}:{ZQ+3}], v{VUA} offset:{480 + 512*hi}", 2))
        for ti, j in enumerate((lo, hi)):
            fill.append(("alloc", j, 5))
            if ti == 0: fill.append(("waitU", None, 5))
            for e in range(4):
                sel = "op_sel:[1,0,0] " if e & 1 else ""
                fill.append(("f", (lambda j=j, e=e, ti=ti, sel=sel: f"v_fma_mix_f32 v{ud[j]+e}, v{ZQ+2*ti+e//2}, v{PR+1}, 0 {sel}op_sel_hi:[1,0,0]"), 5))
            for e in range(4):
                fill.append(("f", (lambda j=j, e=e: f"v_cvt_pk_bf16_f32 v{ud[j]+e}, 0, v{ud[j]+e}"), 5))
        def epi(j, ti):
            y = acc[j]; z = ZQ + 2 * ti; out = []
            for p in range(4): out.append(lambda p=p: f"v_mul_f32 v{y+p}, v{y+p}, v{PR}")
            for p in range(4): out.append(lambda p=p: f"v_cvt_pk_bf16_f32 v{y+p}, 0, v{y+p}")
            for p in range(4): out.append(lambda p=p: f"v_add_f32 v{y+p}, v{y+p}, v{ud[j]+p}")
            for p in range(2): out.append(lambda p=p: f"v_cvt_pk_bf16_f32 v{z+p}, v{y+2*p}, v{y+2*p+1}")
            for p in range(2): out.append(lambda p=p: f"v_min_u32 v{z+p}, -2, v{z+p}")
            return out
        for f in epi(lo, 0): fill.append(("f", f, lastlo + 2))
        fill.append(("lds", f"ds_read_u8 v{FT0}, v{VZ} offset:{FL_S6 + m}", nops - 4))
        fill.append(("lds", f"ds_read_b128 v[{ACCL}:{ACCL+3}], v{VLN} offset:{G_BASE + R_RED + 1024*m}", nops - 4))
        uid = [None]
        def do_fill(n, k):
            while n > 0 and fill:
                kind, t, e = fill[0]
                if e > k: return
                if kind == "alloc":
                    if len(pool) < 2: return
                    ud[t] = pool.pop(); fill.pop(0); continue
                fill.pop(0)
                if kind == "f":
                    if XP & 2 and "v_min" not in t(): continue
                    a(t())
                elif kind == "lds": tr.issue(t)
                elif kind == "ldsU": uid[0] = tr.issue(t)
                elif kind == "waitU": tr.wait(uid[0]); continue
                n -= 1
        kW = ncomb0 - LA if nops > ncomb0 else None
        wok = [False]
        def issue_loads(k, nmax):
            while pend and pool and nmax > 0:
                key = pend[0]
                if first[key] - k > (LA if key[0] != "G" else LA + 4): return
                if key[0] == "W" and not wok[0]:
                    alt = [x for x in pend if x[0] != "W" and first[x] - k <= LA + 2]
                    if not alt: return
                    key = alt[0]
                pend.remove(key); load(tr, key); nmax -= 1
        issue_loads(0, RSV)
        started = set()
        for k, (j, A, B) in enumerate(ops):
            assert A in reg and B in reg, (m, k, A, B)
            tr.wait(max(lid[A], lid[B]))
            c = f"v[{acc[j]}:{acc[j]+3}]" if j in started else "0"
            started.add(j)
            a(f"v_mfma_f32_16x16x32_f16 v[{acc[j]}:{acc[j]+3}], v[{reg[A]}:{reg[A]+3}], v[{reg[B]}:{reg[B]+3}], {c}")
            for key in (A, B):
                if last[key] == k: pool.append(reg[key])
            if kW is not None and k == kW - 3:
                wfid = tr.issue(f"ds_read_b32 v{FT0}, v14 offset:{FL_G + 12}")
            if k == kW:
                tr.wait(wfid)
                sl = newlabel("WS"); bk = newlabel("WB")
                a(f"v_cmp_ne_u32 vcc, s{S_ONES}, v{FT0}", f"s_cbranch_vccnz {sl}")
                a(f"{bk}:")
                slow.append((sl, bk))
                wok[0] = True
                cstamp(a, 3)
            issue_loads(k + 1, 2)
            do_fill(NF, k)
            if k == ncomb0 // 2: cstamp(a, 2)
            if k == ncomb0 - 1: cstamp(a, 4)
        cstamp(a, 5)
        do_fill(1000, 1000)
        assert not fill and not pend
        stamp(a, 7)
        for f in epi(hi, 1): a(f())
        if m < 3: a(f"s_branch {zend}")
    a(f"{zend}:")
    cstamp(a, 6)
    gA = newlabel("ZA"); gC = newlabel("ZC"); zs = newlabel("ZS"); zb = newlabel("ZB"); zc = newlabel("ZCB"); zd = newlabel("ZD")
    a("s_waitcnt lgkmcnt(0)")
    a(f"s_cmp_lg_u32 s{S_G}, 1", f"s_cbranch_scc1 {gA}")
    a(f"v_cmp_ne_u32 vcc, 1, v{FT0}", f"s_cbranch_vccnz {zs}")
    a(f"{zb}:")
    a(f"s_mov_b64 exec, s[{CM}:{CM+1}]")
    for k in range(4): a(f"v_swap_b32 v{ZQ+k}, v{ACCL+k}")
    a("s_mov_b64 exec, -1")
    cstamp(a, 8)
    a(f"buffer_store_dwordx4 v[{ZQ}:{ZQ+3}], v{VZA}, s[{R0}:{R0+3}], s{CZ1} offen sc1")
    a(f"buffer_store_dwordx4 v[{ACCL}:{ACCL+3}], v{VZA}, s[{R0}:{R0+3}], s{CZ0} offen sc1")
    if ENV("ZG2", 0) == 2: a(f"ds_write_b8 v15, v{VONE} offset:{FL_ZISS - 16}")
    a(f"s_branch {zd}")
    for (sl, bk) in slow:
        a(f"{sl}:")
        lds_wait(a, FL_G + 12, FT0, "b4", addr=14)
        a(f"s_branch {bk}")
    a(f"{zs}:")
    a(f"v_mov_b32 v{FT1}, s{S_ROLE}")
    l = newlabel("ZW")
    a(f"{l}:")
    a(f"ds_read_u8 v{FT0}, v{FT1} offset:{FL_S6}")
    guard(a)
    a("s_waitcnt lgkmcnt(0)")
    a(f"v_cmp_ne_u32 vcc, 1, v{FT0}", f"s_cbranch_vccnz {l}")
    a(f"v_lshl_add_u32 v{FT1}, v{FT1}, 10, v{VLN}")
    a(f"ds_read_b128 v[{ACCL}:{ACCL+3}], v{FT1} offset:{G_BASE + R_RED}")
    a("s_waitcnt lgkmcnt(0)")
    a(f"s_branch {zb}")
    a(f"{gA}:")
    a(f"s_cmp_lg_u32 s{S_G}, 0", f"s_cbranch_scc1 {gC}")
    a(f"v_mov_b32 v{FT1}, s{S_ROLE}", f"v_lshl_add_u32 v{FT0}, v{FT1}, 10, v{VLN}")
    a(f"ds_write_b128 v{FT0}, v[{ZQ}:{ZQ+3}] offset:{G_BASE + R_RED}")
    a(f"ds_write_b8 v{FT1}, v{VONE} offset:{FL_S6}")
    cstamp(a, 8)
    a(f"s_branch {zd}")
    a(f"{gC}:")
    cstamp(a, 8)
    a(f"buffer_store_dwordx4 v[{ZQ}:{ZQ+3}], v{VZA}, s[{R0}:{R0+3}], s{CZ0} offen sc1")
    a(f"{zd}:")
    stamp(a, 8)
    if DBG:
        a(f"s_mul_i32 s{T0_}, s{S_ROLE}, 1280", f"s_add_u32 s{T1_}, s{T0_}, s{S_GB}", f"v_lshl_add_u32 v20, v1, 2, s{T1_}")
        a(f"s_mul_i32 s{T1_}, s{S_CH}, 5376", f"s_add_u32 s{T1_}, s{T1_}, s{T0_}", f"s_add_u32 s{T1_}, s{T1_}, {hex(WS_DBG)}", f"v_lshl_add_u32 v21, v1, 2, s{T1_}")
        for k in range(5 + 1):
            a(f"ds_read_b32 v22, v20 offset:{R2 + 256*k}", "s_waitcnt lgkmcnt(0)", f"global_store_dword v21, v22, s[{P_WS}:{P_WS+1}] offset:{256*k}")
        a(f"ds_read_b32 v22, v14 offset:{C_PAR}", f"s_lshl_b32 s{T1_}, s{S_CH}, 2", f"s_add_u32 s{T1_}, s{T1_}, {hex(WS_DBG + 0x300000)}", f"v_mov_b32 v21, s{T1_}")
        a("s_waitcnt lgkmcnt(0)", f"global_store_dword v21, v22, s[{P_WS}:{P_WS+1}]")
    a(f"s_lshl_b32 s{T0_}, s{S_G}, 2", f"s_add_u32 s{T0_}, s{T0_}, s{S_ROLE}", f"v_mov_b32 v8, s{T0_}")
    a("s_waitcnt vmcnt(0)")
    a(f"ds_write_b8 v8, v{VONE} offset:{FL_ZDONE}")


def gen_wjobs(a):
    WA, WD = 10, 11
    end = newlabel("WJE"); w1 = newlabel("WJ1"); w2 = newlabel("WJ2")
    a(f"s_cmp_eq_u32 s{S_WAVE}, 2", f"s_cbranch_scc1 {w2}")
    if XP & 1: a(f"s_branch {w2}")
    a(f"s_add_u32 s{T0_}, s{S_WAVE}, 1", f"s_lshr_b32 s{T0_}, s{T0_}, 2", f"s_cmp_eq_u32 s{S_WAVE}, 1", f"s_cselect_b32 s{T0_}, 2, s{T0_}", f"s_lshl_b32 s{T0_}, s{T0_}, 10")
    a(f"v_lshl_add_u32 v{WA}, v1, 4, s{T0_}", f"v_add_u32 v{WD}, {G_BASE}, v{WA}")
    lds_wait(a, FL_UF, 12, "b4")
    a(f"s_setprio {ENV('WPRIO', 3)}")
    for g in range(3):
        E = 20 + 12 * g; o = C_U + U_SIZE * g + 2 * (240 - 16)
        a(f"ds_read_b128 v[{E}:{E+3}], v{WA} offset:{o}", f"ds_read_b128 v[{E+4}:{E+7}], v{WA} offset:{o+16}", f"ds_read_b64 v[{E+8}:{E+9}], v{WA} offset:{o+32}")
    a(f"s_cmp_eq_u32 s{S_WAVE}, 1", f"s_cbranch_scc1 {w1}")
    for full in (1, 0):
        if not full: a(f"{w1}:")
        for g in range(3):
            if g == 2: a(f"s_cmp_lt_u32 s{S_I}, 24", f"s_cbranch_scc1 {end}")
            E = lambda i: 20 + 12 * g + i
            O = lambda i: 56 + i
            T = lambda i: 65 + i
            Q = lambda i: 72 + i
            X = lambda i: 79 + i
            Y = lambda i: 85 + i
            W7, W9 = 92, 96
            a(f"ds_read_b32 v12, v{VZ} offset:{FL_G + 16*g + 4}")
            if g == 0: a("s_waitcnt lgkmcnt(7)")
            n = 8 if full else 7
            for i in range(1, n + 1): a(f"v_alignbit_b32 v{O(i)}, v{E(i+1)}, v{E(i)}, 16")
            for i in range(1, n + 1): a(f"v_pk_add_f16 v{T(i)}, v{O(i)}, v{E(i+1)}")
            for i in range(1, 5): a(f"v_pk_add_f16 v{X(i)}, v{T(i)}, v{O(i+1)}")
            for i in (range(2, 8) if full else range(3, 7)): a(f"v_pk_add_f16 v{Q(i)}, v{T(i)}, v{T(i+1)}")
            ok = newlabel("WJK")
            a("s_waitcnt lgkmcnt(0)")
            a(f"v_cmp_eq_u32 vcc, s{S_ONES}, v12", f"s_cbranch_vccnz {ok}")
            lds_wait(a, FL_G + 16 * g + 4, 12, "b4", sleep=1)
            a(f"{ok}:")
            off = G_SIZE * (g & 1)
            if g == 2: a(f"v_add_u32 v{WD}, {2*G_SIZE}, v{WD}")
            a(f"ds_write_b128 v{WD}, v[{X(1)}:{X(4)}] offset:{off + R_WS3}")
            for i in (range(2, 7) if full else range(3, 7)): a(f"v_pk_add_f16 v{Y(i)}, v{E(i)}, v{Q(i)}")
            a(f"ds_write_b128 v{WD}, v[{Y(3)}:{Y(6)}] offset:{off + R_WS5 + 16}")
            if full:
                for i in range(5, 8): a(f"v_pk_add_f16 v{X(i)}, v{T(i)}, v{O(i+1)}")
                for k in range(4): a(f"v_pk_add_f16 v{W7+k}, v{Q(2+k)}, v{X(4+k)}")
                a(f"ds_write_b128 v{WD}, v[{W7}:{W7+3}] offset:{off + R_WS7}")
                for k in range(4): a(f"v_pk_add_f16 v{W9+k}, v{Y(2+k)}, v{Q(4+k)}")
                a(f"ds_write_b128 v{WD}, v[{W9}:{W9+3}] offset:{off + R_WS9 + 16}")
            a(f"ds_write_b8 v116, v{VONE} offset:{FL_G + 16*g + 12}")
        a(f"s_branch {end}")
    a(f"{w2}:")
    for g in range(3): a(f"ds_write_b8 v116, v{VONE} offset:{FL_G + 16*g + 12}")
    if PF2 > PF1 or PFD:
        W2 = ENV("PF2W", 14)
        a(f"s_sub_u32 s{T2_}, s{S_I}, {ENV('PF2B', 18)}", f"s_and_b32 s{T2_}, s{T2_}, 31", f"s_cmp_ge_u32 s{T2_}, {W2}", f"s_cbranch_scc1 {end}")
        pf_lane(a, 100, 101)
        lds_wait(a, FL_UF, 12, "b4", sleep=1)
        if PF2 > PF1:
            pf_gu(a, 100, T2_, W2, PF1, PF2, 102, "KS_PF2D")
            a("KS_PF2D:")
        if PFD:
            a(f"s_sub_u32 s{T2_}, {W2-1}, s{T2_}")
            pf_down(a, T2_, W2, 0, PFD, 100, 120, end)
    a(f"{end}:")

def gen(a):
    label = NAME + "_kernel"
    a(f".globl {label}", ".p2align 8", f".type {label},@function", f"{label}:")
    a("s_cmp_ge_u32 s2, 256", "s_cbranch_scc1 KS_END")
    stamp_begin(a)
    a("s_load_dwordx16 s[4:19], s[0:1], 0", "s_load_dwordx16 s[20:35], s[0:1], 64", f"s_load_dwordx2 s[{P_WS}:{P_WS+1}], s[0:1], 128")
    a(f"v_readfirstlane_b32 s{S_WAVE}, v0", f"s_lshr_b32 s{S_WAVE}, s{S_WAVE}, 6")
    a(f"s_and_b32 s{S_XC}, s2, 7", f"s_lshr_b32 s{S_I}, s2, 3")
    if ENV("CPF", 1):
        a(f"s_cmp_lg_u32 s{S_WAVE}, {ENV('CPFW', 0)}", "s_cbranch_scc1 KS_CPE")
        cm = ENV("CPFM", 0)
        if cm == 1: a(f"s_sub_u32 s{T0_}, s{S_I}, 8", f"s_cmp_lt_u32 s{T0_}, 16", "s_cbranch_scc1 KS_CPE")
        if cm == 2: a(f"s_cmp_lt_u32 s{S_I}, 24", "s_cbranch_scc1 KS_CPE")
        if cm == 3: a(f"s_cmp_ge_u32 s{S_I}, 8", "s_cbranch_scc1 KS_CPE")
        if cm == 4: a(f"s_cmp_ge_u32 s{S_I}, 4", "s_cbranch_scc1 KS_CPE")
        if cm == 5: a(f"s_cmp_lt_u32 s{S_I}, 28", "s_cbranch_scc1 KS_CPE")
        a("s_getpc_b64 s[42:43]")
        a("KS_PC:")
        a(f"s_and_b32 s{T0_}, s{S_I}, 7", f"s_mul_i32 s{T0_}, s{T0_}, 4608", "v_and_b32 v126, 63, v0", f"v_lshl_add_u32 v126, v126, 7, s{T0_}", "v_min_u32 v126, KS_END-KS_PC, v126")
        a(f"global_load_dword v127, v126, s[42:43] {MOD('CPFMOD', '')}")
        a("KS_CPE:")
    if ENV("REMAP", 1):
        a(f"s_add_u32 s{T0_}, s{S_WAVE}, 8", f"s_sub_u32 s{T1_}, s{S_WAVE}, 4", f"s_cmp_lt_u32 s{S_WAVE}, 8", f"s_cselect_b32 s{T0_}, s{T0_}, s{T1_}")
        a(f"s_cmp_lt_u32 s{S_WAVE}, 4", f"s_cselect_b32 s{S_WAVE}, s{S_WAVE}, s{T0_}")
    a("v_and_b32 v1, 63, v0", "v_and_b32 v2, 15, v1", "v_lshrrev_b32 v3, 4, v1", f"v_mov_b32 v{VZ}, 0", f"v_mov_b32 v{VONE}, 1")
    a(f"s_mov_b32 s{S_GUARD}, {GUARD}", f"s_mov_b32 s{S_ONES}, 0x01010101")
    a(f"s_lshl_b32 s{S_B2}, s{S_XC}, 5", f"s_add_u32 s{S_B2}, s{S_B2}, s{S_I}")
    a(f"s_mul_i32 s{S_BLK}, s{S_XC}, 18", f"s_add_u32 s{S_BLK}, s{S_BLK}, s{S_I}")
    a(f"s_cmp_lt_u32 s{S_WAVE}, 4", "s_cbranch_scc1 KS_L")
    a(f"s_cmp_ge_u32 s{S_WAVE}, 12", "s_cbranch_scc1 KS_X")
    a("s_setprio 2")
    a(f"s_lshr_b32 s{S_G}, s{S_WAVE}, 2", f"s_sub_u32 s{S_G}, s{S_G}, 1")
    a(f"s_mul_i32 s{S_ROLE}, s{S_G}, 3", f"s_xor_b32 s{S_ROLE}, s{S_ROLE}, s{S_WAVE}", f"s_and_b32 s{S_ROLE}, s{S_ROLE}, 3")
    a(f"s_lshl_b32 s{S_CH}, s{S_B2}, 1", f"s_add_u32 s{S_CH}, s{S_CH}, s{S_G}")
    a(f"s_lshl_b32 s{T0_}, s{S_ROLE}, 11", f"s_add_u32 s{T0_}, s{T0_}, {C_STG}", f"v_lshl_add_u32 v28, v1, 3, s{T0_}")
    pre_ixlf(a)
    a("KS_GRP:")
    gen_group(a)
    a(f"s_cmp_lg_u32 s{S_WAVE}, 4", "s_cbranch_scc1 KS_K1")
    a("s_setprio 0")
    srd(a, R3, P_WS, 12288, WS_KEYS)
    a("v_and_b32 v6, 1, v1", "v_lshlrev_b32 v6, 4, v6", f"s_lshl_b32 s{T0_}, s{S_B2}, 5")
    lds_wait(a, FL_ZF, 8, "b4", sleep=1)
    a("s_mov_b64 exec, 3")
    a(f"s_setprio {ENV('KSPRIO', 1)}")
    a("KS_K0:")
    a(f"ds_read_b128 v[8:11], v6 offset:{C_KEY}")
    guard(a)
    a("s_waitcnt lgkmcnt(0)")
    a("v_min3_u32 v12, v8, v9, v10", "v_min_u32 v12, v12, v11", "v_cmp_eq_u32 vcc, 0, v12", "s_cbranch_vccnz KS_K0")
    a(f"buffer_store_dwordx4 v[8:11], v6, s[{R3}:{R3+3}], s{T0_} offen sc1")
    a("s_mov_b64 exec, -1")
    stamp2(a, 4)
    a("s_waitcnt vmcnt(0)")
    a(f"ds_write_b32 v{VZ}, v{VONE} offset:{FL_KACK}")
    a("KS_K1:")
    a(f"s_cmp_lt_u32 s{S_I}, 18", "s_cbranch_scc1 KS_T")
    a("s_waitcnt lgkmcnt(0)")
    endwave(a)
    a("KS_X:")
    a(f"s_cmp_lt_u32 s{S_I}, 24", "s_cbranch_scc1 KS_X2")
    a(f"s_setprio {ENV('KCPRIO', 2)}")
    a("KS_XC:")
    a(f"s_mov_b32 s{S_G}, 2", f"s_add_u32 s{S_ROLE}, s{S_WAVE}, 3", f"s_and_b32 s{S_ROLE}, s{S_ROLE}, 3")
    a(f"s_lshl_b32 s{S_CH}, s{S_XC}, 3", f"s_and_b32 s{T0_}, s{S_I}, 7", f"s_add_u32 s{S_CH}, s{S_CH}, s{T0_}", f"s_add_u32 s{S_CH}, s{S_CH}, 512")
    a(f"s_lshl_b32 s{T0_}, s{S_ROLE}, 11", f"s_add_u32 s{T0_}, s{T0_}, {C_STG}", f"v_lshl_add_u32 v28, v1, 3, s{T0_}")
    a("s_branch KS_GRP")
    a("KS_X2:")
    a(f"s_cmp_lt_u32 s{S_I}, 8", "s_cbranch_scc1 KS_X3")
    a(f"s_sub_u32 s{T5_}, s{S_WAVE}, 8")
    a("s_branch KS_LN1")
    a("KS_X3:")
    a(f"s_lshl_b32 s{T0_}, s2, 4", f"s_add_u32 s{T0_}, s{T0_}, s{S_WAVE}", f"s_cmp_lg_u32 s{T0_}, {16*ENV('NPUB', 2) + 12}", "s_cbranch_scc1 KS_X3B")
    a("s_setprio 3")
    a(f"s_memrealtime s[{T0_}:{T1_}]")
    a("v_and_b32 v6, 3, v1", "v_lshlrev_b32 v7, 2, v6", "v_min_u32 v6, 2, v6", "v_lshlrev_b32 v6, 2, v6", "v_cmp_eq_u32 vcc, 3, v1")
    a("s_waitcnt lgkmcnt(0)")
    a(f"v_mov_b32 v8, s{T0_}", f"v_mov_b32 v9, s{T1_}", "v_alignbit_b32 v8, v8, v8, v6", f"v_cndmask_b32 v9, v{VZ}, v9, vcc", "v_xor_b32 v8, v8, v9")
    a("v_and_b32 v9, 0xf0000fff, v8", "v_and_b32 v10, 0xfff000, v8", "v_lshl_or_b32 v9, v10, 4, v9", "v_lshrrev_b32 v10, 12, v8", "v_and_b32 v10, 0xf000, v10")
    a("v_or3_b32 v9, v9, v10, v9", "v_or_b32 v9, 0x80000000, v9")
    a("s_mov_b64 exec, 15")
    a(f"global_store_dword v7, v9, s[{P_DBG}:{P_DBG+1}] sc1")
    if SPIN: a(f"v_mov_b32 v8, s{T0_}", f"global_store_dword v7, v8, s[{P_DBG}:{P_DBG+1}] offset:64 sc1")
    a("s_mov_b64 exec, -1")
    a("s_setprio 0")
    a("KS_X3B:")
    if KOFF:
        a(f"s_setprio {ENV('KPPRIO', 3)}")
        a("s_branch KS_XC")
    a("s_waitcnt lgkmcnt(0)")
    a("s_barrier")
    a("s_branch KS_G")
    a("KS_X4:")
    a(f"s_cmp_lt_u32 s{S_I}, 18", "s_cbranch_scc1 KS_G")
    a("s_waitcnt vmcnt(0) lgkmcnt(0)")
    endwave(a)
    a("KS_L:")
    a("v_lshlrev_b32 v6, 2, v0", f"ds_write_b32 v6, v{VZ}")
    a("v_mov_b32 v8, 0", "v_mov_b32 v9, 0", f"s_min_u32 s{T0_}, s{S_WAVE}, 2", f"s_mul_i32 s{T0_}, s{T0_}, {U_SIZE}", "v_min_u32 v6, 59, v1", f"v_lshl_add_u32 v6, v6, 3, s{T0_}")
    a(f"ds_write_b64 v6, v[8:9] offset:{C_U}")
    a(f"s_mov_b32 s{T5_}, s{S_WAVE}")
    a(f"s_sub_u32 s{T0_}, s{S_I}, 8", f"s_cmp_lt_u32 s{T0_}, 16", "s_cbranch_scc0 KS_L0")
    a("KS_LN1:")
    a("s_setprio 3")
    gen_ln1(a)
    if NLL or NL2:
        if not NL: pf_lane(a, 46, 47)
        a(f"s_cmp_ge_u32 s{S_I}, 18", "s_cbranch_scc1 KS_LL2")
        if NLL:
            a(f"s_mul_i32 s{T2_}, s{S_WAVE}, 10", f"s_add_u32 s{T2_}, s{T2_}, s{S_I}", f"s_sub_u32 s{T2_}, s{T2_}, 8")
            pf_gu(a, 46, T2_, 40, PFA, PFA + 10 * NLL, 47, "KS_LLE")
        a("s_branch KS_LLE")
        a("KS_LL2:")
        if NL2:
            a(f"s_mul_i32 s{T2_}, s{S_WAVE}, 6", f"s_add_u32 s{T2_}, s{T2_}, s{S_I}", f"s_sub_u32 s{T2_}, s{T2_}, 18")
            pf_gu(a, 46, T2_, 24, PFA + 10 * NLL, PF0, 47, "KS_LLE")
        a("KS_LLE:")
    a(f"s_mov_b32 s{S_G}, 1")
    a("s_branch KS_L2B")
    a("KS_L0:")
    a(f"s_and_b32 s{T0_}, s{S_I}, 15", f"s_lshl_b32 s{T1_}, s{S_XC}, 4", f"s_add_u32 s{T0_}, s{T0_}, s{T1_}")
    a("v_and_b32 v59, 3, v1", "v_lshlrev_b32 v59, 2, v59")
    a(f"s_lshl_b32 s{T4_}, s{T0_}, 6", f"s_add_u32 s{T1_}, s{T4_}, {hex(WS_FLAG1)}", f"v_add_u32 v7, s{T1_}, v59")
    a(f"s_mul_i32 s{T1_}, s{T0_}, {CLR_WG}", f"s_add_u32 s{T1_}, s{T1_}, {hex(WS_CLR)}")
    a("v_lshlrev_b32 v6, 4, v0")
    a("v_mov_b32 v12, -1", "v_mov_b32 v13, -1", "v_mov_b32 v14, -1", "v_mov_b32 v15, -1")
    a("s_setprio 3")
    pf_lane(a, 16, 17)
    a("s_waitcnt lgkmcnt(0)")
    a(f"s_add_u32 s{R1}, s{P_WS}, s{T1_}", f"s_addc_u32 s{R1+1}, s{P_WS+1}, 0", f"s_mov_b32 s{R1+2}, {CLR_WG}", f"s_mov_b32 s{R1+3}, 0x20000")
    if ENV("UPRE", 0):
        srd(a, R0, P_WS, 0xC00000)
        a(f"s_lshl_b32 s{T2_}, s{S_WAVE}, 3", f"s_xor_b32 s{T2_}, s{T2_}, s{S_B2}", f"s_lshl_b32 s{T2_}, s{T2_}, 13")
        a(f"s_and_b32 s{T3_}, s{S_I}, 3", f"s_lshl_b32 s{T0_}, s{S_XC}, 2", f"s_add_u32 s{T3_}, s{T3_}, s{T0_}", f"s_lshl_b32 s{T3_}, s{T3_}, 13")
        a(f"s_add_u32 s{T0_}, s{T3_}, {256*8192}", f"s_cmp_eq_u32 s{S_WAVE}, 2", f"s_cselect_b32 s{T2_}, s{T0_}, s{T2_}")
        a(f"s_add_u32 s{T0_}, s{T3_}, {hex(WS_KT)}", f"s_cmp_eq_u32 s{S_WAVE}, 3", f"s_cselect_b32 s{T2_}, s{T0_}, s{T2_}")
        a(f"s_lshl_b32 s{T0_}, s{S_I}, 2", f"s_add_u32 s{T0_}, s{T0_}, s{S_WAVE}", f"s_and_b32 s{T0_}, s{T0_}, 0x72", f"s_cmp_gt_u32 s{T0_}, 0x62", f"s_cselect_b32 s{T0_}, 0, s{T0_}")
        a(f"s_bitcmp1_b32 s{T0_}, 1", "s_cbranch_scc1 KS_UPE")
        a("v_lshlrev_b32 v125, 7, v1", f"buffer_load_dword v124, v125, s[{R0}:{R0+3}], s{T2_} offen {MOD('UPMOD')}")
        a("KS_UPE:")
    a("s_barrier")
    if NE:
        a(f"s_and_b32 s{T2_}, s{S_I}, 15", f"s_lshl_b32 s{T3_}, s{S_WAVE}, 4", f"s_add_u32 s{T2_}, s{T2_}, s{T3_}")
        pf_gu(a, 16, T2_, 64, PFB + 16 * NL, PFA, 18, "KS_L1E")
        a("KS_L1E:")
    if ENV("CTRIG", 1): lds_wait(a, FL_PARAM, 8, "nz", sleep=2)
    for k in range((CLR_WG + 4095) // 4096):
        a(f"s_mov_b32 s{T0_}, {4096*k}")
        a(f"buffer_store_dwordx4 v[12:15], v6, s[{R1}:{R1+3}], s{T0_} offen {MOD('CMOD')}")
    stamp(a, 1)
    a(f"global_load_dword v58, v59, s[{P_DBG}:{P_DBG+1}] sc1")
    dbg_wait(a, 0)
    stamp(a, 2)
    a(f"ds_write_b32 v59, v58 offset:{FL_NONCE}")
    a("s_mov_b64 exec, 1")
    a(f"ds_add_rtn_u32 v8, v{VZ}, v{VONE} offset:{FL_LNACK}")
    a("s_mov_b64 exec, -1")
    for d in range(1, 4): a(f"v_lshrrev_b32 v{58-d}, {3*d}, v58")
    a("s_waitcnt lgkmcnt(0)")
    a(f"v_readfirstlane_b32 s{T0_}, v8")
    a(f"s_cmp_lg_u32 s{T0_}, 3", "s_cbranch_scc1 KS_L2")
    a("s_mov_b64 exec, 15")
    a(f"global_store_dword v7, v58, s[{P_WS}:{P_WS+1}] sc1")
    a("s_mov_b64 exec, -1")
    a(f"s_and_b32 s{T2_}, s{S_I}, 7")
    a(f"s_cmp_ge_u32 s{S_I}, 8", "s_cbranch_scc1 KS_L1C")
    if NN:
        a("s_setprio 0")
        lds_wait(a, FL_G + 32 + 4, 8, "b4", sleep=2)
        a("s_setprio 3")
        pf_gu(a, 16, T2_, 8, PF0, PF0 + 8 * NN, 18, "KS_L2")
    a("s_branch KS_L2")
    a("KS_L1C:")
    if NC: pf_gu(a, 16, T2_, 8, PF0 + 8 * NN, PF1, 18, "KS_L2")
    a("KS_L2:")
    a(f"s_mov_b32 s{S_G}, 0")
    a("KS_L2B:")
    srd(a, R0, P_WS, XBYTES, WS_UT)
    a("v_lshrrev_b32 v7, 1, v1", "v_lshlrev_b32 v7, 6, v7", "v_and_b32 v10, 1, v1", "v_lshl_add_u32 v7, v10, 4, v7", "v_lshlrev_b32 v9, 4, v1")
    a(f"s_lshl_b32 s{T0_}, s{S_WAVE}, 11", f"s_lshl_b32 s{T1_}, s{S_B2}, 13", f"s_add_u32 s{T1_}, s{T1_}, s{T0_}")
    if SWU:
        a(f"s_lshl_b32 s{T2_}, s{S_B2}, 7", f"s_and_b32 s{T3_}, s{T2_}, 0x380", f"v_xor_b32 v13, s{T3_}, v9", f"s_and_b32 s{T2_}, s{T2_}, 0x1c00", f"s_xor_b32 s{T1_}, s{T1_}, s{T2_}")
    else: a("v_mov_b32 v13, v9")
    a(f"s_xor_b32 s{T5_}, s{T1_}, 0x400")
    a(f"s_lshl_b32 s{T3_}, s{S_XC}, 3", f"s_add_u32 s{T3_}, s{T3_}, s{S_I}", f"s_add_u32 s{T3_}, s{T3_}, {512 - 24}")
    a(f"s_lshr_b32 s{T4_}, s{T3_}, 1", f"s_lshl_b32 s{T4_}, s{T4_}, 13", f"s_and_b32 s{T3_}, s{T3_}, 1", f"s_lshl_b32 s{T3_}, s{T3_}, 5")
    a(f"s_add_u32 s{T3_}, s{T3_}, s{T4_}", f"s_add_u32 s{T3_}, s{T3_}, s{T0_}")
    if SWU:
        a(f"s_lshr_b32 s{T4_}, s{T4_}, 6", f"s_and_b32 s{T2_}, s{T4_}, 0x780", f"v_xor_b32 v7, s{T2_}, v7", f"s_and_b32 s{T4_}, s{T4_}, 0x1800", f"s_xor_b32 s{T3_}, s{T3_}, s{T4_}")
    a(f"s_cmp_lt_u32 s{S_I}, 24", f"s_cselect_b32 s{T3_}, {XBYTES}, s{T3_}", f"s_cselect_b32 s{T2_}, 0, {hex(TAGM)}")
    a(f"v_mov_b32_dpp v64, v58 quad_perm:[0,1,0,1] {DPPM}", f"v_mov_b32_dpp v65, v58 quad_perm:[2,3,2,3] {DPPM}")
    a(f"s_bitcmp1_b32 s{S_I}, 0", "s_cselect_b64 vcc, -1, 0", "v_cndmask_b32 v64, v64, v65, vcc")
    for d in range(4): a(f"v_and_b32 v{60+d}, {hex(TAGM)}, v{58-d}")
    for d in range(3, 0, -1): a(f"v_lshrrev_b32 v{64+d}, {3*d}, v64")
    for d in range(4): a(f"v_and_b32 v{64+d}, s{T2_}, v{64+d}")
    a(f"s_lshl_b32 s{T4_}, s{S_WAVE}, 10", f"s_add_u32 s{T4_}, s{T4_}, {C_U + 480}")
    a("v_bfe_u32 v11, v1, 1, 1", f"v_mul_u32_u24 v11, {U_SIZE}, v11", "v_lshl_add_u32 v11, v10, 4, v11", "v_lshrrev_b32 v10, 2, v1", "v_lshl_add_u32 v11, v10, 5, v11", f"v_add_u32 v11, s{T4_}, v11")
    a(f"v_add_u32 v10, s{T4_}, v9")
    a(f"v_mov_b32 v116, s{S_WAVE}")
    a(f"s_add_u32 s{T0_}, s{T0_}, {hex(WS_FLAG1)}", "v_lshrrev_b32 v12, 2, v1", "v_lshl_add_u32 v12, v12, 6, v59", f"v_add_u32 v12, s{T0_}, v12")
    UT = eval(os.environ.get("UT", "(20, 4, 24)"))
    a(f"s_cmp_lt_u32 s{S_I}, 8", f"s_cselect_b32 s{T2_}, {UT[0]}, {UT[1]}", f"s_cmp_ge_u32 s{S_I}, 24", f"s_cselect_b32 s{T2_}, {UT[2]}, s{T2_}", f"v_mov_b32 v14, s{T2_}")
    a("s_setprio 0")
    a("s_waitcnt vmcnt(0)")
    a(f"ds_write_b8 v116, v{VONE} offset:{FL_UTOK + 4}")
    stamp(a, 8)
    lds_wait(a, FL_G, 8, "b4", addr=14, sleep=2)
    a("s_setprio 3")
    stamp(a, 5)
    if ENV("UDELAY", 0): a(f"s_sleep {ENV('UDELAY', 0)}")
    lp = newlabel("UP"); l1 = newlabel("UPE")
    UM = os.environ.get("UMOD", "sc1").replace("_", " ")
    MK = [6, 8, 10, 12]
    if ENV("MPOLL", 0):
        for m in MK: a(f"s_mov_b64 s[{m}:{m+1}], -1")
        a(f"s_mov_b32 s{SP0}, {hex(TAGM)}")
    a(f"s_branch {l1}")
    a(f"{lp}:")
    a(f"s_sleep {ENV('USLEEP', 2)}")
    a(f"{l1}:")
    if ENV("MPOLL", 0):
        lds = [f"buffer_load_dwordx4 v[20:23], v13, s[{R0}:{R0+3}], s{T1_} offen {UM}", f"buffer_load_dwordx4 v[24:27], v13, s[{R0}:{R0+3}], s{T5_} offen {UM}",
               f"buffer_load_dwordx4 v[28:31], v7, s[{R0}:{R0+3}], s{T3_} offen {UM}"]
        for k in range(3): a(f"s_mov_b64 exec, s[{MK[k]}:{MK[k]+1}]", lds[k])
        a(f"s_mov_b64 exec, s[{MK[3]}:{MK[3]+1}]")
        a(f"global_load_dword v32, v12, s[{P_WS}:{P_WS+1}] sc1", f"global_load_dword v33, v12, s[{P_WS}:{P_WS+1}] offset:1024 sc1")
        guard(a)
        for k in range(3):
            a(f"s_mov_b64 exec, s[{MK[k]}:{MK[k]+1}]", f"s_waitcnt vmcnt({4-k})")
            for d in range(4): a(f"v_xor_b32 v{20+4*k+d}, v{(64 if k == 2 else 60)+d}, v{20+4*k+d}")
            a(f"v_or3_b32 v44, v{20+4*k}, v{21+4*k}, v{22+4*k}", f"v_bitop3_b32 v44, v44, v{23+4*k}, s{SP0} bitop3:0xa8", f"v_cmp_ne_u32 s[{MK[k]}:{MK[k]+1}], 0, v44")
        a(f"s_mov_b64 exec, s[{MK[3]}:{MK[3]+1}]", "s_waitcnt vmcnt(0)")
        a("v_xor_b32 v32, v58, v32", "v_bitop3_b32 v32, v32, v58, v33 bitop3:0xf6", f"v_cmp_ne_u32 s[{MK[3]}:{MK[3]+1}], 0, v32")
        a(f"s_or_b64 vcc, s[{MK[0]}:{MK[0]+1}], s[{MK[1]}:{MK[1]+1}]", f"s_or_b64 vcc, vcc, s[{MK[2]}:{MK[2]+1}]", f"s_or_b64 vcc, vcc, s[{MK[3]}:{MK[3]+1}]", f"s_cbranch_scc1 {lp}")
        a("s_mov_b64 exec, -1")
    else:
        a(f"global_load_dword v32, v12, s[{P_WS}:{P_WS+1}] {MOD('FMOD')}", f"global_load_dword v33, v12, s[{P_WS}:{P_WS+1}] offset:1024 {MOD('FMOD')}")
        a(f"buffer_load_dwordx4 v[20:23], v13, s[{R0}:{R0+3}], s{T1_} offen {UM}")
        a(f"buffer_load_dwordx4 v[24:27], v13, s[{R0}:{R0+3}], s{T5_} offen {UM}")
        a(f"buffer_load_dwordx4 v[28:31], v7, s[{R0}:{R0+3}], s{T3_} offen {UM}")
        guard(a)
        for k in range(3):
            a(f"s_waitcnt vmcnt({2-k})")
            if k == 0: a("v_xor_b32 v32, v58, v32", "v_xor_b32 v33, v58, v33")
            for d in range(4): a(f"v_xor_b32 v{20+4*k+d}, v{(64 if k == 2 else 60)+d}, v{20+4*k+d}")
            a(f"v_or3_b32 v44, v{20+4*k}, v{21+4*k}, v{44 if k else 21}", f"v_or3_b32 v44, v{22+4*k}, v{23+4*k}, v44")
        a(f"v_and_b32 v44, {hex(TAGM)}, v44", "v_or3_b32 v44, v44, v32, v33", "v_cmp_ne_u32 vcc, 0, v44", f"s_cbranch_vccnz {lp}")
    stamp(a, 6)
    a("ds_write_b128 v11, v[20:23]", "ds_write_b128 v11, v[24:27] offset:512", f"ds_write_b128 v10, v[28:31] offset:{2*U_SIZE}")
    a(f"ds_write_b8 v116, v{VONE} offset:{FL_UF}")
    stamp(a, 7)
    gen_wjobs(a)
    a("s_setprio 0")
    a(f"s_lshr_b32 s{T0_}, s{S_B2}, 6", f"s_lshl_b32 s{T0_}, s{T0_}, 9")
    a(f"s_bfe_u32 s{T1_}, s{S_B2}, 0x20004", f"s_lshl_b32 s{T1_}, s{T1_}, 6", f"s_add_u32 s{T0_}, s{T0_}, s{T1_}")
    a(f"s_and_b32 s{T1_}, s{S_B2}, 3", f"s_lshl_b32 s{T1_}, s{T1_}, 4", f"s_add_u32 s{T0_}, s{T0_}, s{T1_}")
    a(f"s_and_b32 s{T1_}, s{S_B2}, 12", f"s_add_u32 s{T0_}, s{T0_}, s{T1_}")
    a(f"s_lshr_b32 s{T1_}, s{S_WAVE}, 1", f"s_lshl_b32 s{T1_}, s{T1_}, 8", f"s_add_u32 s{T0_}, s{T0_}, s{T1_}")
    a(f"s_and_b32 s{T1_}, s{S_WAVE}, 1", f"s_lshl_b32 s{T1_}, s{T1_}, 1", f"s_add_u32 s{T0_}, s{T0_}, s{T1_}")
    a("v_lshrrev_b32 v113, 5, v1", "v_and_b32 v114, 31, v1")
    a(f"v_add_u32 v112, s{T0_}, v113")
    a("v_mul_u32_u24 v115, 1152, v112", "v_lshl_add_u32 v8, v114, 2, v115", "v_lshl_add_u32 v115, v114, 4, v115", "v_lshlrev_b32 v7, 2, v114", "v_lshlrev_b32 v6, 4, v114")
    a(f"v_bfe_u32 v111, v1, 3, 1", f"v_add_u32 v111, s{T0_}, v111", "v_mul_u32_u24 v111, 1152, v111", "v_and_b32 v9, 7, v1", "v_lshl_add_u32 v111, v9, 4, v111")
    srd(a, R0, P_X, XBYTES)
    srd(a, R1, P_WR, 1152)
    a(f"buffer_load_dwordx4 v[10:13], v115, s[{R0}:{R0+3}], 0 offen")
    a(f"buffer_load_dwordx4 v[14:17], v115, s[{R0}:{R0+3}], 0 offen offset:512")
    a(f"buffer_load_dword v18, v8, s[{R0}:{R0+3}], 0 offen offset:1024")
    a(f"buffer_load_dwordx4 v[50:53], v6, s[{R1}:{R1+3}], 0 offen")
    a(f"buffer_load_dwordx4 v[54:57], v6, s[{R1}:{R1+3}], 0 offen offset:512")
    a(f"buffer_load_dword v58, v7, s[{R1}:{R1+3}], 0 offen offset:1024")
    if not PTAG:
        a(f"s_cmp_lt_u32 s{S_I}, 18", "s_cbranch_scc1 KS_L4")
        a(f"s_mul_i32 s{T0_}, s{S_XC}, 14", f"s_add_u32 s{T0_}, s{T0_}, s{S_I}", f"s_mul_i32 s{T0_}, s{T0_}, {CLRP_WG}", f"s_add_u32 s{T0_}, s{T0_}, {hex(WS_PART - 18*CLRP_WG)}")
        a(f"s_add_u32 s{R1}, s{P_WS}, s{T0_}", f"s_addc_u32 s{R1+1}, s{P_WS+1}, 0", f"s_mov_b32 s{R1+2}, {CLRP_WG}", f"s_mov_b32 s{R1+3}, 0x20000")
        a("v_lshlrev_b32 v6, 4, v0", "v_mov_b32 v60, -1", "v_mov_b32 v61, -1", "v_mov_b32 v62, -1", "v_mov_b32 v63, -1")
        for k in range(6):
            a(f"s_movk_i32 s{T0_}, {4096*k}")
            a(f"buffer_store_dwordx4 v[60:63], v6, s[{R1}:{R1+3}], s{T0_} offen sc1")
    a("KS_L4:")
    srd(a, R0, P_WS, 0x240000, WS_ZB1)
    srd(a, R1, P_OUT, XBYTES)
    srd(a, R2_, P_WS, XBYTES, WS_X2)
    srd(a, R3, P_WS, 12288, WS_KEYS)
    if not XCL:
        for d in range(4): a(f"v_mov_b32 v{60+d}, -1")
        a(f"buffer_store_dwordx4 v[60:63], v115, s[{R2_}:{R2_+3}], 0 offen sc1")
        a(f"buffer_store_dwordx4 v[60:63], v115, s[{R2_}:{R2_+3}], 0 offen offset:512 sc1")
        a("s_mov_b64 exec, 0xffff")
        a(f"buffer_store_dwordx4 v[60:63], v111, s[{R2_}:{R2_+3}], 0 offen offset:1024 sc1")
        a("s_mov_b64 exec, -1")
    a(f"s_not_b32 s{T1_}, s{S_B2}", f"v_xor_b32 v8, s{T1_}, v0")
    a("v_lshrrev_b32 v6, 1, v0", "v_lshlrev_b32 v6, 6, v6", "v_and_b32 v8, 1, v8", "v_lshl_add_u32 v6, v8, 4, v6")
    a(f"s_lshr_b32 s{T0_}, s{S_B2}, 2", f"s_lshl_b32 s{T0_}, s{T0_}, 15", f"s_and_b32 s{T1_}, s{S_B2}, 1", f"s_lshl_b32 s{T1_}, s{T1_}, 14", f"s_add_u32 s{T0_}, s{T0_}, s{T1_}")
    a(f"s_and_b32 s{T1_}, s{S_B2}, 2", f"s_lshl_b32 s{T1_}, s{T1_}, 4", f"s_add_u32 s{T0_}, s{T0_}, s{T1_}")
    a(f"s_lshr_b32 s{T2_}, s{S_B2}, 2", f"s_lshl_b32 s{T2_}, s{T2_}, 12", f"s_and_b32 s{T1_}, s{S_B2}, 3", f"s_lshl_b32 s{T1_}, s{T1_}, 4")
    a(f"s_add_u32 s{T2_}, s{T2_}, s{T1_}", f"s_lshl_b32 s{T1_}, s{S_WAVE}, 10", f"s_add_u32 s{T2_}, s{T2_}, s{T1_}", f"s_add_u32 s{T2_}, s{T2_}, 0x200000")
    a("v_lshlrev_b32 v9, 6, v2")
    if SWZ:
        a(f"s_lshl_b32 s{T1_}, s{S_B2}, 5", f"s_and_b32 s{T3_}, s{T1_}, 0x1f80", f"v_xor_b32 v6, s{T3_}, v6", f"s_and_b32 s{T3_}, s{T1_}, 0x380", f"v_xor_b32 v9, s{T3_}, v9")
        a(f"s_and_b32 s{T3_}, s{T1_}, 0xc00", f"s_xor_b32 s{T2_}, s{T2_}, s{T3_}", f"s_and_b32 s{T1_}, s{S_B2}, 1", f"s_lshl_b32 s{T1_}, s{T1_}, 13", f"s_xor_b32 s{T0_}, s{T0_}, s{T1_}")
    a(f"s_xor_b32 s{T1_}, s{T0_}, 0x2000")
    a(f"s_mul_i32 s{T3_}, s{S_WAVE}, 2304", f"s_add_u32 s{T3_}, s{T3_}, {C_XR}", f"v_lshl_add_u32 v117, v114, 5, s{T3_}", f"v_lshl_add_u32 v110, v114, 3, s{T3_}")
    a(f"s_lshl_b32 s{T3_}, s{S_WAVE}, 9", f"s_add_u32 s{T3_}, s{T3_}, {G_BASE}", f"v_lshl_add_u32 v108, v1, 2, s{T3_}", f"v_lshl_add_u32 v109, v1, 4, s{T3_}")
    a(f"s_mov_b32 s{T3_}, 0x02020000", f"v_mul_lo_u32 v118, v113, s{T3_}", "v_add_u32 v118, 0x01000c0c, v118")
    a(f"v_lshlrev_b32 v8, 2, v0", f"v_add_u32 v8, {C_XR}, v8")
    a(f"s_lshl_b32 s{T3_}, s{S_WAVE}, 6", f"s_add_u32 s{T3_}, s{T3_}, {C_XR + 2048}", f"v_lshl_add_u32 v119, v2, 2, s{T3_}")
    a("s_waitcnt vmcnt(0)")
    X = 20
    for j in range(9): unpack(a, X + 2 * j, 10 + j)
    WU, WS_ = 80, 78
    for j in range(9): unpack(a, WU + 2 * j, 50 + j)
    a(f"v_pk_add_f32 v[{WS_}:{WS_+1}], v[{WU}:{WU+1}], v[{WU+2}:{WU+3}]")
    for j in range(2, 9): a(f"v_pk_add_f32 v[{WS_}:{WS_+1}], v[{WS_}:{WS_+1}], v[{WU+2*j}:{WU+2*j+1}]")
    a(f"v_add_f32 v{WS_}, v{WS_}, v{WS_+1}")
    red32(a, "v_add_f32", WS_, WS_ + 1)
    a("v_sub_u32 v98, 0x87ff, v112", "v_lshl_add_u32 v99, v116, 1, v113", "v_lshlrev_b32 v99, 2, v99")
    ZG2 = ENV("ZG2", 0)
    if ZG2:
        lds_wait(a, {1: FL_ZDONE, 2: FL_ZISS}[ZG2], 60, "b4", sleep=1)
        zpoll(a, [f"buffer_load_dwordx4 v[68:71], v{VZ}, s[{R0}:{R0+3}], s{T2_} offen sc1"], list(range(68, 72)), ENV("ZSLEEP2", 2))
    lds_wait(a, FL_ZDONE + 4, 60, "b4", sleep=1)
    a("s_setprio 3")
    if PFD2 > PFD:
        W3 = ENV("PF3W", 6)
        a(f"s_sub_u32 s{T5_}, s{S_I}, 18", f"s_cmp_ge_u32 s{T5_}, {W3}", "s_cbranch_scc1 KS_PF3E", f"s_cmp_lg_u32 s{S_WAVE}, 2", "s_cbranch_scc1 KS_PF3E")
        pf_down(a, T5_, W3, PFD, PFD2, 100, 120, "KS_PF3E", R4)
        a("KS_PF3E:")
    stamp2(a, 1)
    if ENV("ZGATE", 1) and not ZG2:
        zpoll(a, [f"buffer_load_dwordx4 v[68:71], v{VZ}, s[{R0}:{R0+3}], s{T2_} offen sc1"], list(range(68, 72)), ENV("ZSLEEP", 1))
        if ENV("ZDELAY", 0): a(f"s_sleep {ENV('ZDELAY', 0)}")
    lp = newlabel("ZP"); l1 = newlabel("ZPE")
    a(f"s_branch {l1}", f"{lp}:", f"s_sleep {ENV('ZSLEEP', 1)}", f"{l1}:")
    a(f"buffer_load_dwordx4 v[60:63], v6, s[{R0}:{R0+3}], s{T0_} offen sc1",
      f"buffer_load_dwordx4 v[64:67], v6, s[{R0}:{R0+3}], s{T1_} offen sc1",
      f"buffer_load_dwordx4 v[68:71], v9, s[{R0}:{R0+3}], s{T2_} offen sc1")
    guard(a)
    for k in range(3):
        a(f"s_waitcnt vmcnt({2-k})")
        ad, o = (8, 4 * k) if k < 2 else (119, 0)
        a(f"ds_write2st64_b32 v{ad}, v{60+4*k}, v{61+4*k} offset0:{o} offset1:{9+o}")
        a(f"ds_write2st64_b32 v{ad}, v{62+4*k}, v{63+4*k} offset0:{18+o} offset1:{27+o}")
        a(f"v_max3_u32 v44, v{60+4*k}, v{61+4*k}, v{44 if k else 61}", f"v_max3_u32 v44, v{62+4*k}, v{63+4*k}, v44")
    a("v_cmp_eq_u32 vcc, -1, v44", f"s_cbranch_vccnz {lp}")
    a(f"ds_write_b8 v116, v{VONE} offset:{FL_ZF}")
    stamp2(a, 3)
    lp = newlabel("ZW")
    a(f"{lp}:")
    a(f"ds_read_b32 v44, v{VZ} offset:{FL_ZF}")
    for k in range(4):
        a(f"ds_read_b128 v[{60+4*k}:{63+4*k}], v117 offset:{1024*(k>>1) + 16*(k&1)}")
    a("ds_read_b64 v[76:77], v110 offset:2048")
    guard(a)
    a("s_waitcnt lgkmcnt(5)")
    a(f"v_cmp_ne_u32 vcc, s{S_ONES}, v44", f"s_cbranch_vccnz {lp}")
    for j in range(9):
        if j % 2 == 0: a(f"s_waitcnt lgkmcnt({4-j//2})")
        a(f"v_perm_b32 v{60+2*j}, v{60+2*j}, v{60+2*j}, v118", f"v_perm_b32 v{61+2*j}, v{61+2*j}, v{61+2*j}, v118")
        h = f"v[{X+2*j}:{X+2*j+1}]"
        a(f"v_pk_add_f32 {h}, v[{60+2*j}:{61+2*j}], {h}")
        if j == 0: a(f"v_pk_mul_f32 v[42:43], {h}, {h}", f"v_pk_mul_f32 v[44:45], {h}, v[{WU}:{WU+1}]")
        else:
            a(f"v_pk_fma_f32 v[42:43], {h}, {h}, v[42:43]", f"v_pk_fma_f32 v[44:45], {h}, v[{WU+2*j}:{WU+2*j+1}], v[44:45]")
            a(f"v_pk_add_f32 v[40:41], {h}, " + (f"v[{X}:{X+1}]" if j == 1 else "v[40:41]"))
    a("v_add_f32 v42, v42, v43", "v_add_f32 v44, v44, v45", "v_add_f32 v40, v40, v41")
    a("v_mov_b32 v41, v40", "v_permlane16_swap_b32 v42, v44", "v_permlane16_swap_b32 v40, v41")
    a("v_add_f32 v42, v42, v44", "v_add_f32 v40, v40, v41")
    for r in (8, 4, 2, 1):
        a(f"v_add_f32_dpp v42, v42, v42 row_ror:{r} {DPPM}", f"v_add_f32_dpp v40, v40, v40 row_ror:{r} {DPPM}")
    a(f"v_mul_f32 v40, {f32(1.0/576)}, v40", "v_mov_b32 v44, v42")
    a("v_cvt_pk_bf16_f32 v41, 0, v40", "v_mul_f32 v40, v40, v40")
    a("v_permlane16_swap_b32 v42, v44")
    a(f"v_mov_b32 v43, {f32(1.0/576)}", "v_fma_f32 v42, v42, v43, -v40", f"v_fma_f32 v44, -v41, v{WS_}, v44", "v_max_f32 v42, 0, v42")
    a(f"v_cvt_pk_bf16_f32 v42, 0, v42", f"v_add_f32 v42, {f32(1e-5)}, v42")
    a(f"v_cvt_pk_bf16_f32 v42, 0, v42", "v_sqrt_f32 v42, v42")
    a(f"v_cvt_pk_bf16_f32 v42, 0, v42", "v_rcp_f32 v42, v42")
    a("v_mul_f32 v60, v44, v42")
    a("v_cvt_pk_bf16_f32 v60, v60, v60")
    a("v_ashrrev_i32 v61, 31, v60", "v_or_b32 v61, 0x80000000, v61", f"s_mov_b32 s{T3_}, 0xffff0000", "v_xor_b32 v60, v60, v61", f"v_and_or_b32 v60, v60, s{T3_}, v98")
    a("s_mov_b32 exec_lo, 1", "s_mov_b32 exec_hi, 1")
    a(f"ds_write_b32 v99, v60 offset:{C_KEY}")
    a("s_mov_b64 exec, -1")
    stamp2(a, 4)
    a(f"s_setprio {ENV('L2PRIO', 2)}")
    for j in range(9):
        rnd2(a, X + 2 * j)
    ln_stats(a, X, 40, 42, 44, 46, 48)
    for j in range(9):
        ln_apply_pair(a, X + 2 * j, 40, 42, 44, 10 + j)
        a(f"v_pk_add_f32 v[{X+2*j}:{X+2*j+1}], v[44:45], v[{X+2*j}:{X+2*j+1}]")
        if XCL != 2: a(f"v_min_u32 v{10+j}, -2, v{10+j}")
    a(f"v_cvt_pk_bf16_f32 v58, v{X+16}, v{X+17}")
    a("ds_write_b32 v108, v18", "ds_write_b32 v108, v58 offset:256", "ds_read_b128 v[64:67], v109")
    a(f"buffer_store_dwordx4 v[10:13], v115, s[{R2_}:{R2_+3}], 0 offen sc1")
    a(f"buffer_store_dwordx4 v[14:17], v115, s[{R2_}:{R2_+3}], 0 offen offset:512 sc1")
    for j in range(8):
        a(f"v_cvt_pk_bf16_f32 v{50+j}, v{X+2*j}, v{X+2*j+1}")
    a("s_mov_b64 exec, 0xffff")
    a("s_waitcnt lgkmcnt(0)")
    a(f"buffer_store_dwordx4 v[64:67], v111, s[{R2_}:{R2_+3}], 0 offen offset:1024 sc1")
    if ENV("OD", 0): a("s_setprio 0", f"s_sleep {ENV('OD', 0)}")
    a("s_mov_b64 exec, 0xffff0000")
    a(f"buffer_store_dwordx4 v[64:67], v111, s[{R1}:{R1+3}], 0 offen offset:1024 sc1")
    a("s_mov_b64 exec, -1")
    a(f"buffer_store_dwordx4 v[50:53], v115, s[{R1}:{R1+3}], 0 offen sc1")
    a(f"buffer_store_dwordx4 v[54:57], v115, s[{R1}:{R1+3}], 0 offen offset:512 sc1")
    stamp2(a, 5)
    a("s_waitcnt vmcnt(0)")
    a("s_mov_b64 exec, 1")
    a(f"ds_add_rtn_u32 v62, v{VZ}, v{VONE} offset:{FL_F2CNT}")
    a("s_waitcnt lgkmcnt(0)")
    a("v_cmp_eq_u32 vcc, 3, v62", "s_and_b64 exec, exec, vcc", "s_cbranch_execz KS_NOF2")
    a(f"s_lshl_b32 s{T0_}, s2, 4", f"s_add_u32 s{T0_}, s{T0_}, 8192")
    a(f"buffer_store_dword v{VONE}, v{VZ}, s[{R3}:{R3+3}], s{T0_} offen sc1")
    a("KS_NOF2:")
    a("s_mov_b64 exec, -1")
    a("s_setprio 0")
    a(f"s_cmp_lt_u32 s{S_I}, 18", "s_cbranch_scc1 KS_B")
    a("s_waitcnt lgkmcnt(0)")
    endwave(a)
    a("KS_T:")
    a("s_setprio 0")
    a(f"s_cmp_ge_u32 s{S_WAVE}, 10", "s_cbranch_scc1 KS_P")
    a("v_and_b32 v6, 1, v1", "v_subrev_u32 v6, 1, v6")
    a("v_and_b32 v7, 7, v1", "v_lshlrev_b32 v7, 2, v7")
    srd(a, R3, P_WS, 12288, WS_KEYS)
    a(f"s_cmp_eq_u32 s{S_WAVE}, 9", "s_cbranch_scc1 KS_W9")
    a(f"s_cmp_eq_u32 s{S_WAVE}, 8", "s_cbranch_scc1 KS_L2W")
    a(f"s_sub_u32 s{T1_}, s{S_WAVE}, 4", f"s_lshl_b32 s{T0_}, s{T1_}, 10", f"v_lshl_add_u32 v33, v1, 4, s{T0_}", f"s_movk_i32 s{T0_}, 4096")
    a(f"s_lshl_b32 s{T1_}, s{T1_}, 7", "v_lshlrev_b32 v32, 4, v2", "v_lshl_add_u32 v32, v3, 5, v32", f"v_add_u32 v32, s{T1_}, v32")
    lds_wait(a, FL_KACK, 8, "nz", sleep=1)
    a("s_setprio 2")
    if ENV('KDELAY', 12): a(f"s_sleep {ENV('KDELAY', 12)}")
    stamp2(a, 1)
    zpoll(a, [f"buffer_load_dwordx4 v[8:11], v33, s[{R3}:{R3+3}], 0 offen sc1",
           f"buffer_load_dwordx4 v[12:15], v33, s[{R3}:{R3+3}], s{T0_} offen sc1"], list(range(8, 16)), ENV("KSLEEP", 4))
    a(f"ds_write_b32 v{VZ}, v{VONE} offset:{FL_KSEEN}")
    stamp2(a, 2)
    pool = Pool(range(16, 28))
    x = [8, 9, 10, 11]; y = [12, 13, 14, 15]
    for (i, j) in ((0, 1), (2, 3), (0, 2), (1, 3), (1, 2)):
        ce_inlane(a, x, i, j, pool); ce_inlane(a, y, i, j, pool)
    clean8(a, x, pool, 6, rev=True); clean8(a, y, pool, 6, rev=True)
    merge_pair(a, x, y, pool); clean8(a, x, pool, 6)
    for M in MIRRORS:
        merge_mirror(a, x, pool, M); clean8(a, x, pool, 6)
    for i in range(4): a(f"v_mov_b32 v{28+i}, v{x[i]}")
    a("s_mov_b32 exec_lo, 0x00030003", "s_mov_b32 exec_hi, 0x00030003")
    a(f"ds_write_b128 v32, v[28:31] offset:{C_CAND}")
    a("s_mov_b64 exec, -1")
    stamp2(a, 3)
    a("s_setprio 0")
    a("s_branch KS_B")
    a("KS_L2W:")
    srd(a, R2_, P_WS, XBYTES, WS_X2)
    a(f"s_mov_b32 s{T0_}, 0xcccccccc", f"s_mov_b32 s{T1_}, 0xcccccccc", f"s_mov_b32 s{T2_}, 0xf0f0f0f0", f"s_mov_b32 s{T3_}, 0xf0f0f0f0", f"s_movk_i32 s{T4_}, 1152")
    a("v_lshrrev_b32 v34, 3, v1", "v_lshlrev_b32 v34, 4, v34", "v_lshlrev_b32 v33, 4, v2")
    lds_wait(a, FL_KACK, 8, "nz", sleep=1)
    a("s_setprio 2")
    a("KS_L2POLL:")
    a(f"ds_read_b128 v[8:11], v33 offset:{C_CAND}")
    a(f"ds_read_b128 v[12:15], v33 offset:{C_CAND + 256}")
    guard(a)
    a("s_waitcnt lgkmcnt(0)")
    a("v_min3_u32 v16, v8, v9, v10", "v_min3_u32 v17, v11, v12, v13", "v_min3_u32 v16, v16, v14, v15", "v_min_u32 v16, v16, v17", "v_cmp_eq_u32 vcc, 0, v16")
    a("s_cbranch_vccnz KS_L2POLL")
    stamp2(a, 1)
    pool = Pool(range(16, 28))
    x = [8, 9, 10, 11]; y = [12, 13, 14, 15]
    merge_pair(a, x, y, pool); clean8(a, x, pool, 6)
    for li, M in enumerate(MIRRORS):
        merge_mirror(a, x, pool, M)
        if li < 2: clean8(a, x, pool, 6)
    a(f"v_cndmask_b32 v30, v{x[0]}, v{x[1]}, s[{T0_}:{T1_}]", f"v_cndmask_b32 v31, v{x[2]}, v{x[3]}, s[{T0_}:{T1_}]", f"v_cndmask_b32 v30, v30, v31, s[{T2_}:{T3_}]")
    if RDMA:
        a("v_mov_b32_dpp v30, v30 row_shr:8 row_mask:0xf bank_mask:0xc")
        a("v_and_b32 v31, 0x7ff, v30", "v_sub_u32 v31, 2047, v31", f"v_mad_u32_u24 v31, v31, s{T4_}, v34")
        for k in range(9):
            a(f"s_mov_b32 m0, {C_XR + 896*k}")
            a(f"buffer_load_dwordx4 v31, s[{R2_}:{R2_+3}], 0 offen offset:{128*k} sc1 lds")
        a(f"ds_write_b32 v7, v30 offset:{C_SEL}")
        stamp2(a, 2)
        a("s_waitcnt vmcnt(0)")
        a(f"ds_write_b32 v{VZ}, v{VONE} offset:{FL_XRDY}")
        stamp2(a, 3)
    else:
        a("s_mov_b64 exec, 0xff")
        a(f"ds_write_b32 v7, v30 offset:{C_SEL}")
        a("s_mov_b64 exec, -1")
        stamp2(a, 2)
    a("s_setprio 0")
    a("s_branch KS_B")
    a("KS_W9:")
    a("v_lshlrev_b32 v33, 4, v1", f"s_movk_i32 s{T0_}, 0x2000")
    srd(a, R2_, P_WS, XBYTES, WS_X2)
    srd(a, R0, P_WS, 0x240000, WS_ZB1)
    srd(a, R1, P_X, XBYTES)
    a("v_bfe_u32 v43, v1, 2, 3", f"s_lshl_b32 s{T1_}, s{S_BLK}, 3", f"v_add_u32 v43, s{T1_}, v43")
    a("v_bfe_u32 v40, v43, 4, 1", "v_and_b32 v41, 3, v1", "v_lshl_add_u32 v40, v40, 2, v41", "v_lshlrev_b32 v40, 2, v40")
    a("v_lshrrev_b32 v41, 5, v43", "v_lshlrev_b32 v41, 4, v41", "v_and_b32 v42, 15, v43", "v_add_u32 v41, v41, v42")
    lds_wait(a, C_SEL, 12, "nz", addr=7, sleep=1)
    stamp2(a, 2)
    a(f"ds_read_b32 v19, v40 offset:{C_SEL}")
    a("s_waitcnt lgkmcnt(0)")
    a("v_and_b32 v14, 0x7ff, v19", "v_sub_u32 v14, 2047, v14")
    a("v_mul_u32_u24 v23, 1152, v14", "v_lshl_add_u32 v23, v41, 1, v23")
    a(f"buffer_load_ushort v17, v23, s[{R1}:{R1+3}], 0 offen")
    a("v_lshrrev_b32 v15, 9, v14", "v_bfe_u32 v16, v14, 6, 2", "v_lshl_add_u32 v15, v15, 2, v16", "v_bfe_u32 v16, v14, 2, 2", "v_lshl_add_u32 v15, v15, 2, v16")
    a("v_bfe_u32 v16, v14, 4, 1")
    a("v_bfe_u32 v24, v14, 8, 1", "v_and_b32 v25, 3, v14", "v_lshl_add_u32 v24, v24, 2, v25", "v_lshlrev_b32 v24, 1, v24")
    a("v_bfe_u32 v25, v14, 5, 1", "v_lshl_add_u32 v24, v25, 5, v24")
    a("v_lshl_add_u32 v25, v15, 1, v16", "v_lshl_add_u32 v25, v25, 14, v24")
    a("v_lshrrev_b32 v26, 1, v41", "v_lshl_add_u32 v25, v26, 6, v25", "v_xor_b32 v26, v41, v16", "v_not_b32 v26, v26", "v_and_b32 v26, 1, v26", "v_lshl_add_u32 v25, v26, 4, v25")
    a("v_lshl_add_u32 v26, v15, 12, v24", "v_lshl_add_u32 v26, v16, 4, v26", "v_lshl_add_u32 v26, v41, 6, v26", f"v_add_u32 v26, {0x200000 - 512*64}, v26")
    if SWZ:
        a("v_lshl_add_u32 v27, v16, 6, v15", "v_lshlrev_b32 v27, 7, v27", "v_xor_b32 v25, v27, v25", "v_and_b32 v27, 0xf80, v27", "v_xor_b32 v26, v27, v26")
    a("v_cmp_gt_u32 vcc, 0x200, v41", "v_cndmask_b32 v25, v26, v25, vcc")
    a(f"buffer_load_ushort v18, v25, s[{R0}:{R0+3}], 0 offen sc1")
    a("v_ashrrev_i32 v22, 31, v19", "v_not_b32 v22, v22", "v_or_b32 v22, 0x80000000, v22", "v_xor_b32 v22, v19, v22", "v_and_b32 v22, 0xffff0000, v22")
    a(f"v_mul_f32 v22, {f32(-LOG2E)}, v22", "v_exp_f32 v22, v22", "v_add_f32 v22, 1.0, v22", "v_rcp_f32 v22, v22")
    a(f"v_cvt_pk_bf16_f32 v22, 0, v22")
    a("v_and_b32 v14, 31, v1", "v_lshlrev_b32 v14, 4, v14")
    f2l = [f"buffer_load_dword v{8+k}, v33, s[{R3}:{R3+3}], s{T0_} offen offset:{1024*k} sc1" for k in range(4)]
    if XCL == 2:
        a("s_barrier")
        zpoll(a, f2l, [8, 9, 10, 11], ENV("F2SLEEP", 4), mid="s_barrier")
        a(f"buffer_load_ushort v20, v23, s[{R2_}:{R2_+3}], 0 offen sc1")
        stamp2(a, 1)
        a("s_barrier")
        srd(a, R2_, P_WS, 64, WS_IDX)
        a("s_waitcnt vmcnt(0)")
    else:
        a("v_and_b32 v24, -4, v23", "v_and_b32 v25, 2, v23", "v_lshlrev_b32 v25, 3, v25")
        a("s_barrier")
        a("s_barrier")
        zpoll(a, f2l + [f"buffer_load_dword v20, v24, s[{R2_}:{R2_+3}], 0 offen sc1"], [8, 9, 10, 11, 20], ENV("F2SLEEP", 4), mid="s_barrier")
        stamp2(a, 1)
        srd(a, R2_, P_WS, 64, WS_IDX)
        a("v_lshrrev_b32 v20, v25, v20")
    a("v_lshlrev_b32 v17, 16, v17", "v_lshlrev_b32 v18, 16, v18", "v_add_f32 v17, v17, v18", "v_cvt_pk_bf16_f32 v17, v17, v17")
    a("v_and_b32 v21, 0xffff0000, v17", "v_lshlrev_b32 v20, 16, v20")
    a(f"ds_write_b128 v14, v[20:23] offset:{C_SIDE}")
    a("s_cmp_lg_u32 s2, 0", "s_cbranch_scc1 KS_W9E")
    a(f"buffer_store_dword v12, v7, s[{R2_}:{R2_+3}], 0 offen")
    a("KS_W9E:")
    a("s_waitcnt lgkmcnt(0)")
    stamp2(a, 3)
    endwave(a)
    a("KS_B:")
    srd(a, R0, P_WS, PART_BYTES, WS_PART)
    a("v_bfe_u32 v16, v1, 2, 2", "v_lshl_add_u32 v16, v3, 3, v16", "v_mul_u32_u24 v16, 1152, v16", "v_and_b32 v17, 3, v1", "v_lshl_add_u32 v16, v17, 3, v16")
    a(f"s_lshl_b32 s{T0_}, s{S_WAVE}, 7", f"s_add_u32 s{T0_}, s{T0_}, {C_DOWN}", f"v_add_u32 v16, s{T0_}, v16")
    if PTAG: a("v_lshlrev_b32 v18, 2, v17", f"ds_read_b32 v24, v18 offset:{FL_NONCE}", f"s_movk_i32 s{T2_}, 0xff")
    lds_wait(a, FL_DOWN, 17, "b4")
    if PTAG:
        for d in range(1, 4): a(f"v_lshrrev_b32 v{24+d}, {8*d}, v24")
    WTD = 48
    for jt in range(4):
        a(f"ds_read_b64_tr_b16 v[{WTD+4*jt}:{WTD+4*jt+1}], v16 offset:{32*jt}")
        a(f"ds_read_b64_tr_b16 v[{WTD+4*jt+2}:{WTD+4*jt+3}], v16 offset:{32*jt + 4608}")
    a("v_and_b32 v16, 7, v2", "v_lshlrev_b32 v16, 6, v16", "v_lshl_add_u32 v16, v3, 4, v16")
    a(f"s_mul_i32 s{T0_}, s{S_BLK}, {PROW}", f"s_lshl_b32 s{T1_}, s{S_WAVE}, 11", f"s_add_u32 s{T0_}, s{T0_}, s{T1_}")
    a("v_lshlrev_b32 v17, 4, v1")
    a("s_waitcnt lgkmcnt(0)")
    a("s_barrier")
    a("s_barrier")
    a(f"ds_read_b128 v[20:23], v16 offset:{C_ACT}")
    a("s_waitcnt lgkmcnt(0)")
    for j in range(4):
        a(f"v_mfma_f32_16x16x32_bf16 v[{32+4*j}:{35+4*j}], v[20:23], v[{WTD+4*j}:{WTD+4*j+3}], 0")
    for j in (0, 2):
        for r in range(4): a(f"v_permlane32_swap_b32 v{32+4*j+r}, v{36+4*j+r}")
        for r in range(4): a(f"v_bfi_b32 v{32+4*j+r}, s{T2_}, v{24+r}, v{32+4*j+r}" if PTAG else f"v_min_u32 v{32+4*j+r}, -2, v{32+4*j+r}")
        a(f"buffer_store_dwordx4 v[{32+4*j}:{35+4*j}], v17, s[{R0}:{R0+3}], s{T0_} offen offset:{512*j} sc1")
    stamp2(a, 8)
    if PE < 0: a("s_waitcnt vmcnt(0)")
    a("s_barrier")
    endwave(a)
    a("KS_G0:")
    a(f"ds_write_b8 v15, v{VONE} offset:{FL_G+4}")
    a("s_setprio 0")
    a("KS_G:")
    a(f"s_mov_b32 s{SP0}, 0x05040100", f"s_mov_b32 s{SP1}, 0x07060302")
    a("s_waitcnt vmcnt(0)" + (" lgkmcnt(0)" if SN else ""))
    stamp(a, 5)
    g_addr_setup(a, 46)
    if DE:
        srd(a, R1, P_DOWN, F * D * 2)
        a("v_lshlrev_b32 v8, 4, v1", f"s_mul_i32 s{T0_}, s{S_BLK}, 36864", f"s_mul_i32 s{T1_}, s{S_G}, 9216", f"s_add_u32 s{T0_}, s{T0_}, s{T1_}", f"s_add_u32 s{T1_}, s{T1_}, {C_DOWN}")
        def wtrig(tr):
            a(f"s_cmp_lt_u32 s{S_I}, 8", f"s_cselect_b32 s{T2_}, 0, {tr[1] - tr[0]}", f"v_mov_b32 v9, s{T2_}")
            lds_wait(a, tr[0], 10, "b4", addr=9, sleep=2)
        TG = {"B": FL_UTOK, "K": FL_UTOK + 4, "U": FL_UF, "C": FL_G + 36, "A1": FL_G, "A2": FL_G + 4, "A3": FL_G + 8, "B1": FL_G + 16, "B2": FL_G + 20, "B3": FL_G + 24}
        DTR = os.environ.get("DTR", "C,B").split(","); GTR = os.environ.get("GTR", "C,B").split(",")
        if ENV("DLAST", 0):
            wtrig([TG[x] for x in GTR])
            a(f"s_lshr_b32 s{T2_}, {ENV('GNM', 3)}, s{S_G}", f"s_bitcmp1_b32 s{T2_}, 0", "s_cbranch_scc1 KS_GD1")
            a(f"s_and_b32 s{T2_}, s{S_G}, 1", f"s_mul_i32 s{T1_}, s{T2_}, 18432", f"s_mul_i32 s{T0_}, s{S_BLK}, 36864", f"s_add_u32 s{T0_}, s{T0_}, s{T1_}", f"s_add_u32 s{T1_}, s{T1_}, {C_DOWN}")
        wtrig([TG["C"], TG["B"]])
        if DTR != ["C", "B"]: wtrig([TG[x] for x in DTR])
        if DEA: a(f"s_cmp_ge_u32 s{S_I}, 8", "s_cbranch_scc1 KS_GD1")
        for k in range(18 if ENV("DLAST", 0) else 9):
            if k % 4 == 0:
                a(f"s_add_u32 m0, s{T1_}, {1024*k}")
                if k: a(f"s_add_u32 s{T0_}, s{T0_}, 4096")
            a(f"buffer_load_dwordx4 v8, s[{R1}:{R1+3}], s{T0_} offen offset:{1024*(k&3)} {MOD('DM', 'nt')} lds")
        if GTR != DTR and not ENV("DLAST", 0): wtrig([TG[x] for x in GTR])
        a("KS_GD1:")
        if ENV("GPRIO", 0): a(f"s_setprio {ENV('GPRIO', 0)}")
    SG = eval(os.environ.get("SG", "[0,0,0,0]"))
    if any(SG):
        a(f"s_mul_i32 s{T0_}, s{S_ROLE}, {32*9216}", f"s_lshl_b32 s{T1_}, s{S_BLK}, 6", f"s_add_u32 s{T0_}, s{T0_}, s{T1_}")
        a(f"s_add_u32 s{R0}, s{P_GATE}, s{T0_}", f"s_addc_u32 s{R0+1}, s{P_GATE+1}, 0", f"s_add_u32 s{R0+2}, s{P_UP}, s{T0_}", f"s_addc_u32 s{R0+3}, s{P_UP+1}, 0")
        cnt = sum(SG[g] << (8 * g) for g in range(4))
        a(f"s_lshl_b32 s{T1_}, s{S_G}, 3", f"s_lshr_b32 s{T1_}, {hex(cnt)}, s{T1_}", f"s_and_b32 s{T1_}, s{T1_}, 0xff", "s_cbranch_scc0 KS_SGE")
        a("KS_SGL:")
        for r in range(8):
            a(f"s_load_dword s{R1}, s[{R0}:{R0+1}], {r*9216}", f"s_load_dword s{R1+1}, s[{R0+2}:{R0+3}], {r*9216}")
        a(f"s_add_u32 s{R0}, s{R0}, {8*9216}", f"s_addc_u32 s{R0+1}, s{R0+1}, 0", f"s_add_u32 s{R0+2}, s{R0+2}, {8*9216}", f"s_addc_u32 s{R0+3}, s{R0+3}, 0")
        a(f"s_sub_u32 s{T1_}, s{T1_}, 1", f"s_cmp_lg_u32 s{T1_}, 0", "s_cbranch_scc1 KS_SGL")
        a("KS_SGE:")
        a("s_waitcnt lgkmcnt(0)")
        stamp(a, 8)
    TR = {1: (FL_PARAM, "nz"), 2: (FL_UF, "b4"), 3: (FL_ZF, "b4"), 4: (FL_KACK, "nz"), 5: (FL_KSEEN, "nz"), 6: (FL_ZDONE + 4, "b4")}
    GNM = ENV("GNM", 3)
    for t in sorted(set(GT)):
        if t == 0: continue
        l = newlabel("GT")
        mask = sum(1 << g for g in range(4) if GT[g] == t)
        if mask != 15: a(f"s_lshr_b32 s{T0_}, {mask}, s{S_G}", f"s_bitcmp1_b32 s{T0_}, 0", f"s_cbranch_scc0 {l}")
        lds_wait(a, TR[t][0], 10, TR[t][1], sleep=2)
        if t >= 3: a("s_setprio 1")
        a(f"{l}:")
    if GNM and GNM != 15:
        a(f"s_lshr_b32 s{T0_}, {GNM}, s{S_G}", f"s_bitcmp1_b32 s{T0_}, 0", "s_cbranch_scc0 KS_GN0")
        gs = ENV("GSPLIT", 4)
        g_loads(a, 46, range(gs), " nt")
        if gs < 4: lds_wait(a, FL_UF, 10, "b4", sleep=2)
        g_loads(a, 46, range(gs, 4), " nt")
        a(f"s_bitcmp1_b32 s{S_G}, 0", "s_cbranch_scc1 KS_G4")
        g_loads(a, 46, [4], " nt")
        a("s_branch KS_G4")
        a("KS_GN0:")
    GM = " nt" if GNM == 15 else ""
    g_loads(a, 46, range(4), GM)
    stamp(a, 6)
    def transpose(src, dst):
        for j in range(4):
            for p in range(4):
                lo = src + 2 * (2 * p) + (j >> 1); hi = src + 2 * (2 * p + 1) + (j >> 1)
                a(f"v_perm_b32 v{dst+4*j+p}, v{hi}, v{lo}, s{SP0 + (j & 1)}")
    W = GW
    a(f"s_bitcmp1_b32 s{S_G}, 0", "s_cbranch_scc1 KS_G4")
    g_loads(a, 46, [4], GM)
    a("KS_G4:")
    a(f"v_mov_b32 v6, s{S_G}", f"ds_write_b8 v6, v{VONE} offset:{FL_GISS}")
    a("s_waitcnt vmcnt(0)")
    if DE: a(f"ds_write_b8 v6, v{VONE} offset:{FL_DOWN}")
    stamp(a, 7)
    for ks in range(5): transpose(W + 16 * ks, W + 16 * ks - 16)
    GACC = 112
    srd(a, R2_, P_WS, XBYTES, WS_X2)
    a(f"s_lshl_b32 s{T0_}, s{S_ROLE}, 6", f"s_add_u32 s{T0_}, s{T0_}, {2047*1152}", "v_and_b32 v6, 7, v2", "v_lshlrev_b32 v6, 2, v6", f"v_lshl_add_u32 v7, v3, 4, s{T0_}", f"s_movk_i32 s{T1_}, -1152")
    a(f"s_and_b32 s{T2_}, s{S_G}, 1", f"s_lshl_b32 s{T2_}, s{T2_}, 6", f"s_sub_u32 s{T2_}, 256, s{T2_}")
    a(f"s_lshl_b32 s{T0_}, s{S_G}, 6", f"v_add_u32 v11, s{T0_}, v1")
    a("v_lshrrev_b32 v8, 5, v11", "v_and_b32 v9, 31, v11")
    a("v_and_b32 v10, 3, v9", "v_lshlrev_b32 v10, 9, v10")
    a("v_lshrrev_b32 v9, 2, v9", "v_lshl_add_u32 v10, v9, 4, v10")
    a("v_lshrrev_b32 v9, 2, v8", "v_lshl_add_u32 v10, v9, 8, v10")
    a("v_and_b32 v9, 3, v8", "v_lshl_add_u32 v10, v9, 2, v10")
    a("v_lshlrev_b32 v11, 1, v11")
    a(f"s_lshl_b32 s{T0_}, s{S_G}, 11", f"v_lshl_add_u32 v9, v1, 4, s{T0_}")
    TG_ = (0, 2, 5, 6)
    def gmm(wait, bad):
        for ks in range(5):
            a(f"s_waitcnt {wait}({4-ks})")
            chk = []
            if bad and XCL == 2:
                chk = [f"v_xor_b32 v4, v{TG_[0]}, v{12+4*ks}"] + [f"v_bitop3_b32 v4, v4, v{TG_[d]}, v{12+4*ks+d} bitop3:0xf6" for d in range(1, 4)]
                chk += [f"v_and_b32 v{4 if ks else 8}, {hex(TAGM)}, v4"] + (["v_min_u32 v8, v8, v4"] if ks else [])
            elif bad:
                chk = [f"v_max3_u32 v8, v{12+4*ks}, v{13+4*ks}, v{8 if ks else 13}", f"v_max3_u32 v8, v{14+4*ks}, v{15+4*ks}, v8"]
            if ks == 4:
                a(*chk); chk = []
                if bad: a(f"v_cmp_eq_u32 vcc, {0 if XCL == 2 else -1}, v8", f"s_cbranch_vccnz {bad}")
                a(f"s_bitcmp1_b32 s{S_G}, 0", "s_cbranch_scc1 KS_G5")
            for j in range(4):
                c = "0" if ks == 0 else f"v[{GACC+4*j}:{GACC+4*j+3}]"
                a(f"v_mfma_f32_16x16x32_bf16 v[{GACC+4*j}:{GACC+4*j+3}], v[{12+4*ks}:{15+4*ks}], v[{32+16*ks+4*j}:{35+16*ks+4*j}], {c}")
                a(*chk[2*j:2*j+2])
    assert RDMA
    a(f"s_lshl_b32 s{T0_}, s{S_ROLE}, 9", f"s_add_u32 s{T0_}, s{T0_}, {C_XR}", f"v_lshl_add_u32 v28, v6, 2, s{T0_}", "v_lshl_add_u32 v28, v3, 7, v28", f"s_lshl_b32 s{T0_}, s{T2_}, 3", f"v_add_u32 v31, s{T0_}, v28")
    if XCL == 2: a("v_lshlrev_b32 v0, 2, v3", f"ds_read_b32 v0, v0 offset:{FL_NONCE}")
    lds_wait(a, C_SEL, 12, "nz", addr=6, sleep=2)
    a("s_setprio 2")
    a("v_and_b32 v12, 0x7ff, v12", f"v_mad_i32_i24 v7, v12, s{T1_}, v7")
    if XCL == 2:
        for d in range(1, 4): a(f"v_lshrrev_b32 v{TG_[d]}, {3*d}, v0")
    lds_wait(a, FL_XRDY, 12, "nz")
    stamp2(a, 1)
    for ks in range(4):
        a(f"ds_read_b128 v[{12+4*ks}:{15+4*ks}], v28 offset:{512*ks}")
    a("ds_read_b128 v[28:31], v31")
    gmm("lgkmcnt", "KS_GR")
    a("s_branch KS_G5")
    a("KS_GR:")
    if XCL == 2:
        srd(a, R3, P_WS, 12288, WS_KEYS)
        a("v_lshlrev_b32 v4, 4, v1", f"s_movk_i32 s{T0_}, 0x2000")
        a.flush(4)
        a("KS_GR2:")
        a("s_sleep 2")
        for k in range(4): a(f"buffer_load_dword v{12+k}, v4, s[{R3}:{R3+3}], s{T0_} offen offset:{1024*k} sc1")
        guard(a)
        a("s_waitcnt vmcnt(0)")
        a("v_max3_u32 v12, v12, v13, v14", "v_max_u32 v12, v12, v15", "v_cmp_eq_u32 vcc, -1, v12", "s_cbranch_vccnz KS_GR2")
    for ks in range(5):
        a(f"buffer_load_dwordx4 v[{12+4*ks}:{15+4*ks}], v7, s[{R2_}:{R2_+3}], " + (f"0 offen offset:{64*ks}" if ks < 4 else f"s{T2_} offen") + " sc1")
    guard(a)
    gmm("vmcnt", None if XCL == 2 else "KS_GR")
    a("KS_G5:")
    a("s_mov_b32 exec_lo, -1", "s_mov_b32 exec_hi, 0")
    a.flush(6)
    for j in range(4):
        a(f"ds_write_b128 v9, v[{GACC+4*j}:{GACC+4*j+3}] offset:{C_RED + 512*j}")
    a("s_mov_b64 exec, -1")
    a("s_waitcnt lgkmcnt(0)", "s_barrier")
    stamp2(a, 2)
    for w in range(4):
        a(f"ds_read_b32 v{32+2*w}, v10 offset:{C_RED + 2048*w}")
        a(f"ds_read_b32 v{33+2*w}, v10 offset:{C_RED + 2048*w + 128}")
    a("s_waitcnt lgkmcnt(4)")
    a("v_pk_add_f32 v[32:33], v[32:33], v[34:35]")
    a("s_waitcnt lgkmcnt(0)")
    a("v_pk_add_f32 v[36:37], v[36:37], v[38:39]")
    a("v_pk_add_f32 v[32:33], v[32:33], v[36:37]")
    rnd2(a, 32)
    a(f"v_mul_f32 v34, {f32(-LOG2E)}, v32", "v_exp_f32 v34, v34", "v_add_f32 v34, 1.0, v34", "v_rcp_f32 v34, v34", "v_mul_f32 v34, v32, v34")
    a(f"v_cvt_pk_bf16_f32 v34, 0, v34")
    a("v_mul_f32 v34, v34, v33", "v_cvt_pk_bf16_f32 v34, v34, v34")
    a(f"ds_write_b16 v11, v34 offset:{C_ACT}")
    a("s_waitcnt lgkmcnt(0)")
    a("s_barrier")
    a("s_branch KS_P2")
    a("KS_P:")
    if DE: a("s_branch KS_P1")
    srd(a, R1, P_DOWN, F * D * 2)
    a(f"s_sub_u32 s{T2_}, s{S_WAVE}, 10", "v_lshlrev_b32 v6, 4, v1", f"s_mul_i32 s{T0_}, s{S_BLK}, 36864", f"s_mul_i32 s{T1_}, s{T2_}, 18432", f"s_add_u32 s{T0_}, s{T0_}, s{T1_}", f"s_add_u32 s{T1_}, s{T1_}, {C_DOWN}")
    a(f"s_lshl_b32 s{T2_}, s{T2_}, 1", f"v_mov_b32 v7, s{T2_}", f"v_mov_b32 v8, s{S_ONES}")
    TR[7] = (FL_GISS, "b4")
    if DT: lds_wait(a, TR[DT][0], 10, TR[DT][1], sleep=2)
    a("s_setprio 1")
    stamp2(a, 1)
    for k in range(18):
        if k % 4 == 0:
            a(f"s_add_u32 m0, s{T1_}, {1024*k}")
            if k: a(f"s_add_u32 s{T0_}, s{T0_}, 4096")
        a(f"buffer_load_dwordx4 v6, s[{R1}:{R1+3}], s{T0_} offen offset:{1024*(k&3)} {MOD('DM', 'nt')} lds")
    a("s_waitcnt vmcnt(0)")
    stamp2(a, 2)
    a(f"ds_write_b16 v7, v8 offset:{FL_DOWN}")
    a("KS_P1:")
    a("s_setprio 0")
    a("s_waitcnt lgkmcnt(0)")
    a("s_barrier")
    a("s_barrier")
    a("s_setprio 2")
    a("KS_P2:")
    a(f"s_sub_u32 s{S_G}, s{S_WAVE}, 10")
    srd(a, R0, P_WS, PART_BYTES, WS_PART)
    srd(a, R1, P_OUT, XBYTES)
    a("v_lshrrev_b32 v8, 3, v1", f"v_mul_u32_u24 v8, {PROW}, v8", "v_and_b32 v9, 7, v1", "v_lshl_add_u32 v8, v9, 4, v8")
    a(f"s_mul_i32 s{T0_}, s{S_G}, {24*PROW}", f"s_lshl_b32 s{T1_}, s{S_BLK}, 7", f"s_add_u32 s{T0_}, s{T0_}, s{T1_}", f"s_add_u32 s{T1_}, s{T0_}, {8*PROW}", f"s_add_u32 s{T2_}, s{T0_}, {16*PROW}")
    a(f"s_lshl_b32 s{T3_}, s{S_G}, 7", f"v_lshl_add_u32 v6, v9, 4, s{T3_}", "v_lshl_add_u32 v6, v3, 2, v6")
    a(f"v_lshlrev_b32 v12, 2, v1", f"v_add_u32 v12, {C_RED2}, v12", "v_lshlrev_b32 v13, 4, v1")
    if PTAG:
        a("v_and_b32 v14, 12, v12", f"ds_read_b32 v24, v14 offset:{FL_NONCE}", "s_waitcnt lgkmcnt(0)")
        for d in range(1, 4): a(f"v_lshrrev_b32 v{24+d}, {8*d}, v24")
    a("s_barrier")
    if PE > 0: a(f"s_sleep {PE}")
    stamp2(a, 3)
    if PTAG:
        lp = newlabel("PP"); l1 = newlabel("PPE")
        a(f"s_branch {l1}", f"{lp}:", "s_sleep 1", f"{l1}:")
        for k in range(3): a(f"buffer_load_dwordx4 v[{32+4*k}:{35+4*k}], v8, s[{R0}:{R0+3}], s{T0_+k} offen sc1")
        guard(a)
        for k in range(3):
            a(f"s_waitcnt vmcnt({2-k})")
            for d in range(4):
                t = 44 + (d & 1)
                a(f"v_xor_b32 v{t}, v{24+d}, v{32+d}" if k == 0 and d < 2 else f"v_bitop3_b32 v{t}, v{t}, v{24+d}, v{32+4*k+d} bitop3:0xf6")
        a("v_or_b32 v44, v44, v45", "v_and_b32 v44, 0xff, v44", "v_cmp_ne_u32 vcc, 0, v44", f"s_cbranch_vccnz {lp}")
    else: zpoll(a, [f"buffer_load_dwordx4 v[{32+4*k}:{35+4*k}], v8, s[{R0}:{R0+3}], s{T0_+k} offen sc1" for k in range(3)], list(range(32, 44)), 1)
    stamp2(a, 4)
    a("v_pk_add_f32 v[32:33], v[32:33], v[36:37]", "v_pk_add_f32 v[34:35], v[34:35], v[38:39]")
    a("v_pk_add_f32 v[32:33], v[32:33], v[40:41]", "v_pk_add_f32 v[34:35], v[34:35], v[42:43]")
    for r in range(4): a(f"v_add_f32_dpp v{32+r}, v{32+r}, v{32+r} row_ror:8 {DPPM}")
    a("v_permlane16_swap_b32 v32, v33", "v_permlane16_swap_b32 v34, v35")
    a("v_add_f32 v32, v32, v33", "v_add_f32 v34, v34, v35")
    a("v_permlane32_swap_b32 v32, v34")
    a("v_add_f32 v32, v32, v34")
    a(f"ds_write_b32 v6, v32 offset:{C_RED2}")
    a("s_waitcnt lgkmcnt(0)", "s_barrier")
    a(f"s_cmp_lg_u32 s{S_G}, 0", "s_cbranch_scc1 KS_PEND")
    a("s_mov_b32 exec_lo, -1", "s_mov_b32 exec_hi, 0")
    for g in range(3):
        a(f"ds_read2_b32 v[{32+2*g}:{33+2*g}], v12 offset0:{64*g} offset1:{64*g + 32}")
    a(f"ds_read_b128 v[40:43], v13 offset:{C_SIDE}")
    a("s_waitcnt lgkmcnt(0)")
    a("v_pk_add_f32 v[32:33], v[32:33], v[34:35]", "v_pk_add_f32 v[32:33], v[32:33], v[36:37]", "v_add_f32 v8, v32, v33")
    a(f"v_cvt_pk_bf16_f32 v8, 0, v8")
    a("v_mul_f32 v8, v8, v42", f"v_cvt_pk_bf16_f32 v8, 0, v8")
    a("v_add_f32 v8, v8, v40", f"v_cvt_pk_bf16_f32 v8, 0, v8")
    a("v_add_f32 v8, v8, v41", "v_cvt_pk_bf16_f32 v8, v8, v8")
    a(f"buffer_store_short v8, v43, s[{R1}:{R1+3}], 0 offen")
    a("KS_PEND:")
    stamp_end(a)
    spin_end(a)
    a("KS_ABORT:")
    a("KS_END:")
    a("s_endpgm")
    return f""".amdhsa_kernel {label}
  .amdhsa_next_free_vgpr 128
  .amdhsa_next_free_sgpr {NSGPR}
  .amdhsa_accum_offset 128
  .amdhsa_group_segment_fixed_size 0
  .amdhsa_kernarg_size 136
  .amdhsa_user_sgpr_count 2
  .amdhsa_user_sgpr_kernarg_segment_ptr 1
  .amdhsa_system_sgpr_workgroup_id_x 1
  .amdhsa_float_denorm_mode_32 3
.end_amdhsa_kernel
"""

def main():
    hdr = open(f"/code/{NAME}.s.ref").read().split("; Override launch geometry")[0]
    out = hdr
    out += f"; @launch grid=(256,1,1) block=(1024,1,1) lds={LDS_BYTES}\n"
    out += '.amdgcn_target "amdgcn-amd-amdhsa--gfx950"\n.text\n'
    a = Asm()
    d = gen(a)
    out += a.text()
    out += '.section .rodata,"a"\n.p2align 6\n' + d
    path = sys.argv[1] if len(sys.argv) > 1 else "ks.s"
    open(path, "w").write(out)
    print("wrote", path, len(out))

if __name__ == "__main__":
    main()
```

```python
import sys, struct, math, os
sys.path.insert(0, "gen")
from asmlib import Asm

NAME = "sequential_preLN__ssm_conv_s4__moe_arch_mod__prompt"
L, D, N, F = 2048, 576, 128, 4608
XBYTES = L * D * 2
WS_UT = 0x000000
WS_X2 = 0x3C0000
WS_ZB1 = 0x600000
WS_ZB2 = 0x800000
WS_KEYS = 0x840000
WS_PART = 0x850000
WS_CLR, CLR_WG = 0x600000, 18560
CLRP_WG = 23744
WS_FLAG1 = 0xB00000
TAGM = 0x00070007
WS_IDX = 0xB10000
WS_KT = 0xB20000
WS_DBG = 0xC00000
WS_MARK = 0xB80000
XCL = int(os.environ.get("XCL", "2"))
if XCL == 1: WS_CLR, CLR_WG = WS_X2, 36992
if XCL == 2: WS_X2 = WS_UT
NOCLR = int(os.environ.get("NOCLR", "0"))
if NOCLR == 1: WS_CLR, CLR_WG = WS_ZB2, 2176
if NOCLR >= 2: WS_CLR = WS_ZB2
if NOCLR == 2: WS_PART = 0x1000000
PB = int(os.environ.get("PB", "1"))
PCT = int(os.environ.get("PCT", "4"))
if PB and not PCT: WS_PART, CLR_WG = 0x843000, 29040
if int(os.environ.get("WSC", "0")):
    assert XCL == 2
    WS_ZB1 -= 0x200000; WS_ZB2 -= 0x200000; WS_KEYS -= 0x200000; WS_PART -= 0x200000; WS_CLR -= 0x200000
    WS_FLAG1, WS_IDX, WS_KT = 0x240000, 0x250000, 0x260000
WSB = int(os.environ.get("WSB", "0")) << 20
WS_UT += WSB; WS_X2 += WSB; WS_ZB1 += WSB; WS_ZB2 += WSB; WS_KEYS += WSB; WS_PART += WSB; WS_CLR += WSB; WS_FLAG1 += WSB; WS_IDX += WSB; WS_KT += WSB
WS_STAMP = 0x8000000
PART_BYTES = 144 * (4608 * (2 if PB else 4) + 128)
C_FL, C_CAND, C_SEL, C_KEY, C_PAR, C_ACT, C_SIDE, C_RED2 = 0, 256, 768, 800, 832, 1024, 1536, 2048
C_U, U_SIZE = 3072, 4672
C_LNB = C_U + 3 * U_SIZE
C_XR = C_LNB
C_RED = C_LNB + 9280
G_BASE, G_SIZE = 35840, 36672
C_STG = G_BASE + 2 * G_SIZE + 36864
LDS_BYTES = C_STG + 8192
FL_LN1, FL_LNACK, FL_KCNT, FL_UF, FL_ZF, FL_KACK, FL_ROWSOK, FL_XRDY, FL_PARAM, FL_DOWN, FL_ZDONE = 0, 8, 12, 16, 20, 24, 28, 32, 36, 40, 48
FL_G = 64
FL_S6 = 128
FL_ZISS = 240
FL_UISS = 244
FL_F2CNT, FL_INIT, FL_CLROK, FL_GISS, FL_KSEEN, FL_UTOK, FL_PRE, FL_NONCE = 176, 180, 188, 192, 196, 200, 208, 224
KG_ROW = 544
KG_T = [0, 16 * KG_ROW, 32 * KG_ROW, 41 * KG_ROW]
R_WS3 = 0
R_WS5 = R_WS3 + 193 * 16
R_WS7 = R_WS5 + 193 * 16
R_WS9 = R_WS7 + 128 * 16
R_RED = 10752
R2 = 31232
T_TAB = R2
T_DRE = R2 + 1296
T_DRO = T_DRE + 1280 + 64
T_G3 = T_DRO + 1280
T_G5 = T_G3 + 256
T_G7E = T_G5 + 256
T_G7O = T_G7E + 192
T_G9E = T_G7O + 192
T_G9O = T_G9E + 192
assert T_G9O + 192 <= G_SIZE and R_WS9 + 129 * 16 <= R_RED and R_RED + 13 * 1024 <= R2 and 57 * KG_ROW <= R2
IDX_ZERO, IDX_DUMMY = 641, 642
C_DOWN = G_BASE + 2 * G_SIZE
C_GU = G_BASE - 512
assert C_GU + 2 * 36864 <= C_DOWN and C_RED + 2560 <= C_GU
FL_BAD = FL_KACK

def f32(x): return "0x%08x" % struct.unpack("<I", struct.pack("<f", x))[0]
def f32v(x): return struct.unpack("<f", struct.pack("<f", x))[0]
LOG2E = math.log2(math.e)
LOG2E_HI = f32v(LOG2E); LOG2E_LO = LOG2E - LOG2E_HI
INV2PI = 1.0 / (2 * math.pi)
INV2PI_HI = f32v(INV2PI); INV2PI_LO = INV2PI - INV2PI_HI
DPPM = "row_mask:0xf bank_mask:0xf"
ENV = lambda k, d: int(os.environ.get(k, str(d)))
STAMP = ENV("STAMP", 0)
DBG = ENV("DBG", 0)
GUARD = 1 << 19
XP = ENV("XP", 0)
KOFF = ENV("KOFF", 1)
PTAG = ENV("PTAG", 1)
PE = ENV("PE", 13)
SN = ENV("SN", 1)
UL = ENV("UL", 0)
GM_ = ENV("GM", 0)
L2G = ENV("L2G", 0)
XT = ENV("XT", 0)
F3 = ENV("F3", 1)
BT = ENV("BT", 0)
TQ = ENV("TQ", 1)
ZM = ENV("ZM", 0)
DR = ENV("DR", 0)
DL = ENV("DL", 0)
XH = ENV("XH", 0)
KD = ENV("KD", 2)
RP = ENV("RP", 0)
XW = ENV("XW", 0)
WBYTES = 0 if ENV("XW2", 0) else D * F * 2
SWU = ENV("SWU", 1); SWZ = ENV("SWZ", 1); PROW = (9216 if PB else 18432) + 128 * ENV("SWP", 1)
MOD = lambda k, d="sc1": os.environ.get(k, d).replace("_", " ")

P_X, P_ARE, P_LDT, P_DSK, P_WR, P_GATE, P_UP, P_DOWN, P_OUT, P_DBG, P_WS = 4, 6, 18, 20, 24, 26, 28, 30, 32, 34, 36
S_WAVE, S_GUARD, S_XC, S_I = 38, 39, 40, 41
R0, R1, R2_, R3, R4 = 64, 68, 72, 76, 80
S_ONES, S_GB, S_ROLE, S_G, S_CH, S_BLK, S_B2 = 84, 85, 86, 87, 88, 89, 90
RM = ENV("RM", 0)
S_FI = 91 if RM else S_I
T0_, T1_, T2_, T3_, T4_, T5_ = 92, 93, 94, 95, 96, 97
SP0, SP1 = 98, 99
NSGPR = 100

def srd(a, d, base, nbytes, off=0):
    if off:
        a(f"s_add_u32 s{d}, s{base}, {hex(off)}", f"s_addc_u32 s{d+1}, s{base+1}, 0")
    else:
        a(f"s_mov_b32 s{d}, s{base}", f"s_mov_b32 s{d+1}, s{base+1}")
    a(f"s_mov_b32 s{d+2}, {hex(nbytes)}", f"s_mov_b32 s{d+3}, 0x20000")

def red16(a, op, v):
    for r in (8, 4, 2, 1):
        a(f"{op}_dpp v{v}, v{v}, v{v} row_ror:{r} {DPPM}")
def red32(a, op, v, t):
    red16(a, op, v)
    a(f"v_mov_b32 v{t}, v{v}", f"v_permlane16_swap_b32 v{v}, v{t}", f"{op} v{v}, v{v}, v{t}")
def red64x2(a, op1, v1, t1, op2, v2, t2):
    for r in (8, 4, 2, 1):
        a(f"{op1}_dpp v{v1}, v{v1}, v{v1} row_ror:{r} {DPPM}", f"{op2}_dpp v{v2}, v{v2}, v{v2} row_ror:{r} {DPPM}")
    for ins in ("v_permlane16_swap_b32", "v_permlane32_swap_b32"):
        a(f"v_mov_b32 v{t1}, v{v1}", f"v_mov_b32 v{t2}, v{v2}", f"{ins} v{v1}, v{t1}", f"{ins} v{v2}, v{t2}")
        a(f"{op1} v{v1}, v{v1}, v{t1}", f"{op2} v{v2}, v{v2}, v{t2}")

SPIN = eval(os.environ.get("SPIN", "None"))
def spin_rec(a, ph, i):
    if not SPIN or SPIN[1:] != (ph, i): return
    a("s_memrealtime s[46:47]")
def spin_end(a):
    if not SPIN: return
    lo, hi = eval(os.environ.get("SPINI", "(0,32)"))
    a("KS_SPIN:")
    if SPIN[2] == 9: a("s_memrealtime s[46:47]")
    a(f"s_sub_u32 s48, s{S_I}, {lo}", f"s_cmp_ge_u32 s48, {hi-lo}", "s_cbranch_scc1 KS_END")
    a(f"s_lshr_b32 s48, {hex(SPIN[0])}, s{S_WAVE}", "s_bitcmp1_b32 s48, 0", "s_cbranch_scc0 KS_END")
    a("s_mov_b64 exec, -1", "v_mov_b32 v4, 0")
    a("KS_SP0:")
    a(f"global_load_dword v8, v4, s[{P_DBG}:{P_DBG+1}] offset:64 sc1", "s_waitcnt vmcnt(0) lgkmcnt(0)", "v_readfirstlane_b32 s44, v8", "s_cmp_eq_u32 s44, 0", "s_cbranch_scc1 KS_SP0")
    if SPIN[2] == -1: a("s_mov_b32 s46, s44")
    a("s_sub_u32 s48, s46, s44", "s_add_u32 s48, s48, 200")
    if ENV("SPINMIN", 0): a(f"s_sub_u32 s48, {ENV('SPINMIN', 0)}, s48")
    a("s_min_u32 s48, s48, 3000", "s_lshl_b32 s48, s48, 2", "s_add_u32 s48, s48, 2000")
    a("SPINL:", "s_sleep 1", "s_memrealtime s[50:51]", "s_waitcnt lgkmcnt(0)", "s_sub_u32 s50, s50, s44", "s_cmp_lt_u32 s50, s48", "s_cbranch_scc1 SPINL")
def stamp_begin(a):
    if SPIN: a("s_memrealtime s[46:47]")
    if not STAMP: return
    a("s_memrealtime s[44:45]")
    for i in range(1, 9): a(f"s_mov_b32 s{44+2*i}, 0")
def cstamp(a, i):
    if STAMP == 9: a(f"s_memtime s[{44+2*i}:{45+2*i}]")
def kstamp(a, i):
    if STAMP == 7: a(f"s_memtime s[{44+2*i}:{45+2*i}]")
def stamp(a, i, ph=1):
    spin_rec(a, ph, i)
    if ph == 2 and STAMP not in (2, 3): return
    if STAMP == 7 and i == 1: return kstamp(a, 1)
    if not STAMP or STAMP in (6, 7, 9): return
    assert 1 <= i <= 8
    a(f"{'s_memtime' if STAMP == 8 else 's_memrealtime'} s[{44+2*i}:{45+2*i}]")
def lstamp(a, i):
    if STAMP == 6: a(f"s_memrealtime s[{44+2*i}:{45+2*i}]")
def stamp2(a, i):
    stamp(a, i, 2)
def stamp_end(a):
    if not STAMP: return
    a("s_waitcnt vmcnt(0) lgkmcnt(0)")
    a("s_memrealtime s[62:63]")
    a(f"s_lshl_b32 s43, s2, 4", f"s_add_u32 s43, s43, s{S_WAVE}", "s_lshl_b32 s43, s43, 6", f"s_add_u32 s43, s43, {hex(WS_STAMP)}")
    a("s_mov_b64 exec, 1")
    a("s_waitcnt lgkmcnt(0)")
    a("v_mov_b32 v1, s43")
    for i in range(10): a(f"v_mov_b32 v{4+i}, s{44+2*i}")
    a(f"global_store_dwordx4 v1, v[4:7], s[{P_WS}:{P_WS+1}]")
    a(f"global_store_dwordx4 v1, v[8:11], s[{P_WS}:{P_WS+1}] offset:16")
    a(f"global_store_dwordx2 v1, v[12:13], s[{P_WS}:{P_WS+1}] offset:32")
def endwave(a):
    stamp_end(a)
    a("s_branch KS_SPIN" if SPIN else "s_endpgm")

def unpack(a, dst, src):
    a(f"v_lshlrev_b32 v{dst}, 16, v{src}", f"v_and_b32 v{dst+1}, 0xffff0000, v{src}")

def rnd2(a, t):
    a(f"v_cvt_pk_bf16_f32 v{t}, 0, v{t}", f"v_cvt_pk_bf16_f32 v{t+1}, 0, v{t+1}")

def ln_stats(a, X, m2, rinv2, t0, t1, t2):
    a(f"v_pk_add_f32 v[{t0}:{t0+1}], v[{X}:{X+1}], v[{X+2}:{X+3}]")
    a(f"v_pk_add_f32 v[{t1}:{t1+1}], v[{X+4}:{X+5}], v[{X+6}:{X+7}]")
    for j in range(4, 9):
        t = t0 if j % 2 == 0 else t1
        a(f"v_pk_add_f32 v[{t}:{t+1}], v[{t}:{t+1}], v[{X+2*j}:{X+2*j+1}]")
    a(f"v_pk_add_f32 v[{t0}:{t0+1}], v[{t0}:{t0+1}], v[{t1}:{t1+1}]")
    a(f"v_add_f32 v{t0}, v{t0}, v{t0+1}")
    red32(a, "v_add_f32", t0, t1)
    a(f"v_mul_f32 v{t2}, {f32(1.0/576)}, v{t0}")
    a(f"v_mov_b32 v{t2+1}, v{t2}")
    a(f"v_cvt_pk_bf16_f32 v{m2}, 0, v{t2}", f"v_cvt_pk_bf16_f32 v{m2+1}, 0, v{t2}")
    first = {t0: True, t1: True}
    for j in range(9):
        t = t0 if j % 2 == 0 else t1
        a(f"v_pk_add_f32 v[{rinv2}:{rinv2+1}], v[{X+2*j}:{X+2*j+1}], v[{t2}:{t2+1}] neg_lo:[0,1] neg_hi:[0,1]")
        if first[t]:
            a(f"v_pk_mul_f32 v[{t}:{t+1}], v[{rinv2}:{rinv2+1}], v[{rinv2}:{rinv2+1}]"); first[t] = False
        else:
            a(f"v_pk_fma_f32 v[{t}:{t+1}], v[{rinv2}:{rinv2+1}], v[{rinv2}:{rinv2+1}], v[{t}:{t+1}]")
    a(f"v_pk_add_f32 v[{t0}:{t0+1}], v[{t0}:{t0+1}], v[{t1}:{t1+1}]")
    a(f"v_add_f32 v{t0}, v{t0}, v{t0+1}")
    red32(a, "v_add_f32", t0, t1)
    a(f"v_mul_f32 v{t0}, {f32(1.0/576)}, v{t0}")
    a(f"v_cvt_pk_bf16_f32 v{t0}, 0, v{t0}")
    a(f"v_add_f32 v{t0}, {f32(1e-5)}, v{t0}")
    a(f"v_cvt_pk_bf16_f32 v{t0}, 0, v{t0}")
    a(f"v_sqrt_f32 v{t0}, v{t0}")
    a(f"v_cvt_pk_bf16_f32 v{t0}, 0, v{t0}")
    a(f"v_rcp_f32 v{rinv2}, v{t0}")
    a(f"v_mov_b32 v{rinv2+1}, v{rinv2}")

def ln_apply_pair(a, x, m2, rinv2, t, P):
    a(f"v_pk_add_f32 v[{t}:{t+1}], v[{x}:{x+1}], v[{m2}:{m2+1}] neg_lo:[0,1] neg_hi:[0,1]")
    rnd2(a, t)
    a(f"v_pk_mul_f32 v[{t}:{t+1}], v[{t}:{t+1}], v[{rinv2}:{rinv2+1}]")
    if P is not None: a(f"v_cvt_pk_bf16_f32 v{P}, v{t}, v{t+1}")
    rnd2(a, t)

VZ, VONE = 4, 5
_lbl = [0]
def newlabel(p="L"):
    _lbl[0] += 1
    return f"{p}_{_lbl[0]}"
def guard(a):
    a(f"s_sub_u32 s{S_GUARD}, s{S_GUARD}, 1", "s_cbranch_scc1 KS_ABORT")
def lds_wait(a, off, t, kind="b4", addr=VZ, sleep=0):
    l = newlabel("W")
    a(f"{l}:")
    if sleep: a(f"s_sleep {sleep}")
    if kind == "b8":
        a(f"ds_read_b64 v[{t}:{t+1}], v{addr} offset:{off}")
    else:
        a(f"ds_read_{kind if kind in ('u8', 'u16') else 'b32'} v{t}, v{addr} offset:{off}")
    guard(a)
    a("s_waitcnt lgkmcnt(0)")
    if kind == "b8": a(f"v_and_b32 v{t}, v{t}, v{t+1}")
    if kind in ("nz", "u8", "u16"): a(f"v_cmp_eq_u32 vcc, 0, v{t}")
    else: a(f"v_cmp_ne_u32 vcc, s{S_ONES}, v{t}")
    a(f"s_cbranch_vccnz {l}")

def zpoll(a, loads, regs, sleep, mid=None):
    lp = newlabel("ZP"); l1 = newlabel("ZPE")
    if mid:
        for l in loads: a(l)
        a(mid)
    a(f"s_branch {l1}")
    a(f"{lp}:")
    a(f"s_sleep {sleep}")
    if not mid: a(f"{l1}:")
    for l in loads: a(l)
    if mid: a(f"{l1}:")
    guard(a)
    a("s_waitcnt vmcnt(0)")
    a(f"v_max3_u32 v44, v{regs[0]}, v{regs[1]}, v{regs[2]}")
    r = regs[3:]
    while len(r) >= 2: a(f"v_max3_u32 v44, v44, v{r[0]}, v{r[1]}"); r = r[2:]
    if r: a(f"v_max_u32 v44, v44, v{r[0]}")
    a("v_cmp_eq_u32 vcc, -1, v44", f"s_cbranch_vccnz {lp}")

class Pool:
    def __init__(self, regs): self.free = list(regs)
    def get(self): return self.free.pop(0)
    def put(self, r): self.free.append(r)
def ce_inlane(a, x, i, j, pool):
    t = pool.get()
    a(f"v_max_u32 v{t}, v{x[i]}, v{x[j]}", f"v_min_u32 v{x[j]}, v{x[i]}, v{x[j]}")
    pool.put(x[i]); x[i] = t
def clean8(a, x, pool, DE, rev=False):
    t = [pool.get() for _ in range(4)]
    for i in range(4):
        a(f"v_mov_b32_dpp v{t[i]}, v{x[3-i if rev else i]} quad_perm:[1,0,3,2] {DPPM}")
    for i in range(4):
        a(f"v_med3_u32 v{t[i]}, v{x[i]}, v{t[i]}, v{DE}")
    for i in range(4): pool.put(x[i]); x[i] = t[i]
    for (i, j) in ((0, 2), (1, 3), (0, 1), (2, 3)): ce_inlane(a, x, i, j, pool)
def merge_mirror(a, x, pool, M):
    c = [pool.get() for _ in range(4)]
    for i in range(4):
        a(f"v_max_u32_dpp v{c[i]}, v{x[3-i]}, v{x[i]} {M} {DPPM}")
    for i in range(4): pool.put(x[i]); x[i] = c[i]
def merge_pair(a, x, y, pool):
    for i in range(4):
        a(f"v_max_u32_dpp v{x[i]}, v{y[3-i]}, v{x[i]} quad_perm:[1,0,3,2] {DPPM}")
    for i in range(4): pool.put(y[i])
MIRRORS = ("quad_perm:[3,2,1,0]", "row_half_mirror", "row_mirror")
def level2(a, ad, base, de, dst, m0, m1, st=None):
    l = newlabel("L2P")
    a(f"{l}:")
    a(f"ds_read_b128 v[{base}:{base+3}], v{ad} offset:{C_CAND}")
    a(f"ds_read_b128 v[{base+4}:{base+7}], v{ad} offset:{C_CAND + 256}")
    guard(a)
    a("s_waitcnt lgkmcnt(0)")
    a(f"v_min_u32 v{base+8}, v{base}, v{base+4}", f"v_cmp_eq_u32 vcc, 0, v{base+8}")
    a(f"s_cbranch_vccnz {l}")
    if st: st()
    pool = Pool(range(base + 8, base + 20))
    x = list(range(base, base + 4)); y = list(range(base + 4, base + 8))
    merge_pair(a, x, y, pool); clean8(a, x, pool, de)
    for li, M in enumerate(MIRRORS):
        merge_mirror(a, x, pool, M)
        if li < 2: clean8(a, x, pool, de)
    t = pool.get()
    a(f"v_cndmask_b32 v{dst}, v{x[0]}, v{x[1]}, s[{m0}:{m0+1}]", f"v_cndmask_b32 v{t}, v{x[2]}, v{x[3]}, s[{m0}:{m0+1}]", f"v_cndmask_b32 v{dst}, v{dst}, v{t}, s[{m1}:{m1+1}]")
    a(f"v_mov_b32_dpp v{dst}, v{dst} row_shr:8 row_mask:0xf bank_mask:0xc")

def top2(a, K, A1, A2, B1, B2, TA, TB, X0, X1, wait):
    for j in range(8):
        k = K + 4 * j
        if j == 7: a(f"v_max_u32 v{A2}, v{A2}, v{B2}")
        if wait: a(f"s_waitcnt vmcnt({7-j})")
        if j == 0:
            a(f"v_max_u32 v{A1}, v{k}, v{k+1}", f"v_max_u32 v{B1}, v{k+2}, v{k+3}", f"v_min_u32 v{A2}, v{k}, v{k+1}", f"v_min_u32 v{B2}, v{k+2}, v{k+3}")
            continue
        a(f"v_med3_u32 v{TA}, v{A1}, v{k}, v{k+1}", f"v_med3_u32 v{TB}, v{B1}, v{k+2}, v{k+3}")
        a(f"v_max3_u32 v{A1}, v{A1}, v{k}, v{k+1}", f"v_max3_u32 v{B1}, v{B1}, v{k+2}, v{k+3}")
        if j < 7: a(f"v_max_u32 v{A2}, v{A2}, v{TA}", f"v_max_u32 v{B2}, v{B2}, v{TB}")
    a(f"v_max3_u32 v{A2}, v{A2}, v{TA}, v{TB}", f"v_max_u32 v{X0}, v{A1}, v{B1}", f"v_med3_u32 v{X1}, v{A1}, v{B1}, v{A2}")
def net8(a, x, y, w, t, C, mid=None):
    HM, MI, R8 = "row_half_mirror", "row_mirror", "row_ror:8"
    def xst(d, s, M, mx, cross):
        for op, bm in (("max", mx), ("min", mx ^ 15)):
            for i in range(2): a(f"v_{op}_u32_dpp v{d[i]}, v{s[i ^ cross]}, v{s[i]} {M} row_mask:0xf bank_mask:{hex(bm)} ; nodst")
    def inl(d, s, cp=None):
        if cp: a(f"v_max_u32 v{d[0]}, v{s[0]}, v{s[1]}", f"v_max_u32 v{cp[0]}, v{s[0]}, v{s[1]}", f"v_min_u32 v{d[1]}, v{s[0]}, v{s[1]}", f"v_min_u32 v{cp[1]}, v{s[0]}, v{s[1]}")
        else: a(f"v_min_u32 v{d[1]}, v{s[0]}, v{s[1]}", f"v_max_u32 v{d[0]}, v{s[0]}, v{s[1]}")
    xst(y, x, HM, 5, 1)
    if mid: mid()
    inl(w, y)
    xst(y, w, MI, 3, 1); xst(w, y, HM, 5, 0); inl(x, w, t)
    for lv in range(3):
        if lv < 2:
            for i in range(2): a(f"v_permlane{32 >> lv}_swap_b32 v{x[i]}, v{t[i]}")
            M = MI
            for i in (1, 0): a(f"v_max_u32_dpp v{y[i]}, v{t[1-i]}, v{x[i]} {M} {DPPM} ; nodst")
        else:
            for i in (1, 0): a(f"v_mov_b32_dpp v{t[i]}, v{x[i]} {MI} {DPPM} ; nodst")
            M = "quad_perm:[1,0,3,2]"
            for i in (0, 1): a(f"v_max_u32_dpp v{y[i]}, v{t[1-i]}, v{x[i]} {M} {DPPM} ; nodst")
        xst(w, y, R8, 3, 0); xst(y, w, HM, 5, 0); inl(x, y, t if lv == 0 else None)
    a(f"v_mov_b32_dpp v{t[1]}, v{x[1]} {MI} {DPPM} ; nodst")
    a(f"v_max_u32_dpp v{C}, v{t[1]}, v{x[0]} quad_perm:[2,3,0,1] {DPPM} ; nodst")

GW = 48
def g_addr_setup(a, A):
    a(f"s_sub_u32 s{S_G}, s{S_WAVE}, 12")
    a(f"s_mul_i32 s{T0_}, s{S_G}, 9", f"s_add_u32 s{T0_}, s{T0_}, 1", f"s_lshr_b32 s{S_ROLE}, s{T0_}, 1")
    a(f"s_lshl_b32 s{T0_}, s{S_ROLE}, 5", f"v_lshl_add_u32 v7, v3, 3, s{T0_}", "v_mul_u32_u24 v7, 9216, v7")
    a("v_and_b32 v6, 7, v2", "v_lshl_add_u32 v7, v6, 3, v7")
    a(f"s_lshl_b32 s{T0_}, s{S_BLK}, 6", f"v_add_u32 v7, s{T0_}, v7")
    a("v_cmp_gt_u32 vcc, 8, v2")
    a(f"s_mov_b32 s{R3}, 9216", f"s_mov_b32 s{R3+1}, 0", f"s_mov_b32 s{R3+2}, {9216*25}", f"s_mov_b32 s{R3+3}, 0")
    a(f"v_mov_b32 v{A}, s{P_GATE}", f"v_mov_b32 v{A+1}, s{P_GATE+1}", f"v_mov_b32 v6, s{P_UP}")
    a(f"v_cndmask_b32 v{A}, v6, v{A}, vcc", f"v_mov_b32 v6, s{P_UP+1}", f"v_cndmask_b32 v{A+1}, v6, v{A+1}, vcc")
    a(f"v_add_co_u32 v{A}, vcc, v{A}, v7", f"v_addc_co_u32 v{A+1}, vcc, 0, v{A+1}, vcc")
def g_loads(a, A, kss, mod=""):
    if XW: return
    for ks in kss:
        for r in range(8):
            d = GW + 16 * ks + 2 * r
            gp = ENV("GPACE", 0)
            if gp and mod: a(f"s_waitcnt vmcnt({gp - 1})")
            a(f"global_load_dwordx2 v[{d}:{d+1}], v[{A}:{A+1}], off" + mod)
            if not (ks == 4 and r == 7):
                a(f"v_lshl_add_u64 v[{A}:{A+1}], v[{A}:{A+1}], 0, s[{R3 if r < 7 else R3+2}:{R3+1 if r < 7 else R3+3}]")
GTRIG = ENV("GTRIG", 2)
PF = ENV("PF", 1)
NL, NN, NC = ENV("NL", 0), ENV("NN", 0), ENV("NC", 4)
NE = ENV("NE", 0)
NLL = ENV("NLL", 0)
NL2 = ENV("NL2", 4)
GE = ENV("GE", 0)
GSL = ENV("GSL", 6)
XPF = ENV("XPF", 1)
PFB = ENV("PFB", min(166, 2 * ((max(288, 32 * ENV("GM2", 9)) + 16 * GE) // 7)))
assert not (PFB and NL)
NL3 = ENV("NL3", 0)
assert not (NL3 and NE)
PFA = PFB + 16 * NL + 16 * NE + 6 * NL3
PF0 = PFA + 10 * NLL + 6 * NL2
PF1 = PF0 + 8 * NN + 8 * NC
assert PF1 <= 166
PF2 = ENV("PF2", 166); PFD = ENV("PFD", 0); PFD2 = ENV("PFD2", 0)
GT = eval(os.environ.get("GT", "[0,0,6,6]")); DT = ENV("DT", 3)
RDMA = ENV("RDMA", 1)
DEA = ENV("DEA", 1)
DE = ENV("DE", 1)
def pf_ld(a, dst, v, R):
    if XW: return
    for m in MOD("PFM", "nt;sc1").split(";"): a(f"buffer_load_dword v{dst}, v{v}, s[{R}:{R+3}], s{T4_} offen {m}")
def pf_lane(a, v, t):
    a(f"v_mul_u32_u24 v{v}, 57, v1", f"v_lshrrev_b32 v{v}, 9, v{v}", f"v_mul_u32_u24 v{t}, 9, v{v}", f"v_sub_u32 v{t}, v1, v{t}", f"v_mul_u32_u24 v{v}, 9216, v{v}", f"v_lshl_add_u32 v{v}, v{t}, 7, v{v}")
def pf_gu_setup(a, sidx, R=R2_, tb=T3_, tt=T4_):
    a(f"s_bitcmp1_b32 s{sidx}, 0", f"s_cselect_b32 s{R}, s{P_UP}, s{P_GATE}", f"s_cselect_b32 s{R+1}, s{P_UP+1}, s{P_GATE+1}")
    a(f"s_mov_b32 s{R+2}, {hex(WBYTES)}", f"s_mov_b32 s{R+3}, 0x20000")
    a(f"s_lshr_b32 s{tb}, s{sidx}, 1", f"s_mul_i32 s{tb}, s{tb}, {7*9216}", f"s_mul_i32 s{tt}, s{S_XC}, 1152", f"s_add_u32 s{tb}, s{tb}, s{tt}")
def pf_gu(a, v, sidx, nw, u0, u1, dst, done):
    assert u0 % 2 == 0 and nw % 2 == 0
    pf_gu_setup(a, sidx)
    k = 0
    while u0 + k * nw < u1:
        if u0 + (k + 1) * nw > u1: a(f"s_cmp_ge_u32 s{sidx}, {u1 - u0 - k*nw}", f"s_cbranch_scc1 {done}")
        a(f"s_add_u32 s{T4_}, s{T3_}, {(u0 + k*nw)//2*7*9216}")
        pf_ld(a, dst, v, R2_)
        k += 1
def pf_down(a, sidx, nw, u0, u1, v, dst, done, R=R2_):
    srd(a, R, P_DOWN, WBYTES)
    a(f"s_lshl_b32 s{T3_}, s{sidx}, 13", f"s_mul_i32 s{T4_}, s{S_XC}, {576*1152}", f"s_add_u32 s{T3_}, s{T3_}, s{T4_}", f"v_lshlrev_b32 v{v}, 7, v1")
    k = 0
    while u0 + k * nw < u1:
        if u0 + (k + 1) * nw > u1: a(f"s_cmp_ge_u32 s{sidx}, {u1 - u0 - k*nw}", f"s_cbranch_scc1 {done}")
        a(f"s_add_u32 s{T4_}, s{T3_}, {(u0 + k*nw)*8192}")
        pf_ld(a, dst, v, R)
        k += 1
def gen_ln1(a):
    LW, TB = T5_, S_CH
    X, RAW = 8, 26
    a(f"s_sub_u32 s{T0_}, s{S_I}, 8", f"s_and_b32 s{TB}, s{T0_}, 7", f"s_lshr_b32 s{T0_}, s{T0_}, 3", f"s_lshl_b32 s{T0_}, s{T0_}, 4", f"s_add_u32 s{TB}, s{TB}, s{T0_}")
    a(f"s_and_b32 s{T0_}, s{S_XC}, 1", f"s_lshl_b32 s{T0_}, s{T0_}, 3", f"s_add_u32 s{TB}, s{TB}, s{T0_}", f"s_lshr_b32 s{T0_}, s{S_XC}, 1", f"s_lshl_b32 s{T0_}, s{T0_}, 5", f"s_add_u32 s{TB}, s{TB}, s{T0_}")
    a("v_lshrrev_b32 v36, 5, v1", "v_and_b32 v37, 31, v1")
    a("v_mul_u32_u24 v38, 1152, v36", "v_lshl_add_u32 v39, v37, 2, v38", "v_lshl_add_u32 v38, v37, 4, v38")
    a(f"s_mul_i32 s{T1_}, s{TB}, 18432", f"s_mul_i32 s{T2_}, s{LW}, 2304", f"s_add_u32 s{T1_}, s{T1_}, s{T2_}")
    a("s_waitcnt lgkmcnt(0)")
    stamp(a, 1); lstamp(a, 1)
    srd(a, R0, P_X, XBYTES)
    a(f"buffer_load_dwordx4 v[{RAW}:{RAW+3}], v38, s[{R0}:{R0+3}], s{T1_} offen")
    a(f"buffer_load_dwordx4 v[{RAW+4}:{RAW+7}], v38, s[{R0}:{R0+3}], s{T1_} offen offset:512")
    a(f"buffer_load_dword v{RAW+8}, v39, s[{R0}:{R0+3}], s{T1_} offen offset:1024")
    a("s_barrier")
    a(f"s_lshr_b32 s{T1_}, s{LW}, 2", f"s_lshl_b32 s{T1_}, s{T1_}, 6", f"s_add_u32 s{T2_}, s{T2_}, s{T1_}", f"s_add_u32 s{T2_}, s{T2_}, {C_LNB}")
    a(f"v_lshl_add_u32 v35, v37, 1, v36")
    a(f"s_mov_b32 s{SP0}, 0x05040100", f"s_mov_b32 s{SP1}, 0x07060302")
    def waits(n):
        for (c, js) in ((2, range(0, 4)), (1, range(4, 8)), (0, range(8, 9))):
            if c == 2: lstamp(a, 2)
            a(f"s_waitcnt vmcnt({c+n})")
            if c == 2: lstamp(a, 3)
            for j in js: unpack(a, X + 2 * j, RAW + j)
    l1 = newlabel("LN1A"); l2 = newlabel("LN1B")
    if NL:
        LW0 = ENV("NLW", 4)
        pf_lane(a, 46, 47)
        a(f"s_sub_u32 s{T1_}, s{LW}, {LW0}", f"s_and_b32 s{T1_}, s{T1_}, 7", f"s_lshl_b32 s{T3_}, s{T1_}, 4", f"s_add_u32 s{T3_}, s{T3_}, s{S_I}", f"s_sub_u32 s{T3_}, s{T3_}, 8")
        pf_gu_setup(a, T3_, R3, T4_, T0_)
    def dma_early(skip):
        a(f"s_cmp_lt_u32 s{LW}, 4", f"s_cbranch_scc1 {skip}", f"s_cmp_ge_u32 s{S_FI}, 18", f"s_cbranch_scc1 {skip}")
        srd(a, R1, P_DOWN, WBYTES)
        a("v_lshlrev_b32 v46, 4, v1", f"s_mul_i32 s{T0_}, s{S_BLK}, 36864", f"s_mul_i32 s{T1_}, s{LW}, 9216", f"s_add_u32 s{T0_}, s{T0_}, s{T1_}", f"s_sub_u32 s{T0_}, s{T0_}, {4*9216}", f"s_add_u32 s{T1_}, s{T1_}, {C_DOWN - 4*9216}")
        for k in range(9):
            if k % 4 == 0:
                a(f"s_add_u32 m0, s{T1_}, {1024*k}")
                if k: a(f"s_add_u32 s{T0_}, s{T0_}, 4096")
            a(f"buffer_load_dwordx4 v46, s[{R1}:{R1+3}], s{T0_} offen offset:{1024*(k&3)} {MOD('DM', 'nt')} lds")
    if XW: waits(0)
    elif DEA == 1:
        dma_early(l1)
        waits(9)
        a(f"s_branch {l2}")
        a(f"{l1}:")
        if NL3:
            l3 = newlabel("LN1C")
            a(f"s_sub_u32 s{T1_}, s{LW}, 4", f"s_cmp_ge_u32 s{T1_}, {NL3}", f"s_cbranch_scc1 {l3}")
            pf_lane(a, 46, 47)
            a(f"s_mul_i32 s{T1_}, s{T1_}, 6", f"s_add_u32 s{T1_}, s{T1_}, s{S_I}", f"s_add_u32 s{T3_}, s{T1_}, {PFB - 18}")
            pf_gu_setup(a, T3_, R3, T4_, T0_)
            pf_ld(a, 47, 46, R3)
            waits(len(MOD("PFM", "nt;sc1").split(';')))
            a(f"s_branch {l2}")
            a(f"{l3}:")
        waits(0)
        a.flush(2)
        a(f"{l2}:")
    elif DEA == 2:
        waits(0)
        dma_early(l1)
        a(f"{l1}:")
    elif NL and ENV("NLE", 0):
        a(f"s_cmp_lt_u32 s{T1_}, {NL}", f"s_cselect_b32 s{T4_}, s{T4_}, {hex(WBYTES)}")
        pf_ld(a, 47, 46, R3)
        waits(len(MOD("PFM", "nt;sc1").split(';')))
    else:
        waits(0)
    if NL and not ENV("NLE", 0):
        if ENV("X0", 0): a(f"s_cmp_eq_u32 s{S_XC}, 0", f"s_cbranch_scc1 {l1}")
        a(f"s_cmp_ge_u32 s{T1_}, {NL}", f"s_cbranch_scc1 {l1}")
        pf_ld(a, 47, 46, R3)
        a(f"{l1}:")
    stamp(a, 2); lstamp(a, 4)
    a(f"v_lshl_add_u32 v6, v35, 4, s{T2_}", f"v_lshl_add_u32 v7, v35, 2, s{T2_}")
    a(f"v_mul_u32_u24 v35, 0x20202, v36", "v_lshl_add_u32 v35, v36, 25, v35", "v_add_u32 v35, 0x05040100, v35")
    ln_stats(a, X, 36, 38, 40, 42, 44)
    lstamp(a, 5)
    for j in range(9):
        if j == ENV("DSAMP", 3):
            a("v_and_b32 v59, 3, v1", "v_lshlrev_b32 v59, 2, v59")
            if SN: a(f"s_load_dwordx4 s[{R3}:{R3+3}], s[{P_DBG}:{P_DBG+1}], 0" + (" glc" if SN == 2 else ""))
            else: a(f"global_load_dword v58, v59, s[{P_DBG}:{P_DBG+1}] sc1")
        ln_apply_pair(a, X + 2 * j, 36, 38, 40, None)
        a(f"v_cvt_pk_f16_f32 v{RAW+j}, v40, v41")
        if j in (3, 7):
            P = RAW + j - 3; O = X + 2 * (j - 3)
            a(f"v_permlane32_swap_b32 v{P}, v{P+2}", f"v_permlane32_swap_b32 v{P+1}, v{P+3}")
            a(f"v_perm_b32 v{O}, v{P+2}, v{P}, s{SP0}", f"v_perm_b32 v{O+1}, v{P+2}, v{P}, s{SP1}")
            a(f"v_perm_b32 v{O+2}, v{P+3}, v{P+1}, s{SP0}", f"v_perm_b32 v{O+3}, v{P+3}, v{P+1}, s{SP1}")
            a(f"ds_write_b128 v6, v[{O}:{O+3}] offset:{1024*(j//4)}")
    a(f"v_mov_b32 v40, v{RAW+8}", f"v_permlane32_swap_b32 v{RAW+8}, v40")
    a(f"v_perm_b32 v40, v40, v{RAW+8}, v35")
    a(f"ds_write_b32 v7, v40 offset:2048")
    a(f"v_mov_b32 v6, s{LW}")
    a(f"ds_write_b8 v6, v{VONE} offset:{FL_LN1}")
    lstamp(a, 6)
    a("s_setprio 0")
    a(f"s_cmp_ge_u32 s{LW}, 4", "s_cbranch_scc1 KS_X4")
    a("s_setprio 3")
    srd(a, R2_, P_WS, XBYTES, WS_UT)
    a("v_and_b32 v6, 1, v0", "v_mul_u32_u24 v6, 9280, v6", "v_lshrrev_b32 v7, 1, v0", "v_lshl_add_u32 v6, v7, 2, v6", f"v_add_u32 v6, {C_LNB}, v6")
    if UL:
        a("v_lshrrev_b32 v7, 3, v0", "v_mul_u32_u24 v7, 0x4100, v7", "v_and_b32 v8, 7, v0", "v_lshl_add_u32 v7, v8, 4, v7")
        a(f"s_lshl_b32 s{T0_}, s{TB}, 7")
    else:
        a("v_lshrrev_b32 v7, 2, v0", "v_mul_u32_u24 v7, 0x2080, v7" if SWU else "v_lshlrev_b32 v7, 13, v7", "v_and_b32 v8, 3, v0", "v_lshl_add_u32 v7, v8, 4, v7")
        a(f"s_lshl_b32 s{T0_}, s{TB}, 6")
    if SWU: a(f"v_xor_b32 v7, s{T0_}, v7", f"s_mov_b32 s{T0_}, 0")
    for k in range(1, 5): a(f"s_add_u32 s{T0_+k}, s{T0_}, {0x80000*k}")
    if SN:
        a("s_waitcnt lgkmcnt(0)")
        a(f"v_mov_b32 v58, s{R3}", f"v_mov_b32 v57, s{R3+1}", f"v_mov_b32 v56, s{R3+2}", f"v_mov_b32 v55, s{R3+3}")
        a("v_mov_b32_dpp v58, v57 quad_perm:[0,1,2,3] row_mask:0xf bank_mask:0xf" if 0 else "v_cmp_eq_u32 vcc, 4, v59", "v_cndmask_b32 v58, v58, v57, vcc", "v_cmp_eq_u32 vcc, 12, v59", "v_cndmask_b32 v56, v56, v55, vcc", "v_cmp_lt_u32 vcc, 4, v59", "v_cndmask_b32 v58, v58, v56, vcc")
        dbg_wait(a, 63)
    else: dbg_wait(a, 0)
    lstamp(a, 7)
    a(f"ds_write_b32 v59, v58 offset:{FL_NONCE}")
    a(f"s_mov_b32 s{SP0}, {hex(TAGM)}")
    for d in range(1, 4): a(f"v_lshrrev_b32 v{58-d}, {3*d}, v58")
    lds_wait(a, FL_LN1, 20, "b8")
    stamp(a, 3); lstamp(a, 8)
    for k in range(5):
        a(f"ds_read2st64_b32 v[{20+4*k}:{21+4*k}], v6 offset0:{2*k} offset1:{9+2*k}")
        a(f"ds_read2st64_b32 v[{22+4*k}:{23+4*k}], v6 offset0:{18+2*k} offset1:{27+2*k}")
    for k in range(5):
        a(f"s_waitcnt lgkmcnt({8-2*k})")
        for d in range(4): a(f"v_bfi_b32 v{20+4*k+d}, s{SP0}, v{58-d}, v{20+4*k+d}")
        a(f"buffer_store_dwordx4 v[{20+4*k}:{23+4*k}], v7, s[{R2_}:{R2_+3}], s{T0_+k} offen {MOD('USMOD')}")
    if DE: a(f"v_mov_b32 v6, s{LW}", f"ds_write_b8 v6, v{VONE} offset:{FL_UTOK}")
    stamp(a, 4)

LNV = ENV("LNV", 1)
DB = ENV("DB", 1)
DDL = 5244
EP = ENV("EP", 1)
ZX = ENV("ZX", 1)
FLD = ENV("FLD", 2)
NDE = ENV("NDE", 9)
def gen_ln1v(a):
    LW, TB = T5_, S_CH
    X, RAW, PIT, LB = 8, 26, 2368, C_LNB - 512
    SE0, SE1, SON, SO0, SO1 = R4, R4 + 1, R4 + 2, R4 + 3, T4_
    a(f"s_sub_u32 s{T0_}, s{S_I}, 8", f"s_and_b32 s{TB}, s{T0_}, 7", f"s_lshr_b32 s{T0_}, s{T0_}, 3", f"s_lshl_b32 s{T0_}, s{T0_}, 4", f"s_add_u32 s{TB}, s{TB}, s{T0_}")
    a(f"s_and_b32 s{T0_}, s{S_XC}, 1", f"s_lshl_b32 s{T0_}, s{T0_}, 3", f"s_add_u32 s{TB}, s{TB}, s{T0_}", f"s_lshr_b32 s{T0_}, s{S_XC}, 1", f"s_lshl_b32 s{T0_}, s{T0_}, 5", f"s_add_u32 s{TB}, s{TB}, s{T0_}")
    a("v_lshrrev_b32 v36, 5, v1", "v_and_b32 v37, 31, v1")
    a("v_mul_u32_u24 v38, 9216, v36", "v_lshl_add_u32 v39, v37, 2, v38", "v_lshl_add_u32 v38, v37, 4, v38")
    a(f"s_mul_i32 s{T1_}, s{TB}, 18432", f"s_mul_i32 s{T2_}, s{LW}, 1152", f"s_add_u32 s{T1_}, s{T1_}, s{T2_}")
    a(f"s_mov_b32 s{R0+2}, {hex(XBYTES)}", f"s_mov_b32 s{R0+3}, 0x20000")
    a("s_waitcnt lgkmcnt(0)")
    stamp(a, 1); lstamp(a, 1)
    a(f"s_mov_b32 s{R0}, s{P_X}", f"s_mov_b32 s{R0+1}, s{P_X+1}")
    a(f"buffer_load_dwordx4 v[{RAW}:{RAW+3}], v38, s[{R0}:{R0+3}], s{T1_} offen")
    a(f"buffer_load_dwordx4 v[{RAW+4}:{RAW+7}], v38, s[{R0}:{R0+3}], s{T1_} offen offset:512")
    a(f"buffer_load_dword v{RAW+8}, v39, s[{R0}:{R0+3}], s{T1_} offen offset:1024")
    a("s_barrier")
    a(f"s_mul_i32 s{T2_}, s{LW}, {PIT}", f"s_add_u32 s{T2_}, s{T2_}, {LB}", "v_lshl_add_u32 v6, v37, 1, v36", f"v_lshl_add_u32 v6, v6, 2, s{T2_}")
    a("v_and_b32 v59, 3, v1", "v_bfe_u32 v7, v1, 2, 2", f"v_mul_u32_u24 v7, {PIT}, v7", "v_lshl_add_u32 v40, v3, 2, v59", "v_lshl_add_u32 v7, v40, 3, v7")
    a(f"s_lshl_b32 s{T2_}, s{LW}, 7", f"s_add_u32 s{T0_}, s{T2_}, {LB + 2048}", f"v_add_u32 v44, s{T0_}, v7", f"s_lshl_b32 s{T2_}, s{LW}, 8", f"s_add_u32 s{T2_}, s{T2_}, {LB}", f"v_add_u32 v7, s{T2_}, v7")
    a(f"v_lshlrev_b32_dpp v40, 4, v59 quad_perm:[0,2,1,3] {DPPM}" if 0 else "v_lshlrev_b32 v41, 4, v59", f"v_mov_b32_dpp v40, v41 quad_perm:[0,2,1,3] {DPPM} ; nodst", "v_lshlrev_b32 v59, 2, v59")
    a("v_lshrrev_b32 v41, 2, v1", "v_mul_u32_u24 v35, 0x8200, v41", f"s_lshl_b32 s{T0_}, s{TB}, 6", f"s_and_b32 s{T1_}, s{T0_}, 0x1e00", f"v_xad_u32 v35, v35, s{T1_}, v40")
    a(f"s_lshl_b32 s{T1_}, s{LW}, 4", f"v_add_u32 v41, s{T1_}, v41", "v_mul_u32_u24 v45, 0x2080, v41", f"v_xad_u32 v45, v45, s{T0_}, v40")
    a(f"s_and_b32 s{T1_}, s{LW}, 3", f"s_mul_i32 s{T1_}, s{T1_}, 0x2080", f"s_and_b32 s{T0_}, s{T0_}, 0x1c0", f"s_xor_b32 s{SO0}, s{T0_}, s{T1_}", f"s_lshr_b32 s{T1_}, s{LW}, 2", f"s_lshl_b32 s{T1_}, s{T1_}, 20")
    a(f"s_add_u32 s{SO0}, s{SO0}, s{T1_}", f"s_add_u32 s{SO1}, s{SO0}, 0x80000")
    a(f"s_mov_b32 s{SE0}, 0x3f80", f"s_mov_b32 s{SE1}, 0x3f800000", f"s_mov_b32 s{SON}, 0x3f803f80", f"s_mov_b32 s{SP0}, {hex(TAGM)}", f"s_mov_b32 s{SP1}, 0x200000")
    a("v_mov_b32 v40, 0", "v_mov_b32 v41, 0", f"v_mov_b32 v42, {f32(1.0/576)}")
    srd(a, R2_, P_WS, XBYTES, WS_UT)
    def waits(n):
        for (c, js) in ((2, range(0, 4)), (1, range(4, 8)), (0, range(8, 9))):
            if c == 2: lstamp(a, 2)
            a(f"s_waitcnt vmcnt({c+n})")
            if c == 2: lstamp(a, 3)
            for j in js: a(f"v_dot2c_f32_bf16 v40, s{SON}, v{RAW+j}", f"v_dot2c_f32_bf16 v41, v{RAW+j}, v{RAW+j}")
    l1 = newlabel("LN1A"); l2 = newlabel("LN1B")
    if NDE:
        a(f"s_cmp_lt_u32 s{LW}, 4", f"s_cbranch_scc1 {l1}", f"s_cmp_ge_u32 s{S_FI}, 18", f"s_cbranch_scc1 {l1}")
        srd(a, R1, P_DOWN, WBYTES)
        a("v_lshlrev_b32 v46, 4, v1", f"s_mul_i32 s{T0_}, s{S_BLK}, 36864", f"s_mul_i32 s{T1_}, s{LW}, 9216", f"s_add_u32 s{T0_}, s{T0_}, s{T1_}", f"s_sub_u32 s{T0_}, s{T0_}, {4*9216}", f"s_add_u32 s{T1_}, s{T1_}, {C_DOWN - 4*9216}")
        for k in range(NDE):
            if k % 4 == 0:
                a(f"s_add_u32 m0, s{T1_}, {1024*k}")
                if k: a(f"s_add_u32 s{T0_}, s{T0_}, 4096")
            a(f"buffer_load_dwordx4 v46, s[{R1}:{R1+3}], s{T0_} offen offset:{1024*(k&3)} {MOD('DM', 'nt')} lds")
        waits(NDE)
        a(f"s_branch {l2}")
        a(f"{l1}:")
        if NL3:
            l3 = newlabel("LN1C")
            a(f"s_sub_u32 s{T1_}, s{LW}, 4", f"s_cmp_ge_u32 s{T1_}, {NL3}", f"s_cbranch_scc1 {l3}")
            pf_lane(a, 46, 47)
            a(f"s_mul_i32 s{T1_}, s{T1_}, 6", f"s_add_u32 s{T1_}, s{T1_}, s{S_I}", f"s_add_u32 s{T3_}, s{T1_}, {PFB - 18}")
            pf_gu_setup(a, T3_, R1, T2_, T0_)
            for m in MOD("PFM", "nt;sc1").split(";"): a(f"buffer_load_dword v47, v46, s[{R1}:{R1+3}], s{T2_} offen {m}")
            waits(2)
            a(f"s_branch {l2}")
            a(f"{l3}:")
    waits(0)
    a(f"{l2}:")
    stamp(a, 2); lstamp(a, 4)
    def sample():
        if SN: a(f"s_load_dwordx4 s[{R3}:{R3+3}], s[{P_DBG}:{P_DBG+1}], 0")
        else: a(f"global_load_dword v58, v59, s[{P_DBG}:{P_DBG+1}] sc1")
    DS = ENV("DSAMP", 3)
    if DS == -1: sample()
    a("v_add_f32_dpp v36, v40, v40 row_ror:8 row_mask:0xf bank_mask:0x3 ; nodst", "v_add_f32_dpp v36, v41, v41 row_ror:8 row_mask:0xf bank_mask:0xc ; nodst")
    for m in ("row_half_mirror", "quad_perm:[1,0,3,2]", "quad_perm:[2,3,0,1]"): a(f"v_add_f32_dpp v36, v36, v36 {m} {DPPM}")
    a("v_mov_b32 v37, v36", "v_permlane16_swap_b32 v36, v37", "v_add_f32 v36, v36, v37")
    a(f"v_mul_f32_dpp v40, v36, v42 row_newbcast:0 {DPPM} ; nodst", f"v_mul_f32_dpp v41, v36, v42 row_newbcast:8 {DPPM} ; nodst")
    a("v_cvt_pk_bf16_f32 v36, 0, -v40", "v_fma_f32 v41, -v40, v40, v41")
    lstamp(a, 5)
    chain = ["v_max_f32 v41, 0, v41", "v_cvt_pk_bf16_f32 v41, 0, v41", f"v_add_f32 v41, {f32(1e-5)}, v41", "v_cvt_pk_bf16_f32 v41, 0, v41", "v_sqrt_f32 v41, v41", "v_cvt_pk_bf16_f32 v41, 0, v41", "v_rcp_f32 v38, v41"]
    def sub(j): a(f"v_dot2_f32_bf16 v{X+2*j}, v{RAW+j}, s{SE0}, v36", f"v_dot2_f32_bf16 v{X+2*j+1}, v{RAW+j}, s{SE1}, v36")
    for j in range(9):
        sub(j)
        if chain: a(chain.pop(0))
        if j >= 2: rnd2(a, X + 2 * (j - 2))
    for j in range(9):
        if j == DS: sample()
        if j < 2: rnd2(a, X + 2 * (j + 7))
        a(f"v_pk_mul_f32 v[{X+2*j}:{X+2*j+1}], v[{X+2*j}:{X+2*j+1}], v[38:39] op_sel_hi:[1,0]")
        a(f"v_cvt_pkrtz_f16_f32 v{RAW+j}, v{X+2*j}, v{X+2*j+1}", f"v_add_u32 v{RAW+j}, 0x40004, v{RAW+j}")
        if j & 1: a(f"ds_write2st64_b32 v6, v{RAW+j-1}, v{RAW+j} offset0:{j-1} offset1:{j}")
    a(f"ds_write_b32 v6, v{RAW+8} offset:2048")
    a(f"v_mov_b32 v6, s{LW}")
    a(f"ds_write_b8 v6, v{VONE} offset:{FL_LN1}")
    lstamp(a, 6)
    if SN:
        a("s_waitcnt lgkmcnt(0)")
        a(f"v_mov_b32 v58, s{R3}", f"v_mov_b32 v57, s{R3+1}", f"v_mov_b32 v56, s{R3+2}", f"v_mov_b32 v55, s{R3+3}")
        a("v_cmp_eq_u32 vcc, 4, v59", "v_cndmask_b32 v58, v58, v57, vcc", "v_cmp_eq_u32 vcc, 12, v59", "v_cndmask_b32 v56, v56, v55, vcc", "v_cmp_lt_u32 vcc, 4, v59", "v_cndmask_b32 v58, v58, v56, vcc")
        dbg_wait(a, 63)
    else: dbg_wait(a, 0)
    lstamp(a, 7)
    a(f"v_mov_b32_dpp v40, v58 quad_perm:[0,2,1,3] {DPPM} ; nodst")
    for d in range(1, 4): a(f"v_lshrrev_b32 v{40+d}, {3*d}, v40")
    lds_wait(a, FL_LN1, 20, "b8")
    stamp(a, 3); lstamp(a, 8)
    for h in range(2):
        for i in range(2): a(f"ds_read_b64_tr_b16 v[{20+4*h+2*i}:{21+4*h+2*i}], v7 offset:{128*h + 4*PIT*i}")
    for i in range(2): a(f"ds_read_b64_tr_b16 v[{28+2*i}:{29+2*i}], v44 offset:{4*PIT*i}")
    for h in range(2):
        a(f"s_waitcnt lgkmcnt({4-2*h})")
        for d in range(4): a(f"v_bfi_b32 v{20+4*h+d}, s{SP0}, v{40+d}, v{20+4*h+d}")
        a(f"buffer_store_dwordx4 v[{20+4*h}:{23+4*h}], v35, s[{R2_}:{R2_+3}], s{SO1 if h else SO0} offen {MOD('USMOD')}")
    a("s_waitcnt lgkmcnt(0)")
    a(f"s_cmp_ge_u32 s{LW}, 4", "s_cbranch_scc1 KS_X4")
    for d in range(4): a(f"v_bfi_b32 v{28+d}, s{SP0}, v{40+d}, v{28+d}")
    a(f"buffer_store_dwordx4 v[28:31], v45, s[{R2_}:{R2_+3}], s{SP1} offen {MOD('USMOD')}")
    a(f"ds_write_b8 v6, v{VONE} offset:{FL_UTOK}")
    a(f"ds_write_b32 v59, v58 offset:{FL_NONCE}")
    for d in range(1, 4): a(f"v_lshrrev_b32 v{58-d}, {3*d}, v58")
    stamp(a, 4)

def dbg_wait(a, n, vt=58, va=59):
    lp = newlabel("DBP"); go = newlabel("DBG")
    a(f"s_waitcnt vmcnt({n})")
    a(f"{lp}:")
    a(f"v_cmp_eq_u32 vcc, 0, v{vt}", f"s_cbranch_vccz {go}")
    a("s_sleep 1")
    a(f"global_load_dword v{vt}, v{va}, s[{P_DBG}:{P_DBG+1}] sc1")
    guard(a)
    a("s_waitcnt vmcnt(0)")
    a(f"s_branch {lp}")
    a(f"{go}:")

ROLE_TILES = {0: [0, 1, 2, 3, 4], 1: [0, 1, 2, 3, 4], 2: [5, 6, 7], 3: [5, 6, 7]}
ROLE_W = {2: 0, 3: 1, 1: 2}
ACC, DA, RING, WT = 16, 36, 76, 92
NRING = 4

def epi_plan():
    owner = {0: (0, 0), 1: (0, 1), 2: (1, 0), 3: (1, 1), 4: (1, 3), 5: (0, 2), 6: (0, 3), 7: (1, 2)}
    slots = {}
    cnt = [0, 0]
    for g in range(2):
        for role in range(4):
            for j in ROLE_TILES[role]:
                if owner[j] == (g, role): continue
                slots[(g, role, j)] = g * G_SIZE + R_RED + 1024 * cnt[g]; cnt[g] += 1
    assert max(cnt) <= 13, cnt
    ownerC = {0: 0, 1: 0, 2: 1, 3: 1, 4: 2, 5: 2, 6: 3, 7: 3}
    n = 0
    for role in range(4):
        for j in ROLE_TILES[role]:
            if ownerC[j] == role: continue
            slots[(2, role, j)] = 2 * G_SIZE + R_RED + 1024 * n; n += 1
    return owner, ownerC, slots

class LdsTrack:
    def __init__(self, a): self.a = a; self.n = 0; self.done = -1
    def issue(self, text): self.a(text); self.n += 1; return self.n - 1
    def wait(self, idx):
        k = self.n - 1 - idx
        if idx <= self.done: return
        self.done = idx
        if k <= 15: self.a(f"s_waitcnt lgkmcnt({k})")

CZ0, CZ1, CSH, CXR, CFL, SIS, CM, SM, SC, SSC, SDL = 6, 7, 8, 9, 10, 11, 12, 14, 15, 16, 18
IXR, LFR = (108, 109, 112, 113), (110, 111, 114, 115)
def stage_write(a, off):
    a("v_lshl_or_b32 v24, v25, 16, v24", "v_lshl_or_b32 v25, v27, 16, v26", f"ds_write_b64 v28, v[24:25] offset:{off}")
def pre_ixlf(a):
    end = newlabel("PX"); j1 = newlabel("PX"); j2 = newlabel("PX"); jn = newlabel("PX")
    a(f"s_cmp_eq_u32 s{S_ROLE}, 3", f"s_cbranch_scc1 {end}")
    a("v_lshlrev_b32 v26, 3, v2", "v_mov_b32 v21, 0x80")
    a(f"s_cmp_eq_u32 s{S_ROLE}, 1", f"s_cbranch_scc1 {j1}", f"s_cmp_eq_u32 s{S_ROLE}, 2", f"s_cbranch_scc1 {j2}")
    a("v_lshl_add_u32 v26, v3, 1, v26", "v_mov_b32 v22, 1")
    a(f"s_branch {jn}")
    a(f"{j1}:")
    a("v_cmp_gt_u32 vcc, 2, v3", "v_lshl_add_u32 v20, v3, 2, v26", "v_add_u32 v20, 256, v20", "v_lshl_add_u32 v26, v3, 8, v26", "v_cndmask_b32 v26, v26, v20, vcc")
    a("v_cndmask_b32 v22, v21, 2, vcc", "v_cndmask_b32 v21, 4, v21, vcc")
    a(f"s_branch {jn}")
    a(f"{j2}:")
    a("v_lshl_add_u32 v26, v3, 9, v26", "v_add_u32 v26, 0x400, v26", "v_mov_b32 v22, 0x100")
    a(f"{jn}:")
    a(f"v_mad_u32_u24 v26, v22, s{S_G}, v26", "v_add_u32 v27, v26, v21", f"s_movk_i32 s{T4_}, {T_TAB}", f"s_movk_i32 s{T5_}, {-(0x4280 + 0x800)}", f"s_lshl_b32 s{T3_}, s{S_G}, 9")
    for r in range(2): a(f"v_cvt_f32_u32 v{20+r}, v{26+r}", f"v_max_u32 v{22+r}, 0x800, v{26+r}")
    for r in range(2):
        a(f"v_cmp_gt_u32 vcc, 0x80, v{26+r}", f"v_lshrrev_b32 v{24+r}, 16, v{20+r}", f"v_add3_u32 v{24+r}, v{24+r}, v{22+r}, s{T5_}", f"v_cndmask_b32 v{24+r}, v{24+r}, v{26+r}, vcc")
    for r in range(2):
        a(f"v_min_u32 v{24+r}, {IDX_DUMMY}, v{24+r}", f"v_lshl_add_u32 v{24+r}, v{24+r}, 1, s{T4_}")
    a(f"v_add_u32 v29, s{T3_}, v28")
    a("v_lshl_or_b32 v24, v25, 16, v24", "v_lshl_or_b32 v25, v27, 16, v26", "ds_write_b64 v29, v[24:25]")
    a(f"{end}:")

def gen_group(a):
    RAW, VLDT, VDSK, VNT, VNA, VPR, VEM, VTE, VTL = 40, 46, 107, 104, 105, 106, 72, 126, 127
    I1, D2, I2, D1, D3 = 116, 119, 120, 124, 125
    a(f"s_lshl_b32 s{T0_}, s{S_CH}, 8", f"v_lshl_add_u32 v20, v1, 2, s{T0_}")
    a(f"s_lshl_b32 s{T0_}, s{S_CH}, 1", f"v_mov_b32 v21, s{T0_}")
    a(f"s_mul_i32 s{S_GB}, s{S_G}, {G_SIZE}", f"s_add_u32 s{S_GB}, s{S_GB}, {G_BASE}")
    a("s_waitcnt lgkmcnt(0)")
    stamp(a, 1)
    PL = ENV("PLATE", 0)
    if PL == 1: a(f"s_sub_u32 s{T0_}, s{S_I}, 8", f"s_cmp_ge_u32 s{T0_}, 16", "s_cbranch_scc1 KS_PL1", "s_barrier", "KS_PL1:")
    if PL == 2: a("s_barrier")
    a(f"global_load_ushort v{VLDT}, v21, s[{P_LDT}:{P_LDT+1}]")
    for k in range(6):
        a(f"global_load_dword v{RAW+k}, v20, s[{P_ARE+2*k}:{P_ARE+2*k+1}]")
    a(f"global_load_ushort v{VDSK}, v21, s[{P_DSK}:{P_DSK+1}]")
    if PL == 1: a("s_cbranch_scc0 KS_PL2")
    if PL != 2: a("s_barrier")
    if PL == 1: a("KS_PL2:")
    if ENV("UPW", 0):
        a(f"s_sub_u32 s{T0_}, s{S_I}, 8", f"s_cmp_ge_u32 s{T0_}, 16", "s_cbranch_scc1 KS_UPW", f"s_cmp_lg_u32 s{S_G}, 1", "s_cbranch_scc1 KS_UPW")
        TB = T5_
        a(f"s_and_b32 s{TB}, s{T0_}, 7", f"s_lshr_b32 s{T0_}, s{T0_}, 3", f"s_lshl_b32 s{T0_}, s{T0_}, 4", f"s_add_u32 s{TB}, s{TB}, s{T0_}")
        a(f"s_and_b32 s{T0_}, s{S_XC}, 1", f"s_lshl_b32 s{T0_}, s{T0_}, 3", f"s_add_u32 s{TB}, s{TB}, s{T0_}", f"s_lshr_b32 s{T0_}, s{S_XC}, 1", f"s_lshl_b32 s{T0_}, s{T0_}, 5", f"s_add_u32 s{TB}, s{TB}, s{T0_}")
        srd(a, R2_, P_WS, XBYTES, WS_UT)
        a(f"s_lshl_b32 s{T0_}, s{S_ROLE}, 4", "v_lshrrev_b32 v7, 2, v1", f"v_add_u32 v7, s{T0_}, v7", "v_mul_u32_u24 v7, 0x2080, v7", "v_and_b32 v8, 3, v1", "v_lshl_add_u32 v7, v8, 4, v7")
        a(f"s_lshl_b32 s{T0_}, s{TB}, 6", f"v_xor_b32 v7, s{T0_}, v7")
        for d in range(4): a(f"v_mov_b32 v{8+d}, 0")
        for k in range(5):
            a(f"s_mov_b32 s{T0_}, {0x80000*k}")
            a(f"buffer_store_dwordx4 v[8:11], v7, s[{R2_}:{R2_+3}], s{T0_} offen {MOD('UPWMOD')}")
        a.flush(2)
        a("KS_UPW:")
    a(f"s_movk_i32 s{T4_}, {T_TAB}")
    def dr_addr(dst, x, special=False):
        a(f"v_sub_u32 v30, 544, v{x}", "v_cvt_f32_i32 v31, v30", "v_cmp_gt_u32 vcc, 0x100, v30", "v_cvt_pk_bf16_f32 v31, v31, v31", "v_and_b32 v31, 0xffff, v31", "v_subrev_u32 v31, 0x4280, v31")
        a("v_cndmask_b32 v31, v31, v30, vcc", "v_cmp_lt_u32 vcc, 0x20d, v30")
        if special: a(f"v_or_b32 v30, 1, v{x}")
        a("v_cndmask_b32 v31, v31, v32, vcc")
        if special: a("v_cmp_eq_u32 vcc, 0x25d, v30", "v_cndmask_b32 v31, v31, v33, vcc")
        a(f"v_lshl_add_u32 v{dst}, v31, 1, s{T4_}")
    def g_addr(dst, y0, base, M):
        a(f"v_sub_u32 v30, {y0}, v23", f"v_cmp_lt_u32 vcc, {M}, v30", f"v_lshlrev_b32 v31, 2, v30", f"v_add_u32 v31, {T_TAB + 2*base}, v31", f"v_cndmask_b32 v{dst}, v31, v33, vcc")
    pb = newlabel("PREB"); pw = newlabel("PREW"); pe = newlabel("PREE")
    a(f"s_cmp_eq_u32 s{S_G}, 2", f"s_cbranch_scc1 {pe}")
    a(f"v_mov_b32 v32, {IDX_ZERO}")
    a(f"s_cmp_eq_u32 s{S_G}, 1", f"s_cbranch_scc1 {pb}")
    jl = [newlabel("PRE") for _ in range(4)]
    a(f"v_mov_b32 v33, {T_TAB + 2*IDX_ZERO}")
    for r in range(1, 4): a(f"s_cmp_eq_u32 s{S_ROLE}, {r}", f"s_cbranch_scc1 {jl[r]}")
    a("v_lshlrev_b32 v23, 1, v1")
    for e, (y0, base, M) in enumerate(((93, 389, 61), (92, 389, 61), (94, 388, 62), (93, 388, 62))): g_addr(24 + e, y0, base, M)
    a(f"s_branch {pw}")
    for r, base in ((1, 513), (2, 514)):
        a(f"{jl[r]}:")
        a("v_min_u32 v23, 47, v1", "v_lshlrev_b32 v23, 1, v23")
        for e, y0 in ((0, 64), (1, 63), (3, 62)): g_addr(24 + e, y0, base, 63)
        a("v_mov_b32 v26, v25")
        a(f"s_branch {pw}")
    a(f"{jl[3]}:")
    a("v_cmp_gt_u32 vcc, 9, v1", "v_add_u32 v23, 0x100, v1", "v_mov_b32 v33, 0x200", "v_cndmask_b32 v23, v23, v1, vcc", "v_lshlrev_b32 v23, 1, v23")
    for e in (0, 1, 3):
        if e: a("v_add_u32 v23, 1, v23")
        dr_addr(24 + e, 23, special=True)
    a("v_mov_b32 v26, v25")
    a(f"s_branch {pw}")
    a(f"{pb}:")
    a(f"s_lshl_b32 s{T1_}, s{S_ROLE}, 7", f"s_add_u32 s{T1_}, s{T1_}, 18", f"v_lshl_add_u32 v23, v1, 1, s{T1_}")
    for e in range(3):
        if e: a("v_add_u32 v23, 1, v23")
        dr_addr(24 + e, 23)
    a(f"s_sub_u32 s{T1_}, s{S_ROLE}, 1", f"s_cmp_lt_u32 s{T1_}, 2", f"s_cselect_b32 s{T2_}, 47, 63", f"s_mul_i32 s{T1_}, s{T1_}, {T_G9E - T_G7E}", f"s_add_u32 s{T1_}, s{T1_}, {T_G7E}")
    a(f"s_cmp_eq_u32 s{S_ROLE}, 0", f"s_cselect_b32 s{T1_}, {T_G3}, s{T1_}", f"s_cmp_eq_u32 s{S_ROLE}, 3", f"s_cselect_b32 s{T1_}, {T_DRE}, s{T1_}", f"s_cselect_b32 s{T3_}, 0x100, 0")
    a("v_cmp_gt_u32 vcc, 9, v1", f"v_min_u32 v23, s{T2_}, v1", f"v_add_u32 v30, s{T3_}, v23", "v_cndmask_b32 v23, v30, v23, vcc")
    if DB: a(f"s_sub_u32 s{T1_}, s{T1_}, {DDL}")
    a(f"v_lshl_add_u32 v27, v23, 2, s{T1_}")
    stage_write(a, 1024)
    a(f"v_mov_b32 v24, s{S_ROLE}", f"ds_write_b8 v24, v{VONE} offset:{FL_PRE + 4}")
    a(f"s_branch {pe}")
    a(f"{pw}:")
    stage_write(a, 1536)
    a(f"v_mov_b32 v24, s{S_ROLE}", f"ds_write_b8 v24, v{VONE} offset:{FL_PRE}")
    a(f"{pe}:")
    a(f"s_mul_i32 s{T1_}, s{S_ROLE}, {16*KG_ROW}", f"s_min_u32 s{T2_}, s{T1_}, {KG_T[3]}", f"s_add_u32 s{T2_}, s{T2_}, s{S_GB}")
    a(f"s_lshl_b32 s{T0_}, s{S_G}, 4", f"v_mov_b32 v14, s{T0_}", f"v_add_u32 v15, s{S_ROLE}, v14")
    a(f"v_lshl_add_u32 v{VEM}, v1, 3, s{T2_}")
    for k in range(1, 4): a(f"v_add_u32 v{VEM+k}, {4*KG_ROW*k}, v{VEM}")
    a(f"v_mul_u32_u24 v{VTE}, {KG_ROW}, v2", f"v_lshl_add_u32 v{VTE}, v3, 4, v{VTE}", f"v_add_u32 v{VTE}, s{S_GB}, v{VTE}", f"v_add_u32 v{VTL}, s{T1_}, v{VTE}")
    VDA, VDA2, VB_, VT8, VT16, VG8, VG16, VLN = 6, 7, 8, 9, 10, 11, 13, 12
    a("v_lshlrev_b32 v20, 3, v3", "v_sub_u32 v20, v20, v2", "v_add_u32 v21, 16, v20", "v_lshrrev_b32 v21, 1, v21")
    if DB: a("v_and_b32 v23, 1, v21", f"s_movk_i32 s{T1_}, {-DDL}")
    a("v_and_b32 v22, 1, v2", f"s_add_u32 s{T0_}, s{S_GB}, {T_DRE}", f"v_lshl_add_u32 v21, v21, 2, s{T0_}", f"s_movk_i32 s{T0_}, {T_DRO - T_DRE}", f"s_movk_i32 s{T2_}, {T_G7O - T_G7E}")
    if DB: a(f"v_mad_i32_i24 v21, v23, s{T1_}, v21")
    a(f"v_mad_u32_u24 v{VDA}, v22, s{T0_}, v21", f"v_add_u32 v{VDA2}, 640, v{VDA}")
    a(f"v_mad_u32_u24 v23, v22, s{T2_}, v21", f"v_add_u32 v{VG16}, {T_G7E - T_DRE}, v23")
    a("v_lshlrev_b32 v23, 2, v3", "v_sub_u32 v23, v23, v2", f"s_add_u32 s{T0_}, s{S_GB}, {T_G3 + 60 - (DDL if DB else 0)}", f"v_lshl_add_u32 v{VG8}, v23, 2, s{T0_}")
    if DB: a(f"s_movk_i32 s{T1_}, {DDL}", f"v_mad_u32_u24 v{VG8}, v22, s{T1_}, v{VG8}")
    a(f"s_mul_i32 s{T2_}, s{S_G}, {U_SIZE}", f"s_add_u32 s{T2_}, s{T2_}, {C_U}")
    a(f"v_lshl_add_u32 v23, v2, 5, s{T2_}", f"v_lshl_add_u32 v{VB_}, v3, 4, v23")
    a("v_bfe_u32 v20, v1, 2, 2", "v_and_b32 v21, 3, v1", "v_lshl_add_u32 v20, v3, 3, v20")
    a(f"v_lshlrev_b32 v{VNA}, 2, v21")
    a(f"v_lshl_add_u32 v21, v21, 3, s{S_GB}", f"v_lshl_add_u32 v{VT8}, v20, 4, v21", f"v_lshl_add_u32 v{VT16}, v20, 5, v21")
    a(f"v_lshlrev_b32 v{VLN}, 4, v1")
    srd(a, R0, P_WS, 0x240000, WS_ZB1)
    if SWZ: a(f"s_mov_b32 s{CFL}, 0x8080")
    a(f"s_lshl_b32 s{T0_}, s{S_ROLE}, 19", f"s_lshl_b32 s{T1_}, s{S_B2}, 6", f"s_add_u32 s{T0_}, s{T0_}, s{T1_}")
    a(f"s_lshl_b32 s{T1_}, s{S_ROLE}, 16", f"s_lshl_b32 s{T3_}, s{S_CH}, 6", f"s_add_u32 s{T1_}, s{T1_}, s{T3_}", f"s_add_u32 s{T1_}, s{T1_}, {0x200000 - 512*64}")
    if SWZ:
        a(f"s_cmp_eq_u32 s{S_G}, 2", f"s_cselect_b32 s{CZ0}, s{T1_}, s{T0_}", f"s_cselect_b32 s{CSH}, 0x1080, s{CFL}", f"s_cselect_b32 s{T0_}, 1, 3")
        a(f"s_and_b32 s{T0_}, s{T0_}, s{S_ROLE}", f"s_lshl_b32 s{T0_}, s{T0_}, 11", f"s_xor_b32 s{CZ0}, s{CZ0}, s{T0_}", f"s_and_b32 s{CFL}, s{CZ0}, 0x7c0", f"s_xor_b32 s{CZ0}, s{CZ0}, s{CFL}", f"s_xor_b32 s{CZ1}, s{CZ0}, 0x6000")
    else:
        a(f"s_cmp_eq_u32 s{S_G}, 2", f"s_cselect_b32 s{CZ0}, s{T1_}, s{T0_}", f"s_cselect_b32 s{CSH}, 12, 15", f"s_add_u32 s{CZ1}, s{CZ0}, 16384")
    a(f"s_and_b32 s{CXR}, s{S_G}, 1", f"s_lshl_b32 s{CXR}, s{CXR}, 4", f"s_mov_b32 s{CM}, 0x55555555", f"s_mov_b32 s{CM+1}, 0x55555555")
    a(f"s_lshl_b32 s{T0_}, s{S_ROLE}, 8", f"s_add_u32 s{T0_}, s{T0_}, s{S_GB}", f"s_add_u32 s{T0_}, s{T0_}, 36", f"v_lshl_add_u32 v{D1}, v1, 2, s{T0_}")
    a(f"s_movk_i32 s{T0_}, {T_G7O - T_G7E}", f"s_cmp_eq_u32 s{S_ROLE}, 0", f"s_cselect_b32 s{T0_}, {T_G5 - T_G3}, s{T0_}", f"s_cmp_eq_u32 s{S_ROLE}, 3", f"s_cselect_b32 s{T0_}, {T_DRO - T_DRE}, s{T0_}")
    a(f"v_mov_b32 v20, s{S_GB}", f"ds_write_b16 v20, v{VZ} offset:{T_TAB + 2*IDX_ZERO}")
    a(f"s_mov_b32 s{SDL}, s{T0_}", f"v_mov_b32 v{D3}, v28")
    def stage_read():
        lds_wait(a, FL_PRE, 18, "b8")
        a(f"ds_read2st64_b64 v[28:31], v{D3} offset0:0 offset1:1", f"ds_read2st64_b64 v[32:35], v{D3} offset0:2 offset1:3")
    def stage_unpack():
        for k in range(16):
            src = 28 + k // 2; w = f"WORD_{k & 1}"
            if 108 + k in LFR: a(f"v_cvt_f32_u32_sdwa v{108+k}, v{src} dst_sel:DWORD dst_unused:UNUSED_PAD src0_sel:{w}")
            else: a(f"v_add_u32_sdwa v{108+k}, s{S_GB}, v{src} dst_sel:DWORD dst_unused:UNUSED_PAD src0_sel:DWORD src1_sel:{w}")
        a(f"v_add_u32 v{D3}, s{SDL}, v{D2}")
    stage_read()
    a("s_waitcnt lgkmcnt(0)")
    stage_unpack()
    ex = newlabel("EXP")
    if KOFF: a(f"s_lshl_b32 s{T0_}, s{S_G}, 5", f"s_add_u32 s{T0_}, s{T0_}, s{S_I}", f"s_cmp_ge_u32 s{T0_}, {64 + 24}", "s_cbranch_scc1 KC_RECV")
    a(f"s_mov_b32 s{T0_}, {f32(LOG2E_HI)}", f"s_mov_b32 s{T1_}, {f32(LOG2E_LO)}", f"s_mov_b32 s{T2_}, {f32(INV2PI_HI)}", f"s_mov_b32 s{T3_}, {f32(INV2PI_LO)}")
    a(f"s_waitcnt vmcnt(7)")
    a(f"v_lshlrev_b32 v16, 16, v{VLDT}")
    a(f"v_mul_f32 v17, s{T0_}, v16")
    a(f"v_fma_f32 v19, v16, s{T0_}, -v17", f"v_fmac_f32 v19, s{T1_}, v16")
    a("v_exp_f32 v17, v17")
    a(f"v_mul_f32 v19, {f32(math.log(2.0))}, v19")
    a("v_fmac_f32 v17, v17, v19")
    a("v_cvt_pk_bf16_f32 v16, 0, v17")
    a(f"s_waitcnt vmcnt(5)")
    stamp(a, 2)
    a(f"ds_write_b32 v{VZ}, v{VONE} offset:{FL_PARAM}")
    THH, THL = 68, 70
    for k in range(2): unpack(a, 20 + 2 * k, RAW + k)
    for k in range(2): a(f"v_pk_mul_f32 v[{20+2*k}:{21+2*k}], v[{20+2*k}:{21+2*k}], v[16:17] op_sel_hi:[1,0]")
    a("v_max_f32 v36, v20, v21")
    a(f"v_pk_mul_f32 v[{THH}:{THH+1}], v[22:23], s[{T2_}:{T3_}] op_sel_hi:[1,0]")
    a(f"v_pk_fma_f32 v[{THL}:{THL+1}], v[22:23], s[{T2_}:{T3_}], v[{THH}:{THH+1}] op_sel_hi:[1,0,1] neg_lo:[0,0,1] neg_hi:[0,0,1]")
    a(f"v_pk_fma_f32 v[{THL}:{THL+1}], v[22:23], s[{T2_}:{T3_}], v[{THL}:{THL+1}] op_sel:[0,1,0]")
    T = 90
    def cmul_(dr, di, ar, ai, br, bi, t=T):
        assert di not in (ar, br, bi)
        return [f"v_pk_mul_f32 v[{t}:{t+1}], v[{ai}:{ai+1}], v[{bi}:{bi+1}]",
                f"v_pk_mul_f32 v[{t+2}:{t+3}], v[{ai}:{ai+1}], v[{br}:{br+1}]",
                f"v_pk_fma_f32 v[{di}:{di+1}], v[{ar}:{ar+1}], v[{bi}:{bi+1}], v[{t+2}:{t+3}]",
                f"v_pk_fma_f32 v[{dr}:{dr+1}], v[{ar}:{ar+1}], v[{br}:{br+1}], v[{t}:{t+1}] neg_lo:[0,0,1] neg_hi:[0,0,1]"]
    def cm_(d, x, y, t=T): return cmul_(d, d + 2, x, x + 2, y, y + 2, t)
    def csq_(d, s_, t=T):
        return [f"v_pk_mul_f32 v[{t}:{t+1}], v[{s_+2}:{s_+3}], v[{s_+2}:{s_+3}]",
                f"v_pk_mul_f32 v[{t+2}:{t+3}], v[{s_}:{s_+1}], v[{s_+2}:{s_+3}]",
                f"v_pk_fma_f32 v[{d}:{d+1}], v[{s_}:{s_+1}], v[{s_}:{s_+1}], v[{t}:{t+1}] neg_lo:[0,0,1] neg_hi:[0,0,1]",
                f"v_pk_add_f32 v[{d+2}:{d+3}], v[{t+2}:{t+3}], v[{t+2}:{t+3}]"]
    def cmul(*x): a(*cmul_(*x))
    def csq(*x): a(*csq_(*x))
    CBR, CBI = 32, 34
    sk = newlabel("SK")
    a(f"s_cmp_eq_u32 s{S_ROLE}, 3", f"s_cbranch_scc1 {sk}")
    a("s_waitcnt vmcnt(1)")
    for k in range(2, 6): unpack(a, 20 + 2 * k, RAW + k)
    for k in range(2, 4): a(f"v_pk_mul_f32 v[{20+2*k}:{21+2*k}], v[{20+2*k}:{21+2*k}], v[16:17] op_sel_hi:[1,0]")
    cmul(CBR, CBI, 28, 30, 24, 26)
    a(f"v_max3_f32 v37, abs(v{CBI}), abs(v{CBI+1}), abs(v{CBR})", f"v_max_f32 v37, v37, abs(v{CBR+1})")
    a(f"{sk}:")
    a("s_waitcnt vmcnt(0)")
    a.flush(1)
    a("v_permlane32_swap_b32 v36, v37", "v_max_f32 v36, v36, v37")
    red32(a, "v_max_f32", 36, 38)
    a(f"v_readlane_b32 s{SM}, v36, 0", f"v_readlane_b32 s{SC}, v36, 32")
    a(f"s_add_u32 s{SC}, s{SC}, 0x7fffff", f"s_lshr_b32 s{SC}, s{SC}, 23", f"s_max_u32 s{SC}, s{SC}, 24", f"s_sub_u32 s{SSC}, 269, s{SC}", f"s_lshl_b32 s{SSC}, s{SSC}, 23")
    a(f"v_subrev_f32 v20, s{SM}, v20", f"v_subrev_f32 v21, s{SM}, v21")
    a(f"v_mul_f32 v20, {f32(LOG2E)}, v20", f"v_mul_f32 v21, {f32(LOG2E)}, v21")
    def scale_cb():
        a(f"v_pk_mul_f32 v[{CBR}:{CBR+1}], v[{CBR}:{CBR+1}], s[{SSC}:{SSC+1}] op_sel_hi:[1,0]", f"v_pk_mul_f32 v[{CBI}:{CBI+1}], v[{CBI}:{CBI+1}], s[{SSC}:{SSC+1}] op_sel_hi:[1,0]")
    def anchor(dr, di, l, conj=False):
        lit = {1: "1.0", 2: "2.0"}.get(l, f32(float(l)))
        for e in range(2):
            t = T + 4 * e
            if l != 1: a(f"v_mul_f32 v{t+1}, {lit}, v{THH+e}", f"v_mul_f32 v{t}, {lit}, v{20+e}")
        for e in range(2):
            t = T + 4 * e
            a(f"v_fract_f32 v{t+1}, v{t+1 if l != 1 else THH+e}")
        for e in range(2):
            t = T + 4 * e
            a(f"v_fmac_f32 v{t+1}, {lit}, v{THL+e}")
        for e in range(2):
            t = T + 4 * e
            a(f"v_exp_f32 v{t}, v{t if l != 1 else 20+e}", f"v_cos_f32 v{t+2}, v{t+1}", f"v_sin_f32 v{t+1}, v{t+1}")
        for e in range(2):
            t = T + 4 * e
            a(f"v_mul_f32 v{dr+e}, v{t}, v{t+2}")
            a(f"v_mul_f32 v{di+e}, v{t}, {'-' if conj else ''}v{t+1}")
    em = [0, None]
    def it(cms, row=None, x=None, y=None):
        if em[1]: a(em[1]); em[1] = None
        for k in range(4):
            for c in cms:
                if k < len(c): a(c[k])
        if row is None: return
        t = (98, 76)[em[0] & 1]; em[0] += 1
        for v, tt in ((x, t), (y, t + 2)):
            if v is not None: a(f"v_cvt_pk_f16_f32 v{tt}, v{v}, v{v+2}", f"v_cvt_pk_f16_f32 v{tt+1}, v{v+1}, v{v+3}")
        o = (row & 3) * KG_ROW // 8
        if y is None: em[1] = f"ds_write_b64 v{VEM + row//4}, v[{t}:{t+1}] offset:{8*o}"
        else: em[1] = f"ds_write2_b64 v{VEM + row//4}, v[{t}:{t+1}], v[{t+2}:{t+3}] offset0:{o} offset1:{o + KG_ROW//8}"
    G1, G2, G3 = 40, 44, 48
    VA, VB, VC, VD = 52, 56, 60, 64
    oth = lambda c, p, q: p if c != p else q
    jl = [newlabel("JOB") for _ in range(4)]; jn = newlabel("JOBJ")
    for r in (3, 1, 2): a(f"s_cmp_eq_u32 s{S_ROLE}, {r}", f"s_cbranch_scc1 {jl[r]}")
    anchor(G2, G2 + 2, 128); scale_cb(); anchor(G1, G1 + 2, 1)
    cur = CBR
    for c in range(8):
        nx = oth(cur, VA, VB)
        it([cm_(VC, cur, G2)] + ([cm_(nx, cur, G1, T + 4)] if c < 7 else []), 2 * c, cur, VC); cur = nx
    it([])
    a(f"s_branch {jn}")
    a(f"{jl[1]}:")
    anchor(G2, G2 + 2, 128); scale_cb(); csq(G3, G2); anchor(G1, G1 + 2, 2)
    it([cm_(VA, CBR, G3)]); cur = VA
    it([cm_(VD, VA, G3)])
    for c in range(4):
        nx = oth(cur, VA, VB)
        it([cm_(VC, cur, G2), cm_(nx, cur, G1, T + 4) if c < 3 else csq_(G3, G1, T + 4)], 2 * c, cur, VC); cur = nx
    cur = VD
    for aa in range(4):
        nx = oth(cur, VA, VB)
        it([cm_(VC, cur, G3)] + ([cm_(nx, cur, G2, T + 4)] if aa < 3 else []), 8 + 2 * aa, cur, VC); cur = nx
    it([])
    a(f"s_branch {jn}")
    a(f"{jl[3]}:")
    anchor(G1, G1 + 2, 8, conj=True)
    a(f"v_mov_b32 v{VA}, {f32(32768.0)}", f"v_mov_b32 v{VA+1}, {f32(32768.0)}", f"v_mov_b32 v{VA+2}, 0", f"v_mov_b32 v{VA+3}, 0")
    sc_ = lambda d, x: [f"v_pk_mul_f32 v[{d}:{d+1}], v[{x}:{x+1}], v[{VA}:{VA+1}]", f"v_pk_mul_f32 v[{d+2}:{d+3}], v[{x+2}:{x+3}], v[{VA}:{VA+1}]"]
    it([csq_(G2, G1), sc_(VC, G1)])
    ce, co = VA, VC
    for b in range(8):
        ne, no = oth(ce, VA, VB), oth(co, VC, VD)
        it([] if b == 7 else [sc_(ne, G2) if b == 0 else cm_(ne, ce, G2), cm_(no, co, G2, T + 4)], 2 * b, ce, co); ce, co = ne, no
    it([])
    a(f"ds_write_b8 v15, v{VONE} offset:{FL_G}")
    stamp(a, 3)
    if KOFF: a(f"s_cmp_eq_u32 s{S_G}, 2", "s_cbranch_scc1 KS_G0")
    a("KS_R3:")
    if ENV("S2S", 2):
        a(f"ds_write_b8 v15, v{VONE} offset:{FL_G+4}")
        lds_wait(a, FL_G + 4, 20, "u16", addr=14, sleep=ENV("S2S", 2))
    a(f"s_branch {ex}")
    if KOFF:
        a("KC_SEND:")
        lds_wait(a, FL_NONCE, VNT, "nz", addr=VNA)
        a(f"s_lshl_b32 s{T0_}, s{S_CH}, 12", f"s_lshl_b32 s{T1_}, s{S_ROLE}, 10", f"s_add_u32 s{T0_}, s{T0_}, s{T1_}", f"s_add_u32 s{T0_}, s{T0_}, {hex(WS_KT - 512*4096)}", f"v_add_u32 v24, s{T0_}, v{VLN}")
        a(f"s_mov_b32 s{T1_}, 0xffff", f"v_lshlrev_b32 v25, 16, v{VNT}")
        for r in range(4): a(f"v_cvt_f16_f32 v{20+r}, v{20+r}")
        a(f"s_cmp_lg_u32 s{S_ROLE}, 2", "s_cbranch_scc1 KC_S2")
        a("s_mov_b32 exec_lo, 0", "s_mov_b32 exec_hi, 0xffff0000")
        a(f"v_mov_b32 v20, v{VPR}", f"v_lshrrev_b32 v21, 16, v{VPR}")
        a("s_mov_b64 exec, -1")
        a("KC_S2:")
        for r in range(4): a(f"v_bfi_b32 v{20+r}, s{T1_}, v{20+r}, v{25 if r & 1 else VNT}")
        a(f"global_store_dwordx4 v24, v[20:23], s[{P_WS}:{P_WS+1}] sc1")
        stamp(a, 4)
        a("s_branch KS_G0")
        a("KC_RECV:")
        a(f"s_cmp_eq_u32 s{S_ROLE}, 3", f"s_cbranch_scc1 KS_R3")
        a(f"s_lshl_b32 s{T0_}, s{S_CH}, 12", f"s_lshl_b32 s{T1_}, s{S_ROLE}, 10", f"s_add_u32 s{T0_}, s{T0_}, s{T1_}", f"s_add_u32 s{T0_}, s{T0_}, {hex(WS_KT - 512*4096)}", f"v_add_u32 v24, s{T0_}, v{VLN}")
        lds_wait(a, FL_NONCE, VNT, "nz", addr=VNA, sleep=2)
        a(f"v_lshlrev_b32 v25, 16, v{VNT}")
        stamp(a, 2)
        lds_wait(a, FL_G + {0: 0, 1: 4, 2: 16, 3: 8, 4: 20}[ENV("KTRIG", 3)], 17, "b4", sleep=2)
        lp = newlabel("KP"); l1 = newlabel("KPE")
        if ENV("KTD", 8): a(f"s_sleep {ENV('KTD', 8)}")
        a(f"s_branch {l1}")
        a(f"{lp}:")
        a("s_sleep 2")
        a(f"{l1}:")
        a(f"global_load_dwordx4 v[20:23], v24, s[{P_WS}:{P_WS+1}] {MOD('KMOD')}")
        guard(a)
        a("s_waitcnt vmcnt(0)")
        for r in range(4): a(f"v_xor_b32 v{20+r}, v{25 if r & 1 else VNT}, v{20+r}")
        a("v_or3_b32 v26, v20, v21, v22", "v_or_b32 v26, v26, v23", "v_cmp_lt_u32 vcc, 0xffff, v26", f"s_cbranch_vccnz {lp}")
        stamp(a, 3)
        for r in (0, 2): a(f"v_xor_b32 v{20+r}, v{VNT}, v{20+r}")
        for r in range(4): a(f"ds_write_b16 v{IXR[r]}, v{20+r}")
        a(f"s_cmp_lg_u32 s{S_ROLE}, 2", f"s_cbranch_scc1 {ex}")
        a("v_and_b32 v20, 0xffff, v20", "v_lshl_or_b32 v20, v21, 16, v20", f"v_lshlrev_b32 v21, 16, v{VDSK}")
        a("s_mov_b32 exec_lo, 0", "s_mov_b32 exec_hi, 0x10000")
        a(f"ds_write_b64 v14, v[20:21] offset:{C_PAR}")
        a("s_mov_b64 exec, -1")
        a(f"s_branch {ex}")
    a(f"{jl[2]}:")
    anchor(G2, G2 + 2, 128); scale_cb()
    it([csq_(G1, G2), cm_(VD, CBR, G2, T + 4)]); csq(G3, G1); csq(G3, G3)
    it([cm_(VA, CBR, G3), cm_(VC, VD, G3, T + 4)])
    ce, co = VA, VC
    for r in range(4):
        ne, no = oth(ce, VA, VB), oth(co, VC, VD)
        it([cm_(ne, ce, G1)] + ([cm_(no, co, G1, T + 4)] if r < 3 else []), 2 * r, ce, co); ce, co = ne, no
    it([], 8, ce, None)
    a(f"v_mov_b32 v36, {f32(2048.0*LOG2E)}", f"v_mul_f32 v24, s{SM}, v36", "v_max_f32 v24, 0, v24")
    if EP: a("v_ceil_f32 v24, v24", "v_cvt_i32_f32 v24, v24")
    else: a("v_exp_f32 v24, v24")
    it([])
    a(f"s_sub_u32 s{SIS}, s{SC}, 7", f"s_lshl_b32 s{SIS}, s{SIS}, 23")
    a(f"v_lshlrev_b32 v25, 16, v{VDSK}", f"v_{'ldexp' if EP else 'mul'}_f32 v24, s{SIS}, v24", f"v_mov_b32 v{VPR}, v24")
    a(f"ds_write_b64 v14, v[24:25] offset:{C_PAR}")
    a(f"{jn}:")
    a(f"ds_write_b8 v15, v{VONE} offset:{FL_G}")
    stamp(a, 3); kstamp(a, 2)
    for s in range(8): a(f"ds_read_b128 v[{40+4*s}:{43+4*s}], v{VTL} offset:{64*s}")
    a(f"v_mov_b32 v36, {f32(LOG2E)}", f"v_mul_f32 v36, s{SM}, v36")
    a(f"v_mul_f32 v37, {f32(2048.0)}, v36", "v_max_f32 v37, 0, v37")
    if EP: a("v_ceil_f32 v37, v37")
    a(f"v_add_f32 v37, {f32(23.0)}, v37")
    for r in range(4):
        a(f"v_fma_f32 v{LFR[r]}, v{LFR[r]}, v36, -v37")
    for r in range(4):
        a(f"v_exp_f32 v{LFR[r]}, v{LFR[r]}")
    kstamp(a, 3)
    SP = ENV("SP", 0)
    lsp = newlabel("SP")
    if SP & 2: a(f"{lsp}:", f"ds_read_u8 v17, v14 offset:{FL_G + 3}")
    else: lds_wait(a, FL_G + 3, 17, "u8", addr=14)
    kstamp(a, 4)
    tr = LdsTrack(a); ids = []
    for s in range(8):
        ids.append(tr.issue(f"ds_read_b128 v[{72+4*s}:{75+4*s}], v{VTE} offset:{KG_T[3]+64*s}"))
    if SP & 2:
        guard(a)
        a("s_waitcnt lgkmcnt(8)", "v_cmp_eq_u32 vcc, 0, v17", f"s_cbranch_vccnz {lsp}")
    for s in range(8):
        tr.wait(ids[s])
        c = "0" if s < 2 else f"v[{20+4*(s&1)}:{23+4*(s&1)}]"
        a(f"v_mfma_f32_16x16x32_f16 v[{20+4*(s&1)}:{23+4*(s&1)}], v[{40+4*s}:{43+4*s}], v[{72+4*s}:{75+4*s}], {c}")
    for r in range(4): a(f"v_add_f32 v{20+r}, v{20+r}, v{24+r}")
    for r in range(4): a(f"v_mul_f32 v{20+r}, v{20+r}, v{LFR[r]}")
    kstamp(a, 5)
    if KOFF: a(f"s_cmp_eq_u32 s{S_G}, 2", "s_cbranch_scc1 KC_SEND")
    for r in range(4):
        a(f"v_cvt_f16_f32 v{20+r}, v{20+r}")
        a(f"ds_write_b16 v{IXR[r]}, v{20+r}")
    a(f"{ex}:")
    a(f"ds_write_b8 v15, v{VONE} offset:{FL_G+4}")
    a("v_mov_b32 v28, 0", "v_mov_b32 v29, 0", "v_mov_b32 v30, 0", "v_mov_b32 v31, 0", f"v_mov_b32 v32, s{S_GB}")
    a("s_waitcnt vmcnt(0)")
    kstamp(a, 6)
    lsp = newlabel("SP")
    if SP & 1: a(f"{lsp}:", f"ds_read_b32 v17, v14 offset:{FL_G + 4}")
    else: lds_wait(a, FL_G + 4, 20, "b4", addr=14)
    stamp(a, 4); kstamp(a, 7)
    for e in range(3): a(f"ds_read_u16 v{20+e}, v{I1+e}")
    for e in range(4): a(f"ds_read_u16 v{23+e}, v{I2+e}")
    if SP & 1:
        guard(a)
        a("s_waitcnt lgkmcnt(7)", f"v_cmp_ne_u32 vcc, s{S_ONES}, v17", f"s_cbranch_vccnz {lsp}")
    a("s_mov_b64 exec, 1")
    a(f"ds_write_b128 v32, v[28:31] offset:{R_WS5}", f"ds_write_b128 v32, v[28:31] offset:{R_WS9}", f"ds_write_b128 v32, v[28:31] offset:{R_WS3 + 192*16}")
    a("s_mov_b64 exec, -1")
    a("s_waitcnt lgkmcnt(7)")
    a("v_lshl_or_b32 v28, v21, 16, v20", "v_lshl_or_b32 v29, v22, 16, v21")
    a(f"ds_write_b32 v{D1}, v28 offset:{T_DRE}", f"ds_write_b32 v{D1}, v29 offset:{T_DRO}")
    if DB: a(f"ds_write_b32 v{D1}, v28 offset:{T_DRE - DDL}", f"ds_write_b32 v{D1}, v29 offset:{T_DRO - DDL}")
    a(f"s_waitcnt lgkmcnt({7 if DB else 5})")
    a("v_lshl_or_b32 v30, v24, 16, v23", "v_lshl_or_b32 v31, v26, 16, v25")
    a(f"ds_write_b32 v{D2}, v30", f"ds_write_b32 v{D3}, v31")
    if DB: a(f"ds_write_b32 v{D2}, v30 offset:{DDL}", f"ds_write_b32 v{D3}, v31 offset:{DDL}")
    a(f"ds_write_b8 v15, v{VONE} offset:{FL_G+8}")
    kstamp(a, 8)
    CS = ENV("CS", 2)
    if CS:
        assert DB and SWZ and EP != 2
        a(f"v_lshlrev_b32 v{VDA2}, 3, v3", f"v_sub_u32 v{VDA2}, v{VB_}, v{VDA2}")
        a(f"v_lshrrev_b32 v19, 2, v2", f"v_lshl_add_u32 v19, v19, 2, v3", f"v_and_b32 v18, 3, v2", f"v_mul_u32_u24 v19, s{CSH}, v19", f"v_xor_b32 v19, s{CFL}, v19", "v_lshl_add_u32 v19, v18, 4, v19")
        a(f"v_xor_b32 v{VLN}, s{CXR}, v{VLN}")
    lds_wait(a, FL_G + 8, 20, "b4", addr=14)
    stamp(a, 5)
    PR, FT0, FT1, ACCL, ACCH, ZQ = 16, 18, 19, 20, 24, 28
    VZA, VUA = VDA, VDA2
    FC = ENV("FC", 0); FL_FC = FL_S6 - 16 + 4
    LA = ENV("CLA", 6); RSV = ENV("CRSV", 5); NF = ENV("CNF", 2)
    jl = [newlabel("CV") for _ in range(4)]; zend = newlabel("CVE")
    slow = []; slow2 = []; slow3 = []
    a(f"ds_read_b64 v[{PR}:{PR+1}], v14 offset:{C_PAR}")
    for r in range(1, 4): a(f"s_cmp_eq_u32 s{S_ROLE}, {r}", f"s_cbranch_scc1 {jl[r]}")
    for m in range(4):
        if m: a(f"{jl[m]}:")
        lo, hi = 2 * m, 2 * m + 1
        acc = {lo: ACCL, hi: ACCH}
        ops = []
        if m >= 2:
            for j in (lo, hi): ops.append((j, ("D", 32), ("U", 8 * j - 32)))
        for p in range(max(8 * lo - 16, -7), 8 * hi + 1):
            for j in (lo, hi):
                ks = 8 * j - p
                if 0 <= ks <= 16: ops.append((j, ("D", ks), ("U", p)))
        ncomb0 = len(ops)
        for j in (lo, hi):
            for kind in (3, 5):
                for b in range(6):
                    if 2 <= j - b <= 4: ops.append((j, ("W", kind, b), ("G", kind, j - b)))
            for kind in (7, 9):
                for b in range(2):
                    if j - 2 * b - 4 >= 0 and not FC: ops.append((j, ("W", kind, b), ("G", kind, j - 2 * b - 4)))
        if FC and m == 0:
            for (b, kind) in ((1, 7), (1, 9), (0, 7), (0, 9)):
                for j in (4, 6, 5, 7):
                    if j - 2 * b - 4 >= 0: ops.append((j, ("W", kind, b), ("G", kind, j - 2 * b - 4)))
        nops = len(ops)
        first, last = {}, {}
        for k, (j, A, B) in enumerate(ops):
            for key in (A, B):
                first.setdefault(key, k); last[key] = k
        lastlo = max(k for k, o in enumerate(ops) if o[0] == lo)
        pool = list(range(32, 128, 4))
        reg, lid = {}, {}
        def load(tr, key):
            rg = pool.pop(0); reg[key] = rg
            if (XP & 8 and key[0] == "G") or (XP & 16 and key[0] == "W") or (XP & 32 and key[0] == "U"):
                lid[key] = -100; return
            if key[0] == "D":
                ksv = -2 if key[1] == 32 else key[1]
                o = (16 - ksv) * 16
                if DB:
                    tr.issue(f"ds_read_b64 v[{rg}:{rg+1}], v{VDA} offset:{4*o}")
                    lid[key] = tr.issue(f"ds_read_b64 v[{rg+2}:{rg+3}], v{VDA} offset:{4*o+8}")
                    return
                ad, o = (VDA, o) if o + 3 <= 255 else (VDA2, o - 160)
                tr.issue(f"ds_read2_b32 v[{rg}:{rg+1}], v{ad} offset0:{o} offset1:{o+1}")
                lid[key] = tr.issue(f"ds_read2_b32 v[{rg+2}:{rg+3}], v{ad} offset0:{o+2} offset1:{o+3}")
            elif key[0] == "G":
                _, kind, ix = key
                if kind in (3, 5): o = (4 - ix) * 16 + (64 if kind == 5 else 0); ad = VG8
                else: o = (3 - ix) * 8 + (96 if kind == 9 else 0); ad = VG16
                if DB:
                    tr.issue(f"ds_read_b64 v[{rg}:{rg+1}], v{ad} offset:{4*o}")
                    lid[key] = tr.issue(f"ds_read_b64 v[{rg+2}:{rg+3}], v{ad} offset:{4*o+8}")
                    return
                tr.issue(f"ds_read2_b32 v[{rg}:{rg+1}], v{ad} offset0:{o} offset1:{o+1}")
                lid[key] = tr.issue(f"ds_read2_b32 v[{rg+2}:{rg+3}], v{ad} offset0:{o+2} offset1:{o+3}")
            elif key[0] == "U":
                lid[key] = tr.issue(f"ds_read_b128 v[{rg}:{rg+3}], v{VB_} offset:{64*(key[1]+7)}")
            else:
                _, kind, b = key
                if kind in (3, 5): o = (R_WS3 if kind == 3 else R_WS5) + 512 * b; ad, st = VT8, 64
                else: o = (R_WS7 if kind == 7 else R_WS9) + 1024 * b; ad, st = VT16, 128
                tr.issue(f"ds_read_b64_tr_b16 v[{rg}:{rg+1}], v{ad} offset:{o}")
                lid[key] = tr.issue(f"ds_read_b64_tr_b16 v[{rg+2}:{rg+3}], v{ad} offset:{o+st}")
        keys = sorted(first, key=lambda k_: first[k_])
        tr = LdsTrack(a)
        for key in keys:
            if key[0] == "D": load(tr, key)
        for key in keys:
            if key[0] == "G" and len(pool) > RSV: load(tr, key)
        pend = [k_ for k_ in keys if k_ not in reg]
        if not CS:
            a(f"v_lshlrev_b32 v{FT0}, 3, v3", f"v_sub_u32 v{FT0}, v{VB_}, v{FT0}")
            a(f"v_lshrrev_b32 v{FT1}, 2, v2", f"v_lshl_add_u32 v{FT1}, v{FT1}, 2, v3", f"v_and_b32 v{ZQ}, 3, v2", f"v_lshlrev_b32 v{ZQ}, 4, v{ZQ}")
            if SWZ: a(f"v_mul_u32_u24 v{FT1}, s{CSH}, v{FT1}", f"v_xor_b32 v{FT1}, s{CFL}, v{FT1}")
            else: a(f"v_lshlrev_b32 v{FT1}, s{CSH}, v{FT1}")
            a("s_waitcnt lgkmcnt(0)")
            a(f"v_mov_b32 v{VUA}, v{FT0}", f"v_add_u32 v{VZA}, v{FT1}, v{ZQ}")
            a(f"v_xor_b32 v{VLN}, s{CXR}, v{VLN}")
            if EP == 2: a(f"v_or_b32 v{PR}, 0x3f80, v{PR}")
            lds_wait(a, FL_UF, FT0, "b4")
        else:
            a(f"ds_read_b32 v{FT0}, v{VZ} offset:{FL_UF}")
            sl = newlabel("US"); bk = newlabel("UB")
            if CS == 1:
                a("s_waitcnt lgkmcnt(0)", f"v_cmp_ne_u32 vcc, s{S_ONES}, v{FT0}", f"s_cbranch_vccnz {sl}", f"{bk}:")
                slow3.append((sl, bk, []))
        if CS != 2: a(f"s_setprio {eval(os.environ.get('CPRIO', '[1,1,1,1]'))[m]}")
        stamp(a, 6); cstamp(a, 1)
        if XP & 4: a(f"v_mov_b32 v{FT0}, 0", f"s_cmp_lg_u32 s{S_G}, 0", f"s_cbranch_scc1 {zend}")
        for key in lid: lid[key] = -100
        tr = LdsTrack(a)
        ud = {}
        fill = []
        fill.append(("lds", f"ds_read_b64 v[{ZQ}:{ZQ+1}], v{VUA} offset:{480 + 512*lo}", 2))
        fill.append(("ldsU", f"ds_read_b64 v[{ZQ+2}:{ZQ+3}], v{VUA} offset:{480 + 512*hi}", 2))
        for ti, j in enumerate((lo, hi)):
            fill.append(("alloc", j, 5))
            if ti == 0: fill.append(("waitU", None, 5))
            for e in range(4):
                sel = "op_sel:[1,0,0] " if e & 1 else ""
                fill.append(("f", (lambda j=j, e=e, ti=ti, sel=sel: f"v_fma_mix_f32 v{ud[j]+e}, v{ZQ+2*ti+e//2}, v{PR+1}, 0 {sel}op_sel_hi:[1,0,0]"), 5))
            for e in range(4 if EP < 2 else 0):
                fill.append(("f", (lambda j=j, e=e: f"v_cvt_pk_bf16_f32 v{ud[j]+e}, 0, v{ud[j]+e}"), 5))
        def epi(j, ti):
            y = acc[j]; z = ZQ + 2 * ti; out = []
            if FC and m >= 2:
                for p in (0, 2): out.append(lambda p=p: f"v_pk_add_f32 v[{y+p}:{y+p+1}], v[{y+p}:{y+p+1}], v[{ud[8+ti]+p}:{ud[8+ti]+p+1}]")
            if EP == 2:
                for p in range(4): out.append(lambda p=p: f"v_cvt_pk_bf16_f32 v{y+p}, v{ud[j]+p}, v{y+p}")
                for p in range(4): out.append(lambda p=p: f"v_dot2_f32_bf16 v{y+p}, v{y+p}, v{PR}, 0")
            elif EP == 1:
                for p in range(4): out.append(lambda p=p: f"v_cvt_pk_bf16_f32 v{y+p}, 0, v{y+p}")
                for p in range(4): out.append(lambda p=p: f"v_fma_f32 v{y+p}, v{y+p}, v{PR}, v{ud[j]+p}")
            else:
                for p in range(4): out.append(lambda p=p: f"v_mul_f32 v{y+p}, v{y+p}, v{PR}")
                for p in range(4): out.append(lambda p=p: f"v_cvt_pk_bf16_f32 v{y+p}, 0, v{y+p}")
                for p in range(4): out.append(lambda p=p: f"v_add_f32 v{y+p}, v{y+p}, v{ud[j]+p}")
            for p in range(2): out.append(lambda p=p: f"v_cvt_pk_bf16_f32 v{z+p}, v{y+2*p}, v{y+2*p+1}")
            for p in range(2): out.append(lambda p=p: f"v_min_u32 v{z+p}, -2, v{z+p}")
            return out
        prd = lambda: [f"ds_read_u8 v{FT0}, v14 offset:{FL_FC}"] + [f"ds_read_b128 v[{ud[8+t]}:{ud[8+t]+3}], v{FT1} offset:{R_RED + 1024*(lo+t)}" for t in range(2)]
        if FC and m != 1: fill.append(("f", lambda: f"v_add_u32 v{FT1}, s{S_GB}, v{VLN}", 5))
        if FC and m >= 2:
            e = lastlo - ENV("FCE", 1)
            fill += [("alloc", 8, e), ("alloc", 9, e), ("prd", None, e), ("pchk", None, lastlo + ENV("FCC", 2))]
        for f in epi(lo, 0): fill.append(("f", f, lastlo + 2))
        if FC and m == 0:
            for f in epi(hi, 1): fill.append(("f", f, ncomb0 + 1))
            for i, j in enumerate((4, 6, 5, 7)): fill.append(("pwr", j, nops - 2 + i))
            fill.append(("lds", f"ds_write_b8 v14, v{VONE} offset:{FL_FC}", nops))
        fill.append(("lds", f"ds_read_u8 v{FT0}, v14 offset:{FL_S6 - 16 + m}", nops - (0 if ZX else 4)))
        fill.append(("lds", f"ds_read_b128 v[{ACCL}:{ACCL+3}], v{VLN} offset:{G_BASE + R_RED + 1024*m}", nops - (0 if ZX else 4)))
        uid = [None]
        def do_fill(n, k):
            while n > 0 and fill:
                kind, t, e = fill[0]
                if e > k: return
                if kind == "alloc":
                    if len(pool) < 2: return
                    ud[t] = pool.pop(); fill.pop(0); continue
                fill.pop(0)
                if kind == "f":
                    if XP & 2 and "v_min" not in t(): continue
                    a(t())
                elif kind == "lds": tr.issue(t)
                elif kind == "ldsU": uid[0] = tr.issue(t)
                elif kind == "waitU": tr.wait(uid[0]); continue
                elif kind == "pwr": tr.issue(f"ds_write_b128 v{FT1}, v[{acc[t]}:{acc[t]+3}] offset:{R_RED + 1024*t}")
                elif kind == "prd":
                    for x in prd(): uid[0] = tr.issue(x)
                elif kind == "pchk":
                    tr.wait(uid[0])
                    sl = newlabel("PS"); bk = newlabel("PB")
                    a(f"v_cmp_ne_u32 vcc, 1, v{FT0}", f"s_cbranch_vccnz {sl}", f"{bk}:")
                    slow2.append((sl, bk, prd()))
                n -= 1
        kW = ncomb0 - LA if nops > ncomb0 else None
        wok = [False]
        def issue_loads(k, nmax):
            while pend and pool and nmax > 0:
                key = pend[0]
                if first[key] - k > (LA if key[0] != "G" else LA + 4): return
                if key[0] == "W" and not wok[0]:
                    alt = [x for x in pend if x[0] != "W" and first[x] - k <= LA + 2]
                    if not alt: return
                    key = alt[0]
                pend.remove(key); load(tr, key); nmax -= 1
        if CS: fill.insert(0, ("f", lambda: f"v_mov_b32 v{VZA}, v{FT1}", 0))
        n0 = len(a.lines)
        issue_loads(0, RSV)
        if CS == 2:
            rd = [x for x in a.lines[n0:]]
            a(f"s_waitcnt lgkmcnt({len(rd)})", f"v_cmp_ne_u32 vcc, s{S_ONES}, v{FT0}", f"s_cbranch_vccnz {sl}", f"{bk}:", f"s_setprio {eval(os.environ.get('CPRIO', '[1,1,1,1]'))[m]}")
            if os.environ.get("CGP"):
                g_, pr_ = eval(os.environ["CGP"]); lg = newlabel("CG")
                a(f"s_cmp_lg_u32 s{S_G}, {g_}", f"s_cbranch_scc1 {lg}", f"s_setprio {pr_[m]}", f"{lg}:")
            slow3.append((sl, bk, rd))
        started = set()
        for k, (j, A, B) in enumerate(ops):
            assert A in reg and B in reg, (m, k, A, B)
            if FC and m == 0 and k == ncomb0 - LA - 1:
                for jj in (4, 5, 6, 7): acc[jj] = pool.pop()
            tr.wait(max(lid[A], lid[B]))
            c = f"v[{acc[j]}:{acc[j]+3}]" if j in started else "0"
            started.add(j)
            a(f"v_mfma_f32_16x16x32_f16 v[{acc[j]}:{acc[j]+3}], v[{reg[A]}:{reg[A]+3}], v[{reg[B]}:{reg[B]+3}], {c}")
            for key in (A, B):
                if last[key] == k: pool.append(reg[key])
            if kW is not None and k == kW - 3:
                wfid = tr.issue(f"ds_read_b32 v{FT0}, v14 offset:{FL_G + 12}")
            if k == kW:
                tr.wait(wfid)
                sl = newlabel("WS"); bk = newlabel("WB")
                a(f"v_cmp_ne_u32 vcc, s{S_ONES}, v{FT0}", f"s_cbranch_vccnz {sl}")
                a(f"{bk}:")
                slow.append((sl, bk))
                wok[0] = True
                cstamp(a, 3)
            issue_loads(k + 1, 2)
            do_fill(NF, k)
            if k == ncomb0 // 2: cstamp(a, 2)
            if k == ncomb0 - 1: cstamp(a, 4)
        cstamp(a, 5)
        do_fill(1000, 1000)
        assert not fill and not pend
        stamp(a, 7)
        if not (FC and m == 0):
            for f in epi(hi, 1): a(f())
        if m < 3: a(f"s_branch {zend}")
    a(f"{zend}:")
    cstamp(a, 6)
    gA = newlabel("ZA"); gC = newlabel("ZC"); zs = newlabel("ZS"); zb = newlabel("ZB"); zc = newlabel("ZCB"); zd = newlabel("ZD")
    a("s_waitcnt lgkmcnt(0)")
    a(f"s_cmp_lg_u32 s{S_G}, 1", f"s_cbranch_scc1 {gA}")
    a(f"v_cmp_ne_u32 vcc, 1, v{FT0}", f"s_cbranch_vccnz {zs}")
    a(f"{zb}:")
    a(f"s_mov_b64 exec, s[{CM}:{CM+1}]")
    for k in range(4): a(f"v_swap_b32 v{ZQ+k}, v{ACCL+k}")
    a("s_mov_b64 exec, -1")
    cstamp(a, 8)
    a(f"buffer_store_dwordx4 v[{ZQ}:{ZQ+3}], v{VZA}, s[{R0}:{R0+3}], s{CZ1} offen sc1")
    a(f"buffer_store_dwordx4 v[{ACCL}:{ACCL+3}], v{VZA}, s[{R0}:{R0+3}], s{CZ0} offen sc1")
    if ENV("ZG2", 0) >= 2 or ENV("ZT", 0) or ZM or BT == 4 or ENV("GDI", 0): a(f"ds_write_b8 v15, v{VONE} offset:{FL_ZISS - 16}")
    if ZM:
        a(f"s_cmp_lg_u32 s{S_ROLE}, 3", f"s_cbranch_scc1 {zd}")
        a(f"ds_read_b32 v32, v{VZ} offset:{FL_NONCE}", f"s_lshl_b32 s{T0_}, s{S_B2}, 7", f"s_add_u32 s{T0_}, s{T0_}, {hex(WS_MARK)}", f"v_mov_b32 v33, s{T0_}")
        a("s_mov_b64 exec, 1", "s_waitcnt lgkmcnt(0)")
        a(f"global_store_dword v33, v32, s[{P_WS}:{P_WS+1}] sc1")
        a("s_mov_b64 exec, -1")
    a(f"s_branch {zd}")
    for (sl, bk) in slow:
        a(f"{sl}:")
        lds_wait(a, FL_G + 12, FT0, "b4", addr=14)
        a(f"s_branch {bk}")
    for (sl, bk, rd) in slow3:
        a(f"{sl}:")
        if ENV("UFP", 0) != 2: a(f"s_setprio {ENV('UFP', 0)}")
        if ENV("UFN", 1): lds_wait(a, FL_UF, FT0, "nz", sleep=ENV("UFN", 1))
        lds_wait(a, FL_UF, FT0, "b4", sleep=ENV("UFS", 0))
        for x in rd: a(x)
        a(f"s_branch {bk}")
    for (sl, bk, rd) in slow2:
        a(f"{sl}:")
        a(*rd)
        guard(a)
        a("s_waitcnt lgkmcnt(0)", f"v_cmp_ne_u32 vcc, 1, v{FT0}", f"s_cbranch_vccnz {sl}", f"s_branch {bk}")
    a(f"{zs}:")
    a(f"v_mov_b32 v{FT1}, s{S_ROLE}")
    l = newlabel("ZW")
    if ZX: a(f"v_lshl_add_u32 v{PR}, v{FT1}, 10, v{VLN}")
    a(f"{l}:")
    a(f"ds_read_u8 v{FT0}, v{FT1} offset:{FL_S6}")
    if ZX: a(f"ds_read_b128 v[{ACCL}:{ACCL+3}], v{PR} offset:{G_BASE + R_RED}")
    guard(a)
    a("s_waitcnt lgkmcnt(0)")
    a(f"v_cmp_ne_u32 vcc, 1, v{FT0}", f"s_cbranch_vccnz {l}")
    if not ZX:
        a(f"v_lshl_add_u32 v{FT1}, v{FT1}, 10, v{VLN}")
        a(f"ds_read_b128 v[{ACCL}:{ACCL+3}], v{FT1} offset:{G_BASE + R_RED}")
        a("s_waitcnt lgkmcnt(0)")
    a(f"s_branch {zb}")
    a(f"{gA}:")
    if FLD:
        a(f"v_cmp_eq_u32 vcc, 1, v{FT0}", "s_cbranch_vccnz KS_CLK")
        lds_wait(a, FL_S6 - 16, FT0, "b4")
        a("KS_CLK:")
    a(f"s_cmp_lg_u32 s{S_G}, 0", f"s_cbranch_scc1 {gC}")
    a(f"v_mov_b32 v{FT1}, s{S_ROLE}", f"v_lshl_add_u32 v{FT0}, v{FT1}, 10, v{VLN}")
    a(f"ds_write_b128 v{FT0}, v[{ZQ}:{ZQ+3}] offset:{G_BASE + R_RED}")
    a(f"ds_write_b8 v{FT1}, v{VONE} offset:{FL_S6}")
    cstamp(a, 8)
    a(f"s_branch {zd}")
    a(f"{gC}:")
    cstamp(a, 8)
    a(f"buffer_store_dwordx4 v[{ZQ}:{ZQ+3}], v{VZA}, s[{R0}:{R0+3}], s{CZ0} offen sc1")
    a(f"{zd}:")
    stamp(a, 8)
    if DBG:
        a(f"s_mul_i32 s{T0_}, s{S_ROLE}, 1280", f"s_add_u32 s{T1_}, s{T0_}, s{S_GB}", f"v_lshl_add_u32 v20, v1, 2, s{T1_}")
        a(f"s_mul_i32 s{T1_}, s{S_CH}, 5376", f"s_add_u32 s{T1_}, s{T1_}, s{T0_}", f"s_add_u32 s{T1_}, s{T1_}, {hex(WS_DBG)}", f"v_lshl_add_u32 v21, v1, 2, s{T1_}")
        for k in range(5 + 1):
            a(f"ds_read_b32 v22, v20 offset:{R2 + 256*k}", "s_waitcnt lgkmcnt(0)", f"global_store_dword v21, v22, s[{P_WS}:{P_WS+1}] offset:{256*k}")
        a(f"ds_read_b32 v22, v14 offset:{C_PAR}", f"s_lshl_b32 s{T1_}, s{S_CH}, 2", f"s_add_u32 s{T1_}, s{T1_}, {hex(WS_DBG + 0x300000)}", f"v_mov_b32 v21, s{T1_}")
        a("s_waitcnt lgkmcnt(0)", f"global_store_dword v21, v22, s[{P_WS}:{P_WS+1}]")
    a(f"s_lshl_b32 s{T0_}, s{S_G}, 2", f"s_add_u32 s{T0_}, s{T0_}, s{S_ROLE}", f"v_mov_b32 v8, s{T0_}")
    a("s_waitcnt vmcnt(0)")
    a(f"ds_write_b8 v8, v{VONE} offset:{FL_ZDONE}")


def gen_wjobs(a):
    WA, WD = 10, 11
    end = newlabel("WJE"); w1 = newlabel("WJ1"); w2 = newlabel("WJ2")
    a(f"s_cmp_eq_u32 s{S_WAVE}, 2", f"s_cbranch_scc1 {w2}")
    if XP & 1: a(f"s_branch {w2}")
    a(f"s_add_u32 s{T0_}, s{S_WAVE}, 1", f"s_lshr_b32 s{T0_}, s{T0_}, 2", f"s_cmp_eq_u32 s{S_WAVE}, 1", f"s_cselect_b32 s{T0_}, 2, s{T0_}", f"s_lshl_b32 s{T0_}, s{T0_}, 10")
    a(f"v_lshl_add_u32 v{WA}, v1, 4, s{T0_}", f"v_add_u32 v{WD}, {G_BASE}, v{WA}")
    lds_wait(a, FL_UF, 12, "b4")
    a(f"s_setprio {ENV('WPRIO', 3)}")
    for g in range(3):
        E = 20 + 12 * g; o = C_U + U_SIZE * g + 2 * (240 - 16)
        a(f"ds_read_b128 v[{E}:{E+3}], v{WA} offset:{o}", f"ds_read_b128 v[{E+4}:{E+7}], v{WA} offset:{o+16}", f"ds_read_b64 v[{E+8}:{E+9}], v{WA} offset:{o+32}")
    a(f"s_cmp_eq_u32 s{S_WAVE}, 1", f"s_cbranch_scc1 {w1}")
    for full in (1, 0):
        if not full: a(f"{w1}:")
        for g in range(3):
            if g == 2: a(f"s_cmp_lt_u32 s{S_I}, 24", f"s_cbranch_scc1 {end}")
            E = lambda i: 20 + 12 * g + i
            O = lambda i: 56 + i
            T = lambda i: 65 + i
            Q = lambda i: 72 + i
            X = lambda i: 79 + i
            Y = lambda i: 85 + i
            W7, W9 = 92, 96
            a(f"ds_read_b32 v12, v{VZ} offset:{FL_G + 16*g + 4}")
            if g == 0: a("s_waitcnt lgkmcnt(7)")
            n = 8 if full else 7
            for i in range(1, n + 1): a(f"v_alignbit_b32 v{O(i)}, v{E(i+1)}, v{E(i)}, 16")
            for i in range(1, n + 1): a(f"v_pk_add_f16 v{T(i)}, v{O(i)}, v{E(i+1)}")
            for i in range(1, 5): a(f"v_pk_add_f16 v{X(i)}, v{T(i)}, v{O(i+1)}")
            for i in (range(2, 8) if full else range(3, 7)): a(f"v_pk_add_f16 v{Q(i)}, v{T(i)}, v{T(i+1)}")
            ok = newlabel("WJK")
            a("s_waitcnt lgkmcnt(0)")
            a(f"v_cmp_eq_u32 vcc, s{S_ONES}, v12", f"s_cbranch_vccnz {ok}")
            lds_wait(a, FL_G + 16 * g + 4, 12, "b4", sleep=1)
            a(f"{ok}:")
            off = G_SIZE * (g & 1)
            if g == 2: a(f"v_add_u32 v{WD}, {2*G_SIZE}, v{WD}")
            a(f"ds_write_b128 v{WD}, v[{X(1)}:{X(4)}] offset:{off + R_WS3}")
            for i in (range(2, 7) if full else range(3, 7)): a(f"v_pk_add_f16 v{Y(i)}, v{E(i)}, v{Q(i)}")
            a(f"ds_write_b128 v{WD}, v[{Y(3)}:{Y(6)}] offset:{off + R_WS5 + 16}")
            if full:
                for i in range(5, 8): a(f"v_pk_add_f16 v{X(i)}, v{T(i)}, v{O(i+1)}")
                for k in range(4): a(f"v_pk_add_f16 v{W7+k}, v{Q(2+k)}, v{X(4+k)}")
                a(f"ds_write_b128 v{WD}, v[{W7}:{W7+3}] offset:{off + R_WS7}")
                for k in range(4): a(f"v_pk_add_f16 v{W9+k}, v{Y(2+k)}, v{Q(4+k)}")
                a(f"ds_write_b128 v{WD}, v[{W9}:{W9+3}] offset:{off + R_WS9 + 16}")
            a(f"ds_write_b8 v116, v{VONE} offset:{FL_G + 16*g + 12}")
        a(f"s_branch {end}")
    a(f"{w2}:")
    for g in range(3): a(f"ds_write_b8 v116, v{VONE} offset:{FL_G + 16*g + 12}")
    def flag_check(mid=None):
        a("s_setprio 0")
        for d in range(4): a(f"v_mov_b32_dpp v{32+d}, v58 quad_perm:[{d},{d},{d},{d}] {DPPM} ; nodst")
        a("v_lshlrev_b32 v12, 6, v1", f"v_add_u32 v12, {hex(WS_FLAG1 + 2048)}, v12", f"v_mov_b32 v13, s{S_ONES}")
        if ENV("FLDD", 0): a(f"s_sleep {ENV('FLDD', 0)}")
        lp = newlabel("FP"); l1 = newlabel("FPE")
        ld = (f"global_load_dwordx4 v[20:23], v12, s[{P_WS}:{P_WS+1}] offset:-2048 sc1", f"global_load_dwordx4 v[24:27], v12, s[{P_WS}:{P_WS+1}] offset:2048 sc1")
        if mid:
            a(*ld)
            a(f"s_waitcnt vmcnt({mid()})")
        a(f"s_branch {l1}", f"{lp}:", "s_sleep 2")
        if not mid: a(f"{l1}:")
        a(*ld)
        guard(a)
        a("s_waitcnt vmcnt(0)")
        if mid: a(f"{l1}:")
        for k in range(8): a(f"v_xor_b32 v{20+k}, v{32+(k&3)}, v{20+k}")
        a("v_or3_b32 v20, v20, v21, v22", "v_or3_b32 v23, v23, v24, v25", "v_or3_b32 v20, v20, v26, v27", "v_or_b32 v20, v20, v23", "v_cmp_ne_u32 vcc, 0, v20", f"s_cbranch_vccnz {lp}")
        a(f"ds_write2_b32 v{VZ}, v13, v13 offset0:{(FL_S6 - 16)//4} offset1:{(FL_S6 + 16)//4}")
    def pf2_mid():
        W2 = ENV("PF2W", 14)
        a(f"s_sub_u32 s{T2_}, s{S_FI}, {ENV('PF2B', 18)}", f"s_and_b32 s{T2_}, s{T2_}, 31")
        pf_lane(a, 100, 101)
        pf_gu_setup(a, T2_)
        a(f"s_cmp_ge_u32 s{T2_}, {W2}", f"s_cselect_b32 s{R2_+2}, 0, s{R2_+2}")
        if ENV("PF2U", 1): lds_wait(a, FL_UF, 102, "b4", sleep=1)
        k = 0
        while PF1 + k * W2 < PF2:
            if PF1 + (k + 1) * W2 > PF2: a(f"s_cmp_ge_u32 s{T2_}, {PF2 - PF1 - k*W2}", f"s_cselect_b32 s{R2_+2}, 0, s{R2_+2}")
            a(f"s_add_u32 s{T4_}, s{T3_}, {(PF1 + k*W2)//2*7*9216}")
            pf_ld(a, 102, 100, R2_)
            k += 1
        return 2 * k
    if FLD == 2:
        flag_check(pf2_mid)
        a(f"s_branch {end}")
    if FLD == 1: flag_check()
    if PB and 1 <= PCT <= 3:
        a(f"s_cmp_ge_u32 s{S_FI}, 18", "s_cbranch_scc1 KS_PCL")
        srd(a, R2_, P_WS, PART_BYTES, WS_PART)
        a(f"s_mul_i32 s{T2_}, s{S_BLK}, {PROW}", "v_lshlrev_b32 v100, 4, v1")
        for d in range(4): a(f"v_mov_b32 v{104+d}, -1")
        if PCT == 2: lds_wait(a, FL_UF, 12, "b4", sleep=1)
        if PCT == 3: lds_wait(a, FL_G + 16 + 12, 12, "b4", sleep=1)
        if ENV("PCD", 0): a(f"s_sleep {ENV('PCD', 0)}")
        for k in range(9):
            if k in (4, 8): a(f"s_add_u32 s{T2_}, s{T2_}, 4096")
            a(f"buffer_store_dwordx4 v[104:107], v100, s[{R2_}:{R2_+3}], s{T2_} offen offset:{1024*(k&3)} sc1")
        a(f"s_branch {end}")
        a("KS_PCL:")
    if PF2 > PF1 or PFD:
        W2 = ENV("PF2W", 14)
        a(f"s_sub_u32 s{T2_}, s{S_FI}, {ENV('PF2B', 18)}", f"s_and_b32 s{T2_}, s{T2_}, 31", f"s_cmp_ge_u32 s{T2_}, {W2}", f"s_cbranch_scc1 {end}")
        pf_lane(a, 100, 101)
        lds_wait(a, FL_UF, 12, "b4", sleep=1)
        if PF2 > PF1:
            pf_gu(a, 100, T2_, W2, PF1, PF2, 102, "KS_PF2D")
            a("KS_PF2D:")
        if PFD:
            a(f"s_sub_u32 s{T2_}, {W2-1}, s{T2_}")
            pf_down(a, T2_, W2, 0, PFD, 100, 120, end)
    a(f"{end}:")

def gen(a):
    label = NAME + "_kernel"
    a(f".globl {label}", ".p2align 8", f".type {label},@function", f"{label}:")
    a("s_cmp_ge_u32 s2, 256", "s_cbranch_scc1 KS_END")
    stamp_begin(a)
    a("s_load_dwordx16 s[4:19], s[0:1], 0", "s_load_dwordx16 s[20:35], s[0:1], 64", f"s_load_dwordx2 s[{P_WS}:{P_WS+1}], s[0:1], 128")
    a(f"v_readfirstlane_b32 s{S_WAVE}, v0", f"s_lshr_b32 s{S_WAVE}, s{S_WAVE}, 6")
    a(f"s_and_b32 s{S_XC}, s2, 7", f"s_lshr_b32 s{S_I}, s2, 3")
    if ENV("CPF", 1):
        a(f"s_cmp_lg_u32 s{S_WAVE}, {ENV('CPFW', 0)}", "s_cbranch_scc1 KS_CPE")
        cm = ENV("CPFM", 0)
        if cm == 1: a(f"s_sub_u32 s{T0_}, s{S_I}, 8", f"s_cmp_lt_u32 s{T0_}, 16", "s_cbranch_scc1 KS_CPE")
        if cm == 2: a(f"s_cmp_lt_u32 s{S_I}, 24", "s_cbranch_scc1 KS_CPE")
        if cm == 3: a(f"s_cmp_ge_u32 s{S_I}, 8", "s_cbranch_scc1 KS_CPE")
        if cm == 4: a(f"s_cmp_ge_u32 s{S_I}, 4", "s_cbranch_scc1 KS_CPE")
        if cm == 5: a(f"s_cmp_lt_u32 s{S_I}, 28", "s_cbranch_scc1 KS_CPE")
        a("s_getpc_b64 s[42:43]")
        a("KS_PC:")
        a(f"s_and_b32 s{T0_}, s{S_I}, 7", f"s_mul_i32 s{T0_}, s{T0_}, 4608", "v_and_b32 v126, 63, v0", f"v_lshl_add_u32 v126, v126, 7, s{T0_}", "v_min_u32 v126, KS_END-KS_PC, v126")
        a(f"global_load_dword v127, v126, s[42:43] {MOD('CPFMOD', '')}")
        a("KS_CPE:")
    if ENV("REMAP", 1):
        a(f"s_add_u32 s{T0_}, s{S_WAVE}, 8", f"s_sub_u32 s{T1_}, s{S_WAVE}, 4", f"s_cmp_lt_u32 s{S_WAVE}, 8", f"s_cselect_b32 s{T0_}, s{T0_}, s{T1_}")
        a(f"s_cmp_lt_u32 s{S_WAVE}, 4", f"s_cselect_b32 s{S_WAVE}, s{S_WAVE}, s{T0_}")
    a("v_and_b32 v1, 63, v0", "v_and_b32 v2, 15, v1", "v_lshrrev_b32 v3, 4, v1", f"v_mov_b32 v{VZ}, 0", f"v_mov_b32 v{VONE}, 1")
    a(f"s_mov_b32 s{S_GUARD}, {GUARD}", f"s_mov_b32 s{S_ONES}, 0x01010101")
    a(f"s_lshl_b32 s{S_B2}, s{S_XC}, 5", f"s_add_u32 s{S_B2}, s{S_B2}, s{S_I}")
    if RM: a(f"s_add_u32 s{T0_}, s{S_I}, 16", f"s_sub_u32 s{S_FI}, s{S_I}, 8", f"s_cselect_b32 s{S_FI}, s{T0_}, s{S_FI}", f"s_cmp_ge_u32 s{S_I}, 24", f"s_cselect_b32 s{S_FI}, s{S_I}, s{S_FI}")
    a(f"s_mul_i32 s{S_BLK}, s{S_XC}, 18", f"s_add_u32 s{S_BLK}, s{S_BLK}, s{S_FI}")
    a(f"s_cmp_lt_u32 s{S_WAVE}, 4", "s_cbranch_scc1 KS_L")
    a(f"s_cmp_ge_u32 s{S_WAVE}, 12", "s_cbranch_scc1 KS_X")
    a("s_setprio 2")
    a(f"s_lshr_b32 s{S_G}, s{S_WAVE}, 2", f"s_sub_u32 s{S_G}, s{S_G}, 1")
    a(f"s_mul_i32 s{S_ROLE}, s{S_G}, 3", f"s_xor_b32 s{S_ROLE}, s{S_ROLE}, s{S_WAVE}", f"s_and_b32 s{S_ROLE}, s{S_ROLE}, 3")
    a(f"s_lshl_b32 s{S_CH}, s{S_B2}, 1", f"s_add_u32 s{S_CH}, s{S_CH}, s{S_G}")
    a(f"s_lshl_b32 s{T0_}, s{S_ROLE}, 11", f"s_add_u32 s{T0_}, s{T0_}, {C_STG}", f"v_lshl_add_u32 v28, v1, 3, s{T0_}")
    pre_ixlf(a)
    a("KS_GRP:")
    gen_group(a)
    if ZM:
        a(f"s_cmp_lg_u32 s{S_WAVE}, 4", "s_cbranch_scc1 KS_K1")
        a("s_setprio 0", f"ds_read_b32 v7, v{VZ} offset:{FL_NONCE}")
        a(f"s_add_u32 s{T0_}, s{S_I}, {ENV('ZMO', 1)}", f"v_lshl_add_u32 v6, v1, 2, s{T0_}", "v_and_b32 v6, 31, v6", f"s_lshl_b32 s{T0_}, s{S_XC}, 12", f"s_add_u32 s{T0_}, s{T0_}, {hex(WS_MARK)}", f"v_lshl_add_u32 v6, v6, 7, s{T0_}")
        a("s_mov_b64 exec, 0xff")
        a("KS_ZM:")
        a(f"s_sleep {ENV('ZMS', 2)}")
        a(f"global_load_dword v8, v6, s[{P_WS}:{P_WS+1}] sc1")
        guard(a)
        a("s_waitcnt vmcnt(0) lgkmcnt(0)")
        a("v_cmp_eq_u32 vcc, v7, v8", f"s_bcnt1_i32_b64 s{T0_}, vcc", f"s_cmp_lt_u32 s{T0_}, {ZM}", "s_cbranch_scc1 KS_ZM")
        stamp2(a, 4)
        if ENV("ZMD", 0): a(f"s_sleep {ENV('ZMD', 0)}")
        a("s_mov_b64 exec, -1")
        a(f"ds_write_b32 v{VZ}, v{VONE} offset:{FL_KACK}")
    if KD: a("s_branch KS_K1")
    a(f"s_cmp_lg_u32 s{S_WAVE}, 4", "s_cbranch_scc1 KS_K1")
    a("s_setprio 0")
    srd(a, R3, P_WS, 16384, WS_KEYS)
    a("v_and_b32 v6, 1, v1", "v_lshlrev_b32 v6, 4, v6", f"s_lshl_b32 s{T0_}, s{S_B2}, 5")
    lds_wait(a, FL_ZF, 8, "b4", sleep=1)
    a("s_mov_b64 exec, 3")
    a(f"s_setprio {ENV('KSPRIO', 1)}")
    a("KS_K0:")
    a(f"ds_read_b128 v[8:11], v6 offset:{C_KEY}")
    guard(a)
    a("s_waitcnt lgkmcnt(0)")
    a("v_min3_u32 v12, v8, v9, v10", "v_min_u32 v12, v12, v11", "v_cmp_eq_u32 vcc, 0, v12", "s_cbranch_vccnz KS_K0")
    a(f"buffer_store_dwordx4 v[8:11], v6, s[{R3}:{R3+3}], s{T0_} offen sc1")
    a("s_mov_b64 exec, -1")
    stamp2(a, 4)
    a("s_waitcnt vmcnt(0)")
    a(f"ds_write_b32 v{VZ}, v{VONE} offset:{FL_KACK}")
    a("KS_K1:")
    a(f"s_cmp_lt_u32 s{S_FI}, 18", "s_cbranch_scc1 KS_T")
    a("s_waitcnt lgkmcnt(0)")
    endwave(a)
    a("KS_X:")
    a(f"s_cmp_lt_u32 s{S_I}, 24", "s_cbranch_scc1 KS_X2")
    a(f"s_setprio {ENV('KCPRIO', 2)}")
    CR = os.environ.get("CR")
    if CR: a(f"s_lshl_b32 s{T0_}, s{S_WAVE}, 2", f"s_lshr_b32 s{S_ROLE}, 0x{CR}0000, s{T0_}", "s_branch KS_XD")
    a("KS_XC:")
    a(f"s_add_u32 s{S_ROLE}, s{S_WAVE}, 3")
    a("KS_XD:")
    a(f"s_mov_b32 s{S_G}, 2", f"s_and_b32 s{S_ROLE}, s{S_ROLE}, 3")
    a(f"s_lshl_b32 s{S_CH}, s{S_XC}, 3", f"s_and_b32 s{T0_}, s{S_I}, 7", f"s_add_u32 s{S_CH}, s{S_CH}, s{T0_}", f"s_add_u32 s{S_CH}, s{S_CH}, 512")
    a(f"s_lshl_b32 s{T0_}, s{S_ROLE}, 11", f"s_add_u32 s{T0_}, s{T0_}, {C_STG}", f"v_lshl_add_u32 v28, v1, 3, s{T0_}")
    a("s_branch KS_GRP")
    a("KS_X2:")
    a(f"s_cmp_lt_u32 s{S_I}, 8", "s_cbranch_scc1 KS_X3")
    a(f"s_sub_u32 s{T5_}, s{S_WAVE}, 8")
    a("s_branch KS_LN1")
    a("KS_X3:")
    a(f"s_lshl_b32 s{T0_}, s2, 4", f"s_add_u32 s{T0_}, s{T0_}, s{S_WAVE}", f"s_cmp_lg_u32 s{T0_}, {16*ENV('NPUB', 2) + 12}", "s_cbranch_scc1 KS_X3B")
    a("s_setprio 3")
    a(f"s_memrealtime s[{T0_}:{T1_}]")
    a("v_and_b32 v6, 3, v1", "v_lshlrev_b32 v7, 2, v6", "v_min_u32 v6, 2, v6", "v_lshlrev_b32 v6, 2, v6", "v_cmp_eq_u32 vcc, 3, v1")
    a("s_waitcnt lgkmcnt(0)")
    a(f"v_mov_b32 v8, s{T0_}", f"v_mov_b32 v9, s{T1_}", "v_alignbit_b32 v8, v8, v8, v6", f"v_cndmask_b32 v9, v{VZ}, v9, vcc", "v_xor_b32 v8, v8, v9")
    a("v_and_b32 v9, 0xf0000fff, v8", "v_and_b32 v10, 0xfff000, v8", "v_lshl_or_b32 v9, v10, 4, v9", "v_lshrrev_b32 v10, 12, v8", "v_and_b32 v10, 0xf000, v10")
    a("v_or3_b32 v9, v9, v10, v9", "v_or_b32 v9, 0x80000000, v9")
    a("s_mov_b64 exec, 15")
    a(f"global_store_dword v7, v9, s[{P_DBG}:{P_DBG+1}] sc1")
    if SPIN: a(f"v_mov_b32 v8, s{T0_}", f"global_store_dword v7, v8, s[{P_DBG}:{P_DBG+1}] offset:64 sc1")
    a("s_mov_b64 exec, -1")
    a("s_setprio 0")
    a("KS_X3B:")
    if KOFF:
        a(f"s_setprio {ENV('KPPRIO', 3)}")
        a("s_branch KS_XC")
    a("s_waitcnt lgkmcnt(0)")
    a("s_barrier")
    a("s_branch KS_G")
    a("KS_X4:")
    if LNV: a("s_setprio 0")
    a(f"s_cmp_lt_u32 s{S_FI}, 18", "s_cbranch_scc1 KS_GN" if LNV else "s_cbranch_scc1 KS_G")
    a("KS_X5:")
    if XPF and NL2 and RM != 2:
        pf_lane(a, 46, 47)
        a(f"s_mul_i32 s{T2_}, s{S_WAVE}, 6", f"s_add_u32 s{T2_}, s{T2_}, s{S_FI}", f"s_sub_u32 s{T2_}, s{T2_}, {18 + 72}")
        if not RM: lds_wait(a, {0: FL_UTOK, 1: FL_UISS, 2: FL_UF}[ENV("XUW", 0)], 10, "b4", sleep=2)
        else:
            a("s_waitcnt vmcnt(0)")
            lds_wait(a, FL_G + 36, 10, "b4", sleep=2)
            if ENV("RMD", 0): a(f"s_sleep {ENV('RMD', 0)}")
        pf_gu(a, 46, T2_, 24, PFA + 10 * NLL, PF0, 47, "KS_XPE")
        a("KS_XPE:")
    a("s_waitcnt vmcnt(0) lgkmcnt(0)")
    endwave(a)
    a("KS_L:")
    a("v_lshlrev_b32 v6, 2, v0", f"ds_write_b32 v6, v{VZ}")
    a("v_mov_b32 v8, 0", "v_mov_b32 v9, 0", f"s_min_u32 s{T0_}, s{S_WAVE}, 2", f"s_mul_i32 s{T0_}, s{T0_}, {U_SIZE}", "v_min_u32 v6, 59, v1", f"v_lshl_add_u32 v6, v6, 3, s{T0_}")
    a(f"ds_write_b64 v6, v[8:9] offset:{C_U}")
    a(f"s_mov_b32 s{T5_}, s{S_WAVE}")
    a(f"s_sub_u32 s{T0_}, s{S_I}, 8", f"s_cmp_lt_u32 s{T0_}, 16", "s_cbranch_scc0 KS_L0")
    a("KS_LN1:")
    a("s_setprio 3")
    gen_ln1v(a) if LNV else gen_ln1(a)
    if (NLL or NL2) and not RM and not XPF:
        if not NL: pf_lane(a, 46, 47)
        a(f"s_cmp_ge_u32 s{S_FI}, 18", "s_cbranch_scc1 KS_LL2")
        if NLL:
            a(f"s_mul_i32 s{T2_}, s{S_WAVE}, 10", f"s_add_u32 s{T2_}, s{T2_}, s{S_I}", f"s_sub_u32 s{T2_}, s{T2_}, 8")
            pf_gu(a, 46, T2_, 40, PFA, PFA + 10 * NLL, 47, "KS_LLE")
        a("s_branch KS_LLE")
        a("KS_LL2:")
        if NL2:
            a(f"s_mul_i32 s{T2_}, s{S_WAVE}, 6", f"s_add_u32 s{T2_}, s{T2_}, s{S_I}", f"s_sub_u32 s{T2_}, s{T2_}, 18")
            pf_gu(a, 46, T2_, 24, PFA + 10 * NLL, PF0, 47, "KS_LLE")
        a("KS_LLE:")
    a(f"s_mov_b32 s{S_G}, 1")
    a("s_branch KS_L2B")
    a("KS_L0:")
    a(f"s_and_b32 s{T0_}, s{S_I}, 15", f"s_lshl_b32 s{T1_}, s{S_XC}, 4", f"s_add_u32 s{T0_}, s{T0_}, s{T1_}")
    a("v_and_b32 v59, 3, v1", "v_lshlrev_b32 v59, 2, v59")
    a(f"s_lshl_b32 s{T4_}, s{T0_}, 6", f"s_add_u32 s{T1_}, s{T4_}, {hex(WS_FLAG1)}", f"v_add_u32 v7, s{T1_}, v59")
    a(f"s_mul_i32 s{T1_}, s{T0_}, {CLR_WG}", f"s_add_u32 s{T1_}, s{T1_}, {hex(WS_CLR)}")
    a("v_lshlrev_b32 v6, 4, v0")
    a("v_mov_b32 v12, -1", "v_mov_b32 v13, -1", "v_mov_b32 v14, -1", "v_mov_b32 v15, -1")
    a("s_setprio 3")
    pf_lane(a, 16, 17)
    a("s_waitcnt lgkmcnt(0)")
    a(f"s_add_u32 s{R1}, s{P_WS}, s{T1_}", f"s_addc_u32 s{R1+1}, s{P_WS+1}, 0", f"s_mov_b32 s{R1+2}, {CLR_WG}", f"s_mov_b32 s{R1+3}, 0x20000")
    if ENV("UPRE", 0):
        srd(a, R0, P_WS, 0xC00000)
        a(f"s_lshl_b32 s{T2_}, s{S_WAVE}, 3", f"s_xor_b32 s{T2_}, s{T2_}, s{S_B2}", f"s_lshl_b32 s{T2_}, s{T2_}, 13")
        a(f"s_and_b32 s{T3_}, s{S_I}, 3", f"s_lshl_b32 s{T0_}, s{S_XC}, 2", f"s_add_u32 s{T3_}, s{T3_}, s{T0_}", f"s_lshl_b32 s{T3_}, s{T3_}, 13")
        a(f"s_add_u32 s{T0_}, s{T3_}, {256*8192}", f"s_cmp_eq_u32 s{S_WAVE}, 2", f"s_cselect_b32 s{T2_}, s{T0_}, s{T2_}")
        a(f"s_add_u32 s{T0_}, s{T3_}, {hex(WS_KT)}", f"s_cmp_eq_u32 s{S_WAVE}, 3", f"s_cselect_b32 s{T2_}, s{T0_}, s{T2_}")
        a(f"s_lshl_b32 s{T0_}, s{S_I}, 2", f"s_add_u32 s{T0_}, s{T0_}, s{S_WAVE}", f"s_and_b32 s{T0_}, s{T0_}, 0x72", f"s_cmp_gt_u32 s{T0_}, 0x62", f"s_cselect_b32 s{T0_}, 0, s{T0_}")
        a(f"s_bitcmp1_b32 s{T0_}, 1", "s_cbranch_scc1 KS_UPE")
        a("v_lshlrev_b32 v125, 7, v1", f"buffer_load_dword v124, v125, s[{R0}:{R0+3}], s{T2_} offen {MOD('UPMOD')}")
        a("KS_UPE:")
    a("s_barrier")
    if NE:
        a(f"s_and_b32 s{T2_}, s{S_I}, 15", f"s_lshl_b32 s{T3_}, s{S_WAVE}, 4", f"s_add_u32 s{T2_}, s{T2_}, s{T3_}")
        pf_gu(a, 16, T2_, 64, PFB + 16 * NL, PFA, 18, "KS_L1E")
        a("KS_L1E:")
    TW = eval(os.environ.get("TW", "[]"))
    for (w, base, off, nb, sh) in TW:
        l = newlabel("TW")
        a(f"s_cmp_lg_u32 s{S_WAVE}, {w}", f"s_cbranch_scc1 {l}")
        srd(a, R0, {"ws": P_WS, "out": P_OUT}[base], nb, off)
        a(f"v_lshlrev_b32 v125, {sh}, v1", f"buffer_load_dword v124, v125, s[{R0}:{R0+3}], 0 offen")
        a(f"{l}:")
    def dr_loads():
        srd(a, R3, P_DOWN, WBYTES)
        a(f"s_cmp_lt_u32 s{S_I}, {2 if RM else 8}", f"s_cselect_b32 s{R3+2}, s{R3+2}, 0")
        a("v_lshlrev_b32 v19, 4, v1", f"s_mul_i32 s{T2_}, s{S_BLK}, 36864", f"s_mul_i32 s{T3_}, s{S_WAVE}, 9216", f"s_add_u32 s{T2_}, s{T2_}, s{T3_}")
        for k in range(9):
            if k in (4, 8): a(f"s_add_u32 s{T2_}, s{T2_}, 4096")
            a(f"buffer_load_dwordx4 v[{68+4*k}:{71+4*k}], v19, s[{R3}:{R3+3}], s{T2_} offen offset:{1024*(k&3)} {MOD('DM', 'nt')}")
    NCE = ENV("NCE", 1)
    def nce_loads():
        a(f"s_and_b32 s{T2_}, s{S_I}, 7", f"s_lshl_b32 s{T3_}, s{S_WAVE}, 3", f"s_add_u32 s{T2_}, s{T2_}, s{T3_}")
        pf_gu_setup(a, T2_)
        a(f"s_cmp_lt_u32 s{S_I}, 24", f"s_cselect_b32 s{R2_+2}, 0, s{R2_+2}")
        if NCE == 2: a("s_waitcnt vmcnt(0)")
        for k in range((NC + 3) // 4):
            a(f"s_add_u32 s{T4_}, s{T3_}, {(PF0 + 8*NN + 32*k)//2*7*9216}", f"s_cmp_ge_u32 s{S_WAVE}, {NC - 4*k}", f"s_cselect_b32 s{R2_+2}, 0, s{R2_+2}")
            pf_ld(a, 18, 16, R2_)
    if DR == 1: dr_loads()
    if NCE == 4: nce_loads()
    if ENV("CTRIG", 1): lds_wait(a, FL_PARAM, 8, "nz", sleep=2)
    if NCE == 3: nce_loads()
    if DR == 4: dr_loads()
    for k in range((CLR_WG + 4095) // 4096):
        a(f"s_mov_b32 s{T0_}, {4096*k}")
        a(f"buffer_store_dwordx4 v[12:15], v6, s[{R1}:{R1+3}], s{T0_} offen {MOD('CMOD')}")
    stamp(a, 1)
    a(f"global_load_dword v58, v59, s[{P_DBG}:{P_DBG+1}] sc1")
    if DR == 2: dr_loads()
    if NCE in (1, 2): nce_loads()
    dbg_wait(a, (9 if DR == 2 else 0) + (2 * ((NC + 3) // 4) if NCE in (1, 2) else 0))
    stamp(a, 2)
    a(f"ds_write_b32 v59, v58 offset:{FL_NONCE}")
    a("s_mov_b64 exec, 1")
    a(f"ds_add_rtn_u32 v8, v{VZ}, v{VONE} offset:{FL_LNACK}")
    a("s_mov_b64 exec, -1")
    for d in range(1, 4): a(f"v_lshrrev_b32 v{58-d}, {3*d}, v58")
    a("s_waitcnt lgkmcnt(0)")
    a(f"v_readfirstlane_b32 s{T0_}, v8")
    a(f"s_cmp_lg_u32 s{T0_}, 3", "s_cbranch_scc1 KS_L2")
    a("s_mov_b64 exec, 15")
    a(f"global_store_dword v7, v58, s[{P_WS}:{P_WS+1}] sc1")
    a("s_mov_b64 exec, -1")
    a(f"s_and_b32 s{T2_}, s{S_I}, 7")
    a(f"s_cmp_ge_u32 s{S_I}, 8", "s_cbranch_scc1 KS_L1C")
    if NN:
        a("s_setprio 0")
        lds_wait(a, FL_G + 32 + 4, 8, "b4", sleep=2)
        a("s_setprio 3")
        pf_gu(a, 16, T2_, 8, PF0, PF0 + 8 * NN, 18, "KS_L2")
    a("s_branch KS_L2")
    a("KS_L1C:")
    if NC and not NCE: pf_gu(a, 16, T2_, 8, PF0 + 8 * NN, PF1, 18, "KS_L2")
    a("KS_L2:")
    if RM == 2:
        a(f"s_sub_u32 s{T2_}, s{S_FI}, 18", f"s_cmp_ge_u32 s{T2_}, 6", "s_cbranch_scc1 KS_RME")
        a(f"s_mul_i32 s{T3_}, s{S_WAVE}, 6", f"s_add_u32 s{T2_}, s{T2_}, s{T3_}")
        if ENV("RMD", 0): a(f"s_sleep {ENV('RMD', 0)}")
        pf_gu(a, 16, T2_, 24, PFA + 10 * NLL, PF0, 18, "KS_RME")
        a("KS_RME:")
    if DR == 3: dr_loads()
    a(f"s_mov_b32 s{S_G}, 0")
    a("KS_L2B:")
    srd(a, R0, P_WS, XBYTES, WS_UT)
    if UL:
        a("v_lshrrev_b32 v7, 1, v1", "v_lshlrev_b32 v7, 7, v7", "v_and_b32 v10, 1, v1", "v_lshl_add_u32 v7, v10, 4, v7", "v_lshlrev_b32 v9, 4, v1")
        a("v_lshrrev_b32 v13, 2, v1", "v_lshlrev_b32 v13, 7, v13", "v_and_b32 v12, 3, v1", "v_lshl_add_u32 v13, v12, 4, v13")
        a(f"s_lshl_b32 s{T0_}, s{S_WAVE}, 12", f"s_lshr_b32 s{T1_}, s{S_B2}, 1", f"s_lshl_b32 s{T2_}, s{T1_}, 8", f"s_lshl_b32 s{T1_}, s{T1_}, 14", f"s_add_u32 s{T1_}, s{T1_}, s{T0_}")
        a(f"s_and_b32 s{T3_}, s{S_B2}, 1", f"s_lshl_b32 s{T3_}, s{T3_}, 6", f"s_add_u32 s{T1_}, s{T1_}, s{T3_}")
        a(f"s_and_b32 s{T3_}, s{T2_}, 0x700", f"v_xor_b32 v13, s{T3_}, v13", f"s_and_b32 s{T2_}, s{T2_}, 0x1800", f"s_xor_b32 s{T1_}, s{T1_}, s{T2_}")
        a(f"s_xor_b32 s{T5_}, s{T1_}, 0x800")
        a(f"s_lshl_b32 s{T3_}, s{S_XC}, 3", f"s_add_u32 s{T3_}, s{T3_}, s{S_I}", f"s_add_u32 s{T3_}, s{T3_}, {512 - 24}")
        a(f"s_lshr_b32 s{T4_}, s{T3_}, 2", f"s_lshl_b32 s{T4_}, s{T4_}, 14", f"s_and_b32 s{T3_}, s{T3_}, 3", f"s_lshl_b32 s{T3_}, s{T3_}, 5")
        a(f"s_add_u32 s{T3_}, s{T3_}, s{T4_}", f"s_add_u32 s{T3_}, s{T3_}, s{T0_}")
        a(f"s_lshr_b32 s{T4_}, s{T4_}, 6", f"s_and_b32 s{T2_}, s{T4_}, 0xf00", f"v_xor_b32 v7, s{T2_}, v7", f"s_and_b32 s{T4_}, s{T4_}, 0x1000", f"s_xor_b32 s{T3_}, s{T3_}, s{T4_}")
        a(f"s_lshl_b32 s{T0_}, s{S_WAVE}, 11")
    else:
        a("v_lshrrev_b32 v7, 1, v1", "v_lshlrev_b32 v7, 6, v7", "v_and_b32 v10, 1, v1", "v_lshl_add_u32 v7, v10, 4, v7", "v_lshlrev_b32 v9, 4, v1")
        a(f"s_lshl_b32 s{T0_}, s{S_WAVE}, 11", f"s_lshl_b32 s{T1_}, s{S_B2}, 13", f"s_add_u32 s{T1_}, s{T1_}, s{T0_}")
        if SWU:
            a(f"s_lshl_b32 s{T2_}, s{S_B2}, 7", f"s_and_b32 s{T3_}, s{T2_}, 0x380", f"v_xor_b32 v13, s{T3_}, v9", f"s_and_b32 s{T2_}, s{T2_}, 0x1c00", f"s_xor_b32 s{T1_}, s{T1_}, s{T2_}")
        else: a("v_mov_b32 v13, v9")
        a(f"s_xor_b32 s{T5_}, s{T1_}, 0x400")
        a(f"s_lshl_b32 s{T3_}, s{S_XC}, 3", f"s_add_u32 s{T3_}, s{T3_}, s{S_I}", f"s_add_u32 s{T3_}, s{T3_}, {512 - 24}")
        a(f"s_lshr_b32 s{T4_}, s{T3_}, 1", f"s_lshl_b32 s{T4_}, s{T4_}, 13", f"s_and_b32 s{T3_}, s{T3_}, 1", f"s_lshl_b32 s{T3_}, s{T3_}, 5")
        a(f"s_add_u32 s{T3_}, s{T3_}, s{T4_}", f"s_add_u32 s{T3_}, s{T3_}, s{T0_}")
        if SWU:
            a(f"s_lshr_b32 s{T4_}, s{T4_}, 6", f"s_and_b32 s{T2_}, s{T4_}, 0x780", f"v_xor_b32 v7, s{T2_}, v7", f"s_and_b32 s{T4_}, s{T4_}, 0x1800", f"s_xor_b32 s{T3_}, s{T3_}, s{T4_}")
    a(f"s_cmp_lt_u32 s{S_I}, 24", f"s_cselect_b32 s{T3_}, {XBYTES}, s{T3_}", f"s_cselect_b32 s{T2_}, 0, {hex(TAGM)}")
    a(f"v_mov_b32_dpp v64, v58 quad_perm:[0,1,0,1] {DPPM}", f"v_mov_b32_dpp v65, v58 quad_perm:[2,3,2,3] {DPPM}")
    a(f"s_bitcmp1_b32 s{S_I}, 0", "s_cselect_b64 vcc, -1, 0", "v_cndmask_b32 v64, v64, v65, vcc")
    for d in range(4): a(f"v_and_b32 v{60+d}, {hex(TAGM)}, v{58-d}")
    for d in range(3, 0, -1): a(f"v_lshrrev_b32 v{64+d}, {3*d}, v64")
    for d in range(4): a(f"v_and_b32 v{64+d}, s{T2_}, v{64+d}")
    a(f"s_lshl_b32 s{T4_}, s{S_WAVE}, 10", f"s_add_u32 s{T4_}, s{T4_}, {C_U + 480}")
    a("v_bfe_u32 v11, v1, 1, 1", f"v_mul_u32_u24 v11, {U_SIZE}, v11", "v_lshl_add_u32 v11, v10, 4, v11", "v_lshrrev_b32 v10, 2, v1", "v_lshl_add_u32 v11, v10, 5, v11", f"v_add_u32 v11, s{T4_}, v11")
    a(f"v_add_u32 v10, s{T4_}, v9")
    a(f"v_mov_b32 v116, s{S_WAVE}")
    a(f"s_add_u32 s{T0_}, s{T0_}, {hex(WS_FLAG1)}", "v_lshrrev_b32 v12, 2, v1", "v_lshl_add_u32 v12, v12, 6, v59", f"v_add_u32 v12, s{T0_}, v12")
    UT = eval(os.environ.get("UT", "(8, 8, 20)"))
    a(f"s_cmp_lt_u32 s{S_I}, 8", f"s_cselect_b32 s{T2_}, {UT[0]}, {UT[1]}", f"s_cmp_ge_u32 s{S_I}, 24", f"s_cselect_b32 s{T2_}, {UT[2]}, s{T2_}", f"v_mov_b32 v14, s{T2_}")
    a("s_setprio 0")
    if not ENV("NOW", 1): a("s_waitcnt vmcnt(0)")
    a(f"ds_write_b8 v116, v{VONE} offset:{FL_UTOK + 4}")
    stamp(a, 8)
    if DR:
        a(f"s_cmp_ge_u32 s{S_I}, {2 if RM else 8}", "s_cbranch_scc1 KS_DR1")
        a(f"s_mul_i32 s{T2_}, s{S_WAVE}, 9216", f"s_add_u32 s{T2_}, s{T2_}, {C_DOWN}", f"v_lshl_add_u32 v19, v1, 4, s{T2_}")
        lds_wait(a, FL_G + 36, 8, "b4", sleep=2)
        a("s_waitcnt vmcnt(0)")
        for k in range(9): a(f"ds_write_b128 v19, v[{68+4*k}:{71+4*k}] offset:{1024*k}")
        a("KS_DR1:")
    lds_wait(a, FL_G, 8, "b4", addr=14, sleep=2)
    a("s_setprio 3")
    stamp(a, 5)
    if ENV("UDELAY", 0): a(f"s_sleep {ENV('UDELAY', 0)}")
    lp = newlabel("UP"); l1 = newlabel("UPE")
    UM = os.environ.get("UMOD", "sc1").replace("_", " ")
    MK = [6, 8, 10, 12]
    if ENV("MPOLL", 0):
        for m in MK: a(f"s_mov_b64 s[{m}:{m+1}], -1")
        a(f"s_mov_b32 s{SP0}, {hex(TAGM)}")
    a(f"s_branch {l1}")
    a(f"{lp}:")
    a(f"s_sleep {ENV('USLEEP', 1)}")
    a(f"{l1}:")
    if ENV("MPOLL", 0):
        lds = [f"buffer_load_dwordx4 v[20:23], v13, s[{R0}:{R0+3}], s{T1_} offen {UM}", f"buffer_load_dwordx4 v[24:27], v13, s[{R0}:{R0+3}], s{T5_} offen {UM}",
               f"buffer_load_dwordx4 v[28:31], v7, s[{R0}:{R0+3}], s{T3_} offen {UM}"]
        for k in range(3): a(f"s_mov_b64 exec, s[{MK[k]}:{MK[k]+1}]", lds[k])
        a(f"s_mov_b64 exec, s[{MK[3]}:{MK[3]+1}]")
        a(f"global_load_dword v32, v12, s[{P_WS}:{P_WS+1}] sc1", f"global_load_dword v33, v12, s[{P_WS}:{P_WS+1}] offset:1024 sc1")
        guard(a)
        for k in range(3):
            a(f"s_mov_b64 exec, s[{MK[k]}:{MK[k]+1}]", f"s_waitcnt vmcnt({4-k})")
            for d in range(4): a(f"v_xor_b32 v{20+4*k+d}, v{(64 if k == 2 else 60)+d}, v{20+4*k+d}")
            a(f"v_or3_b32 v44, v{20+4*k}, v{21+4*k}, v{22+4*k}", f"v_bitop3_b32 v44, v44, v{23+4*k}, s{SP0} bitop3:0xa8", f"v_cmp_ne_u32 s[{MK[k]}:{MK[k]+1}], 0, v44")
        a(f"s_mov_b64 exec, s[{MK[3]}:{MK[3]+1}]", "s_waitcnt vmcnt(0)")
        a("v_xor_b32 v32, v58, v32", "v_bitop3_b32 v32, v32, v58, v33 bitop3:0xf6", f"v_cmp_ne_u32 s[{MK[3]}:{MK[3]+1}], 0, v32")
        a(f"s_or_b64 vcc, s[{MK[0]}:{MK[0]+1}], s[{MK[1]}:{MK[1]+1}]", f"s_or_b64 vcc, vcc, s[{MK[2]}:{MK[2]+1}]", f"s_or_b64 vcc, vcc, s[{MK[3]}:{MK[3]+1}]", f"s_cbranch_scc1 {lp}")
        a("s_mov_b64 exec, -1")
    else:
        if not FLD: a(f"global_load_dword v32, v12, s[{P_WS}:{P_WS+1}] {MOD('FMOD')}", f"global_load_dword v33, v12, s[{P_WS}:{P_WS+1}] offset:1024 {MOD('FMOD')}")
        a(f"buffer_load_dwordx4 v[20:23], v13, s[{R0}:{R0+3}], s{T1_} offen {UM}")
        a(f"buffer_load_dwordx4 v[24:27], v13, s[{R0}:{R0+3}], s{T5_} offen {UM}")
        a(f"buffer_load_dwordx4 v[28:31], v7, s[{R0}:{R0+3}], s{T3_} offen {UM}")
        if ENV("DUW", 0) or ENV("XUW", 0): a(f"ds_write_b8 v116, v{VONE} offset:{FL_UISS}")
        guard(a)
        UWR = ("ds_write_b128 v11, v[20:23]", "ds_write_b128 v11, v[24:27] offset:512", f"ds_write_b128 v10, v[28:31] offset:{2*U_SIZE}")
        for k in range(3):
            a(f"s_waitcnt vmcnt({2-k})")
            if k == 0 and not FLD: a("v_xor_b32 v32, v58, v32", "v_xor_b32 v33, v58, v33")
            for d in range(4): a(f"v_xor_b32 v{20+4*k+d}, v{(64 if k == 2 else 60)+d}, v{20+4*k+d}")
            if ENV("UW", 1): a(UWR[k])
            a(f"v_or3_b32 v44, v{20+4*k}, v{21+4*k}, v{44 if k else 21}", f"v_or3_b32 v44, v{22+4*k}, v{23+4*k}, v44")
        a(f"v_and_b32 v44, {hex(TAGM)}, v44")
        if not FLD: a("v_or3_b32 v44, v44, v32, v33")
        a("v_cmp_ne_u32 vcc, 0, v44", f"s_cbranch_vccnz {lp}")
    stamp(a, 6)
    if not ENV("UW", 1): a("ds_write_b128 v11, v[20:23]", "ds_write_b128 v11, v[24:27] offset:512", f"ds_write_b128 v10, v[28:31] offset:{2*U_SIZE}")
    a(f"ds_write_b8 v116, v{VONE} offset:{FL_UF}")
    stamp(a, 7)
    gen_wjobs(a)
    a("s_setprio 0")
    LG = ENV("LG", 0)
    def lgate(): lds_wait(a, FL_S6 + ENV("LGB", 3), 12, "u8", sleep=ENV("LGS", 3))
    if LG == 2: lgate()
    a(f"s_lshr_b32 s{T0_}, s{S_B2}, 6", f"s_lshl_b32 s{T0_}, s{T0_}, 9")
    a(f"s_bfe_u32 s{T1_}, s{S_B2}, 0x20004", f"s_lshl_b32 s{T1_}, s{T1_}, 6", f"s_add_u32 s{T0_}, s{T0_}, s{T1_}")
    a(f"s_and_b32 s{T1_}, s{S_B2}, 3", f"s_lshl_b32 s{T1_}, s{T1_}, 4", f"s_add_u32 s{T0_}, s{T0_}, s{T1_}")
    a(f"s_and_b32 s{T1_}, s{S_B2}, 12", f"s_add_u32 s{T0_}, s{T0_}, s{T1_}")
    a(f"s_lshr_b32 s{T1_}, s{S_WAVE}, 1", f"s_lshl_b32 s{T1_}, s{T1_}, 8", f"s_add_u32 s{T0_}, s{T0_}, s{T1_}")
    a(f"s_and_b32 s{T1_}, s{S_WAVE}, 1", f"s_lshl_b32 s{T1_}, s{T1_}, 1", f"s_add_u32 s{T0_}, s{T0_}, s{T1_}")
    a("v_lshrrev_b32 v113, 5, v1", "v_and_b32 v114, 31, v1")
    a(f"v_add_u32 v112, s{T0_}, v113")
    a("v_mul_u32_u24 v115, 1152, v112", "v_lshl_add_u32 v8, v114, 2, v115", "v_lshl_add_u32 v115, v114, 4, v115", "v_lshlrev_b32 v7, 2, v114", "v_lshlrev_b32 v6, 4, v114")
    a(f"v_bfe_u32 v111, v1, 3, 1", f"v_add_u32 v111, s{T0_}, v111", "v_mul_u32_u24 v111, 1152, v111", "v_and_b32 v9, 7, v1", "v_lshl_add_u32 v111, v9, 4, v111")
    srd(a, R0, P_X, XBYTES)
    srd(a, R1, P_WR, 1152)
    a(f"buffer_load_dwordx4 v[10:13], v115, s[{R0}:{R0+3}], 0 offen")
    a(f"buffer_load_dwordx4 v[14:17], v115, s[{R0}:{R0+3}], 0 offen offset:512")
    a(f"buffer_load_dword v18, v8, s[{R0}:{R0+3}], 0 offen offset:1024")
    a(f"buffer_load_dwordx4 v[50:53], v6, s[{R1}:{R1+3}], 0 offen")
    a(f"buffer_load_dwordx4 v[54:57], v6, s[{R1}:{R1+3}], 0 offen offset:512")
    a(f"buffer_load_dword v58, v7, s[{R1}:{R1+3}], 0 offen offset:1024")
    if not PTAG:
        a(f"s_cmp_lt_u32 s{S_FI}, 18", "s_cbranch_scc1 KS_L4")
        a(f"s_mul_i32 s{T0_}, s{S_XC}, 14", f"s_add_u32 s{T0_}, s{T0_}, s{S_I}", f"s_mul_i32 s{T0_}, s{T0_}, {CLRP_WG}", f"s_add_u32 s{T0_}, s{T0_}, {hex(WS_PART - 18*CLRP_WG)}")
        a(f"s_add_u32 s{R1}, s{P_WS}, s{T0_}", f"s_addc_u32 s{R1+1}, s{P_WS+1}, 0", f"s_mov_b32 s{R1+2}, {CLRP_WG}", f"s_mov_b32 s{R1+3}, 0x20000")
        a("v_lshlrev_b32 v6, 4, v0", "v_mov_b32 v60, -1", "v_mov_b32 v61, -1", "v_mov_b32 v62, -1", "v_mov_b32 v63, -1")
        for k in range(6):
            a(f"s_movk_i32 s{T0_}, {4096*k}")
            a(f"buffer_store_dwordx4 v[60:63], v6, s[{R1}:{R1+3}], s{T0_} offen sc1")
    a("KS_L4:")
    if LG == 1: lds_wait(a, FL_S6 + ENV("LGB", 3), 60, "u8", sleep=ENV("LGS", 3))
    srd(a, R0, P_WS, 0x240000, WS_ZB1)
    srd(a, R1, P_OUT, XBYTES)
    srd(a, R2_, P_WS, XBYTES, WS_X2)
    srd(a, R3, P_WS, 16384, WS_KEYS)
    if not XCL:
        for d in range(4): a(f"v_mov_b32 v{60+d}, -1")
        a(f"buffer_store_dwordx4 v[60:63], v115, s[{R2_}:{R2_+3}], 0 offen sc1")
        a(f"buffer_store_dwordx4 v[60:63], v115, s[{R2_}:{R2_+3}], 0 offen offset:512 sc1")
        a("s_mov_b64 exec, 0xffff")
        a(f"buffer_store_dwordx4 v[60:63], v111, s[{R2_}:{R2_+3}], 0 offen offset:1024 sc1")
        a("s_mov_b64 exec, -1")
    a(f"s_not_b32 s{T1_}, s{S_B2}", f"v_xor_b32 v8, s{T1_}, v0")
    a("v_lshrrev_b32 v6, 1, v0", "v_lshlrev_b32 v6, 6, v6", "v_and_b32 v8, 1, v8", "v_lshl_add_u32 v6, v8, 4, v6")
    a(f"s_lshr_b32 s{T0_}, s{S_B2}, 2", f"s_lshl_b32 s{T0_}, s{T0_}, 15", f"s_and_b32 s{T1_}, s{S_B2}, 1", f"s_lshl_b32 s{T1_}, s{T1_}, 14", f"s_add_u32 s{T0_}, s{T0_}, s{T1_}")
    a(f"s_and_b32 s{T1_}, s{S_B2}, 2", f"s_lshl_b32 s{T1_}, s{T1_}, 4", f"s_add_u32 s{T0_}, s{T0_}, s{T1_}")
    a(f"s_lshr_b32 s{T2_}, s{S_B2}, 2", f"s_lshl_b32 s{T2_}, s{T2_}, 12", f"s_and_b32 s{T1_}, s{S_B2}, 3", f"s_lshl_b32 s{T1_}, s{T1_}, 4")
    a(f"s_add_u32 s{T2_}, s{T2_}, s{T1_}", f"s_lshl_b32 s{T1_}, s{S_WAVE}, 10", f"s_add_u32 s{T2_}, s{T2_}, s{T1_}", f"s_add_u32 s{T2_}, s{T2_}, 0x200000")
    a("v_lshlrev_b32 v9, 6, v2")
    if SWZ:
        a(f"s_lshl_b32 s{T1_}, s{S_B2}, 5", f"s_and_b32 s{T3_}, s{T1_}, 0x1f80", f"v_xor_b32 v6, s{T3_}, v6", f"s_and_b32 s{T3_}, s{T1_}, 0x380", f"v_xor_b32 v9, s{T3_}, v9")
        a(f"s_and_b32 s{T3_}, s{T1_}, 0xc00", f"s_xor_b32 s{T2_}, s{T2_}, s{T3_}", f"s_and_b32 s{T1_}, s{S_B2}, 1", f"s_lshl_b32 s{T1_}, s{T1_}, 13", f"s_xor_b32 s{T0_}, s{T0_}, s{T1_}")
    a(f"s_xor_b32 s{T1_}, s{T0_}, 0x2000")
    a(f"s_mul_i32 s{T3_}, s{S_WAVE}, 2304", f"s_add_u32 s{T3_}, s{T3_}, {C_XR}", f"v_lshl_add_u32 v117, v114, 5, s{T3_}", f"v_lshl_add_u32 v110, v114, 3, s{T3_}")
    a(f"s_lshl_b32 s{T3_}, s{S_WAVE}, 9", f"s_add_u32 s{T3_}, s{T3_}, {C_RED}", f"v_lshl_add_u32 v108, v1, 2, s{T3_}", f"v_lshl_add_u32 v109, v1, 4, s{T3_}")
    SD2 = ENV("SD2", 1)
    if SD2: a("v_lshlrev_b32 v118, 4, v113", f"s_movk_i32 s{T3_}, 0x3f80", f"v_lshlrev_b32 v118, v118, s{T3_}")
    else: a(f"s_mov_b32 s{T3_}, 0x02020000", f"v_mul_lo_u32 v118, v113, s{T3_}", "v_add_u32 v118, 0x01000c0c, v118")
    a(f"v_lshlrev_b32 v8, 2, v0", f"v_add_u32 v8, {C_XR}, v8")
    a(f"s_lshl_b32 s{T3_}, s{S_WAVE}, 6", f"s_add_u32 s{T3_}, s{T3_}, {C_XR + 2048}", f"v_lshl_add_u32 v119, v2, 2, s{T3_}")
    a("s_waitcnt vmcnt(0)")
    X = 20
    for j in range(9): unpack(a, X + 2 * j, 10 + j)
    WU, WS_ = 80, 78
    for j in range(9): unpack(a, WU + 2 * j, 50 + j)
    a(f"v_pk_add_f32 v[{WS_}:{WS_+1}], v[{WU}:{WU+1}], v[{WU+2}:{WU+3}]")
    for j in range(2, 9): a(f"v_pk_add_f32 v[{WS_}:{WS_+1}], v[{WS_}:{WS_+1}], v[{WU+2*j}:{WU+2*j+1}]")
    a(f"v_add_f32 v{WS_}, v{WS_}, v{WS_+1}")
    red32(a, "v_add_f32", WS_, WS_ + 1)
    a("v_sub_u32 v98, 0x87ff, v112", "v_lshl_add_u32 v99, v116, 1, v113", "v_lshlrev_b32 v99, 2, v99")
    ZG2 = ENV("ZG2", 0)
    if KD: a(f"s_lshl_b32 s{T5_}, s{S_B2}, 5")
    if ZG2 == 3:
        if ENV("ZGT", 0) < 2: lds_wait(a, {0: FL_ZDONE, 1: FL_ZISS}[ENV("ZGT", 0)], 60, "b4", sleep=1)
        if ENV('ZGS', 0x10000):
            a("s_mov_b32 exec_lo, 0", f"s_mov_b32 exec_hi, {hex(ENV('ZGS', 0x10000))}")
            zpoll(a, [f"buffer_load_dwordx4 v[68:71], v6, s[{R0}:{R0+3}], s{T0_} offen sc1"], list(range(68, 72)), ENV("ZSLEEP2", 2))
            a("s_mov_b64 exec, -1")
        else:
            zpoll(a, [f"buffer_load_dwordx4 v[68:71], v{VZ}, s[{R0}:{R0+3}], s{T2_} offen sc1"], list(range(68, 72)), ENV("ZSLEEP2", 2))
        if ENV("ZDELAY", 0): a(f"s_sleep {ENV('ZDELAY', 0)}")
        lds_wait(a, FL_ZISS, 60, "b4")
        if ENV("ZDELAY2", 0): a(f"s_sleep {ENV('ZDELAY2', 0)}")
    elif ZG2:
        lds_wait(a, {1: FL_ZDONE, 2: FL_ZISS}[ZG2], 60, "b4", sleep=1)
        zpoll(a, [f"buffer_load_dwordx4 v[68:71], v{VZ}, s[{R0}:{R0+3}], s{T2_} offen sc1"], list(range(68, 72)), ENV("ZSLEEP2", 2))
    ZT = ENV("ZT", 0)
    def blank():
        for k in range(3): a(f"buffer_store_dwordx4 v[100:103], v104, s[{R4}:{R4+3}], 0 offen offset:{1024*k} sc1")
    if BT:
        a(f"s_sub_u32 s{T3_}, s{S_I}, 8", f"s_cmp_lt_u32 s{T3_}, 16", f"s_cselect_b32 s{R4+2}, 10624, 0", f"s_and_b32 s{T3_}, s{T3_}, 15", f"s_lshl_b32 s{T3_}, s{T3_}, 3", f"s_add_u32 s{T3_}, s{T3_}, s{S_XC}")
        a(f"s_mul_i32 s{T3_}, s{T3_}, 10624", f"s_add_u32 s{T3_}, s{T3_}, {hex(WS_PART)}", f"s_add_u32 s{R4}, s{P_WS}, s{T3_}", f"s_addc_u32 s{R4+1}, s{P_WS+1}, 0", f"s_mov_b32 s{R4+3}, 0x20000")
        a(f"s_mul_i32 s{T3_}, s{S_WAVE}, 3072", f"v_lshl_add_u32 v104, v1, 4, s{T3_}")
        for d in range(4): a(f"v_mov_b32 v{100+d}, -1")
        if BT == 2: lds_wait(a, FL_ZDONE, 60, "b4", sleep=1)
        if BT == 4: lds_wait(a, FL_ZISS, 60, "b4", sleep=1)
        if BT in (1, 2, 4): blank()
    if ZT:
        lds_wait(a, FL_ZISS, 60, "b4", sleep=1)
        a(f"s_movk_i32 s{T3_}, {ZT}", f"s_setprio {ENV('ZTP', 0)}")
        a("KS_ZT:")
        a("s_sleep 1", f"ds_read_b32 v60, v{VZ} offset:{FL_ZDONE + 4}", f"s_sub_u32 s{T3_}, s{T3_}, 1", "s_cbranch_scc1 KS_ZL")
        a("s_waitcnt lgkmcnt(0)", f"v_cmp_ne_u32 vcc, s{S_ONES}, v60", "s_cbranch_vccnz KS_ZT")
    elif ZM:
        lds_wait(a, FL_KACK, 60, "nz", sleep=1)
        lds_wait(a, FL_ZISS, 60, "b4", sleep=0)
    elif ZG2 != 3: lds_wait(a, FL_ZDONE + 4, 60, "b4", sleep=1)
    a("s_setprio 3")
    if PFD2 > PFD:
        W3 = ENV("PF3W", 6)
        a(f"s_sub_u32 s{T5_}, s{S_I}, 18", f"s_cmp_ge_u32 s{T5_}, {W3}", "s_cbranch_scc1 KS_PF3E", f"s_cmp_lg_u32 s{S_WAVE}, 2", "s_cbranch_scc1 KS_PF3E")
        pf_down(a, T5_, W3, PFD, PFD2, 100, 120, "KS_PF3E", R4)
        a("KS_PF3E:")
    stamp2(a, 1)
    if ENV("ZGATE", 1) and not ZG2 and not ZM:
        if BT == 3: blank()
        ZGC = ENV("ZGC", 2)
        if ZGC == 1: a(f"s_cmp_ge_u32 s{S_I}, 24", "s_cbranch_scc1 KS_ZGC")
        if ZGC == 3: a(f"s_sub_u32 s{T3_}, s{S_I}, 18", f"s_cmp_ge_u32 s{T3_}, 6", "s_cbranch_scc1 KS_ZGC")
        if ZGC == 2: a(f"s_sub_u32 s{T3_}, s{S_I}, 8", f"s_cmp_ge_u32 s{T3_}, 16", "s_cbranch_scc1 KS_ZGC")
        zpoll(a, [f"buffer_load_dwordx4 v[68:71], v{VZ}, s[{R0}:{R0+3}], s{T2_} offen sc1"], list(range(68, 72)), ENV("ZSLEEP", 1))
        if ENV("ZDELAY", 0): a(f"s_sleep {ENV('ZDELAY', 0)}")
        if ZGC: a("KS_ZGC:")
    lp = newlabel("ZP"); l1 = newlabel("ZPE")
    a(f"s_branch {l1}", f"{lp}:", f"s_sleep {ENV('ZSLEEP', 1)}")
    if ZT: a("KS_ZL:", "s_setprio 3", "s_waitcnt lgkmcnt(0)")
    a(f"{l1}:")
    a(f"buffer_load_dwordx4 v[60:63], v6, s[{R0}:{R0+3}], s{T0_} offen sc1",
      f"buffer_load_dwordx4 v[64:67], v6, s[{R0}:{R0+3}], s{T1_} offen sc1",
      f"buffer_load_dwordx4 v[68:71], v9, s[{R0}:{R0+3}], s{T2_} offen sc1")
    guard(a)
    for k in range(3):
        a(f"s_waitcnt vmcnt({2-k})")
        ad, o = (8, 4 * k) if k < 2 else (119, 0)
        a(f"ds_write2st64_b32 v{ad}, v{60+4*k}, v{61+4*k} offset0:{o} offset1:{9+o}")
        a(f"ds_write2st64_b32 v{ad}, v{62+4*k}, v{63+4*k} offset0:{18+o} offset1:{27+o}")
        a(f"v_max3_u32 v44, v{60+4*k}, v{61+4*k}, v{44 if k else 61}", f"v_max3_u32 v44, v{62+4*k}, v{63+4*k}, v44")
    a("v_cmp_eq_u32 vcc, -1, v44", f"s_cbranch_vccnz {lp}")
    a(f"ds_write_b8 v116, v{VONE} offset:{FL_ZF}")
    stamp2(a, 3)
    lp = newlabel("ZW")
    a(f"{lp}:")
    a(f"ds_read_b32 v44, v{VZ} offset:{FL_ZF}")
    for k in range(4):
        a(f"ds_read_b128 v[{60+4*k}:{63+4*k}], v117 offset:{1024*(k>>1) + 16*(k&1)}")
    a("ds_read_b64 v[76:77], v110 offset:2048")
    guard(a)
    a("s_waitcnt lgkmcnt(5)")
    a(f"v_cmp_ne_u32 vcc, s{S_ONES}, v44", f"s_cbranch_vccnz {lp}")
    def hsum(j):
        if j % 2 == 0: a(f"s_waitcnt lgkmcnt({4-j//2})")
        for e in range(2): a(f"v_dot2c_f32_bf16 v{X+2*j+e}, v{60+2*j+e}, v118")
    if SD2: hsum(0); hsum(1)
    for j in range(9):
        h = f"v[{X+2*j}:{X+2*j+1}]"
        if SD2:
            if j < 7: hsum(j + 2)
        else:
            if j % 2 == 0: a(f"s_waitcnt lgkmcnt({4-j//2})")
            a(f"v_perm_b32 v{60+2*j}, v{60+2*j}, v{60+2*j}, v118", f"v_perm_b32 v{61+2*j}, v{61+2*j}, v{61+2*j}, v118")
            a(f"v_pk_add_f32 {h}, v[{60+2*j}:{61+2*j}], {h}")
        if j == 0: a(f"v_pk_mul_f32 v[42:43], {h}, {h}", f"v_pk_mul_f32 v[44:45], {h}, v[{WU}:{WU+1}]")
        else:
            a(f"v_pk_fma_f32 v[42:43], {h}, {h}, v[42:43]", f"v_pk_fma_f32 v[44:45], {h}, v[{WU+2*j}:{WU+2*j+1}], v[44:45]")
            a(f"v_pk_add_f32 v[40:41], {h}, " + (f"v[{X}:{X+1}]" if j == 1 else "v[40:41]"))
    a("v_add_f32 v42, v42, v43", "v_add_f32 v44, v44, v45", "v_add_f32 v40, v40, v41")
    a("v_mov_b32 v41, v40", "v_permlane16_swap_b32 v42, v44", "v_permlane16_swap_b32 v40, v41")
    a("v_add_f32 v42, v42, v44", "v_add_f32 v40, v40, v41")
    for r in (8, 4, 2, 1):
        a(f"v_add_f32_dpp v42, v42, v42 row_ror:{r} {DPPM}", f"v_add_f32_dpp v40, v40, v40 row_ror:{r} {DPPM}")
    a(f"v_mul_f32 v40, {f32(1.0/576)}, v40", "v_mov_b32 v44, v42")
    a("v_cvt_pk_bf16_f32 v41, 0, v40", "v_mul_f32 v40, v40, v40")
    a("v_permlane16_swap_b32 v42, v44")
    a(f"v_mov_b32 v43, {f32(1.0/576)}", "v_fma_f32 v42, v42, v43, -v40", f"v_fma_f32 v44, -v41, v{WS_}, v44", "v_max_f32 v42, 0, v42")
    a(f"v_cvt_pk_bf16_f32 v42, 0, v42", f"v_add_f32 v42, {f32(1e-5)}, v42")
    a(f"v_cvt_pk_bf16_f32 v42, 0, v42", "v_sqrt_f32 v42, v42")
    a(f"v_cvt_pk_bf16_f32 v42, 0, v42", "v_rcp_f32 v42, v42")
    a("v_mul_f32 v60, v44, v42")
    a("v_cvt_pk_bf16_f32 v60, v60, v60")
    a("v_ashrrev_i32 v61, 31, v60", "v_or_b32 v61, 0x80000000, v61", f"s_mov_b32 s{T3_}, 0xffff0000", "v_xor_b32 v60, v60, v61", f"v_and_or_b32 v60, v60, s{T3_}, v98")
    if KD == 2:
        a("v_mov_b32 v61, v60", "v_permlane32_swap_b32 v60, v61", "s_mov_b64 exec, 1")
        a(f"buffer_store_dwordx2 v[60:61], v99, s[{R3}:{R3+3}], s{T5_} offen sc1")
        a(f"ds_write_b8 v116, v{VONE} offset:{FL_KCNT}")
    else:
        a("s_mov_b32 exec_lo, 1", "s_mov_b32 exec_hi, 1")
        if KD:
            a(f"buffer_store_dword v60, v99, s[{R3}:{R3+3}], s{T5_} offen sc1")
            a(f"ds_write_b8 v116, v{VONE} offset:{FL_KCNT}")
        else: a(f"ds_write_b32 v99, v60 offset:{C_KEY}")
    a("s_mov_b64 exec, -1")
    stamp2(a, 4)
    a(f"s_setprio {ENV('L2PRIO', 2)}")
    if XT:
        a("v_max_u32 v62, v60, v61", f"v_readfirstlane_b32 s{T4_}, v62", f"s_cmp_ge_u32 s{T4_}, 0xC1000000", f"s_cselect_b32 s{R2_+2}, s{R2_+2}, 0", f"s_cselect_b32 s{S_G}, 1, 0")
    for j in range(9):
        rnd2(a, X + 2 * j)
    ln_stats(a, X, 40, 42, 44, 46, 48)
    for j in range(9):
        ln_apply_pair(a, X + 2 * j, 40, 42, 44, 10 + j)
        a(f"v_pk_add_f32 v[{X+2*j}:{X+2*j+1}], v[44:45], v[{X+2*j}:{X+2*j+1}]")
        if XCL != 2: a(f"v_min_u32 v{10+j}, -2, v{10+j}")
    a(f"v_cvt_pk_bf16_f32 v58, v{X+16}, v{X+17}")
    a("ds_write_b32 v108, v18", "ds_write_b32 v108, v58 offset:256", "ds_read_b128 v[64:67], v109")
    a(f"buffer_store_dwordx4 v[10:13], v115, s[{R2_}:{R2_+3}], 0 offen sc1")
    a(f"buffer_store_dwordx4 v[14:17], v115, s[{R2_}:{R2_+3}], 0 offen offset:512 sc1")
    for j in range(8):
        a(f"v_cvt_pk_bf16_f32 v{50+j}, v{X+2*j}, v{X+2*j+1}")
    a("s_mov_b64 exec, 0xffff")
    a("s_waitcnt lgkmcnt(0)")
    a(f"buffer_store_dwordx4 v[64:67], v111, s[{R2_}:{R2_+3}], 0 offen offset:1024 sc1")
    def out_st():
        a("s_mov_b64 exec, 0xffff0000")
        a(f"buffer_store_dwordx4 v[64:67], v111, s[{R1}:{R1+3}], 0 offen offset:1024 sc1")
        a("s_mov_b64 exec, -1")
        a(f"buffer_store_dwordx4 v[50:53], v115, s[{R1}:{R1+3}], 0 offen sc1")
        a(f"buffer_store_dwordx4 v[54:57], v115, s[{R1}:{R1+3}], 0 offen offset:512 sc1")
    WTD, BS0, BS1, BC0, BC1 = 80, 8, 9, 10, 11
    def b_addr():
        srd(a, R4, P_WS, PART_BYTES, WS_PART)
        a("v_bfe_u32 v16, v1, 2, 2", "v_lshl_add_u32 v16, v3, 3, v16", "v_mul_u32_u24 v16, 1152, v16", "v_and_b32 v17, 3, v1", "v_lshl_add_u32 v16, v17, 3, v16")
        a(f"s_lshl_b32 s{BC0}, s{S_WAVE}, 7", f"s_add_u32 s{BC1}, s{BC0}, {C_DOWN}", f"v_add_u32 v16, s{BC1}, v16")
        a("v_lshrrev_b32 v18, 2, v1", f"v_mul_u32_u24 v18, {PROW}, v18", "v_lshl_add_u32 v18, v17, 4, v18")
        a(f"s_mul_i32 s{BS1}, s{S_WAVE}, {16*PROW}", f"s_lshl_b32 s{BC1}, s{S_BLK}, 6", f"s_add_u32 s{BS1}, s{BS1}, s{BC1}")
        a(f"v_lshl_add_u32 v19, v17, 5, s{BC0}", "v_lshl_add_u32 v19, v3, 3, v19")
        a(f"s_mul_i32 s{BS0}, s{S_BLK}, {PROW}", f"s_lshl_b32 s{BC1}, s{S_WAVE}, 10", f"s_add_u32 s{BS0}, s{BS0}, s{BC1}")
        a(f"s_movk_i32 s{BC0}, 0x3f80", f"s_mov_b32 s{BC1}, 0x3f800000", "v_mov_b32 v28, 0", "v_mov_b32 v29, 0", "v_lshlrev_b32 v17, 4, v1")
    def b_frags():
        lds_wait(a, FL_DOWN, 20, "b4", sleep=ENV("BFS", 2))
        for jt in range(4):
            a(f"ds_read_b64_tr_b16 v[{WTD+4*jt}:{WTD+4*jt+1}], v16 offset:{32*jt}")
            a(f"ds_read_b64_tr_b16 v[{WTD+4*jt+2}:{WTD+4*jt+3}], v16 offset:{32*jt + 4608}")
        a("v_and_b32 v16, 7, v2", "v_lshlrev_b32 v16, 6, v16", "v_lshl_add_u32 v16, v3, 4, v16")
    a("s_mov_b64 exec, -1", "s_setprio 0")
    b_addr()
    a(f"s_cmp_ge_u32 s{S_FI}, 18", "s_cbranch_scc1 KS_LO")
    b_frags()
    def own_blank():
        a(f"s_mul_i32 s{T0_}, s{S_BLK}, {PROW}", f"s_add_u32 s{T0_}, s{T0_}, {hex(WS_PART)}", f"s_add_u32 s{R0}, s{P_WS}, s{T0_}", f"s_addc_u32 s{R0+1}, s{P_WS+1}, 0")
        a(f"s_cmp_lt_u32 s{S_FI}, 18", f"s_cselect_b32 s{R0+2}, 9216, 0", f"s_mov_b32 s{R0+3}, 0x20000", f"s_mul_i32 s{T0_}, s{S_WAVE}, 3072", "v_lshlrev_b32 v8, 4, v1")
        for d in range(4): a(f"v_mov_b32 v{60+d}, -1")
        for k in range(3): a(f"buffer_store_dwordx4 v[60:63], v8, s[{R0}:{R0+3}], s{T0_} offen offset:{1024*k} sc1")
    def flag(cnt, off):
        l = newlabel("NOF")
        a("s_waitcnt vmcnt(0)")
        a("s_mov_b64 exec, 1")
        a(f"ds_add_rtn_u32 v62, v{VZ}, v{VONE} offset:{cnt}")
        a(f"s_lshl_b32 s{T0_}, s2, 4", f"s_add_u32 s{T0_}, s{T0_}, {off}")
        a("s_waitcnt lgkmcnt(0)")
        a("v_cmp_eq_u32 vcc, 3, v62", "s_and_b64 exec, exec, vcc", f"s_cbranch_execz {l}")
        a(f"buffer_store_dword v{VONE}, v{VZ}, s[{R3}:{R3+3}], s{T0_} offen sc1")
        a(f"{l}:")
        a("s_mov_b64 exec, -1")
    if F3:
        if ENV("OD1", 0): a(f"s_sleep {ENV('OD1', 0)}")
        own_blank()
        flag(FL_KSEEN, 8192)
        a(f"s_sleep {ENV('OD2', 16)}", "s_branch KS_LO2")
        a("KS_LO:")
        a(f"s_sleep {ENV('OD3', 8)}")
        flag(FL_KSEEN, 8192)
        if RP:
            a(f"s_sub_u32 s{T1_}, s{S_FI}, 18", f"s_lshl_b32 s{T1_}, s{T1_}, 2", f"s_add_u32 s{T1_}, s{T1_}, s{S_WAVE}", f"s_cmp_ge_u32 s{T1_}, 32", "s_cbranch_scc1 KS_RPN")
            a(f"s_lshl_b32 s{T1_}, s{T1_}, 8", "v_lshlrev_b32 v8, 2, v1", "v_lshlrev_b32 v9, 7, v2", f"v_add_u32 v9, {2047*1152}, v9", f"s_movk_i32 s{T4_}, -1152")
            a(f"s_sleep {ENV('RPD', 8)}")
            a(f"buffer_load_dword v60, v8, s[{R3}:{R3+3}], s{T1_} offen sc1", "s_waitcnt vmcnt(0)", "v_add_u32 v60, 1, v60")
            for n in range(RP):
                if n: a("v_cmp_eq_u32 vcc, v60, v61", f"v_cndmask_b32 v60, v60, v{VZ}, vcc")
                for r in (8, 4, 2, 1): a(f"v_max_u32_dpp v61, v{60 if r == 8 else 61}, v{60 if r == 8 else 61} row_ror:{r} {DPPM}")
                a("v_add_u32 v62, -1, v61", "v_and_b32 v62, 0x7ff, v62", f"v_mad_i32_i24 v62, v62, s{T4_}, v9")
                a("s_mov_b32 exec_lo, 0x01ff01ff", "s_mov_b32 exec_hi, 0x01ff01ff")
                a(f"buffer_load_dword v63, v62, s[{R2_}:{R2_+3}], 0 offen sc1")
                a("s_mov_b64 exec, -1")
            if ENV("RPE", 2): a(f"s_sleep {ENV('RPE', 2)}")
            a("s_branch KS_LO2", "KS_RPN:")
        a(f"s_sleep {ENV('OD', 34) - ENV('OD3', 8) - 2}")
        a("KS_LO2:")
        out_st()
    else:
        a(f"s_sleep {ENV('OD', 24) - ENV('ODF', 2)}", "s_branch KS_LO2")
        a("KS_LO:")
        a(f"s_sleep {ENV('OD', 24)}")
        a("KS_LO2:")
        out_st()
        if not BT: own_blank()
    stamp2(a, 5)
    a("s_setprio 2")
    flag(FL_F2CNT, 12288 if F3 else 8192)
    stamp2(a, 2)
    a(f"s_cmp_lt_u32 s{S_FI}, 18", "s_cbranch_scc1 KS_B")
    a("s_waitcnt lgkmcnt(0)")
    endwave(a)
    a("KS_T:")
    a("s_setprio 0")
    a(f"s_cmp_ge_u32 s{S_WAVE}, 10", "s_cbranch_scc1 KS_PEND")
    srd(a, R3, P_WS, 16384, WS_KEYS)
    a(f"s_cmp_eq_u32 s{S_WAVE}, 9", "s_cbranch_scc1 KS_W9")
    b_addr()
    srd(a, R2_, P_WS, XBYTES, WS_X2)
    TGV, CKA = 8, 12
    a("v_and_b32 v6, 1, v1", "v_and_b32 v7, 1, v3", "v_lshl_add_u32 v6, v7, 1, v6", "v_lshlrev_b32 v6, 2, v6", f"ds_read_b32 v{TGV}, v6 offset:{FL_NONCE}")
    a(f"s_lshl_b32 s{T0_}, s{S_WAVE}, 11", f"s_add_u32 s{T0_}, s{T0_}, {C_XR - 4*2048}", f"v_add_u32 v{CKA}, s{T0_}, v17")
    a("s_waitcnt lgkmcnt(0)")
    for d in range(1, 4): a(f"v_lshrrev_b32 v{TGV+d}, {3*d}, v{TGV}")
    def chk(c, t):
        a(f"v_xor_b32 v{t}, v{TGV}, v{c}")
        for d in range(1, 4): a(f"v_bitop3_b32 v{t}, v{t}, v{TGV+d}, v{c+d} bitop3:0xf6")
        a(f"v_and_b32 v{t}, {hex(TAGM)}, v{t}")
    a(f"s_cmp_eq_u32 s{S_WAVE}, 8", "s_cbranch_scc1 KS_L2W")
    b_frags()
    lds_wait(a, C_SEL, 20, "nz", sleep=2)
    a("s_setprio 1")
    lds_wait(a, FL_XRDY, 20, "nz", sleep=1)
    a(f"ds_read_b128 v[20:23], v{CKA}", f"ds_read_b128 v[24:27], v{CKA} offset:1024")
    a("s_waitcnt lgkmcnt(1)"); chk(20, 13)
    a("s_waitcnt lgkmcnt(0)"); chk(24, 14)
    a("v_min_u32 v13, v13, v14")
    a("KS_CK:")
    a("v_cmp_eq_u32 vcc, 0, v13")
    if not ENV("XBAD", 0): a("s_cbranch_vccz KS_B")
    a(f"ds_write_b32 v{VZ}, v{VONE} offset:{FL_BAD}")
    a("s_branch KS_B")
    a("KS_L2W:")
    K, AD, BS, A1, A2, B1, B2, TA, TB, M2, OFF, OLD, C, T8, RA = 96, 40, 41, 42, 43, 44, 45, 46, 47, 56, 57, 58, 59, 60, 61
    x, y, w, t = (48, 49), (50, 51), (52, 53), (54, 55)
    a(f"s_movk_i32 s{T0_}, 4096", f"s_movk_i32 s{T4_}, -1152", f"s_mov_b32 s{T1_}, 0", f"v_mov_b32 v{OFF}, 0")
    a(f"v_and_b32 v{BS}, 1, v1", f"v_lshl_add_u32 v{BS}, v3, 1, v{BS}", f"v_lshlrev_b32 v{BS}, 4, v{BS}", f"v_add_u32 v{BS}, {2047*1152}, v{BS}")
    a("v_lshlrev_b32 v7, 1, v1", "v_and_b32 v7, 28, v7")
    if ENV("KWP", 1): lds_wait(a, FL_ZF, 20, "b4", sleep=2); a("s_setprio 3")
    lds_wait(a, FL_KCNT, 20, "b4", sleep=1)
    a("s_setprio 3")
    if ENV('KDELAY', 27): a(f"s_sleep {ENV('KDELAY', 27)}")
    stamp2(a, 4)
    a("s_branch KS_Q1", "KS_Q0:", f"s_sleep {ENV('KSLEEP', 1)}", "KS_Q1:")
    for j in range(8): a(f"buffer_load_dwordx4 v[{K+4*j}:{K+4*j+3}], v17, s[{R3}:{R3+3}], {'s%d' % T0_ if j >= 4 else 0} offen offset:{1024*(j&3)} sc1")
    guard(a)
    top2(a, K, A1, A2, B1, B2, TA, TB, x[0], x[1], True)
    a(f"v_cmp_eq_u32 vcc, -1, v{x[0]}", f"v_mov_b32 v{M2}, v{x[1]}")
    a("KS_QN:")
    net8(a, x, y, w, t, C, lambda: (a("s_cbranch_vccnz KS_Q0", f"s_cmp_eq_u32 s{T1_}, 1", f"s_mov_b32 m0, {C_XR}"), stamp2(a, 1)))
    a("s_cbranch_scc1 KS_QF2")
    a(f"v_and_b32 v{RA}, 0x7ff, v{C}", f"v_mad_i32_i24 v{RA}, v{RA}, s{T4_}, v{BS}")
    def row_dma(first=True):
        for k in range(9):
            if k or first: a(f"s_mov_b32 m0, {C_XR + 896*k}")
            a(f"buffer_load_dwordx4 v{RA}, s[{R2_}:{R2_+3}], 0 offen offset:{128*k} sc1 lds")
    if ENV("XBAD", 0) != 2: row_dma(False)
    stamp2(a, 2)
    mins = ["quad_perm:[2,3,0,1]", "row_half_mirror", "row_ror:8"]
    for k in range(32):
        a(f"v_sub_u32 v{K+k}, v{K+k}, v{M2}")
        if k % 4 == 0 and k < 12: a(f"v_min_u32_dpp v{T8}, v{T8 if k else C}, v{T8 if k else C} {mins[k//4]} {DPPM}")
        if k == 2: a(f"v_max3_u32 v{TB}, v{K}, v{K+1}, v{K+2}")
        elif k > 2 and k % 2 == 0: a(f"v_max3_u32 v{TB}, v{TB}, v{K+k-1}, v{K+k}")
    a(f"v_add_u32 v{OFF}, v{OFF}, v{M2}", f"v_max_u32 v{TB}, v{TB}, v{K+31}", f"v_add_u32 v{TB}, v{TB}, v{OFF}")
    a(f"v_cmp_gt_u32 vcc, v{TB}, v{T8}", "s_cbranch_vccnz KS_QF1")
    a(f"ds_write_b32 v7, v{C} offset:{C_SEL}")
    b_frags()
    a("s_waitcnt vmcnt(0)")
    a(f"ds_write_b32 v{VZ}, v{VONE} offset:{FL_XRDY}")
    stamp2(a, 3)
    a("s_setprio 1")
    a(f"ds_read_b128 v[20:23], v{CKA}")
    a("s_waitcnt lgkmcnt(0)"); chk(20, 13)
    a("s_branch KS_CK")
    a("KS_QF1:")
    guard(a)
    a(f"v_mov_b32 v{OLD}, v{C}")
    top2(a, K, A1, A2, B1, B2, TA, TB, x[0], M2, False)
    a(f"v_add_u32 v{x[0]}, v{x[0]}, v{OFF}", f"v_add_u32 v{x[1]}, v{M2}, v{OFF}", f"s_mov_b32 s{T1_}, 1", "s_mov_b64 vcc, 0")
    a.flush(3)
    a("s_branch KS_QN")
    a("KS_QF2:")
    a(f"v_mov_b32 v{x[0]}, 0", f"v_mov_b32 v{x[1]}, 0", "s_mov_b64 exec, 0x5555")
    a(f"v_max_u32 v{x[0]}, v{C}, v{OLD}", f"v_min_u32 v{x[1]}, v{C}, v{OLD}", "s_mov_b64 exec, -1", f"s_mov_b32 s{T1_}, 2", "s_mov_b64 vcc, 0", "s_waitcnt vmcnt(0)")
    a.flush(6)
    a("s_branch KS_QN")
    f2l = lambda d, ad, so: [f"buffer_load_dword v{d+k}, v{ad}, s[{R3}:{R3+3}], s{so} offen offset:{1024*k} sc1" for k in range(4)]
    a("KS_BR:")
    a("s_mov_b64 exec, -1")
    a(f"s_cmp_lg_u32 s{S_WAVE}, 8", "s_cbranch_scc1 KS_BR1")
    a(f"s_movk_i32 s{T0_}, 0x2000")
    a.flush(8)
    zpoll(a, f2l(20, 17, T0_), [20, 21, 22, 23], 2)
    row_dma()
    a("s_waitcnt vmcnt(0)")
    a("s_barrier")
    a(f"ds_write_b32 v{VZ}, v{VZ} offset:{FL_BAD}")
    a("s_branch KS_B")
    a("KS_BR1:")
    a("s_barrier")
    a("s_branch KS_B")
    a("KS_W9:")
    a("v_lshlrev_b32 v33, 4, v1", f"s_movk_i32 s{T0_}, 0x2000", "v_and_b32 v7, 7, v1", "v_lshlrev_b32 v7, 2, v7")
    srd(a, R0, P_WS, 0x240000, WS_ZB1)
    srd(a, R1, P_X, XBYTES)
    a("v_bfe_u32 v43, v1, 3, 2", f"s_lshl_b32 s{T1_}, s{S_BLK}, 2", f"v_add_u32 v43, s{T1_}, v43")
    a("v_bfe_u32 v40, v43, 4, 1", "v_and_b32 v41, 3, v1", "v_lshl_add_u32 v40, v40, 2, v41", "v_lshlrev_b32 v40, 2, v40")
    a("v_and_b32 v41, 0x3cf, v43", "v_bfe_u32 v42, v43, 5, 1", "v_lshl_add_u32 v41, v42, 4, v41", "v_bfe_u32 v42, v1, 2, 1", "v_lshl_add_u32 v41, v42, 5, v41")
    a("v_lshrrev_b32 v42, 4, v41", "v_lshlrev_b32 v42, 8, v42", "v_lshl_add_u32 v42, v40, 3, v42", "v_and_b32 v43, 15, v41", "v_lshl_add_u32 v42, v43, 1, v42")
    lds_wait(a, C_SEL, 12, "nz", addr=7, sleep=1)
    stamp2(a, 2)
    a(f"ds_read_b32 v19, v40 offset:{C_SEL}")
    a("s_waitcnt lgkmcnt(0)")
    a("v_and_b32 v14, 0x7ff, v19", "v_sub_u32 v14, 2047, v14")
    a("v_mul_u32_u24 v23, 1152, v14", "v_lshl_add_u32 v23, v41, 1, v23")
    a(f"buffer_load_ushort v17, v23, s[{R1}:{R1+3}], 0 offen")
    a("v_lshrrev_b32 v15, 9, v14", "v_bfe_u32 v16, v14, 6, 2", "v_lshl_add_u32 v15, v15, 2, v16", "v_bfe_u32 v16, v14, 2, 2", "v_lshl_add_u32 v15, v15, 2, v16")
    a("v_bfe_u32 v16, v14, 4, 1")
    a("v_bfe_u32 v24, v14, 8, 1", "v_and_b32 v25, 3, v14", "v_lshl_add_u32 v24, v24, 2, v25", "v_lshlrev_b32 v24, 1, v24")
    a("v_bfe_u32 v25, v14, 5, 1", "v_lshl_add_u32 v24, v25, 5, v24")
    a("v_lshl_add_u32 v25, v15, 1, v16", "v_lshl_add_u32 v25, v25, 14, v24")
    a("v_lshrrev_b32 v26, 1, v41", "v_lshl_add_u32 v25, v26, 6, v25", "v_xor_b32 v26, v41, v16", "v_not_b32 v26, v26", "v_and_b32 v26, 1, v26", "v_lshl_add_u32 v25, v26, 4, v25")
    a("v_lshl_add_u32 v26, v15, 12, v24", "v_lshl_add_u32 v26, v16, 4, v26", "v_lshl_add_u32 v26, v41, 6, v26", f"v_add_u32 v26, {0x200000 - 512*64}, v26")
    if SWZ:
        a("v_lshl_add_u32 v27, v16, 6, v15", "v_lshlrev_b32 v27, 7, v27", "v_xor_b32 v25, v27, v25", "v_and_b32 v27, 0xf80, v27", "v_xor_b32 v26, v27, v26")
    a("v_cmp_gt_u32 vcc, 0x200, v41", "v_cndmask_b32 v25, v26, v25, vcc")
    a(f"buffer_load_ushort v18, v25, s[{R0}:{R0+3}], 0 offen sc1")
    a("v_ashrrev_i32 v22, 31, v19", "v_not_b32 v22, v22", "v_or_b32 v22, 0x80000000, v22", "v_xor_b32 v22, v19, v22", "v_and_b32 v22, 0xffff0000, v22")
    a(f"v_mul_f32 v22, {f32(-LOG2E)}, v22", "v_exp_f32 v22, v22", "v_add_f32 v22, 1.0, v22", "v_rcp_f32 v22, v22")
    a(f"v_cvt_pk_bf16_f32 v22, 0, v22")
    srd(a, R2_, P_WS, 64, WS_IDX)
    srd(a, R1, P_OUT, XBYTES)
    if F3:
        for l in f2l(8, 33, T0_): a(l)
    a("s_cmp_lg_u32 s2, 0", "s_cbranch_scc1 KS_W9B")
    if ENV("IDXW", 1): a(f"buffer_store_dword v12, v7, s[{R2_}:{R2_+3}], 0 offen")
    a("s_branch KS_W9B")
    a("KS_W9R:")
    a("s_barrier")
    a("KS_W9B:")
    a("s_barrier")
    a(f"ds_read_b32 v13, v{VZ} offset:{FL_BAD}", f"ds_read_u16 v20, v42 offset:{C_XR}")
    if ENV("F2D", 0): a(f"s_sleep {ENV('F2D', 0)}")
    a("s_waitcnt lgkmcnt(0)")
    a("v_cmp_ne_u32 vcc, 0, v13", "s_cbranch_vccnz KS_W9R")
    a("s_setprio 2")
    if F3:
        a("s_branch KS_F3B", "KS_F3A:", f"s_sleep {ENV('F2SLEEP', 2)}")
        for l in f2l(8, 33, T0_): a(l)
        a("KS_F3B:")
        guard(a)
        a("s_waitcnt vmcnt(0)", "v_max3_u32 v44, v8, v9, v10", "v_max_u32 v44, v44, v11", "v_cmp_eq_u32 vcc, -1, v44", "s_cbranch_vccnz KS_F3A")
        a(f"ds_write_b32 v{VZ}, v{VONE} offset:{FL_ROWSOK}")
        stamp2(a, 1)
        a(f"s_movk_i32 s{T0_}, 0x3000", f"s_sleep {ENV('F3D', 12)}")
        zpoll(a, f2l(8, 33, T0_), [8, 9, 10, 11], ENV("F2SLEEP", 2))
    else:
        zpoll(a, f2l(8, 33, T0_), [8, 9, 10, 11], ENV("F2SLEEP", 2))
        a(f"ds_write_b32 v{VZ}, v{VONE} offset:{FL_ROWSOK}")
        stamp2(a, 1)
    a("v_lshlrev_b32 v17, 16, v17", "v_lshlrev_b32 v18, 16, v18", "v_add_f32 v17, v17, v18", "v_cvt_pk_bf16_f32 v17, v17, v17")
    a("v_and_b32 v21, 0xffff0000, v17", "v_lshlrev_b32 v20, 16, v20")
    a("v_lshlrev_b32 v14, 2, v1", f"v_add_u32 v14, {C_SIDE}, v14", "s_mov_b32 exec_lo, -1", "s_mov_b32 exec_hi, 0", "s_setprio 3")
    stamp2(a, 3)
    a("s_barrier")
    for g in range(4): a(f"ds_read2_b32 v[{32+2*g}:{33+2*g}], v14 offset0:{64*g} offset1:{64*g + 32}")
    a("ds_read_b32 v40, v14 offset:1024")
    a("s_waitcnt lgkmcnt(3)", "v_pk_add_f32 v[32:33], v[32:33], v[34:35]")
    a("s_waitcnt lgkmcnt(1)", "v_pk_add_f32 v[36:37], v[36:37], v[38:39]", "v_add_f32 v32, v32, v33")
    a("s_waitcnt lgkmcnt(0)", "v_add_f32 v36, v36, v37", "v_add_f32 v32, v32, v40", "v_add_f32 v8, v32, v36")
    a(f"v_cvt_pk_bf16_f32 v8, 0, v8")
    a("v_mul_f32 v8, v8, v22", f"v_cvt_pk_bf16_f32 v8, 0, v8")
    a("v_add_f32 v8, v8, v20", f"v_cvt_pk_bf16_f32 v8, 0, v8")
    a("v_add_f32 v8, v8, v21", "v_cvt_pk_bf16_f32 v8, v8, v8")
    a(f"buffer_store_short v8, v23, s[{R1}:{R1+3}], 0 offen {MOD('FM', '')}")
    endwave(a)
    a("KS_B:")
    a(f"s_setprio {ENV('BPRIO', 2)}")
    a("s_waitcnt lgkmcnt(0)")
    a("s_barrier")
    a(f"ds_read_b128 v[20:23], v16 offset:{C_ACT}", f"ds_read_b32 v30, v{VZ} offset:{FL_BAD}")
    a("s_waitcnt lgkmcnt(1)")
    for j in (0, 2, 1, 3):
        a(f"v_mfma_f32_16x16x32_bf16 v[{32+4*j}:{35+4*j}], v[20:23], v[{WTD+4*j}:{WTD+4*j+3}], 0")
    a("s_waitcnt lgkmcnt(0)")
    a("v_cmp_ne_u32 vcc, 0, v30")
    for hi in range(2):
        a(f"s_mov_b32 exec_lo, {hi - 1}", f"s_mov_b32 exec_hi, {-hi}")
        if hi == 0: a("s_cbranch_vccnz KS_BR")
        for d in range(4):
            o = 32 + 4 * hi + 8 * (d >> 1) + 2 * (d & 1)
            a(f"v_cvt_pk_bf16_f32 v{24+d}, v{o}, v{o+1}")
    a("s_mov_b64 exec, -1")
    for d in range(4): a(f"v_min_u32 v{24+d}, -2, v{24+d}")
    a(f"buffer_store_dwordx4 v[24:27], v17, s[{R4}:{R4+3}], s{BS0} offen sc1")
    stamp2(a, 8)
    a(f"s_sleep {PE}")
    if not BT: lds_wait(a, FL_ROWSOK, 30, "nz")
    stamp2(a, 6)
    zpoll(a, [f"buffer_load_dwordx4 v[32:35], v18, s[{R4}:{R4+3}], s{BS1} offen sc1"], list(range(32, 36)), ENV("PSLEEP", 1))
    stamp2(a, 7)
    a("v_permlane32_swap_b32 v32, v34", "v_permlane32_swap_b32 v33, v35")
    a("v_permlane16_swap_b32 v32, v33", "v_permlane16_swap_b32 v34, v35")
    for d in range(4): a(f"v_dot2c_f32_bf16 v28, s{BC0}, v{32+d}", f"v_dot2c_f32_bf16 v29, s{BC1}, v{32+d}")
    for r in (8, 4): a(f"v_add_f32_dpp v28, v28, v28 row_ror:{r} {DPPM}", f"v_add_f32_dpp v29, v29, v29 row_ror:{r} {DPPM}")
    a("s_mov_b32 exec_lo, 0x000f000f", "s_mov_b32 exec_hi, 0x000f000f")
    a(f"ds_write_b64 v19, v[28:29] offset:{C_SIDE}")
    a("s_waitcnt lgkmcnt(0)")
    a("s_barrier")
    endwave(a)
    a("KS_G0:")
    a(f"ds_write_b8 v15, v{VONE} offset:{FL_G+4}")
    a("s_setprio 0")
    if RM: a(f"s_cmp_ge_u32 s{S_FI}, 18", "s_cbranch_scc1 KS_X5")
    a("KS_G:")
    a("s_waitcnt vmcnt(0)")
    a("KS_GN:")
    stamp(a, 5)
    a(f"s_sub_u32 s{S_G}, s{S_WAVE}, 12", f"s_and_b32 s{T3_}, s{S_G}, 1")
    a(f"s_cselect_b32 s{R2_}, s{P_UP}, s{P_GATE}", f"s_cselect_b32 s{R2_+1}, s{P_UP+1}, s{P_GATE+1}", f"s_mov_b32 s{R2_+2}, {hex(WBYTES)}", f"s_mov_b32 s{R2_+3}, 0x20000")
    a("v_lshrrev_b32 v6, 3, v1", "v_lshrrev_b32 v7, 5, v1", "v_xor_b32 v6, v6, v7", "v_and_b32 v6, 1, v6", f"v_lshl_add_u32 v6, s{T3_}, 1, v6", "v_xor_b32 v6, v6, v1", "v_and_b32 v6, 3, v6")
    a("v_lshrrev_b32 v7, 2, v1", "v_mul_u32_u24 v7, 9216, v7", "v_lshl_add_u32 v46, v6, 4, v7", f"s_lshl_b32 s{T4_}, s{S_BLK}, 6", f"v_mov_b32 v6, s{S_G}")
    a(f"s_mul_i32 s{T5_}, s{T3_}, 36864", f"s_add_u32 s{T5_}, s{T5_}, {C_GU}")
    srd(a, R1, P_DOWN, WBYTES)
    a("v_lshlrev_b32 v8, 4, v1", f"s_mul_i32 s{T0_}, s{S_BLK}, 36864", f"s_mul_i32 s{T1_}, s{S_G}, 9216", f"s_add_u32 s{T0_}, s{T0_}, s{T1_}", f"s_add_u32 s{T1_}, s{T1_}, {C_DOWN}")
    a(f"s_cmp_lt_u32 s{S_I}, 8", f"s_cselect_b32 s{T2_}, 0, {FL_UTOK - (FL_G + 36)}", f"v_mov_b32 v9, s{T2_}")
    lds_wait(a, FL_G + 36, 10, "b4", addr=9, sleep=2)
    a(f"s_cmp_ge_u32 s{S_I}, 8", "s_cselect_b64 vcc, -1, 0", "s_cbranch_scc1 KS_GD1" if NDE == 9 else "s_cbranch_scc1 KS_GD0")
    DSL = ENV("DSL", -1)
    if DR: a("s_branch KS_GD1")
    if DSL >= 0:
        a(f"s_cmp_lt_u32 s{S_G}, 2", "s_cbranch_scc1 KS_GD1")
        a(f"s_mul_i32 s{T0_}, s{S_BLK}, 36864", f"s_mul_i32 s{T1_}, s{T3_}, 18432", f"s_add_u32 s{T0_}, s{T0_}, s{T1_}", f"s_add_u32 s{T1_}, s{T1_}, {C_DOWN}")
    if ENV("DUW", 0): lds_wait(a, {1: FL_UISS, 2: FL_UF}[ENV("DUW", 0)], 10, "b4", sleep=2)
    for k in range(18 if DSL >= 0 else 9):
        if k == NDE: a("KS_GD0:")
        if k % 4 == 0 or k == NDE:
            a(f"s_add_u32 m0, s{T1_}, {1024*(k&~3)}", f"s_add_u32 s{T2_}, s{T0_}, {1024*(k&~3)}")
        a(f"buffer_load_dwordx4 v8, s[{R1}:{R1+3}], s{T2_} offen offset:{1024*(k&3)} {MOD('DM', 'nt')} lds")
        if DSL > 0: a(f"s_sleep {DSL}")
    a("KS_GD1:")
    GP = ENV("GP", 0)
    if GP == 1:
        a(f"s_lshr_b32 s{T0_}, s{S_G}, 1", f"s_xor_b32 s{T0_}, s{T0_}, s{S_BLK}", f"s_and_b32 s{T0_}, s{T0_}, 1", f"s_mul_i32 s{T1_}, s{T0_}, {288*9216}", f"s_add_u32 s{T4_}, s{T4_}, s{T1_}")
        a(f"s_mul_i32 s{T1_}, s{T0_}, 18432", f"s_add_u32 s{T5_}, s{T5_}, s{T1_}")
    a(f"s_cmp_ge_u32 s{S_G}, 2", "s_cbranch_scc1 KS_GL")
    def direct(n, sl):
        for k in range(n):
            if k: a(f"s_add_u32 s{T4_}, s{T4_}, {16*9216}")
            a(f"buffer_load_dwordx4 v[{GW+4*k}:{GW+4*k+3}], v46, s[{R2_}:{R2_+3}], s{T4_} offen {MOD('GMOD', 'nt')}")
            if ENV("GSK", 0) and n == 18:
                if k + 1 == ENV("GSK", 0): lds_wait(a, FL_UF, 10, "b4", sleep=2)
                elif k < n - 1 and ENV("GSA" if k < ENV("GSK", 0) else "GSB", 2): a(f"s_sleep {ENV('GSA' if k < ENV('GSK', 0) else 'GSB', 2)}")
            elif ENV("GSI", -1) >= 0 and k < n - 1:
                l = newlabel("GS")
                if ENV("GSI", -1): a(f"s_sleep {ENV('GSI', -1)}")
                a(f"s_cbranch_vccz {l}", f"s_sleep {sl - ENV('GSI', -1)}", f"{l}:")
            elif ENV("GZP", 0) and n == 18 and ENV("GZK", 8) <= k < n - 1:
                l = newlabel("GZ")
                a(f"s_sleep {sl - 2}", f"ds_read_b32 v10, v{VZ} offset:{FL_S6}", "s_waitcnt lgkmcnt(0)", f"v_and_b32 v10, {hex(ENV('GZM', 0x7fffffff))}, v10", "v_cmp_eq_u32 vcc, 0, v10", f"s_cbranch_vccnz {l}")
                lds_wait(a, {1: FL_ZDONE + 4, 2: FL_ZF}[ENV("GZP", 0)], 10, "b4")
                a(f"{l}:")
            elif n == 18 and k < n - 1 and os.environ.get("GSLL"):
                v = eval(os.environ["GSLL"])[k]
                if v: a(f"s_sleep {v}")
            elif sl and k < n - 1: a(f"s_sleep {sl}")
        a(f"v_add_u32 v8, s{T5_}, v8")
        a("s_waitcnt vmcnt(0)")
        a(f"ds_write_b8 v6, v{VONE} offset:{FL_DOWN}")
        stamp(a, 7)
        lds_wait(a, FL_ZISS if ENV("GDI", 0) and n != 18 else FL_ZDONE + 4, 10, "b4", sleep=2)
    GM2 = ENV("GM2", 9)
    if GP == 2:
        a(f"s_and_b32 s{T0_}, s{S_BLK}, 1", f"s_mul_i32 s{T1_}, s{T0_}, {GM2*16*9216}", f"s_sub_u32 s{T2_}, s{T4_}, s{T1_}", f"s_add_u32 s{T4_}, s{T4_}, s{T1_}", f"s_add_u32 s{T2_}, s{T2_}, {GM2*16*9216}")
        a(f"s_mul_i32 s{T1_}, s{T0_}, {GM2*1024}", f"v_add_u32 v8, s{T5_}, v8", f"v_subrev_u32 v9, s{T1_}, v8", f"v_add_u32 v8, s{T1_}, v8")
        for k in range(18):
            t = T4_ if k < GM2 else T2_
            if k not in (0, GM2): a(f"s_add_u32 s{t}, s{t}, {16*9216}")
            a(f"buffer_load_dwordx4 v[{GW+4*k}:{GW+4*k+3}], v46, s[{R2_}:{R2_+3}], s{t} offen {MOD('GMOD', '') if k < GM2 else MOD('GMOD2', '')}")
            if k < GM2 and ENV("GTCH", 0): a(f"buffer_load_dword v47, v46, s[{R2_}:{R2_+3}], s{t} offen sc1")
            sl = ENV("GS1", 8) if k < GM2 - 1 else ENV("GSM", 8) if k == GM2 - 1 else ENV("GS2", 2) if k < 17 else 0
            if k == GM2 - 1 and ENV("GSU", 0): lds_wait(a, FL_UF, 10, "b4", sleep=2)
            if sl: a(f"s_sleep {sl}")
        a("s_waitcnt vmcnt(0)")
        a(f"ds_write_b8 v6, v{VONE} offset:{FL_DOWN}")
        stamp(a, 7)
        lds_wait(a, FL_ZDONE + 4, 10, "b4", sleep=2)
        for k in range(18): a(f"ds_write_b128 v{8 if k < GM2 else 9}, v[{GW+4*k}:{GW+4*k+3}] offset:{1024*k}")
    else:
        direct(18, GSL)
        if ENV("GWW", 2): lds_wait(a, {1: FL_ZF, 2: FL_KCNT}[ENV("GWW", 2)], 10, "b4", sleep=2)
        if ENV("GWD", 0): a(f"s_sleep {ENV('GWD', 0)}")
        for k in range(18): a(f"ds_write_b128 v8, v[{GW+4*k}:{GW+4*k+3}] offset:{1024*k}")
    a("s_branch KS_G4")
    a("KS_GL:")
    if GP != 1: a(f"s_add_u32 s{T4_}, s{T4_}, {288*9216}", f"s_add_u32 s{T5_}, s{T5_}, 18432")
    if ENV("GED", 0): a(f"s_sleep {ENV('GED', 0)}")
    direct(GE, ENV("GSL2", GSL * 18 // max(GE, 1)))
    if ENV("GLD", 0): a(f"s_sleep {ENV('GLD', 0)}")
    if ENV("GLZ", 2):
        if ENV("GLZ", 2) in (2, 4): a(f"s_cmp_ge_u32 s{S_I}, 8", "s_cbranch_scc1 KS_GLZ")
        if ENV("GLZ", 2) == 5: a(f"s_lshl_b32 s{T0_}, s{S_G}, 5", f"s_add_u32 s{T0_}, s{T0_}, s{S_I}", f"s_sub_u32 s{T0_}, s{T0_}, {64 + 8}", f"s_cmp_lt_u32 s{T0_}, 24", "s_cbranch_scc1 KS_GLZ")
        lds_wait(a, FL_ZF if ENV("GLZ", 2) <= 2 else FL_KCNT, 10, "b4" if ENV("GLZM", 1) else "nz", sleep=ENV("GLZS", 2))
        a("KS_GLZ:")
    a(f"s_setprio {ENV('GLP', 1)}")
    if GP == 2 and GM2 > 9:
        assert not GE
        a(f"s_and_b32 s{T0_}, s{S_BLK}, 1", f"s_mul_i32 s{T1_}, s{T0_}, {GM2*16*9216}", f"s_sub_u32 s{T2_}, s{T4_}, s{T1_}", f"s_mul_i32 s{T1_}, s{T0_}, {GM2*1024}", f"s_sub_u32 s{T3_}, s{T5_}, s{T1_}")
        for k in range(18):
            g, l = (T2_, T3_) if k < 2 * GM2 - 18 else (T4_, T5_)
            a(f"s_add_u32 m0, s{l}, {1024*k}", f"s_add_u32 s{T0_}, s{g}, {16*9216*k}")
            a(f"buffer_load_dwordx4 v46, s[{R2_}:{R2_+3}], s{T0_} offen lds")
    else:
        for k in range(GE, 18):
            j = k - GE
            if j % 4 == 0: a(f"s_add_u32 m0, s{T5_}, {1024*k}")
            if k: a(f"s_add_u32 s{T4_}, s{T4_}, {16*9216 - (1024 if j else 0) + (4096 if j and j % 4 == 0 else 0)}")
            a(f"buffer_load_dwordx4 v46, s[{R2_}:{R2_+3}], s{T4_} offen offset:{1024*(j&3)} {MOD('GLM', '')} lds")
            if ENV("GLS", 0) and k < 17 and (k + 1) % ENV("GLN", 1) == 0: a(f"s_sleep {ENV('GLS', 0)}")
    stamp(a, 6)
    a("s_setprio 0")
    for k in range(GE): a(f"ds_write_b128 v8, v[{GW+4*k}:{GW+4*k+3}] offset:{1024*k}")
    a("s_waitcnt vmcnt(0)")
    stamp(a, 8)
    a("KS_G4:")
    a(f"ds_write_b8 v6, v{VONE} offset:{FL_GISS}")
    a("v_lshrrev_b32 v6, 3, v1", "v_xor_b32 v6, v6, v3", "v_and_b32 v6, 1, v6", "v_and_b32 v7, 2, v1", "v_or_b32 v6, v6, v7", f"v_xor_b32 v6, s{S_G}, v6")
    a("v_mul_u32_u24 v7, 18432, v7", "v_lshl_add_u32 v7, v6, 4, v7", "v_and_b32 v6, 1, v1", "v_lshl_add_u32 v7, v6, 3, v7")
    a("v_bfe_u32 v6, v1, 2, 2", "v_lshl_add_u32 v6, v3, 3, v6", "v_lshl_add_u32 v7, v6, 6, v7", f"v_add_u32 v8, {C_GU}, v7")
    a("v_and_b32 v9, 7, v1", "v_lshrrev_b32 v10, 1, v3", "v_and_b32 v11, 1, v3")
    a("v_lshlrev_b32 v6, 5, v9", "v_lshl_add_u32 v6, v10, 8, v6", "v_lshl_add_u32 v6, v11, 4, v6", f"v_add_u32 v6, {C_XR}, v6")
    a(f"s_lshl_b32 s{T0_}, s{S_G}, 4", f"v_lshl_add_u32 v7, v9, 6, s{T0_}", "v_lshl_add_u32 v7, v11, 3, v7", "v_lshl_add_u32 v7, v10, 2, v7", "v_bfe_u32 v9, v1, 3, 1", "v_lshl_add_u32 v7, v9, 1, v7")
    lds_wait(a, FL_GISS, 10, "b4", sleep=2)
    lds_wait(a, FL_KCNT, 10, "b4", sleep=2)
    if ENV("GTD", 2): a(f"s_sleep {ENV('GTD', 2)}")
    for ks in range(18):
        for i in range(2): a(f"ds_read_b64_tr_b16 v[{GW+4*ks+2*i}:{GW+4*ks+2*i+1}], v8 offset:{2048*ks + 256*i}")
    stamp2(a, 3)
    lds_wait(a, C_SEL, 10, "nz", sleep=2)
    a(f"s_setprio {ENV('GPRIO', 3)}")
    NB, N0, GA, NACC = 10, ENV("GN0", 4), 120, ENV("NACC", 2)
    XF = lambda ks: 8 + 4 * (ks % NB)
    a("KS_GC:")
    a("s_mov_b32 exec_lo, 0x00ff00ff", "s_mov_b32 exec_hi, 0x00ff00ff")
    a("KS_GW:")
    tr = LdsTrack(a); ids = {}
    a(f"ds_read_b32 v0, v{VZ} offset:{FL_XRDY}")
    rd = lambda ks: ids.__setitem__(ks, tr.issue(f"ds_read_b128 v[{XF(ks)}:{XF(ks)+3}], v6 offset:{512*ks}"))
    for ks in range(N0): rd(ks)
    guard(a)
    a(f"s_waitcnt lgkmcnt({N0})")
    a("v_cmp_eq_u32 vcc, 0, v0", "s_cbranch_vccnz KS_GW")
    stamp2(a, 1)
    nx = N0
    for ks in range(18):
        tr.wait(ids[ks])
        ac = GA + 4 * (ks % NACC)
        a(f"v_mfma_f32_16x16x32_bf16 v[{ac}:{ac+3}], v[{GW+4*ks}:{GW+4*ks+3}], v[{XF(ks)}:{XF(ks)+3}], " + ("0" if ks < NACC else f"v[{ac}:{ac+3}]"))
        for _ in range(2):
            if nx < 18 and nx - NB <= ks: rd(nx); nx += 1
    a("s_mov_b64 exec, -1")
    if NACC == 2: a(f"v_pk_add_f32 v[{GA}:{GA+1}], v[{GA}:{GA+1}], v[{GA+4}:{GA+5}]", f"v_pk_add_f32 v[{GA+2}:{GA+3}], v[{GA+2}:{GA+3}], v[{GA+6}:{GA+7}]")
    a(f"v_permlane32_swap_b32 v{GA+1}, v{GA+3}", f"v_permlane32_swap_b32 v{GA}, v{GA+2}")
    a(f"v_mov_b32_dpp v{GA}, v{GA+1} row_shr:8 row_mask:0xf bank_mask:0xc ; nodst", f"v_mov_b32_dpp v{GA+2}, v{GA+3} row_shr:8 row_mask:0xf bank_mask:0xc ; nodst")
    g_, u_, t_ = GA, GA + 2, GA + 1
    a(f"v_cvt_pk_bf16_f32 v{g_}, 0, v{g_}", f"v_mul_f32 v{t_}, {f32(-LOG2E)}, v{g_}", f"v_exp_f32 v{t_}, v{t_}", f"v_cvt_pk_bf16_f32 v{u_}, 0, v{u_}", f"v_add_f32 v{t_}, 1.0, v{t_}", f"v_rcp_f32 v{t_}, v{t_}", f"v_mul_f32 v{t_}, v{g_}, v{t_}")
    a(f"v_cvt_pk_bf16_f32 v{t_}, 0, v{t_}")
    a(f"v_mul_f32 v{t_}, v{t_}, v{u_}", f"v_cvt_pk_bf16_f32 v{t_}, v{t_}, v{t_}")
    a(f"ds_write_b16 v7, v{t_} offset:{C_ACT}")
    stamp2(a, 2)
    a("s_waitcnt lgkmcnt(0)")
    a("s_barrier")
    a("s_setprio 0")
    a(f"ds_read_b32 v0, v{VZ} offset:{FL_BAD}")
    a("s_waitcnt lgkmcnt(0)")
    a("v_cmp_eq_u32 vcc, 0, v0", "s_cbranch_vccnz KS_PEND")
    a("s_barrier")
    a("s_branch KS_GC")
    a("KS_PEND:")
    stamp_end(a)
    spin_end(a)
    a("KS_ABORT:")
    a("KS_END:")
    a("s_endpgm")
    return f""".amdhsa_kernel {label}
  .amdhsa_next_free_vgpr 128
  .amdhsa_next_free_sgpr {NSGPR}
  .amdhsa_accum_offset 128
  .amdhsa_group_segment_fixed_size 0
  .amdhsa_kernarg_size 136
  .amdhsa_user_sgpr_count 2
  .amdhsa_user_sgpr_kernarg_segment_ptr 1
  .amdhsa_system_sgpr_workgroup_id_x 1
  .amdhsa_float_denorm_mode_32 3
.end_amdhsa_kernel
"""

def main():
    hdr = open(f"/code/{NAME}.s.ref").read().split("; Override launch geometry")[0]
    out = hdr
    out += f"; @launch grid=(256,1,1) block=(1024,1,1) lds={LDS_BYTES}\n"
    out += '.amdgcn_target "amdgcn-amd-amdhsa--gfx950"\n.text\n'
    a = Asm()
    d = gen(a)
    out += a.text()
    out += '.section .rodata,"a"\n.p2align 6\n' + d
    path = sys.argv[1] if len(sys.argv) > 1 else "ks.s"
    open(path, "w").write(out)
    print("wrote", path, len(out))

if __name__ == "__main__":
    main()
```

```python
import sys, struct, math, os
sys.path.insert(0, "gen")
from asmlib import Asm

NAME = "sequential_preLN__ssm_conv_s4__moe_arch_mod__prompt"
L, D, N, F = 2048, 576, 128, 4608
XBYTES = L * D * 2
WS_UT = 0x000000
WS_X2 = 0x3C0000
WS_ZB1 = 0x600000
WS_ZB2 = 0x800000
WS_KEYS = 0x840000
WS_PART = 0x850000
WS_CLR, CLR_WG = 0x600000, 18560
CLRP_WG = 23744
WS_FLAG1 = 0xB00000
TAGM = 0x00070007
WS_IDX = 0xB10000
WS_KT = 0xB20000
WS_DBG = 0xC00000
XCL = int(os.environ.get("XCL", "2"))
if XCL == 1: WS_CLR, CLR_WG = WS_X2, 36992
if XCL == 2: WS_X2 = WS_UT
if int(os.environ.get("NOCLR", "0")): WS_CLR, CLR_WG = WS_ZB2, 2176
WSB = int(os.environ.get("WSB", "0")) << 20
WS_UT += WSB; WS_X2 += WSB; WS_ZB1 += WSB; WS_ZB2 += WSB; WS_KEYS += WSB; WS_PART += WSB; WS_CLR += WSB; WS_FLAG1 += WSB; WS_IDX += WSB; WS_KT += WSB
WS_STAMP = 0x8000000
PART_BYTES = 144 * (4608 * 4 + 128)
C_FL, C_CAND, C_SEL, C_KEY, C_PAR, C_ACT, C_SIDE, C_RED2 = 0, 256, 768, 800, 832, 1024, 1536, 2048
C_U, U_SIZE = 3072, 4672
C_LNB = C_U + 3 * U_SIZE
C_XR = C_LNB
C_RED = C_LNB + 9280
G_BASE, G_SIZE = 35840, 36672
C_STG = G_BASE + 2 * G_SIZE + 36864
LDS_BYTES = C_STG + 8192
FL_LN1, FL_LNACK, FL_KCNT, FL_UF, FL_ZF, FL_KACK, FL_ROWSOK, FL_XRDY, FL_PARAM, FL_DOWN, FL_ZDONE = 0, 8, 12, 16, 20, 24, 28, 32, 36, 40, 48
FL_G = 64
FL_S6 = 160
FL_ZISS = 240
FL_F2CNT, FL_INIT, FL_CLROK, FL_GISS, FL_KSEEN, FL_UTOK, FL_PRE, FL_NONCE = 176, 180, 188, 192, 196, 200, 208, 224
KG_ROW = 544
KG_T = [0, 16 * KG_ROW, 32 * KG_ROW, 41 * KG_ROW]
R_WS3 = 0
R_WS5 = R_WS3 + 193 * 16
R_WS7 = R_WS5 + 193 * 16
R_WS9 = R_WS7 + 128 * 16
R_RED = 10752
R2 = 31232
T_TAB = R2
T_DRE = R2 + 1296
T_DRO = T_DRE + 1280 + 64
T_G3 = T_DRO + 1280
T_G5 = T_G3 + 256
T_G7E = T_G5 + 256
T_G7O = T_G7E + 192
T_G9E = T_G7O + 192
T_G9O = T_G9E + 192
assert T_G9O + 192 <= G_SIZE and R_WS9 + 129 * 16 <= R_RED and R_RED + 13 * 1024 <= R2 and 57 * KG_ROW <= R2
IDX_ZERO, IDX_DUMMY = 641, 642
C_DOWN = G_BASE + 2 * G_SIZE

def f32(x): return "0x%08x" % struct.unpack("<I", struct.pack("<f", x))[0]
def f32v(x): return struct.unpack("<f", struct.pack("<f", x))[0]
LOG2E = math.log2(math.e)
LOG2E_HI = f32v(LOG2E); LOG2E_LO = LOG2E - LOG2E_HI
INV2PI = 1.0 / (2 * math.pi)
INV2PI_HI = f32v(INV2PI); INV2PI_LO = INV2PI - INV2PI_HI
DPPM = "row_mask:0xf bank_mask:0xf"
ENV = lambda k, d: int(os.environ.get(k, str(d)))
STAMP = ENV("STAMP", 0)
DBG = ENV("DBG", 0)
GUARD = 1 << 19
XP = ENV("XP", 0)
KOFF = ENV("KOFF", 1)
PTAG = ENV("PTAG", 1)
PE = ENV("PE", -1)
SN = ENV("SN", 0)
SWU = ENV("SWU", 1); SWZ = ENV("SWZ", 1); PROW = 18432 + 128 * ENV("SWP", 1)
MOD = lambda k, d="sc1": os.environ.get(k, d).replace("_", " ")

P_X, P_ARE, P_LDT, P_DSK, P_WR, P_GATE, P_UP, P_DOWN, P_OUT, P_DBG, P_WS = 4, 6, 18, 20, 24, 26, 28, 30, 32, 34, 36
S_WAVE, S_GUARD, S_XC, S_I = 38, 39, 40, 41
R0, R1, R2_, R3, R4 = 64, 68, 72, 76, 80
S_ONES, S_GB, S_ROLE, S_G, S_CH, S_BLK, S_B2 = 84, 85, 86, 87, 88, 89, 90
T0_, T1_, T2_, T3_, T4_, T5_ = 92, 93, 94, 95, 96, 97
SP0, SP1 = 98, 99
NSGPR = 100

def srd(a, d, base, nbytes, off=0):
    if off:
        a(f"s_add_u32 s{d}, s{base}, {hex(off)}", f"s_addc_u32 s{d+1}, s{base+1}, 0")
    else:
        a(f"s_mov_b32 s{d}, s{base}", f"s_mov_b32 s{d+1}, s{base+1}")
    a(f"s_mov_b32 s{d+2}, {hex(nbytes)}", f"s_mov_b32 s{d+3}, 0x20000")

def red16(a, op, v):
    for r in (8, 4, 2, 1):
        a(f"{op}_dpp v{v}, v{v}, v{v} row_ror:{r} {DPPM}")
def red32(a, op, v, t):
    red16(a, op, v)
    a(f"v_mov_b32 v{t}, v{v}", f"v_permlane16_swap_b32 v{v}, v{t}", f"{op} v{v}, v{v}, v{t}")
def red64x2(a, op1, v1, t1, op2, v2, t2):
    for r in (8, 4, 2, 1):
        a(f"{op1}_dpp v{v1}, v{v1}, v{v1} row_ror:{r} {DPPM}", f"{op2}_dpp v{v2}, v{v2}, v{v2} row_ror:{r} {DPPM}")
    for ins in ("v_permlane16_swap_b32", "v_permlane32_swap_b32"):
        a(f"v_mov_b32 v{t1}, v{v1}", f"v_mov_b32 v{t2}, v{v2}", f"{ins} v{v1}, v{t1}", f"{ins} v{v2}, v{t2}")
        a(f"{op1} v{v1}, v{v1}, v{t1}", f"{op2} v{v2}, v{v2}, v{t2}")

SPIN = eval(os.environ.get("SPIN", "None"))
def spin_rec(a, ph, i):
    if not SPIN or SPIN[1:] != (ph, i): return
    a("s_memrealtime s[46:47]")
def spin_end(a):
    if not SPIN: return
    lo, hi = eval(os.environ.get("SPINI", "(0,32)"))
    a("KS_SPIN:")
    if SPIN[2] == 9: a("s_memrealtime s[46:47]")
    a(f"s_sub_u32 s48, s{S_I}, {lo}", f"s_cmp_ge_u32 s48, {hi-lo}", "s_cbranch_scc1 KS_END")
    a(f"s_lshr_b32 s48, {hex(SPIN[0])}, s{S_WAVE}", "s_bitcmp1_b32 s48, 0", "s_cbranch_scc0 KS_END")
    a("s_mov_b64 exec, -1", "v_mov_b32 v4, 0")
    a("KS_SP0:")
    a(f"global_load_dword v8, v4, s[{P_DBG}:{P_DBG+1}] offset:64 sc1", "s_waitcnt vmcnt(0) lgkmcnt(0)", "v_readfirstlane_b32 s44, v8", "s_cmp_eq_u32 s44, 0", "s_cbranch_scc1 KS_SP0")
    if SPIN[2] == -1: a("s_mov_b32 s46, s44")
    a("s_sub_u32 s48, s46, s44", "s_add_u32 s48, s48, 200")
    if ENV("SPINMIN", 0): a(f"s_sub_u32 s48, {ENV('SPINMIN', 0)}, s48")
    a("s_min_u32 s48, s48, 3000", "s_lshl_b32 s48, s48, 2", "s_add_u32 s48, s48, 2000")
    a("SPINL:", "s_sleep 1", "s_memrealtime s[50:51]", "s_waitcnt lgkmcnt(0)", "s_sub_u32 s50, s50, s44", "s_cmp_lt_u32 s50, s48", "s_cbranch_scc1 SPINL")
def stamp_begin(a):
    if SPIN: a("s_memrealtime s[46:47]")
    if not STAMP: return
    a("s_memrealtime s[44:45]")
    for i in range(1, 9): a(f"s_mov_b32 s{44+2*i}, 0")
def cstamp(a, i):
    if STAMP == 9: a(f"s_memtime s[{44+2*i}:{45+2*i}]")
def kstamp(a, i):
    if STAMP == 7: a(f"s_memtime s[{44+2*i}:{45+2*i}]")
def stamp(a, i, ph=1):
    spin_rec(a, ph, i)
    if ph == 2 and STAMP not in (2, 3): return
    if STAMP == 7 and i == 1: return kstamp(a, 1)
    if not STAMP or STAMP in (7, 9): return
    assert 1 <= i <= 8
    a(f"{'s_memtime' if STAMP == 8 else 's_memrealtime'} s[{44+2*i}:{45+2*i}]")
def stamp2(a, i):
    stamp(a, i, 2)
def stamp_end(a):
    if not STAMP: return
    a("s_waitcnt vmcnt(0) lgkmcnt(0)")
    a("s_memrealtime s[62:63]")
    a(f"s_lshl_b32 s43, s2, 4", f"s_add_u32 s43, s43, s{S_WAVE}", "s_lshl_b32 s43, s43, 6", f"s_add_u32 s43, s43, {hex(WS_STAMP)}")
    a("s_mov_b64 exec, 1")
    a("s_waitcnt lgkmcnt(0)")
    a("v_mov_b32 v1, s43")
    for i in range(10): a(f"v_mov_b32 v{4+i}, s{44+2*i}")
    a(f"global_store_dwordx4 v1, v[4:7], s[{P_WS}:{P_WS+1}]")
    a(f"global_store_dwordx4 v1, v[8:11], s[{P_WS}:{P_WS+1}] offset:16")
    a(f"global_store_dwordx2 v1, v[12:13], s[{P_WS}:{P_WS+1}] offset:32")
def endwave(a):
    stamp_end(a)
    a("s_branch KS_SPIN" if SPIN else "s_endpgm")

def unpack(a, dst, src):
    a(f"v_lshlrev_b32 v{dst}, 16, v{src}", f"v_and_b32 v{dst+1}, 0xffff0000, v{src}")

def rnd2(a, t):
    a(f"v_cvt_pk_bf16_f32 v{t}, 0, v{t}", f"v_cvt_pk_bf16_f32 v{t+1}, 0, v{t+1}")

def ln_stats(a, X, m2, rinv2, t0, t1, t2):
    a(f"v_pk_add_f32 v[{t0}:{t0+1}], v[{X}:{X+1}], v[{X+2}:{X+3}]")
    a(f"v_pk_add_f32 v[{t1}:{t1+1}], v[{X+4}:{X+5}], v[{X+6}:{X+7}]")
    for j in range(4, 9):
        t = t0 if j % 2 == 0 else t1
        a(f"v_pk_add_f32 v[{t}:{t+1}], v[{t}:{t+1}], v[{X+2*j}:{X+2*j+1}]")
    a(f"v_pk_add_f32 v[{t0}:{t0+1}], v[{t0}:{t0+1}], v[{t1}:{t1+1}]")
    a(f"v_add_f32 v{t0}, v{t0}, v{t0+1}")
    red32(a, "v_add_f32", t0, t1)
    a(f"v_mul_f32 v{t2}, {f32(1.0/576)}, v{t0}")
    a(f"v_mov_b32 v{t2+1}, v{t2}")
    a(f"v_cvt_pk_bf16_f32 v{m2}, 0, v{t2}", f"v_cvt_pk_bf16_f32 v{m2+1}, 0, v{t2}")
    first = {t0: True, t1: True}
    for j in range(9):
        t = t0 if j % 2 == 0 else t1
        a(f"v_pk_add_f32 v[{rinv2}:{rinv2+1}], v[{X+2*j}:{X+2*j+1}], v[{t2}:{t2+1}] neg_lo:[0,1] neg_hi:[0,1]")
        if first[t]:
            a(f"v_pk_mul_f32 v[{t}:{t+1}], v[{rinv2}:{rinv2+1}], v[{rinv2}:{rinv2+1}]"); first[t] = False
        else:
            a(f"v_pk_fma_f32 v[{t}:{t+1}], v[{rinv2}:{rinv2+1}], v[{rinv2}:{rinv2+1}], v[{t}:{t+1}]")
    a(f"v_pk_add_f32 v[{t0}:{t0+1}], v[{t0}:{t0+1}], v[{t1}:{t1+1}]")
    a(f"v_add_f32 v{t0}, v{t0}, v{t0+1}")
    red32(a, "v_add_f32", t0, t1)
    a(f"v_mul_f32 v{t0}, {f32(1.0/576)}, v{t0}")
    a(f"v_cvt_pk_bf16_f32 v{t0}, 0, v{t0}")
    a(f"v_add_f32 v{t0}, {f32(1e-5)}, v{t0}")
    a(f"v_cvt_pk_bf16_f32 v{t0}, 0, v{t0}")
    a(f"v_sqrt_f32 v{t0}, v{t0}")
    a(f"v_cvt_pk_bf16_f32 v{t0}, 0, v{t0}")
    a(f"v_rcp_f32 v{rinv2}, v{t0}")
    a(f"v_mov_b32 v{rinv2+1}, v{rinv2}")

def ln_apply_pair(a, x, m2, rinv2, t, P):
    a(f"v_pk_add_f32 v[{t}:{t+1}], v[{x}:{x+1}], v[{m2}:{m2+1}] neg_lo:[0,1] neg_hi:[0,1]")
    rnd2(a, t)
    a(f"v_pk_mul_f32 v[{t}:{t+1}], v[{t}:{t+1}], v[{rinv2}:{rinv2+1}]")
    if P is not None: a(f"v_cvt_pk_bf16_f32 v{P}, v{t}, v{t+1}")
    rnd2(a, t)

VZ, VONE = 4, 5
_lbl = [0]
def newlabel(p="L"):
    _lbl[0] += 1
    return f"{p}_{_lbl[0]}"
def guard(a):
    a(f"s_sub_u32 s{S_GUARD}, s{S_GUARD}, 1", "s_cbranch_scc1 KS_ABORT")
def lds_wait(a, off, t, kind="b4", addr=VZ, sleep=0):
    l = newlabel("W")
    a(f"{l}:")
    if sleep: a(f"s_sleep {sleep}")
    if kind == "b8":
        a(f"ds_read_b64 v[{t}:{t+1}], v{addr} offset:{off}")
    else:
        a(f"ds_read_{'u8' if kind == 'u8' else 'b32'} v{t}, v{addr} offset:{off}")
    guard(a)
    a("s_waitcnt lgkmcnt(0)")
    if kind == "b8": a(f"v_and_b32 v{t}, v{t}, v{t+1}")
    if kind in ("nz", "u8"): a(f"v_cmp_eq_u32 vcc, 0, v{t}")
    else: a(f"v_cmp_ne_u32 vcc, s{S_ONES}, v{t}")
    a(f"s_cbranch_vccnz {l}")

def zpoll(a, loads, regs, sleep, mid=None):
    lp = newlabel("ZP"); l1 = newlabel("ZPE")
    if mid:
        for l in loads: a(l)
        a(mid)
    a(f"s_branch {l1}")
    a(f"{lp}:")
    a(f"s_sleep {sleep}")
    if not mid: a(f"{l1}:")
    for l in loads: a(l)
    if mid: a(f"{l1}:")
    guard(a)
    a("s_waitcnt vmcnt(0)")
    a(f"v_max3_u32 v44, v{regs[0]}, v{regs[1]}, v{regs[2]}")
    r = regs[3:]
    while len(r) >= 2: a(f"v_max3_u32 v44, v44, v{r[0]}, v{r[1]}"); r = r[2:]
    if r: a(f"v_max_u32 v44, v44, v{r[0]}")
    a("v_cmp_eq_u32 vcc, -1, v44", f"s_cbranch_vccnz {lp}")

class Pool:
    def __init__(self, regs): self.free = list(regs)
    def get(self): return self.free.pop(0)
    def put(self, r): self.free.append(r)
def ce_inlane(a, x, i, j, pool):
    t = pool.get()
    a(f"v_max_u32 v{t}, v{x[i]}, v{x[j]}", f"v_min_u32 v{x[j]}, v{x[i]}, v{x[j]}")
    pool.put(x[i]); x[i] = t
def clean8(a, x, pool, DE, rev=False):
    t = [pool.get() for _ in range(4)]
    for i in range(4):
        a(f"v_mov_b32_dpp v{t[i]}, v{x[3-i if rev else i]} quad_perm:[1,0,3,2] {DPPM}")
    for i in range(4):
        a(f"v_med3_u32 v{t[i]}, v{x[i]}, v{t[i]}, v{DE}")
    for i in range(4): pool.put(x[i]); x[i] = t[i]
    for (i, j) in ((0, 2), (1, 3), (0, 1), (2, 3)): ce_inlane(a, x, i, j, pool)
def merge_mirror(a, x, pool, M):
    c = [pool.get() for _ in range(4)]
    for i in range(4):
        a(f"v_max_u32_dpp v{c[i]}, v{x[3-i]}, v{x[i]} {M} {DPPM}")
    for i in range(4): pool.put(x[i]); x[i] = c[i]
def merge_pair(a, x, y, pool):
    for i in range(4):
        a(f"v_max_u32_dpp v{x[i]}, v{y[3-i]}, v{x[i]} quad_perm:[1,0,3,2] {DPPM}")
    for i in range(4): pool.put(y[i])
MIRRORS = ("quad_perm:[3,2,1,0]", "row_half_mirror", "row_mirror")

GW = 48
def g_addr_setup(a, A):
    a(f"s_sub_u32 s{S_G}, s{S_WAVE}, 12")
    a(f"s_mul_i32 s{T0_}, s{S_G}, 9", f"s_add_u32 s{T0_}, s{T0_}, 1", f"s_lshr_b32 s{S_ROLE}, s{T0_}, 1")
    a(f"s_lshl_b32 s{T0_}, s{S_ROLE}, 5", f"v_lshl_add_u32 v7, v3, 3, s{T0_}", "v_mul_u32_u24 v7, 9216, v7")
    a("v_and_b32 v6, 7, v2", "v_lshl_add_u32 v7, v6, 3, v7")
    a(f"s_lshl_b32 s{T0_}, s{S_BLK}, 6", f"v_add_u32 v7, s{T0_}, v7")
    a("v_cmp_gt_u32 vcc, 8, v2")
    a(f"s_mov_b32 s{R3}, 9216", f"s_mov_b32 s{R3+1}, 0", f"s_mov_b32 s{R3+2}, {9216*25}", f"s_mov_b32 s{R3+3}, 0")
    a(f"v_mov_b32 v{A}, s{P_GATE}", f"v_mov_b32 v{A+1}, s{P_GATE+1}", f"v_mov_b32 v6, s{P_UP}")
    a(f"v_cndmask_b32 v{A}, v6, v{A}, vcc", f"v_mov_b32 v6, s{P_UP+1}", f"v_cndmask_b32 v{A+1}, v6, v{A+1}, vcc")
    a(f"v_add_co_u32 v{A}, vcc, v{A}, v7", f"v_addc_co_u32 v{A+1}, vcc, 0, v{A+1}, vcc")
def g_loads(a, A, kss, mod=""):
    for ks in kss:
        for r in range(8):
            d = GW + 16 * ks + 2 * r
            a(f"global_load_dwordx2 v[{d}:{d+1}], v[{A}:{A+1}], off" + mod)
            if not (ks == 4 and r == 7):
                a(f"v_lshl_add_u64 v[{A}:{A+1}], v[{A}:{A+1}], 0, s[{R3 if r < 7 else R3+2}:{R3+1 if r < 7 else R3+3}]")
GTRIG = ENV("GTRIG", 2)
PF = ENV("PF", 1)
NL, NN, NC = ENV("NL", 0), ENV("NN", 0), ENV("NC", 4)
NE = ENV("NE", 0)
NLL = ENV("NLL", 0)
NL2 = ENV("NL2", 4)
PFB = ENV("PFB", 82)
assert not (PFB and NL)
NL3 = ENV("NL3", 0)
assert not (NL3 and NE)
PFA = PFB + 16 * NL + 16 * NE + 6 * NL3
PF0 = PFA + 10 * NLL + 6 * NL2
PF1 = PF0 + 8 * NN + 8 * NC
assert PF1 <= 166
PF2 = ENV("PF2", 166); PFD = ENV("PFD", 0); PFD2 = ENV("PFD2", 0)
GT = eval(os.environ.get("GT", "[0,0,6,6]")); DT = ENV("DT", 3)
RDMA = ENV("RDMA", 1)
DEA = ENV("DEA", 1)
DE = ENV("DE", 1)
def pf_ld(a, dst, v, R):
    for m in MOD("PFM", "nt;sc1").split(";"): a(f"buffer_load_dword v{dst}, v{v}, s[{R}:{R+3}], s{T4_} offen {m}")
def pf_lane(a, v, t):
    a(f"v_mul_u32_u24 v{v}, 57, v1", f"v_lshrrev_b32 v{v}, 9, v{v}", f"v_mul_u32_u24 v{t}, 9, v{v}", f"v_sub_u32 v{t}, v1, v{t}", f"v_mul_u32_u24 v{v}, 9216, v{v}", f"v_lshl_add_u32 v{v}, v{t}, 7, v{v}")
def pf_gu_setup(a, sidx, R=R2_, tb=T3_, tt=T4_):
    a(f"s_bitcmp1_b32 s{sidx}, 0", f"s_cselect_b32 s{R}, s{P_UP}, s{P_GATE}", f"s_cselect_b32 s{R+1}, s{P_UP+1}, s{P_GATE+1}")
    a(f"s_mov_b32 s{R+2}, {hex(D*F*2)}", f"s_mov_b32 s{R+3}, 0x20000")
    a(f"s_lshr_b32 s{tb}, s{sidx}, 1", f"s_mul_i32 s{tb}, s{tb}, {7*9216}", f"s_mul_i32 s{tt}, s{S_XC}, 1152", f"s_add_u32 s{tb}, s{tb}, s{tt}")
def pf_gu(a, v, sidx, nw, u0, u1, dst, done):
    assert u0 % 2 == 0 and nw % 2 == 0
    pf_gu_setup(a, sidx)
    k = 0
    while u0 + k * nw < u1:
        if u0 + (k + 1) * nw > u1: a(f"s_cmp_ge_u32 s{sidx}, {u1 - u0 - k*nw}", f"s_cbranch_scc1 {done}")
        a(f"s_add_u32 s{T4_}, s{T3_}, {(u0 + k*nw)//2*7*9216}")
        pf_ld(a, dst, v, R2_)
        k += 1
def pf_down(a, sidx, nw, u0, u1, v, dst, done, R=R2_):
    srd(a, R, P_DOWN, D * F * 2)
    a(f"s_lshl_b32 s{T3_}, s{sidx}, 13", f"s_mul_i32 s{T4_}, s{S_XC}, {576*1152}", f"s_add_u32 s{T3_}, s{T3_}, s{T4_}", f"v_lshlrev_b32 v{v}, 7, v1")
    k = 0
    while u0 + k * nw < u1:
        if u0 + (k + 1) * nw > u1: a(f"s_cmp_ge_u32 s{sidx}, {u1 - u0 - k*nw}", f"s_cbranch_scc1 {done}")
        a(f"s_add_u32 s{T4_}, s{T3_}, {(u0 + k*nw)*8192}")
        pf_ld(a, dst, v, R)
        k += 1
def gen_ln1(a):
    LW, TB = T5_, S_CH
    X, RAW = 8, 26
    a(f"s_sub_u32 s{T0_}, s{S_I}, 8", f"s_and_b32 s{TB}, s{T0_}, 7", f"s_lshr_b32 s{T0_}, s{T0_}, 3", f"s_lshl_b32 s{T0_}, s{T0_}, 4", f"s_add_u32 s{TB}, s{TB}, s{T0_}")
    a(f"s_and_b32 s{T0_}, s{S_XC}, 1", f"s_lshl_b32 s{T0_}, s{T0_}, 3", f"s_add_u32 s{TB}, s{TB}, s{T0_}", f"s_lshr_b32 s{T0_}, s{S_XC}, 1", f"s_lshl_b32 s{T0_}, s{T0_}, 5", f"s_add_u32 s{TB}, s{TB}, s{T0_}")
    a("v_lshrrev_b32 v36, 5, v1", "v_and_b32 v37, 31, v1")
    a("v_mul_u32_u24 v38, 1152, v36", "v_lshl_add_u32 v39, v37, 2, v38", "v_lshl_add_u32 v38, v37, 4, v38")
    a(f"s_mul_i32 s{T1_}, s{TB}, 18432", f"s_mul_i32 s{T2_}, s{LW}, 2304", f"s_add_u32 s{T1_}, s{T1_}, s{T2_}")
    a("s_waitcnt lgkmcnt(0)")
    stamp(a, 1)
    srd(a, R0, P_X, XBYTES)
    a(f"buffer_load_dwordx4 v[{RAW}:{RAW+3}], v38, s[{R0}:{R0+3}], s{T1_} offen")
    a(f"buffer_load_dwordx4 v[{RAW+4}:{RAW+7}], v38, s[{R0}:{R0+3}], s{T1_} offen offset:512")
    a(f"buffer_load_dword v{RAW+8}, v39, s[{R0}:{R0+3}], s{T1_} offen offset:1024")
    a("s_barrier")
    a(f"s_lshr_b32 s{T1_}, s{LW}, 2", f"s_lshl_b32 s{T1_}, s{T1_}, 6", f"s_add_u32 s{T2_}, s{T2_}, s{T1_}", f"s_add_u32 s{T2_}, s{T2_}, {C_LNB}")
    a(f"v_lshl_add_u32 v35, v37, 1, v36")
    a(f"s_mov_b32 s{SP0}, 0x05040100", f"s_mov_b32 s{SP1}, 0x07060302")
    def waits(n):
        for (c, js) in ((2, range(0, 4)), (1, range(4, 8)), (0, range(8, 9))):
            a(f"s_waitcnt vmcnt({c+n})")
            for j in js: unpack(a, X + 2 * j, RAW + j)
    l1 = newlabel("LN1A"); l2 = newlabel("LN1B")
    if NL:
        LW0 = ENV("NLW", 4)
        pf_lane(a, 46, 47)
        a(f"s_sub_u32 s{T1_}, s{LW}, {LW0}", f"s_and_b32 s{T1_}, s{T1_}, 7", f"s_lshl_b32 s{T3_}, s{T1_}, 4", f"s_add_u32 s{T3_}, s{T3_}, s{S_I}", f"s_sub_u32 s{T3_}, s{T3_}, 8")
        pf_gu_setup(a, T3_, R3, T4_, T0_)
    def dma_early(skip):
        a(f"s_cmp_lt_u32 s{LW}, 4", f"s_cbranch_scc1 {skip}", f"s_cmp_ge_u32 s{S_I}, 18", f"s_cbranch_scc1 {skip}")
        srd(a, R1, P_DOWN, F * D * 2)
        a("v_lshlrev_b32 v46, 4, v1", f"s_mul_i32 s{T0_}, s{S_BLK}, 36864", f"s_mul_i32 s{T1_}, s{LW}, 9216", f"s_add_u32 s{T0_}, s{T0_}, s{T1_}", f"s_sub_u32 s{T0_}, s{T0_}, {4*9216}", f"s_add_u32 s{T1_}, s{T1_}, {C_DOWN - 4*9216}")
        for k in range(9):
            if k % 4 == 0:
                a(f"s_add_u32 m0, s{T1_}, {1024*k}")
                if k: a(f"s_add_u32 s{T0_}, s{T0_}, 4096")
            a(f"buffer_load_dwordx4 v46, s[{R1}:{R1+3}], s{T0_} offen offset:{1024*(k&3)} {MOD('DM', 'nt')} lds")
    if DEA == 1:
        dma_early(l1)
        waits(9)
        a(f"s_branch {l2}")
        a(f"{l1}:")
        if NL3:
            l3 = newlabel("LN1C")
            a(f"s_sub_u32 s{T1_}, s{LW}, 4", f"s_cmp_ge_u32 s{T1_}, {NL3}", f"s_cbranch_scc1 {l3}")
            pf_lane(a, 46, 47)
            a(f"s_mul_i32 s{T1_}, s{T1_}, 6", f"s_add_u32 s{T1_}, s{T1_}, s{S_I}", f"s_add_u32 s{T3_}, s{T1_}, {PFB - 18}")
            pf_gu_setup(a, T3_, R3, T4_, T0_)
            pf_ld(a, 47, 46, R3)
            waits(len(MOD("PFM", "nt;sc1").split(';')))
            a(f"s_branch {l2}")
            a(f"{l3}:")
        waits(0)
        a.flush(2)
        a(f"{l2}:")
    elif DEA == 2:
        waits(0)
        dma_early(l1)
        a(f"{l1}:")
    elif NL and ENV("NLE", 0):
        a(f"s_cmp_lt_u32 s{T1_}, {NL}", f"s_cselect_b32 s{T4_}, s{T4_}, {hex(D*F*2)}")
        pf_ld(a, 47, 46, R3)
        waits(len(MOD("PFM", "nt;sc1").split(';')))
    else:
        waits(0)
    if NL and not ENV("NLE", 0):
        if ENV("X0", 0): a(f"s_cmp_eq_u32 s{S_XC}, 0", f"s_cbranch_scc1 {l1}")
        a(f"s_cmp_ge_u32 s{T1_}, {NL}", f"s_cbranch_scc1 {l1}")
        pf_ld(a, 47, 46, R3)
        a(f"{l1}:")
    stamp(a, 2)
    a(f"v_lshl_add_u32 v6, v35, 4, s{T2_}", f"v_lshl_add_u32 v7, v35, 2, s{T2_}")
    a(f"v_mul_u32_u24 v35, 0x20202, v36", "v_lshl_add_u32 v35, v36, 25, v35", "v_add_u32 v35, 0x05040100, v35")
    ln_stats(a, X, 36, 38, 40, 42, 44)
    for j in range(9):
        if j == ENV("DSAMP", 3):
            a("v_and_b32 v59, 3, v1", "v_lshlrev_b32 v59, 2, v59")
            if SN: a(f"s_load_dwordx4 s[{R3}:{R3+3}], s[{P_DBG}:{P_DBG+1}], 0" + (" glc" if SN == 2 else ""))
            else: a(f"global_load_dword v58, v59, s[{P_DBG}:{P_DBG+1}] sc1")
        ln_apply_pair(a, X + 2 * j, 36, 38, 40, None)
        a(f"v_cvt_pk_f16_f32 v{RAW+j}, v40, v41")
        if j in (3, 7):
            P = RAW + j - 3; O = X + 2 * (j - 3)
            a(f"v_permlane32_swap_b32 v{P}, v{P+2}", f"v_permlane32_swap_b32 v{P+1}, v{P+3}")
            a(f"v_perm_b32 v{O}, v{P+2}, v{P}, s{SP0}", f"v_perm_b32 v{O+1}, v{P+2}, v{P}, s{SP1}")
            a(f"v_perm_b32 v{O+2}, v{P+3}, v{P+1}, s{SP0}", f"v_perm_b32 v{O+3}, v{P+3}, v{P+1}, s{SP1}")
            a(f"ds_write_b128 v6, v[{O}:{O+3}] offset:{1024*(j//4)}")
    a(f"v_mov_b32 v40, v{RAW+8}", f"v_permlane32_swap_b32 v{RAW+8}, v40")
    a(f"v_perm_b32 v40, v40, v{RAW+8}, v35")
    a(f"ds_write_b32 v7, v40 offset:2048")
    a(f"v_mov_b32 v6, s{LW}")
    a(f"ds_write_b8 v6, v{VONE} offset:{FL_LN1}")
    a("s_setprio 0")
    a(f"s_cmp_ge_u32 s{LW}, 4", "s_cbranch_scc1 KS_X4")
    a("s_setprio 3")
    srd(a, R2_, P_WS, XBYTES, WS_UT)
    a("v_and_b32 v6, 1, v0", "v_mul_u32_u24 v6, 9280, v6", "v_lshrrev_b32 v7, 1, v0", "v_lshl_add_u32 v6, v7, 2, v6", f"v_add_u32 v6, {C_LNB}, v6")
    a("v_lshrrev_b32 v7, 2, v0", "v_mul_u32_u24 v7, 0x2080, v7" if SWU else "v_lshlrev_b32 v7, 13, v7", "v_and_b32 v8, 3, v0", "v_lshl_add_u32 v7, v8, 4, v7")
    a(f"s_lshl_b32 s{T0_}, s{TB}, 6")
    if SWU: a(f"v_xor_b32 v7, s{T0_}, v7", f"s_mov_b32 s{T0_}, 0")
    for k in range(1, 5): a(f"s_add_u32 s{T0_+k}, s{T0_}, {0x80000*k}")
    if SN:
        a("s_waitcnt lgkmcnt(0)")
        a(f"v_mov_b32 v58, s{R3}", f"v_mov_b32 v57, s{R3+1}", f"v_mov_b32 v56, s{R3+2}", f"v_mov_b32 v55, s{R3+3}")
        a("v_mov_b32_dpp v58, v57 quad_perm:[0,1,2,3] row_mask:0xf bank_mask:0xf" if 0 else "v_cmp_eq_u32 vcc, 4, v59", "v_cndmask_b32 v58, v58, v57, vcc", "v_cmp_eq_u32 vcc, 12, v59", "v_cndmask_b32 v56, v56, v55, vcc", "v_cmp_lt_u32 vcc, 4, v59", "v_cndmask_b32 v58, v58, v56, vcc")
        dbg_wait(a, 63)
    else: dbg_wait(a, 0)
    a(f"ds_write_b32 v59, v58 offset:{FL_NONCE}")
    a(f"s_mov_b32 s{SP0}, {hex(TAGM)}")
    for d in range(1, 4): a(f"v_lshrrev_b32 v{58-d}, {3*d}, v58")
    lds_wait(a, FL_LN1, 20, "b8")
    stamp(a, 3)
    for k in range(5):
        a(f"ds_read2st64_b32 v[{20+4*k}:{21+4*k}], v6 offset0:{2*k} offset1:{9+2*k}")
        a(f"ds_read2st64_b32 v[{22+4*k}:{23+4*k}], v6 offset0:{18+2*k} offset1:{27+2*k}")
    for k in range(5):
        a(f"s_waitcnt lgkmcnt({8-2*k})")
        for d in range(4): a(f"v_bfi_b32 v{20+4*k+d}, s{SP0}, v{58-d}, v{20+4*k+d}")
        a(f"buffer_store_dwordx4 v[{20+4*k}:{23+4*k}], v7, s[{R2_}:{R2_+3}], s{T0_+k} offen {MOD('USMOD')}")
    if DE: a(f"v_mov_b32 v6, s{LW}", f"ds_write_b8 v6, v{VONE} offset:{FL_UTOK}")
    stamp(a, 4)

def dbg_wait(a, n, vt=58, va=59):
    lp = newlabel("DBP"); go = newlabel("DBG")
    a(f"s_waitcnt vmcnt({n})")
    a(f"{lp}:")
    a(f"v_cmp_eq_u32 vcc, 0, v{vt}", f"s_cbranch_vccz {go}")
    a("s_sleep 1")
    a(f"global_load_dword v{vt}, v{va}, s[{P_DBG}:{P_DBG+1}] sc1")
    guard(a)
    a("s_waitcnt vmcnt(0)")
    a(f"s_branch {lp}")
    a(f"{go}:")

ROLE_TILES = {0: [0, 1, 2, 3, 4], 1: [0, 1, 2, 3, 4], 2: [5, 6, 7], 3: [5, 6, 7]}
ROLE_W = {2: 0, 3: 1, 1: 2}
ACC, DA, RING, WT = 16, 36, 76, 92
NRING = 4

def epi_plan():
    owner = {0: (0, 0), 1: (0, 1), 2: (1, 0), 3: (1, 1), 4: (1, 3), 5: (0, 2), 6: (0, 3), 7: (1, 2)}
    slots = {}
    cnt = [0, 0]
    for g in range(2):
        for role in range(4):
            for j in ROLE_TILES[role]:
                if owner[j] == (g, role): continue
                slots[(g, role, j)] = g * G_SIZE + R_RED + 1024 * cnt[g]; cnt[g] += 1
    assert max(cnt) <= 13, cnt
    ownerC = {0: 0, 1: 0, 2: 1, 3: 1, 4: 2, 5: 2, 6: 3, 7: 3}
    n = 0
    for role in range(4):
        for j in ROLE_TILES[role]:
            if ownerC[j] == role: continue
            slots[(2, role, j)] = 2 * G_SIZE + R_RED + 1024 * n; n += 1
    return owner, ownerC, slots

class LdsTrack:
    def __init__(self, a): self.a = a; self.n = 0; self.done = -1
    def issue(self, text): self.a(text); self.n += 1; return self.n - 1
    def wait(self, idx):
        k = self.n - 1 - idx
        if idx <= self.done: return
        self.done = idx
        if k <= 15: self.a(f"s_waitcnt lgkmcnt({k})")

CZ0, CZ1, CSH, CXR, CFL, SIS, CM, SM, SC, SSC, SDL = 6, 7, 8, 9, 10, 11, 12, 14, 15, 16, 18
IXR, LFR = (108, 109, 112, 113), (110, 111, 114, 115)
def stage_write(a, off):
    a("v_lshl_or_b32 v24, v25, 16, v24", "v_lshl_or_b32 v25, v27, 16, v26", f"ds_write_b64 v28, v[24:25] offset:{off}")
def pre_ixlf(a):
    end = newlabel("PX"); j1 = newlabel("PX"); j2 = newlabel("PX"); jn = newlabel("PX")
    a(f"s_cmp_eq_u32 s{S_ROLE}, 3", f"s_cbranch_scc1 {end}")
    a("v_lshlrev_b32 v26, 3, v2", "v_mov_b32 v21, 0x80")
    a(f"s_cmp_eq_u32 s{S_ROLE}, 1", f"s_cbranch_scc1 {j1}", f"s_cmp_eq_u32 s{S_ROLE}, 2", f"s_cbranch_scc1 {j2}")
    a("v_lshl_add_u32 v26, v3, 1, v26", "v_mov_b32 v22, 1")
    a(f"s_branch {jn}")
    a(f"{j1}:")
    a("v_cmp_gt_u32 vcc, 2, v3", "v_lshl_add_u32 v20, v3, 2, v26", "v_add_u32 v20, 256, v20", "v_lshl_add_u32 v26, v3, 8, v26", "v_cndmask_b32 v26, v26, v20, vcc")
    a("v_cndmask_b32 v22, v21, 2, vcc", "v_cndmask_b32 v21, 4, v21, vcc")
    a(f"s_branch {jn}")
    a(f"{j2}:")
    a("v_lshl_add_u32 v26, v3, 9, v26", "v_add_u32 v26, 0x400, v26", "v_mov_b32 v22, 0x100")
    a(f"{jn}:")
    a(f"v_mad_u32_u24 v26, v22, s{S_G}, v26", "v_add_u32 v27, v26, v21", f"s_movk_i32 s{T4_}, {T_TAB}", f"s_movk_i32 s{T5_}, {-(0x4280 + 0x800)}", f"s_lshl_b32 s{T3_}, s{S_G}, 9")
    for r in range(2): a(f"v_cvt_f32_u32 v{20+r}, v{26+r}", f"v_max_u32 v{22+r}, 0x800, v{26+r}")
    for r in range(2):
        a(f"v_cmp_gt_u32 vcc, 0x80, v{26+r}", f"v_lshrrev_b32 v{24+r}, 16, v{20+r}", f"v_add3_u32 v{24+r}, v{24+r}, v{22+r}, s{T5_}", f"v_cndmask_b32 v{24+r}, v{24+r}, v{26+r}, vcc")
    for r in range(2):
        a(f"v_min_u32 v{24+r}, {IDX_DUMMY}, v{24+r}", f"v_lshl_add_u32 v{24+r}, v{24+r}, 1, s{T4_}")
    a(f"v_add_u32 v29, s{T3_}, v28")
    a("v_lshl_or_b32 v24, v25, 16, v24", "v_lshl_or_b32 v25, v27, 16, v26", "ds_write_b64 v29, v[24:25]")
    a(f"{end}:")

def gen_group(a):
    RAW, VLDT, VDSK, VNT, VNA, VPR, VEM, VTE, VTL = 40, 46, 107, 104, 105, 106, 72, 126, 127
    I1, D2, I2, D1, D3 = 116, 119, 120, 124, 125
    a(f"s_lshl_b32 s{T0_}, s{S_CH}, 8", f"v_lshl_add_u32 v20, v1, 2, s{T0_}")
    a(f"s_lshl_b32 s{T0_}, s{S_CH}, 1", f"v_mov_b32 v21, s{T0_}")
    a(f"s_mul_i32 s{S_GB}, s{S_G}, {G_SIZE}", f"s_add_u32 s{S_GB}, s{S_GB}, {G_BASE}")
    a("s_waitcnt lgkmcnt(0)")
    stamp(a, 1)
    PL = ENV("PLATE", 0)
    if PL == 1: a(f"s_sub_u32 s{T0_}, s{S_I}, 8", f"s_cmp_ge_u32 s{T0_}, 16", "s_cbranch_scc1 KS_PL1", "s_barrier", "KS_PL1:")
    if PL == 2: a("s_barrier")
    a(f"global_load_ushort v{VLDT}, v21, s[{P_LDT}:{P_LDT+1}]")
    for k in range(6):
        a(f"global_load_dword v{RAW+k}, v20, s[{P_ARE+2*k}:{P_ARE+2*k+1}]")
    a(f"global_load_ushort v{VDSK}, v21, s[{P_DSK}:{P_DSK+1}]")
    if PL == 1: a("s_cbranch_scc0 KS_PL2")
    if PL != 2: a("s_barrier")
    if PL == 1: a("KS_PL2:")
    if ENV("UPW", 0):
        a(f"s_sub_u32 s{T0_}, s{S_I}, 8", f"s_cmp_ge_u32 s{T0_}, 16", "s_cbranch_scc1 KS_UPW", f"s_cmp_lg_u32 s{S_G}, 1", "s_cbranch_scc1 KS_UPW")
        TB = T5_
        a(f"s_and_b32 s{TB}, s{T0_}, 7", f"s_lshr_b32 s{T0_}, s{T0_}, 3", f"s_lshl_b32 s{T0_}, s{T0_}, 4", f"s_add_u32 s{TB}, s{TB}, s{T0_}")
        a(f"s_and_b32 s{T0_}, s{S_XC}, 1", f"s_lshl_b32 s{T0_}, s{T0_}, 3", f"s_add_u32 s{TB}, s{TB}, s{T0_}", f"s_lshr_b32 s{T0_}, s{S_XC}, 1", f"s_lshl_b32 s{T0_}, s{T0_}, 5", f"s_add_u32 s{TB}, s{TB}, s{T0_}")
        srd(a, R2_, P_WS, XBYTES, WS_UT)
        a(f"s_lshl_b32 s{T0_}, s{S_ROLE}, 4", "v_lshrrev_b32 v7, 2, v1", f"v_add_u32 v7, s{T0_}, v7", "v_mul_u32_u24 v7, 0x2080, v7", "v_and_b32 v8, 3, v1", "v_lshl_add_u32 v7, v8, 4, v7")
        a(f"s_lshl_b32 s{T0_}, s{TB}, 6", f"v_xor_b32 v7, s{T0_}, v7")
        for d in range(4): a(f"v_mov_b32 v{8+d}, 0")
        for k in range(5):
            a(f"s_mov_b32 s{T0_}, {0x80000*k}")
            a(f"buffer_store_dwordx4 v[8:11], v7, s[{R2_}:{R2_+3}], s{T0_} offen {MOD('UPWMOD')}")
        a.flush(2)
        a("KS_UPW:")
    a(f"s_movk_i32 s{T4_}, {T_TAB}")
    def dr_addr(dst, x, special=False):
        a(f"v_sub_u32 v30, 544, v{x}", "v_cvt_f32_i32 v31, v30", "v_cmp_gt_u32 vcc, 0x100, v30", "v_cvt_pk_bf16_f32 v31, v31, v31", "v_and_b32 v31, 0xffff, v31", "v_subrev_u32 v31, 0x4280, v31")
        a("v_cndmask_b32 v31, v31, v30, vcc", "v_cmp_lt_u32 vcc, 0x20d, v30")
        if special: a(f"v_or_b32 v30, 1, v{x}")
        a("v_cndmask_b32 v31, v31, v32, vcc")
        if special: a("v_cmp_eq_u32 vcc, 0x25d, v30", "v_cndmask_b32 v31, v31, v33, vcc")
        a(f"v_lshl_add_u32 v{dst}, v31, 1, s{T4_}")
    def g_addr(dst, y0, base, M):
        a(f"v_sub_u32 v30, {y0}, v23", f"v_cmp_lt_u32 vcc, {M}, v30", f"v_lshlrev_b32 v31, 2, v30", f"v_add_u32 v31, {T_TAB + 2*base}, v31", f"v_cndmask_b32 v{dst}, v31, v33, vcc")
    pb = newlabel("PREB"); pw = newlabel("PREW"); pe = newlabel("PREE")
    a(f"s_cmp_eq_u32 s{S_G}, 2", f"s_cbranch_scc1 {pe}")
    a(f"v_mov_b32 v32, {IDX_ZERO}")
    a(f"s_cmp_eq_u32 s{S_G}, 1", f"s_cbranch_scc1 {pb}")
    jl = [newlabel("PRE") for _ in range(4)]
    a(f"v_mov_b32 v33, {T_TAB + 2*IDX_ZERO}")
    for r in range(1, 4): a(f"s_cmp_eq_u32 s{S_ROLE}, {r}", f"s_cbranch_scc1 {jl[r]}")
    a("v_lshlrev_b32 v23, 1, v1")
    for e, (y0, base, M) in enumerate(((93, 389, 61), (92, 389, 61), (94, 388, 62), (93, 388, 62))): g_addr(24 + e, y0, base, M)
    a(f"s_branch {pw}")
    for r, base in ((1, 513), (2, 514)):
        a(f"{jl[r]}:")
        a("v_min_u32 v23, 47, v1", "v_lshlrev_b32 v23, 1, v23")
        for e, y0 in ((0, 64), (1, 63), (3, 62)): g_addr(24 + e, y0, base, 63)
        a("v_mov_b32 v26, v25")
        a(f"s_branch {pw}")
    a(f"{jl[3]}:")
    a("v_cmp_gt_u32 vcc, 9, v1", "v_add_u32 v23, 0x100, v1", "v_mov_b32 v33, 0x200", "v_cndmask_b32 v23, v23, v1, vcc", "v_lshlrev_b32 v23, 1, v23")
    for e in (0, 1, 3):
        if e: a("v_add_u32 v23, 1, v23")
        dr_addr(24 + e, 23, special=True)
    a("v_mov_b32 v26, v25")
    a(f"s_branch {pw}")
    a(f"{pb}:")
    a(f"s_lshl_b32 s{T1_}, s{S_ROLE}, 7", f"s_add_u32 s{T1_}, s{T1_}, 18", f"v_lshl_add_u32 v23, v1, 1, s{T1_}")
    for e in range(3):
        if e: a("v_add_u32 v23, 1, v23")
        dr_addr(24 + e, 23)
    a(f"s_sub_u32 s{T1_}, s{S_ROLE}, 1", f"s_cmp_lt_u32 s{T1_}, 2", f"s_cselect_b32 s{T2_}, 47, 63", f"s_mul_i32 s{T1_}, s{T1_}, {T_G9E - T_G7E}", f"s_add_u32 s{T1_}, s{T1_}, {T_G7E}")
    a(f"s_cmp_eq_u32 s{S_ROLE}, 0", f"s_cselect_b32 s{T1_}, {T_G3}, s{T1_}", f"s_cmp_eq_u32 s{S_ROLE}, 3", f"s_cselect_b32 s{T1_}, {T_DRE}, s{T1_}", f"s_cselect_b32 s{T3_}, 0x100, 0")
    a("v_cmp_gt_u32 vcc, 9, v1", f"v_min_u32 v23, s{T2_}, v1", f"v_add_u32 v30, s{T3_}, v23", "v_cndmask_b32 v23, v30, v23, vcc", f"v_lshl_add_u32 v27, v23, 2, s{T1_}")
    stage_write(a, 1024)
    a(f"v_mov_b32 v24, s{S_ROLE}", f"ds_write_b8 v24, v{VONE} offset:{FL_PRE + 4}")
    a(f"s_branch {pe}")
    a(f"{pw}:")
    stage_write(a, 1536)
    a(f"v_mov_b32 v24, s{S_ROLE}", f"ds_write_b8 v24, v{VONE} offset:{FL_PRE}")
    a(f"{pe}:")
    a(f"s_mul_i32 s{T1_}, s{S_ROLE}, {16*KG_ROW}", f"s_min_u32 s{T2_}, s{T1_}, {KG_T[3]}", f"s_add_u32 s{T2_}, s{T2_}, s{S_GB}")
    a(f"s_lshl_b32 s{T0_}, s{S_G}, 4", f"v_mov_b32 v14, s{T0_}", f"v_add_u32 v15, s{S_ROLE}, v14")
    a(f"v_lshl_add_u32 v{VEM}, v1, 3, s{T2_}")
    for k in range(1, 4): a(f"v_add_u32 v{VEM+k}, {4*KG_ROW*k}, v{VEM}")
    a(f"v_mul_u32_u24 v{VTE}, {KG_ROW}, v2", f"v_lshl_add_u32 v{VTE}, v3, 4, v{VTE}", f"v_add_u32 v{VTE}, s{S_GB}, v{VTE}", f"v_add_u32 v{VTL}, s{T1_}, v{VTE}")
    VDA, VDA2, VB_, VT8, VT16, VG8, VG16, VLN = 6, 7, 8, 9, 10, 11, 13, 12
    a("v_lshlrev_b32 v20, 3, v3", "v_sub_u32 v20, v20, v2", "v_add_u32 v21, 16, v20", "v_lshrrev_b32 v21, 1, v21")
    a("v_and_b32 v22, 1, v2", f"s_add_u32 s{T0_}, s{S_GB}, {T_DRE}", f"v_lshl_add_u32 v21, v21, 2, s{T0_}", f"s_movk_i32 s{T0_}, {T_DRO - T_DRE}", f"s_movk_i32 s{T2_}, {T_G7O - T_G7E}")
    a(f"v_mad_u32_u24 v{VDA}, v22, s{T0_}, v21", f"v_add_u32 v{VDA2}, 640, v{VDA}")
    a(f"v_mad_u32_u24 v23, v22, s{T2_}, v21", f"v_add_u32 v{VG16}, {T_G7E - T_DRE}, v23")
    a("v_lshlrev_b32 v23, 2, v3", "v_sub_u32 v23, v23, v2", f"s_add_u32 s{T0_}, s{S_GB}, {T_G3 + 60}", f"v_lshl_add_u32 v{VG8}, v23, 2, s{T0_}")
    a(f"s_mul_i32 s{T2_}, s{S_G}, {U_SIZE}", f"s_add_u32 s{T2_}, s{T2_}, {C_U}")
    a(f"v_lshl_add_u32 v23, v2, 5, s{T2_}", f"v_lshl_add_u32 v{VB_}, v3, 4, v23")
    a("v_bfe_u32 v20, v1, 2, 2", "v_and_b32 v21, 3, v1", "v_lshl_add_u32 v20, v3, 3, v20")
    a(f"v_lshlrev_b32 v{VNA}, 2, v21")
    a(f"v_lshl_add_u32 v21, v21, 3, s{S_GB}", f"v_lshl_add_u32 v{VT8}, v20, 4, v21", f"v_lshl_add_u32 v{VT16}, v20, 5, v21")
    a(f"v_lshlrev_b32 v{VLN}, 4, v1")
    srd(a, R0, P_WS, 0x240000, WS_ZB1)
    if SWZ: a(f"s_mov_b32 s{CFL}, 0x8080")
    a(f"s_lshl_b32 s{T0_}, s{S_ROLE}, 19", f"s_lshl_b32 s{T1_}, s{S_B2}, 6", f"s_add_u32 s{T0_}, s{T0_}, s{T1_}")
    a(f"s_lshl_b32 s{T1_}, s{S_ROLE}, 16", f"s_lshl_b32 s{T3_}, s{S_CH}, 6", f"s_add_u32 s{T1_}, s{T1_}, s{T3_}", f"s_add_u32 s{T1_}, s{T1_}, {0x200000 - 512*64}")
    if SWZ:
        a(f"s_cmp_eq_u32 s{S_G}, 2", f"s_cselect_b32 s{CZ0}, s{T1_}, s{T0_}", f"s_cselect_b32 s{CSH}, 0x1080, s{CFL}", f"s_cselect_b32 s{T0_}, 1, 3")
        a(f"s_and_b32 s{T0_}, s{T0_}, s{S_ROLE}", f"s_lshl_b32 s{T0_}, s{T0_}, 11", f"s_xor_b32 s{CZ0}, s{CZ0}, s{T0_}", f"s_and_b32 s{CFL}, s{CZ0}, 0x7c0", f"s_xor_b32 s{CZ0}, s{CZ0}, s{CFL}", f"s_xor_b32 s{CZ1}, s{CZ0}, 0x6000")
    else:
        a(f"s_cmp_eq_u32 s{S_G}, 2", f"s_cselect_b32 s{CZ0}, s{T1_}, s{T0_}", f"s_cselect_b32 s{CSH}, 12, 15", f"s_add_u32 s{CZ1}, s{CZ0}, 16384")
    a(f"s_and_b32 s{CXR}, s{S_G}, 1", f"s_lshl_b32 s{CXR}, s{CXR}, 4", f"s_mov_b32 s{CM}, 0x55555555", f"s_mov_b32 s{CM+1}, 0x55555555")
    a(f"s_lshl_b32 s{T0_}, s{S_ROLE}, 8", f"s_add_u32 s{T0_}, s{T0_}, s{S_GB}", f"s_add_u32 s{T0_}, s{T0_}, 36", f"v_lshl_add_u32 v{D1}, v1, 2, s{T0_}")
    a(f"s_movk_i32 s{T0_}, {T_G7O - T_G7E}", f"s_cmp_eq_u32 s{S_ROLE}, 0", f"s_cselect_b32 s{T0_}, {T_G5 - T_G3}, s{T0_}", f"s_cmp_eq_u32 s{S_ROLE}, 3", f"s_cselect_b32 s{T0_}, {T_DRO - T_DRE}, s{T0_}")
    a(f"v_mov_b32 v20, s{S_GB}", f"ds_write_b16 v20, v{VZ} offset:{T_TAB + 2*IDX_ZERO}")
    a(f"s_mov_b32 s{SDL}, s{T0_}", f"v_mov_b32 v{D3}, v28")
    def stage_read():
        lds_wait(a, FL_PRE, 18, "b8")
        a(f"ds_read2st64_b64 v[28:31], v{D3} offset0:0 offset1:1", f"ds_read2st64_b64 v[32:35], v{D3} offset0:2 offset1:3")
    def stage_unpack():
        for k in range(16):
            src = 28 + k // 2; w = f"WORD_{k & 1}"
            if 108 + k in LFR: a(f"v_cvt_f32_u32_sdwa v{108+k}, v{src} dst_sel:DWORD dst_unused:UNUSED_PAD src0_sel:{w}")
            else: a(f"v_add_u32_sdwa v{108+k}, s{S_GB}, v{src} dst_sel:DWORD dst_unused:UNUSED_PAD src0_sel:DWORD src1_sel:{w}")
        a(f"v_add_u32 v{D3}, s{SDL}, v{D2}")
    stage_read()
    a("s_waitcnt lgkmcnt(0)")
    stage_unpack()
    ex = newlabel("EXP")
    if KOFF: a(f"s_lshl_b32 s{T0_}, s{S_G}, 5", f"s_add_u32 s{T0_}, s{T0_}, s{S_I}", f"s_cmp_ge_u32 s{T0_}, {64 + 24}", "s_cbranch_scc1 KC_RECV")
    a(f"s_mov_b32 s{T0_}, {f32(LOG2E_HI)}", f"s_mov_b32 s{T1_}, {f32(LOG2E_LO)}", f"s_mov_b32 s{T2_}, {f32(INV2PI_HI)}", f"s_mov_b32 s{T3_}, {f32(INV2PI_LO)}")
    a(f"s_waitcnt vmcnt(7)")
    a(f"v_lshlrev_b32 v16, 16, v{VLDT}")
    a(f"v_mul_f32 v17, s{T0_}, v16")
    a(f"v_fma_f32 v19, v16, s{T0_}, -v17", f"v_fmac_f32 v19, s{T1_}, v16")
    a("v_exp_f32 v17, v17")
    a(f"v_mul_f32 v19, {f32(math.log(2.0))}, v19")
    a("v_fmac_f32 v17, v17, v19")
    a("v_cvt_pk_bf16_f32 v16, 0, v17")
    a(f"s_waitcnt vmcnt(5)")
    stamp(a, 2)
    a(f"ds_write_b32 v{VZ}, v{VONE} offset:{FL_PARAM}")
    THH, THL = 68, 70
    for k in range(2): unpack(a, 20 + 2 * k, RAW + k)
    for k in range(2): a(f"v_pk_mul_f32 v[{20+2*k}:{21+2*k}], v[{20+2*k}:{21+2*k}], v[16:17] op_sel_hi:[1,0]")
    a("v_max_f32 v36, v20, v21")
    a(f"v_pk_mul_f32 v[{THH}:{THH+1}], v[22:23], s[{T2_}:{T3_}] op_sel_hi:[1,0]")
    a(f"v_pk_fma_f32 v[{THL}:{THL+1}], v[22:23], s[{T2_}:{T3_}], v[{THH}:{THH+1}] op_sel_hi:[1,0,1] neg_lo:[0,0,1] neg_hi:[0,0,1]")
    a(f"v_pk_fma_f32 v[{THL}:{THL+1}], v[22:23], s[{T2_}:{T3_}], v[{THL}:{THL+1}] op_sel:[0,1,0]")
    T = 90
    def cmul_(dr, di, ar, ai, br, bi, t=T):
        assert di not in (ar, br, bi)
        return [f"v_pk_mul_f32 v[{t}:{t+1}], v[{ai}:{ai+1}], v[{bi}:{bi+1}]",
                f"v_pk_mul_f32 v[{t+2}:{t+3}], v[{ai}:{ai+1}], v[{br}:{br+1}]",
                f"v_pk_fma_f32 v[{di}:{di+1}], v[{ar}:{ar+1}], v[{bi}:{bi+1}], v[{t+2}:{t+3}]",
                f"v_pk_fma_f32 v[{dr}:{dr+1}], v[{ar}:{ar+1}], v[{br}:{br+1}], v[{t}:{t+1}] neg_lo:[0,0,1] neg_hi:[0,0,1]"]
    def cm_(d, x, y, t=T): return cmul_(d, d + 2, x, x + 2, y, y + 2, t)
    def csq_(d, s_, t=T):
        return [f"v_pk_mul_f32 v[{t}:{t+1}], v[{s_+2}:{s_+3}], v[{s_+2}:{s_+3}]",
                f"v_pk_mul_f32 v[{t+2}:{t+3}], v[{s_}:{s_+1}], v[{s_+2}:{s_+3}]",
                f"v_pk_fma_f32 v[{d}:{d+1}], v[{s_}:{s_+1}], v[{s_}:{s_+1}], v[{t}:{t+1}] neg_lo:[0,0,1] neg_hi:[0,0,1]",
                f"v_pk_add_f32 v[{d+2}:{d+3}], v[{t+2}:{t+3}], v[{t+2}:{t+3}]"]
    def cmul(*x): a(*cmul_(*x))
    def csq(*x): a(*csq_(*x))
    CBR, CBI = 32, 34
    sk = newlabel("SK")
    a(f"s_cmp_eq_u32 s{S_ROLE}, 3", f"s_cbranch_scc1 {sk}")
    a("s_waitcnt vmcnt(1)")
    for k in range(2, 6): unpack(a, 20 + 2 * k, RAW + k)
    for k in range(2, 4): a(f"v_pk_mul_f32 v[{20+2*k}:{21+2*k}], v[{20+2*k}:{21+2*k}], v[16:17] op_sel_hi:[1,0]")
    cmul(CBR, CBI, 28, 30, 24, 26)
    a(f"v_max3_f32 v37, abs(v{CBI}), abs(v{CBI+1}), abs(v{CBR})", f"v_max_f32 v37, v37, abs(v{CBR+1})")
    a(f"{sk}:")
    a("s_waitcnt vmcnt(0)")
    a.flush(1)
    a("v_permlane32_swap_b32 v36, v37", "v_max_f32 v36, v36, v37")
    red32(a, "v_max_f32", 36, 38)
    a(f"v_readlane_b32 s{SM}, v36, 0", f"v_readlane_b32 s{SC}, v36, 32")
    a(f"s_add_u32 s{SC}, s{SC}, 0x7fffff", f"s_lshr_b32 s{SC}, s{SC}, 23", f"s_max_u32 s{SC}, s{SC}, 24", f"s_sub_u32 s{SSC}, 269, s{SC}", f"s_lshl_b32 s{SSC}, s{SSC}, 23")
    a(f"v_subrev_f32 v20, s{SM}, v20", f"v_subrev_f32 v21, s{SM}, v21")
    a(f"v_mul_f32 v20, {f32(LOG2E)}, v20", f"v_mul_f32 v21, {f32(LOG2E)}, v21")
    def scale_cb():
        a(f"v_pk_mul_f32 v[{CBR}:{CBR+1}], v[{CBR}:{CBR+1}], s[{SSC}:{SSC+1}] op_sel_hi:[1,0]", f"v_pk_mul_f32 v[{CBI}:{CBI+1}], v[{CBI}:{CBI+1}], s[{SSC}:{SSC+1}] op_sel_hi:[1,0]")
    def anchor(dr, di, l, conj=False):
        lit = {1: "1.0", 2: "2.0"}.get(l, f32(float(l)))
        for e in range(2):
            t = T + 4 * e
            if l != 1: a(f"v_mul_f32 v{t+1}, {lit}, v{THH+e}", f"v_mul_f32 v{t}, {lit}, v{20+e}")
        for e in range(2):
            t = T + 4 * e
            a(f"v_fract_f32 v{t+1}, v{t+1 if l != 1 else THH+e}")
        for e in range(2):
            t = T + 4 * e
            a(f"v_fmac_f32 v{t+1}, {lit}, v{THL+e}")
        for e in range(2):
            t = T + 4 * e
            a(f"v_exp_f32 v{t}, v{t if l != 1 else 20+e}", f"v_cos_f32 v{t+2}, v{t+1}", f"v_sin_f32 v{t+1}, v{t+1}")
        for e in range(2):
            t = T + 4 * e
            a(f"v_mul_f32 v{dr+e}, v{t}, v{t+2}")
            a(f"v_mul_f32 v{di+e}, v{t}, {'-' if conj else ''}v{t+1}")
    em = [0, None]
    def it(cms, row=None, x=None, y=None):
        if em[1]: a(em[1]); em[1] = None
        for k in range(4):
            for c in cms:
                if k < len(c): a(c[k])
        if row is None: return
        t = (98, 76)[em[0] & 1]; em[0] += 1
        for v, tt in ((x, t), (y, t + 2)):
            if v is not None: a(f"v_cvt_pk_f16_f32 v{tt}, v{v}, v{v+2}", f"v_cvt_pk_f16_f32 v{tt+1}, v{v+1}, v{v+3}")
        o = (row & 3) * KG_ROW // 8
        if y is None: em[1] = f"ds_write_b64 v{VEM + row//4}, v[{t}:{t+1}] offset:{8*o}"
        else: em[1] = f"ds_write2_b64 v{VEM + row//4}, v[{t}:{t+1}], v[{t+2}:{t+3}] offset0:{o} offset1:{o + KG_ROW//8}"
    G1, G2, G3 = 40, 44, 48
    VA, VB, VC, VD = 52, 56, 60, 64
    oth = lambda c, p, q: p if c != p else q
    jl = [newlabel("JOB") for _ in range(4)]; jn = newlabel("JOBJ")
    for r in (3, 1, 2): a(f"s_cmp_eq_u32 s{S_ROLE}, {r}", f"s_cbranch_scc1 {jl[r]}")
    anchor(G2, G2 + 2, 128); scale_cb(); anchor(G1, G1 + 2, 1)
    cur = CBR
    for c in range(8):
        nx = oth(cur, VA, VB)
        it([cm_(VC, cur, G2)] + ([cm_(nx, cur, G1, T + 4)] if c < 7 else []), 2 * c, cur, VC); cur = nx
    it([])
    a(f"s_branch {jn}")
    a(f"{jl[1]}:")
    anchor(G2, G2 + 2, 128); scale_cb(); csq(G3, G2); anchor(G1, G1 + 2, 2)
    it([cm_(VA, CBR, G3)]); cur = VA
    it([cm_(VD, VA, G3)])
    for c in range(4):
        nx = oth(cur, VA, VB)
        it([cm_(VC, cur, G2), cm_(nx, cur, G1, T + 4) if c < 3 else csq_(G3, G1, T + 4)], 2 * c, cur, VC); cur = nx
    cur = VD
    for aa in range(4):
        nx = oth(cur, VA, VB)
        it([cm_(VC, cur, G3)] + ([cm_(nx, cur, G2, T + 4)] if aa < 3 else []), 8 + 2 * aa, cur, VC); cur = nx
    it([])
    a(f"s_branch {jn}")
    a(f"{jl[3]}:")
    anchor(G1, G1 + 2, 8, conj=True)
    a(f"v_mov_b32 v{VA}, {f32(32768.0)}", f"v_mov_b32 v{VA+1}, {f32(32768.0)}", f"v_mov_b32 v{VA+2}, 0", f"v_mov_b32 v{VA+3}, 0")
    sc_ = lambda d, x: [f"v_pk_mul_f32 v[{d}:{d+1}], v[{x}:{x+1}], v[{VA}:{VA+1}]", f"v_pk_mul_f32 v[{d+2}:{d+3}], v[{x+2}:{x+3}], v[{VA}:{VA+1}]"]
    it([csq_(G2, G1), sc_(VC, G1)])
    ce, co = VA, VC
    for b in range(8):
        ne, no = oth(ce, VA, VB), oth(co, VC, VD)
        it([] if b == 7 else [sc_(ne, G2) if b == 0 else cm_(ne, ce, G2), cm_(no, co, G2, T + 4)], 2 * b, ce, co); ce, co = ne, no
    it([])
    a(f"ds_write_b8 v15, v{VONE} offset:{FL_G}")
    stamp(a, 3)
    if KOFF: a(f"s_cmp_eq_u32 s{S_G}, 2", "s_cbranch_scc1 KS_G0")
    a(f"s_branch {ex}")
    if KOFF:
        a("KC_SEND:")
        lds_wait(a, FL_NONCE, VNT, "nz", addr=VNA)
        a(f"s_lshl_b32 s{T0_}, s{S_CH}, 12", f"s_lshl_b32 s{T1_}, s{S_ROLE}, 10", f"s_add_u32 s{T0_}, s{T0_}, s{T1_}", f"s_add_u32 s{T0_}, s{T0_}, {hex(WS_KT - 512*4096)}", f"v_add_u32 v24, s{T0_}, v{VLN}")
        a(f"s_mov_b32 s{T1_}, 0xffff", f"v_lshlrev_b32 v25, 16, v{VNT}")
        for r in range(4): a(f"v_cvt_f16_f32 v{20+r}, v{20+r}")
        a(f"s_cmp_lg_u32 s{S_ROLE}, 2", "s_cbranch_scc1 KC_S2")
        a("s_mov_b32 exec_lo, 0", "s_mov_b32 exec_hi, 0xffff0000")
        a(f"v_mov_b32 v20, v{VPR}", f"v_lshrrev_b32 v21, 16, v{VPR}")
        a("s_mov_b64 exec, -1")
        a("KC_S2:")
        for r in range(4): a(f"v_bfi_b32 v{20+r}, s{T1_}, v{20+r}, v{25 if r & 1 else VNT}")
        a(f"global_store_dwordx4 v24, v[20:23], s[{P_WS}:{P_WS+1}] sc1")
        stamp(a, 4)
        a("s_branch KS_G0")
        a("KC_RECV:")
        a(f"s_cmp_eq_u32 s{S_ROLE}, 3", f"s_cbranch_scc1 {ex}")
        a(f"s_lshl_b32 s{T0_}, s{S_CH}, 12", f"s_lshl_b32 s{T1_}, s{S_ROLE}, 10", f"s_add_u32 s{T0_}, s{T0_}, s{T1_}", f"s_add_u32 s{T0_}, s{T0_}, {hex(WS_KT - 512*4096)}", f"v_add_u32 v24, s{T0_}, v{VLN}")
        lds_wait(a, FL_NONCE, VNT, "nz", addr=VNA, sleep=2)
        a(f"v_lshlrev_b32 v25, 16, v{VNT}")
        stamp(a, 2)
        lds_wait(a, FL_G + {0: 0, 1: 4, 2: 16}[ENV("KTRIG", 1)], 17, "b4", sleep=2)
        lp = newlabel("KP"); l1 = newlabel("KPE")
        a(f"s_branch {l1}")
        a(f"{lp}:")
        a("s_sleep 2")
        a(f"{l1}:")
        a(f"global_load_dwordx4 v[20:23], v24, s[{P_WS}:{P_WS+1}] {MOD('KMOD')}")
        guard(a)
        a("s_waitcnt vmcnt(0)")
        for r in range(4): a(f"v_xor_b32 v{20+r}, v{25 if r & 1 else VNT}, v{20+r}")
        a("v_or3_b32 v26, v20, v21, v22", "v_or_b32 v26, v26, v23", "v_cmp_lt_u32 vcc, 0xffff, v26", f"s_cbranch_vccnz {lp}")
        stamp(a, 3)
        for r in (0, 2): a(f"v_xor_b32 v{20+r}, v{VNT}, v{20+r}")
        for r in range(4): a(f"ds_write_b16 v{IXR[r]}, v{20+r}")
        a(f"s_cmp_lg_u32 s{S_ROLE}, 2", f"s_cbranch_scc1 {ex}")
        a("v_and_b32 v20, 0xffff, v20", "v_lshl_or_b32 v20, v21, 16, v20", f"v_lshlrev_b32 v21, 16, v{VDSK}")
        a("s_mov_b32 exec_lo, 0", "s_mov_b32 exec_hi, 0x10000")
        a(f"ds_write_b64 v14, v[20:21] offset:{C_PAR}")
        a("s_mov_b64 exec, -1")
        a(f"s_branch {ex}")
    a(f"{jl[2]}:")
    anchor(G2, G2 + 2, 128); scale_cb()
    it([csq_(G1, G2), cm_(VD, CBR, G2, T + 4)]); csq(G3, G1); csq(G3, G3)
    it([cm_(VA, CBR, G3), cm_(VC, VD, G3, T + 4)])
    ce, co = VA, VC
    for r in range(4):
        ne, no = oth(ce, VA, VB), oth(co, VC, VD)
        it([cm_(ne, ce, G1)] + ([cm_(no, co, G1, T + 4)] if r < 3 else []), 2 * r, ce, co); ce, co = ne, no
    it([], 8, ce, None)
    a(f"v_mov_b32 v36, {f32(2048.0*LOG2E)}", f"v_mul_f32 v24, s{SM}, v36", "v_max_f32 v24, 0, v24", "v_exp_f32 v24, v24")
    it([])
    a(f"s_sub_u32 s{SIS}, s{SC}, 7", f"s_lshl_b32 s{SIS}, s{SIS}, 23")
    a(f"v_lshlrev_b32 v25, 16, v{VDSK}", f"v_mul_f32 v24, s{SIS}, v24", f"v_mov_b32 v{VPR}, v24")
    a(f"ds_write_b64 v14, v[24:25] offset:{C_PAR}")
    a(f"{jn}:")
    a(f"ds_write_b8 v15, v{VONE} offset:{FL_G}")
    stamp(a, 3); kstamp(a, 2)
    for s in range(8): a(f"ds_read_b128 v[{40+4*s}:{43+4*s}], v{VTL} offset:{64*s}")
    a(f"v_mov_b32 v36, {f32(LOG2E)}", f"v_mul_f32 v36, s{SM}, v36")
    a(f"v_mul_f32 v37, {f32(2048.0)}, v36", "v_max_f32 v37, 0, v37", f"v_add_f32 v37, {f32(23.0)}, v37")
    for r in range(4):
        a(f"v_fma_f32 v{LFR[r]}, v{LFR[r]}, v36, -v37")
    for r in range(4):
        a(f"v_exp_f32 v{LFR[r]}, v{LFR[r]}")
    kstamp(a, 3)
    lds_wait(a, FL_G + 3, 17, "u8", addr=14)
    kstamp(a, 4)
    tr = LdsTrack(a); ids = []
    for s in range(8):
        ids.append(tr.issue(f"ds_read_b128 v[{72+4*s}:{75+4*s}], v{VTE} offset:{KG_T[3]+64*s}"))
    for s in range(8):
        tr.wait(ids[s])
        c = "0" if s < 2 else f"v[{20+4*(s&1)}:{23+4*(s&1)}]"
        a(f"v_mfma_f32_16x16x32_f16 v[{20+4*(s&1)}:{23+4*(s&1)}], v[{40+4*s}:{43+4*s}], v[{72+4*s}:{75+4*s}], {c}")
    for r in range(4): a(f"v_add_f32 v{20+r}, v{20+r}, v{24+r}")
    for r in range(4): a(f"v_mul_f32 v{20+r}, v{20+r}, v{LFR[r]}")
    kstamp(a, 5)
    if KOFF: a(f"s_cmp_eq_u32 s{S_G}, 2", "s_cbranch_scc1 KC_SEND")
    for r in range(4):
        a(f"v_cvt_f16_f32 v{20+r}, v{20+r}")
        a(f"ds_write_b16 v{IXR[r]}, v{20+r}")
    a(f"{ex}:")
    a(f"ds_write_b8 v15, v{VONE} offset:{FL_G+4}")
    a("v_mov_b32 v28, 0", "v_mov_b32 v29, 0", "v_mov_b32 v30, 0", "v_mov_b32 v31, 0", f"v_mov_b32 v32, s{S_GB}")
    a("s_waitcnt vmcnt(0)")
    kstamp(a, 6)
    lds_wait(a, FL_G + 4, 20, "b4", addr=14)
    stamp(a, 4); kstamp(a, 7)
    for e in range(3): a(f"ds_read_u16 v{20+e}, v{I1+e}")
    for e in range(4): a(f"ds_read_u16 v{23+e}, v{I2+e}")
    a("s_mov_b64 exec, 1")
    a(f"ds_write_b128 v32, v[28:31] offset:{R_WS5}", f"ds_write_b128 v32, v[28:31] offset:{R_WS9}", f"ds_write_b128 v32, v[28:31] offset:{R_WS3 + 192*16}")
    a("s_mov_b64 exec, -1")
    a("s_waitcnt lgkmcnt(7)")
    a("v_lshl_or_b32 v28, v21, 16, v20", "v_lshl_or_b32 v29, v22, 16, v21")
    a(f"ds_write_b32 v{D1}, v28 offset:{T_DRE}", f"ds_write_b32 v{D1}, v29 offset:{T_DRO}")
    a("s_waitcnt lgkmcnt(5)")
    a("v_lshl_or_b32 v30, v24, 16, v23", "v_lshl_or_b32 v31, v26, 16, v25")
    a(f"ds_write_b32 v{D2}, v30", f"ds_write_b32 v{D3}, v31")
    a(f"ds_write_b8 v15, v{VONE} offset:{FL_G+8}")
    kstamp(a, 8)
    lds_wait(a, FL_G + 8, 20, "b4", addr=14)
    stamp(a, 5)
    PR, FT0, FT1, ACCL, ACCH, ZQ = 16, 18, 19, 20, 24, 28
    VZA, VUA = VDA, VDA2
    LA = ENV("CLA", 6); RSV = ENV("CRSV", 5); NF = ENV("CNF", 2)
    jl = [newlabel("CV") for _ in range(4)]; zend = newlabel("CVE")
    slow = []
    a(f"ds_read_b64 v[{PR}:{PR+1}], v14 offset:{C_PAR}")
    for r in range(1, 4): a(f"s_cmp_eq_u32 s{S_ROLE}, {r}", f"s_cbranch_scc1 {jl[r]}")
    for m in range(4):
        if m: a(f"{jl[m]}:")
        lo, hi = 2 * m, 2 * m + 1
        acc = {lo: ACCL, hi: ACCH}
        ops = []
        if m >= 2:
            for j in (lo, hi): ops.append((j, ("D", 32), ("U", 8 * j - 32)))
        for p in range(max(8 * lo - 16, -7), 8 * hi + 1):
            for j in (lo, hi):
                ks = 8 * j - p
                if 0 <= ks <= 16: ops.append((j, ("D", ks), ("U", p)))
        ncomb0 = len(ops)
        for j in (lo, hi):
            for kind in (3, 5):
                for b in range(6):
                    if 2 <= j - b <= 4: ops.append((j, ("W", kind, b), ("G", kind, j - b)))
            for kind in (7, 9):
                for b in range(2):
                    if j - 2 * b - 4 >= 0: ops.append((j, ("W", kind, b), ("G", kind, j - 2 * b - 4)))
        nops = len(ops)
        first, last = {}, {}
        for k, (j, A, B) in enumerate(ops):
            for key in (A, B):
                first.setdefault(key, k); last[key] = k
        lastlo = max(k for k, o in enumerate(ops) if o[0] == lo)
        pool = list(range(32, 128, 4))
        reg, lid = {}, {}
        def load(tr, key):
            rg = pool.pop(0); reg[key] = rg
            if (XP & 8 and key[0] == "G") or (XP & 16 and key[0] == "W") or (XP & 32 and key[0] == "U"):
                lid[key] = -100; return
            if key[0] == "D":
                ksv = -2 if key[1] == 32 else key[1]
                o = (16 - ksv) * 16
                ad, o = (VDA, o) if o + 3 <= 255 else (VDA2, o - 160)
                tr.issue(f"ds_read2_b32 v[{rg}:{rg+1}], v{ad} offset0:{o} offset1:{o+1}")
                lid[key] = tr.issue(f"ds_read2_b32 v[{rg+2}:{rg+3}], v{ad} offset0:{o+2} offset1:{o+3}")
            elif key[0] == "G":
                _, kind, ix = key
                if kind in (3, 5): o = (4 - ix) * 16 + (64 if kind == 5 else 0); ad = VG8
                else: o = (3 - ix) * 8 + (96 if kind == 9 else 0); ad = VG16
                tr.issue(f"ds_read2_b32 v[{rg}:{rg+1}], v{ad} offset0:{o} offset1:{o+1}")
                lid[key] = tr.issue(f"ds_read2_b32 v[{rg+2}:{rg+3}], v{ad} offset0:{o+2} offset1:{o+3}")
            elif key[0] == "U":
                lid[key] = tr.issue(f"ds_read_b128 v[{rg}:{rg+3}], v{VB_} offset:{64*(key[1]+7)}")
            else:
                _, kind, b = key
                if kind in (3, 5): o = (R_WS3 if kind == 3 else R_WS5) + 512 * b; ad, st = VT8, 64
                else: o = (R_WS7 if kind == 7 else R_WS9) + 1024 * b; ad, st = VT16, 128
                tr.issue(f"ds_read_b64_tr_b16 v[{rg}:{rg+1}], v{ad} offset:{o}")
                lid[key] = tr.issue(f"ds_read_b64_tr_b16 v[{rg+2}:{rg+3}], v{ad} offset:{o+st}")
        keys = sorted(first, key=lambda k_: first[k_])
        tr = LdsTrack(a)
        for key in keys:
            if key[0] == "D": load(tr, key)
        for key in keys:
            if key[0] == "G" and len(pool) > RSV: load(tr, key)
        pend = [k_ for k_ in keys if k_ not in reg]
        a(f"v_lshlrev_b32 v{FT0}, 3, v3", f"v_sub_u32 v{FT0}, v{VB_}, v{FT0}")
        a(f"v_lshrrev_b32 v{FT1}, 2, v2", f"v_lshl_add_u32 v{FT1}, v{FT1}, 2, v3", f"v_and_b32 v{ZQ}, 3, v2", f"v_lshlrev_b32 v{ZQ}, 4, v{ZQ}")
        if SWZ: a(f"v_mul_u32_u24 v{FT1}, s{CSH}, v{FT1}", f"v_xor_b32 v{FT1}, s{CFL}, v{FT1}")
        else: a(f"v_lshlrev_b32 v{FT1}, s{CSH}, v{FT1}")
        a("s_waitcnt lgkmcnt(0)")
        a(f"v_mov_b32 v{VUA}, v{FT0}", f"v_add_u32 v{VZA}, v{FT1}, v{ZQ}")
        a(f"v_xor_b32 v{VLN}, s{CXR}, v{VLN}")
        lds_wait(a, FL_UF, FT0, "b4")
        a(f"s_setprio {eval(os.environ.get('CPRIO', '[1,1,1,1]'))[m]}")
        stamp(a, 6); cstamp(a, 1)
        if XP & 4: a(f"v_mov_b32 v{FT0}, 0", f"s_cmp_lg_u32 s{S_G}, 0", f"s_cbranch_scc1 {zend}")
        for key in lid: lid[key] = -100
        tr = LdsTrack(a)
        ud = {}
        fill = []
        fill.append(("lds", f"ds_read_b64 v[{ZQ}:{ZQ+1}], v{VUA} offset:{480 + 512*lo}", 2))
        fill.append(("ldsU", f"ds_read_b64 v[{ZQ+2}:{ZQ+3}], v{VUA} offset:{480 + 512*hi}", 2))
        for ti, j in enumerate((lo, hi)):
            fill.append(("alloc", j, 5))
            if ti == 0: fill.append(("waitU", None, 5))
            for e in range(4):
                sel = "op_sel:[1,0,0] " if e & 1 else ""
                fill.append(("f", (lambda j=j, e=e, ti=ti, sel=sel: f"v_fma_mix_f32 v{ud[j]+e}, v{ZQ+2*ti+e//2}, v{PR+1}, 0 {sel}op_sel_hi:[1,0,0]"), 5))
            for e in range(4):
                fill.append(("f", (lambda j=j, e=e: f"v_cvt_pk_bf16_f32 v{ud[j]+e}, 0, v{ud[j]+e}"), 5))
        def epi(j, ti):
            y = acc[j]; z = ZQ + 2 * ti; out = []
            for p in range(4): out.append(lambda p=p: f"v_mul_f32 v{y+p}, v{y+p}, v{PR}")
            for p in range(4): out.append(lambda p=p: f"v_cvt_pk_bf16_f32 v{y+p}, 0, v{y+p}")
            for p in range(4): out.append(lambda p=p: f"v_add_f32 v{y+p}, v{y+p}, v{ud[j]+p}")
            for p in range(2): out.append(lambda p=p: f"v_cvt_pk_bf16_f32 v{z+p}, v{y+2*p}, v{y+2*p+1}")
            for p in range(2): out.append(lambda p=p: f"v_min_u32 v{z+p}, -2, v{z+p}")
            return out
        for f in epi(lo, 0): fill.append(("f", f, lastlo + 2))
        fill.append(("lds", f"ds_read_u8 v{FT0}, v{VZ} offset:{FL_S6 + m}", nops - 4))
        fill.append(("lds", f"ds_read_b128 v[{ACCL}:{ACCL+3}], v{VLN} offset:{G_BASE + R_RED + 1024*m}", nops - 4))
        uid = [None]
        def do_fill(n, k):
            while n > 0 and fill:
                kind, t, e = fill[0]
                if e > k: return
                if kind == "alloc":
                    if len(pool) < 2: return
                    ud[t] = pool.pop(); fill.pop(0); continue
                fill.pop(0)
                if kind == "f":
                    if XP & 2 and "v_min" not in t(): continue
                    a(t())
                elif kind == "lds": tr.issue(t)
                elif kind == "ldsU": uid[0] = tr.issue(t)
                elif kind == "waitU": tr.wait(uid[0]); continue
                n -= 1
        kW = ncomb0 - LA if nops > ncomb0 else None
        wok = [False]
        def issue_loads(k, nmax):
            while pend and pool and nmax > 0:
                key = pend[0]
                if first[key] - k > (LA if key[0] != "G" else LA + 4): return
                if key[0] == "W" and not wok[0]:
                    alt = [x for x in pend if x[0] != "W" and first[x] - k <= LA + 2]
                    if not alt: return
                    key = alt[0]
                pend.remove(key); load(tr, key); nmax -= 1
        issue_loads(0, RSV)
        started = set()
        for k, (j, A, B) in enumerate(ops):
            assert A in reg and B in reg, (m, k, A, B)
            tr.wait(max(lid[A], lid[B]))
            c = f"v[{acc[j]}:{acc[j]+3}]" if j in started else "0"
            started.add(j)
            a(f"v_mfma_f32_16x16x32_f16 v[{acc[j]}:{acc[j]+3}], v[{reg[A]}:{reg[A]+3}], v[{reg[B]}:{reg[B]+3}], {c}")
            for key in (A, B):
                if last[key] == k: pool.append(reg[key])
            if kW is not None and k == kW - 3:
                wfid = tr.issue(f"ds_read_b32 v{FT0}, v14 offset:{FL_G + 12}")
            if k == kW:
                tr.wait(wfid)
                sl = newlabel("WS"); bk = newlabel("WB")
                a(f"v_cmp_ne_u32 vcc, s{S_ONES}, v{FT0}", f"s_cbranch_vccnz {sl}")
                a(f"{bk}:")
                slow.append((sl, bk))
                wok[0] = True
                cstamp(a, 3)
            issue_loads(k + 1, 2)
            do_fill(NF, k)
            if k == ncomb0 // 2: cstamp(a, 2)
            if k == ncomb0 - 1: cstamp(a, 4)
        cstamp(a, 5)
        do_fill(1000, 1000)
        assert not fill and not pend
        stamp(a, 7)
        for f in epi(hi, 1): a(f())
        if m < 3: a(f"s_branch {zend}")
    a(f"{zend}:")
    cstamp(a, 6)
    gA = newlabel("ZA"); gC = newlabel("ZC"); zs = newlabel("ZS"); zb = newlabel("ZB"); zc = newlabel("ZCB"); zd = newlabel("ZD")
    a("s_waitcnt lgkmcnt(0)")
    a(f"s_cmp_lg_u32 s{S_G}, 1", f"s_cbranch_scc1 {gA}")
    a(f"v_cmp_ne_u32 vcc, 1, v{FT0}", f"s_cbranch_vccnz {zs}")
    a(f"{zb}:")
    a(f"s_mov_b64 exec, s[{CM}:{CM+1}]")
    for k in range(4): a(f"v_swap_b32 v{ZQ+k}, v{ACCL+k}")
    a("s_mov_b64 exec, -1")
    cstamp(a, 8)
    a(f"buffer_store_dwordx4 v[{ZQ}:{ZQ+3}], v{VZA}, s[{R0}:{R0+3}], s{CZ1} offen sc1")
    a(f"buffer_store_dwordx4 v[{ACCL}:{ACCL+3}], v{VZA}, s[{R0}:{R0+3}], s{CZ0} offen sc1")
    if ENV("ZG2", 0) == 2: a(f"ds_write_b8 v15, v{VONE} offset:{FL_ZISS - 16}")
    a(f"s_branch {zd}")
    for (sl, bk) in slow:
        a(f"{sl}:")
        lds_wait(a, FL_G + 12, FT0, "b4", addr=14)
        a(f"s_branch {bk}")
    a(f"{zs}:")
    a(f"v_mov_b32 v{FT1}, s{S_ROLE}")
    l = newlabel("ZW")
    a(f"{l}:")
    a(f"ds_read_u8 v{FT0}, v{FT1} offset:{FL_S6}")
    guard(a)
    a("s_waitcnt lgkmcnt(0)")
    a(f"v_cmp_ne_u32 vcc, 1, v{FT0}", f"s_cbranch_vccnz {l}")
    a(f"v_lshl_add_u32 v{FT1}, v{FT1}, 10, v{VLN}")
    a(f"ds_read_b128 v[{ACCL}:{ACCL+3}], v{FT1} offset:{G_BASE + R_RED}")
    a("s_waitcnt lgkmcnt(0)")
    a(f"s_branch {zb}")
    a(f"{gA}:")
    a(f"s_cmp_lg_u32 s{S_G}, 0", f"s_cbranch_scc1 {gC}")
    a(f"v_mov_b32 v{FT1}, s{S_ROLE}", f"v_lshl_add_u32 v{FT0}, v{FT1}, 10, v{VLN}")
    a(f"ds_write_b128 v{FT0}, v[{ZQ}:{ZQ+3}] offset:{G_BASE + R_RED}")
    a(f"ds_write_b8 v{FT1}, v{VONE} offset:{FL_S6}")
    cstamp(a, 8)
    a(f"s_branch {zd}")
    a(f"{gC}:")
    cstamp(a, 8)
    a(f"buffer_store_dwordx4 v[{ZQ}:{ZQ+3}], v{VZA}, s[{R0}:{R0+3}], s{CZ0} offen sc1")
    a(f"{zd}:")
    stamp(a, 8)
    if DBG:
        a(f"s_mul_i32 s{T0_}, s{S_ROLE}, 1280", f"s_add_u32 s{T1_}, s{T0_}, s{S_GB}", f"v_lshl_add_u32 v20, v1, 2, s{T1_}")
        a(f"s_mul_i32 s{T1_}, s{S_CH}, 5376", f"s_add_u32 s{T1_}, s{T1_}, s{T0_}", f"s_add_u32 s{T1_}, s{T1_}, {hex(WS_DBG)}", f"v_lshl_add_u32 v21, v1, 2, s{T1_}")
        for k in range(5 + 1):
            a(f"ds_read_b32 v22, v20 offset:{R2 + 256*k}", "s_waitcnt lgkmcnt(0)", f"global_store_dword v21, v22, s[{P_WS}:{P_WS+1}] offset:{256*k}")
        a(f"ds_read_b32 v22, v14 offset:{C_PAR}", f"s_lshl_b32 s{T1_}, s{S_CH}, 2", f"s_add_u32 s{T1_}, s{T1_}, {hex(WS_DBG + 0x300000)}", f"v_mov_b32 v21, s{T1_}")
        a("s_waitcnt lgkmcnt(0)", f"global_store_dword v21, v22, s[{P_WS}:{P_WS+1}]")
    a(f"s_lshl_b32 s{T0_}, s{S_G}, 2", f"s_add_u32 s{T0_}, s{T0_}, s{S_ROLE}", f"v_mov_b32 v8, s{T0_}")
    a("s_waitcnt vmcnt(0)")
    a(f"ds_write_b8 v8, v{VONE} offset:{FL_ZDONE}")


def gen_wjobs(a):
    WA, WD = 10, 11
    end = newlabel("WJE"); w1 = newlabel("WJ1"); w2 = newlabel("WJ2")
    a(f"s_cmp_eq_u32 s{S_WAVE}, 2", f"s_cbranch_scc1 {w2}")
    if XP & 1: a(f"s_branch {w2}")
    a(f"s_add_u32 s{T0_}, s{S_WAVE}, 1", f"s_lshr_b32 s{T0_}, s{T0_}, 2", f"s_cmp_eq_u32 s{S_WAVE}, 1", f"s_cselect_b32 s{T0_}, 2, s{T0_}", f"s_lshl_b32 s{T0_}, s{T0_}, 10")
    a(f"v_lshl_add_u32 v{WA}, v1, 4, s{T0_}", f"v_add_u32 v{WD}, {G_BASE}, v{WA}")
    lds_wait(a, FL_UF, 12, "b4")
    a(f"s_setprio {ENV('WPRIO', 3)}")
    for g in range(3):
        E = 20 + 12 * g; o = C_U + U_SIZE * g + 2 * (240 - 16)
        a(f"ds_read_b128 v[{E}:{E+3}], v{WA} offset:{o}", f"ds_read_b128 v[{E+4}:{E+7}], v{WA} offset:{o+16}", f"ds_read_b64 v[{E+8}:{E+9}], v{WA} offset:{o+32}")
    a(f"s_cmp_eq_u32 s{S_WAVE}, 1", f"s_cbranch_scc1 {w1}")
    for full in (1, 0):
        if not full: a(f"{w1}:")
        for g in range(3):
            if g == 2: a(f"s_cmp_lt_u32 s{S_I}, 24", f"s_cbranch_scc1 {end}")
            E = lambda i: 20 + 12 * g + i
            O = lambda i: 56 + i
            T = lambda i: 65 + i
            Q = lambda i: 72 + i
            X = lambda i: 79 + i
            Y = lambda i: 85 + i
            W7, W9 = 92, 96
            a(f"ds_read_b32 v12, v{VZ} offset:{FL_G + 16*g + 4}")
            if g == 0: a("s_waitcnt lgkmcnt(7)")
            n = 8 if full else 7
            for i in range(1, n + 1): a(f"v_alignbit_b32 v{O(i)}, v{E(i+1)}, v{E(i)}, 16")
            for i in range(1, n + 1): a(f"v_pk_add_f16 v{T(i)}, v{O(i)}, v{E(i+1)}")
            for i in range(1, 5): a(f"v_pk_add_f16 v{X(i)}, v{T(i)}, v{O(i+1)}")
            for i in (range(2, 8) if full else range(3, 7)): a(f"v_pk_add_f16 v{Q(i)}, v{T(i)}, v{T(i+1)}")
            ok = newlabel("WJK")
            a("s_waitcnt lgkmcnt(0)")
            a(f"v_cmp_eq_u32 vcc, s{S_ONES}, v12", f"s_cbranch_vccnz {ok}")
            lds_wait(a, FL_G + 16 * g + 4, 12, "b4", sleep=1)
            a(f"{ok}:")
            off = G_SIZE * (g & 1)
            if g == 2: a(f"v_add_u32 v{WD}, {2*G_SIZE}, v{WD}")
            a(f"ds_write_b128 v{WD}, v[{X(1)}:{X(4)}] offset:{off + R_WS3}")
            for i in (range(2, 7) if full else range(3, 7)): a(f"v_pk_add_f16 v{Y(i)}, v{E(i)}, v{Q(i)}")
            a(f"ds_write_b128 v{WD}, v[{Y(3)}:{Y(6)}] offset:{off + R_WS5 + 16}")
            if full:
                for i in range(5, 8): a(f"v_pk_add_f16 v{X(i)}, v{T(i)}, v{O(i+1)}")
                for k in range(4): a(f"v_pk_add_f16 v{W7+k}, v{Q(2+k)}, v{X(4+k)}")
                a(f"ds_write_b128 v{WD}, v[{W7}:{W7+3}] offset:{off + R_WS7}")
                for k in range(4): a(f"v_pk_add_f16 v{W9+k}, v{Y(2+k)}, v{Q(4+k)}")
                a(f"ds_write_b128 v{WD}, v[{W9}:{W9+3}] offset:{off + R_WS9 + 16}")
            a(f"ds_write_b8 v116, v{VONE} offset:{FL_G + 16*g + 12}")
        a(f"s_branch {end}")
    a(f"{w2}:")
    for g in range(3): a(f"ds_write_b8 v116, v{VONE} offset:{FL_G + 16*g + 12}")
    if PF2 > PF1 or PFD:
        W2 = ENV("PF2W", 14)
        a(f"s_sub_u32 s{T2_}, s{S_I}, {ENV('PF2B', 18)}", f"s_and_b32 s{T2_}, s{T2_}, 31", f"s_cmp_ge_u32 s{T2_}, {W2}", f"s_cbranch_scc1 {end}")
        pf_lane(a, 100, 101)
        lds_wait(a, FL_UF, 12, "b4", sleep=1)
        if PF2 > PF1:
            pf_gu(a, 100, T2_, W2, PF1, PF2, 102, "KS_PF2D")
            a("KS_PF2D:")
        if PFD:
            a(f"s_sub_u32 s{T2_}, {W2-1}, s{T2_}")
            pf_down(a, T2_, W2, 0, PFD, 100, 120, end)
    a(f"{end}:")

def gen(a):
    label = NAME + "_kernel"
    a(f".globl {label}", ".p2align 8", f".type {label},@function", f"{label}:")
    a("s_cmp_ge_u32 s2, 256", "s_cbranch_scc1 KS_END")
    stamp_begin(a)
    a("s_load_dwordx16 s[4:19], s[0:1], 0", "s_load_dwordx16 s[20:35], s[0:1], 64", f"s_load_dwordx2 s[{P_WS}:{P_WS+1}], s[0:1], 128")
    a(f"v_readfirstlane_b32 s{S_WAVE}, v0", f"s_lshr_b32 s{S_WAVE}, s{S_WAVE}, 6")
    a(f"s_and_b32 s{S_XC}, s2, 7", f"s_lshr_b32 s{S_I}, s2, 3")
    if ENV("CPF", 1):
        a(f"s_cmp_lg_u32 s{S_WAVE}, {ENV('CPFW', 0)}", "s_cbranch_scc1 KS_CPE")
        cm = ENV("CPFM", 0)
        if cm == 1: a(f"s_sub_u32 s{T0_}, s{S_I}, 8", f"s_cmp_lt_u32 s{T0_}, 16", "s_cbranch_scc1 KS_CPE")
        if cm == 2: a(f"s_cmp_lt_u32 s{S_I}, 24", "s_cbranch_scc1 KS_CPE")
        if cm == 3: a(f"s_cmp_ge_u32 s{S_I}, 8", "s_cbranch_scc1 KS_CPE")
        if cm == 4: a(f"s_cmp_ge_u32 s{S_I}, 4", "s_cbranch_scc1 KS_CPE")
        if cm == 5: a(f"s_cmp_lt_u32 s{S_I}, 28", "s_cbranch_scc1 KS_CPE")
        a("s_getpc_b64 s[42:43]")
        a("KS_PC:")
        a(f"s_and_b32 s{T0_}, s{S_I}, 7", f"s_mul_i32 s{T0_}, s{T0_}, 4608", "v_and_b32 v126, 63, v0", f"v_lshl_add_u32 v126, v126, 7, s{T0_}", "v_min_u32 v126, KS_END-KS_PC, v126")
        a(f"global_load_dword v127, v126, s[42:43] {MOD('CPFMOD', '')}")
        a("KS_CPE:")
    if ENV("REMAP", 1):
        a(f"s_add_u32 s{T0_}, s{S_WAVE}, 8", f"s_sub_u32 s{T1_}, s{S_WAVE}, 4", f"s_cmp_lt_u32 s{S_WAVE}, 8", f"s_cselect_b32 s{T0_}, s{T0_}, s{T1_}")
        a(f"s_cmp_lt_u32 s{S_WAVE}, 4", f"s_cselect_b32 s{S_WAVE}, s{S_WAVE}, s{T0_}")
    a("v_and_b32 v1, 63, v0", "v_and_b32 v2, 15, v1", "v_lshrrev_b32 v3, 4, v1", f"v_mov_b32 v{VZ}, 0", f"v_mov_b32 v{VONE}, 1")
    a(f"s_mov_b32 s{S_GUARD}, {GUARD}", f"s_mov_b32 s{S_ONES}, 0x01010101")
    a(f"s_lshl_b32 s{S_B2}, s{S_XC}, 5", f"s_add_u32 s{S_B2}, s{S_B2}, s{S_I}")
    a(f"s_mul_i32 s{S_BLK}, s{S_XC}, 18", f"s_add_u32 s{S_BLK}, s{S_BLK}, s{S_I}")
    a(f"s_cmp_lt_u32 s{S_WAVE}, 4", "s_cbranch_scc1 KS_L")
    a(f"s_cmp_ge_u32 s{S_WAVE}, 12", "s_cbranch_scc1 KS_X")
    a("s_setprio 2")
    a(f"s_lshr_b32 s{S_G}, s{S_WAVE}, 2", f"s_sub_u32 s{S_G}, s{S_G}, 1")
    a(f"s_mul_i32 s{S_ROLE}, s{S_G}, 3", f"s_xor_b32 s{S_ROLE}, s{S_ROLE}, s{S_WAVE}", f"s_and_b32 s{S_ROLE}, s{S_ROLE}, 3")
    a(f"s_lshl_b32 s{S_CH}, s{S_B2}, 1", f"s_add_u32 s{S_CH}, s{S_CH}, s{S_G}")
    a(f"s_lshl_b32 s{T0_}, s{S_ROLE}, 11", f"s_add_u32 s{T0_}, s{T0_}, {C_STG}", f"v_lshl_add_u32 v28, v1, 3, s{T0_}")
    pre_ixlf(a)
    a("KS_GRP:")
    gen_group(a)
    a(f"s_cmp_lg_u32 s{S_WAVE}, 4", "s_cbranch_scc1 KS_K1")
    a("s_setprio 0")
    srd(a, R3, P_WS, 12288, WS_KEYS)
    a("v_and_b32 v6, 1, v1", "v_lshlrev_b32 v6, 4, v6", f"s_lshl_b32 s{T0_}, s{S_B2}, 5")
    lds_wait(a, FL_ZF, 8, "b4", sleep=1)
    a("s_mov_b64 exec, 3")
    a(f"s_setprio {ENV('KSPRIO', 1)}")
    a("KS_K0:")
    a(f"ds_read_b128 v[8:11], v6 offset:{C_KEY}")
    guard(a)
    a("s_waitcnt lgkmcnt(0)")
    a("v_min3_u32 v12, v8, v9, v10", "v_min_u32 v12, v12, v11", "v_cmp_eq_u32 vcc, 0, v12", "s_cbranch_vccnz KS_K0")
    a(f"buffer_store_dwordx4 v[8:11], v6, s[{R3}:{R3+3}], s{T0_} offen sc1")
    a("s_mov_b64 exec, -1")
    stamp2(a, 4)
    a("s_waitcnt vmcnt(0)")
    a(f"ds_write_b32 v{VZ}, v{VONE} offset:{FL_KACK}")
    a("KS_K1:")
    a(f"s_cmp_lt_u32 s{S_I}, 18", "s_cbranch_scc1 KS_T")
    a("s_waitcnt lgkmcnt(0)")
    endwave(a)
    a("KS_X:")
    a(f"s_cmp_lt_u32 s{S_I}, 24", "s_cbranch_scc1 KS_X2")
    a(f"s_setprio {ENV('KCPRIO', 2)}")
    a("KS_XC:")
    a(f"s_mov_b32 s{S_G}, 2", f"s_add_u32 s{S_ROLE}, s{S_WAVE}, 3", f"s_and_b32 s{S_ROLE}, s{S_ROLE}, 3")
    a(f"s_lshl_b32 s{S_CH}, s{S_XC}, 3", f"s_and_b32 s{T0_}, s{S_I}, 7", f"s_add_u32 s{S_CH}, s{S_CH}, s{T0_}", f"s_add_u32 s{S_CH}, s{S_CH}, 512")
    a(f"s_lshl_b32 s{T0_}, s{S_ROLE}, 11", f"s_add_u32 s{T0_}, s{T0_}, {C_STG}", f"v_lshl_add_u32 v28, v1, 3, s{T0_}")
    a("s_branch KS_GRP")
    a("KS_X2:")
    a(f"s_cmp_lt_u32 s{S_I}, 8", "s_cbranch_scc1 KS_X3")
    a(f"s_sub_u32 s{T5_}, s{S_WAVE}, 8")
    a("s_branch KS_LN1")
    a("KS_X3:")
    a(f"s_lshl_b32 s{T0_}, s2, 4", f"s_add_u32 s{T0_}, s{T0_}, s{S_WAVE}", f"s_cmp_lg_u32 s{T0_}, {16*ENV('NPUB', 2) + 12}", "s_cbranch_scc1 KS_X3B")
    a("s_setprio 3")
    a(f"s_memrealtime s[{T0_}:{T1_}]")
    a("v_and_b32 v6, 3, v1", "v_lshlrev_b32 v7, 2, v6", "v_min_u32 v6, 2, v6", "v_lshlrev_b32 v6, 2, v6", "v_cmp_eq_u32 vcc, 3, v1")
    a("s_waitcnt lgkmcnt(0)")
    a(f"v_mov_b32 v8, s{T0_}", f"v_mov_b32 v9, s{T1_}", "v_alignbit_b32 v8, v8, v8, v6", f"v_cndmask_b32 v9, v{VZ}, v9, vcc", "v_xor_b32 v8, v8, v9")
    a("v_and_b32 v9, 0xf0000fff, v8", "v_and_b32 v10, 0xfff000, v8", "v_lshl_or_b32 v9, v10, 4, v9", "v_lshrrev_b32 v10, 12, v8", "v_and_b32 v10, 0xf000, v10")
    a("v_or3_b32 v9, v9, v10, v9", "v_or_b32 v9, 0x80000000, v9")
    a("s_mov_b64 exec, 15")
    a(f"global_store_dword v7, v9, s[{P_DBG}:{P_DBG+1}] sc1")
    if SPIN: a(f"v_mov_b32 v8, s{T0_}", f"global_store_dword v7, v8, s[{P_DBG}:{P_DBG+1}] offset:64 sc1")
    a("s_mov_b64 exec, -1")
    a("s_setprio 0")
    a("KS_X3B:")
    if KOFF:
        a(f"s_setprio {ENV('KPPRIO', 3)}")
        a("s_branch KS_XC")
    a("s_waitcnt lgkmcnt(0)")
    a("s_barrier")
    a("s_branch KS_G")
    a("KS_X4:")
    a(f"s_cmp_lt_u32 s{S_I}, 18", "s_cbranch_scc1 KS_G")
    a("s_waitcnt vmcnt(0) lgkmcnt(0)")
    endwave(a)
    a("KS_L:")
    a("v_lshlrev_b32 v6, 2, v0", f"ds_write_b32 v6, v{VZ}")
    a("v_mov_b32 v8, 0", "v_mov_b32 v9, 0", f"s_min_u32 s{T0_}, s{S_WAVE}, 2", f"s_mul_i32 s{T0_}, s{T0_}, {U_SIZE}", "v_min_u32 v6, 59, v1", f"v_lshl_add_u32 v6, v6, 3, s{T0_}")
    a(f"ds_write_b64 v6, v[8:9] offset:{C_U}")
    a(f"s_mov_b32 s{T5_}, s{S_WAVE}")
    a(f"s_sub_u32 s{T0_}, s{S_I}, 8", f"s_cmp_lt_u32 s{T0_}, 16", "s_cbranch_scc0 KS_L0")
    a("KS_LN1:")
    a("s_setprio 3")
    gen_ln1(a)
    if NLL or NL2:
        if not NL: pf_lane(a, 46, 47)
        a(f"s_cmp_ge_u32 s{S_I}, 18", "s_cbranch_scc1 KS_LL2")
        if NLL:
            a(f"s_mul_i32 s{T2_}, s{S_WAVE}, 10", f"s_add_u32 s{T2_}, s{T2_}, s{S_I}", f"s_sub_u32 s{T2_}, s{T2_}, 8")
            pf_gu(a, 46, T2_, 40, PFA, PFA + 10 * NLL, 47, "KS_LLE")
        a("s_branch KS_LLE")
        a("KS_LL2:")
        if NL2:
            a(f"s_mul_i32 s{T2_}, s{S_WAVE}, 6", f"s_add_u32 s{T2_}, s{T2_}, s{S_I}", f"s_sub_u32 s{T2_}, s{T2_}, 18")
            pf_gu(a, 46, T2_, 24, PFA + 10 * NLL, PF0, 47, "KS_LLE")
        a("KS_LLE:")
    a(f"s_mov_b32 s{S_G}, 1")
    a("s_branch KS_L2B")
    a("KS_L0:")
    a(f"s_and_b32 s{T0_}, s{S_I}, 15", f"s_lshl_b32 s{T1_}, s{S_XC}, 4", f"s_add_u32 s{T0_}, s{T0_}, s{T1_}")
    a("v_and_b32 v59, 3, v1", "v_lshlrev_b32 v59, 2, v59")
    a(f"s_lshl_b32 s{T4_}, s{T0_}, 6", f"s_add_u32 s{T1_}, s{T4_}, {hex(WS_FLAG1)}", f"v_add_u32 v7, s{T1_}, v59")
    a(f"s_mul_i32 s{T1_}, s{T0_}, {CLR_WG}", f"s_add_u32 s{T1_}, s{T1_}, {hex(WS_CLR)}")
    a("v_lshlrev_b32 v6, 4, v0")
    a("v_mov_b32 v12, -1", "v_mov_b32 v13, -1", "v_mov_b32 v14, -1", "v_mov_b32 v15, -1")
    a("s_setprio 3")
    pf_lane(a, 16, 17)
    a("s_waitcnt lgkmcnt(0)")
    a(f"s_add_u32 s{R1}, s{P_WS}, s{T1_}", f"s_addc_u32 s{R1+1}, s{P_WS+1}, 0", f"s_mov_b32 s{R1+2}, {CLR_WG}", f"s_mov_b32 s{R1+3}, 0x20000")
    if ENV("UPRE", 0):
        srd(a, R0, P_WS, 0xC00000)
        a(f"s_lshl_b32 s{T2_}, s{S_WAVE}, 3", f"s_xor_b32 s{T2_}, s{T2_}, s{S_B2}", f"s_lshl_b32 s{T2_}, s{T2_}, 13")
        a(f"s_and_b32 s{T3_}, s{S_I}, 3", f"s_lshl_b32 s{T0_}, s{S_XC}, 2", f"s_add_u32 s{T3_}, s{T3_}, s{T0_}", f"s_lshl_b32 s{T3_}, s{T3_}, 13")
        a(f"s_add_u32 s{T0_}, s{T3_}, {256*8192}", f"s_cmp_eq_u32 s{S_WAVE}, 2", f"s_cselect_b32 s{T2_}, s{T0_}, s{T2_}")
        a(f"s_add_u32 s{T0_}, s{T3_}, {hex(WS_KT)}", f"s_cmp_eq_u32 s{S_WAVE}, 3", f"s_cselect_b32 s{T2_}, s{T0_}, s{T2_}")
        a(f"s_lshl_b32 s{T0_}, s{S_I}, 2", f"s_add_u32 s{T0_}, s{T0_}, s{S_WAVE}", f"s_and_b32 s{T0_}, s{T0_}, 0x72", f"s_cmp_gt_u32 s{T0_}, 0x62", f"s_cselect_b32 s{T0_}, 0, s{T0_}")
        a(f"s_bitcmp1_b32 s{T0_}, 1", "s_cbranch_scc1 KS_UPE")
        a("v_lshlrev_b32 v125, 7, v1", f"buffer_load_dword v124, v125, s[{R0}:{R0+3}], s{T2_} offen {MOD('UPMOD')}")
        a("KS_UPE:")
    a("s_barrier")
    if NE:
        a(f"s_and_b32 s{T2_}, s{S_I}, 15", f"s_lshl_b32 s{T3_}, s{S_WAVE}, 4", f"s_add_u32 s{T2_}, s{T2_}, s{T3_}")
        pf_gu(a, 16, T2_, 64, PFB + 16 * NL, PFA, 18, "KS_L1E")
        a("KS_L1E:")
    if ENV("CTRIG", 1): lds_wait(a, FL_PARAM, 8, "nz", sleep=2)
    for k in range((CLR_WG + 4095) // 4096):
        a(f"s_mov_b32 s{T0_}, {4096*k}")
        a(f"buffer_store_dwordx4 v[12:15], v6, s[{R1}:{R1+3}], s{T0_} offen {MOD('CMOD')}")
    stamp(a, 1)
    a(f"global_load_dword v58, v59, s[{P_DBG}:{P_DBG+1}] sc1")
    dbg_wait(a, 0)
    stamp(a, 2)
    a(f"ds_write_b32 v59, v58 offset:{FL_NONCE}")
    a("s_mov_b64 exec, 1")
    a(f"ds_add_rtn_u32 v8, v{VZ}, v{VONE} offset:{FL_LNACK}")
    a("s_mov_b64 exec, -1")
    for d in range(1, 4): a(f"v_lshrrev_b32 v{58-d}, {3*d}, v58")
    a("s_waitcnt lgkmcnt(0)")
    a(f"v_readfirstlane_b32 s{T0_}, v8")
    a(f"s_cmp_lg_u32 s{T0_}, 3", "s_cbranch_scc1 KS_L2")
    a("s_mov_b64 exec, 15")
    a(f"global_store_dword v7, v58, s[{P_WS}:{P_WS+1}] sc1")
    a("s_mov_b64 exec, -1")
    a(f"s_and_b32 s{T2_}, s{S_I}, 7")
    a(f"s_cmp_ge_u32 s{S_I}, 8", "s_cbranch_scc1 KS_L1C")
    if NN:
        a("s_setprio 0")
        lds_wait(a, FL_G + 32 + 4, 8, "b4", sleep=2)
        a("s_setprio 3")
        pf_gu(a, 16, T2_, 8, PF0, PF0 + 8 * NN, 18, "KS_L2")
    a("s_branch KS_L2")
    a("KS_L1C:")
    if NC: pf_gu(a, 16, T2_, 8, PF0 + 8 * NN, PF1, 18, "KS_L2")
    a("KS_L2:")
    a(f"s_mov_b32 s{S_G}, 0")
    a("KS_L2B:")
    srd(a, R0, P_WS, XBYTES, WS_UT)
    a("v_lshrrev_b32 v7, 1, v1", "v_lshlrev_b32 v7, 6, v7", "v_and_b32 v10, 1, v1", "v_lshl_add_u32 v7, v10, 4, v7", "v_lshlrev_b32 v9, 4, v1")
    a(f"s_lshl_b32 s{T0_}, s{S_WAVE}, 11", f"s_lshl_b32 s{T1_}, s{S_B2}, 13", f"s_add_u32 s{T1_}, s{T1_}, s{T0_}")
    if SWU:
        a(f"s_lshl_b32 s{T2_}, s{S_B2}, 7", f"s_and_b32 s{T3_}, s{T2_}, 0x380", f"v_xor_b32 v13, s{T3_}, v9", f"s_and_b32 s{T2_}, s{T2_}, 0x1c00", f"s_xor_b32 s{T1_}, s{T1_}, s{T2_}")
    else: a("v_mov_b32 v13, v9")
    a(f"s_xor_b32 s{T5_}, s{T1_}, 0x400")
    a(f"s_lshl_b32 s{T3_}, s{S_XC}, 3", f"s_add_u32 s{T3_}, s{T3_}, s{S_I}", f"s_add_u32 s{T3_}, s{T3_}, {512 - 24}")
    a(f"s_lshr_b32 s{T4_}, s{T3_}, 1", f"s_lshl_b32 s{T4_}, s{T4_}, 13", f"s_and_b32 s{T3_}, s{T3_}, 1", f"s_lshl_b32 s{T3_}, s{T3_}, 5")
    a(f"s_add_u32 s{T3_}, s{T3_}, s{T4_}", f"s_add_u32 s{T3_}, s{T3_}, s{T0_}")
    if SWU:
        a(f"s_lshr_b32 s{T4_}, s{T4_}, 6", f"s_and_b32 s{T2_}, s{T4_}, 0x780", f"v_xor_b32 v7, s{T2_}, v7", f"s_and_b32 s{T4_}, s{T4_}, 0x1800", f"s_xor_b32 s{T3_}, s{T3_}, s{T4_}")
    a(f"s_cmp_lt_u32 s{S_I}, 24", f"s_cselect_b32 s{T3_}, {XBYTES}, s{T3_}", f"s_cselect_b32 s{T2_}, 0, {hex(TAGM)}")
    a(f"v_mov_b32_dpp v64, v58 quad_perm:[0,1,0,1] {DPPM}", f"v_mov_b32_dpp v65, v58 quad_perm:[2,3,2,3] {DPPM}")
    a(f"s_bitcmp1_b32 s{S_I}, 0", "s_cselect_b64 vcc, -1, 0", "v_cndmask_b32 v64, v64, v65, vcc")
    for d in range(4): a(f"v_and_b32 v{60+d}, {hex(TAGM)}, v{58-d}")
    for d in range(3, 0, -1): a(f"v_lshrrev_b32 v{64+d}, {3*d}, v64")
    for d in range(4): a(f"v_and_b32 v{64+d}, s{T2_}, v{64+d}")
    a(f"s_lshl_b32 s{T4_}, s{S_WAVE}, 10", f"s_add_u32 s{T4_}, s{T4_}, {C_U + 480}")
    a("v_bfe_u32 v11, v1, 1, 1", f"v_mul_u32_u24 v11, {U_SIZE}, v11", "v_lshl_add_u32 v11, v10, 4, v11", "v_lshrrev_b32 v10, 2, v1", "v_lshl_add_u32 v11, v10, 5, v11", f"v_add_u32 v11, s{T4_}, v11")
    a(f"v_add_u32 v10, s{T4_}, v9")
    a(f"v_mov_b32 v116, s{S_WAVE}")
    a(f"s_add_u32 s{T0_}, s{T0_}, {hex(WS_FLAG1)}", "v_lshrrev_b32 v12, 2, v1", "v_lshl_add_u32 v12, v12, 6, v59", f"v_add_u32 v12, s{T0_}, v12")
    UT = eval(os.environ.get("UT", "(20, 4, 24)"))
    a(f"s_cmp_lt_u32 s{S_I}, 8", f"s_cselect_b32 s{T2_}, {UT[0]}, {UT[1]}", f"s_cmp_ge_u32 s{S_I}, 24", f"s_cselect_b32 s{T2_}, {UT[2]}, s{T2_}", f"v_mov_b32 v14, s{T2_}")
    a("s_setprio 0")
    a("s_waitcnt vmcnt(0)")
    a(f"ds_write_b8 v116, v{VONE} offset:{FL_UTOK + 4}")
    stamp(a, 8)
    lds_wait(a, FL_G, 8, "b4", addr=14, sleep=2)
    a("s_setprio 3")
    stamp(a, 5)
    if ENV("UDELAY", 0): a(f"s_sleep {ENV('UDELAY', 0)}")
    lp = newlabel("UP"); l1 = newlabel("UPE")
    UM = os.environ.get("UMOD", "sc1").replace("_", " ")
    MK = [6, 8, 10, 12]
    if ENV("MPOLL", 0):
        for m in MK: a(f"s_mov_b64 s[{m}:{m+1}], -1")
        a(f"s_mov_b32 s{SP0}, {hex(TAGM)}")
    a(f"s_branch {l1}")
    a(f"{lp}:")
    a(f"s_sleep {ENV('USLEEP', 2)}")
    a(f"{l1}:")
    if ENV("MPOLL", 0):
        lds = [f"buffer_load_dwordx4 v[20:23], v13, s[{R0}:{R0+3}], s{T1_} offen {UM}", f"buffer_load_dwordx4 v[24:27], v13, s[{R0}:{R0+3}], s{T5_} offen {UM}",
               f"buffer_load_dwordx4 v[28:31], v7, s[{R0}:{R0+3}], s{T3_} offen {UM}"]
        for k in range(3): a(f"s_mov_b64 exec, s[{MK[k]}:{MK[k]+1}]", lds[k])
        a(f"s_mov_b64 exec, s[{MK[3]}:{MK[3]+1}]")
        a(f"global_load_dword v32, v12, s[{P_WS}:{P_WS+1}] sc1", f"global_load_dword v33, v12, s[{P_WS}:{P_WS+1}] offset:1024 sc1")
        guard(a)
        for k in range(3):
            a(f"s_mov_b64 exec, s[{MK[k]}:{MK[k]+1}]", f"s_waitcnt vmcnt({4-k})")
            for d in range(4): a(f"v_xor_b32 v{20+4*k+d}, v{(64 if k == 2 else 60)+d}, v{20+4*k+d}")
            a(f"v_or3_b32 v44, v{20+4*k}, v{21+4*k}, v{22+4*k}", f"v_bitop3_b32 v44, v44, v{23+4*k}, s{SP0} bitop3:0xa8", f"v_cmp_ne_u32 s[{MK[k]}:{MK[k]+1}], 0, v44")
        a(f"s_mov_b64 exec, s[{MK[3]}:{MK[3]+1}]", "s_waitcnt vmcnt(0)")
        a("v_xor_b32 v32, v58, v32", "v_bitop3_b32 v32, v32, v58, v33 bitop3:0xf6", f"v_cmp_ne_u32 s[{MK[3]}:{MK[3]+1}], 0, v32")
        a(f"s_or_b64 vcc, s[{MK[0]}:{MK[0]+1}], s[{MK[1]}:{MK[1]+1}]", f"s_or_b64 vcc, vcc, s[{MK[2]}:{MK[2]+1}]", f"s_or_b64 vcc, vcc, s[{MK[3]}:{MK[3]+1}]", f"s_cbranch_scc1 {lp}")
        a("s_mov_b64 exec, -1")
    else:
        a(f"global_load_dword v32, v12, s[{P_WS}:{P_WS+1}] {MOD('FMOD')}", f"global_load_dword v33, v12, s[{P_WS}:{P_WS+1}] offset:1024 {MOD('FMOD')}")
        a(f"buffer_load_dwordx4 v[20:23], v13, s[{R0}:{R0+3}], s{T1_} offen {UM}")
        a(f"buffer_load_dwordx4 v[24:27], v13, s[{R0}:{R0+3}], s{T5_} offen {UM}")
        a(f"buffer_load_dwordx4 v[28:31], v7, s[{R0}:{R0+3}], s{T3_} offen {UM}")
        guard(a)
        for k in range(3):
            a(f"s_waitcnt vmcnt({2-k})")
            if k == 0: a("v_xor_b32 v32, v58, v32", "v_xor_b32 v33, v58, v33")
            for d in range(4): a(f"v_xor_b32 v{20+4*k+d}, v{(64 if k == 2 else 60)+d}, v{20+4*k+d}")
            a(f"v_or3_b32 v44, v{20+4*k}, v{21+4*k}, v{44 if k else 21}", f"v_or3_b32 v44, v{22+4*k}, v{23+4*k}, v44")
        a(f"v_and_b32 v44, {hex(TAGM)}, v44", "v_or3_b32 v44, v44, v32, v33", "v_cmp_ne_u32 vcc, 0, v44", f"s_cbranch_vccnz {lp}")
    stamp(a, 6)
    a("ds_write_b128 v11, v[20:23]", "ds_write_b128 v11, v[24:27] offset:512", f"ds_write_b128 v10, v[28:31] offset:{2*U_SIZE}")
    a(f"ds_write_b8 v116, v{VONE} offset:{FL_UF}")
    stamp(a, 7)
    gen_wjobs(a)
    a("s_setprio 0")
    a(f"s_lshr_b32 s{T0_}, s{S_B2}, 6", f"s_lshl_b32 s{T0_}, s{T0_}, 9")
    a(f"s_bfe_u32 s{T1_}, s{S_B2}, 0x20004", f"s_lshl_b32 s{T1_}, s{T1_}, 6", f"s_add_u32 s{T0_}, s{T0_}, s{T1_}")
    a(f"s_and_b32 s{T1_}, s{S_B2}, 3", f"s_lshl_b32 s{T1_}, s{T1_}, 4", f"s_add_u32 s{T0_}, s{T0_}, s{T1_}")
    a(f"s_and_b32 s{T1_}, s{S_B2}, 12", f"s_add_u32 s{T0_}, s{T0_}, s{T1_}")
    a(f"s_lshr_b32 s{T1_}, s{S_WAVE}, 1", f"s_lshl_b32 s{T1_}, s{T1_}, 8", f"s_add_u32 s{T0_}, s{T0_}, s{T1_}")
    a(f"s_and_b32 s{T1_}, s{S_WAVE}, 1", f"s_lshl_b32 s{T1_}, s{T1_}, 1", f"s_add_u32 s{T0_}, s{T0_}, s{T1_}")
    a("v_lshrrev_b32 v113, 5, v1", "v_and_b32 v114, 31, v1")
    a(f"v_add_u32 v112, s{T0_}, v113")
    a("v_mul_u32_u24 v115, 1152, v112", "v_lshl_add_u32 v8, v114, 2, v115", "v_lshl_add_u32 v115, v114, 4, v115", "v_lshlrev_b32 v7, 2, v114", "v_lshlrev_b32 v6, 4, v114")
    a(f"v_bfe_u32 v111, v1, 3, 1", f"v_add_u32 v111, s{T0_}, v111", "v_mul_u32_u24 v111, 1152, v111", "v_and_b32 v9, 7, v1", "v_lshl_add_u32 v111, v9, 4, v111")
    srd(a, R0, P_X, XBYTES)
    srd(a, R1, P_WR, 1152)
    a(f"buffer_load_dwordx4 v[10:13], v115, s[{R0}:{R0+3}], 0 offen")
    a(f"buffer_load_dwordx4 v[14:17], v115, s[{R0}:{R0+3}], 0 offen offset:512")
    a(f"buffer_load_dword v18, v8, s[{R0}:{R0+3}], 0 offen offset:1024")
    a(f"buffer_load_dwordx4 v[50:53], v6, s[{R1}:{R1+3}], 0 offen")
    a(f"buffer_load_dwordx4 v[54:57], v6, s[{R1}:{R1+3}], 0 offen offset:512")
    a(f"buffer_load_dword v58, v7, s[{R1}:{R1+3}], 0 offen offset:1024")
    if not PTAG:
        a(f"s_cmp_lt_u32 s{S_I}, 18", "s_cbranch_scc1 KS_L4")
        a(f"s_mul_i32 s{T0_}, s{S_XC}, 14", f"s_add_u32 s{T0_}, s{T0_}, s{S_I}", f"s_mul_i32 s{T0_}, s{T0_}, {CLRP_WG}", f"s_add_u32 s{T0_}, s{T0_}, {hex(WS_PART - 18*CLRP_WG)}")
        a(f"s_add_u32 s{R1}, s{P_WS}, s{T0_}", f"s_addc_u32 s{R1+1}, s{P_WS+1}, 0", f"s_mov_b32 s{R1+2}, {CLRP_WG}", f"s_mov_b32 s{R1+3}, 0x20000")
        a("v_lshlrev_b32 v6, 4, v0", "v_mov_b32 v60, -1", "v_mov_b32 v61, -1", "v_mov_b32 v62, -1", "v_mov_b32 v63, -1")
        for k in range(6):
            a(f"s_movk_i32 s{T0_}, {4096*k}")
            a(f"buffer_store_dwordx4 v[60:63], v6, s[{R1}:{R1+3}], s{T0_} offen sc1")
    a("KS_L4:")
    srd(a, R0, P_WS, 0x240000, WS_ZB1)
    srd(a, R1, P_OUT, XBYTES)
    srd(a, R2_, P_WS, XBYTES, WS_X2)
    srd(a, R3, P_WS, 12288, WS_KEYS)
    if not XCL:
        for d in range(4): a(f"v_mov_b32 v{60+d}, -1")
        a(f"buffer_store_dwordx4 v[60:63], v115, s[{R2_}:{R2_+3}], 0 offen sc1")
        a(f"buffer_store_dwordx4 v[60:63], v115, s[{R2_}:{R2_+3}], 0 offen offset:512 sc1")
        a("s_mov_b64 exec, 0xffff")
        a(f"buffer_store_dwordx4 v[60:63], v111, s[{R2_}:{R2_+3}], 0 offen offset:1024 sc1")
        a("s_mov_b64 exec, -1")
    a(f"s_not_b32 s{T1_}, s{S_B2}", f"v_xor_b32 v8, s{T1_}, v0")
    a("v_lshrrev_b32 v6, 1, v0", "v_lshlrev_b32 v6, 6, v6", "v_and_b32 v8, 1, v8", "v_lshl_add_u32 v6, v8, 4, v6")
    a(f"s_lshr_b32 s{T0_}, s{S_B2}, 2", f"s_lshl_b32 s{T0_}, s{T0_}, 15", f"s_and_b32 s{T1_}, s{S_B2}, 1", f"s_lshl_b32 s{T1_}, s{T1_}, 14", f"s_add_u32 s{T0_}, s{T0_}, s{T1_}")
    a(f"s_and_b32 s{T1_}, s{S_B2}, 2", f"s_lshl_b32 s{T1_}, s{T1_}, 4", f"s_add_u32 s{T0_}, s{T0_}, s{T1_}")
    a(f"s_lshr_b32 s{T2_}, s{S_B2}, 2", f"s_lshl_b32 s{T2_}, s{T2_}, 12", f"s_and_b32 s{T1_}, s{S_B2}, 3", f"s_lshl_b32 s{T1_}, s{T1_}, 4")
    a(f"s_add_u32 s{T2_}, s{T2_}, s{T1_}", f"s_lshl_b32 s{T1_}, s{S_WAVE}, 10", f"s_add_u32 s{T2_}, s{T2_}, s{T1_}", f"s_add_u32 s{T2_}, s{T2_}, 0x200000")
    a("v_lshlrev_b32 v9, 6, v2")
    if SWZ:
        a(f"s_lshl_b32 s{T1_}, s{S_B2}, 5", f"s_and_b32 s{T3_}, s{T1_}, 0x1f80", f"v_xor_b32 v6, s{T3_}, v6", f"s_and_b32 s{T3_}, s{T1_}, 0x380", f"v_xor_b32 v9, s{T3_}, v9")
        a(f"s_and_b32 s{T3_}, s{T1_}, 0xc00", f"s_xor_b32 s{T2_}, s{T2_}, s{T3_}", f"s_and_b32 s{T1_}, s{S_B2}, 1", f"s_lshl_b32 s{T1_}, s{T1_}, 13", f"s_xor_b32 s{T0_}, s{T0_}, s{T1_}")
    a(f"s_xor_b32 s{T1_}, s{T0_}, 0x2000")
    a(f"s_mul_i32 s{T3_}, s{S_WAVE}, 2304", f"s_add_u32 s{T3_}, s{T3_}, {C_XR}", f"v_lshl_add_u32 v117, v114, 5, s{T3_}", f"v_lshl_add_u32 v110, v114, 3, s{T3_}")
    a(f"s_lshl_b32 s{T3_}, s{S_WAVE}, 9", f"s_add_u32 s{T3_}, s{T3_}, {G_BASE}", f"v_lshl_add_u32 v108, v1, 2, s{T3_}", f"v_lshl_add_u32 v109, v1, 4, s{T3_}")
    a(f"s_mov_b32 s{T3_}, 0x02020000", f"v_mul_lo_u32 v118, v113, s{T3_}", "v_add_u32 v118, 0x01000c0c, v118")
    a(f"v_lshlrev_b32 v8, 2, v0", f"v_add_u32 v8, {C_XR}, v8")
    a(f"s_lshl_b32 s{T3_}, s{S_WAVE}, 6", f"s_add_u32 s{T3_}, s{T3_}, {C_XR + 2048}", f"v_lshl_add_u32 v119, v2, 2, s{T3_}")
    a("s_waitcnt vmcnt(0)")
    X = 20
    for j in range(9): unpack(a, X + 2 * j, 10 + j)
    WU, WS_ = 80, 78
    for j in range(9): unpack(a, WU + 2 * j, 50 + j)
    a(f"v_pk_add_f32 v[{WS_}:{WS_+1}], v[{WU}:{WU+1}], v[{WU+2}:{WU+3}]")
    for j in range(2, 9): a(f"v_pk_add_f32 v[{WS_}:{WS_+1}], v[{WS_}:{WS_+1}], v[{WU+2*j}:{WU+2*j+1}]")
    a(f"v_add_f32 v{WS_}, v{WS_}, v{WS_+1}")
    red32(a, "v_add_f32", WS_, WS_ + 1)
    a("v_sub_u32 v98, 0x87ff, v112", "v_lshl_add_u32 v99, v116, 1, v113", "v_lshlrev_b32 v99, 2, v99")
    ZG2 = ENV("ZG2", 0)
    if ZG2:
        lds_wait(a, {1: FL_ZDONE, 2: FL_ZISS}[ZG2], 60, "b4", sleep=1)
        zpoll(a, [f"buffer_load_dwordx4 v[68:71], v{VZ}, s[{R0}:{R0+3}], s{T2_} offen sc1"], list(range(68, 72)), ENV("ZSLEEP2", 2))
    lds_wait(a, FL_ZDONE + 4, 60, "b4", sleep=1)
    a("s_setprio 3")
    if PFD2 > PFD:
        W3 = ENV("PF3W", 6)
        a(f"s_sub_u32 s{T5_}, s{S_I}, 18", f"s_cmp_ge_u32 s{T5_}, {W3}", "s_cbranch_scc1 KS_PF3E", f"s_cmp_lg_u32 s{S_WAVE}, 2", "s_cbranch_scc1 KS_PF3E")
        pf_down(a, T5_, W3, PFD, PFD2, 100, 120, "KS_PF3E", R4)
        a("KS_PF3E:")
    stamp2(a, 1)
    if ENV("ZGATE", 1) and not ZG2:
        zpoll(a, [f"buffer_load_dwordx4 v[68:71], v{VZ}, s[{R0}:{R0+3}], s{T2_} offen sc1"], list(range(68, 72)), ENV("ZSLEEP", 1))
        if ENV("ZDELAY", 0): a(f"s_sleep {ENV('ZDELAY', 0)}")
    lp = newlabel("ZP"); l1 = newlabel("ZPE")
    a(f"s_branch {l1}", f"{lp}:", f"s_sleep {ENV('ZSLEEP', 1)}", f"{l1}:")
    a(f"buffer_load_dwordx4 v[60:63], v6, s[{R0}:{R0+3}], s{T0_} offen sc1",
      f"buffer_load_dwordx4 v[64:67], v6, s[{R0}:{R0+3}], s{T1_} offen sc1",
      f"buffer_load_dwordx4 v[68:71], v9, s[{R0}:{R0+3}], s{T2_} offen sc1")
    guard(a)
    for k in range(3):
        a(f"s_waitcnt vmcnt({2-k})")
        ad, o = (8, 4 * k) if k < 2 else (119, 0)
        a(f"ds_write2st64_b32 v{ad}, v{60+4*k}, v{61+4*k} offset0:{o} offset1:{9+o}")
        a(f"ds_write2st64_b32 v{ad}, v{62+4*k}, v{63+4*k} offset0:{18+o} offset1:{27+o}")
        a(f"v_max3_u32 v44, v{60+4*k}, v{61+4*k}, v{44 if k else 61}", f"v_max3_u32 v44, v{62+4*k}, v{63+4*k}, v44")
    a("v_cmp_eq_u32 vcc, -1, v44", f"s_cbranch_vccnz {lp}")
    a(f"ds_write_b8 v116, v{VONE} offset:{FL_ZF}")
    stamp2(a, 3)
    lp = newlabel("ZW")
    a(f"{lp}:")
    a(f"ds_read_b32 v44, v{VZ} offset:{FL_ZF}")
    for k in range(4):
        a(f"ds_read_b128 v[{60+4*k}:{63+4*k}], v117 offset:{1024*(k>>1) + 16*(k&1)}")
    a("ds_read_b64 v[76:77], v110 offset:2048")
    guard(a)
    a("s_waitcnt lgkmcnt(5)")
    a(f"v_cmp_ne_u32 vcc, s{S_ONES}, v44", f"s_cbranch_vccnz {lp}")
    for j in range(9):
        if j % 2 == 0: a(f"s_waitcnt lgkmcnt({4-j//2})")
        a(f"v_perm_b32 v{60+2*j}, v{60+2*j}, v{60+2*j}, v118", f"v_perm_b32 v{61+2*j}, v{61+2*j}, v{61+2*j}, v118")
        h = f"v[{X+2*j}:{X+2*j+1}]"
        a(f"v_pk_add_f32 {h}, v[{60+2*j}:{61+2*j}], {h}")
        if j == 0: a(f"v_pk_mul_f32 v[42:43], {h}, {h}", f"v_pk_mul_f32 v[44:45], {h}, v[{WU}:{WU+1}]")
        else:
            a(f"v_pk_fma_f32 v[42:43], {h}, {h}, v[42:43]", f"v_pk_fma_f32 v[44:45], {h}, v[{WU+2*j}:{WU+2*j+1}], v[44:45]")
            a(f"v_pk_add_f32 v[40:41], {h}, " + (f"v[{X}:{X+1}]" if j == 1 else "v[40:41]"))
    a("v_add_f32 v42, v42, v43", "v_add_f32 v44, v44, v45", "v_add_f32 v40, v40, v41")
    a("v_mov_b32 v41, v40", "v_permlane16_swap_b32 v42, v44", "v_permlane16_swap_b32 v40, v41")
    a("v_add_f32 v42, v42, v44", "v_add_f32 v40, v40, v41")
    for r in (8, 4, 2, 1):
        a(f"v_add_f32_dpp v42, v42, v42 row_ror:{r} {DPPM}", f"v_add_f32_dpp v40, v40, v40 row_ror:{r} {DPPM}")
    a(f"v_mul_f32 v40, {f32(1.0/576)}, v40", "v_mov_b32 v44, v42")
    a("v_cvt_pk_bf16_f32 v41, 0, v40", "v_mul_f32 v40, v40, v40")
    a("v_permlane16_swap_b32 v42, v44")
    a(f"v_mov_b32 v43, {f32(1.0/576)}", "v_fma_f32 v42, v42, v43, -v40", f"v_fma_f32 v44, -v41, v{WS_}, v44", "v_max_f32 v42, 0, v42")
    a(f"v_cvt_pk_bf16_f32 v42, 0, v42", f"v_add_f32 v42, {f32(1e-5)}, v42")
    a(f"v_cvt_pk_bf16_f32 v42, 0, v42", "v_sqrt_f32 v42, v42")
    a(f"v_cvt_pk_bf16_f32 v42, 0, v42", "v_rcp_f32 v42, v42")
    a("v_mul_f32 v60, v44, v42")
    a("v_cvt_pk_bf16_f32 v60, v60, v60")
    a("v_ashrrev_i32 v61, 31, v60", "v_or_b32 v61, 0x80000000, v61", f"s_mov_b32 s{T3_}, 0xffff0000", "v_xor_b32 v60, v60, v61", f"v_and_or_b32 v60, v60, s{T3_}, v98")
    a("s_mov_b32 exec_lo, 1", "s_mov_b32 exec_hi, 1")
    a(f"ds_write_b32 v99, v60 offset:{C_KEY}")
    a("s_mov_b64 exec, -1")
    stamp2(a, 4)
    a(f"s_setprio {ENV('L2PRIO', 2)}")
    for j in range(9):
        rnd2(a, X + 2 * j)
    ln_stats(a, X, 40, 42, 44, 46, 48)
    for j in range(9):
        ln_apply_pair(a, X + 2 * j, 40, 42, 44, 10 + j)
        a(f"v_pk_add_f32 v[{X+2*j}:{X+2*j+1}], v[44:45], v[{X+2*j}:{X+2*j+1}]")
        if XCL != 2: a(f"v_min_u32 v{10+j}, -2, v{10+j}")
    a(f"v_cvt_pk_bf16_f32 v58, v{X+16}, v{X+17}")
    a("ds_write_b32 v108, v18", "ds_write_b32 v108, v58 offset:256", "ds_read_b128 v[64:67], v109")
    a(f"buffer_store_dwordx4 v[10:13], v115, s[{R2_}:{R2_+3}], 0 offen sc1")
    a(f"buffer_store_dwordx4 v[14:17], v115, s[{R2_}:{R2_+3}], 0 offen offset:512 sc1")
    for j in range(8):
        a(f"v_cvt_pk_bf16_f32 v{50+j}, v{X+2*j}, v{X+2*j+1}")
    a("s_mov_b64 exec, 0xffff")
    a("s_waitcnt lgkmcnt(0)")
    a(f"buffer_store_dwordx4 v[64:67], v111, s[{R2_}:{R2_+3}], 0 offen offset:1024 sc1")
    if ENV("OD", 0): a("s_setprio 0", f"s_sleep {ENV('OD', 0)}")
    a("s_mov_b64 exec, 0xffff0000")
    a(f"buffer_store_dwordx4 v[64:67], v111, s[{R1}:{R1+3}], 0 offen offset:1024 sc1")
    a("s_mov_b64 exec, -1")
    a(f"buffer_store_dwordx4 v[50:53], v115, s[{R1}:{R1+3}], 0 offen sc1")
    a(f"buffer_store_dwordx4 v[54:57], v115, s[{R1}:{R1+3}], 0 offen offset:512 sc1")
    stamp2(a, 5)
    a("s_waitcnt vmcnt(0)")
    a("s_mov_b64 exec, 1")
    a(f"ds_add_rtn_u32 v62, v{VZ}, v{VONE} offset:{FL_F2CNT}")
    a("s_waitcnt lgkmcnt(0)")
    a("v_cmp_eq_u32 vcc, 3, v62", "s_and_b64 exec, exec, vcc", "s_cbranch_execz KS_NOF2")
    a(f"s_lshl_b32 s{T0_}, s2, 4", f"s_add_u32 s{T0_}, s{T0_}, 8192")
    a(f"buffer_store_dword v{VONE}, v{VZ}, s[{R3}:{R3+3}], s{T0_} offen sc1")
    a("KS_NOF2:")
    a("s_mov_b64 exec, -1")
    a("s_setprio 0")
    a(f"s_cmp_lt_u32 s{S_I}, 18", "s_cbranch_scc1 KS_B")
    a("s_waitcnt lgkmcnt(0)")
    endwave(a)
    a("KS_T:")
    a("s_setprio 0")
    a(f"s_cmp_ge_u32 s{S_WAVE}, 10", "s_cbranch_scc1 KS_P")
    a("v_and_b32 v6, 1, v1", "v_subrev_u32 v6, 1, v6")
    a("v_and_b32 v7, 7, v1", "v_lshlrev_b32 v7, 2, v7")
    srd(a, R3, P_WS, 12288, WS_KEYS)
    a(f"s_cmp_eq_u32 s{S_WAVE}, 9", "s_cbranch_scc1 KS_W9")
    a(f"s_cmp_eq_u32 s{S_WAVE}, 8", "s_cbranch_scc1 KS_L2W")
    a(f"s_sub_u32 s{T1_}, s{S_WAVE}, 4", f"s_lshl_b32 s{T0_}, s{T1_}, 10", f"v_lshl_add_u32 v33, v1, 4, s{T0_}", f"s_movk_i32 s{T0_}, 4096")
    a(f"s_lshl_b32 s{T1_}, s{T1_}, 7", "v_lshlrev_b32 v32, 4, v2", "v_lshl_add_u32 v32, v3, 5, v32", f"v_add_u32 v32, s{T1_}, v32")
    lds_wait(a, FL_KACK, 8, "nz", sleep=1)
    a("s_setprio 2")
    if ENV('KDELAY', 12): a(f"s_sleep {ENV('KDELAY', 12)}")
    stamp2(a, 1)
    zpoll(a, [f"buffer_load_dwordx4 v[8:11], v33, s[{R3}:{R3+3}], 0 offen sc1",
           f"buffer_load_dwordx4 v[12:15], v33, s[{R3}:{R3+3}], s{T0_} offen sc1"], list(range(8, 16)), ENV("KSLEEP", 4))
    a(f"ds_write_b32 v{VZ}, v{VONE} offset:{FL_KSEEN}")
    stamp2(a, 2)
    pool = Pool(range(16, 28))
    x = [8, 9, 10, 11]; y = [12, 13, 14, 15]
    for (i, j) in ((0, 1), (2, 3), (0, 2), (1, 3), (1, 2)):
        ce_inlane(a, x, i, j, pool); ce_inlane(a, y, i, j, pool)
    clean8(a, x, pool, 6, rev=True); clean8(a, y, pool, 6, rev=True)
    merge_pair(a, x, y, pool); clean8(a, x, pool, 6)
    for M in MIRRORS:
        merge_mirror(a, x, pool, M); clean8(a, x, pool, 6)
    for i in range(4): a(f"v_mov_b32 v{28+i}, v{x[i]}")
    a("s_mov_b32 exec_lo, 0x00030003", "s_mov_b32 exec_hi, 0x00030003")
    a(f"ds_write_b128 v32, v[28:31] offset:{C_CAND}")
    a("s_mov_b64 exec, -1")
    stamp2(a, 3)
    a("s_setprio 0")
    a("s_branch KS_B")
    a("KS_L2W:")
    srd(a, R2_, P_WS, XBYTES, WS_X2)
    a(f"s_mov_b32 s{T0_}, 0xcccccccc", f"s_mov_b32 s{T1_}, 0xcccccccc", f"s_mov_b32 s{T2_}, 0xf0f0f0f0", f"s_mov_b32 s{T3_}, 0xf0f0f0f0", f"s_movk_i32 s{T4_}, 1152")
    a("v_lshrrev_b32 v34, 3, v1", "v_lshlrev_b32 v34, 4, v34", "v_lshlrev_b32 v33, 4, v2")
    lds_wait(a, FL_KACK, 8, "nz", sleep=1)
    a("s_setprio 2")
    a("KS_L2POLL:")
    a(f"ds_read_b128 v[8:11], v33 offset:{C_CAND}")
    a(f"ds_read_b128 v[12:15], v33 offset:{C_CAND + 256}")
    guard(a)
    a("s_waitcnt lgkmcnt(0)")
    a("v_min3_u32 v16, v8, v9, v10", "v_min3_u32 v17, v11, v12, v13", "v_min3_u32 v16, v16, v14, v15", "v_min_u32 v16, v16, v17", "v_cmp_eq_u32 vcc, 0, v16")
    a("s_cbranch_vccnz KS_L2POLL")
    stamp2(a, 1)
    pool = Pool(range(16, 28))
    x = [8, 9, 10, 11]; y = [12, 13, 14, 15]
    merge_pair(a, x, y, pool); clean8(a, x, pool, 6)
    for li, M in enumerate(MIRRORS):
        merge_mirror(a, x, pool, M)
        if li < 2: clean8(a, x, pool, 6)
    a(f"v_cndmask_b32 v30, v{x[0]}, v{x[1]}, s[{T0_}:{T1_}]", f"v_cndmask_b32 v31, v{x[2]}, v{x[3]}, s[{T0_}:{T1_}]", f"v_cndmask_b32 v30, v30, v31, s[{T2_}:{T3_}]")
    if RDMA:
        a("v_mov_b32_dpp v30, v30 row_shr:8 row_mask:0xf bank_mask:0xc")
        a("v_and_b32 v31, 0x7ff, v30", "v_sub_u32 v31, 2047, v31", f"v_mad_u32_u24 v31, v31, s{T4_}, v34")
        for k in range(9):
            a(f"s_mov_b32 m0, {C_XR + 896*k}")
            a(f"buffer_load_dwordx4 v31, s[{R2_}:{R2_+3}], 0 offen offset:{128*k} sc1 lds")
        a(f"ds_write_b32 v7, v30 offset:{C_SEL}")
        stamp2(a, 2)
        a("s_waitcnt vmcnt(0)")
        a(f"ds_write_b32 v{VZ}, v{VONE} offset:{FL_XRDY}")
        stamp2(a, 3)
    else:
        a("s_mov_b64 exec, 0xff")
        a(f"ds_write_b32 v7, v30 offset:{C_SEL}")
        a("s_mov_b64 exec, -1")
        stamp2(a, 2)
    a("s_setprio 0")
    a("s_branch KS_B")
    a("KS_W9:")
    a("v_lshlrev_b32 v33, 4, v1", f"s_movk_i32 s{T0_}, 0x2000")
    srd(a, R2_, P_WS, XBYTES, WS_X2)
    srd(a, R0, P_WS, 0x240000, WS_ZB1)
    srd(a, R1, P_X, XBYTES)
    a("v_bfe_u32 v43, v1, 2, 3", f"s_lshl_b32 s{T1_}, s{S_BLK}, 3", f"v_add_u32 v43, s{T1_}, v43")
    a("v_bfe_u32 v40, v43, 4, 1", "v_and_b32 v41, 3, v1", "v_lshl_add_u32 v40, v40, 2, v41", "v_lshlrev_b32 v40, 2, v40")
    a("v_lshrrev_b32 v41, 5, v43", "v_lshlrev_b32 v41, 4, v41", "v_and_b32 v42, 15, v43", "v_add_u32 v41, v41, v42")
    lds_wait(a, C_SEL, 12, "nz", addr=7, sleep=1)
    stamp2(a, 2)
    a(f"ds_read_b32 v19, v40 offset:{C_SEL}")
    a("s_waitcnt lgkmcnt(0)")
    a("v_and_b32 v14, 0x7ff, v19", "v_sub_u32 v14, 2047, v14")
    a("v_mul_u32_u24 v23, 1152, v14", "v_lshl_add_u32 v23, v41, 1, v23")
    a(f"buffer_load_ushort v17, v23, s[{R1}:{R1+3}], 0 offen")
    a("v_lshrrev_b32 v15, 9, v14", "v_bfe_u32 v16, v14, 6, 2", "v_lshl_add_u32 v15, v15, 2, v16", "v_bfe_u32 v16, v14, 2, 2", "v_lshl_add_u32 v15, v15, 2, v16")
    a("v_bfe_u32 v16, v14, 4, 1")
    a("v_bfe_u32 v24, v14, 8, 1", "v_and_b32 v25, 3, v14", "v_lshl_add_u32 v24, v24, 2, v25", "v_lshlrev_b32 v24, 1, v24")
    a("v_bfe_u32 v25, v14, 5, 1", "v_lshl_add_u32 v24, v25, 5, v24")
    a("v_lshl_add_u32 v25, v15, 1, v16", "v_lshl_add_u32 v25, v25, 14, v24")
    a("v_lshrrev_b32 v26, 1, v41", "v_lshl_add_u32 v25, v26, 6, v25", "v_xor_b32 v26, v41, v16", "v_not_b32 v26, v26", "v_and_b32 v26, 1, v26", "v_lshl_add_u32 v25, v26, 4, v25")
    a("v_lshl_add_u32 v26, v15, 12, v24", "v_lshl_add_u32 v26, v16, 4, v26", "v_lshl_add_u32 v26, v41, 6, v26", f"v_add_u32 v26, {0x200000 - 512*64}, v26")
    if SWZ:
        a("v_lshl_add_u32 v27, v16, 6, v15", "v_lshlrev_b32 v27, 7, v27", "v_xor_b32 v25, v27, v25", "v_and_b32 v27, 0xf80, v27", "v_xor_b32 v26, v27, v26")
    a("v_cmp_gt_u32 vcc, 0x200, v41", "v_cndmask_b32 v25, v26, v25, vcc")
    a(f"buffer_load_ushort v18, v25, s[{R0}:{R0+3}], 0 offen sc1")
    a("v_ashrrev_i32 v22, 31, v19", "v_not_b32 v22, v22", "v_or_b32 v22, 0x80000000, v22", "v_xor_b32 v22, v19, v22", "v_and_b32 v22, 0xffff0000, v22")
    a(f"v_mul_f32 v22, {f32(-LOG2E)}, v22", "v_exp_f32 v22, v22", "v_add_f32 v22, 1.0, v22", "v_rcp_f32 v22, v22")
    a(f"v_cvt_pk_bf16_f32 v22, 0, v22")
    a("v_and_b32 v14, 31, v1", "v_lshlrev_b32 v14, 4, v14")
    f2l = [f"buffer_load_dword v{8+k}, v33, s[{R3}:{R3+3}], s{T0_} offen offset:{1024*k} sc1" for k in range(4)]
    if XCL == 2:
        a("s_barrier")
        zpoll(a, f2l, [8, 9, 10, 11], ENV("F2SLEEP", 4), mid="s_barrier")
        a(f"buffer_load_ushort v20, v23, s[{R2_}:{R2_+3}], 0 offen sc1")
        stamp2(a, 1)
        a("s_barrier")
        srd(a, R2_, P_WS, 64, WS_IDX)
        a("s_waitcnt vmcnt(0)")
    else:
        a("v_and_b32 v24, -4, v23", "v_and_b32 v25, 2, v23", "v_lshlrev_b32 v25, 3, v25")
        a("s_barrier")
        a("s_barrier")
        zpoll(a, f2l + [f"buffer_load_dword v20, v24, s[{R2_}:{R2_+3}], 0 offen sc1"], [8, 9, 10, 11, 20], ENV("F2SLEEP", 4), mid="s_barrier")
        stamp2(a, 1)
        srd(a, R2_, P_WS, 64, WS_IDX)
        a("v_lshrrev_b32 v20, v25, v20")
    a("v_lshlrev_b32 v17, 16, v17", "v_lshlrev_b32 v18, 16, v18", "v_add_f32 v17, v17, v18", "v_cvt_pk_bf16_f32 v17, v17, v17")
    a("v_and_b32 v21, 0xffff0000, v17", "v_lshlrev_b32 v20, 16, v20")
    a(f"ds_write_b128 v14, v[20:23] offset:{C_SIDE}")
    a("s_cmp_lg_u32 s2, 0", "s_cbranch_scc1 KS_W9E")
    a(f"buffer_store_dword v12, v7, s[{R2_}:{R2_+3}], 0 offen")
    a("KS_W9E:")
    a("s_waitcnt lgkmcnt(0)")
    stamp2(a, 3)
    endwave(a)
    a("KS_B:")
    srd(a, R0, P_WS, PART_BYTES, WS_PART)
    a("v_bfe_u32 v16, v1, 2, 2", "v_lshl_add_u32 v16, v3, 3, v16", "v_mul_u32_u24 v16, 1152, v16", "v_and_b32 v17, 3, v1", "v_lshl_add_u32 v16, v17, 3, v16")
    a(f"s_lshl_b32 s{T0_}, s{S_WAVE}, 7", f"s_add_u32 s{T0_}, s{T0_}, {C_DOWN}", f"v_add_u32 v16, s{T0_}, v16")
    if PTAG: a("v_lshlrev_b32 v18, 2, v17", f"ds_read_b32 v24, v18 offset:{FL_NONCE}", f"s_movk_i32 s{T2_}, 0xff")
    lds_wait(a, FL_DOWN, 17, "b4")
    if PTAG:
        for d in range(1, 4): a(f"v_lshrrev_b32 v{24+d}, {8*d}, v24")
    WTD = 48
    for jt in range(4):
        a(f"ds_read_b64_tr_b16 v[{WTD+4*jt}:{WTD+4*jt+1}], v16 offset:{32*jt}")
        a(f"ds_read_b64_tr_b16 v[{WTD+4*jt+2}:{WTD+4*jt+3}], v16 offset:{32*jt + 4608}")
    a("v_and_b32 v16, 7, v2", "v_lshlrev_b32 v16, 6, v16", "v_lshl_add_u32 v16, v3, 4, v16")
    a(f"s_mul_i32 s{T0_}, s{S_BLK}, {PROW}", f"s_lshl_b32 s{T1_}, s{S_WAVE}, 11", f"s_add_u32 s{T0_}, s{T0_}, s{T1_}")
    a("v_lshlrev_b32 v17, 4, v1")
    a("s_waitcnt lgkmcnt(0)")
    a("s_barrier")
    a("s_barrier")
    a(f"ds_read_b128 v[20:23], v16 offset:{C_ACT}")
    a("s_waitcnt lgkmcnt(0)")
    for j in range(4):
        a(f"v_mfma_f32_16x16x32_bf16 v[{32+4*j}:{35+4*j}], v[20:23], v[{WTD+4*j}:{WTD+4*j+3}], 0")
    for j in (0, 2):
        for r in range(4): a(f"v_permlane32_swap_b32 v{32+4*j+r}, v{36+4*j+r}")
        for r in range(4): a(f"v_bfi_b32 v{32+4*j+r}, s{T2_}, v{24+r}, v{32+4*j+r}" if PTAG else f"v_min_u32 v{32+4*j+r}, -2, v{32+4*j+r}")
        a(f"buffer_store_dwordx4 v[{32+4*j}:{35+4*j}], v17, s[{R0}:{R0+3}], s{T0_} offen offset:{512*j} sc1")
    stamp2(a, 8)
    if PE < 0: a("s_waitcnt vmcnt(0)")
    a("s_barrier")
    endwave(a)
    a("KS_G0:")
    a(f"ds_write_b8 v15, v{VONE} offset:{FL_G+4}")
    a("s_setprio 0")
    a("KS_G:")
    a(f"s_mov_b32 s{SP0}, 0x05040100", f"s_mov_b32 s{SP1}, 0x07060302")
    a("s_waitcnt vmcnt(0)" + (" lgkmcnt(0)" if SN else ""))
    stamp(a, 5)
    g_addr_setup(a, 46)
    if DE:
        srd(a, R1, P_DOWN, F * D * 2)
        a("v_lshlrev_b32 v8, 4, v1", f"s_mul_i32 s{T0_}, s{S_BLK}, 36864", f"s_mul_i32 s{T1_}, s{S_G}, 9216", f"s_add_u32 s{T0_}, s{T0_}, s{T1_}", f"s_add_u32 s{T1_}, s{T1_}, {C_DOWN}")
        def wtrig(tr):
            a(f"s_cmp_lt_u32 s{S_I}, 8", f"s_cselect_b32 s{T2_}, 0, {tr[1] - tr[0]}", f"v_mov_b32 v9, s{T2_}")
            lds_wait(a, tr[0], 10, "b4", addr=9, sleep=2)
        TG = {"B": FL_UTOK, "K": FL_UTOK + 4, "U": FL_UF, "C": FL_G + 36, "A1": FL_G, "A2": FL_G + 4, "A3": FL_G + 8, "B1": FL_G + 16, "B2": FL_G + 20, "B3": FL_G + 24}
        DTR = os.environ.get("DTR", "C,B").split(","); GTR = os.environ.get("GTR", "C,B").split(",")
        if ENV("DLAST", 0):
            wtrig([TG[x] for x in GTR])
            a(f"s_lshr_b32 s{T2_}, {ENV('GNM', 3)}, s{S_G}", f"s_bitcmp1_b32 s{T2_}, 0", "s_cbranch_scc1 KS_GD1")
            a(f"s_and_b32 s{T2_}, s{S_G}, 1", f"s_mul_i32 s{T1_}, s{T2_}, 18432", f"s_mul_i32 s{T0_}, s{S_BLK}, 36864", f"s_add_u32 s{T0_}, s{T0_}, s{T1_}", f"s_add_u32 s{T1_}, s{T1_}, {C_DOWN}")
        wtrig([TG["C"], TG["B"]])
        if DTR != ["C", "B"]: wtrig([TG[x] for x in DTR])
        if DEA: a(f"s_cmp_ge_u32 s{S_I}, 8", "s_cbranch_scc1 KS_GD1")
        for k in range(18 if ENV("DLAST", 0) else 9):
            if k % 4 == 0:
                a(f"s_add_u32 m0, s{T1_}, {1024*k}")
                if k: a(f"s_add_u32 s{T0_}, s{T0_}, 4096")
            a(f"buffer_load_dwordx4 v8, s[{R1}:{R1+3}], s{T0_} offen offset:{1024*(k&3)} {MOD('DM', 'nt')} lds")
        if GTR != DTR and not ENV("DLAST", 0): wtrig([TG[x] for x in GTR])
        a("KS_GD1:")
        if ENV("GPRIO", 0): a(f"s_setprio {ENV('GPRIO', 0)}")
    SG = eval(os.environ.get("SG", "[0,0,0,0]"))
    if any(SG):
        a(f"s_mul_i32 s{T0_}, s{S_ROLE}, {32*9216}", f"s_lshl_b32 s{T1_}, s{S_BLK}, 6", f"s_add_u32 s{T0_}, s{T0_}, s{T1_}")
        a(f"s_add_u32 s{R0}, s{P_GATE}, s{T0_}", f"s_addc_u32 s{R0+1}, s{P_GATE+1}, 0", f"s_add_u32 s{R0+2}, s{P_UP}, s{T0_}", f"s_addc_u32 s{R0+3}, s{P_UP+1}, 0")
        cnt = sum(SG[g] << (8 * g) for g in range(4))
        a(f"s_lshl_b32 s{T1_}, s{S_G}, 3", f"s_lshr_b32 s{T1_}, {hex(cnt)}, s{T1_}", f"s_and_b32 s{T1_}, s{T1_}, 0xff", "s_cbranch_scc0 KS_SGE")
        a("KS_SGL:")
        for r in range(8):
            a(f"s_load_dword s{R1}, s[{R0}:{R0+1}], {r*9216}", f"s_load_dword s{R1+1}, s[{R0+2}:{R0+3}], {r*9216}")
        a(f"s_add_u32 s{R0}, s{R0}, {8*9216}", f"s_addc_u32 s{R0+1}, s{R0+1}, 0", f"s_add_u32 s{R0+2}, s{R0+2}, {8*9216}", f"s_addc_u32 s{R0+3}, s{R0+3}, 0")
        a(f"s_sub_u32 s{T1_}, s{T1_}, 1", f"s_cmp_lg_u32 s{T1_}, 0", "s_cbranch_scc1 KS_SGL")
        a("KS_SGE:")
        a("s_waitcnt lgkmcnt(0)")
        stamp(a, 8)
    TR = {1: (FL_PARAM, "nz"), 2: (FL_UF, "b4"), 3: (FL_ZF, "b4"), 4: (FL_KACK, "nz"), 5: (FL_KSEEN, "nz"), 6: (FL_ZDONE + 4, "b4")}
    GNM = ENV("GNM", 3)
    for t in sorted(set(GT)):
        if t == 0: continue
        l = newlabel("GT")
        mask = sum(1 << g for g in range(4) if GT[g] == t)
        if mask != 15: a(f"s_lshr_b32 s{T0_}, {mask}, s{S_G}", f"s_bitcmp1_b32 s{T0_}, 0", f"s_cbranch_scc0 {l}")
        lds_wait(a, TR[t][0], 10, TR[t][1], sleep=2)
        if t >= 3: a("s_setprio 1")
        a(f"{l}:")
    if GNM and GNM != 15:
        a(f"s_lshr_b32 s{T0_}, {GNM}, s{S_G}", f"s_bitcmp1_b32 s{T0_}, 0", "s_cbranch_scc0 KS_GN0")
        gs = ENV("GSPLIT", 4)
        g_loads(a, 46, range(gs), " nt")
        if gs < 4: lds_wait(a, FL_UF, 10, "b4", sleep=2)
        g_loads(a, 46, range(gs, 4), " nt")
        a(f"s_bitcmp1_b32 s{S_G}, 0", "s_cbranch_scc1 KS_G4")
        g_loads(a, 46, [4], " nt")
        a("s_branch KS_G4")
        a("KS_GN0:")
    GM = " nt" if GNM == 15 else ""
    g_loads(a, 46, range(4), GM)
    stamp(a, 6)
    def transpose(src, dst):
        for j in range(4):
            for p in range(4):
                lo = src + 2 * (2 * p) + (j >> 1); hi = src + 2 * (2 * p + 1) + (j >> 1)
                a(f"v_perm_b32 v{dst+4*j+p}, v{hi}, v{lo}, s{SP0 + (j & 1)}")
    W = GW
    a(f"s_bitcmp1_b32 s{S_G}, 0", "s_cbranch_scc1 KS_G4")
    g_loads(a, 46, [4], GM)
    a("KS_G4:")
    a(f"v_mov_b32 v6, s{S_G}", f"ds_write_b8 v6, v{VONE} offset:{FL_GISS}")
    a("s_waitcnt vmcnt(0)")
    if DE: a(f"ds_write_b8 v6, v{VONE} offset:{FL_DOWN}")
    stamp(a, 7)
    for ks in range(5): transpose(W + 16 * ks, W + 16 * ks - 16)
    GACC = 112
    srd(a, R2_, P_WS, XBYTES, WS_X2)
    a(f"s_lshl_b32 s{T0_}, s{S_ROLE}, 6", f"s_add_u32 s{T0_}, s{T0_}, {2047*1152}", "v_and_b32 v6, 7, v2", "v_lshlrev_b32 v6, 2, v6", f"v_lshl_add_u32 v7, v3, 4, s{T0_}", f"s_movk_i32 s{T1_}, -1152")
    a(f"s_and_b32 s{T2_}, s{S_G}, 1", f"s_lshl_b32 s{T2_}, s{T2_}, 6", f"s_sub_u32 s{T2_}, 256, s{T2_}")
    a(f"s_lshl_b32 s{T0_}, s{S_G}, 6", f"v_add_u32 v11, s{T0_}, v1")
    a("v_lshrrev_b32 v8, 5, v11", "v_and_b32 v9, 31, v11")
    a("v_and_b32 v10, 3, v9", "v_lshlrev_b32 v10, 9, v10")
    a("v_lshrrev_b32 v9, 2, v9", "v_lshl_add_u32 v10, v9, 4, v10")
    a("v_lshrrev_b32 v9, 2, v8", "v_lshl_add_u32 v10, v9, 8, v10")
    a("v_and_b32 v9, 3, v8", "v_lshl_add_u32 v10, v9, 2, v10")
    a("v_lshlrev_b32 v11, 1, v11")
    a(f"s_lshl_b32 s{T0_}, s{S_G}, 11", f"v_lshl_add_u32 v9, v1, 4, s{T0_}")
    TG_ = (0, 2, 5, 6)
    def gmm(wait, bad):
        for ks in range(5):
            a(f"s_waitcnt {wait}({4-ks})")
            chk = []
            if bad and XCL == 2:
                chk = [f"v_xor_b32 v4, v{TG_[0]}, v{12+4*ks}"] + [f"v_bitop3_b32 v4, v4, v{TG_[d]}, v{12+4*ks+d} bitop3:0xf6" for d in range(1, 4)]
                chk += [f"v_and_b32 v{4 if ks else 8}, {hex(TAGM)}, v4"] + (["v_min_u32 v8, v8, v4"] if ks else [])
            elif bad:
                chk = [f"v_max3_u32 v8, v{12+4*ks}, v{13+4*ks}, v{8 if ks else 13}", f"v_max3_u32 v8, v{14+4*ks}, v{15+4*ks}, v8"]
            if ks == 4:
                a(*chk); chk = []
                if bad: a(f"v_cmp_eq_u32 vcc, {0 if XCL == 2 else -1}, v8", f"s_cbranch_vccnz {bad}")
                a(f"s_bitcmp1_b32 s{S_G}, 0", "s_cbranch_scc1 KS_G5")
            for j in range(4):
                c = "0" if ks == 0 else f"v[{GACC+4*j}:{GACC+4*j+3}]"
                a(f"v_mfma_f32_16x16x32_bf16 v[{GACC+4*j}:{GACC+4*j+3}], v[{12+4*ks}:{15+4*ks}], v[{32+16*ks+4*j}:{35+16*ks+4*j}], {c}")
                a(*chk[2*j:2*j+2])
    assert RDMA
    a(f"s_lshl_b32 s{T0_}, s{S_ROLE}, 9", f"s_add_u32 s{T0_}, s{T0_}, {C_XR}", f"v_lshl_add_u32 v28, v6, 2, s{T0_}", "v_lshl_add_u32 v28, v3, 7, v28", f"s_lshl_b32 s{T0_}, s{T2_}, 3", f"v_add_u32 v31, s{T0_}, v28")
    if XCL == 2: a("v_lshlrev_b32 v0, 2, v3", f"ds_read_b32 v0, v0 offset:{FL_NONCE}")
    lds_wait(a, C_SEL, 12, "nz", addr=6, sleep=2)
    a("s_setprio 2")
    a("v_and_b32 v12, 0x7ff, v12", f"v_mad_i32_i24 v7, v12, s{T1_}, v7")
    if XCL == 2:
        for d in range(1, 4): a(f"v_lshrrev_b32 v{TG_[d]}, {3*d}, v0")
    lds_wait(a, FL_XRDY, 12, "nz")
    stamp2(a, 1)
    for ks in range(4):
        a(f"ds_read_b128 v[{12+4*ks}:{15+4*ks}], v28 offset:{512*ks}")
    a("ds_read_b128 v[28:31], v31")
    gmm("lgkmcnt", "KS_GR")
    a("s_branch KS_G5")
    a("KS_GR:")
    if XCL == 2:
        srd(a, R3, P_WS, 12288, WS_KEYS)
        a("v_lshlrev_b32 v4, 4, v1", f"s_movk_i32 s{T0_}, 0x2000")
        a.flush(4)
        a("KS_GR2:")
        a("s_sleep 2")
        for k in range(4): a(f"buffer_load_dword v{12+k}, v4, s[{R3}:{R3+3}], s{T0_} offen offset:{1024*k} sc1")
        guard(a)
        a("s_waitcnt vmcnt(0)")
        a("v_max3_u32 v12, v12, v13, v14", "v_max_u32 v12, v12, v15", "v_cmp_eq_u32 vcc, -1, v12", "s_cbranch_vccnz KS_GR2")
    for ks in range(5):
        a(f"buffer_load_dwordx4 v[{12+4*ks}:{15+4*ks}], v7, s[{R2_}:{R2_+3}], " + (f"0 offen offset:{64*ks}" if ks < 4 else f"s{T2_} offen") + " sc1")
    guard(a)
    gmm("vmcnt", None if XCL == 2 else "KS_GR")
    a("KS_G5:")
    a("s_mov_b32 exec_lo, -1", "s_mov_b32 exec_hi, 0")
    a.flush(6)
    for j in range(4):
        a(f"ds_write_b128 v9, v[{GACC+4*j}:{GACC+4*j+3}] offset:{C_RED + 512*j}")
    a("s_mov_b64 exec, -1")
    a("s_waitcnt lgkmcnt(0)", "s_barrier")
    stamp2(a, 2)
    for w in range(4):
        a(f"ds_read_b32 v{32+2*w}, v10 offset:{C_RED + 2048*w}")
        a(f"ds_read_b32 v{33+2*w}, v10 offset:{C_RED + 2048*w + 128}")
    a("s_waitcnt lgkmcnt(4)")
    a("v_pk_add_f32 v[32:33], v[32:33], v[34:35]")
    a("s_waitcnt lgkmcnt(0)")
    a("v_pk_add_f32 v[36:37], v[36:37], v[38:39]")
    a("v_pk_add_f32 v[32:33], v[32:33], v[36:37]")
    rnd2(a, 32)
    a(f"v_mul_f32 v34, {f32(-LOG2E)}, v32", "v_exp_f32 v34, v34", "v_add_f32 v34, 1.0, v34", "v_rcp_f32 v34, v34", "v_mul_f32 v34, v32, v34")
    a(f"v_cvt_pk_bf16_f32 v34, 0, v34")
    a("v_mul_f32 v34, v34, v33", "v_cvt_pk_bf16_f32 v34, v34, v34")
    a(f"ds_write_b16 v11, v34 offset:{C_ACT}")
    a("s_waitcnt lgkmcnt(0)")
    a("s_barrier")
    a("s_branch KS_P2")
    a("KS_P:")
    if DE: a("s_branch KS_P1")
    srd(a, R1, P_DOWN, F * D * 2)
    a(f"s_sub_u32 s{T2_}, s{S_WAVE}, 10", "v_lshlrev_b32 v6, 4, v1", f"s_mul_i32 s{T0_}, s{S_BLK}, 36864", f"s_mul_i32 s{T1_}, s{T2_}, 18432", f"s_add_u32 s{T0_}, s{T0_}, s{T1_}", f"s_add_u32 s{T1_}, s{T1_}, {C_DOWN}")
    a(f"s_lshl_b32 s{T2_}, s{T2_}, 1", f"v_mov_b32 v7, s{T2_}", f"v_mov_b32 v8, s{S_ONES}")
    TR[7] = (FL_GISS, "b4")
    if DT: lds_wait(a, TR[DT][0], 10, TR[DT][1], sleep=2)
    a("s_setprio 1")
    stamp2(a, 1)
    for k in range(18):
        if k % 4 == 0:
            a(f"s_add_u32 m0, s{T1_}, {1024*k}")
            if k: a(f"s_add_u32 s{T0_}, s{T0_}, 4096")
        a(f"buffer_load_dwordx4 v6, s[{R1}:{R1+3}], s{T0_} offen offset:{1024*(k&3)} {MOD('DM', 'nt')} lds")
    a("s_waitcnt vmcnt(0)")
    stamp2(a, 2)
    a(f"ds_write_b16 v7, v8 offset:{FL_DOWN}")
    a("KS_P1:")
    a("s_setprio 0")
    PW = ENV("PW", 0)
    if PW:
        srd(a, R0, P_WS, PART_BYTES, WS_PART)
        a("v_and_b32 v14, 3, v1", "v_lshlrev_b32 v14, 2, v14", f"ds_read_b32 v24, v14 offset:{FL_NONCE}", "v_lshlrev_b32 v17, 4, v1")
        a(f"s_mul_i32 s{T0_}, s{S_BLK}, {PROW}", f"s_sub_u32 s{T1_}, s{S_WAVE}, 10", f"s_mul_i32 s{T1_}, s{T1_}, 9216", f"s_add_u32 s{T0_}, s{T0_}, s{T1_}")
        if PW in TR: lds_wait(a, TR[PW][0], 10, TR[PW][1], sleep=2)
        a("s_waitcnt lgkmcnt(0)", "v_not_b32 v24, v24", "v_mov_b32 v25, v24", "v_mov_b32 v26, v24", "v_mov_b32 v27, v24")
        for k in range(9):
            if k in (4, 8): a(f"s_add_u32 s{T0_}, s{T0_}, 4096")
            a(f"buffer_store_dwordx4 v[24:27], v17, s[{R0}:{R0+3}], s{T0_} offen offset:{1024*(k&3)} {MOD('PWM')}")
        a("s_waitcnt vmcnt(0)")
    a("s_waitcnt lgkmcnt(0)")
    a("s_barrier")
    a("s_barrier")
    a("s_setprio 2")
    a("KS_P2:")
    a(f"s_sub_u32 s{S_G}, s{S_WAVE}, 10")
    srd(a, R0, P_WS, PART_BYTES, WS_PART)
    srd(a, R1, P_OUT, XBYTES)
    a("v_lshrrev_b32 v8, 3, v1", f"v_mul_u32_u24 v8, {PROW}, v8", "v_and_b32 v9, 7, v1", "v_lshl_add_u32 v8, v9, 4, v8")
    a(f"s_mul_i32 s{T0_}, s{S_G}, {24*PROW}", f"s_lshl_b32 s{T1_}, s{S_BLK}, 7", f"s_add_u32 s{T0_}, s{T0_}, s{T1_}", f"s_add_u32 s{T1_}, s{T0_}, {8*PROW}", f"s_add_u32 s{T2_}, s{T0_}, {16*PROW}")
    a(f"s_lshl_b32 s{T3_}, s{S_G}, 7", f"v_lshl_add_u32 v6, v9, 4, s{T3_}", "v_lshl_add_u32 v6, v3, 2, v6")
    a(f"v_lshlrev_b32 v12, 2, v1", f"v_add_u32 v12, {C_RED2}, v12", "v_lshlrev_b32 v13, 4, v1")
    if PTAG:
        a("v_and_b32 v14, 12, v12", f"ds_read_b32 v24, v14 offset:{FL_NONCE}", "s_waitcnt lgkmcnt(0)")
        for d in range(1, 4): a(f"v_lshrrev_b32 v{24+d}, {8*d}, v24")
    a("s_barrier")
    if PE > 0: a(f"s_sleep {PE}")
    stamp2(a, 3)
    if PTAG:
        lp = newlabel("PP"); l1 = newlabel("PPE")
        a(f"s_branch {l1}", f"{lp}:", "s_sleep 1", f"{l1}:")
        for k in range(3): a(f"buffer_load_dwordx4 v[{32+4*k}:{35+4*k}], v8, s[{R0}:{R0+3}], s{T0_+k} offen sc1")
        guard(a)
        for k in range(3):
            a(f"s_waitcnt vmcnt({2-k})")
            for d in range(4):
                t = 44 + (d & 1)
                a(f"v_xor_b32 v{t}, v{24+d}, v{32+d}" if k == 0 and d < 2 else f"v_bitop3_b32 v{t}, v{t}, v{24+d}, v{32+4*k+d} bitop3:0xf6")
        a("v_or_b32 v44, v44, v45", "v_and_b32 v44, 0xff, v44", "v_cmp_ne_u32 vcc, 0, v44", f"s_cbranch_vccnz {lp}")
    else: zpoll(a, [f"buffer_load_dwordx4 v[{32+4*k}:{35+4*k}], v8, s[{R0}:{R0+3}], s{T0_+k} offen sc1" for k in range(3)], list(range(32, 44)), 1)
    stamp2(a, 4)
    a("v_pk_add_f32 v[32:33], v[32:33], v[36:37]", "v_pk_add_f32 v[34:35], v[34:35], v[38:39]")
    a("v_pk_add_f32 v[32:33], v[32:33], v[40:41]", "v_pk_add_f32 v[34:35], v[34:35], v[42:43]")
    for r in range(4): a(f"v_add_f32_dpp v{32+r}, v{32+r}, v{32+r} row_ror:8 {DPPM}")
    a("v_permlane16_swap_b32 v32, v33", "v_permlane16_swap_b32 v34, v35")
    a("v_add_f32 v32, v32, v33", "v_add_f32 v34, v34, v35")
    a("v_permlane32_swap_b32 v32, v34")
    a("v_add_f32 v32, v32, v34")
    a(f"ds_write_b32 v6, v32 offset:{C_RED2}")
    a("s_waitcnt lgkmcnt(0)", "s_barrier")
    a(f"s_cmp_lg_u32 s{S_G}, 0", "s_cbranch_scc1 KS_PEND")
    a("s_mov_b32 exec_lo, -1", "s_mov_b32 exec_hi, 0")
    for g in range(3):
        a(f"ds_read2_b32 v[{32+2*g}:{33+2*g}], v12 offset0:{64*g} offset1:{64*g + 32}")
    a(f"ds_read_b128 v[40:43], v13 offset:{C_SIDE}")
    a("s_waitcnt lgkmcnt(0)")
    a("v_pk_add_f32 v[32:33], v[32:33], v[34:35]", "v_pk_add_f32 v[32:33], v[32:33], v[36:37]", "v_add_f32 v8, v32, v33")
    a(f"v_cvt_pk_bf16_f32 v8, 0, v8")
    a("v_mul_f32 v8, v8, v42", f"v_cvt_pk_bf16_f32 v8, 0, v8")
    a("v_add_f32 v8, v8, v40", f"v_cvt_pk_bf16_f32 v8, 0, v8")
    a("v_add_f32 v8, v8, v41", "v_cvt_pk_bf16_f32 v8, v8, v8")
    a(f"buffer_store_short v8, v43, s[{R1}:{R1+3}], 0 offen")
    a("KS_PEND:")
    stamp_end(a)
    spin_end(a)
    a("KS_ABORT:")
    a("KS_END:")
    a("s_endpgm")
    return f""".amdhsa_kernel {label}
  .amdhsa_next_free_vgpr 128
  .amdhsa_next_free_sgpr {NSGPR}
  .amdhsa_accum_offset 128
  .amdhsa_group_segment_fixed_size 0
  .amdhsa_kernarg_size 136
  .amdhsa_user_sgpr_count 2
  .amdhsa_user_sgpr_kernarg_segment_ptr 1
  .amdhsa_system_sgpr_workgroup_id_x 1
  .amdhsa_float_denorm_mode_32 3
.end_amdhsa_kernel
"""

def main():
    hdr = open(f"/code/{NAME}.s.ref").read().split("; Override launch geometry")[0]
    out = hdr
    out += f"; @launch grid=(256,1,1) block=(1024,1,1) lds={LDS_BYTES}\n"
    out += '.amdgcn_target "amdgcn-amd-amdhsa--gfx950"\n.text\n'
    a = Asm()
    d = gen(a)
    out += a.text()
    out += '.section .rodata,"a"\n.p2align 6\n' + d
    path = sys.argv[1] if len(sys.argv) > 1 else "ks.s"
    open(path, "w").write(out)
    print("wrote", path, len(out))

if __name__ == "__main__":
    main()
```

```python
import sys, struct, math, os
sys.path.insert(0, "gen")
from asmlib import Asm

NAME = "sequential_preLN__ssm_conv_s4__moe_arch_mod__prompt"
L, D, N, F = 2048, 576, 128, 4608
XBYTES = L * D * 2
WS_UT = 0x000000
WS_X2 = 0x3C0000
WS_ZB1 = 0x600000
WS_ZB2 = 0x800000
WS_KEYS = 0x840000
WS_PART = 0x850000
WS_CLR, CLR_WG = 0x600000, 18560
CLRP_WG = 23744
WS_FLAG1 = 0xB00000
TAGM = 0x00070007
WS_IDX = 0xB10000
WS_KT = 0xB20000
WS_DBG = 0xC00000
WS_MARK = 0xB80000
XCL = int(os.environ.get("XCL", "2"))
if XCL == 1: WS_CLR, CLR_WG = WS_X2, 36992
if XCL == 2: WS_X2 = WS_UT
NOCLR = int(os.environ.get("NOCLR", "0"))
if NOCLR == 1: WS_CLR, CLR_WG = WS_ZB2, 2176
if NOCLR >= 2: WS_CLR = WS_ZB2
if NOCLR == 2: WS_PART = 0x1000000
PB = int(os.environ.get("PB", "1"))
PCT = int(os.environ.get("PCT", "4"))
if PB and not PCT: WS_PART, CLR_WG = 0x843000, 29040
if int(os.environ.get("WSC", "0")):
    assert XCL == 2
    WS_ZB1 -= 0x200000; WS_ZB2 -= 0x200000; WS_KEYS -= 0x200000; WS_PART -= 0x200000; WS_CLR -= 0x200000
    WS_FLAG1, WS_IDX, WS_KT = 0x240000, 0x250000, 0x260000
WSB = int(os.environ.get("WSB", "0")) << 20
WS_UT += WSB; WS_X2 += WSB; WS_ZB1 += WSB; WS_ZB2 += WSB; WS_KEYS += WSB; WS_PART += WSB; WS_CLR += WSB; WS_FLAG1 += WSB; WS_IDX += WSB; WS_KT += WSB
WS_STAMP = 0x8000000
PART_BYTES = 144 * (4608 * (2 if PB else 4) + 128)
C_FL, C_CAND, C_SEL, C_KEY, C_PAR, C_ACT, C_SIDE, C_RED2 = 0, 256, 768, 800, 832, 1024, 1536, 2048
C_U, U_SIZE = 3072, 4672
C_LNB = C_U + 3 * U_SIZE
C_XR = C_LNB
C_RED = C_LNB + 9280
G_BASE, G_SIZE = 35840, 36672
C_STG = G_BASE + 2 * G_SIZE + 36864
LDS_BYTES = C_STG + 8192
FL_LN1, FL_LNACK, FL_KCNT, FL_UF, FL_ZF, FL_KACK, FL_ROWSOK, FL_XRDY, FL_PARAM, FL_DOWN, FL_ZDONE = 0, 8, 12, 16, 20, 24, 28, 32, 36, 40, 48
FL_G = 64
FL_S6 = 128
FL_ZISS = 240
FL_UISS = 244
FL_F2CNT, FL_INIT, FL_CLROK, FL_GISS, FL_KSEEN, FL_UTOK, FL_PRE, FL_NONCE = 176, 180, 188, 192, 196, 200, 208, 224
KG_ROW = 544
KG_T = [0, 16 * KG_ROW, 32 * KG_ROW, 41 * KG_ROW]
R_WS3 = 0
R_WS5 = R_WS3 + 193 * 16
R_WS7 = R_WS5 + 193 * 16
R_WS9 = R_WS7 + 128 * 16
R_RED = 10752
R2 = 31232
T_TAB = R2
T_DRE = R2 + 1296
T_DRO = T_DRE + 1280 + 64
T_G3 = T_DRO + 1280
T_G5 = T_G3 + 256
T_G7E = T_G5 + 256
T_G7O = T_G7E + 192
T_G9E = T_G7O + 192
T_G9O = T_G9E + 192
assert T_G9O + 192 <= G_SIZE and R_WS9 + 129 * 16 <= R_RED and R_RED + 13 * 1024 <= R2 and 57 * KG_ROW <= R2
IDX_ZERO, IDX_DUMMY = 641, 642
C_DOWN = G_BASE + 2 * G_SIZE
C_GU = G_BASE - 512
assert C_GU + 2 * 36864 <= C_DOWN and C_RED + 2560 <= C_GU
FL_BAD = FL_KACK

def f32(x): return "0x%08x" % struct.unpack("<I", struct.pack("<f", x))[0]
def f32v(x): return struct.unpack("<f", struct.pack("<f", x))[0]
LOG2E = math.log2(math.e)
LOG2E_HI = f32v(LOG2E); LOG2E_LO = LOG2E - LOG2E_HI
INV2PI = 1.0 / (2 * math.pi)
INV2PI_HI = f32v(INV2PI); INV2PI_LO = INV2PI - INV2PI_HI
DPPM = "row_mask:0xf bank_mask:0xf"
ENV = lambda k, d: int(os.environ.get(k, str(d)))
STAMP = ENV("STAMP", 0)
DBG = ENV("DBG", 0)
GUARD = 1 << 19
XP = ENV("XP", 0)
KOFF = ENV("KOFF", 1)
PTAG = ENV("PTAG", 1)
PE = ENV("PE", 13)
SN = ENV("SN", 1)
UL = ENV("UL", 0)
GM_ = ENV("GM", 0)
L2G = ENV("L2G", 0)
XT = ENV("XT", 0)
F3 = ENV("F3", 1)
BT = ENV("BT", 0)
TQ = ENV("TQ", 1)
ZM = ENV("ZM", 0)
DR = ENV("DR", 0)
DL = ENV("DL", 0)
XH = ENV("XH", 0)
KD = ENV("KD", 2)
RP = ENV("RP", 0)
XW = ENV("XW", 0)
WBYTES = 0 if ENV("XW2", 0) else D * F * 2
SWU = ENV("SWU", 1); SWZ = ENV("SWZ", 1); PROW = (9216 if PB else 18432) + 128 * ENV("SWP", 1)
MOD = lambda k, d="sc1": os.environ.get(k, d).replace("_", " ")

P_X, P_ARE, P_LDT, P_DSK, P_WR, P_GATE, P_UP, P_DOWN, P_OUT, P_DBG, P_WS = 4, 6, 18, 20, 24, 26, 28, 30, 32, 34, 36
S_WAVE, S_GUARD, S_XC, S_I = 38, 39, 40, 41
R0, R1, R2_, R3, R4 = 64, 68, 72, 76, 80
S_ONES, S_GB, S_ROLE, S_G, S_CH, S_BLK, S_B2 = 84, 85, 86, 87, 88, 89, 90
RM = ENV("RM", 0)
S_FI = 91 if RM else S_I
T0_, T1_, T2_, T3_, T4_, T5_ = 92, 93, 94, 95, 96, 97
SP0, SP1 = 98, 99
NSGPR = 100

def srd(a, d, base, nbytes, off=0):
    if off:
        a(f"s_add_u32 s{d}, s{base}, {hex(off)}", f"s_addc_u32 s{d+1}, s{base+1}, 0")
    else:
        a(f"s_mov_b32 s{d}, s{base}", f"s_mov_b32 s{d+1}, s{base+1}")
    a(f"s_mov_b32 s{d+2}, {hex(nbytes)}", f"s_mov_b32 s{d+3}, 0x20000")

def red16(a, op, v):
    for r in (8, 4, 2, 1):
        a(f"{op}_dpp v{v}, v{v}, v{v} row_ror:{r} {DPPM}")
def red32(a, op, v, t):
    red16(a, op, v)
    a(f"v_mov_b32 v{t}, v{v}", f"v_permlane16_swap_b32 v{v}, v{t}", f"{op} v{v}, v{v}, v{t}")
def red64x2(a, op1, v1, t1, op2, v2, t2):
    for r in (8, 4, 2, 1):
        a(f"{op1}_dpp v{v1}, v{v1}, v{v1} row_ror:{r} {DPPM}", f"{op2}_dpp v{v2}, v{v2}, v{v2} row_ror:{r} {DPPM}")
    for ins in ("v_permlane16_swap_b32", "v_permlane32_swap_b32"):
        a(f"v_mov_b32 v{t1}, v{v1}", f"v_mov_b32 v{t2}, v{v2}", f"{ins} v{v1}, v{t1}", f"{ins} v{v2}, v{t2}")
        a(f"{op1} v{v1}, v{v1}, v{t1}", f"{op2} v{v2}, v{v2}, v{t2}")

SPIN = eval(os.environ.get("SPIN", "None"))
def spin_rec(a, ph, i):
    if not SPIN or SPIN[1:] != (ph, i): return
    a("s_memrealtime s[46:47]")
def spin_end(a):
    if not SPIN: return
    lo, hi = eval(os.environ.get("SPINI", "(0,32)"))
    a("KS_SPIN:")
    if SPIN[2] == 9: a("s_memrealtime s[46:47]")
    a(f"s_sub_u32 s48, s{S_I}, {lo}", f"s_cmp_ge_u32 s48, {hi-lo}", "s_cbranch_scc1 KS_END")
    a(f"s_lshr_b32 s48, {hex(SPIN[0])}, s{S_WAVE}", "s_bitcmp1_b32 s48, 0", "s_cbranch_scc0 KS_END")
    a("s_mov_b64 exec, -1", "v_mov_b32 v4, 0")
    a("KS_SP0:")
    a(f"global_load_dword v8, v4, s[{P_DBG}:{P_DBG+1}] offset:64 sc1", "s_waitcnt vmcnt(0) lgkmcnt(0)", "v_readfirstlane_b32 s44, v8", "s_cmp_eq_u32 s44, 0", "s_cbranch_scc1 KS_SP0")
    if SPIN[2] == -1: a("s_mov_b32 s46, s44")
    a("s_sub_u32 s48, s46, s44", "s_add_u32 s48, s48, 200")
    if ENV("SPINMIN", 0): a(f"s_sub_u32 s48, {ENV('SPINMIN', 0)}, s48")
    a("s_min_u32 s48, s48, 3000", "s_lshl_b32 s48, s48, 2", "s_add_u32 s48, s48, 2000")
    a("SPINL:", "s_sleep 1", "s_memrealtime s[50:51]", "s_waitcnt lgkmcnt(0)", "s_sub_u32 s50, s50, s44", "s_cmp_lt_u32 s50, s48", "s_cbranch_scc1 SPINL")
def stamp_begin(a):
    if SPIN: a("s_memrealtime s[46:47]")
    if not STAMP: return
    a("s_memrealtime s[44:45]")
    for i in range(1, 9): a(f"s_mov_b32 s{44+2*i}, 0")
def cstamp(a, i):
    if STAMP == 9: a(f"s_memtime s[{44+2*i}:{45+2*i}]")
def kstamp(a, i):
    if STAMP == 7: a(f"s_memtime s[{44+2*i}:{45+2*i}]")
def stamp(a, i, ph=1):
    spin_rec(a, ph, i)
    if ph == 2 and STAMP not in (2, 3): return
    if STAMP == 7 and i == 1: return kstamp(a, 1)
    if not STAMP or STAMP in (6, 7, 9): return
    assert 1 <= i <= 8
    a(f"{'s_memtime' if STAMP == 8 else 's_memrealtime'} s[{44+2*i}:{45+2*i}]")
def lstamp(a, i):
    if STAMP == 6: a(f"s_memrealtime s[{44+2*i}:{45+2*i}]")
def stamp2(a, i):
    stamp(a, i, 2)
def stamp_end(a):
    if not STAMP: return
    a("s_waitcnt vmcnt(0) lgkmcnt(0)")
    a("s_memrealtime s[62:63]")
    a(f"s_lshl_b32 s43, s2, 4", f"s_add_u32 s43, s43, s{S_WAVE}", "s_lshl_b32 s43, s43, 6", f"s_add_u32 s43, s43, {hex(WS_STAMP)}")
    a("s_mov_b64 exec, 1")
    a("s_waitcnt lgkmcnt(0)")
    a("v_mov_b32 v1, s43")
    for i in range(10): a(f"v_mov_b32 v{4+i}, s{44+2*i}")
    a(f"global_store_dwordx4 v1, v[4:7], s[{P_WS}:{P_WS+1}]")
    a(f"global_store_dwordx4 v1, v[8:11], s[{P_WS}:{P_WS+1}] offset:16")
    a(f"global_store_dwordx2 v1, v[12:13], s[{P_WS}:{P_WS+1}] offset:32")
def endwave(a):
    stamp_end(a)
    a("s_branch KS_SPIN" if SPIN else "s_endpgm")

def unpack(a, dst, src):
    a(f"v_lshlrev_b32 v{dst}, 16, v{src}", f"v_and_b32 v{dst+1}, 0xffff0000, v{src}")

def rnd2(a, t):
    a(f"v_cvt_pk_bf16_f32 v{t}, 0, v{t}", f"v_cvt_pk_bf16_f32 v{t+1}, 0, v{t+1}")

def ln_stats(a, X, m2, rinv2, t0, t1, t2):
    a(f"v_pk_add_f32 v[{t0}:{t0+1}], v[{X}:{X+1}], v[{X+2}:{X+3}]")
    a(f"v_pk_add_f32 v[{t1}:{t1+1}], v[{X+4}:{X+5}], v[{X+6}:{X+7}]")
    for j in range(4, 9):
        t = t0 if j % 2 == 0 else t1
        a(f"v_pk_add_f32 v[{t}:{t+1}], v[{t}:{t+1}], v[{X+2*j}:{X+2*j+1}]")
    a(f"v_pk_add_f32 v[{t0}:{t0+1}], v[{t0}:{t0+1}], v[{t1}:{t1+1}]")
    a(f"v_add_f32 v{t0}, v{t0}, v{t0+1}")
    red32(a, "v_add_f32", t0, t1)
    a(f"v_mul_f32 v{t2}, {f32(1.0/576)}, v{t0}")
    a(f"v_mov_b32 v{t2+1}, v{t2}")
    a(f"v_cvt_pk_bf16_f32 v{m2}, 0, v{t2}", f"v_cvt_pk_bf16_f32 v{m2+1}, 0, v{t2}")
    first = {t0: True, t1: True}
    for j in range(9):
        t = t0 if j % 2 == 0 else t1
        a(f"v_pk_add_f32 v[{rinv2}:{rinv2+1}], v[{X+2*j}:{X+2*j+1}], v[{t2}:{t2+1}] neg_lo:[0,1] neg_hi:[0,1]")
        if first[t]:
            a(f"v_pk_mul_f32 v[{t}:{t+1}], v[{rinv2}:{rinv2+1}], v[{rinv2}:{rinv2+1}]"); first[t] = False
        else:
            a(f"v_pk_fma_f32 v[{t}:{t+1}], v[{rinv2}:{rinv2+1}], v[{rinv2}:{rinv2+1}], v[{t}:{t+1}]")
    a(f"v_pk_add_f32 v[{t0}:{t0+1}], v[{t0}:{t0+1}], v[{t1}:{t1+1}]")
    a(f"v_add_f32 v{t0}, v{t0}, v{t0+1}")
    red32(a, "v_add_f32", t0, t1)
    a(f"v_mul_f32 v{t0}, {f32(1.0/576)}, v{t0}")
    a(f"v_cvt_pk_bf16_f32 v{t0}, 0, v{t0}")
    a(f"v_add_f32 v{t0}, {f32(1e-5)}, v{t0}")
    a(f"v_cvt_pk_bf16_f32 v{t0}, 0, v{t0}")
    a(f"v_sqrt_f32 v{t0}, v{t0}")
    a(f"v_cvt_pk_bf16_f32 v{t0}, 0, v{t0}")
    a(f"v_rcp_f32 v{rinv2}, v{t0}")
    a(f"v_mov_b32 v{rinv2+1}, v{rinv2}")

def ln_apply_pair(a, x, m2, rinv2, t, P):
    a(f"v_pk_add_f32 v[{t}:{t+1}], v[{x}:{x+1}], v[{m2}:{m2+1}] neg_lo:[0,1] neg_hi:[0,1]")
    rnd2(a, t)
    a(f"v_pk_mul_f32 v[{t}:{t+1}], v[{t}:{t+1}], v[{rinv2}:{rinv2+1}]")
    if P is not None: a(f"v_cvt_pk_bf16_f32 v{P}, v{t}, v{t+1}")
    rnd2(a, t)

VZ, VONE = 4, 5
_lbl = [0]
def newlabel(p="L"):
    _lbl[0] += 1
    return f"{p}_{_lbl[0]}"
def guard(a):
    a(f"s_sub_u32 s{S_GUARD}, s{S_GUARD}, 1", "s_cbranch_scc1 KS_ABORT")
def lds_wait(a, off, t, kind="b4", addr=VZ, sleep=0):
    l = newlabel("W")
    a(f"{l}:")
    if sleep: a(f"s_sleep {sleep}")
    if kind == "b8":
        a(f"ds_read_b64 v[{t}:{t+1}], v{addr} offset:{off}")
    else:
        a(f"ds_read_{kind if kind in ('u8', 'u16') else 'b32'} v{t}, v{addr} offset:{off}")
    guard(a)
    a("s_waitcnt lgkmcnt(0)")
    if kind == "b8": a(f"v_and_b32 v{t}, v{t}, v{t+1}")
    if kind in ("nz", "u8", "u16"): a(f"v_cmp_eq_u32 vcc, 0, v{t}")
    else: a(f"v_cmp_ne_u32 vcc, s{S_ONES}, v{t}")
    a(f"s_cbranch_vccnz {l}")

def zpoll(a, loads, regs, sleep, mid=None):
    lp = newlabel("ZP"); l1 = newlabel("ZPE")
    if mid:
        for l in loads: a(l)
        a(mid)
    a(f"s_branch {l1}")
    a(f"{lp}:")
    a(f"s_sleep {sleep}")
    if not mid: a(f"{l1}:")
    for l in loads: a(l)
    if mid: a(f"{l1}:")
    guard(a)
    a("s_waitcnt vmcnt(0)")
    a(f"v_max3_u32 v44, v{regs[0]}, v{regs[1]}, v{regs[2]}")
    r = regs[3:]
    while len(r) >= 2: a(f"v_max3_u32 v44, v44, v{r[0]}, v{r[1]}"); r = r[2:]
    if r: a(f"v_max_u32 v44, v44, v{r[0]}")
    a("v_cmp_eq_u32 vcc, -1, v44", f"s_cbranch_vccnz {lp}")

class Pool:
    def __init__(self, regs): self.free = list(regs)
    def get(self): return self.free.pop(0)
    def put(self, r): self.free.append(r)
def ce_inlane(a, x, i, j, pool):
    t = pool.get()
    a(f"v_max_u32 v{t}, v{x[i]}, v{x[j]}", f"v_min_u32 v{x[j]}, v{x[i]}, v{x[j]}")
    pool.put(x[i]); x[i] = t
def clean8(a, x, pool, DE, rev=False):
    t = [pool.get() for _ in range(4)]
    for i in range(4):
        a(f"v_mov_b32_dpp v{t[i]}, v{x[3-i if rev else i]} quad_perm:[1,0,3,2] {DPPM}")
    for i in range(4):
        a(f"v_med3_u32 v{t[i]}, v{x[i]}, v{t[i]}, v{DE}")
    for i in range(4): pool.put(x[i]); x[i] = t[i]
    for (i, j) in ((0, 2), (1, 3), (0, 1), (2, 3)): ce_inlane(a, x, i, j, pool)
def merge_mirror(a, x, pool, M):
    c = [pool.get() for _ in range(4)]
    for i in range(4):
        a(f"v_max_u32_dpp v{c[i]}, v{x[3-i]}, v{x[i]} {M} {DPPM}")
    for i in range(4): pool.put(x[i]); x[i] = c[i]
def merge_pair(a, x, y, pool):
    for i in range(4):
        a(f"v_max_u32_dpp v{x[i]}, v{y[3-i]}, v{x[i]} quad_perm:[1,0,3,2] {DPPM}")
    for i in range(4): pool.put(y[i])
MIRRORS = ("quad_perm:[3,2,1,0]", "row_half_mirror", "row_mirror")
def level2(a, ad, base, de, dst, m0, m1, st=None):
    l = newlabel("L2P")
    a(f"{l}:")
    a(f"ds_read_b128 v[{base}:{base+3}], v{ad} offset:{C_CAND}")
    a(f"ds_read_b128 v[{base+4}:{base+7}], v{ad} offset:{C_CAND + 256}")
    guard(a)
    a("s_waitcnt lgkmcnt(0)")
    a(f"v_min_u32 v{base+8}, v{base}, v{base+4}", f"v_cmp_eq_u32 vcc, 0, v{base+8}")
    a(f"s_cbranch_vccnz {l}")
    if st: st()
    pool = Pool(range(base + 8, base + 20))
    x = list(range(base, base + 4)); y = list(range(base + 4, base + 8))
    merge_pair(a, x, y, pool); clean8(a, x, pool, de)
    for li, M in enumerate(MIRRORS):
        merge_mirror(a, x, pool, M)
        if li < 2: clean8(a, x, pool, de)
    t = pool.get()
    a(f"v_cndmask_b32 v{dst}, v{x[0]}, v{x[1]}, s[{m0}:{m0+1}]", f"v_cndmask_b32 v{t}, v{x[2]}, v{x[3]}, s[{m0}:{m0+1}]", f"v_cndmask_b32 v{dst}, v{dst}, v{t}, s[{m1}:{m1+1}]")
    a(f"v_mov_b32_dpp v{dst}, v{dst} row_shr:8 row_mask:0xf bank_mask:0xc")

def top2(a, K, A1, A2, B1, B2, TA, TB, X0, X1, wait):
    for j in range(8):
        k = K + 4 * j
        if j == 7: a(f"v_max_u32 v{A2}, v{A2}, v{B2}")
        if wait: a(f"s_waitcnt vmcnt({7-j})")
        if j == 0:
            a(f"v_max_u32 v{A1}, v{k}, v{k+1}", f"v_max_u32 v{B1}, v{k+2}, v{k+3}", f"v_min_u32 v{A2}, v{k}, v{k+1}", f"v_min_u32 v{B2}, v{k+2}, v{k+3}")
            continue
        a(f"v_med3_u32 v{TA}, v{A1}, v{k}, v{k+1}", f"v_med3_u32 v{TB}, v{B1}, v{k+2}, v{k+3}")
        a(f"v_max3_u32 v{A1}, v{A1}, v{k}, v{k+1}", f"v_max3_u32 v{B1}, v{B1}, v{k+2}, v{k+3}")
        if j < 7: a(f"v_max_u32 v{A2}, v{A2}, v{TA}", f"v_max_u32 v{B2}, v{B2}, v{TB}")
    a(f"v_max3_u32 v{A2}, v{A2}, v{TA}, v{TB}", f"v_max_u32 v{X0}, v{A1}, v{B1}", f"v_med3_u32 v{X1}, v{A1}, v{B1}, v{A2}")
def net8(a, x, y, w, t, C, mid=None):
    HM, MI, R8 = "row_half_mirror", "row_mirror", "row_ror:8"
    def xst(d, s, M, mx, cross):
        for op, bm in (("max", mx), ("min", mx ^ 15)):
            for i in range(2): a(f"v_{op}_u32_dpp v{d[i]}, v{s[i ^ cross]}, v{s[i]} {M} row_mask:0xf bank_mask:{hex(bm)} ; nodst")
    def inl(d, s, cp=None):
        if cp: a(f"v_max_u32 v{d[0]}, v{s[0]}, v{s[1]}", f"v_max_u32 v{cp[0]}, v{s[0]}, v{s[1]}", f"v_min_u32 v{d[1]}, v{s[0]}, v{s[1]}", f"v_min_u32 v{cp[1]}, v{s[0]}, v{s[1]}")
        else: a(f"v_min_u32 v{d[1]}, v{s[0]}, v{s[1]}", f"v_max_u32 v{d[0]}, v{s[0]}, v{s[1]}")
    xst(y, x, HM, 5, 1)
    if mid: mid()
    inl(w, y)
    xst(y, w, MI, 3, 1); xst(w, y, HM, 5, 0); inl(x, w, t)
    for lv in range(3):
        if lv < 2:
            for i in range(2): a(f"v_permlane{32 >> lv}_swap_b32 v{x[i]}, v{t[i]}")
            M = MI
            for i in (1, 0): a(f"v_max_u32_dpp v{y[i]}, v{t[1-i]}, v{x[i]} {M} {DPPM} ; nodst")
        else:
            for i in (1, 0): a(f"v_mov_b32_dpp v{t[i]}, v{x[i]} {MI} {DPPM} ; nodst")
            M = "quad_perm:[1,0,3,2]"
            for i in (0, 1): a(f"v_max_u32_dpp v{y[i]}, v{t[1-i]}, v{x[i]} {M} {DPPM} ; nodst")
        xst(w, y, R8, 3, 0); xst(y, w, HM, 5, 0); inl(x, y, t if lv == 0 else None)
    a(f"v_mov_b32_dpp v{t[1]}, v{x[1]} {MI} {DPPM} ; nodst")
    a(f"v_max_u32_dpp v{C}, v{t[1]}, v{x[0]} quad_perm:[2,3,0,1] {DPPM} ; nodst")

GW = 48
def g_addr_setup(a, A):
    a(f"s_sub_u32 s{S_G}, s{S_WAVE}, 12")
    a(f"s_mul_i32 s{T0_}, s{S_G}, 9", f"s_add_u32 s{T0_}, s{T0_}, 1", f"s_lshr_b32 s{S_ROLE}, s{T0_}, 1")
    a(f"s_lshl_b32 s{T0_}, s{S_ROLE}, 5", f"v_lshl_add_u32 v7, v3, 3, s{T0_}", "v_mul_u32_u24 v7, 9216, v7")
    a("v_and_b32 v6, 7, v2", "v_lshl_add_u32 v7, v6, 3, v7")
    a(f"s_lshl_b32 s{T0_}, s{S_BLK}, 6", f"v_add_u32 v7, s{T0_}, v7")
    a("v_cmp_gt_u32 vcc, 8, v2")
    a(f"s_mov_b32 s{R3}, 9216", f"s_mov_b32 s{R3+1}, 0", f"s_mov_b32 s{R3+2}, {9216*25}", f"s_mov_b32 s{R3+3}, 0")
    a(f"v_mov_b32 v{A}, s{P_GATE}", f"v_mov_b32 v{A+1}, s{P_GATE+1}", f"v_mov_b32 v6, s{P_UP}")
    a(f"v_cndmask_b32 v{A}, v6, v{A}, vcc", f"v_mov_b32 v6, s{P_UP+1}", f"v_cndmask_b32 v{A+1}, v6, v{A+1}, vcc")
    a(f"v_add_co_u32 v{A}, vcc, v{A}, v7", f"v_addc_co_u32 v{A+1}, vcc, 0, v{A+1}, vcc")
def g_loads(a, A, kss, mod=""):
    if XW: return
    for ks in kss:
        for r in range(8):
            d = GW + 16 * ks + 2 * r
            gp = ENV("GPACE", 0)
            if gp and mod: a(f"s_waitcnt vmcnt({gp - 1})")
            a(f"global_load_dwordx2 v[{d}:{d+1}], v[{A}:{A+1}], off" + mod)
            if not (ks == 4 and r == 7):
                a(f"v_lshl_add_u64 v[{A}:{A+1}], v[{A}:{A+1}], 0, s[{R3 if r < 7 else R3+2}:{R3+1 if r < 7 else R3+3}]")
GTRIG = ENV("GTRIG", 2)
PF = ENV("PF", 1)
NL, NN, NC = ENV("NL", 0), ENV("NN", 0), ENV("NC", 4)
NE = ENV("NE", 0)
NLL = ENV("NLL", 0)
NL2 = ENV("NL2", 4)
GE = ENV("GE", 0)
GSL = ENV("GSL", 6)
XPF = ENV("XPF", 1)
PFB = ENV("PFB", min(166, 2 * ((max(288, 32 * ENV("GM2", 9)) + 16 * GE) // 7)))
assert not (PFB and NL)
NL3 = ENV("NL3", 0)
assert not (NL3 and NE)
PFA = PFB + 16 * NL + 16 * NE + 6 * NL3
PF0 = PFA + 10 * NLL + 6 * NL2
PF1 = PF0 + 8 * NN + 8 * NC
assert PF1 <= 166
PF2 = ENV("PF2", 166); PFD = ENV("PFD", 0); PFD2 = ENV("PFD2", 0)
GT = eval(os.environ.get("GT", "[0,0,6,6]")); DT = ENV("DT", 3)
RDMA = ENV("RDMA", 1)
DEA = ENV("DEA", 1)
DE = ENV("DE", 1)
def pf_ld(a, dst, v, R):
    if XW: return
    for m in MOD("PFM", "nt;sc1").split(";"): a(f"buffer_load_dword v{dst}, v{v}, s[{R}:{R+3}], s{T4_} offen {m}")
def pf_lane(a, v, t):
    a(f"v_mul_u32_u24 v{v}, 57, v1", f"v_lshrrev_b32 v{v}, 9, v{v}", f"v_mul_u32_u24 v{t}, 9, v{v}", f"v_sub_u32 v{t}, v1, v{t}", f"v_mul_u32_u24 v{v}, 9216, v{v}", f"v_lshl_add_u32 v{v}, v{t}, 7, v{v}")
def pf_gu_setup(a, sidx, R=R2_, tb=T3_, tt=T4_):
    a(f"s_bitcmp1_b32 s{sidx}, 0", f"s_cselect_b32 s{R}, s{P_UP}, s{P_GATE}", f"s_cselect_b32 s{R+1}, s{P_UP+1}, s{P_GATE+1}")
    a(f"s_mov_b32 s{R+2}, {hex(WBYTES)}", f"s_mov_b32 s{R+3}, 0x20000")
    a(f"s_lshr_b32 s{tb}, s{sidx}, 1", f"s_mul_i32 s{tb}, s{tb}, {7*9216}", f"s_mul_i32 s{tt}, s{S_XC}, 1152", f"s_add_u32 s{tb}, s{tb}, s{tt}")
def pf_gu(a, v, sidx, nw, u0, u1, dst, done):
    assert u0 % 2 == 0 and nw % 2 == 0
    pf_gu_setup(a, sidx)
    k = 0
    while u0 + k * nw < u1:
        if u0 + (k + 1) * nw > u1: a(f"s_cmp_ge_u32 s{sidx}, {u1 - u0 - k*nw}", f"s_cbranch_scc1 {done}")
        a(f"s_add_u32 s{T4_}, s{T3_}, {(u0 + k*nw)//2*7*9216}")
        pf_ld(a, dst, v, R2_)
        k += 1
def pf_down(a, sidx, nw, u0, u1, v, dst, done, R=R2_):
    srd(a, R, P_DOWN, WBYTES)
    a(f"s_lshl_b32 s{T3_}, s{sidx}, 13", f"s_mul_i32 s{T4_}, s{S_XC}, {576*1152}", f"s_add_u32 s{T3_}, s{T3_}, s{T4_}", f"v_lshlrev_b32 v{v}, 7, v1")
    k = 0
    while u0 + k * nw < u1:
        if u0 + (k + 1) * nw > u1: a(f"s_cmp_ge_u32 s{sidx}, {u1 - u0 - k*nw}", f"s_cbranch_scc1 {done}")
        a(f"s_add_u32 s{T4_}, s{T3_}, {(u0 + k*nw)*8192}")
        pf_ld(a, dst, v, R)
        k += 1
def gen_ln1(a):
    LW, TB = T5_, S_CH
    X, RAW = 8, 26
    a(f"s_sub_u32 s{T0_}, s{S_I}, 8", f"s_and_b32 s{TB}, s{T0_}, 7", f"s_lshr_b32 s{T0_}, s{T0_}, 3", f"s_lshl_b32 s{T0_}, s{T0_}, 4", f"s_add_u32 s{TB}, s{TB}, s{T0_}")
    a(f"s_and_b32 s{T0_}, s{S_XC}, 1", f"s_lshl_b32 s{T0_}, s{T0_}, 3", f"s_add_u32 s{TB}, s{TB}, s{T0_}", f"s_lshr_b32 s{T0_}, s{S_XC}, 1", f"s_lshl_b32 s{T0_}, s{T0_}, 5", f"s_add_u32 s{TB}, s{TB}, s{T0_}")
    a("v_lshrrev_b32 v36, 5, v1", "v_and_b32 v37, 31, v1")
    a("v_mul_u32_u24 v38, 1152, v36", "v_lshl_add_u32 v39, v37, 2, v38", "v_lshl_add_u32 v38, v37, 4, v38")
    a(f"s_mul_i32 s{T1_}, s{TB}, 18432", f"s_mul_i32 s{T2_}, s{LW}, 2304", f"s_add_u32 s{T1_}, s{T1_}, s{T2_}")
    a("s_waitcnt lgkmcnt(0)")
    stamp(a, 1); lstamp(a, 1)
    srd(a, R0, P_X, XBYTES)
    a(f"buffer_load_dwordx4 v[{RAW}:{RAW+3}], v38, s[{R0}:{R0+3}], s{T1_} offen")
    a(f"buffer_load_dwordx4 v[{RAW+4}:{RAW+7}], v38, s[{R0}:{R0+3}], s{T1_} offen offset:512")
    a(f"buffer_load_dword v{RAW+8}, v39, s[{R0}:{R0+3}], s{T1_} offen offset:1024")
    a("s_barrier")
    a(f"s_lshr_b32 s{T1_}, s{LW}, 2", f"s_lshl_b32 s{T1_}, s{T1_}, 6", f"s_add_u32 s{T2_}, s{T2_}, s{T1_}", f"s_add_u32 s{T2_}, s{T2_}, {C_LNB}")
    a(f"v_lshl_add_u32 v35, v37, 1, v36")
    a(f"s_mov_b32 s{SP0}, 0x05040100", f"s_mov_b32 s{SP1}, 0x07060302")
    def waits(n):
        for (c, js) in ((2, range(0, 4)), (1, range(4, 8)), (0, range(8, 9))):
            if c == 2: lstamp(a, 2)
            a(f"s_waitcnt vmcnt({c+n})")
            if c == 2: lstamp(a, 3)
            for j in js: unpack(a, X + 2 * j, RAW + j)
    l1 = newlabel("LN1A"); l2 = newlabel("LN1B")
    if NL:
        LW0 = ENV("NLW", 4)
        pf_lane(a, 46, 47)
        a(f"s_sub_u32 s{T1_}, s{LW}, {LW0}", f"s_and_b32 s{T1_}, s{T1_}, 7", f"s_lshl_b32 s{T3_}, s{T1_}, 4", f"s_add_u32 s{T3_}, s{T3_}, s{S_I}", f"s_sub_u32 s{T3_}, s{T3_}, 8")
        pf_gu_setup(a, T3_, R3, T4_, T0_)
    def dma_early(skip):
        a(f"s_cmp_lt_u32 s{LW}, 4", f"s_cbranch_scc1 {skip}", f"s_cmp_ge_u32 s{S_FI}, 18", f"s_cbranch_scc1 {skip}")
        srd(a, R1, P_DOWN, WBYTES)
        a("v_lshlrev_b32 v46, 4, v1", f"s_mul_i32 s{T0_}, s{S_BLK}, 36864", f"s_mul_i32 s{T1_}, s{LW}, 9216", f"s_add_u32 s{T0_}, s{T0_}, s{T1_}", f"s_sub_u32 s{T0_}, s{T0_}, {4*9216}", f"s_add_u32 s{T1_}, s{T1_}, {C_DOWN - 4*9216}")
        for k in range(9):
            if k % 4 == 0:
                a(f"s_add_u32 m0, s{T1_}, {1024*k}")
                if k: a(f"s_add_u32 s{T0_}, s{T0_}, 4096")
            a(f"buffer_load_dwordx4 v46, s[{R1}:{R1+3}], s{T0_} offen offset:{1024*(k&3)} {MOD('DM', 'nt')} lds")
    if XW: waits(0)
    elif DEA == 1:
        dma_early(l1)
        waits(9)
        a(f"s_branch {l2}")
        a(f"{l1}:")
        if NL3:
            l3 = newlabel("LN1C")
            a(f"s_sub_u32 s{T1_}, s{LW}, 4", f"s_cmp_ge_u32 s{T1_}, {NL3}", f"s_cbranch_scc1 {l3}")
            pf_lane(a, 46, 47)
            a(f"s_mul_i32 s{T1_}, s{T1_}, 6", f"s_add_u32 s{T1_}, s{T1_}, s{S_I}", f"s_add_u32 s{T3_}, s{T1_}, {PFB - 18}")
            pf_gu_setup(a, T3_, R3, T4_, T0_)
            pf_ld(a, 47, 46, R3)
            waits(len(MOD("PFM", "nt;sc1").split(';')))
            a(f"s_branch {l2}")
            a(f"{l3}:")
        waits(0)
        a.flush(2)
        a(f"{l2}:")
    elif DEA == 2:
        waits(0)
        dma_early(l1)
        a(f"{l1}:")
    elif NL and ENV("NLE", 0):
        a(f"s_cmp_lt_u32 s{T1_}, {NL}", f"s_cselect_b32 s{T4_}, s{T4_}, {hex(WBYTES)}")
        pf_ld(a, 47, 46, R3)
        waits(len(MOD("PFM", "nt;sc1").split(';')))
    else:
        waits(0)
    if NL and not ENV("NLE", 0):
        if ENV("X0", 0): a(f"s_cmp_eq_u32 s{S_XC}, 0", f"s_cbranch_scc1 {l1}")
        a(f"s_cmp_ge_u32 s{T1_}, {NL}", f"s_cbranch_scc1 {l1}")
        pf_ld(a, 47, 46, R3)
        a(f"{l1}:")
    stamp(a, 2); lstamp(a, 4)
    a(f"v_lshl_add_u32 v6, v35, 4, s{T2_}", f"v_lshl_add_u32 v7, v35, 2, s{T2_}")
    a(f"v_mul_u32_u24 v35, 0x20202, v36", "v_lshl_add_u32 v35, v36, 25, v35", "v_add_u32 v35, 0x05040100, v35")
    ln_stats(a, X, 36, 38, 40, 42, 44)
    lstamp(a, 5)
    for j in range(9):
        if j == ENV("DSAMP", 3):
            a("v_and_b32 v59, 3, v1", "v_lshlrev_b32 v59, 2, v59")
            if SN: a(f"s_load_dwordx4 s[{R3}:{R3+3}], s[{P_DBG}:{P_DBG+1}], 0" + (" glc" if SN == 2 else ""))
            else: a(f"global_load_dword v58, v59, s[{P_DBG}:{P_DBG+1}] sc1")
        ln_apply_pair(a, X + 2 * j, 36, 38, 40, None)
        a(f"v_cvt_pk_f16_f32 v{RAW+j}, v40, v41")
        if j in (3, 7):
            P = RAW + j - 3; O = X + 2 * (j - 3)
            a(f"v_permlane32_swap_b32 v{P}, v{P+2}", f"v_permlane32_swap_b32 v{P+1}, v{P+3}")
            a(f"v_perm_b32 v{O}, v{P+2}, v{P}, s{SP0}", f"v_perm_b32 v{O+1}, v{P+2}, v{P}, s{SP1}")
            a(f"v_perm_b32 v{O+2}, v{P+3}, v{P+1}, s{SP0}", f"v_perm_b32 v{O+3}, v{P+3}, v{P+1}, s{SP1}")
            a(f"ds_write_b128 v6, v[{O}:{O+3}] offset:{1024*(j//4)}")
    a(f"v_mov_b32 v40, v{RAW+8}", f"v_permlane32_swap_b32 v{RAW+8}, v40")
    a(f"v_perm_b32 v40, v40, v{RAW+8}, v35")
    a(f"ds_write_b32 v7, v40 offset:2048")
    a(f"v_mov_b32 v6, s{LW}")
    a(f"ds_write_b8 v6, v{VONE} offset:{FL_LN1}")
    lstamp(a, 6)
    a("s_setprio 0")
    a(f"s_cmp_ge_u32 s{LW}, 4", "s_cbranch_scc1 KS_X4")
    a("s_setprio 3")
    srd(a, R2_, P_WS, XBYTES, WS_UT)
    a("v_and_b32 v6, 1, v0", "v_mul_u32_u24 v6, 9280, v6", "v_lshrrev_b32 v7, 1, v0", "v_lshl_add_u32 v6, v7, 2, v6", f"v_add_u32 v6, {C_LNB}, v6")
    if UL:
        a("v_lshrrev_b32 v7, 3, v0", "v_mul_u32_u24 v7, 0x4100, v7", "v_and_b32 v8, 7, v0", "v_lshl_add_u32 v7, v8, 4, v7")
        a(f"s_lshl_b32 s{T0_}, s{TB}, 7")
    else:
        a("v_lshrrev_b32 v7, 2, v0", "v_mul_u32_u24 v7, 0x2080, v7" if SWU else "v_lshlrev_b32 v7, 13, v7", "v_and_b32 v8, 3, v0", "v_lshl_add_u32 v7, v8, 4, v7")
        a(f"s_lshl_b32 s{T0_}, s{TB}, 6")
    if SWU: a(f"v_xor_b32 v7, s{T0_}, v7", f"s_mov_b32 s{T0_}, 0")
    for k in range(1, 5): a(f"s_add_u32 s{T0_+k}, s{T0_}, {0x80000*k}")
    if SN:
        a("s_waitcnt lgkmcnt(0)")
        a(f"v_mov_b32 v58, s{R3}", f"v_mov_b32 v57, s{R3+1}", f"v_mov_b32 v56, s{R3+2}", f"v_mov_b32 v55, s{R3+3}")
        a("v_mov_b32_dpp v58, v57 quad_perm:[0,1,2,3] row_mask:0xf bank_mask:0xf" if 0 else "v_cmp_eq_u32 vcc, 4, v59", "v_cndmask_b32 v58, v58, v57, vcc", "v_cmp_eq_u32 vcc, 12, v59", "v_cndmask_b32 v56, v56, v55, vcc", "v_cmp_lt_u32 vcc, 4, v59", "v_cndmask_b32 v58, v58, v56, vcc")
        dbg_wait(a, 63)
    else: dbg_wait(a, 0)
    lstamp(a, 7)
    a(f"ds_write_b32 v59, v58 offset:{FL_NONCE}")
    a(f"s_mov_b32 s{SP0}, {hex(TAGM)}")
    for d in range(1, 4): a(f"v_lshrrev_b32 v{58-d}, {3*d}, v58")
    lds_wait(a, FL_LN1, 20, "b8")
    stamp(a, 3); lstamp(a, 8)
    for k in range(5):
        a(f"ds_read2st64_b32 v[{20+4*k}:{21+4*k}], v6 offset0:{2*k} offset1:{9+2*k}")
        a(f"ds_read2st64_b32 v[{22+4*k}:{23+4*k}], v6 offset0:{18+2*k} offset1:{27+2*k}")
    for k in range(5):
        a(f"s_waitcnt lgkmcnt({8-2*k})")
        for d in range(4): a(f"v_bfi_b32 v{20+4*k+d}, s{SP0}, v{58-d}, v{20+4*k+d}")
        a(f"buffer_store_dwordx4 v[{20+4*k}:{23+4*k}], v7, s[{R2_}:{R2_+3}], s{T0_+k} offen {MOD('USMOD')}")
    if DE: a(f"v_mov_b32 v6, s{LW}", f"ds_write_b8 v6, v{VONE} offset:{FL_UTOK}")
    stamp(a, 4)

LNV = ENV("LNV", 1)
DB = ENV("DB", 1)
DDL = 5244
EP = ENV("EP", 1)
ZX = ENV("ZX", 1)
FLD = ENV("FLD", 2)
NDE = ENV("NDE", 9)
def gen_ln1v(a):
    LW, TB = T5_, S_CH
    X, RAW, PIT, LB = 8, 26, 2368, C_LNB - 512
    SE0, SE1, SON, SO0, SO1 = R4, R4 + 1, R4 + 2, R4 + 3, T4_
    a(f"s_sub_u32 s{T0_}, s{S_I}, 8", f"s_and_b32 s{TB}, s{T0_}, 7", f"s_lshr_b32 s{T0_}, s{T0_}, 3", f"s_lshl_b32 s{T0_}, s{T0_}, 4", f"s_add_u32 s{TB}, s{TB}, s{T0_}")
    a(f"s_and_b32 s{T0_}, s{S_XC}, 1", f"s_lshl_b32 s{T0_}, s{T0_}, 3", f"s_add_u32 s{TB}, s{TB}, s{T0_}", f"s_lshr_b32 s{T0_}, s{S_XC}, 1", f"s_lshl_b32 s{T0_}, s{T0_}, 5", f"s_add_u32 s{TB}, s{TB}, s{T0_}")
    a("v_lshrrev_b32 v36, 5, v1", "v_and_b32 v37, 31, v1")
    a("v_mul_u32_u24 v38, 9216, v36", "v_lshl_add_u32 v39, v37, 2, v38", "v_lshl_add_u32 v38, v37, 4, v38")
    a(f"s_mul_i32 s{T1_}, s{TB}, 18432", f"s_mul_i32 s{T2_}, s{LW}, 1152", f"s_add_u32 s{T1_}, s{T1_}, s{T2_}")
    a(f"s_mov_b32 s{R0+2}, {hex(XBYTES)}", f"s_mov_b32 s{R0+3}, 0x20000")
    a("s_waitcnt lgkmcnt(0)")
    stamp(a, 1); lstamp(a, 1)
    a(f"s_mov_b32 s{R0}, s{P_X}", f"s_mov_b32 s{R0+1}, s{P_X+1}")
    a(f"buffer_load_dwordx4 v[{RAW}:{RAW+3}], v38, s[{R0}:{R0+3}], s{T1_} offen")
    a(f"buffer_load_dwordx4 v[{RAW+4}:{RAW+7}], v38, s[{R0}:{R0+3}], s{T1_} offen offset:512")
    a(f"buffer_load_dword v{RAW+8}, v39, s[{R0}:{R0+3}], s{T1_} offen offset:1024")
    a("s_barrier")
    a(f"s_mul_i32 s{T2_}, s{LW}, {PIT}", f"s_add_u32 s{T2_}, s{T2_}, {LB}", "v_lshl_add_u32 v6, v37, 1, v36", f"v_lshl_add_u32 v6, v6, 2, s{T2_}")
    a("v_and_b32 v59, 3, v1", "v_bfe_u32 v7, v1, 2, 2", f"v_mul_u32_u24 v7, {PIT}, v7", "v_lshl_add_u32 v40, v3, 2, v59", "v_lshl_add_u32 v7, v40, 3, v7")
    a(f"s_lshl_b32 s{T2_}, s{LW}, 7", f"s_add_u32 s{T0_}, s{T2_}, {LB + 2048}", f"v_add_u32 v44, s{T0_}, v7", f"s_lshl_b32 s{T2_}, s{LW}, 8", f"s_add_u32 s{T2_}, s{T2_}, {LB}", f"v_add_u32 v7, s{T2_}, v7")
    a(f"v_lshlrev_b32_dpp v40, 4, v59 quad_perm:[0,2,1,3] {DPPM}" if 0 else "v_lshlrev_b32 v41, 4, v59", f"v_mov_b32_dpp v40, v41 quad_perm:[0,2,1,3] {DPPM} ; nodst", "v_lshlrev_b32 v59, 2, v59")
    a("v_lshrrev_b32 v41, 2, v1", "v_mul_u32_u24 v35, 0x8200, v41", f"s_lshl_b32 s{T0_}, s{TB}, 6", f"s_and_b32 s{T1_}, s{T0_}, 0x1e00", f"v_xad_u32 v35, v35, s{T1_}, v40")
    a(f"s_lshl_b32 s{T1_}, s{LW}, 4", f"v_add_u32 v41, s{T1_}, v41", "v_mul_u32_u24 v45, 0x2080, v41", f"v_xad_u32 v45, v45, s{T0_}, v40")
    a(f"s_and_b32 s{T1_}, s{LW}, 3", f"s_mul_i32 s{T1_}, s{T1_}, 0x2080", f"s_and_b32 s{T0_}, s{T0_}, 0x1c0", f"s_xor_b32 s{SO0}, s{T0_}, s{T1_}", f"s_lshr_b32 s{T1_}, s{LW}, 2", f"s_lshl_b32 s{T1_}, s{T1_}, 20")
    a(f"s_add_u32 s{SO0}, s{SO0}, s{T1_}", f"s_add_u32 s{SO1}, s{SO0}, 0x80000")
    a(f"s_mov_b32 s{SE0}, 0x3f80", f"s_mov_b32 s{SE1}, 0x3f800000", f"s_mov_b32 s{SON}, 0x3f803f80", f"s_mov_b32 s{SP0}, {hex(TAGM)}", f"s_mov_b32 s{SP1}, 0x200000")
    a("v_mov_b32 v40, 0", "v_mov_b32 v41, 0", f"v_mov_b32 v42, {f32(1.0/576)}")
    srd(a, R2_, P_WS, XBYTES, WS_UT)
    def waits(n):
        for (c, js) in ((2, range(0, 4)), (1, range(4, 8)), (0, range(8, 9))):
            if c == 2: lstamp(a, 2)
            a(f"s_waitcnt vmcnt({c+n})")
            if c == 2: lstamp(a, 3)
            for j in js: a(f"v_dot2c_f32_bf16 v40, s{SON}, v{RAW+j}", f"v_dot2c_f32_bf16 v41, v{RAW+j}, v{RAW+j}")
    l1 = newlabel("LN1A"); l2 = newlabel("LN1B")
    if NDE:
        a(f"s_cmp_lt_u32 s{LW}, 4", f"s_cbranch_scc1 {l1}", f"s_cmp_ge_u32 s{S_FI}, 18", f"s_cbranch_scc1 {l1}")
        srd(a, R1, P_DOWN, WBYTES)
        a("v_lshlrev_b32 v46, 4, v1", f"s_mul_i32 s{T0_}, s{S_BLK}, 36864", f"s_mul_i32 s{T1_}, s{LW}, 9216", f"s_add_u32 s{T0_}, s{T0_}, s{T1_}", f"s_sub_u32 s{T0_}, s{T0_}, {4*9216}", f"s_add_u32 s{T1_}, s{T1_}, {C_DOWN - 4*9216}")
        for k in range(NDE):
            if k % 4 == 0:
                a(f"s_add_u32 m0, s{T1_}, {1024*k}")
                if k: a(f"s_add_u32 s{T0_}, s{T0_}, 4096")
            a(f"buffer_load_dwordx4 v46, s[{R1}:{R1+3}], s{T0_} offen offset:{1024*(k&3)} {MOD('DM', 'nt')} lds")
        waits(NDE)
        a(f"s_branch {l2}")
        a(f"{l1}:")
        if NL3:
            l3 = newlabel("LN1C")
            a(f"s_sub_u32 s{T1_}, s{LW}, 4", f"s_cmp_ge_u32 s{T1_}, {NL3}", f"s_cbranch_scc1 {l3}")
            pf_lane(a, 46, 47)
            a(f"s_mul_i32 s{T1_}, s{T1_}, 6", f"s_add_u32 s{T1_}, s{T1_}, s{S_I}", f"s_add_u32 s{T3_}, s{T1_}, {PFB - 18}")
            pf_gu_setup(a, T3_, R1, T2_, T0_)
            for m in MOD("PFM", "nt;sc1").split(";"): a(f"buffer_load_dword v47, v46, s[{R1}:{R1+3}], s{T2_} offen {m}")
            waits(2)
            a(f"s_branch {l2}")
            a(f"{l3}:")
    waits(0)
    a(f"{l2}:")
    stamp(a, 2); lstamp(a, 4)
    def sample():
        if SN: a(f"s_load_dwordx4 s[{R3}:{R3+3}], s[{P_DBG}:{P_DBG+1}], 0")
        else: a(f"global_load_dword v58, v59, s[{P_DBG}:{P_DBG+1}] sc1")
    DS = ENV("DSAMP", 3)
    if DS == -1: sample()
    a("v_add_f32_dpp v36, v40, v40 row_ror:8 row_mask:0xf bank_mask:0x3 ; nodst", "v_add_f32_dpp v36, v41, v41 row_ror:8 row_mask:0xf bank_mask:0xc ; nodst")
    for m in ("row_half_mirror", "quad_perm:[1,0,3,2]", "quad_perm:[2,3,0,1]"): a(f"v_add_f32_dpp v36, v36, v36 {m} {DPPM}")
    a("v_mov_b32 v37, v36", "v_permlane16_swap_b32 v36, v37", "v_add_f32 v36, v36, v37")
    a(f"v_mul_f32_dpp v40, v36, v42 row_newbcast:0 {DPPM} ; nodst", f"v_mul_f32_dpp v41, v36, v42 row_newbcast:8 {DPPM} ; nodst")
    a("v_cvt_pk_bf16_f32 v36, 0, -v40", "v_fma_f32 v41, -v40, v40, v41")
    lstamp(a, 5)
    chain = ["v_max_f32 v41, 0, v41", "v_cvt_pk_bf16_f32 v41, 0, v41", f"v_add_f32 v41, {f32(1e-5)}, v41", "v_cvt_pk_bf16_f32 v41, 0, v41", "v_sqrt_f32 v41, v41", "v_cvt_pk_bf16_f32 v41, 0, v41", "v_rcp_f32 v38, v41"]
    def sub(j): a(f"v_dot2_f32_bf16 v{X+2*j}, v{RAW+j}, s{SE0}, v36", f"v_dot2_f32_bf16 v{X+2*j+1}, v{RAW+j}, s{SE1}, v36")
    for j in range(9):
        sub(j)
        if chain: a(chain.pop(0))
        if j >= 2: rnd2(a, X + 2 * (j - 2))
    for j in range(9):
        if j == DS: sample()
        if j < 2: rnd2(a, X + 2 * (j + 7))
        a(f"v_pk_mul_f32 v[{X+2*j}:{X+2*j+1}], v[{X+2*j}:{X+2*j+1}], v[38:39] op_sel_hi:[1,0]")
        a(f"v_cvt_pkrtz_f16_f32 v{RAW+j}, v{X+2*j}, v{X+2*j+1}", f"v_add_u32 v{RAW+j}, 0x40004, v{RAW+j}")
        if j & 1: a(f"ds_write2st64_b32 v6, v{RAW+j-1}, v{RAW+j} offset0:{j-1} offset1:{j}")
    a(f"ds_write_b32 v6, v{RAW+8} offset:2048")
    a(f"v_mov_b32 v6, s{LW}")
    a(f"ds_write_b8 v6, v{VONE} offset:{FL_LN1}")
    lstamp(a, 6)
    if SN:
        a("s_waitcnt lgkmcnt(0)")
        a(f"v_mov_b32 v58, s{R3}", f"v_mov_b32 v57, s{R3+1}", f"v_mov_b32 v56, s{R3+2}", f"v_mov_b32 v55, s{R3+3}")
        a("v_cmp_eq_u32 vcc, 4, v59", "v_cndmask_b32 v58, v58, v57, vcc", "v_cmp_eq_u32 vcc, 12, v59", "v_cndmask_b32 v56, v56, v55, vcc", "v_cmp_lt_u32 vcc, 4, v59", "v_cndmask_b32 v58, v58, v56, vcc")
        dbg_wait(a, 63)
    else: dbg_wait(a, 0)
    lstamp(a, 7)
    a(f"v_mov_b32_dpp v40, v58 quad_perm:[0,2,1,3] {DPPM} ; nodst")
    for d in range(1, 4): a(f"v_lshrrev_b32 v{40+d}, {3*d}, v40")
    lds_wait(a, FL_LN1, 20, "b8")
    stamp(a, 3); lstamp(a, 8)
    for h in range(2):
        for i in range(2): a(f"ds_read_b64_tr_b16 v[{20+4*h+2*i}:{21+4*h+2*i}], v7 offset:{128*h + 4*PIT*i}")
    for i in range(2): a(f"ds_read_b64_tr_b16 v[{28+2*i}:{29+2*i}], v44 offset:{4*PIT*i}")
    for h in range(2):
        a(f"s_waitcnt lgkmcnt({4-2*h})")
        for d in range(4): a(f"v_bfi_b32 v{20+4*h+d}, s{SP0}, v{40+d}, v{20+4*h+d}")
        a(f"buffer_store_dwordx4 v[{20+4*h}:{23+4*h}], v35, s[{R2_}:{R2_+3}], s{SO1 if h else SO0} offen {MOD('USMOD')}")
    a("s_waitcnt lgkmcnt(0)")
    a(f"s_cmp_ge_u32 s{LW}, 4", "s_cbranch_scc1 KS_X4")
    for d in range(4): a(f"v_bfi_b32 v{28+d}, s{SP0}, v{40+d}, v{28+d}")
    a(f"buffer_store_dwordx4 v[28:31], v45, s[{R2_}:{R2_+3}], s{SP1} offen {MOD('USMOD')}")
    a(f"ds_write_b8 v6, v{VONE} offset:{FL_UTOK}")
    a(f"ds_write_b32 v59, v58 offset:{FL_NONCE}")
    for d in range(1, 4): a(f"v_lshrrev_b32 v{58-d}, {3*d}, v58")
    stamp(a, 4)

def dbg_wait(a, n, vt=58, va=59):
    lp = newlabel("DBP"); go = newlabel("DBG")
    a(f"s_waitcnt vmcnt({n})")
    a(f"{lp}:")
    a(f"v_cmp_eq_u32 vcc, 0, v{vt}", f"s_cbranch_vccz {go}")
    a("s_sleep 1")
    a(f"global_load_dword v{vt}, v{va}, s[{P_DBG}:{P_DBG+1}] sc1")
    guard(a)
    a("s_waitcnt vmcnt(0)")
    a(f"s_branch {lp}")
    a(f"{go}:")

ROLE_TILES = {0: [0, 1, 2, 3, 4], 1: [0, 1, 2, 3, 4], 2: [5, 6, 7], 3: [5, 6, 7]}
ROLE_W = {2: 0, 3: 1, 1: 2}
ACC, DA, RING, WT = 16, 36, 76, 92
NRING = 4

def epi_plan():
    owner = {0: (0, 0), 1: (0, 1), 2: (1, 0), 3: (1, 1), 4: (1, 3), 5: (0, 2), 6: (0, 3), 7: (1, 2)}
    slots = {}
    cnt = [0, 0]
    for g in range(2):
        for role in range(4):
            for j in ROLE_TILES[role]:
                if owner[j] == (g, role): continue
                slots[(g, role, j)] = g * G_SIZE + R_RED + 1024 * cnt[g]; cnt[g] += 1
    assert max(cnt) <= 13, cnt
    ownerC = {0: 0, 1: 0, 2: 1, 3: 1, 4: 2, 5: 2, 6: 3, 7: 3}
    n = 0
    for role in range(4):
        for j in ROLE_TILES[role]:
            if ownerC[j] == role: continue
            slots[(2, role, j)] = 2 * G_SIZE + R_RED + 1024 * n; n += 1
    return owner, ownerC, slots

class LdsTrack:
    def __init__(self, a): self.a = a; self.n = 0; self.done = -1
    def issue(self, text): self.a(text); self.n += 1; return self.n - 1
    def wait(self, idx):
        k = self.n - 1 - idx
        if idx <= self.done: return
        self.done = idx
        if k <= 15: self.a(f"s_waitcnt lgkmcnt({k})")

CZ0, CZ1, CSH, CXR, CFL, SIS, CM, SM, SC, SSC, SDL = 6, 7, 8, 9, 10, 11, 12, 14, 15, 16, 18
IXR, LFR = (108, 109, 112, 113), (110, 111, 114, 115)
def stage_write(a, off):
    a("v_lshl_or_b32 v24, v25, 16, v24", "v_lshl_or_b32 v25, v27, 16, v26", f"ds_write_b64 v28, v[24:25] offset:{off}")
def pre_ixlf(a):
    end = newlabel("PX"); j1 = newlabel("PX"); j2 = newlabel("PX"); jn = newlabel("PX")
    a(f"s_cmp_eq_u32 s{S_ROLE}, 3", f"s_cbranch_scc1 {end}")
    a("v_lshlrev_b32 v26, 3, v2", "v_mov_b32 v21, 0x80")
    a(f"s_cmp_eq_u32 s{S_ROLE}, 1", f"s_cbranch_scc1 {j1}", f"s_cmp_eq_u32 s{S_ROLE}, 2", f"s_cbranch_scc1 {j2}")
    a("v_lshl_add_u32 v26, v3, 1, v26", "v_mov_b32 v22, 1")
    a(f"s_branch {jn}")
    a(f"{j1}:")
    a("v_cmp_gt_u32 vcc, 2, v3", "v_lshl_add_u32 v20, v3, 2, v26", "v_add_u32 v20, 256, v20", "v_lshl_add_u32 v26, v3, 8, v26", "v_cndmask_b32 v26, v26, v20, vcc")
    a("v_cndmask_b32 v22, v21, 2, vcc", "v_cndmask_b32 v21, 4, v21, vcc")
    a(f"s_branch {jn}")
    a(f"{j2}:")
    a("v_lshl_add_u32 v26, v3, 9, v26", "v_add_u32 v26, 0x400, v26", "v_mov_b32 v22, 0x100")
    a(f"{jn}:")
    a(f"v_mad_u32_u24 v26, v22, s{S_G}, v26", "v_add_u32 v27, v26, v21", f"s_movk_i32 s{T4_}, {T_TAB}", f"s_movk_i32 s{T5_}, {-(0x4280 + 0x800)}", f"s_lshl_b32 s{T3_}, s{S_G}, 9")
    for r in range(2): a(f"v_cvt_f32_u32 v{20+r}, v{26+r}", f"v_max_u32 v{22+r}, 0x800, v{26+r}")
    for r in range(2):
        a(f"v_cmp_gt_u32 vcc, 0x80, v{26+r}", f"v_lshrrev_b32 v{24+r}, 16, v{20+r}", f"v_add3_u32 v{24+r}, v{24+r}, v{22+r}, s{T5_}", f"v_cndmask_b32 v{24+r}, v{24+r}, v{26+r}, vcc")
    for r in range(2):
        a(f"v_min_u32 v{24+r}, {IDX_DUMMY}, v{24+r}", f"v_lshl_add_u32 v{24+r}, v{24+r}, 1, s{T4_}")
    a(f"v_add_u32 v29, s{T3_}, v28")
    a("v_lshl_or_b32 v24, v25, 16, v24", "v_lshl_or_b32 v25, v27, 16, v26", "ds_write_b64 v29, v[24:25]")
    a(f"{end}:")

def gen_group(a):
    RAW, VLDT, VDSK, VNT, VNA, VPR, VEM, VTE, VTL = 40, 46, 107, 104, 105, 106, 72, 126, 127
    I1, D2, I2, D1, D3 = 116, 119, 120, 124, 125
    a(f"s_lshl_b32 s{T0_}, s{S_CH}, 8", f"v_lshl_add_u32 v20, v1, 2, s{T0_}")
    a(f"s_lshl_b32 s{T0_}, s{S_CH}, 1", f"v_mov_b32 v21, s{T0_}")
    a(f"s_mul_i32 s{S_GB}, s{S_G}, {G_SIZE}", f"s_add_u32 s{S_GB}, s{S_GB}, {G_BASE}")
    a("s_waitcnt lgkmcnt(0)")
    stamp(a, 1)
    PL = ENV("PLATE", 0)
    if PL == 1: a(f"s_sub_u32 s{T0_}, s{S_I}, 8", f"s_cmp_ge_u32 s{T0_}, 16", "s_cbranch_scc1 KS_PL1", "s_barrier", "KS_PL1:")
    if PL == 2: a("s_barrier")
    a(f"global_load_ushort v{VLDT}, v21, s[{P_LDT}:{P_LDT+1}]")
    for k in range(6):
        a(f"global_load_dword v{RAW+k}, v20, s[{P_ARE+2*k}:{P_ARE+2*k+1}]")
    a(f"global_load_ushort v{VDSK}, v21, s[{P_DSK}:{P_DSK+1}]")
    if PL == 1: a("s_cbranch_scc0 KS_PL2")
    if PL != 2: a("s_barrier")
    if PL == 1: a("KS_PL2:")
    if ENV("UPW", 0):
        a(f"s_sub_u32 s{T0_}, s{S_I}, 8", f"s_cmp_ge_u32 s{T0_}, 16", "s_cbranch_scc1 KS_UPW", f"s_cmp_lg_u32 s{S_G}, 1", "s_cbranch_scc1 KS_UPW")
        TB = T5_
        a(f"s_and_b32 s{TB}, s{T0_}, 7", f"s_lshr_b32 s{T0_}, s{T0_}, 3", f"s_lshl_b32 s{T0_}, s{T0_}, 4", f"s_add_u32 s{TB}, s{TB}, s{T0_}")
        a(f"s_and_b32 s{T0_}, s{S_XC}, 1", f"s_lshl_b32 s{T0_}, s{T0_}, 3", f"s_add_u32 s{TB}, s{TB}, s{T0_}", f"s_lshr_b32 s{T0_}, s{S_XC}, 1", f"s_lshl_b32 s{T0_}, s{T0_}, 5", f"s_add_u32 s{TB}, s{TB}, s{T0_}")
        srd(a, R2_, P_WS, XBYTES, WS_UT)
        a(f"s_lshl_b32 s{T0_}, s{S_ROLE}, 4", "v_lshrrev_b32 v7, 2, v1", f"v_add_u32 v7, s{T0_}, v7", "v_mul_u32_u24 v7, 0x2080, v7", "v_and_b32 v8, 3, v1", "v_lshl_add_u32 v7, v8, 4, v7")
        a(f"s_lshl_b32 s{T0_}, s{TB}, 6", f"v_xor_b32 v7, s{T0_}, v7")
        for d in range(4): a(f"v_mov_b32 v{8+d}, 0")
        for k in range(5):
            a(f"s_mov_b32 s{T0_}, {0x80000*k}")
            a(f"buffer_store_dwordx4 v[8:11], v7, s[{R2_}:{R2_+3}], s{T0_} offen {MOD('UPWMOD')}")
        a.flush(2)
        a("KS_UPW:")
    a(f"s_movk_i32 s{T4_}, {T_TAB}")
    def dr_addr(dst, x, special=False):
        a(f"v_sub_u32 v30, 544, v{x}", "v_cvt_f32_i32 v31, v30", "v_cmp_gt_u32 vcc, 0x100, v30", "v_cvt_pk_bf16_f32 v31, v31, v31", "v_and_b32 v31, 0xffff, v31", "v_subrev_u32 v31, 0x4280, v31")
        a("v_cndmask_b32 v31, v31, v30, vcc", "v_cmp_lt_u32 vcc, 0x20d, v30")
        if special: a(f"v_or_b32 v30, 1, v{x}")
        a("v_cndmask_b32 v31, v31, v32, vcc")
        if special: a("v_cmp_eq_u32 vcc, 0x25d, v30", "v_cndmask_b32 v31, v31, v33, vcc")
        a(f"v_lshl_add_u32 v{dst}, v31, 1, s{T4_}")
    def g_addr(dst, y0, base, M):
        a(f"v_sub_u32 v30, {y0}, v23", f"v_cmp_lt_u32 vcc, {M}, v30", f"v_lshlrev_b32 v31, 2, v30", f"v_add_u32 v31, {T_TAB + 2*base}, v31", f"v_cndmask_b32 v{dst}, v31, v33, vcc")
    pb = newlabel("PREB"); pw = newlabel("PREW"); pe = newlabel("PREE")
    a(f"s_cmp_eq_u32 s{S_G}, 2", f"s_cbranch_scc1 {pe}")
    a(f"v_mov_b32 v32, {IDX_ZERO}")
    a(f"s_cmp_eq_u32 s{S_G}, 1", f"s_cbranch_scc1 {pb}")
    jl = [newlabel("PRE") for _ in range(4)]
    a(f"v_mov_b32 v33, {T_TAB + 2*IDX_ZERO}")
    for r in range(1, 4): a(f"s_cmp_eq_u32 s{S_ROLE}, {r}", f"s_cbranch_scc1 {jl[r]}")
    a("v_lshlrev_b32 v23, 1, v1")
    for e, (y0, base, M) in enumerate(((93, 389, 61), (92, 389, 61), (94, 388, 62), (93, 388, 62))): g_addr(24 + e, y0, base, M)
    a(f"s_branch {pw}")
    for r, base in ((1, 513), (2, 514)):
        a(f"{jl[r]}:")
        a("v_min_u32 v23, 47, v1", "v_lshlrev_b32 v23, 1, v23")
        for e, y0 in ((0, 64), (1, 63), (3, 62)): g_addr(24 + e, y0, base, 63)
        a("v_mov_b32 v26, v25")
        a(f"s_branch {pw}")
    a(f"{jl[3]}:")
    a("v_cmp_gt_u32 vcc, 9, v1", "v_add_u32 v23, 0x100, v1", "v_mov_b32 v33, 0x200", "v_cndmask_b32 v23, v23, v1, vcc", "v_lshlrev_b32 v23, 1, v23")
    for e in (0, 1, 3):
        if e: a("v_add_u32 v23, 1, v23")
        dr_addr(24 + e, 23, special=True)
    a("v_mov_b32 v26, v25")
    a(f"s_branch {pw}")
    a(f"{pb}:")
    a(f"s_lshl_b32 s{T1_}, s{S_ROLE}, 7", f"s_add_u32 s{T1_}, s{T1_}, 18", f"v_lshl_add_u32 v23, v1, 1, s{T1_}")
    for e in range(3):
        if e: a("v_add_u32 v23, 1, v23")
        dr_addr(24 + e, 23)
    a(f"s_sub_u32 s{T1_}, s{S_ROLE}, 1", f"s_cmp_lt_u32 s{T1_}, 2", f"s_cselect_b32 s{T2_}, 47, 63", f"s_mul_i32 s{T1_}, s{T1_}, {T_G9E - T_G7E}", f"s_add_u32 s{T1_}, s{T1_}, {T_G7E}")
    a(f"s_cmp_eq_u32 s{S_ROLE}, 0", f"s_cselect_b32 s{T1_}, {T_G3}, s{T1_}", f"s_cmp_eq_u32 s{S_ROLE}, 3", f"s_cselect_b32 s{T1_}, {T_DRE}, s{T1_}", f"s_cselect_b32 s{T3_}, 0x100, 0")
    a("v_cmp_gt_u32 vcc, 9, v1", f"v_min_u32 v23, s{T2_}, v1", f"v_add_u32 v30, s{T3_}, v23", "v_cndmask_b32 v23, v30, v23, vcc")
    if DB: a(f"s_sub_u32 s{T1_}, s{T1_}, {DDL}")
    a(f"v_lshl_add_u32 v27, v23, 2, s{T1_}")
    stage_write(a, 1024)
    a(f"v_mov_b32 v24, s{S_ROLE}", f"ds_write_b8 v24, v{VONE} offset:{FL_PRE + 4}")
    a(f"s_branch {pe}")
    a(f"{pw}:")
    stage_write(a, 1536)
    a(f"v_mov_b32 v24, s{S_ROLE}", f"ds_write_b8 v24, v{VONE} offset:{FL_PRE}")
    a(f"{pe}:")
    a(f"s_mul_i32 s{T1_}, s{S_ROLE}, {16*KG_ROW}", f"s_min_u32 s{T2_}, s{T1_}, {KG_T[3]}", f"s_add_u32 s{T2_}, s{T2_}, s{S_GB}")
    a(f"s_lshl_b32 s{T0_}, s{S_G}, 4", f"v_mov_b32 v14, s{T0_}", f"v_add_u32 v15, s{S_ROLE}, v14")
    a(f"v_lshl_add_u32 v{VEM}, v1, 3, s{T2_}")
    for k in range(1, 4): a(f"v_add_u32 v{VEM+k}, {4*KG_ROW*k}, v{VEM}")
    a(f"v_mul_u32_u24 v{VTE}, {KG_ROW}, v2", f"v_lshl_add_u32 v{VTE}, v3, 4, v{VTE}", f"v_add_u32 v{VTE}, s{S_GB}, v{VTE}", f"v_add_u32 v{VTL}, s{T1_}, v{VTE}")
    VDA, VDA2, VB_, VT8, VT16, VG8, VG16, VLN = 6, 7, 8, 9, 10, 11, 13, 12
    a("v_lshlrev_b32 v20, 3, v3", "v_sub_u32 v20, v20, v2", "v_add_u32 v21, 16, v20", "v_lshrrev_b32 v21, 1, v21")
    if DB: a("v_and_b32 v23, 1, v21", f"s_movk_i32 s{T1_}, {-DDL}")
    a("v_and_b32 v22, 1, v2", f"s_add_u32 s{T0_}, s{S_GB}, {T_DRE}", f"v_lshl_add_u32 v21, v21, 2, s{T0_}", f"s_movk_i32 s{T0_}, {T_DRO - T_DRE}", f"s_movk_i32 s{T2_}, {T_G7O - T_G7E}")
    if DB: a(f"v_mad_i32_i24 v21, v23, s{T1_}, v21")
    a(f"v_mad_u32_u24 v{VDA}, v22, s{T0_}, v21", f"v_add_u32 v{VDA2}, 640, v{VDA}")
    a(f"v_mad_u32_u24 v23, v22, s{T2_}, v21", f"v_add_u32 v{VG16}, {T_G7E - T_DRE}, v23")
    a("v_lshlrev_b32 v23, 2, v3", "v_sub_u32 v23, v23, v2", f"s_add_u32 s{T0_}, s{S_GB}, {T_G3 + 60 - (DDL if DB else 0)}", f"v_lshl_add_u32 v{VG8}, v23, 2, s{T0_}")
    if DB: a(f"s_movk_i32 s{T1_}, {DDL}", f"v_mad_u32_u24 v{VG8}, v22, s{T1_}, v{VG8}")
    a(f"s_mul_i32 s{T2_}, s{S_G}, {U_SIZE}", f"s_add_u32 s{T2_}, s{T2_}, {C_U}")
    a(f"v_lshl_add_u32 v23, v2, 5, s{T2_}", f"v_lshl_add_u32 v{VB_}, v3, 4, v23")
    a("v_bfe_u32 v20, v1, 2, 2", "v_and_b32 v21, 3, v1", "v_lshl_add_u32 v20, v3, 3, v20")
    a(f"v_lshlrev_b32 v{VNA}, 2, v21")
    a(f"v_lshl_add_u32 v21, v21, 3, s{S_GB}", f"v_lshl_add_u32 v{VT8}, v20, 4, v21", f"v_lshl_add_u32 v{VT16}, v20, 5, v21")
    a(f"v_lshlrev_b32 v{VLN}, 4, v1")
    srd(a, R0, P_WS, 0x240000, WS_ZB1)
    if SWZ: a(f"s_mov_b32 s{CFL}, 0x8080")
    a(f"s_lshl_b32 s{T0_}, s{S_ROLE}, 19", f"s_lshl_b32 s{T1_}, s{S_B2}, 6", f"s_add_u32 s{T0_}, s{T0_}, s{T1_}")
    a(f"s_lshl_b32 s{T1_}, s{S_ROLE}, 16", f"s_lshl_b32 s{T3_}, s{S_CH}, 6", f"s_add_u32 s{T1_}, s{T1_}, s{T3_}", f"s_add_u32 s{T1_}, s{T1_}, {0x200000 - 512*64}")
    if SWZ:
        a(f"s_cmp_eq_u32 s{S_G}, 2", f"s_cselect_b32 s{CZ0}, s{T1_}, s{T0_}", f"s_cselect_b32 s{CSH}, 0x1080, s{CFL}", f"s_cselect_b32 s{T0_}, 1, 3")
        a(f"s_and_b32 s{T0_}, s{T0_}, s{S_ROLE}", f"s_lshl_b32 s{T0_}, s{T0_}, 11", f"s_xor_b32 s{CZ0}, s{CZ0}, s{T0_}", f"s_and_b32 s{CFL}, s{CZ0}, 0x7c0", f"s_xor_b32 s{CZ0}, s{CZ0}, s{CFL}", f"s_xor_b32 s{CZ1}, s{CZ0}, 0x6000")
    else:
        a(f"s_cmp_eq_u32 s{S_G}, 2", f"s_cselect_b32 s{CZ0}, s{T1_}, s{T0_}", f"s_cselect_b32 s{CSH}, 12, 15", f"s_add_u32 s{CZ1}, s{CZ0}, 16384")
    a(f"s_and_b32 s{CXR}, s{S_G}, 1", f"s_lshl_b32 s{CXR}, s{CXR}, 4", f"s_mov_b32 s{CM}, 0x55555555", f"s_mov_b32 s{CM+1}, 0x55555555")
    a(f"s_lshl_b32 s{T0_}, s{S_ROLE}, 8", f"s_add_u32 s{T0_}, s{T0_}, s{S_GB}", f"s_add_u32 s{T0_}, s{T0_}, 36", f"v_lshl_add_u32 v{D1}, v1, 2, s{T0_}")
    a(f"s_movk_i32 s{T0_}, {T_G7O - T_G7E}", f"s_cmp_eq_u32 s{S_ROLE}, 0", f"s_cselect_b32 s{T0_}, {T_G5 - T_G3}, s{T0_}", f"s_cmp_eq_u32 s{S_ROLE}, 3", f"s_cselect_b32 s{T0_}, {T_DRO - T_DRE}, s{T0_}")
    a(f"v_mov_b32 v20, s{S_GB}", f"ds_write_b16 v20, v{VZ} offset:{T_TAB + 2*IDX_ZERO}")
    a(f"s_mov_b32 s{SDL}, s{T0_}", f"v_mov_b32 v{D3}, v28")
    def stage_read():
        lds_wait(a, FL_PRE, 18, "b8")
        a(f"ds_read2st64_b64 v[28:31], v{D3} offset0:0 offset1:1", f"ds_read2st64_b64 v[32:35], v{D3} offset0:2 offset1:3")
    def stage_unpack():
        for k in range(16):
            src = 28 + k // 2; w = f"WORD_{k & 1}"
            if 108 + k in LFR: a(f"v_cvt_f32_u32_sdwa v{108+k}, v{src} dst_sel:DWORD dst_unused:UNUSED_PAD src0_sel:{w}")
            else: a(f"v_add_u32_sdwa v{108+k}, s{S_GB}, v{src} dst_sel:DWORD dst_unused:UNUSED_PAD src0_sel:DWORD src1_sel:{w}")
        a(f"v_add_u32 v{D3}, s{SDL}, v{D2}")
    stage_read()
    a("s_waitcnt lgkmcnt(0)")
    stage_unpack()
    ex = newlabel("EXP")
    if KOFF: a(f"s_lshl_b32 s{T0_}, s{S_G}, 5", f"s_add_u32 s{T0_}, s{T0_}, s{S_I}", f"s_cmp_ge_u32 s{T0_}, {64 + 24}", "s_cbranch_scc1 KC_RECV")
    a(f"s_mov_b32 s{T0_}, {f32(LOG2E_HI)}", f"s_mov_b32 s{T1_}, {f32(LOG2E_LO)}", f"s_mov_b32 s{T2_}, {f32(INV2PI_HI)}", f"s_mov_b32 s{T3_}, {f32(INV2PI_LO)}")
    a(f"s_waitcnt vmcnt(7)")
    a(f"v_lshlrev_b32 v16, 16, v{VLDT}")
    a(f"v_mul_f32 v17, s{T0_}, v16")
    a(f"v_fma_f32 v19, v16, s{T0_}, -v17", f"v_fmac_f32 v19, s{T1_}, v16")
    a("v_exp_f32 v17, v17")
    a(f"v_mul_f32 v19, {f32(math.log(2.0))}, v19")
    a("v_fmac_f32 v17, v17, v19")
    a("v_cvt_pk_bf16_f32 v16, 0, v17")
    a(f"s_waitcnt vmcnt(5)")
    stamp(a, 2)
    a(f"ds_write_b32 v{VZ}, v{VONE} offset:{FL_PARAM}")
    THH, THL = 68, 70
    for k in range(2): unpack(a, 20 + 2 * k, RAW + k)
    for k in range(2): a(f"v_pk_mul_f32 v[{20+2*k}:{21+2*k}], v[{20+2*k}:{21+2*k}], v[16:17] op_sel_hi:[1,0]")
    a("v_max_f32 v36, v20, v21")
    a(f"v_pk_mul_f32 v[{THH}:{THH+1}], v[22:23], s[{T2_}:{T3_}] op_sel_hi:[1,0]")
    a(f"v_pk_fma_f32 v[{THL}:{THL+1}], v[22:23], s[{T2_}:{T3_}], v[{THH}:{THH+1}] op_sel_hi:[1,0,1] neg_lo:[0,0,1] neg_hi:[0,0,1]")
    a(f"v_pk_fma_f32 v[{THL}:{THL+1}], v[22:23], s[{T2_}:{T3_}], v[{THL}:{THL+1}] op_sel:[0,1,0]")
    T = 90
    def cmul_(dr, di, ar, ai, br, bi, t=T):
        assert di not in (ar, br, bi)
        return [f"v_pk_mul_f32 v[{t}:{t+1}], v[{ai}:{ai+1}], v[{bi}:{bi+1}]",
                f"v_pk_mul_f32 v[{t+2}:{t+3}], v[{ai}:{ai+1}], v[{br}:{br+1}]",
                f"v_pk_fma_f32 v[{di}:{di+1}], v[{ar}:{ar+1}], v[{bi}:{bi+1}], v[{t+2}:{t+3}]",
                f"v_pk_fma_f32 v[{dr}:{dr+1}], v[{ar}:{ar+1}], v[{br}:{br+1}], v[{t}:{t+1}] neg_lo:[0,0,1] neg_hi:[0,0,1]"]
    def cm_(d, x, y, t=T): return cmul_(d, d + 2, x, x + 2, y, y + 2, t)
    def csq_(d, s_, t=T):
        return [f"v_pk_mul_f32 v[{t}:{t+1}], v[{s_+2}:{s_+3}], v[{s_+2}:{s_+3}]",
                f"v_pk_mul_f32 v[{t+2}:{t+3}], v[{s_}:{s_+1}], v[{s_+2}:{s_+3}]",
                f"v_pk_fma_f32 v[{d}:{d+1}], v[{s_}:{s_+1}], v[{s_}:{s_+1}], v[{t}:{t+1}] neg_lo:[0,0,1] neg_hi:[0,0,1]",
                f"v_pk_add_f32 v[{d+2}:{d+3}], v[{t+2}:{t+3}], v[{t+2}:{t+3}]"]
    def cmul(*x): a(*cmul_(*x))
    def csq(*x): a(*csq_(*x))
    CBR, CBI = 32, 34
    sk = newlabel("SK")
    a(f"s_cmp_eq_u32 s{S_ROLE}, 3", f"s_cbranch_scc1 {sk}")
    a("s_waitcnt vmcnt(1)")
    for k in range(2, 6): unpack(a, 20 + 2 * k, RAW + k)
    for k in range(2, 4): a(f"v_pk_mul_f32 v[{20+2*k}:{21+2*k}], v[{20+2*k}:{21+2*k}], v[16:17] op_sel_hi:[1,0]")
    cmul(CBR, CBI, 28, 30, 24, 26)
    a(f"v_max3_f32 v37, abs(v{CBI}), abs(v{CBI+1}), abs(v{CBR})", f"v_max_f32 v37, v37, abs(v{CBR+1})")
    a(f"{sk}:")
    a("s_waitcnt vmcnt(0)")
    a.flush(1)
    a("v_permlane32_swap_b32 v36, v37", "v_max_f32 v36, v36, v37")
    red32(a, "v_max_f32", 36, 38)
    a(f"v_readlane_b32 s{SM}, v36, 0", f"v_readlane_b32 s{SC}, v36, 32")
    a(f"s_add_u32 s{SC}, s{SC}, 0x7fffff", f"s_lshr_b32 s{SC}, s{SC}, 23", f"s_max_u32 s{SC}, s{SC}, 24", f"s_sub_u32 s{SSC}, 269, s{SC}", f"s_lshl_b32 s{SSC}, s{SSC}, 23")
    a(f"v_subrev_f32 v20, s{SM}, v20", f"v_subrev_f32 v21, s{SM}, v21")
    a(f"v_mul_f32 v20, {f32(LOG2E)}, v20", f"v_mul_f32 v21, {f32(LOG2E)}, v21")
    def scale_cb():
        a(f"v_pk_mul_f32 v[{CBR}:{CBR+1}], v[{CBR}:{CBR+1}], s[{SSC}:{SSC+1}] op_sel_hi:[1,0]", f"v_pk_mul_f32 v[{CBI}:{CBI+1}], v[{CBI}:{CBI+1}], s[{SSC}:{SSC+1}] op_sel_hi:[1,0]")
    def anchor(dr, di, l, conj=False):
        lit = {1: "1.0", 2: "2.0"}.get(l, f32(float(l)))
        for e in range(2):
            t = T + 4 * e
            if l != 1: a(f"v_mul_f32 v{t+1}, {lit}, v{THH+e}", f"v_mul_f32 v{t}, {lit}, v{20+e}")
        for e in range(2):
            t = T + 4 * e
            a(f"v_fract_f32 v{t+1}, v{t+1 if l != 1 else THH+e}")
        for e in range(2):
            t = T + 4 * e
            a(f"v_fmac_f32 v{t+1}, {lit}, v{THL+e}")
        for e in range(2):
            t = T + 4 * e
            a(f"v_exp_f32 v{t}, v{t if l != 1 else 20+e}", f"v_cos_f32 v{t+2}, v{t+1}", f"v_sin_f32 v{t+1}, v{t+1}")
        for e in range(2):
            t = T + 4 * e
            a(f"v_mul_f32 v{dr+e}, v{t}, v{t+2}")
            a(f"v_mul_f32 v{di+e}, v{t}, {'-' if conj else ''}v{t+1}")
    em = [0, None]
    def it(cms, row=None, x=None, y=None):
        if em[1]: a(em[1]); em[1] = None
        for k in range(4):
            for c in cms:
                if k < len(c): a(c[k])
        if row is None: return
        t = (98, 76)[em[0] & 1]; em[0] += 1
        for v, tt in ((x, t), (y, t + 2)):
            if v is not None: a(f"v_cvt_pk_f16_f32 v{tt}, v{v}, v{v+2}", f"v_cvt_pk_f16_f32 v{tt+1}, v{v+1}, v{v+3}")
        o = (row & 3) * KG_ROW // 8
        if y is None: em[1] = f"ds_write_b64 v{VEM + row//4}, v[{t}:{t+1}] offset:{8*o}"
        else: em[1] = f"ds_write2_b64 v{VEM + row//4}, v[{t}:{t+1}], v[{t+2}:{t+3}] offset0:{o} offset1:{o + KG_ROW//8}"
    G1, G2, G3 = 40, 44, 48
    VA, VB, VC, VD = 52, 56, 60, 64
    oth = lambda c, p, q: p if c != p else q
    jl = [newlabel("JOB") for _ in range(4)]; jn = newlabel("JOBJ")
    for r in (3, 1, 2): a(f"s_cmp_eq_u32 s{S_ROLE}, {r}", f"s_cbranch_scc1 {jl[r]}")
    anchor(G2, G2 + 2, 128); scale_cb(); anchor(G1, G1 + 2, 1)
    cur = CBR
    for c in range(8):
        nx = oth(cur, VA, VB)
        it([cm_(VC, cur, G2)] + ([cm_(nx, cur, G1, T + 4)] if c < 7 else []), 2 * c, cur, VC); cur = nx
    it([])
    a(f"s_branch {jn}")
    a(f"{jl[1]}:")
    anchor(G2, G2 + 2, 128); scale_cb(); csq(G3, G2); anchor(G1, G1 + 2, 2)
    it([cm_(VA, CBR, G3)]); cur = VA
    it([cm_(VD, VA, G3)])
    for c in range(4):
        nx = oth(cur, VA, VB)
        it([cm_(VC, cur, G2), cm_(nx, cur, G1, T + 4) if c < 3 else csq_(G3, G1, T + 4)], 2 * c, cur, VC); cur = nx
    cur = VD
    for aa in range(4):
        nx = oth(cur, VA, VB)
        it([cm_(VC, cur, G3)] + ([cm_(nx, cur, G2, T + 4)] if aa < 3 else []), 8 + 2 * aa, cur, VC); cur = nx
    it([])
    a(f"s_branch {jn}")
    a(f"{jl[3]}:")
    anchor(G1, G1 + 2, 8, conj=True)
    a(f"v_mov_b32 v{VA}, {f32(32768.0)}", f"v_mov_b32 v{VA+1}, {f32(32768.0)}", f"v_mov_b32 v{VA+2}, 0", f"v_mov_b32 v{VA+3}, 0")
    sc_ = lambda d, x: [f"v_pk_mul_f32 v[{d}:{d+1}], v[{x}:{x+1}], v[{VA}:{VA+1}]", f"v_pk_mul_f32 v[{d+2}:{d+3}], v[{x+2}:{x+3}], v[{VA}:{VA+1}]"]
    it([csq_(G2, G1), sc_(VC, G1)])
    ce, co = VA, VC
    for b in range(8):
        ne, no = oth(ce, VA, VB), oth(co, VC, VD)
        it([] if b == 7 else [sc_(ne, G2) if b == 0 else cm_(ne, ce, G2), cm_(no, co, G2, T + 4)], 2 * b, ce, co); ce, co = ne, no
    it([])
    a(f"ds_write_b8 v15, v{VONE} offset:{FL_G}")
    stamp(a, 3)
    if KOFF: a(f"s_cmp_eq_u32 s{S_G}, 2", "s_cbranch_scc1 KS_G0")
    a("KS_R3:")
    if ENV("S2S", 2):
        a(f"ds_write_b8 v15, v{VONE} offset:{FL_G+4}")
        lds_wait(a, FL_G + 4, 20, "u16", addr=14, sleep=ENV("S2S", 2))
    a(f"s_branch {ex}")
    if KOFF:
        a("KC_SEND:")
        lds_wait(a, FL_NONCE, VNT, "nz", addr=VNA)
        a(f"s_lshl_b32 s{T0_}, s{S_CH}, 12", f"s_lshl_b32 s{T1_}, s{S_ROLE}, 10", f"s_add_u32 s{T0_}, s{T0_}, s{T1_}", f"s_add_u32 s{T0_}, s{T0_}, {hex(WS_KT - 512*4096)}", f"v_add_u32 v24, s{T0_}, v{VLN}")
        a(f"s_mov_b32 s{T1_}, 0xffff", f"v_lshlrev_b32 v25, 16, v{VNT}")
        for r in range(4): a(f"v_cvt_f16_f32 v{20+r}, v{20+r}")
        a(f"s_cmp_lg_u32 s{S_ROLE}, 2", "s_cbranch_scc1 KC_S2")
        a("s_mov_b32 exec_lo, 0", "s_mov_b32 exec_hi, 0xffff0000")
        a(f"v_mov_b32 v20, v{VPR}", f"v_lshrrev_b32 v21, 16, v{VPR}")
        a("s_mov_b64 exec, -1")
        a("KC_S2:")
        for r in range(4): a(f"v_bfi_b32 v{20+r}, s{T1_}, v{20+r}, v{25 if r & 1 else VNT}")
        a(f"global_store_dwordx4 v24, v[20:23], s[{P_WS}:{P_WS+1}] sc1")
        stamp(a, 4)
        a("s_branch KS_G0")
        a("KC_RECV:")
        a(f"s_cmp_eq_u32 s{S_ROLE}, 3", f"s_cbranch_scc1 KS_R3")
        a(f"s_lshl_b32 s{T0_}, s{S_CH}, 12", f"s_lshl_b32 s{T1_}, s{S_ROLE}, 10", f"s_add_u32 s{T0_}, s{T0_}, s{T1_}", f"s_add_u32 s{T0_}, s{T0_}, {hex(WS_KT - 512*4096)}", f"v_add_u32 v24, s{T0_}, v{VLN}")
        lds_wait(a, FL_NONCE, VNT, "nz", addr=VNA, sleep=2)
        a(f"v_lshlrev_b32 v25, 16, v{VNT}")
        stamp(a, 2)
        lds_wait(a, FL_G + {0: 0, 1: 4, 2: 16, 3: 8, 4: 20}[ENV("KTRIG", 3)], 17, "b4", sleep=2)
        lp = newlabel("KP"); l1 = newlabel("KPE")
        if ENV("KTD", 8): a(f"s_sleep {ENV('KTD', 8)}")
        a(f"s_branch {l1}")
        a(f"{lp}:")
        a("s_sleep 2")
        a(f"{l1}:")
        a(f"global_load_dwordx4 v[20:23], v24, s[{P_WS}:{P_WS+1}] {MOD('KMOD')}")
        guard(a)
        a("s_waitcnt vmcnt(0)")
        for r in range(4): a(f"v_xor_b32 v{20+r}, v{25 if r & 1 else VNT}, v{20+r}")
        a("v_or3_b32 v26, v20, v21, v22", "v_or_b32 v26, v26, v23", "v_cmp_lt_u32 vcc, 0xffff, v26", f"s_cbranch_vccnz {lp}")
        stamp(a, 3)
        for r in (0, 2): a(f"v_xor_b32 v{20+r}, v{VNT}, v{20+r}")
        for r in range(4): a(f"ds_write_b16 v{IXR[r]}, v{20+r}")
        a(f"s_cmp_lg_u32 s{S_ROLE}, 2", f"s_cbranch_scc1 {ex}")
        a("v_and_b32 v20, 0xffff, v20", "v_lshl_or_b32 v20, v21, 16, v20", f"v_lshlrev_b32 v21, 16, v{VDSK}")
        a("s_mov_b32 exec_lo, 0", "s_mov_b32 exec_hi, 0x10000")
        a(f"ds_write_b64 v14, v[20:21] offset:{C_PAR}")
        a("s_mov_b64 exec, -1")
        a(f"s_branch {ex}")
    a(f"{jl[2]}:")
    anchor(G2, G2 + 2, 128); scale_cb()
    it([csq_(G1, G2), cm_(VD, CBR, G2, T + 4)]); csq(G3, G1); csq(G3, G3)
    it([cm_(VA, CBR, G3), cm_(VC, VD, G3, T + 4)])
    ce, co = VA, VC
    for r in range(4):
        ne, no = oth(ce, VA, VB), oth(co, VC, VD)
        it([cm_(ne, ce, G1)] + ([cm_(no, co, G1, T + 4)] if r < 3 else []), 2 * r, ce, co); ce, co = ne, no
    it([], 8, ce, None)
    a(f"v_mov_b32 v36, {f32(2048.0*LOG2E)}", f"v_mul_f32 v24, s{SM}, v36", "v_max_f32 v24, 0, v24")
    if EP: a("v_ceil_f32 v24, v24", "v_cvt_i32_f32 v24, v24")
    else: a("v_exp_f32 v24, v24")
    it([])
    a(f"s_sub_u32 s{SIS}, s{SC}, 7", f"s_lshl_b32 s{SIS}, s{SIS}, 23")
    a(f"v_lshlrev_b32 v25, 16, v{VDSK}", f"v_{'ldexp' if EP else 'mul'}_f32 v24, s{SIS}, v24", f"v_mov_b32 v{VPR}, v24")
    a(f"ds_write_b64 v14, v[24:25] offset:{C_PAR}")
    a(f"{jn}:")
    a(f"ds_write_b8 v15, v{VONE} offset:{FL_G}")
    stamp(a, 3); kstamp(a, 2)
    for s in range(8): a(f"ds_read_b128 v[{40+4*s}:{43+4*s}], v{VTL} offset:{64*s}")
    a(f"v_mov_b32 v36, {f32(LOG2E)}", f"v_mul_f32 v36, s{SM}, v36")
    a(f"v_mul_f32 v37, {f32(2048.0)}, v36", "v_max_f32 v37, 0, v37")
    if EP: a("v_ceil_f32 v37, v37")
    a(f"v_add_f32 v37, {f32(23.0)}, v37")
    for r in range(4):
        a(f"v_fma_f32 v{LFR[r]}, v{LFR[r]}, v36, -v37")
    for r in range(4):
        a(f"v_exp_f32 v{LFR[r]}, v{LFR[r]}")
    kstamp(a, 3)
    SP = ENV("SP", 0)
    lsp = newlabel("SP")
    if SP & 2: a(f"{lsp}:", f"ds_read_u8 v17, v14 offset:{FL_G + 3}")
    else: lds_wait(a, FL_G + 3, 17, "u8", addr=14)
    kstamp(a, 4)
    tr = LdsTrack(a); ids = []
    for s in range(8):
        ids.append(tr.issue(f"ds_read_b128 v[{72+4*s}:{75+4*s}], v{VTE} offset:{KG_T[3]+64*s}"))
    if SP & 2:
        guard(a)
        a("s_waitcnt lgkmcnt(8)", "v_cmp_eq_u32 vcc, 0, v17", f"s_cbranch_vccnz {lsp}")
    for s in range(8):
        tr.wait(ids[s])
        c = "0" if s < 2 else f"v[{20+4*(s&1)}:{23+4*(s&1)}]"
        a(f"v_mfma_f32_16x16x32_f16 v[{20+4*(s&1)}:{23+4*(s&1)}], v[{40+4*s}:{43+4*s}], v[{72+4*s}:{75+4*s}], {c}")
    for r in range(4): a(f"v_add_f32 v{20+r}, v{20+r}, v{24+r}")
    for r in range(4): a(f"v_mul_f32 v{20+r}, v{20+r}, v{LFR[r]}")
    kstamp(a, 5)
    if KOFF: a(f"s_cmp_eq_u32 s{S_G}, 2", "s_cbranch_scc1 KC_SEND")
    for r in range(4):
        a(f"v_cvt_f16_f32 v{20+r}, v{20+r}")
        a(f"ds_write_b16 v{IXR[r]}, v{20+r}")
    a(f"{ex}:")
    a(f"ds_write_b8 v15, v{VONE} offset:{FL_G+4}")
    a("v_mov_b32 v28, 0", "v_mov_b32 v29, 0", "v_mov_b32 v30, 0", "v_mov_b32 v31, 0", f"v_mov_b32 v32, s{S_GB}")
    a("s_waitcnt vmcnt(0)")
    kstamp(a, 6)
    lsp = newlabel("SP")
    if SP & 1: a(f"{lsp}:", f"ds_read_b32 v17, v14 offset:{FL_G + 4}")
    else: lds_wait(a, FL_G + 4, 20, "b4", addr=14)
    stamp(a, 4); kstamp(a, 7)
    for e in range(3): a(f"ds_read_u16 v{20+e}, v{I1+e}")
    for e in range(4): a(f"ds_read_u16 v{23+e}, v{I2+e}")
    if SP & 1:
        guard(a)
        a("s_waitcnt lgkmcnt(7)", f"v_cmp_ne_u32 vcc, s{S_ONES}, v17", f"s_cbranch_vccnz {lsp}")
    a("s_mov_b64 exec, 1")
    a(f"ds_write_b128 v32, v[28:31] offset:{R_WS5}", f"ds_write_b128 v32, v[28:31] offset:{R_WS9}", f"ds_write_b128 v32, v[28:31] offset:{R_WS3 + 192*16}")
    a("s_mov_b64 exec, -1")
    a("s_waitcnt lgkmcnt(7)")
    a("v_lshl_or_b32 v28, v21, 16, v20", "v_lshl_or_b32 v29, v22, 16, v21")
    a(f"ds_write_b32 v{D1}, v28 offset:{T_DRE}", f"ds_write_b32 v{D1}, v29 offset:{T_DRO}")
    if DB: a(f"ds_write_b32 v{D1}, v28 offset:{T_DRE - DDL}", f"ds_write_b32 v{D1}, v29 offset:{T_DRO - DDL}")
    a(f"s_waitcnt lgkmcnt({7 if DB else 5})")
    a("v_lshl_or_b32 v30, v24, 16, v23", "v_lshl_or_b32 v31, v26, 16, v25")
    a(f"ds_write_b32 v{D2}, v30", f"ds_write_b32 v{D3}, v31")
    if DB: a(f"ds_write_b32 v{D2}, v30 offset:{DDL}", f"ds_write_b32 v{D3}, v31 offset:{DDL}")
    a(f"ds_write_b8 v15, v{VONE} offset:{FL_G+8}")
    kstamp(a, 8)
    CS = ENV("CS", 2)
    if CS:
        assert DB and SWZ and EP != 2
        a(f"v_lshlrev_b32 v{VDA2}, 3, v3", f"v_sub_u32 v{VDA2}, v{VB_}, v{VDA2}")
        a(f"v_lshrrev_b32 v19, 2, v2", f"v_lshl_add_u32 v19, v19, 2, v3", f"v_and_b32 v18, 3, v2", f"v_mul_u32_u24 v19, s{CSH}, v19", f"v_xor_b32 v19, s{CFL}, v19", "v_lshl_add_u32 v19, v18, 4, v19")
        a(f"v_xor_b32 v{VLN}, s{CXR}, v{VLN}")
    lds_wait(a, FL_G + 8, 20, "b4", addr=14)
    stamp(a, 5)
    PR, FT0, FT1, ACCL, ACCH, ZQ = 16, 18, 19, 20, 24, 28
    VZA, VUA = VDA, VDA2
    FC = ENV("FC", 0); FL_FC = FL_S6 - 16 + 4
    LA = ENV("CLA", 6); RSV = ENV("CRSV", 5); NF = ENV("CNF", 2)
    jl = [newlabel("CV") for _ in range(4)]; zend = newlabel("CVE")
    slow = []; slow2 = []; slow3 = []
    a(f"ds_read_b64 v[{PR}:{PR+1}], v14 offset:{C_PAR}")
    for r in range(1, 4): a(f"s_cmp_eq_u32 s{S_ROLE}, {r}", f"s_cbranch_scc1 {jl[r]}")
    for m in range(4):
        if m: a(f"{jl[m]}:")
        lo, hi = 2 * m, 2 * m + 1
        acc = {lo: ACCL, hi: ACCH}
        ops = []
        if m >= 2:
            for j in (lo, hi): ops.append((j, ("D", 32), ("U", 8 * j - 32)))
        for p in range(max(8 * lo - 16, -7), 8 * hi + 1):
            for j in (lo, hi):
                ks = 8 * j - p
                if 0 <= ks <= 16: ops.append((j, ("D", ks), ("U", p)))
        ncomb0 = len(ops)
        for j in (lo, hi):
            for kind in (3, 5):
                for b in range(6):
                    if 2 <= j - b <= 4: ops.append((j, ("W", kind, b), ("G", kind, j - b)))
            for kind in (7, 9):
                for b in range(2):
                    if j - 2 * b - 4 >= 0 and not FC: ops.append((j, ("W", kind, b), ("G", kind, j - 2 * b - 4)))
        if FC and m == 0:
            for (b, kind) in ((1, 7), (1, 9), (0, 7), (0, 9)):
                for j in (4, 6, 5, 7):
                    if j - 2 * b - 4 >= 0: ops.append((j, ("W", kind, b), ("G", kind, j - 2 * b - 4)))
        nops = len(ops)
        first, last = {}, {}
        for k, (j, A, B) in enumerate(ops):
            for key in (A, B):
                first.setdefault(key, k); last[key] = k
        lastlo = max(k for k, o in enumerate(ops) if o[0] == lo)
        pool = list(range(32, 128, 4))
        reg, lid = {}, {}
        def load(tr, key):
            rg = pool.pop(0); reg[key] = rg
            if (XP & 8 and key[0] == "G") or (XP & 16 and key[0] == "W") or (XP & 32 and key[0] == "U"):
                lid[key] = -100; return
            if key[0] == "D":
                ksv = -2 if key[1] == 32 else key[1]
                o = (16 - ksv) * 16
                if DB:
                    tr.issue(f"ds_read_b64 v[{rg}:{rg+1}], v{VDA} offset:{4*o}")
                    lid[key] = tr.issue(f"ds_read_b64 v[{rg+2}:{rg+3}], v{VDA} offset:{4*o+8}")
                    return
                ad, o = (VDA, o) if o + 3 <= 255 else (VDA2, o - 160)
                tr.issue(f"ds_read2_b32 v[{rg}:{rg+1}], v{ad} offset0:{o} offset1:{o+1}")
                lid[key] = tr.issue(f"ds_read2_b32 v[{rg+2}:{rg+3}], v{ad} offset0:{o+2} offset1:{o+3}")
            elif key[0] == "G":
                _, kind, ix = key
                if kind in (3, 5): o = (4 - ix) * 16 + (64 if kind == 5 else 0); ad = VG8
                else: o = (3 - ix) * 8 + (96 if kind == 9 else 0); ad = VG16
                if DB:
                    tr.issue(f"ds_read_b64 v[{rg}:{rg+1}], v{ad} offset:{4*o}")
                    lid[key] = tr.issue(f"ds_read_b64 v[{rg+2}:{rg+3}], v{ad} offset:{4*o+8}")
                    return
                tr.issue(f"ds_read2_b32 v[{rg}:{rg+1}], v{ad} offset0:{o} offset1:{o+1}")
                lid[key] = tr.issue(f"ds_read2_b32 v[{rg+2}:{rg+3}], v{ad} offset0:{o+2} offset1:{o+3}")
            elif key[0] == "U":
                lid[key] = tr.issue(f"ds_read_b128 v[{rg}:{rg+3}], v{VB_} offset:{64*(key[1]+7)}")
            else:
                _, kind, b = key
                if kind in (3, 5): o = (R_WS3 if kind == 3 else R_WS5) + 512 * b; ad, st = VT8, 64
                else: o = (R_WS7 if kind == 7 else R_WS9) + 1024 * b; ad, st = VT16, 128
                tr.issue(f"ds_read_b64_tr_b16 v[{rg}:{rg+1}], v{ad} offset:{o}")
                lid[key] = tr.issue(f"ds_read_b64_tr_b16 v[{rg+2}:{rg+3}], v{ad} offset:{o+st}")
        keys = sorted(first, key=lambda k_: first[k_])
        tr = LdsTrack(a)
        for key in keys:
            if key[0] == "D": load(tr, key)
        for key in keys:
            if key[0] == "G" and len(pool) > RSV: load(tr, key)
        pend = [k_ for k_ in keys if k_ not in reg]
        if not CS:
            a(f"v_lshlrev_b32 v{FT0}, 3, v3", f"v_sub_u32 v{FT0}, v{VB_}, v{FT0}")
            a(f"v_lshrrev_b32 v{FT1}, 2, v2", f"v_lshl_add_u32 v{FT1}, v{FT1}, 2, v3", f"v_and_b32 v{ZQ}, 3, v2", f"v_lshlrev_b32 v{ZQ}, 4, v{ZQ}")
            if SWZ: a(f"v_mul_u32_u24 v{FT1}, s{CSH}, v{FT1}", f"v_xor_b32 v{FT1}, s{CFL}, v{FT1}")
            else: a(f"v_lshlrev_b32 v{FT1}, s{CSH}, v{FT1}")
            a("s_waitcnt lgkmcnt(0)")
            a(f"v_mov_b32 v{VUA}, v{FT0}", f"v_add_u32 v{VZA}, v{FT1}, v{ZQ}")
            a(f"v_xor_b32 v{VLN}, s{CXR}, v{VLN}")
            if EP == 2: a(f"v_or_b32 v{PR}, 0x3f80, v{PR}")
            lds_wait(a, FL_UF, FT0, "b4")
        else:
            a(f"ds_read_b32 v{FT0}, v{VZ} offset:{FL_UF}")
            sl = newlabel("US"); bk = newlabel("UB")
            if CS == 1:
                a("s_waitcnt lgkmcnt(0)", f"v_cmp_ne_u32 vcc, s{S_ONES}, v{FT0}", f"s_cbranch_vccnz {sl}", f"{bk}:")
                slow3.append((sl, bk, []))
        if CS != 2: a(f"s_setprio {eval(os.environ.get('CPRIO', '[1,1,1,1]'))[m]}")
        stamp(a, 6); cstamp(a, 1)
        if XP & 4: a(f"v_mov_b32 v{FT0}, 0", f"s_cmp_lg_u32 s{S_G}, 0", f"s_cbranch_scc1 {zend}")
        for key in lid: lid[key] = -100
        tr = LdsTrack(a)
        ud = {}
        fill = []
        fill.append(("lds", f"ds_read_b64 v[{ZQ}:{ZQ+1}], v{VUA} offset:{480 + 512*lo}", 2))
        fill.append(("ldsU", f"ds_read_b64 v[{ZQ+2}:{ZQ+3}], v{VUA} offset:{480 + 512*hi}", 2))
        for ti, j in enumerate((lo, hi)):
            fill.append(("alloc", j, 5))
            if ti == 0: fill.append(("waitU", None, 5))
            for e in range(4):
                sel = "op_sel:[1,0,0] " if e & 1 else ""
                fill.append(("f", (lambda j=j, e=e, ti=ti, sel=sel: f"v_fma_mix_f32 v{ud[j]+e}, v{ZQ+2*ti+e//2}, v{PR+1}, 0 {sel}op_sel_hi:[1,0,0]"), 5))
            for e in range(4 if EP < 2 else 0):
                fill.append(("f", (lambda j=j, e=e: f"v_cvt_pk_bf16_f32 v{ud[j]+e}, 0, v{ud[j]+e}"), 5))
        def epi(j, ti):
            y = acc[j]; z = ZQ + 2 * ti; out = []
            if FC and m >= 2:
                for p in (0, 2): out.append(lambda p=p: f"v_pk_add_f32 v[{y+p}:{y+p+1}], v[{y+p}:{y+p+1}], v[{ud[8+ti]+p}:{ud[8+ti]+p+1}]")
            if EP == 2:
                for p in range(4): out.append(lambda p=p: f"v_cvt_pk_bf16_f32 v{y+p}, v{ud[j]+p}, v{y+p}")
                for p in range(4): out.append(lambda p=p: f"v_dot2_f32_bf16 v{y+p}, v{y+p}, v{PR}, 0")
            elif EP == 1:
                for p in range(4): out.append(lambda p=p: f"v_cvt_pk_bf16_f32 v{y+p}, 0, v{y+p}")
                for p in range(4): out.append(lambda p=p: f"v_fma_f32 v{y+p}, v{y+p}, v{PR}, v{ud[j]+p}")
            else:
                for p in range(4): out.append(lambda p=p: f"v_mul_f32 v{y+p}, v{y+p}, v{PR}")
                for p in range(4): out.append(lambda p=p: f"v_cvt_pk_bf16_f32 v{y+p}, 0, v{y+p}")
                for p in range(4): out.append(lambda p=p: f"v_add_f32 v{y+p}, v{y+p}, v{ud[j]+p}")
            for p in range(2): out.append(lambda p=p: f"v_cvt_pk_bf16_f32 v{z+p}, v{y+2*p}, v{y+2*p+1}")
            for p in range(2): out.append(lambda p=p: f"v_min_u32 v{z+p}, -2, v{z+p}")
            return out
        prd = lambda: [f"ds_read_u8 v{FT0}, v14 offset:{FL_FC}"] + [f"ds_read_b128 v[{ud[8+t]}:{ud[8+t]+3}], v{FT1} offset:{R_RED + 1024*(lo+t)}" for t in range(2)]
        if FC and m != 1: fill.append(("f", lambda: f"v_add_u32 v{FT1}, s{S_GB}, v{VLN}", 5))
        if FC and m >= 2:
            e = lastlo - ENV("FCE", 1)
            fill += [("alloc", 8, e), ("alloc", 9, e), ("prd", None, e), ("pchk", None, lastlo + ENV("FCC", 2))]
        for f in epi(lo, 0): fill.append(("f", f, lastlo + 2))
        if FC and m == 0:
            for f in epi(hi, 1): fill.append(("f", f, ncomb0 + 1))
            for i, j in enumerate((4, 6, 5, 7)): fill.append(("pwr", j, nops - 2 + i))
            fill.append(("lds", f"ds_write_b8 v14, v{VONE} offset:{FL_FC}", nops))
        fill.append(("lds", f"ds_read_u8 v{FT0}, v14 offset:{FL_S6 - 16 + m}", nops - (0 if ZX else 4)))
        fill.append(("lds", f"ds_read_b128 v[{ACCL}:{ACCL+3}], v{VLN} offset:{G_BASE + R_RED + 1024*m}", nops - (0 if ZX else 4)))
        uid = [None]
        def do_fill(n, k):
            while n > 0 and fill:
                kind, t, e = fill[0]
                if e > k: return
                if kind == "alloc":
                    if len(pool) < 2: return
                    ud[t] = pool.pop(); fill.pop(0); continue
                fill.pop(0)
                if kind == "f":
                    if XP & 2 and "v_min" not in t(): continue
                    a(t())
                elif kind == "lds": tr.issue(t)
                elif kind == "ldsU": uid[0] = tr.issue(t)
                elif kind == "waitU": tr.wait(uid[0]); continue
                elif kind == "pwr": tr.issue(f"ds_write_b128 v{FT1}, v[{acc[t]}:{acc[t]+3}] offset:{R_RED + 1024*t}")
                elif kind == "prd":
                    for x in prd(): uid[0] = tr.issue(x)
                elif kind == "pchk":
                    tr.wait(uid[0])
                    sl = newlabel("PS"); bk = newlabel("PB")
                    a(f"v_cmp_ne_u32 vcc, 1, v{FT0}", f"s_cbranch_vccnz {sl}", f"{bk}:")
                    slow2.append((sl, bk, prd()))
                n -= 1
        kW = ncomb0 - LA if nops > ncomb0 else None
        wok = [False]
        def issue_loads(k, nmax):
            while pend and pool and nmax > 0:
                key = pend[0]
                if first[key] - k > (LA if key[0] != "G" else LA + 4): return
                if key[0] == "W" and not wok[0]:
                    alt = [x for x in pend if x[0] != "W" and first[x] - k <= LA + 2]
                    if not alt: return
                    key = alt[0]
                pend.remove(key); load(tr, key); nmax -= 1
        if CS: fill.insert(0, ("f", lambda: f"v_mov_b32 v{VZA}, v{FT1}", 0))
        n0 = len(a.lines)
        issue_loads(0, RSV)
        if CS == 2:
            rd = [x for x in a.lines[n0:]]
            a(f"s_waitcnt lgkmcnt({len(rd)})", f"v_cmp_ne_u32 vcc, s{S_ONES}, v{FT0}", f"s_cbranch_vccnz {sl}", f"{bk}:", f"s_setprio {eval(os.environ.get('CPRIO', '[1,1,1,1]'))[m]}")
            if os.environ.get("CGP"):
                g_, pr_ = eval(os.environ["CGP"]); lg = newlabel("CG")
                a(f"s_cmp_lg_u32 s{S_G}, {g_}", f"s_cbranch_scc1 {lg}", f"s_setprio {pr_[m]}", f"{lg}:")
            slow3.append((sl, bk, rd))
        started = set()
        for k, (j, A, B) in enumerate(ops):
            assert A in reg and B in reg, (m, k, A, B)
            if FC and m == 0 and k == ncomb0 - LA - 1:
                for jj in (4, 5, 6, 7): acc[jj] = pool.pop()
            tr.wait(max(lid[A], lid[B]))
            c = f"v[{acc[j]}:{acc[j]+3}]" if j in started else "0"
            started.add(j)
            a(f"v_mfma_f32_16x16x32_f16 v[{acc[j]}:{acc[j]+3}], v[{reg[A]}:{reg[A]+3}], v[{reg[B]}:{reg[B]+3}], {c}")
            for key in (A, B):
                if last[key] == k: pool.append(reg[key])
            if kW is not None and k == kW - 3:
                wfid = tr.issue(f"ds_read_b32 v{FT0}, v14 offset:{FL_G + 12}")
            if k == kW:
                tr.wait(wfid)
                sl = newlabel("WS"); bk = newlabel("WB")
                a(f"v_cmp_ne_u32 vcc, s{S_ONES}, v{FT0}", f"s_cbranch_vccnz {sl}")
                a(f"{bk}:")
                slow.append((sl, bk))
                wok[0] = True
                cstamp(a, 3)
            issue_loads(k + 1, 2)
            do_fill(NF, k)
            if k == ncomb0 // 2: cstamp(a, 2)
            if k == ncomb0 - 1: cstamp(a, 4)
        cstamp(a, 5)
        do_fill(1000, 1000)
        assert not fill and not pend
        stamp(a, 7)
        if not (FC and m == 0):
            for f in epi(hi, 1): a(f())
        if m < 3: a(f"s_branch {zend}")
    a(f"{zend}:")
    cstamp(a, 6)
    gA = newlabel("ZA"); gC = newlabel("ZC"); zs = newlabel("ZS"); zb = newlabel("ZB"); zc = newlabel("ZCB"); zd = newlabel("ZD")
    a("s_waitcnt lgkmcnt(0)")
    a(f"s_cmp_lg_u32 s{S_G}, 1", f"s_cbranch_scc1 {gA}")
    a(f"v_cmp_ne_u32 vcc, 1, v{FT0}", f"s_cbranch_vccnz {zs}")
    a(f"{zb}:")
    a(f"s_mov_b64 exec, s[{CM}:{CM+1}]")
    for k in range(4): a(f"v_swap_b32 v{ZQ+k}, v{ACCL+k}")
    a("s_mov_b64 exec, -1")
    cstamp(a, 8)
    a(f"buffer_store_dwordx4 v[{ZQ}:{ZQ+3}], v{VZA}, s[{R0}:{R0+3}], s{CZ1} offen sc1")
    a(f"buffer_store_dwordx4 v[{ACCL}:{ACCL+3}], v{VZA}, s[{R0}:{R0+3}], s{CZ0} offen sc1")
    if ENV("ZG2", 0) >= 2 or ENV("ZT", 0) or ZM or BT == 4 or ENV("GDI", 0): a(f"ds_write_b8 v15, v{VONE} offset:{FL_ZISS - 16}")
    if ZM:
        a(f"s_cmp_lg_u32 s{S_ROLE}, 3", f"s_cbranch_scc1 {zd}")
        a(f"ds_read_b32 v32, v{VZ} offset:{FL_NONCE}", f"s_lshl_b32 s{T0_}, s{S_B2}, 7", f"s_add_u32 s{T0_}, s{T0_}, {hex(WS_MARK)}", f"v_mov_b32 v33, s{T0_}")
        a("s_mov_b64 exec, 1", "s_waitcnt lgkmcnt(0)")
        a(f"global_store_dword v33, v32, s[{P_WS}:{P_WS+1}] sc1")
        a("s_mov_b64 exec, -1")
    a(f"s_branch {zd}")
    for (sl, bk) in slow:
        a(f"{sl}:")
        lds_wait(a, FL_G + 12, FT0, "b4", addr=14)
        a(f"s_branch {bk}")
    for (sl, bk, rd) in slow3:
        a(f"{sl}:")
        if ENV("UFP", 0) != 2: a(f"s_setprio {ENV('UFP', 0)}")
        if ENV("UFN", 1): lds_wait(a, FL_UF, FT0, "nz", sleep=ENV("UFN", 1))
        lds_wait(a, FL_UF, FT0, "b4", sleep=ENV("UFS", 0))
        for x in rd: a(x)
        a(f"s_branch {bk}")
    for (sl, bk, rd) in slow2:
        a(f"{sl}:")
        a(*rd)
        guard(a)
        a("s_waitcnt lgkmcnt(0)", f"v_cmp_ne_u32 vcc, 1, v{FT0}", f"s_cbranch_vccnz {sl}", f"s_branch {bk}")
    a(f"{zs}:")
    a(f"v_mov_b32 v{FT1}, s{S_ROLE}")
    l = newlabel("ZW")
    if ZX: a(f"v_lshl_add_u32 v{PR}, v{FT1}, 10, v{VLN}")
    a(f"{l}:")
    a(f"ds_read_u8 v{FT0}, v{FT1} offset:{FL_S6}")
    if ZX: a(f"ds_read_b128 v[{ACCL}:{ACCL+3}], v{PR} offset:{G_BASE + R_RED}")
    guard(a)
    a("s_waitcnt lgkmcnt(0)")
    a(f"v_cmp_ne_u32 vcc, 1, v{FT0}", f"s_cbranch_vccnz {l}")
    if not ZX:
        a(f"v_lshl_add_u32 v{FT1}, v{FT1}, 10, v{VLN}")
        a(f"ds_read_b128 v[{ACCL}:{ACCL+3}], v{FT1} offset:{G_BASE + R_RED}")
        a("s_waitcnt lgkmcnt(0)")
    a(f"s_branch {zb}")
    a(f"{gA}:")
    if FLD:
        a(f"v_cmp_eq_u32 vcc, 1, v{FT0}", "s_cbranch_vccnz KS_CLK")
        lds_wait(a, FL_S6 - 16, FT0, "b4")
        a("KS_CLK:")
    a(f"s_cmp_lg_u32 s{S_G}, 0", f"s_cbranch_scc1 {gC}")
    a(f"v_mov_b32 v{FT1}, s{S_ROLE}", f"v_lshl_add_u32 v{FT0}, v{FT1}, 10, v{VLN}")
    a(f"ds_write_b128 v{FT0}, v[{ZQ}:{ZQ+3}] offset:{G_BASE + R_RED}")
    a(f"ds_write_b8 v{FT1}, v{VONE} offset:{FL_S6}")
    cstamp(a, 8)
    a(f"s_branch {zd}")
    a(f"{gC}:")
    cstamp(a, 8)
    a(f"buffer_store_dwordx4 v[{ZQ}:{ZQ+3}], v{VZA}, s[{R0}:{R0+3}], s{CZ0} offen sc1")
    a(f"{zd}:")
    stamp(a, 8)
    if DBG:
        a(f"s_mul_i32 s{T0_}, s{S_ROLE}, 1280", f"s_add_u32 s{T1_}, s{T0_}, s{S_GB}", f"v_lshl_add_u32 v20, v1, 2, s{T1_}")
        a(f"s_mul_i32 s{T1_}, s{S_CH}, 5376", f"s_add_u32 s{T1_}, s{T1_}, s{T0_}", f"s_add_u32 s{T1_}, s{T1_}, {hex(WS_DBG)}", f"v_lshl_add_u32 v21, v1, 2, s{T1_}")
        for k in range(5 + 1):
            a(f"ds_read_b32 v22, v20 offset:{R2 + 256*k}", "s_waitcnt lgkmcnt(0)", f"global_store_dword v21, v22, s[{P_WS}:{P_WS+1}] offset:{256*k}")
        a(f"ds_read_b32 v22, v14 offset:{C_PAR}", f"s_lshl_b32 s{T1_}, s{S_CH}, 2", f"s_add_u32 s{T1_}, s{T1_}, {hex(WS_DBG + 0x300000)}", f"v_mov_b32 v21, s{T1_}")
        a("s_waitcnt lgkmcnt(0)", f"global_store_dword v21, v22, s[{P_WS}:{P_WS+1}]")
    a(f"s_lshl_b32 s{T0_}, s{S_G}, 2", f"s_add_u32 s{T0_}, s{T0_}, s{S_ROLE}", f"v_mov_b32 v8, s{T0_}")
    a("s_waitcnt vmcnt(0)")
    a(f"ds_write_b8 v8, v{VONE} offset:{FL_ZDONE}")


def gen_wjobs(a):
    WA, WD = 10, 11
    end = newlabel("WJE"); w1 = newlabel("WJ1"); w2 = newlabel("WJ2")
    a(f"s_cmp_eq_u32 s{S_WAVE}, 2", f"s_cbranch_scc1 {w2}")
    if XP & 1: a(f"s_branch {w2}")
    a(f"s_add_u32 s{T0_}, s{S_WAVE}, 1", f"s_lshr_b32 s{T0_}, s{T0_}, 2", f"s_cmp_eq_u32 s{S_WAVE}, 1", f"s_cselect_b32 s{T0_}, 2, s{T0_}", f"s_lshl_b32 s{T0_}, s{T0_}, 10")
    a(f"v_lshl_add_u32 v{WA}, v1, 4, s{T0_}", f"v_add_u32 v{WD}, {G_BASE}, v{WA}")
    lds_wait(a, FL_UF, 12, "b4")
    a(f"s_setprio {ENV('WPRIO', 3)}")
    for g in range(3):
        E = 20 + 12 * g; o = C_U + U_SIZE * g + 2 * (240 - 16)
        a(f"ds_read_b128 v[{E}:{E+3}], v{WA} offset:{o}", f"ds_read_b128 v[{E+4}:{E+7}], v{WA} offset:{o+16}", f"ds_read_b64 v[{E+8}:{E+9}], v{WA} offset:{o+32}")
    a(f"s_cmp_eq_u32 s{S_WAVE}, 1", f"s_cbranch_scc1 {w1}")
    for full in (1, 0):
        if not full: a(f"{w1}:")
        for g in range(3):
            if g == 2: a(f"s_cmp_lt_u32 s{S_I}, 24", f"s_cbranch_scc1 {end}")
            E = lambda i: 20 + 12 * g + i
            O = lambda i: 56 + i
            T = lambda i: 65 + i
            Q = lambda i: 72 + i
            X = lambda i: 79 + i
            Y = lambda i: 85 + i
            W7, W9 = 92, 96
            a(f"ds_read_b32 v12, v{VZ} offset:{FL_G + 16*g + 4}")
            if g == 0: a("s_waitcnt lgkmcnt(7)")
            n = 8 if full else 7
            for i in range(1, n + 1): a(f"v_alignbit_b32 v{O(i)}, v{E(i+1)}, v{E(i)}, 16")
            for i in range(1, n + 1): a(f"v_pk_add_f16 v{T(i)}, v{O(i)}, v{E(i+1)}")
            for i in range(1, 5): a(f"v_pk_add_f16 v{X(i)}, v{T(i)}, v{O(i+1)}")
            for i in (range(2, 8) if full else range(3, 7)): a(f"v_pk_add_f16 v{Q(i)}, v{T(i)}, v{T(i+1)}")
            ok = newlabel("WJK")
            a("s_waitcnt lgkmcnt(0)")
            a(f"v_cmp_eq_u32 vcc, s{S_ONES}, v12", f"s_cbranch_vccnz {ok}")
            lds_wait(a, FL_G + 16 * g + 4, 12, "b4", sleep=1)
            a(f"{ok}:")
            off = G_SIZE * (g & 1)
            if g == 2: a(f"v_add_u32 v{WD}, {2*G_SIZE}, v{WD}")
            a(f"ds_write_b128 v{WD}, v[{X(1)}:{X(4)}] offset:{off + R_WS3}")
            for i in (range(2, 7) if full else range(3, 7)): a(f"v_pk_add_f16 v{Y(i)}, v{E(i)}, v{Q(i)}")
            a(f"ds_write_b128 v{WD}, v[{Y(3)}:{Y(6)}] offset:{off + R_WS5 + 16}")
            if full:
                for i in range(5, 8): a(f"v_pk_add_f16 v{X(i)}, v{T(i)}, v{O(i+1)}")
                for k in range(4): a(f"v_pk_add_f16 v{W7+k}, v{Q(2+k)}, v{X(4+k)}")
                a(f"ds_write_b128 v{WD}, v[{W7}:{W7+3}] offset:{off + R_WS7}")
                for k in range(4): a(f"v_pk_add_f16 v{W9+k}, v{Y(2+k)}, v{Q(4+k)}")
                a(f"ds_write_b128 v{WD}, v[{W9}:{W9+3}] offset:{off + R_WS9 + 16}")
            a(f"ds_write_b8 v116, v{VONE} offset:{FL_G + 16*g + 12}")
        a(f"s_branch {end}")
    a(f"{w2}:")
    for g in range(3): a(f"ds_write_b8 v116, v{VONE} offset:{FL_G + 16*g + 12}")
    def flag_check(mid=None):
        a("s_setprio 0")
        for d in range(4): a(f"v_mov_b32_dpp v{32+d}, v58 quad_perm:[{d},{d},{d},{d}] {DPPM} ; nodst")
        a("v_lshlrev_b32 v12, 6, v1", f"v_add_u32 v12, {hex(WS_FLAG1 + 2048)}, v12", f"v_mov_b32 v13, s{S_ONES}")
        if ENV("FLDD", 0): a(f"s_sleep {ENV('FLDD', 0)}")
        lp = newlabel("FP"); l1 = newlabel("FPE")
        ld = (f"global_load_dwordx4 v[20:23], v12, s[{P_WS}:{P_WS+1}] offset:-2048 sc1", f"global_load_dwordx4 v[24:27], v12, s[{P_WS}:{P_WS+1}] offset:2048 sc1")
        if mid:
            a(*ld)
            a(f"s_waitcnt vmcnt({mid()})")
        a(f"s_branch {l1}", f"{lp}:", "s_sleep 2")
        if not mid: a(f"{l1}:")
        a(*ld)
        guard(a)
        a("s_waitcnt vmcnt(0)")
        if mid: a(f"{l1}:")
        for k in range(8): a(f"v_xor_b32 v{20+k}, v{32+(k&3)}, v{20+k}")
        a("v_or3_b32 v20, v20, v21, v22", "v_or3_b32 v23, v23, v24, v25", "v_or3_b32 v20, v20, v26, v27", "v_or_b32 v20, v20, v23", "v_cmp_ne_u32 vcc, 0, v20", f"s_cbranch_vccnz {lp}")
        a(f"ds_write2_b32 v{VZ}, v13, v13 offset0:{(FL_S6 - 16)//4} offset1:{(FL_S6 + 16)//4}")
    def pf2_mid():
        W2 = ENV("PF2W", 14)
        a(f"s_sub_u32 s{T2_}, s{S_FI}, {ENV('PF2B', 18)}", f"s_and_b32 s{T2_}, s{T2_}, 31")
        pf_lane(a, 100, 101)
        pf_gu_setup(a, T2_)
        a(f"s_cmp_ge_u32 s{T2_}, {W2}", f"s_cselect_b32 s{R2_+2}, 0, s{R2_+2}")
        if ENV("PF2U", 1): lds_wait(a, FL_UF, 102, "b4", sleep=1)
        k = 0
        while PF1 + k * W2 < PF2:
            if PF1 + (k + 1) * W2 > PF2: a(f"s_cmp_ge_u32 s{T2_}, {PF2 - PF1 - k*W2}", f"s_cselect_b32 s{R2_+2}, 0, s{R2_+2}")
            a(f"s_add_u32 s{T4_}, s{T3_}, {(PF1 + k*W2)//2*7*9216}")
            pf_ld(a, 102, 100, R2_)
            k += 1
        return 2 * k
    if FLD == 2:
        flag_check(pf2_mid)
        a(f"s_branch {end}")
    if FLD == 1: flag_check()
    if PB and 1 <= PCT <= 3:
        a(f"s_cmp_ge_u32 s{S_FI}, 18", "s_cbranch_scc1 KS_PCL")
        srd(a, R2_, P_WS, PART_BYTES, WS_PART)
        a(f"s_mul_i32 s{T2_}, s{S_BLK}, {PROW}", "v_lshlrev_b32 v100, 4, v1")
        for d in range(4): a(f"v_mov_b32 v{104+d}, -1")
        if PCT == 2: lds_wait(a, FL_UF, 12, "b4", sleep=1)
        if PCT == 3: lds_wait(a, FL_G + 16 + 12, 12, "b4", sleep=1)
        if ENV("PCD", 0): a(f"s_sleep {ENV('PCD', 0)}")
        for k in range(9):
            if k in (4, 8): a(f"s_add_u32 s{T2_}, s{T2_}, 4096")
            a(f"buffer_store_dwordx4 v[104:107], v100, s[{R2_}:{R2_+3}], s{T2_} offen offset:{1024*(k&3)} sc1")
        a(f"s_branch {end}")
        a("KS_PCL:")
    if PF2 > PF1 or PFD:
        W2 = ENV("PF2W", 14)
        a(f"s_sub_u32 s{T2_}, s{S_FI}, {ENV('PF2B', 18)}", f"s_and_b32 s{T2_}, s{T2_}, 31", f"s_cmp_ge_u32 s{T2_}, {W2}", f"s_cbranch_scc1 {end}")
        pf_lane(a, 100, 101)
        lds_wait(a, FL_UF, 12, "b4", sleep=1)
        if PF2 > PF1:
            pf_gu(a, 100, T2_, W2, PF1, PF2, 102, "KS_PF2D")
            a("KS_PF2D:")
        if PFD:
            a(f"s_sub_u32 s{T2_}, {W2-1}, s{T2_}")
            pf_down(a, T2_, W2, 0, PFD, 100, 120, end)
    a(f"{end}:")

def gen(a):
    label = NAME + "_kernel"
    a(f".globl {label}", ".p2align 8", f".type {label},@function", f"{label}:")
    a("s_cmp_ge_u32 s2, 256", "s_cbranch_scc1 KS_END")
    stamp_begin(a)
    a("s_load_dwordx16 s[4:19], s[0:1], 0", "s_load_dwordx16 s[20:35], s[0:1], 64", f"s_load_dwordx2 s[{P_WS}:{P_WS+1}], s[0:1], 128")
    a(f"v_readfirstlane_b32 s{S_WAVE}, v0", f"s_lshr_b32 s{S_WAVE}, s{S_WAVE}, 6")
    a(f"s_and_b32 s{S_XC}, s2, 7", f"s_lshr_b32 s{S_I}, s2, 3")
    if ENV("CPF", 1):
        a(f"s_cmp_lg_u32 s{S_WAVE}, {ENV('CPFW', 0)}", "s_cbranch_scc1 KS_CPE")
        cm = ENV("CPFM", 0)
        if cm == 1: a(f"s_sub_u32 s{T0_}, s{S_I}, 8", f"s_cmp_lt_u32 s{T0_}, 16", "s_cbranch_scc1 KS_CPE")
        if cm == 2: a(f"s_cmp_lt_u32 s{S_I}, 24", "s_cbranch_scc1 KS_CPE")
        if cm == 3: a(f"s_cmp_ge_u32 s{S_I}, 8", "s_cbranch_scc1 KS_CPE")
        if cm == 4: a(f"s_cmp_ge_u32 s{S_I}, 4", "s_cbranch_scc1 KS_CPE")
        if cm == 5: a(f"s_cmp_lt_u32 s{S_I}, 28", "s_cbranch_scc1 KS_CPE")
        a("s_getpc_b64 s[42:43]")
        a("KS_PC:")
        a(f"s_and_b32 s{T0_}, s{S_I}, 7", f"s_mul_i32 s{T0_}, s{T0_}, 4608", "v_and_b32 v126, 63, v0", f"v_lshl_add_u32 v126, v126, 7, s{T0_}", "v_min_u32 v126, KS_END-KS_PC, v126")
        a(f"global_load_dword v127, v126, s[42:43] {MOD('CPFMOD', '')}")
        a("KS_CPE:")
    if ENV("REMAP", 1):
        a(f"s_add_u32 s{T0_}, s{S_WAVE}, 8", f"s_sub_u32 s{T1_}, s{S_WAVE}, 4", f"s_cmp_lt_u32 s{S_WAVE}, 8", f"s_cselect_b32 s{T0_}, s{T0_}, s{T1_}")
        a(f"s_cmp_lt_u32 s{S_WAVE}, 4", f"s_cselect_b32 s{S_WAVE}, s{S_WAVE}, s{T0_}")
    a("v_and_b32 v1, 63, v0", "v_and_b32 v2, 15, v1", "v_lshrrev_b32 v3, 4, v1", f"v_mov_b32 v{VZ}, 0", f"v_mov_b32 v{VONE}, 1")
    a(f"s_mov_b32 s{S_GUARD}, {GUARD}", f"s_mov_b32 s{S_ONES}, 0x01010101")
    a(f"s_lshl_b32 s{S_B2}, s{S_XC}, 5", f"s_add_u32 s{S_B2}, s{S_B2}, s{S_I}")
    if RM: a(f"s_add_u32 s{T0_}, s{S_I}, 16", f"s_sub_u32 s{S_FI}, s{S_I}, 8", f"s_cselect_b32 s{S_FI}, s{T0_}, s{S_FI}", f"s_cmp_ge_u32 s{S_I}, 24", f"s_cselect_b32 s{S_FI}, s{S_I}, s{S_FI}")
    a(f"s_mul_i32 s{S_BLK}, s{S_XC}, 18", f"s_add_u32 s{S_BLK}, s{S_BLK}, s{S_FI}")
    a(f"s_cmp_lt_u32 s{S_WAVE}, 4", "s_cbranch_scc1 KS_L")
    a(f"s_cmp_ge_u32 s{S_WAVE}, 12", "s_cbranch_scc1 KS_X")
    a("s_setprio 2")
    a(f"s_lshr_b32 s{S_G}, s{S_WAVE}, 2", f"s_sub_u32 s{S_G}, s{S_G}, 1")
    a(f"s_mul_i32 s{S_ROLE}, s{S_G}, 3", f"s_xor_b32 s{S_ROLE}, s{S_ROLE}, s{S_WAVE}", f"s_and_b32 s{S_ROLE}, s{S_ROLE}, 3")
    a(f"s_lshl_b32 s{S_CH}, s{S_B2}, 1", f"s_add_u32 s{S_CH}, s{S_CH}, s{S_G}")
    a(f"s_lshl_b32 s{T0_}, s{S_ROLE}, 11", f"s_add_u32 s{T0_}, s{T0_}, {C_STG}", f"v_lshl_add_u32 v28, v1, 3, s{T0_}")
    pre_ixlf(a)
    a("KS_GRP:")
    gen_group(a)
    if ZM:
        a(f"s_cmp_lg_u32 s{S_WAVE}, 4", "s_cbranch_scc1 KS_K1")
        a("s_setprio 0", f"ds_read_b32 v7, v{VZ} offset:{FL_NONCE}")
        a(f"s_add_u32 s{T0_}, s{S_I}, {ENV('ZMO', 1)}", f"v_lshl_add_u32 v6, v1, 2, s{T0_}", "v_and_b32 v6, 31, v6", f"s_lshl_b32 s{T0_}, s{S_XC}, 12", f"s_add_u32 s{T0_}, s{T0_}, {hex(WS_MARK)}", f"v_lshl_add_u32 v6, v6, 7, s{T0_}")
        a("s_mov_b64 exec, 0xff")
        a("KS_ZM:")
        a(f"s_sleep {ENV('ZMS', 2)}")
        a(f"global_load_dword v8, v6, s[{P_WS}:{P_WS+1}] sc1")
        guard(a)
        a("s_waitcnt vmcnt(0) lgkmcnt(0)")
        a("v_cmp_eq_u32 vcc, v7, v8", f"s_bcnt1_i32_b64 s{T0_}, vcc", f"s_cmp_lt_u32 s{T0_}, {ZM}", "s_cbranch_scc1 KS_ZM")
        stamp2(a, 4)
        if ENV("ZMD", 0): a(f"s_sleep {ENV('ZMD', 0)}")
        a("s_mov_b64 exec, -1")
        a(f"ds_write_b32 v{VZ}, v{VONE} offset:{FL_KACK}")
    if KD: a("s_branch KS_K1")
    a(f"s_cmp_lg_u32 s{S_WAVE}, 4", "s_cbranch_scc1 KS_K1")
    a("s_setprio 0")
    srd(a, R3, P_WS, 16384, WS_KEYS)
    a("v_and_b32 v6, 1, v1", "v_lshlrev_b32 v6, 4, v6", f"s_lshl_b32 s{T0_}, s{S_B2}, 5")
    lds_wait(a, FL_ZF, 8, "b4", sleep=1)
    a("s_mov_b64 exec, 3")
    a(f"s_setprio {ENV('KSPRIO', 1)}")
    a("KS_K0:")
    a(f"ds_read_b128 v[8:11], v6 offset:{C_KEY}")
    guard(a)
    a("s_waitcnt lgkmcnt(0)")
    a("v_min3_u32 v12, v8, v9, v10", "v_min_u32 v12, v12, v11", "v_cmp_eq_u32 vcc, 0, v12", "s_cbranch_vccnz KS_K0")
    a(f"buffer_store_dwordx4 v[8:11], v6, s[{R3}:{R3+3}], s{T0_} offen sc1")
    a("s_mov_b64 exec, -1")
    stamp2(a, 4)
    a("s_waitcnt vmcnt(0)")
    a(f"ds_write_b32 v{VZ}, v{VONE} offset:{FL_KACK}")
    a("KS_K1:")
    a(f"s_cmp_lt_u32 s{S_FI}, 18", "s_cbranch_scc1 KS_T")
    a("s_waitcnt lgkmcnt(0)")
    endwave(a)
    a("KS_X:")
    a(f"s_cmp_lt_u32 s{S_I}, 24", "s_cbranch_scc1 KS_X2")
    a(f"s_setprio {ENV('KCPRIO', 2)}")
    CR = os.environ.get("CR")
    if CR: a(f"s_lshl_b32 s{T0_}, s{S_WAVE}, 2", f"s_lshr_b32 s{S_ROLE}, 0x{CR}0000, s{T0_}", "s_branch KS_XD")
    a("KS_XC:")
    a(f"s_add_u32 s{S_ROLE}, s{S_WAVE}, 3")
    a("KS_XD:")
    a(f"s_mov_b32 s{S_G}, 2", f"s_and_b32 s{S_ROLE}, s{S_ROLE}, 3")
    a(f"s_lshl_b32 s{S_CH}, s{S_XC}, 3", f"s_and_b32 s{T0_}, s{S_I}, 7", f"s_add_u32 s{S_CH}, s{S_CH}, s{T0_}", f"s_add_u32 s{S_CH}, s{S_CH}, 512")
    a(f"s_lshl_b32 s{T0_}, s{S_ROLE}, 11", f"s_add_u32 s{T0_}, s{T0_}, {C_STG}", f"v_lshl_add_u32 v28, v1, 3, s{T0_}")
    a("s_branch KS_GRP")
    a("KS_X2:")
    a(f"s_cmp_lt_u32 s{S_I}, 8", "s_cbranch_scc1 KS_X3")
    a(f"s_sub_u32 s{T5_}, s{S_WAVE}, 8")
    a("s_branch KS_LN1")
    a("KS_X3:")
    a(f"s_lshl_b32 s{T0_}, s2, 4", f"s_add_u32 s{T0_}, s{T0_}, s{S_WAVE}", f"s_cmp_lg_u32 s{T0_}, {16*ENV('NPUB', 2) + 12}", "s_cbranch_scc1 KS_X3B")
    a("s_setprio 3")
    a(f"s_memrealtime s[{T0_}:{T1_}]")
    a("v_and_b32 v6, 3, v1", "v_lshlrev_b32 v7, 2, v6", "v_min_u32 v6, 2, v6", "v_lshlrev_b32 v6, 2, v6", "v_cmp_eq_u32 vcc, 3, v1")
    a("s_waitcnt lgkmcnt(0)")
    a(f"v_mov_b32 v8, s{T0_}", f"v_mov_b32 v9, s{T1_}", "v_alignbit_b32 v8, v8, v8, v6", f"v_cndmask_b32 v9, v{VZ}, v9, vcc", "v_xor_b32 v8, v8, v9")
    a("v_and_b32 v9, 0xf0000fff, v8", "v_and_b32 v10, 0xfff000, v8", "v_lshl_or_b32 v9, v10, 4, v9", "v_lshrrev_b32 v10, 12, v8", "v_and_b32 v10, 0xf000, v10")
    a("v_or3_b32 v9, v9, v10, v9", "v_or_b32 v9, 0x80000000, v9")
    a("s_mov_b64 exec, 15")
    a(f"global_store_dword v7, v9, s[{P_DBG}:{P_DBG+1}] sc1")
    if SPIN: a(f"v_mov_b32 v8, s{T0_}", f"global_store_dword v7, v8, s[{P_DBG}:{P_DBG+1}] offset:64 sc1")
    a("s_mov_b64 exec, -1")
    a("s_setprio 0")
    a("KS_X3B:")
    if KOFF:
        a(f"s_setprio {ENV('KPPRIO', 3)}")
        a("s_branch KS_XC")
    a("s_waitcnt lgkmcnt(0)")
    a("s_barrier")
    a("s_branch KS_G")
    a("KS_X4:")
    if LNV: a("s_setprio 0")
    a(f"s_cmp_lt_u32 s{S_FI}, 18", "s_cbranch_scc1 KS_GN" if LNV else "s_cbranch_scc1 KS_G")
    a("KS_X5:")
    if XPF and NL2 and RM != 2:
        pf_lane(a, 46, 47)
        a(f"s_mul_i32 s{T2_}, s{S_WAVE}, 6", f"s_add_u32 s{T2_}, s{T2_}, s{S_FI}", f"s_sub_u32 s{T2_}, s{T2_}, {18 + 72}")
        if not RM: lds_wait(a, {0: FL_UTOK, 1: FL_UISS, 2: FL_UF}[ENV("XUW", 0)], 10, "b4", sleep=2)
        else:
            a("s_waitcnt vmcnt(0)")
            lds_wait(a, FL_G + 36, 10, "b4", sleep=2)
            if ENV("RMD", 0): a(f"s_sleep {ENV('RMD', 0)}")
        pf_gu(a, 46, T2_, 24, PFA + 10 * NLL, PF0, 47, "KS_XPE")
        a("KS_XPE:")
    a("s_waitcnt vmcnt(0) lgkmcnt(0)")
    endwave(a)
    a("KS_L:")
    a("v_lshlrev_b32 v6, 2, v0", f"ds_write_b32 v6, v{VZ}")
    a("v_mov_b32 v8, 0", "v_mov_b32 v9, 0", f"s_min_u32 s{T0_}, s{S_WAVE}, 2", f"s_mul_i32 s{T0_}, s{T0_}, {U_SIZE}", "v_min_u32 v6, 59, v1", f"v_lshl_add_u32 v6, v6, 3, s{T0_}")
    a(f"ds_write_b64 v6, v[8:9] offset:{C_U}")
    a(f"s_mov_b32 s{T5_}, s{S_WAVE}")
    a(f"s_sub_u32 s{T0_}, s{S_I}, 8", f"s_cmp_lt_u32 s{T0_}, 16", "s_cbranch_scc0 KS_L0")
    a("KS_LN1:")
    a("s_setprio 3")
    gen_ln1v(a) if LNV else gen_ln1(a)
    if (NLL or NL2) and not RM and not XPF:
        if not NL: pf_lane(a, 46, 47)
        a(f"s_cmp_ge_u32 s{S_FI}, 18", "s_cbranch_scc1 KS_LL2")
        if NLL:
            a(f"s_mul_i32 s{T2_}, s{S_WAVE}, 10", f"s_add_u32 s{T2_}, s{T2_}, s{S_I}", f"s_sub_u32 s{T2_}, s{T2_}, 8")
            pf_gu(a, 46, T2_, 40, PFA, PFA + 10 * NLL, 47, "KS_LLE")
        a("s_branch KS_LLE")
        a("KS_LL2:")
        if NL2:
            a(f"s_mul_i32 s{T2_}, s{S_WAVE}, 6", f"s_add_u32 s{T2_}, s{T2_}, s{S_I}", f"s_sub_u32 s{T2_}, s{T2_}, 18")
            pf_gu(a, 46, T2_, 24, PFA + 10 * NLL, PF0, 47, "KS_LLE")
        a("KS_LLE:")
    a(f"s_mov_b32 s{S_G}, 1")
    a("s_branch KS_L2B")
    a("KS_L0:")
    a(f"s_and_b32 s{T0_}, s{S_I}, 15", f"s_lshl_b32 s{T1_}, s{S_XC}, 4", f"s_add_u32 s{T0_}, s{T0_}, s{T1_}")
    a("v_and_b32 v59, 3, v1", "v_lshlrev_b32 v59, 2, v59")
    a(f"s_lshl_b32 s{T4_}, s{T0_}, 6", f"s_add_u32 s{T1_}, s{T4_}, {hex(WS_FLAG1)}", f"v_add_u32 v7, s{T1_}, v59")
    a(f"s_mul_i32 s{T1_}, s{T0_}, {CLR_WG}", f"s_add_u32 s{T1_}, s{T1_}, {hex(WS_CLR)}")
    a("v_lshlrev_b32 v6, 4, v0")
    a("v_mov_b32 v12, -1", "v_mov_b32 v13, -1", "v_mov_b32 v14, -1", "v_mov_b32 v15, -1")
    a("s_setprio 3")
    pf_lane(a, 16, 17)
    a("s_waitcnt lgkmcnt(0)")
    a(f"s_add_u32 s{R1}, s{P_WS}, s{T1_}", f"s_addc_u32 s{R1+1}, s{P_WS+1}, 0", f"s_mov_b32 s{R1+2}, {CLR_WG}", f"s_mov_b32 s{R1+3}, 0x20000")
    if ENV("UPRE", 0):
        srd(a, R0, P_WS, 0xC00000)
        a(f"s_lshl_b32 s{T2_}, s{S_WAVE}, 3", f"s_xor_b32 s{T2_}, s{T2_}, s{S_B2}", f"s_lshl_b32 s{T2_}, s{T2_}, 13")
        a(f"s_and_b32 s{T3_}, s{S_I}, 3", f"s_lshl_b32 s{T0_}, s{S_XC}, 2", f"s_add_u32 s{T3_}, s{T3_}, s{T0_}", f"s_lshl_b32 s{T3_}, s{T3_}, 13")
        a(f"s_add_u32 s{T0_}, s{T3_}, {256*8192}", f"s_cmp_eq_u32 s{S_WAVE}, 2", f"s_cselect_b32 s{T2_}, s{T0_}, s{T2_}")
        a(f"s_add_u32 s{T0_}, s{T3_}, {hex(WS_KT)}", f"s_cmp_eq_u32 s{S_WAVE}, 3", f"s_cselect_b32 s{T2_}, s{T0_}, s{T2_}")
        a(f"s_lshl_b32 s{T0_}, s{S_I}, 2", f"s_add_u32 s{T0_}, s{T0_}, s{S_WAVE}", f"s_and_b32 s{T0_}, s{T0_}, 0x72", f"s_cmp_gt_u32 s{T0_}, 0x62", f"s_cselect_b32 s{T0_}, 0, s{T0_}")
        a(f"s_bitcmp1_b32 s{T0_}, 1", "s_cbranch_scc1 KS_UPE")
        a("v_lshlrev_b32 v125, 7, v1", f"buffer_load_dword v124, v125, s[{R0}:{R0+3}], s{T2_} offen {MOD('UPMOD')}")
        a("KS_UPE:")
    a("s_barrier")
    if NE:
        a(f"s_and_b32 s{T2_}, s{S_I}, 15", f"s_lshl_b32 s{T3_}, s{S_WAVE}, 4", f"s_add_u32 s{T2_}, s{T2_}, s{T3_}")
        pf_gu(a, 16, T2_, 64, PFB + 16 * NL, PFA, 18, "KS_L1E")
        a("KS_L1E:")
    TW = eval(os.environ.get("TW", "[]"))
    for (w, base, off, nb, sh) in TW:
        l = newlabel("TW")
        a(f"s_cmp_lg_u32 s{S_WAVE}, {w}", f"s_cbranch_scc1 {l}")
        srd(a, R0, {"ws": P_WS, "out": P_OUT}[base], nb, off)
        a(f"v_lshlrev_b32 v125, {sh}, v1", f"buffer_load_dword v124, v125, s[{R0}:{R0+3}], 0 offen")
        a(f"{l}:")
    def dr_loads():
        srd(a, R3, P_DOWN, WBYTES)
        a(f"s_cmp_lt_u32 s{S_I}, {2 if RM else 8}", f"s_cselect_b32 s{R3+2}, s{R3+2}, 0")
        a("v_lshlrev_b32 v19, 4, v1", f"s_mul_i32 s{T2_}, s{S_BLK}, 36864", f"s_mul_i32 s{T3_}, s{S_WAVE}, 9216", f"s_add_u32 s{T2_}, s{T2_}, s{T3_}")
        for k in range(9):
            if k in (4, 8): a(f"s_add_u32 s{T2_}, s{T2_}, 4096")
            a(f"buffer_load_dwordx4 v[{68+4*k}:{71+4*k}], v19, s[{R3}:{R3+3}], s{T2_} offen offset:{1024*(k&3)} {MOD('DM', 'nt')}")
    NCE = ENV("NCE", 1)
    def nce_loads():
        a(f"s_and_b32 s{T2_}, s{S_I}, 7", f"s_lshl_b32 s{T3_}, s{S_WAVE}, 3", f"s_add_u32 s{T2_}, s{T2_}, s{T3_}")
        pf_gu_setup(a, T2_)
        a(f"s_cmp_lt_u32 s{S_I}, 24", f"s_cselect_b32 s{R2_+2}, 0, s{R2_+2}")
        if NCE == 2: a("s_waitcnt vmcnt(0)")
        for k in range((NC + 3) // 4):
            a(f"s_add_u32 s{T4_}, s{T3_}, {(PF0 + 8*NN + 32*k)//2*7*9216}", f"s_cmp_ge_u32 s{S_WAVE}, {NC - 4*k}", f"s_cselect_b32 s{R2_+2}, 0, s{R2_+2}")
            pf_ld(a, 18, 16, R2_)
    if DR == 1: dr_loads()
    if NCE == 4: nce_loads()
    if ENV("CTRIG", 1): lds_wait(a, FL_PARAM, 8, "nz", sleep=2)
    if NCE == 3: nce_loads()
    if DR == 4: dr_loads()
    for k in range((CLR_WG + 4095) // 4096):
        a(f"s_mov_b32 s{T0_}, {4096*k}")
        a(f"buffer_store_dwordx4 v[12:15], v6, s[{R1}:{R1+3}], s{T0_} offen {MOD('CMOD')}")
    stamp(a, 1)
    a(f"global_load_dword v58, v59, s[{P_DBG}:{P_DBG+1}] sc1")
    if DR == 2: dr_loads()
    if NCE in (1, 2): nce_loads()
    dbg_wait(a, (9 if DR == 2 else 0) + (2 * ((NC + 3) // 4) if NCE in (1, 2) else 0))
    stamp(a, 2)
    a(f"ds_write_b32 v59, v58 offset:{FL_NONCE}")
    a("s_mov_b64 exec, 1")
    a(f"ds_add_rtn_u32 v8, v{VZ}, v{VONE} offset:{FL_LNACK}")
    a("s_mov_b64 exec, -1")
    for d in range(1, 4): a(f"v_lshrrev_b32 v{58-d}, {3*d}, v58")
    a("s_waitcnt lgkmcnt(0)")
    a(f"v_readfirstlane_b32 s{T0_}, v8")
    a(f"s_cmp_lg_u32 s{T0_}, 3", "s_cbranch_scc1 KS_L2")
    a("s_mov_b64 exec, 15")
    a(f"global_store_dword v7, v58, s[{P_WS}:{P_WS+1}] sc1")
    a("s_mov_b64 exec, -1")
    a(f"s_and_b32 s{T2_}, s{S_I}, 7")
    a(f"s_cmp_ge_u32 s{S_I}, 8", "s_cbranch_scc1 KS_L1C")
    if NN:
        a("s_setprio 0")
        lds_wait(a, FL_G + 32 + 4, 8, "b4", sleep=2)
        a("s_setprio 3")
        pf_gu(a, 16, T2_, 8, PF0, PF0 + 8 * NN, 18, "KS_L2")
    a("s_branch KS_L2")
    a("KS_L1C:")
    if NC and not NCE: pf_gu(a, 16, T2_, 8, PF0 + 8 * NN, PF1, 18, "KS_L2")
    a("KS_L2:")
    if RM == 2:
        a(f"s_sub_u32 s{T2_}, s{S_FI}, 18", f"s_cmp_ge_u32 s{T2_}, 6", "s_cbranch_scc1 KS_RME")
        a(f"s_mul_i32 s{T3_}, s{S_WAVE}, 6", f"s_add_u32 s{T2_}, s{T2_}, s{T3_}")
        if ENV("RMD", 0): a(f"s_sleep {ENV('RMD', 0)}")
        pf_gu(a, 16, T2_, 24, PFA + 10 * NLL, PF0, 18, "KS_RME")
        a("KS_RME:")
    if DR == 3: dr_loads()
    a(f"s_mov_b32 s{S_G}, 0")
    a("KS_L2B:")
    srd(a, R0, P_WS, XBYTES, WS_UT)
    if UL:
        a("v_lshrrev_b32 v7, 1, v1", "v_lshlrev_b32 v7, 7, v7", "v_and_b32 v10, 1, v1", "v_lshl_add_u32 v7, v10, 4, v7", "v_lshlrev_b32 v9, 4, v1")
        a("v_lshrrev_b32 v13, 2, v1", "v_lshlrev_b32 v13, 7, v13", "v_and_b32 v12, 3, v1", "v_lshl_add_u32 v13, v12, 4, v13")
        a(f"s_lshl_b32 s{T0_}, s{S_WAVE}, 12", f"s_lshr_b32 s{T1_}, s{S_B2}, 1", f"s_lshl_b32 s{T2_}, s{T1_}, 8", f"s_lshl_b32 s{T1_}, s{T1_}, 14", f"s_add_u32 s{T1_}, s{T1_}, s{T0_}")
        a(f"s_and_b32 s{T3_}, s{S_B2}, 1", f"s_lshl_b32 s{T3_}, s{T3_}, 6", f"s_add_u32 s{T1_}, s{T1_}, s{T3_}")
        a(f"s_and_b32 s{T3_}, s{T2_}, 0x700", f"v_xor_b32 v13, s{T3_}, v13", f"s_and_b32 s{T2_}, s{T2_}, 0x1800", f"s_xor_b32 s{T1_}, s{T1_}, s{T2_}")
        a(f"s_xor_b32 s{T5_}, s{T1_}, 0x800")
        a(f"s_lshl_b32 s{T3_}, s{S_XC}, 3", f"s_add_u32 s{T3_}, s{T3_}, s{S_I}", f"s_add_u32 s{T3_}, s{T3_}, {512 - 24}")
        a(f"s_lshr_b32 s{T4_}, s{T3_}, 2", f"s_lshl_b32 s{T4_}, s{T4_}, 14", f"s_and_b32 s{T3_}, s{T3_}, 3", f"s_lshl_b32 s{T3_}, s{T3_}, 5")
        a(f"s_add_u32 s{T3_}, s{T3_}, s{T4_}", f"s_add_u32 s{T3_}, s{T3_}, s{T0_}")
        a(f"s_lshr_b32 s{T4_}, s{T4_}, 6", f"s_and_b32 s{T2_}, s{T4_}, 0xf00", f"v_xor_b32 v7, s{T2_}, v7", f"s_and_b32 s{T4_}, s{T4_}, 0x1000", f"s_xor_b32 s{T3_}, s{T3_}, s{T4_}")
        a(f"s_lshl_b32 s{T0_}, s{S_WAVE}, 11")
    else:
        a("v_lshrrev_b32 v7, 1, v1", "v_lshlrev_b32 v7, 6, v7", "v_and_b32 v10, 1, v1", "v_lshl_add_u32 v7, v10, 4, v7", "v_lshlrev_b32 v9, 4, v1")
        a(f"s_lshl_b32 s{T0_}, s{S_WAVE}, 11", f"s_lshl_b32 s{T1_}, s{S_B2}, 13", f"s_add_u32 s{T1_}, s{T1_}, s{T0_}")
        if SWU:
            a(f"s_lshl_b32 s{T2_}, s{S_B2}, 7", f"s_and_b32 s{T3_}, s{T2_}, 0x380", f"v_xor_b32 v13, s{T3_}, v9", f"s_and_b32 s{T2_}, s{T2_}, 0x1c00", f"s_xor_b32 s{T1_}, s{T1_}, s{T2_}")
        else: a("v_mov_b32 v13, v9")
        a(f"s_xor_b32 s{T5_}, s{T1_}, 0x400")
        a(f"s_lshl_b32 s{T3_}, s{S_XC}, 3", f"s_add_u32 s{T3_}, s{T3_}, s{S_I}", f"s_add_u32 s{T3_}, s{T3_}, {512 - 24}")
        a(f"s_lshr_b32 s{T4_}, s{T3_}, 1", f"s_lshl_b32 s{T4_}, s{T4_}, 13", f"s_and_b32 s{T3_}, s{T3_}, 1", f"s_lshl_b32 s{T3_}, s{T3_}, 5")
        a(f"s_add_u32 s{T3_}, s{T3_}, s{T4_}", f"s_add_u32 s{T3_}, s{T3_}, s{T0_}")
        if SWU:
            a(f"s_lshr_b32 s{T4_}, s{T4_}, 6", f"s_and_b32 s{T2_}, s{T4_}, 0x780", f"v_xor_b32 v7, s{T2_}, v7", f"s_and_b32 s{T4_}, s{T4_}, 0x1800", f"s_xor_b32 s{T3_}, s{T3_}, s{T4_}")
    a(f"s_cmp_lt_u32 s{S_I}, 24", f"s_cselect_b32 s{T3_}, {XBYTES}, s{T3_}", f"s_cselect_b32 s{T2_}, 0, {hex(TAGM)}")
    a(f"v_mov_b32_dpp v64, v58 quad_perm:[0,1,0,1] {DPPM}", f"v_mov_b32_dpp v65, v58 quad_perm:[2,3,2,3] {DPPM}")
    a(f"s_bitcmp1_b32 s{S_I}, 0", "s_cselect_b64 vcc, -1, 0", "v_cndmask_b32 v64, v64, v65, vcc")
    for d in range(4): a(f"v_and_b32 v{60+d}, {hex(TAGM)}, v{58-d}")
    for d in range(3, 0, -1): a(f"v_lshrrev_b32 v{64+d}, {3*d}, v64")
    for d in range(4): a(f"v_and_b32 v{64+d}, s{T2_}, v{64+d}")
    a(f"s_lshl_b32 s{T4_}, s{S_WAVE}, 10", f"s_add_u32 s{T4_}, s{T4_}, {C_U + 480}")
    a("v_bfe_u32 v11, v1, 1, 1", f"v_mul_u32_u24 v11, {U_SIZE}, v11", "v_lshl_add_u32 v11, v10, 4, v11", "v_lshrrev_b32 v10, 2, v1", "v_lshl_add_u32 v11, v10, 5, v11", f"v_add_u32 v11, s{T4_}, v11")
    a(f"v_add_u32 v10, s{T4_}, v9")
    a(f"v_mov_b32 v116, s{S_WAVE}")
    a(f"s_add_u32 s{T0_}, s{T0_}, {hex(WS_FLAG1)}", "v_lshrrev_b32 v12, 2, v1", "v_lshl_add_u32 v12, v12, 6, v59", f"v_add_u32 v12, s{T0_}, v12")
    UT = eval(os.environ.get("UT", "(8, 8, 20)"))
    a(f"s_cmp_lt_u32 s{S_I}, 8", f"s_cselect_b32 s{T2_}, {UT[0]}, {UT[1]}", f"s_cmp_ge_u32 s{S_I}, 24", f"s_cselect_b32 s{T2_}, {UT[2]}, s{T2_}", f"v_mov_b32 v14, s{T2_}")
    a("s_setprio 0")
    if not ENV("NOW", 1): a("s_waitcnt vmcnt(0)")
    a(f"ds_write_b8 v116, v{VONE} offset:{FL_UTOK + 4}")
    stamp(a, 8)
    if DR:
        a(f"s_cmp_ge_u32 s{S_I}, {2 if RM else 8}", "s_cbranch_scc1 KS_DR1")
        a(f"s_mul_i32 s{T2_}, s{S_WAVE}, 9216", f"s_add_u32 s{T2_}, s{T2_}, {C_DOWN}", f"v_lshl_add_u32 v19, v1, 4, s{T2_}")
        lds_wait(a, FL_G + 36, 8, "b4", sleep=2)
        a("s_waitcnt vmcnt(0)")
        for k in range(9): a(f"ds_write_b128 v19, v[{68+4*k}:{71+4*k}] offset:{1024*k}")
        a("KS_DR1:")
    lds_wait(a, FL_G, 8, "b4", addr=14, sleep=2)
    a("s_setprio 3")
    stamp(a, 5)
    if ENV("UDELAY", 0): a(f"s_sleep {ENV('UDELAY', 0)}")
    lp = newlabel("UP"); l1 = newlabel("UPE")
    UM = os.environ.get("UMOD", "sc1").replace("_", " ")
    MK = [6, 8, 10, 12]
    if ENV("MPOLL", 0):
        for m in MK: a(f"s_mov_b64 s[{m}:{m+1}], -1")
        a(f"s_mov_b32 s{SP0}, {hex(TAGM)}")
    a(f"s_branch {l1}")
    a(f"{lp}:")
    a(f"s_sleep {ENV('USLEEP', 1)}")
    a(f"{l1}:")
    if ENV("MPOLL", 0):
        lds = [f"buffer_load_dwordx4 v[20:23], v13, s[{R0}:{R0+3}], s{T1_} offen {UM}", f"buffer_load_dwordx4 v[24:27], v13, s[{R0}:{R0+3}], s{T5_} offen {UM}",
               f"buffer_load_dwordx4 v[28:31], v7, s[{R0}:{R0+3}], s{T3_} offen {UM}"]
        for k in range(3): a(f"s_mov_b64 exec, s[{MK[k]}:{MK[k]+1}]", lds[k])
        a(f"s_mov_b64 exec, s[{MK[3]}:{MK[3]+1}]")
        a(f"global_load_dword v32, v12, s[{P_WS}:{P_WS+1}] sc1", f"global_load_dword v33, v12, s[{P_WS}:{P_WS+1}] offset:1024 sc1")
        guard(a)
        for k in range(3):
            a(f"s_mov_b64 exec, s[{MK[k]}:{MK[k]+1}]", f"s_waitcnt vmcnt({4-k})")
            for d in range(4): a(f"v_xor_b32 v{20+4*k+d}, v{(64 if k == 2 else 60)+d}, v{20+4*k+d}")
            a(f"v_or3_b32 v44, v{20+4*k}, v{21+4*k}, v{22+4*k}", f"v_bitop3_b32 v44, v44, v{23+4*k}, s{SP0} bitop3:0xa8", f"v_cmp_ne_u32 s[{MK[k]}:{MK[k]+1}], 0, v44")
        a(f"s_mov_b64 exec, s[{MK[3]}:{MK[3]+1}]", "s_waitcnt vmcnt(0)")
        a("v_xor_b32 v32, v58, v32", "v_bitop3_b32 v32, v32, v58, v33 bitop3:0xf6", f"v_cmp_ne_u32 s[{MK[3]}:{MK[3]+1}], 0, v32")
        a(f"s_or_b64 vcc, s[{MK[0]}:{MK[0]+1}], s[{MK[1]}:{MK[1]+1}]", f"s_or_b64 vcc, vcc, s[{MK[2]}:{MK[2]+1}]", f"s_or_b64 vcc, vcc, s[{MK[3]}:{MK[3]+1}]", f"s_cbranch_scc1 {lp}")
        a("s_mov_b64 exec, -1")
    else:
        if not FLD: a(f"global_load_dword v32, v12, s[{P_WS}:{P_WS+1}] {MOD('FMOD')}", f"global_load_dword v33, v12, s[{P_WS}:{P_WS+1}] offset:1024 {MOD('FMOD')}")
        a(f"buffer_load_dwordx4 v[20:23], v13, s[{R0}:{R0+3}], s{T1_} offen {UM}")
        a(f"buffer_load_dwordx4 v[24:27], v13, s[{R0}:{R0+3}], s{T5_} offen {UM}")
        a(f"buffer_load_dwordx4 v[28:31], v7, s[{R0}:{R0+3}], s{T3_} offen {UM}")
        if ENV("DUW", 0) or ENV("XUW", 0): a(f"ds_write_b8 v116, v{VONE} offset:{FL_UISS}")
        guard(a)
        UWR = ("ds_write_b128 v11, v[20:23]", "ds_write_b128 v11, v[24:27] offset:512", f"ds_write_b128 v10, v[28:31] offset:{2*U_SIZE}")
        for k in range(3):
            a(f"s_waitcnt vmcnt({2-k})")
            if k == 0 and not FLD: a("v_xor_b32 v32, v58, v32", "v_xor_b32 v33, v58, v33")
            for d in range(4): a(f"v_xor_b32 v{20+4*k+d}, v{(64 if k == 2 else 60)+d}, v{20+4*k+d}")
            if ENV("UW", 1): a(UWR[k])
            a(f"v_or3_b32 v44, v{20+4*k}, v{21+4*k}, v{44 if k else 21}", f"v_or3_b32 v44, v{22+4*k}, v{23+4*k}, v44")
        a(f"v_and_b32 v44, {hex(TAGM)}, v44")
        if not FLD: a("v_or3_b32 v44, v44, v32, v33")
        a("v_cmp_ne_u32 vcc, 0, v44", f"s_cbranch_vccnz {lp}")
    stamp(a, 6)
    if not ENV("UW", 1): a("ds_write_b128 v11, v[20:23]", "ds_write_b128 v11, v[24:27] offset:512", f"ds_write_b128 v10, v[28:31] offset:{2*U_SIZE}")
    a(f"ds_write_b8 v116, v{VONE} offset:{FL_UF}")
    stamp(a, 7)
    gen_wjobs(a)
    a("s_setprio 0")
    LG = ENV("LG", 0)
    def lgate(): lds_wait(a, FL_S6 + ENV("LGB", 3), 12, "u8", sleep=ENV("LGS", 3))
    if LG == 2: lgate()
    a(f"s_lshr_b32 s{T0_}, s{S_B2}, 6", f"s_lshl_b32 s{T0_}, s{T0_}, 9")
    a(f"s_bfe_u32 s{T1_}, s{S_B2}, 0x20004", f"s_lshl_b32 s{T1_}, s{T1_}, 6", f"s_add_u32 s{T0_}, s{T0_}, s{T1_}")
    a(f"s_and_b32 s{T1_}, s{S_B2}, 3", f"s_lshl_b32 s{T1_}, s{T1_}, 4", f"s_add_u32 s{T0_}, s{T0_}, s{T1_}")
    a(f"s_and_b32 s{T1_}, s{S_B2}, 12", f"s_add_u32 s{T0_}, s{T0_}, s{T1_}")
    a(f"s_lshr_b32 s{T1_}, s{S_WAVE}, 1", f"s_lshl_b32 s{T1_}, s{T1_}, 8", f"s_add_u32 s{T0_}, s{T0_}, s{T1_}")
    a(f"s_and_b32 s{T1_}, s{S_WAVE}, 1", f"s_lshl_b32 s{T1_}, s{T1_}, 1", f"s_add_u32 s{T0_}, s{T0_}, s{T1_}")
    a("v_lshrrev_b32 v113, 5, v1", "v_and_b32 v114, 31, v1")
    a(f"v_add_u32 v112, s{T0_}, v113")
    a("v_mul_u32_u24 v115, 1152, v112", "v_lshl_add_u32 v8, v114, 2, v115", "v_lshl_add_u32 v115, v114, 4, v115", "v_lshlrev_b32 v7, 2, v114", "v_lshlrev_b32 v6, 4, v114")
    a(f"v_bfe_u32 v111, v1, 3, 1", f"v_add_u32 v111, s{T0_}, v111", "v_mul_u32_u24 v111, 1152, v111", "v_and_b32 v9, 7, v1", "v_lshl_add_u32 v111, v9, 4, v111")
    srd(a, R0, P_X, XBYTES)
    srd(a, R1, P_WR, 1152)
    a(f"buffer_load_dwordx4 v[10:13], v115, s[{R0}:{R0+3}], 0 offen")
    a(f"buffer_load_dwordx4 v[14:17], v115, s[{R0}:{R0+3}], 0 offen offset:512")
    a(f"buffer_load_dword v18, v8, s[{R0}:{R0+3}], 0 offen offset:1024")
    a(f"buffer_load_dwordx4 v[50:53], v6, s[{R1}:{R1+3}], 0 offen")
    a(f"buffer_load_dwordx4 v[54:57], v6, s[{R1}:{R1+3}], 0 offen offset:512")
    a(f"buffer_load_dword v58, v7, s[{R1}:{R1+3}], 0 offen offset:1024")
    if not PTAG:
        a(f"s_cmp_lt_u32 s{S_FI}, 18", "s_cbranch_scc1 KS_L4")
        a(f"s_mul_i32 s{T0_}, s{S_XC}, 14", f"s_add_u32 s{T0_}, s{T0_}, s{S_I}", f"s_mul_i32 s{T0_}, s{T0_}, {CLRP_WG}", f"s_add_u32 s{T0_}, s{T0_}, {hex(WS_PART - 18*CLRP_WG)}")
        a(f"s_add_u32 s{R1}, s{P_WS}, s{T0_}", f"s_addc_u32 s{R1+1}, s{P_WS+1}, 0", f"s_mov_b32 s{R1+2}, {CLRP_WG}", f"s_mov_b32 s{R1+3}, 0x20000")
        a("v_lshlrev_b32 v6, 4, v0", "v_mov_b32 v60, -1", "v_mov_b32 v61, -1", "v_mov_b32 v62, -1", "v_mov_b32 v63, -1")
        for k in range(6):
            a(f"s_movk_i32 s{T0_}, {4096*k}")
            a(f"buffer_store_dwordx4 v[60:63], v6, s[{R1}:{R1+3}], s{T0_} offen sc1")
    a("KS_L4:")
    if LG == 1: lds_wait(a, FL_S6 + ENV("LGB", 3), 60, "u8", sleep=ENV("LGS", 3))
    srd(a, R0, P_WS, 0x240000, WS_ZB1)
    srd(a, R1, P_OUT, XBYTES)
    srd(a, R2_, P_WS, XBYTES, WS_X2)
    srd(a, R3, P_WS, 16384, WS_KEYS)
    if not XCL:
        for d in range(4): a(f"v_mov_b32 v{60+d}, -1")
        a(f"buffer_store_dwordx4 v[60:63], v115, s[{R2_}:{R2_+3}], 0 offen sc1")
        a(f"buffer_store_dwordx4 v[60:63], v115, s[{R2_}:{R2_+3}], 0 offen offset:512 sc1")
        a("s_mov_b64 exec, 0xffff")
        a(f"buffer_store_dwordx4 v[60:63], v111, s[{R2_}:{R2_+3}], 0 offen offset:1024 sc1")
        a("s_mov_b64 exec, -1")
    a(f"s_not_b32 s{T1_}, s{S_B2}", f"v_xor_b32 v8, s{T1_}, v0")
    a("v_lshrrev_b32 v6, 1, v0", "v_lshlrev_b32 v6, 6, v6", "v_and_b32 v8, 1, v8", "v_lshl_add_u32 v6, v8, 4, v6")
    a(f"s_lshr_b32 s{T0_}, s{S_B2}, 2", f"s_lshl_b32 s{T0_}, s{T0_}, 15", f"s_and_b32 s{T1_}, s{S_B2}, 1", f"s_lshl_b32 s{T1_}, s{T1_}, 14", f"s_add_u32 s{T0_}, s{T0_}, s{T1_}")
    a(f"s_and_b32 s{T1_}, s{S_B2}, 2", f"s_lshl_b32 s{T1_}, s{T1_}, 4", f"s_add_u32 s{T0_}, s{T0_}, s{T1_}")
    a(f"s_lshr_b32 s{T2_}, s{S_B2}, 2", f"s_lshl_b32 s{T2_}, s{T2_}, 12", f"s_and_b32 s{T1_}, s{S_B2}, 3", f"s_lshl_b32 s{T1_}, s{T1_}, 4")
    a(f"s_add_u32 s{T2_}, s{T2_}, s{T1_}", f"s_lshl_b32 s{T1_}, s{S_WAVE}, 10", f"s_add_u32 s{T2_}, s{T2_}, s{T1_}", f"s_add_u32 s{T2_}, s{T2_}, 0x200000")
    a("v_lshlrev_b32 v9, 6, v2")
    if SWZ:
        a(f"s_lshl_b32 s{T1_}, s{S_B2}, 5", f"s_and_b32 s{T3_}, s{T1_}, 0x1f80", f"v_xor_b32 v6, s{T3_}, v6", f"s_and_b32 s{T3_}, s{T1_}, 0x380", f"v_xor_b32 v9, s{T3_}, v9")
        a(f"s_and_b32 s{T3_}, s{T1_}, 0xc00", f"s_xor_b32 s{T2_}, s{T2_}, s{T3_}", f"s_and_b32 s{T1_}, s{S_B2}, 1", f"s_lshl_b32 s{T1_}, s{T1_}, 13", f"s_xor_b32 s{T0_}, s{T0_}, s{T1_}")
    a(f"s_xor_b32 s{T1_}, s{T0_}, 0x2000")
    a(f"s_mul_i32 s{T3_}, s{S_WAVE}, 2304", f"s_add_u32 s{T3_}, s{T3_}, {C_XR}", f"v_lshl_add_u32 v117, v114, 5, s{T3_}", f"v_lshl_add_u32 v110, v114, 3, s{T3_}")
    a(f"s_lshl_b32 s{T3_}, s{S_WAVE}, 9", f"s_add_u32 s{T3_}, s{T3_}, {C_RED}", f"v_lshl_add_u32 v108, v1, 2, s{T3_}", f"v_lshl_add_u32 v109, v1, 4, s{T3_}")
    SD2 = ENV("SD2", 1)
    if SD2: a("v_lshlrev_b32 v118, 4, v113", f"s_movk_i32 s{T3_}, 0x3f80", f"v_lshlrev_b32 v118, v118, s{T3_}")
    else: a(f"s_mov_b32 s{T3_}, 0x02020000", f"v_mul_lo_u32 v118, v113, s{T3_}", "v_add_u32 v118, 0x01000c0c, v118")
    a(f"v_lshlrev_b32 v8, 2, v0", f"v_add_u32 v8, {C_XR}, v8")
    a(f"s_lshl_b32 s{T3_}, s{S_WAVE}, 6", f"s_add_u32 s{T3_}, s{T3_}, {C_XR + 2048}", f"v_lshl_add_u32 v119, v2, 2, s{T3_}")
    a("s_waitcnt vmcnt(0)")
    X = 20
    for j in range(9): unpack(a, X + 2 * j, 10 + j)
    WU, WS_ = 80, 78
    for j in range(9): unpack(a, WU + 2 * j, 50 + j)
    a(f"v_pk_add_f32 v[{WS_}:{WS_+1}], v[{WU}:{WU+1}], v[{WU+2}:{WU+3}]")
    for j in range(2, 9): a(f"v_pk_add_f32 v[{WS_}:{WS_+1}], v[{WS_}:{WS_+1}], v[{WU+2*j}:{WU+2*j+1}]")
    a(f"v_add_f32 v{WS_}, v{WS_}, v{WS_+1}")
    red32(a, "v_add_f32", WS_, WS_ + 1)
    a("v_sub_u32 v98, 0x87ff, v112", "v_lshl_add_u32 v99, v116, 1, v113", "v_lshlrev_b32 v99, 2, v99")
    ZG2 = ENV("ZG2", 0)
    if KD: a(f"s_lshl_b32 s{T5_}, s{S_B2}, 5")
    if ZG2 == 3:
        if ENV("ZGT", 0) < 2: lds_wait(a, {0: FL_ZDONE, 1: FL_ZISS}[ENV("ZGT", 0)], 60, "b4", sleep=1)
        if ENV('ZGS', 0x10000):
            a("s_mov_b32 exec_lo, 0", f"s_mov_b32 exec_hi, {hex(ENV('ZGS', 0x10000))}")
            zpoll(a, [f"buffer_load_dwordx4 v[68:71], v6, s[{R0}:{R0+3}], s{T0_} offen sc1"], list(range(68, 72)), ENV("ZSLEEP2", 2))
            a("s_mov_b64 exec, -1")
        else:
            zpoll(a, [f"buffer_load_dwordx4 v[68:71], v{VZ}, s[{R0}:{R0+3}], s{T2_} offen sc1"], list(range(68, 72)), ENV("ZSLEEP2", 2))
        if ENV("ZDELAY", 0): a(f"s_sleep {ENV('ZDELAY', 0)}")
        lds_wait(a, FL_ZISS, 60, "b4")
        if ENV("ZDELAY2", 0): a(f"s_sleep {ENV('ZDELAY2', 0)}")
    elif ZG2:
        lds_wait(a, {1: FL_ZDONE, 2: FL_ZISS}[ZG2], 60, "b4", sleep=1)
        zpoll(a, [f"buffer_load_dwordx4 v[68:71], v{VZ}, s[{R0}:{R0+3}], s{T2_} offen sc1"], list(range(68, 72)), ENV("ZSLEEP2", 2))
    ZT = ENV("ZT", 0)
    def blank():
        for k in range(3): a(f"buffer_store_dwordx4 v[100:103], v104, s[{R4}:{R4+3}], 0 offen offset:{1024*k} sc1")
    if BT:
        a(f"s_sub_u32 s{T3_}, s{S_I}, 8", f"s_cmp_lt_u32 s{T3_}, 16", f"s_cselect_b32 s{R4+2}, 10624, 0", f"s_and_b32 s{T3_}, s{T3_}, 15", f"s_lshl_b32 s{T3_}, s{T3_}, 3", f"s_add_u32 s{T3_}, s{T3_}, s{S_XC}")
        a(f"s_mul_i32 s{T3_}, s{T3_}, 10624", f"s_add_u32 s{T3_}, s{T3_}, {hex(WS_PART)}", f"s_add_u32 s{R4}, s{P_WS}, s{T3_}", f"s_addc_u32 s{R4+1}, s{P_WS+1}, 0", f"s_mov_b32 s{R4+3}, 0x20000")
        a(f"s_mul_i32 s{T3_}, s{S_WAVE}, 3072", f"v_lshl_add_u32 v104, v1, 4, s{T3_}")
        for d in range(4): a(f"v_mov_b32 v{100+d}, -1")
        if BT == 2: lds_wait(a, FL_ZDONE, 60, "b4", sleep=1)
        if BT == 4: lds_wait(a, FL_ZISS, 60, "b4", sleep=1)
        if BT in (1, 2, 4): blank()
    if ZT:
        lds_wait(a, FL_ZISS, 60, "b4", sleep=1)
        a(f"s_movk_i32 s{T3_}, {ZT}", f"s_setprio {ENV('ZTP', 0)}")
        a("KS_ZT:")
        a("s_sleep 1", f"ds_read_b32 v60, v{VZ} offset:{FL_ZDONE + 4}", f"s_sub_u32 s{T3_}, s{T3_}, 1", "s_cbranch_scc1 KS_ZL")
        a("s_waitcnt lgkmcnt(0)", f"v_cmp_ne_u32 vcc, s{S_ONES}, v60", "s_cbranch_vccnz KS_ZT")
    elif ZM:
        lds_wait(a, FL_KACK, 60, "nz", sleep=1)
        lds_wait(a, FL_ZISS, 60, "b4", sleep=0)
    elif ZG2 != 3: lds_wait(a, FL_ZDONE + 4, 60, "b4", sleep=1)
    a("s_setprio 3")
    if PFD2 > PFD:
        W3 = ENV("PF3W", 6)
        a(f"s_sub_u32 s{T5_}, s{S_I}, 18", f"s_cmp_ge_u32 s{T5_}, {W3}", "s_cbranch_scc1 KS_PF3E", f"s_cmp_lg_u32 s{S_WAVE}, 2", "s_cbranch_scc1 KS_PF3E")
        pf_down(a, T5_, W3, PFD, PFD2, 100, 120, "KS_PF3E", R4)
        a("KS_PF3E:")
    stamp2(a, 1)
    if ENV("ZGATE", 1) and not ZG2 and not ZM:
        if BT == 3: blank()
        ZGC = ENV("ZGC", 2)
        if ZGC == 1: a(f"s_cmp_ge_u32 s{S_I}, 24", "s_cbranch_scc1 KS_ZGC")
        if ZGC == 3: a(f"s_sub_u32 s{T3_}, s{S_I}, 18", f"s_cmp_ge_u32 s{T3_}, 6", "s_cbranch_scc1 KS_ZGC")
        if ZGC == 2: a(f"s_sub_u32 s{T3_}, s{S_I}, 8", f"s_cmp_ge_u32 s{T3_}, 16", "s_cbranch_scc1 KS_ZGC")
        if ENV("ZSPL", 0):
            assert ENV("ZMP", 0)
            if ENV("ZSPL", 0) == 2: zpoll(a, [f"buffer_load_dwordx4 v[68:71], v{VZ}, s[{R0}:{R0+3}], s{T2_} offen sc1"], list(range(68, 72)), ENV("ZSLEEP", 1))
            a("v_mov_b32 v60, -1", "v_mov_b32 v64, -1", "s_mov_b32 exec_hi, 0xffff")
        elif ENV("ZGB", 0):
            a("s_mov_b32 exec_lo, 0", f"s_mov_b32 exec_hi, {hex(ENV('ZGB', 0))}")
            zpoll(a, [f"buffer_load_dwordx4 v[68:71], v6, s[{R0}:{R0+3}], s{T0_} offen sc1"], list(range(68, 72)), ENV("ZSLEEP", 1))
            a("s_mov_b64 exec, -1")
        else: zpoll(a, [f"buffer_load_dwordx4 v[68:71], v{VZ}, s[{R0}:{R0+3}], s{T2_} offen sc1"], list(range(68, 72)), ENV("ZSLEEP", 1))
        if ENV("ZDELAY", 0): a(f"s_sleep {ENV('ZDELAY', 0)}")
        if ZGC: a("KS_ZGC:")
    lp = newlabel("ZP"); l1 = newlabel("ZPE")
    a(f"s_branch {l1}", f"{lp}:", f"s_sleep {ENV('ZSLEEP', 1)}")
    if ZT: a("KS_ZL:", "s_setprio 3", "s_waitcnt lgkmcnt(0)")
    a(f"{l1}:")
    a(f"buffer_load_dwordx4 v[60:63], v6, s[{R0}:{R0+3}], s{T0_} offen sc1",
      f"buffer_load_dwordx4 v[64:67], v6, s[{R0}:{R0+3}], s{T1_} offen sc1")
    if ENV("ZSPL", 0): a("s_mov_b64 exec, -1")
    a(f"buffer_load_dwordx4 v[68:71], v9, s[{R0}:{R0+3}], s{T2_} offen sc1")
    guard(a)
    for k in range(3):
        a(f"s_waitcnt vmcnt({2-k})")
        ad, o = (8, 4 * k) if k < 2 else (119, 0)
        a(f"ds_write2st64_b32 v{ad}, v{60+4*k}, v{61+4*k} offset0:{o} offset1:{9+o}")
        a(f"ds_write2st64_b32 v{ad}, v{62+4*k}, v{63+4*k} offset0:{18+o} offset1:{27+o}")
        a(f"v_max3_u32 v44, v{60+4*k}, v{61+4*k}, v{44 if k else 61}", f"v_max3_u32 v44, v{62+4*k}, v{63+4*k}, v44")
    if ENV("ZMP", 0):
        MZ = [6, 8, 10]; zk = newlabel("ZK"); zl = newlabel("ZM")
        zld = [f"buffer_load_dwordx4 v[60:63], v6, s[{R0}:{R0+3}], s{T0_} offen sc1", f"buffer_load_dwordx4 v[64:67], v6, s[{R0}:{R0+3}], s{T1_} offen sc1",
               f"buffer_load_dwordx4 v[68:71], v9, s[{R0}:{R0+3}], s{T2_} offen sc1"]
        def miss(k): a(f"v_max3_u32 v44, v{60+4*k}, v{61+4*k}, v{62+4*k}", f"v_max_u32 v44, v44, v{63+4*k}", f"v_cmp_eq_u32 s[{MZ[k]}:{MZ[k]+1}], -1, v44")
        a("v_cmp_eq_u32 vcc, -1, v44", f"s_cbranch_vccz {zk}")
        for k in range(3): miss(k)
        a(f"{zl}:")
        if ENV("ZMS", 1): a(f"s_sleep {ENV('ZMS', 1)}")
        for k in range(3): a(f"s_mov_b64 exec, s[{MZ[k]}:{MZ[k]+1}]", zld[k])
        guard(a)
        for k in range(3):
            ad, o = (8, 4 * k) if k < 2 else (119, 0)
            a(f"s_mov_b64 exec, s[{MZ[k]}:{MZ[k]+1}]", f"s_waitcnt vmcnt({2-k})")
            a(f"ds_write2st64_b32 v{ad}, v{60+4*k}, v{61+4*k} offset0:{o} offset1:{9+o}")
            a(f"ds_write2st64_b32 v{ad}, v{62+4*k}, v{63+4*k} offset0:{18+o} offset1:{27+o}")
            miss(k)
        a.flush(5)
        a(f"s_or_b64 vcc, s[{MZ[0]}:{MZ[0]+1}], s[{MZ[1]}:{MZ[1]+1}]", f"s_or_b64 vcc, vcc, s[{MZ[2]}:{MZ[2]+1}]", f"s_cbranch_scc1 {zl}")
        a("s_mov_b64 exec, -1")
        a(f"{zk}:")
    else: a("v_cmp_eq_u32 vcc, -1, v44", f"s_cbranch_vccnz {lp}")
    a(f"ds_write_b8 v116, v{VONE} offset:{FL_ZF}")
    stamp2(a, 3)
    lp = newlabel("ZW")
    a(f"{lp}:")
    a(f"ds_read_b32 v44, v{VZ} offset:{FL_ZF}")
    for k in range(4):
        a(f"ds_read_b128 v[{60+4*k}:{63+4*k}], v117 offset:{1024*(k>>1) + 16*(k&1)}")
    a("ds_read_b64 v[76:77], v110 offset:2048")
    guard(a)
    a("s_waitcnt lgkmcnt(5)")
    a(f"v_cmp_ne_u32 vcc, s{S_ONES}, v44", f"s_cbranch_vccnz {lp}")
    def hsum(j):
        if j % 2 == 0: a(f"s_waitcnt lgkmcnt({4-j//2})")
        for e in range(2): a(f"v_dot2c_f32_bf16 v{X+2*j+e}, v{60+2*j+e}, v118")
    if SD2: hsum(0); hsum(1)
    for j in range(9):
        h = f"v[{X+2*j}:{X+2*j+1}]"
        if SD2:
            if j < 7: hsum(j + 2)
        else:
            if j % 2 == 0: a(f"s_waitcnt lgkmcnt({4-j//2})")
            a(f"v_perm_b32 v{60+2*j}, v{60+2*j}, v{60+2*j}, v118", f"v_perm_b32 v{61+2*j}, v{61+2*j}, v{61+2*j}, v118")
            a(f"v_pk_add_f32 {h}, v[{60+2*j}:{61+2*j}], {h}")
        if j == 0: a(f"v_pk_mul_f32 v[42:43], {h}, {h}", f"v_pk_mul_f32 v[44:45], {h}, v[{WU}:{WU+1}]")
        else:
            a(f"v_pk_fma_f32 v[42:43], {h}, {h}, v[42:43]", f"v_pk_fma_f32 v[44:45], {h}, v[{WU+2*j}:{WU+2*j+1}], v[44:45]")
            a(f"v_pk_add_f32 v[40:41], {h}, " + (f"v[{X}:{X+1}]" if j == 1 else "v[40:41]"))
    a("v_add_f32 v42, v42, v43", "v_add_f32 v44, v44, v45", "v_add_f32 v40, v40, v41")
    a("v_mov_b32 v41, v40", "v_permlane16_swap_b32 v42, v44", "v_permlane16_swap_b32 v40, v41")
    a("v_add_f32 v42, v42, v44", "v_add_f32 v40, v40, v41")
    for r in (8, 4, 2, 1):
        a(f"v_add_f32_dpp v42, v42, v42 row_ror:{r} {DPPM}", f"v_add_f32_dpp v40, v40, v40 row_ror:{r} {DPPM}")
    a(f"v_mul_f32 v40, {f32(1.0/576)}, v40", "v_mov_b32 v44, v42")
    a("v_cvt_pk_bf16_f32 v41, 0, v40", "v_mul_f32 v40, v40, v40")
    a("v_permlane16_swap_b32 v42, v44")
    a(f"v_mov_b32 v43, {f32(1.0/576)}", "v_fma_f32 v42, v42, v43, -v40", f"v_fma_f32 v44, -v41, v{WS_}, v44", "v_max_f32 v42, 0, v42")
    a(f"v_cvt_pk_bf16_f32 v42, 0, v42", f"v_add_f32 v42, {f32(1e-5)}, v42")
    a(f"v_cvt_pk_bf16_f32 v42, 0, v42", "v_sqrt_f32 v42, v42")
    a(f"v_cvt_pk_bf16_f32 v42, 0, v42", "v_rcp_f32 v42, v42")
    a("v_mul_f32 v60, v44, v42")
    a("v_cvt_pk_bf16_f32 v60, v60, v60")
    a("v_ashrrev_i32 v61, 31, v60", "v_or_b32 v61, 0x80000000, v61", f"s_mov_b32 s{T3_}, 0xffff0000", "v_xor_b32 v60, v60, v61", f"v_and_or_b32 v60, v60, s{T3_}, v98")
    if KD == 2:
        a("v_mov_b32 v61, v60", "v_permlane32_swap_b32 v60, v61", "s_mov_b64 exec, 1")
        a(f"buffer_store_dwordx2 v[60:61], v99, s[{R3}:{R3+3}], s{T5_} offen sc1")
        a(f"ds_write_b8 v116, v{VONE} offset:{FL_KCNT}")
    else:
        a("s_mov_b32 exec_lo, 1", "s_mov_b32 exec_hi, 1")
        if KD:
            a(f"buffer_store_dword v60, v99, s[{R3}:{R3+3}], s{T5_} offen sc1")
            a(f"ds_write_b8 v116, v{VONE} offset:{FL_KCNT}")
        else: a(f"ds_write_b32 v99, v60 offset:{C_KEY}")
    a("s_mov_b64 exec, -1")
    stamp2(a, 4)
    a(f"s_setprio {ENV('L2PRIO', 2)}")
    if XT:
        a("v_max_u32 v62, v60, v61", f"v_readfirstlane_b32 s{T4_}, v62", f"s_cmp_ge_u32 s{T4_}, 0xC1000000", f"s_cselect_b32 s{R2_+2}, s{R2_+2}, 0", f"s_cselect_b32 s{S_G}, 1, 0")
    for j in range(9):
        rnd2(a, X + 2 * j)
    ln_stats(a, X, 40, 42, 44, 46, 48)
    for j in range(9):
        ln_apply_pair(a, X + 2 * j, 40, 42, 44, 10 + j)
        a(f"v_pk_add_f32 v[{X+2*j}:{X+2*j+1}], v[44:45], v[{X+2*j}:{X+2*j+1}]")
        if XCL != 2: a(f"v_min_u32 v{10+j}, -2, v{10+j}")
    a(f"v_cvt_pk_bf16_f32 v58, v{X+16}, v{X+17}")
    a("ds_write_b32 v108, v18", "ds_write_b32 v108, v58 offset:256", "ds_read_b128 v[64:67], v109")
    a(f"buffer_store_dwordx4 v[10:13], v115, s[{R2_}:{R2_+3}], 0 offen sc1")
    a(f"buffer_store_dwordx4 v[14:17], v115, s[{R2_}:{R2_+3}], 0 offen offset:512 sc1")
    for j in range(8):
        a(f"v_cvt_pk_bf16_f32 v{50+j}, v{X+2*j}, v{X+2*j+1}")
    a("s_mov_b64 exec, 0xffff")
    a("s_waitcnt lgkmcnt(0)")
    a(f"buffer_store_dwordx4 v[64:67], v111, s[{R2_}:{R2_+3}], 0 offen offset:1024 sc1")
    def out_st():
        a("s_mov_b64 exec, 0xffff0000")
        a(f"buffer_store_dwordx4 v[64:67], v111, s[{R1}:{R1+3}], 0 offen offset:1024 sc1")
        a("s_mov_b64 exec, -1")
        a(f"buffer_store_dwordx4 v[50:53], v115, s[{R1}:{R1+3}], 0 offen sc1")
        a(f"buffer_store_dwordx4 v[54:57], v115, s[{R1}:{R1+3}], 0 offen offset:512 sc1")
    WTD, BS0, BS1, BC0, BC1 = 80, 8, 9, 10, 11
    def b_addr():
        srd(a, R4, P_WS, PART_BYTES, WS_PART)
        a("v_bfe_u32 v16, v1, 2, 2", "v_lshl_add_u32 v16, v3, 3, v16", "v_mul_u32_u24 v16, 1152, v16", "v_and_b32 v17, 3, v1", "v_lshl_add_u32 v16, v17, 3, v16")
        a(f"s_lshl_b32 s{BC0}, s{S_WAVE}, 7", f"s_add_u32 s{BC1}, s{BC0}, {C_DOWN}", f"v_add_u32 v16, s{BC1}, v16")
        a("v_lshrrev_b32 v18, 2, v1", f"v_mul_u32_u24 v18, {PROW}, v18", "v_lshl_add_u32 v18, v17, 4, v18")
        a(f"s_mul_i32 s{BS1}, s{S_WAVE}, {16*PROW}", f"s_lshl_b32 s{BC1}, s{S_BLK}, 6", f"s_add_u32 s{BS1}, s{BS1}, s{BC1}")
        a(f"v_lshl_add_u32 v19, v17, 5, s{BC0}", "v_lshl_add_u32 v19, v3, 3, v19")
        a(f"s_mul_i32 s{BS0}, s{S_BLK}, {PROW}", f"s_lshl_b32 s{BC1}, s{S_WAVE}, 10", f"s_add_u32 s{BS0}, s{BS0}, s{BC1}")
        a(f"s_movk_i32 s{BC0}, 0x3f80", f"s_mov_b32 s{BC1}, 0x3f800000", "v_mov_b32 v28, 0", "v_mov_b32 v29, 0", "v_lshlrev_b32 v17, 4, v1")
    def b_frags():
        lds_wait(a, FL_DOWN, 20, "b4", sleep=ENV("BFS", 2))
        for jt in range(4):
            a(f"ds_read_b64_tr_b16 v[{WTD+4*jt}:{WTD+4*jt+1}], v16 offset:{32*jt}")
            a(f"ds_read_b64_tr_b16 v[{WTD+4*jt+2}:{WTD+4*jt+3}], v16 offset:{32*jt + 4608}")
        a("v_and_b32 v16, 7, v2", "v_lshlrev_b32 v16, 6, v16", "v_lshl_add_u32 v16, v3, 4, v16")
    a("s_mov_b64 exec, -1", "s_setprio 0")
    b_addr()
    a(f"s_cmp_ge_u32 s{S_FI}, 18", "s_cbranch_scc1 KS_LO")
    b_frags()
    def own_blank():
        a(f"s_mul_i32 s{T0_}, s{S_BLK}, {PROW}", f"s_add_u32 s{T0_}, s{T0_}, {hex(WS_PART)}", f"s_add_u32 s{R0}, s{P_WS}, s{T0_}", f"s_addc_u32 s{R0+1}, s{P_WS+1}, 0")
        a(f"s_cmp_lt_u32 s{S_FI}, 18", f"s_cselect_b32 s{R0+2}, 9216, 0", f"s_mov_b32 s{R0+3}, 0x20000", f"s_mul_i32 s{T0_}, s{S_WAVE}, 3072", "v_lshlrev_b32 v8, 4, v1")
        for d in range(4): a(f"v_mov_b32 v{60+d}, -1")
        for k in range(3): a(f"buffer_store_dwordx4 v[60:63], v8, s[{R0}:{R0+3}], s{T0_} offen offset:{1024*k} sc1")
    def flag(cnt, off):
        l = newlabel("NOF")
        a("s_waitcnt vmcnt(0)")
        a("s_mov_b64 exec, 1")
        a(f"ds_add_rtn_u32 v62, v{VZ}, v{VONE} offset:{cnt}")
        a(f"s_lshl_b32 s{T0_}, s2, 4", f"s_add_u32 s{T0_}, s{T0_}, {off}")
        a("s_waitcnt lgkmcnt(0)")
        a("v_cmp_eq_u32 vcc, 3, v62", "s_and_b64 exec, exec, vcc", f"s_cbranch_execz {l}")
        a(f"buffer_store_dword v{VONE}, v{VZ}, s[{R3}:{R3+3}], s{T0_} offen sc1")
        a(f"{l}:")
        a("s_mov_b64 exec, -1")
    if F3:
        if ENV("OD1", 0): a(f"s_sleep {ENV('OD1', 0)}")
        own_blank()
        flag(FL_KSEEN, 8192)
        a(f"s_sleep {ENV('OD2', 16)}", "s_branch KS_LO2")
        a("KS_LO:")
        a(f"s_sleep {ENV('OD3', 8)}")
        flag(FL_KSEEN, 8192)
        if RP:
            a(f"s_sub_u32 s{T1_}, s{S_FI}, 18", f"s_lshl_b32 s{T1_}, s{T1_}, 2", f"s_add_u32 s{T1_}, s{T1_}, s{S_WAVE}", f"s_cmp_ge_u32 s{T1_}, 32", "s_cbranch_scc1 KS_RPN")
            a(f"s_lshl_b32 s{T1_}, s{T1_}, 8", "v_lshlrev_b32 v8, 2, v1", "v_lshlrev_b32 v9, 7, v2", f"v_add_u32 v9, {2047*1152}, v9", f"s_movk_i32 s{T4_}, -1152")
            a(f"s_sleep {ENV('RPD', 8)}")
            a(f"buffer_load_dword v60, v8, s[{R3}:{R3+3}], s{T1_} offen sc1", "s_waitcnt vmcnt(0)", "v_add_u32 v60, 1, v60")
            for n in range(RP):
                if n: a("v_cmp_eq_u32 vcc, v60, v61", f"v_cndmask_b32 v60, v60, v{VZ}, vcc")
                for r in (8, 4, 2, 1): a(f"v_max_u32_dpp v61, v{60 if r == 8 else 61}, v{60 if r == 8 else 61} row_ror:{r} {DPPM}")
                a("v_add_u32 v62, -1, v61", "v_and_b32 v62, 0x7ff, v62", f"v_mad_i32_i24 v62, v62, s{T4_}, v9")
                a("s_mov_b32 exec_lo, 0x01ff01ff", "s_mov_b32 exec_hi, 0x01ff01ff")
                a(f"buffer_load_dword v63, v62, s[{R2_}:{R2_+3}], 0 offen sc1")
                a("s_mov_b64 exec, -1")
            if ENV("RPE", 2): a(f"s_sleep {ENV('RPE', 2)}")
            a("s_branch KS_LO2", "KS_RPN:")
        a(f"s_sleep {ENV('OD', 34) - ENV('OD3', 8) - 2}")
        a("KS_LO2:")
        out_st()
    else:
        a(f"s_sleep {ENV('OD', 24) - ENV('ODF', 2)}", "s_branch KS_LO2")
        a("KS_LO:")
        a(f"s_sleep {ENV('OD', 24)}")
        a("KS_LO2:")
        out_st()
        if not BT: own_blank()
    stamp2(a, 5)
    a("s_setprio 2")
    flag(FL_F2CNT, 12288 if F3 else 8192)
    stamp2(a, 2)
    a(f"s_cmp_lt_u32 s{S_FI}, 18", "s_cbranch_scc1 KS_B")
    a("s_waitcnt lgkmcnt(0)")
    endwave(a)
    a("KS_T:")
    a("s_setprio 0")
    a(f"s_cmp_ge_u32 s{S_WAVE}, 10", "s_cbranch_scc1 KS_PEND")
    srd(a, R3, P_WS, 16384, WS_KEYS)
    a(f"s_cmp_eq_u32 s{S_WAVE}, 9", "s_cbranch_scc1 KS_W9")
    b_addr()
    srd(a, R2_, P_WS, XBYTES, WS_X2)
    TGV, CKA = 8, 12
    a("v_and_b32 v6, 1, v1", "v_and_b32 v7, 1, v3", "v_lshl_add_u32 v6, v7, 1, v6", "v_lshlrev_b32 v6, 2, v6", f"ds_read_b32 v{TGV}, v6 offset:{FL_NONCE}")
    a(f"s_lshl_b32 s{T0_}, s{S_WAVE}, 11", f"s_add_u32 s{T0_}, s{T0_}, {C_XR - 4*2048}", f"v_add_u32 v{CKA}, s{T0_}, v17")
    a("s_waitcnt lgkmcnt(0)")
    for d in range(1, 4): a(f"v_lshrrev_b32 v{TGV+d}, {3*d}, v{TGV}")
    def chk(c, t):
        a(f"v_xor_b32 v{t}, v{TGV}, v{c}")
        for d in range(1, 4): a(f"v_bitop3_b32 v{t}, v{t}, v{TGV+d}, v{c+d} bitop3:0xf6")
        a(f"v_and_b32 v{t}, {hex(TAGM)}, v{t}")
    a(f"s_cmp_eq_u32 s{S_WAVE}, 8", "s_cbranch_scc1 KS_L2W")
    b_frags()
    lds_wait(a, C_SEL, 20, "nz", sleep=2)
    a("s_setprio 1")
    lds_wait(a, FL_XRDY, 20, "nz", sleep=1)
    a(f"ds_read_b128 v[20:23], v{CKA}", f"ds_read_b128 v[24:27], v{CKA} offset:1024")
    a("s_waitcnt lgkmcnt(1)"); chk(20, 13)
    a("s_waitcnt lgkmcnt(0)"); chk(24, 14)
    a("v_min_u32 v13, v13, v14")
    a("KS_CK:")
    a("v_cmp_eq_u32 vcc, 0, v13")
    if not ENV("XBAD", 0): a("s_cbranch_vccz KS_B")
    a(f"ds_write_b32 v{VZ}, v{VONE} offset:{FL_BAD}")
    a("s_branch KS_B")
    a("KS_L2W:")
    K, AD, BS, A1, A2, B1, B2, TA, TB, M2, OFF, OLD, C, T8, RA = 96, 40, 41, 42, 43, 44, 45, 46, 47, 56, 57, 58, 59, 60, 61
    x, y, w, t = (48, 49), (50, 51), (52, 53), (54, 55)
    a(f"s_movk_i32 s{T0_}, 4096", f"s_movk_i32 s{T4_}, -1152", f"s_mov_b32 s{T1_}, 0", f"v_mov_b32 v{OFF}, 0")
    a(f"v_and_b32 v{BS}, 1, v1", f"v_lshl_add_u32 v{BS}, v3, 1, v{BS}", f"v_lshlrev_b32 v{BS}, 4, v{BS}", f"v_add_u32 v{BS}, {2047*1152}, v{BS}")
    a("v_lshlrev_b32 v7, 1, v1", "v_and_b32 v7, 28, v7")
    if ENV("KWP", 1): lds_wait(a, FL_ZF, 20, "b4", sleep=2); a("s_setprio 3")
    lds_wait(a, FL_KCNT, 20, "b4", sleep=1)
    a("s_setprio 3")
    if ENV('KDELAY', 27): a(f"s_sleep {ENV('KDELAY', 27)}")
    stamp2(a, 4)
    a("s_branch KS_Q1", "KS_Q0:", f"s_sleep {ENV('KSLEEP', 1)}", "KS_Q1:")
    for j in range(8): a(f"buffer_load_dwordx4 v[{K+4*j}:{K+4*j+3}], v17, s[{R3}:{R3+3}], {'s%d' % T0_ if j >= 4 else 0} offen offset:{1024*(j&3)} sc1")
    guard(a)
    top2(a, K, A1, A2, B1, B2, TA, TB, x[0], x[1], True)
    a(f"v_cmp_eq_u32 vcc, -1, v{x[0]}", f"v_mov_b32 v{M2}, v{x[1]}")
    a("KS_QN:")
    net8(a, x, y, w, t, C, lambda: (a("s_cbranch_vccnz KS_Q0", f"s_cmp_eq_u32 s{T1_}, 1", f"s_mov_b32 m0, {C_XR}"), stamp2(a, 1)))
    a("s_cbranch_scc1 KS_QF2")
    a(f"v_and_b32 v{RA}, 0x7ff, v{C}", f"v_mad_i32_i24 v{RA}, v{RA}, s{T4_}, v{BS}")
    def row_dma(first=True):
        for k in range(9):
            if k or first: a(f"s_mov_b32 m0, {C_XR + 896*k}")
            a(f"buffer_load_dwordx4 v{RA}, s[{R2_}:{R2_+3}], 0 offen offset:{128*k} sc1 lds")
    if ENV("XBAD", 0) != 2: row_dma(False)
    stamp2(a, 2)
    mins = ["quad_perm:[2,3,0,1]", "row_half_mirror", "row_ror:8"]
    for k in range(32):
        a(f"v_sub_u32 v{K+k}, v{K+k}, v{M2}")
        if k % 4 == 0 and k < 12: a(f"v_min_u32_dpp v{T8}, v{T8 if k else C}, v{T8 if k else C} {mins[k//4]} {DPPM}")
        if k == 2: a(f"v_max3_u32 v{TB}, v{K}, v{K+1}, v{K+2}")
        elif k > 2 and k % 2 == 0: a(f"v_max3_u32 v{TB}, v{TB}, v{K+k-1}, v{K+k}")
    a(f"v_add_u32 v{OFF}, v{OFF}, v{M2}", f"v_max_u32 v{TB}, v{TB}, v{K+31}", f"v_add_u32 v{TB}, v{TB}, v{OFF}")
    a(f"v_cmp_gt_u32 vcc, v{TB}, v{T8}", "s_cbranch_vccnz KS_QF1")
    a(f"ds_write_b32 v7, v{C} offset:{C_SEL}")
    b_frags()
    a("s_waitcnt vmcnt(0)")
    a(f"ds_write_b32 v{VZ}, v{VONE} offset:{FL_XRDY}")
    stamp2(a, 3)
    a("s_setprio 1")
    a(f"ds_read_b128 v[20:23], v{CKA}")
    a("s_waitcnt lgkmcnt(0)"); chk(20, 13)
    a("s_branch KS_CK")
    a("KS_QF1:")
    guard(a)
    a(f"v_mov_b32 v{OLD}, v{C}")
    top2(a, K, A1, A2, B1, B2, TA, TB, x[0], M2, False)
    a(f"v_add_u32 v{x[0]}, v{x[0]}, v{OFF}", f"v_add_u32 v{x[1]}, v{M2}, v{OFF}", f"s_mov_b32 s{T1_}, 1", "s_mov_b64 vcc, 0")
    a.flush(3)
    a("s_branch KS_QN")
    a("KS_QF2:")
    a(f"v_mov_b32 v{x[0]}, 0", f"v_mov_b32 v{x[1]}, 0", "s_mov_b64 exec, 0x5555")
    a(f"v_max_u32 v{x[0]}, v{C}, v{OLD}", f"v_min_u32 v{x[1]}, v{C}, v{OLD}", "s_mov_b64 exec, -1", f"s_mov_b32 s{T1_}, 2", "s_mov_b64 vcc, 0", "s_waitcnt vmcnt(0)")
    a.flush(6)
    a("s_branch KS_QN")
    f2l = lambda d, ad, so: [f"buffer_load_dword v{d+k}, v{ad}, s[{R3}:{R3+3}], s{so} offen offset:{1024*k} sc1" for k in range(4)]
    a("KS_BR:")
    a("s_mov_b64 exec, -1")
    a(f"s_cmp_lg_u32 s{S_WAVE}, 8", "s_cbranch_scc1 KS_BR1")
    a(f"s_movk_i32 s{T0_}, 0x2000")
    a.flush(8)
    zpoll(a, f2l(20, 17, T0_), [20, 21, 22, 23], 2)
    row_dma()
    a("s_waitcnt vmcnt(0)")
    a("s_barrier")
    a(f"ds_write_b32 v{VZ}, v{VZ} offset:{FL_BAD}")
    a("s_branch KS_B")
    a("KS_BR1:")
    a("s_barrier")
    a("s_branch KS_B")
    a("KS_W9:")
    a("v_lshlrev_b32 v33, 4, v1", f"s_movk_i32 s{T0_}, 0x2000", "v_and_b32 v7, 7, v1", "v_lshlrev_b32 v7, 2, v7")
    srd(a, R0, P_WS, 0x240000, WS_ZB1)
    srd(a, R1, P_X, XBYTES)
    a("v_bfe_u32 v43, v1, 3, 2", f"s_lshl_b32 s{T1_}, s{S_BLK}, 2", f"v_add_u32 v43, s{T1_}, v43")
    a("v_bfe_u32 v40, v43, 4, 1", "v_and_b32 v41, 3, v1", "v_lshl_add_u32 v40, v40, 2, v41", "v_lshlrev_b32 v40, 2, v40")
    a("v_and_b32 v41, 0x3cf, v43", "v_bfe_u32 v42, v43, 5, 1", "v_lshl_add_u32 v41, v42, 4, v41", "v_bfe_u32 v42, v1, 2, 1", "v_lshl_add_u32 v41, v42, 5, v41")
    a("v_lshrrev_b32 v42, 4, v41", "v_lshlrev_b32 v42, 8, v42", "v_lshl_add_u32 v42, v40, 3, v42", "v_and_b32 v43, 15, v41", "v_lshl_add_u32 v42, v43, 1, v42")
    lds_wait(a, C_SEL, 12, "nz", addr=7, sleep=1)
    stamp2(a, 2)
    a(f"ds_read_b32 v19, v40 offset:{C_SEL}")
    a("s_waitcnt lgkmcnt(0)")
    a("v_and_b32 v14, 0x7ff, v19", "v_sub_u32 v14, 2047, v14")
    a("v_mul_u32_u24 v23, 1152, v14", "v_lshl_add_u32 v23, v41, 1, v23")
    a(f"buffer_load_ushort v17, v23, s[{R1}:{R1+3}], 0 offen")
    a("v_lshrrev_b32 v15, 9, v14", "v_bfe_u32 v16, v14, 6, 2", "v_lshl_add_u32 v15, v15, 2, v16", "v_bfe_u32 v16, v14, 2, 2", "v_lshl_add_u32 v15, v15, 2, v16")
    a("v_bfe_u32 v16, v14, 4, 1")
    a("v_bfe_u32 v24, v14, 8, 1", "v_and_b32 v25, 3, v14", "v_lshl_add_u32 v24, v24, 2, v25", "v_lshlrev_b32 v24, 1, v24")
    a("v_bfe_u32 v25, v14, 5, 1", "v_lshl_add_u32 v24, v25, 5, v24")
    a("v_lshl_add_u32 v25, v15, 1, v16", "v_lshl_add_u32 v25, v25, 14, v24")
    a("v_lshrrev_b32 v26, 1, v41", "v_lshl_add_u32 v25, v26, 6, v25", "v_xor_b32 v26, v41, v16", "v_not_b32 v26, v26", "v_and_b32 v26, 1, v26", "v_lshl_add_u32 v25, v26, 4, v25")
    a("v_lshl_add_u32 v26, v15, 12, v24", "v_lshl_add_u32 v26, v16, 4, v26", "v_lshl_add_u32 v26, v41, 6, v26", f"v_add_u32 v26, {0x200000 - 512*64}, v26")
    if SWZ:
        a("v_lshl_add_u32 v27, v16, 6, v15", "v_lshlrev_b32 v27, 7, v27", "v_xor_b32 v25, v27, v25", "v_and_b32 v27, 0xf80, v27", "v_xor_b32 v26, v27, v26")
    a("v_cmp_gt_u32 vcc, 0x200, v41", "v_cndmask_b32 v25, v26, v25, vcc")
    a(f"buffer_load_ushort v18, v25, s[{R0}:{R0+3}], 0 offen sc1")
    a("v_ashrrev_i32 v22, 31, v19", "v_not_b32 v22, v22", "v_or_b32 v22, 0x80000000, v22", "v_xor_b32 v22, v19, v22", "v_and_b32 v22, 0xffff0000, v22")
    a(f"v_mul_f32 v22, {f32(-LOG2E)}, v22", "v_exp_f32 v22, v22", "v_add_f32 v22, 1.0, v22", "v_rcp_f32 v22, v22")
    a(f"v_cvt_pk_bf16_f32 v22, 0, v22")
    srd(a, R2_, P_WS, 64, WS_IDX)
    srd(a, R1, P_OUT, XBYTES)
    if F3:
        for l in f2l(8, 33, T0_): a(l)
    a("s_cmp_lg_u32 s2, 0", "s_cbranch_scc1 KS_W9B")
    if ENV("IDXW", 1): a(f"buffer_store_dword v12, v7, s[{R2_}:{R2_+3}], 0 offen")
    a("s_branch KS_W9B")
    a("KS_W9R:")
    a("s_barrier")
    a("KS_W9B:")
    a("s_barrier")
    a(f"ds_read_b32 v13, v{VZ} offset:{FL_BAD}", f"ds_read_u16 v20, v42 offset:{C_XR}")
    if ENV("F2D", 0): a(f"s_sleep {ENV('F2D', 0)}")
    a("s_waitcnt lgkmcnt(0)")
    a("v_cmp_ne_u32 vcc, 0, v13", "s_cbranch_vccnz KS_W9R")
    a("s_setprio 2")
    if F3:
        a("s_branch KS_F3B", "KS_F3A:", f"s_sleep {ENV('F2SLEEP', 2)}")
        for l in f2l(8, 33, T0_): a(l)
        a("KS_F3B:")
        guard(a)
        a("s_waitcnt vmcnt(0)", "v_max3_u32 v44, v8, v9, v10", "v_max_u32 v44, v44, v11", "v_cmp_eq_u32 vcc, -1, v44", "s_cbranch_vccnz KS_F3A")
        a(f"ds_write_b32 v{VZ}, v{VONE} offset:{FL_ROWSOK}")
        stamp2(a, 1)
        a(f"s_movk_i32 s{T0_}, 0x3000", f"s_sleep {ENV('F3D', 12)}")
        zpoll(a, f2l(8, 33, T0_), [8, 9, 10, 11], ENV("F2SLEEP", 2))
    else:
        zpoll(a, f2l(8, 33, T0_), [8, 9, 10, 11], ENV("F2SLEEP", 2))
        a(f"ds_write_b32 v{VZ}, v{VONE} offset:{FL_ROWSOK}")
        stamp2(a, 1)
    a("v_lshlrev_b32 v17, 16, v17", "v_lshlrev_b32 v18, 16, v18", "v_add_f32 v17, v17, v18", "v_cvt_pk_bf16_f32 v17, v17, v17")
    a("v_and_b32 v21, 0xffff0000, v17", "v_lshlrev_b32 v20, 16, v20")
    a("v_lshlrev_b32 v14, 2, v1", f"v_add_u32 v14, {C_SIDE}, v14", "s_mov_b32 exec_lo, -1", "s_mov_b32 exec_hi, 0", "s_setprio 3")
    stamp2(a, 3)
    a("s_barrier")
    for g in range(4): a(f"ds_read2_b32 v[{32+2*g}:{33+2*g}], v14 offset0:{64*g} offset1:{64*g + 32}")
    a("ds_read_b32 v40, v14 offset:1024")
    a("s_waitcnt lgkmcnt(3)", "v_pk_add_f32 v[32:33], v[32:33], v[34:35]")
    a("s_waitcnt lgkmcnt(1)", "v_pk_add_f32 v[36:37], v[36:37], v[38:39]", "v_add_f32 v32, v32, v33")
    a("s_waitcnt lgkmcnt(0)", "v_add_f32 v36, v36, v37", "v_add_f32 v32, v32, v40", "v_add_f32 v8, v32, v36")
    a(f"v_cvt_pk_bf16_f32 v8, 0, v8")
    a("v_mul_f32 v8, v8, v22", f"v_cvt_pk_bf16_f32 v8, 0, v8")
    a("v_add_f32 v8, v8, v20", f"v_cvt_pk_bf16_f32 v8, 0, v8")
    a("v_add_f32 v8, v8, v21", "v_cvt_pk_bf16_f32 v8, v8, v8")
    a(f"buffer_store_short v8, v23, s[{R1}:{R1+3}], 0 offen {MOD('FM', '')}")
    endwave(a)
    a("KS_B:")
    a(f"s_setprio {ENV('BPRIO', 2)}")
    a("s_waitcnt lgkmcnt(0)")
    a("s_barrier")
    a(f"ds_read_b128 v[20:23], v16 offset:{C_ACT}", f"ds_read_b32 v30, v{VZ} offset:{FL_BAD}")
    a("s_waitcnt lgkmcnt(1)")
    for j in (0, 2, 1, 3):
        a(f"v_mfma_f32_16x16x32_bf16 v[{32+4*j}:{35+4*j}], v[20:23], v[{WTD+4*j}:{WTD+4*j+3}], 0")
    a("s_waitcnt lgkmcnt(0)")
    a("v_cmp_ne_u32 vcc, 0, v30")
    for hi in range(2):
        a(f"s_mov_b32 exec_lo, {hi - 1}", f"s_mov_b32 exec_hi, {-hi}")
        if hi == 0: a("s_cbranch_vccnz KS_BR")
        for d in range(4):
            o = 32 + 4 * hi + 8 * (d >> 1) + 2 * (d & 1)
            a(f"v_cvt_pk_bf16_f32 v{24+d}, v{o}, v{o+1}")
    a("s_mov_b64 exec, -1")
    for d in range(4): a(f"v_min_u32 v{24+d}, -2, v{24+d}")
    a(f"buffer_store_dwordx4 v[24:27], v17, s[{R4}:{R4+3}], s{BS0} offen sc1")
    stamp2(a, 8)
    a(f"s_sleep {PE}")
    if not BT: lds_wait(a, FL_ROWSOK, 30, "nz")
    stamp2(a, 6)
    zpoll(a, [f"buffer_load_dwordx4 v[32:35], v18, s[{R4}:{R4+3}], s{BS1} offen sc1"], list(range(32, 36)), ENV("PSLEEP", 1))
    stamp2(a, 7)
    a("v_permlane32_swap_b32 v32, v34", "v_permlane32_swap_b32 v33, v35")
    a("v_permlane16_swap_b32 v32, v33", "v_permlane16_swap_b32 v34, v35")
    for d in range(4): a(f"v_dot2c_f32_bf16 v28, s{BC0}, v{32+d}", f"v_dot2c_f32_bf16 v29, s{BC1}, v{32+d}")
    for r in (8, 4): a(f"v_add_f32_dpp v28, v28, v28 row_ror:{r} {DPPM}", f"v_add_f32_dpp v29, v29, v29 row_ror:{r} {DPPM}")
    a("s_mov_b32 exec_lo, 0x000f000f", "s_mov_b32 exec_hi, 0x000f000f")
    a(f"ds_write_b64 v19, v[28:29] offset:{C_SIDE}")
    a("s_waitcnt lgkmcnt(0)")
    a("s_barrier")
    endwave(a)
    a("KS_G0:")
    a(f"ds_write_b8 v15, v{VONE} offset:{FL_G+4}")
    a("s_setprio 0")
    if RM: a(f"s_cmp_ge_u32 s{S_FI}, 18", "s_cbranch_scc1 KS_X5")
    a("KS_G:")
    a("s_waitcnt vmcnt(0)")
    a("KS_GN:")
    stamp(a, 5)
    a(f"s_sub_u32 s{S_G}, s{S_WAVE}, 12", f"s_and_b32 s{T3_}, s{S_G}, 1")
    a(f"s_cselect_b32 s{R2_}, s{P_UP}, s{P_GATE}", f"s_cselect_b32 s{R2_+1}, s{P_UP+1}, s{P_GATE+1}", f"s_mov_b32 s{R2_+2}, {hex(WBYTES)}", f"s_mov_b32 s{R2_+3}, 0x20000")
    a("v_lshrrev_b32 v6, 3, v1", "v_lshrrev_b32 v7, 5, v1", "v_xor_b32 v6, v6, v7", "v_and_b32 v6, 1, v6", f"v_lshl_add_u32 v6, s{T3_}, 1, v6", "v_xor_b32 v6, v6, v1", "v_and_b32 v6, 3, v6")
    a("v_lshrrev_b32 v7, 2, v1", "v_mul_u32_u24 v7, 9216, v7", "v_lshl_add_u32 v46, v6, 4, v7", f"s_lshl_b32 s{T4_}, s{S_BLK}, 6", f"v_mov_b32 v6, s{S_G}")
    a(f"s_mul_i32 s{T5_}, s{T3_}, 36864", f"s_add_u32 s{T5_}, s{T5_}, {C_GU}")
    srd(a, R1, P_DOWN, WBYTES)
    a("v_lshlrev_b32 v8, 4, v1", f"s_mul_i32 s{T0_}, s{S_BLK}, 36864", f"s_mul_i32 s{T1_}, s{S_G}, 9216", f"s_add_u32 s{T0_}, s{T0_}, s{T1_}", f"s_add_u32 s{T1_}, s{T1_}, {C_DOWN}")
    a(f"s_cmp_lt_u32 s{S_I}, 8", f"s_cselect_b32 s{T2_}, 0, {FL_UTOK - (FL_G + 36)}", f"v_mov_b32 v9, s{T2_}")
    lds_wait(a, FL_G + 36, 10, "b4", addr=9, sleep=2)
    a(f"s_cmp_ge_u32 s{S_I}, 8", "s_cselect_b64 vcc, -1, 0", "s_cbranch_scc1 KS_GD1" if NDE == 9 else "s_cbranch_scc1 KS_GD0")
    DSL = ENV("DSL", -1)
    if DR: a("s_branch KS_GD1")
    if DSL >= 0:
        a(f"s_cmp_lt_u32 s{S_G}, 2", "s_cbranch_scc1 KS_GD1")
        a(f"s_mul_i32 s{T0_}, s{S_BLK}, 36864", f"s_mul_i32 s{T1_}, s{T3_}, 18432", f"s_add_u32 s{T0_}, s{T0_}, s{T1_}", f"s_add_u32 s{T1_}, s{T1_}, {C_DOWN}")
    if ENV("DUW", 0): lds_wait(a, {1: FL_UISS, 2: FL_UF}[ENV("DUW", 0)], 10, "b4", sleep=2)
    for k in range(18 if DSL >= 0 else 9):
        if k == NDE: a("KS_GD0:")
        if k % 4 == 0 or k == NDE:
            a(f"s_add_u32 m0, s{T1_}, {1024*(k&~3)}", f"s_add_u32 s{T2_}, s{T0_}, {1024*(k&~3)}")
        a(f"buffer_load_dwordx4 v8, s[{R1}:{R1+3}], s{T2_} offen offset:{1024*(k&3)} {MOD('DM', 'nt')} lds")
        if DSL > 0: a(f"s_sleep {DSL}")
    a("KS_GD1:")
    GP = ENV("GP", 0)
    if GP == 1:
        a(f"s_lshr_b32 s{T0_}, s{S_G}, 1", f"s_xor_b32 s{T0_}, s{T0_}, s{S_BLK}", f"s_and_b32 s{T0_}, s{T0_}, 1", f"s_mul_i32 s{T1_}, s{T0_}, {288*9216}", f"s_add_u32 s{T4_}, s{T4_}, s{T1_}")
        a(f"s_mul_i32 s{T1_}, s{T0_}, 18432", f"s_add_u32 s{T5_}, s{T5_}, s{T1_}")
    a(f"s_cmp_ge_u32 s{S_G}, 2", "s_cbranch_scc1 KS_GL")
    def direct(n, sl):
        for k in range(n):
            if k: a(f"s_add_u32 s{T4_}, s{T4_}, {16*9216}")
            a(f"buffer_load_dwordx4 v[{GW+4*k}:{GW+4*k+3}], v46, s[{R2_}:{R2_+3}], s{T4_} offen {MOD('GMOD', 'nt')}")
            if ENV("GSK", 0) and n == 18:
                if k + 1 == ENV("GSK", 0): lds_wait(a, FL_UF, 10, "b4", sleep=2)
                elif k < n - 1 and ENV("GSA" if k < ENV("GSK", 0) else "GSB", 2): a(f"s_sleep {ENV('GSA' if k < ENV('GSK', 0) else 'GSB', 2)}")
            elif ENV("GSI", -1) >= 0 and k < n - 1:
                l = newlabel("GS")
                if ENV("GSI", -1): a(f"s_sleep {ENV('GSI', -1)}")
                a(f"s_cbranch_vccz {l}", f"s_sleep {sl - ENV('GSI', -1)}", f"{l}:")
            elif ENV("GZP", 0) and n == 18 and ENV("GZK", 8) <= k < n - 1:
                l = newlabel("GZ")
                a(f"s_sleep {sl - 2}", f"ds_read_b32 v10, v{VZ} offset:{FL_S6}", "s_waitcnt lgkmcnt(0)", f"v_and_b32 v10, {hex(ENV('GZM', 0x7fffffff))}, v10", "v_cmp_eq_u32 vcc, 0, v10", f"s_cbranch_vccnz {l}")
                lds_wait(a, {1: FL_ZDONE + 4, 2: FL_ZF}[ENV("GZP", 0)], 10, "b4")
                a(f"{l}:")
            elif ENV("GAD", 0) and n == 18 and ENV("GAD", 0) <= k < n - 1:
                l = newlabel("GA")
                a(f"s_sleep {ENV('GAS', 2)}", f"ds_read_u8 v10, v{VZ} offset:{FL_S6 + ENV('GAB', 3)}", "s_waitcnt lgkmcnt(0)", "v_cmp_ne_u32 vcc, 0, v10", f"s_cbranch_vccnz {l}", f"s_sleep {sl - 1 - ENV('GAS', 2)}", f"{l}:")
            elif n == 18 and k < n - 1 and os.environ.get("GSLL"):
                v = eval(os.environ["GSLL"])[k]
                if v: a(f"s_sleep {v}")
            elif sl and k < n - 1: a(f"s_sleep {sl}")
        a(f"v_add_u32 v8, s{T5_}, v8")
        a("s_waitcnt vmcnt(0)")
        a(f"ds_write_b8 v6, v{VONE} offset:{FL_DOWN}")
        stamp(a, 7)
        lds_wait(a, FL_ZISS if ENV("GDI", 0) and n != 18 else FL_ZDONE + 4, 10, "b4", sleep=2)
    GM2 = ENV("GM2", 9)
    if GP == 2:
        a(f"s_and_b32 s{T0_}, s{S_BLK}, 1", f"s_mul_i32 s{T1_}, s{T0_}, {GM2*16*9216}", f"s_sub_u32 s{T2_}, s{T4_}, s{T1_}", f"s_add_u32 s{T4_}, s{T4_}, s{T1_}", f"s_add_u32 s{T2_}, s{T2_}, {GM2*16*9216}")
        a(f"s_mul_i32 s{T1_}, s{T0_}, {GM2*1024}", f"v_add_u32 v8, s{T5_}, v8", f"v_subrev_u32 v9, s{T1_}, v8", f"v_add_u32 v8, s{T1_}, v8")
        for k in range(18):
            t = T4_ if k < GM2 else T2_
            if k not in (0, GM2): a(f"s_add_u32 s{t}, s{t}, {16*9216}")
            a(f"buffer_load_dwordx4 v[{GW+4*k}:{GW+4*k+3}], v46, s[{R2_}:{R2_+3}], s{t} offen {MOD('GMOD', '') if k < GM2 else MOD('GMOD2', '')}")
            if k < GM2 and ENV("GTCH", 0): a(f"buffer_load_dword v47, v46, s[{R2_}:{R2_+3}], s{t} offen sc1")
            sl = ENV("GS1", 8) if k < GM2 - 1 else ENV("GSM", 8) if k == GM2 - 1 else ENV("GS2", 2) if k < 17 else 0
            if k == GM2 - 1 and ENV("GSU", 0): lds_wait(a, FL_UF, 10, "b4", sleep=2)
            if sl: a(f"s_sleep {sl}")
        a("s_waitcnt vmcnt(0)")
        a(f"ds_write_b8 v6, v{VONE} offset:{FL_DOWN}")
        stamp(a, 7)
        lds_wait(a, FL_ZDONE + 4, 10, "b4", sleep=2)
        for k in range(18): a(f"ds_write_b128 v{8 if k < GM2 else 9}, v[{GW+4*k}:{GW+4*k+3}] offset:{1024*k}")
    else:
        direct(18, GSL)
        if ENV("GWW", 2): lds_wait(a, {1: FL_ZF, 2: FL_KCNT}[ENV("GWW", 2)], 10, "b4", sleep=2)
        if ENV("GWD", 0): a(f"s_sleep {ENV('GWD', 0)}")
        for k in range(18): a(f"ds_write_b128 v8, v[{GW+4*k}:{GW+4*k+3}] offset:{1024*k}")
    a("s_branch KS_G4")
    a("KS_GL:")
    if GP != 1: a(f"s_add_u32 s{T4_}, s{T4_}, {288*9216}", f"s_add_u32 s{T5_}, s{T5_}, 18432")
    if ENV("GED", 0): a(f"s_sleep {ENV('GED', 0)}")
    direct(GE, ENV("GSL2", GSL * 18 // max(GE, 1)))
    if ENV("GLD", 0): a(f"s_sleep {ENV('GLD', 0)}")
    if ENV("GLZ", 2):
        if ENV("GLZ", 2) in (2, 4): a(f"s_cmp_ge_u32 s{S_I}, 8", "s_cbranch_scc1 KS_GLZ")
        if ENV("GLZ", 2) == 5: a(f"s_lshl_b32 s{T0_}, s{S_G}, 5", f"s_add_u32 s{T0_}, s{T0_}, s{S_I}", f"s_sub_u32 s{T0_}, s{T0_}, {64 + 8}", f"s_cmp_lt_u32 s{T0_}, 24", "s_cbranch_scc1 KS_GLZ")
        lds_wait(a, FL_ZF if ENV("GLZ", 2) <= 2 else FL_KCNT, 10, "b4" if ENV("GLZM", 1) else "nz", sleep=ENV("GLZS", 2))
        a("KS_GLZ:")
    a(f"s_setprio {ENV('GLP', 1)}")
    if GP == 2 and GM2 > 9:
        assert not GE
        a(f"s_and_b32 s{T0_}, s{S_BLK}, 1", f"s_mul_i32 s{T1_}, s{T0_}, {GM2*16*9216}", f"s_sub_u32 s{T2_}, s{T4_}, s{T1_}", f"s_mul_i32 s{T1_}, s{T0_}, {GM2*1024}", f"s_sub_u32 s{T3_}, s{T5_}, s{T1_}")
        for k in range(18):
            g, l = (T2_, T3_) if k < 2 * GM2 - 18 else (T4_, T5_)
            a(f"s_add_u32 m0, s{l}, {1024*k}", f"s_add_u32 s{T0_}, s{g}, {16*9216*k}")
            a(f"buffer_load_dwordx4 v46, s[{R2_}:{R2_+3}], s{T0_} offen lds")
    else:
        for k in range(GE, 18):
            j = k - GE
            if j % 4 == 0: a(f"s_add_u32 m0, s{T5_}, {1024*k}")
            if k: a(f"s_add_u32 s{T4_}, s{T4_}, {16*9216 - (1024 if j else 0) + (4096 if j and j % 4 == 0 else 0)}")
            a(f"buffer_load_dwordx4 v46, s[{R2_}:{R2_+3}], s{T4_} offen offset:{1024*(j&3)} {MOD('GLM', '')} lds")
            if ENV("GLS", 0) and k < 17 and (k + 1) % ENV("GLN", 1) == 0: a(f"s_sleep {ENV('GLS', 0)}")
    stamp(a, 6)
    a("s_setprio 0")
    for k in range(GE): a(f"ds_write_b128 v8, v[{GW+4*k}:{GW+4*k+3}] offset:{1024*k}")
    a("s_waitcnt vmcnt(0)")
    stamp(a, 8)
    a("KS_G4:")
    a(f"ds_write_b8 v6, v{VONE} offset:{FL_GISS}")
    a("v_lshrrev_b32 v6, 3, v1", "v_xor_b32 v6, v6, v3", "v_and_b32 v6, 1, v6", "v_and_b32 v7, 2, v1", "v_or_b32 v6, v6, v7", f"v_xor_b32 v6, s{S_G}, v6")
    a("v_mul_u32_u24 v7, 18432, v7", "v_lshl_add_u32 v7, v6, 4, v7", "v_and_b32 v6, 1, v1", "v_lshl_add_u32 v7, v6, 3, v7")
    a("v_bfe_u32 v6, v1, 2, 2", "v_lshl_add_u32 v6, v3, 3, v6", "v_lshl_add_u32 v7, v6, 6, v7", f"v_add_u32 v8, {C_GU}, v7")
    a("v_and_b32 v9, 7, v1", "v_lshrrev_b32 v10, 1, v3", "v_and_b32 v11, 1, v3")
    a("v_lshlrev_b32 v6, 5, v9", "v_lshl_add_u32 v6, v10, 8, v6", "v_lshl_add_u32 v6, v11, 4, v6", f"v_add_u32 v6, {C_XR}, v6")
    a(f"s_lshl_b32 s{T0_}, s{S_G}, 4", f"v_lshl_add_u32 v7, v9, 6, s{T0_}", "v_lshl_add_u32 v7, v11, 3, v7", "v_lshl_add_u32 v7, v10, 2, v7", "v_bfe_u32 v9, v1, 3, 1", "v_lshl_add_u32 v7, v9, 1, v7")
    lds_wait(a, FL_GISS, 10, "b4", sleep=2)
    lds_wait(a, FL_KCNT, 10, "b4", sleep=2)
    if ENV("GTD", 2): a(f"s_sleep {ENV('GTD', 2)}")
    for ks in range(18):
        for i in range(2): a(f"ds_read_b64_tr_b16 v[{GW+4*ks+2*i}:{GW+4*ks+2*i+1}], v8 offset:{2048*ks + 256*i}")
    stamp2(a, 3)
    lds_wait(a, C_SEL, 10, "nz", sleep=2)
    a(f"s_setprio {ENV('GPRIO', 3)}")
    NB, N0, GA, NACC = 10, ENV("GN0", 4), 120, ENV("NACC", 2)
    XF = lambda ks: 8 + 4 * (ks % NB)
    a("KS_GC:")
    a("s_mov_b32 exec_lo, 0x00ff00ff", "s_mov_b32 exec_hi, 0x00ff00ff")
    a("KS_GW:")
    tr = LdsTrack(a); ids = {}
    a(f"ds_read_b32 v0, v{VZ} offset:{FL_XRDY}")
    rd = lambda ks: ids.__setitem__(ks, tr.issue(f"ds_read_b128 v[{XF(ks)}:{XF(ks)+3}], v6 offset:{512*ks}"))
    for ks in range(N0): rd(ks)
    guard(a)
    a(f"s_waitcnt lgkmcnt({N0})")
    a("v_cmp_eq_u32 vcc, 0, v0", "s_cbranch_vccnz KS_GW")
    stamp2(a, 1)
    nx = N0
    for ks in range(18):
        tr.wait(ids[ks])
        ac = GA + 4 * (ks % NACC)
        a(f"v_mfma_f32_16x16x32_bf16 v[{ac}:{ac+3}], v[{GW+4*ks}:{GW+4*ks+3}], v[{XF(ks)}:{XF(ks)+3}], " + ("0" if ks < NACC else f"v[{ac}:{ac+3}]"))
        for _ in range(2):
            if nx < 18 and nx - NB <= ks: rd(nx); nx += 1
    a("s_mov_b64 exec, -1")
    if NACC == 2: a(f"v_pk_add_f32 v[{GA}:{GA+1}], v[{GA}:{GA+1}], v[{GA+4}:{GA+5}]", f"v_pk_add_f32 v[{GA+2}:{GA+3}], v[{GA+2}:{GA+3}], v[{GA+6}:{GA+7}]")
    a(f"v_permlane32_swap_b32 v{GA+1}, v{GA+3}", f"v_permlane32_swap_b32 v{GA}, v{GA+2}")
    a(f"v_mov_b32_dpp v{GA}, v{GA+1} row_shr:8 row_mask:0xf bank_mask:0xc ; nodst", f"v_mov_b32_dpp v{GA+2}, v{GA+3} row_shr:8 row_mask:0xf bank_mask:0xc ; nodst")
    g_, u_, t_ = GA, GA + 2, GA + 1
    a(f"v_cvt_pk_bf16_f32 v{g_}, 0, v{g_}", f"v_mul_f32 v{t_}, {f32(-LOG2E)}, v{g_}", f"v_exp_f32 v{t_}, v{t_}", f"v_cvt_pk_bf16_f32 v{u_}, 0, v{u_}", f"v_add_f32 v{t_}, 1.0, v{t_}", f"v_rcp_f32 v{t_}, v{t_}", f"v_mul_f32 v{t_}, v{g_}, v{t_}")
    a(f"v_cvt_pk_bf16_f32 v{t_}, 0, v{t_}")
    a(f"v_mul_f32 v{t_}, v{t_}, v{u_}", f"v_cvt_pk_bf16_f32 v{t_}, v{t_}, v{t_}")
    a(f"ds_write_b16 v7, v{t_} offset:{C_ACT}")
    stamp2(a, 2)
    a("s_waitcnt lgkmcnt(0)")
    a("s_barrier")
    a("s_setprio 0")
    a(f"ds_read_b32 v0, v{VZ} offset:{FL_BAD}")
    a("s_waitcnt lgkmcnt(0)")
    a("v_cmp_eq_u32 vcc, 0, v0", "s_cbranch_vccnz KS_PEND")
    a("s_barrier")
    a("s_branch KS_GC")
    a("KS_PEND:")
    stamp_end(a)
    spin_end(a)
    a("KS_ABORT:")
    a("KS_END:")
    a("s_endpgm")
    return f""".amdhsa_kernel {label}
  .amdhsa_next_free_vgpr 128
  .amdhsa_next_free_sgpr {NSGPR}
  .amdhsa_accum_offset 128
  .amdhsa_group_segment_fixed_size 0
  .amdhsa_kernarg_size 136
  .amdhsa_user_sgpr_count 2
  .amdhsa_user_sgpr_kernarg_segment_ptr 1
  .amdhsa_system_sgpr_workgroup_id_x 1
  .amdhsa_float_denorm_mode_32 3
.end_amdhsa_kernel
"""

def main():
    hdr = open(f"/code/{NAME}.s.ref").read().split("; Override launch geometry")[0]
    out = hdr
    out += f"; @launch grid=(256,1,1) block=(1024,1,1) lds={LDS_BYTES}\n"
    out += '.amdgcn_target "amdgcn-amd-amdhsa--gfx950"\n.text\n'
    a = Asm()
    d = gen(a)
    out += a.text()
    out += '.section .rodata,"a"\n.p2align 6\n' + d
    path = sys.argv[1] if len(sys.argv) > 1 else "ks.s"
    open(path, "w").write(out)
    print("wrote", path, len(out))

if __name__ == "__main__":
    main()
```

```python
import sys, struct, math, os
sys.path.insert(0, "gen")
from asmlib import Asm

NAME = "sequential_preLN__ssm_conv_s4__moe_arch_mod__prompt"
L, D, N, F = 2048, 576, 128, 4608
XBYTES = L * D * 2
WS_UT = 0x000000
WS_X2 = 0x3C0000
WS_ZB1 = 0x600000
WS_ZB2 = 0x800000
WS_KEYS = 0x840000
WS_PART = 0x850000
WS_CLR, CLR_WG = 0x600000, 18560
CLRP_WG = 23744
WS_FLAG1 = 0xB00000
TAGM = 0x00070007
WS_IDX = 0xB10000
WS_KT = 0xB20000
WS_DBG = 0xC00000
XCL = int(os.environ.get("XCL", "2"))
if XCL == 1: WS_CLR, CLR_WG = WS_X2, 36992
if XCL == 2: WS_X2 = WS_UT
NOCLR = int(os.environ.get("NOCLR", "0"))
if NOCLR == 1: WS_CLR, CLR_WG = WS_ZB2, 2176
if NOCLR >= 2: WS_CLR = WS_ZB2
if NOCLR == 2: WS_PART = 0x1000000
WSB = int(os.environ.get("WSB", "0")) << 20
WS_UT += WSB; WS_X2 += WSB; WS_ZB1 += WSB; WS_ZB2 += WSB; WS_KEYS += WSB; WS_PART += WSB; WS_CLR += WSB; WS_FLAG1 += WSB; WS_IDX += WSB; WS_KT += WSB
WS_STAMP = 0x8000000
PART_BYTES = 144 * (4608 * 4 + 128)
C_FL, C_CAND, C_SEL, C_KEY, C_PAR, C_ACT, C_SIDE, C_RED2 = 0, 256, 768, 800, 832, 1024, 1536, 2048
C_U, U_SIZE = 3072, 4672
C_LNB = C_U + 3 * U_SIZE
C_XR = C_LNB
C_RED = C_LNB + 9280
G_BASE, G_SIZE = 35840, 36672
C_STG = G_BASE + 2 * G_SIZE + 36864
LDS_BYTES = C_STG + 8192
FL_LN1, FL_LNACK, FL_KCNT, FL_UF, FL_ZF, FL_KACK, FL_ROWSOK, FL_XRDY, FL_PARAM, FL_DOWN, FL_ZDONE = 0, 8, 12, 16, 20, 24, 28, 32, 36, 40, 48
FL_G = 64
FL_S6 = 160
FL_ZISS = 240
FL_F2CNT, FL_INIT, FL_CLROK, FL_GISS, FL_KSEEN, FL_UTOK, FL_PRE, FL_NONCE = 176, 180, 188, 192, 196, 200, 208, 224
KG_ROW = 544
KG_T = [0, 16 * KG_ROW, 32 * KG_ROW, 41 * KG_ROW]
R_WS3 = 0
R_WS5 = R_WS3 + 193 * 16
R_WS7 = R_WS5 + 193 * 16
R_WS9 = R_WS7 + 128 * 16
R_RED = 10752
R2 = 31232
T_TAB = R2
T_DRE = R2 + 1296
T_DRO = T_DRE + 1280 + 64
T_G3 = T_DRO + 1280
T_G5 = T_G3 + 256
T_G7E = T_G5 + 256
T_G7O = T_G7E + 192
T_G9E = T_G7O + 192
T_G9O = T_G9E + 192
assert T_G9O + 192 <= G_SIZE and R_WS9 + 129 * 16 <= R_RED and R_RED + 13 * 1024 <= R2 and 57 * KG_ROW <= R2
IDX_ZERO, IDX_DUMMY = 641, 642
C_DOWN = G_BASE + 2 * G_SIZE

def f32(x): return "0x%08x" % struct.unpack("<I", struct.pack("<f", x))[0]
def f32v(x): return struct.unpack("<f", struct.pack("<f", x))[0]
LOG2E = math.log2(math.e)
LOG2E_HI = f32v(LOG2E); LOG2E_LO = LOG2E - LOG2E_HI
INV2PI = 1.0 / (2 * math.pi)
INV2PI_HI = f32v(INV2PI); INV2PI_LO = INV2PI - INV2PI_HI
DPPM = "row_mask:0xf bank_mask:0xf"
ENV = lambda k, d: int(os.environ.get(k, str(d)))
STAMP = ENV("STAMP", 0)
DBG = ENV("DBG", 0)
GUARD = 1 << 19
XP = ENV("XP", 0)
KOFF = ENV("KOFF", 1)
PTAG = ENV("PTAG", 1)
PE = ENV("PE", -1)
SN = ENV("SN", 0)
UL = ENV("UL", 0)
XW = ENV("XW", 0)
SWU = ENV("SWU", 1); SWZ = ENV("SWZ", 1); PROW = 18432 + 128 * ENV("SWP", 1)
MOD = lambda k, d="sc1": os.environ.get(k, d).replace("_", " ")

P_X, P_ARE, P_LDT, P_DSK, P_WR, P_GATE, P_UP, P_DOWN, P_OUT, P_DBG, P_WS = 4, 6, 18, 20, 24, 26, 28, 30, 32, 34, 36
S_WAVE, S_GUARD, S_XC, S_I = 38, 39, 40, 41
R0, R1, R2_, R3, R4 = 64, 68, 72, 76, 80
S_ONES, S_GB, S_ROLE, S_G, S_CH, S_BLK, S_B2 = 84, 85, 86, 87, 88, 89, 90
T0_, T1_, T2_, T3_, T4_, T5_ = 92, 93, 94, 95, 96, 97
SP0, SP1 = 98, 99
NSGPR = 100

def srd(a, d, base, nbytes, off=0):
    if off:
        a(f"s_add_u32 s{d}, s{base}, {hex(off)}", f"s_addc_u32 s{d+1}, s{base+1}, 0")
    else:
        a(f"s_mov_b32 s{d}, s{base}", f"s_mov_b32 s{d+1}, s{base+1}")
    a(f"s_mov_b32 s{d+2}, {hex(nbytes)}", f"s_mov_b32 s{d+3}, 0x20000")

def red16(a, op, v):
    for r in (8, 4, 2, 1):
        a(f"{op}_dpp v{v}, v{v}, v{v} row_ror:{r} {DPPM}")
def red32(a, op, v, t):
    red16(a, op, v)
    a(f"v_mov_b32 v{t}, v{v}", f"v_permlane16_swap_b32 v{v}, v{t}", f"{op} v{v}, v{v}, v{t}")
def red64x2(a, op1, v1, t1, op2, v2, t2):
    for r in (8, 4, 2, 1):
        a(f"{op1}_dpp v{v1}, v{v1}, v{v1} row_ror:{r} {DPPM}", f"{op2}_dpp v{v2}, v{v2}, v{v2} row_ror:{r} {DPPM}")
    for ins in ("v_permlane16_swap_b32", "v_permlane32_swap_b32"):
        a(f"v_mov_b32 v{t1}, v{v1}", f"v_mov_b32 v{t2}, v{v2}", f"{ins} v{v1}, v{t1}", f"{ins} v{v2}, v{t2}")
        a(f"{op1} v{v1}, v{v1}, v{t1}", f"{op2} v{v2}, v{v2}, v{t2}")

SPIN = eval(os.environ.get("SPIN", "None"))
def spin_rec(a, ph, i):
    if not SPIN or SPIN[1:] != (ph, i): return
    a("s_memrealtime s[46:47]")
def spin_end(a):
    if not SPIN: return
    lo, hi = eval(os.environ.get("SPINI", "(0,32)"))
    a("KS_SPIN:")
    if SPIN[2] == 9: a("s_memrealtime s[46:47]")
    a(f"s_sub_u32 s48, s{S_I}, {lo}", f"s_cmp_ge_u32 s48, {hi-lo}", "s_cbranch_scc1 KS_END")
    a(f"s_lshr_b32 s48, {hex(SPIN[0])}, s{S_WAVE}", "s_bitcmp1_b32 s48, 0", "s_cbranch_scc0 KS_END")
    a("s_mov_b64 exec, -1", "v_mov_b32 v4, 0")
    a("KS_SP0:")
    a(f"global_load_dword v8, v4, s[{P_DBG}:{P_DBG+1}] offset:64 sc1", "s_waitcnt vmcnt(0) lgkmcnt(0)", "v_readfirstlane_b32 s44, v8", "s_cmp_eq_u32 s44, 0", "s_cbranch_scc1 KS_SP0")
    if SPIN[2] == -1: a("s_mov_b32 s46, s44")
    a("s_sub_u32 s48, s46, s44", "s_add_u32 s48, s48, 200")
    if ENV("SPINMIN", 0): a(f"s_sub_u32 s48, {ENV('SPINMIN', 0)}, s48")
    a("s_min_u32 s48, s48, 3000", "s_lshl_b32 s48, s48, 2", "s_add_u32 s48, s48, 2000")
    a("SPINL:", "s_sleep 1", "s_memrealtime s[50:51]", "s_waitcnt lgkmcnt(0)", "s_sub_u32 s50, s50, s44", "s_cmp_lt_u32 s50, s48", "s_cbranch_scc1 SPINL")
def stamp_begin(a):
    if SPIN: a("s_memrealtime s[46:47]")
    if not STAMP: return
    a("s_memrealtime s[44:45]")
    for i in range(1, 9): a(f"s_mov_b32 s{44+2*i}, 0")
def cstamp(a, i):
    if STAMP == 9: a(f"s_memtime s[{44+2*i}:{45+2*i}]")
def kstamp(a, i):
    if STAMP == 7: a(f"s_memtime s[{44+2*i}:{45+2*i}]")
def stamp(a, i, ph=1):
    spin_rec(a, ph, i)
    if ph == 2 and STAMP not in (2, 3): return
    if STAMP == 7 and i == 1: return kstamp(a, 1)
    if not STAMP or STAMP in (7, 9): return
    assert 1 <= i <= 8
    a(f"{'s_memtime' if STAMP == 8 else 's_memrealtime'} s[{44+2*i}:{45+2*i}]")
def stamp2(a, i):
    stamp(a, i, 2)
def stamp_end(a):
    if not STAMP: return
    a("s_waitcnt vmcnt(0) lgkmcnt(0)")
    a("s_memrealtime s[62:63]")
    a(f"s_lshl_b32 s43, s2, 4", f"s_add_u32 s43, s43, s{S_WAVE}", "s_lshl_b32 s43, s43, 6", f"s_add_u32 s43, s43, {hex(WS_STAMP)}")
    a("s_mov_b64 exec, 1")
    a("s_waitcnt lgkmcnt(0)")
    a("v_mov_b32 v1, s43")
    for i in range(10): a(f"v_mov_b32 v{4+i}, s{44+2*i}")
    a(f"global_store_dwordx4 v1, v[4:7], s[{P_WS}:{P_WS+1}]")
    a(f"global_store_dwordx4 v1, v[8:11], s[{P_WS}:{P_WS+1}] offset:16")
    a(f"global_store_dwordx2 v1, v[12:13], s[{P_WS}:{P_WS+1}] offset:32")
def endwave(a):
    stamp_end(a)
    a("s_branch KS_SPIN" if SPIN else "s_endpgm")

def unpack(a, dst, src):
    a(f"v_lshlrev_b32 v{dst}, 16, v{src}", f"v_and_b32 v{dst+1}, 0xffff0000, v{src}")

def rnd2(a, t):
    a(f"v_cvt_pk_bf16_f32 v{t}, 0, v{t}", f"v_cvt_pk_bf16_f32 v{t+1}, 0, v{t+1}")

def ln_stats(a, X, m2, rinv2, t0, t1, t2):
    a(f"v_pk_add_f32 v[{t0}:{t0+1}], v[{X}:{X+1}], v[{X+2}:{X+3}]")
    a(f"v_pk_add_f32 v[{t1}:{t1+1}], v[{X+4}:{X+5}], v[{X+6}:{X+7}]")
    for j in range(4, 9):
        t = t0 if j % 2 == 0 else t1
        a(f"v_pk_add_f32 v[{t}:{t+1}], v[{t}:{t+1}], v[{X+2*j}:{X+2*j+1}]")
    a(f"v_pk_add_f32 v[{t0}:{t0+1}], v[{t0}:{t0+1}], v[{t1}:{t1+1}]")
    a(f"v_add_f32 v{t0}, v{t0}, v{t0+1}")
    red32(a, "v_add_f32", t0, t1)
    a(f"v_mul_f32 v{t2}, {f32(1.0/576)}, v{t0}")
    a(f"v_mov_b32 v{t2+1}, v{t2}")
    a(f"v_cvt_pk_bf16_f32 v{m2}, 0, v{t2}", f"v_cvt_pk_bf16_f32 v{m2+1}, 0, v{t2}")
    first = {t0: True, t1: True}
    for j in range(9):
        t = t0 if j % 2 == 0 else t1
        a(f"v_pk_add_f32 v[{rinv2}:{rinv2+1}], v[{X+2*j}:{X+2*j+1}], v[{t2}:{t2+1}] neg_lo:[0,1] neg_hi:[0,1]")
        if first[t]:
            a(f"v_pk_mul_f32 v[{t}:{t+1}], v[{rinv2}:{rinv2+1}], v[{rinv2}:{rinv2+1}]"); first[t] = False
        else:
            a(f"v_pk_fma_f32 v[{t}:{t+1}], v[{rinv2}:{rinv2+1}], v[{rinv2}:{rinv2+1}], v[{t}:{t+1}]")
    a(f"v_pk_add_f32 v[{t0}:{t0+1}], v[{t0}:{t0+1}], v[{t1}:{t1+1}]")
    a(f"v_add_f32 v{t0}, v{t0}, v{t0+1}")
    red32(a, "v_add_f32", t0, t1)
    a(f"v_mul_f32 v{t0}, {f32(1.0/576)}, v{t0}")
    a(f"v_cvt_pk_bf16_f32 v{t0}, 0, v{t0}")
    a(f"v_add_f32 v{t0}, {f32(1e-5)}, v{t0}")
    a(f"v_cvt_pk_bf16_f32 v{t0}, 0, v{t0}")
    a(f"v_sqrt_f32 v{t0}, v{t0}")
    a(f"v_cvt_pk_bf16_f32 v{t0}, 0, v{t0}")
    a(f"v_rcp_f32 v{rinv2}, v{t0}")
    a(f"v_mov_b32 v{rinv2+1}, v{rinv2}")

def ln_apply_pair(a, x, m2, rinv2, t, P):
    a(f"v_pk_add_f32 v[{t}:{t+1}], v[{x}:{x+1}], v[{m2}:{m2+1}] neg_lo:[0,1] neg_hi:[0,1]")
    rnd2(a, t)
    a(f"v_pk_mul_f32 v[{t}:{t+1}], v[{t}:{t+1}], v[{rinv2}:{rinv2+1}]")
    if P is not None: a(f"v_cvt_pk_bf16_f32 v{P}, v{t}, v{t+1}")
    rnd2(a, t)

VZ, VONE = 4, 5
_lbl = [0]
def newlabel(p="L"):
    _lbl[0] += 1
    return f"{p}_{_lbl[0]}"
def guard(a):
    a(f"s_sub_u32 s{S_GUARD}, s{S_GUARD}, 1", "s_cbranch_scc1 KS_ABORT")
def lds_wait(a, off, t, kind="b4", addr=VZ, sleep=0):
    l = newlabel("W")
    a(f"{l}:")
    if sleep: a(f"s_sleep {sleep}")
    if kind == "b8":
        a(f"ds_read_b64 v[{t}:{t+1}], v{addr} offset:{off}")
    else:
        a(f"ds_read_{'u8' if kind == 'u8' else 'b32'} v{t}, v{addr} offset:{off}")
    guard(a)
    a("s_waitcnt lgkmcnt(0)")
    if kind == "b8": a(f"v_and_b32 v{t}, v{t}, v{t+1}")
    if kind in ("nz", "u8"): a(f"v_cmp_eq_u32 vcc, 0, v{t}")
    else: a(f"v_cmp_ne_u32 vcc, s{S_ONES}, v{t}")
    a(f"s_cbranch_vccnz {l}")

def zpoll(a, loads, regs, sleep, mid=None):
    lp = newlabel("ZP"); l1 = newlabel("ZPE")
    if mid:
        for l in loads: a(l)
        a(mid)
    a(f"s_branch {l1}")
    a(f"{lp}:")
    a(f"s_sleep {sleep}")
    if not mid: a(f"{l1}:")
    for l in loads: a(l)
    if mid: a(f"{l1}:")
    guard(a)
    a("s_waitcnt vmcnt(0)")
    a(f"v_max3_u32 v44, v{regs[0]}, v{regs[1]}, v{regs[2]}")
    r = regs[3:]
    while len(r) >= 2: a(f"v_max3_u32 v44, v44, v{r[0]}, v{r[1]}"); r = r[2:]
    if r: a(f"v_max_u32 v44, v44, v{r[0]}")
    a("v_cmp_eq_u32 vcc, -1, v44", f"s_cbranch_vccnz {lp}")

class Pool:
    def __init__(self, regs): self.free = list(regs)
    def get(self): return self.free.pop(0)
    def put(self, r): self.free.append(r)
def ce_inlane(a, x, i, j, pool):
    t = pool.get()
    a(f"v_max_u32 v{t}, v{x[i]}, v{x[j]}", f"v_min_u32 v{x[j]}, v{x[i]}, v{x[j]}")
    pool.put(x[i]); x[i] = t
def clean8(a, x, pool, DE, rev=False):
    t = [pool.get() for _ in range(4)]
    for i in range(4):
        a(f"v_mov_b32_dpp v{t[i]}, v{x[3-i if rev else i]} quad_perm:[1,0,3,2] {DPPM}")
    for i in range(4):
        a(f"v_med3_u32 v{t[i]}, v{x[i]}, v{t[i]}, v{DE}")
    for i in range(4): pool.put(x[i]); x[i] = t[i]
    for (i, j) in ((0, 2), (1, 3), (0, 1), (2, 3)): ce_inlane(a, x, i, j, pool)
def merge_mirror(a, x, pool, M):
    c = [pool.get() for _ in range(4)]
    for i in range(4):
        a(f"v_max_u32_dpp v{c[i]}, v{x[3-i]}, v{x[i]} {M} {DPPM}")
    for i in range(4): pool.put(x[i]); x[i] = c[i]
def merge_pair(a, x, y, pool):
    for i in range(4):
        a(f"v_max_u32_dpp v{x[i]}, v{y[3-i]}, v{x[i]} quad_perm:[1,0,3,2] {DPPM}")
    for i in range(4): pool.put(y[i])
MIRRORS = ("quad_perm:[3,2,1,0]", "row_half_mirror", "row_mirror")

GW = 48
def g_addr_setup(a, A):
    a(f"s_sub_u32 s{S_G}, s{S_WAVE}, 12")
    a(f"s_mul_i32 s{T0_}, s{S_G}, 9", f"s_add_u32 s{T0_}, s{T0_}, 1", f"s_lshr_b32 s{S_ROLE}, s{T0_}, 1")
    a(f"s_lshl_b32 s{T0_}, s{S_ROLE}, 5", f"v_lshl_add_u32 v7, v3, 3, s{T0_}", "v_mul_u32_u24 v7, 9216, v7")
    a("v_and_b32 v6, 7, v2", "v_lshl_add_u32 v7, v6, 3, v7")
    a(f"s_lshl_b32 s{T0_}, s{S_BLK}, 6", f"v_add_u32 v7, s{T0_}, v7")
    a("v_cmp_gt_u32 vcc, 8, v2")
    a(f"s_mov_b32 s{R3}, 9216", f"s_mov_b32 s{R3+1}, 0", f"s_mov_b32 s{R3+2}, {9216*25}", f"s_mov_b32 s{R3+3}, 0")
    a(f"v_mov_b32 v{A}, s{P_GATE}", f"v_mov_b32 v{A+1}, s{P_GATE+1}", f"v_mov_b32 v6, s{P_UP}")
    a(f"v_cndmask_b32 v{A}, v6, v{A}, vcc", f"v_mov_b32 v6, s{P_UP+1}", f"v_cndmask_b32 v{A+1}, v6, v{A+1}, vcc")
    a(f"v_add_co_u32 v{A}, vcc, v{A}, v7", f"v_addc_co_u32 v{A+1}, vcc, 0, v{A+1}, vcc")
def g_loads(a, A, kss, mod=""):
    if XW: return
    for ks in kss:
        for r in range(8):
            d = GW + 16 * ks + 2 * r
            a(f"global_load_dwordx2 v[{d}:{d+1}], v[{A}:{A+1}], off" + mod)
            if not (ks == 4 and r == 7):
                a(f"v_lshl_add_u64 v[{A}:{A+1}], v[{A}:{A+1}], 0, s[{R3 if r < 7 else R3+2}:{R3+1 if r < 7 else R3+3}]")
GTRIG = ENV("GTRIG", 2)
PF = ENV("PF", 1)
NL, NN, NC = ENV("NL", 0), ENV("NN", 0), ENV("NC", 4)
NE = ENV("NE", 0)
NLL = ENV("NLL", 0)
NL2 = ENV("NL2", 4)
PFB = ENV("PFB", 82)
assert not (PFB and NL)
NL3 = ENV("NL3", 0)
assert not (NL3 and NE)
PFA = PFB + 16 * NL + 16 * NE + 6 * NL3
PF0 = PFA + 10 * NLL + 6 * NL2
PF1 = PF0 + 8 * NN + 8 * NC
assert PF1 <= 166
PF2 = ENV("PF2", 166); PFD = ENV("PFD", 0); PFD2 = ENV("PFD2", 0)
GT = eval(os.environ.get("GT", "[0,0,6,6]")); DT = ENV("DT", 3)
RDMA = ENV("RDMA", 1)
DEA = ENV("DEA", 1)
DE = ENV("DE", 1)
def pf_ld(a, dst, v, R):
    if XW: return
    for m in MOD("PFM", "nt;sc1").split(";"): a(f"buffer_load_dword v{dst}, v{v}, s[{R}:{R+3}], s{T4_} offen {m}")
def pf_lane(a, v, t):
    a(f"v_mul_u32_u24 v{v}, 57, v1", f"v_lshrrev_b32 v{v}, 9, v{v}", f"v_mul_u32_u24 v{t}, 9, v{v}", f"v_sub_u32 v{t}, v1, v{t}", f"v_mul_u32_u24 v{v}, 9216, v{v}", f"v_lshl_add_u32 v{v}, v{t}, 7, v{v}")
def pf_gu_setup(a, sidx, R=R2_, tb=T3_, tt=T4_):
    a(f"s_bitcmp1_b32 s{sidx}, 0", f"s_cselect_b32 s{R}, s{P_UP}, s{P_GATE}", f"s_cselect_b32 s{R+1}, s{P_UP+1}, s{P_GATE+1}")
    a(f"s_mov_b32 s{R+2}, {hex(D*F*2)}", f"s_mov_b32 s{R+3}, 0x20000")
    a(f"s_lshr_b32 s{tb}, s{sidx}, 1", f"s_mul_i32 s{tb}, s{tb}, {7*9216}", f"s_mul_i32 s{tt}, s{S_XC}, 1152", f"s_add_u32 s{tb}, s{tb}, s{tt}")
def pf_gu(a, v, sidx, nw, u0, u1, dst, done):
    assert u0 % 2 == 0 and nw % 2 == 0
    pf_gu_setup(a, sidx)
    k = 0
    while u0 + k * nw < u1:
        if u0 + (k + 1) * nw > u1: a(f"s_cmp_ge_u32 s{sidx}, {u1 - u0 - k*nw}", f"s_cbranch_scc1 {done}")
        a(f"s_add_u32 s{T4_}, s{T3_}, {(u0 + k*nw)//2*7*9216}")
        pf_ld(a, dst, v, R2_)
        k += 1
def pf_down(a, sidx, nw, u0, u1, v, dst, done, R=R2_):
    srd(a, R, P_DOWN, D * F * 2)
    a(f"s_lshl_b32 s{T3_}, s{sidx}, 13", f"s_mul_i32 s{T4_}, s{S_XC}, {576*1152}", f"s_add_u32 s{T3_}, s{T3_}, s{T4_}", f"v_lshlrev_b32 v{v}, 7, v1")
    k = 0
    while u0 + k * nw < u1:
        if u0 + (k + 1) * nw > u1: a(f"s_cmp_ge_u32 s{sidx}, {u1 - u0 - k*nw}", f"s_cbranch_scc1 {done}")
        a(f"s_add_u32 s{T4_}, s{T3_}, {(u0 + k*nw)*8192}")
        pf_ld(a, dst, v, R)
        k += 1
def gen_ln1(a):
    LW, TB = T5_, S_CH
    X, RAW = 8, 26
    a(f"s_sub_u32 s{T0_}, s{S_I}, 8", f"s_and_b32 s{TB}, s{T0_}, 7", f"s_lshr_b32 s{T0_}, s{T0_}, 3", f"s_lshl_b32 s{T0_}, s{T0_}, 4", f"s_add_u32 s{TB}, s{TB}, s{T0_}")
    a(f"s_and_b32 s{T0_}, s{S_XC}, 1", f"s_lshl_b32 s{T0_}, s{T0_}, 3", f"s_add_u32 s{TB}, s{TB}, s{T0_}", f"s_lshr_b32 s{T0_}, s{S_XC}, 1", f"s_lshl_b32 s{T0_}, s{T0_}, 5", f"s_add_u32 s{TB}, s{TB}, s{T0_}")
    a("v_lshrrev_b32 v36, 5, v1", "v_and_b32 v37, 31, v1")
    a("v_mul_u32_u24 v38, 1152, v36", "v_lshl_add_u32 v39, v37, 2, v38", "v_lshl_add_u32 v38, v37, 4, v38")
    a(f"s_mul_i32 s{T1_}, s{TB}, 18432", f"s_mul_i32 s{T2_}, s{LW}, 2304", f"s_add_u32 s{T1_}, s{T1_}, s{T2_}")
    a("s_waitcnt lgkmcnt(0)")
    stamp(a, 1)
    srd(a, R0, P_X, XBYTES)
    a(f"buffer_load_dwordx4 v[{RAW}:{RAW+3}], v38, s[{R0}:{R0+3}], s{T1_} offen")
    a(f"buffer_load_dwordx4 v[{RAW+4}:{RAW+7}], v38, s[{R0}:{R0+3}], s{T1_} offen offset:512")
    a(f"buffer_load_dword v{RAW+8}, v39, s[{R0}:{R0+3}], s{T1_} offen offset:1024")
    a("s_barrier")
    a(f"s_lshr_b32 s{T1_}, s{LW}, 2", f"s_lshl_b32 s{T1_}, s{T1_}, 6", f"s_add_u32 s{T2_}, s{T2_}, s{T1_}", f"s_add_u32 s{T2_}, s{T2_}, {C_LNB}")
    a(f"v_lshl_add_u32 v35, v37, 1, v36")
    a(f"s_mov_b32 s{SP0}, 0x05040100", f"s_mov_b32 s{SP1}, 0x07060302")
    def waits(n):
        for (c, js) in ((2, range(0, 4)), (1, range(4, 8)), (0, range(8, 9))):
            a(f"s_waitcnt vmcnt({c+n})")
            for j in js: unpack(a, X + 2 * j, RAW + j)
    l1 = newlabel("LN1A"); l2 = newlabel("LN1B")
    if NL:
        LW0 = ENV("NLW", 4)
        pf_lane(a, 46, 47)
        a(f"s_sub_u32 s{T1_}, s{LW}, {LW0}", f"s_and_b32 s{T1_}, s{T1_}, 7", f"s_lshl_b32 s{T3_}, s{T1_}, 4", f"s_add_u32 s{T3_}, s{T3_}, s{S_I}", f"s_sub_u32 s{T3_}, s{T3_}, 8")
        pf_gu_setup(a, T3_, R3, T4_, T0_)
    def dma_early(skip):
        a(f"s_cmp_lt_u32 s{LW}, 4", f"s_cbranch_scc1 {skip}", f"s_cmp_ge_u32 s{S_I}, 18", f"s_cbranch_scc1 {skip}")
        srd(a, R1, P_DOWN, F * D * 2)
        a("v_lshlrev_b32 v46, 4, v1", f"s_mul_i32 s{T0_}, s{S_BLK}, 36864", f"s_mul_i32 s{T1_}, s{LW}, 9216", f"s_add_u32 s{T0_}, s{T0_}, s{T1_}", f"s_sub_u32 s{T0_}, s{T0_}, {4*9216}", f"s_add_u32 s{T1_}, s{T1_}, {C_DOWN - 4*9216}")
        for k in range(9):
            if k % 4 == 0:
                a(f"s_add_u32 m0, s{T1_}, {1024*k}")
                if k: a(f"s_add_u32 s{T0_}, s{T0_}, 4096")
            a(f"buffer_load_dwordx4 v46, s[{R1}:{R1+3}], s{T0_} offen offset:{1024*(k&3)} {MOD('DM', 'nt')} lds")
    if XW: waits(0)
    elif DEA == 1:
        dma_early(l1)
        waits(9)
        a(f"s_branch {l2}")
        a(f"{l1}:")
        if NL3:
            l3 = newlabel("LN1C")
            a(f"s_sub_u32 s{T1_}, s{LW}, 4", f"s_cmp_ge_u32 s{T1_}, {NL3}", f"s_cbranch_scc1 {l3}")
            pf_lane(a, 46, 47)
            a(f"s_mul_i32 s{T1_}, s{T1_}, 6", f"s_add_u32 s{T1_}, s{T1_}, s{S_I}", f"s_add_u32 s{T3_}, s{T1_}, {PFB - 18}")
            pf_gu_setup(a, T3_, R3, T4_, T0_)
            pf_ld(a, 47, 46, R3)
            waits(len(MOD("PFM", "nt;sc1").split(';')))
            a(f"s_branch {l2}")
            a(f"{l3}:")
        waits(0)
        a.flush(2)
        a(f"{l2}:")
    elif DEA == 2:
        waits(0)
        dma_early(l1)
        a(f"{l1}:")
    elif NL and ENV("NLE", 0):
        a(f"s_cmp_lt_u32 s{T1_}, {NL}", f"s_cselect_b32 s{T4_}, s{T4_}, {hex(D*F*2)}")
        pf_ld(a, 47, 46, R3)
        waits(len(MOD("PFM", "nt;sc1").split(';')))
    else:
        waits(0)
    if NL and not ENV("NLE", 0):
        if ENV("X0", 0): a(f"s_cmp_eq_u32 s{S_XC}, 0", f"s_cbranch_scc1 {l1}")
        a(f"s_cmp_ge_u32 s{T1_}, {NL}", f"s_cbranch_scc1 {l1}")
        pf_ld(a, 47, 46, R3)
        a(f"{l1}:")
    stamp(a, 2)
    a(f"v_lshl_add_u32 v6, v35, 4, s{T2_}", f"v_lshl_add_u32 v7, v35, 2, s{T2_}")
    a(f"v_mul_u32_u24 v35, 0x20202, v36", "v_lshl_add_u32 v35, v36, 25, v35", "v_add_u32 v35, 0x05040100, v35")
    ln_stats(a, X, 36, 38, 40, 42, 44)
    for j in range(9):
        if j == ENV("DSAMP", 3):
            a("v_and_b32 v59, 3, v1", "v_lshlrev_b32 v59, 2, v59")
            if SN: a(f"s_load_dwordx4 s[{R3}:{R3+3}], s[{P_DBG}:{P_DBG+1}], 0" + (" glc" if SN == 2 else ""))
            else: a(f"global_load_dword v58, v59, s[{P_DBG}:{P_DBG+1}] sc1")
        ln_apply_pair(a, X + 2 * j, 36, 38, 40, None)
        a(f"v_cvt_pk_f16_f32 v{RAW+j}, v40, v41")
        if j in (3, 7):
            P = RAW + j - 3; O = X + 2 * (j - 3)
            a(f"v_permlane32_swap_b32 v{P}, v{P+2}", f"v_permlane32_swap_b32 v{P+1}, v{P+3}")
            a(f"v_perm_b32 v{O}, v{P+2}, v{P}, s{SP0}", f"v_perm_b32 v{O+1}, v{P+2}, v{P}, s{SP1}")
            a(f"v_perm_b32 v{O+2}, v{P+3}, v{P+1}, s{SP0}", f"v_perm_b32 v{O+3}, v{P+3}, v{P+1}, s{SP1}")
            a(f"ds_write_b128 v6, v[{O}:{O+3}] offset:{1024*(j//4)}")
    a(f"v_mov_b32 v40, v{RAW+8}", f"v_permlane32_swap_b32 v{RAW+8}, v40")
    a(f"v_perm_b32 v40, v40, v{RAW+8}, v35")
    a(f"ds_write_b32 v7, v40 offset:2048")
    a(f"v_mov_b32 v6, s{LW}")
    a(f"ds_write_b8 v6, v{VONE} offset:{FL_LN1}")
    a("s_setprio 0")
    a(f"s_cmp_ge_u32 s{LW}, 4", "s_cbranch_scc1 KS_X4")
    a("s_setprio 3")
    srd(a, R2_, P_WS, XBYTES, WS_UT)
    a("v_and_b32 v6, 1, v0", "v_mul_u32_u24 v6, 9280, v6", "v_lshrrev_b32 v7, 1, v0", "v_lshl_add_u32 v6, v7, 2, v6", f"v_add_u32 v6, {C_LNB}, v6")
    if UL:
        a("v_lshrrev_b32 v7, 3, v0", "v_mul_u32_u24 v7, 0x4100, v7", "v_and_b32 v8, 7, v0", "v_lshl_add_u32 v7, v8, 4, v7")
        a(f"s_lshl_b32 s{T0_}, s{TB}, 7")
    else:
        a("v_lshrrev_b32 v7, 2, v0", "v_mul_u32_u24 v7, 0x2080, v7" if SWU else "v_lshlrev_b32 v7, 13, v7", "v_and_b32 v8, 3, v0", "v_lshl_add_u32 v7, v8, 4, v7")
        a(f"s_lshl_b32 s{T0_}, s{TB}, 6")
    if SWU: a(f"v_xor_b32 v7, s{T0_}, v7", f"s_mov_b32 s{T0_}, 0")
    for k in range(1, 5): a(f"s_add_u32 s{T0_+k}, s{T0_}, {0x80000*k}")
    if SN:
        a("s_waitcnt lgkmcnt(0)")
        a(f"v_mov_b32 v58, s{R3}", f"v_mov_b32 v57, s{R3+1}", f"v_mov_b32 v56, s{R3+2}", f"v_mov_b32 v55, s{R3+3}")
        a("v_mov_b32_dpp v58, v57 quad_perm:[0,1,2,3] row_mask:0xf bank_mask:0xf" if 0 else "v_cmp_eq_u32 vcc, 4, v59", "v_cndmask_b32 v58, v58, v57, vcc", "v_cmp_eq_u32 vcc, 12, v59", "v_cndmask_b32 v56, v56, v55, vcc", "v_cmp_lt_u32 vcc, 4, v59", "v_cndmask_b32 v58, v58, v56, vcc")
        dbg_wait(a, 63)
    else: dbg_wait(a, 0)
    a(f"ds_write_b32 v59, v58 offset:{FL_NONCE}")
    a(f"s_mov_b32 s{SP0}, {hex(TAGM)}")
    for d in range(1, 4): a(f"v_lshrrev_b32 v{58-d}, {3*d}, v58")
    lds_wait(a, FL_LN1, 20, "b8")
    stamp(a, 3)
    for k in range(5):
        a(f"ds_read2st64_b32 v[{20+4*k}:{21+4*k}], v6 offset0:{2*k} offset1:{9+2*k}")
        a(f"ds_read2st64_b32 v[{22+4*k}:{23+4*k}], v6 offset0:{18+2*k} offset1:{27+2*k}")
    for k in range(5):
        a(f"s_waitcnt lgkmcnt({8-2*k})")
        for d in range(4): a(f"v_bfi_b32 v{20+4*k+d}, s{SP0}, v{58-d}, v{20+4*k+d}")
        a(f"buffer_store_dwordx4 v[{20+4*k}:{23+4*k}], v7, s[{R2_}:{R2_+3}], s{T0_+k} offen {MOD('USMOD')}")
    if DE: a(f"v_mov_b32 v6, s{LW}", f"ds_write_b8 v6, v{VONE} offset:{FL_UTOK}")
    stamp(a, 4)

def dbg_wait(a, n, vt=58, va=59):
    lp = newlabel("DBP"); go = newlabel("DBG")
    a(f"s_waitcnt vmcnt({n})")
    a(f"{lp}:")
    a(f"v_cmp_eq_u32 vcc, 0, v{vt}", f"s_cbranch_vccz {go}")
    a("s_sleep 1")
    a(f"global_load_dword v{vt}, v{va}, s[{P_DBG}:{P_DBG+1}] sc1")
    guard(a)
    a("s_waitcnt vmcnt(0)")
    a(f"s_branch {lp}")
    a(f"{go}:")

ROLE_TILES = {0: [0, 1, 2, 3, 4], 1: [0, 1, 2, 3, 4], 2: [5, 6, 7], 3: [5, 6, 7]}
ROLE_W = {2: 0, 3: 1, 1: 2}
ACC, DA, RING, WT = 16, 36, 76, 92
NRING = 4

def epi_plan():
    owner = {0: (0, 0), 1: (0, 1), 2: (1, 0), 3: (1, 1), 4: (1, 3), 5: (0, 2), 6: (0, 3), 7: (1, 2)}
    slots = {}
    cnt = [0, 0]
    for g in range(2):
        for role in range(4):
            for j in ROLE_TILES[role]:
                if owner[j] == (g, role): continue
                slots[(g, role, j)] = g * G_SIZE + R_RED + 1024 * cnt[g]; cnt[g] += 1
    assert max(cnt) <= 13, cnt
    ownerC = {0: 0, 1: 0, 2: 1, 3: 1, 4: 2, 5: 2, 6: 3, 7: 3}
    n = 0
    for role in range(4):
        for j in ROLE_TILES[role]:
            if ownerC[j] == role: continue
            slots[(2, role, j)] = 2 * G_SIZE + R_RED + 1024 * n; n += 1
    return owner, ownerC, slots

class LdsTrack:
    def __init__(self, a): self.a = a; self.n = 0; self.done = -1
    def issue(self, text): self.a(text); self.n += 1; return self.n - 1
    def wait(self, idx):
        k = self.n - 1 - idx
        if idx <= self.done: return
        self.done = idx
        if k <= 15: self.a(f"s_waitcnt lgkmcnt({k})")

CZ0, CZ1, CSH, CXR, CFL, SIS, CM, SM, SC, SSC, SDL = 6, 7, 8, 9, 10, 11, 12, 14, 15, 16, 18
IXR, LFR = (108, 109, 112, 113), (110, 111, 114, 115)
def stage_write(a, off):
    a("v_lshl_or_b32 v24, v25, 16, v24", "v_lshl_or_b32 v25, v27, 16, v26", f"ds_write_b64 v28, v[24:25] offset:{off}")
def pre_ixlf(a):
    end = newlabel("PX"); j1 = newlabel("PX"); j2 = newlabel("PX"); jn = newlabel("PX")
    a(f"s_cmp_eq_u32 s{S_ROLE}, 3", f"s_cbranch_scc1 {end}")
    a("v_lshlrev_b32 v26, 3, v2", "v_mov_b32 v21, 0x80")
    a(f"s_cmp_eq_u32 s{S_ROLE}, 1", f"s_cbranch_scc1 {j1}", f"s_cmp_eq_u32 s{S_ROLE}, 2", f"s_cbranch_scc1 {j2}")
    a("v_lshl_add_u32 v26, v3, 1, v26", "v_mov_b32 v22, 1")
    a(f"s_branch {jn}")
    a(f"{j1}:")
    a("v_cmp_gt_u32 vcc, 2, v3", "v_lshl_add_u32 v20, v3, 2, v26", "v_add_u32 v20, 256, v20", "v_lshl_add_u32 v26, v3, 8, v26", "v_cndmask_b32 v26, v26, v20, vcc")
    a("v_cndmask_b32 v22, v21, 2, vcc", "v_cndmask_b32 v21, 4, v21, vcc")
    a(f"s_branch {jn}")
    a(f"{j2}:")
    a("v_lshl_add_u32 v26, v3, 9, v26", "v_add_u32 v26, 0x400, v26", "v_mov_b32 v22, 0x100")
    a(f"{jn}:")
    a(f"v_mad_u32_u24 v26, v22, s{S_G}, v26", "v_add_u32 v27, v26, v21", f"s_movk_i32 s{T4_}, {T_TAB}", f"s_movk_i32 s{T5_}, {-(0x4280 + 0x800)}", f"s_lshl_b32 s{T3_}, s{S_G}, 9")
    for r in range(2): a(f"v_cvt_f32_u32 v{20+r}, v{26+r}", f"v_max_u32 v{22+r}, 0x800, v{26+r}")
    for r in range(2):
        a(f"v_cmp_gt_u32 vcc, 0x80, v{26+r}", f"v_lshrrev_b32 v{24+r}, 16, v{20+r}", f"v_add3_u32 v{24+r}, v{24+r}, v{22+r}, s{T5_}", f"v_cndmask_b32 v{24+r}, v{24+r}, v{26+r}, vcc")
    for r in range(2):
        a(f"v_min_u32 v{24+r}, {IDX_DUMMY}, v{24+r}", f"v_lshl_add_u32 v{24+r}, v{24+r}, 1, s{T4_}")
    a(f"v_add_u32 v29, s{T3_}, v28")
    a("v_lshl_or_b32 v24, v25, 16, v24", "v_lshl_or_b32 v25, v27, 16, v26", "ds_write_b64 v29, v[24:25]")
    a(f"{end}:")

def gen_group(a):
    RAW, VLDT, VDSK, VNT, VNA, VPR, VEM, VTE, VTL = 40, 46, 107, 104, 105, 106, 72, 126, 127
    I1, D2, I2, D1, D3 = 116, 119, 120, 124, 125
    a(f"s_lshl_b32 s{T0_}, s{S_CH}, 8", f"v_lshl_add_u32 v20, v1, 2, s{T0_}")
    a(f"s_lshl_b32 s{T0_}, s{S_CH}, 1", f"v_mov_b32 v21, s{T0_}")
    a(f"s_mul_i32 s{S_GB}, s{S_G}, {G_SIZE}", f"s_add_u32 s{S_GB}, s{S_GB}, {G_BASE}")
    a("s_waitcnt lgkmcnt(0)")
    stamp(a, 1)
    PL = ENV("PLATE", 0)
    if PL == 1: a(f"s_sub_u32 s{T0_}, s{S_I}, 8", f"s_cmp_ge_u32 s{T0_}, 16", "s_cbranch_scc1 KS_PL1", "s_barrier", "KS_PL1:")
    if PL == 2: a("s_barrier")
    a(f"global_load_ushort v{VLDT}, v21, s[{P_LDT}:{P_LDT+1}]")
    for k in range(6):
        a(f"global_load_dword v{RAW+k}, v20, s[{P_ARE+2*k}:{P_ARE+2*k+1}]")
    a(f"global_load_ushort v{VDSK}, v21, s[{P_DSK}:{P_DSK+1}]")
    if PL == 1: a("s_cbranch_scc0 KS_PL2")
    if PL != 2: a("s_barrier")
    if PL == 1: a("KS_PL2:")
    if ENV("UPW", 0):
        a(f"s_sub_u32 s{T0_}, s{S_I}, 8", f"s_cmp_ge_u32 s{T0_}, 16", "s_cbranch_scc1 KS_UPW", f"s_cmp_lg_u32 s{S_G}, 1", "s_cbranch_scc1 KS_UPW")
        TB = T5_
        a(f"s_and_b32 s{TB}, s{T0_}, 7", f"s_lshr_b32 s{T0_}, s{T0_}, 3", f"s_lshl_b32 s{T0_}, s{T0_}, 4", f"s_add_u32 s{TB}, s{TB}, s{T0_}")
        a(f"s_and_b32 s{T0_}, s{S_XC}, 1", f"s_lshl_b32 s{T0_}, s{T0_}, 3", f"s_add_u32 s{TB}, s{TB}, s{T0_}", f"s_lshr_b32 s{T0_}, s{S_XC}, 1", f"s_lshl_b32 s{T0_}, s{T0_}, 5", f"s_add_u32 s{TB}, s{TB}, s{T0_}")
        srd(a, R2_, P_WS, XBYTES, WS_UT)
        a(f"s_lshl_b32 s{T0_}, s{S_ROLE}, 4", "v_lshrrev_b32 v7, 2, v1", f"v_add_u32 v7, s{T0_}, v7", "v_mul_u32_u24 v7, 0x2080, v7", "v_and_b32 v8, 3, v1", "v_lshl_add_u32 v7, v8, 4, v7")
        a(f"s_lshl_b32 s{T0_}, s{TB}, 6", f"v_xor_b32 v7, s{T0_}, v7")
        for d in range(4): a(f"v_mov_b32 v{8+d}, 0")
        for k in range(5):
            a(f"s_mov_b32 s{T0_}, {0x80000*k}")
            a(f"buffer_store_dwordx4 v[8:11], v7, s[{R2_}:{R2_+3}], s{T0_} offen {MOD('UPWMOD')}")
        a.flush(2)
        a("KS_UPW:")
    a(f"s_movk_i32 s{T4_}, {T_TAB}")
    def dr_addr(dst, x, special=False):
        a(f"v_sub_u32 v30, 544, v{x}", "v_cvt_f32_i32 v31, v30", "v_cmp_gt_u32 vcc, 0x100, v30", "v_cvt_pk_bf16_f32 v31, v31, v31", "v_and_b32 v31, 0xffff, v31", "v_subrev_u32 v31, 0x4280, v31")
        a("v_cndmask_b32 v31, v31, v30, vcc", "v_cmp_lt_u32 vcc, 0x20d, v30")
        if special: a(f"v_or_b32 v30, 1, v{x}")
        a("v_cndmask_b32 v31, v31, v32, vcc")
        if special: a("v_cmp_eq_u32 vcc, 0x25d, v30", "v_cndmask_b32 v31, v31, v33, vcc")
        a(f"v_lshl_add_u32 v{dst}, v31, 1, s{T4_}")
    def g_addr(dst, y0, base, M):
        a(f"v_sub_u32 v30, {y0}, v23", f"v_cmp_lt_u32 vcc, {M}, v30", f"v_lshlrev_b32 v31, 2, v30", f"v_add_u32 v31, {T_TAB + 2*base}, v31", f"v_cndmask_b32 v{dst}, v31, v33, vcc")
    pb = newlabel("PREB"); pw = newlabel("PREW"); pe = newlabel("PREE")
    a(f"s_cmp_eq_u32 s{S_G}, 2", f"s_cbranch_scc1 {pe}")
    a(f"v_mov_b32 v32, {IDX_ZERO}")
    a(f"s_cmp_eq_u32 s{S_G}, 1", f"s_cbranch_scc1 {pb}")
    jl = [newlabel("PRE") for _ in range(4)]
    a(f"v_mov_b32 v33, {T_TAB + 2*IDX_ZERO}")
    for r in range(1, 4): a(f"s_cmp_eq_u32 s{S_ROLE}, {r}", f"s_cbranch_scc1 {jl[r]}")
    a("v_lshlrev_b32 v23, 1, v1")
    for e, (y0, base, M) in enumerate(((93, 389, 61), (92, 389, 61), (94, 388, 62), (93, 388, 62))): g_addr(24 + e, y0, base, M)
    a(f"s_branch {pw}")
    for r, base in ((1, 513), (2, 514)):
        a(f"{jl[r]}:")
        a("v_min_u32 v23, 47, v1", "v_lshlrev_b32 v23, 1, v23")
        for e, y0 in ((0, 64), (1, 63), (3, 62)): g_addr(24 + e, y0, base, 63)
        a("v_mov_b32 v26, v25")
        a(f"s_branch {pw}")
    a(f"{jl[3]}:")
    a("v_cmp_gt_u32 vcc, 9, v1", "v_add_u32 v23, 0x100, v1", "v_mov_b32 v33, 0x200", "v_cndmask_b32 v23, v23, v1, vcc", "v_lshlrev_b32 v23, 1, v23")
    for e in (0, 1, 3):
        if e: a("v_add_u32 v23, 1, v23")
        dr_addr(24 + e, 23, special=True)
    a("v_mov_b32 v26, v25")
    a(f"s_branch {pw}")
    a(f"{pb}:")
    a(f"s_lshl_b32 s{T1_}, s{S_ROLE}, 7", f"s_add_u32 s{T1_}, s{T1_}, 18", f"v_lshl_add_u32 v23, v1, 1, s{T1_}")
    for e in range(3):
        if e: a("v_add_u32 v23, 1, v23")
        dr_addr(24 + e, 23)
    a(f"s_sub_u32 s{T1_}, s{S_ROLE}, 1", f"s_cmp_lt_u32 s{T1_}, 2", f"s_cselect_b32 s{T2_}, 47, 63", f"s_mul_i32 s{T1_}, s{T1_}, {T_G9E - T_G7E}", f"s_add_u32 s{T1_}, s{T1_}, {T_G7E}")
    a(f"s_cmp_eq_u32 s{S_ROLE}, 0", f"s_cselect_b32 s{T1_}, {T_G3}, s{T1_}", f"s_cmp_eq_u32 s{S_ROLE}, 3", f"s_cselect_b32 s{T1_}, {T_DRE}, s{T1_}", f"s_cselect_b32 s{T3_}, 0x100, 0")
    a("v_cmp_gt_u32 vcc, 9, v1", f"v_min_u32 v23, s{T2_}, v1", f"v_add_u32 v30, s{T3_}, v23", "v_cndmask_b32 v23, v30, v23, vcc", f"v_lshl_add_u32 v27, v23, 2, s{T1_}")
    stage_write(a, 1024)
    a(f"v_mov_b32 v24, s{S_ROLE}", f"ds_write_b8 v24, v{VONE} offset:{FL_PRE + 4}")
    a(f"s_branch {pe}")
    a(f"{pw}:")
    stage_write(a, 1536)
    a(f"v_mov_b32 v24, s{S_ROLE}", f"ds_write_b8 v24, v{VONE} offset:{FL_PRE}")
    a(f"{pe}:")
    a(f"s_mul_i32 s{T1_}, s{S_ROLE}, {16*KG_ROW}", f"s_min_u32 s{T2_}, s{T1_}, {KG_T[3]}", f"s_add_u32 s{T2_}, s{T2_}, s{S_GB}")
    a(f"s_lshl_b32 s{T0_}, s{S_G}, 4", f"v_mov_b32 v14, s{T0_}", f"v_add_u32 v15, s{S_ROLE}, v14")
    a(f"v_lshl_add_u32 v{VEM}, v1, 3, s{T2_}")
    for k in range(1, 4): a(f"v_add_u32 v{VEM+k}, {4*KG_ROW*k}, v{VEM}")
    a(f"v_mul_u32_u24 v{VTE}, {KG_ROW}, v2", f"v_lshl_add_u32 v{VTE}, v3, 4, v{VTE}", f"v_add_u32 v{VTE}, s{S_GB}, v{VTE}", f"v_add_u32 v{VTL}, s{T1_}, v{VTE}")
    VDA, VDA2, VB_, VT8, VT16, VG8, VG16, VLN = 6, 7, 8, 9, 10, 11, 13, 12
    a("v_lshlrev_b32 v20, 3, v3", "v_sub_u32 v20, v20, v2", "v_add_u32 v21, 16, v20", "v_lshrrev_b32 v21, 1, v21")
    a("v_and_b32 v22, 1, v2", f"s_add_u32 s{T0_}, s{S_GB}, {T_DRE}", f"v_lshl_add_u32 v21, v21, 2, s{T0_}", f"s_movk_i32 s{T0_}, {T_DRO - T_DRE}", f"s_movk_i32 s{T2_}, {T_G7O - T_G7E}")
    a(f"v_mad_u32_u24 v{VDA}, v22, s{T0_}, v21", f"v_add_u32 v{VDA2}, 640, v{VDA}")
    a(f"v_mad_u32_u24 v23, v22, s{T2_}, v21", f"v_add_u32 v{VG16}, {T_G7E - T_DRE}, v23")
    a("v_lshlrev_b32 v23, 2, v3", "v_sub_u32 v23, v23, v2", f"s_add_u32 s{T0_}, s{S_GB}, {T_G3 + 60}", f"v_lshl_add_u32 v{VG8}, v23, 2, s{T0_}")
    a(f"s_mul_i32 s{T2_}, s{S_G}, {U_SIZE}", f"s_add_u32 s{T2_}, s{T2_}, {C_U}")
    a(f"v_lshl_add_u32 v23, v2, 5, s{T2_}", f"v_lshl_add_u32 v{VB_}, v3, 4, v23")
    a("v_bfe_u32 v20, v1, 2, 2", "v_and_b32 v21, 3, v1", "v_lshl_add_u32 v20, v3, 3, v20")
    a(f"v_lshlrev_b32 v{VNA}, 2, v21")
    a(f"v_lshl_add_u32 v21, v21, 3, s{S_GB}", f"v_lshl_add_u32 v{VT8}, v20, 4, v21", f"v_lshl_add_u32 v{VT16}, v20, 5, v21")
    a(f"v_lshlrev_b32 v{VLN}, 4, v1")
    srd(a, R0, P_WS, 0x240000, WS_ZB1)
    if SWZ: a(f"s_mov_b32 s{CFL}, 0x8080")
    a(f"s_lshl_b32 s{T0_}, s{S_ROLE}, 19", f"s_lshl_b32 s{T1_}, s{S_B2}, 6", f"s_add_u32 s{T0_}, s{T0_}, s{T1_}")
    a(f"s_lshl_b32 s{T1_}, s{S_ROLE}, 16", f"s_lshl_b32 s{T3_}, s{S_CH}, 6", f"s_add_u32 s{T1_}, s{T1_}, s{T3_}", f"s_add_u32 s{T1_}, s{T1_}, {0x200000 - 512*64}")
    if SWZ:
        a(f"s_cmp_eq_u32 s{S_G}, 2", f"s_cselect_b32 s{CZ0}, s{T1_}, s{T0_}", f"s_cselect_b32 s{CSH}, 0x1080, s{CFL}", f"s_cselect_b32 s{T0_}, 1, 3")
        a(f"s_and_b32 s{T0_}, s{T0_}, s{S_ROLE}", f"s_lshl_b32 s{T0_}, s{T0_}, 11", f"s_xor_b32 s{CZ0}, s{CZ0}, s{T0_}", f"s_and_b32 s{CFL}, s{CZ0}, 0x7c0", f"s_xor_b32 s{CZ0}, s{CZ0}, s{CFL}", f"s_xor_b32 s{CZ1}, s{CZ0}, 0x6000")
    else:
        a(f"s_cmp_eq_u32 s{S_G}, 2", f"s_cselect_b32 s{CZ0}, s{T1_}, s{T0_}", f"s_cselect_b32 s{CSH}, 12, 15", f"s_add_u32 s{CZ1}, s{CZ0}, 16384")
    a(f"s_and_b32 s{CXR}, s{S_G}, 1", f"s_lshl_b32 s{CXR}, s{CXR}, 4", f"s_mov_b32 s{CM}, 0x55555555", f"s_mov_b32 s{CM+1}, 0x55555555")
    a(f"s_lshl_b32 s{T0_}, s{S_ROLE}, 8", f"s_add_u32 s{T0_}, s{T0_}, s{S_GB}", f"s_add_u32 s{T0_}, s{T0_}, 36", f"v_lshl_add_u32 v{D1}, v1, 2, s{T0_}")
    a(f"s_movk_i32 s{T0_}, {T_G7O - T_G7E}", f"s_cmp_eq_u32 s{S_ROLE}, 0", f"s_cselect_b32 s{T0_}, {T_G5 - T_G3}, s{T0_}", f"s_cmp_eq_u32 s{S_ROLE}, 3", f"s_cselect_b32 s{T0_}, {T_DRO - T_DRE}, s{T0_}")
    a(f"v_mov_b32 v20, s{S_GB}", f"ds_write_b16 v20, v{VZ} offset:{T_TAB + 2*IDX_ZERO}")
    a(f"s_mov_b32 s{SDL}, s{T0_}", f"v_mov_b32 v{D3}, v28")
    def stage_read():
        lds_wait(a, FL_PRE, 18, "b8")
        a(f"ds_read2st64_b64 v[28:31], v{D3} offset0:0 offset1:1", f"ds_read2st64_b64 v[32:35], v{D3} offset0:2 offset1:3")
    def stage_unpack():
        for k in range(16):
            src = 28 + k // 2; w = f"WORD_{k & 1}"
            if 108 + k in LFR: a(f"v_cvt_f32_u32_sdwa v{108+k}, v{src} dst_sel:DWORD dst_unused:UNUSED_PAD src0_sel:{w}")
            else: a(f"v_add_u32_sdwa v{108+k}, s{S_GB}, v{src} dst_sel:DWORD dst_unused:UNUSED_PAD src0_sel:DWORD src1_sel:{w}")
        a(f"v_add_u32 v{D3}, s{SDL}, v{D2}")
    stage_read()
    a("s_waitcnt lgkmcnt(0)")
    stage_unpack()
    ex = newlabel("EXP")
    if KOFF: a(f"s_lshl_b32 s{T0_}, s{S_G}, 5", f"s_add_u32 s{T0_}, s{T0_}, s{S_I}", f"s_cmp_ge_u32 s{T0_}, {64 + 24}", "s_cbranch_scc1 KC_RECV")
    a(f"s_mov_b32 s{T0_}, {f32(LOG2E_HI)}", f"s_mov_b32 s{T1_}, {f32(LOG2E_LO)}", f"s_mov_b32 s{T2_}, {f32(INV2PI_HI)}", f"s_mov_b32 s{T3_}, {f32(INV2PI_LO)}")
    a(f"s_waitcnt vmcnt(7)")
    a(f"v_lshlrev_b32 v16, 16, v{VLDT}")
    a(f"v_mul_f32 v17, s{T0_}, v16")
    a(f"v_fma_f32 v19, v16, s{T0_}, -v17", f"v_fmac_f32 v19, s{T1_}, v16")
    a("v_exp_f32 v17, v17")
    a(f"v_mul_f32 v19, {f32(math.log(2.0))}, v19")
    a("v_fmac_f32 v17, v17, v19")
    a("v_cvt_pk_bf16_f32 v16, 0, v17")
    a(f"s_waitcnt vmcnt(5)")
    stamp(a, 2)
    a(f"ds_write_b32 v{VZ}, v{VONE} offset:{FL_PARAM}")
    THH, THL = 68, 70
    for k in range(2): unpack(a, 20 + 2 * k, RAW + k)
    for k in range(2): a(f"v_pk_mul_f32 v[{20+2*k}:{21+2*k}], v[{20+2*k}:{21+2*k}], v[16:17] op_sel_hi:[1,0]")
    a("v_max_f32 v36, v20, v21")
    a(f"v_pk_mul_f32 v[{THH}:{THH+1}], v[22:23], s[{T2_}:{T3_}] op_sel_hi:[1,0]")
    a(f"v_pk_fma_f32 v[{THL}:{THL+1}], v[22:23], s[{T2_}:{T3_}], v[{THH}:{THH+1}] op_sel_hi:[1,0,1] neg_lo:[0,0,1] neg_hi:[0,0,1]")
    a(f"v_pk_fma_f32 v[{THL}:{THL+1}], v[22:23], s[{T2_}:{T3_}], v[{THL}:{THL+1}] op_sel:[0,1,0]")
    T = 90
    def cmul_(dr, di, ar, ai, br, bi, t=T):
        assert di not in (ar, br, bi)
        return [f"v_pk_mul_f32 v[{t}:{t+1}], v[{ai}:{ai+1}], v[{bi}:{bi+1}]",
                f"v_pk_mul_f32 v[{t+2}:{t+3}], v[{ai}:{ai+1}], v[{br}:{br+1}]",
                f"v_pk_fma_f32 v[{di}:{di+1}], v[{ar}:{ar+1}], v[{bi}:{bi+1}], v[{t+2}:{t+3}]",
                f"v_pk_fma_f32 v[{dr}:{dr+1}], v[{ar}:{ar+1}], v[{br}:{br+1}], v[{t}:{t+1}] neg_lo:[0,0,1] neg_hi:[0,0,1]"]
    def cm_(d, x, y, t=T): return cmul_(d, d + 2, x, x + 2, y, y + 2, t)
    def csq_(d, s_, t=T):
        return [f"v_pk_mul_f32 v[{t}:{t+1}], v[{s_+2}:{s_+3}], v[{s_+2}:{s_+3}]",
                f"v_pk_mul_f32 v[{t+2}:{t+3}], v[{s_}:{s_+1}], v[{s_+2}:{s_+3}]",
                f"v_pk_fma_f32 v[{d}:{d+1}], v[{s_}:{s_+1}], v[{s_}:{s_+1}], v[{t}:{t+1}] neg_lo:[0,0,1] neg_hi:[0,0,1]",
                f"v_pk_add_f32 v[{d+2}:{d+3}], v[{t+2}:{t+3}], v[{t+2}:{t+3}]"]
    def cmul(*x): a(*cmul_(*x))
    def csq(*x): a(*csq_(*x))
    CBR, CBI = 32, 34
    sk = newlabel("SK")
    a(f"s_cmp_eq_u32 s{S_ROLE}, 3", f"s_cbranch_scc1 {sk}")
    a("s_waitcnt vmcnt(1)")
    for k in range(2, 6): unpack(a, 20 + 2 * k, RAW + k)
    for k in range(2, 4): a(f"v_pk_mul_f32 v[{20+2*k}:{21+2*k}], v[{20+2*k}:{21+2*k}], v[16:17] op_sel_hi:[1,0]")
    cmul(CBR, CBI, 28, 30, 24, 26)
    a(f"v_max3_f32 v37, abs(v{CBI}), abs(v{CBI+1}), abs(v{CBR})", f"v_max_f32 v37, v37, abs(v{CBR+1})")
    a(f"{sk}:")
    a("s_waitcnt vmcnt(0)")
    a.flush(1)
    a("v_permlane32_swap_b32 v36, v37", "v_max_f32 v36, v36, v37")
    red32(a, "v_max_f32", 36, 38)
    a(f"v_readlane_b32 s{SM}, v36, 0", f"v_readlane_b32 s{SC}, v36, 32")
    a(f"s_add_u32 s{SC}, s{SC}, 0x7fffff", f"s_lshr_b32 s{SC}, s{SC}, 23", f"s_max_u32 s{SC}, s{SC}, 24", f"s_sub_u32 s{SSC}, 269, s{SC}", f"s_lshl_b32 s{SSC}, s{SSC}, 23")
    a(f"v_subrev_f32 v20, s{SM}, v20", f"v_subrev_f32 v21, s{SM}, v21")
    a(f"v_mul_f32 v20, {f32(LOG2E)}, v20", f"v_mul_f32 v21, {f32(LOG2E)}, v21")
    def scale_cb():
        a(f"v_pk_mul_f32 v[{CBR}:{CBR+1}], v[{CBR}:{CBR+1}], s[{SSC}:{SSC+1}] op_sel_hi:[1,0]", f"v_pk_mul_f32 v[{CBI}:{CBI+1}], v[{CBI}:{CBI+1}], s[{SSC}:{SSC+1}] op_sel_hi:[1,0]")
    def anchor(dr, di, l, conj=False):
        lit = {1: "1.0", 2: "2.0"}.get(l, f32(float(l)))
        for e in range(2):
            t = T + 4 * e
            if l != 1: a(f"v_mul_f32 v{t+1}, {lit}, v{THH+e}", f"v_mul_f32 v{t}, {lit}, v{20+e}")
        for e in range(2):
            t = T + 4 * e
            a(f"v_fract_f32 v{t+1}, v{t+1 if l != 1 else THH+e}")
        for e in range(2):
            t = T + 4 * e
            a(f"v_fmac_f32 v{t+1}, {lit}, v{THL+e}")
        for e in range(2):
            t = T + 4 * e
            a(f"v_exp_f32 v{t}, v{t if l != 1 else 20+e}", f"v_cos_f32 v{t+2}, v{t+1}", f"v_sin_f32 v{t+1}, v{t+1}")
        for e in range(2):
            t = T + 4 * e
            a(f"v_mul_f32 v{dr+e}, v{t}, v{t+2}")
            a(f"v_mul_f32 v{di+e}, v{t}, {'-' if conj else ''}v{t+1}")
    em = [0, None]
    def it(cms, row=None, x=None, y=None):
        if em[1]: a(em[1]); em[1] = None
        for k in range(4):
            for c in cms:
                if k < len(c): a(c[k])
        if row is None: return
        t = (98, 76)[em[0] & 1]; em[0] += 1
        for v, tt in ((x, t), (y, t + 2)):
            if v is not None: a(f"v_cvt_pk_f16_f32 v{tt}, v{v}, v{v+2}", f"v_cvt_pk_f16_f32 v{tt+1}, v{v+1}, v{v+3}")
        o = (row & 3) * KG_ROW // 8
        if y is None: em[1] = f"ds_write_b64 v{VEM + row//4}, v[{t}:{t+1}] offset:{8*o}"
        else: em[1] = f"ds_write2_b64 v{VEM + row//4}, v[{t}:{t+1}], v[{t+2}:{t+3}] offset0:{o} offset1:{o + KG_ROW//8}"
    G1, G2, G3 = 40, 44, 48
    VA, VB, VC, VD = 52, 56, 60, 64
    oth = lambda c, p, q: p if c != p else q
    jl = [newlabel("JOB") for _ in range(4)]; jn = newlabel("JOBJ")
    for r in (3, 1, 2): a(f"s_cmp_eq_u32 s{S_ROLE}, {r}", f"s_cbranch_scc1 {jl[r]}")
    anchor(G2, G2 + 2, 128); scale_cb(); anchor(G1, G1 + 2, 1)
    cur = CBR
    for c in range(8):
        nx = oth(cur, VA, VB)
        it([cm_(VC, cur, G2)] + ([cm_(nx, cur, G1, T + 4)] if c < 7 else []), 2 * c, cur, VC); cur = nx
    it([])
    a(f"s_branch {jn}")
    a(f"{jl[1]}:")
    anchor(G2, G2 + 2, 128); scale_cb(); csq(G3, G2); anchor(G1, G1 + 2, 2)
    it([cm_(VA, CBR, G3)]); cur = VA
    it([cm_(VD, VA, G3)])
    for c in range(4):
        nx = oth(cur, VA, VB)
        it([cm_(VC, cur, G2), cm_(nx, cur, G1, T + 4) if c < 3 else csq_(G3, G1, T + 4)], 2 * c, cur, VC); cur = nx
    cur = VD
    for aa in range(4):
        nx = oth(cur, VA, VB)
        it([cm_(VC, cur, G3)] + ([cm_(nx, cur, G2, T + 4)] if aa < 3 else []), 8 + 2 * aa, cur, VC); cur = nx
    it([])
    a(f"s_branch {jn}")
    a(f"{jl[3]}:")
    anchor(G1, G1 + 2, 8, conj=True)
    a(f"v_mov_b32 v{VA}, {f32(32768.0)}", f"v_mov_b32 v{VA+1}, {f32(32768.0)}", f"v_mov_b32 v{VA+2}, 0", f"v_mov_b32 v{VA+3}, 0")
    sc_ = lambda d, x: [f"v_pk_mul_f32 v[{d}:{d+1}], v[{x}:{x+1}], v[{VA}:{VA+1}]", f"v_pk_mul_f32 v[{d+2}:{d+3}], v[{x+2}:{x+3}], v[{VA}:{VA+1}]"]
    it([csq_(G2, G1), sc_(VC, G1)])
    ce, co = VA, VC
    for b in range(8):
        ne, no = oth(ce, VA, VB), oth(co, VC, VD)
        it([] if b == 7 else [sc_(ne, G2) if b == 0 else cm_(ne, ce, G2), cm_(no, co, G2, T + 4)], 2 * b, ce, co); ce, co = ne, no
    it([])
    a(f"ds_write_b8 v15, v{VONE} offset:{FL_G}")
    stamp(a, 3)
    if KOFF: a(f"s_cmp_eq_u32 s{S_G}, 2", "s_cbranch_scc1 KS_G0")
    a(f"s_branch {ex}")
    if KOFF:
        a("KC_SEND:")
        lds_wait(a, FL_NONCE, VNT, "nz", addr=VNA)
        a(f"s_lshl_b32 s{T0_}, s{S_CH}, 12", f"s_lshl_b32 s{T1_}, s{S_ROLE}, 10", f"s_add_u32 s{T0_}, s{T0_}, s{T1_}", f"s_add_u32 s{T0_}, s{T0_}, {hex(WS_KT - 512*4096)}", f"v_add_u32 v24, s{T0_}, v{VLN}")
        a(f"s_mov_b32 s{T1_}, 0xffff", f"v_lshlrev_b32 v25, 16, v{VNT}")
        for r in range(4): a(f"v_cvt_f16_f32 v{20+r}, v{20+r}")
        a(f"s_cmp_lg_u32 s{S_ROLE}, 2", "s_cbranch_scc1 KC_S2")
        a("s_mov_b32 exec_lo, 0", "s_mov_b32 exec_hi, 0xffff0000")
        a(f"v_mov_b32 v20, v{VPR}", f"v_lshrrev_b32 v21, 16, v{VPR}")
        a("s_mov_b64 exec, -1")
        a("KC_S2:")
        for r in range(4): a(f"v_bfi_b32 v{20+r}, s{T1_}, v{20+r}, v{25 if r & 1 else VNT}")
        a(f"global_store_dwordx4 v24, v[20:23], s[{P_WS}:{P_WS+1}] sc1")
        stamp(a, 4)
        a("s_branch KS_G0")
        a("KC_RECV:")
        a(f"s_cmp_eq_u32 s{S_ROLE}, 3", f"s_cbranch_scc1 {ex}")
        a(f"s_lshl_b32 s{T0_}, s{S_CH}, 12", f"s_lshl_b32 s{T1_}, s{S_ROLE}, 10", f"s_add_u32 s{T0_}, s{T0_}, s{T1_}", f"s_add_u32 s{T0_}, s{T0_}, {hex(WS_KT - 512*4096)}", f"v_add_u32 v24, s{T0_}, v{VLN}")
        lds_wait(a, FL_NONCE, VNT, "nz", addr=VNA, sleep=2)
        a(f"v_lshlrev_b32 v25, 16, v{VNT}")
        stamp(a, 2)
        lds_wait(a, FL_G + {0: 0, 1: 4, 2: 16}[ENV("KTRIG", 1)], 17, "b4", sleep=2)
        lp = newlabel("KP"); l1 = newlabel("KPE")
        a(f"s_branch {l1}")
        a(f"{lp}:")
        a("s_sleep 2")
        a(f"{l1}:")
        a(f"global_load_dwordx4 v[20:23], v24, s[{P_WS}:{P_WS+1}] {MOD('KMOD')}")
        guard(a)
        a("s_waitcnt vmcnt(0)")
        for r in range(4): a(f"v_xor_b32 v{20+r}, v{25 if r & 1 else VNT}, v{20+r}")
        a("v_or3_b32 v26, v20, v21, v22", "v_or_b32 v26, v26, v23", "v_cmp_lt_u32 vcc, 0xffff, v26", f"s_cbranch_vccnz {lp}")
        stamp(a, 3)
        for r in (0, 2): a(f"v_xor_b32 v{20+r}, v{VNT}, v{20+r}")
        for r in range(4): a(f"ds_write_b16 v{IXR[r]}, v{20+r}")
        a(f"s_cmp_lg_u32 s{S_ROLE}, 2", f"s_cbranch_scc1 {ex}")
        a("v_and_b32 v20, 0xffff, v20", "v_lshl_or_b32 v20, v21, 16, v20", f"v_lshlrev_b32 v21, 16, v{VDSK}")
        a("s_mov_b32 exec_lo, 0", "s_mov_b32 exec_hi, 0x10000")
        a(f"ds_write_b64 v14, v[20:21] offset:{C_PAR}")
        a("s_mov_b64 exec, -1")
        a(f"s_branch {ex}")
    a(f"{jl[2]}:")
    anchor(G2, G2 + 2, 128); scale_cb()
    it([csq_(G1, G2), cm_(VD, CBR, G2, T + 4)]); csq(G3, G1); csq(G3, G3)
    it([cm_(VA, CBR, G3), cm_(VC, VD, G3, T + 4)])
    ce, co = VA, VC
    for r in range(4):
        ne, no = oth(ce, VA, VB), oth(co, VC, VD)
        it([cm_(ne, ce, G1)] + ([cm_(no, co, G1, T + 4)] if r < 3 else []), 2 * r, ce, co); ce, co = ne, no
    it([], 8, ce, None)
    a(f"v_mov_b32 v36, {f32(2048.0*LOG2E)}", f"v_mul_f32 v24, s{SM}, v36", "v_max_f32 v24, 0, v24", "v_exp_f32 v24, v24")
    it([])
    a(f"s_sub_u32 s{SIS}, s{SC}, 7", f"s_lshl_b32 s{SIS}, s{SIS}, 23")
    a(f"v_lshlrev_b32 v25, 16, v{VDSK}", f"v_mul_f32 v24, s{SIS}, v24", f"v_mov_b32 v{VPR}, v24")
    a(f"ds_write_b64 v14, v[24:25] offset:{C_PAR}")
    a(f"{jn}:")
    a(f"ds_write_b8 v15, v{VONE} offset:{FL_G}")
    stamp(a, 3); kstamp(a, 2)
    for s in range(8): a(f"ds_read_b128 v[{40+4*s}:{43+4*s}], v{VTL} offset:{64*s}")
    a(f"v_mov_b32 v36, {f32(LOG2E)}", f"v_mul_f32 v36, s{SM}, v36")
    a(f"v_mul_f32 v37, {f32(2048.0)}, v36", "v_max_f32 v37, 0, v37", f"v_add_f32 v37, {f32(23.0)}, v37")
    for r in range(4):
        a(f"v_fma_f32 v{LFR[r]}, v{LFR[r]}, v36, -v37")
    for r in range(4):
        a(f"v_exp_f32 v{LFR[r]}, v{LFR[r]}")
    kstamp(a, 3)
    lds_wait(a, FL_G + 3, 17, "u8", addr=14)
    kstamp(a, 4)
    tr = LdsTrack(a); ids = []
    for s in range(8):
        ids.append(tr.issue(f"ds_read_b128 v[{72+4*s}:{75+4*s}], v{VTE} offset:{KG_T[3]+64*s}"))
    for s in range(8):
        tr.wait(ids[s])
        c = "0" if s < 2 else f"v[{20+4*(s&1)}:{23+4*(s&1)}]"
        a(f"v_mfma_f32_16x16x32_f16 v[{20+4*(s&1)}:{23+4*(s&1)}], v[{40+4*s}:{43+4*s}], v[{72+4*s}:{75+4*s}], {c}")
    for r in range(4): a(f"v_add_f32 v{20+r}, v{20+r}, v{24+r}")
    for r in range(4): a(f"v_mul_f32 v{20+r}, v{20+r}, v{LFR[r]}")
    kstamp(a, 5)
    if KOFF: a(f"s_cmp_eq_u32 s{S_G}, 2", "s_cbranch_scc1 KC_SEND")
    for r in range(4):
        a(f"v_cvt_f16_f32 v{20+r}, v{20+r}")
        a(f"ds_write_b16 v{IXR[r]}, v{20+r}")
    a(f"{ex}:")
    a(f"ds_write_b8 v15, v{VONE} offset:{FL_G+4}")
    a("v_mov_b32 v28, 0", "v_mov_b32 v29, 0", "v_mov_b32 v30, 0", "v_mov_b32 v31, 0", f"v_mov_b32 v32, s{S_GB}")
    a("s_waitcnt vmcnt(0)")
    kstamp(a, 6)
    lds_wait(a, FL_G + 4, 20, "b4", addr=14)
    stamp(a, 4); kstamp(a, 7)
    for e in range(3): a(f"ds_read_u16 v{20+e}, v{I1+e}")
    for e in range(4): a(f"ds_read_u16 v{23+e}, v{I2+e}")
    a("s_mov_b64 exec, 1")
    a(f"ds_write_b128 v32, v[28:31] offset:{R_WS5}", f"ds_write_b128 v32, v[28:31] offset:{R_WS9}", f"ds_write_b128 v32, v[28:31] offset:{R_WS3 + 192*16}")
    a("s_mov_b64 exec, -1")
    a("s_waitcnt lgkmcnt(7)")
    a("v_lshl_or_b32 v28, v21, 16, v20", "v_lshl_or_b32 v29, v22, 16, v21")
    a(f"ds_write_b32 v{D1}, v28 offset:{T_DRE}", f"ds_write_b32 v{D1}, v29 offset:{T_DRO}")
    a("s_waitcnt lgkmcnt(5)")
    a("v_lshl_or_b32 v30, v24, 16, v23", "v_lshl_or_b32 v31, v26, 16, v25")
    a(f"ds_write_b32 v{D2}, v30", f"ds_write_b32 v{D3}, v31")
    a(f"ds_write_b8 v15, v{VONE} offset:{FL_G+8}")
    kstamp(a, 8)
    lds_wait(a, FL_G + 8, 20, "b4", addr=14)
    stamp(a, 5)
    PR, FT0, FT1, ACCL, ACCH, ZQ = 16, 18, 19, 20, 24, 28
    VZA, VUA = VDA, VDA2
    LA = ENV("CLA", 6); RSV = ENV("CRSV", 5); NF = ENV("CNF", 2)
    jl = [newlabel("CV") for _ in range(4)]; zend = newlabel("CVE")
    slow = []
    a(f"ds_read_b64 v[{PR}:{PR+1}], v14 offset:{C_PAR}")
    for r in range(1, 4): a(f"s_cmp_eq_u32 s{S_ROLE}, {r}", f"s_cbranch_scc1 {jl[r]}")
    for m in range(4):
        if m: a(f"{jl[m]}:")
        lo, hi = 2 * m, 2 * m + 1
        acc = {lo: ACCL, hi: ACCH}
        ops = []
        if m >= 2:
            for j in (lo, hi): ops.append((j, ("D", 32), ("U", 8 * j - 32)))
        for p in range(max(8 * lo - 16, -7), 8 * hi + 1):
            for j in (lo, hi):
                ks = 8 * j - p
                if 0 <= ks <= 16: ops.append((j, ("D", ks), ("U", p)))
        ncomb0 = len(ops)
        for j in (lo, hi):
            for kind in (3, 5):
                for b in range(6):
                    if 2 <= j - b <= 4: ops.append((j, ("W", kind, b), ("G", kind, j - b)))
            for kind in (7, 9):
                for b in range(2):
                    if j - 2 * b - 4 >= 0: ops.append((j, ("W", kind, b), ("G", kind, j - 2 * b - 4)))
        nops = len(ops)
        first, last = {}, {}
        for k, (j, A, B) in enumerate(ops):
            for key in (A, B):
                first.setdefault(key, k); last[key] = k
        lastlo = max(k for k, o in enumerate(ops) if o[0] == lo)
        pool = list(range(32, 128, 4))
        reg, lid = {}, {}
        def load(tr, key):
            rg = pool.pop(0); reg[key] = rg
            if (XP & 8 and key[0] == "G") or (XP & 16 and key[0] == "W") or (XP & 32 and key[0] == "U"):
                lid[key] = -100; return
            if key[0] == "D":
                ksv = -2 if key[1] == 32 else key[1]
                o = (16 - ksv) * 16
                ad, o = (VDA, o) if o + 3 <= 255 else (VDA2, o - 160)
                tr.issue(f"ds_read2_b32 v[{rg}:{rg+1}], v{ad} offset0:{o} offset1:{o+1}")
                lid[key] = tr.issue(f"ds_read2_b32 v[{rg+2}:{rg+3}], v{ad} offset0:{o+2} offset1:{o+3}")
            elif key[0] == "G":
                _, kind, ix = key
                if kind in (3, 5): o = (4 - ix) * 16 + (64 if kind == 5 else 0); ad = VG8
                else: o = (3 - ix) * 8 + (96 if kind == 9 else 0); ad = VG16
                tr.issue(f"ds_read2_b32 v[{rg}:{rg+1}], v{ad} offset0:{o} offset1:{o+1}")
                lid[key] = tr.issue(f"ds_read2_b32 v[{rg+2}:{rg+3}], v{ad} offset0:{o+2} offset1:{o+3}")
            elif key[0] == "U":
                lid[key] = tr.issue(f"ds_read_b128 v[{rg}:{rg+3}], v{VB_} offset:{64*(key[1]+7)}")
            else:
                _, kind, b = key
                if kind in (3, 5): o = (R_WS3 if kind == 3 else R_WS5) + 512 * b; ad, st = VT8, 64
                else: o = (R_WS7 if kind == 7 else R_WS9) + 1024 * b; ad, st = VT16, 128
                tr.issue(f"ds_read_b64_tr_b16 v[{rg}:{rg+1}], v{ad} offset:{o}")
                lid[key] = tr.issue(f"ds_read_b64_tr_b16 v[{rg+2}:{rg+3}], v{ad} offset:{o+st}")
        keys = sorted(first, key=lambda k_: first[k_])
        tr = LdsTrack(a)
        for key in keys:
            if key[0] == "D": load(tr, key)
        for key in keys:
            if key[0] == "G" and len(pool) > RSV: load(tr, key)
        pend = [k_ for k_ in keys if k_ not in reg]
        a(f"v_lshlrev_b32 v{FT0}, 3, v3", f"v_sub_u32 v{FT0}, v{VB_}, v{FT0}")
        a(f"v_lshrrev_b32 v{FT1}, 2, v2", f"v_lshl_add_u32 v{FT1}, v{FT1}, 2, v3", f"v_and_b32 v{ZQ}, 3, v2", f"v_lshlrev_b32 v{ZQ}, 4, v{ZQ}")
        if SWZ: a(f"v_mul_u32_u24 v{FT1}, s{CSH}, v{FT1}", f"v_xor_b32 v{FT1}, s{CFL}, v{FT1}")
        else: a(f"v_lshlrev_b32 v{FT1}, s{CSH}, v{FT1}")
        a("s_waitcnt lgkmcnt(0)")
        a(f"v_mov_b32 v{VUA}, v{FT0}", f"v_add_u32 v{VZA}, v{FT1}, v{ZQ}")
        a(f"v_xor_b32 v{VLN}, s{CXR}, v{VLN}")
        lds_wait(a, FL_UF, FT0, "b4")
        a(f"s_setprio {eval(os.environ.get('CPRIO', '[1,1,1,1]'))[m]}")
        stamp(a, 6); cstamp(a, 1)
        if XP & 4: a(f"v_mov_b32 v{FT0}, 0", f"s_cmp_lg_u32 s{S_G}, 0", f"s_cbranch_scc1 {zend}")
        for key in lid: lid[key] = -100
        tr = LdsTrack(a)
        ud = {}
        fill = []
        fill.append(("lds", f"ds_read_b64 v[{ZQ}:{ZQ+1}], v{VUA} offset:{480 + 512*lo}", 2))
        fill.append(("ldsU", f"ds_read_b64 v[{ZQ+2}:{ZQ+3}], v{VUA} offset:{480 + 512*hi}", 2))
        for ti, j in enumerate((lo, hi)):
            fill.append(("alloc", j, 5))
            if ti == 0: fill.append(("waitU", None, 5))
            for e in range(4):
                sel = "op_sel:[1,0,0] " if e & 1 else ""
                fill.append(("f", (lambda j=j, e=e, ti=ti, sel=sel: f"v_fma_mix_f32 v{ud[j]+e}, v{ZQ+2*ti+e//2}, v{PR+1}, 0 {sel}op_sel_hi:[1,0,0]"), 5))
            for e in range(4):
                fill.append(("f", (lambda j=j, e=e: f"v_cvt_pk_bf16_f32 v{ud[j]+e}, 0, v{ud[j]+e}"), 5))
        def epi(j, ti):
            y = acc[j]; z = ZQ + 2 * ti; out = []
            for p in range(4): out.append(lambda p=p: f"v_mul_f32 v{y+p}, v{y+p}, v{PR}")
            for p in range(4): out.append(lambda p=p: f"v_cvt_pk_bf16_f32 v{y+p}, 0, v{y+p}")
            for p in range(4): out.append(lambda p=p: f"v_add_f32 v{y+p}, v{y+p}, v{ud[j]+p}")
            for p in range(2): out.append(lambda p=p: f"v_cvt_pk_bf16_f32 v{z+p}, v{y+2*p}, v{y+2*p+1}")
            for p in range(2): out.append(lambda p=p: f"v_min_u32 v{z+p}, -2, v{z+p}")
            return out
        for f in epi(lo, 0): fill.append(("f", f, lastlo + 2))
        fill.append(("lds", f"ds_read_u8 v{FT0}, v{VZ} offset:{FL_S6 + m}", nops - 4))
        fill.append(("lds", f"ds_read_b128 v[{ACCL}:{ACCL+3}], v{VLN} offset:{G_BASE + R_RED + 1024*m}", nops - 4))
        uid = [None]
        def do_fill(n, k):
            while n > 0 and fill:
                kind, t, e = fill[0]
                if e > k: return
                if kind == "alloc":
                    if len(pool) < 2: return
                    ud[t] = pool.pop(); fill.pop(0); continue
                fill.pop(0)
                if kind == "f":
                    if XP & 2 and "v_min" not in t(): continue
                    a(t())
                elif kind == "lds": tr.issue(t)
                elif kind == "ldsU": uid[0] = tr.issue(t)
                elif kind == "waitU": tr.wait(uid[0]); continue
                n -= 1
        kW = ncomb0 - LA if nops > ncomb0 else None
        wok = [False]
        def issue_loads(k, nmax):
            while pend and pool and nmax > 0:
                key = pend[0]
                if first[key] - k > (LA if key[0] != "G" else LA + 4): return
                if key[0] == "W" and not wok[0]:
                    alt = [x for x in pend if x[0] != "W" and first[x] - k <= LA + 2]
                    if not alt: return
                    key = alt[0]
                pend.remove(key); load(tr, key); nmax -= 1
        issue_loads(0, RSV)
        started = set()
        for k, (j, A, B) in enumerate(ops):
            assert A in reg and B in reg, (m, k, A, B)
            tr.wait(max(lid[A], lid[B]))
            c = f"v[{acc[j]}:{acc[j]+3}]" if j in started else "0"
            started.add(j)
            a(f"v_mfma_f32_16x16x32_f16 v[{acc[j]}:{acc[j]+3}], v[{reg[A]}:{reg[A]+3}], v[{reg[B]}:{reg[B]+3}], {c}")
            for key in (A, B):
                if last[key] == k: pool.append(reg[key])
            if kW is not None and k == kW - 3:
                wfid = tr.issue(f"ds_read_b32 v{FT0}, v14 offset:{FL_G + 12}")
            if k == kW:
                tr.wait(wfid)
                sl = newlabel("WS"); bk = newlabel("WB")
                a(f"v_cmp_ne_u32 vcc, s{S_ONES}, v{FT0}", f"s_cbranch_vccnz {sl}")
                a(f"{bk}:")
                slow.append((sl, bk))
                wok[0] = True
                cstamp(a, 3)
            issue_loads(k + 1, 2)
            do_fill(NF, k)
            if k == ncomb0 // 2: cstamp(a, 2)
            if k == ncomb0 - 1: cstamp(a, 4)
        cstamp(a, 5)
        do_fill(1000, 1000)
        assert not fill and not pend
        stamp(a, 7)
        for f in epi(hi, 1): a(f())
        if m < 3: a(f"s_branch {zend}")
    a(f"{zend}:")
    cstamp(a, 6)
    gA = newlabel("ZA"); gC = newlabel("ZC"); zs = newlabel("ZS"); zb = newlabel("ZB"); zc = newlabel("ZCB"); zd = newlabel("ZD")
    a("s_waitcnt lgkmcnt(0)")
    a(f"s_cmp_lg_u32 s{S_G}, 1", f"s_cbranch_scc1 {gA}")
    a(f"v_cmp_ne_u32 vcc, 1, v{FT0}", f"s_cbranch_vccnz {zs}")
    a(f"{zb}:")
    a(f"s_mov_b64 exec, s[{CM}:{CM+1}]")
    for k in range(4): a(f"v_swap_b32 v{ZQ+k}, v{ACCL+k}")
    a("s_mov_b64 exec, -1")
    cstamp(a, 8)
    a(f"buffer_store_dwordx4 v[{ZQ}:{ZQ+3}], v{VZA}, s[{R0}:{R0+3}], s{CZ1} offen sc1")
    a(f"buffer_store_dwordx4 v[{ACCL}:{ACCL+3}], v{VZA}, s[{R0}:{R0+3}], s{CZ0} offen sc1")
    if ENV("ZG2", 0) == 2: a(f"ds_write_b8 v15, v{VONE} offset:{FL_ZISS - 16}")
    a(f"s_branch {zd}")
    for (sl, bk) in slow:
        a(f"{sl}:")
        lds_wait(a, FL_G + 12, FT0, "b4", addr=14)
        a(f"s_branch {bk}")
    a(f"{zs}:")
    a(f"v_mov_b32 v{FT1}, s{S_ROLE}")
    l = newlabel("ZW")
    a(f"{l}:")
    a(f"ds_read_u8 v{FT0}, v{FT1} offset:{FL_S6}")
    guard(a)
    a("s_waitcnt lgkmcnt(0)")
    a(f"v_cmp_ne_u32 vcc, 1, v{FT0}", f"s_cbranch_vccnz {l}")
    a(f"v_lshl_add_u32 v{FT1}, v{FT1}, 10, v{VLN}")
    a(f"ds_read_b128 v[{ACCL}:{ACCL+3}], v{FT1} offset:{G_BASE + R_RED}")
    a("s_waitcnt lgkmcnt(0)")
    a(f"s_branch {zb}")
    a(f"{gA}:")
    a(f"s_cmp_lg_u32 s{S_G}, 0", f"s_cbranch_scc1 {gC}")
    a(f"v_mov_b32 v{FT1}, s{S_ROLE}", f"v_lshl_add_u32 v{FT0}, v{FT1}, 10, v{VLN}")
    a(f"ds_write_b128 v{FT0}, v[{ZQ}:{ZQ+3}] offset:{G_BASE + R_RED}")
    a(f"ds_write_b8 v{FT1}, v{VONE} offset:{FL_S6}")
    cstamp(a, 8)
    a(f"s_branch {zd}")
    a(f"{gC}:")
    cstamp(a, 8)
    a(f"buffer_store_dwordx4 v[{ZQ}:{ZQ+3}], v{VZA}, s[{R0}:{R0+3}], s{CZ0} offen sc1")
    a(f"{zd}:")
    stamp(a, 8)
    if DBG:
        a(f"s_mul_i32 s{T0_}, s{S_ROLE}, 1280", f"s_add_u32 s{T1_}, s{T0_}, s{S_GB}", f"v_lshl_add_u32 v20, v1, 2, s{T1_}")
        a(f"s_mul_i32 s{T1_}, s{S_CH}, 5376", f"s_add_u32 s{T1_}, s{T1_}, s{T0_}", f"s_add_u32 s{T1_}, s{T1_}, {hex(WS_DBG)}", f"v_lshl_add_u32 v21, v1, 2, s{T1_}")
        for k in range(5 + 1):
            a(f"ds_read_b32 v22, v20 offset:{R2 + 256*k}", "s_waitcnt lgkmcnt(0)", f"global_store_dword v21, v22, s[{P_WS}:{P_WS+1}] offset:{256*k}")
        a(f"ds_read_b32 v22, v14 offset:{C_PAR}", f"s_lshl_b32 s{T1_}, s{S_CH}, 2", f"s_add_u32 s{T1_}, s{T1_}, {hex(WS_DBG + 0x300000)}", f"v_mov_b32 v21, s{T1_}")
        a("s_waitcnt lgkmcnt(0)", f"global_store_dword v21, v22, s[{P_WS}:{P_WS+1}]")
    a(f"s_lshl_b32 s{T0_}, s{S_G}, 2", f"s_add_u32 s{T0_}, s{T0_}, s{S_ROLE}", f"v_mov_b32 v8, s{T0_}")
    a("s_waitcnt vmcnt(0)")
    a(f"ds_write_b8 v8, v{VONE} offset:{FL_ZDONE}")


def gen_wjobs(a):
    WA, WD = 10, 11
    end = newlabel("WJE"); w1 = newlabel("WJ1"); w2 = newlabel("WJ2")
    a(f"s_cmp_eq_u32 s{S_WAVE}, 2", f"s_cbranch_scc1 {w2}")
    if XP & 1: a(f"s_branch {w2}")
    a(f"s_add_u32 s{T0_}, s{S_WAVE}, 1", f"s_lshr_b32 s{T0_}, s{T0_}, 2", f"s_cmp_eq_u32 s{S_WAVE}, 1", f"s_cselect_b32 s{T0_}, 2, s{T0_}", f"s_lshl_b32 s{T0_}, s{T0_}, 10")
    a(f"v_lshl_add_u32 v{WA}, v1, 4, s{T0_}", f"v_add_u32 v{WD}, {G_BASE}, v{WA}")
    lds_wait(a, FL_UF, 12, "b4")
    a(f"s_setprio {ENV('WPRIO', 3)}")
    for g in range(3):
        E = 20 + 12 * g; o = C_U + U_SIZE * g + 2 * (240 - 16)
        a(f"ds_read_b128 v[{E}:{E+3}], v{WA} offset:{o}", f"ds_read_b128 v[{E+4}:{E+7}], v{WA} offset:{o+16}", f"ds_read_b64 v[{E+8}:{E+9}], v{WA} offset:{o+32}")
    a(f"s_cmp_eq_u32 s{S_WAVE}, 1", f"s_cbranch_scc1 {w1}")
    for full in (1, 0):
        if not full: a(f"{w1}:")
        for g in range(3):
            if g == 2: a(f"s_cmp_lt_u32 s{S_I}, 24", f"s_cbranch_scc1 {end}")
            E = lambda i: 20 + 12 * g + i
            O = lambda i: 56 + i
            T = lambda i: 65 + i
            Q = lambda i: 72 + i
            X = lambda i: 79 + i
            Y = lambda i: 85 + i
            W7, W9 = 92, 96
            a(f"ds_read_b32 v12, v{VZ} offset:{FL_G + 16*g + 4}")
            if g == 0: a("s_waitcnt lgkmcnt(7)")
            n = 8 if full else 7
            for i in range(1, n + 1): a(f"v_alignbit_b32 v{O(i)}, v{E(i+1)}, v{E(i)}, 16")
            for i in range(1, n + 1): a(f"v_pk_add_f16 v{T(i)}, v{O(i)}, v{E(i+1)}")
            for i in range(1, 5): a(f"v_pk_add_f16 v{X(i)}, v{T(i)}, v{O(i+1)}")
            for i in (range(2, 8) if full else range(3, 7)): a(f"v_pk_add_f16 v{Q(i)}, v{T(i)}, v{T(i+1)}")
            ok = newlabel("WJK")
            a("s_waitcnt lgkmcnt(0)")
            a(f"v_cmp_eq_u32 vcc, s{S_ONES}, v12", f"s_cbranch_vccnz {ok}")
            lds_wait(a, FL_G + 16 * g + 4, 12, "b4", sleep=1)
            a(f"{ok}:")
            off = G_SIZE * (g & 1)
            if g == 2: a(f"v_add_u32 v{WD}, {2*G_SIZE}, v{WD}")
            a(f"ds_write_b128 v{WD}, v[{X(1)}:{X(4)}] offset:{off + R_WS3}")
            for i in (range(2, 7) if full else range(3, 7)): a(f"v_pk_add_f16 v{Y(i)}, v{E(i)}, v{Q(i)}")
            a(f"ds_write_b128 v{WD}, v[{Y(3)}:{Y(6)}] offset:{off + R_WS5 + 16}")
            if full:
                for i in range(5, 8): a(f"v_pk_add_f16 v{X(i)}, v{T(i)}, v{O(i+1)}")
                for k in range(4): a(f"v_pk_add_f16 v{W7+k}, v{Q(2+k)}, v{X(4+k)}")
                a(f"ds_write_b128 v{WD}, v[{W7}:{W7+3}] offset:{off + R_WS7}")
                for k in range(4): a(f"v_pk_add_f16 v{W9+k}, v{Y(2+k)}, v{Q(4+k)}")
                a(f"ds_write_b128 v{WD}, v[{W9}:{W9+3}] offset:{off + R_WS9 + 16}")
            a(f"ds_write_b8 v116, v{VONE} offset:{FL_G + 16*g + 12}")
        a(f"s_branch {end}")
    a(f"{w2}:")
    for g in range(3): a(f"ds_write_b8 v116, v{VONE} offset:{FL_G + 16*g + 12}")
    if PF2 > PF1 or PFD:
        W2 = ENV("PF2W", 14)
        a(f"s_sub_u32 s{T2_}, s{S_I}, {ENV('PF2B', 18)}", f"s_and_b32 s{T2_}, s{T2_}, 31", f"s_cmp_ge_u32 s{T2_}, {W2}", f"s_cbranch_scc1 {end}")
        pf_lane(a, 100, 101)
        lds_wait(a, FL_UF, 12, "b4", sleep=1)
        if PF2 > PF1:
            pf_gu(a, 100, T2_, W2, PF1, PF2, 102, "KS_PF2D")
            a("KS_PF2D:")
        if PFD:
            a(f"s_sub_u32 s{T2_}, {W2-1}, s{T2_}")
            pf_down(a, T2_, W2, 0, PFD, 100, 120, end)
    a(f"{end}:")

def gen(a):
    label = NAME + "_kernel"
    a(f".globl {label}", ".p2align 8", f".type {label},@function", f"{label}:")
    a("s_cmp_ge_u32 s2, 256", "s_cbranch_scc1 KS_END")
    stamp_begin(a)
    a("s_load_dwordx16 s[4:19], s[0:1], 0", "s_load_dwordx16 s[20:35], s[0:1], 64", f"s_load_dwordx2 s[{P_WS}:{P_WS+1}], s[0:1], 128")
    a(f"v_readfirstlane_b32 s{S_WAVE}, v0", f"s_lshr_b32 s{S_WAVE}, s{S_WAVE}, 6")
    a(f"s_and_b32 s{S_XC}, s2, 7", f"s_lshr_b32 s{S_I}, s2, 3")
    if ENV("CPF", 1):
        a(f"s_cmp_lg_u32 s{S_WAVE}, {ENV('CPFW', 0)}", "s_cbranch_scc1 KS_CPE")
        cm = ENV("CPFM", 0)
        if cm == 1: a(f"s_sub_u32 s{T0_}, s{S_I}, 8", f"s_cmp_lt_u32 s{T0_}, 16", "s_cbranch_scc1 KS_CPE")
        if cm == 2: a(f"s_cmp_lt_u32 s{S_I}, 24", "s_cbranch_scc1 KS_CPE")
        if cm == 3: a(f"s_cmp_ge_u32 s{S_I}, 8", "s_cbranch_scc1 KS_CPE")
        if cm == 4: a(f"s_cmp_ge_u32 s{S_I}, 4", "s_cbranch_scc1 KS_CPE")
        if cm == 5: a(f"s_cmp_lt_u32 s{S_I}, 28", "s_cbranch_scc1 KS_CPE")
        a("s_getpc_b64 s[42:43]")
        a("KS_PC:")
        a(f"s_and_b32 s{T0_}, s{S_I}, 7", f"s_mul_i32 s{T0_}, s{T0_}, 4608", "v_and_b32 v126, 63, v0", f"v_lshl_add_u32 v126, v126, 7, s{T0_}", "v_min_u32 v126, KS_END-KS_PC, v126")
        a(f"global_load_dword v127, v126, s[42:43] {MOD('CPFMOD', '')}")
        a("KS_CPE:")
    if ENV("REMAP", 1):
        a(f"s_add_u32 s{T0_}, s{S_WAVE}, 8", f"s_sub_u32 s{T1_}, s{S_WAVE}, 4", f"s_cmp_lt_u32 s{S_WAVE}, 8", f"s_cselect_b32 s{T0_}, s{T0_}, s{T1_}")
        a(f"s_cmp_lt_u32 s{S_WAVE}, 4", f"s_cselect_b32 s{S_WAVE}, s{S_WAVE}, s{T0_}")
    a("v_and_b32 v1, 63, v0", "v_and_b32 v2, 15, v1", "v_lshrrev_b32 v3, 4, v1", f"v_mov_b32 v{VZ}, 0", f"v_mov_b32 v{VONE}, 1")
    a(f"s_mov_b32 s{S_GUARD}, {GUARD}", f"s_mov_b32 s{S_ONES}, 0x01010101")
    a(f"s_lshl_b32 s{S_B2}, s{S_XC}, 5", f"s_add_u32 s{S_B2}, s{S_B2}, s{S_I}")
    a(f"s_mul_i32 s{S_BLK}, s{S_XC}, 18", f"s_add_u32 s{S_BLK}, s{S_BLK}, s{S_I}")
    a(f"s_cmp_lt_u32 s{S_WAVE}, 4", "s_cbranch_scc1 KS_L")
    a(f"s_cmp_ge_u32 s{S_WAVE}, 12", "s_cbranch_scc1 KS_X")
    a("s_setprio 2")
    a(f"s_lshr_b32 s{S_G}, s{S_WAVE}, 2", f"s_sub_u32 s{S_G}, s{S_G}, 1")
    a(f"s_mul_i32 s{S_ROLE}, s{S_G}, 3", f"s_xor_b32 s{S_ROLE}, s{S_ROLE}, s{S_WAVE}", f"s_and_b32 s{S_ROLE}, s{S_ROLE}, 3")
    a(f"s_lshl_b32 s{S_CH}, s{S_B2}, 1", f"s_add_u32 s{S_CH}, s{S_CH}, s{S_G}")
    a(f"s_lshl_b32 s{T0_}, s{S_ROLE}, 11", f"s_add_u32 s{T0_}, s{T0_}, {C_STG}", f"v_lshl_add_u32 v28, v1, 3, s{T0_}")
    pre_ixlf(a)
    a("KS_GRP:")
    gen_group(a)
    a(f"s_cmp_lg_u32 s{S_WAVE}, 4", "s_cbranch_scc1 KS_K1")
    a("s_setprio 0")
    srd(a, R3, P_WS, 12288, WS_KEYS)
    a("v_and_b32 v6, 1, v1", "v_lshlrev_b32 v6, 4, v6", f"s_lshl_b32 s{T0_}, s{S_B2}, 5")
    lds_wait(a, FL_ZF, 8, "b4", sleep=1)
    a("s_mov_b64 exec, 3")
    a(f"s_setprio {ENV('KSPRIO', 1)}")
    a("KS_K0:")
    a(f"ds_read_b128 v[8:11], v6 offset:{C_KEY}")
    guard(a)
    a("s_waitcnt lgkmcnt(0)")
    a("v_min3_u32 v12, v8, v9, v10", "v_min_u32 v12, v12, v11", "v_cmp_eq_u32 vcc, 0, v12", "s_cbranch_vccnz KS_K0")
    a(f"buffer_store_dwordx4 v[8:11], v6, s[{R3}:{R3+3}], s{T0_} offen sc1")
    a("s_mov_b64 exec, -1")
    stamp2(a, 4)
    a("s_waitcnt vmcnt(0)")
    a(f"ds_write_b32 v{VZ}, v{VONE} offset:{FL_KACK}")
    a("KS_K1:")
    a(f"s_cmp_lt_u32 s{S_I}, 18", "s_cbranch_scc1 KS_T")
    a("s_waitcnt lgkmcnt(0)")
    endwave(a)
    a("KS_X:")
    a(f"s_cmp_lt_u32 s{S_I}, 24", "s_cbranch_scc1 KS_X2")
    a(f"s_setprio {ENV('KCPRIO', 2)}")
    a("KS_XC:")
    a(f"s_mov_b32 s{S_G}, 2", f"s_add_u32 s{S_ROLE}, s{S_WAVE}, 3", f"s_and_b32 s{S_ROLE}, s{S_ROLE}, 3")
    a(f"s_lshl_b32 s{S_CH}, s{S_XC}, 3", f"s_and_b32 s{T0_}, s{S_I}, 7", f"s_add_u32 s{S_CH}, s{S_CH}, s{T0_}", f"s_add_u32 s{S_CH}, s{S_CH}, 512")
    a(f"s_lshl_b32 s{T0_}, s{S_ROLE}, 11", f"s_add_u32 s{T0_}, s{T0_}, {C_STG}", f"v_lshl_add_u32 v28, v1, 3, s{T0_}")
    a("s_branch KS_GRP")
    a("KS_X2:")
    a(f"s_cmp_lt_u32 s{S_I}, 8", "s_cbranch_scc1 KS_X3")
    a(f"s_sub_u32 s{T5_}, s{S_WAVE}, 8")
    a("s_branch KS_LN1")
    a("KS_X3:")
    a(f"s_lshl_b32 s{T0_}, s2, 4", f"s_add_u32 s{T0_}, s{T0_}, s{S_WAVE}", f"s_cmp_lg_u32 s{T0_}, {16*ENV('NPUB', 2) + 12}", "s_cbranch_scc1 KS_X3B")
    a("s_setprio 3")
    a(f"s_memrealtime s[{T0_}:{T1_}]")
    a("v_and_b32 v6, 3, v1", "v_lshlrev_b32 v7, 2, v6", "v_min_u32 v6, 2, v6", "v_lshlrev_b32 v6, 2, v6", "v_cmp_eq_u32 vcc, 3, v1")
    a("s_waitcnt lgkmcnt(0)")
    a(f"v_mov_b32 v8, s{T0_}", f"v_mov_b32 v9, s{T1_}", "v_alignbit_b32 v8, v8, v8, v6", f"v_cndmask_b32 v9, v{VZ}, v9, vcc", "v_xor_b32 v8, v8, v9")
    a("v_and_b32 v9, 0xf0000fff, v8", "v_and_b32 v10, 0xfff000, v8", "v_lshl_or_b32 v9, v10, 4, v9", "v_lshrrev_b32 v10, 12, v8", "v_and_b32 v10, 0xf000, v10")
    a("v_or3_b32 v9, v9, v10, v9", "v_or_b32 v9, 0x80000000, v9")
    a("s_mov_b64 exec, 15")
    a(f"global_store_dword v7, v9, s[{P_DBG}:{P_DBG+1}] sc1")
    if SPIN: a(f"v_mov_b32 v8, s{T0_}", f"global_store_dword v7, v8, s[{P_DBG}:{P_DBG+1}] offset:64 sc1")
    a("s_mov_b64 exec, -1")
    a("s_setprio 0")
    a("KS_X3B:")
    if KOFF:
        a(f"s_setprio {ENV('KPPRIO', 3)}")
        a("s_branch KS_XC")
    a("s_waitcnt lgkmcnt(0)")
    a("s_barrier")
    a("s_branch KS_G")
    a("KS_X4:")
    a(f"s_cmp_lt_u32 s{S_I}, 18", "s_cbranch_scc1 KS_G")
    a("s_waitcnt vmcnt(0) lgkmcnt(0)")
    endwave(a)
    a("KS_L:")
    a("v_lshlrev_b32 v6, 2, v0", f"ds_write_b32 v6, v{VZ}")
    a("v_mov_b32 v8, 0", "v_mov_b32 v9, 0", f"s_min_u32 s{T0_}, s{S_WAVE}, 2", f"s_mul_i32 s{T0_}, s{T0_}, {U_SIZE}", "v_min_u32 v6, 59, v1", f"v_lshl_add_u32 v6, v6, 3, s{T0_}")
    a(f"ds_write_b64 v6, v[8:9] offset:{C_U}")
    a(f"s_mov_b32 s{T5_}, s{S_WAVE}")
    a(f"s_sub_u32 s{T0_}, s{S_I}, 8", f"s_cmp_lt_u32 s{T0_}, 16", "s_cbranch_scc0 KS_L0")
    a("KS_LN1:")
    a("s_setprio 3")
    gen_ln1(a)
    if NLL or NL2:
        if not NL: pf_lane(a, 46, 47)
        a(f"s_cmp_ge_u32 s{S_I}, 18", "s_cbranch_scc1 KS_LL2")
        if NLL:
            a(f"s_mul_i32 s{T2_}, s{S_WAVE}, 10", f"s_add_u32 s{T2_}, s{T2_}, s{S_I}", f"s_sub_u32 s{T2_}, s{T2_}, 8")
            pf_gu(a, 46, T2_, 40, PFA, PFA + 10 * NLL, 47, "KS_LLE")
        a("s_branch KS_LLE")
        a("KS_LL2:")
        if NL2:
            a(f"s_mul_i32 s{T2_}, s{S_WAVE}, 6", f"s_add_u32 s{T2_}, s{T2_}, s{S_I}", f"s_sub_u32 s{T2_}, s{T2_}, 18")
            pf_gu(a, 46, T2_, 24, PFA + 10 * NLL, PF0, 47, "KS_LLE")
        a("KS_LLE:")
    a(f"s_mov_b32 s{S_G}, 1")
    a("s_branch KS_L2B")
    a("KS_L0:")
    a(f"s_and_b32 s{T0_}, s{S_I}, 15", f"s_lshl_b32 s{T1_}, s{S_XC}, 4", f"s_add_u32 s{T0_}, s{T0_}, s{T1_}")
    a("v_and_b32 v59, 3, v1", "v_lshlrev_b32 v59, 2, v59")
    a(f"s_lshl_b32 s{T4_}, s{T0_}, 6", f"s_add_u32 s{T1_}, s{T4_}, {hex(WS_FLAG1)}", f"v_add_u32 v7, s{T1_}, v59")
    a(f"s_mul_i32 s{T1_}, s{T0_}, {CLR_WG}", f"s_add_u32 s{T1_}, s{T1_}, {hex(WS_CLR)}")
    a("v_lshlrev_b32 v6, 4, v0")
    a("v_mov_b32 v12, -1", "v_mov_b32 v13, -1", "v_mov_b32 v14, -1", "v_mov_b32 v15, -1")
    a("s_setprio 3")
    pf_lane(a, 16, 17)
    a("s_waitcnt lgkmcnt(0)")
    a(f"s_add_u32 s{R1}, s{P_WS}, s{T1_}", f"s_addc_u32 s{R1+1}, s{P_WS+1}, 0", f"s_mov_b32 s{R1+2}, {CLR_WG}", f"s_mov_b32 s{R1+3}, 0x20000")
    if ENV("UPRE", 0):
        srd(a, R0, P_WS, 0xC00000)
        a(f"s_lshl_b32 s{T2_}, s{S_WAVE}, 3", f"s_xor_b32 s{T2_}, s{T2_}, s{S_B2}", f"s_lshl_b32 s{T2_}, s{T2_}, 13")
        a(f"s_and_b32 s{T3_}, s{S_I}, 3", f"s_lshl_b32 s{T0_}, s{S_XC}, 2", f"s_add_u32 s{T3_}, s{T3_}, s{T0_}", f"s_lshl_b32 s{T3_}, s{T3_}, 13")
        a(f"s_add_u32 s{T0_}, s{T3_}, {256*8192}", f"s_cmp_eq_u32 s{S_WAVE}, 2", f"s_cselect_b32 s{T2_}, s{T0_}, s{T2_}")
        a(f"s_add_u32 s{T0_}, s{T3_}, {hex(WS_KT)}", f"s_cmp_eq_u32 s{S_WAVE}, 3", f"s_cselect_b32 s{T2_}, s{T0_}, s{T2_}")
        a(f"s_lshl_b32 s{T0_}, s{S_I}, 2", f"s_add_u32 s{T0_}, s{T0_}, s{S_WAVE}", f"s_and_b32 s{T0_}, s{T0_}, 0x72", f"s_cmp_gt_u32 s{T0_}, 0x62", f"s_cselect_b32 s{T0_}, 0, s{T0_}")
        a(f"s_bitcmp1_b32 s{T0_}, 1", "s_cbranch_scc1 KS_UPE")
        a("v_lshlrev_b32 v125, 7, v1", f"buffer_load_dword v124, v125, s[{R0}:{R0+3}], s{T2_} offen {MOD('UPMOD')}")
        a("KS_UPE:")
    a("s_barrier")
    if NE:
        a(f"s_and_b32 s{T2_}, s{S_I}, 15", f"s_lshl_b32 s{T3_}, s{S_WAVE}, 4", f"s_add_u32 s{T2_}, s{T2_}, s{T3_}")
        pf_gu(a, 16, T2_, 64, PFB + 16 * NL, PFA, 18, "KS_L1E")
        a("KS_L1E:")
    TW = eval(os.environ.get("TW", "[]"))
    for (w, base, off, nb, sh) in TW:
        l = newlabel("TW")
        a(f"s_cmp_lg_u32 s{S_WAVE}, {w}", f"s_cbranch_scc1 {l}")
        srd(a, R0, {"ws": P_WS, "out": P_OUT}[base], nb, off)
        a(f"v_lshlrev_b32 v125, {sh}, v1", f"buffer_load_dword v124, v125, s[{R0}:{R0+3}], 0 offen")
        a(f"{l}:")
    if ENV("CTRIG", 1): lds_wait(a, FL_PARAM, 8, "nz", sleep=2)
    for k in range((CLR_WG + 4095) // 4096):
        a(f"s_mov_b32 s{T0_}, {4096*k}")
        a(f"buffer_store_dwordx4 v[12:15], v6, s[{R1}:{R1+3}], s{T0_} offen {MOD('CMOD')}")
    stamp(a, 1)
    a(f"global_load_dword v58, v59, s[{P_DBG}:{P_DBG+1}] sc1")
    dbg_wait(a, 0)
    stamp(a, 2)
    a(f"ds_write_b32 v59, v58 offset:{FL_NONCE}")
    a("s_mov_b64 exec, 1")
    a(f"ds_add_rtn_u32 v8, v{VZ}, v{VONE} offset:{FL_LNACK}")
    a("s_mov_b64 exec, -1")
    for d in range(1, 4): a(f"v_lshrrev_b32 v{58-d}, {3*d}, v58")
    a("s_waitcnt lgkmcnt(0)")
    a(f"v_readfirstlane_b32 s{T0_}, v8")
    a(f"s_cmp_lg_u32 s{T0_}, 3", "s_cbranch_scc1 KS_L2")
    a("s_mov_b64 exec, 15")
    a(f"global_store_dword v7, v58, s[{P_WS}:{P_WS+1}] sc1")
    a("s_mov_b64 exec, -1")
    a(f"s_and_b32 s{T2_}, s{S_I}, 7")
    a(f"s_cmp_ge_u32 s{S_I}, 8", "s_cbranch_scc1 KS_L1C")
    if NN:
        a("s_setprio 0")
        lds_wait(a, FL_G + 32 + 4, 8, "b4", sleep=2)
        a("s_setprio 3")
        pf_gu(a, 16, T2_, 8, PF0, PF0 + 8 * NN, 18, "KS_L2")
    a("s_branch KS_L2")
    a("KS_L1C:")
    if NC: pf_gu(a, 16, T2_, 8, PF0 + 8 * NN, PF1, 18, "KS_L2")
    a("KS_L2:")
    a(f"s_mov_b32 s{S_G}, 0")
    a("KS_L2B:")
    srd(a, R0, P_WS, XBYTES, WS_UT)
    if UL:
        a("v_lshrrev_b32 v7, 1, v1", "v_lshlrev_b32 v7, 7, v7", "v_and_b32 v10, 1, v1", "v_lshl_add_u32 v7, v10, 4, v7", "v_lshlrev_b32 v9, 4, v1")
        a("v_lshrrev_b32 v13, 2, v1", "v_lshlrev_b32 v13, 7, v13", "v_and_b32 v12, 3, v1", "v_lshl_add_u32 v13, v12, 4, v13")
        a(f"s_lshl_b32 s{T0_}, s{S_WAVE}, 12", f"s_lshr_b32 s{T1_}, s{S_B2}, 1", f"s_lshl_b32 s{T2_}, s{T1_}, 8", f"s_lshl_b32 s{T1_}, s{T1_}, 14", f"s_add_u32 s{T1_}, s{T1_}, s{T0_}")
        a(f"s_and_b32 s{T3_}, s{S_B2}, 1", f"s_lshl_b32 s{T3_}, s{T3_}, 6", f"s_add_u32 s{T1_}, s{T1_}, s{T3_}")
        a(f"s_and_b32 s{T3_}, s{T2_}, 0x700", f"v_xor_b32 v13, s{T3_}, v13", f"s_and_b32 s{T2_}, s{T2_}, 0x1800", f"s_xor_b32 s{T1_}, s{T1_}, s{T2_}")
        a(f"s_xor_b32 s{T5_}, s{T1_}, 0x800")
        a(f"s_lshl_b32 s{T3_}, s{S_XC}, 3", f"s_add_u32 s{T3_}, s{T3_}, s{S_I}", f"s_add_u32 s{T3_}, s{T3_}, {512 - 24}")
        a(f"s_lshr_b32 s{T4_}, s{T3_}, 2", f"s_lshl_b32 s{T4_}, s{T4_}, 14", f"s_and_b32 s{T3_}, s{T3_}, 3", f"s_lshl_b32 s{T3_}, s{T3_}, 5")
        a(f"s_add_u32 s{T3_}, s{T3_}, s{T4_}", f"s_add_u32 s{T3_}, s{T3_}, s{T0_}")
        a(f"s_lshr_b32 s{T4_}, s{T4_}, 6", f"s_and_b32 s{T2_}, s{T4_}, 0xf00", f"v_xor_b32 v7, s{T2_}, v7", f"s_and_b32 s{T4_}, s{T4_}, 0x1000", f"s_xor_b32 s{T3_}, s{T3_}, s{T4_}")
        a(f"s_lshl_b32 s{T0_}, s{S_WAVE}, 11")
    else:
        a("v_lshrrev_b32 v7, 1, v1", "v_lshlrev_b32 v7, 6, v7", "v_and_b32 v10, 1, v1", "v_lshl_add_u32 v7, v10, 4, v7", "v_lshlrev_b32 v9, 4, v1")
        a(f"s_lshl_b32 s{T0_}, s{S_WAVE}, 11", f"s_lshl_b32 s{T1_}, s{S_B2}, 13", f"s_add_u32 s{T1_}, s{T1_}, s{T0_}")
        if SWU:
            a(f"s_lshl_b32 s{T2_}, s{S_B2}, 7", f"s_and_b32 s{T3_}, s{T2_}, 0x380", f"v_xor_b32 v13, s{T3_}, v9", f"s_and_b32 s{T2_}, s{T2_}, 0x1c00", f"s_xor_b32 s{T1_}, s{T1_}, s{T2_}")
        else: a("v_mov_b32 v13, v9")
        a(f"s_xor_b32 s{T5_}, s{T1_}, 0x400")
        a(f"s_lshl_b32 s{T3_}, s{S_XC}, 3", f"s_add_u32 s{T3_}, s{T3_}, s{S_I}", f"s_add_u32 s{T3_}, s{T3_}, {512 - 24}")
        a(f"s_lshr_b32 s{T4_}, s{T3_}, 1", f"s_lshl_b32 s{T4_}, s{T4_}, 13", f"s_and_b32 s{T3_}, s{T3_}, 1", f"s_lshl_b32 s{T3_}, s{T3_}, 5")
        a(f"s_add_u32 s{T3_}, s{T3_}, s{T4_}", f"s_add_u32 s{T3_}, s{T3_}, s{T0_}")
        if SWU:
            a(f"s_lshr_b32 s{T4_}, s{T4_}, 6", f"s_and_b32 s{T2_}, s{T4_}, 0x780", f"v_xor_b32 v7, s{T2_}, v7", f"s_and_b32 s{T4_}, s{T4_}, 0x1800", f"s_xor_b32 s{T3_}, s{T3_}, s{T4_}")
    a(f"s_cmp_lt_u32 s{S_I}, 24", f"s_cselect_b32 s{T3_}, {XBYTES}, s{T3_}", f"s_cselect_b32 s{T2_}, 0, {hex(TAGM)}")
    a(f"v_mov_b32_dpp v64, v58 quad_perm:[0,1,0,1] {DPPM}", f"v_mov_b32_dpp v65, v58 quad_perm:[2,3,2,3] {DPPM}")
    a(f"s_bitcmp1_b32 s{S_I}, 0", "s_cselect_b64 vcc, -1, 0", "v_cndmask_b32 v64, v64, v65, vcc")
    for d in range(4): a(f"v_and_b32 v{60+d}, {hex(TAGM)}, v{58-d}")
    for d in range(3, 0, -1): a(f"v_lshrrev_b32 v{64+d}, {3*d}, v64")
    for d in range(4): a(f"v_and_b32 v{64+d}, s{T2_}, v{64+d}")
    a(f"s_lshl_b32 s{T4_}, s{S_WAVE}, 10", f"s_add_u32 s{T4_}, s{T4_}, {C_U + 480}")
    a("v_bfe_u32 v11, v1, 1, 1", f"v_mul_u32_u24 v11, {U_SIZE}, v11", "v_lshl_add_u32 v11, v10, 4, v11", "v_lshrrev_b32 v10, 2, v1", "v_lshl_add_u32 v11, v10, 5, v11", f"v_add_u32 v11, s{T4_}, v11")
    a(f"v_add_u32 v10, s{T4_}, v9")
    a(f"v_mov_b32 v116, s{S_WAVE}")
    a(f"s_add_u32 s{T0_}, s{T0_}, {hex(WS_FLAG1)}", "v_lshrrev_b32 v12, 2, v1", "v_lshl_add_u32 v12, v12, 6, v59", f"v_add_u32 v12, s{T0_}, v12")
    UT = eval(os.environ.get("UT", "(20, 4, 24)"))
    a(f"s_cmp_lt_u32 s{S_I}, 8", f"s_cselect_b32 s{T2_}, {UT[0]}, {UT[1]}", f"s_cmp_ge_u32 s{S_I}, 24", f"s_cselect_b32 s{T2_}, {UT[2]}, s{T2_}", f"v_mov_b32 v14, s{T2_}")
    a("s_setprio 0")
    a("s_waitcnt vmcnt(0)")
    a(f"ds_write_b8 v116, v{VONE} offset:{FL_UTOK + 4}")
    stamp(a, 8)
    lds_wait(a, FL_G, 8, "b4", addr=14, sleep=2)
    a("s_setprio 3")
    stamp(a, 5)
    if ENV("UDELAY", 0): a(f"s_sleep {ENV('UDELAY', 0)}")
    lp = newlabel("UP"); l1 = newlabel("UPE")
    UM = os.environ.get("UMOD", "sc1").replace("_", " ")
    MK = [6, 8, 10, 12]
    if ENV("MPOLL", 0):
        for m in MK: a(f"s_mov_b64 s[{m}:{m+1}], -1")
        a(f"s_mov_b32 s{SP0}, {hex(TAGM)}")
    a(f"s_branch {l1}")
    a(f"{lp}:")
    a(f"s_sleep {ENV('USLEEP', 2)}")
    a(f"{l1}:")
    if ENV("MPOLL", 0):
        lds = [f"buffer_load_dwordx4 v[20:23], v13, s[{R0}:{R0+3}], s{T1_} offen {UM}", f"buffer_load_dwordx4 v[24:27], v13, s[{R0}:{R0+3}], s{T5_} offen {UM}",
               f"buffer_load_dwordx4 v[28:31], v7, s[{R0}:{R0+3}], s{T3_} offen {UM}"]
        for k in range(3): a(f"s_mov_b64 exec, s[{MK[k]}:{MK[k]+1}]", lds[k])
        a(f"s_mov_b64 exec, s[{MK[3]}:{MK[3]+1}]")
        a(f"global_load_dword v32, v12, s[{P_WS}:{P_WS+1}] sc1", f"global_load_dword v33, v12, s[{P_WS}:{P_WS+1}] offset:1024 sc1")
        guard(a)
        for k in range(3):
            a(f"s_mov_b64 exec, s[{MK[k]}:{MK[k]+1}]", f"s_waitcnt vmcnt({4-k})")
            for d in range(4): a(f"v_xor_b32 v{20+4*k+d}, v{(64 if k == 2 else 60)+d}, v{20+4*k+d}")
            a(f"v_or3_b32 v44, v{20+4*k}, v{21+4*k}, v{22+4*k}", f"v_bitop3_b32 v44, v44, v{23+4*k}, s{SP0} bitop3:0xa8", f"v_cmp_ne_u32 s[{MK[k]}:{MK[k]+1}], 0, v44")
        a(f"s_mov_b64 exec, s[{MK[3]}:{MK[3]+1}]", "s_waitcnt vmcnt(0)")
        a("v_xor_b32 v32, v58, v32", "v_bitop3_b32 v32, v32, v58, v33 bitop3:0xf6", f"v_cmp_ne_u32 s[{MK[3]}:{MK[3]+1}], 0, v32")
        a(f"s_or_b64 vcc, s[{MK[0]}:{MK[0]+1}], s[{MK[1]}:{MK[1]+1}]", f"s_or_b64 vcc, vcc, s[{MK[2]}:{MK[2]+1}]", f"s_or_b64 vcc, vcc, s[{MK[3]}:{MK[3]+1}]", f"s_cbranch_scc1 {lp}")
        a("s_mov_b64 exec, -1")
    else:
        a(f"global_load_dword v32, v12, s[{P_WS}:{P_WS+1}] {MOD('FMOD')}", f"global_load_dword v33, v12, s[{P_WS}:{P_WS+1}] offset:1024 {MOD('FMOD')}")
        a(f"buffer_load_dwordx4 v[20:23], v13, s[{R0}:{R0+3}], s{T1_} offen {UM}")
        a(f"buffer_load_dwordx4 v[24:27], v13, s[{R0}:{R0+3}], s{T5_} offen {UM}")
        a(f"buffer_load_dwordx4 v[28:31], v7, s[{R0}:{R0+3}], s{T3_} offen {UM}")
        guard(a)
        for k in range(3):
            a(f"s_waitcnt vmcnt({2-k})")
            if k == 0: a("v_xor_b32 v32, v58, v32", "v_xor_b32 v33, v58, v33")
            for d in range(4): a(f"v_xor_b32 v{20+4*k+d}, v{(64 if k == 2 else 60)+d}, v{20+4*k+d}")
            a(f"v_or3_b32 v44, v{20+4*k}, v{21+4*k}, v{44 if k else 21}", f"v_or3_b32 v44, v{22+4*k}, v{23+4*k}, v44")
        a(f"v_and_b32 v44, {hex(TAGM)}, v44", "v_or3_b32 v44, v44, v32, v33", "v_cmp_ne_u32 vcc, 0, v44", f"s_cbranch_vccnz {lp}")
    stamp(a, 6)
    a("ds_write_b128 v11, v[20:23]", "ds_write_b128 v11, v[24:27] offset:512", f"ds_write_b128 v10, v[28:31] offset:{2*U_SIZE}")
    a(f"ds_write_b8 v116, v{VONE} offset:{FL_UF}")
    stamp(a, 7)
    gen_wjobs(a)
    a("s_setprio 0")
    a(f"s_lshr_b32 s{T0_}, s{S_B2}, 6", f"s_lshl_b32 s{T0_}, s{T0_}, 9")
    a(f"s_bfe_u32 s{T1_}, s{S_B2}, 0x20004", f"s_lshl_b32 s{T1_}, s{T1_}, 6", f"s_add_u32 s{T0_}, s{T0_}, s{T1_}")
    a(f"s_and_b32 s{T1_}, s{S_B2}, 3", f"s_lshl_b32 s{T1_}, s{T1_}, 4", f"s_add_u32 s{T0_}, s{T0_}, s{T1_}")
    a(f"s_and_b32 s{T1_}, s{S_B2}, 12", f"s_add_u32 s{T0_}, s{T0_}, s{T1_}")
    a(f"s_lshr_b32 s{T1_}, s{S_WAVE}, 1", f"s_lshl_b32 s{T1_}, s{T1_}, 8", f"s_add_u32 s{T0_}, s{T0_}, s{T1_}")
    a(f"s_and_b32 s{T1_}, s{S_WAVE}, 1", f"s_lshl_b32 s{T1_}, s{T1_}, 1", f"s_add_u32 s{T0_}, s{T0_}, s{T1_}")
    a("v_lshrrev_b32 v113, 5, v1", "v_and_b32 v114, 31, v1")
    a(f"v_add_u32 v112, s{T0_}, v113")
    a("v_mul_u32_u24 v115, 1152, v112", "v_lshl_add_u32 v8, v114, 2, v115", "v_lshl_add_u32 v115, v114, 4, v115", "v_lshlrev_b32 v7, 2, v114", "v_lshlrev_b32 v6, 4, v114")
    a(f"v_bfe_u32 v111, v1, 3, 1", f"v_add_u32 v111, s{T0_}, v111", "v_mul_u32_u24 v111, 1152, v111", "v_and_b32 v9, 7, v1", "v_lshl_add_u32 v111, v9, 4, v111")
    srd(a, R0, P_X, XBYTES)
    srd(a, R1, P_WR, 1152)
    a(f"buffer_load_dwordx4 v[10:13], v115, s[{R0}:{R0+3}], 0 offen")
    a(f"buffer_load_dwordx4 v[14:17], v115, s[{R0}:{R0+3}], 0 offen offset:512")
    a(f"buffer_load_dword v18, v8, s[{R0}:{R0+3}], 0 offen offset:1024")
    a(f"buffer_load_dwordx4 v[50:53], v6, s[{R1}:{R1+3}], 0 offen")
    a(f"buffer_load_dwordx4 v[54:57], v6, s[{R1}:{R1+3}], 0 offen offset:512")
    a(f"buffer_load_dword v58, v7, s[{R1}:{R1+3}], 0 offen offset:1024")
    if not PTAG:
        a(f"s_cmp_lt_u32 s{S_I}, 18", "s_cbranch_scc1 KS_L4")
        a(f"s_mul_i32 s{T0_}, s{S_XC}, 14", f"s_add_u32 s{T0_}, s{T0_}, s{S_I}", f"s_mul_i32 s{T0_}, s{T0_}, {CLRP_WG}", f"s_add_u32 s{T0_}, s{T0_}, {hex(WS_PART - 18*CLRP_WG)}")
        a(f"s_add_u32 s{R1}, s{P_WS}, s{T0_}", f"s_addc_u32 s{R1+1}, s{P_WS+1}, 0", f"s_mov_b32 s{R1+2}, {CLRP_WG}", f"s_mov_b32 s{R1+3}, 0x20000")
        a("v_lshlrev_b32 v6, 4, v0", "v_mov_b32 v60, -1", "v_mov_b32 v61, -1", "v_mov_b32 v62, -1", "v_mov_b32 v63, -1")
        for k in range(6):
            a(f"s_movk_i32 s{T0_}, {4096*k}")
            a(f"buffer_store_dwordx4 v[60:63], v6, s[{R1}:{R1+3}], s{T0_} offen sc1")
    a("KS_L4:")
    srd(a, R0, P_WS, 0x240000, WS_ZB1)
    srd(a, R1, P_OUT, XBYTES)
    srd(a, R2_, P_WS, XBYTES, WS_X2)
    srd(a, R3, P_WS, 12288, WS_KEYS)
    if not XCL:
        for d in range(4): a(f"v_mov_b32 v{60+d}, -1")
        a(f"buffer_store_dwordx4 v[60:63], v115, s[{R2_}:{R2_+3}], 0 offen sc1")
        a(f"buffer_store_dwordx4 v[60:63], v115, s[{R2_}:{R2_+3}], 0 offen offset:512 sc1")
        a("s_mov_b64 exec, 0xffff")
        a(f"buffer_store_dwordx4 v[60:63], v111, s[{R2_}:{R2_+3}], 0 offen offset:1024 sc1")
        a("s_mov_b64 exec, -1")
    a(f"s_not_b32 s{T1_}, s{S_B2}", f"v_xor_b32 v8, s{T1_}, v0")
    a("v_lshrrev_b32 v6, 1, v0", "v_lshlrev_b32 v6, 6, v6", "v_and_b32 v8, 1, v8", "v_lshl_add_u32 v6, v8, 4, v6")
    a(f"s_lshr_b32 s{T0_}, s{S_B2}, 2", f"s_lshl_b32 s{T0_}, s{T0_}, 15", f"s_and_b32 s{T1_}, s{S_B2}, 1", f"s_lshl_b32 s{T1_}, s{T1_}, 14", f"s_add_u32 s{T0_}, s{T0_}, s{T1_}")
    a(f"s_and_b32 s{T1_}, s{S_B2}, 2", f"s_lshl_b32 s{T1_}, s{T1_}, 4", f"s_add_u32 s{T0_}, s{T0_}, s{T1_}")
    a(f"s_lshr_b32 s{T2_}, s{S_B2}, 2", f"s_lshl_b32 s{T2_}, s{T2_}, 12", f"s_and_b32 s{T1_}, s{S_B2}, 3", f"s_lshl_b32 s{T1_}, s{T1_}, 4")
    a(f"s_add_u32 s{T2_}, s{T2_}, s{T1_}", f"s_lshl_b32 s{T1_}, s{S_WAVE}, 10", f"s_add_u32 s{T2_}, s{T2_}, s{T1_}", f"s_add_u32 s{T2_}, s{T2_}, 0x200000")
    a("v_lshlrev_b32 v9, 6, v2")
    if SWZ:
        a(f"s_lshl_b32 s{T1_}, s{S_B2}, 5", f"s_and_b32 s{T3_}, s{T1_}, 0x1f80", f"v_xor_b32 v6, s{T3_}, v6", f"s_and_b32 s{T3_}, s{T1_}, 0x380", f"v_xor_b32 v9, s{T3_}, v9")
        a(f"s_and_b32 s{T3_}, s{T1_}, 0xc00", f"s_xor_b32 s{T2_}, s{T2_}, s{T3_}", f"s_and_b32 s{T1_}, s{S_B2}, 1", f"s_lshl_b32 s{T1_}, s{T1_}, 13", f"s_xor_b32 s{T0_}, s{T0_}, s{T1_}")
    a(f"s_xor_b32 s{T1_}, s{T0_}, 0x2000")
    a(f"s_mul_i32 s{T3_}, s{S_WAVE}, 2304", f"s_add_u32 s{T3_}, s{T3_}, {C_XR}", f"v_lshl_add_u32 v117, v114, 5, s{T3_}", f"v_lshl_add_u32 v110, v114, 3, s{T3_}")
    a(f"s_lshl_b32 s{T3_}, s{S_WAVE}, 9", f"s_add_u32 s{T3_}, s{T3_}, {G_BASE}", f"v_lshl_add_u32 v108, v1, 2, s{T3_}", f"v_lshl_add_u32 v109, v1, 4, s{T3_}")
    a(f"s_mov_b32 s{T3_}, 0x02020000", f"v_mul_lo_u32 v118, v113, s{T3_}", "v_add_u32 v118, 0x01000c0c, v118")
    a(f"v_lshlrev_b32 v8, 2, v0", f"v_add_u32 v8, {C_XR}, v8")
    a(f"s_lshl_b32 s{T3_}, s{S_WAVE}, 6", f"s_add_u32 s{T3_}, s{T3_}, {C_XR + 2048}", f"v_lshl_add_u32 v119, v2, 2, s{T3_}")
    a("s_waitcnt vmcnt(0)")
    X = 20
    for j in range(9): unpack(a, X + 2 * j, 10 + j)
    WU, WS_ = 80, 78
    for j in range(9): unpack(a, WU + 2 * j, 50 + j)
    a(f"v_pk_add_f32 v[{WS_}:{WS_+1}], v[{WU}:{WU+1}], v[{WU+2}:{WU+3}]")
    for j in range(2, 9): a(f"v_pk_add_f32 v[{WS_}:{WS_+1}], v[{WS_}:{WS_+1}], v[{WU+2*j}:{WU+2*j+1}]")
    a(f"v_add_f32 v{WS_}, v{WS_}, v{WS_+1}")
    red32(a, "v_add_f32", WS_, WS_ + 1)
    a("v_sub_u32 v98, 0x87ff, v112", "v_lshl_add_u32 v99, v116, 1, v113", "v_lshlrev_b32 v99, 2, v99")
    ZG2 = ENV("ZG2", 0)
    if ZG2:
        lds_wait(a, {1: FL_ZDONE, 2: FL_ZISS}[ZG2], 60, "b4", sleep=1)
        zpoll(a, [f"buffer_load_dwordx4 v[68:71], v{VZ}, s[{R0}:{R0+3}], s{T2_} offen sc1"], list(range(68, 72)), ENV("ZSLEEP2", 2))
    lds_wait(a, FL_ZDONE + 4, 60, "b4", sleep=1)
    a("s_setprio 3")
    if PFD2 > PFD:
        W3 = ENV("PF3W", 6)
        a(f"s_sub_u32 s{T5_}, s{S_I}, 18", f"s_cmp_ge_u32 s{T5_}, {W3}", "s_cbranch_scc1 KS_PF3E", f"s_cmp_lg_u32 s{S_WAVE}, 2", "s_cbranch_scc1 KS_PF3E")
        pf_down(a, T5_, W3, PFD, PFD2, 100, 120, "KS_PF3E", R4)
        a("KS_PF3E:")
    stamp2(a, 1)
    if ENV("ZGATE", 1) and not ZG2:
        zpoll(a, [f"buffer_load_dwordx4 v[68:71], v{VZ}, s[{R0}:{R0+3}], s{T2_} offen sc1"], list(range(68, 72)), ENV("ZSLEEP", 1))
        if ENV("ZDELAY", 0): a(f"s_sleep {ENV('ZDELAY', 0)}")
    lp = newlabel("ZP"); l1 = newlabel("ZPE")
    a(f"s_branch {l1}", f"{lp}:", f"s_sleep {ENV('ZSLEEP', 1)}", f"{l1}:")
    a(f"buffer_load_dwordx4 v[60:63], v6, s[{R0}:{R0+3}], s{T0_} offen sc1",
      f"buffer_load_dwordx4 v[64:67], v6, s[{R0}:{R0+3}], s{T1_} offen sc1",
      f"buffer_load_dwordx4 v[68:71], v9, s[{R0}:{R0+3}], s{T2_} offen sc1")
    guard(a)
    for k in range(3):
        a(f"s_waitcnt vmcnt({2-k})")
        ad, o = (8, 4 * k) if k < 2 else (119, 0)
        a(f"ds_write2st64_b32 v{ad}, v{60+4*k}, v{61+4*k} offset0:{o} offset1:{9+o}")
        a(f"ds_write2st64_b32 v{ad}, v{62+4*k}, v{63+4*k} offset0:{18+o} offset1:{27+o}")
        a(f"v_max3_u32 v44, v{60+4*k}, v{61+4*k}, v{44 if k else 61}", f"v_max3_u32 v44, v{62+4*k}, v{63+4*k}, v44")
    a("v_cmp_eq_u32 vcc, -1, v44", f"s_cbranch_vccnz {lp}")
    a(f"ds_write_b8 v116, v{VONE} offset:{FL_ZF}")
    stamp2(a, 3)
    lp = newlabel("ZW")
    a(f"{lp}:")
    a(f"ds_read_b32 v44, v{VZ} offset:{FL_ZF}")
    for k in range(4):
        a(f"ds_read_b128 v[{60+4*k}:{63+4*k}], v117 offset:{1024*(k>>1) + 16*(k&1)}")
    a("ds_read_b64 v[76:77], v110 offset:2048")
    guard(a)
    a("s_waitcnt lgkmcnt(5)")
    a(f"v_cmp_ne_u32 vcc, s{S_ONES}, v44", f"s_cbranch_vccnz {lp}")
    for j in range(9):
        if j % 2 == 0: a(f"s_waitcnt lgkmcnt({4-j//2})")
        a(f"v_perm_b32 v{60+2*j}, v{60+2*j}, v{60+2*j}, v118", f"v_perm_b32 v{61+2*j}, v{61+2*j}, v{61+2*j}, v118")
        h = f"v[{X+2*j}:{X+2*j+1}]"
        a(f"v_pk_add_f32 {h}, v[{60+2*j}:{61+2*j}], {h}")
        if j == 0: a(f"v_pk_mul_f32 v[42:43], {h}, {h}", f"v_pk_mul_f32 v[44:45], {h}, v[{WU}:{WU+1}]")
        else:
            a(f"v_pk_fma_f32 v[42:43], {h}, {h}, v[42:43]", f"v_pk_fma_f32 v[44:45], {h}, v[{WU+2*j}:{WU+2*j+1}], v[44:45]")
            a(f"v_pk_add_f32 v[40:41], {h}, " + (f"v[{X}:{X+1}]" if j == 1 else "v[40:41]"))
    a("v_add_f32 v42, v42, v43", "v_add_f32 v44, v44, v45", "v_add_f32 v40, v40, v41")
    a("v_mov_b32 v41, v40", "v_permlane16_swap_b32 v42, v44", "v_permlane16_swap_b32 v40, v41")
    a("v_add_f32 v42, v42, v44", "v_add_f32 v40, v40, v41")
    for r in (8, 4, 2, 1):
        a(f"v_add_f32_dpp v42, v42, v42 row_ror:{r} {DPPM}", f"v_add_f32_dpp v40, v40, v40 row_ror:{r} {DPPM}")
    a(f"v_mul_f32 v40, {f32(1.0/576)}, v40", "v_mov_b32 v44, v42")
    a("v_cvt_pk_bf16_f32 v41, 0, v40", "v_mul_f32 v40, v40, v40")
    a("v_permlane16_swap_b32 v42, v44")
    a(f"v_mov_b32 v43, {f32(1.0/576)}", "v_fma_f32 v42, v42, v43, -v40", f"v_fma_f32 v44, -v41, v{WS_}, v44", "v_max_f32 v42, 0, v42")
    a(f"v_cvt_pk_bf16_f32 v42, 0, v42", f"v_add_f32 v42, {f32(1e-5)}, v42")
    a(f"v_cvt_pk_bf16_f32 v42, 0, v42", "v_sqrt_f32 v42, v42")
    a(f"v_cvt_pk_bf16_f32 v42, 0, v42", "v_rcp_f32 v42, v42")
    a("v_mul_f32 v60, v44, v42")
    a("v_cvt_pk_bf16_f32 v60, v60, v60")
    a("v_ashrrev_i32 v61, 31, v60", "v_or_b32 v61, 0x80000000, v61", f"s_mov_b32 s{T3_}, 0xffff0000", "v_xor_b32 v60, v60, v61", f"v_and_or_b32 v60, v60, s{T3_}, v98")
    a("s_mov_b32 exec_lo, 1", "s_mov_b32 exec_hi, 1")
    a(f"ds_write_b32 v99, v60 offset:{C_KEY}")
    a("s_mov_b64 exec, -1")
    stamp2(a, 4)
    a(f"s_setprio {ENV('L2PRIO', 2)}")
    for j in range(9):
        rnd2(a, X + 2 * j)
    ln_stats(a, X, 40, 42, 44, 46, 48)
    for j in range(9):
        ln_apply_pair(a, X + 2 * j, 40, 42, 44, 10 + j)
        a(f"v_pk_add_f32 v[{X+2*j}:{X+2*j+1}], v[44:45], v[{X+2*j}:{X+2*j+1}]")
        if XCL != 2: a(f"v_min_u32 v{10+j}, -2, v{10+j}")
    a(f"v_cvt_pk_bf16_f32 v58, v{X+16}, v{X+17}")
    a("ds_write_b32 v108, v18", "ds_write_b32 v108, v58 offset:256", "ds_read_b128 v[64:67], v109")
    a(f"buffer_store_dwordx4 v[10:13], v115, s[{R2_}:{R2_+3}], 0 offen sc1")
    a(f"buffer_store_dwordx4 v[14:17], v115, s[{R2_}:{R2_+3}], 0 offen offset:512 sc1")
    for j in range(8):
        a(f"v_cvt_pk_bf16_f32 v{50+j}, v{X+2*j}, v{X+2*j+1}")
    a("s_mov_b64 exec, 0xffff")
    a("s_waitcnt lgkmcnt(0)")
    a(f"buffer_store_dwordx4 v[64:67], v111, s[{R2_}:{R2_+3}], 0 offen offset:1024 sc1")
    if ENV("OD", 0): a("s_setprio 0", f"s_sleep {ENV('OD', 0)}")
    a("s_mov_b64 exec, 0xffff0000")
    a(f"buffer_store_dwordx4 v[64:67], v111, s[{R1}:{R1+3}], 0 offen offset:1024 sc1")
    a("s_mov_b64 exec, -1")
    a(f"buffer_store_dwordx4 v[50:53], v115, s[{R1}:{R1+3}], 0 offen sc1")
    a(f"buffer_store_dwordx4 v[54:57], v115, s[{R1}:{R1+3}], 0 offen offset:512 sc1")
    stamp2(a, 5)
    a("s_waitcnt vmcnt(0)")
    a("s_mov_b64 exec, 1")
    a(f"ds_add_rtn_u32 v62, v{VZ}, v{VONE} offset:{FL_F2CNT}")
    a("s_waitcnt lgkmcnt(0)")
    a("v_cmp_eq_u32 vcc, 3, v62", "s_and_b64 exec, exec, vcc", "s_cbranch_execz KS_NOF2")
    a(f"s_lshl_b32 s{T0_}, s2, 4", f"s_add_u32 s{T0_}, s{T0_}, 8192")
    a(f"buffer_store_dword v{VONE}, v{VZ}, s[{R3}:{R3+3}], s{T0_} offen sc1")
    a("KS_NOF2:")
    a("s_mov_b64 exec, -1")
    a("s_setprio 0")
    a(f"s_cmp_lt_u32 s{S_I}, 18", "s_cbranch_scc1 KS_B")
    a("s_waitcnt lgkmcnt(0)")
    endwave(a)
    a("KS_T:")
    a("s_setprio 0")
    a(f"s_cmp_ge_u32 s{S_WAVE}, 10", "s_cbranch_scc1 KS_P")
    a("v_and_b32 v6, 1, v1", "v_subrev_u32 v6, 1, v6")
    a("v_and_b32 v7, 7, v1", "v_lshlrev_b32 v7, 2, v7")
    srd(a, R3, P_WS, 12288, WS_KEYS)
    a(f"s_cmp_eq_u32 s{S_WAVE}, 9", "s_cbranch_scc1 KS_W9")
    a(f"s_cmp_eq_u32 s{S_WAVE}, 8", "s_cbranch_scc1 KS_L2W")
    a(f"s_sub_u32 s{T1_}, s{S_WAVE}, 4", f"s_lshl_b32 s{T0_}, s{T1_}, 10", f"v_lshl_add_u32 v33, v1, 4, s{T0_}", f"s_movk_i32 s{T0_}, 4096")
    a(f"s_lshl_b32 s{T1_}, s{T1_}, 7", "v_lshlrev_b32 v32, 4, v2", "v_lshl_add_u32 v32, v3, 5, v32", f"v_add_u32 v32, s{T1_}, v32")
    lds_wait(a, FL_KACK, 8, "nz", sleep=1)
    a("s_setprio 2")
    if ENV('KDELAY', 12): a(f"s_sleep {ENV('KDELAY', 12)}")
    stamp2(a, 1)
    zpoll(a, [f"buffer_load_dwordx4 v[8:11], v33, s[{R3}:{R3+3}], 0 offen sc1",
           f"buffer_load_dwordx4 v[12:15], v33, s[{R3}:{R3+3}], s{T0_} offen sc1"], list(range(8, 16)), ENV("KSLEEP", 4))
    a(f"ds_write_b32 v{VZ}, v{VONE} offset:{FL_KSEEN}")
    stamp2(a, 2)
    pool = Pool(range(16, 28))
    x = [8, 9, 10, 11]; y = [12, 13, 14, 15]
    for (i, j) in ((0, 1), (2, 3), (0, 2), (1, 3), (1, 2)):
        ce_inlane(a, x, i, j, pool); ce_inlane(a, y, i, j, pool)
    clean8(a, x, pool, 6, rev=True); clean8(a, y, pool, 6, rev=True)
    merge_pair(a, x, y, pool); clean8(a, x, pool, 6)
    for M in MIRRORS:
        merge_mirror(a, x, pool, M); clean8(a, x, pool, 6)
    for i in range(4): a(f"v_mov_b32 v{28+i}, v{x[i]}")
    a("s_mov_b32 exec_lo, 0x00030003", "s_mov_b32 exec_hi, 0x00030003")
    a(f"ds_write_b128 v32, v[28:31] offset:{C_CAND}")
    a("s_mov_b64 exec, -1")
    stamp2(a, 3)
    a("s_setprio 0")
    a("s_branch KS_B")
    a("KS_L2W:")
    srd(a, R2_, P_WS, XBYTES, WS_X2)
    a(f"s_mov_b32 s{T0_}, 0xcccccccc", f"s_mov_b32 s{T1_}, 0xcccccccc", f"s_mov_b32 s{T2_}, 0xf0f0f0f0", f"s_mov_b32 s{T3_}, 0xf0f0f0f0", f"s_movk_i32 s{T4_}, 1152")
    a("v_lshrrev_b32 v34, 3, v1", "v_lshlrev_b32 v34, 4, v34", "v_lshlrev_b32 v33, 4, v2")
    lds_wait(a, FL_KACK, 8, "nz", sleep=1)
    a("s_setprio 2")
    a("KS_L2POLL:")
    a(f"ds_read_b128 v[8:11], v33 offset:{C_CAND}")
    a(f"ds_read_b128 v[12:15], v33 offset:{C_CAND + 256}")
    guard(a)
    a("s_waitcnt lgkmcnt(0)")
    a("v_min3_u32 v16, v8, v9, v10", "v_min3_u32 v17, v11, v12, v13", "v_min3_u32 v16, v16, v14, v15", "v_min_u32 v16, v16, v17", "v_cmp_eq_u32 vcc, 0, v16")
    a("s_cbranch_vccnz KS_L2POLL")
    stamp2(a, 1)
    pool = Pool(range(16, 28))
    x = [8, 9, 10, 11]; y = [12, 13, 14, 15]
    merge_pair(a, x, y, pool); clean8(a, x, pool, 6)
    for li, M in enumerate(MIRRORS):
        merge_mirror(a, x, pool, M)
        if li < 2: clean8(a, x, pool, 6)
    a(f"v_cndmask_b32 v30, v{x[0]}, v{x[1]}, s[{T0_}:{T1_}]", f"v_cndmask_b32 v31, v{x[2]}, v{x[3]}, s[{T0_}:{T1_}]", f"v_cndmask_b32 v30, v30, v31, s[{T2_}:{T3_}]")
    if RDMA:
        a("v_mov_b32_dpp v30, v30 row_shr:8 row_mask:0xf bank_mask:0xc")
        a("v_and_b32 v31, 0x7ff, v30", "v_sub_u32 v31, 2047, v31", f"v_mad_u32_u24 v31, v31, s{T4_}, v34")
        for k in range(9):
            a(f"s_mov_b32 m0, {C_XR + 896*k}")
            a(f"buffer_load_dwordx4 v31, s[{R2_}:{R2_+3}], 0 offen offset:{128*k} sc1 lds")
        a(f"ds_write_b32 v7, v30 offset:{C_SEL}")
        stamp2(a, 2)
        a("s_waitcnt vmcnt(0)")
        a(f"ds_write_b32 v{VZ}, v{VONE} offset:{FL_XRDY}")
        stamp2(a, 3)
    else:
        a("s_mov_b64 exec, 0xff")
        a(f"ds_write_b32 v7, v30 offset:{C_SEL}")
        a("s_mov_b64 exec, -1")
        stamp2(a, 2)
    a("s_setprio 0")
    a("s_branch KS_B")
    a("KS_W9:")
    a("v_lshlrev_b32 v33, 4, v1", f"s_movk_i32 s{T0_}, 0x2000")
    srd(a, R2_, P_WS, XBYTES, WS_X2)
    srd(a, R0, P_WS, 0x240000, WS_ZB1)
    srd(a, R1, P_X, XBYTES)
    a("v_bfe_u32 v43, v1, 2, 3", f"s_lshl_b32 s{T1_}, s{S_BLK}, 3", f"v_add_u32 v43, s{T1_}, v43")
    a("v_bfe_u32 v40, v43, 4, 1", "v_and_b32 v41, 3, v1", "v_lshl_add_u32 v40, v40, 2, v41", "v_lshlrev_b32 v40, 2, v40")
    a("v_lshrrev_b32 v41, 5, v43", "v_lshlrev_b32 v41, 4, v41", "v_and_b32 v42, 15, v43", "v_add_u32 v41, v41, v42")
    lds_wait(a, C_SEL, 12, "nz", addr=7, sleep=1)
    stamp2(a, 2)
    a(f"ds_read_b32 v19, v40 offset:{C_SEL}")
    a("s_waitcnt lgkmcnt(0)")
    a("v_and_b32 v14, 0x7ff, v19", "v_sub_u32 v14, 2047, v14")
    a("v_mul_u32_u24 v23, 1152, v14", "v_lshl_add_u32 v23, v41, 1, v23")
    a(f"buffer_load_ushort v17, v23, s[{R1}:{R1+3}], 0 offen")
    a("v_lshrrev_b32 v15, 9, v14", "v_bfe_u32 v16, v14, 6, 2", "v_lshl_add_u32 v15, v15, 2, v16", "v_bfe_u32 v16, v14, 2, 2", "v_lshl_add_u32 v15, v15, 2, v16")
    a("v_bfe_u32 v16, v14, 4, 1")
    a("v_bfe_u32 v24, v14, 8, 1", "v_and_b32 v25, 3, v14", "v_lshl_add_u32 v24, v24, 2, v25", "v_lshlrev_b32 v24, 1, v24")
    a("v_bfe_u32 v25, v14, 5, 1", "v_lshl_add_u32 v24, v25, 5, v24")
    a("v_lshl_add_u32 v25, v15, 1, v16", "v_lshl_add_u32 v25, v25, 14, v24")
    a("v_lshrrev_b32 v26, 1, v41", "v_lshl_add_u32 v25, v26, 6, v25", "v_xor_b32 v26, v41, v16", "v_not_b32 v26, v26", "v_and_b32 v26, 1, v26", "v_lshl_add_u32 v25, v26, 4, v25")
    a("v_lshl_add_u32 v26, v15, 12, v24", "v_lshl_add_u32 v26, v16, 4, v26", "v_lshl_add_u32 v26, v41, 6, v26", f"v_add_u32 v26, {0x200000 - 512*64}, v26")
    if SWZ:
        a("v_lshl_add_u32 v27, v16, 6, v15", "v_lshlrev_b32 v27, 7, v27", "v_xor_b32 v25, v27, v25", "v_and_b32 v27, 0xf80, v27", "v_xor_b32 v26, v27, v26")
    a("v_cmp_gt_u32 vcc, 0x200, v41", "v_cndmask_b32 v25, v26, v25, vcc")
    a(f"buffer_load_ushort v18, v25, s[{R0}:{R0+3}], 0 offen sc1")
    a("v_ashrrev_i32 v22, 31, v19", "v_not_b32 v22, v22", "v_or_b32 v22, 0x80000000, v22", "v_xor_b32 v22, v19, v22", "v_and_b32 v22, 0xffff0000, v22")
    a(f"v_mul_f32 v22, {f32(-LOG2E)}, v22", "v_exp_f32 v22, v22", "v_add_f32 v22, 1.0, v22", "v_rcp_f32 v22, v22")
    a(f"v_cvt_pk_bf16_f32 v22, 0, v22")
    a("v_and_b32 v14, 31, v1", "v_lshlrev_b32 v14, 4, v14")
    f2l = [f"buffer_load_dword v{8+k}, v33, s[{R3}:{R3+3}], s{T0_} offen offset:{1024*k} sc1" for k in range(4)]
    if XCL == 2:
        a("s_barrier")
        zpoll(a, f2l, [8, 9, 10, 11], ENV("F2SLEEP", 4), mid="s_barrier")
        a(f"buffer_load_ushort v20, v23, s[{R2_}:{R2_+3}], 0 offen sc1")
        stamp2(a, 1)
        a("s_barrier")
        srd(a, R2_, P_WS, 64, WS_IDX)
        a("s_waitcnt vmcnt(0)")
    else:
        a("v_and_b32 v24, -4, v23", "v_and_b32 v25, 2, v23", "v_lshlrev_b32 v25, 3, v25")
        a("s_barrier")
        a("s_barrier")
        zpoll(a, f2l + [f"buffer_load_dword v20, v24, s[{R2_}:{R2_+3}], 0 offen sc1"], [8, 9, 10, 11, 20], ENV("F2SLEEP", 4), mid="s_barrier")
        stamp2(a, 1)
        srd(a, R2_, P_WS, 64, WS_IDX)
        a("v_lshrrev_b32 v20, v25, v20")
    a("v_lshlrev_b32 v17, 16, v17", "v_lshlrev_b32 v18, 16, v18", "v_add_f32 v17, v17, v18", "v_cvt_pk_bf16_f32 v17, v17, v17")
    a("v_and_b32 v21, 0xffff0000, v17", "v_lshlrev_b32 v20, 16, v20")
    a(f"ds_write_b128 v14, v[20:23] offset:{C_SIDE}")
    a("s_cmp_lg_u32 s2, 0", "s_cbranch_scc1 KS_W9E")
    a(f"buffer_store_dword v12, v7, s[{R2_}:{R2_+3}], 0 offen")
    a("KS_W9E:")
    a("s_waitcnt lgkmcnt(0)")
    stamp2(a, 3)
    endwave(a)
    a("KS_B:")
    srd(a, R0, P_WS, PART_BYTES, WS_PART)
    a("v_bfe_u32 v16, v1, 2, 2", "v_lshl_add_u32 v16, v3, 3, v16", "v_mul_u32_u24 v16, 1152, v16", "v_and_b32 v17, 3, v1", "v_lshl_add_u32 v16, v17, 3, v16")
    a(f"s_lshl_b32 s{T0_}, s{S_WAVE}, 7", f"s_add_u32 s{T0_}, s{T0_}, {C_DOWN}", f"v_add_u32 v16, s{T0_}, v16")
    if PTAG: a("v_lshlrev_b32 v18, 2, v17", f"ds_read_b32 v24, v18 offset:{FL_NONCE}", f"s_movk_i32 s{T2_}, 0xff")
    lds_wait(a, FL_DOWN, 17, "b4")
    if PTAG:
        for d in range(1, 4): a(f"v_lshrrev_b32 v{24+d}, {8*d}, v24")
    WTD = 48
    for jt in range(4):
        a(f"ds_read_b64_tr_b16 v[{WTD+4*jt}:{WTD+4*jt+1}], v16 offset:{32*jt}")
        a(f"ds_read_b64_tr_b16 v[{WTD+4*jt+2}:{WTD+4*jt+3}], v16 offset:{32*jt + 4608}")
    a("v_and_b32 v16, 7, v2", "v_lshlrev_b32 v16, 6, v16", "v_lshl_add_u32 v16, v3, 4, v16")
    a(f"s_mul_i32 s{T0_}, s{S_BLK}, {PROW}", f"s_lshl_b32 s{T1_}, s{S_WAVE}, 11", f"s_add_u32 s{T0_}, s{T0_}, s{T1_}")
    a("v_lshlrev_b32 v17, 4, v1")
    a("s_waitcnt lgkmcnt(0)")
    a("s_barrier")
    a("s_barrier")
    a(f"ds_read_b128 v[20:23], v16 offset:{C_ACT}")
    a("s_waitcnt lgkmcnt(0)")
    for j in range(4):
        a(f"v_mfma_f32_16x16x32_bf16 v[{32+4*j}:{35+4*j}], v[20:23], v[{WTD+4*j}:{WTD+4*j+3}], 0")
    for j in (0, 2):
        for r in range(4): a(f"v_permlane32_swap_b32 v{32+4*j+r}, v{36+4*j+r}")
        for r in range(4): a(f"v_bfi_b32 v{32+4*j+r}, s{T2_}, v{24+r}, v{32+4*j+r}" if PTAG else f"v_min_u32 v{32+4*j+r}, -2, v{32+4*j+r}")
        a(f"buffer_store_dwordx4 v[{32+4*j}:{35+4*j}], v17, s[{R0}:{R0+3}], s{T0_} offen offset:{512*j} sc1")
    stamp2(a, 8)
    if PE < 0: a("s_waitcnt vmcnt(0)")
    a("s_barrier")
    endwave(a)
    a("KS_G0:")
    a(f"ds_write_b8 v15, v{VONE} offset:{FL_G+4}")
    a("s_setprio 0")
    a("KS_G:")
    a(f"s_mov_b32 s{SP0}, 0x05040100", f"s_mov_b32 s{SP1}, 0x07060302")
    a("s_waitcnt vmcnt(0)" + (" lgkmcnt(0)" if SN else ""))
    stamp(a, 5)
    g_addr_setup(a, 46)
    if DE:
        srd(a, R1, P_DOWN, F * D * 2)
        a("v_lshlrev_b32 v8, 4, v1", f"s_mul_i32 s{T0_}, s{S_BLK}, 36864", f"s_mul_i32 s{T1_}, s{S_G}, 9216", f"s_add_u32 s{T0_}, s{T0_}, s{T1_}", f"s_add_u32 s{T1_}, s{T1_}, {C_DOWN}")
        def wtrig(tr):
            a(f"s_cmp_lt_u32 s{S_I}, 8", f"s_cselect_b32 s{T2_}, 0, {tr[1] - tr[0]}", f"v_mov_b32 v9, s{T2_}")
            lds_wait(a, tr[0], 10, "b4", addr=9, sleep=2)
        TG = {"B": FL_UTOK, "K": FL_UTOK + 4, "U": FL_UF, "C": FL_G + 36, "A1": FL_G, "A2": FL_G + 4, "A3": FL_G + 8, "B1": FL_G + 16, "B2": FL_G + 20, "B3": FL_G + 24}
        DTR = os.environ.get("DTR", "C,B").split(","); GTR = os.environ.get("GTR", "C,B").split(",")
        if ENV("DLAST", 0):
            wtrig([TG[x] for x in GTR])
            a(f"s_lshr_b32 s{T2_}, {ENV('GNM', 3)}, s{S_G}", f"s_bitcmp1_b32 s{T2_}, 0", "s_cbranch_scc1 KS_GD1")
            a(f"s_and_b32 s{T2_}, s{S_G}, 1", f"s_mul_i32 s{T1_}, s{T2_}, 18432", f"s_mul_i32 s{T0_}, s{S_BLK}, 36864", f"s_add_u32 s{T0_}, s{T0_}, s{T1_}", f"s_add_u32 s{T1_}, s{T1_}, {C_DOWN}")
        wtrig([TG["C"], TG["B"]])
        if DTR != ["C", "B"]: wtrig([TG[x] for x in DTR])
        if DEA: a(f"s_cmp_ge_u32 s{S_I}, 8", "s_cbranch_scc1 KS_GD1")
        for k in range(18 if ENV("DLAST", 0) else 9):
            if k % 4 == 0:
                a(f"s_add_u32 m0, s{T1_}, {1024*k}")
                if k: a(f"s_add_u32 s{T0_}, s{T0_}, 4096")
            if not XW: a(f"buffer_load_dwordx4 v8, s[{R1}:{R1+3}], s{T0_} offen offset:{1024*(k&3)} {MOD('DM', 'nt')} lds")
        if GTR != DTR and not ENV("DLAST", 0): wtrig([TG[x] for x in GTR])
        a("KS_GD1:")
        if ENV("GPRIO", 0): a(f"s_setprio {ENV('GPRIO', 0)}")
    SG = eval(os.environ.get("SG", "[0,0,0,0]"))
    if any(SG):
        a(f"s_mul_i32 s{T0_}, s{S_ROLE}, {32*9216}", f"s_lshl_b32 s{T1_}, s{S_BLK}, 6", f"s_add_u32 s{T0_}, s{T0_}, s{T1_}")
        a(f"s_add_u32 s{R0}, s{P_GATE}, s{T0_}", f"s_addc_u32 s{R0+1}, s{P_GATE+1}, 0", f"s_add_u32 s{R0+2}, s{P_UP}, s{T0_}", f"s_addc_u32 s{R0+3}, s{P_UP+1}, 0")
        cnt = sum(SG[g] << (8 * g) for g in range(4))
        a(f"s_lshl_b32 s{T1_}, s{S_G}, 3", f"s_lshr_b32 s{T1_}, {hex(cnt)}, s{T1_}", f"s_and_b32 s{T1_}, s{T1_}, 0xff", "s_cbranch_scc0 KS_SGE")
        a("KS_SGL:")
        for r in range(8):
            a(f"s_load_dword s{R1}, s[{R0}:{R0+1}], {r*9216}", f"s_load_dword s{R1+1}, s[{R0+2}:{R0+3}], {r*9216}")
        a(f"s_add_u32 s{R0}, s{R0}, {8*9216}", f"s_addc_u32 s{R0+1}, s{R0+1}, 0", f"s_add_u32 s{R0+2}, s{R0+2}, {8*9216}", f"s_addc_u32 s{R0+3}, s{R0+3}, 0")
        a(f"s_sub_u32 s{T1_}, s{T1_}, 1", f"s_cmp_lg_u32 s{T1_}, 0", "s_cbranch_scc1 KS_SGL")
        a("KS_SGE:")
        a("s_waitcnt lgkmcnt(0)")
        stamp(a, 8)
    TR = {1: (FL_PARAM, "nz"), 2: (FL_UF, "b4"), 3: (FL_ZF, "b4"), 4: (FL_KACK, "nz"), 5: (FL_KSEEN, "nz"), 6: (FL_ZDONE + 4, "b4")}
    GNM = ENV("GNM", 3)
    for t in sorted(set(GT)):
        if t == 0: continue
        l = newlabel("GT")
        mask = sum(1 << g for g in range(4) if GT[g] == t)
        if mask != 15: a(f"s_lshr_b32 s{T0_}, {mask}, s{S_G}", f"s_bitcmp1_b32 s{T0_}, 0", f"s_cbranch_scc0 {l}")
        lds_wait(a, TR[t][0], 10, TR[t][1], sleep=2)
        if t >= 3: a("s_setprio 1")
        a(f"{l}:")
    if GNM and GNM != 15:
        a(f"s_lshr_b32 s{T0_}, {GNM}, s{S_G}", f"s_bitcmp1_b32 s{T0_}, 0", "s_cbranch_scc0 KS_GN0")
        gs = ENV("GSPLIT", 4)
        g_loads(a, 46, range(gs), " nt")
        if gs < 4: lds_wait(a, FL_UF, 10, "b4", sleep=2)
        g_loads(a, 46, range(gs, 4), " nt")
        a(f"s_bitcmp1_b32 s{S_G}, 0", "s_cbranch_scc1 KS_G4")
        g_loads(a, 46, [4], " nt")
        a("s_branch KS_G4")
        a("KS_GN0:")
    GM = " nt" if GNM == 15 else ""
    g_loads(a, 46, range(4), GM)
    stamp(a, 6)
    def transpose(src, dst):
        for j in range(4):
            for p in range(4):
                lo = src + 2 * (2 * p) + (j >> 1); hi = src + 2 * (2 * p + 1) + (j >> 1)
                a(f"v_perm_b32 v{dst+4*j+p}, v{hi}, v{lo}, s{SP0 + (j & 1)}")
    W = GW
    a(f"s_bitcmp1_b32 s{S_G}, 0", "s_cbranch_scc1 KS_G4")
    g_loads(a, 46, [4], GM)
    a("KS_G4:")
    a(f"v_mov_b32 v6, s{S_G}", f"ds_write_b8 v6, v{VONE} offset:{FL_GISS}")
    a("s_waitcnt vmcnt(0)")
    if DE: a(f"ds_write_b8 v6, v{VONE} offset:{FL_DOWN}")
    stamp(a, 7)
    for ks in range(5): transpose(W + 16 * ks, W + 16 * ks - 16)
    GACC = 112
    srd(a, R2_, P_WS, XBYTES, WS_X2)
    a(f"s_lshl_b32 s{T0_}, s{S_ROLE}, 6", f"s_add_u32 s{T0_}, s{T0_}, {2047*1152}", "v_and_b32 v6, 7, v2", "v_lshlrev_b32 v6, 2, v6", f"v_lshl_add_u32 v7, v3, 4, s{T0_}", f"s_movk_i32 s{T1_}, -1152")
    a(f"s_and_b32 s{T2_}, s{S_G}, 1", f"s_lshl_b32 s{T2_}, s{T2_}, 6", f"s_sub_u32 s{T2_}, 256, s{T2_}")
    a(f"s_lshl_b32 s{T0_}, s{S_G}, 6", f"v_add_u32 v11, s{T0_}, v1")
    a("v_lshrrev_b32 v8, 5, v11", "v_and_b32 v9, 31, v11")
    a("v_and_b32 v10, 3, v9", "v_lshlrev_b32 v10, 9, v10")
    a("v_lshrrev_b32 v9, 2, v9", "v_lshl_add_u32 v10, v9, 4, v10")
    a("v_lshrrev_b32 v9, 2, v8", "v_lshl_add_u32 v10, v9, 8, v10")
    a("v_and_b32 v9, 3, v8", "v_lshl_add_u32 v10, v9, 2, v10")
    a("v_lshlrev_b32 v11, 1, v11")
    a(f"s_lshl_b32 s{T0_}, s{S_G}, 11", f"v_lshl_add_u32 v9, v1, 4, s{T0_}")
    TG_ = (0, 2, 5, 6)
    def gmm(wait, bad):
        for ks in range(5):
            a(f"s_waitcnt {wait}({4-ks})")
            chk = []
            if bad and XCL == 2:
                chk = [f"v_xor_b32 v4, v{TG_[0]}, v{12+4*ks}"] + [f"v_bitop3_b32 v4, v4, v{TG_[d]}, v{12+4*ks+d} bitop3:0xf6" for d in range(1, 4)]
                chk += [f"v_and_b32 v{4 if ks else 8}, {hex(TAGM)}, v4"] + (["v_min_u32 v8, v8, v4"] if ks else [])
            elif bad:
                chk = [f"v_max3_u32 v8, v{12+4*ks}, v{13+4*ks}, v{8 if ks else 13}", f"v_max3_u32 v8, v{14+4*ks}, v{15+4*ks}, v8"]
            if ks == 4:
                a(*chk); chk = []
                if bad: a(f"v_cmp_eq_u32 vcc, {0 if XCL == 2 else -1}, v8", f"s_cbranch_vccnz {bad}")
                a(f"s_bitcmp1_b32 s{S_G}, 0", "s_cbranch_scc1 KS_G5")
            for j in range(4):
                c = "0" if ks == 0 else f"v[{GACC+4*j}:{GACC+4*j+3}]"
                a(f"v_mfma_f32_16x16x32_bf16 v[{GACC+4*j}:{GACC+4*j+3}], v[{12+4*ks}:{15+4*ks}], v[{32+16*ks+4*j}:{35+16*ks+4*j}], {c}")
                a(*chk[2*j:2*j+2])
    assert RDMA
    a(f"s_lshl_b32 s{T0_}, s{S_ROLE}, 9", f"s_add_u32 s{T0_}, s{T0_}, {C_XR}", f"v_lshl_add_u32 v28, v6, 2, s{T0_}", "v_lshl_add_u32 v28, v3, 7, v28", f"s_lshl_b32 s{T0_}, s{T2_}, 3", f"v_add_u32 v31, s{T0_}, v28")
    if XCL == 2: a("v_lshlrev_b32 v0, 2, v3", f"ds_read_b32 v0, v0 offset:{FL_NONCE}")
    lds_wait(a, C_SEL, 12, "nz", addr=6, sleep=2)
    a("s_setprio 2")
    a("v_and_b32 v12, 0x7ff, v12", f"v_mad_i32_i24 v7, v12, s{T1_}, v7")
    if XCL == 2:
        for d in range(1, 4): a(f"v_lshrrev_b32 v{TG_[d]}, {3*d}, v0")
    lds_wait(a, FL_XRDY, 12, "nz")
    stamp2(a, 1)
    for ks in range(4):
        a(f"ds_read_b128 v[{12+4*ks}:{15+4*ks}], v28 offset:{512*ks}")
    a("ds_read_b128 v[28:31], v31")
    gmm("lgkmcnt", "KS_GR")
    a("s_branch KS_G5")
    a("KS_GR:")
    if XCL == 2:
        srd(a, R3, P_WS, 12288, WS_KEYS)
        a("v_lshlrev_b32 v4, 4, v1", f"s_movk_i32 s{T0_}, 0x2000")
        a.flush(4)
        a("KS_GR2:")
        a("s_sleep 2")
        for k in range(4): a(f"buffer_load_dword v{12+k}, v4, s[{R3}:{R3+3}], s{T0_} offen offset:{1024*k} sc1")
        guard(a)
        a("s_waitcnt vmcnt(0)")
        a("v_max3_u32 v12, v12, v13, v14", "v_max_u32 v12, v12, v15", "v_cmp_eq_u32 vcc, -1, v12", "s_cbranch_vccnz KS_GR2")
    for ks in range(5):
        a(f"buffer_load_dwordx4 v[{12+4*ks}:{15+4*ks}], v7, s[{R2_}:{R2_+3}], " + (f"0 offen offset:{64*ks}" if ks < 4 else f"s{T2_} offen") + " sc1")
    guard(a)
    gmm("vmcnt", None if XCL == 2 else "KS_GR")
    a("KS_G5:")
    a("s_mov_b32 exec_lo, -1", "s_mov_b32 exec_hi, 0")
    a.flush(6)
    for j in range(4):
        a(f"ds_write_b128 v9, v[{GACC+4*j}:{GACC+4*j+3}] offset:{C_RED + 512*j}")
    a("s_mov_b64 exec, -1")
    a("s_waitcnt lgkmcnt(0)", "s_barrier")
    stamp2(a, 2)
    for w in range(4):
        a(f"ds_read_b32 v{32+2*w}, v10 offset:{C_RED + 2048*w}")
        a(f"ds_read_b32 v{33+2*w}, v10 offset:{C_RED + 2048*w + 128}")
    a("s_waitcnt lgkmcnt(4)")
    a("v_pk_add_f32 v[32:33], v[32:33], v[34:35]")
    a("s_waitcnt lgkmcnt(0)")
    a("v_pk_add_f32 v[36:37], v[36:37], v[38:39]")
    a("v_pk_add_f32 v[32:33], v[32:33], v[36:37]")
    rnd2(a, 32)
    a(f"v_mul_f32 v34, {f32(-LOG2E)}, v32", "v_exp_f32 v34, v34", "v_add_f32 v34, 1.0, v34", "v_rcp_f32 v34, v34", "v_mul_f32 v34, v32, v34")
    a(f"v_cvt_pk_bf16_f32 v34, 0, v34")
    a("v_mul_f32 v34, v34, v33", "v_cvt_pk_bf16_f32 v34, v34, v34")
    a(f"ds_write_b16 v11, v34 offset:{C_ACT}")
    a("s_waitcnt lgkmcnt(0)")
    a("s_barrier")
    a("s_branch KS_P2")
    a("KS_P:")
    if DE: a("s_branch KS_P1")
    srd(a, R1, P_DOWN, F * D * 2)
    a(f"s_sub_u32 s{T2_}, s{S_WAVE}, 10", "v_lshlrev_b32 v6, 4, v1", f"s_mul_i32 s{T0_}, s{S_BLK}, 36864", f"s_mul_i32 s{T1_}, s{T2_}, 18432", f"s_add_u32 s{T0_}, s{T0_}, s{T1_}", f"s_add_u32 s{T1_}, s{T1_}, {C_DOWN}")
    a(f"s_lshl_b32 s{T2_}, s{T2_}, 1", f"v_mov_b32 v7, s{T2_}", f"v_mov_b32 v8, s{S_ONES}")
    TR[7] = (FL_GISS, "b4")
    if DT: lds_wait(a, TR[DT][0], 10, TR[DT][1], sleep=2)
    a("s_setprio 1")
    stamp2(a, 1)
    for k in range(18):
        if k % 4 == 0:
            a(f"s_add_u32 m0, s{T1_}, {1024*k}")
            if k: a(f"s_add_u32 s{T0_}, s{T0_}, 4096")
        a(f"buffer_load_dwordx4 v6, s[{R1}:{R1+3}], s{T0_} offen offset:{1024*(k&3)} {MOD('DM', 'nt')} lds")
    a("s_waitcnt vmcnt(0)")
    stamp2(a, 2)
    a(f"ds_write_b16 v7, v8 offset:{FL_DOWN}")
    a("KS_P1:")
    a("s_setprio 0")
    PW = ENV("PW", 0)
    if PW:
        srd(a, R0, P_WS, PART_BYTES, WS_PART)
        a("v_and_b32 v14, 3, v1", "v_lshlrev_b32 v14, 2, v14", f"ds_read_b32 v24, v14 offset:{FL_NONCE}", "v_lshlrev_b32 v17, 4, v1")
        a(f"s_mul_i32 s{T0_}, s{S_BLK}, {PROW}", f"s_sub_u32 s{T1_}, s{S_WAVE}, 10", f"s_mul_i32 s{T1_}, s{T1_}, 9216", f"s_add_u32 s{T0_}, s{T0_}, s{T1_}")
        if PW in TR: lds_wait(a, TR[PW][0], 10, TR[PW][1], sleep=2)
        a("s_waitcnt lgkmcnt(0)", "v_not_b32 v24, v24", "v_mov_b32 v25, v24", "v_mov_b32 v26, v24", "v_mov_b32 v27, v24")
        for k in range(9):
            if k in (4, 8): a(f"s_add_u32 s{T0_}, s{T0_}, 4096")
            a(f"buffer_store_dwordx4 v[24:27], v17, s[{R0}:{R0+3}], s{T0_} offen offset:{1024*(k&3)} {MOD('PWM')}")
        a("s_waitcnt vmcnt(0)")
    a("s_waitcnt lgkmcnt(0)")
    a("s_barrier")
    a("s_barrier")
    a("s_setprio 2")
    a("KS_P2:")
    a(f"s_sub_u32 s{S_G}, s{S_WAVE}, 10")
    srd(a, R0, P_WS, PART_BYTES, WS_PART)
    srd(a, R1, P_OUT, XBYTES)
    a("v_lshrrev_b32 v8, 3, v1", f"v_mul_u32_u24 v8, {PROW}, v8", "v_and_b32 v9, 7, v1", "v_lshl_add_u32 v8, v9, 4, v8")
    a(f"s_mul_i32 s{T0_}, s{S_G}, {24*PROW}", f"s_lshl_b32 s{T1_}, s{S_BLK}, 7", f"s_add_u32 s{T0_}, s{T0_}, s{T1_}", f"s_add_u32 s{T1_}, s{T0_}, {8*PROW}", f"s_add_u32 s{T2_}, s{T0_}, {16*PROW}")
    a(f"s_lshl_b32 s{T3_}, s{S_G}, 7", f"v_lshl_add_u32 v6, v9, 4, s{T3_}", "v_lshl_add_u32 v6, v3, 2, v6")
    a(f"v_lshlrev_b32 v12, 2, v1", f"v_add_u32 v12, {C_RED2}, v12", "v_lshlrev_b32 v13, 4, v1")
    if PTAG:
        a("v_and_b32 v14, 12, v12", f"ds_read_b32 v24, v14 offset:{FL_NONCE}", "s_waitcnt lgkmcnt(0)")
        for d in range(1, 4): a(f"v_lshrrev_b32 v{24+d}, {8*d}, v24")
    a("s_barrier")
    if PE > 0: a(f"s_sleep {PE}")
    stamp2(a, 3)
    if PTAG:
        lp = newlabel("PP"); l1 = newlabel("PPE")
        a(f"s_branch {l1}", f"{lp}:", "s_sleep 1", f"{l1}:")
        for k in range(3): a(f"buffer_load_dwordx4 v[{32+4*k}:{35+4*k}], v8, s[{R0}:{R0+3}], s{T0_+k} offen sc1")
        guard(a)
        for k in range(3):
            a(f"s_waitcnt vmcnt({2-k})")
            for d in range(4):
                t = 44 + (d & 1)
                a(f"v_xor_b32 v{t}, v{24+d}, v{32+d}" if k == 0 and d < 2 else f"v_bitop3_b32 v{t}, v{t}, v{24+d}, v{32+4*k+d} bitop3:0xf6")
        a("v_or_b32 v44, v44, v45", "v_and_b32 v44, 0xff, v44", "v_cmp_ne_u32 vcc, 0, v44", f"s_cbranch_vccnz {lp}")
    else: zpoll(a, [f"buffer_load_dwordx4 v[{32+4*k}:{35+4*k}], v8, s[{R0}:{R0+3}], s{T0_+k} offen sc1" for k in range(3)], list(range(32, 44)), 1)
    stamp2(a, 4)
    a("v_pk_add_f32 v[32:33], v[32:33], v[36:37]", "v_pk_add_f32 v[34:35], v[34:35], v[38:39]")
    a("v_pk_add_f32 v[32:33], v[32:33], v[40:41]", "v_pk_add_f32 v[34:35], v[34:35], v[42:43]")
    for r in range(4): a(f"v_add_f32_dpp v{32+r}, v{32+r}, v{32+r} row_ror:8 {DPPM}")
    a("v_permlane16_swap_b32 v32, v33", "v_permlane16_swap_b32 v34, v35")
    a("v_add_f32 v32, v32, v33", "v_add_f32 v34, v34, v35")
    a("v_permlane32_swap_b32 v32, v34")
    a("v_add_f32 v32, v32, v34")
    a(f"ds_write_b32 v6, v32 offset:{C_RED2}")
    a("s_waitcnt lgkmcnt(0)", "s_barrier")
    a(f"s_cmp_lg_u32 s{S_G}, 0", "s_cbranch_scc1 KS_PEND")
    a("s_mov_b32 exec_lo, -1", "s_mov_b32 exec_hi, 0")
    for g in range(3):
        a(f"ds_read2_b32 v[{32+2*g}:{33+2*g}], v12 offset0:{64*g} offset1:{64*g + 32}")
    a(f"ds_read_b128 v[40:43], v13 offset:{C_SIDE}")
    a("s_waitcnt lgkmcnt(0)")
    a("v_pk_add_f32 v[32:33], v[32:33], v[34:35]", "v_pk_add_f32 v[32:33], v[32:33], v[36:37]", "v_add_f32 v8, v32, v33")
    a(f"v_cvt_pk_bf16_f32 v8, 0, v8")
    a("v_mul_f32 v8, v8, v42", f"v_cvt_pk_bf16_f32 v8, 0, v8")
    a("v_add_f32 v8, v8, v40", f"v_cvt_pk_bf16_f32 v8, 0, v8")
    a("v_add_f32 v8, v8, v41", "v_cvt_pk_bf16_f32 v8, v8, v8")
    a(f"buffer_store_short v8, v43, s[{R1}:{R1+3}], 0 offen")
    a("KS_PEND:")
    stamp_end(a)
    spin_end(a)
    a("KS_ABORT:")
    a("KS_END:")
    a("s_endpgm")
    return f""".amdhsa_kernel {label}
  .amdhsa_next_free_vgpr 128
  .amdhsa_next_free_sgpr {NSGPR}
  .amdhsa_accum_offset 128
  .amdhsa_group_segment_fixed_size 0
  .amdhsa_kernarg_size 136
  .amdhsa_user_sgpr_count 2
  .amdhsa_user_sgpr_kernarg_segment_ptr 1
  .amdhsa_system_sgpr_workgroup_id_x 1
  .amdhsa_float_denorm_mode_32 3
.end_amdhsa_kernel
"""

def main():
    hdr = open(f"/code/{NAME}.s.ref").read().split("; Override launch geometry")[0]
    out = hdr
    out += f"; @launch grid=(256,1,1) block=(1024,1,1) lds={LDS_BYTES}\n"
    out += '.amdgcn_target "amdgcn-amd-amdhsa--gfx950"\n.text\n'
    a = Asm()
    d = gen(a)
    out += a.text()
    out += '.section .rodata,"a"\n.p2align 6\n' + d
    path = sys.argv[1] if len(sys.argv) > 1 else "ks.s"
    open(path, "w").write(out)
    print("wrote", path, len(out))

if __name__ == "__main__":
    main()
```
